```python
import torch

def _softmax(x, axis=-1):
    return torch.softmax(x, dim=axis)
def _gelu(x):
    return torch.nn.functional.gelu(x, approximate="tanh")
def _silu(x):
    return torch.nn.functional.silu(x)
def _sigmoid(x):
    return torch.sigmoid(x)
def _layernorm(x, axis=-1, eps=1e-5):
    m = x.mean(dim=axis, keepdim=True)
    v = x.var(dim=axis, keepdim=True, unbiased=False)
    return (x - m) / torch.sqrt(v + eps)
def _scatter_add(tgt, idx, src, axis=0):
    return tgt.clone().index_add_(axis, idx, src)
def _segment_sum(src, seg, n):
    out = torch.zeros((n,) + src.shape[1:], dtype=src.dtype)
    return out.index_add_(0, seg, src)
def _pad(x, pw):
    flat = tuple(v for pair in reversed(pw) for v in pair)
    return torch.nn.functional.pad(x, flat)

kernel_name = 'interleave_layers__sliding_local_dilated__swiglu_ffn__prompt'

def setup_inputs():

    _w = (lambda a: (lambda t: t.to(torch.bfloat16) if t.is_floating_point() else t)(torch.as_tensor(a)))
    def _A_setup():
        B, S, D = 1, 2048, 512
        return {
            "x": _w((lambda *s: torch.randn(*s, dtype=torch.bfloat16) * 0.05)(B, S, D)),
            "wqkv": _w((lambda *s: torch.randn(*s, dtype=torch.bfloat16) * 0.05)(D, 3 * D)),
            "wo": _w((lambda *s: torch.randn(*s, dtype=torch.bfloat16) * 0.05)(D, D)),
        }
    _A_in = _A_setup()

    def _B_setup():
        B, S, D, F = 1, 2048, 512, 1792
        return {
            "x": _w((lambda *s: torch.randn(*s, dtype=torch.bfloat16) * 0.05)(B, S, D)),
            "w_gate": _w((lambda *s: torch.randn(*s, dtype=torch.bfloat16) * 0.05)(D, F)),
            "w_up": _w((lambda *s: torch.randn(*s, dtype=torch.bfloat16) * 0.05)(D, F)),
            "w_down": _w((lambda *s: torch.randn(*s, dtype=torch.bfloat16) * 0.05)(F, D)),
        }
    _B_in = _B_setup()

    return {
        "A_x": _A_in["x"],
        "A_wqkv": _A_in["wqkv"],
        "A_wo": _A_in["wo"],
        "B_x": _B_in["x"],
        "B_w_gate": _B_in["w_gate"],
        "B_w_up": _B_in["w_up"],
        "B_w_down": _B_in["w_down"],
    }

def reference(A_x, A_wqkv, A_wo, B_x, B_w_gate, B_w_up, B_w_down):
    def _A_ref(x, wqkv, wo):
        B, S, D = x.shape
        H = 32; Dh = D // H
        W, dil = 8, 2
        qkv = (lambda x, *d: x.permute(*d))((x @ wqkv).reshape(B, S, 3, H, Dh), 2, 0, 3, 1, 4)
        q, k, v = qkv[0], qkv[1], qkv[2]
        scale = Dh ** -0.5
        pos = torch.arange(S)
        off = torch.arange(W) * dil
        idx = pos[:, None] - off[None, :]
        mask = idx >= 0
        idx_c = torch.where(mask, idx, 0).reshape(-1)
        kg = k[:, :, idx_c, :].reshape(B, H, S, W, Dh)
        vg = v[:, :, idx_c, :].reshape(B, H, S, W, Dh)
        logits = torch.einsum("bhsd,bhswd->bhsw", q, kg) * scale
        logits = torch.where(mask[None, None, :, :], logits, -1e9)
        attn = _softmax(logits, axis=-1)
        o = torch.einsum("bhsw,bhswd->bhsd", attn, vg)
        return (lambda x, *d: x.permute(*d))(o, 0, 2, 1, 3).reshape(B, S, D) @ wo

    def _B_ref(x, w_gate, w_up, w_down):
        g = _silu(x @ w_gate)
        u = x @ w_up
        return (g * u) @ w_down

    x = A_x
    x = x + _A_ref(_layernorm(x, axis=-1), A_wqkv, A_wo)
    x = x + _B_ref(_layernorm(x, axis=-1), B_w_gate, B_w_up, B_w_down)
    x = x + _A_ref(_layernorm(x, axis=-1), A_wqkv, A_wo)
    x = x + _B_ref(_layernorm(x, axis=-1), B_w_gate, B_w_up, B_w_down)
    return x
```

```python
import re

TRANS = ("v_exp_f32", "v_log_f32", "v_rcp_f32", "v_rsq_f32", "v_sqrt_f32", "v_sin_f32", "v_cos_f32")

def _regs(tok):
    tok = tok.strip()
    neg = tok.lstrip("-")
    if neg.startswith("abs(") or neg.startswith("|"):
        neg = neg.replace("abs(", "").replace(")", "").replace("|", "")
    m = re.fullmatch(r"([vas])\[(\d+):(\d+)\]", neg)
    if m:
        return [(m.group(1), i) for i in range(int(m.group(2)), int(m.group(3)) + 1)]
    m = re.fullmatch(r"([vas])(\d+)", neg)
    if m:
        return [(m.group(1), int(m.group(2)))]
    if neg == "vcc":
        return [("s", 106), ("s", 107)]
    if neg == "vcc_lo":
        return [("s", 106)]
    if neg == "m0":
        return [("s", 124)]
    if neg == "exec":
        return [("s", 126), ("s", 127)]
    return []

class Ins:
    __slots__ = ("text", "op", "ops", "mods", "defs", "uses", "kind", "passes", "srcC", "srcAB", "states")
    def __init__(self, text):
        self.text = text
        t = text.split(";")[0].strip()
        self.defs = []; self.uses = []; self.kind = "other"; self.passes = 0; self.srcC = []; self.srcAB = []
        self.states = 1
        if ";np" in text:
            self.op = t; self.kind = "other"; self.states = 0 if t.endswith(":") else 1; self.ops = []; self.mods = ""
            return
        if not t or t.endswith(":") or t.startswith("."):
            self.op = t; self.kind = "label" if t.endswith(":") else "dir"; self.states = 0; self.ops = []; self.mods = ""
            return
        sp = t.split(None, 1)
        op = sp[0]; self.op = op
        rest = sp[1] if len(sp) > 1 else ""
        parts = []; cur = ""; d = 0
        for ch in rest:
            if ch in "[(": d += 1
            if ch in "])": d -= 1
            if ch == "," and d == 0:
                parts.append(cur.strip()); cur = ""
            else:
                cur += ch
        if cur.strip(): parts.append(cur.strip())
        mods = ""
        if parts:
            last = parts[-1].split(None, 1)
            parts[-1] = last[0]
            if len(last) > 1: mods = last[1]
        self.ops = parts; self.mods = mods
        R = [_regs(p) for p in parts]
        base = re.sub(r"_(e32|e64|dpp|sdwa)$", "", op)
        if op.startswith("v_mfma"):
            self.kind = "mfma"
            self.passes = 8 if "32x32" in op else 4
            self.defs = R[0]; self.srcAB = R[1] + R[2]; self.srcC = R[3]; self.uses = R[1] + R[2] + R[3]
        elif op.startswith("v_"):
            self.kind = "valu"
            if base in TRANS: self.kind = "trans"
            if op.startswith("v_permlane") and "swap" in op:
                self.defs = R[0] + R[1]; self.uses = R[0] + R[1]; self.kind = "perm"
            elif op.startswith("v_readfirstlane") or op.startswith("v_readlane"):
                self.defs = R[0]; self.uses = sum(R[1:], []); self.kind = "rdlane"
            elif op.startswith("v_cmp"):
                self.defs = R[0]; self.uses = sum(R[1:], [])
            elif re.match(r"v_(add|sub|subrev|addc|subb)_co_", op):
                self.defs = R[0] + R[1]; self.uses = sum(R[2:], [])
            else:
                self.defs = R[0]; self.uses = sum(R[1:], [])
                if base in ("v_fmac_f32", "v_dot2c_f32_bf16", "v_pk_fmac_f16") or op.endswith("_dpp") or "row_" in mods or "quad_perm" in mods:
                    self.uses = self.uses + R[0]
                if base == "v_cndmask_b32" and len(parts) == 3:
                    self.uses = self.uses + _regs("vcc")
            if op.endswith("_dpp") or "row_" in mods or "quad_perm" in mods:
                self.kind = "dpp"
        elif op.startswith("ds_"):
            self.kind = "ds"
            if op.startswith("ds_read"):
                self.defs = R[0]; self.uses = sum(R[1:], [])
            else:
                self.uses = sum(R, [])
        elif op.startswith("buffer_") or op.startswith("global_"):
            self.kind = "vmem"
            if op in ("buffer_wbl2", "buffer_inv"):
                pass
            elif " lds" in " " + mods or op.startswith("global_load_lds"):
                self.uses = sum(R, []) + _regs("m0"); self.kind = "dma"
            elif "_load" in op:
                self.defs = R[0]; self.uses = sum(R[1:], [])
            elif "atomic" in op and "sc0" in mods:
                self.defs = R[0]; self.uses = sum(R, [])
            else:
                self.uses = sum(R, [])
        elif op.startswith("s_"):
            self.kind = "salu"
            if op == "s_nop":
                self.states = int(parts[0], 0) + 1; self.kind = "nop"
            elif op.startswith("s_cbranch") or op in ("s_branch", "s_endpgm", "s_setpc_b64"):
                self.kind = "branch"
            elif op.startswith("s_cmp") or op in ("s_waitcnt", "s_barrier", "s_sleep", "s_setprio"):
                self.uses = sum(R, [])
            else:
                self.defs = R[0] if R else []; self.uses = sum(R[1:], [])
                if "saveexec" in op: self.defs = self.defs + _regs("exec")

VALU_KINDS = ("valu", "trans", "perm", "rdlane", "dpp")

def need_states(p, c):
    n = 0
    pd = set(p.defs)
    if p.kind in VALU_KINDS:
        vd = {r for r in pd if r[0] in "va"}
        sd = {r for r in pd if r[0] == "s"}
        cu = set(c.uses)
        if vd & cu:
            if c.kind == "mfma": n = max(n, 2)
            if c.kind in ("perm", "dpp"): n = max(n, 2)
            if c.kind == "rdlane": n = max(n, 1)
            if p.kind == "trans" and c.kind in VALU_KINDS and c.kind != "trans": n = max(n, 1)
            if p.kind == "trans" and c.kind in ("vmem", "ds", "dma"): n = max(n, 1)
        if sd & cu:
            if c.kind in VALU_KINDS: n = max(n, 4 if c.kind == "rdlane" else 2)
            if c.kind in ("vmem", "dma"): n = max(n, 5)
            if c.kind in ("salu",): n = max(n, 1)
    if p.op.startswith("v_dot") and pd & (set(c.uses) | set(c.defs)):
        if c.op != p.op or pd & set(c.uses[:-len(c.defs)] if c.op.startswith("v_dot2c") else c.uses): n = max(n, 3)
    if p.kind == "mfma":
        big = p.passes == 8
        if c.kind == "mfma":
            if pd & set(c.srcAB): n = max(n, 12 if big else 8)
            if pd & set(c.srcC):
                if not (p.defs == c.srcC and p.passes == c.passes): n = max(n, 10 if big else 6)
            elif pd & set(c.defs):
                n = max(n, 10 if big else 6)
        else:
            if pd & (set(c.uses) | set(c.defs)): n = max(n, 12 if big else 8)
            if c.kind in VALU_KINDS and set(p.srcC) & set(c.defs): n = max(n, 7 if big else 3)
    if p.kind == "salu" and ("s", 124) in pd and c.kind == "dma": n = max(n, 1)
    if p.kind == "vmem" and re.search(r"store_dwordx[34]", p.op):
        data = set(_regs(p.ops[0] if p.op.startswith("buffer") else p.ops[1]))
        if data & set(c.defs): n = max(n, 2 if c.kind in VALU_KINDS or c.kind == "mfma" else 1)
    return n

def pad_hazards(lines, verbose=False):
    ins = [Ins(l) for l in lines]
    out = []; win = []
    added = 0
    for c in ins:
        if c.kind in ("dir",):
            out.append(c.text); continue
        need = 0
        if c.kind in ("label", "branch"):
            for p, d in win:
                if p.kind == "mfma": need = max(need, (12 if p.passes == 8 else 8) - d)
                elif p.kind in VALU_KINDS:
                    w = 5 if any(r[0] == "s" for r in p.defs) else 2
                    need = max(need, w - d)
                elif p.kind == "vmem" and re.search(r"store_dwordx[34]", p.op): need = max(need, 2 - d)
                elif p.kind == "salu" and ("s", 124) in p.defs: need = max(need, 1 - d)
            if c.kind == "branch": need -= 1
            if c.op == "s_endpgm": need = 0
        else:
            for p, d in win:
                need = max(need, need_states(p, c) - d)
        while need > 0:
            k = min(need, 16)
            out.append(f"s_nop {k-1}")
            added += k
            for w in win: w[1] += k
            need -= k
        out.append(c.text)
        for w in win: w[1] += c.states
        win = [w for w in win if w[1] < 20]
        if c.kind not in ("label", "nop"):
            win.append([c, 0])
    if verbose: print("hazard pad states added:", added)
    return out

class K:
    def __init__(self):
        self.L = []
        self.vmq = []
        self.lgq = []
        self.maxvm = 0
        self.gap = -1
        self.stamping = False
        self.only = None; self.rt = False
        self.t = 0; self.mf_free = 0; self.vec_free = 0; self.last = {}
        self.per = {}; self.bg = []; self.bg_next = 0; self.bg_held = False; self.bg_log = []
        self.stamps = []
        self.seen = set()
        self.marks = {}
    def _tick(self, text):
        i = Ins(text)
        if i.kind in ("label", "dir") or i.states == 0: return
        if i.kind == "mfma":
            self.t = max(self.t, self.mf_free, self.vec_free); self.mf_free = self.t + i.passes * 4; self.vec_free = self.t + 8; self.t += 4
        elif i.kind in VALU_KINDS or i.kind in ("ds", "vmem", "dma"):
            self.t = max(self.t, self.vec_free)
            self.t += 8 if i.kind in ("trans", "perm") else (40 if i.op == "ds_write_b128" else 4)
        elif i.kind == "nop": self.t += 4 * i.states
        else: self.t += 4
        for r in i.defs:
            if r[0] == "s": self.last[r[1]] = text
    def e(self, *texts):
        for t in texts: self.L.append(t); self._tick(t)
    def idle(self, n):
        self.t += n
    def set_s(self, text):
        if self.last.get(Ins(text).defs[0][1]) != text: self.e(text)
    set_m0 = set_s
    def bg_add(self, fn, period, tag=None, dep=None): self.bg.append((fn, period, tag, dep))
    def bg_ready(self):
        return bool(self.bg) and not self.bg_held and self.t >= self.bg_next and (self.bg[0][3] is None or self.bg[0][3] in self.marks)
    def bg_step(self, force=False):
        if not force and not self.bg_ready(): return False
        fn, period, tag, dep = self.bg.pop(0)
        assert dep is None or dep in self.marks, f"background op forced before {dep}"
        self.bg_log.append((self.t, tag, force))
        fn(); self.bg_next = self.t + self.per[period]
        return True
    def bg_need(self, tags):
        while any(it[2] in tags for it in self.bg): self.bg_step(force=True)
    def bg_burst(self, n):
        for _ in range(n):
            if self.bg and (self.bg[0][3] is None or self.bg[0][3] in self.marks): self.bg_step(force=True)
    def c(self, text): self.L.append("; " + text)
    def label(self, n): self.L.append(n + ":"); self.last = {}
    def vm(self, text, tag=None):
        if len(self.vmq) >= 60:
            self.L.append("s_waitcnt vmcnt(40)"); self.vmq = self.vmq[-40:]
        self.L.append(text); self._tick(text); self.vmq.append(tag); self.seen.add(tag)
        self.maxvm = max(self.maxvm, len(self.vmq))
        assert len(self.vmq) <= 63, "too many vmem ops in flight"
    def ds(self, text, tag=None):
        self.L.append(text); self._tick(text); self.lgq.append(tag); self.seen.add(tag)
        if len(self.lgq) > 15:
            raise AssertionError("too many ds ops in flight")
    def _cnt(self, q, tags):
        idx = -1
        for i, t in enumerate(q):
            if t in tags: idx = i
        return idx
    def wait(self, vm=None, lg=None):
        parts = []
        if vm is not None and vm != "all": self.bg_need(vm if isinstance(vm, (list, set)) else [vm])
        for grp in (vm, lg):
            if grp is None or grp == "all": continue
            for t in (grp if isinstance(grp, (list, set)) else [grp]):
                assert t in self.seen, f"wait for an op that was never issued: {t}"
        if vm is not None and self.vmq:
            if vm == "all": idx = len(self.vmq) - 1
            else: idx = self._cnt(self.vmq, vm if isinstance(vm, (list, set)) else [vm])
            if idx >= 0:
                parts.append(f"vmcnt({len(self.vmq)-1-idx})"); self.vmq = self.vmq[idx+1:]
        if lg is not None and self.lgq:
            if lg == "all": idx = len(self.lgq) - 1
            else: idx = self._cnt(self.lgq, lg if isinstance(lg, (list, set)) else [lg])
            if idx >= 0:
                parts.append(f"lgkmcnt({len(self.lgq)-1-idx})"); self.lgq = self.lgq[idx+1:]
        if parts: self.e("s_waitcnt " + " ".join(parts))
    def mark(self, name): self.marks[name] = self.gap
    def stamp(self, name, real=False):
        if not self.stamping: return
        if self.only is not None and name not in ("drained", "rt1") and not any(name.startswith(p) for p in self.only): return
        n = len(self.stamps); self.stamps.append(name)
        self.e("s_memrealtime s[96:97]" if (real or self.rt) else "s_memtime s[96:97]", "s_waitcnt lgkmcnt(0)", f"v_writelane_b32 v0, s96, {n}")
        self.lgq = []
    def forget(self):
        self.seen = set(self.vmq) | set(self.lgq)
    def text(self, verbose=False):
        return "\n".join(pad_hazards(self.L, verbose)) + "\n"

class Flex:
    def __init__(self):
        self.items = []
    def add(self, fn, cost=1, at=0): self.items.append((cost, fn, at))
    def skip(self, n): self.items.append(("skip", n, 0))
    def dep(self, name): self.items.append(("dep", name, 0))
    def __len__(self): return len(self.items)

def run_gaps(k, mains, fixed, flexes, cap, over=lambda i: False):
    hold = [0] * len(flexes)
    for i, m in enumerate(mains):
        m()
        k.gap = i
        room = cap
        for cost, fn in fixed.get(i, []):
            fn(); room -= cost
        if room > 0 and k.bg_step(): room -= 1
        progress = True; fresh = True
        while progress:
            progress = False
            for j, f in enumerate(flexes):
                while f.items and (f.items[0][0] == "skip" or (f.items[0][0] == "dep" and f.items[0][1] in k.marks)):
                    if f.items[0][0] == "skip": hold[j] = i + f.items[0][1]
                    f.items.pop(0)
                if not f.items or hold[j] > i or f.items[0][0] == "dep": continue
                cost, fn, at = f.items[0]
                if room <= 0 and cost > 0: continue
                if at > i: continue
                if cost > room + (1 if (room == cap or over(i)) else 0) and not (cost >= cap - 2 and cost > 2 and fresh): continue
                if cost: fresh = False
                f.items.pop(0); fn(); room -= cost; progress = True
                break

def drain(flexes, k=None):
    if k is not None: k.gap = 10**9
    live = [f for f in flexes if f.items]
    while live:
        for f in list(live):
            while f.items:
                it = f.items[0]
                if it[0] == "dep" and it[1] not in k.marks:
                    assert len(live) > 1, "dead dependency"
                    break
                f.items.pop(0)
                if it[0] == "dep": continue
                if it[0] == "skip":
                    if len(live) > 1: break
                    continue
                it[1]()
                if k is not None: k.bg_step()
            if not f.items: live.remove(f)
```

```python
from asmlib import *
NAME = "interleave_layers__sliding_local_dilated__swiglu_ffn__prompt"
KB = 1024
WS_FLAGS = 0
WS_PGU = 0x10000
PGU_SLICE = 231 * KB
WS_PDN = WS_PGU + 16 * PGU_SLICE
WS_PWO = WS_PDN + 8 * 224 * KB
WS_ST = [WS_PWO + 512 * KB + i * 128 * KB for i in range(3)]
WS_HALO = WS_ST[2] + 128 * KB
WS_HST = WS_HALO + 512 * KB
WS_O0 = (WS_HST + 32 * KB + 0xFFFF) & ~0xFFFF
WS_O = [WS_O0, WS_O0 + 2048 * KB]
WS_X = [WS_O0 + (2 + i) * 2048 * KB for i in range(3)]
WS_H = [WS_X[2] + 2048 * KB + i * 7168 * KB for i in range(2)]
WS_END = WS_H[1] + 7168 * KB
WS_SIZE = 268435456
LDS_TOTAL = 163840
L_SA = 81920
L_X = 98304
L_HT = 61440
sWG, sW, sC, sM, sB, sCS = 2, 3, 4, 5, 6, 7
SRD_WS, SRD_X, SRD_QKV, SRD_OUT, SRD_PK, SRD_DBG = "s[8:11]", "s[12:15]", "s[16:19]", "s[20:23]", "s[24:27]", "s[28:31]"
LOG2E = 1.4426950408889634

import struct
def f2u(x): return struct.unpack("<I", struct.pack("<f", x))[0]

def vr(a, n=1, p="v"): return f"{p}{a}" if n == 1 else f"{p}[{a}:{a+n-1}]"
def ar(a, n=1): return vr(a, n, "a")

def srd(k, q, lo, size):
    assert all(k.writer[r].startswith("s_load") for r in (lo, lo + 1)), "kernel argument overwritten"
    k.e(f"s_mov_b32 s{q}, s{lo}", f"s_mov_b32 s{q+1}, s{lo+1}", f"s_mov_b32 s{q+2}, {size:#x}", f"s_mov_b32 s{q+3}, 0x20000")

def prologue(k, endlabel):
    k.e("s_cmp_ge_u32 s2, 256", f"s_cbranch_scc1 {endlabel}")
    k.e("s_load_dwordx16 s[64:79], s[0:1], 0", "s_load_dwordx4 s[80:83], s[0:1], 64")
    k.e("v_and_b32 v1, 63, v0", "v_lshrrev_b32 v2, 6, v0")
    k.e("s_and_b32 s32, s2, 7", "s_lshr_b32 s33, s2, 3")
    k.e(f"v_readfirstlane_b32 s{sW}, v2")
    k.e(f"s_and_b32 s{sM}, s33, 15", "s_lshr_b32 s33, s33, 4", "s_lshl_b32 s32, s32, 1", f"s_add_u32 s{sC}, s32, s33")
    k.e(f"s_lshr_b32 s33, s{sM}, 3", f"s_lshl_b32 s{sB}, s{sC}, 1", f"s_add_u32 s{sB}, s{sB}, s33", f"s_and_b32 s{sCS}, s{sM}, 7")
    k.e("v_lshlrev_b32 v2, 4, v1")
    k.e("s_waitcnt lgkmcnt(0)")
    srd(k, 8, 82, WS_SIZE)
    srd(k, 12, 64, 2048 * 1024)
    srd(k, 16, 66, 512 * 3072)
    srd(k, 20, 78, 2048 * 1024)
    srd(k, 28, 80, 256)

def kd(name, vgpr=512, sgpr=102):
    return (f'.amdhsa_kernel {name}\n  .amdhsa_next_free_vgpr {vgpr}\n  .amdhsa_next_free_sgpr {sgpr}\n'
            f'  .amdhsa_accum_offset 256\n  .amdhsa_group_segment_fixed_size 0\n  .amdhsa_kernarg_size 80\n'
            f'  .amdhsa_user_sgpr_count 2\n  .amdhsa_user_sgpr_kernarg_segment_ptr 1\n'
            f'  .amdhsa_system_sgpr_workgroup_id_x 1\n.end_amdhsa_kernel\n')
```

```python
import sys, json
from common import *

MF16 = "v_mfma_f32_16x16x32_bf16"
MF16S = "v_mfma_f32_16x16x16_bf16"
MF32 = "v_mfma_f32_32x32x16_bf16"
vL16, vFV, vFA, vP = 2, 8, 9, 10
CSV, CSQ, CSK, RES = 11, 12, 16, 20
OOB = 0x80000000
FL_O, FL_X1, FL_H, FL_X2 = 0, 4096, 8192, 12288
FL_HX = 16384 + 12288
def fl(layer, off): return WS_FLAGS + 16384 * layer + off
sROT, sBUD, sGL, sGS, sDS = 84, 98, 60, 61, 85
sT0, sT1, sPO, sFO = 32, 33, 86, 87
sML, sMS = 68, 69
WS_HXF = WS_O0 - 0x10000 if False else WS_END
WS_STAMP = 0x2000000
L_SA0, L_SA1, L_XH0, L_CS = 80896, 97280, 81920, 79872
def e_of(kk):
    p, tl = divmod(kk, 7)
    return 4 * p + tl if tl < 4 else 16 + 3 * p + (tl - 4)
KK_OF = {e_of(kk): kk for kk in range(28)}

class P:
    a1_bg_start, a1_bg_step = 30, 6
    gu_lead = 7
    gu_bg_start, gu_bg_step = 50, 2.6
    dn_lead = 12
    bgm = ""
    sleep = 0
    drop = ()
    codepf = 0
    ld = "sc1"
    dst = "sc1"
    safe = False
    plain = True
    notouch = ()

BO, BX1, BS1, BH = [WS_O[0]] * 2, [WS_X[0]] * 2, [WS_ST[0]] * 2, [WS_H[0]] * 2
def h_base(d, layer):
    return [f"s_lshl_b32 {d}, s{sC}, 2", f"s_add_u32 {d}, {d}, s{sW}", f"s_mul_i32 {d}, {d}, 112", f"s_mul_i32 s33, s{sM}, 7",
            f"s_add_u32 {d}, {d}, s33", f"s_lshl_b32 {d}, {d}, 10", f"s_add_u32 {d}, {d}, {BH[layer]}"]

class F(K):
    def __init__(self):
        super().__init__(); self.spins = []; self.nspin = 0; self.st = ""; self.npf = 0
    def poll_issue(self, va, tag): self.vm(f"buffer_load_dword v{vP}, v{va}, {SRD_WS}, s{sPO} offen sc1", tag)
    def poll_addr(self, va, nl, sh=2):
        self.e(f"v_cmp_gt_u32 vcc, {nl}, v1", f"v_lshlrev_b32 v{va}, {sh}, v1", f"v_mov_b32 v{vP}, {OOB:#x}", f"v_cndmask_b32 v{va}, v{vP}, v{va}, vcc")
        self.nl = nl
    def poll_check(self, va, tag, thr):
        n = self.nspin; self.nspin += 1
        self.stamp(f"poll<{tag}")
        self.wait(vm=[tag])
        self.stamp(f"poll={tag}")
        msk = f"s_and_b32 s99, vcc_lo, {(1 << self.nl) - 1:#x}"
        self.e(f"v_cmp_gt_u32 vcc, {thr}, v{vP}", msk, f"s_cbranch_scc1 L_spin{n} ;np", f"L_back{n}: ;np")
        self.stamp(f"poll>{tag}")
        self.spins += [f"L_spin{n}:", f"s_sub_u32 s{sBUD}, s{sBUD}, 1", f"s_cbranch_scc1 L_give{n}"] + ([f"s_sleep {P.sleep}"] if P.sleep else []) + [
                       f"buffer_load_dword v{vP}, v{va}, {SRD_WS}, s{sPO} offen sc1", "s_waitcnt vmcnt(0)",
                       f"v_cmp_gt_u32 vcc, {thr}, v{vP}", msk, f"s_cbranch_scc1 L_spin{n}", f"s_branch L_back{n}",
                       f"L_give{n}:", f"s_mov_b32 s{sBUD}, 0", f"s_branch L_back{n}"]
    def flag(self, val, soff=sFO, st=None):
        self.e(f"v_mov_b32 v{vFV}, {val}")
        if st is not None:
            self.vm(f"buffer_store_dword v{vFV}, v{vFA}, {SRD_WS}, s{soff} offen {st}", "flag"); return
        self.e(f"s_or_b32 s99, s{soff}, s{sML}")
        self.vm(f"buffer_store_dword v{vFV}, v{vFA}, {SRD_WS}, s99 offen", "flag")
        self.e(f"s_or_b32 s99, s{soff}, s{sMS}")
        self.vm(f"buffer_store_dword v{vFV}, v{vFA}, {SRD_WS}, s99 offen sc1", "flag")
    def dstore(self, text, tag):
        if not P.plain:
            self.vm(text + " sc1", tag); return
        n = self.nspin; self.nspin += 1
        self.e(f"s_cmp_lg_u32 s{sML}, 0", f"s_cbranch_scc1 L_alt{n} ;np")
        self.vm(text, tag)
        self.e(f"L_back{n}: ;np")
        self.spins += [f"L_alt{n}:", "s_nop 4", text + " sc1", f"s_branch L_back{n}"]
    def touch(self, tmp, kind, base_expr, masked=True):
        if not P.plain or kind in P.notouch: return
        nl = {"p": 16, "s": 2, "h": 56}[kind]
        self.e(f"v_cmp_gt_u32 vcc, {nl}, v1")
        if kind == "p": self.e(f"v_lshrrev_b32 v{tmp}, 3, v1", f"v_lshlrev_b32 v{tmp}, 15, v{tmp}", f"v_and_b32 v{tmp+1}, 7, v1", f"v_lshl_add_u32 v{tmp}, v{tmp+1}, 7, v{tmp}")
        else: self.e(f"v_lshlrev_b32 v{tmp}, {11 if kind == 's' else 7}, v1")
        self.e(f"v_mov_b32 v{tmp+1}, {OOB:#x}", *base_expr)
        self.e(f"v_cndmask_b32 v{tmp}, v{tmp+1}, v{tmp}, vcc")
        if masked: self.e(f"s_or_b32 s32, s32, s{sML}")
        self.vm(f"buffer_load_dword v{tmp}, v{tmp}, {SRD_WS}, s32 offen", "touch")
    def vm(self, text, tag=None):
        kind = tag[0] if isinstance(tag, tuple) else tag
        if kind in P.drop:
            self.seen.add(tag); return
        super().vm(text, tag)
    def codepf(self, tmpv, per=2048):
        if not P.codepf: return
        n = self.npf; self.npf += 1
        sh = (per // 64).bit_length() - 1
        self.e(f"L_pf{n}: ;np", f"s_mul_i32 s32, s{sW}, {per}", f"s_add_u32 s32, s32, L_pf{n}-L_pc", f"v_lshlrev_b32 v{tmpv}, {sh}, v1")
        raise NotImplementedError
    def flush_spins(self):
        for l in self.spins: self.e(l)
        self.spins = []

def batch(k, i):
    src = f"s_add_u32 s62, s{sGS}, {i*16384}" if i < 15 else f"s_add_u32 s62, s{sDS}, {(16 + 4*(i-15))*1024}"
    def f(q):
        k.set_m0(f"s_add_u32 m0, s{sGL}, {(i % 10)*16384}")
        if i != 14: k.set_s(src)
        elif k.last.get(62) != f"s_cselect_b32 s62, {OOB>>1:#x}, s62":
            k.e(src, f"s_cmp_ge_u32 s{sW}, 2", f"s_cselect_b32 s62, {OOB>>1:#x}, s62")
        k.vm(f"buffer_load_dwordx4 v{vL16}, {SRD_WS}, s62 offen offset:{q*1024} {P.bgm} lds", ("gw", i))
    return [lambda q=q: f(q) for q in range(4)]

def bg_batches(k, bs, period, dep=lambda b: None):
    for b in bs:
        for f in batch(k, b): k.bg_add(f, period, ("gw", b), dep(b))
def bg_list(k, fns, period, tag, dep=None):
    for f in fns: k.bg_add(f, period, tag, dep)

def regloads(k, base_sgpr, off, dst, n, tag, tmp=63):
    fns = []
    for j in range(n):
        def f(j=j):
            k.set_s(f"s_add_u32 s{tmp}, s{base_sgpr}, {off + (j & ~3)*1024}")
            k.vm(f"buffer_load_dwordx4 {dst(j)}, v{vL16}, {SRD_WS}, s{tmp} offen offset:{(j%4)*1024} {P.bgm}", tag)
        fns.append(f)
    return fns
def wow(k): return regloads(k, 88, 0, lambda j: ar(192 + 4*j, 4), 16, "wow")

def pack_issue(k):
    k.e("v_lshrrev_b32 v44, 3, v1", "v_and_b32 v43, 7, v1", "v_and_b32 v45, 2, v44", "v_lshlrev_b32 v45, 1, v45",
        "v_xor_b32 v43, v43, v45", "v_lshlrev_b32 v43, 4, v43", f"s_add_u32 s34, s49, {L_X + 4096}")
    k.e("s_cmp_ge_u32 s2, 112", "s_cbranch_scc1 L_pki_small")
    k.e("s_and_b32 s35, s2, 1", "s_bfe_u32 s36, s2, 0x10001", "s_lshr_b32 s37, s2, 2")
    k.e("s_cmp_eq_u32 s35, 0", "s_cselect_b32 s24, s72, s74", "s_cselect_b32 s25, s73, s75",
        f"s_mov_b32 s26, {512*3584:#x}", "s_mov_b32 s27, 0x20000")
    k.e("v_mul_u32_u24 v46, 3584, v44", "v_add_u32 v46, v46, v43")
    k.e("s_lshl_b32 s38, s36, 2", f"s_add_u32 s38, s38, s{sW}", f"s_mul_i32 s38, s38, {64*3584}",
        "s_lshl_b32 s39, s37, 7", "s_add_u32 s38, s38, s39")
    for i in range(8):
        k.e(f"s_add_u32 m0, s34, {(i>>2)*8192 + (i&3)*1024}", f"s_add_u32 s39, s38, {i*8*3584}", f"buffer_load_dwordx4 v46, {SRD_PK}, s39 offen lds")
    k.e("s_branch L_pki_done")
    k.label("L_pki_small")
    k.e("s_sub_u32 s35, s2, 112", "s_lshl_b32 s35, s35, 3", f"s_lshl_b32 s36, s{sW}, 1", "s_add_u32 s35, s35, s36")
    k.e("s_cmp_lt_u32 s35, 896", "s_cselect_b32 s24, s76, s68", "s_cselect_b32 s25, s77, s69", f"s_mov_b32 s26, {512*1024:#x}",
        f"s_cselect_b32 s26, {1792*1024:#x}, s26", "s_mov_b32 s27, 0x20000", "s_cselect_b32 s37, 1, 0",
        "s_movk_i32 s38, 896", "s_cselect_b32 s38, 0, s38")
    k.e("s_sub_u32 s35, s35, s38", "s_and_b32 s36, s35, 7", "s_lshr_b32 s35, s35, 3")
    k.e("v_lshl_add_u32 v46, v44, 10, v43", "s_lshl_b32 s38, s35, 14", "s_lshl_b32 s39, s36, 7", "s_add_u32 s38, s38, s39")
    for i in range(2):
        for h in range(2):
            k.e(f"s_add_u32 m0, s34, {(2*i+h)*1024}", f"s_add_u32 s39, s38, {i*128 + h*8192}", f"buffer_load_dwordx4 v46, {SRD_PK}, s39 offen lds")
    k.label("L_pki_done")
    k.vmq.append("pk"); k.seen.add("pk")

def pack_process(k):
    st = "sc1"
    k.e("v_bfe_u32 v46, v1, 2, 2", "v_and_b32 v47, 3, v1", "v_bfe_u32 v48, v1, 4, 1", "v_lshrrev_b32 v49, 5, v1")
    k.e("v_and_b32 v50, 2, v46", "v_add_u32 v50, v50, v48", "v_lshlrev_b32 v50, 5, v50",
        "v_lshl_add_u32 v50, v46, 7, v50", "v_lshl_add_u32 v50, v47, 3, v50", "v_add_u32 v50, s34, v50")
    k.e("s_cmp_ge_u32 s2, 112", "s_cbranch_scc1 L_pk_small")
    q0 = list(k.vmq)
    k.e("v_lshl_add_u32 v56, v49, 10, v50", "v_xor_b32 v57, 64, v56")
    k.e("s_lshl_b32 s39, s37, 2", "v_add_u32 v58, s39, v48")
    k.e("s_lshl_b32 s70, s36, 2", f"s_add_u32 s70, s70, s{sW}", "s_lshl_b32 s70, s70, 2")
    k.e("v_and_b32 v66, 15, v1", "s_lshl_b32 s71, s35, 8", "v_lshl_add_u32 v66, v66, 4, s71")
    for p in range(2):
        T, fs, tl, st_, b, aug = 59, 60, 61, 62 + p, 64 + p, 68 + p
        k.e(f"v_add_u32 v{T}, {2*p}, v58", f"v_mul_u32_u24 v{fs}, 9363, v{T}", f"v_lshrrev_b32 v{fs}, 16, v{fs}",
            f"v_mul_u32_u24 v{tl}, 7, v{fs}", f"v_sub_u32 v{tl}, v{T}, v{tl}")
        k.e(f"v_cmp_gt_u32 vcc, 3, v{tl}", f"v_mul_u32_u24 v67, 33, v{tl}", f"v_mov_b32 v{st_}, 1", "v_mov_b32 v70, 3",
            f"v_cndmask_b32 v67, v67, v{tl}, vcc", f"v_cndmask_b32 v{st_}, v{st_}, v70, vcc")
        k.e(f"v_mul_u32_u24 v{fs}, 231, v{fs}", f"v_add_u32 v67, v67, v{fs}")
        k.e(f"v_lshl_add_u32 v70, v{st_}, 5, v67", "v_lshlrev_b32 v70, 10, v70", "v_add_u32 v70, v70, v66",
            "s_lshl_b32 s71, s36, 9", f"v_add_u32 v{aug}, s71, v70")
        k.e(f"v_mul_lo_u32 v70, v{st_}, s70", "v_add_u32 v67, v67, v70", "v_lshlrev_b32 v67, 10, v67",
            "v_add_u32 v67, v67, v66", f"v_lshl_add_u32 v{b}, v49, 9, v67", f"v_lshlrev_b32 v{st_}, 10, v{st_}")
    k.e("v_mov_b32 v71, 0x3f803f80", "v_mov_b32 v72, 0", "v_mov_b32 v73, 0", f"s_mov_b32 s71, {WS_PGU}")
    k.wait(vm="pk")
    for ks in range(4):
        for p in range(2):
            r = 76 + 8 * (ks & 1) + 4 * p
            for j in range(2): k.ds(f"ds_read_b64_tr_b16 {vr(r+2*j,2)}, v{56+p} offset:{(ks>>1)*8192 + (ks&1)*2048 + j*512}", ("t", ks, p))
        for p in range(2):
            r = 76 + 8 * (ks & 1) + 4 * p
            k.wait(lg=[("t", ks, p)])
            k.vm(f"buffer_store_dwordx4 {vr(r,4)}, v{64+p}, {SRD_WS}, s71 offen {st}", "pks")
            for d in range(4): k.e(f"v_dot2c_f32_bf16 v{72+p}, v{r+d}, v71")
            if ks < 3: k.e(f"v_add_u32 v{64+p}, v{64+p}, v{62+p}")
    k.e("v_permlane32_swap_b32 v72, v73", "v_add_f32 v72, v72, v73")
    k.e(f"s_lshl_b32 s72, s{sW}, 8", "s_add_u32 s72, s72, 0x10000", "v_lshl_add_u32 v74, v1, 2, s72")
    k.ds(f"ds_write_b32 v74, v72 offset:{L_CS - 65536}")
    k.wait(lg="all")
    k.e("s_barrier", f"s_cmp_lg_u32 s{sW}, 0", "s_cbranch_scc1 L_pk_done")
    for w in range(4): k.ds(f"ds_read_b32 v{92+w}, v74 offset:{L_CS - 65536 + 256*w}")
    k.e("v_cmp_gt_u32 vcc, 32, v1", "v_mov_b32 v98, 0", "v_mov_b32 v99, 0", "v_cndmask_b32 v68, v69, v68, vcc")
    k.wait(lg="all")
    k.e("v_add_f32 v92, v92, v93", "v_add_f32 v94, v94, v95", "v_add_f32 v92, v92, v94")
    k.e("v_cvt_pk_bf16_f32 v97, v92, v98", "v_lshlrev_b32 v93, 16, v97", "v_sub_f32 v93, v92, v93", "v_cvt_pk_bf16_f32 v96, v92, v93")
    k.vm(f"buffer_store_dwordx4 v[96:99], v68, {SRD_WS}, s71 offen {st}", "pks")
    k.e("s_branch L_pk_done")
    k.label("L_pk_small")
    k.vmq = list(q0)
    k.e("s_mul_i32 s38, s35, 2341", "s_lshr_b32 s38, s38, 16", "s_mul_i32 s39, s38, 28", "s_sub_u32 s39, s35, s39",
        "s_mul_i32 s70, s39, 9363", "s_lshr_b32 s70, s70, 16", "s_mul_i32 s71, s70, 7", "s_sub_u32 s71, s39, s71",
        "s_lshl_b32 s72, s70, 2", "s_add_u32 s72, s72, s71", "s_mul_i32 s73, s70, 3", "s_add_u32 s73, s73, s71", "s_add_u32 s73, s73, 12",
        "s_cmp_lt_u32 s71, 4", "s_cselect_b32 s72, s72, s73", "s_mul_i32 s38, s38, 28", "s_add_u32 s72, s72, s38")
    k.e("s_cmp_eq_u32 s37, 1", "s_cselect_b32 s35, s72, s35", f"s_mov_b32 s38, {WS_PWO}", f"s_cselect_b32 s38, {WS_PDN}, s38",
        f"s_mov_b32 s39, {64*KB}", f"s_cselect_b32 s39, {224*KB}, s39", "s_cselect_b32 s73, 9, 10", "s_movk_i32 s74, 512",
        "s_cselect_b32 s74, 0x400, s74")
    k.e("v_lshlrev_b32 v56, s73, v49", "v_add_u32 v56, v56, v50", "v_xor_b32 v57, 64, v56", "v_add_u32 v58, s74, v56", "v_add_u32 v59, s74, v57")
    k.e("s_mul_i32 s36, s36, s39", "s_add_u32 s38, s38, s36", "s_lshl_b32 s35, s35, 11", "s_add_u32 s38, s38, s35")
    k.wait(vm="pk")
    for i in range(2):
        for nn in range(2):
            r = 76 + 8 * i + 4 * nn
            k.ds(f"ds_read_b64_tr_b16 {vr(r,2)}, v{56+nn} offset:{i*2048}", ("t", i, nn))
            k.ds(f"ds_read_b64_tr_b16 {vr(r+2,2)}, v{58+nn} offset:{i*2048}", ("t", i, nn))
    for i in range(2):
        for nn in range(2):
            r = 76 + 8 * i + 4 * nn
            k.wait(lg=[("t", i, nn)])
            k.vm(f"buffer_store_dwordx4 {vr(r,4)}, v{vL16}, {SRD_WS}, s38 offen offset:{nn*1024} {st}", "pks")
        if i == 0: k.e("s_add_u32 s38, s38, s39")
    k.label("L_pk_done")

A_XF, A_K, A_V, A_Q = 36, 76, 86, 96
A_STA, A_STB, A_OP, A_DX, A_PA, A_ST, A_ACC = 104, 106, 144, 152, 153, 156, 184
class R0: XE, XO, SA, SB, CI, ONE, M, ATT, TMP = 3, 4, 5, 6, 28, 32, 52, (116, 160), 60
class R1: XE, XO, SA, SB, CI, ONE, M, ATT, TMP = 116, 117, 118, 119, 252, 124, 120, (228, 160), 28
A_U, A_PX = 226, 115
A11_ORDER = [2, 3, 1, 0, "h"]
A11_POS = {2: 3, 3: 0, 1: 1, 0: 2, "h": 3}
sODD, sCUR0, sCUR1, sCEXP = 40, 42, 44, 46

def a1_setup(k, layer):
    R = (R0, R1)[layer]
    real = k; out = []
    class Rec:
        def e(self, *t):
            if any(x.startswith("s_cmp") for x in t): out.append(lambda t=t: real.e(*t))
            else: out.extend(lambda x=x: real.e(x) for x in t)
    k = Rec()
    t16, g, tt, tb = R.TMP, R.TMP + 1, R.TMP + 2, R.TMP + 3
    x, y, z = R.ONE, R.ONE + 1, R.ONE + 2
    sa = L_SA0 if layer == 0 else L_SA1
    k.e(f"v_and_b32 v{t16}, 15, v1", f"v_lshrrev_b32 v{g}, 4, v1", f"v_and_b32 v{tt}, 7, v1", f"v_bfe_u32 v{tb}, v1, 3, 1")
    k.e(f"v_lshlrev_b32 v{tb}, 13, v{tb}", f"v_add_u32 v{tb}, {L_X}, v{tb}")
    if layer == 0:
        k.e(f"v_and_b32 v{x}, 6, v{tt}", f"v_xor_b32 v{x}, v{x}, v{g}", f"v_lshlrev_b32 v{x}, 4, v{x}",
            f"v_lshl_add_u32 v{x}, v{tt}, 7, v{x}", f"v_add_u32 v{R.XE}, v{x}, v{tb}", f"v_xor_b32 v{R.XO}, 64, v{R.XE}")
    else:
        k.e(f"v_lshl_add_u32 v{x}, v{g}, 7, v{tb}", f"v_lshl_add_u32 v{R.XE}, v{tt}, 4, v{x}", f"v_add_u32 v{R.XO}, 512, v{R.XE}")
    k.e(f"v_lshlrev_b32 v{R.SA}, 3, v{t16}", f"v_add_u32 v{R.SA}, {sa}, v{R.SA}",
        f"v_lshlrev_b32 v{R.SB}, 5, v{g}", f"v_add_u32 v{R.SB}, {sa}, v{R.SB}")
    k.e(f"v_and_b32 v{x}, 1, v1", f"v_cmp_eq_u32 s[{sODD}:{sODD+1}], 1, v{x}",
        f"v_lshl_add_u32 v{y}, v{g}, 2, v{x}", f"v_cmp_le_u32 s[{sCUR0}:{sCUR0+1}], v{y}, v{t16}",
        f"v_add_u32 v{y}, 2, v{y}", f"v_cmp_le_u32 s[{sCUR1}:{sCUR1+1}], v{y}, v{t16}")
    k.e(f"v_mov_b32 v{y}, 0xffff", f"v_mov_b32 v{z}, 0xffff0000", f"v_cndmask_b32 v{y}, v{y}, v{z}, s[{sODD}:{sODD+1}]", f"v_mov_b32 v{z}, 0")
    k.e(f"v_cndmask_b32 v{R.M+2}, v{z}, v{y}, s[{sCUR0}:{sCUR0+1}]", f"v_cndmask_b32 v{R.M}, v{y}, v{z}, s[{sCUR0}:{sCUR0+1}]",
        f"v_cndmask_b32 v{R.M+3}, v{z}, v{y}, s[{sCUR1}:{sCUR1+1}]", f"v_cndmask_b32 v{R.M+1}, v{y}, v{z}, s[{sCUR1}:{sCUR1+1}]")
    k.e(f"s_cmp_eq_u32 s{sB}, 0", f"s_cselect_b32 s70, {f2u(-1e38):#x}, 0", f"s_mov_b32 s{sCEXP}, {f2u(0.25*LOG2E):#x}")
    for i in range(4): k.e(f"v_mov_b32 v{R.CI+i}, s70", f"v_mov_b32 v{R.ONE+i}, 0x3f803f80")
    return out

def o_bases(k, layer):
    k.e(f"s_lshl_b32 s32, s{sB}, 16", f"s_lshl_b32 s33, s{sCS}, 2", f"s_add_u32 s33, s33, s{sW}", "s_lshl_b32 s53, s33, 10",
        "s_add_u32 s32, s32, s53", f"s_add_u32 s53, s32, {BO[layer]}", "s_add_u32 s54, s53, 32768",
        f"s_lshl_b32 s32, s{sB}, 5", "s_add_u32 s32, s32, s33", "s_lshl_b32 s32, s32, 2", f"s_add_u32 s89, s32, {fl(layer, FL_O)}")

def ln_finish(a, s, q):
    a(f"v_mul_f32 v{s}, {f2u(-1/512):#x}, v{s}"); a(f"v_mul_f32 v{q}, {f2u(1/512):#x}, v{q}")
    a(f"v_fma_f32 v{q}, -v{s}, v{s}, v{q}"); a(f"v_max_f32 v{q}, 0, v{q}"); a(f"v_add_f32 v{q}, {f2u(1e-5):#x}, v{q}")

def fix(k, R, fx, t, acc, at, pk):
    a = lambda txt, c=1, at=0: fx.add(lambda: k.e(txt), c, at)
    i = 0 if t == "h" else t + 1
    fx.add(lambda: k.ds(f"ds_read_b64 {vr(A_STA,2)}, v{R.SA} offset:{i*128}", "sa"), 1, at - 4)
    fx.add(lambda: k.ds(f"ds_read_b128 {vr(A_STB,4)}, v{R.SB} offset:{i*128}", "sa"))
    fx.add(lambda: k.ds(f"ds_read_b128 {vr(A_STB+4,4)}, v{R.SB} offset:{i*128+16}", "sa"))
    fx.add(lambda: k.wait(lg=["sa"]), 1, at)
    for r0, cs, dst in ((acc[0], CSQ, None if t == "h" else A_Q + 2*t), (acc[1], CSK, A_K + 2*i)):
        if dst is None: continue
        if pk:
            for h in (0, 2): a(f"v_pk_fma_f32 {vr(r0+h,2)}, {vr(A_STA,2)}, {vr(cs+h,2)}, {vr(r0+h,2)} op_sel_hi:[0,1,1]")
            for h in (0, 2): a(f"v_pk_mul_f32 {vr(r0+h,2)}, {vr(A_STA,2)}, {vr(r0+h,2)} op_sel:[1,0] op_sel_hi:[1,1]")
        else:
            for r in range(4): a(f"v_fmac_f32 v{r0+r}, v{A_STA}, v{cs+r}")
            for r in range(4): a(f"v_mul_f32 v{r0+r}, v{A_STA+1}, v{r0+r}")
        for h in range(2): a(f"v_cvt_pk_bf16_f32 v{dst+h}, v{r0+2*h}, v{r0+2*h+1}")
    r0 = acc[2]
    for r in range(4): a(f"v_fmac_f32 v{r0+r}, v{A_STB+2*r}, v{CSV}")
    for r in range(4): a(f"v_mul_f32 v{r0+r}, v{A_STB+2*r+1}, v{r0+r}")
    for h in range(2): a(f"v_cvt_pk_bf16_f32 v{A_V+2*i+h}, v{r0+2*h}, v{r0+2*h+1}")
    fx.add(lambda: (k.mark(("fix", t)), k.stamp(f"t0 fix{t}")), 0)

def attn(k, R, fx, t, B):
    SC, SP, PP, O, SUM, T = B, B + 4, B + 8, B + 12, B + 16, B + 20
    a = lambda txt, c=1: fx.add(lambda: k.e(txt), c)
    q = vr(A_Q + 2*t, 2)
    fx.dep(("fix", t)); fx.dep(("fix", t - 1 if t else "h")); fx.skip(1)
    a(f"{MF16S} {vr(SC,4)}, {vr(A_K+2*(t+1),2)}, {q}, 0", 2)
    a(f"{MF16S} {vr(SP,4)}, {vr(A_K+2*t,2)}, {q}, {vr(R.CI,4) if t == 0 else '0'}", 2)
    fx.skip(3)
    for rr, cur in ((0, sCUR0), (1, sCUR1)):
        a(f"v_cndmask_b32 v{T+2}, v{SC+2*rr}, v{SC+2*rr+1}, s[{sODD}:{sODD+1}]")
        a(f"v_cndmask_b32 v{T+3}, v{SP+2*rr}, v{SP+2*rr+1}, s[{sODD}:{sODD+1}]")
        a(f"v_cndmask_b32 v{T+rr}, v{T+3}, v{T+2}, s[{cur}:{cur+1}]")
    a(f"v_max_f32 v{T+2}, v{T}, v{T+1}"); a(f"v_mov_b32 v{T+3}, v{T+2}"); fx.skip(1)
    a(f"v_permlane16_swap_b32 v{T+2}, v{T+3}", 2); a(f"v_max_f32 v{T+2}, v{T+2}, v{T+3}"); a(f"v_mov_b32 v{T+3}, v{T+2}"); fx.skip(1)
    a(f"v_permlane32_swap_b32 v{T+2}, v{T+3}", 2); a(f"v_max_f32 v{T+2}, v{T+2}, v{T+3}")
    a(f"v_mul_f32 v{T+2}, s{sCEXP}, v{T+2}")
    for rr in range(2): a(f"v_fma_f32 v{T+rr}, v{T+rr}, s{sCEXP}, -v{T+2}")
    for rr in range(2): a(f"v_exp_f32 v{T+rr}, v{T+rr}", 2)
    for rr in range(2): a(f"v_cvt_pk_bf16_f32 v{T+rr}, v{T+rr}, v{T+rr}")
    a(f"v_and_b32 v{PP}, v{T}, v{R.M}"); a(f"v_and_b32 v{PP+1}, v{T+1}, v{R.M+1}")
    a(f"v_and_b32 v{PP+2}, v{T}, v{R.M+2}"); a(f"v_and_b32 v{PP+3}, v{T+1}, v{R.M+3}")
    fx.skip(1)
    a(f"{MF16} {vr(SUM,4)}, {vr(R.ONE,4)}, {vr(PP,4)}, 0", 2)
    a(f"{MF16} {vr(O,4)}, {vr(A_V+2*t,4)}, {vr(PP,4)}, 0", 2)
    fx.skip(3)
    a(f"v_rcp_f32 v{T}, v{SUM}", 2); fx.skip(1)
    for r in range(4): a(f"v_mul_f32 v{O+r}, v{T}, v{O+r}")
    for h in range(2): a(f"v_cvt_pk_bf16_f32 v{A_OP+2*t+h}, v{O+2*h}, v{O+2*h+1}")
    fx.add(lambda: (k.mark(("attn", t)), k.stamp(f"t0 attn{t}")), 0)

def ostore(k, fx, pair):
    b = A_OP + 4 * pair
    fx.dep(("attn", 2*pair)); fx.dep(("attn", 2*pair + 1))
    if pair == 0: fx.dep("po1")
    fx.skip(1)
    fx.add(lambda: k.e(f"v_permlane16_swap_b32 v{b}, v{b+2}"), 2); fx.add(lambda: k.e(f"v_permlane16_swap_b32 v{b+1}, v{b+3}"), 2)
    fx.add(lambda: (k.dstore(f"buffer_store_dwordx4 {vr(b,4)}, v{vL16}, {SRD_WS}, s{53+pair} offen", ("ost", pair)), k.mark(("ost", pair))))

Z_WD, Z_TR, Z_HE, Z_HO, Z_OE, Z_OO = 164, 165, 166, 167, 168, 169
Z_XF, Z_SUM, Z_GR, Z_SUMH, Z_GRH, Z_CV = 104, 240, 244, 248, 252, 100
P.k_look, P.k_pack, P.k_atom, P.k_bar, P.k_vgap = 4, 2, 5, 5, 3
NS0 = 6
def z_acc(t):
    if t == "h": return (None, A_ACC + 48, A_ACC + 52)
    return (A_ACC + 12*t, A_ACC + 12*t + 4, A_ACC + 12*t + 8)

def a10_lanes(k):
    k.e("v_lshrrev_b32 v60, 3, v1", "v_and_b32 v61, 6, v60", "v_and_b32 v62, 7, v1", "v_xor_b32 v61, v61, v62",
        "v_lshlrev_b32 v61, 4, v61", f"v_lshl_add_u32 v{A_DX}, v60, 10, v61")
    k.e("v_and_b32 v61, 2, v60", f"s_and_b32 s32, s{sW}, 1", "s_lshl_b32 s32, s32, 2", "v_or_b32 v61, s32, v61", "v_xor_b32 v61, v61, v62",
        "v_lshlrev_b32 v61, 4, v61", "v_mul_u32_u24 v60, 3072, v60", f"v_add_u32 v{Z_WD}, v60, v61")
    k.e(f"s_add_u32 s{sROT}, s{sB}, s{sCS}", f"s_and_b32 s{sROT}, s{sROT}, 7")
    k.e(f"s_lshl_b32 s47, s{sB}, 3", "s_sub_u32 s48, s47, 2", "s_max_i32 s48, s48, 0", f"s_and_b32 s32, s{sW}, 1", "s_add_u32 s48, s48, s32",
        "s_lshl_b32 s48, s48, 13", f"s_lshl_b32 s32, s{sW}, 1", "s_add_u32 s47, s47, s32", "s_lshl_b32 s47, s47, 13")
    k.e(f"s_mul_i32 s51, s{sW}, {8*3072}", f"s_lshl_b32 s32, s{sCS}, 7", "s_add_u32 s51, s51, s32", f"s_mul_i32 s52, s{sW}, 3072")
    k.e(f"s_lshl_b32 s49, s{sW}, 14", f"s_and_b32 s32, s{sW}, 1", "s_lshl_b32 s50, s32, 13", f"s_lshr_b32 s32, s{sW}, 1",
        "s_lshl_b32 s33, s32, 10", "s_add_u32 s50, s50, s33", f"s_add_u32 s90, s32, s{sROT}")

def a10_x(k, c):
    S = lambda *t: [("s", lambda x=x: k.e(x)) for x in t]
    ld = lambda: k.vm(f"buffer_load_dwordx4 v{A_DX}, {SRD_X}, s33 offen lds", ("x", c))
    ops = S(f"s_add_u32 s33, s{sROT}, {c}", "s_and_b32 s33, s33, 7", "s_lshl_b32 s33, s33, 7", f"s_add_u32 m0, s49, {L_X + c*1024}", "s_add_u32 s33, s33, s47")
    ops += [("v", ld)] + S(f"s_add_u32 m0, s49, {L_X + 8192 + c*1024}", "s_add_u32 s33, s33, 8192") + [("v", ld)]
    if c % 2 == 0:
        ops += S(f"s_add_u32 s33, s90, {c}", "s_and_b32 s33, s33, 7", "s_lshl_b32 s33, s33, 7", f"s_add_u32 m0, s50, {L_XH0 + c*1024}", "s_add_u32 s33, s33, s48") + [("v", ld)]
    return ops

def a10_w(k, s):
    S = lambda *t: [("s", lambda x=x: k.e(x)) for x in t]
    if s & 1: ops = S(f"s_add_u32 m0, s52, {(s % NS0)*12288}", f"s_add_u32 s63, s63, {32*3072}")
    else: ops = S(f"s_add_u32 s63, s{sROT}, {s>>1}", "s_and_b32 s63, s63, 7", f"s_mul_i32 s63, s63, {64*3072}", f"s_add_u32 m0, s52, {(s % NS0)*12288}", "s_add_u32 s63, s63, s51")
    for p in range(3): ops.append(("v", lambda p=p: k.vm(f"buffer_load_dwordx4 v{Z_WD}, {SRD_QKV}, s63 offen offset:{p*1024} lds", ("w", s))))
    return ops
def run(ops):
    for _, f in ops: f()

def fill(k, mains, streams, cap=2):
    lastv = -99
    for g, m in enumerate(mains):
        m(); k.gap = g
        for a, o in streams:
            if a <= g and o and o[0][0] == "s": o.pop(0)[1](); break
        room = cap; nd = 0
        while room > 0:
            pick = None
            for a, o in streams:
                if a > g or not o: continue
                t = o[0][0]
                if t == "d" and nd >= 1: continue
                if t == "v" and g - lastv < P.k_vgap: continue
                pick = o; break
            if pick is None: break
            t, f = pick.pop(0); f(); room -= 2 if t == "b" else 1
            if t == "d": nd += 1
            if t == "v": lastv = g
    for a, o in streams: run(o)

def a10_lanes2(k):
    k.e("v_lshrrev_b32 v60, 4, v1", "v_bfe_u32 v61, v1, 2, 2", "v_and_b32 v62, 1, v60", "v_lshlrev_b32 v62, 1, v62",
        "v_lshrrev_b32 v63, 1, v61", "v_or_b32 v62, v62, v63", f"v_xor_b32 v62, s{sW}, v62", "v_lshlrev_b32 v62, 5, v62",
        "v_mul_u32_u24 v60, 3072, v60", "v_lshl_add_u32 v60, v61, 7, v60", "v_add_u32 v60, v60, v62",
        "v_and_b32 v61, 3, v1", f"v_lshl_add_u32 v{Z_TR}, v61, 3, v60")
    k.e(f"v_subrev_u32 v{Z_HE}, 16384, v{R0.XE}", f"v_subrev_u32 v{Z_HO}, 16384, v{R0.XO}",
        f"v_add_u32 v{Z_OE}, s49, v{R0.XE}", f"v_add_u32 v{Z_OO}, s49, v{R0.XO}")

def a10_loop(k, first):
    LA = P.k_look
    def sync(s, extra=()):
        k.wait(vm=[("w", s), ("x", s >> 1)] + list(extra)); k.e("s_barrier")
    nxt = [first]
    def dmas(upto):
        out = []
        while nxt[0] <= min(upto, 15):
            n = nxt[0]; nxt[0] += 1
            if n % 2 == 0: out += a10_x(k, n // 2)
            out += a10_w(k, n)
        return out
    def reads(s):
        fb = Z_XF + 24 * (s & 1); off = (s >> 1) * 1024; o = s & 1
        tr = lambda p, j: ("d", lambda: k.ds(f"ds_read_b64_tr_b16 {ar(12*s+4*p+2*j,2)}, v{Z_TR} offset:{(s%NS0)*12288 + p*1024 + j*512}", ("r", s, 0 if p == 0 else 1)))
        xr = lambda d, a, of, grp: ("d", lambda: k.ds(f"ds_read_b128 {vr(d,4)}, v{a} offset:{of}", ("r", s, grp)))
        out = [tr(0, 0), tr(0, 1)] + [xr(fb + 4*t, R0.XO if o else R0.XE, t*16384 + off, 0) for t in range(4)]
        out += [tr(1, 0), tr(1, 1), tr(2, 0), tr(2, 1), xr(fb + 16, Z_HO if o else Z_HE, off, 1), xr(fb + 20, Z_OO if o else Z_OE, off, 1)]
        return out
    sync(0)
    k.stamp("k0")
    run(reads(0)); run(dmas(LA - 1))
    for s in range(16):
        fb = Z_XF + 24 * (s & 1)
        c = lambda r: "0" if s == 0 else vr(r, 4)
        wq, wk, wv, one = ar(12*s, 4), ar(12*s + 4, 4), ar(12*s + 8, 4), vr(R0.ONE, 4)
        ms = [f"{MF16} {vr(z_acc(t)[0],4)}, {wq}, {vr(fb+4*t,4)}, {c(z_acc(t)[0])}" for t in range(4)]
        ms.append(f"{MF16} {vr(CSQ,4)}, {wq}, {one}, {c(CSQ)}")
        for t in [0, 1, 2, 3, "h"]:
            xf = vr(fb + (16 if t == "h" else 4*t), 4)
            ms.append(f"{MF16} {vr(z_acc(t)[1],4)}, {wk}, {xf}, {c(z_acc(t)[1])}")
            ms.append(f"{MF16} {vr(z_acc(t)[2],4)}, {xf}, {wv}, {c(z_acc(t)[2])}")
        ms += [f"{MF16} {vr(CSK,4)}, {wk}, {one}, {c(CSK)}", f"{MF16} {vr(Z_CV,4)}, {one}, {wv}, {c(Z_CV)}",
               f"{MF16} {vr(Z_SUM,4)}, {one}, {vr(fb+20,4)}, {c(Z_SUM)}", f"{MF16} {vr(Z_GR,4)}, {vr(fb+20,4)}, {vr(fb+20,4)}, {c(Z_GR)}",
               f"{MF16} {vr(Z_SUMH,4)}, {one}, {vr(fb+16,4)}, {c(Z_SUMH)}", f"{MF16} {vr(Z_GRH,4)}, {vr(fb+16,4)}, {vr(fb+16,4)}, {c(Z_GRH)}"]
        mains = [lambda m=m: k.e(m) for m in ms]
        if s == P.k_pack:
            k.wait(lg="all"); k.stamp("s pk0"); pack_process(k); k.stamp("s pk1")
        k.wait(lg=[("r", s, 0)])
        streams = [(4, [("s", lambda: k.wait(lg=[("r", s, 1)]))])]
        if s + 1 < 16:
            ex = ["pks"] if s + 1 == P.k_atom else []
            ops = [("b", lambda: sync(s + 1, ex))] + reads(s + 1)
            if ex: ops.append(("v", lambda: k.vm(f"buffer_atomic_add v170, v171, {SRD_DBG}, 0 offen", "atom")))
            streams.append((P.k_bar, ops))
            streams.append((0, dmas(s + LA)))
        if s == P.k_touch:
            streams.append((2, [("b", lambda: k.touch(36, "p", ["s_mov_b32 s32, s53"], False)),
                                ("b", lambda: k.touch(38, "p", [f"s_add_u32 s32, s55, {BX1[0]}"], False)),
                                ("b", lambda: k.touch(40, "h", h_base("s32", 0), False))]))
        if s == P.k_gb: streams.append((16, [("v", lambda: k.vm(f"buffer_load_dword v{vP}, v172, {SRD_DBG}, 0 offen sc1", "gb"))]))
        fill(k, mains, streams)
        if s in (3, 7, 11): k.stamp(f"k{s+1}")
    k.stamp("k16")
    k.wait(vm=["gb"])
    k.e("v_and_b32 v60, 31, v10", "v_cmp_ne_u32 vcc, 16, v60", "s_and_b32 s99, vcc_lo, 0xffff", "s_cbranch_scc0 L_gb_ok")
    k.label("L_gb_spin")
    k.e(f"s_sub_u32 s{sBUD}, s{sBUD}, 1", "s_cbranch_scc1 L_gb_give", f"buffer_load_dword v{vP}, v172, {SRD_DBG}, 0 offen sc1",
        "s_waitcnt vmcnt(0)", "v_and_b32 v60, 31, v10", "v_cmp_ne_u32 vcc, 16, v60", "s_and_b32 s99, vcc_lo, 0xffff", "s_cbranch_scc1 L_gb_spin", "s_branch L_gb_ok")
    k.label("L_gb_give"); k.e(f"s_mov_b32 s{sBUD}, 0")
    k.label("L_gb_ok")
    k.e(f"v_readlane_b32 s32, v{vP}, s{sC}", "s_lshl_b32 s33, s91, 4", "s_cmp_eq_u32 s32, s33" if not P.safe else "s_cmp_eq_u32 0, 1",
        f"s_cselect_b32 s{sML}, 0, {OOB>>1:#x}", f"s_cselect_b32 s{sMS}, {OOB>>1:#x}, 0")

def wo_prepoll(k, layer):
    k.poll_addr(A_PA, 8)
    k.e(f"s_lshl_b32 s32, s{sB}, 7", f"s_lshl_b32 s33, s{sW}, 5", "s_add_u32 s32, s32, s33", f"s_add_u32 s{sPO}, s32, {fl(layer, FL_O)}")
    k.e(f"s_lshl_b32 s32, s{sB}, 16", f"s_lshl_b32 s33, s{sW}, 13", "s_add_u32 s32, s32, s33", f"s_add_u32 s59, s32, {BO[layer]}")
    k.bg_held = True
    k.poll_issue(A_PA, "po1"); k.mark("po1")

def dna(k): return regloads(k, sDS, 0, lambda j: ar(192 + 4*j, 4), 16, "dna")

def a10_tail(k):
    R = R0
    k.per = dict(P.per_tail0)
    bg_list(k, wow(k), "s4", "wow")
    bg_batches(k, [0, 1, 2, 3], "s2", lambda b: "tailbar")
    b4 = batch(k, 4)
    bg_list(k, b4[:2], "s2", ("gw", 4), "tailbar")
    bg_batches(k, [5, 6, 7], "s2", lambda b: "tailbar")
    bg_list(k, b4[2:], "s2", ("gw", 4), "wobar")
    k.stamp("t0 gb")
    k.touch(70, "s", [f"s_add_u32 s32, s56, {BS1[0]}"])
    k.bg_burst(2)
    k.e(f"v_mov_b32 v{CSV}, v{Z_CV}")
    k.e("v_and_b32 v60, 3, v1", "v_cmp_eq_u32 s[34:35], 1, v60", "v_cmp_eq_u32 s[36:37], 2, v60", "v_cmp_eq_u32 s[38:39], 3, v60",
        "v_bfe_u32 v60, v1, 2, 2", "v_lshrrev_b32 v61, 4, v1", "v_cmp_eq_u32 vcc, v60, v61", f"v_mov_b32 v60, {L_SA0 + 768}",
        f"s_lshl_b32 s32, s{sW}, 7", f"v_add_u32 v61, s32, v{R.SA}", "v_cndmask_b32 v61, v60, v61, vcc", f"v_cndmask_b32 v62, v60, v{R.SA}, vcc")
    fa = Flex(); fb = Flex()
    for fx, S, G, ad, off in ((fa, Z_SUM, Z_GR, 61, 128), (fb, Z_SUMH, Z_GRH, 62, 0)):
        a = lambda txt, c=1, fx=fx: fx.add(lambda: k.e(txt), c)
        a(f"v_cndmask_b32 v{S+1}, v{G}, v{G+1}, s[34:35]"); a(f"v_cndmask_b32 v{S+1}, v{S+1}, v{G+2}, s[36:37]"); a(f"v_cndmask_b32 v{S+1}, v{S+1}, v{G+3}, s[38:39]")
        ln_finish(a, S, S + 1); a(f"v_rsq_f32 v{S+1}, v{S+1}"); fx.skip(1)
        fx.add(lambda S=S, ad=ad, off=off: k.ds(f"ds_write_b64 v{ad}, {vr(S,2)} offset:{off}", "saw"))
    drain([fa, fb], k)
    k.e("v_and_b32 v63, 7, v1", "v_lshrrev_b32 v64, 3, v1", "v_lshlrev_b32 v63, 10, v63", "v_lshl_add_u32 v63, v64, 4, v63")
    for mm in range(2):
        k.e(f"s_add_u32 s32, s57, {mm*32768}")
        k.vm(f"buffer_load_dwordx4 {vr(RES+4*mm,4)}, v63, {SRD_X}, s32 offen", "res")
    k.wait(lg="all"); k.e("s_barrier"); k.mark("tailbar")
    k.stamp("t0 bar")
    fx = Flex(); f1 = Flex(); f2 = Flex()
    for t in (2, 1, 3, 0, "h"): fix(k, R, fx, t, z_acc(t), 0, True); fx.skip(1)
    attn(k, R, f1, 2, R.ATT[0]); attn(k, R, f2, 3, R.ATT[1]); ostore(k, f2, 1)
    attn(k, R, f1, 1, R.ATT[0]); attn(k, R, f2, 0, R.ATT[1]); ostore(k, f2, 0)
    f3 = Flex(); f3.dep(("ost", 1))
    for _ in range(P.l0_flag_delay): f3.skip(1)
    f3.add(lambda: (k.wait(vm=[("ost", 1)]), k.flag(1, 89), k.mark("oflag1")))
    f3.dep(("attn", 0)); f3.add(lambda: wo_prepoll(k, 0))
    drain([fx, f1, f2, f3], k)
    k.stamp("a1 end")
P.l0_flag_delay = 6
P.per_tail0 = {"s2": 100, "s4": 60}

def a11_bases(k):
    out = []
    S = lambda *t: out.extend(lambda x=x: k.e(x) for x in t)
    S(f"s_lshr_b32 s70, s{sW}, 1", "s_lshl_b32 s49, s70, 13", f"s_and_b32 s71, s{sW}, 1", "s_lshl_b32 s71, s71, 2",
      f"s_add_u32 s50, s71, s{sROT}", "s_lshl_b32 s71, s71, 10")
    for i in range(4):
        S(f"s_add_u32 s70, s50, {i}", "s_and_b32 s70, s70, 7", "s_lshl_b32 s70, s70, 10", "s_add_u32 s70, s70, s49", f"s_sub_u32 s{92+i}, s70, {i*1024}")
    S("s_add_u32 s49, s49, s71", f"s_lshl_b32 s47, s{sB}, 16", f"s_add_u32 s47, s47, {WS_X[1]}")
    S(f"s_sub_u32 s48, s{sB}, 1", "s_max_i32 s48, s48, 0", "s_lshl_b32 s51, s48, 10", f"s_add_u32 s51, s51, {WS_HST}",
      "s_lshl_b32 s52, s48, 11", f"s_add_u32 s52, s52, {WS_HXF}", "s_lshl_b32 s48, s48, 14", f"s_add_u32 s48, s48, {WS_HALO}")
    S("v_lshrrev_b32 v28, 4, v1", "v_and_b32 v29, 15, v1", "v_lshlrev_b32 v29, 4, v29", f"v_lshl_add_u32 v{A_U}, v28, 9, v29", f"v_lshl_add_u32 v{A_U+1}, v28, 8, v29")
    S(f"s_lshl_b32 s70, s{sB}, 12", f"s_and_b32 s71, s{sW}, 1", "s_lshl_b32 s71, s71, 8", "s_add_u32 s70, s70, s71", f"s_add_u32 s90, s70, {WS_ST[1]}")
    out.append(lambda: k.e(f"s_lshl_b32 s70, s{sB}, 1", f"s_add_u32 s70, s70, s{sW}", "s_lshl_b32 s72, s70, 13", f"s_lshl_b32 s71, s{sCS}, 10", "s_add_u32 s72, s72, s71",
        f"s_add_u32 s72, s72, {WS_HALO - 16384}", f"s_cmp_ge_u32 s{sW}, 2", f"s_cselect_b32 s72, s72, {OOB>>1:#x}"))
    out.append(lambda: k.e(f"s_lshl_b32 s73, s{sB}, 10", f"s_lshr_b32 s71, s{sCS}, 1", "s_lshl_b32 s71, s71, 8", "s_add_u32 s73, s73, s71", f"s_and_b32 s71, s{sCS}, 1",
        "s_lshl_b32 s71, s71, 3", "s_add_u32 s73, s73, s71"))
    out.append(lambda: k.e(f"s_lshl_b32 s71, s{sW}, 7", "s_add_u32 s73, s73, s71", f"s_add_u32 s73, s73, {WS_HST - 256}",
        f"s_cmp_ge_u32 s{sW}, 2", f"s_cselect_b32 s73, s73, {OOB>>1:#x}"))
    out.append(lambda: k.e(f"s_lshl_b32 s70, s{sB}, 3", f"s_add_u32 s70, s70, s{sCS}", "s_lshl_b32 s70, s70, 1", f"s_add_u32 s70, s70, s{sW}", "s_lshl_b32 s70, s70, 7",
        f"s_add_u32 s70, s70, {WS_HXF - 256}", f"s_cmp_ge_u32 s{sW}, 2", f"s_cselect_b32 s91, s70, {OOB>>1:#x}"))
    return out

def a11_x(k, tile):
    fns = []
    for i in range(4):
        def f(i=i):
            k.set_m0(f"s_add_u32 m0, s49, {L_X + A11_POS[tile]*16384}")
            k.e(f"s_add_u32 s32, s{48 if tile == 'h' else 47}, s{92+i}")
            if tile not in (0, "h"): k.e(f"s_add_u32 s32, s32, {tile*16384}")
            k.vm(f"buffer_load_dwordx4 v{vL16}, {SRD_WS}, s32 offen offset:{i*1024} sc1 lds", ("x", tile))
        fns.append(f)
    return fns

def stats_path(k, fx, S, tag, addr, tok, at=0):
    a = lambda txt, c=1: fx.add(lambda: k.e(txt), c)
    s, q = S, S + 1
    fx.add(lambda: k.wait(vm=[tag]), 1, at)
    a(f"v_add_f32 v{s}, v{s}, v{S+2}"); a(f"v_add_f32 v{q}, v{q}, v{S+3}"); fx.skip(1)
    a(f"v_permlane16_swap_b32 v{s}, v{q}", 2); a(f"v_add_f32 v{s}, v{s}, v{q}"); a(f"v_mov_b32 v{q}, v{s}"); fx.skip(1)
    a(f"v_permlane32_swap_b32 v{s}, v{q}", 2); a(f"v_add_f32 v{s}, v{s}, v{q}"); a(f"v_mov_b32 v{q}, v{s}"); fx.skip(1)
    a(f"v_permlane16_swap_b32 v{s}, v{q}", 2)
    ln_finish(a, s, q); a(f"v_rsq_f32 v{q}, v{q}", 2); fx.skip(1)
    fx.add(lambda: (k.ds(f"ds_write_b64 v{addr}, {vr(s,2)} offset:{tok*8}", ("saw", tag)), k.mark(("saw", tag))))

def a11_early(k):
    k.vm(f"buffer_load_dwordx4 {vr(A_ST,4)}, v{A_U}, {SRD_WS}, s90 offen offset:2048 sc1", "st0")
    for t in A11_ORDER[:2]:
        for f in a11_x(k, t): f()

def a11_main(k):
    R = R1; order = A11_ORDER
    steps = [(t, s) for t in order for s in range(16)]
    accof = lambda t: A_ACC + 12 * (order.index(t) % 3)
    def xread(i):
        t, s = steps[i]
        off = A11_POS[t] * 16384 + (s >> 1) * 1024
        k.ds(f"ds_read_b128 {vr(A_XF+4*(i%4),4)}, v{R.XO if s&1 else R.XE} offset:{off}", ("xf", i))
    mains = []; fixed = {}; gap_of = {}
    need_sa = {order[1]: ["st0"], order[2]: ["st1"], order[3]: [], "h": []}
    for i, (t, s) in enumerate(steps):
        acc = accof(t); xf = vr(A_XF + 4*(i % 4), 4)
        c = lambda r, s=s: "0" if s == 0 else vr(r, 4)
        ms = []
        if t != "h": ms.append(f"{MF16} {vr(acc,4)}, {ar(12*s,4)}, {xf}, {c(acc)}")
        ms.append(f"{MF16} {vr(acc+4,4)}, {ar(12*s+4,4)}, {xf}, {c(acc+4)}")
        ms.append(f"{MF16} {vr(acc+8,4)}, {xf}, {ar(12*s+8,4)}, {c(acc+8)}")
        gap_of[(t, s)] = len(mains)
        for m in ms: mains.append(lambda m=m: k.e(m))
        last = len(mains) - 1
        fl_ = fixed.setdefault(last, [])
        if i + 1 < len(steps): fl_.append((0, lambda i=i: k.wait(lg=[("xf", i + 1)])))
        j = i + 4
        if j < len(steps):
            tj, sj = steps[j]
            if sj == 0:
                def bar(tj=tj):
                    k.wait(vm=[("x", tj)], lg=[("saw", n) for n in need_sa[tj]]); k.e("s_barrier"); k.mark(("bar", tj))
                fixed.setdefault(gap_of[(t, s)], []).append((1, bar))
            fixed[last].append((1, lambda j=j: xread(j)))
    fx = Flex(); fz = Flex(); fz2 = Flex(); fy = Flex(); fm = Flex()
    k.e(f"s_and_b32 s32, s{sW}, 1", "s_lshl_b32 s32, s32, 7", f"v_add_u32 v7, s32, v{R.SA}")
    o_bases(k, 1)
    stats_path(k, fy, A_ST, "st0", 7, 48)
    g1 = P.a1_late_gap
    fm.add(lambda: (k.wait(vm=[("xst", 1)]), k.flag(2)), 3, P.a1_flag_gap)
    fm.add(lambda: k.poll_issue(A_PX, "px2"), 1, g1 - P.a1_poll_lead)
    fm.add(lambda: k.poll_check(A_PX, "px2", 2), 2, g1)
    fm.add(lambda: k.vm(f"buffer_load_dwordx4 {vr(56,4)}, v{A_U}, {SRD_WS}, s90 offen sc1", "st1"))
    for t in order[2:4]:
        for f in a11_x(k, t): fm.add(f, 2); fm.skip(P.a1_xgap)
    def halo_poll():
        k.poll_addr(A_PX, 16, 7)
        k.e(f"s_mov_b32 s{sPO}, s52", f"s_min_u32 s50, s{sB}, 1")
        k.poll_issue(A_PX, "phx"); k.bg_held = False
    fm.add(halo_poll, 3)
    if P.touch1:
        fm.add(lambda: k.touch(60, "p", ["s_mov_b32 s32, s53"]), 6)
        fm.add(lambda: k.touch(62, "p", [f"s_add_u32 s32, s55, {BX1[1]}"]), 6)
        fm.add(lambda: k.touch(64, "s", [f"s_add_u32 s32, s56, {BS1[1]}"]), 4)
        if P.touch1 > 1: fm.add(lambda: k.touch(66, "h", h_base("s32", 1)), 6)
    stats_path(k, fy, 56, "st1", 7, 16, g1 + 26)
    fm.dep(("bar", order[2]))
    fm.add(lambda: k.poll_check(A_PX, "phx", "s50"), 2)
    fm.add(lambda: k.vm(f"buffer_load_dwordx4 {vr(A_ST,4)}, v{A_U+1}, {SRD_WS}, s51 offen sc1", "sth"))
    for f in a11_x(k, "h"): fm.add(f, 2); fm.skip(P.a1_xgap)
    stats_path(k, fy, A_ST, "sth", R.SA, 0, gap_of[(order[3], P.a1_sth)])
    k.per = dict(P.per_a1); k.bg_held = True
    mix = []
    for b in range(5): mix += [(f, "s2", ("gw", b), None) for f in batch(k, b)]
    ww = [(f, "s4", "wow", None) for f in k.wow_rest]
    while mix or ww:
        if ww: k.bg.append(ww.pop(0))
        if mix: k.bg.append(mix.pop(0))
    b5 = batch(k, 5)
    bg_list(k, b5[:3], "s2", ("gw", 5))
    bg_batches(k, [6], "s2", lambda b: ("bar", order[3]))
    bg_batches(k, [7], "s2", lambda b: ("bar", "h"))
    bg_list(k, b5[3:], "s2", ("gw", 5), "wobar")
    A = lambda t: (accof(t) if t != "h" else None, accof(t) + 4, accof(t) + 8)
    for n in range(4): fix(k, R, fx, order[n], A(order[n]), gap_of[(order[n + 1], 1 if n < 3 else 2)], False)
    attn(k, R, fz, 3, R.ATT[0]); attn(k, R, fz2, 2, R.ATT[1]); ostore(k, fz2, 1)
    attn(k, R, fz, 1, R.ATT[0])
    fx.dep("gemm_done"); fx.dep(("saw", "sth")); fx.add(lambda: k.wait(lg=[("saw", "sth")]))
    fix(k, R, fx, "h", A("h"), 0, False); attn(k, R, fz2, 0, R.ATT[1]); ostore(k, fz2, 0)
    f3 = Flex(); f3.dep(("ost", 1)); f3.skip(P.l1_flag_delay)
    f3.add(lambda: (k.wait(vm=[("ost", 1)]), k.flag(1, 89), k.mark("oflag1")), 3)
    f3.dep(("attn", 0)); f3.add(lambda: wo_prepoll(k, 1))
    k.wait(vm=[("x", order[0])]); k.e("s_barrier")
    for i in range(4): xread(i)
    k.wait(lg=[("xf", 0)])
    k.stamp("a1 first")
    if k.stamping:
        for t in order[1:]: fixed.setdefault(gap_of[(t, 0)], []).append((0, lambda t=t: k.stamp(f"a1 t{t}")))
    run_gaps(k, mains, fixed, [fm, f3, fy, fx, fz2, fz], 2, over=lambda i: i >= P.a1_over)
    print("a11 left:", len(fm), len(fy), len(fx), len(fz), len(fz2), len(k.bg), {n: g for n, g in k.marks.items() if isinstance(n, tuple) and n[0] in ("fix", "attn", "saw", "ost")})
    k.mark("gemm_done")
    k.stamp("a1 gemm")
    drain([fm, fy, fx, fz, fz2, f3], k)
    for n in range(2): assert k.marks[("fix", order[n])] < gap_of[(order[n + 3], 0)], "accumulator reused too early"
    k.stamp("a1 end")
P.a1_flag_gap, P.a1_late_gap, P.a1_poll_lead, P.l1_flag_delay, P.a1_over = 8, 36, 18, 22, 96
P.touch1 = 1; P.a1_xgap = 3; P.a1_sth = 4
P.per_a1 = {"s2": 95, "s4": 60}

R_W0, R_W1, R_RD, R_ST, R_OUT = 3, 4, 5, 6, 7
def red_setup(k, posA, dAB):
    x, y, z, u = 28, 29, 30, 31
    k.e(f"s_add_u32 s32, s{sGL}, {posA*16384}", f"v_add_u32 v{R_W0}, s32, v{vL16}", f"v_xor_b32 v{R_W1}, 128, v{R_W0}")
    k.e(f"v_and_b32 v{x}, 7, v1", f"v_lshrrev_b32 v{y}, 3, v1", f"s_lshl_b32 s32, s{sW}, 7", f"v_lshl_add_u32 v{z}, v{x}, 4, s32",
        f"v_bfe_u32 v{u}, v1, 4, 1", f"v_lshlrev_b32 v{R_RD}, 7, v{u}", f"v_xor_b32 v{z}, v{z}, v{R_RD}",
        f"v_bfe_u32 v{R_RD}, v1, 3, 2", f"v_lshl_add_u32 v{z}, v{R_RD}, 10, v{z}", f"v_lshrrev_b32 v{R_RD}, 5, v1",
        f"v_mul_u32_u24 v{R_RD}, {dAB*16384}, v{R_RD}", f"v_add_u32 v{z}, v{z}, v{R_RD}", f"v_add_u32 v{R_RD}, {posA*16384}, v{z}")
    k.e(f"v_lshlrev_b32 v{z}, 4, v{x}", f"v_lshl_add_u32 v{z}, v{u}, 2, v{z}", f"v_and_b32 v{u}, 0x28, v1",
        f"v_cmp_eq_u32 vcc, 0, v{u}", f"v_mov_b32 v{u}, {OOB:#x}", f"v_cndmask_b32 v{R_ST}, v{u}, v{z}, vcc")
    k.e(f"v_lshlrev_b32 v{z}, 10, v{x}", f"v_lshl_add_u32 v{R_OUT}, v{y}, 4, v{z}")

def red_bases(k):
    k.e(f"s_lshl_b32 s32, s{sB}, 3", f"s_add_u32 s32, s32, s{sW}", "s_lshl_b32 s55, s32, 13", f"s_lshl_b32 s33, s{sCS}, 10", "s_add_u32 s55, s55, s33")
    k.e("s_lshl_b32 s57, s32, 13", f"s_lshl_b32 s33, s{sCS}, 7", "s_add_u32 s57, s57, s33")
    k.e(f"s_lshl_b32 s56, s{sB}, 12", f"s_lshr_b32 s33, s{sCS}, 1", "s_lshl_b32 s33, s33, 9", "s_add_u32 s56, s56, s33",
        f"s_and_b32 s33, s{sCS}, 1", "s_lshl_b32 s33, s33, 3", "s_add_u32 s56, s56, s33", f"s_lshl_b32 s33, s{sW}, 7", "s_add_u32 s56, s56, s33")

def red_writes(k, acc, g, off, dAB):
    return [lambda q=q: k.ds(f"ds_write_b128 v{R_W1 if (q>>1)&1 else R_W0}, {vr(acc+4*q,4)} offset:{off + (q>>2)*dAB*16384 + (q&3)*1024}", ("rw", g)) for q in range(8)]
def red_reads(k, g, T, off):
    return [lambda w=w, hf=hf: k.ds(f"ds_read_b128 {vr(T+8*w+4*hf,4)}, v{R_RD} offset:{off + w*4096 + hf*512}", ("rr", g, w)) for w in range(4) for hf in range(2)]

def red_finish(k, fx, g, mm, T, xdst, stdst, final, pk):
    a = lambda txt, c=1: fx.add(lambda: k.e(txt), c)
    R = RES + 4 * mm
    def add8(d, s):
        if pk:
            for i in range(0, 8, 2): a(f"v_pk_add_f32 {vr(d+i,2)}, {vr(d+i,2)}, {vr(s+i,2)}")
        else:
            for i in range(8): a(f"v_add_f32 v{d+i}, v{d+i}, v{s+i}")
    fx.add(lambda: k.wait(lg=[("rr", g, 1)]))
    add8(T, T + 8)
    for i in range(4): a(f"v_lshlrev_b32 v{T+8+2*i}, 16, v{R+i}"); a(f"v_and_b32 v{T+9+2*i}, 0xffff0000, v{R+i}")
    add8(T, T + 8)
    fx.add(lambda: k.wait(lg=[("rr", g, 3)]))
    add8(T + 16, T + 24); add8(T, T + 16)
    for i in range(4): a(f"v_cvt_pk_bf16_f32 v{R+i}, v{T+2*i}, v{T+2*i+1}")
    if final:
        fx.add(lambda: (k.e(f"s_add_u32 s32, s57, {mm*32768}"), k.vm(f"buffer_store_dwordx4 {vr(R,4)}, v{R_OUT}, {SRD_OUT}, s32 offen", ("xst", g))))
        return
    fx.add(lambda: (k.e(f"s_add_u32 s32, s55, {xdst + mm*32768}"), k.dstore(f"buffer_store_dwordx4 {vr(R,4)}, v{vL16}, {SRD_WS}, s32 offen", ("xst", g))), 2)
    s, q = T + 32, T + 33
    a(f"v_add_f32 v{s}, v{T}, v{T+1}"); a(f"v_mul_f32 v{q}, v{T}, v{T}"); a(f"v_fmac_f32 v{q}, v{T+1}, v{T+1}")
    for i in range(2, 8): a(f"v_add_f32 v{s}, v{s}, v{T+i}"); a(f"v_fmac_f32 v{q}, v{T+i}, v{T+i}")
    fx.skip(1)
    a(f"v_add_f32_dpp v{s}, v{s}, v{s} row_ror:8 row_mask:0xf bank_mask:0xf"); a(f"v_add_f32_dpp v{q}, v{q}, v{q} row_ror:8 row_mask:0xf bank_mask:0xf")
    fx.skip(1)
    a(f"v_permlane16_swap_b32 v{s}, v{q}", 2); a(f"v_add_f32 v{s}, v{s}, v{q}"); a(f"v_mov_b32 v{q}, v{s}"); fx.skip(1)
    a(f"v_permlane32_swap_b32 v{s}, v{q}", 2); a(f"v_add_f32 v{s}, v{s}, v{q}")
    fx.add(lambda: (k.e(f"s_add_u32 s32, s56, {stdst + mm*2048}"), k.dstore(f"buffer_store_dword v{s}, v{R_ST}, {SRD_WS}, s32 offen", ("xst", g)), k.mark(("xst", g))), 2)

def merge(k, fx, extra, first=0):
    extra = list(extra)
    items = [it for it in fx.items if it[0] != "skip"]; fx.items = []
    per = max(1, (len(items) - first) // max(1, len(extra)))
    for n, it in enumerate(items):
        if n >= first and (n - first) % per == 0 and extra: extra.pop(0)()
        it[1](); k.bg_step()
    for f in extra: f(); k.bg_step()

def wo(k, layer):
    BF, ACC, T, PA = 32, 96, 160, A_PA
    groups = [1, 0]
    def bload(g, kk):
        if kk % 4 == 0: k.e(f"s_add_u32 s58, s59, {groups[g]*32768 + kk*1024}")
        k.vm(f"buffer_load_dwordx4 {vr(BF+32*g+4*kk,4)}, v{vL16}, {SRD_WS}, s58 offen offset:{(kk%4)*1024} sc1", ("b", g, kk))
    k.poll_check(PA, "po1", 1)
    k.stamp("wo early")
    for kk in range(8): bload(0, kk)
    red_setup(k, 8, 1)
    k.e(f"s_add_u32 s{sFO}, s89, {FL_X1 - FL_O}")
    k.wait(vm=[("ost", 0)]); k.flag(2, 89)
    def gemm(g):
        mains = []; fixed = {}
        for kk in range(8):
            for nn in range(2):
                acc = ACC + 32 * g + 16 * nn
                mains.append(lambda kk=kk, nn=nn, acc=acc: k.e(f"{MF32} {vr(acc,16)}, {ar(192+8*kk+4*nn,4)}, {vr(BF+32*g+4*kk,4)}, {'0' if kk == 0 else vr(acc,16)}"))
            if kk < 7: fixed.setdefault(len(mains) - 1, []).append((0, lambda kk=kk: k.wait(vm=[("b", g, kk + 1)])))
        return mains, fixed
    fm = Flex()
    fm.add(lambda: k.poll_issue(PA, "po2"), 1, P.wo_poll_gap)
    fm.add(lambda: (k.poll_check(PA, "po2", 2), k.stamp("wo late")), 2, P.wo_late_gap)
    for kk in range(8): fm.add(lambda kk=kk: bload(1, kk), 2)
    k.wait(vm=["wow", "res", ("b", 0, 0)])
    k.stamp("wo first")
    mains, fixed = gemm(0)
    run_gaps(k, mains, fixed, [fm], 6)
    drain([fm], k)
    k.stamp("wo g0")
    k.per = dict(P.per_wo[layer]); k.bg_held = False
    bg_list(k, dna(k), "s4", "dna", "wogemm")
    bg_batches(k, [8, 9], "s2", lambda b: "wodone")
    f0 = Flex()
    mains, fixed = gemm(1)
    if P.wo_var == "A":
        for f in red_writes(k, ACC, 0, 0, 1): f(); k.bg_step()
        k.wait(lg=[("rw", 0)]); k.e("s_barrier"); k.mark("wobar")
        for f in red_reads(k, 0, T, 0): f()
        red_finish(k, f0, 0, groups[0], T, BX1[layer], BS1[layer], False, False)
        fixed.setdefault(6, []).append((2, lambda: (k.wait(lg=[("rr", 0, 3)]), k.e("s_barrier"))))
        k.wait(vm=[("b", 1, 0)])
        run_gaps(k, mains, fixed, [f0], 6)
        k.mark("wogemm")
    else:
        wr = red_writes(k, ACC, 0, 0, 1)
        k.e("s_nop 7")
        for f in wr[:P.wo_prew]: f()
        for q, f in enumerate(wr[P.wo_prew:]): f0.add(f, 1, 2*q)
        k.wait(vm=[("b", 1, 0)])
        run_gaps(k, mains, fixed, [f0], 6)
        drain([f0], k)
        k.mark("wogemm")
        k.wait(lg=[("rw", 0)]); k.e("s_barrier"); k.mark("wobar")
        for f in red_reads(k, 0, T, 0): f()
        k.bg_step()
        k.wait(lg=[("rr", 0, 3)]); k.e("s_barrier")
        red_finish(k, f0, 0, groups[0], T, BX1[layer], BS1[layer], False, True)
    k.stamp("wo g1")
    merge(k, f0, red_writes(k, ACC + 32, 1, 0, 1))
    k.wait(lg=[("rw", 1)]); k.e("s_barrier")
    k.stamp("wo red")
    k.bg_held = P.wo_hold
    for f in red_reads(k, 1, T, 0): f()
    f1 = Flex(); red_finish(k, f1, 1, groups[1], T, BX1[layer], BS1[layer], False, True); drain([f1], k)
    k.e("s_barrier"); k.mark("wodone")
    key = lambda it: it[2][1] if isinstance(it[2], tuple) else 11.5
    k.bg.sort(key=key)
    print(f"wo{layer} done, background left:", [it[2] for it in k.bg][::4])
    k.bg_burst(P.wo_win[layer]); k.bg_held = True
    k.stamp("wo end")
P.wo_poll_gap = 1; P.wo_late_gap = 7; P.wo_hold = True; P.wo_win = [4, 4]; P.wo_var = 'B'; P.wo_prew = 2
P.per_wo = [{"s2": 70, "s4": 50}] * 2

G_RB, G_C1, G_VV, G_AUG, G_X, G_ACC, G_WF, G_T = 3, 6, 7, 28, 32, 160, 224, 240
D_WV, D_BF, D_ACC, D_T, D_WF, D_RB, D_PA = 32, 64, 128, 192, 228, 112, 115
def gu(k, layer):
    T = G_T; XA = T + 3; PA = T + 2
    k.e(f"s_lshl_b32 s32, s{sC}, 2", f"s_add_u32 s50, s32, s{sW}")
    k.poll_addr(PA, 32)
    k.e(f"v_and_b32 v{T}, 31, v1", "s_lshr_b32 s32, s50, 1", "s_lshl_b32 s32, s32, 7", f"s_add_u32 s{sPO}, s32, {fl(layer, FL_X1)}")
    k.e(f"v_mov_b32 v{G_RB}, v{vL16}", f"v_add_u32 v{G_RB+1}, 0x10000, v{vL16}", f"v_add_u32 v{G_RB+2}, 0x20000, v{vL16}")
    k.e(f"v_lshrrev_b32 v{T+1}, 5, v1", f"v_lshlrev_b32 v{G_AUG+3}, 4, v{T}", f"v_lshl_add_u32 v{G_AUG+3}, v{T+1}, 10, v{G_AUG+3}")
    k.e(f"v_lshrrev_b32 v{XA}, 3, v{T}", f"v_lshlrev_b32 v{XA}, 13, v{XA}", f"v_lshl_add_u32 v{XA}, v{T+1}, 7, v{XA}",
        f"v_and_b32 v{T}, 7, v1", f"v_lshl_add_u32 v{XA}, v{T}, 4, v{XA}")
    k.e("s_lshl_b32 s32, s50, 11", f"s_add_u32 s51, s32, {BS1[layer]}")
    k.e("s_lshl_b32 s32, s50, 15", f"s_add_u32 s52, s32, {BX1[layer]}", "s_add_u32 s53, s52, 4096")
    k.e(*h_base("s54", layer))
    k.wait(vm=[("xst", 1)]); k.flag(1)
    k.stamp("x1 flag")
    k.poll_issue(PA, "px1")
    k.e(f"s_lshl_b32 s32, s{sC}, 1", f"s_lshr_b32 s33, s{sW}, 1", "s_add_u32 s32, s32, s33", "s_lshl_b32 s32, s32, 4", f"s_add_u32 s32, s32, s{sM}",
        "s_lshl_b32 s32, s32, 1", f"s_and_b32 s33, s{sW}, 1", "s_add_u32 s32, s32, s33", "s_lshl_b32 s32, s32, 2", f"s_add_u32 s{sFO}, s32, {fl(layer, FL_H)}")
    seq = [(t, ks) for ks in range(33) for t in range(3)] + [(t, ks) for t in range(3, 7) for ks in range(33)]
    accof = {0: 0, 1: 1, 2: 2, 3: 3, 4: 0, 5: 1, 6: 2}
    NW = P.gu_nw
    WQ = [G_WF, G_WF + 4, G_WF + 8, G_WF + 12, T + 12]
    def wread(n):
        slot = (n % 160) * 1024
        k.ds(f"ds_read_b128 {vr(WQ[n%NW],4)}, v{G_RB + (slot>>16)} offset:{slot & 0xffff}", ("wf", n))
    k.wait(vm=[("gw", 0)]); k.e("s_barrier")
    for n in range(NW): wread(n)
    k.poll_check(PA, "px1", 1)
    k.stamp("gu go")
    def xload(kg): k.vm(f"buffer_load_dwordx4 {vr(G_X+4*kg,4)}, v{XA}, {SRD_WS}, s{52 + (kg>>4)} offen offset:{((kg>>2)&3)*1024 + (kg&3)*256} sc1", ("gx", kg))
    for kg in range(P.gu_lead): xload(kg)
    k.vm(f"buffer_load_dwordx4 {vr(T+4,4)}, v{G_AUG+3}, {SRD_WS}, s51 offen sc1", "gst")
    k.vm(f"buffer_load_dwordx4 {vr(T+8,4)}, v{G_AUG+3}, {SRD_WS}, s51 offen offset:512 sc1", "gst")
    mains = []; fixed = {}
    xpos = {}
    for kg in range(P.gu_lead, 32): xpos.setdefault(int((kg - P.gu_lead) * P.gu_xstep), []).append(kg)
    for n, (t, ks) in enumerate(seq):
        acc = G_ACC + 16 * accof[t]
        b = vr(G_AUG, 4) if ks == 32 else vr(G_X + 4*ks, 4)
        c = "0" if ks == 0 else vr(acc, 16)
        mains.append(lambda n=n, acc=acc, b=b, c=c: k.e(f"{MF32} {vr(acc,16)}, {vr(WQ[n%NW],4)}, {b}, {c}"))
        fl_ = fixed.setdefault(n, [])
        if n + 1 < len(seq):
            t2, ks2 = seq[n + 1]
            need = [("gx", ks2)] if (t2 == 0 and ks2 < 32) else None
            fl_.append((0, lambda n=n, need=need: k.wait(vm=need, lg=[("wf", n + 1)])))
        j = n + NW
        if j < len(seq):
            if j % 16 == 0:
                fl_.append((2, lambda bi=j//16: (k.wait(vm=[("gw", bi)]), k.e("s_barrier" if not P.x_nobar else "s_nop 0"), k.mark(("gbar", bi)))))
            fl_.append((1, lambda j=j: wread(j)))
        for kg in xpos.get(n, []): fl_.append((1, lambda kg=kg: xload(kg)))
    xend = max(xpos)
    tail = [it for it in k.bg if it[2] == "dna"]; k.bg = [it for it in k.bg if it[2] != "dna"]
    bg_batches(k, [10, 11], "s2", lambda b: ("gbar", b - 8))
    mid = []
    for b in (12, 13, 14):
        for f in batch(k, b): mid.append((f, "s2", ("gw", b), ("gbar", b - 8)))
    while mid or tail:
        if mid: k.bg.append(mid.pop(0))
        if tail: k.bg.append(tail.pop(0))
    bg_batches(k, range(15, 23), "s4", lambda b: ("gbar", b - 8))
    k.per = dict(P.per_guA[layer]); k.bg_held = False; k.bg_next = k.t + P.gu_bg_delay
    fixed[xend].append((0, lambda: setattr(k, "per", dict(P.per_guB[layer]))))
    fv = Flex()
    for j, f in enumerate(regloads(k, sDS, 48*1024, lambda j: vr(D_WV + 4*j, 4), 8, "dnv", tmp=50)): fv.add(f, 1, 198 + 2 + 3*j)
    fx = Flex()
    a = lambda txt, c=1, at=0: fx.add(lambda: k.e(txt), c, at)
    fx.add(lambda: k.wait(vm=["gst"]), 1, 3 * P.gu_lead)
    a(f"v_add_f32 v{T+4}, v{T+4}, v{T+6}"); a(f"v_add_f32 v{T+5}, v{T+5}, v{T+7}"); a(f"v_add_f32 v{T+8}, v{T+8}, v{T+10}"); a(f"v_add_f32 v{T+9}, v{T+9}, v{T+11}")
    a(f"v_add_f32 v{T+4}, v{T+4}, v{T+8}"); a(f"v_add_f32 v{T+5}, v{T+5}, v{T+9}"); fx.skip(1)
    a(f"v_permlane32_swap_b32 v{T+4}, v{T+5}", 2); a(f"v_add_f32 v{T+4}, v{T+4}, v{T+5}"); a(f"v_mov_b32 v{T+5}, v{T+4}"); fx.skip(1)
    a(f"v_permlane32_swap_b32 v{T+4}, v{T+5}", 2)
    ln_finish(a, T + 4, T + 5)
    a(f"v_mov_b32 v{G_VV}, v{T+5}")
    a(f"v_rsq_f32 v{G_C1}, v{T+5}", 2); a(f"v_cvt_pk_bf16_f32 v{G_AUG}, v{T+4}, v{T+4}"); a(f"v_mul_f32 v{G_C1}, {f2u(-LOG2E):#x}, v{G_C1}")
    a(f"v_and_b32 v{T+5}, 0xffff0000, v{G_AUG}"); a(f"v_sub_f32 v{T+5}, v{T+4}, v{T+5}"); a(f"v_mov_b32 v{G_AUG+2}, 0")
    a(f"v_cvt_pk_bf16_f32 v{G_AUG+1}, v{T+5}, v{G_AUG+2}"); a(f"v_mov_b32 v{G_AUG+3}, 0")
    fx.add(lambda: k.mark("aug"), 0)
    def epi(t, at):
        acc = G_ACC + 16 * accof[t]; hp = T + 8; E = T + 4
        if P.x_noepi: a("s_nop 0", 1, at)
        for i0 in range(0, 8 if not P.x_noepi else 0, 2):
            for i in (i0, i0 + 1): a(f"v_mul_f32 v{E+(i&1)}, v{G_C1}, v{acc+i}", 1, at)
            for i in (i0, i0 + 1): a(f"v_exp_f32 v{E+(i&1)}, v{E+(i&1)}", 2)
            for i in (i0, i0 + 1): a(f"v_mul_f32 v{E+2+(i&1)}, v{acc+i}, v{acc+8+i}")
            for i in (i0, i0 + 1): a(f"v_fma_f32 v{E+(i&1)}, v{E+(i&1)}, v{G_VV}, v{G_VV}")
            for i in (i0, i0 + 1): a(f"v_rcp_f32 v{E+(i&1)}, v{E+(i&1)}", 2)
            fx.skip(1)
            for i in (i0, i0 + 1): a(f"v_mul_f32 v{E+2+(i&1)}, v{E+2+(i&1)}, v{E+(i&1)}")
            a(f"v_cvt_pk_bf16_f32 v{hp+i0//2}, v{E+2}, v{E+3}")
        fx.add(lambda: k.mark(("epi", t)), 0)
        if t == 4: a("s_add_u32 s54, s54, 4096")
        fx.add(lambda: (k.dstore(f"buffer_store_dwordx4 {vr(hp,4)}, v{vL16}, {SRD_WS}, s54 offen offset:{(t%4)*1024}", ("hst", t)), k.mark(("hst", t))), 2)
    end = {t: max(n for n, x in enumerate(seq) if x[0] == t) for t in range(7)}
    for t in range(6): epi(t, end[t] + 3)
    ff = Flex(); ff.dep(("hst", 3))
    if layer == 0:
        ff.add(lambda: k.touch(T, "p", [f"s_add_u32 s32, s55, {WS_X[1]}"]), 6)
        ff.add(lambda: k.touch(T + 2, "s", [f"s_add_u32 s32, s56, {WS_ST[1]}"]), 4)
    ff.skip(P.gu_flag_delay)
    ff.add(lambda: (k.wait(vm=[("hst", 3)]), k.flag(1)), 3)
    def hpoll():
        k.wait(vm=["touch"] if "touch" in k.seen else None)
        k.poll_addr(T, 8)
        k.e(f"s_lshl_b32 s32, s{sB}, 7", f"s_lshl_b32 s33, s{sW}, 5", "s_add_u32 s32, s32, s33", f"s_add_u32 s{sPO}, s32, {fl(layer, FL_H)}")
        k.poll_issue(T, "ph1")
    ff.add(hpoll, 4, 228)
    k.wait(vm=[("gx", 0)], lg=[("wf", 0)])
    k.stamp("gu first")
    if k.stamping:
        for g in (48, 98, 131, 164, 197): fixed[g].append((0, lambda g=g: k.stamp(f"gu m{g}")))
    fixed[93].append((0, lambda: k.marks["aug"]))
    run_gaps(k, mains, fixed, [fv, ff, fx], P.gu_cap)
    print("gu left:", len(k.bg), len(fv), len(ff), len(fx), {n: g for n, g in k.marks.items() if isinstance(n, tuple) and n[0] == "hst"})
    k.stamp("gu gemm")
    for g, t in {132: 0, 165: 1, 198: 2}.items(): assert k.marks[("epi", t)] < g, "accumulator reused too early"
    epi(6, 0); drain([ff, fv, fx], k)
    k.e(f"v_mov_b32 v{D_PA}, v{T}")
    k.stamp("gu end")
P.gu_flag_delay = 16; P.gu_xstep = 2.6; P.gu_bg_delay = 300
P.per_guA = [{"s2": 130, "s4": 130}, {"s2": 200, "s4": 200}]
P.per_guB = [{"s2": 80, "s4": 55}] * 2

def dn(k, layer):
    final = layer == 1
    NB = P.dn_lead; T = D_T
    groups = [1, 0]
    k.e(f"s_mul_i32 s32, s{sB}, {224*KB}", f"s_mul_i32 s33, s{sW}, {28*KB}", "s_add_u32 s32, s32, s33", f"s_add_u32 s59, s32, {BH[layer]}")
    seq = [(g, e) for g in range(2) for e in range(28)]
    state = {"base": None}
    def bload(i):
        g, e = seq[i]; off = groups[g] * 112 * KB + KK_OF[e] * 1024
        if state["base"] is None or not (0 <= off - state["base"] < 4096):
            state["base"] = off; k.e(f"s_add_u32 s58, s59, {off}")
        k.vm(f"buffer_load_dwordx4 {vr(D_BF+4*(i%NB),4)}, v{vL16}, {SRD_WS}, s58 offen offset:{off - state['base']} sc1", ("b", i))
    k.poll_check(D_PA, "ph1", 1)
    k.stamp("dn early")
    k.bg_held = True
    for i in range(P.dn_pre): bload(i)
    red_setup(k, 1, 1)
    k.e(f"v_add_u32 v{D_RB}, s{sGL}, v{vL16}", f"v_add_u32 v{D_RB+1}, 0x10000, v{D_RB}", f"v_add_u32 v{D_RB+2}, 0x20000, v{D_RB}")
    k.wait(vm=[("hst", 6)]); k.flag(2)
    k.poll_issue(D_PA, "ph2")
    for i in range(P.dn_pre, NB): bload(i)
    k.e(f"s_add_u32 s{sFO}, s89, {FL_X2 - FL_O}")
    k.per = dict(P.per_dn0); k.bg_held = False
    lds = [(i, nn) for i, (g, e) in enumerate(seq) if 8 <= e < 24 for nn in range(2)]
    slot_of = {x: n for n, x in enumerate(lds)}
    NWF = 6
    def wread(n):
        i, nn = lds[n]; j = 2 * (seq[i][1] - 8) + nn; b = 15 + (j >> 2)
        ad = (b % 10) * 16384 + (j & 3) * 1024
        if seq[i][0] == 0: k.wait(vm=[("gw", b)])
        k.ds(f"ds_read_b128 {vr(D_WF+4*(n%NWF),4)}, v{D_RB + (ad>>16)} offset:{ad & 0xffff}", ("wf", n))
    def wfrag(i, nn):
        e = seq[i][1]
        if e < 8: return ar(192 + 8*e + 4*nn, 4)
        if e >= 24: return vr(D_WV + 8*(e - 24) + 4*nn, 4)
        return vr(D_WF + 4*(slot_of[(i, nn)] % NWF), 4)
    mains = []; fixed = {}
    late = 16 - NB
    for i, (g, e) in enumerate(seq):
        for nn in range(2):
            acc = D_ACC + 32 * g + 16 * nn
            mains.append(lambda i=i, nn=nn, acc=acc, e=e: k.e(f"{MF32} {vr(acc,16)}, {wfrag(i,nn)}, {vr(D_BF+4*(i%NB),4)}, {'0' if e == 0 else vr(acc,16)}"))
            gp = len(mains) - 1; fl_ = fixed.setdefault(gp, [])
            nx = (i, 1) if nn == 0 else (i + 1, 0)
            vmn = [("b", i + 1)] if (nn == 1 and i + 1 < len(seq)) else None
            lgn = [("wf", slot_of[nx])] if nx in slot_of else None
            if nn == 1 and i + 1 == 24: vmn = vmn + ["dnv"]
            fl_.append((0, lambda vmn=vmn, lgn=lgn: k.wait(vm=vmn, lg=lgn)))
            ah = (i + 2, nn)
            if ah in slot_of: fl_.append((1, lambda n=slot_of[ah]: wread(n)))
    nxt = NB; pend = 0
    for i in range(len(seq)):
        fl_ = fixed[2*i + 1]
        if i == P.dn_late: fl_.append((2, lambda: (k.poll_check(D_PA, "ph2", 2), k.stamp("dn late"), k.mark("late"))))
        n = 0
        while nxt < len(seq) and nxt <= i + NB and n < 2 and (nxt < 16 or i >= P.dn_late):
            fl_.append((1, lambda j=nxt: bload(j))); nxt += 1; n += 1
        if nxt == len(seq) and not pend: pend = 2*i + 2
    fixed[20].append((1, lambda: k.e("s_barrier")))
    fw = Flex(); fs = Flex()
    for q, f in enumerate(red_writes(k, D_ACC, 0, 2*16384, 1)): fw.add(f, 1, 58 + 2*q)
    fw.add(lambda: (k.wait(lg=[("rw", 0)]), k.e("s_barrier")), 2, 76)
    for f in red_reads(k, 0, T, 2*16384): fw.add(f, 2)
    fw.skip(1)
    red_finish(k, fw, 0, groups[0], T, WS_X[1], WS_ST[1], final, False)
    if not final:
        fw.add(lambda: k.vm(f"buffer_store_dwordx4 {vr(RES+4,4)}, v{vL16}, {SRD_WS}, s72 offen sc1", "hxs"))
        fw.add(lambda: k.vm(f"buffer_store_dword v{T+32}, v{R_ST}, {SRD_WS}, s73 offen sc1", "hxs"))
        fw.skip(P.dn_flag_delay); fw.add(lambda: (k.wait(vm=[("xst", 0)]), k.flag(1)), 3)
        fs.dep("late")
        for f in a11_bases(k) + a1_setup(k, 1): fs.add(f)
        fs.add(lambda: (k.poll_addr(A_PX, 32), k.e(f"s_lshl_b32 s32, s{sB}, 7", f"s_add_u32 s{sPO}, s32, {fl(0, FL_X2)}")), 4)
        ww = wow(k); bg_list(k, ww[:P.dn_wow], "s4", "wow", "wowok"); k.wow_rest = ww[P.dn_wow:]
        fixed[max(pend, 2*36)].append((0, lambda: (k.mark("wowok"), setattr(k, "per", dict(P.per_dn)))))
    k.wait(vm=["dna", ("b", 0)])
    k.stamp("dn first")
    if k.stamping: fixed[55].append((0, lambda: k.stamp("dn p1")))
    run_gaps(k, mains, fixed, [fw, fs], 6)
    print("dn left:", len(k.bg), len(fw), len(fs), "last h load at gap", pend)
    k.stamp("dn gemm")
    assert not fs.items
    ws = red_writes(k, D_ACC + 32, 1, 0, 1)
    if not final: ws.insert(4, lambda: k.poll_issue(A_PX, "px0"))
    merge(k, fw, ws)
    k.wait(lg=[("rw", 1)]); k.e("s_barrier")
    k.stamp("dn red")
    for f in red_reads(k, 1, T, 0): f()
    if not final:
        k.bg_held = True
        k.poll_check(A_PX, "px0", 1)
        k.wait(vm=["hxs"]); k.flag(1, 91, "sc1")
        a11_early(k)
    f1 = Flex(); red_finish(k, f1, 1, groups[1], T, WS_X[1], WS_ST[1], final, True); drain([f1], k)
    k.stamp("dn end")
P.dn_flag_delay = 4; P.dn_pre = 8; P.dn_late = 7
P.dn_wow = 6; P.per_dn = {"s4": 110, "s2": 130}; P.per_dn0 = {"s4": 60, "s2": 60}

def build(stamps=False, only=None):
    k = F(); k.stamping = stamps; k.only = only; k.st = P.dst; k.rt = P.rt
    name = NAME + "_kernel"
    k.e(".p2align 8", f".globl {name}", f".type {name},@function"); k.label(name)
    if stamps: k.e("s_memrealtime s[92:93]", "s_memtime s[94:95]")
    k.e("s_cmp_ge_u32 s2, 256", "s_cbranch_scc1 L_end")
    k.e("s_load_dwordx16 s[64:79], s[0:1], 0", "s_load_dwordx4 s[80:83], s[0:1], 64")
    k.e("s_getpc_b64 s[100:101]")
    k.e("L_pc: ;np")
    k.e("s_mov_b32 s24, s100", "s_mov_b32 s25, s101", "s_mov_b32 s26, L_end-L_pc", "s_mov_b32 s27, 0x20000",
        "v_and_b32 v1, 63, v0", "v_lshrrev_b32 v2, 6, v0", "s_lshr_b32 s33, s2, 3", "s_mul_i32 s32, s33, 43", "s_lshr_b32 s32, s32, 8",
        "s_mul_i32 s32, s32, 6", "s_sub_u32 s32, s33, s32", "s_lshl_b32 s32, s32, 13", "v_lshlrev_b32 v3, 11, v2", "v_lshl_add_u32 v3, v1, 7, v3",
        f"v_mov_b32 v4, {OOB:#x}", "v_cmp_gt_u32 vcc, 16, v1", f"v_readfirstlane_b32 s{sW}, v2", "v_cndmask_b32 v3, v4, v3, vcc")
    if P.code0: k.vm(f"buffer_load_dword v175, v3, {SRD_PK}, s32 offen", "code")
    k.e("s_and_b32 s32, s2, 7", f"s_and_b32 s{sM}, s33, 15", "s_lshr_b32 s33, s33, 4", "s_lshl_b32 s32, s32, 1", f"s_add_u32 s{sC}, s32, s33")
    k.e(f"s_lshr_b32 s33, s{sM}, 3", f"s_lshl_b32 s{sB}, s{sC}, 1", f"s_add_u32 s{sB}, s{sB}, s33", f"s_and_b32 s{sCS}, s{sM}, 7")
    k.e("v_lshlrev_b32 v2, 4, v1")
    a10_lanes(k)
    k.e("s_waitcnt lgkmcnt(0)")
    srd(k, 12, 64, 2048 * 1024); srd(k, 16, 66, 512 * 3072)
    if stamps:
        k.stamps += ["rt0", "start"]; k.e("v_writelane_b32 v0, s92, 0", f"v_writelane_b32 v0, s{92 if P.rt else 94}, 1")
    k.stamp("s kernarg")
    run(a10_x(k, 0) + a10_w(k, 0))
    srd(k, 8, 82, WS_SIZE); srd(k, 20, 78, 2048 * 1024); srd(k, 28, 80, 256)
    for f in a1_setup(k, 0): f()
    o_bases(k, 0)
    run(a10_w(k, 1))
    if P.tlb:
        k.e("v_lshlrev_b32 v174, 21, v1", f"v_mov_b32 v173, {OOB:#x}", "v_cmp_gt_u32 vcc, 17, v1", "s_nop 0", "v_cndmask_b32 v174, v173, v174, vcc")
        k.vm(f"buffer_load_dword v174, v174, {SRD_WS}, 0 offen", "tlb")
        k.e("v_cmp_eq_u32 vcc, 0, v1", "s_nop 1", "v_cndmask_b32_e64 v173, v173, 0, vcc")
        k.vm(f"buffer_load_dword v173, v173, {SRD_OUT}, 0 offen", "tlb")
    k.stamp("s w01")
    pack_issue(k)
    k.stamp("s pkissue")
    a10_lanes2(k)
    k.e(f"v_mov_b32 v60, {OOB:#x}", "v_cmp_gt_u32 vcc, 8, v1", "v_mov_b32 v176, 0", "v_mov_b32 v177, 0", "v_mov_b32 v178, 0", "v_mov_b32 v179, 0",
        f"v_cndmask_b32 v61, v60, v{vL16}, vcc", "s_lshl_b32 s32, s2, 7", "v_cmp_gt_u32 vcc, 16, v1")
    k.vm(f"buffer_store_dwordx4 v[176:179], v61, {SRD_WS}, s32 offen sc1", "zero")
    k.e(f"v_cndmask_b32 v172, v60, v{vL16}, vcc", "s_lshl_b32 s32, s2, 8", f"s_add_u32 s32, s32, {WS_HXF}")
    k.vm(f"buffer_store_dwordx4 v[176:179], v172, {SRD_WS}, s32 offen sc1", "zero")
    run(a10_x(k, 1) + a10_w(k, 2))
    k.e("s_getreg_b32 s32, hwreg(HW_REG_XCC_ID, 0, 4)", "s_mul_i32 s33, s32, s32", "s_lshl_b32 s33, s33, 13", "s_lshl_b32 s32, s32, 5",
        "s_add_u32 s32, s32, s33", "s_add_u32 s91, s32, 1", "v_mov_b32 v170, s91", "v_cmp_eq_u32 vcc, 0, v1", "v_mov_b32 v62, 0",
        f"s_lshl_b32 s32, s{sC}, 4", f"v_cndmask_b32 v{vFA}, v60, v62, vcc", f"s_cmp_eq_u32 s{sW}, 0", f"s_cselect_b32 s32, s32, {OOB>>1:#x}",
        f"v_add_u32 v171, s32, v{vFA}", f"s_mov_b32 s{sBUD}, 100000")
    red_bases(k)
    k.e(f"s_lshl_b32 s{sGL}, s{sW}, 12", f"s_mul_i32 s{sGS}, s{sM}, {PGU_SLICE}", f"s_add_u32 s{sGS}, s{sGS}, s{sGL}", f"s_add_u32 s{sGS}, s{sGS}, {WS_PGU}")
    k.e(f"s_mul_i32 s32, s{sCS}, {224*KB}", f"s_mul_i32 s33, s{sW}, {56*KB}", "s_add_u32 s32, s32, s33", f"s_add_u32 s{sDS}, s32, {WS_PDN}")
    k.e(f"s_lshl_b32 s32, s{sCS}, 16", f"s_lshl_b32 s33, s{sW}, 14", "s_add_u32 s32, s32, s33", f"s_add_u32 s88, s32, {WS_PWO}")
    k.stamp("s setup")
    a10_loop(k, 3)
    a10_tail(k)
    wo(k, 0); gu(k, 0); dn(k, 0)
    if not P.half:
        k.marks = {m: g for m, g in k.marks.items() if m == "wowok"}
        k.seen = {t for t in k.seen if t in k.vmq or t in k.lgq or t in ("wow", "res", "st0", ("x", 2), ("x", 3))}
        a11_main(k)
        wo(k, 1)
        k.marks = {m: g for m, g in k.marks.items() if m in ("wobar", "wogemm", "wodone") or m[0] == "bar"}
        gu(k, 1); dn(k, 1)
    if P.verbose: print([(t, tag, f) for t, tag, f in k.bg_log if f])
    if stamps:
        k.e("s_waitcnt vmcnt(0)"); k.stamp("drained"); k.stamp("rt1", True)
        k.e("s_lshl_b32 s32, s2, 10", "s_lshl_b32 s33, s3, 8", "s_add_u32 s32, s32, s33",
            f"s_add_u32 s32, s32, {WS_STAMP}", "v_lshlrev_b32 v8, 2, v1", f"buffer_store_dword v0, v8, {SRD_WS}, s32 offen")
    k.e("s_endpgm")
    k.flush_spins()
    k.label("L_end"); k.e("s_endpgm")
    src = open("cdna_kernels/%s.s.ref" % NAME).read().splitlines()
    out = [l for l in src if l.startswith(";") and "@launch" not in l]
    out.append(f"; @launch grid=(256,1,1) block=(256,1,1) lds={LDS_TOTAL}")
    out += ['.amdgcn_target "amdgcn-amd-amdhsa--gfx950"', ".text"]
    s = "\n".join(out) + "\n" + k.text(verbose=True) + '.section .rodata,"a"\n.p2align 6\n' + kd(name)
    if P.align:
        from align import align
        s = align(s)
    return s, k.stamps
P.x_nobar = 0; P.x_noepi = 0; P.rt = 1; P.half = 0; P.tlb = 1; P.code0 = 1; P.verbose = 0; P.align = 1; P.gu_cap = 6; P.gu_nw = 5; P.k_touch = 12; P.k_gb = 13

if __name__ == "__main__":
    path = sys.argv[1] if len(sys.argv) > 1 else "cdna_kernels/%s.s" % NAME
    opts = sys.argv[2:]
    only = None
    for o in opts:
        if o.startswith("only="): only = [x for x in o[5:].split(",") if x]
        if o.startswith("P."):
            n, v = o[2:].split("="); setattr(P, n, eval(v))
    s, st = build(stamps="st" in opts, only=only)
    open(path, "w").write(s)
    if "st" in opts: json.dump([st], open(path + ".json", "w"))
```

```python
import sys, json
from common import *

MF16 = "v_mfma_f32_16x16x32_bf16"
MF16S = "v_mfma_f32_16x16x16_bf16"
MF32 = "v_mfma_f32_32x32x16_bf16"
vL16, vFV, vFA, vP = 2, 8, 9, 10
CSV, CSQ, CSK, RES = 11, 12, 16, 20
OOB = 0x80000000
FL_O, FL_X1, FL_H, FL_X2 = 0, 4096, 8192, 12288
FL_HX = 16384 + 12288
def fl(layer, off): return WS_FLAGS + 16384 * layer + off
sROT, sBUD, sGL, sGS, sDS = 84, 98, 60, 61, 85
sT0, sT1, sPO, sFO = 32, 33, 86, 87
sML, sMS = 68, 69
WS_HXF = WS_O0 - 0x10000 if False else WS_END
WS_STAMP = 0x2000000
L_SA0, L_SA1, L_XH0, L_CS = 80896, 97280, 81920, 79872
def e_of(kk):
    p, tl = divmod(kk, 7)
    return 4 * p + tl if tl < 4 else 16 + 3 * p + (tl - 4)
KK_OF = {e_of(kk): kk for kk in range(28)}

class P:
    a1_bg_start, a1_bg_step = 30, 6
    gu_lead = 7
    gu_bg_start, gu_bg_step = 50, 2.6
    dn_lead = 12
    bgm = ""
    sleep = 0
    drop = ()
    codepf = 0
    ld = "sc1"
    dst = "sc1"
    safe = False
    plain = True
    notouch = ()

BO, BX1, BS1, BH = [WS_O[0]] * 2, [WS_X[0]] * 2, [WS_ST[0]] * 2, [WS_H[0]] * 2
def h_base(d, layer):
    return [f"s_lshl_b32 {d}, s{sC}, 2", f"s_add_u32 {d}, {d}, s{sW}", f"s_mul_i32 {d}, {d}, 112", f"s_mul_i32 s33, s{sM}, 7",
            f"s_add_u32 {d}, {d}, s33", f"s_lshl_b32 {d}, {d}, 10", f"s_add_u32 {d}, {d}, {BH[layer]}"]

class F(K):
    def __init__(self):
        super().__init__(); self.spins = []; self.nspin = 0; self.st = ""; self.npf = 0
    def poll_issue(self, va, tag): self.vm(f"buffer_load_dword v{vP}, v{va}, {SRD_WS}, s{sPO} offen sc1", tag)
    def poll_addr(self, va, nl, sh=2):
        self.e(f"v_cmp_gt_u32 vcc, {nl}, v1", f"v_lshlrev_b32 v{va}, {sh}, v1", f"v_mov_b32 v{vP}, {OOB:#x}", f"v_cndmask_b32 v{va}, v{vP}, v{va}, vcc")
        self.nl = nl
    def poll_check(self, va, tag, thr):
        n = self.nspin; self.nspin += 1
        self.stamp(f"poll<{tag}")
        self.wait(vm=[tag])
        self.stamp(f"poll={tag}")
        msk = f"s_and_b32 s99, vcc_lo, {(1 << self.nl) - 1:#x}"
        self.e(f"v_cmp_gt_u32 vcc, {thr}, v{vP}", msk, f"s_cbranch_scc1 L_spin{n} ;np", f"L_back{n}: ;np")
        self.stamp(f"poll>{tag}")
        self.spins += [f"L_spin{n}:", f"s_sub_u32 s{sBUD}, s{sBUD}, 1", f"s_cbranch_scc1 L_give{n}"] + ([f"s_sleep {P.sleep}"] if P.sleep else []) + [
                       f"buffer_load_dword v{vP}, v{va}, {SRD_WS}, s{sPO} offen sc1", "s_waitcnt vmcnt(0)",
                       f"v_cmp_gt_u32 vcc, {thr}, v{vP}", msk, f"s_cbranch_scc1 L_spin{n}", f"s_branch L_back{n}",
                       f"L_give{n}:", f"s_mov_b32 s{sBUD}, 0", f"s_branch L_back{n}"]
    def flag(self, val, soff=sFO, st=None):
        self.e(f"v_mov_b32 v{vFV}, {val}")
        if st is not None:
            self.vm(f"buffer_store_dword v{vFV}, v{vFA}, {SRD_WS}, s{soff} offen {st}", "flag"); return
        self.e(f"s_or_b32 s99, s{soff}, s{sML}")
        self.vm(f"buffer_store_dword v{vFV}, v{vFA}, {SRD_WS}, s99 offen", "flag")
        self.e(f"s_or_b32 s99, s{soff}, s{sMS}")
        self.vm(f"buffer_store_dword v{vFV}, v{vFA}, {SRD_WS}, s99 offen sc1", "flag")
    def dstore(self, text, tag):
        if not P.plain:
            self.vm(text + " sc1", tag); return
        n = self.nspin; self.nspin += 1
        self.e(f"s_cmp_lg_u32 s{sML}, 0", f"s_cbranch_scc1 L_alt{n} ;np")
        self.vm(text, tag)
        self.e(f"L_back{n}: ;np")
        self.spins += [f"L_alt{n}:", "s_nop 4", text + " sc1", f"s_branch L_back{n}"]
    def touch(self, tmp, kind, base_expr, masked=True):
        if not P.plain or kind in P.notouch: return
        nl = {"p": 16, "s": 2, "h": 56}[kind]
        self.e(f"v_cmp_gt_u32 vcc, {nl}, v1")
        if kind == "p": self.e(f"v_lshrrev_b32 v{tmp}, 3, v1", f"v_lshlrev_b32 v{tmp}, 15, v{tmp}", f"v_and_b32 v{tmp+1}, 7, v1", f"v_lshl_add_u32 v{tmp}, v{tmp+1}, 7, v{tmp}")
        else: self.e(f"v_lshlrev_b32 v{tmp}, {11 if kind == 's' else 7}, v1")
        self.e(f"v_mov_b32 v{tmp+1}, {OOB:#x}", *base_expr)
        self.e(f"v_cndmask_b32 v{tmp}, v{tmp+1}, v{tmp}, vcc")
        if masked: self.e(f"s_or_b32 s32, s32, s{sML}")
        self.vm(f"buffer_load_dword v{tmp}, v{tmp}, {SRD_WS}, s32 offen", "touch")
    def vm(self, text, tag=None):
        kind = tag[0] if isinstance(tag, tuple) else tag
        if kind in P.drop:
            self.seen.add(tag); return
        super().vm(text, tag)
    def codepf(self, tmpv, per=2048):
        if not P.codepf: return
        n = self.npf; self.npf += 1
        sh = (per // 64).bit_length() - 1
        self.e(f"L_pf{n}: ;np", f"s_mul_i32 s32, s{sW}, {per}", f"s_add_u32 s32, s32, L_pf{n}-L_pc", f"v_lshlrev_b32 v{tmpv}, {sh}, v1")
        raise NotImplementedError
    def flush_spins(self):
        for l in self.spins: self.e(l)
        self.spins = []

def batch(k, i):
    src = f"s_add_u32 s62, s{sGS}, {i*16384}" if i < 15 else f"s_add_u32 s62, s{sDS}, {(16 + 4*(i-15))*1024}"
    def f(q):
        k.set_m0(f"s_add_u32 m0, s{sGL}, {(i % 10)*16384}")
        if i != 14: k.set_s(src)
        elif k.last.get(62) != f"s_cselect_b32 s62, {OOB>>1:#x}, s62":
            k.e(src, f"s_cmp_ge_u32 s{sW}, 2", f"s_cselect_b32 s62, {OOB>>1:#x}, s62")
        k.vm(f"buffer_load_dwordx4 v{vL16}, {SRD_WS}, s62 offen offset:{q*1024} {P.bgm} lds", ("gw", i))
    return [lambda q=q: f(q) for q in range(4)]

def bg_batches(k, bs, period, dep=lambda b: None):
    for b in bs:
        for f in batch(k, b): k.bg_add(f, period, ("gw", b), dep(b))
def bg_list(k, fns, period, tag, dep=None):
    for f in fns: k.bg_add(f, period, tag, dep)

def regloads(k, base_sgpr, off, dst, n, tag, tmp=63):
    fns = []
    for j in range(n):
        def f(j=j):
            k.set_s(f"s_add_u32 s{tmp}, s{base_sgpr}, {off + (j & ~3)*1024}")
            k.vm(f"buffer_load_dwordx4 {dst(j)}, v{vL16}, {SRD_WS}, s{tmp} offen offset:{(j%4)*1024} {P.bgm}", tag)
        fns.append(f)
    return fns
def wow(k): return regloads(k, 88, 0, lambda j: ar(192 + 4*j, 4), 16, "wow")

def pack_issue(k):
    k.e("v_lshrrev_b32 v44, 3, v1", "v_and_b32 v43, 7, v1", "v_and_b32 v45, 2, v44", "v_lshlrev_b32 v45, 1, v45",
        "v_xor_b32 v43, v43, v45", "v_lshlrev_b32 v43, 4, v43", f"s_add_u32 s34, s49, {L_X + 4096}")
    k.e("s_cmp_ge_u32 s2, 112", "s_cbranch_scc1 L_pki_small")
    k.e("s_and_b32 s35, s2, 1", "s_bfe_u32 s36, s2, 0x10001", "s_lshr_b32 s37, s2, 2")
    k.e("s_cmp_eq_u32 s35, 0", "s_cselect_b32 s24, s72, s74", "s_cselect_b32 s25, s73, s75",
        f"s_mov_b32 s26, {512*3584:#x}", "s_mov_b32 s27, 0x20000")
    k.e("v_mul_u32_u24 v46, 3584, v44", "v_add_u32 v46, v46, v43")
    k.e("s_lshl_b32 s38, s36, 2", f"s_add_u32 s38, s38, s{sW}", f"s_mul_i32 s38, s38, {64*3584}",
        "s_lshl_b32 s39, s37, 7", "s_add_u32 s38, s38, s39")
    for i in range(8):
        k.e(f"s_add_u32 m0, s34, {(i>>2)*8192 + (i&3)*1024}", f"s_add_u32 s39, s38, {i*8*3584}", f"buffer_load_dwordx4 v46, {SRD_PK}, s39 offen lds")
    k.e("s_branch L_pki_done")
    k.label("L_pki_small")
    k.e("s_sub_u32 s35, s2, 112", "s_lshl_b32 s35, s35, 3", f"s_lshl_b32 s36, s{sW}, 1", "s_add_u32 s35, s35, s36")
    k.e("s_cmp_lt_u32 s35, 896", "s_cselect_b32 s24, s76, s68", "s_cselect_b32 s25, s77, s69", f"s_mov_b32 s26, {512*1024:#x}",
        f"s_cselect_b32 s26, {1792*1024:#x}, s26", "s_mov_b32 s27, 0x20000", "s_cselect_b32 s37, 1, 0",
        "s_movk_i32 s38, 896", "s_cselect_b32 s38, 0, s38")
    k.e("s_sub_u32 s35, s35, s38", "s_and_b32 s36, s35, 7", "s_lshr_b32 s35, s35, 3")
    k.e("v_lshl_add_u32 v46, v44, 10, v43", "s_lshl_b32 s38, s35, 14", "s_lshl_b32 s39, s36, 7", "s_add_u32 s38, s38, s39")
    for i in range(2):
        for h in range(2):
            k.e(f"s_add_u32 m0, s34, {(2*i+h)*1024}", f"s_add_u32 s39, s38, {i*128 + h*8192}", f"buffer_load_dwordx4 v46, {SRD_PK}, s39 offen lds")
    k.label("L_pki_done")
    k.vmq.append("pk"); k.seen.add("pk")

def pack_process(k):
    st = "sc1"
    k.e("v_bfe_u32 v46, v1, 2, 2", "v_and_b32 v47, 3, v1", "v_bfe_u32 v48, v1, 4, 1", "v_lshrrev_b32 v49, 5, v1")
    k.e("v_and_b32 v50, 2, v46", "v_add_u32 v50, v50, v48", "v_lshlrev_b32 v50, 5, v50",
        "v_lshl_add_u32 v50, v46, 7, v50", "v_lshl_add_u32 v50, v47, 3, v50", "v_add_u32 v50, s34, v50")
    k.e("s_cmp_ge_u32 s2, 112", "s_cbranch_scc1 L_pk_small")
    q0 = list(k.vmq)
    k.e("v_lshl_add_u32 v56, v49, 10, v50", "v_xor_b32 v57, 64, v56")
    k.e("s_lshl_b32 s39, s37, 2", "v_add_u32 v58, s39, v48")
    k.e("s_lshl_b32 s70, s36, 2", f"s_add_u32 s70, s70, s{sW}", "s_lshl_b32 s70, s70, 2")
    k.e("v_and_b32 v66, 15, v1", "s_lshl_b32 s71, s35, 8", "v_lshl_add_u32 v66, v66, 4, s71")
    for p in range(2):
        T, fs, tl, st_, b, aug = 59, 60, 61, 62 + p, 64 + p, 68 + p
        k.e(f"v_add_u32 v{T}, {2*p}, v58", f"v_mul_u32_u24 v{fs}, 9363, v{T}", f"v_lshrrev_b32 v{fs}, 16, v{fs}",
            f"v_mul_u32_u24 v{tl}, 7, v{fs}", f"v_sub_u32 v{tl}, v{T}, v{tl}")
        k.e(f"v_cmp_gt_u32 vcc, 3, v{tl}", f"v_mul_u32_u24 v67, 33, v{tl}", f"v_mov_b32 v{st_}, 1", "v_mov_b32 v70, 3",
            f"v_cndmask_b32 v67, v67, v{tl}, vcc", f"v_cndmask_b32 v{st_}, v{st_}, v70, vcc")
        k.e(f"v_mul_u32_u24 v{fs}, 231, v{fs}", f"v_add_u32 v67, v67, v{fs}")
        k.e(f"v_lshl_add_u32 v70, v{st_}, 5, v67", "v_lshlrev_b32 v70, 10, v70", "v_add_u32 v70, v70, v66",
            "s_lshl_b32 s71, s36, 9", f"v_add_u32 v{aug}, s71, v70")
        k.e(f"v_mul_lo_u32 v70, v{st_}, s70", "v_add_u32 v67, v67, v70", "v_lshlrev_b32 v67, 10, v67",
            "v_add_u32 v67, v67, v66", f"v_lshl_add_u32 v{b}, v49, 9, v67", f"v_lshlrev_b32 v{st_}, 10, v{st_}")
    k.e("v_mov_b32 v71, 0x3f803f80", "v_mov_b32 v72, 0", "v_mov_b32 v73, 0", f"s_mov_b32 s71, {WS_PGU}")
    k.wait(vm="pk")
    for ks in range(4):
        for p in range(2):
            r = 76 + 8 * (ks & 1) + 4 * p
            for j in range(2): k.ds(f"ds_read_b64_tr_b16 {vr(r+2*j,2)}, v{56+p} offset:{(ks>>1)*8192 + (ks&1)*2048 + j*512}", ("t", ks, p))
        for p in range(2):
            r = 76 + 8 * (ks & 1) + 4 * p
            k.wait(lg=[("t", ks, p)])
            k.vm(f"buffer_store_dwordx4 {vr(r,4)}, v{64+p}, {SRD_WS}, s71 offen {st}", "pks")
            for d in range(4): k.e(f"v_dot2c_f32_bf16 v{72+p}, v{r+d}, v71")
            if ks < 3: k.e(f"v_add_u32 v{64+p}, v{64+p}, v{62+p}")
    k.e("v_permlane32_swap_b32 v72, v73", "v_add_f32 v72, v72, v73")
    k.e(f"s_lshl_b32 s72, s{sW}, 8", "s_add_u32 s72, s72, 0x10000", "v_lshl_add_u32 v74, v1, 2, s72")
    k.ds(f"ds_write_b32 v74, v72 offset:{L_CS - 65536}")
    k.wait(lg="all")
    k.e("s_barrier", f"s_cmp_lg_u32 s{sW}, 0", "s_cbranch_scc1 L_pk_done")
    for w in range(4): k.ds(f"ds_read_b32 v{92+w}, v74 offset:{L_CS - 65536 + 256*w}")
    k.e("v_cmp_gt_u32 vcc, 32, v1", "v_mov_b32 v98, 0", "v_mov_b32 v99, 0", "v_cndmask_b32 v68, v69, v68, vcc")
    k.wait(lg="all")
    k.e("v_add_f32 v92, v92, v93", "v_add_f32 v94, v94, v95", "v_add_f32 v92, v92, v94")
    k.e("v_cvt_pk_bf16_f32 v97, v92, v98", "v_lshlrev_b32 v93, 16, v97", "v_sub_f32 v93, v92, v93", "v_cvt_pk_bf16_f32 v96, v92, v93")
    k.vm(f"buffer_store_dwordx4 v[96:99], v68, {SRD_WS}, s71 offen {st}", "pks")
    k.e("s_branch L_pk_done")
    k.label("L_pk_small")
    k.vmq = list(q0)
    k.e("s_mul_i32 s38, s35, 2341", "s_lshr_b32 s38, s38, 16", "s_mul_i32 s39, s38, 28", "s_sub_u32 s39, s35, s39",
        "s_mul_i32 s70, s39, 9363", "s_lshr_b32 s70, s70, 16", "s_mul_i32 s71, s70, 7", "s_sub_u32 s71, s39, s71",
        "s_lshl_b32 s72, s70, 2", "s_add_u32 s72, s72, s71", "s_mul_i32 s73, s70, 3", "s_add_u32 s73, s73, s71", "s_add_u32 s73, s73, 12",
        "s_cmp_lt_u32 s71, 4", "s_cselect_b32 s72, s72, s73", "s_mul_i32 s38, s38, 28", "s_add_u32 s72, s72, s38")
    k.e("s_cmp_eq_u32 s37, 1", "s_cselect_b32 s35, s72, s35", f"s_mov_b32 s38, {WS_PWO}", f"s_cselect_b32 s38, {WS_PDN}, s38",
        f"s_mov_b32 s39, {64*KB}", f"s_cselect_b32 s39, {224*KB}, s39", "s_cselect_b32 s73, 9, 10", "s_movk_i32 s74, 512",
        "s_cselect_b32 s74, 0x400, s74")
    k.e("v_lshlrev_b32 v56, s73, v49", "v_add_u32 v56, v56, v50", "v_xor_b32 v57, 64, v56", "v_add_u32 v58, s74, v56", "v_add_u32 v59, s74, v57")
    k.e("s_mul_i32 s36, s36, s39", "s_add_u32 s38, s38, s36", "s_lshl_b32 s35, s35, 11", "s_add_u32 s38, s38, s35")
    k.wait(vm="pk")
    for i in range(2):
        for nn in range(2):
            r = 76 + 8 * i + 4 * nn
            k.ds(f"ds_read_b64_tr_b16 {vr(r,2)}, v{56+nn} offset:{i*2048}", ("t", i, nn))
            k.ds(f"ds_read_b64_tr_b16 {vr(r+2,2)}, v{58+nn} offset:{i*2048}", ("t", i, nn))
    for i in range(2):
        for nn in range(2):
            r = 76 + 8 * i + 4 * nn
            k.wait(lg=[("t", i, nn)])
            k.vm(f"buffer_store_dwordx4 {vr(r,4)}, v{vL16}, {SRD_WS}, s38 offen offset:{nn*1024} {st}", "pks")
        if i == 0: k.e("s_add_u32 s38, s38, s39")
    k.label("L_pk_done")

A_XF, A_K, A_V, A_Q = 36, 76, 86, 96
A_STA, A_STB, A_OP, A_DX, A_PA, A_ST, A_ACC = 104, 106, 144, 152, 153, 156, 184
class R0: XE, XO, SA, SB, CI, ONE, M, ATT, TMP = 3, 4, 5, 6, 28, 32, 52, (116, 160), 60
class R1: XE, XO, SA, SB, CI, ONE, M, ATT, TMP = 116, 117, 118, 119, 252, 124, 120, (228, 160), 28
A_U, A_PX = 226, 115
A11_ORDER = [2, 3, 1, 0, "h"]
A11_POS = {2: 3, 3: 0, 1: 1, 0: 2, "h": 3}
sODD, sCUR0, sCUR1, sCEXP = 40, 42, 44, 46

def a1_setup(k, layer):
    R = (R0, R1)[layer]
    real = k; out = []
    class Rec:
        def e(self, *t):
            if any(x.startswith("s_cmp") for x in t): out.append(lambda t=t: real.e(*t))
            else: out.extend(lambda x=x: real.e(x) for x in t)
    k = Rec()
    t16, g, tt, tb = R.TMP, R.TMP + 1, R.TMP + 2, R.TMP + 3
    x, y, z = R.ONE, R.ONE + 1, R.ONE + 2
    sa = L_SA0 if layer == 0 else L_SA1
    k.e(f"v_and_b32 v{t16}, 15, v1", f"v_lshrrev_b32 v{g}, 4, v1", f"v_and_b32 v{tt}, 7, v1", f"v_bfe_u32 v{tb}, v1, 3, 1")
    k.e(f"v_lshlrev_b32 v{tb}, 13, v{tb}", f"v_add_u32 v{tb}, {L_X}, v{tb}")
    if layer == 0:
        k.e(f"v_and_b32 v{x}, 6, v{tt}", f"v_xor_b32 v{x}, v{x}, v{g}", f"v_lshlrev_b32 v{x}, 4, v{x}",
            f"v_lshl_add_u32 v{x}, v{tt}, 7, v{x}", f"v_add_u32 v{R.XE}, v{x}, v{tb}", f"v_xor_b32 v{R.XO}, 64, v{R.XE}")
    else:
        k.e(f"v_lshl_add_u32 v{x}, v{g}, 7, v{tb}", f"v_lshl_add_u32 v{R.XE}, v{tt}, 4, v{x}", f"v_add_u32 v{R.XO}, 512, v{R.XE}")
    k.e(f"v_lshlrev_b32 v{R.SA}, 3, v{t16}", f"v_add_u32 v{R.SA}, {sa}, v{R.SA}",
        f"v_lshlrev_b32 v{R.SB}, 5, v{g}", f"v_add_u32 v{R.SB}, {sa}, v{R.SB}")
    k.e(f"v_and_b32 v{x}, 1, v1", f"v_cmp_eq_u32 s[{sODD}:{sODD+1}], 1, v{x}",
        f"v_lshl_add_u32 v{y}, v{g}, 2, v{x}", f"v_cmp_le_u32 s[{sCUR0}:{sCUR0+1}], v{y}, v{t16}",
        f"v_add_u32 v{y}, 2, v{y}", f"v_cmp_le_u32 s[{sCUR1}:{sCUR1+1}], v{y}, v{t16}")
    k.e(f"v_mov_b32 v{y}, 0xffff", f"v_mov_b32 v{z}, 0xffff0000", f"v_cndmask_b32 v{y}, v{y}, v{z}, s[{sODD}:{sODD+1}]", f"v_mov_b32 v{z}, 0")
    k.e(f"v_cndmask_b32 v{R.M+2}, v{z}, v{y}, s[{sCUR0}:{sCUR0+1}]", f"v_cndmask_b32 v{R.M}, v{y}, v{z}, s[{sCUR0}:{sCUR0+1}]",
        f"v_cndmask_b32 v{R.M+3}, v{z}, v{y}, s[{sCUR1}:{sCUR1+1}]", f"v_cndmask_b32 v{R.M+1}, v{y}, v{z}, s[{sCUR1}:{sCUR1+1}]")
    k.e(f"s_cmp_eq_u32 s{sB}, 0", f"s_cselect_b32 s70, {f2u(-1e38):#x}, 0", f"s_mov_b32 s{sCEXP}, {f2u(0.25*LOG2E):#x}")
    for i in range(4): k.e(f"v_mov_b32 v{R.CI+i}, s70", f"v_mov_b32 v{R.ONE+i}, 0x3f803f80")
    return out

def o_bases(k, layer):
    k.e(f"s_lshl_b32 s32, s{sB}, 16", f"s_lshl_b32 s33, s{sCS}, 2", f"s_add_u32 s33, s33, s{sW}", "s_lshl_b32 s53, s33, 10",
        "s_add_u32 s32, s32, s53", f"s_add_u32 s53, s32, {BO[layer]}", "s_add_u32 s54, s53, 32768",
        f"s_lshl_b32 s32, s{sB}, 5", "s_add_u32 s32, s32, s33", "s_lshl_b32 s32, s32, 2", f"s_add_u32 s89, s32, {fl(layer, FL_O)}")

def ln_finish(a, s, q):
    a(f"v_mul_f32 v{s}, {f2u(-1/512):#x}, v{s}"); a(f"v_mul_f32 v{q}, {f2u(1/512):#x}, v{q}")
    a(f"v_fma_f32 v{q}, -v{s}, v{s}, v{q}"); a(f"v_max_f32 v{q}, 0, v{q}"); a(f"v_add_f32 v{q}, {f2u(1e-5):#x}, v{q}")

def fix(k, R, fx, t, acc, at, pk):
    a = lambda txt, c=1, at=0: fx.add(lambda: k.e(txt), c, at)
    i = 0 if t == "h" else t + 1
    fx.add(lambda: k.ds(f"ds_read_b64 {vr(A_STA,2)}, v{R.SA} offset:{i*128}", "sa"), 1, at - 4)
    fx.add(lambda: k.ds(f"ds_read_b128 {vr(A_STB,4)}, v{R.SB} offset:{i*128}", "sa"))
    fx.add(lambda: k.ds(f"ds_read_b128 {vr(A_STB+4,4)}, v{R.SB} offset:{i*128+16}", "sa"))
    fx.add(lambda: k.wait(lg=["sa"]), 1, at)
    for r0, cs, dst in ((acc[0], CSQ, None if t == "h" else A_Q + 2*t), (acc[1], CSK, A_K + 2*i)):
        if dst is None: continue
        if pk:
            for h in (0, 2): a(f"v_pk_fma_f32 {vr(r0+h,2)}, {vr(A_STA,2)}, {vr(cs+h,2)}, {vr(r0+h,2)} op_sel_hi:[0,1,1]")
            for h in (0, 2): a(f"v_pk_mul_f32 {vr(r0+h,2)}, {vr(A_STA,2)}, {vr(r0+h,2)} op_sel:[1,0] op_sel_hi:[1,1]")
        else:
            for r in range(4): a(f"v_fmac_f32 v{r0+r}, v{A_STA}, v{cs+r}")
            for r in range(4): a(f"v_mul_f32 v{r0+r}, v{A_STA+1}, v{r0+r}")
        for h in range(2): a(f"v_cvt_pk_bf16_f32 v{dst+h}, v{r0+2*h}, v{r0+2*h+1}")
    r0 = acc[2]
    for r in range(4): a(f"v_fmac_f32 v{r0+r}, v{A_STB+2*r}, v{CSV}")
    for r in range(4): a(f"v_mul_f32 v{r0+r}, v{A_STB+2*r+1}, v{r0+r}")
    for h in range(2): a(f"v_cvt_pk_bf16_f32 v{A_V+2*i+h}, v{r0+2*h}, v{r0+2*h+1}")
    fx.add(lambda: (k.mark(("fix", t)), k.stamp(f"t0 fix{t}")), 0)

def attn(k, R, fx, t, B):
    SC, SP, PP, O, SUM, T = B, B + 4, B + 8, B + 12, B + 16, B + 20
    a = lambda txt, c=1: fx.add(lambda: k.e(txt), c)
    q = vr(A_Q + 2*t, 2)
    fx.dep(("fix", t)); fx.dep(("fix", t - 1 if t else "h")); fx.skip(1)
    a(f"{MF16S} {vr(SC,4)}, {vr(A_K+2*(t+1),2)}, {q}, 0", 2)
    a(f"{MF16S} {vr(SP,4)}, {vr(A_K+2*t,2)}, {q}, {vr(R.CI,4) if t == 0 else '0'}", 2)
    fx.skip(3)
    for rr, cur in ((0, sCUR0), (1, sCUR1)):
        a(f"v_cndmask_b32 v{T+2}, v{SC+2*rr}, v{SC+2*rr+1}, s[{sODD}:{sODD+1}]")
        a(f"v_cndmask_b32 v{T+3}, v{SP+2*rr}, v{SP+2*rr+1}, s[{sODD}:{sODD+1}]")
        a(f"v_cndmask_b32 v{T+rr}, v{T+3}, v{T+2}, s[{cur}:{cur+1}]")
    a(f"v_max_f32 v{T+2}, v{T}, v{T+1}"); a(f"v_mov_b32 v{T+3}, v{T+2}"); fx.skip(1)
    a(f"v_permlane16_swap_b32 v{T+2}, v{T+3}", 2); a(f"v_max_f32 v{T+2}, v{T+2}, v{T+3}"); a(f"v_mov_b32 v{T+3}, v{T+2}"); fx.skip(1)
    a(f"v_permlane32_swap_b32 v{T+2}, v{T+3}", 2); a(f"v_max_f32 v{T+2}, v{T+2}, v{T+3}")
    a(f"v_mul_f32 v{T+2}, s{sCEXP}, v{T+2}")
    for rr in range(2): a(f"v_fma_f32 v{T+rr}, v{T+rr}, s{sCEXP}, -v{T+2}")
    for rr in range(2): a(f"v_exp_f32 v{T+rr}, v{T+rr}", 2)
    for rr in range(2): a(f"v_cvt_pk_bf16_f32 v{T+rr}, v{T+rr}, v{T+rr}")
    a(f"v_and_b32 v{PP}, v{T}, v{R.M}"); a(f"v_and_b32 v{PP+1}, v{T+1}, v{R.M+1}")
    a(f"v_and_b32 v{PP+2}, v{T}, v{R.M+2}"); a(f"v_and_b32 v{PP+3}, v{T+1}, v{R.M+3}")
    fx.skip(1)
    a(f"{MF16} {vr(SUM,4)}, {vr(R.ONE,4)}, {vr(PP,4)}, 0", 2)
    a(f"{MF16} {vr(O,4)}, {vr(A_V+2*t,4)}, {vr(PP,4)}, 0", 2)
    fx.skip(3)
    a(f"v_rcp_f32 v{T}, v{SUM}", 2); fx.skip(1)
    for r in range(4): a(f"v_mul_f32 v{O+r}, v{T}, v{O+r}")
    for h in range(2): a(f"v_cvt_pk_bf16_f32 v{A_OP+2*t+h}, v{O+2*h}, v{O+2*h+1}")
    fx.add(lambda: (k.mark(("attn", t)), k.stamp(f"t0 attn{t}")), 0)

def ostore(k, fx, pair):
    b = A_OP + 4 * pair
    fx.dep(("attn", 2*pair)); fx.dep(("attn", 2*pair + 1))
    if pair == 0: fx.dep("po1")
    fx.skip(1)
    fx.add(lambda: k.e(f"v_permlane16_swap_b32 v{b}, v{b+2}"), 2); fx.add(lambda: k.e(f"v_permlane16_swap_b32 v{b+1}, v{b+3}"), 2)
    fx.add(lambda: (k.dstore(f"buffer_store_dwordx4 {vr(b,4)}, v{vL16}, {SRD_WS}, s{53+pair} offen", ("ost", pair)), k.mark(("ost", pair))))

Z_WD, Z_TR, Z_HE, Z_HO, Z_OE, Z_OO = 164, 165, 166, 167, 168, 169
Z_XF, Z_SUM, Z_GR, Z_SUMH, Z_GRH, Z_CV = 104, 240, 244, 248, 252, 100
P.k_look, P.k_pack, P.k_atom, P.k_bar, P.k_vgap = 4, 2, 5, 5, 3
NS0 = 6
def z_acc(t):
    if t == "h": return (None, A_ACC + 48, A_ACC + 52)
    return (A_ACC + 12*t, A_ACC + 12*t + 4, A_ACC + 12*t + 8)

def a10_lanes(k):
    k.e("v_lshrrev_b32 v60, 3, v1", "v_and_b32 v61, 6, v60", "v_and_b32 v62, 7, v1", "v_xor_b32 v61, v61, v62",
        "v_lshlrev_b32 v61, 4, v61", f"v_lshl_add_u32 v{A_DX}, v60, 10, v61")
    k.e("v_and_b32 v61, 2, v60", f"s_and_b32 s32, s{sW}, 1", "s_lshl_b32 s32, s32, 2", "v_or_b32 v61, s32, v61", "v_xor_b32 v61, v61, v62",
        "v_lshlrev_b32 v61, 4, v61", "v_mul_u32_u24 v60, 3072, v60", f"v_add_u32 v{Z_WD}, v60, v61")
    k.e(f"s_add_u32 s{sROT}, s{sB}, s{sCS}", f"s_and_b32 s{sROT}, s{sROT}, 7")
    k.e(f"s_lshl_b32 s47, s{sB}, 3", "s_sub_u32 s48, s47, 2", "s_max_i32 s48, s48, 0", f"s_and_b32 s32, s{sW}, 1", "s_add_u32 s48, s48, s32",
        "s_lshl_b32 s48, s48, 13", f"s_lshl_b32 s32, s{sW}, 1", "s_add_u32 s47, s47, s32", "s_lshl_b32 s47, s47, 13")
    k.e(f"s_mul_i32 s51, s{sW}, {8*3072}", f"s_lshl_b32 s32, s{sCS}, 7", "s_add_u32 s51, s51, s32", f"s_mul_i32 s52, s{sW}, 3072")
    k.e(f"s_lshl_b32 s49, s{sW}, 14", f"s_and_b32 s32, s{sW}, 1", "s_lshl_b32 s50, s32, 13", f"s_lshr_b32 s32, s{sW}, 1",
        "s_lshl_b32 s33, s32, 10", "s_add_u32 s50, s50, s33", f"s_add_u32 s90, s32, s{sROT}")

def a10_x(k, c):
    S = lambda *t: [("s", lambda x=x: k.e(x)) for x in t]
    ld = lambda: k.vm(f"buffer_load_dwordx4 v{A_DX}, {SRD_X}, s33 offen lds", ("x", c))
    ops = S(f"s_add_u32 s33, s{sROT}, {c}", "s_and_b32 s33, s33, 7", "s_lshl_b32 s33, s33, 7", f"s_add_u32 m0, s49, {L_X + c*1024}", "s_add_u32 s33, s33, s47")
    ops += [("v", ld)] + S(f"s_add_u32 m0, s49, {L_X + 8192 + c*1024}", "s_add_u32 s33, s33, 8192") + [("v", ld)]
    if c % 2 == 0:
        ops += S(f"s_add_u32 s33, s90, {c}", "s_and_b32 s33, s33, 7", "s_lshl_b32 s33, s33, 7", f"s_add_u32 m0, s50, {L_XH0 + c*1024}", "s_add_u32 s33, s33, s48") + [("v", ld)]
    return ops

def a10_w(k, s):
    S = lambda *t: [("s", lambda x=x: k.e(x)) for x in t]
    if s & 1: ops = S(f"s_add_u32 m0, s52, {(s % NS0)*12288}", f"s_add_u32 s63, s63, {32*3072}")
    else: ops = S(f"s_add_u32 s63, s{sROT}, {s>>1}", "s_and_b32 s63, s63, 7", f"s_mul_i32 s63, s63, {64*3072}", f"s_add_u32 m0, s52, {(s % NS0)*12288}", "s_add_u32 s63, s63, s51")
    for p in range(3): ops.append(("v", lambda p=p: k.vm(f"buffer_load_dwordx4 v{Z_WD}, {SRD_QKV}, s63 offen offset:{p*1024} lds", ("w", s))))
    return ops
def run(ops):
    for _, f in ops: f()

def fill(k, mains, streams, cap=2):
    lastv = -99
    for g, m in enumerate(mains):
        m(); k.gap = g
        for a, o in streams:
            if a <= g and o and o[0][0] == "s": o.pop(0)[1](); break
        room = cap; nd = 0
        while room > 0:
            pick = None
            for a, o in streams:
                if a > g or not o: continue
                t = o[0][0]
                if t == "d" and nd >= 1: continue
                if t == "v" and g - lastv < P.k_vgap: continue
                pick = o; break
            if pick is None: break
            t, f = pick.pop(0); f(); room -= 2 if t == "b" else 1
            if t == "d": nd += 1
            if t == "v": lastv = g
    for a, o in streams: run(o)

def a10_lanes2(k):
    k.e("v_lshrrev_b32 v60, 4, v1", "v_bfe_u32 v61, v1, 2, 2", "v_and_b32 v62, 1, v60", "v_lshlrev_b32 v62, 1, v62",
        "v_lshrrev_b32 v63, 1, v61", "v_or_b32 v62, v62, v63", f"v_xor_b32 v62, s{sW}, v62", "v_lshlrev_b32 v62, 5, v62",
        "v_mul_u32_u24 v60, 3072, v60", "v_lshl_add_u32 v60, v61, 7, v60", "v_add_u32 v60, v60, v62",
        "v_and_b32 v61, 3, v1", f"v_lshl_add_u32 v{Z_TR}, v61, 3, v60")
    k.e(f"v_subrev_u32 v{Z_HE}, 16384, v{R0.XE}", f"v_subrev_u32 v{Z_HO}, 16384, v{R0.XO}",
        f"v_add_u32 v{Z_OE}, s49, v{R0.XE}", f"v_add_u32 v{Z_OO}, s49, v{R0.XO}")

def a10_loop(k, first):
    LA = P.k_look
    def sync(s, extra=()):
        k.wait(vm=[("w", s), ("x", s >> 1)] + list(extra)); k.e("s_barrier")
    nxt = [first]
    def dmas(upto):
        out = []
        while nxt[0] <= min(upto, 15):
            n = nxt[0]; nxt[0] += 1
            if n % 2 == 0: out += a10_x(k, n // 2)
            out += a10_w(k, n)
        return out
    def reads(s):
        fb = Z_XF + 24 * (s & 1); off = (s >> 1) * 1024; o = s & 1
        tr = lambda p, j: ("d", lambda: k.ds(f"ds_read_b64_tr_b16 {ar(12*s+4*p+2*j,2)}, v{Z_TR} offset:{(s%NS0)*12288 + p*1024 + j*512}", ("r", s, 0 if p == 0 else 1)))
        xr = lambda d, a, of, grp: ("d", lambda: k.ds(f"ds_read_b128 {vr(d,4)}, v{a} offset:{of}", ("r", s, grp)))
        out = [tr(0, 0), tr(0, 1)] + [xr(fb + 4*t, R0.XO if o else R0.XE, t*16384 + off, 0) for t in range(4)]
        out += [tr(1, 0), tr(1, 1), tr(2, 0), tr(2, 1), xr(fb + 16, Z_HO if o else Z_HE, off, 1), xr(fb + 20, Z_OO if o else Z_OE, off, 1)]
        return out
    sync(0)
    k.stamp("k0")
    run(reads(0)); run(dmas(LA - 1))
    for s in range(16):
        fb = Z_XF + 24 * (s & 1)
        c = lambda r: "0" if s == 0 else vr(r, 4)
        wq, wk, wv, one = ar(12*s, 4), ar(12*s + 4, 4), ar(12*s + 8, 4), vr(R0.ONE, 4)
        ms = [f"{MF16} {vr(z_acc(t)[0],4)}, {wq}, {vr(fb+4*t,4)}, {c(z_acc(t)[0])}" for t in range(4)]
        ms.append(f"{MF16} {vr(CSQ,4)}, {wq}, {one}, {c(CSQ)}")
        for t in [0, 1, 2, 3, "h"]:
            xf = vr(fb + (16 if t == "h" else 4*t), 4)
            ms.append(f"{MF16} {vr(z_acc(t)[1],4)}, {wk}, {xf}, {c(z_acc(t)[1])}")
            ms.append(f"{MF16} {vr(z_acc(t)[2],4)}, {xf}, {wv}, {c(z_acc(t)[2])}")
        ms += [f"{MF16} {vr(CSK,4)}, {wk}, {one}, {c(CSK)}", f"{MF16} {vr(Z_CV,4)}, {one}, {wv}, {c(Z_CV)}",
               f"{MF16} {vr(Z_SUM,4)}, {one}, {vr(fb+20,4)}, {c(Z_SUM)}", f"{MF16} {vr(Z_GR,4)}, {vr(fb+20,4)}, {vr(fb+20,4)}, {c(Z_GR)}",
               f"{MF16} {vr(Z_SUMH,4)}, {one}, {vr(fb+16,4)}, {c(Z_SUMH)}", f"{MF16} {vr(Z_GRH,4)}, {vr(fb+16,4)}, {vr(fb+16,4)}, {c(Z_GRH)}"]
        mains = [lambda m=m: k.e(m) for m in ms]
        if s == P.k_pack:
            k.wait(lg="all"); k.stamp("s pk0"); pack_process(k); k.stamp("s pk1")
        k.wait(lg=[("r", s, 0)])
        streams = [(4, [("s", lambda: k.wait(lg=[("r", s, 1)]))])]
        if s + 1 < 16:
            ex = ["pks"] if s + 1 == P.k_atom else []
            ops = [("b", lambda: sync(s + 1, ex))] + reads(s + 1)
            if ex: ops.append(("v", lambda: k.vm(f"buffer_atomic_add v170, v171, {SRD_DBG}, 0 offen", "atom")))
            streams.append((P.k_bar, ops))
            streams.append((0, dmas(s + LA)))
        if s == P.k_touch:
            streams.append((2, [("b", lambda: k.touch(36, "p", ["s_mov_b32 s32, s53"], False)),
                                ("b", lambda: k.touch(38, "p", [f"s_add_u32 s32, s55, {BX1[0]}"], False)),
                                ("b", lambda: k.touch(40, "h", h_base("s32", 0), False))]))
        if s == P.k_gb: streams.append((16, [("v", lambda: k.vm(f"buffer_load_dword v{vP}, v172, {SRD_DBG}, 0 offen sc1", "gb"))]))
        fill(k, mains, streams)
        if s in (3, 7, 11): k.stamp(f"k{s+1}")
    k.stamp("k16")
    k.wait(vm=["gb"])
    k.e("v_and_b32 v60, 31, v10", "v_cmp_ne_u32 vcc, 16, v60", "s_and_b32 s99, vcc_lo, 0xffff", "s_cbranch_scc0 L_gb_ok")
    k.label("L_gb_spin")
    k.e(f"s_sub_u32 s{sBUD}, s{sBUD}, 1", "s_cbranch_scc1 L_gb_give", f"buffer_load_dword v{vP}, v172, {SRD_DBG}, 0 offen sc1",
        "s_waitcnt vmcnt(0)", "v_and_b32 v60, 31, v10", "v_cmp_ne_u32 vcc, 16, v60", "s_and_b32 s99, vcc_lo, 0xffff", "s_cbranch_scc1 L_gb_spin", "s_branch L_gb_ok")
    k.label("L_gb_give"); k.e(f"s_mov_b32 s{sBUD}, 0")
    k.label("L_gb_ok")
    k.e(f"v_readlane_b32 s32, v{vP}, s{sC}", "s_lshl_b32 s33, s91, 4", "s_cmp_eq_u32 s32, s33" if not P.safe else "s_cmp_eq_u32 0, 1",
        f"s_cselect_b32 s{sML}, 0, {OOB>>1:#x}", f"s_cselect_b32 s{sMS}, {OOB>>1:#x}, 0")

def wo_prepoll(k, layer):
    k.poll_addr(A_PA, 8)
    k.e(f"s_lshl_b32 s32, s{sB}, 7", f"s_lshl_b32 s33, s{sW}, 5", "s_add_u32 s32, s32, s33", f"s_add_u32 s{sPO}, s32, {fl(layer, FL_O)}")
    k.e(f"s_lshl_b32 s32, s{sB}, 16", f"s_lshl_b32 s33, s{sW}, 13", "s_add_u32 s32, s32, s33", f"s_add_u32 s59, s32, {BO[layer]}")
    k.bg_held = True
    k.poll_issue(A_PA, "po1"); k.mark("po1")

def dna(k): return regloads(k, sDS, 0, lambda j: ar(192 + 4*j, 4), 16, "dna")

def a10_tail(k):
    R = R0
    k.per = dict(P.per_tail0)
    bg_list(k, wow(k), "s4", "wow")
    bg_batches(k, [0, 1, 2, 3], "s2", lambda b: "tailbar")
    b4 = batch(k, 4)
    bg_list(k, b4[:2], "s2", ("gw", 4), "tailbar")
    bg_batches(k, [5, 6, 7], "s2", lambda b: "tailbar")
    bg_list(k, b4[2:], "s2", ("gw", 4), "wobar")
    k.stamp("t0 gb")
    k.touch(70, "s", [f"s_add_u32 s32, s56, {BS1[0]}"])
    k.bg_burst(2)
    k.e(f"v_mov_b32 v{CSV}, v{Z_CV}")
    k.e("v_and_b32 v60, 3, v1", "v_cmp_eq_u32 s[34:35], 1, v60", "v_cmp_eq_u32 s[36:37], 2, v60", "v_cmp_eq_u32 s[38:39], 3, v60",
        "v_bfe_u32 v60, v1, 2, 2", "v_lshrrev_b32 v61, 4, v1", "v_cmp_eq_u32 vcc, v60, v61", f"v_mov_b32 v60, {L_SA0 + 768}",
        f"s_lshl_b32 s32, s{sW}, 7", f"v_add_u32 v61, s32, v{R.SA}", "v_cndmask_b32 v61, v60, v61, vcc", f"v_cndmask_b32 v62, v60, v{R.SA}, vcc")
    fa = Flex(); fb = Flex()
    for fx, S, G, ad, off in ((fa, Z_SUM, Z_GR, 61, 128), (fb, Z_SUMH, Z_GRH, 62, 0)):
        a = lambda txt, c=1, fx=fx: fx.add(lambda: k.e(txt), c)
        a(f"v_cndmask_b32 v{S+1}, v{G}, v{G+1}, s[34:35]"); a(f"v_cndmask_b32 v{S+1}, v{S+1}, v{G+2}, s[36:37]"); a(f"v_cndmask_b32 v{S+1}, v{S+1}, v{G+3}, s[38:39]")
        ln_finish(a, S, S + 1); a(f"v_rsq_f32 v{S+1}, v{S+1}"); fx.skip(1)
        fx.add(lambda S=S, ad=ad, off=off: k.ds(f"ds_write_b64 v{ad}, {vr(S,2)} offset:{off}", "saw"))
    drain([fa, fb], k)
    k.e("v_and_b32 v63, 7, v1", "v_lshrrev_b32 v64, 3, v1", "v_lshlrev_b32 v63, 10, v63", "v_lshl_add_u32 v63, v64, 4, v63")
    for mm in range(2):
        k.e(f"s_add_u32 s32, s57, {mm*32768}")
        k.vm(f"buffer_load_dwordx4 {vr(RES+4*mm,4)}, v63, {SRD_X}, s32 offen", "res")
    k.wait(lg="all"); k.e("s_barrier"); k.mark("tailbar")
    k.stamp("t0 bar")
    fx = Flex(); f1 = Flex(); f2 = Flex()
    for t in (2, 1, 3, 0, "h"): fix(k, R, fx, t, z_acc(t), 0, True); fx.skip(1)
    attn(k, R, f1, 2, R.ATT[0]); attn(k, R, f2, 3, R.ATT[1]); ostore(k, f2, 1)
    attn(k, R, f1, 1, R.ATT[0]); attn(k, R, f2, 0, R.ATT[1]); ostore(k, f2, 0)
    f3 = Flex(); f3.dep(("ost", 1))
    for _ in range(P.l0_flag_delay): f3.skip(1)
    f3.add(lambda: (k.wait(vm=[("ost", 1)]), k.flag(1, 89), k.mark("oflag1")))
    f3.dep(("attn", 0)); f3.add(lambda: wo_prepoll(k, 0))
    drain([fx, f1, f2, f3], k)
    k.stamp("a1 end")
P.l0_flag_delay = 6
P.per_tail0 = {"s2": 100, "s4": 60}

def a11_bases(k):
    out = []
    S = lambda *t: out.extend(lambda x=x: k.e(x) for x in t)
    S(f"s_lshr_b32 s70, s{sW}, 1", "s_lshl_b32 s49, s70, 13", f"s_and_b32 s71, s{sW}, 1", "s_lshl_b32 s71, s71, 2",
      f"s_add_u32 s50, s71, s{sROT}", "s_lshl_b32 s71, s71, 10")
    for i in range(4):
        S(f"s_add_u32 s70, s50, {i}", "s_and_b32 s70, s70, 7", "s_lshl_b32 s70, s70, 10", "s_add_u32 s70, s70, s49", f"s_sub_u32 s{92+i}, s70, {i*1024}")
    S("s_add_u32 s49, s49, s71", f"s_lshl_b32 s47, s{sB}, 16", f"s_add_u32 s47, s47, {WS_X[1]}")
    S(f"s_sub_u32 s48, s{sB}, 1", "s_max_i32 s48, s48, 0", "s_lshl_b32 s51, s48, 10", f"s_add_u32 s51, s51, {WS_HST}",
      "s_lshl_b32 s52, s48, 11", f"s_add_u32 s52, s52, {WS_HXF}", "s_lshl_b32 s48, s48, 14", f"s_add_u32 s48, s48, {WS_HALO}")
    S("v_lshrrev_b32 v28, 4, v1", "v_and_b32 v29, 15, v1", "v_lshlrev_b32 v29, 4, v29", f"v_lshl_add_u32 v{A_U}, v28, 9, v29", f"v_lshl_add_u32 v{A_U+1}, v28, 8, v29")
    S(f"s_lshl_b32 s70, s{sB}, 12", f"s_and_b32 s71, s{sW}, 1", "s_lshl_b32 s71, s71, 8", "s_add_u32 s70, s70, s71", f"s_add_u32 s90, s70, {WS_ST[1]}")
    out.append(lambda: k.e(f"s_lshl_b32 s70, s{sB}, 1", f"s_add_u32 s70, s70, s{sW}", "s_lshl_b32 s72, s70, 13", f"s_lshl_b32 s71, s{sCS}, 10", "s_add_u32 s72, s72, s71",
        f"s_add_u32 s72, s72, {WS_HALO - 16384}", f"s_cmp_ge_u32 s{sW}, 2", f"s_cselect_b32 s72, s72, {OOB>>1:#x}"))
    out.append(lambda: k.e(f"s_lshl_b32 s73, s{sB}, 10", f"s_lshr_b32 s71, s{sCS}, 1", "s_lshl_b32 s71, s71, 8", "s_add_u32 s73, s73, s71", f"s_and_b32 s71, s{sCS}, 1",
        "s_lshl_b32 s71, s71, 3", "s_add_u32 s73, s73, s71"))
    out.append(lambda: k.e(f"s_lshl_b32 s71, s{sW}, 7", "s_add_u32 s73, s73, s71", f"s_add_u32 s73, s73, {WS_HST - 256}",
        f"s_cmp_ge_u32 s{sW}, 2", f"s_cselect_b32 s73, s73, {OOB>>1:#x}"))
    out.append(lambda: k.e(f"s_lshl_b32 s70, s{sB}, 3", f"s_add_u32 s70, s70, s{sCS}", "s_lshl_b32 s70, s70, 1", f"s_add_u32 s70, s70, s{sW}", "s_lshl_b32 s70, s70, 7",
        f"s_add_u32 s70, s70, {WS_HXF - 256}", f"s_cmp_ge_u32 s{sW}, 2", f"s_cselect_b32 s91, s70, {OOB>>1:#x}"))
    return out

def a11_x(k, tile):
    fns = []
    for i in range(4):
        def f(i=i):
            k.set_m0(f"s_add_u32 m0, s49, {L_X + A11_POS[tile]*16384}")
            k.e(f"s_add_u32 s32, s{48 if tile == 'h' else 47}, s{92+i}")
            if tile not in (0, "h"): k.e(f"s_add_u32 s32, s32, {tile*16384}")
            k.vm(f"buffer_load_dwordx4 v{vL16}, {SRD_WS}, s32 offen offset:{i*1024} sc1 lds", ("x", tile))
        fns.append(f)
    return fns

def stats_path(k, fx, S, tag, addr, tok, at=0):
    a = lambda txt, c=1: fx.add(lambda: k.e(txt), c)
    s, q = S, S + 1
    fx.add(lambda: k.wait(vm=[tag]), 1, at)
    a(f"v_add_f32 v{s}, v{s}, v{S+2}"); a(f"v_add_f32 v{q}, v{q}, v{S+3}"); fx.skip(1)
    a(f"v_permlane16_swap_b32 v{s}, v{q}", 2); a(f"v_add_f32 v{s}, v{s}, v{q}"); a(f"v_mov_b32 v{q}, v{s}"); fx.skip(1)
    a(f"v_permlane32_swap_b32 v{s}, v{q}", 2); a(f"v_add_f32 v{s}, v{s}, v{q}"); a(f"v_mov_b32 v{q}, v{s}"); fx.skip(1)
    a(f"v_permlane16_swap_b32 v{s}, v{q}", 2)
    ln_finish(a, s, q); a(f"v_rsq_f32 v{q}, v{q}", 2); fx.skip(1)
    fx.add(lambda: (k.ds(f"ds_write_b64 v{addr}, {vr(s,2)} offset:{tok*8}", ("saw", tag)), k.mark(("saw", tag))))

def a11_early(k):
    k.vm(f"buffer_load_dwordx4 {vr(A_ST,4)}, v{A_U}, {SRD_WS}, s90 offen offset:2048 sc1", "st0")
    for t in A11_ORDER[:2]:
        for f in a11_x(k, t): f()

def a11_main(k):
    R = R1; order = A11_ORDER
    steps = [(t, s) for t in order for s in range(16)]
    accof = lambda t: A_ACC + 12 * (order.index(t) % 3)
    def xread(i):
        t, s = steps[i]
        off = A11_POS[t] * 16384 + (s >> 1) * 1024
        k.ds(f"ds_read_b128 {vr(A_XF+4*(i%4),4)}, v{R.XO if s&1 else R.XE} offset:{off}", ("xf", i))
    mains = []; fixed = {}; gap_of = {}
    need_sa = {order[1]: ["st0"], order[2]: ["st1"], order[3]: [], "h": []}
    for i, (t, s) in enumerate(steps):
        acc = accof(t); xf = vr(A_XF + 4*(i % 4), 4)
        c = lambda r, s=s: "0" if s == 0 else vr(r, 4)
        ms = []
        if t != "h": ms.append(f"{MF16} {vr(acc,4)}, {ar(12*s,4)}, {xf}, {c(acc)}")
        ms.append(f"{MF16} {vr(acc+4,4)}, {ar(12*s+4,4)}, {xf}, {c(acc+4)}")
        ms.append(f"{MF16} {vr(acc+8,4)}, {xf}, {ar(12*s+8,4)}, {c(acc+8)}")
        gap_of[(t, s)] = len(mains)
        for m in ms: mains.append(lambda m=m: k.e(m))
        last = len(mains) - 1
        fl_ = fixed.setdefault(last, [])
        if i + 1 < len(steps): fl_.append((0, lambda i=i: k.wait(lg=[("xf", i + 1)])))
        j = i + 4
        if j < len(steps):
            tj, sj = steps[j]
            if sj == 0:
                def bar(tj=tj):
                    k.wait(vm=[("x", tj)], lg=[("saw", n) for n in need_sa[tj]]); k.e("s_barrier"); k.mark(("bar", tj))
                fixed.setdefault(gap_of[(t, s)], []).append((1, bar))
            fixed[last].append((1, lambda j=j: xread(j)))
    fx = Flex(); fz = Flex(); fz2 = Flex(); fy = Flex(); fm = Flex()
    k.e(f"s_and_b32 s32, s{sW}, 1", "s_lshl_b32 s32, s32, 7", f"v_add_u32 v7, s32, v{R.SA}")
    o_bases(k, 1)
    stats_path(k, fy, A_ST, "st0", 7, 48)
    g1 = P.a1_late_gap
    fm.add(lambda: (k.wait(vm=[("xst", 1)]), k.flag(2)), 3, P.a1_flag_gap)
    fm.add(lambda: k.poll_issue(A_PX, "px2"), 1, g1 - P.a1_poll_lead)
    fm.add(lambda: k.poll_check(A_PX, "px2", 2), 2, g1)
    fm.add(lambda: k.vm(f"buffer_load_dwordx4 {vr(56,4)}, v{A_U}, {SRD_WS}, s90 offen sc1", "st1"))
    for t in order[2:4]:
        for f in a11_x(k, t): fm.add(f, 2); fm.skip(P.a1_xgap)
    def halo_poll():
        k.poll_addr(A_PX, 16, 7)
        k.e(f"s_mov_b32 s{sPO}, s52", f"s_min_u32 s50, s{sB}, 1")
        k.poll_issue(A_PX, "phx"); k.bg_held = False
    fm.add(halo_poll, 3)
    if P.touch1:
        fm.add(lambda: k.touch(60, "p", ["s_mov_b32 s32, s53"]), 6)
        fm.add(lambda: k.touch(62, "p", [f"s_add_u32 s32, s55, {BX1[1]}"]), 6)
        fm.add(lambda: k.touch(64, "s", [f"s_add_u32 s32, s56, {BS1[1]}"]), 4)
        if P.touch1 > 1: fm.add(lambda: k.touch(66, "h", h_base("s32", 1)), 6)
    stats_path(k, fy, 56, "st1", 7, 16, g1 + 26)
    fm.dep(("bar", order[2]))
    fm.add(lambda: k.poll_check(A_PX, "phx", "s50"), 2)
    fm.add(lambda: k.vm(f"buffer_load_dwordx4 {vr(A_ST,4)}, v{A_U+1}, {SRD_WS}, s51 offen sc1", "sth"))
    for f in a11_x(k, "h"): fm.add(f, 2); fm.skip(P.a1_xgap)
    stats_path(k, fy, A_ST, "sth", R.SA, 0, gap_of[(order[3], P.a1_sth)])
    k.per = dict(P.per_a1); k.bg_held = True
    mix = []
    for b in range(5): mix += [(f, "s2", ("gw", b), None) for f in batch(k, b)]
    ww = [(f, "s4", "wow", None) for f in k.wow_rest]
    while mix or ww:
        if ww: k.bg.append(ww.pop(0))
        if mix: k.bg.append(mix.pop(0))
    b5 = batch(k, 5)
    bg_list(k, b5[:3], "s2", ("gw", 5))
    bg_batches(k, [6], "s2", lambda b: ("bar", order[3]))
    bg_batches(k, [7], "s2", lambda b: ("bar", "h"))
    bg_list(k, b5[3:], "s2", ("gw", 5), "wobar")
    A = lambda t: (accof(t) if t != "h" else None, accof(t) + 4, accof(t) + 8)
    for n in range(4): fix(k, R, fx, order[n], A(order[n]), gap_of[(order[n + 1], 1 if n < 3 else 2)], False)
    attn(k, R, fz, 3, R.ATT[0]); attn(k, R, fz2, 2, R.ATT[1]); ostore(k, fz2, 1)
    attn(k, R, fz, 1, R.ATT[0])
    fx.dep("gemm_done"); fx.dep(("saw", "sth")); fx.add(lambda: k.wait(lg=[("saw", "sth")]))
    fix(k, R, fx, "h", A("h"), 0, False); attn(k, R, fz2, 0, R.ATT[1]); ostore(k, fz2, 0)
    f3 = Flex(); f3.dep(("ost", 1)); f3.skip(P.l1_flag_delay)
    f3.add(lambda: (k.wait(vm=[("ost", 1)]), k.flag(1, 89), k.mark("oflag1")), 3)
    f3.dep(("attn", 0)); f3.add(lambda: wo_prepoll(k, 1))
    k.wait(vm=[("x", order[0])]); k.e("s_barrier")
    for i in range(4): xread(i)
    k.wait(lg=[("xf", 0)])
    k.stamp("a1 first")
    if k.stamping:
        for t in order[1:]: fixed.setdefault(gap_of[(t, 0)], []).append((0, lambda t=t: k.stamp(f"a1 t{t}")))
    run_gaps(k, mains, fixed, [fm, f3, fy, fx, fz2, fz], 2, over=lambda i: i >= P.a1_over)
    print("a11 left:", len(fm), len(fy), len(fx), len(fz), len(fz2), len(k.bg), {n: g for n, g in k.marks.items() if isinstance(n, tuple) and n[0] in ("fix", "attn", "saw", "ost")})
    k.mark("gemm_done")
    k.stamp("a1 gemm")
    drain([fm, fy, fx, fz, fz2, f3], k)
    for n in range(2): assert k.marks[("fix", order[n])] < gap_of[(order[n + 3], 0)], "accumulator reused too early"
    k.stamp("a1 end")
P.a1_flag_gap, P.a1_late_gap, P.a1_poll_lead, P.l1_flag_delay, P.a1_over = 8, 36, 18, 22, 96
P.touch1 = 1; P.a1_xgap = 3; P.a1_sth = 4
P.per_a1 = {"s2": 95, "s4": 60}

R_W0, R_W1, R_RD, R_ST, R_OUT = 3, 4, 5, 6, 7
def red_setup(k, posA, dAB):
    x, y, z, u = 28, 29, 30, 31
    k.e(f"s_add_u32 s32, s{sGL}, {posA*16384}", f"v_add_u32 v{R_W0}, s32, v{vL16}", f"v_xor_b32 v{R_W1}, 128, v{R_W0}")
    k.e(f"v_and_b32 v{x}, 7, v1", f"v_lshrrev_b32 v{y}, 3, v1", f"s_lshl_b32 s32, s{sW}, 7", f"v_lshl_add_u32 v{z}, v{x}, 4, s32",
        f"v_bfe_u32 v{u}, v1, 4, 1", f"v_lshlrev_b32 v{R_RD}, 7, v{u}", f"v_xor_b32 v{z}, v{z}, v{R_RD}",
        f"v_bfe_u32 v{R_RD}, v1, 3, 2", f"v_lshl_add_u32 v{z}, v{R_RD}, 10, v{z}", f"v_lshrrev_b32 v{R_RD}, 5, v1",
        f"v_mul_u32_u24 v{R_RD}, {dAB*16384}, v{R_RD}", f"v_add_u32 v{z}, v{z}, v{R_RD}", f"v_add_u32 v{R_RD}, {posA*16384}, v{z}")
    k.e(f"v_lshlrev_b32 v{z}, 4, v{x}", f"v_lshl_add_u32 v{z}, v{u}, 2, v{z}", f"v_and_b32 v{u}, 0x28, v1",
        f"v_cmp_eq_u32 vcc, 0, v{u}", f"v_mov_b32 v{u}, {OOB:#x}", f"v_cndmask_b32 v{R_ST}, v{u}, v{z}, vcc")
    k.e(f"v_lshlrev_b32 v{z}, 10, v{x}", f"v_lshl_add_u32 v{R_OUT}, v{y}, 4, v{z}")

def red_bases(k):
    k.e(f"s_lshl_b32 s32, s{sB}, 3", f"s_add_u32 s32, s32, s{sW}", "s_lshl_b32 s55, s32, 13", f"s_lshl_b32 s33, s{sCS}, 10", "s_add_u32 s55, s55, s33")
    k.e("s_lshl_b32 s57, s32, 13", f"s_lshl_b32 s33, s{sCS}, 7", "s_add_u32 s57, s57, s33")
    k.e(f"s_lshl_b32 s56, s{sB}, 12", f"s_lshr_b32 s33, s{sCS}, 1", "s_lshl_b32 s33, s33, 9", "s_add_u32 s56, s56, s33",
        f"s_and_b32 s33, s{sCS}, 1", "s_lshl_b32 s33, s33, 3", "s_add_u32 s56, s56, s33", f"s_lshl_b32 s33, s{sW}, 7", "s_add_u32 s56, s56, s33")

def red_writes(k, acc, g, off, dAB):
    return [lambda q=q: k.ds(f"ds_write_b128 v{R_W1 if (q>>1)&1 else R_W0}, {vr(acc+4*q,4)} offset:{off + (q>>2)*dAB*16384 + (q&3)*1024}", ("rw", g)) for q in range(8)]
def red_reads(k, g, T, off):
    return [lambda w=w, hf=hf: k.ds(f"ds_read_b128 {vr(T+8*w+4*hf,4)}, v{R_RD} offset:{off + w*4096 + hf*512}", ("rr", g, w)) for w in range(4) for hf in range(2)]

def red_finish(k, fx, g, mm, T, xdst, stdst, final, pk):
    a = lambda txt, c=1: fx.add(lambda: k.e(txt), c)
    R = RES + 4 * mm
    def add8(d, s):
        if pk:
            for i in range(0, 8, 2): a(f"v_pk_add_f32 {vr(d+i,2)}, {vr(d+i,2)}, {vr(s+i,2)}")
        else:
            for i in range(8): a(f"v_add_f32 v{d+i}, v{d+i}, v{s+i}")
    fx.add(lambda: k.wait(lg=[("rr", g, 1)]))
    add8(T, T + 8)
    for i in range(4): a(f"v_lshlrev_b32 v{T+8+2*i}, 16, v{R+i}"); a(f"v_and_b32 v{T+9+2*i}, 0xffff0000, v{R+i}")
    add8(T, T + 8)
    fx.add(lambda: k.wait(lg=[("rr", g, 3)]))
    add8(T + 16, T + 24); add8(T, T + 16)
    for i in range(4): a(f"v_cvt_pk_bf16_f32 v{R+i}, v{T+2*i}, v{T+2*i+1}")
    if final:
        fx.add(lambda: (k.e(f"s_add_u32 s32, s57, {mm*32768}"), k.vm(f"buffer_store_dwordx4 {vr(R,4)}, v{R_OUT}, {SRD_OUT}, s32 offen", ("xst", g))))
        return
    fx.add(lambda: (k.e(f"s_add_u32 s32, s55, {xdst + mm*32768}"), k.dstore(f"buffer_store_dwordx4 {vr(R,4)}, v{vL16}, {SRD_WS}, s32 offen", ("xst", g))), 2)
    s, q = T + 32, T + 33
    a(f"v_add_f32 v{s}, v{T}, v{T+1}"); a(f"v_mul_f32 v{q}, v{T}, v{T}"); a(f"v_fmac_f32 v{q}, v{T+1}, v{T+1}")
    for i in range(2, 8): a(f"v_add_f32 v{s}, v{s}, v{T+i}"); a(f"v_fmac_f32 v{q}, v{T+i}, v{T+i}")
    fx.skip(1)
    a(f"v_add_f32_dpp v{s}, v{s}, v{s} row_ror:8 row_mask:0xf bank_mask:0xf"); a(f"v_add_f32_dpp v{q}, v{q}, v{q} row_ror:8 row_mask:0xf bank_mask:0xf")
    fx.skip(1)
    a(f"v_permlane16_swap_b32 v{s}, v{q}", 2); a(f"v_add_f32 v{s}, v{s}, v{q}"); a(f"v_mov_b32 v{q}, v{s}"); fx.skip(1)
    a(f"v_permlane32_swap_b32 v{s}, v{q}", 2); a(f"v_add_f32 v{s}, v{s}, v{q}")
    fx.add(lambda: (k.e(f"s_add_u32 s32, s56, {stdst + mm*2048}"), k.dstore(f"buffer_store_dword v{s}, v{R_ST}, {SRD_WS}, s32 offen", ("xst", g)), k.mark(("xst", g))), 2)

def merge(k, fx, extra, first=0):
    extra = list(extra)
    items = [it for it in fx.items if it[0] != "skip"]; fx.items = []
    per = max(1, (len(items) - first) // max(1, len(extra)))
    for n, it in enumerate(items):
        if n >= first and (n - first) % per == 0 and extra: extra.pop(0)()
        it[1](); k.bg_step()
    for f in extra: f(); k.bg_step()

def wo(k, layer):
    BF, ACC, T, PA = 32, 96, 160, A_PA
    groups = [1, 0]
    def bload(g, kk):
        if kk % 4 == 0: k.e(f"s_add_u32 s58, s59, {groups[g]*32768 + kk*1024}")
        k.vm(f"buffer_load_dwordx4 {vr(BF+32*g+4*kk,4)}, v{vL16}, {SRD_WS}, s58 offen offset:{(kk%4)*1024} sc1", ("b", g, kk))
    k.poll_check(PA, "po1", 1)
    k.stamp("wo early")
    for kk in range(8): bload(0, kk)
    red_setup(k, 8, 1)
    k.e(f"s_add_u32 s{sFO}, s89, {FL_X1 - FL_O}")
    k.wait(vm=[("ost", 0)]); k.flag(2, 89)
    def gemm(g):
        mains = []; fixed = {}
        for kk in range(8):
            for nn in range(2):
                acc = ACC + 32 * g + 16 * nn
                mains.append(lambda kk=kk, nn=nn, acc=acc: k.e(f"{MF32} {vr(acc,16)}, {ar(192+8*kk+4*nn,4)}, {vr(BF+32*g+4*kk,4)}, {'0' if kk == 0 else vr(acc,16)}"))
            if kk < 7: fixed.setdefault(len(mains) - 1, []).append((0, lambda kk=kk: k.wait(vm=[("b", g, kk + 1)])))
        return mains, fixed
    fm = Flex()
    fm.add(lambda: k.poll_issue(PA, "po2"), 1, P.wo_poll_gap)
    fm.add(lambda: (k.poll_check(PA, "po2", 2), k.stamp("wo late")), 2, P.wo_late_gap)
    for kk in range(8): fm.add(lambda kk=kk: bload(1, kk), 2)
    k.wait(vm=["wow", "res", ("b", 0, 0)])
    k.stamp("wo first")
    mains, fixed = gemm(0)
    run_gaps(k, mains, fixed, [fm], 6)
    drain([fm], k)
    k.stamp("wo g0")
    k.per = dict(P.per_wo[layer]); k.bg_held = False
    bg_list(k, dna(k), "s4", "dna", "wogemm")
    bg_batches(k, [8, 9], "s2", lambda b: "wodone")
    f0 = Flex()
    mains, fixed = gemm(1)
    if P.wo_var == "A":
        for f in red_writes(k, ACC, 0, 0, 1): f(); k.bg_step()
        k.wait(lg=[("rw", 0)]); k.e("s_barrier"); k.mark("wobar")
        for f in red_reads(k, 0, T, 0): f()
        red_finish(k, f0, 0, groups[0], T, BX1[layer], BS1[layer], False, False)
        fixed.setdefault(6, []).append((2, lambda: (k.wait(lg=[("rr", 0, 3)]), k.e("s_barrier"))))
        k.wait(vm=[("b", 1, 0)])
        run_gaps(k, mains, fixed, [f0], 6)
        k.mark("wogemm")
    else:
        wr = red_writes(k, ACC, 0, 0, 1)
        k.e("s_nop 7")
        for f in wr[:P.wo_prew]: f()
        for q, f in enumerate(wr[P.wo_prew:]): f0.add(f, 1, 2*q)
        k.wait(vm=[("b", 1, 0)])
        run_gaps(k, mains, fixed, [f0], 6)
        drain([f0], k)
        k.mark("wogemm")
        k.wait(lg=[("rw", 0)]); k.e("s_barrier"); k.mark("wobar")
        for f in red_reads(k, 0, T, 0): f()
        k.bg_step()
        k.wait(lg=[("rr", 0, 3)]); k.e("s_barrier")
        red_finish(k, f0, 0, groups[0], T, BX1[layer], BS1[layer], False, True)
    k.stamp("wo g1")
    merge(k, f0, red_writes(k, ACC + 32, 1, 0, 1))
    k.wait(lg=[("rw", 1)]); k.e("s_barrier")
    k.stamp("wo red")
    k.bg_held = P.wo_hold
    for f in red_reads(k, 1, T, 0): f()
    f1 = Flex(); red_finish(k, f1, 1, groups[1], T, BX1[layer], BS1[layer], False, True); drain([f1], k)
    k.e("s_barrier"); k.mark("wodone")
    key = lambda it: it[2][1] if isinstance(it[2], tuple) else 11.5
    k.bg.sort(key=key)
    print(f"wo{layer} done, background left:", [it[2] for it in k.bg][::4])
    k.bg_burst(P.wo_win[layer]); k.bg_held = True
    k.stamp("wo end")
P.wo_poll_gap = 1; P.wo_late_gap = 7; P.wo_hold = True; P.wo_win = [4, 4]; P.wo_var = 'B'; P.wo_prew = 2
P.per_wo = [{"s2": 70, "s4": 50}] * 2

G_RB, G_C1, G_VV, G_AUG, G_X, G_ACC, G_WF, G_T = 3, 6, 7, 28, 32, 160, 224, 240
D_WV, D_BF, D_ACC, D_T, D_WF, D_RB, D_PA = 32, 64, 128, 192, 228, 112, 115
def gu(k, layer):
    T = G_T; XA = T + 3; PA = T + 2
    k.e(f"s_lshl_b32 s32, s{sC}, 2", f"s_add_u32 s50, s32, s{sW}")
    k.poll_addr(PA, 32)
    k.e(f"v_and_b32 v{T}, 31, v1", "s_lshr_b32 s32, s50, 1", "s_lshl_b32 s32, s32, 7", f"s_add_u32 s{sPO}, s32, {fl(layer, FL_X1)}")
    k.e(f"v_mov_b32 v{G_RB}, v{vL16}", f"v_add_u32 v{G_RB+1}, 0x10000, v{vL16}", f"v_add_u32 v{G_RB+2}, 0x20000, v{vL16}")
    k.e(f"v_lshrrev_b32 v{T+1}, 5, v1", f"v_lshlrev_b32 v{G_AUG+3}, 4, v{T}", f"v_lshl_add_u32 v{G_AUG+3}, v{T+1}, 10, v{G_AUG+3}")
    k.e(f"v_lshrrev_b32 v{XA}, 3, v{T}", f"v_lshlrev_b32 v{XA}, 13, v{XA}", f"v_lshl_add_u32 v{XA}, v{T+1}, 7, v{XA}",
        f"v_and_b32 v{T}, 7, v1", f"v_lshl_add_u32 v{XA}, v{T}, 4, v{XA}")
    k.e("s_lshl_b32 s32, s50, 11", f"s_add_u32 s51, s32, {BS1[layer]}")
    k.e("s_lshl_b32 s32, s50, 15", f"s_add_u32 s52, s32, {BX1[layer]}", "s_add_u32 s53, s52, 4096")
    k.e(*h_base("s54", layer))
    k.wait(vm=[("xst", 1)]); k.flag(1)
    k.stamp("x1 flag")
    k.poll_issue(PA, "px1")
    k.e(f"s_lshl_b32 s32, s{sC}, 1", f"s_lshr_b32 s33, s{sW}, 1", "s_add_u32 s32, s32, s33", "s_lshl_b32 s32, s32, 4", f"s_add_u32 s32, s32, s{sM}",
        "s_lshl_b32 s32, s32, 1", f"s_and_b32 s33, s{sW}, 1", "s_add_u32 s32, s32, s33", "s_lshl_b32 s32, s32, 2", f"s_add_u32 s{sFO}, s32, {fl(layer, FL_H)}")
    seq = [(t, ks) for ks in range(33) for t in range(3)] + [(t, ks) for t in range(3, 7) for ks in range(33)]
    accof = {0: 0, 1: 1, 2: 2, 3: 3, 4: 0, 5: 1, 6: 2}
    NW = P.gu_nw
    WQ = [G_WF, G_WF + 4, G_WF + 8, G_WF + 12, T + 12]
    def wread(n):
        slot = (n % 160) * 1024
        k.ds(f"ds_read_b128 {vr(WQ[n%NW],4)}, v{G_RB + (slot>>16)} offset:{slot & 0xffff}", ("wf", n))
    k.wait(vm=[("gw", 0)]); k.e("s_barrier")
    for n in range(NW): wread(n)
    k.poll_check(PA, "px1", 1)
    k.stamp("gu go")
    def xload(kg): k.vm(f"buffer_load_dwordx4 {vr(G_X+4*kg,4)}, v{XA}, {SRD_WS}, s{52 + (kg>>4)} offen offset:{((kg>>2)&3)*1024 + (kg&3)*256} sc1", ("gx", kg))
    for kg in range(P.gu_lead): xload(kg)
    k.vm(f"buffer_load_dwordx4 {vr(T+4,4)}, v{G_AUG+3}, {SRD_WS}, s51 offen sc1", "gst")
    k.vm(f"buffer_load_dwordx4 {vr(T+8,4)}, v{G_AUG+3}, {SRD_WS}, s51 offen offset:512 sc1", "gst")
    mains = []; fixed = {}
    xpos = {}
    for kg in range(P.gu_lead, 32): xpos.setdefault(int((kg - P.gu_lead) * P.gu_xstep), []).append(kg)
    for n, (t, ks) in enumerate(seq):
        acc = G_ACC + 16 * accof[t]
        b = vr(G_AUG, 4) if ks == 32 else vr(G_X + 4*ks, 4)
        c = "0" if ks == 0 else vr(acc, 16)
        mains.append(lambda n=n, acc=acc, b=b, c=c: k.e(f"{MF32} {vr(acc,16)}, {vr(WQ[n%NW],4)}, {b}, {c}"))
        fl_ = fixed.setdefault(n, [])
        if n + 1 < len(seq):
            t2, ks2 = seq[n + 1]
            need = [("gx", ks2)] if (t2 == 0 and ks2 < 32) else None
            fl_.append((0, lambda n=n, need=need: k.wait(vm=need, lg=[("wf", n + 1)])))
        j = n + NW
        if j < len(seq):
            if j % 16 == 0:
                fl_.append((2, lambda bi=j//16: (k.wait(vm=[("gw", bi)]), k.e("s_barrier" if not P.x_nobar else "s_nop 0"), k.mark(("gbar", bi)))))
            fl_.append((1, lambda j=j: wread(j)))
        for kg in xpos.get(n, []): fl_.append((1, lambda kg=kg: xload(kg)))
    xend = max(xpos)
    tail = [it for it in k.bg if it[2] == "dna"]; k.bg = [it for it in k.bg if it[2] != "dna"]
    bg_batches(k, [10, 11], "s2", lambda b: ("gbar", b - 8))
    mid = []
    for b in (12, 13, 14):
        for f in batch(k, b): mid.append((f, "s2", ("gw", b), ("gbar", b - 8)))
    while mid or tail:
        if mid: k.bg.append(mid.pop(0))
        if tail: k.bg.append(tail.pop(0))
    bg_batches(k, range(15, 23), "s4", lambda b: ("gbar", b - 8))
    k.per = dict(P.per_guA[layer]); k.bg_held = False; k.bg_next = k.t + P.gu_bg_delay
    fixed[xend].append((0, lambda: setattr(k, "per", dict(P.per_guB[layer]))))
    fv = Flex()
    for j, f in enumerate(regloads(k, sDS, 48*1024, lambda j: vr(D_WV + 4*j, 4), 8, "dnv", tmp=50)): fv.add(f, 1, 198 + 2 + 3*j)
    fx = Flex()
    a = lambda txt, c=1, at=0: fx.add(lambda: k.e(txt), c, at)
    fx.add(lambda: k.wait(vm=["gst"]), 1, 3 * P.gu_lead)
    a(f"v_add_f32 v{T+4}, v{T+4}, v{T+6}"); a(f"v_add_f32 v{T+5}, v{T+5}, v{T+7}"); a(f"v_add_f32 v{T+8}, v{T+8}, v{T+10}"); a(f"v_add_f32 v{T+9}, v{T+9}, v{T+11}")
    a(f"v_add_f32 v{T+4}, v{T+4}, v{T+8}"); a(f"v_add_f32 v{T+5}, v{T+5}, v{T+9}"); fx.skip(1)
    a(f"v_permlane32_swap_b32 v{T+4}, v{T+5}", 2); a(f"v_add_f32 v{T+4}, v{T+4}, v{T+5}"); a(f"v_mov_b32 v{T+5}, v{T+4}"); fx.skip(1)
    a(f"v_permlane32_swap_b32 v{T+4}, v{T+5}", 2)
    ln_finish(a, T + 4, T + 5)
    a(f"v_mov_b32 v{G_VV}, v{T+5}")
    a(f"v_rsq_f32 v{G_C1}, v{T+5}", 2); a(f"v_cvt_pk_bf16_f32 v{G_AUG}, v{T+4}, v{T+4}"); a(f"v_mul_f32 v{G_C1}, {f2u(-LOG2E):#x}, v{G_C1}")
    a(f"v_and_b32 v{T+5}, 0xffff0000, v{G_AUG}"); a(f"v_sub_f32 v{T+5}, v{T+4}, v{T+5}"); a(f"v_mov_b32 v{G_AUG+2}, 0")
    a(f"v_cvt_pk_bf16_f32 v{G_AUG+1}, v{T+5}, v{G_AUG+2}"); a(f"v_mov_b32 v{G_AUG+3}, 0")
    fx.add(lambda: k.mark("aug"), 0)
    def epi(t, at):
        acc = G_ACC + 16 * accof[t]; hp = T + 8; E = T + 4
        if P.x_noepi: a("s_nop 0", 1, at)
        for i0 in range(0, 8 if not P.x_noepi else 0, 2):
            for i in (i0, i0 + 1): a(f"v_mul_f32 v{E+(i&1)}, v{G_C1}, v{acc+i}", 1, at)
            for i in (i0, i0 + 1): a(f"v_exp_f32 v{E+(i&1)}, v{E+(i&1)}", 2)
            for i in (i0, i0 + 1): a(f"v_mul_f32 v{E+2+(i&1)}, v{acc+i}, v{acc+8+i}")
            for i in (i0, i0 + 1): a(f"v_fma_f32 v{E+(i&1)}, v{E+(i&1)}, v{G_VV}, v{G_VV}")
            for i in (i0, i0 + 1): a(f"v_rcp_f32 v{E+(i&1)}, v{E+(i&1)}", 2)
            fx.skip(1)
            for i in (i0, i0 + 1): a(f"v_mul_f32 v{E+2+(i&1)}, v{E+2+(i&1)}, v{E+(i&1)}")
            a(f"v_cvt_pk_bf16_f32 v{hp+i0//2}, v{E+2}, v{E+3}")
        fx.add(lambda: k.mark(("epi", t)), 0)
        if t == 4: a("s_add_u32 s54, s54, 4096")
        fx.add(lambda: (k.dstore(f"buffer_store_dwordx4 {vr(hp,4)}, v{vL16}, {SRD_WS}, s54 offen offset:{(t%4)*1024}", ("hst", t)), k.mark(("hst", t))), 2)
    end = {t: max(n for n, x in enumerate(seq) if x[0] == t) for t in range(7)}
    for t in range(6): epi(t, end[t] + 3)
    ff = Flex(); ff.dep(("hst", 3))
    if layer == 0:
        ff.add(lambda: k.touch(T, "p", [f"s_add_u32 s32, s55, {WS_X[1]}"]), 6)
        ff.add(lambda: k.touch(T + 2, "s", [f"s_add_u32 s32, s56, {WS_ST[1]}"]), 4)
    ff.skip(P.gu_flag_delay)
    ff.add(lambda: (k.wait(vm=[("hst", 3)]), k.flag(1)), 3)
    def hpoll():
        k.wait(vm=["touch"] if "touch" in k.seen else None)
        k.poll_addr(T, 8)
        k.e(f"s_lshl_b32 s32, s{sB}, 7", f"s_lshl_b32 s33, s{sW}, 5", "s_add_u32 s32, s32, s33", f"s_add_u32 s{sPO}, s32, {fl(layer, FL_H)}")
        k.poll_issue(T, "ph1")
    ff.add(hpoll, 4, 228)
    k.wait(vm=[("gx", 0)], lg=[("wf", 0)])
    k.stamp("gu first")
    if k.stamping:
        for g in (48, 98, 131, 164, 197): fixed[g].append((0, lambda g=g: k.stamp(f"gu m{g}")))
    fixed[93].append((0, lambda: k.marks["aug"]))
    run_gaps(k, mains, fixed, [fv, ff, fx], P.gu_cap)
    print("gu left:", len(k.bg), len(fv), len(ff), len(fx), {n: g for n, g in k.marks.items() if isinstance(n, tuple) and n[0] == "hst"})
    k.stamp("gu gemm")
    for g, t in {132: 0, 165: 1, 198: 2}.items(): assert k.marks[("epi", t)] < g, "accumulator reused too early"
    epi(6, 0); drain([ff, fv, fx], k)
    k.e(f"v_mov_b32 v{D_PA}, v{T}")
    k.stamp("gu end")
P.gu_flag_delay = 16; P.gu_xstep = 2.6; P.gu_bg_delay = 300
P.per_guA = [{"s2": 130, "s4": 130}, {"s2": 200, "s4": 200}]
P.per_guB = [{"s2": 80, "s4": 55}] * 2

def dn(k, layer):
    final = layer == 1
    NB = P.dn_lead; T = D_T
    groups = [1, 0]
    k.e(f"s_mul_i32 s32, s{sB}, {224*KB}", f"s_mul_i32 s33, s{sW}, {28*KB}", "s_add_u32 s32, s32, s33", f"s_add_u32 s59, s32, {BH[layer]}")
    seq = [(g, e) for g in range(2) for e in range(28)]
    state = {"base": None}
    def bload(i):
        g, e = seq[i]; off = groups[g] * 112 * KB + KK_OF[e] * 1024
        if state["base"] is None or not (0 <= off - state["base"] < 4096):
            state["base"] = off; k.e(f"s_add_u32 s58, s59, {off}")
        k.vm(f"buffer_load_dwordx4 {vr(D_BF+4*(i%NB),4)}, v{vL16}, {SRD_WS}, s58 offen offset:{off - state['base']} sc1", ("b", i))
    k.poll_check(D_PA, "ph1", 1)
    k.stamp("dn early")
    k.bg_held = True
    for i in range(P.dn_pre): bload(i)
    red_setup(k, 1, 1)
    k.e(f"v_add_u32 v{D_RB}, s{sGL}, v{vL16}", f"v_add_u32 v{D_RB+1}, 0x10000, v{D_RB}", f"v_add_u32 v{D_RB+2}, 0x20000, v{D_RB}")
    k.wait(vm=[("hst", 6)]); k.flag(2)
    k.poll_issue(D_PA, "ph2")
    for i in range(P.dn_pre, NB): bload(i)
    k.e(f"s_add_u32 s{sFO}, s89, {FL_X2 - FL_O}")
    k.per = dict(P.per_dn0); k.bg_held = False
    lds = [(i, nn) for i, (g, e) in enumerate(seq) if 8 <= e < 24 for nn in range(2)]
    slot_of = {x: n for n, x in enumerate(lds)}
    NWF = 6
    def wread(n):
        i, nn = lds[n]; j = 2 * (seq[i][1] - 8) + nn; b = 15 + (j >> 2)
        ad = (b % 10) * 16384 + (j & 3) * 1024
        if seq[i][0] == 0: k.wait(vm=[("gw", b)])
        k.ds(f"ds_read_b128 {vr(D_WF+4*(n%NWF),4)}, v{D_RB + (ad>>16)} offset:{ad & 0xffff}", ("wf", n))
    def wfrag(i, nn):
        e = seq[i][1]
        if e < 8: return ar(192 + 8*e + 4*nn, 4)
        if e >= 24: return vr(D_WV + 8*(e - 24) + 4*nn, 4)
        return vr(D_WF + 4*(slot_of[(i, nn)] % NWF), 4)
    mains = []; fixed = {}
    late = 16 - NB
    for i, (g, e) in enumerate(seq):
        for nn in range(2):
            acc = D_ACC + 32 * g + 16 * nn
            mains.append(lambda i=i, nn=nn, acc=acc, e=e: k.e(f"{MF32} {vr(acc,16)}, {wfrag(i,nn)}, {vr(D_BF+4*(i%NB),4)}, {'0' if e == 0 else vr(acc,16)}"))
            gp = len(mains) - 1; fl_ = fixed.setdefault(gp, [])
            nx = (i, 1) if nn == 0 else (i + 1, 0)
            vmn = [("b", i + 1)] if (nn == 1 and i + 1 < len(seq)) else None
            lgn = [("wf", slot_of[nx])] if nx in slot_of else None
            if nn == 1 and i + 1 == 24: vmn = vmn + ["dnv"]
            fl_.append((0, lambda vmn=vmn, lgn=lgn: k.wait(vm=vmn, lg=lgn)))
            ah = (i + 2, nn)
            if ah in slot_of: fl_.append((1, lambda n=slot_of[ah]: wread(n)))
    nxt = NB; pend = 0
    for i in range(len(seq)):
        fl_ = fixed[2*i + 1]
        if i == P.dn_late: fl_.append((2, lambda: (k.poll_check(D_PA, "ph2", 2), k.stamp("dn late"), k.mark("late"))))
        n = 0
        while nxt < len(seq) and nxt <= i + NB and n < 2 and (nxt < 16 or i >= P.dn_late):
            fl_.append((1, lambda j=nxt: bload(j))); nxt += 1; n += 1
        if nxt == len(seq) and not pend: pend = 2*i + 2
    fixed[20].append((1, lambda: k.e("s_barrier")))
    fw = Flex(); fs = Flex()
    for q, f in enumerate(red_writes(k, D_ACC, 0, 2*16384, 1)): fw.add(f, 1, 58 + 2*q)
    fw.add(lambda: (k.wait(lg=[("rw", 0)]), k.e("s_barrier")), 2, 76)
    for f in red_reads(k, 0, T, 2*16384): fw.add(f, 2)
    fw.skip(1)
    red_finish(k, fw, 0, groups[0], T, WS_X[1], WS_ST[1], final, False)
    if not final:
        fw.add(lambda: k.vm(f"buffer_store_dwordx4 {vr(RES+4,4)}, v{vL16}, {SRD_WS}, s72 offen sc1", "hxs"))
        fw.add(lambda: k.vm(f"buffer_store_dword v{T+32}, v{R_ST}, {SRD_WS}, s73 offen sc1", "hxs"))
        fw.skip(P.dn_flag_delay); fw.add(lambda: (k.wait(vm=[("xst", 0)]), k.flag(1)), 3)
        fs.dep("late")
        for f in a11_bases(k) + a1_setup(k, 1): fs.add(f)
        fs.add(lambda: (k.poll_addr(A_PX, 32), k.e(f"s_lshl_b32 s32, s{sB}, 7", f"s_add_u32 s{sPO}, s32, {fl(0, FL_X2)}")), 4)
        ww = wow(k); bg_list(k, ww[:P.dn_wow], "s4", "wow", "wowok"); k.wow_rest = ww[P.dn_wow:]
        fixed[max(pend, 2*36)].append((0, lambda: (k.mark("wowok"), setattr(k, "per", dict(P.per_dn)))))
    k.wait(vm=["dna", ("b", 0)])
    k.stamp("dn first")
    if k.stamping: fixed[55].append((0, lambda: k.stamp("dn p1")))
    run_gaps(k, mains, fixed, [fw, fs], 6)
    print("dn left:", len(k.bg), len(fw), len(fs), "last h load at gap", pend)
    k.stamp("dn gemm")
    assert not fs.items
    ws = red_writes(k, D_ACC + 32, 1, 0, 1)
    if not final: ws.insert(4, lambda: k.poll_issue(A_PX, "px0"))
    merge(k, fw, ws)
    k.wait(lg=[("rw", 1)]); k.e("s_barrier")
    k.stamp("dn red")
    for f in red_reads(k, 1, T, 0): f()
    if not final:
        k.bg_held = True
        k.poll_check(A_PX, "px0", 1)
        k.wait(vm=["hxs"]); k.flag(1, 91, "sc1")
        a11_early(k)
    f1 = Flex(); red_finish(k, f1, 1, groups[1], T, WS_X[1], WS_ST[1], final, True); drain([f1], k)
    k.stamp("dn end")
P.dn_flag_delay = 4; P.dn_pre = 8; P.dn_late = 7
P.dn_wow = 6; P.per_dn = {"s4": 110, "s2": 130}; P.per_dn0 = {"s4": 60, "s2": 60}

def build(stamps=False, only=None):
    k = F(); k.stamping = stamps; k.only = only; k.st = P.dst; k.rt = P.rt
    name = NAME + "_kernel"
    k.e(".p2align 8", f".globl {name}", f".type {name},@function"); k.label(name)
    if stamps: k.e("s_memrealtime s[92:93]", "s_memtime s[94:95]")
    k.e("s_cmp_ge_u32 s2, 256", "s_cbranch_scc1 L_end")
    k.e("s_load_dwordx16 s[64:79], s[0:1], 0", "s_load_dwordx4 s[80:83], s[0:1], 64")
    k.e("s_getpc_b64 s[100:101]")
    k.e("L_pc: ;np")
    k.e("s_mov_b32 s24, s100", "s_mov_b32 s25, s101", "s_mov_b32 s26, L_end-L_pc", "s_mov_b32 s27, 0x20000",
        "v_and_b32 v1, 63, v0", "v_lshrrev_b32 v2, 6, v0", "s_lshr_b32 s33, s2, 3", "s_mul_i32 s32, s33, 43", "s_lshr_b32 s32, s32, 8",
        "s_mul_i32 s32, s32, 6", "s_sub_u32 s32, s33, s32", "s_lshl_b32 s32, s32, 13", "v_lshlrev_b32 v3, 11, v2", "v_lshl_add_u32 v3, v1, 7, v3",
        f"v_mov_b32 v4, {OOB:#x}", "v_cmp_gt_u32 vcc, 16, v1", f"v_readfirstlane_b32 s{sW}, v2", "v_cndmask_b32 v3, v4, v3, vcc")
    if P.code0: k.vm(f"buffer_load_dword v175, v3, {SRD_PK}, s32 offen", "code")
    k.e("s_and_b32 s32, s2, 7", f"s_and_b32 s{sM}, s33, 15", "s_lshr_b32 s33, s33, 4", "s_lshl_b32 s32, s32, 1", f"s_add_u32 s{sC}, s32, s33")
    k.e(f"s_lshr_b32 s33, s{sM}, 3", f"s_lshl_b32 s{sB}, s{sC}, 1", f"s_add_u32 s{sB}, s{sB}, s33", f"s_and_b32 s{sCS}, s{sM}, 7")
    k.e("v_lshlrev_b32 v2, 4, v1")
    a10_lanes(k)
    k.e("s_waitcnt lgkmcnt(0)")
    srd(k, 12, 64, 2048 * 1024); srd(k, 16, 66, 512 * 3072)
    if stamps:
        k.stamps += ["rt0", "start"]; k.e("v_writelane_b32 v0, s92, 0", f"v_writelane_b32 v0, s{92 if P.rt else 94}, 1")
    k.stamp("s kernarg")
    run(a10_x(k, 0) + a10_w(k, 0))
    srd(k, 8, 82, WS_SIZE); srd(k, 20, 78, 2048 * 1024); srd(k, 28, 80, 256)
    for f in a1_setup(k, 0): f()
    o_bases(k, 0)
    run(a10_w(k, 1))
    if P.tlb:
        k.e("v_lshlrev_b32 v174, 21, v1", f"v_mov_b32 v173, {OOB:#x}", "v_cmp_gt_u32 vcc, 17, v1", "s_nop 0", "v_cndmask_b32 v174, v173, v174, vcc")
        k.vm(f"buffer_load_dword v174, v174, {SRD_WS}, 0 offen", "tlb")
        k.e("v_cmp_eq_u32 vcc, 0, v1", "s_nop 1", "v_cndmask_b32_e64 v173, v173, 0, vcc")
        k.vm(f"buffer_load_dword v173, v173, {SRD_OUT}, 0 offen", "tlb")
    k.stamp("s w01")
    pack_issue(k)
    k.stamp("s pkissue")
    a10_lanes2(k)
    k.e(f"v_mov_b32 v60, {OOB:#x}", "v_cmp_gt_u32 vcc, 8, v1", "v_mov_b32 v176, 0", "v_mov_b32 v177, 0", "v_mov_b32 v178, 0", "v_mov_b32 v179, 0",
        f"v_cndmask_b32 v61, v60, v{vL16}, vcc", "s_lshl_b32 s32, s2, 7", "v_cmp_gt_u32 vcc, 16, v1")
    k.vm(f"buffer_store_dwordx4 v[176:179], v61, {SRD_WS}, s32 offen sc1", "zero")
    k.e(f"v_cndmask_b32 v172, v60, v{vL16}, vcc", "s_lshl_b32 s32, s2, 8", f"s_add_u32 s32, s32, {WS_HXF}")
    k.vm(f"buffer_store_dwordx4 v[176:179], v172, {SRD_WS}, s32 offen sc1", "zero")
    run(a10_x(k, 1) + a10_w(k, 2))
    k.e("s_getreg_b32 s32, hwreg(HW_REG_XCC_ID, 0, 4)", "s_mul_i32 s33, s32, s32", "s_lshl_b32 s33, s33, 13", "s_lshl_b32 s32, s32, 5",
        "s_add_u32 s32, s32, s33", "s_add_u32 s91, s32, 1", "v_mov_b32 v170, s91", "v_cmp_eq_u32 vcc, 0, v1", "v_mov_b32 v62, 0",
        f"s_lshl_b32 s32, s{sC}, 4", f"v_cndmask_b32 v{vFA}, v60, v62, vcc", f"s_cmp_eq_u32 s{sW}, 0", f"s_cselect_b32 s32, s32, {OOB>>1:#x}",
        f"v_add_u32 v171, s32, v{vFA}", f"s_mov_b32 s{sBUD}, 100000")
    red_bases(k)
    k.e(f"s_lshl_b32 s{sGL}, s{sW}, 12", f"s_mul_i32 s{sGS}, s{sM}, {PGU_SLICE}", f"s_add_u32 s{sGS}, s{sGS}, s{sGL}", f"s_add_u32 s{sGS}, s{sGS}, {WS_PGU}")
    k.e(f"s_mul_i32 s32, s{sCS}, {224*KB}", f"s_mul_i32 s33, s{sW}, {56*KB}", "s_add_u32 s32, s32, s33", f"s_add_u32 s{sDS}, s32, {WS_PDN}")
    k.e(f"s_lshl_b32 s32, s{sCS}, 16", f"s_lshl_b32 s33, s{sW}, 14", "s_add_u32 s32, s32, s33", f"s_add_u32 s88, s32, {WS_PWO}")
    k.stamp("s setup")
    a10_loop(k, 3)
    a10_tail(k)
    wo(k, 0); gu(k, 0); dn(k, 0)
    if not P.half:
        k.marks = {m: g for m, g in k.marks.items() if m == "wowok"}
        k.seen = {t for t in k.seen if t in k.vmq or t in k.lgq or t in ("wow", "res", "st0", ("x", 2), ("x", 3))}
        a11_main(k)
        wo(k, 1)
        k.marks = {m: g for m, g in k.marks.items() if m in ("wobar", "wogemm", "wodone") or m[0] == "bar"}
        gu(k, 1); dn(k, 1)
    if P.verbose: print([(t, tag, f) for t, tag, f in k.bg_log if f])
    if stamps:
        k.e("s_waitcnt vmcnt(0)"); k.stamp("drained"); k.stamp("rt1", True)
        k.e("s_lshl_b32 s32, s2, 10", "s_lshl_b32 s33, s3, 8", "s_add_u32 s32, s32, s33",
            f"s_add_u32 s32, s32, {WS_STAMP}", "v_lshlrev_b32 v8, 2, v1", f"buffer_store_dword v0, v8, {SRD_WS}, s32 offen")
        if P.dbg:
            n = len(k.stamps)
            k.e("v_readlane_b32 s32, v0, 0", f"v_readlane_b32 s33, v0, {n-1}", "s_not_b32 s34, s32", "v_mov_b32 v4, s33", "v_mov_b32 v5, s34")
            k.e(f"buffer_atomic_umax v4, v{vFA}, {SRD_DBG}, 0 offen offset:4", f"buffer_atomic_umax v5, v{vFA}, {SRD_DBG}, 0 offen offset:8")
            k.e(f"s_cmp_eq_u32 s2, {P.dbg - 1}", f"s_cselect_b32 s35, 0, {OOB>>1:#x}", f"s_cmp_eq_u32 s{sW}, 0", f"s_cselect_b32 s35, s35, {OOB>>1:#x}")
            for i, wd in zip(range(2, n - 1), (3, 5, 6, 7, 9, 10, 11, 13, 14, 15)):
                k.e(f"v_readlane_b32 s33, v0, {i}", "s_sub_u32 s33, s33, s32", "v_mov_b32 v4, s33", f"buffer_store_dword v4, v{vFA}, {SRD_DBG}, s35 offen offset:{4*wd}")
    k.e("s_endpgm")
    k.flush_spins()
    k.label("L_end"); k.e("s_endpgm")
    src = open("cdna_kernels/%s.s.ref" % NAME).read().splitlines()
    out = [l for l in src if l.startswith(";") and "@launch" not in l]
    out.append(f"; @launch grid=(256,1,1) block=(256,1,1) lds={LDS_TOTAL}")
    out += ['.amdgcn_target "amdgcn-amd-amdhsa--gfx950"', ".text"]
    s = "\n".join(out) + "\n" + k.text(verbose=True) + '.section .rodata,"a"\n.p2align 6\n' + kd(name)
    if P.align:
        from align import align
        s = align(s)
    return s, k.stamps
P.x_nobar = 0; P.x_noepi = 0; P.rt = 1; P.dbg = 0; P.half = 0; P.tlb = 1; P.code0 = 1; P.verbose = 0; P.align = 1; P.gu_cap = 6; P.gu_nw = 5; P.k_touch = 12; P.k_gb = 13

if __name__ == "__main__":
    path = sys.argv[1] if len(sys.argv) > 1 else "cdna_kernels/%s.s" % NAME
    opts = sys.argv[2:]
    only = None
    for o in opts:
        if o.startswith("only="): only = [x for x in o[5:].split(",") if x]
        if o.startswith("P."):
            n, v = o[2:].split("="); setattr(P, n, eval(v))
    s, st = build(stamps="st" in opts, only=only)
    open(path, "w").write(s)
    if "st" in opts: json.dump([st], open(path + ".json", "w"))
```

```python
import sys, json
from common import *

MF16 = "v_mfma_f32_16x16x32_bf16"
MF16S = "v_mfma_f32_16x16x16_bf16"
MF32 = "v_mfma_f32_32x32x16_bf16"
vL16, vFV, vFA, vP = 2, 8, 9, 10
CSV, CSQ, CSK, RES = 11, 12, 16, 20
OOB = 0x80000000
FL_O, FL_X1, FL_H, FL_X2 = 0, 4096, 8192, 12288
FL_HX = 16384 + 12288
def fl(layer, off): return WS_FLAGS + 16384 * layer + off
sROT, sBUD, sGL, sGS, sDS = 84, 98, 60, 61, 85
sT0, sT1, sPO, sFO = 32, 33, 86, 87
sML, sMS = 68, 69
WS_HXF = WS_O0 - 0x10000 if False else WS_END
WS_ARR = WS_HXF + 0x10000
sTAG, sXCC = 91, 76
WS_STAMP = 0x2000000
L_SA0, L_SA1, L_XH0, L_CS = 80896, 97280, 81920, 79872
def e_of(kk):
    p, tl = divmod(kk, 7)
    return 4 * p + tl if tl < 4 else 16 + 3 * p + (tl - 4)
KK_OF = {e_of(kk): kk for kk in range(28)}

class P:
    a1_bg_start, a1_bg_step = 30, 6
    gu_lead = 7
    gu_bg_start, gu_bg_step = 50, 2.6
    dn_lead = 12
    bgm = ""
    sleep = 0
    drop = ()
    codepf = 0
    ld = "sc1"
    dst = "sc1"
    safe = False
    plain = True
    notouch = ()

BO, BX1, BS1, BH = [WS_O[0]] * 2, [WS_X[0]] * 2, [WS_ST[0]] * 2, [WS_H[0]] * 2
def h_base(d, layer):
    return [f"s_lshl_b32 {d}, s{sC}, 2", f"s_add_u32 {d}, {d}, s{sW}", f"s_mul_i32 {d}, {d}, 112", f"s_mul_i32 s33, s{sM}, 7",
            f"s_add_u32 {d}, {d}, s33", f"s_lshl_b32 {d}, {d}, 10", f"s_add_u32 {d}, {d}, {BH[layer]}"]

class F(K):
    def __init__(self):
        super().__init__(); self.spins = []; self.nspin = 0; self.st = ""; self.npf = 0
    def poll_issue(self, va, tag): self.vm(f"buffer_load_dword v{vP}, v{va}, {SRD_WS}, s{sPO} offen sc1", tag)
    def poll_addr(self, va, nl, sh=2):
        self.e(f"v_cmp_gt_u32 vcc, {nl}, v1", f"v_lshlrev_b32 v{va}, {sh}, v1", f"v_mov_b32 v{vP}, {OOB:#x}", f"v_cndmask_b32 v{va}, v{vP}, v{va}, vcc")
        self.nl = nl
    def poll_check(self, va, tag, thr):
        n = self.nspin; self.nspin += 1
        self.stamp(f"poll<{tag}")
        self.wait(vm=[tag])
        self.stamp(f"poll={tag}")
        msk = f"s_and_b32 s99, vcc_lo, {(1 << self.nl) - 1:#x}"
        self.e(f"v_cmp_gt_u32 vcc, {thr}, v{vP}", msk, f"s_cbranch_scc1 L_spin{n} ;np", f"L_back{n}: ;np")
        self.stamp(f"poll>{tag}")
        self.spins += [f"L_spin{n}:", f"s_sub_u32 s{sBUD}, s{sBUD}, 1", f"s_cbranch_scc1 L_give{n}"] + ([f"s_sleep {P.sleep}"] if P.sleep else []) + [
                       f"buffer_load_dword v{vP}, v{va}, {SRD_WS}, s{sPO} offen sc1", "s_waitcnt vmcnt(0)",
                       f"v_cmp_gt_u32 vcc, {thr}, v{vP}", msk, f"s_cbranch_scc1 L_spin{n}", f"s_branch L_back{n}",
                       f"L_give{n}:", f"s_mov_b32 s{sBUD}, 0", f"s_branch L_back{n}"]
    def flag(self, val, soff=sFO, st=None):
        self.e(f"v_mov_b32 v{vFV}, {val}")
        if st is not None:
            self.vm(f"buffer_store_dword v{vFV}, v{vFA}, {SRD_WS}, s{soff} offen {st}", "flag"); return
        self.e(f"s_or_b32 s99, s{soff}, s{sML}")
        self.vm(f"buffer_store_dword v{vFV}, v{vFA}, {SRD_WS}, s99 offen", "flag")
        self.e(f"s_or_b32 s99, s{soff}, s{sMS}")
        self.vm(f"buffer_store_dword v{vFV}, v{vFA}, {SRD_WS}, s99 offen sc1", "flag")
    def dstore(self, text, tag):
        if not P.plain:
            self.vm(text + " sc1", tag); return
        n = self.nspin; self.nspin += 1
        self.e(f"s_cmp_lg_u32 s{sML}, 0", f"s_cbranch_scc1 L_alt{n} ;np")
        self.vm(text, tag)
        self.e(f"L_back{n}: ;np")
        self.spins += [f"L_alt{n}:", "s_nop 4", text + " sc1", f"s_branch L_back{n}"]
    def touch(self, tmp, kind, base_expr, masked=True):
        if not P.plain or kind in P.notouch: return
        nl = {"p": 16, "s": 2, "h": 56}[kind]
        self.e(f"v_cmp_gt_u32 vcc, {nl}, v1")
        if kind == "p": self.e(f"v_lshrrev_b32 v{tmp}, 3, v1", f"v_lshlrev_b32 v{tmp}, 15, v{tmp}", f"v_and_b32 v{tmp+1}, 7, v1", f"v_lshl_add_u32 v{tmp}, v{tmp+1}, 7, v{tmp}")
        else: self.e(f"v_lshlrev_b32 v{tmp}, {11 if kind == 's' else 7}, v1")
        self.e(f"v_mov_b32 v{tmp+1}, {OOB:#x}", *base_expr)
        self.e(f"v_cndmask_b32 v{tmp}, v{tmp+1}, v{tmp}, vcc")
        if masked: self.e(f"s_or_b32 s32, s32, s{sML}")
        self.vm(f"buffer_load_dword v{tmp}, v{tmp}, {SRD_WS}, s32 offen", "touch")
    def vm(self, text, tag=None):
        kind = tag[0] if isinstance(tag, tuple) else tag
        if kind in P.drop:
            self.seen.add(tag); return
        super().vm(text, tag)
    def codepf(self, tmpv, per=2048):
        if not P.codepf: return
        n = self.npf; self.npf += 1
        sh = (per // 64).bit_length() - 1
        self.e(f"L_pf{n}: ;np", f"s_mul_i32 s32, s{sW}, {per}", f"s_add_u32 s32, s32, L_pf{n}-L_pc", f"v_lshlrev_b32 v{tmpv}, {sh}, v1")
        raise NotImplementedError
    def flush_spins(self):
        for l in self.spins: self.e(l)
        self.spins = []

def batch(k, i):
    src = f"s_add_u32 s62, s{sGS}, {i*16384}" if i < 15 else f"s_add_u32 s62, s{sDS}, {(16 + 4*(i-15))*1024}"
    def f(q):
        k.set_m0(f"s_add_u32 m0, s{sGL}, {(i % 10)*16384}")
        if i != 14: k.set_s(src)
        elif k.last.get(62) != f"s_cselect_b32 s62, {OOB>>1:#x}, s62":
            k.e(src, f"s_cmp_ge_u32 s{sW}, 2", f"s_cselect_b32 s62, {OOB>>1:#x}, s62")
        k.vm(f"buffer_load_dwordx4 v{vL16}, {SRD_WS}, s62 offen offset:{q*1024} {P.bgm} lds", ("gw", i))
    return [lambda q=q: f(q) for q in range(4)]

def bg_batches(k, bs, period, dep=lambda b: None):
    for b in bs:
        for f in batch(k, b): k.bg_add(f, period, ("gw", b), dep(b))
def bg_list(k, fns, period, tag, dep=None):
    for f in fns: k.bg_add(f, period, tag, dep)

def regloads(k, base_sgpr, off, dst, n, tag, tmp=63):
    fns = []
    for j in range(n):
        def f(j=j):
            k.set_s(f"s_add_u32 s{tmp}, s{base_sgpr}, {off + (j & ~3)*1024}")
            k.vm(f"buffer_load_dwordx4 {dst(j)}, v{vL16}, {SRD_WS}, s{tmp} offen offset:{(j%4)*1024} {P.bgm}", tag)
        fns.append(f)
    return fns
def wow(k): return regloads(k, 88, 0, lambda j: ar(192 + 4*j, 4), 16, "wow")

def pack_issue(k):
    k.e("v_lshrrev_b32 v44, 3, v1", "v_and_b32 v43, 7, v1", "v_and_b32 v45, 2, v44", "v_lshlrev_b32 v45, 1, v45",
        "v_xor_b32 v43, v43, v45", "v_lshlrev_b32 v43, 4, v43", f"s_add_u32 s34, s49, {L_X + 4096}")
    k.e("s_cmp_ge_u32 s2, 112", "s_cbranch_scc1 L_pki_small")
    k.e("s_and_b32 s35, s2, 1", "s_bfe_u32 s36, s2, 0x10001", "s_lshr_b32 s37, s2, 2")
    k.e("s_cmp_eq_u32 s35, 0", "s_cselect_b32 s24, s72, s74", "s_cselect_b32 s25, s73, s75",
        f"s_mov_b32 s26, {512*3584:#x}", "s_mov_b32 s27, 0x20000")
    k.e("v_mul_u32_u24 v46, 3584, v44", "v_add_u32 v46, v46, v43")
    k.e("s_lshl_b32 s38, s36, 2", f"s_add_u32 s38, s38, s{sW}", f"s_mul_i32 s38, s38, {64*3584}",
        "s_lshl_b32 s39, s37, 7", "s_add_u32 s38, s38, s39")
    for i in range(8):
        k.e(f"s_add_u32 m0, s34, {(i>>2)*8192 + (i&3)*1024}", f"s_add_u32 s39, s38, {i*8*3584}", f"buffer_load_dwordx4 v46, {SRD_PK}, s39 offen lds")
    k.e("s_branch L_pki_done")
    k.label("L_pki_small")
    k.e("s_sub_u32 s35, s2, 112", "s_lshl_b32 s35, s35, 3", f"s_lshl_b32 s36, s{sW}, 1", "s_add_u32 s35, s35, s36")
    k.e("s_cmp_lt_u32 s35, 896", "s_cselect_b32 s24, s76, s68", "s_cselect_b32 s25, s77, s69", f"s_mov_b32 s26, {512*1024:#x}",
        f"s_cselect_b32 s26, {1792*1024:#x}, s26", "s_mov_b32 s27, 0x20000", "s_cselect_b32 s37, 1, 0",
        "s_movk_i32 s38, 896", "s_cselect_b32 s38, 0, s38")
    k.e("s_sub_u32 s35, s35, s38", "s_and_b32 s36, s35, 7", "s_lshr_b32 s35, s35, 3")
    k.e("v_lshl_add_u32 v46, v44, 10, v43", "s_lshl_b32 s38, s35, 14", "s_lshl_b32 s39, s36, 7", "s_add_u32 s38, s38, s39")
    for i in range(2):
        for h in range(2):
            k.e(f"s_add_u32 m0, s34, {(2*i+h)*1024}", f"s_add_u32 s39, s38, {i*128 + h*8192}", f"buffer_load_dwordx4 v46, {SRD_PK}, s39 offen lds")
    k.label("L_pki_done")
    k.vmq.append("pk"); k.seen.add("pk")

def pack_process(k):
    st = "sc1"
    k.e("v_bfe_u32 v46, v1, 2, 2", "v_and_b32 v47, 3, v1", "v_bfe_u32 v48, v1, 4, 1", "v_lshrrev_b32 v49, 5, v1")
    k.e("v_and_b32 v50, 2, v46", "v_add_u32 v50, v50, v48", "v_lshlrev_b32 v50, 5, v50",
        "v_lshl_add_u32 v50, v46, 7, v50", "v_lshl_add_u32 v50, v47, 3, v50", "v_add_u32 v50, s34, v50")
    k.e("s_cmp_ge_u32 s2, 112", "s_cbranch_scc1 L_pk_small")
    q0 = list(k.vmq)
    k.e("v_lshl_add_u32 v56, v49, 10, v50", "v_xor_b32 v57, 64, v56")
    k.e("s_lshl_b32 s39, s37, 2", "v_add_u32 v58, s39, v48")
    k.e("s_lshl_b32 s70, s36, 2", f"s_add_u32 s70, s70, s{sW}", "s_lshl_b32 s70, s70, 2")
    k.e("v_and_b32 v66, 15, v1", "s_lshl_b32 s71, s35, 8", "v_lshl_add_u32 v66, v66, 4, s71")
    for p in range(2):
        T, fs, tl, st_, b, aug = 59, 60, 61, 62 + p, 64 + p, 68 + p
        k.e(f"v_add_u32 v{T}, {2*p}, v58", f"v_mul_u32_u24 v{fs}, 9363, v{T}", f"v_lshrrev_b32 v{fs}, 16, v{fs}",
            f"v_mul_u32_u24 v{tl}, 7, v{fs}", f"v_sub_u32 v{tl}, v{T}, v{tl}")
        k.e(f"v_cmp_gt_u32 vcc, 3, v{tl}", f"v_mul_u32_u24 v67, 33, v{tl}", f"v_mov_b32 v{st_}, 1", "v_mov_b32 v70, 3",
            f"v_cndmask_b32 v67, v67, v{tl}, vcc", f"v_cndmask_b32 v{st_}, v{st_}, v70, vcc")
        k.e(f"v_mul_u32_u24 v{fs}, 231, v{fs}", f"v_add_u32 v67, v67, v{fs}")
        k.e(f"v_lshl_add_u32 v70, v{st_}, 5, v67", "v_lshlrev_b32 v70, 10, v70", "v_add_u32 v70, v70, v66",
            "s_lshl_b32 s71, s36, 9", f"v_add_u32 v{aug}, s71, v70")
        k.e(f"v_mul_lo_u32 v70, v{st_}, s70", "v_add_u32 v67, v67, v70", "v_lshlrev_b32 v67, 10, v67",
            "v_add_u32 v67, v67, v66", f"v_lshl_add_u32 v{b}, v49, 9, v67", f"v_lshlrev_b32 v{st_}, 10, v{st_}")
    k.e("v_mov_b32 v71, 0x3f803f80", "v_mov_b32 v72, 0", "v_mov_b32 v73, 0", f"s_mov_b32 s71, {WS_PGU}")
    k.wait(vm="pk")
    for ks in range(4):
        for p in range(2):
            r = 76 + 8 * (ks & 1) + 4 * p
            for j in range(2): k.ds(f"ds_read_b64_tr_b16 {vr(r+2*j,2)}, v{56+p} offset:{(ks>>1)*8192 + (ks&1)*2048 + j*512}", ("t", ks, p))
        for p in range(2):
            r = 76 + 8 * (ks & 1) + 4 * p
            k.wait(lg=[("t", ks, p)])
            k.vm(f"buffer_store_dwordx4 {vr(r,4)}, v{64+p}, {SRD_WS}, s71 offen {st}", "pks")
            for d in range(4): k.e(f"v_dot2c_f32_bf16 v{72+p}, v{r+d}, v71")
            if ks < 3: k.e(f"v_add_u32 v{64+p}, v{64+p}, v{62+p}")
    k.e("v_permlane32_swap_b32 v72, v73", "v_add_f32 v72, v72, v73")
    k.e(f"s_lshl_b32 s72, s{sW}, 8", "s_add_u32 s72, s72, 0x10000", "v_lshl_add_u32 v74, v1, 2, s72")
    k.ds(f"ds_write_b32 v74, v72 offset:{L_CS - 65536}")
    k.wait(lg="all")
    k.e("s_barrier", f"s_cmp_lg_u32 s{sW}, 0", "s_cbranch_scc1 L_pk_done")
    for w in range(4): k.ds(f"ds_read_b32 v{92+w}, v74 offset:{L_CS - 65536 + 256*w}")
    k.e("v_cmp_gt_u32 vcc, 32, v1", "v_mov_b32 v98, 0", "v_mov_b32 v99, 0", "v_cndmask_b32 v68, v69, v68, vcc")
    k.wait(lg="all")
    k.e("v_add_f32 v92, v92, v93", "v_add_f32 v94, v94, v95", "v_add_f32 v92, v92, v94")
    k.e("v_cvt_pk_bf16_f32 v97, v92, v98", "v_lshlrev_b32 v93, 16, v97", "v_sub_f32 v93, v92, v93", "v_cvt_pk_bf16_f32 v96, v92, v93")
    k.vm(f"buffer_store_dwordx4 v[96:99], v68, {SRD_WS}, s71 offen {st}", "pks")
    k.e("s_branch L_pk_done")
    k.label("L_pk_small")
    k.vmq = list(q0)
    k.e("s_mul_i32 s38, s35, 2341", "s_lshr_b32 s38, s38, 16", "s_mul_i32 s39, s38, 28", "s_sub_u32 s39, s35, s39",
        "s_mul_i32 s70, s39, 9363", "s_lshr_b32 s70, s70, 16", "s_mul_i32 s71, s70, 7", "s_sub_u32 s71, s39, s71",
        "s_lshl_b32 s72, s70, 2", "s_add_u32 s72, s72, s71", "s_mul_i32 s73, s70, 3", "s_add_u32 s73, s73, s71", "s_add_u32 s73, s73, 12",
        "s_cmp_lt_u32 s71, 4", "s_cselect_b32 s72, s72, s73", "s_mul_i32 s38, s38, 28", "s_add_u32 s72, s72, s38")
    k.e("s_cmp_eq_u32 s37, 1", "s_cselect_b32 s35, s72, s35", f"s_mov_b32 s38, {WS_PWO}", f"s_cselect_b32 s38, {WS_PDN}, s38",
        f"s_mov_b32 s39, {64*KB}", f"s_cselect_b32 s39, {224*KB}, s39", "s_cselect_b32 s73, 9, 10", "s_movk_i32 s74, 512",
        "s_cselect_b32 s74, 0x400, s74")
    k.e("v_lshlrev_b32 v56, s73, v49", "v_add_u32 v56, v56, v50", "v_xor_b32 v57, 64, v56", "v_add_u32 v58, s74, v56", "v_add_u32 v59, s74, v57")
    k.e("s_mul_i32 s36, s36, s39", "s_add_u32 s38, s38, s36", "s_lshl_b32 s35, s35, 11", "s_add_u32 s38, s38, s35")
    k.wait(vm="pk")
    for i in range(2):
        for nn in range(2):
            r = 76 + 8 * i + 4 * nn
            k.ds(f"ds_read_b64_tr_b16 {vr(r,2)}, v{56+nn} offset:{i*2048}", ("t", i, nn))
            k.ds(f"ds_read_b64_tr_b16 {vr(r+2,2)}, v{58+nn} offset:{i*2048}", ("t", i, nn))
    for i in range(2):
        for nn in range(2):
            r = 76 + 8 * i + 4 * nn
            k.wait(lg=[("t", i, nn)])
            k.vm(f"buffer_store_dwordx4 {vr(r,4)}, v{vL16}, {SRD_WS}, s38 offen offset:{nn*1024} {st}", "pks")
        if i == 0: k.e("s_add_u32 s38, s38, s39")
    k.label("L_pk_done")

A_XF, A_K, A_V, A_Q = 36, 76, 86, 96
A_STA, A_STB, A_OP, A_DX, A_PA, A_ST, A_ACC = 104, 106, 144, 152, 153, 156, 184
class R0: XE, XO, SA, SB, CI, ONE, M, ATT, TMP = 3, 4, 5, 6, 28, 32, 52, (116, 160), 60
class R1: XE, XO, SA, SB, CI, ONE, M, ATT, TMP = 116, 117, 118, 119, 252, 124, 120, (228, 160), 28
A_U, A_PX = 226, 115
A11_ORDER = [2, 3, 1, 0, "h"]
A11_POS = {2: 3, 3: 0, 1: 1, 0: 2, "h": 3}
sODD, sCUR0, sCUR1, sCEXP = 40, 42, 44, 46

def a1_setup(k, layer):
    R = (R0, R1)[layer]
    real = k; out = []
    class Rec:
        def e(self, *t):
            if any(x.startswith("s_cmp") for x in t): out.append(lambda t=t: real.e(*t))
            else: out.extend(lambda x=x: real.e(x) for x in t)
    k = Rec()
    t16, g, tt, tb = R.TMP, R.TMP + 1, R.TMP + 2, R.TMP + 3
    x, y, z = R.ONE, R.ONE + 1, R.ONE + 2
    sa = L_SA0 if layer == 0 else L_SA1
    k.e(f"v_and_b32 v{t16}, 15, v1", f"v_lshrrev_b32 v{g}, 4, v1", f"v_and_b32 v{tt}, 7, v1", f"v_bfe_u32 v{tb}, v1, 3, 1")
    k.e(f"v_lshlrev_b32 v{tb}, 13, v{tb}", f"v_add_u32 v{tb}, {L_X}, v{tb}")
    if layer == 0:
        k.e(f"v_and_b32 v{x}, 6, v{tt}", f"v_xor_b32 v{x}, v{x}, v{g}", f"v_lshlrev_b32 v{x}, 4, v{x}",
            f"v_lshl_add_u32 v{x}, v{tt}, 7, v{x}", f"v_add_u32 v{R.XE}, v{x}, v{tb}", f"v_xor_b32 v{R.XO}, 64, v{R.XE}")
    else:
        k.e(f"v_lshl_add_u32 v{x}, v{g}, 7, v{tb}", f"v_lshl_add_u32 v{R.XE}, v{tt}, 4, v{x}", f"v_add_u32 v{R.XO}, 512, v{R.XE}")
    k.e(f"v_lshlrev_b32 v{R.SA}, 3, v{t16}", f"v_add_u32 v{R.SA}, {sa}, v{R.SA}",
        f"v_lshlrev_b32 v{R.SB}, 5, v{g}", f"v_add_u32 v{R.SB}, {sa}, v{R.SB}")
    k.e(f"v_and_b32 v{x}, 1, v1", f"v_cmp_eq_u32 s[{sODD}:{sODD+1}], 1, v{x}",
        f"v_lshl_add_u32 v{y}, v{g}, 2, v{x}", f"v_cmp_le_u32 s[{sCUR0}:{sCUR0+1}], v{y}, v{t16}",
        f"v_add_u32 v{y}, 2, v{y}", f"v_cmp_le_u32 s[{sCUR1}:{sCUR1+1}], v{y}, v{t16}")
    k.e(f"v_mov_b32 v{y}, 0xffff", f"v_mov_b32 v{z}, 0xffff0000", f"v_cndmask_b32 v{y}, v{y}, v{z}, s[{sODD}:{sODD+1}]", f"v_mov_b32 v{z}, 0")
    k.e(f"v_cndmask_b32 v{R.M+2}, v{z}, v{y}, s[{sCUR0}:{sCUR0+1}]", f"v_cndmask_b32 v{R.M}, v{y}, v{z}, s[{sCUR0}:{sCUR0+1}]",
        f"v_cndmask_b32 v{R.M+3}, v{z}, v{y}, s[{sCUR1}:{sCUR1+1}]", f"v_cndmask_b32 v{R.M+1}, v{y}, v{z}, s[{sCUR1}:{sCUR1+1}]")
    k.e(f"s_cmp_eq_u32 s{sB}, 0", f"s_cselect_b32 s70, {f2u(-1e38):#x}, 0", f"s_mov_b32 s{sCEXP}, {f2u(0.25*LOG2E):#x}")
    for i in range(4): k.e(f"v_mov_b32 v{R.CI+i}, s70", f"v_mov_b32 v{R.ONE+i}, 0x3f803f80")
    return out

def o_bases(k, layer):
    k.e(f"s_lshl_b32 s32, s{sB}, 16", f"s_lshl_b32 s33, s{sCS}, 2", f"s_add_u32 s33, s33, s{sW}", "s_lshl_b32 s53, s33, 10",
        "s_add_u32 s32, s32, s53", f"s_add_u32 s53, s32, {BO[layer]}", "s_add_u32 s54, s53, 32768",
        f"s_lshl_b32 s32, s{sB}, 5", "s_add_u32 s32, s32, s33", "s_lshl_b32 s32, s32, 2", f"s_add_u32 s89, s32, {fl(layer, FL_O)}")

def ln_finish(a, s, q):
    a(f"v_mul_f32 v{s}, {f2u(-1/512):#x}, v{s}"); a(f"v_mul_f32 v{q}, {f2u(1/512):#x}, v{q}")
    a(f"v_fma_f32 v{q}, -v{s}, v{s}, v{q}"); a(f"v_max_f32 v{q}, 0, v{q}"); a(f"v_add_f32 v{q}, {f2u(1e-5):#x}, v{q}")

def fix(k, R, fx, t, acc, at, pk):
    a = lambda txt, c=1, at=0: fx.add(lambda: k.e(txt), c, at)
    i = 0 if t == "h" else t + 1
    fx.add(lambda: k.ds(f"ds_read_b64 {vr(A_STA,2)}, v{R.SA} offset:{i*128}", "sa"), 1, at - 4)
    fx.add(lambda: k.ds(f"ds_read_b128 {vr(A_STB,4)}, v{R.SB} offset:{i*128}", "sa"))
    fx.add(lambda: k.ds(f"ds_read_b128 {vr(A_STB+4,4)}, v{R.SB} offset:{i*128+16}", "sa"))
    fx.add(lambda: k.wait(lg=["sa"]), 1, at)
    for r0, cs, dst in ((acc[0], CSQ, None if t == "h" else A_Q + 2*t), (acc[1], CSK, A_K + 2*i)):
        if dst is None: continue
        if pk:
            for h in (0, 2): a(f"v_pk_fma_f32 {vr(r0+h,2)}, {vr(A_STA,2)}, {vr(cs+h,2)}, {vr(r0+h,2)} op_sel_hi:[0,1,1]")
            for h in (0, 2): a(f"v_pk_mul_f32 {vr(r0+h,2)}, {vr(A_STA,2)}, {vr(r0+h,2)} op_sel:[1,0] op_sel_hi:[1,1]")
        else:
            for r in range(4): a(f"v_fmac_f32 v{r0+r}, v{A_STA}, v{cs+r}")
            for r in range(4): a(f"v_mul_f32 v{r0+r}, v{A_STA+1}, v{r0+r}")
        for h in range(2): a(f"v_cvt_pk_bf16_f32 v{dst+h}, v{r0+2*h}, v{r0+2*h+1}")
    r0 = acc[2]
    for r in range(4): a(f"v_fmac_f32 v{r0+r}, v{A_STB+2*r}, v{CSV}")
    for r in range(4): a(f"v_mul_f32 v{r0+r}, v{A_STB+2*r+1}, v{r0+r}")
    for h in range(2): a(f"v_cvt_pk_bf16_f32 v{A_V+2*i+h}, v{r0+2*h}, v{r0+2*h+1}")
    fx.add(lambda: (k.mark(("fix", t)), k.stamp(f"t0 fix{t}")), 0)

def attn(k, R, fx, t, B):
    SC, SP, PP, O, SUM, T = B, B + 4, B + 8, B + 12, B + 16, B + 20
    a = lambda txt, c=1: fx.add(lambda: k.e(txt), c)
    q = vr(A_Q + 2*t, 2)
    fx.dep(("fix", t)); fx.dep(("fix", t - 1 if t else "h")); fx.skip(1)
    a(f"{MF16S} {vr(SC,4)}, {vr(A_K+2*(t+1),2)}, {q}, 0", 2)
    a(f"{MF16S} {vr(SP,4)}, {vr(A_K+2*t,2)}, {q}, {vr(R.CI,4) if t == 0 else '0'}", 2)
    fx.skip(3)
    for rr, cur in ((0, sCUR0), (1, sCUR1)):
        a(f"v_cndmask_b32 v{T+2}, v{SC+2*rr}, v{SC+2*rr+1}, s[{sODD}:{sODD+1}]")
        a(f"v_cndmask_b32 v{T+3}, v{SP+2*rr}, v{SP+2*rr+1}, s[{sODD}:{sODD+1}]")
        a(f"v_cndmask_b32 v{T+rr}, v{T+3}, v{T+2}, s[{cur}:{cur+1}]")
    a(f"v_max_f32 v{T+2}, v{T}, v{T+1}"); a(f"v_mov_b32 v{T+3}, v{T+2}"); fx.skip(1)
    a(f"v_permlane16_swap_b32 v{T+2}, v{T+3}", 2); a(f"v_max_f32 v{T+2}, v{T+2}, v{T+3}"); a(f"v_mov_b32 v{T+3}, v{T+2}"); fx.skip(1)
    a(f"v_permlane32_swap_b32 v{T+2}, v{T+3}", 2); a(f"v_max_f32 v{T+2}, v{T+2}, v{T+3}")
    a(f"v_mul_f32 v{T+2}, s{sCEXP}, v{T+2}")
    for rr in range(2): a(f"v_fma_f32 v{T+rr}, v{T+rr}, s{sCEXP}, -v{T+2}")
    for rr in range(2): a(f"v_exp_f32 v{T+rr}, v{T+rr}", 2)
    for rr in range(2): a(f"v_cvt_pk_bf16_f32 v{T+rr}, v{T+rr}, v{T+rr}")
    a(f"v_and_b32 v{PP}, v{T}, v{R.M}"); a(f"v_and_b32 v{PP+1}, v{T+1}, v{R.M+1}")
    a(f"v_and_b32 v{PP+2}, v{T}, v{R.M+2}"); a(f"v_and_b32 v{PP+3}, v{T+1}, v{R.M+3}")
    fx.skip(1)
    a(f"{MF16} {vr(SUM,4)}, {vr(R.ONE,4)}, {vr(PP,4)}, 0", 2)
    a(f"{MF16} {vr(O,4)}, {vr(A_V+2*t,4)}, {vr(PP,4)}, 0", 2)
    fx.skip(3)
    a(f"v_rcp_f32 v{T}, v{SUM}", 2); fx.skip(1)
    for r in range(4): a(f"v_mul_f32 v{O+r}, v{T}, v{O+r}")
    for h in range(2): a(f"v_cvt_pk_bf16_f32 v{A_OP+2*t+h}, v{O+2*h}, v{O+2*h+1}")
    fx.add(lambda: (k.mark(("attn", t)), k.stamp(f"t0 attn{t}")), 0)

def ostore(k, fx, pair):
    b = A_OP + 4 * pair
    fx.dep(("attn", 2*pair)); fx.dep(("attn", 2*pair + 1))
    if pair == 0: fx.dep("po1")
    fx.skip(1)
    fx.add(lambda: k.e(f"v_permlane16_swap_b32 v{b}, v{b+2}"), 2); fx.add(lambda: k.e(f"v_permlane16_swap_b32 v{b+1}, v{b+3}"), 2)
    fx.add(lambda: (k.dstore(f"buffer_store_dwordx4 {vr(b,4)}, v{vL16}, {SRD_WS}, s{53+pair} offen", ("ost", pair)), k.mark(("ost", pair))))

Z_WD, Z_TR, Z_HE, Z_HO, Z_OE, Z_OO = 164, 165, 166, 167, 168, 169
Z_XF, Z_SUM, Z_GR, Z_SUMH, Z_GRH, Z_CV = 104, 240, 244, 248, 252, 100
P.k_look, P.k_pack, P.k_atom, P.k_bar, P.k_vgap = 4, 2, 5, 5, 3
NS0 = 6
def z_acc(t):
    if t == "h": return (None, A_ACC + 48, A_ACC + 52)
    return (A_ACC + 12*t, A_ACC + 12*t + 4, A_ACC + 12*t + 8)

def a10_lanes(k):
    k.e("v_lshrrev_b32 v60, 3, v1", "v_and_b32 v61, 6, v60", "v_and_b32 v62, 7, v1", "v_xor_b32 v61, v61, v62",
        "v_lshlrev_b32 v61, 4, v61", f"v_lshl_add_u32 v{A_DX}, v60, 10, v61")
    k.e("v_and_b32 v61, 2, v60", f"s_and_b32 s32, s{sW}, 1", "s_lshl_b32 s32, s32, 2", "v_or_b32 v61, s32, v61", "v_xor_b32 v61, v61, v62",
        "v_lshlrev_b32 v61, 4, v61", "v_mul_u32_u24 v60, 3072, v60", f"v_add_u32 v{Z_WD}, v60, v61")
    k.e(f"s_add_u32 s{sROT}, s{sB}, s{sCS}", f"s_and_b32 s{sROT}, s{sROT}, 7")
    k.e(f"s_lshl_b32 s47, s{sB}, 3", "s_sub_u32 s48, s47, 2", "s_max_i32 s48, s48, 0", f"s_and_b32 s32, s{sW}, 1", "s_add_u32 s48, s48, s32",
        "s_lshl_b32 s48, s48, 13", f"s_lshl_b32 s32, s{sW}, 1", "s_add_u32 s47, s47, s32", "s_lshl_b32 s47, s47, 13")
    k.e(f"s_mul_i32 s51, s{sW}, {8*3072}", f"s_lshl_b32 s32, s{sCS}, 7", "s_add_u32 s51, s51, s32", f"s_mul_i32 s52, s{sW}, 3072")
    k.e(f"s_lshl_b32 s49, s{sW}, 14", f"s_and_b32 s32, s{sW}, 1", "s_lshl_b32 s50, s32, 13", f"s_lshr_b32 s32, s{sW}, 1",
        "s_lshl_b32 s33, s32, 10", "s_add_u32 s50, s50, s33", f"s_add_u32 s90, s32, s{sROT}")

def a10_x(k, c):
    S = lambda *t: [("s", lambda x=x: k.e(x)) for x in t]
    ld = lambda: k.vm(f"buffer_load_dwordx4 v{A_DX}, {SRD_X}, s33 offen lds", ("x", c))
    ops = S(f"s_add_u32 s33, s{sROT}, {c}", "s_and_b32 s33, s33, 7", "s_lshl_b32 s33, s33, 7", f"s_add_u32 m0, s49, {L_X + c*1024}", "s_add_u32 s33, s33, s47")
    ops += [("v", ld)] + S(f"s_add_u32 m0, s49, {L_X + 8192 + c*1024}", "s_add_u32 s33, s33, 8192") + [("v", ld)]
    if c % 2 == 0:
        ops += S(f"s_add_u32 s33, s90, {c}", "s_and_b32 s33, s33, 7", "s_lshl_b32 s33, s33, 7", f"s_add_u32 m0, s50, {L_XH0 + c*1024}", "s_add_u32 s33, s33, s48") + [("v", ld)]
    return ops

def a10_w(k, s):
    S = lambda *t: [("s", lambda x=x: k.e(x)) for x in t]
    if s & 1: ops = S(f"s_add_u32 m0, s52, {(s % NS0)*12288}", f"s_add_u32 s63, s63, {32*3072}")
    else: ops = S(f"s_add_u32 s63, s{sROT}, {s>>1}", "s_and_b32 s63, s63, 7", f"s_mul_i32 s63, s63, {64*3072}", f"s_add_u32 m0, s52, {(s % NS0)*12288}", "s_add_u32 s63, s63, s51")
    for p in range(3): ops.append(("v", lambda p=p: k.vm(f"buffer_load_dwordx4 v{Z_WD}, {SRD_QKV}, s63 offen offset:{p*1024} lds", ("w", s))))
    return ops
def run(ops):
    for _, f in ops: f()

def fill(k, mains, streams, cap=2):
    lastv = -99
    for g, m in enumerate(mains):
        m(); k.gap = g
        for a, o in streams:
            if a <= g and o and o[0][0] == "s": o.pop(0)[1](); break
        room = cap; nd = 0
        while room > 0:
            pick = None
            for a, o in streams:
                if a > g or not o: continue
                t = o[0][0]
                if t == "d" and nd >= 1: continue
                if t == "v" and g - lastv < P.k_vgap: continue
                pick = o; break
            if pick is None: break
            t, f = pick.pop(0); f(); room -= 2 if t == "b" else 1
            if t == "d": nd += 1
            if t == "v": lastv = g
    for a, o in streams: run(o)

def a10_lanes2(k):
    k.e("v_lshrrev_b32 v60, 4, v1", "v_bfe_u32 v61, v1, 2, 2", "v_and_b32 v62, 1, v60", "v_lshlrev_b32 v62, 1, v62",
        "v_lshrrev_b32 v63, 1, v61", "v_or_b32 v62, v62, v63", f"v_xor_b32 v62, s{sW}, v62", "v_lshlrev_b32 v62, 5, v62",
        "v_mul_u32_u24 v60, 3072, v60", "v_lshl_add_u32 v60, v61, 7, v60", "v_add_u32 v60, v60, v62",
        "v_and_b32 v61, 3, v1", f"v_lshl_add_u32 v{Z_TR}, v61, 3, v60")
    k.e(f"v_subrev_u32 v{Z_HE}, 16384, v{R0.XE}", f"v_subrev_u32 v{Z_HO}, 16384, v{R0.XO}",
        f"v_add_u32 v{Z_OE}, s49, v{R0.XE}", f"v_add_u32 v{Z_OO}, s49, v{R0.XO}")

def a10_loop(k, first):
    LA = P.k_look
    def sync(s, extra=()):
        k.wait(vm=[("w", s), ("x", s >> 1)] + list(extra)); k.e("s_barrier")
    nxt = [first]
    def dmas(upto):
        out = []
        while nxt[0] <= min(upto, 15):
            n = nxt[0]; nxt[0] += 1
            if n % 2 == 0: out += a10_x(k, n // 2)
            out += a10_w(k, n)
        return out
    def reads(s):
        fb = Z_XF + 24 * (s & 1); off = (s >> 1) * 1024; o = s & 1
        tr = lambda p, j: ("d", lambda: k.ds(f"ds_read_b64_tr_b16 {ar(12*s+4*p+2*j,2)}, v{Z_TR} offset:{(s%NS0)*12288 + p*1024 + j*512}", ("r", s, 0 if p == 0 else 1)))
        xr = lambda d, a, of, grp: ("d", lambda: k.ds(f"ds_read_b128 {vr(d,4)}, v{a} offset:{of}", ("r", s, grp)))
        out = [tr(0, 0), tr(0, 1)] + [xr(fb + 4*t, R0.XO if o else R0.XE, t*16384 + off, 0) for t in range(4)]
        out += [tr(1, 0), tr(1, 1), tr(2, 0), tr(2, 1), xr(fb + 16, Z_HO if o else Z_HE, off, 1), xr(fb + 20, Z_OO if o else Z_OE, off, 1)]
        return out
    sync(0)
    k.stamp("k0")
    run(reads(0)); run(dmas(LA - 1))
    for s in range(16):
        fb = Z_XF + 24 * (s & 1)
        c = lambda r: "0" if s == 0 else vr(r, 4)
        wq, wk, wv, one = ar(12*s, 4), ar(12*s + 4, 4), ar(12*s + 8, 4), vr(R0.ONE, 4)
        ms = [f"{MF16} {vr(z_acc(t)[0],4)}, {wq}, {vr(fb+4*t,4)}, {c(z_acc(t)[0])}" for t in range(4)]
        ms.append(f"{MF16} {vr(CSQ,4)}, {wq}, {one}, {c(CSQ)}")
        for t in [0, 1, 2, 3, "h"]:
            xf = vr(fb + (16 if t == "h" else 4*t), 4)
            ms.append(f"{MF16} {vr(z_acc(t)[1],4)}, {wk}, {xf}, {c(z_acc(t)[1])}")
            ms.append(f"{MF16} {vr(z_acc(t)[2],4)}, {xf}, {wv}, {c(z_acc(t)[2])}")
        ms += [f"{MF16} {vr(CSK,4)}, {wk}, {one}, {c(CSK)}", f"{MF16} {vr(Z_CV,4)}, {one}, {wv}, {c(Z_CV)}",
               f"{MF16} {vr(Z_SUM,4)}, {one}, {vr(fb+20,4)}, {c(Z_SUM)}", f"{MF16} {vr(Z_GR,4)}, {vr(fb+20,4)}, {vr(fb+20,4)}, {c(Z_GR)}",
               f"{MF16} {vr(Z_SUMH,4)}, {one}, {vr(fb+16,4)}, {c(Z_SUMH)}", f"{MF16} {vr(Z_GRH,4)}, {vr(fb+16,4)}, {vr(fb+16,4)}, {c(Z_GRH)}"]
        mains = [lambda m=m: k.e(m) for m in ms]
        if s == P.k_pack:
            k.wait(lg="all"); k.stamp("s pk0"); pack_process(k); k.stamp("s pk1")
        k.wait(lg=[("r", s, 0)])
        streams = [(4, [("s", lambda: k.wait(lg=[("r", s, 1)]))])]
        if s + 1 < 16:
            ex = ["pks"] if s + 1 == P.k_atom else []
            ops = [("b", lambda: sync(s + 1, ex))] + reads(s + 1)
            if ex: ops.append(("b", lambda: arrive(k)))
            streams.append((P.k_bar, ops))
            streams.append((0, dmas(s + LA)))
        if s == P.k_touch:
            streams.append((2, [("b", lambda: k.touch(60, "p", ["s_mov_b32 s32, s53"], False)),
                                ("b", lambda: k.touch(62, "p", [f"s_add_u32 s32, s55, {BX1[0]}"], False)),
                                ("b", lambda: k.touch(64, "h", h_base("s32", 0), False))]))
        if s == P.k_gb: streams.append((1, [("v", lambda t=t: k.vm(t, "gb")) for t in GB_LOADS]))
        if s == P.k_chk: streams.append((1, [("b", lambda: rendezvous(k))]))
        fill(k, mains, streams)
        if s in (3, 7, 11): k.stamp(f"k{s+1}")
    k.stamp("k16")
    if P.k_chk >= 16: rendezvous(k)

GB_LOADS = [f"buffer_load_dwordx4 {vr(36+4*j,4)}, v{vL16}, {SRD_WS}, s75 offen offset:{j*1024} sc1" for j in range(4)] + \
           [f"buffer_load_dword v{vP}, v172, {SRD_WS}, s77 offen offset:8 sc1"]
def arrive(k):
    k.wait(vm=["tag"])
    k.e(f"v_readfirstlane_b32 s{sTAG}, v170", f"s_cmp_eq_u32 s{sTAG}, 0", "s_cbranch_scc1 L_tag_spin ;np", "L_tag_ok: ;np")
    k.spins += ["L_tag_spin:", f"s_sub_u32 s{sBUD}, s{sBUD}, 1", "s_cbranch_scc1 L_tag_give", f"buffer_load_dword v170, v{vFA}, {SRD_DBG}, 0 offen sc1",
                "s_waitcnt vmcnt(0)", f"v_readfirstlane_b32 s{sTAG}, v170", f"s_cmp_eq_u32 s{sTAG}, 0", "s_cbranch_scc1 L_tag_spin", "s_branch L_tag_ok",
                "L_tag_give:", f"s_mov_b32 s{sBUD}, 0", "s_branch L_tag_ok"]
    k.e(f"v_mov_b32 v176, s{sTAG}", "v_not_b32 v177, v176", f"v_mov_b32 v178, s{sXCC}")
    k.vm(f"buffer_store_dwordx4 v[176:179], v171, {SRD_WS}, s75 offen sc1", "arr")

def rendezvous(k):
    chk = [f"s_not_b32 s32, s{sTAG}"]
    for j in range(4): chk += [f"v_xor_b32 v{36+4*j}, s{sTAG}, v{36+4*j}", f"v_xor_b32 v{37+4*j}, s32, v{37+4*j}"]
    chk += ["v_or3_b32 v36, v36, v37, v40", "v_or3_b32 v44, v44, v45, v41", "v_or3_b32 v36, v36, v48, v49", "v_or_b32 v36, v36, v44", "v_cmp_ne_u32 vcc, 0, v36"]
    k.wait(vm=["gb"])
    k.e(*chk); k.e("s_cbranch_vccnz L_gb_spin ;np", "L_gb_ok: ;np")
    k.spins += ["L_gb_spin:", f"s_sub_u32 s{sBUD}, s{sBUD}, 1", "s_cbranch_scc1 L_gb_give", "s_sleep 2"] + GB_LOADS + ["s_waitcnt vmcnt(0)"] + chk + \
               ["s_cbranch_vccnz L_gb_spin", "s_branch L_gb_ok", "L_gb_give:", f"s_mov_b32 s{sBUD}, 0", "s_branch L_gb_ok"]
    k.e(f"v_cmp_ne_u32 vcc, s{sXCC}, v{vP}", "s_and_b32 s99, vcc_lo, 0xffff" if not P.safe else "s_and_b32 s99, 1, 1",
        f"s_cselect_b32 s{sML}, {OOB>>1:#x}, 0", f"s_cselect_b32 s{sMS}, 0, {OOB>>1:#x}")
    k.mark("gb")

def wo_prepoll(k, layer):
    k.poll_addr(A_PA, 8)
    k.e(f"s_lshl_b32 s32, s{sB}, 7", f"s_lshl_b32 s33, s{sW}, 5", "s_add_u32 s32, s32, s33", f"s_add_u32 s{sPO}, s32, {fl(layer, FL_O)}")
    k.e(f"s_lshl_b32 s32, s{sB}, 16", f"s_lshl_b32 s33, s{sW}, 13", "s_add_u32 s32, s32, s33", f"s_add_u32 s59, s32, {BO[layer]}")
    k.bg_held = True
    k.poll_issue(A_PA, "po1"); k.mark("po1")

def dna(k): return regloads(k, sDS, 0, lambda j: ar(192 + 4*j, 4), 16, "dna")

def a10_tail(k):
    R = R0
    k.per = dict(P.per_tail0)
    bg_list(k, wow(k), "s4", "wow")
    bg_batches(k, [0, 1, 2, 3], "s2", lambda b: "tailbar")
    b4 = batch(k, 4)
    bg_list(k, b4[:2], "s2", ("gw", 4), "tailbar")
    bg_batches(k, [5, 6, 7], "s2", lambda b: "tailbar")
    bg_list(k, b4[2:], "s2", ("gw", 4), "wobar")
    k.stamp("t0 gb")
    k.touch(70, "s", [f"s_add_u32 s32, s56, {BS1[0]}"])
    k.bg_burst(2)
    k.e(f"v_mov_b32 v{CSV}, v{Z_CV}")
    k.e("v_and_b32 v40, 3, v1", "v_cmp_eq_u32 s[34:35], 1, v40", "v_cmp_eq_u32 s[36:37], 2, v40", "v_cmp_eq_u32 s[38:39], 3, v40",
        "v_bfe_u32 v40, v1, 2, 2", "v_lshrrev_b32 v41, 4, v1", "v_cmp_eq_u32 vcc, v40, v41", f"v_mov_b32 v40, {L_SA0 + 768}",
        f"s_lshl_b32 s32, s{sW}, 7", f"v_add_u32 v41, s32, v{R.SA}", "v_cndmask_b32 v41, v40, v41, vcc", f"v_cndmask_b32 v42, v40, v{R.SA}, vcc")
    fa = Flex(); fb = Flex()
    for fx, S, G, ad, off in ((fa, Z_SUM, Z_GR, 41, 128), (fb, Z_SUMH, Z_GRH, 42, 0)):
        a = lambda txt, c=1, fx=fx: fx.add(lambda: k.e(txt), c)
        a(f"v_cndmask_b32 v{S+1}, v{G}, v{G+1}, s[34:35]"); a(f"v_cndmask_b32 v{S+1}, v{S+1}, v{G+2}, s[36:37]"); a(f"v_cndmask_b32 v{S+1}, v{S+1}, v{G+3}, s[38:39]")
        ln_finish(a, S, S + 1); a(f"v_rsq_f32 v{S+1}, v{S+1}"); fx.skip(1)
        fx.add(lambda S=S, ad=ad, off=off: k.ds(f"ds_write_b64 v{ad}, {vr(S,2)} offset:{off}", "saw"))
    drain([fa, fb], k)
    k.e("v_and_b32 v43, 7, v1", "v_lshrrev_b32 v44, 3, v1", "v_lshlrev_b32 v43, 10, v43", "v_lshl_add_u32 v43, v44, 4, v43")
    for mm in range(2):
        k.e(f"s_add_u32 s32, s57, {mm*32768}")
        k.vm(f"buffer_load_dwordx4 {vr(RES+4*mm,4)}, v43, {SRD_X}, s32 offen", "res")
    k.wait(lg="all"); k.e("s_barrier"); k.mark("tailbar")
    k.stamp("t0 bar")
    fx = Flex(); f1 = Flex(); f2 = Flex()
    for t in (2, 1, 3, 0, "h"): fix(k, R, fx, t, z_acc(t), 0, True); fx.skip(1)
    attn(k, R, f1, 2, R.ATT[0]); attn(k, R, f2, 3, R.ATT[1]); ostore(k, f2, 1)
    attn(k, R, f1, 1, R.ATT[0]); attn(k, R, f2, 0, R.ATT[1]); ostore(k, f2, 0)
    f3 = Flex(); f3.dep(("ost", 1))
    for _ in range(P.l0_flag_delay): f3.skip(1)
    f3.add(lambda: (k.wait(vm=[("ost", 1)]), k.flag(1, 89), k.mark("oflag1")))
    f3.dep(("attn", 0)); f3.add(lambda: wo_prepoll(k, 0))
    drain([fx, f1, f2, f3], k)
    k.stamp("a1 end")
P.l0_flag_delay = 6
P.per_tail0 = {"s2": 100, "s4": 60}

def a11_bases(k):
    out = []
    S = lambda *t: out.extend(lambda x=x: k.e(x) for x in t)
    S(f"s_lshr_b32 s70, s{sW}, 1", "s_lshl_b32 s49, s70, 13", f"s_and_b32 s71, s{sW}, 1", "s_lshl_b32 s71, s71, 2",
      f"s_add_u32 s50, s71, s{sROT}", "s_lshl_b32 s71, s71, 10")
    for i in range(4):
        S(f"s_add_u32 s70, s50, {i}", "s_and_b32 s70, s70, 7", "s_lshl_b32 s70, s70, 10", "s_add_u32 s70, s70, s49", f"s_sub_u32 s{92+i}, s70, {i*1024}")
    S("s_add_u32 s49, s49, s71", f"s_lshl_b32 s47, s{sB}, 16", f"s_add_u32 s47, s47, {WS_X[1]}")
    S(f"s_sub_u32 s48, s{sB}, 1", "s_max_i32 s48, s48, 0", "s_lshl_b32 s51, s48, 10", f"s_add_u32 s51, s51, {WS_HST}",
      "s_lshl_b32 s52, s48, 11", f"s_add_u32 s52, s52, {WS_HXF}", "s_lshl_b32 s48, s48, 14", f"s_add_u32 s48, s48, {WS_HALO}")
    S("v_lshrrev_b32 v28, 4, v1", "v_and_b32 v29, 15, v1", "v_lshlrev_b32 v29, 4, v29", f"v_lshl_add_u32 v{A_U}, v28, 9, v29", f"v_lshl_add_u32 v{A_U+1}, v28, 8, v29")
    S(f"s_lshl_b32 s70, s{sB}, 12", f"s_and_b32 s71, s{sW}, 1", "s_lshl_b32 s71, s71, 8", "s_add_u32 s70, s70, s71", f"s_add_u32 s90, s70, {WS_ST[1]}")
    out.append(lambda: k.e(f"s_lshl_b32 s70, s{sB}, 1", f"s_add_u32 s70, s70, s{sW}", "s_lshl_b32 s72, s70, 13", f"s_lshl_b32 s71, s{sCS}, 10", "s_add_u32 s72, s72, s71",
        f"s_add_u32 s72, s72, {WS_HALO - 16384}", f"s_cmp_ge_u32 s{sW}, 2", f"s_cselect_b32 s72, s72, {OOB>>1:#x}"))
    out.append(lambda: k.e(f"s_lshl_b32 s73, s{sB}, 10", f"s_lshr_b32 s71, s{sCS}, 1", "s_lshl_b32 s71, s71, 8", "s_add_u32 s73, s73, s71", f"s_and_b32 s71, s{sCS}, 1",
        "s_lshl_b32 s71, s71, 3", "s_add_u32 s73, s73, s71"))
    out.append(lambda: k.e(f"s_lshl_b32 s71, s{sW}, 7", "s_add_u32 s73, s73, s71", f"s_add_u32 s73, s73, {WS_HST - 256}",
        f"s_cmp_ge_u32 s{sW}, 2", f"s_cselect_b32 s73, s73, {OOB>>1:#x}"))
    out.append(lambda: k.e(f"s_lshl_b32 s70, s{sB}, 3", f"s_add_u32 s70, s70, s{sCS}", "s_lshl_b32 s70, s70, 1", f"s_add_u32 s70, s70, s{sW}", "s_lshl_b32 s70, s70, 7",
        f"s_add_u32 s70, s70, {WS_HXF - 256}", f"s_cmp_ge_u32 s{sW}, 2", f"s_cselect_b32 s91, s70, {OOB>>1:#x}"))
    return out

def a11_x(k, tile):
    fns = []
    for i in range(4):
        def f(i=i):
            k.set_m0(f"s_add_u32 m0, s49, {L_X + A11_POS[tile]*16384}")
            k.e(f"s_add_u32 s32, s{48 if tile == 'h' else 47}, s{92+i}")
            if tile not in (0, "h"): k.e(f"s_add_u32 s32, s32, {tile*16384}")
            k.vm(f"buffer_load_dwordx4 v{vL16}, {SRD_WS}, s32 offen offset:{i*1024} sc1 lds", ("x", tile))
        fns.append(f)
    return fns

def stats_path(k, fx, S, tag, addr, tok, at=0):
    a = lambda txt, c=1: fx.add(lambda: k.e(txt), c)
    s, q = S, S + 1
    fx.add(lambda: k.wait(vm=[tag]), 1, at)
    a(f"v_add_f32 v{s}, v{s}, v{S+2}"); a(f"v_add_f32 v{q}, v{q}, v{S+3}"); fx.skip(1)
    a(f"v_permlane16_swap_b32 v{s}, v{q}", 2); a(f"v_add_f32 v{s}, v{s}, v{q}"); a(f"v_mov_b32 v{q}, v{s}"); fx.skip(1)
    a(f"v_permlane32_swap_b32 v{s}, v{q}", 2); a(f"v_add_f32 v{s}, v{s}, v{q}"); a(f"v_mov_b32 v{q}, v{s}"); fx.skip(1)
    a(f"v_permlane16_swap_b32 v{s}, v{q}", 2)
    ln_finish(a, s, q); a(f"v_rsq_f32 v{q}, v{q}", 2); fx.skip(1)
    fx.add(lambda: (k.ds(f"ds_write_b64 v{addr}, {vr(s,2)} offset:{tok*8}", ("saw", tag)), k.mark(("saw", tag))))

def a11_early(k):
    k.vm(f"buffer_load_dwordx4 {vr(A_ST,4)}, v{A_U}, {SRD_WS}, s90 offen offset:2048 sc1", "st0")
    for t in A11_ORDER[:2]:
        for f in a11_x(k, t): f()

def a11_main(k):
    R = R1; order = A11_ORDER
    steps = [(t, s) for t in order for s in range(16)]
    accof = lambda t: A_ACC + 12 * (order.index(t) % 3)
    def xread(i):
        t, s = steps[i]
        off = A11_POS[t] * 16384 + (s >> 1) * 1024
        k.ds(f"ds_read_b128 {vr(A_XF+4*(i%4),4)}, v{R.XO if s&1 else R.XE} offset:{off}", ("xf", i))
    mains = []; fixed = {}; gap_of = {}
    need_sa = {order[1]: ["st0"], order[2]: ["st1"], order[3]: [], "h": []}
    for i, (t, s) in enumerate(steps):
        acc = accof(t); xf = vr(A_XF + 4*(i % 4), 4)
        c = lambda r, s=s: "0" if s == 0 else vr(r, 4)
        ms = []
        if t != "h": ms.append(f"{MF16} {vr(acc,4)}, {ar(12*s,4)}, {xf}, {c(acc)}")
        ms.append(f"{MF16} {vr(acc+4,4)}, {ar(12*s+4,4)}, {xf}, {c(acc+4)}")
        ms.append(f"{MF16} {vr(acc+8,4)}, {xf}, {ar(12*s+8,4)}, {c(acc+8)}")
        gap_of[(t, s)] = len(mains)
        for m in ms: mains.append(lambda m=m: k.e(m))
        last = len(mains) - 1
        fl_ = fixed.setdefault(last, [])
        if i + 1 < len(steps): fl_.append((0, lambda i=i: k.wait(lg=[("xf", i + 1)])))
        j = i + 4
        if j < len(steps):
            tj, sj = steps[j]
            if sj == 0:
                def bar(tj=tj):
                    k.wait(vm=[("x", tj)], lg=[("saw", n) for n in need_sa[tj]]); k.e("s_barrier"); k.mark(("bar", tj))
                fixed.setdefault(gap_of[(t, s)], []).append((1, bar))
            fixed[last].append((1, lambda j=j: xread(j)))
    fx = Flex(); fz = Flex(); fz2 = Flex(); fy = Flex(); fm = Flex()
    k.e(f"s_and_b32 s32, s{sW}, 1", "s_lshl_b32 s32, s32, 7", f"v_add_u32 v7, s32, v{R.SA}")
    o_bases(k, 1)
    stats_path(k, fy, A_ST, "st0", 7, 48)
    g1 = P.a1_late_gap
    fm.add(lambda: (k.wait(vm=[("xst", 1)]), k.flag(2)), 3, P.a1_flag_gap)
    fm.add(lambda: k.poll_issue(A_PX, "px2"), 1, g1 - P.a1_poll_lead)
    fm.add(lambda: k.poll_check(A_PX, "px2", 2), 2, g1)
    fm.add(lambda: k.vm(f"buffer_load_dwordx4 {vr(56,4)}, v{A_U}, {SRD_WS}, s90 offen sc1", "st1"))
    for t in order[2:4]:
        for f in a11_x(k, t): fm.add(f, 2); fm.skip(P.a1_xgap)
    def halo_poll():
        k.poll_addr(A_PX, 16, 7)
        k.e(f"s_mov_b32 s{sPO}, s52", f"s_min_u32 s50, s{sB}, 1")
        k.poll_issue(A_PX, "phx"); k.bg_held = False
    fm.add(halo_poll, 3)
    if P.touch1:
        fm.add(lambda: k.touch(60, "p", ["s_mov_b32 s32, s53"]), 6)
        fm.add(lambda: k.touch(62, "p", [f"s_add_u32 s32, s55, {BX1[1]}"]), 6)
        fm.add(lambda: k.touch(64, "s", [f"s_add_u32 s32, s56, {BS1[1]}"]), 4)
        if P.touch1 > 1: fm.add(lambda: k.touch(66, "h", h_base("s32", 1)), 6)
    stats_path(k, fy, 56, "st1", 7, 16, g1 + 26)
    fm.dep(("bar", order[2]))
    fm.add(lambda: k.poll_check(A_PX, "phx", "s50"), 2)
    fm.add(lambda: k.vm(f"buffer_load_dwordx4 {vr(A_ST,4)}, v{A_U+1}, {SRD_WS}, s51 offen sc1", "sth"))
    for f in a11_x(k, "h"): fm.add(f, 2); fm.skip(P.a1_xgap)
    stats_path(k, fy, A_ST, "sth", R.SA, 0, gap_of[(order[3], P.a1_sth)])
    k.per = dict(P.per_a1); k.bg_held = True
    mix = []
    for b in range(5): mix += [(f, "s2", ("gw", b), None) for f in batch(k, b)]
    ww = [(f, "s4", "wow", None) for f in k.wow_rest]
    while mix or ww:
        if ww: k.bg.append(ww.pop(0))
        if mix: k.bg.append(mix.pop(0))
    b5 = batch(k, 5)
    bg_list(k, b5[:3], "s2", ("gw", 5))
    bg_batches(k, [6], "s2", lambda b: ("bar", order[3]))
    bg_batches(k, [7], "s2", lambda b: ("bar", "h"))
    bg_list(k, b5[3:], "s2", ("gw", 5), "wobar")
    A = lambda t: (accof(t) if t != "h" else None, accof(t) + 4, accof(t) + 8)
    for n in range(4): fix(k, R, fx, order[n], A(order[n]), gap_of[(order[n + 1], 1 if n < 3 else 2)], False)
    attn(k, R, fz, 3, R.ATT[0]); attn(k, R, fz2, 2, R.ATT[1]); ostore(k, fz2, 1)
    attn(k, R, fz, 1, R.ATT[0])
    fx.dep("gemm_done"); fx.dep(("saw", "sth")); fx.add(lambda: k.wait(lg=[("saw", "sth")]))
    fix(k, R, fx, "h", A("h"), 0, False); attn(k, R, fz2, 0, R.ATT[1]); ostore(k, fz2, 0)
    f3 = Flex(); f3.dep(("ost", 1)); f3.skip(P.l1_flag_delay)
    f3.add(lambda: (k.wait(vm=[("ost", 1)]), k.flag(1, 89), k.mark("oflag1")), 3)
    f3.dep(("attn", 0)); f3.add(lambda: wo_prepoll(k, 1))
    k.wait(vm=[("x", order[0])]); k.e("s_barrier")
    for i in range(4): xread(i)
    k.wait(lg=[("xf", 0)])
    k.stamp("a1 first")
    if k.stamping:
        for t in order[1:]: fixed.setdefault(gap_of[(t, 0)], []).append((0, lambda t=t: k.stamp(f"a1 t{t}")))
    run_gaps(k, mains, fixed, [fm, f3, fy, fx, fz2, fz], 2, over=lambda i: i >= P.a1_over)
    print("a11 left:", len(fm), len(fy), len(fx), len(fz), len(fz2), len(k.bg), {n: g for n, g in k.marks.items() if isinstance(n, tuple) and n[0] in ("fix", "attn", "saw", "ost")})
    k.mark("gemm_done")
    k.stamp("a1 gemm")
    drain([fm, fy, fx, fz, fz2, f3], k)
    for n in range(2): assert k.marks[("fix", order[n])] < gap_of[(order[n + 3], 0)], "accumulator reused too early"
    k.stamp("a1 end")
P.a1_flag_gap, P.a1_late_gap, P.a1_poll_lead, P.l1_flag_delay, P.a1_over = 8, 36, 18, 22, 96
P.touch1 = 1; P.a1_xgap = 3; P.a1_sth = 4
P.per_a1 = {"s2": 95, "s4": 60}

R_W0, R_W1, R_RD, R_ST, R_OUT = 3, 4, 5, 6, 7
def red_setup(k, posA, dAB):
    x, y, z, u = 28, 29, 30, 31
    k.e(f"s_add_u32 s32, s{sGL}, {posA*16384}", f"v_add_u32 v{R_W0}, s32, v{vL16}", f"v_xor_b32 v{R_W1}, 128, v{R_W0}")
    k.e(f"v_and_b32 v{x}, 7, v1", f"v_lshrrev_b32 v{y}, 3, v1", f"s_lshl_b32 s32, s{sW}, 7", f"v_lshl_add_u32 v{z}, v{x}, 4, s32",
        f"v_bfe_u32 v{u}, v1, 4, 1", f"v_lshlrev_b32 v{R_RD}, 7, v{u}", f"v_xor_b32 v{z}, v{z}, v{R_RD}",
        f"v_bfe_u32 v{R_RD}, v1, 3, 2", f"v_lshl_add_u32 v{z}, v{R_RD}, 10, v{z}", f"v_lshrrev_b32 v{R_RD}, 5, v1",
        f"v_mul_u32_u24 v{R_RD}, {dAB*16384}, v{R_RD}", f"v_add_u32 v{z}, v{z}, v{R_RD}", f"v_add_u32 v{R_RD}, {posA*16384}, v{z}")
    k.e(f"v_lshlrev_b32 v{z}, 4, v{x}", f"v_lshl_add_u32 v{z}, v{u}, 2, v{z}", f"v_and_b32 v{u}, 0x28, v1",
        f"v_cmp_eq_u32 vcc, 0, v{u}", f"v_mov_b32 v{u}, {OOB:#x}", f"v_cndmask_b32 v{R_ST}, v{u}, v{z}, vcc")
    k.e(f"v_lshlrev_b32 v{z}, 10, v{x}", f"v_lshl_add_u32 v{R_OUT}, v{y}, 4, v{z}")

def red_bases(k):
    k.e(f"s_lshl_b32 s32, s{sB}, 3", f"s_add_u32 s32, s32, s{sW}", "s_lshl_b32 s55, s32, 13", f"s_lshl_b32 s33, s{sCS}, 10", "s_add_u32 s55, s55, s33")
    k.e("s_lshl_b32 s57, s32, 13", f"s_lshl_b32 s33, s{sCS}, 7", "s_add_u32 s57, s57, s33")
    k.e(f"s_lshl_b32 s56, s{sB}, 12", f"s_lshr_b32 s33, s{sCS}, 1", "s_lshl_b32 s33, s33, 9", "s_add_u32 s56, s56, s33",
        f"s_and_b32 s33, s{sCS}, 1", "s_lshl_b32 s33, s33, 3", "s_add_u32 s56, s56, s33", f"s_lshl_b32 s33, s{sW}, 7", "s_add_u32 s56, s56, s33")

def red_writes(k, acc, g, off, dAB):
    return [lambda q=q: k.ds(f"ds_write_b128 v{R_W1 if (q>>1)&1 else R_W0}, {vr(acc+4*q,4)} offset:{off + (q>>2)*dAB*16384 + (q&3)*1024}", ("rw", g)) for q in range(8)]
def red_reads(k, g, T, off):
    return [lambda w=w, hf=hf: k.ds(f"ds_read_b128 {vr(T+8*w+4*hf,4)}, v{R_RD} offset:{off + w*4096 + hf*512}", ("rr", g, w)) for w in range(4) for hf in range(2)]

def red_finish(k, fx, g, mm, T, xdst, stdst, final, pk):
    a = lambda txt, c=1: fx.add(lambda: k.e(txt), c)
    R = RES + 4 * mm
    def add8(d, s):
        if pk:
            for i in range(0, 8, 2): a(f"v_pk_add_f32 {vr(d+i,2)}, {vr(d+i,2)}, {vr(s+i,2)}")
        else:
            for i in range(8): a(f"v_add_f32 v{d+i}, v{d+i}, v{s+i}")
    fx.add(lambda: k.wait(lg=[("rr", g, 1)]))
    add8(T, T + 8)
    for i in range(4): a(f"v_lshlrev_b32 v{T+8+2*i}, 16, v{R+i}"); a(f"v_and_b32 v{T+9+2*i}, 0xffff0000, v{R+i}")
    add8(T, T + 8)
    fx.add(lambda: k.wait(lg=[("rr", g, 3)]))
    add8(T + 16, T + 24); add8(T, T + 16)
    for i in range(4): a(f"v_cvt_pk_bf16_f32 v{R+i}, v{T+2*i}, v{T+2*i+1}")
    if final:
        fx.add(lambda: (k.e(f"s_add_u32 s32, s57, {mm*32768}"), k.vm(f"buffer_store_dwordx4 {vr(R,4)}, v{R_OUT}, {SRD_OUT}, s32 offen", ("xst", g))))
        return
    fx.add(lambda: (k.e(f"s_add_u32 s32, s55, {xdst + mm*32768}"), k.dstore(f"buffer_store_dwordx4 {vr(R,4)}, v{vL16}, {SRD_WS}, s32 offen", ("xst", g))), 2)
    s, q = T + 32, T + 33
    a(f"v_add_f32 v{s}, v{T}, v{T+1}"); a(f"v_mul_f32 v{q}, v{T}, v{T}"); a(f"v_fmac_f32 v{q}, v{T+1}, v{T+1}")
    for i in range(2, 8): a(f"v_add_f32 v{s}, v{s}, v{T+i}"); a(f"v_fmac_f32 v{q}, v{T+i}, v{T+i}")
    fx.skip(1)
    a(f"v_add_f32_dpp v{s}, v{s}, v{s} row_ror:8 row_mask:0xf bank_mask:0xf"); a(f"v_add_f32_dpp v{q}, v{q}, v{q} row_ror:8 row_mask:0xf bank_mask:0xf")
    fx.skip(1)
    a(f"v_permlane16_swap_b32 v{s}, v{q}", 2); a(f"v_add_f32 v{s}, v{s}, v{q}"); a(f"v_mov_b32 v{q}, v{s}"); fx.skip(1)
    a(f"v_permlane32_swap_b32 v{s}, v{q}", 2); a(f"v_add_f32 v{s}, v{s}, v{q}")
    fx.add(lambda: (k.e(f"s_add_u32 s32, s56, {stdst + mm*2048}"), k.dstore(f"buffer_store_dword v{s}, v{R_ST}, {SRD_WS}, s32 offen", ("xst", g)), k.mark(("xst", g))), 2)

def merge(k, fx, extra, first=0):
    extra = list(extra)
    items = [it for it in fx.items if it[0] != "skip"]; fx.items = []
    per = max(1, (len(items) - first) // max(1, len(extra)))
    for n, it in enumerate(items):
        if n >= first and (n - first) % per == 0 and extra: extra.pop(0)()
        it[1](); k.bg_step()
    for f in extra: f(); k.bg_step()

def wo(k, layer):
    BF, ACC, T, PA = 32, 96, 160, A_PA
    groups = [1, 0]
    def bload(g, kk):
        if kk % 4 == 0: k.e(f"s_add_u32 s58, s59, {groups[g]*32768 + kk*1024}")
        k.vm(f"buffer_load_dwordx4 {vr(BF+32*g+4*kk,4)}, v{vL16}, {SRD_WS}, s58 offen offset:{(kk%4)*1024} sc1", ("b", g, kk))
    k.poll_check(PA, "po1", 1)
    k.stamp("wo early")
    for kk in range(8): bload(0, kk)
    red_setup(k, 8, 1)
    k.e(f"s_add_u32 s{sFO}, s89, {FL_X1 - FL_O}")
    k.wait(vm=[("ost", 0)]); k.flag(2, 89)
    def gemm(g):
        mains = []; fixed = {}
        for kk in range(8):
            for nn in range(2):
                acc = ACC + 32 * g + 16 * nn
                mains.append(lambda kk=kk, nn=nn, acc=acc: k.e(f"{MF32} {vr(acc,16)}, {ar(192+8*kk+4*nn,4)}, {vr(BF+32*g+4*kk,4)}, {'0' if kk == 0 else vr(acc,16)}"))
            if kk < 7: fixed.setdefault(len(mains) - 1, []).append((0, lambda kk=kk: k.wait(vm=[("b", g, kk + 1)])))
        return mains, fixed
    fm = Flex()
    fm.add(lambda: k.poll_issue(PA, "po2"), 1, P.wo_poll_gap)
    fm.add(lambda: (k.poll_check(PA, "po2", 2), k.stamp("wo late")), 2, P.wo_late_gap)
    for kk in range(8): fm.add(lambda kk=kk: bload(1, kk), 2)
    k.wait(vm=["wow", "res", ("b", 0, 0)])
    k.stamp("wo first")
    mains, fixed = gemm(0)
    run_gaps(k, mains, fixed, [fm], 6)
    drain([fm], k)
    k.stamp("wo g0")
    k.per = dict(P.per_wo[layer]); k.bg_held = False
    bg_list(k, dna(k), "s4", "dna", "wogemm")
    bg_batches(k, [8, 9], "s2", lambda b: "wodone")
    f0 = Flex()
    mains, fixed = gemm(1)
    if P.wo_var == "A":
        for f in red_writes(k, ACC, 0, 0, 1): f(); k.bg_step()
        k.wait(lg=[("rw", 0)]); k.e("s_barrier"); k.mark("wobar")
        for f in red_reads(k, 0, T, 0): f()
        red_finish(k, f0, 0, groups[0], T, BX1[layer], BS1[layer], False, False)
        fixed.setdefault(6, []).append((2, lambda: (k.wait(lg=[("rr", 0, 3)]), k.e("s_barrier"))))
        k.wait(vm=[("b", 1, 0)])
        run_gaps(k, mains, fixed, [f0], 6)
        k.mark("wogemm")
    else:
        wr = red_writes(k, ACC, 0, 0, 1)
        k.e("s_nop 7")
        for f in wr[:P.wo_prew]: f()
        for q, f in enumerate(wr[P.wo_prew:]): f0.add(f, 1, 2*q)
        k.wait(vm=[("b", 1, 0)])
        run_gaps(k, mains, fixed, [f0], 6)
        drain([f0], k)
        k.mark("wogemm")
        k.wait(lg=[("rw", 0)]); k.e("s_barrier"); k.mark("wobar")
        for f in red_reads(k, 0, T, 0): f()
        k.bg_step()
        k.wait(lg=[("rr", 0, 3)]); k.e("s_barrier")
        red_finish(k, f0, 0, groups[0], T, BX1[layer], BS1[layer], False, True)
    k.stamp("wo g1")
    merge(k, f0, red_writes(k, ACC + 32, 1, 0, 1))
    k.wait(lg=[("rw", 1)]); k.e("s_barrier")
    k.stamp("wo red")
    k.bg_held = P.wo_hold
    for f in red_reads(k, 1, T, 0): f()
    f1 = Flex(); red_finish(k, f1, 1, groups[1], T, BX1[layer], BS1[layer], False, True); drain([f1], k)
    k.e("s_barrier"); k.mark("wodone")
    key = lambda it: it[2][1] if isinstance(it[2], tuple) else 11.5
    k.bg.sort(key=key)
    print(f"wo{layer} done, background left:", [it[2] for it in k.bg][::4])
    k.bg_burst(P.wo_win[layer]); k.bg_held = True
    k.stamp("wo end")
P.wo_poll_gap = 1; P.wo_late_gap = 7; P.wo_hold = True; P.wo_win = [4, 4]; P.wo_var = 'B'; P.wo_prew = 2
P.per_wo = [{"s2": 70, "s4": 50}] * 2

G_RB, G_C1, G_VV, G_AUG, G_X, G_ACC, G_WF, G_T = 3, 6, 7, 28, 32, 160, 224, 240
D_WV, D_BF, D_ACC, D_T, D_WF, D_RB, D_PA = 32, 64, 128, 192, 228, 112, 115
def gu(k, layer):
    T = G_T; XA = T + 3; PA = T + 2
    k.e(f"s_lshl_b32 s32, s{sC}, 2", f"s_add_u32 s50, s32, s{sW}")
    k.poll_addr(PA, 32)
    k.e(f"v_and_b32 v{T}, 31, v1", "s_lshr_b32 s32, s50, 1", "s_lshl_b32 s32, s32, 7", f"s_add_u32 s{sPO}, s32, {fl(layer, FL_X1)}")
    k.e(f"v_mov_b32 v{G_RB}, v{vL16}", f"v_add_u32 v{G_RB+1}, 0x10000, v{vL16}", f"v_add_u32 v{G_RB+2}, 0x20000, v{vL16}")
    k.e(f"v_lshrrev_b32 v{T+1}, 5, v1", f"v_lshlrev_b32 v{G_AUG+3}, 4, v{T}", f"v_lshl_add_u32 v{G_AUG+3}, v{T+1}, 10, v{G_AUG+3}")
    k.e(f"v_lshrrev_b32 v{XA}, 3, v{T}", f"v_lshlrev_b32 v{XA}, 13, v{XA}", f"v_lshl_add_u32 v{XA}, v{T+1}, 7, v{XA}",
        f"v_and_b32 v{T}, 7, v1", f"v_lshl_add_u32 v{XA}, v{T}, 4, v{XA}")
    k.e("s_lshl_b32 s32, s50, 11", f"s_add_u32 s51, s32, {BS1[layer]}")
    k.e("s_lshl_b32 s32, s50, 15", f"s_add_u32 s52, s32, {BX1[layer]}", "s_add_u32 s53, s52, 4096")
    k.e(*h_base("s54", layer))
    k.wait(vm=[("xst", 1)]); k.flag(1)
    k.stamp("x1 flag")
    k.poll_issue(PA, "px1")
    k.e(f"s_lshl_b32 s32, s{sC}, 1", f"s_lshr_b32 s33, s{sW}, 1", "s_add_u32 s32, s32, s33", "s_lshl_b32 s32, s32, 4", f"s_add_u32 s32, s32, s{sM}",
        "s_lshl_b32 s32, s32, 1", f"s_and_b32 s33, s{sW}, 1", "s_add_u32 s32, s32, s33", "s_lshl_b32 s32, s32, 2", f"s_add_u32 s{sFO}, s32, {fl(layer, FL_H)}")
    seq = [(t, ks) for ks in range(33) for t in range(3)] + [(t, ks) for t in range(3, 7) for ks in range(33)]
    accof = {0: 0, 1: 1, 2: 2, 3: 3, 4: 0, 5: 1, 6: 2}
    NW = P.gu_nw
    WQ = [G_WF, G_WF + 4, G_WF + 8, G_WF + 12, T + 12]
    def wread(n):
        slot = (n % 160) * 1024
        k.ds(f"ds_read_b128 {vr(WQ[n%NW],4)}, v{G_RB + (slot>>16)} offset:{slot & 0xffff}", ("wf", n))
    k.wait(vm=[("gw", 0)]); k.e("s_barrier")
    for n in range(NW): wread(n)
    k.poll_check(PA, "px1", 1)
    k.stamp("gu go")
    def xload(kg): k.vm(f"buffer_load_dwordx4 {vr(G_X+4*kg,4)}, v{XA}, {SRD_WS}, s{52 + (kg>>4)} offen offset:{((kg>>2)&3)*1024 + (kg&3)*256} sc1", ("gx", kg))
    for kg in range(P.gu_lead): xload(kg)
    k.vm(f"buffer_load_dwordx4 {vr(T+4,4)}, v{G_AUG+3}, {SRD_WS}, s51 offen sc1", "gst")
    k.vm(f"buffer_load_dwordx4 {vr(T+8,4)}, v{G_AUG+3}, {SRD_WS}, s51 offen offset:512 sc1", "gst")
    mains = []; fixed = {}
    xpos = {}
    for kg in range(P.gu_lead, 32): xpos.setdefault(int((kg - P.gu_lead) * P.gu_xstep), []).append(kg)
    for n, (t, ks) in enumerate(seq):
        acc = G_ACC + 16 * accof[t]
        b = vr(G_AUG, 4) if ks == 32 else vr(G_X + 4*ks, 4)
        c = "0" if ks == 0 else vr(acc, 16)
        mains.append(lambda n=n, acc=acc, b=b, c=c: k.e(f"{MF32} {vr(acc,16)}, {vr(WQ[n%NW],4)}, {b}, {c}"))
        fl_ = fixed.setdefault(n, [])
        if n + 1 < len(seq):
            t2, ks2 = seq[n + 1]
            need = [("gx", ks2)] if (t2 == 0 and ks2 < 32) else None
            fl_.append((0, lambda n=n, need=need: k.wait(vm=need, lg=[("wf", n + 1)])))
        j = n + NW
        if j < len(seq):
            if j % 16 == 0:
                fl_.append((2, lambda bi=j//16: (k.wait(vm=[("gw", bi)]), k.e("s_barrier" if not P.x_nobar else "s_nop 0"), k.mark(("gbar", bi)))))
            fl_.append((1, lambda j=j: wread(j)))
        for kg in xpos.get(n, []): fl_.append((1, lambda kg=kg: xload(kg)))
    xend = max(xpos)
    tail = [it for it in k.bg if it[2] == "dna"]; k.bg = [it for it in k.bg if it[2] != "dna"]
    bg_batches(k, [10, 11], "s2", lambda b: ("gbar", b - 8))
    mid = []
    for b in (12, 13, 14):
        for f in batch(k, b): mid.append((f, "s2", ("gw", b), ("gbar", b - 8)))
    while mid or tail:
        if mid: k.bg.append(mid.pop(0))
        if tail: k.bg.append(tail.pop(0))
    bg_batches(k, range(15, 23), "s4", lambda b: ("gbar", b - 8))
    k.per = dict(P.per_guA[layer]); k.bg_held = False; k.bg_next = k.t + P.gu_bg_delay
    fixed[xend].append((0, lambda: setattr(k, "per", dict(P.per_guB[layer]))))
    fv = Flex()
    for j, f in enumerate(regloads(k, sDS, 48*1024, lambda j: vr(D_WV + 4*j, 4), 8, "dnv", tmp=50)): fv.add(f, 1, 198 + 2 + 3*j)
    fx = Flex()
    a = lambda txt, c=1, at=0: fx.add(lambda: k.e(txt), c, at)
    fx.add(lambda: k.wait(vm=["gst"]), 1, 3 * P.gu_lead)
    a(f"v_add_f32 v{T+4}, v{T+4}, v{T+6}"); a(f"v_add_f32 v{T+5}, v{T+5}, v{T+7}"); a(f"v_add_f32 v{T+8}, v{T+8}, v{T+10}"); a(f"v_add_f32 v{T+9}, v{T+9}, v{T+11}")
    a(f"v_add_f32 v{T+4}, v{T+4}, v{T+8}"); a(f"v_add_f32 v{T+5}, v{T+5}, v{T+9}"); fx.skip(1)
    a(f"v_permlane32_swap_b32 v{T+4}, v{T+5}", 2); a(f"v_add_f32 v{T+4}, v{T+4}, v{T+5}"); a(f"v_mov_b32 v{T+5}, v{T+4}"); fx.skip(1)
    a(f"v_permlane32_swap_b32 v{T+4}, v{T+5}", 2)
    ln_finish(a, T + 4, T + 5)
    a(f"v_mov_b32 v{G_VV}, v{T+5}")
    a(f"v_rsq_f32 v{G_C1}, v{T+5}", 2); a(f"v_cvt_pk_bf16_f32 v{G_AUG}, v{T+4}, v{T+4}"); a(f"v_mul_f32 v{G_C1}, {f2u(-LOG2E):#x}, v{G_C1}")
    a(f"v_and_b32 v{T+5}, 0xffff0000, v{G_AUG}"); a(f"v_sub_f32 v{T+5}, v{T+4}, v{T+5}"); a(f"v_mov_b32 v{G_AUG+2}, 0")
    a(f"v_cvt_pk_bf16_f32 v{G_AUG+1}, v{T+5}, v{G_AUG+2}"); a(f"v_mov_b32 v{G_AUG+3}, 0")
    fx.add(lambda: k.mark("aug"), 0)
    def epi(t, at):
        acc = G_ACC + 16 * accof[t]; hp = T + 8; E = T + 4
        if P.x_noepi: a("s_nop 0", 1, at)
        for i0 in range(0, 8 if not P.x_noepi else 0, 2):
            for i in (i0, i0 + 1): a(f"v_mul_f32 v{E+(i&1)}, v{G_C1}, v{acc+i}", 1, at)
            for i in (i0, i0 + 1): a(f"v_exp_f32 v{E+(i&1)}, v{E+(i&1)}", 2)
            for i in (i0, i0 + 1): a(f"v_mul_f32 v{E+2+(i&1)}, v{acc+i}, v{acc+8+i}")
            for i in (i0, i0 + 1): a(f"v_fma_f32 v{E+(i&1)}, v{E+(i&1)}, v{G_VV}, v{G_VV}")
            for i in (i0, i0 + 1): a(f"v_rcp_f32 v{E+(i&1)}, v{E+(i&1)}", 2)
            fx.skip(1)
            for i in (i0, i0 + 1): a(f"v_mul_f32 v{E+2+(i&1)}, v{E+2+(i&1)}, v{E+(i&1)}")
            a(f"v_cvt_pk_bf16_f32 v{hp+i0//2}, v{E+2}, v{E+3}")
        fx.add(lambda: k.mark(("epi", t)), 0)
        if t == 4: a("s_add_u32 s54, s54, 4096")
        fx.add(lambda: (k.dstore(f"buffer_store_dwordx4 {vr(hp,4)}, v{vL16}, {SRD_WS}, s54 offen offset:{(t%4)*1024}", ("hst", t)), k.mark(("hst", t))), 2)
    end = {t: max(n for n, x in enumerate(seq) if x[0] == t) for t in range(7)}
    for t in range(6): epi(t, end[t] + 3)
    ff = Flex(); ff.dep(("hst", 3))
    if layer == 0:
        ff.add(lambda: k.touch(T, "p", [f"s_add_u32 s32, s55, {WS_X[1]}"]), 6)
        ff.add(lambda: k.touch(T + 2, "s", [f"s_add_u32 s32, s56, {WS_ST[1]}"]), 4)
    ff.skip(P.gu_flag_delay)
    ff.add(lambda: (k.wait(vm=[("hst", 3)]), k.flag(1)), 3)
    def hpoll():
        k.wait(vm=["touch"] if "touch" in k.seen else None)
        k.poll_addr(T, 8)
        k.e(f"s_lshl_b32 s32, s{sB}, 7", f"s_lshl_b32 s33, s{sW}, 5", "s_add_u32 s32, s32, s33", f"s_add_u32 s{sPO}, s32, {fl(layer, FL_H)}")
        k.poll_issue(T, "ph1")
    ff.add(hpoll, 4, 228)
    k.wait(vm=[("gx", 0)], lg=[("wf", 0)])
    k.stamp("gu first")
    if k.stamping:
        for g in (48, 98, 131, 164, 197): fixed[g].append((0, lambda g=g: k.stamp(f"gu m{g}")))
    fixed[93].append((0, lambda: k.marks["aug"]))
    run_gaps(k, mains, fixed, [fv, ff, fx], P.gu_cap)
    print("gu left:", len(k.bg), len(fv), len(ff), len(fx), {n: g for n, g in k.marks.items() if isinstance(n, tuple) and n[0] == "hst"})
    k.stamp("gu gemm")
    for g, t in {132: 0, 165: 1, 198: 2}.items(): assert k.marks[("epi", t)] < g, "accumulator reused too early"
    epi(6, 0); drain([ff, fv, fx], k)
    k.e(f"v_mov_b32 v{D_PA}, v{T}")
    k.stamp("gu end")
P.gu_flag_delay = 16; P.gu_xstep = 2.6; P.gu_bg_delay = 300
P.per_guA = [{"s2": 130, "s4": 130}, {"s2": 200, "s4": 200}]
P.per_guB = [{"s2": 80, "s4": 55}] * 2

def dn(k, layer):
    final = layer == 1
    NB = P.dn_lead; T = D_T
    groups = [1, 0]
    k.e(f"s_mul_i32 s32, s{sB}, {224*KB}", f"s_mul_i32 s33, s{sW}, {28*KB}", "s_add_u32 s32, s32, s33", f"s_add_u32 s59, s32, {BH[layer]}")
    seq = [(g, e) for g in range(2) for e in range(28)]
    state = {"base": None}
    def bload(i):
        g, e = seq[i]; off = groups[g] * 112 * KB + KK_OF[e] * 1024
        if state["base"] is None or not (0 <= off - state["base"] < 4096):
            state["base"] = off; k.e(f"s_add_u32 s58, s59, {off}")
        k.vm(f"buffer_load_dwordx4 {vr(D_BF+4*(i%NB),4)}, v{vL16}, {SRD_WS}, s58 offen offset:{off - state['base']} sc1", ("b", i))
    k.poll_check(D_PA, "ph1", 1)
    k.stamp("dn early")
    k.bg_held = True
    for i in range(P.dn_pre): bload(i)
    red_setup(k, 1, 1)
    k.e(f"v_add_u32 v{D_RB}, s{sGL}, v{vL16}", f"v_add_u32 v{D_RB+1}, 0x10000, v{D_RB}", f"v_add_u32 v{D_RB+2}, 0x20000, v{D_RB}")
    k.wait(vm=[("hst", 6)]); k.flag(2)
    k.poll_issue(D_PA, "ph2")
    for i in range(P.dn_pre, NB): bload(i)
    k.e(f"s_add_u32 s{sFO}, s89, {FL_X2 - FL_O}")
    k.per = dict(P.per_dn0); k.bg_held = False
    lds = [(i, nn) for i, (g, e) in enumerate(seq) if 8 <= e < 24 for nn in range(2)]
    slot_of = {x: n for n, x in enumerate(lds)}
    NWF = 6
    def wread(n):
        i, nn = lds[n]; j = 2 * (seq[i][1] - 8) + nn; b = 15 + (j >> 2)
        ad = (b % 10) * 16384 + (j & 3) * 1024
        if seq[i][0] == 0: k.wait(vm=[("gw", b)])
        k.ds(f"ds_read_b128 {vr(D_WF+4*(n%NWF),4)}, v{D_RB + (ad>>16)} offset:{ad & 0xffff}", ("wf", n))
    def wfrag(i, nn):
        e = seq[i][1]
        if e < 8: return ar(192 + 8*e + 4*nn, 4)
        if e >= 24: return vr(D_WV + 8*(e - 24) + 4*nn, 4)
        return vr(D_WF + 4*(slot_of[(i, nn)] % NWF), 4)
    mains = []; fixed = {}
    late = 16 - NB
    for i, (g, e) in enumerate(seq):
        for nn in range(2):
            acc = D_ACC + 32 * g + 16 * nn
            mains.append(lambda i=i, nn=nn, acc=acc, e=e: k.e(f"{MF32} {vr(acc,16)}, {wfrag(i,nn)}, {vr(D_BF+4*(i%NB),4)}, {'0' if e == 0 else vr(acc,16)}"))
            gp = len(mains) - 1; fl_ = fixed.setdefault(gp, [])
            nx = (i, 1) if nn == 0 else (i + 1, 0)
            vmn = [("b", i + 1)] if (nn == 1 and i + 1 < len(seq)) else None
            lgn = [("wf", slot_of[nx])] if nx in slot_of else None
            if nn == 1 and i + 1 == 24: vmn = vmn + ["dnv"]
            fl_.append((0, lambda vmn=vmn, lgn=lgn: k.wait(vm=vmn, lg=lgn)))
            ah = (i + 2, nn)
            if ah in slot_of: fl_.append((1, lambda n=slot_of[ah]: wread(n)))
    nxt = NB; pend = 0
    for i in range(len(seq)):
        fl_ = fixed[2*i + 1]
        if i == P.dn_late: fl_.append((2, lambda: (k.poll_check(D_PA, "ph2", 2), k.stamp("dn late"), k.mark("late"))))
        n = 0
        while nxt < len(seq) and nxt <= i + NB and n < 2 and (nxt < 16 or i >= P.dn_late):
            fl_.append((1, lambda j=nxt: bload(j))); nxt += 1; n += 1
        if nxt == len(seq) and not pend: pend = 2*i + 2
    fixed[20].append((1, lambda: k.e("s_barrier")))
    fw = Flex(); fs = Flex()
    for q, f in enumerate(red_writes(k, D_ACC, 0, 2*16384, 1)): fw.add(f, 1, 58 + 2*q)
    fw.add(lambda: (k.wait(lg=[("rw", 0)]), k.e("s_barrier")), 2, 76)
    for f in red_reads(k, 0, T, 2*16384): fw.add(f, 2)
    fw.skip(1)
    red_finish(k, fw, 0, groups[0], T, WS_X[1], WS_ST[1], final, False)
    if not final:
        fw.add(lambda: k.vm(f"buffer_store_dwordx4 {vr(RES+4,4)}, v{vL16}, {SRD_WS}, s72 offen sc1", "hxs"))
        fw.add(lambda: k.vm(f"buffer_store_dword v{T+32}, v{R_ST}, {SRD_WS}, s73 offen sc1", "hxs"))
        fw.skip(P.dn_flag_delay); fw.add(lambda: (k.wait(vm=[("xst", 0)]), k.flag(1)), 3)
        fs.dep("late")
        for f in a11_bases(k) + a1_setup(k, 1): fs.add(f)
        fs.add(lambda: (k.poll_addr(A_PX, 32), k.e(f"s_lshl_b32 s32, s{sB}, 7", f"s_add_u32 s{sPO}, s32, {fl(0, FL_X2)}")), 4)
        ww = wow(k); bg_list(k, ww[:P.dn_wow], "s4", "wow", "wowok"); k.wow_rest = ww[P.dn_wow:]
        fixed[max(pend, 2*36)].append((0, lambda: (k.mark("wowok"), setattr(k, "per", dict(P.per_dn)))))
    k.wait(vm=["dna", ("b", 0)])
    k.stamp("dn first")
    if k.stamping: fixed[55].append((0, lambda: k.stamp("dn p1")))
    run_gaps(k, mains, fixed, [fw, fs], 6)
    print("dn left:", len(k.bg), len(fw), len(fs), "last h load at gap", pend)
    k.stamp("dn gemm")
    assert not fs.items
    ws = red_writes(k, D_ACC + 32, 1, 0, 1)
    if not final: ws.insert(4, lambda: k.poll_issue(A_PX, "px0"))
    merge(k, fw, ws)
    k.wait(lg=[("rw", 1)]); k.e("s_barrier")
    k.stamp("dn red")
    for f in red_reads(k, 1, T, 0): f()
    if not final:
        k.bg_held = True
        k.poll_check(A_PX, "px0", 1)
        k.wait(vm=["hxs"]); k.flag(1, 91, "sc1")
        a11_early(k)
    f1 = Flex(); red_finish(k, f1, 1, groups[1], T, WS_X[1], WS_ST[1], final, True); drain([f1], k)
    k.stamp("dn end")
P.dn_flag_delay = 4; P.dn_pre = 8; P.dn_late = 7
P.dn_wow = 6; P.per_dn = {"s4": 110, "s2": 130}; P.per_dn0 = {"s4": 60, "s2": 60}

def build(stamps=False, only=None):
    k = F(); k.stamping = stamps; k.only = only; k.st = P.dst; k.rt = P.rt
    name = NAME + "_kernel"
    k.e(".p2align 8", f".globl {name}", f".type {name},@function"); k.label(name)
    if stamps: k.e("s_memrealtime s[92:93]", "s_memtime s[94:95]")
    k.e("s_cmp_ge_u32 s2, 256", "s_cbranch_scc1 L_end")
    k.e("s_load_dwordx16 s[64:79], s[0:1], 0", "s_load_dwordx4 s[80:83], s[0:1], 64", "s_memrealtime s[96:97]")
    k.e("s_getpc_b64 s[100:101]")
    k.e("L_pc: ;np")
    k.e("s_mov_b32 s24, s100", "s_mov_b32 s25, s101", "s_mov_b32 s26, L_end-L_pc", "s_mov_b32 s27, 0x20000",
        "v_and_b32 v1, 63, v0", "v_lshrrev_b32 v2, 6, v0", "s_lshr_b32 s33, s2, 3", "s_mul_i32 s32, s33, 43", "s_lshr_b32 s32, s32, 8",
        "s_mul_i32 s32, s32, 6", "s_sub_u32 s32, s33, s32", "s_lshl_b32 s32, s32, 13", "v_lshlrev_b32 v3, 11, v2", "v_lshl_add_u32 v3, v1, 7, v3",
        f"v_mov_b32 v4, {OOB:#x}", "v_cmp_gt_u32 vcc, 16, v1", f"v_readfirstlane_b32 s{sW}, v2", "v_cndmask_b32 v3, v4, v3, vcc")
    if P.code0: k.vm(f"buffer_load_dword v175, v3, {SRD_PK}, s32 offen", "code")
    k.e("s_and_b32 s32, s2, 7", f"s_and_b32 s{sM}, s33, 15", "s_lshr_b32 s33, s33, 4", "s_lshl_b32 s32, s32, 1", f"s_add_u32 s{sC}, s32, s33")
    k.e(f"s_lshr_b32 s33, s{sM}, 3", f"s_lshl_b32 s{sB}, s{sC}, 1", f"s_add_u32 s{sB}, s{sB}, s33", f"s_and_b32 s{sCS}, s{sM}, 7")
    k.e("v_lshlrev_b32 v2, 4, v1")
    a10_lanes(k)
    k.e("s_waitcnt lgkmcnt(0)")
    srd(k, 12, 64, 2048 * 1024); srd(k, 16, 66, 512 * 3072)
    k.e(f"s_or_b32 s{sTAG}, s96, 1")
    if stamps:
        k.stamps += ["rt0", "start"]; k.e("v_writelane_b32 v0, s92, 0", f"v_writelane_b32 v0, s{92 if P.rt else 94}, 1")
    k.stamp("s kernarg")
    run(a10_x(k, 0) + a10_w(k, 0))
    srd(k, 28, 80, 256)
    k.e("v_cmp_eq_u32 vcc, 0, v1", f"v_mov_b32 v{vFA}, {OOB:#x}", f"s_or_b32 s32, s2, s{sW}", f"v_cndmask_b32_e64 v{vFA}, v{vFA}, 0, vcc",
        "s_cmp_eq_u32 s32, 0", f"s_cselect_b32 s32, 0, {OOB>>1:#x}", f"v_mov_b32 v170, s{sTAG}")
    k.vm(f"buffer_store_dword v170, v{vFA}, {SRD_DBG}, s32 offen sc1", "tagst")
    srd(k, 8, 82, WS_SIZE); srd(k, 20, 78, 2048 * 1024)
    for f in a1_setup(k, 0): f()
    o_bases(k, 0)
    run(a10_w(k, 1))
    if P.tlb:
        k.e("v_lshlrev_b32 v174, 21, v1", f"v_mov_b32 v173, {OOB:#x}", "v_cmp_gt_u32 vcc, 17, v1", "s_nop 0", "v_cndmask_b32 v174, v173, v174, vcc")
        k.vm(f"buffer_load_dword v174, v174, {SRD_WS}, 0 offen", "tlb")
        k.e("v_cmp_eq_u32 vcc, 0, v1", "s_nop 1", "v_cndmask_b32_e64 v173, v173, 0, vcc")
        k.vm(f"buffer_load_dword v173, v173, {SRD_OUT}, 0 offen", "tlb")
    k.stamp("s w01")
    pack_issue(k)
    k.stamp("s pkissue")
    a10_lanes2(k)
    k.e(f"v_mov_b32 v60, {OOB:#x}", "v_cmp_gt_u32 vcc, 8, v1", "v_mov_b32 v176, 0", "v_mov_b32 v177, 0", "v_mov_b32 v178, 0", "v_mov_b32 v179, 0",
        f"v_cndmask_b32 v61, v60, v{vL16}, vcc", "s_lshl_b32 s32, s2, 7", "v_cmp_gt_u32 vcc, 16, v1")
    k.vm(f"buffer_store_dwordx4 v[176:179], v61, {SRD_WS}, s32 offen sc1", "zero")
    k.e(f"v_cndmask_b32 v172, v60, v{vL16}, vcc", "s_lshl_b32 s32, s2, 8", f"s_add_u32 s32, s32, {WS_HXF}")
    k.vm(f"buffer_store_dwordx4 v[176:179], v172, {SRD_WS}, s32 offen sc1", "zero")
    run(a10_x(k, 1) + a10_w(k, 2))
    k.e(f"s_getreg_b32 s{sXCC}, hwreg(HW_REG_XCC_ID, 0, 4)", f"s_lshl_b32 s32, s{sC}, 4", f"s_add_u32 s32, s32, s{sM}", "s_lshl_b32 s32, s32, 4",
        f"s_cmp_eq_u32 s{sW}, 0", f"s_cselect_b32 s32, s32, {OOB>>1:#x}", f"v_add_u32 v171, s32, v{vFA}", f"s_mov_b32 s{sBUD}, 100000",
        f"s_mov_b32 s75, {WS_ARR}", f"s_lshl_b32 s77, s{sC}, 8", "s_add_u32 s77, s77, s75")
    k.vm(f"buffer_load_dword v170, v{vFA}, {SRD_DBG}, 0 offen sc1", "tag")
    red_bases(k)
    k.e(f"s_lshl_b32 s{sGL}, s{sW}, 12", f"s_mul_i32 s{sGS}, s{sM}, {PGU_SLICE}", f"s_add_u32 s{sGS}, s{sGS}, s{sGL}", f"s_add_u32 s{sGS}, s{sGS}, {WS_PGU}")
    k.e(f"s_mul_i32 s32, s{sCS}, {224*KB}", f"s_mul_i32 s33, s{sW}, {56*KB}", "s_add_u32 s32, s32, s33", f"s_add_u32 s{sDS}, s32, {WS_PDN}")
    k.e(f"s_lshl_b32 s32, s{sCS}, 16", f"s_lshl_b32 s33, s{sW}, 14", "s_add_u32 s32, s32, s33", f"s_add_u32 s88, s32, {WS_PWO}")
    k.stamp("s setup")
    a10_loop(k, 3)
    a10_tail(k)
    wo(k, 0); gu(k, 0); dn(k, 0)
    if not P.half:
        k.marks = {m: g for m, g in k.marks.items() if m == "wowok"}
        k.seen = {t for t in k.seen if t in k.vmq or t in k.lgq or t in ("wow", "res", "st0", ("x", 2), ("x", 3))}
        a11_main(k)
        wo(k, 1)
        k.marks = {m: g for m, g in k.marks.items() if m in ("wobar", "wogemm", "wodone") or m[0] == "bar"}
        gu(k, 1); dn(k, 1)
    if P.verbose: print([(t, tag, f) for t, tag, f in k.bg_log if f])
    if stamps:
        k.e("s_waitcnt vmcnt(0)"); k.stamp("drained"); k.stamp("rt1", True)
        k.e("s_lshl_b32 s32, s2, 10", "s_lshl_b32 s33, s3, 8", "s_add_u32 s32, s32, s33",
            f"s_add_u32 s32, s32, {WS_STAMP}", "v_lshlrev_b32 v8, 2, v1", f"buffer_store_dword v0, v8, {SRD_WS}, s32 offen")
        if P.dbg:
            n = len(k.stamps)
            k.e("v_readlane_b32 s32, v0, 0", f"v_readlane_b32 s33, v0, {n-1}", "s_not_b32 s34, s32", "v_mov_b32 v4, s33", "v_mov_b32 v5, s34")
            k.e(f"buffer_atomic_umax v4, v{vFA}, {SRD_DBG}, 0 offen offset:4", f"buffer_atomic_umax v5, v{vFA}, {SRD_DBG}, 0 offen offset:8")
            k.e(f"s_cmp_eq_u32 s2, {P.dbg - 1}", f"s_cselect_b32 s35, 0, {OOB>>1:#x}", f"s_cmp_eq_u32 s{sW}, 0", f"s_cselect_b32 s35, s35, {OOB>>1:#x}")
            for i, wd in zip(range(2, n - 1), (3, 5, 6, 7, 9, 10, 11, 13, 14, 15)):
                k.e(f"v_readlane_b32 s33, v0, {i}", "s_sub_u32 s33, s33, s32", "v_mov_b32 v4, s33", f"buffer_store_dword v4, v{vFA}, {SRD_DBG}, s35 offen offset:{4*wd}")
    k.e("s_endpgm")
    k.flush_spins()
    k.label("L_end"); k.e("s_endpgm")
    src = open("cdna_kernels/%s.s.ref" % NAME).read().splitlines()
    out = [l for l in src if l.startswith(";") and "@launch" not in l]
    out.append(f"; @launch grid=(256,1,1) block=(256,1,1) lds={LDS_TOTAL}")
    out += ['.amdgcn_target "amdgcn-amd-amdhsa--gfx950"', ".text"]
    s = "\n".join(out) + "\n" + k.text(verbose=True) + '.section .rodata,"a"\n.p2align 6\n' + kd(name)
    if P.align:
        from align import align
        s = align(s)
    return s, k.stamps
P.x_nobar = 0; P.x_noepi = 0; P.rt = 1; P.dbg = 0; P.half = 0; P.tlb = 1; P.code0 = 1; P.verbose = 0; P.align = 1; P.gu_cap = 6; P.gu_nw = 5; P.k_touch = 12; P.k_gb = 13; P.k_chk = 16

if __name__ == "__main__":
    path = sys.argv[1] if len(sys.argv) > 1 else "cdna_kernels/%s.s" % NAME
    opts = sys.argv[2:]
    only = None
    for o in opts:
        if o.startswith("only="): only = [x for x in o[5:].split(",") if x]
        if o.startswith("P."):
            n, v = o[2:].split("="); setattr(P, n, eval(v))
    s, st = build(stamps="st" in opts, only=only)
    open(path, "w").write(s)
    if "st" in opts: json.dump([st], open(path + ".json", "w"))
```

```python
import sys, json
from common import *

MF16 = "v_mfma_f32_16x16x32_bf16"
MF16S = "v_mfma_f32_16x16x16_bf16"
MF32 = "v_mfma_f32_32x32x16_bf16"
vL16, vFV, vFA, vP = 2, 8, 9, 10
CSV, CSQ, CSK, RES = 11, 12, 16, 20
OOB = 0x80000000
FL_O, FL_X1, FL_H, FL_X2 = 0, 4096, 8192, 12288
FL_HX = 16384 + 12288
def fl(layer, off): return WS_FLAGS + 16384 * layer + off
sROT, sBUD, sGL, sGS, sDS = 84, 98, 60, 61, 85
sT0, sT1, sPO, sFO = 32, 33, 86, 87
sML, sMS = 68, 69
WS_HXF = WS_O0 - 0x10000 if False else WS_END
WS_ARR = WS_HXF + 0x10000
sTAG, sXCC = 91, 76
WS_STAMP = 0x2000000
L_SA0, L_SA1, L_XH0, L_CS = 80896, 97280, 81920, 79872
def e_of(kk):
    p, tl = divmod(kk, 7)
    return 4 * p + tl if tl < 4 else 16 + 3 * p + (tl - 4)
KK_OF = {e_of(kk): kk for kk in range(28)}

class P:
    a1_bg_start, a1_bg_step = 30, 6
    gu_lead = 7
    gu_bg_start, gu_bg_step = 50, 2.6
    dn_lead = 12
    bgm = ""
    sleep = 0
    drop = ()
    codepf = 0
    ld = "sc1"
    dst = "sc1"
    safe = False
    plain = True
    notouch = ()

BO, BX1, BS1, BH = [WS_O[0]] * 2, [WS_X[0]] * 2, [WS_ST[0]] * 2, [WS_H[0]] * 2
def o_line(layer):
    return [f"s_lshl_b32 s32, s{sB}, 16", f"s_lshl_b32 s33, s{sCS}, 2", f"s_add_u32 s33, s33, s{sW}", "s_lshl_b32 s33, s33, 10",
            "s_add_u32 s32, s32, s33", f"s_add_u32 s32, s32, {BO[layer]}"]
def touch_next(k, t):
    return [lambda: k.touch(t, "p", o_line(1)), lambda: k.touch(t + 1, "q", [f"s_add_u32 s32, s64, {BX1[1]}"]),
            lambda: k.touch(t + 2, "t", [f"s_add_u32 s32, s65, {BS1[1]}"])]
def gu_tile(d):
    return [f"s_lshl_b32 {d}, s{sC}, 1", f"s_and_b32 s33, s{sW}, 1", f"s_add_u32 {d}, {d}, s33", f"s_lshl_b32 {d}, {d}, 1", f"s_lshr_b32 s33, s{sW}, 1", f"s_add_u32 {d}, {d}, s33"]
def h_base(d, layer):
    return gu_tile(d) + [f"s_mul_i32 {d}, {d}, 112", f"s_mul_i32 s33, s{sM}, 7",
            f"s_add_u32 {d}, {d}, s33", f"s_lshl_b32 {d}, {d}, 10", f"s_add_u32 {d}, {d}, {BH[layer]}"]

class F(K):
    def __init__(self):
        super().__init__(); self.spins = []; self.nspin = 0; self.st = ""; self.npf = 0
    def poll_issue(self, va, tag): self.vm(f"buffer_load_dword v{vP}, v{va}, {SRD_WS}, s{sPO} offen sc1", tag)
    def poll_addr(self, va, nl, sh=2):
        self.e(f"v_cmp_gt_u32 vcc, {nl}, v1", f"v_lshlrev_b32 v{va}, {sh}, v1", f"v_mov_b32 v{vP}, {OOB:#x}", f"v_cndmask_b32 v{va}, v{vP}, v{va}, vcc")
        self.nl = nl
    def poll_check(self, va, tag, thr):
        n = self.nspin; self.nspin += 1
        self.stamp(f"poll<{tag}")
        self.wait(vm=[tag])
        self.stamp(f"poll={tag}")
        msk = f"s_and_b32 s99, vcc_lo, {(1 << self.nl) - 1:#x}"
        self.e(f"v_cmp_gt_u32 vcc, {thr}, v{vP}", msk, f"s_cbranch_scc1 L_spin{n} ;np", f"L_back{n}: ;np")
        self.stamp(f"poll>{tag}")
        self.spins += [f"L_spin{n}:", f"s_sub_u32 s{sBUD}, s{sBUD}, 1", f"s_cbranch_scc1 L_give{n}"] + ([f"s_sleep {P.sleep}"] if P.sleep else []) + [
                       f"buffer_load_dword v{vP}, v{va}, {SRD_WS}, s{sPO} offen sc1", "s_waitcnt vmcnt(0)",
                       f"v_cmp_gt_u32 vcc, {thr}, v{vP}", msk, f"s_cbranch_scc1 L_spin{n}", f"s_branch L_back{n}",
                       f"L_give{n}:", f"s_mov_b32 s{sBUD}, 0", f"s_branch L_back{n}"]
    def flag(self, val, soff=sFO, st=None):
        self.e(f"v_mov_b32 v{vFV}, {val}")
        if st is not None:
            self.vm(f"buffer_store_dword v{vFV}, v{vFA}, {SRD_WS}, s{soff} offen {st}", "flag"); return
        self.e(f"s_or_b32 s99, s{soff}, s{sML}")
        self.vm(f"buffer_store_dword v{vFV}, v{vFA}, {SRD_WS}, s99 offen", "flag")
        self.e(f"s_or_b32 s99, s{soff}, s{sMS}")
        self.vm(f"buffer_store_dword v{vFV}, v{vFA}, {SRD_WS}, s99 offen sc1", "flag")
    def dstore(self, text, tag):
        if not P.plain:
            self.vm(text + " sc1", tag); return
        n = self.nspin; self.nspin += 1
        self.e(f"s_cmp_lg_u32 s{sML}, 0", f"s_cbranch_scc1 L_alt{n} ;np")
        self.vm(text, tag)
        self.e(f"L_back{n}: ;np")
        self.spins += [f"L_alt{n}:", "s_nop 4", text + " sc1", f"s_branch L_back{n}"]
    def touch(self, tmp, kind, base_expr, masked=True):
        if not P.plain or kind in P.notouch: return
        nl = {"p": 16, "q": 16, "s": 2, "t": 2, "h": 56}[kind]
        self.e(f"v_cmp_gt_u32 vcc, {nl}, v1")
        if kind in "pq": self.e(f"v_lshrrev_b32 v{tmp}, 3, v1", f"v_lshlrev_b32 v{tmp}, {15 if kind == 'p' else 13}, v{tmp}", f"v_and_b32 v{vFV}, 7, v1", f"v_lshl_add_u32 v{tmp}, v{vFV}, 7, v{tmp}")
        else: self.e(f"v_lshlrev_b32 v{tmp}, {11 if kind == 's' else 7}, v1")
        self.e(f"v_mov_b32 v{vFV}, {OOB:#x}", *base_expr)
        self.e(f"v_cndmask_b32 v{tmp}, v{vFV}, v{tmp}, vcc")
        if masked: self.e(f"s_or_b32 s32, s32, s{sML}")
        self.vm(f"buffer_load_dword v{tmp}, v{tmp}, {SRD_WS}, s32 offen", "touch")
    def vm(self, text, tag=None):
        kind = tag[0] if isinstance(tag, tuple) else tag
        if kind in P.drop:
            self.seen.add(tag); return
        super().vm(text, tag)
    def codepf(self, tmpv, per=2048):
        if not P.codepf: return
        n = self.npf; self.npf += 1
        sh = (per // 64).bit_length() - 1
        self.e(f"L_pf{n}: ;np", f"s_mul_i32 s32, s{sW}, {per}", f"s_add_u32 s32, s32, L_pf{n}-L_pc", f"v_lshlrev_b32 v{tmpv}, {sh}, v1")
        raise NotImplementedError
    def flush_spins(self):
        for l in self.spins: self.e(l)
        self.spins = []

def batch(k, i):
    src = f"s_add_u32 s62, s{sGS}, {i*16384}" if i < 15 else f"s_add_u32 s62, s{sDS}, {(16 + 4*(i-15))*1024}"
    def f(q):
        k.set_m0(f"s_add_u32 m0, s{sGL}, {(i % 10)*16384}")
        if i != 14: k.set_s(src)
        elif k.last.get(62) != f"s_cselect_b32 s62, {OOB>>1:#x}, s62":
            k.e(src, f"s_cmp_ge_u32 s{sW}, 2", f"s_cselect_b32 s62, {OOB>>1:#x}, s62")
        k.vm(f"buffer_load_dwordx4 v{vL16}, {SRD_WS}, s62 offen offset:{q*1024} {P.bgm} lds", ("gw", i))
    return [lambda q=q: f(q) for q in range(4)]

def bg_batches(k, bs, period, dep=lambda b: None):
    for b in bs:
        for f in batch(k, b): k.bg_add(f, period, ("gw", b), dep(b))
def bg_list(k, fns, period, tag, dep=None):
    for f in fns: k.bg_add(f, period, tag, dep)

def regloads(k, base_sgpr, off, dst, n, tag, tmp=63):
    fns = []
    for j in range(n):
        def f(j=j):
            k.set_s(f"s_add_u32 s{tmp}, s{base_sgpr}, {off + (j & ~3)*1024}")
            k.vm(f"buffer_load_dwordx4 {dst(j)}, v{vL16}, {SRD_WS}, s{tmp} offen offset:{(j%4)*1024} {P.bgm}", tag)
        fns.append(f)
    return fns
def wow(k):
    def f(i, q):
        k.set_m0(f"s_add_u32 m0, s{sGL}, {(6 + i)*16384}"); k.set_s(f"s_add_u32 s63, s88, {i*16384}")
        k.vm(f"buffer_load_dwordx4 v{vL16}, {SRD_WS}, s63 offen offset:{q*1024} lds", "wow")
    return [lambda i=i, q=q: f(i, q) for i in range(4) for q in range(4)]

def pack_issue(k):
    k.e("v_lshrrev_b32 v44, 3, v1", "v_and_b32 v43, 7, v1", "v_and_b32 v45, 2, v44", "v_lshlrev_b32 v45, 1, v45",
        "v_xor_b32 v43, v43, v45", "v_lshlrev_b32 v43, 4, v43", f"s_add_u32 s34, s49, {L_X + 4096}")
    k.e("s_cmp_ge_u32 s2, 112", "s_cbranch_scc1 L_pki_small")
    k.e("s_and_b32 s35, s2, 1", "s_bfe_u32 s36, s2, 0x10001", "s_lshr_b32 s37, s2, 2")
    k.e("s_cmp_eq_u32 s35, 0", "s_cselect_b32 s24, s72, s74", "s_cselect_b32 s25, s73, s75",
        f"s_mov_b32 s26, {512*3584:#x}", "s_mov_b32 s27, 0x20000")
    k.e("v_mul_u32_u24 v46, 3584, v44", "v_add_u32 v46, v46, v43")
    k.e("s_lshl_b32 s38, s36, 2", f"s_add_u32 s38, s38, s{sW}", f"s_mul_i32 s38, s38, {64*3584}",
        "s_lshl_b32 s39, s37, 7", "s_add_u32 s38, s38, s39")
    for i in range(8):
        k.e(f"s_add_u32 m0, s34, {(i>>2)*8192 + (i&3)*1024}", f"s_add_u32 s39, s38, {i*8*3584}", f"buffer_load_dwordx4 v46, {SRD_PK}, s39 offen lds")
    k.e("s_branch L_pki_done")
    k.label("L_pki_small")
    k.e("s_sub_u32 s35, s2, 112", "s_lshl_b32 s35, s35, 3", f"s_lshl_b32 s36, s{sW}, 1", "s_add_u32 s35, s35, s36")
    k.e("s_cmp_lt_u32 s35, 896", "s_cselect_b32 s24, s76, s68", "s_cselect_b32 s25, s77, s69", f"s_mov_b32 s26, {512*1024:#x}",
        f"s_cselect_b32 s26, {1792*1024:#x}, s26", "s_mov_b32 s27, 0x20000", "s_cselect_b32 s37, 1, 0",
        "s_movk_i32 s38, 896", "s_cselect_b32 s38, 0, s38")
    k.e("s_cselect_b32 s39, 0, 1", "s_cselect_b32 s70, 14, 15", "s_movk_i32 s71, 0x4000", "s_cselect_b32 s71, 0x80, s71")
    k.e("s_sub_u32 s35, s35, s38", "s_lshr_b32 s35, s35, s39", "s_and_b32 s36, s35, 7", "s_lshr_b32 s35, s35, 3")
    k.e("v_lshl_add_u32 v46, v44, 10, v43", "s_lshl_b32 s38, s35, s70", "s_lshl_b32 s39, s36, 7", "s_add_u32 s38, s38, s39")
    for i in range(2):
        for h in range(2):
            k.e(f"s_add_u32 m0, s34, {(2*i+h)*1024}", f"s_add_u32 s39, s38, {h*8192}", f"buffer_load_dwordx4 v46, {SRD_PK}, s39 offen lds")
        if i == 0: k.e("s_add_u32 s38, s38, s71")
    k.label("L_pki_done")
    k.vmq.append("pk"); k.seen.add("pk")

def pack_process(k, mid1, mid2):
    st = "sc1"
    k.e("v_bfe_u32 v46, v1, 2, 2", "v_and_b32 v47, 3, v1", "v_bfe_u32 v48, v1, 4, 1", "v_lshrrev_b32 v49, 5, v1")
    k.e("v_and_b32 v50, 2, v46", "v_add_u32 v50, v50, v48", "v_lshlrev_b32 v50, 5, v50",
        "v_lshl_add_u32 v50, v46, 7, v50", "v_lshl_add_u32 v50, v47, 3, v50", "v_add_u32 v50, s34, v50")
    k.e("s_cmp_ge_u32 s2, 112", "s_cbranch_scc1 L_pk_small")
    q0 = list(k.vmq)
    k.e("v_lshl_add_u32 v56, v49, 10, v50", "v_xor_b32 v57, 64, v56")
    k.e("s_lshl_b32 s39, s37, 2", "v_add_u32 v58, s39, v48")
    k.e("s_lshl_b32 s70, s36, 2", f"s_add_u32 s70, s70, s{sW}", "s_lshl_b32 s70, s70, 2")
    k.e("v_and_b32 v66, 15, v1", "s_lshl_b32 s71, s35, 8", "v_lshl_add_u32 v66, v66, 4, s71")
    for p in range(2):
        T, fs, tl, st_, b, aug = 59, 60, 61, 62 + p, 64 + p, 68 + p
        k.e(f"v_add_u32 v{T}, {2*p}, v58", f"v_mul_u32_u24 v{fs}, 9363, v{T}", f"v_lshrrev_b32 v{fs}, 16, v{fs}",
            f"v_mul_u32_u24 v{tl}, 7, v{fs}", f"v_sub_u32 v{tl}, v{T}, v{tl}")
        k.e(f"v_cmp_gt_u32 vcc, 3, v{tl}", f"v_mul_u32_u24 v67, 33, v{tl}", f"v_mov_b32 v{st_}, 1", "v_mov_b32 v70, 3",
            f"v_cndmask_b32 v67, v67, v{tl}, vcc", f"v_cndmask_b32 v{st_}, v{st_}, v70, vcc")
        k.e(f"v_mul_u32_u24 v{fs}, 231, v{fs}", f"v_add_u32 v67, v67, v{fs}")
        k.e(f"v_lshl_add_u32 v70, v{st_}, 5, v67", "v_lshlrev_b32 v70, 10, v70", "v_add_u32 v70, v70, v66",
            "s_lshl_b32 s71, s36, 9", f"v_add_u32 v{aug}, s71, v70")
        k.e(f"v_mul_lo_u32 v70, v{st_}, s70", "v_add_u32 v67, v67, v70", "v_lshlrev_b32 v67, 10, v67",
            "v_add_u32 v67, v67, v66", f"v_lshl_add_u32 v{b}, v49, 9, v67", f"v_lshlrev_b32 v{st_}, 10, v{st_}")
    k.e("v_mov_b32 v71, 0x3f803f80", "v_mov_b32 v72, 0", "v_mov_b32 v73, 0", f"s_mov_b32 s71, {WS_PGU}")
    k.wait(vm="pk")
    PQ = lambda ks, p: 104 + 8 * ks + 4 * p
    for ks in range(4):
        for p in range(2):
            for j in range(2): k.ds(f"ds_read_b64_tr_b16 {vr(PQ(ks,p)+2*j,2)}, v{56+p} offset:{(ks>>1)*8192 + (ks&1)*2048 + j*512}", ("t", ks, p))
        if ks == 2: k.wait(lg=[("t", 0, 1)])
    mid1()
    for ks in range(4):
        for p in range(2):
            k.wait(lg=[("t", ks, p)])
            for d in range(4): k.e(f"v_dot2c_f32_bf16 v{72+p}, v{PQ(ks,p)+d}, v71")
    k.e("v_permlane32_swap_b32 v72, v73", "v_add_f32 v72, v72, v73")
    k.e(f"s_lshl_b32 s72, s{sW}, 8", "s_add_u32 s72, s72, 0x10000", "v_lshl_add_u32 v74, v1, 2, s72")
    k.ds(f"ds_write_b32 v74, v72 offset:{L_CS - 65536}")
    mid2()
    for ks in range(4):
        for p in range(2):
            k.vm(f"buffer_store_dwordx4 {vr(PQ(ks,p),4)}, v{64+p}, {SRD_WS}, s71 offen {st}", "pks")
            if ks < 3: k.e(f"v_add_u32 v{64+p}, v{64+p}, v{62+p}")
    k.wait(lg="all")
    k.e("s_barrier", f"s_cmp_lg_u32 s{sW}, 0", "s_cbranch_scc1 L_pk_done")
    for w in range(4): k.ds(f"ds_read_b32 v{92+w}, v74 offset:{L_CS - 65536 + 256*w}")
    k.e("v_cmp_gt_u32 vcc, 32, v1", "v_mov_b32 v98, 0", "v_mov_b32 v99, 0", "v_cndmask_b32 v68, v69, v68, vcc")
    k.wait(lg="all")
    k.e("v_add_f32 v92, v92, v93", "v_add_f32 v94, v94, v95", "v_add_f32 v92, v92, v94")
    k.e("v_cvt_pk_bf16_f32 v97, v92, v98", "v_lshlrev_b32 v93, 16, v97", "v_sub_f32 v93, v92, v93", "v_cvt_pk_bf16_f32 v96, v92, v93")
    k.vm(f"buffer_store_dwordx4 v[96:99], v68, {SRD_WS}, s71 offen {st}", "pks")
    k.e("s_branch L_pk_done")
    k.label("L_pk_small")
    k.vmq = list(q0)
    k.e("s_cmp_eq_u32 s37, 0", "s_cbranch_scc1 L_pk_wo")
    k.e("s_mul_i32 s38, s35, 2341", "s_lshr_b32 s38, s38, 16", "s_mul_i32 s39, s38, 28", "s_sub_u32 s39, s35, s39",
        "s_mul_i32 s70, s39, 9363", "s_lshr_b32 s70, s70, 16", "s_mul_i32 s71, s70, 7", "s_sub_u32 s71, s39, s71",
        "s_lshl_b32 s72, s70, 2", "s_add_u32 s72, s72, s71", "s_mul_i32 s73, s70, 3", "s_add_u32 s73, s73, s71", "s_add_u32 s73, s73, 12",
        "s_cmp_lt_u32 s71, 4", "s_cselect_b32 s72, s72, s73", "s_mul_i32 s38, s38, 28", "s_add_u32 s35, s72, s38")
    k.e("v_lshl_add_u32 v56, v49, 9, v50", "v_xor_b32 v57, 64, v56")
    k.e(f"s_mul_i32 s36, s36, {224*KB}", "s_lshl_b32 s35, s35, 11", "s_add_u32 s38, s36, s35", f"s_add_u32 s38, s38, {WS_PDN}")
    k.wait(vm="pk")
    for i in range(2):
        for nn in range(2):
            for j in range(2): k.ds(f"ds_read_b64_tr_b16 {vr(76+8*i+4*nn+2*j,2)}, v{56+nn} offset:{i*2048 + j*1024}", ("t", i, nn))
    mid1(); mid2()
    for i in range(2):
        for nn in range(2):
            k.wait(lg=[("t", i, nn)])
            k.vm(f"buffer_store_dwordx4 {vr(76+8*i+4*nn,4)}, v{vL16}, {SRD_WS}, s38 offen offset:{nn*1024} {st}", "pks")
        if i == 0: k.e(f"s_add_u32 s38, s38, {224*KB}")
    k.e("s_branch L_pk_done")
    k.label("L_pk_wo")
    k.vmq = list(q0)
    k.e("v_and_b32 v56, 2, v46", "v_lshlrev_b32 v56, 1, v56", "v_xor_b32 v56, v56, v47", "v_lshlrev_b32 v56, 4, v56", "v_lshl_add_u32 v56, v46, 7, v56",
        "v_lshrrev_b32 v57, 4, v1", "v_lshl_add_u32 v56, v57, 10, v56", "v_add_u32 v56, s34, v56", "v_xor_b32 v57, 64, v56")
    k.e("s_lshl_b32 s36, s36, 16", "s_lshl_b32 s35, s35, 12", "s_add_u32 s38, s36, s35", f"s_add_u32 s38, s38, {WS_PWO}")
    k.wait(vm="pk")
    for j in range(4):
        for jj in range(2): k.ds(f"ds_read_b64_tr_b16 {vr(76+4*j+2*jj,2)}, v{56+(j>>1)} offset:{jj*512 + 8*(j&1)}", ("t", j))
    mid1(); mid2()
    for j in range(4):
        k.wait(lg=[("t", j)])
        k.vm(f"buffer_store_dwordx4 {vr(76+4*j,4)}, v{vL16}, {SRD_WS}, s38 offen offset:{j*1024} {st}", "pks")
    k.label("L_pk_done")

A_XF, A_K, A_V, A_Q = 36, 76, 86, 96
A_STA, A_STB, A_OP, A_DX, A_PA, A_ST, A_ACC = 104, 106, 144, 152, 153, 156, 184
class R0: XE, XO, SA, SB, CI, ONE, M, ATT, TMP = 3, 4, 5, 6, 28, 32, 52, (116, 160), 60
class R1: XE, XO, SA, SB, CI, ONE, M, ATT, TMP = 116, 117, 118, 119, 252, 124, 120, (228, 160), 28
A_U, A_PX = 226, 115
A11_ORDER = [2, 3, 1, 0, "h"]
A11_POS = {2: 3, 3: 0, 1: 1, 0: 2, "h": 3}
sODD, sCUR0, sCUR1, sCEXP = 40, 42, 44, 46

def a1_setup(k, layer):
    R = (R0, R1)[layer]
    real = k; out = []
    class Rec:
        def e(self, *t):
            if any(x.startswith("s_cmp") for x in t): out.append(lambda t=t: real.e(*t))
            else: out.extend(lambda x=x: real.e(x) for x in t)
    k = Rec()
    t16, g, tt, tb = R.TMP, R.TMP + 1, R.TMP + 2, R.TMP + 3
    x, y, z = R.ONE, R.ONE + 1, R.ONE + 2
    sa = L_SA0 if layer == 0 else L_SA1
    k.e(f"v_and_b32 v{t16}, 15, v1", f"v_lshrrev_b32 v{g}, 4, v1", f"v_and_b32 v{tt}, 7, v1", f"v_bfe_u32 v{tb}, v1, 3, 1")
    k.e(f"v_lshlrev_b32 v{tb}, 13, v{tb}")
    if layer == 0: k.e(f"v_add_u32 v{tb}, {L_X}, v{tb}")
    if layer == 0:
        k.e(f"v_and_b32 v{x}, 6, v{tt}", f"v_xor_b32 v{x}, v{x}, v{g}", f"v_lshlrev_b32 v{x}, 4, v{x}",
            f"v_lshl_add_u32 v{x}, v{tt}, 7, v{x}", f"v_add_u32 v{R.XE}, v{x}, v{tb}", f"v_xor_b32 v{R.XO}, 64, v{R.XE}")
    else:
        k.e(f"v_lshl_add_u32 v{x}, v{g}, 7, v{tb}", f"v_lshl_add_u32 v{R.XE}, v{tt}, 4, v{x}", f"v_add_u32 v{R.XO}, 512, v{R.XE}")
    k.e(f"v_lshlrev_b32 v{R.SA}, 3, v{t16}", f"v_add_u32 v{R.SA}, {sa}, v{R.SA}",
        f"v_lshlrev_b32 v{R.SB}, 5, v{g}", f"v_add_u32 v{R.SB}, {sa}, v{R.SB}")
    k.e(f"v_and_b32 v{x}, 1, v1", f"v_cmp_eq_u32 s[{sODD}:{sODD+1}], 1, v{x}",
        f"v_lshl_add_u32 v{y}, v{g}, 2, v{x}", f"v_cmp_le_u32 s[{sCUR0}:{sCUR0+1}], v{y}, v{t16}",
        f"v_add_u32 v{y}, 2, v{y}", f"v_cmp_le_u32 s[{sCUR1}:{sCUR1+1}], v{y}, v{t16}")
    k.e(f"v_mov_b32 v{y}, 0xffff", f"v_mov_b32 v{z}, 0xffff0000", f"v_cndmask_b32 v{y}, v{y}, v{z}, s[{sODD}:{sODD+1}]", f"v_mov_b32 v{z}, 0")
    k.e(f"v_cndmask_b32 v{R.M+2}, v{z}, v{y}, s[{sCUR0}:{sCUR0+1}]", f"v_cndmask_b32 v{R.M}, v{y}, v{z}, s[{sCUR0}:{sCUR0+1}]",
        f"v_cndmask_b32 v{R.M+3}, v{z}, v{y}, s[{sCUR1}:{sCUR1+1}]", f"v_cndmask_b32 v{R.M+1}, v{y}, v{z}, s[{sCUR1}:{sCUR1+1}]")
    k.e(f"s_cmp_eq_u32 s{sB}, 0", f"s_cselect_b32 s70, {f2u(-1e38):#x}, 0", f"s_mov_b32 s{sCEXP}, {f2u(0.25*LOG2E):#x}")
    for i in range(4): k.e(f"v_mov_b32 v{R.CI+i}, s70", f"v_mov_b32 v{R.ONE+i}, 0x3f803f80")
    return out

def o_bases(k, layer):
    k.e(f"s_lshl_b32 s32, s{sB}, 16", f"s_lshl_b32 s33, s{sCS}, 2", f"s_add_u32 s33, s33, s{sW}", "s_lshl_b32 s53, s33, 10",
        "s_add_u32 s32, s32, s53", f"s_add_u32 s53, s32, {BO[layer]}", "s_add_u32 s54, s53, 32768",
        f"s_lshl_b32 s32, s{sB}, 5", "s_add_u32 s32, s32, s33", "s_lshl_b32 s32, s32, 2", f"s_add_u32 s89, s32, {fl(layer, FL_O)}")

def ln_finish(a, s, q):
    a(f"v_mul_f32 v{s}, {f2u(-1/512):#x}, v{s}"); a(f"v_mul_f32 v{q}, {f2u(1/512):#x}, v{q}")
    a(f"v_fma_f32 v{q}, -v{s}, v{s}, v{q}"); a(f"v_max_f32 v{q}, 0, v{q}"); a(f"v_add_f32 v{q}, {f2u(1e-5):#x}, v{q}")

A_QS = 68
def fix_reads(k, R, t, S):
    i = 0 if t == "h" else t + 1
    return [lambda: k.ds(f"ds_read_b64 {vr(S,2)}, v{R.SA} offset:{i*128}", ("sa", t)),
            lambda: k.ds(f"ds_read_b128 {vr(S+2,4)}, v{R.SB} offset:{i*128}", ("sa", t)),
            lambda: k.ds(f"ds_read_b128 {vr(S+6,4)}, v{R.SB} offset:{i*128+16}", ("sa", t))]
def fix(k, R, fx, t, acc, at, pk, S=A_STA, pre=False, nxt=()):
    a = lambda txt, c=1, at=0: fx.add(lambda: k.e(txt), c, at)
    i = 0 if t == "h" else t + 1
    if not pre:
        for n, f in enumerate(fix_reads(k, R, t, S)): fx.add(f, 1, at - P.a1_salead if n == 0 else 0)
    fx.add(lambda: k.wait(lg=[("sa", t)]), 1, at)
    for f in nxt: fx.add(f)
    for r0, cs, dst in ((acc[0], CSQ, None if t == "h" else A_Q + 2*t), (acc[1], CSK, A_K + 2*i)):
        if dst is None: continue
        isq = cs == CSQ
        if pk:
            for h in (0, 2): a(f"v_pk_fma_f32 {vr(r0+h,2)}, {vr(S,2)}, {vr(cs+h,2)}, {vr(r0+h,2)} op_sel_hi:[0,1,1]")
            if not isq:
                for h in (0, 2): a(f"v_pk_mul_f32 {vr(r0+h,2)}, {vr(S,2)}, {vr(r0+h,2)} op_sel:[1,0] op_sel_hi:[1,1]")
        else:
            for r in range(4): a(f"v_fmac_f32 v{r0+r}, v{S}, v{cs+r}")
            if not isq:
                for r in range(4): a(f"v_mul_f32 v{r0+r}, v{S+1}, v{r0+r}")
        if isq: a(f"v_mul_f32 v{A_QS+t}, s{sCEXP}, v{S+1}")
        for h in range(2): a(f"v_cvt_pk_bf16_f32 v{dst+h}, v{r0+2*h}, v{r0+2*h+1}")
    r0 = acc[2]
    for r in range(4): a(f"v_fmac_f32 v{r0+r}, v{S+2+2*r}, v{CSV}")
    for r in range(4): a(f"v_mul_f32 v{r0+r}, v{S+3+2*r}, v{r0+r}")
    for h in range(2): a(f"v_cvt_pk_bf16_f32 v{A_V+2*i+h}, v{r0+2*h}, v{r0+2*h+1}")
    fx.add(lambda: (k.mark(("fix", t)), k.stamp(f"t0 fix{t}")), 0)

def attn(k, R, fx, t, B):
    SC, SP, PP, O, SUM, T = B, B + 4, B + 8, B + 12, B + 16, B + 20
    a = lambda txt, c=1: fx.add(lambda: k.e(txt), c)
    q = vr(A_Q + 2*t, 2)
    fx.dep(("fix", t)); fx.dep(("fix", t - 1 if t else "h")); fx.skip(1)
    a(f"{MF16S} {vr(SC,4)}, {vr(A_K+2*(t+1),2)}, {q}, 0", 2)
    a(f"{MF16S} {vr(SP,4)}, {vr(A_K+2*t,2)}, {q}, {vr(R.CI,4) if t == 0 else '0'}", 2)
    fx.skip(3)
    for rr, cur in ((0, sCUR0), (1, sCUR1)):
        a(f"v_cndmask_b32 v{T+2}, v{SC+2*rr}, v{SC+2*rr+1}, s[{sODD}:{sODD+1}]")
        a(f"v_cndmask_b32 v{T+3}, v{SP+2*rr}, v{SP+2*rr+1}, s[{sODD}:{sODD+1}]")
        a(f"v_cndmask_b32 v{T+rr}, v{T+3}, v{T+2}, s[{cur}:{cur+1}]")
    a(f"v_max_f32 v{T+2}, v{T}, v{T+1}"); a(f"v_mov_b32 v{T+3}, v{T+2}"); fx.skip(1)
    a(f"v_permlane16_swap_b32 v{T+2}, v{T+3}", 2); a(f"v_max_f32 v{T+2}, v{T+2}, v{T+3}"); a(f"v_mov_b32 v{T+3}, v{T+2}"); fx.skip(1)
    a(f"v_permlane32_swap_b32 v{T+2}, v{T+3}", 2); a(f"v_max_f32 v{T+2}, v{T+2}, v{T+3}")
    a(f"v_mul_f32 v{T+2}, v{A_QS+t}, v{T+2}")
    for rr in range(2): a(f"v_fma_f32 v{T+rr}, v{T+rr}, v{A_QS+t}, -v{T+2}")
    for rr in range(2): a(f"v_exp_f32 v{T+rr}, v{T+rr}", 2)
    for rr in range(2): a(f"v_cvt_pk_bf16_f32 v{T+rr}, v{T+rr}, v{T+rr}")
    a(f"v_and_b32 v{PP}, v{T}, v{R.M}"); a(f"v_and_b32 v{PP+1}, v{T+1}, v{R.M+1}")
    a(f"v_and_b32 v{PP+2}, v{T}, v{R.M+2}"); a(f"v_and_b32 v{PP+3}, v{T+1}, v{R.M+3}")
    fx.skip(1)
    a(f"{MF16} {vr(SUM,4)}, {vr(R.ONE,4)}, {vr(PP,4)}, 0", 2)
    a(f"{MF16} {vr(O,4)}, {vr(A_V+2*t,4)}, {vr(PP,4)}, 0", 2)
    fx.skip(3)
    a(f"v_rcp_f32 v{T}, v{SUM}", 2); fx.skip(1)
    for r in range(4): a(f"v_mul_f32 v{O+r}, v{T}, v{O+r}")
    for h in range(2): a(f"v_cvt_pk_bf16_f32 v{A_OP+2*t+h}, v{O+2*h}, v{O+2*h+1}")
    fx.add(lambda: (k.mark(("attn", t)), k.stamp(f"t0 attn{t}")), 0)

def ostore(k, fx, pair):
    b = A_OP + 4 * pair
    fx.dep(("attn", 2*pair)); fx.dep(("attn", 2*pair + 1))
    if pair == 0: fx.dep("po1")
    fx.skip(1)
    fx.add(lambda: k.e(f"v_permlane16_swap_b32 v{b}, v{b+2}"), 2); fx.add(lambda: k.e(f"v_permlane16_swap_b32 v{b+1}, v{b+3}"), 2)
    fx.add(lambda: (k.dstore(f"buffer_store_dwordx4 {vr(b,4)}, v{vL16}, {SRD_WS}, s{53+pair} offen", ("ost", pair)), k.mark(("ost", pair))))

Z_WD, Z_TR, Z_HE, Z_HO, Z_OE, Z_OO = 164, 165, 166, 167, 168, 169
Z_XF, Z_SUM, Z_GR, Z_SUMH, Z_GRH, Z_CV = 104, 240, 244, 248, 252, 100
P.k_look, P.k_atom, P.k_bar, P.k_vgap = 4, 4, 5, 3
NS0 = 6
def z_acc(t):
    if t == "h": return (None, A_ACC + 48, A_ACC + 52)
    return (A_ACC + 12*t, A_ACC + 12*t + 4, A_ACC + 12*t + 8)

def a10_lanes(k):
    k.e("v_lshrrev_b32 v60, 3, v1", "v_and_b32 v61, 6, v60", "v_and_b32 v62, 7, v1", "v_xor_b32 v61, v61, v62",
        "v_lshlrev_b32 v61, 4, v61", f"v_lshl_add_u32 v{A_DX}, v60, 10, v61")
    k.e("v_and_b32 v61, 2, v60", f"s_and_b32 s32, s{sW}, 1", "s_lshl_b32 s32, s32, 2", "v_or_b32 v61, s32, v61", "v_xor_b32 v61, v61, v62",
        "v_lshlrev_b32 v61, 4, v61", "v_mul_u32_u24 v60, 3072, v60", f"v_add_u32 v{Z_WD}, v60, v61")
    k.e(f"s_add_u32 s{sROT}, s{sB}, s{sCS}", f"s_and_b32 s{sROT}, s{sROT}, 7")
    k.e(f"s_lshl_b32 s47, s{sB}, 3", "s_sub_u32 s48, s47, 2", "s_max_i32 s48, s48, 0", f"s_and_b32 s32, s{sW}, 1", "s_add_u32 s48, s48, s32",
        "s_lshl_b32 s48, s48, 13", f"s_lshl_b32 s32, s{sW}, 1", "s_add_u32 s47, s47, s32", "s_lshl_b32 s47, s47, 13")
    k.e(f"s_mul_i32 s51, s{sW}, {8*3072}", f"s_lshl_b32 s32, s{sCS}, 7", "s_add_u32 s51, s51, s32", f"s_mul_i32 s52, s{sW}, 3072")
    k.e(f"s_lshl_b32 s49, s{sW}, 14", f"s_and_b32 s32, s{sW}, 1", "s_lshl_b32 s50, s32, 13", f"s_lshr_b32 s32, s{sW}, 1",
        "s_lshl_b32 s33, s32, 10", "s_add_u32 s50, s50, s33", f"s_add_u32 s90, s32, s{sROT}")

def a10_x(k, c):
    S = lambda *t: [("s", lambda x=x: k.e(x)) for x in t]
    ld = lambda: k.vm(f"buffer_load_dwordx4 v{A_DX}, {SRD_X}, s33 offen lds", ("x", c))
    ops = S(f"s_add_u32 s33, s{sROT}, {c}", "s_and_b32 s33, s33, 7", "s_lshl_b32 s33, s33, 7", f"s_add_u32 m0, s49, {L_X + c*1024}", "s_add_u32 s33, s33, s47")
    ops += [("v", ld)] + S(f"s_add_u32 m0, s49, {L_X + 8192 + c*1024}", "s_add_u32 s33, s33, 8192") + [("v", ld)]
    if c % 2 == 0:
        ops += S(f"s_add_u32 s33, s90, {c}", "s_and_b32 s33, s33, 7", "s_lshl_b32 s33, s33, 7", f"s_add_u32 m0, s50, {L_XH0 + c*1024}", "s_add_u32 s33, s33, s48") + [("v", ld)]
    return ops

def a10_w(k, s):
    S = lambda *t: [("s", lambda x=x: k.e(x)) for x in t]
    if s & 1: ops = S(f"s_add_u32 m0, s52, {(s % NS0)*12288}", f"s_add_u32 s63, s63, {32*3072}")
    else: ops = S(f"s_add_u32 s63, s{sROT}, {s>>1}", "s_and_b32 s63, s63, 7", f"s_mul_i32 s63, s63, {64*3072}", f"s_add_u32 m0, s52, {(s % NS0)*12288}", "s_add_u32 s63, s63, s51")
    for p in range(3): ops.append(("v", lambda p=p: k.vm(f"buffer_load_dwordx4 v{Z_WD}, {SRD_QKV}, s63 offen offset:{p*1024} lds", ("w", s))))
    return ops
def run(ops):
    for _, f in ops: f()

def fill(k, mains, streams, cap=2):
    lastv = -99
    for g, m in enumerate(mains):
        m(); k.gap = g
        for a, o in streams:
            if a <= g and o and o[0][0] == "s": o.pop(0)[1](); break
        room = cap; nd = 0
        while room > 0:
            pick = None
            for a, o in streams:
                if a > g or not o: continue
                t = o[0][0]
                if t == "d" and nd >= 1: continue
                if t == "v" and g - lastv < P.k_vgap: continue
                pick = o; break
            if pick is None: break
            t, f = pick.pop(0); f(); room -= 2 if t == "b" else 1
            if t == "d": nd += 1
            if t == "v": lastv = g
    for a, o in streams: run(o)

def a10_lanes2(k):
    k.e("v_lshrrev_b32 v60, 4, v1", "v_bfe_u32 v61, v1, 2, 2", "v_and_b32 v62, 1, v60", "v_lshlrev_b32 v62, 1, v62",
        "v_lshrrev_b32 v63, 1, v61", "v_or_b32 v62, v62, v63", f"v_xor_b32 v62, s{sW}, v62", "v_lshlrev_b32 v62, 5, v62",
        "v_mul_u32_u24 v60, 3072, v60", "v_lshl_add_u32 v60, v61, 7, v60", "v_add_u32 v60, v60, v62",
        "v_and_b32 v61, 3, v1", f"v_lshl_add_u32 v{Z_TR}, v61, 3, v60")
    k.e("v_and_b32 v60, 15, v1", "v_cmp_eq_u32 s[78:79], 0, v60")
    k.e(f"v_subrev_u32 v{Z_HE}, 16384, v{R0.XE}", f"v_subrev_u32 v{Z_HO}, 16384, v{R0.XO}",
        f"v_add_u32 v{Z_OE}, s49, v{R0.XE}", f"v_add_u32 v{Z_OO}, s49, v{R0.XO}")

def a10_loop(k, first):
    LA = P.k_look
    def sync(s, extra=()):
        k.wait(vm=[("w", s), ("x", s >> 1)] + list(extra)); k.e("s_barrier")
    nxt = [first]
    def dmas(upto):
        out = []
        while nxt[0] <= min(upto, 15):
            n = nxt[0]; nxt[0] += 1
            if n % 2 == 0: out += a10_x(k, n // 2)
            out += a10_w(k, n)
        return out
    def reads(s):
        fb = Z_XF + 24 * (s & 1); off = (s >> 1) * 1024; o = s & 1
        tr = lambda p, j: ("d", lambda: k.ds(f"ds_read_b64_tr_b16 {ar(12*s+4*p+2*j,2)}, v{Z_TR} offset:{(s%NS0)*12288 + p*1024 + j*512}", ("r", s, 0 if p == 0 else 1)))
        xr = lambda d, a, of, grp: ("d", lambda: k.ds(f"ds_read_b128 {vr(d,4)}, v{a} offset:{of}", ("r", s, grp)))
        out = [tr(0, 0), tr(0, 1)] + [xr(fb + 4*t, R0.XO if o else R0.XE, t*16384 + off, 0) for t in range(4)]
        out += [tr(1, 0), tr(1, 1), tr(2, 0), tr(2, 1), xr(fb + 16, Z_HO if o else Z_HE, off, 1), xr(fb + 20, Z_OO if o else Z_OE, off, 1)]
        return out
    sync(0)
    k.stamp("k0")
    run(reads(0)); run(dmas(LA - 1))
    for s in range(16):
        fb = Z_XF + 24 * (s & 1)
        c = lambda r: "0" if s == 0 else vr(r, 4)
        wq, wk, wv, one = ar(12*s, 4), ar(12*s + 4, 4), ar(12*s + 8, 4), vr(R0.ONE, 4)
        ms = [f"{MF16} {vr(z_acc(t)[0],4)}, {wq}, {vr(fb+4*t,4)}, {c(z_acc(t)[0])}" for t in range(4)]
        for t in [0, 1, 2, 3, "h"]:
            xf = vr(fb + (16 if t == "h" else 4*t), 4)
            ms.append(f"{MF16} {vr(z_acc(t)[1],4)}, {wk}, {xf}, {c(z_acc(t)[1])}")
            ms.append(f"{MF16} {vr(z_acc(t)[2],4)}, {xf}, {wv}, {c(z_acc(t)[2])}")
        ms += [f"{MF16} {vr(Z_CV,4)}, {wq}, {vr(fb+16,4)}, {c(Z_CV)}",
               f"{MF16} {vr(Z_SUM,4)}, {one}, {vr(fb+20,4)}, {c(Z_SUM)}", f"{MF16} {vr(Z_GR,4)}, {vr(fb+20,4)}, {vr(fb+20,4)}, {c(Z_GR)}",
               f"{MF16} {vr(Z_SUMH,4)}, {one}, {vr(fb+16,4)}, {c(Z_SUMH)}", f"{MF16} {vr(Z_GRH,4)}, {vr(fb+16,4)}, {vr(fb+16,4)}, {c(Z_GRH)}"]
        mains = [lambda m=m: k.e(m) for m in ms]
        k.wait(lg=[("r", s, 0)])
        streams = [(3, [("s", lambda: k.wait(lg=[("r", s, 1)]))] +
                       [("a", lambda d=d: k.e(f"v_cndmask_b32 v{fb+16+d}, v{fb+16+d}, v{R0.ONE}, s[78:79]")) for d in range(4)])]
        if s + 1 < 16:
            ex = ["pks"] if s + 1 == P.k_atom else []
            ops = [("b", lambda: sync(s + 1, ex))] + reads(s + 1)
            if ex: ops.append(("b", lambda: arrive(k)))
            streams.append((P.k_bar, ops))
            streams.append((0, dmas(s + LA)))
        if s == P.k_touch:
            streams.append((2, [("b", lambda: k.touch(60, "p", ["s_mov_b32 s32, s53"], False)),
                                ("b", lambda: k.touch(62, "q", [f"s_add_u32 s32, s64, {BX1[0]}"], False)),
                                ("b", lambda: k.touch(64, "h", h_base("s32", 0), False) if P.h_touch0 == "k" else None)]))
        if s == P.k_gb: streams.append((1, [("v", lambda t=t: k.vm(t, "gb")) for t in GB_LOADS]))
        if s == P.k_chk: streams.append((1, [("b", lambda: rendezvous(k))]))
        fill(k, mains, streams)
        if s in (3, 7, 11): k.stamp(f"k{s+1}")
    k.stamp("k16")
    if P.k_chk >= 16: rendezvous(k)

GB_LOADS = [f"buffer_load_dwordx4 {vr(36+4*j,4)}, v{vL16}, {SRD_WS}, s75 offen offset:{j*1024} sc1" for j in range(4)] + \
           [f"buffer_load_dword v{vP}, v172, {SRD_WS}, s77 offen offset:8 sc1"]
def arrive(k):
    k.wait(vm=["tag"])
    k.e(f"v_readfirstlane_b32 s{sTAG}, v170", f"s_cmp_eq_u32 s{sTAG}, 0", "s_cbranch_scc1 L_tag_spin ;np", "L_tag_ok: ;np")
    k.spins += ["L_tag_spin:", f"s_sub_u32 s{sBUD}, s{sBUD}, 1", "s_cbranch_scc1 L_tag_give", f"buffer_load_dword v170, v{vFA}, {SRD_DBG}, 0 offen sc1",
                "s_waitcnt vmcnt(0)", f"v_readfirstlane_b32 s{sTAG}, v170", f"s_cmp_eq_u32 s{sTAG}, 0", "s_cbranch_scc1 L_tag_spin", "s_branch L_tag_ok",
                "L_tag_give:", f"s_mov_b32 s{sBUD}, 0", "s_branch L_tag_ok"]
    k.e(f"v_mov_b32 v176, s{sTAG}", "v_not_b32 v177, v176", f"v_mov_b32 v178, s{sXCC}")
    k.vm(f"buffer_store_dwordx4 v[176:179], v171, {SRD_WS}, s75 offen sc1", "arr")

def rendezvous(k):
    chk = [f"s_not_b32 s32, s{sTAG}"]
    for j in range(4): chk += [f"v_xor_b32 v{36+4*j}, s{sTAG}, v{36+4*j}", f"v_xor_b32 v{37+4*j}, s32, v{37+4*j}"]
    chk += ["v_or3_b32 v36, v36, v37, v40", "v_or3_b32 v44, v44, v45, v41", "v_or3_b32 v36, v36, v48, v49", "v_or_b32 v36, v36, v44", "v_cmp_ne_u32 vcc, 0, v36"]
    k.wait(vm=["gb"])
    k.e(*chk); k.e("s_cbranch_vccnz L_gb_spin ;np", "L_gb_ok: ;np")
    k.spins += ["L_gb_spin:", f"s_sub_u32 s{sBUD}, s{sBUD}, 1", "s_cbranch_scc1 L_gb_give", "s_sleep 2"] + GB_LOADS + ["s_waitcnt vmcnt(0)"] + chk + \
               ["s_cbranch_vccnz L_gb_spin", "s_branch L_gb_ok", "L_gb_give:", f"s_mov_b32 s{sBUD}, 0", "s_branch L_gb_ok"]
    k.e(f"v_cmp_ne_u32 vcc, s{sXCC}, v{vP}", "s_and_b32 s99, vcc_lo, 0xffff" if not P.safe else "s_and_b32 s99, 1, 1",
        f"s_cselect_b32 s{sML}, {OOB>>1:#x}, 0", f"s_cselect_b32 s{sMS}, 0, {OOB>>1:#x}")
    k.mark("gb")

W_OA, W_UA, W_SA, W_RB = 152, 154, 155, 114
def wo_bases(k):
    k.e(f"s_lshl_b32 s32, s{sB}, 2", f"s_add_u32 s32, s32, s{sW}", "s_lshl_b32 s64, s32, 14", f"s_lshl_b32 s33, s{sCS}, 10", "s_add_u32 s64, s64, s33",
        "s_lshr_b32 s32, s32, 1", "s_lshl_b32 s80, s32, 15", "s_lshl_b32 s65, s32, 11", "s_lshl_b32 s66, s32, 3", f"s_add_u32 s66, s66, s{sCS}", "s_lshl_b32 s66, s66, 1",
        f"s_and_b32 s32, s{sW}, 1", "s_add_u32 s66, s66, s32", "s_lshl_b32 s66, s66, 2", "s_lshl_b32 s32, s32, 8", "s_add_u32 s80, s80, s32", "s_add_u32 s65, s65, s32",
        f"s_lshr_b32 s32, s{sCS}, 1", "s_lshl_b32 s32, s32, 9", "s_add_u32 s65, s65, s32", f"s_and_b32 s32, s{sCS}, 1", "s_lshl_b32 s32, s32, 3", "s_add_u32 s65, s65, s32")
def wo_lanes(k):
    x, y = 66, 67
    return [lambda t=t: k.e(*t) for t in (
        [f"v_and_b32 v{x}, 15, v1"], [f"v_lshrrev_b32 v{y}, 4, v1"], [f"v_lshlrev_b32 v{W_OA}, 4, v{x}"], [f"v_lshl_add_u32 v{W_SA}, v{y}, 2, v{W_OA}"],
        [f"v_lshl_add_u32 v{W_OA}, v{y}, 9, v{W_OA}"], [f"v_and_b32 v{W_UA}, 7, v1"], [f"v_lshlrev_b32 v{W_UA}, 4, v{W_UA}"], [f"v_lshl_add_u32 v{W_UA}, v{y}, 7, v{W_UA}"],
        [f"v_lshrrev_b32 v{x}, 3, v{x}"], [f"v_lshl_add_u32 v{W_UA}, v{x}, 13, v{W_UA}"], [f"v_add_u32 v{W_RB}, {6*16384}, v{vL16}"],
        ["v_cmp_gt_u32 vcc, 32, v1", f"v_mov_b32 v{y}, {OOB:#x}", f"v_cndmask_b32 v{W_SA}, v{y}, v{W_SA}, vcc"])]
def wo_prepoll(k, layer):
    k.poll_addr(A_PA, 32)
    k.e(f"s_lshl_b32 s32, s{sB}, 7", f"s_add_u32 s{sPO}, s32, {fl(layer, FL_O)}", f"s_add_u32 s59, s80, {BO[layer]}")
    k.bg_held = True
    k.poll_issue(A_PA, "po1"); k.mark("po1")

def dna(k): return regloads(k, sDS, 0, lambda j: ar(192 + 4*j, 4), 16, "dna")

def a10_tail(k):
    R = R0
    k.per = dict(P.per_tail0)
    dd = dna(k)
    bg_list(k, dd[:P.dna_first], "s4", "dna")
    bg_list(k, wow(k), "s4", "wow", "tailbar")
    bg_batches(k, [0, 1, 2, 3], "s2", lambda b: "tailbar")
    bg_batches(k, [4], "s2", lambda b: "wobar")
    bg_batches(k, [5], "s2", lambda b: "tailbar")
    bg_batches(k, [6, 7, 8, 9], "s2", lambda b: "gubar")
    bg_list(k, dd[P.dna_first:], "s4", "dna")
    k.stamp("t0 gb")
    k.touch(72, "t", [f"s_add_u32 s32, s65, {BS1[0]}"])
    k.bg_burst(2)
    hk, hv = z_acc("h")[1], z_acc("h")[2]
    for r in range(4):
        k.e(f"v_mov_b32_dpp v{CSQ+r}, v{Z_CV+r} row_newbcast:0 row_mask:0xf bank_mask:0xf", f"v_mov_b32_dpp v{CSK+r}, v{hk+r} row_newbcast:0 row_mask:0xf bank_mask:0xf")
    k.e(f"v_mov_b32 v{CSV}, v{hv}", f"v_mov_b32 v45, v{hv}", f"v_permlane16_swap_b32 v{CSV}, v45", f"v_mov_b32 v45, v{CSV}", f"v_permlane32_swap_b32 v{CSV}, v45")
    k.e("v_and_b32 v40, 3, v1", "v_cmp_eq_u32 s[34:35], 1, v40", "v_cmp_eq_u32 s[36:37], 2, v40", "v_cmp_eq_u32 s[38:39], 3, v40",
        "v_bfe_u32 v40, v1, 2, 2", "v_lshrrev_b32 v41, 4, v1", "v_cmp_eq_u32 vcc, v40, v41", f"v_mov_b32 v40, {L_SA0 + 768}",
        f"s_lshl_b32 s32, s{sW}, 7", f"v_add_u32 v41, s32, v{R.SA}", "v_cndmask_b32 v41, v40, v41, vcc", f"v_cndmask_b32 v42, v40, v{R.SA}, vcc")
    fa = Flex(); fb = Flex()
    for fx, S, G, ad, off in ((fa, Z_SUM, Z_GR, 41, 128), (fb, Z_SUMH, Z_GRH, 42, 0)):
        a = lambda txt, c=1, fx=fx: fx.add(lambda: k.e(txt), c)
        a(f"v_cndmask_b32 v{S+1}, v{G}, v{G+1}, s[34:35]"); a(f"v_cndmask_b32 v{S+1}, v{S+1}, v{G+2}, s[36:37]"); a(f"v_cndmask_b32 v{S+1}, v{S+1}, v{G+3}, s[38:39]")
        ln_finish(a, S, S + 1); a(f"v_rsq_f32 v{S+1}, v{S+1}"); fx.skip(1)
        fx.add(lambda S=S, ad=ad, off=off: k.ds(f"ds_write_b64 v{ad}, {vr(S,2)} offset:{off}", "saw"))
    drain([fa, fb], k)
    k.e("v_and_b32 v43, 15, v1", "v_lshrrev_b32 v44, 4, v1", "v_lshlrev_b32 v43, 10, v43", "v_lshl_add_u32 v43, v44, 4, v43",
        f"s_lshl_b32 s32, s{sB}, 2", f"s_add_u32 s32, s32, s{sW}", "s_lshl_b32 s32, s32, 14", f"s_lshl_b32 s33, s{sCS}, 7", "s_add_u32 s32, s32, s33")
    for p in range(2): k.vm(f"buffer_load_dwordx4 {vr(RES+4*p,4)}, v43, {SRD_X}, s32 offen offset:{p*64}", "res")
    for f in wo_lanes(k): f()
    k.wait(lg="all"); k.e("s_barrier"); k.mark("tailbar")
    k.stamp("t0 bar")
    fx = Flex(); f1 = Flex(); f2 = Flex()
    od = (2, 1, 3, 0, "h"); Ss = (A_STA, 56)
    for f in fix_reads(k, R, od[0], Ss[0]): f()
    for n, t in enumerate(od):
        fix(k, R, fx, t, z_acc(t), 0, True, Ss[n & 1], True, fix_reads(k, R, od[n + 1], Ss[~n & 1]) if n < 4 else ()); fx.skip(1)
    attn(k, R, f1, 2, R.ATT[0]); attn(k, R, f2, 3, R.ATT[1]); ostore(k, f2, 1)
    attn(k, R, f1, 1, R.ATT[0]); attn(k, R, f2, 0, R.ATT[1]); ostore(k, f2, 0)
    f3 = Flex(); f3.dep(("ost", 1))
    for _ in range(P.l0_flag_delay): f3.skip(1)
    f3.add(lambda: (k.wait(vm=[("ost", 1)]), k.flag(1, 89), k.mark("oflag1")))
    f3.dep(("attn", 0)); f3.add(lambda: wo_prepoll(k, 0))
    drain([fx, f1, f2, f3], k)
    k.stamp("a1 end")
P.l0_flag_delay = 6; P.dna_first = 2
P.per_tail0 = {"s2": 90, "s4": 55}

def a11_bases(k):
    out = []
    S = lambda *t: out.extend(lambda x=x: k.e(x) for x in t)
    S(f"s_lshr_b32 s70, s{sW}, 1", "s_lshl_b32 s49, s70, 13", f"s_and_b32 s71, s{sW}, 1", "s_lshl_b32 s71, s71, 2",
      f"s_add_u32 s50, s71, s{sROT}", "s_lshl_b32 s71, s71, 10")
    for i in range(4):
        S(f"s_add_u32 s70, s50, {i}", "s_and_b32 s70, s70, 7", "s_lshl_b32 s70, s70, 10", "s_add_u32 s70, s70, s49", f"s_sub_u32 s{92+i}, s70, {i*1024}")
    S("s_add_u32 s49, s49, s71", f"s_lshl_b32 s47, s{sB}, 16", f"s_add_u32 s47, s47, {WS_X[1]}")
    S(f"s_sub_u32 s48, s{sB}, 1", "s_max_i32 s48, s48, 0", "s_lshl_b32 s51, s48, 10", f"s_add_u32 s51, s51, {WS_HST}",
      "s_lshl_b32 s52, s48, 11", f"s_add_u32 s52, s52, {WS_HXF}", "s_lshl_b32 s48, s48, 14", f"s_add_u32 s48, s48, {WS_HALO}")
    S("v_lshrrev_b32 v28, 4, v1", "v_and_b32 v29, 15, v1", "v_lshlrev_b32 v29, 4, v29", f"v_lshl_add_u32 v{A_U}, v28, 9, v29", f"v_lshl_add_u32 v{A_U+1}, v28, 8, v29")
    S(f"s_lshl_b32 s70, s{sB}, 12", f"s_and_b32 s71, s{sW}, 1", "s_lshl_b32 s71, s71, 8", "s_add_u32 s70, s70, s71", f"s_add_u32 s90, s70, {WS_ST[1]}")
    out.append(lambda: k.e(f"s_lshl_b32 s70, s{sB}, 1", f"s_add_u32 s70, s70, s{sW}", "s_lshl_b32 s72, s70, 13", f"s_lshl_b32 s71, s{sCS}, 10", "s_add_u32 s72, s72, s71",
        f"s_add_u32 s72, s72, {WS_HALO - 16384}", f"s_cmp_ge_u32 s{sW}, 2", f"s_cselect_b32 s72, s72, {OOB>>1:#x}"))
    out.append(lambda: k.e(f"s_lshl_b32 s73, s{sB}, 10", f"s_lshr_b32 s71, s{sCS}, 1", "s_lshl_b32 s71, s71, 8", "s_add_u32 s73, s73, s71", f"s_and_b32 s71, s{sCS}, 1",
        "s_lshl_b32 s71, s71, 3", "s_add_u32 s73, s73, s71"))
    out.append(lambda: k.e(f"s_lshl_b32 s71, s{sW}, 7", "s_add_u32 s73, s73, s71", f"s_add_u32 s73, s73, {WS_HST - 256}",
        f"s_cmp_ge_u32 s{sW}, 2", f"s_cselect_b32 s73, s73, {OOB>>1:#x}"))
    out.append(lambda: k.e(f"s_lshl_b32 s70, s{sB}, 3", f"s_add_u32 s70, s70, s{sCS}", "s_lshl_b32 s70, s70, 1", f"s_add_u32 s70, s70, s{sW}", "s_lshl_b32 s70, s70, 7",
        f"s_add_u32 s70, s70, {WS_HXF - 256}", f"s_cmp_ge_u32 s{sW}, 2", f"s_cselect_b32 s91, s70, {OOB>>1:#x}"))
    return out

def a11_x(k, tile):
    fns = []
    for i in range(4):
        def f(i=i):
            k.set_m0(f"s_add_u32 m0, s49, {A11_POS[tile]*16384}")
            k.e(f"s_add_u32 s32, s{48 if tile == 'h' else 47}, s{92+i}")
            if tile not in (0, "h"): k.e(f"s_add_u32 s32, s32, {tile*16384}")
            k.vm(f"buffer_load_dwordx4 v{vL16}, {SRD_WS}, s32 offen offset:{i*1024} sc1 lds", ("x", tile))
        fns.append(f)
    return fns

def stats_path(k, fx, S, tag, addr, tok, at=0):
    a = lambda txt, c=1: fx.add(lambda: k.e(txt), c)
    s, q = S, S + 1
    fx.add(lambda: k.wait(vm=[tag]), 1, at)
    a(f"v_add_f32 v{s}, v{s}, v{S+2}"); a(f"v_add_f32 v{q}, v{q}, v{S+3}"); fx.skip(1)
    a(f"v_permlane16_swap_b32 v{s}, v{q}", 2); a(f"v_add_f32 v{s}, v{s}, v{q}"); a(f"v_mov_b32 v{q}, v{s}"); fx.skip(1)
    a(f"v_permlane32_swap_b32 v{s}, v{q}", 2); a(f"v_add_f32 v{s}, v{s}, v{q}"); a(f"v_mov_b32 v{q}, v{s}"); fx.skip(1)
    a(f"v_permlane16_swap_b32 v{s}, v{q}", 2)
    ln_finish(a, s, q); a(f"v_rsq_f32 v{q}, v{q}", 2); fx.skip(1)
    fx.add(lambda: (k.ds(f"ds_write_b64 v{addr}, {vr(s,2)} offset:{tok*8}", ("saw", tag)), k.mark(("saw", tag))))

def a11_early(k):
    k.vm(f"buffer_load_dwordx4 {vr(A_ST,4)}, v{A_U}, {SRD_WS}, s90 offen offset:2048 sc1", "st0")
    for t in A11_ORDER[:2]:
        for f in a11_x(k, t): f()

def a11_main(k):
    R = R1; order = A11_ORDER
    steps = [(t, s) for t in order for s in range(16)]
    accof = lambda t: A_ACC + 12 * (order.index(t) % 3)
    def xread(i):
        t, s = steps[i]
        off = A11_POS[t] * 16384 + (s >> 1) * 1024
        k.ds(f"ds_read_b128 {vr(A_XF+4*(i%4),4)}, v{R.XO if s&1 else R.XE} offset:{off}", ("xf", i))
    mains = []; fixed = {}; gap_of = {}
    need_sa = {order[1]: ["st0"], order[2]: ["st1"], order[3]: [], "h": []}
    for i, (t, s) in enumerate(steps):
        acc = accof(t); xf = vr(A_XF + 4*(i % 4), 4)
        c = lambda r, s=s: "0" if s == 0 else vr(r, 4)
        ms = []
        if t != "h": ms.append(f"{MF16} {vr(acc,4)}, {ar(12*s,4)}, {xf}, {c(acc)}")
        ms.append(f"{MF16} {vr(acc+4,4)}, {ar(12*s+4,4)}, {xf}, {c(acc+4)}")
        ms.append(f"{MF16} {vr(acc+8,4)}, {xf}, {ar(12*s+8,4)}, {c(acc+8)}")
        gap_of[(t, s)] = len(mains)
        for m in ms: mains.append(lambda m=m: k.e(m))
        last = len(mains) - 1
        fl_ = fixed.setdefault(last, [])
        if i + 1 < len(steps): fl_.append((0, lambda i=i: k.wait(lg=[("xf", i + 1)])))
        j = i + 4
        if j < len(steps):
            tj, sj = steps[j]
            if sj == 0:
                def bar(tj=tj):
                    k.wait(vm=[("x", tj)], lg=[("saw", n) for n in need_sa[tj]]); k.e("s_barrier"); k.mark(("bar", tj))
                fixed.setdefault(gap_of[(t, s)], []).append((1, bar))
            fixed[last].append((1, lambda j=j: xread(j)))
    fx = Flex(); fz = Flex(); fz2 = Flex(); fy = Flex(); fm = Flex()
    k.e(f"s_and_b32 s32, s{sW}, 1", "s_lshl_b32 s32, s32, 7", f"v_add_u32 v7, s32, v{R.SA}")
    o_bases(k, 1)
    stats_path(k, fy, A_ST, "st0", 7, 48)
    g1 = P.a1_late_gap
    fm.add(lambda: (k.wait(vm=[("xst", 1)]), k.flag(2)), 3, P.a1_flag_gap)
    fm.add(lambda: k.poll_issue(A_PX, "px2"), 1, g1 - P.a1_poll_lead)
    fm.add(lambda: k.poll_check(A_PX, "px2", 2), 2, g1)
    fm.add(lambda: k.vm(f"buffer_load_dwordx4 {vr(56,4)}, v{A_U}, {SRD_WS}, s90 offen sc1", "st1"))
    for t in order[2:4]:
        for f in a11_x(k, t): fm.add(f, 2); fm.skip(P.a1_xgap)
    for f in wo_lanes(k): fy.add(f)
    fy.add(lambda: k.mark("wolanes"), 0)
    fm.dep("wolanes")
    fm.add(lambda: k.e(f"s_add_u32 s58, s64, {WS_X[1]}"))
    for p in range(2): fm.add(lambda p=p: k.vm(f"buffer_load_dwordx4 {vr(RES+4*p,4)}, v{W_UA}, {SRD_WS}, s58 offen offset:{p*512} sc1", "res")); fm.skip(P.a1_xgap)
    def halo_poll():
        k.poll_addr(A_PX, 16, 7)
        k.e(f"s_mov_b32 s{sPO}, s52", f"s_min_u32 s50, s{sB}, 1")
        k.poll_issue(A_PX, "phx"); k.bg_held = False
    fm.add(halo_poll, 3)
    if P.touch1 in (1, 2):
        fm.add(lambda: k.touch(60, "p", ["s_mov_b32 s32, s53"]), 6)
        fm.add(lambda: k.touch(62, "q", [f"s_add_u32 s32, s64, {BX1[1]}"]), 6)
        fm.add(lambda: k.touch(64, "t", [f"s_add_u32 s32, s65, {BS1[1]}"]), 4)
        if P.touch1 > 1: fm.add(lambda: k.touch(66, "h", h_base("s32", 1)), 6)
    stats_path(k, fy, 56, "st1", 7, 16, g1 + 26)
    fm.dep(("bar", order[2]))
    fm.add(lambda: k.poll_check(A_PX, "phx", "s50"), 2)
    fm.add(lambda: k.vm(f"buffer_load_dwordx4 {vr(A_ST,4)}, v{A_U+1}, {SRD_WS}, s51 offen sc1", "sth"))
    for f in a11_x(k, "h"): fm.add(f, 2); fm.skip(P.a1_xgap)
    stats_path(k, fy, A_ST, "sth", R.SA, 0, gap_of[(order[3], P.a1_sth)])
    k.per = dict(P.per_a1); k.bg_held = True
    b5 = batch(k, 5)
    mix = [(f, "s2", ("gw", 4), None) for f in batch(k, 4)] + [(f, "s2", ("gw", 5), None) for f in b5[:3]]
    ww = [(f, "s4", "wow", None) for f in wow(k)]
    while mix or ww:
        k.bg += ww[:2]; ww = ww[2:]
        if mix: k.bg.append(mix.pop(0))
    bg_batches(k, [0], "s2", lambda b: ("bar", order[3]))
    bg_batches(k, [1], "s2", lambda b: ("bar", "h"))
    bg_batches(k, [2, 3], "s2", lambda b: "wobar")
    bg_list(k, b5[3:], "s2", ("gw", 5), "wobar")
    bg_batches(k, [6, 7, 8, 9], "s2", lambda b: "gubar")
    A = lambda t: (accof(t) if t != "h" else None, accof(t) + 4, accof(t) + 8)
    for n in range(4): fix(k, R, fx, order[n], A(order[n]), gap_of[(order[n + 1], 1 if n < 3 else 2)], False)
    attn(k, R, fz, 3, R.ATT[0]); attn(k, R, fz2, 2, R.ATT[1]); ostore(k, fz2, 1)
    attn(k, R, fz, 1, R.ATT[0])
    fx.dep(("saw", "sth"))
    for f in fix_reads(k, R, "h", A_STA): fx.add(f)
    fx.dep("gemm_done")
    fix(k, R, fx, "h", A("h"), 0, False, pre=True); attn(k, R, fz2, 0, R.ATT[1]); ostore(k, fz2, 0)
    f3 = Flex(); f3.dep(("ost", 1)); f3.skip(P.l1_flag_delay)
    f3.add(lambda: (k.wait(vm=[("ost", 1)]), k.flag(1, 89), k.mark("oflag1")), 3)
    f3.dep(("attn", 0)); f3.add(lambda: wo_prepoll(k, 1))
    k.wait(vm=[("x", order[0])]); k.e("s_barrier")
    for i in range(4): xread(i)
    k.wait(lg=[("xf", 0)])
    k.stamp("a1 first")
    if k.stamping:
        for t in order[1:]: fixed.setdefault(gap_of[(t, 0)], []).append((0, lambda t=t: k.stamp(f"a1 t{t}")))
    run_gaps(k, mains, fixed, [fm, f3, fy, fx, fz2, fz], 2, over=lambda i: i >= P.a1_over)
    print("a11 left:", len(fm), len(fy), len(fx), len(fz), len(fz2), len(k.bg), {n: g for n, g in k.marks.items() if isinstance(n, tuple) and n[0] in ("fix", "attn", "saw", "ost")})
    k.mark("gemm_done"); k.bg_held = P.a1_tailhold
    k.stamp("a1 gemm")
    drain([fm, fy, fx, fz, fz2, f3], k)
    for n in range(2): assert k.marks[("fix", order[n])] < gap_of[(order[n + 3], 0)], "accumulator reused too early"
    k.stamp("a1 end")
P.a1_flag_gap, P.a1_late_gap, P.a1_poll_lead, P.l1_flag_delay, P.a1_over = 8, 36, 18, 22, 48
P.a1_salead = 8; P.a1_tailhold = True; P.touch1 = 1; P.a1_xgap = 3; P.a1_sth = 4
P.per_a1 = {"s2": 95, "s4": 60}

R_W0, R_W1, R_RD, R_ST, R_OUT = 3, 4, 5, 6, 7
def red_setup(k, posA, dAB):
    x, y, z, u = 28, 29, 30, 31
    k.e(f"s_add_u32 s32, s{sGL}, {posA*16384}", f"v_add_u32 v{R_W0}, s32, v{vL16}", f"v_xor_b32 v{R_W1}, 128, v{R_W0}")
    k.e(f"v_and_b32 v{x}, 7, v1", f"v_lshrrev_b32 v{y}, 3, v1", f"s_lshl_b32 s32, s{sW}, 7", f"v_lshl_add_u32 v{z}, v{x}, 4, s32",
        f"v_bfe_u32 v{u}, v1, 4, 1", f"v_lshlrev_b32 v{R_RD}, 7, v{u}", f"v_xor_b32 v{z}, v{z}, v{R_RD}",
        f"v_bfe_u32 v{R_RD}, v1, 3, 2", f"v_lshl_add_u32 v{z}, v{R_RD}, 10, v{z}", f"v_lshrrev_b32 v{R_RD}, 5, v1",
        f"v_mul_u32_u24 v{R_RD}, {dAB*16384}, v{R_RD}", f"v_add_u32 v{z}, v{z}, v{R_RD}", f"v_add_u32 v{R_RD}, {posA*16384}, v{z}")
    k.e(f"v_lshlrev_b32 v{z}, 4, v{x}", f"v_lshl_add_u32 v{z}, v{u}, 2, v{z}", f"v_and_b32 v{u}, 0x28, v1",
        f"v_cmp_eq_u32 vcc, 0, v{u}", f"v_mov_b32 v{u}, {OOB:#x}", f"v_cndmask_b32 v{R_ST}, v{u}, v{z}, vcc")
    k.e(f"v_lshlrev_b32 v{z}, 10, v{x}", f"v_lshl_add_u32 v{R_OUT}, v{y}, 4, v{z}")

def red_bases(k):
    k.e(f"s_lshl_b32 s32, s{sB}, 3", f"s_add_u32 s32, s32, s{sW}", "s_lshl_b32 s55, s32, 13", f"s_lshl_b32 s33, s{sCS}, 10", "s_add_u32 s55, s55, s33")
    k.e("s_lshl_b32 s57, s32, 13", f"s_lshl_b32 s33, s{sCS}, 7", "s_add_u32 s57, s57, s33")
    k.e(f"s_lshl_b32 s56, s{sB}, 12", f"s_lshr_b32 s33, s{sCS}, 1", "s_lshl_b32 s33, s33, 9", "s_add_u32 s56, s56, s33",
        f"s_and_b32 s33, s{sCS}, 1", "s_lshl_b32 s33, s33, 3", "s_add_u32 s56, s56, s33", f"s_lshl_b32 s33, s{sW}, 7", "s_add_u32 s56, s56, s33")

def red_writes(k, acc, g, off, dAB):
    return [lambda q=q: k.ds(f"ds_write_b128 v{R_W1 if (q>>1)&1 else R_W0}, {vr(acc+4*q,4)} offset:{off + (q>>2)*dAB*16384 + (q&3)*1024}", ("rw", g)) for q in range(8)]
def red_reads(k, g, T, off):
    return [lambda w=w, hf=hf: k.ds(f"ds_read_b128 {vr(T+8*w+4*hf,4)}, v{R_RD} offset:{off + w*4096 + hf*512}", ("rr", g, w)) for w in range(4) for hf in range(2)]

def red_finish(k, fx, g, mm, T, xdst, stdst, final, pk):
    a = lambda txt, c=1: fx.add(lambda: k.e(txt), c)
    R = RES + 4 * mm
    def add8(d, s):
        if pk:
            for i in range(0, 8, 2): a(f"v_pk_add_f32 {vr(d+i,2)}, {vr(d+i,2)}, {vr(s+i,2)}")
        else:
            for i in range(8): a(f"v_add_f32 v{d+i}, v{d+i}, v{s+i}")
    fx.add(lambda: k.wait(lg=[("rr", g, 1)]))
    add8(T, T + 8)
    for i in range(4): a(f"v_lshlrev_b32 v{T+8+2*i}, 16, v{R+i}"); a(f"v_and_b32 v{T+9+2*i}, 0xffff0000, v{R+i}")
    add8(T, T + 8)
    fx.add(lambda: k.wait(lg=[("rr", g, 3)]))
    add8(T + 16, T + 24); add8(T, T + 16)
    for i in range(4): a(f"v_cvt_pk_bf16_f32 v{R+i}, v{T+2*i}, v{T+2*i+1}")
    if final:
        fx.add(lambda: (k.e(f"s_add_u32 s32, s57, {mm*32768}"), k.vm(f"buffer_store_dwordx4 {vr(R,4)}, v{R_OUT}, {SRD_OUT}, s32 offen {P.outm}", ("xst", g))))
        return
    fx.add(lambda: (k.e(f"s_add_u32 s32, s55, {xdst + mm*32768}"), k.dstore(f"buffer_store_dwordx4 {vr(R,4)}, v{vL16}, {SRD_WS}, s32 offen", ("xst", g))), 2)
    s, q = T + 32, T + 33
    a(f"v_add_f32 v{s}, v{T}, v{T+1}"); a(f"v_mul_f32 v{q}, v{T}, v{T}"); a(f"v_fmac_f32 v{q}, v{T+1}, v{T+1}")
    for i in range(2, 8): a(f"v_add_f32 v{s}, v{s}, v{T+i}"); a(f"v_fmac_f32 v{q}, v{T+i}, v{T+i}")
    fx.skip(1)
    a(f"v_add_f32_dpp v{s}, v{s}, v{s} row_ror:8 row_mask:0xf bank_mask:0xf"); a(f"v_add_f32_dpp v{q}, v{q}, v{q} row_ror:8 row_mask:0xf bank_mask:0xf")
    fx.skip(1)
    a(f"v_permlane16_swap_b32 v{s}, v{q}", 2); a(f"v_add_f32 v{s}, v{s}, v{q}"); a(f"v_mov_b32 v{q}, v{s}"); fx.skip(1)
    a(f"v_permlane32_swap_b32 v{s}, v{q}", 2); a(f"v_add_f32 v{s}, v{s}, v{q}")
    fx.add(lambda: (k.e(f"s_add_u32 s32, s56, {stdst + mm*2048}"), k.dstore(f"buffer_store_dword v{s}, v{R_ST}, {SRD_WS}, s32 offen", ("xst", g)), k.mark(("xst", g))), 2)

def merge(k, fx, extra, first=0):
    extra = list(extra)
    items = [it for it in fx.items if it[0] != "skip"]; fx.items = []
    per = max(1, (len(items) - first) // max(1, len(extra)))
    for n, it in enumerate(items):
        if n >= first and (n - first) % per == 0 and extra: extra.pop(0)()
        it[1](); k.bg_step()
    for f in extra: f(); k.bg_step()

def wo(k, layer):
    BF, WQ, ACC, T, PA, NQ = 32, 160, 192, 208, A_PA, 8
    def bload(sx):
        if sx % 2 == 0: k.e(f"s_add_u32 s58, s59, {sx*2048}")
        k.vm(f"buffer_load_dwordx4 {vr(BF+4*sx,4)}, v{W_OA}, {SRD_WS}, s58 offen offset:{(sx%2)*2048} sc1", ("b", sx))
    def wread(n): k.ds(f"ds_read_b128 {vr(WQ+4*(n%NQ),4)}, v{W_RB} offset:{n*1024}", ("wq", n))
    k.wait(vm=["wow"]); k.e("s_barrier"); k.mark("wobar")
    for n in range(NQ): wread(n)
    k.e(f"s_add_u32 s{sFO}, s66, {fl(layer, FL_X1)}")
    k.e(f"s_cmp_lt_u32 s{sW}, 2", f"s_cbranch_scc1 L_wo_late{layer}")
    q0 = list(k.vmq)
    k.poll_check(PA, "po1", 1)
    for sx in range(P.wo_lead): bload(sx)
    k.wait(vm=[("ost", 0)]); k.flag(2, 89)
    k.e(f"s_branch L_wo_join{layer}")
    k.label(f"L_wo_late{layer}")
    k.vmq = list(q0)
    k.wait(vm=[("ost", 0)]); k.flag(2, 89)
    k.poll_issue(PA, "po2"); k.poll_check(PA, "po2", 2)
    for sx in range(P.wo_lead): bload(sx)
    k.label(f"L_wo_join{layer}")
    k.stamp("wo issued")
    mains = []; fixed = {}
    for n in range(64):
        sx, j = divmod(n, 4)
        mains.append(lambda n=n, sx=sx, j=j: k.e(f"{MF16} {vr(ACC+4*j,4)}, {vr(WQ+4*(n%NQ),4)}, {vr(BF+4*sx,4)}, {'0' if sx == 0 else vr(ACC+4*j,4)}"))
        fl_ = fixed.setdefault(n, [])
        if n < 63: fl_.append((0, lambda n=n: k.wait(vm=[("b", (n + 1) // 4)] if (n + 1) % 4 == 0 else None, lg=[("wq", n + 1)])))
        if n + NQ < 64: fl_.append((1, lambda n=n: wread(n + NQ)))
        if n % P.wo_bstep == 0 and P.wo_lead + n // P.wo_bstep < 16: fl_.append((1, lambda n=n: bload(P.wo_lead + n // P.wo_bstep)))
    fx = Flex()
    a = lambda txt, c=1, at=0: fx.add(lambda: k.e(txt), c, at)
    fx.add(lambda: k.wait(vm=["res"]), 1, 8)
    for i in range(8): a(f"v_lshlrev_b32 v{T+2*i}, 16, v{RES+i}"); a(f"v_and_b32 v{T+2*i+1}, 0xffff0000, v{RES+i}")
    k.per = dict(P.per_wo[layer]); k.bg_held = False; k.bg_next = k.t + P.wo_bg_delay
    k.wait(vm=[("b", 0)], lg=[("wq", 0)])
    k.stamp("wo first")
    fixed[P.wo_bg_stop].append((0, lambda: setattr(k, "bg_held", True)))
    run_gaps(k, mains, fixed, [fx], 2)
    drain([fx], k)
    k.stamp("wo gemm")
    for i in range(0, 16, 2): k.e(f"v_pk_add_f32 {vr(T+i,2)}, {vr(T+i,2)}, {vr(ACC+i,2)}")
    k.e(f"s_add_u32 s58, s64, {BX1[layer]}")
    for p in range(2):
        for i in range(4): k.e(f"v_cvt_pk_bf16_f32 v{RES+4*p+i}, v{T+8*p+2*i}, v{T+8*p+2*i+1}")
        k.dstore(f"buffer_store_dwordx4 {vr(RES+4*p,4)}, v{W_UA}, {SRD_WS}, s58 offen offset:{p*512}", "xst")
    S, Q = T + 16, T + 18
    k.e(f"v_pk_add_f32 {vr(S,2)}, {vr(T,2)}, {vr(T+2,2)}", f"v_pk_mul_f32 {vr(Q,2)}, {vr(T,2)}, {vr(T,2)}", f"v_pk_fma_f32 {vr(Q,2)}, {vr(T+2,2)}, {vr(T+2,2)}, {vr(Q,2)}")
    for i in range(4, 16, 2): k.e(f"v_pk_add_f32 {vr(S,2)}, {vr(S,2)}, {vr(T+i,2)}", f"v_pk_fma_f32 {vr(Q,2)}, {vr(T+i,2)}, {vr(T+i,2)}, {vr(Q,2)}")
    k.e(f"v_add_f32 v{S}, v{S}, v{S+1}", f"v_add_f32 v{Q}, v{Q}, v{Q+1}", f"s_add_u32 s58, s65, {BS1[layer]}",
        f"v_permlane16_swap_b32 v{S}, v{Q}", f"v_add_f32 v{S}, v{S}, v{Q}", f"v_mov_b32 v{Q}, v{S}", f"v_permlane32_swap_b32 v{S}, v{Q}", f"v_add_f32 v{S}, v{S}, v{Q}")
    k.dstore(f"buffer_store_dword v{S}, v{W_SA}, {SRD_WS}, s58 offen", "xst")
    key = lambda it: it[2][1] if isinstance(it[2], tuple) else 11.5
    k.bg.sort(key=key)
    print(f"wo{layer} done, background left:", [it[2] for it in k.bg][::4])
    k.bg_burst(P.wo_win[layer])
    k.stamp("wo end")
P.wo_bg_delay = 200; P.wo_bg_stop = 56; P.wo_lead = 6; P.wo_bstep = 2
P.wo_poll_gap = 1; P.wo_late_gap = 7; P.wo_hold = True; P.wo_win = [4, 4]; P.wo_var = 'B'; P.wo_prew = 2
P.per_wo = [{"s2": 50, "s4": 50}] * 2

G_RB, G_C1, G_VV, G_AUG, G_X, G_ACC, G_WF, G_T = 3, 6, 7, 28, 32, 160, 224, 240
D_WV, D_BF, D_ACC, D_T, D_WF, D_RB, D_PA = 32, 64, 128, 192, 228, 112, 115
def gu(k, layer):
    T = G_T; XA = T + 3; PA = T + 2
    k.e(*gu_tile("s50"))
    k.poll_addr(PA, 16)
    k.e(f"v_and_b32 v{T}, 31, v1", "s_lshl_b32 s32, s50, 6", f"s_add_u32 s{sPO}, s32, {fl(layer, FL_X1)}")
    k.e(f"v_mov_b32 v{G_RB}, v{vL16}", f"v_add_u32 v{G_RB+1}, 0x10000, v{vL16}", f"v_add_u32 v{G_RB+2}, 0x20000, v{vL16}")
    k.e(f"v_lshrrev_b32 v{T+1}, 5, v1", f"v_lshlrev_b32 v{G_AUG+3}, 4, v{T}", f"v_lshl_add_u32 v{G_AUG+3}, v{T+1}, 10, v{G_AUG+3}")
    k.e(f"v_lshrrev_b32 v{XA}, 3, v{T}", f"v_lshlrev_b32 v{XA}, 13, v{XA}", f"v_lshl_add_u32 v{XA}, v{T+1}, 7, v{XA}",
        f"v_and_b32 v{T}, 7, v1", f"v_lshl_add_u32 v{XA}, v{T}, 4, v{XA}")
    k.e("s_lshl_b32 s32, s50, 11", f"s_add_u32 s51, s32, {BS1[layer]}")
    k.e("s_lshl_b32 s32, s50, 15", f"s_add_u32 s52, s32, {BX1[layer]}", "s_add_u32 s53, s52, 4096")
    k.e(*h_base("s54", layer))
    k.wait(vm=["xst"]); k.flag(1)
    k.stamp("x1 flag")
    k.poll_issue(PA, "px1")
    k.e("s_lshr_b32 s32, s50, 1", "s_lshl_b32 s32, s32, 4", f"s_add_u32 s32, s32, s{sM}",
        "s_lshl_b32 s32, s32, 1", "s_and_b32 s33, s50, 1", "s_add_u32 s32, s32, s33", "s_lshl_b32 s32, s32, 2", f"s_add_u32 s{sFO}, s32, {fl(layer, FL_H)}")
    seq = [(t, ks) for ks in range(33) for t in range(3)] + [(t, ks) for t in range(3, 7) for ks in range(33)]
    accof = {0: 0, 1: 1, 2: 2, 3: 3, 4: 0, 5: 1, 6: 2}
    NW = P.gu_nw
    WQ = [G_WF, G_WF + 4, G_WF + 8, G_WF + 12, T + 12]
    def wread(n):
        slot = (n % 160) * 1024
        k.ds(f"ds_read_b128 {vr(WQ[n%NW],4)}, v{G_RB + (slot>>16)} offset:{slot & 0xffff}", ("wf", n))
    k.poll_check(PA, "px1", 1)
    k.stamp("gu go")
    def xload(kg): k.vm(f"buffer_load_dwordx4 {vr(G_X+4*kg,4)}, v{XA}, {SRD_WS}, s{52 + (kg>>4)} offen offset:{((kg>>2)&3)*1024 + (kg&3)*256} sc1", ("gx", kg))
    for kg in range(P.gu_lead): xload(kg)
    k.vm(f"buffer_load_dwordx4 {vr(T+4,4)}, v{G_AUG+3}, {SRD_WS}, s51 offen sc1", "gst")
    k.vm(f"buffer_load_dwordx4 {vr(T+8,4)}, v{G_AUG+3}, {SRD_WS}, s51 offen offset:512 sc1", "gst")
    k.wait(vm=[("gw", 0)]); k.e("s_barrier"); k.mark("gubar")
    for n in range(NW): wread(n)
    mains = []; fixed = {}
    xpos = {}
    for kg in range(P.gu_lead, 32): xpos.setdefault(int((kg - P.gu_lead) * P.gu_xstep), []).append(kg)
    for n, (t, ks) in enumerate(seq):
        acc = G_ACC + 16 * accof[t]
        b = vr(G_AUG, 4) if ks == 32 else vr(G_X + 4*ks, 4)
        c = "0" if ks == 0 else vr(acc, 16)
        mains.append(lambda n=n, acc=acc, b=b, c=c: k.e(f"{MF32} {vr(acc,16)}, {vr(WQ[n%NW],4)}, {b}, {c}"))
        fl_ = fixed.setdefault(n, [])
        if n + 1 < len(seq):
            t2, ks2 = seq[n + 1]
            need = [("gx", ks2)] if (t2 == 0 and ks2 < 32) else None
            fl_.append((0, lambda n=n, need=need: k.wait(vm=need, lg=[("wf", n + 1)])))
        j = n + NW
        if j < len(seq):
            if j % 16 == 0:
                fl_.append((2, lambda bi=j//16: (k.wait(vm=[("gw", bi)]), k.e("s_barrier" if not P.x_nobar else "s_nop 0"), k.mark(("gbar", bi)))))
            fl_.append((1, lambda j=j: wread(j)))
        for kg in xpos.get(n, []): fl_.append((1, lambda kg=kg: xload(kg)))
    xend = max(xpos)
    tail = [it for it in k.bg if it[2] == "dna"]; k.bg = [it for it in k.bg if it[2] != "dna"]
    bg_batches(k, [10, 11], "s2", lambda b: ("gbar", b - 8))
    mid = []
    for b in (12, 13, 14):
        for f in batch(k, b): mid.append((f, "s2", ("gw", b), ("gbar", b - 8)))
    while mid or tail:
        if mid: k.bg.append(mid.pop(0))
        if tail: k.bg.append(tail.pop(0))
    bg_batches(k, range(15, 23), "s4", lambda b: ("gbar", b - 8))
    k.per = dict(P.per_guA[layer]); k.bg_held = False; k.bg_next = k.t + P.gu_bg_delay
    fixed[xend].append((0, lambda: setattr(k, "per", dict(P.per_guB[layer]))))
    fv = Flex()
    for j, f in enumerate(regloads(k, sDS, 48*1024, lambda j: vr(D_WV + 4*j, 4), 8, "dnv", tmp=50)): fv.add(f, 1, 198 + 2 + 3*j)
    fx = Flex()
    a = lambda txt, c=1, at=0: fx.add(lambda: k.e(txt), c, at)
    fx.add(lambda: k.wait(vm=["gst"]), 1, 3 * P.gu_lead)
    a(f"v_add_f32 v{T+4}, v{T+4}, v{T+6}"); a(f"v_add_f32 v{T+5}, v{T+5}, v{T+7}"); a(f"v_add_f32 v{T+8}, v{T+8}, v{T+10}"); a(f"v_add_f32 v{T+9}, v{T+9}, v{T+11}")
    a(f"v_add_f32 v{T+4}, v{T+4}, v{T+8}"); a(f"v_add_f32 v{T+5}, v{T+5}, v{T+9}"); fx.skip(1)
    a(f"v_permlane32_swap_b32 v{T+4}, v{T+5}", 2); a(f"v_add_f32 v{T+4}, v{T+4}, v{T+5}"); a(f"v_mov_b32 v{T+5}, v{T+4}"); fx.skip(1)
    a(f"v_permlane32_swap_b32 v{T+4}, v{T+5}", 2)
    ln_finish(a, T + 4, T + 5)
    a(f"v_mov_b32 v{G_VV}, v{T+5}")
    a(f"v_rsq_f32 v{G_C1}, v{T+5}", 2); a(f"v_cvt_pk_bf16_f32 v{G_AUG}, v{T+4}, v{T+4}"); a(f"v_mul_f32 v{G_C1}, {f2u(-LOG2E):#x}, v{G_C1}")
    a(f"v_and_b32 v{T+5}, 0xffff0000, v{G_AUG}"); a(f"v_sub_f32 v{T+5}, v{T+4}, v{T+5}"); a(f"v_mov_b32 v{G_AUG+2}, 0")
    a(f"v_cvt_pk_bf16_f32 v{G_AUG+1}, v{T+5}, v{G_AUG+2}"); a(f"v_mov_b32 v{G_AUG+3}, 0")
    fx.add(lambda: k.mark("aug"), 0)
    def epi(t, at):
        acc = G_ACC + 16 * accof[t]; hp = T + 8; E = T + 4
        if P.x_noepi: a("s_nop 0", 1, at)
        for i0 in range(0, 8 if not P.x_noepi else 0, 2):
            for i in (i0, i0 + 1): a(f"v_mul_f32 v{E+(i&1)}, v{G_C1}, v{acc+i}", 1, at)
            for i in (i0, i0 + 1): a(f"v_exp_f32 v{E+(i&1)}, v{E+(i&1)}", 2)
            for i in (i0, i0 + 1): a(f"v_mul_f32 v{E+2+(i&1)}, v{acc+i}, v{acc+8+i}")
            for i in (i0, i0 + 1): a(f"v_fma_f32 v{E+(i&1)}, v{E+(i&1)}, v{G_VV}, v{G_VV}")
            for i in (i0, i0 + 1): a(f"v_rcp_f32 v{E+(i&1)}, v{E+(i&1)}", 2)
            fx.skip(1)
            for i in (i0, i0 + 1): a(f"v_mul_f32 v{E+2+(i&1)}, v{E+2+(i&1)}, v{E+(i&1)}")
            a(f"v_cvt_pk_bf16_f32 v{hp+i0//2}, v{E+2}, v{E+3}")
        fx.add(lambda: k.mark(("epi", t)), 0)
        if t == 4: a("s_add_u32 s54, s54, 4096")
        fx.add(lambda: ((k.dstore if ((layer and P.h1_plain) or (not layer and P.h_touch0)) else lambda x, tg: k.vm(x + " sc1", tg))(f"buffer_store_dwordx4 {vr(hp,4)}, v{vL16}, {SRD_WS}, s54 offen offset:{(t%4)*1024}", ("hst", t)), k.mark(("hst", t))), 2)
    end = {t: max(n for n, x in enumerate(seq) if x[0] == t) for t in range(7)}
    for t in range(6): epi(t, end[t] + 3)
    if layer == 0 and P.h_touch0 == "g": fixed[xend + 1].append((5, lambda: k.touch(T, "h", ["s_mov_b32 s32, s54"])))
    ff = Flex(); ff.dep(("hst", 3))
    if layer == 0:
        ff.add(lambda: k.touch(T, "p", [f"s_add_u32 s32, s55, {WS_X[1]}"]), 6)
        ff.add(lambda: k.touch(T + 1, "s", [f"s_add_u32 s32, s56, {WS_ST[1]}"]), 4)
        if "g" in str(P.touch1):
            for f in touch_next(k, T + 2)[:2]: ff.skip(1); ff.add(f, 6)
    ff.skip(P.gu_flag_delay)
    ff.add(lambda: (k.wait(vm=[("hst", 3)]), k.flag(1)), 3)
    def hpoll():
        k.wait(vm=["touch"] if "touch" in k.seen else None)
        k.poll_addr(T, 8)
        k.e(f"s_lshl_b32 s32, s{sB}, 7", f"s_lshl_b32 s33, s{sW}, 5", "s_add_u32 s32, s32, s33", f"s_add_u32 s{sPO}, s32, {fl(layer, FL_H)}")
        k.poll_issue(T, "ph1")
    ff.add(hpoll, 4, 228)
    k.wait(vm=[("gx", 0)], lg=[("wf", 0)])
    k.stamp("gu first")
    if k.stamping:
        for g in (48, 98, 131, 164, 197): fixed[g].append((0, lambda g=g: k.stamp(f"gu m{g}")))
    fixed[93].append((0, lambda: k.marks["aug"]))
    run_gaps(k, mains, fixed, [fv, ff, fx], P.gu_cap)
    print("gu left:", len(k.bg), len(fv), len(ff), len(fx), {n: g for n, g in k.marks.items() if isinstance(n, tuple) and n[0] == "hst"})
    k.stamp("gu gemm")
    for g, t in {132: 0, 165: 1, 198: 2}.items(): assert k.marks[("epi", t)] < g, "accumulator reused too early"
    epi(6, 0); drain([ff, fv, fx], k)
    k.e(f"v_mov_b32 v{D_PA}, v{T}")
    k.stamp("gu end")
P.gu_flag_delay = 10; P.gu_xstep = 2.6; P.gu_bg_delay = 300
P.per_guA = [{"s2": 120, "s4": 120}, {"s2": 160, "s4": 160}]
P.per_guB = [{"s2": 90, "s4": 55}] * 2

def dn(k, layer):
    final = layer == 1
    NB = P.dn_lead; T = D_T
    groups = [1, 0]
    k.e(f"s_mul_i32 s32, s{sB}, {224*KB}", f"s_mul_i32 s33, s{sW}, {28*KB}", "s_add_u32 s32, s32, s33", f"s_add_u32 s59, s32, {BH[layer]}")
    seq = [(g, e) for g in range(2) for e in range(28)]
    state = {"base": None}
    def bload(i):
        g, e = seq[i]; off = groups[g] * 112 * KB + KK_OF[e] * 1024
        if state["base"] is None or not (0 <= off - state["base"] < 4096):
            state["base"] = off; k.e(f"s_add_u32 s58, s59, {off}")
        k.vm(f"buffer_load_dwordx4 {vr(D_BF+4*(i%NB),4)}, v{vL16}, {SRD_WS}, s58 offen offset:{off - state['base']} sc1", ("b", i))
    k.poll_check(D_PA, "ph1", 1)
    k.stamp("dn early")
    k.bg_held = True
    for i in range(P.dn_pre): bload(i)
    red_setup(k, 3, 1)
    k.e(f"v_add_u32 v{D_RB}, s{sGL}, v{vL16}", f"v_add_u32 v{D_RB+1}, 0x10000, v{D_RB}", f"v_add_u32 v{D_RB+2}, 0x20000, v{D_RB}")
    k.wait(vm=[("hst", 6)]); k.flag(2)
    k.poll_issue(D_PA, "ph2")
    for i in range(P.dn_pre, NB): bload(i)
    k.e(f"s_add_u32 s{sFO}, s89, {FL_X2 - FL_O}")
    k.per = dict(P.per_dn0); k.bg_held = False
    lds = [(i, nn) for i, (g, e) in enumerate(seq) if 8 <= e < 24 for nn in range(2)]
    slot_of = {x: n for n, x in enumerate(lds)}
    NWF = 6
    def wread(n):
        i, nn = lds[n]; j = 2 * (seq[i][1] - 8) + nn; b = 15 + (j >> 2)
        ad = (b % 10) * 16384 + (j & 3) * 1024
        if seq[i][0] == 0: k.wait(vm=[("gw", b)])
        k.ds(f"ds_read_b128 {vr(D_WF+4*(n%NWF),4)}, v{D_RB + (ad>>16)} offset:{ad & 0xffff}", ("wf", n))
    def wfrag(i, nn):
        e = seq[i][1]
        if e < 8: return ar(192 + 8*e + 4*nn, 4)
        if e >= 24: return vr(D_WV + 8*(e - 24) + 4*nn, 4)
        return vr(D_WF + 4*(slot_of[(i, nn)] % NWF), 4)
    mains = []; fixed = {}
    late = 16 - NB
    for i, (g, e) in enumerate(seq):
        for nn in range(2):
            acc = D_ACC + 32 * g + 16 * nn
            mains.append(lambda i=i, nn=nn, acc=acc, e=e: k.e(f"{MF32} {vr(acc,16)}, {wfrag(i,nn)}, {vr(D_BF+4*(i%NB),4)}, {'0' if e == 0 else vr(acc,16)}"))
            gp = len(mains) - 1; fl_ = fixed.setdefault(gp, [])
            nx = (i, 1) if nn == 0 else (i + 1, 0)
            vmn = [("b", i + 1)] if (nn == 1 and i + 1 < len(seq)) else None
            lgn = [("wf", slot_of[nx])] if nx in slot_of else None
            if nn == 1 and i + 1 == 24: vmn = vmn + ["dnv"]
            fl_.append((0, lambda vmn=vmn, lgn=lgn: k.wait(vm=vmn, lg=lgn)))
            ah = (i + 2, nn)
            if ah in slot_of: fl_.append((1, lambda n=slot_of[ah]: wread(n)))
    nxt = NB; pend = 0
    for i in range(len(seq)):
        fl_ = fixed[2*i + 1]
        if i == P.dn_late: fl_.append((2, lambda: (k.poll_check(D_PA, "ph2", 2), k.stamp("dn late"), k.mark("late"))))
        n = 0
        while nxt < len(seq) and nxt <= i + NB and n < 2 and (nxt < 16 or i >= P.dn_late):
            fl_.append((1, lambda j=nxt: bload(j))); nxt += 1; n += 1
        if nxt == len(seq) and not pend: pend = 2*i + 2
    fixed[20].append((1, lambda: k.e("s_barrier")))
    for mm in range(2):
        fixed[40 + 4*mm].append((2, lambda mm=mm: (k.e(f"s_add_u32 s32, s55, {BX1[layer] + mm*32768}"),
                                                   k.vm(f"buffer_load_dwordx4 {vr(RES+4*mm,4)}, v{vL16}, {SRD_WS}, s32 offen sc1", "res"))))
    fw = Flex(); fs = Flex()
    for q, f in enumerate(red_writes(k, D_ACC, 0, 0, 1)): fw.add(f, 1, 58 + 2*q)
    fw.add(lambda: (k.wait(lg=[("rw", 0)]), k.e("s_barrier")), 2, 76)
    for f in red_reads(k, 0, T, 0): fw.add(f, 2)
    fw.add(lambda: k.wait(vm=["res"]))
    red_finish(k, fw, 0, groups[0], T, WS_X[1], WS_ST[1], final, False)
    if not final:
        fw.add(lambda: k.vm(f"buffer_store_dwordx4 {vr(RES+4,4)}, v{vL16}, {SRD_WS}, s72 offen sc1", "hxs"))
        fw.add(lambda: k.vm(f"buffer_store_dword v{T+32}, v{R_ST}, {SRD_WS}, s73 offen sc1", "hxs"))
        fw.skip(P.dn_flag_delay); fw.add(lambda: (k.wait(vm=[("xst", 0)]), k.flag(1)), 3)
        if "d" in str(P.touch1):
            for q, f in enumerate(touch_next(k, 28)): fixed[P.dn_touch + 2*q].append((5, f))
        fs.dep("late")
        for f in a11_bases(k) + a1_setup(k, 1): fs.add(f)
        fs.add(lambda: (k.poll_addr(A_PX, 32), k.e(f"s_lshl_b32 s32, s{sB}, 7", f"s_add_u32 s{sPO}, s32, {fl(0, FL_X2)}")), 4)
    k.wait(vm=["dna", ("b", 0)])
    k.stamp("dn first")
    if k.stamping: fixed[55].append((0, lambda: k.stamp("dn p1")))
    run_gaps(k, mains, fixed, [fw, fs], 6)
    print("dn left:", len(k.bg), len(fw), len(fs), "last h load at gap", pend)
    k.stamp("dn gemm")
    assert not fs.items
    ws = red_writes(k, D_ACC + 32, 1, 2*16384, 1)
    if not final: ws.insert(4, lambda: k.poll_issue(A_PX, "px0"))
    merge(k, fw, ws)
    k.wait(lg=[("rw", 1)]); k.e("s_barrier")
    k.stamp("dn red")
    for f in red_reads(k, 1, T, 2*16384): f()
    if not final:
        k.bg_held = True
        k.poll_check(A_PX, "px0", 1)
        k.wait(vm=["hxs"]); k.flag(1, 91, "sc1")
        a11_early(k)
    f1 = Flex(); red_finish(k, f1, 1, groups[1], T, WS_X[1], WS_ST[1], final, True); drain([f1], k)
    k.stamp("dn end")
P.dn_touch = 88; P.dn_flag_delay = 4; P.dn_pre = 8; P.dn_late = 7
P.dn_wow = 6; P.per_dn = {"s4": 110, "s2": 130}; P.per_dn0 = {"s4": 60, "s2": 60}

def build(stamps=False, only=None):
    k = F(); k.stamping = stamps; k.only = only; k.st = P.dst; k.rt = P.rt
    name = NAME + "_kernel"
    k.e(".p2align 8", f".globl {name}", f".type {name},@function"); k.label(name)
    if stamps: k.e("s_memrealtime s[92:93]", "s_memtime s[94:95]")
    k.e("s_cmp_ge_u32 s2, 256", "s_cbranch_scc1 L_end")
    k.e("s_load_dwordx16 s[64:79], s[0:1], 0", "s_load_dwordx4 s[80:83], s[0:1], 64", "s_memrealtime s[96:97]")
    k.e("s_getpc_b64 s[100:101]")
    k.e("L_pc: ;np")
    k.e("s_mov_b32 s24, s100", "s_mov_b32 s25, s101", "s_mov_b32 s26, L_end-L_pc", "s_mov_b32 s27, 0x20000",
        "v_and_b32 v1, 63, v0", "v_lshrrev_b32 v2, 6, v0", "s_lshr_b32 s33, s2, 3", "s_mul_i32 s32, s33, 43", "s_lshr_b32 s32, s32, 8",
        "s_mul_i32 s32, s32, 6", "s_sub_u32 s32, s33, s32", "s_lshl_b32 s32, s32, 13", "v_lshlrev_b32 v3, 11, v2", "v_lshl_add_u32 v3, v1, 7, v3",
        f"v_mov_b32 v4, {OOB:#x}", "v_cmp_gt_u32 vcc, 16, v1", f"v_readfirstlane_b32 s{sW}, v2", "v_cndmask_b32 v3, v4, v3, vcc")
    if P.code0: k.vm(f"buffer_load_dword v175, v3, {SRD_PK}, s32 offen", "code")
    k.e("s_and_b32 s32, s2, 7", f"s_and_b32 s{sM}, s33, 15", "s_lshr_b32 s33, s33, 4", "s_lshl_b32 s32, s32, 1", f"s_add_u32 s{sC}, s32, s33")
    k.e(f"s_lshr_b32 s33, s{sM}, 3", f"s_lshl_b32 s{sB}, s{sC}, 1", f"s_add_u32 s{sB}, s{sB}, s33", f"s_and_b32 s{sCS}, s{sM}, 7")
    k.e("v_lshlrev_b32 v2, 4, v1")
    a10_lanes(k)
    k.e("s_waitcnt lgkmcnt(0)")
    srd(k, 12, 64, 2048 * 1024); srd(k, 16, 66, 512 * 3072)
    k.e(f"s_or_b32 s{sTAG}, s96, 1")
    if stamps:
        k.stamps += ["rt0", "start"]; k.e("v_writelane_b32 v0, s92, 0", f"v_writelane_b32 v0, s{92 if P.rt else 94}, 1")
    k.stamp("s kernarg")
    pack_issue(k)
    k.stamp("s pkissue")
    run(a10_x(k, 0) + a10_w(k, 0))
    srd(k, 28, 80, 256)
    k.e("v_cmp_eq_u32 vcc, 0, v1", f"v_mov_b32 v{vFA}, {OOB:#x}", f"s_or_b32 s32, s2, s{sW}", f"v_cndmask_b32_e64 v{vFA}, v{vFA}, 0, vcc",
        "s_cmp_eq_u32 s32, 0", f"s_cselect_b32 s32, 0, {OOB>>1:#x}", f"v_mov_b32 v170, s{sTAG}")
    k.vm(f"buffer_store_dword v170, v{vFA}, {SRD_DBG}, s32 offen sc1", "tagst")
    srd(k, 8, 82, WS_SIZE); srd(k, 20, 78, 2048 * 1024)
    for f in a1_setup(k, 0): f()
    o_bases(k, 0)
    a10_lanes2(k)
    k.e(f"v_mov_b32 v60, {OOB:#x}", "v_cmp_gt_u32 vcc, 8, v1", "v_mov_b32 v176, 0", "v_mov_b32 v177, 0", "v_mov_b32 v178, 0", "v_mov_b32 v179, 0",
        f"v_cndmask_b32 v173, v60, v{vL16}, vcc", "v_cmp_gt_u32 vcc, 16, v1", f"s_getreg_b32 s{sXCC}, hwreg(HW_REG_XCC_ID, 0, 4)",
        f"s_lshl_b32 s32, s{sC}, 4", f"v_cndmask_b32 v172, v60, v{vL16}, vcc")
    k.e(f"s_add_u32 s32, s32, s{sM}", "s_lshl_b32 s32, s32, 4",
        f"s_cmp_eq_u32 s{sW}, 0", f"s_cselect_b32 s32, s32, {OOB>>1:#x}", f"v_add_u32 v171, s32, v{vFA}", f"s_mov_b32 s{sBUD}, 100000",
        f"s_mov_b32 s75, {WS_ARR}", f"s_lshl_b32 s77, s{sC}, 8", "s_add_u32 s77, s77, s75")
    red_bases(k)
    k.e(f"s_lshl_b32 s{sGL}, s{sW}, 12", f"s_mul_i32 s{sGS}, s{sM}, {PGU_SLICE}", f"s_add_u32 s{sGS}, s{sGS}, s{sGL}", f"s_add_u32 s{sGS}, s{sGS}, {WS_PGU}")
    k.e(f"s_mul_i32 s32, s{sCS}, {224*KB}", f"s_mul_i32 s33, s{sW}, {56*KB}", "s_add_u32 s32, s32, s33", f"s_add_u32 s{sDS}, s32, {WS_PDN}")
    k.e(f"s_lshl_b32 s32, s{sCS}, 16", f"s_add_u32 s32, s32, s{sGL}", f"s_add_u32 s88, s32, {WS_PWO}")
    wo_bases(k)
    k.stamp("s setup")
    run(a10_w(k, 1))
    k.stamp("s w01")
    def mid2():
        run(a10_w(k, 3))
        k.e("s_lshl_b32 s32, s2, 7")
        k.vm(f"buffer_store_dwordx4 v[176:179], v173, {SRD_WS}, s32 offen sc1", "zero")
        k.e("s_lshl_b32 s32, s2, 8", f"s_add_u32 s32, s32, {WS_HXF}")
        k.vm(f"buffer_store_dwordx4 v[176:179], v172, {SRD_WS}, s32 offen sc1", "zero")
    pack_process(k, lambda: run(a10_x(k, 1) + a10_w(k, 2)), mid2)
    k.vm(f"buffer_load_dword v170, v{vFA}, {SRD_DBG}, 0 offen sc1", "tag")
    k.stamp("s pkdone")
    a10_loop(k, 4)
    a10_tail(k)
    wo(k, 0); gu(k, 0); dn(k, 0)
    if not P.half:
        k.marks = {m: g for m, g in k.marks.items() if False}
        k.seen = {t for t in k.seen if t in k.vmq or t in k.lgq or t in ("dna", "st0", ("x", 2), ("x", 3))}
        a11_main(k)
        wo(k, 1)
        k.marks = {m: g for m, g in k.marks.items() if m == "wobar" or m[0] == "bar"}
        gu(k, 1); dn(k, 1)
    if P.verbose: print([(t, tag, f) for t, tag, f in k.bg_log if f])
    if stamps:
        k.e("s_waitcnt vmcnt(0)"); k.stamp("drained"); k.stamp("rt1", True)
        k.e("s_lshl_b32 s32, s2, 10", "s_lshl_b32 s33, s3, 8", "s_add_u32 s32, s32, s33",
            f"s_add_u32 s32, s32, {WS_STAMP}", "v_lshlrev_b32 v8, 2, v1", f"buffer_store_dword v0, v8, {SRD_WS}, s32 offen")
        if P.dbg:
            n = len(k.stamps)
            k.e("v_readlane_b32 s32, v0, 0", f"v_readlane_b32 s33, v0, {n-1}", "s_not_b32 s34, s32", "v_mov_b32 v4, s33", "v_mov_b32 v5, s34")
            k.e(f"buffer_atomic_umax v4, v{vFA}, {SRD_DBG}, 0 offen offset:4", f"buffer_atomic_umax v5, v{vFA}, {SRD_DBG}, 0 offen offset:8")
            k.e(f"s_cmp_eq_u32 s2, {P.dbg - 1}", f"s_cselect_b32 s35, 0, {OOB>>1:#x}", f"s_cmp_eq_u32 s{sW}, 0", f"s_cselect_b32 s35, s35, {OOB>>1:#x}")
            for i, wd in zip(range(2, n - 1), (3, 5, 6, 7, 9, 10, 11, 13, 14, 15)):
                k.e(f"v_readlane_b32 s33, v0, {i}", "s_sub_u32 s33, s33, s32", "v_mov_b32 v4, s33", f"buffer_store_dword v4, v{vFA}, {SRD_DBG}, s35 offen offset:{4*wd}")
    k.e("s_endpgm")
    k.flush_spins()
    k.label("L_end"); k.e("s_endpgm")
    src = open("cdna_kernels/%s.s.ref" % NAME).read().splitlines()
    out = [l for l in src if l.startswith(";") and "@launch" not in l]
    out.append(f"; @launch grid=(256,1,1) block=(256,1,1) lds={LDS_TOTAL}")
    out += ['.amdgcn_target "amdgcn-amd-amdhsa--gfx950"', ".text"]
    s = "\n".join(out) + "\n" + k.text(verbose=True) + '.section .rodata,"a"\n.p2align 6\n' + kd(name)
    if P.align:
        from align import align
        s = align(s)
    return s, k.stamps
P.x_nobar = 0; P.x_noepi = 0; P.rt = 1; P.dbg = 0; P.h_touch0 = ''; P.outm = ''; P.h1_plain = 1; P.half = 0; P.tlb = 1; P.code0 = 1; P.verbose = 0; P.align = 1; P.gu_cap = 6; P.gu_nw = 5; P.k_touch = 12; P.k_gb = 14; P.k_chk = 16

if __name__ == "__main__":
    path = sys.argv[1] if len(sys.argv) > 1 else "cdna_kernels/%s.s" % NAME
    opts = sys.argv[2:]
    only = None
    for o in opts:
        if o.startswith("only="): only = [x for x in o[5:].split(",") if x]
        if o.startswith("P."):
            n, v = o[2:].split("="); setattr(P, n, eval(v))
    s, st = build(stamps="st" in opts, only=only)
    open(path, "w").write(s)
    if "st" in opts: json.dump([st], open(path + ".json", "w"))
```

```python
import sys, json
from common import *

MF16 = "v_mfma_f32_16x16x32_bf16"
MF16S = "v_mfma_f32_16x16x16_bf16"
MF32 = "v_mfma_f32_32x32x16_bf16"
vL16, vFV, vFA, vP = 2, 8, 9, 10
CSV, CSQ, CSK, RES = 11, 12, 16, 20
OOB = 0x80000000
FL_O, FL_X1, FL_H, FL_X2 = 0, 4096, 8192, 12288
FL_HX = 16384 + 12288
def fl(layer, off): return WS_FLAGS + 16384 * layer + off
sROT, sBUD, sGL, sGS, sDS = 84, 98, 60, 61, 85
sT0, sT1, sPO, sFO = 32, 33, 86, 87
sML, sMS = 68, 69
WS_HXF = WS_O0 - 0x10000 if False else WS_END
WS_ARR = WS_HXF + 0x10000
sTAG, sXCC = 91, 76
WS_STAMP = 0x2000000
L_SA0, L_SA1, L_XH0, L_CS = 80896, 97280, 81920, 79872
def e_of(kk):
    p, tl = divmod(kk, 7)
    return 4 * p + tl if tl < 4 else 16 + 3 * p + (tl - 4)
KK_OF = {e_of(kk): kk for kk in range(28)}

class P:
    a1_bg_start, a1_bg_step = 30, 6
    gu_lead = 7
    gu_bg_start, gu_bg_step = 50, 2.6
    dn_lead = 12
    bgm = ""
    sleep = 0
    drop = ()
    codepf = 0
    ld = "sc1"
    dst = "sc1"
    safe = False
    plain = True
    notouch = ()

BO, BX1, BS1, BH = [WS_O[0]] * 2, [WS_X[0]] * 2, [WS_ST[0]] * 2, [WS_H[0]] * 2
def o_line(layer):
    return [f"s_lshl_b32 s32, s{sB}, 16", f"s_lshl_b32 s33, s{sCS}, 2", f"s_add_u32 s33, s33, s{sW}", "s_lshl_b32 s33, s33, 10",
            "s_add_u32 s32, s32, s33", f"s_add_u32 s32, s32, {BO[layer]}"]
def touch_next(k, t):
    return [lambda: k.touch(t, "p", o_line(1)), lambda: k.touch(t + 1, "q", [f"s_add_u32 s32, s64, {BX1[1]}"]),
            lambda: k.touch(t + 2, "t", [f"s_add_u32 s32, s65, {BS1[1]}"])]
def gu_tile(d):
    return [f"s_lshl_b32 {d}, s{sC}, 1", f"s_and_b32 s33, s{sW}, 1", f"s_add_u32 {d}, {d}, s33", f"s_lshl_b32 {d}, {d}, 1", f"s_lshr_b32 s33, s{sW}, 1", f"s_add_u32 {d}, {d}, s33"]
def h_base(d, layer):
    return gu_tile(d) + [f"s_mul_i32 {d}, {d}, 112", f"s_mul_i32 s33, s{sM}, 7",
            f"s_add_u32 {d}, {d}, s33", f"s_lshl_b32 {d}, {d}, 10", f"s_add_u32 {d}, {d}, {BH[layer]}"]

class F(K):
    def __init__(self):
        super().__init__(); self.spins = []; self.nspin = 0; self.st = ""; self.npf = 0
    def poll_issue(self, va, tag): self.vm(f"buffer_load_dword v{vP}, v{va}, {SRD_WS}, s{sPO} offen sc1", tag)
    def poll_addr(self, va, nl, sh=2):
        self.e(f"v_cmp_gt_u32 vcc, {nl}, v1", f"v_lshlrev_b32 v{va}, {sh}, v1", f"v_mov_b32 v{vP}, {OOB:#x}", f"v_cndmask_b32 v{va}, v{vP}, v{va}, vcc")
        self.nl = nl
    def poll_check(self, va, tag, thr):
        n = self.nspin; self.nspin += 1
        self.stamp(f"poll<{tag}")
        self.wait(vm=[tag])
        self.stamp(f"poll={tag}")
        msk = f"s_and_b32 s99, vcc_lo, {(1 << self.nl) - 1:#x}"
        self.e(f"v_cmp_gt_u32 vcc, {thr}, v{vP}", msk, f"s_cbranch_scc1 L_spin{n} ;np", f"L_back{n}: ;np")
        self.stamp(f"poll>{tag}")
        self.spins += [f"L_spin{n}:", f"s_sub_u32 s{sBUD}, s{sBUD}, 1", f"s_cbranch_scc1 L_give{n}"] + ([f"s_sleep {P.sleep}"] if P.sleep else []) + [
                       f"buffer_load_dword v{vP}, v{va}, {SRD_WS}, s{sPO} offen sc1", "s_waitcnt vmcnt(0)",
                       f"v_cmp_gt_u32 vcc, {thr}, v{vP}", msk, f"s_cbranch_scc1 L_spin{n}", f"s_branch L_back{n}",
                       f"L_give{n}:", f"s_mov_b32 s{sBUD}, 0", f"s_branch L_back{n}"]
    def flag(self, val, soff=sFO, st=None):
        self.e(f"v_mov_b32 v{vFV}, {val}")
        if st is not None:
            self.vm(f"buffer_store_dword v{vFV}, v{vFA}, {SRD_WS}, s{soff} offen {st}", "flag"); return
        self.e(f"s_or_b32 s99, s{soff}, s{sML}")
        self.vm(f"buffer_store_dword v{vFV}, v{vFA}, {SRD_WS}, s99 offen", "flag")
        self.e(f"s_or_b32 s99, s{soff}, s{sMS}")
        self.vm(f"buffer_store_dword v{vFV}, v{vFA}, {SRD_WS}, s99 offen sc1", "flag")
    def dstore(self, text, tag):
        if not P.plain:
            self.vm(text + " sc1", tag); return
        n = self.nspin; self.nspin += 1
        self.e(f"s_cmp_lg_u32 s{sML}, 0", f"s_cbranch_scc1 L_alt{n} ;np")
        self.vm(text, tag)
        self.e(f"L_back{n}: ;np")
        self.spins += [f"L_alt{n}:", "s_nop 4", text + " sc1", f"s_branch L_back{n}"]
    def valid(self, test, reload):
        n = self.nspin; self.nspin += 1
        self.e(*test); self.e(f"s_cbranch_vccnz L_rl{n} ;np", f"L_back{n}: ;np")
        self.spins += [f"L_rl{n}:", f"s_sub_u32 s{sBUD}, s{sBUD}, 1", f"s_cbranch_scc1 L_give{n}"] + reload + ["s_waitcnt vmcnt(0)"] + test + \
                      [f"s_cbranch_vccnz L_rl{n}", f"s_branch L_back{n}", f"L_give{n}:", f"s_mov_b32 s{sBUD}, 0", f"s_branch L_back{n}"]
    def touch(self, tmp, kind, base_expr, masked=True):
        if not P.plain or kind in P.notouch: return
        nl = {"p": 16, "q": 16, "s": 2, "t": 2, "h": 56}[kind]
        self.e(f"v_cmp_gt_u32 vcc, {nl}, v1")
        if kind in "pq": self.e(f"v_lshrrev_b32 v{tmp}, 3, v1", f"v_lshlrev_b32 v{tmp}, {15 if kind == 'p' else 13}, v{tmp}", f"v_and_b32 v{vFV}, 7, v1", f"v_lshl_add_u32 v{tmp}, v{vFV}, 7, v{tmp}")
        else: self.e(f"v_lshlrev_b32 v{tmp}, {11 if kind == 's' else 7}, v1")
        self.e(f"v_mov_b32 v{vFV}, {OOB:#x}", *base_expr)
        self.e(f"v_cndmask_b32 v{tmp}, v{vFV}, v{tmp}, vcc")
        if masked: self.e(f"s_or_b32 s32, s32, s{sML}")
        self.vm(f"buffer_load_dword v{tmp}, v{tmp}, {SRD_WS}, s32 offen", "touch")
    def vm(self, text, tag=None):
        kind = tag[0] if isinstance(tag, tuple) else tag
        if kind in P.drop:
            self.seen.add(tag); return
        super().vm(text, tag)
    def codepf(self, tmpv, per=2048):
        if not P.codepf: return
        n = self.npf; self.npf += 1
        sh = (per // 64).bit_length() - 1
        self.e(f"L_pf{n}: ;np", f"s_mul_i32 s32, s{sW}, {per}", f"s_add_u32 s32, s32, L_pf{n}-L_pc", f"v_lshlrev_b32 v{tmpv}, {sh}, v1")
        raise NotImplementedError
    def flush_spins(self):
        for l in self.spins: self.e(l)
        self.spins = []

def batch(k, i):
    src = f"s_add_u32 s62, s{sGS}, {i*16384}" if i < 15 else f"s_add_u32 s62, s{sDS}, {(16 + 4*(i-15))*1024}"
    def f(q):
        k.set_m0(f"s_add_u32 m0, s{sGL}, {(i % 10)*16384}")
        if i != 14: k.set_s(src)
        elif k.last.get(62) != f"s_cselect_b32 s62, {OOB>>1:#x}, s62":
            k.e(src, f"s_cmp_ge_u32 s{sW}, 2", f"s_cselect_b32 s62, {OOB>>1:#x}, s62")
        k.vm(f"buffer_load_dwordx4 v{vL16}, {SRD_WS}, s62 offen offset:{q*1024} {P.bgm} lds", ("gw", i))
    return [lambda q=q: f(q) for q in range(4)]

def bg_batches(k, bs, period, dep=lambda b: None):
    for b in bs:
        for f in batch(k, b): k.bg_add(f, period, ("gw", b), dep(b))
def bg_list(k, fns, period, tag, dep=None):
    for f in fns: k.bg_add(f, period, tag, dep)

def regloads(k, base_sgpr, off, dst, n, tag, tmp=63):
    fns = []
    for j in range(n):
        def f(j=j):
            k.set_s(f"s_add_u32 s{tmp}, s{base_sgpr}, {off + (j & ~3)*1024}")
            k.vm(f"buffer_load_dwordx4 {dst(j)}, v{vL16}, {SRD_WS}, s{tmp} offen offset:{(j%4)*1024} {P.bgm}", tag)
        fns.append(f)
    return fns
def wow(k):
    def f(i, q):
        k.set_m0(f"s_add_u32 m0, s{sGL}, {(6 + i)*16384}"); k.set_s(f"s_add_u32 s63, s88, {i*16384}")
        k.vm(f"buffer_load_dwordx4 v{vL16}, {SRD_WS}, s63 offen offset:{q*1024} lds", "wow")
    return [lambda i=i, q=q: f(i, q) for i in range(4) for q in range(4)]

def pack_issue(k):
    k.e("v_lshrrev_b32 v44, 3, v1", "v_and_b32 v43, 7, v1", "v_and_b32 v45, 2, v44", "v_lshlrev_b32 v45, 1, v45",
        "v_xor_b32 v43, v43, v45", "v_lshlrev_b32 v43, 4, v43", f"s_add_u32 s34, s49, {L_X + 4096}")
    k.e("s_cmp_ge_u32 s2, 112", "s_cbranch_scc1 L_pki_small")
    k.e("s_and_b32 s35, s2, 1", "s_bfe_u32 s36, s2, 0x10001", "s_lshr_b32 s37, s2, 2")
    k.e("s_cmp_eq_u32 s35, 0", "s_cselect_b32 s24, s72, s74", "s_cselect_b32 s25, s73, s75",
        f"s_mov_b32 s26, {512*3584:#x}", "s_mov_b32 s27, 0x20000")
    k.e("v_mul_u32_u24 v46, 3584, v44", "v_add_u32 v46, v46, v43")
    k.e("s_lshl_b32 s38, s36, 2", f"s_add_u32 s38, s38, s{sW}", f"s_mul_i32 s38, s38, {64*3584}",
        "s_lshl_b32 s39, s37, 7", "s_add_u32 s38, s38, s39")
    for i in range(8):
        k.e(f"s_add_u32 m0, s34, {(i>>2)*8192 + (i&3)*1024}", f"s_add_u32 s39, s38, {i*8*3584}", f"buffer_load_dwordx4 v46, {SRD_PK}, s39 offen lds")
    k.e("s_branch L_pki_done")
    k.label("L_pki_small")
    k.e("s_sub_u32 s35, s2, 112", "s_lshl_b32 s35, s35, 3", f"s_lshl_b32 s36, s{sW}, 1", "s_add_u32 s35, s35, s36")
    k.e("s_cmp_lt_u32 s35, 896", "s_cselect_b32 s24, s76, s68", "s_cselect_b32 s25, s77, s69", f"s_mov_b32 s26, {512*1024:#x}",
        f"s_cselect_b32 s26, {1792*1024:#x}, s26", "s_mov_b32 s27, 0x20000", "s_cselect_b32 s37, 1, 0",
        "s_movk_i32 s38, 896", "s_cselect_b32 s38, 0, s38")
    k.e("s_cselect_b32 s39, 0, 1", "s_cselect_b32 s70, 14, 15", "s_movk_i32 s71, 0x4000", "s_cselect_b32 s71, 0x80, s71")
    k.e("s_sub_u32 s35, s35, s38", "s_lshr_b32 s35, s35, s39", "s_and_b32 s36, s35, 7", "s_lshr_b32 s35, s35, 3")
    k.e("v_lshl_add_u32 v46, v44, 10, v43", "s_lshl_b32 s38, s35, s70", "s_lshl_b32 s39, s36, 7", "s_add_u32 s38, s38, s39")
    for i in range(2):
        for h in range(2):
            k.e(f"s_add_u32 m0, s34, {(2*i+h)*1024}", f"s_add_u32 s39, s38, {h*8192}", f"buffer_load_dwordx4 v46, {SRD_PK}, s39 offen lds")
        if i == 0: k.e("s_add_u32 s38, s38, s71")
    k.label("L_pki_done")
    k.vmq.append("pk"); k.seen.add("pk")

def pack_process(k, mid1, mid2):
    st = "sc1"
    k.e("v_bfe_u32 v46, v1, 2, 2", "v_and_b32 v47, 3, v1", "v_bfe_u32 v48, v1, 4, 1", "v_lshrrev_b32 v49, 5, v1")
    k.e("v_and_b32 v50, 2, v46", "v_add_u32 v50, v50, v48", "v_lshlrev_b32 v50, 5, v50",
        "v_lshl_add_u32 v50, v46, 7, v50", "v_lshl_add_u32 v50, v47, 3, v50", "v_add_u32 v50, s34, v50")
    k.e("s_cmp_ge_u32 s2, 112", "s_cbranch_scc1 L_pk_small")
    q0 = list(k.vmq)
    k.e("v_lshl_add_u32 v56, v49, 10, v50", "v_xor_b32 v57, 64, v56")
    k.e("s_lshl_b32 s39, s37, 2", "v_add_u32 v58, s39, v48")
    k.e("s_lshl_b32 s70, s36, 2", f"s_add_u32 s70, s70, s{sW}", "s_lshl_b32 s70, s70, 2")
    k.e("v_and_b32 v66, 15, v1", "s_lshl_b32 s71, s35, 8", "v_lshl_add_u32 v66, v66, 4, s71")
    for p in range(2):
        T, fs, tl, st_, b, aug = 59, 60, 61, 62 + p, 64 + p, 68 + p
        k.e(f"v_add_u32 v{T}, {2*p}, v58", f"v_mul_u32_u24 v{fs}, 9363, v{T}", f"v_lshrrev_b32 v{fs}, 16, v{fs}",
            f"v_mul_u32_u24 v{tl}, 7, v{fs}", f"v_sub_u32 v{tl}, v{T}, v{tl}")
        k.e(f"v_cmp_gt_u32 vcc, 3, v{tl}", f"v_mul_u32_u24 v67, 33, v{tl}", f"v_mov_b32 v{st_}, 1", "v_mov_b32 v70, 3",
            f"v_cndmask_b32 v67, v67, v{tl}, vcc", f"v_cndmask_b32 v{st_}, v{st_}, v70, vcc")
        k.e(f"v_mul_u32_u24 v{fs}, 231, v{fs}", f"v_add_u32 v67, v67, v{fs}")
        k.e(f"v_lshl_add_u32 v70, v{st_}, 5, v67", "v_lshlrev_b32 v70, 10, v70", "v_add_u32 v70, v70, v66",
            "s_lshl_b32 s71, s36, 9", f"v_add_u32 v{aug}, s71, v70")
        k.e(f"v_mul_lo_u32 v70, v{st_}, s70", "v_add_u32 v67, v67, v70", "v_lshlrev_b32 v67, 10, v67",
            "v_add_u32 v67, v67, v66", f"v_lshl_add_u32 v{b}, v49, 9, v67", f"v_lshlrev_b32 v{st_}, 10, v{st_}")
    k.e("v_mov_b32 v71, 0x3f803f80", "v_mov_b32 v72, 0", "v_mov_b32 v73, 0", f"s_mov_b32 s71, {WS_PGU}")
    k.wait(vm="pk")
    PQ = lambda ks, p: 104 + 8 * ks + 4 * p
    for ks in range(4):
        for p in range(2):
            for j in range(2): k.ds(f"ds_read_b64_tr_b16 {vr(PQ(ks,p)+2*j,2)}, v{56+p} offset:{(ks>>1)*8192 + (ks&1)*2048 + j*512}", ("t", ks, p))
        if ks == 2: k.wait(lg=[("t", 0, 1)])
    mid1()
    for ks in range(4):
        for p in range(2):
            k.wait(lg=[("t", ks, p)])
            for d in range(4): k.e(f"v_dot2c_f32_bf16 v{72+p}, v{PQ(ks,p)+d}, v71")
    k.e("v_permlane32_swap_b32 v72, v73", "v_add_f32 v72, v72, v73")
    k.e(f"s_lshl_b32 s72, s{sW}, 8", "s_add_u32 s72, s72, 0x10000", "v_lshl_add_u32 v74, v1, 2, s72")
    k.ds(f"ds_write_b32 v74, v72 offset:{L_CS - 65536}")
    mid2()
    for ks in range(4):
        for p in range(2):
            k.vm(f"buffer_store_dwordx4 {vr(PQ(ks,p),4)}, v{64+p}, {SRD_WS}, s71 offen {st}", "pks")
            if ks < 3: k.e(f"v_add_u32 v{64+p}, v{64+p}, v{62+p}")
    k.wait(lg="all")
    k.e("s_barrier", f"s_cmp_lg_u32 s{sW}, 0", "s_cbranch_scc1 L_pk_done")
    for w in range(4): k.ds(f"ds_read_b32 v{92+w}, v74 offset:{L_CS - 65536 + 256*w}")
    k.e("v_cmp_gt_u32 vcc, 32, v1", "v_mov_b32 v98, 0", "v_mov_b32 v99, 0", "v_cndmask_b32 v68, v69, v68, vcc")
    k.wait(lg="all")
    k.e("v_add_f32 v92, v92, v93", "v_add_f32 v94, v94, v95", "v_add_f32 v92, v92, v94")
    k.e("v_cvt_pk_bf16_f32 v97, v92, v98", "v_lshlrev_b32 v93, 16, v97", "v_sub_f32 v93, v92, v93", "v_cvt_pk_bf16_f32 v96, v92, v93")
    k.vm(f"buffer_store_dwordx4 v[96:99], v68, {SRD_WS}, s71 offen {st}", "pks")
    k.e("s_branch L_pk_done")
    k.label("L_pk_small")
    k.vmq = list(q0)
    k.e("s_cmp_eq_u32 s37, 0", "s_cbranch_scc1 L_pk_wo")
    k.e("s_mul_i32 s38, s35, 2341", "s_lshr_b32 s38, s38, 16", "s_mul_i32 s39, s38, 28", "s_sub_u32 s39, s35, s39",
        "s_mul_i32 s70, s39, 9363", "s_lshr_b32 s70, s70, 16", "s_mul_i32 s71, s70, 7", "s_sub_u32 s71, s39, s71",
        "s_lshl_b32 s72, s70, 2", "s_add_u32 s72, s72, s71", "s_mul_i32 s73, s70, 3", "s_add_u32 s73, s73, s71", "s_add_u32 s73, s73, 12",
        "s_cmp_lt_u32 s71, 4", "s_cselect_b32 s72, s72, s73", "s_mul_i32 s38, s38, 28", "s_add_u32 s35, s72, s38")
    k.e("v_lshl_add_u32 v56, v49, 9, v50", "v_xor_b32 v57, 64, v56")
    k.e(f"s_mul_i32 s36, s36, {224*KB}", "s_lshl_b32 s35, s35, 11", "s_add_u32 s38, s36, s35", f"s_add_u32 s38, s38, {WS_PDN}")
    k.wait(vm="pk")
    for i in range(2):
        for nn in range(2):
            for j in range(2): k.ds(f"ds_read_b64_tr_b16 {vr(76+8*i+4*nn+2*j,2)}, v{56+nn} offset:{i*2048 + j*1024}", ("t", i, nn))
    mid1(); mid2()
    for i in range(2):
        for nn in range(2):
            k.wait(lg=[("t", i, nn)])
            k.vm(f"buffer_store_dwordx4 {vr(76+8*i+4*nn,4)}, v{vL16}, {SRD_WS}, s38 offen offset:{nn*1024} {st}", "pks")
        if i == 0: k.e(f"s_add_u32 s38, s38, {224*KB}")
    k.e("s_branch L_pk_done")
    k.label("L_pk_wo")
    k.vmq = list(q0)
    k.e("v_and_b32 v56, 2, v46", "v_lshlrev_b32 v56, 1, v56", "v_xor_b32 v56, v56, v47", "v_lshlrev_b32 v56, 4, v56", "v_lshl_add_u32 v56, v46, 7, v56",
        "v_lshrrev_b32 v57, 4, v1", "v_lshl_add_u32 v56, v57, 10, v56", "v_add_u32 v56, s34, v56", "v_xor_b32 v57, 64, v56")
    k.e("s_lshl_b32 s36, s36, 16", "s_lshl_b32 s35, s35, 12", "s_add_u32 s38, s36, s35", f"s_add_u32 s38, s38, {WS_PWO}")
    k.wait(vm="pk")
    for j in range(4):
        for jj in range(2): k.ds(f"ds_read_b64_tr_b16 {vr(76+4*j+2*jj,2)}, v{56+(j>>1)} offset:{jj*512 + 8*(j&1)}", ("t", j))
    mid1(); mid2()
    for j in range(4):
        k.wait(lg=[("t", j)])
        k.vm(f"buffer_store_dwordx4 {vr(76+4*j,4)}, v{vL16}, {SRD_WS}, s38 offen offset:{j*1024} {st}", "pks")
    k.label("L_pk_done")

A_XF, A_K, A_V, A_Q = 36, 76, 86, 96
A_STA, A_STB, A_OP, A_DX, A_PA, A_ST, A_ACC = 104, 106, 144, 152, 153, 156, 184
class R0: XE, XO, SA, SB, CI, ONE, M, ATT, TMP = 3, 4, 5, 6, 28, 32, 52, (116, 160), 60
class R1: XE, XO, SA, SB, CI, ONE, M, ATT, TMP = 116, 117, 118, 119, 252, 124, 120, (228, 160), 28
A_U, A_PX = 226, 115
A11_ORDER = [2, 3, 1, 0, "h"]
A11_POS = {2: 3, 3: 0, 1: 1, 0: 2, "h": 3}
sODD, sCUR0, sCUR1, sCEXP = 40, 42, 44, 46

def a1_setup(k, layer):
    R = (R0, R1)[layer]
    real = k; out = []
    class Rec:
        def e(self, *t):
            if any(x.startswith("s_cmp") for x in t): out.append(lambda t=t: real.e(*t))
            else: out.extend(lambda x=x: real.e(x) for x in t)
    k = Rec()
    t16, g, tt, tb = R.TMP, R.TMP + 1, R.TMP + 2, R.TMP + 3
    x, y, z = R.ONE, R.ONE + 1, R.ONE + 2
    sa = L_SA0 if layer == 0 else L_SA1
    k.e(f"v_and_b32 v{t16}, 15, v1", f"v_lshrrev_b32 v{g}, 4, v1", f"v_and_b32 v{tt}, 7, v1", f"v_bfe_u32 v{tb}, v1, 3, 1")
    k.e(f"v_lshlrev_b32 v{tb}, 13, v{tb}")
    if layer == 0: k.e(f"v_add_u32 v{tb}, {L_X}, v{tb}")
    if layer == 0:
        k.e(f"v_and_b32 v{x}, 6, v{tt}", f"v_xor_b32 v{x}, v{x}, v{g}", f"v_lshlrev_b32 v{x}, 4, v{x}",
            f"v_lshl_add_u32 v{x}, v{tt}, 7, v{x}", f"v_add_u32 v{R.XE}, v{x}, v{tb}", f"v_xor_b32 v{R.XO}, 64, v{R.XE}")
    else:
        k.e(f"v_lshl_add_u32 v{x}, v{g}, 7, v{tb}", f"v_lshl_add_u32 v{R.XE}, v{tt}, 4, v{x}", f"v_add_u32 v{R.XO}, 512, v{R.XE}")
    k.e(f"v_lshlrev_b32 v{R.SA}, 3, v{t16}", f"v_add_u32 v{R.SA}, {sa}, v{R.SA}",
        f"v_lshlrev_b32 v{R.SB}, 5, v{g}", f"v_add_u32 v{R.SB}, {sa}, v{R.SB}")
    k.e(f"v_and_b32 v{x}, 1, v1", f"v_cmp_eq_u32 s[{sODD}:{sODD+1}], 1, v{x}",
        f"v_lshl_add_u32 v{y}, v{g}, 2, v{x}", f"v_cmp_le_u32 s[{sCUR0}:{sCUR0+1}], v{y}, v{t16}",
        f"v_add_u32 v{y}, 2, v{y}", f"v_cmp_le_u32 s[{sCUR1}:{sCUR1+1}], v{y}, v{t16}")
    k.e(f"v_mov_b32 v{y}, 0xffff", f"v_mov_b32 v{z}, 0xffff0000", f"v_cndmask_b32 v{y}, v{y}, v{z}, s[{sODD}:{sODD+1}]", f"v_mov_b32 v{z}, 0")
    k.e(f"v_cndmask_b32 v{R.M+2}, v{z}, v{y}, s[{sCUR0}:{sCUR0+1}]", f"v_cndmask_b32 v{R.M}, v{y}, v{z}, s[{sCUR0}:{sCUR0+1}]",
        f"v_cndmask_b32 v{R.M+3}, v{z}, v{y}, s[{sCUR1}:{sCUR1+1}]", f"v_cndmask_b32 v{R.M+1}, v{y}, v{z}, s[{sCUR1}:{sCUR1+1}]")
    k.e(f"s_cmp_eq_u32 s{sB}, 0", f"s_cselect_b32 s70, {f2u(-1e38):#x}, 0", f"s_mov_b32 s{sCEXP}, {f2u(0.25*LOG2E):#x}")
    for i in range(4): k.e(f"v_mov_b32 v{R.CI+i}, s70", f"v_mov_b32 v{R.ONE+i}, 0x3f803f80")
    return out

def o_bases(k, layer):
    k.e(f"s_lshl_b32 s32, s{sB}, 16", f"s_lshl_b32 s33, s{sCS}, 2", f"s_add_u32 s33, s33, s{sW}", "s_lshl_b32 s53, s33, 10",
        "s_add_u32 s32, s32, s53", f"s_add_u32 s53, s32, {BO[layer]}", "s_add_u32 s54, s53, 32768",
        f"s_lshl_b32 s32, s{sB}, 5", "s_add_u32 s32, s32, s33", "s_lshl_b32 s32, s32, 2", f"s_add_u32 s89, s32, {fl(layer, FL_O)}")

def ln_finish(a, s, q):
    a(f"v_mul_f32 v{s}, {f2u(-1/512):#x}, v{s}"); a(f"v_mul_f32 v{q}, {f2u(1/512):#x}, v{q}")
    a(f"v_fma_f32 v{q}, -v{s}, v{s}, v{q}"); a(f"v_max_f32 v{q}, 0, v{q}"); a(f"v_add_f32 v{q}, {f2u(1e-5):#x}, v{q}")

A_QS = 68
def fix_reads(k, R, t, S):
    i = 0 if t == "h" else t + 1
    return [lambda: k.ds(f"ds_read_b64 {vr(S,2)}, v{R.SA} offset:{i*128}", ("sa", t)),
            lambda: k.ds(f"ds_read_b128 {vr(S+2,4)}, v{R.SB} offset:{i*128}", ("sa", t)),
            lambda: k.ds(f"ds_read_b128 {vr(S+6,4)}, v{R.SB} offset:{i*128+16}", ("sa", t))]
def fix(k, R, fx, t, acc, at, pk, S=A_STA, pre=False, nxt=()):
    a = lambda txt, c=1, at=0: fx.add(lambda: k.e(txt), c, at)
    i = 0 if t == "h" else t + 1
    if not pre:
        for n, f in enumerate(fix_reads(k, R, t, S)): fx.add(f, 1, at - P.a1_salead if n == 0 else 0)
    fx.add(lambda: k.wait(lg=[("sa", t)]), 1, at)
    for f in nxt: fx.add(f)
    for r0, cs, dst in ((acc[0], CSQ, None if t == "h" else A_Q + 2*t), (acc[1], CSK, A_K + 2*i)):
        if dst is None: continue
        isq = cs == CSQ
        if pk:
            for h in (0, 2): a(f"v_pk_fma_f32 {vr(r0+h,2)}, {vr(S,2)}, {vr(cs+h,2)}, {vr(r0+h,2)} op_sel_hi:[0,1,1]")
            if not isq:
                for h in (0, 2): a(f"v_pk_mul_f32 {vr(r0+h,2)}, {vr(S,2)}, {vr(r0+h,2)} op_sel:[1,0] op_sel_hi:[1,1]")
        else:
            for r in range(4): a(f"v_fmac_f32 v{r0+r}, v{S}, v{cs+r}")
            if not isq:
                for r in range(4): a(f"v_mul_f32 v{r0+r}, v{S+1}, v{r0+r}")
        if isq: a(f"v_mul_f32 v{A_QS+t}, s{sCEXP}, v{S+1}")
        for h in range(2): a(f"v_cvt_pk_bf16_f32 v{dst+h}, v{r0+2*h}, v{r0+2*h+1}")
    r0 = acc[2]
    for r in range(4): a(f"v_fmac_f32 v{r0+r}, v{S+2+2*r}, v{CSV}")
    for r in range(4): a(f"v_mul_f32 v{r0+r}, v{S+3+2*r}, v{r0+r}")
    for h in range(2): a(f"v_cvt_pk_bf16_f32 v{A_V+2*i+h}, v{r0+2*h}, v{r0+2*h+1}")
    fx.add(lambda: (k.mark(("fix", t)), k.stamp(f"t0 fix{t}")), 0)

def attn(k, R, fx, t, B):
    SC, SP, PP, O, SUM, T = B, B + 4, B + 8, B + 12, B + 16, B + 20
    a = lambda txt, c=1: fx.add(lambda: k.e(txt), c)
    q = vr(A_Q + 2*t, 2)
    fx.dep(("fix", t)); fx.dep(("fix", t - 1 if t else "h")); fx.skip(1)
    a(f"{MF16S} {vr(SC,4)}, {vr(A_K+2*(t+1),2)}, {q}, 0", 2)
    a(f"{MF16S} {vr(SP,4)}, {vr(A_K+2*t,2)}, {q}, {vr(R.CI,4) if t == 0 else '0'}", 2)
    fx.skip(3)
    for rr, cur in ((0, sCUR0), (1, sCUR1)):
        a(f"v_cndmask_b32 v{T+2}, v{SC+2*rr}, v{SC+2*rr+1}, s[{sODD}:{sODD+1}]")
        a(f"v_cndmask_b32 v{T+3}, v{SP+2*rr}, v{SP+2*rr+1}, s[{sODD}:{sODD+1}]")
        a(f"v_cndmask_b32 v{T+rr}, v{T+3}, v{T+2}, s[{cur}:{cur+1}]")
    a(f"v_max_f32 v{T+2}, v{T}, v{T+1}"); a(f"v_mov_b32 v{T+3}, v{T+2}"); fx.skip(1)
    a(f"v_permlane16_swap_b32 v{T+2}, v{T+3}", 2); a(f"v_max_f32 v{T+2}, v{T+2}, v{T+3}"); a(f"v_mov_b32 v{T+3}, v{T+2}"); fx.skip(1)
    a(f"v_permlane32_swap_b32 v{T+2}, v{T+3}", 2); a(f"v_max_f32 v{T+2}, v{T+2}, v{T+3}")
    a(f"v_mul_f32 v{T+2}, v{A_QS+t}, v{T+2}")
    for rr in range(2): a(f"v_fma_f32 v{T+rr}, v{T+rr}, v{A_QS+t}, -v{T+2}")
    for rr in range(2): a(f"v_exp_f32 v{T+rr}, v{T+rr}", 2)
    for rr in range(2): a(f"v_cvt_pk_bf16_f32 v{T+rr}, v{T+rr}, v{T+rr}")
    a(f"v_and_b32 v{PP}, v{T}, v{R.M}"); a(f"v_and_b32 v{PP+1}, v{T+1}, v{R.M+1}")
    a(f"v_and_b32 v{PP+2}, v{T}, v{R.M+2}"); a(f"v_and_b32 v{PP+3}, v{T+1}, v{R.M+3}")
    fx.skip(1)
    a(f"{MF16} {vr(SUM,4)}, {vr(R.ONE,4)}, {vr(PP,4)}, 0", 2)
    a(f"{MF16} {vr(O,4)}, {vr(A_V+2*t,4)}, {vr(PP,4)}, 0", 2)
    fx.skip(3)
    a(f"v_rcp_f32 v{T}, v{SUM}", 2); fx.skip(1)
    for r in range(4): a(f"v_mul_f32 v{O+r}, v{T}, v{O+r}")
    for h in range(2): a(f"v_cvt_pk_bf16_f32 v{A_OP+2*t+h}, v{O+2*h}, v{O+2*h+1}")
    fx.add(lambda: (k.mark(("attn", t)), k.stamp(f"t0 attn{t}")), 0)

def ostore(k, fx, pair):
    b = A_OP + 4 * pair
    fx.dep(("attn", 2*pair)); fx.dep(("attn", 2*pair + 1))
    fx.dep("po1" if pair == 0 else "blank")
    fx.skip(1)
    fx.add(lambda: k.e(f"v_permlane16_swap_b32 v{b}, v{b+2}"), 2); fx.add(lambda: k.e(f"v_permlane16_swap_b32 v{b+1}, v{b+3}"), 2)
    fx.add(lambda: (k.dstore(f"buffer_store_dwordx4 {vr(b,4)}, v{vL16}, {SRD_WS}, s{53+pair} offen", ("ost", pair)), k.mark(("ost", pair))))

Z_WD, Z_TR, Z_HE, Z_HO, Z_OE, Z_OO = 164, 165, 166, 167, 168, 169
Z_XF, Z_SUM, Z_GR, Z_SUMH, Z_GRH, Z_CV = 104, 240, 244, 248, 252, 100
P.k_look, P.k_atom, P.k_bar, P.k_vgap = 4, 4, 5, 3
NS0 = 6
def z_acc(t):
    if t == "h": return (None, A_ACC + 48, A_ACC + 52)
    return (A_ACC + 12*t, A_ACC + 12*t + 4, A_ACC + 12*t + 8)

def a10_lanes(k):
    k.e("v_lshrrev_b32 v60, 3, v1", "v_and_b32 v61, 6, v60", "v_and_b32 v62, 7, v1", "v_xor_b32 v61, v61, v62",
        "v_lshlrev_b32 v61, 4, v61", f"v_lshl_add_u32 v{A_DX}, v60, 10, v61")
    k.e("v_and_b32 v61, 2, v60", f"s_and_b32 s32, s{sW}, 1", "s_lshl_b32 s32, s32, 2", "v_or_b32 v61, s32, v61", "v_xor_b32 v61, v61, v62",
        "v_lshlrev_b32 v61, 4, v61", "v_mul_u32_u24 v60, 3072, v60", f"v_add_u32 v{Z_WD}, v60, v61")
    k.e(f"s_add_u32 s{sROT}, s{sB}, s{sCS}", f"s_and_b32 s{sROT}, s{sROT}, 7")
    k.e(f"s_lshl_b32 s47, s{sB}, 3", "s_sub_u32 s48, s47, 2", "s_max_i32 s48, s48, 0", f"s_and_b32 s32, s{sW}, 1", "s_add_u32 s48, s48, s32",
        "s_lshl_b32 s48, s48, 13", f"s_lshl_b32 s32, s{sW}, 1", "s_add_u32 s47, s47, s32", "s_lshl_b32 s47, s47, 13")
    k.e(f"s_mul_i32 s51, s{sW}, {8*3072}", f"s_lshl_b32 s32, s{sCS}, 7", "s_add_u32 s51, s51, s32", f"s_mul_i32 s52, s{sW}, 3072")
    k.e(f"s_lshl_b32 s49, s{sW}, 14", f"s_and_b32 s32, s{sW}, 1", "s_lshl_b32 s50, s32, 13", f"s_lshr_b32 s32, s{sW}, 1",
        "s_lshl_b32 s33, s32, 10", "s_add_u32 s50, s50, s33", f"s_add_u32 s90, s32, s{sROT}")

def a10_x(k, c):
    S = lambda *t: [("s", lambda x=x: k.e(x)) for x in t]
    ld = lambda: k.vm(f"buffer_load_dwordx4 v{A_DX}, {SRD_X}, s33 offen lds", ("x", c))
    ops = S(f"s_add_u32 s33, s{sROT}, {c}", "s_and_b32 s33, s33, 7", "s_lshl_b32 s33, s33, 7", f"s_add_u32 m0, s49, {L_X + c*1024}", "s_add_u32 s33, s33, s47")
    ops += [("v", ld)] + S(f"s_add_u32 m0, s49, {L_X + 8192 + c*1024}", "s_add_u32 s33, s33, 8192") + [("v", ld)]
    if c % 2 == 0:
        ops += S(f"s_add_u32 s33, s90, {c}", "s_and_b32 s33, s33, 7", "s_lshl_b32 s33, s33, 7", f"s_add_u32 m0, s50, {L_XH0 + c*1024}", "s_add_u32 s33, s33, s48") + [("v", ld)]
    return ops

def a10_w(k, s):
    S = lambda *t: [("s", lambda x=x: k.e(x)) for x in t]
    if s & 1: ops = S(f"s_add_u32 m0, s52, {(s % NS0)*12288}", f"s_add_u32 s63, s63, {32*3072}")
    else: ops = S(f"s_add_u32 s63, s{sROT}, {s>>1}", "s_and_b32 s63, s63, 7", f"s_mul_i32 s63, s63, {64*3072}", f"s_add_u32 m0, s52, {(s % NS0)*12288}", "s_add_u32 s63, s63, s51")
    for p in range(3): ops.append(("v", lambda p=p: k.vm(f"buffer_load_dwordx4 v{Z_WD}, {SRD_QKV}, s63 offen offset:{p*1024} lds", ("w", s))))
    return ops
def run(ops):
    for _, f in ops: f()

def fill(k, mains, streams, cap=2):
    lastv = -99
    for g, m in enumerate(mains):
        m(); k.gap = g
        for a, o in streams:
            if a <= g and o and o[0][0] == "s": o.pop(0)[1](); break
        room = cap; nd = 0
        if g - lastv >= P.k_vgap and k.bg_step(): room -= 1; lastv = g
        while room > 0:
            pick = None
            for a, o in streams:
                if a > g or not o: continue
                t = o[0][0]
                if t == "d" and nd >= 1: continue
                if t == "v" and g - lastv < P.k_vgap: continue
                pick = o; break
            if pick is None: break
            t, f = pick.pop(0); f(); room -= 2 if t == "b" else 1
            if t == "d": nd += 1
            if t == "v": lastv = g
    for a, o in streams: run(o)

def a10_lanes2(k):
    k.e("v_lshrrev_b32 v60, 4, v1", "v_bfe_u32 v61, v1, 2, 2", "v_and_b32 v62, 1, v60", "v_lshlrev_b32 v62, 1, v62",
        "v_lshrrev_b32 v63, 1, v61", "v_or_b32 v62, v62, v63", f"v_xor_b32 v62, s{sW}, v62", "v_lshlrev_b32 v62, 5, v62",
        "v_mul_u32_u24 v60, 3072, v60", "v_lshl_add_u32 v60, v61, 7, v60", "v_add_u32 v60, v60, v62",
        "v_and_b32 v61, 3, v1", f"v_lshl_add_u32 v{Z_TR}, v61, 3, v60")
    k.e("v_and_b32 v60, 15, v1", "v_cmp_eq_u32 s[78:79], 0, v60")
    k.e(f"v_subrev_u32 v{Z_HE}, 16384, v{R0.XE}", f"v_subrev_u32 v{Z_HO}, 16384, v{R0.XO}",
        f"v_add_u32 v{Z_OE}, s49, v{R0.XE}", f"v_add_u32 v{Z_OO}, s49, v{R0.XO}")

def a10_loop(k, first):
    LA = P.k_look
    def sync(s, extra=()):
        k.wait(vm=[("w", s), ("x", s >> 1)] + list(extra)); k.e("s_barrier")
    nxt = [first]
    def dmas(upto):
        out = []
        while nxt[0] <= min(upto, 15):
            n = nxt[0]; nxt[0] += 1
            if n % 2 == 0: out += a10_x(k, n // 2)
            out += a10_w(k, n)
        return out
    def reads(s):
        fb = Z_XF + 24 * (s & 1); off = (s >> 1) * 1024; o = s & 1
        tr = lambda p, j: ("d", lambda: k.ds(f"ds_read_b64_tr_b16 {ar(12*s+4*p+2*j,2)}, v{Z_TR} offset:{(s%NS0)*12288 + p*1024 + j*512}", ("r", s, 0 if p == 0 else 1)))
        xr = lambda d, a, of, grp: ("d", lambda: k.ds(f"ds_read_b128 {vr(d,4)}, v{a} offset:{of}", ("r", s, grp)))
        out = [tr(0, 0), tr(0, 1)] + [xr(fb + 4*t, R0.XO if o else R0.XE, t*16384 + off, 0) for t in range(4)]
        out += [tr(1, 0), tr(1, 1), tr(2, 0), tr(2, 1), xr(fb + 16, Z_HO if o else Z_HE, off, 1), xr(fb + 20, Z_OO if o else Z_OE, off, 1)]
        return out
    l0_background(k)
    sync(0)
    k.stamp("k0")
    run(reads(0)); run(dmas(LA - 1))
    for s in range(16):
        fb = Z_XF + 24 * (s & 1)
        c = lambda r: "0" if s == 0 else vr(r, 4)
        wq, wk, wv, one = ar(12*s, 4), ar(12*s + 4, 4), ar(12*s + 8, 4), vr(R0.ONE, 4)
        ms = [f"{MF16} {vr(z_acc(t)[0],4)}, {wq}, {vr(fb+4*t,4)}, {c(z_acc(t)[0])}" for t in range(4)]
        for t in [0, 1, 2, 3, "h"]:
            xf = vr(fb + (16 if t == "h" else 4*t), 4)
            ms.append(f"{MF16} {vr(z_acc(t)[1],4)}, {wk}, {xf}, {c(z_acc(t)[1])}")
            ms.append(f"{MF16} {vr(z_acc(t)[2],4)}, {xf}, {wv}, {c(z_acc(t)[2])}")
        ms += [f"{MF16} {vr(Z_CV,4)}, {wq}, {vr(fb+16,4)}, {c(Z_CV)}",
               f"{MF16} {vr(Z_SUM,4)}, {one}, {vr(fb+20,4)}, {c(Z_SUM)}", f"{MF16} {vr(Z_GR,4)}, {vr(fb+20,4)}, {vr(fb+20,4)}, {c(Z_GR)}",
               f"{MF16} {vr(Z_SUMH,4)}, {one}, {vr(fb+16,4)}, {c(Z_SUMH)}", f"{MF16} {vr(Z_GRH,4)}, {vr(fb+16,4)}, {vr(fb+16,4)}, {c(Z_GRH)}"]
        mains = [lambda m=m: k.e(m) for m in ms]
        k.wait(lg=[("r", s, 0)])
        streams = [(3, [("s", lambda: k.wait(lg=[("r", s, 1)]))] +
                       [("a", lambda d=d: k.e(f"v_cndmask_b32 v{fb+16+d}, v{fb+16+d}, v{R0.ONE}, s[78:79]")) for d in range(4)])]
        if s + 1 < 16:
            ex = ["pks"] if s + 1 == P.k_atom else []
            ops = [("b", lambda: sync(s + 1, ex))] + reads(s + 1)
            if ex: ops.append(("b", lambda: arrive(k)))
            streams.append((P.k_bar, ops))
            streams.append((0, dmas(s + LA)))
        if s == P.k_touch:
            streams.append((2, [("b", lambda: k.touch(60, "p", ["s_mov_b32 s32, s53"], False)),
                                ("b", lambda: k.touch(62, "q", [f"s_add_u32 s32, s64, {BX1[0]}"], False)),
                                ("b", lambda: k.touch(64, "h", h_base("s32", 0), False) if P.h_touch0 == "k" else None)]))
        if s == P.k_gb: streams.append((1, [("v", lambda t=t: k.vm(t, "gb")) for t in GB_LOADS]))
        if s == P.k_chk: streams.append((1, [("b", lambda: rendezvous(k))]))
        if s == 15 and P.k_chk < 16:
            streams.append((max(P.k_bar, 4), [("b", lambda: (k.e("s_barrier"), k.mark("xfree")))]))
        fill(k, mains, streams)
        if s in (3, 7, 11): k.stamp(f"k{s+1}")
    k.stamp("k16")
    if P.k_chk >= 16: rendezvous(k)

GB_LOADS = [f"buffer_load_dwordx4 {vr(36+4*j,4)}, v{vL16}, {SRD_WS}, s75 offen offset:{j*1024} sc1" for j in range(4)] + \
           [f"buffer_load_dword v{vP}, v172, {SRD_WS}, s77 offen offset:8 sc1"]
def arrive(k):
    k.wait(vm=["tag"])
    k.e(f"v_readfirstlane_b32 s{sTAG}, v170", f"s_cmp_eq_u32 s{sTAG}, 0", "s_cbranch_scc1 L_tag_spin ;np", "L_tag_ok: ;np")
    k.spins += ["L_tag_spin:", f"s_sub_u32 s{sBUD}, s{sBUD}, 1", "s_cbranch_scc1 L_tag_give", f"buffer_load_dword v170, v{vFA}, {SRD_DBG}, 0 offen sc1",
                "s_waitcnt vmcnt(0)", f"v_readfirstlane_b32 s{sTAG}, v170", f"s_cmp_eq_u32 s{sTAG}, 0", "s_cbranch_scc1 L_tag_spin", "s_branch L_tag_ok",
                "L_tag_give:", f"s_mov_b32 s{sBUD}, 0", "s_branch L_tag_ok"]
    k.e(f"v_mov_b32 v176, s{sTAG}", "v_not_b32 v177, v176", f"v_mov_b32 v178, s{sXCC}")
    k.vm(f"buffer_store_dwordx4 v[176:179], v171, {SRD_WS}, s75 offen sc1", "arr")

def rendezvous(k):
    chk = [f"s_not_b32 s32, s{sTAG}"]
    for j in range(4): chk += [f"v_xor_b32 v{36+4*j}, s{sTAG}, v{36+4*j}", f"v_xor_b32 v{37+4*j}, s32, v{37+4*j}"]
    chk += ["v_or3_b32 v36, v36, v37, v40", "v_or3_b32 v44, v44, v45, v41", "v_or3_b32 v36, v36, v48, v49", "v_or_b32 v36, v36, v44", "v_cmp_ne_u32 vcc, 0, v36"]
    k.wait(vm=["gb"])
    k.e(*chk); k.e("s_cbranch_vccnz L_gb_spin ;np", "L_gb_ok: ;np")
    k.spins += ["L_gb_spin:", f"s_sub_u32 s{sBUD}, s{sBUD}, 1", "s_cbranch_scc1 L_gb_give", "s_sleep 2"] + GB_LOADS + ["s_waitcnt vmcnt(0)"] + chk + \
               ["s_cbranch_vccnz L_gb_spin", "s_branch L_gb_ok", "L_gb_give:", f"s_mov_b32 s{sBUD}, 0", "s_branch L_gb_ok"]
    k.e(f"v_cmp_ne_u32 vcc, s{sXCC}, v{vP}", "s_and_b32 s99, vcc_lo, 0xffff" if not P.safe else "s_and_b32 s99, 1, 1",
        f"s_cselect_b32 s{sML}, {OOB>>1:#x}, 0", f"s_cselect_b32 s{sMS}, 0, {OOB>>1:#x}")
    k.mark("gb")

W_OA, W_UA, W_SA, W_RB = 152, 154, 155, 114
def wo_bases(k):
    k.e(f"s_lshl_b32 s32, s{sB}, 2", f"s_add_u32 s32, s32, s{sW}", "s_lshl_b32 s64, s32, 14", f"s_lshl_b32 s33, s{sCS}, 10", "s_add_u32 s64, s64, s33",
        "s_lshr_b32 s32, s32, 1", "s_lshl_b32 s80, s32, 15", "s_lshl_b32 s65, s32, 11", "s_lshl_b32 s66, s32, 3", f"s_add_u32 s66, s66, s{sCS}", "s_lshl_b32 s66, s66, 1",
        f"s_and_b32 s32, s{sW}, 1", "s_add_u32 s66, s66, s32", "s_lshl_b32 s66, s66, 2", "s_lshl_b32 s32, s32, 8", "s_add_u32 s80, s80, s32", "s_add_u32 s65, s65, s32",
        f"s_lshr_b32 s32, s{sCS}, 1", "s_lshl_b32 s32, s32, 9", "s_add_u32 s65, s65, s32", f"s_and_b32 s32, s{sCS}, 1", "s_lshl_b32 s32, s32, 3", "s_add_u32 s65, s65, s32")
def wo_lanes(k):
    x, y = 66, 67
    return [lambda t=t: k.e(*t) for t in (
        [f"v_and_b32 v{x}, 15, v1"], [f"v_lshrrev_b32 v{y}, 4, v1"], [f"v_lshlrev_b32 v{W_OA}, 4, v{x}"], [f"v_lshl_add_u32 v{W_SA}, v{y}, 2, v{W_OA}"],
        [f"v_lshl_add_u32 v{W_OA}, v{y}, 9, v{W_OA}"], [f"v_and_b32 v{W_UA}, 7, v1"], [f"v_lshlrev_b32 v{W_UA}, 4, v{W_UA}"], [f"v_lshl_add_u32 v{W_UA}, v{y}, 7, v{W_UA}"],
        [f"v_lshrrev_b32 v{x}, 3, v{x}"], [f"v_lshl_add_u32 v{W_UA}, v{x}, 13, v{W_UA}"], [f"v_add_u32 v{W_RB}, {6*16384}, v{vL16}"],
        ["v_cmp_gt_u32 vcc, 32, v1", f"v_mov_b32 v{y}, {OOB:#x}", f"v_cndmask_b32 v{W_SA}, v{y}, v{W_SA}, vcc"])]
def blanks(k, layer):
    if not P.tags: return [lambda: k.mark("blank")]
    z = 66
    return [lambda: (k.e(f"v_mov_b32 v{z}, -1"), k.dstore(f"buffer_store_dword v{z}, v{vL16}, {SRD_WS}, s53 offen", "blank")),
            lambda: (k.e(f"s_add_u32 s58, s64, {BX1[layer]}"), k.dstore(f"buffer_store_dword v{z}, v{W_UA}, {SRD_WS}, s58 offen", "blank")),
            lambda: k.dstore(f"buffer_store_dword v{z}, v{W_UA}, {SRD_WS}, s58 offen offset:512", "blank"),
            lambda: (k.e(f"s_add_u32 s58, s65, {BS1[layer]}"), k.dstore(f"buffer_store_dword v{z}, v{W_SA}, {SRD_WS}, s58 offen", "blank"), k.mark("blank"))]
def wo_prepoll(k, layer):
    k.poll_addr(A_PA, 32)
    k.e(f"s_lshl_b32 s32, s{sB}, 7", f"s_add_u32 s{sPO}, s32, {fl(layer, FL_O)}", f"s_add_u32 s59, s80, {BO[layer]}")
    k.bg_held = True
    k.poll_issue(A_PA, "po1"); k.mark("po1")

def dna(k): return regloads(k, sDS, 0, lambda j: ar(192 + 4*j, 4), 16, "dna")

def l0_background(k):
    k.per = dict(P.per_k)
    dd = dna(k)
    bg_list(k, dd[:P.dna_first], "s4", "dna", "gb")
    bg_list(k, wow(k), "s4", "wow", "xfree")
    bg_batches(k, [0, 1, 2, 3], "s2", lambda b: "xfree")
    bg_batches(k, [4], "s2", lambda b: "wobar")
    bg_batches(k, [5], "s2", lambda b: "xfree")
    bg_batches(k, [6, 7, 8, 9], "s2", lambda b: "gubar")
    bg_list(k, dd[P.dna_first:], "s4", "dna")
P.per_k = {"s2": 90, "s4": 70}

def a10_tail(k):
    R = R0
    k.per = dict(P.per_tail0)
    k.stamp("t0 gb")
    k.touch(72, "t", [f"s_add_u32 s32, s65, {BS1[0]}"])
    k.bg_burst(2)
    hk, hv = z_acc("h")[1], z_acc("h")[2]
    for r in range(4):
        k.e(f"v_mov_b32_dpp v{CSQ+r}, v{Z_CV+r} row_newbcast:0 row_mask:0xf bank_mask:0xf", f"v_mov_b32_dpp v{CSK+r}, v{hk+r} row_newbcast:0 row_mask:0xf bank_mask:0xf")
    k.e(f"v_mov_b32 v{CSV}, v{hv}", f"v_mov_b32 v45, v{hv}", f"v_permlane16_swap_b32 v{CSV}, v45", f"v_mov_b32 v45, v{CSV}", f"v_permlane32_swap_b32 v{CSV}, v45")
    k.e("v_and_b32 v40, 3, v1", "v_cmp_eq_u32 s[34:35], 1, v40", "v_cmp_eq_u32 s[36:37], 2, v40", "v_cmp_eq_u32 s[38:39], 3, v40",
        "v_bfe_u32 v40, v1, 2, 2", "v_lshrrev_b32 v41, 4, v1", "v_cmp_eq_u32 vcc, v40, v41", f"v_mov_b32 v40, {L_SA0 + 768}",
        f"s_lshl_b32 s32, s{sW}, 7", f"v_add_u32 v41, s32, v{R.SA}", "v_cndmask_b32 v41, v40, v41, vcc", f"v_cndmask_b32 v42, v40, v{R.SA}, vcc")
    fa = Flex(); fb = Flex()
    for fx, S, G, ad, off in ((fa, Z_SUM, Z_GR, 41, 128), (fb, Z_SUMH, Z_GRH, 42, 0)):
        a = lambda txt, c=1, fx=fx: fx.add(lambda: k.e(txt), c)
        a(f"v_cndmask_b32 v{S+1}, v{G}, v{G+1}, s[34:35]"); a(f"v_cndmask_b32 v{S+1}, v{S+1}, v{G+2}, s[36:37]"); a(f"v_cndmask_b32 v{S+1}, v{S+1}, v{G+3}, s[38:39]")
        ln_finish(a, S, S + 1); a(f"v_rsq_f32 v{S+1}, v{S+1}"); fx.skip(1)
        fx.add(lambda S=S, ad=ad, off=off: k.ds(f"ds_write_b64 v{ad}, {vr(S,2)} offset:{off}", "saw"))
    drain([fa, fb], k)
    k.e("v_and_b32 v43, 15, v1", "v_lshrrev_b32 v44, 4, v1", "v_lshlrev_b32 v43, 10, v43", "v_lshl_add_u32 v43, v44, 4, v43",
        f"s_lshl_b32 s32, s{sB}, 2", f"s_add_u32 s32, s32, s{sW}", "s_lshl_b32 s32, s32, 14", f"s_lshl_b32 s33, s{sCS}, 7", "s_add_u32 s32, s32, s33")
    for p in range(2): k.vm(f"buffer_load_dwordx4 {vr(RES+4*p,4)}, v43, {SRD_X}, s32 offen offset:{p*64}", "res")
    for f in wo_lanes(k) + blanks(k, 0): f()
    k.wait(lg="all"); k.e("s_barrier"); k.mark("xfree")
    k.stamp("t0 bar")
    fx = Flex(); f1 = Flex(); f2 = Flex()
    od = (2, 1, 3, 0, "h"); Ss = (A_STA, 56)
    for f in fix_reads(k, R, od[0], Ss[0]): f()
    for n, t in enumerate(od):
        fix(k, R, fx, t, z_acc(t), 0, True, Ss[n & 1], True, fix_reads(k, R, od[n + 1], Ss[~n & 1]) if n < 4 else ()); fx.skip(1)
    attn(k, R, f1, 2, R.ATT[0]); attn(k, R, f2, 3, R.ATT[1]); ostore(k, f2, 1)
    attn(k, R, f1, 1, R.ATT[0]); attn(k, R, f2, 0, R.ATT[1]); ostore(k, f2, 0)
    f3 = Flex(); f3.dep(("ost", 1))
    for _ in range(P.l0_flag_delay): f3.skip(1)
    f3.add(lambda: (k.wait(vm=[("ost", 1)]), k.flag(1, 89), k.mark("oflag1")))
    f3.dep(("attn", 0)); f3.add(lambda: wo_prepoll(k, 0))
    drain([fx, f1, f2, f3], k)
    k.stamp("a1 end")
P.l0_flag_delay = 6; P.dna_first = 2
P.per_tail0 = {"s2": 90, "s4": 55}

def a11_bases(k):
    out = []
    S = lambda *t: out.extend(lambda x=x: k.e(x) for x in t)
    S(f"s_lshr_b32 s70, s{sW}, 1", "s_lshl_b32 s49, s70, 13", f"s_and_b32 s71, s{sW}, 1", "s_lshl_b32 s71, s71, 2",
      f"s_add_u32 s50, s71, s{sROT}", "s_lshl_b32 s71, s71, 10")
    for i in range(4):
        S(f"s_add_u32 s70, s50, {i}", "s_and_b32 s70, s70, 7", "s_lshl_b32 s70, s70, 10", "s_add_u32 s70, s70, s49", f"s_sub_u32 s{92+i}, s70, {i*1024}")
    S("s_add_u32 s49, s49, s71", f"s_lshl_b32 s47, s{sB}, 16", f"s_add_u32 s47, s47, {WS_X[1]}")
    S(f"s_sub_u32 s48, s{sB}, 1", "s_max_i32 s48, s48, 0", "s_lshl_b32 s51, s48, 10", f"s_add_u32 s51, s51, {WS_HST}",
      "s_lshl_b32 s52, s48, 11", f"s_add_u32 s52, s52, {WS_HXF}", "s_lshl_b32 s48, s48, 14", f"s_add_u32 s48, s48, {WS_HALO}")
    S("v_lshrrev_b32 v28, 4, v1", "v_and_b32 v29, 15, v1", "v_lshlrev_b32 v29, 4, v29", f"v_lshl_add_u32 v{A_U}, v28, 9, v29", f"v_lshl_add_u32 v{A_U+1}, v28, 8, v29")
    S(f"s_lshl_b32 s70, s{sB}, 12", f"s_and_b32 s71, s{sW}, 1", "s_lshl_b32 s71, s71, 8", "s_add_u32 s70, s70, s71", f"s_add_u32 s90, s70, {WS_ST[1]}")
    out.append(lambda: k.e(f"s_lshl_b32 s70, s{sB}, 1", f"s_add_u32 s70, s70, s{sW}", "s_lshl_b32 s72, s70, 13", f"s_lshl_b32 s71, s{sCS}, 10", "s_add_u32 s72, s72, s71",
        f"s_add_u32 s72, s72, {WS_HALO - 16384}", f"s_cmp_ge_u32 s{sW}, 2", f"s_cselect_b32 s72, s72, {OOB>>1:#x}"))
    out.append(lambda: k.e(f"s_lshl_b32 s73, s{sB}, 10", f"s_lshr_b32 s71, s{sCS}, 1", "s_lshl_b32 s71, s71, 8", "s_add_u32 s73, s73, s71", f"s_and_b32 s71, s{sCS}, 1",
        "s_lshl_b32 s71, s71, 3", "s_add_u32 s73, s73, s71"))
    out.append(lambda: k.e(f"s_lshl_b32 s71, s{sW}, 7", "s_add_u32 s73, s73, s71", f"s_add_u32 s73, s73, {WS_HST - 256}",
        f"s_cmp_ge_u32 s{sW}, 2", f"s_cselect_b32 s73, s73, {OOB>>1:#x}"))
    out.append(lambda: k.e(f"s_lshl_b32 s70, s{sB}, 3", f"s_add_u32 s70, s70, s{sCS}", "s_lshl_b32 s70, s70, 1", f"s_add_u32 s70, s70, s{sW}", "s_lshl_b32 s70, s70, 7",
        f"s_add_u32 s70, s70, {WS_HXF - 256}", f"s_cmp_ge_u32 s{sW}, 2", f"s_cselect_b32 s91, s70, {OOB>>1:#x}"))
    return out

def a11_x(k, tile):
    fns = []
    for i in range(4):
        def f(i=i):
            k.set_m0(f"s_add_u32 m0, s49, {A11_POS[tile]*16384}")
            k.e(f"s_add_u32 s32, s{48 if tile == 'h' else 47}, s{92+i}")
            if tile not in (0, "h"): k.e(f"s_add_u32 s32, s32, {tile*16384}")
            k.vm(f"buffer_load_dwordx4 v{vL16}, {SRD_WS}, s32 offen offset:{i*1024} sc1 lds", ("x", tile))
        fns.append(f)
    return fns

def stats_path(k, fx, S, tag, addr, tok, at=0):
    a = lambda txt, c=1: fx.add(lambda: k.e(txt), c)
    s, q = S, S + 1
    fx.add(lambda: k.wait(vm=[tag]), 1, at)
    a(f"v_add_f32 v{s}, v{s}, v{S+2}"); a(f"v_add_f32 v{q}, v{q}, v{S+3}"); fx.skip(1)
    a(f"v_permlane16_swap_b32 v{s}, v{q}", 2); a(f"v_add_f32 v{s}, v{s}, v{q}"); a(f"v_mov_b32 v{q}, v{s}"); fx.skip(1)
    a(f"v_permlane32_swap_b32 v{s}, v{q}", 2); a(f"v_add_f32 v{s}, v{s}, v{q}"); a(f"v_mov_b32 v{q}, v{s}"); fx.skip(1)
    a(f"v_permlane16_swap_b32 v{s}, v{q}", 2)
    ln_finish(a, s, q); a(f"v_rsq_f32 v{q}, v{q}", 2); fx.skip(1)
    fx.add(lambda: (k.ds(f"ds_write_b64 v{addr}, {vr(s,2)} offset:{tok*8}", ("saw", tag)), k.mark(("saw", tag))))

def a11_early(k):
    k.vm(f"buffer_load_dwordx4 {vr(A_ST,4)}, v{A_U}, {SRD_WS}, s90 offen offset:2048 sc1", "st0")
    for t in A11_ORDER[:2]:
        for f in a11_x(k, t): f()

def a11_main(k):
    R = R1; order = A11_ORDER
    steps = [(t, s) for t in order for s in range(16)]
    accof = lambda t: A_ACC + 12 * (order.index(t) % 3)
    def xread(i):
        t, s = steps[i]
        off = A11_POS[t] * 16384 + (s >> 1) * 1024
        k.ds(f"ds_read_b128 {vr(A_XF+4*(i%4),4)}, v{R.XO if s&1 else R.XE} offset:{off}", ("xf", i))
    mains = []; fixed = {}; gap_of = {}
    need_sa = {order[1]: ["st0"], order[2]: ["st1"], order[3]: [], "h": []}
    for i, (t, s) in enumerate(steps):
        acc = accof(t); xf = vr(A_XF + 4*(i % 4), 4)
        c = lambda r, s=s: "0" if s == 0 else vr(r, 4)
        ms = []
        if t != "h": ms.append(f"{MF16} {vr(acc,4)}, {ar(12*s,4)}, {xf}, {c(acc)}")
        ms.append(f"{MF16} {vr(acc+4,4)}, {ar(12*s+4,4)}, {xf}, {c(acc+4)}")
        ms.append(f"{MF16} {vr(acc+8,4)}, {xf}, {ar(12*s+8,4)}, {c(acc+8)}")
        gap_of[(t, s)] = len(mains)
        for m in ms: mains.append(lambda m=m: k.e(m))
        last = len(mains) - 1
        fl_ = fixed.setdefault(last, [])
        if i + 1 < len(steps): fl_.append((0, lambda i=i: k.wait(lg=[("xf", i + 1)])))
        j = i + 4
        if j < len(steps):
            tj, sj = steps[j]
            if sj == 0:
                def bar(tj=tj):
                    k.wait(vm=[("x", tj)], lg=[("saw", n) for n in need_sa[tj]]); k.e("s_barrier"); k.mark(("bar", tj))
                fixed.setdefault(gap_of[(t, s)], []).append((1, bar))
            fixed[last].append((1, lambda j=j: xread(j)))
    fx = Flex(); fz = Flex(); fz2 = Flex(); fy = Flex(); fm = Flex()
    k.e(f"s_and_b32 s32, s{sW}, 1", "s_lshl_b32 s32, s32, 7", f"v_add_u32 v7, s32, v{R.SA}")
    o_bases(k, 1)
    stats_path(k, fy, A_ST, "st0", 7, 48)
    g1 = P.a1_late_gap
    fm.add(lambda: (k.wait(vm=[("xst", 1)]), k.flag(2)), 3, P.a1_flag_gap)
    fm.add(lambda: k.poll_issue(A_PX, "px2"), 1, g1 - P.a1_poll_lead)
    fm.add(lambda: k.poll_check(A_PX, "px2", 2), 2, g1)
    fm.add(lambda: k.vm(f"buffer_load_dwordx4 {vr(56,4)}, v{A_U}, {SRD_WS}, s90 offen sc1", "st1"))
    for t in order[2:4]:
        for f in a11_x(k, t): fm.add(f, 2); fm.skip(P.a1_xgap)
    for f in wo_lanes(k): fy.add(f)
    fy.add(lambda: k.mark("wolanes"), 0)
    fm.dep("wolanes")
    fm.add(lambda: k.e(f"s_add_u32 s58, s64, {WS_X[1]}"))
    for p in range(2): fm.add(lambda p=p: k.vm(f"buffer_load_dwordx4 {vr(RES+4*p,4)}, v{W_UA}, {SRD_WS}, s58 offen offset:{p*512} sc1", "res")); fm.skip(P.a1_xgap)
    def halo_poll():
        k.poll_addr(A_PX, 16, 7)
        k.e(f"s_mov_b32 s{sPO}, s52", f"s_min_u32 s50, s{sB}, 1")
        k.poll_issue(A_PX, "phx"); k.bg_held = False
    fm.add(halo_poll, 3)
    if P.touch1 in (1, 2):
        fm.add(lambda: k.touch(60, "p", ["s_mov_b32 s32, s53"]), 6)
        fm.add(lambda: k.touch(62, "q", [f"s_add_u32 s32, s64, {BX1[1]}"]), 6)
        fm.add(lambda: k.touch(64, "t", [f"s_add_u32 s32, s65, {BS1[1]}"]), 4)
        if P.touch1 > 1: fm.add(lambda: k.touch(66, "h", h_base("s32", 1)), 6)
    for f in blanks(k, 1): fm.skip(P.a1_xgap); fm.add(f, 3)
    stats_path(k, fy, 56, "st1", 7, 16, g1 + 26)
    fm.dep(("bar", order[2]))
    fm.add(lambda: k.poll_check(A_PX, "phx", "s50"), 2)
    fm.add(lambda: k.vm(f"buffer_load_dwordx4 {vr(A_ST,4)}, v{A_U+1}, {SRD_WS}, s51 offen sc1", "sth"))
    for f in a11_x(k, "h"): fm.add(f, 2); fm.skip(P.a1_xgap)
    stats_path(k, fy, A_ST, "sth", R.SA, 0, gap_of[(order[3], P.a1_sth)])
    k.per = dict(P.per_a1); k.bg_held = True
    b5 = batch(k, 5)
    mix = [(f, "s2", ("gw", 4), None) for f in batch(k, 4)] + [(f, "s2", ("gw", 5), None) for f in b5[:3]]
    ww = [(f, "s4", "wow", None) for f in wow(k)]
    while mix or ww:
        k.bg += ww[:2]; ww = ww[2:]
        if mix: k.bg.append(mix.pop(0))
    bg_batches(k, [0], "s2", lambda b: ("bar", order[3]))
    bg_batches(k, [1], "s2", lambda b: ("bar", "h"))
    bg_batches(k, [2, 3], "s2", lambda b: "wobar")
    bg_list(k, b5[3:], "s2", ("gw", 5), "wobar")
    bg_batches(k, [6, 7, 8, 9], "s2", lambda b: "gubar")
    A = lambda t: (accof(t) if t != "h" else None, accof(t) + 4, accof(t) + 8)
    for n in range(4): fix(k, R, fx, order[n], A(order[n]), gap_of[(order[n + 1], 1 if n < 3 else 2)], False)
    attn(k, R, fz, 3, R.ATT[0]); attn(k, R, fz2, 2, R.ATT[1]); ostore(k, fz2, 1)
    attn(k, R, fz, 1, R.ATT[0])
    fx.dep(("saw", "sth"))
    for f in fix_reads(k, R, "h", A_STA): fx.add(f)
    fx.dep("gemm_done")
    fix(k, R, fx, "h", A("h"), 0, False, pre=True); attn(k, R, fz2, 0, R.ATT[1]); ostore(k, fz2, 0)
    f3 = Flex(); f3.dep(("ost", 1)); f3.skip(P.l1_flag_delay)
    f3.add(lambda: (k.wait(vm=[("ost", 1)]), k.flag(1, 89), k.mark("oflag1")), 3)
    f3.dep(("attn", 0)); f3.add(lambda: wo_prepoll(k, 1))
    k.wait(vm=[("x", order[0])]); k.e("s_barrier")
    for i in range(4): xread(i)
    k.wait(lg=[("xf", 0)])
    k.stamp("a1 first")
    if k.stamping:
        for t in order[1:]: fixed.setdefault(gap_of[(t, 0)], []).append((0, lambda t=t: k.stamp(f"a1 t{t}")))
    run_gaps(k, mains, fixed, [fm, f3, fy, fx, fz2, fz], 2, over=lambda i: i >= P.a1_over)
    print("a11 left:", len(fm), len(fy), len(fx), len(fz), len(fz2), len(k.bg), {n: g for n, g in k.marks.items() if isinstance(n, tuple) and n[0] in ("fix", "attn", "saw", "ost")})
    k.mark("gemm_done"); k.bg_held = P.a1_tailhold
    k.stamp("a1 gemm")
    drain([fm, fy, fx, fz, fz2, f3], k)
    for n in range(2): assert k.marks[("fix", order[n])] < gap_of[(order[n + 3], 0)], "accumulator reused too early"
    k.stamp("a1 end")
P.a1_flag_gap, P.a1_late_gap, P.a1_poll_lead, P.l1_flag_delay, P.a1_over = 8, 36, 18, 22, 48
P.a1_salead = 8; P.a1_tailhold = True; P.touch1 = 1; P.a1_xgap = 3; P.a1_sth = 4
P.per_a1 = {"s2": 95, "s4": 60}

R_W0, R_W1, R_RD, R_ST, R_OUT = 3, 4, 5, 6, 7
def red_setup(k, posA, dAB):
    x, y, z, u = 28, 29, 30, 31
    k.e(f"s_add_u32 s32, s{sGL}, {posA*16384}", f"v_add_u32 v{R_W0}, s32, v{vL16}", f"v_xor_b32 v{R_W1}, 128, v{R_W0}")
    k.e(f"v_and_b32 v{x}, 7, v1", f"v_lshrrev_b32 v{y}, 3, v1", f"s_lshl_b32 s32, s{sW}, 7", f"v_lshl_add_u32 v{z}, v{x}, 4, s32",
        f"v_bfe_u32 v{u}, v1, 4, 1", f"v_lshlrev_b32 v{R_RD}, 7, v{u}", f"v_xor_b32 v{z}, v{z}, v{R_RD}",
        f"v_bfe_u32 v{R_RD}, v1, 3, 2", f"v_lshl_add_u32 v{z}, v{R_RD}, 10, v{z}", f"v_lshrrev_b32 v{R_RD}, 5, v1",
        f"v_mul_u32_u24 v{R_RD}, {dAB*16384}, v{R_RD}", f"v_add_u32 v{z}, v{z}, v{R_RD}", f"v_add_u32 v{R_RD}, {posA*16384}, v{z}")
    k.e(f"v_lshlrev_b32 v{z}, 4, v{x}", f"v_lshl_add_u32 v{z}, v{u}, 2, v{z}", f"v_and_b32 v{u}, 0x28, v1",
        f"v_cmp_eq_u32 vcc, 0, v{u}", f"v_mov_b32 v{u}, {OOB:#x}", f"v_cndmask_b32 v{R_ST}, v{u}, v{z}, vcc")
    k.e(f"v_lshlrev_b32 v{z}, 10, v{x}", f"v_lshl_add_u32 v{R_OUT}, v{y}, 4, v{z}")

def red_bases(k):
    k.e(f"s_lshl_b32 s32, s{sB}, 3", f"s_add_u32 s32, s32, s{sW}", "s_lshl_b32 s55, s32, 13", f"s_lshl_b32 s33, s{sCS}, 10", "s_add_u32 s55, s55, s33")
    k.e("s_lshl_b32 s57, s32, 13", f"s_lshl_b32 s33, s{sCS}, 7", "s_add_u32 s57, s57, s33")
    k.e(f"s_lshl_b32 s56, s{sB}, 12", f"s_lshr_b32 s33, s{sCS}, 1", "s_lshl_b32 s33, s33, 9", "s_add_u32 s56, s56, s33",
        f"s_and_b32 s33, s{sCS}, 1", "s_lshl_b32 s33, s33, 3", "s_add_u32 s56, s56, s33", f"s_lshl_b32 s33, s{sW}, 7", "s_add_u32 s56, s56, s33")

def red_writes(k, acc, g, off, dAB):
    return [lambda q=q: k.ds(f"ds_write_b128 v{R_W1 if (q>>1)&1 else R_W0}, {vr(acc+4*q,4)} offset:{off + (q>>2)*dAB*16384 + (q&3)*1024}", ("rw", g)) for q in range(8)]
def red_reads(k, g, T, off):
    return [lambda w=w, hf=hf: k.ds(f"ds_read_b128 {vr(T+8*w+4*hf,4)}, v{R_RD} offset:{off + w*4096 + hf*512}", ("rr", g, w)) for w in range(4) for hf in range(2)]

def red_finish(k, fx, g, mm, T, xdst, stdst, final, pk):
    a = lambda txt, c=1: fx.add(lambda: k.e(txt), c)
    R = RES + 4 * mm
    def add8(d, s):
        if pk:
            for i in range(0, 8, 2): a(f"v_pk_add_f32 {vr(d+i,2)}, {vr(d+i,2)}, {vr(s+i,2)}")
        else:
            for i in range(8): a(f"v_add_f32 v{d+i}, v{d+i}, v{s+i}")
    fx.add(lambda: k.wait(lg=[("rr", g, 1)]))
    add8(T, T + 8)
    for i in range(4): a(f"v_lshlrev_b32 v{T+8+2*i}, 16, v{R+i}"); a(f"v_and_b32 v{T+9+2*i}, 0xffff0000, v{R+i}")
    add8(T, T + 8)
    fx.add(lambda: k.wait(lg=[("rr", g, 3)]))
    add8(T + 16, T + 24); add8(T, T + 16)
    for i in range(4): a(f"v_cvt_pk_bf16_f32 v{R+i}, v{T+2*i}, v{T+2*i+1}")
    if final:
        fx.add(lambda: (k.e(f"s_add_u32 s32, s57, {mm*32768}"), k.vm(f"buffer_store_dwordx4 {vr(R,4)}, v{R_OUT}, {SRD_OUT}, s32 offen {P.outm}", ("xst", g))))
        return
    fx.add(lambda: (k.e(f"s_add_u32 s32, s55, {xdst + mm*32768}"), k.dstore(f"buffer_store_dwordx4 {vr(R,4)}, v{vL16}, {SRD_WS}, s32 offen", ("xst", g))), 2)
    s, q = T + 32, T + 33
    a(f"v_add_f32 v{s}, v{T}, v{T+1}"); a(f"v_mul_f32 v{q}, v{T}, v{T}"); a(f"v_fmac_f32 v{q}, v{T+1}, v{T+1}")
    for i in range(2, 8): a(f"v_add_f32 v{s}, v{s}, v{T+i}"); a(f"v_fmac_f32 v{q}, v{T+i}, v{T+i}")
    fx.skip(1)
    a(f"v_add_f32_dpp v{s}, v{s}, v{s} row_ror:8 row_mask:0xf bank_mask:0xf"); a(f"v_add_f32_dpp v{q}, v{q}, v{q} row_ror:8 row_mask:0xf bank_mask:0xf")
    fx.skip(1)
    a(f"v_permlane16_swap_b32 v{s}, v{q}", 2); a(f"v_add_f32 v{s}, v{s}, v{q}"); a(f"v_mov_b32 v{q}, v{s}"); fx.skip(1)
    a(f"v_permlane32_swap_b32 v{s}, v{q}", 2); a(f"v_add_f32 v{s}, v{s}, v{q}")
    fx.add(lambda: (k.e(f"s_add_u32 s32, s56, {stdst + mm*2048}"), k.dstore(f"buffer_store_dword v{s}, v{R_ST}, {SRD_WS}, s32 offen", ("xst", g)), k.mark(("xst", g))), 2)

def merge(k, fx, extra, first=0):
    extra = list(extra)
    items = [it for it in fx.items if it[0] != "skip"]; fx.items = []
    per = max(1, (len(items) - first) // max(1, len(extra)))
    for n, it in enumerate(items):
        if n >= first and (n - first) % per == 0 and extra: extra.pop(0)()
        it[1](); k.bg_step()
    for f in extra: f(); k.bg_step()

def wo(k, layer):
    BF, WQ, ACC, T, PA, NQ = 32, 160, 192, 208, A_PA, 8
    state = {}
    def bload(sx):
        k.set_s(f"s_add_u32 s58, s59, {(sx & ~1)*2048}")
        k.vm(f"buffer_load_dwordx4 {vr(BF+4*sx,4)}, v{W_OA}, {SRD_WS}, s58 offen offset:{(sx%2)*2048} sc1", ("b", sx))
    def wread(n): k.ds(f"ds_read_b128 {vr(WQ+4*(n%NQ),4)}, v{W_RB} offset:{n*1024}", ("wq", n))
    k.wait(vm=["wow"]); k.e("s_barrier"); k.mark("wobar")
    for n in range(NQ): wread(n)
    btxt = lambda sx: [f"s_add_u32 s99, s59, {sx*2048}", f"buffer_load_dwordx4 {vr(BF+4*sx,4)}, v{W_OA}, {SRD_WS}, s99 offen sc1"]
    bchk = lambda sx: k.valid([f"v_cmp_eq_u32 vcc, -1, v{BF+4*sx}"], btxt(sx))
    ptxt = f"buffer_load_dword v{T+20}, v{T+21}, {SRD_WS}, s59 offen sc1"
    if P.tags:
        k.e(f"v_lshlrev_b32 v{T+21}, 8, v{PA}")
        k.e(f"v_or_b32 v{T+21}, v{T+21}, v{PA}", f"v_and_b32 v{T+21}, 0x80007c00, v{T+21}")
        k.poll_check(PA, "po1", 1)
        k.vm(ptxt, "probe")
        for sx in range(P.wo_spec): bload(sx)
        k.e(f"s_lshl_b32 s32, s{sC}, 1", f"s_and_b32 s33, s{sW}, 1", "s_add_u32 s32, s32, s33", "s_lshl_b32 s32, s32, 7", f"s_add_u32 s{sPO}, s32, {fl(layer, FL_O)}")
    else:
        k.e(f"s_add_u32 s{sFO}, s66, {fl(layer, FL_X1)}")
        k.e(f"s_cmp_lt_u32 s{sW}, 2", f"s_cbranch_scc1 L_wo_late{layer}")
        q0 = list(k.vmq)
        k.poll_check(PA, "po1", 1)
        for sx in range(P.wo_lead): bload(sx)
        k.wait(vm=[("ost", 0)]); k.flag(2, 89)
        k.e(f"s_branch L_wo_join{layer}")
        k.label(f"L_wo_late{layer}")
        k.vmq = list(q0)
        k.wait(vm=[("ost", 0)]); k.flag(2, 89)
        k.poll_issue(PA, "po2"); k.poll_check(PA, "po2", 2)
        for sx in range(P.wo_lead): bload(sx)
        k.label(f"L_wo_join{layer}")
    gu_setup(k, layer)
    k.stamp("wo issued")
    mains = []; fixed = {}
    for n in range(64):
        sx, j = divmod(n, 4)
        mains.append(lambda n=n, sx=sx, j=j: k.e(f"{MF16} {vr(ACC+4*j,4)}, {vr(WQ+4*(n%NQ),4)}, {vr(BF+4*sx,4)}, {'0' if sx == 0 else vr(ACC+4*j,4)}"))
        fl_ = fixed.setdefault(n, [])
        if n < 63: fl_.append((0, lambda n=n: k.wait(vm=[("b", (n + 1) // 4)] if (n + 1) % 4 == 0 else None, lg=[("wq", n + 1)])))
        if P.tags and n < 63 and (n + 1) % 4 == 0: fl_.append((1, lambda n=n: bchk((n + 1) // 4)))
        if P.tags and n == 42: fl_.append((1, lambda: k.poll_issue(PA, "px1")))
        if n + NQ < 64: fl_.append((1, lambda n=n: wread(n + NQ)))
        if n % P.wo_bstep == 0 and P.wo_lead + n // P.wo_bstep < 16: fl_.append((1, lambda n=n: bload(P.wo_lead + n // P.wo_bstep)))
    fx = Flex()
    a = lambda txt, c=1, at=0: fx.add(lambda: k.e(txt), c, at)
    fx.add(lambda: k.wait(vm=["res"]), 1, 8)
    for i in range(8): a(f"v_lshlrev_b32 v{T+2*i}, 16, v{RES+i}"); a(f"v_and_b32 v{T+2*i+1}, 0xffff0000, v{RES+i}")
    k.per = dict(P.per_wo[layer]); k.bg_held = False; k.bg_next = k.t + P.wo_bg_delay
    if P.tags:
        k.wait(vm=["probe"])
        k.valid([f"v_cmp_eq_u32 vcc, -1, v{T+20}"], [ptxt] + sum([btxt(x) for x in range(P.wo_spec)], []))
        state["fresh"] = True
        for sx in range(P.wo_spec, P.wo_lead): bload(sx)
    k.wait(vm=[("b", 0)], lg=[("wq", 0)])
    if P.tags: bchk(0)
    k.stamp("wo first")
    fixed[P.wo_bg_stop].append((0, lambda: setattr(k, "bg_held", True)))
    run_gaps(k, mains, fixed, [fx], 2)
    drain([fx], k)
    k.stamp("wo gemm")
    for i in range(0, 16, 2): k.e(f"v_pk_add_f32 {vr(T+i,2)}, {vr(T+i,2)}, {vr(ACC+i,2)}")
    k.e(f"s_add_u32 s58, s64, {BX1[layer]}")
    for p in range(2):
        for i in range(4): k.e(f"v_cvt_pk_bf16_f32 v{RES+4*p+i}, v{T+8*p+2*i}, v{T+8*p+2*i+1}")
        k.dstore(f"buffer_store_dwordx4 {vr(RES+4*p,4)}, v{W_UA}, {SRD_WS}, s58 offen offset:{p*512}", "xst")
    S, Q = T + 16, T + 18
    k.e(f"v_pk_add_f32 {vr(S,2)}, {vr(T,2)}, {vr(T+2,2)}", f"v_pk_mul_f32 {vr(Q,2)}, {vr(T,2)}, {vr(T,2)}", f"v_pk_fma_f32 {vr(Q,2)}, {vr(T+2,2)}, {vr(T+2,2)}, {vr(Q,2)}")
    for i in range(4, 16, 2): k.e(f"v_pk_add_f32 {vr(S,2)}, {vr(S,2)}, {vr(T+i,2)}", f"v_pk_fma_f32 {vr(Q,2)}, {vr(T+i,2)}, {vr(T+i,2)}, {vr(Q,2)}")
    k.e(f"v_add_f32 v{S}, v{S}, v{S+1}", f"v_add_f32 v{Q}, v{Q}, v{Q+1}", f"s_add_u32 s58, s65, {BS1[layer]}",
        f"v_permlane16_swap_b32 v{S}, v{Q}", f"v_add_f32 v{S}, v{S}, v{Q}", f"v_mov_b32 v{Q}, v{S}", f"v_permlane32_swap_b32 v{S}, v{Q}", f"v_add_f32 v{S}, v{S}, v{Q}")
    k.dstore(f"buffer_store_dword v{S}, v{W_SA}, {SRD_WS}, s58 offen", "xst")
    key = lambda it: it[2][1] if isinstance(it[2], tuple) else 11.5
    k.bg.sort(key=key)
    print(f"wo{layer} done, background left:", [it[2] for it in k.bg][::4])
    k.bg_burst(P.wo_win[layer])
    k.stamp("wo end")
P.wo_bg_delay = 200; P.wo_bg_stop = 56; P.wo_lead = 6; P.wo_spec = 3; P.gu_spec = 3; P.wo_bstep = 2
P.wo_poll_gap = 1; P.wo_late_gap = 7; P.wo_hold = True; P.wo_win = [4, 4]; P.wo_var = 'B'; P.wo_prew = 2
P.per_wo = [{"s2": 50, "s4": 50}] * 2

G_RB, G_C1, G_VV, G_AUG, G_X, G_ACC, G_WF, G_T = 3, 6, 7, 28, 32, 160, 224, 240
D_WV, D_BF, D_ACC, D_T, D_WF, D_RB, D_PA = 32, 64, 128, 192, 228, 112, 115
def gu_setup(k, layer):
    T = G_T; XA = T + 3
    k.e(*gu_tile("s50"))
    k.e(f"v_and_b32 v{T}, 31, v1")
    k.e(f"v_mov_b32 v{G_RB}, v{vL16}", f"v_add_u32 v{G_RB+1}, 0x10000, v{vL16}", f"v_add_u32 v{G_RB+2}, 0x20000, v{vL16}")
    k.e(f"v_lshrrev_b32 v{T+1}, 5, v1", f"v_lshlrev_b32 v{G_AUG+3}, 4, v{T}", f"v_lshl_add_u32 v{G_AUG+3}, v{T+1}, 10, v{G_AUG+3}")
    k.e(f"v_lshrrev_b32 v{XA}, 3, v{T}", f"v_lshlrev_b32 v{XA}, 13, v{XA}", f"v_lshl_add_u32 v{XA}, v{T+1}, 7, v{XA}",
        f"v_and_b32 v{T}, 7, v1", f"v_lshl_add_u32 v{XA}, v{T}, 4, v{XA}")
    k.e("s_lshl_b32 s32, s50, 11", f"s_add_u32 s51, s32, {BS1[layer]}")
    k.e("s_lshl_b32 s32, s50, 15", f"s_add_u32 s52, s32, {BX1[layer]}", "s_add_u32 s53, s52, 4096")
    k.e(*h_base("s54", layer))
    k.e("s_lshr_b32 s32, s50, 1", "s_lshl_b32 s32, s32, 4", f"s_add_u32 s32, s32, s{sM}",
        "s_lshl_b32 s32, s32, 1", "s_and_b32 s33, s50, 1", "s_add_u32 s32, s32, s33", "s_lshl_b32 s32, s32, 2", f"s_add_u32 s81, s32, {fl(layer, FL_H)}")

def gu(k, layer):
    T = G_T; XA = T + 3; PA = T + 2
    if P.tags: k.poll_check(A_PA, "px1", 1)
    else:
        k.poll_addr(PA, 16)
        k.e("s_lshl_b32 s32, s50, 6", f"s_add_u32 s{sPO}, s32, {fl(layer, FL_X1)}")
        k.wait(vm=["xst"]); k.flag(1)
        k.stamp("x1 flag")
        k.poll_issue(PA, "px1")
    k.e(f"s_mov_b32 s{sFO}, s81")
    seq = [(t, ks) for ks in range(33) for t in range(3)] + [(t, ks) for t in range(3, 7) for ks in range(33)]
    accof = {0: 0, 1: 1, 2: 2, 3: 3, 4: 0, 5: 1, 6: 2}
    NW = P.gu_nw
    WQ = [G_WF, G_WF + 4, G_WF + 8, G_WF + 12, T + 12]
    def wread(n):
        slot = (n % 160) * 1024
        k.ds(f"ds_read_b128 {vr(WQ[n%NW],4)}, v{G_RB + (slot>>16)} offset:{slot & 0xffff}", ("wf", n))
    if not P.tags: k.poll_check(PA, "px1", 1)
    k.stamp("gu go")
    xtxt = lambda kg: f"buffer_load_dwordx4 {vr(G_X+4*kg,4)}, v{XA}, {SRD_WS}, s{52 + (kg>>4)} offen offset:{((kg>>2)&3)*1024 + (kg&3)*256} sc1"
    def xload(kg): k.vm(xtxt(kg), ("gx", kg))
    xchk = lambda kg: k.valid([f"v_cmp_eq_u32 vcc, -1, v{G_X+4*kg}"], [xtxt(kg)])
    stxt = [f"buffer_load_dwordx4 {vr(T+4+4*h,4)}, v{G_AUG+3}, {SRD_WS}, s51 offen offset:{512*h} sc1" for h in range(2)]
    if P.tags:
        for t_ in stxt: k.vm(t_, "gst")
        for kg in range(P.gu_spec): xload(kg)
        k.wait(vm=["gst"])
        k.valid([f"v_max3_u32 v{T}, v{T+4}, v{T+6}, v{T+8}", f"v_max_u32 v{T}, v{T}, v{T+10}", f"v_cmp_eq_u32 vcc, -1, v{T}"],
                stxt + [xtxt(x) for x in range(P.gu_spec)])
        k.stamp("gu probe")
        for kg in range(P.gu_spec, P.gu_lead): xload(kg)
    else:
        for kg in range(P.gu_lead): xload(kg)
        for t_ in stxt: k.vm(t_, "gst")
    k.wait(vm=[("gw", 0)]); k.e("s_barrier"); k.mark("gubar")
    for n in range(NW): wread(n)
    mains = []; fixed = {}
    xpos = {}
    for kg in range(P.gu_lead, 32): xpos.setdefault(int((kg - P.gu_lead) * P.gu_xstep), []).append(kg)
    for n, (t, ks) in enumerate(seq):
        acc = G_ACC + 16 * accof[t]
        b = vr(G_AUG, 4) if ks == 32 else vr(G_X + 4*ks, 4)
        c = "0" if ks == 0 else vr(acc, 16)
        mains.append(lambda n=n, acc=acc, b=b, c=c: k.e(f"{MF32} {vr(acc,16)}, {vr(WQ[n%NW],4)}, {b}, {c}"))
        fl_ = fixed.setdefault(n, [])
        if n + 1 < len(seq):
            t2, ks2 = seq[n + 1]
            need = [("gx", ks2)] if (t2 == 0 and ks2 < 32) else None
            fl_.append((0, lambda n=n, need=need: k.wait(vm=need, lg=[("wf", n + 1)])))
            if need and P.tags: fl_.append((2, lambda ks2=ks2: xchk(ks2)))
        j = n + NW
        if j < len(seq):
            if j % 16 == 0:
                fl_.append((2, lambda bi=j//16: (k.wait(vm=[("gw", bi)]), k.e("s_barrier" if not P.x_nobar else "s_nop 0"), k.mark(("gbar", bi)))))
            fl_.append((1, lambda j=j: wread(j)))
        for kg in xpos.get(n, []): fl_.append((1, lambda kg=kg: xload(kg)))
    xend = max(xpos)
    tail = [it for it in k.bg if it[2] == "dna"]; k.bg = [it for it in k.bg if it[2] != "dna"]
    bg_batches(k, [10, 11], "s2", lambda b: ("gbar", b - 8))
    mid = []
    for b in (12, 13, 14):
        for f in batch(k, b): mid.append((f, "s2", ("gw", b), ("gbar", b - 8)))
    while mid or tail:
        if mid: k.bg.append(mid.pop(0))
        if tail: k.bg.append(tail.pop(0))
    bg_batches(k, range(15, 23), "s4", lambda b: ("gbar", b - 8))
    k.per = dict(P.per_guA[layer]); k.bg_held = False; k.bg_next = k.t + P.gu_bg_delay
    fixed[xend].append((0, lambda: setattr(k, "per", dict(P.per_guB[layer]))))
    fv = Flex()
    for j, f in enumerate(regloads(k, sDS, 48*1024, lambda j: vr(D_WV + 4*j, 4), 8, "dnv", tmp=50)): fv.add(f, 1, 198 + 2 + 3*j)
    fx = Flex()
    a = lambda txt, c=1, at=0: fx.add(lambda: k.e(txt), c, at)
    fx.add(lambda: k.wait(vm=["gst"]), 1, 3 * P.gu_lead)
    a(f"v_add_f32 v{T+4}, v{T+4}, v{T+6}"); a(f"v_add_f32 v{T+5}, v{T+5}, v{T+7}"); a(f"v_add_f32 v{T+8}, v{T+8}, v{T+10}"); a(f"v_add_f32 v{T+9}, v{T+9}, v{T+11}")
    a(f"v_add_f32 v{T+4}, v{T+4}, v{T+8}"); a(f"v_add_f32 v{T+5}, v{T+5}, v{T+9}"); fx.skip(1)
    a(f"v_permlane32_swap_b32 v{T+4}, v{T+5}", 2); a(f"v_add_f32 v{T+4}, v{T+4}, v{T+5}"); a(f"v_mov_b32 v{T+5}, v{T+4}"); fx.skip(1)
    a(f"v_permlane32_swap_b32 v{T+4}, v{T+5}", 2)
    ln_finish(a, T + 4, T + 5)
    a(f"v_mov_b32 v{G_VV}, v{T+5}")
    a(f"v_rsq_f32 v{G_C1}, v{T+5}", 2); a(f"v_cvt_pk_bf16_f32 v{G_AUG}, v{T+4}, v{T+4}"); a(f"v_mul_f32 v{G_C1}, {f2u(-LOG2E):#x}, v{G_C1}")
    a(f"v_and_b32 v{T+5}, 0xffff0000, v{G_AUG}"); a(f"v_sub_f32 v{T+5}, v{T+4}, v{T+5}"); a(f"v_mov_b32 v{G_AUG+2}, 0")
    a(f"v_cvt_pk_bf16_f32 v{G_AUG+1}, v{T+5}, v{G_AUG+2}"); a(f"v_mov_b32 v{G_AUG+3}, 0")
    fx.add(lambda: k.mark("aug"), 0)
    def epi(t, at):
        acc = G_ACC + 16 * accof[t]; hp = T + 8; E = T + 4
        if P.x_noepi: a("s_nop 0", 1, at)
        for i0 in range(0, 8 if not P.x_noepi else 0, 2):
            for i in (i0, i0 + 1): a(f"v_mul_f32 v{E+(i&1)}, v{G_C1}, v{acc+i}", 1, at)
            for i in (i0, i0 + 1): a(f"v_exp_f32 v{E+(i&1)}, v{E+(i&1)}", 2)
            for i in (i0, i0 + 1): a(f"v_mul_f32 v{E+2+(i&1)}, v{acc+i}, v{acc+8+i}")
            for i in (i0, i0 + 1): a(f"v_fma_f32 v{E+(i&1)}, v{E+(i&1)}, v{G_VV}, v{G_VV}")
            for i in (i0, i0 + 1): a(f"v_rcp_f32 v{E+(i&1)}, v{E+(i&1)}", 2)
            fx.skip(1)
            for i in (i0, i0 + 1): a(f"v_mul_f32 v{E+2+(i&1)}, v{E+2+(i&1)}, v{E+(i&1)}")
            a(f"v_cvt_pk_bf16_f32 v{hp+i0//2}, v{E+2}, v{E+3}")
        fx.add(lambda: k.mark(("epi", t)), 0)
        if t == 4: a("s_add_u32 s54, s54, 4096")
        fx.add(lambda: ((k.dstore if ((layer and P.h1_plain) or (not layer and P.h_touch0)) else lambda x, tg: k.vm(x + " sc1", tg))(f"buffer_store_dwordx4 {vr(hp,4)}, v{vL16}, {SRD_WS}, s54 offen offset:{(t%4)*1024}", ("hst", t)), k.mark(("hst", t))), 2)
    end = {t: max(n for n, x in enumerate(seq) if x[0] == t) for t in range(7)}
    for t in range(6): epi(t, end[t] + 3)
    if layer == 0 and P.h_touch0 == "g": fixed[xend + 1].append((5, lambda: k.touch(T, "h", ["s_mov_b32 s32, s54"])))
    ff = Flex(); ff.dep(("hst", 3))
    if layer == 0:
        ff.add(lambda: k.touch(T, "p", [f"s_add_u32 s32, s55, {WS_X[1]}"]), 6)
        ff.add(lambda: k.touch(T + 1, "s", [f"s_add_u32 s32, s56, {WS_ST[1]}"]), 4)
        if "g" in str(P.touch1):
            for f in touch_next(k, T + 2)[:2]: ff.skip(1); ff.add(f, 6)
    ff.skip(P.gu_flag_delay)
    ff.add(lambda: (k.wait(vm=[("hst", 3)]), k.flag(1)), 3)
    def hpoll():
        k.wait(vm=["touch"] if "touch" in k.seen else None)
        k.poll_addr(T, 8)
        k.e(f"s_lshl_b32 s32, s{sB}, 7", f"s_lshl_b32 s33, s{sW}, 5", "s_add_u32 s32, s32, s33", f"s_add_u32 s{sPO}, s32, {fl(layer, FL_H)}")
        k.poll_issue(T, "ph1")
    ff.add(hpoll, 4, 228)
    k.wait(vm=[("gx", 0)], lg=[("wf", 0)])
    if P.tags: xchk(0)
    k.stamp("gu first")
    if k.stamping:
        for g in (48, 98, 131, 164, 197): fixed[g].append((0, lambda g=g: k.stamp(f"gu m{g}")))
    fixed[93].append((0, lambda: k.marks["aug"]))
    run_gaps(k, mains, fixed, [fv, ff, fx], P.gu_cap)
    print("gu left:", len(k.bg), len(fv), len(ff), len(fx), {n: g for n, g in k.marks.items() if isinstance(n, tuple) and n[0] == "hst"})
    k.stamp("gu gemm")
    for g, t in {132: 0, 165: 1, 198: 2}.items(): assert k.marks[("epi", t)] < g, "accumulator reused too early"
    epi(6, 0); drain([ff, fv, fx], k)
    k.e(f"v_mov_b32 v{D_PA}, v{T}")
    k.stamp("gu end")
P.gu_flag_delay = 10; P.gu_xstep = 2.6; P.gu_bg_delay = 300
P.per_guA = [{"s2": 120, "s4": 120}, {"s2": 160, "s4": 160}]
P.per_guB = [{"s2": 90, "s4": 55}] * 2

def dn(k, layer):
    final = layer == 1
    NB = P.dn_lead; T = D_T
    groups = [1, 0]
    k.e(f"s_mul_i32 s32, s{sB}, {224*KB}", f"s_mul_i32 s33, s{sW}, {28*KB}", "s_add_u32 s32, s32, s33", f"s_add_u32 s59, s32, {BH[layer]}")
    seq = [(g, e) for g in range(2) for e in range(28)]
    state = {"base": None}
    def bload(i):
        g, e = seq[i]; off = groups[g] * 112 * KB + KK_OF[e] * 1024
        if state["base"] is None or not (0 <= off - state["base"] < 4096):
            state["base"] = off; k.e(f"s_add_u32 s58, s59, {off}")
        k.vm(f"buffer_load_dwordx4 {vr(D_BF+4*(i%NB),4)}, v{vL16}, {SRD_WS}, s58 offen offset:{off - state['base']} sc1", ("b", i))
    k.poll_check(D_PA, "ph1", 1)
    k.stamp("dn early")
    k.bg_held = True
    for i in range(P.dn_pre): bload(i)
    red_setup(k, 3, 1)
    k.e(f"v_add_u32 v{D_RB}, s{sGL}, v{vL16}", f"v_add_u32 v{D_RB+1}, 0x10000, v{D_RB}", f"v_add_u32 v{D_RB+2}, 0x20000, v{D_RB}")
    k.wait(vm=[("hst", 6)]); k.flag(2)
    k.poll_issue(D_PA, "ph2")
    for i in range(P.dn_pre, NB): bload(i)
    k.e(f"s_add_u32 s{sFO}, s89, {FL_X2 - FL_O}")
    k.per = dict(P.per_dn0); k.bg_held = False
    lds = [(i, nn) for i, (g, e) in enumerate(seq) if 8 <= e < 24 for nn in range(2)]
    slot_of = {x: n for n, x in enumerate(lds)}
    NWF = 6
    def wread(n):
        i, nn = lds[n]; j = 2 * (seq[i][1] - 8) + nn; b = 15 + (j >> 2)
        ad = (b % 10) * 16384 + (j & 3) * 1024
        if seq[i][0] == 0: k.wait(vm=[("gw", b)])
        k.ds(f"ds_read_b128 {vr(D_WF+4*(n%NWF),4)}, v{D_RB + (ad>>16)} offset:{ad & 0xffff}", ("wf", n))
    def wfrag(i, nn):
        e = seq[i][1]
        if e < 8: return ar(192 + 8*e + 4*nn, 4)
        if e >= 24: return vr(D_WV + 8*(e - 24) + 4*nn, 4)
        return vr(D_WF + 4*(slot_of[(i, nn)] % NWF), 4)
    mains = []; fixed = {}
    late = 16 - NB
    for i, (g, e) in enumerate(seq):
        for nn in range(2):
            acc = D_ACC + 32 * g + 16 * nn
            mains.append(lambda i=i, nn=nn, acc=acc, e=e: k.e(f"{MF32} {vr(acc,16)}, {wfrag(i,nn)}, {vr(D_BF+4*(i%NB),4)}, {'0' if e == 0 else vr(acc,16)}"))
            gp = len(mains) - 1; fl_ = fixed.setdefault(gp, [])
            nx = (i, 1) if nn == 0 else (i + 1, 0)
            vmn = [("b", i + 1)] if (nn == 1 and i + 1 < len(seq)) else None
            lgn = [("wf", slot_of[nx])] if nx in slot_of else None
            if nn == 1 and i + 1 == 24: vmn = vmn + ["dnv"]
            fl_.append((0, lambda vmn=vmn, lgn=lgn: k.wait(vm=vmn, lg=lgn)))
            ah = (i + 2, nn)
            if ah in slot_of: fl_.append((1, lambda n=slot_of[ah]: wread(n)))
    nxt = NB; pend = 0
    for i in range(len(seq)):
        fl_ = fixed[2*i + 1]
        if i == P.dn_late: fl_.append((2, lambda: (k.poll_check(D_PA, "ph2", 2), k.stamp("dn late"), k.mark("late"))))
        n = 0
        while nxt < len(seq) and nxt <= i + NB and n < 2 and (nxt < 16 or i >= P.dn_late):
            fl_.append((1, lambda j=nxt: bload(j))); nxt += 1; n += 1
        if nxt == len(seq) and not pend: pend = 2*i + 2
    fixed[20].append((1, lambda: k.e("s_barrier")))
    for mm in range(2):
        fixed[40 + 4*mm].append((2, lambda mm=mm: (k.e(f"s_add_u32 s32, s55, {BX1[layer] + mm*32768}"),
                                                   k.vm(f"buffer_load_dwordx4 {vr(RES+4*mm,4)}, v{vL16}, {SRD_WS}, s32 offen sc1", "res"))))
    fw = Flex(); fs = Flex()
    for q, f in enumerate(red_writes(k, D_ACC, 0, 0, 1)): fw.add(f, 1, 58 + 2*q)
    fw.add(lambda: (k.wait(lg=[("rw", 0)]), k.e("s_barrier")), 2, 76)
    for f in red_reads(k, 0, T, 0): fw.add(f, 2)
    fw.add(lambda: k.wait(vm=["res"]))
    red_finish(k, fw, 0, groups[0], T, WS_X[1], WS_ST[1], final, False)
    if not final:
        fw.add(lambda: k.vm(f"buffer_store_dwordx4 {vr(RES+4,4)}, v{vL16}, {SRD_WS}, s72 offen sc1", "hxs"))
        fw.add(lambda: k.vm(f"buffer_store_dword v{T+32}, v{R_ST}, {SRD_WS}, s73 offen sc1", "hxs"))
        fw.skip(P.dn_flag_delay); fw.add(lambda: (k.wait(vm=[("xst", 0)]), k.flag(1)), 3)
        if "d" in str(P.touch1):
            for q, f in enumerate(touch_next(k, 28)): fixed[P.dn_touch + 2*q].append((5, f))
        fs.dep("late")
        for f in a11_bases(k) + a1_setup(k, 1): fs.add(f)
        fs.add(lambda: (k.poll_addr(A_PX, 32), k.e(f"s_lshl_b32 s32, s{sB}, 7", f"s_add_u32 s{sPO}, s32, {fl(0, FL_X2)}")), 4)
    k.wait(vm=["dna", ("b", 0)])
    k.stamp("dn first")
    if k.stamping: fixed[55].append((0, lambda: k.stamp("dn p1")))
    run_gaps(k, mains, fixed, [fw, fs], 6)
    print("dn left:", len(k.bg), len(fw), len(fs), "last h load at gap", pend)
    k.stamp("dn gemm")
    assert not fs.items
    ws = red_writes(k, D_ACC + 32, 1, 2*16384, 1)
    if not final: ws.insert(4, lambda: k.poll_issue(A_PX, "px0"))
    merge(k, fw, ws)
    k.wait(lg=[("rw", 1)]); k.e("s_barrier")
    k.stamp("dn red")
    for f in red_reads(k, 1, T, 2*16384): f()
    if not final:
        k.bg_held = True
        k.poll_check(A_PX, "px0", 1)
        k.wait(vm=["hxs"]); k.flag(1, 91, "sc1")
        a11_early(k)
    f1 = Flex(); red_finish(k, f1, 1, groups[1], T, WS_X[1], WS_ST[1], final, True); drain([f1], k)
    k.stamp("dn end")
P.dn_touch = 88; P.dn_flag_delay = 4; P.dn_pre = 8; P.dn_late = 7
P.dn_wow = 6; P.per_dn = {"s4": 110, "s2": 130}; P.per_dn0 = {"s4": 60, "s2": 60}

def build(stamps=False, only=None):
    k = F(); k.stamping = stamps; k.only = only; k.st = P.dst; k.rt = P.rt
    name = NAME + "_kernel"
    k.e(".p2align 8", f".globl {name}", f".type {name},@function"); k.label(name)
    if stamps: k.e("s_memrealtime s[92:93]", "s_memtime s[94:95]")
    k.e("s_cmp_ge_u32 s2, 256", "s_cbranch_scc1 L_end")
    k.e("s_load_dwordx16 s[64:79], s[0:1], 0", "s_load_dwordx4 s[80:83], s[0:1], 64", "s_memrealtime s[96:97]")
    k.e("s_getpc_b64 s[100:101]")
    k.e("L_pc: ;np")
    k.e("s_mov_b32 s24, s100", "s_mov_b32 s25, s101", "s_mov_b32 s26, L_end-L_pc", "s_mov_b32 s27, 0x20000",
        "v_and_b32 v1, 63, v0", "v_lshrrev_b32 v2, 6, v0", "s_lshr_b32 s33, s2, 3", "s_mul_i32 s32, s33, 43", "s_lshr_b32 s32, s32, 8",
        "s_mul_i32 s32, s32, 6", "s_sub_u32 s32, s33, s32", "s_lshl_b32 s32, s32, 13", "v_lshlrev_b32 v3, 11, v2", "v_lshl_add_u32 v3, v1, 7, v3",
        f"v_mov_b32 v4, {OOB:#x}", "v_cmp_gt_u32 vcc, 16, v1", f"v_readfirstlane_b32 s{sW}, v2", "v_cndmask_b32 v3, v4, v3, vcc")
    if P.code0: k.vm(f"buffer_load_dword v175, v3, {SRD_PK}, s32 offen", "code")
    k.e("s_and_b32 s32, s2, 7", f"s_and_b32 s{sM}, s33, 15", "s_lshr_b32 s33, s33, 4", "s_lshl_b32 s32, s32, 1", f"s_add_u32 s{sC}, s32, s33")
    k.e(f"s_lshr_b32 s33, s{sM}, 3", f"s_lshl_b32 s{sB}, s{sC}, 1", f"s_add_u32 s{sB}, s{sB}, s33", f"s_and_b32 s{sCS}, s{sM}, 7")
    k.e("v_lshlrev_b32 v2, 4, v1")
    a10_lanes(k)
    k.e("s_waitcnt lgkmcnt(0)")
    srd(k, 12, 64, 2048 * 1024); srd(k, 16, 66, 512 * 3072)
    k.e(f"s_or_b32 s{sTAG}, s96, 1")
    if stamps:
        k.stamps += ["rt0", "start"]; k.e("v_writelane_b32 v0, s92, 0", f"v_writelane_b32 v0, s{92 if P.rt else 94}, 1")
    k.stamp("s kernarg")
    pack_issue(k)
    k.stamp("s pkissue")
    run(a10_x(k, 0) + a10_w(k, 0))
    srd(k, 28, 80, 256)
    k.e("v_cmp_eq_u32 vcc, 0, v1", f"v_mov_b32 v{vFA}, {OOB:#x}", f"s_or_b32 s32, s2, s{sW}", f"v_cndmask_b32_e64 v{vFA}, v{vFA}, 0, vcc",
        "s_cmp_eq_u32 s32, 0", f"s_cselect_b32 s32, 0, {OOB>>1:#x}", f"v_mov_b32 v170, s{sTAG}")
    k.vm(f"buffer_store_dword v170, v{vFA}, {SRD_DBG}, s32 offen sc1", "tagst")
    srd(k, 8, 82, WS_SIZE); srd(k, 20, 78, 2048 * 1024)
    for f in a1_setup(k, 0): f()
    o_bases(k, 0)
    a10_lanes2(k)
    k.e(f"v_mov_b32 v60, {OOB:#x}", "v_cmp_gt_u32 vcc, 8, v1", "v_mov_b32 v176, 0", "v_mov_b32 v177, 0", "v_mov_b32 v178, 0", "v_mov_b32 v179, 0",
        f"v_cndmask_b32 v173, v60, v{vL16}, vcc", "v_cmp_gt_u32 vcc, 16, v1", f"s_getreg_b32 s{sXCC}, hwreg(HW_REG_XCC_ID, 0, 4)",
        f"s_lshl_b32 s32, s{sC}, 4", f"v_cndmask_b32 v172, v60, v{vL16}, vcc")
    k.e(f"s_add_u32 s32, s32, s{sM}", "s_lshl_b32 s32, s32, 4",
        f"s_cmp_eq_u32 s{sW}, 0", f"s_cselect_b32 s32, s32, {OOB>>1:#x}", f"v_add_u32 v171, s32, v{vFA}", f"s_mov_b32 s{sBUD}, 100000",
        f"s_mov_b32 s75, {WS_ARR}", f"s_lshl_b32 s77, s{sC}, 8", "s_add_u32 s77, s77, s75")
    red_bases(k)
    k.e(f"s_lshl_b32 s{sGL}, s{sW}, 12", f"s_mul_i32 s{sGS}, s{sM}, {PGU_SLICE}", f"s_add_u32 s{sGS}, s{sGS}, s{sGL}", f"s_add_u32 s{sGS}, s{sGS}, {WS_PGU}")
    k.e(f"s_mul_i32 s32, s{sCS}, {224*KB}", f"s_mul_i32 s33, s{sW}, {56*KB}", "s_add_u32 s32, s32, s33", f"s_add_u32 s{sDS}, s32, {WS_PDN}")
    k.e(f"s_lshl_b32 s32, s{sCS}, 16", f"s_add_u32 s32, s32, s{sGL}", f"s_add_u32 s88, s32, {WS_PWO}")
    wo_bases(k)
    k.stamp("s setup")
    run(a10_w(k, 1))
    k.stamp("s w01")
    def mid2():
        run(a10_w(k, 3))
        k.e("s_lshl_b32 s32, s2, 7")
        k.vm(f"buffer_store_dwordx4 v[176:179], v173, {SRD_WS}, s32 offen sc1", "zero")
        k.e("s_lshl_b32 s32, s2, 8", f"s_add_u32 s32, s32, {WS_HXF}")
        k.vm(f"buffer_store_dwordx4 v[176:179], v172, {SRD_WS}, s32 offen sc1", "zero")
    pack_process(k, lambda: run(a10_x(k, 1) + a10_w(k, 2)), mid2)
    k.vm(f"buffer_load_dword v170, v{vFA}, {SRD_DBG}, 0 offen sc1", "tag")
    k.stamp("s pkdone")
    a10_loop(k, 4)
    a10_tail(k)
    wo(k, 0); gu(k, 0); dn(k, 0)
    if not P.half:
        k.marks = {m: g for m, g in k.marks.items() if False}
        k.seen = {t for t in k.seen if t in k.vmq or t in k.lgq or t in ("dna", "st0", ("x", 2), ("x", 3))}
        a11_main(k)
        wo(k, 1)
        k.marks = {m: g for m, g in k.marks.items() if m == "wobar" or m[0] == "bar"}
        gu(k, 1); dn(k, 1)
    if P.verbose: print([(t, tag, f) for t, tag, f in k.bg_log if f])
    if stamps:
        k.e("s_waitcnt vmcnt(0)"); k.stamp("drained"); k.stamp("rt1", True)
        k.e("s_lshl_b32 s32, s2, 10", "s_lshl_b32 s33, s3, 8", "s_add_u32 s32, s32, s33",
            f"s_add_u32 s32, s32, {WS_STAMP}", "v_lshlrev_b32 v8, 2, v1", f"buffer_store_dword v0, v8, {SRD_WS}, s32 offen")
        if P.dbg:
            n = len(k.stamps)
            k.e("v_readlane_b32 s32, v0, 0", f"v_readlane_b32 s33, v0, {n-1}", "s_not_b32 s34, s32", "v_mov_b32 v4, s33", "v_mov_b32 v5, s34")
            k.e(f"buffer_atomic_umax v4, v{vFA}, {SRD_DBG}, 0 offen offset:4", f"buffer_atomic_umax v5, v{vFA}, {SRD_DBG}, 0 offen offset:8")
            k.e(f"s_cmp_eq_u32 s2, {P.dbg - 1}", f"s_cselect_b32 s35, 0, {OOB>>1:#x}", f"s_cmp_eq_u32 s{sW}, 0", f"s_cselect_b32 s35, s35, {OOB>>1:#x}")
            for i, wd in zip(range(2, n - 1), (3, 5, 6, 7, 9, 10, 11, 13, 14, 15)):
                k.e(f"v_readlane_b32 s33, v0, {i}", "s_sub_u32 s33, s33, s32", "v_mov_b32 v4, s33", f"buffer_store_dword v4, v{vFA}, {SRD_DBG}, s35 offen offset:{4*wd}")
    k.e("s_endpgm")
    k.flush_spins()
    k.label("L_end"); k.e("s_endpgm")
    src = open("cdna_kernels/%s.s.ref" % NAME).read().splitlines()
    out = [l for l in src if l.startswith(";") and "@launch" not in l]
    out.append(f"; @launch grid=(256,1,1) block=(256,1,1) lds={LDS_TOTAL}")
    out += ['.amdgcn_target "amdgcn-amd-amdhsa--gfx950"', ".text"]
    s = "\n".join(out) + "\n" + k.text(verbose=True) + '.section .rodata,"a"\n.p2align 6\n' + kd(name)
    if P.align:
        from align import align
        s = align(s)
    return s, k.stamps
P.x_nobar = 0; P.x_noepi = 0; P.rt = 1; P.dbg = 0; P.h_touch0 = ''; P.outm = ''; P.h1_plain = 1; P.tags = 0; P.half = 0; P.tlb = 1; P.code0 = 1; P.verbose = 0; P.align = 1; P.gu_cap = 6; P.gu_nw = 5; P.k_touch = 12; P.k_gb = 14; P.k_chk = 16

if __name__ == "__main__":
    path = sys.argv[1] if len(sys.argv) > 1 else "cdna_kernels/%s.s" % NAME
    opts = sys.argv[2:]
    only = None
    for o in opts:
        if o.startswith("only="): only = [x for x in o[5:].split(",") if x]
        if o.startswith("P."):
            n, v = o[2:].split("="); setattr(P, n, eval(v))
    s, st = build(stamps="st" in opts, only=only)
    open(path, "w").write(s)
    if "st" in opts: json.dump([st], open(path + ".json", "w"))
```

```python
import re

TRANS = ("v_exp_f32", "v_log_f32", "v_rcp_f32", "v_rsq_f32", "v_sqrt_f32", "v_sin_f32", "v_cos_f32")

def _regs(tok):
    tok = tok.strip()
    neg = tok.lstrip("-")
    if neg.startswith("abs(") or neg.startswith("|"):
        neg = neg.replace("abs(", "").replace(")", "").replace("|", "")
    m = re.fullmatch(r"([vas])\[(\d+):(\d+)\]", neg)
    if m:
        return [(m.group(1), i) for i in range(int(m.group(2)), int(m.group(3)) + 1)]
    m = re.fullmatch(r"([vas])(\d+)", neg)
    if m:
        return [(m.group(1), int(m.group(2)))]
    if neg == "vcc":
        return [("s", 106), ("s", 107)]
    if neg == "vcc_lo":
        return [("s", 106)]
    if neg == "m0":
        return [("s", 124)]
    if neg == "exec":
        return [("s", 126), ("s", 127)]
    return []

class Ins:
    __slots__ = ("text", "op", "ops", "mods", "defs", "uses", "kind", "passes", "srcC", "srcAB", "states")
    def __init__(self, text):
        self.text = text
        t = text.split(";")[0].strip()
        self.defs = []; self.uses = []; self.kind = "other"; self.passes = 0; self.srcC = []; self.srcAB = []
        self.states = 1
        if ";np" in text:
            self.op = t; self.kind = "other"; self.states = 0 if t.endswith(":") else 1; self.ops = []; self.mods = ""
            return
        if not t or t.endswith(":") or t.startswith("."):
            self.op = t; self.kind = "label" if t.endswith(":") else "dir"; self.states = 0; self.ops = []; self.mods = ""
            return
        sp = t.split(None, 1)
        op = sp[0]; self.op = op
        rest = sp[1] if len(sp) > 1 else ""
        parts = []; cur = ""; d = 0
        for ch in rest:
            if ch in "[(": d += 1
            if ch in "])": d -= 1
            if ch == "," and d == 0:
                parts.append(cur.strip()); cur = ""
            else:
                cur += ch
        if cur.strip(): parts.append(cur.strip())
        mods = ""
        if parts:
            last = parts[-1].split(None, 1)
            parts[-1] = last[0]
            if len(last) > 1: mods = last[1]
        self.ops = parts; self.mods = mods
        R = [_regs(p) for p in parts]
        base = re.sub(r"_(e32|e64|dpp|sdwa)$", "", op)
        if op.startswith("v_mfma"):
            self.kind = "mfma"
            self.passes = 8 if "32x32" in op else 4
            self.defs = R[0]; self.srcAB = R[1] + R[2]; self.srcC = R[3]; self.uses = R[1] + R[2] + R[3]
        elif op.startswith("v_"):
            self.kind = "valu"
            if base in TRANS: self.kind = "trans"
            if op.startswith("v_permlane") and "swap" in op:
                self.defs = R[0] + R[1]; self.uses = R[0] + R[1]; self.kind = "perm"
            elif op.startswith("v_readfirstlane") or op.startswith("v_readlane"):
                self.defs = R[0]; self.uses = sum(R[1:], []); self.kind = "rdlane"
            elif op.startswith("v_cmp"):
                self.defs = R[0]; self.uses = sum(R[1:], [])
            elif re.match(r"v_(add|sub|subrev|addc|subb)_co_", op):
                self.defs = R[0] + R[1]; self.uses = sum(R[2:], [])
            else:
                self.defs = R[0]; self.uses = sum(R[1:], [])
                if base in ("v_fmac_f32", "v_dot2c_f32_bf16", "v_pk_fmac_f16") or op.endswith("_dpp") or "row_" in mods or "quad_perm" in mods:
                    self.uses = self.uses + R[0]
                if base == "v_cndmask_b32" and len(parts) == 3:
                    self.uses = self.uses + _regs("vcc")
            if op.endswith("_dpp") or "row_" in mods or "quad_perm" in mods:
                self.kind = "dpp"
        elif op.startswith("ds_"):
            self.kind = "ds"
            if op.startswith("ds_read"):
                self.defs = R[0]; self.uses = sum(R[1:], [])
            else:
                self.uses = sum(R, [])
        elif op.startswith("buffer_") or op.startswith("global_"):
            self.kind = "vmem"
            if op in ("buffer_wbl2", "buffer_inv"):
                pass
            elif " lds" in " " + mods or op.startswith("global_load_lds"):
                self.uses = sum(R, []) + _regs("m0"); self.kind = "dma"
            elif "_load" in op:
                self.defs = R[0]; self.uses = sum(R[1:], [])
            elif "atomic" in op and "sc0" in mods:
                self.defs = R[0]; self.uses = sum(R, [])
            else:
                self.uses = sum(R, [])
        elif op.startswith("s_"):
            self.kind = "salu"
            if op == "s_nop":
                self.states = int(parts[0], 0) + 1; self.kind = "nop"
            elif op.startswith("s_cbranch") or op in ("s_branch", "s_endpgm", "s_setpc_b64"):
                self.kind = "branch"
            elif op.startswith("s_cmp") or op in ("s_waitcnt", "s_barrier", "s_sleep", "s_setprio"):
                self.uses = sum(R, [])
            else:
                self.defs = R[0] if R else []; self.uses = sum(R[1:], [])
                if "saveexec" in op: self.defs = self.defs + _regs("exec")

VALU_KINDS = ("valu", "trans", "perm", "rdlane", "dpp")

def need_states(p, c):
    n = 0
    pd = set(p.defs)
    if p.kind in VALU_KINDS:
        vd = {r for r in pd if r[0] in "va"}
        sd = {r for r in pd if r[0] == "s"}
        cu = set(c.uses)
        if vd & cu:
            if c.kind == "mfma": n = max(n, 2)
            if c.kind in ("perm", "dpp"): n = max(n, 2)
            if c.kind == "rdlane": n = max(n, 1)
            if p.kind == "trans" and c.kind in VALU_KINDS and c.kind != "trans": n = max(n, 1)
            if p.kind == "trans" and c.kind in ("vmem", "ds", "dma"): n = max(n, 1)
        if sd & cu:
            if c.kind in VALU_KINDS: n = max(n, 4 if c.kind == "rdlane" else 2)
            if c.kind in ("vmem", "dma"): n = max(n, 5)
            if c.kind in ("salu",): n = max(n, 1)
    if p.op.startswith("v_dot") and pd & (set(c.uses) | set(c.defs)):
        if c.op != p.op or pd & set(c.uses[:-len(c.defs)] if c.op.startswith("v_dot2c") else c.uses): n = max(n, 3)
    if p.kind == "mfma":
        big = p.passes == 8
        if c.kind == "mfma":
            if pd & set(c.srcAB): n = max(n, 12 if big else 8)
            if pd & set(c.srcC):
                if not (p.defs == c.srcC and p.passes == c.passes): n = max(n, 10 if big else 6)
            elif pd & set(c.defs):
                n = max(n, 10 if big else 6)
        else:
            if pd & (set(c.uses) | set(c.defs)): n = max(n, 12 if big else 8)
            if c.kind in VALU_KINDS and set(p.srcC) & set(c.defs): n = max(n, 7 if big else 3)
    if p.kind == "salu" and ("s", 124) in pd and c.kind == "dma": n = max(n, 1)
    if p.kind == "vmem" and re.search(r"store_dwordx[34]", p.op):
        data = set(_regs(p.ops[0] if p.op.startswith("buffer") else p.ops[1]))
        if data & set(c.defs): n = max(n, 2 if c.kind in VALU_KINDS or c.kind == "mfma" else 1)
    return n

ELAPSED = False
def pad_hazards(lines, verbose=False):
    ins = [Ins(l) for l in lines]
    out = []; win = []
    added = 0
    for c in ins:
        if c.kind in ("dir",):
            out.append(c.text); continue
        need = 0
        if c.kind in ("label", "branch"):
            for p, d in win:
                if p.kind == "mfma": need = max(need, (12 if p.passes == 8 else 8) - d)
                elif p.kind in VALU_KINDS:
                    w = 5 if any(r[0] == "s" for r in p.defs) else 2
                    need = max(need, w - d)
                elif p.kind == "vmem" and re.search(r"store_dwordx[34]", p.op): need = max(need, 2 - d)
                elif p.kind == "salu" and ("s", 124) in p.defs: need = max(need, 1 - d)
            if c.kind == "branch": need -= 1
            if c.op == "s_endpgm": need = 0
        else:
            for p, d in win:
                need = max(need, need_states(p, c) - d)
        while need > 0:
            k = min(need, 16)
            out.append(f"s_nop {k-1}")
            added += k
            for w in win: w[1] += k
            need -= k
        out.append(c.text)
        extra = 0
        if c.kind == "mfma":
            prev = [w for w in win if w[0].kind == "mfma"]
            if prev and ELAPSED: extra = max(0, prev[-1][0].passes - 1 - prev[-1][1])
        for w in win: w[1] += c.states + (extra if w[0].kind == "mfma" else 0)
        win = [w for w in win if w[1] < 20]
        if c.kind not in ("label", "nop"):
            win.append([c, 0])
    if verbose: print("hazard pad states added:", added)
    return out

class K:
    def __init__(self):
        self.L = []
        self.vmq = []
        self.lgq = []
        self.maxvm = 0
        self.gap = -1
        self.stamping = False
        self.only = None; self.rt = False
        self.t = 0; self.mf_free = 0; self.vec_free = 0; self.last = {}
        self.per = {}; self.bg = []; self.bg_next = 0; self.bg_held = False; self.bg_log = []
        self.stamps = []
        self.seen = set()
        self.marks = {}
    def _tick(self, text):
        i = Ins(text)
        if i.kind in ("label", "dir") or i.states == 0: return
        if i.kind == "mfma":
            self.t = max(self.t, self.mf_free, self.vec_free); self.mf_free = self.t + i.passes * 4; self.vec_free = self.t + 8; self.t += 4
        elif i.kind in VALU_KINDS or i.kind in ("ds", "vmem", "dma"):
            self.t = max(self.t, self.vec_free)
            self.t += 8 if i.kind in ("trans", "perm") else (40 if i.op == "ds_write_b128" else 4)
        elif i.kind == "nop": self.t += 4 * i.states
        else: self.t += 4
        for r in i.defs:
            if r[0] == "s": self.last[r[1]] = text
    def e(self, *texts):
        for t in texts: self.L.append(t); self._tick(t)
    def idle(self, n):
        self.t += n
    def set_s(self, text):
        if self.last.get(Ins(text).defs[0][1]) != text: self.e(text)
    set_m0 = set_s
    def bg_add(self, fn, period, tag=None, dep=None): self.bg.append((fn, period, tag, dep))
    def bg_ready(self):
        return bool(self.bg) and not self.bg_held and self.t >= self.bg_next and (self.bg[0][3] is None or self.bg[0][3] in self.marks)
    def bg_step(self, force=False):
        if not force and not self.bg_ready(): return False
        fn, period, tag, dep = self.bg.pop(0)
        assert dep is None or dep in self.marks, f"background op forced before {dep}"
        self.bg_log.append((self.t, tag, force))
        fn(); self.bg_next = self.t + self.per[period]
        return True
    def bg_need(self, tags):
        while any(it[2] in tags for it in self.bg): self.bg_step(force=True)
    def bg_burst(self, n):
        for _ in range(n):
            if self.bg and (self.bg[0][3] is None or self.bg[0][3] in self.marks): self.bg_step(force=True)
    def c(self, text): self.L.append("; " + text)
    def label(self, n): self.L.append(n + ":"); self.last = {}
    def vm(self, text, tag=None):
        if len(self.vmq) >= 60:
            self.L.append("s_waitcnt vmcnt(40)"); self.vmq = self.vmq[-40:]
        self.L.append(text); self._tick(text); self.vmq.append(tag); self.seen.add(tag)
        self.maxvm = max(self.maxvm, len(self.vmq))
        assert len(self.vmq) <= 63, "too many vmem ops in flight"
    def ds(self, text, tag=None):
        self.L.append(text); self._tick(text); self.lgq.append(tag); self.seen.add(tag)
        if len(self.lgq) > 15:
            raise AssertionError("too many ds ops in flight")
    def _cnt(self, q, tags):
        idx = -1
        for i, t in enumerate(q):
            if t in tags: idx = i
        return idx
    def wait(self, vm=None, lg=None):
        parts = []
        if vm is not None and vm != "all": self.bg_need(vm if isinstance(vm, (list, set)) else [vm])
        for grp in (vm, lg):
            if grp is None or grp == "all": continue
            for t in (grp if isinstance(grp, (list, set)) else [grp]):
                assert t in self.seen, f"wait for an op that was never issued: {t}"
        if vm is not None and self.vmq:
            if vm == "all": idx = len(self.vmq) - 1
            else: idx = self._cnt(self.vmq, vm if isinstance(vm, (list, set)) else [vm])
            if idx >= 0:
                parts.append(f"vmcnt({len(self.vmq)-1-idx})"); self.vmq = self.vmq[idx+1:]
        if lg is not None and self.lgq:
            if lg == "all": idx = len(self.lgq) - 1
            else: idx = self._cnt(self.lgq, lg if isinstance(lg, (list, set)) else [lg])
            if idx >= 0:
                parts.append(f"lgkmcnt({len(self.lgq)-1-idx})"); self.lgq = self.lgq[idx+1:]
        if parts: self.e("s_waitcnt " + " ".join(parts))
    def mark(self, name): self.marks[name] = self.gap
    def stamp(self, name, real=False):
        if not self.stamping: return
        if self.only is not None and name not in ("drained", "rt1") and not any(name.startswith(p) for p in self.only): return
        n = len(self.stamps); self.stamps.append(name)
        self.e("s_memrealtime s[96:97]" if (real or self.rt) else "s_memtime s[96:97]", "s_waitcnt lgkmcnt(0)", f"v_writelane_b32 v0, s96, {n}")
        self.lgq = []
    def forget(self):
        self.seen = set(self.vmq) | set(self.lgq)
    def text(self, verbose=False):
        return "\n".join(pad_hazards(self.L, verbose)) + "\n"

class Flex:
    def __init__(self):
        self.items = []
    def add(self, fn, cost=1, at=0): self.items.append((cost, fn, at))
    def skip(self, n): self.items.append(("skip", n, 0))
    def dep(self, name): self.items.append(("dep", name, 0))
    def __len__(self): return len(self.items)

def run_gaps(k, mains, fixed, flexes, cap, over=lambda i: False):
    hold = [0] * len(flexes)
    for i, m in enumerate(mains):
        m()
        k.gap = i
        room = cap
        for cost, fn in fixed.get(i, []):
            fn(); room -= cost
        if room > 0 and k.bg_step(): room -= 1
        progress = True; fresh = True
        while progress:
            progress = False
            for j, f in enumerate(flexes):
                while f.items and (f.items[0][0] == "skip" or (f.items[0][0] == "dep" and f.items[0][1] in k.marks)):
                    if f.items[0][0] == "skip": hold[j] = i + f.items[0][1]
                    f.items.pop(0)
                if not f.items or hold[j] > i or f.items[0][0] == "dep": continue
                cost, fn, at = f.items[0]
                if room <= 0 and cost > 0: continue
                if at > i: continue
                if cost > room + (1 if (room == cap or over(i)) else 0) and not (cost >= cap - 2 and cost > 2 and fresh): continue
                if cost: fresh = False
                f.items.pop(0); fn(); room -= cost; progress = True
                break

def drain(flexes, k=None):
    if k is not None: k.gap = 10**9
    live = [f for f in flexes if f.items]
    while live:
        for f in list(live):
            while f.items:
                it = f.items[0]
                if it[0] == "dep" and it[1] not in k.marks:
                    assert len(live) > 1, "dead dependency"
                    break
                f.items.pop(0)
                if it[0] == "dep": continue
                if it[0] == "skip":
                    if len(live) > 1: break
                    continue
                it[1]()
                if k is not None: k.bg_step()
            if not f.items: live.remove(f)
```

```python
import sys, json
from common import *

MF16 = "v_mfma_f32_16x16x32_bf16"
MF16S = "v_mfma_f32_16x16x16_bf16"
MF32 = "v_mfma_f32_32x32x16_bf16"
vL16, vFV, vFA, vP = 2, 8, 9, 10
CSV, CSQ, CSK, RES = 11, 12, 16, 20
OOB = 0x80000000
FL_O, FL_X1, FL_H, FL_X2 = 0, 4096, 8192, 12288
FL_HX = 16384 + 12288
def fl(layer, off): return WS_FLAGS + 16384 * layer + off
sROT, sBUD, sGL, sGS, sDS = 84, 98, 60, 61, 85
sT0, sT1, sPO, sFO = 32, 33, 86, 87
sML, sMS = 68, 69
WS_HXF = WS_O0 - 0x10000 if False else WS_END
WS_ARR = WS_HXF + 0x10000
sTAG, sXCC = 91, 76
WS_STAMP = 0x2000000
L_SA0, L_SA1, L_XH0, L_CS = 80896, 97280, 81920, 79872
def e_of(kk):
    p, tl = divmod(kk, 7)
    return 4 * p + tl if tl < 4 else 16 + 3 * p + (tl - 4)
KK_OF = {e_of(kk): kk for kk in range(28)}

class P:
    a1_bg_start, a1_bg_step = 30, 6
    gu_lead = 7
    gu_bg_start, gu_bg_step = 50, 2.6
    dn_lead = 12
    bgm = ""
    sleep = 0
    drop = ()
    codepf = 0
    ld = "sc1"
    dst = "sc1"
    safe = False
    plain = True
    notouch = ()

BO, BX1, BS1, BH = [WS_O[0]] * 2, [WS_X[0]] * 2, [WS_ST[0]] * 2, [WS_H[0]] * 2
def o_line(layer):
    return [f"s_lshl_b32 s32, s{sB}, 16", f"s_lshl_b32 s33, s{sCS}, 2", f"s_add_u32 s33, s33, s{sW}", "s_lshl_b32 s33, s33, 10",
            "s_add_u32 s32, s32, s33", f"s_add_u32 s32, s32, {BO[layer]}"]
def touch_next(k, t):
    return [lambda: k.touch(t, "p", o_line(1)), lambda: k.touch(t + 1, "q", [f"s_add_u32 s32, s64, {BX1[1]}"]),
            lambda: k.touch(t + 2, "t", [f"s_add_u32 s32, s65, {BS1[1]}"])]
def gu_tile(d):
    return [f"s_lshl_b32 {d}, s{sC}, 1", f"s_and_b32 s33, s{sW}, 1", f"s_add_u32 {d}, {d}, s33", f"s_lshl_b32 {d}, {d}, 1", f"s_lshr_b32 s33, s{sW}, 1", f"s_add_u32 {d}, {d}, s33"]
def h_base(d, layer):
    return gu_tile(d) + [f"s_mul_i32 {d}, {d}, 112", f"s_mul_i32 s33, s{sM}, 7",
            f"s_add_u32 {d}, {d}, s33", f"s_lshl_b32 {d}, {d}, 10", f"s_add_u32 {d}, {d}, {BH[layer]}"]

class F(K):
    def __init__(self):
        super().__init__(); self.spins = []; self.nspin = 0; self.st = ""; self.npf = 0
    def poll_issue(self, va, tag): self.vm(f"buffer_load_dword v{vP}, v{va}, {SRD_WS}, s{sPO} offen sc1", tag)
    def poll_addr(self, va, nl, sh=2):
        self.e(f"v_cmp_gt_u32 vcc, {nl}, v1", f"v_lshlrev_b32 v{va}, {sh}, v1", f"v_mov_b32 v{vP}, {OOB:#x}", f"v_cndmask_b32 v{va}, v{vP}, v{va}, vcc")
        self.nl = nl
    def poll_check(self, va, tag, thr):
        n = self.nspin; self.nspin += 1
        self.stamp(f"poll<{tag}")
        self.wait(vm=[tag])
        self.stamp(f"poll={tag}")
        msk = f"s_and_b32 s99, vcc_lo, {(1 << self.nl) - 1:#x}"
        self.e(f"v_cmp_gt_u32 vcc, {thr}, v{vP}", msk, f"s_cbranch_scc1 L_spin{n} ;np", f"L_back{n}: ;np")
        self.stamp(f"poll>{tag}")
        self.spins += [f"L_spin{n}:", f"s_sub_u32 s{sBUD}, s{sBUD}, 1", f"s_cbranch_scc1 L_give{n}"] + ([f"s_sleep {P.sleep}"] if P.sleep else []) + [
                       f"buffer_load_dword v{vP}, v{va}, {SRD_WS}, s{sPO} offen sc1", "s_waitcnt vmcnt(0)",
                       f"v_cmp_gt_u32 vcc, {thr}, v{vP}", msk, f"s_cbranch_scc1 L_spin{n}", f"s_branch L_back{n}",
                       f"L_give{n}:", f"s_mov_b32 s{sBUD}, 0", f"s_branch L_back{n}"]
    def flag(self, val, soff=sFO, st=None):
        self.e(f"v_mov_b32 v{vFV}, {val}")
        if st is not None:
            self.vm(f"buffer_store_dword v{vFV}, v{vFA}, {SRD_WS}, s{soff} offen {st}", "flag"); return
        self.e(f"s_or_b32 s99, s{soff}, s{sML}")
        self.vm(f"buffer_store_dword v{vFV}, v{vFA}, {SRD_WS}, s99 offen", "flag")
        self.e(f"s_or_b32 s99, s{soff}, s{sMS}")
        self.vm(f"buffer_store_dword v{vFV}, v{vFA}, {SRD_WS}, s99 offen sc1", "flag")
    def dstore(self, text, tag):
        if not P.plain:
            self.vm(text + " sc1", tag); return
        n = self.nspin; self.nspin += 1
        self.e(f"s_cmp_lg_u32 s{sML}, 0", f"s_cbranch_scc1 L_alt{n} ;np")
        self.vm(text, tag)
        self.e(f"L_back{n}: ;np")
        self.spins += [f"L_alt{n}:", "s_nop 4", text + " sc1", f"s_branch L_back{n}"]
    def valid(self, test, reload):
        n = self.nspin; self.nspin += 1
        self.e(*test); self.e(f"s_cbranch_vccnz L_rl{n} ;np", f"L_back{n}: ;np")
        self.spins += [f"L_rl{n}:", f"s_sub_u32 s{sBUD}, s{sBUD}, 1", f"s_cbranch_scc1 L_give{n}"] + reload + ["s_waitcnt vmcnt(0)"] + test + \
                      [f"s_cbranch_vccnz L_rl{n}", f"s_branch L_back{n}", f"L_give{n}:", f"s_mov_b32 s{sBUD}, 0", f"s_branch L_back{n}"]
    def touch(self, tmp, kind, base_expr, masked=True):
        if not P.plain or kind in P.notouch: return
        nl = {"p": 16, "q": 16, "s": 2, "t": 2, "h": 56}[kind]
        self.e(f"v_cmp_gt_u32 vcc, {nl}, v1")
        if kind in "pq": self.e(f"v_lshrrev_b32 v{tmp}, 3, v1", f"v_lshlrev_b32 v{tmp}, {15 if kind == 'p' else 13}, v{tmp}", f"v_and_b32 v{vFV}, 7, v1", f"v_lshl_add_u32 v{tmp}, v{vFV}, 7, v{tmp}")
        else: self.e(f"v_lshlrev_b32 v{tmp}, {11 if kind == 's' else 7}, v1")
        self.e(f"v_mov_b32 v{vFV}, {OOB:#x}", *base_expr)
        self.e(f"v_cndmask_b32 v{tmp}, v{vFV}, v{tmp}, vcc")
        if masked: self.e(f"s_or_b32 s32, s32, s{sML}")
        self.vm(f"buffer_load_dword v{tmp}, v{tmp}, {SRD_WS}, s32 offen", "touch")
    def vm(self, text, tag=None):
        kind = tag[0] if isinstance(tag, tuple) else tag
        if kind in P.drop:
            self.seen.add(tag); return
        super().vm(text, tag)
    def codepf(self, tmpv, per=2048):
        if not P.codepf: return
        n = self.npf; self.npf += 1
        sh = (per // 64).bit_length() - 1
        self.e(f"L_pf{n}: ;np", f"s_mul_i32 s32, s{sW}, {per}", f"s_add_u32 s32, s32, L_pf{n}-L_pc", f"v_lshlrev_b32 v{tmpv}, {sh}, v1")
        raise NotImplementedError
    def flush_spins(self):
        for l in self.spins: self.e(l)
        self.spins = []

def batch(k, i):
    src = f"s_add_u32 s62, s{sGS}, {i*16384}" if i < 15 else f"s_add_u32 s62, s{sDS}, {(16 + 4*(i-15))*1024}"
    def f(q):
        k.set_m0(f"s_add_u32 m0, s{sGL}, {(i % 10)*16384}")
        if i != 14: k.set_s(src)
        elif k.last.get(62) != f"s_cselect_b32 s62, {OOB>>1:#x}, s62":
            k.e(src, f"s_cmp_ge_u32 s{sW}, 2", f"s_cselect_b32 s62, {OOB>>1:#x}, s62")
        k.vm(f"buffer_load_dwordx4 v{vL16}, {SRD_WS}, s62 offen offset:{q*1024} {P.bgm} lds", ("gw", i))
    return [lambda q=q: f(q) for q in range(4)]

def bg_batches(k, bs, period, dep=lambda b: None):
    for b in bs:
        for f in batch(k, b): k.bg_add(f, period, ("gw", b), dep(b))
def bg_list(k, fns, period, tag, dep=None):
    for f in fns: k.bg_add(f, period, tag, dep)

def regloads(k, base_sgpr, off, dst, n, tag, tmp=63):
    fns = []
    for j in range(n):
        def f(j=j):
            k.set_s(f"s_add_u32 s{tmp}, s{base_sgpr}, {off + (j & ~3)*1024}")
            k.vm(f"buffer_load_dwordx4 {dst(j)}, v{vL16}, {SRD_WS}, s{tmp} offen offset:{(j%4)*1024} {P.bgm}", tag)
        fns.append(f)
    return fns
def wow(k):
    def f(i, q):
        k.set_m0(f"s_add_u32 m0, s{sGL}, {(6 + i)*16384}"); k.set_s(f"s_add_u32 s63, s88, {i*16384}")
        k.vm(f"buffer_load_dwordx4 v{vL16}, {SRD_WS}, s63 offen offset:{q*1024} lds", "wow")
    return [lambda i=i, q=q: f(i, q) for i in range(4) for q in range(4)]

def pack_issue(k):
    k.e("v_lshrrev_b32 v44, 3, v1", "v_and_b32 v43, 7, v1", "v_and_b32 v45, 2, v44", "v_lshlrev_b32 v45, 1, v45",
        "v_xor_b32 v43, v43, v45", "v_lshlrev_b32 v43, 4, v43", f"s_add_u32 s34, s49, {L_X + 4096}")
    k.e("s_cmp_ge_u32 s2, 112", "s_cbranch_scc1 L_pki_small")
    k.e("s_and_b32 s35, s2, 1", "s_bfe_u32 s36, s2, 0x10001", "s_lshr_b32 s37, s2, 2")
    k.e("s_cmp_eq_u32 s35, 0", "s_cselect_b32 s24, s72, s74", "s_cselect_b32 s25, s73, s75",
        f"s_mov_b32 s26, {512*3584:#x}", "s_mov_b32 s27, 0x20000")
    k.e("v_mul_u32_u24 v46, 3584, v44", "v_add_u32 v46, v46, v43")
    k.e("s_lshl_b32 s38, s36, 2", f"s_add_u32 s38, s38, s{sW}", f"s_mul_i32 s38, s38, {64*3584}",
        "s_lshl_b32 s39, s37, 7", "s_add_u32 s38, s38, s39")
    for i in range(8):
        k.e(f"s_add_u32 m0, s34, {(i>>2)*8192 + (i&3)*1024}", f"s_add_u32 s39, s38, {i*8*3584}", f"buffer_load_dwordx4 v46, {SRD_PK}, s39 offen lds")
    k.e("s_branch L_pki_done")
    k.label("L_pki_small")
    k.e("s_sub_u32 s35, s2, 112", "s_lshl_b32 s35, s35, 3", f"s_lshl_b32 s36, s{sW}, 1", "s_add_u32 s35, s35, s36")
    k.e("s_cmp_lt_u32 s35, 896", "s_cselect_b32 s24, s76, s68", "s_cselect_b32 s25, s77, s69", f"s_mov_b32 s26, {512*1024:#x}",
        f"s_cselect_b32 s26, {1792*1024:#x}, s26", "s_mov_b32 s27, 0x20000", "s_cselect_b32 s37, 1, 0",
        "s_movk_i32 s38, 896", "s_cselect_b32 s38, 0, s38")
    k.e("s_cselect_b32 s39, 0, 1", "s_cselect_b32 s70, 14, 15", "s_movk_i32 s71, 0x4000", "s_cselect_b32 s71, 0x80, s71")
    k.e("s_sub_u32 s35, s35, s38", "s_lshr_b32 s35, s35, s39", "s_and_b32 s36, s35, 7", "s_lshr_b32 s35, s35, 3")
    k.e("v_lshl_add_u32 v46, v44, 10, v43", "s_lshl_b32 s38, s35, s70", "s_lshl_b32 s39, s36, 7", "s_add_u32 s38, s38, s39")
    for i in range(2):
        for h in range(2):
            k.e(f"s_add_u32 m0, s34, {(2*i+h)*1024}", f"s_add_u32 s39, s38, {h*8192}", f"buffer_load_dwordx4 v46, {SRD_PK}, s39 offen lds")
        if i == 0: k.e("s_add_u32 s38, s38, s71")
    k.label("L_pki_done")
    k.vmq.append("pk"); k.seen.add("pk")

PQ = [76, 80, 84, 88, 92, 96, 36, 40]
def pack_process(k, mid1, mid2):
    k.e("v_bfe_u32 v46, v1, 2, 2", "v_and_b32 v47, 3, v1", "v_bfe_u32 v48, v1, 4, 1", "v_lshrrev_b32 v49, 5, v1")
    k.e("v_and_b32 v50, 2, v46", "v_add_u32 v50, v50, v48", "v_lshlrev_b32 v50, 5, v50",
        "v_lshl_add_u32 v50, v46, 7, v50", "v_lshl_add_u32 v50, v47, 3, v50", "v_add_u32 v50, s34, v50")
    k.e("s_cmp_ge_u32 s2, 112", "s_cbranch_scc1 L_pk_small")
    q0 = list(k.vmq)
    k.e("v_lshl_add_u32 v56, v49, 10, v50", "v_xor_b32 v57, 64, v56")
    k.e("s_lshl_b32 s39, s37, 2", "v_add_u32 v58, s39, v48")
    k.e("s_lshl_b32 s70, s36, 2", f"s_add_u32 s70, s70, s{sW}", "s_lshl_b32 s70, s70, 2")
    k.e("v_and_b32 v66, 15, v1", "s_lshl_b32 s71, s35, 8", "v_lshl_add_u32 v66, v66, 4, s71")
    for p in range(2):
        T, fs, tl, st_, b, aug = 59, 60, 61, 62 + p, 64 + p, 68 + p
        k.e(f"v_add_u32 v{T}, {2*p}, v58", f"v_mul_u32_u24 v{fs}, 9363, v{T}", f"v_lshrrev_b32 v{fs}, 16, v{fs}",
            f"v_mul_u32_u24 v{tl}, 7, v{fs}", f"v_sub_u32 v{tl}, v{T}, v{tl}")
        k.e(f"v_cmp_gt_u32 vcc, 3, v{tl}", f"v_mul_u32_u24 v67, 33, v{tl}", f"v_mov_b32 v{st_}, 1", "v_mov_b32 v70, 3",
            f"v_cndmask_b32 v67, v67, v{tl}, vcc", f"v_cndmask_b32 v{st_}, v{st_}, v70, vcc")
        k.e(f"v_mul_u32_u24 v{fs}, 231, v{fs}", f"v_add_u32 v67, v67, v{fs}")
        k.e(f"v_lshl_add_u32 v70, v{st_}, 5, v67", "v_lshlrev_b32 v70, 10, v70", "v_add_u32 v70, v70, v66",
            "s_lshl_b32 s71, s36, 9", f"v_add_u32 v{aug}, s71, v70")
        k.e(f"v_mul_lo_u32 v70, v{st_}, s70", "v_add_u32 v67, v67, v70", "v_lshlrev_b32 v67, 10, v67",
            "v_add_u32 v67, v67, v66", f"v_lshl_add_u32 v{b}, v49, 9, v67", f"v_lshlrev_b32 v{st_}, 10, v{st_}")
    k.e("v_mov_b32 v71, 0x3f803f80", "v_mov_b32 v72, 0", "v_mov_b32 v73, 0", "v_cmp_gt_u32 vcc, 32, v1", "v_mov_b32 v46, 0", "v_mov_b32 v47, 0",
        "v_cndmask_b32 v68, v69, v68, vcc", f"s_lshl_b32 s72, s{sW}, 8", "s_add_u32 s72, s72, 0x10000", "v_lshl_add_u32 v74, v1, 2, s72",
        "v_lshlrev_b32 v75, 2, v1", "v_add_u32 v75, 0x10000, v75")
    k.e(f"s_mov_b32 s70, {WS_PGU}", "s_mov_b32 s71, s70", "s_mov_b32 s72, s70", "s_mov_b32 s73, s70", f"s_cmp_eq_u32 s{sW}, 0", f"s_cselect_b32 s74, s70, {OOB>>1:#x}")
    k.wait(vm="pk")
    for ks in range(4):
        for p in range(2):
            for j in range(2): k.ds(f"ds_read_b64_tr_b16 {vr(PQ[2*ks+p]+2*j,2)}, v{56+p} offset:{(ks>>1)*8192 + (ks&1)*2048 + j*512}", ("t", ks, p))
        if ks == 2: k.wait(lg=[("t", 0, 1)])
    mid1()
    for ks in range(4):
        for p in range(2):
            k.wait(lg=[("t", ks, p)])
            for d in range(4): k.e(f"v_dot2c_f32_bf16 v{72+p}, v{PQ[2*ks+p]+d}, v71")
    k.e("v_permlane32_swap_b32 v72, v73", "v_add_f32 v72, v72, v73")
    k.ds(f"ds_write_b32 v74, v72 offset:{L_CS - 65536}")
    k.wait(lg="all"); k.e("s_barrier")
    for w in range(4): k.ds(f"ds_read_b32 v{56+w}, v75 offset:{L_CS - 65536 + 256*w}")
    mid2()
    k.wait(lg="all")
    k.e("v_add_f32 v56, v56, v57", "v_add_f32 v58, v58, v59", "v_add_f32 v56, v56, v58")
    k.e("v_cvt_pk_bf16_f32 v45, v56, v46", "v_lshlrev_b32 v57, 16, v45", "v_sub_f32 v57, v56, v57", "v_cvt_pk_bf16_f32 v44, v56, v57")
    k.e("s_branch L_pk_done")
    k.label("L_pk_small")
    k.vmq = list(q0)
    k.e(f"v_mov_b32 v64, v{vL16}", f"v_add_u32 v65, 1024, v{vL16}", f"v_mov_b32 v68, v{vL16}", f"s_mov_b32 s72, {OOB>>1:#x}", "s_mov_b32 s73, s72", "s_mov_b32 s74, s72")
    k.e("s_cmp_eq_u32 s37, 0", "s_cbranch_scc1 L_pk_wo")
    k.e("s_mul_i32 s38, s35, 2341", "s_lshr_b32 s38, s38, 16", "s_mul_i32 s39, s38, 28", "s_sub_u32 s39, s35, s39",
        "s_mul_i32 s70, s39, 9363", "s_lshr_b32 s70, s70, 16", "s_mul_i32 s71, s70, 7", "s_sub_u32 s71, s39, s71",
        "s_lshl_b32 s32, s70, 2", "s_add_u32 s32, s32, s71", "s_mul_i32 s33, s70, 3", "s_add_u32 s33, s33, s71", "s_add_u32 s33, s33, 12",
        "s_cmp_lt_u32 s71, 4", "s_cselect_b32 s32, s32, s33", "s_mul_i32 s38, s38, 28", "s_add_u32 s35, s32, s38")
    k.e("v_lshl_add_u32 v56, v49, 9, v50", "v_xor_b32 v57, 64, v56", f"v_mov_b32 v62, {224*KB}", f"v_mov_b32 v63, {224*KB}")
    k.e(f"s_mul_i32 s36, s36, {224*KB}", "s_lshl_b32 s35, s35, 11", "s_add_u32 s70, s36, s35", f"s_add_u32 s70, s70, {WS_PDN}", "s_mov_b32 s71, s70")
    k.wait(vm="pk")
    for i in range(2):
        for nn in range(2):
            for j in range(2): k.ds(f"ds_read_b64_tr_b16 {vr(PQ[2*i+nn]+2*j,2)}, v{56+nn} offset:{i*2048 + j*1024}", "t")
    mid1(); mid2()
    k.wait(lg="all")
    k.e("s_branch L_pk_done")
    k.label("L_pk_wo")
    k.vmq = list(q0)
    k.e("v_and_b32 v56, 2, v46", "v_lshlrev_b32 v56, 1, v56", "v_xor_b32 v56, v56, v47", "v_lshlrev_b32 v56, 4, v56", "v_lshl_add_u32 v56, v46, 7, v56",
        "v_lshrrev_b32 v57, 4, v1", "v_lshl_add_u32 v56, v57, 10, v56", "v_add_u32 v56, s34, v56", "v_xor_b32 v57, 64, v56",
        "v_mov_b32 v62, 0x800", "v_mov_b32 v63, 0x800")
    k.e("s_lshl_b32 s36, s36, 16", "s_lshl_b32 s35, s35, 12", "s_add_u32 s70, s36, s35", f"s_add_u32 s70, s70, {WS_PWO}", "s_mov_b32 s71, s70")
    k.wait(vm="pk")
    for j in range(4):
        for jj in range(2): k.ds(f"ds_read_b64_tr_b16 {vr(PQ[j]+2*jj,2)}, v{56+(j>>1)} offset:{jj*512 + 8*(j&1)}", "t")
    mid1(); mid2()
    k.wait(lg="all")
    k.label("L_pk_done")

def pack_stores(k):
    ops = []
    for r in range(4):
        for p in range(2):
            ops.append(("v", lambda r=r, p=p: k.vm(f"buffer_store_dwordx4 {vr(PQ[2*r+p],4)}, v{64+p}, {SRD_WS}, s{70+r} offen sc1", "pks")))
            if r < 3: ops.append(("a", lambda p=p: k.e(f"v_add_u32 v{64+p}, v{64+p}, v{62+p}")))
    ops.append(("v", lambda: k.vm(f"buffer_store_dwordx4 v[44:47], v68, {SRD_WS}, s74 offen sc1", "pks")))
    return ops

A_XF, A_K, A_V, A_Q = 36, 76, 86, 96
A_STA, A_STB, A_OP, A_DX, A_PA, A_ST, A_ACC = 104, 106, 144, 152, 153, 140, 184
class R0: XE, XO, SA, SB, CI, ONE, M, ATT, TMP = 3, 4, 5, 6, 28, 32, 52, (116, 160), 60
class R1: XE, XO, SA, SB, CI, ONE, M, ATT, TMP = 116, 117, 118, 119, 252, 124, 120, (228, 160), 28
A_U, A_PX = 226, 115
A11_ORDER = [2, 3, 1, 0, "h"]
A11_POS = {2: 3, 3: 0, 1: 1, 0: 2, "h": 3}
sODD, sCUR0, sCUR1, sCEXP = 40, 42, 44, 46

def a1_setup(k, layer):
    R = (R0, R1)[layer]
    real = k; out = []
    class Rec:
        def e(self, *t):
            if any(x.startswith("s_cmp") for x in t): out.append(lambda t=t: real.e(*t))
            else: out.extend(lambda x=x: real.e(x) for x in t)
    k = Rec()
    t16, g, tt, tb = R.TMP, R.TMP + 1, R.TMP + 2, R.TMP + 3
    x, y, z = R.ONE, R.ONE + 1, R.ONE + 2
    sa = L_SA0 if layer == 0 else L_SA1
    k.e(f"v_and_b32 v{t16}, 15, v1", f"v_lshrrev_b32 v{g}, 4, v1", f"v_and_b32 v{tt}, 7, v1", f"v_bfe_u32 v{tb}, v1, 3, 1")
    k.e(f"v_lshlrev_b32 v{tb}, 13, v{tb}")
    if layer == 0: k.e(f"v_add_u32 v{tb}, {L_X}, v{tb}")
    if layer == 0:
        k.e(f"v_and_b32 v{x}, 6, v{tt}", f"v_xor_b32 v{x}, v{x}, v{g}", f"v_lshlrev_b32 v{x}, 4, v{x}",
            f"v_lshl_add_u32 v{x}, v{tt}, 7, v{x}", f"v_add_u32 v{R.XE}, v{x}, v{tb}", f"v_xor_b32 v{R.XO}, 64, v{R.XE}")
    else:
        k.e(f"v_lshl_add_u32 v{x}, v{g}, 7, v{tb}", f"v_lshl_add_u32 v{R.XE}, v{tt}, 4, v{x}", f"v_add_u32 v{R.XO}, 512, v{R.XE}")
    k.e(f"v_lshlrev_b32 v{R.SA}, 3, v{t16}", f"v_add_u32 v{R.SA}, {sa}, v{R.SA}",
        f"v_lshlrev_b32 v{R.SB}, 5, v{g}", f"v_add_u32 v{R.SB}, {sa}, v{R.SB}")
    k.e(f"v_and_b32 v{x}, 1, v1", f"v_cmp_eq_u32 s[{sODD}:{sODD+1}], 1, v{x}",
        f"v_lshl_add_u32 v{y}, v{g}, 2, v{x}", f"v_cmp_le_u32 s[{sCUR0}:{sCUR0+1}], v{y}, v{t16}",
        f"v_add_u32 v{y}, 2, v{y}", f"v_cmp_le_u32 s[{sCUR1}:{sCUR1+1}], v{y}, v{t16}")
    k.e(f"v_mov_b32 v{y}, 0xffff", f"v_mov_b32 v{z}, 0xffff0000", f"v_cndmask_b32 v{y}, v{y}, v{z}, s[{sODD}:{sODD+1}]", f"v_mov_b32 v{z}, 0")
    k.e(f"v_cndmask_b32 v{R.M+2}, v{z}, v{y}, s[{sCUR0}:{sCUR0+1}]", f"v_cndmask_b32 v{R.M}, v{y}, v{z}, s[{sCUR0}:{sCUR0+1}]",
        f"v_cndmask_b32 v{R.M+3}, v{z}, v{y}, s[{sCUR1}:{sCUR1+1}]", f"v_cndmask_b32 v{R.M+1}, v{y}, v{z}, s[{sCUR1}:{sCUR1+1}]")
    k.e(f"s_cmp_eq_u32 s{sB}, 0", f"s_cselect_b32 s70, {f2u(-1e38):#x}, 0", f"s_mov_b32 s{sCEXP}, {f2u(0.25*LOG2E):#x}")
    for i in range(4): k.e(f"v_mov_b32 v{R.CI+i}, s70", f"v_mov_b32 v{R.ONE+i}, 0x3f803f80")
    return out

def o_bases(k, layer):
    k.e(f"s_lshl_b32 s32, s{sB}, 16", f"s_lshl_b32 s33, s{sCS}, 2", f"s_add_u32 s33, s33, s{sW}", "s_lshl_b32 s53, s33, 10",
        "s_add_u32 s32, s32, s53", f"s_add_u32 s53, s32, {BO[layer]}", "s_add_u32 s54, s53, 32768",
        f"s_lshl_b32 s32, s{sB}, 5", "s_add_u32 s32, s32, s33", "s_lshl_b32 s32, s32, 2", f"s_add_u32 s89, s32, {fl(layer, FL_O)}")

def ln_finish(a, s, q):
    a(f"v_mul_f32 v{s}, {f2u(-1/512):#x}, v{s}"); a(f"v_mul_f32 v{q}, {f2u(1/512):#x}, v{q}")
    a(f"v_fma_f32 v{q}, -v{s}, v{s}, v{q}"); a(f"v_max_f32 v{q}, 0, v{q}"); a(f"v_add_f32 v{q}, {f2u(1e-5):#x}, v{q}")

A_QS = 68
def fix_reads(k, R, t, S):
    i = 0 if t == "h" else t + 1
    return [lambda: k.ds(f"ds_read_b64 {vr(S,2)}, v{R.SA} offset:{i*128}", ("sa", t)),
            lambda: k.ds(f"ds_read_b128 {vr(S+2,4)}, v{R.SB} offset:{i*128}", ("sa", t)),
            lambda: k.ds(f"ds_read_b128 {vr(S+6,4)}, v{R.SB} offset:{i*128+16}", ("sa", t))]
def fix(k, R, fx, t, acc, at, pk, S=A_STA, pre=False, nxt=()):
    a = lambda txt, c=1, at=0: fx.add(lambda: k.e(txt), c, at)
    i = 0 if t == "h" else t + 1
    if not pre:
        for n, f in enumerate(fix_reads(k, R, t, S)): fx.add(f, 1, at - P.a1_salead if n == 0 else 0)
    fx.add(lambda: k.wait(lg=[("sa", t)]), 1, at)
    for f in nxt: fx.add(f)
    for r0, cs, dst in ((acc[0], CSQ, None if t == "h" else A_Q + 2*t), (acc[1], CSK, A_K + 2*i)):
        if dst is None: continue
        isq = cs == CSQ
        if pk:
            for h in (0, 2): a(f"v_pk_fma_f32 {vr(r0+h,2)}, {vr(S,2)}, {vr(cs+h,2)}, {vr(r0+h,2)} op_sel_hi:[0,1,1]")
            if not isq:
                for h in (0, 2): a(f"v_pk_mul_f32 {vr(r0+h,2)}, {vr(S,2)}, {vr(r0+h,2)} op_sel:[1,0] op_sel_hi:[1,1]")
        else:
            for r in range(4): a(f"v_fmac_f32 v{r0+r}, v{S}, v{cs+r}")
            if not isq:
                for r in range(4): a(f"v_mul_f32 v{r0+r}, v{S+1}, v{r0+r}")
        if isq: a(f"v_mul_f32 v{A_QS+t}, s{sCEXP}, v{S+1}")
        for h in range(2): a(f"v_cvt_pk_bf16_f32 v{dst+h}, v{r0+2*h}, v{r0+2*h+1}")
    r0 = acc[2]
    for r in range(4): a(f"v_fmac_f32 v{r0+r}, v{S+2+2*r}, v{CSV}")
    for r in range(4): a(f"v_mul_f32 v{r0+r}, v{S+3+2*r}, v{r0+r}")
    for h in range(2): a(f"v_cvt_pk_bf16_f32 v{A_V+2*i+h}, v{r0+2*h}, v{r0+2*h+1}")
    fx.add(lambda: (k.mark(("fix", t)), k.stamp(f"t0 fix{t}")), 0)

def attn(k, R, fx, t, B):
    SC, SP, PP, O, SUM, T = B, B + 4, B + 8, B + 12, B + 16, B + 20
    a = lambda txt, c=1: fx.add(lambda: k.e(txt), c)
    q = vr(A_Q + 2*t, 2)
    fx.dep(("fix", t)); fx.dep(("fix", t - 1 if t else "h")); fx.skip(1)
    a(f"{MF16S} {vr(SC,4)}, {vr(A_K+2*(t+1),2)}, {q}, 0", 2)
    a(f"{MF16S} {vr(SP,4)}, {vr(A_K+2*t,2)}, {q}, {vr(R.CI,4) if t == 0 else '0'}", 2)
    fx.skip(3)
    for rr, cur in ((0, sCUR0), (1, sCUR1)):
        a(f"v_cndmask_b32 v{T+2}, v{SC+2*rr}, v{SC+2*rr+1}, s[{sODD}:{sODD+1}]")
        a(f"v_cndmask_b32 v{T+3}, v{SP+2*rr}, v{SP+2*rr+1}, s[{sODD}:{sODD+1}]")
        a(f"v_cndmask_b32 v{T+rr}, v{T+3}, v{T+2}, s[{cur}:{cur+1}]")
    a(f"v_max_f32 v{T+2}, v{T}, v{T+1}"); a(f"v_mov_b32 v{T+3}, v{T+2}"); fx.skip(1)
    a(f"v_permlane16_swap_b32 v{T+2}, v{T+3}", 2); a(f"v_max_f32 v{T+2}, v{T+2}, v{T+3}"); a(f"v_mov_b32 v{T+3}, v{T+2}"); fx.skip(1)
    a(f"v_permlane32_swap_b32 v{T+2}, v{T+3}", 2); a(f"v_max_f32 v{T+2}, v{T+2}, v{T+3}")
    a(f"v_mul_f32 v{T+2}, v{A_QS+t}, v{T+2}")
    for rr in range(2): a(f"v_fma_f32 v{T+rr}, v{T+rr}, v{A_QS+t}, -v{T+2}")
    for rr in range(2): a(f"v_exp_f32 v{T+rr}, v{T+rr}", 2)
    for rr in range(2): a(f"v_cvt_pk_bf16_f32 v{T+rr}, v{T+rr}, v{T+rr}")
    a(f"v_and_b32 v{PP}, v{T}, v{R.M}"); a(f"v_and_b32 v{PP+1}, v{T+1}, v{R.M+1}")
    a(f"v_and_b32 v{PP+2}, v{T}, v{R.M+2}"); a(f"v_and_b32 v{PP+3}, v{T+1}, v{R.M+3}")
    fx.skip(1)
    a(f"{MF16} {vr(SUM,4)}, {vr(R.ONE,4)}, {vr(PP,4)}, 0", 2)
    a(f"{MF16} {vr(O,4)}, {vr(A_V+2*t,4)}, {vr(PP,4)}, 0", 2)
    fx.skip(3)
    a(f"v_rcp_f32 v{T}, v{SUM}", 2); fx.skip(1)
    for r in range(4): a(f"v_mul_f32 v{O+r}, v{T}, v{O+r}")
    for h in range(2): a(f"v_cvt_pk_bf16_f32 v{A_OP+2*t+h}, v{O+2*h}, v{O+2*h+1}")
    fx.add(lambda: (k.mark(("attn", t)), k.stamp(f"t0 attn{t}")), 0)

def ostore(k, fx, pair):
    b = A_OP + 4 * pair
    fx.dep(("attn", 2*pair)); fx.dep(("attn", 2*pair + 1))
    fx.dep("po1" if pair == 0 else "blank")
    fx.skip(1)
    fx.add(lambda: k.e(f"v_permlane16_swap_b32 v{b}, v{b+2}"), 2); fx.add(lambda: k.e(f"v_permlane16_swap_b32 v{b+1}, v{b+3}"), 2)
    fx.add(lambda: (k.dstore(f"buffer_store_dwordx4 {vr(b,4)}, v{vL16}, {SRD_WS}, s{53+pair} offen", ("ost", pair)), k.mark(("ost", pair))))

Z_WD, Z_TR, Z_HE, Z_HO, Z_OE, Z_OO = 164, 165, 166, 167, 168, 169
Z_XF, Z_SUM, Z_GR, Z_SUMH, Z_GRH, Z_CV = 104, 240, 244, 248, 252, 100
P.k_look, P.k_atom, P.k_bar, P.k_vgap, P.k_pst, P.k_pgap = 4, 6, 5, 3, 3, 0
NS0 = 6
def z_acc(t):
    if t == "h": return (None, A_ACC + 48, A_ACC + 52)
    return (A_ACC + 12*t, A_ACC + 12*t + 4, A_ACC + 12*t + 8)

def a10_lanes(k):
    k.e("v_lshrrev_b32 v60, 3, v1", "v_and_b32 v61, 6, v60", "v_and_b32 v62, 7, v1", "v_xor_b32 v61, v61, v62",
        "v_lshlrev_b32 v61, 4, v61", f"v_lshl_add_u32 v{A_DX}, v60, 10, v61")
    k.e("v_and_b32 v61, 2, v60", f"s_and_b32 s32, s{sW}, 1", "s_lshl_b32 s32, s32, 2", "v_or_b32 v61, s32, v61", "v_xor_b32 v61, v61, v62",
        "v_lshlrev_b32 v61, 4, v61", "v_mul_u32_u24 v60, 3072, v60", f"v_add_u32 v{Z_WD}, v60, v61")
    k.e(f"s_add_u32 s{sROT}, s{sB}, s{sCS}", f"s_and_b32 s{sROT}, s{sROT}, 7")
    k.e(f"s_lshl_b32 s47, s{sB}, 3", "s_sub_u32 s48, s47, 2", "s_max_i32 s48, s48, 0", f"s_and_b32 s32, s{sW}, 1", "s_add_u32 s48, s48, s32",
        "s_lshl_b32 s48, s48, 13", f"s_lshl_b32 s32, s{sW}, 1", "s_add_u32 s47, s47, s32", "s_lshl_b32 s47, s47, 13")
    k.e(f"s_mul_i32 s51, s{sW}, {8*3072}", f"s_lshl_b32 s32, s{sCS}, 7", "s_add_u32 s51, s51, s32", f"s_mul_i32 s52, s{sW}, 3072")
    k.e(f"s_lshl_b32 s49, s{sW}, 14", f"s_and_b32 s32, s{sW}, 1", "s_lshl_b32 s50, s32, 13", f"s_lshr_b32 s32, s{sW}, 1",
        "s_lshl_b32 s33, s32, 10", "s_add_u32 s50, s50, s33", f"s_add_u32 s90, s32, s{sROT}")

def a10_x(k, c):
    S = lambda *t: [("s", lambda x=x: k.e(x)) for x in t]
    ld = lambda: k.vm(f"buffer_load_dwordx4 v{A_DX}, {SRD_X}, s33 offen lds", ("x", c))
    ops = S(f"s_add_u32 s33, s{sROT}, {c}", "s_and_b32 s33, s33, 7", "s_lshl_b32 s33, s33, 7", f"s_add_u32 m0, s49, {L_X + c*1024}", "s_add_u32 s33, s33, s47")
    ops += [("v", ld)] + S(f"s_add_u32 m0, s49, {L_X + 8192 + c*1024}", "s_add_u32 s33, s33, 8192") + [("v", ld)]
    if c % 2 == 0:
        ops += S(f"s_add_u32 s33, s90, {c}", "s_and_b32 s33, s33, 7", "s_lshl_b32 s33, s33, 7", f"s_add_u32 m0, s50, {L_XH0 + c*1024}", "s_add_u32 s33, s33, s48") + [("v", ld)]
    return ops

def a10_w(k, s):
    S = lambda *t: [("s", lambda x=x: k.e(x)) for x in t]
    if s & 1: ops = S(f"s_add_u32 m0, s52, {(s % NS0)*12288}", f"s_add_u32 s63, s63, {32*3072}")
    else: ops = S(f"s_add_u32 s63, s{sROT}, {s>>1}", "s_and_b32 s63, s63, 7", f"s_mul_i32 s63, s63, {64*3072}", f"s_add_u32 m0, s52, {(s % NS0)*12288}", "s_add_u32 s63, s63, s51")
    for p in range(3): ops.append(("v", lambda p=p: k.vm(f"buffer_load_dwordx4 v{Z_WD}, {SRD_QKV}, s63 offen offset:{p*1024} lds", ("w", s))))
    return ops
def run(ops):
    for _, f in ops: f()

def fill(k, mains, streams, cap=2):
    lastv = -99
    for g, m in enumerate(mains):
        m(); k.gap = g
        for a, o in streams:
            if a <= g and o and o[0][0] == "s": o.pop(0)[1](); break
        room = cap; nd = 0
        if g - lastv >= P.k_vgap and k.bg_step(): room -= 1; lastv = g
        while room > 0:
            pick = None
            for a, o in streams:
                if a > g or not o: continue
                t = o[0][0]
                if t == "d" and nd >= 1: continue
                if t == "v" and g - lastv < P.k_vgap: continue
                pick = o; break
            if pick is None: break
            t, f = pick.pop(0); f(); room -= 2 if t == "b" else 1
            if t == "d": nd += 1
            if t == "v": lastv = g
    for a, o in streams: run(o)

def a10_lanes2(k):
    k.e("v_lshrrev_b32 v60, 4, v1", "v_bfe_u32 v61, v1, 2, 2", "v_and_b32 v62, 1, v60", "v_lshlrev_b32 v62, 1, v62",
        "v_lshrrev_b32 v63, 1, v61", "v_or_b32 v62, v62, v63", f"v_xor_b32 v62, s{sW}, v62", "v_lshlrev_b32 v62, 5, v62",
        "v_mul_u32_u24 v60, 3072, v60", "v_lshl_add_u32 v60, v61, 7, v60", "v_add_u32 v60, v60, v62",
        "v_and_b32 v61, 3, v1", f"v_lshl_add_u32 v{Z_TR}, v61, 3, v60")
    k.e("v_and_b32 v60, 15, v1", "v_cmp_eq_u32 s[78:79], 0, v60")
    k.e(f"v_subrev_u32 v{Z_HE}, 16384, v{R0.XE}", f"v_subrev_u32 v{Z_HO}, 16384, v{R0.XO}",
        f"v_add_u32 v{Z_OE}, s49, v{R0.XE}", f"v_add_u32 v{Z_OO}, s49, v{R0.XO}")

def a10_loop(k, first):
    LA = P.k_look
    def sync(s, extra=()):
        k.wait(vm=[("w", s), ("x", s >> 1)] + list(extra)); k.e("s_barrier")
    nxt = [first]
    def dmas(upto):
        out = []
        while nxt[0] <= min(upto, 15):
            n = nxt[0]; nxt[0] += 1
            if n % 2 == 0: out += a10_x(k, n // 2)
            out += a10_w(k, n)
        return out
    def reads(s):
        fb = Z_XF + 24 * (s & 1); off = (s >> 1) * 1024; o = s & 1
        tr = lambda p, j: ("d", lambda: k.ds(f"ds_read_b64_tr_b16 {ar(12*s+4*p+2*j,2)}, v{Z_TR} offset:{(s%NS0)*12288 + p*1024 + j*512}", ("r", s, 0 if p == 0 else 1)))
        xr = lambda d, a, of, grp: ("d", lambda: k.ds(f"ds_read_b128 {vr(d,4)}, v{a} offset:{of}", ("r", s, grp)))
        out = [tr(0, 0), tr(0, 1)] + [xr(fb + 4*t, R0.XO if o else R0.XE, t*16384 + off, 0) for t in range(4)]
        out += [tr(1, 0), tr(1, 1), tr(2, 0), tr(2, 1), xr(fb + 16, Z_HO if o else Z_HE, off, 1), xr(fb + 20, Z_OO if o else Z_OE, off, 1)]
        return out
    l0_background(k)
    pst = pack_stores(k)
    sync(0)
    k.stamp("k0")
    run(reads(0)); run(dmas(LA - 1))
    for s in range(16):
        fb = Z_XF + 24 * (s & 1)
        c = lambda r: "0" if s == 0 else vr(r, 4)
        wq, wk, wv, one = ar(12*s, 4), ar(12*s + 4, 4), ar(12*s + 8, 4), vr(R0.ONE, 4)
        ms = [f"{MF16} {vr(z_acc(t)[0],4)}, {wq}, {vr(fb+4*t,4)}, {c(z_acc(t)[0])}" for t in range(4)]
        for t in [0, 1, 2, 3, "h"]:
            xf = vr(fb + (16 if t == "h" else 4*t), 4)
            ms.append(f"{MF16} {vr(z_acc(t)[1],4)}, {wk}, {xf}, {c(z_acc(t)[1])}")
            ms.append(f"{MF16} {vr(z_acc(t)[2],4)}, {xf}, {wv}, {c(z_acc(t)[2])}")
        ms += [f"{MF16} {vr(Z_CV,4)}, {wq}, {vr(fb+16,4)}, {c(Z_CV)}",
               f"{MF16} {vr(Z_SUM,4)}, {one}, {vr(fb+20,4)}, {c(Z_SUM)}", f"{MF16} {vr(Z_GR,4)}, {vr(fb+20,4)}, {vr(fb+20,4)}, {c(Z_GR)}",
               f"{MF16} {vr(Z_SUMH,4)}, {one}, {vr(fb+16,4)}, {c(Z_SUMH)}", f"{MF16} {vr(Z_GRH,4)}, {vr(fb+16,4)}, {vr(fb+16,4)}, {c(Z_GRH)}"]
        mains = [lambda m=m: k.e(m) for m in ms]
        k.wait(lg=[("r", s, 0)])
        streams = [(3, [("s", lambda: k.wait(lg=[("r", s, 1)]))] +
                       [("a", lambda d=d: k.e(f"v_cndmask_b32 v{fb+16+d}, v{fb+16+d}, v{R0.ONE}, s[78:79]")) for d in range(4)])]
        if s + 1 < 16:
            ex = ["pks"] if s + 1 == P.k_atom else []
            ops = [("b", lambda: sync(s + 1, ex))] + reads(s + 1)
            if ex: ops.append(("b", lambda: arrive(k)))
            streams.append((P.k_bar, ops))
            streams.append((0, dmas(s + LA)))
        n = 0; mine = []
        while pst and (n < P.k_pst or pst[0][0] == "a"):
            n += pst[0][0] == "v"; mine.append(pst.pop(0))
        streams.append((P.k_pgap, mine))
        if s == 13: streams.append((6, tail_prep(k)))
        if s == P.k_touch:
            streams.append((2, [("b", lambda: k.touch(56, "p", ["s_mov_b32 s32, s53"], False)),
                                ("b", lambda: k.touch(57, "q", [f"s_add_u32 s32, s64, {BX1[0]}"], False)),
                                ("b", lambda: k.touch(58, "h", h_base("s32", 0), False) if P.h_touch0 == "k" else None)]))
        if s == P.k_gb: streams.append((1, [("v", lambda t=t: k.vm(t, "gb")) for t in GB_LOADS]))
        if s == P.k_chk: streams.append((1, [("b", lambda: rendezvous(k))]))
        if s == 15 and P.k_chk < 16:
            streams.append((max(P.k_bar, 4), [("b", lambda: (k.e("s_barrier"), k.mark("xfree")))]))
        fill(k, mains, streams)
        if s in (3, 7, 11): k.stamp(f"k{s+1}")
    k.stamp("k16")
    if P.k_chk >= 16: rendezvous(k)

GB_LOADS = [f"buffer_load_dwordx4 {vr(36+4*j,4)}, v{vL16}, {SRD_WS}, s75 offen offset:{j*1024} sc1" for j in range(4)] + \
           [f"buffer_load_dword v{vP}, v172, {SRD_WS}, s77 offen offset:8 sc1"]
def arrive(k):
    k.wait(vm=["tag"])
    k.e(f"v_readfirstlane_b32 s{sTAG}, v170", f"s_cmp_eq_u32 s{sTAG}, 0", "s_cbranch_scc1 L_tag_spin ;np", "L_tag_ok: ;np")
    k.spins += ["L_tag_spin:", f"s_sub_u32 s{sBUD}, s{sBUD}, 1", "s_cbranch_scc1 L_tag_give", f"buffer_load_dword v170, v{vFA}, {SRD_DBG}, 0 offen sc1",
                "s_waitcnt vmcnt(0)", f"v_readfirstlane_b32 s{sTAG}, v170", f"s_cmp_eq_u32 s{sTAG}, 0", "s_cbranch_scc1 L_tag_spin", "s_branch L_tag_ok",
                "L_tag_give:", f"s_mov_b32 s{sBUD}, 0", "s_branch L_tag_ok"]
    k.e(f"v_mov_b32 v176, s{sTAG}", "v_not_b32 v177, v176", f"v_mov_b32 v178, s{sXCC}")
    k.vm(f"buffer_store_dwordx4 v[176:179], v171, {SRD_WS}, s75 offen sc1", "arr")

def rendezvous(k):
    chk = [f"s_not_b32 s32, s{sTAG}"]
    for j in range(4): chk += [f"v_xor_b32 v{36+4*j}, s{sTAG}, v{36+4*j}", f"v_xor_b32 v{37+4*j}, s32, v{37+4*j}"]
    chk += ["v_or3_b32 v36, v36, v37, v40", "v_or3_b32 v44, v44, v45, v41", "v_or3_b32 v36, v36, v48, v49", "v_or_b32 v36, v36, v44", "v_cmp_ne_u32 vcc, 0, v36"]
    k.wait(vm=["gb"])
    k.e(*chk); k.e("s_cbranch_vccnz L_gb_spin ;np", "L_gb_ok: ;np")
    k.spins += ["L_gb_spin:", f"s_sub_u32 s{sBUD}, s{sBUD}, 1", "s_cbranch_scc1 L_gb_give", "s_sleep 2"] + GB_LOADS + ["s_waitcnt vmcnt(0)"] + chk + \
               ["s_cbranch_vccnz L_gb_spin", "s_branch L_gb_ok", "L_gb_give:", f"s_mov_b32 s{sBUD}, 0", "s_branch L_gb_ok"]
    k.e(f"v_cmp_ne_u32 vcc, s{sXCC}, v{vP}", "s_and_b32 s99, vcc_lo, 0xffff" if not P.safe else "s_and_b32 s99, 1, 1",
        f"s_cselect_b32 s{sML}, {OOB>>1:#x}, 0", f"s_cselect_b32 s{sMS}, 0, {OOB>>1:#x}")
    k.mark("gb")

W_OA, W_UA, W_SA, W_RB = 152, 154, 155, 156
def wo_bases(k):
    k.e(f"s_lshl_b32 s32, s{sB}, 2", f"s_add_u32 s32, s32, s{sW}", "s_lshl_b32 s64, s32, 14", f"s_lshl_b32 s33, s{sCS}, 10", "s_add_u32 s64, s64, s33",
        "s_lshr_b32 s32, s32, 1", "s_lshl_b32 s80, s32, 15", "s_lshl_b32 s65, s32, 11", "s_lshl_b32 s66, s32, 3", f"s_add_u32 s66, s66, s{sCS}", "s_lshl_b32 s66, s66, 1",
        f"s_and_b32 s32, s{sW}, 1", "s_add_u32 s66, s66, s32", "s_lshl_b32 s66, s66, 2", "s_lshl_b32 s32, s32, 8", "s_add_u32 s80, s80, s32", "s_add_u32 s65, s65, s32",
        f"s_lshr_b32 s32, s{sCS}, 1", "s_lshl_b32 s32, s32, 9", "s_add_u32 s65, s65, s32", f"s_and_b32 s32, s{sCS}, 1", "s_lshl_b32 s32, s32, 3", "s_add_u32 s65, s65, s32")
def wo_lanes(k):
    x, y = 66, 67
    return [lambda t=t: k.e(*t) for t in (
        [f"v_and_b32 v{x}, 15, v1"], [f"v_lshrrev_b32 v{y}, 4, v1"], [f"v_lshlrev_b32 v{W_OA}, 4, v{x}"], [f"v_lshl_add_u32 v{W_SA}, v{y}, 2, v{W_OA}"],
        [f"v_lshl_add_u32 v{W_OA}, v{y}, 9, v{W_OA}"], [f"v_and_b32 v{W_UA}, 7, v1"], [f"v_lshlrev_b32 v{W_UA}, 4, v{W_UA}"], [f"v_lshl_add_u32 v{W_UA}, v{y}, 7, v{W_UA}"],
        [f"v_lshrrev_b32 v{x}, 3, v{x}"], [f"v_lshl_add_u32 v{W_UA}, v{x}, 13, v{W_UA}"], [f"v_add_u32 v{W_RB}, {6*16384}, v{vL16}"],
        ["v_cmp_gt_u32 vcc, 32, v1", f"v_mov_b32 v{y}, {OOB:#x}", f"v_cndmask_b32 v{W_SA}, v{y}, v{W_SA}, vcc"])]
def blanks(k, layer):
    if not P.tags: return [lambda: k.mark("blank")]
    z = 66
    return [lambda: (k.e(f"v_mov_b32 v{z}, -1"), k.dstore(f"buffer_store_dword v{z}, v{vL16}, {SRD_WS}, s53 offen", "blank")),
            lambda: (k.e(f"s_add_u32 s58, s64, {BX1[layer]}"), k.dstore(f"buffer_store_dword v{z}, v{W_UA}, {SRD_WS}, s58 offen", "blank")),
            lambda: k.dstore(f"buffer_store_dword v{z}, v{W_UA}, {SRD_WS}, s58 offen offset:512", "blank"),
            lambda: (k.e(f"s_add_u32 s58, s65, {BS1[layer]}"), k.dstore(f"buffer_store_dword v{z}, v{W_SA}, {SRD_WS}, s58 offen", "blank"), k.mark("blank"))]
def wo_prepoll(k, layer):
    k.poll_addr(A_PA, 32)
    k.e(f"s_lshl_b32 s32, s{sB}, 7", f"s_add_u32 s{sPO}, s32, {fl(layer, FL_O)}", f"s_add_u32 s59, s80, {BO[layer]}")
    k.bg_held = True
    k.poll_issue(A_PA, "po1"); k.mark("po1")

def dna(k): return regloads(k, sDS, 0, lambda j: ar(192 + 4*j, 4), 16, "dna")

def tail_prep(k):
    R = R0
    A = lambda *t: [("a", lambda x=x: k.e(x)) for x in t]
    B = lambda *t: [("b", lambda: k.e(*t))]
    ops = A("v_and_b32 v73, 15, v1", "v_lshrrev_b32 v74, 4, v1", "v_lshlrev_b32 v73, 10, v73", "v_lshl_add_u32 v73, v74, 4, v73")
    ops += B(f"s_lshl_b32 s58, s{sB}, 2", f"s_add_u32 s58, s58, s{sW}", "s_lshl_b32 s58, s58, 14", f"s_lshl_b32 s59, s{sCS}, 7", "s_add_u32 s58, s58, s59")
    ops += [("v", lambda p=p: k.vm(f"buffer_load_dwordx4 {vr(RES+4*p,4)}, v73, {SRD_X}, s58 offen offset:{p*64}", "res")) for p in range(2)]
    ops += A("v_and_b32 v75, 3, v1", "v_cmp_eq_u32 s[34:35], 1, v75", "v_cmp_eq_u32 s[36:37], 2, v75", "v_cmp_eq_u32 s[38:39], 3, v75", "v_bfe_u32 v75, v1, 2, 2")
    ops += B("v_cmp_eq_u32 vcc, v75, v74", f"v_mov_b32 v72, {L_SA0 + 768}", f"s_lshl_b32 s59, s{sW}, 7", f"v_add_u32 v74, s59, v{R.SA}",
             "v_cndmask_b32 v74, v72, v74, vcc", f"v_cndmask_b32 v75, v72, v{R.SA}, vcc")
    return ops + [("a", f) for f in wo_lanes(k)]

def l0_background(k):
    k.per = dict(P.per_k)
    dd = dna(k)
    bg_list(k, dd[:P.dna_first], "s4", "dna", "gb")
    bg_list(k, wow(k), "s4", "wow", "xfree")
    bg_batches(k, [0, 1, 2, 3], "s2", lambda b: "xfree")
    bg_batches(k, [4], "s2", lambda b: "wobar")
    bg_batches(k, [5], "s2", lambda b: "xfree")
    bg_batches(k, [6, 7, 8, 9], "s2", lambda b: "gubar")
    bg_list(k, dd[P.dna_first:], "s4", "dna")
P.per_k = {"s2": 90, "s4": 70}

def a10_tail(k):
    R = R0
    k.per = dict(P.per_tail0)
    k.stamp("t0 gb")
    k.touch(72, "t", [f"s_add_u32 s32, s65, {BS1[0]}"])
    k.bg_burst(2)
    hk, hv = z_acc("h")[1], z_acc("h")[2]
    for r in range(4):
        k.e(f"v_mov_b32_dpp v{CSQ+r}, v{Z_CV+r} row_newbcast:0 row_mask:0xf bank_mask:0xf", f"v_mov_b32_dpp v{CSK+r}, v{hk+r} row_newbcast:0 row_mask:0xf bank_mask:0xf")
    k.e(f"v_mov_b32 v{CSV}, v{hv}", f"v_mov_b32 v45, v{hv}", f"v_permlane16_swap_b32 v{CSV}, v45", f"v_mov_b32 v45, v{CSV}", f"v_permlane32_swap_b32 v{CSV}, v45")
    fa = Flex(); fb = Flex()
    for fx, S, G, ad, off in ((fa, Z_SUM, Z_GR, 74, 128), (fb, Z_SUMH, Z_GRH, 75, 0)):
        a = lambda txt, c=1, fx=fx: fx.add(lambda: k.e(txt), c)
        a(f"v_cndmask_b32 v{S+1}, v{G}, v{G+1}, s[34:35]"); a(f"v_cndmask_b32 v{S+1}, v{S+1}, v{G+2}, s[36:37]"); a(f"v_cndmask_b32 v{S+1}, v{S+1}, v{G+3}, s[38:39]")
        ln_finish(a, S, S + 1); a(f"v_rsq_f32 v{S+1}, v{S+1}"); fx.skip(1)
        fx.add(lambda S=S, ad=ad, off=off: k.ds(f"ds_write_b64 v{ad}, {vr(S,2)} offset:{off}", "saw"))
    drain([fa, fb], k)
    for f in blanks(k, 0): f()
    k.wait(lg="all"); k.e("s_barrier"); k.mark("xfree")
    k.stamp("t0 bar")
    fx = Flex(); f1 = Flex(); f2 = Flex()
    od = (2, 1, 3, 0, "h"); Ss = (A_STA, 56)
    for f in fix_reads(k, R, od[0], Ss[0]): f()
    for n, t in enumerate(od):
        fix(k, R, fx, t, z_acc(t), 0, True, Ss[n & 1], True, fix_reads(k, R, od[n + 1], Ss[~n & 1]) if n < 4 else ()); fx.skip(1)
    attn(k, R, f1, 2, R.ATT[0]); attn(k, R, f2, 3, R.ATT[1]); ostore(k, f2, 1)
    attn(k, R, f1, 1, R.ATT[0]); attn(k, R, f2, 0, R.ATT[1]); ostore(k, f2, 0)
    f3 = Flex(); f3.dep(("ost", 1))
    for _ in range(P.l0_flag_delay): f3.skip(1)
    f3.add(lambda: (k.wait(vm=[("ost", 1)]), k.flag(1, 89), k.mark("oflag1")))
    f3.dep(("attn", 0)); f3.add(lambda: wo_prepoll(k, 0))
    drain([fx, f1, f2, f3], k)
    k.stamp("a1 end")
P.l0_flag_delay = 6; P.dna_first = 2
P.per_tail0 = {"s2": 70, "s4": 45}

def a11_bases(k):
    out = []
    S = lambda *t: out.extend(lambda x=x: k.e(x) for x in t)
    S(f"s_lshr_b32 s70, s{sW}, 1", "s_lshl_b32 s49, s70, 13", f"s_and_b32 s71, s{sW}, 1", "s_lshl_b32 s71, s71, 2",
      f"s_add_u32 s50, s71, s{sROT}", "s_lshl_b32 s71, s71, 10")
    for i in range(4):
        S(f"s_add_u32 s70, s50, {i}", "s_and_b32 s70, s70, 7", "s_lshl_b32 s70, s70, 10", "s_add_u32 s70, s70, s49", f"s_sub_u32 s{92+i}, s70, {i*1024}")
    S("s_add_u32 s49, s49, s71", f"s_lshl_b32 s47, s{sB}, 16", f"s_add_u32 s47, s47, {WS_X[1]}")
    S(f"s_sub_u32 s48, s{sB}, 1", "s_max_i32 s48, s48, 0", "s_lshl_b32 s51, s48, 10", f"s_add_u32 s51, s51, {WS_HST}",
      "s_lshl_b32 s52, s48, 11", f"s_add_u32 s52, s52, {WS_HXF}", "s_lshl_b32 s48, s48, 14", f"s_add_u32 s48, s48, {WS_HALO}")
    S("v_lshrrev_b32 v28, 4, v1", "v_and_b32 v29, 15, v1", "v_lshlrev_b32 v29, 4, v29", f"v_lshl_add_u32 v{A_U}, v28, 9, v29", f"v_lshl_add_u32 v{A_U+1}, v28, 8, v29")
    S(f"s_lshl_b32 s70, s{sB}, 12", f"s_and_b32 s71, s{sW}, 1", "s_lshl_b32 s71, s71, 8", "s_add_u32 s70, s70, s71", f"s_add_u32 s90, s70, {WS_ST[1]}")
    out.append(lambda: k.e(f"s_lshl_b32 s70, s{sB}, 1", f"s_add_u32 s70, s70, s{sW}", "s_lshl_b32 s72, s70, 13", f"s_lshl_b32 s71, s{sCS}, 10", "s_add_u32 s72, s72, s71",
        f"s_add_u32 s72, s72, {WS_HALO - 16384}", f"s_cmp_ge_u32 s{sW}, 2", f"s_cselect_b32 s72, s72, {OOB>>1:#x}"))
    out.append(lambda: k.e(f"s_lshl_b32 s73, s{sB}, 10", f"s_lshr_b32 s71, s{sCS}, 1", "s_lshl_b32 s71, s71, 8", "s_add_u32 s73, s73, s71", f"s_and_b32 s71, s{sCS}, 1",
        "s_lshl_b32 s71, s71, 3", "s_add_u32 s73, s73, s71"))
    out.append(lambda: k.e(f"s_lshl_b32 s71, s{sW}, 7", "s_add_u32 s73, s73, s71", f"s_add_u32 s73, s73, {WS_HST - 256}",
        f"s_cmp_ge_u32 s{sW}, 2", f"s_cselect_b32 s73, s73, {OOB>>1:#x}"))
    out.append(lambda: k.e(f"s_lshl_b32 s70, s{sB}, 3", f"s_add_u32 s70, s70, s{sCS}", "s_lshl_b32 s70, s70, 1", f"s_add_u32 s70, s70, s{sW}", "s_lshl_b32 s70, s70, 7",
        f"s_add_u32 s70, s70, {WS_HXF - 256}", f"s_cmp_ge_u32 s{sW}, 2", f"s_cselect_b32 s91, s70, {OOB>>1:#x}"))
    return out

def a11_x(k, tile):
    fns = []
    for i in range(4):
        def f(i=i):
            k.set_m0(f"s_add_u32 m0, s49, {A11_POS[tile]*16384}")
            k.e(f"s_add_u32 s32, s{48 if tile == 'h' else 47}, s{92+i}")
            if tile not in (0, "h"): k.e(f"s_add_u32 s32, s32, {tile*16384}")
            k.vm(f"buffer_load_dwordx4 v{vL16}, {SRD_WS}, s32 offen offset:{i*1024} sc1 lds", ("x", tile))
        fns.append(f)
    return fns

def stats_path(k, fx, S, tag, addr, tok, at=0):
    a = lambda txt, c=1: fx.add(lambda: k.e(txt), c)
    s, q = S, S + 1
    fx.add(lambda: k.wait(vm=[tag]), 1, at)
    a(f"v_add_f32 v{s}, v{s}, v{S+2}"); a(f"v_add_f32 v{q}, v{q}, v{S+3}"); fx.skip(1)
    a(f"v_permlane16_swap_b32 v{s}, v{q}", 2); a(f"v_add_f32 v{s}, v{s}, v{q}"); a(f"v_mov_b32 v{q}, v{s}"); fx.skip(1)
    a(f"v_permlane32_swap_b32 v{s}, v{q}", 2); a(f"v_add_f32 v{s}, v{s}, v{q}"); a(f"v_mov_b32 v{q}, v{s}"); fx.skip(1)
    a(f"v_permlane16_swap_b32 v{s}, v{q}", 2)
    ln_finish(a, s, q); a(f"v_rsq_f32 v{q}, v{q}", 2); fx.skip(1)
    fx.add(lambda: (k.ds(f"ds_write_b64 v{addr}, {vr(s,2)} offset:{tok*8}", ("saw", tag)), k.mark(("saw", tag))))

def a11_early(k):
    k.vm(f"buffer_load_dwordx4 {vr(A_ST,4)}, v{A_U}, {SRD_WS}, s90 offen offset:2048 sc1", "st0")
    for t in A11_ORDER[:2]:
        for f in a11_x(k, t): f()

def a11_main(k):
    R = R1; order = A11_ORDER
    steps = [(t, s) for t in order for s in range(16)]
    accof = lambda t: A_ACC + 12 * (order.index(t) % 3)
    def xread(i):
        t, s = steps[i]
        off = A11_POS[t] * 16384 + (s >> 1) * 1024
        k.ds(f"ds_read_b128 {vr(A_XF+4*(i%4),4)}, v{R.XO if s&1 else R.XE} offset:{off}", ("xf", i))
    mains = []; fixed = {}; gap_of = {}
    need_sa = {order[1]: ["st0"], order[2]: ["st1"], order[3]: [], "h": []}
    for i, (t, s) in enumerate(steps):
        acc = accof(t); xf = vr(A_XF + 4*(i % 4), 4)
        c = lambda r, s=s: "0" if s == 0 else vr(r, 4)
        ms = []
        if t != "h": ms.append(f"{MF16} {vr(acc,4)}, {ar(12*s,4)}, {xf}, {c(acc)}")
        ms.append(f"{MF16} {vr(acc+4,4)}, {ar(12*s+4,4)}, {xf}, {c(acc+4)}")
        ms.append(f"{MF16} {vr(acc+8,4)}, {xf}, {ar(12*s+8,4)}, {c(acc+8)}")
        gap_of[(t, s)] = len(mains)
        for m in ms: mains.append(lambda m=m: k.e(m))
        last = len(mains) - 1
        fl_ = fixed.setdefault(last, [])
        if i + 1 < len(steps): fl_.append((0, lambda i=i: k.wait(lg=[("xf", i + 1)])))
        j = i + 4
        if j < len(steps):
            tj, sj = steps[j]
            if sj == 0:
                def bar(tj=tj):
                    k.wait(vm=[("x", tj)], lg=[("saw", n) for n in need_sa[tj]]); k.e("s_barrier"); k.mark(("bar", tj))
                fixed.setdefault(gap_of[(t, s)], []).append((1, bar))
            fixed[last].append((1, lambda j=j: xread(j)))
    fx = Flex(); fz = Flex(); fz2 = Flex(); fy = Flex(); fm = Flex()
    k.e(f"s_and_b32 s32, s{sW}, 1", "s_lshl_b32 s32, s32, 7", f"v_add_u32 v7, s32, v{R.SA}")
    o_bases(k, 1)
    stats_path(k, fy, A_ST, "st0", 7, 48)
    g1 = P.a1_late_gap
    fm.add(lambda: (k.wait(vm=[("xst", 1)]), k.flag(2)), 3, P.a1_flag_gap)
    fm.add(lambda: k.poll_issue(A_PX, "px2"), 1, g1 - P.a1_poll_lead)
    fm.add(lambda: k.poll_check(A_PX, "px2", 2), 2, g1)
    fm.add(lambda: k.vm(f"buffer_load_dwordx4 {vr(56,4)}, v{A_U}, {SRD_WS}, s90 offen sc1", "st1"))
    for t in order[2:4]:
        for f in a11_x(k, t): fm.add(f, 2); fm.skip(P.a1_xgap)
    for f in wo_lanes(k): fy.add(f)
    fy.add(lambda: k.mark("wolanes"), 0)
    fm.dep("wolanes")
    fm.add(lambda: k.e(f"s_add_u32 s58, s64, {WS_X[1]}"))
    for p in range(2): fm.add(lambda p=p: k.vm(f"buffer_load_dwordx4 {vr(RES+4*p,4)}, v{W_UA}, {SRD_WS}, s58 offen offset:{p*512} sc1", "res")); fm.skip(P.a1_xgap)
    def halo_poll():
        k.poll_addr(A_PX, 16, 7)
        k.e(f"s_mov_b32 s{sPO}, s52", f"s_min_u32 s50, s{sB}, 1")
        k.poll_issue(A_PX, "phx"); k.bg_held = False
    fm.add(halo_poll, 3)
    if P.touch1 in (1, 2):
        fm.add(lambda: k.touch(60, "p", ["s_mov_b32 s32, s53"]), 6)
        fm.add(lambda: k.touch(62, "q", [f"s_add_u32 s32, s64, {BX1[1]}"]), 6)
        fm.add(lambda: k.touch(64, "t", [f"s_add_u32 s32, s65, {BS1[1]}"]), 4)
        if P.touch1 > 1: fm.add(lambda: k.touch(66, "h", h_base("s32", 1)), 6)
    for f in blanks(k, 1): fm.skip(P.a1_xgap); fm.add(f, 3)
    stats_path(k, fy, 56, "st1", 7, 16, g1 + 26)
    fm.dep(("bar", order[2]))
    fm.add(lambda: k.poll_check(A_PX, "phx", "s50"), 2)
    fm.add(lambda: k.vm(f"buffer_load_dwordx4 {vr(A_ST,4)}, v{A_U+1}, {SRD_WS}, s51 offen sc1", "sth"))
    for f in a11_x(k, "h"): fm.add(f, 2); fm.skip(P.a1_xgap)
    stats_path(k, fy, A_ST, "sth", R.SA, 0, gap_of[(order[3], P.a1_sth)])
    k.per = dict(P.per_a1); k.bg_held = True
    b5 = batch(k, 5)
    mix = [(f, "s2", ("gw", 4), None) for f in batch(k, 4)] + [(f, "s2", ("gw", 5), None) for f in b5[:3]]
    ww = [(f, "s4", "wow", None) for f in wow(k)]
    while mix or ww:
        k.bg += ww[:2]; ww = ww[2:]
        if mix: k.bg.append(mix.pop(0))
    bg_batches(k, [0], "s2", lambda b: ("bar", order[3]))
    bg_batches(k, [1], "s2", lambda b: ("bar", "h"))
    bg_batches(k, [2, 3], "s2", lambda b: "wobar")
    bg_list(k, b5[3:], "s2", ("gw", 5), "wobar")
    bg_batches(k, [6, 7, 8, 9], "s2", lambda b: "gubar")
    A = lambda t: (accof(t) if t != "h" else None, accof(t) + 4, accof(t) + 8)
    for n in range(4): fix(k, R, fx, order[n], A(order[n]), gap_of[(order[n + 1], 1 if n < 3 else 2)], False)
    attn(k, R, fz, 3, R.ATT[0]); attn(k, R, fz2, 2, R.ATT[1]); ostore(k, fz2, 1)
    attn(k, R, fz, 1, R.ATT[0])
    fx.dep(("saw", "sth"))
    for f in fix_reads(k, R, "h", A_STA): fx.add(f)
    fx.dep("gemm_done")
    fix(k, R, fx, "h", A("h"), 0, False, pre=True); attn(k, R, fz2, 0, R.ATT[1]); ostore(k, fz2, 0)
    f3 = Flex(); f3.dep(("ost", 1)); f3.skip(P.l1_flag_delay)
    f3.add(lambda: (k.wait(vm=[("ost", 1)]), k.flag(1, 89), k.mark("oflag1")), 3)
    f3.dep(("attn", 0)); f3.add(lambda: wo_prepoll(k, 1))
    k.wait(vm=[("x", order[0])]); k.e("s_barrier")
    for i in range(4): xread(i)
    k.wait(lg=[("xf", 0)])
    k.stamp("a1 first")
    if k.stamping:
        for t in order[1:]: fixed.setdefault(gap_of[(t, 0)], []).append((0, lambda t=t: k.stamp(f"a1 t{t}")))
    run_gaps(k, mains, fixed, [fm, f3, fy, fx, fz2, fz], 2, over=lambda i: i >= P.a1_over)
    print("a11 left:", len(fm), len(fy), len(fx), len(fz), len(fz2), len(k.bg), {n: g for n, g in k.marks.items() if isinstance(n, tuple) and n[0] in ("fix", "attn", "saw", "ost")})
    k.mark("gemm_done"); k.bg_held = P.a1_tailhold
    k.stamp("a1 gemm")
    drain([fm, fy, fx, fz, fz2, f3], k)
    for n in range(2): assert k.marks[("fix", order[n])] < gap_of[(order[n + 3], 0)], "accumulator reused too early"
    k.stamp("a1 end")
P.a1_flag_gap, P.a1_late_gap, P.a1_poll_lead, P.l1_flag_delay, P.a1_over = 8, 36, 18, 14, 48
P.a1_salead = 8; P.a1_tailhold = True; P.touch1 = 1; P.a1_xgap = 3; P.a1_sth = 4
P.per_a1 = {"s2": 95, "s4": 60}

R_W0, R_W1, R_RD, R_ST, R_OUT = 3, 4, 5, 6, 7
def red_setup(k, posA, dAB):
    x, y, z, u = 28, 29, 30, 31
    k.e(f"s_add_u32 s32, s{sGL}, {posA*16384}", f"v_add_u32 v{R_W0}, s32, v{vL16}", f"v_xor_b32 v{R_W1}, 128, v{R_W0}")
    k.e(f"v_and_b32 v{x}, 7, v1", f"v_lshrrev_b32 v{y}, 3, v1", f"s_lshl_b32 s32, s{sW}, 7", f"v_lshl_add_u32 v{z}, v{x}, 4, s32",
        f"v_bfe_u32 v{u}, v1, 4, 1", f"v_lshlrev_b32 v{R_RD}, 7, v{u}", f"v_xor_b32 v{z}, v{z}, v{R_RD}",
        f"v_bfe_u32 v{R_RD}, v1, 3, 2", f"v_lshl_add_u32 v{z}, v{R_RD}, 10, v{z}", f"v_lshrrev_b32 v{R_RD}, 5, v1",
        f"v_mul_u32_u24 v{R_RD}, {dAB*16384}, v{R_RD}", f"v_add_u32 v{z}, v{z}, v{R_RD}", f"v_add_u32 v{R_RD}, {posA*16384}, v{z}")
    k.e(f"v_lshlrev_b32 v{z}, 4, v{x}", f"v_lshl_add_u32 v{z}, v{u}, 2, v{z}", f"v_and_b32 v{u}, 0x28, v1",
        f"v_cmp_eq_u32 vcc, 0, v{u}", f"v_mov_b32 v{u}, {OOB:#x}", f"v_cndmask_b32 v{R_ST}, v{u}, v{z}, vcc")
    k.e(f"v_lshlrev_b32 v{z}, 10, v{x}", f"v_lshl_add_u32 v{R_OUT}, v{y}, 4, v{z}")

def red_bases(k):
    k.e(f"s_lshl_b32 s32, s{sB}, 3", f"s_add_u32 s32, s32, s{sW}", "s_lshl_b32 s55, s32, 13", f"s_lshl_b32 s33, s{sCS}, 10", "s_add_u32 s55, s55, s33")
    k.e("s_lshl_b32 s57, s32, 13", f"s_lshl_b32 s33, s{sCS}, 7", "s_add_u32 s57, s57, s33")
    k.e(f"s_lshl_b32 s56, s{sB}, 12", f"s_lshr_b32 s33, s{sCS}, 1", "s_lshl_b32 s33, s33, 9", "s_add_u32 s56, s56, s33",
        f"s_and_b32 s33, s{sCS}, 1", "s_lshl_b32 s33, s33, 3", "s_add_u32 s56, s56, s33", f"s_lshl_b32 s33, s{sW}, 7", "s_add_u32 s56, s56, s33")

def red_writes(k, acc, g, off, dAB):
    return [lambda q=q: k.ds(f"ds_write_b128 v{R_W1 if (q>>1)&1 else R_W0}, {vr(acc+4*q,4)} offset:{off + (q>>2)*dAB*16384 + (q&3)*1024}", ("rw", g)) for q in range(8)]
def red_reads(k, g, T, off):
    return [lambda w=w, hf=hf: k.ds(f"ds_read_b128 {vr(T+8*w+4*hf,4)}, v{R_RD} offset:{off + w*4096 + hf*512}", ("rr", g, w)) for w in range(4) for hf in range(2)]

def red_finish(k, fx, g, mm, T, xdst, stdst, final, pk):
    a = lambda txt, c=1: fx.add(lambda: k.e(txt), c)
    R = RES + 4 * mm
    def add8(d, s):
        if pk:
            for i in range(0, 8, 2): a(f"v_pk_add_f32 {vr(d+i,2)}, {vr(d+i,2)}, {vr(s+i,2)}")
        else:
            for i in range(8): a(f"v_add_f32 v{d+i}, v{d+i}, v{s+i}")
    fx.add(lambda: k.wait(lg=[("rr", g, 1)]))
    add8(T, T + 8)
    for i in range(4): a(f"v_lshlrev_b32 v{T+8+2*i}, 16, v{R+i}"); a(f"v_and_b32 v{T+9+2*i}, 0xffff0000, v{R+i}")
    add8(T, T + 8)
    fx.add(lambda: k.wait(lg=[("rr", g, 3)]))
    add8(T + 16, T + 24); add8(T, T + 16)
    for i in range(4): a(f"v_cvt_pk_bf16_f32 v{R+i}, v{T+2*i}, v{T+2*i+1}")
    if final:
        fx.add(lambda: (k.e(f"s_add_u32 s32, s57, {mm*32768}"), k.vm(f"buffer_store_dwordx4 {vr(R,4)}, v{R_OUT}, {SRD_OUT}, s32 offen {P.outm}", ("xst", g))))
        return
    fx.add(lambda: (k.e(f"s_add_u32 s32, s55, {xdst + mm*32768}"), k.dstore(f"buffer_store_dwordx4 {vr(R,4)}, v{vL16}, {SRD_WS}, s32 offen", ("xst", g))), 2)
    s, q = T + 32, T + 33
    a(f"v_add_f32 v{s}, v{T}, v{T+1}"); a(f"v_mul_f32 v{q}, v{T}, v{T}"); a(f"v_fmac_f32 v{q}, v{T+1}, v{T+1}")
    for i in range(2, 8): a(f"v_add_f32 v{s}, v{s}, v{T+i}"); a(f"v_fmac_f32 v{q}, v{T+i}, v{T+i}")
    fx.skip(1)
    a(f"v_add_f32_dpp v{s}, v{s}, v{s} row_ror:8 row_mask:0xf bank_mask:0xf"); a(f"v_add_f32_dpp v{q}, v{q}, v{q} row_ror:8 row_mask:0xf bank_mask:0xf")
    fx.skip(1)
    a(f"v_permlane16_swap_b32 v{s}, v{q}", 2); a(f"v_add_f32 v{s}, v{s}, v{q}"); a(f"v_mov_b32 v{q}, v{s}"); fx.skip(1)
    a(f"v_permlane32_swap_b32 v{s}, v{q}", 2); a(f"v_add_f32 v{s}, v{s}, v{q}")
    fx.add(lambda: (k.e(f"s_add_u32 s32, s56, {stdst + mm*2048}"), k.dstore(f"buffer_store_dword v{s}, v{R_ST}, {SRD_WS}, s32 offen", ("xst", g)), k.mark(("xst", g))), 2)

def merge(k, fx, extra, first=0):
    extra = list(extra)
    items = [it for it in fx.items if it[0] != "skip"]; fx.items = []
    per = max(1, (len(items) - first) // max(1, len(extra)))
    for n, it in enumerate(items):
        if n >= first and (n - first) % per == 0 and extra: extra.pop(0)()
        it[1](); k.bg_step()
    for f in extra: f(); k.bg_step()

def wo(k, layer):
    BF, WQ, ACC, T, PA, NQ = 32, 160, 192, 208, A_PA, 8
    state = {}
    def bload(sx):
        k.set_s(f"s_add_u32 s58, s59, {(sx & ~1)*2048}")
        k.vm(f"buffer_load_dwordx4 {vr(BF+4*sx,4)}, v{W_OA}, {SRD_WS}, s58 offen offset:{(sx%2)*2048} sc1", ("b", sx))
    def wread(n): k.ds(f"ds_read_b128 {vr(WQ+4*(n%NQ),4)}, v{W_RB} offset:{n*1024}", ("wq", n))
    k.wait(vm=["wow"]); k.e("s_barrier"); k.mark("wobar")
    for n in range(NQ): wread(n)
    btxt = lambda sx: [f"s_add_u32 s99, s59, {sx*2048}", f"buffer_load_dwordx4 {vr(BF+4*sx,4)}, v{W_OA}, {SRD_WS}, s99 offen sc1"]
    bchk = lambda sx: k.valid([f"v_cmp_eq_u32 vcc, -1, v{BF+4*sx}"], btxt(sx))
    ptxt = f"buffer_load_dword v{T+20}, v{T+21}, {SRD_WS}, s59 offen sc1"
    if P.tags:
        k.e(f"v_lshlrev_b32 v{T+21}, 8, v{PA}")
        k.e(f"v_or_b32 v{T+21}, v{T+21}, v{PA}", f"v_and_b32 v{T+21}, 0x80007c00, v{T+21}")
        k.poll_check(PA, "po1", 1)
        k.vm(ptxt, "probe")
        for sx in range(P.wo_spec): bload(sx)
        k.e(f"s_lshl_b32 s32, s{sC}, 1", f"s_and_b32 s33, s{sW}, 1", "s_add_u32 s32, s32, s33", "s_lshl_b32 s32, s32, 7", f"s_add_u32 s{sPO}, s32, {fl(layer, FL_O)}")
    else:
        k.e(f"s_add_u32 s{sFO}, s66, {fl(layer, FL_X1)}")
        k.e(f"s_cmp_lt_u32 s{sW}, 2", f"s_cbranch_scc1 L_wo_late{layer}")
        q0 = list(k.vmq)
        k.poll_check(PA, "po1", 1)
        for sx in range(P.wo_lead): bload(sx)
        k.wait(vm=[("ost", 0)]); k.flag(2, 89)
        k.e(f"s_branch L_wo_join{layer}")
        k.label(f"L_wo_late{layer}")
        k.vmq = list(q0)
        k.wait(vm=[("ost", 0)]); k.flag(2, 89)
        k.poll_issue(PA, "po2"); k.poll_check(PA, "po2", 2)
        for sx in range(P.wo_lead): bload(sx)
        k.label(f"L_wo_join{layer}")
    gu_setup(k, layer)
    k.stamp("wo issued")
    mains = []; fixed = {}
    for n in range(64):
        sx, j = divmod(n, 4)
        mains.append(lambda n=n, sx=sx, j=j: k.e(f"{MF16} {vr(ACC+4*j,4)}, {vr(WQ+4*(n%NQ),4)}, {vr(BF+4*sx,4)}, {'0' if sx == 0 else vr(ACC+4*j,4)}"))
        fl_ = fixed.setdefault(n, [])
        if n < 63: fl_.append((0, lambda n=n: k.wait(vm=[("b", (n + 1) // 4)] if (n + 1) % 4 == 0 else None, lg=[("wq", n + 1)])))
        if P.tags and n < 63 and (n + 1) % 4 == 0: fl_.append((1, lambda n=n: bchk((n + 1) // 4)))
        if P.tags and n == 42: fl_.append((1, lambda: k.poll_issue(PA, "px1")))
        if n + NQ < 64: fl_.append((1, lambda n=n: wread(n + NQ)))
        if n % P.wo_bstep == 0 and P.wo_lead + n // P.wo_bstep < 16: fl_.append((1, lambda n=n: bload(P.wo_lead + n // P.wo_bstep)))
    fx = Flex()
    a = lambda txt, c=1, at=0: fx.add(lambda: k.e(txt), c, at)
    fx.add(lambda: k.wait(vm=["res"]), 1, 8)
    for i in range(8): a(f"v_lshlrev_b32 v{T+2*i}, 16, v{RES+i}"); a(f"v_and_b32 v{T+2*i+1}, 0xffff0000, v{RES+i}")
    k.per = dict(P.per_wo[layer]); k.bg_held = False; k.bg_next = k.t + P.wo_bg_delay
    if P.tags:
        k.wait(vm=["probe"])
        k.valid([f"v_cmp_eq_u32 vcc, -1, v{T+20}"], [ptxt] + sum([btxt(x) for x in range(P.wo_spec)], []))
        state["fresh"] = True
        for sx in range(P.wo_spec, P.wo_lead): bload(sx)
    k.wait(vm=[("b", 0)], lg=[("wq", 0)])
    if P.tags: bchk(0)
    k.stamp("wo first")
    fixed[P.wo_bg_stop].append((0, lambda: setattr(k, "bg_held", True)))
    run_gaps(k, mains, fixed, [fx], 2)
    drain([fx], k)
    k.stamp("wo gemm")
    for i in range(0, 16, 2): k.e(f"v_pk_add_f32 {vr(T+i,2)}, {vr(T+i,2)}, {vr(ACC+i,2)}")
    k.e(f"s_add_u32 s58, s64, {BX1[layer]}")
    for p in range(2):
        for i in range(4): k.e(f"v_cvt_pk_bf16_f32 v{RES+4*p+i}, v{T+8*p+2*i}, v{T+8*p+2*i+1}")
        k.dstore(f"buffer_store_dwordx4 {vr(RES+4*p,4)}, v{W_UA}, {SRD_WS}, s58 offen offset:{p*512}", "xst")
    S, Q = T + 16, T + 18
    k.e(f"v_pk_add_f32 {vr(S,2)}, {vr(T,2)}, {vr(T+2,2)}", f"v_pk_mul_f32 {vr(Q,2)}, {vr(T,2)}, {vr(T,2)}", f"v_pk_fma_f32 {vr(Q,2)}, {vr(T+2,2)}, {vr(T+2,2)}, {vr(Q,2)}")
    for i in range(4, 16, 2): k.e(f"v_pk_add_f32 {vr(S,2)}, {vr(S,2)}, {vr(T+i,2)}", f"v_pk_fma_f32 {vr(Q,2)}, {vr(T+i,2)}, {vr(T+i,2)}, {vr(Q,2)}")
    k.e(f"v_add_f32 v{S}, v{S}, v{S+1}", f"v_add_f32 v{Q}, v{Q}, v{Q+1}", f"s_add_u32 s58, s65, {BS1[layer]}",
        f"v_permlane16_swap_b32 v{S}, v{Q}", f"v_add_f32 v{S}, v{S}, v{Q}", f"v_mov_b32 v{Q}, v{S}", f"v_permlane32_swap_b32 v{S}, v{Q}", f"v_add_f32 v{S}, v{S}, v{Q}")
    k.dstore(f"buffer_store_dword v{S}, v{W_SA}, {SRD_WS}, s58 offen", "xst")
    key = lambda it: it[2][1] if isinstance(it[2], tuple) else 11.5
    k.bg.sort(key=key)
    print(f"wo{layer} done, background left:", [it[2] for it in k.bg][::4])
    k.bg_burst(P.wo_win[layer])
    k.stamp("wo end")
P.wo_bg_delay = 200; P.wo_bg_stop = 56; P.wo_lead = 6; P.wo_spec = 3; P.gu_spec = 3; P.wo_bstep = 2
P.wo_poll_gap = 1; P.wo_late_gap = 7; P.wo_hold = True; P.wo_win = [4, 4]; P.wo_var = 'B'; P.wo_prew = 2
P.per_wo = [{"s2": 35, "s4": 35}] * 2

G_RB, G_C1, G_VV, G_AUG, G_X, G_ACC, G_WF, G_T = 3, 6, 7, 28, 32, 160, 224, 240
D_WV, D_BF, D_ACC, D_T, D_WF, D_RB, D_PA = 32, 64, 128, 192, 228, 112, 115
def gu_setup(k, layer):
    T = G_T; XA = T + 3
    k.e(*gu_tile("s50"))
    k.e(f"v_and_b32 v{T}, 31, v1")
    k.e(f"v_mov_b32 v{G_RB}, v{vL16}", f"v_add_u32 v{G_RB+1}, 0x10000, v{vL16}", f"v_add_u32 v{G_RB+2}, 0x20000, v{vL16}")
    k.e(f"v_lshrrev_b32 v{T+1}, 5, v1", f"v_lshlrev_b32 v{G_AUG+3}, 4, v{T}", f"v_lshl_add_u32 v{G_AUG+3}, v{T+1}, 10, v{G_AUG+3}")
    k.e(f"v_lshrrev_b32 v{XA}, 3, v{T}", f"v_lshlrev_b32 v{XA}, 13, v{XA}", f"v_lshl_add_u32 v{XA}, v{T+1}, 7, v{XA}",
        f"v_and_b32 v{T}, 7, v1", f"v_lshl_add_u32 v{XA}, v{T}, 4, v{XA}")
    k.e("s_lshl_b32 s32, s50, 11", f"s_add_u32 s51, s32, {BS1[layer]}")
    k.e("s_lshl_b32 s32, s50, 15", f"s_add_u32 s52, s32, {BX1[layer]}", "s_add_u32 s53, s52, 4096")
    k.e(*h_base("s54", layer))
    k.e("s_lshr_b32 s32, s50, 1", "s_lshl_b32 s32, s32, 4", f"s_add_u32 s32, s32, s{sM}",
        "s_lshl_b32 s32, s32, 1", "s_and_b32 s33, s50, 1", "s_add_u32 s32, s32, s33", "s_lshl_b32 s32, s32, 2", f"s_add_u32 s81, s32, {fl(layer, FL_H)}")

def gu(k, layer):
    T = G_T; XA = T + 3; PA = T + 2
    if P.tags: k.poll_check(A_PA, "px1", 1)
    else:
        k.poll_addr(PA, 16)
        k.e("s_lshl_b32 s32, s50, 6", f"s_add_u32 s{sPO}, s32, {fl(layer, FL_X1)}")
        k.wait(vm=["xst"]); k.flag(1)
        k.stamp("x1 flag")
        k.poll_issue(PA, "px1")
    k.e(f"s_mov_b32 s{sFO}, s81")
    seq = [(t, ks) for ks in range(33) for t in range(3)] + [(t, ks) for t in range(3, 7) for ks in range(33)]
    accof = {0: 0, 1: 1, 2: 2, 3: 3, 4: 0, 5: 1, 6: 2}
    NW = P.gu_nw
    WQ = [G_WF, G_WF + 4, G_WF + 8, G_WF + 12, T + 12]
    def wread(n):
        slot = (n % 160) * 1024
        k.ds(f"ds_read_b128 {vr(WQ[n%NW],4)}, v{G_RB + (slot>>16)} offset:{slot & 0xffff}", ("wf", n))
    if not P.tags: k.poll_check(PA, "px1", 1)
    k.stamp("gu go")
    xtxt = lambda kg: f"buffer_load_dwordx4 {vr(G_X+4*kg,4)}, v{XA}, {SRD_WS}, s{52 + (kg>>4)} offen offset:{((kg>>2)&3)*1024 + (kg&3)*256} sc1"
    def xload(kg): k.vm(xtxt(kg), ("gx", kg))
    xchk = lambda kg: k.valid([f"v_cmp_eq_u32 vcc, -1, v{G_X+4*kg}"], [xtxt(kg)])
    stxt = [f"buffer_load_dwordx4 {vr(T+4+4*h,4)}, v{G_AUG+3}, {SRD_WS}, s51 offen offset:{512*h} sc1" for h in range(2)]
    if P.tags:
        for t_ in stxt: k.vm(t_, "gst")
        for kg in range(P.gu_spec): xload(kg)
        k.wait(vm=["gst"])
        k.valid([f"v_max3_u32 v{T}, v{T+4}, v{T+6}, v{T+8}", f"v_max_u32 v{T}, v{T}, v{T+10}", f"v_cmp_eq_u32 vcc, -1, v{T}"],
                stxt + [xtxt(x) for x in range(P.gu_spec)])
        k.stamp("gu probe")
        for kg in range(P.gu_spec, P.gu_lead): xload(kg)
    else:
        for kg in range(P.gu_lead): xload(kg)
        for t_ in stxt: k.vm(t_, "gst")
    k.wait(vm=[("gw", 0)]); k.e("s_barrier"); k.mark("gubar")
    for n in range(NW): wread(n)
    mains = []; fixed = {}
    xpos = {}
    for kg in range(P.gu_lead, 32): xpos.setdefault(int((kg - P.gu_lead) * P.gu_xstep), []).append(kg)
    for n, (t, ks) in enumerate(seq):
        acc = G_ACC + 16 * accof[t]
        b = vr(G_AUG, 4) if ks == 32 else vr(G_X + 4*ks, 4)
        c = "0" if ks == 0 else vr(acc, 16)
        mains.append(lambda n=n, acc=acc, b=b, c=c: k.e(f"{MF32} {vr(acc,16)}, {vr(WQ[n%NW],4)}, {b}, {c}"))
        fl_ = fixed.setdefault(n, [])
        if n + 1 < len(seq):
            t2, ks2 = seq[n + 1]
            need = [("gx", ks2)] if (t2 == 0 and ks2 < 32) else None
            fl_.append((0, lambda n=n, need=need: k.wait(vm=need, lg=[("wf", n + 1)])))
            if need and P.tags: fl_.append((2, lambda ks2=ks2: xchk(ks2)))
        j = n + NW
        if j < len(seq):
            if j % 16 == 0:
                fl_.append((2, lambda bi=j//16: (k.wait(vm=[("gw", bi)]), k.e("s_barrier" if not P.x_nobar else "s_nop 0"), k.mark(("gbar", bi)))))
            fl_.append((1, lambda j=j: wread(j)))
        for kg in xpos.get(n, []): fl_.append((1, lambda kg=kg: xload(kg)))
    xend = max(xpos)
    tail = [it for it in k.bg if it[2] == "dna"]; k.bg = [it for it in k.bg if it[2] != "dna"]
    bg_batches(k, [10, 11], "s2", lambda b: ("gbar", b - 8))
    mid = []
    for b in (12, 13, 14):
        for f in batch(k, b): mid.append((f, "s2", ("gw", b), ("gbar", b - 8)))
    while mid or tail:
        if mid: k.bg.append(mid.pop(0))
        if tail: k.bg.append(tail.pop(0))
    bg_batches(k, range(15, 23), "s4", lambda b: ("gbar", b - 8))
    k.per = dict(P.per_guA[layer]); k.bg_held = False; k.bg_next = k.t + P.gu_bg_delay
    fixed[xend].append((0, lambda: setattr(k, "per", dict(P.per_guB[layer]))))
    fv = Flex()
    for j, f in enumerate(regloads(k, sDS, 48*1024, lambda j: vr(D_WV + 4*j, 4), 8, "dnv", tmp=50)): fv.add(f, 1, 198 + 2 + 3*j)
    fx = Flex()
    a = lambda txt, c=1, at=0: fx.add(lambda: k.e(txt), c, at)
    fx.add(lambda: k.wait(vm=["gst"]), 1, 3 * P.gu_lead)
    a(f"v_add_f32 v{T+4}, v{T+4}, v{T+6}"); a(f"v_add_f32 v{T+5}, v{T+5}, v{T+7}"); a(f"v_add_f32 v{T+8}, v{T+8}, v{T+10}"); a(f"v_add_f32 v{T+9}, v{T+9}, v{T+11}")
    a(f"v_add_f32 v{T+4}, v{T+4}, v{T+8}"); a(f"v_add_f32 v{T+5}, v{T+5}, v{T+9}"); fx.skip(1)
    a(f"v_permlane32_swap_b32 v{T+4}, v{T+5}", 2); a(f"v_add_f32 v{T+4}, v{T+4}, v{T+5}"); a(f"v_mov_b32 v{T+5}, v{T+4}"); fx.skip(1)
    a(f"v_permlane32_swap_b32 v{T+4}, v{T+5}", 2)
    ln_finish(a, T + 4, T + 5)
    a(f"v_mov_b32 v{G_VV}, v{T+5}")
    a(f"v_rsq_f32 v{G_C1}, v{T+5}", 2); a(f"v_cvt_pk_bf16_f32 v{G_AUG}, v{T+4}, v{T+4}"); a(f"v_mul_f32 v{G_C1}, {f2u(-LOG2E):#x}, v{G_C1}")
    a(f"v_and_b32 v{T+5}, 0xffff0000, v{G_AUG}"); a(f"v_sub_f32 v{T+5}, v{T+4}, v{T+5}"); a(f"v_mov_b32 v{G_AUG+2}, 0")
    a(f"v_cvt_pk_bf16_f32 v{G_AUG+1}, v{T+5}, v{G_AUG+2}"); a(f"v_mov_b32 v{G_AUG+3}, 0")
    fx.add(lambda: k.mark("aug"), 0)
    def epi(t, at):
        acc = G_ACC + 16 * accof[t]; hp = T + 8; E = T + 4
        if P.x_noepi: a("s_nop 0", 1, at)
        for i0 in range(0, 8 if not P.x_noepi else 0, 2):
            for i in (i0, i0 + 1): a(f"v_mul_f32 v{E+(i&1)}, v{G_C1}, v{acc+i}", 1, at)
            for i in (i0, i0 + 1): a(f"v_exp_f32 v{E+(i&1)}, v{E+(i&1)}", 2)
            for i in (i0, i0 + 1): a(f"v_mul_f32 v{E+2+(i&1)}, v{acc+i}, v{acc+8+i}")
            for i in (i0, i0 + 1): a(f"v_fma_f32 v{E+(i&1)}, v{E+(i&1)}, v{G_VV}, v{G_VV}")
            for i in (i0, i0 + 1): a(f"v_rcp_f32 v{E+(i&1)}, v{E+(i&1)}", 2)
            fx.skip(1)
            for i in (i0, i0 + 1): a(f"v_mul_f32 v{E+2+(i&1)}, v{E+2+(i&1)}, v{E+(i&1)}")
            a(f"v_cvt_pk_bf16_f32 v{hp+i0//2}, v{E+2}, v{E+3}")
        fx.add(lambda: k.mark(("epi", t)), 0)
        if t == 4: a("s_add_u32 s54, s54, 4096")
        fx.add(lambda: ((k.dstore if ((layer and P.h1_plain) or (not layer and P.h_touch0)) else lambda x, tg: k.vm(x + " sc1", tg))(f"buffer_store_dwordx4 {vr(hp,4)}, v{vL16}, {SRD_WS}, s54 offen offset:{(t%4)*1024}", ("hst", t)), k.mark(("hst", t))), 2)
    end = {t: max(n for n, x in enumerate(seq) if x[0] == t) for t in range(7)}
    for t in range(6): epi(t, end[t] + 3)
    if layer == 0 and P.h_touch0 == "g": fixed[xend + 1].append((5, lambda: k.touch(T, "h", ["s_mov_b32 s32, s54"])))
    ff = Flex(); ff.dep(("hst", 3))
    if layer == 0:
        ff.add(lambda: k.touch(T, "p", [f"s_add_u32 s32, s55, {WS_X[1]}"]), 6)
        ff.add(lambda: k.touch(T + 1, "s", [f"s_add_u32 s32, s56, {WS_ST[1]}"]), 4)
        if "g" in str(P.touch1):
            for f in touch_next(k, T + 2)[:2]: ff.skip(1); ff.add(f, 6)
    ff.skip(P.gu_flag_delay)
    ff.add(lambda: (k.wait(vm=[("hst", 3)]), k.flag(1)), 3)
    def hpoll():
        k.wait(vm=["touch"] if "touch" in k.seen else None)
        k.poll_addr(T, 8)
        k.e(f"s_lshl_b32 s32, s{sB}, 7", f"s_lshl_b32 s33, s{sW}, 5", "s_add_u32 s32, s32, s33", f"s_add_u32 s{sPO}, s32, {fl(layer, FL_H)}")
        k.poll_issue(T, "ph1")
    ff.add(hpoll, 4, 228)
    k.wait(vm=[("gx", 0)], lg=[("wf", 0)])
    if P.tags: xchk(0)
    k.stamp("gu first")
    if k.stamping:
        for g in (48, 98, 131, 164, 197): fixed[g].append((0, lambda g=g: k.stamp(f"gu m{g}")))
    fixed[93].append((0, lambda: k.marks["aug"]))
    run_gaps(k, mains, fixed, [fv, ff, fx], P.gu_cap)
    print("gu left:", len(k.bg), len(fv), len(ff), len(fx), {n: g for n, g in k.marks.items() if isinstance(n, tuple) and n[0] == "hst"})
    k.stamp("gu gemm")
    for g, t in {132: 0, 165: 1, 198: 2}.items(): assert k.marks[("epi", t)] < g, "accumulator reused too early"
    epi(6, 0); drain([ff, fv, fx], k)
    k.e(f"v_mov_b32 v{D_PA}, v{T}")
    k.stamp("gu end")
P.gu_flag_delay = 10; P.gu_xstep = 2.6; P.gu_bg_delay = 300
P.per_guA = [{"s2": 120, "s4": 120}, {"s2": 160, "s4": 160}]
P.per_guB = [{"s2": 90, "s4": 55}] * 2

def dn(k, layer):
    final = layer == 1
    NB = P.dn_lead; T = D_T
    groups = [1, 0]
    k.e(f"s_mul_i32 s32, s{sB}, {224*KB}", f"s_mul_i32 s33, s{sW}, {28*KB}", "s_add_u32 s32, s32, s33", f"s_add_u32 s59, s32, {BH[layer]}")
    seq = [(g, e) for g in range(2) for e in range(28)]
    state = {"base": None}
    def bload(i):
        g, e = seq[i]; off = groups[g] * 112 * KB + KK_OF[e] * 1024
        if state["base"] is None or not (0 <= off - state["base"] < 4096):
            state["base"] = off; k.e(f"s_add_u32 s58, s59, {off}")
        k.vm(f"buffer_load_dwordx4 {vr(D_BF+4*(i%NB),4)}, v{vL16}, {SRD_WS}, s58 offen offset:{off - state['base']} sc1", ("b", i))
    k.poll_check(D_PA, "ph1", 1)
    k.stamp("dn early")
    k.bg_held = True
    for i in range(P.dn_pre): bload(i)
    red_setup(k, 3, 1)
    k.e(f"v_add_u32 v{D_RB}, s{sGL}, v{vL16}", f"v_add_u32 v{D_RB+1}, 0x10000, v{D_RB}", f"v_add_u32 v{D_RB+2}, 0x20000, v{D_RB}")
    k.wait(vm=[("hst", 6)]); k.flag(2)
    k.poll_issue(D_PA, "ph2")
    for i in range(P.dn_pre, NB): bload(i)
    k.e(f"s_add_u32 s{sFO}, s89, {FL_X2 - FL_O}")
    k.per = dict(P.per_dn0); k.bg_held = False
    lds = [(i, nn) for i, (g, e) in enumerate(seq) if 8 <= e < 24 for nn in range(2)]
    slot_of = {x: n for n, x in enumerate(lds)}
    NWF = 6
    def wread(n):
        i, nn = lds[n]; j = 2 * (seq[i][1] - 8) + nn; b = 15 + (j >> 2)
        ad = (b % 10) * 16384 + (j & 3) * 1024
        if seq[i][0] == 0: k.wait(vm=[("gw", b)])
        k.ds(f"ds_read_b128 {vr(D_WF+4*(n%NWF),4)}, v{D_RB + (ad>>16)} offset:{ad & 0xffff}", ("wf", n))
    def wfrag(i, nn):
        e = seq[i][1]
        if e < 8: return ar(192 + 8*e + 4*nn, 4)
        if e >= 24: return vr(D_WV + 8*(e - 24) + 4*nn, 4)
        return vr(D_WF + 4*(slot_of[(i, nn)] % NWF), 4)
    mains = []; fixed = {}
    NT = P.dn_tail
    assert NT <= 4
    order = [(i, nn) for i in range(56 - NT) for nn in range(2)] + [(i, nn) for nn in range(2) for i in range(56 - NT, 56)]
    for pos, (i, nn) in enumerate(order):
        g, e = seq[i]
        if True:
            acc = D_ACC + 32 * g + 16 * nn
            mains.append(lambda i=i, nn=nn, acc=acc, e=e: k.e(f"{MF32} {vr(acc,16)}, {wfrag(i,nn)}, {vr(D_BF+4*(i%NB),4)}, {'0' if e == 0 else vr(acc,16)}"))
            gp = len(mains) - 1; fl_ = fixed.setdefault(gp, [])
            nx = order[pos + 1] if pos + 1 < len(order) else None
            vmn = [("b", nx[0])] if (nx and nx[1] == 0) else None
            lgn = [("wf", slot_of[nx])] if nx in slot_of else None
            if nx == (24, 0): vmn = vmn + ["dnv"]
            fl_.append((0, lambda vmn=vmn, lgn=lgn: k.wait(vm=vmn, lg=lgn)))
            ah = (i + 2, nn)
            if ah in slot_of: fl_.append((1, lambda n=slot_of[ah]: wread(n)))
    nxt = NB; pend = 0
    for i in range(len(seq)):
        fl_ = fixed[2*i + 1]
        if i == P.dn_late: fl_.append((2, lambda: (k.poll_check(D_PA, "ph2", 2), k.stamp("dn late"), k.mark("late"))))
        n = 0
        while nxt < len(seq) and nxt <= i + NB and n < 2 and (nxt < 16 or i >= P.dn_late):
            fl_.append((1, lambda j=nxt: bload(j))); nxt += 1; n += 1
        if nxt == len(seq) and not pend: pend = 2*i + 2
    fixed[20].append((1, lambda: k.e("s_barrier")))
    for mm in range(2):
        fixed[40 + 4*mm].append((2, lambda mm=mm: (k.e(f"s_add_u32 s32, s55, {BX1[layer] + mm*32768}"),
                                                   k.vm(f"buffer_load_dwordx4 {vr(RES+4*mm,4)}, v{vL16}, {SRD_WS}, s32 offen sc1", "res"))))
    fw = Flex(); fs = Flex()
    for q, f in enumerate(red_writes(k, D_ACC, 0, 0, 1)): fw.add(f, 1, 58 + 2*q)
    fw.add(lambda: (k.wait(lg=[("rw", 0)]), k.e("s_barrier")), 2, 76)
    for f in red_reads(k, 0, T, 0): fw.add(f, 2)
    fw.add(lambda: k.wait(vm=["res"]))
    red_finish(k, fw, 0, groups[0], T, WS_X[1], WS_ST[1], final, False)
    if not final:
        fw.add(lambda: k.vm(f"buffer_store_dwordx4 {vr(RES+4,4)}, v{vL16}, {SRD_WS}, s72 offen sc1", "hxs"))
        fw.add(lambda: k.vm(f"buffer_store_dword v{T+32}, v{R_ST}, {SRD_WS}, s73 offen sc1", "hxs"))
        fw.skip(P.dn_flag_delay); fw.add(lambda: (k.wait(vm=[("xst", 0)]), k.flag(1)), 3)
        if "d" in str(P.touch1):
            for q, f in enumerate(touch_next(k, 28)): fixed[P.dn_touch + 2*q].append((5, f))
        fs.dep("late")
        for f in a11_bases(k) + a1_setup(k, 1): fs.add(f)
        fs.add(lambda: (k.poll_addr(A_PX, 32), k.e(f"s_lshl_b32 s32, s{sB}, 7", f"s_add_u32 s{sPO}, s32, {fl(0, FL_X2)}")), 4)
    wtail = red_writes(k, D_ACC + 32, 1, 2*16384, 1)
    if NT:
        for q in range(min(4, NT)): fixed[min(111, 112 - NT + 1 + q)].append((4, wtail.pop(0)))
    k.wait(vm=["dna", ("b", 0)])
    k.stamp("dn first")
    if k.stamping: fixed[55].append((0, lambda: k.stamp("dn p1")))
    run_gaps(k, mains, fixed, [fw, fs], 6)
    print("dn left:", len(k.bg), len(fw), len(fs), "last h load at gap", pend)
    k.stamp("dn gemm")
    assert not fs.items
    ws = wtail
    if not final: ws.insert(len(ws) - 4, lambda: k.poll_issue(A_PX, "px0"))
    merge(k, fw, ws)
    k.wait(lg=[("rw", 1)]); k.e("s_barrier")
    k.stamp("dn red")
    for f in red_reads(k, 1, T, 2*16384): f()
    if not final:
        k.bg_held = True
        k.poll_check(A_PX, "px0", 1)
        k.wait(vm=["hxs"]); k.flag(1, 91, "sc1")
        a11_early(k)
    f1 = Flex(); red_finish(k, f1, 1, groups[1], T, WS_X[1], WS_ST[1], final, True); drain([f1], k)
    k.stamp("dn end")
P.dn_tail = 0; P.dn_touch = 88; P.dn_flag_delay = 4; P.dn_pre = 8; P.dn_late = 7
P.dn_wow = 6; P.per_dn = {"s4": 110, "s2": 130}; P.per_dn0 = {"s4": 60, "s2": 60}

def build(stamps=False, only=None):
    k = F(); k.stamping = stamps; k.only = only; k.st = P.dst; k.rt = P.rt
    name = NAME + "_kernel"
    k.e(".p2align 8", f".globl {name}", f".type {name},@function"); k.label(name)
    if stamps: k.e("s_memrealtime s[92:93]", "s_memtime s[94:95]")
    k.e("s_cmp_ge_u32 s2, 256", "s_cbranch_scc1 L_end")
    k.e("s_load_dwordx16 s[64:79], s[0:1], 0", "s_load_dwordx4 s[80:83], s[0:1], 64", "s_memrealtime s[96:97]")
    k.e("s_getpc_b64 s[100:101]")
    k.e("L_pc: ;np")
    k.e("s_mov_b32 s24, s100", "s_mov_b32 s25, s101", "s_mov_b32 s26, L_end-L_pc", "s_mov_b32 s27, 0x20000",
        "v_and_b32 v1, 63, v0", "v_lshrrev_b32 v2, 6, v0", "s_lshr_b32 s33, s2, 3", "s_mul_i32 s32, s33, 43", "s_lshr_b32 s32, s32, 8",
        "s_mul_i32 s32, s32, 6", "s_sub_u32 s32, s33, s32", "s_lshl_b32 s32, s32, 13", "v_lshlrev_b32 v3, 11, v2", "v_lshl_add_u32 v3, v1, 7, v3",
        f"v_mov_b32 v4, {OOB:#x}", "v_cmp_gt_u32 vcc, 16, v1", f"v_readfirstlane_b32 s{sW}, v2", "v_cndmask_b32 v3, v4, v3, vcc")
    if P.code0: k.vm(f"buffer_load_dword v175, v3, {SRD_PK}, s32 offen", "code")
    k.e("s_and_b32 s32, s2, 7", f"s_and_b32 s{sM}, s33, 15", "s_lshr_b32 s33, s33, 4", "s_lshl_b32 s32, s32, 1", f"s_add_u32 s{sC}, s32, s33")
    k.e(f"s_lshr_b32 s33, s{sM}, 3", f"s_lshl_b32 s{sB}, s{sC}, 1", f"s_add_u32 s{sB}, s{sB}, s33", f"s_and_b32 s{sCS}, s{sM}, 7")
    k.e("v_lshlrev_b32 v2, 4, v1")
    a10_lanes(k)
    k.e("s_waitcnt lgkmcnt(0)")
    srd(k, 12, 64, 2048 * 1024); srd(k, 16, 66, 512 * 3072)
    k.e(f"s_or_b32 s{sTAG}, s96, 1")
    if stamps:
        k.stamps += ["rt0", "start"]; k.e("v_writelane_b32 v0, s92, 0", f"v_writelane_b32 v0, s{92 if P.rt else 94}, 1")
    k.stamp("s kernarg")
    pack_issue(k)
    k.stamp("s pkissue")
    run(a10_x(k, 0) + a10_w(k, 0))
    srd(k, 28, 80, 256)
    k.e("v_cmp_eq_u32 vcc, 0, v1", f"v_mov_b32 v{vFA}, {OOB:#x}", f"s_or_b32 s32, s2, s{sW}", f"v_cndmask_b32_e64 v{vFA}, v{vFA}, 0, vcc",
        "s_cmp_eq_u32 s32, 0", f"s_cselect_b32 s32, 0, {OOB>>1:#x}", f"v_mov_b32 v170, s{sTAG}")
    k.vm(f"buffer_store_dword v170, v{vFA}, {SRD_DBG}, s32 offen sc1", "tagst")
    srd(k, 8, 82, WS_SIZE); srd(k, 20, 78, 2048 * 1024)
    for f in a1_setup(k, 0): f()
    o_bases(k, 0)
    a10_lanes2(k)
    k.e(f"v_mov_b32 v60, {OOB:#x}", "v_cmp_gt_u32 vcc, 8, v1", "v_mov_b32 v176, 0", "v_mov_b32 v177, 0", "v_mov_b32 v178, 0", "v_mov_b32 v179, 0",
        f"v_cndmask_b32 v173, v60, v{vL16}, vcc", "v_cmp_gt_u32 vcc, 16, v1", f"s_getreg_b32 s{sXCC}, hwreg(HW_REG_XCC_ID, 0, 4)",
        f"s_lshl_b32 s32, s{sC}, 4", f"v_cndmask_b32 v172, v60, v{vL16}, vcc")
    k.e(f"s_add_u32 s32, s32, s{sM}", "s_lshl_b32 s32, s32, 4",
        f"s_cmp_eq_u32 s{sW}, 0", f"s_cselect_b32 s32, s32, {OOB>>1:#x}", f"v_add_u32 v171, s32, v{vFA}", f"s_mov_b32 s{sBUD}, 400000",
        f"s_mov_b32 s75, {WS_ARR}", f"s_lshl_b32 s77, s{sC}, 8", "s_add_u32 s77, s77, s75")
    red_bases(k)
    k.e(f"s_lshl_b32 s{sGL}, s{sW}, 12", f"s_mul_i32 s{sGS}, s{sM}, {PGU_SLICE}", f"s_add_u32 s{sGS}, s{sGS}, s{sGL}", f"s_add_u32 s{sGS}, s{sGS}, {WS_PGU}")
    k.e(f"s_mul_i32 s32, s{sCS}, {224*KB}", f"s_mul_i32 s33, s{sW}, {56*KB}", "s_add_u32 s32, s32, s33", f"s_add_u32 s{sDS}, s32, {WS_PDN}")
    k.e(f"s_lshl_b32 s32, s{sCS}, 16", f"s_add_u32 s32, s32, s{sGL}", f"s_add_u32 s88, s32, {WS_PWO}")
    wo_bases(k)
    k.stamp("s setup")
    run(a10_w(k, 1))
    k.stamp("s w01")
    def mid2():
        run(a10_w(k, 3))
        k.e("s_lshl_b32 s32, s2, 7")
        k.vm(f"buffer_store_dwordx4 v[176:179], v173, {SRD_WS}, s32 offen sc1", "zero")
        k.e("s_lshl_b32 s32, s2, 8", f"s_add_u32 s32, s32, {WS_HXF}")
        k.vm(f"buffer_store_dwordx4 v[176:179], v172, {SRD_WS}, s32 offen sc1", "zero")
    pack_process(k, lambda: run(a10_x(k, 1) + a10_w(k, 2)), mid2)
    k.vm(f"buffer_load_dword v170, v{vFA}, {SRD_DBG}, 0 offen sc1", "tag")
    k.stamp("s pkdone")
    a10_loop(k, 4)
    a10_tail(k)
    wo(k, 0); gu(k, 0); dn(k, 0)
    if not P.half:
        k.marks = {m: g for m, g in k.marks.items() if False}
        k.seen = {t for t in k.seen if t in k.vmq or t in k.lgq or t in ("dna", "st0", ("x", 2), ("x", 3))}
        a11_main(k)
        wo(k, 1)
        k.marks = {m: g for m, g in k.marks.items() if m == "wobar" or m[0] == "bar"}
        gu(k, 1); dn(k, 1)
    if P.verbose: print([(t, tag, f) for t, tag, f in k.bg_log if f])
    if stamps:
        k.e("s_waitcnt vmcnt(0)"); k.stamp("drained"); k.stamp("rt1", True)
        k.e("s_lshl_b32 s32, s2, 10", "s_lshl_b32 s33, s3, 8", "s_add_u32 s32, s32, s33",
            f"s_add_u32 s32, s32, {WS_STAMP}", "v_lshlrev_b32 v8, 2, v1", f"buffer_store_dword v0, v8, {SRD_WS}, s32 offen")
        if P.echo:
            a, b = P.echo
            n = len(k.stamps)
            k.e(f"v_readlane_b32 s32, v0, {a}", f"v_readlane_b32 s33, v0, {b if b >= 0 else n + b}", f"v_readlane_b32 s34, v0, {n-1}", "s_nop 3",
                "s_sub_u32 s33, s33, s32", "s_min_u32 s33, s33, 20000")
            k.label("L_echo")
            k.e("s_memrealtime s[36:37]", "s_waitcnt lgkmcnt(0)", "s_sub_u32 s36, s36, s34", "s_cmp_lt_u32 s36, s33", "s_cbranch_scc1 L_echo")
        if P.dbg:
            n = len(k.stamps)
            k.e("v_readlane_b32 s32, v0, 0", f"v_readlane_b32 s33, v0, {n-1}", "s_not_b32 s34, s32", "v_mov_b32 v4, s33", "v_mov_b32 v5, s34")
            k.e(f"buffer_atomic_umax v4, v{vFA}, {SRD_DBG}, 0 offen offset:4", f"buffer_atomic_umax v5, v{vFA}, {SRD_DBG}, 0 offen offset:8")
            k.e(f"s_cmp_eq_u32 s2, {P.dbg - 1}", f"s_cselect_b32 s35, 0, {OOB>>1:#x}", f"s_cmp_eq_u32 s{sW}, 0", f"s_cselect_b32 s35, s35, {OOB>>1:#x}")
            for i, wd in zip(range(2, n - 1), (3, 5, 6, 7, 9, 10, 11, 13, 14, 15)):
                k.e(f"v_readlane_b32 s33, v0, {i}", "s_sub_u32 s33, s33, s32", "v_mov_b32 v4, s33", f"buffer_store_dword v4, v{vFA}, {SRD_DBG}, s35 offen offset:{4*wd}")
    k.e("s_endpgm")
    k.flush_spins()
    k.label("L_end"); k.e("s_endpgm")
    src = open("cdna_kernels/%s.s.ref" % NAME).read().splitlines()
    out = [l for l in src if l.startswith(";") and "@launch" not in l]
    out.append(f"; @launch grid=(256,1,1) block=(256,1,1) lds={LDS_TOTAL}")
    out += ['.amdgcn_target "amdgcn-amd-amdhsa--gfx950"', ".text"]
    s = "\n".join(out) + "\n" + k.text(verbose=True) + '.section .rodata,"a"\n.p2align 6\n' + kd(name)
    if P.align:
        from align import align
        s = align(s)
    return s, k.stamps
P.x_nobar = 0; P.x_noepi = 0; P.rt = 1; P.dbg = 0; P.h_touch0 = ''; P.outm = ''; P.h1_plain = 1; P.tags = 0; P.echo = None; P.half = 0; P.tlb = 1; P.code0 = 1; P.verbose = 0; P.align = 1; P.gu_cap = 6; P.gu_nw = 5; P.k_touch = 12; P.k_gb = 14; P.k_chk = 16

if __name__ == "__main__":
    path = sys.argv[1] if len(sys.argv) > 1 else "cdna_kernels/%s.s" % NAME
    opts = sys.argv[2:]
    only = None
    for o in opts:
        if o.startswith("only="): only = [x for x in o[5:].split(",") if x]
        if o.startswith("P."):
            n, v = o[2:].split("="); setattr(P, n, eval(v))
    s, st = build(stamps="st" in opts, only=only)
    open(path, "w").write(s)
    if "st" in opts: json.dump([st], open(path + ".json", "w"))
```

```python
import sys, json
from common import *

MF16 = "v_mfma_f32_16x16x32_bf16"
MF16S = "v_mfma_f32_16x16x16_bf16"
MF32 = "v_mfma_f32_32x32x16_bf16"
vL16, vFV, vFA, vP = 2, 8, 9, 10
CSV, CSQ, CSK, RES = 11, 12, 16, 20
OOB = 0x80000000
FL_O, FL_X1, FL_H, FL_X2 = 0, 4096, 8192, 12288
FL_HX = 16384 + 12288
def fl(layer, off): return WS_FLAGS + 16384 * layer + off
sROT, sBUD, sGL, sGS, sDS = 84, 98, 60, 61, 85
sT0, sT1, sPO, sFO = 32, 33, 86, 87
sML, sMS = 68, 69
WS_HXF = WS_O0 - 0x10000 if False else WS_END
WS_ARR = WS_HXF + 0x10000
sTAG, sXCC = 91, 76
WS_STAMP = 0x2000000
L_SA0, L_SA1, L_XH0, L_CS = 80896, 97280, 81920, 79872
def e_of(kk):
    p, tl = divmod(kk, 7)
    return 4 * p + tl if tl < 4 else 16 + 3 * p + (tl - 4)
KK_OF = {e_of(kk): kk for kk in range(28)}

class P:
    a1_bg_start, a1_bg_step = 30, 6
    gu_lead = 7
    gu_bg_start, gu_bg_step = 50, 2.6
    dn_lead = 12
    bgm = ""
    sleep = 0
    drop = ()
    codepf = 0
    ld = "sc1"
    dst = "sc1"
    safe = False
    plain = True
    notouch = ()

BO, BX1, BS1, BH = [WS_O[0]] * 2, [WS_X[0]] * 2, [WS_ST[0]] * 2, [WS_H[0]] * 2
def o_line(layer):
    return [f"s_lshl_b32 s32, s{sB}, 16", f"s_lshl_b32 s33, s{sCS}, 2", f"s_add_u32 s33, s33, s{sW}", "s_lshl_b32 s33, s33, 10",
            "s_add_u32 s32, s32, s33", f"s_add_u32 s32, s32, {BO[layer]}"]
def touch_next(k, t):
    return [lambda: k.touch(t, "p", o_line(1)), lambda: k.touch(t + 1, "q", [f"s_add_u32 s32, s64, {BX1[1]}"]),
            lambda: k.touch(t + 2, "t", [f"s_add_u32 s32, s65, {BS1[1]}"])]
def gu_tile(d):
    return [f"s_lshl_b32 {d}, s{sC}, 1", f"s_and_b32 s33, s{sW}, 1", f"s_add_u32 {d}, {d}, s33", f"s_lshl_b32 {d}, {d}, 1", f"s_lshr_b32 s33, s{sW}, 1", f"s_add_u32 {d}, {d}, s33"]
def h_base(d, layer):
    return gu_tile(d) + [f"s_mul_i32 {d}, {d}, 112", f"s_mul_i32 s33, s{sM}, 7",
            f"s_add_u32 {d}, {d}, s33", f"s_lshl_b32 {d}, {d}, 10", f"s_add_u32 {d}, {d}, {BH[layer]}"]

class F(K):
    def __init__(self):
        super().__init__(); self.spins = []; self.nspin = 0; self.st = ""; self.npf = 0
    def poll_issue(self, va, tag): self.vm(f"buffer_load_dword v{vP}, v{va}, {SRD_WS}, s{sPO} offen sc1", tag)
    def poll_addr(self, va, nl, sh=2):
        self.e(f"v_cmp_gt_u32 vcc, {nl}, v1", f"v_lshlrev_b32 v{va}, {sh}, v1", f"v_mov_b32 v{vP}, {OOB:#x}", f"v_cndmask_b32 v{va}, v{vP}, v{va}, vcc")
        self.nl = nl
    def poll_check(self, va, tag, thr):
        n = self.nspin; self.nspin += 1
        self.stamp(f"poll<{tag}")
        self.wait(vm=[tag])
        self.stamp(f"poll={tag}")
        msk = f"s_and_b32 s99, vcc_lo, {(1 << self.nl) - 1:#x}"
        self.e(f"v_cmp_gt_u32 vcc, {thr}, v{vP}", msk, f"s_cbranch_scc1 L_spin{n} ;np", f"L_back{n}: ;np")
        self.stamp(f"poll>{tag}")
        self.spins += [f"L_spin{n}:", f"s_sub_u32 s{sBUD}, s{sBUD}, 1", f"s_cbranch_scc1 L_give{n}"] + ([f"s_sleep {P.sleep}"] if P.sleep else []) + [
                       f"buffer_load_dword v{vP}, v{va}, {SRD_WS}, s{sPO} offen sc1", "s_waitcnt vmcnt(0)",
                       f"v_cmp_gt_u32 vcc, {thr}, v{vP}", msk, f"s_cbranch_scc1 L_spin{n}", f"s_branch L_back{n}",
                       f"L_give{n}:", f"s_mov_b32 s{sBUD}, 0", f"s_branch L_back{n}"]
    def flag(self, val, soff=sFO, st=None):
        self.e(f"v_mov_b32 v{vFV}, {val}")
        if st is not None:
            self.vm(f"buffer_store_dword v{vFV}, v{vFA}, {SRD_WS}, s{soff} offen {st}", "flag"); return
        self.e(f"s_or_b32 s99, s{soff}, s{sML}")
        self.vm(f"buffer_store_dword v{vFV}, v{vFA}, {SRD_WS}, s99 offen", "flag")
        self.e(f"s_or_b32 s99, s{soff}, s{sMS}")
        self.vm(f"buffer_store_dword v{vFV}, v{vFA}, {SRD_WS}, s99 offen sc1", "flag")
    def dstore(self, text, tag):
        if not P.plain:
            self.vm(text + " sc1", tag); return
        n = self.nspin; self.nspin += 1
        self.e(f"s_cmp_lg_u32 s{sML}, 0", f"s_cbranch_scc1 L_alt{n} ;np")
        self.vm(text, tag)
        self.e(f"L_back{n}: ;np")
        self.spins += [f"L_alt{n}:", "s_nop 4", text + " sc1", f"s_branch L_back{n}"]
    def valid(self, test, reload):
        n = self.nspin; self.nspin += 1
        self.e(*test); self.e(f"s_cbranch_vccnz L_rl{n} ;np", f"L_back{n}: ;np")
        self.spins += [f"L_rl{n}:", f"s_sub_u32 s{sBUD}, s{sBUD}, 1", f"s_cbranch_scc1 L_give{n}"] + reload + ["s_waitcnt vmcnt(0)"] + test + \
                      [f"s_cbranch_vccnz L_rl{n}", f"s_branch L_back{n}", f"L_give{n}:", f"s_mov_b32 s{sBUD}, 0", f"s_branch L_back{n}"]
    def touch(self, tmp, kind, base_expr, masked=True):
        if not P.plain or kind in P.notouch: return
        nl = {"p": 16, "q": 16, "s": 2, "t": 2, "h": 56}[kind]
        self.e(f"v_cmp_gt_u32 vcc, {nl}, v1")
        if kind in "pq": self.e(f"v_lshrrev_b32 v{tmp}, 3, v1", f"v_lshlrev_b32 v{tmp}, {15 if kind == 'p' else 13}, v{tmp}", f"v_and_b32 v{vFV}, 7, v1", f"v_lshl_add_u32 v{tmp}, v{vFV}, 7, v{tmp}")
        else: self.e(f"v_lshlrev_b32 v{tmp}, {11 if kind == 's' else 7}, v1")
        self.e(f"v_mov_b32 v{vFV}, {OOB:#x}", *base_expr)
        self.e(f"v_cndmask_b32 v{tmp}, v{vFV}, v{tmp}, vcc")
        if masked: self.e(f"s_or_b32 s32, s32, s{sML}")
        self.vm(f"buffer_load_dword v{tmp}, v{tmp}, {SRD_WS}, s32 offen", "touch")
    def vm(self, text, tag=None):
        kind = tag[0] if isinstance(tag, tuple) else tag
        if kind in P.drop:
            self.seen.add(tag); return
        super().vm(text, tag)
    def codepf(self, tmpv, per=2048):
        if not P.codepf: return
        n = self.npf; self.npf += 1
        sh = (per // 64).bit_length() - 1
        self.e(f"L_pf{n}: ;np", f"s_mul_i32 s32, s{sW}, {per}", f"s_add_u32 s32, s32, L_pf{n}-L_pc", f"v_lshlrev_b32 v{tmpv}, {sh}, v1")
        raise NotImplementedError
    def flush_spins(self):
        for l in self.spins: self.e(l)
        self.spins = []

def batch(k, i):
    src = f"s_add_u32 s62, s{sGS}, {i*16384}" if i < 15 else f"s_add_u32 s62, s{sDS}, {(16 + 4*(i-15))*1024}"
    def f(q):
        k.set_m0(f"s_add_u32 m0, s{sGL}, {(i % 10)*16384}")
        if i != 14: k.set_s(src)
        elif k.last.get(62) != f"s_cselect_b32 s62, {OOB>>1:#x}, s62":
            k.e(src, f"s_cmp_ge_u32 s{sW}, 2", f"s_cselect_b32 s62, {OOB>>1:#x}, s62")
        k.vm(f"buffer_load_dwordx4 v{vL16}, {SRD_WS}, s62 offen offset:{q*1024} {P.bgm} lds", ("gw", i))
    return [lambda q=q: f(q) for q in range(4)]

def bg_batches(k, bs, period, dep=lambda b: None):
    for b in bs:
        for f in batch(k, b): k.bg_add(f, period, ("gw", b), dep(b))
def bg_list(k, fns, period, tag, dep=None):
    for f in fns: k.bg_add(f, period, tag, dep)

def regloads(k, base_sgpr, off, dst, n, tag, tmp=63):
    fns = []
    for j in range(n):
        def f(j=j):
            k.set_s(f"s_add_u32 s{tmp}, s{base_sgpr}, {off + (j & ~3)*1024}")
            k.vm(f"buffer_load_dwordx4 {dst(j)}, v{vL16}, {SRD_WS}, s{tmp} offen offset:{(j%4)*1024} {P.bgm}", tag)
        fns.append(f)
    return fns
def wow(k):
    def f(i, q):
        k.set_m0(f"s_add_u32 m0, s{sGL}, {(6 + i)*16384}"); k.set_s(f"s_add_u32 s63, s88, {i*16384}")
        k.vm(f"buffer_load_dwordx4 v{vL16}, {SRD_WS}, s63 offen offset:{q*1024} lds", "wow")
    return [lambda i=i, q=q: f(i, q) for i in range(4) for q in range(4)]

def pack_issue(k):
    k.e("v_lshrrev_b32 v44, 3, v1", "v_and_b32 v43, 7, v1", "v_and_b32 v45, 2, v44", "v_lshlrev_b32 v45, 1, v45",
        "v_xor_b32 v43, v43, v45", "v_lshlrev_b32 v43, 4, v43", f"s_add_u32 s34, s49, {L_X + 4096}")
    k.e("s_cmp_ge_u32 s2, 112", "s_cbranch_scc1 L_pki_small")
    k.e("s_and_b32 s35, s2, 1", "s_bfe_u32 s36, s2, 0x10001", "s_lshr_b32 s37, s2, 2")
    k.e("s_cmp_eq_u32 s35, 0", "s_cselect_b32 s24, s72, s74", "s_cselect_b32 s25, s73, s75",
        f"s_mov_b32 s26, {512*3584:#x}", "s_mov_b32 s27, 0x20000")
    k.e("v_mul_u32_u24 v46, 3584, v44", "v_add_u32 v46, v46, v43")
    k.e("s_lshl_b32 s38, s36, 2", f"s_add_u32 s38, s38, s{sW}", f"s_mul_i32 s38, s38, {64*3584}",
        "s_lshl_b32 s39, s37, 7", "s_add_u32 s38, s38, s39")
    for i in range(8):
        k.e(f"s_add_u32 m0, s34, {(i>>2)*8192 + (i&3)*1024}", f"s_add_u32 s39, s38, {i*8*3584}", f"buffer_load_dwordx4 v46, {SRD_PK}, s39 offen lds")
    k.e("s_branch L_pki_done")
    k.label("L_pki_small")
    k.e("s_sub_u32 s35, s2, 112", "s_lshl_b32 s35, s35, 3", f"s_lshl_b32 s36, s{sW}, 1", "s_add_u32 s35, s35, s36")
    k.e("s_cmp_lt_u32 s35, 896", "s_cselect_b32 s24, s76, s68", "s_cselect_b32 s25, s77, s69", f"s_mov_b32 s26, {512*1024:#x}",
        f"s_cselect_b32 s26, {1792*1024:#x}, s26", "s_mov_b32 s27, 0x20000", "s_cselect_b32 s37, 1, 0",
        "s_movk_i32 s38, 896", "s_cselect_b32 s38, 0, s38")
    k.e("s_cselect_b32 s39, 0, 1", "s_cselect_b32 s70, 14, 15", "s_movk_i32 s71, 0x4000", "s_cselect_b32 s71, 0x80, s71")
    k.e("s_sub_u32 s35, s35, s38", "s_lshr_b32 s35, s35, s39", "s_and_b32 s36, s35, 7", "s_lshr_b32 s35, s35, 3")
    k.e("v_lshl_add_u32 v46, v44, 10, v43", "s_lshl_b32 s38, s35, s70", "s_lshl_b32 s39, s36, 7", "s_add_u32 s38, s38, s39")
    for i in range(2):
        for h in range(2):
            k.e(f"s_add_u32 m0, s34, {(2*i+h)*1024}", f"s_add_u32 s39, s38, {h*8192}", f"buffer_load_dwordx4 v46, {SRD_PK}, s39 offen lds")
        if i == 0: k.e("s_add_u32 s38, s38, s71")
    k.label("L_pki_done")
    k.vmq.append("pk"); k.seen.add("pk")

PQ = [76, 80, 84, 88, 92, 96, 36, 40]
def pack_process(k, mid1, mid2):
    k.e("v_bfe_u32 v46, v1, 2, 2", "v_and_b32 v47, 3, v1", "v_bfe_u32 v48, v1, 4, 1", "v_lshrrev_b32 v49, 5, v1")
    k.e("v_and_b32 v50, 2, v46", "v_add_u32 v50, v50, v48", "v_lshlrev_b32 v50, 5, v50",
        "v_lshl_add_u32 v50, v46, 7, v50", "v_lshl_add_u32 v50, v47, 3, v50", "v_add_u32 v50, s34, v50")
    k.e("s_cmp_ge_u32 s2, 112", "s_cbranch_scc1 L_pk_small")
    q0 = list(k.vmq)
    k.e("v_lshl_add_u32 v56, v49, 10, v50", "v_xor_b32 v57, 64, v56")
    k.e("s_lshl_b32 s39, s37, 2", "v_add_u32 v58, s39, v48")
    k.e("s_lshl_b32 s70, s36, 2", f"s_add_u32 s70, s70, s{sW}", "s_lshl_b32 s70, s70, 2")
    k.e("v_and_b32 v66, 15, v1", "s_lshl_b32 s71, s35, 8", "v_lshl_add_u32 v66, v66, 4, s71")
    for p in range(2):
        T, fs, tl, st_, b, aug = 59, 60, 61, 62 + p, 64 + p, 68 + p
        k.e(f"v_add_u32 v{T}, {2*p}, v58", f"v_mul_u32_u24 v{fs}, 9363, v{T}", f"v_lshrrev_b32 v{fs}, 16, v{fs}",
            f"v_mul_u32_u24 v{tl}, 7, v{fs}", f"v_sub_u32 v{tl}, v{T}, v{tl}")
        k.e(f"v_cmp_gt_u32 vcc, 3, v{tl}", f"v_mul_u32_u24 v67, 33, v{tl}", f"v_mov_b32 v{st_}, 1", "v_mov_b32 v70, 3",
            f"v_cndmask_b32 v67, v67, v{tl}, vcc", f"v_cndmask_b32 v{st_}, v{st_}, v70, vcc")
        k.e(f"v_mul_u32_u24 v{fs}, 231, v{fs}", f"v_add_u32 v67, v67, v{fs}")
        k.e(f"v_lshl_add_u32 v70, v{st_}, 5, v67", "v_lshlrev_b32 v70, 10, v70", "v_add_u32 v70, v70, v66",
            "s_lshl_b32 s71, s36, 9", f"v_add_u32 v{aug}, s71, v70")
        k.e(f"v_mul_lo_u32 v70, v{st_}, s70", "v_add_u32 v67, v67, v70", "v_lshlrev_b32 v67, 10, v67",
            "v_add_u32 v67, v67, v66", f"v_lshl_add_u32 v{b}, v49, 9, v67", f"v_lshlrev_b32 v{st_}, 10, v{st_}")
    k.e("v_mov_b32 v71, 0x3f803f80", "v_mov_b32 v72, 0", "v_mov_b32 v73, 0", "v_cmp_gt_u32 vcc, 32, v1", "v_mov_b32 v46, 0", "v_mov_b32 v47, 0",
        "v_cndmask_b32 v68, v69, v68, vcc", f"s_lshl_b32 s72, s{sW}, 8", "s_add_u32 s72, s72, 0x10000", "v_lshl_add_u32 v74, v1, 2, s72",
        "v_lshlrev_b32 v75, 2, v1", "v_add_u32 v75, 0x10000, v75")
    k.e(f"s_mov_b32 s70, {WS_PGU}", "s_mov_b32 s71, s70", "s_mov_b32 s72, s70", "s_mov_b32 s73, s70", f"s_cmp_eq_u32 s{sW}, 0", f"s_cselect_b32 s74, s70, {OOB>>1:#x}")
    k.wait(vm="pk")
    for ks in range(4):
        for p in range(2):
            for j in range(2): k.ds(f"ds_read_b64_tr_b16 {vr(PQ[2*ks+p]+2*j,2)}, v{56+p} offset:{(ks>>1)*8192 + (ks&1)*2048 + j*512}", ("t", ks, p))
        if ks == 2: k.wait(lg=[("t", 0, 1)])
    mid1()
    for ks in range(4):
        for p in range(2):
            k.wait(lg=[("t", ks, p)])
            for d in range(4): k.e(f"v_dot2c_f32_bf16 v{72+p}, v{PQ[2*ks+p]+d}, v71")
    k.e("v_permlane32_swap_b32 v72, v73", "v_add_f32 v72, v72, v73")
    k.ds(f"ds_write_b32 v74, v72 offset:{L_CS - 65536}")
    k.wait(lg="all"); k.e("s_barrier")
    for w in range(4): k.ds(f"ds_read_b32 v{56+w}, v75 offset:{L_CS - 65536 + 256*w}")
    mid2()
    k.wait(lg="all")
    k.e("v_add_f32 v56, v56, v57", "v_add_f32 v58, v58, v59", "v_add_f32 v56, v56, v58")
    k.e("v_cvt_pk_bf16_f32 v45, v56, v46", "v_lshlrev_b32 v57, 16, v45", "v_sub_f32 v57, v56, v57", "v_cvt_pk_bf16_f32 v44, v56, v57")
    k.e("s_branch L_pk_done")
    k.label("L_pk_small")
    k.vmq = list(q0)
    k.e(f"v_mov_b32 v64, v{vL16}", f"v_add_u32 v65, 1024, v{vL16}", f"v_mov_b32 v68, v{vL16}", f"s_mov_b32 s72, {OOB>>1:#x}", "s_mov_b32 s73, s72", "s_mov_b32 s74, s72")
    k.e("s_cmp_eq_u32 s37, 0", "s_cbranch_scc1 L_pk_wo")
    k.e("s_mul_i32 s38, s35, 2341", "s_lshr_b32 s38, s38, 16", "s_mul_i32 s39, s38, 28", "s_sub_u32 s39, s35, s39",
        "s_mul_i32 s70, s39, 9363", "s_lshr_b32 s70, s70, 16", "s_mul_i32 s71, s70, 7", "s_sub_u32 s71, s39, s71")
    for u in range(2):
      k.e(f"s_sub_u32 s39, s70, s36" if P.hrot else "s_mov_b32 s39, s70", f"s_sub_u32 s39, s39, {u if P.hrot else 0}", "s_and_b32 s39, s39, 3",
        "s_lshl_b32 s32, s39, 2", "s_add_u32 s32, s32, s71", "s_mul_i32 s33, s39, 3", "s_add_u32 s33, s33, s71", "s_add_u32 s33, s33, 12",
        "s_cmp_lt_u32 s71, 4", "s_cselect_b32 s32, s32, s33", "s_mul_i32 s33, s38, 28", "s_add_u32 s32, s32, s33", f"s_lshl_b32 s{(35, 37)[u]}, s32, 11")
    k.e("v_lshl_add_u32 v56, v49, 9, v50", "v_xor_b32 v57, 64, v56", f"v_mov_b32 v62, {224*KB}", f"v_mov_b32 v63, {224*KB}")
    k.e(f"s_mul_i32 s36, s36, {224*KB}", f"s_add_u32 s36, s36, {WS_PDN}", "s_add_u32 s70, s36, s35", "s_add_u32 s71, s36, s37")
    k.wait(vm="pk")
    for i in range(2):
        for nn in range(2):
            for j in range(2): k.ds(f"ds_read_b64_tr_b16 {vr(PQ[2*i+nn]+2*j,2)}, v{56+nn} offset:{i*2048 + j*1024}", "t")
    mid1(); mid2()
    k.wait(lg="all")
    k.e("s_branch L_pk_done")
    k.label("L_pk_wo")
    k.vmq = list(q0)
    k.e("v_and_b32 v56, 2, v46", "v_lshlrev_b32 v56, 1, v56", "v_xor_b32 v56, v56, v47", "v_lshlrev_b32 v56, 4, v56", "v_lshl_add_u32 v56, v46, 7, v56",
        "v_lshrrev_b32 v57, 4, v1", "v_lshl_add_u32 v56, v57, 10, v56", "v_add_u32 v56, s34, v56", "v_xor_b32 v57, 64, v56",
        "v_mov_b32 v62, 0x800", "v_mov_b32 v63, 0x800")
    k.e("s_lshl_b32 s36, s36, 16", "s_lshl_b32 s35, s35, 12", "s_add_u32 s70, s36, s35", f"s_add_u32 s70, s70, {WS_PWO}", "s_mov_b32 s71, s70")
    k.wait(vm="pk")
    for j in range(4):
        for jj in range(2): k.ds(f"ds_read_b64_tr_b16 {vr(PQ[j]+2*jj,2)}, v{56+(j>>1)} offset:{jj*512 + 8*(j&1)}", "t")
    mid1(); mid2()
    k.wait(lg="all")
    k.label("L_pk_done")

def pack_stores(k):
    ops = []
    for r in range(4):
        for p in range(2):
            ops.append(("v", lambda r=r, p=p: k.vm(f"buffer_store_dwordx4 {vr(PQ[2*r+p],4)}, v{64+p}, {SRD_WS}, s{70+r} offen sc1", "pks")))
            if r < 3: ops.append(("a", lambda p=p: k.e(f"v_add_u32 v{64+p}, v{64+p}, v{62+p}")))
    ops.append(("v", lambda: k.vm(f"buffer_store_dwordx4 v[44:47], v68, {SRD_WS}, s74 offen sc1", "pks")))
    return ops

A_XF, A_K, A_V, A_Q = 36, 76, 86, 96
A_STA, A_STB, A_OP, A_DX, A_PA, A_ST, A_ACC = 104, 106, 144, 152, 153, 140, 184
class R0: XE, XO, SA, SB, CI, ONE, M, ATT, TMP = 3, 4, 5, 6, 28, 32, 52, (116, 160), 60
class R1: XE, XO, SA, SB, CI, ONE, M, ATT, TMP = 116, 117, 118, 119, 252, 124, 120, (228, 160), 28
A_U, A_PX = 226, 115
A11_ORDER = [2, 3, 1, 0, "h"]
A11_POS = {2: 3, 3: 0, 1: 1, 0: 2, "h": 3}
sODD, sCUR0, sCUR1, sCEXP = 40, 42, 44, 46

def a1_setup(k, layer):
    R = (R0, R1)[layer]
    real = k; out = []
    class Rec:
        def e(self, *t):
            if any(x.startswith("s_cmp") for x in t): out.append(lambda t=t: real.e(*t))
            else: out.extend(lambda x=x: real.e(x) for x in t)
    k = Rec()
    t16, g, tt, tb = R.TMP, R.TMP + 1, R.TMP + 2, R.TMP + 3
    x, y, z = R.ONE, R.ONE + 1, R.ONE + 2
    sa = L_SA0 if layer == 0 else L_SA1
    k.e(f"v_and_b32 v{t16}, 15, v1", f"v_lshrrev_b32 v{g}, 4, v1", f"v_and_b32 v{tt}, 7, v1", f"v_bfe_u32 v{tb}, v1, 3, 1")
    k.e(f"v_lshlrev_b32 v{tb}, 13, v{tb}")
    if layer == 0: k.e(f"v_add_u32 v{tb}, {L_X}, v{tb}")
    if layer == 0:
        k.e(f"v_and_b32 v{x}, 6, v{tt}", f"v_xor_b32 v{x}, v{x}, v{g}", f"v_lshlrev_b32 v{x}, 4, v{x}",
            f"v_lshl_add_u32 v{x}, v{tt}, 7, v{x}", f"v_add_u32 v{R.XE}, v{x}, v{tb}", f"v_xor_b32 v{R.XO}, 64, v{R.XE}")
    else:
        k.e(f"v_lshl_add_u32 v{x}, v{g}, 7, v{tb}", f"v_lshl_add_u32 v{R.XE}, v{tt}, 4, v{x}", f"v_add_u32 v{R.XO}, 512, v{R.XE}")
    k.e(f"v_lshlrev_b32 v{R.SA}, 3, v{t16}", f"v_add_u32 v{R.SA}, {sa}, v{R.SA}",
        f"v_lshlrev_b32 v{R.SB}, 5, v{g}", f"v_add_u32 v{R.SB}, {sa}, v{R.SB}")
    k.e(f"v_and_b32 v{x}, 1, v1", f"v_cmp_eq_u32 s[{sODD}:{sODD+1}], 1, v{x}",
        f"v_lshl_add_u32 v{y}, v{g}, 2, v{x}", f"v_cmp_le_u32 s[{sCUR0}:{sCUR0+1}], v{y}, v{t16}",
        f"v_add_u32 v{y}, 2, v{y}", f"v_cmp_le_u32 s[{sCUR1}:{sCUR1+1}], v{y}, v{t16}")
    k.e(f"v_mov_b32 v{y}, 0xffff", f"v_mov_b32 v{z}, 0xffff0000", f"v_cndmask_b32 v{y}, v{y}, v{z}, s[{sODD}:{sODD+1}]", f"v_mov_b32 v{z}, 0")
    k.e(f"v_cndmask_b32 v{R.M+2}, v{z}, v{y}, s[{sCUR0}:{sCUR0+1}]", f"v_cndmask_b32 v{R.M}, v{y}, v{z}, s[{sCUR0}:{sCUR0+1}]",
        f"v_cndmask_b32 v{R.M+3}, v{z}, v{y}, s[{sCUR1}:{sCUR1+1}]", f"v_cndmask_b32 v{R.M+1}, v{y}, v{z}, s[{sCUR1}:{sCUR1+1}]")
    k.e(f"s_cmp_eq_u32 s{sB}, 0", f"s_cselect_b32 s70, {f2u(-1e38):#x}, 0", f"s_mov_b32 s{sCEXP}, {f2u(0.25*LOG2E):#x}")
    for i in range(4): k.e(f"v_mov_b32 v{R.CI+i}, s70", f"v_mov_b32 v{R.ONE+i}, 0x3f803f80")
    return out

def o_bases(k, layer):
    k.e(f"s_lshl_b32 s32, s{sB}, 16", f"s_lshl_b32 s33, s{sCS}, 2", f"s_add_u32 s33, s33, s{sW}", "s_lshl_b32 s53, s33, 10",
        "s_add_u32 s32, s32, s53", f"s_add_u32 s53, s32, {BO[layer]}", "s_add_u32 s54, s53, 32768",
        f"s_lshl_b32 s32, s{sB}, 5", "s_add_u32 s32, s32, s33", "s_lshl_b32 s32, s32, 2", f"s_add_u32 s89, s32, {fl(layer, FL_O)}")

def ln_finish(a, s, q):
    a(f"v_mul_f32 v{s}, {f2u(-1/512):#x}, v{s}"); a(f"v_mul_f32 v{q}, {f2u(1/512):#x}, v{q}")
    a(f"v_fma_f32 v{q}, -v{s}, v{s}, v{q}"); a(f"v_max_f32 v{q}, 0, v{q}"); a(f"v_add_f32 v{q}, {f2u(1e-5):#x}, v{q}")

A_QS = 68
def fix_reads(k, R, t, S):
    i = 0 if t == "h" else t + 1
    return [lambda: k.ds(f"ds_read_b64 {vr(S,2)}, v{R.SA} offset:{i*128}", ("sa", t)),
            lambda: k.ds(f"ds_read_b128 {vr(S+2,4)}, v{R.SB} offset:{i*128}", ("sa", t)),
            lambda: k.ds(f"ds_read_b128 {vr(S+6,4)}, v{R.SB} offset:{i*128+16}", ("sa", t))]
def fix(k, R, fx, t, acc, at, pk, S=A_STA, pre=False, nxt=()):
    a = lambda txt, c=1, at=0: fx.add(lambda: k.e(txt), c, at)
    i = 0 if t == "h" else t + 1
    if not pre:
        for n, f in enumerate(fix_reads(k, R, t, S)): fx.add(f, 1, at - P.a1_salead if n == 0 else 0)
    fx.add(lambda: k.wait(lg=[("sa", t)]), 1, at)
    for f in nxt: fx.add(f)
    for r0, cs, dst in ((acc[0], CSQ, None if t == "h" else A_Q + 2*t), (acc[1], CSK, A_K + 2*i)):
        if dst is None: continue
        isq = cs == CSQ
        if pk:
            for h in (0, 2): a(f"v_pk_fma_f32 {vr(r0+h,2)}, {vr(S,2)}, {vr(cs+h,2)}, {vr(r0+h,2)} op_sel_hi:[0,1,1]")
            if not isq:
                for h in (0, 2): a(f"v_pk_mul_f32 {vr(r0+h,2)}, {vr(S,2)}, {vr(r0+h,2)} op_sel:[1,0] op_sel_hi:[1,1]")
        else:
            for r in range(4): a(f"v_fmac_f32 v{r0+r}, v{S}, v{cs+r}")
            if not isq:
                for r in range(4): a(f"v_mul_f32 v{r0+r}, v{S+1}, v{r0+r}")
        if isq: a(f"v_mul_f32 v{A_QS+t}, s{sCEXP}, v{S+1}")
        for h in range(2): a(f"v_cvt_pk_bf16_f32 v{dst+h}, v{r0+2*h}, v{r0+2*h+1}")
    r0 = acc[2]
    for r in range(4): a(f"v_fmac_f32 v{r0+r}, v{S+2+2*r}, v{CSV}")
    for r in range(4): a(f"v_mul_f32 v{r0+r}, v{S+3+2*r}, v{r0+r}")
    for h in range(2): a(f"v_cvt_pk_bf16_f32 v{A_V+2*i+h}, v{r0+2*h}, v{r0+2*h+1}")
    fx.add(lambda: (k.mark(("fix", t)), k.stamp(f"t0 fix{t}")), 0)

def attn(k, R, fx, t, B):
    SC, SP, PP, O, SUM, T = B, B + 4, B + 8, B + 12, B + 16, B + 20
    a = lambda txt, c=1: fx.add(lambda: k.e(txt), c)
    q = vr(A_Q + 2*t, 2)
    fx.dep(("fix", t)); fx.dep(("fix", t - 1 if t else "h")); fx.skip(1)
    a(f"{MF16S} {vr(SC,4)}, {vr(A_K+2*(t+1),2)}, {q}, 0", 2)
    a(f"{MF16S} {vr(SP,4)}, {vr(A_K+2*t,2)}, {q}, {vr(R.CI,4) if t == 0 else '0'}", 2)
    fx.skip(3)
    for rr, cur in ((0, sCUR0), (1, sCUR1)):
        a(f"v_cndmask_b32 v{T+2}, v{SC+2*rr}, v{SC+2*rr+1}, s[{sODD}:{sODD+1}]")
        a(f"v_cndmask_b32 v{T+3}, v{SP+2*rr}, v{SP+2*rr+1}, s[{sODD}:{sODD+1}]")
        a(f"v_cndmask_b32 v{T+rr}, v{T+3}, v{T+2}, s[{cur}:{cur+1}]")
    a(f"v_max_f32 v{T+2}, v{T}, v{T+1}"); a(f"v_mov_b32 v{T+3}, v{T+2}"); fx.skip(1)
    a(f"v_permlane16_swap_b32 v{T+2}, v{T+3}", 2); a(f"v_max_f32 v{T+2}, v{T+2}, v{T+3}"); a(f"v_mov_b32 v{T+3}, v{T+2}"); fx.skip(1)
    a(f"v_permlane32_swap_b32 v{T+2}, v{T+3}", 2); a(f"v_max_f32 v{T+2}, v{T+2}, v{T+3}")
    a(f"v_mul_f32 v{T+2}, v{A_QS+t}, v{T+2}")
    for rr in range(2): a(f"v_fma_f32 v{T+rr}, v{T+rr}, v{A_QS+t}, -v{T+2}")
    for rr in range(2): a(f"v_exp_f32 v{T+rr}, v{T+rr}", 2)
    for rr in range(2): a(f"v_cvt_pk_bf16_f32 v{T+rr}, v{T+rr}, v{T+rr}")
    a(f"v_and_b32 v{PP}, v{T}, v{R.M}"); a(f"v_and_b32 v{PP+1}, v{T+1}, v{R.M+1}")
    a(f"v_and_b32 v{PP+2}, v{T}, v{R.M+2}"); a(f"v_and_b32 v{PP+3}, v{T+1}, v{R.M+3}")
    fx.skip(1)
    a(f"{MF16} {vr(SUM,4)}, {vr(R.ONE,4)}, {vr(PP,4)}, 0", 2)
    a(f"{MF16} {vr(O,4)}, {vr(A_V+2*t,4)}, {vr(PP,4)}, 0", 2)
    fx.skip(3)
    a(f"v_rcp_f32 v{T}, v{SUM}", 2); fx.skip(1)
    for r in range(4): a(f"v_mul_f32 v{O+r}, v{T}, v{O+r}")
    for h in range(2): a(f"v_cvt_pk_bf16_f32 v{A_OP+2*t+h}, v{O+2*h}, v{O+2*h+1}")
    fx.add(lambda: (k.mark(("attn", t)), k.stamp(f"t0 attn{t}")), 0)

def ostore(k, fx, pair):
    b = A_OP + 4 * pair
    fx.dep(("attn", 2*pair)); fx.dep(("attn", 2*pair + 1))
    fx.dep("po1" if pair == 0 else "blank")
    fx.skip(1)
    fx.add(lambda: k.e(f"v_permlane16_swap_b32 v{b}, v{b+2}"), 2); fx.add(lambda: k.e(f"v_permlane16_swap_b32 v{b+1}, v{b+3}"), 2)
    fx.add(lambda: (k.dstore(f"buffer_store_dwordx4 {vr(b,4)}, v{vL16}, {SRD_WS}, s{53+pair} offen", ("ost", pair)), k.mark(("ost", pair))))

Z_WD, Z_TR, Z_HE, Z_HO, Z_OE, Z_OO = 164, 165, 166, 167, 168, 169
Z_XF, Z_SUM, Z_GR, Z_SUMH, Z_GRH, Z_CV = 104, 240, 244, 248, 252, 100
P.k_first = 4; P.k_prep = 13
P.k_look, P.k_atom, P.k_bar, P.k_vgap, P.k_pst, P.k_pgap = 3, 6, 3, 3, 3, 0
NS0 = 6
def z_acc(t):
    if t == "h": return (None, A_ACC + 48, A_ACC + 52)
    return (A_ACC + 12*t, A_ACC + 12*t + 4, A_ACC + 12*t + 8)

def a10_lanes(k):
    k.e("v_lshrrev_b32 v60, 3, v1", "v_and_b32 v61, 6, v60", "v_and_b32 v62, 7, v1", "v_xor_b32 v61, v61, v62",
        "v_lshlrev_b32 v61, 4, v61", f"v_lshl_add_u32 v{A_DX}, v60, 10, v61")
    k.e("v_and_b32 v61, 2, v60", f"s_and_b32 s32, s{sW}, 1", "s_lshl_b32 s32, s32, 2", "v_or_b32 v61, s32, v61", "v_xor_b32 v61, v61, v62",
        "v_lshlrev_b32 v61, 4, v61", "v_mul_u32_u24 v60, 3072, v60", f"v_add_u32 v{Z_WD}, v60, v61")
    k.e(f"s_add_u32 s{sROT}, s{sB}, s{sCS}", f"s_and_b32 s{sROT}, s{sROT}, 7")
    k.e(f"s_lshl_b32 s47, s{sB}, 3", "s_sub_u32 s48, s47, 2", "s_max_i32 s48, s48, 0", f"s_and_b32 s32, s{sW}, 1", "s_add_u32 s48, s48, s32",
        "s_lshl_b32 s48, s48, 13", f"s_lshl_b32 s32, s{sW}, 1", "s_add_u32 s47, s47, s32", "s_lshl_b32 s47, s47, 13")
    k.e(f"s_mul_i32 s51, s{sW}, {8*3072}", f"s_lshl_b32 s32, s{sCS}, 7", "s_add_u32 s51, s51, s32", f"s_mul_i32 s52, s{sW}, 3072")
    k.e(f"s_lshl_b32 s49, s{sW}, 14", f"s_and_b32 s32, s{sW}, 1", "s_lshl_b32 s50, s32, 13", f"s_lshr_b32 s32, s{sW}, 1",
        "s_lshl_b32 s33, s32, 10", "s_add_u32 s50, s50, s33", f"s_add_u32 s90, s32, s{sROT}")

def a10_x(k, c):
    S = lambda *t: [("s", lambda x=x: k.e(x)) for x in t]
    ld = lambda: k.vm(f"buffer_load_dwordx4 v{A_DX}, {SRD_X}, s33 offen lds", ("x", c))
    ops = S(f"s_add_u32 s33, s{sROT}, {c}", "s_and_b32 s33, s33, 7", "s_lshl_b32 s33, s33, 7", f"s_add_u32 m0, s49, {L_X + c*1024}", "s_add_u32 s33, s33, s47")
    ops += [("v", ld)] + S(f"s_add_u32 m0, s49, {L_X + 8192 + c*1024}", "s_add_u32 s33, s33, 8192") + [("v", ld)]
    if c % 2 == 0:
        ops += S(f"s_add_u32 s33, s90, {c}", "s_and_b32 s33, s33, 7", "s_lshl_b32 s33, s33, 7", f"s_add_u32 m0, s50, {L_XH0 + c*1024}", "s_add_u32 s33, s33, s48") + [("v", ld)]
    return ops

def a10_w(k, s):
    S = lambda *t: [("s", lambda x=x: k.e(x)) for x in t]
    if s & 1: ops = S(f"s_add_u32 m0, s52, {(s % NS0)*12288}", f"s_add_u32 s63, s63, {32*3072}")
    else: ops = S(f"s_add_u32 s63, s{sROT}, {s>>1}", "s_and_b32 s63, s63, 7", f"s_mul_i32 s63, s63, {64*3072}", f"s_add_u32 m0, s52, {(s % NS0)*12288}", "s_add_u32 s63, s63, s51")
    for p in range(3): ops.append(("v", lambda p=p: k.vm(f"buffer_load_dwordx4 v{Z_WD}, {SRD_QKV}, s63 offen offset:{p*1024} lds", ("w", s))))
    return ops
def run(ops):
    for _, f in ops: f()

def fill(k, mains, streams, cap=2):
    lastv = -99
    for g, m in enumerate(mains):
        m(); k.gap = g
        for a, o in streams:
            if a <= g and o and o[0][0] == "s": o.pop(0)[1](); break
        room = cap; nd = 0
        if g - lastv >= P.k_vgap and k.bg_step(): room -= 1; lastv = g
        while room > 0:
            pick = None
            for a, o in streams:
                if a > g or not o: continue
                t = o[0][0]
                if t == "d" and nd >= 1: continue
                if t == "v" and g - lastv < P.k_vgap: continue
                pick = o; break
            if pick is None: break
            t, f = pick.pop(0); f(); room -= 2 if t == "b" else 1
            if t == "d": nd += 1
            if t == "v": lastv = g
    for a, o in streams: run(o)

def a10_lanes2(k):
    k.e("v_lshrrev_b32 v60, 4, v1", "v_bfe_u32 v61, v1, 2, 2", "v_and_b32 v62, 1, v60", "v_lshlrev_b32 v62, 1, v62",
        "v_lshrrev_b32 v63, 1, v61", "v_or_b32 v62, v62, v63", f"v_xor_b32 v62, s{sW}, v62", "v_lshlrev_b32 v62, 5, v62",
        "v_mul_u32_u24 v60, 3072, v60", "v_lshl_add_u32 v60, v61, 7, v60", "v_add_u32 v60, v60, v62",
        "v_and_b32 v61, 3, v1", f"v_lshl_add_u32 v{Z_TR}, v61, 3, v60")
    k.e("v_and_b32 v60, 15, v1", "v_cmp_eq_u32 s[78:79], 0, v60")
    k.e(f"v_subrev_u32 v{Z_HE}, 16384, v{R0.XE}", f"v_subrev_u32 v{Z_HO}, 16384, v{R0.XO}",
        f"v_add_u32 v{Z_OE}, s49, v{R0.XE}", f"v_add_u32 v{Z_OO}, s49, v{R0.XO}")

def a10_loop(k, first):
    LA = P.k_look
    def sync(s, extra=()):
        k.wait(vm=[("w", s), ("x", s >> 1)] + list(extra)); k.e("s_barrier")
    nxt = [first]
    def dmas(upto):
        out = []
        while nxt[0] <= min(upto, 15):
            n = nxt[0]; nxt[0] += 1
            if n % 2 == 0: out += a10_x(k, n // 2)
            out += a10_w(k, n)
        return out
    def reads(s):
        fb = Z_XF + 24 * (s & 1); off = (s >> 1) * 1024; o = s & 1
        tr = lambda p, j: ("d", lambda: k.ds(f"ds_read_b64_tr_b16 {ar(12*s+4*p+2*j,2)}, v{Z_TR} offset:{(s%NS0)*12288 + p*1024 + j*512}", ("r", s, 0 if p == 0 else 1)))
        xr = lambda d, a, of, grp: ("d", lambda: k.ds(f"ds_read_b128 {vr(d,4)}, v{a} offset:{of}", ("r", s, grp)))
        out = [tr(0, 0), tr(0, 1)] + [xr(fb + 4*t, R0.XO if o else R0.XE, t*16384 + off, 0) for t in range(4)]
        out += [tr(1, 0), tr(1, 1), tr(2, 0), tr(2, 1), xr(fb + 16, Z_HO if o else Z_HE, off, 1), xr(fb + 20, Z_OO if o else Z_OE, off, 1)]
        return out
    l0_background(k)
    pst = pack_stores(k)
    sync(0)
    k.stamp("k0")
    run(reads(0)); run(dmas(LA - 1))
    for s in range(16):
        fb = Z_XF + 24 * (s & 1)
        c = lambda r: "0" if s == 0 else vr(r, 4)
        wq, wk, wv, one = ar(12*s, 4), ar(12*s + 4, 4), ar(12*s + 8, 4), vr(R0.ONE, 4)
        ms = [f"{MF16} {vr(z_acc(t)[0],4)}, {wq}, {vr(fb+4*t,4)}, {c(z_acc(t)[0])}" for t in range(4)]
        for t in [0, 1, 2, 3, "h"]:
            xf = vr(fb + (16 if t == "h" else 4*t), 4)
            ms.append(f"{MF16} {vr(z_acc(t)[1],4)}, {wk}, {xf}, {c(z_acc(t)[1])}")
            ms.append(f"{MF16} {vr(z_acc(t)[2],4)}, {xf}, {wv}, {c(z_acc(t)[2])}")
        ms += [f"{MF16} {vr(Z_CV,4)}, {wq}, {vr(fb+16,4)}, {c(Z_CV)}",
               f"{MF16} {vr(Z_SUM,4)}, {one}, {vr(fb+20,4)}, {c(Z_SUM)}", f"{MF16} {vr(Z_GR,4)}, {vr(fb+20,4)}, {vr(fb+20,4)}, {c(Z_GR)}",
               f"{MF16} {vr(Z_SUMH,4)}, {one}, {vr(fb+16,4)}, {c(Z_SUMH)}", f"{MF16} {vr(Z_GRH,4)}, {vr(fb+16,4)}, {vr(fb+16,4)}, {c(Z_GRH)}"]
        mains = [lambda m=m: k.e(m) for m in ms]
        k.wait(lg=[("r", s, 0)])
        streams = [(3, [("s", lambda: k.wait(lg=[("r", s, 1)]))] +
                       [("a", lambda d=d: k.e(f"v_cndmask_b32 v{fb+16+d}, v{fb+16+d}, v{R0.ONE}, s[78:79]")) for d in range(4)])]
        if s + 1 < 16:
            ex = ["pks"] if s + 1 == P.k_atom else []
            assert not ex or not pst, "arrival before the last pack store"
            assert P.k_prep > 14 - LA
            ops = [("b", lambda: sync(s + 1, ex))] + reads(s + 1)
            if ex: ops.append(("b", lambda: arrive(k)))
            streams.append((P.k_bar, ops))
            streams.append((0, dmas(s + LA)))
        n = 0; mine = []
        while pst and (n < P.k_pst or pst[0][0] == "a"):
            n += pst[0][0] == "v"; mine.append(pst.pop(0))
        streams.append((P.k_pgap, mine))
        if s == P.k_prep: streams.append((6, tail_prep(k)))
        if s == P.k_touch:
            streams.append((2, [("b", lambda: k.touch(56, "p", ["s_mov_b32 s32, s53"], False)),
                                ("b", lambda: k.touch(57, "q", [f"s_add_u32 s32, s64, {BX1[0]}"], False)),
                                ("b", lambda: k.touch(58, "h", h_base("s32", 0), False) if P.h_touch0 == "k" else None)]))
        if s == P.k_gb: streams.append((1, [("v", lambda t=t: k.vm(t, "gb")) for t in GB_LOADS]))
        if s == P.k_chk: streams.append((1, [("b", lambda: rendezvous(k))]))
        if s == 15 and P.k_chk < 16:
            streams.append((max(P.k_bar, 4), [("b", lambda: (k.e("s_barrier"), k.mark("xfree")))]))
        fill(k, mains, streams)
        if s in (3, 7, 11): k.stamp(f"k{s+1}")
    k.stamp("k16")
    if P.k_chk >= 16: rendezvous(k)

GB_LOADS = [f"buffer_load_dwordx4 {vr(36+4*j,4)}, v{vL16}, {SRD_WS}, s75 offen offset:{j*1024} sc1" for j in range(4)] + \
           [f"buffer_load_dword v{vP}, v172, {SRD_WS}, s77 offen offset:8 sc1"]
def arrive(k):
    k.wait(vm=["tag"])
    k.e(f"v_readfirstlane_b32 s{sTAG}, v170", f"s_cmp_eq_u32 s{sTAG}, 0", "s_cbranch_scc1 L_tag_spin ;np", "L_tag_ok: ;np")
    k.spins += ["L_tag_spin:", f"s_sub_u32 s{sBUD}, s{sBUD}, 1", "s_cbranch_scc1 L_tag_give", f"buffer_load_dword v170, v{vFA}, {SRD_DBG}, 0 offen sc1",
                "s_waitcnt vmcnt(0)", f"v_readfirstlane_b32 s{sTAG}, v170", f"s_cmp_eq_u32 s{sTAG}, 0", "s_cbranch_scc1 L_tag_spin", "s_branch L_tag_ok",
                "L_tag_give:", f"s_mov_b32 s{sBUD}, 0", "s_branch L_tag_ok"]
    k.e(f"v_mov_b32 v176, s{sTAG}", "v_not_b32 v177, v176", f"v_mov_b32 v178, s{sXCC}")
    k.vm(f"buffer_store_dwordx4 v[176:179], v171, {SRD_WS}, s75 offen sc1", "arr")

def rendezvous(k):
    chk = [f"s_not_b32 s32, s{sTAG}"]
    for j in range(4): chk += [f"v_xor_b32 v{36+4*j}, s{sTAG}, v{36+4*j}", f"v_xor_b32 v{37+4*j}, s32, v{37+4*j}"]
    chk += ["v_or3_b32 v36, v36, v37, v40", "v_or3_b32 v44, v44, v45, v41", "v_or3_b32 v36, v36, v48, v49", "v_or_b32 v36, v36, v44", "v_cmp_ne_u32 vcc, 0, v36"]
    k.wait(vm=["gb"])
    k.e(*chk); k.e("s_cbranch_vccnz L_gb_spin ;np", "L_gb_ok: ;np")
    k.spins += ["L_gb_spin:", f"s_sub_u32 s{sBUD}, s{sBUD}, 1", "s_cbranch_scc1 L_gb_give", "s_sleep 2"] + GB_LOADS + ["s_waitcnt vmcnt(0)"] + chk + \
               ["s_cbranch_vccnz L_gb_spin", "s_branch L_gb_ok", "L_gb_give:", f"s_mov_b32 s{sBUD}, 0", "s_branch L_gb_ok"]
    k.e(f"v_cmp_ne_u32 vcc, s{sXCC}, v{vP}", "s_and_b32 s99, vcc_lo, 0xffff" if not P.safe else "s_and_b32 s99, 1, 1",
        f"s_cselect_b32 s{sML}, {OOB>>1:#x}, 0", f"s_cselect_b32 s{sMS}, 0, {OOB>>1:#x}")
    k.mark("gb")

W_OA, W_UA, W_SA, W_RB = 152, 154, 155, 156
def wo_bases(k):
    k.e(f"s_lshl_b32 s32, s{sB}, 2", f"s_add_u32 s32, s32, s{sW}", "s_lshl_b32 s64, s32, 14", f"s_lshl_b32 s33, s{sCS}, 10", "s_add_u32 s64, s64, s33",
        "s_lshr_b32 s32, s32, 1", "s_lshl_b32 s80, s32, 15", "s_lshl_b32 s65, s32, 11", "s_lshl_b32 s66, s32, 3", f"s_add_u32 s66, s66, s{sCS}", "s_lshl_b32 s66, s66, 1",
        f"s_and_b32 s32, s{sW}, 1", "s_add_u32 s66, s66, s32", "s_lshl_b32 s66, s66, 2", "s_lshl_b32 s32, s32, 8", "s_add_u32 s80, s80, s32", "s_add_u32 s65, s65, s32",
        f"s_lshr_b32 s32, s{sCS}, 1", "s_lshl_b32 s32, s32, 9", "s_add_u32 s65, s65, s32", f"s_and_b32 s32, s{sCS}, 1", "s_lshl_b32 s32, s32, 3", "s_add_u32 s65, s65, s32")
def wo_lanes(k):
    x, y = 66, 67
    return [lambda t=t: k.e(*t) for t in (
        [f"v_and_b32 v{x}, 15, v1"], [f"v_lshrrev_b32 v{y}, 4, v1"], [f"v_lshlrev_b32 v{W_OA}, 4, v{x}"], [f"v_lshl_add_u32 v{W_SA}, v{y}, 2, v{W_OA}"],
        [f"v_lshl_add_u32 v{W_OA}, v{y}, 9, v{W_OA}"], [f"v_and_b32 v{W_UA}, 7, v1"], [f"v_lshlrev_b32 v{W_UA}, 4, v{W_UA}"], [f"v_lshl_add_u32 v{W_UA}, v{y}, 7, v{W_UA}"],
        [f"v_lshrrev_b32 v{x}, 3, v{x}"], [f"v_lshl_add_u32 v{W_UA}, v{x}, 13, v{W_UA}"], [f"v_add_u32 v{W_RB}, {6*16384}, v{vL16}"],
        ["v_cmp_gt_u32 vcc, 32, v1", f"v_mov_b32 v{y}, {OOB:#x}", f"v_cndmask_b32 v{W_SA}, v{y}, v{W_SA}, vcc"])]
def blanks(k, layer):
    if not P.tags: return [lambda: k.mark("blank")]
    z = 66
    return [lambda: (k.e(f"v_mov_b32 v{z}, -1"), k.dstore(f"buffer_store_dword v{z}, v{vL16}, {SRD_WS}, s53 offen", "blank")),
            lambda: (k.e(f"s_add_u32 s58, s64, {BX1[layer]}"), k.dstore(f"buffer_store_dword v{z}, v{W_UA}, {SRD_WS}, s58 offen", "blank")),
            lambda: k.dstore(f"buffer_store_dword v{z}, v{W_UA}, {SRD_WS}, s58 offen offset:512", "blank"),
            lambda: (k.e(f"s_add_u32 s58, s65, {BS1[layer]}"), k.dstore(f"buffer_store_dword v{z}, v{W_SA}, {SRD_WS}, s58 offen", "blank"), k.mark("blank"))]
def wo_prepoll(k, layer):
    k.poll_addr(A_PA, 32)
    k.e(f"s_lshl_b32 s32, s{sB}, 7", f"s_add_u32 s{sPO}, s32, {fl(layer, FL_O)}", f"s_add_u32 s59, s80, {BO[layer]}")
    k.bg_held = True
    k.poll_issue(A_PA, "po1"); k.mark("po1")

def dna(k): return regloads(k, sDS, 0, lambda j: ar(192 + 4*j, 4), 16, "dna")

def tail_prep(k):
    R = R0
    A = lambda *t: [("a", lambda x=x: k.e(x)) for x in t]
    B = lambda *t: [("b", lambda: k.e(*t))]
    ops = A("v_and_b32 v73, 15, v1", "v_lshrrev_b32 v74, 4, v1", "v_lshlrev_b32 v73, 10, v73", "v_lshl_add_u32 v73, v74, 4, v73")
    ops += B(f"s_lshl_b32 s58, s{sB}, 2", f"s_add_u32 s58, s58, s{sW}", "s_lshl_b32 s58, s58, 14", f"s_lshl_b32 s59, s{sCS}, 7", "s_add_u32 s58, s58, s59")
    ops += [("v", lambda p=p: k.vm(f"buffer_load_dwordx4 {vr(RES+4*p,4)}, v73, {SRD_X}, s58 offen offset:{p*64}", "res")) for p in range(2)]
    ops += A("v_and_b32 v75, 3, v1", "v_cmp_eq_u32 s[34:35], 1, v75", "v_cmp_eq_u32 s[36:37], 2, v75", "v_cmp_eq_u32 s[38:39], 3, v75", "v_bfe_u32 v75, v1, 2, 2")
    ops += B("v_cmp_eq_u32 vcc, v75, v74", f"v_mov_b32 v72, {L_SA0 + 768}", f"s_lshl_b32 s59, s{sW}, 7", f"v_add_u32 v74, s59, v{R.SA}",
             "v_cndmask_b32 v74, v72, v74, vcc", f"v_cndmask_b32 v75, v72, v{R.SA}, vcc")
    return ops + [("a", f) for f in wo_lanes(k)]

def l0_background(k):
    k.per = dict(P.per_k)
    dd = dna(k)
    bg_list(k, dd[:P.dna_first], "s4", "dna", "gb")
    bg_list(k, wow(k), "s4", "wow", "xfree")
    bg_batches(k, [0, 1, 2, 3], "s2", lambda b: "xfree")
    bg_batches(k, [4], "s2", lambda b: "wobar")
    bg_batches(k, [5], "s2", lambda b: "xfree")
    bg_batches(k, [6, 7, 8, 9], "s2", lambda b: "gubar")
    bg_list(k, dd[P.dna_first:], "s4", "dna")
P.per_k = {"s2": 90, "s4": 70}

def a10_tail(k):
    R = R0
    k.per = dict(P.per_tail0)
    k.stamp("t0 gb")
    k.touch(72, "t", [f"s_add_u32 s32, s65, {BS1[0]}"])
    k.bg_burst(2)
    hk, hv = z_acc("h")[1], z_acc("h")[2]
    for r in range(4):
        k.e(f"v_mov_b32_dpp v{CSQ+r}, v{Z_CV+r} row_newbcast:0 row_mask:0xf bank_mask:0xf", f"v_mov_b32_dpp v{CSK+r}, v{hk+r} row_newbcast:0 row_mask:0xf bank_mask:0xf")
    k.e(f"v_mov_b32 v{CSV}, v{hv}", f"v_mov_b32 v45, v{hv}", f"v_permlane16_swap_b32 v{CSV}, v45", f"v_mov_b32 v45, v{CSV}", f"v_permlane32_swap_b32 v{CSV}, v45")
    fa = Flex(); fb = Flex()
    for fx, S, G, ad, off in ((fa, Z_SUM, Z_GR, 74, 128), (fb, Z_SUMH, Z_GRH, 75, 0)):
        a = lambda txt, c=1, fx=fx: fx.add(lambda: k.e(txt), c)
        a(f"v_cndmask_b32 v{S+1}, v{G}, v{G+1}, s[34:35]"); a(f"v_cndmask_b32 v{S+1}, v{S+1}, v{G+2}, s[36:37]"); a(f"v_cndmask_b32 v{S+1}, v{S+1}, v{G+3}, s[38:39]")
        ln_finish(a, S, S + 1); a(f"v_rsq_f32 v{S+1}, v{S+1}"); fx.skip(1)
        fx.add(lambda S=S, ad=ad, off=off: k.ds(f"ds_write_b64 v{ad}, {vr(S,2)} offset:{off}", "saw"))
    drain([fa, fb], k)
    for f in blanks(k, 0): f()
    k.wait(lg="all"); k.e("s_barrier"); k.mark("xfree")
    k.stamp("t0 bar")
    fx = Flex(); f1 = Flex(); f2 = Flex()
    od = (2, 1, 3, 0, "h"); Ss = (A_STA, 56)
    for f in fix_reads(k, R, od[0], Ss[0]): f()
    for n, t in enumerate(od):
        fix(k, R, fx, t, z_acc(t), 0, True, Ss[n & 1], True, fix_reads(k, R, od[n + 1], Ss[~n & 1]) if n < 4 else ()); fx.skip(1)
    attn(k, R, f1, 2, R.ATT[0]); attn(k, R, f2, 3, R.ATT[1]); ostore(k, f2, 1)
    attn(k, R, f1, 1, R.ATT[0]); attn(k, R, f2, 0, R.ATT[1]); ostore(k, f2, 0)
    f3 = Flex(); f3.dep(("ost", 1))
    for _ in range(P.l0_flag_delay): f3.skip(1)
    f3.add(lambda: (k.wait(vm=[("ost", 1)]), k.flag(1, 89), k.mark("oflag1")))
    f3.dep(("attn", 0)); f3.add(lambda: wo_prepoll(k, 0))
    drain([fx, f1, f2, f3], k)
    k.stamp("a1 end")
P.l0_flag_delay = 6; P.dna_first = 2
P.per_tail0 = {"s2": 70, "s4": 45}

def a11_bases(k):
    out = []
    S = lambda *t: out.extend(lambda x=x: k.e(x) for x in t)
    S(f"s_lshr_b32 s70, s{sW}, 1", "s_lshl_b32 s49, s70, 13", f"s_and_b32 s71, s{sW}, 1", "s_lshl_b32 s71, s71, 2",
      f"s_add_u32 s50, s71, s{sROT}", "s_lshl_b32 s71, s71, 10")
    for i in range(4):
        S(f"s_add_u32 s70, s50, {i}", "s_and_b32 s70, s70, 7", "s_lshl_b32 s70, s70, 10", "s_add_u32 s70, s70, s49", f"s_sub_u32 s{92+i}, s70, {i*1024}")
    S("s_add_u32 s49, s49, s71", f"s_lshl_b32 s47, s{sB}, 16", f"s_add_u32 s47, s47, {WS_X[1]}")
    S(f"s_sub_u32 s48, s{sB}, 1", "s_max_i32 s48, s48, 0", "s_lshl_b32 s51, s48, 10", f"s_add_u32 s51, s51, {WS_HST}",
      "s_lshl_b32 s52, s48, 11", f"s_add_u32 s52, s52, {WS_HXF}", "s_lshl_b32 s48, s48, 14", f"s_add_u32 s48, s48, {WS_HALO}")
    S("v_lshrrev_b32 v28, 4, v1", "v_and_b32 v29, 15, v1", "v_lshlrev_b32 v29, 4, v29", f"v_lshl_add_u32 v{A_U}, v28, 9, v29", f"v_lshl_add_u32 v{A_U+1}, v28, 8, v29")
    S(f"s_lshl_b32 s70, s{sB}, 12", f"s_and_b32 s71, s{sW}, 1", "s_lshl_b32 s71, s71, 8", "s_add_u32 s70, s70, s71", f"s_add_u32 s90, s70, {WS_ST[1]}")
    out.append(lambda: k.e(f"s_lshl_b32 s70, s{sB}, 1", f"s_add_u32 s70, s70, s{sW}", "s_lshl_b32 s72, s70, 13", f"s_lshl_b32 s71, s{sCS}, 10", "s_add_u32 s72, s72, s71",
        f"s_add_u32 s72, s72, {WS_HALO - 16384}", f"s_cmp_ge_u32 s{sW}, 2", f"s_cselect_b32 s72, s72, {OOB>>1:#x}"))
    out.append(lambda: k.e(f"s_lshl_b32 s73, s{sB}, 10", f"s_lshr_b32 s71, s{sCS}, 1", "s_lshl_b32 s71, s71, 8", "s_add_u32 s73, s73, s71", f"s_and_b32 s71, s{sCS}, 1",
        "s_lshl_b32 s71, s71, 3", "s_add_u32 s73, s73, s71"))
    out.append(lambda: k.e(f"s_lshl_b32 s71, s{sW}, 7", "s_add_u32 s73, s73, s71", f"s_add_u32 s73, s73, {WS_HST - 256}",
        f"s_cmp_ge_u32 s{sW}, 2", f"s_cselect_b32 s73, s73, {OOB>>1:#x}"))
    out.append(lambda: k.e(f"s_lshl_b32 s70, s{sB}, 3", f"s_add_u32 s70, s70, s{sCS}", "s_lshl_b32 s70, s70, 1", f"s_add_u32 s70, s70, s{sW}", "s_lshl_b32 s70, s70, 7",
        f"s_add_u32 s70, s70, {WS_HXF - 256}", f"s_cmp_ge_u32 s{sW}, 2", f"s_cselect_b32 s91, s70, {OOB>>1:#x}"))
    return out

def a11_x(k, tile):
    fns = []
    for i in range(4):
        def f(i=i):
            k.set_m0(f"s_add_u32 m0, s49, {A11_POS[tile]*16384}")
            k.e(f"s_add_u32 s32, s{48 if tile == 'h' else 47}, s{92+i}")
            if tile not in (0, "h"): k.e(f"s_add_u32 s32, s32, {tile*16384}")
            k.vm(f"buffer_load_dwordx4 v{vL16}, {SRD_WS}, s32 offen offset:{i*1024} sc1 lds", ("x", tile))
        fns.append(f)
    return fns

def stats_path(k, fx, S, tag, addr, tok, at=0):
    a = lambda txt, c=1: fx.add(lambda: k.e(txt), c)
    s, q = S, S + 1
    fx.add(lambda: k.wait(vm=[tag]), 1, at)
    a(f"v_add_f32 v{s}, v{s}, v{S+2}"); a(f"v_add_f32 v{q}, v{q}, v{S+3}"); fx.skip(1)
    a(f"v_permlane16_swap_b32 v{s}, v{q}", 2); a(f"v_add_f32 v{s}, v{s}, v{q}"); a(f"v_mov_b32 v{q}, v{s}"); fx.skip(1)
    a(f"v_permlane32_swap_b32 v{s}, v{q}", 2); a(f"v_add_f32 v{s}, v{s}, v{q}"); a(f"v_mov_b32 v{q}, v{s}"); fx.skip(1)
    a(f"v_permlane16_swap_b32 v{s}, v{q}", 2)
    ln_finish(a, s, q); a(f"v_rsq_f32 v{q}, v{q}", 2); fx.skip(1)
    fx.add(lambda: (k.ds(f"ds_write_b64 v{addr}, {vr(s,2)} offset:{tok*8}", ("saw", tag)), k.mark(("saw", tag))))

def a11_early(k):
    k.vm(f"buffer_load_dwordx4 {vr(A_ST,4)}, v{A_U}, {SRD_WS}, s90 offen offset:2048 sc1", "st0")
    for t in A11_ORDER[:2]:
        for f in a11_x(k, t): f()

def a11_main(k):
    R = R1; order = A11_ORDER
    steps = [(t, s) for t in order for s in range(16)]
    accof = lambda t: A_ACC + 12 * (order.index(t) % 3)
    def xread(i):
        t, s = steps[i]
        off = A11_POS[t] * 16384 + (s >> 1) * 1024
        k.ds(f"ds_read_b128 {vr(A_XF+4*(i%4),4)}, v{R.XO if s&1 else R.XE} offset:{off}", ("xf", i))
    mains = []; fixed = {}; gap_of = {}
    need_sa = {order[1]: ["st0"], order[2]: ["st1"], order[3]: [], "h": []}
    for i, (t, s) in enumerate(steps):
        acc = accof(t); xf = vr(A_XF + 4*(i % 4), 4)
        c = lambda r, s=s: "0" if s == 0 else vr(r, 4)
        ms = []
        if t != "h": ms.append(f"{MF16} {vr(acc,4)}, {ar(12*s,4)}, {xf}, {c(acc)}")
        ms.append(f"{MF16} {vr(acc+4,4)}, {ar(12*s+4,4)}, {xf}, {c(acc+4)}")
        ms.append(f"{MF16} {vr(acc+8,4)}, {xf}, {ar(12*s+8,4)}, {c(acc+8)}")
        gap_of[(t, s)] = len(mains)
        for m in ms: mains.append(lambda m=m: k.e(m))
        last = len(mains) - 1
        fl_ = fixed.setdefault(last, [])
        if i + 1 < len(steps): fl_.append((0, lambda i=i: k.wait(lg=[("xf", i + 1)])))
        j = i + 4
        if j < len(steps):
            tj, sj = steps[j]
            if sj == 0:
                def bar(tj=tj):
                    k.wait(vm=[("x", tj)], lg=[("saw", n) for n in need_sa[tj]]); k.e("s_barrier"); k.mark(("bar", tj))
                fixed.setdefault(gap_of[(t, s)], []).append((1, bar))
            fixed[last].append((1, lambda j=j: xread(j)))
    fx = Flex(); fz = Flex(); fz2 = Flex(); fy = Flex(); fm = Flex()
    k.e(f"s_and_b32 s32, s{sW}, 1", "s_lshl_b32 s32, s32, 7", f"v_add_u32 v7, s32, v{R.SA}")
    o_bases(k, 1)
    stats_path(k, fy, A_ST, "st0", 7, 48)
    g1 = P.a1_late_gap
    fm.add(lambda: (k.wait(vm=[("xst", 1)]), k.flag(2)), 3, P.a1_flag_gap)
    fm.add(lambda: (k.poll_issue(A_PX, "px2"), setattr(k, "bg_held", not P.a1_bg_early)), 1, g1 - P.a1_poll_lead)
    fm.add(lambda: k.poll_check(A_PX, "px2", 2), 2, g1)
    fm.add(lambda: k.vm(f"buffer_load_dwordx4 {vr(56,4)}, v{A_U}, {SRD_WS}, s90 offen sc1", "st1"))
    for t in order[2:4]:
        for f in a11_x(k, t): fm.add(f, 2); fm.skip(P.a1_xgap)
    for f in wo_lanes(k): fy.add(f)
    fy.add(lambda: k.mark("wolanes"), 0)
    fm.dep("wolanes")
    fm.add(lambda: k.e(f"s_add_u32 s58, s64, {WS_X[1]}"))
    for p in range(2): fm.add(lambda p=p: k.vm(f"buffer_load_dwordx4 {vr(RES+4*p,4)}, v{W_UA}, {SRD_WS}, s58 offen offset:{p*512} sc1", "res")); fm.skip(P.a1_xgap)
    def halo_poll():
        k.poll_addr(A_PX, 16, 7)
        k.e(f"s_mov_b32 s{sPO}, s52", f"s_min_u32 s50, s{sB}, 1")
        k.poll_issue(A_PX, "phx"); k.bg_held = False
    fm.add(halo_poll, 3)
    if P.touch1 in (1, 2):
        fm.add(lambda: k.touch(60, "p", ["s_mov_b32 s32, s53"]), 6)
        fm.add(lambda: k.touch(62, "q", [f"s_add_u32 s32, s64, {BX1[1]}"]), 6)
        fm.add(lambda: k.touch(64, "t", [f"s_add_u32 s32, s65, {BS1[1]}"]), 4)
        if P.touch1 > 1: fm.add(lambda: k.touch(66, "h", h_base("s32", 1)), 6)
    for f in blanks(k, 1): fm.skip(P.a1_xgap); fm.add(f, 3)
    stats_path(k, fy, 56, "st1", 7, 16, g1 + 26)
    fm.dep(("bar", order[2]))
    fm.add(lambda: k.poll_check(A_PX, "phx", "s50"), 2)
    fm.add(lambda: k.vm(f"buffer_load_dwordx4 {vr(A_ST,4)}, v{A_U+1}, {SRD_WS}, s51 offen sc1", "sth"))
    for f in a11_x(k, "h"): fm.add(f, 2); fm.skip(P.a1_xgap)
    stats_path(k, fy, A_ST, "sth", R.SA, 0, gap_of[(order[3], P.a1_sth)])
    k.per = dict(P.per_a1); k.bg_held = True
    b5 = batch(k, 5)
    mix = [(f, "s2", ("gw", 4), None) for f in batch(k, 4)] + [(f, "s2", ("gw", 5), None) for f in b5[:3]]
    ww = [(f, "s4", "wow", None) for f in wow(k)]
    while mix or ww:
        k.bg += ww[:2]; ww = ww[2:]
        if mix: k.bg.append(mix.pop(0))
    bg_batches(k, [0], "s2", lambda b: ("bar", order[3]))
    bg_batches(k, [1], "s2", lambda b: ("bar", "h"))
    bg_batches(k, [2, 3], "s2", lambda b: "wobar")
    bg_list(k, b5[3:], "s2", ("gw", 5), "wobar")
    bg_batches(k, [6, 7, 8, 9], "s2", lambda b: "gubar")
    A = lambda t: (accof(t) if t != "h" else None, accof(t) + 4, accof(t) + 8)
    for n in range(4): fix(k, R, fx, order[n], A(order[n]), gap_of[(order[n + 1], 1 if n < 3 else 2)], False)
    attn(k, R, fz, 3, R.ATT[0]); attn(k, R, fz2, 2, R.ATT[1]); ostore(k, fz2, 1)
    attn(k, R, fz, 1, R.ATT[0])
    fx.dep(("saw", "sth"))
    for f in fix_reads(k, R, "h", A_STA): fx.add(f)
    fx.dep("gemm_done")
    fix(k, R, fx, "h", A("h"), 0, False, pre=True); attn(k, R, fz2, 0, R.ATT[1]); ostore(k, fz2, 0)
    f3 = Flex(); f3.dep(("ost", 1)); f3.skip(P.l1_flag_delay)
    f3.add(lambda: (k.wait(vm=[("ost", 1)]), k.flag(1, 89), k.mark("oflag1")), 3)
    f3.dep(("attn", 0)); f3.add(lambda: wo_prepoll(k, 1))
    k.wait(vm=[("x", order[0])]); k.e("s_barrier")
    for i in range(4): xread(i)
    k.wait(lg=[("xf", 0)])
    k.stamp("a1 first")
    if k.stamping:
        for t in order[1:]: fixed.setdefault(gap_of[(t, 0)], []).append((0, lambda t=t: k.stamp(f"a1 t{t}")))
        for g in range(6, 224, 12): fixed.setdefault(g, []).append((0, lambda g=g: k.stamp(f"fina {g}")))
    run_gaps(k, mains, fixed, [fm, f3, fy, fx, fz2, fz], 2, over=lambda i: i >= P.a1_over)
    print("a11 left:", len(fm), len(fy), len(fx), len(fz), len(fz2), len(k.bg), {n: g for n, g in k.marks.items() if isinstance(n, tuple) and n[0] in ("fix", "attn", "saw", "ost")})
    k.mark("gemm_done"); k.bg_held = P.a1_tailhold
    k.stamp("a1 gemm")
    drain([fm, fy, fx, fz, fz2, f3], k)
    for n in range(2): assert k.marks[("fix", order[n])] < gap_of[(order[n + 3], 0)], "accumulator reused too early"
    k.stamp("a1 end")
P.a1_flag_gap, P.a1_late_gap, P.a1_poll_lead, P.l1_flag_delay, P.a1_over = 8, 36, 18, 14, 48
P.a1_bg_early = False; P.a1_salead = 8; P.a1_tailhold = True; P.touch1 = 1; P.a1_xgap = 3; P.a1_sth = 4
P.per_a1 = {"s2": 95, "s4": 60}

R_W0, R_W1, R_RD, R_ST, R_OUT = 3, 4, 5, 6, 7
def red_setup(k, posA, dAB):
    x, y, z, u = 28, 29, 30, 31
    k.e(f"s_add_u32 s32, s{sGL}, {posA*16384}", f"v_add_u32 v{R_W0}, s32, v{vL16}", f"v_xor_b32 v{R_W1}, 128, v{R_W0}")
    k.e(f"v_and_b32 v{x}, 7, v1", f"v_lshrrev_b32 v{y}, 3, v1", f"s_lshl_b32 s32, s{sW}, 7", f"v_lshl_add_u32 v{z}, v{x}, 4, s32",
        f"v_bfe_u32 v{u}, v1, 4, 1", f"v_lshlrev_b32 v{R_RD}, 7, v{u}", f"v_xor_b32 v{z}, v{z}, v{R_RD}",
        f"v_bfe_u32 v{R_RD}, v1, 3, 2", f"v_lshl_add_u32 v{z}, v{R_RD}, 10, v{z}", f"v_lshrrev_b32 v{R_RD}, 5, v1",
        f"v_mul_u32_u24 v{R_RD}, {dAB*16384}, v{R_RD}", f"v_add_u32 v{z}, v{z}, v{R_RD}", f"v_add_u32 v{R_RD}, {posA*16384}, v{z}")
    k.e(f"v_lshlrev_b32 v{z}, 4, v{x}", f"v_lshl_add_u32 v{z}, v{u}, 2, v{z}", f"v_and_b32 v{u}, 0x28, v1",
        f"v_cmp_eq_u32 vcc, 0, v{u}", f"v_mov_b32 v{u}, {OOB:#x}", f"v_cndmask_b32 v{R_ST}, v{u}, v{z}, vcc")
    k.e(f"v_lshlrev_b32 v{z}, 10, v{x}", f"v_lshl_add_u32 v{R_OUT}, v{y}, 4, v{z}")

def red_bases(k):
    k.e(f"s_lshl_b32 s32, s{sB}, 3", f"s_add_u32 s32, s32, s{sW}", "s_lshl_b32 s55, s32, 13", f"s_lshl_b32 s33, s{sCS}, 10", "s_add_u32 s55, s55, s33")
    k.e("s_lshl_b32 s57, s32, 13", f"s_lshl_b32 s33, s{sCS}, 7", "s_add_u32 s57, s57, s33")
    k.e(f"s_lshl_b32 s56, s{sB}, 12", f"s_lshr_b32 s33, s{sCS}, 1", "s_lshl_b32 s33, s33, 9", "s_add_u32 s56, s56, s33",
        f"s_and_b32 s33, s{sCS}, 1", "s_lshl_b32 s33, s33, 3", "s_add_u32 s56, s56, s33", f"s_lshl_b32 s33, s{sW}, 7", "s_add_u32 s56, s56, s33")

def red_writes(k, acc, g, off, dAB):
    return [lambda q=q: k.ds(f"ds_write_b128 v{R_W1 if (q>>1)&1 else R_W0}, {vr(acc+4*q,4)} offset:{off + (q>>2)*dAB*16384 + (q&3)*1024}", ("rw", g)) for q in range(8)]
def red_reads(k, g, T, off):
    return [lambda w=w, hf=hf: k.ds(f"ds_read_b128 {vr(T+8*w+4*hf,4)}, v{R_RD} offset:{off + w*4096 + hf*512}", ("rr", g, w)) for w in range(4) for hf in range(2)]

def red_finish(k, fx, g, mm, T, xdst, stdst, final, pk):
    a = lambda txt, c=1: fx.add(lambda: k.e(txt), c)
    R = RES + 4 * mm
    def add8(d, s):
        if pk:
            for i in range(0, 8, 2): a(f"v_pk_add_f32 {vr(d+i,2)}, {vr(d+i,2)}, {vr(s+i,2)}")
        else:
            for i in range(8): a(f"v_add_f32 v{d+i}, v{d+i}, v{s+i}")
    fx.add(lambda: k.wait(lg=[("rr", g, 1)]))
    add8(T, T + 8)
    for i in range(4): a(f"v_lshlrev_b32 v{T+8+2*i}, 16, v{R+i}"); a(f"v_and_b32 v{T+9+2*i}, 0xffff0000, v{R+i}")
    add8(T, T + 8)
    fx.add(lambda: k.wait(lg=[("rr", g, 3)]))
    add8(T + 16, T + 24); add8(T, T + 16)
    for i in range(4): a(f"v_cvt_pk_bf16_f32 v{R+i}, v{T+2*i}, v{T+2*i+1}")
    if final:
        fx.add(lambda: (k.e(f"s_add_u32 s32, s57, {mm*32768}"), k.vm(f"buffer_store_dwordx4 {vr(R,4)}, v{R_OUT}, {SRD_OUT}, s32 offen {P.outm}", ("xst", g))))
        return
    fx.add(lambda: (k.e(f"s_add_u32 s32, s55, {xdst + mm*32768}"), k.dstore(f"buffer_store_dwordx4 {vr(R,4)}, v{vL16}, {SRD_WS}, s32 offen", ("xst", g))), 2)
    s, q = T + 32, T + 33
    a(f"v_add_f32 v{s}, v{T}, v{T+1}"); a(f"v_mul_f32 v{q}, v{T}, v{T}"); a(f"v_fmac_f32 v{q}, v{T+1}, v{T+1}")
    for i in range(2, 8): a(f"v_add_f32 v{s}, v{s}, v{T+i}"); a(f"v_fmac_f32 v{q}, v{T+i}, v{T+i}")
    fx.skip(1)
    a(f"v_add_f32_dpp v{s}, v{s}, v{s} row_ror:8 row_mask:0xf bank_mask:0xf"); a(f"v_add_f32_dpp v{q}, v{q}, v{q} row_ror:8 row_mask:0xf bank_mask:0xf")
    fx.skip(1)
    a(f"v_permlane16_swap_b32 v{s}, v{q}", 2); a(f"v_add_f32 v{s}, v{s}, v{q}"); a(f"v_mov_b32 v{q}, v{s}"); fx.skip(1)
    a(f"v_permlane32_swap_b32 v{s}, v{q}", 2); a(f"v_add_f32 v{s}, v{s}, v{q}")
    fx.add(lambda: (k.e(f"s_add_u32 s32, s56, {stdst + mm*2048}"), k.dstore(f"buffer_store_dword v{s}, v{R_ST}, {SRD_WS}, s32 offen", ("xst", g)), k.mark(("xst", g))), 2)

def merge(k, fx, extra, first=0):
    extra = list(extra)
    items = [it for it in fx.items if it[0] != "skip"]; fx.items = []
    per = max(1, (len(items) - first) // max(1, len(extra)))
    for n, it in enumerate(items):
        if n >= first and (n - first) % per == 0 and extra: extra.pop(0)()
        it[1](); k.bg_step()
    for f in extra: f(); k.bg_step()

def wo(k, layer):
    BF, WQ, ACC, T, PA, NQ = 32, 160, 192, 208, A_PA, 8
    state = {}
    def bload(sx):
        k.set_s(f"s_add_u32 s58, s59, {(sx & ~1)*2048}")
        k.vm(f"buffer_load_dwordx4 {vr(BF+4*sx,4)}, v{W_OA}, {SRD_WS}, s58 offen offset:{(sx%2)*2048} sc1", ("b", sx))
    def wread(n): k.ds(f"ds_read_b128 {vr(WQ+4*(n%NQ),4)}, v{W_RB} offset:{n*1024}", ("wq", n))
    k.wait(vm=["wow"]); k.e("s_barrier"); k.mark("wobar")
    for n in range(NQ): wread(n)
    btxt = lambda sx: [f"s_add_u32 s99, s59, {sx*2048}", f"buffer_load_dwordx4 {vr(BF+4*sx,4)}, v{W_OA}, {SRD_WS}, s99 offen sc1"]
    bchk = lambda sx: k.valid([f"v_cmp_eq_u32 vcc, -1, v{BF+4*sx}"], btxt(sx))
    ptxt = f"buffer_load_dword v{T+20}, v{T+21}, {SRD_WS}, s59 offen sc1"
    if P.tags:
        k.e(f"v_lshlrev_b32 v{T+21}, 8, v{PA}")
        k.e(f"v_or_b32 v{T+21}, v{T+21}, v{PA}", f"v_and_b32 v{T+21}, 0x80007c00, v{T+21}")
        k.poll_check(PA, "po1", 1)
        k.vm(ptxt, "probe")
        for sx in range(P.wo_spec): bload(sx)
        k.e(f"s_lshl_b32 s32, s{sC}, 1", f"s_and_b32 s33, s{sW}, 1", "s_add_u32 s32, s32, s33", "s_lshl_b32 s32, s32, 7", f"s_add_u32 s{sPO}, s32, {fl(layer, FL_O)}")
    else:
        k.e(f"s_add_u32 s{sFO}, s66, {fl(layer, FL_X1)}")
        k.e(f"s_cmp_lt_u32 s{sW}, 2", f"s_cbranch_scc1 L_wo_late{layer}")
        q0 = list(k.vmq)
        k.poll_check(PA, "po1", 1)
        for sx in range(P.wo_lead): bload(sx)
        k.wait(vm=[("ost", 0)]); k.flag(2, 89)
        k.e(f"s_branch L_wo_join{layer}")
        k.label(f"L_wo_late{layer}")
        k.vmq = list(q0)
        k.wait(vm=[("ost", 0)]); k.flag(2, 89)
        k.poll_issue(PA, "po2"); k.poll_check(PA, "po2", 2)
        for sx in range(P.wo_lead): bload(sx)
        k.label(f"L_wo_join{layer}")
    gu_setup(k, layer)
    k.stamp("wo issued")
    mains = []; fixed = {}
    for n in range(64):
        sx, j = divmod(n, 4)
        mains.append(lambda n=n, sx=sx, j=j: k.e(f"{MF16} {vr(ACC+4*j,4)}, {vr(WQ+4*(n%NQ),4)}, {vr(BF+4*sx,4)}, {'0' if sx == 0 else vr(ACC+4*j,4)}"))
        fl_ = fixed.setdefault(n, [])
        if n < 63: fl_.append((0, lambda n=n: k.wait(vm=[("b", (n + 1) // 4)] if (n + 1) % 4 == 0 else None, lg=[("wq", n + 1)])))
        if P.tags and n < 63 and (n + 1) % 4 == 0: fl_.append((1, lambda n=n: bchk((n + 1) // 4)))
        if P.tags and n == 42: fl_.append((1, lambda: k.poll_issue(PA, "px1")))
        if n + NQ < 64: fl_.append((1, lambda n=n: wread(n + NQ)))
        if n % P.wo_bstep == 0 and P.wo_lead + n // P.wo_bstep < 16: fl_.append((1, lambda n=n: bload(P.wo_lead + n // P.wo_bstep)))
    fx = Flex()
    a = lambda txt, c=1, at=0: fx.add(lambda: k.e(txt), c, at)
    fx.add(lambda: k.wait(vm=["res"]), 1, 8)
    for i in range(8): a(f"v_lshlrev_b32 v{T+2*i}, 16, v{RES+i}"); a(f"v_and_b32 v{T+2*i+1}, 0xffff0000, v{RES+i}")
    k.per = dict(P.per_wo[layer]); k.bg_held = False; k.bg_next = k.t + P.wo_bg_delay
    if P.tags:
        k.wait(vm=["probe"])
        k.valid([f"v_cmp_eq_u32 vcc, -1, v{T+20}"], [ptxt] + sum([btxt(x) for x in range(P.wo_spec)], []))
        state["fresh"] = True
        for sx in range(P.wo_spec, P.wo_lead): bload(sx)
    k.wait(vm=[("b", 0)], lg=[("wq", 0)])
    if P.tags: bchk(0)
    k.stamp("wo first")
    fixed[P.wo_bg_stop].append((0, lambda: setattr(k, "bg_held", True)))
    run_gaps(k, mains, fixed, [fx], 2)
    drain([fx], k)
    k.stamp("wo gemm")
    for i in range(0, 16, 2): k.e(f"v_pk_add_f32 {vr(T+i,2)}, {vr(T+i,2)}, {vr(ACC+i,2)}")
    k.e(f"s_add_u32 s58, s64, {BX1[layer]}")
    for p in range(2):
        for i in range(4): k.e(f"v_cvt_pk_bf16_f32 v{RES+4*p+i}, v{T+8*p+2*i}, v{T+8*p+2*i+1}")
        k.dstore(f"buffer_store_dwordx4 {vr(RES+4*p,4)}, v{W_UA}, {SRD_WS}, s58 offen offset:{p*512}", "xst")
    S, Q = T + 16, T + 18
    k.e(f"v_pk_add_f32 {vr(S,2)}, {vr(T,2)}, {vr(T+2,2)}", f"v_pk_mul_f32 {vr(Q,2)}, {vr(T,2)}, {vr(T,2)}", f"v_pk_fma_f32 {vr(Q,2)}, {vr(T+2,2)}, {vr(T+2,2)}, {vr(Q,2)}")
    for i in range(4, 16, 2): k.e(f"v_pk_add_f32 {vr(S,2)}, {vr(S,2)}, {vr(T+i,2)}", f"v_pk_fma_f32 {vr(Q,2)}, {vr(T+i,2)}, {vr(T+i,2)}, {vr(Q,2)}")
    k.e(f"v_add_f32 v{S}, v{S}, v{S+1}", f"v_add_f32 v{Q}, v{Q}, v{Q+1}", f"s_add_u32 s58, s65, {BS1[layer]}",
        f"v_permlane16_swap_b32 v{S}, v{Q}", f"v_add_f32 v{S}, v{S}, v{Q}", f"v_mov_b32 v{Q}, v{S}", f"v_permlane32_swap_b32 v{S}, v{Q}", f"v_add_f32 v{S}, v{S}, v{Q}")
    k.dstore(f"buffer_store_dword v{S}, v{W_SA}, {SRD_WS}, s58 offen", "xst")
    key = lambda it: it[2][1] if isinstance(it[2], tuple) else 11.5
    k.bg.sort(key=key)
    print(f"wo{layer} done, background left:", [it[2] for it in k.bg][::4])
    k.bg_burst(P.wo_win[layer])
    k.stamp("wo end")
P.wo_bg_delay = 200; P.wo_bg_stop = 56; P.wo_lead = 6; P.wo_spec = 3; P.gu_spec = 3; P.wo_bstep = 2
P.wo_poll_gap = 1; P.wo_late_gap = 7; P.wo_hold = True; P.wo_win = [4, 4]; P.wo_var = 'B'; P.wo_prew = 2
P.per_wo = [{"s2": 35, "s4": 35}] * 2

G_RB, G_C1, G_VV, G_AUG, G_X, G_ACC, G_WF, G_T = 3, 6, 7, 28, 32, 160, 224, 240
D_WV, D_BF, D_ACC, D_T, D_WF, D_RB, D_PA = 32, 64, 128, 192, 228, 112, 115
DN_SEQ = [(g, e) for g in range(2) for e in range(28)]
DN_GROUPS = [1, 0]
def h_loader(k, layer):
    def bload(i):
        if i == 0:
            k.e(f"s_mul_i32 s32, s{sB}, {224*KB}", f"s_mul_i32 s33, s{sW}, {28*KB}", "s_add_u32 s32, s32, s33", f"s_add_u32 s59, s32, {BH[layer]}")
            for p in range(4):
                k.e(f"s_add_u32 s32, s{sCS}, {p}", f"s_and_b32 s32, s32, {3 if P.hrot else 0}", f"s_mul_i32 s32, s32, {7*KB}", f"s_add_u32 s{34+p}, s59, s32")
                if not P.hrot: k.e(f"s_add_u32 s{34+p}, s{34+p}, {7*KB*p}")
        g, e = DN_SEQ[i]; p, tl = divmod(KK_OF[e], 7)
        k.set_s(f"s_add_u32 s58, s{34+p}, {DN_GROUPS[g] * 112 * KB + (tl & 4) * 1024}")
        k.vm(f"buffer_load_dwordx4 {vr(D_BF+4*(i%P.dn_lead),4)}, v{vL16}, {SRD_WS}, s58 offen offset:{(tl & 3)*1024} sc1", ("b", i))
    return bload

def gu_setup(k, layer):
    T = G_T; XA = T + 3
    k.e(*gu_tile("s50"))
    k.e(f"v_and_b32 v{T}, 31, v1")
    k.e(f"v_mov_b32 v{G_RB}, v{vL16}", f"v_add_u32 v{G_RB+1}, 0x10000, v{vL16}", f"v_add_u32 v{G_RB+2}, 0x20000, v{vL16}")
    k.e(f"v_lshrrev_b32 v{T+1}, 5, v1", f"v_lshlrev_b32 v{G_AUG+3}, 4, v{T}", f"v_lshl_add_u32 v{G_AUG+3}, v{T+1}, 10, v{G_AUG+3}")
    k.e(f"v_lshrrev_b32 v{XA}, 3, v{T}", f"v_lshlrev_b32 v{XA}, 13, v{XA}", f"v_lshl_add_u32 v{XA}, v{T+1}, 7, v{XA}",
        f"v_and_b32 v{T}, 7, v1", f"v_lshl_add_u32 v{XA}, v{T}, 4, v{XA}")
    k.e("s_lshl_b32 s32, s50, 11", f"s_add_u32 s51, s32, {BS1[layer]}")
    k.e("s_lshl_b32 s32, s50, 15", f"s_add_u32 s52, s32, {BX1[layer]}", "s_add_u32 s53, s52, 4096")
    k.e(*h_base("s54", layer))
    k.e("s_lshr_b32 s32, s50, 1", "s_lshl_b32 s32, s32, 4", f"s_add_u32 s32, s32, s{sM}",
        "s_lshl_b32 s32, s32, 1", "s_and_b32 s33, s50, 1", "s_add_u32 s32, s32, s33", "s_lshl_b32 s32, s32, 2", f"s_add_u32 s81, s32, {fl(layer, FL_H)}")

def gu(k, layer):
    T = G_T; XA = T + 3; PA = T + 2
    if P.tags: k.poll_check(A_PA, "px1", 1)
    else:
        k.poll_addr(PA, 16)
        k.e("s_lshl_b32 s32, s50, 6", f"s_add_u32 s{sPO}, s32, {fl(layer, FL_X1)}")
        k.wait(vm=["xst"]); k.flag(1)
        k.stamp("x1 flag")
        k.poll_issue(PA, "px1")
    k.e(f"s_mov_b32 s{sFO}, s81")
    seq = [(t, ks) for ks in range(33) for t in range(3)] + [(t, ks) for t in range(3, 7) for ks in range(33)]
    accof = {0: 0, 1: 1, 2: 2, 3: 3, 4: 0, 5: 1, 6: 2}
    NW = P.gu_nw
    WQ = [G_WF, G_WF + 4, G_WF + 8, G_WF + 12, T + 12]
    def wread(n):
        slot = (n % 160) * 1024
        k.ds(f"ds_read_b128 {vr(WQ[n%NW],4)}, v{G_RB + (slot>>16)} offset:{slot & 0xffff}", ("wf", n))
    if not P.tags: k.poll_check(PA, "px1", 1)
    k.stamp("gu go")
    xtxt = lambda kg: f"buffer_load_dwordx4 {vr(G_X+4*kg,4)}, v{XA}, {SRD_WS}, s{52 + (kg>>4)} offen offset:{((kg>>2)&3)*1024 + (kg&3)*256} sc1"
    def xload(kg): k.vm(xtxt(kg), ("gx", kg))
    xchk = lambda kg: k.valid([f"v_cmp_eq_u32 vcc, -1, v{G_X+4*kg}"], [xtxt(kg)])
    stxt = [f"buffer_load_dwordx4 {vr(T+4+4*h,4)}, v{G_AUG+3}, {SRD_WS}, s51 offen offset:{512*h} sc1" for h in range(2)]
    if P.tags:
        for t_ in stxt: k.vm(t_, "gst")
        for kg in range(P.gu_spec): xload(kg)
        k.wait(vm=["gst"])
        k.valid([f"v_max3_u32 v{T}, v{T+4}, v{T+6}, v{T+8}", f"v_max_u32 v{T}, v{T}, v{T+10}", f"v_cmp_eq_u32 vcc, -1, v{T}"],
                stxt + [xtxt(x) for x in range(P.gu_spec)])
        k.stamp("gu probe")
        for kg in range(P.gu_spec, P.gu_lead): xload(kg)
    else:
        for kg in range(P.gu_lead): xload(kg)
        for t_ in stxt: k.vm(t_, "gst")
    k.wait(vm=[("gw", 0)]); k.e("s_barrier"); k.mark("gubar")
    for n in range(NW): wread(n)
    mains = []; fixed = {}
    xpos = {}
    for kg in range(P.gu_lead, 32): xpos.setdefault(int((kg - P.gu_lead) * P.gu_xstep), []).append(kg)
    for n, (t, ks) in enumerate(seq):
        acc = G_ACC + 16 * accof[t]
        b = vr(G_AUG, 4) if ks == 32 else vr(G_X + 4*ks, 4)
        c = "0" if ks == 0 else vr(acc, 16)
        mains.append(lambda n=n, acc=acc, b=b, c=c: k.e(f"{MF32} {vr(acc,16)}, {vr(WQ[n%NW],4)}, {b}, {c}"))
        fl_ = fixed.setdefault(n, [])
        if n + 1 < len(seq):
            t2, ks2 = seq[n + 1]
            need = [("gx", ks2)] if (t2 == 0 and ks2 < 32) else None
            fl_.append((0, lambda n=n, need=need: k.wait(vm=need, lg=[("wf", n + 1)])))
            if need and P.tags: fl_.append((2, lambda ks2=ks2: xchk(ks2)))
        j = n + NW
        if j < len(seq):
            if j % 16 == 0:
                fl_.append((2, lambda bi=j//16: (k.wait(vm=[("gw", bi)]), k.e("s_barrier" if not P.x_nobar else "s_nop 0"), k.mark(("gbar", bi)))))
            fl_.append((1, lambda j=j: wread(j)))
        for kg in xpos.get(n, []): fl_.append((1, lambda kg=kg: xload(kg)))
    xend = max(xpos)
    tail = [it for it in k.bg if it[2] == "dna"]; k.bg = [it for it in k.bg if it[2] != "dna"]
    bg_batches(k, [10, 11], "s2", lambda b: ("gbar", b - 8))
    mid = []
    for b in (12, 13, 14):
        for f in batch(k, b): mid.append((f, "s2", ("gw", b), ("gbar", b - 8)))
    while mid or tail:
        if mid: k.bg.append(mid.pop(0))
        if tail: k.bg.append(tail.pop(0))
    bg_batches(k, range(15, 23), "s4", lambda b: ("gbar", b - 8))
    k.per = dict(P.per_guA[layer]); k.bg_held = False; k.bg_next = k.t + P.gu_bg_delay
    fixed[xend].append((0, lambda: setattr(k, "per", dict(P.per_guB[layer]))))
    fv = Flex()
    dv = regloads(k, sDS, 48*1024, lambda j: vr(D_WV + 4*j, 4), 8, "dnv")
    k.hload = h_loader(k, layer)
    if P.hpre:
        bg_list(k, dv, "s4", "dnv", "xdead")
        fixed[207].append((0, lambda: k.mark("xdead")))
    else:
        for j, f in enumerate(dv): fv.add(f, 1, 198 + 2 + 3*j)
    fx = Flex()
    a = lambda txt, c=1, at=0: fx.add(lambda: k.e(txt), c, at)
    fx.add(lambda: k.wait(vm=["gst"]), 1, 3 * P.gu_lead)
    a(f"v_add_f32 v{T+4}, v{T+4}, v{T+6}"); a(f"v_add_f32 v{T+5}, v{T+5}, v{T+7}"); a(f"v_add_f32 v{T+8}, v{T+8}, v{T+10}"); a(f"v_add_f32 v{T+9}, v{T+9}, v{T+11}")
    a(f"v_add_f32 v{T+4}, v{T+4}, v{T+8}"); a(f"v_add_f32 v{T+5}, v{T+5}, v{T+9}"); fx.skip(1)
    a(f"v_permlane32_swap_b32 v{T+4}, v{T+5}", 2); a(f"v_add_f32 v{T+4}, v{T+4}, v{T+5}"); a(f"v_mov_b32 v{T+5}, v{T+4}"); fx.skip(1)
    a(f"v_permlane32_swap_b32 v{T+4}, v{T+5}", 2)
    ln_finish(a, T + 4, T + 5)
    a(f"v_mov_b32 v{G_VV}, v{T+5}")
    a(f"v_rsq_f32 v{G_C1}, v{T+5}", 2); a(f"v_cvt_pk_bf16_f32 v{G_AUG}, v{T+4}, v{T+4}"); a(f"v_mul_f32 v{G_C1}, {f2u(-LOG2E):#x}, v{G_C1}")
    a(f"v_and_b32 v{T+5}, 0xffff0000, v{G_AUG}"); a(f"v_sub_f32 v{T+5}, v{T+4}, v{T+5}"); a(f"v_mov_b32 v{G_AUG+2}, 0")
    a(f"v_cvt_pk_bf16_f32 v{G_AUG+1}, v{T+5}, v{G_AUG+2}"); a(f"v_mov_b32 v{G_AUG+3}, 0")
    fx.add(lambda: k.mark("aug"), 0)
    def epi(t, at):
        acc = G_ACC + 16 * accof[t]; hp = T + 8; E = T + 4
        if P.x_noepi: a("s_nop 0", 1, at)
        for i0 in range(0, 8 if not P.x_noepi else 0, 2):
            for i in (i0, i0 + 1): a(f"v_mul_f32 v{E+(i&1)}, v{G_C1}, v{acc+i}", 1, at)
            for i in (i0, i0 + 1): a(f"v_exp_f32 v{E+(i&1)}, v{E+(i&1)}", 2)
            for i in (i0, i0 + 1): a(f"v_mul_f32 v{E+2+(i&1)}, v{acc+i}, v{acc+8+i}")
            for i in (i0, i0 + 1): a(f"v_fma_f32 v{E+(i&1)}, v{E+(i&1)}, v{G_VV}, v{G_VV}")
            for i in (i0, i0 + 1): a(f"v_rcp_f32 v{E+(i&1)}, v{E+(i&1)}", 2)
            fx.skip(1)
            for i in (i0, i0 + 1): a(f"v_mul_f32 v{E+2+(i&1)}, v{E+2+(i&1)}, v{E+(i&1)}")
            a(f"v_cvt_pk_bf16_f32 v{hp+i0//2}, v{E+2}, v{E+3}")
        fx.add(lambda: k.mark(("epi", t)), 0)
        if t == 4: a("s_add_u32 s54, s54, 4096")
        fx.add(lambda: ((k.dstore if ((layer and P.h1_plain) or (not layer and P.h_touch0)) else lambda x, tg: k.vm(x + " sc1", tg))(f"buffer_store_dwordx4 {vr(hp,4)}, v{vL16}, {SRD_WS}, s54 offen offset:{(t%4)*1024}", ("hst", t)), k.mark(("hst", t))), 2)
    end = {t: max(n for n, x in enumerate(seq) if x[0] == t) for t in range(7)}
    for t in range(6): epi(t, end[t] + 3)
    if layer == 0 and P.h_touch0 == "g": fixed[xend + 1].append((5, lambda: k.touch(T, "h", ["s_mov_b32 s32, s54"])))
    ff = Flex(); ff.dep(("hst", 3))
    if layer == 0:
        tx = [lambda: k.touch(T, "p", [f"s_add_u32 s32, s55, {WS_X[1]}"]), lambda: k.touch(T + 1, "s", [f"s_add_u32 s32, s56, {WS_ST[1]}"])]
        if P.x2_touch == "h3": ff.add(tx[0], 6); ff.add(tx[1], 4)
        elif isinstance(P.x2_touch, int): fixed[P.x2_touch].append((5, tx[0])); fixed[P.x2_touch + 1].append((4, tx[1]))
        if "g" in str(P.touch1):
            for f in touch_next(k, T + 2)[:2]: ff.skip(1); ff.add(f, 6)
    ff.skip(P.gu_flag_delay)
    ff.add(lambda: (k.wait(vm=[("hst", 3)]), k.flag(1)), 3)
    def hpoll():
        k.wait(vm=["touch"] if "touch" in k.seen else None)
        k.poll_addr(T, 8)
        k.e(f"s_lshl_b32 s32, s{sB}, 7", f"s_lshl_b32 s33, s{sW}, 5", "s_add_u32 s32, s32, s33", f"s_add_u32 s{sPO}, s32, {fl(layer, FL_H)}")
        k.poll_issue(T, "ph1")
    if P.hpre:
        ff.add(hpoll, 4, P.hp_chk - 12)
        ff.add(lambda: (k.poll_check(T, "ph1", 1), setattr(k, "bg_held", True)), 3, P.hp_chk)
        for j in range(P.hpre): ff.add(lambda j=j: k.hload(j), 2, max(208 + j, int(P.hp_chk + 1 + j * P.hp_step)))
    else: ff.add(hpoll, 4, 228)
    k.wait(vm=[("gx", 0)], lg=[("wf", 0)])
    if P.tags: xchk(0)
    k.stamp("gu first")
    if k.stamping:
        for g in (48, 98, 131, 164, 197): fixed[g].append((0, lambda g=g: k.stamp(f"gu m{g}")))
    fixed[93].append((0, lambda: k.marks["aug"]))
    run_gaps(k, mains, fixed, [fv, ff, fx], P.gu_cap)
    print("gu left:", len(k.bg), len(fv), len(ff), len(fx), {n: g for n, g in k.marks.items() if isinstance(n, tuple) and n[0] == "hst"})
    k.stamp("gu gemm")
    for g, t in {132: 0, 165: 1, 198: 2}.items(): assert k.marks[("epi", t)] < g, "accumulator reused too early"
    epi(6, 0); drain([ff, fv, fx], k)
    k.e(f"v_mov_b32 v{D_PA}, v{T}")
    k.stamp("gu end")
P.x2_touch = 'h3'; P.dn_x2 = 2; P.hrot = 0; P.hpre = 0; P.hp_chk = 208; P.hp_step = 2.2; P.gu_flag_delay = 10; P.gu_xstep = 2.6; P.gu_bg_delay = 300
P.per_guA = [{"s2": 120, "s4": 120}, {"s2": 160, "s4": 160}]
P.per_guB = [{"s2": 90, "s4": 55}] * 2

def dn(k, layer):
    final = layer == 1
    NB = P.dn_lead; T = D_T
    groups = DN_GROUPS; seq = DN_SEQ; bload = k.hload
    early = Flex()
    def rb(): k.e(f"v_add_u32 v{D_RB}, s{sGL}, v{vL16}", f"v_add_u32 v{D_RB+1}, 0x10000, v{D_RB}", f"v_add_u32 v{D_RB+2}, 0x20000, v{D_RB}")
    if P.hpre:
        for i in range(P.hpre, NB): bload(i)
        rb()
        class Rec:
            def e(self, *t):
                if any("vcc" in x or "s32" in x for x in t): early.add(lambda: k.e(*t), len(t))
                else:
                    for x in t: early.add(lambda x=x: k.e(x))
        red_setup(Rec(), 3, 1)
        early.add(lambda: (k.wait(vm=[("hst", 6)]), k.flag(2), k.poll_issue(D_PA, "ph2"), k.e(f"s_add_u32 s{sFO}, s89, {FL_X2 - FL_O}")), 5, P.dn_fgap)
    else:
        k.poll_check(D_PA, "ph1", 1)
        k.stamp("dn early")
        k.bg_held = True
        for i in range(P.dn_pre): bload(i)
        red_setup(k, 3, 1); rb()
        k.wait(vm=[("hst", 6)]); k.flag(2)
        k.poll_issue(D_PA, "ph2")
        for i in range(P.dn_pre, NB): bload(i)
        k.e(f"s_add_u32 s{sFO}, s89, {FL_X2 - FL_O}")
    k.per = dict(P.per_dn0); k.bg_held = False
    lds = [(i, nn) for i, (g, e) in enumerate(seq) if 8 <= e < 24 for nn in range(2)]
    slot_of = {x: n for n, x in enumerate(lds)}
    NWF = 6
    def wread(n):
        i, nn = lds[n]; j = 2 * (seq[i][1] - 8) + nn; b = 15 + (j >> 2)
        ad = (b % 10) * 16384 + (j & 3) * 1024
        if seq[i][0] == 0: k.wait(vm=[("gw", b)])
        k.ds(f"ds_read_b128 {vr(D_WF+4*(n%NWF),4)}, v{D_RB + (ad>>16)} offset:{ad & 0xffff}", ("wf", n))
    def wfrag(i, nn):
        e = seq[i][1]
        if e < 8: return ar(192 + 8*e + 4*nn, 4)
        if e >= 24: return vr(D_WV + 8*(e - 24) + 4*nn, 4)
        return vr(D_WF + 4*(slot_of[(i, nn)] % NWF), 4)
    mains = []; fixed = {}
    NT = P.dn_tail
    assert NT <= 4
    order = [(i, nn) for i in range(56 - NT) for nn in range(2)] + [(i, nn) for nn in range(2) for i in range(56 - NT, 56)]
    for pos, (i, nn) in enumerate(order):
        g, e = seq[i]
        if True:
            acc = D_ACC + 32 * g + 16 * nn
            mains.append(lambda i=i, nn=nn, acc=acc, e=e: k.e(f"{MF32} {vr(acc,16)}, {wfrag(i,nn)}, {vr(D_BF+4*(i%NB),4)}, {'0' if e == 0 else vr(acc,16)}"))
            gp = len(mains) - 1; fl_ = fixed.setdefault(gp, [])
            nx = order[pos + 1] if pos + 1 < len(order) else None
            vmn = [("b", nx[0])] if (nx and nx[1] == 0) else None
            lgn = [("wf", slot_of[nx])] if nx in slot_of else None
            if nx == (24, 0): vmn = vmn + ["dnv"]
            fl_.append((0, lambda vmn=vmn, lgn=lgn: k.wait(vm=vmn, lg=lgn)))
            ah = (i + 2, nn)
            if ah in slot_of: fl_.append((1, lambda n=slot_of[ah]: wread(n)))
    nxt = NB; pend = 0
    for i in range(len(seq)):
        fl_ = fixed[2*i + 1]
        if i == P.dn_late: fl_.append((2, lambda: (k.poll_check(D_PA, "ph2", 2), k.stamp("dn late"), k.mark("late"))))
        n = 0
        while nxt < len(seq) and nxt <= i + NB and n < 2 and (nxt < 16 or i >= P.dn_late):
            fl_.append((1, lambda j=nxt: bload(j))); nxt += 1; n += 1
        if nxt == len(seq) and not pend: pend = 2*i + 2
    fixed[20].append((1, lambda: k.e("s_barrier")))
    for mm in range(2):
        fixed[40 + 4*mm].append((2, lambda mm=mm: (k.e(f"s_add_u32 s32, s55, {BX1[layer] + mm*32768}"),
                                                   k.vm(f"buffer_load_dwordx4 {vr(RES+4*mm,4)}, v{vL16}, {SRD_WS}, s32 offen sc1", "res"))))
    fw = Flex(); fs = Flex()
    for q, f in enumerate(red_writes(k, D_ACC, 0, 0, 1)): fw.add(f, 1, 58 + 2*q)
    fw.add(lambda: (k.wait(lg=[("rw", 0)]), k.e("s_barrier")), 2, 76)
    for f in red_reads(k, 0, T, 0): fw.add(f, 2)
    fw.add(lambda: k.wait(vm=["res"]))
    red_finish(k, fw, 0, groups[0], T, WS_X[1], WS_ST[1], final, False)
    if not final:
        fw.add(lambda: k.vm(f"buffer_store_dwordx4 {vr(RES+4,4)}, v{vL16}, {SRD_WS}, s72 offen sc1", "hxs"))
        fw.add(lambda: k.vm(f"buffer_store_dword v{T+32}, v{R_ST}, {SRD_WS}, s73 offen sc1", "hxs"))
        fw.skip(P.dn_flag_delay); fw.add(lambda: (k.wait(vm=[("xst", 0)]), k.flag(1)), 3)
        if P.x2_touch == "dn":
            fixed[P.dn_x2].append((5, lambda: k.touch(226, "p", [f"s_add_u32 s32, s55, {WS_X[1]}"])))
            fixed[P.dn_x2 + 1].append((4, lambda: k.touch(227, "s", [f"s_add_u32 s32, s56, {WS_ST[1]}"])))
            fs.add(lambda: k.wait(vm=["touch"]), 1, P.dn_x2 + 2)
        if "d" in str(P.touch1):
            for q, f in enumerate(touch_next(k, 28)): fixed[P.dn_touch + 2*q].append((5, f))
        fs.dep("late")
        for f in a11_bases(k) + a1_setup(k, 1): fs.add(f)
        fs.add(lambda: (k.poll_addr(A_PX, 32), k.e(f"s_lshl_b32 s32, s{sB}, 7", f"s_add_u32 s{sPO}, s32, {fl(0, FL_X2)}")), 4)
    wtail = red_writes(k, D_ACC + 32, 1, 2*16384, 1)
    if NT:
        for q in range(min(4, NT)): fixed[min(111, 112 - NT + 1 + q)].append((4, wtail.pop(0)))
    k.wait(vm=["dna", ("b", 0)])
    k.stamp("dn first")
    if k.stamping:
        fixed[55].append((0, lambda: k.stamp("dn p1")))
        for g in range(7, 111, 8): fixed[g].append((0, lambda g=g: k.stamp(f"find {g}")))
    run_gaps(k, mains, fixed, [early, fw, fs], 6)
    print("dn left:", len(k.bg), len(fw), len(fs), "last h load at gap", pend)
    k.stamp("dn gemm")
    assert not fs.items
    ws = wtail
    if not final: ws.insert(len(ws) - 4, lambda: k.poll_issue(A_PX, "px0"))
    merge(k, fw, ws)
    k.wait(lg=[("rw", 1)]); k.e("s_barrier")
    k.stamp("dn red")
    for f in red_reads(k, 1, T, 2*16384): f()
    if not final:
        k.bg_held = True
        k.poll_check(A_PX, "px0", 1)
        k.wait(vm=["hxs"]); k.flag(1, 91, "sc1")
        a11_early(k)
    f1 = Flex(); red_finish(k, f1, 1, groups[1], T, WS_X[1], WS_ST[1], final, True); drain([f1], k)
    k.stamp("dn end")
P.dn_tail = 0; P.dn_touch = 88; P.dn_flag_delay = 4; P.dn_pre = 6; P.dn_late = 7; P.dn_fgap = 6
P.dn_wow = 6; P.per_dn = {"s4": 110, "s2": 130}; P.per_dn0 = {"s4": 60, "s2": 60}

def build(stamps=False, only=None):
    k = F(); k.stamping = stamps; k.only = only; k.st = P.dst; k.rt = P.rt
    name = NAME + "_kernel"
    k.e(".p2align 8", f".globl {name}", f".type {name},@function"); k.label(name)
    if stamps: k.e("s_memrealtime s[92:93]", "s_memtime s[94:95]")
    k.e("s_cmp_ge_u32 s2, 256", "s_cbranch_scc1 L_end")
    k.e("s_load_dwordx16 s[64:79], s[0:1], 0", "s_load_dwordx4 s[80:83], s[0:1], 64", "s_memrealtime s[96:97]")
    k.e("s_getpc_b64 s[100:101]")
    k.e("L_pc: ;np")
    k.e("s_mov_b32 s24, s100", "s_mov_b32 s25, s101", "s_mov_b32 s26, L_end-L_pc", "s_mov_b32 s27, 0x20000",
        "v_and_b32 v1, 63, v0", "v_lshrrev_b32 v2, 6, v0", "s_lshr_b32 s33, s2, 3", "s_mul_i32 s32, s33, 43", "s_lshr_b32 s32, s32, 8",
        "s_mul_i32 s32, s32, 6", "s_sub_u32 s32, s33, s32", "s_lshl_b32 s32, s32, 13", "v_lshlrev_b32 v3, 11, v2", "v_lshl_add_u32 v3, v1, 7, v3",
        f"v_mov_b32 v4, {OOB:#x}", "v_cmp_gt_u32 vcc, 16, v1", f"v_readfirstlane_b32 s{sW}, v2", "v_cndmask_b32 v3, v4, v3, vcc")
    if P.code0: k.vm(f"buffer_load_dword v175, v3, {SRD_PK}, s32 offen", "code")
    k.e("s_and_b32 s32, s2, 7", f"s_and_b32 s{sM}, s33, 15", "s_lshr_b32 s33, s33, 4", "s_lshl_b32 s32, s32, 1", f"s_add_u32 s{sC}, s32, s33")
    k.e(f"s_lshr_b32 s33, s{sM}, 3", f"s_lshl_b32 s{sB}, s{sC}, 1", f"s_add_u32 s{sB}, s{sB}, s33", f"s_and_b32 s{sCS}, s{sM}, 7")
    k.e("v_lshlrev_b32 v2, 4, v1")
    a10_lanes(k)
    k.e("s_waitcnt lgkmcnt(0)")
    srd(k, 12, 64, 2048 * 1024); srd(k, 16, 66, 512 * 3072)
    k.e(f"s_or_b32 s{sTAG}, s96, 1")
    if stamps:
        k.stamps += ["rt0", "start"]; k.e("v_writelane_b32 v0, s92, 0", f"v_writelane_b32 v0, s{92 if P.rt else 94}, 1")
    k.stamp("s kernarg")
    pack_issue(k)
    k.stamp("s pkissue")
    run(a10_x(k, 0) + a10_w(k, 0))
    srd(k, 28, 80, 256)
    k.e("v_cmp_eq_u32 vcc, 0, v1", f"v_mov_b32 v{vFA}, {OOB:#x}", f"s_or_b32 s32, s2, s{sW}", f"v_cndmask_b32_e64 v{vFA}, v{vFA}, 0, vcc",
        "s_cmp_eq_u32 s32, 0", f"s_cselect_b32 s32, 0, {OOB>>1:#x}", f"v_mov_b32 v170, s{sTAG}")
    k.vm(f"buffer_store_dword v170, v{vFA}, {SRD_DBG}, s32 offen sc1", "tagst")
    srd(k, 8, 82, WS_SIZE); srd(k, 20, 78, 2048 * 1024)
    for f in a1_setup(k, 0): f()
    o_bases(k, 0)
    a10_lanes2(k)
    k.e(f"v_mov_b32 v60, {OOB:#x}", "v_cmp_gt_u32 vcc, 8, v1", "v_mov_b32 v176, 0", "v_mov_b32 v177, 0", "v_mov_b32 v178, 0", "v_mov_b32 v179, 0",
        f"v_cndmask_b32 v173, v60, v{vL16}, vcc", "v_cmp_gt_u32 vcc, 16, v1", f"s_getreg_b32 s{sXCC}, hwreg(HW_REG_XCC_ID, 0, 4)",
        f"s_lshl_b32 s32, s{sC}, 4", f"v_cndmask_b32 v172, v60, v{vL16}, vcc")
    k.e(f"s_add_u32 s32, s32, s{sM}", "s_lshl_b32 s32, s32, 4",
        f"s_cmp_eq_u32 s{sW}, 0", f"s_cselect_b32 s32, s32, {OOB>>1:#x}", f"v_add_u32 v171, s32, v{vFA}", f"s_mov_b32 s{sBUD}, 400000",
        f"s_mov_b32 s75, {WS_ARR}", f"s_lshl_b32 s77, s{sC}, 8", "s_add_u32 s77, s77, s75")
    red_bases(k)
    k.e(f"s_lshl_b32 s{sGL}, s{sW}, 12", f"s_mul_i32 s{sGS}, s{sM}, {PGU_SLICE}", f"s_add_u32 s{sGS}, s{sGS}, s{sGL}", f"s_add_u32 s{sGS}, s{sGS}, {WS_PGU}")
    k.e(f"s_mul_i32 s32, s{sCS}, {224*KB}", f"s_mul_i32 s33, s{sW}, {56*KB}", "s_add_u32 s32, s32, s33", f"s_add_u32 s{sDS}, s32, {WS_PDN}")
    k.e(f"s_lshl_b32 s32, s{sCS}, 16", f"s_add_u32 s32, s32, s{sGL}", f"s_add_u32 s88, s32, {WS_PWO}")
    wo_bases(k)
    k.stamp("s setup")
    run(a10_w(k, 1))
    k.stamp("s w01")
    def mid2():
        if P.k_first > 3: run(a10_w(k, 3))
        k.e("s_lshl_b32 s32, s2, 7")
        k.vm(f"buffer_store_dwordx4 v[176:179], v173, {SRD_WS}, s32 offen sc1", "zero")
        k.e("s_lshl_b32 s32, s2, 8", f"s_add_u32 s32, s32, {WS_HXF}")
        k.vm(f"buffer_store_dwordx4 v[176:179], v172, {SRD_WS}, s32 offen sc1", "zero")
    pack_process(k, lambda: run(a10_x(k, 1) + a10_w(k, 2)), mid2)
    k.vm(f"buffer_load_dword v170, v{vFA}, {SRD_DBG}, 0 offen sc1", "tag")
    k.stamp("s pkdone")
    a10_loop(k, P.k_first)
    a10_tail(k)
    wo(k, 0); gu(k, 0); dn(k, 0)
    if not P.half:
        k.marks = {m: g for m, g in k.marks.items() if False}
        k.seen = {t for t in k.seen if t in k.vmq or t in k.lgq or t in ("dna", "st0", ("x", 2), ("x", 3))}
        a11_main(k)
        wo(k, 1)
        k.marks = {m: g for m, g in k.marks.items() if m == "wobar" or m[0] == "bar"}
        gu(k, 1); dn(k, 1)
    if P.verbose: print([(t, tag, f) for t, tag, f in k.bg_log if f])
    if stamps:
        k.e("s_waitcnt vmcnt(0)"); k.stamp("drained"); k.stamp("rt1", True)
        k.e("s_lshl_b32 s32, s2, 10", "s_lshl_b32 s33, s3, 8", "s_add_u32 s32, s32, s33",
            f"s_add_u32 s32, s32, {WS_STAMP}", "v_lshlrev_b32 v8, 2, v1", f"buffer_store_dword v0, v8, {SRD_WS}, s32 offen")
        if P.echo:
            a, b = P.echo
            n = len(k.stamps)
            k.e(f"v_readlane_b32 s32, v0, {a}", f"v_readlane_b32 s33, v0, {b if b >= 0 else n + b}", f"v_readlane_b32 s34, v0, {n-1}", "s_nop 3",
                "s_sub_u32 s33, s33, s32", "s_min_u32 s33, s33, 20000")
            k.label("L_echo")
            k.e("s_memrealtime s[36:37]", "s_waitcnt lgkmcnt(0)", "s_sub_u32 s36, s36, s34", "s_cmp_lt_u32 s36, s33", "s_cbranch_scc1 L_echo")
        if P.dbg:
            n = len(k.stamps)
            k.e("v_readlane_b32 s32, v0, 0", f"v_readlane_b32 s33, v0, {n-1}", "s_not_b32 s34, s32", "v_mov_b32 v4, s33", "v_mov_b32 v5, s34")
            k.e(f"buffer_atomic_umax v4, v{vFA}, {SRD_DBG}, 0 offen offset:4", f"buffer_atomic_umax v5, v{vFA}, {SRD_DBG}, 0 offen offset:8")
            k.e(f"s_cmp_eq_u32 s2, {P.dbg - 1}", f"s_cselect_b32 s35, 0, {OOB>>1:#x}", f"s_cmp_eq_u32 s{sW}, 0", f"s_cselect_b32 s35, s35, {OOB>>1:#x}")
            for i, wd in zip(range(2, n - 1), (3, 5, 6, 7, 9, 10, 11, 13, 14, 15)):
                k.e(f"v_readlane_b32 s33, v0, {i}", "s_sub_u32 s33, s33, s32", "v_mov_b32 v4, s33", f"buffer_store_dword v4, v{vFA}, {SRD_DBG}, s35 offen offset:{4*wd}")
    k.e("s_endpgm")
    k.flush_spins()
    k.label("L_end"); k.e("s_endpgm")
    src = open("cdna_kernels/%s.s.ref" % NAME).read().splitlines()
    out = [l for l in src if l.startswith(";") and "@launch" not in l]
    out.append(f"; @launch grid=(256,1,1) block=(256,1,1) lds={LDS_TOTAL}")
    out += ['.amdgcn_target "amdgcn-amd-amdhsa--gfx950"', ".text"]
    s = "\n".join(out) + "\n" + k.text(verbose=True) + '.section .rodata,"a"\n.p2align 6\n' + kd(name)
    if P.align:
        from align import align
        s = align(s)
    return s, k.stamps
P.x_nobar = 0; P.x_noepi = 0; P.rt = 1; P.dbg = 0; P.h_touch0 = ''; P.outm = ''; P.h1_plain = 1; P.tags = 0; P.echo = None; P.half = 0; P.tlb = 1; P.code0 = 1; P.verbose = 0; P.align = 1; P.gu_cap = 5; P.gu_nw = 5; P.k_touch = 15; P.k_gb = 13; P.k_chk = 16

if __name__ == "__main__":
    path = sys.argv[1] if len(sys.argv) > 1 else "cdna_kernels/%s.s" % NAME
    opts = sys.argv[2:]
    only = None
    for o in opts:
        if o.startswith("only="): only = [x for x in o[5:].split(",") if x]
        if o.startswith("P."):
            n, v = o[2:].split("="); setattr(P, n, eval(v))
    s, st = build(stamps="st" in opts, only=only)
    open(path, "w").write(s)
    if "st" in opts: json.dump([st], open(path + ".json", "w"))
```

```python
import re, sys
from asmlib import Ins
def verify(text, quiet=False):
    lines = text.split("\n")
    try: a = next(i for i, l in enumerate(lines) if l.strip() == ".text")
    except StopIteration: a = 0
    pend = {"vm": [], "lg": []}
    saved = {}; live = True; bad = []
    def merge(x, y):
        out = {}
        for q in ("vm", "lg"):
            d = {}
            for r, n, l in x[q] + y[q]: d[l] = (r, min(n, d[l][1]) if l in d else n, l)
            out[q] = [list(v) for v in d.values()]
        return out
    cp = lambda s: {q: [list(e) for e in s[q]] for q in s}
    for n in range(a, len(lines)):
        l = lines[n]; t = l.split(";")[0].strip()
        if t.startswith(".section"): break
        if t == "s_endpgm" and live: break
        if t.endswith(":") and ";np" not in l:
            lab = t[:-1]
            if lab in saved: pend = merge(pend, saved[lab]) if live else saved[lab]
            live = True; continue
        if not t or t.startswith(".") or ";np" in l or not live: continue
        i = Ins(l)
        if i.kind == "branch":
            lab = i.ops[0]
            saved[lab] = merge(saved[lab], pend) if lab in saved else cp(pend)
            if i.op == "s_branch": live = False
            continue
        if i.op == "s_waitcnt":
            for q, name in (("vm", "vmcnt"), ("lg", "lgkmcnt")):
                m = re.search(name + r"\((\d+)\)", l)
                if m: pend[q] = [e for e in pend[q] if e[1] < int(m.group(1))]
            continue
        isvm = i.kind in ("vmem", "dma"); isds = i.kind == "ds"
        touched = {r for r in i.uses + i.defs if r[0] in "va"}
        for q in ("vm", "lg"):
            for regs, y, ln in pend[q]:
                hit = regs & touched
                if hit and not (((q == "vm" and isvm) or (q == "lg" and isds)) and not (regs & set(i.uses))):
                    bad.append(f"line {n+1}: {t}   <- still loading at line {ln+1}: {lines[ln]}")
        if isvm or isds:
            q = "vm" if isvm else "lg"
            for e in pend[q]: e[1] += 1
            d = {r for r in i.defs if r[0] in "va"}
            pend[q].append([d, 0, n])
            pend[q] = [e for e in pend[q] if e[0] or True]
    if not quiet:
        for b in bad[:20]: print("VERIFY", b)
    return bad
if __name__ == "__main__":
    b = verify(open(sys.argv[1]).read()); print(len(b), "findings")
```

```python
import sys, json
from common import *

MF16 = "v_mfma_f32_16x16x32_bf16"
MF16S = "v_mfma_f32_16x16x16_bf16"
MF32 = "v_mfma_f32_32x32x16_bf16"
vL16, vFV, vFA, vP = 2, 8, 9, 10
CSV, CSQ, CSK, RES = 11, 12, 16, 20
OOB = 0x80000000
FL_O, FL_X1, FL_H, FL_X2 = 0, 4096, 8192, 12288
FL_HX = 16384 + 12288
def fl(layer, off): return WS_FLAGS + 16384 * layer + off
sROT, sBUD, sGL, sGS, sDS = 84, 98, 60, 61, 85
sT0, sT1, sPO, sFO = 32, 33, 86, 87
sML, sMS = 68, 69
WS_HXF = WS_O0 - 0x10000 if False else WS_END
WS_ARR = WS_HXF + 0x10000
sTAG, sXCC = 91, 76
WS_STAMP = 0x2000000
L_SA0, L_SA1, L_XH0, L_CS = 80896, 97280, 81920, 79872
def e_of(kk):
    p, tl = divmod(kk, 7)
    return 4 * p + tl if tl < 4 else 16 + 3 * p + (tl - 4)
KK_OF = {e_of(kk): kk for kk in range(28)}

class P:
    a1_bg_start, a1_bg_step = 30, 6
    gu_lead = 7
    gu_bg_start, gu_bg_step = 50, 2.6
    dn_lead = 12
    bgm = ""
    sleep = 0
    drop = ()
    codepf = 0
    ld = "sc1"
    dst = "sc1"
    safe = False
    plain = True
    notouch = ()

BO, BX1, BS1, BH = [WS_O[0]] * 2, [WS_X[0]] * 2, [WS_ST[0]] * 2, [WS_H[0]] * 2
def o_line(layer):
    return [f"s_lshl_b32 s32, s{sB}, 16", f"s_lshl_b32 s33, s{sCS}, 2", f"s_add_u32 s33, s33, s{sW}", "s_lshl_b32 s33, s33, 10",
            "s_add_u32 s32, s32, s33", f"s_add_u32 s32, s32, {BO[layer]}"]
def touch_next(k, t):
    return [lambda: k.touch(t, "p", o_line(1)), lambda: k.touch(t + 1, "q", [f"s_add_u32 s32, s64, {BX1[1]}"]),
            lambda: k.touch(t + 2, "t", [f"s_add_u32 s32, s65, {BS1[1]}"])]
def gu_tile(d):
    return [f"s_lshl_b32 {d}, s{sC}, 1", f"s_and_b32 s33, s{sW}, 1", f"s_add_u32 {d}, {d}, s33", f"s_lshl_b32 {d}, {d}, 1", f"s_lshr_b32 s33, s{sW}, 1", f"s_add_u32 {d}, {d}, s33"]
def h_base(d, layer):
    return gu_tile(d) + [f"s_mul_i32 {d}, {d}, 112", f"s_mul_i32 s33, s{sM}, 7",
            f"s_add_u32 {d}, {d}, s33", f"s_lshl_b32 {d}, {d}, 10", f"s_add_u32 {d}, {d}, {BH[layer]}"]

class F(K):
    def __init__(self):
        super().__init__(); self.spins = []; self.nspin = 0; self.st = ""; self.npf = 0
    def poll_issue(self, va, tag): self.vm(f"buffer_load_dword v{vP}, v{va}, {SRD_WS}, s{sPO} offen sc1", tag)
    def poll_addr(self, va, nl, sh=2):
        self.e(f"v_cmp_gt_u32 vcc, {nl}, v1", f"v_lshlrev_b32 v{va}, {sh}, v1", f"v_mov_b32 v{vP}, {OOB:#x}", f"v_cndmask_b32 v{va}, v{vP}, v{va}, vcc")
        self.nl = nl
    def poll_check(self, va, tag, thr):
        n = self.nspin; self.nspin += 1
        self.stamp(f"poll<{tag}")
        self.wait(vm=[tag])
        self.stamp(f"poll={tag}")
        msk = f"s_and_b32 s99, vcc_lo, {(1 << self.nl) - 1:#x}"
        self.e(f"v_cmp_gt_u32 vcc, {thr}, v{vP}", msk, f"s_cbranch_scc1 L_spin{n} ;np", f"L_back{n}: ;np")
        self.stamp(f"poll>{tag}")
        self.spins += [f"L_spin{n}:", f"s_sub_u32 s{sBUD}, s{sBUD}, 1", f"s_cbranch_scc1 L_give{n}"] + ([f"s_sleep {P.sleep}"] if P.sleep else []) + [
                       f"buffer_load_dword v{vP}, v{va}, {SRD_WS}, s{sPO} offen sc1", "s_waitcnt vmcnt(0)",
                       f"v_cmp_gt_u32 vcc, {thr}, v{vP}", msk, f"s_cbranch_scc1 L_spin{n}", f"s_branch L_back{n}",
                       f"L_give{n}:", f"s_mov_b32 s{sBUD}, 0", f"s_branch L_back{n}"]
    def flag(self, val, soff=sFO, st=None):
        self.e(f"v_mov_b32 v{vFV}, {val}")
        if st is not None:
            self.vm(f"buffer_store_dword v{vFV}, v{vFA}, {SRD_WS}, s{soff} offen {st}", "flag"); return
        if P.flagbr:
            self.dstore(f"buffer_store_dword v{vFV}, v{vFA}, {SRD_WS}, s{soff} offen", "flag", True); return
        self.e(f"s_or_b32 s99, s{soff}, s{sML}")
        self.vm(f"buffer_store_dword v{vFV}, v{vFA}, {SRD_WS}, s99 offen", "flag")
        self.e(f"s_or_b32 s99, s{soff}, s{sMS}")
        self.vm(f"buffer_store_dword v{vFV}, v{vFA}, {SRD_WS}, s99 offen sc1", "flag")
    def dstore(self, text, tag, always=False):
        if not P.plain and not always:
            self.vm(text + " sc1", tag); return
        n = self.nspin; self.nspin += 1
        self.e(f"s_cmp_lg_u32 s{sML}, 0", f"s_cbranch_scc1 L_alt{n} ;np")
        self.vm(text, tag)
        self.e(f"L_back{n}: ;np")
        self.spins += [f"L_alt{n}:", "s_nop 4", text + " sc1", f"s_branch L_back{n}"]
    def valid(self, test, reload):
        n = self.nspin; self.nspin += 1
        self.e(*test); self.e(f"s_cbranch_vccnz L_rl{n} ;np", f"L_back{n}: ;np")
        self.spins += [f"L_rl{n}:", f"s_sub_u32 s{sBUD}, s{sBUD}, 1", f"s_cbranch_scc1 L_give{n}"] + reload + ["s_waitcnt vmcnt(0)"] + test + \
                      [f"s_cbranch_vccnz L_rl{n}", f"s_branch L_back{n}", f"L_give{n}:", f"s_mov_b32 s{sBUD}, 0", f"s_branch L_back{n}"]
    def touch(self, tmp, kind, base_expr, masked=True):
        if not P.plain or kind in P.notouch: return
        nl = {"p": 16, "q": 16, "s": 2, "t": 2, "h": 56}[kind]
        self.e(f"v_cmp_gt_u32 vcc, {nl}, v1")
        if kind in "pq": self.e(f"v_lshrrev_b32 v{tmp}, 3, v1", f"v_lshlrev_b32 v{tmp}, {15 if kind == 'p' else 13}, v{tmp}", f"v_and_b32 v{vFV}, 7, v1", f"v_lshl_add_u32 v{tmp}, v{vFV}, 7, v{tmp}")
        else: self.e(f"v_lshlrev_b32 v{tmp}, {11 if kind == 's' else 7}, v1")
        self.e(f"v_mov_b32 v{vFV}, {OOB:#x}", *base_expr)
        self.e(f"v_cndmask_b32 v{tmp}, v{vFV}, v{tmp}, vcc")
        if masked: self.e(f"s_or_b32 s32, s32, s{sML}")
        self.vm(f"buffer_load_dword v{tmp}, v{tmp}, {SRD_WS}, s32 offen", "touch")
    def vm(self, text, tag=None):
        kind = tag[0] if isinstance(tag, tuple) else tag
        if kind in P.drop:
            self.seen.add(tag); return
        super().vm(text, tag)
    def codepf(self, tmpv, per=2048):
        if not P.codepf: return
        n = self.npf; self.npf += 1
        sh = (per // 64).bit_length() - 1
        self.e(f"L_pf{n}: ;np", f"s_mul_i32 s32, s{sW}, {per}", f"s_add_u32 s32, s32, L_pf{n}-L_pc", f"v_lshlrev_b32 v{tmpv}, {sh}, v1")
        raise NotImplementedError
    def flush_spins(self):
        for l in self.spins: self.e(l)
        self.spins = []

def batch(k, i):
    src = f"s_add_u32 s62, s{sGS}, {i*16384}" if i < 15 else f"s_add_u32 s62, s{sDS}, {(16 + 4*(i-15))*1024}"
    def f(q):
        k.set_m0(f"s_add_u32 m0, s{sGL}, {(i % 10)*16384}")
        if i != 14: k.set_s(src)
        elif k.last.get(62) != f"s_cselect_b32 s62, {OOB>>1:#x}, s62":
            k.e(src, f"s_cmp_ge_u32 s{sW}, 2", f"s_cselect_b32 s62, {OOB>>1:#x}, s62")
        k.vm(f"buffer_load_dwordx4 v{vL16}, {SRD_WS}, s62 offen offset:{q*1024} {P.bgm} lds", ("gw", i))
    return [lambda q=q: f(q) for q in range(4)]

def bg_batches(k, bs, period, dep=lambda b: None):
    for b in bs:
        for f in batch(k, b): k.bg_add(f, period, ("gw", b), dep(b))
def bg_list(k, fns, period, tag, dep=None):
    for f in fns: k.bg_add(f, period, tag, dep)

def regloads(k, base_sgpr, off, dst, n, tag, tmp=63):
    fns = []
    for j in range(n):
        def f(j=j):
            k.set_s(f"s_add_u32 s{tmp}, s{base_sgpr}, {off + (j & ~3)*1024}")
            k.vm(f"buffer_load_dwordx4 {dst(j)}, v{vL16}, {SRD_WS}, s{tmp} offen offset:{(j%4)*1024} {P.bgm}", tag)
        fns.append(f)
    return fns
def wow(k):
    def f(i, q):
        k.set_m0(f"s_add_u32 m0, s{sGL}, {(6 + i)*16384}"); k.set_s(f"s_add_u32 s63, s88, {i*16384}")
        k.vm(f"buffer_load_dwordx4 v{vL16}, {SRD_WS}, s63 offen offset:{q*1024} lds", "wow")
    return [lambda i=i, q=q: f(i, q) for i in range(4) for q in range(4)]

def pack_issue(k):
    k.e("v_lshrrev_b32 v44, 3, v1", "v_and_b32 v43, 7, v1", "v_and_b32 v45, 2, v44", "v_lshlrev_b32 v45, 1, v45",
        "v_xor_b32 v43, v43, v45", "v_lshlrev_b32 v43, 4, v43", f"s_add_u32 s34, s49, {L_X + 4096}")
    k.e("s_cmp_ge_u32 s2, 112", "s_cbranch_scc1 L_pki_small")
    k.e("s_and_b32 s35, s2, 1", "s_bfe_u32 s36, s2, 0x10001", "s_lshr_b32 s37, s2, 2")
    k.e("s_cmp_eq_u32 s35, 0", "s_cselect_b32 s24, s72, s74", "s_cselect_b32 s25, s73, s75",
        f"s_mov_b32 s26, {512*3584:#x}", "s_mov_b32 s27, 0x20000")
    k.e("v_mul_u32_u24 v46, 3584, v44", "v_add_u32 v46, v46, v43")
    k.e("s_lshl_b32 s38, s36, 2", f"s_add_u32 s38, s38, s{sW}", f"s_mul_i32 s38, s38, {64*3584}",
        "s_lshl_b32 s39, s37, 7", "s_add_u32 s38, s38, s39")
    for i in range(8):
        k.e(f"s_add_u32 m0, s34, {(i>>2)*8192 + (i&3)*1024}", f"s_add_u32 s39, s38, {i*8*3584}", f"buffer_load_dwordx4 v46, {SRD_PK}, s39 offen lds")
    k.e("s_branch L_pki_done")
    k.label("L_pki_small")
    k.e("s_sub_u32 s35, s2, 112", "s_lshl_b32 s35, s35, 3", f"s_lshl_b32 s36, s{sW}, 1", "s_add_u32 s35, s35, s36")
    k.e("s_cmp_lt_u32 s35, 896", "s_cselect_b32 s24, s76, s68", "s_cselect_b32 s25, s77, s69", f"s_mov_b32 s26, {512*1024:#x}",
        f"s_cselect_b32 s26, {1792*1024:#x}, s26", "s_mov_b32 s27, 0x20000", "s_cselect_b32 s37, 1, 0",
        "s_movk_i32 s38, 896", "s_cselect_b32 s38, 0, s38")
    k.e("s_cselect_b32 s39, 0, 1", "s_cselect_b32 s70, 14, 15", "s_movk_i32 s71, 0x4000", "s_cselect_b32 s71, 0x80, s71")
    k.e("s_sub_u32 s35, s35, s38", "s_lshr_b32 s35, s35, s39", "s_and_b32 s36, s35, 7", "s_lshr_b32 s35, s35, 3")
    k.e("v_lshl_add_u32 v46, v44, 10, v43", "s_lshl_b32 s38, s35, s70", "s_lshl_b32 s39, s36, 7", "s_add_u32 s38, s38, s39")
    for i in range(2):
        for h in range(2):
            k.e(f"s_add_u32 m0, s34, {(2*i+h)*1024}", f"s_add_u32 s39, s38, {h*8192}", f"buffer_load_dwordx4 v46, {SRD_PK}, s39 offen lds")
        if i == 0: k.e("s_add_u32 s38, s38, s71")
    k.label("L_pki_done")
    k.vmq.append("pk"); k.seen.add("pk")

PQ = [76, 80, 84, 88, 92, 96, 36, 40]
def pack_process(k, mid1, mid2):
    k.e("v_bfe_u32 v46, v1, 2, 2", "v_and_b32 v47, 3, v1", "v_bfe_u32 v48, v1, 4, 1", "v_lshrrev_b32 v49, 5, v1")
    k.e("v_and_b32 v50, 2, v46", "v_add_u32 v50, v50, v48", "v_lshlrev_b32 v50, 5, v50",
        "v_lshl_add_u32 v50, v46, 7, v50", "v_lshl_add_u32 v50, v47, 3, v50", "v_add_u32 v50, s34, v50")
    k.e("s_cmp_ge_u32 s2, 112", "s_cbranch_scc1 L_pk_small")
    q0 = list(k.vmq)
    k.e("v_lshl_add_u32 v56, v49, 10, v50", "v_xor_b32 v57, 64, v56")
    k.e("s_lshl_b32 s39, s37, 2", "v_add_u32 v58, s39, v48")
    k.e("s_lshl_b32 s70, s36, 2", f"s_add_u32 s70, s70, s{sW}", "s_lshl_b32 s70, s70, 2")
    k.e("v_and_b32 v66, 15, v1", "s_lshl_b32 s71, s35, 8", "v_lshl_add_u32 v66, v66, 4, s71")
    for p in range(2):
        T, fs, tl, st_, b, aug = 59, 60, 61, 62 + p, 64 + p, 68 + p
        k.e(f"v_add_u32 v{T}, {2*p}, v58", f"v_mul_u32_u24 v{fs}, 9363, v{T}", f"v_lshrrev_b32 v{fs}, 16, v{fs}",
            f"v_mul_u32_u24 v{tl}, 7, v{fs}", f"v_sub_u32 v{tl}, v{T}, v{tl}")
        k.e(f"v_cmp_gt_u32 vcc, 3, v{tl}", f"v_mul_u32_u24 v67, 33, v{tl}", f"v_mov_b32 v{st_}, 1", "v_mov_b32 v70, 3",
            f"v_cndmask_b32 v67, v67, v{tl}, vcc", f"v_cndmask_b32 v{st_}, v{st_}, v70, vcc")
        k.e(f"v_mul_u32_u24 v{fs}, 231, v{fs}", f"v_add_u32 v67, v67, v{fs}")
        k.e(f"v_lshl_add_u32 v70, v{st_}, 5, v67", "v_lshlrev_b32 v70, 10, v70", "v_add_u32 v70, v70, v66",
            "s_lshl_b32 s71, s36, 9", f"v_add_u32 v{aug}, s71, v70")
        k.e(f"v_mul_lo_u32 v70, v{st_}, s70", "v_add_u32 v67, v67, v70", "v_lshlrev_b32 v67, 10, v67",
            "v_add_u32 v67, v67, v66", f"v_lshl_add_u32 v{b}, v49, 9, v67", f"v_lshlrev_b32 v{st_}, 10, v{st_}")
    k.e("v_mov_b32 v71, 0x3f803f80", "v_mov_b32 v72, 0", "v_mov_b32 v73, 0", "v_cmp_gt_u32 vcc, 32, v1", "v_mov_b32 v46, 0", "v_mov_b32 v47, 0",
        "v_cndmask_b32 v68, v69, v68, vcc", f"s_lshl_b32 s72, s{sW}, 8", "s_add_u32 s72, s72, 0x10000", "v_lshl_add_u32 v74, v1, 2, s72",
        "v_lshlrev_b32 v75, 2, v1", "v_add_u32 v75, 0x10000, v75")
    k.e(f"s_mov_b32 s70, {WS_PGU}", "s_mov_b32 s71, s70", "s_mov_b32 s72, s70", "s_mov_b32 s73, s70", f"s_cmp_eq_u32 s{sW}, 0", f"s_cselect_b32 s74, s70, {OOB>>1:#x}")
    k.wait(vm="pk")
    for ks in range(4):
        for p in range(2):
            for j in range(2): k.ds(f"ds_read_b64_tr_b16 {vr(PQ[2*ks+p]+2*j,2)}, v{56+p} offset:{(ks>>1)*8192 + (ks&1)*2048 + j*512}", ("t", ks, p))
        if ks == 2: k.wait(lg=[("t", 0, 1)])
    mid1()
    for ks in range(4):
        for p in range(2):
            k.wait(lg=[("t", ks, p)])
            for d in range(4): k.e(f"v_dot2c_f32_bf16 v{72+p}, v{PQ[2*ks+p]+d}, v71")
    k.e("v_permlane32_swap_b32 v72, v73", "v_add_f32 v72, v72, v73")
    k.ds(f"ds_write_b32 v74, v72 offset:{L_CS - 65536}")
    k.wait(lg="all"); k.e("s_barrier")
    for w in range(4): k.ds(f"ds_read_b32 v{56+w}, v75 offset:{L_CS - 65536 + 256*w}")
    mid2()
    k.wait(lg="all")
    k.e("v_add_f32 v56, v56, v57", "v_add_f32 v58, v58, v59", "v_add_f32 v56, v56, v58")
    k.e("v_cvt_pk_bf16_f32 v45, v56, v46", "v_lshlrev_b32 v57, 16, v45", "v_sub_f32 v57, v56, v57", "v_cvt_pk_bf16_f32 v44, v56, v57")
    k.e("s_branch L_pk_done")
    k.label("L_pk_small")
    k.vmq = list(q0)
    k.e(f"v_mov_b32 v64, v{vL16}", f"v_add_u32 v65, 1024, v{vL16}", f"v_mov_b32 v68, v{vL16}", f"s_mov_b32 s72, {OOB>>1:#x}", "s_mov_b32 s73, s72", "s_mov_b32 s74, s72")
    k.e("s_cmp_eq_u32 s37, 0", "s_cbranch_scc1 L_pk_wo")
    k.e("s_mul_i32 s38, s35, 2341", "s_lshr_b32 s38, s38, 16", "s_mul_i32 s39, s38, 28", "s_sub_u32 s39, s35, s39",
        "s_mul_i32 s70, s39, 9363", "s_lshr_b32 s70, s70, 16", "s_mul_i32 s71, s70, 7", "s_sub_u32 s71, s39, s71")
    for u in range(2):
      k.e(f"s_sub_u32 s39, s70, s36" if P.hrot else "s_mov_b32 s39, s70", f"s_sub_u32 s39, s39, {u if P.hrot else 0}", "s_and_b32 s39, s39, 3",
        "s_lshl_b32 s32, s39, 2", "s_add_u32 s32, s32, s71", "s_mul_i32 s33, s39, 3", "s_add_u32 s33, s33, s71", "s_add_u32 s33, s33, 12",
        "s_cmp_lt_u32 s71, 4", "s_cselect_b32 s32, s32, s33", "s_mul_i32 s33, s38, 28", "s_add_u32 s32, s32, s33", f"s_lshl_b32 s{(35, 37)[u]}, s32, 11")
    k.e("v_lshl_add_u32 v56, v49, 9, v50", "v_xor_b32 v57, 64, v56", f"v_mov_b32 v62, {224*KB}", f"v_mov_b32 v63, {224*KB}")
    k.e(f"s_mul_i32 s36, s36, {224*KB}", f"s_add_u32 s36, s36, {WS_PDN}", "s_add_u32 s70, s36, s35", "s_add_u32 s71, s36, s37")
    k.wait(vm="pk")
    for i in range(2):
        for nn in range(2):
            for j in range(2): k.ds(f"ds_read_b64_tr_b16 {vr(PQ[2*i+nn]+2*j,2)}, v{56+nn} offset:{i*2048 + j*1024}", "t")
    mid1(); mid2()
    k.wait(lg="all")
    k.e("s_branch L_pk_done")
    k.label("L_pk_wo")
    k.vmq = list(q0)
    k.e("v_and_b32 v56, 2, v46", "v_lshlrev_b32 v56, 1, v56", "v_xor_b32 v56, v56, v47", "v_lshlrev_b32 v56, 4, v56", "v_lshl_add_u32 v56, v46, 7, v56",
        "v_lshrrev_b32 v57, 4, v1", "v_lshl_add_u32 v56, v57, 10, v56", "v_add_u32 v56, s34, v56", "v_xor_b32 v57, 64, v56",
        "v_mov_b32 v62, 0x800", "v_mov_b32 v63, 0x800")
    k.e("s_lshl_b32 s36, s36, 16", "s_lshl_b32 s35, s35, 12", "s_add_u32 s70, s36, s35", f"s_add_u32 s70, s70, {WS_PWO}", "s_mov_b32 s71, s70")
    k.wait(vm="pk")
    for j in range(4):
        for jj in range(2): k.ds(f"ds_read_b64_tr_b16 {vr(PQ[j]+2*jj,2)}, v{56+(j>>1)} offset:{jj*512 + 8*(j&1)}", "t")
    mid1(); mid2()
    k.wait(lg="all")
    k.label("L_pk_done")

def pack_stores(k):
    ops = []
    for r in range(4):
        for p in range(2):
            ops.append(("v", lambda r=r, p=p: k.vm(f"buffer_store_dwordx4 {vr(PQ[2*r+p],4)}, v{64+p}, {SRD_WS}, s{70+r} offen sc1", "pks")))
            if r < 3: ops.append(("a", lambda p=p: k.e(f"v_add_u32 v{64+p}, v{64+p}, v{62+p}")))
    ops.append(("v", lambda: k.vm(f"buffer_store_dwordx4 v[44:47], v68, {SRD_WS}, s74 offen sc1", "pks")))
    return ops

A_XF, A_K, A_V, A_Q = 36, 76, 86, 96
A_STA, A_STB, A_OP, A_DX, A_PA, A_ST, A_ACC = 104, 106, 144, 152, 153, 140, 184
class R0: XE, XO, SA, SB, CI, ONE, M, ATT, TMP = 3, 4, 5, 6, 28, 32, 52, (116, 160), 60
class R1: XE, XO, SA, SB, CI, ONE, M, ATT, TMP = 116, 117, 118, 119, 252, 124, 120, (228, 160), 28
A_U, A_PX = 226, 115
A11_ORDER = [2, 3, 1, 0, "h"]
A11_POS = {2: 3, 3: 0, 1: 1, 0: 2, "h": 3}
sODD, sCUR0, sCUR1, sCEXP = 40, 42, 44, 46

def a1_setup(k, layer):
    R = (R0, R1)[layer]
    real = k; out = []
    class Rec:
        def e(self, *t):
            if any(x.startswith("s_cmp") for x in t): out.append(lambda t=t: real.e(*t))
            else: out.extend(lambda x=x: real.e(x) for x in t)
    k = Rec()
    t16, g, tt, tb = R.TMP, R.TMP + 1, R.TMP + 2, R.TMP + 3
    x, y, z = R.ONE, R.ONE + 1, R.ONE + 2
    sa = L_SA0 if layer == 0 else L_SA1
    k.e(f"v_and_b32 v{t16}, 15, v1", f"v_lshrrev_b32 v{g}, 4, v1", f"v_and_b32 v{tt}, 7, v1", f"v_bfe_u32 v{tb}, v1, 3, 1")
    k.e(f"v_lshlrev_b32 v{tb}, 13, v{tb}")
    if layer == 0: k.e(f"v_add_u32 v{tb}, {L_X}, v{tb}")
    if layer == 0:
        k.e(f"v_and_b32 v{x}, 6, v{tt}", f"v_xor_b32 v{x}, v{x}, v{g}", f"v_lshlrev_b32 v{x}, 4, v{x}",
            f"v_lshl_add_u32 v{x}, v{tt}, 7, v{x}", f"v_add_u32 v{R.XE}, v{x}, v{tb}", f"v_xor_b32 v{R.XO}, 64, v{R.XE}")
    else:
        k.e(f"v_lshl_add_u32 v{x}, v{g}, 7, v{tb}", f"v_lshl_add_u32 v{R.XE}, v{tt}, 4, v{x}", f"v_add_u32 v{R.XO}, 512, v{R.XE}")
    k.e(f"v_lshlrev_b32 v{R.SA}, 3, v{t16}", f"v_add_u32 v{R.SA}, {sa}, v{R.SA}",
        f"v_lshlrev_b32 v{R.SB}, 5, v{g}", f"v_add_u32 v{R.SB}, {sa}, v{R.SB}")
    k.e(f"v_and_b32 v{x}, 1, v1", f"v_cmp_eq_u32 s[{sODD}:{sODD+1}], 1, v{x}",
        f"v_lshl_add_u32 v{y}, v{g}, 2, v{x}", f"v_cmp_le_u32 s[{sCUR0}:{sCUR0+1}], v{y}, v{t16}",
        f"v_add_u32 v{y}, 2, v{y}", f"v_cmp_le_u32 s[{sCUR1}:{sCUR1+1}], v{y}, v{t16}")
    k.e(f"v_mov_b32 v{y}, 0xffff", f"v_mov_b32 v{z}, 0xffff0000", f"v_cndmask_b32 v{y}, v{y}, v{z}, s[{sODD}:{sODD+1}]", f"v_mov_b32 v{z}, 0")
    k.e(f"v_cndmask_b32 v{R.M+2}, v{z}, v{y}, s[{sCUR0}:{sCUR0+1}]", f"v_cndmask_b32 v{R.M}, v{y}, v{z}, s[{sCUR0}:{sCUR0+1}]",
        f"v_cndmask_b32 v{R.M+3}, v{z}, v{y}, s[{sCUR1}:{sCUR1+1}]", f"v_cndmask_b32 v{R.M+1}, v{y}, v{z}, s[{sCUR1}:{sCUR1+1}]")
    k.e(f"s_cmp_eq_u32 s{sB}, 0", f"s_cselect_b32 s70, {f2u(-1e38):#x}, 0", f"s_mov_b32 s{sCEXP}, {f2u(0.25*LOG2E):#x}")
    for i in range(4): k.e(f"v_mov_b32 v{R.CI+i}, s70", f"v_mov_b32 v{R.ONE+i}, 0x3f803f80")
    return out

def o_bases(k, layer):
    k.e(f"s_lshl_b32 s32, s{sB}, 16", f"s_lshl_b32 s33, s{sCS}, 2", f"s_add_u32 s33, s33, s{sW}", "s_lshl_b32 s53, s33, 10",
        "s_add_u32 s32, s32, s53", f"s_add_u32 s53, s32, {BO[layer]}", "s_add_u32 s54, s53, 32768",
        f"s_lshl_b32 s32, s{sB}, 5", "s_add_u32 s32, s32, s33", "s_lshl_b32 s32, s32, 2", f"s_add_u32 s89, s32, {fl(layer, FL_O)}")

def ln_finish(a, s, q):
    a(f"v_mul_f32 v{s}, {f2u(-1/512):#x}, v{s}"); a(f"v_mul_f32 v{q}, {f2u(1/512):#x}, v{q}")
    a(f"v_fma_f32 v{q}, -v{s}, v{s}, v{q}"); a(f"v_max_f32 v{q}, 0, v{q}"); a(f"v_add_f32 v{q}, {f2u(1e-5):#x}, v{q}")

A_QS = 68
def fix_reads(k, R, t, S):
    i = 0 if t == "h" else t + 1
    return [lambda: k.ds(f"ds_read_b64 {vr(S,2)}, v{R.SA} offset:{i*128}", ("sa", t)),
            lambda: k.ds(f"ds_read_b128 {vr(S+2,4)}, v{R.SB} offset:{i*128}", ("sa", t)),
            lambda: k.ds(f"ds_read_b128 {vr(S+6,4)}, v{R.SB} offset:{i*128+16}", ("sa", t))]
def fix(k, R, fx, t, acc, at, pk, S=A_STA, pre=False, nxt=()):
    a = lambda txt, c=1, at=0: fx.add(lambda: k.e(txt), c, at)
    i = 0 if t == "h" else t + 1
    if not pre:
        for n, f in enumerate(fix_reads(k, R, t, S)): fx.add(f, 1, at - P.a1_salead if n == 0 else 0)
    fx.add(lambda: k.wait(lg=[("sa", t)]), 1, at)
    for f in nxt: fx.add(f)
    for r0, cs, dst in ((acc[0], CSQ, None if t == "h" else A_Q + 2*t), (acc[1], CSK, A_K + 2*i)):
        if dst is None: continue
        isq = cs == CSQ
        if pk:
            for h in (0, 2): a(f"v_pk_fma_f32 {vr(r0+h,2)}, {vr(S,2)}, {vr(cs+h,2)}, {vr(r0+h,2)} op_sel_hi:[0,1,1]")
            if not isq:
                for h in (0, 2): a(f"v_pk_mul_f32 {vr(r0+h,2)}, {vr(S,2)}, {vr(r0+h,2)} op_sel:[1,0] op_sel_hi:[1,1]")
        else:
            for r in range(4): a(f"v_fmac_f32 v{r0+r}, v{S}, v{cs+r}")
            if not isq:
                for r in range(4): a(f"v_mul_f32 v{r0+r}, v{S+1}, v{r0+r}")
        if isq: a(f"v_mul_f32 v{A_QS+t}, s{sCEXP}, v{S+1}")
        for h in range(2): a(f"v_cvt_pk_bf16_f32 v{dst+h}, v{r0+2*h}, v{r0+2*h+1}")
    r0 = acc[2]
    for r in range(4): a(f"v_fmac_f32 v{r0+r}, v{S+2+2*r}, v{CSV}")
    for r in range(4): a(f"v_mul_f32 v{r0+r}, v{S+3+2*r}, v{r0+r}")
    for h in range(2): a(f"v_cvt_pk_bf16_f32 v{A_V+2*i+h}, v{r0+2*h}, v{r0+2*h+1}")
    fx.add(lambda: (k.mark(("fix", t)), k.stamp(f"t0 fix{t}")), 0)

def attn(k, R, fx, t, B):
    SC, SP, PP, O, SUM, T = B, B + 4, B + 8, B + 12, B + 16, B + 20
    a = lambda txt, c=1: fx.add(lambda: k.e(txt), c)
    q = vr(A_Q + 2*t, 2)
    fx.dep(("fix", t)); fx.dep(("fix", t - 1 if t else "h")); fx.skip(1)
    a(f"{MF16S} {vr(SC,4)}, {vr(A_K+2*(t+1),2)}, {q}, 0", 2)
    a(f"{MF16S} {vr(SP,4)}, {vr(A_K+2*t,2)}, {q}, {vr(R.CI,4) if t == 0 else '0'}", 2)
    fx.skip(3)
    for rr, cur in ((0, sCUR0), (1, sCUR1)):
        a(f"v_cndmask_b32 v{T+2}, v{SC+2*rr}, v{SC+2*rr+1}, s[{sODD}:{sODD+1}]")
        a(f"v_cndmask_b32 v{T+3}, v{SP+2*rr}, v{SP+2*rr+1}, s[{sODD}:{sODD+1}]")
        a(f"v_cndmask_b32 v{T+rr}, v{T+3}, v{T+2}, s[{cur}:{cur+1}]")
    a(f"v_max_f32 v{T+2}, v{T}, v{T+1}"); a(f"v_mov_b32 v{T+3}, v{T+2}"); fx.skip(1)
    a(f"v_permlane16_swap_b32 v{T+2}, v{T+3}", 2); a(f"v_max_f32 v{T+2}, v{T+2}, v{T+3}"); a(f"v_mov_b32 v{T+3}, v{T+2}"); fx.skip(1)
    a(f"v_permlane32_swap_b32 v{T+2}, v{T+3}", 2); a(f"v_max_f32 v{T+2}, v{T+2}, v{T+3}")
    a(f"v_mul_f32 v{T+2}, v{A_QS+t}, v{T+2}")
    for rr in range(2): a(f"v_fma_f32 v{T+rr}, v{T+rr}, v{A_QS+t}, -v{T+2}")
    for rr in range(2): a(f"v_exp_f32 v{T+rr}, v{T+rr}", 2)
    for rr in range(2): a(f"v_cvt_pk_bf16_f32 v{T+rr}, v{T+rr}, v{T+rr}")
    a(f"v_and_b32 v{PP}, v{T}, v{R.M}"); a(f"v_and_b32 v{PP+1}, v{T+1}, v{R.M+1}")
    a(f"v_and_b32 v{PP+2}, v{T}, v{R.M+2}"); a(f"v_and_b32 v{PP+3}, v{T+1}, v{R.M+3}")
    fx.skip(1)
    a(f"{MF16} {vr(SUM,4)}, {vr(R.ONE,4)}, {vr(PP,4)}, 0", 2)
    a(f"{MF16} {vr(O,4)}, {vr(A_V+2*t,4)}, {vr(PP,4)}, 0", 2)
    fx.skip(3)
    a(f"v_rcp_f32 v{T}, v{SUM}", 2); fx.skip(1)
    for r in range(4): a(f"v_mul_f32 v{O+r}, v{T}, v{O+r}")
    for h in range(2): a(f"v_cvt_pk_bf16_f32 v{A_OP+2*t+h}, v{O+2*h}, v{O+2*h+1}")
    fx.add(lambda: (k.mark(("attn", t)), k.stamp(f"t0 attn{t}")), 0)

def ostore(k, fx, pair):
    b = A_OP + 4 * pair
    fx.dep(("attn", 2*pair)); fx.dep(("attn", 2*pair + 1))
    fx.dep("po1" if pair == 0 else "blank")
    fx.skip(1)
    fx.add(lambda: k.e(f"v_permlane16_swap_b32 v{b}, v{b+2}"), 2); fx.add(lambda: k.e(f"v_permlane16_swap_b32 v{b+1}, v{b+3}"), 2)
    fx.add(lambda: (k.dstore(f"buffer_store_dwordx4 {vr(b,4)}, v{vL16}, {SRD_WS}, s{53+pair} offen", ("ost", pair)), k.mark(("ost", pair))))

Z_WD, Z_TR, Z_HE, Z_HO, Z_OE, Z_OO = 164, 165, 166, 167, 168, 169
Z_XF, Z_SUM, Z_GR, Z_SUMH, Z_GRH, Z_CV = 104, 240, 244, 248, 252, 100
P.k_first = 4; P.k_prep = 13
P.k_look, P.k_atom, P.k_bar, P.k_vgap, P.k_pst, P.k_pgap = 3, 6, 3, 3, 3, 0
NS0 = 6
def z_acc(t):
    if t == "h": return (None, A_ACC + 48, A_ACC + 52)
    return (A_ACC + 12*t, A_ACC + 12*t + 4, A_ACC + 12*t + 8)

def a10_lanes(k):
    k.e("v_lshrrev_b32 v60, 3, v1", "v_and_b32 v61, 6, v60", "v_and_b32 v62, 7, v1", "v_xor_b32 v61, v61, v62",
        "v_lshlrev_b32 v61, 4, v61", f"v_lshl_add_u32 v{A_DX}, v60, 10, v61")
    k.e("v_and_b32 v61, 2, v60", f"s_and_b32 s32, s{sW}, 1", "s_lshl_b32 s32, s32, 2", "v_or_b32 v61, s32, v61", "v_xor_b32 v61, v61, v62",
        "v_lshlrev_b32 v61, 4, v61", "v_mul_u32_u24 v60, 3072, v60", f"v_add_u32 v{Z_WD}, v60, v61")
    k.e(f"s_add_u32 s{sROT}, s{sB}, s{sCS}", f"s_and_b32 s{sROT}, s{sROT}, 7")
    k.e(f"s_lshl_b32 s47, s{sB}, 3", "s_sub_u32 s48, s47, 2", "s_max_i32 s48, s48, 0", f"s_and_b32 s32, s{sW}, 1", "s_add_u32 s48, s48, s32",
        "s_lshl_b32 s48, s48, 13", f"s_lshl_b32 s32, s{sW}, 1", "s_add_u32 s47, s47, s32", "s_lshl_b32 s47, s47, 13")
    k.e(f"s_mul_i32 s51, s{sW}, {8*3072}", f"s_lshl_b32 s32, s{sCS}, 7", "s_add_u32 s51, s51, s32", f"s_mul_i32 s52, s{sW}, 3072")
    k.e(f"s_lshl_b32 s49, s{sW}, 14", f"s_and_b32 s32, s{sW}, 1", "s_lshl_b32 s50, s32, 13", f"s_lshr_b32 s32, s{sW}, 1",
        "s_lshl_b32 s33, s32, 10", "s_add_u32 s50, s50, s33", f"s_add_u32 s90, s32, s{sROT}")

def a10_x(k, c):
    S = lambda *t: [("s", lambda x=x: k.e(x)) for x in t]
    ld = lambda: k.vm(f"buffer_load_dwordx4 v{A_DX}, {SRD_X}, s33 offen lds", ("x", c))
    ops = S(f"s_add_u32 s33, s{sROT}, {c}", "s_and_b32 s33, s33, 7", "s_lshl_b32 s33, s33, 7", f"s_add_u32 m0, s49, {L_X + c*1024}", "s_add_u32 s33, s33, s47")
    ops += [("v", ld)] + S(f"s_add_u32 m0, s49, {L_X + 8192 + c*1024}", "s_add_u32 s33, s33, 8192") + [("v", ld)]
    if c % 2 == 0:
        ops += S(f"s_add_u32 s33, s90, {c}", "s_and_b32 s33, s33, 7", "s_lshl_b32 s33, s33, 7", f"s_add_u32 m0, s50, {L_XH0 + c*1024}", "s_add_u32 s33, s33, s48") + [("v", ld)]
    return ops

def a10_w(k, s):
    S = lambda *t: [("s", lambda x=x: k.e(x)) for x in t]
    if s & 1: ops = S(f"s_add_u32 m0, s52, {(s % NS0)*12288}", f"s_add_u32 s63, s63, {32*3072}")
    else: ops = S(f"s_add_u32 s63, s{sROT}, {s>>1}", "s_and_b32 s63, s63, 7", f"s_mul_i32 s63, s63, {64*3072}", f"s_add_u32 m0, s52, {(s % NS0)*12288}", "s_add_u32 s63, s63, s51")
    for p in range(3): ops.append(("v", lambda p=p: k.vm(f"buffer_load_dwordx4 v{Z_WD}, {SRD_QKV}, s63 offen offset:{p*1024} lds", ("w", s))))
    return ops
def run(ops):
    for _, f in ops: f()

def fill(k, mains, streams, cap=2):
    lastv = -99
    for g, m in enumerate(mains):
        m(); k.gap = g
        for a, o in streams:
            if a <= g and o and o[0][0] == "s": o.pop(0)[1](); break
        room = cap; nd = 0
        if g - lastv >= P.k_vgap and k.bg_step(): room -= 1; lastv = g
        while room > 0:
            pick = None
            for a, o in streams:
                if a > g or not o: continue
                t = o[0][0]
                if t == "d" and nd >= 1: continue
                if t == "v" and g - lastv < P.k_vgap: continue
                pick = o; break
            if pick is None: break
            t, f = pick.pop(0); f(); room -= 2 if t == "b" else 1
            if t == "d": nd += 1
            if t == "v": lastv = g
    for a, o in streams: run(o)

def a10_lanes2(k):
    k.e("v_lshrrev_b32 v60, 4, v1", "v_bfe_u32 v61, v1, 2, 2", "v_and_b32 v62, 1, v60", "v_lshlrev_b32 v62, 1, v62",
        "v_lshrrev_b32 v63, 1, v61", "v_or_b32 v62, v62, v63", f"v_xor_b32 v62, s{sW}, v62", "v_lshlrev_b32 v62, 5, v62",
        "v_mul_u32_u24 v60, 3072, v60", "v_lshl_add_u32 v60, v61, 7, v60", "v_add_u32 v60, v60, v62",
        "v_and_b32 v61, 3, v1", f"v_lshl_add_u32 v{Z_TR}, v61, 3, v60")
    k.e("v_and_b32 v60, 15, v1", "v_cmp_eq_u32 s[78:79], 0, v60")
    k.e(f"v_subrev_u32 v{Z_HE}, 16384, v{R0.XE}", f"v_subrev_u32 v{Z_HO}, 16384, v{R0.XO}",
        f"v_add_u32 v{Z_OE}, s49, v{R0.XE}", f"v_add_u32 v{Z_OO}, s49, v{R0.XO}")

def a10_loop(k, first):
    LA = P.k_look
    def sync(s, extra=()):
        k.wait(vm=[("w", s), ("x", s >> 1)] + list(extra)); k.e("s_barrier")
    nxt = [first]
    def dmas(upto):
        out = []
        while nxt[0] <= min(upto, 15):
            n = nxt[0]; nxt[0] += 1
            if n % 2 == 0: out += a10_x(k, n // 2)
            out += a10_w(k, n)
        return out
    def reads(s):
        fb = Z_XF + 24 * (s & 1); off = (s >> 1) * 1024; o = s & 1
        tr = lambda p, j: ("d", lambda: k.ds(f"ds_read_b64_tr_b16 {ar(12*s+4*p+2*j,2)}, v{Z_TR} offset:{(s%NS0)*12288 + p*1024 + j*512}", ("r", s, 0 if p == 0 else 1)))
        xr = lambda d, a, of, grp: ("d", lambda: k.ds(f"ds_read_b128 {vr(d,4)}, v{a} offset:{of}", ("r", s, grp)))
        out = [tr(0, 0), tr(0, 1)] + [xr(fb + 4*t, R0.XO if o else R0.XE, t*16384 + off, 0) for t in range(4)]
        out += [tr(1, 0), tr(1, 1), tr(2, 0), tr(2, 1), xr(fb + 16, Z_HO if o else Z_HE, off, 1), xr(fb + 20, Z_OO if o else Z_OE, off, 1)]
        return out
    l0_background(k)
    pst = pack_stores(k)
    sync(0)
    k.stamp("k0")
    run(reads(0)); run(dmas(LA - 1))
    for s in range(16):
        fb = Z_XF + 24 * (s & 1)
        c = lambda r: "0" if s == 0 else vr(r, 4)
        wq, wk, wv, one = ar(12*s, 4), ar(12*s + 4, 4), ar(12*s + 8, 4), vr(R0.ONE, 4)
        ms = [f"{MF16} {vr(z_acc(t)[0],4)}, {wq}, {vr(fb+4*t,4)}, {c(z_acc(t)[0])}" for t in range(4)]
        for t in [0, 1, 2, 3, "h"]:
            xf = vr(fb + (16 if t == "h" else 4*t), 4)
            ms.append(f"{MF16} {vr(z_acc(t)[1],4)}, {wk}, {xf}, {c(z_acc(t)[1])}")
            ms.append(f"{MF16} {vr(z_acc(t)[2],4)}, {xf}, {wv}, {c(z_acc(t)[2])}")
        ms += [f"{MF16} {vr(Z_CV,4)}, {wq}, {vr(fb+16,4)}, {c(Z_CV)}",
               f"{MF16} {vr(Z_SUM,4)}, {one}, {vr(fb+20,4)}, {c(Z_SUM)}", f"{MF16} {vr(Z_GR,4)}, {vr(fb+20,4)}, {vr(fb+20,4)}, {c(Z_GR)}",
               f"{MF16} {vr(Z_SUMH,4)}, {one}, {vr(fb+16,4)}, {c(Z_SUMH)}", f"{MF16} {vr(Z_GRH,4)}, {vr(fb+16,4)}, {vr(fb+16,4)}, {c(Z_GRH)}"]
        mains = [lambda m=m: k.e(m) for m in ms]
        k.wait(lg=[("r", s, 0)])
        streams = [(3, [("s", lambda: k.wait(lg=[("r", s, 1)]))] +
                       [("a", lambda d=d: k.e(f"v_cndmask_b32 v{fb+16+d}, v{fb+16+d}, v{R0.ONE}, s[78:79]")) for d in range(4)])]
        if s + 1 < 16:
            ex = ["pks"] if s + 1 == P.k_atom else []
            assert not ex or not pst, "arrival before the last pack store"
            assert P.k_prep > 14 - LA
            ops = [("b", lambda: sync(s + 1, ex))] + reads(s + 1)
            if ex: ops.append(("b", lambda: arrive(k)))
            streams.append((P.k_bar, ops))
            streams.append((0, dmas(s + LA)))
        n = 0; mine = []
        while pst and (n < P.k_pst or pst[0][0] == "a"):
            n += pst[0][0] == "v"; mine.append(pst.pop(0))
        streams.append((P.k_pgap, mine))
        if s == P.k_prep: streams.append((6, tail_prep(k)))
        if s == P.k_touch:
            streams.append((2, [("b", lambda: k.touch(157, "p", ["s_mov_b32 s32, s53"], False)),
                                ("b", lambda: k.touch(158, "q", [f"s_add_u32 s32, s64, {BX1[0]}"], False)),
                                ("b", lambda: k.touch(159, "h", h_base("s32", 0), False) if P.h_touch0 == "k" else None)]))
        if s == P.k_gb: streams.append((1, [("v", lambda t=t: k.vm(t, "gb")) for t in GB_LOADS]))
        if s == P.k_chk: streams.append((1, [("b", lambda: rendezvous(k))]))
        if s == 15 and P.k_chk < 16:
            streams.append((max(P.k_bar, 4), [("b", lambda: (k.e("s_barrier"), k.mark("xfree")))]))
        fill(k, mains, streams)
        if s in (3, 7, 11): k.stamp(f"k{s+1}")
    k.stamp("k16")
    if P.k_chk >= 16: rendezvous(k)

GB_LOADS = [f"buffer_load_dwordx4 {vr(36+4*j,4)}, v{vL16}, {SRD_WS}, s75 offen offset:{j*1024} sc1" for j in range(4)] + \
           [f"buffer_load_dword v{vP}, v172, {SRD_WS}, s77 offen offset:8 sc1"]
def arrive(k):
    k.wait(vm=["tag"])
    k.e(f"v_readfirstlane_b32 s{sTAG}, v170", f"s_cmp_eq_u32 s{sTAG}, 0", "s_cbranch_scc1 L_tag_spin ;np", "L_tag_ok: ;np")
    k.spins += ["L_tag_spin:", f"s_sub_u32 s{sBUD}, s{sBUD}, 1", "s_cbranch_scc1 L_tag_give", f"buffer_load_dword v170, v{vFA}, {SRD_DBG}, 0 offen sc1",
                "s_waitcnt vmcnt(0)", f"v_readfirstlane_b32 s{sTAG}, v170", f"s_cmp_eq_u32 s{sTAG}, 0", "s_cbranch_scc1 L_tag_spin", "s_branch L_tag_ok",
                "L_tag_give:", f"s_mov_b32 s{sBUD}, 0", "s_branch L_tag_ok"]
    k.e(f"v_mov_b32 v176, s{sTAG}", "v_not_b32 v177, v176", f"v_mov_b32 v178, s{sXCC}")
    k.vm(f"buffer_store_dwordx4 v[176:179], v171, {SRD_WS}, s75 offen sc1", "arr")

def rendezvous(k):
    chk = [f"s_not_b32 s32, s{sTAG}"]
    for j in range(4): chk += [f"v_xor_b32 v{36+4*j}, s{sTAG}, v{36+4*j}", f"v_xor_b32 v{37+4*j}, s32, v{37+4*j}"]
    chk += ["v_or3_b32 v36, v36, v37, v40", "v_or3_b32 v44, v44, v45, v41", "v_or3_b32 v36, v36, v48, v49", "v_or_b32 v36, v36, v44", "v_cmp_ne_u32 vcc, 0, v36"]
    k.wait(vm=["gb"])
    k.e(*chk); k.e("s_cbranch_vccnz L_gb_spin ;np", "L_gb_ok: ;np")
    k.spins += ["L_gb_spin:", f"s_sub_u32 s{sBUD}, s{sBUD}, 1", "s_cbranch_scc1 L_gb_give", "s_sleep 2"] + GB_LOADS + ["s_waitcnt vmcnt(0)"] + chk + \
               ["s_cbranch_vccnz L_gb_spin", "s_branch L_gb_ok", "L_gb_give:", f"s_mov_b32 s{sBUD}, 0", "s_branch L_gb_ok"]
    k.e(f"v_cmp_ne_u32 vcc, s{sXCC}, v{vP}", "s_and_b32 s99, vcc_lo, 0xffff" if not P.safe else "s_and_b32 s99, 1, 1",
        f"s_cselect_b32 s{sML}, {OOB>>1:#x}, 0", f"s_cselect_b32 s{sMS}, 0, {OOB>>1:#x}")
    k.mark("gb")

W_OA, W_UA, W_SA, W_RB = 152, 154, 155, 156
def wo_bases(k):
    k.e(f"s_lshl_b32 s32, s{sB}, 2", f"s_add_u32 s32, s32, s{sW}", "s_lshl_b32 s64, s32, 14", f"s_lshl_b32 s33, s{sCS}, 10", "s_add_u32 s64, s64, s33",
        "s_lshr_b32 s32, s32, 1", "s_lshl_b32 s80, s32, 15", "s_lshl_b32 s65, s32, 11", "s_lshl_b32 s66, s32, 3", f"s_add_u32 s66, s66, s{sCS}", "s_lshl_b32 s66, s66, 1",
        f"s_and_b32 s32, s{sW}, 1", "s_add_u32 s66, s66, s32", "s_lshl_b32 s66, s66, 2", "s_lshl_b32 s32, s32, 8", "s_add_u32 s80, s80, s32", "s_add_u32 s65, s65, s32",
        f"s_lshr_b32 s32, s{sCS}, 1", "s_lshl_b32 s32, s32, 9", "s_add_u32 s65, s65, s32", f"s_and_b32 s32, s{sCS}, 1", "s_lshl_b32 s32, s32, 3", "s_add_u32 s65, s65, s32")
def wo_lanes(k):
    x, y = 66, 67
    return [lambda t=t: k.e(*t) for t in (
        [f"v_and_b32 v{x}, 15, v1"], [f"v_lshrrev_b32 v{y}, 4, v1"], [f"v_lshlrev_b32 v{W_OA}, 4, v{x}"], [f"v_lshl_add_u32 v{W_SA}, v{y}, 2, v{W_OA}"],
        [f"v_lshl_add_u32 v{W_OA}, v{y}, 9, v{W_OA}"], [f"v_and_b32 v{W_UA}, 7, v1"], [f"v_lshlrev_b32 v{W_UA}, 4, v{W_UA}"], [f"v_lshl_add_u32 v{W_UA}, v{y}, 7, v{W_UA}"],
        [f"v_lshrrev_b32 v{x}, 3, v{x}"], [f"v_lshl_add_u32 v{W_UA}, v{x}, 13, v{W_UA}"], [f"v_add_u32 v{W_RB}, {6*16384}, v{vL16}"],
        ["v_cmp_gt_u32 vcc, 32, v1", f"v_mov_b32 v{y}, {OOB:#x}", f"v_cndmask_b32 v{W_SA}, v{y}, v{W_SA}, vcc"])]
def blanks(k, layer):
    if not P.tags: return [lambda: k.mark("blank")]
    z = 66
    return [lambda: (k.e(f"v_mov_b32 v{z}, -1"), k.dstore(f"buffer_store_dword v{z}, v{vL16}, {SRD_WS}, s53 offen", "blank")),
            lambda: (k.e(f"s_add_u32 s58, s64, {BX1[layer]}"), k.dstore(f"buffer_store_dword v{z}, v{W_UA}, {SRD_WS}, s58 offen", "blank")),
            lambda: k.dstore(f"buffer_store_dword v{z}, v{W_UA}, {SRD_WS}, s58 offen offset:512", "blank"),
            lambda: (k.e(f"s_add_u32 s58, s65, {BS1[layer]}"), k.dstore(f"buffer_store_dword v{z}, v{W_SA}, {SRD_WS}, s58 offen", "blank"), k.mark("blank"))]
def wo_prepoll(k, layer):
    k.poll_addr(A_PA, 32)
    k.e(f"s_lshl_b32 s32, s{sB}, 7", f"s_add_u32 s{sPO}, s32, {fl(layer, FL_O)}", f"s_add_u32 s59, s80, {BO[layer]}")
    k.bg_held = True
    k.poll_issue(A_PA, "po1"); k.mark("po1")

def dna(k): return regloads(k, sDS, 0, lambda j: ar(192 + 4*j, 4), 16, "dna")

def tail_prep(k):
    R = R0
    A = lambda *t: [("a", lambda x=x: k.e(x)) for x in t]
    B = lambda *t: [("b", lambda: k.e(*t))]
    ops = A("v_and_b32 v73, 15, v1", "v_lshrrev_b32 v74, 4, v1", "v_lshlrev_b32 v73, 10, v73", "v_lshl_add_u32 v73, v74, 4, v73")
    ops += B(f"s_lshl_b32 s58, s{sB}, 2", f"s_add_u32 s58, s58, s{sW}", "s_lshl_b32 s58, s58, 14", f"s_lshl_b32 s59, s{sCS}, 7", "s_add_u32 s58, s58, s59")
    ops += [("v", lambda p=p: k.vm(f"buffer_load_dwordx4 {vr(RES+4*p,4)}, v73, {SRD_X}, s58 offen offset:{p*64}", "res")) for p in range(2)]
    ops += A("v_and_b32 v75, 3, v1", "v_cmp_eq_u32 s[34:35], 1, v75", "v_cmp_eq_u32 s[36:37], 2, v75", "v_cmp_eq_u32 s[38:39], 3, v75", "v_bfe_u32 v75, v1, 2, 2")
    ops += B("v_cmp_eq_u32 vcc, v75, v74", f"v_mov_b32 v72, {L_SA0 + 768}", f"s_lshl_b32 s59, s{sW}, 7", f"v_add_u32 v74, s59, v{R.SA}",
             "v_cndmask_b32 v74, v72, v74, vcc", f"v_cndmask_b32 v75, v72, v{R.SA}, vcc")
    return ops + [("a", f) for f in wo_lanes(k)]

def l0_background(k):
    k.per = dict(P.per_k)
    dd = dna(k)
    bg_list(k, dd[:P.dna_first], "s4", "dna", "gb")
    bg_list(k, wow(k), "s4", "wow", "xfree")
    bg_batches(k, [0, 1, 2, 3], "s2", lambda b: "xfree")
    bg_batches(k, [4], "s2", lambda b: "wobar")
    bg_batches(k, [5], "s2", lambda b: "xfree")
    bg_batches(k, [6, 7, 8, 9], "s2", lambda b: "gubar")
    bg_list(k, dd[P.dna_first:], "s4", "dna")
P.per_k = {"s2": 90, "s4": 70}

def a10_tail(k):
    R = R0
    k.per = dict(P.per_tail0)
    k.stamp("t0 gb")
    k.touch(72, "t", [f"s_add_u32 s32, s65, {BS1[0]}"])
    k.bg_burst(2)
    hk, hv = z_acc("h")[1], z_acc("h")[2]
    for r in range(4):
        k.e(f"v_mov_b32_dpp v{CSQ+r}, v{Z_CV+r} row_newbcast:0 row_mask:0xf bank_mask:0xf", f"v_mov_b32_dpp v{CSK+r}, v{hk+r} row_newbcast:0 row_mask:0xf bank_mask:0xf")
    k.e(f"v_mov_b32 v{CSV}, v{hv}", f"v_mov_b32 v45, v{hv}", f"v_permlane16_swap_b32 v{CSV}, v45", f"v_mov_b32 v45, v{CSV}", f"v_permlane32_swap_b32 v{CSV}, v45")
    fa = Flex(); fb = Flex()
    for fx, S, G, ad, off in ((fa, Z_SUM, Z_GR, 74, 128), (fb, Z_SUMH, Z_GRH, 75, 0)):
        a = lambda txt, c=1, fx=fx: fx.add(lambda: k.e(txt), c)
        a(f"v_cndmask_b32 v{S+1}, v{G}, v{G+1}, s[34:35]"); a(f"v_cndmask_b32 v{S+1}, v{S+1}, v{G+2}, s[36:37]"); a(f"v_cndmask_b32 v{S+1}, v{S+1}, v{G+3}, s[38:39]")
        ln_finish(a, S, S + 1); a(f"v_rsq_f32 v{S+1}, v{S+1}"); fx.skip(1)
        fx.add(lambda S=S, ad=ad, off=off: k.ds(f"ds_write_b64 v{ad}, {vr(S,2)} offset:{off}", "saw"))
    drain([fa, fb], k)
    for f in blanks(k, 0): f()
    k.wait(lg="all"); k.e("s_barrier"); k.mark("xfree")
    k.stamp("t0 bar")
    fx = Flex(); f1 = Flex(); f2 = Flex()
    od = (2, 1, 3, 0, "h"); Ss = (A_STA, 56)
    for f in fix_reads(k, R, od[0], Ss[0]): f()
    for n, t in enumerate(od):
        fix(k, R, fx, t, z_acc(t), 0, True, Ss[n & 1], True, fix_reads(k, R, od[n + 1], Ss[~n & 1]) if n < 4 else ()); fx.skip(1)
    attn(k, R, f1, 2, R.ATT[0]); attn(k, R, f2, 3, R.ATT[1]); ostore(k, f2, 1)
    attn(k, R, f1, 1, R.ATT[0]); attn(k, R, f2, 0, R.ATT[1]); ostore(k, f2, 0)
    f3 = Flex(); f3.dep(("ost", 1))
    for _ in range(P.l0_flag_delay): f3.skip(1)
    f3.add(lambda: (k.wait(vm=[("ost", 1)]), k.flag(1, 89), k.mark("oflag1")))
    f3.dep(("attn", 0)); f3.add(lambda: wo_prepoll(k, 0))
    drain([fx, f1, f2, f3], k)
    k.stamp("a1 end")
P.l0_flag_delay = 6; P.dna_first = 2
P.per_tail0 = {"s2": 70, "s4": 45}

def a11_bases(k):
    out = []
    S = lambda *t: out.extend(lambda x=x: k.e(x) for x in t)
    S(f"s_lshr_b32 s70, s{sW}, 1", "s_lshl_b32 s49, s70, 13", f"s_and_b32 s71, s{sW}, 1", "s_lshl_b32 s71, s71, 2",
      f"s_add_u32 s50, s71, s{sROT}", "s_lshl_b32 s71, s71, 10")
    for i in range(4):
        S(f"s_add_u32 s70, s50, {i}", "s_and_b32 s70, s70, 7", "s_lshl_b32 s70, s70, 10", "s_add_u32 s70, s70, s49", f"s_sub_u32 s{92+i}, s70, {i*1024}")
    S("s_add_u32 s49, s49, s71", f"s_lshl_b32 s47, s{sB}, 16", f"s_add_u32 s47, s47, {WS_X[1]}")
    S(f"s_sub_u32 s48, s{sB}, 1", "s_max_i32 s48, s48, 0", "s_lshl_b32 s51, s48, 10", f"s_add_u32 s51, s51, {WS_HST}",
      "s_lshl_b32 s52, s48, 11", f"s_add_u32 s52, s52, {WS_HXF}", "s_lshl_b32 s48, s48, 14", f"s_add_u32 s48, s48, {WS_HALO}")
    S("v_lshrrev_b32 v28, 4, v1", "v_and_b32 v29, 15, v1", "v_lshlrev_b32 v29, 4, v29", f"v_lshl_add_u32 v{A_U}, v28, 9, v29", f"v_lshl_add_u32 v{A_U+1}, v28, 8, v29")
    S(f"s_lshl_b32 s70, s{sB}, 12", f"s_and_b32 s71, s{sW}, 1", "s_lshl_b32 s71, s71, 8", "s_add_u32 s70, s70, s71", f"s_add_u32 s90, s70, {WS_ST[1]}")
    out.append(lambda: k.e(f"s_lshl_b32 s70, s{sB}, 1", f"s_add_u32 s70, s70, s{sW}", "s_lshl_b32 s72, s70, 13", f"s_lshl_b32 s71, s{sCS}, 10", "s_add_u32 s72, s72, s71",
        f"s_add_u32 s72, s72, {WS_HALO - 16384}", f"s_cmp_ge_u32 s{sW}, 2", f"s_cselect_b32 s72, s72, {OOB>>1:#x}"))
    out.append(lambda: k.e(f"s_lshl_b32 s73, s{sB}, 10", f"s_lshr_b32 s71, s{sCS}, 1", "s_lshl_b32 s71, s71, 8", "s_add_u32 s73, s73, s71", f"s_and_b32 s71, s{sCS}, 1",
        "s_lshl_b32 s71, s71, 3", "s_add_u32 s73, s73, s71"))
    out.append(lambda: k.e(f"s_lshl_b32 s71, s{sW}, 7", "s_add_u32 s73, s73, s71", f"s_add_u32 s73, s73, {WS_HST - 256}",
        f"s_cmp_ge_u32 s{sW}, 2", f"s_cselect_b32 s73, s73, {OOB>>1:#x}"))
    out.append(lambda: k.e(f"s_lshl_b32 s70, s{sB}, 3", f"s_add_u32 s70, s70, s{sCS}", "s_lshl_b32 s70, s70, 1", f"s_add_u32 s70, s70, s{sW}", "s_lshl_b32 s70, s70, 7",
        f"s_add_u32 s70, s70, {WS_HXF - 256}", f"s_cmp_ge_u32 s{sW}, 2", f"s_cselect_b32 s91, s70, {OOB>>1:#x}"))
    return out

def a11_x(k, tile):
    fns = []
    for i in range(4):
        def f(i=i):
            k.set_m0(f"s_add_u32 m0, s49, {A11_POS[tile]*16384}")
            k.e(f"s_add_u32 s32, s{48 if tile == 'h' else 47}, s{92+i}")
            if tile not in (0, "h"): k.e(f"s_add_u32 s32, s32, {tile*16384}")
            k.vm(f"buffer_load_dwordx4 v{vL16}, {SRD_WS}, s32 offen offset:{i*1024} sc1 lds", ("x", tile))
        fns.append(f)
    return fns

def stats_path(k, fx, S, tag, addr, tok, at=0):
    a = lambda txt, c=1: fx.add(lambda: k.e(txt), c)
    s, q = S, S + 1
    fx.add(lambda: k.wait(vm=[tag]), 1, at)
    a(f"v_add_f32 v{s}, v{s}, v{S+2}"); a(f"v_add_f32 v{q}, v{q}, v{S+3}"); fx.skip(1)
    a(f"v_permlane16_swap_b32 v{s}, v{q}", 2); a(f"v_add_f32 v{s}, v{s}, v{q}"); a(f"v_mov_b32 v{q}, v{s}"); fx.skip(1)
    a(f"v_permlane32_swap_b32 v{s}, v{q}", 2); a(f"v_add_f32 v{s}, v{s}, v{q}"); a(f"v_mov_b32 v{q}, v{s}"); fx.skip(1)
    a(f"v_permlane16_swap_b32 v{s}, v{q}", 2)
    ln_finish(a, s, q); a(f"v_rsq_f32 v{q}, v{q}", 2); fx.skip(1)
    fx.add(lambda: (k.ds(f"ds_write_b64 v{addr}, {vr(s,2)} offset:{tok*8}", ("saw", tag)), k.mark(("saw", tag))))

def a11_early(k):
    k.vm(f"buffer_load_dwordx4 {vr(A_ST,4)}, v{A_U}, {SRD_WS}, s90 offen offset:2048 sc1", "st0")
    for t in A11_ORDER[:2]:
        for f in a11_x(k, t): f()

def a11_main(k):
    R = R1; order = A11_ORDER
    steps = [(t, s) for t in order for s in range(16)]
    accof = lambda t: A_ACC + 12 * (order.index(t) % 3)
    def xread(i):
        t, s = steps[i]
        off = A11_POS[t] * 16384 + (s >> 1) * 1024
        k.ds(f"ds_read_b128 {vr(A_XF+4*(i%4),4)}, v{R.XO if s&1 else R.XE} offset:{off}", ("xf", i))
    mains = []; fixed = {}; gap_of = {}
    need_sa = {order[1]: ["st0"], order[2]: ["st1"], order[3]: [], "h": []}
    for i, (t, s) in enumerate(steps):
        acc = accof(t); xf = vr(A_XF + 4*(i % 4), 4)
        c = lambda r, s=s: "0" if s == 0 else vr(r, 4)
        ms = []
        if t != "h": ms.append(f"{MF16} {vr(acc,4)}, {ar(12*s,4)}, {xf}, {c(acc)}")
        ms.append(f"{MF16} {vr(acc+4,4)}, {ar(12*s+4,4)}, {xf}, {c(acc+4)}")
        ms.append(f"{MF16} {vr(acc+8,4)}, {xf}, {ar(12*s+8,4)}, {c(acc+8)}")
        gap_of[(t, s)] = len(mains)
        for m in ms: mains.append(lambda m=m: k.e(m))
        last = len(mains) - 1
        fl_ = fixed.setdefault(last, [])
        if i + 1 < len(steps): fl_.append((0, lambda i=i: k.wait(lg=[("xf", i + 1)])))
        j = i + 4
        if j < len(steps):
            tj, sj = steps[j]
            if sj == 0:
                def bar(tj=tj):
                    k.wait(vm=[("x", tj)], lg=[("saw", n) for n in need_sa[tj]]); k.e("s_barrier"); k.mark(("bar", tj))
                fixed.setdefault(gap_of[(t, s)], []).append((1, bar))
            fixed[last].append((1, lambda j=j: xread(j)))
    fx = Flex(); fz = Flex(); fz2 = Flex(); fy = Flex(); fm = Flex()
    k.e(f"s_and_b32 s32, s{sW}, 1", "s_lshl_b32 s32, s32, 7", f"v_add_u32 v7, s32, v{R.SA}")
    o_bases(k, 1)
    stats_path(k, fy, A_ST, "st0", 7, 48)
    g1 = P.a1_late_gap
    fm.add(lambda: (k.wait(vm=[("xst", 1)]), k.flag(2)), 3, P.a1_flag_gap)
    fm.add(lambda: (k.poll_issue(A_PX, "px2"), setattr(k, "bg_held", not P.a1_bg_early)), 1, g1 - P.a1_poll_lead)
    fm.add(lambda: k.poll_check(A_PX, "px2", 2), 2, g1)
    fm.add(lambda: k.vm(f"buffer_load_dwordx4 {vr(56,4)}, v{A_U}, {SRD_WS}, s90 offen sc1", "st1"))
    for t in order[2:4]:
        for f in a11_x(k, t): fm.add(f, 2); fm.skip(P.a1_xgap)
    for f in wo_lanes(k): fy.add(f)
    fy.add(lambda: k.mark("wolanes"), 0)
    fm.dep("wolanes")
    fm.add(lambda: k.e(f"s_add_u32 s58, s64, {WS_X[1]}"))
    for p in range(2): fm.add(lambda p=p: k.vm(f"buffer_load_dwordx4 {vr(RES+4*p,4)}, v{W_UA}, {SRD_WS}, s58 offen offset:{p*512} sc1", "res")); fm.skip(P.a1_xgap)
    def halo_poll():
        k.poll_addr(A_PX, 16, 7)
        k.e(f"s_mov_b32 s{sPO}, s52", f"s_min_u32 s50, s{sB}, 1")
        k.poll_issue(A_PX, "phx"); k.bg_held = False
    fm.add(halo_poll, 3)
    if P.touch1 in (1, 2):
        fm.add(lambda: k.touch(60, "p", ["s_mov_b32 s32, s53"]), 6)
        fm.add(lambda: k.touch(62, "q", [f"s_add_u32 s32, s64, {BX1[1]}"]), 6)
        fm.add(lambda: k.touch(64, "t", [f"s_add_u32 s32, s65, {BS1[1]}"]), 4)
        if P.touch1 > 1: fm.add(lambda: k.touch(66, "h", h_base("s32", 1)), 6)
    for f in blanks(k, 1): fm.skip(P.a1_xgap); fm.add(f, 3)
    stats_path(k, fy, 56, "st1", 7, 16, g1 + 26)
    fm.dep(("bar", order[2]))
    fm.add(lambda: k.poll_check(A_PX, "phx", "s50"), 2)
    fm.add(lambda: k.vm(f"buffer_load_dwordx4 {vr(A_ST,4)}, v{A_U+1}, {SRD_WS}, s51 offen sc1", "sth"))
    for f in a11_x(k, "h"): fm.add(f, 2); fm.skip(P.a1_xgap)
    stats_path(k, fy, A_ST, "sth", R.SA, 0, gap_of[(order[3], P.a1_sth)])
    k.per = dict(P.per_a1); k.bg_held = True
    b5 = batch(k, 5)
    mix = [(f, "s2", ("gw", 4), None) for f in batch(k, 4)] + [(f, "s2", ("gw", 5), None) for f in b5[:3]]
    ww = [(f, "s4", "wow", None) for f in wow(k)]
    while mix or ww:
        k.bg += ww[:2]; ww = ww[2:]
        if mix: k.bg.append(mix.pop(0))
    bg_batches(k, [0], "s2", lambda b: ("bar", order[3]))
    bg_batches(k, [1], "s2", lambda b: ("bar", "h"))
    bg_batches(k, [2, 3], "s2", lambda b: "wobar")
    bg_list(k, b5[3:], "s2", ("gw", 5), "wobar")
    bg_batches(k, [6, 7, 8, 9], "s2", lambda b: "gubar")
    A = lambda t: (accof(t) if t != "h" else None, accof(t) + 4, accof(t) + 8)
    for n in range(4): fix(k, R, fx, order[n], A(order[n]), gap_of[(order[n + 1], 1 if n < 3 else 2)], False)
    attn(k, R, fz, 3, R.ATT[0]); attn(k, R, fz2, 2, R.ATT[1]); ostore(k, fz2, 1)
    attn(k, R, fz, 1, R.ATT[0])
    fx.dep(("saw", "sth"))
    for f in fix_reads(k, R, "h", A_STA): fx.add(f)
    fx.dep("gemm_done")
    fix(k, R, fx, "h", A("h"), 0, False, pre=True); attn(k, R, fz2, 0, R.ATT[1]); ostore(k, fz2, 0)
    f3 = Flex(); f3.dep(("ost", 1)); f3.skip(P.l1_flag_delay)
    f3.add(lambda: (k.wait(vm=[("ost", 1)]), k.flag(1, 89), k.mark("oflag1")), 3)
    f3.dep(("attn", 0)); f3.add(lambda: wo_prepoll(k, 1))
    k.wait(vm=[("x", order[0])]); k.e("s_barrier")
    for i in range(4): xread(i)
    k.wait(lg=[("xf", 0)])
    k.stamp("a1 first")
    if k.stamping:
        for t in order[1:]: fixed.setdefault(gap_of[(t, 0)], []).append((0, lambda t=t: k.stamp(f"a1 t{t}")))
        for g in range(6, 224, 12): fixed.setdefault(g, []).append((0, lambda g=g: k.stamp(f"fina {g}")))
    run_gaps(k, mains, fixed, [fm, f3, fy, fx, fz2, fz], 2, over=lambda i: i >= P.a1_over)
    print("a11 left:", len(fm), len(fy), len(fx), len(fz), len(fz2), len(k.bg), {n: g for n, g in k.marks.items() if isinstance(n, tuple) and n[0] in ("fix", "attn", "saw", "ost")})
    k.mark("gemm_done"); k.bg_held = P.a1_tailhold
    k.stamp("a1 gemm")
    drain([fm, fy, fx, fz, fz2, f3], k)
    for n in range(2): assert k.marks[("fix", order[n])] < gap_of[(order[n + 3], 0)], "accumulator reused too early"
    k.stamp("a1 end")
P.a1_flag_gap, P.a1_late_gap, P.a1_poll_lead, P.l1_flag_delay, P.a1_over = 8, 36, 18, 14, 48
P.a1_bg_early = False; P.a1_salead = 8; P.a1_tailhold = True; P.touch1 = 1; P.a1_xgap = 3; P.a1_sth = 4
P.per_a1 = {"s2": 95, "s4": 60}

R_W0, R_W1, R_RD, R_ST, R_OUT = 3, 4, 5, 6, 7
def red_setup(k, posA, dAB):
    x, y, z, u = 28, 29, 30, 31
    k.e(f"s_add_u32 s32, s{sGL}, {posA*16384}", f"v_add_u32 v{R_W0}, s32, v{vL16}", f"v_xor_b32 v{R_W1}, 128, v{R_W0}")
    k.e(f"v_and_b32 v{x}, 7, v1", f"v_lshrrev_b32 v{y}, 3, v1", f"s_lshl_b32 s32, s{sW}, 7", f"v_lshl_add_u32 v{z}, v{x}, 4, s32",
        f"v_bfe_u32 v{u}, v1, 4, 1", f"v_lshlrev_b32 v{R_RD}, 7, v{u}", f"v_xor_b32 v{z}, v{z}, v{R_RD}",
        f"v_bfe_u32 v{R_RD}, v1, 3, 2", f"v_lshl_add_u32 v{z}, v{R_RD}, 10, v{z}", f"v_lshrrev_b32 v{R_RD}, 5, v1",
        f"v_mul_u32_u24 v{R_RD}, {dAB*16384}, v{R_RD}", f"v_add_u32 v{z}, v{z}, v{R_RD}", f"v_add_u32 v{R_RD}, {posA*16384}, v{z}")
    k.e(f"v_lshlrev_b32 v{z}, 4, v{x}", f"v_lshl_add_u32 v{z}, v{u}, 2, v{z}", f"v_and_b32 v{u}, 0x28, v1",
        f"v_cmp_eq_u32 vcc, 0, v{u}", f"v_mov_b32 v{u}, {OOB:#x}", f"v_cndmask_b32 v{R_ST}, v{u}, v{z}, vcc")
    k.e(f"v_lshlrev_b32 v{z}, 10, v{x}", f"v_lshl_add_u32 v{R_OUT}, v{y}, 4, v{z}")

def red_bases(k):
    k.e(f"s_lshl_b32 s32, s{sB}, 3", f"s_add_u32 s32, s32, s{sW}", "s_lshl_b32 s55, s32, 13", f"s_lshl_b32 s33, s{sCS}, 10", "s_add_u32 s55, s55, s33")
    k.e("s_lshl_b32 s57, s32, 13", f"s_lshl_b32 s33, s{sCS}, 7", "s_add_u32 s57, s57, s33")
    k.e(f"s_lshl_b32 s56, s{sB}, 12", f"s_lshr_b32 s33, s{sCS}, 1", "s_lshl_b32 s33, s33, 9", "s_add_u32 s56, s56, s33",
        f"s_and_b32 s33, s{sCS}, 1", "s_lshl_b32 s33, s33, 3", "s_add_u32 s56, s56, s33", f"s_lshl_b32 s33, s{sW}, 7", "s_add_u32 s56, s56, s33")

def red_writes(k, acc, g, off, dAB):
    return [lambda q=q: k.ds(f"ds_write_b128 v{R_W1 if (q>>1)&1 else R_W0}, {vr(acc+4*q,4)} offset:{off + (q>>2)*dAB*16384 + (q&3)*1024}", ("rw", g)) for q in range(8)]
def red_reads(k, g, T, off):
    return [lambda w=w, hf=hf: k.ds(f"ds_read_b128 {vr(T+8*w+4*hf,4)}, v{R_RD} offset:{off + w*4096 + hf*512}", ("rr", g, w)) for w in range(4) for hf in range(2)]

def red_finish(k, fx, g, mm, T, xdst, stdst, final, pk):
    a = lambda txt, c=1: fx.add(lambda: k.e(txt), c)
    R = RES + 4 * mm
    def add8(d, s):
        if pk:
            for i in range(0, 8, 2): a(f"v_pk_add_f32 {vr(d+i,2)}, {vr(d+i,2)}, {vr(s+i,2)}")
        else:
            for i in range(8): a(f"v_add_f32 v{d+i}, v{d+i}, v{s+i}")
    fx.add(lambda: k.wait(lg=[("rr", g, 1)]))
    add8(T, T + 8)
    for i in range(4): a(f"v_lshlrev_b32 v{T+8+2*i}, 16, v{R+i}"); a(f"v_and_b32 v{T+9+2*i}, 0xffff0000, v{R+i}")
    add8(T, T + 8)
    fx.add(lambda: k.wait(lg=[("rr", g, 3)]))
    add8(T + 16, T + 24); add8(T, T + 16)
    for i in range(4): a(f"v_cvt_pk_bf16_f32 v{R+i}, v{T+2*i}, v{T+2*i+1}")
    if final:
        fx.add(lambda: (k.e(f"s_add_u32 s32, s57, {mm*32768}"), k.vm(f"buffer_store_dwordx4 {vr(R,4)}, v{R_OUT}, {SRD_OUT}, s32 offen {P.outm}", ("xst", g))))
        return
    fx.add(lambda: (k.e(f"s_add_u32 s32, s55, {xdst + mm*32768}"), k.dstore(f"buffer_store_dwordx4 {vr(R,4)}, v{vL16}, {SRD_WS}, s32 offen", ("xst", g))), 2)
    s, q = T + 32, T + 33
    a(f"v_add_f32 v{s}, v{T}, v{T+1}"); a(f"v_mul_f32 v{q}, v{T}, v{T}"); a(f"v_fmac_f32 v{q}, v{T+1}, v{T+1}")
    for i in range(2, 8): a(f"v_add_f32 v{s}, v{s}, v{T+i}"); a(f"v_fmac_f32 v{q}, v{T+i}, v{T+i}")
    fx.skip(1)
    a(f"v_add_f32_dpp v{s}, v{s}, v{s} row_ror:8 row_mask:0xf bank_mask:0xf"); a(f"v_add_f32_dpp v{q}, v{q}, v{q} row_ror:8 row_mask:0xf bank_mask:0xf")
    fx.skip(1)
    a(f"v_permlane16_swap_b32 v{s}, v{q}", 2); a(f"v_add_f32 v{s}, v{s}, v{q}"); a(f"v_mov_b32 v{q}, v{s}"); fx.skip(1)
    a(f"v_permlane32_swap_b32 v{s}, v{q}", 2); a(f"v_add_f32 v{s}, v{s}, v{q}")
    fx.add(lambda: (k.e(f"s_add_u32 s32, s56, {stdst + mm*2048}"), k.dstore(f"buffer_store_dword v{s}, v{R_ST}, {SRD_WS}, s32 offen", ("xst", g)), k.mark(("xst", g))), 2)

def merge(k, fx, extra, first=0):
    extra = list(extra)
    items = [it for it in fx.items if it[0] != "skip"]; fx.items = []
    per = max(1, (len(items) - first) // max(1, len(extra)))
    for n, it in enumerate(items):
        if n >= first and (n - first) % per == 0 and extra: extra.pop(0)()
        it[1](); k.bg_step()
    for f in extra: f(); k.bg_step()

def wo(k, layer):
    BF, WQ, ACC, T, PA, NQ = 32, 160, 192, 208, A_PA, 8
    state = {}
    def bload(sx):
        k.set_s(f"s_add_u32 s58, s59, {(sx & ~1)*2048}")
        k.vm(f"buffer_load_dwordx4 {vr(BF+4*sx,4)}, v{W_OA}, {SRD_WS}, s58 offen offset:{(sx%2)*2048} sc1", ("b", sx))
    def wread(n): k.ds(f"ds_read_b128 {vr(WQ+4*(n%NQ),4)}, v{W_RB} offset:{n*1024}", ("wq", n))
    k.wait(vm=["wow"]); k.e("s_barrier"); k.mark("wobar")
    for n in range(NQ): wread(n)
    btxt = lambda sx: [f"s_add_u32 s99, s59, {sx*2048}", f"buffer_load_dwordx4 {vr(BF+4*sx,4)}, v{W_OA}, {SRD_WS}, s99 offen sc1"]
    bchk = lambda sx: k.valid([f"v_cmp_eq_u32 vcc, -1, v{BF+4*sx}"], btxt(sx))
    ptxt = f"buffer_load_dword v{T+20}, v{T+21}, {SRD_WS}, s59 offen sc1"
    if P.tags:
        k.e(f"v_lshlrev_b32 v{T+21}, 8, v{PA}")
        k.e(f"v_or_b32 v{T+21}, v{T+21}, v{PA}", f"v_and_b32 v{T+21}, 0x80007c00, v{T+21}")
        k.poll_check(PA, "po1", 1)
        k.vm(ptxt, "probe")
        for sx in range(P.wo_spec): bload(sx)
        k.e(f"s_lshl_b32 s32, s{sC}, 1", f"s_and_b32 s33, s{sW}, 1", "s_add_u32 s32, s32, s33", "s_lshl_b32 s32, s32, 7", f"s_add_u32 s{sPO}, s32, {fl(layer, FL_O)}")
    else:
        k.e(f"s_add_u32 s{sFO}, s66, {fl(layer, FL_X1)}")
        k.e(f"s_cmp_lt_u32 s{sW}, 2", f"s_cbranch_scc1 L_wo_late{layer}")
        q0 = list(k.vmq)
        k.poll_check(PA, "po1", 1)
        for sx in range(P.wo_lead): bload(sx)
        if P.wo_setup_first: gu_setup(k, layer)
        k.wait(vm=[("ost", 0)]); k.flag(2, 89)
        k.e(f"s_branch L_wo_join{layer}")
        k.label(f"L_wo_late{layer}")
        k.vmq = list(q0)
        k.wait(vm=[("ost", 0)]); k.flag(2, 89)
        if P.wo_setup_first: gu_setup(k, layer)
        k.poll_issue(PA, "po2"); k.poll_check(PA, "po2", 2)
        for sx in range(P.wo_lead): bload(sx)
        k.label(f"L_wo_join{layer}")
    if P.tags or not P.wo_setup_first: gu_setup(k, layer)
    k.stamp("wo issued")
    mains = []; fixed = {}
    for n in range(64):
        sx, j = divmod(n, 4)
        mains.append(lambda n=n, sx=sx, j=j: k.e(f"{MF16} {vr(ACC+4*j,4)}, {vr(WQ+4*(n%NQ),4)}, {vr(BF+4*sx,4)}, {'0' if sx == 0 else vr(ACC+4*j,4)}"))
        fl_ = fixed.setdefault(n, [])
        if n < 63: fl_.append((0, lambda n=n: k.wait(vm=[("b", (n + 1) // 4)] if (n + 1) % 4 == 0 else None, lg=[("wq", n + 1)])))
        if P.tags and n < 63 and (n + 1) % 4 == 0: fl_.append((1, lambda n=n: bchk((n + 1) // 4)))
        if P.tags and n == 42: fl_.append((1, lambda: k.poll_issue(PA, "px1")))
        if n + NQ < 64: fl_.append((1, lambda n=n: wread(n + NQ)))
        if n % P.wo_bstep == 0 and P.wo_lead + n // P.wo_bstep < 16: fl_.append((1, lambda n=n: bload(P.wo_lead + n // P.wo_bstep)))
    fx = Flex()
    a = lambda txt, c=1, at=0: fx.add(lambda: k.e(txt), c, at)
    fx.add(lambda: k.wait(vm=["res"]), 1, 8)
    for i in range(8): a(f"v_lshlrev_b32 v{T+2*i}, 16, v{RES+i}"); a(f"v_and_b32 v{T+2*i+1}, 0xffff0000, v{RES+i}")
    k.per = dict(P.per_wo[layer]); k.bg_held = False; k.bg_next = k.t + P.wo_bg_delay
    if P.tags:
        k.wait(vm=["probe"])
        k.valid([f"v_cmp_eq_u32 vcc, -1, v{T+20}"], [ptxt] + sum([btxt(x) for x in range(P.wo_spec)], []))
        state["fresh"] = True
        for sx in range(P.wo_spec, P.wo_lead): bload(sx)
    k.wait(vm=[("b", 0)], lg=[("wq", 0)])
    if P.tags: bchk(0)
    k.stamp("wo first")
    fixed[P.wo_bg_stop].append((0, lambda: setattr(k, "bg_held", True)))
    run_gaps(k, mains, fixed, [fx], 2)
    drain([fx], k)
    k.stamp("wo gemm")
    for i in range(0, 16, 2): k.e(f"v_pk_add_f32 {vr(T+i,2)}, {vr(T+i,2)}, {vr(ACC+i,2)}")
    k.e(f"s_add_u32 s58, s64, {BX1[layer]}")
    for p in range(2):
        for i in range(4): k.e(f"v_cvt_pk_bf16_f32 v{RES+4*p+i}, v{T+8*p+2*i}, v{T+8*p+2*i+1}")
        k.dstore(f"buffer_store_dwordx4 {vr(RES+4*p,4)}, v{W_UA}, {SRD_WS}, s58 offen offset:{p*512}", "xst")
    S, Q = T + 16, T + 18
    k.e(f"v_pk_add_f32 {vr(S,2)}, {vr(T,2)}, {vr(T+2,2)}", f"v_pk_mul_f32 {vr(Q,2)}, {vr(T,2)}, {vr(T,2)}", f"v_pk_fma_f32 {vr(Q,2)}, {vr(T+2,2)}, {vr(T+2,2)}, {vr(Q,2)}")
    for i in range(4, 16, 2): k.e(f"v_pk_add_f32 {vr(S,2)}, {vr(S,2)}, {vr(T+i,2)}", f"v_pk_fma_f32 {vr(Q,2)}, {vr(T+i,2)}, {vr(T+i,2)}, {vr(Q,2)}")
    k.e(f"v_add_f32 v{S}, v{S}, v{S+1}", f"v_add_f32 v{Q}, v{Q}, v{Q+1}", f"s_add_u32 s58, s65, {BS1[layer]}",
        f"v_permlane16_swap_b32 v{S}, v{Q}", f"v_add_f32 v{S}, v{S}, v{Q}", f"v_mov_b32 v{Q}, v{S}", f"v_permlane32_swap_b32 v{S}, v{Q}", f"v_add_f32 v{S}, v{S}, v{Q}")
    k.dstore(f"buffer_store_dword v{S}, v{W_SA}, {SRD_WS}, s58 offen", "xst")
    key = lambda it: it[2][1] if isinstance(it[2], tuple) else 11.5
    k.bg.sort(key=key)
    print(f"wo{layer} done, background left:", [it[2] for it in k.bg][::4])
    k.bg_burst(P.wo_win[layer])
    k.stamp("wo end")
P.wo_bg_delay = 200; P.wo_bg_stop = 56; P.wo_lead = 6; P.wo_spec = 3; P.gu_spec = 3; P.wo_bstep = 2
P.wo_poll_gap = 1; P.wo_late_gap = 7; P.wo_hold = True; P.wo_win = [4, 4]; P.wo_var = 'B'; P.wo_prew = 2
P.per_wo = [{"s2": 35, "s4": 35}] * 2

G_RB, G_C1, G_VV, G_AUG, G_X, G_ACC, G_WF, G_T = 3, 6, 7, 28, 32, 160, 224, 240
D_WV, D_BF, D_ACC, D_T, D_WF, D_RB, D_PA = 32, 64, 128, 192, 228, 112, 115
DN_SEQ = [(g, e) for g in range(2) for e in range(28)]
DN_GROUPS = [1, 0]
def h_loader(k, layer):
    def bload(i):
        if i == 0:
            k.e(f"s_mul_i32 s32, s{sB}, {224*KB}", f"s_mul_i32 s33, s{sW}, {28*KB}", "s_add_u32 s32, s32, s33", f"s_add_u32 s59, s32, {BH[layer]}")
            for p in range(4):
                k.e(f"s_add_u32 s32, s{sCS}, {p}", f"s_and_b32 s32, s32, {3 if P.hrot else 0}", f"s_mul_i32 s32, s32, {7*KB}", f"s_add_u32 s{34+p}, s59, s32")
                if not P.hrot: k.e(f"s_add_u32 s{34+p}, s{34+p}, {7*KB*p}")
        g, e = DN_SEQ[i]; p, tl = divmod(KK_OF[e], 7)
        k.set_s(f"s_add_u32 s58, s{34+p}, {DN_GROUPS[g] * 112 * KB + (tl & 4) * 1024}")
        k.vm(f"buffer_load_dwordx4 {vr(D_BF+4*(i%P.dn_lead),4)}, v{vL16}, {SRD_WS}, s58 offen offset:{(tl & 3)*1024} sc1", ("b", i))
    return bload

def gu_setup(k, layer):
    T = G_T; XA = T + 3
    k.e(*gu_tile("s50"))
    k.e(f"v_and_b32 v{T}, 31, v1")
    k.e(f"v_mov_b32 v{G_RB}, v{vL16}", f"v_add_u32 v{G_RB+1}, 0x10000, v{vL16}", f"v_add_u32 v{G_RB+2}, 0x20000, v{vL16}")
    k.e(f"v_lshrrev_b32 v{T+1}, 5, v1", f"v_lshlrev_b32 v{G_AUG+3}, 4, v{T}", f"v_lshl_add_u32 v{G_AUG+3}, v{T+1}, 10, v{G_AUG+3}")
    k.e(f"v_lshrrev_b32 v{XA}, 3, v{T}", f"v_lshlrev_b32 v{XA}, 13, v{XA}", f"v_lshl_add_u32 v{XA}, v{T+1}, 7, v{XA}",
        f"v_and_b32 v{T}, 7, v1", f"v_lshl_add_u32 v{XA}, v{T}, 4, v{XA}")
    k.e("s_lshl_b32 s32, s50, 11", f"s_add_u32 s51, s32, {BS1[layer]}")
    k.e("s_lshl_b32 s32, s50, 15", f"s_add_u32 s52, s32, {BX1[layer]}", "s_add_u32 s53, s52, 4096")
    k.e(*h_base("s54", layer))
    k.e("s_lshr_b32 s32, s50, 1", "s_lshl_b32 s32, s32, 4", f"s_add_u32 s32, s32, s{sM}",
        "s_lshl_b32 s32, s32, 1", "s_and_b32 s33, s50, 1", "s_add_u32 s32, s32, s33", "s_lshl_b32 s32, s32, 2", f"s_add_u32 s81, s32, {fl(layer, FL_H)}")

def gu(k, layer):
    T = G_T; XA = T + 3; PA = T + 2
    if P.tags: k.poll_check(A_PA, "px1", 1)
    else:
        def pa():
            k.poll_addr(PA, 16)
            k.e("s_lshl_b32 s32, s50, 6", f"s_add_u32 s{sPO}, s32, {fl(layer, FL_X1)}")
        if not P.gu_pa_late: pa()
        k.wait(vm=["xst"]); k.flag(1)
        if P.gu_pa_late: pa()
        k.stamp("x1 flag")
        if not P.gu_bar_first: k.poll_issue(PA, "px1")
    k.e(f"s_mov_b32 s{sFO}, s81")
    seq = [(t, ks) for ks in range(33) for t in range(3)] + [(t, ks) for t in range(3, 7) for ks in range(33)]
    accof = {0: 0, 1: 1, 2: 2, 3: 3, 4: 0, 5: 1, 6: 2}
    NW = P.gu_nw
    WQ = [G_WF, G_WF + 4, G_WF + 8, G_WF + 12, T + 12]
    def wread(n):
        slot = (n % 160) * 1024
        k.ds(f"ds_read_b128 {vr(WQ[n%NW],4)}, v{G_RB + (slot>>16)} offset:{slot & 0xffff}", ("wf", n))
    def ringbar():
        k.wait(vm=[("gw", 0)]); k.e("s_barrier"); k.mark("gubar")
        for n in range(NW): wread(n)
    if P.gu_bar_first: ringbar(); k.poll_issue(PA, "px1")
    if not P.tags: k.poll_check(PA, "px1", 1)
    k.stamp("gu go")
    xtxt = lambda kg: f"buffer_load_dwordx4 {vr(G_X+4*kg,4)}, v{XA}, {SRD_WS}, s{52 + (kg>>4)} offen offset:{((kg>>2)&3)*1024 + (kg&3)*256} sc1"
    def xload(kg): k.vm(xtxt(kg), ("gx", kg))
    xchk = lambda kg: k.valid([f"v_cmp_eq_u32 vcc, -1, v{G_X+4*kg}"], [xtxt(kg)])
    stxt = [f"buffer_load_dwordx4 {vr(T+4+4*h,4)}, v{G_AUG+3}, {SRD_WS}, s51 offen offset:{512*h} sc1" for h in range(2)]
    if P.tags:
        for t_ in stxt: k.vm(t_, "gst")
        for kg in range(P.gu_spec): xload(kg)
        k.wait(vm=["gst"])
        k.valid([f"v_max3_u32 v{T}, v{T+4}, v{T+6}, v{T+8}", f"v_max_u32 v{T}, v{T}, v{T+10}", f"v_cmp_eq_u32 vcc, -1, v{T}"],
                stxt + [xtxt(x) for x in range(P.gu_spec)])
        k.stamp("gu probe")
        for kg in range(P.gu_spec, P.gu_lead): xload(kg)
    else:
        for kg in range(P.gu_lead): xload(kg)
        for t_ in stxt: k.vm(t_, "gst")
    if not P.gu_bar_first: ringbar()
    mains = []; fixed = {}
    xpos = {}
    for kg in range(P.gu_lead, 32): xpos.setdefault(int((kg - P.gu_lead) * P.gu_xstep), []).append(kg)
    for n, (t, ks) in enumerate(seq):
        acc = G_ACC + 16 * accof[t]
        b = vr(G_AUG, 4) if ks == 32 else vr(G_X + 4*ks, 4)
        c = "0" if ks == 0 else vr(acc, 16)
        mains.append(lambda n=n, acc=acc, b=b, c=c: k.e(f"{MF32} {vr(acc,16)}, {vr(WQ[n%NW],4)}, {b}, {c}"))
        fl_ = fixed.setdefault(n, [])
        if n + 1 < len(seq):
            t2, ks2 = seq[n + 1]
            need = [("gx", ks2)] if (t2 == 0 and ks2 < 32) else None
            fl_.append((0, lambda n=n, need=need: k.wait(vm=need, lg=[("wf", n + 1)])))
            if need and P.tags: fl_.append((2, lambda ks2=ks2: xchk(ks2)))
        j = n + NW
        if j < len(seq):
            if j % 16 == 0:
                fl_.append((2, lambda bi=j//16: (k.wait(vm=[("gw", bi)]), k.e("s_barrier" if not P.x_nobar else "s_nop 0"), k.mark(("gbar", bi)))))
            fl_.append((1, lambda j=j: wread(j)))
        for kg in xpos.get(n, []): fl_.append((1, lambda kg=kg: xload(kg)))
    xend = max(xpos)
    tail = [it for it in k.bg if it[2] == "dna"]; k.bg = [it for it in k.bg if it[2] != "dna"]
    bg_batches(k, [10, 11], "s2", lambda b: ("gbar", b - 8))
    mid = []
    for b in (12, 13, 14):
        for f in batch(k, b): mid.append((f, "s2", ("gw", b), ("gbar", b - 8)))
    while mid or tail:
        if mid: k.bg.append(mid.pop(0))
        if tail: k.bg.append(tail.pop(0))
    bg_batches(k, range(15, 23), "s4", lambda b: ("gbar", b - 8))
    k.per = dict(P.per_guA[layer]); k.bg_held = False; k.bg_next = k.t + P.gu_bg_delay
    fixed[xend].append((0, lambda: setattr(k, "per", dict(P.per_guB[layer]))))
    fv = Flex()
    dv = regloads(k, sDS, 48*1024, lambda j: vr(D_WV + 4*j, 4), 8, "dnv")
    k.hload = h_loader(k, layer)
    if P.hpre:
        bg_list(k, dv, "s4", "dnv", "xdead")
        fixed[207].append((0, lambda: k.mark("xdead")))
    else:
        for j, f in enumerate(dv): fv.add(f, 1, 198 + 2 + 3*j)
    fx = Flex()
    a = lambda txt, c=1, at=0: fx.add(lambda: k.e(txt), c, at)
    fx.add(lambda: k.wait(vm=["gst"]), 1, 3 * P.gu_lead)
    a(f"v_add_f32 v{T+4}, v{T+4}, v{T+6}"); a(f"v_add_f32 v{T+5}, v{T+5}, v{T+7}"); a(f"v_add_f32 v{T+8}, v{T+8}, v{T+10}"); a(f"v_add_f32 v{T+9}, v{T+9}, v{T+11}")
    a(f"v_add_f32 v{T+4}, v{T+4}, v{T+8}"); a(f"v_add_f32 v{T+5}, v{T+5}, v{T+9}"); fx.skip(1)
    a(f"v_permlane32_swap_b32 v{T+4}, v{T+5}", 2); a(f"v_add_f32 v{T+4}, v{T+4}, v{T+5}"); a(f"v_mov_b32 v{T+5}, v{T+4}"); fx.skip(1)
    a(f"v_permlane32_swap_b32 v{T+4}, v{T+5}", 2)
    ln_finish(a, T + 4, T + 5)
    a(f"v_mov_b32 v{G_VV}, v{T+5}")
    a(f"v_rsq_f32 v{G_C1}, v{T+5}", 2); a(f"v_cvt_pk_bf16_f32 v{G_AUG}, v{T+4}, v{T+4}"); a(f"v_mul_f32 v{G_C1}, {f2u(-LOG2E):#x}, v{G_C1}")
    a(f"v_and_b32 v{T+5}, 0xffff0000, v{G_AUG}"); a(f"v_sub_f32 v{T+5}, v{T+4}, v{T+5}"); a(f"v_mov_b32 v{G_AUG+2}, 0")
    a(f"v_cvt_pk_bf16_f32 v{G_AUG+1}, v{T+5}, v{G_AUG+2}"); a(f"v_mov_b32 v{G_AUG+3}, 0")
    fx.add(lambda: k.mark("aug"), 0)
    def epi(t, at):
        acc = G_ACC + 16 * accof[t]; hp = T + 8; E = T + 4
        if P.x_noepi: a("s_nop 0", 1, at)
        for i0 in range(0, 8 if not P.x_noepi else 0, 2):
            for i in (i0, i0 + 1): a(f"v_mul_f32 v{E+(i&1)}, v{G_C1}, v{acc+i}", 1, at)
            for i in (i0, i0 + 1): a(f"v_exp_f32 v{E+(i&1)}, v{E+(i&1)}", 2)
            for i in (i0, i0 + 1): a(f"v_mul_f32 v{E+2+(i&1)}, v{acc+i}, v{acc+8+i}")
            for i in (i0, i0 + 1): a(f"v_fma_f32 v{E+(i&1)}, v{E+(i&1)}, v{G_VV}, v{G_VV}")
            for i in (i0, i0 + 1): a(f"v_rcp_f32 v{E+(i&1)}, v{E+(i&1)}", 2)
            fx.skip(1)
            for i in (i0, i0 + 1): a(f"v_mul_f32 v{E+2+(i&1)}, v{E+2+(i&1)}, v{E+(i&1)}")
            a(f"v_cvt_pk_bf16_f32 v{hp+i0//2}, v{E+2}, v{E+3}")
        fx.add(lambda: k.mark(("epi", t)), 0)
        if t == 4: a("s_add_u32 s54, s54, 4096")
        fx.add(lambda: ((k.dstore if ((layer and P.h1_plain) or (not layer and P.h_touch0)) else lambda x, tg: k.vm(x + " sc1", tg))(f"buffer_store_dwordx4 {vr(hp,4)}, v{vL16}, {SRD_WS}, s54 offen offset:{(t%4)*1024}", ("hst", t)), k.mark(("hst", t))), 2)
    end = {t: max(n for n, x in enumerate(seq) if x[0] == t) for t in range(7)}
    for t in range(6): epi(t, end[t] + 3)
    if layer == 0 and P.h_touch0 == "g": fixed[xend + 1].append((5, lambda: k.touch(T, "h", ["s_mov_b32 s32, s54"])))
    ff = Flex(); ff.dep(("hst", 3))
    if layer == 0:
        tx = [lambda: k.touch(T, "p", [f"s_add_u32 s32, s55, {WS_X[1]}"]), lambda: k.touch(T + 1, "s", [f"s_add_u32 s32, s56, {WS_ST[1]}"])]
        if P.x2_touch == "h3": ff.add(tx[0], 6); ff.add(tx[1], 4)
        elif isinstance(P.x2_touch, int): fixed[P.x2_touch].append((5, tx[0])); fixed[P.x2_touch + 1].append((4, tx[1]))
        if "g" in str(P.touch1):
            for f in touch_next(k, T + 2)[:2]: ff.skip(1); ff.add(f, 6)
    ff.skip(P.gu_flag_delay)
    ff.add(lambda: (k.wait(vm=[("hst", 3)]), k.flag(1)), 3)
    def hpoll():
        k.wait(vm=["touch"] if "touch" in k.seen else None)
        k.poll_addr(T, 8)
        k.e(f"s_lshl_b32 s32, s{sB}, 7", f"s_lshl_b32 s33, s{sW}, 5", "s_add_u32 s32, s32, s33", f"s_add_u32 s{sPO}, s32, {fl(layer, FL_H)}")
        k.poll_issue(T, "ph1")
    if P.hpre:
        ff.add(hpoll, 4, P.hp_chk - 12)
        ff.add(lambda: (k.poll_check(T, "ph1", 1), setattr(k, "bg_held", True)), 3, P.hp_chk)
        for j in range(P.hpre): ff.add(lambda j=j: k.hload(j), 2, max(208 + j, int(P.hp_chk + 1 + j * P.hp_step)))
    else: ff.add(hpoll, 4, 228)
    k.wait(vm=[("gx", 0)], lg=[("wf", 0)])
    if P.tags: xchk(0)
    k.stamp("gu first")
    if k.stamping:
        for g in (48, 98, 131, 164, 197): fixed[g].append((0, lambda g=g: k.stamp(f"gu m{g}")))
    fixed[93].append((0, lambda: k.marks["aug"]))
    run_gaps(k, mains, fixed, [fv, ff, fx], P.gu_cap)
    print("gu left:", len(k.bg), len(fv), len(ff), len(fx), {n: g for n, g in k.marks.items() if isinstance(n, tuple) and n[0] == "hst"})
    k.stamp("gu gemm")
    for g, t in {132: 0, 165: 1, 198: 2}.items(): assert k.marks[("epi", t)] < g, "accumulator reused too early"
    epi(6, 0); drain([ff, fv, fx], k)
    k.e(f"v_mov_b32 v{D_PA}, v{T}")
    k.stamp("gu end")
P.x2_touch = 'h3'; P.dn_x2 = 2; P.hrot = 0; P.hpre = 0; P.hp_chk = 208; P.hp_step = 2.2; P.gu_flag_delay = 10; P.gu_xstep = 2.6; P.gu_bg_delay = 300
P.per_guA = [{"s2": 120, "s4": 120}, {"s2": 160, "s4": 160}]
P.per_guB = [{"s2": 90, "s4": 55}] * 2

def dn(k, layer):
    final = layer == 1
    NB = P.dn_lead; T = D_T
    groups = DN_GROUPS; seq = DN_SEQ; bload = k.hload
    early = Flex()
    def rb(): k.e(f"v_add_u32 v{D_RB}, s{sGL}, v{vL16}", f"v_add_u32 v{D_RB+1}, 0x10000, v{D_RB}", f"v_add_u32 v{D_RB+2}, 0x20000, v{D_RB}")
    if P.hpre:
        for i in range(P.hpre, NB): bload(i)
        rb()
        class Rec:
            def e(self, *t):
                if any("vcc" in x or "s32" in x for x in t): early.add(lambda: k.e(*t), len(t))
                else:
                    for x in t: early.add(lambda x=x: k.e(x))
        red_setup(Rec(), 3, 1)
        early.add(lambda: (k.wait(vm=[("hst", 6)]), k.flag(2), k.poll_issue(D_PA, "ph2"), k.e(f"s_add_u32 s{sFO}, s89, {FL_X2 - FL_O}")), 5, P.dn_fgap)
    else:
        k.poll_check(D_PA, "ph1", 1)
        k.stamp("dn early")
        k.bg_held = True
        for i in range(P.dn_pre): bload(i)
        red_setup(k, 3, 1); rb()
        k.wait(vm=[("hst", 6)]); k.flag(2)
        k.poll_issue(D_PA, "ph2")
        for i in range(P.dn_pre, NB): bload(i)
        k.e(f"s_add_u32 s{sFO}, s89, {FL_X2 - FL_O}")
    k.per = dict(P.per_dn0); k.bg_held = False
    lds = [(i, nn) for i, (g, e) in enumerate(seq) if 8 <= e < 24 for nn in range(2)]
    slot_of = {x: n for n, x in enumerate(lds)}
    NWF = 6
    def wread(n):
        i, nn = lds[n]; j = 2 * (seq[i][1] - 8) + nn; b = 15 + (j >> 2)
        ad = (b % 10) * 16384 + (j & 3) * 1024
        if seq[i][0] == 0: k.wait(vm=[("gw", b)])
        k.ds(f"ds_read_b128 {vr(D_WF+4*(n%NWF),4)}, v{D_RB + (ad>>16)} offset:{ad & 0xffff}", ("wf", n))
    def wfrag(i, nn):
        e = seq[i][1]
        if e < 8: return ar(192 + 8*e + 4*nn, 4)
        if e >= 24: return vr(D_WV + 8*(e - 24) + 4*nn, 4)
        return vr(D_WF + 4*(slot_of[(i, nn)] % NWF), 4)
    mains = []; fixed = {}
    NT = P.dn_tail
    assert NT <= 4
    order = [(i, nn) for i in range(56 - NT) for nn in range(2)] + [(i, nn) for nn in range(2) for i in range(56 - NT, 56)]
    for pos, (i, nn) in enumerate(order):
        g, e = seq[i]
        if True:
            acc = D_ACC + 32 * g + 16 * nn
            mains.append(lambda i=i, nn=nn, acc=acc, e=e: k.e(f"{MF32} {vr(acc,16)}, {wfrag(i,nn)}, {vr(D_BF+4*(i%NB),4)}, {'0' if e == 0 else vr(acc,16)}"))
            gp = len(mains) - 1; fl_ = fixed.setdefault(gp, [])
            nx = order[pos + 1] if pos + 1 < len(order) else None
            vmn = [("b", nx[0])] if (nx and nx[1] == 0) else None
            lgn = [("wf", slot_of[nx])] if nx in slot_of else None
            if nx == (24, 0): vmn = vmn + ["dnv"]
            fl_.append((0, lambda vmn=vmn, lgn=lgn: k.wait(vm=vmn, lg=lgn)))
            ah = (i + 2, nn)
            if ah in slot_of: fl_.append((1, lambda n=slot_of[ah]: wread(n)))
    nxt = NB; pend = 0
    for i in range(len(seq)):
        fl_ = fixed[2*i + 1]
        if i == P.dn_late: fl_.append((2, lambda: (k.poll_check(D_PA, "ph2", 2), k.stamp("dn late"), k.mark("late"))))
        n = 0
        while nxt < len(seq) and nxt <= i + NB and n < 2 and (nxt < 16 or i >= P.dn_late):
            fl_.append((1, lambda j=nxt: bload(j))); nxt += 1; n += 1
        if nxt == len(seq) and not pend: pend = 2*i + 2
    fixed[20].append((1, lambda: k.e("s_barrier")))
    for mm in range(2):
        fixed[40 + 4*mm].append((2, lambda mm=mm: (k.e(f"s_add_u32 s32, s55, {BX1[layer] + mm*32768}"),
                                                   k.vm(f"buffer_load_dwordx4 {vr(RES+4*mm,4)}, v{vL16}, {SRD_WS}, s32 offen sc1", "res"))))
    fw = Flex(); fs = Flex()
    for q, f in enumerate(red_writes(k, D_ACC, 0, 0, 1)): fw.add(f, 1, 58 + 2*q)
    fw.add(lambda: (k.wait(lg=[("rw", 0)]), k.e("s_barrier")), 2, 76)
    for f in red_reads(k, 0, T, 0): fw.add(f, 2)
    fw.add(lambda: k.wait(vm=["res"]))
    red_finish(k, fw, 0, groups[0], T, WS_X[1], WS_ST[1], final, False)
    if not final:
        fw.add(lambda: k.vm(f"buffer_store_dwordx4 {vr(RES+4,4)}, v{vL16}, {SRD_WS}, s72 offen sc1", "hxs"))
        fw.add(lambda: k.vm(f"buffer_store_dword v{T+32}, v{R_ST}, {SRD_WS}, s73 offen sc1", "hxs"))
        fw.skip(P.dn_flag_delay); fw.add(lambda: (k.wait(vm=[("xst", 0)]), k.flag(1)), 3)
        if P.x2_touch == "dn":
            fixed[P.dn_x2].append((5, lambda: k.touch(226, "p", [f"s_add_u32 s32, s55, {WS_X[1]}"])))
            fixed[P.dn_x2 + 1].append((4, lambda: k.touch(227, "s", [f"s_add_u32 s32, s56, {WS_ST[1]}"])))
            fs.add(lambda: k.wait(vm=["touch"]), 1, P.dn_x2 + 2)
        if "d" in str(P.touch1):
            for q, f in enumerate(touch_next(k, 28)): fixed[P.dn_touch + 2*q].append((5, f))
        fs.dep("late")
        for f in a11_bases(k) + a1_setup(k, 1): fs.add(f)
        fs.add(lambda: (k.poll_addr(A_PX, 32), k.e(f"s_lshl_b32 s32, s{sB}, 7", f"s_add_u32 s{sPO}, s32, {fl(0, FL_X2)}")), 4)
    wtail = red_writes(k, D_ACC + 32, 1, 2*16384, 1)
    if NT:
        for q in range(min(4, NT)): fixed[min(111, 112 - NT + 1 + q)].append((4, wtail.pop(0)))
    k.wait(vm=["dna", ("b", 0)])
    k.stamp("dn first")
    if k.stamping:
        fixed[55].append((0, lambda: k.stamp("dn p1")))
        for g in range(7, 111, 8): fixed[g].append((0, lambda g=g: k.stamp(f"find {g}")))
    run_gaps(k, mains, fixed, [early, fw, fs], 6)
    print("dn left:", len(k.bg), len(fw), len(fs), "last h load at gap", pend)
    k.stamp("dn gemm")
    assert not fs.items
    ws = wtail
    if not final: ws.insert(len(ws) - 4, lambda: k.poll_issue(A_PX, "px0"))
    merge(k, fw, ws)
    k.wait(lg=[("rw", 1)]); k.e("s_barrier")
    k.stamp("dn red")
    for f in red_reads(k, 1, T, 2*16384): f()
    if not final:
        k.bg_held = True
        k.poll_check(A_PX, "px0", 1)
        k.wait(vm=["hxs"]); k.flag(1, 91, "sc1")
        a11_early(k)
    f1 = Flex(); red_finish(k, f1, 1, groups[1], T, WS_X[1], WS_ST[1], final, True); drain([f1], k)
    k.stamp("dn end")
P.dn_tail = 0; P.dn_touch = 88; P.dn_flag_delay = 4; P.dn_pre = 6; P.dn_late = 7; P.dn_fgap = 6
P.dn_wow = 6; P.per_dn = {"s4": 110, "s2": 130}; P.per_dn0 = {"s4": 60, "s2": 60}

def build(stamps=False, only=None):
    k = F(); k.stamping = stamps; k.only = only; k.st = P.dst; k.rt = P.rt
    name = NAME + "_kernel"
    k.e(".p2align 8", f".globl {name}", f".type {name},@function"); k.label(name)
    if stamps: k.e("s_memrealtime s[92:93]", "s_memtime s[94:95]")
    k.e("s_cmp_ge_u32 s2, 256", "s_cbranch_scc1 L_end")
    k.e("s_load_dwordx16 s[64:79], s[0:1], 0", "s_load_dwordx4 s[80:83], s[0:1], 64", "s_memrealtime s[96:97]")
    k.e("s_getpc_b64 s[100:101]")
    k.e("L_pc: ;np")
    k.e("s_mov_b32 s24, s100", "s_mov_b32 s25, s101", "s_mov_b32 s26, L_end-L_pc", "s_mov_b32 s27, 0x20000",
        "v_and_b32 v1, 63, v0", "v_lshrrev_b32 v2, 6, v0", "s_lshr_b32 s33, s2, 3", "s_mul_i32 s32, s33, 43", "s_lshr_b32 s32, s32, 8",
        "s_mul_i32 s32, s32, 6", "s_sub_u32 s32, s33, s32", "s_lshl_b32 s32, s32, 13", "v_lshlrev_b32 v3, 11, v2", "v_lshl_add_u32 v3, v1, 7, v3",
        f"v_mov_b32 v4, {OOB:#x}", "v_cmp_gt_u32 vcc, 16, v1", f"v_readfirstlane_b32 s{sW}, v2", "v_cndmask_b32 v3, v4, v3, vcc")
    if P.code0: k.vm(f"buffer_load_dword v175, v3, {SRD_PK}, s32 offen", "code")
    k.e("s_and_b32 s32, s2, 7", f"s_and_b32 s{sM}, s33, 15", "s_lshr_b32 s33, s33, 4", "s_lshl_b32 s32, s32, 1", f"s_add_u32 s{sC}, s32, s33")
    k.e(f"s_lshr_b32 s33, s{sM}, 3", f"s_lshl_b32 s{sB}, s{sC}, 1", f"s_add_u32 s{sB}, s{sB}, s33", f"s_and_b32 s{sCS}, s{sM}, 7")
    k.e("v_lshlrev_b32 v2, 4, v1")
    a10_lanes(k)
    k.e("s_waitcnt lgkmcnt(0)")
    srd(k, 12, 64, 2048 * 1024); srd(k, 16, 66, 512 * 3072)
    k.e(f"s_or_b32 s{sTAG}, s96, 1")
    if stamps:
        k.stamps += ["rt0", "start"]; k.e("v_writelane_b32 v0, s92, 0", f"v_writelane_b32 v0, s{92 if P.rt else 94}, 1")
    k.stamp("s kernarg")
    pack_issue(k)
    k.stamp("s pkissue")
    run(a10_x(k, 0) + a10_w(k, 0))
    srd(k, 28, 80, 256)
    k.e("v_cmp_eq_u32 vcc, 0, v1", f"v_mov_b32 v{vFA}, {OOB:#x}", f"s_or_b32 s32, s2, s{sW}", f"v_cndmask_b32_e64 v{vFA}, v{vFA}, 0, vcc",
        "s_cmp_eq_u32 s32, 0", f"s_cselect_b32 s32, 0, {OOB>>1:#x}", f"v_mov_b32 v170, s{sTAG}")
    k.vm(f"buffer_store_dword v170, v{vFA}, {SRD_DBG}, s32 offen sc1", "tagst")
    srd(k, 8, 82, WS_SIZE); srd(k, 20, 78, 2048 * 1024)
    for f in a1_setup(k, 0): f()
    o_bases(k, 0)
    a10_lanes2(k)
    k.e(f"v_mov_b32 v60, {OOB:#x}", "v_cmp_gt_u32 vcc, 8, v1", "v_mov_b32 v176, 0", "v_mov_b32 v177, 0", "v_mov_b32 v178, 0", "v_mov_b32 v179, 0",
        f"v_cndmask_b32 v173, v60, v{vL16}, vcc", "v_cmp_gt_u32 vcc, 16, v1", f"s_getreg_b32 s{sXCC}, hwreg(HW_REG_XCC_ID, 0, 4)",
        f"s_lshl_b32 s32, s{sC}, 4", f"v_cndmask_b32 v172, v60, v{vL16}, vcc")
    k.e(f"s_add_u32 s32, s32, s{sM}", "s_lshl_b32 s32, s32, 4",
        f"s_cmp_eq_u32 s{sW}, 0", f"s_cselect_b32 s32, s32, {OOB>>1:#x}", f"v_add_u32 v171, s32, v{vFA}", f"s_mov_b32 s{sBUD}, 400000",
        f"s_mov_b32 s75, {WS_ARR}", f"s_lshl_b32 s77, s{sC}, 8", "s_add_u32 s77, s77, s75")
    red_bases(k)
    k.e(f"s_lshl_b32 s{sGL}, s{sW}, 12", f"s_mul_i32 s{sGS}, s{sM}, {PGU_SLICE}", f"s_add_u32 s{sGS}, s{sGS}, s{sGL}", f"s_add_u32 s{sGS}, s{sGS}, {WS_PGU}")
    k.e(f"s_mul_i32 s32, s{sCS}, {224*KB}", f"s_mul_i32 s33, s{sW}, {56*KB}", "s_add_u32 s32, s32, s33", f"s_add_u32 s{sDS}, s32, {WS_PDN}")
    k.e(f"s_lshl_b32 s32, s{sCS}, 16", f"s_add_u32 s32, s32, s{sGL}", f"s_add_u32 s88, s32, {WS_PWO}")
    wo_bases(k)
    k.stamp("s setup")
    run(a10_w(k, 1))
    k.stamp("s w01")
    def mid2():
        if P.k_first > 3: run(a10_w(k, 3))
        k.e("s_lshl_b32 s32, s2, 7")
        k.vm(f"buffer_store_dwordx4 v[176:179], v173, {SRD_WS}, s32 offen sc1", "zero")
        k.e("s_lshl_b32 s32, s2, 8", f"s_add_u32 s32, s32, {WS_HXF}")
        k.vm(f"buffer_store_dwordx4 v[176:179], v172, {SRD_WS}, s32 offen sc1", "zero")
    pack_process(k, lambda: run(a10_x(k, 1) + a10_w(k, 2)), mid2)
    k.vm(f"buffer_load_dword v170, v{vFA}, {SRD_DBG}, 0 offen sc1", "tag")
    k.stamp("s pkdone")
    a10_loop(k, P.k_first)
    a10_tail(k)
    wo(k, 0); gu(k, 0); dn(k, 0)
    if not P.half:
        k.marks = {m: g for m, g in k.marks.items() if False}
        k.seen = {t for t in k.seen if t in k.vmq or t in k.lgq or t in ("dna", "st0", ("x", 2), ("x", 3))}
        a11_main(k)
        wo(k, 1)
        k.marks = {m: g for m, g in k.marks.items() if m == "wobar" or m[0] == "bar"}
        gu(k, 1); dn(k, 1)
    if P.verbose: print([(t, tag, f) for t, tag, f in k.bg_log if f])
    if stamps:
        k.e("s_waitcnt vmcnt(0)"); k.stamp("drained"); k.stamp("rt1", True)
        k.e("s_lshl_b32 s32, s2, 10", "s_lshl_b32 s33, s3, 8", "s_add_u32 s32, s32, s33",
            f"s_add_u32 s32, s32, {WS_STAMP}", "v_lshlrev_b32 v8, 2, v1", f"buffer_store_dword v0, v8, {SRD_WS}, s32 offen")
        if P.echo:
            a, b = P.echo
            n = len(k.stamps)
            k.e(f"v_readlane_b32 s32, v0, {a}", f"v_readlane_b32 s33, v0, {b if b >= 0 else n + b}", f"v_readlane_b32 s34, v0, {n-1}", "s_nop 3",
                "s_sub_u32 s33, s33, s32", "s_min_u32 s33, s33, 20000")
            k.label("L_echo")
            k.e("s_memrealtime s[36:37]", "s_waitcnt lgkmcnt(0)", "s_sub_u32 s36, s36, s34", "s_cmp_lt_u32 s36, s33", "s_cbranch_scc1 L_echo")
        if P.dbg:
            n = len(k.stamps)
            k.e("v_readlane_b32 s32, v0, 0", f"v_readlane_b32 s33, v0, {n-1}", "s_not_b32 s34, s32", "v_mov_b32 v4, s33", "v_mov_b32 v5, s34")
            k.e(f"buffer_atomic_umax v4, v{vFA}, {SRD_DBG}, 0 offen offset:4", f"buffer_atomic_umax v5, v{vFA}, {SRD_DBG}, 0 offen offset:8")
            k.e(f"s_cmp_eq_u32 s2, {P.dbg - 1}", f"s_cselect_b32 s35, 0, {OOB>>1:#x}", f"s_cmp_eq_u32 s{sW}, 0", f"s_cselect_b32 s35, s35, {OOB>>1:#x}")
            for i, wd in zip(range(2, n - 1), (3, 5, 6, 7, 9, 10, 11, 13, 14, 15)):
                k.e(f"v_readlane_b32 s33, v0, {i}", "s_sub_u32 s33, s33, s32", "v_mov_b32 v4, s33", f"buffer_store_dword v4, v{vFA}, {SRD_DBG}, s35 offen offset:{4*wd}")
    k.e("s_endpgm")
    k.flush_spins()
    k.label("L_end"); k.e("s_endpgm")
    src = open("cdna_kernels/%s.s.ref" % NAME).read().splitlines()
    out = [l for l in src if l.startswith(";") and "@launch" not in l]
    out.append(f"; @launch grid=(256,1,1) block=(256,1,1) lds={LDS_TOTAL}")
    out += ['.amdgcn_target "amdgcn-amd-amdhsa--gfx950"', ".text"]
    s = "\n".join(out) + "\n" + k.text(verbose=True) + '.section .rodata,"a"\n.p2align 6\n' + kd(name)
    from verify import verify
    assert not verify(s), "a register is used while a load into it is in flight"
    if P.align:
        from align import align
        s = align(s)
    return s, k.stamps
P.x_nobar = 0; P.x_noepi = 0; P.rt = 1; P.dbg = 0; P.h_touch0 = ''; P.outm = ''; P.h1_plain = 1; P.tags = 0; P.echo = None; P.wo_setup_first = 0; P.gu_pa_late = 0; P.gu_bar_first = 0; P.flagbr = 0; P.half = 0; P.tlb = 1; P.code0 = 1; P.verbose = 0; P.align = 1; P.gu_cap = 5; P.gu_nw = 5; P.k_touch = 15; P.k_gb = 13; P.k_chk = 16

if __name__ == "__main__":
    path = sys.argv[1] if len(sys.argv) > 1 else "cdna_kernels/%s.s" % NAME
    opts = sys.argv[2:]
    only = None
    for o in opts:
        if o.startswith("only="): only = [x for x in o[5:].split(",") if x]
        if o.startswith("P."):
            n, v = o[2:].split("="); setattr(P, n, eval(v))
    s, st = build(stamps="st" in opts, only=only)
    open(path, "w").write(s)
    if "st" in opts: json.dump([st], open(path + ".json", "w"))
```

```python
import sys, json
from common import *

MF16 = "v_mfma_f32_16x16x32_bf16"
MF16S = "v_mfma_f32_16x16x16_bf16"
MF32 = "v_mfma_f32_32x32x16_bf16"
vL16, vFV, vFA, vP = 2, 8, 9, 10
CSV, CSQ, CSK, RES = 11, 12, 16, 20
OOB = 0x80000000
FL_O, FL_X1, FL_H, FL_X2 = 0, 4096, 8192, 12288
FL_HX = 16384 + 12288
def fl(layer, off): return WS_FLAGS + 16384 * layer + off
sROT, sBUD, sGL, sGS, sDS = 84, 98, 60, 61, 85
sT0, sT1, sPO, sFO = 32, 33, 86, 87
sML, sMS = 68, 69
WS_HXF = WS_O0 - 0x10000 if False else WS_END
WS_ARR = WS_HXF + 0x10000
sTAG, sXCC = 91, 76
WS_STAMP = 0x2000000
L_SA0, L_SA1, L_XH0, L_CS = 80896, 97280, 81920, 79872
def e_of(kk):
    p, tl = divmod(kk, 7)
    return 4 * p + tl if tl < 4 else 16 + 3 * p + (tl - 4)
KK_OF = {e_of(kk): kk for kk in range(28)}

class P:
    a1_bg_start, a1_bg_step = 30, 6
    gu_lead = 7
    gu_bg_start, gu_bg_step = 50, 2.6
    dn_lead = 12
    bgm = ""
    sleep = 0
    drop = ()
    codepf = 0
    ld = "sc1"
    dst = "sc1"
    safe = False
    plain = True
    notouch = ()

BO, BX1, BS1, BH = [WS_O[0]] * 2, [WS_X[0]] * 2, [WS_ST[0]] * 2, [WS_H[0]] * 2
def o_line(layer):
    return [f"s_lshl_b32 s32, s{sB}, 16", f"s_lshl_b32 s33, s{sCS}, 2", f"s_add_u32 s33, s33, s{sW}", "s_lshl_b32 s33, s33, 10",
            "s_add_u32 s32, s32, s33", f"s_add_u32 s32, s32, {BO[layer]}"]
def touch_next(k, t):
    return [lambda: k.touch(t, "p", o_line(1)), lambda: k.touch(t + 1, "q", [f"s_add_u32 s32, s64, {BX1[1]}"]),
            lambda: k.touch(t + 2, "t", [f"s_add_u32 s32, s65, {BS1[1]}"])]
def gu_tile(d):
    return [f"s_lshl_b32 {d}, s{sC}, 1", f"s_and_b32 s33, s{sW}, 1", f"s_add_u32 {d}, {d}, s33", f"s_lshl_b32 {d}, {d}, 1", f"s_lshr_b32 s33, s{sW}, 1", f"s_add_u32 {d}, {d}, s33"]
def h_base(d, layer):
    return gu_tile(d) + [f"s_mul_i32 {d}, {d}, 112", f"s_mul_i32 s33, s{sM}, 7",
            f"s_add_u32 {d}, {d}, s33", f"s_lshl_b32 {d}, {d}, 10", f"s_add_u32 {d}, {d}, {BH[layer]}"]

class F(K):
    def __init__(self):
        super().__init__(); self.spins = []; self.nspin = 0; self.st = ""; self.npf = 0
    def poll_issue(self, va, tag): self.vm(f"buffer_load_dword v{vP}, v{va}, {SRD_WS}, s{sPO} offen sc1", tag)
    def poll_addr(self, va, nl, sh=2):
        self.e(f"v_cmp_gt_u32 vcc, {nl}, v1", f"v_lshlrev_b32 v{va}, {sh}, v1", f"v_mov_b32 v{vP}, {OOB:#x}", f"v_cndmask_b32 v{va}, v{vP}, v{va}, vcc")
        self.nl = nl
    def poll_check(self, va, tag, thr):
        n = self.nspin; self.nspin += 1
        self.stamp(f"poll<{tag}")
        self.wait(vm=[tag])
        self.stamp(f"poll={tag}")
        msk = f"s_and_b32 s99, vcc_lo, {(1 << self.nl) - 1:#x}"
        self.e(f"v_cmp_gt_u32 vcc, {thr}, v{vP}", msk, f"s_cbranch_scc1 L_spin{n} ;np", f"L_back{n}: ;np")
        self.stamp(f"poll>{tag}")
        self.spins += [f"L_spin{n}:", f"s_sub_u32 s{sBUD}, s{sBUD}, 1", f"s_cbranch_scc1 L_give{n}"] + ([f"s_sleep {P.sleep}"] if P.sleep else []) + [
                       f"buffer_load_dword v{vP}, v{va}, {SRD_WS}, s{sPO} offen sc1", "s_waitcnt vmcnt(0)",
                       f"v_cmp_gt_u32 vcc, {thr}, v{vP}", msk, f"s_cbranch_scc1 L_spin{n}", f"s_branch L_back{n}",
                       f"L_give{n}:", f"s_mov_b32 s{sBUD}, 0", f"s_branch L_back{n}"]
    def flag(self, val, soff=sFO, st=None):
        self.e(f"v_mov_b32 v{vFV}, {val}")
        if st is not None:
            self.vm(f"buffer_store_dword v{vFV}, v{vFA}, {SRD_WS}, s{soff} offen {st}", "flag"); return
        if P.flagbr:
            self.dstore(f"buffer_store_dword v{vFV}, v{vFA}, {SRD_WS}, s{soff} offen", "flag", True); return
        self.e(f"s_or_b32 s99, s{soff}, s{sML}")
        self.vm(f"buffer_store_dword v{vFV}, v{vFA}, {SRD_WS}, s99 offen", "flag")
        self.e(f"s_or_b32 s99, s{soff}, s{sMS}")
        self.vm(f"buffer_store_dword v{vFV}, v{vFA}, {SRD_WS}, s99 offen sc1", "flag")
    def dstore(self, text, tag, always=False):
        if not P.plain and not always:
            self.vm(text + " sc1", tag); return
        n = self.nspin; self.nspin += 1
        self.e(f"s_cmp_lg_u32 s{sML}, 0", f"s_cbranch_scc1 L_alt{n} ;np")
        self.vm(text, tag)
        self.e(f"L_back{n}: ;np")
        self.spins += [f"L_alt{n}:", "s_nop 4", text + " sc1", f"s_branch L_back{n}"]
    def valid(self, test, reload):
        n = self.nspin; self.nspin += 1
        self.e(*test); self.e(f"s_cbranch_vccnz L_rl{n} ;np", f"L_back{n}: ;np")
        self.spins += [f"L_rl{n}:", f"s_sub_u32 s{sBUD}, s{sBUD}, 1", f"s_cbranch_scc1 L_give{n}"] + reload + ["s_waitcnt vmcnt(0)"] + test + \
                      [f"s_cbranch_vccnz L_rl{n}", f"s_branch L_back{n}", f"L_give{n}:", f"s_mov_b32 s{sBUD}, 0", f"s_branch L_back{n}"]
    def touch(self, tmp, kind, base_expr, masked=True):
        if not P.plain or kind in P.notouch: return
        nl = {"p": 16, "q": 16, "s": 2, "t": 2, "h": 56}[kind]
        self.e(f"v_cmp_gt_u32 vcc, {nl}, v1")
        if kind in "pq": self.e(f"v_lshrrev_b32 v{tmp}, 3, v1", f"v_lshlrev_b32 v{tmp}, {15 if kind == 'p' else 13}, v{tmp}", f"v_and_b32 v{vFV}, 7, v1", f"v_lshl_add_u32 v{tmp}, v{vFV}, 7, v{tmp}")
        else: self.e(f"v_lshlrev_b32 v{tmp}, {11 if kind == 's' else 7}, v1")
        self.e(f"v_mov_b32 v{vFV}, {OOB:#x}", *base_expr)
        self.e(f"v_cndmask_b32 v{tmp}, v{vFV}, v{tmp}, vcc")
        if masked: self.e(f"s_or_b32 s32, s32, s{sML}")
        self.vm(f"buffer_load_dword v{tmp}, v{tmp}, {SRD_WS}, s32 offen", "touch")
    def vm(self, text, tag=None):
        kind = tag[0] if isinstance(tag, tuple) else tag
        if kind in P.drop:
            self.seen.add(tag); return
        super().vm(text, tag)
    def codepf(self, tmpv, per=2048):
        if not P.codepf: return
        n = self.npf; self.npf += 1
        sh = (per // 64).bit_length() - 1
        self.e(f"L_pf{n}: ;np", f"s_mul_i32 s32, s{sW}, {per}", f"s_add_u32 s32, s32, L_pf{n}-L_pc", f"v_lshlrev_b32 v{tmpv}, {sh}, v1")
        raise NotImplementedError
    def flush_spins(self):
        for l in self.spins: self.e(l)
        self.spins = []

def batch(k, i):
    src = f"s_add_u32 s62, s{sGS}, {i*16384}" if i < 15 else f"s_add_u32 s62, s{sDS}, {(16 + 4*(i-15))*1024}"
    def f(q):
        k.set_m0(f"s_add_u32 m0, s{sGL}, {(i % 10)*16384}")
        if i != 14: k.set_s(src)
        elif k.last.get(62) != f"s_cselect_b32 s62, {OOB>>1:#x}, s62":
            k.e(src, f"s_cmp_ge_u32 s{sW}, 2", f"s_cselect_b32 s62, {OOB>>1:#x}, s62")
        k.vm(f"buffer_load_dwordx4 v{vL16}, {SRD_WS}, s62 offen offset:{q*1024} {P.bgm} lds", ("gw", i))
    return [lambda q=q: f(q) for q in range(4)]

def bg_batches(k, bs, period, dep=lambda b: None):
    for b in bs:
        for f in batch(k, b): k.bg_add(f, period, ("gw", b), dep(b))
def bg_list(k, fns, period, tag, dep=None):
    for f in fns: k.bg_add(f, period, tag, dep)

def regloads(k, base_sgpr, off, dst, n, tag, tmp=63):
    fns = []
    for j in range(n):
        def f(j=j):
            k.set_s(f"s_add_u32 s{tmp}, s{base_sgpr}, {off + (j & ~3)*1024}")
            k.vm(f"buffer_load_dwordx4 {dst(j)}, v{vL16}, {SRD_WS}, s{tmp} offen offset:{(j%4)*1024} {P.bgm}", tag)
        fns.append(f)
    return fns
def wow(k):
    def f(i, q):
        k.set_m0(f"s_add_u32 m0, s{sGL}, {(6 + i)*16384}"); k.set_s(f"s_add_u32 s63, s88, {i*16384}")
        k.vm(f"buffer_load_dwordx4 v{vL16}, {SRD_WS}, s63 offen offset:{q*1024} lds", "wow")
    return [lambda i=i, q=q: f(i, q) for i in range(4) for q in range(4)]

def pack_issue(k):
    k.e("v_lshrrev_b32 v44, 3, v1", "v_and_b32 v43, 7, v1", "v_and_b32 v45, 2, v44", "v_lshlrev_b32 v45, 1, v45",
        "v_xor_b32 v43, v43, v45", "v_lshlrev_b32 v43, 4, v43", f"s_add_u32 s34, s49, {L_X + 4096}")
    k.e("s_cmp_ge_u32 s2, 112", "s_cbranch_scc1 L_pki_small")
    k.e("s_and_b32 s35, s2, 1", "s_bfe_u32 s36, s2, 0x10001", "s_lshr_b32 s37, s2, 2")
    k.e("s_cmp_eq_u32 s35, 0", "s_cselect_b32 s24, s72, s74", "s_cselect_b32 s25, s73, s75",
        f"s_mov_b32 s26, {512*3584:#x}", "s_mov_b32 s27, 0x20000")
    k.e("v_mul_u32_u24 v46, 3584, v44", "v_add_u32 v46, v46, v43")
    k.e("s_lshl_b32 s38, s36, 2", f"s_add_u32 s38, s38, s{sW}", f"s_mul_i32 s38, s38, {64*3584}",
        "s_lshl_b32 s39, s37, 7", "s_add_u32 s38, s38, s39")
    for i in range(8):
        k.e(f"s_add_u32 m0, s34, {(i>>2)*8192 + (i&3)*1024}", f"s_add_u32 s39, s38, {i*8*3584}", f"buffer_load_dwordx4 v46, {SRD_PK}, s39 offen lds")
    k.e("s_branch L_pki_done")
    k.label("L_pki_small")
    k.e("s_sub_u32 s35, s2, 112", "s_lshl_b32 s35, s35, 3", f"s_lshl_b32 s36, s{sW}, 1", "s_add_u32 s35, s35, s36")
    k.e("s_cmp_lt_u32 s35, 896", "s_cselect_b32 s24, s76, s68", "s_cselect_b32 s25, s77, s69", f"s_mov_b32 s26, {512*1024:#x}",
        f"s_cselect_b32 s26, {1792*1024:#x}, s26", "s_mov_b32 s27, 0x20000", "s_cselect_b32 s37, 1, 0",
        "s_movk_i32 s38, 896", "s_cselect_b32 s38, 0, s38")
    k.e("s_cselect_b32 s39, 0, 1", "s_cselect_b32 s70, 14, 15", "s_movk_i32 s71, 0x4000", "s_cselect_b32 s71, 0x80, s71")
    k.e("s_sub_u32 s35, s35, s38", "s_lshr_b32 s35, s35, s39", "s_and_b32 s36, s35, 7", "s_lshr_b32 s35, s35, 3")
    k.e("v_lshl_add_u32 v46, v44, 10, v43", "s_lshl_b32 s38, s35, s70", "s_lshl_b32 s39, s36, 7", "s_add_u32 s38, s38, s39")
    for i in range(2):
        for h in range(2):
            k.e(f"s_add_u32 m0, s34, {(2*i+h)*1024}", f"s_add_u32 s39, s38, {h*8192}", f"buffer_load_dwordx4 v46, {SRD_PK}, s39 offen lds")
        if i == 0: k.e("s_add_u32 s38, s38, s71")
    k.label("L_pki_done")
    k.vmq.append("pk"); k.seen.add("pk")

PQ = [76, 80, 84, 88, 92, 96, 36, 40]
def pack_process(k, mid1, mid2):
    k.e("v_bfe_u32 v46, v1, 2, 2", "v_and_b32 v47, 3, v1", "v_bfe_u32 v48, v1, 4, 1", "v_lshrrev_b32 v49, 5, v1")
    k.e("v_and_b32 v50, 2, v46", "v_add_u32 v50, v50, v48", "v_lshlrev_b32 v50, 5, v50",
        "v_lshl_add_u32 v50, v46, 7, v50", "v_lshl_add_u32 v50, v47, 3, v50", "v_add_u32 v50, s34, v50")
    k.e("s_cmp_ge_u32 s2, 112", "s_cbranch_scc1 L_pk_small")
    q0 = list(k.vmq)
    k.e("v_lshl_add_u32 v56, v49, 10, v50", "v_xor_b32 v57, 64, v56")
    k.e("s_lshl_b32 s39, s37, 2", "v_add_u32 v58, s39, v48")
    k.e("s_lshl_b32 s70, s36, 2", f"s_add_u32 s70, s70, s{sW}", "s_lshl_b32 s70, s70, 2")
    k.e("v_and_b32 v66, 15, v1", "s_lshl_b32 s71, s35, 8", "v_lshl_add_u32 v66, v66, 4, s71")
    for p in range(2):
        T, fs, tl, st_, b, aug = 59, 60, 61, 62 + p, 64 + p, 68 + p
        k.e(f"v_add_u32 v{T}, {2*p}, v58", f"v_mul_u32_u24 v{fs}, 9363, v{T}", f"v_lshrrev_b32 v{fs}, 16, v{fs}",
            f"v_mul_u32_u24 v{tl}, 7, v{fs}", f"v_sub_u32 v{tl}, v{T}, v{tl}")
        k.e(f"v_cmp_gt_u32 vcc, 3, v{tl}", f"v_mul_u32_u24 v67, 33, v{tl}", f"v_mov_b32 v{st_}, 1", "v_mov_b32 v70, 3",
            f"v_cndmask_b32 v67, v67, v{tl}, vcc", f"v_cndmask_b32 v{st_}, v{st_}, v70, vcc")
        k.e(f"v_mul_u32_u24 v{fs}, 231, v{fs}", f"v_add_u32 v67, v67, v{fs}")
        k.e(f"v_lshl_add_u32 v70, v{st_}, 5, v67", "v_lshlrev_b32 v70, 10, v70", "v_add_u32 v70, v70, v66",
            "s_lshl_b32 s71, s36, 9", f"v_add_u32 v{aug}, s71, v70")
        k.e(f"v_mul_lo_u32 v70, v{st_}, s70", "v_add_u32 v67, v67, v70", "v_lshlrev_b32 v67, 10, v67",
            "v_add_u32 v67, v67, v66", f"v_lshl_add_u32 v{b}, v49, 9, v67", f"v_lshlrev_b32 v{st_}, 10, v{st_}")
    k.e("v_mov_b32 v71, 0x3f803f80", "v_mov_b32 v72, 0", "v_mov_b32 v73, 0", "v_cmp_gt_u32 vcc, 32, v1", "v_mov_b32 v46, 0", "v_mov_b32 v47, 0",
        "v_cndmask_b32 v68, v69, v68, vcc", f"s_lshl_b32 s72, s{sW}, 8", "s_add_u32 s72, s72, 0x10000", "v_lshl_add_u32 v74, v1, 2, s72",
        "v_lshlrev_b32 v75, 2, v1", "v_add_u32 v75, 0x10000, v75")
    k.e(f"s_mov_b32 s70, {WS_PGU}", "s_mov_b32 s71, s70", "s_mov_b32 s72, s70", "s_mov_b32 s73, s70", f"s_cmp_eq_u32 s{sW}, 0", f"s_cselect_b32 s74, s70, {OOB>>1:#x}")
    k.wait(vm="pk")
    for ks in range(4):
        for p in range(2):
            for j in range(2): k.ds(f"ds_read_b64_tr_b16 {vr(PQ[2*ks+p]+2*j,2)}, v{56+p} offset:{(ks>>1)*8192 + (ks&1)*2048 + j*512}", ("t", ks, p))
        if ks == 2: k.wait(lg=[("t", 0, 1)])
    mid1()
    for ks in range(4):
        for p in range(2):
            k.wait(lg=[("t", ks, p)])
            for d in range(4): k.e(f"v_dot2c_f32_bf16 v{72+p}, v{PQ[2*ks+p]+d}, v71")
    k.e("v_permlane32_swap_b32 v72, v73", "v_add_f32 v72, v72, v73")
    k.ds(f"ds_write_b32 v74, v72 offset:{L_CS - 65536}")
    k.wait(lg="all"); k.e("s_barrier")
    for w in range(4): k.ds(f"ds_read_b32 v{56+w}, v75 offset:{L_CS - 65536 + 256*w}")
    mid2()
    k.wait(lg="all")
    k.e("v_add_f32 v56, v56, v57", "v_add_f32 v58, v58, v59", "v_add_f32 v56, v56, v58")
    k.e("v_cvt_pk_bf16_f32 v45, v56, v46", "v_lshlrev_b32 v57, 16, v45", "v_sub_f32 v57, v56, v57", "v_cvt_pk_bf16_f32 v44, v56, v57")
    k.e("s_branch L_pk_done")
    k.label("L_pk_small")
    k.vmq = list(q0)
    k.e(f"v_mov_b32 v64, v{vL16}", f"v_add_u32 v65, 1024, v{vL16}", f"v_mov_b32 v68, v{vL16}", f"s_mov_b32 s72, {OOB>>1:#x}", "s_mov_b32 s73, s72", "s_mov_b32 s74, s72")
    k.e("s_cmp_eq_u32 s37, 0", "s_cbranch_scc1 L_pk_wo")
    k.e("s_mul_i32 s38, s35, 2341", "s_lshr_b32 s38, s38, 16", "s_mul_i32 s39, s38, 28", "s_sub_u32 s39, s35, s39",
        "s_mul_i32 s70, s39, 9363", "s_lshr_b32 s70, s70, 16", "s_mul_i32 s71, s70, 7", "s_sub_u32 s71, s39, s71")
    for u in range(2):
      k.e(f"s_sub_u32 s39, s70, s36" if P.hrot else "s_mov_b32 s39, s70", f"s_sub_u32 s39, s39, {u if P.hrot else 0}", "s_and_b32 s39, s39, 3",
        "s_lshl_b32 s32, s39, 2", "s_add_u32 s32, s32, s71", "s_mul_i32 s33, s39, 3", "s_add_u32 s33, s33, s71", "s_add_u32 s33, s33, 12",
        "s_cmp_lt_u32 s71, 4", "s_cselect_b32 s32, s32, s33", "s_mul_i32 s33, s38, 28", "s_add_u32 s32, s32, s33", f"s_lshl_b32 s{(35, 37)[u]}, s32, 11")
    k.e("v_lshl_add_u32 v56, v49, 9, v50", "v_xor_b32 v57, 64, v56", f"v_mov_b32 v62, {224*KB}", f"v_mov_b32 v63, {224*KB}")
    k.e(f"s_mul_i32 s36, s36, {224*KB}", f"s_add_u32 s36, s36, {WS_PDN}", "s_add_u32 s70, s36, s35", "s_add_u32 s71, s36, s37")
    k.wait(vm="pk")
    for i in range(2):
        for nn in range(2):
            for j in range(2): k.ds(f"ds_read_b64_tr_b16 {vr(PQ[2*i+nn]+2*j,2)}, v{56+nn} offset:{i*2048 + j*1024}", "t")
    mid1(); mid2()
    k.wait(lg="all")
    k.e("s_branch L_pk_done")
    k.label("L_pk_wo")
    k.vmq = list(q0)
    k.e("v_and_b32 v56, 2, v46", "v_lshlrev_b32 v56, 1, v56", "v_xor_b32 v56, v56, v47", "v_lshlrev_b32 v56, 4, v56", "v_lshl_add_u32 v56, v46, 7, v56",
        "v_lshrrev_b32 v57, 4, v1", "v_lshl_add_u32 v56, v57, 10, v56", "v_add_u32 v56, s34, v56", "v_xor_b32 v57, 64, v56",
        "v_mov_b32 v62, 0x800", "v_mov_b32 v63, 0x800")
    k.e("s_lshl_b32 s36, s36, 16", "s_lshl_b32 s35, s35, 12", "s_add_u32 s70, s36, s35", f"s_add_u32 s70, s70, {WS_PWO}", "s_mov_b32 s71, s70")
    k.wait(vm="pk")
    for j in range(4):
        for jj in range(2): k.ds(f"ds_read_b64_tr_b16 {vr(PQ[j]+2*jj,2)}, v{56+(j>>1)} offset:{jj*512 + 8*(j&1)}", "t")
    mid1(); mid2()
    k.wait(lg="all")
    k.label("L_pk_done")

def pack_stores(k):
    ops = []
    for r in range(4):
        for p in range(2):
            ops.append(("v", lambda r=r, p=p: k.vm(f"buffer_store_dwordx4 {vr(PQ[2*r+p],4)}, v{64+p}, {SRD_WS}, s{70+r} offen sc1", "pks")))
            if r < 3: ops.append(("a", lambda p=p: k.e(f"v_add_u32 v{64+p}, v{64+p}, v{62+p}")))
    ops.append(("v", lambda: k.vm(f"buffer_store_dwordx4 v[44:47], v68, {SRD_WS}, s74 offen sc1", "pks")))
    return ops

A_XF, A_K, A_V, A_Q = 36, 76, 86, 96
A_STA, A_STB, A_OP, A_DX, A_PA, A_ST, A_ACC = 104, 106, 144, 152, 153, 140, 184
class R0: XE, XO, SA, SB, CI, ONE, M, ATT, TMP = 3, 4, 5, 6, 28, 32, 52, (116, 160), 60
class R1: XE, XO, SA, SB, CI, ONE, M, ATT, TMP = 116, 117, 118, 119, 252, 124, 120, (228, 160), 28
A_U, A_PX = 226, 115
A11_ORDER = [2, 3, 1, 0, "h"]
A11_POS = {2: 3, 3: 0, 1: 1, 0: 2, "h": 3}
sODD, sCUR0, sCUR1, sCEXP = 40, 42, 44, 46

def a1_setup(k, layer):
    R = (R0, R1)[layer]
    real = k; out = []
    class Rec:
        def e(self, *t):
            if any(x.startswith("s_cmp") for x in t): out.append(lambda t=t: real.e(*t))
            else: out.extend(lambda x=x: real.e(x) for x in t)
    k = Rec()
    t16, g, tt, tb = R.TMP, R.TMP + 1, R.TMP + 2, R.TMP + 3
    x, y, z = R.ONE, R.ONE + 1, R.ONE + 2
    sa = L_SA0 if layer == 0 else L_SA1
    k.e(f"v_and_b32 v{t16}, 15, v1", f"v_lshrrev_b32 v{g}, 4, v1", f"v_and_b32 v{tt}, 7, v1", f"v_bfe_u32 v{tb}, v1, 3, 1")
    k.e(f"v_lshlrev_b32 v{tb}, 13, v{tb}")
    if layer == 0: k.e(f"v_add_u32 v{tb}, {L_X}, v{tb}")
    if layer == 0:
        k.e(f"v_and_b32 v{x}, 6, v{tt}", f"v_xor_b32 v{x}, v{x}, v{g}", f"v_lshlrev_b32 v{x}, 4, v{x}",
            f"v_lshl_add_u32 v{x}, v{tt}, 7, v{x}", f"v_add_u32 v{R.XE}, v{x}, v{tb}", f"v_xor_b32 v{R.XO}, 64, v{R.XE}")
    else:
        k.e(f"v_lshl_add_u32 v{x}, v{g}, 7, v{tb}", f"v_lshl_add_u32 v{R.XE}, v{tt}, 4, v{x}", f"v_add_u32 v{R.XO}, 512, v{R.XE}")
    k.e(f"v_lshlrev_b32 v{R.SA}, 3, v{t16}", f"v_add_u32 v{R.SA}, {sa}, v{R.SA}",
        f"v_lshlrev_b32 v{R.SB}, 5, v{g}", f"v_add_u32 v{R.SB}, {sa}, v{R.SB}")
    k.e(f"v_and_b32 v{x}, 1, v1", f"v_cmp_eq_u32 s[{sODD}:{sODD+1}], 1, v{x}",
        f"v_lshl_add_u32 v{y}, v{g}, 2, v{x}", f"v_cmp_le_u32 s[{sCUR0}:{sCUR0+1}], v{y}, v{t16}",
        f"v_add_u32 v{y}, 2, v{y}", f"v_cmp_le_u32 s[{sCUR1}:{sCUR1+1}], v{y}, v{t16}")
    k.e(f"v_mov_b32 v{y}, 0xffff", f"v_mov_b32 v{z}, 0xffff0000", f"v_cndmask_b32 v{y}, v{y}, v{z}, s[{sODD}:{sODD+1}]", f"v_mov_b32 v{z}, 0")
    k.e(f"v_cndmask_b32 v{R.M+2}, v{z}, v{y}, s[{sCUR0}:{sCUR0+1}]", f"v_cndmask_b32 v{R.M}, v{y}, v{z}, s[{sCUR0}:{sCUR0+1}]",
        f"v_cndmask_b32 v{R.M+3}, v{z}, v{y}, s[{sCUR1}:{sCUR1+1}]", f"v_cndmask_b32 v{R.M+1}, v{y}, v{z}, s[{sCUR1}:{sCUR1+1}]")
    k.e(f"s_cmp_eq_u32 s{sB}, 0", f"s_cselect_b32 s70, {f2u(-1e38):#x}, 0", f"s_mov_b32 s{sCEXP}, {f2u(0.25*LOG2E):#x}")
    for i in range(4): k.e(f"v_mov_b32 v{R.CI+i}, s70", f"v_mov_b32 v{R.ONE+i}, 0x3f803f80")
    return out

def o_bases(k, layer):
    k.e(f"s_lshl_b32 s32, s{sB}, 16", f"s_lshl_b32 s33, s{sCS}, 2", f"s_add_u32 s33, s33, s{sW}", "s_lshl_b32 s53, s33, 10",
        "s_add_u32 s32, s32, s53", f"s_add_u32 s53, s32, {BO[layer]}", "s_add_u32 s54, s53, 32768",
        f"s_lshl_b32 s32, s{sB}, 5", "s_add_u32 s32, s32, s33", "s_lshl_b32 s32, s32, 2", f"s_add_u32 s89, s32, {fl(layer, FL_O)}")

def ln_finish(a, s, q):
    a(f"v_mul_f32 v{s}, {f2u(-1/512):#x}, v{s}"); a(f"v_mul_f32 v{q}, {f2u(1/512):#x}, v{q}")
    a(f"v_fma_f32 v{q}, -v{s}, v{s}, v{q}"); a(f"v_max_f32 v{q}, 0, v{q}"); a(f"v_add_f32 v{q}, {f2u(1e-5):#x}, v{q}")

A_QS = 68
def fix_reads(k, R, t, S):
    i = 0 if t == "h" else t + 1
    return [lambda: k.ds(f"ds_read_b64 {vr(S,2)}, v{R.SA} offset:{i*128}", ("sa", t)),
            lambda: k.ds(f"ds_read_b128 {vr(S+2,4)}, v{R.SB} offset:{i*128}", ("sa", t)),
            lambda: k.ds(f"ds_read_b128 {vr(S+6,4)}, v{R.SB} offset:{i*128+16}", ("sa", t))]
def fix(k, R, fx, t, acc, at, pk, S=A_STA, pre=False, nxt=()):
    a = lambda txt, c=1, at=0: fx.add(lambda: k.e(txt), c, at)
    i = 0 if t == "h" else t + 1
    if not pre:
        for n, f in enumerate(fix_reads(k, R, t, S)): fx.add(f, 1, at - P.a1_salead if n == 0 else 0)
    fx.add(lambda: k.wait(lg=[("sa", t)]), 1, at)
    for f in nxt: fx.add(f)
    for r0, cs, dst in ((acc[0], CSQ, None if t == "h" else A_Q + 2*t), (acc[1], CSK, A_K + 2*i)):
        if dst is None: continue
        isq = cs == CSQ
        if pk:
            for h in (0, 2): a(f"v_pk_fma_f32 {vr(r0+h,2)}, {vr(S,2)}, {vr(cs+h,2)}, {vr(r0+h,2)} op_sel_hi:[0,1,1]")
            if not isq:
                for h in (0, 2): a(f"v_pk_mul_f32 {vr(r0+h,2)}, {vr(S,2)}, {vr(r0+h,2)} op_sel:[1,0] op_sel_hi:[1,1]")
        else:
            for r in range(4): a(f"v_fmac_f32 v{r0+r}, v{S}, v{cs+r}")
            if not isq:
                for r in range(4): a(f"v_mul_f32 v{r0+r}, v{S+1}, v{r0+r}")
        if isq: a(f"v_mul_f32 v{A_QS+t}, s{sCEXP}, v{S+1}")
        for h in range(2): a(f"v_cvt_pk_bf16_f32 v{dst+h}, v{r0+2*h}, v{r0+2*h+1}")
    r0 = acc[2]
    for r in range(4): a(f"v_fmac_f32 v{r0+r}, v{S+2+2*r}, v{CSV}")
    for r in range(4): a(f"v_mul_f32 v{r0+r}, v{S+3+2*r}, v{r0+r}")
    for h in range(2): a(f"v_cvt_pk_bf16_f32 v{A_V+2*i+h}, v{r0+2*h}, v{r0+2*h+1}")
    fx.add(lambda: (k.mark(("fix", t)), k.stamp(f"t0 fix{t}")), 0)

def attn(k, R, fx, t, B):
    SC, SP, PP, O, SUM, T = B, B + 4, B + 8, B + 12, B + 16, B + 20
    a = lambda txt, c=1: fx.add(lambda: k.e(txt), c)
    q = vr(A_Q + 2*t, 2)
    fx.dep(("fix", t)); fx.dep(("fix", t - 1 if t else "h")); fx.skip(1)
    a(f"{MF16S} {vr(SC,4)}, {vr(A_K+2*(t+1),2)}, {q}, 0", 2)
    a(f"{MF16S} {vr(SP,4)}, {vr(A_K+2*t,2)}, {q}, {vr(R.CI,4) if t == 0 else '0'}", 2)
    fx.skip(3)
    for rr, cur in ((0, sCUR0), (1, sCUR1)):
        a(f"v_cndmask_b32 v{T+2}, v{SC+2*rr}, v{SC+2*rr+1}, s[{sODD}:{sODD+1}]")
        a(f"v_cndmask_b32 v{T+3}, v{SP+2*rr}, v{SP+2*rr+1}, s[{sODD}:{sODD+1}]")
        a(f"v_cndmask_b32 v{T+rr}, v{T+3}, v{T+2}, s[{cur}:{cur+1}]")
    a(f"v_max_f32 v{T+2}, v{T}, v{T+1}"); a(f"v_mov_b32 v{T+3}, v{T+2}"); fx.skip(1)
    a(f"v_permlane16_swap_b32 v{T+2}, v{T+3}", 2); a(f"v_max_f32 v{T+2}, v{T+2}, v{T+3}"); a(f"v_mov_b32 v{T+3}, v{T+2}"); fx.skip(1)
    a(f"v_permlane32_swap_b32 v{T+2}, v{T+3}", 2); a(f"v_max_f32 v{T+2}, v{T+2}, v{T+3}")
    a(f"v_mul_f32 v{T+2}, v{A_QS+t}, v{T+2}")
    for rr in range(2): a(f"v_fma_f32 v{T+rr}, v{T+rr}, v{A_QS+t}, -v{T+2}")
    for rr in range(2): a(f"v_exp_f32 v{T+rr}, v{T+rr}", 2)
    for rr in range(2): a(f"v_cvt_pk_bf16_f32 v{T+rr}, v{T+rr}, v{T+rr}")
    a(f"v_and_b32 v{PP}, v{T}, v{R.M}"); a(f"v_and_b32 v{PP+1}, v{T+1}, v{R.M+1}")
    a(f"v_and_b32 v{PP+2}, v{T}, v{R.M+2}"); a(f"v_and_b32 v{PP+3}, v{T+1}, v{R.M+3}")
    fx.skip(1)
    a(f"{MF16} {vr(SUM,4)}, {vr(R.ONE,4)}, {vr(PP,4)}, 0", 2)
    a(f"{MF16} {vr(O,4)}, {vr(A_V+2*t,4)}, {vr(PP,4)}, 0", 2)
    fx.skip(3)
    a(f"v_rcp_f32 v{T}, v{SUM}", 2); fx.skip(1)
    for r in range(4): a(f"v_mul_f32 v{O+r}, v{T}, v{O+r}")
    for h in range(2): a(f"v_cvt_pk_bf16_f32 v{A_OP+2*t+h}, v{O+2*h}, v{O+2*h+1}")
    fx.add(lambda: (k.mark(("attn", t)), k.stamp(f"t0 attn{t}")), 0)

def ostore(k, fx, pair):
    b = A_OP + 4 * pair
    fx.dep(("attn", 2*pair)); fx.dep(("attn", 2*pair + 1))
    fx.dep("po1" if pair == 0 else "blank")
    fx.skip(1)
    fx.add(lambda: k.e(f"v_permlane16_swap_b32 v{b}, v{b+2}"), 2); fx.add(lambda: k.e(f"v_permlane16_swap_b32 v{b+1}, v{b+3}"), 2)
    fx.add(lambda: (k.dstore(f"buffer_store_dwordx4 {vr(b,4)}, v{vL16}, {SRD_WS}, s{53+pair} offen", ("ost", pair)), k.mark(("ost", pair))))

Z_WD, Z_TR, Z_HE, Z_HO, Z_OE, Z_OO = 164, 165, 166, 167, 168, 169
Z_XF, Z_SUM, Z_GR, Z_SUMH, Z_GRH, Z_CV = 104, 240, 244, 248, 252, 100
P.k_first = 4; P.k_prep = 13
P.k_look, P.k_atom, P.k_bar, P.k_vgap, P.k_pst, P.k_pgap = 3, 6, 3, 3, 3, 0
NS0 = 6
def z_acc(t):
    if t == "h": return (None, A_ACC + 48, A_ACC + 52)
    return (A_ACC + 12*t, A_ACC + 12*t + 4, A_ACC + 12*t + 8)

def a10_lanes(k):
    k.e("v_lshrrev_b32 v60, 3, v1", "v_and_b32 v61, 6, v60", "v_and_b32 v62, 7, v1", "v_xor_b32 v61, v61, v62",
        "v_lshlrev_b32 v61, 4, v61", f"v_lshl_add_u32 v{A_DX}, v60, 10, v61")
    k.e("v_and_b32 v61, 2, v60", f"s_and_b32 s32, s{sW}, 1", "s_lshl_b32 s32, s32, 2", "v_or_b32 v61, s32, v61", "v_xor_b32 v61, v61, v62",
        "v_lshlrev_b32 v61, 4, v61", "v_mul_u32_u24 v60, 3072, v60", f"v_add_u32 v{Z_WD}, v60, v61")
    if P.rot == 0: k.e(f"s_add_u32 s{sROT}, s{sB}, s{sCS}")
    elif P.rot == 1: k.e(f"s_lshl_b32 s32, s{sB}, 1", f"s_bfe_u32 s33, s{sB}, 0x10002", "s_add_u32 s32, s32, s33", f"s_add_u32 s{sROT}, s32, s{sCS}")
    elif P.rot == 2: k.e(f"s_lshl_b32 s32, s{sB}, 1", f"s_add_u32 s{sROT}, s32, s{sCS}")
    elif P.rot == 3: k.e(f"s_mov_b32 s{sROT}, s{sCS}")
    elif P.rot == 4: k.e(f"s_lshl_b32 s32, s{sB}, 1", f"s_bfe_u32 s33, s{sB}, 0x10002", f"s_add_u32 s{sROT}, s32, s33")
    elif P.rot == 5: k.e(f"s_mov_b32 s{sROT}, 0")
    k.e(f"s_and_b32 s{sROT}, s{sROT}, 7")
    k.e(f"s_lshl_b32 s47, s{sB}, 3", "s_sub_u32 s48, s47, 2", "s_max_i32 s48, s48, 0", f"s_and_b32 s32, s{sW}, 1", "s_add_u32 s48, s48, s32",
        "s_lshl_b32 s48, s48, 13", f"s_lshl_b32 s32, s{sW}, 1", "s_add_u32 s47, s47, s32", "s_lshl_b32 s47, s47, 13")
    k.e(f"s_mul_i32 s51, s{sW}, {8*3072}", f"s_lshl_b32 s32, s{sCS}, 7", "s_add_u32 s51, s51, s32", f"s_mul_i32 s52, s{sW}, 3072")
    k.e(f"s_lshl_b32 s49, s{sW}, 14", f"s_and_b32 s32, s{sW}, 1", "s_lshl_b32 s50, s32, 13", f"s_lshr_b32 s32, s{sW}, 1",
        "s_lshl_b32 s33, s32, 10", "s_add_u32 s50, s50, s33", f"s_add_u32 s90, s32, s{sROT}")

def a10_x(k, c):
    S = lambda *t: [("s", lambda x=x: k.e(x)) for x in t]
    ld = lambda: k.vm(f"buffer_load_dwordx4 v{A_DX}, {SRD_X}, s33 offen lds", ("x", c))
    ops = S(f"s_add_u32 s33, s{sROT}, {c}", "s_and_b32 s33, s33, 7", "s_lshl_b32 s33, s33, 7", f"s_add_u32 m0, s49, {L_X + c*1024}", "s_add_u32 s33, s33, s47")
    ops += [("v", ld)] + S(f"s_add_u32 m0, s49, {L_X + 8192 + c*1024}", "s_add_u32 s33, s33, 8192") + [("v", ld)]
    if c % 2 == 0:
        ops += S(f"s_add_u32 s33, s90, {c}", "s_and_b32 s33, s33, 7", "s_lshl_b32 s33, s33, 7", f"s_add_u32 m0, s50, {L_XH0 + c*1024}", "s_add_u32 s33, s33, s48") + [("v", ld)]
    return ops

def a10_w(k, s):
    S = lambda *t: [("s", lambda x=x: k.e(x)) for x in t]
    if s & 1: ops = S(f"s_add_u32 m0, s52, {(s % NS0)*12288}", f"s_add_u32 s63, s63, {32*3072}")
    else: ops = S(f"s_add_u32 s63, s{sROT}, {s>>1}", "s_and_b32 s63, s63, 7", f"s_mul_i32 s63, s63, {64*3072}", f"s_add_u32 m0, s52, {(s % NS0)*12288}", "s_add_u32 s63, s63, s51")
    for p in range(3): ops.append(("v", lambda p=p: k.vm(f"buffer_load_dwordx4 v{Z_WD}, {SRD_QKV}, s63 offen offset:{p*1024} lds", ("w", s))))
    return ops
def run(ops):
    for _, f in ops: f()

def fill(k, mains, streams, cap=2):
    lastv = -99
    for g, m in enumerate(mains):
        m(); k.gap = g
        for a, o in streams:
            if a <= g and o and o[0][0] == "s": o.pop(0)[1](); break
        room = cap; nd = 0
        if g - lastv >= P.k_vgap and k.bg_step(): room -= 1; lastv = g
        while room > 0:
            pick = None
            for a, o in streams:
                if a > g or not o: continue
                t = o[0][0]
                if t == "d" and nd >= 1: continue
                if t == "v" and g - lastv < P.k_vgap: continue
                pick = o; break
            if pick is None: break
            t, f = pick.pop(0); f(); room -= 2 if t == "b" else 1
            if t == "d": nd += 1
            if t == "v": lastv = g
    for a, o in streams: run(o)

def a10_lanes2(k):
    k.e("v_lshrrev_b32 v60, 4, v1", "v_bfe_u32 v61, v1, 2, 2", "v_and_b32 v62, 1, v60", "v_lshlrev_b32 v62, 1, v62",
        "v_lshrrev_b32 v63, 1, v61", "v_or_b32 v62, v62, v63", f"v_xor_b32 v62, s{sW}, v62", "v_lshlrev_b32 v62, 5, v62",
        "v_mul_u32_u24 v60, 3072, v60", "v_lshl_add_u32 v60, v61, 7, v60", "v_add_u32 v60, v60, v62",
        "v_and_b32 v61, 3, v1", f"v_lshl_add_u32 v{Z_TR}, v61, 3, v60")
    k.e("v_and_b32 v60, 15, v1", "v_cmp_eq_u32 s[78:79], 0, v60")
    k.e(f"v_subrev_u32 v{Z_HE}, 16384, v{R0.XE}", f"v_subrev_u32 v{Z_HO}, 16384, v{R0.XO}",
        f"v_add_u32 v{Z_OE}, s49, v{R0.XE}", f"v_add_u32 v{Z_OO}, s49, v{R0.XO}")

def a10_loop(k, first):
    LA = P.k_look
    def sync(s, extra=()):
        k.wait(vm=[("w", s), ("x", s >> 1)] + list(extra)); k.e("s_barrier")
    nxt = [first]
    def dmas(upto):
        out = []
        while nxt[0] <= min(upto, 15):
            n = nxt[0]; nxt[0] += 1
            if n % 2 == 0: out += a10_x(k, n // 2)
            out += a10_w(k, n)
        return out
    def reads(s):
        fb = Z_XF + 24 * (s & 1); off = (s >> 1) * 1024; o = s & 1
        tr = lambda p, j: ("d", lambda: k.ds(f"ds_read_b64_tr_b16 {ar(12*s+4*p+2*j,2)}, v{Z_TR} offset:{(s%NS0)*12288 + p*1024 + j*512}", ("r", s, 0 if p == 0 else 1)))
        xr = lambda d, a, of, grp: ("d", lambda: k.ds(f"ds_read_b128 {vr(d,4)}, v{a} offset:{of}", ("r", s, grp)))
        out = [tr(0, 0), tr(0, 1)] + [xr(fb + 4*t, R0.XO if o else R0.XE, t*16384 + off, 0) for t in range(4)]
        out += [tr(1, 0), tr(1, 1), tr(2, 0), tr(2, 1), xr(fb + 16, Z_HO if o else Z_HE, off, 1), xr(fb + 20, Z_OO if o else Z_OE, off, 1)]
        return out
    l0_background(k)
    pst = pack_stores(k)
    sync(0)
    k.stamp("k0")
    run(reads(0)); run(dmas(LA - 1))
    for s in range(16):
        fb = Z_XF + 24 * (s & 1)
        c = lambda r: "0" if s == 0 else vr(r, 4)
        wq, wk, wv, one = ar(12*s, 4), ar(12*s + 4, 4), ar(12*s + 8, 4), vr(R0.ONE, 4)
        ms = [f"{MF16} {vr(z_acc(t)[0],4)}, {wq}, {vr(fb+4*t,4)}, {c(z_acc(t)[0])}" for t in range(4)]
        for t in [0, 1, 2, 3, "h"]:
            xf = vr(fb + (16 if t == "h" else 4*t), 4)
            ms.append(f"{MF16} {vr(z_acc(t)[1],4)}, {wk}, {xf}, {c(z_acc(t)[1])}")
            ms.append(f"{MF16} {vr(z_acc(t)[2],4)}, {xf}, {wv}, {c(z_acc(t)[2])}")
        ms += [f"{MF16} {vr(Z_CV,4)}, {wq}, {vr(fb+16,4)}, {c(Z_CV)}",
               f"{MF16} {vr(Z_SUM,4)}, {one}, {vr(fb+20,4)}, {c(Z_SUM)}", f"{MF16} {vr(Z_GR,4)}, {vr(fb+20,4)}, {vr(fb+20,4)}, {c(Z_GR)}",
               f"{MF16} {vr(Z_SUMH,4)}, {one}, {vr(fb+16,4)}, {c(Z_SUMH)}", f"{MF16} {vr(Z_GRH,4)}, {vr(fb+16,4)}, {vr(fb+16,4)}, {c(Z_GRH)}"]
        mains = [lambda m=m: k.e(m) for m in ms]
        k.wait(lg=[("r", s, 0)])
        streams = [(3, [("s", lambda: k.wait(lg=[("r", s, 1)]))] +
                       [("a", lambda d=d: k.e(f"v_cndmask_b32 v{fb+16+d}, v{fb+16+d}, v{R0.ONE}, s[78:79]")) for d in range(4)])]
        if s + 1 < 16:
            ex = ["pks"] if s + 1 == P.k_atom else []
            assert not ex or not pst, "arrival before the last pack store"
            assert P.k_prep > 14 - LA
            ops = [("b", lambda: sync(s + 1, ex))] + reads(s + 1)
            if ex: ops.append(("b", lambda: arrive(k)))
            streams.append((P.k_bar, ops))
            streams.append((0, dmas(s + LA)))
        n = 0; mine = []
        while pst and (n < P.k_pst or pst[0][0] == "a"):
            n += pst[0][0] == "v"; mine.append(pst.pop(0))
        streams.append((P.k_pgap, mine))
        if s == P.k_prep: streams.append((6, tail_prep(k)))
        if s == P.k_touch:
            streams.append((2, [("b", lambda: k.touch(157, "p", ["s_mov_b32 s32, s53"], False)),
                                ("b", lambda: k.touch(158, "q", [f"s_add_u32 s32, s64, {BX1[0]}"], False)),
                                ("b", lambda: k.touch(159, "h", h_base("s32", 0), False) if P.h_touch0 == "k" else None)]))
        if s == P.k_gb: streams.append((1, [("v", lambda t=t: k.vm(t, "gb")) for t in GB_LOADS]))
        if s == P.k_chk: streams.append((1, [("b", lambda: rendezvous(k))]))
        if s == 15 and P.k_chk < 16:
            streams.append((max(P.k_bar, 4), [("b", lambda: (k.e("s_barrier"), k.mark("xfree")))]))
        fill(k, mains, streams)
        if s in (3, 7, 11): k.stamp(f"k{s+1}")
    k.stamp("k16")
    if P.k_chk >= 16: rendezvous(k)

GB_LOADS = [f"buffer_load_dwordx4 {vr(36+4*j,4)}, v{vL16}, {SRD_WS}, s75 offen offset:{j*1024} sc1" for j in range(4)] + \
           [f"buffer_load_dword v{vP}, v172, {SRD_WS}, s77 offen offset:8 sc1"]
def arrive(k):
    k.wait(vm=["tag"])
    k.e(f"v_readfirstlane_b32 s{sTAG}, v170", f"s_cmp_eq_u32 s{sTAG}, 0", "s_cbranch_scc1 L_tag_spin ;np", "L_tag_ok: ;np")
    k.spins += ["L_tag_spin:", f"s_sub_u32 s{sBUD}, s{sBUD}, 1", "s_cbranch_scc1 L_tag_give", f"buffer_load_dword v170, v{vFA}, {SRD_DBG}, 0 offen sc1",
                "s_waitcnt vmcnt(0)", f"v_readfirstlane_b32 s{sTAG}, v170", f"s_cmp_eq_u32 s{sTAG}, 0", "s_cbranch_scc1 L_tag_spin", "s_branch L_tag_ok",
                "L_tag_give:", f"s_mov_b32 s{sBUD}, 0", "s_branch L_tag_ok"]
    k.e(f"v_mov_b32 v176, s{sTAG}", "v_not_b32 v177, v176", f"v_mov_b32 v178, s{sXCC}")
    k.vm(f"buffer_store_dwordx4 v[176:179], v171, {SRD_WS}, s75 offen sc1", "arr")

def rendezvous(k):
    chk = [f"s_not_b32 s32, s{sTAG}"]
    for j in range(4): chk += [f"v_xor_b32 v{36+4*j}, s{sTAG}, v{36+4*j}", f"v_xor_b32 v{37+4*j}, s32, v{37+4*j}"]
    chk += ["v_or3_b32 v36, v36, v37, v40", "v_or3_b32 v44, v44, v45, v41", "v_or3_b32 v36, v36, v48, v49", "v_or_b32 v36, v36, v44", "v_cmp_ne_u32 vcc, 0, v36"]
    k.wait(vm=["gb"])
    k.e(*chk); k.e("s_cbranch_vccnz L_gb_spin ;np", "L_gb_ok: ;np")
    k.spins += ["L_gb_spin:", f"s_sub_u32 s{sBUD}, s{sBUD}, 1", "s_cbranch_scc1 L_gb_give", "s_sleep 2",
                f"buffer_load_dword v170, v{vFA}, {SRD_DBG}, 0 offen sc1", "s_waitcnt vmcnt(0)", "v_readfirstlane_b32 s32, v170", f"s_cmp_eq_u32 s32, s{sTAG}",
                "s_cbranch_scc1 L_gb_same", f"s_mov_b32 s{sTAG}, s32", f"v_mov_b32 v176, s{sTAG}", "v_not_b32 v177, v176",
                f"buffer_store_dwordx4 v[176:179], v171, {SRD_WS}, s75 offen sc1", "L_gb_same:"] + GB_LOADS + ["s_waitcnt vmcnt(0)"] + chk + \
               ["s_cbranch_vccnz L_gb_spin", "s_branch L_gb_ok", "L_gb_give:", f"s_mov_b32 s{sBUD}, 0", "s_branch L_gb_ok"]
    k.e(f"v_cmp_ne_u32 vcc, s{sXCC}, v{vP}", "s_and_b32 s99, vcc_lo, 0xffff" if not P.safe else "s_and_b32 s99, 1, 1",
        f"s_cselect_b32 s{sML}, {OOB>>1:#x}, 0", f"s_cselect_b32 s{sMS}, 0, {OOB>>1:#x}")
    k.mark("gb")

W_OA, W_UA, W_SA, W_RB = 152, 154, 155, 156
def wo_bases(k):
    k.e(f"s_lshl_b32 s32, s{sB}, 2", f"s_add_u32 s32, s32, s{sW}", "s_lshl_b32 s64, s32, 14", f"s_lshl_b32 s33, s{sCS}, 10", "s_add_u32 s64, s64, s33",
        "s_lshr_b32 s32, s32, 1", "s_lshl_b32 s80, s32, 15", "s_lshl_b32 s65, s32, 11", "s_lshl_b32 s66, s32, 3", f"s_add_u32 s66, s66, s{sCS}", "s_lshl_b32 s66, s66, 1",
        f"s_and_b32 s32, s{sW}, 1", "s_add_u32 s66, s66, s32", "s_lshl_b32 s66, s66, 2", "s_lshl_b32 s32, s32, 8", "s_add_u32 s80, s80, s32", "s_add_u32 s65, s65, s32",
        f"s_lshr_b32 s32, s{sCS}, 1", "s_lshl_b32 s32, s32, 9", "s_add_u32 s65, s65, s32", f"s_and_b32 s32, s{sCS}, 1", "s_lshl_b32 s32, s32, 3", "s_add_u32 s65, s65, s32")
def wo_lanes(k):
    x, y = 66, 67
    return [lambda t=t: k.e(*t) for t in (
        [f"v_and_b32 v{x}, 15, v1"], [f"v_lshrrev_b32 v{y}, 4, v1"], [f"v_lshlrev_b32 v{W_OA}, 4, v{x}"], [f"v_lshl_add_u32 v{W_SA}, v{y}, 2, v{W_OA}"],
        [f"v_lshl_add_u32 v{W_OA}, v{y}, 9, v{W_OA}"], [f"v_and_b32 v{W_UA}, 7, v1"], [f"v_lshlrev_b32 v{W_UA}, 4, v{W_UA}"], [f"v_lshl_add_u32 v{W_UA}, v{y}, 7, v{W_UA}"],
        [f"v_lshrrev_b32 v{x}, 3, v{x}"], [f"v_lshl_add_u32 v{W_UA}, v{x}, 13, v{W_UA}"], [f"v_add_u32 v{W_RB}, {6*16384}, v{vL16}"],
        ["v_cmp_gt_u32 vcc, 32, v1", f"v_mov_b32 v{y}, {OOB:#x}", f"v_cndmask_b32 v{W_SA}, v{y}, v{W_SA}, vcc"])]
def blanks(k, layer):
    if not P.tags: return [lambda: k.mark("blank")]
    z = 66
    return [lambda: (k.e(f"v_mov_b32 v{z}, -1"), k.dstore(f"buffer_store_dword v{z}, v{vL16}, {SRD_WS}, s53 offen", "blank")),
            lambda: (k.e(f"s_add_u32 s58, s64, {BX1[layer]}"), k.dstore(f"buffer_store_dword v{z}, v{W_UA}, {SRD_WS}, s58 offen", "blank")),
            lambda: k.dstore(f"buffer_store_dword v{z}, v{W_UA}, {SRD_WS}, s58 offen offset:512", "blank"),
            lambda: (k.e(f"s_add_u32 s58, s65, {BS1[layer]}"), k.dstore(f"buffer_store_dword v{z}, v{W_SA}, {SRD_WS}, s58 offen", "blank"), k.mark("blank"))]
def wo_prepoll(k, layer):
    k.poll_addr(A_PA, 32)
    k.e(f"s_lshl_b32 s32, s{sB}, 7", f"s_add_u32 s{sPO}, s32, {fl(layer, FL_O)}", f"s_add_u32 s59, s80, {BO[layer]}")
    k.bg_held = True
    k.poll_issue(A_PA, "po1"); k.mark("po1")

def dna(k): return regloads(k, sDS, 0, lambda j: ar(192 + 4*j, 4), 16, "dna")

def tail_prep(k):
    R = R0
    A = lambda *t: [("a", lambda x=x: k.e(x)) for x in t]
    B = lambda *t: [("b", lambda: k.e(*t))]
    ops = A("v_and_b32 v73, 15, v1", "v_lshrrev_b32 v74, 4, v1", "v_lshlrev_b32 v73, 10, v73", "v_lshl_add_u32 v73, v74, 4, v73")
    ops += B(f"s_lshl_b32 s58, s{sB}, 2", f"s_add_u32 s58, s58, s{sW}", "s_lshl_b32 s58, s58, 14", f"s_lshl_b32 s59, s{sCS}, 7", "s_add_u32 s58, s58, s59")
    ops += [("v", lambda p=p: k.vm(f"buffer_load_dwordx4 {vr(RES+4*p,4)}, v73, {SRD_X}, s58 offen offset:{p*64}", "res")) for p in range(2)]
    ops += A("v_and_b32 v75, 3, v1", "v_cmp_eq_u32 s[34:35], 1, v75", "v_cmp_eq_u32 s[36:37], 2, v75", "v_cmp_eq_u32 s[38:39], 3, v75", "v_bfe_u32 v75, v1, 2, 2")
    ops += B("v_cmp_eq_u32 vcc, v75, v74", f"v_mov_b32 v72, {L_SA0 + 768}", f"s_lshl_b32 s59, s{sW}, 7", f"v_add_u32 v74, s59, v{R.SA}",
             "v_cndmask_b32 v74, v72, v74, vcc", f"v_cndmask_b32 v75, v72, v{R.SA}, vcc")
    return ops + [("a", f) for f in wo_lanes(k)]

def l0_background(k):
    k.per = dict(P.per_k)
    dd = dna(k)
    bg_list(k, dd[:P.dna_first], "s4", "dna", "gb")
    bg_list(k, wow(k), "s4", "wow", "xfree")
    bg_batches(k, [0, 1, 2, 3], "s2", lambda b: "xfree")
    bg_batches(k, [4], "s2", lambda b: "wobar")
    bg_batches(k, [5], "s2", lambda b: "xfree")
    bg_batches(k, [6, 7, 8, 9], "s2", lambda b: "gubar")
    bg_list(k, dd[P.dna_first:], "s4", "dna")
P.per_k = {"s2": 90, "s4": 70}

def a10_tail(k):
    R = R0
    k.per = dict(P.per_tail0)
    k.stamp("t0 gb")
    k.touch(72, "t", [f"s_add_u32 s32, s65, {BS1[0]}"])
    k.bg_burst(2)
    hk, hv = z_acc("h")[1], z_acc("h")[2]
    for r in range(4):
        k.e(f"v_mov_b32_dpp v{CSQ+r}, v{Z_CV+r} row_newbcast:0 row_mask:0xf bank_mask:0xf", f"v_mov_b32_dpp v{CSK+r}, v{hk+r} row_newbcast:0 row_mask:0xf bank_mask:0xf")
    k.e(f"v_mov_b32 v{CSV}, v{hv}", f"v_mov_b32 v45, v{hv}", f"v_permlane16_swap_b32 v{CSV}, v45", f"v_mov_b32 v45, v{CSV}", f"v_permlane32_swap_b32 v{CSV}, v45")
    fa = Flex(); fb = Flex()
    for fx, S, G, ad, off in ((fa, Z_SUM, Z_GR, 74, 128), (fb, Z_SUMH, Z_GRH, 75, 0)):
        a = lambda txt, c=1, fx=fx: fx.add(lambda: k.e(txt), c)
        a(f"v_cndmask_b32 v{S+1}, v{G}, v{G+1}, s[34:35]"); a(f"v_cndmask_b32 v{S+1}, v{S+1}, v{G+2}, s[36:37]"); a(f"v_cndmask_b32 v{S+1}, v{S+1}, v{G+3}, s[38:39]")
        ln_finish(a, S, S + 1); a(f"v_rsq_f32 v{S+1}, v{S+1}"); fx.skip(1)
        fx.add(lambda S=S, ad=ad, off=off: k.ds(f"ds_write_b64 v{ad}, {vr(S,2)} offset:{off}", "saw"))
    drain([fa, fb], k)
    for f in blanks(k, 0): f()
    k.wait(lg="all"); k.e("s_barrier"); k.mark("xfree")
    k.stamp("t0 bar")
    fx = Flex(); f1 = Flex(); f2 = Flex()
    od = (2, 1, 3, 0, "h"); Ss = (A_STA, 56)
    for f in fix_reads(k, R, od[0], Ss[0]): f()
    for n, t in enumerate(od):
        fix(k, R, fx, t, z_acc(t), 0, True, Ss[n & 1], True, fix_reads(k, R, od[n + 1], Ss[~n & 1]) if n < 4 else ()); fx.skip(1)
    attn(k, R, f1, 2, R.ATT[0]); attn(k, R, f2, 3, R.ATT[1]); ostore(k, f2, 1)
    attn(k, R, f1, 1, R.ATT[0]); attn(k, R, f2, 0, R.ATT[1]); ostore(k, f2, 0)
    f3 = Flex(); f3.dep(("ost", 1))
    for _ in range(P.l0_flag_delay): f3.skip(1)
    f3.add(lambda: (k.wait(vm=[("ost", 1)]), k.flag(1, 89), k.mark("oflag1")))
    f3.dep(("attn", 0)); f3.add(lambda: wo_prepoll(k, 0))
    drain([fx, f1, f2, f3], k)
    k.stamp("a1 end")
P.l0_flag_delay = 6; P.dna_first = 2
P.per_tail0 = {"s2": 70, "s4": 45}

def a11_bases(k):
    out = []
    S = lambda *t: out.extend(lambda x=x: k.e(x) for x in t)
    S(f"s_lshr_b32 s70, s{sW}, 1", "s_lshl_b32 s49, s70, 13", f"s_and_b32 s71, s{sW}, 1", "s_lshl_b32 s71, s71, 2",
      f"s_add_u32 s50, s71, s{sROT}", "s_lshl_b32 s71, s71, 10")
    for i in range(4):
        S(f"s_add_u32 s70, s50, {i}", "s_and_b32 s70, s70, 7", "s_lshl_b32 s70, s70, 10", "s_add_u32 s70, s70, s49", f"s_sub_u32 s{92+i}, s70, {i*1024}")
    S("s_add_u32 s49, s49, s71", f"s_lshl_b32 s47, s{sB}, 16", f"s_add_u32 s47, s47, {WS_X[1]}")
    S(f"s_sub_u32 s48, s{sB}, 1", "s_max_i32 s48, s48, 0", "s_lshl_b32 s51, s48, 10", f"s_add_u32 s51, s51, {WS_HST}",
      "s_lshl_b32 s52, s48, 11", f"s_add_u32 s52, s52, {WS_HXF}", "s_lshl_b32 s48, s48, 14", f"s_add_u32 s48, s48, {WS_HALO}")
    S("v_lshrrev_b32 v28, 4, v1", "v_and_b32 v29, 15, v1", "v_lshlrev_b32 v29, 4, v29", f"v_lshl_add_u32 v{A_U}, v28, 9, v29", f"v_lshl_add_u32 v{A_U+1}, v28, 8, v29")
    S(f"s_lshl_b32 s70, s{sB}, 12", f"s_and_b32 s71, s{sW}, 1", "s_lshl_b32 s71, s71, 8", "s_add_u32 s70, s70, s71", f"s_add_u32 s90, s70, {WS_ST[1]}")
    out.append(lambda: k.e(f"s_lshl_b32 s70, s{sB}, 1", f"s_add_u32 s70, s70, s{sW}", "s_lshl_b32 s72, s70, 13", f"s_lshl_b32 s71, s{sCS}, 10", "s_add_u32 s72, s72, s71",
        f"s_add_u32 s72, s72, {WS_HALO - 16384}", f"s_cmp_ge_u32 s{sW}, 2", f"s_cselect_b32 s72, s72, {OOB>>1:#x}"))
    out.append(lambda: k.e(f"s_lshl_b32 s73, s{sB}, 10", f"s_lshr_b32 s71, s{sCS}, 1", "s_lshl_b32 s71, s71, 8", "s_add_u32 s73, s73, s71", f"s_and_b32 s71, s{sCS}, 1",
        "s_lshl_b32 s71, s71, 3", "s_add_u32 s73, s73, s71"))
    out.append(lambda: k.e(f"s_lshl_b32 s71, s{sW}, 7", "s_add_u32 s73, s73, s71", f"s_add_u32 s73, s73, {WS_HST - 256}",
        f"s_cmp_ge_u32 s{sW}, 2", f"s_cselect_b32 s73, s73, {OOB>>1:#x}"))
    out.append(lambda: k.e(f"s_lshl_b32 s70, s{sB}, 3", f"s_add_u32 s70, s70, s{sCS}", "s_lshl_b32 s70, s70, 1", f"s_add_u32 s70, s70, s{sW}", "s_lshl_b32 s70, s70, 7",
        f"s_add_u32 s70, s70, {WS_HXF - 256}", f"s_cmp_ge_u32 s{sW}, 2", f"s_cselect_b32 s91, s70, {OOB>>1:#x}"))
    return out

def a11_x(k, tile):
    fns = []
    for i in range(4):
        def f(i=i):
            k.set_m0(f"s_add_u32 m0, s49, {A11_POS[tile]*16384}")
            k.e(f"s_add_u32 s32, s{48 if tile == 'h' else 47}, s{92+i}")
            if tile not in (0, "h"): k.e(f"s_add_u32 s32, s32, {tile*16384}")
            k.vm(f"buffer_load_dwordx4 v{vL16}, {SRD_WS}, s32 offen offset:{i*1024} sc1 lds", ("x", tile))
        fns.append(f)
    return fns

def stats_path(k, fx, S, tag, addr, tok, at=0):
    a = lambda txt, c=1: fx.add(lambda: k.e(txt), c)
    s, q = S, S + 1
    fx.add(lambda: k.wait(vm=[tag]), 1, at)
    a(f"v_add_f32 v{s}, v{s}, v{S+2}"); a(f"v_add_f32 v{q}, v{q}, v{S+3}"); fx.skip(1)
    a(f"v_permlane16_swap_b32 v{s}, v{q}", 2); a(f"v_add_f32 v{s}, v{s}, v{q}"); a(f"v_mov_b32 v{q}, v{s}"); fx.skip(1)
    a(f"v_permlane32_swap_b32 v{s}, v{q}", 2); a(f"v_add_f32 v{s}, v{s}, v{q}"); a(f"v_mov_b32 v{q}, v{s}"); fx.skip(1)
    a(f"v_permlane16_swap_b32 v{s}, v{q}", 2)
    ln_finish(a, s, q); a(f"v_rsq_f32 v{q}, v{q}", 2); fx.skip(1)
    fx.add(lambda: (k.ds(f"ds_write_b64 v{addr}, {vr(s,2)} offset:{tok*8}", ("saw", tag)), k.mark(("saw", tag))))

def a11_early(k):
    k.vm(f"buffer_load_dwordx4 {vr(A_ST,4)}, v{A_U}, {SRD_WS}, s90 offen offset:2048 sc1", "st0")
    for t in A11_ORDER[:2]:
        for f in a11_x(k, t): f()

def a11_main(k):
    R = R1; order = A11_ORDER
    steps = [(t, s) for t in order for s in range(16)]
    accof = lambda t: A_ACC + 12 * (order.index(t) % 3)
    def xread(i):
        t, s = steps[i]
        off = A11_POS[t] * 16384 + (s >> 1) * 1024
        k.ds(f"ds_read_b128 {vr(A_XF+4*(i%4),4)}, v{R.XO if s&1 else R.XE} offset:{off}", ("xf", i))
    mains = []; fixed = {}; gap_of = {}
    need_sa = {order[1]: ["st0"], order[2]: ["st1"], order[3]: [], "h": []}
    for i, (t, s) in enumerate(steps):
        acc = accof(t); xf = vr(A_XF + 4*(i % 4), 4)
        c = lambda r, s=s: "0" if s == 0 else vr(r, 4)
        ms = []
        if t != "h": ms.append(f"{MF16} {vr(acc,4)}, {ar(12*s,4)}, {xf}, {c(acc)}")
        ms.append(f"{MF16} {vr(acc+4,4)}, {ar(12*s+4,4)}, {xf}, {c(acc+4)}")
        ms.append(f"{MF16} {vr(acc+8,4)}, {xf}, {ar(12*s+8,4)}, {c(acc+8)}")
        gap_of[(t, s)] = len(mains)
        for m in ms: mains.append(lambda m=m: k.e(m))
        last = len(mains) - 1
        fl_ = fixed.setdefault(last, [])
        if i + 1 < len(steps): fl_.append((0, lambda i=i: k.wait(lg=[("xf", i + 1)])))
        j = i + 4
        if j < len(steps):
            tj, sj = steps[j]
            if sj == 0:
                def bar(tj=tj):
                    k.wait(vm=[("x", tj)], lg=[("saw", n) for n in need_sa[tj]]); k.e("s_barrier"); k.mark(("bar", tj))
                fixed.setdefault(gap_of[(t, s)], []).append((1, bar))
            fixed[last].append((1, lambda j=j: xread(j)))
    fx = Flex(); fz = Flex(); fz2 = Flex(); fy = Flex(); fm = Flex()
    k.e(f"s_and_b32 s32, s{sW}, 1", "s_lshl_b32 s32, s32, 7", f"v_add_u32 v7, s32, v{R.SA}")
    o_bases(k, 1)
    stats_path(k, fy, A_ST, "st0", 7, 48)
    g1 = P.a1_late_gap
    fm.add(lambda: (k.wait(vm=[("xst", 1)]), k.flag(2)), 3, P.a1_flag_gap)
    fm.add(lambda: (k.poll_issue(A_PX, "px2"), setattr(k, "bg_held", not P.a1_bg_early)), 1, g1 - P.a1_poll_lead)
    fm.add(lambda: k.poll_check(A_PX, "px2", 2), 2, g1)
    fm.add(lambda: k.vm(f"buffer_load_dwordx4 {vr(56,4)}, v{A_U}, {SRD_WS}, s90 offen sc1", "st1"))
    for t in order[2:4]:
        for f in a11_x(k, t): fm.add(f, 2); fm.skip(P.a1_xgap)
    for f in wo_lanes(k): fy.add(f)
    fy.add(lambda: k.mark("wolanes"), 0)
    fm.dep("wolanes")
    fm.add(lambda: k.e(f"s_add_u32 s58, s64, {WS_X[1]}"))
    for p in range(2): fm.add(lambda p=p: k.vm(f"buffer_load_dwordx4 {vr(RES+4*p,4)}, v{W_UA}, {SRD_WS}, s58 offen offset:{p*512} sc1", "res")); fm.skip(P.a1_xgap)
    def halo_poll():
        k.poll_addr(A_PX, 16, 7)
        k.e(f"s_mov_b32 s{sPO}, s52", f"s_min_u32 s50, s{sB}, 1")
        k.poll_issue(A_PX, "phx"); k.bg_held = False
    fm.add(halo_poll, 3)
    if P.touch1 in (1, 2):
        fm.add(lambda: k.touch(60, "p", ["s_mov_b32 s32, s53"]), 6)
        fm.add(lambda: k.touch(62, "q", [f"s_add_u32 s32, s64, {BX1[1]}"]), 6)
        fm.add(lambda: k.touch(64, "t", [f"s_add_u32 s32, s65, {BS1[1]}"]), 4)
        if P.touch1 > 1: fm.add(lambda: k.touch(66, "h", h_base("s32", 1)), 6)
    for f in blanks(k, 1): fm.skip(P.a1_xgap); fm.add(f, 3)
    stats_path(k, fy, 56, "st1", 7, 16, g1 + 26)
    fm.dep(("bar", order[2]))
    fm.add(lambda: k.poll_check(A_PX, "phx", "s50"), 2)
    fm.add(lambda: k.vm(f"buffer_load_dwordx4 {vr(A_ST,4)}, v{A_U+1}, {SRD_WS}, s51 offen sc1", "sth"))
    for f in a11_x(k, "h"): fm.add(f, 2); fm.skip(P.a1_xgap)
    stats_path(k, fy, A_ST, "sth", R.SA, 0, gap_of[(order[3], P.a1_sth)])
    k.per = dict(P.per_a1); k.bg_held = True
    b5 = batch(k, 5)
    mix = [(f, "s2", ("gw", 4), None) for f in batch(k, 4)] + [(f, "s2", ("gw", 5), None) for f in b5[:3]]
    ww = [(f, "s4", "wow", None) for f in wow(k)]
    while mix or ww:
        k.bg += ww[:2]; ww = ww[2:]
        if mix: k.bg.append(mix.pop(0))
    bg_batches(k, [0], "s2", lambda b: ("bar", order[3]))
    bg_batches(k, [1], "s2", lambda b: ("bar", "h"))
    bg_batches(k, [2, 3], "s2", lambda b: "wobar")
    bg_list(k, b5[3:], "s2", ("gw", 5), "wobar")
    bg_batches(k, [6, 7, 8, 9], "s2", lambda b: "gubar")
    A = lambda t: (accof(t) if t != "h" else None, accof(t) + 4, accof(t) + 8)
    for n in range(4): fix(k, R, fx, order[n], A(order[n]), gap_of[(order[n + 1], 1 if n < 3 else 2)], False)
    attn(k, R, fz, 3, R.ATT[0]); attn(k, R, fz2, 2, R.ATT[1]); ostore(k, fz2, 1)
    attn(k, R, fz, 1, R.ATT[0])
    fx.dep(("saw", "sth"))
    for f in fix_reads(k, R, "h", A_STA): fx.add(f)
    fx.dep("gemm_done")
    fix(k, R, fx, "h", A("h"), 0, False, pre=True); attn(k, R, fz2, 0, R.ATT[1]); ostore(k, fz2, 0)
    f3 = Flex(); f3.dep(("ost", 1)); f3.skip(P.l1_flag_delay)
    f3.add(lambda: (k.wait(vm=[("ost", 1)]), k.flag(1, 89), k.mark("oflag1")), 3)
    f3.dep(("attn", 0)); f3.add(lambda: wo_prepoll(k, 1))
    k.wait(vm=[("x", order[0])]); k.e("s_barrier")
    for i in range(4): xread(i)
    k.wait(lg=[("xf", 0)])
    k.stamp("a1 first")
    if k.stamping:
        for t in order[1:]: fixed.setdefault(gap_of[(t, 0)], []).append((0, lambda t=t: k.stamp(f"a1 t{t}")))
        for g in range(6, 224, 12): fixed.setdefault(g, []).append((0, lambda g=g: k.stamp(f"fina {g}")))
    run_gaps(k, mains, fixed, [fm, f3, fy, fx, fz2, fz], 2, over=lambda i: i >= P.a1_over)
    print("a11 left:", len(fm), len(fy), len(fx), len(fz), len(fz2), len(k.bg), {n: g for n, g in k.marks.items() if isinstance(n, tuple) and n[0] in ("fix", "attn", "saw", "ost")})
    k.mark("gemm_done"); k.bg_held = P.a1_tailhold
    k.stamp("a1 gemm")
    drain([fm, fy, fx, fz, fz2, f3], k)
    for n in range(2): assert k.marks[("fix", order[n])] < gap_of[(order[n + 3], 0)], "accumulator reused too early"
    k.stamp("a1 end")
P.a1_flag_gap, P.a1_late_gap, P.a1_poll_lead, P.l1_flag_delay, P.a1_over = 8, 36, 18, 14, 48
P.a1_bg_early = False; P.a1_salead = 8; P.a1_tailhold = True; P.touch1 = 1; P.a1_xgap = 3; P.a1_sth = 4
P.per_a1 = {"s2": 95, "s4": 60}

R_W0, R_W1, R_RD, R_ST, R_OUT = 3, 4, 5, 6, 7
def red_setup(k, posA, dAB):
    x, y, z, u = 28, 29, 30, 31
    k.e(f"s_add_u32 s32, s{sGL}, {posA*16384}", f"v_add_u32 v{R_W0}, s32, v{vL16}", f"v_xor_b32 v{R_W1}, 128, v{R_W0}")
    k.e(f"v_and_b32 v{x}, 7, v1", f"v_lshrrev_b32 v{y}, 3, v1", f"s_lshl_b32 s32, s{sW}, 7", f"v_lshl_add_u32 v{z}, v{x}, 4, s32",
        f"v_bfe_u32 v{u}, v1, 4, 1", f"v_lshlrev_b32 v{R_RD}, 7, v{u}", f"v_xor_b32 v{z}, v{z}, v{R_RD}",
        f"v_bfe_u32 v{R_RD}, v1, 3, 2", f"v_lshl_add_u32 v{z}, v{R_RD}, 10, v{z}", f"v_lshrrev_b32 v{R_RD}, 5, v1",
        f"v_mul_u32_u24 v{R_RD}, {dAB*16384}, v{R_RD}", f"v_add_u32 v{z}, v{z}, v{R_RD}", f"v_add_u32 v{R_RD}, {posA*16384}, v{z}")
    k.e(f"v_lshlrev_b32 v{z}, 4, v{x}", f"v_lshl_add_u32 v{z}, v{u}, 2, v{z}", f"v_and_b32 v{u}, 0x28, v1",
        f"v_cmp_eq_u32 vcc, 0, v{u}", f"v_mov_b32 v{u}, {OOB:#x}", f"v_cndmask_b32 v{R_ST}, v{u}, v{z}, vcc")
    k.e(f"v_lshlrev_b32 v{z}, 10, v{x}", f"v_lshl_add_u32 v{R_OUT}, v{y}, 4, v{z}")

def red_bases(k):
    k.e(f"s_lshl_b32 s32, s{sB}, 3", f"s_add_u32 s32, s32, s{sW}", "s_lshl_b32 s55, s32, 13", f"s_lshl_b32 s33, s{sCS}, 10", "s_add_u32 s55, s55, s33")
    k.e("s_lshl_b32 s57, s32, 13", f"s_lshl_b32 s33, s{sCS}, 7", "s_add_u32 s57, s57, s33")
    k.e(f"s_lshl_b32 s56, s{sB}, 12", f"s_lshr_b32 s33, s{sCS}, 1", "s_lshl_b32 s33, s33, 9", "s_add_u32 s56, s56, s33",
        f"s_and_b32 s33, s{sCS}, 1", "s_lshl_b32 s33, s33, 3", "s_add_u32 s56, s56, s33", f"s_lshl_b32 s33, s{sW}, 7", "s_add_u32 s56, s56, s33")

def red_writes(k, acc, g, off, dAB):
    return [lambda q=q: k.ds(f"ds_write_b128 v{R_W1 if (q>>1)&1 else R_W0}, {vr(acc+4*q,4)} offset:{off + (q>>2)*dAB*16384 + (q&3)*1024}", ("rw", g)) for q in range(8)]
def red_reads(k, g, T, off):
    return [lambda w=w, hf=hf: k.ds(f"ds_read_b128 {vr(T+8*w+4*hf,4)}, v{R_RD} offset:{off + w*4096 + hf*512}", ("rr", g, w)) for w in range(4) for hf in range(2)]

def red_finish(k, fx, g, mm, T, xdst, stdst, final, pk):
    a = lambda txt, c=1: fx.add(lambda: k.e(txt), c)
    R = RES + 4 * mm
    def add8(d, s):
        if pk:
            for i in range(0, 8, 2): a(f"v_pk_add_f32 {vr(d+i,2)}, {vr(d+i,2)}, {vr(s+i,2)}")
        else:
            for i in range(8): a(f"v_add_f32 v{d+i}, v{d+i}, v{s+i}")
    fx.add(lambda: k.wait(lg=[("rr", g, 1)]))
    add8(T, T + 8)
    for i in range(4): a(f"v_lshlrev_b32 v{T+8+2*i}, 16, v{R+i}"); a(f"v_and_b32 v{T+9+2*i}, 0xffff0000, v{R+i}")
    add8(T, T + 8)
    fx.add(lambda: k.wait(lg=[("rr", g, 3)]))
    add8(T + 16, T + 24); add8(T, T + 16)
    for i in range(4): a(f"v_cvt_pk_bf16_f32 v{R+i}, v{T+2*i}, v{T+2*i+1}")
    if final:
        fx.add(lambda: (k.e(f"s_add_u32 s32, s57, {mm*32768}"), k.vm(f"buffer_store_dwordx4 {vr(R,4)}, v{R_OUT}, {SRD_OUT}, s32 offen {P.outm}", ("xst", g))))
        return
    fx.add(lambda: (k.e(f"s_add_u32 s32, s55, {xdst + mm*32768}"), k.dstore(f"buffer_store_dwordx4 {vr(R,4)}, v{vL16}, {SRD_WS}, s32 offen", ("xst", g))), 2)
    s, q = T + 32, T + 33
    a(f"v_add_f32 v{s}, v{T}, v{T+1}"); a(f"v_mul_f32 v{q}, v{T}, v{T}"); a(f"v_fmac_f32 v{q}, v{T+1}, v{T+1}")
    for i in range(2, 8): a(f"v_add_f32 v{s}, v{s}, v{T+i}"); a(f"v_fmac_f32 v{q}, v{T+i}, v{T+i}")
    fx.skip(1)
    a(f"v_add_f32_dpp v{s}, v{s}, v{s} row_ror:8 row_mask:0xf bank_mask:0xf"); a(f"v_add_f32_dpp v{q}, v{q}, v{q} row_ror:8 row_mask:0xf bank_mask:0xf")
    fx.skip(1)
    a(f"v_permlane16_swap_b32 v{s}, v{q}", 2); a(f"v_add_f32 v{s}, v{s}, v{q}"); a(f"v_mov_b32 v{q}, v{s}"); fx.skip(1)
    a(f"v_permlane32_swap_b32 v{s}, v{q}", 2); a(f"v_add_f32 v{s}, v{s}, v{q}")
    fx.add(lambda: (k.e(f"s_add_u32 s32, s56, {stdst + mm*2048}"), k.dstore(f"buffer_store_dword v{s}, v{R_ST}, {SRD_WS}, s32 offen", ("xst", g)), k.mark(("xst", g))), 2)

def merge(k, fx, extra, first=0):
    extra = list(extra)
    items = [it for it in fx.items if it[0] != "skip"]; fx.items = []
    per = max(1, (len(items) - first) // max(1, len(extra)))
    for n, it in enumerate(items):
        if n >= first and (n - first) % per == 0 and extra: extra.pop(0)()
        it[1](); k.bg_step()
    for f in extra: f(); k.bg_step()

def wo(k, layer):
    BF, WQ, ACC, T, PA, NQ = 32, 160, 192, 208, A_PA, 8
    state = {}
    def bload(sx):
        k.set_s(f"s_add_u32 s58, s59, {(sx & ~1)*2048}")
        k.vm(f"buffer_load_dwordx4 {vr(BF+4*sx,4)}, v{W_OA}, {SRD_WS}, s58 offen offset:{(sx%2)*2048} sc1", ("b", sx))
    def wread(n): k.ds(f"ds_read_b128 {vr(WQ+4*(n%NQ),4)}, v{W_RB} offset:{n*1024}", ("wq", n))
    k.wait(vm=["wow"]); k.e("s_barrier"); k.mark("wobar")
    for n in range(NQ): wread(n)
    btxt = lambda sx: [f"s_add_u32 s99, s59, {sx*2048}", f"buffer_load_dwordx4 {vr(BF+4*sx,4)}, v{W_OA}, {SRD_WS}, s99 offen sc1"]
    bchk = lambda sx: k.valid([f"v_cmp_eq_u32 vcc, -1, v{BF+4*sx}"], btxt(sx))
    ptxt = f"buffer_load_dword v{T+20}, v{T+21}, {SRD_WS}, s59 offen sc1"
    if P.tags:
        k.e(f"v_lshlrev_b32 v{T+21}, 8, v{PA}")
        k.e(f"v_or_b32 v{T+21}, v{T+21}, v{PA}", f"v_and_b32 v{T+21}, 0x80007c00, v{T+21}")
        k.poll_check(PA, "po1", 1)
        k.vm(ptxt, "probe")
        for sx in range(P.wo_spec): bload(sx)
        k.e(f"s_lshl_b32 s32, s{sC}, 1", f"s_and_b32 s33, s{sW}, 1", "s_add_u32 s32, s32, s33", "s_lshl_b32 s32, s32, 7", f"s_add_u32 s{sPO}, s32, {fl(layer, FL_O)}")
    else:
        k.e(f"s_add_u32 s{sFO}, s66, {fl(layer, FL_X1)}")
        k.e(f"s_cmp_lt_u32 s{sW}, 2", f"s_cbranch_scc1 L_wo_late{layer}")
        q0 = list(k.vmq)
        k.poll_check(PA, "po1", 1)
        for sx in range(P.wo_lead): bload(sx)
        if P.wo_setup_first: gu_setup(k, layer)
        k.wait(vm=[("ost", 0)]); k.flag(2, 89)
        k.e(f"s_branch L_wo_join{layer}")
        k.label(f"L_wo_late{layer}")
        k.vmq = list(q0)
        k.wait(vm=[("ost", 0)]); k.flag(2, 89)
        if P.wo_setup_first: gu_setup(k, layer)
        k.poll_issue(PA, "po2"); k.poll_check(PA, "po2", 2)
        for sx in range(P.wo_lead): bload(sx)
        k.label(f"L_wo_join{layer}")
    if P.tags or not P.wo_setup_first: gu_setup(k, layer)
    k.stamp("wo issued")
    mains = []; fixed = {}
    for n in range(64):
        sx, j = divmod(n, 4)
        mains.append(lambda n=n, sx=sx, j=j: k.e(f"{MF16} {vr(ACC+4*j,4)}, {vr(WQ+4*(n%NQ),4)}, {vr(BF+4*sx,4)}, {'0' if sx == 0 else vr(ACC+4*j,4)}"))
        fl_ = fixed.setdefault(n, [])
        if n < 63: fl_.append((0, lambda n=n: k.wait(vm=[("b", (n + 1) // 4)] if (n + 1) % 4 == 0 else None, lg=[("wq", n + 1)])))
        if P.tags and n < 63 and (n + 1) % 4 == 0: fl_.append((1, lambda n=n: bchk((n + 1) // 4)))
        if P.tags and n == 42: fl_.append((1, lambda: k.poll_issue(PA, "px1")))
        if n + NQ < 64: fl_.append((1, lambda n=n: wread(n + NQ)))
        if n % P.wo_bstep == 0 and P.wo_lead + n // P.wo_bstep < 16: fl_.append((1, lambda n=n: bload(P.wo_lead + n // P.wo_bstep)))
    fx = Flex()
    a = lambda txt, c=1, at=0: fx.add(lambda: k.e(txt), c, at)
    fx.add(lambda: k.wait(vm=["res"]), 1, 8)
    for i in range(8): a(f"v_lshlrev_b32 v{T+2*i}, 16, v{RES+i}"); a(f"v_and_b32 v{T+2*i+1}, 0xffff0000, v{RES+i}")
    k.per = dict(P.per_wo[layer]); k.bg_held = False; k.bg_next = k.t + P.wo_bg_delay
    if P.tags:
        k.wait(vm=["probe"])
        k.valid([f"v_cmp_eq_u32 vcc, -1, v{T+20}"], [ptxt] + sum([btxt(x) for x in range(P.wo_spec)], []))
        state["fresh"] = True
        for sx in range(P.wo_spec, P.wo_lead): bload(sx)
    k.wait(vm=[("b", 0)], lg=[("wq", 0)])
    if P.tags: bchk(0)
    k.stamp("wo first")
    fixed[P.wo_bg_stop].append((0, lambda: setattr(k, "bg_held", True)))
    run_gaps(k, mains, fixed, [fx], 2)
    drain([fx], k)
    k.stamp("wo gemm")
    for i in range(0, 16, 2): k.e(f"v_pk_add_f32 {vr(T+i,2)}, {vr(T+i,2)}, {vr(ACC+i,2)}")
    k.e(f"s_add_u32 s58, s64, {BX1[layer]}")
    for p in range(2):
        for i in range(4): k.e(f"v_cvt_pk_bf16_f32 v{RES+4*p+i}, v{T+8*p+2*i}, v{T+8*p+2*i+1}")
        k.dstore(f"buffer_store_dwordx4 {vr(RES+4*p,4)}, v{W_UA}, {SRD_WS}, s58 offen offset:{p*512}", "xst")
    S, Q = T + 16, T + 18
    k.e(f"v_pk_add_f32 {vr(S,2)}, {vr(T,2)}, {vr(T+2,2)}", f"v_pk_mul_f32 {vr(Q,2)}, {vr(T,2)}, {vr(T,2)}", f"v_pk_fma_f32 {vr(Q,2)}, {vr(T+2,2)}, {vr(T+2,2)}, {vr(Q,2)}")
    for i in range(4, 16, 2): k.e(f"v_pk_add_f32 {vr(S,2)}, {vr(S,2)}, {vr(T+i,2)}", f"v_pk_fma_f32 {vr(Q,2)}, {vr(T+i,2)}, {vr(T+i,2)}, {vr(Q,2)}")
    k.e(f"v_add_f32 v{S}, v{S}, v{S+1}", f"v_add_f32 v{Q}, v{Q}, v{Q+1}", f"s_add_u32 s58, s65, {BS1[layer]}",
        f"v_permlane16_swap_b32 v{S}, v{Q}", f"v_add_f32 v{S}, v{S}, v{Q}", f"v_mov_b32 v{Q}, v{S}", f"v_permlane32_swap_b32 v{S}, v{Q}", f"v_add_f32 v{S}, v{S}, v{Q}")
    k.dstore(f"buffer_store_dword v{S}, v{W_SA}, {SRD_WS}, s58 offen", "xst")
    key = lambda it: it[2][1] if isinstance(it[2], tuple) else 11.5
    k.bg.sort(key=key)
    print(f"wo{layer} done, background left:", [it[2] for it in k.bg][::4])
    k.bg_burst(P.wo_win[layer])
    k.stamp("wo end")
P.wo_bg_delay = 200; P.wo_bg_stop = 56; P.wo_lead = 6; P.wo_spec = 3; P.gu_spec = 3; P.wo_bstep = 2
P.wo_poll_gap = 1; P.wo_late_gap = 7; P.wo_hold = True; P.wo_win = [4, 4]; P.wo_var = 'B'; P.wo_prew = 2
P.per_wo = [{"s2": 35, "s4": 35}] * 2

G_RB, G_C1, G_VV, G_AUG, G_X, G_ACC, G_WF, G_T = 3, 6, 7, 28, 32, 160, 224, 240
D_WV, D_BF, D_ACC, D_T, D_WF, D_RB, D_PA = 32, 64, 128, 192, 228, 112, 115
DN_SEQ = [(g, e) for g in range(2) for e in range(28)]
DN_GROUPS = [1, 0]
def h_loader(k, layer):
    def bload(i):
        if i == 0:
            k.e(f"s_mul_i32 s32, s{sB}, {224*KB}", f"s_mul_i32 s33, s{sW}, {28*KB}", "s_add_u32 s32, s32, s33", f"s_add_u32 s59, s32, {BH[layer]}")
            for p in range(4):
                k.e(f"s_add_u32 s32, s{sCS}, {p}", f"s_and_b32 s32, s32, {3 if P.hrot else 0}", f"s_mul_i32 s32, s32, {7*KB}", f"s_add_u32 s{34+p}, s59, s32")
                if not P.hrot: k.e(f"s_add_u32 s{34+p}, s{34+p}, {7*KB*p}")
        g, e = DN_SEQ[i]; p, tl = divmod(KK_OF[e], 7)
        k.set_s(f"s_add_u32 s58, s{34+p}, {DN_GROUPS[g] * 112 * KB + (tl & 4) * 1024}")
        k.vm(f"buffer_load_dwordx4 {vr(D_BF+4*(i%P.dn_lead),4)}, v{vL16}, {SRD_WS}, s58 offen offset:{(tl & 3)*1024} sc1", ("b", i))
    return bload

def gu_setup(k, layer):
    T = G_T; XA = T + 3
    k.e(*gu_tile("s50"))
    k.e(f"v_and_b32 v{T}, 31, v1")
    k.e(f"v_mov_b32 v{G_RB}, v{vL16}", f"v_add_u32 v{G_RB+1}, 0x10000, v{vL16}", f"v_add_u32 v{G_RB+2}, 0x20000, v{vL16}")
    k.e(f"v_lshrrev_b32 v{T+1}, 5, v1", f"v_lshlrev_b32 v{G_AUG+3}, 4, v{T}", f"v_lshl_add_u32 v{G_AUG+3}, v{T+1}, 10, v{G_AUG+3}")
    k.e(f"v_lshrrev_b32 v{XA}, 3, v{T}", f"v_lshlrev_b32 v{XA}, 13, v{XA}", f"v_lshl_add_u32 v{XA}, v{T+1}, 7, v{XA}",
        f"v_and_b32 v{T}, 7, v1", f"v_lshl_add_u32 v{XA}, v{T}, 4, v{XA}")
    k.e("s_lshl_b32 s32, s50, 11", f"s_add_u32 s51, s32, {BS1[layer]}")
    k.e("s_lshl_b32 s32, s50, 15", f"s_add_u32 s52, s32, {BX1[layer]}", "s_add_u32 s53, s52, 4096")
    k.e(*h_base("s54", layer))
    k.e("s_lshr_b32 s32, s50, 1", "s_lshl_b32 s32, s32, 4", f"s_add_u32 s32, s32, s{sM}",
        "s_lshl_b32 s32, s32, 1", "s_and_b32 s33, s50, 1", "s_add_u32 s32, s32, s33", "s_lshl_b32 s32, s32, 2", f"s_add_u32 s81, s32, {fl(layer, FL_H)}")

def gu(k, layer):
    T = G_T; XA = T + 3; PA = T + 2
    if P.tags: k.poll_check(A_PA, "px1", 1)
    else:
        def pa():
            k.poll_addr(PA, 16)
            k.e("s_lshl_b32 s32, s50, 6", f"s_add_u32 s{sPO}, s32, {fl(layer, FL_X1)}")
        if not P.gu_pa_late: pa()
        k.wait(vm=["xst"]); k.flag(1)
        if P.gu_pa_late: pa()
        k.stamp("x1 flag")
        if not P.gu_bar_first: k.poll_issue(PA, "px1")
    k.e(f"s_mov_b32 s{sFO}, s81")
    seq = [(t, ks) for ks in range(33) for t in range(3)] + [(t, ks) for t in range(3, 7) for ks in range(33)]
    accof = {0: 0, 1: 1, 2: 2, 3: 3, 4: 0, 5: 1, 6: 2}
    NW = P.gu_nw
    WQ = [G_WF, G_WF + 4, G_WF + 8, G_WF + 12, T + 12]
    def wread(n):
        slot = (n % 160) * 1024
        k.ds(f"ds_read_b128 {vr(WQ[n%NW],4)}, v{G_RB + (slot>>16)} offset:{slot & 0xffff}", ("wf", n))
    def ringbar():
        k.wait(vm=[("gw", 0)]); k.e("s_barrier"); k.mark("gubar")
        for n in range(NW): wread(n)
    if P.gu_bar_first: ringbar(); k.poll_issue(PA, "px1")
    if not P.tags: k.poll_check(PA, "px1", 1)
    k.stamp("gu go")
    xtxt = lambda kg: f"buffer_load_dwordx4 {vr(G_X+4*kg,4)}, v{XA}, {SRD_WS}, s{52 + (kg>>4)} offen offset:{((kg>>2)&3)*1024 + (kg&3)*256} sc1"
    def xload(kg): k.vm(xtxt(kg), ("gx", kg))
    xchk = lambda kg: k.valid([f"v_cmp_eq_u32 vcc, -1, v{G_X+4*kg}"], [xtxt(kg)])
    stxt = [f"buffer_load_dwordx4 {vr(T+4+4*h,4)}, v{G_AUG+3}, {SRD_WS}, s51 offen offset:{512*h} sc1" for h in range(2)]
    if P.tags:
        for t_ in stxt: k.vm(t_, "gst")
        for kg in range(P.gu_spec): xload(kg)
        k.wait(vm=["gst"])
        k.valid([f"v_max3_u32 v{T}, v{T+4}, v{T+6}, v{T+8}", f"v_max_u32 v{T}, v{T}, v{T+10}", f"v_cmp_eq_u32 vcc, -1, v{T}"],
                stxt + [xtxt(x) for x in range(P.gu_spec)])
        k.stamp("gu probe")
        for kg in range(P.gu_spec, P.gu_lead): xload(kg)
    else:
        for kg in range(P.gu_lead): xload(kg)
        for t_ in stxt: k.vm(t_, "gst")
    if not P.gu_bar_first: ringbar()
    mains = []; fixed = {}
    xpos = {}
    for kg in range(P.gu_lead, 32): xpos.setdefault(int((kg - P.gu_lead) * P.gu_xstep), []).append(kg)
    for n, (t, ks) in enumerate(seq):
        acc = G_ACC + 16 * accof[t]
        b = vr(G_AUG, 4) if ks == 32 else vr(G_X + 4*ks, 4)
        c = "0" if ks == 0 else vr(acc, 16)
        mains.append(lambda n=n, acc=acc, b=b, c=c: k.e(f"{MF32} {vr(acc,16)}, {vr(WQ[n%NW],4)}, {b}, {c}"))
        fl_ = fixed.setdefault(n, [])
        if n + 1 < len(seq):
            t2, ks2 = seq[n + 1]
            need = [("gx", ks2)] if (t2 == 0 and ks2 < 32) else None
            fl_.append((0, lambda n=n, need=need: k.wait(vm=need, lg=[("wf", n + 1)])))
            if need and P.tags: fl_.append((2, lambda ks2=ks2: xchk(ks2)))
        j = n + NW
        if j < len(seq):
            if j % 16 == 0:
                fl_.append((2, lambda bi=j//16: (k.wait(vm=[("gw", bi)]), k.e("s_barrier" if not P.x_nobar else "s_nop 0"), k.mark(("gbar", bi)))))
            fl_.append((1, lambda j=j: wread(j)))
        for kg in xpos.get(n, []): fl_.append((1, lambda kg=kg: xload(kg)))
    xend = max(xpos)
    tail = [it for it in k.bg if it[2] == "dna"]; k.bg = [it for it in k.bg if it[2] != "dna"]
    bg_batches(k, [10, 11], "s2", lambda b: ("gbar", b - 8))
    mid = []
    for b in (12, 13, 14):
        for f in batch(k, b): mid.append((f, "s2", ("gw", b), ("gbar", b - 8)))
    while mid or tail:
        if mid: k.bg.append(mid.pop(0))
        if tail: k.bg.append(tail.pop(0))
    bg_batches(k, range(15, 23), "s4", lambda b: ("gbar", b - 8))
    k.per = dict(P.per_guA[layer]); k.bg_held = False; k.bg_next = k.t + P.gu_bg_delay
    fixed[xend].append((0, lambda: setattr(k, "per", dict(P.per_guB[layer]))))
    fv = Flex()
    dv = regloads(k, sDS, 48*1024, lambda j: vr(D_WV + 4*j, 4), 8, "dnv")
    k.hload = h_loader(k, layer)
    if P.hpre:
        bg_list(k, dv, "s4", "dnv", "xdead")
        fixed[207].append((0, lambda: k.mark("xdead")))
    else:
        for j, f in enumerate(dv): fv.add(f, 1, 198 + 2 + 3*j)
    fx = Flex()
    a = lambda txt, c=1, at=0: fx.add(lambda: k.e(txt), c, at)
    fx.add(lambda: k.wait(vm=["gst"]), 1, 3 * P.gu_lead)
    a(f"v_add_f32 v{T+4}, v{T+4}, v{T+6}"); a(f"v_add_f32 v{T+5}, v{T+5}, v{T+7}"); a(f"v_add_f32 v{T+8}, v{T+8}, v{T+10}"); a(f"v_add_f32 v{T+9}, v{T+9}, v{T+11}")
    a(f"v_add_f32 v{T+4}, v{T+4}, v{T+8}"); a(f"v_add_f32 v{T+5}, v{T+5}, v{T+9}"); fx.skip(1)
    a(f"v_permlane32_swap_b32 v{T+4}, v{T+5}", 2); a(f"v_add_f32 v{T+4}, v{T+4}, v{T+5}"); a(f"v_mov_b32 v{T+5}, v{T+4}"); fx.skip(1)
    a(f"v_permlane32_swap_b32 v{T+4}, v{T+5}", 2)
    ln_finish(a, T + 4, T + 5)
    a(f"v_mov_b32 v{G_VV}, v{T+5}")
    a(f"v_rsq_f32 v{G_C1}, v{T+5}", 2); a(f"v_cvt_pk_bf16_f32 v{G_AUG}, v{T+4}, v{T+4}"); a(f"v_mul_f32 v{G_C1}, {f2u(-LOG2E):#x}, v{G_C1}")
    a(f"v_and_b32 v{T+5}, 0xffff0000, v{G_AUG}"); a(f"v_sub_f32 v{T+5}, v{T+4}, v{T+5}"); a(f"v_mov_b32 v{G_AUG+2}, 0")
    a(f"v_cvt_pk_bf16_f32 v{G_AUG+1}, v{T+5}, v{G_AUG+2}"); a(f"v_mov_b32 v{G_AUG+3}, 0")
    fx.add(lambda: k.mark("aug"), 0)
    def epi(t, at):
        acc = G_ACC + 16 * accof[t]; hp = T + 8; E = T + 4
        if P.x_noepi: a("s_nop 0", 1, at)
        for i0 in range(0, 8 if not P.x_noepi else 0, 2):
            for i in (i0, i0 + 1): a(f"v_mul_f32 v{E+(i&1)}, v{G_C1}, v{acc+i}", 1, at)
            for i in (i0, i0 + 1): a(f"v_exp_f32 v{E+(i&1)}, v{E+(i&1)}", 2)
            for i in (i0, i0 + 1): a(f"v_mul_f32 v{E+2+(i&1)}, v{acc+i}, v{acc+8+i}")
            for i in (i0, i0 + 1): a(f"v_fma_f32 v{E+(i&1)}, v{E+(i&1)}, v{G_VV}, v{G_VV}")
            for i in (i0, i0 + 1): a(f"v_rcp_f32 v{E+(i&1)}, v{E+(i&1)}", 2)
            fx.skip(1)
            for i in (i0, i0 + 1): a(f"v_mul_f32 v{E+2+(i&1)}, v{E+2+(i&1)}, v{E+(i&1)}")
            a(f"v_cvt_pk_bf16_f32 v{hp+i0//2}, v{E+2}, v{E+3}")
        fx.add(lambda: k.mark(("epi", t)), 0)
        if t == 4: a("s_add_u32 s54, s54, 4096")
        fx.add(lambda: ((k.dstore if ((layer and P.h1_plain) or (not layer and P.h_touch0)) else lambda x, tg: k.vm(x + " sc1", tg))(f"buffer_store_dwordx4 {vr(hp,4)}, v{vL16}, {SRD_WS}, s54 offen offset:{(t%4)*1024}", ("hst", t)), k.mark(("hst", t))), 2)
    end = {t: max(n for n, x in enumerate(seq) if x[0] == t) for t in range(7)}
    for t in range(6): epi(t, end[t] + 3)
    if layer == 0 and P.h_touch0 == "g": fixed[xend + 1].append((5, lambda: k.touch(T, "h", ["s_mov_b32 s32, s54"])))
    ff = Flex(); ff.dep(("hst", 3))
    if layer == 0:
        tx = [lambda: k.touch(T, "p", [f"s_add_u32 s32, s55, {WS_X[1]}"]), lambda: k.touch(T + 1, "s", [f"s_add_u32 s32, s56, {WS_ST[1]}"])]
        if P.x2_touch == "h3": ff.add(tx[0], 6); ff.add(tx[1], 4)
        elif isinstance(P.x2_touch, int): fixed[P.x2_touch].append((5, tx[0])); fixed[P.x2_touch + 1].append((4, tx[1]))
        if "g" in str(P.touch1):
            for f in touch_next(k, T + 2)[:2]: ff.skip(1); ff.add(f, 6)
    ff.skip(P.gu_flag_delay)
    ff.add(lambda: (k.wait(vm=[("hst", 3)]), k.flag(1)), 3)
    def hpoll():
        k.wait(vm=["touch"] if "touch" in k.seen else None)
        k.poll_addr(T, 8)
        k.e(f"s_lshl_b32 s32, s{sB}, 7", f"s_lshl_b32 s33, s{sW}, 5", "s_add_u32 s32, s32, s33", f"s_add_u32 s{sPO}, s32, {fl(layer, FL_H)}")
        k.poll_issue(T, "ph1")
    if P.hpre:
        ff.add(hpoll, 4, P.hp_chk - 12)
        ff.add(lambda: (k.poll_check(T, "ph1", 1), setattr(k, "bg_held", True)), 3, P.hp_chk)
        for j in range(P.hpre): ff.add(lambda j=j: k.hload(j), 2, max(208 + j, int(P.hp_chk + 1 + j * P.hp_step)))
    else: ff.add(hpoll, 4, 228)
    k.wait(vm=[("gx", 0)], lg=[("wf", 0)])
    if P.tags: xchk(0)
    k.stamp("gu first")
    if k.stamping:
        for g in (48, 98, 131, 164, 197): fixed[g].append((0, lambda g=g: k.stamp(f"gu m{g}")))
    fixed[93].append((0, lambda: k.marks["aug"]))
    run_gaps(k, mains, fixed, [fv, ff, fx], P.gu_cap)
    print("gu left:", len(k.bg), len(fv), len(ff), len(fx), {n: g for n, g in k.marks.items() if isinstance(n, tuple) and n[0] == "hst"})
    k.stamp("gu gemm")
    for g, t in {132: 0, 165: 1, 198: 2}.items(): assert k.marks[("epi", t)] < g, "accumulator reused too early"
    epi(6, 0); drain([ff, fv, fx], k)
    k.e(f"v_mov_b32 v{D_PA}, v{T}")
    k.stamp("gu end")
P.x2_touch = 'h3'; P.dn_x2 = 2; P.hrot = 0; P.hpre = 0; P.hp_chk = 208; P.hp_step = 2.2; P.gu_flag_delay = 10; P.gu_xstep = 2.6; P.gu_bg_delay = 300
P.per_guA = [{"s2": 120, "s4": 120}, {"s2": 160, "s4": 160}]
P.per_guB = [{"s2": 90, "s4": 55}] * 2

def dn(k, layer):
    final = layer == 1
    NB = P.dn_lead; T = D_T
    groups = DN_GROUPS; seq = DN_SEQ; bload = k.hload
    early = Flex()
    def rb(): k.e(f"v_add_u32 v{D_RB}, s{sGL}, v{vL16}", f"v_add_u32 v{D_RB+1}, 0x10000, v{D_RB}", f"v_add_u32 v{D_RB+2}, 0x20000, v{D_RB}")
    if P.hpre:
        for i in range(P.hpre, NB): bload(i)
        rb()
        class Rec:
            def e(self, *t):
                if any("vcc" in x or "s32" in x for x in t): early.add(lambda: k.e(*t), len(t))
                else:
                    for x in t: early.add(lambda x=x: k.e(x))
        red_setup(Rec(), 3, 1)
        early.add(lambda: (k.wait(vm=[("hst", 6)]), k.flag(2), k.poll_issue(D_PA, "ph2"), k.e(f"s_add_u32 s{sFO}, s89, {FL_X2 - FL_O}")), 5, P.dn_fgap)
    else:
        k.poll_check(D_PA, "ph1", 1)
        k.stamp("dn early")
        k.bg_held = True
        for i in range(P.dn_pre): bload(i)
        red_setup(k, 3, 1); rb()
        k.wait(vm=[("hst", 6)]); k.flag(2)
        k.poll_issue(D_PA, "ph2")
        for i in range(P.dn_pre, NB): bload(i)
        k.e(f"s_add_u32 s{sFO}, s89, {FL_X2 - FL_O}")
    k.per = dict(P.per_dn0); k.bg_held = False
    lds = [(i, nn) for i, (g, e) in enumerate(seq) if 8 <= e < 24 for nn in range(2)]
    slot_of = {x: n for n, x in enumerate(lds)}
    NWF = 6
    def wread(n):
        i, nn = lds[n]; j = 2 * (seq[i][1] - 8) + nn; b = 15 + (j >> 2)
        ad = (b % 10) * 16384 + (j & 3) * 1024
        if seq[i][0] == 0: k.wait(vm=[("gw", b)])
        k.ds(f"ds_read_b128 {vr(D_WF+4*(n%NWF),4)}, v{D_RB + (ad>>16)} offset:{ad & 0xffff}", ("wf", n))
    def wfrag(i, nn):
        e = seq[i][1]
        if e < 8: return ar(192 + 8*e + 4*nn, 4)
        if e >= 24: return vr(D_WV + 8*(e - 24) + 4*nn, 4)
        return vr(D_WF + 4*(slot_of[(i, nn)] % NWF), 4)
    mains = []; fixed = {}
    NT = P.dn_tail
    assert NT <= 4
    order = [(i, nn) for i in range(56 - NT) for nn in range(2)] + [(i, nn) for nn in range(2) for i in range(56 - NT, 56)]
    for pos, (i, nn) in enumerate(order):
        g, e = seq[i]
        if True:
            acc = D_ACC + 32 * g + 16 * nn
            mains.append(lambda i=i, nn=nn, acc=acc, e=e: k.e(f"{MF32} {vr(acc,16)}, {wfrag(i,nn)}, {vr(D_BF+4*(i%NB),4)}, {'0' if e == 0 else vr(acc,16)}"))
            gp = len(mains) - 1; fl_ = fixed.setdefault(gp, [])
            nx = order[pos + 1] if pos + 1 < len(order) else None
            vmn = [("b", nx[0])] if (nx and nx[1] == 0) else None
            lgn = [("wf", slot_of[nx])] if nx in slot_of else None
            if nx == (24, 0): vmn = vmn + ["dnv"]
            fl_.append((0, lambda vmn=vmn, lgn=lgn: k.wait(vm=vmn, lg=lgn)))
            ah = (i + 2, nn)
            if ah in slot_of: fl_.append((1, lambda n=slot_of[ah]: wread(n)))
    nxt = NB; pend = 0
    for i in range(len(seq)):
        fl_ = fixed[2*i + 1]
        if i == P.dn_late: fl_.append((2, lambda: (k.poll_check(D_PA, "ph2", 2), k.stamp("dn late"), k.mark("late"))))
        n = 0
        while nxt < len(seq) and nxt <= i + NB and n < 2 and (nxt < 16 or i >= P.dn_late):
            fl_.append((1, lambda j=nxt: bload(j))); nxt += 1; n += 1
        if nxt == len(seq) and not pend: pend = 2*i + 2
    fixed[20].append((1, lambda: k.e("s_barrier")))
    for mm in range(2):
        fixed[40 + 4*mm].append((2, lambda mm=mm: (k.e(f"s_add_u32 s32, s55, {BX1[layer] + mm*32768}"),
                                                   k.vm(f"buffer_load_dwordx4 {vr(RES+4*mm,4)}, v{vL16}, {SRD_WS}, s32 offen sc1", "res"))))
    fw = Flex(); fs = Flex()
    for q, f in enumerate(red_writes(k, D_ACC, 0, 0, 1)): fw.add(f, 1, 58 + 2*q)
    fw.add(lambda: (k.wait(lg=[("rw", 0)]), k.e("s_barrier")), 2, 76)
    for f in red_reads(k, 0, T, 0): fw.add(f, 2)
    fw.add(lambda: k.wait(vm=["res"]))
    red_finish(k, fw, 0, groups[0], T, WS_X[1], WS_ST[1], final, False)
    if not final:
        fw.add(lambda: k.vm(f"buffer_store_dwordx4 {vr(RES+4,4)}, v{vL16}, {SRD_WS}, s72 offen sc1", "hxs"))
        fw.add(lambda: k.vm(f"buffer_store_dword v{T+32}, v{R_ST}, {SRD_WS}, s73 offen sc1", "hxs"))
        fw.skip(P.dn_flag_delay); fw.add(lambda: (k.wait(vm=[("xst", 0)]), k.flag(1)), 3)
        if P.x2_touch == "dn":
            fixed[P.dn_x2].append((5, lambda: k.touch(226, "p", [f"s_add_u32 s32, s55, {WS_X[1]}"])))
            fixed[P.dn_x2 + 1].append((4, lambda: k.touch(227, "s", [f"s_add_u32 s32, s56, {WS_ST[1]}"])))
            fs.add(lambda: k.wait(vm=["touch"]), 1, P.dn_x2 + 2)
        if "d" in str(P.touch1):
            for q, f in enumerate(touch_next(k, 28)): fixed[P.dn_touch + 2*q].append((5, f))
        fs.dep("late")
        for f in a11_bases(k) + a1_setup(k, 1): fs.add(f)
        fs.add(lambda: (k.poll_addr(A_PX, 32), k.e(f"s_lshl_b32 s32, s{sB}, 7", f"s_add_u32 s{sPO}, s32, {fl(0, FL_X2)}")), 4)
    wtail = red_writes(k, D_ACC + 32, 1, 2*16384, 1)
    if NT:
        for q in range(min(4, NT)): fixed[min(111, 112 - NT + 1 + q)].append((4, wtail.pop(0)))
    k.wait(vm=["dna", ("b", 0)])
    k.stamp("dn first")
    if k.stamping:
        fixed[55].append((0, lambda: k.stamp("dn p1")))
        for g in range(7, 111, 8): fixed[g].append((0, lambda g=g: k.stamp(f"find {g}")))
    run_gaps(k, mains, fixed, [early, fw, fs], 6)
    print("dn left:", len(k.bg), len(fw), len(fs), "last h load at gap", pend)
    k.stamp("dn gemm")
    assert not fs.items
    ws = wtail
    if not final: ws.insert(len(ws) - 4, lambda: k.poll_issue(A_PX, "px0"))
    merge(k, fw, ws)
    k.wait(lg=[("rw", 1)]); k.e("s_barrier")
    k.stamp("dn red")
    for f in red_reads(k, 1, T, 2*16384): f()
    if not final:
        k.bg_held = True
        k.poll_check(A_PX, "px0", 1)
        k.wait(vm=["hxs"]); k.flag(1, 91, "sc1")
        a11_early(k)
    f1 = Flex(); red_finish(k, f1, 1, groups[1], T, WS_X[1], WS_ST[1], final, True); drain([f1], k)
    k.stamp("dn end")
P.dn_tail = 0; P.dn_touch = 88; P.dn_flag_delay = 4; P.dn_pre = 6; P.dn_late = 7; P.dn_fgap = 6
P.dn_wow = 6; P.per_dn = {"s4": 110, "s2": 130}; P.per_dn0 = {"s4": 60, "s2": 60}

def build(stamps=False, only=None):
    k = F(); k.stamping = stamps; k.only = only; k.st = P.dst; k.rt = P.rt
    name = NAME + "_kernel"
    k.e(".p2align 8", f".globl {name}", f".type {name},@function"); k.label(name)
    if stamps: k.e("s_memrealtime s[92:93]", "s_memtime s[94:95]")
    k.e("s_cmp_ge_u32 s2, 256", "s_cbranch_scc1 L_end")
    k.e("s_load_dwordx16 s[64:79], s[0:1], 0", "s_load_dwordx4 s[80:83], s[0:1], 64", "s_memrealtime s[96:97]")
    k.e("s_getpc_b64 s[100:101]")
    k.e("L_pc: ;np")
    k.e("s_mov_b32 s24, s100", "s_mov_b32 s25, s101", "s_mov_b32 s26, L_end-L_pc", "s_mov_b32 s27, 0x20000",
        "v_and_b32 v1, 63, v0", "v_lshrrev_b32 v2, 6, v0", "s_lshr_b32 s33, s2, 3", "s_mul_i32 s32, s33, 43", "s_lshr_b32 s32, s32, 8",
        "s_mul_i32 s32, s32, 6", "s_sub_u32 s32, s33, s32", "s_lshl_b32 s32, s32, 13", "v_lshlrev_b32 v3, 11, v2", "v_lshl_add_u32 v3, v1, 7, v3",
        f"v_mov_b32 v4, {OOB:#x}", "v_cmp_gt_u32 vcc, 16, v1", f"v_readfirstlane_b32 s{sW}, v2", "v_cndmask_b32 v3, v4, v3, vcc")
    if P.code0: k.vm(f"buffer_load_dword v175, v3, {SRD_PK}, s32 offen", "code")
    k.e("s_and_b32 s32, s2, 7", f"s_and_b32 s{sM}, s33, 15", "s_lshr_b32 s33, s33, 4", "s_lshl_b32 s32, s32, 1", f"s_add_u32 s{sC}, s32, s33")
    k.e(f"s_lshr_b32 s33, s{sM}, 3", f"s_lshl_b32 s{sB}, s{sC}, 1", f"s_add_u32 s{sB}, s{sB}, s33", f"s_and_b32 s{sCS}, s{sM}, 7")
    k.e("v_lshlrev_b32 v2, 4, v1")
    a10_lanes(k)
    k.e("s_waitcnt lgkmcnt(0)")
    srd(k, 12, 64, 2048 * 1024); srd(k, 16, 66, 512 * 3072)
    k.e(f"s_or_b32 s{sTAG}, s96, 1")
    if stamps:
        k.stamps += ["rt0", "start"]; k.e("v_writelane_b32 v0, s92, 0", f"v_writelane_b32 v0, s{92 if P.rt else 94}, 1")
    k.stamp("s kernarg")
    pack_issue(k)
    k.stamp("s pkissue")
    run(a10_x(k, 0) + a10_w(k, 0))
    srd(k, 28, 80, 256)
    k.e("v_cmp_eq_u32 vcc, 0, v1", f"v_mov_b32 v{vFA}, {OOB:#x}", f"s_or_b32 s32, s2, s{sW}", f"v_cndmask_b32_e64 v{vFA}, v{vFA}, 0, vcc",
        "s_cmp_eq_u32 s32, 0", f"s_cselect_b32 s32, 0, {OOB>>1:#x}", f"v_mov_b32 v170, s{sTAG}")
    k.vm(f"buffer_store_dword v170, v{vFA}, {SRD_DBG}, s32 offen sc1", "tagst")
    srd(k, 8, 82, WS_SIZE); srd(k, 20, 78, 2048 * 1024)
    for f in a1_setup(k, 0): f()
    o_bases(k, 0)
    a10_lanes2(k)
    k.e(f"v_mov_b32 v60, {OOB:#x}", "v_cmp_gt_u32 vcc, 8, v1", "v_mov_b32 v176, 0", "v_mov_b32 v177, 0", "v_mov_b32 v178, 0", "v_mov_b32 v179, 0",
        f"v_cndmask_b32 v173, v60, v{vL16}, vcc", "v_cmp_gt_u32 vcc, 16, v1", f"s_getreg_b32 s{sXCC}, hwreg(HW_REG_XCC_ID, 0, 4)",
        f"s_lshl_b32 s32, s{sC}, 4", f"v_cndmask_b32 v172, v60, v{vL16}, vcc")
    k.e(f"s_add_u32 s32, s32, s{sM}", "s_lshl_b32 s32, s32, 4",
        f"s_cmp_eq_u32 s{sW}, 0", f"s_cselect_b32 s32, s32, {OOB>>1:#x}", f"v_add_u32 v171, s32, v{vFA}", f"s_mov_b32 s{sBUD}, 400000",
        f"s_mov_b32 s75, {WS_ARR}", f"s_lshl_b32 s77, s{sC}, 8", "s_add_u32 s77, s77, s75")
    red_bases(k)
    k.e(f"s_lshl_b32 s{sGL}, s{sW}, 12", f"s_mul_i32 s{sGS}, s{sM}, {PGU_SLICE}", f"s_add_u32 s{sGS}, s{sGS}, s{sGL}", f"s_add_u32 s{sGS}, s{sGS}, {WS_PGU}")
    k.e(f"s_mul_i32 s32, s{sCS}, {224*KB}", f"s_mul_i32 s33, s{sW}, {56*KB}", "s_add_u32 s32, s32, s33", f"s_add_u32 s{sDS}, s32, {WS_PDN}")
    k.e(f"s_lshl_b32 s32, s{sCS}, 16", f"s_add_u32 s32, s32, s{sGL}", f"s_add_u32 s88, s32, {WS_PWO}")
    wo_bases(k)
    k.stamp("s setup")
    run(a10_w(k, 1))
    k.stamp("s w01")
    def mid2():
        if P.k_first > 3: run(a10_w(k, 3))
        k.e("s_lshl_b32 s32, s2, 7")
        k.vm(f"buffer_store_dwordx4 v[176:179], v173, {SRD_WS}, s32 offen sc1", "zero")
        k.e("s_lshl_b32 s32, s2, 8", f"s_add_u32 s32, s32, {WS_HXF}")
        k.vm(f"buffer_store_dwordx4 v[176:179], v172, {SRD_WS}, s32 offen sc1", "zero")
    pack_process(k, lambda: run(a10_x(k, 1) + a10_w(k, 2)), mid2)
    k.vm(f"buffer_load_dword v170, v{vFA}, {SRD_DBG}, 0 offen sc1", "tag")
    k.stamp("s pkdone")
    a10_loop(k, P.k_first)
    a10_tail(k)
    wo(k, 0); gu(k, 0); dn(k, 0)
    if not P.half:
        k.marks = {m: g for m, g in k.marks.items() if False}
        k.seen = {t for t in k.seen if t in k.vmq or t in k.lgq or t in ("dna", "st0", ("x", 2), ("x", 3))}
        a11_main(k)
        wo(k, 1)
        k.marks = {m: g for m, g in k.marks.items() if m == "wobar" or m[0] == "bar"}
        gu(k, 1); dn(k, 1)
    if P.verbose: print([(t, tag, f) for t, tag, f in k.bg_log if f])
    if stamps:
        k.e("s_waitcnt vmcnt(0)"); k.stamp("drained"); k.stamp("rt1", True)
        k.e("s_lshl_b32 s32, s2, 10", "s_lshl_b32 s33, s3, 8", "s_add_u32 s32, s32, s33",
            f"s_add_u32 s32, s32, {WS_STAMP}", "v_lshlrev_b32 v8, 2, v1", f"buffer_store_dword v0, v8, {SRD_WS}, s32 offen")
        if P.echo:
            a, b = P.echo
            n = len(k.stamps)
            k.e(f"v_readlane_b32 s32, v0, {a}", f"v_readlane_b32 s33, v0, {b if b >= 0 else n + b}", f"v_readlane_b32 s34, v0, {n-1}", "s_nop 3",
                "s_sub_u32 s33, s33, s32", "s_min_u32 s33, s33, 20000")
            k.label("L_echo")
            k.e("s_memrealtime s[36:37]", "s_waitcnt lgkmcnt(0)", "s_sub_u32 s36, s36, s34", "s_cmp_lt_u32 s36, s33", "s_cbranch_scc1 L_echo")
        if P.dbg:
            n = len(k.stamps)
            k.e("v_readlane_b32 s32, v0, 0", f"v_readlane_b32 s33, v0, {n-1}", "s_not_b32 s34, s32", "v_mov_b32 v4, s33", "v_mov_b32 v5, s34")
            k.e(f"buffer_atomic_umax v4, v{vFA}, {SRD_DBG}, 0 offen offset:4", f"buffer_atomic_umax v5, v{vFA}, {SRD_DBG}, 0 offen offset:8")
            k.e(f"s_cmp_eq_u32 s2, {P.dbg - 1}", f"s_cselect_b32 s35, 0, {OOB>>1:#x}", f"s_cmp_eq_u32 s{sW}, 0", f"s_cselect_b32 s35, s35, {OOB>>1:#x}")
            for i, wd in zip(range(2, n - 1), (3, 5, 6, 7, 9, 10, 11, 13, 14, 15)):
                k.e(f"v_readlane_b32 s33, v0, {i}", "s_sub_u32 s33, s33, s32", "v_mov_b32 v4, s33", f"buffer_store_dword v4, v{vFA}, {SRD_DBG}, s35 offen offset:{4*wd}")
    k.e("s_endpgm")
    k.flush_spins()
    k.label("L_end"); k.e("s_endpgm")
    src = open("cdna_kernels/%s.s.ref" % NAME).read().splitlines()
    out = [l for l in src if l.startswith(";") and "@launch" not in l]
    out.append(f"; @launch grid=(256,1,1) block=(256,1,1) lds={LDS_TOTAL}")
    out += ['.amdgcn_target "amdgcn-amd-amdhsa--gfx950"', ".text"]
    s = "\n".join(out) + "\n" + k.text(verbose=True) + '.section .rodata,"a"\n.p2align 6\n' + kd(name)
    from verify import verify
    assert not verify(s), "a register is used while a load into it is in flight"
    if P.align:
        from align import align
        s = align(s)
    return s, k.stamps
P.x_nobar = 0; P.x_noepi = 0; P.rt = 1; P.dbg = 0; P.h_touch0 = ''; P.outm = ''; P.h1_plain = 1; P.tags = 0; P.echo = None; P.wo_setup_first = 0; P.gu_pa_late = 0; P.gu_bar_first = 0; P.flagbr = 0; P.rot = 0; P.half = 0; P.tlb = 1; P.code0 = 1; P.verbose = 0; P.align = 1; P.gu_cap = 5; P.gu_nw = 5; P.k_touch = 15; P.k_gb = 13; P.k_chk = 16

if __name__ == "__main__":
    path = sys.argv[1] if len(sys.argv) > 1 else "cdna_kernels/%s.s" % NAME
    opts = sys.argv[2:]
    only = None
    for o in opts:
        if o.startswith("only="): only = [x for x in o[5:].split(",") if x]
        if o.startswith("P."):
            n, v = o[2:].split("="); setattr(P, n, eval(v))
    s, st = build(stamps="st" in opts, only=only)
    open(path, "w").write(s)
    if "st" in opts: json.dump([st], open(path + ".json", "w"))
```

```python
import sys, json
from common import *

MF16 = "v_mfma_f32_16x16x32_bf16"
MF16S = "v_mfma_f32_16x16x16_bf16"
MF32 = "v_mfma_f32_32x32x16_bf16"
vL16, vFV, vFA, vP = 2, 8, 9, 10
CSV, CSQ, CSK, RES = 11, 12, 16, 20
OOB = 0x80000000
FL_O, FL_X1, FL_H, FL_X2 = 0, 4096, 8192, 12288
FL_HX = 16384 + 12288
def fl(layer, off): return WS_FLAGS + 16384 * layer + off
sROT, sBUD, sGL, sGS, sDS = 84, 98, 60, 61, 85
sT0, sT1, sPO, sFO = 32, 33, 86, 87
sML, sMS = 68, 69
WS_HXF = WS_O0 - 0x10000 if False else WS_END
WS_ARR = WS_HXF + 0x10000
sTAG, sXCC = 91, 76
WS_STAMP = 0x2000000
L_SA0, L_SA1, L_XH0, L_CS = 80896, 97280, 81920, 79872
def e_of(kk):
    p, tl = divmod(kk, 7)
    return 4 * p + tl if tl < 4 else 16 + 3 * p + (tl - 4)
KK_OF = {e_of(kk): kk for kk in range(28)}

class P:
    a1_bg_start, a1_bg_step = 30, 6
    gu_lead = 7
    gu_bg_start, gu_bg_step = 50, 2.6
    dn_lead = 12
    bgm = ""
    sleep = 0
    drop = ()
    codepf = 0
    ld = "sc1"
    dst = "sc1"
    safe = False
    plain = True
    notouch = ()

BO, BX1, BS1, BH = [WS_O[0]] * 2, [WS_X[0]] * 2, [WS_ST[0]] * 2, [WS_H[0]] * 2
def o_line(layer):
    return [f"s_lshl_b32 s32, s{sB}, 16", f"s_lshl_b32 s33, s{sCS}, 2", f"s_add_u32 s33, s33, s{sW}", "s_lshl_b32 s33, s33, 10",
            "s_add_u32 s32, s32, s33", f"s_add_u32 s32, s32, {BO[layer]}"]
def touch_next(k, t):
    return [lambda: k.touch(t, "p", o_line(1)), lambda: k.touch(t + 1, "q", [f"s_add_u32 s32, s64, {BX1[1]}"]),
            lambda: k.touch(t + 2, "t", [f"s_add_u32 s32, s65, {BS1[1]}"])]
def gu_tile(d):
    return [f"s_lshl_b32 {d}, s{sC}, 1", f"s_and_b32 s33, s{sW}, 1", f"s_add_u32 {d}, {d}, s33", f"s_lshl_b32 {d}, {d}, 1", f"s_lshr_b32 s33, s{sW}, 1", f"s_add_u32 {d}, {d}, s33"]
def h_base(d, layer):
    return gu_tile(d) + [f"s_mul_i32 {d}, {d}, 112", f"s_mul_i32 s33, s{sM}, 7",
            f"s_add_u32 {d}, {d}, s33", f"s_lshl_b32 {d}, {d}, 10", f"s_add_u32 {d}, {d}, {BH[layer]}"]

class F(K):
    def __init__(self):
        super().__init__(); self.spins = []; self.nspin = 0; self.st = ""; self.npf = 0
    def poll_issue(self, va, tag): self.vm(f"buffer_load_dword v{vP}, v{va}, {SRD_WS}, s{sPO} offen sc1", tag)
    def poll_addr(self, va, nl, sh=2):
        self.e(f"v_cmp_gt_u32 vcc, {nl}, v1", f"v_lshlrev_b32 v{va}, {sh}, v1", f"v_mov_b32 v{vP}, {OOB:#x}", f"v_cndmask_b32 v{va}, v{vP}, v{va}, vcc")
        self.nl = nl
    def poll_check(self, va, tag, thr):
        n = self.nspin; self.nspin += 1
        self.stamp(f"poll<{tag}")
        self.wait(vm=[tag])
        self.stamp(f"poll={tag}")
        msk = f"s_and_b32 s99, vcc_lo, {(1 << self.nl) - 1:#x}"
        self.e(f"v_cmp_gt_u32 vcc, {thr}, v{vP}", msk, f"s_cbranch_scc1 L_spin{n} ;np", f"L_back{n}: ;np")
        self.stamp(f"poll>{tag}")
        self.spins += [f"L_spin{n}:", f"s_sub_u32 s{sBUD}, s{sBUD}, 1", f"s_cbranch_scc1 L_give{n}"] + ([f"s_sleep {P.sleep}"] if P.sleep else []) + [
                       f"buffer_load_dword v{vP}, v{va}, {SRD_WS}, s{sPO} offen sc1", "s_waitcnt vmcnt(0)",
                       f"v_cmp_gt_u32 vcc, {thr}, v{vP}", msk, f"s_cbranch_scc1 L_spin{n}", f"s_branch L_back{n}",
                       f"L_give{n}:", f"s_mov_b32 s{sBUD}, 0", f"s_branch L_back{n}"]
    def flag(self, val, soff=sFO, st=None):
        self.e(f"v_mov_b32 v{vFV}, {val}")
        if st is not None:
            self.vm(f"buffer_store_dword v{vFV}, v{vFA}, {SRD_WS}, s{soff} offen {st}", "flag"); return
        if P.flagbr:
            self.dstore(f"buffer_store_dword v{vFV}, v{vFA}, {SRD_WS}, s{soff} offen", "flag", True); return
        self.e(f"s_or_b32 s99, s{soff}, s{sML}")
        self.vm(f"buffer_store_dword v{vFV}, v{vFA}, {SRD_WS}, s99 offen", "flag")
        self.e(f"s_or_b32 s99, s{soff}, s{sMS}")
        self.vm(f"buffer_store_dword v{vFV}, v{vFA}, {SRD_WS}, s99 offen sc1", "flag")
    def dstore(self, text, tag, always=False):
        if not P.plain and not always:
            self.vm(text + " sc1", tag); return
        n = self.nspin; self.nspin += 1
        self.e(f"s_cmp_lg_u32 s{sML}, 0", f"s_cbranch_scc1 L_alt{n} ;np")
        self.vm(text, tag)
        self.e(f"L_back{n}: ;np")
        self.spins += [f"L_alt{n}:", "s_nop 4", text + " sc1", f"s_branch L_back{n}"]
    def valid(self, test, reload):
        n = self.nspin; self.nspin += 1
        self.e(*test); self.e(f"s_cbranch_vccnz L_rl{n} ;np", f"L_back{n}: ;np")
        self.spins += [f"L_rl{n}:", f"s_sub_u32 s{sBUD}, s{sBUD}, 1", f"s_cbranch_scc1 L_give{n}"] + reload + ["s_waitcnt vmcnt(0)"] + test + \
                      [f"s_cbranch_vccnz L_rl{n}", f"s_branch L_back{n}", f"L_give{n}:", f"s_mov_b32 s{sBUD}, 0", f"s_branch L_back{n}"]
    def touch(self, tmp, kind, base_expr, masked=True):
        if not P.plain or kind in P.notouch: return
        nl = {"p": 16, "q": 16, "s": 2, "t": 2, "h": 56}[kind]
        self.e(f"v_cmp_gt_u32 vcc, {nl}, v1")
        if kind in "pq": self.e(f"v_lshrrev_b32 v{tmp}, 3, v1", f"v_lshlrev_b32 v{tmp}, {15 if kind == 'p' else 13}, v{tmp}", f"v_and_b32 v{vFV}, 7, v1", f"v_lshl_add_u32 v{tmp}, v{vFV}, 7, v{tmp}")
        else: self.e(f"v_lshlrev_b32 v{tmp}, {11 if kind == 's' else 7}, v1")
        self.e(f"v_mov_b32 v{vFV}, {OOB:#x}", *base_expr)
        self.e(f"v_cndmask_b32 v{tmp}, v{vFV}, v{tmp}, vcc")
        if masked: self.e(f"s_or_b32 s32, s32, s{sML}")
        self.vm(f"buffer_load_dword v{tmp}, v{tmp}, {SRD_WS}, s32 offen {P.t_mod}", "touch")
    def vm(self, text, tag=None):
        kind = tag[0] if isinstance(tag, tuple) else tag
        if kind in P.drop:
            self.seen.add(tag); return
        super().vm(text, tag)
    def codepf(self, tmpv, per=2048):
        if not P.codepf: return
        n = self.npf; self.npf += 1
        sh = (per // 64).bit_length() - 1
        self.e(f"L_pf{n}: ;np", f"s_mul_i32 s32, s{sW}, {per}", f"s_add_u32 s32, s32, L_pf{n}-L_pc", f"v_lshlrev_b32 v{tmpv}, {sh}, v1")
        raise NotImplementedError
    def flush_spins(self):
        for l in self.spins: self.e(l)
        self.spins = []

def batch(k, i):
    src = f"s_add_u32 s62, s{sGS}, {i*16384}" if i < 15 else f"s_add_u32 s62, s{sDS}, {(16 + 4*(i-15))*1024}"
    def f(q):
        k.set_m0(f"s_add_u32 m0, s{sGL}, {(i % 10)*16384}")
        if i != 14: k.set_s(src)
        elif k.last.get(62) != f"s_cselect_b32 s62, {OOB>>1:#x}, s62":
            k.e(src, f"s_cmp_ge_u32 s{sW}, 2", f"s_cselect_b32 s62, {OOB>>1:#x}, s62")
        k.vm(f"buffer_load_dwordx4 v{vL16}, {SRD_WS}, s62 offen offset:{q*1024} {P.bgm} lds", ("gw", i))
    return [lambda q=q: f(q) for q in range(4)]

def bg_batches(k, bs, period, dep=lambda b: None):
    for b in bs:
        for f in batch(k, b): k.bg_add(f, period, ("gw", b), dep(b))
def bg_list(k, fns, period, tag, dep=None):
    for f in fns: k.bg_add(f, period, tag, dep)

def regloads(k, base_sgpr, off, dst, n, tag, tmp=63):
    fns = []
    for j in range(n):
        def f(j=j):
            k.set_s(f"s_add_u32 s{tmp}, s{base_sgpr}, {off + (j & ~3)*1024}")
            k.vm(f"buffer_load_dwordx4 {dst(j)}, v{vL16}, {SRD_WS}, s{tmp} offen offset:{(j%4)*1024} {P.bgm}", tag)
        fns.append(f)
    return fns
def wow(k):
    def f(i, q):
        k.set_m0(f"s_add_u32 m0, s{sGL}, {(6 + i)*16384}"); k.set_s(f"s_add_u32 s63, s88, {i*16384}")
        k.vm(f"buffer_load_dwordx4 v{vL16}, {SRD_WS}, s63 offen offset:{q*1024} lds", "wow")
    return [lambda i=i, q=q: f(i, q) for i in range(4) for q in range(4)]

def pack_issue(k):
    k.e("v_lshrrev_b32 v44, 3, v1", "v_and_b32 v43, 7, v1", "v_and_b32 v45, 2, v44", "v_lshlrev_b32 v45, 1, v45",
        "v_xor_b32 v43, v43, v45", "v_lshlrev_b32 v43, 4, v43", f"s_add_u32 s34, s49, {L_X + 4096}")
    k.e("s_cmp_ge_u32 s2, 112", "s_cbranch_scc1 L_pki_small")
    k.e("s_and_b32 s35, s2, 1", "s_bfe_u32 s36, s2, 0x10001", "s_lshr_b32 s37, s2, 2")
    k.e("s_cmp_eq_u32 s35, 0", "s_cselect_b32 s24, s72, s74", "s_cselect_b32 s25, s73, s75",
        f"s_mov_b32 s26, {512*3584:#x}", "s_mov_b32 s27, 0x20000")
    k.e("v_mul_u32_u24 v46, 3584, v44", "v_add_u32 v46, v46, v43")
    k.e("s_lshl_b32 s38, s36, 2", f"s_add_u32 s38, s38, s{sW}", f"s_mul_i32 s38, s38, {64*3584}",
        "s_lshl_b32 s39, s37, 7", "s_add_u32 s38, s38, s39")
    for i in range(8):
        k.e(f"s_add_u32 m0, s34, {(i>>2)*8192 + (i&3)*1024}", f"s_add_u32 s39, s38, {i*8*3584}", f"buffer_load_dwordx4 v46, {SRD_PK}, s39 offen {P.pk_mod} lds")
    k.e("s_branch L_pki_done")
    k.label("L_pki_small")
    k.e("s_sub_u32 s35, s2, 112", "s_lshl_b32 s35, s35, 3", f"s_lshl_b32 s36, s{sW}, 1", "s_add_u32 s35, s35, s36")
    k.e("s_cmp_lt_u32 s35, 896", "s_cselect_b32 s24, s76, s68", "s_cselect_b32 s25, s77, s69", f"s_mov_b32 s26, {512*1024:#x}",
        f"s_cselect_b32 s26, {1792*1024:#x}, s26", "s_mov_b32 s27, 0x20000", "s_cselect_b32 s37, 1, 0",
        "s_movk_i32 s38, 896", "s_cselect_b32 s38, 0, s38")
    k.e("s_cselect_b32 s39, 0, 1", "s_cselect_b32 s70, 14, 15", "s_movk_i32 s71, 0x4000", "s_cselect_b32 s71, 0x80, s71")
    k.e("s_sub_u32 s35, s35, s38", "s_lshr_b32 s35, s35, s39", "s_and_b32 s36, s35, 7", "s_lshr_b32 s35, s35, 3")
    k.e("v_lshl_add_u32 v46, v44, 10, v43", "s_lshl_b32 s38, s35, s70", "s_lshl_b32 s39, s36, 7", "s_add_u32 s38, s38, s39")
    for i in range(2):
        for h in range(2):
            k.e(f"s_add_u32 m0, s34, {(2*i+h)*1024}", f"s_add_u32 s39, s38, {h*8192}", f"buffer_load_dwordx4 v46, {SRD_PK}, s39 offen {P.pk_mod} lds")
        if i == 0: k.e("s_add_u32 s38, s38, s71")
    k.label("L_pki_done")
    k.vmq.append("pk"); k.seen.add("pk")

PQ = [76, 80, 84, 88, 92, 96, 36, 40]
def pack_process(k, mid1, mid2):
    k.e("v_bfe_u32 v46, v1, 2, 2", "v_and_b32 v47, 3, v1", "v_bfe_u32 v48, v1, 4, 1", "v_lshrrev_b32 v49, 5, v1")
    k.e("v_and_b32 v50, 2, v46", "v_add_u32 v50, v50, v48", "v_lshlrev_b32 v50, 5, v50",
        "v_lshl_add_u32 v50, v46, 7, v50", "v_lshl_add_u32 v50, v47, 3, v50", "v_add_u32 v50, s34, v50")
    k.e("s_cmp_ge_u32 s2, 112", "s_cbranch_scc1 L_pk_small")
    q0 = list(k.vmq)
    k.e("v_lshl_add_u32 v56, v49, 10, v50", "v_xor_b32 v57, 64, v56")
    k.e("s_lshl_b32 s39, s37, 2", "v_add_u32 v58, s39, v48")
    k.e("s_lshl_b32 s70, s36, 2", f"s_add_u32 s70, s70, s{sW}", "s_lshl_b32 s70, s70, 2")
    k.e("v_and_b32 v66, 15, v1", "s_lshl_b32 s71, s35, 8", "v_lshl_add_u32 v66, v66, 4, s71")
    for p in range(2):
        T, fs, tl, st_, b, aug = 59, 60, 61, 62 + p, 64 + p, 68 + p
        k.e(f"v_add_u32 v{T}, {2*p}, v58", f"v_mul_u32_u24 v{fs}, 9363, v{T}", f"v_lshrrev_b32 v{fs}, 16, v{fs}",
            f"v_mul_u32_u24 v{tl}, 7, v{fs}", f"v_sub_u32 v{tl}, v{T}, v{tl}")
        k.e(f"v_cmp_gt_u32 vcc, 3, v{tl}", f"v_mul_u32_u24 v67, 33, v{tl}", f"v_mov_b32 v{st_}, 1", "v_mov_b32 v70, 3",
            f"v_cndmask_b32 v67, v67, v{tl}, vcc", f"v_cndmask_b32 v{st_}, v{st_}, v70, vcc")
        k.e(f"v_mul_u32_u24 v{fs}, 231, v{fs}", f"v_add_u32 v67, v67, v{fs}")
        k.e(f"v_lshl_add_u32 v70, v{st_}, 5, v67", "v_lshlrev_b32 v70, 10, v70", "v_add_u32 v70, v70, v66",
            "s_lshl_b32 s71, s36, 9", f"v_add_u32 v{aug}, s71, v70")
        k.e(f"v_mul_lo_u32 v70, v{st_}, s70", "v_add_u32 v67, v67, v70", "v_lshlrev_b32 v67, 10, v67",
            "v_add_u32 v67, v67, v66", f"v_lshl_add_u32 v{b}, v49, 9, v67", f"v_lshlrev_b32 v{st_}, 10, v{st_}")
    k.e("v_mov_b32 v71, 0x3f803f80", "v_mov_b32 v72, 0", "v_mov_b32 v73, 0", "v_cmp_gt_u32 vcc, 32, v1", "v_mov_b32 v46, 0", "v_mov_b32 v47, 0",
        "v_cndmask_b32 v68, v69, v68, vcc", f"s_lshl_b32 s72, s{sW}, 8", "s_add_u32 s72, s72, 0x10000", "v_lshl_add_u32 v74, v1, 2, s72",
        "v_lshlrev_b32 v75, 2, v1", "v_add_u32 v75, 0x10000, v75")
    k.e(f"s_mov_b32 s70, {WS_PGU}", "s_mov_b32 s71, s70", "s_mov_b32 s72, s70", "s_mov_b32 s73, s70", f"s_cmp_eq_u32 s{sW}, 0", f"s_cselect_b32 s74, s70, {OOB>>1:#x}")
    k.wait(vm="pk")
    for ks in range(4):
        for p in range(2):
            for j in range(2): k.ds(f"ds_read_b64_tr_b16 {vr(PQ[2*ks+p]+2*j,2)}, v{56+p} offset:{(ks>>1)*8192 + (ks&1)*2048 + j*512}", ("t", ks, p))
        if ks == 2: k.wait(lg=[("t", 0, 1)])
    mid1()
    for ks in range(4):
        for p in range(2):
            k.wait(lg=[("t", ks, p)])
            for d in range(4): k.e(f"v_dot2c_f32_bf16 v{72+p}, v{PQ[2*ks+p]+d}, v71")
    k.e("v_permlane32_swap_b32 v72, v73", "v_add_f32 v72, v72, v73")
    k.ds(f"ds_write_b32 v74, v72 offset:{L_CS - 65536}")
    k.wait(lg="all"); k.e("s_barrier")
    for w in range(4): k.ds(f"ds_read_b32 v{56+w}, v75 offset:{L_CS - 65536 + 256*w}")
    mid2()
    k.wait(lg="all")
    k.e("v_add_f32 v56, v56, v57", "v_add_f32 v58, v58, v59", "v_add_f32 v56, v56, v58")
    k.e("v_cvt_pk_bf16_f32 v45, v56, v46", "v_lshlrev_b32 v57, 16, v45", "v_sub_f32 v57, v56, v57", "v_cvt_pk_bf16_f32 v44, v56, v57")
    k.e("s_branch L_pk_done")
    k.label("L_pk_small")
    k.vmq = list(q0)
    k.e(f"v_mov_b32 v64, v{vL16}", f"v_add_u32 v65, 1024, v{vL16}", f"v_mov_b32 v68, v{vL16}", f"s_mov_b32 s72, {OOB>>1:#x}", "s_mov_b32 s73, s72", "s_mov_b32 s74, s72")
    k.e("s_cmp_eq_u32 s37, 0", "s_cbranch_scc1 L_pk_wo")
    k.e("s_mul_i32 s38, s35, 2341", "s_lshr_b32 s38, s38, 16", "s_mul_i32 s39, s38, 28", "s_sub_u32 s39, s35, s39",
        "s_mul_i32 s70, s39, 9363", "s_lshr_b32 s70, s70, 16", "s_mul_i32 s71, s70, 7", "s_sub_u32 s71, s39, s71")
    for u in range(2):
      k.e(f"s_sub_u32 s39, s70, s36" if P.hrot else "s_mov_b32 s39, s70", f"s_sub_u32 s39, s39, {u if P.hrot else 0}", "s_and_b32 s39, s39, 3",
        "s_lshl_b32 s32, s39, 2", "s_add_u32 s32, s32, s71", "s_mul_i32 s33, s39, 3", "s_add_u32 s33, s33, s71", "s_add_u32 s33, s33, 12",
        "s_cmp_lt_u32 s71, 4", "s_cselect_b32 s32, s32, s33", "s_mul_i32 s33, s38, 28", "s_add_u32 s32, s32, s33", f"s_lshl_b32 s{(35, 37)[u]}, s32, 11")
    k.e("v_lshl_add_u32 v56, v49, 9, v50", "v_xor_b32 v57, 64, v56", f"v_mov_b32 v62, {224*KB}", f"v_mov_b32 v63, {224*KB}")
    k.e(f"s_mul_i32 s36, s36, {224*KB}", f"s_add_u32 s36, s36, {WS_PDN}", "s_add_u32 s70, s36, s35", "s_add_u32 s71, s36, s37")
    k.wait(vm="pk")
    for i in range(2):
        for nn in range(2):
            for j in range(2): k.ds(f"ds_read_b64_tr_b16 {vr(PQ[2*i+nn]+2*j,2)}, v{56+nn} offset:{i*2048 + j*1024}", "t")
    mid1(); mid2()
    k.wait(lg="all")
    k.e("s_branch L_pk_done")
    k.label("L_pk_wo")
    k.vmq = list(q0)
    k.e("v_and_b32 v56, 2, v46", "v_lshlrev_b32 v56, 1, v56", "v_xor_b32 v56, v56, v47", "v_lshlrev_b32 v56, 4, v56", "v_lshl_add_u32 v56, v46, 7, v56",
        "v_lshrrev_b32 v57, 4, v1", "v_lshl_add_u32 v56, v57, 10, v56", "v_add_u32 v56, s34, v56", "v_xor_b32 v57, 64, v56",
        "v_mov_b32 v62, 0x800", "v_mov_b32 v63, 0x800")
    k.e("s_lshl_b32 s36, s36, 16", "s_lshl_b32 s35, s35, 12", "s_add_u32 s70, s36, s35", f"s_add_u32 s70, s70, {WS_PWO}", "s_mov_b32 s71, s70")
    k.wait(vm="pk")
    for j in range(4):
        for jj in range(2): k.ds(f"ds_read_b64_tr_b16 {vr(PQ[j]+2*jj,2)}, v{56+(j>>1)} offset:{jj*512 + 8*(j&1)}", "t")
    mid1(); mid2()
    k.wait(lg="all")
    k.label("L_pk_done")

def pack_stores(k):
    ops = []
    for r in range(4):
        for p in range(2):
            ops.append(("v", lambda r=r, p=p: k.vm(f"buffer_store_dwordx4 {vr(PQ[2*r+p],4)}, v{64+p}, {SRD_WS}, s{70+r} offen sc1", "pks")))
            if r < 3: ops.append(("a", lambda p=p: k.e(f"v_add_u32 v{64+p}, v{64+p}, v{62+p}")))
    ops.append(("v", lambda: k.vm(f"buffer_store_dwordx4 v[44:47], v68, {SRD_WS}, s74 offen sc1", "pks")))
    return ops

A_XF, A_K, A_V, A_Q = 36, 76, 86, 96
A_STA, A_STB, A_OP, A_DX, A_PA, A_ST, A_ACC = 104, 106, 144, 152, 153, 140, 184
class R0: XE, XO, SA, SB, CI, ONE, M, ATT, TMP = 3, 4, 5, 6, 28, 32, 52, (116, 160), 60
class R1: XE, XO, SA, SB, CI, ONE, M, ATT, TMP = 116, 117, 118, 119, 252, 124, 120, (228, 160), 28
A_U, A_PX = 226, 115
A11_ORDER = [2, 3, 1, 0, "h"]
A11_POS = {2: 3, 3: 0, 1: 1, 0: 2, "h": 3}
sODD, sCUR0, sCUR1, sCEXP = 40, 42, 44, 46

def a1_setup(k, layer):
    R = (R0, R1)[layer]
    real = k; out = []
    class Rec:
        def e(self, *t):
            if any(x.startswith("s_cmp") for x in t): out.append(lambda t=t: real.e(*t))
            else: out.extend(lambda x=x: real.e(x) for x in t)
    k = Rec()
    t16, g, tt, tb = R.TMP, R.TMP + 1, R.TMP + 2, R.TMP + 3
    x, y, z = R.ONE, R.ONE + 1, R.ONE + 2
    sa = L_SA0 if layer == 0 else L_SA1
    k.e(f"v_and_b32 v{t16}, 15, v1", f"v_lshrrev_b32 v{g}, 4, v1", f"v_and_b32 v{tt}, 7, v1", f"v_bfe_u32 v{tb}, v1, 3, 1")
    k.e(f"v_lshlrev_b32 v{tb}, 13, v{tb}")
    if layer == 0: k.e(f"v_add_u32 v{tb}, {L_X}, v{tb}")
    if layer == 0:
        k.e(f"v_and_b32 v{x}, 6, v{tt}", f"v_xor_b32 v{x}, v{x}, v{g}", f"v_lshlrev_b32 v{x}, 4, v{x}",
            f"v_lshl_add_u32 v{x}, v{tt}, 7, v{x}", f"v_add_u32 v{R.XE}, v{x}, v{tb}", f"v_xor_b32 v{R.XO}, 64, v{R.XE}")
    else:
        k.e(f"v_lshl_add_u32 v{x}, v{g}, 7, v{tb}", f"v_lshl_add_u32 v{R.XE}, v{tt}, 4, v{x}", f"v_add_u32 v{R.XO}, 512, v{R.XE}")
    k.e(f"v_lshlrev_b32 v{R.SA}, 3, v{t16}", f"v_add_u32 v{R.SA}, {sa}, v{R.SA}",
        f"v_lshlrev_b32 v{R.SB}, 5, v{g}", f"v_add_u32 v{R.SB}, {sa}, v{R.SB}")
    k.e(f"v_and_b32 v{x}, 1, v1", f"v_cmp_eq_u32 s[{sODD}:{sODD+1}], 1, v{x}",
        f"v_lshl_add_u32 v{y}, v{g}, 2, v{x}", f"v_cmp_le_u32 s[{sCUR0}:{sCUR0+1}], v{y}, v{t16}",
        f"v_add_u32 v{y}, 2, v{y}", f"v_cmp_le_u32 s[{sCUR1}:{sCUR1+1}], v{y}, v{t16}")
    k.e(f"v_mov_b32 v{y}, 0xffff", f"v_mov_b32 v{z}, 0xffff0000", f"v_cndmask_b32 v{y}, v{y}, v{z}, s[{sODD}:{sODD+1}]", f"v_mov_b32 v{z}, 0")
    k.e(f"v_cndmask_b32 v{R.M+2}, v{z}, v{y}, s[{sCUR0}:{sCUR0+1}]", f"v_cndmask_b32 v{R.M}, v{y}, v{z}, s[{sCUR0}:{sCUR0+1}]",
        f"v_cndmask_b32 v{R.M+3}, v{z}, v{y}, s[{sCUR1}:{sCUR1+1}]", f"v_cndmask_b32 v{R.M+1}, v{y}, v{z}, s[{sCUR1}:{sCUR1+1}]")
    k.e(f"s_cmp_eq_u32 s{sB}, 0", f"s_cselect_b32 s70, {f2u(-1e38):#x}, 0", f"s_mov_b32 s{sCEXP}, {f2u(0.25*LOG2E):#x}")
    for i in range(4): k.e(f"v_mov_b32 v{R.CI+i}, s70", f"v_mov_b32 v{R.ONE+i}, 0x3f803f80")
    return out

def o_bases(k, layer):
    k.e(f"s_lshl_b32 s32, s{sB}, 16", f"s_lshl_b32 s33, s{sCS}, 2", f"s_add_u32 s33, s33, s{sW}", "s_lshl_b32 s53, s33, 10",
        "s_add_u32 s32, s32, s53", f"s_add_u32 s53, s32, {BO[layer]}", "s_add_u32 s54, s53, 32768",
        f"s_lshl_b32 s32, s{sB}, 5", "s_add_u32 s32, s32, s33", "s_lshl_b32 s32, s32, 2", f"s_add_u32 s89, s32, {fl(layer, FL_O)}")

def ln_finish(a, s, q):
    a(f"v_mul_f32 v{s}, {f2u(-1/512):#x}, v{s}"); a(f"v_mul_f32 v{q}, {f2u(1/512):#x}, v{q}")
    a(f"v_fma_f32 v{q}, -v{s}, v{s}, v{q}"); a(f"v_max_f32 v{q}, 0, v{q}"); a(f"v_add_f32 v{q}, {f2u(1e-5):#x}, v{q}")

A_QS = 68
def fix_reads(k, R, t, S):
    i = 0 if t == "h" else t + 1
    return [lambda: k.ds(f"ds_read_b64 {vr(S,2)}, v{R.SA} offset:{i*128}", ("sa", t)),
            lambda: k.ds(f"ds_read_b128 {vr(S+2,4)}, v{R.SB} offset:{i*128}", ("sa", t)),
            lambda: k.ds(f"ds_read_b128 {vr(S+6,4)}, v{R.SB} offset:{i*128+16}", ("sa", t))]
def fix(k, R, fx, t, acc, at, pk, S=A_STA, pre=False, nxt=()):
    a = lambda txt, c=1, at=0: fx.add(lambda: k.e(txt), c, at)
    i = 0 if t == "h" else t + 1
    if not pre:
        for n, f in enumerate(fix_reads(k, R, t, S)): fx.add(f, 1, at - P.a1_salead if n == 0 else 0)
    fx.add(lambda: k.wait(lg=[("sa", t)]), 1, at)
    for f in nxt: fx.add(f)
    for r0, cs, dst in ((acc[0], CSQ, None if t == "h" else A_Q + 2*t), (acc[1], CSK, A_K + 2*i)):
        if dst is None: continue
        isq = cs == CSQ
        if pk:
            for h in (0, 2): a(f"v_pk_fma_f32 {vr(r0+h,2)}, {vr(S,2)}, {vr(cs+h,2)}, {vr(r0+h,2)} op_sel_hi:[0,1,1]")
            if not isq:
                for h in (0, 2): a(f"v_pk_mul_f32 {vr(r0+h,2)}, {vr(S,2)}, {vr(r0+h,2)} op_sel:[1,0] op_sel_hi:[1,1]")
        else:
            for r in range(4): a(f"v_fmac_f32 v{r0+r}, v{S}, v{cs+r}")
            if not isq:
                for r in range(4): a(f"v_mul_f32 v{r0+r}, v{S+1}, v{r0+r}")
        if isq: a(f"v_mul_f32 v{A_QS+t}, s{sCEXP}, v{S+1}")
        for h in range(2): a(f"v_cvt_pk_bf16_f32 v{dst+h}, v{r0+2*h}, v{r0+2*h+1}")
    r0 = acc[2]
    for r in range(4): a(f"v_fmac_f32 v{r0+r}, v{S+2+2*r}, v{CSV}")
    for r in range(4): a(f"v_mul_f32 v{r0+r}, v{S+3+2*r}, v{r0+r}")
    for h in range(2): a(f"v_cvt_pk_bf16_f32 v{A_V+2*i+h}, v{r0+2*h}, v{r0+2*h+1}")
    fx.add(lambda: (k.mark(("fix", t)), k.stamp(f"t0 fix{t}")), 0)

def attn(k, R, fx, t, B):
    SC, SP, PP, O, SUM, T = B, B + 4, B + 8, B + 12, B + 16, B + 20
    a = lambda txt, c=1: fx.add(lambda: k.e(txt), c)
    q = vr(A_Q + 2*t, 2)
    fx.dep(("fix", t)); fx.dep(("fix", t - 1 if t else "h")); fx.skip(1)
    a(f"{MF16S} {vr(SC,4)}, {vr(A_K+2*(t+1),2)}, {q}, 0", 2)
    a(f"{MF16S} {vr(SP,4)}, {vr(A_K+2*t,2)}, {q}, {vr(R.CI,4) if t == 0 else '0'}", 2)
    fx.skip(3)
    for rr, cur in ((0, sCUR0), (1, sCUR1)):
        a(f"v_cndmask_b32 v{T+2}, v{SC+2*rr}, v{SC+2*rr+1}, s[{sODD}:{sODD+1}]")
        a(f"v_cndmask_b32 v{T+3}, v{SP+2*rr}, v{SP+2*rr+1}, s[{sODD}:{sODD+1}]")
        a(f"v_cndmask_b32 v{T+rr}, v{T+3}, v{T+2}, s[{cur}:{cur+1}]")
    a(f"v_max_f32 v{T+2}, v{T}, v{T+1}"); a(f"v_mov_b32 v{T+3}, v{T+2}"); fx.skip(1)
    a(f"v_permlane16_swap_b32 v{T+2}, v{T+3}", 2); a(f"v_max_f32 v{T+2}, v{T+2}, v{T+3}"); a(f"v_mov_b32 v{T+3}, v{T+2}"); fx.skip(1)
    a(f"v_permlane32_swap_b32 v{T+2}, v{T+3}", 2); a(f"v_max_f32 v{T+2}, v{T+2}, v{T+3}")
    a(f"v_mul_f32 v{T+2}, v{A_QS+t}, v{T+2}")
    for rr in range(2): a(f"v_fma_f32 v{T+rr}, v{T+rr}, v{A_QS+t}, -v{T+2}")
    for rr in range(2): a(f"v_exp_f32 v{T+rr}, v{T+rr}", 2)
    for rr in range(2): a(f"v_cvt_pk_bf16_f32 v{T+rr}, v{T+rr}, v{T+rr}")
    a(f"v_and_b32 v{PP}, v{T}, v{R.M}"); a(f"v_and_b32 v{PP+1}, v{T+1}, v{R.M+1}")
    a(f"v_and_b32 v{PP+2}, v{T}, v{R.M+2}"); a(f"v_and_b32 v{PP+3}, v{T+1}, v{R.M+3}")
    fx.skip(1)
    a(f"{MF16} {vr(SUM,4)}, {vr(R.ONE,4)}, {vr(PP,4)}, 0", 2)
    a(f"{MF16} {vr(O,4)}, {vr(A_V+2*t,4)}, {vr(PP,4)}, 0", 2)
    fx.skip(3)
    a(f"v_rcp_f32 v{T}, v{SUM}", 2); fx.skip(1)
    for r in range(4): a(f"v_mul_f32 v{O+r}, v{T}, v{O+r}")
    for h in range(2): a(f"v_cvt_pk_bf16_f32 v{A_OP+2*t+h}, v{O+2*h}, v{O+2*h+1}")
    fx.add(lambda: (k.mark(("attn", t)), k.stamp(f"t0 attn{t}")), 0)

def ostore(k, fx, pair):
    b = A_OP + 4 * pair
    fx.dep(("attn", 2*pair)); fx.dep(("attn", 2*pair + 1))
    fx.dep("po1" if pair == 0 else "blank")
    fx.skip(1)
    fx.add(lambda: k.e(f"v_permlane16_swap_b32 v{b}, v{b+2}"), 2); fx.add(lambda: k.e(f"v_permlane16_swap_b32 v{b+1}, v{b+3}"), 2)
    fx.add(lambda: (k.dstore(f"buffer_store_dwordx4 {vr(b,4)}, v{vL16}, {SRD_WS}, s{53+pair} offen", ("ost", pair)), k.mark(("ost", pair))))

Z_WD, Z_TR, Z_HE, Z_HO, Z_OE, Z_OO = 164, 165, 166, 167, 168, 169
Z_XF, Z_SUM, Z_GR, Z_SUMH, Z_GRH, Z_CV = 104, 240, 244, 248, 252, 100
P.k_first = 4; P.k_prep = 13
P.k_look, P.k_atom, P.k_bar, P.k_vgap, P.k_pst, P.k_pgap = 3, 6, 3, 3, 3, 0
NS0 = 6
def z_acc(t):
    if t == "h": return (None, A_ACC + 48, A_ACC + 52)
    return (A_ACC + 12*t, A_ACC + 12*t + 4, A_ACC + 12*t + 8)

def a10_lanes(k):
    k.e("v_lshrrev_b32 v60, 3, v1", "v_and_b32 v61, 6, v60", "v_and_b32 v62, 7, v1", "v_xor_b32 v61, v61, v62",
        "v_lshlrev_b32 v61, 4, v61", f"v_lshl_add_u32 v{A_DX}, v60, 10, v61")
    k.e("v_and_b32 v61, 2, v60", f"s_and_b32 s32, s{sW}, 1", "s_lshl_b32 s32, s32, 2", "v_or_b32 v61, s32, v61", "v_xor_b32 v61, v61, v62",
        "v_lshlrev_b32 v61, 4, v61", "v_mul_u32_u24 v60, 3072, v60", f"v_add_u32 v{Z_WD}, v60, v61")
    if P.rot == 0: k.e(f"s_add_u32 s{sROT}, s{sB}, s{sCS}")
    elif P.rot == 1: k.e(f"s_lshl_b32 s32, s{sB}, 1", f"s_bfe_u32 s33, s{sB}, 0x10002", "s_add_u32 s32, s32, s33", f"s_add_u32 s{sROT}, s32, s{sCS}")
    elif P.rot == 2: k.e(f"s_lshl_b32 s32, s{sB}, 1", f"s_add_u32 s{sROT}, s32, s{sCS}")
    elif P.rot == 3: k.e(f"s_mov_b32 s{sROT}, s{sCS}")
    elif P.rot == 4: k.e(f"s_lshl_b32 s32, s{sB}, 1", f"s_bfe_u32 s33, s{sB}, 0x10002", f"s_add_u32 s{sROT}, s32, s33")
    elif P.rot == 5: k.e(f"s_mov_b32 s{sROT}, 0")
    k.e(f"s_and_b32 s{sROT}, s{sROT}, 7")
    k.e(f"s_lshl_b32 s47, s{sB}, 3", "s_sub_u32 s48, s47, 2", "s_max_i32 s48, s48, 0", f"s_and_b32 s32, s{sW}, 1", "s_add_u32 s48, s48, s32",
        "s_lshl_b32 s48, s48, 13", f"s_lshl_b32 s32, s{sW}, 1", "s_add_u32 s47, s47, s32", "s_lshl_b32 s47, s47, 13")
    k.e(f"s_mul_i32 s51, s{sW}, {8*3072}", f"s_lshl_b32 s32, s{sCS}, 7", "s_add_u32 s51, s51, s32", f"s_mul_i32 s52, s{sW}, 3072")
    k.e(f"s_lshl_b32 s49, s{sW}, 14", f"s_and_b32 s32, s{sW}, 1", "s_lshl_b32 s50, s32, 13", f"s_lshr_b32 s32, s{sW}, 1",
        "s_lshl_b32 s33, s32, 10", "s_add_u32 s50, s50, s33", f"s_add_u32 s90, s32, s{sROT}")

def a10_x(k, c):
    S = lambda *t: [("s", lambda x=x: k.e(x)) for x in t]
    ld = lambda: k.vm(f"buffer_load_dwordx4 v{A_DX}, {SRD_X}, s33 offen {P.x_mod} lds", ("x", c))
    ops = S(f"s_add_u32 s33, s{sROT}, {c}", "s_and_b32 s33, s33, 7", "s_lshl_b32 s33, s33, 7", f"s_add_u32 m0, s49, {L_X + c*1024}", "s_add_u32 s33, s33, s47")
    ops += [("v", ld)] + S(f"s_add_u32 m0, s49, {L_X + 8192 + c*1024}", "s_add_u32 s33, s33, 8192") + [("v", ld)]
    if c % 2 == 0:
        ops += S(f"s_add_u32 s33, s90, {c}", "s_and_b32 s33, s33, 7", "s_lshl_b32 s33, s33, 7", f"s_add_u32 m0, s50, {L_XH0 + c*1024}", "s_add_u32 s33, s33, s48") + [("v", ld)]
    return ops

def a10_w(k, s):
    S = lambda *t: [("s", lambda x=x: k.e(x)) for x in t]
    if s & 1: ops = S(f"s_add_u32 m0, s52, {(s % NS0)*12288}", f"s_add_u32 s63, s63, {32*3072}")
    else: ops = S(f"s_add_u32 s63, s{sROT}, {s>>1}", "s_and_b32 s63, s63, 7", f"s_mul_i32 s63, s63, {64*3072}", f"s_add_u32 m0, s52, {(s % NS0)*12288}", "s_add_u32 s63, s63, s51")
    for p in range(3): ops.append(("v", lambda p=p: k.vm(f"buffer_load_dwordx4 v{Z_WD}, {SRD_QKV}, s63 offen offset:{p*1024} {P.w_mod} lds", ("w", s))))
    return ops
def run(ops):
    for _, f in ops: f()

def fill(k, mains, streams, cap=2):
    lastv = -99
    for g, m in enumerate(mains):
        m(); k.gap = g
        for a, o in streams:
            if a <= g and o and o[0][0] == "s": o.pop(0)[1](); break
        room = cap; nd = 0
        if g - lastv >= P.k_vgap and k.bg_step(): room -= 1; lastv = g
        while room > 0:
            pick = None
            for a, o in streams:
                if a > g or not o: continue
                t = o[0][0]
                if t == "d" and nd >= 1: continue
                if t == "v" and g - lastv < P.k_vgap: continue
                pick = o; break
            if pick is None: break
            t, f = pick.pop(0); f(); room -= 2 if t == "b" else 1
            if t == "d": nd += 1
            if t == "v": lastv = g
    for a, o in streams: run(o)

def a10_lanes2(k):
    k.e("v_lshrrev_b32 v60, 4, v1", "v_bfe_u32 v61, v1, 2, 2", "v_and_b32 v62, 1, v60", "v_lshlrev_b32 v62, 1, v62",
        "v_lshrrev_b32 v63, 1, v61", "v_or_b32 v62, v62, v63", f"v_xor_b32 v62, s{sW}, v62", "v_lshlrev_b32 v62, 5, v62",
        "v_mul_u32_u24 v60, 3072, v60", "v_lshl_add_u32 v60, v61, 7, v60", "v_add_u32 v60, v60, v62",
        "v_and_b32 v61, 3, v1", f"v_lshl_add_u32 v{Z_TR}, v61, 3, v60")
    k.e("v_and_b32 v60, 15, v1", "v_cmp_eq_u32 s[78:79], 0, v60")
    k.e(f"v_subrev_u32 v{Z_HE}, 16384, v{R0.XE}", f"v_subrev_u32 v{Z_HO}, 16384, v{R0.XO}",
        f"v_add_u32 v{Z_OE}, s49, v{R0.XE}", f"v_add_u32 v{Z_OO}, s49, v{R0.XO}")

def a10_loop(k, first):
    LA = P.k_look
    def sync(s, extra=()):
        k.wait(vm=[("w", s), ("x", s >> 1)] + list(extra)); k.e("s_barrier")
    nxt = [first]
    def dmas(upto):
        out = []
        while nxt[0] <= min(upto, 15):
            n = nxt[0]; nxt[0] += 1
            if n % 2 == 0: out += a10_x(k, n // 2)
            out += a10_w(k, n)
        return out
    def reads(s):
        fb = Z_XF + 24 * (s & 1); off = (s >> 1) * 1024; o = s & 1
        tr = lambda p, j: ("d", lambda: k.ds(f"ds_read_b64_tr_b16 {ar(12*s+4*p+2*j,2)}, v{Z_TR} offset:{(s%NS0)*12288 + p*1024 + j*512}", ("r", s, 0 if p == 0 else 1)))
        xr = lambda d, a, of, grp: ("d", lambda: k.ds(f"ds_read_b128 {vr(d,4)}, v{a} offset:{of}", ("r", s, grp)))
        out = [tr(0, 0), tr(0, 1)] + [xr(fb + 4*t, R0.XO if o else R0.XE, t*16384 + off, 0) for t in range(4)]
        out += [tr(1, 0), tr(1, 1), tr(2, 0), tr(2, 1), xr(fb + 16, Z_HO if o else Z_HE, off, 1), xr(fb + 20, Z_OO if o else Z_OE, off, 1)]
        return out
    l0_background(k)
    pst = pack_stores(k)
    sync(0)
    k.stamp("k0")
    run(reads(0)); run(dmas(LA - 1))
    for s in range(16):
        fb = Z_XF + 24 * (s & 1)
        c = lambda r: "0" if s == 0 else vr(r, 4)
        wq, wk, wv, one = ar(12*s, 4), ar(12*s + 4, 4), ar(12*s + 8, 4), vr(R0.ONE, 4)
        ms = [f"{MF16} {vr(z_acc(t)[0],4)}, {wq}, {vr(fb+4*t,4)}, {c(z_acc(t)[0])}" for t in range(4)]
        for t in [0, 1, 2, 3, "h"]:
            xf = vr(fb + (16 if t == "h" else 4*t), 4)
            ms.append(f"{MF16} {vr(z_acc(t)[1],4)}, {wk}, {xf}, {c(z_acc(t)[1])}")
            ms.append(f"{MF16} {vr(z_acc(t)[2],4)}, {xf}, {wv}, {c(z_acc(t)[2])}")
        ms += [f"{MF16} {vr(Z_CV,4)}, {wq}, {vr(fb+16,4)}, {c(Z_CV)}",
               f"{MF16} {vr(Z_SUM,4)}, {one}, {vr(fb+20,4)}, {c(Z_SUM)}", f"{MF16} {vr(Z_GR,4)}, {vr(fb+20,4)}, {vr(fb+20,4)}, {c(Z_GR)}",
               f"{MF16} {vr(Z_SUMH,4)}, {one}, {vr(fb+16,4)}, {c(Z_SUMH)}", f"{MF16} {vr(Z_GRH,4)}, {vr(fb+16,4)}, {vr(fb+16,4)}, {c(Z_GRH)}"]
        mains = [lambda m=m: k.e(m) for m in ms]
        k.wait(lg=[("r", s, 0)])
        streams = [(3, [("s", lambda: k.wait(lg=[("r", s, 1)]))] +
                       [("a", lambda d=d: k.e(f"v_cndmask_b32 v{fb+16+d}, v{fb+16+d}, v{R0.ONE}, s[78:79]")) for d in range(4)])]
        if s + 1 < 16:
            ex = ["pks"] if s + 1 == P.k_atom else []
            assert not ex or not pst, "arrival before the last pack store"
            assert P.k_prep > 14 - LA
            ops = [("b", lambda: sync(s + 1, ex))] + reads(s + 1)
            if ex: ops.append(("b", lambda: arrive(k)))
            streams.append((P.k_bar, ops))
            streams.append((0, dmas(s + LA)))
        n = 0; mine = []
        while pst and (n < P.k_pst or pst[0][0] == "a"):
            n += pst[0][0] == "v"; mine.append(pst.pop(0))
        streams.append((P.k_pgap, mine))
        if s == P.k_prep: streams.append((6, tail_prep(k)))
        if s == P.k_touch:
            streams.append((2, [("b", lambda: k.touch(157, "p", ["s_mov_b32 s32, s53"], False)),
                                ("b", lambda: k.touch(158, "q", [f"s_add_u32 s32, s64, {BX1[0]}"], False)),
                                ("b", lambda: k.touch(159, "h", h_base("s32", 0), False) if P.h_touch0 == "k" else None)]))
        if s == P.k_gb: streams.append((1, [("v", lambda t=t: k.vm(t, "gb")) for t in GB_LOADS]))
        if s == P.k_chk: streams.append((1, [("b", lambda: rendezvous(k))]))
        if s == 15 and P.k_chk < 16:
            streams.append((max(P.k_bar, 4), [("b", lambda: (k.e("s_barrier"), k.mark("xfree")))]))
        fill(k, mains, streams)
        if s in (3, 7, 11): k.stamp(f"k{s+1}")
    k.stamp("k16")
    if P.k_chk >= 16: rendezvous(k)

GB_LOADS = [f"buffer_load_dwordx4 {vr(36+4*j,4)}, v{vL16}, {SRD_WS}, s75 offen offset:{j*1024} sc1" for j in range(4)] + \
           [f"buffer_load_dword v{vP}, v172, {SRD_WS}, s77 offen offset:8 sc1"]
def arrive(k):
    k.wait(vm=["tag"])
    k.e(f"v_readfirstlane_b32 s{sTAG}, v170", f"s_cmp_eq_u32 s{sTAG}, 0", "s_cbranch_scc1 L_tag_spin ;np", "L_tag_ok: ;np")
    k.spins += ["L_tag_spin:", f"s_sub_u32 s{sBUD}, s{sBUD}, 1", "s_cbranch_scc1 L_tag_give", f"buffer_load_dword v170, v{vFA}, {SRD_DBG}, 0 offen sc1",
                "s_waitcnt vmcnt(0)", f"v_readfirstlane_b32 s{sTAG}, v170", f"s_cmp_eq_u32 s{sTAG}, 0", "s_cbranch_scc1 L_tag_spin", "s_branch L_tag_ok",
                "L_tag_give:", f"s_mov_b32 s{sBUD}, 0", "s_branch L_tag_ok"]
    k.e(f"v_mov_b32 v176, s{sTAG}", "v_not_b32 v177, v176", f"v_mov_b32 v178, s{sXCC}")
    k.vm(f"buffer_store_dwordx4 v[176:179], v171, {SRD_WS}, s75 offen sc1", "arr")

def rendezvous(k):
    chk = [f"s_not_b32 s32, s{sTAG}"]
    for j in range(4): chk += [f"v_xor_b32 v{36+4*j}, s{sTAG}, v{36+4*j}", f"v_xor_b32 v{37+4*j}, s32, v{37+4*j}"]
    chk += ["v_or3_b32 v36, v36, v37, v40", "v_or3_b32 v44, v44, v45, v41", "v_or3_b32 v36, v36, v48, v49", "v_or_b32 v36, v36, v44", "v_cmp_ne_u32 vcc, 0, v36"]
    k.wait(vm=["gb"])
    k.e(*chk); k.e("s_cbranch_vccnz L_gb_spin ;np", "L_gb_ok: ;np")
    k.spins += ["L_gb_spin:", f"s_sub_u32 s{sBUD}, s{sBUD}, 1", "s_cbranch_scc1 L_gb_give", "s_sleep 2",
                f"buffer_load_dword v170, v{vFA}, {SRD_DBG}, 0 offen sc1", "s_waitcnt vmcnt(0)", "v_readfirstlane_b32 s32, v170", f"s_cmp_eq_u32 s32, s{sTAG}",
                "s_cbranch_scc1 L_gb_same", f"s_mov_b32 s{sTAG}, s32", f"v_mov_b32 v176, s{sTAG}", "v_not_b32 v177, v176",
                f"buffer_store_dwordx4 v[176:179], v171, {SRD_WS}, s75 offen sc1", "L_gb_same:"] + GB_LOADS + ["s_waitcnt vmcnt(0)"] + chk + \
               ["s_cbranch_vccnz L_gb_spin", "s_branch L_gb_ok", "L_gb_give:", f"s_mov_b32 s{sBUD}, 0", "s_branch L_gb_ok"]
    k.e(f"v_cmp_ne_u32 vcc, s{sXCC}, v{vP}", "s_and_b32 s99, vcc_lo, 0xffff" if not P.safe else "s_and_b32 s99, 1, 1",
        f"s_cselect_b32 s{sML}, {OOB>>1:#x}, 0", f"s_cselect_b32 s{sMS}, 0, {OOB>>1:#x}")
    k.mark("gb")

W_OA, W_UA, W_SA, W_RB = 152, 154, 155, 156
def wo_bases(k):
    k.e(f"s_lshl_b32 s32, s{sB}, 2", f"s_add_u32 s32, s32, s{sW}", "s_lshl_b32 s64, s32, 14", f"s_lshl_b32 s33, s{sCS}, 10", "s_add_u32 s64, s64, s33",
        "s_lshr_b32 s32, s32, 1", "s_lshl_b32 s80, s32, 15", "s_lshl_b32 s65, s32, 11", "s_lshl_b32 s66, s32, 3", f"s_add_u32 s66, s66, s{sCS}", "s_lshl_b32 s66, s66, 1",
        f"s_and_b32 s32, s{sW}, 1", "s_add_u32 s66, s66, s32", "s_lshl_b32 s66, s66, 2", "s_lshl_b32 s32, s32, 8", "s_add_u32 s80, s80, s32", "s_add_u32 s65, s65, s32",
        f"s_lshr_b32 s32, s{sCS}, 1", "s_lshl_b32 s32, s32, 9", "s_add_u32 s65, s65, s32", f"s_and_b32 s32, s{sCS}, 1", "s_lshl_b32 s32, s32, 3", "s_add_u32 s65, s65, s32")
def wo_lanes(k):
    x, y = 66, 67
    return [lambda t=t: k.e(*t) for t in (
        [f"v_and_b32 v{x}, 15, v1"], [f"v_lshrrev_b32 v{y}, 4, v1"], [f"v_lshlrev_b32 v{W_OA}, 4, v{x}"], [f"v_lshl_add_u32 v{W_SA}, v{y}, 2, v{W_OA}"],
        [f"v_lshl_add_u32 v{W_OA}, v{y}, 9, v{W_OA}"], [f"v_and_b32 v{W_UA}, 7, v1"], [f"v_lshlrev_b32 v{W_UA}, 4, v{W_UA}"], [f"v_lshl_add_u32 v{W_UA}, v{y}, 7, v{W_UA}"],
        [f"v_lshrrev_b32 v{x}, 3, v{x}"], [f"v_lshl_add_u32 v{W_UA}, v{x}, 13, v{W_UA}"], [f"v_add_u32 v{W_RB}, {6*16384}, v{vL16}"],
        ["v_cmp_gt_u32 vcc, 32, v1", f"v_mov_b32 v{y}, {OOB:#x}", f"v_cndmask_b32 v{W_SA}, v{y}, v{W_SA}, vcc"])]
def blanks(k, layer):
    if not P.tags: return [lambda: k.mark("blank")]
    z = 66
    return [lambda: (k.e(f"v_mov_b32 v{z}, -1"), k.dstore(f"buffer_store_dword v{z}, v{vL16}, {SRD_WS}, s53 offen", "blank")),
            lambda: (k.e(f"s_add_u32 s58, s64, {BX1[layer]}"), k.dstore(f"buffer_store_dword v{z}, v{W_UA}, {SRD_WS}, s58 offen", "blank")),
            lambda: k.dstore(f"buffer_store_dword v{z}, v{W_UA}, {SRD_WS}, s58 offen offset:512", "blank"),
            lambda: (k.e(f"s_add_u32 s58, s65, {BS1[layer]}"), k.dstore(f"buffer_store_dword v{z}, v{W_SA}, {SRD_WS}, s58 offen", "blank"), k.mark("blank"))]
def wo_prepoll(k, layer):
    k.poll_addr(A_PA, 32)
    k.e(f"s_lshl_b32 s32, s{sB}, 7", f"s_add_u32 s{sPO}, s32, {fl(layer, FL_O)}", f"s_add_u32 s59, s80, {BO[layer]}")
    k.bg_held = True
    k.poll_issue(A_PA, "po1"); k.mark("po1")

def dna(k): return regloads(k, sDS, 0, lambda j: ar(192 + 4*j, 4), 16, "dna")

def tail_prep(k):
    R = R0
    A = lambda *t: [("a", lambda x=x: k.e(x)) for x in t]
    B = lambda *t: [("b", lambda: k.e(*t))]
    ops = A("v_and_b32 v73, 15, v1", "v_lshrrev_b32 v74, 4, v1", "v_lshlrev_b32 v73, 10, v73", "v_lshl_add_u32 v73, v74, 4, v73")
    ops += B(f"s_lshl_b32 s58, s{sB}, 2", f"s_add_u32 s58, s58, s{sW}", "s_lshl_b32 s58, s58, 14", f"s_lshl_b32 s59, s{sCS}, 7", "s_add_u32 s58, s58, s59")
    ops += [("v", lambda p=p: k.vm(f"buffer_load_dwordx4 {vr(RES+4*p,4)}, v73, {SRD_X}, s58 offen offset:{p*64}", "res")) for p in range(2)]
    ops += A("v_and_b32 v75, 3, v1", "v_cmp_eq_u32 s[34:35], 1, v75", "v_cmp_eq_u32 s[36:37], 2, v75", "v_cmp_eq_u32 s[38:39], 3, v75", "v_bfe_u32 v75, v1, 2, 2")
    ops += B("v_cmp_eq_u32 vcc, v75, v74", f"v_mov_b32 v72, {L_SA0 + 768}", f"s_lshl_b32 s59, s{sW}, 7", f"v_add_u32 v74, s59, v{R.SA}",
             "v_cndmask_b32 v74, v72, v74, vcc", f"v_cndmask_b32 v75, v72, v{R.SA}, vcc")
    return ops + [("a", f) for f in wo_lanes(k)]

def l0_background(k):
    k.per = dict(P.per_k)
    dd = dna(k)
    bg_list(k, dd[:P.dna_first], "s4", "dna", "gb")
    bg_list(k, wow(k), "s4", "wow", "xfree")
    bg_batches(k, [0, 1, 2, 3], "s2", lambda b: "xfree")
    bg_batches(k, [4], "s2", lambda b: "wobar")
    bg_batches(k, [5], "s2", lambda b: "xfree")
    bg_batches(k, [6, 7, 8, 9], "s2", lambda b: "gubar")
    bg_list(k, dd[P.dna_first:], "s4", "dna")
P.per_k = {"s2": 90, "s4": 70}

def a10_tail(k):
    R = R0
    k.per = dict(P.per_tail0)
    k.stamp("t0 gb")
    k.touch(72, "t", [f"s_add_u32 s32, s65, {BS1[0]}"])
    k.bg_burst(2)
    hk, hv = z_acc("h")[1], z_acc("h")[2]
    for r in range(4):
        k.e(f"v_mov_b32_dpp v{CSQ+r}, v{Z_CV+r} row_newbcast:0 row_mask:0xf bank_mask:0xf", f"v_mov_b32_dpp v{CSK+r}, v{hk+r} row_newbcast:0 row_mask:0xf bank_mask:0xf")
    k.e(f"v_mov_b32 v{CSV}, v{hv}", f"v_mov_b32 v45, v{hv}", f"v_permlane16_swap_b32 v{CSV}, v45", f"v_mov_b32 v45, v{CSV}", f"v_permlane32_swap_b32 v{CSV}, v45")
    fa = Flex(); fb = Flex()
    for fx, S, G, ad, off in ((fa, Z_SUM, Z_GR, 74, 128), (fb, Z_SUMH, Z_GRH, 75, 0)):
        a = lambda txt, c=1, fx=fx: fx.add(lambda: k.e(txt), c)
        a(f"v_cndmask_b32 v{S+1}, v{G}, v{G+1}, s[34:35]"); a(f"v_cndmask_b32 v{S+1}, v{S+1}, v{G+2}, s[36:37]"); a(f"v_cndmask_b32 v{S+1}, v{S+1}, v{G+3}, s[38:39]")
        ln_finish(a, S, S + 1); a(f"v_rsq_f32 v{S+1}, v{S+1}"); fx.skip(1)
        fx.add(lambda S=S, ad=ad, off=off: k.ds(f"ds_write_b64 v{ad}, {vr(S,2)} offset:{off}", "saw"))
    drain([fa, fb], k)
    for f in blanks(k, 0): f()
    k.wait(lg="all"); k.e("s_barrier"); k.mark("xfree")
    k.stamp("t0 bar")
    fx = Flex(); f1 = Flex(); f2 = Flex()
    od = (2, 1, 3, 0, "h"); Ss = (A_STA, 56)
    for f in fix_reads(k, R, od[0], Ss[0]): f()
    for n, t in enumerate(od):
        fix(k, R, fx, t, z_acc(t), 0, True, Ss[n & 1], True, fix_reads(k, R, od[n + 1], Ss[~n & 1]) if n < 4 else ()); fx.skip(1)
    attn(k, R, f1, 2, R.ATT[0]); attn(k, R, f2, 3, R.ATT[1]); ostore(k, f2, 1)
    attn(k, R, f1, 1, R.ATT[0]); attn(k, R, f2, 0, R.ATT[1]); ostore(k, f2, 0)
    f3 = Flex(); f3.dep(("ost", 1))
    for _ in range(P.l0_flag_delay): f3.skip(1)
    f3.add(lambda: (k.wait(vm=[("ost", 1)]), k.flag(1, 89), k.mark("oflag1")))
    f3.dep(("attn", 0)); f3.add(lambda: wo_prepoll(k, 0))
    drain([fx, f1, f2, f3], k)
    k.stamp("a1 end")
P.l0_flag_delay = 6; P.dna_first = 2
P.per_tail0 = {"s2": 70, "s4": 45}

def a11_bases(k):
    out = []
    S = lambda *t: out.extend(lambda x=x: k.e(x) for x in t)
    S(f"s_lshr_b32 s70, s{sW}, 1", "s_lshl_b32 s49, s70, 13", f"s_and_b32 s71, s{sW}, 1", "s_lshl_b32 s71, s71, 2",
      f"s_add_u32 s50, s71, s{sROT}", "s_lshl_b32 s71, s71, 10")
    for i in range(4):
        S(f"s_add_u32 s70, s50, {i}", "s_and_b32 s70, s70, 7", "s_lshl_b32 s70, s70, 10", "s_add_u32 s70, s70, s49", f"s_sub_u32 s{92+i}, s70, {i*1024}")
    S("s_add_u32 s49, s49, s71", f"s_lshl_b32 s47, s{sB}, 16", f"s_add_u32 s47, s47, {WS_X[1]}")
    S(f"s_sub_u32 s48, s{sB}, 1", "s_max_i32 s48, s48, 0", "s_lshl_b32 s51, s48, 10", f"s_add_u32 s51, s51, {WS_HST}",
      "s_lshl_b32 s52, s48, 11", f"s_add_u32 s52, s52, {WS_HXF}", "s_lshl_b32 s48, s48, 14", f"s_add_u32 s48, s48, {WS_HALO}")
    S("v_lshrrev_b32 v28, 4, v1", "v_and_b32 v29, 15, v1", "v_lshlrev_b32 v29, 4, v29", f"v_lshl_add_u32 v{A_U}, v28, 9, v29", f"v_lshl_add_u32 v{A_U+1}, v28, 8, v29")
    S(f"s_lshl_b32 s70, s{sB}, 12", f"s_and_b32 s71, s{sW}, 1", "s_lshl_b32 s71, s71, 8", "s_add_u32 s70, s70, s71", f"s_add_u32 s90, s70, {WS_ST[1]}")
    out.append(lambda: k.e(f"s_lshl_b32 s70, s{sB}, 1", f"s_add_u32 s70, s70, s{sW}", "s_lshl_b32 s72, s70, 13", f"s_lshl_b32 s71, s{sCS}, 10", "s_add_u32 s72, s72, s71",
        f"s_add_u32 s72, s72, {WS_HALO - 16384}", f"s_cmp_ge_u32 s{sW}, 2", f"s_cselect_b32 s72, s72, {OOB>>1:#x}"))
    out.append(lambda: k.e(f"s_lshl_b32 s73, s{sB}, 10", f"s_lshr_b32 s71, s{sCS}, 1", "s_lshl_b32 s71, s71, 8", "s_add_u32 s73, s73, s71", f"s_and_b32 s71, s{sCS}, 1",
        "s_lshl_b32 s71, s71, 3", "s_add_u32 s73, s73, s71"))
    out.append(lambda: k.e(f"s_lshl_b32 s71, s{sW}, 7", "s_add_u32 s73, s73, s71", f"s_add_u32 s73, s73, {WS_HST - 256}",
        f"s_cmp_ge_u32 s{sW}, 2", f"s_cselect_b32 s73, s73, {OOB>>1:#x}"))
    out.append(lambda: k.e(f"s_lshl_b32 s70, s{sB}, 3", f"s_add_u32 s70, s70, s{sCS}", "s_lshl_b32 s70, s70, 1", f"s_add_u32 s70, s70, s{sW}", "s_lshl_b32 s70, s70, 7",
        f"s_add_u32 s70, s70, {WS_HXF - 256}", f"s_cmp_ge_u32 s{sW}, 2", f"s_cselect_b32 s91, s70, {OOB>>1:#x}"))
    return out

def a11_x(k, tile):
    fns = []
    for i in range(4):
        def f(i=i):
            k.set_m0(f"s_add_u32 m0, s49, {A11_POS[tile]*16384}")
            k.e(f"s_add_u32 s32, s{48 if tile == 'h' else 47}, s{92+i}")
            if tile not in (0, "h"): k.e(f"s_add_u32 s32, s32, {tile*16384}")
            k.vm(f"buffer_load_dwordx4 v{vL16}, {SRD_WS}, s32 offen offset:{i*1024} sc1 lds", ("x", tile))
        fns.append(f)
    return fns

def stats_path(k, fx, S, tag, addr, tok, at=0):
    a = lambda txt, c=1: fx.add(lambda: k.e(txt), c)
    s, q = S, S + 1
    fx.add(lambda: k.wait(vm=[tag]), 1, at)
    a(f"v_add_f32 v{s}, v{s}, v{S+2}"); a(f"v_add_f32 v{q}, v{q}, v{S+3}"); fx.skip(1)
    a(f"v_permlane16_swap_b32 v{s}, v{q}", 2); a(f"v_add_f32 v{s}, v{s}, v{q}"); a(f"v_mov_b32 v{q}, v{s}"); fx.skip(1)
    a(f"v_permlane32_swap_b32 v{s}, v{q}", 2); a(f"v_add_f32 v{s}, v{s}, v{q}"); a(f"v_mov_b32 v{q}, v{s}"); fx.skip(1)
    a(f"v_permlane16_swap_b32 v{s}, v{q}", 2)
    ln_finish(a, s, q); a(f"v_rsq_f32 v{q}, v{q}", 2); fx.skip(1)
    fx.add(lambda: (k.ds(f"ds_write_b64 v{addr}, {vr(s,2)} offset:{tok*8}", ("saw", tag)), k.mark(("saw", tag))))

def a11_early(k):
    k.vm(f"buffer_load_dwordx4 {vr(A_ST,4)}, v{A_U}, {SRD_WS}, s90 offen offset:2048 sc1", "st0")
    for t in A11_ORDER[:2]:
        for f in a11_x(k, t): f()

def a11_main(k):
    R = R1; order = A11_ORDER
    steps = [(t, s) for t in order for s in range(16)]
    accof = lambda t: A_ACC + 12 * (order.index(t) % 3)
    def xread(i):
        t, s = steps[i]
        off = A11_POS[t] * 16384 + (s >> 1) * 1024
        k.ds(f"ds_read_b128 {vr(A_XF+4*(i%4),4)}, v{R.XO if s&1 else R.XE} offset:{off}", ("xf", i))
    mains = []; fixed = {}; gap_of = {}
    need_sa = {order[1]: ["st0"], order[2]: ["st1"], order[3]: [], "h": []}
    for i, (t, s) in enumerate(steps):
        acc = accof(t); xf = vr(A_XF + 4*(i % 4), 4)
        c = lambda r, s=s: "0" if s == 0 else vr(r, 4)
        ms = []
        if t != "h": ms.append(f"{MF16} {vr(acc,4)}, {ar(12*s,4)}, {xf}, {c(acc)}")
        ms.append(f"{MF16} {vr(acc+4,4)}, {ar(12*s+4,4)}, {xf}, {c(acc+4)}")
        ms.append(f"{MF16} {vr(acc+8,4)}, {xf}, {ar(12*s+8,4)}, {c(acc+8)}")
        gap_of[(t, s)] = len(mains)
        for m in ms: mains.append(lambda m=m: k.e(m))
        last = len(mains) - 1
        fl_ = fixed.setdefault(last, [])
        if i + 1 < len(steps): fl_.append((0, lambda i=i: k.wait(lg=[("xf", i + 1)])))
        j = i + 4
        if j < len(steps):
            tj, sj = steps[j]
            if sj == 0:
                def bar(tj=tj):
                    k.wait(vm=[("x", tj)], lg=[("saw", n) for n in need_sa[tj]]); k.e("s_barrier"); k.mark(("bar", tj))
                fixed.setdefault(gap_of[(t, s)], []).append((1, bar))
            fixed[last].append((1, lambda j=j: xread(j)))
    fx = Flex(); fz = Flex(); fz2 = Flex(); fy = Flex(); fm = Flex()
    k.e(f"s_and_b32 s32, s{sW}, 1", "s_lshl_b32 s32, s32, 7", f"v_add_u32 v7, s32, v{R.SA}")
    o_bases(k, 1)
    stats_path(k, fy, A_ST, "st0", 7, 48)
    g1 = P.a1_late_gap
    fm.add(lambda: (k.wait(vm=[("xst", 1)]), k.flag(2)), 3, P.a1_flag_gap)
    fm.add(lambda: (k.poll_issue(A_PX, "px2"), setattr(k, "bg_held", not P.a1_bg_early)), 1, g1 - P.a1_poll_lead)
    fm.add(lambda: k.poll_check(A_PX, "px2", 2), 2, g1)
    fm.add(lambda: k.vm(f"buffer_load_dwordx4 {vr(56,4)}, v{A_U}, {SRD_WS}, s90 offen sc1", "st1"))
    for t in order[2:4]:
        for f in a11_x(k, t): fm.add(f, 2); fm.skip(P.a1_xgap)
    for f in wo_lanes(k): fy.add(f)
    fy.add(lambda: k.mark("wolanes"), 0)
    fm.dep("wolanes")
    fm.add(lambda: k.e(f"s_add_u32 s58, s64, {WS_X[1]}"))
    for p in range(2): fm.add(lambda p=p: k.vm(f"buffer_load_dwordx4 {vr(RES+4*p,4)}, v{W_UA}, {SRD_WS}, s58 offen offset:{p*512} sc1", "res")); fm.skip(P.a1_xgap)
    def halo_poll():
        k.poll_addr(A_PX, 16, 7)
        k.e(f"s_mov_b32 s{sPO}, s52", f"s_min_u32 s50, s{sB}, 1")
        k.poll_issue(A_PX, "phx"); k.bg_held = False
    fm.add(halo_poll, 3)
    if P.touch1 in (1, 2):
        fm.add(lambda: k.touch(60, "p", ["s_mov_b32 s32, s53"]), 6)
        fm.add(lambda: k.touch(62, "q", [f"s_add_u32 s32, s64, {BX1[1]}"]), 6)
        fm.add(lambda: k.touch(64, "t", [f"s_add_u32 s32, s65, {BS1[1]}"]), 4)
        if P.touch1 > 1: fm.add(lambda: k.touch(66, "h", h_base("s32", 1)), 6)
    for f in blanks(k, 1): fm.skip(P.a1_xgap); fm.add(f, 3)
    stats_path(k, fy, 56, "st1", 7, 16, g1 + 26)
    fm.dep(("bar", order[2]))
    fm.add(lambda: k.poll_check(A_PX, "phx", "s50"), 2)
    fm.add(lambda: k.vm(f"buffer_load_dwordx4 {vr(A_ST,4)}, v{A_U+1}, {SRD_WS}, s51 offen sc1", "sth"))
    for f in a11_x(k, "h"): fm.add(f, 2); fm.skip(P.a1_xgap)
    stats_path(k, fy, A_ST, "sth", R.SA, 0, gap_of[(order[3], P.a1_sth)])
    k.per = dict(P.per_a1); k.bg_held = True
    b5 = batch(k, 5)
    mix = [(f, "s2", ("gw", 4), None) for f in batch(k, 4)] + [(f, "s2", ("gw", 5), None) for f in b5[:3]]
    ww = [(f, "s4", "wow", None) for f in wow(k)]
    while mix or ww:
        k.bg += ww[:2]; ww = ww[2:]
        if mix: k.bg.append(mix.pop(0))
    bg_batches(k, [0], "s2", lambda b: ("bar", order[3]))
    bg_batches(k, [1], "s2", lambda b: ("bar", "h"))
    bg_batches(k, [2, 3], "s2", lambda b: "wobar")
    bg_list(k, b5[3:], "s2", ("gw", 5), "wobar")
    bg_batches(k, [6, 7, 8, 9], "s2", lambda b: "gubar")
    A = lambda t: (accof(t) if t != "h" else None, accof(t) + 4, accof(t) + 8)
    for n in range(4): fix(k, R, fx, order[n], A(order[n]), gap_of[(order[n + 1], 1 if n < 3 else 2)], False)
    attn(k, R, fz, 3, R.ATT[0]); attn(k, R, fz2, 2, R.ATT[1]); ostore(k, fz2, 1)
    attn(k, R, fz, 1, R.ATT[0])
    fx.dep(("saw", "sth"))
    for f in fix_reads(k, R, "h", A_STA): fx.add(f)
    fx.dep("gemm_done")
    fix(k, R, fx, "h", A("h"), 0, False, pre=True); attn(k, R, fz2, 0, R.ATT[1]); ostore(k, fz2, 0)
    f3 = Flex(); f3.dep(("ost", 1)); f3.skip(P.l1_flag_delay)
    f3.add(lambda: (k.wait(vm=[("ost", 1)]), k.flag(1, 89), k.mark("oflag1")), 3)
    f3.dep(("attn", 0)); f3.add(lambda: wo_prepoll(k, 1))
    k.wait(vm=[("x", order[0])]); k.e("s_barrier")
    for i in range(4): xread(i)
    k.wait(lg=[("xf", 0)])
    k.stamp("a1 first")
    if k.stamping:
        for t in order[1:]: fixed.setdefault(gap_of[(t, 0)], []).append((0, lambda t=t: k.stamp(f"a1 t{t}")))
        for g in range(6, 224, 12): fixed.setdefault(g, []).append((0, lambda g=g: k.stamp(f"fina {g}")))
    run_gaps(k, mains, fixed, [fm, f3, fy, fx, fz2, fz], 2, over=lambda i: i >= P.a1_over)
    print("a11 left:", len(fm), len(fy), len(fx), len(fz), len(fz2), len(k.bg), {n: g for n, g in k.marks.items() if isinstance(n, tuple) and n[0] in ("fix", "attn", "saw", "ost")})
    k.mark("gemm_done"); k.bg_held = P.a1_tailhold
    k.stamp("a1 gemm")
    drain([fm, fy, fx, fz, fz2, f3], k)
    for n in range(2): assert k.marks[("fix", order[n])] < gap_of[(order[n + 3], 0)], "accumulator reused too early"
    k.stamp("a1 end")
P.a1_flag_gap, P.a1_late_gap, P.a1_poll_lead, P.l1_flag_delay, P.a1_over = 8, 36, 18, 14, 48
P.a1_bg_early = False; P.a1_salead = 8; P.a1_tailhold = True; P.touch1 = 1; P.a1_xgap = 3; P.a1_sth = 4
P.per_a1 = {"s2": 95, "s4": 60}

R_W0, R_W1, R_RD, R_ST, R_OUT = 3, 4, 5, 6, 7
def red_setup(k, posA, dAB):
    x, y, z, u = 28, 29, 30, 31
    k.e(f"s_add_u32 s32, s{sGL}, {posA*16384}", f"v_add_u32 v{R_W0}, s32, v{vL16}", f"v_xor_b32 v{R_W1}, 128, v{R_W0}")
    k.e(f"v_and_b32 v{x}, 7, v1", f"v_lshrrev_b32 v{y}, 3, v1", f"s_lshl_b32 s32, s{sW}, 7", f"v_lshl_add_u32 v{z}, v{x}, 4, s32",
        f"v_bfe_u32 v{u}, v1, 4, 1", f"v_lshlrev_b32 v{R_RD}, 7, v{u}", f"v_xor_b32 v{z}, v{z}, v{R_RD}",
        f"v_bfe_u32 v{R_RD}, v1, 3, 2", f"v_lshl_add_u32 v{z}, v{R_RD}, 10, v{z}", f"v_lshrrev_b32 v{R_RD}, 5, v1",
        f"v_mul_u32_u24 v{R_RD}, {dAB*16384}, v{R_RD}", f"v_add_u32 v{z}, v{z}, v{R_RD}", f"v_add_u32 v{R_RD}, {posA*16384}, v{z}")
    k.e(f"v_lshlrev_b32 v{z}, 4, v{x}", f"v_lshl_add_u32 v{z}, v{u}, 2, v{z}", f"v_and_b32 v{u}, 0x28, v1",
        f"v_cmp_eq_u32 vcc, 0, v{u}", f"v_mov_b32 v{u}, {OOB:#x}", f"v_cndmask_b32 v{R_ST}, v{u}, v{z}, vcc")
    k.e(f"v_lshlrev_b32 v{z}, 10, v{x}", f"v_lshl_add_u32 v{R_OUT}, v{y}, 4, v{z}")

def red_bases(k):
    k.e(f"s_lshl_b32 s32, s{sB}, 3", f"s_add_u32 s32, s32, s{sW}", "s_lshl_b32 s55, s32, 13", f"s_lshl_b32 s33, s{sCS}, 10", "s_add_u32 s55, s55, s33")
    k.e("s_lshl_b32 s57, s32, 13", f"s_lshl_b32 s33, s{sCS}, 7", "s_add_u32 s57, s57, s33")
    k.e(f"s_lshl_b32 s56, s{sB}, 12", f"s_lshr_b32 s33, s{sCS}, 1", "s_lshl_b32 s33, s33, 9", "s_add_u32 s56, s56, s33",
        f"s_and_b32 s33, s{sCS}, 1", "s_lshl_b32 s33, s33, 3", "s_add_u32 s56, s56, s33", f"s_lshl_b32 s33, s{sW}, 7", "s_add_u32 s56, s56, s33")

def red_writes(k, acc, g, off, dAB):
    return [lambda q=q: k.ds(f"ds_write_b128 v{R_W1 if (q>>1)&1 else R_W0}, {vr(acc+4*q,4)} offset:{off + (q>>2)*dAB*16384 + (q&3)*1024}", ("rw", g)) for q in range(8)]
def red_reads(k, g, T, off):
    return [lambda w=w, hf=hf: k.ds(f"ds_read_b128 {vr(T+8*w+4*hf,4)}, v{R_RD} offset:{off + w*4096 + hf*512}", ("rr", g, w)) for w in range(4) for hf in range(2)]

def red_finish(k, fx, g, mm, T, xdst, stdst, final, pk):
    a = lambda txt, c=1: fx.add(lambda: k.e(txt), c)
    R = RES + 4 * mm
    def add8(d, s):
        if pk:
            for i in range(0, 8, 2): a(f"v_pk_add_f32 {vr(d+i,2)}, {vr(d+i,2)}, {vr(s+i,2)}")
        else:
            for i in range(8): a(f"v_add_f32 v{d+i}, v{d+i}, v{s+i}")
    fx.add(lambda: k.wait(lg=[("rr", g, 1)]))
    add8(T, T + 8)
    for i in range(4): a(f"v_lshlrev_b32 v{T+8+2*i}, 16, v{R+i}"); a(f"v_and_b32 v{T+9+2*i}, 0xffff0000, v{R+i}")
    add8(T, T + 8)
    fx.add(lambda: k.wait(lg=[("rr", g, 3)]))
    add8(T + 16, T + 24); add8(T, T + 16)
    for i in range(4): a(f"v_cvt_pk_bf16_f32 v{R+i}, v{T+2*i}, v{T+2*i+1}")
    if final:
        fx.add(lambda: (k.e(f"s_add_u32 s32, s57, {mm*32768}"), k.vm(f"buffer_store_dwordx4 {vr(R,4)}, v{R_OUT}, {SRD_OUT}, s32 offen {P.outm}", ("xst", g))))
        return
    fx.add(lambda: (k.e(f"s_add_u32 s32, s55, {xdst + mm*32768}"), k.dstore(f"buffer_store_dwordx4 {vr(R,4)}, v{vL16}, {SRD_WS}, s32 offen", ("xst", g))), 2)
    s, q = T + 32, T + 33
    a(f"v_add_f32 v{s}, v{T}, v{T+1}"); a(f"v_mul_f32 v{q}, v{T}, v{T}"); a(f"v_fmac_f32 v{q}, v{T+1}, v{T+1}")
    for i in range(2, 8): a(f"v_add_f32 v{s}, v{s}, v{T+i}"); a(f"v_fmac_f32 v{q}, v{T+i}, v{T+i}")
    fx.skip(1)
    a(f"v_add_f32_dpp v{s}, v{s}, v{s} row_ror:8 row_mask:0xf bank_mask:0xf"); a(f"v_add_f32_dpp v{q}, v{q}, v{q} row_ror:8 row_mask:0xf bank_mask:0xf")
    fx.skip(1)
    a(f"v_permlane16_swap_b32 v{s}, v{q}", 2); a(f"v_add_f32 v{s}, v{s}, v{q}"); a(f"v_mov_b32 v{q}, v{s}"); fx.skip(1)
    a(f"v_permlane32_swap_b32 v{s}, v{q}", 2); a(f"v_add_f32 v{s}, v{s}, v{q}")
    fx.add(lambda: (k.e(f"s_add_u32 s32, s56, {stdst + mm*2048}"), k.dstore(f"buffer_store_dword v{s}, v{R_ST}, {SRD_WS}, s32 offen", ("xst", g)), k.mark(("xst", g))), 2)

def merge(k, fx, extra, first=0):
    extra = list(extra)
    items = [it for it in fx.items if it[0] != "skip"]; fx.items = []
    per = max(1, (len(items) - first) // max(1, len(extra)))
    for n, it in enumerate(items):
        if n >= first and (n - first) % per == 0 and extra: extra.pop(0)()
        it[1](); k.bg_step()
    for f in extra: f(); k.bg_step()

def wo(k, layer):
    BF, WQ, ACC, T, PA, NQ = 32, 160, 192, 208, A_PA, 8
    state = {}
    def bload(sx):
        k.set_s(f"s_add_u32 s58, s59, {(sx & ~1)*2048}")
        k.vm(f"buffer_load_dwordx4 {vr(BF+4*sx,4)}, v{W_OA}, {SRD_WS}, s58 offen offset:{(sx%2)*2048} sc1", ("b", sx))
    def wread(n): k.ds(f"ds_read_b128 {vr(WQ+4*(n%NQ),4)}, v{W_RB} offset:{n*1024}", ("wq", n))
    k.wait(vm=["wow"]); k.e("s_barrier"); k.mark("wobar")
    for n in range(NQ): wread(n)
    btxt = lambda sx: [f"s_add_u32 s99, s59, {sx*2048}", f"buffer_load_dwordx4 {vr(BF+4*sx,4)}, v{W_OA}, {SRD_WS}, s99 offen sc1"]
    bchk = lambda sx: k.valid([f"v_cmp_eq_u32 vcc, -1, v{BF+4*sx}"], btxt(sx))
    ptxt = f"buffer_load_dword v{T+20}, v{T+21}, {SRD_WS}, s59 offen sc1"
    if P.tags:
        k.e(f"v_lshlrev_b32 v{T+21}, 8, v{PA}")
        k.e(f"v_or_b32 v{T+21}, v{T+21}, v{PA}", f"v_and_b32 v{T+21}, 0x80007c00, v{T+21}")
        k.poll_check(PA, "po1", 1)
        k.vm(ptxt, "probe")
        for sx in range(P.wo_spec): bload(sx)
        k.e(f"s_lshl_b32 s32, s{sC}, 1", f"s_and_b32 s33, s{sW}, 1", "s_add_u32 s32, s32, s33", "s_lshl_b32 s32, s32, 7", f"s_add_u32 s{sPO}, s32, {fl(layer, FL_O)}")
    else:
        k.e(f"s_add_u32 s{sFO}, s66, {fl(layer, FL_X1)}")
        k.e(f"s_cmp_lt_u32 s{sW}, 2", f"s_cbranch_scc1 L_wo_late{layer}")
        q0 = list(k.vmq)
        k.poll_check(PA, "po1", 1)
        for sx in range(P.wo_lead): bload(sx)
        if P.wo_setup_first: gu_setup(k, layer)
        k.wait(vm=[("ost", 0)]); k.flag(2, 89)
        k.e(f"s_branch L_wo_join{layer}")
        k.label(f"L_wo_late{layer}")
        k.vmq = list(q0)
        k.wait(vm=[("ost", 0)]); k.flag(2, 89)
        if P.wo_setup_first: gu_setup(k, layer)
        k.poll_issue(PA, "po2"); k.poll_check(PA, "po2", 2)
        for sx in range(P.wo_lead): bload(sx)
        k.label(f"L_wo_join{layer}")
    if P.tags or not P.wo_setup_first: gu_setup(k, layer)
    k.stamp("wo issued")
    mains = []; fixed = {}
    for n in range(64):
        sx, j = divmod(n, 4)
        mains.append(lambda n=n, sx=sx, j=j: k.e(f"{MF16} {vr(ACC+4*j,4)}, {vr(WQ+4*(n%NQ),4)}, {vr(BF+4*sx,4)}, {'0' if sx == 0 else vr(ACC+4*j,4)}"))
        fl_ = fixed.setdefault(n, [])
        if n < 63: fl_.append((0, lambda n=n: k.wait(vm=[("b", (n + 1) // 4)] if (n + 1) % 4 == 0 else None, lg=[("wq", n + 1)])))
        if P.tags and n < 63 and (n + 1) % 4 == 0: fl_.append((1, lambda n=n: bchk((n + 1) // 4)))
        if P.tags and n == 42: fl_.append((1, lambda: k.poll_issue(PA, "px1")))
        if n + NQ < 64: fl_.append((1, lambda n=n: wread(n + NQ)))
        if n % P.wo_bstep == 0 and P.wo_lead + n // P.wo_bstep < 16: fl_.append((1, lambda n=n: bload(P.wo_lead + n // P.wo_bstep)))
    fx = Flex()
    a = lambda txt, c=1, at=0: fx.add(lambda: k.e(txt), c, at)
    fx.add(lambda: k.wait(vm=["res"]), 1, 8)
    for i in range(8): a(f"v_lshlrev_b32 v{T+2*i}, 16, v{RES+i}"); a(f"v_and_b32 v{T+2*i+1}, 0xffff0000, v{RES+i}")
    k.per = dict(P.per_wo[layer]); k.bg_held = False; k.bg_next = k.t + P.wo_bg_delay
    if P.tags:
        k.wait(vm=["probe"])
        k.valid([f"v_cmp_eq_u32 vcc, -1, v{T+20}"], [ptxt] + sum([btxt(x) for x in range(P.wo_spec)], []))
        state["fresh"] = True
        for sx in range(P.wo_spec, P.wo_lead): bload(sx)
    k.wait(vm=[("b", 0)], lg=[("wq", 0)])
    if P.tags: bchk(0)
    k.stamp("wo first")
    fixed[P.wo_bg_stop].append((0, lambda: setattr(k, "bg_held", True)))
    run_gaps(k, mains, fixed, [fx], 2)
    drain([fx], k)
    k.stamp("wo gemm")
    for i in range(0, 16, 2): k.e(f"v_pk_add_f32 {vr(T+i,2)}, {vr(T+i,2)}, {vr(ACC+i,2)}")
    k.e(f"s_add_u32 s58, s64, {BX1[layer]}")
    for p in range(2):
        for i in range(4): k.e(f"v_cvt_pk_bf16_f32 v{RES+4*p+i}, v{T+8*p+2*i}, v{T+8*p+2*i+1}")
        k.dstore(f"buffer_store_dwordx4 {vr(RES+4*p,4)}, v{W_UA}, {SRD_WS}, s58 offen offset:{p*512}", "xst")
    S, Q = T + 16, T + 18
    k.e(f"v_pk_add_f32 {vr(S,2)}, {vr(T,2)}, {vr(T+2,2)}", f"v_pk_mul_f32 {vr(Q,2)}, {vr(T,2)}, {vr(T,2)}", f"v_pk_fma_f32 {vr(Q,2)}, {vr(T+2,2)}, {vr(T+2,2)}, {vr(Q,2)}")
    for i in range(4, 16, 2): k.e(f"v_pk_add_f32 {vr(S,2)}, {vr(S,2)}, {vr(T+i,2)}", f"v_pk_fma_f32 {vr(Q,2)}, {vr(T+i,2)}, {vr(T+i,2)}, {vr(Q,2)}")
    k.e(f"v_add_f32 v{S}, v{S}, v{S+1}", f"v_add_f32 v{Q}, v{Q}, v{Q+1}", f"s_add_u32 s58, s65, {BS1[layer]}",
        f"v_permlane16_swap_b32 v{S}, v{Q}", f"v_add_f32 v{S}, v{S}, v{Q}", f"v_mov_b32 v{Q}, v{S}", f"v_permlane32_swap_b32 v{S}, v{Q}", f"v_add_f32 v{S}, v{S}, v{Q}")
    k.dstore(f"buffer_store_dword v{S}, v{W_SA}, {SRD_WS}, s58 offen", "xst")
    key = lambda it: it[2][1] if isinstance(it[2], tuple) else 11.5
    k.bg.sort(key=key)
    print(f"wo{layer} done, background left:", [it[2] for it in k.bg][::4])
    k.bg_burst(P.wo_win[layer])
    k.stamp("wo end")
P.wo_bg_delay = 200; P.wo_bg_stop = 56; P.wo_lead = 6; P.wo_spec = 3; P.gu_spec = 3; P.wo_bstep = 2
P.wo_poll_gap = 1; P.wo_late_gap = 7; P.wo_hold = True; P.wo_win = [4, 4]; P.wo_var = 'B'; P.wo_prew = 2
P.per_wo = [{"s2": 35, "s4": 35}] * 2

G_RB, G_C1, G_VV, G_AUG, G_X, G_ACC, G_WF, G_T = 3, 6, 7, 28, 32, 160, 224, 240
D_WV, D_BF, D_ACC, D_T, D_WF, D_RB, D_PA = 32, 64, 128, 192, 228, 112, 115
DN_SEQ = [(g, e) for g in range(2) for e in range(28)]
DN_GROUPS = [1, 0]
def h_loader(k, layer):
    def bload(i):
        if i == 0:
            k.e(f"s_mul_i32 s32, s{sB}, {224*KB}", f"s_mul_i32 s33, s{sW}, {28*KB}", "s_add_u32 s32, s32, s33", f"s_add_u32 s59, s32, {BH[layer]}")
            for p in range(4):
                k.e(f"s_add_u32 s32, s{sCS}, {p}", f"s_and_b32 s32, s32, {3 if P.hrot else 0}", f"s_mul_i32 s32, s32, {7*KB}", f"s_add_u32 s{34+p}, s59, s32")
                if not P.hrot: k.e(f"s_add_u32 s{34+p}, s{34+p}, {7*KB*p}")
        g, e = DN_SEQ[i]; p, tl = divmod(KK_OF[e], 7)
        k.set_s(f"s_add_u32 s58, s{34+p}, {DN_GROUPS[g] * 112 * KB + (tl & 4) * 1024}")
        k.vm(f"buffer_load_dwordx4 {vr(D_BF+4*(i%P.dn_lead),4)}, v{vL16}, {SRD_WS}, s58 offen offset:{(tl & 3)*1024} sc1", ("b", i))
    return bload

def gu_setup(k, layer):
    T = G_T; XA = T + 3
    k.e(*gu_tile("s50"))
    k.e(f"v_and_b32 v{T}, 31, v1")
    k.e(f"v_mov_b32 v{G_RB}, v{vL16}", f"v_add_u32 v{G_RB+1}, 0x10000, v{vL16}", f"v_add_u32 v{G_RB+2}, 0x20000, v{vL16}")
    k.e(f"v_lshrrev_b32 v{T+1}, 5, v1", f"v_lshlrev_b32 v{G_AUG+3}, 4, v{T}", f"v_lshl_add_u32 v{G_AUG+3}, v{T+1}, 10, v{G_AUG+3}")
    k.e(f"v_lshrrev_b32 v{XA}, 3, v{T}", f"v_lshlrev_b32 v{XA}, 13, v{XA}", f"v_lshl_add_u32 v{XA}, v{T+1}, 7, v{XA}",
        f"v_and_b32 v{T}, 7, v1", f"v_lshl_add_u32 v{XA}, v{T}, 4, v{XA}")
    k.e("s_lshl_b32 s32, s50, 11", f"s_add_u32 s51, s32, {BS1[layer]}")
    k.e("s_lshl_b32 s32, s50, 15", f"s_add_u32 s52, s32, {BX1[layer]}", "s_add_u32 s53, s52, 4096")
    k.e(*h_base("s54", layer))
    k.e("s_lshr_b32 s32, s50, 1", "s_lshl_b32 s32, s32, 4", f"s_add_u32 s32, s32, s{sM}",
        "s_lshl_b32 s32, s32, 1", "s_and_b32 s33, s50, 1", "s_add_u32 s32, s32, s33", "s_lshl_b32 s32, s32, 2", f"s_add_u32 s81, s32, {fl(layer, FL_H)}")

def gu(k, layer):
    T = G_T; XA = T + 3; PA = T + 2
    if P.tags: k.poll_check(A_PA, "px1", 1)
    else:
        def pa():
            k.poll_addr(PA, 16)
            k.e("s_lshl_b32 s32, s50, 6", f"s_add_u32 s{sPO}, s32, {fl(layer, FL_X1)}")
        if not P.gu_pa_late: pa()
        k.wait(vm=["xst"]); k.flag(1)
        if P.gu_pa_late: pa()
        k.stamp("x1 flag")
        if not P.gu_bar_first: k.poll_issue(PA, "px1")
    k.e(f"s_mov_b32 s{sFO}, s81")
    seq = [(t, ks) for ks in range(33) for t in range(3)] + [(t, ks) for t in range(3, 7) for ks in range(33)]
    accof = {0: 0, 1: 1, 2: 2, 3: 3, 4: 0, 5: 1, 6: 2}
    NW = P.gu_nw
    WQ = [G_WF, G_WF + 4, G_WF + 8, G_WF + 12, T + 12]
    def wread(n):
        slot = (n % 160) * 1024
        k.ds(f"ds_read_b128 {vr(WQ[n%NW],4)}, v{G_RB + (slot>>16)} offset:{slot & 0xffff}", ("wf", n))
    def ringbar():
        k.wait(vm=[("gw", 0)]); k.e("s_barrier"); k.mark("gubar")
        for n in range(NW): wread(n)
    if P.gu_bar_first: ringbar(); k.poll_issue(PA, "px1")
    if not P.tags: k.poll_check(PA, "px1", 1)
    k.stamp("gu go")
    xtxt = lambda kg: f"buffer_load_dwordx4 {vr(G_X+4*kg,4)}, v{XA}, {SRD_WS}, s{52 + (kg>>4)} offen offset:{((kg>>2)&3)*1024 + (kg&3)*256} sc1"
    def xload(kg): k.vm(xtxt(kg), ("gx", kg))
    xchk = lambda kg: k.valid([f"v_cmp_eq_u32 vcc, -1, v{G_X+4*kg}"], [xtxt(kg)])
    stxt = [f"buffer_load_dwordx4 {vr(T+4+4*h,4)}, v{G_AUG+3}, {SRD_WS}, s51 offen offset:{512*h} sc1" for h in range(2)]
    if P.tags:
        for t_ in stxt: k.vm(t_, "gst")
        for kg in range(P.gu_spec): xload(kg)
        k.wait(vm=["gst"])
        k.valid([f"v_max3_u32 v{T}, v{T+4}, v{T+6}, v{T+8}", f"v_max_u32 v{T}, v{T}, v{T+10}", f"v_cmp_eq_u32 vcc, -1, v{T}"],
                stxt + [xtxt(x) for x in range(P.gu_spec)])
        k.stamp("gu probe")
        for kg in range(P.gu_spec, P.gu_lead): xload(kg)
    else:
        for kg in range(P.gu_lead): xload(kg)
        for t_ in stxt: k.vm(t_, "gst")
    if not P.gu_bar_first: ringbar()
    mains = []; fixed = {}
    xpos = {}
    for kg in range(P.gu_lead, 32): xpos.setdefault(int((kg - P.gu_lead) * P.gu_xstep), []).append(kg)
    for n, (t, ks) in enumerate(seq):
        acc = G_ACC + 16 * accof[t]
        b = vr(G_AUG, 4) if ks == 32 else vr(G_X + 4*ks, 4)
        c = "0" if ks == 0 else vr(acc, 16)
        mains.append(lambda n=n, acc=acc, b=b, c=c: k.e(f"{MF32} {vr(acc,16)}, {vr(WQ[n%NW],4)}, {b}, {c}"))
        fl_ = fixed.setdefault(n, [])
        if n + 1 < len(seq):
            t2, ks2 = seq[n + 1]
            need = [("gx", ks2)] if (t2 == 0 and ks2 < 32) else None
            fl_.append((0, lambda n=n, need=need: k.wait(vm=need, lg=[("wf", n + 1)])))
            if need and P.tags: fl_.append((2, lambda ks2=ks2: xchk(ks2)))
        j = n + NW
        if j < len(seq):
            if j % 16 == 0:
                fl_.append((2, lambda bi=j//16: (k.wait(vm=[("gw", bi)]), k.e("s_barrier" if not P.x_nobar else "s_nop 0"), k.mark(("gbar", bi)))))
            fl_.append((1, lambda j=j: wread(j)))
        for kg in xpos.get(n, []): fl_.append((1, lambda kg=kg: xload(kg)))
    xend = max(xpos)
    tail = [it for it in k.bg if it[2] == "dna"]; k.bg = [it for it in k.bg if it[2] != "dna"]
    bg_batches(k, [10, 11], "s2", lambda b: ("gbar", b - 8))
    mid = []
    for b in (12, 13, 14):
        for f in batch(k, b): mid.append((f, "s2", ("gw", b), ("gbar", b - 8)))
    while mid or tail:
        if mid: k.bg.append(mid.pop(0))
        if tail: k.bg.append(tail.pop(0))
    bg_batches(k, range(15, 23), "s4", lambda b: ("gbar", b - 8))
    k.per = dict(P.per_guA[layer]); k.bg_held = False; k.bg_next = k.t + P.gu_bg_delay
    fixed[xend].append((0, lambda: setattr(k, "per", dict(P.per_guB[layer]))))
    fv = Flex()
    dv = regloads(k, sDS, 48*1024, lambda j: vr(D_WV + 4*j, 4), 8, "dnv")
    k.hload = h_loader(k, layer)
    if P.hpre:
        bg_list(k, dv, "s4", "dnv", "xdead")
        fixed[207].append((0, lambda: k.mark("xdead")))
    else:
        for j, f in enumerate(dv): fv.add(f, 1, 198 + 2 + 3*j)
    fx = Flex()
    a = lambda txt, c=1, at=0: fx.add(lambda: k.e(txt), c, at)
    fx.add(lambda: k.wait(vm=["gst"]), 1, 3 * P.gu_lead)
    a(f"v_add_f32 v{T+4}, v{T+4}, v{T+6}"); a(f"v_add_f32 v{T+5}, v{T+5}, v{T+7}"); a(f"v_add_f32 v{T+8}, v{T+8}, v{T+10}"); a(f"v_add_f32 v{T+9}, v{T+9}, v{T+11}")
    a(f"v_add_f32 v{T+4}, v{T+4}, v{T+8}"); a(f"v_add_f32 v{T+5}, v{T+5}, v{T+9}"); fx.skip(1)
    a(f"v_permlane32_swap_b32 v{T+4}, v{T+5}", 2); a(f"v_add_f32 v{T+4}, v{T+4}, v{T+5}"); a(f"v_mov_b32 v{T+5}, v{T+4}"); fx.skip(1)
    a(f"v_permlane32_swap_b32 v{T+4}, v{T+5}", 2)
    ln_finish(a, T + 4, T + 5)
    a(f"v_mov_b32 v{G_VV}, v{T+5}")
    a(f"v_rsq_f32 v{G_C1}, v{T+5}", 2); a(f"v_cvt_pk_bf16_f32 v{G_AUG}, v{T+4}, v{T+4}"); a(f"v_mul_f32 v{G_C1}, {f2u(-LOG2E):#x}, v{G_C1}")
    a(f"v_and_b32 v{T+5}, 0xffff0000, v{G_AUG}"); a(f"v_sub_f32 v{T+5}, v{T+4}, v{T+5}"); a(f"v_mov_b32 v{G_AUG+2}, 0")
    a(f"v_cvt_pk_bf16_f32 v{G_AUG+1}, v{T+5}, v{G_AUG+2}"); a(f"v_mov_b32 v{G_AUG+3}, 0")
    fx.add(lambda: k.mark("aug"), 0)
    def epi(t, at):
        acc = G_ACC + 16 * accof[t]; hp = T + 8; E = T + 4
        if P.x_noepi: a("s_nop 0", 1, at)
        for i0 in range(0, 8 if not P.x_noepi else 0, 2):
            for i in (i0, i0 + 1): a(f"v_mul_f32 v{E+(i&1)}, v{G_C1}, v{acc+i}", 1, at)
            for i in (i0, i0 + 1): a(f"v_exp_f32 v{E+(i&1)}, v{E+(i&1)}", 2)
            for i in (i0, i0 + 1): a(f"v_mul_f32 v{E+2+(i&1)}, v{acc+i}, v{acc+8+i}")
            for i in (i0, i0 + 1): a(f"v_fma_f32 v{E+(i&1)}, v{E+(i&1)}, v{G_VV}, v{G_VV}")
            for i in (i0, i0 + 1): a(f"v_rcp_f32 v{E+(i&1)}, v{E+(i&1)}", 2)
            fx.skip(1)
            for i in (i0, i0 + 1): a(f"v_mul_f32 v{E+2+(i&1)}, v{E+2+(i&1)}, v{E+(i&1)}")
            a(f"v_cvt_pk_bf16_f32 v{hp+i0//2}, v{E+2}, v{E+3}")
        fx.add(lambda: k.mark(("epi", t)), 0)
        if t == 4: a("s_add_u32 s54, s54, 4096")
        fx.add(lambda: ((k.dstore if ((layer and P.h1_plain) or (not layer and P.h_touch0)) else lambda x, tg: k.vm(x + " sc1", tg))(f"buffer_store_dwordx4 {vr(hp,4)}, v{vL16}, {SRD_WS}, s54 offen offset:{(t%4)*1024}", ("hst", t)), k.mark(("hst", t))), 2)
    end = {t: max(n for n, x in enumerate(seq) if x[0] == t) for t in range(7)}
    for t in range(6): epi(t, end[t] + 3)
    if layer == 0 and P.h_touch0 == "g": fixed[xend + 1].append((5, lambda: k.touch(T, "h", ["s_mov_b32 s32, s54"])))
    ff = Flex(); ff.dep(("hst", 3))
    if layer == 0:
        tx = [lambda: k.touch(T, "p", [f"s_add_u32 s32, s55, {WS_X[1]}"]), lambda: k.touch(T + 1, "s", [f"s_add_u32 s32, s56, {WS_ST[1]}"])]
        if P.x2_touch == "h3": ff.add(tx[0], 6); ff.add(tx[1], 4)
        elif isinstance(P.x2_touch, int): fixed[P.x2_touch].append((5, tx[0])); fixed[P.x2_touch + 1].append((4, tx[1]))
        if "g" in str(P.touch1):
            for f in touch_next(k, T + 2)[:2]: ff.skip(1); ff.add(f, 6)
    ff.skip(P.gu_flag_delay)
    ff.add(lambda: (k.wait(vm=[("hst", 3)]), k.flag(1)), 3)
    def hpoll():
        k.wait(vm=["touch"] if "touch" in k.seen else None)
        k.poll_addr(T, 8)
        k.e(f"s_lshl_b32 s32, s{sB}, 7", f"s_lshl_b32 s33, s{sW}, 5", "s_add_u32 s32, s32, s33", f"s_add_u32 s{sPO}, s32, {fl(layer, FL_H)}")
        k.poll_issue(T, "ph1")
    if P.hpre:
        ff.add(hpoll, 4, P.hp_chk - 12)
        ff.add(lambda: (k.poll_check(T, "ph1", 1), setattr(k, "bg_held", True)), 3, P.hp_chk)
        for j in range(P.hpre): ff.add(lambda j=j: k.hload(j), 2, max(208 + j, int(P.hp_chk + 1 + j * P.hp_step)))
    else: ff.add(hpoll, 4, 228)
    k.wait(vm=[("gx", 0)], lg=[("wf", 0)])
    if P.tags: xchk(0)
    k.stamp("gu first")
    if k.stamping:
        for g in (48, 98, 131, 164, 197): fixed[g].append((0, lambda g=g: k.stamp(f"gu m{g}")))
    fixed[93].append((0, lambda: k.marks["aug"]))
    run_gaps(k, mains, fixed, [fv, ff, fx], P.gu_cap)
    print("gu left:", len(k.bg), len(fv), len(ff), len(fx), {n: g for n, g in k.marks.items() if isinstance(n, tuple) and n[0] == "hst"})
    k.stamp("gu gemm")
    for g, t in {132: 0, 165: 1, 198: 2}.items(): assert k.marks[("epi", t)] < g, "accumulator reused too early"
    epi(6, 0); drain([ff, fv, fx], k)
    k.e(f"v_mov_b32 v{D_PA}, v{T}")
    k.stamp("gu end")
P.x2_touch = 'h3'; P.dn_x2 = 2; P.hrot = 0; P.hpre = 0; P.hp_chk = 208; P.hp_step = 2.2; P.gu_flag_delay = 10; P.gu_xstep = 2.6; P.gu_bg_delay = 300
P.per_guA = [{"s2": 120, "s4": 120}, {"s2": 160, "s4": 160}]
P.per_guB = [{"s2": 90, "s4": 55}] * 2

def dn(k, layer):
    final = layer == 1
    NB = P.dn_lead; T = D_T
    groups = DN_GROUPS; seq = DN_SEQ; bload = k.hload
    early = Flex()
    def rb(): k.e(f"v_add_u32 v{D_RB}, s{sGL}, v{vL16}", f"v_add_u32 v{D_RB+1}, 0x10000, v{D_RB}", f"v_add_u32 v{D_RB+2}, 0x20000, v{D_RB}")
    if P.hpre:
        for i in range(P.hpre, NB): bload(i)
        rb()
        class Rec:
            def e(self, *t):
                if any("vcc" in x or "s32" in x for x in t): early.add(lambda: k.e(*t), len(t))
                else:
                    for x in t: early.add(lambda x=x: k.e(x))
        red_setup(Rec(), 3, 1)
        early.add(lambda: (k.wait(vm=[("hst", 6)]), k.flag(2), k.poll_issue(D_PA, "ph2"), k.e(f"s_add_u32 s{sFO}, s89, {FL_X2 - FL_O}")), 5, P.dn_fgap)
    else:
        k.poll_check(D_PA, "ph1", 1)
        k.stamp("dn early")
        k.bg_held = True
        for i in range(P.dn_pre): bload(i)
        red_setup(k, 3, 1); rb()
        k.wait(vm=[("hst", 6)]); k.flag(2)
        k.poll_issue(D_PA, "ph2")
        for i in range(P.dn_pre, NB): bload(i)
        k.e(f"s_add_u32 s{sFO}, s89, {FL_X2 - FL_O}")
    k.per = dict(P.per_dn0); k.bg_held = False
    lds = [(i, nn) for i, (g, e) in enumerate(seq) if 8 <= e < 24 for nn in range(2)]
    slot_of = {x: n for n, x in enumerate(lds)}
    NWF = 6
    def wread(n):
        i, nn = lds[n]; j = 2 * (seq[i][1] - 8) + nn; b = 15 + (j >> 2)
        ad = (b % 10) * 16384 + (j & 3) * 1024
        if seq[i][0] == 0: k.wait(vm=[("gw", b)])
        k.ds(f"ds_read_b128 {vr(D_WF+4*(n%NWF),4)}, v{D_RB + (ad>>16)} offset:{ad & 0xffff}", ("wf", n))
    def wfrag(i, nn):
        e = seq[i][1]
        if e < 8: return ar(192 + 8*e + 4*nn, 4)
        if e >= 24: return vr(D_WV + 8*(e - 24) + 4*nn, 4)
        return vr(D_WF + 4*(slot_of[(i, nn)] % NWF), 4)
    mains = []; fixed = {}
    NT = P.dn_tail
    assert NT <= 4
    order = [(i, nn) for i in range(56 - NT) for nn in range(2)] + [(i, nn) for nn in range(2) for i in range(56 - NT, 56)]
    for pos, (i, nn) in enumerate(order):
        g, e = seq[i]
        if True:
            acc = D_ACC + 32 * g + 16 * nn
            mains.append(lambda i=i, nn=nn, acc=acc, e=e: k.e(f"{MF32} {vr(acc,16)}, {wfrag(i,nn)}, {vr(D_BF+4*(i%NB),4)}, {'0' if e == 0 else vr(acc,16)}"))
            gp = len(mains) - 1; fl_ = fixed.setdefault(gp, [])
            nx = order[pos + 1] if pos + 1 < len(order) else None
            vmn = [("b", nx[0])] if (nx and nx[1] == 0) else None
            lgn = [("wf", slot_of[nx])] if nx in slot_of else None
            if nx == (24, 0): vmn = vmn + ["dnv"]
            fl_.append((0, lambda vmn=vmn, lgn=lgn: k.wait(vm=vmn, lg=lgn)))
            ah = (i + 2, nn)
            if ah in slot_of: fl_.append((1, lambda n=slot_of[ah]: wread(n)))
    nxt = NB; pend = 0
    for i in range(len(seq)):
        fl_ = fixed[2*i + 1]
        if i == P.dn_late: fl_.append((2, lambda: (k.poll_check(D_PA, "ph2", 2), k.stamp("dn late"), k.mark("late"))))
        n = 0
        while nxt < len(seq) and nxt <= i + NB and n < 2 and (nxt < 16 or i >= P.dn_late):
            fl_.append((1, lambda j=nxt: bload(j))); nxt += 1; n += 1
        if nxt == len(seq) and not pend: pend = 2*i + 2
    fixed[20].append((1, lambda: k.e("s_barrier")))
    for mm in range(2):
        fixed[40 + 4*mm].append((2, lambda mm=mm: (k.e(f"s_add_u32 s32, s55, {BX1[layer] + mm*32768}"),
                                                   k.vm(f"buffer_load_dwordx4 {vr(RES+4*mm,4)}, v{vL16}, {SRD_WS}, s32 offen sc1", "res"))))
    fw = Flex(); fs = Flex()
    for q, f in enumerate(red_writes(k, D_ACC, 0, 0, 1)): fw.add(f, 1, 58 + 2*q)
    fw.add(lambda: (k.wait(lg=[("rw", 0)]), k.e("s_barrier")), 2, 76)
    for f in red_reads(k, 0, T, 0): fw.add(f, 2)
    fw.add(lambda: k.wait(vm=["res"]))
    red_finish(k, fw, 0, groups[0], T, WS_X[1], WS_ST[1], final, False)
    if not final:
        fw.add(lambda: k.vm(f"buffer_store_dwordx4 {vr(RES+4,4)}, v{vL16}, {SRD_WS}, s72 offen sc1", "hxs"))
        fw.add(lambda: k.vm(f"buffer_store_dword v{T+32}, v{R_ST}, {SRD_WS}, s73 offen sc1", "hxs"))
        fw.skip(P.dn_flag_delay); fw.add(lambda: (k.wait(vm=[("xst", 0)]), k.flag(1)), 3)
        if P.x2_touch == "dn":
            fixed[P.dn_x2].append((5, lambda: k.touch(226, "p", [f"s_add_u32 s32, s55, {WS_X[1]}"])))
            fixed[P.dn_x2 + 1].append((4, lambda: k.touch(227, "s", [f"s_add_u32 s32, s56, {WS_ST[1]}"])))
            fs.add(lambda: k.wait(vm=["touch"]), 1, P.dn_x2 + 2)
        if "d" in str(P.touch1):
            for q, f in enumerate(touch_next(k, 28)): fixed[P.dn_touch + 2*q].append((5, f))
        fs.dep("late")
        for f in a11_bases(k) + a1_setup(k, 1): fs.add(f)
        fs.add(lambda: (k.poll_addr(A_PX, 32), k.e(f"s_lshl_b32 s32, s{sB}, 7", f"s_add_u32 s{sPO}, s32, {fl(0, FL_X2)}")), 4)
    wtail = red_writes(k, D_ACC + 32, 1, 2*16384, 1)
    if NT:
        for q in range(min(4, NT)): fixed[min(111, 112 - NT + 1 + q)].append((4, wtail.pop(0)))
    k.wait(vm=["dna", ("b", 0)])
    k.stamp("dn first")
    if k.stamping:
        fixed[55].append((0, lambda: k.stamp("dn p1")))
        for g in range(7, 111, 8): fixed[g].append((0, lambda g=g: k.stamp(f"find {g}")))
    run_gaps(k, mains, fixed, [early, fw, fs], 6)
    print("dn left:", len(k.bg), len(fw), len(fs), "last h load at gap", pend)
    k.stamp("dn gemm")
    assert not fs.items
    ws = wtail
    if not final: ws.insert(len(ws) - 4, lambda: k.poll_issue(A_PX, "px0"))
    merge(k, fw, ws)
    k.wait(lg=[("rw", 1)]); k.e("s_barrier")
    k.stamp("dn red")
    for f in red_reads(k, 1, T, 2*16384): f()
    if not final:
        k.bg_held = True
        k.poll_check(A_PX, "px0", 1)
        k.wait(vm=["hxs"]); k.flag(1, 91, "sc1")
        a11_early(k)
    f1 = Flex(); red_finish(k, f1, 1, groups[1], T, WS_X[1], WS_ST[1], final, True); drain([f1], k)
    k.stamp("dn end")
P.dn_tail = 0; P.dn_touch = 88; P.dn_flag_delay = 4; P.dn_pre = 6; P.dn_late = 7; P.dn_fgap = 6
P.dn_wow = 6; P.per_dn = {"s4": 110, "s2": 130}; P.per_dn0 = {"s4": 60, "s2": 60}

def build(stamps=False, only=None):
    k = F(); k.stamping = stamps; k.only = only; k.st = P.dst; k.rt = P.rt
    name = NAME + "_kernel"
    k.e(".p2align 8", f".globl {name}", f".type {name},@function"); k.label(name)
    if stamps: k.e("s_memrealtime s[92:93]", "s_memtime s[94:95]")
    k.e("s_cmp_ge_u32 s2, 256", "s_cbranch_scc1 L_end")
    k.e("s_load_dwordx16 s[64:79], s[0:1], 0", "s_load_dwordx4 s[80:83], s[0:1], 64", "s_memrealtime s[96:97]")
    k.e("s_getpc_b64 s[100:101]")
    k.e("L_pc: ;np")
    k.e("s_mov_b32 s24, s100", "s_mov_b32 s25, s101", "s_mov_b32 s26, L_end-L_pc", "s_mov_b32 s27, 0x20000",
        "v_and_b32 v1, 63, v0", "v_lshrrev_b32 v2, 6, v0", "s_lshr_b32 s33, s2, 3", "s_mul_i32 s32, s33, 43", "s_lshr_b32 s32, s32, 8",
        "s_mul_i32 s32, s32, 6", "s_sub_u32 s32, s33, s32", "s_lshl_b32 s32, s32, 13", "v_lshlrev_b32 v3, 11, v2", "v_lshl_add_u32 v3, v1, 7, v3",
        f"v_mov_b32 v4, {OOB:#x}", "v_cmp_gt_u32 vcc, 16, v1", f"v_readfirstlane_b32 s{sW}, v2", "v_cndmask_b32 v3, v4, v3, vcc")
    if P.code0: k.vm(f"buffer_load_dword v175, v3, {SRD_PK}, s32 offen", "code")
    k.e("s_and_b32 s32, s2, 7", f"s_and_b32 s{sM}, s33, 15", "s_lshr_b32 s33, s33, 4", "s_lshl_b32 s32, s32, 1", f"s_add_u32 s{sC}, s32, s33")
    k.e(f"s_lshr_b32 s33, s{sM}, 3", f"s_lshl_b32 s{sB}, s{sC}, 1", f"s_add_u32 s{sB}, s{sB}, s33", f"s_and_b32 s{sCS}, s{sM}, 7")
    k.e("v_lshlrev_b32 v2, 4, v1")
    a10_lanes(k)
    k.e("s_waitcnt lgkmcnt(0)")
    srd(k, 12, 64, 2048 * 1024); srd(k, 16, 66, 512 * 3072)
    k.e(f"s_or_b32 s{sTAG}, s96, 1")
    if stamps:
        k.stamps += ["rt0", "start"]; k.e("v_writelane_b32 v0, s92, 0", f"v_writelane_b32 v0, s{92 if P.rt else 94}, 1")
    k.stamp("s kernarg")
    if P.pk_first: pack_issue(k)
    k.stamp("s pkissue")
    run(a10_x(k, 0) + a10_w(k, 0))
    if P.pk_first == 0: pack_issue(k)
    srd(k, 28, 80, 256)
    k.e("v_cmp_eq_u32 vcc, 0, v1", f"v_mov_b32 v{vFA}, {OOB:#x}", f"s_or_b32 s32, s2, s{sW}", f"v_cndmask_b32_e64 v{vFA}, v{vFA}, 0, vcc",
        "s_cmp_eq_u32 s32, 0", f"s_cselect_b32 s32, 0, {OOB>>1:#x}", f"v_mov_b32 v170, s{sTAG}")
    k.vm(f"buffer_store_dword v170, v{vFA}, {SRD_DBG}, s32 offen sc1", "tagst")
    srd(k, 8, 82, WS_SIZE); srd(k, 20, 78, 2048 * 1024)
    for f in a1_setup(k, 0): f()
    o_bases(k, 0)
    a10_lanes2(k)
    k.e(f"v_mov_b32 v60, {OOB:#x}", "v_cmp_gt_u32 vcc, 8, v1", "v_mov_b32 v176, 0", "v_mov_b32 v177, 0", "v_mov_b32 v178, 0", "v_mov_b32 v179, 0",
        f"v_cndmask_b32 v173, v60, v{vL16}, vcc", "v_cmp_gt_u32 vcc, 16, v1", f"s_getreg_b32 s{sXCC}, hwreg(HW_REG_XCC_ID, 0, 4)",
        f"s_lshl_b32 s32, s{sC}, 4", f"v_cndmask_b32 v172, v60, v{vL16}, vcc")
    k.e(f"s_add_u32 s32, s32, s{sM}", "s_lshl_b32 s32, s32, 4",
        f"s_cmp_eq_u32 s{sW}, 0", f"s_cselect_b32 s32, s32, {OOB>>1:#x}", f"v_add_u32 v171, s32, v{vFA}", f"s_mov_b32 s{sBUD}, 400000",
        f"s_mov_b32 s75, {WS_ARR}", f"s_lshl_b32 s77, s{sC}, 8", "s_add_u32 s77, s77, s75")
    red_bases(k)
    k.e(f"s_lshl_b32 s{sGL}, s{sW}, 12", f"s_mul_i32 s{sGS}, s{sM}, {PGU_SLICE}", f"s_add_u32 s{sGS}, s{sGS}, s{sGL}", f"s_add_u32 s{sGS}, s{sGS}, {WS_PGU}")
    k.e(f"s_mul_i32 s32, s{sCS}, {224*KB}", f"s_mul_i32 s33, s{sW}, {56*KB}", "s_add_u32 s32, s32, s33", f"s_add_u32 s{sDS}, s32, {WS_PDN}")
    k.e(f"s_lshl_b32 s32, s{sCS}, 16", f"s_add_u32 s32, s32, s{sGL}", f"s_add_u32 s88, s32, {WS_PWO}")
    wo_bases(k)
    k.stamp("s setup")
    run(a10_w(k, 1))
    k.stamp("s w01")
    def mid2():
        if P.k_first > 3: run(a10_w(k, 3))
        k.e("s_lshl_b32 s32, s2, 7")
        k.vm(f"buffer_store_dwordx4 v[176:179], v173, {SRD_WS}, s32 offen sc1", "zero")
        k.e("s_lshl_b32 s32, s2, 8", f"s_add_u32 s32, s32, {WS_HXF}")
        k.vm(f"buffer_store_dwordx4 v[176:179], v172, {SRD_WS}, s32 offen sc1", "zero")
    pack_process(k, lambda: run(a10_x(k, 1) + a10_w(k, 2)), mid2)
    k.vm(f"buffer_load_dword v170, v{vFA}, {SRD_DBG}, 0 offen sc1", "tag")
    k.stamp("s pkdone")
    a10_loop(k, P.k_first)
    a10_tail(k)
    wo(k, 0); gu(k, 0); dn(k, 0)
    if not P.half:
        k.marks = {m: g for m, g in k.marks.items() if False}
        k.seen = {t for t in k.seen if t in k.vmq or t in k.lgq or t in ("dna", "st0", ("x", 2), ("x", 3))}
        a11_main(k)
        wo(k, 1)
        k.marks = {m: g for m, g in k.marks.items() if m == "wobar" or m[0] == "bar"}
        gu(k, 1); dn(k, 1)
    if P.verbose: print([(t, tag, f) for t, tag, f in k.bg_log if f])
    if stamps:
        k.e("s_waitcnt vmcnt(0)"); k.stamp("drained"); k.stamp("rt1", True)
        k.e("s_lshl_b32 s32, s2, 10", "s_lshl_b32 s33, s3, 8", "s_add_u32 s32, s32, s33",
            f"s_add_u32 s32, s32, {WS_STAMP}", "v_lshlrev_b32 v8, 2, v1", f"buffer_store_dword v0, v8, {SRD_WS}, s32 offen")
        if P.echo:
            a, b = P.echo
            n = len(k.stamps)
            k.e(f"v_readlane_b32 s32, v0, {a}", f"v_readlane_b32 s33, v0, {b if b >= 0 else n + b}", f"v_readlane_b32 s34, v0, {n-1}", "s_nop 3",
                "s_sub_u32 s33, s33, s32", "s_min_u32 s33, s33, 20000")
            k.label("L_echo")
            k.e("s_memrealtime s[36:37]", "s_waitcnt lgkmcnt(0)", "s_sub_u32 s36, s36, s34", "s_cmp_lt_u32 s36, s33", "s_cbranch_scc1 L_echo")
        if P.dbg:
            n = len(k.stamps)
            k.e("v_readlane_b32 s32, v0, 0", f"v_readlane_b32 s33, v0, {n-1}", "s_not_b32 s34, s32", "v_mov_b32 v4, s33", "v_mov_b32 v5, s34")
            k.e(f"buffer_atomic_umax v4, v{vFA}, {SRD_DBG}, 0 offen offset:4", f"buffer_atomic_umax v5, v{vFA}, {SRD_DBG}, 0 offen offset:8")
            k.e(f"s_cmp_eq_u32 s2, {P.dbg - 1}", f"s_cselect_b32 s35, 0, {OOB>>1:#x}", f"s_cmp_eq_u32 s{sW}, 0", f"s_cselect_b32 s35, s35, {OOB>>1:#x}")
            for i, wd in zip(range(2, n - 1), (3, 5, 6, 7, 9, 10, 11, 13, 14, 15)):
                k.e(f"v_readlane_b32 s33, v0, {i}", "s_sub_u32 s33, s33, s32", "v_mov_b32 v4, s33", f"buffer_store_dword v4, v{vFA}, {SRD_DBG}, s35 offen offset:{4*wd}")
    k.e("s_endpgm")
    k.flush_spins()
    k.label("L_end"); k.e("s_endpgm")
    src = open("cdna_kernels/%s.s.ref" % NAME).read().splitlines()
    out = [l for l in src if l.startswith(";") and "@launch" not in l]
    out.append(f"; @launch grid=(256,1,1) block=(256,1,1) lds={LDS_TOTAL}")
    out += ['.amdgcn_target "amdgcn-amd-amdhsa--gfx950"', ".text"]
    s = "\n".join(out) + "\n" + k.text(verbose=True) + '.section .rodata,"a"\n.p2align 6\n' + kd(name)
    from verify import verify
    assert not verify(s), "a register is used while a load into it is in flight"
    if P.align:
        from align import align
        s = align(s)
    return s, k.stamps
P.x_nobar = 0; P.x_noepi = 0; P.rt = 1; P.dbg = 0; P.h_touch0 = ''; P.outm = ''; P.h1_plain = 1; P.tags = 0; P.echo = None; P.wo_setup_first = 0; P.gu_pa_late = 0; P.gu_bar_first = 0; P.flagbr = 0; P.rot = 0; P.pk_mod = 'nt'; P.x_mod = 'nt'; P.w_mod = ''; P.t_mod = ''; P.pk_first = 1; P.half = 0; P.tlb = 1; P.code0 = 1; P.verbose = 0; P.align = 1; P.gu_cap = 5; P.gu_nw = 5; P.k_touch = 15; P.k_gb = 13; P.k_chk = 16

if __name__ == "__main__":
    path = sys.argv[1] if len(sys.argv) > 1 else "cdna_kernels/%s.s" % NAME
    opts = sys.argv[2:]
    only = None
    for o in opts:
        if o.startswith("only="): only = [x for x in o[5:].split(",") if x]
        if o.startswith("P."):
            n, v = o[2:].split("="); setattr(P, n, eval(v))
    s, st = build(stamps="st" in opts, only=only)
    open(path, "w").write(s)
    if "st" in opts: json.dump([st], open(path + ".json", "w"))
```

```python
import re, sys
from asmlib import Ins
def verify(text, quiet=False):
    lines = text.split("\n")
    try: a = next(i for i, l in enumerate(lines) if l.strip() == ".text")
    except StopIteration: a = 0
    pend = {"vm": [], "lg": []}
    saved = {}; live = True; bad = []
    def merge(x, y):
        out = {}
        for q in ("vm", "lg"):
            d = {}
            for r, n, l in x[q] + y[q]: d[l] = (r, min(n, d[l][1]) if l in d else n, l)
            out[q] = [list(v) for v in d.values()]
        return out
    cp = lambda s: {q: [list(e) for e in s[q]] for q in s}
    for n in range(a, len(lines)):
        l = lines[n]; t = l.split(";")[0].strip()
        if t.startswith(".section"): break
        if t == "s_endpgm" and live: break
        if t.endswith(":") and ";np" not in l:
            lab = t[:-1]
            if lab in saved: pend = merge(pend, saved[lab]) if live else saved[lab]
            live = True; continue
        if not t or t.startswith(".") or ";np" in l or not live: continue
        i = Ins(l)
        if i.kind == "branch":
            lab = i.ops[0]
            saved[lab] = merge(saved[lab], pend) if lab in saved else cp(pend)
            if i.op == "s_branch": live = False
            continue
        if i.op == "s_waitcnt":
            for q, name in (("vm", "vmcnt"), ("lg", "lgkmcnt")):
                m = re.search(name + r"\((\d+)\)", l)
                if m: pend[q] = [e for e in pend[q] if e[1] < int(m.group(1))]
            continue
        isvm = i.kind in ("vmem", "dma"); isds = i.kind == "ds"
        touched = {r for r in i.uses + i.defs if r[0] in "va"}
        for q in ("vm", "lg"):
            for regs, y, ln in pend[q]:
                hit = regs & touched
                if hit and not (((q == "vm" and isvm) or (q == "lg" and isds)) and not (regs & set(i.uses))):
                    bad.append(f"line {n+1}: {t}   <- still loading at line {ln+1}: {lines[ln]}")
        if ";opt" in l: continue
        if isvm or isds:
            q = "vm" if isvm else "lg"
            for e in pend[q]: e[1] += 1
            d = {r for r in i.defs if r[0] in "va"}
            pend[q].append([d, 0, n])
            pend[q] = [e for e in pend[q] if e[0] or True]
    seen = {}
    for n in range(a, len(lines)):
        t = lines[n].split(";")[0].strip()
        if t.startswith(".section"): break
        if not t or t.endswith(":") or t.startswith("."): continue
        for r in Ins(lines[n]).defs:
            if r[0] == "s" and 8 <= r[1] <= 31: seen.setdefault(r[1], []).append(n)
    for r, w in seen.items():
        if len(w) > (1 if not 24 <= r <= 27 else 4): bad.append(f"descriptor word s{r} written {len(w)} times")
    if not quiet:
        for b in bad[:20]: print("VERIFY", b)
    return bad
if __name__ == "__main__":
    b = verify(open(sys.argv[1]).read()); print(len(b), "findings")
```

```python
import sys, json
from common import *

MF16 = "v_mfma_f32_16x16x32_bf16"
MF16S = "v_mfma_f32_16x16x16_bf16"
MF32 = "v_mfma_f32_32x32x16_bf16"
vL16, vFV, vFA, vP = 2, 8, 9, 10
CSV, CSQ, CSK, RES = 11, 12, 16, 20
OOB = 0x80000000
FL_O, FL_X1, FL_H, FL_X2 = 0, 4096, 8192, 12288
FL_HX = 16384 + 12288
def fl(layer, off): return WS_FLAGS + 16384 * layer + off
sROT, sBUD, sGL, sGS, sDS = 84, 98, 60, 61, 85
sT0, sT1, sPO, sFO = 32, 33, 86, 87
sML, sMS = 68, 69
WS_HXF = WS_O0 - 0x10000 if False else WS_END
WS_ARR = WS_HXF + 0x10000
sTAG, sXCC = 91, 76
WS_STAMP = 0x2000000
L_SA0, L_SA1, L_XH0, L_CS = 80896, 97280, 81920, 79872
def e_of(kk):
    p, tl = divmod(kk, 7)
    return 4 * p + tl if tl < 4 else 16 + 3 * p + (tl - 4)
KK_OF = {e_of(kk): kk for kk in range(28)}

class P:
    a1_bg_start, a1_bg_step = 30, 6
    gu_lead = 7
    gu_bg_start, gu_bg_step = 50, 2.6
    dn_lead = 12
    bgm = ""
    sleep = 0
    drop = ()
    codepf = 0
    ld = "sc1"
    dst = "sc1"
    safe = False
    plain = True
    notouch = ()

BO, BX1, BS1, BH = [WS_O[0]] * 2, [WS_X[0]] * 2, [WS_ST[0]] * 2, [WS_H[0]] * 2
def o_line(layer):
    return [f"s_lshl_b32 s32, s{sB}, 16", f"s_lshl_b32 s33, s{sCS}, 2", f"s_add_u32 s33, s33, s{sW}", "s_lshl_b32 s33, s33, 10",
            "s_add_u32 s32, s32, s33", f"s_add_u32 s32, s32, {BO[layer]}"]
def touch_next(k, t):
    return [lambda: k.touch(t, "p", o_line(1)), lambda: k.touch(t + 1, "q", [f"s_add_u32 s32, s64, {BX1[1]}"]),
            lambda: k.touch(t + 2, "t", [f"s_add_u32 s32, s65, {BS1[1]}"])]
def gu_tile(d):
    return [f"s_lshl_b32 {d}, s{sC}, 1", f"s_and_b32 s33, s{sW}, 1", f"s_add_u32 {d}, {d}, s33", f"s_lshl_b32 {d}, {d}, 1", f"s_lshr_b32 s33, s{sW}, 1", f"s_add_u32 {d}, {d}, s33"]
def h_base(d, layer):
    return gu_tile(d) + [f"s_mul_i32 {d}, {d}, 112", f"s_mul_i32 s33, s{sM}, 7",
            f"s_add_u32 {d}, {d}, s33", f"s_lshl_b32 {d}, {d}, 10", f"s_add_u32 {d}, {d}, {BH[layer]}"]

class F(K):
    def __init__(self):
        super().__init__(); self.spins = []; self.nspin = 0; self.st = ""; self.npf = 0
    def poll_issue(self, va, tag): self.vm(f"buffer_load_dword v{vP}, v{va}, {SRD_WS}, s{sPO} offen sc1", tag)
    def poll_addr(self, va, nl, sh=2):
        self.e(f"v_cmp_gt_u32 vcc, {nl}, v1", f"v_lshlrev_b32 v{va}, {sh}, v1", f"v_mov_b32 v{vP}, {OOB:#x}", f"v_cndmask_b32 v{va}, v{vP}, v{va}, vcc")
        self.nl = nl
    def poll_check(self, va, tag, thr):
        n = self.nspin; self.nspin += 1
        self.stamp(f"poll<{tag}")
        self.wait(vm=[tag])
        self.stamp(f"poll={tag}")
        msk = f"s_and_b32 s99, vcc_lo, {(1 << self.nl) - 1:#x}"
        self.e(f"v_cmp_gt_u32 vcc, {thr}, v{vP}", msk, f"s_cbranch_scc1 L_spin{n} ;np", f"L_back{n}: ;np")
        self.stamp(f"poll>{tag}")
        self.spins += [f"L_spin{n}:", f"s_sub_u32 s{sBUD}, s{sBUD}, 1", f"s_cbranch_scc1 L_give{n}"] + ([f"s_sleep {P.sleep}"] if P.sleep else []) + [
                       f"buffer_load_dword v{vP}, v{va}, {SRD_WS}, s{sPO} offen sc1", "s_waitcnt vmcnt(0)",
                       f"v_cmp_gt_u32 vcc, {thr}, v{vP}", msk, f"s_cbranch_scc1 L_spin{n}", f"s_branch L_back{n}",
                       f"L_give{n}:", f"s_mov_b32 s{sBUD}, 0", f"s_branch L_back{n}"]
    def flag(self, val, soff=sFO, st=None):
        self.e(f"v_mov_b32 v{vFV}, {val}")
        if st is not None:
            self.vm(f"buffer_store_dword v{vFV}, v{vFA}, {SRD_WS}, s{soff} offen {st}", "flag"); return
        if P.flagbr:
            self.dstore(f"buffer_store_dword v{vFV}, v{vFA}, {SRD_WS}, s{soff} offen", "flag", True); return
        self.e(f"s_or_b32 s99, s{soff}, s{sML}")
        self.vm(f"buffer_store_dword v{vFV}, v{vFA}, {SRD_WS}, s99 offen", "flag")
        self.e(f"s_or_b32 s99, s{soff}, s{sMS}")
        self.vm(f"buffer_store_dword v{vFV}, v{vFA}, {SRD_WS}, s99 offen sc1", "flag")
    def dstore(self, text, tag, always=False):
        if not P.plain and not always:
            self.vm(text + " sc1", tag); return
        n = self.nspin; self.nspin += 1
        self.e(f"s_cmp_lg_u32 s{sML}, 0", f"s_cbranch_scc1 L_alt{n} ;np")
        self.vm(text, tag)
        self.e(f"L_back{n}: ;np")
        self.spins += [f"L_alt{n}:", "s_nop 4", text + " sc1", f"s_branch L_back{n}"]
    def valid(self, test, reload):
        n = self.nspin; self.nspin += 1
        self.e(*test); self.e(f"s_cbranch_vccnz L_rl{n} ;np", f"L_back{n}: ;np")
        self.spins += [f"L_rl{n}:", f"s_sub_u32 s{sBUD}, s{sBUD}, 1", f"s_cbranch_scc1 L_give{n}"] + reload + ["s_waitcnt vmcnt(0)"] + test + \
                      [f"s_cbranch_vccnz L_rl{n}", f"s_branch L_back{n}", f"L_give{n}:", f"s_mov_b32 s{sBUD}, 0", f"s_branch L_back{n}"]
    def touch(self, tmp, kind, base_expr, masked=True):
        if not P.plain or kind in P.notouch: return
        nl = {"p": 16, "q": 16, "s": 2, "t": 2, "h": 56}[kind]
        self.e(f"v_cmp_gt_u32 vcc, {nl}, v1")
        if kind in "pq": self.e(f"v_lshrrev_b32 v{tmp}, 3, v1", f"v_lshlrev_b32 v{tmp}, {15 if kind == 'p' else 13}, v{tmp}", f"v_and_b32 v{vFV}, 7, v1", f"v_lshl_add_u32 v{tmp}, v{vFV}, 7, v{tmp}")
        else: self.e(f"v_lshlrev_b32 v{tmp}, {11 if kind == 's' else 7}, v1")
        self.e(f"v_mov_b32 v{vFV}, {OOB:#x}", *base_expr)
        self.e(f"v_cndmask_b32 v{tmp}, v{vFV}, v{tmp}, vcc")
        if masked: self.e(f"s_or_b32 s32, s32, s{sML}")
        self.vm(f"buffer_load_dword v{tmp}, v{tmp}, {SRD_WS}, s32 offen {P.t_mod}", "touch")
    def vm(self, text, tag=None):
        kind = tag[0] if isinstance(tag, tuple) else tag
        if kind in P.drop:
            self.seen.add(tag); return
        super().vm(text, tag)
    def codepf(self, tmpv, per=2048):
        if not P.codepf: return
        n = self.npf; self.npf += 1
        sh = (per // 64).bit_length() - 1
        self.e(f"L_pf{n}: ;np", f"s_mul_i32 s32, s{sW}, {per}", f"s_add_u32 s32, s32, L_pf{n}-L_pc", f"v_lshlrev_b32 v{tmpv}, {sh}, v1")
        raise NotImplementedError
    def flush_spins(self):
        for l in self.spins: self.e(l)
        self.spins = []

def batch(k, i):
    src = f"s_add_u32 s62, s{sGS}, {i*16384}" if i < 15 else f"s_add_u32 s62, s{sDS}, {(16 + 4*(i-15))*1024}"
    def f(q):
        k.set_m0(f"s_add_u32 m0, s{sGL}, {(i % 10)*16384}")
        if i != 14: k.set_s(src)
        elif k.last.get(62) != f"s_cselect_b32 s62, {OOB>>1:#x}, s62":
            k.e(src, f"s_cmp_ge_u32 s{sW}, 2", f"s_cselect_b32 s62, {OOB>>1:#x}, s62")
        k.vm(f"buffer_load_dwordx4 v{vL16}, {SRD_WS}, s62 offen offset:{q*1024} {P.bgm} lds", ("gw", i))
    return [lambda q=q: f(q) for q in range(4)]

def bg_batches(k, bs, period, dep=lambda b: None):
    for b in bs:
        for f in batch(k, b): k.bg_add(f, period, ("gw", b), dep(b))
def bg_list(k, fns, period, tag, dep=None):
    for f in fns: k.bg_add(f, period, tag, dep)

def regloads(k, base_sgpr, off, dst, n, tag, tmp=63):
    fns = []
    for j in range(n):
        def f(j=j):
            k.set_s(f"s_add_u32 s{tmp}, s{base_sgpr}, {off + (j & ~3)*1024}")
            k.vm(f"buffer_load_dwordx4 {dst(j)}, v{vL16}, {SRD_WS}, s{tmp} offen offset:{(j%4)*1024} {P.bgm}", tag)
        fns.append(f)
    return fns
def wow(k):
    def f(i, q):
        k.set_m0(f"s_add_u32 m0, s{sGL}, {(6 + i)*16384}"); k.set_s(f"s_add_u32 s63, s88, {i*16384}")
        k.vm(f"buffer_load_dwordx4 v{vL16}, {SRD_WS}, s63 offen offset:{q*1024} lds", "wow")
    return [lambda i=i, q=q: f(i, q) for i in range(4) for q in range(4)]

def pack_issue(k):
    for r in (68, 69, 72, 73, 74, 75, 76, 77): assert k.last[r].startswith("s_load"), f"kernel argument s{r} overwritten"
    k.e("v_lshrrev_b32 v44, 3, v1", "v_and_b32 v43, 7, v1", "v_and_b32 v45, 2, v44", "v_lshlrev_b32 v45, 1, v45",
        "v_xor_b32 v43, v43, v45", "v_lshlrev_b32 v43, 4, v43", f"s_add_u32 s34, s49, {L_X + 4096}")
    k.e("s_cmp_ge_u32 s2, 112", "s_cbranch_scc1 L_pki_small")
    k.e("s_and_b32 s35, s2, 1", "s_bfe_u32 s36, s2, 0x10001", "s_lshr_b32 s37, s2, 2")
    k.e("s_cmp_eq_u32 s35, 0", "s_cselect_b32 s24, s72, s74", "s_cselect_b32 s25, s73, s75",
        f"s_mov_b32 s26, {512*3584:#x}", "s_mov_b32 s27, 0x20000")
    k.e("v_mul_u32_u24 v46, 3584, v44", "v_add_u32 v46, v46, v43")
    k.e("s_lshl_b32 s38, s36, 2", f"s_add_u32 s38, s38, s{sW}", f"s_mul_i32 s38, s38, {64*3584}",
        "s_lshl_b32 s39, s37, 7", "s_add_u32 s38, s38, s39")
    for i in range(8):
        k.e(f"s_add_u32 m0, s34, {(i>>2)*8192 + (i&3)*1024}", f"s_add_u32 s39, s38, {i*8*3584}", f"buffer_load_dwordx4 v46, {SRD_PK}, s39 offen {P.pk_mod} lds")
    k.e("s_branch L_pki_done")
    k.label("L_pki_small")
    k.e("s_sub_u32 s35, s2, 112", "s_lshl_b32 s35, s35, 3", f"s_lshl_b32 s36, s{sW}, 1", "s_add_u32 s35, s35, s36")
    k.e("s_cmp_lt_u32 s35, 896", "s_cselect_b32 s24, s76, s68", "s_cselect_b32 s25, s77, s69", f"s_mov_b32 s26, {512*1024:#x}",
        f"s_cselect_b32 s26, {1792*1024:#x}, s26", "s_mov_b32 s27, 0x20000", "s_cselect_b32 s37, 1, 0",
        "s_movk_i32 s38, 896", "s_cselect_b32 s38, 0, s38")
    k.e("s_cselect_b32 s39, 0, 1", "s_cselect_b32 s70, 14, 15", "s_movk_i32 s71, 0x4000", "s_cselect_b32 s71, 0x80, s71")
    k.e("s_sub_u32 s35, s35, s38", "s_lshr_b32 s35, s35, s39", "s_and_b32 s36, s35, 7", "s_lshr_b32 s35, s35, 3")
    k.e("v_lshl_add_u32 v46, v44, 10, v43", "s_lshl_b32 s38, s35, s70", "s_lshl_b32 s39, s36, 7", "s_add_u32 s38, s38, s39")
    for i in range(2):
        for h in range(2):
            k.e(f"s_add_u32 m0, s34, {(2*i+h)*1024}", f"s_add_u32 s39, s38, {h*8192}", f"buffer_load_dwordx4 v46, {SRD_PK}, s39 offen {P.pk_mod} lds")
        if i == 0: k.e("s_add_u32 s38, s38, s71")
    k.label("L_pki_done")
    k.vmq.append("pk"); k.seen.add("pk")

PQ = [76, 80, 84, 88, 92, 96, 36, 40]
def pack_process(k, mid1, mid2):
    k.e("v_bfe_u32 v46, v1, 2, 2", "v_and_b32 v47, 3, v1", "v_bfe_u32 v48, v1, 4, 1", "v_lshrrev_b32 v49, 5, v1")
    k.e("v_and_b32 v50, 2, v46", "v_add_u32 v50, v50, v48", "v_lshlrev_b32 v50, 5, v50",
        "v_lshl_add_u32 v50, v46, 7, v50", "v_lshl_add_u32 v50, v47, 3, v50", "v_add_u32 v50, s34, v50")
    k.e("s_cmp_ge_u32 s2, 112", "s_cbranch_scc1 L_pk_small")
    q0 = list(k.vmq)
    k.e("v_lshl_add_u32 v56, v49, 10, v50", "v_xor_b32 v57, 64, v56")
    k.e("s_lshl_b32 s39, s37, 2", "v_add_u32 v58, s39, v48")
    k.e("s_lshl_b32 s70, s36, 2", f"s_add_u32 s70, s70, s{sW}", "s_lshl_b32 s70, s70, 2")
    k.e("v_and_b32 v66, 15, v1", "s_lshl_b32 s71, s35, 8", "v_lshl_add_u32 v66, v66, 4, s71")
    for p in range(2):
        T, fs, tl, st_, b, aug = 59, 60, 61, 62 + p, 64 + p, 68 + p
        k.e(f"v_add_u32 v{T}, {2*p}, v58", f"v_mul_u32_u24 v{fs}, 9363, v{T}", f"v_lshrrev_b32 v{fs}, 16, v{fs}",
            f"v_mul_u32_u24 v{tl}, 7, v{fs}", f"v_sub_u32 v{tl}, v{T}, v{tl}")
        k.e(f"v_cmp_gt_u32 vcc, 3, v{tl}", f"v_mul_u32_u24 v67, 33, v{tl}", f"v_mov_b32 v{st_}, 1", "v_mov_b32 v70, 3",
            f"v_cndmask_b32 v67, v67, v{tl}, vcc", f"v_cndmask_b32 v{st_}, v{st_}, v70, vcc")
        k.e(f"v_mul_u32_u24 v{fs}, 231, v{fs}", f"v_add_u32 v67, v67, v{fs}")
        k.e(f"v_lshl_add_u32 v70, v{st_}, 5, v67", "v_lshlrev_b32 v70, 10, v70", "v_add_u32 v70, v70, v66",
            "s_lshl_b32 s71, s36, 9", f"v_add_u32 v{aug}, s71, v70")
        k.e(f"v_mul_lo_u32 v70, v{st_}, s70", "v_add_u32 v67, v67, v70", "v_lshlrev_b32 v67, 10, v67",
            "v_add_u32 v67, v67, v66", f"v_lshl_add_u32 v{b}, v49, 9, v67", f"v_lshlrev_b32 v{st_}, 10, v{st_}")
    k.e("v_mov_b32 v71, 0x3f803f80", "v_mov_b32 v72, 0", "v_mov_b32 v73, 0", "v_cmp_gt_u32 vcc, 32, v1", "v_mov_b32 v46, 0", "v_mov_b32 v47, 0",
        "v_cndmask_b32 v68, v69, v68, vcc", f"s_lshl_b32 s72, s{sW}, 8", "s_add_u32 s72, s72, 0x10000", "v_lshl_add_u32 v74, v1, 2, s72",
        "v_lshlrev_b32 v75, 2, v1", "v_add_u32 v75, 0x10000, v75")
    k.e(f"s_mov_b32 s70, {WS_PGU}", "s_mov_b32 s71, s70", "s_mov_b32 s72, s70", "s_mov_b32 s73, s70", f"s_cmp_eq_u32 s{sW}, 0", f"s_cselect_b32 s74, s70, {OOB>>1:#x}")
    k.wait(vm="pk")
    for ks in range(4):
        for p in range(2):
            for j in range(2): k.ds(f"ds_read_b64_tr_b16 {vr(PQ[2*ks+p]+2*j,2)}, v{56+p} offset:{(ks>>1)*8192 + (ks&1)*2048 + j*512}", ("t", ks, p))
        if ks == 2: k.wait(lg=[("t", 0, 1)])
    mid1()
    for ks in range(4):
        for p in range(2):
            k.wait(lg=[("t", ks, p)])
            for d in range(4): k.e(f"v_dot2c_f32_bf16 v{72+p}, v{PQ[2*ks+p]+d}, v71")
    k.e("v_permlane32_swap_b32 v72, v73", "v_add_f32 v72, v72, v73")
    k.ds(f"ds_write_b32 v74, v72 offset:{L_CS - 65536}")
    k.wait(lg="all"); k.e("s_barrier")
    for w in range(4): k.ds(f"ds_read_b32 v{56+w}, v75 offset:{L_CS - 65536 + 256*w}")
    mid2()
    k.wait(lg="all")
    k.e("v_add_f32 v56, v56, v57", "v_add_f32 v58, v58, v59", "v_add_f32 v56, v56, v58")
    k.e("v_cvt_pk_bf16_f32 v45, v56, v46", "v_lshlrev_b32 v57, 16, v45", "v_sub_f32 v57, v56, v57", "v_cvt_pk_bf16_f32 v44, v56, v57")
    k.e("s_branch L_pk_done")
    k.label("L_pk_small")
    k.vmq = list(q0)
    k.e(f"v_mov_b32 v64, v{vL16}", f"v_add_u32 v65, 1024, v{vL16}", f"v_mov_b32 v68, v{vL16}", f"s_mov_b32 s72, {OOB>>1:#x}", "s_mov_b32 s73, s72", "s_mov_b32 s74, s72")
    k.e("s_cmp_eq_u32 s37, 0", "s_cbranch_scc1 L_pk_wo")
    k.e("s_mul_i32 s38, s35, 2341", "s_lshr_b32 s38, s38, 16", "s_mul_i32 s39, s38, 28", "s_sub_u32 s39, s35, s39",
        "s_mul_i32 s70, s39, 9363", "s_lshr_b32 s70, s70, 16", "s_mul_i32 s71, s70, 7", "s_sub_u32 s71, s39, s71")
    for u in range(2):
      k.e(f"s_sub_u32 s39, s70, s36" if P.hrot else "s_mov_b32 s39, s70", f"s_sub_u32 s39, s39, {u if P.hrot else 0}", "s_and_b32 s39, s39, 3",
        "s_lshl_b32 s32, s39, 2", "s_add_u32 s32, s32, s71", "s_mul_i32 s33, s39, 3", "s_add_u32 s33, s33, s71", "s_add_u32 s33, s33, 12",
        "s_cmp_lt_u32 s71, 4", "s_cselect_b32 s32, s32, s33", "s_mul_i32 s33, s38, 28", "s_add_u32 s32, s32, s33", f"s_lshl_b32 s{(35, 37)[u]}, s32, 11")
    k.e("v_lshl_add_u32 v56, v49, 9, v50", "v_xor_b32 v57, 64, v56", f"v_mov_b32 v62, {224*KB}", f"v_mov_b32 v63, {224*KB}")
    k.e(f"s_mul_i32 s36, s36, {224*KB}", f"s_add_u32 s36, s36, {WS_PDN}", "s_add_u32 s70, s36, s35", "s_add_u32 s71, s36, s37")
    k.wait(vm="pk")
    for i in range(2):
        for nn in range(2):
            for j in range(2): k.ds(f"ds_read_b64_tr_b16 {vr(PQ[2*i+nn]+2*j,2)}, v{56+nn} offset:{i*2048 + j*1024}", "t")
    mid1(); mid2()
    k.wait(lg="all")
    k.e("s_branch L_pk_done")
    k.label("L_pk_wo")
    k.vmq = list(q0)
    k.e("v_and_b32 v56, 2, v46", "v_lshlrev_b32 v56, 1, v56", "v_xor_b32 v56, v56, v47", "v_lshlrev_b32 v56, 4, v56", "v_lshl_add_u32 v56, v46, 7, v56",
        "v_lshrrev_b32 v57, 4, v1", "v_lshl_add_u32 v56, v57, 10, v56", "v_add_u32 v56, s34, v56", "v_xor_b32 v57, 64, v56",
        "v_mov_b32 v62, 0x800", "v_mov_b32 v63, 0x800")
    k.e("s_lshl_b32 s36, s36, 16", "s_lshl_b32 s35, s35, 12", "s_add_u32 s70, s36, s35", f"s_add_u32 s70, s70, {WS_PWO}", "s_mov_b32 s71, s70")
    k.wait(vm="pk")
    for j in range(4):
        for jj in range(2): k.ds(f"ds_read_b64_tr_b16 {vr(PQ[j]+2*jj,2)}, v{56+(j>>1)} offset:{jj*512 + 8*(j&1)}", "t")
    mid1(); mid2()
    k.wait(lg="all")
    k.label("L_pk_done")

def pack_stores(k):
    ops = []
    for r in range(4):
        for p in range(2):
            ops.append(("v", lambda r=r, p=p: k.vm(f"buffer_store_dwordx4 {vr(PQ[2*r+p],4)}, v{64+p}, {SRD_WS}, s{70+r} offen sc1", "pks")))
            if r < 3: ops.append(("a", lambda p=p: k.e(f"v_add_u32 v{64+p}, v{64+p}, v{62+p}")))
    ops.append(("v", lambda: k.vm(f"buffer_store_dwordx4 v[44:47], v68, {SRD_WS}, s74 offen sc1", "pks")))
    return ops

A_XF, A_K, A_V, A_Q = 36, 76, 86, 96
A_STA, A_STB, A_OP, A_DX, A_PA, A_ST, A_ACC = 104, 106, 144, 152, 153, 140, 184
class R0: XE, XO, SA, SB, CI, ONE, M, ATT, TMP = 3, 4, 5, 6, 28, 32, 52, (116, 160), 60
class R1: XE, XO, SA, SB, CI, ONE, M, ATT, TMP = 116, 117, 118, 119, 252, 124, 120, (228, 160), 28
A_U, A_PX = 226, 115
A11_ORDER = [2, 3, 1, 0, "h"]
A11_POS = {2: 3, 3: 0, 1: 1, 0: 2, "h": 3}
sODD, sCUR0, sCUR1, sCEXP = 40, 42, 44, 46

def a1_setup(k, layer):
    R = (R0, R1)[layer]
    real = k; out = []
    class Rec:
        def e(self, *t):
            if any(x.startswith("s_cmp") for x in t): out.append(lambda t=t: real.e(*t))
            else: out.extend(lambda x=x: real.e(x) for x in t)
    k = Rec()
    t16, g, tt, tb = R.TMP, R.TMP + 1, R.TMP + 2, R.TMP + 3
    x, y, z = R.ONE, R.ONE + 1, R.ONE + 2
    sa = L_SA0 if layer == 0 else L_SA1
    k.e(f"v_and_b32 v{t16}, 15, v1", f"v_lshrrev_b32 v{g}, 4, v1", f"v_and_b32 v{tt}, 7, v1", f"v_bfe_u32 v{tb}, v1, 3, 1")
    k.e(f"v_lshlrev_b32 v{tb}, 13, v{tb}")
    if layer == 0: k.e(f"v_add_u32 v{tb}, {L_X}, v{tb}")
    if layer == 0:
        k.e(f"v_and_b32 v{x}, 6, v{tt}", f"v_xor_b32 v{x}, v{x}, v{g}", f"v_lshlrev_b32 v{x}, 4, v{x}",
            f"v_lshl_add_u32 v{x}, v{tt}, 7, v{x}", f"v_add_u32 v{R.XE}, v{x}, v{tb}", f"v_xor_b32 v{R.XO}, 64, v{R.XE}")
    else:
        k.e(f"v_lshl_add_u32 v{x}, v{g}, 7, v{tb}", f"v_lshl_add_u32 v{R.XE}, v{tt}, 4, v{x}", f"v_add_u32 v{R.XO}, 512, v{R.XE}")
    k.e(f"v_lshlrev_b32 v{R.SA}, 3, v{t16}", f"v_add_u32 v{R.SA}, {sa}, v{R.SA}",
        f"v_lshlrev_b32 v{R.SB}, 5, v{g}", f"v_add_u32 v{R.SB}, {sa}, v{R.SB}")
    k.e(f"v_and_b32 v{x}, 1, v1", f"v_cmp_eq_u32 s[{sODD}:{sODD+1}], 1, v{x}",
        f"v_lshl_add_u32 v{y}, v{g}, 2, v{x}", f"v_cmp_le_u32 s[{sCUR0}:{sCUR0+1}], v{y}, v{t16}",
        f"v_add_u32 v{y}, 2, v{y}", f"v_cmp_le_u32 s[{sCUR1}:{sCUR1+1}], v{y}, v{t16}")
    k.e(f"v_mov_b32 v{y}, 0xffff", f"v_mov_b32 v{z}, 0xffff0000", f"v_cndmask_b32 v{y}, v{y}, v{z}, s[{sODD}:{sODD+1}]", f"v_mov_b32 v{z}, 0")
    k.e(f"v_cndmask_b32 v{R.M+2}, v{z}, v{y}, s[{sCUR0}:{sCUR0+1}]", f"v_cndmask_b32 v{R.M}, v{y}, v{z}, s[{sCUR0}:{sCUR0+1}]",
        f"v_cndmask_b32 v{R.M+3}, v{z}, v{y}, s[{sCUR1}:{sCUR1+1}]", f"v_cndmask_b32 v{R.M+1}, v{y}, v{z}, s[{sCUR1}:{sCUR1+1}]")
    k.e(f"s_cmp_eq_u32 s{sB}, 0", f"s_cselect_b32 s70, {f2u(-1e38):#x}, 0", f"s_mov_b32 s{sCEXP}, {f2u(0.25*LOG2E):#x}")
    for i in range(4): k.e(f"v_mov_b32 v{R.CI+i}, s70", f"v_mov_b32 v{R.ONE+i}, 0x3f803f80")
    return out

def o_bases(k, layer):
    k.e(f"s_lshl_b32 s32, s{sB}, 16", f"s_lshl_b32 s33, s{sCS}, 2", f"s_add_u32 s33, s33, s{sW}", "s_lshl_b32 s53, s33, 10",
        "s_add_u32 s32, s32, s53", f"s_add_u32 s53, s32, {BO[layer]}", "s_add_u32 s54, s53, 32768",
        f"s_lshl_b32 s32, s{sB}, 5", "s_add_u32 s32, s32, s33", "s_lshl_b32 s32, s32, 2", f"s_add_u32 s89, s32, {fl(layer, FL_O)}")

def ln_finish(a, s, q):
    a(f"v_mul_f32 v{s}, {f2u(-1/512):#x}, v{s}"); a(f"v_mul_f32 v{q}, {f2u(1/512):#x}, v{q}")
    a(f"v_fma_f32 v{q}, -v{s}, v{s}, v{q}"); a(f"v_max_f32 v{q}, 0, v{q}"); a(f"v_add_f32 v{q}, {f2u(1e-5):#x}, v{q}")

A_QS = 68
def fix_reads(k, R, t, S):
    i = 0 if t == "h" else t + 1
    return [lambda: k.ds(f"ds_read_b64 {vr(S,2)}, v{R.SA} offset:{i*128}", ("sa", t)),
            lambda: k.ds(f"ds_read_b128 {vr(S+2,4)}, v{R.SB} offset:{i*128}", ("sa", t)),
            lambda: k.ds(f"ds_read_b128 {vr(S+6,4)}, v{R.SB} offset:{i*128+16}", ("sa", t))]
def fix(k, R, fx, t, acc, at, pk, S=A_STA, pre=False, nxt=()):
    a = lambda txt, c=1, at=0: fx.add(lambda: k.e(txt), c, at)
    i = 0 if t == "h" else t + 1
    if not pre:
        for n, f in enumerate(fix_reads(k, R, t, S)): fx.add(f, 1, at - P.a1_salead if n == 0 else 0)
    fx.add(lambda: k.wait(lg=[("sa", t)]), 1, at)
    for f in nxt: fx.add(f)
    for r0, cs, dst in ((acc[0], CSQ, None if t == "h" else A_Q + 2*t), (acc[1], CSK, A_K + 2*i)):
        if dst is None: continue
        isq = cs == CSQ
        if pk:
            for h in (0, 2): a(f"v_pk_fma_f32 {vr(r0+h,2)}, {vr(S,2)}, {vr(cs+h,2)}, {vr(r0+h,2)} op_sel_hi:[0,1,1]")
            if not isq:
                for h in (0, 2): a(f"v_pk_mul_f32 {vr(r0+h,2)}, {vr(S,2)}, {vr(r0+h,2)} op_sel:[1,0] op_sel_hi:[1,1]")
        else:
            for r in range(4): a(f"v_fmac_f32 v{r0+r}, v{S}, v{cs+r}")
            if not isq:
                for r in range(4): a(f"v_mul_f32 v{r0+r}, v{S+1}, v{r0+r}")
        if isq: a(f"v_mul_f32 v{A_QS+t}, s{sCEXP}, v{S+1}")
        for h in range(2): a(f"v_cvt_pk_bf16_f32 v{dst+h}, v{r0+2*h}, v{r0+2*h+1}")
    r0 = acc[2]
    for r in range(4): a(f"v_fmac_f32 v{r0+r}, v{S+2+2*r}, v{CSV}")
    for r in range(4): a(f"v_mul_f32 v{r0+r}, v{S+3+2*r}, v{r0+r}")
    for h in range(2): a(f"v_cvt_pk_bf16_f32 v{A_V+2*i+h}, v{r0+2*h}, v{r0+2*h+1}")
    fx.add(lambda: (k.mark(("fix", t)), k.stamp(f"t0 fix{t}")), 0)

def attn(k, R, fx, t, B):
    SC, SP, PP, O, SUM, T = B, B + 4, B + 8, B + 12, B + 16, B + 20
    a = lambda txt, c=1: fx.add(lambda: k.e(txt), c)
    q = vr(A_Q + 2*t, 2)
    fx.dep(("fix", t)); fx.dep(("fix", t - 1 if t else "h")); fx.skip(1)
    a(f"{MF16S} {vr(SC,4)}, {vr(A_K+2*(t+1),2)}, {q}, 0", 2)
    a(f"{MF16S} {vr(SP,4)}, {vr(A_K+2*t,2)}, {q}, {vr(R.CI,4) if t == 0 else '0'}", 2)
    fx.skip(3)
    for rr, cur in ((0, sCUR0), (1, sCUR1)):
        a(f"v_cndmask_b32 v{T+2}, v{SC+2*rr}, v{SC+2*rr+1}, s[{sODD}:{sODD+1}]")
        a(f"v_cndmask_b32 v{T+3}, v{SP+2*rr}, v{SP+2*rr+1}, s[{sODD}:{sODD+1}]")
        a(f"v_cndmask_b32 v{T+rr}, v{T+3}, v{T+2}, s[{cur}:{cur+1}]")
    a(f"v_max_f32 v{T+2}, v{T}, v{T+1}"); a(f"v_mov_b32 v{T+3}, v{T+2}"); fx.skip(1)
    a(f"v_permlane16_swap_b32 v{T+2}, v{T+3}", 2); a(f"v_max_f32 v{T+2}, v{T+2}, v{T+3}"); a(f"v_mov_b32 v{T+3}, v{T+2}"); fx.skip(1)
    a(f"v_permlane32_swap_b32 v{T+2}, v{T+3}", 2); a(f"v_max_f32 v{T+2}, v{T+2}, v{T+3}")
    a(f"v_mul_f32 v{T+2}, v{A_QS+t}, v{T+2}")
    for rr in range(2): a(f"v_fma_f32 v{T+rr}, v{T+rr}, v{A_QS+t}, -v{T+2}")
    for rr in range(2): a(f"v_exp_f32 v{T+rr}, v{T+rr}", 2)
    for rr in range(2): a(f"v_cvt_pk_bf16_f32 v{T+rr}, v{T+rr}, v{T+rr}")
    a(f"v_and_b32 v{PP}, v{T}, v{R.M}"); a(f"v_and_b32 v{PP+1}, v{T+1}, v{R.M+1}")
    a(f"v_and_b32 v{PP+2}, v{T}, v{R.M+2}"); a(f"v_and_b32 v{PP+3}, v{T+1}, v{R.M+3}")
    fx.skip(1)
    a(f"{MF16} {vr(SUM,4)}, {vr(R.ONE,4)}, {vr(PP,4)}, 0", 2)
    a(f"{MF16} {vr(O,4)}, {vr(A_V+2*t,4)}, {vr(PP,4)}, 0", 2)
    fx.skip(3)
    a(f"v_rcp_f32 v{T}, v{SUM}", 2); fx.skip(1)
    for r in range(4): a(f"v_mul_f32 v{O+r}, v{T}, v{O+r}")
    for h in range(2): a(f"v_cvt_pk_bf16_f32 v{A_OP+2*t+h}, v{O+2*h}, v{O+2*h+1}")
    fx.add(lambda: (k.mark(("attn", t)), k.stamp(f"t0 attn{t}")), 0)

def ostore(k, fx, pair):
    b = A_OP + 4 * pair
    fx.dep(("attn", 2*pair)); fx.dep(("attn", 2*pair + 1))
    fx.dep("po1" if pair == 0 else "blank")
    fx.skip(1)
    fx.add(lambda: k.e(f"v_permlane16_swap_b32 v{b}, v{b+2}"), 2); fx.add(lambda: k.e(f"v_permlane16_swap_b32 v{b+1}, v{b+3}"), 2)
    fx.add(lambda: (k.dstore(f"buffer_store_dwordx4 {vr(b,4)}, v{vL16}, {SRD_WS}, s{53+pair} offen", ("ost", pair)), k.mark(("ost", pair))))

Z_WD, Z_TR, Z_HE, Z_HO, Z_OE, Z_OO = 164, 165, 166, 167, 168, 169
Z_XF, Z_SUM, Z_GR, Z_SUMH, Z_GRH, Z_CV = 104, 240, 244, 248, 252, 100
P.k_first = 4; P.k_pack = None; P.k_prep = 13
P.k_look, P.k_atom, P.k_bar, P.k_vgap, P.k_pst, P.k_pgap = 3, 6, 3, 3, 3, 0
NS0 = 6
def z_acc(t):
    if t == "h": return (None, A_ACC + 48, A_ACC + 52)
    return (A_ACC + 12*t, A_ACC + 12*t + 4, A_ACC + 12*t + 8)

def a10_lanes(k):
    k.e("v_lshrrev_b32 v60, 3, v1", "v_and_b32 v61, 6, v60", "v_and_b32 v62, 7, v1", "v_xor_b32 v61, v61, v62",
        "v_lshlrev_b32 v61, 4, v61", f"v_lshl_add_u32 v{A_DX}, v60, 10, v61")
    k.e("v_and_b32 v61, 2, v60", f"s_and_b32 s32, s{sW}, 1", "s_lshl_b32 s32, s32, 2", "v_or_b32 v61, s32, v61", "v_xor_b32 v61, v61, v62",
        "v_lshlrev_b32 v61, 4, v61", "v_mul_u32_u24 v60, 3072, v60", f"v_add_u32 v{Z_WD}, v60, v61")
    if P.rot == 0: k.e(f"s_add_u32 s{sROT}, s{sB}, s{sCS}")
    elif P.rot == 1: k.e(f"s_lshl_b32 s32, s{sB}, 1", f"s_bfe_u32 s33, s{sB}, 0x10002", "s_add_u32 s32, s32, s33", f"s_add_u32 s{sROT}, s32, s{sCS}")
    elif P.rot == 2: k.e(f"s_lshl_b32 s32, s{sB}, 1", f"s_add_u32 s{sROT}, s32, s{sCS}")
    elif P.rot == 3: k.e(f"s_mov_b32 s{sROT}, s{sCS}")
    elif P.rot == 4: k.e(f"s_lshl_b32 s32, s{sB}, 1", f"s_bfe_u32 s33, s{sB}, 0x10002", f"s_add_u32 s{sROT}, s32, s33")
    elif P.rot == 5: k.e(f"s_mov_b32 s{sROT}, 0")
    k.e(f"s_and_b32 s{sROT}, s{sROT}, 7")
    k.e(f"s_lshl_b32 s47, s{sB}, 3", "s_sub_u32 s48, s47, 2", "s_max_i32 s48, s48, 0", f"s_and_b32 s32, s{sW}, 1", "s_add_u32 s48, s48, s32",
        "s_lshl_b32 s48, s48, 13", f"s_lshl_b32 s32, s{sW}, 1", "s_add_u32 s47, s47, s32", "s_lshl_b32 s47, s47, 13")
    k.e(f"s_mul_i32 s51, s{sW}, {8*3072}", f"s_lshl_b32 s32, s{sCS}, 7", "s_add_u32 s51, s51, s32", f"s_mul_i32 s52, s{sW}, 3072")
    k.e(f"s_lshl_b32 s49, s{sW}, 14", f"s_and_b32 s32, s{sW}, 1", "s_lshl_b32 s50, s32, 13", f"s_lshr_b32 s32, s{sW}, 1",
        "s_lshl_b32 s33, s32, 10", "s_add_u32 s50, s50, s33", f"s_add_u32 s90, s32, s{sROT}")

def a10_x(k, c):
    S = lambda *t: [("s", lambda x=x: k.e(x)) for x in t]
    ld = lambda: k.vm(f"buffer_load_dwordx4 v{A_DX}, {SRD_X}, s33 offen {P.x_mod} lds", ("x", c))
    ops = S(f"s_add_u32 s33, s{sROT}, {c}", "s_and_b32 s33, s33, 7", "s_lshl_b32 s33, s33, 7", f"s_add_u32 m0, s49, {L_X + c*1024}", "s_add_u32 s33, s33, s47")
    ops += [("v", ld)] + S(f"s_add_u32 m0, s49, {L_X + 8192 + c*1024}", "s_add_u32 s33, s33, 8192") + [("v", ld)]
    if c % 2 == 0:
        ops += S(f"s_add_u32 s33, s90, {c}", "s_and_b32 s33, s33, 7", "s_lshl_b32 s33, s33, 7", f"s_add_u32 m0, s50, {L_XH0 + c*1024}", "s_add_u32 s33, s33, s48") + [("v", ld)]
    return ops

def a10_w(k, s):
    S = lambda *t: [("s", lambda x=x: k.e(x)) for x in t]
    if s & 1: ops = S(f"s_add_u32 m0, s52, {(s % NS0)*12288}", f"s_add_u32 s63, s63, {32*3072}")
    else: ops = S(f"s_add_u32 s63, s{sROT}, {s>>1}", "s_and_b32 s63, s63, 7", f"s_mul_i32 s63, s63, {64*3072}", f"s_add_u32 m0, s52, {(s % NS0)*12288}", "s_add_u32 s63, s63, s51")
    for p in range(3): ops.append(("v", lambda p=p: k.vm(f"buffer_load_dwordx4 v{Z_WD}, {SRD_QKV}, s63 offen offset:{p*1024} {P.w_mod} lds", ("w", s))))
    return ops
def run(ops):
    for _, f in ops: f()

def fill(k, mains, streams, cap=2):
    lastv = -99
    for g, m in enumerate(mains):
        m(); k.gap = g
        for a, o in streams:
            if a <= g and o and o[0][0] == "s": o.pop(0)[1](); break
        room = cap; nd = 0
        if g - lastv >= P.k_vgap and k.bg_step(): room -= 1; lastv = g
        while room > 0:
            pick = None
            for a, o in streams:
                if a > g or not o: continue
                t = o[0][0]
                if t == "d" and nd >= 1: continue
                if t == "v" and g - lastv < P.k_vgap: continue
                pick = o; break
            if pick is None: break
            t, f = pick.pop(0); f(); room -= 2 if t == "b" else 1
            if t == "d": nd += 1
            if t == "v": lastv = g
    for a, o in streams: run(o)

def a10_lanes2(k):
    k.e("v_lshrrev_b32 v60, 4, v1", "v_bfe_u32 v61, v1, 2, 2", "v_and_b32 v62, 1, v60", "v_lshlrev_b32 v62, 1, v62",
        "v_lshrrev_b32 v63, 1, v61", "v_or_b32 v62, v62, v63", f"v_xor_b32 v62, s{sW}, v62", "v_lshlrev_b32 v62, 5, v62",
        "v_mul_u32_u24 v60, 3072, v60", "v_lshl_add_u32 v60, v61, 7, v60", "v_add_u32 v60, v60, v62",
        "v_and_b32 v61, 3, v1", f"v_lshl_add_u32 v{Z_TR}, v61, 3, v60")
    k.e("v_and_b32 v60, 15, v1", "v_cmp_eq_u32 s[78:79], 0, v60")
    k.e(f"v_subrev_u32 v{Z_HE}, 16384, v{R0.XE}", f"v_subrev_u32 v{Z_HO}, 16384, v{R0.XO}",
        f"v_add_u32 v{Z_OE}, s49, v{R0.XE}", f"v_add_u32 v{Z_OO}, s49, v{R0.XO}")

def a10_loop(k, first):
    LA = P.k_look
    def sync(s, extra=()):
        k.wait(vm=[("w", s), ("x", s >> 1)] + list(extra)); k.e("s_barrier")
    nxt = [first]
    def dmas(upto):
        out = []
        while nxt[0] <= min(upto, 15):
            n = nxt[0]; nxt[0] += 1
            if n % 2 == 0: out += a10_x(k, n // 2)
            out += a10_w(k, n)
        return out
    def reads(s):
        fb = Z_XF + 24 * (s & 1); off = (s >> 1) * 1024; o = s & 1
        tr = lambda p, j: ("d", lambda: k.ds(f"ds_read_b64_tr_b16 {ar(12*s+4*p+2*j,2)}, v{Z_TR} offset:{(s%NS0)*12288 + p*1024 + j*512}", ("r", s, 0 if p == 0 else 1)))
        xr = lambda d, a, of, grp: ("d", lambda: k.ds(f"ds_read_b128 {vr(d,4)}, v{a} offset:{of}", ("r", s, grp)))
        out = [tr(0, 0), tr(0, 1)] + [xr(fb + 4*t, R0.XO if o else R0.XE, t*16384 + off, 0) for t in range(4)]
        out += [tr(1, 0), tr(1, 1), tr(2, 0), tr(2, 1), xr(fb + 16, Z_HO if o else Z_HE, off, 1), xr(fb + 20, Z_OO if o else Z_OE, off, 1)]
        return out
    l0_background(k)
    pst = pack_stores(k)
    sync(0)
    k.stamp("k0")
    run(reads(0)); run(dmas(LA - 1))
    for s in range(16):
        fb = Z_XF + 24 * (s & 1)
        c = lambda r: "0" if s == 0 else vr(r, 4)
        wq, wk, wv, one = ar(12*s, 4), ar(12*s + 4, 4), ar(12*s + 8, 4), vr(R0.ONE, 4)
        ms = [f"{MF16} {vr(z_acc(t)[0],4)}, {wq}, {vr(fb+4*t,4)}, {c(z_acc(t)[0])}" for t in range(4)]
        for t in [0, 1, 2, 3, "h"]:
            xf = vr(fb + (16 if t == "h" else 4*t), 4)
            ms.append(f"{MF16} {vr(z_acc(t)[1],4)}, {wk}, {xf}, {c(z_acc(t)[1])}")
            ms.append(f"{MF16} {vr(z_acc(t)[2],4)}, {xf}, {wv}, {c(z_acc(t)[2])}")
        ms += [f"{MF16} {vr(Z_CV,4)}, {wq}, {vr(fb+16,4)}, {c(Z_CV)}",
               f"{MF16} {vr(Z_SUM,4)}, {one}, {vr(fb+20,4)}, {c(Z_SUM)}", f"{MF16} {vr(Z_GR,4)}, {vr(fb+20,4)}, {vr(fb+20,4)}, {c(Z_GR)}",
               f"{MF16} {vr(Z_SUMH,4)}, {one}, {vr(fb+16,4)}, {c(Z_SUMH)}", f"{MF16} {vr(Z_GRH,4)}, {vr(fb+16,4)}, {vr(fb+16,4)}, {c(Z_GRH)}"]
        mains = [lambda m=m: k.e(m) for m in ms]
        if s == P.k_pack:
            k.wait(lg="all"); pack_process(k, lambda: None, lambda: None)
        k.wait(lg=[("r", s, 0)])
        streams = [(3, [("s", lambda: k.wait(lg=[("r", s, 1)]))] +
                       [("a", lambda d=d: k.e(f"v_cndmask_b32 v{fb+16+d}, v{fb+16+d}, v{R0.ONE}, s[78:79]")) for d in range(4)])]
        if s + 1 < 16:
            ex = ["pks"] if s + 1 == P.k_atom else []
            assert not ex or not pst, "arrival before the last pack store"
            assert P.k_prep > 14 - LA and (P.k_pack or 0) <= 8 - LA
            ops = [("b", lambda: sync(s + 1, ex))] + reads(s + 1)
            if ex: ops.append(("b", lambda: arrive(k)))
            streams.append((P.k_bar, ops))
            streams.append((0, dmas(s + LA)))
        n = 0; mine = []
        while pst and s >= (P.k_pack or 0) and (n < P.k_pst or pst[0][0] == "a"):
            n += pst[0][0] == "v"; mine.append(pst.pop(0))
        streams.append((P.k_pgap, mine))
        if s == P.k_prep: streams.append((6, tail_prep(k)))
        if s == P.k_touch:
            streams.append((2, [("b", lambda: k.touch(157, "p", ["s_mov_b32 s32, s53"], False)),
                                ("b", lambda: k.touch(158, "q", [f"s_add_u32 s32, s64, {BX1[0]}"], False)),
                                ("b", lambda: k.touch(159, "h", h_base("s32", 0), False) if P.h_touch0 == "k" else None)]))
        if s == P.k_gb: streams.append((1, [("v", lambda t=t: k.vm(t, "gb")) for t in GB_LOADS]))
        if s == P.k_chk: streams.append((1, [("b", lambda: rendezvous(k))]))
        if s == 15 and P.k_chk < 16:
            streams.append((max(P.k_bar, 4), [("b", lambda: (k.e("s_barrier"), k.mark("xfree")))]))
        fill(k, mains, streams)
        if s in (3, 7, 11): k.stamp(f"k{s+1}")
    k.stamp("k16")
    if P.k_chk >= 16: rendezvous(k)

GB_LOADS = [f"buffer_load_dwordx4 {vr(36+4*j,4)}, v{vL16}, {SRD_WS}, s75 offen offset:{j*1024} sc1" for j in range(4)] + \
           [f"buffer_load_dword v{vP}, v172, {SRD_WS}, s77 offen offset:8 sc1"]
def arrive(k):
    k.wait(vm=["tag"])
    k.e(f"v_readfirstlane_b32 s{sTAG}, v170", f"s_cmp_eq_u32 s{sTAG}, 0", "s_cbranch_scc1 L_tag_spin ;np", "L_tag_ok: ;np")
    k.spins += ["L_tag_spin:", f"s_sub_u32 s{sBUD}, s{sBUD}, 1", "s_cbranch_scc1 L_tag_give", f"buffer_load_dword v170, v{vFA}, {SRD_DBG}, 0 offen sc1",
                "s_waitcnt vmcnt(0)", f"v_readfirstlane_b32 s{sTAG}, v170", f"s_cmp_eq_u32 s{sTAG}, 0", "s_cbranch_scc1 L_tag_spin", "s_branch L_tag_ok",
                "L_tag_give:", f"s_mov_b32 s{sBUD}, 0", "s_branch L_tag_ok"]
    k.e(f"v_mov_b32 v176, s{sTAG}", "v_not_b32 v177, v176", f"v_mov_b32 v178, s{sXCC}")
    k.vm(f"buffer_store_dwordx4 v[176:179], v171, {SRD_WS}, s75 offen sc1", "arr")

def rendezvous(k):
    chk = [f"s_not_b32 s32, s{sTAG}"]
    for j in range(4): chk += [f"v_xor_b32 v{36+4*j}, s{sTAG}, v{36+4*j}", f"v_xor_b32 v{37+4*j}, s32, v{37+4*j}"]
    chk += ["v_or3_b32 v36, v36, v37, v40", "v_or3_b32 v44, v44, v45, v41", "v_or3_b32 v36, v36, v48, v49", "v_or_b32 v36, v36, v44", "v_cmp_ne_u32 vcc, 0, v36"]
    k.wait(vm=["gb"])
    k.e(*chk); k.e("s_cbranch_vccnz L_gb_spin ;np", "L_gb_ok: ;np")
    k.spins += ["L_gb_spin:", f"s_sub_u32 s{sBUD}, s{sBUD}, 1", "s_cbranch_scc1 L_gb_give", "s_sleep 2",
                f"buffer_load_dword v170, v{vFA}, {SRD_DBG}, 0 offen sc1", "s_waitcnt vmcnt(0)", "v_readfirstlane_b32 s32, v170", f"s_cmp_eq_u32 s32, s{sTAG}",
                "s_cbranch_scc1 L_gb_same", f"s_mov_b32 s{sTAG}, s32", f"v_mov_b32 v176, s{sTAG}", "v_not_b32 v177, v176",
                f"buffer_store_dwordx4 v[176:179], v171, {SRD_WS}, s75 offen sc1", "L_gb_same:"] + GB_LOADS + ["s_waitcnt vmcnt(0)"] + chk + \
               ["s_cbranch_vccnz L_gb_spin", "s_branch L_gb_ok", "L_gb_give:", f"s_mov_b32 s{sBUD}, 0", "s_branch L_gb_ok"]
    k.e(f"v_cmp_ne_u32 vcc, s{sXCC}, v{vP}", "s_and_b32 s99, vcc_lo, 0xffff" if not P.safe else "s_and_b32 s99, 1, 1",
        f"s_cselect_b32 s{sML}, {OOB>>1:#x}, 0", f"s_cselect_b32 s{sMS}, 0, {OOB>>1:#x}")
    k.mark("gb")

W_OA, W_UA, W_SA, W_RB = 152, 154, 155, 156
def wo_bases(k):
    k.e(f"s_lshl_b32 s32, s{sB}, 2", f"s_add_u32 s32, s32, s{sW}", "s_lshl_b32 s64, s32, 14", f"s_lshl_b32 s33, s{sCS}, 10", "s_add_u32 s64, s64, s33",
        "s_lshr_b32 s32, s32, 1", "s_lshl_b32 s80, s32, 15", "s_lshl_b32 s65, s32, 11", "s_lshl_b32 s66, s32, 3", f"s_add_u32 s66, s66, s{sCS}", "s_lshl_b32 s66, s66, 1",
        f"s_and_b32 s32, s{sW}, 1", "s_add_u32 s66, s66, s32", "s_lshl_b32 s66, s66, 2", "s_lshl_b32 s32, s32, 8", "s_add_u32 s80, s80, s32", "s_add_u32 s65, s65, s32",
        f"s_lshr_b32 s32, s{sCS}, 1", "s_lshl_b32 s32, s32, 9", "s_add_u32 s65, s65, s32", f"s_and_b32 s32, s{sCS}, 1", "s_lshl_b32 s32, s32, 3", "s_add_u32 s65, s65, s32")
def wo_lanes(k):
    x, y = 66, 67
    return [lambda t=t: k.e(*t) for t in (
        [f"v_and_b32 v{x}, 15, v1"], [f"v_lshrrev_b32 v{y}, 4, v1"], [f"v_lshlrev_b32 v{W_OA}, 4, v{x}"], [f"v_lshl_add_u32 v{W_SA}, v{y}, 2, v{W_OA}"],
        [f"v_lshl_add_u32 v{W_OA}, v{y}, 9, v{W_OA}"], [f"v_and_b32 v{W_UA}, 7, v1"], [f"v_lshlrev_b32 v{W_UA}, 4, v{W_UA}"], [f"v_lshl_add_u32 v{W_UA}, v{y}, 7, v{W_UA}"],
        [f"v_lshrrev_b32 v{x}, 3, v{x}"], [f"v_lshl_add_u32 v{W_UA}, v{x}, 13, v{W_UA}"], [f"v_add_u32 v{W_RB}, {6*16384}, v{vL16}"],
        ["v_cmp_gt_u32 vcc, 32, v1", f"v_mov_b32 v{y}, {OOB:#x}", f"v_cndmask_b32 v{W_SA}, v{y}, v{W_SA}, vcc"])]
def blanks(k, layer):
    if not P.tags: return [lambda: k.mark("blank")]
    z = 66
    return [lambda: (k.e(f"v_mov_b32 v{z}, -1"), k.dstore(f"buffer_store_dword v{z}, v{vL16}, {SRD_WS}, s53 offen", "blank")),
            lambda: (k.e(f"s_add_u32 s58, s64, {BX1[layer]}"), k.dstore(f"buffer_store_dword v{z}, v{W_UA}, {SRD_WS}, s58 offen", "blank")),
            lambda: k.dstore(f"buffer_store_dword v{z}, v{W_UA}, {SRD_WS}, s58 offen offset:512", "blank"),
            lambda: (k.e(f"s_add_u32 s58, s65, {BS1[layer]}"), k.dstore(f"buffer_store_dword v{z}, v{W_SA}, {SRD_WS}, s58 offen", "blank"), k.mark("blank"))]
def wo_prepoll(k, layer):
    k.poll_addr(A_PA, 32)
    k.e(f"s_lshl_b32 s32, s{sB}, 7", f"s_add_u32 s{sPO}, s32, {fl(layer, FL_O)}", f"s_add_u32 s59, s80, {BO[layer]}")
    k.bg_held = True
    k.poll_issue(A_PA, "po1"); k.mark("po1")

def dna(k): return regloads(k, sDS, 0, lambda j: ar(192 + 4*j, 4), 16, "dna")

def tail_prep(k):
    R = R0
    A = lambda *t: [("a", lambda x=x: k.e(x)) for x in t]
    B = lambda *t: [("b", lambda: k.e(*t))]
    ops = A("v_and_b32 v73, 15, v1", "v_lshrrev_b32 v74, 4, v1", "v_lshlrev_b32 v73, 10, v73", "v_lshl_add_u32 v73, v74, 4, v73")
    ops += B(f"s_lshl_b32 s58, s{sB}, 2", f"s_add_u32 s58, s58, s{sW}", "s_lshl_b32 s58, s58, 14", f"s_lshl_b32 s59, s{sCS}, 7", "s_add_u32 s58, s58, s59")
    ops += [("v", lambda p=p: k.vm(f"buffer_load_dwordx4 {vr(RES+4*p,4)}, v73, {SRD_X}, s58 offen offset:{p*64}", "res")) for p in range(2)]
    ops += A("v_and_b32 v75, 3, v1", "v_cmp_eq_u32 s[34:35], 1, v75", "v_cmp_eq_u32 s[36:37], 2, v75", "v_cmp_eq_u32 s[38:39], 3, v75", "v_bfe_u32 v75, v1, 2, 2")
    ops += B("v_cmp_eq_u32 vcc, v75, v74", f"v_mov_b32 v72, {L_SA0 + 768}", f"s_lshl_b32 s59, s{sW}, 7", f"v_add_u32 v74, s59, v{R.SA}",
             "v_cndmask_b32 v74, v72, v74, vcc", f"v_cndmask_b32 v75, v72, v{R.SA}, vcc")
    return ops + [("a", f) for f in wo_lanes(k)]

def l0_background(k):
    k.per = dict(P.per_k)
    dd = dna(k)
    bg_list(k, dd[:P.dna_first], "s4", "dna", "gb")
    bg_list(k, wow(k), "s4", "wow", "xfree")
    bg_batches(k, [0, 1, 2, 3], "s2", lambda b: "xfree")
    bg_batches(k, [4], "s2", lambda b: "wobar")
    bg_batches(k, [5], "s2", lambda b: "xfree")
    bg_batches(k, [6, 7, 8, 9], "s2", lambda b: "gubar")
    bg_list(k, dd[P.dna_first:], "s4", "dna")
P.per_k = {"s2": 90, "s4": 70}

def a10_tail(k):
    R = R0
    k.per = dict(P.per_tail0)
    k.stamp("t0 gb")
    k.touch(72, "t", [f"s_add_u32 s32, s65, {BS1[0]}"])
    k.bg_burst(2)
    hk, hv = z_acc("h")[1], z_acc("h")[2]
    for r in range(4):
        k.e(f"v_mov_b32_dpp v{CSQ+r}, v{Z_CV+r} row_newbcast:0 row_mask:0xf bank_mask:0xf", f"v_mov_b32_dpp v{CSK+r}, v{hk+r} row_newbcast:0 row_mask:0xf bank_mask:0xf")
    k.e(f"v_mov_b32 v{CSV}, v{hv}", f"v_mov_b32 v45, v{hv}", f"v_permlane16_swap_b32 v{CSV}, v45", f"v_mov_b32 v45, v{CSV}", f"v_permlane32_swap_b32 v{CSV}, v45")
    fa = Flex(); fb = Flex()
    for fx, S, G, ad, off in ((fa, Z_SUM, Z_GR, 74, 128), (fb, Z_SUMH, Z_GRH, 75, 0)):
        a = lambda txt, c=1, fx=fx: fx.add(lambda: k.e(txt), c)
        a(f"v_cndmask_b32 v{S+1}, v{G}, v{G+1}, s[34:35]"); a(f"v_cndmask_b32 v{S+1}, v{S+1}, v{G+2}, s[36:37]"); a(f"v_cndmask_b32 v{S+1}, v{S+1}, v{G+3}, s[38:39]")
        ln_finish(a, S, S + 1); a(f"v_rsq_f32 v{S+1}, v{S+1}"); fx.skip(1)
        fx.add(lambda S=S, ad=ad, off=off: k.ds(f"ds_write_b64 v{ad}, {vr(S,2)} offset:{off}", "saw"))
    drain([fa, fb], k)
    for f in blanks(k, 0): f()
    k.wait(lg="all"); k.e("s_barrier"); k.mark("xfree")
    k.stamp("t0 bar")
    fx = Flex(); f1 = Flex(); f2 = Flex()
    od = (2, 1, 3, 0, "h"); Ss = (A_STA, 56)
    for f in fix_reads(k, R, od[0], Ss[0]): f()
    for n, t in enumerate(od):
        fix(k, R, fx, t, z_acc(t), 0, True, Ss[n & 1], True, fix_reads(k, R, od[n + 1], Ss[~n & 1]) if n < 4 else ()); fx.skip(1)
    attn(k, R, f1, 2, R.ATT[0]); attn(k, R, f2, 3, R.ATT[1]); ostore(k, f2, 1)
    attn(k, R, f1, 1, R.ATT[0]); attn(k, R, f2, 0, R.ATT[1]); ostore(k, f2, 0)
    f3 = Flex(); f3.dep(("ost", 1))
    for _ in range(P.l0_flag_delay): f3.skip(1)
    f3.add(lambda: (k.wait(vm=[("ost", 1)]), k.flag(1, 89), k.mark("oflag1")))
    f3.dep(("attn", 0)); f3.add(lambda: wo_prepoll(k, 0))
    drain([fx, f1, f2, f3], k)
    k.stamp("a1 end")
P.l0_flag_delay = 6; P.dna_first = 2
P.per_tail0 = {"s2": 70, "s4": 45}

def a11_bases(k):
    out = []
    S = lambda *t: out.extend(lambda x=x: k.e(x) for x in t)
    S(f"s_lshr_b32 s70, s{sW}, 1", "s_lshl_b32 s49, s70, 13", f"s_and_b32 s71, s{sW}, 1", "s_lshl_b32 s71, s71, 2",
      f"s_add_u32 s50, s71, s{sROT}", "s_lshl_b32 s71, s71, 10")
    for i in range(4):
        S(f"s_add_u32 s70, s50, {i}", "s_and_b32 s70, s70, 7", "s_lshl_b32 s70, s70, 10", "s_add_u32 s70, s70, s49", f"s_sub_u32 s{92+i}, s70, {i*1024}")
    S("s_add_u32 s49, s49, s71", f"s_lshl_b32 s47, s{sB}, 16", f"s_add_u32 s47, s47, {WS_X[1]}")
    S(f"s_sub_u32 s48, s{sB}, 1", "s_max_i32 s48, s48, 0", "s_lshl_b32 s51, s48, 10", f"s_add_u32 s51, s51, {WS_HST}",
      "s_lshl_b32 s52, s48, 11", f"s_add_u32 s52, s52, {WS_HXF}", "s_lshl_b32 s48, s48, 14", f"s_add_u32 s48, s48, {WS_HALO}")
    S("v_lshrrev_b32 v28, 4, v1", "v_and_b32 v29, 15, v1", "v_lshlrev_b32 v29, 4, v29", f"v_lshl_add_u32 v{A_U}, v28, 9, v29", f"v_lshl_add_u32 v{A_U+1}, v28, 8, v29")
    S(f"s_lshl_b32 s70, s{sB}, 12", f"s_and_b32 s71, s{sW}, 1", "s_lshl_b32 s71, s71, 8", "s_add_u32 s70, s70, s71", f"s_add_u32 s90, s70, {WS_ST[1]}")
    out.append(lambda: k.e(f"s_lshl_b32 s70, s{sB}, 1", f"s_add_u32 s70, s70, s{sW}", "s_lshl_b32 s72, s70, 13", f"s_lshl_b32 s71, s{sCS}, 10", "s_add_u32 s72, s72, s71",
        f"s_add_u32 s72, s72, {WS_HALO - 16384}", f"s_cmp_ge_u32 s{sW}, 2", f"s_cselect_b32 s72, s72, {OOB>>1:#x}"))
    out.append(lambda: k.e(f"s_lshl_b32 s73, s{sB}, 10", f"s_lshr_b32 s71, s{sCS}, 1", "s_lshl_b32 s71, s71, 8", "s_add_u32 s73, s73, s71", f"s_and_b32 s71, s{sCS}, 1",
        "s_lshl_b32 s71, s71, 3", "s_add_u32 s73, s73, s71"))
    out.append(lambda: k.e(f"s_lshl_b32 s71, s{sW}, 7", "s_add_u32 s73, s73, s71", f"s_add_u32 s73, s73, {WS_HST - 256}",
        f"s_cmp_ge_u32 s{sW}, 2", f"s_cselect_b32 s73, s73, {OOB>>1:#x}"))
    out.append(lambda: k.e(f"s_lshl_b32 s70, s{sB}, 3", f"s_add_u32 s70, s70, s{sCS}", "s_lshl_b32 s70, s70, 1", f"s_add_u32 s70, s70, s{sW}", "s_lshl_b32 s70, s70, 7",
        f"s_add_u32 s70, s70, {WS_HXF - 256}", f"s_cmp_ge_u32 s{sW}, 2", f"s_cselect_b32 s91, s70, {OOB>>1:#x}"))
    return out

def a11_x(k, tile):
    fns = []
    for i in range(4):
        def f(i=i):
            k.set_m0(f"s_add_u32 m0, s49, {A11_POS[tile]*16384}")
            k.e(f"s_add_u32 s32, s{48 if tile == 'h' else 47}, s{92+i}")
            if tile not in (0, "h"): k.e(f"s_add_u32 s32, s32, {tile*16384}")
            k.vm(f"buffer_load_dwordx4 v{vL16}, {SRD_WS}, s32 offen offset:{i*1024} sc1 lds", ("x", tile))
        fns.append(f)
    return fns

def stats_path(k, fx, S, tag, addr, tok, at=0):
    a = lambda txt, c=1: fx.add(lambda: k.e(txt), c)
    s, q = S, S + 1
    fx.add(lambda: k.wait(vm=[tag]), 1, at)
    a(f"v_add_f32 v{s}, v{s}, v{S+2}"); a(f"v_add_f32 v{q}, v{q}, v{S+3}"); fx.skip(1)
    a(f"v_permlane16_swap_b32 v{s}, v{q}", 2); a(f"v_add_f32 v{s}, v{s}, v{q}"); a(f"v_mov_b32 v{q}, v{s}"); fx.skip(1)
    a(f"v_permlane32_swap_b32 v{s}, v{q}", 2); a(f"v_add_f32 v{s}, v{s}, v{q}"); a(f"v_mov_b32 v{q}, v{s}"); fx.skip(1)
    a(f"v_permlane16_swap_b32 v{s}, v{q}", 2)
    ln_finish(a, s, q); a(f"v_rsq_f32 v{q}, v{q}", 2); fx.skip(1)
    fx.add(lambda: (k.ds(f"ds_write_b64 v{addr}, {vr(s,2)} offset:{tok*8}", ("saw", tag)), k.mark(("saw", tag))))

def a11_early(k):
    k.vm(f"buffer_load_dwordx4 {vr(A_ST,4)}, v{A_U}, {SRD_WS}, s90 offen offset:2048 sc1", "st0")
    for t in A11_ORDER[:2]:
        for f in a11_x(k, t): f()

def a11_main(k):
    R = R1; order = A11_ORDER
    steps = [(t, s) for t in order for s in range(16)]
    accof = lambda t: A_ACC + 12 * (order.index(t) % 3)
    def xread(i):
        t, s = steps[i]
        off = A11_POS[t] * 16384 + (s >> 1) * 1024
        k.ds(f"ds_read_b128 {vr(A_XF+4*(i%4),4)}, v{R.XO if s&1 else R.XE} offset:{off}", ("xf", i))
    mains = []; fixed = {}; gap_of = {}
    need_sa = {order[1]: ["st0"], order[2]: ["st1"], order[3]: [], "h": []}
    for i, (t, s) in enumerate(steps):
        acc = accof(t); xf = vr(A_XF + 4*(i % 4), 4)
        c = lambda r, s=s: "0" if s == 0 else vr(r, 4)
        ms = []
        if t != "h": ms.append(f"{MF16} {vr(acc,4)}, {ar(12*s,4)}, {xf}, {c(acc)}")
        ms.append(f"{MF16} {vr(acc+4,4)}, {ar(12*s+4,4)}, {xf}, {c(acc+4)}")
        ms.append(f"{MF16} {vr(acc+8,4)}, {xf}, {ar(12*s+8,4)}, {c(acc+8)}")
        gap_of[(t, s)] = len(mains)
        for m in ms: mains.append(lambda m=m: k.e(m))
        last = len(mains) - 1
        fl_ = fixed.setdefault(last, [])
        if i + 1 < len(steps): fl_.append((0, lambda i=i: k.wait(lg=[("xf", i + 1)])))
        j = i + 4
        if j < len(steps):
            tj, sj = steps[j]
            if sj == 0:
                def bar(tj=tj):
                    k.wait(vm=[("x", tj)], lg=[("saw", n) for n in need_sa[tj]]); k.e("s_barrier"); k.mark(("bar", tj))
                fixed.setdefault(gap_of[(t, s)], []).append((1, bar))
            fixed[last].append((1, lambda j=j: xread(j)))
    fx = Flex(); fz = Flex(); fz2 = Flex(); fy = Flex(); fm = Flex()
    k.e(f"s_and_b32 s32, s{sW}, 1", "s_lshl_b32 s32, s32, 7", f"v_add_u32 v7, s32, v{R.SA}")
    o_bases(k, 1)
    stats_path(k, fy, A_ST, "st0", 7, 48)
    g1 = P.a1_late_gap
    fm.add(lambda: (k.wait(vm=[("xst", 1)]), k.flag(2)), 3, P.a1_flag_gap)
    fm.add(lambda: (k.poll_issue(A_PX, "px2"), setattr(k, "bg_held", not P.a1_bg_early)), 1, g1 - P.a1_poll_lead)
    fm.add(lambda: k.poll_check(A_PX, "px2", 2), 2, g1)
    fm.add(lambda: k.vm(f"buffer_load_dwordx4 {vr(56,4)}, v{A_U}, {SRD_WS}, s90 offen sc1", "st1"))
    for t in order[2:4]:
        for f in a11_x(k, t): fm.add(f, 2); fm.skip(P.a1_xgap)
    for f in wo_lanes(k): fy.add(f)
    fy.add(lambda: k.mark("wolanes"), 0)
    fm.dep("wolanes")
    fm.add(lambda: k.e(f"s_add_u32 s58, s64, {WS_X[1]}"))
    for p in range(2): fm.add(lambda p=p: k.vm(f"buffer_load_dwordx4 {vr(RES+4*p,4)}, v{W_UA}, {SRD_WS}, s58 offen offset:{p*512} sc1", "res")); fm.skip(P.a1_xgap)
    def halo_poll():
        k.poll_addr(A_PX, 16, 7)
        k.e(f"s_mov_b32 s{sPO}, s52", f"s_min_u32 s50, s{sB}, 1")
        k.poll_issue(A_PX, "phx"); k.bg_held = False
    fm.add(halo_poll, 3)
    if P.touch1 in (1, 2):
        fm.add(lambda: k.touch(60, "p", ["s_mov_b32 s32, s53"]), 6)
        fm.add(lambda: k.touch(62, "q", [f"s_add_u32 s32, s64, {BX1[1]}"]), 6)
        fm.add(lambda: k.touch(64, "t", [f"s_add_u32 s32, s65, {BS1[1]}"]), 4)
        if P.touch1 > 1: fm.add(lambda: k.touch(66, "h", h_base("s32", 1)), 6)
    for f in blanks(k, 1): fm.skip(P.a1_xgap); fm.add(f, 3)
    stats_path(k, fy, 56, "st1", 7, 16, g1 + 26)
    fm.dep(("bar", order[2]))
    fm.add(lambda: k.poll_check(A_PX, "phx", "s50"), 2)
    fm.add(lambda: k.vm(f"buffer_load_dwordx4 {vr(A_ST,4)}, v{A_U+1}, {SRD_WS}, s51 offen sc1", "sth"))
    for f in a11_x(k, "h"): fm.add(f, 2); fm.skip(P.a1_xgap)
    stats_path(k, fy, A_ST, "sth", R.SA, 0, gap_of[(order[3], P.a1_sth)])
    k.per = dict(P.per_a1); k.bg_held = True
    b5 = batch(k, 5)
    mix = [(f, "s2", ("gw", 4), None) for f in batch(k, 4)] + [(f, "s2", ("gw", 5), None) for f in b5[:3]]
    ww = [(f, "s4", "wow", None) for f in wow(k)]
    while mix or ww:
        k.bg += ww[:2]; ww = ww[2:]
        if mix: k.bg.append(mix.pop(0))
    bg_batches(k, [0], "s2", lambda b: ("bar", order[3]))
    bg_batches(k, [1], "s2", lambda b: ("bar", "h"))
    bg_batches(k, [2, 3], "s2", lambda b: "wobar")
    bg_list(k, b5[3:], "s2", ("gw", 5), "wobar")
    bg_batches(k, [6, 7, 8, 9], "s2", lambda b: "gubar")
    A = lambda t: (accof(t) if t != "h" else None, accof(t) + 4, accof(t) + 8)
    for n in range(4): fix(k, R, fx, order[n], A(order[n]), gap_of[(order[n + 1], 1 if n < 3 else 2)], False)
    attn(k, R, fz, 3, R.ATT[0]); attn(k, R, fz2, 2, R.ATT[1]); ostore(k, fz2, 1)
    attn(k, R, fz, 1, R.ATT[0])
    fx.dep(("saw", "sth"))
    for f in fix_reads(k, R, "h", A_STA): fx.add(f)
    fx.dep("gemm_done")
    fix(k, R, fx, "h", A("h"), 0, False, pre=True); attn(k, R, fz2, 0, R.ATT[1]); ostore(k, fz2, 0)
    f3 = Flex(); f3.dep(("ost", 1)); f3.skip(P.l1_flag_delay)
    f3.add(lambda: (k.wait(vm=[("ost", 1)]), k.flag(1, 89), k.mark("oflag1")), 3)
    f3.dep(("attn", 0)); f3.add(lambda: wo_prepoll(k, 1))
    k.wait(vm=[("x", order[0])]); k.e("s_barrier")
    for i in range(4): xread(i)
    k.wait(lg=[("xf", 0)])
    k.stamp("a1 first")
    if k.stamping:
        for t in order[1:]: fixed.setdefault(gap_of[(t, 0)], []).append((0, lambda t=t: k.stamp(f"a1 t{t}")))
        for g in range(6, 224, 12): fixed.setdefault(g, []).append((0, lambda g=g: k.stamp(f"fina {g}")))
    run_gaps(k, mains, fixed, [fm, f3, fy, fx, fz2, fz], 2, over=lambda i: i >= P.a1_over)
    print("a11 left:", len(fm), len(fy), len(fx), len(fz), len(fz2), len(k.bg), {n: g for n, g in k.marks.items() if isinstance(n, tuple) and n[0] in ("fix", "attn", "saw", "ost")})
    k.mark("gemm_done"); k.bg_held = P.a1_tailhold
    k.stamp("a1 gemm")
    drain([fm, fy, fx, fz, fz2, f3], k)
    for n in range(2): assert k.marks[("fix", order[n])] < gap_of[(order[n + 3], 0)], "accumulator reused too early"
    k.stamp("a1 end")
P.a1_flag_gap, P.a1_late_gap, P.a1_poll_lead, P.l1_flag_delay, P.a1_over = 8, 36, 18, 14, 48
P.a1_bg_early = False; P.a1_salead = 8; P.a1_tailhold = True; P.touch1 = 1; P.a1_xgap = 3; P.a1_sth = 4
P.per_a1 = {"s2": 95, "s4": 60}

R_W0, R_W1, R_RD, R_ST, R_OUT = 3, 4, 5, 6, 7
def red_setup(k, posA, dAB):
    x, y, z, u = 28, 29, 30, 31
    k.e(f"s_add_u32 s32, s{sGL}, {posA*16384}", f"v_add_u32 v{R_W0}, s32, v{vL16}", f"v_xor_b32 v{R_W1}, 128, v{R_W0}")
    k.e(f"v_and_b32 v{x}, 7, v1", f"v_lshrrev_b32 v{y}, 3, v1", f"s_lshl_b32 s32, s{sW}, 7", f"v_lshl_add_u32 v{z}, v{x}, 4, s32",
        f"v_bfe_u32 v{u}, v1, 4, 1", f"v_lshlrev_b32 v{R_RD}, 7, v{u}", f"v_xor_b32 v{z}, v{z}, v{R_RD}",
        f"v_bfe_u32 v{R_RD}, v1, 3, 2", f"v_lshl_add_u32 v{z}, v{R_RD}, 10, v{z}", f"v_lshrrev_b32 v{R_RD}, 5, v1",
        f"v_mul_u32_u24 v{R_RD}, {dAB*16384}, v{R_RD}", f"v_add_u32 v{z}, v{z}, v{R_RD}", f"v_add_u32 v{R_RD}, {posA*16384}, v{z}")
    k.e(f"v_lshlrev_b32 v{z}, 4, v{x}", f"v_lshl_add_u32 v{z}, v{u}, 2, v{z}", f"v_and_b32 v{u}, 0x28, v1",
        f"v_cmp_eq_u32 vcc, 0, v{u}", f"v_mov_b32 v{u}, {OOB:#x}", f"v_cndmask_b32 v{R_ST}, v{u}, v{z}, vcc")
    k.e(f"v_lshlrev_b32 v{z}, 10, v{x}", f"v_lshl_add_u32 v{R_OUT}, v{y}, 4, v{z}")

def red_bases(k):
    k.e(f"s_lshl_b32 s32, s{sB}, 3", f"s_add_u32 s32, s32, s{sW}", "s_lshl_b32 s55, s32, 13", f"s_lshl_b32 s33, s{sCS}, 10", "s_add_u32 s55, s55, s33")
    k.e("s_lshl_b32 s57, s32, 13", f"s_lshl_b32 s33, s{sCS}, 7", "s_add_u32 s57, s57, s33")
    k.e(f"s_lshl_b32 s56, s{sB}, 12", f"s_lshr_b32 s33, s{sCS}, 1", "s_lshl_b32 s33, s33, 9", "s_add_u32 s56, s56, s33",
        f"s_and_b32 s33, s{sCS}, 1", "s_lshl_b32 s33, s33, 3", "s_add_u32 s56, s56, s33", f"s_lshl_b32 s33, s{sW}, 7", "s_add_u32 s56, s56, s33")

def red_writes(k, acc, g, off, dAB):
    return [lambda q=q: k.ds(f"ds_write_b128 v{R_W1 if (q>>1)&1 else R_W0}, {vr(acc+4*q,4)} offset:{off + (q>>2)*dAB*16384 + (q&3)*1024}", ("rw", g)) for q in range(8)]
def red_reads(k, g, T, off):
    return [lambda w=w, hf=hf: k.ds(f"ds_read_b128 {vr(T+8*w+4*hf,4)}, v{R_RD} offset:{off + w*4096 + hf*512}", ("rr", g, w)) for w in range(4) for hf in range(2)]

def red_finish(k, fx, g, mm, T, xdst, stdst, final, pk):
    a = lambda txt, c=1: fx.add(lambda: k.e(txt), c)
    R = RES + 4 * mm
    def add8(d, s):
        if pk:
            for i in range(0, 8, 2): a(f"v_pk_add_f32 {vr(d+i,2)}, {vr(d+i,2)}, {vr(s+i,2)}")
        else:
            for i in range(8): a(f"v_add_f32 v{d+i}, v{d+i}, v{s+i}")
    fx.add(lambda: k.wait(lg=[("rr", g, 1)]))
    add8(T, T + 8)
    for i in range(4): a(f"v_lshlrev_b32 v{T+8+2*i}, 16, v{R+i}"); a(f"v_and_b32 v{T+9+2*i}, 0xffff0000, v{R+i}")
    add8(T, T + 8)
    fx.add(lambda: k.wait(lg=[("rr", g, 3)]))
    add8(T + 16, T + 24); add8(T, T + 16)
    for i in range(4): a(f"v_cvt_pk_bf16_f32 v{R+i}, v{T+2*i}, v{T+2*i+1}")
    if final:
        fx.add(lambda: (k.e(f"s_add_u32 s32, s57, {mm*32768}"), k.vm(f"buffer_store_dwordx4 {vr(R,4)}, v{R_OUT}, {SRD_OUT}, s32 offen {P.outm}", ("xst", g))))
        return
    fx.add(lambda: (k.e(f"s_add_u32 s32, s55, {xdst + mm*32768}"), k.dstore(f"buffer_store_dwordx4 {vr(R,4)}, v{vL16}, {SRD_WS}, s32 offen", ("xst", g))), 2)
    s, q = T + 32, T + 33
    a(f"v_add_f32 v{s}, v{T}, v{T+1}"); a(f"v_mul_f32 v{q}, v{T}, v{T}"); a(f"v_fmac_f32 v{q}, v{T+1}, v{T+1}")
    for i in range(2, 8): a(f"v_add_f32 v{s}, v{s}, v{T+i}"); a(f"v_fmac_f32 v{q}, v{T+i}, v{T+i}")
    fx.skip(1)
    a(f"v_add_f32_dpp v{s}, v{s}, v{s} row_ror:8 row_mask:0xf bank_mask:0xf"); a(f"v_add_f32_dpp v{q}, v{q}, v{q} row_ror:8 row_mask:0xf bank_mask:0xf")
    fx.skip(1)
    a(f"v_permlane16_swap_b32 v{s}, v{q}", 2); a(f"v_add_f32 v{s}, v{s}, v{q}"); a(f"v_mov_b32 v{q}, v{s}"); fx.skip(1)
    a(f"v_permlane32_swap_b32 v{s}, v{q}", 2); a(f"v_add_f32 v{s}, v{s}, v{q}")
    fx.add(lambda: (k.e(f"s_add_u32 s32, s56, {stdst + mm*2048}"), k.dstore(f"buffer_store_dword v{s}, v{R_ST}, {SRD_WS}, s32 offen", ("xst", g)), k.mark(("xst", g))), 2)

def merge(k, fx, extra, first=0):
    extra = list(extra)
    items = [it for it in fx.items if it[0] != "skip"]; fx.items = []
    per = max(1, (len(items) - first) // max(1, len(extra)))
    for n, it in enumerate(items):
        if n >= first and (n - first) % per == 0 and extra: extra.pop(0)()
        it[1](); k.bg_step()
    for f in extra: f(); k.bg_step()

def wo(k, layer):
    BF, WQ, ACC, T, PA, NQ = 32, 160, 192, 208, A_PA, 8
    state = {}
    def bload(sx):
        k.set_s(f"s_add_u32 s58, s59, {(sx & ~1)*2048}")
        k.vm(f"buffer_load_dwordx4 {vr(BF+4*sx,4)}, v{W_OA}, {SRD_WS}, s58 offen offset:{(sx%2)*2048} sc1", ("b", sx))
    def wread(n): k.ds(f"ds_read_b128 {vr(WQ+4*(n%NQ),4)}, v{W_RB} offset:{n*1024}", ("wq", n))
    k.wait(vm=["wow"]); k.e("s_barrier"); k.mark("wobar")
    for n in range(NQ): wread(n)
    btxt = lambda sx: [f"s_add_u32 s99, s59, {sx*2048}", f"buffer_load_dwordx4 {vr(BF+4*sx,4)}, v{W_OA}, {SRD_WS}, s99 offen sc1"]
    bchk = lambda sx: k.valid([f"v_cmp_eq_u32 vcc, -1, v{BF+4*sx}"], btxt(sx))
    ptxt = f"buffer_load_dword v{T+20}, v{T+21}, {SRD_WS}, s59 offen sc1"
    if P.tags:
        k.e(f"v_lshlrev_b32 v{T+21}, 8, v{PA}")
        k.e(f"v_or_b32 v{T+21}, v{T+21}, v{PA}", f"v_and_b32 v{T+21}, 0x80007c00, v{T+21}")
        k.poll_check(PA, "po1", 1)
        k.vm(ptxt, "probe")
        for sx in range(P.wo_spec): bload(sx)
        k.e(f"s_lshl_b32 s32, s{sC}, 1", f"s_and_b32 s33, s{sW}, 1", "s_add_u32 s32, s32, s33", "s_lshl_b32 s32, s32, 7", f"s_add_u32 s{sPO}, s32, {fl(layer, FL_O)}")
    else:
        k.e(f"s_add_u32 s{sFO}, s66, {fl(layer, FL_X1)}")
        k.e(f"s_cmp_lt_u32 s{sW}, 2", f"s_cbranch_scc1 L_wo_late{layer}")
        q0 = list(k.vmq)
        k.poll_check(PA, "po1", 1)
        for sx in range(P.wo_lead): bload(sx)
        if P.wo_setup_first: gu_setup(k, layer)
        k.wait(vm=[("ost", 0)]); k.flag(2, 89)
        k.e(f"s_branch L_wo_join{layer}")
        k.label(f"L_wo_late{layer}")
        k.vmq = list(q0)
        k.wait(vm=[("ost", 0)]); k.flag(2, 89)
        if P.wo_setup_first: gu_setup(k, layer)
        k.poll_issue(PA, "po2"); k.poll_check(PA, "po2", 2)
        for sx in range(P.wo_lead): bload(sx)
        k.label(f"L_wo_join{layer}")
    if P.tags or not P.wo_setup_first: gu_setup(k, layer)
    k.stamp("wo issued")
    mains = []; fixed = {}
    for n in range(64):
        sx, j = divmod(n, 4)
        mains.append(lambda n=n, sx=sx, j=j: k.e(f"{MF16} {vr(ACC+4*j,4)}, {vr(WQ+4*(n%NQ),4)}, {vr(BF+4*sx,4)}, {'0' if sx == 0 else vr(ACC+4*j,4)}"))
        fl_ = fixed.setdefault(n, [])
        if n < 63: fl_.append((0, lambda n=n: k.wait(vm=[("b", (n + 1) // 4)] if (n + 1) % 4 == 0 else None, lg=[("wq", n + 1)])))
        if P.tags and n < 63 and (n + 1) % 4 == 0: fl_.append((1, lambda n=n: bchk((n + 1) // 4)))
        if P.tags and n == 42: fl_.append((1, lambda: k.poll_issue(PA, "px1")))
        if n + NQ < 64: fl_.append((1, lambda n=n: wread(n + NQ)))
        if n % P.wo_bstep == 0 and P.wo_lead + n // P.wo_bstep < 16: fl_.append((1, lambda n=n: bload(P.wo_lead + n // P.wo_bstep)))
    fx = Flex()
    a = lambda txt, c=1, at=0: fx.add(lambda: k.e(txt), c, at)
    fx.add(lambda: k.wait(vm=["res"]), 1, 8)
    for i in range(8): a(f"v_lshlrev_b32 v{T+2*i}, 16, v{RES+i}"); a(f"v_and_b32 v{T+2*i+1}, 0xffff0000, v{RES+i}")
    k.per = dict(P.per_wo[layer]); k.bg_held = False; k.bg_next = k.t + P.wo_bg_delay
    if P.tags:
        k.wait(vm=["probe"])
        k.valid([f"v_cmp_eq_u32 vcc, -1, v{T+20}"], [ptxt] + sum([btxt(x) for x in range(P.wo_spec)], []))
        state["fresh"] = True
        for sx in range(P.wo_spec, P.wo_lead): bload(sx)
    k.wait(vm=[("b", 0)], lg=[("wq", 0)])
    if P.tags: bchk(0)
    k.stamp("wo first")
    fixed[P.wo_bg_stop].append((0, lambda: setattr(k, "bg_held", True)))
    run_gaps(k, mains, fixed, [fx], 2)
    drain([fx], k)
    k.stamp("wo gemm")
    for i in range(0, 16, 2): k.e(f"v_pk_add_f32 {vr(T+i,2)}, {vr(T+i,2)}, {vr(ACC+i,2)}")
    k.e(f"s_add_u32 s58, s64, {BX1[layer]}")
    for p in range(2):
        for i in range(4): k.e(f"v_cvt_pk_bf16_f32 v{RES+4*p+i}, v{T+8*p+2*i}, v{T+8*p+2*i+1}")
        k.dstore(f"buffer_store_dwordx4 {vr(RES+4*p,4)}, v{W_UA}, {SRD_WS}, s58 offen offset:{p*512}", "xst")
    S, Q = T + 16, T + 18
    k.e(f"v_pk_add_f32 {vr(S,2)}, {vr(T,2)}, {vr(T+2,2)}", f"v_pk_mul_f32 {vr(Q,2)}, {vr(T,2)}, {vr(T,2)}", f"v_pk_fma_f32 {vr(Q,2)}, {vr(T+2,2)}, {vr(T+2,2)}, {vr(Q,2)}")
    for i in range(4, 16, 2): k.e(f"v_pk_add_f32 {vr(S,2)}, {vr(S,2)}, {vr(T+i,2)}", f"v_pk_fma_f32 {vr(Q,2)}, {vr(T+i,2)}, {vr(T+i,2)}, {vr(Q,2)}")
    k.e(f"v_add_f32 v{S}, v{S}, v{S+1}", f"v_add_f32 v{Q}, v{Q}, v{Q+1}", f"s_add_u32 s58, s65, {BS1[layer]}",
        f"v_permlane16_swap_b32 v{S}, v{Q}", f"v_add_f32 v{S}, v{S}, v{Q}", f"v_mov_b32 v{Q}, v{S}", f"v_permlane32_swap_b32 v{S}, v{Q}", f"v_add_f32 v{S}, v{S}, v{Q}")
    k.dstore(f"buffer_store_dword v{S}, v{W_SA}, {SRD_WS}, s58 offen", "xst")
    key = lambda it: it[2][1] if isinstance(it[2], tuple) else 11.5
    k.bg.sort(key=key)
    print(f"wo{layer} done, background left:", [it[2] for it in k.bg][::4])
    k.bg_burst(P.wo_win[layer])
    k.stamp("wo end")
P.wo_bg_delay = 200; P.wo_bg_stop = 56; P.wo_lead = 6; P.wo_spec = 3; P.gu_spec = 3; P.wo_bstep = 2
P.wo_poll_gap = 1; P.wo_late_gap = 7; P.wo_hold = True; P.wo_win = [4, 4]; P.wo_var = 'B'; P.wo_prew = 2
P.per_wo = [{"s2": 35, "s4": 35}] * 2

G_RB, G_C1, G_VV, G_AUG, G_X, G_ACC, G_WF, G_T = 3, 6, 7, 28, 32, 160, 224, 240
D_WV, D_BF, D_ACC, D_T, D_WF, D_RB, D_PA = 32, 64, 128, 192, 228, 112, 115
DN_SEQ = [(g, e) for g in range(2) for e in range(28)]
DN_GROUPS = [1, 0]
def h_loader(k, layer):
    def bload(i):
        if i == 0:
            k.e(f"s_mul_i32 s32, s{sB}, {224*KB}", f"s_mul_i32 s33, s{sW}, {28*KB}", "s_add_u32 s32, s32, s33", f"s_add_u32 s59, s32, {BH[layer]}")
            for p in range(4):
                k.e(f"s_add_u32 s32, s{sCS}, {p}", f"s_and_b32 s32, s32, {3 if P.hrot else 0}", f"s_mul_i32 s32, s32, {7*KB}", f"s_add_u32 s{34+p}, s59, s32")
                if not P.hrot: k.e(f"s_add_u32 s{34+p}, s{34+p}, {7*KB*p}")
        g, e = DN_SEQ[i]; p, tl = divmod(KK_OF[e], 7)
        k.set_s(f"s_add_u32 s58, s{34+p}, {DN_GROUPS[g] * 112 * KB + (tl & 4) * 1024}")
        k.vm(f"buffer_load_dwordx4 {vr(D_BF+4*(i%P.dn_lead),4)}, v{vL16}, {SRD_WS}, s58 offen offset:{(tl & 3)*1024} sc1", ("b", i))
    return bload

def gu_setup(k, layer):
    T = G_T; XA = T + 3
    k.e(*gu_tile("s50"))
    k.e(f"v_and_b32 v{T}, 31, v1")
    k.e(f"v_mov_b32 v{G_RB}, v{vL16}", f"v_add_u32 v{G_RB+1}, 0x10000, v{vL16}", f"v_add_u32 v{G_RB+2}, 0x20000, v{vL16}")
    k.e(f"v_lshrrev_b32 v{T+1}, 5, v1", f"v_lshlrev_b32 v{G_AUG+3}, 4, v{T}", f"v_lshl_add_u32 v{G_AUG+3}, v{T+1}, 10, v{G_AUG+3}")
    k.e(f"v_lshrrev_b32 v{XA}, 3, v{T}", f"v_lshlrev_b32 v{XA}, 13, v{XA}", f"v_lshl_add_u32 v{XA}, v{T+1}, 7, v{XA}",
        f"v_and_b32 v{T}, 7, v1", f"v_lshl_add_u32 v{XA}, v{T}, 4, v{XA}")
    k.e("s_lshl_b32 s32, s50, 11", f"s_add_u32 s51, s32, {BS1[layer]}")
    k.e("s_lshl_b32 s32, s50, 15", f"s_add_u32 s52, s32, {BX1[layer]}", "s_add_u32 s53, s52, 4096")
    k.e(*h_base("s54", layer))
    k.e("s_lshr_b32 s32, s50, 1", "s_lshl_b32 s32, s32, 4", f"s_add_u32 s32, s32, s{sM}",
        "s_lshl_b32 s32, s32, 1", "s_and_b32 s33, s50, 1", "s_add_u32 s32, s32, s33", "s_lshl_b32 s32, s32, 2", f"s_add_u32 s81, s32, {fl(layer, FL_H)}")

def gu(k, layer):
    T = G_T; XA = T + 3; PA = T + 2
    if P.tags: k.poll_check(A_PA, "px1", 1)
    else:
        def pa():
            k.poll_addr(PA, 16)
            k.e("s_lshl_b32 s32, s50, 6", f"s_add_u32 s{sPO}, s32, {fl(layer, FL_X1)}")
        if not P.gu_pa_late: pa()
        k.wait(vm=["xst"]); k.flag(1)
        if P.gu_pa_late: pa()
        k.stamp("x1 flag")
        if not P.gu_bar_first: k.poll_issue(PA, "px1")
    k.e(f"s_mov_b32 s{sFO}, s81")
    seq = [(t, ks) for ks in range(33) for t in range(3)] + [(t, ks) for t in range(3, 7) for ks in range(33)]
    accof = {0: 0, 1: 1, 2: 2, 3: 3, 4: 0, 5: 1, 6: 2}
    NW = P.gu_nw
    WQ = [G_WF, G_WF + 4, G_WF + 8, G_WF + 12, T + 12]
    def wread(n):
        slot = (n % 160) * 1024
        k.ds(f"ds_read_b128 {vr(WQ[n%NW],4)}, v{G_RB + (slot>>16)} offset:{slot & 0xffff}", ("wf", n))
    def ringbar():
        k.wait(vm=[("gw", 0)]); k.e("s_barrier"); k.mark("gubar")
        for n in range(NW): wread(n)
    if P.gu_bar_first: ringbar(); k.poll_issue(PA, "px1")
    if not P.tags: k.poll_check(PA, "px1", 1)
    k.stamp("gu go")
    xtxt = lambda kg: f"buffer_load_dwordx4 {vr(G_X+4*kg,4)}, v{XA}, {SRD_WS}, s{52 + (kg>>4)} offen offset:{((kg>>2)&3)*1024 + (kg&3)*256} sc1"
    def xload(kg): k.vm(xtxt(kg), ("gx", kg))
    xchk = lambda kg: k.valid([f"v_cmp_eq_u32 vcc, -1, v{G_X+4*kg}"], [xtxt(kg)])
    stxt = [f"buffer_load_dwordx4 {vr(T+4+4*h,4)}, v{G_AUG+3}, {SRD_WS}, s51 offen offset:{512*h} sc1" for h in range(2)]
    if P.tags:
        for t_ in stxt: k.vm(t_, "gst")
        for kg in range(P.gu_spec): xload(kg)
        k.wait(vm=["gst"])
        k.valid([f"v_max3_u32 v{T}, v{T+4}, v{T+6}, v{T+8}", f"v_max_u32 v{T}, v{T}, v{T+10}", f"v_cmp_eq_u32 vcc, -1, v{T}"],
                stxt + [xtxt(x) for x in range(P.gu_spec)])
        k.stamp("gu probe")
        for kg in range(P.gu_spec, P.gu_lead): xload(kg)
    else:
        for kg in range(P.gu_lead): xload(kg)
        for t_ in stxt: k.vm(t_, "gst")
    if not P.gu_bar_first: ringbar()
    mains = []; fixed = {}
    xpos = {}
    for kg in range(P.gu_lead, 32): xpos.setdefault(int((kg - P.gu_lead) * P.gu_xstep), []).append(kg)
    for n, (t, ks) in enumerate(seq):
        acc = G_ACC + 16 * accof[t]
        b = vr(G_AUG, 4) if ks == 32 else vr(G_X + 4*ks, 4)
        c = "0" if ks == 0 else vr(acc, 16)
        mains.append(lambda n=n, acc=acc, b=b, c=c: k.e(f"{MF32} {vr(acc,16)}, {vr(WQ[n%NW],4)}, {b}, {c}"))
        fl_ = fixed.setdefault(n, [])
        if n + 1 < len(seq):
            t2, ks2 = seq[n + 1]
            need = [("gx", ks2)] if (t2 == 0 and ks2 < 32) else None
            fl_.append((0, lambda n=n, need=need: k.wait(vm=need, lg=[("wf", n + 1)])))
            if need and P.tags: fl_.append((2, lambda ks2=ks2: xchk(ks2)))
        j = n + NW
        if j < len(seq):
            if j % 16 == 0:
                fl_.append((2, lambda bi=j//16: (k.wait(vm=[("gw", bi)]), k.e("s_barrier" if not P.x_nobar else "s_nop 0"), k.mark(("gbar", bi)))))
            fl_.append((1, lambda j=j: wread(j)))
        for kg in xpos.get(n, []): fl_.append((1, lambda kg=kg: xload(kg)))
    xend = max(xpos)
    tail = [it for it in k.bg if it[2] == "dna"]; k.bg = [it for it in k.bg if it[2] != "dna"]
    bg_batches(k, [10, 11], "s2", lambda b: ("gbar", b - 8))
    mid = []
    for b in (12, 13, 14):
        for f in batch(k, b): mid.append((f, "s2", ("gw", b), ("gbar", b - 8)))
    while mid or tail:
        if mid: k.bg.append(mid.pop(0))
        if tail: k.bg.append(tail.pop(0))
    bg_batches(k, range(15, 23), "s4", lambda b: ("gbar", b - 8))
    k.per = dict(P.per_guA[layer]); k.bg_held = False; k.bg_next = k.t + P.gu_bg_delay
    fixed[xend].append((0, lambda: setattr(k, "per", dict(P.per_guB[layer]))))
    fv = Flex()
    dv = regloads(k, sDS, 48*1024, lambda j: vr(D_WV + 4*j, 4), 8, "dnv")
    k.hload = h_loader(k, layer)
    if P.hpre:
        bg_list(k, dv, "s4", "dnv", "xdead")
        fixed[207].append((0, lambda: k.mark("xdead")))
    else:
        for j, f in enumerate(dv): fv.add(f, 1, 198 + 2 + 3*j)
    fx = Flex()
    a = lambda txt, c=1, at=0: fx.add(lambda: k.e(txt), c, at)
    fx.add(lambda: k.wait(vm=["gst"]), 1, 3 * P.gu_lead)
    a(f"v_add_f32 v{T+4}, v{T+4}, v{T+6}"); a(f"v_add_f32 v{T+5}, v{T+5}, v{T+7}"); a(f"v_add_f32 v{T+8}, v{T+8}, v{T+10}"); a(f"v_add_f32 v{T+9}, v{T+9}, v{T+11}")
    a(f"v_add_f32 v{T+4}, v{T+4}, v{T+8}"); a(f"v_add_f32 v{T+5}, v{T+5}, v{T+9}"); fx.skip(1)
    a(f"v_permlane32_swap_b32 v{T+4}, v{T+5}", 2); a(f"v_add_f32 v{T+4}, v{T+4}, v{T+5}"); a(f"v_mov_b32 v{T+5}, v{T+4}"); fx.skip(1)
    a(f"v_permlane32_swap_b32 v{T+4}, v{T+5}", 2)
    ln_finish(a, T + 4, T + 5)
    a(f"v_mov_b32 v{G_VV}, v{T+5}")
    a(f"v_rsq_f32 v{G_C1}, v{T+5}", 2); a(f"v_cvt_pk_bf16_f32 v{G_AUG}, v{T+4}, v{T+4}"); a(f"v_mul_f32 v{G_C1}, {f2u(-LOG2E):#x}, v{G_C1}")
    a(f"v_and_b32 v{T+5}, 0xffff0000, v{G_AUG}"); a(f"v_sub_f32 v{T+5}, v{T+4}, v{T+5}"); a(f"v_mov_b32 v{G_AUG+2}, 0")
    a(f"v_cvt_pk_bf16_f32 v{G_AUG+1}, v{T+5}, v{G_AUG+2}"); a(f"v_mov_b32 v{G_AUG+3}, 0")
    fx.add(lambda: k.mark("aug"), 0)
    def epi(t, at):
        acc = G_ACC + 16 * accof[t]; hp = T + 8; E = T + 4
        if P.x_noepi: a("s_nop 0", 1, at)
        for i0 in range(0, 8 if not P.x_noepi else 0, 2):
            for i in (i0, i0 + 1): a(f"v_mul_f32 v{E+(i&1)}, v{G_C1}, v{acc+i}", 1, at)
            for i in (i0, i0 + 1): a(f"v_exp_f32 v{E+(i&1)}, v{E+(i&1)}", 2)
            for i in (i0, i0 + 1): a(f"v_mul_f32 v{E+2+(i&1)}, v{acc+i}, v{acc+8+i}")
            for i in (i0, i0 + 1): a(f"v_fma_f32 v{E+(i&1)}, v{E+(i&1)}, v{G_VV}, v{G_VV}")
            for i in (i0, i0 + 1): a(f"v_rcp_f32 v{E+(i&1)}, v{E+(i&1)}", 2)
            fx.skip(1)
            for i in (i0, i0 + 1): a(f"v_mul_f32 v{E+2+(i&1)}, v{E+2+(i&1)}, v{E+(i&1)}")
            a(f"v_cvt_pk_bf16_f32 v{hp+i0//2}, v{E+2}, v{E+3}")
        fx.add(lambda: k.mark(("epi", t)), 0)
        if t == 4: a("s_add_u32 s54, s54, 4096")
        fx.add(lambda: ((k.dstore if ((layer and P.h1_plain) or (not layer and P.h_touch0)) else lambda x, tg: k.vm(x + " sc1", tg))(f"buffer_store_dwordx4 {vr(hp,4)}, v{vL16}, {SRD_WS}, s54 offen offset:{(t%4)*1024}", ("hst", t)), k.mark(("hst", t))), 2)
    end = {t: max(n for n, x in enumerate(seq) if x[0] == t) for t in range(7)}
    for t in range(6): epi(t, end[t] + 3)
    if layer == 0 and P.h_touch0 == "g": fixed[xend + 1].append((5, lambda: k.touch(T, "h", ["s_mov_b32 s32, s54"])))
    ff = Flex(); ff.dep(("hst", 3))
    if layer == 0:
        tx = [lambda: k.touch(T, "p", [f"s_add_u32 s32, s55, {WS_X[1]}"]), lambda: k.touch(T + 1, "s", [f"s_add_u32 s32, s56, {WS_ST[1]}"])]
        if P.x2_touch == "h3": ff.add(tx[0], 6); ff.add(tx[1], 4)
        elif isinstance(P.x2_touch, int): fixed[P.x2_touch].append((5, tx[0])); fixed[P.x2_touch + 1].append((4, tx[1]))
        if "g" in str(P.touch1):
            for f in touch_next(k, T + 2)[:2]: ff.skip(1); ff.add(f, 6)
    ff.skip(P.gu_flag_delay)
    ff.add(lambda: (k.wait(vm=[("hst", 3)]), k.flag(1)), 3)
    def hpoll():
        k.wait(vm=["touch"] if "touch" in k.seen else None)
        k.poll_addr(T, 8)
        k.e(f"s_lshl_b32 s32, s{sB}, 7", f"s_lshl_b32 s33, s{sW}, 5", "s_add_u32 s32, s32, s33", f"s_add_u32 s{sPO}, s32, {fl(layer, FL_H)}")
        k.poll_issue(T, "ph1")
    if P.hpre:
        ff.add(hpoll, 4, P.hp_chk - 12)
        ff.add(lambda: (k.poll_check(T, "ph1", 1), setattr(k, "bg_held", True)), 3, P.hp_chk)
        for j in range(P.hpre): ff.add(lambda j=j: k.hload(j), 2, max(208 + j, int(P.hp_chk + 1 + j * P.hp_step)))
    else: ff.add(hpoll, 4, 228)
    k.wait(vm=[("gx", 0)], lg=[("wf", 0)])
    if P.tags: xchk(0)
    k.stamp("gu first")
    if k.stamping:
        for g in (48, 98, 131, 164, 197): fixed[g].append((0, lambda g=g: k.stamp(f"gu m{g}")))
    fixed[93].append((0, lambda: k.marks["aug"]))
    run_gaps(k, mains, fixed, [fv, ff, fx], P.gu_cap)
    print("gu left:", len(k.bg), len(fv), len(ff), len(fx), {n: g for n, g in k.marks.items() if isinstance(n, tuple) and n[0] == "hst"})
    k.stamp("gu gemm")
    for g, t in {132: 0, 165: 1, 198: 2}.items(): assert k.marks[("epi", t)] < g, "accumulator reused too early"
    epi(6, 0); drain([ff, fv, fx], k)
    k.e(f"v_mov_b32 v{D_PA}, v{T}")
    k.stamp("gu end")
P.x2_touch = 'h3'; P.dn_x2 = 2; P.hrot = 0; P.hpre = 0; P.hp_chk = 208; P.hp_step = 2.2; P.gu_flag_delay = 10; P.gu_xstep = 2.6; P.gu_bg_delay = 300
P.per_guA = [{"s2": 120, "s4": 120}, {"s2": 160, "s4": 160}]
P.per_guB = [{"s2": 90, "s4": 55}] * 2

def dn(k, layer):
    final = layer == 1
    NB = P.dn_lead; T = D_T
    groups = DN_GROUPS; seq = DN_SEQ; bload = k.hload
    early = Flex()
    def rb(): k.e(f"v_add_u32 v{D_RB}, s{sGL}, v{vL16}", f"v_add_u32 v{D_RB+1}, 0x10000, v{D_RB}", f"v_add_u32 v{D_RB+2}, 0x20000, v{D_RB}")
    if P.hpre:
        for i in range(P.hpre, NB): bload(i)
        rb()
        class Rec:
            def e(self, *t):
                if any("vcc" in x or "s32" in x for x in t): early.add(lambda: k.e(*t), len(t))
                else:
                    for x in t: early.add(lambda x=x: k.e(x))
        red_setup(Rec(), 3, 1)
        early.add(lambda: (k.wait(vm=[("hst", 6)]), k.flag(2), k.poll_issue(D_PA, "ph2"), k.e(f"s_add_u32 s{sFO}, s89, {FL_X2 - FL_O}")), 5, P.dn_fgap)
    else:
        k.poll_check(D_PA, "ph1", 1)
        k.stamp("dn early")
        k.bg_held = True
        for i in range(P.dn_pre): bload(i)
        red_setup(k, 3, 1); rb()
        k.wait(vm=[("hst", 6)]); k.flag(2)
        k.poll_issue(D_PA, "ph2")
        for i in range(P.dn_pre, NB): bload(i)
        k.e(f"s_add_u32 s{sFO}, s89, {FL_X2 - FL_O}")
    k.per = dict(P.per_dn0); k.bg_held = False
    lds = [(i, nn) for i, (g, e) in enumerate(seq) if 8 <= e < 24 for nn in range(2)]
    slot_of = {x: n for n, x in enumerate(lds)}
    NWF = 6
    def wread(n):
        i, nn = lds[n]; j = 2 * (seq[i][1] - 8) + nn; b = 15 + (j >> 2)
        ad = (b % 10) * 16384 + (j & 3) * 1024
        if seq[i][0] == 0: k.wait(vm=[("gw", b)])
        k.ds(f"ds_read_b128 {vr(D_WF+4*(n%NWF),4)}, v{D_RB + (ad>>16)} offset:{ad & 0xffff}", ("wf", n))
    def wfrag(i, nn):
        e = seq[i][1]
        if e < 8: return ar(192 + 8*e + 4*nn, 4)
        if e >= 24: return vr(D_WV + 8*(e - 24) + 4*nn, 4)
        return vr(D_WF + 4*(slot_of[(i, nn)] % NWF), 4)
    mains = []; fixed = {}
    NT = P.dn_tail
    assert NT <= 4
    order = [(i, nn) for i in range(56 - NT) for nn in range(2)] + [(i, nn) for nn in range(2) for i in range(56 - NT, 56)]
    for pos, (i, nn) in enumerate(order):
        g, e = seq[i]
        if True:
            acc = D_ACC + 32 * g + 16 * nn
            mains.append(lambda i=i, nn=nn, acc=acc, e=e: k.e(f"{MF32} {vr(acc,16)}, {wfrag(i,nn)}, {vr(D_BF+4*(i%NB),4)}, {'0' if e == 0 else vr(acc,16)}"))
            gp = len(mains) - 1; fl_ = fixed.setdefault(gp, [])
            nx = order[pos + 1] if pos + 1 < len(order) else None
            vmn = [("b", nx[0])] if (nx and nx[1] == 0) else None
            lgn = [("wf", slot_of[nx])] if nx in slot_of else None
            if nx == (24, 0): vmn = vmn + ["dnv"]
            fl_.append((0, lambda vmn=vmn, lgn=lgn: k.wait(vm=vmn, lg=lgn)))
            ah = (i + 2, nn)
            if ah in slot_of: fl_.append((1, lambda n=slot_of[ah]: wread(n)))
    nxt = NB; pend = 0
    for i in range(len(seq)):
        fl_ = fixed[2*i + 1]
        if i == P.dn_late: fl_.append((2, lambda: (k.poll_check(D_PA, "ph2", 2), k.stamp("dn late"), k.mark("late"))))
        n = 0
        while nxt < len(seq) and nxt <= i + NB and n < 2 and (nxt < 16 or i >= P.dn_late):
            fl_.append((1, lambda j=nxt: bload(j))); nxt += 1; n += 1
        if nxt == len(seq) and not pend: pend = 2*i + 2
    fixed[20].append((1, lambda: k.e("s_barrier")))
    for mm in range(2):
        fixed[40 + 4*mm].append((2, lambda mm=mm: (k.e(f"s_add_u32 s32, s55, {BX1[layer] + mm*32768}"),
                                                   k.vm(f"buffer_load_dwordx4 {vr(RES+4*mm,4)}, v{vL16}, {SRD_WS}, s32 offen sc1", "res"))))
    fw = Flex(); fs = Flex()
    for q, f in enumerate(red_writes(k, D_ACC, 0, 0, 1)): fw.add(f, 1, 58 + 2*q)
    fw.add(lambda: (k.wait(lg=[("rw", 0)]), k.e("s_barrier")), 2, 76)
    for f in red_reads(k, 0, T, 0): fw.add(f, 2)
    fw.add(lambda: k.wait(vm=["res"]))
    red_finish(k, fw, 0, groups[0], T, WS_X[1], WS_ST[1], final, False)
    if not final:
        fw.add(lambda: k.vm(f"buffer_store_dwordx4 {vr(RES+4,4)}, v{vL16}, {SRD_WS}, s72 offen sc1", "hxs"))
        fw.add(lambda: k.vm(f"buffer_store_dword v{T+32}, v{R_ST}, {SRD_WS}, s73 offen sc1", "hxs"))
        fw.skip(P.dn_flag_delay); fw.add(lambda: (k.wait(vm=[("xst", 0)]), k.flag(1)), 3)
        if P.x2_touch == "dn":
            fixed[P.dn_x2].append((5, lambda: k.touch(226, "p", [f"s_add_u32 s32, s55, {WS_X[1]}"])))
            fixed[P.dn_x2 + 1].append((4, lambda: k.touch(227, "s", [f"s_add_u32 s32, s56, {WS_ST[1]}"])))
            fs.add(lambda: k.wait(vm=["touch"]), 1, P.dn_x2 + 2)
        if "d" in str(P.touch1):
            for q, f in enumerate(touch_next(k, 28)): fixed[P.dn_touch + 2*q].append((5, f))
        fs.dep("late")
        for f in a11_bases(k) + a1_setup(k, 1): fs.add(f)
        fs.add(lambda: (k.poll_addr(A_PX, 32), k.e(f"s_lshl_b32 s32, s{sB}, 7", f"s_add_u32 s{sPO}, s32, {fl(0, FL_X2)}")), 4)
    wtail = red_writes(k, D_ACC + 32, 1, 2*16384, 1)
    if NT:
        for q in range(min(4, NT)): fixed[min(111, 112 - NT + 1 + q)].append((4, wtail.pop(0)))
    k.wait(vm=["dna", ("b", 0)])
    k.stamp("dn first")
    if k.stamping:
        fixed[55].append((0, lambda: k.stamp("dn p1")))
        for g in range(7, 111, 8): fixed[g].append((0, lambda g=g: k.stamp(f"find {g}")))
    run_gaps(k, mains, fixed, [early, fw, fs], 6)
    print("dn left:", len(k.bg), len(fw), len(fs), "last h load at gap", pend)
    k.stamp("dn gemm")
    assert not fs.items
    ws = wtail
    if not final: ws.insert(len(ws) - 4, lambda: k.poll_issue(A_PX, "px0"))
    merge(k, fw, ws)
    k.wait(lg=[("rw", 1)]); k.e("s_barrier")
    k.stamp("dn red")
    for f in red_reads(k, 1, T, 2*16384): f()
    if not final:
        k.bg_held = True
        k.poll_check(A_PX, "px0", 1)
        k.wait(vm=["hxs"]); k.flag(1, 91, "sc1")
        a11_early(k)
    f1 = Flex(); red_finish(k, f1, 1, groups[1], T, WS_X[1], WS_ST[1], final, True); drain([f1], k)
    k.stamp("dn end")
P.dn_tail = 0; P.dn_touch = 88; P.dn_flag_delay = 4; P.dn_pre = 6; P.dn_late = 7; P.dn_fgap = 6
P.dn_wow = 6; P.per_dn = {"s4": 110, "s2": 130}; P.per_dn0 = {"s4": 60, "s2": 60}

def build(stamps=False, only=None):
    k = F(); k.stamping = stamps; k.only = only; k.st = P.dst; k.rt = P.rt
    name = NAME + "_kernel"
    k.e(".p2align 8", f".globl {name}", f".type {name},@function"); k.label(name)
    if stamps: k.e("s_memrealtime s[92:93]", "s_memtime s[94:95]")
    k.e("s_cmp_ge_u32 s2, 256", "s_cbranch_scc1 L_end")
    k.e("s_load_dwordx16 s[64:79], s[0:1], 0", "s_load_dwordx4 s[80:83], s[0:1], 64", "s_memrealtime s[96:97]")
    k.e("s_getpc_b64 s[100:101]")
    k.e("L_pc: ;np")
    k.e("s_mov_b32 s24, s100", "s_mov_b32 s25, s101", "s_mov_b32 s26, L_end-L_pc", "s_mov_b32 s27, 0x20000",
        "v_and_b32 v1, 63, v0", "v_lshrrev_b32 v2, 6, v0", "s_lshr_b32 s33, s2, 3", "s_mul_i32 s32, s33, 43", "s_lshr_b32 s32, s32, 8",
        "s_mul_i32 s32, s32, 6", "s_sub_u32 s32, s33, s32", "s_lshl_b32 s32, s32, 13", "v_lshlrev_b32 v3, 11, v2", "v_lshl_add_u32 v3, v1, 7, v3",
        f"v_mov_b32 v4, {OOB:#x}", "v_cmp_gt_u32 vcc, 16, v1", f"v_readfirstlane_b32 s{sW}, v2", "v_cndmask_b32 v3, v4, v3, vcc")
    if P.code0: k.vm(f"buffer_load_dword v175, v3, {SRD_PK}, s32 offen", "code")
    k.e("s_and_b32 s32, s2, 7", f"s_and_b32 s{sM}, s33, 15", "s_lshr_b32 s33, s33, 4", "s_lshl_b32 s32, s32, 1", f"s_add_u32 s{sC}, s32, s33")
    k.e(f"s_lshr_b32 s33, s{sM}, 3", f"s_lshl_b32 s{sB}, s{sC}, 1", f"s_add_u32 s{sB}, s{sB}, s33", f"s_and_b32 s{sCS}, s{sM}, 7")
    k.e("v_lshlrev_b32 v2, 4, v1")
    a10_lanes(k)
    k.e("s_waitcnt lgkmcnt(0)")
    srd(k, 12, 64, 2048 * 1024); srd(k, 16, 66, 512 * 3072)
    k.e(f"s_or_b32 s{sTAG}, s96, 1")
    if stamps:
        k.stamps += ["rt0", "start"]; k.e("v_writelane_b32 v0, s92, 0", f"v_writelane_b32 v0, s{92 if P.rt else 94}, 1")
    k.stamp("s kernarg")
    if P.pk_first == 1: pack_issue(k)
    k.stamp("s pkissue")
    run(a10_x(k, 0) + a10_w(k, 0))
    if P.pk_first == 0: pack_issue(k)
    srd(k, 28, 80, 256)
    k.e("v_cmp_eq_u32 vcc, 0, v1", f"v_mov_b32 v{vFA}, {OOB:#x}", f"s_or_b32 s32, s2, s{sW}", f"v_cndmask_b32_e64 v{vFA}, v{vFA}, 0, vcc",
        "s_cmp_eq_u32 s32, 0", f"s_cselect_b32 s32, 0, {OOB>>1:#x}", f"v_mov_b32 v170, s{sTAG}")
    k.vm(f"buffer_store_dword v170, v{vFA}, {SRD_DBG}, s32 offen sc1", "tagst")
    srd(k, 8, 82, WS_SIZE); srd(k, 20, 78, 2048 * 1024)
    for f in a1_setup(k, 0): f()
    o_bases(k, 0)
    a10_lanes2(k)
    k.e(f"v_mov_b32 v60, {OOB:#x}", "v_cmp_gt_u32 vcc, 8, v1", "v_mov_b32 v176, 0", "v_mov_b32 v177, 0", "v_mov_b32 v178, 0", "v_mov_b32 v179, 0",
        f"v_cndmask_b32 v173, v60, v{vL16}, vcc", "v_cmp_gt_u32 vcc, 16, v1", "s_nop 0",
        f"s_lshl_b32 s32, s{sC}, 4", f"v_cndmask_b32 v172, v60, v{vL16}, vcc")
    k.e(f"s_add_u32 s32, s32, s{sM}", "s_lshl_b32 s32, s32, 4",
        f"s_cmp_eq_u32 s{sW}, 0", f"s_cselect_b32 s32, s32, {OOB>>1:#x}", f"v_add_u32 v171, s32, v{vFA}", f"s_mov_b32 s{sBUD}, 400000")
    red_bases(k)
    k.e(f"s_lshl_b32 s{sGL}, s{sW}, 12", f"s_mul_i32 s{sGS}, s{sM}, {PGU_SLICE}", f"s_add_u32 s{sGS}, s{sGS}, s{sGL}", f"s_add_u32 s{sGS}, s{sGS}, {WS_PGU}")
    k.e(f"s_mul_i32 s32, s{sCS}, {224*KB}", f"s_mul_i32 s33, s{sW}, {56*KB}", "s_add_u32 s32, s32, s33", f"s_add_u32 s{sDS}, s32, {WS_PDN}")
    k.e(f"s_lshl_b32 s32, s{sCS}, 16", f"s_add_u32 s32, s32, s{sGL}", f"s_add_u32 s88, s32, {WS_PWO}")
    wo_bases(k)
    k.stamp("s setup")
    run(a10_w(k, 1))
    if P.pk_first == 2: pack_issue(k)
    k.e(f"s_getreg_b32 s{sXCC}, hwreg(HW_REG_XCC_ID, 0, 4)", f"s_mov_b32 s75, {WS_ARR}", f"s_lshl_b32 s77, s{sC}, 8", "s_add_u32 s77, s77, s75")
    k.stamp("s w01")
    def mid2():
        if P.k_first > 3: run(a10_w(k, 3))
        k.e("s_lshl_b32 s32, s2, 7")
        k.vm(f"buffer_store_dwordx4 v[176:179], v173, {SRD_WS}, s32 offen sc1", "zero")
        k.e("s_lshl_b32 s32, s2, 8", f"s_add_u32 s32, s32, {WS_HXF}")
        k.vm(f"buffer_store_dwordx4 v[176:179], v172, {SRD_WS}, s32 offen sc1", "zero")
    if P.k_pack is None: pack_process(k, lambda: run(a10_x(k, 1) + a10_w(k, 2)), mid2)
    else: run(a10_x(k, 1) + a10_w(k, 2)); mid2()
    k.vm(f"buffer_load_dword v170, v{vFA}, {SRD_DBG}, 0 offen sc1", "tag")
    k.stamp("s pkdone")
    a10_loop(k, P.k_first)
    a10_tail(k)
    wo(k, 0); gu(k, 0); dn(k, 0)
    if not P.half:
        k.marks = {m: g for m, g in k.marks.items() if False}
        k.seen = {t for t in k.seen if t in k.vmq or t in k.lgq or t in ("dna", "st0", ("x", 2), ("x", 3))}
        a11_main(k)
        wo(k, 1)
        k.marks = {m: g for m, g in k.marks.items() if m == "wobar" or m[0] == "bar"}
        gu(k, 1); dn(k, 1)
    if P.verbose: print([(t, tag, f) for t, tag, f in k.bg_log if f])
    if stamps:
        k.e("s_waitcnt vmcnt(0)"); k.stamp("drained"); k.stamp("rt1", True)
        k.e("s_lshl_b32 s32, s2, 10", "s_lshl_b32 s33, s3, 8", "s_add_u32 s32, s32, s33",
            f"s_add_u32 s32, s32, {WS_STAMP}", "v_lshlrev_b32 v8, 2, v1", f"buffer_store_dword v0, v8, {SRD_WS}, s32 offen")
        if P.echo:
            a, b = P.echo
            n = len(k.stamps)
            k.e(f"v_readlane_b32 s32, v0, {a}", f"v_readlane_b32 s33, v0, {b if b >= 0 else n + b}", f"v_readlane_b32 s34, v0, {n-1}", "s_nop 3",
                "s_sub_u32 s33, s33, s32", "s_min_u32 s33, s33, 20000")
            k.label("L_echo")
            k.e("s_memrealtime s[36:37]", "s_waitcnt lgkmcnt(0)", "s_sub_u32 s36, s36, s34", "s_cmp_lt_u32 s36, s33", "s_cbranch_scc1 L_echo")
        if P.dbg:
            n = len(k.stamps)
            k.e("v_readlane_b32 s32, v0, 0", f"v_readlane_b32 s33, v0, {n-1}", "s_not_b32 s34, s32", "v_mov_b32 v4, s33", "v_mov_b32 v5, s34")
            k.e(f"buffer_atomic_umax v4, v{vFA}, {SRD_DBG}, 0 offen offset:4", f"buffer_atomic_umax v5, v{vFA}, {SRD_DBG}, 0 offen offset:8")
            k.e(f"s_cmp_eq_u32 s2, {P.dbg - 1}", f"s_cselect_b32 s35, 0, {OOB>>1:#x}", f"s_cmp_eq_u32 s{sW}, 0", f"s_cselect_b32 s35, s35, {OOB>>1:#x}")
            for i, wd in zip(range(2, n - 1), (3, 5, 6, 7, 9, 10, 11, 13, 14, 15)):
                k.e(f"v_readlane_b32 s33, v0, {i}", "s_sub_u32 s33, s33, s32", "v_mov_b32 v4, s33", f"buffer_store_dword v4, v{vFA}, {SRD_DBG}, s35 offen offset:{4*wd}")
    k.e("s_endpgm")
    k.flush_spins()
    k.label("L_end"); k.e("s_endpgm")
    src = open("cdna_kernels/%s.s.ref" % NAME).read().splitlines()
    out = [l for l in src if l.startswith(";") and "@launch" not in l]
    out.append(f"; @launch grid=(256,1,1) block=(256,1,1) lds={LDS_TOTAL}")
    out += ['.amdgcn_target "amdgcn-amd-amdhsa--gfx950"', ".text"]
    s = "\n".join(out) + "\n" + k.text(verbose=True) + '.section .rodata,"a"\n.p2align 6\n' + kd(name)
    from verify import verify
    assert not verify(s), "a register is used while a load into it is in flight"
    if P.align:
        from align import align
        s = align(s)
    return s, k.stamps
P.x_nobar = 0; P.x_noepi = 0; P.rt = 1; P.dbg = 0; P.h_touch0 = ''; P.outm = ''; P.h1_plain = 1; P.tags = 0; P.echo = None; P.wo_setup_first = 0; P.gu_pa_late = 0; P.gu_bar_first = 0; P.flagbr = 0; P.rot = 0; P.pk_mod = 'nt'; P.x_mod = ''; P.w_mod = ''; P.t_mod = ''; P.pk_first = 1; P.half = 0; P.tlb = 1; P.code0 = 1; P.verbose = 0; P.align = 1; P.gu_cap = 5; P.gu_nw = 5; P.k_touch = 15; P.k_gb = 13; P.k_chk = 16

if __name__ == "__main__":
    path = sys.argv[1] if len(sys.argv) > 1 else "cdna_kernels/%s.s" % NAME
    opts = sys.argv[2:]
    only = None
    for o in opts:
        if o.startswith("only="): only = [x for x in o[5:].split(",") if x]
        if o.startswith("P."):
            n, v = o[2:].split("="); setattr(P, n, eval(v))
    s, st = build(stamps="st" in opts, only=only)
    open(path, "w").write(s)
    if "st" in opts: json.dump([st], open(path + ".json", "w"))
```

```python
import sys, json
from common import *

MF16 = "v_mfma_f32_16x16x32_bf16"
MF16S = "v_mfma_f32_16x16x16_bf16"
MF32 = "v_mfma_f32_32x32x16_bf16"
vL16, vFV, vFA, vP = 2, 8, 9, 10
CSV, CSQ, CSK, RES = 11, 12, 16, 20
OOB = 0x80000000
FL_O, FL_X1, FL_H, FL_X2 = 0, 4096, 8192, 12288
FL_HX = 16384 + 12288
def fl(layer, off): return WS_FLAGS + 16384 * layer + off
sROT, sBUD, sGL, sGS, sDS = 84, 98, 60, 61, 85
sT0, sT1, sPO, sFO = 32, 33, 86, 87
sML, sMS = 68, 69
WS_HXF = WS_O0 - 0x10000 if False else WS_END
WS_ARR = WS_HXF + 0x10000
sTAG, sXCC = 91, 76
WS_STAMP = 0x2000000
L_SA0, L_SA1, L_XH0, L_CS = 80896, 97280, 81920, 79872
def e_of(kk):
    p, tl = divmod(kk, 7)
    return 4 * p + tl if tl < 4 else 16 + 3 * p + (tl - 4)
KK_OF = {e_of(kk): kk for kk in range(28)}

class P:
    a1_bg_start, a1_bg_step = 30, 6
    gu_lead = 7
    gu_bg_start, gu_bg_step = 50, 2.6
    dn_lead = 12
    bgm = ""
    sleep = 0
    drop = ()
    codepf = 0
    ld = "sc1"
    dst = "sc1"
    safe = False
    plain = True
    notouch = ()

BO, BX1, BS1, BH = [WS_O[0]] * 2, [WS_X[0]] * 2, [WS_ST[0]] * 2, [WS_H[0]] * 2
def o_line(layer):
    return [f"s_lshl_b32 s32, s{sB}, 16", f"s_lshl_b32 s33, s{sCS}, 2", f"s_add_u32 s33, s33, s{sW}", "s_lshl_b32 s33, s33, 10",
            "s_add_u32 s32, s32, s33", f"s_add_u32 s32, s32, {BO[layer]}"]
def touch_next(k, t):
    return [lambda: k.touch(t, "p", o_line(1)), lambda: k.touch(t + 1, "q", [f"s_add_u32 s32, s64, {BX1[1]}"]),
            lambda: k.touch(t + 2, "t", [f"s_add_u32 s32, s65, {BS1[1]}"])]
def gu_tile(d):
    return [f"s_lshl_b32 {d}, s{sC}, 1", f"s_and_b32 s33, s{sW}, 1", f"s_add_u32 {d}, {d}, s33", f"s_lshl_b32 {d}, {d}, 1", f"s_lshr_b32 s33, s{sW}, 1", f"s_add_u32 {d}, {d}, s33"]
def h_base(d, layer):
    return gu_tile(d) + [f"s_mul_i32 {d}, {d}, 112", f"s_mul_i32 s33, s{sM}, 7",
            f"s_add_u32 {d}, {d}, s33", f"s_lshl_b32 {d}, {d}, 10", f"s_add_u32 {d}, {d}, {BH[layer]}"]

class F(K):
    def __init__(self):
        super().__init__(); self.spins = []; self.nspin = 0; self.st = ""; self.npf = 0
    def poll_issue(self, va, tag): self.vm(f"buffer_load_dword v{vP}, v{va}, {SRD_WS}, s{sPO} offen sc1", tag)
    def poll_addr(self, va, nl, sh=2):
        self.e(f"v_cmp_gt_u32 vcc, {nl}, v1", f"v_lshlrev_b32 v{va}, {sh}, v1", f"v_mov_b32 v{vP}, {OOB:#x}", f"v_cndmask_b32 v{va}, v{vP}, v{va}, vcc")
        self.nl = nl
    def poll_check(self, va, tag, thr):
        n = self.nspin; self.nspin += 1
        self.stamp(f"poll<{tag}")
        self.wait(vm=[tag])
        self.stamp(f"poll={tag}")
        msk = f"s_and_b32 s99, vcc_lo, {(1 << self.nl) - 1:#x}"
        self.e(f"v_cmp_gt_u32 vcc, {thr}, v{vP}", msk, f"s_cbranch_scc1 L_spin{n} ;np", f"L_back{n}: ;np")
        self.stamp(f"poll>{tag}")
        self.spins += [f"L_spin{n}:", f"s_sub_u32 s{sBUD}, s{sBUD}, 1", f"s_cbranch_scc1 L_give{n}"] + ([f"s_sleep {P.sleep}"] if P.sleep else []) + [
                       f"buffer_load_dword v{vP}, v{va}, {SRD_WS}, s{sPO} offen sc1", "s_waitcnt vmcnt(0)",
                       f"v_cmp_gt_u32 vcc, {thr}, v{vP}", msk, f"s_cbranch_scc1 L_spin{n}", f"s_branch L_back{n}",
                       f"L_give{n}:", f"s_mov_b32 s{sBUD}, 0", f"s_branch L_back{n}"]
    def flag(self, val, soff=sFO, st=None):
        self.e(f"v_mov_b32 v{vFV}, {val}")
        if st is not None:
            self.vm(f"buffer_store_dword v{vFV}, v{vFA}, {SRD_WS}, s{soff} offen {st}", "flag"); return
        if P.flagbr:
            self.dstore(f"buffer_store_dword v{vFV}, v{vFA}, {SRD_WS}, s{soff} offen", "flag", True); return
        self.e(f"s_or_b32 s99, s{soff}, s{sML}")
        self.vm(f"buffer_store_dword v{vFV}, v{vFA}, {SRD_WS}, s99 offen", "flag")
        self.e(f"s_or_b32 s99, s{soff}, s{sMS}")
        self.vm(f"buffer_store_dword v{vFV}, v{vFA}, {SRD_WS}, s99 offen sc1", "flag")
    def dstore(self, text, tag, always=False):
        if not P.plain and not always:
            self.vm(text + " sc1", tag); return
        n = self.nspin; self.nspin += 1
        self.e(f"s_cmp_lg_u32 s{sML}, 0", f"s_cbranch_scc1 L_alt{n} ;np")
        self.vm(text, tag)
        self.e(f"L_back{n}: ;np")
        self.spins += [f"L_alt{n}:", "s_nop 4", text + " sc1", f"s_branch L_back{n}"]
    def valid(self, test, reload):
        n = self.nspin; self.nspin += 1
        self.e(*test); self.e(f"s_cbranch_vccnz L_rl{n} ;np", f"L_back{n}: ;np")
        self.spins += [f"L_rl{n}:", f"s_sub_u32 s{sBUD}, s{sBUD}, 1", f"s_cbranch_scc1 L_give{n}"] + reload + ["s_waitcnt vmcnt(0)"] + test + \
                      [f"s_cbranch_vccnz L_rl{n}", f"s_branch L_back{n}", f"L_give{n}:", f"s_mov_b32 s{sBUD}, 0", f"s_branch L_back{n}"]
    def touch(self, tmp, kind, base_expr, masked=True):
        if not P.plain or kind in P.notouch: return
        nl = {"p": 16, "q": 16, "s": 2, "t": 2, "h": 56}[kind]
        self.e(f"v_cmp_gt_u32 vcc, {nl}, v1")
        if kind in "pq": self.e(f"v_lshrrev_b32 v{tmp}, 3, v1", f"v_lshlrev_b32 v{tmp}, {15 if kind == 'p' else 13}, v{tmp}", f"v_and_b32 v{vFV}, 7, v1", f"v_lshl_add_u32 v{tmp}, v{vFV}, 7, v{tmp}")
        else: self.e(f"v_lshlrev_b32 v{tmp}, {11 if kind == 's' else 7}, v1")
        self.e(f"v_mov_b32 v{vFV}, {OOB:#x}", *base_expr)
        self.e(f"v_cndmask_b32 v{tmp}, v{vFV}, v{tmp}, vcc")
        if masked: self.e(f"s_or_b32 s32, s32, s{sML}")
        self.vm(f"buffer_load_dword v{tmp}, v{tmp}, {SRD_WS}, s32 offen {P.t_mod}", "touch")
    def vm(self, text, tag=None):
        kind = tag[0] if isinstance(tag, tuple) else tag
        if kind in P.drop:
            self.seen.add(tag); return
        super().vm(text, tag)
    def codepf(self, tmpv, per=2048):
        if not P.codepf: return
        n = self.npf; self.npf += 1
        sh = (per // 64).bit_length() - 1
        self.e(f"L_pf{n}: ;np", f"s_mul_i32 s32, s{sW}, {per}", f"s_add_u32 s32, s32, L_pf{n}-L_pc", f"v_lshlrev_b32 v{tmpv}, {sh}, v1")
        raise NotImplementedError
    def flush_spins(self):
        for l in self.spins: self.e(l)
        self.spins = []

def batch(k, i):
    src = f"s_add_u32 s62, s{sGS}, {i*16384}" if i < 15 else f"s_add_u32 s62, s{sDS}, {(16 + 4*(i-15))*1024}"
    def f(q):
        k.set_m0(f"s_add_u32 m0, s{sGL}, {(i % 10)*16384}")
        if i != 14: k.set_s(src)
        elif k.last.get(62) != f"s_cselect_b32 s62, {OOB>>1:#x}, s62":
            k.e(src, f"s_cmp_ge_u32 s{sW}, 2", f"s_cselect_b32 s62, {OOB>>1:#x}, s62")
        k.vm(f"buffer_load_dwordx4 v{vL16}, {SRD_WS}, s62 offen offset:{q*1024} {P.bgm} lds", ("gw", i))
    return [lambda q=q: f(q) for q in range(4)]

def bg_batches(k, bs, period, dep=lambda b: None):
    for b in bs:
        for f in batch(k, b): k.bg_add(f, period, ("gw", b), dep(b))
def bg_list(k, fns, period, tag, dep=None):
    for f in fns: k.bg_add(f, period, tag, dep)

def regloads(k, base_sgpr, off, dst, n, tag, tmp=63, tagf=None):
    fns = []
    for j in range(n):
        def f(j=j):
            k.set_s(f"s_add_u32 s{tmp}, s{base_sgpr}, {off + (j & ~3)*1024}")
            k.vm(f"buffer_load_dwordx4 {dst(j)}, v{vL16}, {SRD_WS}, s{tmp} offen offset:{(j%4)*1024} {P.bgm}", tagf(j) if tagf else tag)
        fns.append(f)
    return fns
def wow(k):
    def f(i, q):
        k.set_m0(f"s_add_u32 m0, s{sGL}, {(6 + i)*16384}"); k.set_s(f"s_add_u32 s63, s88, {i*16384}")
        k.vm(f"buffer_load_dwordx4 v{vL16}, {SRD_WS}, s63 offen offset:{q*1024} lds", "wow")
    return [lambda i=i, q=q: f(i, q) for i in range(4) for q in range(4)]

def pack_issue(k):
    for r in (68, 69, 72, 73, 74, 75, 76, 77): assert k.last[r].startswith("s_load"), f"kernel argument s{r} overwritten"
    k.e("v_lshrrev_b32 v44, 3, v1", "v_and_b32 v43, 7, v1", "v_and_b32 v45, 2, v44", "v_lshlrev_b32 v45, 1, v45",
        "v_xor_b32 v43, v43, v45", "v_lshlrev_b32 v43, 4, v43", f"s_add_u32 s34, s49, {L_X + 4096}")
    k.e("s_cmp_ge_u32 s2, 112", "s_cbranch_scc1 L_pki_small")
    k.e("s_and_b32 s35, s2, 1", "s_bfe_u32 s36, s2, 0x10001", "s_lshr_b32 s37, s2, 2")
    k.e("s_cmp_eq_u32 s35, 0", "s_cselect_b32 s24, s72, s74", "s_cselect_b32 s25, s73, s75",
        f"s_mov_b32 s26, {512*3584:#x}", "s_mov_b32 s27, 0x20000")
    k.e("v_mul_u32_u24 v46, 3584, v44", "v_add_u32 v46, v46, v43")
    k.e("s_lshl_b32 s38, s36, 2", f"s_add_u32 s38, s38, s{sW}", f"s_mul_i32 s38, s38, {64*3584}",
        "s_lshl_b32 s39, s37, 7", "s_add_u32 s38, s38, s39")
    for i in range(8):
        k.e(f"s_add_u32 m0, s34, {(i>>2)*8192 + (i&3)*1024}", f"s_add_u32 s39, s38, {i*8*3584}", f"buffer_load_dwordx4 v46, {SRD_PK}, s39 offen {P.pk_mod} lds")
    k.e("s_branch L_pki_done")
    k.label("L_pki_small")
    k.e("s_sub_u32 s35, s2, 112", "s_lshl_b32 s35, s35, 3", f"s_lshl_b32 s36, s{sW}, 1", "s_add_u32 s35, s35, s36")
    k.e("s_cmp_lt_u32 s35, 896", "s_cselect_b32 s24, s76, s68", "s_cselect_b32 s25, s77, s69", f"s_mov_b32 s26, {512*1024:#x}",
        f"s_cselect_b32 s26, {1792*1024:#x}, s26", "s_mov_b32 s27, 0x20000", "s_cselect_b32 s37, 1, 0",
        "s_movk_i32 s38, 896", "s_cselect_b32 s38, 0, s38")
    k.e("s_cselect_b32 s39, 0, 1", "s_cselect_b32 s70, 14, 15", "s_movk_i32 s71, 0x4000", "s_cselect_b32 s71, 0x80, s71")
    k.e("s_sub_u32 s35, s35, s38", "s_lshr_b32 s35, s35, s39", "s_and_b32 s36, s35, 7", "s_lshr_b32 s35, s35, 3")
    k.e("v_lshl_add_u32 v46, v44, 10, v43", "s_lshl_b32 s38, s35, s70", "s_lshl_b32 s39, s36, 7", "s_add_u32 s38, s38, s39")
    for i in range(2):
        for h in range(2):
            k.e(f"s_add_u32 m0, s34, {(2*i+h)*1024}", f"s_add_u32 s39, s38, {h*8192}", f"buffer_load_dwordx4 v46, {SRD_PK}, s39 offen {P.pk_mod} lds")
        if i == 0: k.e("s_add_u32 s38, s38, s71")
    k.label("L_pki_done")
    k.vmq.append("pk"); k.seen.add("pk")

PQ = [76, 80, 84, 88, 92, 96, 36, 40]
def pack_process(k, mid1, mid2):
    k.e("v_bfe_u32 v46, v1, 2, 2", "v_and_b32 v47, 3, v1", "v_bfe_u32 v48, v1, 4, 1", "v_lshrrev_b32 v49, 5, v1")
    k.e("v_and_b32 v50, 2, v46", "v_add_u32 v50, v50, v48", "v_lshlrev_b32 v50, 5, v50",
        "v_lshl_add_u32 v50, v46, 7, v50", "v_lshl_add_u32 v50, v47, 3, v50", "v_add_u32 v50, s34, v50")
    k.e("s_cmp_ge_u32 s2, 112", "s_cbranch_scc1 L_pk_small")
    q0 = list(k.vmq)
    k.e("v_lshl_add_u32 v56, v49, 10, v50", "v_xor_b32 v57, 64, v56")
    k.e("s_lshl_b32 s39, s37, 2", "v_add_u32 v58, s39, v48")
    k.e("s_lshl_b32 s70, s36, 2", f"s_add_u32 s70, s70, s{sW}", "s_lshl_b32 s70, s70, 2")
    k.e("v_and_b32 v66, 15, v1", "s_lshl_b32 s71, s35, 8", "v_lshl_add_u32 v66, v66, 4, s71")
    for p in range(2):
        T, fs, tl, st_, b, aug = 59, 60, 61, 62 + p, 64 + p, 68 + p
        k.e(f"v_add_u32 v{T}, {2*p}, v58", f"v_mul_u32_u24 v{fs}, 9363, v{T}", f"v_lshrrev_b32 v{fs}, 16, v{fs}",
            f"v_mul_u32_u24 v{tl}, 7, v{fs}", f"v_sub_u32 v{tl}, v{T}, v{tl}")
        k.e(f"v_cmp_gt_u32 vcc, 3, v{tl}", f"v_mul_u32_u24 v67, 33, v{tl}", f"v_mov_b32 v{st_}, 1", "v_mov_b32 v70, 3",
            f"v_cndmask_b32 v67, v67, v{tl}, vcc", f"v_cndmask_b32 v{st_}, v{st_}, v70, vcc")
        k.e(f"v_mul_u32_u24 v{fs}, 231, v{fs}", f"v_add_u32 v67, v67, v{fs}")
        k.e(f"v_lshl_add_u32 v70, v{st_}, 5, v67", "v_lshlrev_b32 v70, 10, v70", "v_add_u32 v70, v70, v66",
            "s_lshl_b32 s71, s36, 9", f"v_add_u32 v{aug}, s71, v70")
        k.e(f"v_mul_lo_u32 v70, v{st_}, s70", "v_add_u32 v67, v67, v70", "v_lshlrev_b32 v67, 10, v67",
            "v_add_u32 v67, v67, v66", f"v_lshl_add_u32 v{b}, v49, 9, v67", f"v_lshlrev_b32 v{st_}, 10, v{st_}")
    k.e("v_mov_b32 v71, 0x3f803f80", "v_mov_b32 v72, 0", "v_mov_b32 v73, 0", "v_cmp_gt_u32 vcc, 32, v1", "v_mov_b32 v46, 0", "v_mov_b32 v47, 0",
        "v_cndmask_b32 v68, v69, v68, vcc", f"s_lshl_b32 s72, s{sW}, 8", "s_add_u32 s72, s72, 0x10000", "v_lshl_add_u32 v74, v1, 2, s72",
        "v_lshlrev_b32 v75, 2, v1", "v_add_u32 v75, 0x10000, v75")
    k.e(f"s_mov_b32 s70, {WS_PGU}", "s_mov_b32 s71, s70", "s_mov_b32 s72, s70", "s_mov_b32 s73, s70", f"s_cmp_eq_u32 s{sW}, 0", f"s_cselect_b32 s74, s70, {OOB>>1:#x}")
    k.wait(vm="pk")
    for ks in range(4):
        for p in range(2):
            for j in range(2): k.ds(f"ds_read_b64_tr_b16 {vr(PQ[2*ks+p]+2*j,2)}, v{56+p} offset:{(ks>>1)*8192 + (ks&1)*2048 + j*512}", ("t", ks, p))
        if ks == 2: k.wait(lg=[("t", 0, 1)])
    mid1()
    for ks in range(4):
        for p in range(2):
            k.wait(lg=[("t", ks, p)])
            for d in range(4): k.e(f"v_dot2c_f32_bf16 v{72+p}, v{PQ[2*ks+p]+d}, v71")
    k.e("v_permlane32_swap_b32 v72, v73", "v_add_f32 v72, v72, v73")
    k.ds(f"ds_write_b32 v74, v72 offset:{L_CS - 65536}")
    k.wait(lg="all"); k.e("s_barrier")
    for w in range(4): k.ds(f"ds_read_b32 v{56+w}, v75 offset:{L_CS - 65536 + 256*w}")
    mid2()
    k.wait(lg="all")
    k.e("v_add_f32 v56, v56, v57", "v_add_f32 v58, v58, v59", "v_add_f32 v56, v56, v58")
    k.e("v_cvt_pk_bf16_f32 v45, v56, v46", "v_lshlrev_b32 v57, 16, v45", "v_sub_f32 v57, v56, v57", "v_cvt_pk_bf16_f32 v44, v56, v57")
    k.e("s_branch L_pk_done")
    k.label("L_pk_small")
    k.vmq = list(q0)
    k.e(f"v_mov_b32 v64, v{vL16}", f"v_add_u32 v65, 1024, v{vL16}", f"v_mov_b32 v68, v{vL16}", f"s_mov_b32 s72, {OOB>>1:#x}", "s_mov_b32 s73, s72", "s_mov_b32 s74, s72")
    k.e("s_cmp_eq_u32 s37, 0", "s_cbranch_scc1 L_pk_wo")
    k.e("s_mul_i32 s38, s35, 2341", "s_lshr_b32 s38, s38, 16", "s_mul_i32 s39, s38, 28", "s_sub_u32 s39, s35, s39",
        "s_mul_i32 s70, s39, 9363", "s_lshr_b32 s70, s70, 16", "s_mul_i32 s71, s70, 7", "s_sub_u32 s71, s39, s71")
    for u in range(2):
      k.e(f"s_sub_u32 s39, s70, s36" if P.hrot else "s_mov_b32 s39, s70", f"s_sub_u32 s39, s39, {u if P.hrot else 0}", "s_and_b32 s39, s39, 3",
        "s_lshl_b32 s32, s39, 2", "s_add_u32 s32, s32, s71", "s_mul_i32 s33, s39, 3", "s_add_u32 s33, s33, s71", "s_add_u32 s33, s33, 12",
        "s_cmp_lt_u32 s71, 4", "s_cselect_b32 s32, s32, s33", "s_mul_i32 s33, s38, 28", "s_add_u32 s32, s32, s33", f"s_lshl_b32 s{(35, 37)[u]}, s32, 11")
    k.e("v_lshl_add_u32 v56, v49, 9, v50", "v_xor_b32 v57, 64, v56", f"v_mov_b32 v62, {224*KB}", f"v_mov_b32 v63, {224*KB}")
    k.e(f"s_mul_i32 s36, s36, {224*KB}", f"s_add_u32 s36, s36, {WS_PDN}", "s_add_u32 s70, s36, s35", "s_add_u32 s71, s36, s37")
    k.wait(vm="pk")
    for i in range(2):
        for nn in range(2):
            for j in range(2): k.ds(f"ds_read_b64_tr_b16 {vr(PQ[2*i+nn]+2*j,2)}, v{56+nn} offset:{i*2048 + j*1024}", "t")
    mid1(); mid2()
    k.wait(lg="all")
    k.e("s_branch L_pk_done")
    k.label("L_pk_wo")
    k.vmq = list(q0)
    k.e("v_and_b32 v56, 2, v46", "v_lshlrev_b32 v56, 1, v56", "v_xor_b32 v56, v56, v47", "v_lshlrev_b32 v56, 4, v56", "v_lshl_add_u32 v56, v46, 7, v56",
        "v_lshrrev_b32 v57, 4, v1", "v_lshl_add_u32 v56, v57, 10, v56", "v_add_u32 v56, s34, v56", "v_xor_b32 v57, 64, v56",
        "v_mov_b32 v62, 0x800", "v_mov_b32 v63, 0x800")
    k.e("s_lshl_b32 s36, s36, 16", "s_lshl_b32 s35, s35, 12", "s_add_u32 s70, s36, s35", f"s_add_u32 s70, s70, {WS_PWO}", "s_mov_b32 s71, s70")
    k.wait(vm="pk")
    for j in range(4):
        for jj in range(2): k.ds(f"ds_read_b64_tr_b16 {vr(PQ[j]+2*jj,2)}, v{56+(j>>1)} offset:{jj*512 + 8*(j&1)}", "t")
    mid1(); mid2()
    k.wait(lg="all")
    k.label("L_pk_done")

def pack_stores(k):
    ops = []
    for r in range(4):
        for p in range(2):
            ops.append(("v", lambda r=r, p=p: k.vm(f"buffer_store_dwordx4 {vr(PQ[2*r+p],4)}, v{64+p}, {SRD_WS}, s{70+r} offen sc1", "pks")))
            if r < 3: ops.append(("a", lambda p=p: k.e(f"v_add_u32 v{64+p}, v{64+p}, v{62+p}")))
    ops.append(("v", lambda: k.vm(f"buffer_store_dwordx4 v[44:47], v68, {SRD_WS}, s74 offen sc1", "pks")))
    return ops

A_XF, A_K, A_V, A_Q = 36, 76, 86, 96
A_STA, A_STB, A_OP, A_DX, A_PA, A_ST, A_ACC = 104, 106, 144, 152, 153, 140, 184
class R0: XE, XO, SA, SB, CI, ONE, M, ATT, TMP = 3, 4, 5, 6, 28, 32, 52, (116, 160), 60
class R1: XE, XO, SA, SB, CI, ONE, M, ATT, TMP = 116, 117, 118, 119, 252, 124, 120, (228, 160), 28
A_U, A_PX = 226, 115
A11_ORDER = [2, 3, 1, 0, "h"]
A11_POS = {2: 3, 3: 0, 1: 1, 0: 2, "h": 3}
sODD, sCUR0, sCUR1, sCEXP = 40, 42, 44, 46

def a1_setup(k, layer):
    R = (R0, R1)[layer]
    real = k; out = []
    class Rec:
        def e(self, *t):
            if any(x.startswith("s_cmp") for x in t): out.append(lambda t=t: real.e(*t))
            else: out.extend(lambda x=x: real.e(x) for x in t)
    k = Rec()
    t16, g, tt, tb = R.TMP, R.TMP + 1, R.TMP + 2, R.TMP + 3
    x, y, z = R.ONE, R.ONE + 1, R.ONE + 2
    sa = L_SA0 if layer == 0 else L_SA1
    k.e(f"v_and_b32 v{t16}, 15, v1", f"v_lshrrev_b32 v{g}, 4, v1", f"v_and_b32 v{tt}, 7, v1", f"v_bfe_u32 v{tb}, v1, 3, 1")
    k.e(f"v_lshlrev_b32 v{tb}, 13, v{tb}")
    if layer == 0: k.e(f"v_add_u32 v{tb}, {L_X}, v{tb}")
    if layer == 0:
        k.e(f"v_and_b32 v{x}, 6, v{tt}", f"v_xor_b32 v{x}, v{x}, v{g}", f"v_lshlrev_b32 v{x}, 4, v{x}",
            f"v_lshl_add_u32 v{x}, v{tt}, 7, v{x}", f"v_add_u32 v{R.XE}, v{x}, v{tb}", f"v_xor_b32 v{R.XO}, 64, v{R.XE}")
    else:
        k.e(f"v_lshl_add_u32 v{x}, v{g}, 7, v{tb}", f"v_lshl_add_u32 v{R.XE}, v{tt}, 4, v{x}", f"v_add_u32 v{R.XO}, 512, v{R.XE}")
    k.e(f"v_lshlrev_b32 v{R.SA}, 3, v{t16}", f"v_add_u32 v{R.SA}, {sa}, v{R.SA}",
        f"v_lshlrev_b32 v{R.SB}, 5, v{g}", f"v_add_u32 v{R.SB}, {sa}, v{R.SB}")
    k.e(f"v_and_b32 v{x}, 1, v1", f"v_cmp_eq_u32 s[{sODD}:{sODD+1}], 1, v{x}",
        f"v_lshl_add_u32 v{y}, v{g}, 2, v{x}", f"v_cmp_le_u32 s[{sCUR0}:{sCUR0+1}], v{y}, v{t16}",
        f"v_add_u32 v{y}, 2, v{y}", f"v_cmp_le_u32 s[{sCUR1}:{sCUR1+1}], v{y}, v{t16}")
    k.e(f"v_mov_b32 v{y}, 0xffff", f"v_mov_b32 v{z}, 0xffff0000", f"v_cndmask_b32 v{y}, v{y}, v{z}, s[{sODD}:{sODD+1}]", f"v_mov_b32 v{z}, 0")
    k.e(f"v_cndmask_b32 v{R.M+2}, v{z}, v{y}, s[{sCUR0}:{sCUR0+1}]", f"v_cndmask_b32 v{R.M}, v{y}, v{z}, s[{sCUR0}:{sCUR0+1}]",
        f"v_cndmask_b32 v{R.M+3}, v{z}, v{y}, s[{sCUR1}:{sCUR1+1}]", f"v_cndmask_b32 v{R.M+1}, v{y}, v{z}, s[{sCUR1}:{sCUR1+1}]")
    k.e(f"s_cmp_eq_u32 s{sB}, 0", f"s_cselect_b32 s70, {f2u(-1e38):#x}, 0", f"s_mov_b32 s{sCEXP}, {f2u(0.25*LOG2E):#x}")
    for i in range(4): k.e(f"v_mov_b32 v{R.CI+i}, s70", f"v_mov_b32 v{R.ONE+i}, 0x3f803f80")
    return out

def o_bases(k, layer):
    k.e(f"s_lshl_b32 s32, s{sB}, 16", f"s_lshl_b32 s33, s{sCS}, 2", f"s_add_u32 s33, s33, s{sW}", "s_lshl_b32 s53, s33, 10",
        "s_add_u32 s32, s32, s53", f"s_add_u32 s53, s32, {BO[layer]}", "s_add_u32 s54, s53, 32768",
        f"s_lshl_b32 s32, s{sB}, 5", "s_add_u32 s32, s32, s33", "s_lshl_b32 s32, s32, 2", f"s_add_u32 s89, s32, {fl(layer, FL_O)}")

def ln_finish(a, s, q):
    a(f"v_mul_f32 v{s}, {f2u(-1/512):#x}, v{s}"); a(f"v_mul_f32 v{q}, {f2u(1/512):#x}, v{q}")
    a(f"v_fma_f32 v{q}, -v{s}, v{s}, v{q}"); a(f"v_max_f32 v{q}, 0, v{q}"); a(f"v_add_f32 v{q}, {f2u(1e-5):#x}, v{q}")

A_QS = 68
def fix_reads(k, R, t, S):
    i = 0 if t == "h" else t + 1
    return [lambda: k.ds(f"ds_read_b64 {vr(S,2)}, v{R.SA} offset:{i*128}", ("sa", t)),
            lambda: k.ds(f"ds_read_b128 {vr(S+2,4)}, v{R.SB} offset:{i*128}", ("sa", t)),
            lambda: k.ds(f"ds_read_b128 {vr(S+6,4)}, v{R.SB} offset:{i*128+16}", ("sa", t))]
def fix(k, R, fx, t, acc, at, pk, S=A_STA, pre=False, nxt=()):
    a = lambda txt, c=1, at=0: fx.add(lambda: k.e(txt), c, at)
    i = 0 if t == "h" else t + 1
    if not pre:
        for n, f in enumerate(fix_reads(k, R, t, S)): fx.add(f, 1, at - P.a1_salead if n == 0 else 0)
    fx.add(lambda: k.wait(lg=[("sa", t)]), 1, at)
    for f in nxt: fx.add(f)
    for r0, cs, dst in ((acc[0], CSQ, None if t == "h" else A_Q + 2*t), (acc[1], CSK, A_K + 2*i)):
        if dst is None: continue
        isq = cs == CSQ
        if pk:
            for h in (0, 2): a(f"v_pk_fma_f32 {vr(r0+h,2)}, {vr(S,2)}, {vr(cs+h,2)}, {vr(r0+h,2)} op_sel_hi:[0,1,1]")
            if not isq:
                for h in (0, 2): a(f"v_pk_mul_f32 {vr(r0+h,2)}, {vr(S,2)}, {vr(r0+h,2)} op_sel:[1,0] op_sel_hi:[1,1]")
        else:
            for r in range(4): a(f"v_fmac_f32 v{r0+r}, v{S}, v{cs+r}")
            if not isq:
                for r in range(4): a(f"v_mul_f32 v{r0+r}, v{S+1}, v{r0+r}")
        if isq: a(f"v_mul_f32 v{A_QS+t}, s{sCEXP}, v{S+1}")
        for h in range(2): a(f"v_cvt_pk_bf16_f32 v{dst+h}, v{r0+2*h}, v{r0+2*h+1}")
    r0 = acc[2]
    for r in range(4): a(f"v_fmac_f32 v{r0+r}, v{S+2+2*r}, v{CSV}")
    for r in range(4): a(f"v_mul_f32 v{r0+r}, v{S+3+2*r}, v{r0+r}")
    for h in range(2): a(f"v_cvt_pk_bf16_f32 v{A_V+2*i+h}, v{r0+2*h}, v{r0+2*h+1}")
    fx.add(lambda: (k.mark(("fix", t)), k.stamp(f"t0 fix{t}")), 0)

def attn(k, R, fx, t, B):
    SC, SP, PP, O, SUM, T = B, B + 4, B + 8, B + 12, B + 16, B + 20
    a = lambda txt, c=1: fx.add(lambda: k.e(txt), c)
    q = vr(A_Q + 2*t, 2)
    fx.dep(("fix", t)); fx.dep(("fix", t - 1 if t else "h")); fx.skip(1)
    a(f"{MF16S} {vr(SC,4)}, {vr(A_K+2*(t+1),2)}, {q}, 0", 2)
    a(f"{MF16S} {vr(SP,4)}, {vr(A_K+2*t,2)}, {q}, {vr(R.CI,4) if t == 0 else '0'}", 2)
    fx.skip(3)
    for rr, cur in ((0, sCUR0), (1, sCUR1)):
        a(f"v_cndmask_b32 v{T+2}, v{SC+2*rr}, v{SC+2*rr+1}, s[{sODD}:{sODD+1}]")
        a(f"v_cndmask_b32 v{T+3}, v{SP+2*rr}, v{SP+2*rr+1}, s[{sODD}:{sODD+1}]")
        a(f"v_cndmask_b32 v{T+rr}, v{T+3}, v{T+2}, s[{cur}:{cur+1}]")
    a(f"v_max_f32 v{T+2}, v{T}, v{T+1}"); a(f"v_mov_b32 v{T+3}, v{T+2}"); fx.skip(1)
    a(f"v_permlane16_swap_b32 v{T+2}, v{T+3}", 2); a(f"v_max_f32 v{T+2}, v{T+2}, v{T+3}"); a(f"v_mov_b32 v{T+3}, v{T+2}"); fx.skip(1)
    a(f"v_permlane32_swap_b32 v{T+2}, v{T+3}", 2); a(f"v_max_f32 v{T+2}, v{T+2}, v{T+3}")
    a(f"v_mul_f32 v{T+2}, v{A_QS+t}, v{T+2}")
    for rr in range(2): a(f"v_fma_f32 v{T+rr}, v{T+rr}, v{A_QS+t}, -v{T+2}")
    for rr in range(2): a(f"v_exp_f32 v{T+rr}, v{T+rr}", 2)
    for rr in range(2): a(f"v_cvt_pk_bf16_f32 v{T+rr}, v{T+rr}, v{T+rr}")
    a(f"v_and_b32 v{PP}, v{T}, v{R.M}"); a(f"v_and_b32 v{PP+1}, v{T+1}, v{R.M+1}")
    a(f"v_and_b32 v{PP+2}, v{T}, v{R.M+2}"); a(f"v_and_b32 v{PP+3}, v{T+1}, v{R.M+3}")
    fx.skip(1)
    a(f"{MF16} {vr(SUM,4)}, {vr(R.ONE,4)}, {vr(PP,4)}, 0", 2)
    a(f"{MF16} {vr(O,4)}, {vr(A_V+2*t,4)}, {vr(PP,4)}, 0", 2)
    fx.skip(3)
    a(f"v_rcp_f32 v{T}, v{SUM}", 2); fx.skip(1)
    for r in range(4): a(f"v_mul_f32 v{O+r}, v{T}, v{O+r}")
    for h in range(2): a(f"v_cvt_pk_bf16_f32 v{A_OP+2*t+h}, v{O+2*h}, v{O+2*h+1}")
    fx.add(lambda: (k.mark(("attn", t)), k.stamp(f"t0 attn{t}")), 0)

def ostore(k, fx, pair):
    b = A_OP + 4 * pair
    fx.dep(("attn", 2*pair)); fx.dep(("attn", 2*pair + 1))
    fx.dep("po1" if pair == 0 else "blank")
    fx.skip(1)
    fx.add(lambda: k.e(f"v_permlane16_swap_b32 v{b}, v{b+2}"), 2); fx.add(lambda: k.e(f"v_permlane16_swap_b32 v{b+1}, v{b+3}"), 2)
    fx.add(lambda: (k.dstore(f"buffer_store_dwordx4 {vr(b,4)}, v{vL16}, {SRD_WS}, s{53+pair} offen", ("ost", pair)), k.mark(("ost", pair))))

Z_WD, Z_TR, Z_HE, Z_HO, Z_OE, Z_OO = 164, 165, 166, 167, 168, 169
Z_XF, Z_SUM, Z_GR, Z_SUMH, Z_GRH, Z_CV = 104, 240, 244, 248, 252, 100
P.k_first = 4; P.k_pack = None; P.k_prep = 13
P.k_look, P.k_atom, P.k_bar, P.k_vgap, P.k_pst, P.k_pgap = 3, 6, 3, 3, 3, 0
NS0 = 6
def z_acc(t):
    if t == "h": return (None, A_ACC + 48, A_ACC + 52)
    return (A_ACC + 12*t, A_ACC + 12*t + 4, A_ACC + 12*t + 8)

def a10_lanes(k):
    k.e("v_lshrrev_b32 v60, 3, v1", "v_and_b32 v61, 6, v60", "v_and_b32 v62, 7, v1", "v_xor_b32 v61, v61, v62",
        "v_lshlrev_b32 v61, 4, v61", f"v_lshl_add_u32 v{A_DX}, v60, 10, v61")
    k.e("v_and_b32 v61, 2, v60", f"s_and_b32 s32, s{sW}, 1", "s_lshl_b32 s32, s32, 2", "v_or_b32 v61, s32, v61", "v_xor_b32 v61, v61, v62",
        "v_lshlrev_b32 v61, 4, v61", "v_mul_u32_u24 v60, 3072, v60", f"v_add_u32 v{Z_WD}, v60, v61")
    if P.rot == 0: k.e(f"s_add_u32 s{sROT}, s{sB}, s{sCS}")
    elif P.rot == 1: k.e(f"s_lshl_b32 s32, s{sB}, 1", f"s_bfe_u32 s33, s{sB}, 0x10002", "s_add_u32 s32, s32, s33", f"s_add_u32 s{sROT}, s32, s{sCS}")
    elif P.rot == 2: k.e(f"s_lshl_b32 s32, s{sB}, 1", f"s_add_u32 s{sROT}, s32, s{sCS}")
    elif P.rot == 3: k.e(f"s_mov_b32 s{sROT}, s{sCS}")
    elif P.rot == 4: k.e(f"s_lshl_b32 s32, s{sB}, 1", f"s_bfe_u32 s33, s{sB}, 0x10002", f"s_add_u32 s{sROT}, s32, s33")
    elif P.rot == 5: k.e(f"s_mov_b32 s{sROT}, 0")
    k.e(f"s_and_b32 s{sROT}, s{sROT}, 7")
    k.e(f"s_lshl_b32 s47, s{sB}, 3", "s_sub_u32 s48, s47, 2", "s_max_i32 s48, s48, 0", f"s_and_b32 s32, s{sW}, 1", "s_add_u32 s48, s48, s32",
        "s_lshl_b32 s48, s48, 13", f"s_lshl_b32 s32, s{sW}, 1", "s_add_u32 s47, s47, s32", "s_lshl_b32 s47, s47, 13")
    k.e(f"s_mul_i32 s51, s{sW}, {8*3072}", f"s_lshl_b32 s32, s{sCS}, 7", "s_add_u32 s51, s51, s32", f"s_mul_i32 s52, s{sW}, 3072")
    k.e(f"s_lshl_b32 s49, s{sW}, 14", f"s_and_b32 s32, s{sW}, 1", "s_lshl_b32 s50, s32, 13", f"s_lshr_b32 s32, s{sW}, 1",
        "s_lshl_b32 s33, s32, 10", "s_add_u32 s50, s50, s33", f"s_add_u32 s90, s32, s{sROT}")

def a10_x(k, c):
    S = lambda *t: [("s", lambda x=x: k.e(x)) for x in t]
    ld = lambda: k.vm(f"buffer_load_dwordx4 v{A_DX}, {SRD_X}, s33 offen {P.x_mod} lds", ("x", c))
    ops = S(f"s_add_u32 s33, s{sROT}, {c}", "s_and_b32 s33, s33, 7", "s_lshl_b32 s33, s33, 7", f"s_add_u32 m0, s49, {L_X + c*1024}", "s_add_u32 s33, s33, s47")
    ops += [("v", ld)] + S(f"s_add_u32 m0, s49, {L_X + 8192 + c*1024}", "s_add_u32 s33, s33, 8192") + [("v", ld)]
    if c % 2 == 0:
        ops += S(f"s_add_u32 s33, s90, {c}", "s_and_b32 s33, s33, 7", "s_lshl_b32 s33, s33, 7", f"s_add_u32 m0, s50, {L_XH0 + c*1024}", "s_add_u32 s33, s33, s48") + [("v", ld)]
    return ops

def a10_w(k, s):
    S = lambda *t: [("s", lambda x=x: k.e(x)) for x in t]
    if s & 1: ops = S(f"s_add_u32 m0, s52, {(s % NS0)*12288}", f"s_add_u32 s63, s63, {32*3072}")
    else: ops = S(f"s_add_u32 s63, s{sROT}, {s>>1}", "s_and_b32 s63, s63, 7", f"s_mul_i32 s63, s63, {64*3072}", f"s_add_u32 m0, s52, {(s % NS0)*12288}", "s_add_u32 s63, s63, s51")
    for p in range(3): ops.append(("v", lambda p=p: k.vm(f"buffer_load_dwordx4 v{Z_WD}, {SRD_QKV}, s63 offen offset:{p*1024} {P.w_mod} lds", ("w", s))))
    return ops
def run(ops):
    for _, f in ops: f()

def fill(k, mains, streams, cap=2):
    lastv = -99
    for g, m in enumerate(mains):
        m(); k.gap = g
        for a, o in streams:
            if a <= g and o and o[0][0] == "s": o.pop(0)[1](); break
        room = cap; nd = 0
        if g - lastv >= P.k_vgap and k.bg_step(): room -= 1; lastv = g
        while room > 0:
            pick = None
            for a, o in streams:
                if a > g or not o: continue
                t = o[0][0]
                if t == "d" and nd >= 1: continue
                if t == "v" and g - lastv < P.k_vgap: continue
                pick = o; break
            if pick is None: break
            t, f = pick.pop(0); f(); room -= 2 if t == "b" else 1
            if t == "d": nd += 1
            if t == "v": lastv = g
    for a, o in streams: run(o)

def a10_lanes2(k):
    k.e("v_lshrrev_b32 v60, 4, v1", "v_bfe_u32 v61, v1, 2, 2", "v_and_b32 v62, 1, v60", "v_lshlrev_b32 v62, 1, v62",
        "v_lshrrev_b32 v63, 1, v61", "v_or_b32 v62, v62, v63", f"v_xor_b32 v62, s{sW}, v62", "v_lshlrev_b32 v62, 5, v62",
        "v_mul_u32_u24 v60, 3072, v60", "v_lshl_add_u32 v60, v61, 7, v60", "v_add_u32 v60, v60, v62",
        "v_and_b32 v61, 3, v1", f"v_lshl_add_u32 v{Z_TR}, v61, 3, v60")
    k.e("v_and_b32 v60, 15, v1", "v_cmp_eq_u32 s[78:79], 0, v60")
    k.e(f"v_subrev_u32 v{Z_HE}, 16384, v{R0.XE}", f"v_subrev_u32 v{Z_HO}, 16384, v{R0.XO}",
        f"v_add_u32 v{Z_OE}, s49, v{R0.XE}", f"v_add_u32 v{Z_OO}, s49, v{R0.XO}")

def a10_loop(k, first):
    LA = P.k_look
    def sync(s, extra=()):
        k.wait(vm=[("w", s), ("x", s >> 1)] + list(extra)); k.e("s_barrier")
    nxt = [first]
    def dmas(upto):
        out = []
        while nxt[0] <= min(upto, 15):
            n = nxt[0]; nxt[0] += 1
            if n % 2 == 0: out += a10_x(k, n // 2)
            out += a10_w(k, n)
        return out
    def reads(s):
        fb = Z_XF + 24 * (s & 1); off = (s >> 1) * 1024; o = s & 1
        tr = lambda p, j: ("d", lambda: k.ds(f"ds_read_b64_tr_b16 {ar(12*s+4*p+2*j,2)}, v{Z_TR} offset:{(s%NS0)*12288 + p*1024 + j*512}", ("r", s, 0 if p == 0 else 1)))
        xr = lambda d, a, of, grp: ("d", lambda: k.ds(f"ds_read_b128 {vr(d,4)}, v{a} offset:{of}", ("r", s, grp)))
        out = [tr(0, 0), tr(0, 1)] + [xr(fb + 4*t, R0.XO if o else R0.XE, t*16384 + off, 0) for t in range(4)]
        out += [tr(1, 0), tr(1, 1), tr(2, 0), tr(2, 1), xr(fb + 16, Z_HO if o else Z_HE, off, 1), xr(fb + 20, Z_OO if o else Z_OE, off, 1)]
        return out
    l0_background(k)
    pst = pack_stores(k)
    sync(0)
    k.stamp("k0")
    run(reads(0)); run(dmas(LA - 1))
    for s in range(16):
        fb = Z_XF + 24 * (s & 1)
        c = lambda r: "0" if s == 0 else vr(r, 4)
        wq, wk, wv, one = ar(12*s, 4), ar(12*s + 4, 4), ar(12*s + 8, 4), vr(R0.ONE, 4)
        ms = [f"{MF16} {vr(z_acc(t)[0],4)}, {wq}, {vr(fb+4*t,4)}, {c(z_acc(t)[0])}" for t in range(4)]
        for t in [0, 1, 2, 3, "h"]:
            xf = vr(fb + (16 if t == "h" else 4*t), 4)
            ms.append(f"{MF16} {vr(z_acc(t)[1],4)}, {wk}, {xf}, {c(z_acc(t)[1])}")
            ms.append(f"{MF16} {vr(z_acc(t)[2],4)}, {xf}, {wv}, {c(z_acc(t)[2])}")
        ms += [f"{MF16} {vr(Z_CV,4)}, {wq}, {vr(fb+16,4)}, {c(Z_CV)}",
               f"{MF16} {vr(Z_SUM,4)}, {one}, {vr(fb+20,4)}, {c(Z_SUM)}", f"{MF16} {vr(Z_GR,4)}, {vr(fb+20,4)}, {vr(fb+20,4)}, {c(Z_GR)}",
               f"{MF16} {vr(Z_SUMH,4)}, {one}, {vr(fb+16,4)}, {c(Z_SUMH)}", f"{MF16} {vr(Z_GRH,4)}, {vr(fb+16,4)}, {vr(fb+16,4)}, {c(Z_GRH)}"]
        mains = [lambda m=m: k.e(m) for m in ms]
        if s == P.k_pack:
            k.wait(lg="all"); pack_process(k, lambda: None, lambda: None)
        k.wait(lg=[("r", s, 0)])
        streams = [(3, [("s", lambda: k.wait(lg=[("r", s, 1)]))] +
                       [("a", lambda d=d: k.e(f"v_cndmask_b32 v{fb+16+d}, v{fb+16+d}, v{R0.ONE}, s[78:79]")) for d in range(4)])]
        if s + 1 < 16:
            ex = ["pks"] if s + 1 == P.k_atom else []
            assert not ex or not pst, "arrival before the last pack store"
            assert P.k_prep > 14 - LA and (P.k_pack or 0) <= 8 - LA
            ops = [("b", lambda: sync(s + 1, ex))] + reads(s + 1)
            if ex: ops.append(("b", lambda: arrive(k)))
            streams.append((P.k_bar, ops))
            streams.append((0, dmas(s + LA)))
        n = 0; mine = []
        while pst and s >= (P.k_pack or 0) and (n < P.k_pst or pst[0][0] == "a"):
            n += pst[0][0] == "v"; mine.append(pst.pop(0))
        streams.append((P.k_pgap, mine))
        if s == P.k_prep: streams.append((6, tail_prep(k)))
        if s == P.k_touch:
            streams.append((2, [("b", lambda: k.touch(157, "p", ["s_mov_b32 s32, s53"], False)),
                                ("b", lambda: k.touch(158, "q", [f"s_add_u32 s32, s64, {BX1[0]}"], False)),
                                ("b", lambda: k.touch(159, "h", h_base("s32", 0), False) if P.h_touch0 == "k" else None)]))
        if s == P.k_gb: streams.append((1, [("v", lambda t=t: k.vm(t, "gb")) for t in GB_LOADS]))
        if s == P.k_chk: streams.append((1, [("b", lambda: rendezvous(k))]))
        if s == 15 and P.k_chk < 16:
            streams.append((max(P.k_bar, 4), [("b", lambda: (k.e("s_barrier"), k.mark("xfree")))]))
        fill(k, mains, streams)
        if s in (3, 7, 11): k.stamp(f"k{s+1}")
    k.stamp("k16")
    if P.k_chk >= 16: rendezvous(k)

GB_LOADS = [f"buffer_load_dwordx4 {vr(36+4*j,4)}, v{vL16}, {SRD_WS}, s75 offen offset:{j*1024} sc1" for j in range(4)] + \
           [f"buffer_load_dword v{vP}, v172, {SRD_WS}, s77 offen offset:8 sc1"]
def arrive(k):
    k.wait(vm=["tag"])
    k.e(f"v_readfirstlane_b32 s{sTAG}, v170", f"s_cmp_eq_u32 s{sTAG}, 0", "s_cbranch_scc1 L_tag_spin ;np", "L_tag_ok: ;np")
    k.spins += ["L_tag_spin:", f"s_sub_u32 s{sBUD}, s{sBUD}, 1", "s_cbranch_scc1 L_tag_give", f"buffer_load_dword v170, v{vFA}, {SRD_DBG}, 0 offen sc1",
                "s_waitcnt vmcnt(0)", f"v_readfirstlane_b32 s{sTAG}, v170", f"s_cmp_eq_u32 s{sTAG}, 0", "s_cbranch_scc1 L_tag_spin", "s_branch L_tag_ok",
                "L_tag_give:", f"s_mov_b32 s{sBUD}, 0", "s_branch L_tag_ok"]
    k.e(f"v_mov_b32 v176, s{sTAG}", "v_not_b32 v177, v176", f"v_mov_b32 v178, s{sXCC}")
    k.vm(f"buffer_store_dwordx4 v[176:179], v171, {SRD_WS}, s75 offen sc1", "arr")

def rendezvous(k):
    chk = [f"s_not_b32 s32, s{sTAG}"]
    for j in range(4): chk += [f"v_xor_b32 v{36+4*j}, s{sTAG}, v{36+4*j}", f"v_xor_b32 v{37+4*j}, s32, v{37+4*j}"]
    chk += ["v_or3_b32 v36, v36, v37, v40", "v_or3_b32 v44, v44, v45, v41", "v_or3_b32 v36, v36, v48, v49", "v_or_b32 v36, v36, v44", "v_cmp_ne_u32 vcc, 0, v36"]
    k.wait(vm=["gb"])
    k.e(*chk); k.e("s_cbranch_vccnz L_gb_spin ;np", "L_gb_ok: ;np")
    k.spins += ["L_gb_spin:", f"s_sub_u32 s{sBUD}, s{sBUD}, 1", "s_cbranch_scc1 L_gb_give", "s_sleep 2",
                f"buffer_load_dword v170, v{vFA}, {SRD_DBG}, 0 offen sc1", "s_waitcnt vmcnt(0)", "v_readfirstlane_b32 s32, v170", f"s_cmp_eq_u32 s32, s{sTAG}",
                "s_cbranch_scc1 L_gb_same", f"s_mov_b32 s{sTAG}, s32", f"v_mov_b32 v176, s{sTAG}", "v_not_b32 v177, v176",
                f"buffer_store_dwordx4 v[176:179], v171, {SRD_WS}, s75 offen sc1", "L_gb_same:"] + GB_LOADS + ["s_waitcnt vmcnt(0)"] + chk + \
               ["s_cbranch_vccnz L_gb_spin", "s_branch L_gb_ok", "L_gb_give:", f"s_mov_b32 s{sBUD}, 0", "s_branch L_gb_ok"]
    k.e(f"v_cmp_ne_u32 vcc, s{sXCC}, v{vP}", "s_and_b32 s99, vcc_lo, 0xffff" if not P.safe else "s_and_b32 s99, 1, 1",
        f"s_cselect_b32 s{sML}, {OOB>>1:#x}, 0", f"s_cselect_b32 s{sMS}, 0, {OOB>>1:#x}")
    k.mark("gb")

W_OA, W_UA, W_SA, W_RB = 152, 154, 155, 156
def wo_bases(k):
    k.e(f"s_lshl_b32 s32, s{sB}, 2", f"s_add_u32 s32, s32, s{sW}", "s_lshl_b32 s64, s32, 14", f"s_lshl_b32 s33, s{sCS}, 10", "s_add_u32 s64, s64, s33",
        "s_lshr_b32 s32, s32, 1", "s_lshl_b32 s80, s32, 15", "s_lshl_b32 s65, s32, 11", "s_lshl_b32 s66, s32, 3", f"s_add_u32 s66, s66, s{sCS}", "s_lshl_b32 s66, s66, 1",
        f"s_and_b32 s32, s{sW}, 1", "s_add_u32 s66, s66, s32", "s_lshl_b32 s66, s66, 2", "s_lshl_b32 s32, s32, 8", "s_add_u32 s80, s80, s32", "s_add_u32 s65, s65, s32",
        f"s_lshr_b32 s32, s{sCS}, 1", "s_lshl_b32 s32, s32, 9", "s_add_u32 s65, s65, s32", f"s_and_b32 s32, s{sCS}, 1", "s_lshl_b32 s32, s32, 3", "s_add_u32 s65, s65, s32")
def wo_lanes(k):
    x, y = 66, 67
    return [lambda t=t: k.e(*t) for t in (
        [f"v_and_b32 v{x}, 15, v1"], [f"v_lshrrev_b32 v{y}, 4, v1"], [f"v_lshlrev_b32 v{W_OA}, 4, v{x}"], [f"v_lshl_add_u32 v{W_SA}, v{y}, 2, v{W_OA}"],
        [f"v_lshl_add_u32 v{W_OA}, v{y}, 9, v{W_OA}"], [f"v_and_b32 v{W_UA}, 7, v1"], [f"v_lshlrev_b32 v{W_UA}, 4, v{W_UA}"], [f"v_lshl_add_u32 v{W_UA}, v{y}, 7, v{W_UA}"],
        [f"v_lshrrev_b32 v{x}, 3, v{x}"], [f"v_lshl_add_u32 v{W_UA}, v{x}, 13, v{W_UA}"], [f"v_add_u32 v{W_RB}, {6*16384}, v{vL16}"],
        ["v_cmp_gt_u32 vcc, 32, v1", f"v_mov_b32 v{y}, {OOB:#x}", f"v_cndmask_b32 v{W_SA}, v{y}, v{W_SA}, vcc"])]
def blanks(k, layer):
    if not P.tags: return [lambda: k.mark("blank")]
    z = 66
    return [lambda: (k.e(f"v_mov_b32 v{z}, -1"), k.dstore(f"buffer_store_dword v{z}, v{vL16}, {SRD_WS}, s53 offen", "blank")),
            lambda: (k.e(f"s_add_u32 s58, s64, {BX1[layer]}"), k.dstore(f"buffer_store_dword v{z}, v{W_UA}, {SRD_WS}, s58 offen", "blank")),
            lambda: k.dstore(f"buffer_store_dword v{z}, v{W_UA}, {SRD_WS}, s58 offen offset:512", "blank"),
            lambda: (k.e(f"s_add_u32 s58, s65, {BS1[layer]}"), k.dstore(f"buffer_store_dword v{z}, v{W_SA}, {SRD_WS}, s58 offen", "blank"), k.mark("blank"))]
def wo_prepoll(k, layer):
    k.poll_addr(A_PA, 32)
    k.e(f"s_lshl_b32 s32, s{sB}, 7", f"s_add_u32 s{sPO}, s32, {fl(layer, FL_O)}", f"s_add_u32 s59, s80, {BO[layer]}")
    k.bg_held = True
    k.poll_issue(A_PA, "po1"); k.mark("po1")

def dna(k): return regloads(k, sDS, 0, lambda j: ar(192 + 4*j, 4), 16, "dna")

def tail_prep(k):
    R = R0
    A = lambda *t: [("a", lambda x=x: k.e(x)) for x in t]
    B = lambda *t: [("b", lambda: k.e(*t))]
    ops = A("v_and_b32 v73, 15, v1", "v_lshrrev_b32 v74, 4, v1", "v_lshlrev_b32 v73, 10, v73", "v_lshl_add_u32 v73, v74, 4, v73")
    ops += B(f"s_lshl_b32 s58, s{sB}, 2", f"s_add_u32 s58, s58, s{sW}", "s_lshl_b32 s58, s58, 14", f"s_lshl_b32 s59, s{sCS}, 7", "s_add_u32 s58, s58, s59")
    ops += [("v", lambda p=p: k.vm(f"buffer_load_dwordx4 {vr(RES+4*p,4)}, v73, {SRD_X}, s58 offen offset:{p*64}", "res")) for p in range(2)]
    ops += A("v_and_b32 v75, 3, v1", "v_cmp_eq_u32 s[34:35], 1, v75", "v_cmp_eq_u32 s[36:37], 2, v75", "v_cmp_eq_u32 s[38:39], 3, v75", "v_bfe_u32 v75, v1, 2, 2")
    ops += B("v_cmp_eq_u32 vcc, v75, v74", f"v_mov_b32 v72, {L_SA0 + 768}", f"s_lshl_b32 s59, s{sW}, 7", f"v_add_u32 v74, s59, v{R.SA}",
             "v_cndmask_b32 v74, v72, v74, vcc", f"v_cndmask_b32 v75, v72, v{R.SA}, vcc")
    return ops + [("a", f) for f in wo_lanes(k)]

def l0_background(k):
    k.per = dict(P.per_k)
    dd = dna(k)
    bg_list(k, dd[:P.dna_first], "s4", "dna", "gb")
    bg_list(k, wow(k), "s4", "wow", "xfree")
    bg_batches(k, [0, 1, 2, 3], "s2", lambda b: "xfree")
    bg_batches(k, [4], "s2", lambda b: "wobar")
    bg_batches(k, [5], "s2", lambda b: "xfree")
    bg_batches(k, [6, 7, 8, 9], "s2", lambda b: "gubar")
    bg_list(k, dd[P.dna_first:], "s4", "dna")
P.per_k = {"s2": 90, "s4": 70}

def a10_tail(k):
    R = R0
    k.per = dict(P.per_tail0)
    k.stamp("t0 gb")
    k.touch(72, "t", [f"s_add_u32 s32, s65, {BS1[0]}"])
    k.bg_burst(2)
    hk, hv = z_acc("h")[1], z_acc("h")[2]
    for r in range(4):
        k.e(f"v_mov_b32_dpp v{CSQ+r}, v{Z_CV+r} row_newbcast:0 row_mask:0xf bank_mask:0xf", f"v_mov_b32_dpp v{CSK+r}, v{hk+r} row_newbcast:0 row_mask:0xf bank_mask:0xf")
    k.e(f"v_mov_b32 v{CSV}, v{hv}", f"v_mov_b32 v45, v{hv}", f"v_permlane16_swap_b32 v{CSV}, v45", f"v_mov_b32 v45, v{CSV}", f"v_permlane32_swap_b32 v{CSV}, v45")
    fa = Flex(); fb = Flex()
    for fx, S, G, ad, off in ((fa, Z_SUM, Z_GR, 74, 128), (fb, Z_SUMH, Z_GRH, 75, 0)):
        a = lambda txt, c=1, fx=fx: fx.add(lambda: k.e(txt), c)
        a(f"v_cndmask_b32 v{S+1}, v{G}, v{G+1}, s[34:35]"); a(f"v_cndmask_b32 v{S+1}, v{S+1}, v{G+2}, s[36:37]"); a(f"v_cndmask_b32 v{S+1}, v{S+1}, v{G+3}, s[38:39]")
        ln_finish(a, S, S + 1); a(f"v_rsq_f32 v{S+1}, v{S+1}"); fx.skip(1)
        fx.add(lambda S=S, ad=ad, off=off: k.ds(f"ds_write_b64 v{ad}, {vr(S,2)} offset:{off}", "saw"))
    drain([fa, fb], k)
    for f in blanks(k, 0): f()
    k.wait(lg="all"); k.e("s_barrier"); k.mark("xfree")
    k.stamp("t0 bar")
    fx = Flex(); f1 = Flex(); f2 = Flex()
    od = (2, 1, 3, 0, "h"); Ss = (A_STA, 56)
    for f in fix_reads(k, R, od[0], Ss[0]): f()
    for n, t in enumerate(od):
        fix(k, R, fx, t, z_acc(t), 0, True, Ss[n & 1], True, fix_reads(k, R, od[n + 1], Ss[~n & 1]) if n < 4 else ()); fx.skip(1)
    attn(k, R, f1, 2, R.ATT[0]); attn(k, R, f2, 3, R.ATT[1]); ostore(k, f2, 1)
    attn(k, R, f1, 1, R.ATT[0]); attn(k, R, f2, 0, R.ATT[1]); ostore(k, f2, 0)
    f3 = Flex(); f3.dep(("ost", 1))
    for _ in range(P.l0_flag_delay): f3.skip(1)
    f3.add(lambda: (k.wait(vm=[("ost", 1)]), k.flag(1, 89), k.mark("oflag1")))
    f3.dep(("attn", 0)); f3.add(lambda: wo_prepoll(k, 0))
    drain([fx, f1, f2, f3], k)
    k.stamp("a1 end")
P.l0_flag_delay = 6; P.dna_first = 2
P.per_tail0 = {"s2": 70, "s4": 45}

def a11_bases(k):
    out = []
    S = lambda *t: out.extend(lambda x=x: k.e(x) for x in t)
    S(f"s_lshr_b32 s70, s{sW}, 1", "s_lshl_b32 s49, s70, 13", f"s_and_b32 s71, s{sW}, 1", "s_lshl_b32 s71, s71, 2",
      f"s_add_u32 s50, s71, s{sROT}", "s_lshl_b32 s71, s71, 10")
    for i in range(4):
        S(f"s_add_u32 s70, s50, {i}", "s_and_b32 s70, s70, 7", "s_lshl_b32 s70, s70, 10", "s_add_u32 s70, s70, s49", f"s_sub_u32 s{92+i}, s70, {i*1024}")
    S("s_add_u32 s49, s49, s71", f"s_lshl_b32 s47, s{sB}, 16", f"s_add_u32 s47, s47, {WS_X[1]}")
    S(f"s_sub_u32 s48, s{sB}, 1", "s_max_i32 s48, s48, 0", "s_lshl_b32 s51, s48, 10", f"s_add_u32 s51, s51, {WS_HST}",
      "s_lshl_b32 s52, s48, 11", f"s_add_u32 s52, s52, {WS_HXF}", "s_lshl_b32 s48, s48, 14", f"s_add_u32 s48, s48, {WS_HALO}")
    S("v_lshrrev_b32 v28, 4, v1", "v_and_b32 v29, 15, v1", "v_lshlrev_b32 v29, 4, v29", f"v_lshl_add_u32 v{A_U}, v28, 9, v29", f"v_lshl_add_u32 v{A_U+1}, v28, 8, v29")
    S(f"s_lshl_b32 s70, s{sB}, 12", f"s_and_b32 s71, s{sW}, 1", "s_lshl_b32 s71, s71, 8", "s_add_u32 s70, s70, s71", f"s_add_u32 s90, s70, {WS_ST[1]}")
    out.append(lambda: k.e(f"s_lshl_b32 s70, s{sB}, 1", f"s_add_u32 s70, s70, s{sW}", "s_lshl_b32 s72, s70, 13", f"s_lshl_b32 s71, s{sCS}, 10", "s_add_u32 s72, s72, s71",
        f"s_add_u32 s72, s72, {WS_HALO - 16384}", f"s_cmp_ge_u32 s{sW}, 2", f"s_cselect_b32 s72, s72, {OOB>>1:#x}"))
    out.append(lambda: k.e(f"s_lshl_b32 s73, s{sB}, 10", f"s_lshr_b32 s71, s{sCS}, 1", "s_lshl_b32 s71, s71, 8", "s_add_u32 s73, s73, s71", f"s_and_b32 s71, s{sCS}, 1",
        "s_lshl_b32 s71, s71, 3", "s_add_u32 s73, s73, s71"))
    out.append(lambda: k.e(f"s_lshl_b32 s71, s{sW}, 7", "s_add_u32 s73, s73, s71", f"s_add_u32 s73, s73, {WS_HST - 256}",
        f"s_cmp_ge_u32 s{sW}, 2", f"s_cselect_b32 s73, s73, {OOB>>1:#x}"))
    out.append(lambda: k.e(f"s_lshl_b32 s70, s{sB}, 3", f"s_add_u32 s70, s70, s{sCS}", "s_lshl_b32 s70, s70, 1", f"s_add_u32 s70, s70, s{sW}", "s_lshl_b32 s70, s70, 7",
        f"s_add_u32 s70, s70, {WS_HXF - 256}", f"s_cmp_ge_u32 s{sW}, 2", f"s_cselect_b32 s91, s70, {OOB>>1:#x}"))
    return out

def a11_x(k, tile):
    fns = []
    for i in range(4):
        def f(i=i):
            k.set_m0(f"s_add_u32 m0, s49, {A11_POS[tile]*16384}")
            k.e(f"s_add_u32 s32, s{48 if tile == 'h' else 47}, s{92+i}")
            if tile not in (0, "h"): k.e(f"s_add_u32 s32, s32, {tile*16384}")
            k.vm(f"buffer_load_dwordx4 v{vL16}, {SRD_WS}, s32 offen offset:{i*1024} sc1 lds", ("x", tile))
        fns.append(f)
    return fns

def stats_path(k, fx, S, tag, addr, tok, at=0):
    a = lambda txt, c=1: fx.add(lambda: k.e(txt), c)
    s, q = S, S + 1
    fx.add(lambda: k.wait(vm=[tag]), 1, at)
    a(f"v_add_f32 v{s}, v{s}, v{S+2}"); a(f"v_add_f32 v{q}, v{q}, v{S+3}"); fx.skip(1)
    a(f"v_permlane16_swap_b32 v{s}, v{q}", 2); a(f"v_add_f32 v{s}, v{s}, v{q}"); a(f"v_mov_b32 v{q}, v{s}"); fx.skip(1)
    a(f"v_permlane32_swap_b32 v{s}, v{q}", 2); a(f"v_add_f32 v{s}, v{s}, v{q}"); a(f"v_mov_b32 v{q}, v{s}"); fx.skip(1)
    a(f"v_permlane16_swap_b32 v{s}, v{q}", 2)
    ln_finish(a, s, q); a(f"v_rsq_f32 v{q}, v{q}", 2); fx.skip(1)
    fx.add(lambda: (k.ds(f"ds_write_b64 v{addr}, {vr(s,2)} offset:{tok*8}", ("saw", tag)), k.mark(("saw", tag))))

def a11_early(k):
    k.vm(f"buffer_load_dwordx4 {vr(A_ST,4)}, v{A_U}, {SRD_WS}, s90 offen offset:2048 sc1", "st0")
    for t in A11_ORDER[:2]:
        for f in a11_x(k, t): f()

def a11_main(k):
    R = R1; order = A11_ORDER
    steps = [(t, s) for t in order for s in range(16)]
    accof = lambda t: A_ACC + 12 * (order.index(t) % 3)
    def xread(i):
        t, s = steps[i]
        off = A11_POS[t] * 16384 + (s >> 1) * 1024
        k.ds(f"ds_read_b128 {vr(A_XF+4*(i%4),4)}, v{R.XO if s&1 else R.XE} offset:{off}", ("xf", i))
    mains = []; fixed = {}; gap_of = {}
    need_sa = {order[1]: ["st0"], order[2]: ["st1"], order[3]: [], "h": []}
    for i, (t, s) in enumerate(steps):
        acc = accof(t); xf = vr(A_XF + 4*(i % 4), 4)
        c = lambda r, s=s: "0" if s == 0 else vr(r, 4)
        ms = []
        if t != "h": ms.append(f"{MF16} {vr(acc,4)}, {ar(12*s,4)}, {xf}, {c(acc)}")
        ms.append(f"{MF16} {vr(acc+4,4)}, {ar(12*s+4,4)}, {xf}, {c(acc+4)}")
        ms.append(f"{MF16} {vr(acc+8,4)}, {xf}, {ar(12*s+8,4)}, {c(acc+8)}")
        gap_of[(t, s)] = len(mains)
        for m in ms: mains.append(lambda m=m: k.e(m))
        last = len(mains) - 1
        fl_ = fixed.setdefault(last, [])
        if i + 1 < len(steps): fl_.append((0, lambda i=i: k.wait(lg=[("xf", i + 1)])))
        j = i + 4
        if j < len(steps):
            tj, sj = steps[j]
            if sj == 0:
                def bar(tj=tj):
                    k.wait(vm=[("x", tj)], lg=[("saw", n) for n in need_sa[tj]]); k.e("s_barrier"); k.mark(("bar", tj))
                fixed.setdefault(gap_of[(t, s)], []).append((1, bar))
            fixed[last].append((1, lambda j=j: xread(j)))
    fx = Flex(); fz = Flex(); fz2 = Flex(); fy = Flex(); fm = Flex()
    k.e(f"s_and_b32 s32, s{sW}, 1", "s_lshl_b32 s32, s32, 7", f"v_add_u32 v7, s32, v{R.SA}")
    o_bases(k, 1)
    stats_path(k, fy, A_ST, "st0", 7, 48)
    g1 = P.a1_late_gap
    fm.add(lambda: (k.wait(vm=[("xst", 1)]), k.flag(2)), 3, P.a1_flag_gap)
    fm.add(lambda: (k.poll_issue(A_PX, "px2"), setattr(k, "bg_held", not P.a1_bg_early)), 1, g1 - P.a1_poll_lead)
    fm.add(lambda: k.poll_check(A_PX, "px2", 2), 2, g1)
    fm.add(lambda: k.vm(f"buffer_load_dwordx4 {vr(56,4)}, v{A_U}, {SRD_WS}, s90 offen sc1", "st1"))
    for t in order[2:4]:
        for f in a11_x(k, t): fm.add(f, 2); fm.skip(P.a1_xgap)
    for f in wo_lanes(k): fy.add(f)
    fy.add(lambda: k.mark("wolanes"), 0)
    fm.dep("wolanes")
    fm.add(lambda: k.e(f"s_add_u32 s58, s64, {WS_X[1]}"))
    for p in range(2): fm.add(lambda p=p: k.vm(f"buffer_load_dwordx4 {vr(RES+4*p,4)}, v{W_UA}, {SRD_WS}, s58 offen offset:{p*512} sc1", "res")); fm.skip(P.a1_xgap)
    def halo_poll():
        k.poll_addr(A_PX, 16, 7)
        k.e(f"s_mov_b32 s{sPO}, s52", f"s_min_u32 s50, s{sB}, 1")
        k.poll_issue(A_PX, "phx"); k.bg_held = False
    fm.add(halo_poll, 3)
    if P.touch1 in (1, 2):
        fm.add(lambda: k.touch(60, "p", ["s_mov_b32 s32, s53"]), 6)
        fm.add(lambda: k.touch(62, "q", [f"s_add_u32 s32, s64, {BX1[1]}"]), 6)
        fm.add(lambda: k.touch(64, "t", [f"s_add_u32 s32, s65, {BS1[1]}"]), 4)
        if P.touch1 > 1: fm.add(lambda: k.touch(66, "h", h_base("s32", 1)), 6)
    for f in blanks(k, 1): fm.skip(P.a1_xgap); fm.add(f, 3)
    stats_path(k, fy, 56, "st1", 7, 16, g1 + 26)
    fm.dep(("bar", order[2]))
    fm.add(lambda: k.poll_check(A_PX, "phx", "s50"), 2)
    fm.add(lambda: k.vm(f"buffer_load_dwordx4 {vr(A_ST,4)}, v{A_U+1}, {SRD_WS}, s51 offen sc1", "sth"))
    for f in a11_x(k, "h"): fm.add(f, 2); fm.skip(P.a1_xgap)
    stats_path(k, fy, A_ST, "sth", R.SA, 0, gap_of[(order[3], P.a1_sth)])
    k.per = dict(P.per_a1); k.bg_held = True
    b5 = batch(k, 5)
    mix = [(f, "s2", ("gw", 4), None) for f in batch(k, 4)] + [(f, "s2", ("gw", 5), None) for f in b5[:3]]
    ww = [(f, "s4", "wow", None) for f in wow(k)]
    while mix or ww:
        k.bg += ww[:2]; ww = ww[2:]
        if mix: k.bg.append(mix.pop(0))
    bg_batches(k, [0], "s2", lambda b: ("bar", order[3]))
    bg_batches(k, [1], "s2", lambda b: ("bar", "h"))
    bg_batches(k, [2, 3], "s2", lambda b: "wobar")
    bg_list(k, b5[3:], "s2", ("gw", 5), "wobar")
    if P.dn1_agpr:
        for j, f in enumerate(regloads(k, sDS, 16*1024, lambda j: ar(4*j, 4), 40, "dnr", tagf=lambda j: ("dnr", 8 + j // 2))): k.bg_add(f, "s4", ("dnr", 8 + j // 2), "gemm_done")
    bg_batches(k, [6, 7, 8, 9], "s2", lambda b: "gubar")
    A = lambda t: (accof(t) if t != "h" else None, accof(t) + 4, accof(t) + 8)
    for n in range(4): fix(k, R, fx, order[n], A(order[n]), gap_of[(order[n + 1], 1 if n < 3 else 2)], False)
    attn(k, R, fz, 3, R.ATT[0]); attn(k, R, fz2, 2, R.ATT[1]); ostore(k, fz2, 1)
    attn(k, R, fz, 1, R.ATT[0])
    fx.dep(("saw", "sth"))
    for f in fix_reads(k, R, "h", A_STA): fx.add(f)
    fx.dep("gemm_done")
    fix(k, R, fx, "h", A("h"), 0, False, pre=True); attn(k, R, fz2, 0, R.ATT[1]); ostore(k, fz2, 0)
    f3 = Flex(); f3.dep(("ost", 1)); f3.skip(P.l1_flag_delay)
    f3.add(lambda: (k.wait(vm=[("ost", 1)]), k.flag(1, 89), k.mark("oflag1")), 3)
    f3.dep(("attn", 0)); f3.add(lambda: wo_prepoll(k, 1))
    k.wait(vm=[("x", order[0])]); k.e("s_barrier")
    for i in range(4): xread(i)
    k.wait(lg=[("xf", 0)])
    k.stamp("a1 first")
    if k.stamping:
        for t in order[1:]: fixed.setdefault(gap_of[(t, 0)], []).append((0, lambda t=t: k.stamp(f"a1 t{t}")))
        for g in range(6, 224, 12): fixed.setdefault(g, []).append((0, lambda g=g: k.stamp(f"fina {g}")))
    run_gaps(k, mains, fixed, [fm, f3, fy, fx, fz2, fz], 2, over=lambda i: i >= P.a1_over)
    print("a11 left:", len(fm), len(fy), len(fx), len(fz), len(fz2), len(k.bg), {n: g for n, g in k.marks.items() if isinstance(n, tuple) and n[0] in ("fix", "attn", "saw", "ost")})
    k.mark("gemm_done"); k.bg_held = P.a1_tailhold
    k.stamp("a1 gemm")
    drain([fm, fy, fx, fz, fz2, f3], k)
    for n in range(2): assert k.marks[("fix", order[n])] < gap_of[(order[n + 3], 0)], "accumulator reused too early"
    k.stamp("a1 end")
P.a1_flag_gap, P.a1_late_gap, P.a1_poll_lead, P.l1_flag_delay, P.a1_over = 8, 36, 18, 14, 48
P.a1_bg_early = False; P.a1_salead = 8; P.a1_tailhold = True; P.touch1 = 1; P.a1_xgap = 3; P.a1_sth = 4
P.per_a1 = {"s2": 95, "s4": 60}

R_W0, R_W1, R_RD, R_ST, R_OUT = 3, 4, 5, 6, 7
def red_setup(k, posA, dAB):
    x, y, z, u = 28, 29, 30, 31
    k.e(f"s_add_u32 s32, s{sGL}, {posA*16384}", f"v_add_u32 v{R_W0}, s32, v{vL16}", f"v_xor_b32 v{R_W1}, 128, v{R_W0}")
    k.e(f"v_and_b32 v{x}, 7, v1", f"v_lshrrev_b32 v{y}, 3, v1", f"s_lshl_b32 s32, s{sW}, 7", f"v_lshl_add_u32 v{z}, v{x}, 4, s32",
        f"v_bfe_u32 v{u}, v1, 4, 1", f"v_lshlrev_b32 v{R_RD}, 7, v{u}", f"v_xor_b32 v{z}, v{z}, v{R_RD}",
        f"v_bfe_u32 v{R_RD}, v1, 3, 2", f"v_lshl_add_u32 v{z}, v{R_RD}, 10, v{z}", f"v_lshrrev_b32 v{R_RD}, 5, v1",
        f"v_mul_u32_u24 v{R_RD}, {dAB*16384}, v{R_RD}", f"v_add_u32 v{z}, v{z}, v{R_RD}", f"v_add_u32 v{R_RD}, {posA*16384}, v{z}")
    k.e(f"v_lshlrev_b32 v{z}, 4, v{x}", f"v_lshl_add_u32 v{z}, v{u}, 2, v{z}", f"v_and_b32 v{u}, 0x28, v1",
        f"v_cmp_eq_u32 vcc, 0, v{u}", f"v_mov_b32 v{u}, {OOB:#x}", f"v_cndmask_b32 v{R_ST}, v{u}, v{z}, vcc")
    k.e(f"v_lshlrev_b32 v{z}, 10, v{x}", f"v_lshl_add_u32 v{R_OUT}, v{y}, 4, v{z}")

def red_bases(k):
    k.e(f"s_lshl_b32 s32, s{sB}, 3", f"s_add_u32 s32, s32, s{sW}", "s_lshl_b32 s55, s32, 13", f"s_lshl_b32 s33, s{sCS}, 10", "s_add_u32 s55, s55, s33")
    k.e("s_lshl_b32 s57, s32, 13", f"s_lshl_b32 s33, s{sCS}, 7", "s_add_u32 s57, s57, s33")
    k.e(f"s_lshl_b32 s56, s{sB}, 12", f"s_lshr_b32 s33, s{sCS}, 1", "s_lshl_b32 s33, s33, 9", "s_add_u32 s56, s56, s33",
        f"s_and_b32 s33, s{sCS}, 1", "s_lshl_b32 s33, s33, 3", "s_add_u32 s56, s56, s33", f"s_lshl_b32 s33, s{sW}, 7", "s_add_u32 s56, s56, s33")

def red_writes(k, acc, g, off, dAB):
    return [lambda q=q: k.ds(f"ds_write_b128 v{R_W1 if (q>>1)&1 else R_W0}, {vr(acc+4*q,4)} offset:{off + (q>>2)*dAB*16384 + (q&3)*1024}", ("rw", g)) for q in range(8)]
def red_reads(k, g, T, off):
    return [lambda w=w, hf=hf: k.ds(f"ds_read_b128 {vr(T+8*w+4*hf,4)}, v{R_RD} offset:{off + w*4096 + hf*512}", ("rr", g, w)) for w in range(4) for hf in range(2)]

def red_finish(k, fx, g, mm, T, xdst, stdst, final, pk):
    a = lambda txt, c=1: fx.add(lambda: k.e(txt), c)
    R = RES + 4 * mm
    def add8(d, s):
        if pk:
            for i in range(0, 8, 2): a(f"v_pk_add_f32 {vr(d+i,2)}, {vr(d+i,2)}, {vr(s+i,2)}")
        else:
            for i in range(8): a(f"v_add_f32 v{d+i}, v{d+i}, v{s+i}")
    fx.add(lambda: k.wait(lg=[("rr", g, 1)]))
    add8(T, T + 8)
    for i in range(4): a(f"v_lshlrev_b32 v{T+8+2*i}, 16, v{R+i}"); a(f"v_and_b32 v{T+9+2*i}, 0xffff0000, v{R+i}")
    add8(T, T + 8)
    fx.add(lambda: k.wait(lg=[("rr", g, 3)]))
    add8(T + 16, T + 24); add8(T, T + 16)
    for i in range(4): a(f"v_cvt_pk_bf16_f32 v{R+i}, v{T+2*i}, v{T+2*i+1}")
    if final:
        fx.add(lambda: (k.e(f"s_add_u32 s32, s57, {mm*32768}"), k.vm(f"buffer_store_dwordx4 {vr(R,4)}, v{R_OUT}, {SRD_OUT}, s32 offen {P.outm}", ("xst", g))))
        return
    fx.add(lambda: (k.e(f"s_add_u32 s32, s55, {xdst + mm*32768}"), k.dstore(f"buffer_store_dwordx4 {vr(R,4)}, v{vL16}, {SRD_WS}, s32 offen", ("xst", g))), 2)
    s, q = T + 32, T + 33
    a(f"v_add_f32 v{s}, v{T}, v{T+1}"); a(f"v_mul_f32 v{q}, v{T}, v{T}"); a(f"v_fmac_f32 v{q}, v{T+1}, v{T+1}")
    for i in range(2, 8): a(f"v_add_f32 v{s}, v{s}, v{T+i}"); a(f"v_fmac_f32 v{q}, v{T+i}, v{T+i}")
    fx.skip(1)
    a(f"v_add_f32_dpp v{s}, v{s}, v{s} row_ror:8 row_mask:0xf bank_mask:0xf"); a(f"v_add_f32_dpp v{q}, v{q}, v{q} row_ror:8 row_mask:0xf bank_mask:0xf")
    fx.skip(1)
    a(f"v_permlane16_swap_b32 v{s}, v{q}", 2); a(f"v_add_f32 v{s}, v{s}, v{q}"); a(f"v_mov_b32 v{q}, v{s}"); fx.skip(1)
    a(f"v_permlane32_swap_b32 v{s}, v{q}", 2); a(f"v_add_f32 v{s}, v{s}, v{q}")
    fx.add(lambda: (k.e(f"s_add_u32 s32, s56, {stdst + mm*2048}"), k.dstore(f"buffer_store_dword v{s}, v{R_ST}, {SRD_WS}, s32 offen", ("xst", g)), k.mark(("xst", g))), 2)

def merge(k, fx, extra, first=0):
    extra = list(extra)
    items = [it for it in fx.items if it[0] != "skip"]; fx.items = []
    per = max(1, (len(items) - first) // max(1, len(extra)))
    for n, it in enumerate(items):
        if n >= first and (n - first) % per == 0 and extra: extra.pop(0)()
        it[1](); k.bg_step()
    for f in extra: f(); k.bg_step()

def wo(k, layer):
    BF, WQ, ACC, T, PA, NQ = 32, 160, 192, 208, A_PA, 8
    state = {}
    def bload(sx):
        k.set_s(f"s_add_u32 s58, s59, {(sx & ~1)*2048}")
        k.vm(f"buffer_load_dwordx4 {vr(BF+4*sx,4)}, v{W_OA}, {SRD_WS}, s58 offen offset:{(sx%2)*2048} sc1", ("b", sx))
    def wread(n): k.ds(f"ds_read_b128 {vr(WQ+4*(n%NQ),4)}, v{W_RB} offset:{n*1024}", ("wq", n))
    k.wait(vm=["wow"]); k.e("s_barrier"); k.mark("wobar")
    for n in range(NQ): wread(n)
    btxt = lambda sx: [f"s_add_u32 s99, s59, {sx*2048}", f"buffer_load_dwordx4 {vr(BF+4*sx,4)}, v{W_OA}, {SRD_WS}, s99 offen sc1"]
    bchk = lambda sx: k.valid([f"v_cmp_eq_u32 vcc, -1, v{BF+4*sx}"], btxt(sx))
    ptxt = f"buffer_load_dword v{T+20}, v{T+21}, {SRD_WS}, s59 offen sc1"
    if P.tags:
        k.e(f"v_lshlrev_b32 v{T+21}, 8, v{PA}")
        k.e(f"v_or_b32 v{T+21}, v{T+21}, v{PA}", f"v_and_b32 v{T+21}, 0x80007c00, v{T+21}")
        k.poll_check(PA, "po1", 1)
        k.vm(ptxt, "probe")
        for sx in range(P.wo_spec): bload(sx)
        k.e(f"s_lshl_b32 s32, s{sC}, 1", f"s_and_b32 s33, s{sW}, 1", "s_add_u32 s32, s32, s33", "s_lshl_b32 s32, s32, 7", f"s_add_u32 s{sPO}, s32, {fl(layer, FL_O)}")
    else:
        k.e(f"s_add_u32 s{sFO}, s66, {fl(layer, FL_X1)}")
        k.e(f"s_cmp_lt_u32 s{sW}, 2", f"s_cbranch_scc1 L_wo_late{layer}")
        q0 = list(k.vmq)
        k.poll_check(PA, "po1", 1)
        for sx in range(P.wo_lead): bload(sx)
        if P.wo_setup_first: gu_setup(k, layer)
        k.wait(vm=[("ost", 0)]); k.flag(2, 89)
        k.e(f"s_branch L_wo_join{layer}")
        k.label(f"L_wo_late{layer}")
        k.vmq = list(q0)
        k.wait(vm=[("ost", 0)]); k.flag(2, 89)
        if P.wo_setup_first: gu_setup(k, layer)
        k.poll_issue(PA, "po2"); k.poll_check(PA, "po2", 2)
        for sx in range(P.wo_lead): bload(sx)
        k.label(f"L_wo_join{layer}")
    if P.tags or not P.wo_setup_first: gu_setup(k, layer)
    k.stamp("wo issued")
    mains = []; fixed = {}
    for n in range(64):
        sx, j = divmod(n, 4)
        mains.append(lambda n=n, sx=sx, j=j: k.e(f"{MF16} {vr(ACC+4*j,4)}, {vr(WQ+4*(n%NQ),4)}, {vr(BF+4*sx,4)}, {'0' if sx == 0 else vr(ACC+4*j,4)}"))
        fl_ = fixed.setdefault(n, [])
        if n < 63: fl_.append((0, lambda n=n: k.wait(vm=[("b", (n + 1) // 4)] if (n + 1) % 4 == 0 else None, lg=[("wq", n + 1)])))
        if P.tags and n < 63 and (n + 1) % 4 == 0: fl_.append((1, lambda n=n: bchk((n + 1) // 4)))
        if P.tags and n == 42: fl_.append((1, lambda: k.poll_issue(PA, "px1")))
        if n + NQ < 64: fl_.append((1, lambda n=n: wread(n + NQ)))
        if n % P.wo_bstep == 0 and P.wo_lead + n // P.wo_bstep < 16: fl_.append((1, lambda n=n: bload(P.wo_lead + n // P.wo_bstep)))
    fx = Flex()
    a = lambda txt, c=1, at=0: fx.add(lambda: k.e(txt), c, at)
    fx.add(lambda: k.wait(vm=["res"]), 1, 8)
    for i in range(8): a(f"v_lshlrev_b32 v{T+2*i}, 16, v{RES+i}"); a(f"v_and_b32 v{T+2*i+1}, 0xffff0000, v{RES+i}")
    k.per = dict(P.per_wo[layer]); k.bg_held = False; k.bg_next = k.t + P.wo_bg_delay
    if P.tags:
        k.wait(vm=["probe"])
        k.valid([f"v_cmp_eq_u32 vcc, -1, v{T+20}"], [ptxt] + sum([btxt(x) for x in range(P.wo_spec)], []))
        state["fresh"] = True
        for sx in range(P.wo_spec, P.wo_lead): bload(sx)
    k.wait(vm=[("b", 0)], lg=[("wq", 0)])
    if P.tags: bchk(0)
    k.stamp("wo first")
    fixed[P.wo_bg_stop].append((0, lambda: setattr(k, "bg_held", True)))
    run_gaps(k, mains, fixed, [fx], 2)
    drain([fx], k)
    k.stamp("wo gemm")
    for i in range(0, 16, 2): k.e(f"v_pk_add_f32 {vr(T+i,2)}, {vr(T+i,2)}, {vr(ACC+i,2)}")
    k.e(f"s_add_u32 s58, s64, {BX1[layer]}")
    for p in range(2):
        for i in range(4): k.e(f"v_cvt_pk_bf16_f32 v{RES+4*p+i}, v{T+8*p+2*i}, v{T+8*p+2*i+1}")
        k.dstore(f"buffer_store_dwordx4 {vr(RES+4*p,4)}, v{W_UA}, {SRD_WS}, s58 offen offset:{p*512}", "xst")
    S, Q = T + 16, T + 18
    k.e(f"v_pk_add_f32 {vr(S,2)}, {vr(T,2)}, {vr(T+2,2)}", f"v_pk_mul_f32 {vr(Q,2)}, {vr(T,2)}, {vr(T,2)}", f"v_pk_fma_f32 {vr(Q,2)}, {vr(T+2,2)}, {vr(T+2,2)}, {vr(Q,2)}")
    for i in range(4, 16, 2): k.e(f"v_pk_add_f32 {vr(S,2)}, {vr(S,2)}, {vr(T+i,2)}", f"v_pk_fma_f32 {vr(Q,2)}, {vr(T+i,2)}, {vr(T+i,2)}, {vr(Q,2)}")
    k.e(f"v_add_f32 v{S}, v{S}, v{S+1}", f"v_add_f32 v{Q}, v{Q}, v{Q+1}", f"s_add_u32 s58, s65, {BS1[layer]}",
        f"v_permlane16_swap_b32 v{S}, v{Q}", f"v_add_f32 v{S}, v{S}, v{Q}", f"v_mov_b32 v{Q}, v{S}", f"v_permlane32_swap_b32 v{S}, v{Q}", f"v_add_f32 v{S}, v{S}, v{Q}")
    k.dstore(f"buffer_store_dword v{S}, v{W_SA}, {SRD_WS}, s58 offen", "xst")
    key = lambda it: it[2][1] if (isinstance(it[2], tuple) and it[2][0] == "gw") else 11.5
    k.bg.sort(key=key)
    print(f"wo{layer} done, background left:", [it[2] for it in k.bg][::4])
    k.bg_burst(P.wo_win[layer])
    k.stamp("wo end")
P.wo_bg_delay = 200; P.wo_bg_stop = 56; P.wo_lead = 6; P.wo_spec = 3; P.gu_spec = 3; P.wo_bstep = 2
P.wo_poll_gap = 1; P.wo_late_gap = 7; P.wo_hold = True; P.wo_win = [4, 4]; P.wo_var = 'B'; P.wo_prew = 2
P.per_wo = [{"s2": 35, "s4": 35}] * 2

G_RB, G_C1, G_VV, G_AUG, G_X, G_ACC, G_WF, G_T = 3, 6, 7, 28, 32, 160, 224, 240
D_WV, D_BF, D_ACC, D_T, D_WF, D_RB, D_PA = 32, 64, 128, 192, 228, 112, 115
DN_SEQ = [(g, e) for g in range(2) for e in range(28)]
DN_GROUPS = [1, 0]
def h_loader(k, layer):
    def bload(i):
        if i == 0:
            k.e(f"s_mul_i32 s32, s{sB}, {224*KB}", f"s_mul_i32 s33, s{sW}, {28*KB}", "s_add_u32 s32, s32, s33", f"s_add_u32 s59, s32, {BH[layer]}")
            for p in range(4):
                k.e(f"s_add_u32 s32, s{sCS}, {p}", f"s_and_b32 s32, s32, {3 if P.hrot else 0}", f"s_mul_i32 s32, s32, {7*KB}", f"s_add_u32 s{34+p}, s59, s32")
                if not P.hrot: k.e(f"s_add_u32 s{34+p}, s{34+p}, {7*KB*p}")
        g, e = DN_SEQ[i]; p, tl = divmod(KK_OF[e], 7)
        k.set_s(f"s_add_u32 s58, s{34+p}, {DN_GROUPS[g] * 112 * KB + (tl & 4) * 1024}")
        k.vm(f"buffer_load_dwordx4 {vr(D_BF+4*(i%P.dn_lead),4)}, v{vL16}, {SRD_WS}, s58 offen offset:{(tl & 3)*1024} sc1", ("b", i))
    return bload

def gu_setup(k, layer):
    T = G_T; XA = T + 3
    k.e(*gu_tile("s50"))
    k.e(f"v_and_b32 v{T}, 31, v1")
    k.e(f"v_mov_b32 v{G_RB}, v{vL16}", f"v_add_u32 v{G_RB+1}, 0x10000, v{vL16}", f"v_add_u32 v{G_RB+2}, 0x20000, v{vL16}")
    k.e(f"v_lshrrev_b32 v{T+1}, 5, v1", f"v_lshlrev_b32 v{G_AUG+3}, 4, v{T}", f"v_lshl_add_u32 v{G_AUG+3}, v{T+1}, 10, v{G_AUG+3}")
    k.e(f"v_lshrrev_b32 v{XA}, 3, v{T}", f"v_lshlrev_b32 v{XA}, 13, v{XA}", f"v_lshl_add_u32 v{XA}, v{T+1}, 7, v{XA}",
        f"v_and_b32 v{T}, 7, v1", f"v_lshl_add_u32 v{XA}, v{T}, 4, v{XA}")
    k.e("s_lshl_b32 s32, s50, 11", f"s_add_u32 s51, s32, {BS1[layer]}")
    k.e("s_lshl_b32 s32, s50, 15", f"s_add_u32 s52, s32, {BX1[layer]}", "s_add_u32 s53, s52, 4096")
    k.e(*h_base("s54", layer))
    k.e("s_lshr_b32 s32, s50, 1", "s_lshl_b32 s32, s32, 4", f"s_add_u32 s32, s32, s{sM}",
        "s_lshl_b32 s32, s32, 1", "s_and_b32 s33, s50, 1", "s_add_u32 s32, s32, s33", "s_lshl_b32 s32, s32, 2", f"s_add_u32 s81, s32, {fl(layer, FL_H)}")

def gu(k, layer):
    T = G_T; XA = T + 3; PA = T + 2
    if P.tags: k.poll_check(A_PA, "px1", 1)
    else:
        def pa():
            k.poll_addr(PA, 16)
            k.e("s_lshl_b32 s32, s50, 6", f"s_add_u32 s{sPO}, s32, {fl(layer, FL_X1)}")
        if not P.gu_pa_late: pa()
        k.wait(vm=["xst"]); k.flag(1)
        if P.gu_pa_late: pa()
        k.stamp("x1 flag")
        if not P.gu_bar_first: k.poll_issue(PA, "px1")
    k.e(f"s_mov_b32 s{sFO}, s81")
    seq = [(t, ks) for ks in range(33) for t in range(3)] + [(t, ks) for t in range(3, 7) for ks in range(33)]
    accof = {0: 0, 1: 1, 2: 2, 3: 3, 4: 0, 5: 1, 6: 2}
    NW = P.gu_nw
    WQ = [G_WF, G_WF + 4, G_WF + 8, G_WF + 12, T + 12]
    def wread(n):
        slot = (n % 160) * 1024
        k.ds(f"ds_read_b128 {vr(WQ[n%NW],4)}, v{G_RB + (slot>>16)} offset:{slot & 0xffff}", ("wf", n))
    BARS = P.gu_bars[layer]
    cover = lambda bi: [("gw", b) for b in range(bi, min([x for x in BARS if x > bi] + [15]))]
    def ringbar():
        k.wait(vm=cover(0)); k.e("s_barrier"); k.mark("gubar")
        for n in range(NW): wread(n)
    if P.gu_bar_first: ringbar(); k.poll_issue(PA, "px1")
    if not P.tags: k.poll_check(PA, "px1", 1)
    k.stamp("gu go")
    xtxt = lambda kg: f"buffer_load_dwordx4 {vr(G_X+4*kg,4)}, v{XA}, {SRD_WS}, s{52 + (kg>>4)} offen offset:{((kg>>2)&3)*1024 + (kg&3)*256} sc1"
    def xload(kg): k.vm(xtxt(kg), ("gx", kg))
    xchk = lambda kg: k.valid([f"v_cmp_eq_u32 vcc, -1, v{G_X+4*kg}"], [xtxt(kg)])
    stxt = [f"buffer_load_dwordx4 {vr(T+4+4*h,4)}, v{G_AUG+3}, {SRD_WS}, s51 offen offset:{512*h} sc1" for h in range(2)]
    if P.tags:
        for t_ in stxt: k.vm(t_, "gst")
        for kg in range(P.gu_spec): xload(kg)
        k.wait(vm=["gst"])
        k.valid([f"v_max3_u32 v{T}, v{T+4}, v{T+6}, v{T+8}", f"v_max_u32 v{T}, v{T}, v{T+10}", f"v_cmp_eq_u32 vcc, -1, v{T}"],
                stxt + [xtxt(x) for x in range(P.gu_spec)])
        k.stamp("gu probe")
        for kg in range(P.gu_spec, P.gu_lead): xload(kg)
    else:
        for kg in range(P.gu_lead): xload(kg)
        for t_ in stxt: k.vm(t_, "gst")
    if not P.gu_bar_first: ringbar()
    mains = []; fixed = {}
    xpos = {}
    for kg in range(P.gu_lead, 32): xpos.setdefault(int((kg - P.gu_lead) * P.gu_xstep), []).append(kg)
    for n, (t, ks) in enumerate(seq):
        acc = G_ACC + 16 * accof[t]
        b = vr(G_AUG, 4) if ks == 32 else vr(G_X + 4*ks, 4)
        c = "0" if ks == 0 else vr(acc, 16)
        mains.append(lambda n=n, acc=acc, b=b, c=c: k.e(f"{MF32} {vr(acc,16)}, {vr(WQ[n%NW],4)}, {b}, {c}"))
        fl_ = fixed.setdefault(n, [])
        if n + 1 < len(seq):
            t2, ks2 = seq[n + 1]
            need = [("gx", ks2)] if (t2 == 0 and ks2 < 32) else None
            fl_.append((0, lambda n=n, need=need: k.wait(vm=need, lg=[("wf", n + 1)])))
            if need and P.tags: fl_.append((2, lambda ks2=ks2: xchk(ks2)))
        j = n + NW
        if j < len(seq):
            if j % 16 == 0 and j // 16 in BARS:
                fl_.append((2, lambda bi=j//16: (k.wait(vm=cover(bi)), k.e("s_barrier"), [k.mark(("gbar", b)) for b in range(bi + 1)])))
            fl_.append((1, lambda j=j: wread(j)))
        for kg in xpos.get(n, []): fl_.append((1, lambda kg=kg: xload(kg)))
    xend = max(xpos)
    tail = [it for it in k.bg if it[2] == "dna" or it[2][0] == "dnr"]; k.bg = [it for it in k.bg if not (it[2] == "dna" or it[2][0] == "dnr")]
    bg_batches(k, [10, 11], "s2", lambda b: ("gbar", b - 8))
    mid = []
    for b in (12, 13, 14):
        for f in batch(k, b): mid.append((f, "s2", ("gw", b), ("gbar", b - 8)))
    while mid or tail:
        if mid: k.bg.append(mid.pop(0))
        if tail: k.bg.append(tail.pop(0))
    direct = layer == 1 and P.dn1_agpr
    if not direct: bg_batches(k, range(15, 23), "s4", lambda b: ("gbar", b - 8))
    k.per = dict(P.per_guA[layer]); k.bg_held = False; k.bg_next = k.t + P.gu_bg_delay
    fixed[xend].append((0, lambda: setattr(k, "per", dict(P.per_guB[layer]))))
    fv = Flex()
    dv = regloads(k, sDS, 48*1024, lambda j: vr(D_WV + 4*j, 4), 8, "dnv")
    k.hload = h_loader(k, layer)
    if direct: pass
    elif P.hpre:
        bg_list(k, dv, "s4", "dnv", "xdead")
        fixed[207].append((0, lambda: k.mark("xdead")))
    else:
        for j, f in enumerate(dv): fv.add(f, 1, 198 + 2 + 3*j)
    fx = Flex()
    a = lambda txt, c=1, at=0: fx.add(lambda: k.e(txt), c, at)
    fx.add(lambda: k.wait(vm=["gst"]), 1, 3 * P.gu_lead)
    a(f"v_add_f32 v{T+4}, v{T+4}, v{T+6}"); a(f"v_add_f32 v{T+5}, v{T+5}, v{T+7}"); a(f"v_add_f32 v{T+8}, v{T+8}, v{T+10}"); a(f"v_add_f32 v{T+9}, v{T+9}, v{T+11}")
    a(f"v_add_f32 v{T+4}, v{T+4}, v{T+8}"); a(f"v_add_f32 v{T+5}, v{T+5}, v{T+9}"); fx.skip(1)
    a(f"v_permlane32_swap_b32 v{T+4}, v{T+5}", 2); a(f"v_add_f32 v{T+4}, v{T+4}, v{T+5}"); a(f"v_mov_b32 v{T+5}, v{T+4}"); fx.skip(1)
    a(f"v_permlane32_swap_b32 v{T+4}, v{T+5}", 2)
    ln_finish(a, T + 4, T + 5)
    a(f"v_mov_b32 v{G_VV}, v{T+5}")
    a(f"v_rsq_f32 v{G_C1}, v{T+5}", 2); a(f"v_cvt_pk_bf16_f32 v{G_AUG}, v{T+4}, v{T+4}"); a(f"v_mul_f32 v{G_C1}, {f2u(-LOG2E):#x}, v{G_C1}")
    a(f"v_and_b32 v{T+5}, 0xffff0000, v{G_AUG}"); a(f"v_sub_f32 v{T+5}, v{T+4}, v{T+5}"); a(f"v_mov_b32 v{G_AUG+2}, 0")
    a(f"v_cvt_pk_bf16_f32 v{G_AUG+1}, v{T+5}, v{G_AUG+2}"); a(f"v_mov_b32 v{G_AUG+3}, 0")
    fx.add(lambda: k.mark("aug"), 0)
    def epi(t, at):
        acc = G_ACC + 16 * accof[t]; hp = T + 8; E = T + 4
        if P.x_noepi: a("s_nop 0", 1, at)
        for i0 in range(0, 8 if not P.x_noepi else 0, 2):
            for i in (i0, i0 + 1): a(f"v_mul_f32 v{E+(i&1)}, v{G_C1}, v{acc+i}", 1, at)
            for i in (i0, i0 + 1): a(f"v_exp_f32 v{E+(i&1)}, v{E+(i&1)}", 2)
            for i in (i0, i0 + 1): a(f"v_mul_f32 v{E+2+(i&1)}, v{acc+i}, v{acc+8+i}")
            for i in (i0, i0 + 1): a(f"v_fma_f32 v{E+(i&1)}, v{E+(i&1)}, v{G_VV}, v{G_VV}")
            for i in (i0, i0 + 1): a(f"v_rcp_f32 v{E+(i&1)}, v{E+(i&1)}", 2)
            fx.skip(1)
            for i in (i0, i0 + 1): a(f"v_mul_f32 v{E+2+(i&1)}, v{E+2+(i&1)}, v{E+(i&1)}")
            a(f"v_cvt_pk_bf16_f32 v{hp+i0//2}, v{E+2}, v{E+3}")
        fx.add(lambda: k.mark(("epi", t)), 0)
        if t == 4: a("s_add_u32 s54, s54, 4096")
        fx.add(lambda: ((k.dstore if ((layer and P.h1_plain) or (not layer and P.h_touch0)) else lambda x, tg: k.vm(x + " sc1", tg))(f"buffer_store_dwordx4 {vr(hp,4)}, v{vL16}, {SRD_WS}, s54 offen offset:{(t%4)*1024}", ("hst", t)), k.mark(("hst", t))), 2)
    end = {t: max(n for n, x in enumerate(seq) if x[0] == t) for t in range(7)}
    for t in range(6): epi(t, end[t] + 3)
    if layer == 0 and P.h_touch0 == "g": fixed[xend + 1].append((5, lambda: k.touch(T, "h", ["s_mov_b32 s32, s54"])))
    ff = Flex(); ff.dep(("hst", 3))
    if layer == 0:
        tx = [lambda: k.touch(T, "p", [f"s_add_u32 s32, s55, {WS_X[1]}"]), lambda: k.touch(T + 1, "s", [f"s_add_u32 s32, s56, {WS_ST[1]}"])]
        if P.x2_touch == "h3": ff.add(tx[0], 6); ff.add(tx[1], 4)
        elif isinstance(P.x2_touch, int): fixed[P.x2_touch].append((5, tx[0])); fixed[P.x2_touch + 1].append((4, tx[1]))
        if "g" in str(P.touch1):
            for f in touch_next(k, T + 2)[:2]: ff.skip(1); ff.add(f, 6)
    ff.skip(P.gu_flag_delay)
    ff.add(lambda: (k.wait(vm=[("hst", 3)]), k.flag(1)), 3)
    def hpoll():
        k.wait(vm=["touch"] if "touch" in k.seen else None)
        k.poll_addr(T, 8)
        k.e(f"s_lshl_b32 s32, s{sB}, 7", f"s_lshl_b32 s33, s{sW}, 5", "s_add_u32 s32, s32, s33", f"s_add_u32 s{sPO}, s32, {fl(layer, FL_H)}")
        k.poll_issue(T, "ph1")
    if P.hpre:
        ff.add(hpoll, 4, P.hp_chk - 12)
        ff.add(lambda: (k.poll_check(T, "ph1", 1), setattr(k, "bg_held", True)), 3, P.hp_chk)
        for j in range(P.hpre): ff.add(lambda j=j: k.hload(j), 2, max(208 + j, int(P.hp_chk + 1 + j * P.hp_step)))
    else: ff.add(hpoll, 4, 228)
    k.wait(vm=[("gx", 0)], lg=[("wf", 0)])
    if P.tags: xchk(0)
    k.stamp("gu first")
    if k.stamping:
        for g in (48, 98, 131, 164, 197): fixed[g].append((0, lambda g=g: k.stamp(f"gu m{g}")))
    fixed[93].append((0, lambda: k.marks["aug"]))
    run_gaps(k, mains, fixed, [fv, ff, fx], P.gu_cap)
    print("gu left:", len(k.bg), len(fv), len(ff), len(fx), {n: g for n, g in k.marks.items() if isinstance(n, tuple) and n[0] == "hst"})
    k.stamp("gu gemm")
    for g, t in {132: 0, 165: 1, 198: 2}.items(): assert k.marks[("epi", t)] < g, "accumulator reused too early"
    epi(6, 0); drain([ff, fv, fx], k)
    k.e(f"v_mov_b32 v{D_PA}, v{T}")
    k.stamp("gu end")
P.x2_touch = 'h3'; P.dn_x2 = 2; P.hrot = 0; P.gu_bars = [list(range(15)), [0, 3, 6, 9, 12]]; P.hpre = 0; P.hp_chk = 208; P.hp_step = 2.2; P.gu_flag_delay = 10; P.gu_xstep = 2.6; P.gu_bg_delay = 300
P.per_guA = [{"s2": 120, "s4": 120}, {"s2": 160, "s4": 160}]
P.per_guB = [{"s2": 90, "s4": 55}, {"s2": 80, "s4": 50}]

def dn(k, layer):
    final = layer == 1
    NB = P.dn_lead; T = D_T
    groups = DN_GROUPS; seq = DN_SEQ; bload = k.hload
    early = Flex()
    def rb(): k.e(f"v_add_u32 v{D_RB}, s{sGL}, v{vL16}", f"v_add_u32 v{D_RB+1}, 0x10000, v{D_RB}", f"v_add_u32 v{D_RB+2}, 0x20000, v{D_RB}")
    if P.hpre:
        for i in range(P.hpre, NB): bload(i)
        rb()
        class Rec:
            def e(self, *t):
                if any("vcc" in x or "s32" in x for x in t): early.add(lambda: k.e(*t), len(t))
                else:
                    for x in t: early.add(lambda x=x: k.e(x))
        red_setup(Rec(), 3, 1)
        early.add(lambda: (k.wait(vm=[("hst", 6)]), k.flag(2), k.poll_issue(D_PA, "ph2"), k.e(f"s_add_u32 s{sFO}, s89, {FL_X2 - FL_O}")), 5, P.dn_fgap)
    else:
        k.poll_check(D_PA, "ph1", 1)
        k.stamp("dn early")
        k.bg_held = True
        for i in range(P.dn_pre): bload(i)
        red_setup(k, 3, 1); rb()
        k.wait(vm=[("hst", 6)]); k.flag(2)
        k.poll_issue(D_PA, "ph2")
        for i in range(P.dn_pre, NB): bload(i)
        k.e(f"s_add_u32 s{sFO}, s89, {FL_X2 - FL_O}")
    k.per = dict(P.per_dn0); k.bg_held = False
    direct = final and P.dn1_agpr
    lds = [(i, nn) for i, (g, e) in enumerate(seq) if 8 <= e < 24 and not direct for nn in range(2)]
    slot_of = {x: n for n, x in enumerate(lds)}
    NWF = 6
    def wread(n):
        i, nn = lds[n]; j = 2 * (seq[i][1] - 8) + nn; b = 15 + (j >> 2)
        ad = (b % 10) * 16384 + (j & 3) * 1024
        if seq[i][0] == 0: k.wait(vm=[("gw", b)])
        k.ds(f"ds_read_b128 {vr(D_WF+4*(n%NWF),4)}, v{D_RB + (ad>>16)} offset:{ad & 0xffff}", ("wf", n))
    def wfrag(i, nn):
        e = seq[i][1]
        if e < 8: return ar(192 + 8*e + 4*nn, 4)
        if direct: return ar(8*(e - 8) + 4*nn, 4)
        if e >= 24: return vr(D_WV + 8*(e - 24) + 4*nn, 4)
        return vr(D_WF + 4*(slot_of[(i, nn)] % NWF), 4)
    mains = []; fixed = {}
    NT = P.dn_tail
    assert NT <= 4
    order = [(i, nn) for i in range(56 - NT) for nn in range(2)] + [(i, nn) for nn in range(2) for i in range(56 - NT, 56)]
    for pos, (i, nn) in enumerate(order):
        g, e = seq[i]
        if True:
            acc = D_ACC + 32 * g + 16 * nn
            mains.append(lambda i=i, nn=nn, acc=acc, e=e: k.e(f"{MF32} {vr(acc,16)}, {wfrag(i,nn)}, {vr(D_BF+4*(i%NB),4)}, {'0' if e == 0 else vr(acc,16)}"))
            gp = len(mains) - 1; fl_ = fixed.setdefault(gp, [])
            nx = order[pos + 1] if pos + 1 < len(order) else None
            vmn = [("b", nx[0])] if (nx and nx[1] == 0) else None
            lgn = [("wf", slot_of[nx])] if nx in slot_of else None
            if nx == (24, 0) and not direct: vmn = vmn + ["dnv"]
            if direct and nx and nx[0] in range(8, 28) and nx[1] == 0: vmn = vmn + [("dnr", nx[0])]
            fl_.append((0, lambda vmn=vmn, lgn=lgn: k.wait(vm=vmn, lg=lgn)))
            ah = (i + 2, nn)
            if ah in slot_of: fl_.append((1, lambda n=slot_of[ah]: wread(n)))
    nxt = NB; pend = 0
    for i in range(len(seq)):
        fl_ = fixed[2*i + 1]
        if i == P.dn_late: fl_.append((2, lambda: (k.poll_check(D_PA, "ph2", 2), k.stamp("dn late"), k.mark("late"))))
        n = 0
        while nxt < len(seq) and nxt <= i + NB and n < 2 and (nxt < 16 or i >= P.dn_late):
            fl_.append((1, lambda j=nxt: bload(j))); nxt += 1; n += 1
        if nxt == len(seq) and not pend: pend = 2*i + 2
    fixed[20].append((1, lambda: k.e("s_barrier")))
    for mm in range(2):
        fixed[40 + 4*mm].append((2, lambda mm=mm: (k.e(f"s_add_u32 s32, s55, {BX1[layer] + mm*32768}"),
                                                   k.vm(f"buffer_load_dwordx4 {vr(RES+4*mm,4)}, v{vL16}, {SRD_WS}, s32 offen sc1", "res"))))
    fw = Flex(); fs = Flex()
    for q, f in enumerate(red_writes(k, D_ACC, 0, 0, 1)): fw.add(f, 1, 58 + 2*q)
    fw.add(lambda: (k.wait(lg=[("rw", 0)]), k.e("s_barrier")), 2, 76)
    for f in red_reads(k, 0, T, 0): fw.add(f, 2)
    fw.add(lambda: k.wait(vm=["res"]))
    red_finish(k, fw, 0, groups[0], T, WS_X[1], WS_ST[1], final, False)
    if not final:
        fw.add(lambda: k.vm(f"buffer_store_dwordx4 {vr(RES+4,4)}, v{vL16}, {SRD_WS}, s72 offen sc1", "hxs"))
        fw.add(lambda: k.vm(f"buffer_store_dword v{T+32}, v{R_ST}, {SRD_WS}, s73 offen sc1", "hxs"))
        fw.skip(P.dn_flag_delay); fw.add(lambda: (k.wait(vm=[("xst", 0)]), k.flag(1)), 3)
        if P.x2_touch == "dn":
            fixed[P.dn_x2].append((5, lambda: k.touch(226, "p", [f"s_add_u32 s32, s55, {WS_X[1]}"])))
            fixed[P.dn_x2 + 1].append((4, lambda: k.touch(227, "s", [f"s_add_u32 s32, s56, {WS_ST[1]}"])))
            fs.add(lambda: k.wait(vm=["touch"]), 1, P.dn_x2 + 2)
        if "d" in str(P.touch1):
            for q, f in enumerate(touch_next(k, 28)): fixed[P.dn_touch + 2*q].append((5, f))
        fs.dep("late")
        for f in a11_bases(k) + a1_setup(k, 1): fs.add(f)
        fs.add(lambda: (k.poll_addr(A_PX, 32), k.e(f"s_lshl_b32 s32, s{sB}, 7", f"s_add_u32 s{sPO}, s32, {fl(0, FL_X2)}")), 4)
    wtail = red_writes(k, D_ACC + 32, 1, 2*16384, 1)
    if NT:
        for q in range(min(4, NT)): fixed[min(111, 112 - NT + 1 + q)].append((4, wtail.pop(0)))
    k.wait(vm=["dna", ("b", 0)])
    k.stamp("dn first")
    if k.stamping:
        fixed[55].append((0, lambda: k.stamp("dn p1")))
        for g in range(7, 111, 8): fixed[g].append((0, lambda g=g: k.stamp(f"find {g}")))
    run_gaps(k, mains, fixed, [early, fw, fs], 6)
    print("dn left:", len(k.bg), len(fw), len(fs), "last h load at gap", pend)
    k.stamp("dn gemm")
    assert not fs.items
    ws = wtail
    if not final: ws.insert(len(ws) - 4, lambda: k.poll_issue(A_PX, "px0"))
    merge(k, fw, ws)
    k.wait(lg=[("rw", 1)]); k.e("s_barrier")
    k.stamp("dn red")
    for f in red_reads(k, 1, T, 2*16384): f()
    if not final:
        k.bg_held = True
        k.poll_check(A_PX, "px0", 1)
        k.wait(vm=["hxs"]); k.flag(1, 91, "sc1")
        a11_early(k)
    f1 = Flex(); red_finish(k, f1, 1, groups[1], T, WS_X[1], WS_ST[1], final, True); drain([f1], k)
    k.stamp("dn end")
P.dn_tail = 0; P.dn_touch = 88; P.dn_flag_delay = 4; P.dn_pre = 6; P.dn_late = 7; P.dn_fgap = 6
P.dn_wow = 6; P.per_dn = {"s4": 110, "s2": 130}; P.per_dn0 = {"s4": 60, "s2": 60}

def build(stamps=False, only=None):
    k = F(); k.stamping = stamps; k.only = only; k.st = P.dst; k.rt = P.rt
    name = NAME + "_kernel"
    k.e(".p2align 8", f".globl {name}", f".type {name},@function"); k.label(name)
    if stamps: k.e("s_memrealtime s[92:93]", "s_memtime s[94:95]")
    k.e("s_cmp_ge_u32 s2, 256", "s_cbranch_scc1 L_end")
    k.e("s_load_dwordx16 s[64:79], s[0:1], 0", "s_load_dwordx4 s[80:83], s[0:1], 64", "s_memrealtime s[96:97]")
    k.e("s_getpc_b64 s[100:101]")
    k.e("L_pc: ;np")
    k.e("s_mov_b32 s24, s100", "s_mov_b32 s25, s101", "s_mov_b32 s26, L_end-L_pc", "s_mov_b32 s27, 0x20000",
        "v_and_b32 v1, 63, v0", "v_lshrrev_b32 v2, 6, v0", "s_lshr_b32 s33, s2, 3", "s_mul_i32 s32, s33, 43", "s_lshr_b32 s32, s32, 8",
        "s_mul_i32 s32, s32, 6", "s_sub_u32 s32, s33, s32", "s_lshl_b32 s32, s32, 13", "v_lshlrev_b32 v3, 11, v2", "v_lshl_add_u32 v3, v1, 7, v3",
        f"v_mov_b32 v4, {OOB:#x}", "v_cmp_gt_u32 vcc, 16, v1", f"v_readfirstlane_b32 s{sW}, v2", "v_cndmask_b32 v3, v4, v3, vcc")
    if P.code0: k.vm(f"buffer_load_dword v175, v3, {SRD_PK}, s32 offen", "code")
    k.e("s_and_b32 s32, s2, 7", f"s_and_b32 s{sM}, s33, 15", "s_lshr_b32 s33, s33, 4", "s_lshl_b32 s32, s32, 1", f"s_add_u32 s{sC}, s32, s33")
    k.e(f"s_lshr_b32 s33, s{sM}, 3", f"s_lshl_b32 s{sB}, s{sC}, 1", f"s_add_u32 s{sB}, s{sB}, s33", f"s_and_b32 s{sCS}, s{sM}, 7")
    k.e("v_lshlrev_b32 v2, 4, v1")
    a10_lanes(k)
    k.e("s_waitcnt lgkmcnt(0)")
    srd(k, 12, 64, 2048 * 1024); srd(k, 16, 66, 512 * 3072)
    k.e(f"s_or_b32 s{sTAG}, s96, 1")
    if stamps:
        k.stamps += ["rt0", "start"]; k.e("v_writelane_b32 v0, s92, 0", f"v_writelane_b32 v0, s{92 if P.rt else 94}, 1")
    k.stamp("s kernarg")
    if P.pk_first == 1: pack_issue(k)
    k.stamp("s pkissue")
    run(a10_x(k, 0) + a10_w(k, 0))
    if P.pk_first == 0: pack_issue(k)
    srd(k, 28, 80, 256)
    k.e("v_cmp_eq_u32 vcc, 0, v1", f"v_mov_b32 v{vFA}, {OOB:#x}", f"s_or_b32 s32, s2, s{sW}", f"v_cndmask_b32_e64 v{vFA}, v{vFA}, 0, vcc",
        "s_cmp_eq_u32 s32, 0", f"s_cselect_b32 s32, 0, {OOB>>1:#x}", f"v_mov_b32 v170, s{sTAG}")
    k.vm(f"buffer_store_dword v170, v{vFA}, {SRD_DBG}, s32 offen sc1", "tagst")
    srd(k, 8, 82, WS_SIZE); srd(k, 20, 78, 2048 * 1024)
    for f in a1_setup(k, 0): f()
    o_bases(k, 0)
    a10_lanes2(k)
    k.e(f"v_mov_b32 v60, {OOB:#x}", "v_cmp_gt_u32 vcc, 8, v1", "v_mov_b32 v176, 0", "v_mov_b32 v177, 0", "v_mov_b32 v178, 0", "v_mov_b32 v179, 0",
        f"v_cndmask_b32 v173, v60, v{vL16}, vcc", "v_cmp_gt_u32 vcc, 16, v1", "s_nop 0",
        f"s_lshl_b32 s32, s{sC}, 4", f"v_cndmask_b32 v172, v60, v{vL16}, vcc")
    k.e(f"s_add_u32 s32, s32, s{sM}", "s_lshl_b32 s32, s32, 4",
        f"s_cmp_eq_u32 s{sW}, 0", f"s_cselect_b32 s32, s32, {OOB>>1:#x}", f"v_add_u32 v171, s32, v{vFA}", f"s_mov_b32 s{sBUD}, 400000")
    red_bases(k)
    k.e(f"s_lshl_b32 s{sGL}, s{sW}, 12", f"s_mul_i32 s{sGS}, s{sM}, {PGU_SLICE}", f"s_add_u32 s{sGS}, s{sGS}, s{sGL}", f"s_add_u32 s{sGS}, s{sGS}, {WS_PGU}")
    k.e(f"s_mul_i32 s32, s{sCS}, {224*KB}", f"s_mul_i32 s33, s{sW}, {56*KB}", "s_add_u32 s32, s32, s33", f"s_add_u32 s{sDS}, s32, {WS_PDN}")
    k.e(f"s_lshl_b32 s32, s{sCS}, 16", f"s_add_u32 s32, s32, s{sGL}", f"s_add_u32 s88, s32, {WS_PWO}")
    wo_bases(k)
    k.stamp("s setup")
    run(a10_w(k, 1))
    if P.pk_first == 2: pack_issue(k)
    k.e(f"s_getreg_b32 s{sXCC}, hwreg(HW_REG_XCC_ID, 0, 4)", f"s_mov_b32 s75, {WS_ARR}", f"s_lshl_b32 s77, s{sC}, 8", "s_add_u32 s77, s77, s75")
    k.stamp("s w01")
    def mid2():
        if P.k_first > 3: run(a10_w(k, 3))
        k.e("s_lshl_b32 s32, s2, 7")
        k.vm(f"buffer_store_dwordx4 v[176:179], v173, {SRD_WS}, s32 offen sc1", "zero")
        k.e("s_lshl_b32 s32, s2, 8", f"s_add_u32 s32, s32, {WS_HXF}")
        k.vm(f"buffer_store_dwordx4 v[176:179], v172, {SRD_WS}, s32 offen sc1", "zero")
    if P.k_pack is None: pack_process(k, lambda: run(a10_x(k, 1) + a10_w(k, 2)), mid2)
    else: run(a10_x(k, 1) + a10_w(k, 2)); mid2()
    k.vm(f"buffer_load_dword v170, v{vFA}, {SRD_DBG}, 0 offen sc1", "tag")
    k.stamp("s pkdone")
    a10_loop(k, P.k_first)
    a10_tail(k)
    wo(k, 0); gu(k, 0); dn(k, 0)
    if not P.half:
        k.marks = {m: g for m, g in k.marks.items() if False}
        k.seen = {t for t in k.seen if t in k.vmq or t in k.lgq or t in ("dna", "st0", ("x", 2), ("x", 3))}
        a11_main(k)
        wo(k, 1)
        k.marks = {m: g for m, g in k.marks.items() if m in ("wobar", "gemm_done") or m[0] == "bar"}
        gu(k, 1); dn(k, 1)
    if P.verbose: print([(t, tag, f) for t, tag, f in k.bg_log if f])
    if stamps:
        k.e("s_waitcnt vmcnt(0)"); k.stamp("drained"); k.stamp("rt1", True)
        k.e("s_lshl_b32 s32, s2, 10", "s_lshl_b32 s33, s3, 8", "s_add_u32 s32, s32, s33",
            f"s_add_u32 s32, s32, {WS_STAMP}", "v_lshlrev_b32 v8, 2, v1", f"buffer_store_dword v0, v8, {SRD_WS}, s32 offen")
        if P.echo:
            a, b = P.echo
            n = len(k.stamps)
            k.e(f"v_readlane_b32 s32, v0, {a}", f"v_readlane_b32 s33, v0, {b if b >= 0 else n + b}", f"v_readlane_b32 s34, v0, {n-1}", "s_nop 3",
                "s_sub_u32 s33, s33, s32", "s_min_u32 s33, s33, 20000")
            k.label("L_echo")
            k.e("s_memrealtime s[36:37]", "s_waitcnt lgkmcnt(0)", "s_sub_u32 s36, s36, s34", "s_cmp_lt_u32 s36, s33", "s_cbranch_scc1 L_echo")
        if P.dbg:
            n = len(k.stamps)
            k.e("v_readlane_b32 s32, v0, 0", f"v_readlane_b32 s33, v0, {n-1}", "s_not_b32 s34, s32", "v_mov_b32 v4, s33", "v_mov_b32 v5, s34")
            k.e(f"buffer_atomic_umax v4, v{vFA}, {SRD_DBG}, 0 offen offset:4", f"buffer_atomic_umax v5, v{vFA}, {SRD_DBG}, 0 offen offset:8")
            k.e(f"s_cmp_eq_u32 s2, {P.dbg - 1}", f"s_cselect_b32 s35, 0, {OOB>>1:#x}", f"s_cmp_eq_u32 s{sW}, 0", f"s_cselect_b32 s35, s35, {OOB>>1:#x}")
            for i, wd in zip(range(2, n - 1), (3, 5, 6, 7, 9, 10, 11, 13, 14, 15)):
                k.e(f"v_readlane_b32 s33, v0, {i}", "s_sub_u32 s33, s33, s32", "v_mov_b32 v4, s33", f"buffer_store_dword v4, v{vFA}, {SRD_DBG}, s35 offen offset:{4*wd}")
    k.e("s_endpgm")
    k.flush_spins()
    k.label("L_end"); k.e("s_endpgm")
    src = open("cdna_kernels/%s.s.ref" % NAME).read().splitlines()
    out = [l for l in src if l.startswith(";") and "@launch" not in l]
    out.append(f"; @launch grid=(256,1,1) block=(256,1,1) lds={LDS_TOTAL}")
    out += ['.amdgcn_target "amdgcn-amd-amdhsa--gfx950"', ".text"]
    s = "\n".join(out) + "\n" + k.text(verbose=True) + '.section .rodata,"a"\n.p2align 6\n' + kd(name)
    from verify import verify
    assert not verify(s), "a register is used while a load into it is in flight"
    if P.align:
        from align import align
        s = align(s)
    return s, k.stamps
P.x_nobar = 0; P.x_noepi = 0; P.rt = 1; P.dbg = 0; P.h_touch0 = ''; P.outm = ''; P.h1_plain = 1; P.tags = 0; P.echo = None; P.wo_setup_first = 0; P.gu_pa_late = 0; P.gu_bar_first = 0; P.flagbr = 0; P.rot = 0; P.pk_mod = 'nt'; P.x_mod = ''; P.w_mod = ''; P.t_mod = ''; P.pk_first = 1; P.dn1_agpr = 1; P.half = 0; P.tlb = 1; P.code0 = 1; P.verbose = 0; P.align = 1; P.gu_cap = 5; P.gu_nw = 5; P.k_touch = 15; P.k_gb = 13; P.k_chk = 16

if __name__ == "__main__":
    path = sys.argv[1] if len(sys.argv) > 1 else "cdna_kernels/%s.s" % NAME
    opts = sys.argv[2:]
    only = None
    for o in opts:
        if o.startswith("only="): only = [x for x in o[5:].split(",") if x]
        if o.startswith("P."):
            n, v = o[2:].split("="); setattr(P, n, eval(v))
    s, st = build(stamps="st" in opts, only=only)
    open(path, "w").write(s)
    if "st" in opts: json.dump([st], open(path + ".json", "w"))
```

```python
import sys, json
from common import *

MF16 = "v_mfma_f32_16x16x32_bf16"
MF16S = "v_mfma_f32_16x16x16_bf16"
MF32 = "v_mfma_f32_32x32x16_bf16"
vL16, vFV, vFA, vP = 2, 8, 9, 10
CSV, CSQ, CSK, RES = 11, 12, 16, 20
OOB = 0x80000000
FL_O, FL_X1, FL_H, FL_X2 = 0, 4096, 8192, 12288
FL_HX = 16384 + 12288
def fl(layer, off): return WS_FLAGS + 16384 * layer + off
sROT, sBUD, sGL, sGS, sDS = 84, 98, 60, 61, 85
sT0, sT1, sPO, sFO = 32, 33, 86, 87
sML, sMS = 68, 69
WS_HXF = WS_O0 - 0x10000 if False else WS_END
WS_ARR = WS_HXF + 0x10000
sTAG, sXCC = 91, 76
WS_STAMP = 0x2000000
L_SA0, L_SA1, L_XH0, L_CS = 80896, 97280, 81920, 79872
def e_of(kk):
    p, tl = divmod(kk, 7)
    return 4 * p + tl if tl < 4 else 16 + 3 * p + (tl - 4)
KK_OF = {e_of(kk): kk for kk in range(28)}

class P:
    a1_bg_start, a1_bg_step = 30, 6
    gu_lead = 9
    gu_bg_start, gu_bg_step = 50, 2.6
    dn_lead = 12
    bgm = ""
    sleep = 0
    drop = ()
    codepf = 0
    ld = "sc1"
    dst = "sc1"
    safe = False
    plain = True
    notouch = ()

BO, BX1, BS1, BH = [WS_O[0]] * 2, [WS_X[0]] * 2, [WS_ST[0]] * 2, [WS_H[0]] * 2
def o_line(layer):
    return [f"s_lshl_b32 s32, s{sB}, 16", f"s_lshl_b32 s33, s{sCS}, 2", f"s_add_u32 s33, s33, s{sW}", "s_lshl_b32 s33, s33, 10",
            "s_add_u32 s32, s32, s33", f"s_add_u32 s32, s32, {BO[layer]}"]
def touch_next(k, t):
    return [lambda: k.touch(t, "p", o_line(1)), lambda: k.touch(t + 1, "q", [f"s_add_u32 s32, s64, {BX1[1]}"]),
            lambda: k.touch(t + 2, "t", [f"s_add_u32 s32, s65, {BS1[1]}"])]
def gu_tile(d):
    return [f"s_lshl_b32 {d}, s{sC}, 1", f"s_and_b32 s33, s{sW}, 1", f"s_add_u32 {d}, {d}, s33", f"s_lshl_b32 {d}, {d}, 1", f"s_lshr_b32 s33, s{sW}, 1", f"s_add_u32 {d}, {d}, s33"]
def h_base(d, layer):
    return gu_tile(d) + [f"s_mul_i32 {d}, {d}, 112", f"s_mul_i32 s33, s{sM}, 7",
            f"s_add_u32 {d}, {d}, s33", f"s_lshl_b32 {d}, {d}, 10", f"s_add_u32 {d}, {d}, {BH[layer]}"]

class F(K):
    def __init__(self):
        super().__init__(); self.spins = []; self.nspin = 0; self.st = ""; self.npf = 0
    def poll_issue(self, va, tag): self.vm(f"buffer_load_dword v{vP}, v{va}, {SRD_WS}, s{sPO} offen sc1", tag)
    def poll_addr(self, va, nl, sh=2):
        self.e(f"v_cmp_gt_u32 vcc, {nl}, v1", f"v_lshlrev_b32 v{va}, {sh}, v1", f"v_mov_b32 v{vP}, {OOB:#x}", f"v_cndmask_b32 v{va}, v{vP}, v{va}, vcc")
        self.nl = nl
    def poll_check(self, va, tag, thr):
        n = self.nspin; self.nspin += 1
        self.stamp(f"poll<{tag}")
        self.wait(vm=[tag])
        self.stamp(f"poll={tag}")
        msk = f"s_and_b32 s99, vcc_lo, {(1 << self.nl) - 1:#x}"
        self.e(f"v_cmp_gt_u32 vcc, {thr}, v{vP}", msk, f"s_cbranch_scc1 L_spin{n} ;np", f"L_back{n}: ;np")
        self.stamp(f"poll>{tag}")
        self.spins += [f"L_spin{n}:", f"s_sub_u32 s{sBUD}, s{sBUD}, 1", f"s_cbranch_scc1 L_give{n}"] + ([f"s_sleep {P.sleep}"] if P.sleep else []) + [
                       f"buffer_load_dword v{vP}, v{va}, {SRD_WS}, s{sPO} offen sc1", "s_waitcnt vmcnt(0)",
                       f"v_cmp_gt_u32 vcc, {thr}, v{vP}", msk, f"s_cbranch_scc1 L_spin{n}", f"s_branch L_back{n}",
                       f"L_give{n}:", f"s_mov_b32 s{sBUD}, 0", f"s_branch L_back{n}"]
    def flag(self, val, soff=sFO, st=None):
        self.e(f"v_mov_b32 v{vFV}, {val}")
        if st is not None:
            self.vm(f"buffer_store_dword v{vFV}, v{vFA}, {SRD_WS}, s{soff} offen {st}", "flag"); return
        if P.flagbr:
            self.dstore(f"buffer_store_dword v{vFV}, v{vFA}, {SRD_WS}, s{soff} offen", "flag", True); return
        self.e(f"s_or_b32 s99, s{soff}, s{sML}")
        self.vm(f"buffer_store_dword v{vFV}, v{vFA}, {SRD_WS}, s99 offen", "flag")
        self.e(f"s_or_b32 s99, s{soff}, s{sMS}")
        self.vm(f"buffer_store_dword v{vFV}, v{vFA}, {SRD_WS}, s99 offen sc1", "flag")
    def dstore(self, text, tag, always=False):
        if not P.plain and not always:
            self.vm(text + " sc1", tag); return
        n = self.nspin; self.nspin += 1
        self.e(f"s_cmp_lg_u32 s{sML}, 0", f"s_cbranch_scc1 L_alt{n} ;np")
        self.vm(text, tag)
        self.e(f"L_back{n}: ;np")
        self.spins += [f"L_alt{n}:", "s_nop 4", text + " sc1", f"s_branch L_back{n}"]
    def valid(self, test, reload):
        n = self.nspin; self.nspin += 1
        self.e(*test); self.e(f"s_cbranch_vccnz L_rl{n} ;np", f"L_back{n}: ;np")
        self.spins += [f"L_rl{n}:", f"s_sub_u32 s{sBUD}, s{sBUD}, 1", f"s_cbranch_scc1 L_give{n}"] + reload + ["s_waitcnt vmcnt(0)"] + test + \
                      [f"s_cbranch_vccnz L_rl{n}", f"s_branch L_back{n}", f"L_give{n}:", f"s_mov_b32 s{sBUD}, 0", f"s_branch L_back{n}"]
    def touch(self, tmp, kind, base_expr, masked=True):
        if not P.plain or kind in P.notouch: return
        nl = {"p": 16, "q": 16, "s": 2, "t": 2, "h": 56}[kind]
        self.e(f"v_cmp_gt_u32 vcc, {nl}, v1")
        if kind in "pq": self.e(f"v_lshrrev_b32 v{tmp}, 3, v1", f"v_lshlrev_b32 v{tmp}, {15 if kind == 'p' else 13}, v{tmp}", f"v_and_b32 v{vFV}, 7, v1", f"v_lshl_add_u32 v{tmp}, v{vFV}, 7, v{tmp}")
        else: self.e(f"v_lshlrev_b32 v{tmp}, {11 if kind == 's' else 7}, v1")
        self.e(f"v_mov_b32 v{vFV}, {OOB:#x}", *base_expr)
        self.e(f"v_cndmask_b32 v{tmp}, v{vFV}, v{tmp}, vcc")
        if masked: self.e(f"s_or_b32 s32, s32, s{sML}")
        self.vm(f"buffer_load_dword v{tmp}, v{tmp}, {SRD_WS}, s32 offen {P.t_mod}", "touch")
    def vm(self, text, tag=None):
        kind = tag[0] if isinstance(tag, tuple) else tag
        if kind in P.drop:
            self.seen.add(tag); return
        super().vm(text, tag)
    def codepf(self, tmpv, per=2048):
        if not P.codepf: return
        n = self.npf; self.npf += 1
        sh = (per // 64).bit_length() - 1
        self.e(f"L_pf{n}: ;np", f"s_mul_i32 s32, s{sW}, {per}", f"s_add_u32 s32, s32, L_pf{n}-L_pc", f"v_lshlrev_b32 v{tmpv}, {sh}, v1")
        raise NotImplementedError
    def flush_spins(self):
        for l in self.spins: self.e(l)
        self.spins = []

def batch(k, i):
    src = f"s_add_u32 s62, s{sGS}, {i*16384}" if i < 15 else f"s_add_u32 s62, s{sDS}, {(16 + 4*(i-15))*1024}"
    def f(q):
        k.set_m0(f"s_add_u32 m0, s{sGL}, {(i % 10)*16384}")
        if i != 14: k.set_s(src)
        elif k.last.get(62) != f"s_cselect_b32 s62, {OOB>>1:#x}, s62":
            k.e(src, f"s_cmp_ge_u32 s{sW}, 2", f"s_cselect_b32 s62, {OOB>>1:#x}, s62")
        k.vm(f"buffer_load_dwordx4 v{vL16}, {SRD_WS}, s62 offen offset:{q*1024} {P.bgm} lds", ("gw", i))
    return [lambda q=q: f(q) for q in range(4)]

def bg_batches(k, bs, period, dep=lambda b: None):
    for b in bs:
        for f in batch(k, b): k.bg_add(f, period, ("gw", b), dep(b))
def bg_list(k, fns, period, tag, dep=None):
    for f in fns: k.bg_add(f, period, tag, dep)

def regloads(k, base_sgpr, off, dst, n, tag, tmp=63, tagf=None):
    fns = []
    for j in range(n):
        def f(j=j):
            k.set_s(f"s_add_u32 s{tmp}, s{base_sgpr}, {off + (j & ~3)*1024}")
            k.vm(f"buffer_load_dwordx4 {dst(j)}, v{vL16}, {SRD_WS}, s{tmp} offen offset:{(j%4)*1024} {P.bgm}", tagf(j) if tagf else tag)
        fns.append(f)
    return fns
def wow(k):
    def f(i, q):
        k.set_m0(f"s_add_u32 m0, s{sGL}, {(6 + i)*16384}"); k.set_s(f"s_add_u32 s63, s88, {i*16384}")
        k.vm(f"buffer_load_dwordx4 v{vL16}, {SRD_WS}, s63 offen offset:{q*1024} lds", "wow")
    return [lambda i=i, q=q: f(i, q) for i in range(4) for q in range(4)]

def pack_issue(k):
    for r in (68, 69, 72, 73, 74, 75, 76, 77): assert k.last[r].startswith("s_load"), f"kernel argument s{r} overwritten"
    k.e("v_lshrrev_b32 v44, 3, v1", "v_and_b32 v43, 7, v1", "v_and_b32 v45, 2, v44", "v_lshlrev_b32 v45, 1, v45",
        "v_xor_b32 v43, v43, v45", "v_lshlrev_b32 v43, 4, v43", f"s_add_u32 s34, s49, {L_X + 4096}")
    k.e("s_cmp_ge_u32 s2, 112", "s_cbranch_scc1 L_pki_small")
    k.e("s_and_b32 s35, s2, 1", "s_bfe_u32 s36, s2, 0x10001", "s_lshr_b32 s37, s2, 2")
    k.e("s_cmp_eq_u32 s35, 0", "s_cselect_b32 s24, s72, s74", "s_cselect_b32 s25, s73, s75",
        f"s_mov_b32 s26, {512*3584:#x}", "s_mov_b32 s27, 0x20000")
    k.e("v_mul_u32_u24 v46, 3584, v44", "v_add_u32 v46, v46, v43")
    k.e("s_lshl_b32 s38, s36, 2", f"s_add_u32 s38, s38, s{sW}", f"s_mul_i32 s38, s38, {64*3584}",
        "s_lshl_b32 s39, s37, 7", "s_add_u32 s38, s38, s39")
    for i in range(8):
        k.e(f"s_add_u32 m0, s34, {(i>>2)*8192 + (i&3)*1024}", f"s_add_u32 s39, s38, {i*8*3584}", f"buffer_load_dwordx4 v46, {SRD_PK}, s39 offen {P.pk_mod} lds")
    k.e("s_branch L_pki_done")
    k.label("L_pki_small")
    k.e("s_sub_u32 s35, s2, 112", "s_lshl_b32 s35, s35, 3", f"s_lshl_b32 s36, s{sW}, 1", "s_add_u32 s35, s35, s36")
    k.e("s_cmp_lt_u32 s35, 896", "s_cselect_b32 s24, s76, s68", "s_cselect_b32 s25, s77, s69", f"s_mov_b32 s26, {512*1024:#x}",
        f"s_cselect_b32 s26, {1792*1024:#x}, s26", "s_mov_b32 s27, 0x20000", "s_cselect_b32 s37, 1, 0",
        "s_movk_i32 s38, 896", "s_cselect_b32 s38, 0, s38")
    k.e("s_cselect_b32 s39, 0, 1", "s_cselect_b32 s70, 14, 15", "s_movk_i32 s71, 0x4000", "s_cselect_b32 s71, 0x80, s71")
    k.e("s_sub_u32 s35, s35, s38", "s_lshr_b32 s35, s35, s39", "s_and_b32 s36, s35, 7", "s_lshr_b32 s35, s35, 3")
    k.e("v_lshl_add_u32 v46, v44, 10, v43", "s_lshl_b32 s38, s35, s70", "s_lshl_b32 s39, s36, 7", "s_add_u32 s38, s38, s39")
    for i in range(2):
        for h in range(2):
            k.e(f"s_add_u32 m0, s34, {(2*i+h)*1024}", f"s_add_u32 s39, s38, {h*8192}", f"buffer_load_dwordx4 v46, {SRD_PK}, s39 offen {P.pk_mod} lds")
        if i == 0: k.e("s_add_u32 s38, s38, s71")
    k.label("L_pki_done")
    k.vmq.append("pk"); k.seen.add("pk")

PQ = [76, 80, 84, 88, 92, 96, 36, 40]
def pack_process(k, mid1, mid2):
    k.e("v_bfe_u32 v46, v1, 2, 2", "v_and_b32 v47, 3, v1", "v_bfe_u32 v48, v1, 4, 1", "v_lshrrev_b32 v49, 5, v1")
    k.e("v_and_b32 v50, 2, v46", "v_add_u32 v50, v50, v48", "v_lshlrev_b32 v50, 5, v50",
        "v_lshl_add_u32 v50, v46, 7, v50", "v_lshl_add_u32 v50, v47, 3, v50", "v_add_u32 v50, s34, v50")
    k.e("s_cmp_ge_u32 s2, 112", "s_cbranch_scc1 L_pk_small")
    q0 = list(k.vmq)
    k.e("v_lshl_add_u32 v56, v49, 10, v50", "v_xor_b32 v57, 64, v56")
    k.e("s_lshl_b32 s39, s37, 2", "v_add_u32 v58, s39, v48")
    k.e("s_lshl_b32 s70, s36, 2", f"s_add_u32 s70, s70, s{sW}", "s_lshl_b32 s70, s70, 2")
    k.e("v_and_b32 v66, 15, v1", "s_lshl_b32 s71, s35, 8", "v_lshl_add_u32 v66, v66, 4, s71")
    for p in range(2):
        T, fs, tl, st_, b, aug = 59, 60, 61, 62 + p, 64 + p, 68 + p
        k.e(f"v_add_u32 v{T}, {2*p}, v58", f"v_mul_u32_u24 v{fs}, 9363, v{T}", f"v_lshrrev_b32 v{fs}, 16, v{fs}",
            f"v_mul_u32_u24 v{tl}, 7, v{fs}", f"v_sub_u32 v{tl}, v{T}, v{tl}")
        k.e(f"v_cmp_gt_u32 vcc, 3, v{tl}", f"v_mul_u32_u24 v67, 33, v{tl}", f"v_mov_b32 v{st_}, 1", "v_mov_b32 v70, 3",
            f"v_cndmask_b32 v67, v67, v{tl}, vcc", f"v_cndmask_b32 v{st_}, v{st_}, v70, vcc")
        k.e(f"v_mul_u32_u24 v{fs}, 231, v{fs}", f"v_add_u32 v67, v67, v{fs}")
        k.e(f"v_lshl_add_u32 v70, v{st_}, 5, v67", "v_lshlrev_b32 v70, 10, v70", "v_add_u32 v70, v70, v66",
            "s_lshl_b32 s71, s36, 9", f"v_add_u32 v{aug}, s71, v70")
        k.e(f"v_mul_lo_u32 v70, v{st_}, s70", "v_add_u32 v67, v67, v70", "v_lshlrev_b32 v67, 10, v67",
            "v_add_u32 v67, v67, v66", f"v_lshl_add_u32 v{b}, v49, 9, v67", f"v_lshlrev_b32 v{st_}, 10, v{st_}")
    k.e("v_mov_b32 v71, 0x3f803f80", "v_mov_b32 v72, 0", "v_mov_b32 v73, 0", "v_cmp_gt_u32 vcc, 32, v1", "v_mov_b32 v46, 0", "v_mov_b32 v47, 0",
        "v_cndmask_b32 v68, v69, v68, vcc", f"s_lshl_b32 s72, s{sW}, 8", "s_add_u32 s72, s72, 0x10000", "v_lshl_add_u32 v74, v1, 2, s72",
        "v_lshlrev_b32 v75, 2, v1", "v_add_u32 v75, 0x10000, v75")
    k.e(f"s_mov_b32 s70, {WS_PGU}", "s_mov_b32 s71, s70", "s_mov_b32 s72, s70", "s_mov_b32 s73, s70", f"s_cmp_eq_u32 s{sW}, 0", f"s_cselect_b32 s74, s70, {OOB>>1:#x}")
    k.wait(vm="pk")
    for ks in range(4):
        for p in range(2):
            for j in range(2): k.ds(f"ds_read_b64_tr_b16 {vr(PQ[2*ks+p]+2*j,2)}, v{56+p} offset:{(ks>>1)*8192 + (ks&1)*2048 + j*512}", ("t", ks, p))
        if ks == 2: k.wait(lg=[("t", 0, 1)])
    mid1()
    for ks in range(4):
        for p in range(2):
            k.wait(lg=[("t", ks, p)])
            for d in range(4): k.e(f"v_dot2c_f32_bf16 v{72+p}, v{PQ[2*ks+p]+d}, v71")
    k.e("v_permlane32_swap_b32 v72, v73", "v_add_f32 v72, v72, v73")
    k.ds(f"ds_write_b32 v74, v72 offset:{L_CS - 65536}")
    k.wait(lg="all"); k.e("s_barrier")
    for w in range(4): k.ds(f"ds_read_b32 v{56+w}, v75 offset:{L_CS - 65536 + 256*w}")
    mid2()
    k.wait(lg="all")
    k.e("v_add_f32 v56, v56, v57", "v_add_f32 v58, v58, v59", "v_add_f32 v56, v56, v58")
    k.e("v_cvt_pk_bf16_f32 v45, v56, v46", "v_lshlrev_b32 v57, 16, v45", "v_sub_f32 v57, v56, v57", "v_cvt_pk_bf16_f32 v44, v56, v57")
    k.e("s_branch L_pk_done")
    k.label("L_pk_small")
    k.vmq = list(q0)
    k.e(f"v_mov_b32 v64, v{vL16}", f"v_add_u32 v65, 1024, v{vL16}", f"v_mov_b32 v68, v{vL16}", f"s_mov_b32 s72, {OOB>>1:#x}", "s_mov_b32 s73, s72", "s_mov_b32 s74, s72")
    k.e("s_cmp_eq_u32 s37, 0", "s_cbranch_scc1 L_pk_wo")
    k.e("s_mul_i32 s38, s35, 2341", "s_lshr_b32 s38, s38, 16", "s_mul_i32 s39, s38, 28", "s_sub_u32 s39, s35, s39",
        "s_mul_i32 s70, s39, 9363", "s_lshr_b32 s70, s70, 16", "s_mul_i32 s71, s70, 7", "s_sub_u32 s71, s39, s71")
    for u in range(2):
      k.e(f"s_sub_u32 s39, s70, s36" if P.hrot else "s_mov_b32 s39, s70", f"s_sub_u32 s39, s39, {u if P.hrot else 0}", "s_and_b32 s39, s39, 3",
        "s_lshl_b32 s32, s39, 2", "s_add_u32 s32, s32, s71", "s_mul_i32 s33, s39, 3", "s_add_u32 s33, s33, s71", "s_add_u32 s33, s33, 12",
        "s_cmp_lt_u32 s71, 4", "s_cselect_b32 s32, s32, s33", "s_mul_i32 s33, s38, 28", "s_add_u32 s32, s32, s33", f"s_lshl_b32 s{(35, 37)[u]}, s32, 11")
    k.e("v_lshl_add_u32 v56, v49, 9, v50", "v_xor_b32 v57, 64, v56", f"v_mov_b32 v62, {224*KB}", f"v_mov_b32 v63, {224*KB}")
    k.e(f"s_mul_i32 s36, s36, {224*KB}", f"s_add_u32 s36, s36, {WS_PDN}", "s_add_u32 s70, s36, s35", "s_add_u32 s71, s36, s37")
    k.wait(vm="pk")
    for i in range(2):
        for nn in range(2):
            for j in range(2): k.ds(f"ds_read_b64_tr_b16 {vr(PQ[2*i+nn]+2*j,2)}, v{56+nn} offset:{i*2048 + j*1024}", "t")
    mid1(); mid2()
    k.wait(lg="all")
    k.e("s_branch L_pk_done")
    k.label("L_pk_wo")
    k.vmq = list(q0)
    k.e("v_and_b32 v56, 2, v46", "v_lshlrev_b32 v56, 1, v56", "v_xor_b32 v56, v56, v47", "v_lshlrev_b32 v56, 4, v56", "v_lshl_add_u32 v56, v46, 7, v56",
        "v_lshrrev_b32 v57, 4, v1", "v_lshl_add_u32 v56, v57, 10, v56", "v_add_u32 v56, s34, v56", "v_xor_b32 v57, 64, v56",
        "v_mov_b32 v62, 0x800", "v_mov_b32 v63, 0x800")
    k.e("s_lshl_b32 s36, s36, 16", "s_lshl_b32 s35, s35, 12", "s_add_u32 s70, s36, s35", f"s_add_u32 s70, s70, {WS_PWO}", "s_mov_b32 s71, s70")
    k.wait(vm="pk")
    for j in range(4):
        for jj in range(2): k.ds(f"ds_read_b64_tr_b16 {vr(PQ[j]+2*jj,2)}, v{56+(j>>1)} offset:{jj*512 + 8*(j&1)}", "t")
    mid1(); mid2()
    k.wait(lg="all")
    k.label("L_pk_done")

def pack_stores(k):
    ops = []
    for r in range(4):
        for p in range(2):
            ops.append(("v", lambda r=r, p=p: k.vm(f"buffer_store_dwordx4 {vr(PQ[2*r+p],4)}, v{64+p}, {SRD_WS}, s{70+r} offen sc1", "pks")))
            if r < 3: ops.append(("a", lambda p=p: k.e(f"v_add_u32 v{64+p}, v{64+p}, v{62+p}")))
    ops.append(("v", lambda: k.vm(f"buffer_store_dwordx4 v[44:47], v68, {SRD_WS}, s74 offen sc1", "pks")))
    return ops

A_XF, A_K, A_V, A_Q = 36, 76, 86, 96
A_STA, A_STB, A_OP, A_DX, A_PA, A_ST, A_ACC = 104, 106, 144, 152, 153, 140, 184
class R0: XE, XO, SA, SB, CI, ONE, M, ATT, TMP = 3, 4, 5, 6, 28, 32, 52, (116, 160), 60
class R1: XE, XO, SA, SB, CI, ONE, M, ATT, TMP = 116, 117, 118, 119, 252, 124, 120, (228, 160), 28
A_U, A_PX = 226, 115
A11_ORDER = [2, 3, 1, 0, "h"]
A11_POS = {2: 3, 3: 0, 1: 1, 0: 2, "h": 3}
sODD, sCUR0, sCUR1, sCEXP = 40, 42, 44, 46

def a1_setup(k, layer):
    R = (R0, R1)[layer]
    real = k; out = []
    class Rec:
        def e(self, *t):
            if any(x.startswith("s_cmp") for x in t): out.append(lambda t=t: real.e(*t))
            else: out.extend(lambda x=x: real.e(x) for x in t)
    k = Rec()
    t16, g, tt, tb = R.TMP, R.TMP + 1, R.TMP + 2, R.TMP + 3
    x, y, z = R.ONE, R.ONE + 1, R.ONE + 2
    sa = L_SA0 if layer == 0 else L_SA1
    k.e(f"v_and_b32 v{t16}, 15, v1", f"v_lshrrev_b32 v{g}, 4, v1", f"v_and_b32 v{tt}, 7, v1", f"v_bfe_u32 v{tb}, v1, 3, 1")
    k.e(f"v_lshlrev_b32 v{tb}, 13, v{tb}")
    if layer == 0: k.e(f"v_add_u32 v{tb}, {L_X}, v{tb}")
    if layer == 0:
        k.e(f"v_and_b32 v{x}, 6, v{tt}", f"v_xor_b32 v{x}, v{x}, v{g}", f"v_lshlrev_b32 v{x}, 4, v{x}",
            f"v_lshl_add_u32 v{x}, v{tt}, 7, v{x}", f"v_add_u32 v{R.XE}, v{x}, v{tb}", f"v_xor_b32 v{R.XO}, 64, v{R.XE}")
    else:
        k.e(f"v_lshl_add_u32 v{x}, v{g}, 7, v{tb}", f"v_lshl_add_u32 v{R.XE}, v{tt}, 4, v{x}", f"v_add_u32 v{R.XO}, 512, v{R.XE}")
    k.e(f"v_lshlrev_b32 v{R.SA}, 3, v{t16}", f"v_add_u32 v{R.SA}, {sa}, v{R.SA}",
        f"v_lshlrev_b32 v{R.SB}, 5, v{g}", f"v_add_u32 v{R.SB}, {sa}, v{R.SB}")
    k.e(f"v_and_b32 v{x}, 1, v1", f"v_cmp_eq_u32 s[{sODD}:{sODD+1}], 1, v{x}",
        f"v_lshl_add_u32 v{y}, v{g}, 2, v{x}", f"v_cmp_le_u32 s[{sCUR0}:{sCUR0+1}], v{y}, v{t16}",
        f"v_add_u32 v{y}, 2, v{y}", f"v_cmp_le_u32 s[{sCUR1}:{sCUR1+1}], v{y}, v{t16}")
    k.e(f"v_mov_b32 v{y}, 0xffff", f"v_mov_b32 v{z}, 0xffff0000", f"v_cndmask_b32 v{y}, v{y}, v{z}, s[{sODD}:{sODD+1}]", f"v_mov_b32 v{z}, 0")
    k.e(f"v_cndmask_b32 v{R.M+2}, v{z}, v{y}, s[{sCUR0}:{sCUR0+1}]", f"v_cndmask_b32 v{R.M}, v{y}, v{z}, s[{sCUR0}:{sCUR0+1}]",
        f"v_cndmask_b32 v{R.M+3}, v{z}, v{y}, s[{sCUR1}:{sCUR1+1}]", f"v_cndmask_b32 v{R.M+1}, v{y}, v{z}, s[{sCUR1}:{sCUR1+1}]")
    k.e(f"s_cmp_eq_u32 s{sB}, 0", f"s_cselect_b32 s70, {f2u(-1e38):#x}, 0", f"s_mov_b32 s{sCEXP}, {f2u(0.25*LOG2E):#x}")
    for i in range(4): k.e(f"v_mov_b32 v{R.CI+i}, s70", f"v_mov_b32 v{R.ONE+i}, 0x3f803f80")
    return out

def o_bases(k, layer):
    k.e(f"s_lshl_b32 s32, s{sB}, 16", f"s_lshl_b32 s33, s{sCS}, 2", f"s_add_u32 s33, s33, s{sW}", "s_lshl_b32 s53, s33, 10",
        "s_add_u32 s32, s32, s53", f"s_add_u32 s53, s32, {BO[layer]}", "s_add_u32 s54, s53, 32768",
        f"s_lshl_b32 s32, s{sB}, 5", "s_add_u32 s32, s32, s33", "s_lshl_b32 s32, s32, 2", f"s_add_u32 s89, s32, {fl(layer, FL_O)}")

def ln_finish(a, s, q):
    a(f"v_mul_f32 v{s}, {f2u(-1/512):#x}, v{s}"); a(f"v_mul_f32 v{q}, {f2u(1/512):#x}, v{q}")
    a(f"v_fma_f32 v{q}, -v{s}, v{s}, v{q}"); a(f"v_max_f32 v{q}, 0, v{q}"); a(f"v_add_f32 v{q}, {f2u(1e-5):#x}, v{q}")

A_QS = 68
def fix_reads(k, R, t, S):
    i = 0 if t == "h" else t + 1
    return [lambda: k.ds(f"ds_read_b64 {vr(S,2)}, v{R.SA} offset:{i*128}", ("sa", t)),
            lambda: k.ds(f"ds_read_b128 {vr(S+2,4)}, v{R.SB} offset:{i*128}", ("sa", t)),
            lambda: k.ds(f"ds_read_b128 {vr(S+6,4)}, v{R.SB} offset:{i*128+16}", ("sa", t))]
def fix(k, R, fx, t, acc, at, pk, S=A_STA, pre=False, nxt=()):
    a = lambda txt, c=1, at=0: fx.add(lambda: k.e(txt), c, at)
    i = 0 if t == "h" else t + 1
    if not pre:
        for n, f in enumerate(fix_reads(k, R, t, S)): fx.add(f, 1, at - P.a1_salead if n == 0 else 0)
    fx.add(lambda: k.wait(lg=[("sa", t)]), 1, at)
    for f in nxt: fx.add(f)
    for r0, cs, dst in ((acc[0], CSQ, None if t == "h" else A_Q + 2*t), (acc[1], CSK, A_K + 2*i)):
        if dst is None: continue
        isq = cs == CSQ
        if pk:
            for h in (0, 2): a(f"v_pk_fma_f32 {vr(r0+h,2)}, {vr(S,2)}, {vr(cs+h,2)}, {vr(r0+h,2)} op_sel_hi:[0,1,1]")
            if not isq:
                for h in (0, 2): a(f"v_pk_mul_f32 {vr(r0+h,2)}, {vr(S,2)}, {vr(r0+h,2)} op_sel:[1,0] op_sel_hi:[1,1]")
        else:
            for r in range(4): a(f"v_fmac_f32 v{r0+r}, v{S}, v{cs+r}")
            if not isq:
                for r in range(4): a(f"v_mul_f32 v{r0+r}, v{S+1}, v{r0+r}")
        if isq: a(f"v_mul_f32 v{A_QS+t}, s{sCEXP}, v{S+1}")
        for h in range(2): a(f"v_cvt_pk_bf16_f32 v{dst+h}, v{r0+2*h}, v{r0+2*h+1}")
    r0 = acc[2]
    for r in range(4): a(f"v_fmac_f32 v{r0+r}, v{S+2+2*r}, v{CSV}")
    for r in range(4): a(f"v_mul_f32 v{r0+r}, v{S+3+2*r}, v{r0+r}")
    for h in range(2): a(f"v_cvt_pk_bf16_f32 v{A_V+2*i+h}, v{r0+2*h}, v{r0+2*h+1}")
    fx.add(lambda: (k.mark(("fix", t)), k.stamp(f"t0 fix{t}")), 0)

def attn(k, R, fx, t, B):
    SC, SP, PP, O, SUM, T = B, B + 4, B + 8, B + 12, B + 16, B + 20
    a = lambda txt, c=1: fx.add(lambda: k.e(txt), c)
    q = vr(A_Q + 2*t, 2)
    fx.dep(("fix", t)); fx.dep(("fix", t - 1 if t else "h")); fx.skip(1)
    a(f"{MF16S} {vr(SC,4)}, {vr(A_K+2*(t+1),2)}, {q}, 0", 2)
    a(f"{MF16S} {vr(SP,4)}, {vr(A_K+2*t,2)}, {q}, {vr(R.CI,4) if t == 0 else '0'}", 2)
    fx.skip(3)
    for rr, cur in ((0, sCUR0), (1, sCUR1)):
        a(f"v_cndmask_b32 v{T+2}, v{SC+2*rr}, v{SC+2*rr+1}, s[{sODD}:{sODD+1}]")
        a(f"v_cndmask_b32 v{T+3}, v{SP+2*rr}, v{SP+2*rr+1}, s[{sODD}:{sODD+1}]")
        a(f"v_cndmask_b32 v{T+rr}, v{T+3}, v{T+2}, s[{cur}:{cur+1}]")
    a(f"v_max_f32 v{T+2}, v{T}, v{T+1}"); a(f"v_mov_b32 v{T+3}, v{T+2}"); fx.skip(1)
    a(f"v_permlane16_swap_b32 v{T+2}, v{T+3}", 2); a(f"v_max_f32 v{T+2}, v{T+2}, v{T+3}"); a(f"v_mov_b32 v{T+3}, v{T+2}"); fx.skip(1)
    a(f"v_permlane32_swap_b32 v{T+2}, v{T+3}", 2); a(f"v_max_f32 v{T+2}, v{T+2}, v{T+3}")
    a(f"v_mul_f32 v{T+2}, v{A_QS+t}, v{T+2}")
    for rr in range(2): a(f"v_fma_f32 v{T+rr}, v{T+rr}, v{A_QS+t}, -v{T+2}")
    for rr in range(2): a(f"v_exp_f32 v{T+rr}, v{T+rr}", 2)
    for rr in range(2): a(f"v_cvt_pk_bf16_f32 v{T+rr}, v{T+rr}, v{T+rr}")
    a(f"v_and_b32 v{PP}, v{T}, v{R.M}"); a(f"v_and_b32 v{PP+1}, v{T+1}, v{R.M+1}")
    a(f"v_and_b32 v{PP+2}, v{T}, v{R.M+2}"); a(f"v_and_b32 v{PP+3}, v{T+1}, v{R.M+3}")
    fx.skip(1)
    a(f"{MF16} {vr(SUM,4)}, {vr(R.ONE,4)}, {vr(PP,4)}, 0", 2)
    a(f"{MF16} {vr(O,4)}, {vr(A_V+2*t,4)}, {vr(PP,4)}, 0", 2)
    fx.skip(3)
    a(f"v_rcp_f32 v{T}, v{SUM}", 2); fx.skip(1)
    for r in range(4): a(f"v_mul_f32 v{O+r}, v{T}, v{O+r}")
    for h in range(2): a(f"v_cvt_pk_bf16_f32 v{A_OP+2*t+h}, v{O+2*h}, v{O+2*h+1}")
    fx.add(lambda: (k.mark(("attn", t)), k.stamp(f"t0 attn{t}")), 0)

def ostore(k, fx, pair):
    b = A_OP + 4 * pair
    fx.dep(("attn", 2*pair)); fx.dep(("attn", 2*pair + 1))
    fx.dep("po1" if pair == 0 else "blank")
    fx.skip(1)
    fx.add(lambda: k.e(f"v_permlane16_swap_b32 v{b}, v{b+2}"), 2); fx.add(lambda: k.e(f"v_permlane16_swap_b32 v{b+1}, v{b+3}"), 2)
    fx.add(lambda: (k.dstore(f"buffer_store_dwordx4 {vr(b,4)}, v{vL16}, {SRD_WS}, s{53+pair} offen", ("ost", pair)), k.mark(("ost", pair))))

Z_WD, Z_TR, Z_HE, Z_HO, Z_OE, Z_OO = 164, 165, 166, 167, 168, 169
Z_XF, Z_SUM, Z_GR, Z_SUMH, Z_GRH, Z_CV = 104, 240, 244, 248, 252, 100
P.k_first = 4; P.k_pack = None; P.k_prep = 13
P.k_look, P.k_atom, P.k_bar, P.k_vgap, P.k_pst, P.k_pgap = 3, 6, 3, 3, 3, 0
NS0 = 6
def z_acc(t):
    if t == "h": return (None, A_ACC + 48, A_ACC + 52)
    return (A_ACC + 12*t, A_ACC + 12*t + 4, A_ACC + 12*t + 8)

def a10_lanes(k):
    k.e("v_lshrrev_b32 v60, 3, v1", "v_and_b32 v61, 6, v60", "v_and_b32 v62, 7, v1", "v_xor_b32 v61, v61, v62",
        "v_lshlrev_b32 v61, 4, v61", f"v_lshl_add_u32 v{A_DX}, v60, 10, v61")
    k.e("v_and_b32 v61, 2, v60", f"s_and_b32 s32, s{sW}, 1", "s_lshl_b32 s32, s32, 2", "v_or_b32 v61, s32, v61", "v_xor_b32 v61, v61, v62",
        "v_lshlrev_b32 v61, 4, v61", "v_mul_u32_u24 v60, 3072, v60", f"v_add_u32 v{Z_WD}, v60, v61")
    if P.rot == 0: k.e(f"s_add_u32 s{sROT}, s{sB}, s{sCS}")
    elif P.rot == 1: k.e(f"s_lshl_b32 s32, s{sB}, 1", f"s_bfe_u32 s33, s{sB}, 0x10002", "s_add_u32 s32, s32, s33", f"s_add_u32 s{sROT}, s32, s{sCS}")
    elif P.rot == 2: k.e(f"s_lshl_b32 s32, s{sB}, 1", f"s_add_u32 s{sROT}, s32, s{sCS}")
    elif P.rot == 3: k.e(f"s_mov_b32 s{sROT}, s{sCS}")
    elif P.rot == 4: k.e(f"s_lshl_b32 s32, s{sB}, 1", f"s_bfe_u32 s33, s{sB}, 0x10002", f"s_add_u32 s{sROT}, s32, s33")
    elif P.rot == 5: k.e(f"s_mov_b32 s{sROT}, 0")
    k.e(f"s_and_b32 s{sROT}, s{sROT}, 7")
    k.e(f"s_lshl_b32 s47, s{sB}, 3", "s_sub_u32 s48, s47, 2", "s_max_i32 s48, s48, 0", f"s_and_b32 s32, s{sW}, 1", "s_add_u32 s48, s48, s32",
        "s_lshl_b32 s48, s48, 13", f"s_lshl_b32 s32, s{sW}, 1", "s_add_u32 s47, s47, s32", "s_lshl_b32 s47, s47, 13")
    k.e(f"s_mul_i32 s51, s{sW}, {8*3072}", f"s_lshl_b32 s32, s{sCS}, 7", "s_add_u32 s51, s51, s32", f"s_mul_i32 s52, s{sW}, 3072")
    k.e(f"s_lshl_b32 s49, s{sW}, 14", f"s_and_b32 s32, s{sW}, 1", "s_lshl_b32 s50, s32, 13", f"s_lshr_b32 s32, s{sW}, 1",
        "s_lshl_b32 s33, s32, 10", "s_add_u32 s50, s50, s33", f"s_add_u32 s90, s32, s{sROT}")

def a10_x(k, c):
    S = lambda *t: [("s", lambda x=x: k.e(x)) for x in t]
    ld = lambda: k.vm(f"buffer_load_dwordx4 v{A_DX}, {SRD_X}, s33 offen {P.x_mod} lds", ("x", c))
    ops = S(f"s_add_u32 s33, s{sROT}, {c}", "s_and_b32 s33, s33, 7", "s_lshl_b32 s33, s33, 7", f"s_add_u32 m0, s49, {L_X + c*1024}", "s_add_u32 s33, s33, s47")
    ops += [("v", ld)] + S(f"s_add_u32 m0, s49, {L_X + 8192 + c*1024}", "s_add_u32 s33, s33, 8192") + [("v", ld)]
    if c % 2 == 0:
        ops += S(f"s_add_u32 s33, s90, {c}", "s_and_b32 s33, s33, 7", "s_lshl_b32 s33, s33, 7", f"s_add_u32 m0, s50, {L_XH0 + c*1024}", "s_add_u32 s33, s33, s48") + [("v", ld)]
    return ops

def a10_w(k, s):
    S = lambda *t: [("s", lambda x=x: k.e(x)) for x in t]
    if s & 1: ops = S(f"s_add_u32 m0, s52, {(s % NS0)*12288}", f"s_add_u32 s63, s63, {32*3072}")
    else: ops = S(f"s_add_u32 s63, s{sROT}, {s>>1}", "s_and_b32 s63, s63, 7", f"s_mul_i32 s63, s63, {64*3072}", f"s_add_u32 m0, s52, {(s % NS0)*12288}", "s_add_u32 s63, s63, s51")
    for p in range(3): ops.append(("v", lambda p=p: k.vm(f"buffer_load_dwordx4 v{Z_WD}, {SRD_QKV}, s63 offen offset:{p*1024} {P.w_mod} lds", ("w", s))))
    return ops
def run(ops):
    for _, f in ops: f()

def fill(k, mains, streams, cap=2):
    lastv = -99
    for g, m in enumerate(mains):
        m(); k.gap = g
        for a, o in streams:
            if a <= g and o and o[0][0] == "s": o.pop(0)[1](); break
        room = cap; nd = 0
        if g - lastv >= P.k_vgap and k.bg_step(): room -= 1; lastv = g
        while room > 0:
            pick = None
            for a, o in streams:
                if a > g or not o: continue
                t = o[0][0]
                if t == "d" and nd >= 1: continue
                if t == "v" and g - lastv < P.k_vgap: continue
                pick = o; break
            if pick is None: break
            t, f = pick.pop(0); f(); room -= 2 if t == "b" else 1
            if t == "d": nd += 1
            if t == "v": lastv = g
    for a, o in streams: run(o)

def a10_lanes2(k):
    k.e("v_lshrrev_b32 v60, 4, v1", "v_bfe_u32 v61, v1, 2, 2", "v_and_b32 v62, 1, v60", "v_lshlrev_b32 v62, 1, v62",
        "v_lshrrev_b32 v63, 1, v61", "v_or_b32 v62, v62, v63", f"v_xor_b32 v62, s{sW}, v62", "v_lshlrev_b32 v62, 5, v62",
        "v_mul_u32_u24 v60, 3072, v60", "v_lshl_add_u32 v60, v61, 7, v60", "v_add_u32 v60, v60, v62",
        "v_and_b32 v61, 3, v1", f"v_lshl_add_u32 v{Z_TR}, v61, 3, v60")
    k.e("v_and_b32 v60, 15, v1", "v_cmp_eq_u32 s[78:79], 0, v60")
    k.e(f"v_subrev_u32 v{Z_HE}, 16384, v{R0.XE}", f"v_subrev_u32 v{Z_HO}, 16384, v{R0.XO}",
        f"v_add_u32 v{Z_OE}, s49, v{R0.XE}", f"v_add_u32 v{Z_OO}, s49, v{R0.XO}")

def a10_loop(k, first):
    LA = P.k_look
    def sync(s, extra=()):
        k.wait(vm=[("w", s), ("x", s >> 1)] + list(extra)); k.e("s_barrier")
    nxt = [first]
    def dmas(upto):
        out = []
        while nxt[0] <= min(upto, 15):
            n = nxt[0]; nxt[0] += 1
            if n % 2 == 0: out += a10_x(k, n // 2)
            out += a10_w(k, n)
        return out
    def reads(s):
        fb = Z_XF + 24 * (s & 1); off = (s >> 1) * 1024; o = s & 1
        tr = lambda p, j: ("d", lambda: k.ds(f"ds_read_b64_tr_b16 {ar(12*s+4*p+2*j,2)}, v{Z_TR} offset:{(s%NS0)*12288 + p*1024 + j*512}", ("r", s, 0 if p == 0 else 1)))
        xr = lambda d, a, of, grp: ("d", lambda: k.ds(f"ds_read_b128 {vr(d,4)}, v{a} offset:{of}", ("r", s, grp)))
        out = [tr(0, 0), tr(0, 1)] + [xr(fb + 4*t, R0.XO if o else R0.XE, t*16384 + off, 0) for t in range(4)]
        out += [tr(1, 0), tr(1, 1), tr(2, 0), tr(2, 1), xr(fb + 16, Z_HO if o else Z_HE, off, 1), xr(fb + 20, Z_OO if o else Z_OE, off, 1)]
        return out
    l0_background(k)
    pst = pack_stores(k)
    sync(0)
    k.stamp("k0")
    run(reads(0)); run(dmas(LA - 1))
    for s in range(16):
        fb = Z_XF + 24 * (s & 1)
        c = lambda r: "0" if s == 0 else vr(r, 4)
        wq, wk, wv, one = ar(12*s, 4), ar(12*s + 4, 4), ar(12*s + 8, 4), vr(R0.ONE, 4)
        ms = [f"{MF16} {vr(z_acc(t)[0],4)}, {wq}, {vr(fb+4*t,4)}, {c(z_acc(t)[0])}" for t in range(4)]
        for t in [0, 1, 2, 3, "h"]:
            xf = vr(fb + (16 if t == "h" else 4*t), 4)
            ms.append(f"{MF16} {vr(z_acc(t)[1],4)}, {wk}, {xf}, {c(z_acc(t)[1])}")
            ms.append(f"{MF16} {vr(z_acc(t)[2],4)}, {xf}, {wv}, {c(z_acc(t)[2])}")
        ms += [f"{MF16} {vr(Z_CV,4)}, {wq}, {vr(fb+16,4)}, {c(Z_CV)}",
               f"{MF16} {vr(Z_SUM,4)}, {one}, {vr(fb+20,4)}, {c(Z_SUM)}", f"{MF16} {vr(Z_GR,4)}, {vr(fb+20,4)}, {vr(fb+20,4)}, {c(Z_GR)}",
               f"{MF16} {vr(Z_SUMH,4)}, {one}, {vr(fb+16,4)}, {c(Z_SUMH)}", f"{MF16} {vr(Z_GRH,4)}, {vr(fb+16,4)}, {vr(fb+16,4)}, {c(Z_GRH)}"]
        mains = [lambda m=m: k.e(m) for m in ms]
        if s == P.k_pack:
            k.wait(lg="all"); pack_process(k, lambda: None, lambda: None)
        k.wait(lg=[("r", s, 0)])
        streams = [(3, [("s", lambda: k.wait(lg=[("r", s, 1)]))] +
                       [("a", lambda d=d: k.e(f"v_cndmask_b32 v{fb+16+d}, v{fb+16+d}, v{R0.ONE}, s[78:79]")) for d in range(4)])]
        if s + 1 < 16:
            ex = ["pks"] if s + 1 == P.k_atom else []
            assert not ex or not pst, "arrival before the last pack store"
            assert P.k_prep > 14 - LA and (P.k_pack or 0) <= 8 - LA
            ops = [("b", lambda: sync(s + 1, ex))] + reads(s + 1)
            if ex: ops.append(("b", lambda: arrive(k)))
            streams.append((P.k_bar, ops))
            streams.append((0, dmas(s + LA)))
        n = 0; mine = []
        while pst and s >= (P.k_pack or 0) and (n < P.k_pst or pst[0][0] == "a"):
            n += pst[0][0] == "v"; mine.append(pst.pop(0))
        streams.append((P.k_pgap, mine))
        if s == P.k_prep: streams.append((6, tail_prep(k)))
        if s == P.k_touch:
            streams.append((2, [("b", lambda: k.touch(157, "p", ["s_mov_b32 s32, s53"], False)),
                                ("b", lambda: k.touch(158, "q", [f"s_add_u32 s32, s64, {BX1[0]}"], False)),
                                ("b", lambda: k.touch(159, "h", h_base("s32", 0), False) if P.h_touch0 == "k" else None)]))
        if s == P.k_gb: streams.append((1, [("v", lambda t=t: k.vm(t, "gb")) for t in GB_LOADS]))
        if s == P.k_chk: streams.append((1, [("b", lambda: rendezvous(k))]))
        if s == 15 and P.k_chk < 16:
            streams.append((max(P.k_bar, 4), [("b", lambda: (k.e("s_barrier"), k.mark("xfree")))]))
        fill(k, mains, streams)
        if s in (3, 7, 11): k.stamp(f"k{s+1}")
    k.stamp("k16")
    if P.k_chk >= 16: rendezvous(k)

GB_LOADS = [f"buffer_load_dwordx4 {vr(36+4*j,4)}, v{vL16}, {SRD_WS}, s75 offen offset:{j*1024} sc1" for j in range(4)] + \
           [f"buffer_load_dword v{vP}, v172, {SRD_WS}, s77 offen offset:8 sc1"]
def arrive(k):
    k.wait(vm=["tag"])
    k.e(f"v_readfirstlane_b32 s{sTAG}, v170", f"s_cmp_eq_u32 s{sTAG}, 0", "s_cbranch_scc1 L_tag_spin ;np", "L_tag_ok: ;np")
    k.spins += ["L_tag_spin:", f"s_sub_u32 s{sBUD}, s{sBUD}, 1", "s_cbranch_scc1 L_tag_give", f"buffer_load_dword v170, v{vFA}, {SRD_DBG}, 0 offen sc1",
                "s_waitcnt vmcnt(0)", f"v_readfirstlane_b32 s{sTAG}, v170", f"s_cmp_eq_u32 s{sTAG}, 0", "s_cbranch_scc1 L_tag_spin", "s_branch L_tag_ok",
                "L_tag_give:", f"s_mov_b32 s{sBUD}, 0", "s_branch L_tag_ok"]
    k.e(f"v_mov_b32 v176, s{sTAG}", "v_not_b32 v177, v176", f"v_mov_b32 v178, s{sXCC}")
    k.vm(f"buffer_store_dwordx4 v[176:179], v171, {SRD_WS}, s75 offen sc1", "arr")

def rendezvous(k):
    chk = [f"s_not_b32 s32, s{sTAG}"]
    for j in range(4): chk += [f"v_xor_b32 v{36+4*j}, s{sTAG}, v{36+4*j}", f"v_xor_b32 v{37+4*j}, s32, v{37+4*j}"]
    chk += ["v_or3_b32 v36, v36, v37, v40", "v_or3_b32 v44, v44, v45, v41", "v_or3_b32 v36, v36, v48, v49", "v_or_b32 v36, v36, v44", "v_cmp_ne_u32 vcc, 0, v36"]
    k.wait(vm=["gb"])
    k.e(*chk); k.e("s_cbranch_vccnz L_gb_spin ;np", "L_gb_ok: ;np")
    k.spins += ["L_gb_spin:", f"s_sub_u32 s{sBUD}, s{sBUD}, 1", "s_cbranch_scc1 L_gb_give", "s_sleep 2",
                f"buffer_load_dword v170, v{vFA}, {SRD_DBG}, 0 offen sc1", "s_waitcnt vmcnt(0)", "v_readfirstlane_b32 s32, v170", f"s_cmp_eq_u32 s32, s{sTAG}",
                "s_cbranch_scc1 L_gb_same", f"s_mov_b32 s{sTAG}, s32", f"v_mov_b32 v176, s{sTAG}", "v_not_b32 v177, v176",
                f"buffer_store_dwordx4 v[176:179], v171, {SRD_WS}, s75 offen sc1", "L_gb_same:"] + GB_LOADS + ["s_waitcnt vmcnt(0)"] + chk + \
               ["s_cbranch_vccnz L_gb_spin", "s_branch L_gb_ok", "L_gb_give:", f"s_mov_b32 s{sBUD}, 0", "s_branch L_gb_ok"]
    k.e(f"v_cmp_ne_u32 vcc, s{sXCC}, v{vP}", "s_and_b32 s99, vcc_lo, 0xffff" if not P.safe else "s_and_b32 s99, 1, 1",
        f"s_cselect_b32 s{sML}, {OOB>>1:#x}, 0", f"s_cselect_b32 s{sMS}, 0, {OOB>>1:#x}")
    k.mark("gb")

W_OA, W_UA, W_SA, W_RB = 152, 154, 155, 156
def wo_bases(k):
    k.e(f"s_lshl_b32 s32, s{sB}, 2", f"s_add_u32 s32, s32, s{sW}", "s_lshl_b32 s64, s32, 14", f"s_lshl_b32 s33, s{sCS}, 10", "s_add_u32 s64, s64, s33",
        "s_lshr_b32 s32, s32, 1", "s_lshl_b32 s80, s32, 15", "s_lshl_b32 s65, s32, 11", "s_lshl_b32 s66, s32, 3", f"s_add_u32 s66, s66, s{sCS}", "s_lshl_b32 s66, s66, 1",
        f"s_and_b32 s32, s{sW}, 1", "s_add_u32 s66, s66, s32", "s_lshl_b32 s66, s66, 2", "s_lshl_b32 s32, s32, 8", "s_add_u32 s80, s80, s32", "s_add_u32 s65, s65, s32",
        f"s_lshr_b32 s32, s{sCS}, 1", "s_lshl_b32 s32, s32, 9", "s_add_u32 s65, s65, s32", f"s_and_b32 s32, s{sCS}, 1", "s_lshl_b32 s32, s32, 3", "s_add_u32 s65, s65, s32")
def wo_lanes(k):
    x, y = 66, 67
    return [lambda t=t: k.e(*t) for t in (
        [f"v_and_b32 v{x}, 15, v1"], [f"v_lshrrev_b32 v{y}, 4, v1"], [f"v_lshlrev_b32 v{W_OA}, 4, v{x}"], [f"v_lshl_add_u32 v{W_SA}, v{y}, 2, v{W_OA}"],
        [f"v_lshl_add_u32 v{W_OA}, v{y}, 9, v{W_OA}"], [f"v_and_b32 v{W_UA}, 7, v1"], [f"v_lshlrev_b32 v{W_UA}, 4, v{W_UA}"], [f"v_lshl_add_u32 v{W_UA}, v{y}, 7, v{W_UA}"],
        [f"v_lshrrev_b32 v{x}, 3, v{x}"], [f"v_lshl_add_u32 v{W_UA}, v{x}, 13, v{W_UA}"], [f"v_add_u32 v{W_RB}, {6*16384}, v{vL16}"],
        ["v_cmp_gt_u32 vcc, 32, v1", f"v_mov_b32 v{y}, {OOB:#x}", f"v_cndmask_b32 v{W_SA}, v{y}, v{W_SA}, vcc"])]
def blanks(k, layer):
    if not P.tags: return [lambda: k.mark("blank")]
    z = 66
    return [lambda: (k.e(f"v_mov_b32 v{z}, -1"), k.dstore(f"buffer_store_dword v{z}, v{vL16}, {SRD_WS}, s53 offen", "blank")),
            lambda: (k.e(f"s_add_u32 s58, s64, {BX1[layer]}"), k.dstore(f"buffer_store_dword v{z}, v{W_UA}, {SRD_WS}, s58 offen", "blank")),
            lambda: k.dstore(f"buffer_store_dword v{z}, v{W_UA}, {SRD_WS}, s58 offen offset:512", "blank"),
            lambda: (k.e(f"s_add_u32 s58, s65, {BS1[layer]}"), k.dstore(f"buffer_store_dword v{z}, v{W_SA}, {SRD_WS}, s58 offen", "blank"), k.mark("blank"))]
def wo_prepoll(k, layer):
    k.poll_addr(A_PA, 32)
    k.e(f"s_lshl_b32 s32, s{sB}, 7", f"s_add_u32 s{sPO}, s32, {fl(layer, FL_O)}", f"s_add_u32 s59, s80, {BO[layer]}")
    k.bg_held = True
    k.poll_issue(A_PA, "po1"); k.mark("po1")

def dna(k): return regloads(k, sDS, 0, lambda j: ar(192 + 4*j, 4), 16, "dna")

def tail_prep(k):
    R = R0
    A = lambda *t: [("a", lambda x=x: k.e(x)) for x in t]
    B = lambda *t: [("b", lambda: k.e(*t))]
    ops = A("v_and_b32 v73, 15, v1", "v_lshrrev_b32 v74, 4, v1", "v_lshlrev_b32 v73, 10, v73", "v_lshl_add_u32 v73, v74, 4, v73")
    ops += B(f"s_lshl_b32 s58, s{sB}, 2", f"s_add_u32 s58, s58, s{sW}", "s_lshl_b32 s58, s58, 14", f"s_lshl_b32 s59, s{sCS}, 7", "s_add_u32 s58, s58, s59")
    ops += [("v", lambda p=p: k.vm(f"buffer_load_dwordx4 {vr(RES+4*p,4)}, v73, {SRD_X}, s58 offen offset:{p*64}", "res")) for p in range(2)]
    ops += A("v_and_b32 v75, 3, v1", "v_cmp_eq_u32 s[34:35], 1, v75", "v_cmp_eq_u32 s[36:37], 2, v75", "v_cmp_eq_u32 s[38:39], 3, v75", "v_bfe_u32 v75, v1, 2, 2")
    ops += B("v_cmp_eq_u32 vcc, v75, v74", f"v_mov_b32 v72, {L_SA0 + 768}", f"s_lshl_b32 s59, s{sW}, 7", f"v_add_u32 v74, s59, v{R.SA}",
             "v_cndmask_b32 v74, v72, v74, vcc", f"v_cndmask_b32 v75, v72, v{R.SA}, vcc")
    return ops + [("a", f) for f in wo_lanes(k)]

def l0_background(k):
    k.per = dict(P.per_k)
    dd = dna(k)
    bg_list(k, dd[:P.dna_first], "s4", "dna", "gb")
    bg_list(k, wow(k), "s4", "wow", "xfree")
    bg_batches(k, [0, 1, 2, 3], "s2", lambda b: "xfree")
    bg_batches(k, [4], "s2", lambda b: "wobar")
    bg_batches(k, [5], "s2", lambda b: "xfree")
    bg_batches(k, [6, 7, 8, 9], "s2", lambda b: "gubar")
    bg_list(k, dd[P.dna_first:], "s4", "dna")
P.per_k = {"s2": 90, "s4": 70}

def a10_tail(k):
    R = R0
    k.per = dict(P.per_tail0)
    k.stamp("t0 gb")
    k.touch(72, "t", [f"s_add_u32 s32, s65, {BS1[0]}"])
    k.bg_burst(2)
    hk, hv = z_acc("h")[1], z_acc("h")[2]
    for r in range(4):
        k.e(f"v_mov_b32_dpp v{CSQ+r}, v{Z_CV+r} row_newbcast:0 row_mask:0xf bank_mask:0xf", f"v_mov_b32_dpp v{CSK+r}, v{hk+r} row_newbcast:0 row_mask:0xf bank_mask:0xf")
    k.e(f"v_mov_b32 v{CSV}, v{hv}", f"v_mov_b32 v45, v{hv}", f"v_permlane16_swap_b32 v{CSV}, v45", f"v_mov_b32 v45, v{CSV}", f"v_permlane32_swap_b32 v{CSV}, v45")
    fa = Flex(); fb = Flex()
    for fx, S, G, ad, off in ((fa, Z_SUM, Z_GR, 74, 128), (fb, Z_SUMH, Z_GRH, 75, 0)):
        a = lambda txt, c=1, fx=fx: fx.add(lambda: k.e(txt), c)
        a(f"v_cndmask_b32 v{S+1}, v{G}, v{G+1}, s[34:35]"); a(f"v_cndmask_b32 v{S+1}, v{S+1}, v{G+2}, s[36:37]"); a(f"v_cndmask_b32 v{S+1}, v{S+1}, v{G+3}, s[38:39]")
        ln_finish(a, S, S + 1); a(f"v_rsq_f32 v{S+1}, v{S+1}"); fx.skip(1)
        fx.add(lambda S=S, ad=ad, off=off: k.ds(f"ds_write_b64 v{ad}, {vr(S,2)} offset:{off}", "saw"))
    drain([fa, fb], k)
    for f in blanks(k, 0): f()
    k.wait(lg="all"); k.e("s_barrier"); k.mark("xfree")
    k.stamp("t0 bar")
    fx = Flex(); f1 = Flex(); f2 = Flex()
    od = (2, 1, 3, 0, "h"); Ss = (A_STA, 56)
    for f in fix_reads(k, R, od[0], Ss[0]): f()
    for n, t in enumerate(od):
        fix(k, R, fx, t, z_acc(t), 0, True, Ss[n & 1], True, fix_reads(k, R, od[n + 1], Ss[~n & 1]) if n < 4 else ()); fx.skip(1)
    attn(k, R, f1, 2, R.ATT[0]); attn(k, R, f2, 3, R.ATT[1]); ostore(k, f2, 1)
    attn(k, R, f1, 1, R.ATT[0]); attn(k, R, f2, 0, R.ATT[1]); ostore(k, f2, 0)
    f3 = Flex(); f3.dep(("ost", 1))
    for _ in range(P.l0_flag_delay): f3.skip(1)
    f3.add(lambda: (k.wait(vm=[("ost", 1)]), k.flag(1, 89), k.mark("oflag1")))
    f3.dep(("attn", 0)); f3.add(lambda: wo_prepoll(k, 0))
    drain([fx, f1, f2, f3], k)
    k.stamp("a1 end")
P.l0_flag_delay = 6; P.dna_first = 2
P.per_tail0 = {"s2": 70, "s4": 45}

def a11_bases(k):
    out = []
    S = lambda *t: out.extend(lambda x=x: k.e(x) for x in t)
    S(f"s_lshr_b32 s70, s{sW}, 1", "s_lshl_b32 s49, s70, 13", f"s_and_b32 s71, s{sW}, 1", "s_lshl_b32 s71, s71, 2",
      f"s_add_u32 s50, s71, s{sROT}", "s_lshl_b32 s71, s71, 10")
    for i in range(4):
        S(f"s_add_u32 s70, s50, {i}", "s_and_b32 s70, s70, 7", "s_lshl_b32 s70, s70, 10", "s_add_u32 s70, s70, s49", f"s_sub_u32 s{92+i}, s70, {i*1024}")
    S("s_add_u32 s49, s49, s71", f"s_lshl_b32 s47, s{sB}, 16", f"s_add_u32 s47, s47, {WS_X[1]}")
    S(f"s_sub_u32 s48, s{sB}, 1", "s_max_i32 s48, s48, 0", "s_lshl_b32 s51, s48, 10", f"s_add_u32 s51, s51, {WS_HST}",
      "s_lshl_b32 s52, s48, 11", f"s_add_u32 s52, s52, {WS_HXF}", "s_lshl_b32 s48, s48, 14", f"s_add_u32 s48, s48, {WS_HALO}")
    S("v_lshrrev_b32 v28, 4, v1", "v_and_b32 v29, 15, v1", "v_lshlrev_b32 v29, 4, v29", f"v_lshl_add_u32 v{A_U}, v28, 9, v29", f"v_lshl_add_u32 v{A_U+1}, v28, 8, v29")
    S(f"s_lshl_b32 s70, s{sB}, 12", f"s_and_b32 s71, s{sW}, 1", "s_lshl_b32 s71, s71, 8", "s_add_u32 s70, s70, s71", f"s_add_u32 s90, s70, {WS_ST[1]}")
    out.append(lambda: k.e(f"s_lshl_b32 s70, s{sB}, 1", f"s_add_u32 s70, s70, s{sW}", "s_lshl_b32 s72, s70, 13", f"s_lshl_b32 s71, s{sCS}, 10", "s_add_u32 s72, s72, s71",
        f"s_add_u32 s72, s72, {WS_HALO - 16384}", f"s_cmp_ge_u32 s{sW}, 2", f"s_cselect_b32 s72, s72, {OOB>>1:#x}"))
    out.append(lambda: k.e(f"s_lshl_b32 s73, s{sB}, 10", f"s_lshr_b32 s71, s{sCS}, 1", "s_lshl_b32 s71, s71, 8", "s_add_u32 s73, s73, s71", f"s_and_b32 s71, s{sCS}, 1",
        "s_lshl_b32 s71, s71, 3", "s_add_u32 s73, s73, s71"))
    out.append(lambda: k.e(f"s_lshl_b32 s71, s{sW}, 7", "s_add_u32 s73, s73, s71", f"s_add_u32 s73, s73, {WS_HST - 256}",
        f"s_cmp_ge_u32 s{sW}, 2", f"s_cselect_b32 s73, s73, {OOB>>1:#x}"))
    out.append(lambda: k.e(f"s_lshl_b32 s70, s{sB}, 3", f"s_add_u32 s70, s70, s{sCS}", "s_lshl_b32 s70, s70, 1", f"s_add_u32 s70, s70, s{sW}", "s_lshl_b32 s70, s70, 7",
        f"s_add_u32 s70, s70, {WS_HXF - 256}", f"s_cmp_ge_u32 s{sW}, 2", f"s_cselect_b32 s91, s70, {OOB>>1:#x}"))
    return out

def a11_x(k, tile):
    fns = []
    for i in range(4):
        def f(i=i):
            k.set_m0(f"s_add_u32 m0, s49, {A11_POS[tile]*16384}")
            k.e(f"s_add_u32 s32, s{48 if tile == 'h' else 47}, s{92+i}")
            if tile not in (0, "h"): k.e(f"s_add_u32 s32, s32, {tile*16384}")
            k.vm(f"buffer_load_dwordx4 v{vL16}, {SRD_WS}, s32 offen offset:{i*1024} sc1 lds", ("x", tile))
        fns.append(f)
    return fns

def stats_path(k, fx, S, tag, addr, tok, at=0):
    a = lambda txt, c=1: fx.add(lambda: k.e(txt), c)
    s, q = S, S + 1
    fx.add(lambda: k.wait(vm=[tag]), 1, at)
    a(f"v_add_f32 v{s}, v{s}, v{S+2}"); a(f"v_add_f32 v{q}, v{q}, v{S+3}"); fx.skip(1)
    a(f"v_permlane16_swap_b32 v{s}, v{q}", 2); a(f"v_add_f32 v{s}, v{s}, v{q}"); a(f"v_mov_b32 v{q}, v{s}"); fx.skip(1)
    a(f"v_permlane32_swap_b32 v{s}, v{q}", 2); a(f"v_add_f32 v{s}, v{s}, v{q}"); a(f"v_mov_b32 v{q}, v{s}"); fx.skip(1)
    a(f"v_permlane16_swap_b32 v{s}, v{q}", 2)
    ln_finish(a, s, q); a(f"v_rsq_f32 v{q}, v{q}", 2); fx.skip(1)
    fx.add(lambda: (k.ds(f"ds_write_b64 v{addr}, {vr(s,2)} offset:{tok*8}", ("saw", tag)), k.mark(("saw", tag))))

def a11_early(k, later=False):
    fns = a11_x(k, A11_ORDER[0]) + [lambda: k.vm(f"buffer_load_dwordx4 {vr(A_ST,4)}, v{A_U}, {SRD_WS}, s90 offen offset:2048 sc1", "st0")] + a11_x(k, A11_ORDER[1])
    if later: return fns
    for f in fns: f()

def a11_main(k):
    R = R1; order = A11_ORDER
    steps = [(t, s) for t in order for s in range(16)]
    accof = lambda t: A_ACC + 12 * (order.index(t) % 3)
    def xread(i):
        t, s = steps[i]
        off = A11_POS[t] * 16384 + (s >> 1) * 1024
        k.ds(f"ds_read_b128 {vr(A_XF+4*(i%4),4)}, v{R.XO if s&1 else R.XE} offset:{off}", ("xf", i))
    mains = []; fixed = {}; gap_of = {}
    need_sa = {order[1]: ["st0"], order[2]: ["st1"], order[3]: [], "h": []}
    for i, (t, s) in enumerate(steps):
        acc = accof(t); xf = vr(A_XF + 4*(i % 4), 4)
        c = lambda r, s=s: "0" if s == 0 else vr(r, 4)
        ms = []
        if t != "h": ms.append(f"{MF16} {vr(acc,4)}, {ar(12*s,4)}, {xf}, {c(acc)}")
        ms.append(f"{MF16} {vr(acc+4,4)}, {ar(12*s+4,4)}, {xf}, {c(acc+4)}")
        ms.append(f"{MF16} {vr(acc+8,4)}, {xf}, {ar(12*s+8,4)}, {c(acc+8)}")
        gap_of[(t, s)] = len(mains)
        for m in ms: mains.append(lambda m=m: k.e(m))
        last = len(mains) - 1
        fl_ = fixed.setdefault(last, [])
        if i + 1 < len(steps): fl_.append((0, lambda i=i: k.wait(lg=[("xf", i + 1)])))
        j = i + 4
        if j < len(steps):
            tj, sj = steps[j]
            if sj == 0:
                def bar(tj=tj):
                    k.wait(vm=[("x", tj)], lg=[("saw", n) for n in need_sa[tj]]); k.e("s_barrier"); k.mark(("bar", tj))
                fixed.setdefault(gap_of[(t, s)], []).append((1, bar))
            fixed[last].append((1, lambda j=j: xread(j)))
    fx = Flex(); fz = Flex(); fz2 = Flex(); fy = Flex(); fm = Flex()
    k.e(f"s_and_b32 s32, s{sW}, 1", "s_lshl_b32 s32, s32, 7", f"v_add_u32 v7, s32, v{R.SA}")
    o_bases(k, 1)
    stats_path(k, fy, A_ST, "st0", 7, 48)
    g1 = P.a1_late_gap
    fm.add(lambda: (k.wait(vm=[("xst", 1)]), k.flag(2)), 3, P.a1_flag_gap)
    fm.add(lambda: (k.poll_issue(A_PX, "px2"), setattr(k, "bg_held", not P.a1_bg_early)), 1, g1 - P.a1_poll_lead)
    fm.add(lambda: k.poll_check(A_PX, "px2", 2), 2, g1)
    fm.add(lambda: k.vm(f"buffer_load_dwordx4 {vr(56,4)}, v{A_U}, {SRD_WS}, s90 offen sc1", "st1"))
    for t in order[2:4]:
        for f in a11_x(k, t): fm.add(f, 2); fm.skip(P.a1_xgap)
    for f in wo_lanes(k): fy.add(f)
    fy.add(lambda: k.mark("wolanes"), 0)
    fm.dep("wolanes")
    fm.add(lambda: k.e(f"s_add_u32 s58, s64, {WS_X[1]}"))
    for p in range(2): fm.add(lambda p=p: k.vm(f"buffer_load_dwordx4 {vr(RES+4*p,4)}, v{W_UA}, {SRD_WS}, s58 offen offset:{p*512} sc1", "res")); fm.skip(P.a1_xgap)
    def halo_poll():
        k.poll_addr(A_PX, 16, 7)
        k.e(f"s_mov_b32 s{sPO}, s52", f"s_min_u32 s50, s{sB}, 1")
        k.poll_issue(A_PX, "phx"); k.bg_held = False
    fm.add(halo_poll, 3)
    if P.touch1 in (1, 2):
        fm.add(lambda: k.touch(60, "p", ["s_mov_b32 s32, s53"]), 6)
        fm.add(lambda: k.touch(62, "q", [f"s_add_u32 s32, s64, {BX1[1]}"]), 6)
        fm.add(lambda: k.touch(64, "t", [f"s_add_u32 s32, s65, {BS1[1]}"]), 4)
        if P.touch1 > 1: fm.add(lambda: k.touch(66, "h", h_base("s32", 1)), 6)
    for f in blanks(k, 1): fm.skip(P.a1_xgap); fm.add(f, 3)
    stats_path(k, fy, 56, "st1", 7, 16, g1 + 26)
    fm.dep(("bar", order[2]))
    fm.add(lambda: k.poll_check(A_PX, "phx", "s50"), 2)
    fm.add(lambda: k.vm(f"buffer_load_dwordx4 {vr(A_ST,4)}, v{A_U+1}, {SRD_WS}, s51 offen sc1", "sth"))
    for f in a11_x(k, "h"): fm.add(f, 2); fm.skip(P.a1_xgap)
    stats_path(k, fy, A_ST, "sth", R.SA, 0, gap_of[(order[3], P.a1_sth)])
    k.per = dict(P.per_a1); k.bg_held = True
    b5 = batch(k, 5)
    mix = [(f, "s2", ("gw", 4), None) for f in batch(k, 4)] + [(f, "s2", ("gw", 5), None) for f in b5[:3]]
    ww = [(f, "s4", "wow", None) for f in wow(k)]
    while mix or ww:
        k.bg += ww[:2]; ww = ww[2:]
        if mix: k.bg.append(mix.pop(0))
    bg_batches(k, [0], "s2", lambda b: ("bar", order[3]))
    bg_batches(k, [1], "s2", lambda b: ("bar", "h"))
    bg_batches(k, [2, 3], "s2", lambda b: "wobar")
    bg_list(k, b5[3:], "s2", ("gw", 5), "wobar")
    if P.dn1_agpr:
        for j, f in enumerate(regloads(k, sDS, 16*1024, lambda j: ar(4*j, 4), 40, "dnr", tagf=lambda j: ("dnr", 8 + j // 2))): k.bg_add(f, "s4", ("dnr", 8 + j // 2), "gemm_done")
    bg_batches(k, [6, 7, 8, 9], "s2", lambda b: "gubar")
    A = lambda t: (accof(t) if t != "h" else None, accof(t) + 4, accof(t) + 8)
    for n in range(4): fix(k, R, fx, order[n], A(order[n]), gap_of[(order[n + 1], 1 if n < 3 else 2)], False)
    attn(k, R, fz, 3, R.ATT[0]); attn(k, R, fz2, 2, R.ATT[1]); ostore(k, fz2, 1)
    attn(k, R, fz, 1, R.ATT[0])
    fx.dep(("saw", "sth"))
    for f in fix_reads(k, R, "h", A_STA): fx.add(f)
    fx.dep("gemm_done")
    fix(k, R, fx, "h", A("h"), 0, False, pre=True); attn(k, R, fz2, 0, R.ATT[1]); ostore(k, fz2, 0)
    f3 = Flex(); f3.dep(("ost", 1)); f3.skip(P.l1_flag_delay)
    f3.add(lambda: (k.wait(vm=[("ost", 1)]), k.flag(1, 89), k.mark("oflag1")), 3)
    f3.dep(("attn", 0)); f3.add(lambda: wo_prepoll(k, 1))
    k.wait(vm=[("x", order[0])]); k.e("s_barrier")
    for i in range(4): xread(i)
    k.wait(lg=[("xf", 0)])
    k.stamp("a1 first")
    if k.stamping:
        for t in order[1:]: fixed.setdefault(gap_of[(t, 0)], []).append((0, lambda t=t: k.stamp(f"a1 t{t}")))
        for g in range(6, 224, 12): fixed.setdefault(g, []).append((0, lambda g=g: k.stamp(f"fina {g}")))
    run_gaps(k, mains, fixed, [fm, f3, fy, fx, fz2, fz], 2, over=lambda i: i >= P.a1_over)
    print("a11 left:", len(fm), len(fy), len(fx), len(fz), len(fz2), len(k.bg), {n: g for n, g in k.marks.items() if isinstance(n, tuple) and n[0] in ("fix", "attn", "saw", "ost")})
    k.mark("gemm_done"); k.bg_held = P.a1_tailhold
    k.stamp("a1 gemm")
    drain([fm, fy, fx, fz, fz2, f3], k)
    for n in range(2): assert k.marks[("fix", order[n])] < gap_of[(order[n + 3], 0)], "accumulator reused too early"
    k.stamp("a1 end")
P.a1_flag_gap, P.a1_late_gap, P.a1_poll_lead, P.l1_flag_delay, P.a1_over = 8, 36, 18, 14, 48
P.a1_bg_early = False; P.a1_salead = 8; P.a1_tailhold = True; P.touch1 = 1; P.a1_xgap = 3; P.a1_sth = 4
P.per_a1 = {"s2": 95, "s4": 60}

R_W0, R_W1, R_RD, R_ST, R_OUT = 3, 4, 5, 6, 7
def red_setup(k, posA, dAB):
    x, y, z, u = 28, 29, 30, 31
    k.e(f"s_add_u32 s32, s{sGL}, {posA*16384}", f"v_add_u32 v{R_W0}, s32, v{vL16}", f"v_xor_b32 v{R_W1}, 128, v{R_W0}")
    k.e(f"v_and_b32 v{x}, 7, v1", f"v_lshrrev_b32 v{y}, 3, v1", f"s_lshl_b32 s32, s{sW}, 7", f"v_lshl_add_u32 v{z}, v{x}, 4, s32",
        f"v_bfe_u32 v{u}, v1, 4, 1", f"v_lshlrev_b32 v{R_RD}, 7, v{u}", f"v_xor_b32 v{z}, v{z}, v{R_RD}",
        f"v_bfe_u32 v{R_RD}, v1, 3, 2", f"v_lshl_add_u32 v{z}, v{R_RD}, 10, v{z}", f"v_lshrrev_b32 v{R_RD}, 5, v1",
        f"v_mul_u32_u24 v{R_RD}, {dAB*16384}, v{R_RD}", f"v_add_u32 v{z}, v{z}, v{R_RD}", f"v_add_u32 v{R_RD}, {posA*16384}, v{z}")
    k.e(f"v_lshlrev_b32 v{z}, 4, v{x}", f"v_lshl_add_u32 v{z}, v{u}, 2, v{z}", f"v_and_b32 v{u}, 0x28, v1",
        f"v_cmp_eq_u32 vcc, 0, v{u}", f"v_mov_b32 v{u}, {OOB:#x}", f"v_cndmask_b32 v{R_ST}, v{u}, v{z}, vcc")
    k.e(f"v_lshlrev_b32 v{z}, 10, v{x}", f"v_lshl_add_u32 v{R_OUT}, v{y}, 4, v{z}")

def red_bases(k):
    k.e(f"s_lshl_b32 s32, s{sB}, 3", f"s_add_u32 s32, s32, s{sW}", "s_lshl_b32 s55, s32, 13", f"s_lshl_b32 s33, s{sCS}, 10", "s_add_u32 s55, s55, s33")
    k.e("s_lshl_b32 s57, s32, 13", f"s_lshl_b32 s33, s{sCS}, 7", "s_add_u32 s57, s57, s33")
    k.e(f"s_lshl_b32 s56, s{sB}, 12", f"s_lshr_b32 s33, s{sCS}, 1", "s_lshl_b32 s33, s33, 9", "s_add_u32 s56, s56, s33",
        f"s_and_b32 s33, s{sCS}, 1", "s_lshl_b32 s33, s33, 3", "s_add_u32 s56, s56, s33", f"s_lshl_b32 s33, s{sW}, 7", "s_add_u32 s56, s56, s33")

def red_writes(k, acc, g, off, dAB):
    return [lambda q=q: k.ds(f"ds_write_b128 v{R_W1 if (q>>1)&1 else R_W0}, {vr(acc+4*q,4)} offset:{off + (q>>2)*dAB*16384 + (q&3)*1024}", ("rw", g)) for q in range(8)]
def red_reads(k, g, T, off):
    return [lambda w=w, hf=hf: k.ds(f"ds_read_b128 {vr(T+8*w+4*hf,4)}, v{R_RD} offset:{off + w*4096 + hf*512}", ("rr", g, w)) for w in range(4) for hf in range(2)]

def red_finish(k, fx, g, mm, T, xdst, stdst, final, pk):
    a = lambda txt, c=1: fx.add(lambda: k.e(txt), c)
    R = RES + 4 * mm
    def add8(d, s):
        if pk:
            for i in range(0, 8, 2): a(f"v_pk_add_f32 {vr(d+i,2)}, {vr(d+i,2)}, {vr(s+i,2)}")
        else:
            for i in range(8): a(f"v_add_f32 v{d+i}, v{d+i}, v{s+i}")
    fx.add(lambda: k.wait(lg=[("rr", g, 1)]))
    add8(T, T + 8)
    for i in range(4): a(f"v_lshlrev_b32 v{T+8+2*i}, 16, v{R+i}"); a(f"v_and_b32 v{T+9+2*i}, 0xffff0000, v{R+i}")
    add8(T, T + 8)
    fx.add(lambda: k.wait(lg=[("rr", g, 3)]))
    add8(T + 16, T + 24); add8(T, T + 16)
    for i in range(4): a(f"v_cvt_pk_bf16_f32 v{R+i}, v{T+2*i}, v{T+2*i+1}")
    if final:
        fx.add(lambda: (k.e(f"s_add_u32 s32, s57, {mm*32768}"), k.vm(f"buffer_store_dwordx4 {vr(R,4)}, v{R_OUT}, {SRD_OUT}, s32 offen {P.outm}", ("xst", g))))
        return
    fx.add(lambda: (k.e(f"s_add_u32 s32, s55, {xdst + mm*32768}"), k.dstore(f"buffer_store_dwordx4 {vr(R,4)}, v{vL16}, {SRD_WS}, s32 offen", ("xst", g))), 2)
    s, q = T + 32, T + 33
    a(f"v_add_f32 v{s}, v{T}, v{T+1}"); a(f"v_mul_f32 v{q}, v{T}, v{T}"); a(f"v_fmac_f32 v{q}, v{T+1}, v{T+1}")
    for i in range(2, 8): a(f"v_add_f32 v{s}, v{s}, v{T+i}"); a(f"v_fmac_f32 v{q}, v{T+i}, v{T+i}")
    fx.skip(1)
    a(f"v_add_f32_dpp v{s}, v{s}, v{s} row_ror:8 row_mask:0xf bank_mask:0xf"); a(f"v_add_f32_dpp v{q}, v{q}, v{q} row_ror:8 row_mask:0xf bank_mask:0xf")
    fx.skip(1)
    a(f"v_permlane16_swap_b32 v{s}, v{q}", 2); a(f"v_add_f32 v{s}, v{s}, v{q}"); a(f"v_mov_b32 v{q}, v{s}"); fx.skip(1)
    a(f"v_permlane32_swap_b32 v{s}, v{q}", 2); a(f"v_add_f32 v{s}, v{s}, v{q}")
    fx.add(lambda: (k.e(f"s_add_u32 s32, s56, {stdst + mm*2048}"), k.dstore(f"buffer_store_dword v{s}, v{R_ST}, {SRD_WS}, s32 offen", ("xst", g)), k.mark(("xst", g))), 2)

def merge(k, fx, extra, first=0):
    extra = list(extra)
    items = [it for it in fx.items if it[0] != "skip"]; fx.items = []
    per = max(1, (len(items) - first) // max(1, len(extra)))
    for n, it in enumerate(items):
        if n >= first and (n - first) % per == 0 and extra: extra.pop(0)()
        it[1](); k.bg_step()
    for f in extra: f(); k.bg_step()

def wo(k, layer):
    BF, WQ, ACC, T, PA, NQ = 32, 160, 192, 208, A_PA, 8
    state = {}
    def bload(sx):
        k.set_s(f"s_add_u32 s58, s59, {(sx & ~1)*2048}")
        k.vm(f"buffer_load_dwordx4 {vr(BF+4*sx,4)}, v{W_OA}, {SRD_WS}, s58 offen offset:{(sx%2)*2048} sc1", ("b", sx))
    def wread(n): k.ds(f"ds_read_b128 {vr(WQ+4*(n%NQ),4)}, v{W_RB} offset:{n*1024}", ("wq", n))
    k.wait(vm=["wow"]); k.e("s_barrier"); k.mark("wobar")
    k.stamp("wl bar")
    for n in range(NQ): wread(n)
    btxt = lambda sx: [f"s_add_u32 s99, s59, {sx*2048}", f"buffer_load_dwordx4 {vr(BF+4*sx,4)}, v{W_OA}, {SRD_WS}, s99 offen sc1"]
    bchk = lambda sx: k.valid([f"v_cmp_eq_u32 vcc, -1, v{BF+4*sx}"], btxt(sx))
    ptxt = f"buffer_load_dword v{T+20}, v{T+21}, {SRD_WS}, s59 offen sc1"
    if P.tags:
        k.e(f"v_lshlrev_b32 v{T+21}, 8, v{PA}")
        k.e(f"v_or_b32 v{T+21}, v{T+21}, v{PA}", f"v_and_b32 v{T+21}, 0x80007c00, v{T+21}")
        k.poll_check(PA, "po1", 1)
        k.vm(ptxt, "probe")
        for sx in range(P.wo_spec): bload(sx)
        k.e(f"s_lshl_b32 s32, s{sC}, 1", f"s_and_b32 s33, s{sW}, 1", "s_add_u32 s32, s32, s33", "s_lshl_b32 s32, s32, 7", f"s_add_u32 s{sPO}, s32, {fl(layer, FL_O)}")
    else:
        k.e(f"s_add_u32 s{sFO}, s66, {fl(layer, FL_X1)}")
        if P.wo_setup_first == 2: gu_setup(k, layer)
        k.wait(vm=[("ost", 0)]); k.stamp("wl ack"); k.flag(2, 89)
        k.e(f"s_cmp_lt_u32 s{sW}, 2", f"s_cbranch_scc1 L_wo_late{layer}")
        q0 = list(k.vmq)
        k.poll_check(PA, "po1", 1)
        for sx in range(P.wo_lead): bload(sx)
        if P.wo_setup_first == 1: gu_setup(k, layer)
        k.e(f"s_branch L_wo_join{layer}")
        k.label(f"L_wo_late{layer}")
        k.vmq = list(q0)
        if P.wo_setup_first == 1: gu_setup(k, layer)
        k.poll_issue(PA, "po2"); k.wait(vm=["po2"]); k.stamp("wl poll"); k.poll_check(PA, "po2", 2); k.stamp("wl go")
        for sx in range(P.wo_lead): bload(sx)
        k.label(f"L_wo_join{layer}")
    if P.tags or not P.wo_setup_first: gu_setup(k, layer)
    k.stamp("wo issued")
    mains = []; fixed = {}
    for n in range(64):
        sx, j = divmod(n, 4)
        mains.append(lambda n=n, sx=sx, j=j: k.e(f"{MF16} {vr(ACC+4*j,4)}, {vr(WQ+4*(n%NQ),4)}, {vr(BF+4*sx,4)}, {'0' if sx == 0 else vr(ACC+4*j,4)}"))
        fl_ = fixed.setdefault(n, [])
        if n < 63: fl_.append((0, lambda n=n: k.wait(vm=[("b", (n + 1) // 4)] if (n + 1) % 4 == 0 else None, lg=[("wq", n + 1)])))
        if P.tags and n < 63 and (n + 1) % 4 == 0: fl_.append((1, lambda n=n: bchk((n + 1) // 4)))
        if P.tags and n == 42: fl_.append((1, lambda: k.poll_issue(PA, "px1")))
        if n + NQ < 64: fl_.append((1, lambda n=n: wread(n + NQ)))
        if n % P.wo_bstep == 0 and P.wo_lead + n // P.wo_bstep < 16: fl_.append((1, lambda n=n: bload(P.wo_lead + n // P.wo_bstep)))
    fx = Flex()
    a = lambda txt, c=1, at=0: fx.add(lambda: k.e(txt), c, at)
    fx.add(lambda: k.wait(vm=["res"]), 1, 8)
    for i in range(8): a(f"v_lshlrev_b32 v{T+2*i}, 16, v{RES+i}"); a(f"v_and_b32 v{T+2*i+1}, 0xffff0000, v{RES+i}")
    k.per = dict(P.per_wo[layer]); k.bg_held = False; k.bg_next = k.t + P.wo_bg_delay
    if P.tags:
        k.wait(vm=["probe"])
        k.valid([f"v_cmp_eq_u32 vcc, -1, v{T+20}"], [ptxt] + sum([btxt(x) for x in range(P.wo_spec)], []))
        state["fresh"] = True
        for sx in range(P.wo_spec, P.wo_lead): bload(sx)
    k.wait(vm=[("b", 0)], lg=[("wq", 0)])
    if P.tags: bchk(0)
    k.stamp("wo first")
    fixed[P.wo_bg_stop].append((0, lambda: setattr(k, "bg_held", True)))
    run_gaps(k, mains, fixed, [fx], 2)
    drain([fx], k)
    k.stamp("wo gemm")
    for i in range(0, 16, 2): k.e(f"v_pk_add_f32 {vr(T+i,2)}, {vr(T+i,2)}, {vr(ACC+i,2)}")
    k.e(f"s_add_u32 s58, s64, {BX1[layer]}")
    for p in range(2):
        for i in range(4): k.e(f"v_cvt_pk_bf16_f32 v{RES+4*p+i}, v{T+8*p+2*i}, v{T+8*p+2*i+1}")
        k.dstore(f"buffer_store_dwordx4 {vr(RES+4*p,4)}, v{W_UA}, {SRD_WS}, s58 offen offset:{p*512}", "xst")
    S, Q = T + 16, T + 18
    k.e(f"v_pk_add_f32 {vr(S,2)}, {vr(T,2)}, {vr(T+2,2)}", f"v_pk_mul_f32 {vr(Q,2)}, {vr(T,2)}, {vr(T,2)}", f"v_pk_fma_f32 {vr(Q,2)}, {vr(T+2,2)}, {vr(T+2,2)}, {vr(Q,2)}")
    for i in range(4, 16, 2): k.e(f"v_pk_add_f32 {vr(S,2)}, {vr(S,2)}, {vr(T+i,2)}", f"v_pk_fma_f32 {vr(Q,2)}, {vr(T+i,2)}, {vr(T+i,2)}, {vr(Q,2)}")
    k.e(f"v_add_f32 v{S}, v{S}, v{S+1}", f"v_add_f32 v{Q}, v{Q}, v{Q+1}", f"s_add_u32 s58, s65, {BS1[layer]}",
        f"v_permlane16_swap_b32 v{S}, v{Q}", f"v_add_f32 v{S}, v{S}, v{Q}", f"v_mov_b32 v{Q}, v{S}", f"v_permlane32_swap_b32 v{S}, v{Q}", f"v_add_f32 v{S}, v{S}, v{Q}")
    k.dstore(f"buffer_store_dword v{S}, v{W_SA}, {SRD_WS}, s58 offen", "xst")
    key = lambda it: it[2][1] if (isinstance(it[2], tuple) and it[2][0] == "gw") else 11.5
    k.bg.sort(key=key)
    print(f"wo{layer} done, background left:", [it[2] for it in k.bg][::4])
    k.bg_burst(P.wo_win[layer])
    k.stamp("wo end")
P.wo_bg_delay = 750; P.wo_bg_stop = 63; P.wo_lead = 6; P.wo_spec = 3; P.gu_spec = 3; P.wo_bstep = 2
P.wo_poll_gap = 1; P.wo_late_gap = 7; P.wo_hold = True; P.wo_win = [4, 4]; P.wo_var = 'B'; P.wo_prew = 2
P.per_wo = [{"s2": 20, "s4": 20}] * 2

G_RB, G_C1, G_VV, G_AUG, G_X, G_ACC, G_WF, G_T = 3, 6, 7, 28, 32, 160, 224, 240
D_WV, D_BF, D_ACC, D_T, D_WF, D_RB, D_PA = 32, 64, 128, 192, 228, 112, 115
DN_SEQ = [(g, e) for g in range(2) for e in range(28)]
DN_GROUPS = [1, 0]
def h_loader(k, layer):
    def bload(i):
        if i == 0:
            k.e(f"s_mul_i32 s32, s{sB}, {224*KB}", f"s_mul_i32 s33, s{sW}, {28*KB}", "s_add_u32 s32, s32, s33", f"s_add_u32 s59, s32, {BH[layer]}")
            for p in range(4):
                k.e(f"s_add_u32 s32, s{sCS}, {p}", f"s_and_b32 s32, s32, {3 if P.hrot else 0}", f"s_mul_i32 s32, s32, {7*KB}", f"s_add_u32 s{34+p}, s59, s32")
                if not P.hrot: k.e(f"s_add_u32 s{34+p}, s{34+p}, {7*KB*p}")
        g, e = DN_SEQ[i]; p, tl = divmod(KK_OF[e], 7)
        k.set_s(f"s_add_u32 s58, s{34+p}, {DN_GROUPS[g] * 112 * KB + (tl & 4) * 1024}")
        k.vm(f"buffer_load_dwordx4 {vr(D_BF+4*(i%P.dn_lead),4)}, v{vL16}, {SRD_WS}, s58 offen offset:{(tl & 3)*1024} sc1", ("b", i))
    return bload

def gu_setup(k, layer):
    T = G_T; XA = T + 3
    k.e(*gu_tile("s50"))
    k.e(f"v_and_b32 v{T}, 31, v1")
    k.e(f"v_mov_b32 v{G_RB}, v{vL16}", f"v_add_u32 v{G_RB+1}, 0x10000, v{vL16}", f"v_add_u32 v{G_RB+2}, 0x20000, v{vL16}")
    k.e(f"v_lshrrev_b32 v{T+1}, 5, v1", f"v_lshlrev_b32 v{G_AUG+3}, 4, v{T}", f"v_lshl_add_u32 v{G_AUG+3}, v{T+1}, 10, v{G_AUG+3}")
    k.e(f"v_lshrrev_b32 v{XA}, 3, v{T}", f"v_lshlrev_b32 v{XA}, 13, v{XA}", f"v_lshl_add_u32 v{XA}, v{T+1}, 7, v{XA}",
        f"v_and_b32 v{T}, 7, v1", f"v_lshl_add_u32 v{XA}, v{T}, 4, v{XA}")
    k.e("s_lshl_b32 s32, s50, 11", f"s_add_u32 s51, s32, {BS1[layer]}")
    k.e("s_lshl_b32 s32, s50, 15", f"s_add_u32 s52, s32, {BX1[layer]}", "s_add_u32 s53, s52, 4096")
    k.e(*h_base("s54", layer))
    k.e("s_lshr_b32 s32, s50, 1", "s_lshl_b32 s32, s32, 4", f"s_add_u32 s32, s32, s{sM}",
        "s_lshl_b32 s32, s32, 1", "s_and_b32 s33, s50, 1", "s_add_u32 s32, s32, s33", "s_lshl_b32 s32, s32, 2", f"s_add_u32 s81, s32, {fl(layer, FL_H)}")

def gu(k, layer):
    T = G_T; XA = T + 3; PA = T + 2
    if P.tags: k.poll_check(A_PA, "px1", 1)
    else:
        def pa():
            k.poll_addr(PA, 16)
            k.e("s_lshl_b32 s32, s50, 6", f"s_add_u32 s{sPO}, s32, {fl(layer, FL_X1)}")
        if not P.gu_pa_late: pa()
        k.wait(vm=["xst"]); k.flag(1)
        if P.gu_pa_late: pa()
        k.stamp("x1 flag")
        if not P.gu_bar_first: k.poll_issue(PA, "px1")
    k.e(f"s_mov_b32 s{sFO}, s81")
    seq = [(t, ks) for ks in range(33) for t in range(3)] + [(t, ks) for t in range(3, 7) for ks in range(33)]
    accof = {0: 0, 1: 1, 2: 2, 3: 3, 4: 0, 5: 1, 6: 2}
    NW = P.gu_nw
    WQ = [G_WF, G_WF + 4, G_WF + 8, G_WF + 12, T + 12]
    def wread(n):
        slot = (n % 160) * 1024
        k.ds(f"ds_read_b128 {vr(WQ[n%NW],4)}, v{G_RB + (slot>>16)} offset:{slot & 0xffff}", ("wf", n))
    BARS = P.gu_bars[layer]
    cover = lambda bi: [("gw", b) for b in range(bi, min([x for x in BARS if x > bi] + [15]))]
    def ringbar():
        k.wait(vm=cover(0)); k.e("s_barrier"); k.mark("gubar")
        for n in range(NW): wread(n)
    if P.gu_bar_first: ringbar(); k.poll_issue(PA, "px1")
    if not P.tags: k.poll_check(PA, "px1", 1)
    k.stamp("gu go")
    xtxt = lambda kg: f"buffer_load_dwordx4 {vr(G_X+4*kg,4)}, v{XA}, {SRD_WS}, s{52 + (kg>>4)} offen offset:{((kg>>2)&3)*1024 + (kg&3)*256} sc1"
    def xload(kg): k.vm(xtxt(kg), ("gx", kg))
    xchk = lambda kg: k.valid([f"v_cmp_eq_u32 vcc, -1, v{G_X+4*kg}"], [xtxt(kg)])
    stxt = [f"buffer_load_dwordx4 {vr(T+4+4*h,4)}, v{G_AUG+3}, {SRD_WS}, s51 offen offset:{512*h} sc1" for h in range(2)]
    if P.tags:
        for t_ in stxt: k.vm(t_, "gst")
        for kg in range(P.gu_spec): xload(kg)
        k.wait(vm=["gst"])
        k.valid([f"v_max3_u32 v{T}, v{T+4}, v{T+6}, v{T+8}", f"v_max_u32 v{T}, v{T}, v{T+10}", f"v_cmp_eq_u32 vcc, -1, v{T}"],
                stxt + [xtxt(x) for x in range(P.gu_spec)])
        k.stamp("gu probe")
        for kg in range(P.gu_spec, P.gu_lead): xload(kg)
    else:
        for kg in range(P.gu_lead): xload(kg)
        for t_ in stxt: k.vm(t_, "gst")
    if not P.gu_bar_first: ringbar()
    mains = []; fixed = {}
    xpos = {}
    for kg in range(P.gu_lead, 32): xpos.setdefault(int((kg - P.gu_lead) * P.gu_xstep), []).append(kg)
    for n, (t, ks) in enumerate(seq):
        acc = G_ACC + 16 * accof[t]
        b = vr(G_AUG, 4) if ks == 32 else vr(G_X + 4*ks, 4)
        c = "0" if ks == 0 else vr(acc, 16)
        mains.append(lambda n=n, acc=acc, b=b, c=c: k.e(f"{MF32} {vr(acc,16)}, {vr(WQ[n%NW],4)}, {b}, {c}"))
        fl_ = fixed.setdefault(n, [])
        if n + 1 < len(seq):
            t2, ks2 = seq[n + 1]
            need = [("gx", ks2)] if (t2 == 0 and ks2 < 32) else None
            fl_.append((0, lambda n=n, need=need: k.wait(vm=need, lg=[("wf", n + 1)])))
            if need and P.tags: fl_.append((2, lambda ks2=ks2: xchk(ks2)))
        j = n + NW
        if j < len(seq):
            if j % 16 == 0 and j // 16 in BARS:
                fl_.append((2, lambda bi=j//16: (k.wait(vm=cover(bi)), k.e("s_barrier"), [k.mark(("gbar", b)) for b in range(bi + 1)])))
            fl_.append((1, lambda j=j: wread(j)))
        for kg in xpos.get(n, []): fl_.append((1, lambda kg=kg: xload(kg)))
    xend = max(xpos)
    tail = [it for it in k.bg if it[2] == "dna" or it[2][0] == "dnr"]; k.bg = [it for it in k.bg if not (it[2] == "dna" or it[2][0] == "dnr")]
    bg_batches(k, [10, 11], "s2", lambda b: ("gbar", b - 8))
    mid = []
    for b in (12, 13, 14):
        for f in batch(k, b): mid.append((f, "s2", ("gw", b), ("gbar", b - 8)))
    while mid or tail:
        if mid: k.bg.append(mid.pop(0))
        if tail: k.bg.append(tail.pop(0))
    direct = layer == 1 and P.dn1_agpr
    if not direct: bg_batches(k, range(15, 23), "s4", lambda b: ("gbar", b - 8))
    k.per = dict(P.per_guA[layer]); k.bg_held = False; k.bg_next = k.t + P.gu_bg_delay
    fixed[xend].append((0, lambda: setattr(k, "per", dict(P.per_guB[layer]))))
    fv = Flex()
    dv = regloads(k, sDS, 48*1024, lambda j: vr(D_WV + 4*j, 4), 8, "dnv")
    k.hload = h_loader(k, layer)
    if direct: pass
    elif P.hpre:
        bg_list(k, dv, "s4", "dnv", "xdead")
        fixed[207].append((0, lambda: k.mark("xdead")))
    else:
        for j, f in enumerate(dv): fv.add(f, 1, 198 + 2 + 3*j)
    fx = Flex()
    a = lambda txt, c=1, at=0: fx.add(lambda: k.e(txt), c, at)
    fx.add(lambda: k.wait(vm=["gst"]), 1, 3 * P.gu_lead)
    a(f"v_add_f32 v{T+4}, v{T+4}, v{T+6}"); a(f"v_add_f32 v{T+5}, v{T+5}, v{T+7}"); a(f"v_add_f32 v{T+8}, v{T+8}, v{T+10}"); a(f"v_add_f32 v{T+9}, v{T+9}, v{T+11}")
    a(f"v_add_f32 v{T+4}, v{T+4}, v{T+8}"); a(f"v_add_f32 v{T+5}, v{T+5}, v{T+9}"); fx.skip(1)
    a(f"v_permlane32_swap_b32 v{T+4}, v{T+5}", 2); a(f"v_add_f32 v{T+4}, v{T+4}, v{T+5}"); a(f"v_mov_b32 v{T+5}, v{T+4}"); fx.skip(1)
    a(f"v_permlane32_swap_b32 v{T+4}, v{T+5}", 2)
    ln_finish(a, T + 4, T + 5)
    a(f"v_mov_b32 v{G_VV}, v{T+5}")
    a(f"v_rsq_f32 v{G_C1}, v{T+5}", 2); a(f"v_cvt_pk_bf16_f32 v{G_AUG}, v{T+4}, v{T+4}"); a(f"v_mul_f32 v{G_C1}, {f2u(-LOG2E):#x}, v{G_C1}")
    a(f"v_and_b32 v{T+5}, 0xffff0000, v{G_AUG}"); a(f"v_sub_f32 v{T+5}, v{T+4}, v{T+5}"); a(f"v_mov_b32 v{G_AUG+2}, 0")
    a(f"v_cvt_pk_bf16_f32 v{G_AUG+1}, v{T+5}, v{G_AUG+2}"); a(f"v_mov_b32 v{G_AUG+3}, 0")
    fx.add(lambda: k.mark("aug"), 0)
    def epi(t, at):
        acc = G_ACC + 16 * accof[t]; hp = T + 8; E = T + 4
        if P.x_noepi: a("s_nop 0", 1, at)
        for i0 in range(0, 8 if not P.x_noepi else 0, 2):
            for i in (i0, i0 + 1): a(f"v_mul_f32 v{E+(i&1)}, v{G_C1}, v{acc+i}", 1, at)
            for i in (i0, i0 + 1): a(f"v_exp_f32 v{E+(i&1)}, v{E+(i&1)}", 2)
            for i in (i0, i0 + 1): a(f"v_mul_f32 v{E+2+(i&1)}, v{acc+i}, v{acc+8+i}")
            for i in (i0, i0 + 1): a(f"v_fma_f32 v{E+(i&1)}, v{E+(i&1)}, v{G_VV}, v{G_VV}")
            for i in (i0, i0 + 1): a(f"v_rcp_f32 v{E+(i&1)}, v{E+(i&1)}", 2)
            fx.skip(1)
            for i in (i0, i0 + 1): a(f"v_mul_f32 v{E+2+(i&1)}, v{E+2+(i&1)}, v{E+(i&1)}")
            a(f"v_cvt_pk_bf16_f32 v{hp+i0//2}, v{E+2}, v{E+3}")
        fx.add(lambda: k.mark(("epi", t)), 0)
        if t == 4: a("s_add_u32 s54, s54, 4096")
        fx.add(lambda: ((k.dstore if ((layer and P.h1_plain) or (not layer and P.h_touch0)) else lambda x, tg: k.vm(x + " sc1", tg))(f"buffer_store_dwordx4 {vr(hp,4)}, v{vL16}, {SRD_WS}, s54 offen offset:{(t%4)*1024}", ("hst", t)), k.mark(("hst", t))), 2)
    end = {t: max(n for n, x in enumerate(seq) if x[0] == t) for t in range(7)}
    for t in range(6): epi(t, end[t] + 3)
    if layer == 0 and P.h_touch0 == "g": fixed[xend + 1].append((5, lambda: k.touch(T, "h", ["s_mov_b32 s32, s54"])))
    ff = Flex(); ff.dep(("hst", 3))
    if layer == 0:
        tx = [lambda: k.touch(T, "p", [f"s_add_u32 s32, s55, {WS_X[1]}"]), lambda: k.touch(T + 1, "s", [f"s_add_u32 s32, s56, {WS_ST[1]}"])]
        if P.x2_touch == "h3": ff.add(tx[0], 6); ff.add(tx[1], 4)
        elif isinstance(P.x2_touch, int): fixed[P.x2_touch].append((5, tx[0])); fixed[P.x2_touch + 1].append((4, tx[1]))
        if "g" in str(P.touch1):
            for f in touch_next(k, T + 2)[:2]: ff.skip(1); ff.add(f, 6)
    ff.skip(P.gu_flag_delay)
    ff.add(lambda: (k.wait(vm=[("hst", 3)]), k.flag(1)), 3)
    def hpoll():
        k.wait(vm=["touch"] if "touch" in k.seen else None)
        k.poll_addr(T, 8)
        k.e(f"s_lshl_b32 s32, s{sB}, 7", f"s_lshl_b32 s33, s{sW}, 5", "s_add_u32 s32, s32, s33", f"s_add_u32 s{sPO}, s32, {fl(layer, FL_H)}")
        k.poll_issue(T, "ph1")
    if P.hpre:
        ff.add(hpoll, 4, P.hp_chk - 12)
        ff.add(lambda: (k.poll_check(T, "ph1", 1), setattr(k, "bg_held", True)), 3, P.hp_chk)
        for j in range(P.hpre): ff.add(lambda j=j: k.hload(j), 2, max(208 + j, int(P.hp_chk + 1 + j * P.hp_step)))
    else: ff.add(hpoll, 4, 228)
    k.wait(vm=[("gx", 0)], lg=[("wf", 0)])
    if P.tags: xchk(0)
    k.stamp("gu first")
    if k.stamping:
        for g in (48, 98, 131, 164, 197): fixed[g].append((0, lambda g=g: k.stamp(f"gu m{g}")))
    fixed[93].append((0, lambda: k.marks["aug"]))
    run_gaps(k, mains, fixed, [fv, ff, fx], P.gu_cap)
    print("gu left:", len(k.bg), len(fv), len(ff), len(fx), {n: g for n, g in k.marks.items() if isinstance(n, tuple) and n[0] == "hst"})
    k.stamp("gu gemm")
    for g, t in {132: 0, 165: 1, 198: 2}.items(): assert k.marks[("epi", t)] < g, "accumulator reused too early"
    epi(6, 0); drain([ff, fv, fx], k)
    k.e(f"v_mov_b32 v{D_PA}, v{T}")
    k.stamp("gu end")
P.x2_touch = 'h3'; P.dn_x2 = 2; P.hrot = 0; P.gu_bars = [list(range(15)), [0, 3, 6, 9, 12]]; P.hpre = 0; P.hp_chk = 208; P.hp_step = 2.2; P.gu_flag_delay = 10; P.gu_xstep = 2.6; P.gu_bg_delay = 300
P.per_guA = [{"s2": 120, "s4": 120}, {"s2": 160, "s4": 160}]
P.per_guB = [{"s2": 90, "s4": 55}, {"s2": 80, "s4": 50}]

def dn(k, layer):
    final = layer == 1
    NB = P.dn_lead; T = D_T
    groups = DN_GROUPS; seq = DN_SEQ; bload = k.hload
    early = Flex()
    def rb(): k.e(f"v_add_u32 v{D_RB}, s{sGL}, v{vL16}", f"v_add_u32 v{D_RB+1}, 0x10000, v{D_RB}", f"v_add_u32 v{D_RB+2}, 0x20000, v{D_RB}")
    if P.hpre:
        for i in range(P.hpre, NB): bload(i)
        rb()
        class Rec:
            def e(self, *t):
                if any("vcc" in x or "s32" in x for x in t): early.add(lambda: k.e(*t), len(t))
                else:
                    for x in t: early.add(lambda x=x: k.e(x))
        red_setup(Rec(), 3, 1)
        early.add(lambda: (k.wait(vm=[("hst", 6)]), k.flag(2), k.poll_issue(D_PA, "ph2"), k.e(f"s_add_u32 s{sFO}, s89, {FL_X2 - FL_O}")), 5, P.dn_fgap)
    else:
        k.poll_check(D_PA, "ph1", 1)
        k.stamp("dn early")
        k.bg_held = True
        for i in range(P.dn_pre): bload(i)
        red_setup(k, 3, 1); rb()
        k.wait(vm=[("hst", 6)]); k.flag(2)
        if P.dn_pollstep is None: k.poll_issue(D_PA, "ph2")
        for i in range(P.dn_pre, NB): bload(i)
        k.e(f"s_add_u32 s{sFO}, s89, {FL_X2 - FL_O}")
    k.per = dict(P.per_dn0); k.bg_held = False
    direct = final and P.dn1_agpr
    lds = [(i, nn) for i, (g, e) in enumerate(seq) if 8 <= e < 24 and not direct for nn in range(2)]
    slot_of = {x: n for n, x in enumerate(lds)}
    NWF = 6
    def wread(n):
        i, nn = lds[n]; j = 2 * (seq[i][1] - 8) + nn; b = 15 + (j >> 2)
        ad = (b % 10) * 16384 + (j & 3) * 1024
        if seq[i][0] == 0: k.wait(vm=[("gw", b)])
        k.ds(f"ds_read_b128 {vr(D_WF+4*(n%NWF),4)}, v{D_RB + (ad>>16)} offset:{ad & 0xffff}", ("wf", n))
    def wfrag(i, nn):
        e = seq[i][1]
        if e < 8: return ar(192 + 8*e + 4*nn, 4)
        if direct: return ar(8*(e - 8) + 4*nn, 4)
        if e >= 24: return vr(D_WV + 8*(e - 24) + 4*nn, 4)
        return vr(D_WF + 4*(slot_of[(i, nn)] % NWF), 4)
    mains = []; fixed = {}
    NT = P.dn_tail
    assert NT <= 4
    order = [(i, nn) for i in range(56 - NT) for nn in range(2)] + [(i, nn) for nn in range(2) for i in range(56 - NT, 56)]
    for pos, (i, nn) in enumerate(order):
        g, e = seq[i]
        if True:
            acc = D_ACC + 32 * g + 16 * nn
            mains.append(lambda i=i, nn=nn, acc=acc, e=e: k.e(f"{MF32} {vr(acc,16)}, {wfrag(i,nn)}, {vr(D_BF+4*(i%NB),4)}, {'0' if e == 0 else vr(acc,16)}"))
            gp = len(mains) - 1; fl_ = fixed.setdefault(gp, [])
            nx = order[pos + 1] if pos + 1 < len(order) else None
            vmn = [("b", nx[0])] if (nx and nx[1] == 0) else None
            lgn = [("wf", slot_of[nx])] if nx in slot_of else None
            if nx == (24, 0) and not direct: vmn = vmn + ["dnv"]
            if direct and nx and nx[0] in range(8, 28) and nx[1] == 0: vmn = vmn + [("dnr", nx[0])]
            fl_.append((0, lambda vmn=vmn, lgn=lgn: k.wait(vm=vmn, lg=lgn)))
            ah = (i + 2, nn)
            if ah in slot_of: fl_.append((1, lambda n=slot_of[ah]: wread(n)))
    nxt = NB; pend = 0
    for i in range(len(seq)):
        fl_ = fixed[2*i + 1]
        if i == P.dn_late: fl_.append((2, lambda: (k.poll_check(D_PA, "ph2", 2), k.stamp("dn late"), k.mark("late"))))
        n = 0
        while nxt < len(seq) and nxt <= i + NB and n < 2 and (nxt < 16 or i >= P.dn_late):
            fl_.append((1, lambda j=nxt: bload(j))); nxt += 1; n += 1
        if i == P.dn_pollstep and not P.hpre: fl_.append((1, lambda: k.poll_issue(D_PA, "ph2")))
        if nxt == len(seq) and not pend: pend = 2*i + 2
    fixed[20].append((1, lambda: k.e("s_barrier")))
    for mm in range(2):
        fixed[40 + 4*mm].append((2, lambda mm=mm: (k.e(f"s_add_u32 s32, s55, {BX1[layer] + mm*32768}"),
                                                   k.vm(f"buffer_load_dwordx4 {vr(RES+4*mm,4)}, v{vL16}, {SRD_WS}, s32 offen sc1", "res"))))
    fw = Flex(); fs = Flex()
    for q, f in enumerate(red_writes(k, D_ACC, 0, 0, 1)): fw.add(f, 1, 58 + 2*q)
    fw.add(lambda: (k.wait(lg=[("rw", 0)]), k.e("s_barrier")), 2, 76)
    for f in red_reads(k, 0, T, 0): fw.add(f, 2)
    fw.add(lambda: k.wait(vm=["res"]))
    red_finish(k, fw, 0, groups[0], T, WS_X[1], WS_ST[1], final, False)
    if not final:
        fw.add(lambda: k.vm(f"buffer_store_dwordx4 {vr(RES+4,4)}, v{vL16}, {SRD_WS}, s72 offen sc1", "hxs"))
        fw.add(lambda: k.vm(f"buffer_store_dword v{T+32}, v{R_ST}, {SRD_WS}, s73 offen sc1", "hxs"))
        fw.skip(P.dn_flag_delay); fw.add(lambda: (k.wait(vm=[("xst", 0)]), k.flag(1)), 3)
        if P.x2_touch == "dn":
            fixed[P.dn_x2].append((5, lambda: k.touch(226, "p", [f"s_add_u32 s32, s55, {WS_X[1]}"])))
            fixed[P.dn_x2 + 1].append((4, lambda: k.touch(227, "s", [f"s_add_u32 s32, s56, {WS_ST[1]}"])))
            fs.add(lambda: k.wait(vm=["touch"]), 1, P.dn_x2 + 2)
        if "d" in str(P.touch1):
            for q, f in enumerate(touch_next(k, 28)): fixed[P.dn_touch + 2*q].append((5, f))
        fs.dep("late")
        for f in a11_bases(k) + a1_setup(k, 1): fs.add(f)
        fs.add(lambda: (k.poll_addr(A_PX, 32), k.e(f"s_lshl_b32 s32, s{sB}, 7", f"s_add_u32 s{sPO}, s32, {fl(0, FL_X2)}")), 4)
    wtail = red_writes(k, D_ACC + 32, 1, 2*16384, 1)
    if NT:
        for q in range(min(4, NT)): fixed[min(111, 112 - NT + 1 + q)].append((4, wtail.pop(0)))
    k.wait(vm=["dna", ("b", 0)])
    k.stamp("dn first")
    if k.stamping:
        fixed[55].append((0, lambda: k.stamp("dn p1")))
        for g in range(7, 111, 8): fixed[g].append((0, lambda g=g: k.stamp(f"find {g}")))
    run_gaps(k, mains, fixed, [early, fw, fs], 6)
    print("dn left:", len(k.bg), len(fw), len(fs), "last h load at gap", pend)
    k.stamp("dn gemm")
    assert not fs.items
    ws = wtail
    if not final and P.dn_fin_first != 2: ws.insert(len(ws) - 4, lambda: k.poll_issue(A_PX, "px0"))
    if not final and P.dn_fin_first == 2: ws.append(lambda: k.poll_issue(A_PX, "px0"))
    merge(k, fw, ws)
    k.wait(lg=[("rw", 1)]); k.e("s_barrier")
    k.stamp("dn red")
    for f in red_reads(k, 1, T, 2*16384): f()
    def nxt():
        k.poll_check(A_PX, "px0", 1)
        k.wait(vm=["hxs"]); k.flag(1, 91, "sc1")
        a11_early(k)
    if not final:
        k.bg_held = True
        if not P.dn_fin_first: nxt()
    f1 = Flex(); red_finish(k, f1, 1, groups[1], T, WS_X[1], WS_ST[1], final, True)
    if not final and P.dn_fin_first == 2:
        ex = [lambda: k.poll_check(A_PX, "px0", 1)] + a11_early(k, True) + [lambda: (k.wait(vm=["hxs"]), k.flag(1, 91, "sc1"))]
        merge(k, f1, ex, P.dn_mfirst)
    else: drain([f1], k)
    if not final and P.dn_fin_first == 1: nxt()
    k.stamp("dn end")
P.dn_mfirst = 8; P.dn_pollstep = 0; P.dn_fin_first = 2; P.dn_tail = 0; P.dn_touch = 88; P.dn_flag_delay = 4; P.dn_pre = 6; P.dn_late = 9; P.dn_fgap = 6
P.dn_wow = 6; P.per_dn = {"s4": 110, "s2": 130}; P.per_dn0 = {"s4": 60, "s2": 60}

def build(stamps=False, only=None):
    k = F(); k.stamping = stamps; k.only = only; k.st = P.dst; k.rt = P.rt
    name = NAME + "_kernel"
    k.e(".p2align 8", f".globl {name}", f".type {name},@function"); k.label(name)
    if stamps: k.e("s_memrealtime s[92:93]", "s_memtime s[94:95]")
    k.e("s_cmp_ge_u32 s2, 256", "s_cbranch_scc1 L_end")
    k.e("s_load_dwordx16 s[64:79], s[0:1], 0", "s_load_dwordx4 s[80:83], s[0:1], 64", "s_memrealtime s[96:97]")
    k.e("s_getpc_b64 s[100:101]")
    k.e("L_pc: ;np")
    k.e("s_mov_b32 s24, s100", "s_mov_b32 s25, s101", "s_mov_b32 s26, L_end-L_pc", "s_mov_b32 s27, 0x20000",
        "v_and_b32 v1, 63, v0", "v_lshrrev_b32 v2, 6, v0", "s_lshr_b32 s33, s2, 3", "s_mul_i32 s32, s33, 43", "s_lshr_b32 s32, s32, 8",
        "s_mul_i32 s32, s32, 6", "s_sub_u32 s32, s33, s32", "s_lshl_b32 s32, s32, 13", "v_lshlrev_b32 v3, 11, v2", "v_lshl_add_u32 v3, v1, 7, v3",
        f"v_mov_b32 v4, {OOB:#x}", "v_cmp_gt_u32 vcc, 16, v1", f"v_readfirstlane_b32 s{sW}, v2", "v_cndmask_b32 v3, v4, v3, vcc")
    if P.code0: k.vm(f"buffer_load_dword v175, v3, {SRD_PK}, s32 offen", "code")
    k.e("s_and_b32 s32, s2, 7", f"s_and_b32 s{sM}, s33, 15", "s_lshr_b32 s33, s33, 4", "s_lshl_b32 s32, s32, 1", f"s_add_u32 s{sC}, s32, s33")
    k.e(f"s_lshr_b32 s33, s{sM}, 3", f"s_lshl_b32 s{sB}, s{sC}, 1", f"s_add_u32 s{sB}, s{sB}, s33", f"s_and_b32 s{sCS}, s{sM}, 7")
    k.e("v_lshlrev_b32 v2, 4, v1")
    a10_lanes(k)
    k.e("s_waitcnt lgkmcnt(0)")
    srd(k, 12, 64, 2048 * 1024); srd(k, 16, 66, 512 * 3072)
    k.e(f"s_or_b32 s{sTAG}, s96, 1")
    if stamps:
        k.stamps += ["rt0", "start"]; k.e("v_writelane_b32 v0, s92, 0", f"v_writelane_b32 v0, s{92 if P.rt else 94}, 1")
    k.stamp("s kernarg")
    if P.pk_first == 1: pack_issue(k)
    k.stamp("s pkissue")
    run(a10_x(k, 0) + a10_w(k, 0))
    if P.pk_first == 0: pack_issue(k)
    srd(k, 28, 80, 256)
    k.e("v_cmp_eq_u32 vcc, 0, v1", f"v_mov_b32 v{vFA}, {OOB:#x}", f"s_or_b32 s32, s2, s{sW}", f"v_cndmask_b32_e64 v{vFA}, v{vFA}, 0, vcc",
        "s_cmp_eq_u32 s32, 0", f"s_cselect_b32 s32, 0, {OOB>>1:#x}", f"v_mov_b32 v170, s{sTAG}")
    k.vm(f"buffer_store_dword v170, v{vFA}, {SRD_DBG}, s32 offen sc1", "tagst")
    srd(k, 8, 82, WS_SIZE); srd(k, 20, 78, 2048 * 1024)
    for f in a1_setup(k, 0): f()
    o_bases(k, 0)
    a10_lanes2(k)
    k.e(f"v_mov_b32 v60, {OOB:#x}", "v_cmp_gt_u32 vcc, 8, v1", "v_mov_b32 v176, 0", "v_mov_b32 v177, 0", "v_mov_b32 v178, 0", "v_mov_b32 v179, 0",
        f"v_cndmask_b32 v173, v60, v{vL16}, vcc", "v_cmp_gt_u32 vcc, 16, v1", "s_nop 0",
        f"s_lshl_b32 s32, s{sC}, 4", f"v_cndmask_b32 v172, v60, v{vL16}, vcc")
    k.e(f"s_add_u32 s32, s32, s{sM}", "s_lshl_b32 s32, s32, 4",
        f"s_cmp_eq_u32 s{sW}, 0", f"s_cselect_b32 s32, s32, {OOB>>1:#x}", f"v_add_u32 v171, s32, v{vFA}", f"s_mov_b32 s{sBUD}, 400000")
    red_bases(k)
    k.e(f"s_lshl_b32 s{sGL}, s{sW}, 12", f"s_mul_i32 s{sGS}, s{sM}, {PGU_SLICE}", f"s_add_u32 s{sGS}, s{sGS}, s{sGL}", f"s_add_u32 s{sGS}, s{sGS}, {WS_PGU}")
    k.e(f"s_mul_i32 s32, s{sCS}, {224*KB}", f"s_mul_i32 s33, s{sW}, {56*KB}", "s_add_u32 s32, s32, s33", f"s_add_u32 s{sDS}, s32, {WS_PDN}")
    k.e(f"s_lshl_b32 s32, s{sCS}, 16", f"s_add_u32 s32, s32, s{sGL}", f"s_add_u32 s88, s32, {WS_PWO}")
    wo_bases(k)
    k.stamp("s setup")
    run(a10_w(k, 1))
    if P.pk_first == 2: pack_issue(k)
    k.e(f"s_getreg_b32 s{sXCC}, hwreg(HW_REG_XCC_ID, 0, 4)", f"s_mov_b32 s75, {WS_ARR}", f"s_lshl_b32 s77, s{sC}, 8", "s_add_u32 s77, s77, s75")
    k.stamp("s w01")
    def mid2():
        if P.k_first > 3: run(a10_w(k, 3))
        k.e("s_lshl_b32 s32, s2, 7")
        k.vm(f"buffer_store_dwordx4 v[176:179], v173, {SRD_WS}, s32 offen sc1", "zero")
        k.e("s_lshl_b32 s32, s2, 8", f"s_add_u32 s32, s32, {WS_HXF}")
        k.vm(f"buffer_store_dwordx4 v[176:179], v172, {SRD_WS}, s32 offen sc1", "zero")
    if P.k_pack is None: pack_process(k, lambda: run(a10_x(k, 1) + a10_w(k, 2)), mid2)
    else: run(a10_x(k, 1) + a10_w(k, 2)); mid2()
    k.vm(f"buffer_load_dword v170, v{vFA}, {SRD_DBG}, 0 offen sc1", "tag")
    k.stamp("s pkdone")
    a10_loop(k, P.k_first)
    a10_tail(k)
    wo(k, 0); gu(k, 0); dn(k, 0)
    if not P.half:
        k.marks = {m: g for m, g in k.marks.items() if False}
        k.seen = {t for t in k.seen if t in k.vmq or t in k.lgq or t in ("dna", "st0", ("x", 2), ("x", 3))}
        a11_main(k)
        wo(k, 1)
        k.marks = {m: g for m, g in k.marks.items() if m in ("wobar", "gemm_done") or m[0] == "bar"}
        gu(k, 1); dn(k, 1)
    if P.verbose: print([(t, tag, f) for t, tag, f in k.bg_log if f])
    if stamps:
        k.e("s_waitcnt vmcnt(0)"); k.stamp("drained"); k.stamp("rt1", True)
        k.e("s_lshl_b32 s32, s2, 10", "s_lshl_b32 s33, s3, 8", "s_add_u32 s32, s32, s33",
            f"s_add_u32 s32, s32, {WS_STAMP}", "v_lshlrev_b32 v8, 2, v1", f"buffer_store_dword v0, v8, {SRD_WS}, s32 offen")
        if P.echo:
            a, b = P.echo
            n = len(k.stamps)
            k.e(f"v_readlane_b32 s32, v0, {a}", f"v_readlane_b32 s33, v0, {b if b >= 0 else n + b}", f"v_readlane_b32 s34, v0, {n-1}", "s_nop 3",
                "s_sub_u32 s33, s33, s32", "s_min_u32 s33, s33, 20000")
            k.label("L_echo")
            k.e("s_memrealtime s[36:37]", "s_waitcnt lgkmcnt(0)", "s_sub_u32 s36, s36, s34", "s_cmp_lt_u32 s36, s33", "s_cbranch_scc1 L_echo")
        if P.dbg:
            n = len(k.stamps)
            k.e("v_readlane_b32 s32, v0, 0", f"v_readlane_b32 s33, v0, {n-1}", "s_not_b32 s34, s32", "v_mov_b32 v4, s33", "v_mov_b32 v5, s34")
            k.e(f"buffer_atomic_umax v4, v{vFA}, {SRD_DBG}, 0 offen offset:4", f"buffer_atomic_umax v5, v{vFA}, {SRD_DBG}, 0 offen offset:8")
            k.e(f"s_cmp_eq_u32 s2, {P.dbg - 1}", f"s_cselect_b32 s35, 0, {OOB>>1:#x}", f"s_cmp_eq_u32 s{sW}, 0", f"s_cselect_b32 s35, s35, {OOB>>1:#x}")
            for i, wd in zip(range(2, n - 1), (3, 5, 6, 7, 9, 10, 11, 13, 14, 15)):
                k.e(f"v_readlane_b32 s33, v0, {i}", "s_sub_u32 s33, s33, s32", "v_mov_b32 v4, s33", f"buffer_store_dword v4, v{vFA}, {SRD_DBG}, s35 offen offset:{4*wd}")
    k.e("s_endpgm")
    k.flush_spins()
    k.label("L_end"); k.e("s_endpgm")
    src = open("cdna_kernels/%s.s.ref" % NAME).read().splitlines()
    out = [l for l in src if l.startswith(";") and "@launch" not in l]
    out.append(f"; @launch grid=(256,1,1) block=(256,1,1) lds={LDS_TOTAL}")
    out += ['.amdgcn_target "amdgcn-amd-amdhsa--gfx950"', ".text"]
    s = "\n".join(out) + "\n" + k.text(verbose=True) + '.section .rodata,"a"\n.p2align 6\n' + kd(name)
    from verify import verify
    assert not verify(s), "a register is used while a load into it is in flight"
    if P.align:
        from align import align
        s = align(s)
    return s, k.stamps
P.x_nobar = 0; P.x_noepi = 0; P.rt = 1; P.dbg = 0; P.h_touch0 = ''; P.outm = ''; P.h1_plain = 1; P.tags = 0; P.echo = None; P.wo_setup_first = 2; P.gu_pa_late = 0; P.gu_bar_first = 0; P.flagbr = 0; P.rot = 0; P.pk_mod = 'nt'; P.x_mod = ''; P.w_mod = ''; P.t_mod = ''; P.pk_first = 1; P.dn1_agpr = 1; P.half = 0; P.tlb = 1; P.code0 = 1; P.verbose = 0; P.align = 1; P.gu_cap = 5; P.gu_nw = 5; P.k_touch = 15; P.k_gb = 13; P.k_chk = 16

if __name__ == "__main__":
    path = sys.argv[1] if len(sys.argv) > 1 else "cdna_kernels/%s.s" % NAME
    opts = sys.argv[2:]
    only = None
    for o in opts:
        if o.startswith("only="): only = [x for x in o[5:].split(",") if x]
        if o.startswith("P."):
            n, v = o[2:].split("="); setattr(P, n, eval(v))
    s, st = build(stamps="st" in opts, only=only)
    open(path, "w").write(s)
    if "st" in opts: json.dump([st], open(path + ".json", "w"))
```

```python
import sys, json
from common import *

MF16 = "v_mfma_f32_16x16x32_bf16"
MF16S = "v_mfma_f32_16x16x16_bf16"
MF32 = "v_mfma_f32_32x32x16_bf16"
vL16, vFV, vFA, vP = 2, 8, 9, 10
CSV, CSQ, CSK, RES = 11, 12, 16, 20
OOB = 0x80000000
FL_O, FL_X1, FL_H, FL_X2 = 0, 4096, 8192, 12288
FL_HX = 16384 + 12288
def fl(layer, off): return WS_FLAGS + 16384 * layer + off
sROT, sBUD, sGL, sGS, sDS = 84, 98, 60, 61, 85
sT0, sT1, sPO, sFO = 32, 33, 86, 87
sML, sMS = 68, 69
WS_HXF = WS_O0 - 0x10000 if False else WS_END
WS_ARR = WS_HXF + 0x10000
sTAG, sXCC = 91, 76
WS_STAMP = 0x2000000
L_SA0, L_SA1, L_XH0, L_CS = 80896, 97280, 81920, 79872
def e_of(kk):
    p, tl = divmod(kk, 7)
    return 4 * p + tl if tl < 4 else 16 + 3 * p + (tl - 4)
KK_OF = {e_of(kk): kk for kk in range(28)}

class P:
    a1_bg_start, a1_bg_step = 30, 6
    gu_lead = 9
    gu_bg_start, gu_bg_step = 50, 2.6
    dn_lead = 12
    bgm = ""
    sleep = 0
    drop = ()
    codepf = 0
    ld = "sc1"
    dst = "sc1"
    safe = False
    plain = True
    notouch = ()

BO, BX1, BS1, BH = [WS_O[0]] * 2, [WS_X[0]] * 2, [WS_ST[0]] * 2, [WS_H[0]] * 2
def o_line(layer):
    return [f"s_lshl_b32 s32, s{sB}, 16", f"s_lshl_b32 s33, s{sCS}, 2", f"s_add_u32 s33, s33, s{sW}", "s_lshl_b32 s33, s33, 10",
            "s_add_u32 s32, s32, s33", f"s_add_u32 s32, s32, {BO[layer]}"]
def touch_next(k, t):
    return [lambda: k.touch(t, "p", o_line(1)), lambda: k.touch(t + 1, "q", [f"s_add_u32 s32, s64, {BX1[1]}"]),
            lambda: k.touch(t + 2, "t", [f"s_add_u32 s32, s65, {BS1[1]}"])]
def gu_tile(d):
    return [f"s_lshl_b32 {d}, s{sC}, 1", f"s_and_b32 s33, s{sW}, 1", f"s_add_u32 {d}, {d}, s33", f"s_lshl_b32 {d}, {d}, 1", f"s_lshr_b32 s33, s{sW}, 1", f"s_add_u32 {d}, {d}, s33"]
def h_base(d, layer):
    return gu_tile(d) + [f"s_mul_i32 {d}, {d}, 112", f"s_mul_i32 s33, s{sM}, 7",
            f"s_add_u32 {d}, {d}, s33", f"s_lshl_b32 {d}, {d}, 10", f"s_add_u32 {d}, {d}, {BH[layer]}"]

class F(K):
    def __init__(self):
        super().__init__(); self.spins = []; self.nspin = 0; self.st = ""; self.npf = 0
    def poll_issue(self, va, tag): self.vm(f"buffer_load_dword v{vP}, v{va}, {SRD_WS}, s{sPO} offen sc1", tag)
    def poll_addr(self, va, nl, sh=2):
        self.e(f"v_cmp_gt_u32 vcc, {nl}, v1", f"v_lshlrev_b32 v{va}, {sh}, v1", f"v_mov_b32 v{vP}, {OOB:#x}", f"v_cndmask_b32 v{va}, v{vP}, v{va}, vcc")
        self.nl = nl
    def poll_check(self, va, tag, thr):
        n = self.nspin; self.nspin += 1
        self.stamp(f"poll<{tag}")
        self.wait(vm=[tag])
        self.stamp(f"poll={tag}")
        msk = f"s_and_b32 s99, vcc_lo, {(1 << self.nl) - 1:#x}"
        self.e(f"v_cmp_gt_u32 vcc, {thr}, v{vP}", msk, f"s_cbranch_scc1 L_spin{n} ;np", f"L_back{n}: ;np")
        self.stamp(f"poll>{tag}")
        self.spins += [f"L_spin{n}:", f"s_sub_u32 s{sBUD}, s{sBUD}, 1", f"s_cbranch_scc1 L_give{n}"] + ([f"s_sleep {P.sleep}"] if P.sleep else []) + [
                       f"buffer_load_dword v{vP}, v{va}, {SRD_WS}, s{sPO} offen sc1", "s_waitcnt vmcnt(0)",
                       f"v_cmp_gt_u32 vcc, {thr}, v{vP}", msk, f"s_cbranch_scc1 L_spin{n}", f"s_branch L_back{n}",
                       f"L_give{n}:", f"s_mov_b32 s{sBUD}, 0", f"s_branch L_back{n}"]
    def poll_wait(self, va, tag, thr, alt):
        if not P.poll2:
            self.poll_check(va, tag, thr); return
        n = self.nspin; self.nspin += 1
        ld = lambda r: f"buffer_load_dword v{r}, v{va}, {SRD_WS}, s{sPO} offen sc1"
        tst = lambda r: [f"v_cmp_gt_u32 vcc, {thr}, v{r}", f"s_and_b32 s99, vcc_lo, {(1 << self.nl) - 1:#x}"]
        self.e(f"s_sleep {P.poll2}")
        self.vm(ld(alt), "polljunk")
        self.wait(vm=[tag])
        self.e(*tst(vP)); self.e(f"s_cbranch_scc1 L_spin{n} ;np", f"L_back{n}: ;np")
        self.spins += [f"L_spin{n}:", f"s_sub_u32 s{sBUD}, s{sBUD}, 1", f"s_cbranch_scc1 L_give{n}",
                       ld(vP), "s_waitcnt vmcnt(1)"] + tst(alt) + [f"s_cbranch_scc0 L_back{n}", ld(alt), "s_waitcnt vmcnt(1)"] + tst(vP) + \
                      [f"s_cbranch_scc1 L_spin{n}", f"s_branch L_back{n}", f"L_give{n}:", f"s_mov_b32 s{sBUD}, 0", f"s_branch L_back{n}"]
    def flag(self, val, soff=sFO, st=None):
        self.e(f"v_mov_b32 v{vFV}, {val}")
        if st is not None:
            self.vm(f"buffer_store_dword v{vFV}, v{vFA}, {SRD_WS}, s{soff} offen {st}", "flag"); return
        if P.flagbr:
            self.dstore(f"buffer_store_dword v{vFV}, v{vFA}, {SRD_WS}, s{soff} offen", "flag", True); return
        self.e(f"s_or_b32 s99, s{soff}, s{sML}")
        self.vm(f"buffer_store_dword v{vFV}, v{vFA}, {SRD_WS}, s99 offen", "flag")
        self.e(f"s_or_b32 s99, s{soff}, s{sMS}")
        self.vm(f"buffer_store_dword v{vFV}, v{vFA}, {SRD_WS}, s99 offen sc1", "flag")
    def dstore(self, text, tag, always=False):
        if not P.plain and not always:
            self.vm(text + " sc1", tag); return
        n = self.nspin; self.nspin += 1
        self.e(f"s_cmp_lg_u32 s{sML}, 0", f"s_cbranch_scc1 L_alt{n} ;np")
        self.vm(text, tag)
        self.e(f"L_back{n}: ;np")
        self.spins += [f"L_alt{n}:", "s_nop 4", text + " sc1", f"s_branch L_back{n}"]
    def valid(self, test, reload):
        n = self.nspin; self.nspin += 1
        self.e(*test); self.e(f"s_cbranch_vccnz L_rl{n} ;np", f"L_back{n}: ;np")
        self.spins += [f"L_rl{n}:", f"s_sub_u32 s{sBUD}, s{sBUD}, 1", f"s_cbranch_scc1 L_give{n}"] + reload + ["s_waitcnt vmcnt(0)"] + test + \
                      [f"s_cbranch_vccnz L_rl{n}", f"s_branch L_back{n}", f"L_give{n}:", f"s_mov_b32 s{sBUD}, 0", f"s_branch L_back{n}"]
    def touch(self, tmp, kind, base_expr, masked=True):
        if not P.plain or kind in P.notouch: return
        nl = {"p": 16, "q": 16, "s": 2, "t": 2, "h": 56}[kind]
        self.e(f"v_cmp_gt_u32 vcc, {nl}, v1")
        if kind in "pq": self.e(f"v_lshrrev_b32 v{tmp}, 3, v1", f"v_lshlrev_b32 v{tmp}, {15 if kind == 'p' else 13}, v{tmp}", f"v_and_b32 v{vFV}, 7, v1", f"v_lshl_add_u32 v{tmp}, v{vFV}, 7, v{tmp}")
        else: self.e(f"v_lshlrev_b32 v{tmp}, {11 if kind == 's' else 7}, v1")
        self.e(f"v_mov_b32 v{vFV}, {OOB:#x}", *base_expr)
        self.e(f"v_cndmask_b32 v{tmp}, v{vFV}, v{tmp}, vcc")
        if masked: self.e(f"s_or_b32 s32, s32, s{sML}")
        self.vm(f"buffer_load_dword v{tmp}, v{tmp}, {SRD_WS}, s32 offen {P.t_mod}", "touch")
    def vm(self, text, tag=None):
        kind = tag[0] if isinstance(tag, tuple) else tag
        if kind in P.drop:
            self.seen.add(tag); return
        super().vm(text, tag)
    def codepf(self, tmpv, per=2048):
        if not P.codepf: return
        n = self.npf; self.npf += 1
        sh = (per // 64).bit_length() - 1
        self.e(f"L_pf{n}: ;np", f"s_mul_i32 s32, s{sW}, {per}", f"s_add_u32 s32, s32, L_pf{n}-L_pc", f"v_lshlrev_b32 v{tmpv}, {sh}, v1")
        raise NotImplementedError
    def flush_spins(self):
        for l in self.spins: self.e(l)
        self.spins = []

def batch(k, i):
    src = f"s_add_u32 s62, s{sGS}, {i*16384}" if i < 15 else f"s_add_u32 s62, s{sDS}, {(16 + 4*(i-15))*1024}"
    def f(q):
        k.set_m0(f"s_add_u32 m0, s{sGL}, {(i % 10)*16384}")
        if i != 14: k.set_s(src)
        elif k.last.get(62) != f"s_cselect_b32 s62, {OOB>>1:#x}, s62":
            k.e(src, f"s_cmp_ge_u32 s{sW}, 2", f"s_cselect_b32 s62, {OOB>>1:#x}, s62")
        k.vm(f"buffer_load_dwordx4 v{vL16}, {SRD_WS}, s62 offen offset:{q*1024} {P.bgm} lds", ("gw", i))
    return [lambda q=q: f(q) for q in range(4)]

def bg_batches(k, bs, period, dep=lambda b: None):
    for b in bs:
        for f in batch(k, b): k.bg_add(f, period, ("gw", b), dep(b))
def bg_list(k, fns, period, tag, dep=None):
    for f in fns: k.bg_add(f, period, tag, dep)

def regloads(k, base_sgpr, off, dst, n, tag, tmp=63, tagf=None):
    fns = []
    for j in range(n):
        def f(j=j):
            k.set_s(f"s_add_u32 s{tmp}, s{base_sgpr}, {off + (j & ~3)*1024}")
            k.vm(f"buffer_load_dwordx4 {dst(j)}, v{vL16}, {SRD_WS}, s{tmp} offen offset:{(j%4)*1024} {P.bgm}", tagf(j) if tagf else tag)
        fns.append(f)
    return fns
def wow(k):
    def f(i, q):
        k.set_m0(f"s_add_u32 m0, s{sGL}, {(6 + i)*16384}"); k.set_s(f"s_add_u32 s63, s88, {i*16384}")
        k.vm(f"buffer_load_dwordx4 v{vL16}, {SRD_WS}, s63 offen offset:{q*1024} lds", "wow")
    return [lambda i=i, q=q: f(i, q) for i in range(4) for q in range(4)]

def pack_issue(k):
    for r in (68, 69, 72, 73, 74, 75, 76, 77): assert k.last[r].startswith("s_load"), f"kernel argument s{r} overwritten"
    k.e("v_lshrrev_b32 v44, 3, v1", "v_and_b32 v43, 7, v1", "v_and_b32 v45, 2, v44", "v_lshlrev_b32 v45, 1, v45",
        "v_xor_b32 v43, v43, v45", "v_lshlrev_b32 v43, 4, v43", f"s_add_u32 s34, s49, {L_X + 4096}")
    k.e("s_cmp_ge_u32 s2, 112", "s_cbranch_scc1 L_pki_small")
    k.e("s_and_b32 s35, s2, 1", "s_bfe_u32 s36, s2, 0x10001", "s_lshr_b32 s37, s2, 2")
    k.e("s_cmp_eq_u32 s35, 0", "s_cselect_b32 s24, s72, s74", "s_cselect_b32 s25, s73, s75",
        f"s_mov_b32 s26, {512*3584:#x}", "s_mov_b32 s27, 0x20000")
    k.e("v_mul_u32_u24 v46, 3584, v44", "v_add_u32 v46, v46, v43")
    k.e("s_lshl_b32 s38, s36, 2", f"s_add_u32 s38, s38, s{sW}", f"s_mul_i32 s38, s38, {64*3584}",
        "s_lshl_b32 s39, s37, 7", "s_add_u32 s38, s38, s39")
    for i in range(8):
        k.e(f"s_add_u32 m0, s34, {(i>>2)*8192 + (i&3)*1024}", f"s_add_u32 s39, s38, {i*8*3584}", f"buffer_load_dwordx4 v46, {SRD_PK}, s39 offen {P.pk_mod} lds")
    k.e("s_branch L_pki_done")
    k.label("L_pki_small")
    k.e("s_sub_u32 s35, s2, 112", "s_lshl_b32 s35, s35, 3", f"s_lshl_b32 s36, s{sW}, 1", "s_add_u32 s35, s35, s36")
    k.e("s_cmp_lt_u32 s35, 896", "s_cselect_b32 s24, s76, s68", "s_cselect_b32 s25, s77, s69", f"s_mov_b32 s26, {512*1024:#x}",
        f"s_cselect_b32 s26, {1792*1024:#x}, s26", "s_mov_b32 s27, 0x20000", "s_cselect_b32 s37, 1, 0",
        "s_movk_i32 s38, 896", "s_cselect_b32 s38, 0, s38")
    k.e("s_cselect_b32 s39, 0, 1", "s_cselect_b32 s70, 14, 15", "s_movk_i32 s71, 0x4000", "s_cselect_b32 s71, 0x80, s71")
    k.e("s_sub_u32 s35, s35, s38", "s_lshr_b32 s35, s35, s39", "s_and_b32 s36, s35, 7", "s_lshr_b32 s35, s35, 3")
    k.e("v_lshl_add_u32 v46, v44, 10, v43", "s_lshl_b32 s38, s35, s70", "s_lshl_b32 s39, s36, 7", "s_add_u32 s38, s38, s39")
    for i in range(2):
        for h in range(2):
            k.e(f"s_add_u32 m0, s34, {(2*i+h)*1024}", f"s_add_u32 s39, s38, {h*8192}", f"buffer_load_dwordx4 v46, {SRD_PK}, s39 offen {P.pk_mod} lds")
        if i == 0: k.e("s_add_u32 s38, s38, s71")
    k.label("L_pki_done")
    k.vmq.append("pk"); k.seen.add("pk")

PQ = [76, 80, 84, 88, 92, 96, 36, 40]
def pack_process(k, mid1, mid2):
    k.e("v_bfe_u32 v46, v1, 2, 2", "v_and_b32 v47, 3, v1", "v_bfe_u32 v48, v1, 4, 1", "v_lshrrev_b32 v49, 5, v1")
    k.e("v_and_b32 v50, 2, v46", "v_add_u32 v50, v50, v48", "v_lshlrev_b32 v50, 5, v50",
        "v_lshl_add_u32 v50, v46, 7, v50", "v_lshl_add_u32 v50, v47, 3, v50", "v_add_u32 v50, s34, v50")
    k.e("s_cmp_ge_u32 s2, 112", "s_cbranch_scc1 L_pk_small")
    q0 = list(k.vmq)
    k.e("v_lshl_add_u32 v56, v49, 10, v50", "v_xor_b32 v57, 64, v56")
    k.e("s_lshl_b32 s39, s37, 2", "v_add_u32 v58, s39, v48")
    k.e("s_lshl_b32 s70, s36, 2", f"s_add_u32 s70, s70, s{sW}", "s_lshl_b32 s70, s70, 2")
    k.e("v_and_b32 v66, 15, v1", "s_lshl_b32 s71, s35, 8", "v_lshl_add_u32 v66, v66, 4, s71")
    for p in range(2):
        T, fs, tl, st_, b, aug = 59, 60, 61, 62 + p, 64 + p, 68 + p
        k.e(f"v_add_u32 v{T}, {2*p}, v58", f"v_mul_u32_u24 v{fs}, 9363, v{T}", f"v_lshrrev_b32 v{fs}, 16, v{fs}",
            f"v_mul_u32_u24 v{tl}, 7, v{fs}", f"v_sub_u32 v{tl}, v{T}, v{tl}")
        k.e(f"v_cmp_gt_u32 vcc, 3, v{tl}", f"v_mul_u32_u24 v67, 33, v{tl}", f"v_mov_b32 v{st_}, 1", "v_mov_b32 v70, 3",
            f"v_cndmask_b32 v67, v67, v{tl}, vcc", f"v_cndmask_b32 v{st_}, v{st_}, v70, vcc")
        k.e(f"v_mul_u32_u24 v{fs}, 231, v{fs}", f"v_add_u32 v67, v67, v{fs}")
        k.e(f"v_lshl_add_u32 v70, v{st_}, 5, v67", "v_lshlrev_b32 v70, 10, v70", "v_add_u32 v70, v70, v66",
            "s_lshl_b32 s71, s36, 9", f"v_add_u32 v{aug}, s71, v70")
        k.e(f"v_mul_lo_u32 v70, v{st_}, s70", "v_add_u32 v67, v67, v70", "v_lshlrev_b32 v67, 10, v67",
            "v_add_u32 v67, v67, v66", f"v_lshl_add_u32 v{b}, v49, 9, v67", f"v_lshlrev_b32 v{st_}, 10, v{st_}")
    k.e("v_mov_b32 v71, 0x3f803f80", "v_mov_b32 v72, 0", "v_mov_b32 v73, 0", "v_cmp_gt_u32 vcc, 32, v1", "v_mov_b32 v46, 0", "v_mov_b32 v47, 0",
        "v_cndmask_b32 v68, v69, v68, vcc", f"s_lshl_b32 s72, s{sW}, 8", "s_add_u32 s72, s72, 0x10000", "v_lshl_add_u32 v74, v1, 2, s72",
        "v_lshlrev_b32 v75, 2, v1", "v_add_u32 v75, 0x10000, v75")
    k.e(f"s_mov_b32 s70, {WS_PGU}", "s_mov_b32 s71, s70", "s_mov_b32 s72, s70", "s_mov_b32 s73, s70", f"s_cmp_eq_u32 s{sW}, 0", f"s_cselect_b32 s74, s70, {OOB>>1:#x}")
    k.wait(vm="pk")
    for ks in range(4):
        for p in range(2):
            for j in range(2): k.ds(f"ds_read_b64_tr_b16 {vr(PQ[2*ks+p]+2*j,2)}, v{56+p} offset:{(ks>>1)*8192 + (ks&1)*2048 + j*512}", ("t", ks, p))
        if ks == 2: k.wait(lg=[("t", 0, 1)])
    mid1()
    for ks in range(4):
        for p in range(2):
            k.wait(lg=[("t", ks, p)])
            for d in range(4): k.e(f"v_dot2c_f32_bf16 v{72+p}, v{PQ[2*ks+p]+d}, v71")
    k.e("v_permlane32_swap_b32 v72, v73", "v_add_f32 v72, v72, v73")
    k.ds(f"ds_write_b32 v74, v72 offset:{L_CS - 65536}")
    k.wait(lg="all"); k.e("s_barrier")
    for w in range(4): k.ds(f"ds_read_b32 v{56+w}, v75 offset:{L_CS - 65536 + 256*w}")
    mid2()
    k.wait(lg="all")
    k.e("v_add_f32 v56, v56, v57", "v_add_f32 v58, v58, v59", "v_add_f32 v56, v56, v58")
    k.e("v_cvt_pk_bf16_f32 v45, v56, v46", "v_lshlrev_b32 v57, 16, v45", "v_sub_f32 v57, v56, v57", "v_cvt_pk_bf16_f32 v44, v56, v57")
    k.e("s_branch L_pk_done")
    k.label("L_pk_small")
    k.vmq = list(q0)
    k.e(f"v_mov_b32 v64, v{vL16}", f"v_add_u32 v65, 1024, v{vL16}", f"v_mov_b32 v68, v{vL16}", f"s_mov_b32 s72, {OOB>>1:#x}", "s_mov_b32 s73, s72", "s_mov_b32 s74, s72")
    k.e("s_cmp_eq_u32 s37, 0", "s_cbranch_scc1 L_pk_wo")
    k.e("s_mul_i32 s38, s35, 2341", "s_lshr_b32 s38, s38, 16", "s_mul_i32 s39, s38, 28", "s_sub_u32 s39, s35, s39",
        "s_mul_i32 s70, s39, 9363", "s_lshr_b32 s70, s70, 16", "s_mul_i32 s71, s70, 7", "s_sub_u32 s71, s39, s71")
    for u in range(2):
      k.e(f"s_sub_u32 s39, s70, s36" if P.hrot else "s_mov_b32 s39, s70", f"s_sub_u32 s39, s39, {u if P.hrot else 0}", "s_and_b32 s39, s39, 3",
        "s_lshl_b32 s32, s39, 2", "s_add_u32 s32, s32, s71", "s_mul_i32 s33, s39, 3", "s_add_u32 s33, s33, s71", "s_add_u32 s33, s33, 12",
        "s_cmp_lt_u32 s71, 4", "s_cselect_b32 s32, s32, s33", "s_mul_i32 s33, s38, 28", "s_add_u32 s32, s32, s33", f"s_lshl_b32 s{(35, 37)[u]}, s32, 11")
    k.e("v_lshl_add_u32 v56, v49, 9, v50", "v_xor_b32 v57, 64, v56", f"v_mov_b32 v62, {224*KB}", f"v_mov_b32 v63, {224*KB}")
    k.e(f"s_mul_i32 s36, s36, {224*KB}", f"s_add_u32 s36, s36, {WS_PDN}", "s_add_u32 s70, s36, s35", "s_add_u32 s71, s36, s37")
    k.wait(vm="pk")
    for i in range(2):
        for nn in range(2):
            for j in range(2): k.ds(f"ds_read_b64_tr_b16 {vr(PQ[2*i+nn]+2*j,2)}, v{56+nn} offset:{i*2048 + j*1024}", "t")
    mid1(); mid2()
    k.wait(lg="all")
    k.e("s_branch L_pk_done")
    k.label("L_pk_wo")
    k.vmq = list(q0)
    k.e("v_and_b32 v56, 2, v46", "v_lshlrev_b32 v56, 1, v56", "v_xor_b32 v56, v56, v47", "v_lshlrev_b32 v56, 4, v56", "v_lshl_add_u32 v56, v46, 7, v56",
        "v_lshrrev_b32 v57, 4, v1", "v_lshl_add_u32 v56, v57, 10, v56", "v_add_u32 v56, s34, v56", "v_xor_b32 v57, 64, v56",
        "v_mov_b32 v62, 0x800", "v_mov_b32 v63, 0x800")
    k.e("s_lshl_b32 s36, s36, 16", "s_lshl_b32 s35, s35, 12", "s_add_u32 s70, s36, s35", f"s_add_u32 s70, s70, {WS_PWO}", "s_mov_b32 s71, s70")
    k.wait(vm="pk")
    for j in range(4):
        for jj in range(2): k.ds(f"ds_read_b64_tr_b16 {vr(PQ[j]+2*jj,2)}, v{56+(j>>1)} offset:{jj*512 + 8*(j&1)}", "t")
    mid1(); mid2()
    k.wait(lg="all")
    k.label("L_pk_done")

def pack_stores(k):
    ops = []
    for r in range(4):
        for p in range(2):
            ops.append(("v", lambda r=r, p=p: k.vm(f"buffer_store_dwordx4 {vr(PQ[2*r+p],4)}, v{64+p}, {SRD_WS}, s{70+r} offen sc1", "pks")))
            if r < 3: ops.append(("a", lambda p=p: k.e(f"v_add_u32 v{64+p}, v{64+p}, v{62+p}")))
    ops.append(("v", lambda: k.vm(f"buffer_store_dwordx4 v[44:47], v68, {SRD_WS}, s74 offen sc1", "pks")))
    return ops

A_XF, A_K, A_V, A_Q = 36, 76, 86, 96
A_STA, A_STB, A_OP, A_DX, A_PA, A_ST, A_ACC = 104, 106, 144, 152, 153, 140, 184
class R0: XE, XO, SA, SB, CI, ONE, M, ATT, TMP = 3, 4, 5, 6, 28, 32, 52, (116, 160), 60
class R1: XE, XO, SA, SB, CI, ONE, M, ATT, TMP = 116, 117, 118, 119, 252, 124, 120, (228, 160), 28
A_U, A_PX = 226, 115
A11_ORDER = [2, 3, 1, 0, "h"]
A11_POS = {2: 3, 3: 0, 1: 1, 0: 2, "h": 3}
sODD, sCUR0, sCUR1, sCEXP = 40, 42, 44, 46

def a1_setup(k, layer):
    R = (R0, R1)[layer]
    real = k; out = []
    class Rec:
        def e(self, *t):
            if any(x.startswith("s_cmp") for x in t): out.append(lambda t=t: real.e(*t))
            else: out.extend(lambda x=x: real.e(x) for x in t)
    k = Rec()
    t16, g, tt, tb = R.TMP, R.TMP + 1, R.TMP + 2, R.TMP + 3
    x, y, z = R.ONE, R.ONE + 1, R.ONE + 2
    sa = L_SA0 if layer == 0 else L_SA1
    k.e(f"v_and_b32 v{t16}, 15, v1", f"v_lshrrev_b32 v{g}, 4, v1", f"v_and_b32 v{tt}, 7, v1", f"v_bfe_u32 v{tb}, v1, 3, 1")
    k.e(f"v_lshlrev_b32 v{tb}, 13, v{tb}")
    if layer == 0: k.e(f"v_add_u32 v{tb}, {L_X}, v{tb}")
    if layer == 0:
        k.e(f"v_and_b32 v{x}, 6, v{tt}", f"v_xor_b32 v{x}, v{x}, v{g}", f"v_lshlrev_b32 v{x}, 4, v{x}",
            f"v_lshl_add_u32 v{x}, v{tt}, 7, v{x}", f"v_add_u32 v{R.XE}, v{x}, v{tb}", f"v_xor_b32 v{R.XO}, 64, v{R.XE}")
    else:
        k.e(f"v_lshl_add_u32 v{x}, v{g}, 7, v{tb}", f"v_lshl_add_u32 v{R.XE}, v{tt}, 4, v{x}", f"v_add_u32 v{R.XO}, 512, v{R.XE}")
    k.e(f"v_lshlrev_b32 v{R.SA}, 3, v{t16}", f"v_add_u32 v{R.SA}, {sa}, v{R.SA}",
        f"v_lshlrev_b32 v{R.SB}, 5, v{g}", f"v_add_u32 v{R.SB}, {sa}, v{R.SB}")
    k.e(f"v_and_b32 v{x}, 1, v1", f"v_cmp_eq_u32 s[{sODD}:{sODD+1}], 1, v{x}",
        f"v_lshl_add_u32 v{y}, v{g}, 2, v{x}", f"v_cmp_le_u32 s[{sCUR0}:{sCUR0+1}], v{y}, v{t16}",
        f"v_add_u32 v{y}, 2, v{y}", f"v_cmp_le_u32 s[{sCUR1}:{sCUR1+1}], v{y}, v{t16}")
    k.e(f"v_mov_b32 v{y}, 0xffff", f"v_mov_b32 v{z}, 0xffff0000", f"v_cndmask_b32 v{y}, v{y}, v{z}, s[{sODD}:{sODD+1}]", f"v_mov_b32 v{z}, 0")
    k.e(f"v_cndmask_b32 v{R.M+2}, v{z}, v{y}, s[{sCUR0}:{sCUR0+1}]", f"v_cndmask_b32 v{R.M}, v{y}, v{z}, s[{sCUR0}:{sCUR0+1}]",
        f"v_cndmask_b32 v{R.M+3}, v{z}, v{y}, s[{sCUR1}:{sCUR1+1}]", f"v_cndmask_b32 v{R.M+1}, v{y}, v{z}, s[{sCUR1}:{sCUR1+1}]")
    k.e(f"s_cmp_eq_u32 s{sB}, 0", f"s_cselect_b32 s70, {f2u(-1e38):#x}, 0", f"s_mov_b32 s{sCEXP}, {f2u(0.25*LOG2E):#x}")
    for i in range(4): k.e(f"v_mov_b32 v{R.CI+i}, s70", f"v_mov_b32 v{R.ONE+i}, 0x3f803f80")
    return out

def o_bases(k, layer):
    k.e(f"s_lshl_b32 s32, s{sB}, 16", f"s_lshl_b32 s33, s{sCS}, 2", f"s_add_u32 s33, s33, s{sW}", "s_lshl_b32 s53, s33, 10",
        "s_add_u32 s32, s32, s53", f"s_add_u32 s53, s32, {BO[layer]}", "s_add_u32 s54, s53, 32768",
        f"s_lshl_b32 s32, s{sB}, 5", "s_add_u32 s32, s32, s33", "s_lshl_b32 s32, s32, 2", f"s_add_u32 s89, s32, {fl(layer, FL_O)}")

def ln_finish(a, s, q):
    a(f"v_mul_f32 v{s}, {f2u(-1/512):#x}, v{s}"); a(f"v_mul_f32 v{q}, {f2u(1/512):#x}, v{q}")
    a(f"v_fma_f32 v{q}, -v{s}, v{s}, v{q}"); a(f"v_max_f32 v{q}, 0, v{q}"); a(f"v_add_f32 v{q}, {f2u(1e-5):#x}, v{q}")

A_QS = 68
def fix_reads(k, R, t, S):
    i = 0 if t == "h" else t + 1
    return [lambda: k.ds(f"ds_read_b64 {vr(S,2)}, v{R.SA} offset:{i*128}", ("sa", t)),
            lambda: k.ds(f"ds_read_b128 {vr(S+2,4)}, v{R.SB} offset:{i*128}", ("sa", t)),
            lambda: k.ds(f"ds_read_b128 {vr(S+6,4)}, v{R.SB} offset:{i*128+16}", ("sa", t))]
def fix(k, R, fx, t, acc, at, pk, S=A_STA, pre=False, nxt=()):
    a = lambda txt, c=1, at=0: fx.add(lambda: k.e(txt), c, at)
    i = 0 if t == "h" else t + 1
    if not pre:
        for n, f in enumerate(fix_reads(k, R, t, S)): fx.add(f, 1, at - P.a1_salead if n == 0 else 0)
    fx.add(lambda: k.wait(lg=[("sa", t)]), 1, at)
    for f in nxt: fx.add(f)
    for r0, cs, dst in ((acc[0], CSQ, None if t == "h" else A_Q + 2*t), (acc[1], CSK, A_K + 2*i)):
        if dst is None: continue
        isq = cs == CSQ
        if pk:
            for h in (0, 2): a(f"v_pk_fma_f32 {vr(r0+h,2)}, {vr(S,2)}, {vr(cs+h,2)}, {vr(r0+h,2)} op_sel_hi:[0,1,1]")
            if not isq:
                for h in (0, 2): a(f"v_pk_mul_f32 {vr(r0+h,2)}, {vr(S,2)}, {vr(r0+h,2)} op_sel:[1,0] op_sel_hi:[1,1]")
        else:
            for r in range(4): a(f"v_fmac_f32 v{r0+r}, v{S}, v{cs+r}")
            if not isq:
                for r in range(4): a(f"v_mul_f32 v{r0+r}, v{S+1}, v{r0+r}")
        if isq: a(f"v_mul_f32 v{A_QS+t}, s{sCEXP}, v{S+1}")
        for h in range(2): a(f"v_cvt_pk_bf16_f32 v{dst+h}, v{r0+2*h}, v{r0+2*h+1}")
    r0 = acc[2]
    for r in range(4): a(f"v_fmac_f32 v{r0+r}, v{S+2+2*r}, v{CSV}")
    for r in range(4): a(f"v_mul_f32 v{r0+r}, v{S+3+2*r}, v{r0+r}")
    for h in range(2): a(f"v_cvt_pk_bf16_f32 v{A_V+2*i+h}, v{r0+2*h}, v{r0+2*h+1}")
    fx.add(lambda: (k.mark(("fix", t)), k.stamp(f"t0 fix{t}")), 0)

def attn(k, R, fx, t, B):
    SC, SP, PP, O, SUM, T = B, B + 4, B + 8, B + 12, B + 16, B + 20
    a = lambda txt, c=1: fx.add(lambda: k.e(txt), c)
    q = vr(A_Q + 2*t, 2)
    fx.dep(("fix", t)); fx.dep(("fix", t - 1 if t else "h")); fx.skip(1)
    a(f"{MF16S} {vr(SC,4)}, {vr(A_K+2*(t+1),2)}, {q}, 0", 2)
    a(f"{MF16S} {vr(SP,4)}, {vr(A_K+2*t,2)}, {q}, {vr(R.CI,4) if t == 0 else '0'}", 2)
    fx.skip(3)
    for rr, cur in ((0, sCUR0), (1, sCUR1)):
        a(f"v_cndmask_b32 v{T+2}, v{SC+2*rr}, v{SC+2*rr+1}, s[{sODD}:{sODD+1}]")
        a(f"v_cndmask_b32 v{T+3}, v{SP+2*rr}, v{SP+2*rr+1}, s[{sODD}:{sODD+1}]")
        a(f"v_cndmask_b32 v{T+rr}, v{T+3}, v{T+2}, s[{cur}:{cur+1}]")
    a(f"v_max_f32 v{T+2}, v{T}, v{T+1}"); a(f"v_mov_b32 v{T+3}, v{T+2}"); fx.skip(1)
    a(f"v_permlane16_swap_b32 v{T+2}, v{T+3}", 2); a(f"v_max_f32 v{T+2}, v{T+2}, v{T+3}"); a(f"v_mov_b32 v{T+3}, v{T+2}"); fx.skip(1)
    a(f"v_permlane32_swap_b32 v{T+2}, v{T+3}", 2); a(f"v_max_f32 v{T+2}, v{T+2}, v{T+3}")
    a(f"v_mul_f32 v{T+2}, v{A_QS+t}, v{T+2}")
    for rr in range(2): a(f"v_fma_f32 v{T+rr}, v{T+rr}, v{A_QS+t}, -v{T+2}")
    for rr in range(2): a(f"v_exp_f32 v{T+rr}, v{T+rr}", 2)
    for rr in range(2): a(f"v_cvt_pk_bf16_f32 v{T+rr}, v{T+rr}, v{T+rr}")
    a(f"v_and_b32 v{PP}, v{T}, v{R.M}"); a(f"v_and_b32 v{PP+1}, v{T+1}, v{R.M+1}")
    a(f"v_and_b32 v{PP+2}, v{T}, v{R.M+2}"); a(f"v_and_b32 v{PP+3}, v{T+1}, v{R.M+3}")
    fx.skip(1)
    a(f"{MF16} {vr(SUM,4)}, {vr(R.ONE,4)}, {vr(PP,4)}, 0", 2)
    a(f"{MF16} {vr(O,4)}, {vr(A_V+2*t,4)}, {vr(PP,4)}, 0", 2)
    fx.skip(3)
    a(f"v_rcp_f32 v{T}, v{SUM}", 2); fx.skip(1)
    for r in range(4): a(f"v_mul_f32 v{O+r}, v{T}, v{O+r}")
    for h in range(2): a(f"v_cvt_pk_bf16_f32 v{A_OP+2*t+h}, v{O+2*h}, v{O+2*h+1}")
    fx.add(lambda: (k.mark(("attn", t)), k.stamp(f"t0 attn{t}")), 0)

def ostore(k, fx, pair):
    b = A_OP + 4 * pair
    fx.dep(("attn", 2*pair)); fx.dep(("attn", 2*pair + 1))
    fx.dep("po1" if pair == 0 else "blank")
    fx.skip(1)
    fx.add(lambda: k.e(f"v_permlane16_swap_b32 v{b}, v{b+2}"), 2); fx.add(lambda: k.e(f"v_permlane16_swap_b32 v{b+1}, v{b+3}"), 2)
    fx.add(lambda: (k.dstore(f"buffer_store_dwordx4 {vr(b,4)}, v{vL16}, {SRD_WS}, s{53+pair} offen", ("ost", pair)), k.mark(("ost", pair))))

Z_WD, Z_TR, Z_HE, Z_HO, Z_OE, Z_OO = 164, 165, 166, 167, 168, 169
Z_XF, Z_SUM, Z_GR, Z_SUMH, Z_GRH, Z_CV = 104, 240, 244, 248, 252, 100
P.k_first = 4; P.k_pack = None; P.k_prep = 13
P.k_look, P.k_atom, P.k_bar, P.k_vgap, P.k_pst, P.k_pgap = 3, 6, 3, 3, 3, 0
NS0 = 6
def z_acc(t):
    if t == "h": return (None, A_ACC + 48, A_ACC + 52)
    return (A_ACC + 12*t, A_ACC + 12*t + 4, A_ACC + 12*t + 8)

def a10_lanes(k):
    k.e("v_lshrrev_b32 v60, 3, v1", "v_and_b32 v61, 6, v60", "v_and_b32 v62, 7, v1", "v_xor_b32 v61, v61, v62",
        "v_lshlrev_b32 v61, 4, v61", f"v_lshl_add_u32 v{A_DX}, v60, 10, v61")
    k.e("v_and_b32 v61, 2, v60", f"s_and_b32 s32, s{sW}, 1", "s_lshl_b32 s32, s32, 2", "v_or_b32 v61, s32, v61", "v_xor_b32 v61, v61, v62",
        "v_lshlrev_b32 v61, 4, v61", "v_mul_u32_u24 v60, 3072, v60", f"v_add_u32 v{Z_WD}, v60, v61")
    if P.rot == 0: k.e(f"s_add_u32 s{sROT}, s{sB}, s{sCS}")
    elif P.rot == 1: k.e(f"s_lshl_b32 s32, s{sB}, 1", f"s_bfe_u32 s33, s{sB}, 0x10002", "s_add_u32 s32, s32, s33", f"s_add_u32 s{sROT}, s32, s{sCS}")
    elif P.rot == 2: k.e(f"s_lshl_b32 s32, s{sB}, 1", f"s_add_u32 s{sROT}, s32, s{sCS}")
    elif P.rot == 3: k.e(f"s_mov_b32 s{sROT}, s{sCS}")
    elif P.rot == 4: k.e(f"s_lshl_b32 s32, s{sB}, 1", f"s_bfe_u32 s33, s{sB}, 0x10002", f"s_add_u32 s{sROT}, s32, s33")
    elif P.rot == 5: k.e(f"s_mov_b32 s{sROT}, 0")
    k.e(f"s_and_b32 s{sROT}, s{sROT}, 7")
    k.e(f"s_lshl_b32 s47, s{sB}, 3", "s_sub_u32 s48, s47, 2", "s_max_i32 s48, s48, 0", f"s_and_b32 s32, s{sW}, 1", "s_add_u32 s48, s48, s32",
        "s_lshl_b32 s48, s48, 13", f"s_lshl_b32 s32, s{sW}, 1", "s_add_u32 s47, s47, s32", "s_lshl_b32 s47, s47, 13")
    k.e(f"s_mul_i32 s51, s{sW}, {8*3072}", f"s_lshl_b32 s32, s{sCS}, 7", "s_add_u32 s51, s51, s32", f"s_mul_i32 s52, s{sW}, 3072")
    k.e(f"s_lshl_b32 s49, s{sW}, 14", f"s_and_b32 s32, s{sW}, 1", "s_lshl_b32 s50, s32, 13", f"s_lshr_b32 s32, s{sW}, 1",
        "s_lshl_b32 s33, s32, 10", "s_add_u32 s50, s50, s33", f"s_add_u32 s90, s32, s{sROT}")

def a10_x(k, c):
    S = lambda *t: [("s", lambda x=x: k.e(x)) for x in t]
    ld = lambda: k.vm(f"buffer_load_dwordx4 v{A_DX}, {SRD_X}, s33 offen {P.x_mod} lds", ("x", c))
    ops = S(f"s_add_u32 s33, s{sROT}, {c}", "s_and_b32 s33, s33, 7", "s_lshl_b32 s33, s33, 7", f"s_add_u32 m0, s49, {L_X + c*1024}", "s_add_u32 s33, s33, s47")
    ops += [("v", ld)] + S(f"s_add_u32 m0, s49, {L_X + 8192 + c*1024}", "s_add_u32 s33, s33, 8192") + [("v", ld)]
    if c % 2 == 0:
        ops += S(f"s_add_u32 s33, s90, {c}", "s_and_b32 s33, s33, 7", "s_lshl_b32 s33, s33, 7", f"s_add_u32 m0, s50, {L_XH0 + c*1024}", "s_add_u32 s33, s33, s48") + [("v", ld)]
    return ops

def a10_w(k, s):
    S = lambda *t: [("s", lambda x=x: k.e(x)) for x in t]
    if s & 1: ops = S(f"s_add_u32 m0, s52, {(s % NS0)*12288}", f"s_add_u32 s63, s63, {32*3072}")
    else: ops = S(f"s_add_u32 s63, s{sROT}, {s>>1}", "s_and_b32 s63, s63, 7", f"s_mul_i32 s63, s63, {64*3072}", f"s_add_u32 m0, s52, {(s % NS0)*12288}", "s_add_u32 s63, s63, s51")
    for p in range(3): ops.append(("v", lambda p=p: k.vm(f"buffer_load_dwordx4 v{Z_WD}, {SRD_QKV}, s63 offen offset:{p*1024} {P.w_mod} lds", ("w", s))))
    return ops
def run(ops):
    for _, f in ops: f()

def fill(k, mains, streams, cap=2):
    lastv = -99
    for g, m in enumerate(mains):
        m(); k.gap = g
        for a, o in streams:
            if a <= g and o and o[0][0] == "s": o.pop(0)[1](); break
        room = cap; nd = 0
        if g - lastv >= P.k_vgap and k.bg_step(): room -= 1; lastv = g
        while room > 0:
            pick = None
            for a, o in streams:
                if a > g or not o: continue
                t = o[0][0]
                if t == "d" and nd >= 1: continue
                if t == "v" and g - lastv < P.k_vgap: continue
                pick = o; break
            if pick is None: break
            t, f = pick.pop(0); f(); room -= 2 if t == "b" else 1
            if t == "d": nd += 1
            if t == "v": lastv = g
    for a, o in streams: run(o)

def a10_lanes2(k):
    k.e("v_lshrrev_b32 v60, 4, v1", "v_bfe_u32 v61, v1, 2, 2", "v_and_b32 v62, 1, v60", "v_lshlrev_b32 v62, 1, v62",
        "v_lshrrev_b32 v63, 1, v61", "v_or_b32 v62, v62, v63", f"v_xor_b32 v62, s{sW}, v62", "v_lshlrev_b32 v62, 5, v62",
        "v_mul_u32_u24 v60, 3072, v60", "v_lshl_add_u32 v60, v61, 7, v60", "v_add_u32 v60, v60, v62",
        "v_and_b32 v61, 3, v1", f"v_lshl_add_u32 v{Z_TR}, v61, 3, v60")
    k.e("v_and_b32 v60, 15, v1", "v_cmp_eq_u32 s[78:79], 0, v60")
    k.e(f"v_subrev_u32 v{Z_HE}, 16384, v{R0.XE}", f"v_subrev_u32 v{Z_HO}, 16384, v{R0.XO}",
        f"v_add_u32 v{Z_OE}, s49, v{R0.XE}", f"v_add_u32 v{Z_OO}, s49, v{R0.XO}")

def a10_loop(k, first):
    LA = P.k_look
    def sync(s, extra=()):
        k.wait(vm=[("w", s), ("x", s >> 1)] + list(extra)); k.e("s_barrier")
    nxt = [first]
    def dmas(upto):
        out = []
        while nxt[0] <= min(upto, 15):
            n = nxt[0]; nxt[0] += 1
            if n % 2 == 0: out += a10_x(k, n // 2)
            out += a10_w(k, n)
        return out
    def reads(s):
        fb = Z_XF + 24 * (s & 1); off = (s >> 1) * 1024; o = s & 1
        tr = lambda p, j: ("d", lambda: k.ds(f"ds_read_b64_tr_b16 {ar(12*s+4*p+2*j,2)}, v{Z_TR} offset:{(s%NS0)*12288 + p*1024 + j*512}", ("r", s, 0 if p == 0 else 1)))
        xr = lambda d, a, of, grp: ("d", lambda: k.ds(f"ds_read_b128 {vr(d,4)}, v{a} offset:{of}", ("r", s, grp)))
        out = [tr(0, 0), tr(0, 1)] + [xr(fb + 4*t, R0.XO if o else R0.XE, t*16384 + off, 0) for t in range(4)]
        out += [tr(1, 0), tr(1, 1), tr(2, 0), tr(2, 1), xr(fb + 16, Z_HO if o else Z_HE, off, 1), xr(fb + 20, Z_OO if o else Z_OE, off, 1)]
        return out
    l0_background(k)
    pst = pack_stores(k)
    sync(0)
    k.stamp("k0")
    run(reads(0)); run(dmas(LA - 1))
    for s in range(16):
        fb = Z_XF + 24 * (s & 1)
        c = lambda r: "0" if s == 0 else vr(r, 4)
        wq, wk, wv, one = ar(12*s, 4), ar(12*s + 4, 4), ar(12*s + 8, 4), vr(R0.ONE, 4)
        ms = [f"{MF16} {vr(z_acc(t)[0],4)}, {wq}, {vr(fb+4*t,4)}, {c(z_acc(t)[0])}" for t in range(4)]
        for t in [0, 1, 2, 3, "h"]:
            xf = vr(fb + (16 if t == "h" else 4*t), 4)
            ms.append(f"{MF16} {vr(z_acc(t)[1],4)}, {wk}, {xf}, {c(z_acc(t)[1])}")
            ms.append(f"{MF16} {vr(z_acc(t)[2],4)}, {xf}, {wv}, {c(z_acc(t)[2])}")
        ms += [f"{MF16} {vr(Z_CV,4)}, {wq}, {vr(fb+16,4)}, {c(Z_CV)}",
               f"{MF16} {vr(Z_SUM,4)}, {one}, {vr(fb+20,4)}, {c(Z_SUM)}", f"{MF16} {vr(Z_GR,4)}, {vr(fb+20,4)}, {vr(fb+20,4)}, {c(Z_GR)}",
               f"{MF16} {vr(Z_SUMH,4)}, {one}, {vr(fb+16,4)}, {c(Z_SUMH)}", f"{MF16} {vr(Z_GRH,4)}, {vr(fb+16,4)}, {vr(fb+16,4)}, {c(Z_GRH)}"]
        mains = [lambda m=m: k.e(m) for m in ms]
        if s == P.k_pack:
            k.wait(lg="all"); pack_process(k, lambda: None, lambda: None)
        k.wait(lg=[("r", s, 0)])
        streams = [(3, [("s", lambda: k.wait(lg=[("r", s, 1)]))] +
                       [("a", lambda d=d: k.e(f"v_cndmask_b32 v{fb+16+d}, v{fb+16+d}, v{R0.ONE}, s[78:79]")) for d in range(4)])]
        if s + 1 < 16:
            ex = ["pks"] if s + 1 == P.k_atom else []
            assert not ex or not pst, "arrival before the last pack store"
            assert P.k_prep > 14 - LA and (P.k_pack or 0) <= 8 - LA
            ops = [("b", lambda: sync(s + 1, ex))] + reads(s + 1)
            if ex: ops.append(("b", lambda: arrive(k)))
            streams.append((P.k_bar, ops))
            streams.append((0, dmas(s + LA)))
        n = 0; mine = []
        while pst and s >= (P.k_pack or 0) and (n < P.k_pst or pst[0][0] == "a"):
            n += pst[0][0] == "v"; mine.append(pst.pop(0))
        streams.append((P.k_pgap, mine))
        if s == P.k_prep: streams.append((6, tail_prep(k)))
        if s == P.k_touch:
            streams.append((2, [("b", lambda: k.touch(157, "p", ["s_mov_b32 s32, s53"], False)),
                                ("b", lambda: k.touch(158, "q", [f"s_add_u32 s32, s64, {BX1[0]}"], False)),
                                ("b", lambda: k.touch(159, "h", h_base("s32", 0), False) if P.h_touch0 == "k" else None)]))
        if s == P.k_gb: streams.append((1, [("v", lambda t=t: k.vm(t, "gb")) for t in GB_LOADS]))
        if s == P.k_chk: streams.append((1, [("b", lambda: rendezvous(k))]))
        if s == 15 and P.k_chk < 16:
            streams.append((max(P.k_bar, 4), [("b", lambda: (k.e("s_barrier"), k.mark("xfree")))]))
        fill(k, mains, streams)
        if s in (3, 7, 11): k.stamp(f"k{s+1}")
    k.stamp("k16")
    if P.k_chk >= 16: rendezvous(k)

GB_LOADS = [f"buffer_load_dwordx4 {vr(36+4*j,4)}, v{vL16}, {SRD_WS}, s75 offen offset:{j*1024} sc1" for j in range(4)] + \
           [f"buffer_load_dword v{vP}, v172, {SRD_WS}, s77 offen offset:8 sc1"]
def arrive(k):
    k.wait(vm=["tag"])
    k.e(f"v_readfirstlane_b32 s{sTAG}, v170", f"s_cmp_eq_u32 s{sTAG}, 0", "s_cbranch_scc1 L_tag_spin ;np", "L_tag_ok: ;np")
    k.spins += ["L_tag_spin:", f"s_sub_u32 s{sBUD}, s{sBUD}, 1", "s_cbranch_scc1 L_tag_give", f"buffer_load_dword v170, v{vFA}, {SRD_DBG}, 0 offen sc1",
                "s_waitcnt vmcnt(0)", f"v_readfirstlane_b32 s{sTAG}, v170", f"s_cmp_eq_u32 s{sTAG}, 0", "s_cbranch_scc1 L_tag_spin", "s_branch L_tag_ok",
                "L_tag_give:", f"s_mov_b32 s{sBUD}, 0", "s_branch L_tag_ok"]
    k.e(f"v_mov_b32 v176, s{sTAG}", "v_not_b32 v177, v176", f"v_mov_b32 v178, s{sXCC}")
    k.vm(f"buffer_store_dwordx4 v[176:179], v171, {SRD_WS}, s75 offen sc1", "arr")

def rendezvous(k):
    chk = [f"s_not_b32 s32, s{sTAG}"]
    for j in range(4): chk += [f"v_xor_b32 v{36+4*j}, s{sTAG}, v{36+4*j}", f"v_xor_b32 v{37+4*j}, s32, v{37+4*j}"]
    chk += ["v_or3_b32 v36, v36, v37, v40", "v_or3_b32 v44, v44, v45, v41", "v_or3_b32 v36, v36, v48, v49", "v_or_b32 v36, v36, v44", "v_cmp_ne_u32 vcc, 0, v36"]
    k.wait(vm=["gb"])
    k.e(*chk); k.e("s_cbranch_vccnz L_gb_spin ;np", "L_gb_ok: ;np")
    k.spins += ["L_gb_spin:", f"s_sub_u32 s{sBUD}, s{sBUD}, 1", "s_cbranch_scc1 L_gb_give", "s_sleep 2",
                f"buffer_load_dword v170, v{vFA}, {SRD_DBG}, 0 offen sc1", "s_waitcnt vmcnt(0)", "v_readfirstlane_b32 s32, v170", f"s_cmp_eq_u32 s32, s{sTAG}",
                "s_cbranch_scc1 L_gb_same", f"s_mov_b32 s{sTAG}, s32", f"v_mov_b32 v176, s{sTAG}", "v_not_b32 v177, v176",
                f"buffer_store_dwordx4 v[176:179], v171, {SRD_WS}, s75 offen sc1", "L_gb_same:"] + GB_LOADS + ["s_waitcnt vmcnt(0)"] + chk + \
               ["s_cbranch_vccnz L_gb_spin", "s_branch L_gb_ok", "L_gb_give:", f"s_mov_b32 s{sBUD}, 0", "s_branch L_gb_ok"]
    k.e(f"v_cmp_ne_u32 vcc, s{sXCC}, v{vP}", "s_and_b32 s99, vcc_lo, 0xffff" if not P.safe else "s_and_b32 s99, 1, 1",
        f"s_cselect_b32 s{sML}, {OOB>>1:#x}, 0", f"s_cselect_b32 s{sMS}, 0, {OOB>>1:#x}")
    k.mark("gb")

W_OA, W_UA, W_SA, W_RB = 152, 154, 155, 156
def wo_bases(k):
    k.e(f"s_lshl_b32 s32, s{sB}, 2", f"s_add_u32 s32, s32, s{sW}", "s_lshl_b32 s64, s32, 14", f"s_lshl_b32 s33, s{sCS}, 10", "s_add_u32 s64, s64, s33",
        "s_lshr_b32 s32, s32, 1", "s_lshl_b32 s80, s32, 15", "s_lshl_b32 s65, s32, 11", "s_lshl_b32 s66, s32, 3", f"s_add_u32 s66, s66, s{sCS}", "s_lshl_b32 s66, s66, 1",
        f"s_and_b32 s32, s{sW}, 1", "s_add_u32 s66, s66, s32", "s_lshl_b32 s66, s66, 2", "s_lshl_b32 s32, s32, 8", "s_add_u32 s80, s80, s32", "s_add_u32 s65, s65, s32",
        f"s_lshr_b32 s32, s{sCS}, 1", "s_lshl_b32 s32, s32, 9", "s_add_u32 s65, s65, s32", f"s_and_b32 s32, s{sCS}, 1", "s_lshl_b32 s32, s32, 3", "s_add_u32 s65, s65, s32")
def wo_lanes(k):
    x, y = 66, 67
    return [lambda t=t: k.e(*t) for t in (
        [f"v_and_b32 v{x}, 15, v1"], [f"v_lshrrev_b32 v{y}, 4, v1"], [f"v_lshlrev_b32 v{W_OA}, 4, v{x}"], [f"v_lshl_add_u32 v{W_SA}, v{y}, 2, v{W_OA}"],
        [f"v_lshl_add_u32 v{W_OA}, v{y}, 9, v{W_OA}"], [f"v_and_b32 v{W_UA}, 7, v1"], [f"v_lshlrev_b32 v{W_UA}, 4, v{W_UA}"], [f"v_lshl_add_u32 v{W_UA}, v{y}, 7, v{W_UA}"],
        [f"v_lshrrev_b32 v{x}, 3, v{x}"], [f"v_lshl_add_u32 v{W_UA}, v{x}, 13, v{W_UA}"], [f"v_add_u32 v{W_RB}, {6*16384}, v{vL16}"],
        ["v_cmp_gt_u32 vcc, 32, v1", f"v_mov_b32 v{y}, {OOB:#x}", f"v_cndmask_b32 v{W_SA}, v{y}, v{W_SA}, vcc"])]
def blanks(k, layer):
    if not P.tags: return [lambda: k.mark("blank")]
    z = 66
    return [lambda: (k.e(f"v_mov_b32 v{z}, -1"), k.dstore(f"buffer_store_dword v{z}, v{vL16}, {SRD_WS}, s53 offen", "blank")),
            lambda: (k.e(f"s_add_u32 s58, s64, {BX1[layer]}"), k.dstore(f"buffer_store_dword v{z}, v{W_UA}, {SRD_WS}, s58 offen", "blank")),
            lambda: k.dstore(f"buffer_store_dword v{z}, v{W_UA}, {SRD_WS}, s58 offen offset:512", "blank"),
            lambda: (k.e(f"s_add_u32 s58, s65, {BS1[layer]}"), k.dstore(f"buffer_store_dword v{z}, v{W_SA}, {SRD_WS}, s58 offen", "blank"), k.mark("blank"))]
def wo_prepoll(k, layer):
    k.poll_addr(A_PA, 32)
    k.e(f"s_lshl_b32 s32, s{sB}, 7", f"s_add_u32 s{sPO}, s32, {fl(layer, FL_O)}", f"s_add_u32 s59, s80, {BO[layer]}")
    k.bg_held = True
    k.poll_issue(A_PA, "po1"); k.mark("po1")

def dna(k): return regloads(k, sDS, 0, lambda j: ar(192 + 4*j, 4), 16, "dna")

def tail_prep(k):
    R = R0
    A = lambda *t: [("a", lambda x=x: k.e(x)) for x in t]
    B = lambda *t: [("b", lambda: k.e(*t))]
    ops = A("v_and_b32 v73, 15, v1", "v_lshrrev_b32 v74, 4, v1", "v_lshlrev_b32 v73, 10, v73", "v_lshl_add_u32 v73, v74, 4, v73")
    ops += B(f"s_lshl_b32 s58, s{sB}, 2", f"s_add_u32 s58, s58, s{sW}", "s_lshl_b32 s58, s58, 14", f"s_lshl_b32 s59, s{sCS}, 7", "s_add_u32 s58, s58, s59")
    ops += [("v", lambda p=p: k.vm(f"buffer_load_dwordx4 {vr(RES+4*p,4)}, v73, {SRD_X}, s58 offen offset:{p*64}", "res")) for p in range(2)]
    ops += A("v_and_b32 v75, 3, v1", "v_cmp_eq_u32 s[34:35], 1, v75", "v_cmp_eq_u32 s[36:37], 2, v75", "v_cmp_eq_u32 s[38:39], 3, v75", "v_bfe_u32 v75, v1, 2, 2")
    ops += B("v_cmp_eq_u32 vcc, v75, v74", f"v_mov_b32 v72, {L_SA0 + 768}", f"s_lshl_b32 s59, s{sW}, 7", f"v_add_u32 v74, s59, v{R.SA}",
             "v_cndmask_b32 v74, v72, v74, vcc", f"v_cndmask_b32 v75, v72, v{R.SA}, vcc")
    return ops + [("a", f) for f in wo_lanes(k)]

def l0_background(k):
    k.per = dict(P.per_k)
    dd = dna(k)
    bg_list(k, dd[:P.dna_first], "s4", "dna", "gb")
    bg_list(k, wow(k), "s4", "wow", "xfree")
    bg_batches(k, [0, 1, 2, 3], "s2", lambda b: "xfree")
    bg_batches(k, [4], "s2", lambda b: "wobar")
    bg_batches(k, [5], "s2", lambda b: "xfree")
    bg_batches(k, [6, 7, 8, 9], "s2", lambda b: "gubar")
    bg_list(k, dd[P.dna_first:], "s4", "dna")
P.per_k = {"s2": 90, "s4": 70}

def a10_tail(k):
    R = R0
    k.per = dict(P.per_tail0)
    k.stamp("t0 gb")
    k.touch(72, "t", [f"s_add_u32 s32, s65, {BS1[0]}"])
    k.bg_burst(2)
    hk, hv = z_acc("h")[1], z_acc("h")[2]
    for r in range(4):
        k.e(f"v_mov_b32_dpp v{CSQ+r}, v{Z_CV+r} row_newbcast:0 row_mask:0xf bank_mask:0xf", f"v_mov_b32_dpp v{CSK+r}, v{hk+r} row_newbcast:0 row_mask:0xf bank_mask:0xf")
    k.e(f"v_mov_b32 v{CSV}, v{hv}", f"v_mov_b32 v45, v{hv}", f"v_permlane16_swap_b32 v{CSV}, v45", f"v_mov_b32 v45, v{CSV}", f"v_permlane32_swap_b32 v{CSV}, v45")
    fa = Flex(); fb = Flex()
    for fx, S, G, ad, off in ((fa, Z_SUM, Z_GR, 74, 128), (fb, Z_SUMH, Z_GRH, 75, 0)):
        a = lambda txt, c=1, fx=fx: fx.add(lambda: k.e(txt), c)
        a(f"v_cndmask_b32 v{S+1}, v{G}, v{G+1}, s[34:35]"); a(f"v_cndmask_b32 v{S+1}, v{S+1}, v{G+2}, s[36:37]"); a(f"v_cndmask_b32 v{S+1}, v{S+1}, v{G+3}, s[38:39]")
        ln_finish(a, S, S + 1); a(f"v_rsq_f32 v{S+1}, v{S+1}"); fx.skip(1)
        fx.add(lambda S=S, ad=ad, off=off: k.ds(f"ds_write_b64 v{ad}, {vr(S,2)} offset:{off}", "saw"))
    drain([fa, fb], k)
    for f in blanks(k, 0): f()
    k.wait(lg="all"); k.e("s_barrier"); k.mark("xfree")
    k.stamp("t0 bar")
    fx = Flex(); f1 = Flex(); f2 = Flex()
    od = (2, 1, 3, 0, "h"); Ss = (A_STA, 56)
    for f in fix_reads(k, R, od[0], Ss[0]): f()
    for n, t in enumerate(od):
        fix(k, R, fx, t, z_acc(t), 0, True, Ss[n & 1], True, fix_reads(k, R, od[n + 1], Ss[~n & 1]) if n < 4 else ()); fx.skip(1)
    attn(k, R, f1, 2, R.ATT[0]); attn(k, R, f2, 3, R.ATT[1]); ostore(k, f2, 1)
    attn(k, R, f1, 1, R.ATT[0]); attn(k, R, f2, 0, R.ATT[1]); ostore(k, f2, 0)
    f3 = Flex(); f3.dep(("ost", 1))
    for _ in range(P.l0_flag_delay): f3.skip(1)
    f3.add(lambda: (k.wait(vm=[("ost", 1)]), k.flag(1, 89), k.mark("oflag1")))
    f3.dep(("attn", 0)); f3.add(lambda: wo_prepoll(k, 0))
    drain([fx, f1, f2, f3], k)
    k.stamp("a1 end")
P.l0_flag_delay = 6; P.dna_first = 2
P.per_tail0 = {"s2": 70, "s4": 45}

def a11_bases(k):
    out = []
    S = lambda *t: out.extend(lambda x=x: k.e(x) for x in t)
    S(f"s_lshr_b32 s70, s{sW}, 1", "s_lshl_b32 s49, s70, 13", f"s_and_b32 s71, s{sW}, 1", "s_lshl_b32 s71, s71, 2",
      f"s_add_u32 s50, s71, s{sROT}", "s_lshl_b32 s71, s71, 10")
    for i in range(4):
        S(f"s_add_u32 s70, s50, {i}", "s_and_b32 s70, s70, 7", "s_lshl_b32 s70, s70, 10", "s_add_u32 s70, s70, s49", f"s_sub_u32 s{92+i}, s70, {i*1024}")
    S("s_add_u32 s49, s49, s71", f"s_lshl_b32 s47, s{sB}, 16", f"s_add_u32 s47, s47, {WS_X[1]}")
    S(f"s_sub_u32 s48, s{sB}, 1", "s_max_i32 s48, s48, 0", "s_lshl_b32 s51, s48, 10", f"s_add_u32 s51, s51, {WS_HST}",
      "s_lshl_b32 s52, s48, 11", f"s_add_u32 s52, s52, {WS_HXF}", "s_lshl_b32 s48, s48, 14", f"s_add_u32 s48, s48, {WS_HALO}")
    S("v_lshrrev_b32 v28, 4, v1", "v_and_b32 v29, 15, v1", "v_lshlrev_b32 v29, 4, v29", f"v_lshl_add_u32 v{A_U}, v28, 9, v29", f"v_lshl_add_u32 v{A_U+1}, v28, 8, v29")
    S(f"s_lshl_b32 s70, s{sB}, 12", f"s_and_b32 s71, s{sW}, 1", "s_lshl_b32 s71, s71, 8", "s_add_u32 s70, s70, s71", f"s_add_u32 s90, s70, {WS_ST[1]}")
    out.append(lambda: k.e(f"s_lshl_b32 s70, s{sB}, 1", f"s_add_u32 s70, s70, s{sW}", "s_lshl_b32 s72, s70, 13", f"s_lshl_b32 s71, s{sCS}, 10", "s_add_u32 s72, s72, s71",
        f"s_add_u32 s72, s72, {WS_HALO - 16384}", f"s_cmp_ge_u32 s{sW}, 2", f"s_cselect_b32 s72, s72, {OOB>>1:#x}"))
    out.append(lambda: k.e(f"s_lshl_b32 s73, s{sB}, 10", f"s_lshr_b32 s71, s{sCS}, 1", "s_lshl_b32 s71, s71, 8", "s_add_u32 s73, s73, s71", f"s_and_b32 s71, s{sCS}, 1",
        "s_lshl_b32 s71, s71, 3", "s_add_u32 s73, s73, s71"))
    out.append(lambda: k.e(f"s_lshl_b32 s71, s{sW}, 7", "s_add_u32 s73, s73, s71", f"s_add_u32 s73, s73, {WS_HST - 256}",
        f"s_cmp_ge_u32 s{sW}, 2", f"s_cselect_b32 s73, s73, {OOB>>1:#x}"))
    out.append(lambda: k.e(f"s_lshl_b32 s70, s{sB}, 3", f"s_add_u32 s70, s70, s{sCS}", "s_lshl_b32 s70, s70, 1", f"s_add_u32 s70, s70, s{sW}", "s_lshl_b32 s70, s70, 7",
        f"s_add_u32 s70, s70, {WS_HXF - 256}", f"s_cmp_ge_u32 s{sW}, 2", f"s_cselect_b32 s91, s70, {OOB>>1:#x}"))
    return out

def a11_x(k, tile):
    fns = []
    for i in range(4):
        def f(i=i):
            k.set_m0(f"s_add_u32 m0, s49, {A11_POS[tile]*16384}")
            k.e(f"s_add_u32 s32, s{48 if tile == 'h' else 47}, s{92+i}")
            if tile not in (0, "h"): k.e(f"s_add_u32 s32, s32, {tile*16384}")
            k.vm(f"buffer_load_dwordx4 v{vL16}, {SRD_WS}, s32 offen offset:{i*1024} sc1 lds", ("x", tile))
        fns.append(f)
    return fns

def stats_path(k, fx, S, tag, addr, tok, at=0):
    a = lambda txt, c=1: fx.add(lambda: k.e(txt), c)
    s, q = S, S + 1
    fx.add(lambda: k.wait(vm=[tag]), 1, at)
    a(f"v_add_f32 v{s}, v{s}, v{S+2}"); a(f"v_add_f32 v{q}, v{q}, v{S+3}"); fx.skip(1)
    a(f"v_permlane16_swap_b32 v{s}, v{q}", 2); a(f"v_add_f32 v{s}, v{s}, v{q}"); a(f"v_mov_b32 v{q}, v{s}"); fx.skip(1)
    a(f"v_permlane32_swap_b32 v{s}, v{q}", 2); a(f"v_add_f32 v{s}, v{s}, v{q}"); a(f"v_mov_b32 v{q}, v{s}"); fx.skip(1)
    a(f"v_permlane16_swap_b32 v{s}, v{q}", 2)
    ln_finish(a, s, q); a(f"v_rsq_f32 v{q}, v{q}", 2); fx.skip(1)
    fx.add(lambda: (k.ds(f"ds_write_b64 v{addr}, {vr(s,2)} offset:{tok*8}", ("saw", tag)), k.mark(("saw", tag))))

def a11_early(k, later=False):
    fns = a11_x(k, A11_ORDER[0]) + [lambda: k.vm(f"buffer_load_dwordx4 {vr(A_ST,4)}, v{A_U}, {SRD_WS}, s90 offen offset:2048 sc1", "st0")] + a11_x(k, A11_ORDER[1])
    if later: return fns
    for f in fns: f()

def a11_main(k):
    R = R1; order = A11_ORDER
    steps = [(t, s) for t in order for s in range(16)]
    accof = lambda t: A_ACC + 12 * (order.index(t) % 3)
    def xread(i):
        t, s = steps[i]
        off = A11_POS[t] * 16384 + (s >> 1) * 1024
        k.ds(f"ds_read_b128 {vr(A_XF+4*(i%4),4)}, v{R.XO if s&1 else R.XE} offset:{off}", ("xf", i))
    mains = []; fixed = {}; gap_of = {}
    need_sa = {order[1]: ["st0"], order[2]: ["st1"], order[3]: [], "h": []}
    for i, (t, s) in enumerate(steps):
        acc = accof(t); xf = vr(A_XF + 4*(i % 4), 4)
        c = lambda r, s=s: "0" if s == 0 else vr(r, 4)
        ms = []
        if t != "h": ms.append(f"{MF16} {vr(acc,4)}, {ar(12*s,4)}, {xf}, {c(acc)}")
        ms.append(f"{MF16} {vr(acc+4,4)}, {ar(12*s+4,4)}, {xf}, {c(acc+4)}")
        ms.append(f"{MF16} {vr(acc+8,4)}, {xf}, {ar(12*s+8,4)}, {c(acc+8)}")
        gap_of[(t, s)] = len(mains)
        for m in ms: mains.append(lambda m=m: k.e(m))
        last = len(mains) - 1
        fl_ = fixed.setdefault(last, [])
        if i + 1 < len(steps): fl_.append((0, lambda i=i: k.wait(lg=[("xf", i + 1)])))
        j = i + 4
        if j < len(steps):
            tj, sj = steps[j]
            if sj == 0:
                def bar(tj=tj):
                    k.wait(vm=[("x", tj)], lg=[("saw", n) for n in need_sa[tj]]); k.e("s_barrier"); k.mark(("bar", tj))
                fixed.setdefault(gap_of[(t, s)], []).append((1, bar))
            fixed[last].append((1, lambda j=j: xread(j)))
    fx = Flex(); fz = Flex(); fz2 = Flex(); fy = Flex(); fm = Flex()
    k.e(f"s_and_b32 s32, s{sW}, 1", "s_lshl_b32 s32, s32, 7", f"v_add_u32 v7, s32, v{R.SA}")
    o_bases(k, 1)
    stats_path(k, fy, A_ST, "st0", 7, 48)
    g1 = P.a1_late_gap
    fm.add(lambda: (k.wait(vm=[("xst", 1)]), k.flag(2)), 3, P.a1_flag_gap)
    fm.add(lambda: (k.poll_issue(A_PX, "px2"), setattr(k, "bg_held", not P.a1_bg_early)), 1, g1 - P.a1_poll_lead)
    fm.add(lambda: k.poll_check(A_PX, "px2", 2), 2, g1)
    fm.add(lambda: k.vm(f"buffer_load_dwordx4 {vr(56,4)}, v{A_U}, {SRD_WS}, s90 offen sc1", "st1"))
    for t in order[2:4]:
        for f in a11_x(k, t): fm.add(f, 2); fm.skip(P.a1_xgap)
    for f in wo_lanes(k): fy.add(f)
    fy.add(lambda: k.mark("wolanes"), 0)
    fm.dep("wolanes")
    fm.add(lambda: k.e(f"s_add_u32 s58, s64, {WS_X[1]}"))
    for p in range(2): fm.add(lambda p=p: k.vm(f"buffer_load_dwordx4 {vr(RES+4*p,4)}, v{W_UA}, {SRD_WS}, s58 offen offset:{p*512} sc1", "res")); fm.skip(P.a1_xgap)
    def halo_poll():
        k.poll_addr(A_PX, 16, 7)
        k.e(f"s_mov_b32 s{sPO}, s52", f"s_min_u32 s50, s{sB}, 1")
        k.poll_issue(A_PX, "phx"); k.bg_held = False
    fm.add(halo_poll, 3)
    for c in P.t1_a1:
        if c == "o": fm.add(lambda: k.touch(60, "p", ["s_mov_b32 s32, s53"]), 6)
        if c == "x": fm.add(lambda: k.touch(62, "q", [f"s_add_u32 s32, s64, {BX1[1]}"]), 6)
        if c == "s": fm.add(lambda: k.touch(64, "t", [f"s_add_u32 s32, s65, {BS1[1]}"]), 4)
    for f in blanks(k, 1): fm.skip(P.a1_xgap); fm.add(f, 3)
    stats_path(k, fy, 56, "st1", 7, 16, g1 + 26)
    fm.dep(("bar", order[2]))
    fm.add(lambda: k.poll_check(A_PX, "phx", "s50"), 2)
    fm.add(lambda: k.vm(f"buffer_load_dwordx4 {vr(A_ST,4)}, v{A_U+1}, {SRD_WS}, s51 offen sc1", "sth"))
    for f in a11_x(k, "h"): fm.add(f, 2); fm.skip(P.a1_xgap)
    stats_path(k, fy, A_ST, "sth", R.SA, 0, gap_of[(order[3], P.a1_sth)])
    k.per = dict(P.per_a1); k.bg_held = True
    b5 = batch(k, 5)
    mix = [(f, "s2", ("gw", 4), None) for f in batch(k, 4)] + [(f, "s2", ("gw", 5), None) for f in b5[:3]]
    ww = [(f, "s4", "wow", None) for f in wow(k)]
    while mix or ww:
        k.bg += ww[:2]; ww = ww[2:]
        if mix: k.bg.append(mix.pop(0))
    bg_batches(k, [0], "s2", lambda b: ("bar", order[3]))
    bg_batches(k, [1], "s2", lambda b: ("bar", "h"))
    bg_batches(k, [2, 3], "s2", lambda b: "wobar")
    bg_list(k, b5[3:], "s2", ("gw", 5), "wobar")
    if P.dn1_agpr:
        for j, f in enumerate(regloads(k, sDS, 16*1024, lambda j: ar(4*j, 4), 40, "dnr", tagf=lambda j: ("dnr", 8 + j // 2))): k.bg_add(f, "s4", ("dnr", 8 + j // 2), "gemm_done")
    bg_batches(k, [6, 7, 8, 9], "s2", lambda b: "gubar")
    A = lambda t: (accof(t) if t != "h" else None, accof(t) + 4, accof(t) + 8)
    for n in range(4): fix(k, R, fx, order[n], A(order[n]), gap_of[(order[n + 1], 1 if n < 3 else 2)], False)
    attn(k, R, fz, 3, R.ATT[0]); attn(k, R, fz2, 2, R.ATT[1]); ostore(k, fz2, 1)
    attn(k, R, fz, 1, R.ATT[0])
    fx.dep(("saw", "sth"))
    for f in fix_reads(k, R, "h", A_STA): fx.add(f)
    fx.dep("gemm_done")
    fix(k, R, fx, "h", A("h"), 0, False, pre=True); attn(k, R, fz2, 0, R.ATT[1]); ostore(k, fz2, 0)
    f3 = Flex(); f3.dep(("ost", 1)); f3.skip(P.l1_flag_delay)
    f3.add(lambda: (k.wait(vm=[("ost", 1)]), k.flag(1, 89), k.mark("oflag1")), 3)
    f3.dep(("attn", 0)); f3.add(lambda: wo_prepoll(k, 1))
    k.wait(vm=[("x", order[0])]); k.e("s_barrier")
    for i in range(4): xread(i)
    k.wait(lg=[("xf", 0)])
    k.stamp("a1 first")
    if k.stamping:
        for t in order[1:]: fixed.setdefault(gap_of[(t, 0)], []).append((0, lambda t=t: k.stamp(f"a1 t{t}")))
        for g in range(6, 224, 12): fixed.setdefault(g, []).append((0, lambda g=g: k.stamp(f"fina {g}")))
    run_gaps(k, mains, fixed, [fm, f3, fy, fx, fz2, fz], 2, over=lambda i: i >= P.a1_over)
    print("a11 left:", len(fm), len(fy), len(fx), len(fz), len(fz2), len(k.bg), {n: g for n, g in k.marks.items() if isinstance(n, tuple) and n[0] in ("fix", "attn", "saw", "ost")})
    k.mark("gemm_done"); k.bg_held = P.a1_tailhold
    k.stamp("a1 gemm")
    drain([fm, fy, fx, fz, fz2, f3], k)
    for n in range(2): assert k.marks[("fix", order[n])] < gap_of[(order[n + 3], 0)], "accumulator reused too early"
    k.stamp("a1 end")
P.a1_flag_gap, P.a1_late_gap, P.a1_poll_lead, P.l1_flag_delay, P.a1_over = 8, 36, 18, 14, 48
P.a1_bg_early = False; P.a1_salead = 8; P.a1_tailhold = True; P.touch1 = 1; P.t1_a1 = 'oxs'; P.t1_dn = ''; P.a1_xgap = 3; P.a1_sth = 4
P.per_a1 = {"s2": 95, "s4": 60}

R_W0, R_W1, R_RD, R_ST, R_OUT = 3, 4, 5, 6, 7
def red_setup(k, posA, dAB):
    x, y, z, u = 28, 29, 30, 31
    k.e(f"s_add_u32 s32, s{sGL}, {posA*16384}", f"v_add_u32 v{R_W0}, s32, v{vL16}", f"v_xor_b32 v{R_W1}, 128, v{R_W0}")
    k.e(f"v_and_b32 v{x}, 7, v1", f"v_lshrrev_b32 v{y}, 3, v1", f"s_lshl_b32 s32, s{sW}, 7", f"v_lshl_add_u32 v{z}, v{x}, 4, s32",
        f"v_bfe_u32 v{u}, v1, 4, 1", f"v_lshlrev_b32 v{R_RD}, 7, v{u}", f"v_xor_b32 v{z}, v{z}, v{R_RD}",
        f"v_bfe_u32 v{R_RD}, v1, 3, 2", f"v_lshl_add_u32 v{z}, v{R_RD}, 10, v{z}", f"v_lshrrev_b32 v{R_RD}, 5, v1",
        f"v_mul_u32_u24 v{R_RD}, {dAB*16384}, v{R_RD}", f"v_add_u32 v{z}, v{z}, v{R_RD}", f"v_add_u32 v{R_RD}, {posA*16384}, v{z}")
    k.e(f"v_lshlrev_b32 v{z}, 4, v{x}", f"v_lshl_add_u32 v{z}, v{u}, 2, v{z}", f"v_and_b32 v{u}, 0x28, v1",
        f"v_cmp_eq_u32 vcc, 0, v{u}", f"v_mov_b32 v{u}, {OOB:#x}", f"v_cndmask_b32 v{R_ST}, v{u}, v{z}, vcc")
    k.e(f"v_lshlrev_b32 v{z}, 10, v{x}", f"v_lshl_add_u32 v{R_OUT}, v{y}, 4, v{z}")

def red_bases(k):
    k.e(f"s_lshl_b32 s32, s{sB}, 3", f"s_add_u32 s32, s32, s{sW}", "s_lshl_b32 s55, s32, 13", f"s_lshl_b32 s33, s{sCS}, 10", "s_add_u32 s55, s55, s33")
    k.e("s_lshl_b32 s57, s32, 13", f"s_lshl_b32 s33, s{sCS}, 7", "s_add_u32 s57, s57, s33")
    k.e(f"s_lshl_b32 s56, s{sB}, 12", f"s_lshr_b32 s33, s{sCS}, 1", "s_lshl_b32 s33, s33, 9", "s_add_u32 s56, s56, s33",
        f"s_and_b32 s33, s{sCS}, 1", "s_lshl_b32 s33, s33, 3", "s_add_u32 s56, s56, s33", f"s_lshl_b32 s33, s{sW}, 7", "s_add_u32 s56, s56, s33")

def red_writes(k, acc, g, off, dAB):
    return [lambda q=q: k.ds(f"ds_write_b128 v{R_W1 if (q>>1)&1 else R_W0}, {vr(acc+4*q,4)} offset:{off + (q>>2)*dAB*16384 + (q&3)*1024}", ("rw", g)) for q in range(8)]
def red_reads(k, g, T, off):
    return [lambda w=w, hf=hf: k.ds(f"ds_read_b128 {vr(T+8*w+4*hf,4)}, v{R_RD} offset:{off + w*4096 + hf*512}", ("rr", g, w)) for w in range(4) for hf in range(2)]

def red_finish(k, fx, g, mm, T, xdst, stdst, final, pk):
    a = lambda txt, c=1: fx.add(lambda: k.e(txt), c)
    R = RES + 4 * mm
    def add8(d, s):
        if pk:
            for i in range(0, 8, 2): a(f"v_pk_add_f32 {vr(d+i,2)}, {vr(d+i,2)}, {vr(s+i,2)}")
        else:
            for i in range(8): a(f"v_add_f32 v{d+i}, v{d+i}, v{s+i}")
    fx.add(lambda: k.wait(lg=[("rr", g, 1)]))
    add8(T, T + 8)
    for i in range(4): a(f"v_lshlrev_b32 v{T+8+2*i}, 16, v{R+i}"); a(f"v_and_b32 v{T+9+2*i}, 0xffff0000, v{R+i}")
    add8(T, T + 8)
    fx.add(lambda: k.wait(lg=[("rr", g, 3)]))
    add8(T + 16, T + 24); add8(T, T + 16)
    for i in range(4): a(f"v_cvt_pk_bf16_f32 v{R+i}, v{T+2*i}, v{T+2*i+1}")
    if final:
        fx.add(lambda: (k.e(f"s_add_u32 s32, s57, {mm*32768}"), k.vm(f"buffer_store_dwordx4 {vr(R,4)}, v{R_OUT}, {SRD_OUT}, s32 offen {P.outm}", ("xst", g))))
        return
    fx.add(lambda: (k.e(f"s_add_u32 s32, s55, {xdst + mm*32768}"), k.dstore(f"buffer_store_dwordx4 {vr(R,4)}, v{vL16}, {SRD_WS}, s32 offen", ("xst", g))), 2)
    s, q = T + 32, T + 33
    a(f"v_add_f32 v{s}, v{T}, v{T+1}"); a(f"v_mul_f32 v{q}, v{T}, v{T}"); a(f"v_fmac_f32 v{q}, v{T+1}, v{T+1}")
    for i in range(2, 8): a(f"v_add_f32 v{s}, v{s}, v{T+i}"); a(f"v_fmac_f32 v{q}, v{T+i}, v{T+i}")
    fx.skip(1)
    a(f"v_add_f32_dpp v{s}, v{s}, v{s} row_ror:8 row_mask:0xf bank_mask:0xf"); a(f"v_add_f32_dpp v{q}, v{q}, v{q} row_ror:8 row_mask:0xf bank_mask:0xf")
    fx.skip(1)
    a(f"v_permlane16_swap_b32 v{s}, v{q}", 2); a(f"v_add_f32 v{s}, v{s}, v{q}"); a(f"v_mov_b32 v{q}, v{s}"); fx.skip(1)
    a(f"v_permlane32_swap_b32 v{s}, v{q}", 2); a(f"v_add_f32 v{s}, v{s}, v{q}")
    fx.add(lambda: (k.e(f"s_add_u32 s32, s56, {stdst + mm*2048}"), k.dstore(f"buffer_store_dword v{s}, v{R_ST}, {SRD_WS}, s32 offen", ("xst", g)), k.mark(("xst", g))), 2)

def merge(k, fx, extra, first=0):
    extra = list(extra)
    items = [it for it in fx.items if it[0] != "skip"]; fx.items = []
    per = max(1, (len(items) - first) // max(1, len(extra)))
    for n, it in enumerate(items):
        if n >= first and (n - first) % per == 0 and extra: extra.pop(0)()
        it[1](); k.bg_step()
    for f in extra: f(); k.bg_step()

def wo(k, layer):
    BF, WQ, ACC, T, PA, NQ = 32, 160, 192, 208, A_PA, 8
    state = {}
    def bload(sx):
        k.set_s(f"s_add_u32 s58, s59, {(sx & ~1)*2048}")
        k.vm(f"buffer_load_dwordx4 {vr(BF+4*sx,4)}, v{W_OA}, {SRD_WS}, s58 offen offset:{(sx%2)*2048} sc1", ("b", sx))
    def wread(n): k.ds(f"ds_read_b128 {vr(WQ+4*(n%NQ),4)}, v{W_RB} offset:{n*1024}", ("wq", n))
    k.wait(vm=["wow"]); k.e("s_barrier"); k.mark("wobar")
    k.stamp("wl bar")
    for n in range(NQ): wread(n)
    btxt = lambda sx: [f"s_add_u32 s99, s59, {sx*2048}", f"buffer_load_dwordx4 {vr(BF+4*sx,4)}, v{W_OA}, {SRD_WS}, s99 offen sc1"]
    bchk = lambda sx: k.valid([f"v_cmp_eq_u32 vcc, -1, v{BF+4*sx}"], btxt(sx))
    ptxt = f"buffer_load_dword v{T+20}, v{T+21}, {SRD_WS}, s59 offen sc1"
    if P.tags:
        k.e(f"v_lshlrev_b32 v{T+21}, 8, v{PA}")
        k.e(f"v_or_b32 v{T+21}, v{T+21}, v{PA}", f"v_and_b32 v{T+21}, 0x80007c00, v{T+21}")
        k.poll_check(PA, "po1", 1)
        k.vm(ptxt, "probe")
        for sx in range(P.wo_spec): bload(sx)
        k.e(f"s_lshl_b32 s32, s{sC}, 1", f"s_and_b32 s33, s{sW}, 1", "s_add_u32 s32, s32, s33", "s_lshl_b32 s32, s32, 7", f"s_add_u32 s{sPO}, s32, {fl(layer, FL_O)}")
    else:
        k.e(f"s_add_u32 s{sFO}, s66, {fl(layer, FL_X1)}")
        if P.wo_setup_first == 2: gu_setup(k, layer)
        k.wait(vm=[("ost", 0)]); k.stamp("wl ack"); k.flag(2, 89)
        k.e(f"s_cmp_lt_u32 s{sW}, 2", f"s_cbranch_scc1 L_wo_late{layer}")
        q0 = list(k.vmq)
        k.poll_check(PA, "po1", 1)
        for sx in range(P.wo_lead): bload(sx)
        if P.wo_setup_first == 1: gu_setup(k, layer)
        k.e(f"s_branch L_wo_join{layer}")
        k.label(f"L_wo_late{layer}")
        k.vmq = list(q0)
        if P.wo_setup_first == 1: gu_setup(k, layer)
        k.poll_issue(PA, "po2"); k.poll_wait(PA, "po2", 2, 157); k.stamp("wl go")
        for sx in range(P.wo_lead): bload(sx)
        k.label(f"L_wo_join{layer}")
    if P.tags or not P.wo_setup_first: gu_setup(k, layer)
    k.stamp("wo issued")
    mains = []; fixed = {}
    for n in range(64):
        sx, j = divmod(n, 4)
        mains.append(lambda n=n, sx=sx, j=j: k.e(f"{MF16} {vr(ACC+4*j,4)}, {vr(WQ+4*(n%NQ),4)}, {vr(BF+4*sx,4)}, {'0' if sx == 0 else vr(ACC+4*j,4)}"))
        fl_ = fixed.setdefault(n, [])
        if n < 63: fl_.append((0, lambda n=n: k.wait(vm=[("b", (n + 1) // 4)] if (n + 1) % 4 == 0 else None, lg=[("wq", n + 1)])))
        if P.tags and n < 63 and (n + 1) % 4 == 0: fl_.append((1, lambda n=n: bchk((n + 1) // 4)))
        if P.tags and n == 42: fl_.append((1, lambda: k.poll_issue(PA, "px1")))
        if n + NQ < 64: fl_.append((1, lambda n=n: wread(n + NQ)))
        if n % P.wo_bstep == 0 and P.wo_lead + n // P.wo_bstep < 16: fl_.append((1, lambda n=n: bload(P.wo_lead + n // P.wo_bstep)))
    fx = Flex()
    a = lambda txt, c=1, at=0: fx.add(lambda: k.e(txt), c, at)
    fx.add(lambda: k.wait(vm=["res"]), 1, 8)
    for i in range(8): a(f"v_lshlrev_b32 v{T+2*i}, 16, v{RES+i}"); a(f"v_and_b32 v{T+2*i+1}, 0xffff0000, v{RES+i}")
    k.per = dict(P.per_wo[layer]); k.bg_held = False; k.bg_next = k.t + P.wo_bg_delay
    if P.tags:
        k.wait(vm=["probe"])
        k.valid([f"v_cmp_eq_u32 vcc, -1, v{T+20}"], [ptxt] + sum([btxt(x) for x in range(P.wo_spec)], []))
        state["fresh"] = True
        for sx in range(P.wo_spec, P.wo_lead): bload(sx)
    k.wait(vm=[("b", 0)], lg=[("wq", 0)])
    if P.tags: bchk(0)
    k.stamp("wo first")
    fixed[P.wo_bg_stop].append((0, lambda: setattr(k, "bg_held", True)))
    run_gaps(k, mains, fixed, [fx], 2)
    drain([fx], k)
    k.stamp("wo gemm")
    for i in range(0, 16, 2): k.e(f"v_pk_add_f32 {vr(T+i,2)}, {vr(T+i,2)}, {vr(ACC+i,2)}")
    k.e(f"s_add_u32 s58, s64, {BX1[layer]}")
    for p in range(2):
        for i in range(4): k.e(f"v_cvt_pk_bf16_f32 v{RES+4*p+i}, v{T+8*p+2*i}, v{T+8*p+2*i+1}")
        k.dstore(f"buffer_store_dwordx4 {vr(RES+4*p,4)}, v{W_UA}, {SRD_WS}, s58 offen offset:{p*512}", "xst")
    S, Q = T + 16, T + 18
    k.e(f"v_pk_add_f32 {vr(S,2)}, {vr(T,2)}, {vr(T+2,2)}", f"v_pk_mul_f32 {vr(Q,2)}, {vr(T,2)}, {vr(T,2)}", f"v_pk_fma_f32 {vr(Q,2)}, {vr(T+2,2)}, {vr(T+2,2)}, {vr(Q,2)}")
    for i in range(4, 16, 2): k.e(f"v_pk_add_f32 {vr(S,2)}, {vr(S,2)}, {vr(T+i,2)}", f"v_pk_fma_f32 {vr(Q,2)}, {vr(T+i,2)}, {vr(T+i,2)}, {vr(Q,2)}")
    k.e(f"v_add_f32 v{S}, v{S}, v{S+1}", f"v_add_f32 v{Q}, v{Q}, v{Q+1}", f"s_add_u32 s58, s65, {BS1[layer]}",
        f"v_permlane16_swap_b32 v{S}, v{Q}", f"v_add_f32 v{S}, v{S}, v{Q}", f"v_mov_b32 v{Q}, v{S}", f"v_permlane32_swap_b32 v{S}, v{Q}", f"v_add_f32 v{S}, v{S}, v{Q}")
    k.dstore(f"buffer_store_dword v{S}, v{W_SA}, {SRD_WS}, s58 offen", "xst")
    key = lambda it: it[2][1] if (isinstance(it[2], tuple) and it[2][0] == "gw") else 11.5
    k.bg.sort(key=key)
    print(f"wo{layer} done, background left:", [it[2] for it in k.bg][::4])
    k.bg_burst(P.wo_win[layer])
    k.stamp("wo end")
P.wo_bg_delay = 750; P.wo_bg_stop = 63; P.wo_lead = 6; P.wo_spec = 3; P.gu_spec = 3; P.wo_bstep = 2
P.wo_poll_gap = 1; P.wo_late_gap = 7; P.wo_hold = True; P.wo_win = [4, 4]; P.wo_var = 'B'; P.wo_prew = 2
P.per_wo = [{"s2": 20, "s4": 20}] * 2

G_RB, G_C1, G_VV, G_AUG, G_X, G_ACC, G_WF, G_T = 3, 6, 7, 28, 32, 160, 224, 240
D_WV, D_BF, D_ACC, D_T, D_WF, D_RB, D_PA = 32, 64, 128, 192, 228, 112, 115
DN_SEQ = [(g, e) for g in range(2) for e in range(28)]
DN_GROUPS = [1, 0]
def h_loader(k, layer):
    def bload(i):
        if i == 0:
            k.e(f"s_mul_i32 s32, s{sB}, {224*KB}", f"s_mul_i32 s33, s{sW}, {28*KB}", "s_add_u32 s32, s32, s33", f"s_add_u32 s59, s32, {BH[layer]}")
            for p in range(4):
                k.e(f"s_add_u32 s32, s{sCS}, {p}", f"s_and_b32 s32, s32, {3 if P.hrot else 0}", f"s_mul_i32 s32, s32, {7*KB}", f"s_add_u32 s{34+p}, s59, s32")
                if not P.hrot: k.e(f"s_add_u32 s{34+p}, s{34+p}, {7*KB*p}")
        g, e = DN_SEQ[i]; p, tl = divmod(KK_OF[e], 7)
        k.set_s(f"s_add_u32 s58, s{34+p}, {DN_GROUPS[g] * 112 * KB + (tl & 4) * 1024}")
        k.vm(f"buffer_load_dwordx4 {vr(D_BF+4*(i%P.dn_lead),4)}, v{vL16}, {SRD_WS}, s58 offen offset:{(tl & 3)*1024} sc1", ("b", i))
    return bload

def gu_setup(k, layer):
    T = G_T; XA = T + 3
    k.e(*gu_tile("s50"))
    k.e(f"v_and_b32 v{T}, 31, v1")
    k.e(f"v_mov_b32 v{G_RB}, v{vL16}", f"v_add_u32 v{G_RB+1}, 0x10000, v{vL16}", f"v_add_u32 v{G_RB+2}, 0x20000, v{vL16}")
    k.e(f"v_lshrrev_b32 v{T+1}, 5, v1", f"v_lshlrev_b32 v{G_AUG+3}, 4, v{T}", f"v_lshl_add_u32 v{G_AUG+3}, v{T+1}, 10, v{G_AUG+3}")
    k.e(f"v_lshrrev_b32 v{XA}, 3, v{T}", f"v_lshlrev_b32 v{XA}, 13, v{XA}", f"v_lshl_add_u32 v{XA}, v{T+1}, 7, v{XA}",
        f"v_and_b32 v{T}, 7, v1", f"v_lshl_add_u32 v{XA}, v{T}, 4, v{XA}")
    k.e("s_lshl_b32 s32, s50, 11", f"s_add_u32 s51, s32, {BS1[layer]}")
    k.e("s_lshl_b32 s32, s50, 15", f"s_add_u32 s52, s32, {BX1[layer]}", "s_add_u32 s53, s52, 4096")
    k.e(*h_base("s54", layer))
    k.e("s_lshr_b32 s32, s50, 1", "s_lshl_b32 s32, s32, 4", f"s_add_u32 s32, s32, s{sM}",
        "s_lshl_b32 s32, s32, 1", "s_and_b32 s33, s50, 1", "s_add_u32 s32, s32, s33", "s_lshl_b32 s32, s32, 2", f"s_add_u32 s81, s32, {fl(layer, FL_H)}")

def gu(k, layer):
    T = G_T; XA = T + 3; PA = T + 2
    if P.tags: k.poll_check(A_PA, "px1", 1)
    else:
        def pa():
            k.poll_addr(PA, 16)
            k.e("s_lshl_b32 s32, s50, 6", f"s_add_u32 s{sPO}, s32, {fl(layer, FL_X1)}")
        if not P.gu_pa_late: pa()
        k.wait(vm=["xst"]); k.flag(1)
        if P.gu_pa_late: pa()
        k.stamp("x1 flag")
        if not P.gu_bar_first: k.poll_issue(PA, "px1")
    k.e(f"s_mov_b32 s{sFO}, s81")
    seq = [(t, ks) for ks in range(33) for t in range(3)] + [(t, ks) for t in range(3, 7) for ks in range(33)]
    accof = {0: 0, 1: 1, 2: 2, 3: 3, 4: 0, 5: 1, 6: 2}
    NW = P.gu_nw
    WQ = [G_WF, G_WF + 4, G_WF + 8, G_WF + 12, T + 12]
    def wread(n):
        slot = (n % 160) * 1024
        k.ds(f"ds_read_b128 {vr(WQ[n%NW],4)}, v{G_RB + (slot>>16)} offset:{slot & 0xffff}", ("wf", n))
    BARS = P.gu_bars[layer]
    cover = lambda bi: [("gw", b) for b in range(bi, min([x for x in BARS if x > bi] + [15]))]
    def ringbar():
        k.wait(vm=cover(0)); k.e("s_barrier"); k.mark("gubar")
        for n in range(NW): wread(n)
    if P.gu_bar_first: ringbar(); k.poll_issue(PA, "px1")
    if not P.tags: k.poll_wait(PA, "px1", 1, 20)
    k.stamp("gu go")
    xtxt = lambda kg: f"buffer_load_dwordx4 {vr(G_X+4*kg,4)}, v{XA}, {SRD_WS}, s{52 + (kg>>4)} offen offset:{((kg>>2)&3)*1024 + (kg&3)*256} sc1"
    def xload(kg): k.vm(xtxt(kg), ("gx", kg))
    xchk = lambda kg: k.valid([f"v_cmp_eq_u32 vcc, -1, v{G_X+4*kg}"], [xtxt(kg)])
    stxt = [f"buffer_load_dwordx4 {vr(T+4+4*h,4)}, v{G_AUG+3}, {SRD_WS}, s51 offen offset:{512*h} sc1" for h in range(2)]
    if P.tags:
        for t_ in stxt: k.vm(t_, "gst")
        for kg in range(P.gu_spec): xload(kg)
        k.wait(vm=["gst"])
        k.valid([f"v_max3_u32 v{T}, v{T+4}, v{T+6}, v{T+8}", f"v_max_u32 v{T}, v{T}, v{T+10}", f"v_cmp_eq_u32 vcc, -1, v{T}"],
                stxt + [xtxt(x) for x in range(P.gu_spec)])
        k.stamp("gu probe")
        for kg in range(P.gu_spec, P.gu_lead): xload(kg)
    else:
        for kg in range(P.gu_lead): xload(kg)
        for t_ in stxt: k.vm(t_, "gst")
    if not P.gu_bar_first: ringbar()
    mains = []; fixed = {}
    xpos = {}
    for kg in range(P.gu_lead, 32): xpos.setdefault(int((kg - P.gu_lead) * P.gu_xstep), []).append(kg)
    for n, (t, ks) in enumerate(seq):
        acc = G_ACC + 16 * accof[t]
        b = vr(G_AUG, 4) if ks == 32 else vr(G_X + 4*ks, 4)
        c = "0" if ks == 0 else vr(acc, 16)
        mains.append(lambda n=n, acc=acc, b=b, c=c: k.e(f"{MF32} {vr(acc,16)}, {vr(WQ[n%NW],4)}, {b}, {c}"))
        fl_ = fixed.setdefault(n, [])
        if n + 1 < len(seq):
            t2, ks2 = seq[n + 1]
            need = [("gx", ks2)] if (t2 == 0 and ks2 < 32) else None
            fl_.append((0, lambda n=n, need=need: k.wait(vm=need, lg=[("wf", n + 1)])))
            if need and P.tags: fl_.append((2, lambda ks2=ks2: xchk(ks2)))
        j = n + NW
        if j < len(seq):
            if j % 16 == 0 and j // 16 in BARS:
                fl_.append((2, lambda bi=j//16: (k.wait(vm=cover(bi)), k.e("s_barrier"), [k.mark(("gbar", b)) for b in range(bi + 1)])))
            fl_.append((1, lambda j=j: wread(j)))
        for kg in xpos.get(n, []): fl_.append((1, lambda kg=kg: xload(kg)))
    xend = max(xpos)
    tail = [it for it in k.bg if it[2] == "dna" or it[2][0] == "dnr"]; k.bg = [it for it in k.bg if not (it[2] == "dna" or it[2][0] == "dnr")]
    bg_batches(k, [10, 11], "s2", lambda b: ("gbar", b - 8))
    mid = []
    for b in (12, 13, 14):
        for f in batch(k, b): mid.append((f, "s2", ("gw", b), ("gbar", b - 8)))
    while mid or tail:
        if mid: k.bg.append(mid.pop(0))
        if tail: k.bg.append(tail.pop(0))
    direct = layer == 1 and P.dn1_agpr
    if not direct: bg_batches(k, range(15, 23), "s4", lambda b: ("gbar", b - 8))
    k.per = dict(P.per_guA[layer]); k.bg_held = False; k.bg_next = k.t + P.gu_bg_delay
    fixed[xend].append((0, lambda: setattr(k, "per", dict(P.per_guB[layer]))))
    fv = Flex()
    dv = regloads(k, sDS, 48*1024, lambda j: vr(D_WV + 4*j, 4), 8, "dnv")
    k.hload = h_loader(k, layer)
    if direct: pass
    elif P.hpre:
        bg_list(k, dv, "s4", "dnv", "xdead")
        fixed[207].append((0, lambda: k.mark("xdead")))
    else:
        for j, f in enumerate(dv): fv.add(f, 1, 198 + 2 + 3*j)
    fx = Flex()
    a = lambda txt, c=1, at=0: fx.add(lambda: k.e(txt), c, at)
    fx.add(lambda: k.wait(vm=["gst"]), 1, 3 * P.gu_lead)
    a(f"v_add_f32 v{T+4}, v{T+4}, v{T+6}"); a(f"v_add_f32 v{T+5}, v{T+5}, v{T+7}"); a(f"v_add_f32 v{T+8}, v{T+8}, v{T+10}"); a(f"v_add_f32 v{T+9}, v{T+9}, v{T+11}")
    a(f"v_add_f32 v{T+4}, v{T+4}, v{T+8}"); a(f"v_add_f32 v{T+5}, v{T+5}, v{T+9}"); fx.skip(1)
    a(f"v_permlane32_swap_b32 v{T+4}, v{T+5}", 2); a(f"v_add_f32 v{T+4}, v{T+4}, v{T+5}"); a(f"v_mov_b32 v{T+5}, v{T+4}"); fx.skip(1)
    a(f"v_permlane32_swap_b32 v{T+4}, v{T+5}", 2)
    ln_finish(a, T + 4, T + 5)
    a(f"v_mov_b32 v{G_VV}, v{T+5}")
    a(f"v_rsq_f32 v{G_C1}, v{T+5}", 2); a(f"v_cvt_pk_bf16_f32 v{G_AUG}, v{T+4}, v{T+4}"); a(f"v_mul_f32 v{G_C1}, {f2u(-LOG2E):#x}, v{G_C1}")
    a(f"v_and_b32 v{T+5}, 0xffff0000, v{G_AUG}"); a(f"v_sub_f32 v{T+5}, v{T+4}, v{T+5}"); a(f"v_mov_b32 v{G_AUG+2}, 0")
    a(f"v_cvt_pk_bf16_f32 v{G_AUG+1}, v{T+5}, v{G_AUG+2}"); a(f"v_mov_b32 v{G_AUG+3}, 0")
    fx.add(lambda: k.mark("aug"), 0)
    def epi(t, at):
        acc = G_ACC + 16 * accof[t]; hp = T + 8; E = T + 4
        if P.x_noepi: a("s_nop 0", 1, at)
        for i0 in range(0, 8 if not P.x_noepi else 0, 2):
            for i in (i0, i0 + 1): a(f"v_mul_f32 v{E+(i&1)}, v{G_C1}, v{acc+i}", 1, at)
            for i in (i0, i0 + 1): a(f"v_exp_f32 v{E+(i&1)}, v{E+(i&1)}", 2)
            for i in (i0, i0 + 1): a(f"v_mul_f32 v{E+2+(i&1)}, v{acc+i}, v{acc+8+i}")
            for i in (i0, i0 + 1): a(f"v_fma_f32 v{E+(i&1)}, v{E+(i&1)}, v{G_VV}, v{G_VV}")
            for i in (i0, i0 + 1): a(f"v_rcp_f32 v{E+(i&1)}, v{E+(i&1)}", 2)
            fx.skip(1)
            for i in (i0, i0 + 1): a(f"v_mul_f32 v{E+2+(i&1)}, v{E+2+(i&1)}, v{E+(i&1)}")
            a(f"v_cvt_pk_bf16_f32 v{hp+i0//2}, v{E+2}, v{E+3}")
        fx.add(lambda: k.mark(("epi", t)), 0)
        if t == 4: a("s_add_u32 s54, s54, 4096")
        fx.add(lambda: ((k.dstore if ((layer and P.h1_plain) or (not layer and P.h_touch0)) else lambda x, tg: k.vm(x + " sc1", tg))(f"buffer_store_dwordx4 {vr(hp,4)}, v{vL16}, {SRD_WS}, s54 offen offset:{(t%4)*1024}", ("hst", t)), k.mark(("hst", t))), 2)
    end = {t: max(n for n, x in enumerate(seq) if x[0] == t) for t in range(7)}
    for t in range(6): epi(t, end[t] + 3)
    if layer == 0 and P.h_touch0 == "g": fixed[xend + 1].append((5, lambda: k.touch(T, "h", ["s_mov_b32 s32, s54"])))
    ff = Flex(); ff.dep(("hst", 3))
    if layer == 0:
        tx = [lambda: k.touch(T, "p", [f"s_add_u32 s32, s55, {WS_X[1]}"]), lambda: k.touch(T + 1, "s", [f"s_add_u32 s32, s56, {WS_ST[1]}"])]
        if P.x2_touch == "h3": ff.add(tx[0], 6); ff.add(tx[1], 4)
        elif isinstance(P.x2_touch, int): fixed[P.x2_touch].append((5, tx[0])); fixed[P.x2_touch + 1].append((4, tx[1]))
        if "g" in str(P.touch1):
            for f in touch_next(k, T + 2)[:2]: ff.skip(1); ff.add(f, 6)
    ff.skip(P.gu_flag_delay)
    ff.add(lambda: (k.wait(vm=[("hst", 3)]), k.flag(1)), 3)
    def hpoll():
        k.wait(vm=["touch"] if "touch" in k.seen else None)
        k.poll_addr(T, 8)
        k.e(f"s_lshl_b32 s32, s{sB}, 7", f"s_lshl_b32 s33, s{sW}, 5", "s_add_u32 s32, s32, s33", f"s_add_u32 s{sPO}, s32, {fl(layer, FL_H)}")
        k.poll_issue(T, "ph1")
    if P.hpre:
        ff.add(hpoll, 4, P.hp_chk - 12)
        ff.add(lambda: (k.poll_check(T, "ph1", 1), setattr(k, "bg_held", True)), 3, P.hp_chk)
        for j in range(P.hpre): ff.add(lambda j=j: k.hload(j), 2, max(208 + j, int(P.hp_chk + 1 + j * P.hp_step)))
    else: ff.add(hpoll, 4, 228)
    k.wait(vm=[("gx", 0)], lg=[("wf", 0)])
    if P.tags: xchk(0)
    k.stamp("gu first")
    if k.stamping:
        for g in (48, 98, 131, 164, 197): fixed[g].append((0, lambda g=g: k.stamp(f"gu m{g}")))
    fixed[93].append((0, lambda: k.marks["aug"]))
    run_gaps(k, mains, fixed, [fv, ff, fx], P.gu_cap)
    print("gu left:", len(k.bg), len(fv), len(ff), len(fx), {n: g for n, g in k.marks.items() if isinstance(n, tuple) and n[0] == "hst"})
    k.stamp("gu gemm")
    for g, t in {132: 0, 165: 1, 198: 2}.items(): assert k.marks[("epi", t)] < g, "accumulator reused too early"
    epi(6, 0); drain([ff, fv, fx], k)
    k.e(f"v_mov_b32 v{D_PA}, v{T}")
    k.stamp("gu end")
P.x2_touch = 'h3'; P.dn_x2 = 2; P.hrot = 0; P.gu_bars = [list(range(15)), [0, 3, 6, 9, 12]]; P.hpre = 0; P.hp_chk = 208; P.hp_step = 2.2; P.gu_flag_delay = 10; P.gu_xstep = 2.6; P.gu_bg_delay = 300
P.per_guA = [{"s2": 120, "s4": 120}, {"s2": 160, "s4": 160}]
P.per_guB = [{"s2": 90, "s4": 55}, {"s2": 80, "s4": 50}]

def dn(k, layer):
    final = layer == 1
    NB = P.dn_lead; T = D_T
    groups = DN_GROUPS; seq = DN_SEQ; bload = k.hload
    early = Flex()
    def rb(): k.e(f"v_add_u32 v{D_RB}, s{sGL}, v{vL16}", f"v_add_u32 v{D_RB+1}, 0x10000, v{D_RB}", f"v_add_u32 v{D_RB+2}, 0x20000, v{D_RB}")
    if P.hpre:
        for i in range(P.hpre, NB): bload(i)
        rb()
        class Rec:
            def e(self, *t):
                if any("vcc" in x or "s32" in x for x in t): early.add(lambda: k.e(*t), len(t))
                else:
                    for x in t: early.add(lambda x=x: k.e(x))
        red_setup(Rec(), 3, 1)
        early.add(lambda: (k.wait(vm=[("hst", 6)]), k.flag(2), k.poll_issue(D_PA, "ph2"), k.e(f"s_add_u32 s{sFO}, s89, {FL_X2 - FL_O}")), 5, P.dn_fgap)
    else:
        k.poll_check(D_PA, "ph1", 1)
        k.stamp("dn early")
        k.bg_held = True
        for i in range(P.dn_pre): bload(i)
        red_setup(k, 3, 1); rb()
        k.wait(vm=[("hst", 6)]); k.flag(2)
        if P.dn_pollstep is None: k.poll_issue(D_PA, "ph2")
        for i in range(P.dn_pre, NB): bload(i)
        k.e(f"s_add_u32 s{sFO}, s89, {FL_X2 - FL_O}")
    k.per = dict(P.per_dn0); k.bg_held = False
    direct = final and P.dn1_agpr
    lds = [(i, nn) for i, (g, e) in enumerate(seq) if 8 <= e < 24 and not direct for nn in range(2)]
    slot_of = {x: n for n, x in enumerate(lds)}
    NWF = 6
    def wread(n):
        i, nn = lds[n]; j = 2 * (seq[i][1] - 8) + nn; b = 15 + (j >> 2)
        ad = (b % 10) * 16384 + (j & 3) * 1024
        if seq[i][0] == 0: k.wait(vm=[("gw", b)])
        k.ds(f"ds_read_b128 {vr(D_WF+4*(n%NWF),4)}, v{D_RB + (ad>>16)} offset:{ad & 0xffff}", ("wf", n))
    def wfrag(i, nn):
        e = seq[i][1]
        if e < 8: return ar(192 + 8*e + 4*nn, 4)
        if direct: return ar(8*(e - 8) + 4*nn, 4)
        if e >= 24: return vr(D_WV + 8*(e - 24) + 4*nn, 4)
        return vr(D_WF + 4*(slot_of[(i, nn)] % NWF), 4)
    mains = []; fixed = {}
    NT = P.dn_tail
    assert NT <= 4
    order = [(i, nn) for i in range(56 - NT) for nn in range(2)] + [(i, nn) for nn in range(2) for i in range(56 - NT, 56)]
    for pos, (i, nn) in enumerate(order):
        g, e = seq[i]
        if True:
            acc = D_ACC + 32 * g + 16 * nn
            mains.append(lambda i=i, nn=nn, acc=acc, e=e: k.e(f"{MF32} {vr(acc,16)}, {wfrag(i,nn)}, {vr(D_BF+4*(i%NB),4)}, {'0' if e == 0 else vr(acc,16)}"))
            gp = len(mains) - 1; fl_ = fixed.setdefault(gp, [])
            nx = order[pos + 1] if pos + 1 < len(order) else None
            vmn = [("b", nx[0])] if (nx and nx[1] == 0) else None
            lgn = [("wf", slot_of[nx])] if nx in slot_of else None
            if nx == (24, 0) and not direct: vmn = vmn + ["dnv"]
            if direct and nx and nx[0] in range(8, 28) and nx[1] == 0: vmn = vmn + [("dnr", nx[0])]
            fl_.append((0, lambda vmn=vmn, lgn=lgn: k.wait(vm=vmn, lg=lgn)))
            ah = (i + 2, nn)
            if ah in slot_of: fl_.append((1, lambda n=slot_of[ah]: wread(n)))
    nxt = NB; pend = 0
    for i in range(len(seq)):
        fl_ = fixed[2*i + 1]
        if i == P.dn_late: fl_.append((2, lambda: (k.poll_check(D_PA, "ph2", 2), k.stamp("dn late"), k.mark("late"))))
        n = 0
        while nxt < len(seq) and nxt <= i + NB and n < 2 and (nxt < 16 or i >= P.dn_late):
            fl_.append((1, lambda j=nxt: bload(j))); nxt += 1; n += 1
        if i == P.dn_pollstep and not P.hpre: fl_.append((1, lambda: k.poll_issue(D_PA, "ph2")))
        if nxt == len(seq) and not pend: pend = 2*i + 2
    fixed[20].append((1, lambda: k.e("s_barrier")))
    for mm in range(2):
        fixed[40 + 4*mm].append((2, lambda mm=mm: (k.e(f"s_add_u32 s32, s55, {BX1[layer] + mm*32768}"),
                                                   k.vm(f"buffer_load_dwordx4 {vr(RES+4*mm,4)}, v{vL16}, {SRD_WS}, s32 offen sc1", "res"))))
    fw = Flex(); fs = Flex()
    for q, f in enumerate(red_writes(k, D_ACC, 0, 0, 1)): fw.add(f, 1, 58 + 2*q)
    fw.add(lambda: (k.wait(lg=[("rw", 0)]), k.e("s_barrier")), 2, 76)
    for f in red_reads(k, 0, T, 0): fw.add(f, 2)
    fw.add(lambda: k.wait(vm=["res"]))
    red_finish(k, fw, 0, groups[0], T, WS_X[1], WS_ST[1], final, False)
    if not final:
        fw.add(lambda: k.vm(f"buffer_store_dwordx4 {vr(RES+4,4)}, v{vL16}, {SRD_WS}, s72 offen sc1", "hxs"))
        fw.add(lambda: k.vm(f"buffer_store_dword v{T+32}, v{R_ST}, {SRD_WS}, s73 offen sc1", "hxs"))
        fw.skip(P.dn_flag_delay); fw.add(lambda: (k.wait(vm=[("xst", 0)]), k.flag(1)), 3)
        if P.x2_touch == "dn":
            fixed[P.dn_x2].append((5, lambda: k.touch(226, "p", [f"s_add_u32 s32, s55, {WS_X[1]}"])))
            fixed[P.dn_x2 + 1].append((4, lambda: k.touch(227, "s", [f"s_add_u32 s32, s56, {WS_ST[1]}"])))
            fs.add(lambda: k.wait(vm=["touch"]), 1, P.dn_x2 + 2)
        for q, c in enumerate(P.t1_dn): fixed[P.dn_touch + 2*q].append((5, touch_next(k, 28)["oxs".index(c)]))
        fs.dep("late")
        for f in a11_bases(k) + a1_setup(k, 1): fs.add(f)
        fs.add(lambda: (k.poll_addr(A_PX, 32), k.e(f"s_lshl_b32 s32, s{sB}, 7", f"s_add_u32 s{sPO}, s32, {fl(0, FL_X2)}")), 4)
    wtail = red_writes(k, D_ACC + 32, 1, 2*16384, 1)
    if NT:
        for q in range(min(4, NT)): fixed[min(111, 112 - NT + 1 + q)].append((4, wtail.pop(0)))
    k.wait(vm=["dna", ("b", 0)])
    k.stamp("dn first")
    if k.stamping:
        fixed[55].append((0, lambda: k.stamp("dn p1")))
        for g in range(7, 111, 8): fixed[g].append((0, lambda g=g: k.stamp(f"find {g}")))
    run_gaps(k, mains, fixed, [early, fw, fs], 6)
    print("dn left:", len(k.bg), len(fw), len(fs), "last h load at gap", pend)
    k.stamp("dn gemm")
    assert not fs.items
    ws = wtail
    if not final and P.dn_fin_first != 2: ws.insert(len(ws) - 4, lambda: k.poll_issue(A_PX, "px0"))
    if not final and P.dn_fin_first == 2: ws.append(lambda: k.poll_issue(A_PX, "px0"))
    merge(k, fw, ws)
    k.wait(lg=[("rw", 1)]); k.e("s_barrier")
    k.stamp("dn red")
    for f in red_reads(k, 1, T, 2*16384): f()
    def nxt():
        k.poll_check(A_PX, "px0", 1)
        k.wait(vm=["hxs"]); k.flag(1, 91, "sc1")
        a11_early(k)
    if not final:
        k.bg_held = True
        if not P.dn_fin_first: nxt()
    f1 = Flex(); red_finish(k, f1, 1, groups[1], T, WS_X[1], WS_ST[1], final, True)
    if not final and P.dn_fin_first == 2:
        ex = [lambda: k.poll_check(A_PX, "px0", 1)] + a11_early(k, True) + [lambda: (k.wait(vm=["hxs"]), k.flag(1, 91, "sc1"))]
        merge(k, f1, ex, P.dn_mfirst)
    else: drain([f1], k)
    if not final and P.dn_fin_first == 1: nxt()
    k.stamp("dn end")
P.dn_mfirst = 8; P.dn_pollstep = 0; P.dn_fin_first = 2; P.dn_tail = 0; P.dn_touch = 88; P.dn_flag_delay = 4; P.dn_pre = 6; P.dn_late = 9; P.dn_fgap = 6
P.dn_wow = 6; P.per_dn = {"s4": 110, "s2": 130}; P.per_dn0 = {"s4": 60, "s2": 60}

def build(stamps=False, only=None):
    k = F(); k.stamping = stamps; k.only = only; k.st = P.dst; k.rt = P.rt
    name = NAME + "_kernel"
    k.e(".p2align 8", f".globl {name}", f".type {name},@function"); k.label(name)
    if stamps: k.e("s_memrealtime s[92:93]", "s_memtime s[94:95]")
    k.e("s_cmp_ge_u32 s2, 256", "s_cbranch_scc1 L_end")
    k.e("s_load_dwordx16 s[64:79], s[0:1], 0", "s_load_dwordx4 s[80:83], s[0:1], 64", "s_memrealtime s[96:97]")
    k.e("s_getpc_b64 s[100:101]")
    k.e("L_pc: ;np")
    k.e("s_mov_b32 s24, s100", "s_mov_b32 s25, s101", "s_mov_b32 s26, L_end-L_pc", "s_mov_b32 s27, 0x20000",
        "v_and_b32 v1, 63, v0", "v_lshrrev_b32 v2, 6, v0", "s_lshr_b32 s33, s2, 3", "s_mul_i32 s32, s33, 43", "s_lshr_b32 s32, s32, 8",
        "s_mul_i32 s32, s32, 6", "s_sub_u32 s32, s33, s32", "s_lshl_b32 s32, s32, 13", "v_lshlrev_b32 v3, 11, v2", "v_lshl_add_u32 v3, v1, 7, v3",
        f"v_mov_b32 v4, {OOB:#x}", "v_cmp_gt_u32 vcc, 16, v1", f"v_readfirstlane_b32 s{sW}, v2", "v_cndmask_b32 v3, v4, v3, vcc")
    if P.code0: k.vm(f"buffer_load_dword v175, v3, {SRD_PK}, s32 offen", "code")
    k.e("s_and_b32 s32, s2, 7", f"s_and_b32 s{sM}, s33, 15", "s_lshr_b32 s33, s33, 4", "s_lshl_b32 s32, s32, 1", f"s_add_u32 s{sC}, s32, s33")
    k.e(f"s_lshr_b32 s33, s{sM}, 3", f"s_lshl_b32 s{sB}, s{sC}, 1", f"s_add_u32 s{sB}, s{sB}, s33", f"s_and_b32 s{sCS}, s{sM}, 7")
    k.e("v_lshlrev_b32 v2, 4, v1")
    a10_lanes(k)
    k.e("s_waitcnt lgkmcnt(0)")
    srd(k, 12, 64, 2048 * 1024); srd(k, 16, 66, 512 * 3072)
    k.e(f"s_or_b32 s{sTAG}, s96, 1")
    if stamps:
        k.stamps += ["rt0", "start"]; k.e("v_writelane_b32 v0, s92, 0", f"v_writelane_b32 v0, s{92 if P.rt else 94}, 1")
    k.stamp("s kernarg")
    if P.pk_first == 1: pack_issue(k)
    k.stamp("s pkissue")
    run(a10_x(k, 0) + a10_w(k, 0))
    if P.pk_first == 0: pack_issue(k)
    srd(k, 28, 80, 256)
    k.e("v_cmp_eq_u32 vcc, 0, v1", f"v_mov_b32 v{vFA}, {OOB:#x}", f"s_or_b32 s32, s2, s{sW}", f"v_cndmask_b32_e64 v{vFA}, v{vFA}, 0, vcc",
        "s_cmp_eq_u32 s32, 0", f"s_cselect_b32 s32, 0, {OOB>>1:#x}", f"v_mov_b32 v170, s{sTAG}")
    k.vm(f"buffer_store_dword v170, v{vFA}, {SRD_DBG}, s32 offen sc1", "tagst")
    srd(k, 8, 82, WS_SIZE); srd(k, 20, 78, 2048 * 1024)
    for f in a1_setup(k, 0): f()
    o_bases(k, 0)
    a10_lanes2(k)
    k.e(f"v_mov_b32 v60, {OOB:#x}", "v_cmp_gt_u32 vcc, 8, v1", "v_mov_b32 v176, 0", "v_mov_b32 v177, 0", "v_mov_b32 v178, 0", "v_mov_b32 v179, 0",
        f"v_cndmask_b32 v173, v60, v{vL16}, vcc", "v_cmp_gt_u32 vcc, 16, v1", "s_nop 0",
        f"s_lshl_b32 s32, s{sC}, 4", f"v_cndmask_b32 v172, v60, v{vL16}, vcc")
    k.e(f"s_add_u32 s32, s32, s{sM}", "s_lshl_b32 s32, s32, 4",
        f"s_cmp_eq_u32 s{sW}, 0", f"s_cselect_b32 s32, s32, {OOB>>1:#x}", f"v_add_u32 v171, s32, v{vFA}", f"s_mov_b32 s{sBUD}, 400000")
    red_bases(k)
    k.e(f"s_lshl_b32 s{sGL}, s{sW}, 12", f"s_mul_i32 s{sGS}, s{sM}, {PGU_SLICE}", f"s_add_u32 s{sGS}, s{sGS}, s{sGL}", f"s_add_u32 s{sGS}, s{sGS}, {WS_PGU}")
    k.e(f"s_mul_i32 s32, s{sCS}, {224*KB}", f"s_mul_i32 s33, s{sW}, {56*KB}", "s_add_u32 s32, s32, s33", f"s_add_u32 s{sDS}, s32, {WS_PDN}")
    k.e(f"s_lshl_b32 s32, s{sCS}, 16", f"s_add_u32 s32, s32, s{sGL}", f"s_add_u32 s88, s32, {WS_PWO}")
    wo_bases(k)
    k.stamp("s setup")
    run(a10_w(k, 1))
    if P.pk_first == 2: pack_issue(k)
    k.e(f"s_getreg_b32 s{sXCC}, hwreg(HW_REG_XCC_ID, 0, 4)", f"s_mov_b32 s75, {WS_ARR}", f"s_lshl_b32 s77, s{sC}, 8", "s_add_u32 s77, s77, s75")
    k.stamp("s w01")
    def mid2():
        if P.k_first > 3: run(a10_w(k, 3))
        k.e("s_lshl_b32 s32, s2, 7")
        k.vm(f"buffer_store_dwordx4 v[176:179], v173, {SRD_WS}, s32 offen sc1", "zero")
        k.e("s_lshl_b32 s32, s2, 8", f"s_add_u32 s32, s32, {WS_HXF}")
        k.vm(f"buffer_store_dwordx4 v[176:179], v172, {SRD_WS}, s32 offen sc1", "zero")
    if P.k_pack is None: pack_process(k, lambda: run(a10_x(k, 1) + a10_w(k, 2)), mid2)
    else: run(a10_x(k, 1) + a10_w(k, 2)); mid2()
    k.vm(f"buffer_load_dword v170, v{vFA}, {SRD_DBG}, 0 offen sc1", "tag")
    k.stamp("s pkdone")
    a10_loop(k, P.k_first)
    a10_tail(k)
    wo(k, 0); gu(k, 0); dn(k, 0)
    if not P.half:
        k.marks = {m: g for m, g in k.marks.items() if False}
        k.seen = {t for t in k.seen if t in k.vmq or t in k.lgq or t in ("dna", "st0", ("x", 2), ("x", 3))}
        a11_main(k)
        wo(k, 1)
        k.marks = {m: g for m, g in k.marks.items() if m in ("wobar", "gemm_done") or m[0] == "bar"}
        gu(k, 1); dn(k, 1)
    if P.verbose: print([(t, tag, f) for t, tag, f in k.bg_log if f])
    if stamps:
        k.e("s_waitcnt vmcnt(0)"); k.stamp("drained"); k.stamp("rt1", True)
        k.e("s_lshl_b32 s32, s2, 10", "s_lshl_b32 s33, s3, 8", "s_add_u32 s32, s32, s33",
            f"s_add_u32 s32, s32, {WS_STAMP}", "v_lshlrev_b32 v8, 2, v1", f"buffer_store_dword v0, v8, {SRD_WS}, s32 offen")
        if P.echo:
            a, b = P.echo
            n = len(k.stamps)
            k.e(f"v_readlane_b32 s32, v0, {a}", f"v_readlane_b32 s33, v0, {b if b >= 0 else n + b}", f"v_readlane_b32 s34, v0, {n-1}", "s_nop 3",
                "s_sub_u32 s33, s33, s32", "s_min_u32 s33, s33, 20000")
            k.label("L_echo")
            k.e("s_memrealtime s[36:37]", "s_waitcnt lgkmcnt(0)", "s_sub_u32 s36, s36, s34", "s_cmp_lt_u32 s36, s33", "s_cbranch_scc1 L_echo")
        if P.dbg:
            n = len(k.stamps)
            k.e("v_readlane_b32 s32, v0, 0", f"v_readlane_b32 s33, v0, {n-1}", "s_not_b32 s34, s32", "v_mov_b32 v4, s33", "v_mov_b32 v5, s34")
            k.e(f"buffer_atomic_umax v4, v{vFA}, {SRD_DBG}, 0 offen offset:4", f"buffer_atomic_umax v5, v{vFA}, {SRD_DBG}, 0 offen offset:8")
            k.e(f"s_cmp_eq_u32 s2, {P.dbg - 1}", f"s_cselect_b32 s35, 0, {OOB>>1:#x}", f"s_cmp_eq_u32 s{sW}, 0", f"s_cselect_b32 s35, s35, {OOB>>1:#x}")
            for i, wd in zip(range(2, n - 1), (3, 5, 6, 7, 9, 10, 11, 13, 14, 15)):
                k.e(f"v_readlane_b32 s33, v0, {i}", "s_sub_u32 s33, s33, s32", "v_mov_b32 v4, s33", f"buffer_store_dword v4, v{vFA}, {SRD_DBG}, s35 offen offset:{4*wd}")
    k.e("s_endpgm")
    k.flush_spins()
    k.label("L_end"); k.e("s_endpgm")
    src = open("cdna_kernels/%s.s.ref" % NAME).read().splitlines()
    out = [l for l in src if l.startswith(";") and "@launch" not in l]
    out.append(f"; @launch grid=(256,1,1) block=(256,1,1) lds={LDS_TOTAL}")
    out += ['.amdgcn_target "amdgcn-amd-amdhsa--gfx950"', ".text"]
    s = "\n".join(out) + "\n" + k.text(verbose=True) + '.section .rodata,"a"\n.p2align 6\n' + kd(name)
    from verify import verify
    assert not verify(s), "a register is used while a load into it is in flight"
    if P.align:
        from align import align
        s = align(s)
    return s, k.stamps
P.x_nobar = 0; P.x_noepi = 0; P.rt = 1; P.dbg = 0; P.h_touch0 = ''; P.outm = ''; P.h1_plain = 1; P.tags = 0; P.echo = None; P.wo_setup_first = 2; P.gu_pa_late = 0; P.gu_bar_first = 0; P.flagbr = 0; P.rot = 0; P.pk_mod = 'nt'; P.x_mod = ''; P.w_mod = ''; P.t_mod = ''; P.pk_first = 1; P.dn1_agpr = 1; P.poll2 = 2; P.half = 0; P.tlb = 1; P.code0 = 1; P.verbose = 0; P.align = 1; P.gu_cap = 5; P.gu_nw = 5; P.k_touch = 15; P.k_gb = 13; P.k_chk = 16

if __name__ == "__main__":
    path = sys.argv[1] if len(sys.argv) > 1 else "cdna_kernels/%s.s" % NAME
    opts = sys.argv[2:]
    only = None
    for o in opts:
        if o.startswith("only="): only = [x for x in o[5:].split(",") if x]
        if o.startswith("P."):
            n, v = o[2:].split("="); setattr(P, n, eval(v))
    s, st = build(stamps="st" in opts, only=only)
    open(path, "w").write(s)
    if "st" in opts: json.dump([st], open(path + ".json", "w"))
```

```python
import sys, json
from common import *

MF16 = "v_mfma_f32_16x16x32_bf16"
MF16S = "v_mfma_f32_16x16x16_bf16"
MF32 = "v_mfma_f32_32x32x16_bf16"
vL16, vFV, vFA, vP = 2, 8, 9, 10
CSV, CSQ, CSK, RES = 11, 12, 16, 20
OOB = 0x80000000
FL_O, FL_X1, FL_H, FL_X2 = 0, 4096, 8192, 12288
FL_HX = 16384 + 12288
def fl(layer, off): return WS_FLAGS + 16384 * layer + off
sROT, sBUD, sGL, sGS, sDS = 84, 98, 60, 61, 85
sT0, sT1, sPO, sFO = 32, 33, 86, 87
sML, sMS = 68, 69
WS_HXF = WS_O0 - 0x10000 if False else WS_END
WS_ARR = WS_HXF + 0x10000
sTAG, sXCC = 91, 76
WS_STAMP = 0x2000000
L_SA0, L_SA1, L_XH0, L_CS = 80896, 97280, 81920, 79872
def e_of(kk):
    p, tl = divmod(kk, 7)
    return 4 * p + tl if tl < 4 else 16 + 3 * p + (tl - 4)
KK_OF = {e_of(kk): kk for kk in range(28)}

class P:
    a1_bg_start, a1_bg_step = 30, 6
    gu_lead = 9
    gu_bg_start, gu_bg_step = 50, 2.6
    dn_lead = 12
    bgm = ""
    sleep = 0
    drop = ()
    codepf = 0
    ld = "sc1"
    dst = "sc1"
    safe = False
    plain = True
    notouch = ()

BO, BX1, BS1, BH = [WS_O[0]] * 2, [WS_X[0]] * 2, [WS_ST[0]] * 2, [WS_H[0]] * 2
def BX2(): return WS_X[0] if P.inplace else WS_X[1]
def BS2(): return WS_ST[0] if P.inplace else WS_ST[1]
def o_block(d, layer):
    if layer and P.inplace: return [f"s_mul_i32 {d}, s{sB}, {224*KB}", f"s_add_u32 {d}, {d}, {BH[0]}"]
    return [f"s_lshl_b32 {d}, s{sB}, 16", f"s_add_u32 {d}, {d}, {BO[layer]}"]
def o_line(layer):
    return [f"s_lshl_b32 s32, s{sB}, 16", f"s_lshl_b32 s33, s{sCS}, 2", f"s_add_u32 s33, s33, s{sW}", "s_lshl_b32 s33, s33, 10",
            "s_add_u32 s32, s32, s33", f"s_add_u32 s32, s32, {BO[layer]}"]
def touch_next(k, t):
    return [lambda: k.touch(t, "p", o_line(1)), lambda: k.touch(t + 1, "q", [f"s_add_u32 s32, s64, {BX1[1]}"]),
            lambda: k.touch(t + 2, "t", [f"s_add_u32 s32, s65, {BS1[1]}"])]
def gu_tile(d):
    return [f"s_lshl_b32 {d}, s{sC}, 1", f"s_and_b32 s33, s{sW}, 1", f"s_add_u32 {d}, {d}, s33", f"s_lshl_b32 {d}, {d}, 1", f"s_lshr_b32 s33, s{sW}, 1", f"s_add_u32 {d}, {d}, s33"]
def h_base(d, layer):
    return gu_tile(d) + [f"s_mul_i32 {d}, {d}, 112", f"s_mul_i32 s33, s{sM}, 7",
            f"s_add_u32 {d}, {d}, s33", f"s_lshl_b32 {d}, {d}, 10", f"s_add_u32 {d}, {d}, {BH[layer]}"]

class F(K):
    def __init__(self):
        super().__init__(); self.spins = []; self.nspin = 0; self.st = ""; self.npf = 0; self.layer = 0
    def poll_issue(self, va, tag): self.vm(f"buffer_load_dword v{vP}, v{va}, {SRD_WS}, s{sPO} offen sc1", tag)
    def poll_addr(self, va, nl, sh=2):
        self.e(f"v_cmp_gt_u32 vcc, {nl}, v1", f"v_lshlrev_b32 v{va}, {sh}, v1", f"v_mov_b32 v{vP}, {OOB:#x}", f"v_cndmask_b32 v{va}, v{vP}, v{va}, vcc")
        self.nl = nl
    def poll_check(self, va, tag, thr):
        n = self.nspin; self.nspin += 1
        self.stamp(f"poll<{tag}")
        self.wait(vm=[tag])
        self.stamp(f"poll={tag}")
        msk = f"s_and_b32 s99, vcc_lo, {(1 << self.nl) - 1:#x}"
        self.e(f"v_cmp_gt_u32 vcc, {thr}, v{vP}", msk, f"s_cbranch_scc1 L_spin{n} ;np", f"L_back{n}: ;np")
        self.stamp(f"poll>{tag}")
        self.spins += [f"L_spin{n}:", f"s_sub_u32 s{sBUD}, s{sBUD}, 1", f"s_cbranch_scc1 L_give{n}"] + ([f"s_sleep {P.sleep}"] if P.sleep else []) + [
                       f"buffer_load_dword v{vP}, v{va}, {SRD_WS}, s{sPO} offen sc1", "s_waitcnt vmcnt(0)",
                       f"v_cmp_gt_u32 vcc, {thr}, v{vP}", msk, f"s_cbranch_scc1 L_spin{n}", f"s_branch L_back{n}",
                       f"L_give{n}:", f"s_mov_b32 s{sBUD}, 0", f"s_branch L_back{n}"]
    def poll_wait(self, va, tag, thr, alt):
        if not P.poll2:
            self.poll_check(va, tag, thr); return
        n = self.nspin; self.nspin += 1
        ld = lambda r: f"buffer_load_dword v{r}, v{va}, {SRD_WS}, s{sPO} offen sc1"
        tst = lambda r: [f"v_cmp_gt_u32 vcc, {thr}, v{r}", f"s_and_b32 s99, vcc_lo, {(1 << self.nl) - 1:#x}"]
        self.e(f"s_sleep {P.poll2}")
        self.vm(ld(alt), "polljunk")
        self.wait(vm=[tag])
        self.e(*tst(vP)); self.e(f"s_cbranch_scc1 L_spin{n} ;np", f"L_back{n}: ;np")
        self.spins += [f"L_spin{n}:", f"s_sub_u32 s{sBUD}, s{sBUD}, 1", f"s_cbranch_scc1 L_give{n}",
                       ld(vP), "s_waitcnt vmcnt(1)"] + tst(alt) + [f"s_cbranch_scc0 L_back{n}", ld(alt), "s_waitcnt vmcnt(1)"] + tst(vP) + \
                      [f"s_cbranch_scc1 L_spin{n}", f"s_branch L_back{n}", f"L_give{n}:", f"s_mov_b32 s{sBUD}, 0", f"s_branch L_back{n}"]
    def flag(self, val, soff=sFO, st=None):
        self.e(f"v_mov_b32 v{vFV}, {val}")
        if st is not None:
            self.vm(f"buffer_store_dword v{vFV}, v{vFA}, {SRD_WS}, s{soff} offen {st}", "flag"); return
        if P.flagbr:
            self.dstore(f"buffer_store_dword v{vFV}, v{vFA}, {SRD_WS}, s{soff} offen", "flag", True); return
        self.e(f"s_or_b32 s99, s{soff}, s{sML}")
        self.vm(f"buffer_store_dword v{vFV}, v{vFA}, {SRD_WS}, s99 offen", "flag")
        self.e(f"s_or_b32 s99, s{soff}, s{sMS}")
        self.vm(f"buffer_store_dword v{vFV}, v{vFA}, {SRD_WS}, s99 offen sc1", "flag")
    def dstore(self, text, tag, always=False):
        kind = tag[0] if isinstance(tag, tuple) else tag
        if (not P.plain or (self.layer, kind, isinstance(tag, tuple)) in P.wt) and not always:
            self.vm(text + " sc1", tag); return
        n = self.nspin; self.nspin += 1
        self.e(f"s_cmp_lg_u32 s{sML}, 0", f"s_cbranch_scc1 L_alt{n} ;np")
        self.vm(text, tag)
        self.e(f"L_back{n}: ;np")
        self.spins += [f"L_alt{n}:", "s_nop 4", text + " sc1", f"s_branch L_back{n}"]
    def valid(self, test, reload):
        n = self.nspin; self.nspin += 1
        self.e(*test); self.e(f"s_cbranch_vccnz L_rl{n} ;np", f"L_back{n}: ;np")
        self.spins += [f"L_rl{n}:", f"s_sub_u32 s{sBUD}, s{sBUD}, 1", f"s_cbranch_scc1 L_give{n}"] + reload + ["s_waitcnt vmcnt(0)"] + test + \
                      [f"s_cbranch_vccnz L_rl{n}", f"s_branch L_back{n}", f"L_give{n}:", f"s_mov_b32 s{sBUD}, 0", f"s_branch L_back{n}"]
    def touch(self, tmp, kind, base_expr, masked=True):
        if not P.plain or kind in P.notouch: return
        nl = {"p": 16, "q": 16, "s": 2, "t": 2, "h": 56}[kind]
        self.e(f"v_cmp_gt_u32 vcc, {nl}, v1")
        if kind in "pq": self.e(f"v_lshrrev_b32 v{tmp}, 3, v1", f"v_lshlrev_b32 v{tmp}, {15 if kind == 'p' else 13}, v{tmp}", f"v_and_b32 v{vFV}, 7, v1", f"v_lshl_add_u32 v{tmp}, v{vFV}, 7, v{tmp}")
        else: self.e(f"v_lshlrev_b32 v{tmp}, {11 if kind == 's' else 7}, v1")
        self.e(f"v_mov_b32 v{vFV}, {OOB:#x}", *base_expr)
        self.e(f"v_cndmask_b32 v{tmp}, v{vFV}, v{tmp}, vcc")
        if masked: self.e(f"s_or_b32 s32, s32, s{sML}")
        self.vm(f"buffer_load_dword v{tmp}, v{tmp}, {SRD_WS}, s32 offen {P.t_mod}", "touch")
    def vm(self, text, tag=None):
        kind = tag[0] if isinstance(tag, tuple) else tag
        if kind in P.drop:
            self.seen.add(tag); return
        super().vm(text, tag)
    def codepf(self, tmpv, per=2048):
        if not P.codepf: return
        n = self.npf; self.npf += 1
        sh = (per // 64).bit_length() - 1
        self.e(f"L_pf{n}: ;np", f"s_mul_i32 s32, s{sW}, {per}", f"s_add_u32 s32, s32, L_pf{n}-L_pc", f"v_lshlrev_b32 v{tmpv}, {sh}, v1")
        raise NotImplementedError
    def flush_spins(self):
        for l in self.spins: self.e(l)
        self.spins = []

def batch(k, i):
    src = f"s_add_u32 s62, s{sGS}, {i*16384}" if i < 15 else f"s_add_u32 s62, s{sDS}, {(16 + 4*(i-15))*1024}"
    def f(q):
        k.set_m0(f"s_add_u32 m0, s{sGL}, {(i % 10)*16384}")
        if i != 14: k.set_s(src)
        elif k.last.get(62) != f"s_cselect_b32 s62, {OOB>>1:#x}, s62":
            k.e(src, f"s_cmp_ge_u32 s{sW}, 2", f"s_cselect_b32 s62, {OOB>>1:#x}, s62")
        k.vm(f"buffer_load_dwordx4 v{vL16}, {SRD_WS}, s62 offen offset:{q*1024} {P.bgm} lds", ("gw", i))
    return [lambda q=q: f(q) for q in range(4)]

def bg_batches(k, bs, period, dep=lambda b: None):
    for b in bs:
        for f in batch(k, b): k.bg_add(f, period, ("gw", b), dep(b))
def bg_list(k, fns, period, tag, dep=None):
    for f in fns: k.bg_add(f, period, tag, dep)

def regloads(k, base_sgpr, off, dst, n, tag, tmp=63, tagf=None):
    fns = []
    for j in range(n):
        def f(j=j):
            k.set_s(f"s_add_u32 s{tmp}, s{base_sgpr}, {off + (j & ~3)*1024}")
            k.vm(f"buffer_load_dwordx4 {dst(j)}, v{vL16}, {SRD_WS}, s{tmp} offen offset:{(j%4)*1024} {P.bgm}", tagf(j) if tagf else tag)
        fns.append(f)
    return fns
def wow(k):
    def f(i, q):
        k.set_m0(f"s_add_u32 m0, s{sGL}, {(6 + i)*16384}"); k.set_s(f"s_add_u32 s63, s88, {i*16384}")
        k.vm(f"buffer_load_dwordx4 v{vL16}, {SRD_WS}, s63 offen offset:{q*1024} lds", "wow")
    return [lambda i=i, q=q: f(i, q) for i in range(4) for q in range(4)]

def pack_issue(k):
    for r in (68, 69, 72, 73, 74, 75, 76, 77): assert k.last[r].startswith("s_load"), f"kernel argument s{r} overwritten"
    k.e("v_lshrrev_b32 v44, 3, v1", "v_and_b32 v43, 7, v1", "v_and_b32 v45, 2, v44", "v_lshlrev_b32 v45, 1, v45",
        "v_xor_b32 v43, v43, v45", "v_lshlrev_b32 v43, 4, v43", f"s_add_u32 s34, s49, {L_X + 4096}")
    k.e("s_cmp_ge_u32 s2, 112", "s_cbranch_scc1 L_pki_small")
    k.e("s_and_b32 s35, s2, 1", "s_bfe_u32 s36, s2, 0x10001", "s_lshr_b32 s37, s2, 2")
    k.e("s_cmp_eq_u32 s35, 0", "s_cselect_b32 s24, s72, s74", "s_cselect_b32 s25, s73, s75",
        f"s_mov_b32 s26, {512*3584:#x}", "s_mov_b32 s27, 0x20000")
    k.e("v_mul_u32_u24 v46, 3584, v44", "v_add_u32 v46, v46, v43")
    k.e("s_lshl_b32 s38, s36, 2", f"s_add_u32 s38, s38, s{sW}", f"s_mul_i32 s38, s38, {64*3584}",
        "s_lshl_b32 s39, s37, 7", "s_add_u32 s38, s38, s39")
    for i in range(8):
        k.e(f"s_add_u32 m0, s34, {(i>>2)*8192 + (i&3)*1024}", f"s_add_u32 s39, s38, {i*8*3584}", f"buffer_load_dwordx4 v46, {SRD_PK}, s39 offen {P.pk_mod} lds")
    k.e("s_branch L_pki_done")
    k.label("L_pki_small")
    k.e("s_sub_u32 s35, s2, 112", "s_lshl_b32 s35, s35, 3", f"s_lshl_b32 s36, s{sW}, 1", "s_add_u32 s35, s35, s36")
    k.e("s_cmp_lt_u32 s35, 896", "s_cselect_b32 s24, s76, s68", "s_cselect_b32 s25, s77, s69", f"s_mov_b32 s26, {512*1024:#x}",
        f"s_cselect_b32 s26, {1792*1024:#x}, s26", "s_mov_b32 s27, 0x20000", "s_cselect_b32 s37, 1, 0",
        "s_movk_i32 s38, 896", "s_cselect_b32 s38, 0, s38")
    k.e("s_cselect_b32 s39, 0, 1", "s_cselect_b32 s70, 14, 15", "s_movk_i32 s71, 0x4000", "s_cselect_b32 s71, 0x80, s71")
    k.e("s_sub_u32 s35, s35, s38", "s_lshr_b32 s35, s35, s39", "s_and_b32 s36, s35, 7", "s_lshr_b32 s35, s35, 3")
    k.e("v_lshl_add_u32 v46, v44, 10, v43", "s_lshl_b32 s38, s35, s70", "s_lshl_b32 s39, s36, 7", "s_add_u32 s38, s38, s39")
    for i in range(2):
        for h in range(2):
            k.e(f"s_add_u32 m0, s34, {(2*i+h)*1024}", f"s_add_u32 s39, s38, {h*8192}", f"buffer_load_dwordx4 v46, {SRD_PK}, s39 offen {P.pk_mod} lds")
        if i == 0: k.e("s_add_u32 s38, s38, s71")
    k.label("L_pki_done")
    k.vmq.append("pk"); k.seen.add("pk")

PQ = [76, 80, 84, 88, 92, 96, 36, 40]
def pack_process(k, mid1, mid2):
    k.e("v_bfe_u32 v46, v1, 2, 2", "v_and_b32 v47, 3, v1", "v_bfe_u32 v48, v1, 4, 1", "v_lshrrev_b32 v49, 5, v1")
    k.e("v_and_b32 v50, 2, v46", "v_add_u32 v50, v50, v48", "v_lshlrev_b32 v50, 5, v50",
        "v_lshl_add_u32 v50, v46, 7, v50", "v_lshl_add_u32 v50, v47, 3, v50", "v_add_u32 v50, s34, v50")
    k.e("s_cmp_ge_u32 s2, 112", "s_cbranch_scc1 L_pk_small")
    q0 = list(k.vmq)
    k.e("v_lshl_add_u32 v56, v49, 10, v50", "v_xor_b32 v57, 64, v56")
    k.e("s_lshl_b32 s39, s37, 2", "v_add_u32 v58, s39, v48")
    k.e("s_lshl_b32 s70, s36, 2", f"s_add_u32 s70, s70, s{sW}", "s_lshl_b32 s70, s70, 2")
    k.e("v_and_b32 v66, 15, v1", "s_lshl_b32 s71, s35, 8", "v_lshl_add_u32 v66, v66, 4, s71")
    for p in range(2):
        T, fs, tl, st_, b, aug = 59, 60, 61, 62 + p, 64 + p, 68 + p
        k.e(f"v_add_u32 v{T}, {2*p}, v58", f"v_mul_u32_u24 v{fs}, 9363, v{T}", f"v_lshrrev_b32 v{fs}, 16, v{fs}",
            f"v_mul_u32_u24 v{tl}, 7, v{fs}", f"v_sub_u32 v{tl}, v{T}, v{tl}")
        k.e(f"v_cmp_gt_u32 vcc, 3, v{tl}", f"v_mul_u32_u24 v67, 33, v{tl}", f"v_mov_b32 v{st_}, 1", "v_mov_b32 v70, 3",
            f"v_cndmask_b32 v67, v67, v{tl}, vcc", f"v_cndmask_b32 v{st_}, v{st_}, v70, vcc")
        k.e(f"v_mul_u32_u24 v{fs}, 231, v{fs}", f"v_add_u32 v67, v67, v{fs}")
        k.e(f"v_lshl_add_u32 v70, v{st_}, 5, v67", "v_lshlrev_b32 v70, 10, v70", "v_add_u32 v70, v70, v66",
            "s_lshl_b32 s71, s36, 9", f"v_add_u32 v{aug}, s71, v70")
        k.e(f"v_mul_lo_u32 v70, v{st_}, s70", "v_add_u32 v67, v67, v70", "v_lshlrev_b32 v67, 10, v67",
            "v_add_u32 v67, v67, v66", f"v_lshl_add_u32 v{b}, v49, 9, v67", f"v_lshlrev_b32 v{st_}, 10, v{st_}")
    k.e("v_mov_b32 v71, 0x3f803f80", "v_mov_b32 v72, 0", "v_mov_b32 v73, 0", "v_cmp_gt_u32 vcc, 32, v1", "v_mov_b32 v46, 0", "v_mov_b32 v47, 0",
        "v_cndmask_b32 v68, v69, v68, vcc", f"s_lshl_b32 s72, s{sW}, 8", "s_add_u32 s72, s72, 0x10000", "v_lshl_add_u32 v74, v1, 2, s72",
        "v_lshlrev_b32 v75, 2, v1", "v_add_u32 v75, 0x10000, v75")
    k.e(f"s_mov_b32 s70, {WS_PGU}", "s_mov_b32 s71, s70", "s_mov_b32 s72, s70", "s_mov_b32 s73, s70", f"s_cmp_eq_u32 s{sW}, 0", f"s_cselect_b32 s74, s70, {OOB>>1:#x}")
    k.wait(vm="pk")
    for ks in range(4):
        for p in range(2):
            for j in range(2): k.ds(f"ds_read_b64_tr_b16 {vr(PQ[2*ks+p]+2*j,2)}, v{56+p} offset:{(ks>>1)*8192 + (ks&1)*2048 + j*512}", ("t", ks, p))
        if ks == 2: k.wait(lg=[("t", 0, 1)])
    mid1()
    for ks in range(4):
        for p in range(2):
            k.wait(lg=[("t", ks, p)])
            for d in range(4): k.e(f"v_dot2c_f32_bf16 v{72+p}, v{PQ[2*ks+p]+d}, v71")
    k.e("v_permlane32_swap_b32 v72, v73", "v_add_f32 v72, v72, v73")
    k.ds(f"ds_write_b32 v74, v72 offset:{L_CS - 65536}")
    k.wait(lg="all"); k.e("s_barrier")
    for w in range(4): k.ds(f"ds_read_b32 v{56+w}, v75 offset:{L_CS - 65536 + 256*w}")
    mid2()
    k.wait(lg="all")
    k.e("v_add_f32 v56, v56, v57", "v_add_f32 v58, v58, v59", "v_add_f32 v56, v56, v58")
    k.e("v_cvt_pk_bf16_f32 v45, v56, v46", "v_lshlrev_b32 v57, 16, v45", "v_sub_f32 v57, v56, v57", "v_cvt_pk_bf16_f32 v44, v56, v57")
    k.e("s_branch L_pk_done")
    k.label("L_pk_small")
    k.vmq = list(q0)
    k.e(f"v_mov_b32 v64, v{vL16}", f"v_add_u32 v65, 1024, v{vL16}", f"v_mov_b32 v68, v{vL16}", f"s_mov_b32 s72, {OOB>>1:#x}", "s_mov_b32 s73, s72", "s_mov_b32 s74, s72")
    k.e("s_cmp_eq_u32 s37, 0", "s_cbranch_scc1 L_pk_wo")
    k.e("s_mul_i32 s38, s35, 2341", "s_lshr_b32 s38, s38, 16", "s_mul_i32 s39, s38, 28", "s_sub_u32 s39, s35, s39",
        "s_mul_i32 s70, s39, 9363", "s_lshr_b32 s70, s70, 16", "s_mul_i32 s71, s70, 7", "s_sub_u32 s71, s39, s71")
    for u in range(2):
      k.e(f"s_sub_u32 s39, s70, s36" if P.hrot else "s_mov_b32 s39, s70", f"s_sub_u32 s39, s39, {u if P.hrot else 0}", "s_and_b32 s39, s39, 3",
        "s_lshl_b32 s32, s39, 2", "s_add_u32 s32, s32, s71", "s_mul_i32 s33, s39, 3", "s_add_u32 s33, s33, s71", "s_add_u32 s33, s33, 12",
        "s_cmp_lt_u32 s71, 4", "s_cselect_b32 s32, s32, s33", "s_mul_i32 s33, s38, 28", "s_add_u32 s32, s32, s33", f"s_lshl_b32 s{(35, 37)[u]}, s32, 11")
    k.e("v_lshl_add_u32 v56, v49, 9, v50", "v_xor_b32 v57, 64, v56", f"v_mov_b32 v62, {224*KB}", f"v_mov_b32 v63, {224*KB}")
    k.e(f"s_mul_i32 s36, s36, {224*KB}", f"s_add_u32 s36, s36, {WS_PDN}", "s_add_u32 s70, s36, s35", "s_add_u32 s71, s36, s37")
    k.wait(vm="pk")
    for i in range(2):
        for nn in range(2):
            for j in range(2): k.ds(f"ds_read_b64_tr_b16 {vr(PQ[2*i+nn]+2*j,2)}, v{56+nn} offset:{i*2048 + j*1024}", "t")
    mid1(); mid2()
    k.wait(lg="all")
    k.e("s_branch L_pk_done")
    k.label("L_pk_wo")
    k.vmq = list(q0)
    k.e("v_and_b32 v56, 2, v46", "v_lshlrev_b32 v56, 1, v56", "v_xor_b32 v56, v56, v47", "v_lshlrev_b32 v56, 4, v56", "v_lshl_add_u32 v56, v46, 7, v56",
        "v_lshrrev_b32 v57, 4, v1", "v_lshl_add_u32 v56, v57, 10, v56", "v_add_u32 v56, s34, v56", "v_xor_b32 v57, 64, v56",
        "v_mov_b32 v62, 0x800", "v_mov_b32 v63, 0x800")
    k.e("s_lshl_b32 s36, s36, 16", "s_lshl_b32 s35, s35, 12", "s_add_u32 s70, s36, s35", f"s_add_u32 s70, s70, {WS_PWO}", "s_mov_b32 s71, s70")
    k.wait(vm="pk")
    for j in range(4):
        for jj in range(2): k.ds(f"ds_read_b64_tr_b16 {vr(PQ[j]+2*jj,2)}, v{56+(j>>1)} offset:{jj*512 + 8*(j&1)}", "t")
    mid1(); mid2()
    k.wait(lg="all")
    k.label("L_pk_done")

def pack_stores(k):
    ops = []
    for r in range(4):
        for p in range(2):
            ops.append(("v", lambda r=r, p=p: k.vm(f"buffer_store_dwordx4 {vr(PQ[2*r+p],4)}, v{64+p}, {SRD_WS}, s{70+r} offen sc1", "pks")))
            if r < 3: ops.append(("a", lambda p=p: k.e(f"v_add_u32 v{64+p}, v{64+p}, v{62+p}")))
    ops.append(("v", lambda: k.vm(f"buffer_store_dwordx4 v[44:47], v68, {SRD_WS}, s74 offen sc1", "pks")))
    return ops

A_XF, A_K, A_V, A_Q = 36, 76, 86, 96
A_STA, A_STB, A_OP, A_DX, A_PA, A_ST, A_ACC = 104, 106, 144, 152, 153, 140, 184
class R0: XE, XO, SA, SB, CI, ONE, M, ATT, TMP = 3, 4, 5, 6, 28, 32, 52, (116, 160), 60
class R1: XE, XO, SA, SB, CI, ONE, M, ATT, TMP = 116, 117, 118, 119, 252, 124, 120, (228, 160), 28
A_U, A_PX = 226, 115
A11_ORDER = [2, 3, 1, 0, "h"]
A11_POS = {2: 3, 3: 0, 1: 1, 0: 2, "h": 3}
sODD, sCUR0, sCUR1, sCEXP = 40, 42, 44, 46

def a1_setup(k, layer):
    R = (R0, R1)[layer]
    real = k; out = []
    class Rec:
        def e(self, *t):
            if any(x.startswith("s_cmp") for x in t): out.append(lambda t=t: real.e(*t))
            else: out.extend(lambda x=x: real.e(x) for x in t)
    k = Rec()
    t16, g, tt, tb = R.TMP, R.TMP + 1, R.TMP + 2, R.TMP + 3
    x, y, z = R.ONE, R.ONE + 1, R.ONE + 2
    sa = L_SA0 if layer == 0 else L_SA1
    k.e(f"v_and_b32 v{t16}, 15, v1", f"v_lshrrev_b32 v{g}, 4, v1", f"v_and_b32 v{tt}, 7, v1", f"v_bfe_u32 v{tb}, v1, 3, 1")
    k.e(f"v_lshlrev_b32 v{tb}, 13, v{tb}")
    if layer == 0: k.e(f"v_add_u32 v{tb}, {L_X}, v{tb}")
    if layer == 0:
        k.e(f"v_and_b32 v{x}, 6, v{tt}", f"v_xor_b32 v{x}, v{x}, v{g}", f"v_lshlrev_b32 v{x}, 4, v{x}",
            f"v_lshl_add_u32 v{x}, v{tt}, 7, v{x}", f"v_add_u32 v{R.XE}, v{x}, v{tb}", f"v_xor_b32 v{R.XO}, 64, v{R.XE}")
    else:
        k.e(f"v_lshl_add_u32 v{x}, v{g}, 7, v{tb}", f"v_lshl_add_u32 v{R.XE}, v{tt}, 4, v{x}", f"v_add_u32 v{R.XO}, 512, v{R.XE}")
    k.e(f"v_lshlrev_b32 v{R.SA}, 3, v{t16}", f"v_add_u32 v{R.SA}, {sa}, v{R.SA}",
        f"v_lshlrev_b32 v{R.SB}, 5, v{g}", f"v_add_u32 v{R.SB}, {sa}, v{R.SB}")
    k.e(f"v_and_b32 v{x}, 1, v1", f"v_cmp_eq_u32 s[{sODD}:{sODD+1}], 1, v{x}",
        f"v_lshl_add_u32 v{y}, v{g}, 2, v{x}", f"v_cmp_le_u32 s[{sCUR0}:{sCUR0+1}], v{y}, v{t16}",
        f"v_add_u32 v{y}, 2, v{y}", f"v_cmp_le_u32 s[{sCUR1}:{sCUR1+1}], v{y}, v{t16}")
    k.e(f"v_mov_b32 v{y}, 0xffff", f"v_mov_b32 v{z}, 0xffff0000", f"v_cndmask_b32 v{y}, v{y}, v{z}, s[{sODD}:{sODD+1}]", f"v_mov_b32 v{z}, 0")
    k.e(f"v_cndmask_b32 v{R.M+2}, v{z}, v{y}, s[{sCUR0}:{sCUR0+1}]", f"v_cndmask_b32 v{R.M}, v{y}, v{z}, s[{sCUR0}:{sCUR0+1}]",
        f"v_cndmask_b32 v{R.M+3}, v{z}, v{y}, s[{sCUR1}:{sCUR1+1}]", f"v_cndmask_b32 v{R.M+1}, v{y}, v{z}, s[{sCUR1}:{sCUR1+1}]")
    k.e(f"s_cmp_eq_u32 s{sB}, 0", f"s_cselect_b32 s70, {f2u(-1e38):#x}, 0", f"s_mov_b32 s{sCEXP}, {f2u(0.25*LOG2E):#x}")
    for i in range(4): k.e(f"v_mov_b32 v{R.CI+i}, s70", f"v_mov_b32 v{R.ONE+i}, 0x3f803f80")
    return out

def o_bases(k, layer):
    k.e(*o_block("s32", layer))
    k.e(f"s_lshl_b32 s33, s{sCS}, 2", f"s_add_u32 s33, s33, s{sW}", "s_lshl_b32 s53, s33, 10", "s_add_u32 s53, s53, s32", "s_add_u32 s54, s53, 32768",
        f"s_lshl_b32 s32, s{sB}, 5", "s_add_u32 s32, s32, s33", "s_lshl_b32 s32, s32, 2", f"s_add_u32 s89, s32, {fl(layer, FL_O)}")

def ln_finish(a, s, q):
    a(f"v_mul_f32 v{s}, {f2u(-1/512):#x}, v{s}"); a(f"v_mul_f32 v{q}, {f2u(1/512):#x}, v{q}")
    a(f"v_fma_f32 v{q}, -v{s}, v{s}, v{q}"); a(f"v_max_f32 v{q}, 0, v{q}"); a(f"v_add_f32 v{q}, {f2u(1e-5):#x}, v{q}")

A_QS = 68
def fix_reads(k, R, t, S):
    i = 0 if t == "h" else t + 1
    return [lambda: k.ds(f"ds_read_b64 {vr(S,2)}, v{R.SA} offset:{i*128}", ("sa", t)),
            lambda: k.ds(f"ds_read_b128 {vr(S+2,4)}, v{R.SB} offset:{i*128}", ("sa", t)),
            lambda: k.ds(f"ds_read_b128 {vr(S+6,4)}, v{R.SB} offset:{i*128+16}", ("sa", t))]
def fix(k, R, fx, t, acc, at, pk, S=A_STA, pre=False, nxt=()):
    a = lambda txt, c=1, at=0: fx.add(lambda: k.e(txt), c, at)
    i = 0 if t == "h" else t + 1
    if not pre:
        for n, f in enumerate(fix_reads(k, R, t, S)): fx.add(f, 1, at - P.a1_salead if n == 0 else 0)
    fx.add(lambda: k.wait(lg=[("sa", t)]), 1, at)
    for f in nxt: fx.add(f)
    for r0, cs, dst in ((acc[0], CSQ, None if t == "h" else A_Q + 2*t), (acc[1], CSK, A_K + 2*i)):
        if dst is None: continue
        isq = cs == CSQ
        if pk:
            for h in (0, 2): a(f"v_pk_fma_f32 {vr(r0+h,2)}, {vr(S,2)}, {vr(cs+h,2)}, {vr(r0+h,2)} op_sel_hi:[0,1,1]")
            if not isq:
                for h in (0, 2): a(f"v_pk_mul_f32 {vr(r0+h,2)}, {vr(S,2)}, {vr(r0+h,2)} op_sel:[1,0] op_sel_hi:[1,1]")
        else:
            for r in range(4): a(f"v_fmac_f32 v{r0+r}, v{S}, v{cs+r}")
            if not isq:
                for r in range(4): a(f"v_mul_f32 v{r0+r}, v{S+1}, v{r0+r}")
        if isq: a(f"v_mul_f32 v{A_QS+t}, s{sCEXP}, v{S+1}")
        for h in range(2): a(f"v_cvt_pk_bf16_f32 v{dst+h}, v{r0+2*h}, v{r0+2*h+1}")
    r0 = acc[2]
    for r in range(4): a(f"v_fmac_f32 v{r0+r}, v{S+2+2*r}, v{CSV}")
    for r in range(4): a(f"v_mul_f32 v{r0+r}, v{S+3+2*r}, v{r0+r}")
    for h in range(2): a(f"v_cvt_pk_bf16_f32 v{A_V+2*i+h}, v{r0+2*h}, v{r0+2*h+1}")
    fx.add(lambda: (k.mark(("fix", t)), k.stamp(f"t0 fix{t}")), 0)

def attn(k, R, fx, t, B):
    SC, SP, PP, O, SUM, T = B, B + 4, B + 8, B + 12, B + 16, B + 20
    a = lambda txt, c=1: fx.add(lambda: k.e(txt), c)
    q = vr(A_Q + 2*t, 2)
    fx.dep(("fix", t)); fx.dep(("fix", t - 1 if t else "h")); fx.skip(1)
    a(f"{MF16S} {vr(SC,4)}, {vr(A_K+2*(t+1),2)}, {q}, 0", 2)
    a(f"{MF16S} {vr(SP,4)}, {vr(A_K+2*t,2)}, {q}, {vr(R.CI,4) if t == 0 else '0'}", 2)
    fx.skip(3)
    for rr, cur in ((0, sCUR0), (1, sCUR1)):
        a(f"v_cndmask_b32 v{T+2}, v{SC+2*rr}, v{SC+2*rr+1}, s[{sODD}:{sODD+1}]")
        a(f"v_cndmask_b32 v{T+3}, v{SP+2*rr}, v{SP+2*rr+1}, s[{sODD}:{sODD+1}]")
        a(f"v_cndmask_b32 v{T+rr}, v{T+3}, v{T+2}, s[{cur}:{cur+1}]")
    a(f"v_max_f32 v{T+2}, v{T}, v{T+1}"); a(f"v_mov_b32 v{T+3}, v{T+2}"); fx.skip(1)
    a(f"v_permlane16_swap_b32 v{T+2}, v{T+3}", 2); a(f"v_max_f32 v{T+2}, v{T+2}, v{T+3}"); a(f"v_mov_b32 v{T+3}, v{T+2}"); fx.skip(1)
    a(f"v_permlane32_swap_b32 v{T+2}, v{T+3}", 2); a(f"v_max_f32 v{T+2}, v{T+2}, v{T+3}")
    a(f"v_mul_f32 v{T+2}, v{A_QS+t}, v{T+2}")
    for rr in range(2): a(f"v_fma_f32 v{T+rr}, v{T+rr}, v{A_QS+t}, -v{T+2}")
    for rr in range(2): a(f"v_exp_f32 v{T+rr}, v{T+rr}", 2)
    for rr in range(2): a(f"v_cvt_pk_bf16_f32 v{T+rr}, v{T+rr}, v{T+rr}")
    a(f"v_and_b32 v{PP}, v{T}, v{R.M}"); a(f"v_and_b32 v{PP+1}, v{T+1}, v{R.M+1}")
    a(f"v_and_b32 v{PP+2}, v{T}, v{R.M+2}"); a(f"v_and_b32 v{PP+3}, v{T+1}, v{R.M+3}")
    fx.skip(1)
    a(f"{MF16} {vr(SUM,4)}, {vr(R.ONE,4)}, {vr(PP,4)}, 0", 2)
    a(f"{MF16} {vr(O,4)}, {vr(A_V+2*t,4)}, {vr(PP,4)}, 0", 2)
    fx.skip(3)
    a(f"v_rcp_f32 v{T}, v{SUM}", 2); fx.skip(1)
    for r in range(4): a(f"v_mul_f32 v{O+r}, v{T}, v{O+r}")
    for h in range(2): a(f"v_cvt_pk_bf16_f32 v{A_OP+2*t+h}, v{O+2*h}, v{O+2*h+1}")
    fx.add(lambda: (k.mark(("attn", t)), k.stamp(f"t0 attn{t}")), 0)

def ostore(k, fx, pair):
    b = A_OP + 4 * pair
    fx.dep(("attn", 2*pair)); fx.dep(("attn", 2*pair + 1))
    fx.dep("po1" if pair == 0 else "blank")
    fx.skip(1)
    fx.add(lambda: k.e(f"v_permlane16_swap_b32 v{b}, v{b+2}"), 2); fx.add(lambda: k.e(f"v_permlane16_swap_b32 v{b+1}, v{b+3}"), 2)
    fx.add(lambda: (k.dstore(f"buffer_store_dwordx4 {vr(b,4)}, v{vL16}, {SRD_WS}, s{53+pair} offen", ("ost", pair)), k.mark(("ost", pair))))

Z_WD, Z_TR, Z_HE, Z_HO, Z_OE, Z_OO = 164, 165, 166, 167, 168, 169
Z_XF, Z_SUM, Z_GR, Z_SUMH, Z_GRH, Z_CV = 104, 240, 244, 248, 252, 100
P.k_first = 4; P.k_pack = None; P.k_prep = 13
P.k_look, P.k_atom, P.k_bar, P.k_vgap, P.k_pst, P.k_pgap = 3, 6, 3, 3, 3, 0
NS0 = 6
def z_acc(t):
    if t == "h": return (None, A_ACC + 48, A_ACC + 52)
    return (A_ACC + 12*t, A_ACC + 12*t + 4, A_ACC + 12*t + 8)

def a10_lanes(k):
    k.e("v_lshrrev_b32 v60, 3, v1", "v_and_b32 v61, 6, v60", "v_and_b32 v62, 7, v1", "v_xor_b32 v61, v61, v62",
        "v_lshlrev_b32 v61, 4, v61", f"v_lshl_add_u32 v{A_DX}, v60, 10, v61")
    k.e("v_and_b32 v61, 2, v60", f"s_and_b32 s32, s{sW}, 1", "s_lshl_b32 s32, s32, 2", "v_or_b32 v61, s32, v61", "v_xor_b32 v61, v61, v62",
        "v_lshlrev_b32 v61, 4, v61", "v_mul_u32_u24 v60, 3072, v60", f"v_add_u32 v{Z_WD}, v60, v61")
    if P.rot == 0: k.e(f"s_add_u32 s{sROT}, s{sB}, s{sCS}")
    elif P.rot == 1: k.e(f"s_lshl_b32 s32, s{sB}, 1", f"s_bfe_u32 s33, s{sB}, 0x10002", "s_add_u32 s32, s32, s33", f"s_add_u32 s{sROT}, s32, s{sCS}")
    elif P.rot == 2: k.e(f"s_lshl_b32 s32, s{sB}, 1", f"s_add_u32 s{sROT}, s32, s{sCS}")
    elif P.rot == 3: k.e(f"s_mov_b32 s{sROT}, s{sCS}")
    elif P.rot == 4: k.e(f"s_lshl_b32 s32, s{sB}, 1", f"s_bfe_u32 s33, s{sB}, 0x10002", f"s_add_u32 s{sROT}, s32, s33")
    elif P.rot == 5: k.e(f"s_mov_b32 s{sROT}, 0")
    k.e(f"s_and_b32 s{sROT}, s{sROT}, 7")
    k.e(f"s_lshl_b32 s47, s{sB}, 3", "s_sub_u32 s48, s47, 2", "s_max_i32 s48, s48, 0", f"s_and_b32 s32, s{sW}, 1", "s_add_u32 s48, s48, s32",
        "s_lshl_b32 s48, s48, 13", f"s_lshl_b32 s32, s{sW}, 1", "s_add_u32 s47, s47, s32", "s_lshl_b32 s47, s47, 13")
    k.e(f"s_mul_i32 s51, s{sW}, {8*3072}", f"s_lshl_b32 s32, s{sCS}, 7", "s_add_u32 s51, s51, s32", f"s_mul_i32 s52, s{sW}, 3072")
    k.e(f"s_lshl_b32 s49, s{sW}, 14", f"s_and_b32 s32, s{sW}, 1", "s_lshl_b32 s50, s32, 13", f"s_lshr_b32 s32, s{sW}, 1",
        "s_lshl_b32 s33, s32, 10", "s_add_u32 s50, s50, s33", f"s_add_u32 s90, s32, s{sROT}")

def a10_x(k, c):
    S = lambda *t: [("s", lambda x=x: k.e(x)) for x in t]
    ld = lambda: k.vm(f"buffer_load_dwordx4 v{A_DX}, {SRD_X}, s33 offen {P.x_mod} lds", ("x", c))
    ops = S(f"s_add_u32 s33, s{sROT}, {c}", "s_and_b32 s33, s33, 7", "s_lshl_b32 s33, s33, 7", f"s_add_u32 m0, s49, {L_X + c*1024}", "s_add_u32 s33, s33, s47")
    ops += [("v", ld)] + S(f"s_add_u32 m0, s49, {L_X + 8192 + c*1024}", "s_add_u32 s33, s33, 8192") + [("v", ld)]
    if c % 2 == 0:
        ops += S(f"s_add_u32 s33, s90, {c}", "s_and_b32 s33, s33, 7", "s_lshl_b32 s33, s33, 7", f"s_add_u32 m0, s50, {L_XH0 + c*1024}", "s_add_u32 s33, s33, s48") + [("v", ld)]
    return ops

def a10_w(k, s):
    S = lambda *t: [("s", lambda x=x: k.e(x)) for x in t]
    if s & 1: ops = S(f"s_add_u32 m0, s52, {(s % NS0)*12288}", f"s_add_u32 s63, s63, {32*3072}")
    else: ops = S(f"s_add_u32 s63, s{sROT}, {s>>1}", "s_and_b32 s63, s63, 7", f"s_mul_i32 s63, s63, {64*3072}", f"s_add_u32 m0, s52, {(s % NS0)*12288}", "s_add_u32 s63, s63, s51")
    for p in range(3): ops.append(("v", lambda p=p: k.vm(f"buffer_load_dwordx4 v{Z_WD}, {SRD_QKV}, s63 offen offset:{p*1024} {P.w_mod} lds", ("w", s))))
    return ops
def run(ops):
    for _, f in ops: f()

def fill(k, mains, streams, cap=2):
    lastv = -99
    for g, m in enumerate(mains):
        m(); k.gap = g
        for a, o in streams:
            if a <= g and o and o[0][0] == "s": o.pop(0)[1](); break
        room = cap; nd = 0
        if g - lastv >= P.k_vgap and k.bg_step(): room -= 1; lastv = g
        while room > 0:
            pick = None
            for a, o in streams:
                if a > g or not o: continue
                t = o[0][0]
                if t == "d" and nd >= 1: continue
                if t == "v" and g - lastv < P.k_vgap: continue
                pick = o; break
            if pick is None: break
            t, f = pick.pop(0); f(); room -= 2 if t == "b" else 1
            if t == "d": nd += 1
            if t == "v": lastv = g
    for a, o in streams: run(o)

def a10_lanes2(k):
    k.e("v_lshrrev_b32 v60, 4, v1", "v_bfe_u32 v61, v1, 2, 2", "v_and_b32 v62, 1, v60", "v_lshlrev_b32 v62, 1, v62",
        "v_lshrrev_b32 v63, 1, v61", "v_or_b32 v62, v62, v63", f"v_xor_b32 v62, s{sW}, v62", "v_lshlrev_b32 v62, 5, v62",
        "v_mul_u32_u24 v60, 3072, v60", "v_lshl_add_u32 v60, v61, 7, v60", "v_add_u32 v60, v60, v62",
        "v_and_b32 v61, 3, v1", f"v_lshl_add_u32 v{Z_TR}, v61, 3, v60")
    k.e("v_and_b32 v60, 15, v1", "v_cmp_eq_u32 s[78:79], 0, v60")
    k.e(f"v_subrev_u32 v{Z_HE}, 16384, v{R0.XE}", f"v_subrev_u32 v{Z_HO}, 16384, v{R0.XO}",
        f"v_add_u32 v{Z_OE}, s49, v{R0.XE}", f"v_add_u32 v{Z_OO}, s49, v{R0.XO}")

def a10_loop(k, first):
    LA = P.k_look
    def sync(s, extra=()):
        k.wait(vm=[("w", s), ("x", s >> 1)] + list(extra)); k.e("s_barrier")
    nxt = [first]
    def dmas(upto):
        out = []
        while nxt[0] <= min(upto, 15):
            n = nxt[0]; nxt[0] += 1
            if n % 2 == 0: out += a10_x(k, n // 2)
            out += a10_w(k, n)
        return out
    def reads(s):
        fb = Z_XF + 24 * (s & 1); off = (s >> 1) * 1024; o = s & 1
        tr = lambda p, j: ("d", lambda: k.ds(f"ds_read_b64_tr_b16 {ar(12*s+4*p+2*j,2)}, v{Z_TR} offset:{(s%NS0)*12288 + p*1024 + j*512}", ("r", s, 0 if p == 0 else 1)))
        xr = lambda d, a, of, grp: ("d", lambda: k.ds(f"ds_read_b128 {vr(d,4)}, v{a} offset:{of}", ("r", s, grp)))
        out = [tr(0, 0), tr(0, 1)] + [xr(fb + 4*t, R0.XO if o else R0.XE, t*16384 + off, 0) for t in range(4)]
        out += [tr(1, 0), tr(1, 1), tr(2, 0), tr(2, 1), xr(fb + 16, Z_HO if o else Z_HE, off, 1), xr(fb + 20, Z_OO if o else Z_OE, off, 1)]
        return out
    l0_background(k)
    pst = pack_stores(k)
    sync(0)
    k.stamp("k0")
    run(reads(0)); run(dmas(LA - 1))
    for s in range(16):
        fb = Z_XF + 24 * (s & 1)
        c = lambda r: "0" if s == 0 else vr(r, 4)
        wq, wk, wv, one = ar(12*s, 4), ar(12*s + 4, 4), ar(12*s + 8, 4), vr(R0.ONE, 4)
        ms = [f"{MF16} {vr(z_acc(t)[0],4)}, {wq}, {vr(fb+4*t,4)}, {c(z_acc(t)[0])}" for t in range(4)]
        for t in [0, 1, 2, 3, "h"]:
            xf = vr(fb + (16 if t == "h" else 4*t), 4)
            ms.append(f"{MF16} {vr(z_acc(t)[1],4)}, {wk}, {xf}, {c(z_acc(t)[1])}")
            ms.append(f"{MF16} {vr(z_acc(t)[2],4)}, {xf}, {wv}, {c(z_acc(t)[2])}")
        ms += [f"{MF16} {vr(Z_CV,4)}, {wq}, {vr(fb+16,4)}, {c(Z_CV)}",
               f"{MF16} {vr(Z_SUM,4)}, {one}, {vr(fb+20,4)}, {c(Z_SUM)}", f"{MF16} {vr(Z_GR,4)}, {vr(fb+20,4)}, {vr(fb+20,4)}, {c(Z_GR)}",
               f"{MF16} {vr(Z_SUMH,4)}, {one}, {vr(fb+16,4)}, {c(Z_SUMH)}", f"{MF16} {vr(Z_GRH,4)}, {vr(fb+16,4)}, {vr(fb+16,4)}, {c(Z_GRH)}"]
        mains = [lambda m=m: k.e(m) for m in ms]
        if s == P.k_pack:
            k.wait(lg="all"); pack_process(k, lambda: None, lambda: None)
        k.wait(lg=[("r", s, 0)])
        streams = [(3, [("s", lambda: k.wait(lg=[("r", s, 1)]))] +
                       [("a", lambda d=d: k.e(f"v_cndmask_b32 v{fb+16+d}, v{fb+16+d}, v{R0.ONE}, s[78:79]")) for d in range(4)])]
        if s + 1 < 16:
            ex = ["pks"] if s + 1 == P.k_atom else []
            assert not ex or not pst, "arrival before the last pack store"
            assert P.k_prep > 14 - LA and (P.k_pack or 0) <= 8 - LA
            ops = [("b", lambda: sync(s + 1, ex))] + reads(s + 1)
            if ex: ops.append(("b", lambda: arrive(k)))
            streams.append((P.k_bar, ops))
            streams.append((0, dmas(s + LA)))
        n = 0; mine = []
        while pst and s >= (P.k_pack or 0) and (n < P.k_pst or pst[0][0] == "a"):
            n += pst[0][0] == "v"; mine.append(pst.pop(0))
        streams.append((P.k_pgap, mine))
        if s == P.k_prep: streams.append((6, tail_prep(k)))
        if s == P.k_touch:
            streams.append((2, [("b", lambda: k.touch(157, "p", ["s_mov_b32 s32, s53"], False) if (0, "ost", True) not in P.wt else None),
                                ("b", lambda: k.touch(158, "q", [f"s_add_u32 s32, s64, {BX1[0]}"], False) if (0, "xst", False) not in P.wt else None),
                                ("b", lambda: k.touch(159, "h", h_base("s32", 0), False) if P.h_touch0 == "k" else None)]))
        if s == P.k_gb: streams.append((1, [("v", lambda t=t: k.vm(t, "gb")) for t in GB_LOADS]))
        if s == P.k_chk: streams.append((1, [("b", lambda: rendezvous(k))]))
        if s == 15 and P.k_chk < 16:
            streams.append((max(P.k_bar, 4), [("b", lambda: (k.e("s_barrier"), k.mark("xfree")))]))
        fill(k, mains, streams)
        if s in (3, 7, 11): k.stamp(f"k{s+1}")
    k.stamp("k16")
    if P.k_chk >= 16: rendezvous(k)

GB_LOADS = [f"buffer_load_dwordx4 {vr(36+4*j,4)}, v{vL16}, {SRD_WS}, s75 offen offset:{j*1024} sc1" for j in range(4)] + \
           [f"buffer_load_dword v{vP}, v172, {SRD_WS}, s77 offen offset:8 sc1"]
def arrive(k):
    k.wait(vm=["tag"])
    k.e(f"v_readfirstlane_b32 s{sTAG}, v170", f"s_cmp_eq_u32 s{sTAG}, 0", "s_cbranch_scc1 L_tag_spin ;np", "L_tag_ok: ;np")
    k.spins += ["L_tag_spin:", f"s_sub_u32 s{sBUD}, s{sBUD}, 1", "s_cbranch_scc1 L_tag_give", f"buffer_load_dword v170, v{vFA}, {SRD_DBG}, 0 offen sc1",
                "s_waitcnt vmcnt(0)", f"v_readfirstlane_b32 s{sTAG}, v170", f"s_cmp_eq_u32 s{sTAG}, 0", "s_cbranch_scc1 L_tag_spin", "s_branch L_tag_ok",
                "L_tag_give:", f"s_mov_b32 s{sBUD}, 0", "s_branch L_tag_ok"]
    k.e(f"v_mov_b32 v176, s{sTAG}", "v_not_b32 v177, v176", f"v_mov_b32 v178, s{sXCC}")
    k.vm(f"buffer_store_dwordx4 v[176:179], v171, {SRD_WS}, s75 offen sc1", "arr")

def rendezvous(k):
    chk = [f"s_not_b32 s32, s{sTAG}"]
    for j in range(4): chk += [f"v_xor_b32 v{36+4*j}, s{sTAG}, v{36+4*j}", f"v_xor_b32 v{37+4*j}, s32, v{37+4*j}"]
    chk += ["v_or3_b32 v36, v36, v37, v40", "v_or3_b32 v44, v44, v45, v41", "v_or3_b32 v36, v36, v48, v49", "v_or_b32 v36, v36, v44", "v_cmp_ne_u32 vcc, 0, v36"]
    k.wait(vm=["gb"])
    k.e(*chk); k.e("s_cbranch_vccnz L_gb_spin ;np", "L_gb_ok: ;np")
    k.spins += ["L_gb_spin:", f"s_sub_u32 s{sBUD}, s{sBUD}, 1", "s_cbranch_scc1 L_gb_give", "s_sleep 2",
                f"buffer_load_dword v170, v{vFA}, {SRD_DBG}, 0 offen sc1", "s_waitcnt vmcnt(0)", "v_readfirstlane_b32 s32, v170", f"s_cmp_eq_u32 s32, s{sTAG}",
                "s_cbranch_scc1 L_gb_same", f"s_mov_b32 s{sTAG}, s32", f"v_mov_b32 v176, s{sTAG}", "v_not_b32 v177, v176",
                f"buffer_store_dwordx4 v[176:179], v171, {SRD_WS}, s75 offen sc1", "L_gb_same:"] + GB_LOADS + ["s_waitcnt vmcnt(0)"] + chk + \
               ["s_cbranch_vccnz L_gb_spin", "s_branch L_gb_ok", "L_gb_give:", f"s_mov_b32 s{sBUD}, 0", "s_branch L_gb_ok"]
    k.e(f"v_cmp_ne_u32 vcc, s{sXCC}, v{vP}", "s_and_b32 s99, vcc_lo, 0xffff" if not P.safe else "s_and_b32 s99, 1, 1",
        f"s_cselect_b32 s{sML}, {OOB>>1:#x}, 0", f"s_cselect_b32 s{sMS}, 0, {OOB>>1:#x}")
    k.mark("gb")

W_OA, W_UA, W_SA, W_RB = 152, 154, 155, 156
def wo_bases(k):
    k.e(f"s_lshl_b32 s32, s{sB}, 2", f"s_add_u32 s32, s32, s{sW}", "s_lshl_b32 s64, s32, 14", f"s_lshl_b32 s33, s{sCS}, 10", "s_add_u32 s64, s64, s33",
        "s_lshr_b32 s32, s32, 1", "s_lshl_b32 s80, s32, 15", "s_lshl_b32 s65, s32, 11", "s_lshl_b32 s66, s32, 3", f"s_add_u32 s66, s66, s{sCS}", "s_lshl_b32 s66, s66, 1",
        f"s_and_b32 s32, s{sW}, 1", "s_add_u32 s66, s66, s32", "s_lshl_b32 s66, s66, 2", "s_lshl_b32 s32, s32, 8", "s_add_u32 s80, s80, s32", "s_add_u32 s65, s65, s32",
        f"s_lshr_b32 s32, s{sCS}, 1", "s_lshl_b32 s32, s32, 9", "s_add_u32 s65, s65, s32", f"s_and_b32 s32, s{sCS}, 1", "s_lshl_b32 s32, s32, 3", "s_add_u32 s65, s65, s32")
def wo_lanes(k):
    x, y = 66, 67
    return [lambda t=t: k.e(*t) for t in (
        [f"v_and_b32 v{x}, 15, v1"], [f"v_lshrrev_b32 v{y}, 4, v1"], [f"v_lshlrev_b32 v{W_OA}, 4, v{x}"], [f"v_lshl_add_u32 v{W_SA}, v{y}, 2, v{W_OA}"],
        [f"v_lshl_add_u32 v{W_OA}, v{y}, 9, v{W_OA}"], [f"v_and_b32 v{W_UA}, 7, v1"], [f"v_lshlrev_b32 v{W_UA}, 4, v{W_UA}"], [f"v_lshl_add_u32 v{W_UA}, v{y}, 7, v{W_UA}"],
        [f"v_lshrrev_b32 v{x}, 3, v{x}"], [f"v_lshl_add_u32 v{W_UA}, v{x}, 13, v{W_UA}"], [f"v_add_u32 v{W_RB}, {6*16384}, v{vL16}"],
        ["v_cmp_gt_u32 vcc, 32, v1", f"v_mov_b32 v{y}, {OOB:#x}", f"v_cndmask_b32 v{W_SA}, v{y}, v{W_SA}, vcc"])]
def blanks(k, layer):
    if not P.tags: return [lambda: k.mark("blank")]
    z = 66
    return [lambda: (k.e(f"v_mov_b32 v{z}, -1"), k.dstore(f"buffer_store_dword v{z}, v{vL16}, {SRD_WS}, s53 offen", "blank")),
            lambda: (k.e(f"s_add_u32 s58, s64, {BX1[layer]}"), k.dstore(f"buffer_store_dword v{z}, v{W_UA}, {SRD_WS}, s58 offen", "blank")),
            lambda: k.dstore(f"buffer_store_dword v{z}, v{W_UA}, {SRD_WS}, s58 offen offset:512", "blank"),
            lambda: (k.e(f"s_add_u32 s58, s65, {BS1[layer]}"), k.dstore(f"buffer_store_dword v{z}, v{W_SA}, {SRD_WS}, s58 offen", "blank"), k.mark("blank"))]
def wo_prepoll(k, layer):
    k.poll_addr(A_PA, 32)
    k.e(f"s_lshl_b32 s32, s{sB}, 7", f"s_add_u32 s{sPO}, s32, {fl(layer, FL_O)}", *o_block("s59", layer), "s_and_b32 s32, s80, 0xffff", "s_add_u32 s59, s59, s32")
    k.bg_held = True
    k.poll_issue(A_PA, "po1"); k.mark("po1")

def dna(k): return regloads(k, sDS, 0, lambda j: ar(192 + 4*j, 4), 16, "dna")

def tail_prep(k):
    R = R0
    A = lambda *t: [("a", lambda x=x: k.e(x)) for x in t]
    B = lambda *t: [("b", lambda: k.e(*t))]
    ops = A("v_and_b32 v73, 15, v1", "v_lshrrev_b32 v74, 4, v1", "v_lshlrev_b32 v73, 10, v73", "v_lshl_add_u32 v73, v74, 4, v73")
    ops += B(f"s_lshl_b32 s58, s{sB}, 2", f"s_add_u32 s58, s58, s{sW}", "s_lshl_b32 s58, s58, 14", f"s_lshl_b32 s59, s{sCS}, 7", "s_add_u32 s58, s58, s59")
    ops += [("v", lambda p=p: k.vm(f"buffer_load_dwordx4 {vr(RES+4*p,4)}, v73, {SRD_X}, s58 offen offset:{p*64}", "res")) for p in range(2)]
    ops += A("v_and_b32 v75, 3, v1", "v_cmp_eq_u32 s[34:35], 1, v75", "v_cmp_eq_u32 s[36:37], 2, v75", "v_cmp_eq_u32 s[38:39], 3, v75", "v_bfe_u32 v75, v1, 2, 2")
    ops += B("v_cmp_eq_u32 vcc, v75, v74", f"v_mov_b32 v72, {L_SA0 + 768}", f"s_lshl_b32 s59, s{sW}, 7", f"v_add_u32 v74, s59, v{R.SA}",
             "v_cndmask_b32 v74, v72, v74, vcc", f"v_cndmask_b32 v75, v72, v{R.SA}, vcc")
    return ops + [("a", f) for f in wo_lanes(k)]

def l0_background(k):
    k.per = dict(P.per_k)
    dd = dna(k)
    bg_list(k, dd[:P.dna_first], "s4", "dna", "gb")
    bg_list(k, wow(k), "s4", "wow", "xfree")
    bg_batches(k, [0, 1, 2, 3], "s2", lambda b: "xfree")
    bg_batches(k, [4], "s2", lambda b: "wobar")
    bg_batches(k, [5], "s2", lambda b: "xfree")
    bg_batches(k, [6, 7, 8, 9], "s2", lambda b: "gubar")
    bg_list(k, dd[P.dna_first:], "s4", "dna")
P.per_k = {"s2": 90, "s4": 70}

def a10_tail(k):
    R = R0
    k.per = dict(P.per_tail0)
    k.stamp("t0 gb")
    if (0, "xst", False) not in P.wt: k.touch(72, "t", [f"s_add_u32 s32, s65, {BS1[0]}"])
    k.bg_burst(P.tail_burst); k.bg_next = k.t + P.tail_delay
    hk, hv = z_acc("h")[1], z_acc("h")[2]
    for r in range(4):
        k.e(f"v_mov_b32_dpp v{CSQ+r}, v{Z_CV+r} row_newbcast:0 row_mask:0xf bank_mask:0xf", f"v_mov_b32_dpp v{CSK+r}, v{hk+r} row_newbcast:0 row_mask:0xf bank_mask:0xf")
    k.e(f"v_mov_b32 v{CSV}, v{hv}", f"v_mov_b32 v45, v{hv}", f"v_permlane16_swap_b32 v{CSV}, v45", f"v_mov_b32 v45, v{CSV}", f"v_permlane32_swap_b32 v{CSV}, v45")
    fa = Flex(); fb = Flex()
    for fx, S, G, ad, off in ((fa, Z_SUM, Z_GR, 74, 128), (fb, Z_SUMH, Z_GRH, 75, 0)):
        a = lambda txt, c=1, fx=fx: fx.add(lambda: k.e(txt), c)
        a(f"v_cndmask_b32 v{S+1}, v{G}, v{G+1}, s[34:35]"); a(f"v_cndmask_b32 v{S+1}, v{S+1}, v{G+2}, s[36:37]"); a(f"v_cndmask_b32 v{S+1}, v{S+1}, v{G+3}, s[38:39]")
        ln_finish(a, S, S + 1); a(f"v_rsq_f32 v{S+1}, v{S+1}"); fx.skip(1)
        fx.add(lambda S=S, ad=ad, off=off: k.ds(f"ds_write_b64 v{ad}, {vr(S,2)} offset:{off}", "saw"))
    drain([fa, fb], k)
    for f in blanks(k, 0): f()
    k.wait(lg="all"); k.e("s_barrier"); k.mark("xfree")
    k.stamp("t0 bar")
    fx = Flex(); f1 = Flex(); f2 = Flex()
    od = (2, 1, 3, 0, "h"); Ss = (A_STA, 56)
    for f in fix_reads(k, R, od[0], Ss[0]): f()
    for n, t in enumerate(od):
        fix(k, R, fx, t, z_acc(t), 0, True, Ss[n & 1], True, fix_reads(k, R, od[n + 1], Ss[~n & 1]) if n < 4 else ()); fx.skip(1)
    attn(k, R, f1, 2, R.ATT[0]); attn(k, R, f2, 3, R.ATT[1]); ostore(k, f2, 1)
    attn(k, R, f1, 1, R.ATT[0]); attn(k, R, f2, 0, R.ATT[1]); ostore(k, f2, 0)
    f3 = Flex(); f3.dep(("ost", 1))
    for _ in range(P.l0_flag_delay): f3.skip(1)
    f3.add(lambda: (k.wait(vm=[("ost", 1)]), k.flag(1, 89), k.mark("oflag1")))
    f3.dep(("attn", 0)); f3.add(lambda: wo_prepoll(k, 0))
    drain([fx, f1, f2, f3], k)
    k.stamp("a1 end")
P.tail_burst = 2; P.tail_delay = 0; P.l0_flag_delay = 6; P.dna_first = 2
P.per_tail0 = {"s2": 70, "s4": 45}

def a11_bases(k):
    out = []
    S = lambda *t: out.extend(lambda x=x: k.e(x) for x in t)
    S(f"s_lshr_b32 s70, s{sW}, 1", "s_lshl_b32 s49, s70, 13", f"s_and_b32 s71, s{sW}, 1", "s_lshl_b32 s71, s71, 2",
      f"s_add_u32 s50, s71, s{sROT}", "s_lshl_b32 s71, s71, 10")
    for i in range(4):
        S(f"s_add_u32 s70, s50, {i}", "s_and_b32 s70, s70, 7", "s_lshl_b32 s70, s70, 10", "s_add_u32 s70, s70, s49", f"s_sub_u32 s{92+i}, s70, {i*1024}")
    S("s_add_u32 s49, s49, s71", f"s_lshl_b32 s47, s{sB}, 16", f"s_add_u32 s47, s47, {BX2()}")
    S(f"s_sub_u32 s48, s{sB}, 1", "s_max_i32 s48, s48, 0", "s_lshl_b32 s51, s48, 10", f"s_add_u32 s51, s51, {WS_HST}",
      "s_lshl_b32 s52, s48, 11", f"s_add_u32 s52, s52, {WS_HXF}", "s_lshl_b32 s48, s48, 14", f"s_add_u32 s48, s48, {WS_HALO}")
    S("v_lshrrev_b32 v28, 4, v1", "v_and_b32 v29, 15, v1", "v_lshlrev_b32 v29, 4, v29", f"v_lshl_add_u32 v{A_U}, v28, 9, v29", f"v_lshl_add_u32 v{A_U+1}, v28, 8, v29")
    S(f"s_lshl_b32 s70, s{sB}, 12", f"s_and_b32 s71, s{sW}, 1", "s_lshl_b32 s71, s71, 8", "s_add_u32 s70, s70, s71", f"s_add_u32 s90, s70, {BS2()}")
    out.append(lambda: k.e(f"s_lshl_b32 s70, s{sB}, 1", f"s_add_u32 s70, s70, s{sW}", "s_lshl_b32 s72, s70, 13", f"s_lshl_b32 s71, s{sCS}, 10", "s_add_u32 s72, s72, s71",
        f"s_add_u32 s72, s72, {WS_HALO - 16384}", f"s_cmp_ge_u32 s{sW}, 2", f"s_cselect_b32 s72, s72, {OOB>>1:#x}"))
    out.append(lambda: k.e(f"s_lshl_b32 s73, s{sB}, 10", f"s_lshr_b32 s71, s{sCS}, 1", "s_lshl_b32 s71, s71, 8", "s_add_u32 s73, s73, s71", f"s_and_b32 s71, s{sCS}, 1",
        "s_lshl_b32 s71, s71, 3", "s_add_u32 s73, s73, s71"))
    out.append(lambda: k.e(f"s_lshl_b32 s71, s{sW}, 7", "s_add_u32 s73, s73, s71", f"s_add_u32 s73, s73, {WS_HST - 256}",
        f"s_cmp_ge_u32 s{sW}, 2", f"s_cselect_b32 s73, s73, {OOB>>1:#x}"))
    out.append(lambda: k.e(f"s_lshl_b32 s70, s{sB}, 3", f"s_add_u32 s70, s70, s{sCS}", "s_lshl_b32 s70, s70, 1", f"s_add_u32 s70, s70, s{sW}", "s_lshl_b32 s70, s70, 7",
        f"s_add_u32 s70, s70, {WS_HXF - 256}", f"s_cmp_ge_u32 s{sW}, 2", f"s_cselect_b32 s91, s70, {OOB>>1:#x}"))
    return out

def a11_x(k, tile):
    fns = []
    for i in range(4):
        def f(i=i):
            k.set_m0(f"s_add_u32 m0, s49, {A11_POS[tile]*16384}")
            k.e(f"s_add_u32 s32, s{48 if tile == 'h' else 47}, s{92+i}")
            if tile not in (0, "h"): k.e(f"s_add_u32 s32, s32, {tile*16384}")
            k.vm(f"buffer_load_dwordx4 v{vL16}, {SRD_WS}, s32 offen offset:{i*1024} sc1 lds", ("x", tile))
        fns.append(f)
    return fns

def stats_path(k, fx, S, tag, addr, tok, at=0):
    a = lambda txt, c=1: fx.add(lambda: k.e(txt), c)
    s, q = S, S + 1
    fx.add(lambda: k.wait(vm=[tag]), 1, at)
    a(f"v_add_f32 v{s}, v{s}, v{S+2}"); a(f"v_add_f32 v{q}, v{q}, v{S+3}"); fx.skip(1)
    a(f"v_permlane16_swap_b32 v{s}, v{q}", 2); a(f"v_add_f32 v{s}, v{s}, v{q}"); a(f"v_mov_b32 v{q}, v{s}"); fx.skip(1)
    a(f"v_permlane32_swap_b32 v{s}, v{q}", 2); a(f"v_add_f32 v{s}, v{s}, v{q}"); a(f"v_mov_b32 v{q}, v{s}"); fx.skip(1)
    a(f"v_permlane16_swap_b32 v{s}, v{q}", 2)
    ln_finish(a, s, q); a(f"v_rsq_f32 v{q}, v{q}", 2); fx.skip(1)
    fx.add(lambda: (k.ds(f"ds_write_b64 v{addr}, {vr(s,2)} offset:{tok*8}", ("saw", tag)), k.mark(("saw", tag))))

def a11_early(k, later=False):
    fns = a11_x(k, A11_ORDER[0]) + [lambda: k.vm(f"buffer_load_dwordx4 {vr(A_ST,4)}, v{A_U}, {SRD_WS}, s90 offen offset:2048 sc1", "st0")] + a11_x(k, A11_ORDER[1])
    if later: return fns
    for f in fns: f()

def a11_main(k):
    R = R1; order = A11_ORDER
    steps = [(t, s) for t in order for s in range(16)]
    accof = lambda t: A_ACC + 12 * (order.index(t) % 3)
    def xread(i):
        t, s = steps[i]
        off = A11_POS[t] * 16384 + (s >> 1) * 1024
        k.ds(f"ds_read_b128 {vr(A_XF+4*(i%4),4)}, v{R.XO if s&1 else R.XE} offset:{off}", ("xf", i))
    mains = []; fixed = {}; gap_of = {}
    need_sa = {order[1]: ["st0"], order[2]: ["st1"], order[3]: [], "h": []}
    for i, (t, s) in enumerate(steps):
        acc = accof(t); xf = vr(A_XF + 4*(i % 4), 4)
        c = lambda r, s=s: "0" if s == 0 else vr(r, 4)
        ms = []
        if t != "h": ms.append(f"{MF16} {vr(acc,4)}, {ar(12*s,4)}, {xf}, {c(acc)}")
        ms.append(f"{MF16} {vr(acc+4,4)}, {ar(12*s+4,4)}, {xf}, {c(acc+4)}")
        ms.append(f"{MF16} {vr(acc+8,4)}, {xf}, {ar(12*s+8,4)}, {c(acc+8)}")
        gap_of[(t, s)] = len(mains)
        for m in ms: mains.append(lambda m=m: k.e(m))
        last = len(mains) - 1
        fl_ = fixed.setdefault(last, [])
        if i + 1 < len(steps): fl_.append((0, lambda i=i: k.wait(lg=[("xf", i + 1)])))
        j = i + 4
        if j < len(steps):
            tj, sj = steps[j]
            if sj == 0:
                def bar(tj=tj):
                    k.wait(vm=[("x", tj)], lg=[("saw", n) for n in need_sa[tj]]); k.e("s_barrier"); k.mark(("bar", tj))
                fixed.setdefault(gap_of[(t, s)], []).append((1, bar))
            fixed[last].append((1, lambda j=j: xread(j)))
    fx = Flex(); fz = Flex(); fz2 = Flex(); fy = Flex(); fm = Flex()
    k.e(f"s_and_b32 s32, s{sW}, 1", "s_lshl_b32 s32, s32, 7", f"v_add_u32 v7, s32, v{R.SA}")
    o_bases(k, 1)
    stats_path(k, fy, A_ST, "st0", 7, 48)
    g1 = P.a1_late_gap
    fm.add(lambda: (k.wait(vm=[("xst", 1)]), k.flag(2)), 3, P.a1_flag_gap)
    fm.add(lambda: (k.poll_issue(A_PX, "px2"), setattr(k, "bg_held", not P.a1_bg_early)), 1, g1 - P.a1_poll_lead)
    fm.add(lambda: k.poll_check(A_PX, "px2", 2), 2, g1)
    fm.add(lambda: k.vm(f"buffer_load_dwordx4 {vr(56,4)}, v{A_U}, {SRD_WS}, s90 offen sc1", "st1"))
    for t in order[2:4]:
        for f in a11_x(k, t): fm.add(f, 2); fm.skip(P.a1_xgap)
    for f in wo_lanes(k): fy.add(f)
    fy.add(lambda: k.mark("wolanes"), 0)
    fm.dep("wolanes")
    fm.add(lambda: k.e(f"s_add_u32 s58, s64, {BX2()}"))
    for p in range(2): fm.add(lambda p=p: k.vm(f"buffer_load_dwordx4 {vr(RES+4*p,4)}, v{W_UA}, {SRD_WS}, s58 offen offset:{p*512} sc1", "res")); fm.skip(P.a1_xgap)
    def halo_poll():
        k.poll_addr(A_PX, 16, 7)
        k.e(f"s_mov_b32 s{sPO}, s52", f"s_min_u32 s50, s{sB}, 1")
        k.poll_issue(A_PX, "phx"); k.bg_held = False
    fm.add(halo_poll, 3)
    for c in P.t1_a1:
        if c == "o": fm.add(lambda: k.touch(60, "p", ["s_mov_b32 s32, s53"]), 6)
        if c == "x": fm.add(lambda: k.touch(62, "q", [f"s_add_u32 s32, s64, {BX1[1]}"]), 6)
        if c == "s": fm.add(lambda: k.touch(64, "t", [f"s_add_u32 s32, s65, {BS1[1]}"]), 4)
    for f in blanks(k, 1): fm.skip(P.a1_xgap); fm.add(f, 3)
    stats_path(k, fy, 56, "st1", 7, 16, g1 + 26)
    fm.dep(("bar", order[2]))
    fm.add(lambda: k.poll_check(A_PX, "phx", "s50"), 2)
    fm.add(lambda: k.vm(f"buffer_load_dwordx4 {vr(A_ST,4)}, v{A_U+1}, {SRD_WS}, s51 offen sc1", "sth"))
    for f in a11_x(k, "h"): fm.add(f, 2); fm.skip(P.a1_xgap)
    stats_path(k, fy, A_ST, "sth", R.SA, 0, gap_of[(order[3], P.a1_sth)])
    k.per = dict(P.per_a1); k.bg_held = True
    b5 = batch(k, 5)
    mix = [(f, "s2", ("gw", 4), None) for f in batch(k, 4)] + [(f, "s2", ("gw", 5), None) for f in b5[:3]]
    ww = [(f, "s4", "wow", None) for f in wow(k)]
    while mix or ww:
        k.bg += ww[:2]; ww = ww[2:]
        if mix: k.bg.append(mix.pop(0))
    bg_batches(k, [0], "s2", lambda b: ("bar", order[3]))
    bg_batches(k, [1], "s2", lambda b: ("bar", "h"))
    bg_batches(k, [2, 3], "s2", lambda b: "wobar")
    bg_list(k, b5[3:], "s2", ("gw", 5), "wobar")
    if P.dn1_agpr:
        for j, f in enumerate(regloads(k, sDS, 16*1024, lambda j: ar(4*j, 4), 40, "dnr", tagf=lambda j: ("dnr", 8 + j // 2))): k.bg_add(f, "s4", ("dnr", 8 + j // 2), "gemm_done")
    bg_batches(k, [6, 7, 8, 9], "s2", lambda b: "gubar")
    A = lambda t: (accof(t) if t != "h" else None, accof(t) + 4, accof(t) + 8)
    for n in range(4): fix(k, R, fx, order[n], A(order[n]), gap_of[(order[n + 1], 1 if n < 3 else 2)], False)
    attn(k, R, fz, 3, R.ATT[0]); attn(k, R, fz2, 2, R.ATT[1]); ostore(k, fz2, 1)
    attn(k, R, fz, 1, R.ATT[0])
    fx.dep(("saw", "sth"))
    for f in fix_reads(k, R, "h", A_STA): fx.add(f)
    fx.dep("gemm_done")
    fix(k, R, fx, "h", A("h"), 0, False, pre=True); attn(k, R, fz2, 0, R.ATT[1]); ostore(k, fz2, 0)
    f3 = Flex(); f3.dep(("ost", 1)); f3.skip(P.l1_flag_delay)
    f3.add(lambda: (k.wait(vm=[("ost", 1)]), k.flag(1, 89), k.mark("oflag1")), 3)
    f3.dep(("attn", 0)); f3.add(lambda: wo_prepoll(k, 1))
    k.wait(vm=[("x", order[0])]); k.e("s_barrier")
    for i in range(4): xread(i)
    k.wait(lg=[("xf", 0)])
    k.stamp("a1 first")
    if k.stamping:
        for t in order[1:]: fixed.setdefault(gap_of[(t, 0)], []).append((0, lambda t=t: k.stamp(f"a1 t{t}")))
        for g in range(6, 224, 12): fixed.setdefault(g, []).append((0, lambda g=g: k.stamp(f"fina {g}")))
    run_gaps(k, mains, fixed, [fm, f3, fy, fx, fz2, fz], 2, over=lambda i: i >= P.a1_over)
    print("a11 left:", len(fm), len(fy), len(fx), len(fz), len(fz2), len(k.bg), {n: g for n, g in k.marks.items() if isinstance(n, tuple) and n[0] in ("fix", "attn", "saw", "ost")})
    k.mark("gemm_done"); k.bg_held = P.a1_tailhold
    k.stamp("a1 gemm")
    drain([fm, fy, fx, fz, fz2, f3], k)
    for n in range(2): assert k.marks[("fix", order[n])] < gap_of[(order[n + 3], 0)], "accumulator reused too early"
    k.stamp("a1 end")
P.a1_flag_gap, P.a1_late_gap, P.a1_poll_lead, P.l1_flag_delay, P.a1_over = 8, 36, 18, 14, 48
P.a1_bg_early = False; P.a1_salead = 8; P.a1_tailhold = True; P.touch1 = 1; P.t1_a1 = ''; P.t1_dn = ''; P.a1_xgap = 3; P.a1_sth = 4
P.per_a1 = {"s2": 80, "s4": 50}

R_W0, R_W1, R_RD, R_ST, R_OUT = 3, 4, 5, 6, 7
def red_setup(k, posA, dAB):
    x, y, z, u = 28, 29, 30, 31
    k.e(f"s_add_u32 s32, s{sGL}, {posA*16384}", f"v_add_u32 v{R_W0}, s32, v{vL16}", f"v_xor_b32 v{R_W1}, 128, v{R_W0}")
    k.e(f"v_and_b32 v{x}, 7, v1", f"v_lshrrev_b32 v{y}, 3, v1", f"s_lshl_b32 s32, s{sW}, 7", f"v_lshl_add_u32 v{z}, v{x}, 4, s32",
        f"v_bfe_u32 v{u}, v1, 4, 1", f"v_lshlrev_b32 v{R_RD}, 7, v{u}", f"v_xor_b32 v{z}, v{z}, v{R_RD}",
        f"v_bfe_u32 v{R_RD}, v1, 3, 2", f"v_lshl_add_u32 v{z}, v{R_RD}, 10, v{z}", f"v_lshrrev_b32 v{R_RD}, 5, v1",
        f"v_mul_u32_u24 v{R_RD}, {dAB*16384}, v{R_RD}", f"v_add_u32 v{z}, v{z}, v{R_RD}", f"v_add_u32 v{R_RD}, {posA*16384}, v{z}")
    k.e(f"v_lshlrev_b32 v{z}, 4, v{x}", f"v_lshl_add_u32 v{z}, v{u}, 2, v{z}", f"v_and_b32 v{u}, 0x28, v1",
        f"v_cmp_eq_u32 vcc, 0, v{u}", f"v_mov_b32 v{u}, {OOB:#x}", f"v_cndmask_b32 v{R_ST}, v{u}, v{z}, vcc")
    k.e(f"v_lshlrev_b32 v{z}, 10, v{x}", f"v_lshl_add_u32 v{R_OUT}, v{y}, 4, v{z}")

def red_bases(k):
    k.e(f"s_lshl_b32 s32, s{sB}, 3", f"s_add_u32 s32, s32, s{sW}", "s_lshl_b32 s55, s32, 13", f"s_lshl_b32 s33, s{sCS}, 10", "s_add_u32 s55, s55, s33")
    k.e("s_lshl_b32 s57, s32, 13", f"s_lshl_b32 s33, s{sCS}, 7", "s_add_u32 s57, s57, s33")
    k.e(f"s_lshl_b32 s56, s{sB}, 12", f"s_lshr_b32 s33, s{sCS}, 1", "s_lshl_b32 s33, s33, 9", "s_add_u32 s56, s56, s33",
        f"s_and_b32 s33, s{sCS}, 1", "s_lshl_b32 s33, s33, 3", "s_add_u32 s56, s56, s33", f"s_lshl_b32 s33, s{sW}, 7", "s_add_u32 s56, s56, s33")

def red_writes(k, acc, g, off, dAB):
    return [lambda q=q: k.ds(f"ds_write_b128 v{R_W1 if (q>>1)&1 else R_W0}, {vr(acc+4*q,4)} offset:{off + (q>>2)*dAB*16384 + (q&3)*1024}", ("rw", g)) for q in range(8)]
def red_reads(k, g, T, off):
    return [lambda w=w, hf=hf: k.ds(f"ds_read_b128 {vr(T+8*w+4*hf,4)}, v{R_RD} offset:{off + w*4096 + hf*512}", ("rr", g, w)) for w in range(4) for hf in range(2)]

def red_finish(k, fx, g, mm, T, xdst, stdst, final, pk):
    a = lambda txt, c=1: fx.add(lambda: k.e(txt), c)
    R = RES + 4 * mm
    def add8(d, s):
        if pk:
            for i in range(0, 8, 2): a(f"v_pk_add_f32 {vr(d+i,2)}, {vr(d+i,2)}, {vr(s+i,2)}")
        else:
            for i in range(8): a(f"v_add_f32 v{d+i}, v{d+i}, v{s+i}")
    fx.add(lambda: k.wait(lg=[("rr", g, 1)]))
    add8(T, T + 8)
    for i in range(4): a(f"v_lshlrev_b32 v{T+8+2*i}, 16, v{R+i}"); a(f"v_and_b32 v{T+9+2*i}, 0xffff0000, v{R+i}")
    add8(T, T + 8)
    fx.add(lambda: k.wait(lg=[("rr", g, 3)]))
    add8(T + 16, T + 24); add8(T, T + 16)
    for i in range(4): a(f"v_cvt_pk_bf16_f32 v{R+i}, v{T+2*i}, v{T+2*i+1}")
    if final:
        fx.add(lambda: (k.e(f"s_add_u32 s32, s57, {mm*32768}"), k.vm(f"buffer_store_dwordx4 {vr(R,4)}, v{R_OUT}, {SRD_OUT}, s32 offen {P.outm}", ("xst", g))))
        return
    fx.add(lambda: (k.e(f"s_add_u32 s32, s55, {xdst + mm*32768}"), k.dstore(f"buffer_store_dwordx4 {vr(R,4)}, v{vL16}, {SRD_WS}, s32 offen", ("xst", g))), 2)
    s, q = T + 32, T + 33
    a(f"v_add_f32 v{s}, v{T}, v{T+1}"); a(f"v_mul_f32 v{q}, v{T}, v{T}"); a(f"v_fmac_f32 v{q}, v{T+1}, v{T+1}")
    for i in range(2, 8): a(f"v_add_f32 v{s}, v{s}, v{T+i}"); a(f"v_fmac_f32 v{q}, v{T+i}, v{T+i}")
    fx.skip(1)
    a(f"v_add_f32_dpp v{s}, v{s}, v{s} row_ror:8 row_mask:0xf bank_mask:0xf"); a(f"v_add_f32_dpp v{q}, v{q}, v{q} row_ror:8 row_mask:0xf bank_mask:0xf")
    fx.skip(1)
    a(f"v_permlane16_swap_b32 v{s}, v{q}", 2); a(f"v_add_f32 v{s}, v{s}, v{q}"); a(f"v_mov_b32 v{q}, v{s}"); fx.skip(1)
    a(f"v_permlane32_swap_b32 v{s}, v{q}", 2); a(f"v_add_f32 v{s}, v{s}, v{q}")
    fx.add(lambda: (k.e(f"s_add_u32 s32, s56, {stdst + mm*2048}"), k.dstore(f"buffer_store_dword v{s}, v{R_ST}, {SRD_WS}, s32 offen", ("xst", g)), k.mark(("xst", g))), 2)

def merge(k, fx, extra, first=0):
    extra = list(extra)
    items = [it for it in fx.items if it[0] != "skip"]; fx.items = []
    per = max(1, (len(items) - first) // max(1, len(extra)))
    for n, it in enumerate(items):
        if n >= first and (n - first) % per == 0 and extra: extra.pop(0)()
        it[1](); k.bg_step()
    for f in extra: f(); k.bg_step()

def wo(k, layer):
    BF, WQ, ACC, T, PA, NQ = 32, 160, 192, 208, A_PA, 8
    state = {}
    def bload(sx):
        k.set_s(f"s_add_u32 s58, s59, {(sx & ~1)*2048}")
        k.vm(f"buffer_load_dwordx4 {vr(BF+4*sx,4)}, v{W_OA}, {SRD_WS}, s58 offen offset:{(sx%2)*2048} sc1", ("b", sx))
    def wread(n): k.ds(f"ds_read_b128 {vr(WQ+4*(n%NQ),4)}, v{W_RB} offset:{n*1024}", ("wq", n))
    k.wait(vm=["wow"]); k.e("s_barrier"); k.mark("wobar")
    k.stamp("wl bar")
    for n in range(NQ): wread(n)
    btxt = lambda sx: [f"s_add_u32 s99, s59, {sx*2048}", f"buffer_load_dwordx4 {vr(BF+4*sx,4)}, v{W_OA}, {SRD_WS}, s99 offen sc1"]
    bchk = lambda sx: k.valid([f"v_cmp_eq_u32 vcc, -1, v{BF+4*sx}"], btxt(sx))
    ptxt = f"buffer_load_dword v{T+20}, v{T+21}, {SRD_WS}, s59 offen sc1"
    if P.tags:
        k.e(f"v_lshlrev_b32 v{T+21}, 8, v{PA}")
        k.e(f"v_or_b32 v{T+21}, v{T+21}, v{PA}", f"v_and_b32 v{T+21}, 0x80007c00, v{T+21}")
        k.poll_check(PA, "po1", 1)
        k.vm(ptxt, "probe")
        for sx in range(P.wo_spec): bload(sx)
        k.e(f"s_lshl_b32 s32, s{sC}, 1", f"s_and_b32 s33, s{sW}, 1", "s_add_u32 s32, s32, s33", "s_lshl_b32 s32, s32, 7", f"s_add_u32 s{sPO}, s32, {fl(layer, FL_O)}")
    else:
        k.e(f"s_add_u32 s{sFO}, s66, {fl(layer, FL_X1)}")
        if P.wo_setup_first == 2: gu_setup(k, layer)
        k.wait(vm=[("ost", 0)]); k.stamp("wl ack"); k.flag(2, 89)
        k.e(f"s_cmp_lt_u32 s{sW}, 2", f"s_cbranch_scc1 L_wo_late{layer}")
        q0 = list(k.vmq)
        k.poll_check(PA, "po1", 1)
        for sx in range(P.wo_lead): bload(sx)
        if P.wo_setup_first == 1: gu_setup(k, layer)
        k.e(f"s_branch L_wo_join{layer}")
        k.label(f"L_wo_late{layer}")
        k.vmq = list(q0)
        if P.wo_setup_first == 1: gu_setup(k, layer)
        k.poll_issue(PA, "po2"); k.poll_wait(PA, "po2", 2, 157); k.stamp("wl go")
        for sx in range(P.wo_lead): bload(sx)
        k.label(f"L_wo_join{layer}")
    if P.tags or not P.wo_setup_first: gu_setup(k, layer)
    k.stamp("wo issued")
    mains = []; fixed = {}
    for n in range(64):
        sx, j = divmod(n, 4)
        mains.append(lambda n=n, sx=sx, j=j: k.e(f"{MF16} {vr(ACC+4*j,4)}, {vr(WQ+4*(n%NQ),4)}, {vr(BF+4*sx,4)}, {'0' if sx == 0 else vr(ACC+4*j,4)}"))
        fl_ = fixed.setdefault(n, [])
        if n < 63: fl_.append((0, lambda n=n: k.wait(vm=[("b", (n + 1) // 4)] if (n + 1) % 4 == 0 else None, lg=[("wq", n + 1)])))
        if P.tags and n < 63 and (n + 1) % 4 == 0: fl_.append((1, lambda n=n: bchk((n + 1) // 4)))
        if P.tags and n == 42: fl_.append((1, lambda: k.poll_issue(PA, "px1")))
        if n + NQ < 64: fl_.append((1, lambda n=n: wread(n + NQ)))
        if n % P.wo_bstep == 0 and P.wo_lead + n // P.wo_bstep < 16: fl_.append((1, lambda n=n: bload(P.wo_lead + n // P.wo_bstep)))
    fx = Flex()
    a = lambda txt, c=1, at=0: fx.add(lambda: k.e(txt), c, at)
    fx.add(lambda: k.wait(vm=["res"]), 1, 8)
    for i in range(8): a(f"v_lshlrev_b32 v{T+2*i}, 16, v{RES+i}"); a(f"v_and_b32 v{T+2*i+1}, 0xffff0000, v{RES+i}")
    k.per = dict(P.per_wo[layer]); k.bg_held = False; k.bg_next = k.t + P.wo_bg_delay
    if P.tags:
        k.wait(vm=["probe"])
        k.valid([f"v_cmp_eq_u32 vcc, -1, v{T+20}"], [ptxt] + sum([btxt(x) for x in range(P.wo_spec)], []))
        state["fresh"] = True
        for sx in range(P.wo_spec, P.wo_lead): bload(sx)
    k.wait(vm=[("b", 0)], lg=[("wq", 0)])
    if P.tags: bchk(0)
    k.stamp("wo first")
    fixed[P.wo_bg_stop].append((0, lambda: setattr(k, "bg_held", True)))
    run_gaps(k, mains, fixed, [fx], 2)
    drain([fx], k)
    k.stamp("wo gemm")
    for i in range(0, 16, 2): k.e(f"v_pk_add_f32 {vr(T+i,2)}, {vr(T+i,2)}, {vr(ACC+i,2)}")
    k.e(f"s_add_u32 s58, s64, {BX1[layer]}")
    for p in range(2):
        for i in range(4): k.e(f"v_cvt_pk_bf16_f32 v{RES+4*p+i}, v{T+8*p+2*i}, v{T+8*p+2*i+1}")
        k.dstore(f"buffer_store_dwordx4 {vr(RES+4*p,4)}, v{W_UA}, {SRD_WS}, s58 offen offset:{p*512}", "xst")
    S, Q = T + 16, T + 18
    k.e(f"v_pk_add_f32 {vr(S,2)}, {vr(T,2)}, {vr(T+2,2)}", f"v_pk_mul_f32 {vr(Q,2)}, {vr(T,2)}, {vr(T,2)}", f"v_pk_fma_f32 {vr(Q,2)}, {vr(T+2,2)}, {vr(T+2,2)}, {vr(Q,2)}")
    for i in range(4, 16, 2): k.e(f"v_pk_add_f32 {vr(S,2)}, {vr(S,2)}, {vr(T+i,2)}", f"v_pk_fma_f32 {vr(Q,2)}, {vr(T+i,2)}, {vr(T+i,2)}, {vr(Q,2)}")
    k.e(f"v_add_f32 v{S}, v{S}, v{S+1}", f"v_add_f32 v{Q}, v{Q}, v{Q+1}", f"s_add_u32 s58, s65, {BS1[layer]}",
        f"v_permlane16_swap_b32 v{S}, v{Q}", f"v_add_f32 v{S}, v{S}, v{Q}", f"v_mov_b32 v{Q}, v{S}", f"v_permlane32_swap_b32 v{S}, v{Q}", f"v_add_f32 v{S}, v{S}, v{Q}")
    k.dstore(f"buffer_store_dword v{S}, v{W_SA}, {SRD_WS}, s58 offen", "xst")
    key = lambda it: it[2][1] if (isinstance(it[2], tuple) and it[2][0] == "gw") else 11.5
    k.bg.sort(key=key)
    print(f"wo{layer} done, background left:", [it[2] for it in k.bg][::4])
    k.bg_burst(P.wo_win[layer])
    k.stamp("wo end")
P.wo_bg_delay = 750; P.wo_bg_stop = 63; P.wo_lead = 6; P.wo_spec = 3; P.gu_spec = 3; P.wo_bstep = 2
P.wo_poll_gap = 1; P.wo_late_gap = 7; P.wo_hold = True; P.wo_win = [4, 4]; P.wo_var = 'B'; P.wo_prew = 2
P.per_wo = [{"s2": 20, "s4": 20}] * 2

G_RB, G_C1, G_VV, G_AUG, G_X, G_ACC, G_WF, G_T = 3, 6, 7, 28, 32, 160, 224, 240
D_WV, D_BF, D_ACC, D_T, D_WF, D_RB, D_PA = 32, 64, 128, 192, 228, 112, 115
DN_SEQ = [(g, e) for g in range(2) for e in range(28)]
DN_GROUPS = [1, 0]
def h_loader(k, layer):
    def bload(i):
        if i == 0:
            k.e(f"s_mul_i32 s32, s{sB}, {224*KB}", f"s_mul_i32 s33, s{sW}, {28*KB}", "s_add_u32 s32, s32, s33", f"s_add_u32 s59, s32, {BH[layer]}")
            for p in range(4):
                k.e(f"s_add_u32 s32, s{sCS}, {p}", f"s_and_b32 s32, s32, {3 if P.hrot else 0}", f"s_mul_i32 s32, s32, {7*KB}", f"s_add_u32 s{34+p}, s59, s32")
                if not P.hrot: k.e(f"s_add_u32 s{34+p}, s{34+p}, {7*KB*p}")
        g, e = DN_SEQ[i]; p, tl = divmod(KK_OF[e], 7)
        k.set_s(f"s_add_u32 s58, s{34+p}, {DN_GROUPS[g] * 112 * KB + (tl & 4) * 1024}")
        k.vm(f"buffer_load_dwordx4 {vr(D_BF+4*(i%P.dn_lead),4)}, v{vL16}, {SRD_WS}, s58 offen offset:{(tl & 3)*1024} sc1", ("b", i))
    return bload

def gu_setup(k, layer):
    T = G_T; XA = T + 3
    k.e(*gu_tile("s50"))
    k.e(f"v_and_b32 v{T}, 31, v1")
    k.e(f"v_mov_b32 v{G_RB}, v{vL16}", f"v_add_u32 v{G_RB+1}, 0x10000, v{vL16}", f"v_add_u32 v{G_RB+2}, 0x20000, v{vL16}")
    k.e(f"v_lshrrev_b32 v{T+1}, 5, v1", f"v_lshlrev_b32 v{G_AUG+3}, 4, v{T}", f"v_lshl_add_u32 v{G_AUG+3}, v{T+1}, 10, v{G_AUG+3}")
    k.e(f"v_lshrrev_b32 v{XA}, 3, v{T}", f"v_lshlrev_b32 v{XA}, 13, v{XA}", f"v_lshl_add_u32 v{XA}, v{T+1}, 7, v{XA}",
        f"v_and_b32 v{T}, 7, v1", f"v_lshl_add_u32 v{XA}, v{T}, 4, v{XA}")
    k.e("s_lshl_b32 s32, s50, 11", f"s_add_u32 s51, s32, {BS1[layer]}")
    k.e("s_lshl_b32 s32, s50, 15", f"s_add_u32 s52, s32, {BX1[layer]}", "s_add_u32 s53, s52, 4096")
    k.e(*h_base("s54", layer))
    k.e("s_lshr_b32 s32, s50, 1", "s_lshl_b32 s32, s32, 4", f"s_add_u32 s32, s32, s{sM}",
        "s_lshl_b32 s32, s32, 1", "s_and_b32 s33, s50, 1", "s_add_u32 s32, s32, s33", "s_lshl_b32 s32, s32, 2", f"s_add_u32 s81, s32, {fl(layer, FL_H)}")

def gu(k, layer):
    T = G_T; XA = T + 3; PA = T + 2
    if P.tags: k.poll_check(A_PA, "px1", 1)
    else:
        def pa():
            k.poll_addr(PA, 16)
            k.e("s_lshl_b32 s32, s50, 6", f"s_add_u32 s{sPO}, s32, {fl(layer, FL_X1)}")
        if not P.gu_pa_late: pa()
        k.wait(vm=["xst"]); k.flag(1)
        if P.gu_pa_late: pa()
        k.stamp("x1 flag")
        if not P.gu_bar_first: k.poll_issue(PA, "px1")
    k.e(f"s_mov_b32 s{sFO}, s81")
    seq = [(t, ks) for ks in range(33) for t in range(3)] + [(t, ks) for t in range(3, 7) for ks in range(33)]
    accof = {0: 0, 1: 1, 2: 2, 3: 3, 4: 0, 5: 1, 6: 2}
    NW = P.gu_nw
    WQ = [G_WF, G_WF + 4, G_WF + 8, G_WF + 12, T + 12]
    def wread(n):
        slot = (n % 160) * 1024
        k.ds(f"ds_read_b128 {vr(WQ[n%NW],4)}, v{G_RB + (slot>>16)} offset:{slot & 0xffff}", ("wf", n))
    BARS = P.gu_bars[layer]
    cover = lambda bi: [("gw", b) for b in range(bi, min([x for x in BARS if x > bi] + [15]))]
    def ringbar():
        k.wait(vm=cover(0)); k.e("s_barrier"); k.mark("gubar")
        for n in range(NW): wread(n)
    if P.gu_bar_first: ringbar(); k.poll_issue(PA, "px1")
    if not P.tags: k.poll_wait(PA, "px1", 1, 20)
    k.stamp("gu go")
    xtxt = lambda kg: f"buffer_load_dwordx4 {vr(G_X+4*kg,4)}, v{XA}, {SRD_WS}, s{52 + (kg>>4)} offen offset:{((kg>>2)&3)*1024 + (kg&3)*256} sc1"
    def xload(kg): k.vm(xtxt(kg), ("gx", kg))
    xchk = lambda kg: k.valid([f"v_cmp_eq_u32 vcc, -1, v{G_X+4*kg}"], [xtxt(kg)])
    stxt = [f"buffer_load_dwordx4 {vr(T+4+4*h,4)}, v{G_AUG+3}, {SRD_WS}, s51 offen offset:{512*h} sc1" for h in range(2)]
    if P.tags:
        for t_ in stxt: k.vm(t_, "gst")
        for kg in range(P.gu_spec): xload(kg)
        k.wait(vm=["gst"])
        k.valid([f"v_max3_u32 v{T}, v{T+4}, v{T+6}, v{T+8}", f"v_max_u32 v{T}, v{T}, v{T+10}", f"v_cmp_eq_u32 vcc, -1, v{T}"],
                stxt + [xtxt(x) for x in range(P.gu_spec)])
        k.stamp("gu probe")
        for kg in range(P.gu_spec, P.gu_lead): xload(kg)
    else:
        for kg in range(P.gu_lead): xload(kg)
        for t_ in stxt: k.vm(t_, "gst")
    if not P.gu_bar_first: ringbar()
    mains = []; fixed = {}
    xpos = {}
    for kg in range(P.gu_lead, 32): xpos.setdefault(int((kg - P.gu_lead) * P.gu_xstep), []).append(kg)
    for n, (t, ks) in enumerate(seq):
        acc = G_ACC + 16 * accof[t]
        b = vr(G_AUG, 4) if ks == 32 else vr(G_X + 4*ks, 4)
        c = "0" if ks == 0 else vr(acc, 16)
        mains.append(lambda n=n, acc=acc, b=b, c=c: k.e(f"{MF32} {vr(acc,16)}, {vr(WQ[n%NW],4)}, {b}, {c}"))
        fl_ = fixed.setdefault(n, [])
        if n + 1 < len(seq):
            t2, ks2 = seq[n + 1]
            need = [("gx", ks2)] if (t2 == 0 and ks2 < 32) else None
            fl_.append((0, lambda n=n, need=need: k.wait(vm=need, lg=[("wf", n + 1)])))
            if need and P.tags: fl_.append((2, lambda ks2=ks2: xchk(ks2)))
        j = n + NW
        if j < len(seq):
            if j % 16 == 0 and j // 16 in BARS:
                fl_.append((2, lambda bi=j//16: (k.wait(vm=cover(bi)), k.e("s_barrier"), [k.mark(("gbar", b)) for b in range(bi + 1)])))
            fl_.append((1, lambda j=j: wread(j)))
        for kg in xpos.get(n, []): fl_.append((1, lambda kg=kg: xload(kg)))
    xend = max(xpos)
    tail = [it for it in k.bg if it[2] == "dna" or it[2][0] == "dnr"]; k.bg = [it for it in k.bg if not (it[2] == "dna" or it[2][0] == "dnr")]
    bg_batches(k, [10, 11], "s2", lambda b: ("gbar", b - 8))
    mid = []
    for b in (12, 13, 14):
        for f in batch(k, b): mid.append((f, "s2", ("gw", b), ("gbar", b - 8)))
    while mid or tail:
        if mid: k.bg.append(mid.pop(0))
        if tail: k.bg.append(tail.pop(0))
    direct = layer == 1 and P.dn1_agpr
    if not direct: bg_batches(k, range(15, 23), "s4", lambda b: ("gbar", b - 8))
    k.per = dict(P.per_guA[layer]); k.bg_held = False; k.bg_next = k.t + P.gu_bg_delay
    fixed[xend].append((0, lambda: setattr(k, "per", dict(P.per_guB[layer]))))
    fv = Flex()
    dv = regloads(k, sDS, 48*1024, lambda j: vr(D_WV + 4*j, 4), 8, "dnv")
    k.hload = h_loader(k, layer)
    if direct: pass
    elif P.hpre:
        bg_list(k, dv, "s4", "dnv", "xdead")
        fixed[207].append((0, lambda: k.mark("xdead")))
    else:
        for j, f in enumerate(dv): fv.add(f, 1, 198 + 2 + 3*j)
    fx = Flex()
    a = lambda txt, c=1, at=0: fx.add(lambda: k.e(txt), c, at)
    fx.add(lambda: k.wait(vm=["gst"]), 1, 3 * P.gu_lead)
    a(f"v_add_f32 v{T+4}, v{T+4}, v{T+6}"); a(f"v_add_f32 v{T+5}, v{T+5}, v{T+7}"); a(f"v_add_f32 v{T+8}, v{T+8}, v{T+10}"); a(f"v_add_f32 v{T+9}, v{T+9}, v{T+11}")
    a(f"v_add_f32 v{T+4}, v{T+4}, v{T+8}"); a(f"v_add_f32 v{T+5}, v{T+5}, v{T+9}"); fx.skip(1)
    a(f"v_permlane32_swap_b32 v{T+4}, v{T+5}", 2); a(f"v_add_f32 v{T+4}, v{T+4}, v{T+5}"); a(f"v_mov_b32 v{T+5}, v{T+4}"); fx.skip(1)
    a(f"v_permlane32_swap_b32 v{T+4}, v{T+5}", 2)
    ln_finish(a, T + 4, T + 5)
    a(f"v_mov_b32 v{G_VV}, v{T+5}")
    a(f"v_rsq_f32 v{G_C1}, v{T+5}", 2); a(f"v_cvt_pk_bf16_f32 v{G_AUG}, v{T+4}, v{T+4}"); a(f"v_mul_f32 v{G_C1}, {f2u(-LOG2E):#x}, v{G_C1}")
    a(f"v_and_b32 v{T+5}, 0xffff0000, v{G_AUG}"); a(f"v_sub_f32 v{T+5}, v{T+4}, v{T+5}"); a(f"v_mov_b32 v{G_AUG+2}, 0")
    a(f"v_cvt_pk_bf16_f32 v{G_AUG+1}, v{T+5}, v{G_AUG+2}"); a(f"v_mov_b32 v{G_AUG+3}, 0")
    fx.add(lambda: k.mark("aug"), 0)
    def epi(t, at):
        acc = G_ACC + 16 * accof[t]; hp = T + 8; E = T + 4
        if P.x_noepi: a("s_nop 0", 1, at)
        for i0 in range(0, 8 if not P.x_noepi else 0, 2):
            for i in (i0, i0 + 1): a(f"v_mul_f32 v{E+(i&1)}, v{G_C1}, v{acc+i}", 1, at)
            for i in (i0, i0 + 1): a(f"v_exp_f32 v{E+(i&1)}, v{E+(i&1)}", 2)
            for i in (i0, i0 + 1): a(f"v_mul_f32 v{E+2+(i&1)}, v{acc+i}, v{acc+8+i}")
            for i in (i0, i0 + 1): a(f"v_fma_f32 v{E+(i&1)}, v{E+(i&1)}, v{G_VV}, v{G_VV}")
            for i in (i0, i0 + 1): a(f"v_rcp_f32 v{E+(i&1)}, v{E+(i&1)}", 2)
            fx.skip(1)
            for i in (i0, i0 + 1): a(f"v_mul_f32 v{E+2+(i&1)}, v{E+2+(i&1)}, v{E+(i&1)}")
            a(f"v_cvt_pk_bf16_f32 v{hp+i0//2}, v{E+2}, v{E+3}")
        fx.add(lambda: k.mark(("epi", t)), 0)
        if t == 4: a("s_add_u32 s54, s54, 4096")
        fx.add(lambda: ((k.dstore if ((layer and P.h1_plain) or (not layer and P.h_touch0)) else lambda x, tg: k.vm(x + " sc1", tg))(f"buffer_store_dwordx4 {vr(hp,4)}, v{vL16}, {SRD_WS}, s54 offen offset:{(t%4)*1024}", ("hst", t)), k.mark(("hst", t))), 2)
    end = {t: max(n for n, x in enumerate(seq) if x[0] == t) for t in range(7)}
    for t in range(6): epi(t, end[t] + 3)
    if layer == 0 and P.h_touch0 == "g": fixed[xend + 1].append((5, lambda: k.touch(T, "h", ["s_mov_b32 s32, s54"])))
    ff = Flex(); ff.dep(("hst", 3))
    if layer == 0:
        tx = [lambda: k.touch(T, "p", [f"s_add_u32 s32, s55, {BX2()}"]), lambda: k.touch(T + 1, "s", [f"s_add_u32 s32, s56, {BS2()}"])]
        if P.x2_touch == "h3": ff.add(tx[0], 6); ff.add(tx[1], 4)
        elif isinstance(P.x2_touch, int): fixed[P.x2_touch].append((5, tx[0])); fixed[P.x2_touch + 1].append((4, tx[1]))
        if "g" in str(P.touch1):
            for f in touch_next(k, T + 2)[:2]: ff.skip(1); ff.add(f, 6)
    ff.skip(P.gu_flag_delay)
    ff.add(lambda: (k.wait(vm=[("hst", 3)]), k.flag(1)), 3)
    def hpoll():
        k.wait(vm=["touch"] if "touch" in k.seen else None)
        k.poll_addr(T, 8)
        k.e(f"s_lshl_b32 s32, s{sB}, 7", f"s_lshl_b32 s33, s{sW}, 5", "s_add_u32 s32, s32, s33", f"s_add_u32 s{sPO}, s32, {fl(layer, FL_H)}")
        k.poll_issue(T, "ph1")
    if P.hpre:
        ff.add(hpoll, 4, P.hp_chk - 12)
        ff.add(lambda: (k.poll_check(T, "ph1", 1), setattr(k, "bg_held", True)), 3, P.hp_chk)
        for j in range(P.hpre): ff.add(lambda j=j: k.hload(j), 2, max(208 + j, int(P.hp_chk + 1 + j * P.hp_step)))
    else: ff.add(hpoll, 4, 228)
    k.wait(vm=[("gx", 0)], lg=[("wf", 0)])
    if P.tags: xchk(0)
    k.stamp("gu first")
    if k.stamping:
        for g in (48, 98, 131, 164, 197): fixed[g].append((0, lambda g=g: k.stamp(f"gu m{g}")))
    fixed[93].append((0, lambda: k.marks["aug"]))
    run_gaps(k, mains, fixed, [fv, ff, fx], P.gu_cap)
    print("gu left:", len(k.bg), len(fv), len(ff), len(fx), {n: g for n, g in k.marks.items() if isinstance(n, tuple) and n[0] == "hst"})
    k.stamp("gu gemm")
    for g, t in {132: 0, 165: 1, 198: 2}.items(): assert k.marks[("epi", t)] < g, "accumulator reused too early"
    epi(6, 0); drain([ff, fv, fx], k)
    k.e(f"v_mov_b32 v{D_PA}, v{T}")
    k.stamp("gu end")
P.x2_touch = None; P.dn_x2 = 2; P.hrot = 0; P.gu_bars = [list(range(15)), [0, 3, 6, 9, 12]]; P.hpre = 0; P.hp_chk = 208; P.hp_step = 2.2; P.gu_flag_delay = 10; P.gu_xstep = 2.6; P.gu_bg_delay = 300
P.per_guA = [{"s2": 120, "s4": 120}, {"s2": 160, "s4": 160}]
P.per_guB = [{"s2": 90, "s4": 55}, {"s2": 80, "s4": 50}]

def dn(k, layer):
    final = layer == 1
    NB = P.dn_lead; T = D_T
    groups = DN_GROUPS; seq = DN_SEQ; bload = k.hload
    early = Flex()
    def rb(): k.e(f"v_add_u32 v{D_RB}, s{sGL}, v{vL16}", f"v_add_u32 v{D_RB+1}, 0x10000, v{D_RB}", f"v_add_u32 v{D_RB+2}, 0x20000, v{D_RB}")
    if P.hpre:
        for i in range(P.hpre, NB): bload(i)
        rb()
        class Rec:
            def e(self, *t):
                if any("vcc" in x or "s32" in x for x in t): early.add(lambda: k.e(*t), len(t))
                else:
                    for x in t: early.add(lambda x=x: k.e(x))
        red_setup(Rec(), 3, 1)
        early.add(lambda: (k.wait(vm=[("hst", 6)]), k.flag(2), k.poll_issue(D_PA, "ph2"), k.e(f"s_add_u32 s{sFO}, s89, {FL_X2 - FL_O}")), 5, P.dn_fgap)
    else:
        k.poll_check(D_PA, "ph1", 1)
        k.stamp("dn early")
        k.bg_held = True
        for i in range(P.dn_pre): bload(i)
        red_setup(k, 3, 1); rb()
        k.wait(vm=[("hst", 6)]); k.flag(2)
        if P.dn_pollstep is None: k.poll_issue(D_PA, "ph2")
        for i in range(P.dn_pre, NB): bload(i)
        k.e(f"s_add_u32 s{sFO}, s89, {FL_X2 - FL_O}")
    k.per = dict(P.per_dn0); k.bg_held = False
    direct = final and P.dn1_agpr
    lds = [(i, nn) for i, (g, e) in enumerate(seq) if 8 <= e < 24 and not direct for nn in range(2)]
    slot_of = {x: n for n, x in enumerate(lds)}
    NWF = 6
    def wread(n):
        i, nn = lds[n]; j = 2 * (seq[i][1] - 8) + nn; b = 15 + (j >> 2)
        ad = (b % 10) * 16384 + (j & 3) * 1024
        if seq[i][0] == 0: k.wait(vm=[("gw", b)])
        k.ds(f"ds_read_b128 {vr(D_WF+4*(n%NWF),4)}, v{D_RB + (ad>>16)} offset:{ad & 0xffff}", ("wf", n))
    def wfrag(i, nn):
        e = seq[i][1]
        if e < 8: return ar(192 + 8*e + 4*nn, 4)
        if direct: return ar(8*(e - 8) + 4*nn, 4)
        if e >= 24: return vr(D_WV + 8*(e - 24) + 4*nn, 4)
        return vr(D_WF + 4*(slot_of[(i, nn)] % NWF), 4)
    mains = []; fixed = {}
    NT = P.dn_tail
    assert NT <= 4
    order = [(i, nn) for i in range(56 - NT) for nn in range(2)] + [(i, nn) for nn in range(2) for i in range(56 - NT, 56)]
    for pos, (i, nn) in enumerate(order):
        g, e = seq[i]
        if True:
            acc = D_ACC + 32 * g + 16 * nn
            mains.append(lambda i=i, nn=nn, acc=acc, e=e: k.e(f"{MF32} {vr(acc,16)}, {wfrag(i,nn)}, {vr(D_BF+4*(i%NB),4)}, {'0' if e == 0 else vr(acc,16)}"))
            gp = len(mains) - 1; fl_ = fixed.setdefault(gp, [])
            nx = order[pos + 1] if pos + 1 < len(order) else None
            vmn = [("b", nx[0])] if (nx and nx[1] == 0) else None
            lgn = [("wf", slot_of[nx])] if nx in slot_of else None
            if nx == (24, 0) and not direct: vmn = vmn + ["dnv"]
            if direct and nx and nx[0] in range(8, 28) and nx[1] == 0: vmn = vmn + [("dnr", nx[0])]
            fl_.append((0, lambda vmn=vmn, lgn=lgn: k.wait(vm=vmn, lg=lgn)))
            ah = (i + 2, nn)
            if ah in slot_of: fl_.append((1, lambda n=slot_of[ah]: wread(n)))
    nxt = NB; pend = 0
    for i in range(len(seq)):
        fl_ = fixed[2*i + 1]
        if i == P.dn_late: fl_.append((2, lambda: (k.poll_check(D_PA, "ph2", 2), k.stamp("dn late"), k.mark("late"))))
        n = 0
        while nxt < len(seq) and nxt <= i + NB and n < 2 and (nxt < 16 or i >= P.dn_late):
            fl_.append((1, lambda j=nxt: bload(j))); nxt += 1; n += 1
        if i == P.dn_pollstep and not P.hpre: fl_.append((1, lambda: k.poll_issue(D_PA, "ph2")))
        if nxt == len(seq) and not pend: pend = 2*i + 2
    fixed[20].append((1, lambda: k.e("s_barrier")))
    for mm in range(2):
        fixed[40 + 4*mm].append((2, lambda mm=mm: (k.e(f"s_add_u32 s32, s55, {BX1[layer] + mm*32768}"),
                                                   k.vm(f"buffer_load_dwordx4 {vr(RES+4*mm,4)}, v{vL16}, {SRD_WS}, s32 offen sc1", "res"))))
    fw = Flex(); fs = Flex()
    for q, f in enumerate(red_writes(k, D_ACC, 0, 0, 1)): fw.add(f, 1, 58 + 2*q)
    fw.add(lambda: (k.wait(lg=[("rw", 0)]), k.e("s_barrier")), 2, 76)
    for f in red_reads(k, 0, T, 0): fw.add(f, 2)
    fw.add(lambda: k.wait(vm=["res"]))
    red_finish(k, fw, 0, groups[0], T, BX2(), BS2(), final, False)
    if not final:
        fw.add(lambda: k.vm(f"buffer_store_dwordx4 {vr(RES+4,4)}, v{vL16}, {SRD_WS}, s72 offen sc1", "hxs"))
        fw.add(lambda: k.vm(f"buffer_store_dword v{T+32}, v{R_ST}, {SRD_WS}, s73 offen sc1", "hxs"))
        fw.skip(P.dn_flag_delay); fw.add(lambda: (k.wait(vm=[("xst", 0)]), k.flag(1)), 3)
        if P.x2_touch == "dn":
            fixed[P.dn_x2].append((5, lambda: k.touch(226, "p", [f"s_add_u32 s32, s55, {BX2()}"])))
            fixed[P.dn_x2 + 1].append((4, lambda: k.touch(227, "s", [f"s_add_u32 s32, s56, {BS2()}"])))
            fs.add(lambda: k.wait(vm=["touch"]), 1, P.dn_x2 + 2)
        for q, c in enumerate(P.t1_dn): fixed[P.dn_touch + 2*q].append((5, touch_next(k, 28)["oxs".index(c)]))
        fs.dep("late")
        for f in a11_bases(k) + a1_setup(k, 1): fs.add(f)
        fs.add(lambda: (k.poll_addr(A_PX, 32), k.e(f"s_lshl_b32 s32, s{sB}, 7", f"s_add_u32 s{sPO}, s32, {fl(0, FL_X2)}")), 4)
    wtail = red_writes(k, D_ACC + 32, 1, 2*16384, 1)
    if NT:
        for q in range(min(4, NT)): fixed[min(111, 112 - NT + 1 + q)].append((4, wtail.pop(0)))
    k.wait(vm=["dna", ("b", 0)])
    k.stamp("dn first")
    if k.stamping:
        fixed[55].append((0, lambda: k.stamp("dn p1")))
        for g in range(7, 111, 8): fixed[g].append((0, lambda g=g: k.stamp(f"find {g}")))
    run_gaps(k, mains, fixed, [early, fw, fs], 6)
    print("dn left:", len(k.bg), len(fw), len(fs), "last h load at gap", pend)
    k.stamp("dn gemm")
    assert not fs.items
    ws = wtail
    if not final and P.dn_fin_first != 2: ws.insert(len(ws) - 4, lambda: k.poll_issue(A_PX, "px0"))
    if not final and P.dn_fin_first == 2: ws.append(lambda: k.poll_issue(A_PX, "px0"))
    merge(k, fw, ws)
    k.wait(lg=[("rw", 1)]); k.e("s_barrier")
    k.stamp("dn red")
    for f in red_reads(k, 1, T, 2*16384): f()
    def nxt():
        k.poll_check(A_PX, "px0", 1)
        k.wait(vm=["hxs"]); k.flag(1, 91, "sc1")
        a11_early(k)
    if not final:
        k.bg_held = True
        if not P.dn_fin_first: nxt()
    f1 = Flex(); red_finish(k, f1, 1, groups[1], T, BX2(), BS2(), final, True)
    if not final and P.dn_fin_first == 2:
        ex = [lambda: k.poll_check(A_PX, "px0", 1)] + a11_early(k, True) + [lambda: (k.wait(vm=["hxs"]), k.flag(1, 91, "sc1"))]
        merge(k, f1, ex, P.dn_mfirst)
    else: drain([f1], k)
    if not final and P.dn_fin_first == 1: nxt()
    k.stamp("dn end")
P.dn_mfirst = 8; P.dn_pollstep = 0; P.dn_fin_first = 2; P.dn_tail = 0; P.dn_touch = 88; P.dn_flag_delay = 4; P.dn_pre = 6; P.dn_late = 9; P.dn_fgap = 6
P.dn_wow = 6; P.per_dn = {"s4": 110, "s2": 130}; P.per_dn0 = {"s4": 60, "s2": 60}

def build(stamps=False, only=None):
    k = F(); k.stamping = stamps; k.only = only; k.st = P.dst; k.rt = P.rt
    name = NAME + "_kernel"
    k.e(".p2align 8", f".globl {name}", f".type {name},@function"); k.label(name)
    if stamps: k.e("s_memrealtime s[92:93]", "s_memtime s[94:95]")
    k.e("s_cmp_ge_u32 s2, 256", "s_cbranch_scc1 L_end")
    k.e("s_load_dwordx16 s[64:79], s[0:1], 0", "s_load_dwordx4 s[80:83], s[0:1], 64", "s_memrealtime s[96:97]")
    k.e("s_getpc_b64 s[100:101]")
    k.e("L_pc: ;np")
    k.e("s_mov_b32 s24, s100", "s_mov_b32 s25, s101", "s_mov_b32 s26, L_end-L_pc", "s_mov_b32 s27, 0x20000",
        "v_and_b32 v1, 63, v0", "v_lshrrev_b32 v2, 6, v0", "s_lshr_b32 s33, s2, 3", "s_mul_i32 s32, s33, 43", "s_lshr_b32 s32, s32, 8",
        "s_mul_i32 s32, s32, 6", "s_sub_u32 s32, s33, s32", "s_lshl_b32 s32, s32, 13", "v_lshlrev_b32 v3, 11, v2", "v_lshl_add_u32 v3, v1, 7, v3",
        f"v_mov_b32 v4, {OOB:#x}", "v_cmp_gt_u32 vcc, 16, v1", f"v_readfirstlane_b32 s{sW}, v2", "v_cndmask_b32 v3, v4, v3, vcc")
    if P.code0: k.vm(f"buffer_load_dword v175, v3, {SRD_PK}, s32 offen", "code")
    k.e("s_and_b32 s32, s2, 7", f"s_and_b32 s{sM}, s33, 15", "s_lshr_b32 s33, s33, 4", "s_lshl_b32 s32, s32, 1", f"s_add_u32 s{sC}, s32, s33")
    k.e(f"s_lshr_b32 s33, s{sM}, 3", f"s_lshl_b32 s{sB}, s{sC}, 1", f"s_add_u32 s{sB}, s{sB}, s33", f"s_and_b32 s{sCS}, s{sM}, 7")
    k.e("v_lshlrev_b32 v2, 4, v1")
    a10_lanes(k)
    k.e("s_waitcnt lgkmcnt(0)")
    srd(k, 12, 64, 2048 * 1024); srd(k, 16, 66, 512 * 3072)
    k.e(f"s_or_b32 s{sTAG}, s96, 1")
    if stamps:
        k.stamps += ["rt0", "start"]; k.e("v_writelane_b32 v0, s92, 0", f"v_writelane_b32 v0, s{92 if P.rt else 94}, 1")
    k.stamp("s kernarg")
    if P.pk_first == 1: pack_issue(k)
    k.stamp("s pkissue")
    run(a10_x(k, 0) + a10_w(k, 0))
    if P.pk_first == 0: pack_issue(k)
    srd(k, 28, 80, 256)
    k.e("v_cmp_eq_u32 vcc, 0, v1", f"v_mov_b32 v{vFA}, {OOB:#x}", f"s_or_b32 s32, s2, s{sW}", f"v_cndmask_b32_e64 v{vFA}, v{vFA}, 0, vcc",
        "s_cmp_eq_u32 s32, 0", f"s_cselect_b32 s32, 0, {OOB>>1:#x}", f"v_mov_b32 v170, s{sTAG}")
    k.vm(f"buffer_store_dword v170, v{vFA}, {SRD_DBG}, s32 offen sc1", "tagst")
    srd(k, 8, 82, WS_SIZE); srd(k, 20, 78, 2048 * 1024)
    for f in a1_setup(k, 0): f()
    o_bases(k, 0)
    a10_lanes2(k)
    k.e(f"v_mov_b32 v60, {OOB:#x}", "v_cmp_gt_u32 vcc, 8, v1", "v_mov_b32 v176, 0", "v_mov_b32 v177, 0", "v_mov_b32 v178, 0", "v_mov_b32 v179, 0",
        f"v_cndmask_b32 v173, v60, v{vL16}, vcc", "v_cmp_gt_u32 vcc, 16, v1", "s_nop 0",
        f"s_lshl_b32 s32, s{sC}, 4", f"v_cndmask_b32 v172, v60, v{vL16}, vcc")
    k.e(f"s_add_u32 s32, s32, s{sM}", "s_lshl_b32 s32, s32, 4",
        f"s_cmp_eq_u32 s{sW}, 0", f"s_cselect_b32 s32, s32, {OOB>>1:#x}", f"v_add_u32 v171, s32, v{vFA}", f"s_mov_b32 s{sBUD}, 400000")
    red_bases(k)
    k.e(f"s_lshl_b32 s{sGL}, s{sW}, 12", f"s_mul_i32 s{sGS}, s{sM}, {PGU_SLICE}", f"s_add_u32 s{sGS}, s{sGS}, s{sGL}", f"s_add_u32 s{sGS}, s{sGS}, {WS_PGU}")
    k.e(f"s_mul_i32 s32, s{sCS}, {224*KB}", f"s_mul_i32 s33, s{sW}, {56*KB}", "s_add_u32 s32, s32, s33", f"s_add_u32 s{sDS}, s32, {WS_PDN}")
    k.e(f"s_lshl_b32 s32, s{sCS}, 16", f"s_add_u32 s32, s32, s{sGL}", f"s_add_u32 s88, s32, {WS_PWO}")
    wo_bases(k)
    k.stamp("s setup")
    run(a10_w(k, 1))
    if P.pk_first == 2: pack_issue(k)
    k.e(f"s_getreg_b32 s{sXCC}, hwreg(HW_REG_XCC_ID, 0, 4)", f"s_mov_b32 s75, {WS_ARR}", f"s_lshl_b32 s77, s{sC}, 8", "s_add_u32 s77, s77, s75")
    if P.k_touch == -1:
        k.touch(157, "p", ["s_mov_b32 s32, s53"], False); k.touch(158, "q", [f"s_add_u32 s32, s64, {BX1[0]}"], False)
    k.stamp("s w01")
    def mid2():
        if P.k_first > 3: run(a10_w(k, 3))
        k.e("s_lshl_b32 s32, s2, 7")
        k.vm(f"buffer_store_dwordx4 v[176:179], v173, {SRD_WS}, s32 offen sc1", "zero")
        k.e("s_lshl_b32 s32, s2, 8", f"s_add_u32 s32, s32, {WS_HXF}")
        k.vm(f"buffer_store_dwordx4 v[176:179], v172, {SRD_WS}, s32 offen sc1", "zero")
    if P.k_pack is None: pack_process(k, lambda: run(a10_x(k, 1) + a10_w(k, 2)), mid2)
    else: run(a10_x(k, 1) + a10_w(k, 2)); mid2()
    k.vm(f"buffer_load_dword v170, v{vFA}, {SRD_DBG}, 0 offen sc1", "tag")
    k.stamp("s pkdone")
    a10_loop(k, P.k_first)
    a10_tail(k)
    wo(k, 0); gu(k, 0); dn(k, 0)
    if not P.half:
        k.marks = {m: g for m, g in k.marks.items() if False}
        k.seen = {t for t in k.seen if t in k.vmq or t in k.lgq or t in ("dna", "st0", ("x", 2), ("x", 3))}
        k.layer = 1
        a11_main(k)
        wo(k, 1)
        k.marks = {m: g for m, g in k.marks.items() if m in ("wobar", "gemm_done") or m[0] == "bar"}
        gu(k, 1); dn(k, 1)
    if P.verbose: print([(t, tag, f) for t, tag, f in k.bg_log if f])
    if stamps:
        k.e("s_waitcnt vmcnt(0)"); k.stamp("drained"); k.stamp("rt1", True)
        k.e("s_lshl_b32 s32, s2, 10", "s_lshl_b32 s33, s3, 8", "s_add_u32 s32, s32, s33",
            f"s_add_u32 s32, s32, {WS_STAMP}", "v_lshlrev_b32 v8, 2, v1", f"buffer_store_dword v0, v8, {SRD_WS}, s32 offen")
        if P.echo:
            a, b = P.echo
            n = len(k.stamps)
            k.e(f"v_readlane_b32 s32, v0, {a}", f"v_readlane_b32 s33, v0, {b if b >= 0 else n + b}", f"v_readlane_b32 s34, v0, {n-1}", "s_nop 3",
                "s_sub_u32 s33, s33, s32", "s_min_u32 s33, s33, 20000")
            k.label("L_echo")
            k.e("s_memrealtime s[36:37]", "s_waitcnt lgkmcnt(0)", "s_sub_u32 s36, s36, s34", "s_cmp_lt_u32 s36, s33", "s_cbranch_scc1 L_echo")
        if P.dbg:
            n = len(k.stamps)
            k.e("v_readlane_b32 s32, v0, 0", f"v_readlane_b32 s33, v0, {n-1}", "s_not_b32 s34, s32", "v_mov_b32 v4, s33", "v_mov_b32 v5, s34")
            k.e(f"buffer_atomic_umax v4, v{vFA}, {SRD_DBG}, 0 offen offset:4", f"buffer_atomic_umax v5, v{vFA}, {SRD_DBG}, 0 offen offset:8")
            k.e(f"s_cmp_eq_u32 s2, {P.dbg - 1}", f"s_cselect_b32 s35, 0, {OOB>>1:#x}", f"s_cmp_eq_u32 s{sW}, 0", f"s_cselect_b32 s35, s35, {OOB>>1:#x}")
            for i, wd in zip(range(2, n - 1), (3, 5, 6, 7, 9, 10, 11, 13, 14, 15)):
                k.e(f"v_readlane_b32 s33, v0, {i}", "s_sub_u32 s33, s33, s32", "v_mov_b32 v4, s33", f"buffer_store_dword v4, v{vFA}, {SRD_DBG}, s35 offen offset:{4*wd}")
    k.e("s_endpgm")
    k.flush_spins()
    k.label("L_end"); k.e("s_endpgm")
    src = open("cdna_kernels/%s.s.ref" % NAME).read().splitlines()
    out = [l for l in src if l.startswith(";") and "@launch" not in l]
    out.append(f"; @launch grid=(256,1,1) block=(256,1,1) lds={LDS_TOTAL}")
    out += ['.amdgcn_target "amdgcn-amd-amdhsa--gfx950"', ".text"]
    s = "\n".join(out) + "\n" + k.text(verbose=True) + '.section .rodata,"a"\n.p2align 6\n' + kd(name)
    from verify import verify
    assert not verify(s), "a register is used while a load into it is in flight"
    if P.align:
        from align import align
        s = align(s)
    return s, k.stamps
P.x_nobar = 0; P.x_noepi = 0; P.rt = 1; P.dbg = 0; P.h_touch0 = ''; P.outm = ''; P.h1_plain = 1; P.tags = 0; P.echo = None; P.wo_setup_first = 2; P.gu_pa_late = 0; P.gu_bar_first = 0; P.flagbr = 0; P.rot = 0; P.pk_mod = 'nt'; P.x_mod = ''; P.w_mod = ''; P.t_mod = ''; P.pk_first = 1; P.dn1_agpr = 1; P.poll2 = 2; P.wt = (); P.inplace = 1; P.half = 0; P.tlb = 1; P.code0 = 1; P.verbose = 0; P.align = 1; P.gu_cap = 5; P.gu_nw = 5; P.k_touch = 15; P.k_gb = 13; P.k_chk = 16

if __name__ == "__main__":
    path = sys.argv[1] if len(sys.argv) > 1 else "cdna_kernels/%s.s" % NAME
    opts = sys.argv[2:]
    only = None
    for o in opts:
        if o.startswith("only="): only = [x for x in o[5:].split(",") if x]
        if o.startswith("P."):
            n, v = o[2:].split("="); setattr(P, n, eval(v))
    s, st = build(stamps="st" in opts, only=only)
    open(path, "w").write(s)
    if "st" in opts: json.dump([st], open(path + ".json", "w"))
```

```python
import sys, json
from common import *

MF16 = "v_mfma_f32_16x16x32_bf16"
MF16S = "v_mfma_f32_16x16x16_bf16"
MF32 = "v_mfma_f32_32x32x16_bf16"
vL16, vFV, vFA, vP = 2, 8, 9, 10
CSV, CSQ, CSK, RES = 11, 12, 16, 20
OOB = 0x80000000
FL_O, FL_X1, FL_H, FL_X2 = 0, 4096, 8192, 12288
FL_HX = 16384 + 12288
def fl(layer, off): return WS_FLAGS + 16384 * layer + off
sROT, sBUD, sGL, sGS, sDS = 84, 98, 60, 61, 85
sT0, sT1, sPO, sFO = 32, 33, 86, 87
sML, sMS = 68, 69
WS_HXF = WS_O0 - 0x10000 if False else WS_END
WS_ARR = WS_HXF + 0x10000
sTAG, sXCC = 91, 76
WS_STAMP = 0x2000000
L_SA0, L_SA1, L_XH0, L_CS = 80896, 97280, 81920, 79872
def e_of(kk):
    p, tl = divmod(kk, 7)
    return 4 * p + tl if tl < 4 else 16 + 3 * p + (tl - 4)
KK_OF = {e_of(kk): kk for kk in range(28)}

class P:
    a1_bg_start, a1_bg_step = 30, 6
    gu_lead = 9
    gu_bg_start, gu_bg_step = 50, 2.6
    dn_lead = 12
    bgm = ""
    sleep = 0
    drop = ()
    codepf = 0
    ld = "sc1"
    dst = "sc1"
    safe = False
    plain = True
    notouch = ()

BO, BX1, BS1, BH = [WS_O[0]] * 2, [WS_X[0]] * 2, [WS_ST[0]] * 2, [WS_H[0]] * 2
def BX2(): return WS_X[0] if P.inplace else WS_X[1]
def BS2(): return WS_ST[0] if P.inplace else WS_ST[1]
def o_block(d, layer):
    if layer and P.inplace: return [f"s_mul_i32 {d}, s{sB}, {224*KB}", f"s_add_u32 {d}, {d}, {BH[0]}"]
    return [f"s_lshl_b32 {d}, s{sB}, 16", f"s_add_u32 {d}, {d}, {BO[layer]}"]
def o_line(layer):
    return [f"s_lshl_b32 s32, s{sB}, 16", f"s_lshl_b32 s33, s{sCS}, 2", f"s_add_u32 s33, s33, s{sW}", "s_lshl_b32 s33, s33, 10",
            "s_add_u32 s32, s32, s33", f"s_add_u32 s32, s32, {BO[layer]}"]
def touch_next(k, t):
    return [lambda: k.touch(t, "p", o_line(1)), lambda: k.touch(t + 1, "q", [f"s_add_u32 s32, s64, {BX1[1]}"]),
            lambda: k.touch(t + 2, "t", [f"s_add_u32 s32, s65, {BS1[1]}"])]
def gu_tile(d):
    return [f"s_lshl_b32 {d}, s{sC}, 1", f"s_and_b32 s33, s{sW}, 1", f"s_add_u32 {d}, {d}, s33", f"s_lshl_b32 {d}, {d}, 1", f"s_lshr_b32 s33, s{sW}, 1", f"s_add_u32 {d}, {d}, s33"]
def h_base(d, layer):
    return gu_tile(d) + [f"s_mul_i32 {d}, {d}, 112", f"s_mul_i32 s33, s{sM}, 7",
            f"s_add_u32 {d}, {d}, s33", f"s_lshl_b32 {d}, {d}, 10", f"s_add_u32 {d}, {d}, {BH[layer]}"]

class F(K):
    def __init__(self):
        super().__init__(); self.spins = []; self.nspin = 0; self.st = ""; self.npf = 0; self.layer = 0
    def poll_issue(self, va, tag): self.vm(f"buffer_load_dword v{vP}, v{va}, {SRD_WS}, s{sPO} offen sc1", tag)
    def poll_addr(self, va, nl, sh=2):
        self.e(f"v_cmp_gt_u32 vcc, {nl}, v1", f"v_lshlrev_b32 v{va}, {sh}, v1", f"v_mov_b32 v{vP}, {OOB:#x}", f"v_cndmask_b32 v{va}, v{vP}, v{va}, vcc")
        self.nl = nl
    def poll_check(self, va, tag, thr):
        n = self.nspin; self.nspin += 1
        self.stamp(f"poll<{tag}")
        self.wait(vm=[tag])
        self.stamp(f"poll={tag}")
        msk = f"s_and_b32 s99, vcc_lo, {(1 << self.nl) - 1:#x}"
        self.e(f"v_cmp_gt_u32 vcc, {thr}, v{vP}", msk, f"s_cbranch_scc1 L_spin{n} ;np", f"L_back{n}: ;np")
        self.stamp(f"poll>{tag}")
        self.spins += [f"L_spin{n}:", f"s_sub_u32 s{sBUD}, s{sBUD}, 1", f"s_cbranch_scc1 L_give{n}"] + ([f"s_sleep {P.sleep}"] if P.sleep else []) + [
                       f"buffer_load_dword v{vP}, v{va}, {SRD_WS}, s{sPO} offen sc1", "s_waitcnt vmcnt(0)",
                       f"v_cmp_gt_u32 vcc, {thr}, v{vP}", msk, f"s_cbranch_scc1 L_spin{n}", f"s_branch L_back{n}",
                       f"L_give{n}:", f"s_mov_b32 s{sBUD}, 0", f"s_branch L_back{n}"]
    def poll_wait(self, va, tag, thr, alt):
        if not P.poll2:
            self.poll_check(va, tag, thr); return
        n = self.nspin; self.nspin += 1
        ld = lambda r: f"buffer_load_dword v{r}, v{va}, {SRD_WS}, s{sPO} offen sc1"
        tst = lambda r: [f"v_cmp_gt_u32 vcc, {thr}, v{r}", f"s_and_b32 s99, vcc_lo, {(1 << self.nl) - 1:#x}"]
        self.e(f"s_sleep {P.poll2}")
        self.vm(ld(alt), "polljunk")
        self.wait(vm=[tag])
        self.e(*tst(vP)); self.e(f"s_cbranch_scc1 L_spin{n} ;np", f"L_back{n}: ;np")
        self.spins += [f"L_spin{n}:", f"s_sub_u32 s{sBUD}, s{sBUD}, 1", f"s_cbranch_scc1 L_give{n}",
                       ld(vP), "s_waitcnt vmcnt(1)"] + tst(alt) + [f"s_cbranch_scc0 L_back{n}", ld(alt), "s_waitcnt vmcnt(1)"] + tst(vP) + \
                      [f"s_cbranch_scc1 L_spin{n}", f"s_branch L_back{n}", f"L_give{n}:", f"s_mov_b32 s{sBUD}, 0", f"s_branch L_back{n}"]
    def flag(self, val, soff=sFO, st=None):
        self.e(f"v_mov_b32 v{vFV}, {val}")
        if st is not None:
            self.vm(f"buffer_store_dword v{vFV}, v{vFA}, {SRD_WS}, s{soff} offen {st}", "flag"); return
        if P.flagbr:
            self.dstore(f"buffer_store_dword v{vFV}, v{vFA}, {SRD_WS}, s{soff} offen", "flag", True); return
        self.e(f"s_or_b32 s99, s{soff}, s{sML}")
        self.vm(f"buffer_store_dword v{vFV}, v{vFA}, {SRD_WS}, s99 offen", "flag")
        self.e(f"s_or_b32 s99, s{soff}, s{sMS}")
        self.vm(f"buffer_store_dword v{vFV}, v{vFA}, {SRD_WS}, s99 offen sc1", "flag")
    def dstore(self, text, tag, always=False):
        kind = tag[0] if isinstance(tag, tuple) else tag
        if (not P.plain or (self.layer, kind, isinstance(tag, tuple)) in P.wt) and not always:
            self.vm(text + " sc1", tag); return
        n = self.nspin; self.nspin += 1
        self.e(f"s_cmp_lg_u32 s{sML}, 0", f"s_cbranch_scc1 L_alt{n} ;np")
        self.vm(text, tag)
        self.e(f"L_back{n}: ;np")
        self.spins += [f"L_alt{n}:", "s_nop 4", text + " sc1", f"s_branch L_back{n}"]
    def valid(self, test, reload):
        n = self.nspin; self.nspin += 1
        self.e(*test); self.e(f"s_cbranch_vccnz L_rl{n} ;np", f"L_back{n}: ;np")
        self.spins += [f"L_rl{n}:", f"s_sub_u32 s{sBUD}, s{sBUD}, 1", f"s_cbranch_scc1 L_give{n}"] + reload + ["s_waitcnt vmcnt(0)"] + test + \
                      [f"s_cbranch_vccnz L_rl{n}", f"s_branch L_back{n}", f"L_give{n}:", f"s_mov_b32 s{sBUD}, 0", f"s_branch L_back{n}"]
    def touch(self, tmp, kind, base_expr, masked=True):
        if not P.plain or kind in P.notouch: return
        nl = {"p": 16, "q": 16, "s": 2, "t": 2, "h": 56}[kind]
        self.e(f"v_cmp_gt_u32 vcc, {nl}, v1")
        if kind in "pq": self.e(f"v_lshrrev_b32 v{tmp}, 3, v1", f"v_lshlrev_b32 v{tmp}, {15 if kind == 'p' else 13}, v{tmp}", f"v_and_b32 v{vFV}, 7, v1", f"v_lshl_add_u32 v{tmp}, v{vFV}, 7, v{tmp}")
        else: self.e(f"v_lshlrev_b32 v{tmp}, {11 if kind == 's' else 7}, v1")
        self.e(f"v_mov_b32 v{vFV}, {OOB:#x}", *base_expr)
        self.e(f"v_cndmask_b32 v{tmp}, v{vFV}, v{tmp}, vcc")
        if masked: self.e(f"s_or_b32 s32, s32, s{sML}")
        self.vm(f"buffer_load_dword v{tmp}, v{tmp}, {SRD_WS}, s32 offen {P.t_mod}", "touch")
    def vm(self, text, tag=None):
        kind = tag[0] if isinstance(tag, tuple) else tag
        if kind in P.drop:
            self.seen.add(tag); return
        super().vm(text, tag)
    def codepf(self, tmpv, per=2048):
        if not P.codepf: return
        n = self.npf; self.npf += 1
        sh = (per // 64).bit_length() - 1
        self.e(f"L_pf{n}: ;np", f"s_mul_i32 s32, s{sW}, {per}", f"s_add_u32 s32, s32, L_pf{n}-L_pc", f"v_lshlrev_b32 v{tmpv}, {sh}, v1")
        raise NotImplementedError
    def flush_spins(self):
        for l in self.spins: self.e(l)
        self.spins = []

def batch(k, i):
    src = f"s_add_u32 s62, s{sGS}, {i*16384}" if i < 15 else f"s_add_u32 s62, s{sDS}, {(16 + 4*(i-15))*1024}"
    def f(q):
        k.set_m0(f"s_add_u32 m0, s{sGL}, {(i % 10)*16384}")
        if i != 14: k.set_s(src)
        elif k.last.get(62) != f"s_cselect_b32 s62, {OOB>>1:#x}, s62":
            k.e(src, f"s_cmp_ge_u32 s{sW}, 2", f"s_cselect_b32 s62, {OOB>>1:#x}, s62")
        k.vm(f"buffer_load_dwordx4 v{vL16}, {SRD_WS}, s62 offen offset:{q*1024} {P.bgm} lds", ("gw", i))
    return [lambda q=q: f(q) for q in range(4)]

def bg_batches(k, bs, period, dep=lambda b: None):
    for b in bs:
        for f in batch(k, b): k.bg_add(f, period, ("gw", b), dep(b))
def bg_list(k, fns, period, tag, dep=None):
    for f in fns: k.bg_add(f, period, tag, dep)

def regloads(k, base_sgpr, off, dst, n, tag, tmp=63, tagf=None):
    fns = []
    for j in range(n):
        def f(j=j):
            k.set_s(f"s_add_u32 s{tmp}, s{base_sgpr}, {off + (j & ~3)*1024}")
            k.vm(f"buffer_load_dwordx4 {dst(j)}, v{vL16}, {SRD_WS}, s{tmp} offen offset:{(j%4)*1024} {P.bgm}", tagf(j) if tagf else tag)
        fns.append(f)
    return fns
def wow(k):
    def f(i, q):
        k.set_m0(f"s_add_u32 m0, s{sGL}, {(6 + i)*16384}"); k.set_s(f"s_add_u32 s63, s88, {i*16384}")
        k.vm(f"buffer_load_dwordx4 v{vL16}, {SRD_WS}, s63 offen offset:{q*1024} lds", "wow")
    return [lambda i=i, q=q: f(i, q) for i in range(4) for q in range(4)]

def pack_issue(k):
    for r in (68, 69, 72, 73, 74, 75, 76, 77): assert k.last[r].startswith("s_load"), f"kernel argument s{r} overwritten"
    k.e("v_lshrrev_b32 v44, 3, v1", "v_and_b32 v43, 7, v1", "v_and_b32 v45, 2, v44", "v_lshlrev_b32 v45, 1, v45",
        "v_xor_b32 v43, v43, v45", "v_lshlrev_b32 v43, 4, v43", f"s_add_u32 s34, s49, {L_X + 4096}")
    k.e("s_cmp_ge_u32 s2, 112", "s_cbranch_scc1 L_pki_small")
    k.e("s_and_b32 s35, s2, 1", "s_bfe_u32 s36, s2, 0x10001", "s_lshr_b32 s37, s2, 2")
    k.e("s_cmp_eq_u32 s35, 0", "s_cselect_b32 s24, s72, s74", "s_cselect_b32 s25, s73, s75",
        f"s_mov_b32 s26, {512*3584:#x}", "s_mov_b32 s27, 0x20000")
    k.e("v_mul_u32_u24 v46, 3584, v44", "v_add_u32 v46, v46, v43")
    k.e("s_lshl_b32 s38, s36, 2", f"s_add_u32 s38, s38, s{sW}", f"s_mul_i32 s38, s38, {64*3584}",
        "s_lshl_b32 s39, s37, 7", "s_add_u32 s38, s38, s39")
    for i in range(8):
        k.e(f"s_add_u32 m0, s34, {(i>>2)*8192 + (i&3)*1024}", f"s_add_u32 s39, s38, {i*8*3584}", f"buffer_load_dwordx4 v46, {SRD_PK}, s39 offen {P.pk_mod} lds")
    k.e("s_branch L_pki_done")
    k.label("L_pki_small")
    k.e("s_sub_u32 s35, s2, 112", "s_lshl_b32 s35, s35, 3", f"s_lshl_b32 s36, s{sW}, 1", "s_add_u32 s35, s35, s36")
    k.e("s_cmp_lt_u32 s35, 896", "s_cselect_b32 s24, s76, s68", "s_cselect_b32 s25, s77, s69", f"s_mov_b32 s26, {512*1024:#x}",
        f"s_cselect_b32 s26, {1792*1024:#x}, s26", "s_mov_b32 s27, 0x20000", "s_cselect_b32 s37, 1, 0",
        "s_movk_i32 s38, 896", "s_cselect_b32 s38, 0, s38")
    k.e("s_cselect_b32 s39, 0, 1", "s_cselect_b32 s70, 14, 15", "s_movk_i32 s71, 0x4000", "s_cselect_b32 s71, 0x80, s71")
    k.e("s_sub_u32 s35, s35, s38", "s_lshr_b32 s35, s35, s39", "s_and_b32 s36, s35, 7", "s_lshr_b32 s35, s35, 3")
    k.e("v_lshl_add_u32 v46, v44, 10, v43", "s_lshl_b32 s38, s35, s70", "s_lshl_b32 s39, s36, 7", "s_add_u32 s38, s38, s39")
    for i in range(2):
        for h in range(2):
            k.e(f"s_add_u32 m0, s34, {(2*i+h)*1024}", f"s_add_u32 s39, s38, {h*8192}", f"buffer_load_dwordx4 v46, {SRD_PK}, s39 offen {P.pk_mod} lds")
        if i == 0: k.e("s_add_u32 s38, s38, s71")
    k.label("L_pki_done")
    k.vmq.append("pk"); k.seen.add("pk")

PQ = [76, 80, 84, 88, 92, 96, 36, 40]
def pack_process(k, mid1, mid2):
    k.e("v_bfe_u32 v46, v1, 2, 2", "v_and_b32 v47, 3, v1", "v_bfe_u32 v48, v1, 4, 1", "v_lshrrev_b32 v49, 5, v1")
    k.e("v_and_b32 v50, 2, v46", "v_add_u32 v50, v50, v48", "v_lshlrev_b32 v50, 5, v50",
        "v_lshl_add_u32 v50, v46, 7, v50", "v_lshl_add_u32 v50, v47, 3, v50", "v_add_u32 v50, s34, v50")
    k.e("s_cmp_ge_u32 s2, 112", "s_cbranch_scc1 L_pk_small")
    q0 = list(k.vmq)
    k.e("v_lshl_add_u32 v56, v49, 10, v50", "v_xor_b32 v57, 64, v56")
    k.e("s_lshl_b32 s39, s37, 2", "v_add_u32 v58, s39, v48")
    k.e("s_lshl_b32 s70, s36, 2", f"s_add_u32 s70, s70, s{sW}", "s_lshl_b32 s70, s70, 2")
    k.e("v_and_b32 v66, 15, v1", "s_lshl_b32 s71, s35, 8", "v_lshl_add_u32 v66, v66, 4, s71")
    for p in range(2):
        T, fs, tl, st_, b, aug = 59, 60, 61, 62 + p, 64 + p, 68 + p
        k.e(f"v_add_u32 v{T}, {2*p}, v58", f"v_mul_u32_u24 v{fs}, 9363, v{T}", f"v_lshrrev_b32 v{fs}, 16, v{fs}",
            f"v_mul_u32_u24 v{tl}, 7, v{fs}", f"v_sub_u32 v{tl}, v{T}, v{tl}")
        k.e(f"v_cmp_gt_u32 vcc, 3, v{tl}", f"v_mul_u32_u24 v67, 33, v{tl}", f"v_mov_b32 v{st_}, 1", "v_mov_b32 v70, 3",
            f"v_cndmask_b32 v67, v67, v{tl}, vcc", f"v_cndmask_b32 v{st_}, v{st_}, v70, vcc")
        k.e(f"v_mul_u32_u24 v{fs}, 231, v{fs}", f"v_add_u32 v67, v67, v{fs}")
        k.e(f"v_lshl_add_u32 v70, v{st_}, 5, v67", "v_lshlrev_b32 v70, 10, v70", "v_add_u32 v70, v70, v66",
            "s_lshl_b32 s71, s36, 9", f"v_add_u32 v{aug}, s71, v70")
        k.e(f"v_mul_lo_u32 v70, v{st_}, s70", "v_add_u32 v67, v67, v70", "v_lshlrev_b32 v67, 10, v67",
            "v_add_u32 v67, v67, v66", f"v_lshl_add_u32 v{b}, v49, 9, v67", f"v_lshlrev_b32 v{st_}, 10, v{st_}")
    k.e("v_mov_b32 v71, 0x3f803f80", "v_mov_b32 v72, 0", "v_mov_b32 v73, 0", "v_cmp_gt_u32 vcc, 32, v1", "v_mov_b32 v46, 0", "v_mov_b32 v47, 0",
        "v_cndmask_b32 v68, v69, v68, vcc", f"s_lshl_b32 s72, s{sW}, 8", "s_add_u32 s72, s72, 0x10000", "v_lshl_add_u32 v74, v1, 2, s72",
        "v_lshlrev_b32 v75, 2, v1", "v_add_u32 v75, 0x10000, v75")
    k.e(f"s_mov_b32 s70, {WS_PGU}", "s_mov_b32 s71, s70", "s_mov_b32 s72, s70", "s_mov_b32 s73, s70", f"s_cmp_eq_u32 s{sW}, 0", f"s_cselect_b32 s74, s70, {OOB>>1:#x}")
    k.wait(vm="pk")
    for ks in range(4):
        for p in range(2):
            for j in range(2): k.ds(f"ds_read_b64_tr_b16 {vr(PQ[2*ks+p]+2*j,2)}, v{56+p} offset:{(ks>>1)*8192 + (ks&1)*2048 + j*512}", ("t", ks, p))
        if ks == 2: k.wait(lg=[("t", 0, 1)])
    mid1()
    for ks in range(4):
        for p in range(2):
            k.wait(lg=[("t", ks, p)])
            for d in range(4): k.e(f"v_dot2c_f32_bf16 v{72+p}, v{PQ[2*ks+p]+d}, v71")
    k.e("v_permlane32_swap_b32 v72, v73", "v_add_f32 v72, v72, v73")
    k.ds(f"ds_write_b32 v74, v72 offset:{L_CS - 65536}")
    k.wait(lg="all"); k.e("s_barrier")
    for w in range(4): k.ds(f"ds_read_b32 v{56+w}, v75 offset:{L_CS - 65536 + 256*w}")
    mid2()
    k.wait(lg="all")
    k.e("v_add_f32 v56, v56, v57", "v_add_f32 v58, v58, v59", "v_add_f32 v56, v56, v58")
    k.e("v_cvt_pk_bf16_f32 v45, v56, v46", "v_lshlrev_b32 v57, 16, v45", "v_sub_f32 v57, v56, v57", "v_cvt_pk_bf16_f32 v44, v56, v57")
    k.e("s_branch L_pk_done")
    k.label("L_pk_small")
    k.vmq = list(q0)
    k.e(f"v_mov_b32 v64, v{vL16}", f"v_add_u32 v65, 1024, v{vL16}", f"v_mov_b32 v68, v{vL16}", f"s_mov_b32 s72, {OOB>>1:#x}", "s_mov_b32 s73, s72", "s_mov_b32 s74, s72")
    k.e("s_cmp_eq_u32 s37, 0", "s_cbranch_scc1 L_pk_wo")
    k.e("s_mul_i32 s38, s35, 2341", "s_lshr_b32 s38, s38, 16", "s_mul_i32 s39, s38, 28", "s_sub_u32 s39, s35, s39",
        "s_mul_i32 s70, s39, 9363", "s_lshr_b32 s70, s70, 16", "s_mul_i32 s71, s70, 7", "s_sub_u32 s71, s39, s71")
    for u in range(2):
      k.e(f"s_sub_u32 s39, s70, s36" if P.hrot else "s_mov_b32 s39, s70", f"s_sub_u32 s39, s39, {u if P.hrot else 0}", "s_and_b32 s39, s39, 3",
        "s_lshl_b32 s32, s39, 2", "s_add_u32 s32, s32, s71", "s_mul_i32 s33, s39, 3", "s_add_u32 s33, s33, s71", "s_add_u32 s33, s33, 12",
        "s_cmp_lt_u32 s71, 4", "s_cselect_b32 s32, s32, s33", "s_mul_i32 s33, s38, 28", "s_add_u32 s32, s32, s33", f"s_lshl_b32 s{(35, 37)[u]}, s32, 11")
    k.e("v_lshl_add_u32 v56, v49, 9, v50", "v_xor_b32 v57, 64, v56", f"v_mov_b32 v62, {224*KB}", f"v_mov_b32 v63, {224*KB}")
    k.e(f"s_mul_i32 s36, s36, {224*KB}", f"s_add_u32 s36, s36, {WS_PDN}", "s_add_u32 s70, s36, s35", "s_add_u32 s71, s36, s37")
    k.wait(vm="pk")
    for i in range(2):
        for nn in range(2):
            for j in range(2): k.ds(f"ds_read_b64_tr_b16 {vr(PQ[2*i+nn]+2*j,2)}, v{56+nn} offset:{i*2048 + j*1024}", "t")
    mid1(); mid2()
    k.wait(lg="all")
    k.e("s_branch L_pk_done")
    k.label("L_pk_wo")
    k.vmq = list(q0)
    k.e("v_and_b32 v56, 2, v46", "v_lshlrev_b32 v56, 1, v56", "v_xor_b32 v56, v56, v47", "v_lshlrev_b32 v56, 4, v56", "v_lshl_add_u32 v56, v46, 7, v56",
        "v_lshrrev_b32 v57, 4, v1", "v_lshl_add_u32 v56, v57, 10, v56", "v_add_u32 v56, s34, v56", "v_xor_b32 v57, 64, v56",
        "v_mov_b32 v62, 0x800", "v_mov_b32 v63, 0x800")
    k.e("s_lshl_b32 s36, s36, 16", "s_lshl_b32 s35, s35, 12", "s_add_u32 s70, s36, s35", f"s_add_u32 s70, s70, {WS_PWO}", "s_mov_b32 s71, s70")
    k.wait(vm="pk")
    for j in range(4):
        for jj in range(2): k.ds(f"ds_read_b64_tr_b16 {vr(PQ[j]+2*jj,2)}, v{56+(j>>1)} offset:{jj*512 + 8*(j&1)}", "t")
    mid1(); mid2()
    k.wait(lg="all")
    k.label("L_pk_done")

def pack_stores(k):
    ops = []
    for r in range(4):
        for p in range(2):
            ops.append(("v", lambda r=r, p=p: k.vm(f"buffer_store_dwordx4 {vr(PQ[2*r+p],4)}, v{64+p}, {SRD_WS}, s{70+r} offen sc1", "pks")))
            if r < 3: ops.append(("a", lambda p=p: k.e(f"v_add_u32 v{64+p}, v{64+p}, v{62+p}")))
    ops.append(("v", lambda: k.vm(f"buffer_store_dwordx4 v[44:47], v68, {SRD_WS}, s74 offen sc1", "pks")))
    return ops

A_XF, A_K, A_V, A_Q = 36, 76, 86, 96
A_STA, A_STB, A_OP, A_DX, A_PA, A_ST, A_ACC = 104, 106, 144, 152, 153, 140, 184
class R0: XE, XO, SA, SB, CI, ONE, M, ATT, TMP = 3, 4, 5, 6, 28, 32, 52, (116, 160), 60
class R1: XE, XO, SA, SB, CI, ONE, M, ATT, TMP = 116, 117, 118, 119, 252, 124, 120, (228, 160), 28
A_U, A_PX = 226, 115
A11_ORDER = [2, 3, 1, 0, "h"]
A11_POS = {2: 3, 3: 0, 1: 1, 0: 2, "h": 3}
sODD, sCUR0, sCUR1, sCEXP = 40, 42, 44, 46

def a1_setup(k, layer):
    R = (R0, R1)[layer]
    real = k; out = []
    class Rec:
        def e(self, *t):
            if any(x.startswith("s_cmp") for x in t): out.append(lambda t=t: real.e(*t))
            else: out.extend(lambda x=x: real.e(x) for x in t)
    k = Rec()
    t16, g, tt, tb = R.TMP, R.TMP + 1, R.TMP + 2, R.TMP + 3
    x, y, z = R.ONE, R.ONE + 1, R.ONE + 2
    sa = L_SA0 if layer == 0 else L_SA1
    k.e(f"v_and_b32 v{t16}, 15, v1", f"v_lshrrev_b32 v{g}, 4, v1", f"v_and_b32 v{tt}, 7, v1", f"v_bfe_u32 v{tb}, v1, 3, 1")
    k.e(f"v_lshlrev_b32 v{tb}, 13, v{tb}")
    if layer == 0: k.e(f"v_add_u32 v{tb}, {L_X}, v{tb}")
    if layer == 0:
        k.e(f"v_and_b32 v{x}, 6, v{tt}", f"v_xor_b32 v{x}, v{x}, v{g}", f"v_lshlrev_b32 v{x}, 4, v{x}",
            f"v_lshl_add_u32 v{x}, v{tt}, 7, v{x}", f"v_add_u32 v{R.XE}, v{x}, v{tb}", f"v_xor_b32 v{R.XO}, 64, v{R.XE}")
    else:
        k.e(f"v_lshl_add_u32 v{x}, v{g}, 7, v{tb}", f"v_lshl_add_u32 v{R.XE}, v{tt}, 4, v{x}", f"v_add_u32 v{R.XO}, 512, v{R.XE}")
    k.e(f"v_lshlrev_b32 v{R.SA}, 3, v{t16}", f"v_add_u32 v{R.SA}, {sa}, v{R.SA}",
        f"v_lshlrev_b32 v{R.SB}, 5, v{g}", f"v_add_u32 v{R.SB}, {sa}, v{R.SB}")
    k.e(f"v_and_b32 v{x}, 1, v1", f"v_cmp_eq_u32 s[{sODD}:{sODD+1}], 1, v{x}",
        f"v_lshl_add_u32 v{y}, v{g}, 2, v{x}", f"v_cmp_le_u32 s[{sCUR0}:{sCUR0+1}], v{y}, v{t16}",
        f"v_add_u32 v{y}, 2, v{y}", f"v_cmp_le_u32 s[{sCUR1}:{sCUR1+1}], v{y}, v{t16}")
    k.e(f"v_mov_b32 v{y}, 0xffff", f"v_mov_b32 v{z}, 0xffff0000", f"v_cndmask_b32 v{y}, v{y}, v{z}, s[{sODD}:{sODD+1}]", f"v_mov_b32 v{z}, 0")
    k.e(f"v_cndmask_b32 v{R.M+2}, v{z}, v{y}, s[{sCUR0}:{sCUR0+1}]", f"v_cndmask_b32 v{R.M}, v{y}, v{z}, s[{sCUR0}:{sCUR0+1}]",
        f"v_cndmask_b32 v{R.M+3}, v{z}, v{y}, s[{sCUR1}:{sCUR1+1}]", f"v_cndmask_b32 v{R.M+1}, v{y}, v{z}, s[{sCUR1}:{sCUR1+1}]")
    k.e(f"s_cmp_eq_u32 s{sB}, 0", f"s_cselect_b32 s70, {f2u(-1e38):#x}, 0", f"s_mov_b32 s{sCEXP}, {f2u(0.25*LOG2E):#x}")
    for i in range(4): k.e(f"v_mov_b32 v{R.CI+i}, s70", f"v_mov_b32 v{R.ONE+i}, 0x3f803f80")
    return out

def o_bases(k, layer):
    k.e(*o_block("s32", layer))
    k.e(f"s_lshl_b32 s33, s{sCS}, 2", f"s_add_u32 s33, s33, s{sW}", "s_lshl_b32 s53, s33, 10", "s_add_u32 s53, s53, s32", "s_add_u32 s54, s53, 32768",
        f"s_lshl_b32 s32, s{sB}, 5", "s_add_u32 s32, s32, s33", "s_lshl_b32 s32, s32, 2", f"s_add_u32 s89, s32, {fl(layer, FL_O)}")

def ln_finish(a, s, q):
    a(f"v_mul_f32 v{s}, {f2u(-1/512):#x}, v{s}"); a(f"v_mul_f32 v{q}, {f2u(1/512):#x}, v{q}")
    a(f"v_fma_f32 v{q}, -v{s}, v{s}, v{q}"); a(f"v_max_f32 v{q}, 0, v{q}"); a(f"v_add_f32 v{q}, {f2u(1e-5):#x}, v{q}")

A_QS = 68
def fix_reads(k, R, t, S):
    i = 0 if t == "h" else t + 1
    return [lambda: k.ds(f"ds_read_b64 {vr(S,2)}, v{R.SA} offset:{i*128}", ("sa", t)),
            lambda: k.ds(f"ds_read_b128 {vr(S+2,4)}, v{R.SB} offset:{i*128}", ("sa", t)),
            lambda: k.ds(f"ds_read_b128 {vr(S+6,4)}, v{R.SB} offset:{i*128+16}", ("sa", t))]
def fix(k, R, fx, t, acc, at, pk, S=A_STA, pre=False, nxt=()):
    a = lambda txt, c=1, at=0: fx.add(lambda: k.e(txt), c, at)
    i = 0 if t == "h" else t + 1
    if not pre:
        for n, f in enumerate(fix_reads(k, R, t, S)): fx.add(f, 1, at - P.a1_salead if n == 0 else 0)
    fx.add(lambda: k.wait(lg=[("sa", t)]), 1, at)
    for f in nxt: fx.add(f)
    for r0, cs, dst in ((acc[0], CSQ, None if t == "h" else A_Q + 2*t), (acc[1], CSK, A_K + 2*i)):
        if dst is None: continue
        isq = cs == CSQ
        if pk:
            for h in (0, 2): a(f"v_pk_fma_f32 {vr(r0+h,2)}, {vr(S,2)}, {vr(cs+h,2)}, {vr(r0+h,2)} op_sel_hi:[0,1,1]")
            if not isq:
                for h in (0, 2): a(f"v_pk_mul_f32 {vr(r0+h,2)}, {vr(S,2)}, {vr(r0+h,2)} op_sel:[1,0] op_sel_hi:[1,1]")
        else:
            for r in range(4): a(f"v_fmac_f32 v{r0+r}, v{S}, v{cs+r}")
            if not isq:
                for r in range(4): a(f"v_mul_f32 v{r0+r}, v{S+1}, v{r0+r}")
        if isq: a(f"v_mul_f32 v{A_QS+t}, s{sCEXP}, v{S+1}")
        for h in range(2): a(f"v_cvt_pk_bf16_f32 v{dst+h}, v{r0+2*h}, v{r0+2*h+1}")
    r0 = acc[2]
    for r in range(4): a(f"v_fmac_f32 v{r0+r}, v{S+2+2*r}, v{CSV}")
    for r in range(4): a(f"v_mul_f32 v{r0+r}, v{S+3+2*r}, v{r0+r}")
    for h in range(2): a(f"v_cvt_pk_bf16_f32 v{A_V+2*i+h}, v{r0+2*h}, v{r0+2*h+1}")
    fx.add(lambda: (k.mark(("fix", t)), k.stamp(f"t0 fix{t}")), 0)

def attn(k, R, fx, t, B):
    SC, SP, PP, O, SUM, T = B, B + 4, B + 8, B + 12, B + 16, B + 20
    a = lambda txt, c=1: fx.add(lambda: k.e(txt), c)
    q = vr(A_Q + 2*t, 2)
    fx.dep(("fix", t)); fx.dep(("fix", t - 1 if t else "h")); fx.skip(1)
    a(f"{MF16S} {vr(SC,4)}, {vr(A_K+2*(t+1),2)}, {q}, 0", 2)
    a(f"{MF16S} {vr(SP,4)}, {vr(A_K+2*t,2)}, {q}, {vr(R.CI,4) if t == 0 else '0'}", 2)
    fx.skip(3)
    for rr, cur in ((0, sCUR0), (1, sCUR1)):
        a(f"v_cndmask_b32 v{T+2}, v{SC+2*rr}, v{SC+2*rr+1}, s[{sODD}:{sODD+1}]")
        a(f"v_cndmask_b32 v{T+3}, v{SP+2*rr}, v{SP+2*rr+1}, s[{sODD}:{sODD+1}]")
        a(f"v_cndmask_b32 v{T+rr}, v{T+3}, v{T+2}, s[{cur}:{cur+1}]")
    a(f"v_max_f32 v{T+2}, v{T}, v{T+1}"); a(f"v_mov_b32 v{T+3}, v{T+2}"); fx.skip(1)
    a(f"v_permlane16_swap_b32 v{T+2}, v{T+3}", 2); a(f"v_max_f32 v{T+2}, v{T+2}, v{T+3}"); a(f"v_mov_b32 v{T+3}, v{T+2}"); fx.skip(1)
    a(f"v_permlane32_swap_b32 v{T+2}, v{T+3}", 2); a(f"v_max_f32 v{T+2}, v{T+2}, v{T+3}")
    a(f"v_mul_f32 v{T+2}, v{A_QS+t}, v{T+2}")
    for rr in range(2): a(f"v_fma_f32 v{T+rr}, v{T+rr}, v{A_QS+t}, -v{T+2}")
    for rr in range(2): a(f"v_exp_f32 v{T+rr}, v{T+rr}", 2)
    for rr in range(2): a(f"v_cvt_pk_bf16_f32 v{T+rr}, v{T+rr}, v{T+rr}")
    a(f"v_and_b32 v{PP}, v{T}, v{R.M}"); a(f"v_and_b32 v{PP+1}, v{T+1}, v{R.M+1}")
    a(f"v_and_b32 v{PP+2}, v{T}, v{R.M+2}"); a(f"v_and_b32 v{PP+3}, v{T+1}, v{R.M+3}")
    fx.skip(1)
    a(f"{MF16} {vr(SUM,4)}, {vr(R.ONE,4)}, {vr(PP,4)}, 0", 2)
    a(f"{MF16} {vr(O,4)}, {vr(A_V+2*t,4)}, {vr(PP,4)}, 0", 2)
    fx.skip(3)
    a(f"v_rcp_f32 v{T}, v{SUM}", 2); fx.skip(1)
    for r in range(4): a(f"v_mul_f32 v{O+r}, v{T}, v{O+r}")
    for h in range(2): a(f"v_cvt_pk_bf16_f32 v{A_OP+2*t+h}, v{O+2*h}, v{O+2*h+1}")
    fx.add(lambda: (k.mark(("attn", t)), k.stamp(f"t0 attn{t}")), 0)

def ostore(k, fx, pair):
    b = A_OP + 4 * pair
    fx.dep(("attn", 2*pair)); fx.dep(("attn", 2*pair + 1))
    fx.dep("po1" if pair == 0 else "blank")
    fx.skip(1)
    fx.add(lambda: k.e(f"v_permlane16_swap_b32 v{b}, v{b+2}"), 2); fx.add(lambda: k.e(f"v_permlane16_swap_b32 v{b+1}, v{b+3}"), 2)
    fx.add(lambda: (k.dstore(f"buffer_store_dwordx4 {vr(b,4)}, v{vL16}, {SRD_WS}, s{53+pair} offen", ("ost", pair)), k.mark(("ost", pair))))

Z_WD, Z_TR, Z_HE, Z_HO, Z_OE, Z_OO = 164, 165, 166, 167, 168, 169
Z_XF, Z_SUM, Z_GR, Z_SUMH, Z_GRH, Z_CV = 104, 240, 244, 248, 252, 100
P.k_first = 4; P.k_pack = None; P.k_prep = 13
P.k_look, P.k_atom, P.k_bar, P.k_vgap, P.k_pst, P.k_pgap = 3, 6, 3, 3, 3, 0
NS0 = 6
def z_acc(t):
    if t == "h": return (None, A_ACC + 48, A_ACC + 52)
    return (A_ACC + 12*t, A_ACC + 12*t + 4, A_ACC + 12*t + 8)

def a10_lanes(k):
    k.e("v_lshrrev_b32 v60, 3, v1", "v_and_b32 v61, 6, v60", "v_and_b32 v62, 7, v1", "v_xor_b32 v61, v61, v62",
        "v_lshlrev_b32 v61, 4, v61", f"v_lshl_add_u32 v{A_DX}, v60, 10, v61")
    k.e("v_and_b32 v61, 2, v60", f"s_and_b32 s32, s{sW}, 1", "s_lshl_b32 s32, s32, 2", "v_or_b32 v61, s32, v61", "v_xor_b32 v61, v61, v62",
        "v_lshlrev_b32 v61, 4, v61", "v_mul_u32_u24 v60, 3072, v60", f"v_add_u32 v{Z_WD}, v60, v61")
    if P.rot == 0: k.e(f"s_add_u32 s{sROT}, s{sB}, s{sCS}")
    elif P.rot == 1: k.e(f"s_lshl_b32 s32, s{sB}, 1", f"s_bfe_u32 s33, s{sB}, 0x10002", "s_add_u32 s32, s32, s33", f"s_add_u32 s{sROT}, s32, s{sCS}")
    elif P.rot == 2: k.e(f"s_lshl_b32 s32, s{sB}, 1", f"s_add_u32 s{sROT}, s32, s{sCS}")
    elif P.rot == 3: k.e(f"s_mov_b32 s{sROT}, s{sCS}")
    elif P.rot == 4: k.e(f"s_lshl_b32 s32, s{sB}, 1", f"s_bfe_u32 s33, s{sB}, 0x10002", f"s_add_u32 s{sROT}, s32, s33")
    elif P.rot == 5: k.e(f"s_mov_b32 s{sROT}, 0")
    k.e(f"s_and_b32 s{sROT}, s{sROT}, 7")
    k.e(f"s_lshl_b32 s47, s{sB}, 3", "s_sub_u32 s48, s47, 2", "s_max_i32 s48, s48, 0", f"s_and_b32 s32, s{sW}, 1", "s_add_u32 s48, s48, s32",
        "s_lshl_b32 s48, s48, 13", f"s_lshl_b32 s32, s{sW}, 1", "s_add_u32 s47, s47, s32", "s_lshl_b32 s47, s47, 13")
    k.e(f"s_mul_i32 s51, s{sW}, {8*3072}", f"s_lshl_b32 s32, s{sCS}, 7", "s_add_u32 s51, s51, s32", f"s_mul_i32 s52, s{sW}, 3072")
    k.e(f"s_lshl_b32 s49, s{sW}, 14", f"s_and_b32 s32, s{sW}, 1", "s_lshl_b32 s50, s32, 13", f"s_lshr_b32 s32, s{sW}, 1",
        "s_lshl_b32 s33, s32, 10", "s_add_u32 s50, s50, s33", f"s_add_u32 s90, s32, s{sROT}")

def a10_x(k, c):
    S = lambda *t: [("s", lambda x=x: k.e(x)) for x in t]
    ld = lambda: k.vm(f"buffer_load_dwordx4 v{A_DX}, {SRD_X}, s33 offen {P.x_mod} lds", ("x", c))
    ops = S(f"s_add_u32 s33, s{sROT}, {c}", "s_and_b32 s33, s33, 7", "s_lshl_b32 s33, s33, 7", f"s_add_u32 m0, s49, {L_X + c*1024}", "s_add_u32 s33, s33, s47")
    ops += [("v", ld)] + S(f"s_add_u32 m0, s49, {L_X + 8192 + c*1024}", "s_add_u32 s33, s33, 8192") + [("v", ld)]
    if c % 2 == 0:
        ops += S(f"s_add_u32 s33, s90, {c}", "s_and_b32 s33, s33, 7", "s_lshl_b32 s33, s33, 7", f"s_add_u32 m0, s50, {L_XH0 + c*1024}", "s_add_u32 s33, s33, s48") + [("v", ld)]
    return ops

def a10_w(k, s):
    S = lambda *t: [("s", lambda x=x: k.e(x)) for x in t]
    if s & 1: ops = S(f"s_add_u32 m0, s52, {(s % NS0)*12288}", f"s_add_u32 s63, s63, {32*3072}")
    else: ops = S(f"s_add_u32 s63, s{sROT}, {s>>1}", "s_and_b32 s63, s63, 7", f"s_mul_i32 s63, s63, {64*3072}", f"s_add_u32 m0, s52, {(s % NS0)*12288}", "s_add_u32 s63, s63, s51")
    for p in range(3): ops.append(("v", lambda p=p: k.vm(f"buffer_load_dwordx4 v{Z_WD}, {SRD_QKV}, s63 offen offset:{p*1024} {P.w_mod} lds", ("w", s))))
    return ops
def run(ops):
    for _, f in ops: f()

def fill(k, mains, streams, cap=2):
    lastv = -99
    for g, m in enumerate(mains):
        m(); k.gap = g
        for a, o in streams:
            if a <= g and o and o[0][0] == "s": o.pop(0)[1](); break
        room = cap; nd = 0
        if g - lastv >= P.k_vgap and k.bg_step(): room -= 1; lastv = g
        while room > 0:
            pick = None
            for a, o in streams:
                if a > g or not o: continue
                t = o[0][0]
                if t == "d" and nd >= 1: continue
                if t == "v" and g - lastv < P.k_vgap: continue
                pick = o; break
            if pick is None: break
            t, f = pick.pop(0); f(); room -= 2 if t == "b" else 1
            if t == "d": nd += 1
            if t == "v": lastv = g
    for a, o in streams: run(o)

def a10_lanes2(k):
    k.e("v_lshrrev_b32 v60, 4, v1", "v_bfe_u32 v61, v1, 2, 2", "v_and_b32 v62, 1, v60", "v_lshlrev_b32 v62, 1, v62",
        "v_lshrrev_b32 v63, 1, v61", "v_or_b32 v62, v62, v63", f"v_xor_b32 v62, s{sW}, v62", "v_lshlrev_b32 v62, 5, v62",
        "v_mul_u32_u24 v60, 3072, v60", "v_lshl_add_u32 v60, v61, 7, v60", "v_add_u32 v60, v60, v62",
        "v_and_b32 v61, 3, v1", f"v_lshl_add_u32 v{Z_TR}, v61, 3, v60")
    k.e("v_and_b32 v60, 15, v1", "v_cmp_eq_u32 s[78:79], 0, v60")
    k.e(f"v_subrev_u32 v{Z_HE}, 16384, v{R0.XE}", f"v_subrev_u32 v{Z_HO}, 16384, v{R0.XO}",
        f"v_add_u32 v{Z_OE}, s49, v{R0.XE}", f"v_add_u32 v{Z_OO}, s49, v{R0.XO}")

def a10_loop(k, first):
    LA = P.k_look
    def sync(s, extra=()):
        k.wait(vm=[("w", s), ("x", s >> 1)] + list(extra)); k.e("s_barrier")
    nxt = [first]
    def dmas(upto):
        out = []
        while nxt[0] <= min(upto, 15):
            n = nxt[0]; nxt[0] += 1
            if n % 2 == 0: out += a10_x(k, n // 2)
            out += a10_w(k, n)
        return out
    def reads(s):
        fb = Z_XF + 24 * (s & 1); off = (s >> 1) * 1024; o = s & 1
        tr = lambda p, j: ("d", lambda: k.ds(f"ds_read_b64_tr_b16 {ar(12*s+4*p+2*j,2)}, v{Z_TR} offset:{(s%NS0)*12288 + p*1024 + j*512}", ("r", s, 0 if p == 0 else 1)))
        xr = lambda d, a, of, grp: ("d", lambda: k.ds(f"ds_read_b128 {vr(d,4)}, v{a} offset:{of}", ("r", s, grp)))
        out = [tr(0, 0), tr(0, 1)] + [xr(fb + 4*t, R0.XO if o else R0.XE, t*16384 + off, 0) for t in range(4)]
        out += [tr(1, 0), tr(1, 1), tr(2, 0), tr(2, 1), xr(fb + 16, Z_HO if o else Z_HE, off, 1), xr(fb + 20, Z_OO if o else Z_OE, off, 1)]
        return out
    l0_background(k)
    pst = pack_stores(k)
    sync(0)
    k.stamp("k0")
    run(reads(0)); run(dmas(LA - 1))
    for s in range(16):
        fb = Z_XF + 24 * (s & 1)
        c = lambda r: "0" if s == 0 else vr(r, 4)
        wq, wk, wv, one = ar(12*s, 4), ar(12*s + 4, 4), ar(12*s + 8, 4), vr(R0.ONE, 4)
        ms = [f"{MF16} {vr(z_acc(t)[0],4)}, {wq}, {vr(fb+4*t,4)}, {c(z_acc(t)[0])}" for t in range(4)]
        for t in [0, 1, 2, 3, "h"]:
            xf = vr(fb + (16 if t == "h" else 4*t), 4)
            ms.append(f"{MF16} {vr(z_acc(t)[1],4)}, {wk}, {xf}, {c(z_acc(t)[1])}")
            ms.append(f"{MF16} {vr(z_acc(t)[2],4)}, {xf}, {wv}, {c(z_acc(t)[2])}")
        ms += [f"{MF16} {vr(Z_CV,4)}, {wq}, {vr(fb+16,4)}, {c(Z_CV)}",
               f"{MF16} {vr(Z_SUM,4)}, {one}, {vr(fb+20,4)}, {c(Z_SUM)}", f"{MF16} {vr(Z_GR,4)}, {vr(fb+20,4)}, {vr(fb+20,4)}, {c(Z_GR)}",
               f"{MF16} {vr(Z_SUMH,4)}, {one}, {vr(fb+16,4)}, {c(Z_SUMH)}", f"{MF16} {vr(Z_GRH,4)}, {vr(fb+16,4)}, {vr(fb+16,4)}, {c(Z_GRH)}"]
        mains = [lambda m=m: k.e(m) for m in ms]
        if s == P.k_pack:
            k.wait(lg="all"); pack_process(k, lambda: None, lambda: None)
        k.wait(lg=[("r", s, 0)])
        streams = [(3, [("s", lambda: k.wait(lg=[("r", s, 1)]))] +
                       [("a", lambda d=d: k.e(f"v_cndmask_b32 v{fb+16+d}, v{fb+16+d}, v{R0.ONE}, s[78:79]")) for d in range(4)])]
        if s + 1 < 16:
            ex = ["pks"] if s + 1 == P.k_atom else []
            assert not ex or not pst, "arrival before the last pack store"
            assert P.k_prep > 14 - LA and (P.k_pack or 0) <= 8 - LA
            ops = [("b", lambda: sync(s + 1, ex))] + reads(s + 1)
            if ex: ops.append(("b", lambda: arrive(k)))
            streams.append((P.k_bar, ops))
            streams.append((0, dmas(s + LA)))
        n = 0; mine = []
        while pst and s >= (P.k_pack or 0) and (n < P.k_pst or pst[0][0] == "a"):
            n += pst[0][0] == "v"; mine.append(pst.pop(0))
        streams.append((P.k_pgap, mine))
        if s == P.k_prep: streams.append((6, tail_prep(k)))
        if s == P.k_touch:
            streams.append((2, [("b", lambda: k.touch(157, "p", ["s_mov_b32 s32, s53"], False) if (0, "ost", True) not in P.wt else None),
                                ("b", lambda: k.touch(158, "q", [f"s_add_u32 s32, s64, {BX1[0]}"], False) if (0, "xst", False) not in P.wt else None),
                                ("b", lambda: k.touch(159, "h", h_base("s32", 0), False) if P.h_touch0 == "k" else None)]))
        if s == P.k_gb: streams.append((1, [("v", lambda t=t: k.vm(t, "gb")) for t in GB_LOADS]))
        if s == P.k_chk: streams.append((1, [("b", lambda: rendezvous(k))]))
        if s == 15 and P.k_chk < 16:
            streams.append((max(P.k_bar, 4), [("b", lambda: (k.e("s_barrier"), k.mark("xfree")))]))
        fill(k, mains, streams)
        if s in (3, 7, 11): k.stamp(f"k{s+1}")
    k.stamp("k16")
    if P.k_chk >= 16: rendezvous(k)

GB_LOADS = [f"buffer_load_dwordx4 {vr(36+4*j,4)}, v{vL16}, {SRD_WS}, s75 offen offset:{j*1024} sc1" for j in range(4)] + \
           [f"buffer_load_dword v{vP}, v172, {SRD_WS}, s77 offen offset:8 sc1"]
def arrive(k):
    k.wait(vm=["tag"])
    k.e(f"v_readfirstlane_b32 s{sTAG}, v170", f"s_cmp_eq_u32 s{sTAG}, 0", "s_cbranch_scc1 L_tag_spin ;np", "L_tag_ok: ;np")
    k.spins += ["L_tag_spin:", f"s_sub_u32 s{sBUD}, s{sBUD}, 1", "s_cbranch_scc1 L_tag_give", f"buffer_load_dword v170, v{vFA}, {SRD_DBG}, 0 offen sc1",
                "s_waitcnt vmcnt(0)", f"v_readfirstlane_b32 s{sTAG}, v170", f"s_cmp_eq_u32 s{sTAG}, 0", "s_cbranch_scc1 L_tag_spin", "s_branch L_tag_ok",
                "L_tag_give:", f"s_mov_b32 s{sBUD}, 0", "s_branch L_tag_ok"]
    k.e(f"v_mov_b32 v176, s{sTAG}", "v_not_b32 v177, v176", f"v_mov_b32 v178, s{sXCC}")
    k.vm(f"buffer_store_dwordx4 v[176:179], v171, {SRD_WS}, s75 offen sc1", "arr")

def rendezvous(k):
    chk = [f"s_not_b32 s32, s{sTAG}"]
    for j in range(4): chk += [f"v_xor_b32 v{36+4*j}, s{sTAG}, v{36+4*j}", f"v_xor_b32 v{37+4*j}, s32, v{37+4*j}"]
    chk += ["v_or3_b32 v36, v36, v37, v40", "v_or3_b32 v44, v44, v45, v41", "v_or3_b32 v36, v36, v48, v49", "v_or_b32 v36, v36, v44", "v_cmp_ne_u32 vcc, 0, v36"]
    k.wait(vm=["gb"])
    k.e(*chk); k.e("s_cbranch_vccnz L_gb_spin ;np", "L_gb_ok: ;np")
    k.spins += ["L_gb_spin:", f"s_sub_u32 s{sBUD}, s{sBUD}, 1", "s_cbranch_scc1 L_gb_give", "s_sleep 2",
                f"buffer_load_dword v170, v{vFA}, {SRD_DBG}, 0 offen sc1", "s_waitcnt vmcnt(0)", "v_readfirstlane_b32 s32, v170", f"s_cmp_eq_u32 s32, s{sTAG}",
                "s_cbranch_scc1 L_gb_same", f"s_mov_b32 s{sTAG}, s32", f"v_mov_b32 v176, s{sTAG}", "v_not_b32 v177, v176",
                f"buffer_store_dwordx4 v[176:179], v171, {SRD_WS}, s75 offen sc1", "L_gb_same:"] + GB_LOADS + ["s_waitcnt vmcnt(0)"] + chk + \
               ["s_cbranch_vccnz L_gb_spin", "s_branch L_gb_ok", "L_gb_give:", f"s_mov_b32 s{sBUD}, 0", "s_branch L_gb_ok"]
    k.e(f"v_cmp_ne_u32 vcc, s{sXCC}, v{vP}", "s_and_b32 s99, vcc_lo, 0xffff" if not P.safe else "s_and_b32 s99, 1, 1",
        f"s_cselect_b32 s{sML}, {OOB>>1:#x}, 0", f"s_cselect_b32 s{sMS}, 0, {OOB>>1:#x}")
    k.mark("gb")

W_OA, W_UA, W_SA, W_RB = 152, 154, 155, 156
def wo_bases(k):
    k.e(f"s_lshl_b32 s32, s{sB}, 2", f"s_add_u32 s32, s32, s{sW}", "s_lshl_b32 s64, s32, 14", f"s_lshl_b32 s33, s{sCS}, 10", "s_add_u32 s64, s64, s33",
        "s_lshr_b32 s32, s32, 1", "s_lshl_b32 s80, s32, 15", "s_lshl_b32 s65, s32, 11", "s_lshl_b32 s66, s32, 3", f"s_add_u32 s66, s66, s{sCS}", "s_lshl_b32 s66, s66, 1",
        f"s_and_b32 s32, s{sW}, 1", "s_add_u32 s66, s66, s32", "s_lshl_b32 s66, s66, 2", "s_lshl_b32 s32, s32, 8", "s_add_u32 s80, s80, s32", "s_add_u32 s65, s65, s32",
        f"s_lshr_b32 s32, s{sCS}, 1", "s_lshl_b32 s32, s32, 9", "s_add_u32 s65, s65, s32", f"s_and_b32 s32, s{sCS}, 1", "s_lshl_b32 s32, s32, 3", "s_add_u32 s65, s65, s32")
def wo_lanes(k):
    x, y = 66, 67
    return [lambda t=t: k.e(*t) for t in (
        [f"v_and_b32 v{x}, 15, v1"], [f"v_lshrrev_b32 v{y}, 4, v1"], [f"v_lshlrev_b32 v{W_OA}, 4, v{x}"], [f"v_lshl_add_u32 v{W_SA}, v{y}, 2, v{W_OA}"],
        [f"v_lshl_add_u32 v{W_OA}, v{y}, 9, v{W_OA}"], [f"v_and_b32 v{W_UA}, 7, v1"], [f"v_lshlrev_b32 v{W_UA}, 4, v{W_UA}"], [f"v_lshl_add_u32 v{W_UA}, v{y}, 7, v{W_UA}"],
        [f"v_lshrrev_b32 v{x}, 3, v{x}"], [f"v_lshl_add_u32 v{W_UA}, v{x}, 13, v{W_UA}"], [f"v_add_u32 v{W_RB}, {6*16384}, v{vL16}"],
        ["v_cmp_gt_u32 vcc, 32, v1", f"v_mov_b32 v{y}, {OOB:#x}", f"v_cndmask_b32 v{W_SA}, v{y}, v{W_SA}, vcc"])]
def blanks(k, layer):
    if not P.tags: return [lambda: k.mark("blank")]
    z = 66
    return [lambda: (k.e(f"v_mov_b32 v{z}, -1"), k.dstore(f"buffer_store_dword v{z}, v{vL16}, {SRD_WS}, s53 offen", "blank")),
            lambda: (k.e(f"s_add_u32 s58, s64, {BX1[layer]}"), k.dstore(f"buffer_store_dword v{z}, v{W_UA}, {SRD_WS}, s58 offen", "blank")),
            lambda: k.dstore(f"buffer_store_dword v{z}, v{W_UA}, {SRD_WS}, s58 offen offset:512", "blank"),
            lambda: (k.e(f"s_add_u32 s58, s65, {BS1[layer]}"), k.dstore(f"buffer_store_dword v{z}, v{W_SA}, {SRD_WS}, s58 offen", "blank"), k.mark("blank"))]
def wo_prepoll(k, layer):
    k.poll_addr(A_PA, 32)
    k.e(f"s_lshl_b32 s32, s{sB}, 7", f"s_add_u32 s{sPO}, s32, {fl(layer, FL_O)}", *o_block("s59", layer), "s_and_b32 s32, s80, 0xffff", "s_add_u32 s59, s59, s32")
    k.bg_held = True
    k.poll_issue(A_PA, "po1"); k.mark("po1")

def dna(k): return regloads(k, sDS, 0, lambda j: ar(192 + 4*j, 4), 16, "dna")

def tail_prep(k):
    R = R0
    A = lambda *t: [("a", lambda x=x: k.e(x)) for x in t]
    B = lambda *t: [("b", lambda: k.e(*t))]
    ops = A("v_and_b32 v73, 15, v1", "v_lshrrev_b32 v74, 4, v1", "v_lshlrev_b32 v73, 10, v73", "v_lshl_add_u32 v73, v74, 4, v73")
    ops += B(f"s_lshl_b32 s58, s{sB}, 2", f"s_add_u32 s58, s58, s{sW}", "s_lshl_b32 s58, s58, 14", f"s_lshl_b32 s59, s{sCS}, 7", "s_add_u32 s58, s58, s59")
    ops += [("v", lambda p=p: k.vm(f"buffer_load_dwordx4 {vr(RES+4*p,4)}, v73, {SRD_X}, s58 offen offset:{p*64}", "res")) for p in range(2)]
    ops += A("v_and_b32 v75, 3, v1", "v_cmp_eq_u32 s[34:35], 1, v75", "v_cmp_eq_u32 s[36:37], 2, v75", "v_cmp_eq_u32 s[38:39], 3, v75", "v_bfe_u32 v75, v1, 2, 2")
    ops += B("v_cmp_eq_u32 vcc, v75, v74", f"v_mov_b32 v72, {L_SA0 + 768}", f"s_lshl_b32 s59, s{sW}, 7", f"v_add_u32 v74, s59, v{R.SA}",
             "v_cndmask_b32 v74, v72, v74, vcc", f"v_cndmask_b32 v75, v72, v{R.SA}, vcc")
    return ops + [("a", f) for f in wo_lanes(k)]

def l0_background(k):
    k.per = dict(P.per_k)
    dd = dna(k)
    bg_list(k, dd[:P.dna_first], "s4", "dna", "gb")
    bg_list(k, wow(k), "s4", "wow", "xfree")
    bg_batches(k, [0, 1, 2, 3], "s2", lambda b: "xfree")
    bg_batches(k, [4], "s2", lambda b: "wobar")
    bg_batches(k, [5], "s2", lambda b: "xfree")
    bg_batches(k, [6, 7, 8, 9], "s2", lambda b: "gubar")
    bg_list(k, dd[P.dna_first:], "s4", "dna")
P.per_k = {"s2": 90, "s4": 70}

def a10_tail(k):
    R = R0
    k.per = dict(P.per_tail0)
    k.stamp("t0 gb")
    if (0, "xst", False) not in P.wt: k.touch(72, "t", [f"s_add_u32 s32, s65, {BS1[0]}"])
    k.bg_burst(P.tail_burst); k.bg_next = k.t + P.tail_delay
    hk, hv = z_acc("h")[1], z_acc("h")[2]
    for r in range(4):
        k.e(f"v_mov_b32_dpp v{CSQ+r}, v{Z_CV+r} row_newbcast:0 row_mask:0xf bank_mask:0xf", f"v_mov_b32_dpp v{CSK+r}, v{hk+r} row_newbcast:0 row_mask:0xf bank_mask:0xf")
    k.e(f"v_mov_b32 v{CSV}, v{hv}", f"v_mov_b32 v45, v{hv}", f"v_permlane16_swap_b32 v{CSV}, v45", f"v_mov_b32 v45, v{CSV}", f"v_permlane32_swap_b32 v{CSV}, v45")
    fa = Flex(); fb = Flex()
    for fx, S, G, ad, off in ((fa, Z_SUM, Z_GR, 74, 128), (fb, Z_SUMH, Z_GRH, 75, 0)):
        a = lambda txt, c=1, fx=fx: fx.add(lambda: k.e(txt), c)
        a(f"v_cndmask_b32 v{S+1}, v{G}, v{G+1}, s[34:35]"); a(f"v_cndmask_b32 v{S+1}, v{S+1}, v{G+2}, s[36:37]"); a(f"v_cndmask_b32 v{S+1}, v{S+1}, v{G+3}, s[38:39]")
        ln_finish(a, S, S + 1); a(f"v_rsq_f32 v{S+1}, v{S+1}"); fx.skip(1)
        fx.add(lambda S=S, ad=ad, off=off: k.ds(f"ds_write_b64 v{ad}, {vr(S,2)} offset:{off}", "saw"))
    drain([fa, fb], k)
    for f in blanks(k, 0): f()
    k.wait(lg="all"); k.e("s_barrier"); k.mark("xfree")
    k.stamp("t0 bar")
    fx = Flex(); f1 = Flex(); f2 = Flex()
    od = (2, 1, 3, 0, "h"); Ss = (A_STA, 56)
    for f in fix_reads(k, R, od[0], Ss[0]): f()
    for n, t in enumerate(od):
        fix(k, R, fx, t, z_acc(t), 0, True, Ss[n & 1], True, fix_reads(k, R, od[n + 1], Ss[~n & 1]) if n < 4 else ()); fx.skip(1)
    attn(k, R, f1, 2, R.ATT[0]); attn(k, R, f2, 3, R.ATT[1]); ostore(k, f2, 1)
    attn(k, R, f1, 1, R.ATT[0]); attn(k, R, f2, 0, R.ATT[1]); ostore(k, f2, 0)
    f3 = Flex(); f3.dep(("ost", 1))
    for _ in range(P.l0_flag_delay): f3.skip(1)
    f3.add(lambda: (k.wait(vm=[("ost", 1)]), k.flag(1, 89), k.mark("oflag1")))
    f3.dep(("attn", 0)); f3.add(lambda: wo_prepoll(k, 0))
    drain([fx, f1, f2, f3], k)
    k.stamp("a1 end")
P.tail_burst = 2; P.tail_delay = 0; P.l0_flag_delay = 6; P.dna_first = 2
P.per_tail0 = {"s2": 70, "s4": 45}

def a11_bases(k):
    out = []
    S = lambda *t: out.extend(lambda x=x: k.e(x) for x in t)
    S(f"s_lshr_b32 s70, s{sW}, 1", "s_lshl_b32 s49, s70, 13", f"s_and_b32 s71, s{sW}, 1", "s_lshl_b32 s71, s71, 2",
      f"s_add_u32 s50, s71, s{sROT}", "s_lshl_b32 s71, s71, 10")
    for i in range(4):
        S(f"s_add_u32 s70, s50, {i}", "s_and_b32 s70, s70, 7", "s_lshl_b32 s70, s70, 10", "s_add_u32 s70, s70, s49", f"s_sub_u32 s{92+i}, s70, {i*1024}")
    S("s_add_u32 s49, s49, s71", f"s_lshl_b32 s47, s{sB}, 16", f"s_add_u32 s47, s47, {BX2()}")
    S(f"s_sub_u32 s48, s{sB}, 1", "s_max_i32 s48, s48, 0", "s_lshl_b32 s51, s48, 10", f"s_add_u32 s51, s51, {WS_HST}",
      "s_lshl_b32 s52, s48, 11", f"s_add_u32 s52, s52, {WS_HXF}", "s_lshl_b32 s48, s48, 14", f"s_add_u32 s48, s48, {WS_HALO}")
    S("v_lshrrev_b32 v28, 4, v1", "v_and_b32 v29, 15, v1", "v_lshlrev_b32 v29, 4, v29", f"v_lshl_add_u32 v{A_U}, v28, 9, v29", f"v_lshl_add_u32 v{A_U+1}, v28, 8, v29")
    S(f"s_lshl_b32 s70, s{sB}, 12", f"s_and_b32 s71, s{sW}, 1", "s_lshl_b32 s71, s71, 8", "s_add_u32 s70, s70, s71", f"s_add_u32 s90, s70, {BS2()}")
    out.append(lambda: k.e(f"s_lshl_b32 s70, s{sB}, 1", f"s_add_u32 s70, s70, s{sW}", "s_lshl_b32 s72, s70, 13", f"s_lshl_b32 s71, s{sCS}, 10", "s_add_u32 s72, s72, s71",
        f"s_add_u32 s72, s72, {WS_HALO - 16384}", f"s_cmp_ge_u32 s{sW}, 2", f"s_cselect_b32 s72, s72, {OOB>>1:#x}"))
    out.append(lambda: k.e(f"s_lshl_b32 s73, s{sB}, 10", f"s_lshr_b32 s71, s{sCS}, 1", "s_lshl_b32 s71, s71, 8", "s_add_u32 s73, s73, s71", f"s_and_b32 s71, s{sCS}, 1",
        "s_lshl_b32 s71, s71, 3", "s_add_u32 s73, s73, s71"))
    out.append(lambda: k.e(f"s_lshl_b32 s71, s{sW}, 7", "s_add_u32 s73, s73, s71", f"s_add_u32 s73, s73, {WS_HST - 256}",
        f"s_cmp_ge_u32 s{sW}, 2", f"s_cselect_b32 s73, s73, {OOB>>1:#x}"))
    out.append(lambda: k.e(f"s_lshl_b32 s70, s{sB}, 3", f"s_add_u32 s70, s70, s{sCS}", "s_lshl_b32 s70, s70, 1", f"s_add_u32 s70, s70, s{sW}", "s_lshl_b32 s70, s70, 7",
        f"s_add_u32 s70, s70, {WS_HXF - 256}", f"s_cmp_ge_u32 s{sW}, 2", f"s_cselect_b32 s91, s70, {OOB>>1:#x}"))
    return out

def a11_x(k, tile):
    fns = []
    for i in range(4):
        def f(i=i):
            k.set_m0(f"s_add_u32 m0, s49, {A11_POS[tile]*16384}")
            k.e(f"s_add_u32 s32, s{48 if tile == 'h' else 47}, s{92+i}")
            if tile not in (0, "h"): k.e(f"s_add_u32 s32, s32, {tile*16384}")
            k.vm(f"buffer_load_dwordx4 v{vL16}, {SRD_WS}, s32 offen offset:{i*1024} sc1 lds", ("x", tile))
        fns.append(f)
    return fns

def stats_path(k, fx, S, tag, addr, tok, at=0):
    a = lambda txt, c=1: fx.add(lambda: k.e(txt), c)
    s, q = S, S + 1
    fx.add(lambda: k.wait(vm=[tag]), 1, at)
    a(f"v_add_f32 v{s}, v{s}, v{S+2}"); a(f"v_add_f32 v{q}, v{q}, v{S+3}"); fx.skip(1)
    a(f"v_permlane16_swap_b32 v{s}, v{q}", 2); a(f"v_add_f32 v{s}, v{s}, v{q}"); a(f"v_mov_b32 v{q}, v{s}"); fx.skip(1)
    a(f"v_permlane32_swap_b32 v{s}, v{q}", 2); a(f"v_add_f32 v{s}, v{s}, v{q}"); a(f"v_mov_b32 v{q}, v{s}"); fx.skip(1)
    a(f"v_permlane16_swap_b32 v{s}, v{q}", 2)
    ln_finish(a, s, q); a(f"v_rsq_f32 v{q}, v{q}", 2); fx.skip(1)
    fx.add(lambda: (k.ds(f"ds_write_b64 v{addr}, {vr(s,2)} offset:{tok*8}", ("saw", tag)), k.mark(("saw", tag))))

def a11_early(k, later=False):
    fns = a11_x(k, A11_ORDER[0]) + [lambda: k.vm(f"buffer_load_dwordx4 {vr(A_ST,4)}, v{A_U}, {SRD_WS}, s90 offen offset:2048 sc1", "st0")] + a11_x(k, A11_ORDER[1])
    if later: return fns
    for f in fns: f()

def a11_main(k):
    R = R1; order = A11_ORDER
    steps = [(t, s) for t in order for s in range(16)]
    accof = lambda t: A_ACC + 12 * (order.index(t) % 3)
    def xread(i):
        t, s = steps[i]
        off = A11_POS[t] * 16384 + (s >> 1) * 1024
        k.ds(f"ds_read_b128 {vr(A_XF+4*(i%4),4)}, v{R.XO if s&1 else R.XE} offset:{off}", ("xf", i))
    mains = []; fixed = {}; gap_of = {}
    need_sa = {order[1]: ["st0"], order[2]: ["st1"], order[3]: [], "h": []}
    for i, (t, s) in enumerate(steps):
        acc = accof(t); xf = vr(A_XF + 4*(i % 4), 4)
        c = lambda r, s=s: "0" if s == 0 else vr(r, 4)
        ms = []
        if t != "h": ms.append(f"{MF16} {vr(acc,4)}, {ar(12*s,4)}, {xf}, {c(acc)}")
        ms.append(f"{MF16} {vr(acc+4,4)}, {ar(12*s+4,4)}, {xf}, {c(acc+4)}")
        ms.append(f"{MF16} {vr(acc+8,4)}, {xf}, {ar(12*s+8,4)}, {c(acc+8)}")
        gap_of[(t, s)] = len(mains)
        for m in ms: mains.append(lambda m=m: k.e(m))
        last = len(mains) - 1
        fl_ = fixed.setdefault(last, [])
        if i + 1 < len(steps): fl_.append((0, lambda i=i: k.wait(lg=[("xf", i + 1)])))
        j = i + 4
        if j < len(steps):
            tj, sj = steps[j]
            if sj == 0:
                def bar(tj=tj):
                    k.wait(vm=[("x", tj)], lg=[("saw", n) for n in need_sa[tj]]); k.e("s_barrier"); k.mark(("bar", tj))
                fixed.setdefault(gap_of[(t, s)], []).append((1, bar))
            fixed[last].append((1, lambda j=j: xread(j)))
    fx = Flex(); fz = Flex(); fz2 = Flex(); fy = Flex(); fm = Flex()
    k.e(f"s_and_b32 s32, s{sW}, 1", "s_lshl_b32 s32, s32, 7", f"v_add_u32 v7, s32, v{R.SA}")
    o_bases(k, 1)
    stats_path(k, fy, A_ST, "st0", 7, 48)
    g1 = P.a1_late_gap
    fm.add(lambda: (k.wait(vm=[("xst", 1)]), k.flag(2)), 3, P.a1_flag_gap)
    fm.add(lambda: (k.poll_issue(A_PX, "px2"), setattr(k, "bg_held", not P.a1_bg_early)), 1, g1 - P.a1_poll_lead)
    fm.add(lambda: k.poll_check(A_PX, "px2", 2), 2, g1)
    fm.add(lambda: k.vm(f"buffer_load_dwordx4 {vr(56,4)}, v{A_U}, {SRD_WS}, s90 offen sc1", "st1"))
    for t in order[2:4]:
        for f in a11_x(k, t): fm.add(f, 2); fm.skip(P.a1_xgap)
    for f in wo_lanes(k): fy.add(f)
    fy.add(lambda: k.mark("wolanes"), 0)
    fm.dep("wolanes")
    fm.add(lambda: k.e(f"s_add_u32 s58, s64, {BX2()}"))
    for p in range(2): fm.add(lambda p=p: k.vm(f"buffer_load_dwordx4 {vr(RES+4*p,4)}, v{W_UA}, {SRD_WS}, s58 offen offset:{p*512} sc1", "res")); fm.skip(P.a1_xgap)
    def halo_poll():
        k.poll_addr(A_PX, 16, 7)
        k.e(f"s_mov_b32 s{sPO}, s52", f"s_min_u32 s50, s{sB}, 1")
        k.poll_issue(A_PX, "phx"); k.bg_held = False
    fm.add(halo_poll, 3)
    for c in P.t1_a1:
        if c == "o": fm.add(lambda: k.touch(60, "p", ["s_mov_b32 s32, s53"]), 6)
        if c == "x": fm.add(lambda: k.touch(62, "q", [f"s_add_u32 s32, s64, {BX1[1]}"]), 6)
        if c == "s": fm.add(lambda: k.touch(64, "t", [f"s_add_u32 s32, s65, {BS1[1]}"]), 4)
    for f in blanks(k, 1): fm.skip(P.a1_xgap); fm.add(f, 3)
    stats_path(k, fy, 56, "st1", 7, 16, g1 + 26)
    fm.dep(("bar", order[2]))
    fm.add(lambda: k.poll_check(A_PX, "phx", "s50"), 2)
    fm.add(lambda: k.vm(f"buffer_load_dwordx4 {vr(A_ST,4)}, v{A_U+1}, {SRD_WS}, s51 offen sc1", "sth"))
    for f in a11_x(k, "h"): fm.add(f, 2); fm.skip(P.a1_xgap)
    stats_path(k, fy, A_ST, "sth", R.SA, 0, gap_of[(order[3], P.a1_sth)])
    k.per = dict(P.per_a1); k.bg_held = True
    b5 = batch(k, 5)
    mix = [(f, "s2", ("gw", 4), None) for f in batch(k, 4)] + [(f, "s2", ("gw", 5), None) for f in b5[:3]]
    ww = [(f, "s4", "wow", None) for f in wow(k)]
    while mix or ww:
        k.bg += ww[:2]; ww = ww[2:]
        if mix: k.bg.append(mix.pop(0))
    bg_batches(k, [0], "s2", lambda b: ("bar", order[3]))
    bg_batches(k, [1], "s2", lambda b: ("bar", "h"))
    bg_batches(k, [2, 3], "s2", lambda b: "wobar")
    bg_list(k, b5[3:], "s2", ("gw", 5), "wobar")
    if P.dn1_agpr:
        for j, f in enumerate(regloads(k, sDS, 16*1024, lambda j: ar(4*j, 4), 40, "dnr", tagf=lambda j: ("dnr", 8 + j // 2))): k.bg_add(f, "s4", ("dnr", 8 + j // 2), "gemm_done")
    bg_batches(k, [6, 7, 8, 9], "s2", lambda b: "gubar")
    A = lambda t: (accof(t) if t != "h" else None, accof(t) + 4, accof(t) + 8)
    for n in range(4): fix(k, R, fx, order[n], A(order[n]), gap_of[(order[n + 1], 1 if n < 3 else 2)], False)
    attn(k, R, fz, 3, R.ATT[0]); attn(k, R, fz2, 2, R.ATT[1]); ostore(k, fz2, 1)
    attn(k, R, fz, 1, R.ATT[0])
    fx.dep(("saw", "sth"))
    for f in fix_reads(k, R, "h", A_STA): fx.add(f)
    fx.dep("gemm_done")
    fix(k, R, fx, "h", A("h"), 0, False, pre=True); attn(k, R, fz2, 0, R.ATT[1]); ostore(k, fz2, 0)
    f3 = Flex(); f3.dep(("ost", 1)); f3.skip(P.l1_flag_delay)
    f3.add(lambda: (k.wait(vm=[("ost", 1)]), k.flag(1, 89), k.mark("oflag1")), 3)
    f3.dep(("attn", 0)); f3.add(lambda: wo_prepoll(k, 1))
    k.wait(vm=[("x", order[0])]); k.e("s_barrier")
    for i in range(4): xread(i)
    k.wait(lg=[("xf", 0)])
    k.stamp("a1 first")
    if k.stamping:
        for t in order[1:]: fixed.setdefault(gap_of[(t, 0)], []).append((0, lambda t=t: k.stamp(f"a1 t{t}")))
        for g in range(6, 224, 12): fixed.setdefault(g, []).append((0, lambda g=g: k.stamp(f"fina {g}")))
    run_gaps(k, mains, fixed, [fm, f3, fy, fx, fz2, fz], 2, over=lambda i: i >= P.a1_over)
    print("a11 left:", len(fm), len(fy), len(fx), len(fz), len(fz2), len(k.bg), {n: g for n, g in k.marks.items() if isinstance(n, tuple) and n[0] in ("fix", "attn", "saw", "ost")})
    k.mark("gemm_done"); k.bg_held = P.a1_tailhold
    k.stamp("a1 gemm")
    drain([fm, fy, fx, fz, fz2, f3], k)
    for n in range(2): assert k.marks[("fix", order[n])] < gap_of[(order[n + 3], 0)], "accumulator reused too early"
    k.stamp("a1 end")
P.a1_flag_gap, P.a1_late_gap, P.a1_poll_lead, P.l1_flag_delay, P.a1_over = 8, 36, 18, 14, 48
P.a1_bg_early = False; P.a1_salead = 8; P.a1_tailhold = True; P.touch1 = 1; P.t1_a1 = ''; P.t1_dn = ''; P.a1_xgap = 3; P.a1_sth = 4
P.per_a1 = {"s2": 80, "s4": 50}

R_W0, R_W1, R_RD, R_ST, R_OUT = 3, 4, 5, 6, 7
def red_setup(k, posA, dAB):
    x, y, z, u = 28, 29, 30, 31
    k.e(f"s_add_u32 s32, s{sGL}, {posA*16384}", f"v_add_u32 v{R_W0}, s32, v{vL16}", f"v_xor_b32 v{R_W1}, 128, v{R_W0}")
    k.e(f"v_and_b32 v{x}, 7, v1", f"v_lshrrev_b32 v{y}, 3, v1", f"s_lshl_b32 s32, s{sW}, 7", f"v_lshl_add_u32 v{z}, v{x}, 4, s32",
        f"v_bfe_u32 v{u}, v1, 4, 1", f"v_lshlrev_b32 v{R_RD}, 7, v{u}", f"v_xor_b32 v{z}, v{z}, v{R_RD}",
        f"v_bfe_u32 v{R_RD}, v1, 3, 2", f"v_lshl_add_u32 v{z}, v{R_RD}, 10, v{z}", f"v_lshrrev_b32 v{R_RD}, 5, v1",
        f"v_mul_u32_u24 v{R_RD}, {dAB*16384}, v{R_RD}", f"v_add_u32 v{z}, v{z}, v{R_RD}", f"v_add_u32 v{R_RD}, {posA*16384}, v{z}")
    k.e(f"v_lshlrev_b32 v{z}, 4, v{x}", f"v_lshl_add_u32 v{z}, v{u}, 2, v{z}", f"v_and_b32 v{u}, 0x28, v1",
        f"v_cmp_eq_u32 vcc, 0, v{u}", f"v_mov_b32 v{u}, {OOB:#x}", f"v_cndmask_b32 v{R_ST}, v{u}, v{z}, vcc")
    k.e(f"v_lshlrev_b32 v{z}, 10, v{x}", f"v_lshl_add_u32 v{R_OUT}, v{y}, 4, v{z}")

def red_bases(k):
    k.e(f"s_lshl_b32 s32, s{sB}, 3", f"s_add_u32 s32, s32, s{sW}", "s_lshl_b32 s55, s32, 13", f"s_lshl_b32 s33, s{sCS}, 10", "s_add_u32 s55, s55, s33")
    k.e("s_lshl_b32 s57, s32, 13", f"s_lshl_b32 s33, s{sCS}, 7", "s_add_u32 s57, s57, s33")
    k.e(f"s_lshl_b32 s56, s{sB}, 12", f"s_lshr_b32 s33, s{sCS}, 1", "s_lshl_b32 s33, s33, 9", "s_add_u32 s56, s56, s33",
        f"s_and_b32 s33, s{sCS}, 1", "s_lshl_b32 s33, s33, 3", "s_add_u32 s56, s56, s33", f"s_lshl_b32 s33, s{sW}, 7", "s_add_u32 s56, s56, s33")

def red_writes(k, acc, g, off, dAB):
    return [lambda q=q: k.ds(f"ds_write_b128 v{R_W1 if (q>>1)&1 else R_W0}, {vr(acc+4*q,4)} offset:{off + (q>>2)*dAB*16384 + (q&3)*1024}", ("rw", g)) for q in range(8)]
def red_reads(k, g, T, off):
    return [lambda w=w, hf=hf: k.ds(f"ds_read_b128 {vr(T+8*w+4*hf,4)}, v{R_RD} offset:{off + w*4096 + hf*512}", ("rr", g, w)) for w in range(4) for hf in range(2)]

def red_finish(k, fx, g, mm, T, xdst, stdst, final, pk):
    a = lambda txt, c=1: fx.add(lambda: k.e(txt), c)
    R = RES + 4 * mm
    def add8(d, s):
        if pk:
            for i in range(0, 8, 2): a(f"v_pk_add_f32 {vr(d+i,2)}, {vr(d+i,2)}, {vr(s+i,2)}")
        else:
            for i in range(8): a(f"v_add_f32 v{d+i}, v{d+i}, v{s+i}")
    fx.add(lambda: k.wait(lg=[("rr", g, 1)]))
    add8(T, T + 8)
    for i in range(4): a(f"v_lshlrev_b32 v{T+8+2*i}, 16, v{R+i}"); a(f"v_and_b32 v{T+9+2*i}, 0xffff0000, v{R+i}")
    add8(T, T + 8)
    fx.add(lambda: k.wait(lg=[("rr", g, 3)]))
    add8(T + 16, T + 24); add8(T, T + 16)
    for i in range(4): a(f"v_cvt_pk_bf16_f32 v{R+i}, v{T+2*i}, v{T+2*i+1}")
    if final:
        fx.add(lambda: (k.e(f"s_add_u32 s32, s57, {mm*32768}"), k.vm(f"buffer_store_dwordx4 {vr(R,4)}, v{R_OUT}, {SRD_OUT}, s32 offen {P.outm[g]}", ("xst", g))))
        return
    fx.add(lambda: (k.e(f"s_add_u32 s32, s55, {xdst + mm*32768}"), k.dstore(f"buffer_store_dwordx4 {vr(R,4)}, v{vL16}, {SRD_WS}, s32 offen", ("xst", g))), 2)
    s, q = T + 32, T + 33
    a(f"v_add_f32 v{s}, v{T}, v{T+1}"); a(f"v_mul_f32 v{q}, v{T}, v{T}"); a(f"v_fmac_f32 v{q}, v{T+1}, v{T+1}")
    for i in range(2, 8): a(f"v_add_f32 v{s}, v{s}, v{T+i}"); a(f"v_fmac_f32 v{q}, v{T+i}, v{T+i}")
    fx.skip(1)
    a(f"v_add_f32_dpp v{s}, v{s}, v{s} row_ror:8 row_mask:0xf bank_mask:0xf"); a(f"v_add_f32_dpp v{q}, v{q}, v{q} row_ror:8 row_mask:0xf bank_mask:0xf")
    fx.skip(1)
    a(f"v_permlane16_swap_b32 v{s}, v{q}", 2); a(f"v_add_f32 v{s}, v{s}, v{q}"); a(f"v_mov_b32 v{q}, v{s}"); fx.skip(1)
    a(f"v_permlane32_swap_b32 v{s}, v{q}", 2); a(f"v_add_f32 v{s}, v{s}, v{q}")
    fx.add(lambda: (k.e(f"s_add_u32 s32, s56, {stdst + mm*2048}"), k.dstore(f"buffer_store_dword v{s}, v{R_ST}, {SRD_WS}, s32 offen", ("xst", g)), k.mark(("xst", g))), 2)

def merge(k, fx, extra, first=0):
    extra = list(extra)
    items = [it for it in fx.items if it[0] != "skip"]; fx.items = []
    per = max(1, (len(items) - first) // max(1, len(extra)))
    for n, it in enumerate(items):
        if n >= first and (n - first) % per == 0 and extra: extra.pop(0)()
        it[1](); k.bg_step()
    for f in extra: f(); k.bg_step()

def wo(k, layer):
    BF, WQ, ACC, T, PA, NQ = 32, 160, 192, 208, A_PA, 8
    state = {}
    def bload(sx):
        k.set_s(f"s_add_u32 s58, s59, {(sx & ~1)*2048}")
        k.vm(f"buffer_load_dwordx4 {vr(BF+4*sx,4)}, v{W_OA}, {SRD_WS}, s58 offen offset:{(sx%2)*2048} sc1", ("b", sx))
    def wread(n): k.ds(f"ds_read_b128 {vr(WQ+4*(n%NQ),4)}, v{W_RB} offset:{n*1024}", ("wq", n))
    k.wait(vm=["wow"]); k.e("s_barrier"); k.mark("wobar")
    k.stamp("wl bar")
    for n in range(NQ): wread(n)
    btxt = lambda sx: [f"s_add_u32 s99, s59, {sx*2048}", f"buffer_load_dwordx4 {vr(BF+4*sx,4)}, v{W_OA}, {SRD_WS}, s99 offen sc1"]
    bchk = lambda sx: k.valid([f"v_cmp_eq_u32 vcc, -1, v{BF+4*sx}"], btxt(sx))
    ptxt = f"buffer_load_dword v{T+20}, v{T+21}, {SRD_WS}, s59 offen sc1"
    if P.tags:
        k.e(f"v_lshlrev_b32 v{T+21}, 8, v{PA}")
        k.e(f"v_or_b32 v{T+21}, v{T+21}, v{PA}", f"v_and_b32 v{T+21}, 0x80007c00, v{T+21}")
        k.poll_check(PA, "po1", 1)
        k.vm(ptxt, "probe")
        for sx in range(P.wo_spec): bload(sx)
        k.e(f"s_lshl_b32 s32, s{sC}, 1", f"s_and_b32 s33, s{sW}, 1", "s_add_u32 s32, s32, s33", "s_lshl_b32 s32, s32, 7", f"s_add_u32 s{sPO}, s32, {fl(layer, FL_O)}")
    else:
        k.e(f"s_add_u32 s{sFO}, s66, {fl(layer, FL_X1)}")
        if P.wo_setup_first == 2: gu_setup(k, layer)
        k.wait(vm=[("ost", 0)]); k.stamp("wl ack"); k.flag(2, 89)
        k.e(f"s_cmp_lt_u32 s{sW}, 2", f"s_cbranch_scc1 L_wo_late{layer}")
        q0 = list(k.vmq)
        k.poll_check(PA, "po1", 1)
        for sx in range(P.wo_lead): bload(sx)
        if P.wo_setup_first == 1: gu_setup(k, layer)
        k.e(f"s_branch L_wo_join{layer}")
        k.label(f"L_wo_late{layer}")
        k.vmq = list(q0)
        if P.wo_setup_first == 1: gu_setup(k, layer)
        k.poll_issue(PA, "po2"); k.poll_wait(PA, "po2", 2, 157); k.stamp("wl go")
        for sx in range(P.wo_lead): bload(sx)
        k.label(f"L_wo_join{layer}")
    if P.tags or not P.wo_setup_first: gu_setup(k, layer)
    k.stamp("wo issued")
    mains = []; fixed = {}
    for n in range(64):
        sx, j = divmod(n, 4)
        mains.append(lambda n=n, sx=sx, j=j: k.e(f"{MF16} {vr(ACC+4*j,4)}, {vr(WQ+4*(n%NQ),4)}, {vr(BF+4*sx,4)}, {'0' if sx == 0 else vr(ACC+4*j,4)}"))
        fl_ = fixed.setdefault(n, [])
        if n < 63: fl_.append((0, lambda n=n: k.wait(vm=[("b", (n + 1) // 4)] if (n + 1) % 4 == 0 else None, lg=[("wq", n + 1)])))
        if P.tags and n < 63 and (n + 1) % 4 == 0: fl_.append((1, lambda n=n: bchk((n + 1) // 4)))
        if P.tags and n == 42: fl_.append((1, lambda: k.poll_issue(PA, "px1")))
        if n + NQ < 64: fl_.append((1, lambda n=n: wread(n + NQ)))
        if n % P.wo_bstep == 0 and P.wo_lead + n // P.wo_bstep < 16: fl_.append((1, lambda n=n: bload(P.wo_lead + n // P.wo_bstep)))
    fx = Flex()
    a = lambda txt, c=1, at=0: fx.add(lambda: k.e(txt), c, at)
    fx.add(lambda: k.wait(vm=["res"]), 1, 8)
    for i in range(8): a(f"v_lshlrev_b32 v{T+2*i}, 16, v{RES+i}"); a(f"v_and_b32 v{T+2*i+1}, 0xffff0000, v{RES+i}")
    k.per = dict(P.per_wo[layer]); k.bg_held = False; k.bg_next = k.t + P.wo_bg_delay
    if P.tags:
        k.wait(vm=["probe"])
        k.valid([f"v_cmp_eq_u32 vcc, -1, v{T+20}"], [ptxt] + sum([btxt(x) for x in range(P.wo_spec)], []))
        state["fresh"] = True
        for sx in range(P.wo_spec, P.wo_lead): bload(sx)
    k.wait(vm=[("b", 0)], lg=[("wq", 0)])
    if P.tags: bchk(0)
    k.stamp("wo first")
    fixed[P.wo_bg_stop].append((0, lambda: setattr(k, "bg_held", True)))
    run_gaps(k, mains, fixed, [fx], 2)
    drain([fx], k)
    k.stamp("wo gemm")
    for i in range(0, 16, 2): k.e(f"v_pk_add_f32 {vr(T+i,2)}, {vr(T+i,2)}, {vr(ACC+i,2)}")
    k.e(f"s_add_u32 s58, s64, {BX1[layer]}")
    for p in range(2):
        for i in range(4): k.e(f"v_cvt_pk_bf16_f32 v{RES+4*p+i}, v{T+8*p+2*i}, v{T+8*p+2*i+1}")
        k.dstore(f"buffer_store_dwordx4 {vr(RES+4*p,4)}, v{W_UA}, {SRD_WS}, s58 offen offset:{p*512}", "xst")
    S, Q = T + 16, T + 18
    k.e(f"v_pk_add_f32 {vr(S,2)}, {vr(T,2)}, {vr(T+2,2)}", f"v_pk_mul_f32 {vr(Q,2)}, {vr(T,2)}, {vr(T,2)}", f"v_pk_fma_f32 {vr(Q,2)}, {vr(T+2,2)}, {vr(T+2,2)}, {vr(Q,2)}")
    for i in range(4, 16, 2): k.e(f"v_pk_add_f32 {vr(S,2)}, {vr(S,2)}, {vr(T+i,2)}", f"v_pk_fma_f32 {vr(Q,2)}, {vr(T+i,2)}, {vr(T+i,2)}, {vr(Q,2)}")
    k.e(f"v_add_f32 v{S}, v{S}, v{S+1}", f"v_add_f32 v{Q}, v{Q}, v{Q+1}", f"s_add_u32 s58, s65, {BS1[layer]}",
        f"v_permlane16_swap_b32 v{S}, v{Q}", f"v_add_f32 v{S}, v{S}, v{Q}", f"v_mov_b32 v{Q}, v{S}", f"v_permlane32_swap_b32 v{S}, v{Q}", f"v_add_f32 v{S}, v{S}, v{Q}")
    k.dstore(f"buffer_store_dword v{S}, v{W_SA}, {SRD_WS}, s58 offen", "xst")
    key = lambda it: it[2][1] if (isinstance(it[2], tuple) and it[2][0] == "gw") else 11.5
    k.bg.sort(key=key)
    print(f"wo{layer} done, background left:", [it[2] for it in k.bg][::4])
    k.bg_burst(P.wo_win[layer])
    k.stamp("wo end")
P.wo_bg_delay = 750; P.wo_bg_stop = 63; P.wo_lead = 6; P.wo_spec = 3; P.gu_spec = 3; P.wo_bstep = 2
P.wo_poll_gap = 1; P.wo_late_gap = 7; P.wo_hold = True; P.wo_win = [4, 4]; P.wo_var = 'B'; P.wo_prew = 2
P.per_wo = [{"s2": 20, "s4": 20}] * 2

G_RB, G_C1, G_VV, G_AUG, G_X, G_ACC, G_WF, G_T = 3, 6, 7, 28, 32, 160, 224, 240
D_WV, D_BF, D_ACC, D_T, D_WF, D_RB, D_PA = 32, 64, 128, 192, 228, 112, 115
DN_SEQ = [(g, e) for g in range(2) for e in range(28)]
DN_GROUPS = [1, 0]
def h_loader(k, layer):
    def bload(i):
        if i == 0:
            k.e(f"s_mul_i32 s32, s{sB}, {224*KB}", f"s_mul_i32 s33, s{sW}, {28*KB}", "s_add_u32 s32, s32, s33", f"s_add_u32 s59, s32, {BH[layer]}")
            for p in range(4):
                k.e(f"s_add_u32 s32, s{sCS}, {p}", f"s_and_b32 s32, s32, {3 if P.hrot else 0}", f"s_mul_i32 s32, s32, {7*KB}", f"s_add_u32 s{34+p}, s59, s32")
                if not P.hrot: k.e(f"s_add_u32 s{34+p}, s{34+p}, {7*KB*p}")
        g, e = DN_SEQ[i]; p, tl = divmod(KK_OF[e], 7)
        k.set_s(f"s_add_u32 s58, s{34+p}, {DN_GROUPS[g] * 112 * KB + (tl & 4) * 1024}")
        k.vm(f"buffer_load_dwordx4 {vr(D_BF+4*(i%P.dn_lead),4)}, v{vL16}, {SRD_WS}, s58 offen offset:{(tl & 3)*1024} sc1", ("b", i))
    return bload

def gu_setup(k, layer):
    T = G_T; XA = T + 3
    k.e(*gu_tile("s50"))
    k.e(f"v_and_b32 v{T}, 31, v1")
    k.e(f"v_mov_b32 v{G_RB}, v{vL16}", f"v_add_u32 v{G_RB+1}, 0x10000, v{vL16}", f"v_add_u32 v{G_RB+2}, 0x20000, v{vL16}")
    k.e(f"v_lshrrev_b32 v{T+1}, 5, v1", f"v_lshlrev_b32 v{G_AUG+3}, 4, v{T}", f"v_lshl_add_u32 v{G_AUG+3}, v{T+1}, 10, v{G_AUG+3}")
    k.e(f"v_lshrrev_b32 v{XA}, 3, v{T}", f"v_lshlrev_b32 v{XA}, 13, v{XA}", f"v_lshl_add_u32 v{XA}, v{T+1}, 7, v{XA}",
        f"v_and_b32 v{T}, 7, v1", f"v_lshl_add_u32 v{XA}, v{T}, 4, v{XA}")
    k.e("s_lshl_b32 s32, s50, 11", f"s_add_u32 s51, s32, {BS1[layer]}")
    k.e("s_lshl_b32 s32, s50, 15", f"s_add_u32 s52, s32, {BX1[layer]}", "s_add_u32 s53, s52, 4096")
    k.e(*h_base("s54", layer))
    k.e("s_lshr_b32 s32, s50, 1", "s_lshl_b32 s32, s32, 4", f"s_add_u32 s32, s32, s{sM}",
        "s_lshl_b32 s32, s32, 1", "s_and_b32 s33, s50, 1", "s_add_u32 s32, s32, s33", "s_lshl_b32 s32, s32, 2", f"s_add_u32 s81, s32, {fl(layer, FL_H)}")

def gu(k, layer):
    T = G_T; XA = T + 3; PA = T + 2
    if P.tags: k.poll_check(A_PA, "px1", 1)
    else:
        def pa():
            k.poll_addr(PA, 16)
            k.e("s_lshl_b32 s32, s50, 6", f"s_add_u32 s{sPO}, s32, {fl(layer, FL_X1)}")
        if not P.gu_pa_late: pa()
        k.wait(vm=["xst"]); k.flag(1)
        if P.gu_pa_late: pa()
        k.stamp("x1 flag")
        if not P.gu_bar_first: k.poll_issue(PA, "px1")
    k.e(f"s_mov_b32 s{sFO}, s81")
    seq = [(t, ks) for ks in range(33) for t in range(3)] + [(t, ks) for t in range(3, 7) for ks in range(33)]
    accof = {0: 0, 1: 1, 2: 2, 3: 3, 4: 0, 5: 1, 6: 2}
    NW = P.gu_nw
    WQ = [G_WF, G_WF + 4, G_WF + 8, G_WF + 12, T + 12]
    def wread(n):
        slot = (n % 160) * 1024
        k.ds(f"ds_read_b128 {vr(WQ[n%NW],4)}, v{G_RB + (slot>>16)} offset:{slot & 0xffff}", ("wf", n))
    BARS = P.gu_bars[layer]
    cover = lambda bi: [("gw", b) for b in range(bi, min([x for x in BARS if x > bi] + [15]))]
    def ringbar():
        k.wait(vm=cover(0)); k.e("s_barrier"); k.mark("gubar")
        for n in range(NW): wread(n)
    if P.gu_bar_first: ringbar(); k.poll_issue(PA, "px1")
    if not P.tags: k.poll_wait(PA, "px1", 1, 20)
    k.stamp("gu go")
    xtxt = lambda kg: f"buffer_load_dwordx4 {vr(G_X+4*kg,4)}, v{XA}, {SRD_WS}, s{52 + (kg>>4)} offen offset:{((kg>>2)&3)*1024 + (kg&3)*256} sc1"
    def xload(kg): k.vm(xtxt(kg), ("gx", kg))
    xchk = lambda kg: k.valid([f"v_cmp_eq_u32 vcc, -1, v{G_X+4*kg}"], [xtxt(kg)])
    stxt = [f"buffer_load_dwordx4 {vr(T+4+4*h,4)}, v{G_AUG+3}, {SRD_WS}, s51 offen offset:{512*h} sc1" for h in range(2)]
    if P.tags:
        for t_ in stxt: k.vm(t_, "gst")
        for kg in range(P.gu_spec): xload(kg)
        k.wait(vm=["gst"])
        k.valid([f"v_max3_u32 v{T}, v{T+4}, v{T+6}, v{T+8}", f"v_max_u32 v{T}, v{T}, v{T+10}", f"v_cmp_eq_u32 vcc, -1, v{T}"],
                stxt + [xtxt(x) for x in range(P.gu_spec)])
        k.stamp("gu probe")
        for kg in range(P.gu_spec, P.gu_lead): xload(kg)
    else:
        for kg in range(P.gu_lead): xload(kg)
        for t_ in stxt: k.vm(t_, "gst")
    if not P.gu_bar_first: ringbar()
    mains = []; fixed = {}
    xpos = {}
    for kg in range(P.gu_lead, 32): xpos.setdefault(int((kg - P.gu_lead) * P.gu_xstep), []).append(kg)
    for n, (t, ks) in enumerate(seq):
        acc = G_ACC + 16 * accof[t]
        b = vr(G_AUG, 4) if ks == 32 else vr(G_X + 4*ks, 4)
        c = "0" if ks == 0 else vr(acc, 16)
        mains.append(lambda n=n, acc=acc, b=b, c=c: k.e(f"{MF32} {vr(acc,16)}, {vr(WQ[n%NW],4)}, {b}, {c}"))
        fl_ = fixed.setdefault(n, [])
        if n + 1 < len(seq):
            t2, ks2 = seq[n + 1]
            need = [("gx", ks2)] if (t2 == 0 and ks2 < 32) else None
            fl_.append((0, lambda n=n, need=need: k.wait(vm=need, lg=[("wf", n + 1)])))
            if need and P.tags: fl_.append((2, lambda ks2=ks2: xchk(ks2)))
        j = n + NW
        if j < len(seq):
            if j % 16 == 0 and j // 16 in BARS:
                fl_.append((2, lambda bi=j//16: (k.wait(vm=cover(bi)), k.e("s_barrier"), [k.mark(("gbar", b)) for b in range(bi + 1)])))
            fl_.append((1, lambda j=j: wread(j)))
        for kg in xpos.get(n, []): fl_.append((1, lambda kg=kg: xload(kg)))
    xend = max(xpos)
    tail = [it for it in k.bg if it[2] == "dna" or it[2][0] == "dnr"]; k.bg = [it for it in k.bg if not (it[2] == "dna" or it[2][0] == "dnr")]
    bg_batches(k, [10, 11], "s2", lambda b: ("gbar", b - 8))
    mid = []
    for b in (12, 13, 14):
        for f in batch(k, b): mid.append((f, "s2", ("gw", b), ("gbar", b - 8)))
    while mid or tail:
        if mid: k.bg.append(mid.pop(0))
        if tail: k.bg.append(tail.pop(0))
    direct = layer == 1 and P.dn1_agpr
    if not direct: bg_batches(k, range(15, 23), "s4", lambda b: ("gbar", b - 8))
    k.per = dict(P.per_guA[layer]); k.bg_held = False; k.bg_next = k.t + P.gu_bg_delay
    fixed[xend].append((0, lambda: setattr(k, "per", dict(P.per_guB[layer]))))
    fv = Flex()
    dv = regloads(k, sDS, 48*1024, lambda j: vr(D_WV + 4*j, 4), 8, "dnv")
    k.hload = h_loader(k, layer)
    if direct: pass
    elif P.hpre:
        bg_list(k, dv, "s4", "dnv", "xdead")
        fixed[207].append((0, lambda: k.mark("xdead")))
    else:
        for j, f in enumerate(dv): fv.add(f, 1, 198 + 2 + 3*j)
    fx = Flex()
    a = lambda txt, c=1, at=0: fx.add(lambda: k.e(txt), c, at)
    fx.add(lambda: k.wait(vm=["gst"]), 1, 3 * P.gu_lead)
    a(f"v_add_f32 v{T+4}, v{T+4}, v{T+6}"); a(f"v_add_f32 v{T+5}, v{T+5}, v{T+7}"); a(f"v_add_f32 v{T+8}, v{T+8}, v{T+10}"); a(f"v_add_f32 v{T+9}, v{T+9}, v{T+11}")
    a(f"v_add_f32 v{T+4}, v{T+4}, v{T+8}"); a(f"v_add_f32 v{T+5}, v{T+5}, v{T+9}"); fx.skip(1)
    a(f"v_permlane32_swap_b32 v{T+4}, v{T+5}", 2); a(f"v_add_f32 v{T+4}, v{T+4}, v{T+5}"); a(f"v_mov_b32 v{T+5}, v{T+4}"); fx.skip(1)
    a(f"v_permlane32_swap_b32 v{T+4}, v{T+5}", 2)
    ln_finish(a, T + 4, T + 5)
    a(f"v_mov_b32 v{G_VV}, v{T+5}")
    a(f"v_rsq_f32 v{G_C1}, v{T+5}", 2); a(f"v_cvt_pk_bf16_f32 v{G_AUG}, v{T+4}, v{T+4}"); a(f"v_mul_f32 v{G_C1}, {f2u(-LOG2E):#x}, v{G_C1}")
    a(f"v_and_b32 v{T+5}, 0xffff0000, v{G_AUG}"); a(f"v_sub_f32 v{T+5}, v{T+4}, v{T+5}"); a(f"v_mov_b32 v{G_AUG+2}, 0")
    a(f"v_cvt_pk_bf16_f32 v{G_AUG+1}, v{T+5}, v{G_AUG+2}"); a(f"v_mov_b32 v{G_AUG+3}, 0")
    fx.add(lambda: k.mark("aug"), 0)
    def epi(t, at):
        acc = G_ACC + 16 * accof[t]; hp = T + 8; E = T + 4
        if P.x_noepi: a("s_nop 0", 1, at)
        for i0 in range(0, 8 if not P.x_noepi else 0, 2):
            for i in (i0, i0 + 1): a(f"v_mul_f32 v{E+(i&1)}, v{G_C1}, v{acc+i}", 1, at)
            for i in (i0, i0 + 1): a(f"v_exp_f32 v{E+(i&1)}, v{E+(i&1)}", 2)
            for i in (i0, i0 + 1): a(f"v_mul_f32 v{E+2+(i&1)}, v{acc+i}, v{acc+8+i}")
            for i in (i0, i0 + 1): a(f"v_fma_f32 v{E+(i&1)}, v{E+(i&1)}, v{G_VV}, v{G_VV}")
            for i in (i0, i0 + 1): a(f"v_rcp_f32 v{E+(i&1)}, v{E+(i&1)}", 2)
            fx.skip(1)
            for i in (i0, i0 + 1): a(f"v_mul_f32 v{E+2+(i&1)}, v{E+2+(i&1)}, v{E+(i&1)}")
            a(f"v_cvt_pk_bf16_f32 v{hp+i0//2}, v{E+2}, v{E+3}")
        fx.add(lambda: k.mark(("epi", t)), 0)
        if t == 4: a("s_add_u32 s54, s54, 4096")
        fx.add(lambda: ((k.dstore if ((layer and P.h1_plain) or (not layer and P.h_touch0)) else lambda x, tg: k.vm(x + " sc1", tg))(f"buffer_store_dwordx4 {vr(hp,4)}, v{vL16}, {SRD_WS}, s54 offen offset:{(t%4)*1024}", ("hst", t)), k.mark(("hst", t))), 2)
    end = {t: max(n for n, x in enumerate(seq) if x[0] == t) for t in range(7)}
    for t in range(6): epi(t, end[t] + 3)
    if layer == 0 and P.h_touch0 == "g": fixed[xend + 1].append((5, lambda: k.touch(T, "h", ["s_mov_b32 s32, s54"])))
    if layer == 1 and P.x1_clean:
        for p in range(2):
            fixed[P.x1_clean + 8*p].append((3, lambda p=p: (k.e(f"s_add_u32 s58, s64, {BX1[1]}"),
                k.vm(f"buffer_store_dwordx4 {vr(RES+4*p,4)}, v9999, {SRD_WS}, s58 offen offset:{p*512} sc1", "clean"))))
    ff = Flex(); ff.dep(("hst", 3))
    if layer == 0:
        tx = [lambda: k.touch(T, "p", [f"s_add_u32 s32, s55, {BX2()}"]), lambda: k.touch(T + 1, "s", [f"s_add_u32 s32, s56, {BS2()}"])]
        if P.x2_touch == "h3": ff.add(tx[0], 6); ff.add(tx[1], 4)
        elif isinstance(P.x2_touch, int): fixed[P.x2_touch].append((5, tx[0])); fixed[P.x2_touch + 1].append((4, tx[1]))
        if "g" in str(P.touch1):
            for f in touch_next(k, T + 2)[:2]: ff.skip(1); ff.add(f, 6)
    ff.skip(P.gu_flag_delay)
    ff.add(lambda: (k.wait(vm=[("hst", 3)]), k.flag(1)), 3)
    def hpoll():
        k.wait(vm=["touch"] if "touch" in k.seen else None)
        k.poll_addr(T, 8)
        k.e(f"s_lshl_b32 s32, s{sB}, 7", f"s_lshl_b32 s33, s{sW}, 5", "s_add_u32 s32, s32, s33", f"s_add_u32 s{sPO}, s32, {fl(layer, FL_H)}")
        k.poll_issue(T, "ph1")
    if P.hpre:
        ff.add(hpoll, 4, P.hp_chk - 12)
        ff.add(lambda: (k.poll_check(T, "ph1", 1), setattr(k, "bg_held", True)), 3, P.hp_chk)
        for j in range(P.hpre): ff.add(lambda j=j: k.hload(j), 2, max(208 + j, int(P.hp_chk + 1 + j * P.hp_step)))
    else: ff.add(hpoll, 4, 228)
    k.wait(vm=[("gx", 0)], lg=[("wf", 0)])
    if P.tags: xchk(0)
    k.stamp("gu first")
    if k.stamping:
        for g in (48, 98, 131, 164, 197): fixed[g].append((0, lambda g=g: k.stamp(f"gu m{g}")))
    fixed[93].append((0, lambda: k.marks["aug"]))
    run_gaps(k, mains, fixed, [fv, ff, fx], P.gu_cap)
    print("gu left:", len(k.bg), len(fv), len(ff), len(fx), {n: g for n, g in k.marks.items() if isinstance(n, tuple) and n[0] == "hst"})
    k.stamp("gu gemm")
    for g, t in {132: 0, 165: 1, 198: 2}.items(): assert k.marks[("epi", t)] < g, "accumulator reused too early"
    epi(6, 0); drain([ff, fv, fx], k)
    k.e(f"v_mov_b32 v{D_PA}, v{T}")
    k.stamp("gu end")
P.x2_touch = None; P.dn_x2 = 2; P.hrot = 0; P.gu_bars = [list(range(15)), [0, 3, 6, 9, 12]]; P.hpre = 0; P.hp_chk = 208; P.hp_step = 2.2; P.gu_flag_delay = 10; P.gu_xstep = 2.6; P.gu_bg_delay = 300
P.per_guA = [{"s2": 120, "s4": 120}, {"s2": 160, "s4": 160}]
P.per_guB = [{"s2": 90, "s4": 55}, {"s2": 80, "s4": 50}]

def dn(k, layer):
    final = layer == 1
    NB = P.dn_lead; T = D_T
    groups = DN_GROUPS; seq = DN_SEQ; bload = k.hload
    early = Flex()
    def rb(): k.e(f"v_add_u32 v{D_RB}, s{sGL}, v{vL16}", f"v_add_u32 v{D_RB+1}, 0x10000, v{D_RB}", f"v_add_u32 v{D_RB+2}, 0x20000, v{D_RB}")
    if P.hpre:
        for i in range(P.hpre, NB): bload(i)
        rb()
        class Rec:
            def e(self, *t):
                if any("vcc" in x or "s32" in x for x in t): early.add(lambda: k.e(*t), len(t))
                else:
                    for x in t: early.add(lambda x=x: k.e(x))
        red_setup(Rec(), 3, 1)
        early.add(lambda: (k.wait(vm=[("hst", 6)]), k.flag(2), k.poll_issue(D_PA, "ph2"), k.e(f"s_add_u32 s{sFO}, s89, {FL_X2 - FL_O}")), 5, P.dn_fgap)
    else:
        k.poll_check(D_PA, "ph1", 1)
        k.stamp("dn early")
        k.bg_held = True
        for i in range(P.dn_pre): bload(i)
        red_setup(k, 3, 1); rb()
        k.wait(vm=[("hst", 6)]); k.flag(2)
        if P.dn_pollstep is None: k.poll_issue(D_PA, "ph2")
        for i in range(P.dn_pre, NB): bload(i)
        k.e(f"s_add_u32 s{sFO}, s89, {FL_X2 - FL_O}")
    k.per = dict(P.per_dn0); k.bg_held = False
    direct = final and P.dn1_agpr
    lds = [(i, nn) for i, (g, e) in enumerate(seq) if 8 <= e < 24 and not direct for nn in range(2)]
    slot_of = {x: n for n, x in enumerate(lds)}
    NWF = 6
    def wread(n):
        i, nn = lds[n]; j = 2 * (seq[i][1] - 8) + nn; b = 15 + (j >> 2)
        ad = (b % 10) * 16384 + (j & 3) * 1024
        if seq[i][0] == 0: k.wait(vm=[("gw", b)])
        k.ds(f"ds_read_b128 {vr(D_WF+4*(n%NWF),4)}, v{D_RB + (ad>>16)} offset:{ad & 0xffff}", ("wf", n))
    def wfrag(i, nn):
        e = seq[i][1]
        if e < 8: return ar(192 + 8*e + 4*nn, 4)
        if direct: return ar(8*(e - 8) + 4*nn, 4)
        if e >= 24: return vr(D_WV + 8*(e - 24) + 4*nn, 4)
        return vr(D_WF + 4*(slot_of[(i, nn)] % NWF), 4)
    mains = []; fixed = {}
    NT = P.dn_tail
    assert NT <= 4
    order = [(i, nn) for i in range(56 - NT) for nn in range(2)] + [(i, nn) for nn in range(2) for i in range(56 - NT, 56)]
    for pos, (i, nn) in enumerate(order):
        g, e = seq[i]
        if True:
            acc = D_ACC + 32 * g + 16 * nn
            mains.append(lambda i=i, nn=nn, acc=acc, e=e: k.e(f"{MF32} {vr(acc,16)}, {wfrag(i,nn)}, {vr(D_BF+4*(i%NB),4)}, {'0' if e == 0 else vr(acc,16)}"))
            gp = len(mains) - 1; fl_ = fixed.setdefault(gp, [])
            nx = order[pos + 1] if pos + 1 < len(order) else None
            vmn = [("b", nx[0])] if (nx and nx[1] == 0) else None
            lgn = [("wf", slot_of[nx])] if nx in slot_of else None
            if nx == (24, 0) and not direct: vmn = vmn + ["dnv"]
            if direct and nx and nx[0] in range(8, 28) and nx[1] == 0: vmn = vmn + [("dnr", nx[0])]
            fl_.append((0, lambda vmn=vmn, lgn=lgn: k.wait(vm=vmn, lg=lgn)))
            ah = (i + 2, nn)
            if ah in slot_of: fl_.append((1, lambda n=slot_of[ah]: wread(n)))
    nxt = NB; pend = 0
    for i in range(len(seq)):
        fl_ = fixed[2*i + 1]
        if i == P.dn_late: fl_.append((2, lambda: (k.poll_check(D_PA, "ph2", 2), k.stamp("dn late"), k.mark("late"))))
        n = 0
        while nxt < len(seq) and nxt <= i + NB and n < 2 and (nxt < 16 or i >= P.dn_late):
            fl_.append((1, lambda j=nxt: bload(j))); nxt += 1; n += 1
        if i == P.dn_pollstep and not P.hpre: fl_.append((1, lambda: k.poll_issue(D_PA, "ph2")))
        if nxt == len(seq) and not pend: pend = 2*i + 2
    fixed[20].append((1, lambda: k.e("s_barrier")))
    for mm in range(2):
        fixed[40 + 4*mm].append((2, lambda mm=mm: (k.e(f"s_add_u32 s32, s55, {BX1[layer] + mm*32768}"),
                                                   k.vm(f"buffer_load_dwordx4 {vr(RES+4*mm,4)}, v{vL16}, {SRD_WS}, s32 offen sc1", "res"))))
    fw = Flex(); fs = Flex()
    for q, f in enumerate(red_writes(k, D_ACC, 0, 0, 1)): fw.add(f, 1, 58 + 2*q)
    fw.add(lambda: (k.wait(lg=[("rw", 0)]), k.e("s_barrier")), 2, 76)
    for f in red_reads(k, 0, T, 0): fw.add(f, 2)
    fw.add(lambda: k.wait(vm=["res"]))
    red_finish(k, fw, 0, groups[0], T, BX2(), BS2(), final, False)
    if not final:
        fw.add(lambda: k.vm(f"buffer_store_dwordx4 {vr(RES+4,4)}, v{vL16}, {SRD_WS}, s72 offen sc1", "hxs"))
        fw.add(lambda: k.vm(f"buffer_store_dword v{T+32}, v{R_ST}, {SRD_WS}, s73 offen sc1", "hxs"))
        fw.skip(P.dn_flag_delay); fw.add(lambda: (k.wait(vm=[("xst", 0)]), k.flag(1)), 3)
        if P.x2_touch == "dn":
            fixed[P.dn_x2].append((5, lambda: k.touch(226, "p", [f"s_add_u32 s32, s55, {BX2()}"])))
            fixed[P.dn_x2 + 1].append((4, lambda: k.touch(227, "s", [f"s_add_u32 s32, s56, {BS2()}"])))
            fs.add(lambda: k.wait(vm=["touch"]), 1, P.dn_x2 + 2)
        for q, c in enumerate(P.t1_dn): fixed[P.dn_touch + 2*q].append((5, touch_next(k, 28)["oxs".index(c)]))
        fs.dep("late")
        for f in a11_bases(k) + a1_setup(k, 1): fs.add(f)
        fs.add(lambda: (k.poll_addr(A_PX, 32), k.e(f"s_lshl_b32 s32, s{sB}, 7", f"s_add_u32 s{sPO}, s32, {fl(0, FL_X2)}")), 4)
    wtail = red_writes(k, D_ACC + 32, 1, 2*16384, 1)
    if NT:
        for q in range(min(4, NT)): fixed[min(111, 112 - NT + 1 + q)].append((4, wtail.pop(0)))
    k.wait(vm=["dna", ("b", 0)])
    k.stamp("dn first")
    if k.stamping:
        fixed[55].append((0, lambda: k.stamp("dn p1")))
        for g in range(7, 111, 8): fixed[g].append((0, lambda g=g: k.stamp(f"find {g}")))
    run_gaps(k, mains, fixed, [early, fw, fs], 6)
    print("dn left:", len(k.bg), len(fw), len(fs), "last h load at gap", pend)
    k.stamp("dn gemm")
    assert not fs.items
    ws = wtail
    if not final and P.dn_fin_first != 2: ws.insert(len(ws) - 4, lambda: k.poll_issue(A_PX, "px0"))
    if not final and P.dn_fin_first == 2: ws.append(lambda: k.poll_issue(A_PX, "px0"))
    merge(k, fw, ws)
    k.wait(lg=[("rw", 1)]); k.e("s_barrier")
    k.stamp("dn red")
    for f in red_reads(k, 1, T, 2*16384): f()
    def nxt():
        k.poll_check(A_PX, "px0", 1)
        k.wait(vm=["hxs"]); k.flag(1, 91, "sc1")
        a11_early(k)
    if not final:
        k.bg_held = True
        if not P.dn_fin_first: nxt()
    f1 = Flex(); red_finish(k, f1, 1, groups[1], T, BX2(), BS2(), final, True)
    if not final and P.dn_fin_first == 2:
        ex = [lambda: k.poll_check(A_PX, "px0", 1)] + a11_early(k, True) + [lambda: (k.wait(vm=["hxs"]), k.flag(1, 91, "sc1"))]
        merge(k, f1, ex, P.dn_mfirst)
    else: drain([f1], k)
    if not final and P.dn_fin_first == 1: nxt()
    k.stamp("dn end")
P.dn_mfirst = 8; P.dn_pollstep = 0; P.dn_fin_first = 2; P.dn_tail = 0; P.dn_touch = 88; P.dn_flag_delay = 4; P.dn_pre = 6; P.dn_late = 9; P.dn_fgap = 6
P.dn_wow = 6; P.per_dn = {"s4": 110, "s2": 130}; P.per_dn0 = {"s4": 60, "s2": 60}

def build(stamps=False, only=None):
    k = F(); k.stamping = stamps; k.only = only; k.st = P.dst; k.rt = P.rt
    name = NAME + "_kernel"
    k.e(".p2align 8", f".globl {name}", f".type {name},@function"); k.label(name)
    if stamps: k.e("s_memrealtime s[92:93]", "s_memtime s[94:95]")
    k.e("s_cmp_ge_u32 s2, 256", "s_cbranch_scc1 L_end")
    k.e("s_load_dwordx16 s[64:79], s[0:1], 0", "s_load_dwordx4 s[80:83], s[0:1], 64", "s_memrealtime s[96:97]")
    k.e("s_getpc_b64 s[100:101]")
    k.e("L_pc: ;np")
    k.e("s_mov_b32 s24, s100", "s_mov_b32 s25, s101", "s_mov_b32 s26, L_end-L_pc", "s_mov_b32 s27, 0x20000",
        "v_and_b32 v1, 63, v0", "v_lshrrev_b32 v2, 6, v0", "s_lshr_b32 s33, s2, 3", "s_mul_i32 s32, s33, 43", "s_lshr_b32 s32, s32, 8",
        "s_mul_i32 s32, s32, 6", "s_sub_u32 s32, s33, s32", "s_lshl_b32 s32, s32, 13", "v_lshlrev_b32 v3, 11, v2", "v_lshl_add_u32 v3, v1, 7, v3",
        f"v_mov_b32 v4, {OOB:#x}", "v_cmp_gt_u32 vcc, 16, v1", f"v_readfirstlane_b32 s{sW}, v2", "v_cndmask_b32 v3, v4, v3, vcc")
    if P.code0: k.vm(f"buffer_load_dword v175, v3, {SRD_PK}, s32 offen", "code")
    k.e("s_and_b32 s32, s2, 7", f"s_and_b32 s{sM}, s33, 15", "s_lshr_b32 s33, s33, 4", "s_lshl_b32 s32, s32, 1", f"s_add_u32 s{sC}, s32, s33")
    k.e(f"s_lshr_b32 s33, s{sM}, 3", f"s_lshl_b32 s{sB}, s{sC}, 1", f"s_add_u32 s{sB}, s{sB}, s33", f"s_and_b32 s{sCS}, s{sM}, 7")
    k.e("v_lshlrev_b32 v2, 4, v1")
    a10_lanes(k)
    k.e("s_waitcnt lgkmcnt(0)")
    srd(k, 12, 64, 2048 * 1024); srd(k, 16, 66, 512 * 3072)
    k.e(f"s_or_b32 s{sTAG}, s96, 1")
    if stamps:
        k.stamps += ["rt0", "start"]; k.e("v_writelane_b32 v0, s92, 0", f"v_writelane_b32 v0, s{92 if P.rt else 94}, 1")
    k.stamp("s kernarg")
    if P.pk_first == 1: pack_issue(k)
    k.stamp("s pkissue")
    run(a10_x(k, 0) + a10_w(k, 0))
    if P.pk_first == 0: pack_issue(k)
    srd(k, 28, 80, 256)
    k.e("v_cmp_eq_u32 vcc, 0, v1", f"v_mov_b32 v{vFA}, {OOB:#x}", f"s_or_b32 s32, s2, s{sW}", f"v_cndmask_b32_e64 v{vFA}, v{vFA}, 0, vcc",
        "s_cmp_eq_u32 s32, 0", f"s_cselect_b32 s32, 0, {OOB>>1:#x}", f"v_mov_b32 v170, s{sTAG}")
    k.vm(f"buffer_store_dword v170, v{vFA}, {SRD_DBG}, s32 offen sc1", "tagst")
    srd(k, 8, 82, WS_SIZE); srd(k, 20, 78, 2048 * 1024)
    for f in a1_setup(k, 0): f()
    o_bases(k, 0)
    a10_lanes2(k)
    k.e(f"v_mov_b32 v60, {OOB:#x}", "v_cmp_gt_u32 vcc, 8, v1", "v_mov_b32 v176, 0", "v_mov_b32 v177, 0", "v_mov_b32 v178, 0", "v_mov_b32 v179, 0",
        f"v_cndmask_b32 v173, v60, v{vL16}, vcc", "v_cmp_gt_u32 vcc, 16, v1", "s_nop 0",
        f"s_lshl_b32 s32, s{sC}, 4", f"v_cndmask_b32 v172, v60, v{vL16}, vcc")
    k.e(f"s_add_u32 s32, s32, s{sM}", "s_lshl_b32 s32, s32, 4",
        f"s_cmp_eq_u32 s{sW}, 0", f"s_cselect_b32 s32, s32, {OOB>>1:#x}", f"v_add_u32 v171, s32, v{vFA}", f"s_mov_b32 s{sBUD}, 400000")
    red_bases(k)
    k.e(f"s_lshl_b32 s{sGL}, s{sW}, 12", f"s_mul_i32 s{sGS}, s{sM}, {PGU_SLICE}", f"s_add_u32 s{sGS}, s{sGS}, s{sGL}", f"s_add_u32 s{sGS}, s{sGS}, {WS_PGU}")
    k.e(f"s_mul_i32 s32, s{sCS}, {224*KB}", f"s_mul_i32 s33, s{sW}, {56*KB}", "s_add_u32 s32, s32, s33", f"s_add_u32 s{sDS}, s32, {WS_PDN}")
    k.e(f"s_lshl_b32 s32, s{sCS}, 16", f"s_add_u32 s32, s32, s{sGL}", f"s_add_u32 s88, s32, {WS_PWO}")
    wo_bases(k)
    k.stamp("s setup")
    run(a10_w(k, 1))
    if P.pk_first == 2: pack_issue(k)
    k.e(f"s_getreg_b32 s{sXCC}, hwreg(HW_REG_XCC_ID, 0, 4)", f"s_mov_b32 s75, {WS_ARR}", f"s_lshl_b32 s77, s{sC}, 8", "s_add_u32 s77, s77, s75")
    if P.k_touch == -1:
        k.touch(157, "p", ["s_mov_b32 s32, s53"], False); k.touch(158, "q", [f"s_add_u32 s32, s64, {BX1[0]}"], False)
    k.stamp("s w01")
    def mid2():
        if P.k_first > 3: run(a10_w(k, 3))
        k.e("s_lshl_b32 s32, s2, 7")
        k.vm(f"buffer_store_dwordx4 v[176:179], v173, {SRD_WS}, s32 offen sc1", "zero")
        k.e("s_lshl_b32 s32, s2, 8", f"s_add_u32 s32, s32, {WS_HXF}")
        k.vm(f"buffer_store_dwordx4 v[176:179], v172, {SRD_WS}, s32 offen sc1", "zero")
    if P.k_pack is None: pack_process(k, lambda: run(a10_x(k, 1) + a10_w(k, 2)), mid2)
    else: run(a10_x(k, 1) + a10_w(k, 2)); mid2()
    k.vm(f"buffer_load_dword v170, v{vFA}, {SRD_DBG}, 0 offen sc1", "tag")
    k.stamp("s pkdone")
    a10_loop(k, P.k_first)
    a10_tail(k)
    wo(k, 0); gu(k, 0); dn(k, 0)
    if not P.half:
        k.marks = {m: g for m, g in k.marks.items() if False}
        k.seen = {t for t in k.seen if t in k.vmq or t in k.lgq or t in ("dna", "st0", ("x", 2), ("x", 3))}
        k.layer = 1
        a11_main(k)
        wo(k, 1)
        k.marks = {m: g for m, g in k.marks.items() if m in ("wobar", "gemm_done") or m[0] == "bar"}
        gu(k, 1); dn(k, 1)
    if P.verbose: print([(t, tag, f) for t, tag, f in k.bg_log if f])
    if stamps:
        k.e("s_waitcnt vmcnt(0)"); k.stamp("drained"); k.stamp("rt1", True)
        k.e("s_lshl_b32 s32, s2, 10", "s_lshl_b32 s33, s3, 8", "s_add_u32 s32, s32, s33",
            f"s_add_u32 s32, s32, {WS_STAMP}", "v_lshlrev_b32 v8, 2, v1", f"buffer_store_dword v0, v8, {SRD_WS}, s32 offen")
        if P.echo:
            a, b = P.echo
            n = len(k.stamps)
            k.e(f"v_readlane_b32 s32, v0, {a}", f"v_readlane_b32 s33, v0, {b if b >= 0 else n + b}", f"v_readlane_b32 s34, v0, {n-1}", "s_nop 3",
                "s_sub_u32 s33, s33, s32", "s_min_u32 s33, s33, 20000")
            k.label("L_echo")
            k.e("s_memrealtime s[36:37]", "s_waitcnt lgkmcnt(0)", "s_sub_u32 s36, s36, s34", "s_cmp_lt_u32 s36, s33", "s_cbranch_scc1 L_echo")
        if P.dbg:
            n = len(k.stamps)
            k.e("v_readlane_b32 s32, v0, 0", f"v_readlane_b32 s33, v0, {n-1}", "s_not_b32 s34, s32", "v_mov_b32 v4, s33", "v_mov_b32 v5, s34")
            k.e(f"buffer_atomic_umax v4, v{vFA}, {SRD_DBG}, 0 offen offset:4", f"buffer_atomic_umax v5, v{vFA}, {SRD_DBG}, 0 offen offset:8")
            k.e(f"s_cmp_eq_u32 s2, {P.dbg - 1}", f"s_cselect_b32 s35, 0, {OOB>>1:#x}", f"s_cmp_eq_u32 s{sW}, 0", f"s_cselect_b32 s35, s35, {OOB>>1:#x}")
            for i, wd in zip(range(2, n - 1), (3, 5, 6, 7, 9, 10, 11, 13, 14, 15)):
                k.e(f"v_readlane_b32 s33, v0, {i}", "s_sub_u32 s33, s33, s32", "v_mov_b32 v4, s33", f"buffer_store_dword v4, v{vFA}, {SRD_DBG}, s35 offen offset:{4*wd}")
    k.e("s_endpgm")
    k.flush_spins()
    k.label("L_end"); k.e("s_endpgm")
    src = open("cdna_kernels/%s.s.ref" % NAME).read().splitlines()
    out = [l for l in src if l.startswith(";") and "@launch" not in l]
    out.append(f"; @launch grid=(256,1,1) block=(256,1,1) lds={LDS_TOTAL}")
    out += ['.amdgcn_target "amdgcn-amd-amdhsa--gfx950"', ".text"]
    s = "\n".join(out) + "\n" + k.text(verbose=True) + '.section .rodata,"a"\n.p2align 6\n' + kd(name)
    from verify import verify
    assert not verify(s), "a register is used while a load into it is in flight"
    if P.align:
        from align import align
        s = align(s)
    return s, k.stamps
P.x_nobar = 0; P.x_noepi = 0; P.rt = 1; P.dbg = 0; P.h_touch0 = ''; P.outm = ('', ''); P.x1_clean = None; P.h1_plain = 0; P.tags = 0; P.echo = None; P.wo_setup_first = 2; P.gu_pa_late = 0; P.gu_bar_first = 0; P.flagbr = 0; P.rot = 0; P.pk_mod = 'nt'; P.x_mod = ''; P.w_mod = ''; P.t_mod = ''; P.pk_first = 1; P.dn1_agpr = 1; P.poll2 = 2; P.wt = (); P.inplace = 1; P.half = 0; P.tlb = 1; P.code0 = 1; P.verbose = 0; P.align = 1; P.gu_cap = 5; P.gu_nw = 5; P.k_touch = 15; P.k_gb = 13; P.k_chk = 16

if __name__ == "__main__":
    path = sys.argv[1] if len(sys.argv) > 1 else "cdna_kernels/%s.s" % NAME
    opts = sys.argv[2:]
    only = None
    for o in opts:
        if o.startswith("only="): only = [x for x in o[5:].split(",") if x]
        if o.startswith("P."):
            n, v = o[2:].split("="); setattr(P, n, eval(v))
    s, st = build(stamps="st" in opts, only=only)
    open(path, "w").write(s)
    if "st" in opts: json.dump([st], open(path + ".json", "w"))
```

```python
import re

TRANS = ("v_exp_f32", "v_log_f32", "v_rcp_f32", "v_rsq_f32", "v_sqrt_f32", "v_sin_f32", "v_cos_f32")

def _regs(tok):
    tok = tok.strip()
    neg = tok.lstrip("-")
    if neg.startswith("abs(") or neg.startswith("|"):
        neg = neg.replace("abs(", "").replace(")", "").replace("|", "")
    m = re.fullmatch(r"([vas])\[(\d+):(\d+)\]", neg)
    if m:
        return [(m.group(1), i) for i in range(int(m.group(2)), int(m.group(3)) + 1)]
    m = re.fullmatch(r"([vas])(\d+)", neg)
    if m:
        return [(m.group(1), int(m.group(2)))]
    if neg == "vcc":
        return [("s", 106), ("s", 107)]
    if neg == "vcc_lo":
        return [("s", 106)]
    if neg == "m0":
        return [("s", 124)]
    if neg == "exec":
        return [("s", 126), ("s", 127)]
    return []

class Ins:
    __slots__ = ("text", "op", "ops", "mods", "defs", "uses", "kind", "passes", "srcC", "srcAB", "states")
    def __init__(self, text):
        self.text = text
        t = text.split(";")[0].strip()
        self.defs = []; self.uses = []; self.kind = "other"; self.passes = 0; self.srcC = []; self.srcAB = []
        self.states = 1
        if ";np" in text:
            self.op = t; self.kind = "other"; self.states = 0 if t.endswith(":") else 1; self.ops = []; self.mods = ""
            return
        if not t or t.endswith(":") or t.startswith("."):
            self.op = t; self.kind = "label" if t.endswith(":") else "dir"; self.states = 0; self.ops = []; self.mods = ""
            return
        sp = t.split(None, 1)
        op = sp[0]; self.op = op
        rest = sp[1] if len(sp) > 1 else ""
        parts = []; cur = ""; d = 0
        for ch in rest:
            if ch in "[(": d += 1
            if ch in "])": d -= 1
            if ch == "," and d == 0:
                parts.append(cur.strip()); cur = ""
            else:
                cur += ch
        if cur.strip(): parts.append(cur.strip())
        mods = ""
        if parts:
            last = parts[-1].split(None, 1)
            parts[-1] = last[0]
            if len(last) > 1: mods = last[1]
        self.ops = parts; self.mods = mods
        R = [_regs(p) for p in parts]
        base = re.sub(r"_(e32|e64|dpp|sdwa)$", "", op)
        if op.startswith("v_mfma"):
            self.kind = "mfma"
            self.passes = 8 if "32x32" in op else 4
            self.defs = R[0]; self.srcAB = R[1] + R[2]; self.srcC = R[3]; self.uses = R[1] + R[2] + R[3]
        elif op.startswith("v_"):
            self.kind = "valu"
            if base in TRANS: self.kind = "trans"
            if op.startswith("v_permlane") and "swap" in op:
                self.defs = R[0] + R[1]; self.uses = R[0] + R[1]; self.kind = "perm"
            elif op.startswith("v_readfirstlane") or op.startswith("v_readlane"):
                self.defs = R[0]; self.uses = sum(R[1:], []); self.kind = "rdlane"
            elif op.startswith("v_cmp"):
                self.defs = R[0]; self.uses = sum(R[1:], [])
            elif re.match(r"v_(add|sub|subrev|addc|subb)_co_", op):
                self.defs = R[0] + R[1]; self.uses = sum(R[2:], [])
            else:
                self.defs = R[0]; self.uses = sum(R[1:], [])
                if base in ("v_fmac_f32", "v_dot2c_f32_bf16", "v_pk_fmac_f16") or op.endswith("_dpp") or "row_" in mods or "quad_perm" in mods:
                    self.uses = self.uses + R[0]
                if base == "v_cndmask_b32" and len(parts) == 3:
                    self.uses = self.uses + _regs("vcc")
            if op.endswith("_dpp") or "row_" in mods or "quad_perm" in mods:
                self.kind = "dpp"
        elif op.startswith("ds_"):
            self.kind = "ds"
            if op.startswith("ds_read"):
                self.defs = R[0]; self.uses = sum(R[1:], [])
            else:
                self.uses = sum(R, [])
        elif op.startswith("buffer_") or op.startswith("global_"):
            self.kind = "vmem"
            if op in ("buffer_wbl2", "buffer_inv"):
                pass
            elif " lds" in " " + mods or op.startswith("global_load_lds"):
                self.uses = sum(R, []) + _regs("m0"); self.kind = "dma"
            elif "_load" in op:
                self.defs = R[0]; self.uses = sum(R[1:], [])
            elif "atomic" in op and "sc0" in mods:
                self.defs = R[0]; self.uses = sum(R, [])
            else:
                self.uses = sum(R, [])
        elif op.startswith("s_"):
            self.kind = "salu"
            if op == "s_nop":
                self.states = int(parts[0], 0) + 1; self.kind = "nop"
            elif op.startswith("s_cbranch") or op in ("s_branch", "s_endpgm", "s_setpc_b64"):
                self.kind = "branch"
            elif op.startswith("s_cmp") or op in ("s_waitcnt", "s_barrier", "s_sleep", "s_setprio"):
                self.uses = sum(R, [])
            else:
                self.defs = R[0] if R else []; self.uses = sum(R[1:], [])
                if "saveexec" in op: self.defs = self.defs + _regs("exec")

VALU_KINDS = ("valu", "trans", "perm", "rdlane", "dpp")

def need_states(p, c):
    n = 0
    pd = set(p.defs)
    if p.kind in VALU_KINDS:
        vd = {r for r in pd if r[0] in "va"}
        sd = {r for r in pd if r[0] == "s"}
        cu = set(c.uses)
        if vd & cu:
            if c.kind == "mfma": n = max(n, 2)
            if c.kind in ("perm", "dpp"): n = max(n, 2)
            if c.kind == "rdlane": n = max(n, 1)
            if p.kind == "trans" and c.kind in VALU_KINDS and c.kind != "trans": n = max(n, 1)
            if p.kind == "trans" and c.kind in ("vmem", "ds", "dma"): n = max(n, 1)
        if sd & cu:
            if c.kind in VALU_KINDS: n = max(n, 4 if c.kind == "rdlane" else 2)
            if c.kind in ("vmem", "dma"): n = max(n, 5)
            if c.kind in ("salu",): n = max(n, 1)
    if p.op.startswith("v_dot") and pd & (set(c.uses) | set(c.defs)):
        if c.op != p.op or pd & set(c.uses[:-len(c.defs)] if c.op.startswith("v_dot2c") else c.uses): n = max(n, 3)
    if p.kind == "mfma":
        big = p.passes == 8
        if c.kind == "mfma":
            if pd & set(c.srcAB): n = max(n, 12 if big else 8)
            if pd & set(c.srcC):
                if not (p.defs == c.srcC and p.passes == c.passes): n = max(n, 10 if big else 6)
            elif pd & set(c.defs):
                n = max(n, 10 if big else 6)
        else:
            if pd & (set(c.uses) | set(c.defs)): n = max(n, 12 if big else 8)
            if c.kind in VALU_KINDS and set(p.srcC) & set(c.defs): n = max(n, 7 if big else 3)
    if p.kind == "salu" and ("s", 124) in pd and c.kind == "dma": n = max(n, 1)
    if p.kind == "vmem" and re.search(r"store_dwordx[34]", p.op):
        data = set(_regs(p.ops[0] if p.op.startswith("buffer") else p.ops[1]))
        if data & set(c.defs): n = max(n, 2 if c.kind in VALU_KINDS or c.kind == "mfma" else 1)
    return n

ELAPSED = False
def pad_hazards(lines, verbose=False):
    ins = [Ins(l) for l in lines]
    out = []; win = []
    added = 0
    for c in ins:
        if c.kind in ("dir",):
            out.append(c.text); continue
        need = 0
        if c.kind in ("label", "branch"):
            for p, d in win:
                if p.kind == "mfma": need = max(need, (12 if p.passes == 8 else 8) - d)
                elif p.kind in VALU_KINDS:
                    w = 5 if any(r[0] == "s" for r in p.defs) else 2
                    need = max(need, w - d)
                elif p.kind == "vmem" and re.search(r"store_dwordx[34]", p.op): need = max(need, 2 - d)
                elif p.kind == "salu" and ("s", 124) in p.defs: need = max(need, 1 - d)
            if c.kind == "branch": need -= 1
            if c.op == "s_endpgm": need = 0
        else:
            for p, d in win:
                need = max(need, need_states(p, c) - d)
        while need > 0:
            k = min(need, 16)
            out.append(f"s_nop {k-1}")
            added += k
            for w in win: w[1] += k
            need -= k
        out.append(c.text)
        extra = 0
        if c.kind == "mfma":
            prev = [w for w in win if w[0].kind == "mfma"]
            if prev and ELAPSED: extra = max(0, prev[-1][0].passes - 1 - prev[-1][1])
        for w in win: w[1] += c.states + (extra if w[0].kind == "mfma" else 0)
        win = [w for w in win if w[1] < 20]
        if c.kind not in ("label", "nop"):
            win.append([c, 0])
    if verbose: print("hazard pad states added:", added)
    return out

class K:
    def __init__(self):
        self.L = []
        self.vmq = []
        self.lgq = []
        self.maxvm = 0
        self.gap = -1
        self.stamping = False
        self.phantom = set()
        self.only = None; self.rt = False
        self.t = 0; self.mf_free = 0; self.vec_free = 0; self.last = {}; self.writer = {}
        self.per = {}; self.bg = []; self.bg_next = 0; self.bg_held = False; self.bg_log = []
        self.stamps = []
        self.seen = set()
        self.marks = {}
    def _tick(self, text):
        i = Ins(text)
        if i.kind in ("label", "dir") or i.states == 0: return
        if i.kind == "mfma":
            self.t = max(self.t, self.mf_free, self.vec_free); self.mf_free = self.t + i.passes * 4; self.vec_free = self.t + 8; self.t += 4
        elif i.kind in VALU_KINDS or i.kind in ("ds", "vmem", "dma"):
            self.t = max(self.t, self.vec_free)
            self.t += 8 if i.kind in ("trans", "perm") else (40 if i.op == "ds_write_b128" else 4)
        elif i.kind == "nop": self.t += 4 * i.states
        else: self.t += 4
        for r in i.defs:
            if r[0] == "s": self.last[r[1]] = text; self.writer[r[1]] = text
    def e(self, *texts):
        for t in texts: self.L.append(t); self._tick(t)
    def idle(self, n):
        self.t += n
    def set_s(self, text):
        if self.last.get(Ins(text).defs[0][1]) != text: self.e(text)
    set_m0 = set_s
    def bg_add(self, fn, period, tag=None, dep=None): self.bg.append((fn, period, tag, dep))
    def bg_ready(self):
        return bool(self.bg) and not self.bg_held and self.t >= self.bg_next and (self.bg[0][3] is None or self.bg[0][3] in self.marks)
    def bg_step(self, force=False):
        if not force and not self.bg_ready(): return False
        fn, period, tag, dep = self.bg.pop(0)
        assert dep is None or dep in self.marks, f"background op forced before {dep}"
        self.bg_log.append((self.t, tag, force))
        fn(); self.bg_next = self.t + self.per[period]
        return True
    def bg_need(self, tags):
        while any(it[2] in tags for it in self.bg): self.bg_step(force=True)
    def bg_burst(self, n):
        for _ in range(n):
            if self.bg and (self.bg[0][3] is None or self.bg[0][3] in self.marks): self.bg_step(force=True)
    def c(self, text): self.L.append("; " + text)
    def label(self, n): self.L.append(n + ":"); self.last = {}
    def vm(self, text, tag=None):
        if len(self.vmq) >= 60:
            n = sum(1 for t in self.vmq[-40:] if t not in self.phantom)
            self.L.append(f"s_waitcnt vmcnt({n})"); self.vmq = self.vmq[-40:]
        self.L.append(text); self._tick(text); self.vmq.append(tag); self.seen.add(tag)
        self.maxvm = max(self.maxvm, len(self.vmq))
        assert len(self.vmq) <= 63, "too many vmem ops in flight"
    def ds(self, text, tag=None):
        self.L.append(text); self._tick(text); self.lgq.append(tag); self.seen.add(tag)
        if len(self.lgq) > 15:
            raise AssertionError("too many ds ops in flight")
    def _cnt(self, q, tags):
        idx = -1
        for i, t in enumerate(q):
            if t in tags: idx = i
        return idx
    def wait(self, vm=None, lg=None):
        parts = []
        if vm is not None and vm != "all": self.bg_need(vm if isinstance(vm, (list, set)) else [vm])
        for grp in (vm, lg):
            if grp is None or grp == "all": continue
            for t in (grp if isinstance(grp, (list, set)) else [grp]):
                assert t in self.seen, f"wait for an op that was never issued: {t}"
        if vm is not None and self.vmq:
            if vm == "all": idx = len(self.vmq) - 1
            else: idx = self._cnt(self.vmq, vm if isinstance(vm, (list, set)) else [vm])
            if idx >= 0:
                n = sum(1 for t in self.vmq[idx+1:] if t not in self.phantom)
                parts.append(f"vmcnt({n})"); self.vmq = self.vmq[idx+1:]
        if lg is not None and self.lgq:
            if lg == "all": idx = len(self.lgq) - 1
            else: idx = self._cnt(self.lgq, lg if isinstance(lg, (list, set)) else [lg])
            if idx >= 0:
                parts.append(f"lgkmcnt({len(self.lgq)-1-idx})"); self.lgq = self.lgq[idx+1:]
        if parts: self.e("s_waitcnt " + " ".join(parts))
    def mark(self, name): self.marks[name] = self.gap
    def stamp(self, name, real=False):
        if not self.stamping: return
        if self.only is not None and name not in ("drained", "rt1") and not any(name.startswith(p) for p in self.only): return
        n = len(self.stamps); self.stamps.append(name)
        self.e("s_memrealtime s[96:97]" if (real or self.rt) else "s_memtime s[96:97]", "s_waitcnt lgkmcnt(0)", f"v_writelane_b32 v0, s96, {n}")
        self.lgq = []
    def forget(self):
        self.seen = set(self.vmq) | set(self.lgq)
    def text(self, verbose=False):
        return "\n".join(pad_hazards(self.L, verbose)) + "\n"

class Flex:
    def __init__(self):
        self.items = []
    def add(self, fn, cost=1, at=0): self.items.append((cost, fn, at))
    def skip(self, n): self.items.append(("skip", n, 0))
    def dep(self, name): self.items.append(("dep", name, 0))
    def __len__(self): return len(self.items)

def run_gaps(k, mains, fixed, flexes, cap, over=lambda i: False):
    capf = cap if callable(cap) else (lambda i, c=cap: int((i + 1) * c) - int(i * c))
    hold = [0] * len(flexes)
    for i, m in enumerate(mains):
        m()
        k.gap = i
        cap = capf(i)
        room = cap
        for cost, fn in fixed.get(i, []):
            fn(); room -= cost
        if room > 0 and k.bg_step(): room -= 1
        progress = True; fresh = True
        while progress:
            progress = False
            for j, f in enumerate(flexes):
                while f.items and (f.items[0][0] == "skip" or (f.items[0][0] == "dep" and f.items[0][1] in k.marks)):
                    if f.items[0][0] == "skip": hold[j] = i + f.items[0][1]
                    f.items.pop(0)
                if not f.items or hold[j] > i or f.items[0][0] == "dep": continue
                cost, fn, at = f.items[0]
                if room <= 0 and cost > 0: continue
                if at > i: continue
                if cost > room + (1 if (room == cap or over(i)) else 0) and not (cost >= cap - 2 and cost > 2 and fresh): continue
                if cost: fresh = False
                f.items.pop(0); fn(); room -= cost; progress = True
                break

def drain(flexes, k=None):
    if k is not None: k.gap = 10**9
    live = [f for f in flexes if f.items]
    while live:
        for f in list(live):
            while f.items:
                it = f.items[0]
                if it[0] == "dep" and it[1] not in k.marks:
                    assert len(live) > 1, "dead dependency"
                    break
                f.items.pop(0)
                if it[0] == "dep": continue
                if it[0] == "skip":
                    if len(live) > 1: break
                    continue
                it[1]()
                if k is not None: k.bg_step()
            if not f.items: live.remove(f)
```

```python
import sys, json
from common import *

MF16 = "v_mfma_f32_16x16x32_bf16"
MF16S = "v_mfma_f32_16x16x16_bf16"
MF32 = "v_mfma_f32_32x32x16_bf16"
vL16, vFV, vFA, vP = 2, 8, 9, 10
CSV, CSQ, CSK, RES = 11, 12, 16, 20
OOB = 0x80000000
FL_O, FL_X1, FL_H, FL_X2 = 0, 4096, 8192, 12288
FL_HX = 16384 + 12288
def fl(layer, off): return WS_FLAGS + 16384 * layer + off
sROT, sBUD, sGL, sGS, sDS = 84, 98, 60, 61, 85
sT0, sT1, sPO, sFO = 32, 33, 86, 87
sML, sMS = 68, 69
WS_HXF = WS_O0 - 0x10000 if False else WS_END
WS_ARR = WS_HXF + 0x10000
sTAG, sXCC = 91, 76
WS_STAMP = 0x2000000
L_SA0, L_SA1, L_XH0, L_CS = 80896, 97280, 81920, 79872
def e_of(kk):
    p, tl = divmod(kk, 7)
    return 4 * p + tl if tl < 4 else 16 + 3 * p + (tl - 4)
KK_OF = {e_of(kk): kk for kk in range(28)}

class P:
    a1_bg_start, a1_bg_step = 30, 6
    gu_lead = 9
    gu_bg_start, gu_bg_step = 50, 2.6
    dn_lead = 12
    bgm = ""
    sleep = 0
    drop = ()
    codepf = 0
    ld = "sc1"
    dst = "sc1"
    safe = False
    plain = True
    notouch = ()

BO, BX1, BS1, BH = [WS_O[0]] * 2, [WS_X[0]] * 2, [WS_ST[0]] * 2, [WS_H[0]] * 2
def BX2(): return WS_X[0] if P.inplace else WS_X[1]
def BS2(): return WS_ST[0] if P.inplace else WS_ST[1]
def o_block(d, layer):
    if (layer or P.o0_in_h) and P.inplace: return [f"s_mul_i32 {d}, s{sB}, {224*KB}", f"s_add_u32 {d}, {d}, {BH[0]}"]
    return [f"s_lshl_b32 {d}, s{sB}, 16", f"s_add_u32 {d}, {d}, {BO[layer]}"]
def o_line(layer):
    return [f"s_lshl_b32 s32, s{sB}, 16", f"s_lshl_b32 s33, s{sCS}, 2", f"s_add_u32 s33, s33, s{sW}", "s_lshl_b32 s33, s33, 10",
            "s_add_u32 s32, s32, s33", f"s_add_u32 s32, s32, {BO[layer]}"]
def touch_next(k, t):
    return [lambda: k.touch(t, "p", o_line(1)), lambda: k.touch(t + 1, "q", [f"s_add_u32 s32, s64, {BX1[1]}"]),
            lambda: k.touch(t + 2, "t", [f"s_add_u32 s32, s65, {BS1[1]}"])]
def gu_tile(d):
    return [f"s_lshl_b32 {d}, s{sC}, 1", f"s_and_b32 s33, s{sW}, 1", f"s_add_u32 {d}, {d}, s33", f"s_lshl_b32 {d}, {d}, 1", f"s_lshr_b32 s33, s{sW}, 1", f"s_add_u32 {d}, {d}, s33"]
def h_base(d, layer):
    return gu_tile(d) + [f"s_mul_i32 {d}, {d}, 112", f"s_mul_i32 s33, s{sM}, 7",
            f"s_add_u32 {d}, {d}, s33", f"s_lshl_b32 {d}, {d}, 10", f"s_add_u32 {d}, {d}, {BH[layer]}"]

class F(K):
    def __init__(self):
        super().__init__(); self.spins = []; self.nspin = 0; self.st = ""; self.npf = 0; self.layer = 0
    def poll_issue(self, va, tag): self.vm(f"buffer_load_dword v{vP}, v{va}, {SRD_WS}, s{sPO} offen sc1", tag)
    def poll_addr(self, va, nl, sh=2):
        self.e(f"v_cmp_gt_u32 vcc, {nl}, v1", f"v_lshlrev_b32 v{va}, {sh}, v1", f"v_mov_b32 v{vP}, {OOB:#x}", f"v_cndmask_b32 v{va}, v{vP}, v{va}, vcc")
        self.nl = nl
    def poll_check(self, va, tag, thr):
        n = self.nspin; self.nspin += 1
        self.stamp(f"poll<{tag}")
        self.wait(vm=[tag])
        self.stamp(f"poll={tag}")
        msk = f"s_and_b32 s99, vcc_lo, {(1 << self.nl) - 1:#x}"
        self.e(f"v_cmp_gt_u32 vcc, {thr}, v{vP}", msk, f"s_cbranch_scc1 L_spin{n} ;np", f"L_back{n}: ;np")
        self.stamp(f"poll>{tag}")
        self.spins += [f"L_spin{n}:", f"s_sub_u32 s{sBUD}, s{sBUD}, 1", f"s_cbranch_scc1 L_give{n}"] + ([f"s_sleep {P.sleep}"] if P.sleep else []) + [
                       f"buffer_load_dword v{vP}, v{va}, {SRD_WS}, s{sPO} offen sc1", "s_waitcnt vmcnt(0)",
                       f"v_cmp_gt_u32 vcc, {thr}, v{vP}", msk, f"s_cbranch_scc1 L_spin{n}", f"s_branch L_back{n}",
                       f"L_give{n}:", f"s_mov_b32 s{sBUD}, 0", f"s_branch L_back{n}"]
    def poll_wait(self, va, tag, thr, alt):
        if not P.poll2:
            self.poll_check(va, tag, thr); return
        n = self.nspin; self.nspin += 1
        ld = lambda r: f"buffer_load_dword v{r}, v{va}, {SRD_WS}, s{sPO} offen sc1"
        tst = lambda r: [f"v_cmp_gt_u32 vcc, {thr}, v{r}", f"s_and_b32 s99, vcc_lo, {(1 << self.nl) - 1:#x}"]
        self.e(f"s_sleep {P.poll2}")
        self.vm(ld(alt), "polljunk")
        self.wait(vm=[tag])
        self.e(*tst(vP)); self.e(f"s_cbranch_scc1 L_spin{n} ;np", f"L_back{n}: ;np")
        self.spins += [f"L_spin{n}:", f"s_sub_u32 s{sBUD}, s{sBUD}, 1", f"s_cbranch_scc1 L_give{n}",
                       ld(vP), "s_waitcnt vmcnt(1)"] + tst(alt) + [f"s_cbranch_scc0 L_back{n}", ld(alt), "s_waitcnt vmcnt(1)"] + tst(vP) + \
                      [f"s_cbranch_scc1 L_spin{n}", f"s_branch L_back{n}", f"L_give{n}:", f"s_mov_b32 s{sBUD}, 0", f"s_branch L_back{n}"]
    def flag(self, val, soff=sFO, st=None):
        self.e(f"v_mov_b32 v{vFV}, {val}")
        if st is not None:
            self.vm(f"buffer_store_dword v{vFV}, v{vFA}, {SRD_WS}, s{soff} offen {st}", "flag"); return
        if P.flagbr:
            self.dstore(f"buffer_store_dword v{vFV}, v{vFA}, {SRD_WS}, s{soff} offen", "flag", True); return
        self.e(f"s_or_b32 s99, s{soff}, s{sML}")
        self.vm(f"buffer_store_dword v{vFV}, v{vFA}, {SRD_WS}, s99 offen", "flag")
        self.e(f"s_or_b32 s99, s{soff}, s{sMS}")
        self.vm(f"buffer_store_dword v{vFV}, v{vFA}, {SRD_WS}, s99 offen sc1", "flag")
    def dstore(self, text, tag, always=False):
        kind = tag[0] if isinstance(tag, tuple) else tag
        if (not P.plain or (self.layer, kind, isinstance(tag, tuple)) in P.wt) and not always:
            self.vm(text + " sc1", tag); return
        n = self.nspin; self.nspin += 1
        self.e(f"s_cmp_lg_u32 s{sML}, 0", f"s_cbranch_scc1 L_alt{n} ;np")
        self.vm(text, tag)
        self.e(f"L_back{n}: ;np")
        self.spins += [f"L_alt{n}:", "s_nop 4", text + " sc1", f"s_branch L_back{n}"]
    def valid(self, test, reload):
        n = self.nspin; self.nspin += 1
        self.e(*test); self.e(f"s_cbranch_vccnz L_rl{n} ;np", f"L_back{n}: ;np")
        self.spins += [f"L_rl{n}:", f"s_sub_u32 s{sBUD}, s{sBUD}, 1", f"s_cbranch_scc1 L_give{n}"] + reload + ["s_waitcnt vmcnt(0)"] + test + \
                      [f"s_cbranch_vccnz L_rl{n}", f"s_branch L_back{n}", f"L_give{n}:", f"s_mov_b32 s{sBUD}, 0", f"s_branch L_back{n}"]
    def touch(self, tmp, kind, base_expr, masked=True):
        if not P.plain or kind in P.notouch: return
        nl = {"p": 16, "q": 16, "s": 2, "t": 2, "h": 56}[kind]
        self.e(f"v_cmp_gt_u32 vcc, {nl}, v1")
        if kind in "pq": self.e(f"v_lshrrev_b32 v{tmp}, 3, v1", f"v_lshlrev_b32 v{tmp}, {15 if kind == 'p' else 13}, v{tmp}", f"v_and_b32 v{vFV}, 7, v1", f"v_lshl_add_u32 v{tmp}, v{vFV}, 7, v{tmp}")
        else: self.e(f"v_lshlrev_b32 v{tmp}, {11 if kind == 's' else 7}, v1")
        self.e(f"v_mov_b32 v{vFV}, {OOB:#x}", *base_expr)
        self.e(f"v_cndmask_b32 v{tmp}, v{vFV}, v{tmp}, vcc")
        if masked: self.e(f"s_or_b32 s32, s32, s{sML}")
        self.vm(f"buffer_load_dword v{tmp}, v{tmp}, {SRD_WS}, s32 offen {P.t_mod}", "touch")
    def vm(self, text, tag=None):
        kind = tag[0] if isinstance(tag, tuple) else tag
        if kind in P.drop:
            self.seen.add(tag); return
        super().vm(text, tag)
    def codepf(self, tmpv, per=2048):
        if not P.codepf: return
        n = self.npf; self.npf += 1
        sh = (per // 64).bit_length() - 1
        self.e(f"L_pf{n}: ;np", f"s_mul_i32 s32, s{sW}, {per}", f"s_add_u32 s32, s32, L_pf{n}-L_pc", f"v_lshlrev_b32 v{tmpv}, {sh}, v1")
        raise NotImplementedError
    def flush_spins(self):
        for l in self.spins: self.e(l)
        self.spins = []

def batch(k, i):
    src = f"s_add_u32 s62, s{sGS}, {i*16384}" if i < 15 else f"s_add_u32 s62, s{sDS}, {(16 + 4*(i-15))*1024}"
    def f(q):
        k.set_m0(f"s_add_u32 m0, s{sGL}, {(i % 10)*16384}")
        if i != 14: k.set_s(src)
        elif k.last.get(62) != f"s_cselect_b32 s62, {OOB>>1:#x}, s62":
            k.e(src, f"s_cmp_ge_u32 s{sW}, 2", f"s_cselect_b32 s62, {OOB>>1:#x}, s62")
        k.vm(f"buffer_load_dwordx4 v{vL16}, {SRD_WS}, s62 offen offset:{q*1024} {P.bgm} lds", ("gw", i))
    return [lambda q=q: f(q) for q in range(4)]

def bg_batches(k, bs, period, dep=lambda b: None):
    for b in bs:
        for f in batch(k, b): k.bg_add(f, period, ("gw", b), dep(b))
def bg_list(k, fns, period, tag, dep=None):
    for f in fns: k.bg_add(f, period, tag, dep)

def regloads(k, base_sgpr, off, dst, n, tag, tmp=63, tagf=None):
    fns = []
    for j in range(n):
        def f(j=j):
            k.set_s(f"s_add_u32 s{tmp}, s{base_sgpr}, {off + (j & ~3)*1024}")
            k.vm(f"buffer_load_dwordx4 {dst(j)}, v{vL16}, {SRD_WS}, s{tmp} offen offset:{(j%4)*1024} {P.bgm}", tagf(j) if tagf else tag)
        fns.append(f)
    return fns
def wow(k):
    def f(i, q):
        k.set_m0(f"s_add_u32 m0, s{sGL}, {(6 + i)*16384}"); k.set_s(f"s_add_u32 s63, s88, {i*16384}")
        k.vm(f"buffer_load_dwordx4 v{vL16}, {SRD_WS}, s63 offen offset:{q*1024} lds", "wow")
    return [lambda i=i, q=q: f(i, q) for i in range(4) for q in range(4)]

def pack_issue(k):
    for r in (68, 69, 72, 73, 74, 75, 76, 77): assert k.last[r].startswith("s_load"), f"kernel argument s{r} overwritten"
    k.e("v_lshrrev_b32 v44, 3, v1", "v_and_b32 v43, 7, v1", "v_and_b32 v45, 2, v44", "v_lshlrev_b32 v45, 1, v45",
        "v_xor_b32 v43, v43, v45", "v_lshlrev_b32 v43, 4, v43", f"s_add_u32 s34, s49, {L_X + 4096}")
    k.e("s_cmp_ge_u32 s2, 112", "s_cbranch_scc1 L_pki_small")
    k.e("s_and_b32 s35, s2, 1", "s_bfe_u32 s36, s2, 0x10001", "s_lshr_b32 s37, s2, 2")
    k.e("s_cmp_eq_u32 s35, 0", "s_cselect_b32 s24, s72, s74", "s_cselect_b32 s25, s73, s75",
        f"s_mov_b32 s26, {512*3584:#x}", "s_mov_b32 s27, 0x20000")
    k.e("v_mul_u32_u24 v46, 3584, v44", "v_add_u32 v46, v46, v43")
    k.e("s_lshl_b32 s38, s36, 2", f"s_add_u32 s38, s38, s{sW}", f"s_mul_i32 s38, s38, {64*3584}",
        "s_lshl_b32 s39, s37, 7", "s_add_u32 s38, s38, s39")
    for i in range(8):
        k.e(f"s_add_u32 m0, s34, {(i>>2)*8192 + (i&3)*1024}", f"s_add_u32 s39, s38, {i*8*3584}", f"buffer_load_dwordx4 v46, {SRD_PK}, s39 offen {P.pk_mod} lds")
    k.e("s_branch L_pki_done")
    k.label("L_pki_small")
    k.e("s_sub_u32 s35, s2, 112", "s_lshl_b32 s35, s35, 3", f"s_lshl_b32 s36, s{sW}, 1", "s_add_u32 s35, s35, s36")
    k.e("s_cmp_lt_u32 s35, 896", "s_cselect_b32 s24, s76, s68", "s_cselect_b32 s25, s77, s69", f"s_mov_b32 s26, {512*1024:#x}",
        f"s_cselect_b32 s26, {1792*1024:#x}, s26", "s_mov_b32 s27, 0x20000", "s_cselect_b32 s37, 1, 0",
        "s_movk_i32 s38, 896", "s_cselect_b32 s38, 0, s38")
    k.e("s_cselect_b32 s39, 0, 1", "s_cselect_b32 s70, 14, 15", "s_movk_i32 s71, 0x4000", "s_cselect_b32 s71, 0x80, s71")
    k.e("s_sub_u32 s35, s35, s38", "s_lshr_b32 s35, s35, s39", "s_and_b32 s36, s35, 7", "s_lshr_b32 s35, s35, 3")
    k.e("v_lshl_add_u32 v46, v44, 10, v43", "s_lshl_b32 s38, s35, s70", "s_lshl_b32 s39, s36, 7", "s_add_u32 s38, s38, s39")
    for i in range(2):
        for h in range(2):
            k.e(f"s_add_u32 m0, s34, {(2*i+h)*1024}", f"s_add_u32 s39, s38, {h*8192}", f"buffer_load_dwordx4 v46, {SRD_PK}, s39 offen {P.pk_mod} lds")
        if i == 0: k.e("s_add_u32 s38, s38, s71")
    k.label("L_pki_done")
    k.vmq.append("pk"); k.seen.add("pk")

PQ = [76, 80, 84, 88, 92, 96, 36, 40]
def pack_process(k, mid1, mid2):
    k.e("v_bfe_u32 v46, v1, 2, 2", "v_and_b32 v47, 3, v1", "v_bfe_u32 v48, v1, 4, 1", "v_lshrrev_b32 v49, 5, v1")
    k.e("v_and_b32 v50, 2, v46", "v_add_u32 v50, v50, v48", "v_lshlrev_b32 v50, 5, v50",
        "v_lshl_add_u32 v50, v46, 7, v50", "v_lshl_add_u32 v50, v47, 3, v50", "v_add_u32 v50, s34, v50")
    k.e("s_cmp_ge_u32 s2, 112", "s_cbranch_scc1 L_pk_small")
    q0 = list(k.vmq)
    k.e("v_lshl_add_u32 v56, v49, 10, v50", "v_xor_b32 v57, 64, v56")
    k.e("s_lshl_b32 s39, s37, 2", "v_add_u32 v58, s39, v48")
    k.e("s_lshl_b32 s70, s36, 2", f"s_add_u32 s70, s70, s{sW}", "s_lshl_b32 s70, s70, 2")
    k.e("v_and_b32 v66, 15, v1", "s_lshl_b32 s71, s35, 8", "v_lshl_add_u32 v66, v66, 4, s71")
    for p in range(2):
        T, fs, tl, st_, b, aug = 59, 60, 61, 62 + p, 64 + p, 68 + p
        k.e(f"v_add_u32 v{T}, {2*p}, v58", f"v_mul_u32_u24 v{fs}, 9363, v{T}", f"v_lshrrev_b32 v{fs}, 16, v{fs}",
            f"v_mul_u32_u24 v{tl}, 7, v{fs}", f"v_sub_u32 v{tl}, v{T}, v{tl}")
        k.e(f"v_cmp_gt_u32 vcc, 3, v{tl}", f"v_mul_u32_u24 v67, 33, v{tl}", f"v_mov_b32 v{st_}, 1", "v_mov_b32 v70, 3",
            f"v_cndmask_b32 v67, v67, v{tl}, vcc", f"v_cndmask_b32 v{st_}, v{st_}, v70, vcc")
        k.e(f"v_mul_u32_u24 v{fs}, 231, v{fs}", f"v_add_u32 v67, v67, v{fs}")
        k.e(f"v_lshl_add_u32 v70, v{st_}, 5, v67", "v_lshlrev_b32 v70, 10, v70", "v_add_u32 v70, v70, v66",
            "s_lshl_b32 s71, s36, 9", f"v_add_u32 v{aug}, s71, v70")
        k.e(f"v_mul_lo_u32 v70, v{st_}, s70", "v_add_u32 v67, v67, v70", "v_lshlrev_b32 v67, 10, v67",
            "v_add_u32 v67, v67, v66", f"v_lshl_add_u32 v{b}, v49, 9, v67", f"v_lshlrev_b32 v{st_}, 10, v{st_}")
    k.e("v_mov_b32 v71, 0x3f803f80", "v_mov_b32 v72, 0", "v_mov_b32 v73, 0", "v_cmp_gt_u32 vcc, 32, v1", "v_mov_b32 v46, 0", "v_mov_b32 v47, 0",
        "v_cndmask_b32 v68, v69, v68, vcc", f"s_lshl_b32 s72, s{sW}, 8", "s_add_u32 s72, s72, 0x10000", "v_lshl_add_u32 v74, v1, 2, s72",
        "v_lshlrev_b32 v75, 2, v1", "v_add_u32 v75, 0x10000, v75")
    k.e(f"s_mov_b32 s70, {WS_PGU}", "s_mov_b32 s71, s70", "s_mov_b32 s72, s70", "s_mov_b32 s73, s70", f"s_cmp_eq_u32 s{sW}, 0", f"s_cselect_b32 s74, s70, {OOB>>1:#x}")
    k.wait(vm="pk")
    for ks in range(4):
        for p in range(2):
            for j in range(2): k.ds(f"ds_read_b64_tr_b16 {vr(PQ[2*ks+p]+2*j,2)}, v{56+p} offset:{(ks>>1)*8192 + (ks&1)*2048 + j*512}", ("t", ks, p))
        if ks == 2: k.wait(lg=[("t", 0, 1)])
    mid1()
    for ks in range(4):
        for p in range(2):
            k.wait(lg=[("t", ks, p)])
            for d in range(4): k.e(f"v_dot2c_f32_bf16 v{72+p}, v{PQ[2*ks+p]+d}, v71")
    k.e("v_permlane32_swap_b32 v72, v73", "v_add_f32 v72, v72, v73")
    k.ds(f"ds_write_b32 v74, v72 offset:{L_CS - 65536}")
    k.wait(lg="all"); k.e("s_barrier")
    for w in range(4): k.ds(f"ds_read_b32 v{56+w}, v75 offset:{L_CS - 65536 + 256*w}")
    mid2()
    k.wait(lg="all")
    k.e("v_add_f32 v56, v56, v57", "v_add_f32 v58, v58, v59", "v_add_f32 v56, v56, v58")
    k.e("v_cvt_pk_bf16_f32 v45, v56, v46", "v_lshlrev_b32 v57, 16, v45", "v_sub_f32 v57, v56, v57", "v_cvt_pk_bf16_f32 v44, v56, v57")
    k.e("s_branch L_pk_done")
    k.label("L_pk_small")
    k.vmq = list(q0)
    k.e(f"v_mov_b32 v64, v{vL16}", f"v_add_u32 v65, 1024, v{vL16}", f"v_mov_b32 v68, v{vL16}", f"s_mov_b32 s72, {OOB>>1:#x}", "s_mov_b32 s73, s72", "s_mov_b32 s74, s72")
    k.e("s_cmp_eq_u32 s37, 0", "s_cbranch_scc1 L_pk_wo")
    k.e("s_mul_i32 s38, s35, 2341", "s_lshr_b32 s38, s38, 16", "s_mul_i32 s39, s38, 28", "s_sub_u32 s39, s35, s39",
        "s_mul_i32 s70, s39, 9363", "s_lshr_b32 s70, s70, 16", "s_mul_i32 s71, s70, 7", "s_sub_u32 s71, s39, s71")
    for u in range(2):
      k.e(f"s_sub_u32 s39, s70, s36" if P.hrot else "s_mov_b32 s39, s70", f"s_sub_u32 s39, s39, {u if P.hrot else 0}", "s_and_b32 s39, s39, 3",
        "s_lshl_b32 s32, s39, 2", "s_add_u32 s32, s32, s71", "s_mul_i32 s33, s39, 3", "s_add_u32 s33, s33, s71", "s_add_u32 s33, s33, 12",
        "s_cmp_lt_u32 s71, 4", "s_cselect_b32 s32, s32, s33", "s_mul_i32 s33, s38, 28", "s_add_u32 s32, s32, s33", f"s_lshl_b32 s{(35, 37)[u]}, s32, 11")
    k.e("v_lshl_add_u32 v56, v49, 9, v50", "v_xor_b32 v57, 64, v56", f"v_mov_b32 v62, {224*KB}", f"v_mov_b32 v63, {224*KB}")
    k.e(f"s_mul_i32 s36, s36, {224*KB}", f"s_add_u32 s36, s36, {WS_PDN}", "s_add_u32 s70, s36, s35", "s_add_u32 s71, s36, s37")
    k.wait(vm="pk")
    for i in range(2):
        for nn in range(2):
            for j in range(2): k.ds(f"ds_read_b64_tr_b16 {vr(PQ[2*i+nn]+2*j,2)}, v{56+nn} offset:{i*2048 + j*1024}", "t")
    mid1(); mid2()
    k.wait(lg="all")
    k.e("s_branch L_pk_done")
    k.label("L_pk_wo")
    k.vmq = list(q0)
    k.e("v_and_b32 v56, 2, v46", "v_lshlrev_b32 v56, 1, v56", "v_xor_b32 v56, v56, v47", "v_lshlrev_b32 v56, 4, v56", "v_lshl_add_u32 v56, v46, 7, v56",
        "v_lshrrev_b32 v57, 4, v1", "v_lshl_add_u32 v56, v57, 10, v56", "v_add_u32 v56, s34, v56", "v_xor_b32 v57, 64, v56",
        "v_mov_b32 v62, 0x800", "v_mov_b32 v63, 0x800")
    k.e("s_lshl_b32 s36, s36, 16", "s_lshl_b32 s35, s35, 12", "s_add_u32 s70, s36, s35", f"s_add_u32 s70, s70, {WS_PWO}", "s_mov_b32 s71, s70")
    k.wait(vm="pk")
    for j in range(4):
        for jj in range(2): k.ds(f"ds_read_b64_tr_b16 {vr(PQ[j]+2*jj,2)}, v{56+(j>>1)} offset:{jj*512 + 8*(j&1)}", "t")
    mid1(); mid2()
    k.wait(lg="all")
    k.label("L_pk_done")

def pack_stores(k):
    ops = []
    for r in range(4):
        for p in range(2):
            ops.append(("v", lambda r=r, p=p: k.vm(f"buffer_store_dwordx4 {vr(PQ[2*r+p],4)}, v{64+p}, {SRD_WS}, s{70+r} offen sc1", "pks")))
            if r < 3: ops.append(("a", lambda p=p: k.e(f"v_add_u32 v{64+p}, v{64+p}, v{62+p}")))
    ops.append(("v", lambda: k.vm(f"buffer_store_dwordx4 v[44:47], v68, {SRD_WS}, s74 offen sc1", "pks")))
    return ops

A_XF, A_K, A_V, A_Q = 36, 76, 86, 96
A_STA, A_STB, A_OP, A_DX, A_PA, A_ST, A_ACC = 104, 106, 144, 152, 153, 140, 184
class R0: XE, XO, SA, SB, CI, ONE, M, ATT, TMP = 3, 4, 5, 6, 28, 32, 52, (116, 160), 60
class R1: XE, XO, SA, SB, CI, ONE, M, ATT, TMP = 116, 117, 118, 119, 252, 124, 120, (228, 160), 28
A_U, A_PX = 226, 115
A11_ORDER = [2, 3, 1, 0, "h"]
A11_POS = {2: 3, 3: 0, 1: 1, 0: 2, "h": 3}
sODD, sCUR0, sCUR1, sCEXP = 40, 42, 44, 46

def a1_setup(k, layer):
    R = (R0, R1)[layer]
    real = k; out = []
    class Rec:
        def e(self, *t):
            if any(x.startswith("s_cmp") for x in t): out.append(lambda t=t: real.e(*t))
            else: out.extend(lambda x=x: real.e(x) for x in t)
    k = Rec()
    t16, g, tt, tb = R.TMP, R.TMP + 1, R.TMP + 2, R.TMP + 3
    x, y, z = R.ONE, R.ONE + 1, R.ONE + 2
    sa = L_SA0 if layer == 0 else L_SA1
    k.e(f"v_and_b32 v{t16}, 15, v1", f"v_lshrrev_b32 v{g}, 4, v1", f"v_and_b32 v{tt}, 7, v1", f"v_bfe_u32 v{tb}, v1, 3, 1")
    k.e(f"v_lshlrev_b32 v{tb}, 13, v{tb}")
    if layer == 0: k.e(f"v_add_u32 v{tb}, {L_X}, v{tb}")
    if layer == 0:
        k.e(f"v_and_b32 v{x}, 6, v{tt}", f"v_xor_b32 v{x}, v{x}, v{g}", f"v_lshlrev_b32 v{x}, 4, v{x}",
            f"v_lshl_add_u32 v{x}, v{tt}, 7, v{x}", f"v_add_u32 v{R.XE}, v{x}, v{tb}", f"v_xor_b32 v{R.XO}, 64, v{R.XE}")
    else:
        k.e(f"v_lshl_add_u32 v{x}, v{g}, 7, v{tb}", f"v_lshl_add_u32 v{R.XE}, v{tt}, 4, v{x}", f"v_add_u32 v{R.XO}, 512, v{R.XE}")
    k.e(f"v_lshlrev_b32 v{R.SA}, 3, v{t16}", f"v_add_u32 v{R.SA}, {sa}, v{R.SA}",
        f"v_lshlrev_b32 v{R.SB}, 5, v{g}", f"v_add_u32 v{R.SB}, {sa}, v{R.SB}")
    k.e(f"v_and_b32 v{x}, 1, v1", f"v_cmp_eq_u32 s[{sODD}:{sODD+1}], 1, v{x}",
        f"v_lshl_add_u32 v{y}, v{g}, 2, v{x}", f"v_cmp_le_u32 s[{sCUR0}:{sCUR0+1}], v{y}, v{t16}",
        f"v_add_u32 v{y}, 2, v{y}", f"v_cmp_le_u32 s[{sCUR1}:{sCUR1+1}], v{y}, v{t16}")
    k.e(f"v_mov_b32 v{y}, 0xffff", f"v_mov_b32 v{z}, 0xffff0000", f"v_cndmask_b32 v{y}, v{y}, v{z}, s[{sODD}:{sODD+1}]", f"v_mov_b32 v{z}, 0")
    k.e(f"v_cndmask_b32 v{R.M+2}, v{z}, v{y}, s[{sCUR0}:{sCUR0+1}]", f"v_cndmask_b32 v{R.M}, v{y}, v{z}, s[{sCUR0}:{sCUR0+1}]",
        f"v_cndmask_b32 v{R.M+3}, v{z}, v{y}, s[{sCUR1}:{sCUR1+1}]", f"v_cndmask_b32 v{R.M+1}, v{y}, v{z}, s[{sCUR1}:{sCUR1+1}]")
    k.e(f"s_cmp_eq_u32 s{sB}, 0", f"s_cselect_b32 s70, {f2u(-1e38):#x}, 0", f"s_mov_b32 s{sCEXP}, {f2u(0.25*LOG2E):#x}")
    for i in range(4): k.e(f"v_mov_b32 v{R.CI+i}, s70", f"v_mov_b32 v{R.ONE+i}, 0x3f803f80")
    return out

def o_bases(k, layer):
    k.e(*o_block("s32", layer))
    k.e(f"s_lshl_b32 s33, s{sCS}, 2", f"s_add_u32 s33, s33, s{sW}", "s_lshl_b32 s53, s33, 10", "s_add_u32 s53, s53, s32", "s_add_u32 s54, s53, 32768",
        f"s_lshl_b32 s32, s{sB}, 5", "s_add_u32 s32, s32, s33", "s_lshl_b32 s32, s32, 2", f"s_add_u32 s89, s32, {fl(layer, FL_O)}")

def ln_finish(a, s, q):
    a(f"v_mul_f32 v{s}, {f2u(-1/512):#x}, v{s}"); a(f"v_mul_f32 v{q}, {f2u(1/512):#x}, v{q}")
    a(f"v_fma_f32 v{q}, -v{s}, v{s}, v{q}"); a(f"v_max_f32 v{q}, 0, v{q}"); a(f"v_add_f32 v{q}, {f2u(1e-5):#x}, v{q}")

A_QS = 68
def fix_reads(k, R, t, S):
    i = 0 if t == "h" else t + 1
    return [lambda: k.ds(f"ds_read_b64 {vr(S,2)}, v{R.SA} offset:{i*128}", ("sa", t)),
            lambda: k.ds(f"ds_read_b128 {vr(S+2,4)}, v{R.SB} offset:{i*128}", ("sa", t)),
            lambda: k.ds(f"ds_read_b128 {vr(S+6,4)}, v{R.SB} offset:{i*128+16}", ("sa", t))]
def fix(k, R, fx, t, acc, at, pk, S=A_STA, pre=False, nxt=()):
    a = lambda txt, c=1, at=0: fx.add(lambda: k.e(txt), c, at)
    i = 0 if t == "h" else t + 1
    if not pre:
        for n, f in enumerate(fix_reads(k, R, t, S)): fx.add(f, 1, at - P.a1_salead if n == 0 else 0)
    fx.add(lambda: k.wait(lg=[("sa", t)]), 1, at)
    for f in nxt: fx.add(f)
    for r0, cs, dst in ((acc[0], CSQ, None if t == "h" else A_Q + 2*t), (acc[1], CSK, A_K + 2*i)):
        if dst is None: continue
        isq = cs == CSQ
        if pk:
            for h in (0, 2): a(f"v_pk_fma_f32 {vr(r0+h,2)}, {vr(S,2)}, {vr(cs+h,2)}, {vr(r0+h,2)} op_sel_hi:[0,1,1]")
            if not isq:
                for h in (0, 2): a(f"v_pk_mul_f32 {vr(r0+h,2)}, {vr(S,2)}, {vr(r0+h,2)} op_sel:[1,0] op_sel_hi:[1,1]")
        else:
            for r in range(4): a(f"v_fmac_f32 v{r0+r}, v{S}, v{cs+r}")
            if not isq:
                for r in range(4): a(f"v_mul_f32 v{r0+r}, v{S+1}, v{r0+r}")
        if isq: a(f"v_mul_f32 v{A_QS+t}, s{sCEXP}, v{S+1}")
        for h in range(2): a(f"v_cvt_pk_bf16_f32 v{dst+h}, v{r0+2*h}, v{r0+2*h+1}")
    r0 = acc[2]
    for r in range(4): a(f"v_fmac_f32 v{r0+r}, v{S+2+2*r}, v{CSV}")
    for r in range(4): a(f"v_mul_f32 v{r0+r}, v{S+3+2*r}, v{r0+r}")
    for h in range(2): a(f"v_cvt_pk_bf16_f32 v{A_V+2*i+h}, v{r0+2*h}, v{r0+2*h+1}")
    fx.add(lambda: (k.mark(("fix", t)), k.stamp(f"t0 fix{t}")), 0)

def attn(k, R, fx, t, B):
    SC, SP, PP, O, SUM, T = B, B + 4, B + 8, B + 12, B + 16, B + 20
    a = lambda txt, c=1: fx.add(lambda: k.e(txt), c)
    q = vr(A_Q + 2*t, 2)
    fx.dep(("fix", t)); fx.dep(("fix", t - 1 if t else "h")); fx.skip(1)
    a(f"{MF16S} {vr(SC,4)}, {vr(A_K+2*(t+1),2)}, {q}, 0", 2)
    a(f"{MF16S} {vr(SP,4)}, {vr(A_K+2*t,2)}, {q}, {vr(R.CI,4) if t == 0 else '0'}", 2)
    fx.skip(3)
    for rr, cur in ((0, sCUR0), (1, sCUR1)):
        a(f"v_cndmask_b32 v{T+2}, v{SC+2*rr}, v{SC+2*rr+1}, s[{sODD}:{sODD+1}]")
        a(f"v_cndmask_b32 v{T+3}, v{SP+2*rr}, v{SP+2*rr+1}, s[{sODD}:{sODD+1}]")
        a(f"v_cndmask_b32 v{T+rr}, v{T+3}, v{T+2}, s[{cur}:{cur+1}]")
    a(f"v_max_f32 v{T+2}, v{T}, v{T+1}"); a(f"v_mov_b32 v{T+3}, v{T+2}"); fx.skip(1)
    a(f"v_permlane16_swap_b32 v{T+2}, v{T+3}", 2); a(f"v_max_f32 v{T+2}, v{T+2}, v{T+3}"); a(f"v_mov_b32 v{T+3}, v{T+2}"); fx.skip(1)
    a(f"v_permlane32_swap_b32 v{T+2}, v{T+3}", 2); a(f"v_max_f32 v{T+2}, v{T+2}, v{T+3}")
    a(f"v_mul_f32 v{T+2}, v{A_QS+t}, v{T+2}")
    for rr in range(2): a(f"v_fma_f32 v{T+rr}, v{T+rr}, v{A_QS+t}, -v{T+2}")
    for rr in range(2): a(f"v_exp_f32 v{T+rr}, v{T+rr}", 2)
    for rr in range(2): a(f"v_cvt_pk_bf16_f32 v{T+rr}, v{T+rr}, v{T+rr}")
    a(f"v_and_b32 v{PP}, v{T}, v{R.M}"); a(f"v_and_b32 v{PP+1}, v{T+1}, v{R.M+1}")
    a(f"v_and_b32 v{PP+2}, v{T}, v{R.M+2}"); a(f"v_and_b32 v{PP+3}, v{T+1}, v{R.M+3}")
    fx.skip(1)
    a(f"{MF16} {vr(SUM,4)}, {vr(R.ONE,4)}, {vr(PP,4)}, 0", 2)
    a(f"{MF16} {vr(O,4)}, {vr(A_V+2*t,4)}, {vr(PP,4)}, 0", 2)
    fx.skip(3)
    a(f"v_rcp_f32 v{T}, v{SUM}", 2); fx.skip(1)
    for r in range(4): a(f"v_mul_f32 v{O+r}, v{T}, v{O+r}")
    for h in range(2): a(f"v_cvt_pk_bf16_f32 v{A_OP+2*t+h}, v{O+2*h}, v{O+2*h+1}")
    fx.add(lambda: (k.mark(("attn", t)), k.stamp(f"t0 attn{t}")), 0)

def ostore(k, fx, pair):
    b = A_OP + 4 * pair
    fx.dep(("attn", 2*pair)); fx.dep(("attn", 2*pair + 1))
    fx.dep("po1" if pair == 0 else "blank")
    fx.skip(1)
    fx.add(lambda: k.e(f"v_permlane16_swap_b32 v{b}, v{b+2}"), 2); fx.add(lambda: k.e(f"v_permlane16_swap_b32 v{b+1}, v{b+3}"), 2)
    fx.add(lambda: (k.dstore(f"buffer_store_dwordx4 {vr(b,4)}, v{vL16}, {SRD_WS}, s{53+pair} offen", ("ost", pair)), k.mark(("ost", pair))))

Z_WD, Z_TR, Z_HE, Z_HO, Z_OE, Z_OO = 164, 165, 166, 167, 168, 169
Z_XF, Z_SUM, Z_GR, Z_SUMH, Z_GRH, Z_CV = 104, 240, 244, 248, 252, 100
P.k_first = 4; P.k_pack = None; P.k_prep = 13
P.k_look, P.k_atom, P.k_bar, P.k_vgap, P.k_pst, P.k_pgap = 3, 6, 3, 3, 3, 0
NS0 = 6
def z_acc(t):
    if t == "h": return (None, A_ACC + 48, A_ACC + 52)
    return (A_ACC + 12*t, A_ACC + 12*t + 4, A_ACC + 12*t + 8)

def a10_lanes(k):
    k.e("v_lshrrev_b32 v60, 3, v1", "v_and_b32 v61, 6, v60", "v_and_b32 v62, 7, v1", "v_xor_b32 v61, v61, v62",
        "v_lshlrev_b32 v61, 4, v61", f"v_lshl_add_u32 v{A_DX}, v60, 10, v61")
    k.e("v_and_b32 v61, 2, v60", f"s_and_b32 s32, s{sW}, 1", "s_lshl_b32 s32, s32, 2", "v_or_b32 v61, s32, v61", "v_xor_b32 v61, v61, v62",
        "v_lshlrev_b32 v61, 4, v61", "v_mul_u32_u24 v60, 3072, v60", f"v_add_u32 v{Z_WD}, v60, v61")
    if P.rot == 0: k.e(f"s_add_u32 s{sROT}, s{sB}, s{sCS}")
    elif P.rot == 1: k.e(f"s_lshl_b32 s32, s{sB}, 1", f"s_bfe_u32 s33, s{sB}, 0x10002", "s_add_u32 s32, s32, s33", f"s_add_u32 s{sROT}, s32, s{sCS}")
    elif P.rot == 2: k.e(f"s_lshl_b32 s32, s{sB}, 1", f"s_add_u32 s{sROT}, s32, s{sCS}")
    elif P.rot == 3: k.e(f"s_mov_b32 s{sROT}, s{sCS}")
    elif P.rot == 4: k.e(f"s_lshl_b32 s32, s{sB}, 1", f"s_bfe_u32 s33, s{sB}, 0x10002", f"s_add_u32 s{sROT}, s32, s33")
    elif P.rot == 5: k.e(f"s_mov_b32 s{sROT}, 0")
    k.e(f"s_and_b32 s{sROT}, s{sROT}, 7")
    k.e(f"s_lshl_b32 s47, s{sB}, 3", "s_sub_u32 s48, s47, 2", "s_max_i32 s48, s48, 0", f"s_and_b32 s32, s{sW}, 1", "s_add_u32 s48, s48, s32",
        "s_lshl_b32 s48, s48, 13", f"s_lshl_b32 s32, s{sW}, 1", "s_add_u32 s47, s47, s32", "s_lshl_b32 s47, s47, 13")
    k.e(f"s_mul_i32 s51, s{sW}, {8*3072}", f"s_lshl_b32 s32, s{sCS}, 7", "s_add_u32 s51, s51, s32", f"s_mul_i32 s52, s{sW}, 3072")
    k.e(f"s_lshl_b32 s49, s{sW}, 14", f"s_and_b32 s32, s{sW}, 1", "s_lshl_b32 s50, s32, 13", f"s_lshr_b32 s32, s{sW}, 1",
        "s_lshl_b32 s33, s32, 10", "s_add_u32 s50, s50, s33", f"s_add_u32 s90, s32, s{sROT}")

def a10_x(k, c):
    S = lambda *t: [("s", lambda x=x: k.e(x)) for x in t]
    ld = lambda: k.vm(f"buffer_load_dwordx4 v{A_DX}, {SRD_X}, s33 offen {P.x_mod} lds", ("x", c))
    ops = S(f"s_add_u32 s33, s{sROT}, {c}", "s_and_b32 s33, s33, 7", "s_lshl_b32 s33, s33, 7", f"s_add_u32 m0, s49, {L_X + c*1024}", "s_add_u32 s33, s33, s47")
    ops += [("v", ld)] + S(f"s_add_u32 m0, s49, {L_X + 8192 + c*1024}", "s_add_u32 s33, s33, 8192") + [("v", ld)]
    if c % 2 == 0:
        ops += S(f"s_add_u32 s33, s90, {c}", "s_and_b32 s33, s33, 7", "s_lshl_b32 s33, s33, 7", f"s_add_u32 m0, s50, {L_XH0 + c*1024}", "s_add_u32 s33, s33, s48") + [("v", ld)]
    return ops

def a10_w(k, s):
    S = lambda *t: [("s", lambda x=x: k.e(x)) for x in t]
    if s & 1: ops = S(f"s_add_u32 m0, s52, {(s % NS0)*12288}", f"s_add_u32 s63, s63, {32*3072}")
    else: ops = S(f"s_add_u32 s63, s{sROT}, {s>>1}", "s_and_b32 s63, s63, 7", f"s_mul_i32 s63, s63, {64*3072}", f"s_add_u32 m0, s52, {(s % NS0)*12288}", "s_add_u32 s63, s63, s51")
    for p in range(3): ops.append(("v", lambda p=p: k.vm(f"buffer_load_dwordx4 v{Z_WD}, {SRD_QKV}, s63 offen offset:{p*1024} {P.w_mod} lds", ("w", s))))
    return ops
def run(ops):
    for _, f in ops: f()

def fill(k, mains, streams, cap=2):
    lastv = -99
    for g, m in enumerate(mains):
        m(); k.gap = g
        for a, o in streams:
            if a <= g and o and o[0][0] == "s": o.pop(0)[1](); break
        room = cap; nd = 0
        if g - lastv >= P.k_vgap and k.bg_step(): room -= 1; lastv = g
        while room > 0:
            pick = None
            for a, o in streams:
                if a > g or not o: continue
                t = o[0][0]
                if t == "d" and nd >= 1: continue
                if t == "v" and g - lastv < P.k_vgap: continue
                pick = o; break
            if pick is None: break
            t, f = pick.pop(0); f(); room -= 2 if t == "b" else 1
            if t == "d": nd += 1
            if t == "v": lastv = g
    for a, o in streams: run(o)

def a10_lanes2(k):
    k.e("v_lshrrev_b32 v60, 4, v1", "v_bfe_u32 v61, v1, 2, 2", "v_and_b32 v62, 1, v60", "v_lshlrev_b32 v62, 1, v62",
        "v_lshrrev_b32 v63, 1, v61", "v_or_b32 v62, v62, v63", f"v_xor_b32 v62, s{sW}, v62", "v_lshlrev_b32 v62, 5, v62",
        "v_mul_u32_u24 v60, 3072, v60", "v_lshl_add_u32 v60, v61, 7, v60", "v_add_u32 v60, v60, v62",
        "v_and_b32 v61, 3, v1", f"v_lshl_add_u32 v{Z_TR}, v61, 3, v60")
    k.e("v_and_b32 v60, 15, v1", "v_cmp_eq_u32 s[78:79], 0, v60")
    k.e(f"v_subrev_u32 v{Z_HE}, 16384, v{R0.XE}", f"v_subrev_u32 v{Z_HO}, 16384, v{R0.XO}",
        f"v_add_u32 v{Z_OE}, s49, v{R0.XE}", f"v_add_u32 v{Z_OO}, s49, v{R0.XO}")

def a10_loop(k, first):
    LA = P.k_look
    def sync(s, extra=()):
        k.wait(vm=[("w", s), ("x", s >> 1)] + list(extra)); k.e("s_barrier")
    nxt = [first]
    def dmas(upto):
        out = []
        while nxt[0] <= min(upto, 15):
            n = nxt[0]; nxt[0] += 1
            if n % 2 == 0: out += a10_x(k, n // 2)
            out += a10_w(k, n)
        return out
    def reads(s):
        fb = Z_XF + 24 * (s & 1); off = (s >> 1) * 1024; o = s & 1
        tr = lambda p, j: ("d", lambda: k.ds(f"ds_read_b64_tr_b16 {ar(12*s+4*p+2*j,2)}, v{Z_TR} offset:{(s%NS0)*12288 + p*1024 + j*512}", ("r", s, 0 if p == 0 else 1)))
        xr = lambda d, a, of, grp: ("d", lambda: k.ds(f"ds_read_b128 {vr(d,4)}, v{a} offset:{of}", ("r", s, grp)))
        out = [tr(0, 0), tr(0, 1)] + [xr(fb + 4*t, R0.XO if o else R0.XE, t*16384 + off, 0) for t in range(4)]
        out += [tr(1, 0), tr(1, 1), tr(2, 0), tr(2, 1), xr(fb + 16, Z_HO if o else Z_HE, off, 1), xr(fb + 20, Z_OO if o else Z_OE, off, 1)]
        return out
    l0_background(k)
    pst = pack_stores(k)
    sync(0)
    k.stamp("k0")
    run(reads(0)); run(dmas(LA - 1))
    for s in range(16):
        fb = Z_XF + 24 * (s & 1)
        c = lambda r: "0" if s == 0 else vr(r, 4)
        wq, wk, wv, one = ar(12*s, 4), ar(12*s + 4, 4), ar(12*s + 8, 4), vr(R0.ONE, 4)
        ms = [f"{MF16} {vr(z_acc(t)[0],4)}, {wq}, {vr(fb+4*t,4)}, {c(z_acc(t)[0])}" for t in range(4)]
        for t in [0, 1, 2, 3, "h"]:
            xf = vr(fb + (16 if t == "h" else 4*t), 4)
            ms.append(f"{MF16} {vr(z_acc(t)[1],4)}, {wk}, {xf}, {c(z_acc(t)[1])}")
            ms.append(f"{MF16} {vr(z_acc(t)[2],4)}, {xf}, {wv}, {c(z_acc(t)[2])}")
        ms += [f"{MF16} {vr(Z_CV,4)}, {wq}, {vr(fb+16,4)}, {c(Z_CV)}",
               f"{MF16} {vr(Z_SUM,4)}, {one}, {vr(fb+20,4)}, {c(Z_SUM)}", f"{MF16} {vr(Z_GR,4)}, {vr(fb+20,4)}, {vr(fb+20,4)}, {c(Z_GR)}",
               f"{MF16} {vr(Z_SUMH,4)}, {one}, {vr(fb+16,4)}, {c(Z_SUMH)}", f"{MF16} {vr(Z_GRH,4)}, {vr(fb+16,4)}, {vr(fb+16,4)}, {c(Z_GRH)}"]
        mains = [lambda m=m: k.e(m) for m in ms]
        if s == P.k_pack:
            k.wait(lg="all"); pack_process(k, lambda: None, lambda: None)
        k.wait(lg=[("r", s, 0)])
        streams = [(3, [("s", lambda: k.wait(lg=[("r", s, 1)]))] +
                       [("a", lambda d=d: k.e(f"v_cndmask_b32 v{fb+16+d}, v{fb+16+d}, v{R0.ONE}, s[78:79]")) for d in range(4)])]
        if s + 1 < 16:
            ex = ["pks"] if s + 1 == P.k_atom else []
            assert not ex or not pst, "arrival before the last pack store"
            assert P.k_prep > 14 - LA and (P.k_pack or 0) <= 8 - LA
            ops = [("b", lambda: sync(s + 1, ex))] + reads(s + 1)
            if ex: ops.append(("b", lambda: arrive(k)))
            streams.append((P.k_bar, ops))
            streams.append((0, dmas(s + LA)))
        n = 0; mine = []
        while pst and s >= (P.k_pack or 0) and (n < P.k_pst or pst[0][0] == "a"):
            n += pst[0][0] == "v"; mine.append(pst.pop(0))
        streams.append((P.k_pgap, mine))
        if s == P.k_prep: streams.append((6, tail_prep(k)))
        if s == P.k_touch:
            streams.append((2, [("b", lambda: k.touch(157, "p", ["s_mov_b32 s32, s53"], False) if (0, "ost", True) not in P.wt else None),
                                ("b", lambda: k.touch(158, "q", [f"s_add_u32 s32, s64, {BX1[0]}"], False) if (0, "xst", False) not in P.wt else None),
                                ("b", lambda: k.touch(159, "h", h_base("s32", 0), False) if P.h_touch0 == "k" else None)]))
        if s == P.k_gb: streams.append((1, [("v", lambda t=t: k.vm(t, "gb")) for t in GB_LOADS]))
        if s == P.k_chk: streams.append((1, [("b", lambda: rendezvous(k))]))
        if s == 15 and P.k_chk < 16:
            streams.append((max(P.k_bar, 4), [("b", lambda: (k.e("s_barrier"), k.mark("xfree")))]))
        fill(k, mains, streams)
        if s in (3, 7, 11): k.stamp(f"k{s+1}")
    k.stamp("k16")
    if P.k_chk >= 16: rendezvous(k)

GB_LOADS = [f"buffer_load_dwordx4 {vr(36+4*j,4)}, v{vL16}, {SRD_WS}, s75 offen offset:{j*1024} sc1" for j in range(4)] + \
           [f"buffer_load_dword v{vP}, v172, {SRD_WS}, s77 offen offset:8 sc1"]
def arrive(k):
    k.wait(vm=["tag"])
    k.e(f"v_readfirstlane_b32 s{sTAG}, v170", f"s_cmp_eq_u32 s{sTAG}, 0", "s_cbranch_scc1 L_tag_spin ;np", "L_tag_ok: ;np")
    k.spins += ["L_tag_spin:", f"s_sub_u32 s{sBUD}, s{sBUD}, 1", "s_cbranch_scc1 L_tag_give", f"buffer_load_dword v170, v{vFA}, {SRD_DBG}, 0 offen sc1",
                "s_waitcnt vmcnt(0)", f"v_readfirstlane_b32 s{sTAG}, v170", f"s_cmp_eq_u32 s{sTAG}, 0", "s_cbranch_scc1 L_tag_spin", "s_branch L_tag_ok",
                "L_tag_give:", f"s_mov_b32 s{sBUD}, 0", "s_branch L_tag_ok"]
    k.e(f"v_mov_b32 v176, s{sTAG}", "v_not_b32 v177, v176", f"v_mov_b32 v178, s{sXCC}")
    k.vm(f"buffer_store_dwordx4 v[176:179], v171, {SRD_WS}, s75 offen sc1", "arr")

def rendezvous(k):
    chk = [f"s_not_b32 s32, s{sTAG}"]
    for j in range(4): chk += [f"v_xor_b32 v{36+4*j}, s{sTAG}, v{36+4*j}", f"v_xor_b32 v{37+4*j}, s32, v{37+4*j}"]
    chk += ["v_or3_b32 v36, v36, v37, v40", "v_or3_b32 v44, v44, v45, v41", "v_or3_b32 v36, v36, v48, v49", "v_or_b32 v36, v36, v44", "v_cmp_ne_u32 vcc, 0, v36"]
    k.wait(vm=["gb"])
    k.e(*chk); k.e("s_cbranch_vccnz L_gb_spin ;np", "L_gb_ok: ;np")
    k.spins += ["L_gb_spin:", f"s_sub_u32 s{sBUD}, s{sBUD}, 1", "s_cbranch_scc1 L_gb_give", "s_sleep 2",
                f"buffer_load_dword v170, v{vFA}, {SRD_DBG}, 0 offen sc1", "s_waitcnt vmcnt(0)", "v_readfirstlane_b32 s32, v170", f"s_cmp_eq_u32 s32, s{sTAG}",
                "s_cbranch_scc1 L_gb_same", f"s_mov_b32 s{sTAG}, s32", f"v_mov_b32 v176, s{sTAG}", "v_not_b32 v177, v176",
                f"buffer_store_dwordx4 v[176:179], v171, {SRD_WS}, s75 offen sc1", "L_gb_same:"] + GB_LOADS + ["s_waitcnt vmcnt(0)"] + chk + \
               ["s_cbranch_vccnz L_gb_spin", "s_branch L_gb_ok", "L_gb_give:", f"s_mov_b32 s{sBUD}, 0", "s_branch L_gb_ok"]
    k.e(f"v_cmp_ne_u32 vcc, s{sXCC}, v{vP}", "s_and_b32 s99, vcc_lo, 0xffff" if not P.safe else "s_and_b32 s99, 1, 1",
        f"s_cselect_b32 s{sML}, {OOB>>1:#x}, 0", f"s_cselect_b32 s{sMS}, 0, {OOB>>1:#x}")
    k.mark("gb")

W_OA, W_UA, W_SA, W_RB = 152, 154, 155, 156
def wo_bases(k):
    k.e(f"s_lshl_b32 s32, s{sB}, 2", f"s_add_u32 s32, s32, s{sW}", "s_lshl_b32 s64, s32, 14", f"s_lshl_b32 s33, s{sCS}, 10", "s_add_u32 s64, s64, s33",
        "s_lshr_b32 s32, s32, 1", "s_lshl_b32 s80, s32, 15", "s_lshl_b32 s65, s32, 11", "s_lshl_b32 s66, s32, 3", f"s_add_u32 s66, s66, s{sCS}", "s_lshl_b32 s66, s66, 1",
        f"s_and_b32 s32, s{sW}, 1", "s_add_u32 s66, s66, s32", "s_lshl_b32 s66, s66, 2", "s_lshl_b32 s32, s32, 8", "s_add_u32 s80, s80, s32", "s_add_u32 s65, s65, s32",
        f"s_lshr_b32 s32, s{sCS}, 1", "s_lshl_b32 s32, s32, 9", "s_add_u32 s65, s65, s32", f"s_and_b32 s32, s{sCS}, 1", "s_lshl_b32 s32, s32, 3", "s_add_u32 s65, s65, s32")
def wo_lanes(k):
    x, y = 66, 67
    return [lambda t=t: k.e(*t) for t in (
        [f"v_and_b32 v{x}, 15, v1"], [f"v_lshrrev_b32 v{y}, 4, v1"], [f"v_lshlrev_b32 v{W_OA}, 4, v{x}"], [f"v_lshl_add_u32 v{W_SA}, v{y}, 2, v{W_OA}"],
        [f"v_lshl_add_u32 v{W_OA}, v{y}, 9, v{W_OA}"], [f"v_and_b32 v{W_UA}, 7, v1"], [f"v_lshlrev_b32 v{W_UA}, 4, v{W_UA}"], [f"v_lshl_add_u32 v{W_UA}, v{y}, 7, v{W_UA}"],
        [f"v_lshrrev_b32 v{x}, 3, v{x}"], [f"v_lshl_add_u32 v{W_UA}, v{x}, 13, v{W_UA}"], [f"v_add_u32 v{W_RB}, {6*16384}, v{vL16}"],
        ["v_cmp_gt_u32 vcc, 32, v1", f"v_mov_b32 v{y}, {OOB:#x}", f"v_cndmask_b32 v{W_SA}, v{y}, v{W_SA}, vcc"])]
def blanks(k, layer):
    if not P.tags: return [lambda: k.mark("blank")]
    z = 66
    return [lambda: (k.e(f"v_mov_b32 v{z}, -1"), k.dstore(f"buffer_store_dword v{z}, v{vL16}, {SRD_WS}, s53 offen", "blank")),
            lambda: (k.e(f"s_add_u32 s58, s64, {BX1[layer]}"), k.dstore(f"buffer_store_dword v{z}, v{W_UA}, {SRD_WS}, s58 offen", "blank")),
            lambda: k.dstore(f"buffer_store_dword v{z}, v{W_UA}, {SRD_WS}, s58 offen offset:512", "blank"),
            lambda: (k.e(f"s_add_u32 s58, s65, {BS1[layer]}"), k.dstore(f"buffer_store_dword v{z}, v{W_SA}, {SRD_WS}, s58 offen", "blank"), k.mark("blank"))]
def wo_prepoll(k, layer):
    k.poll_addr(A_PA, 32)
    k.e(f"s_lshl_b32 s32, s{sB}, 7", f"s_add_u32 s{sPO}, s32, {fl(layer, FL_O)}", *o_block("s59", layer), "s_and_b32 s32, s80, 0xffff", "s_add_u32 s59, s59, s32")
    k.bg_held = True
    k.poll_issue(A_PA, "po1"); k.mark("po1")

def dna(k): return regloads(k, sDS, 0, lambda j: ar(192 + 4*j, 4), 16, "dna")

def tail_prep(k):
    R = R0
    A = lambda *t: [("a", lambda x=x: k.e(x)) for x in t]
    B = lambda *t: [("b", lambda: k.e(*t))]
    ops = A("v_and_b32 v73, 15, v1", "v_lshrrev_b32 v74, 4, v1", "v_lshlrev_b32 v73, 10, v73", "v_lshl_add_u32 v73, v74, 4, v73")
    ops += B(f"s_lshl_b32 s58, s{sB}, 2", f"s_add_u32 s58, s58, s{sW}", "s_lshl_b32 s58, s58, 14", f"s_lshl_b32 s59, s{sCS}, 7", "s_add_u32 s58, s58, s59")
    ops += [("v", lambda p=p: k.vm(f"buffer_load_dwordx4 {vr(RES+4*p,4)}, v73, {SRD_X}, s58 offen offset:{p*64}", "res")) for p in range(2)]
    ops += A("v_and_b32 v75, 3, v1", "v_cmp_eq_u32 s[34:35], 1, v75", "v_cmp_eq_u32 s[36:37], 2, v75", "v_cmp_eq_u32 s[38:39], 3, v75", "v_bfe_u32 v75, v1, 2, 2")
    ops += B("v_cmp_eq_u32 vcc, v75, v74", f"v_mov_b32 v72, {L_SA0 + 768}", f"s_lshl_b32 s59, s{sW}, 7", f"v_add_u32 v74, s59, v{R.SA}",
             "v_cndmask_b32 v74, v72, v74, vcc", f"v_cndmask_b32 v75, v72, v{R.SA}, vcc")
    return ops + [("a", f) for f in wo_lanes(k)]

def l0_background(k):
    k.per = dict(P.per_k)
    dd = dna(k)
    bg_list(k, dd[:P.dna_first], "s4", "dna", "gb")
    bg_list(k, wow(k), "s4", "wow", "xfree")
    bg_batches(k, [0, 1, 2, 3], "s2", lambda b: "xfree")
    bg_batches(k, [4], "s2", lambda b: "wobar")
    bg_batches(k, [5], "s2", lambda b: "xfree")
    bg_batches(k, [6, 7, 8, 9], "s2", lambda b: "gubar")
    bg_list(k, dd[P.dna_first:], "s4", "dna")
P.per_k = {"s2": 90, "s4": 70}

def a10_tail(k):
    R = R0
    k.per = dict(P.per_tail0)
    k.stamp("t0 gb")
    if (0, "xst", False) not in P.wt: k.touch(72, "t", [f"s_add_u32 s32, s65, {BS1[0]}"])
    k.bg_burst(P.tail_burst); k.bg_next = k.t + P.tail_delay
    hk, hv = z_acc("h")[1], z_acc("h")[2]
    for r in range(4):
        k.e(f"v_mov_b32_dpp v{CSQ+r}, v{Z_CV+r} row_newbcast:0 row_mask:0xf bank_mask:0xf", f"v_mov_b32_dpp v{CSK+r}, v{hk+r} row_newbcast:0 row_mask:0xf bank_mask:0xf")
    k.e(f"v_mov_b32 v{CSV}, v{hv}", f"v_mov_b32 v45, v{hv}", f"v_permlane16_swap_b32 v{CSV}, v45", f"v_mov_b32 v45, v{CSV}", f"v_permlane32_swap_b32 v{CSV}, v45")
    fa = Flex(); fb = Flex()
    for fx, S, G, ad, off in ((fa, Z_SUM, Z_GR, 74, 128), (fb, Z_SUMH, Z_GRH, 75, 0)):
        a = lambda txt, c=1, fx=fx: fx.add(lambda: k.e(txt), c)
        a(f"v_cndmask_b32 v{S+1}, v{G}, v{G+1}, s[34:35]"); a(f"v_cndmask_b32 v{S+1}, v{S+1}, v{G+2}, s[36:37]"); a(f"v_cndmask_b32 v{S+1}, v{S+1}, v{G+3}, s[38:39]")
        ln_finish(a, S, S + 1); a(f"v_rsq_f32 v{S+1}, v{S+1}"); fx.skip(1)
        fx.add(lambda S=S, ad=ad, off=off: k.ds(f"ds_write_b64 v{ad}, {vr(S,2)} offset:{off}", "saw"))
    drain([fa, fb], k)
    for f in blanks(k, 0): f()
    k.wait(lg="all"); k.e("s_barrier"); k.mark("xfree")
    k.stamp("t0 bar")
    fx = Flex(); f1 = Flex(); f2 = Flex()
    od = (2, 1, 3, 0, "h"); Ss = (A_STA, 56)
    for f in fix_reads(k, R, od[0], Ss[0]): f()
    for n, t in enumerate(od):
        fix(k, R, fx, t, z_acc(t), 0, True, Ss[n & 1], True, fix_reads(k, R, od[n + 1], Ss[~n & 1]) if n < 4 else ()); fx.skip(1)
    attn(k, R, f1, 2, R.ATT[0]); attn(k, R, f2, 3, R.ATT[1]); ostore(k, f2, 1)
    attn(k, R, f1, 1, R.ATT[0]); attn(k, R, f2, 0, R.ATT[1]); ostore(k, f2, 0)
    f3 = Flex(); f3.dep(("ost", 1))
    for _ in range(P.l0_flag_delay): f3.skip(1)
    f3.add(lambda: (k.wait(vm=[("ost", 1)]), k.flag(1, 89), k.mark("oflag1")))
    f3.dep(("attn", 0)); f3.add(lambda: wo_prepoll(k, 0))
    drain([fx, f1, f2, f3], k)
    k.stamp("a1 end")
P.tail_burst = 2; P.tail_delay = 0; P.l0_flag_delay = 6; P.dna_first = 2
P.per_tail0 = {"s2": 70, "s4": 45}

def a11_bases(k):
    out = []
    S = lambda *t: out.extend(lambda x=x: k.e(x) for x in t)
    S(f"s_lshr_b32 s70, s{sW}, 1", "s_lshl_b32 s49, s70, 13", f"s_and_b32 s71, s{sW}, 1", "s_lshl_b32 s71, s71, 2",
      f"s_add_u32 s50, s71, s{sROT}", "s_lshl_b32 s71, s71, 10")
    for i in range(4):
        S(f"s_add_u32 s70, s50, {i}", "s_and_b32 s70, s70, 7", "s_lshl_b32 s70, s70, 10", "s_add_u32 s70, s70, s49", f"s_sub_u32 s{92+i}, s70, {i*1024}")
    S("s_add_u32 s49, s49, s71", f"s_lshl_b32 s47, s{sB}, 16", f"s_add_u32 s47, s47, {BX2()}")
    S(f"s_sub_u32 s48, s{sB}, 1", "s_max_i32 s48, s48, 0", "s_lshl_b32 s51, s48, 10", f"s_add_u32 s51, s51, {WS_HST}",
      "s_lshl_b32 s52, s48, 11", f"s_add_u32 s52, s52, {WS_HXF}", "s_lshl_b32 s48, s48, 14", f"s_add_u32 s48, s48, {WS_HALO}")
    S("v_lshrrev_b32 v28, 4, v1", "v_and_b32 v29, 15, v1", "v_lshlrev_b32 v29, 4, v29", f"v_lshl_add_u32 v{A_U}, v28, 9, v29", f"v_lshl_add_u32 v{A_U+1}, v28, 8, v29")
    S(f"s_lshl_b32 s70, s{sB}, 12", f"s_and_b32 s71, s{sW}, 1", "s_lshl_b32 s71, s71, 8", "s_add_u32 s70, s70, s71", f"s_add_u32 s90, s70, {BS2()}")
    out.append(lambda: k.e(f"s_lshl_b32 s70, s{sB}, 1", f"s_add_u32 s70, s70, s{sW}", "s_lshl_b32 s72, s70, 13", f"s_lshl_b32 s71, s{sCS}, 10", "s_add_u32 s72, s72, s71",
        f"s_add_u32 s72, s72, {WS_HALO - 16384}", f"s_cmp_ge_u32 s{sW}, 2", f"s_cselect_b32 s72, s72, {OOB>>1:#x}"))
    out.append(lambda: k.e(f"s_lshl_b32 s73, s{sB}, 10", f"s_lshr_b32 s71, s{sCS}, 1", "s_lshl_b32 s71, s71, 8", "s_add_u32 s73, s73, s71", f"s_and_b32 s71, s{sCS}, 1",
        "s_lshl_b32 s71, s71, 3", "s_add_u32 s73, s73, s71"))
    out.append(lambda: k.e(f"s_lshl_b32 s71, s{sW}, 7", "s_add_u32 s73, s73, s71", f"s_add_u32 s73, s73, {WS_HST - 256}",
        f"s_cmp_ge_u32 s{sW}, 2", f"s_cselect_b32 s73, s73, {OOB>>1:#x}"))
    out.append(lambda: k.e(f"s_lshl_b32 s70, s{sB}, 3", f"s_add_u32 s70, s70, s{sCS}", "s_lshl_b32 s70, s70, 1", f"s_add_u32 s70, s70, s{sW}", "s_lshl_b32 s70, s70, 7",
        f"s_add_u32 s70, s70, {WS_HXF - 256}", f"s_cmp_ge_u32 s{sW}, 2", f"s_cselect_b32 s91, s70, {OOB>>1:#x}"))
    return out

def a11_x(k, tile):
    fns = []
    for i in range(4):
        def f(i=i):
            k.set_m0(f"s_add_u32 m0, s49, {A11_POS[tile]*16384}")
            k.e(f"s_add_u32 s32, s{48 if tile == 'h' else 47}, s{92+i}")
            if tile not in (0, "h"): k.e(f"s_add_u32 s32, s32, {tile*16384}")
            k.vm(f"buffer_load_dwordx4 v{vL16}, {SRD_WS}, s32 offen offset:{i*1024} sc1 lds", ("x", tile))
        fns.append(f)
    return fns

def stats_path(k, fx, S, tag, addr, tok, at=0):
    a = lambda txt, c=1: fx.add(lambda: k.e(txt), c)
    s, q = S, S + 1
    fx.add(lambda: k.wait(vm=[tag]), 1, at)
    a(f"v_add_f32 v{s}, v{s}, v{S+2}"); a(f"v_add_f32 v{q}, v{q}, v{S+3}"); fx.skip(1)
    a(f"v_permlane16_swap_b32 v{s}, v{q}", 2); a(f"v_add_f32 v{s}, v{s}, v{q}"); a(f"v_mov_b32 v{q}, v{s}"); fx.skip(1)
    a(f"v_permlane32_swap_b32 v{s}, v{q}", 2); a(f"v_add_f32 v{s}, v{s}, v{q}"); a(f"v_mov_b32 v{q}, v{s}"); fx.skip(1)
    a(f"v_permlane16_swap_b32 v{s}, v{q}", 2)
    ln_finish(a, s, q); a(f"v_rsq_f32 v{q}, v{q}", 2); fx.skip(1)
    fx.add(lambda: (k.ds(f"ds_write_b64 v{addr}, {vr(s,2)} offset:{tok*8}", ("saw", tag)), k.mark(("saw", tag))))

def a11_early(k, later=False):
    fns = a11_x(k, A11_ORDER[0]) + [lambda: k.vm(f"buffer_load_dwordx4 {vr(A_ST,4)}, v{A_U}, {SRD_WS}, s90 offen offset:2048 sc1", "st0")] + a11_x(k, A11_ORDER[1])
    if later: return fns
    for f in fns: f()

def a11_main(k):
    R = R1; order = A11_ORDER
    steps = [(t, s) for t in order for s in range(16)]
    accof = lambda t: A_ACC + 12 * (order.index(t) % 3)
    def xread(i):
        t, s = steps[i]
        off = A11_POS[t] * 16384 + (s >> 1) * 1024
        k.ds(f"ds_read_b128 {vr(A_XF+4*(i%4),4)}, v{R.XO if s&1 else R.XE} offset:{off}", ("xf", i))
    mains = []; fixed = {}; gap_of = {}
    need_sa = {order[1]: ["st0"], order[2]: ["st1"], order[3]: [], "h": []}
    for i, (t, s) in enumerate(steps):
        acc = accof(t); xf = vr(A_XF + 4*(i % 4), 4)
        c = lambda r, s=s: "0" if s == 0 else vr(r, 4)
        ms = []
        if t != "h": ms.append(f"{MF16} {vr(acc,4)}, {ar(12*s,4)}, {xf}, {c(acc)}")
        ms.append(f"{MF16} {vr(acc+4,4)}, {ar(12*s+4,4)}, {xf}, {c(acc+4)}")
        ms.append(f"{MF16} {vr(acc+8,4)}, {xf}, {ar(12*s+8,4)}, {c(acc+8)}")
        gap_of[(t, s)] = len(mains)
        for m in ms: mains.append(lambda m=m: k.e(m))
        last = len(mains) - 1
        fl_ = fixed.setdefault(last, [])
        if i + 1 < len(steps): fl_.append((0, lambda i=i: k.wait(lg=[("xf", i + 1)])))
        j = i + 4
        if j < len(steps):
            tj, sj = steps[j]
            if sj == 0:
                def bar(tj=tj):
                    k.wait(vm=[("x", tj)], lg=[("saw", n) for n in need_sa[tj]]); k.e("s_barrier"); k.mark(("bar", tj))
                fixed.setdefault(gap_of[(t, s)], []).append((1, bar))
            fixed[last].append((1, lambda j=j: xread(j)))
    fx = Flex(); fz = Flex(); fz2 = Flex(); fy = Flex(); fm = Flex()
    k.e(f"s_and_b32 s32, s{sW}, 1", "s_lshl_b32 s32, s32, 7", f"v_add_u32 v7, s32, v{R.SA}")
    o_bases(k, 1)
    stats_path(k, fy, A_ST, "st0", 7, 48)
    g1 = P.a1_late_gap
    fm.add(lambda: (k.wait(vm=[("xst", 1)]), k.flag(2)), 3, P.a1_flag_gap)
    fm.add(lambda: (k.poll_issue(A_PX, "px2"), setattr(k, "bg_held", not P.a1_bg_early)), 1, g1 - P.a1_poll_lead)
    fm.add(lambda: k.poll_check(A_PX, "px2", 2), 2, g1)
    fm.add(lambda: k.vm(f"buffer_load_dwordx4 {vr(56,4)}, v{A_U}, {SRD_WS}, s90 offen sc1", "st1"))
    for t in order[2:4]:
        for f in a11_x(k, t): fm.add(f, 2); fm.skip(P.a1_xgap)
    for f in wo_lanes(k): fy.add(f)
    fy.add(lambda: k.mark("wolanes"), 0)
    fm.dep("wolanes")
    fm.add(lambda: k.e(f"s_add_u32 s58, s64, {BX2()}"))
    for p in range(2): fm.add(lambda p=p: k.vm(f"buffer_load_dwordx4 {vr(RES+4*p,4)}, v{W_UA}, {SRD_WS}, s58 offen offset:{p*512} sc1", "res")); fm.skip(P.a1_xgap)
    def halo_poll():
        k.poll_addr(A_PX, 16, 7)
        k.e(f"s_mov_b32 s{sPO}, s52", f"s_min_u32 s50, s{sB}, 1")
        k.poll_issue(A_PX, "phx"); k.bg_held = False
    fm.add(halo_poll, 3)
    for c in P.t1_a1:
        if c == "o": fm.add(lambda: k.touch(60, "p", ["s_mov_b32 s32, s53"]), 6)
        if c == "x": fm.add(lambda: k.touch(62, "q", [f"s_add_u32 s32, s64, {BX1[1]}"]), 6)
        if c == "s": fm.add(lambda: k.touch(64, "t", [f"s_add_u32 s32, s65, {BS1[1]}"]), 4)
    for f in blanks(k, 1): fm.skip(P.a1_xgap); fm.add(f, 3)
    stats_path(k, fy, 56, "st1", 7, 16, g1 + 26)
    fm.dep(("bar", order[2]))
    fm.add(lambda: k.poll_check(A_PX, "phx", "s50"), 2)
    fm.add(lambda: k.vm(f"buffer_load_dwordx4 {vr(A_ST,4)}, v{A_U+1}, {SRD_WS}, s51 offen sc1", "sth"))
    for f in a11_x(k, "h"): fm.add(f, 2); fm.skip(P.a1_xgap)
    stats_path(k, fy, A_ST, "sth", R.SA, 0, gap_of[(order[3], P.a1_sth)])
    k.per = dict(P.per_a1); k.bg_held = True
    b5 = batch(k, 5)
    mix = [(f, "s2", ("gw", 4), None) for f in batch(k, 4)] + [(f, "s2", ("gw", 5), None) for f in b5[:3]]
    ww = [(f, "s4", "wow", None) for f in wow(k)]
    while mix or ww:
        k.bg += ww[:2]; ww = ww[2:]
        if mix: k.bg.append(mix.pop(0))
    bg_batches(k, [0], "s2", lambda b: ("bar", order[3]))
    bg_batches(k, [1], "s2", lambda b: ("bar", "h"))
    bg_batches(k, [2, 3], "s2", lambda b: "wobar")
    bg_list(k, b5[3:], "s2", ("gw", 5), "wobar")
    if P.dn1_agpr:
        for j, f in enumerate(regloads(k, sDS, 16*1024, lambda j: ar(4*j, 4), 40, "dnr", tagf=lambda j: ("dnr", 8 + j // 2))): k.bg_add(f, "s4", ("dnr", 8 + j // 2), "gemm_done")
    bg_batches(k, [6, 7, 8, 9], "s2", lambda b: "gubar")
    A = lambda t: (accof(t) if t != "h" else None, accof(t) + 4, accof(t) + 8)
    for n in range(4): fix(k, R, fx, order[n], A(order[n]), gap_of[(order[n + 1], 1 if n < 3 else 2)], False)
    attn(k, R, fz, 3, R.ATT[0]); attn(k, R, fz2, 2, R.ATT[1]); ostore(k, fz2, 1)
    attn(k, R, fz, 1, R.ATT[0])
    fx.dep(("saw", "sth"))
    for f in fix_reads(k, R, "h", A_STA): fx.add(f)
    fx.dep("gemm_done")
    fix(k, R, fx, "h", A("h"), 0, False, pre=True); attn(k, R, fz2, 0, R.ATT[1]); ostore(k, fz2, 0)
    f3 = Flex(); f3.dep(("ost", 1)); f3.skip(P.l1_flag_delay)
    f3.add(lambda: (k.wait(vm=[("ost", 1)]), k.flag(1, 89), k.mark("oflag1")), 3)
    f3.dep(("attn", 0)); f3.add(lambda: wo_prepoll(k, 1))
    k.wait(vm=[("x", order[0])]); k.e("s_barrier")
    for i in range(4): xread(i)
    k.wait(lg=[("xf", 0)])
    k.stamp("a1 first")
    if k.stamping:
        for t in order[1:]: fixed.setdefault(gap_of[(t, 0)], []).append((0, lambda t=t: k.stamp(f"a1 t{t}")))
        for g in range(6, 224, 12): fixed.setdefault(g, []).append((0, lambda g=g: k.stamp(f"fina {g}")))
    run_gaps(k, mains, fixed, [fm, f3, fy, fx, fz2, fz], 2, over=lambda i: i >= P.a1_over)
    print("a11 left:", len(fm), len(fy), len(fx), len(fz), len(fz2), len(k.bg), {n: g for n, g in k.marks.items() if isinstance(n, tuple) and n[0] in ("fix", "attn", "saw", "ost")})
    k.mark("gemm_done"); k.bg_held = P.a1_tailhold
    k.stamp("a1 gemm")
    drain([fm, fy, fx, fz, fz2, f3], k)
    for n in range(2): assert k.marks[("fix", order[n])] < gap_of[(order[n + 3], 0)], "accumulator reused too early"
    k.stamp("a1 end")
P.a1_flag_gap, P.a1_late_gap, P.a1_poll_lead, P.l1_flag_delay, P.a1_over = 8, 36, 18, 14, 48
P.a1_bg_early = False; P.a1_salead = 8; P.a1_tailhold = True; P.touch1 = 1; P.t1_a1 = ''; P.t1_dn = ''; P.a1_xgap = 3; P.a1_sth = 4
P.per_a1 = {"s2": 80, "s4": 50}

R_W0, R_W1, R_RD, R_ST, R_OUT = 3, 4, 5, 6, 7
def red_setup(k, posA, dAB):
    x, y, z, u = 28, 29, 30, 31
    k.e(f"s_add_u32 s32, s{sGL}, {posA*16384}", f"v_add_u32 v{R_W0}, s32, v{vL16}", f"v_xor_b32 v{R_W1}, 128, v{R_W0}")
    k.e(f"v_and_b32 v{x}, 7, v1", f"v_lshrrev_b32 v{y}, 3, v1", f"s_lshl_b32 s32, s{sW}, 7", f"v_lshl_add_u32 v{z}, v{x}, 4, s32",
        f"v_bfe_u32 v{u}, v1, 4, 1", f"v_lshlrev_b32 v{R_RD}, 7, v{u}", f"v_xor_b32 v{z}, v{z}, v{R_RD}",
        f"v_bfe_u32 v{R_RD}, v1, 3, 2", f"v_lshl_add_u32 v{z}, v{R_RD}, 10, v{z}", f"v_lshrrev_b32 v{R_RD}, 5, v1",
        f"v_mul_u32_u24 v{R_RD}, {dAB*16384}, v{R_RD}", f"v_add_u32 v{z}, v{z}, v{R_RD}", f"v_add_u32 v{R_RD}, {posA*16384}, v{z}")
    k.e(f"v_lshlrev_b32 v{z}, 4, v{x}", f"v_lshl_add_u32 v{z}, v{u}, 2, v{z}", f"v_and_b32 v{u}, 0x28, v1",
        f"v_cmp_eq_u32 vcc, 0, v{u}", f"v_mov_b32 v{u}, {OOB:#x}", f"v_cndmask_b32 v{R_ST}, v{u}, v{z}, vcc")
    k.e(f"v_lshlrev_b32 v{z}, 10, v{x}", f"v_lshl_add_u32 v{R_OUT}, v{y}, 4, v{z}")

def red_bases(k):
    k.e(f"s_lshl_b32 s32, s{sB}, 3", f"s_add_u32 s32, s32, s{sW}", "s_lshl_b32 s55, s32, 13", f"s_lshl_b32 s33, s{sCS}, 10", "s_add_u32 s55, s55, s33")
    k.e("s_lshl_b32 s57, s32, 13", f"s_lshl_b32 s33, s{sCS}, 7", "s_add_u32 s57, s57, s33")
    k.e(f"s_lshl_b32 s56, s{sB}, 12", f"s_lshr_b32 s33, s{sCS}, 1", "s_lshl_b32 s33, s33, 9", "s_add_u32 s56, s56, s33",
        f"s_and_b32 s33, s{sCS}, 1", "s_lshl_b32 s33, s33, 3", "s_add_u32 s56, s56, s33", f"s_lshl_b32 s33, s{sW}, 7", "s_add_u32 s56, s56, s33")

def red_writes(k, acc, g, off, dAB):
    return [lambda q=q: k.ds(f"ds_write_b128 v{R_W1 if (q>>1)&1 else R_W0}, {vr(acc+4*q,4)} offset:{off + (q>>2)*dAB*16384 + (q&3)*1024}", ("rw", g)) for q in range(8)]
def red_reads(k, g, T, off):
    return [lambda w=w, hf=hf: k.ds(f"ds_read_b128 {vr(T+8*w+4*hf,4)}, v{R_RD} offset:{off + w*4096 + hf*512}", ("rr", g, w)) for w in range(4) for hf in range(2)]

def red_finish(k, fx, g, mm, T, xdst, stdst, final, pk):
    a = lambda txt, c=1: fx.add(lambda: k.e(txt), c)
    R = RES + 4 * mm
    def add8(d, s):
        if pk:
            for i in range(0, 8, 2): a(f"v_pk_add_f32 {vr(d+i,2)}, {vr(d+i,2)}, {vr(s+i,2)}")
        else:
            for i in range(8): a(f"v_add_f32 v{d+i}, v{d+i}, v{s+i}")
    fx.add(lambda: k.wait(lg=[("rr", g, 1)]))
    add8(T, T + 8)
    for i in range(4): a(f"v_lshlrev_b32 v{T+8+2*i}, 16, v{R+i}"); a(f"v_and_b32 v{T+9+2*i}, 0xffff0000, v{R+i}")
    add8(T, T + 8)
    fx.add(lambda: k.wait(lg=[("rr", g, 3)]))
    add8(T + 16, T + 24); add8(T, T + 16)
    for i in range(4): a(f"v_cvt_pk_bf16_f32 v{R+i}, v{T+2*i}, v{T+2*i+1}")
    if final:
        fx.add(lambda: (k.e(f"s_add_u32 s32, s57, {mm*32768}"), k.vm(f"buffer_store_dwordx4 {vr(R,4)}, v{R_OUT}, {SRD_OUT}, s32 offen {P.outm[g]}", ("xst", g))))
        return
    fx.add(lambda: (k.e(f"s_add_u32 s32, s55, {xdst + mm*32768}"), k.dstore(f"buffer_store_dwordx4 {vr(R,4)}, v{vL16}, {SRD_WS}, s32 offen", ("xst", g))), 2)
    s, q = T + 32, T + 33
    a(f"v_add_f32 v{s}, v{T}, v{T+1}"); a(f"v_mul_f32 v{q}, v{T}, v{T}"); a(f"v_fmac_f32 v{q}, v{T+1}, v{T+1}")
    for i in range(2, 8): a(f"v_add_f32 v{s}, v{s}, v{T+i}"); a(f"v_fmac_f32 v{q}, v{T+i}, v{T+i}")
    fx.skip(1)
    a(f"v_add_f32_dpp v{s}, v{s}, v{s} row_ror:8 row_mask:0xf bank_mask:0xf"); a(f"v_add_f32_dpp v{q}, v{q}, v{q} row_ror:8 row_mask:0xf bank_mask:0xf")
    fx.skip(1)
    a(f"v_permlane16_swap_b32 v{s}, v{q}", 2); a(f"v_add_f32 v{s}, v{s}, v{q}"); a(f"v_mov_b32 v{q}, v{s}"); fx.skip(1)
    a(f"v_permlane32_swap_b32 v{s}, v{q}", 2); a(f"v_add_f32 v{s}, v{s}, v{q}")
    fx.add(lambda: (k.e(f"s_add_u32 s32, s56, {stdst + mm*2048}"), k.dstore(f"buffer_store_dword v{s}, v{R_ST}, {SRD_WS}, s32 offen", ("xst", g)), k.mark(("xst", g))), 2)

def merge(k, fx, extra, first=0):
    extra = list(extra)
    items = [it for it in fx.items if it[0] != "skip"]; fx.items = []
    per = max(1, (len(items) - first) // max(1, len(extra)))
    for n, it in enumerate(items):
        if n >= first and (n - first) % per == 0 and extra: extra.pop(0)()
        it[1](); k.bg_step()
    for f in extra: f(); k.bg_step()

def wo(k, layer):
    BF, WQ, ACC, T, PA, NQ = 32, 160, 192, 208, A_PA, 8
    state = {}
    def bload(sx):
        k.set_s(f"s_add_u32 s58, s59, {(sx & ~1)*2048}")
        k.vm(f"buffer_load_dwordx4 {vr(BF+4*sx,4)}, v{W_OA}, {SRD_WS}, s58 offen offset:{(sx%2)*2048} sc1", ("b", sx))
    def wread(n): k.ds(f"ds_read_b128 {vr(WQ+4*(n%NQ),4)}, v{W_RB} offset:{n*1024}", ("wq", n))
    k.wait(vm=["wow"]); k.e("s_barrier"); k.mark("wobar")
    k.stamp("wl bar")
    for n in range(NQ): wread(n)
    btxt = lambda sx: [f"s_add_u32 s99, s59, {sx*2048}", f"buffer_load_dwordx4 {vr(BF+4*sx,4)}, v{W_OA}, {SRD_WS}, s99 offen sc1"]
    bchk = lambda sx: k.valid([f"v_cmp_eq_u32 vcc, -1, v{BF+4*sx}"], btxt(sx))
    ptxt = f"buffer_load_dword v{T+20}, v{T+21}, {SRD_WS}, s59 offen sc1"
    if P.tags:
        k.e(f"v_lshlrev_b32 v{T+21}, 8, v{PA}")
        k.e(f"v_or_b32 v{T+21}, v{T+21}, v{PA}", f"v_and_b32 v{T+21}, 0x80007c00, v{T+21}")
        k.poll_check(PA, "po1", 1)
        k.vm(ptxt, "probe")
        for sx in range(P.wo_spec): bload(sx)
        k.e(f"s_lshl_b32 s32, s{sC}, 1", f"s_and_b32 s33, s{sW}, 1", "s_add_u32 s32, s32, s33", "s_lshl_b32 s32, s32, 7", f"s_add_u32 s{sPO}, s32, {fl(layer, FL_O)}")
    else:
        k.e(f"s_add_u32 s{sFO}, s66, {fl(layer, FL_X1)}")
        if P.wo_setup_first == 2: gu_setup(k, layer)
        k.wait(vm=[("ost", 0)]); k.stamp("wl ack"); k.flag(2, 89)
        k.e(f"s_cmp_lt_u32 s{sW}, 2", f"s_cbranch_scc1 L_wo_late{layer}")
        q0 = list(k.vmq)
        k.poll_check(PA, "po1", 1)
        for sx in range(P.wo_lead): bload(sx)
        if P.wo_setup_first == 1: gu_setup(k, layer)
        k.e(f"s_branch L_wo_join{layer}")
        k.label(f"L_wo_late{layer}")
        k.vmq = list(q0)
        if P.wo_setup_first == 1: gu_setup(k, layer)
        k.poll_issue(PA, "po2"); k.poll_wait(PA, "po2", 2, 157); k.stamp("wl go")
        for sx in range(P.wo_lead): bload(sx)
        k.label(f"L_wo_join{layer}")
    if P.tags or not P.wo_setup_first: gu_setup(k, layer)
    k.stamp("wo issued")
    mains = []; fixed = {}
    for n in range(64):
        sx, j = divmod(n, 4)
        mains.append(lambda n=n, sx=sx, j=j: k.e(f"{MF16} {vr(ACC+4*j,4)}, {vr(WQ+4*(n%NQ),4)}, {vr(BF+4*sx,4)}, {'0' if sx == 0 else vr(ACC+4*j,4)}"))
        fl_ = fixed.setdefault(n, [])
        if n < 63: fl_.append((0, lambda n=n: k.wait(vm=[("b", (n + 1) // 4)] if (n + 1) % 4 == 0 else None, lg=[("wq", n + 1)])))
        if P.tags and n < 63 and (n + 1) % 4 == 0: fl_.append((1, lambda n=n: bchk((n + 1) // 4)))
        if P.tags and n == 42: fl_.append((1, lambda: k.poll_issue(PA, "px1")))
        if n + NQ < 64: fl_.append((1, lambda n=n: wread(n + NQ)))
        if n % P.wo_bstep == 0 and P.wo_lead + n // P.wo_bstep < 16: fl_.append((1, lambda n=n: bload(P.wo_lead + n // P.wo_bstep)))
    fx = Flex()
    a = lambda txt, c=1, at=0: fx.add(lambda: k.e(txt), c, at)
    fx.add(lambda: k.wait(vm=["res"]), 1, 8)
    for i in range(8): a(f"v_lshlrev_b32 v{T+2*i}, 16, v{RES+i}"); a(f"v_and_b32 v{T+2*i+1}, 0xffff0000, v{RES+i}")
    k.per = dict(P.per_wo[layer]); k.bg_held = False; k.bg_next = k.t + P.wo_bg_delay
    if P.tags:
        k.wait(vm=["probe"])
        k.valid([f"v_cmp_eq_u32 vcc, -1, v{T+20}"], [ptxt] + sum([btxt(x) for x in range(P.wo_spec)], []))
        state["fresh"] = True
        for sx in range(P.wo_spec, P.wo_lead): bload(sx)
    k.wait(vm=[("b", 0)], lg=[("wq", 0)])
    if P.tags: bchk(0)
    k.stamp("wo first")
    fixed[P.wo_bg_stop].append((0, lambda: setattr(k, "bg_held", True)))
    run_gaps(k, mains, fixed, [fx], 2)
    drain([fx], k)
    k.stamp("wo gemm")
    for i in range(0, 16, 2): k.e(f"v_pk_add_f32 {vr(T+i,2)}, {vr(T+i,2)}, {vr(ACC+i,2)}")
    k.e(f"s_add_u32 s58, s64, {BX1[layer]}")
    for p in range(2):
        for i in range(4): k.e(f"v_cvt_pk_bf16_f32 v{RES+4*p+i}, v{T+8*p+2*i}, v{T+8*p+2*i+1}")
        k.dstore(f"buffer_store_dwordx4 {vr(RES+4*p,4)}, v{W_UA}, {SRD_WS}, s58 offen offset:{p*512}", "xst")
    S, Q = T + 16, T + 18
    k.e(f"v_pk_add_f32 {vr(S,2)}, {vr(T,2)}, {vr(T+2,2)}", f"v_pk_mul_f32 {vr(Q,2)}, {vr(T,2)}, {vr(T,2)}", f"v_pk_fma_f32 {vr(Q,2)}, {vr(T+2,2)}, {vr(T+2,2)}, {vr(Q,2)}")
    for i in range(4, 16, 2): k.e(f"v_pk_add_f32 {vr(S,2)}, {vr(S,2)}, {vr(T+i,2)}", f"v_pk_fma_f32 {vr(Q,2)}, {vr(T+i,2)}, {vr(T+i,2)}, {vr(Q,2)}")
    k.e(f"v_add_f32 v{S}, v{S}, v{S+1}", f"v_add_f32 v{Q}, v{Q}, v{Q+1}", f"s_add_u32 s58, s65, {BS1[layer]}",
        f"v_permlane16_swap_b32 v{S}, v{Q}", f"v_add_f32 v{S}, v{S}, v{Q}", f"v_mov_b32 v{Q}, v{S}", f"v_permlane32_swap_b32 v{S}, v{Q}", f"v_add_f32 v{S}, v{S}, v{Q}")
    k.dstore(f"buffer_store_dword v{S}, v{W_SA}, {SRD_WS}, s58 offen", "xst")
    key = lambda it: it[2][1] if (isinstance(it[2], tuple) and it[2][0] == "gw") else 11.5
    k.bg.sort(key=key)
    print(f"wo{layer} done, background left:", [it[2] for it in k.bg][::4])
    k.bg_burst(P.wo_win[layer])
    k.stamp("wo end")
P.wo_bg_delay = 750; P.wo_bg_stop = 63; P.wo_lead = 6; P.wo_spec = 3; P.gu_spec = 3; P.wo_bstep = 2
P.wo_poll_gap = 1; P.wo_late_gap = 7; P.wo_hold = True; P.wo_win = [4, 4]; P.wo_var = 'B'; P.wo_prew = 2
P.per_wo = [{"s2": 20, "s4": 20}] * 2

G_RB, G_C1, G_VV, G_AUG, G_X, G_ACC, G_WF, G_T = 3, 6, 7, 28, 32, 160, 224, 240
D_WV, D_BF, D_ACC, D_T, D_WF, D_RB, D_PA = 32, 64, 128, 192, 228, 112, 115
DN_SEQ = [(g, e) for g in range(2) for e in range(28)]
DN_GROUPS = [1, 0]
def h_loader(k, layer):
    def bload(i):
        if i == 0:
            k.e(f"s_mul_i32 s32, s{sB}, {224*KB}", f"s_mul_i32 s33, s{sW}, {28*KB}", "s_add_u32 s32, s32, s33", f"s_add_u32 s59, s32, {BH[layer]}")
            for p in range(4):
                k.e(f"s_add_u32 s32, s{sCS}, {p}", f"s_and_b32 s32, s32, {3 if P.hrot else 0}", f"s_mul_i32 s32, s32, {7*KB}", f"s_add_u32 s{34+p}, s59, s32")
                if not P.hrot: k.e(f"s_add_u32 s{34+p}, s{34+p}, {7*KB*p}")
        g, e = DN_SEQ[i]; p, tl = divmod(KK_OF[e], 7)
        k.set_s(f"s_add_u32 s58, s{34+p}, {DN_GROUPS[g] * 112 * KB + (tl & 4) * 1024}")
        k.vm(f"buffer_load_dwordx4 {vr(D_BF+4*(i%P.dn_lead),4)}, v{vL16}, {SRD_WS}, s58 offen offset:{(tl & 3)*1024} sc1", ("b", i))
    return bload

def gu_setup(k, layer):
    T = G_T; XA = T + 3
    k.e(*gu_tile("s50"))
    k.e(f"v_and_b32 v{T}, 31, v1")
    k.e(f"v_mov_b32 v{G_RB}, v{vL16}", f"v_add_u32 v{G_RB+1}, 0x10000, v{vL16}", f"v_add_u32 v{G_RB+2}, 0x20000, v{vL16}")
    k.e(f"v_lshrrev_b32 v{T+1}, 5, v1", f"v_lshlrev_b32 v{G_AUG+3}, 4, v{T}", f"v_lshl_add_u32 v{G_AUG+3}, v{T+1}, 10, v{G_AUG+3}")
    k.e(f"v_lshrrev_b32 v{XA}, 3, v{T}", f"v_lshlrev_b32 v{XA}, 13, v{XA}", f"v_lshl_add_u32 v{XA}, v{T+1}, 7, v{XA}",
        f"v_and_b32 v{T}, 7, v1", f"v_lshl_add_u32 v{XA}, v{T}, 4, v{XA}")
    k.e("s_lshl_b32 s32, s50, 11", f"s_add_u32 s51, s32, {BS1[layer]}")
    k.e("s_lshl_b32 s32, s50, 15", f"s_add_u32 s52, s32, {BX1[layer]}", "s_add_u32 s53, s52, 4096")
    k.e(*h_base("s54", layer))
    k.e("s_lshr_b32 s32, s50, 1", "s_lshl_b32 s32, s32, 4", f"s_add_u32 s32, s32, s{sM}",
        "s_lshl_b32 s32, s32, 1", "s_and_b32 s33, s50, 1", "s_add_u32 s32, s32, s33", "s_lshl_b32 s32, s32, 2", f"s_add_u32 s81, s32, {fl(layer, FL_H)}")

def gu(k, layer):
    T = G_T; XA = T + 3; PA = T + 2
    if P.tags: k.poll_check(A_PA, "px1", 1)
    else:
        def pa():
            k.poll_addr(PA, 16)
            k.e("s_lshl_b32 s32, s50, 6", f"s_add_u32 s{sPO}, s32, {fl(layer, FL_X1)}")
        if not P.gu_pa_late: pa()
        k.wait(vm=["xst"]); k.flag(1)
        if P.gu_pa_late: pa()
        k.stamp("x1 flag")
        if not P.gu_bar_first: k.poll_issue(PA, "px1")
    k.e(f"s_mov_b32 s{sFO}, s81")
    seq = [(t, ks) for ks in range(33) for t in range(3)] + [(t, ks) for t in range(3, 7) for ks in range(33)]
    accof = {0: 0, 1: 1, 2: 2, 3: 3, 4: 0, 5: 1, 6: 2}
    NW = P.gu_nw
    WQ = [G_WF, G_WF + 4, G_WF + 8, G_WF + 12, T + 12]
    def wread(n):
        slot = (n % 160) * 1024
        k.ds(f"ds_read_b128 {vr(WQ[n%NW],4)}, v{G_RB + (slot>>16)} offset:{slot & 0xffff}", ("wf", n))
    BARS = P.gu_bars[layer]
    cover = lambda bi: [("gw", b) for b in range(bi, min([x for x in BARS if x > bi] + [15]))]
    def ringbar():
        k.wait(vm=cover(0)); k.e("s_barrier"); k.mark("gubar")
        for n in range(NW): wread(n)
    if P.gu_bar_first: ringbar(); k.poll_issue(PA, "px1")
    if not P.tags: k.poll_wait(PA, "px1", 1, 20)
    k.stamp("gu go")
    xtxt = lambda kg: f"buffer_load_dwordx4 {vr(G_X+4*kg,4)}, v{XA}, {SRD_WS}, s{52 + (kg>>4)} offen offset:{((kg>>2)&3)*1024 + (kg&3)*256} sc1"
    def xload(kg): k.vm(xtxt(kg), ("gx", kg))
    xchk = lambda kg: k.valid([f"v_cmp_eq_u32 vcc, -1, v{G_X+4*kg}"], [xtxt(kg)])
    stxt = [f"buffer_load_dwordx4 {vr(T+4+4*h,4)}, v{G_AUG+3}, {SRD_WS}, s51 offen offset:{512*h} sc1" for h in range(2)]
    if P.tags:
        for t_ in stxt: k.vm(t_, "gst")
        for kg in range(P.gu_spec): xload(kg)
        k.wait(vm=["gst"])
        k.valid([f"v_max3_u32 v{T}, v{T+4}, v{T+6}, v{T+8}", f"v_max_u32 v{T}, v{T}, v{T+10}", f"v_cmp_eq_u32 vcc, -1, v{T}"],
                stxt + [xtxt(x) for x in range(P.gu_spec)])
        k.stamp("gu probe")
        for kg in range(P.gu_spec, P.gu_lead): xload(kg)
    else:
        for kg in range(P.gu_lead): xload(kg)
        for t_ in stxt: k.vm(t_, "gst")
    if not P.gu_bar_first: ringbar()
    mains = []; fixed = {}
    xpos = {}
    for kg in range(P.gu_lead, 32): xpos.setdefault(int((kg - P.gu_lead) * P.gu_xstep), []).append(kg)
    for n, (t, ks) in enumerate(seq):
        acc = G_ACC + 16 * accof[t]
        b = vr(G_AUG, 4) if ks == 32 else vr(G_X + 4*ks, 4)
        c = "0" if ks == 0 else vr(acc, 16)
        mains.append(lambda n=n, acc=acc, b=b, c=c: k.e(f"{MF32} {vr(acc,16)}, {vr(WQ[n%NW],4)}, {b}, {c}"))
        fl_ = fixed.setdefault(n, [])
        if n + 1 < len(seq):
            t2, ks2 = seq[n + 1]
            need = [("gx", ks2)] if (t2 == 0 and ks2 < 32) else None
            fl_.append((0, lambda n=n, need=need: k.wait(vm=need, lg=[("wf", n + 1)])))
            if need and P.tags: fl_.append((2, lambda ks2=ks2: xchk(ks2)))
        j = n + NW
        if j < len(seq):
            if j % 16 == 0 and j // 16 in BARS:
                fl_.append((2, lambda bi=j//16: (k.wait(vm=cover(bi)), k.e("s_barrier"), [k.mark(("gbar", b)) for b in range(bi + 1)])))
            fl_.append((1, lambda j=j: wread(j)))
        for kg in xpos.get(n, []): fl_.append((1, lambda kg=kg: xload(kg)))
    xend = max(xpos)
    tail = [it for it in k.bg if it[2] == "dna" or it[2][0] == "dnr"]; k.bg = [it for it in k.bg if not (it[2] == "dna" or it[2][0] == "dnr")]
    bg_batches(k, range(10, 15), "s2", lambda b: ("gbar", b - 8))
    first, ratio = P.gu_mix[layer]
    mid = k.bg[first:]; k.bg = k.bg[:first]; acc_ = 0.0
    while mid or tail:
        if mid: k.bg.append(mid.pop(0))
        acc_ += ratio
        while tail and (acc_ >= 1 or not mid): k.bg.append(tail.pop(0)); acc_ -= 1
    direct = layer == 1 and P.dn1_agpr
    if not direct: bg_batches(k, range(15, 23), "s4", lambda b: ("gbar", b - 8))
    k.per = dict(P.per_guA[layer]); k.bg_held = False; k.bg_next = k.t + P.gu_bg_delay
    fixed[xend].append((0, lambda: setattr(k, "per", dict(P.per_guB[layer]))))
    fv = Flex()
    dv = regloads(k, sDS, 48*1024, lambda j: vr(D_WV + 4*j, 4), 8, "dnv")
    k.hload = h_loader(k, layer)
    if direct: pass
    elif P.hpre:
        bg_list(k, dv, "s4", "dnv", "xdead")
        fixed[207].append((0, lambda: k.mark("xdead")))
    else:
        for j, f in enumerate(dv): fv.add(f, 1, 198 + 2 + 3*j)
    fx = Flex()
    a = lambda txt, c=1, at=0: fx.add(lambda: k.e(txt), c, at)
    fx.add(lambda: k.wait(vm=["gst"]), 1, 3 * P.gu_lead)
    a(f"v_add_f32 v{T+4}, v{T+4}, v{T+6}"); a(f"v_add_f32 v{T+5}, v{T+5}, v{T+7}"); a(f"v_add_f32 v{T+8}, v{T+8}, v{T+10}"); a(f"v_add_f32 v{T+9}, v{T+9}, v{T+11}")
    a(f"v_add_f32 v{T+4}, v{T+4}, v{T+8}"); a(f"v_add_f32 v{T+5}, v{T+5}, v{T+9}"); fx.skip(1)
    a(f"v_permlane32_swap_b32 v{T+4}, v{T+5}", 2); a(f"v_add_f32 v{T+4}, v{T+4}, v{T+5}"); a(f"v_mov_b32 v{T+5}, v{T+4}"); fx.skip(1)
    a(f"v_permlane32_swap_b32 v{T+4}, v{T+5}", 2)
    ln_finish(a, T + 4, T + 5)
    a(f"v_mov_b32 v{G_VV}, v{T+5}")
    a(f"v_rsq_f32 v{G_C1}, v{T+5}", 2); a(f"v_cvt_pk_bf16_f32 v{G_AUG}, v{T+4}, v{T+4}"); a(f"v_mul_f32 v{G_C1}, {f2u(-LOG2E):#x}, v{G_C1}")
    a(f"v_and_b32 v{T+5}, 0xffff0000, v{G_AUG}"); a(f"v_sub_f32 v{T+5}, v{T+4}, v{T+5}"); a(f"v_mov_b32 v{G_AUG+2}, 0")
    a(f"v_cvt_pk_bf16_f32 v{G_AUG+1}, v{T+5}, v{G_AUG+2}"); a(f"v_mov_b32 v{G_AUG+3}, 0")
    fx.add(lambda: k.mark("aug"), 0)
    def epi(t, at):
        acc = G_ACC + 16 * accof[t]; hp = (T + 8, RES + 4)[t & 1]; E = T + 4
        if t >= 2: fx.dep(("hst", t - 2))
        if P.x_noepi: a("s_nop 0", 1, at)
        for i0 in range(0, 8 if not P.x_noepi else 0, 2):
            for i in (i0, i0 + 1): a(f"v_mul_f32 v{E+(i&1)}, v{G_C1}, v{acc+i}", 1, at)
            for i in (i0, i0 + 1): a(f"v_exp_f32 v{E+(i&1)}, v{E+(i&1)}", 2)
            for i in (i0, i0 + 1): a(f"v_mul_f32 v{E+2+(i&1)}, v{acc+i}, v{acc+8+i}")
            for i in (i0, i0 + 1): a(f"v_fma_f32 v{E+(i&1)}, v{E+(i&1)}, v{G_VV}, v{G_VV}")
            for i in (i0, i0 + 1): a(f"v_rcp_f32 v{E+(i&1)}, v{E+(i&1)}", 2)
            fx.skip(1)
            for i in (i0, i0 + 1): a(f"v_mul_f32 v{E+2+(i&1)}, v{E+2+(i&1)}, v{E+(i&1)}")
            a(f"v_cvt_pk_bf16_f32 v{hp+i0//2}, v{E+2}, v{E+3}")
        fx.add(lambda: k.mark(("epi", t)), 0)
        txt = f"buffer_store_dwordx4 {vr(hp,4)}, v{vL16}, {SRD_WS}, s{54 if t < 4 else 82} offen offset:{(t%4)*1024}"
        plain = (layer and P.h1_plain) or (not layer and P.h_touch0)
        if P.h_np > 1 and t < P.h_stag and not plain:
            fx.add(lambda: k.mark(("hrdy", t)), 0)
            fh.dep(("hrdy", t))
            for j in range(P.h_np):
                def pos(j=j):
                    n = k.nspin; k.nspin += 1
                    k.e(f"s_cmp_lg_u32 s83, {j}", f"s_cbranch_scc1 L_sk{n} ;np", txt + " sc1 ;opt", f"L_sk{n}: ;np")
                    if j == P.h_np - 1:
                        k.vmq.append(("hst", t)); k.seen.add(("hst", t)); k.phantom.add(("hst", t)); k.mark(("hst", t))
                fh.add(pos, P.h_cost)
                if j < P.h_np - 1: fh.skip(P.h_d)
            if t >= 2: pass
        else:
            k.phantom.discard(("hst", t))
            fx.add(lambda: ((k.dstore if plain else lambda x, tg: k.vm(x + " sc1", tg))(txt, ("hst", t)), k.mark(("hst", t))), 2)
    fh = Flex()
    k.e("s_add_u32 s82, s54, 4096", f"s_lshl_b32 s32, s{sW}, {max(P.h_np.bit_length() - 3, 0)}", f"s_add_u32 s32, s32, s{sM}", f"s_add_u32 s32, s32, s{sC}", f"s_and_b32 s83, s32, {P.h_np - 1}")
    end = {t: max(n for n, x in enumerate(seq) if x[0] == t) for t in range(7)}
    for t in range(6): epi(t, end[t] + 3)
    if layer == 0 and P.h_touch0 == "g": fixed[xend + 1].append((5, lambda: k.touch(T, "h", ["s_mov_b32 s32, s54"])))
    if layer == 1 and P.x1_clean:
        for p in range(2):
            fixed[P.x1_clean + 8*p].append((3, lambda p=p: (k.e(f"s_add_u32 s58, s64, {BX1[1]}"),
                k.vm(f"buffer_store_dwordx4 {vr(RES+4*p,4)}, v9999, {SRD_WS}, s58 offen offset:{p*512} sc1", "clean"))))
    ff = Flex(); ff.dep(("hst", 3))
    if layer == 0:
        tx = [lambda: k.touch(T, "p", [f"s_add_u32 s32, s55, {BX2()}"]), lambda: k.touch(T + 1, "s", [f"s_add_u32 s32, s56, {BS2()}"])]
        if P.x2_touch == "h3": ff.add(tx[0], 6); ff.add(tx[1], 4)
        elif isinstance(P.x2_touch, int): fixed[P.x2_touch].append((5, tx[0])); fixed[P.x2_touch + 1].append((4, tx[1]))
        if "g" in str(P.touch1):
            for f in touch_next(k, T + 2)[:2]: ff.skip(1); ff.add(f, 6)
    ff.skip(P.gu_flag_delay)
    ff.add(lambda: (k.wait(vm=[("hst", 3)]), k.flag(1)), 3)
    def hpoll():
        k.wait(vm=["touch"] if "touch" in k.seen else None)
        k.poll_addr(T, 8)
        k.e(f"s_lshl_b32 s32, s{sB}, 7", f"s_lshl_b32 s33, s{sW}, 5", "s_add_u32 s32, s32, s33", f"s_add_u32 s{sPO}, s32, {fl(layer, FL_H)}")
        k.poll_issue(T, "ph1")
    if P.hpre:
        ff.add(hpoll, 4, P.hp_chk - 12)
        ff.add(lambda: (k.poll_check(T, "ph1", 1), setattr(k, "bg_held", True)), 3, P.hp_chk)
        for j in range(P.hpre): ff.add(lambda j=j: k.hload(j), 2, max(208 + j, int(P.hp_chk + 1 + j * P.hp_step)))
    else: ff.add(hpoll, 4, 228)
    k.wait(vm=[("gx", 0)], lg=[("wf", 0)])
    if P.tags: xchk(0)
    k.stamp("gu first")
    if k.stamping:
        for g in (48, 98, 131, 164, 197): fixed[g].append((0, lambda g=g: k.stamp(f"gu m{g}")))
    fixed[93].append((0, lambda: k.marks["aug"]))
    run_gaps(k, mains, fixed, [fv, fh, ff, fx], P.gu_cap)
    print("gu left:", len(k.bg), len(fv), len(ff), len(fx), {n: g for n, g in k.marks.items() if isinstance(n, tuple) and n[0] == "hst"})
    k.stamp("gu gemm")
    for g, t in {132: 0, 165: 1, 198: 2}.items(): assert k.marks[("epi", t)] < g, "accumulator reused too early"
    epi(6, 0); drain([fh, ff, fv, fx], k)
    k.e(f"v_mov_b32 v{D_PA}, v{T}")
    k.stamp("gu end")
P.x2_touch = None; P.dn_x2 = 2; P.h_cost = 1; P.h_np = 1; P.h_d = 2; P.h_stag = 5; P.gu_mix = [(28, 1), (24, 1)]; P.hrot = 0; P.gu_bars = [list(range(15)), [0, 3, 6, 9, 12]]; P.hpre = 0; P.hp_chk = 208; P.hp_step = 2.2; P.gu_flag_delay = 10; P.gu_xstep = 2.6; P.gu_bg_delay = 300
P.per_guA = [{"s2": 120, "s4": 120}, {"s2": 160, "s4": 160}]
P.per_guB = [{"s2": 90, "s4": 55}, {"s2": 80, "s4": 50}]

def dn(k, layer):
    final = layer == 1
    NB = P.dn_lead; T = D_T
    groups = DN_GROUPS; seq = DN_SEQ; bload = k.hload
    early = Flex()
    def rb(): k.e(f"v_add_u32 v{D_RB}, s{sGL}, v{vL16}", f"v_add_u32 v{D_RB+1}, 0x10000, v{D_RB}", f"v_add_u32 v{D_RB+2}, 0x20000, v{D_RB}")
    if P.hpre:
        for i in range(P.hpre, NB): bload(i)
        rb()
        class Rec:
            def e(self, *t):
                if any("vcc" in x or "s32" in x for x in t): early.add(lambda: k.e(*t), len(t))
                else:
                    for x in t: early.add(lambda x=x: k.e(x))
        red_setup(Rec(), 3, 1)
        early.add(lambda: (k.wait(vm=[("hst", 6)]), k.flag(2), k.poll_issue(D_PA, "ph2"), k.e(f"s_add_u32 s{sFO}, s89, {FL_X2 - FL_O}")), 5, P.dn_fgap)
    else:
        k.poll_check(D_PA, "ph1", 1)
        k.stamp("dn early")
        k.bg_held = True
        for i in range(P.dn_pre): bload(i)
        red_setup(k, 3, 1); rb()
        k.wait(vm=[("hst", 6)]); k.flag(2)
        if P.dn_pollstep is None: k.poll_issue(D_PA, "ph2")
        for i in range(P.dn_pre, NB): bload(i)
        k.e(f"s_add_u32 s{sFO}, s89, {FL_X2 - FL_O}")
    k.per = dict(P.per_dn0); k.bg_held = False
    direct = final and P.dn1_agpr
    lds = [(i, nn) for i, (g, e) in enumerate(seq) if 8 <= e < 24 and not direct for nn in range(2)]
    slot_of = {x: n for n, x in enumerate(lds)}
    NWF = 6
    def wread(n):
        i, nn = lds[n]; j = 2 * (seq[i][1] - 8) + nn; b = 15 + (j >> 2)
        ad = (b % 10) * 16384 + (j & 3) * 1024
        if seq[i][0] == 0: k.wait(vm=[("gw", b)])
        k.ds(f"ds_read_b128 {vr(D_WF+4*(n%NWF),4)}, v{D_RB + (ad>>16)} offset:{ad & 0xffff}", ("wf", n))
    def wfrag(i, nn):
        e = seq[i][1]
        if e < 8: return ar(192 + 8*e + 4*nn, 4)
        if direct: return ar(8*(e - 8) + 4*nn, 4)
        if e >= 24: return vr(D_WV + 8*(e - 24) + 4*nn, 4)
        return vr(D_WF + 4*(slot_of[(i, nn)] % NWF), 4)
    mains = []; fixed = {}
    NT = P.dn_tail
    assert NT <= 4
    order = [(i, nn) for i in range(56 - NT) for nn in range(2)] + [(i, nn) for nn in range(2) for i in range(56 - NT, 56)]
    for pos, (i, nn) in enumerate(order):
        g, e = seq[i]
        if True:
            acc = D_ACC + 32 * g + 16 * nn
            mains.append(lambda i=i, nn=nn, acc=acc, e=e: k.e(f"{MF32} {vr(acc,16)}, {wfrag(i,nn)}, {vr(D_BF+4*(i%NB),4)}, {'0' if e == 0 else vr(acc,16)}"))
            gp = len(mains) - 1; fl_ = fixed.setdefault(gp, [])
            nx = order[pos + 1] if pos + 1 < len(order) else None
            vmn = [("b", nx[0])] if (nx and nx[1] == 0) else None
            lgn = [("wf", slot_of[nx])] if nx in slot_of else None
            if nx == (24, 0) and not direct: vmn = vmn + ["dnv"]
            if direct and nx and nx[0] in range(8, 28) and nx[1] == 0: vmn = vmn + [("dnr", nx[0])]
            fl_.append((0, lambda vmn=vmn, lgn=lgn: k.wait(vm=vmn, lg=lgn)))
            ah = (i + 2, nn)
            if ah in slot_of: fl_.append((1, lambda n=slot_of[ah]: wread(n)))
    nxt = NB; pend = 0
    for i in range(len(seq)):
        fl_ = fixed[2*i + 1]
        if i == P.dn_late: fl_.append((2, lambda: (k.poll_check(D_PA, "ph2", 2), k.stamp("dn late"), k.mark("late"))))
        n = 0
        while nxt < len(seq) and nxt <= i + NB and n < 2 and (nxt < 16 or i >= P.dn_late):
            fl_.append((1, lambda j=nxt: bload(j))); nxt += 1; n += 1
        if i == P.dn_pollstep and not P.hpre: fl_.append((1, lambda: k.poll_issue(D_PA, "ph2")))
        if nxt == len(seq) and not pend: pend = 2*i + 2
    fixed[20].append((1, lambda: k.e("s_barrier")))
    for mm in range(2):
        fixed[40 + 4*mm].append((2, lambda mm=mm: (k.e(f"s_add_u32 s32, s55, {BX1[layer] + mm*32768}"),
                                                   k.vm(f"buffer_load_dwordx4 {vr(RES+4*mm,4)}, v{vL16}, {SRD_WS}, s32 offen sc1", "res"))))
    fw = Flex(); fs = Flex()
    for q, f in enumerate(red_writes(k, D_ACC, 0, 0, 1)): fw.add(f, 1, 58 + 2*q)
    fw.add(lambda: (k.wait(lg=[("rw", 0)]), k.e("s_barrier")), 2, 76)
    for f in red_reads(k, 0, T, 0): fw.add(f, 2)
    fw.add(lambda: k.wait(vm=["res"]))
    red_finish(k, fw, 0, groups[0], T, BX2(), BS2(), final, False)
    if not final:
        fw.add(lambda: k.vm(f"buffer_store_dwordx4 {vr(RES+4,4)}, v{vL16}, {SRD_WS}, s72 offen sc1", "hxs"))
        fw.add(lambda: k.vm(f"buffer_store_dword v{T+32}, v{R_ST}, {SRD_WS}, s73 offen sc1", "hxs"))
        fw.skip(P.dn_flag_delay); fw.add(lambda: (k.wait(vm=[("xst", 0)]), k.flag(1)), 3)
        if P.x2_touch == "dn":
            fixed[P.dn_x2].append((5, lambda: k.touch(226, "p", [f"s_add_u32 s32, s55, {BX2()}"])))
            fixed[P.dn_x2 + 1].append((4, lambda: k.touch(227, "s", [f"s_add_u32 s32, s56, {BS2()}"])))
            fs.add(lambda: k.wait(vm=["touch"]), 1, P.dn_x2 + 2)
        for q, c in enumerate(P.t1_dn): fixed[P.dn_touch + 2*q].append((5, touch_next(k, 28)["oxs".index(c)]))
        fs.dep("late")
        for f in a11_bases(k) + a1_setup(k, 1): fs.add(f)
        fs.add(lambda: (k.poll_addr(A_PX, 32), k.e(f"s_lshl_b32 s32, s{sB}, 7", f"s_add_u32 s{sPO}, s32, {fl(0, FL_X2)}")), 4)
    wtail = red_writes(k, D_ACC + 32, 1, 2*16384, 1)
    if NT:
        for q in range(min(4, NT)): fixed[min(111, 112 - NT + 1 + q)].append((4, wtail.pop(0)))
    k.wait(vm=["dna", ("b", 0)])
    k.stamp("dn first")
    if k.stamping:
        fixed[55].append((0, lambda: k.stamp("dn p1")))
        for g in range(7, 111, 8): fixed[g].append((0, lambda g=g: k.stamp(f"find {g}")))
    run_gaps(k, mains, fixed, [early, fw, fs], 6)
    print("dn left:", len(k.bg), len(fw), len(fs), "last h load at gap", pend)
    k.stamp("dn gemm")
    assert not fs.items
    ws = wtail
    if not final and P.dn_fin_first != 2: ws.insert(len(ws) - 4, lambda: k.poll_issue(A_PX, "px0"))
    if not final and P.dn_fin_first == 2: ws.append(lambda: k.poll_issue(A_PX, "px0"))
    merge(k, fw, ws)
    k.wait(lg=[("rw", 1)]); k.e("s_barrier")
    k.stamp("dn red")
    for f in red_reads(k, 1, T, 2*16384): f()
    def nxt():
        k.poll_check(A_PX, "px0", 1)
        k.wait(vm=["hxs"]); k.flag(1, 91, "sc1")
        a11_early(k)
    if not final:
        k.bg_held = True
        if not P.dn_fin_first: nxt()
    f1 = Flex(); red_finish(k, f1, 1, groups[1], T, BX2(), BS2(), final, True)
    if not final and P.dn_fin_first == 2:
        ex = [lambda: k.poll_check(A_PX, "px0", 1)] + a11_early(k, True) + [lambda: (k.wait(vm=["hxs"]), k.flag(1, 91, "sc1"))]
        merge(k, f1, ex, P.dn_mfirst)
    else: drain([f1], k)
    if not final and P.dn_fin_first == 1: nxt()
    k.stamp("dn end")
P.dn_mfirst = 8; P.dn_pollstep = 0; P.dn_fin_first = 2; P.dn_tail = 0; P.dn_touch = 88; P.dn_flag_delay = 4; P.dn_pre = 6; P.dn_late = 9; P.dn_fgap = 6
P.dn_wow = 6; P.per_dn = {"s4": 110, "s2": 130}; P.per_dn0 = {"s4": 60, "s2": 60}

def build(stamps=False, only=None):
    k = F(); k.stamping = stamps; k.only = only; k.st = P.dst; k.rt = P.rt
    name = NAME + "_kernel"
    k.e(".p2align 8", f".globl {name}", f".type {name},@function"); k.label(name)
    if stamps: k.e("s_memrealtime s[92:93]", "s_memtime s[94:95]")
    k.e("s_cmp_ge_u32 s2, 256", "s_cbranch_scc1 L_end")
    k.e("s_load_dwordx16 s[64:79], s[0:1], 0", "s_load_dwordx4 s[80:83], s[0:1], 64", "s_memrealtime s[96:97]")
    k.e("s_getpc_b64 s[100:101]")
    k.e("L_pc: ;np")
    k.e("s_mov_b32 s24, s100", "s_mov_b32 s25, s101", "s_mov_b32 s26, L_end-L_pc", "s_mov_b32 s27, 0x20000",
        "v_and_b32 v1, 63, v0", "v_lshrrev_b32 v2, 6, v0", "s_lshr_b32 s33, s2, 3", "s_mul_i32 s32, s33, 43", "s_lshr_b32 s32, s32, 8",
        "s_mul_i32 s32, s32, 6", "s_sub_u32 s32, s33, s32", "s_lshl_b32 s32, s32, 13", "v_lshlrev_b32 v3, 11, v2", "v_lshl_add_u32 v3, v1, 7, v3",
        f"v_mov_b32 v4, {OOB:#x}", "v_cmp_gt_u32 vcc, 16, v1", f"v_readfirstlane_b32 s{sW}, v2", "v_cndmask_b32 v3, v4, v3, vcc")
    if P.code0: k.vm(f"buffer_load_dword v175, v3, {SRD_PK}, s32 offen", "code")
    k.e("s_and_b32 s32, s2, 7", f"s_and_b32 s{sM}, s33, 15", "s_lshr_b32 s33, s33, 4", "s_lshl_b32 s32, s32, 1", f"s_add_u32 s{sC}, s32, s33")
    k.e(f"s_lshr_b32 s33, s{sM}, 3", f"s_lshl_b32 s{sB}, s{sC}, 1", f"s_add_u32 s{sB}, s{sB}, s33", f"s_and_b32 s{sCS}, s{sM}, 7")
    k.e("v_lshlrev_b32 v2, 4, v1")
    a10_lanes(k)
    k.e("s_waitcnt lgkmcnt(0)")
    srd(k, 12, 64, 2048 * 1024); srd(k, 16, 66, 512 * 3072)
    k.e(f"s_or_b32 s{sTAG}, s96, 1")
    if stamps:
        k.stamps += ["rt0", "start"]; k.e("v_writelane_b32 v0, s92, 0", f"v_writelane_b32 v0, s{92 if P.rt else 94}, 1")
    k.stamp("s kernarg")
    if P.pk_first == 1: pack_issue(k)
    k.stamp("s pkissue")
    run(a10_x(k, 0) + a10_w(k, 0))
    if P.pk_first == 0: pack_issue(k)
    srd(k, 28, 80, 256)
    k.e("v_cmp_eq_u32 vcc, 0, v1", f"v_mov_b32 v{vFA}, {OOB:#x}", f"s_or_b32 s32, s2, s{sW}", f"v_cndmask_b32_e64 v{vFA}, v{vFA}, 0, vcc",
        "s_cmp_eq_u32 s32, 0", f"s_cselect_b32 s32, 0, {OOB>>1:#x}", f"v_mov_b32 v170, s{sTAG}")
    k.vm(f"buffer_store_dword v170, v{vFA}, {SRD_DBG}, s32 offen sc1", "tagst")
    srd(k, 8, 82, WS_SIZE); srd(k, 20, 78, 2048 * 1024)
    for f in a1_setup(k, 0): f()
    o_bases(k, 0)
    a10_lanes2(k)
    k.e(f"v_mov_b32 v60, {OOB:#x}", "v_cmp_gt_u32 vcc, 8, v1", "v_mov_b32 v176, 0", "v_mov_b32 v177, 0", "v_mov_b32 v178, 0", "v_mov_b32 v179, 0",
        f"v_cndmask_b32 v173, v60, v{vL16}, vcc", "v_cmp_gt_u32 vcc, 16, v1", "s_nop 0",
        f"s_lshl_b32 s32, s{sC}, 4", f"v_cndmask_b32 v172, v60, v{vL16}, vcc")
    k.e(f"s_add_u32 s32, s32, s{sM}", "s_lshl_b32 s32, s32, 4",
        f"s_cmp_eq_u32 s{sW}, 0", f"s_cselect_b32 s32, s32, {OOB>>1:#x}", f"v_add_u32 v171, s32, v{vFA}", f"s_mov_b32 s{sBUD}, 400000")
    red_bases(k)
    k.e(f"s_lshl_b32 s{sGL}, s{sW}, 12", f"s_mul_i32 s{sGS}, s{sM}, {PGU_SLICE}", f"s_add_u32 s{sGS}, s{sGS}, s{sGL}", f"s_add_u32 s{sGS}, s{sGS}, {WS_PGU}")
    k.e(f"s_mul_i32 s32, s{sCS}, {224*KB}", f"s_mul_i32 s33, s{sW}, {56*KB}", "s_add_u32 s32, s32, s33", f"s_add_u32 s{sDS}, s32, {WS_PDN}")
    k.e(f"s_lshl_b32 s32, s{sCS}, 16", f"s_add_u32 s32, s32, s{sGL}", f"s_add_u32 s88, s32, {WS_PWO}")
    wo_bases(k)
    k.stamp("s setup")
    run(a10_w(k, 1))
    if P.pk_first == 2: pack_issue(k)
    k.e(f"s_getreg_b32 s{sXCC}, hwreg(HW_REG_XCC_ID, 0, 4)", f"s_mov_b32 s75, {WS_ARR}", f"s_lshl_b32 s77, s{sC}, 8", "s_add_u32 s77, s77, s75")
    if P.k_touch == -1:
        k.touch(157, "p", ["s_mov_b32 s32, s53"], False); k.touch(158, "q", [f"s_add_u32 s32, s64, {BX1[0]}"], False)
    k.stamp("s w01")
    def mid2():
        if P.k_first > 3: run(a10_w(k, 3))
        k.e("s_lshl_b32 s32, s2, 7")
        k.vm(f"buffer_store_dwordx4 v[176:179], v173, {SRD_WS}, s32 offen sc1", "zero")
        k.e("s_lshl_b32 s32, s2, 8", f"s_add_u32 s32, s32, {WS_HXF}")
        k.vm(f"buffer_store_dwordx4 v[176:179], v172, {SRD_WS}, s32 offen sc1", "zero")
    if P.k_pack is None: pack_process(k, lambda: run(a10_x(k, 1) + a10_w(k, 2)), mid2)
    else: run(a10_x(k, 1) + a10_w(k, 2)); mid2()
    k.vm(f"buffer_load_dword v170, v{vFA}, {SRD_DBG}, 0 offen sc1", "tag")
    k.stamp("s pkdone")
    a10_loop(k, P.k_first)
    a10_tail(k)
    wo(k, 0); gu(k, 0); dn(k, 0)
    if not P.half:
        k.marks = {m: g for m, g in k.marks.items() if False}
        k.seen = {t for t in k.seen if t in k.vmq or t in k.lgq or t in ("dna", "st0", ("x", 2), ("x", 3))}
        k.layer = 1
        a11_main(k)
        wo(k, 1)
        k.marks = {m: g for m, g in k.marks.items() if m in ("wobar", "gemm_done") or m[0] == "bar"}
        gu(k, 1); dn(k, 1)
    if P.verbose: print([(t, tag, f) for t, tag, f in k.bg_log if f])
    if stamps:
        k.e("s_waitcnt vmcnt(0)"); k.stamp("drained"); k.stamp("rt1", True)
        k.e("s_lshl_b32 s32, s2, 10", "s_lshl_b32 s33, s3, 8", "s_add_u32 s32, s32, s33",
            f"s_add_u32 s32, s32, {WS_STAMP}", "v_lshlrev_b32 v8, 2, v1", f"buffer_store_dword v0, v8, {SRD_WS}, s32 offen")
        if P.echo:
            a, b = P.echo
            n = len(k.stamps)
            k.e(f"v_readlane_b32 s32, v0, {a}", f"v_readlane_b32 s33, v0, {b if b >= 0 else n + b}", f"v_readlane_b32 s34, v0, {n-1}", "s_nop 3",
                "s_sub_u32 s33, s33, s32", "s_min_u32 s33, s33, 20000")
            k.label("L_echo")
            k.e("s_memrealtime s[36:37]", "s_waitcnt lgkmcnt(0)", "s_sub_u32 s36, s36, s34", "s_cmp_lt_u32 s36, s33", "s_cbranch_scc1 L_echo")
        if P.dbg:
            n = len(k.stamps)
            k.e("v_readlane_b32 s32, v0, 0", f"v_readlane_b32 s33, v0, {n-1}", "s_not_b32 s34, s32", "v_mov_b32 v4, s33", "v_mov_b32 v5, s34")
            k.e(f"buffer_atomic_umax v4, v{vFA}, {SRD_DBG}, 0 offen offset:4", f"buffer_atomic_umax v5, v{vFA}, {SRD_DBG}, 0 offen offset:8")
            k.e(f"s_cmp_eq_u32 s2, {P.dbg - 1}", f"s_cselect_b32 s35, 0, {OOB>>1:#x}", f"s_cmp_eq_u32 s{sW}, 0", f"s_cselect_b32 s35, s35, {OOB>>1:#x}")
            for i, wd in zip(range(2, n - 1), (3, 5, 6, 7, 9, 10, 11, 13, 14, 15)):
                k.e(f"v_readlane_b32 s33, v0, {i}", "s_sub_u32 s33, s33, s32", "v_mov_b32 v4, s33", f"buffer_store_dword v4, v{vFA}, {SRD_DBG}, s35 offen offset:{4*wd}")
    k.e("s_endpgm")
    k.flush_spins()
    k.label("L_end"); k.e("s_endpgm")
    src = open("cdna_kernels/%s.s.ref" % NAME).read().splitlines()
    out = [l for l in src if l.startswith(";") and "@launch" not in l]
    out.append(f"; @launch grid=(256,1,1) block=(256,1,1) lds={LDS_TOTAL}")
    out += ['.amdgcn_target "amdgcn-amd-amdhsa--gfx950"', ".text"]
    s = "\n".join(out) + "\n" + k.text(verbose=True) + '.section .rodata,"a"\n.p2align 6\n' + kd(name)
    from verify import verify
    assert not verify(s), "a register is used while a load into it is in flight"
    if P.align:
        from align import align
        s = align(s)
    return s, k.stamps
P.x_nobar = 0; P.x_noepi = 0; P.rt = 1; P.dbg = 0; P.h_touch0 = ''; P.outm = ('', ''); P.x1_clean = None; P.h1_plain = 0; P.tags = 0; P.echo = None; P.wo_setup_first = 2; P.gu_pa_late = 0; P.gu_bar_first = 0; P.flagbr = 0; P.rot = 0; P.pk_mod = 'nt'; P.x_mod = ''; P.w_mod = ''; P.t_mod = ''; P.pk_first = 1; P.dn1_agpr = 1; P.poll2 = 2; P.wt = (); P.inplace = 1; P.o0_in_h = 0; P.half = 0; P.tlb = 1; P.code0 = 1; P.verbose = 0; P.align = 1; P.gu_cap = 5; P.gu_nw = 5; P.k_touch = 15; P.k_gb = 13; P.k_chk = 16

if __name__ == "__main__":
    path = sys.argv[1] if len(sys.argv) > 1 else "cdna_kernels/%s.s" % NAME
    opts = sys.argv[2:]
    only = None
    for o in opts:
        if o.startswith("only="): only = [x for x in o[5:].split(",") if x]
        if o.startswith("P."):
            n, v = o[2:].split("="); setattr(P, n, eval(v))
    s, st = build(stamps="st" in opts, only=only)
    open(path, "w").write(s)
    if "st" in opts: json.dump([st], open(path + ".json", "w"))
```

```python
import sys, json
from common import *

MF16 = "v_mfma_f32_16x16x32_bf16"
MF16S = "v_mfma_f32_16x16x16_bf16"
MF32 = "v_mfma_f32_32x32x16_bf16"
vL16, vFV, vFA, vP = 2, 8, 9, 10
CSV, CSQ, CSK, RES = 11, 12, 16, 20
OOB = 0x80000000
FL_O, FL_X1, FL_H, FL_X2 = 0, 4096, 8192, 12288
FL_HX = 16384 + 12288
def fl(layer, off): return WS_FLAGS + 16384 * layer + off
sROT, sBUD, sGL, sGS, sDS = 84, 98, 60, 61, 85
sT0, sT1, sPO, sFO = 32, 33, 86, 87
sML, sMS = 68, 69
WS_HXF = WS_O0 - 0x10000 if False else WS_END
WS_ARR = WS_HXF + 0x10000
sTAG, sXCC = 91, 76
WS_STAMP = 0x2000000
L_SA0, L_SA1, L_XH0, L_CS = 80896, 97280, 81920, 79872
def e_of(kk):
    p, tl = divmod(kk, 7)
    return 4 * p + tl if tl < 4 else 16 + 3 * p + (tl - 4)
KK_OF = {e_of(kk): kk for kk in range(28)}

class P:
    a1_bg_start, a1_bg_step = 30, 6
    gu_lead = 9
    gu_bg_start, gu_bg_step = 50, 2.6
    dn_lead = 12
    bgm = ""
    sleep = 0
    drop = ()
    codepf = 0
    ld = "sc1"
    dst = "sc1"
    safe = False
    plain = True
    notouch = ()

BO, BX1, BS1, BH = [WS_O[0]] * 2, [WS_X[0]] * 2, [WS_ST[0]] * 2, [WS_H[0]] * 2
def BX2(): return WS_X[0] if P.inplace else WS_X[1]
def BS2(): return WS_ST[0] if P.inplace else WS_ST[1]
def o_block(d, layer):
    if (layer or P.o0_in_h) and P.inplace: return [f"s_mul_i32 {d}, s{sB}, {224*KB}", f"s_add_u32 {d}, {d}, {BH[0]}"]
    return [f"s_lshl_b32 {d}, s{sB}, 16", f"s_add_u32 {d}, {d}, {BO[layer]}"]
def o_line(layer):
    return [f"s_lshl_b32 s32, s{sB}, 16", f"s_lshl_b32 s33, s{sCS}, 2", f"s_add_u32 s33, s33, s{sW}", "s_lshl_b32 s33, s33, 10",
            "s_add_u32 s32, s32, s33", f"s_add_u32 s32, s32, {BO[layer]}"]
def touch_next(k, t):
    return [lambda: k.touch(t, "p", o_line(1)), lambda: k.touch(t + 1, "q", [f"s_add_u32 s32, s64, {BX1[1]}"]),
            lambda: k.touch(t + 2, "t", [f"s_add_u32 s32, s65, {BS1[1]}"])]
def gu_tile(d):
    return [f"s_lshl_b32 {d}, s{sC}, 1", f"s_and_b32 s33, s{sW}, 1", f"s_add_u32 {d}, {d}, s33", f"s_lshl_b32 {d}, {d}, 1", f"s_lshr_b32 s33, s{sW}, 1", f"s_add_u32 {d}, {d}, s33"]
def h_base(d, layer):
    return gu_tile(d) + [f"s_mul_i32 {d}, {d}, 112", f"s_mul_i32 s33, s{sM}, 7",
            f"s_add_u32 {d}, {d}, s33", f"s_lshl_b32 {d}, {d}, 10", f"s_add_u32 {d}, {d}, {BH[layer]}"]

class F(K):
    def __init__(self):
        super().__init__(); self.spins = []; self.nspin = 0; self.st = ""; self.npf = 0; self.layer = 0
    def poll_issue(self, va, tag): self.vm(f"buffer_load_dword v{vP}, v{va}, {SRD_WS}, s{sPO} offen sc1", tag)
    def poll_addr(self, va, nl, sh=2):
        self.e(f"v_cmp_gt_u32 vcc, {nl}, v1", f"v_lshlrev_b32 v{va}, {sh}, v1", f"v_mov_b32 v{vP}, {OOB:#x}", f"v_cndmask_b32 v{va}, v{vP}, v{va}, vcc")
        self.nl = nl
    def poll_check(self, va, tag, thr):
        n = self.nspin; self.nspin += 1
        self.stamp(f"poll<{tag}")
        self.wait(vm=[tag])
        self.stamp(f"poll={tag}")
        msk = f"s_and_b32 s99, vcc_lo, {(1 << self.nl) - 1:#x}"
        self.e(f"v_cmp_gt_u32 vcc, {thr}, v{vP}", msk, f"s_cbranch_scc1 L_spin{n} ;np", f"L_back{n}: ;np")
        self.stamp(f"poll>{tag}")
        self.spins += [f"L_spin{n}:", f"s_sub_u32 s{sBUD}, s{sBUD}, 1", f"s_cbranch_scc1 L_give{n}"] + ([f"s_sleep {P.sleep}"] if P.sleep else []) + [
                       f"buffer_load_dword v{vP}, v{va}, {SRD_WS}, s{sPO} offen sc1", "s_waitcnt vmcnt(0)",
                       f"v_cmp_gt_u32 vcc, {thr}, v{vP}", msk, f"s_cbranch_scc1 L_spin{n}", f"s_branch L_back{n}",
                       f"L_give{n}:", f"s_mov_b32 s{sBUD}, 0", f"s_branch L_back{n}"]
    def poll_wait(self, va, tag, thr, alt):
        if not P.poll2:
            self.poll_check(va, tag, thr); return
        n = self.nspin; self.nspin += 1
        ld = lambda r: f"buffer_load_dword v{r}, v{va}, {SRD_WS}, s{sPO} offen sc1"
        tst = lambda r: [f"v_cmp_gt_u32 vcc, {thr}, v{r}", f"s_and_b32 s99, vcc_lo, {(1 << self.nl) - 1:#x}"]
        self.e(f"s_sleep {P.poll2}")
        self.vm(ld(alt), "polljunk")
        self.wait(vm=[tag])
        self.e(*tst(vP)); self.e(f"s_cbranch_scc1 L_spin{n} ;np", f"L_back{n}: ;np")
        self.spins += [f"L_spin{n}:", f"s_sub_u32 s{sBUD}, s{sBUD}, 1", f"s_cbranch_scc1 L_give{n}",
                       ld(vP), "s_waitcnt vmcnt(1)"] + tst(alt) + [f"s_cbranch_scc0 L_back{n}", ld(alt), "s_waitcnt vmcnt(1)"] + tst(vP) + \
                      [f"s_cbranch_scc1 L_spin{n}", f"s_branch L_back{n}", f"L_give{n}:", f"s_mov_b32 s{sBUD}, 0", f"s_branch L_back{n}"]
    def flag(self, val, soff=sFO, st=None):
        self.e(f"v_mov_b32 v{vFV}, {val}")
        if st is not None:
            self.vm(f"buffer_store_dword v{vFV}, v{vFA}, {SRD_WS}, s{soff} offen {st}", "flag"); return
        if P.flagbr:
            self.dstore(f"buffer_store_dword v{vFV}, v{vFA}, {SRD_WS}, s{soff} offen", "flag", True); return
        self.e(f"s_or_b32 s99, s{soff}, s{sML}")
        self.vm(f"buffer_store_dword v{vFV}, v{vFA}, {SRD_WS}, s99 offen", "flag")
        self.e(f"s_or_b32 s99, s{soff}, s{sMS}")
        self.vm(f"buffer_store_dword v{vFV}, v{vFA}, {SRD_WS}, s99 offen sc1", "flag")
    def dstore(self, text, tag, always=False):
        kind = tag[0] if isinstance(tag, tuple) else tag
        if (not P.plain or (self.layer, kind, isinstance(tag, tuple)) in P.wt) and not always:
            self.vm(text + " sc1", tag); return
        n = self.nspin; self.nspin += 1
        self.e(f"s_cmp_lg_u32 s{sML}, 0", f"s_cbranch_scc1 L_alt{n} ;np")
        self.vm(text, tag)
        self.e(f"L_back{n}: ;np")
        self.spins += [f"L_alt{n}:", "s_nop 4", text + " sc1", f"s_branch L_back{n}"]
    def valid(self, test, reload):
        n = self.nspin; self.nspin += 1
        self.e(*test); self.e(f"s_cbranch_vccnz L_rl{n} ;np", f"L_back{n}: ;np")
        self.spins += [f"L_rl{n}:", f"s_sub_u32 s{sBUD}, s{sBUD}, 1", f"s_cbranch_scc1 L_give{n}"] + reload + ["s_waitcnt vmcnt(0)"] + test + \
                      [f"s_cbranch_vccnz L_rl{n}", f"s_branch L_back{n}", f"L_give{n}:", f"s_mov_b32 s{sBUD}, 0", f"s_branch L_back{n}"]
    def touch(self, tmp, kind, base_expr, masked=True):
        if not P.plain or kind in P.notouch: return
        nl = {"p": 16, "q": 16, "s": 2, "t": 2, "h": 56}[kind]
        self.e(f"v_cmp_gt_u32 vcc, {nl}, v1")
        if kind in "pq": self.e(f"v_lshrrev_b32 v{tmp}, 3, v1", f"v_lshlrev_b32 v{tmp}, {15 if kind == 'p' else 13}, v{tmp}", f"v_and_b32 v{vFV}, 7, v1", f"v_lshl_add_u32 v{tmp}, v{vFV}, 7, v{tmp}")
        else: self.e(f"v_lshlrev_b32 v{tmp}, {11 if kind == 's' else 7}, v1")
        self.e(f"v_mov_b32 v{vFV}, {OOB:#x}", *base_expr)
        self.e(f"v_cndmask_b32 v{tmp}, v{vFV}, v{tmp}, vcc")
        if masked: self.e(f"s_or_b32 s32, s32, s{sML}")
        self.vm(f"buffer_load_dword v{tmp}, v{tmp}, {SRD_WS}, s32 offen {P.t_mod}", "touch")
    def vm(self, text, tag=None):
        kind = tag[0] if isinstance(tag, tuple) else tag
        if kind in P.drop:
            self.seen.add(tag); return
        super().vm(text, tag)
    def codepf(self, tmpv, per=2048):
        if not P.codepf: return
        n = self.npf; self.npf += 1
        sh = (per // 64).bit_length() - 1
        self.e(f"L_pf{n}: ;np", f"s_mul_i32 s32, s{sW}, {per}", f"s_add_u32 s32, s32, L_pf{n}-L_pc", f"v_lshlrev_b32 v{tmpv}, {sh}, v1")
        raise NotImplementedError
    def flush_spins(self):
        for l in self.spins: self.e(l)
        self.spins = []

def batch(k, i):
    src = f"s_add_u32 s62, s{sGS}, {i*16384}" if i < 15 else f"s_add_u32 s62, s{sDS}, {(16 + 4*(i-15))*1024}"
    def f(q):
        k.set_m0(f"s_add_u32 m0, s{sGL}, {(i % 10)*16384}")
        if i != 14: k.set_s(src)
        elif k.last.get(62) != f"s_cselect_b32 s62, {OOB>>1:#x}, s62":
            k.e(src, f"s_cmp_ge_u32 s{sW}, 2", f"s_cselect_b32 s62, {OOB>>1:#x}, s62")
        k.vm(f"buffer_load_dwordx4 v{vL16}, {SRD_WS}, s62 offen offset:{q*1024} {P.bgm} lds", ("gw", i))
    return [lambda q=q: f(q) for q in range(4)]

def bg_batches(k, bs, period, dep=lambda b: None):
    for b in bs:
        for f in batch(k, b): k.bg_add(f, period, ("gw", b), dep(b))
def bg_list(k, fns, period, tag, dep=None):
    for f in fns: k.bg_add(f, period, tag, dep)

def regloads(k, base_sgpr, off, dst, n, tag, tmp=63, tagf=None):
    fns = []
    for j in range(n):
        def f(j=j):
            k.set_s(f"s_add_u32 s{tmp}, s{base_sgpr}, {off + (j & ~3)*1024}")
            k.vm(f"buffer_load_dwordx4 {dst(j)}, v{vL16}, {SRD_WS}, s{tmp} offen offset:{(j%4)*1024} {P.bgm}", tagf(j) if tagf else tag)
        fns.append(f)
    return fns
def wow(k):
    def f(i, q):
        k.set_m0(f"s_add_u32 m0, s{sGL}, {(6 + i)*16384}"); k.set_s(f"s_add_u32 s63, s88, {i*16384}")
        k.vm(f"buffer_load_dwordx4 v{vL16}, {SRD_WS}, s63 offen offset:{q*1024} lds", "wow")
    return [lambda i=i, q=q: f(i, q) for i in range(4) for q in range(4)]

def pack_issue(k):
    for r in (68, 69, 72, 73, 74, 75, 76, 77): assert k.last[r].startswith("s_load"), f"kernel argument s{r} overwritten"
    k.e("v_lshrrev_b32 v44, 3, v1", "v_and_b32 v43, 7, v1", "v_and_b32 v45, 2, v44", "v_lshlrev_b32 v45, 1, v45",
        "v_xor_b32 v43, v43, v45", "v_lshlrev_b32 v43, 4, v43", f"s_add_u32 s34, s49, {L_X + 4096}")
    k.e("s_cmp_ge_u32 s2, 112", "s_cbranch_scc1 L_pki_small")
    k.e("s_and_b32 s35, s2, 1", "s_bfe_u32 s36, s2, 0x10001", "s_lshr_b32 s37, s2, 2")
    k.e("s_cmp_eq_u32 s35, 0", "s_cselect_b32 s24, s72, s74", "s_cselect_b32 s25, s73, s75",
        f"s_mov_b32 s26, {512*3584:#x}", "s_mov_b32 s27, 0x20000")
    k.e("v_mul_u32_u24 v46, 3584, v44", "v_add_u32 v46, v46, v43")
    k.e("s_lshl_b32 s38, s36, 2", f"s_add_u32 s38, s38, s{sW}", f"s_mul_i32 s38, s38, {64*3584}",
        "s_lshl_b32 s39, s37, 7", "s_add_u32 s38, s38, s39")
    for i in range(8):
        k.e(f"s_add_u32 m0, s34, {(i>>2)*8192 + (i&3)*1024}", f"s_add_u32 s39, s38, {i*8*3584}", f"buffer_load_dwordx4 v46, {SRD_PK}, s39 offen {P.pk_mod} lds")
    k.e("s_branch L_pki_done")
    k.label("L_pki_small")
    k.e("s_sub_u32 s35, s2, 112", "s_lshl_b32 s35, s35, 3", f"s_lshl_b32 s36, s{sW}, 1", "s_add_u32 s35, s35, s36")
    k.e("s_cmp_lt_u32 s35, 896", "s_cselect_b32 s24, s76, s68", "s_cselect_b32 s25, s77, s69", f"s_mov_b32 s26, {512*1024:#x}",
        f"s_cselect_b32 s26, {1792*1024:#x}, s26", "s_mov_b32 s27, 0x20000", "s_cselect_b32 s37, 1, 0",
        "s_movk_i32 s38, 896", "s_cselect_b32 s38, 0, s38")
    k.e("s_cselect_b32 s39, 0, 1", "s_cselect_b32 s70, 14, 15", "s_movk_i32 s71, 0x4000", "s_cselect_b32 s71, 0x80, s71")
    k.e("s_sub_u32 s35, s35, s38", "s_lshr_b32 s35, s35, s39", "s_and_b32 s36, s35, 7", "s_lshr_b32 s35, s35, 3")
    k.e("v_lshl_add_u32 v46, v44, 10, v43", "s_lshl_b32 s38, s35, s70", "s_lshl_b32 s39, s36, 7", "s_add_u32 s38, s38, s39")
    for i in range(2):
        for h in range(2):
            k.e(f"s_add_u32 m0, s34, {(2*i+h)*1024}", f"s_add_u32 s39, s38, {h*8192}", f"buffer_load_dwordx4 v46, {SRD_PK}, s39 offen {P.pk_mod} lds")
        if i == 0: k.e("s_add_u32 s38, s38, s71")
    k.label("L_pki_done")
    k.vmq.append("pk"); k.seen.add("pk")

PQ = [76, 80, 84, 88, 92, 96, 36, 40]
def pack_process(k, mid1, mid2):
    k.e("v_bfe_u32 v46, v1, 2, 2", "v_and_b32 v47, 3, v1", "v_bfe_u32 v48, v1, 4, 1", "v_lshrrev_b32 v49, 5, v1")
    k.e("v_and_b32 v50, 2, v46", "v_add_u32 v50, v50, v48", "v_lshlrev_b32 v50, 5, v50",
        "v_lshl_add_u32 v50, v46, 7, v50", "v_lshl_add_u32 v50, v47, 3, v50", "v_add_u32 v50, s34, v50")
    k.e("s_cmp_ge_u32 s2, 112", "s_cbranch_scc1 L_pk_small")
    q0 = list(k.vmq)
    k.e("v_lshl_add_u32 v56, v49, 10, v50", "v_xor_b32 v57, 64, v56")
    k.e("s_lshl_b32 s39, s37, 2", "v_add_u32 v58, s39, v48")
    k.e("s_lshl_b32 s70, s36, 2", f"s_add_u32 s70, s70, s{sW}", "s_lshl_b32 s70, s70, 2")
    k.e("v_and_b32 v66, 15, v1", "s_lshl_b32 s71, s35, 8", "v_lshl_add_u32 v66, v66, 4, s71")
    for p in range(2):
        T, fs, tl, st_, b, aug = 59, 60, 61, 62 + p, 64 + p, 68 + p
        k.e(f"v_add_u32 v{T}, {2*p}, v58", f"v_mul_u32_u24 v{fs}, 9363, v{T}", f"v_lshrrev_b32 v{fs}, 16, v{fs}",
            f"v_mul_u32_u24 v{tl}, 7, v{fs}", f"v_sub_u32 v{tl}, v{T}, v{tl}")
        k.e(f"v_cmp_gt_u32 vcc, 3, v{tl}", f"v_mul_u32_u24 v67, 33, v{tl}", f"v_mov_b32 v{st_}, 1", "v_mov_b32 v70, 3",
            f"v_cndmask_b32 v67, v67, v{tl}, vcc", f"v_cndmask_b32 v{st_}, v{st_}, v70, vcc")
        k.e(f"v_mul_u32_u24 v{fs}, 231, v{fs}", f"v_add_u32 v67, v67, v{fs}")
        k.e(f"v_lshl_add_u32 v70, v{st_}, 5, v67", "v_lshlrev_b32 v70, 10, v70", "v_add_u32 v70, v70, v66",
            "s_lshl_b32 s71, s36, 9", f"v_add_u32 v{aug}, s71, v70")
        k.e(f"v_mul_lo_u32 v70, v{st_}, s70", "v_add_u32 v67, v67, v70", "v_lshlrev_b32 v67, 10, v67",
            "v_add_u32 v67, v67, v66", f"v_lshl_add_u32 v{b}, v49, 9, v67", f"v_lshlrev_b32 v{st_}, 10, v{st_}")
    k.e("v_mov_b32 v71, 0x3f803f80", "v_mov_b32 v72, 0", "v_mov_b32 v73, 0", "v_cmp_gt_u32 vcc, 32, v1", "v_mov_b32 v46, 0", "v_mov_b32 v47, 0",
        "v_cndmask_b32 v68, v69, v68, vcc", f"s_lshl_b32 s72, s{sW}, 8", "s_add_u32 s72, s72, 0x10000", "v_lshl_add_u32 v74, v1, 2, s72",
        "v_lshlrev_b32 v75, 2, v1", "v_add_u32 v75, 0x10000, v75")
    k.e(f"s_mov_b32 s70, {WS_PGU}", "s_mov_b32 s71, s70", "s_mov_b32 s72, s70", "s_mov_b32 s73, s70", f"s_cmp_eq_u32 s{sW}, 0", f"s_cselect_b32 s74, s70, {OOB>>1:#x}")
    k.wait(vm="pk")
    for ks in range(4):
        for p in range(2):
            for j in range(2): k.ds(f"ds_read_b64_tr_b16 {vr(PQ[2*ks+p]+2*j,2)}, v{56+p} offset:{(ks>>1)*8192 + (ks&1)*2048 + j*512}", ("t", ks, p))
        if ks == 2: k.wait(lg=[("t", 0, 1)])
    mid1()
    for ks in range(4):
        for p in range(2):
            k.wait(lg=[("t", ks, p)])
            for d in range(4): k.e(f"v_dot2c_f32_bf16 v{72+p}, v{PQ[2*ks+p]+d}, v71")
    k.e("v_permlane32_swap_b32 v72, v73", "v_add_f32 v72, v72, v73")
    k.ds(f"ds_write_b32 v74, v72 offset:{L_CS - 65536}")
    k.wait(lg="all"); k.e("s_barrier")
    for w in range(4): k.ds(f"ds_read_b32 v{56+w}, v75 offset:{L_CS - 65536 + 256*w}")
    mid2()
    k.wait(lg="all")
    k.e("v_add_f32 v56, v56, v57", "v_add_f32 v58, v58, v59", "v_add_f32 v56, v56, v58")
    k.e("v_cvt_pk_bf16_f32 v45, v56, v46", "v_lshlrev_b32 v57, 16, v45", "v_sub_f32 v57, v56, v57", "v_cvt_pk_bf16_f32 v44, v56, v57")
    k.e("s_branch L_pk_done")
    k.label("L_pk_small")
    k.vmq = list(q0)
    k.e(f"v_mov_b32 v64, v{vL16}", f"v_add_u32 v65, 1024, v{vL16}", f"v_mov_b32 v68, v{vL16}", f"s_mov_b32 s72, {OOB>>1:#x}", "s_mov_b32 s73, s72", "s_mov_b32 s74, s72")
    k.e("s_cmp_eq_u32 s37, 0", "s_cbranch_scc1 L_pk_wo")
    k.e("s_mul_i32 s38, s35, 2341", "s_lshr_b32 s38, s38, 16", "s_mul_i32 s39, s38, 28", "s_sub_u32 s39, s35, s39",
        "s_mul_i32 s70, s39, 9363", "s_lshr_b32 s70, s70, 16", "s_mul_i32 s71, s70, 7", "s_sub_u32 s71, s39, s71")
    for u in range(2):
      k.e(f"s_sub_u32 s39, s70, s36" if P.hrot else "s_mov_b32 s39, s70", f"s_sub_u32 s39, s39, {u if P.hrot else 0}", "s_and_b32 s39, s39, 3",
        "s_lshl_b32 s32, s39, 2", "s_add_u32 s32, s32, s71", "s_mul_i32 s33, s39, 3", "s_add_u32 s33, s33, s71", "s_add_u32 s33, s33, 12",
        "s_cmp_lt_u32 s71, 4", "s_cselect_b32 s32, s32, s33", "s_mul_i32 s33, s38, 28", "s_add_u32 s32, s32, s33", f"s_lshl_b32 s{(35, 37)[u]}, s32, 11")
    k.e("v_lshl_add_u32 v56, v49, 9, v50", "v_xor_b32 v57, 64, v56", f"v_mov_b32 v62, {224*KB}", f"v_mov_b32 v63, {224*KB}")
    k.e(f"s_mul_i32 s36, s36, {224*KB}", f"s_add_u32 s36, s36, {WS_PDN}", "s_add_u32 s70, s36, s35", "s_add_u32 s71, s36, s37")
    k.wait(vm="pk")
    for i in range(2):
        for nn in range(2):
            for j in range(2): k.ds(f"ds_read_b64_tr_b16 {vr(PQ[2*i+nn]+2*j,2)}, v{56+nn} offset:{i*2048 + j*1024}", "t")
    mid1(); mid2()
    k.wait(lg="all")
    k.e("s_branch L_pk_done")
    k.label("L_pk_wo")
    k.vmq = list(q0)
    k.e("v_and_b32 v56, 2, v46", "v_lshlrev_b32 v56, 1, v56", "v_xor_b32 v56, v56, v47", "v_lshlrev_b32 v56, 4, v56", "v_lshl_add_u32 v56, v46, 7, v56",
        "v_lshrrev_b32 v57, 4, v1", "v_lshl_add_u32 v56, v57, 10, v56", "v_add_u32 v56, s34, v56", "v_xor_b32 v57, 64, v56",
        "v_mov_b32 v62, 0x800", "v_mov_b32 v63, 0x800")
    k.e("s_lshl_b32 s36, s36, 16", "s_lshl_b32 s35, s35, 12", "s_add_u32 s70, s36, s35", f"s_add_u32 s70, s70, {WS_PWO}", "s_mov_b32 s71, s70")
    k.wait(vm="pk")
    for j in range(4):
        for jj in range(2): k.ds(f"ds_read_b64_tr_b16 {vr(PQ[j]+2*jj,2)}, v{56+(j>>1)} offset:{jj*512 + 8*(j&1)}", "t")
    mid1(); mid2()
    k.wait(lg="all")
    k.label("L_pk_done")

def pack_stores(k):
    ops = []
    for r in range(4):
        for p in range(2):
            ops.append(("v", lambda r=r, p=p: k.vm(f"buffer_store_dwordx4 {vr(PQ[2*r+p],4)}, v{64+p}, {SRD_WS}, s{70+r} offen sc1", "pks")))
            if r < 3: ops.append(("a", lambda p=p: k.e(f"v_add_u32 v{64+p}, v{64+p}, v{62+p}")))
    ops.append(("v", lambda: k.vm(f"buffer_store_dwordx4 v[44:47], v68, {SRD_WS}, s74 offen sc1", "pks")))
    return ops

A_XF, A_K, A_V, A_Q = 36, 76, 86, 96
A_STA, A_STB, A_OP, A_DX, A_PA, A_ST, A_ACC = 104, 106, 144, 152, 153, 140, 184
class R0: XE, XO, SA, SB, CI, ONE, M, ATT, TMP = 3, 4, 5, 6, 28, 32, 52, (116, 160), 60
class R1: XE, XO, SA, SB, CI, ONE, M, ATT, TMP = 116, 117, 118, 119, 252, 124, 120, (228, 160), 28
A_U, A_PX = 226, 115
A11_ORDER = [2, 3, 1, 0, "h"]
A11_POS = {2: 3, 3: 0, 1: 1, 0: 2, "h": 3}
sODD, sCUR0, sCUR1, sCEXP = 40, 42, 44, 46

def a1_setup(k, layer):
    R = (R0, R1)[layer]
    real = k; out = []
    class Rec:
        def e(self, *t):
            if any(x.startswith("s_cmp") for x in t): out.append(lambda t=t: real.e(*t))
            else: out.extend(lambda x=x: real.e(x) for x in t)
    k = Rec()
    t16, g, tt, tb = R.TMP, R.TMP + 1, R.TMP + 2, R.TMP + 3
    x, y, z = R.ONE, R.ONE + 1, R.ONE + 2
    sa = L_SA0 if layer == 0 else L_SA1
    k.e(f"v_and_b32 v{t16}, 15, v1", f"v_lshrrev_b32 v{g}, 4, v1", f"v_and_b32 v{tt}, 7, v1", f"v_bfe_u32 v{tb}, v1, 3, 1")
    k.e(f"v_lshlrev_b32 v{tb}, 13, v{tb}")
    if layer == 0: k.e(f"v_add_u32 v{tb}, {L_X}, v{tb}")
    if layer == 0:
        k.e(f"v_and_b32 v{x}, 6, v{tt}", f"v_xor_b32 v{x}, v{x}, v{g}", f"v_lshlrev_b32 v{x}, 4, v{x}",
            f"v_lshl_add_u32 v{x}, v{tt}, 7, v{x}", f"v_add_u32 v{R.XE}, v{x}, v{tb}", f"v_xor_b32 v{R.XO}, 64, v{R.XE}")
    else:
        k.e(f"v_lshl_add_u32 v{x}, v{g}, 7, v{tb}", f"v_lshl_add_u32 v{R.XE}, v{tt}, 4, v{x}", f"v_add_u32 v{R.XO}, 512, v{R.XE}")
    k.e(f"v_lshlrev_b32 v{R.SA}, 3, v{t16}", f"v_add_u32 v{R.SA}, {sa}, v{R.SA}",
        f"v_lshlrev_b32 v{R.SB}, 5, v{g}", f"v_add_u32 v{R.SB}, {sa}, v{R.SB}")
    k.e(f"v_and_b32 v{x}, 1, v1", f"v_cmp_eq_u32 s[{sODD}:{sODD+1}], 1, v{x}",
        f"v_lshl_add_u32 v{y}, v{g}, 2, v{x}", f"v_cmp_le_u32 s[{sCUR0}:{sCUR0+1}], v{y}, v{t16}",
        f"v_add_u32 v{y}, 2, v{y}", f"v_cmp_le_u32 s[{sCUR1}:{sCUR1+1}], v{y}, v{t16}")
    k.e(f"v_mov_b32 v{y}, 0xffff", f"v_mov_b32 v{z}, 0xffff0000", f"v_cndmask_b32 v{y}, v{y}, v{z}, s[{sODD}:{sODD+1}]", f"v_mov_b32 v{z}, 0")
    k.e(f"v_cndmask_b32 v{R.M+2}, v{z}, v{y}, s[{sCUR0}:{sCUR0+1}]", f"v_cndmask_b32 v{R.M}, v{y}, v{z}, s[{sCUR0}:{sCUR0+1}]",
        f"v_cndmask_b32 v{R.M+3}, v{z}, v{y}, s[{sCUR1}:{sCUR1+1}]", f"v_cndmask_b32 v{R.M+1}, v{y}, v{z}, s[{sCUR1}:{sCUR1+1}]")
    k.e(f"s_cmp_eq_u32 s{sB}, 0", f"s_cselect_b32 s70, {f2u(-1e38):#x}, 0", f"s_mov_b32 s{sCEXP}, {f2u(0.25*LOG2E):#x}")
    for i in range(4): k.e(f"v_mov_b32 v{R.CI+i}, s70", f"v_mov_b32 v{R.ONE+i}, 0x3f803f80")
    return out

def o_bases(k, layer):
    k.e(*o_block("s32", layer))
    k.e(f"s_lshl_b32 s33, s{sCS}, 2", f"s_add_u32 s33, s33, s{sW}", "s_lshl_b32 s53, s33, 10", "s_add_u32 s53, s53, s32", "s_add_u32 s54, s53, 32768",
        f"s_lshl_b32 s32, s{sB}, 5", "s_add_u32 s32, s32, s33", "s_lshl_b32 s32, s32, 2", f"s_add_u32 s89, s32, {fl(layer, FL_O)}")

def ln_finish(a, s, q):
    a(f"v_mul_f32 v{s}, {f2u(-1/512):#x}, v{s}"); a(f"v_mul_f32 v{q}, {f2u(1/512):#x}, v{q}")
    a(f"v_fma_f32 v{q}, -v{s}, v{s}, v{q}"); a(f"v_max_f32 v{q}, 0, v{q}"); a(f"v_add_f32 v{q}, {f2u(1e-5):#x}, v{q}")

A_QS = 68
def fix_reads(k, R, t, S):
    i = 0 if t == "h" else t + 1
    return [lambda: k.ds(f"ds_read_b64 {vr(S,2)}, v{R.SA} offset:{i*128}", ("sa", t)),
            lambda: k.ds(f"ds_read_b128 {vr(S+2,4)}, v{R.SB} offset:{i*128}", ("sa", t)),
            lambda: k.ds(f"ds_read_b128 {vr(S+6,4)}, v{R.SB} offset:{i*128+16}", ("sa", t))]
def fix(k, R, fx, t, acc, at, pk, S=A_STA, pre=False, nxt=()):
    a = lambda txt, c=1, at=0: fx.add(lambda: k.e(txt), c, at)
    i = 0 if t == "h" else t + 1
    if not pre:
        for n, f in enumerate(fix_reads(k, R, t, S)): fx.add(f, 1, at - P.a1_salead if n == 0 else 0)
    fx.add(lambda: k.wait(lg=[("sa", t)]), 1, at)
    for f in nxt: fx.add(f)
    for r0, cs, dst in ((acc[0], CSQ, None if t == "h" else A_Q + 2*t), (acc[1], CSK, A_K + 2*i)):
        if dst is None: continue
        isq = cs == CSQ
        if pk:
            for h in (0, 2): a(f"v_pk_fma_f32 {vr(r0+h,2)}, {vr(S,2)}, {vr(cs+h,2)}, {vr(r0+h,2)} op_sel_hi:[0,1,1]")
            if not isq:
                for h in (0, 2): a(f"v_pk_mul_f32 {vr(r0+h,2)}, {vr(S,2)}, {vr(r0+h,2)} op_sel:[1,0] op_sel_hi:[1,1]")
        else:
            for r in range(4): a(f"v_fmac_f32 v{r0+r}, v{S}, v{cs+r}")
            if not isq:
                for r in range(4): a(f"v_mul_f32 v{r0+r}, v{S+1}, v{r0+r}")
        if isq: a(f"v_mul_f32 v{A_QS+t}, s{sCEXP}, v{S+1}")
        for h in range(2): a(f"v_cvt_pk_bf16_f32 v{dst+h}, v{r0+2*h}, v{r0+2*h+1}")
    r0 = acc[2]
    for r in range(4): a(f"v_fmac_f32 v{r0+r}, v{S+2+2*r}, v{CSV}")
    for r in range(4): a(f"v_mul_f32 v{r0+r}, v{S+3+2*r}, v{r0+r}")
    for h in range(2): a(f"v_cvt_pk_bf16_f32 v{A_V+2*i+h}, v{r0+2*h}, v{r0+2*h+1}")
    fx.add(lambda: (k.mark(("fix", t)), k.stamp(f"t0 fix{t}")), 0)

def attn(k, R, fx, t, B):
    SC, SP, PP, O, SUM, T = B, B + 4, B + 8, B + 12, B + 16, B + 20
    a = lambda txt, c=1: fx.add(lambda: k.e(txt), c)
    q = vr(A_Q + 2*t, 2)
    fx.dep(("fix", t)); fx.dep(("fix", t - 1 if t else "h")); fx.skip(1)
    a(f"{MF16S} {vr(SC,4)}, {vr(A_K+2*(t+1),2)}, {q}, 0", 2)
    a(f"{MF16S} {vr(SP,4)}, {vr(A_K+2*t,2)}, {q}, {vr(R.CI,4) if t == 0 else '0'}", 2)
    fx.skip(3)
    for rr, cur in ((0, sCUR0), (1, sCUR1)):
        a(f"v_cndmask_b32 v{T+2}, v{SC+2*rr}, v{SC+2*rr+1}, s[{sODD}:{sODD+1}]")
        a(f"v_cndmask_b32 v{T+3}, v{SP+2*rr}, v{SP+2*rr+1}, s[{sODD}:{sODD+1}]")
        a(f"v_cndmask_b32 v{T+rr}, v{T+3}, v{T+2}, s[{cur}:{cur+1}]")
    a(f"v_max_f32 v{T+2}, v{T}, v{T+1}"); a(f"v_mov_b32 v{T+3}, v{T+2}"); fx.skip(1)
    a(f"v_permlane16_swap_b32 v{T+2}, v{T+3}", 2); a(f"v_max_f32 v{T+2}, v{T+2}, v{T+3}"); a(f"v_mov_b32 v{T+3}, v{T+2}"); fx.skip(1)
    a(f"v_permlane32_swap_b32 v{T+2}, v{T+3}", 2); a(f"v_max_f32 v{T+2}, v{T+2}, v{T+3}")
    a(f"v_mul_f32 v{T+2}, v{A_QS+t}, v{T+2}")
    for rr in range(2): a(f"v_fma_f32 v{T+rr}, v{T+rr}, v{A_QS+t}, -v{T+2}")
    for rr in range(2): a(f"v_exp_f32 v{T+rr}, v{T+rr}", 2)
    for rr in range(2): a(f"v_cvt_pk_bf16_f32 v{T+rr}, v{T+rr}, v{T+rr}")
    a(f"v_and_b32 v{PP}, v{T}, v{R.M}"); a(f"v_and_b32 v{PP+1}, v{T+1}, v{R.M+1}")
    a(f"v_and_b32 v{PP+2}, v{T}, v{R.M+2}"); a(f"v_and_b32 v{PP+3}, v{T+1}, v{R.M+3}")
    fx.skip(1)
    a(f"{MF16} {vr(SUM,4)}, {vr(R.ONE,4)}, {vr(PP,4)}, 0", 2)
    a(f"{MF16} {vr(O,4)}, {vr(A_V+2*t,4)}, {vr(PP,4)}, 0", 2)
    fx.skip(3)
    a(f"v_rcp_f32 v{T}, v{SUM}", 2); fx.skip(1)
    for r in range(4): a(f"v_mul_f32 v{O+r}, v{T}, v{O+r}")
    for h in range(2): a(f"v_cvt_pk_bf16_f32 v{A_OP+2*t+h}, v{O+2*h}, v{O+2*h+1}")
    fx.add(lambda: (k.mark(("attn", t)), k.stamp(f"t0 attn{t}")), 0)

def ostore(k, fx, pair):
    b = A_OP + 4 * pair
    fx.dep(("attn", 2*pair)); fx.dep(("attn", 2*pair + 1))
    fx.dep("po1" if pair == 0 else "blank")
    fx.skip(1)
    fx.add(lambda: k.e(f"v_permlane16_swap_b32 v{b}, v{b+2}"), 2); fx.add(lambda: k.e(f"v_permlane16_swap_b32 v{b+1}, v{b+3}"), 2)
    fx.add(lambda: (k.dstore(f"buffer_store_dwordx4 {vr(b,4)}, v{vL16}, {SRD_WS}, s{53+pair} offen", ("ost", pair)), k.mark(("ost", pair))))

Z_WD, Z_TR, Z_HE, Z_HO, Z_OE, Z_OO = 164, 165, 166, 167, 168, 169
Z_XF, Z_SUM, Z_GR, Z_SUMH, Z_GRH, Z_CV = 104, 240, 244, 248, 252, 100
P.k_first = 4; P.k_pack = None; P.k_prep = 13
P.k_look, P.k_atom, P.k_bar, P.k_vgap, P.k_pst, P.k_pgap = 3, 6, 3, 3, 3, 0
NS0 = 6
def z_acc(t):
    if t == "h": return (None, A_ACC + 48, A_ACC + 52)
    return (A_ACC + 12*t, A_ACC + 12*t + 4, A_ACC + 12*t + 8)

def a10_lanes(k):
    k.e("v_lshrrev_b32 v60, 3, v1", "v_and_b32 v61, 6, v60", "v_and_b32 v62, 7, v1", "v_xor_b32 v61, v61, v62",
        "v_lshlrev_b32 v61, 4, v61", f"v_lshl_add_u32 v{A_DX}, v60, 10, v61")
    k.e("v_and_b32 v61, 2, v60", f"s_and_b32 s32, s{sW}, 1", "s_lshl_b32 s32, s32, 2", "v_or_b32 v61, s32, v61", "v_xor_b32 v61, v61, v62",
        "v_lshlrev_b32 v61, 4, v61", "v_mul_u32_u24 v60, 3072, v60", f"v_add_u32 v{Z_WD}, v60, v61")
    if P.rot == 0: k.e(f"s_add_u32 s{sROT}, s{sB}, s{sCS}")
    elif P.rot == 1: k.e(f"s_lshl_b32 s32, s{sB}, 1", f"s_bfe_u32 s33, s{sB}, 0x10002", "s_add_u32 s32, s32, s33", f"s_add_u32 s{sROT}, s32, s{sCS}")
    elif P.rot == 2: k.e(f"s_lshl_b32 s32, s{sB}, 1", f"s_add_u32 s{sROT}, s32, s{sCS}")
    elif P.rot == 3: k.e(f"s_mov_b32 s{sROT}, s{sCS}")
    elif P.rot == 4: k.e(f"s_lshl_b32 s32, s{sB}, 1", f"s_bfe_u32 s33, s{sB}, 0x10002", f"s_add_u32 s{sROT}, s32, s33")
    elif P.rot == 5: k.e(f"s_mov_b32 s{sROT}, 0")
    k.e(f"s_and_b32 s{sROT}, s{sROT}, 7")
    k.e(f"s_lshl_b32 s47, s{sB}, 3", "s_sub_u32 s48, s47, 2", "s_max_i32 s48, s48, 0", f"s_and_b32 s32, s{sW}, 1", "s_add_u32 s48, s48, s32",
        "s_lshl_b32 s48, s48, 13", f"s_lshl_b32 s32, s{sW}, 1", "s_add_u32 s47, s47, s32", "s_lshl_b32 s47, s47, 13")
    k.e(f"s_mul_i32 s51, s{sW}, {8*3072}", f"s_lshl_b32 s32, s{sCS}, 7", "s_add_u32 s51, s51, s32", f"s_mul_i32 s52, s{sW}, 3072")
    k.e(f"s_lshl_b32 s49, s{sW}, 14", f"s_and_b32 s32, s{sW}, 1", "s_lshl_b32 s50, s32, 13", f"s_lshr_b32 s32, s{sW}, 1",
        "s_lshl_b32 s33, s32, 10", "s_add_u32 s50, s50, s33", f"s_add_u32 s90, s32, s{sROT}")

def a10_x(k, c):
    S = lambda *t: [("s", lambda x=x: k.e(x)) for x in t]
    ld = lambda: k.vm(f"buffer_load_dwordx4 v{A_DX}, {SRD_X}, s33 offen {P.x_mod} lds", ("x", c))
    ops = S(f"s_add_u32 s33, s{sROT}, {c}", "s_and_b32 s33, s33, 7", "s_lshl_b32 s33, s33, 7", f"s_add_u32 m0, s49, {L_X + c*1024}", "s_add_u32 s33, s33, s47")
    ops += [("v", ld)] + S(f"s_add_u32 m0, s49, {L_X + 8192 + c*1024}", "s_add_u32 s33, s33, 8192") + [("v", ld)]
    if c % 2 == 0:
        ops += S(f"s_add_u32 s33, s90, {c}", "s_and_b32 s33, s33, 7", "s_lshl_b32 s33, s33, 7", f"s_add_u32 m0, s50, {L_XH0 + c*1024}", "s_add_u32 s33, s33, s48") + [("v", ld)]
    return ops

def a10_w(k, s):
    S = lambda *t: [("s", lambda x=x: k.e(x)) for x in t]
    if s & 1: ops = S(f"s_add_u32 m0, s52, {(s % NS0)*12288}", f"s_add_u32 s63, s63, {32*3072}")
    else: ops = S(f"s_add_u32 s63, s{sROT}, {s>>1}", "s_and_b32 s63, s63, 7", f"s_mul_i32 s63, s63, {64*3072}", f"s_add_u32 m0, s52, {(s % NS0)*12288}", "s_add_u32 s63, s63, s51")
    for p in range(3): ops.append(("v", lambda p=p: k.vm(f"buffer_load_dwordx4 v{Z_WD}, {SRD_QKV}, s63 offen offset:{p*1024} {P.w_mod} lds", ("w", s))))
    return ops
def run(ops):
    for _, f in ops: f()

def fill(k, mains, streams, cap=2):
    lastv = -99
    for g, m in enumerate(mains):
        m(); k.gap = g
        for a, o in streams:
            if a <= g and o and o[0][0] == "s": o.pop(0)[1](); break
        room = cap; nd = 0
        if g - lastv >= P.k_vgap and k.bg_step(): room -= 1; lastv = g
        while room > 0:
            pick = None
            for a, o in streams:
                if a > g or not o: continue
                t = o[0][0]
                if t == "d" and nd >= 1: continue
                if t == "v" and g - lastv < P.k_vgap: continue
                pick = o; break
            if pick is None: break
            t, f = pick.pop(0); f(); room -= 2 if t == "b" else 1
            if t == "d": nd += 1
            if t == "v": lastv = g
    for a, o in streams: run(o)

def a10_lanes2(k):
    k.e("v_lshrrev_b32 v60, 4, v1", "v_bfe_u32 v61, v1, 2, 2", "v_and_b32 v62, 1, v60", "v_lshlrev_b32 v62, 1, v62",
        "v_lshrrev_b32 v63, 1, v61", "v_or_b32 v62, v62, v63", f"v_xor_b32 v62, s{sW}, v62", "v_lshlrev_b32 v62, 5, v62",
        "v_mul_u32_u24 v60, 3072, v60", "v_lshl_add_u32 v60, v61, 7, v60", "v_add_u32 v60, v60, v62",
        "v_and_b32 v61, 3, v1", f"v_lshl_add_u32 v{Z_TR}, v61, 3, v60")
    k.e("v_and_b32 v60, 15, v1", "v_cmp_eq_u32 s[78:79], 0, v60")
    k.e(f"v_subrev_u32 v{Z_HE}, 16384, v{R0.XE}", f"v_subrev_u32 v{Z_HO}, 16384, v{R0.XO}",
        f"v_add_u32 v{Z_OE}, s49, v{R0.XE}", f"v_add_u32 v{Z_OO}, s49, v{R0.XO}")

def a10_loop(k, first):
    LA = P.k_look
    def sync(s, extra=()):
        k.wait(vm=[("w", s), ("x", s >> 1)] + list(extra)); k.e("s_barrier")
    nxt = [first]
    def dmas(upto):
        out = []
        while nxt[0] <= min(upto, 15):
            n = nxt[0]; nxt[0] += 1
            if n % 2 == 0: out += a10_x(k, n // 2)
            out += a10_w(k, n)
        return out
    def reads(s):
        fb = Z_XF + 24 * (s & 1); off = (s >> 1) * 1024; o = s & 1
        tr = lambda p, j: ("d", lambda: k.ds(f"ds_read_b64_tr_b16 {ar(12*s+4*p+2*j,2)}, v{Z_TR} offset:{(s%NS0)*12288 + p*1024 + j*512}", ("r", s, 0 if p == 0 else 1)))
        xr = lambda d, a, of, grp: ("d", lambda: k.ds(f"ds_read_b128 {vr(d,4)}, v{a} offset:{of}", ("r", s, grp)))
        out = [tr(0, 0), tr(0, 1)] + [xr(fb + 4*t, R0.XO if o else R0.XE, t*16384 + off, 0) for t in range(4)]
        out += [tr(1, 0), tr(1, 1), tr(2, 0), tr(2, 1), xr(fb + 16, Z_HO if o else Z_HE, off, 1), xr(fb + 20, Z_OO if o else Z_OE, off, 1)]
        return out
    l0_background(k)
    pst = pack_stores(k)
    sync(0)
    k.stamp("k0")
    run(reads(0)); run(dmas(LA - 1))
    for s in range(16):
        fb = Z_XF + 24 * (s & 1)
        c = lambda r: "0" if s == 0 else vr(r, 4)
        wq, wk, wv, one = ar(12*s, 4), ar(12*s + 4, 4), ar(12*s + 8, 4), vr(R0.ONE, 4)
        ms = [f"{MF16} {vr(z_acc(t)[0],4)}, {wq}, {vr(fb+4*t,4)}, {c(z_acc(t)[0])}" for t in range(4)]
        for t in [0, 1, 2, 3, "h"]:
            xf = vr(fb + (16 if t == "h" else 4*t), 4)
            ms.append(f"{MF16} {vr(z_acc(t)[1],4)}, {wk}, {xf}, {c(z_acc(t)[1])}")
            ms.append(f"{MF16} {vr(z_acc(t)[2],4)}, {xf}, {wv}, {c(z_acc(t)[2])}")
        ms += [f"{MF16} {vr(Z_CV,4)}, {wq}, {vr(fb+16,4)}, {c(Z_CV)}",
               f"{MF16} {vr(Z_SUM,4)}, {one}, {vr(fb+20,4)}, {c(Z_SUM)}", f"{MF16} {vr(Z_GR,4)}, {vr(fb+20,4)}, {vr(fb+20,4)}, {c(Z_GR)}",
               f"{MF16} {vr(Z_SUMH,4)}, {one}, {vr(fb+16,4)}, {c(Z_SUMH)}", f"{MF16} {vr(Z_GRH,4)}, {vr(fb+16,4)}, {vr(fb+16,4)}, {c(Z_GRH)}"]
        mains = [lambda m=m: k.e(m) for m in ms]
        if s == P.k_pack:
            k.wait(lg="all"); pack_process(k, lambda: None, lambda: None)
        k.wait(lg=[("r", s, 0)])
        streams = [(3, [("s", lambda: k.wait(lg=[("r", s, 1)]))] +
                       [("a", lambda d=d: k.e(f"v_cndmask_b32 v{fb+16+d}, v{fb+16+d}, v{R0.ONE}, s[78:79]")) for d in range(4)])]
        if s + 1 < 16:
            ex = ["pks"] if s + 1 == P.k_atom else []
            assert not ex or not pst, "arrival before the last pack store"
            assert P.k_prep > 14 - LA and (P.k_pack or 0) <= 8 - LA
            ops = [("b", lambda: sync(s + 1, ex))] + reads(s + 1)
            if ex: ops.append(("b", lambda: arrive(k)))
            streams.append((P.k_bar, ops))
            streams.append((0, dmas(s + LA)))
        n = 0; mine = []
        while pst and s >= (P.k_pack or 0) and (n < P.k_pst or pst[0][0] == "a"):
            n += pst[0][0] == "v"; mine.append(pst.pop(0))
        streams.append((P.k_pgap, mine))
        if s == P.k_prep: streams.append((6, tail_prep(k)))
        if s == P.k_touch:
            streams.append((2, [("b", lambda: k.touch(157, "p", ["s_mov_b32 s32, s53"], False) if (0, "ost", True) not in P.wt else None),
                                ("b", lambda: k.touch(158, "q", [f"s_add_u32 s32, s64, {BX1[0]}"], False) if (0, "xst", False) not in P.wt else None),
                                ("b", lambda: k.touch(159, "h", h_base("s32", 0), False) if P.h_touch0 == "k" else None)]))
        if s == P.k_gb: streams.append((1, [("v", lambda t=t: k.vm(t, "gb")) for t in GB_LOADS]))
        if s == P.k_chk: streams.append((1, [("b", lambda: rendezvous(k))]))
        if s == 15 and P.k_chk < 16:
            streams.append((max(P.k_bar, 4), [("b", lambda: (k.e("s_barrier"), k.mark("xfree")))]))
        fill(k, mains, streams)
        if s in (3, 7, 11): k.stamp(f"k{s+1}")
    k.stamp("k16")
    if P.k_chk >= 16: rendezvous(k)

GB_LOADS = [f"buffer_load_dwordx4 {vr(36+4*j,4)}, v{vL16}, {SRD_WS}, s75 offen offset:{j*1024} sc1" for j in range(4)] + \
           [f"buffer_load_dword v{vP}, v172, {SRD_WS}, s77 offen offset:8 sc1"]
def arrive(k):
    k.wait(vm=["tag"])
    k.e(f"v_readfirstlane_b32 s{sTAG}, v170", f"s_cmp_eq_u32 s{sTAG}, 0", "s_cbranch_scc1 L_tag_spin ;np", "L_tag_ok: ;np")
    k.spins += ["L_tag_spin:", f"s_sub_u32 s{sBUD}, s{sBUD}, 1", "s_cbranch_scc1 L_tag_give", f"buffer_load_dword v170, v{vFA}, {SRD_DBG}, 0 offen sc1",
                "s_waitcnt vmcnt(0)", f"v_readfirstlane_b32 s{sTAG}, v170", f"s_cmp_eq_u32 s{sTAG}, 0", "s_cbranch_scc1 L_tag_spin", "s_branch L_tag_ok",
                "L_tag_give:", f"s_mov_b32 s{sBUD}, 0", "s_branch L_tag_ok"]
    k.e(f"v_mov_b32 v176, s{sTAG}", "v_not_b32 v177, v176", f"v_mov_b32 v178, s{sXCC}")
    k.vm(f"buffer_store_dwordx4 v[176:179], v171, {SRD_WS}, s75 offen sc1", "arr")

def rendezvous(k):
    chk = [f"s_not_b32 s32, s{sTAG}"]
    for j in range(4): chk += [f"v_xor_b32 v{36+4*j}, s{sTAG}, v{36+4*j}", f"v_xor_b32 v{37+4*j}, s32, v{37+4*j}"]
    chk += ["v_or3_b32 v36, v36, v37, v40", "v_or3_b32 v44, v44, v45, v41", "v_or3_b32 v36, v36, v48, v49", "v_or_b32 v36, v36, v44", "v_cmp_ne_u32 vcc, 0, v36"]
    k.wait(vm=["gb"])
    k.e(*chk); k.e("s_cbranch_vccnz L_gb_spin ;np", "L_gb_ok: ;np")
    k.spins += ["L_gb_spin:", f"s_sub_u32 s{sBUD}, s{sBUD}, 1", "s_cbranch_scc1 L_gb_give", "s_sleep 2",
                f"buffer_load_dword v170, v{vFA}, {SRD_DBG}, 0 offen sc1", "s_waitcnt vmcnt(0)", "v_readfirstlane_b32 s32, v170", f"s_cmp_eq_u32 s32, s{sTAG}",
                "s_cbranch_scc1 L_gb_same", f"s_mov_b32 s{sTAG}, s32", f"v_mov_b32 v176, s{sTAG}", "v_not_b32 v177, v176",
                f"buffer_store_dwordx4 v[176:179], v171, {SRD_WS}, s75 offen sc1", "L_gb_same:"] + GB_LOADS + ["s_waitcnt vmcnt(0)"] + chk + \
               ["s_cbranch_vccnz L_gb_spin", "s_branch L_gb_ok", "L_gb_give:", f"s_mov_b32 s{sBUD}, 0", "s_branch L_gb_ok"]
    k.e(f"v_cmp_ne_u32 vcc, s{sXCC}, v{vP}", "s_and_b32 s99, vcc_lo, 0xffff" if not P.safe else "s_and_b32 s99, 1, 1",
        f"s_cselect_b32 s{sML}, {OOB>>1:#x}, 0", f"s_cselect_b32 s{sMS}, 0, {OOB>>1:#x}")
    k.mark("gb")

W_OA, W_UA, W_SA, W_RB = 152, 154, 155, 156
def wo_bases(k):
    k.e(f"s_lshl_b32 s32, s{sB}, 2", f"s_add_u32 s32, s32, s{sW}", "s_lshl_b32 s64, s32, 14", f"s_lshl_b32 s33, s{sCS}, 10", "s_add_u32 s64, s64, s33",
        "s_lshr_b32 s32, s32, 1", "s_lshl_b32 s80, s32, 15", "s_lshl_b32 s65, s32, 11", "s_lshl_b32 s66, s32, 3", f"s_add_u32 s66, s66, s{sCS}", "s_lshl_b32 s66, s66, 1",
        f"s_and_b32 s32, s{sW}, 1", "s_add_u32 s66, s66, s32", "s_lshl_b32 s66, s66, 2", "s_lshl_b32 s32, s32, 8", "s_add_u32 s80, s80, s32", "s_add_u32 s65, s65, s32",
        f"s_lshr_b32 s32, s{sCS}, 1", "s_lshl_b32 s32, s32, 9", "s_add_u32 s65, s65, s32", f"s_and_b32 s32, s{sCS}, 1", "s_lshl_b32 s32, s32, 3", "s_add_u32 s65, s65, s32")
def wo_lanes(k):
    x, y = 66, 67
    return [lambda t=t: k.e(*t) for t in (
        [f"v_and_b32 v{x}, 15, v1"], [f"v_lshrrev_b32 v{y}, 4, v1"], [f"v_lshlrev_b32 v{W_OA}, 4, v{x}"], [f"v_lshl_add_u32 v{W_SA}, v{y}, 2, v{W_OA}"],
        [f"v_lshl_add_u32 v{W_OA}, v{y}, 9, v{W_OA}"], [f"v_and_b32 v{W_UA}, 7, v1"], [f"v_lshlrev_b32 v{W_UA}, 4, v{W_UA}"], [f"v_lshl_add_u32 v{W_UA}, v{y}, 7, v{W_UA}"],
        [f"v_lshrrev_b32 v{x}, 3, v{x}"], [f"v_lshl_add_u32 v{W_UA}, v{x}, 13, v{W_UA}"], [f"v_add_u32 v{W_RB}, {6*16384}, v{vL16}"],
        ["v_cmp_gt_u32 vcc, 32, v1", f"v_mov_b32 v{y}, {OOB:#x}", f"v_cndmask_b32 v{W_SA}, v{y}, v{W_SA}, vcc"])]
def blanks(k, layer):
    if not P.tags: return [lambda: k.mark("blank")]
    z = 66
    return [lambda: (k.e(f"v_mov_b32 v{z}, -1"), k.dstore(f"buffer_store_dword v{z}, v{vL16}, {SRD_WS}, s53 offen", "blank")),
            lambda: (k.e(f"s_add_u32 s58, s64, {BX1[layer]}"), k.dstore(f"buffer_store_dword v{z}, v{W_UA}, {SRD_WS}, s58 offen", "blank")),
            lambda: k.dstore(f"buffer_store_dword v{z}, v{W_UA}, {SRD_WS}, s58 offen offset:512", "blank"),
            lambda: (k.e(f"s_add_u32 s58, s65, {BS1[layer]}"), k.dstore(f"buffer_store_dword v{z}, v{W_SA}, {SRD_WS}, s58 offen", "blank"), k.mark("blank"))]
def wo_prepoll(k, layer):
    k.poll_addr(A_PA, 32)
    k.e(f"s_lshl_b32 s32, s{sB}, 7", f"s_add_u32 s{sPO}, s32, {fl(layer, FL_O)}", *o_block("s59", layer), "s_and_b32 s32, s80, 0xffff", "s_add_u32 s59, s59, s32")
    k.bg_held = True
    k.poll_issue(A_PA, "po1"); k.mark("po1")

def dna(k): return regloads(k, sDS, 0, lambda j: ar(192 + 4*j, 4), 16, "dna")

def tail_prep(k):
    R = R0
    A = lambda *t: [("a", lambda x=x: k.e(x)) for x in t]
    B = lambda *t: [("b", lambda: k.e(*t))]
    ops = A("v_and_b32 v73, 15, v1", "v_lshrrev_b32 v74, 4, v1", "v_lshlrev_b32 v73, 10, v73", "v_lshl_add_u32 v73, v74, 4, v73")
    ops += B(f"s_lshl_b32 s58, s{sB}, 2", f"s_add_u32 s58, s58, s{sW}", "s_lshl_b32 s58, s58, 14", f"s_lshl_b32 s59, s{sCS}, 7", "s_add_u32 s58, s58, s59")
    ops += [("v", lambda p=p: k.vm(f"buffer_load_dwordx4 {vr(RES+4*p,4)}, v73, {SRD_X}, s58 offen offset:{p*64}", "res")) for p in range(2)]
    ops += A("v_and_b32 v75, 3, v1", "v_cmp_eq_u32 s[34:35], 1, v75", "v_cmp_eq_u32 s[36:37], 2, v75", "v_cmp_eq_u32 s[38:39], 3, v75", "v_bfe_u32 v75, v1, 2, 2")
    ops += B("v_cmp_eq_u32 vcc, v75, v74", f"v_mov_b32 v72, {L_SA0 + 768}", f"s_lshl_b32 s59, s{sW}, 7", f"v_add_u32 v74, s59, v{R.SA}",
             "v_cndmask_b32 v74, v72, v74, vcc", f"v_cndmask_b32 v75, v72, v{R.SA}, vcc")
    return ops + [("a", f) for f in wo_lanes(k)]

def l0_background(k):
    k.per = dict(P.per_k)
    dd = dna(k)
    bg_list(k, dd[:P.dna_first], "s4", "dna", "gb")
    bg_list(k, wow(k), "s4", "wow", "xfree")
    bg_batches(k, [0, 1, 2, 3], "s2", lambda b: "xfree")
    bg_batches(k, [4], "s2", lambda b: "wobar")
    bg_batches(k, [5], "s2", lambda b: "xfree")
    bg_batches(k, [6, 7, 8, 9], "s2", lambda b: "gubar")
    bg_list(k, dd[P.dna_first:], "s4", "dna")
P.per_k = {"s2": 90, "s4": 70}

def a10_tail(k):
    R = R0
    k.per = dict(P.per_tail0)
    k.stamp("t0 gb")
    if (0, "xst", False) not in P.wt: k.touch(72, "t", [f"s_add_u32 s32, s65, {BS1[0]}"])
    k.bg_burst(P.tail_burst); k.bg_next = k.t + P.tail_delay
    hk, hv = z_acc("h")[1], z_acc("h")[2]
    for r in range(4):
        k.e(f"v_mov_b32_dpp v{CSQ+r}, v{Z_CV+r} row_newbcast:0 row_mask:0xf bank_mask:0xf", f"v_mov_b32_dpp v{CSK+r}, v{hk+r} row_newbcast:0 row_mask:0xf bank_mask:0xf")
    k.e(f"v_mov_b32 v{CSV}, v{hv}", f"v_mov_b32 v45, v{hv}", f"v_permlane16_swap_b32 v{CSV}, v45", f"v_mov_b32 v45, v{CSV}", f"v_permlane32_swap_b32 v{CSV}, v45")
    fa = Flex(); fb = Flex()
    for fx, S, G, ad, off in ((fa, Z_SUM, Z_GR, 74, 128), (fb, Z_SUMH, Z_GRH, 75, 0)):
        a = lambda txt, c=1, fx=fx: fx.add(lambda: k.e(txt), c)
        a(f"v_cndmask_b32 v{S+1}, v{G}, v{G+1}, s[34:35]"); a(f"v_cndmask_b32 v{S+1}, v{S+1}, v{G+2}, s[36:37]"); a(f"v_cndmask_b32 v{S+1}, v{S+1}, v{G+3}, s[38:39]")
        ln_finish(a, S, S + 1); a(f"v_rsq_f32 v{S+1}, v{S+1}"); fx.skip(1)
        fx.add(lambda S=S, ad=ad, off=off: k.ds(f"ds_write_b64 v{ad}, {vr(S,2)} offset:{off}", "saw"))
    drain([fa, fb], k)
    for f in blanks(k, 0): f()
    k.wait(lg="all"); k.e("s_barrier"); k.mark("xfree")
    k.stamp("t0 bar")
    fx = Flex(); f1 = Flex(); f2 = Flex()
    od = (2, 1, 3, 0, "h"); Ss = (A_STA, 56)
    for f in fix_reads(k, R, od[0], Ss[0]): f()
    for n, t in enumerate(od):
        fix(k, R, fx, t, z_acc(t), 0, True, Ss[n & 1], True, fix_reads(k, R, od[n + 1], Ss[~n & 1]) if n < 4 else ()); fx.skip(1)
    attn(k, R, f1, 2, R.ATT[0]); attn(k, R, f2, 3, R.ATT[1]); ostore(k, f2, 1)
    attn(k, R, f1, 1, R.ATT[0]); attn(k, R, f2, 0, R.ATT[1]); ostore(k, f2, 0)
    f3 = Flex(); f3.dep(("ost", 1))
    for _ in range(P.l0_flag_delay): f3.skip(1)
    f3.add(lambda: (k.wait(vm=[("ost", 1)]), k.flag(1, 89), k.mark("oflag1")))
    f3.dep(("attn", 0)); f3.add(lambda: wo_prepoll(k, 0))
    drain([fx, f1, f2, f3], k)
    k.stamp("a1 end")
P.tail_burst = 2; P.tail_delay = 0; P.l0_flag_delay = 6; P.dna_first = 2
P.per_tail0 = {"s2": 70, "s4": 45}

def a11_bases(k):
    out = []
    S = lambda *t: out.extend(lambda x=x: k.e(x) for x in t)
    S(f"s_lshr_b32 s70, s{sW}, 1", "s_lshl_b32 s49, s70, 13", f"s_and_b32 s71, s{sW}, 1", "s_lshl_b32 s71, s71, 2",
      f"s_add_u32 s50, s71, s{sROT}", "s_lshl_b32 s71, s71, 10")
    for i in range(4):
        S(f"s_add_u32 s70, s50, {i}", "s_and_b32 s70, s70, 7", "s_lshl_b32 s70, s70, 10", "s_add_u32 s70, s70, s49", f"s_sub_u32 s{92+i}, s70, {i*1024}")
    S("s_add_u32 s49, s49, s71", f"s_lshl_b32 s47, s{sB}, 16", f"s_add_u32 s47, s47, {BX2()}")
    S(f"s_sub_u32 s48, s{sB}, 1", "s_max_i32 s48, s48, 0", "s_lshl_b32 s51, s48, 10", f"s_add_u32 s51, s51, {WS_HST}",
      "s_lshl_b32 s52, s48, 11", f"s_add_u32 s52, s52, {WS_HXF}", "s_lshl_b32 s48, s48, 14", f"s_add_u32 s48, s48, {WS_HALO}")
    S("v_lshrrev_b32 v28, 4, v1", "v_and_b32 v29, 15, v1", "v_lshlrev_b32 v29, 4, v29", f"v_lshl_add_u32 v{A_U}, v28, 9, v29", f"v_lshl_add_u32 v{A_U+1}, v28, 8, v29")
    S(f"s_lshl_b32 s70, s{sB}, 12", f"s_and_b32 s71, s{sW}, 1", "s_lshl_b32 s71, s71, 8", "s_add_u32 s70, s70, s71", f"s_add_u32 s90, s70, {BS2()}")
    out.append(lambda: k.e(f"s_lshl_b32 s70, s{sB}, 1", f"s_add_u32 s70, s70, s{sW}", "s_lshl_b32 s72, s70, 13", f"s_lshl_b32 s71, s{sCS}, 10", "s_add_u32 s72, s72, s71",
        f"s_add_u32 s72, s72, {WS_HALO - 16384}", f"s_cmp_ge_u32 s{sW}, 2", f"s_cselect_b32 s72, s72, {OOB>>1:#x}"))
    out.append(lambda: k.e(f"s_lshl_b32 s73, s{sB}, 10", f"s_lshr_b32 s71, s{sCS}, 1", "s_lshl_b32 s71, s71, 8", "s_add_u32 s73, s73, s71", f"s_and_b32 s71, s{sCS}, 1",
        "s_lshl_b32 s71, s71, 3", "s_add_u32 s73, s73, s71"))
    out.append(lambda: k.e(f"s_lshl_b32 s71, s{sW}, 7", "s_add_u32 s73, s73, s71", f"s_add_u32 s73, s73, {WS_HST - 256}",
        f"s_cmp_ge_u32 s{sW}, 2", f"s_cselect_b32 s73, s73, {OOB>>1:#x}"))
    out.append(lambda: k.e(f"s_lshl_b32 s70, s{sB}, 3", f"s_add_u32 s70, s70, s{sCS}", "s_lshl_b32 s70, s70, 1", f"s_add_u32 s70, s70, s{sW}", "s_lshl_b32 s70, s70, 7",
        f"s_add_u32 s70, s70, {WS_HXF - 256}", f"s_cmp_ge_u32 s{sW}, 2", f"s_cselect_b32 s91, s70, {OOB>>1:#x}"))
    return out

def a11_x(k, tile):
    fns = []
    for i in range(4):
        def f(i=i):
            k.set_m0(f"s_add_u32 m0, s49, {A11_POS[tile]*16384}")
            k.e(f"s_add_u32 s32, s{48 if tile == 'h' else 47}, s{92+i}")
            if tile not in (0, "h"): k.e(f"s_add_u32 s32, s32, {tile*16384}")
            k.vm(f"buffer_load_dwordx4 v{vL16}, {SRD_WS}, s32 offen offset:{i*1024} sc1 lds", ("x", tile))
        fns.append(f)
    return fns

def stats_path(k, fx, S, tag, addr, tok, at=0):
    a = lambda txt, c=1: fx.add(lambda: k.e(txt), c)
    s, q = S, S + 1
    fx.add(lambda: k.wait(vm=[tag]), 1, at)
    a(f"v_add_f32 v{s}, v{s}, v{S+2}"); a(f"v_add_f32 v{q}, v{q}, v{S+3}"); fx.skip(1)
    a(f"v_permlane16_swap_b32 v{s}, v{q}", 2); a(f"v_add_f32 v{s}, v{s}, v{q}"); a(f"v_mov_b32 v{q}, v{s}"); fx.skip(1)
    a(f"v_permlane32_swap_b32 v{s}, v{q}", 2); a(f"v_add_f32 v{s}, v{s}, v{q}"); a(f"v_mov_b32 v{q}, v{s}"); fx.skip(1)
    a(f"v_permlane16_swap_b32 v{s}, v{q}", 2)
    ln_finish(a, s, q); a(f"v_rsq_f32 v{q}, v{q}", 2); fx.skip(1)
    fx.add(lambda: (k.ds(f"ds_write_b64 v{addr}, {vr(s,2)} offset:{tok*8}", ("saw", tag)), k.mark(("saw", tag))))

def a11_early(k, later=False):
    fns = a11_x(k, A11_ORDER[0]) + [lambda: k.vm(f"buffer_load_dwordx4 {vr(A_ST,4)}, v{A_U}, {SRD_WS}, s90 offen offset:2048 sc1", "st0")] + a11_x(k, A11_ORDER[1])
    if later: return fns
    for f in fns: f()

def a11_main(k):
    R = R1; order = A11_ORDER
    steps = [(t, s) for t in order for s in range(16)]
    accof = lambda t: A_ACC + 12 * (order.index(t) % 3)
    def xread(i):
        t, s = steps[i]
        off = A11_POS[t] * 16384 + (s >> 1) * 1024
        k.ds(f"ds_read_b128 {vr(A_XF+4*(i%4),4)}, v{R.XO if s&1 else R.XE} offset:{off}", ("xf", i))
    mains = []; fixed = {}; gap_of = {}
    need_sa = {order[1]: ["st0"], order[2]: ["st1"], order[3]: [], "h": []}
    for i, (t, s) in enumerate(steps):
        acc = accof(t); xf = vr(A_XF + 4*(i % 4), 4)
        c = lambda r, s=s: "0" if s == 0 else vr(r, 4)
        ms = []
        if t != "h": ms.append(f"{MF16} {vr(acc,4)}, {ar(12*s,4)}, {xf}, {c(acc)}")
        ms.append(f"{MF16} {vr(acc+4,4)}, {ar(12*s+4,4)}, {xf}, {c(acc+4)}")
        ms.append(f"{MF16} {vr(acc+8,4)}, {xf}, {ar(12*s+8,4)}, {c(acc+8)}")
        gap_of[(t, s)] = len(mains)
        for m in ms: mains.append(lambda m=m: k.e(m))
        last = len(mains) - 1
        fl_ = fixed.setdefault(last, [])
        if i + 1 < len(steps): fl_.append((0, lambda i=i: k.wait(lg=[("xf", i + 1)])))
        j = i + 4
        if j < len(steps):
            tj, sj = steps[j]
            if sj == 0:
                def bar(tj=tj):
                    k.wait(vm=[("x", tj)], lg=[("saw", n) for n in need_sa[tj]]); k.e("s_barrier"); k.mark(("bar", tj))
                fixed.setdefault(gap_of[(t, s)], []).append((1, bar))
            fixed[last].append((1, lambda j=j: xread(j)))
    fx = Flex(); fz = Flex(); fz2 = Flex(); fy = Flex(); fm = Flex()
    k.e(f"s_and_b32 s32, s{sW}, 1", "s_lshl_b32 s32, s32, 7", f"v_add_u32 v7, s32, v{R.SA}")
    o_bases(k, 1)
    stats_path(k, fy, A_ST, "st0", 7, 48)
    g1 = P.a1_late_gap
    fm.add(lambda: (k.wait(vm=[("xst", 1)]), k.flag(2)), 3, P.a1_flag_gap)
    fm.add(lambda: (k.poll_issue(A_PX, "px2"), setattr(k, "bg_held", not P.a1_bg_early)), 1, g1 - P.a1_poll_lead)
    fm.add(lambda: k.poll_check(A_PX, "px2", 2), 2, g1)
    fm.add(lambda: k.vm(f"buffer_load_dwordx4 {vr(56,4)}, v{A_U}, {SRD_WS}, s90 offen sc1", "st1"))
    for t in order[2:4]:
        for f in a11_x(k, t): fm.add(f, 2); fm.skip(P.a1_xgap)
    for f in wo_lanes(k): fy.add(f)
    fy.add(lambda: k.mark("wolanes"), 0)
    fm.dep("wolanes")
    fm.add(lambda: k.e(f"s_add_u32 s58, s64, {BX2()}"))
    for p in range(2): fm.add(lambda p=p: k.vm(f"buffer_load_dwordx4 {vr(RES+4*p,4)}, v{W_UA}, {SRD_WS}, s58 offen offset:{p*512} sc1", "res")); fm.skip(P.a1_xgap)
    def halo_poll():
        k.poll_addr(A_PX, 16, 7)
        k.e(f"s_mov_b32 s{sPO}, s52", f"s_min_u32 s50, s{sB}, 1")
        k.poll_issue(A_PX, "phx"); k.bg_held = False
    fm.add(halo_poll, 3)
    for c in P.t1_a1:
        if c == "o": fm.add(lambda: k.touch(60, "p", ["s_mov_b32 s32, s53"]), 6)
        if c == "x": fm.add(lambda: k.touch(62, "q", [f"s_add_u32 s32, s64, {BX1[1]}"]), 6)
        if c == "s": fm.add(lambda: k.touch(64, "t", [f"s_add_u32 s32, s65, {BS1[1]}"]), 4)
    for f in blanks(k, 1): fm.skip(P.a1_xgap); fm.add(f, 3)
    stats_path(k, fy, 56, "st1", 7, 16, g1 + 26)
    fm.dep(("bar", order[2]))
    fm.add(lambda: k.poll_check(A_PX, "phx", "s50"), 2)
    fm.add(lambda: k.vm(f"buffer_load_dwordx4 {vr(A_ST,4)}, v{A_U+1}, {SRD_WS}, s51 offen sc1", "sth"))
    for f in a11_x(k, "h"): fm.add(f, 2); fm.skip(P.a1_xgap)
    stats_path(k, fy, A_ST, "sth", R.SA, 0, gap_of[(order[3], P.a1_sth)])
    k.per = dict(P.per_a1); k.bg_held = True
    b5 = batch(k, 5)
    mix = [(f, "s2", ("gw", 4), None) for f in batch(k, 4)] + [(f, "s2", ("gw", 5), None) for f in b5[:3]]
    ww = [(f, "s4", "wow", None) for f in wow(k)]
    while mix or ww:
        k.bg += ww[:2]; ww = ww[2:]
        if mix: k.bg.append(mix.pop(0))
    bg_batches(k, [0], "s2", lambda b: ("bar", order[3]))
    bg_batches(k, [1], "s2", lambda b: ("bar", "h"))
    bg_batches(k, [2, 3], "s2", lambda b: "wobar")
    bg_list(k, b5[3:], "s2", ("gw", 5), "wobar")
    if P.dn1_agpr:
        for j, f in enumerate(regloads(k, sDS, 16*1024, lambda j: ar(4*j, 4), 40, "dnr", tagf=lambda j: ("dnr", 8 + j // 2))): k.bg_add(f, "s4", ("dnr", 8 + j // 2), "gemm_done")
    bg_batches(k, [6, 7, 8, 9], "s2", lambda b: "gubar")
    A = lambda t: (accof(t) if t != "h" else None, accof(t) + 4, accof(t) + 8)
    for n in range(4): fix(k, R, fx, order[n], A(order[n]), gap_of[(order[n + 1], 1 if n < 3 else 2)], False)
    attn(k, R, fz, 3, R.ATT[0]); attn(k, R, fz2, 2, R.ATT[1]); ostore(k, fz2, 1)
    attn(k, R, fz, 1, R.ATT[0])
    fx.dep(("saw", "sth"))
    for f in fix_reads(k, R, "h", A_STA): fx.add(f)
    fx.dep("gemm_done")
    fix(k, R, fx, "h", A("h"), 0, False, pre=True); attn(k, R, fz2, 0, R.ATT[1]); ostore(k, fz2, 0)
    f3 = Flex(); f3.dep(("ost", 1)); f3.skip(P.l1_flag_delay)
    f3.add(lambda: (k.wait(vm=[("ost", 1)]), k.flag(1, 89), k.mark("oflag1")), 3)
    f3.dep(("attn", 0)); f3.add(lambda: wo_prepoll(k, 1))
    k.wait(vm=[("x", order[0])]); k.e("s_barrier")
    for i in range(4): xread(i)
    k.wait(lg=[("xf", 0)])
    k.stamp("a1 first")
    if k.stamping:
        for t in order[1:]: fixed.setdefault(gap_of[(t, 0)], []).append((0, lambda t=t: k.stamp(f"a1 t{t}")))
        for g in range(6, 224, 12): fixed.setdefault(g, []).append((0, lambda g=g: k.stamp(f"fina {g}")))
    run_gaps(k, mains, fixed, [fm, f3, fy, fx, fz2, fz], 2, over=lambda i: i >= P.a1_over)
    print("a11 left:", len(fm), len(fy), len(fx), len(fz), len(fz2), len(k.bg), {n: g for n, g in k.marks.items() if isinstance(n, tuple) and n[0] in ("fix", "attn", "saw", "ost")})
    k.mark("gemm_done"); k.bg_held = P.a1_tailhold
    k.stamp("a1 gemm")
    drain([fm, fy, fx, fz, fz2, f3], k)
    for n in range(2): assert k.marks[("fix", order[n])] < gap_of[(order[n + 3], 0)], "accumulator reused too early"
    k.stamp("a1 end")
P.a1_flag_gap, P.a1_late_gap, P.a1_poll_lead, P.l1_flag_delay, P.a1_over = 8, 36, 18, 14, 48
P.a1_bg_early = False; P.a1_salead = 8; P.a1_tailhold = True; P.touch1 = 1; P.t1_a1 = ''; P.t1_dn = ''; P.a1_xgap = 3; P.a1_sth = 4
P.per_a1 = {"s2": 80, "s4": 50}

R_W0, R_W1, R_RD, R_ST, R_OUT = 3, 4, 5, 6, 7
def red_setup(k, posA, dAB):
    x, y, z, u = 28, 29, 30, 31
    k.e(f"s_add_u32 s32, s{sGL}, {posA*16384}", f"v_add_u32 v{R_W0}, s32, v{vL16}", f"v_xor_b32 v{R_W1}, 128, v{R_W0}")
    k.e(f"v_and_b32 v{x}, 7, v1", f"v_lshrrev_b32 v{y}, 3, v1", f"s_lshl_b32 s32, s{sW}, 7", f"v_lshl_add_u32 v{z}, v{x}, 4, s32",
        f"v_bfe_u32 v{u}, v1, 4, 1", f"v_lshlrev_b32 v{R_RD}, 7, v{u}", f"v_xor_b32 v{z}, v{z}, v{R_RD}",
        f"v_bfe_u32 v{R_RD}, v1, 3, 2", f"v_lshl_add_u32 v{z}, v{R_RD}, 10, v{z}", f"v_lshrrev_b32 v{R_RD}, 5, v1",
        f"v_mul_u32_u24 v{R_RD}, {dAB*16384}, v{R_RD}", f"v_add_u32 v{z}, v{z}, v{R_RD}", f"v_add_u32 v{R_RD}, {posA*16384}, v{z}")
    k.e(f"v_lshlrev_b32 v{z}, 4, v{x}", f"v_lshl_add_u32 v{z}, v{u}, 2, v{z}", f"v_and_b32 v{u}, 0x28, v1",
        f"v_cmp_eq_u32 vcc, 0, v{u}", f"v_mov_b32 v{u}, {OOB:#x}", f"v_cndmask_b32 v{R_ST}, v{u}, v{z}, vcc")
    k.e(f"v_lshlrev_b32 v{z}, 10, v{x}", f"v_lshl_add_u32 v{R_OUT}, v{y}, 4, v{z}")

def red_bases(k):
    k.e(f"s_lshl_b32 s32, s{sB}, 3", f"s_add_u32 s32, s32, s{sW}", "s_lshl_b32 s55, s32, 13", f"s_lshl_b32 s33, s{sCS}, 10", "s_add_u32 s55, s55, s33")
    k.e("s_lshl_b32 s57, s32, 13", f"s_lshl_b32 s33, s{sCS}, 7", "s_add_u32 s57, s57, s33")
    k.e(f"s_lshl_b32 s56, s{sB}, 12", f"s_lshr_b32 s33, s{sCS}, 1", "s_lshl_b32 s33, s33, 9", "s_add_u32 s56, s56, s33",
        f"s_and_b32 s33, s{sCS}, 1", "s_lshl_b32 s33, s33, 3", "s_add_u32 s56, s56, s33", f"s_lshl_b32 s33, s{sW}, 7", "s_add_u32 s56, s56, s33")

def red_writes(k, acc, g, off, dAB):
    return [lambda q=q: k.ds(f"ds_write_b128 v{R_W1 if (q>>1)&1 else R_W0}, {vr(acc+4*q,4)} offset:{off + (q>>2)*dAB*16384 + (q&3)*1024}", ("rw", g)) for q in range(8)]
def red_reads(k, g, T, off):
    return [lambda w=w, hf=hf: k.ds(f"ds_read_b128 {vr(T+8*w+4*hf,4)}, v{R_RD} offset:{off + w*4096 + hf*512}", ("rr", g, w)) for w in range(4) for hf in range(2)]

def red_finish(k, fx, g, mm, T, xdst, stdst, final, pk):
    a = lambda txt, c=1: fx.add(lambda: k.e(txt), c)
    R = RES + 4 * mm
    def add8(d, s):
        if pk:
            for i in range(0, 8, 2): a(f"v_pk_add_f32 {vr(d+i,2)}, {vr(d+i,2)}, {vr(s+i,2)}")
        else:
            for i in range(8): a(f"v_add_f32 v{d+i}, v{d+i}, v{s+i}")
    fx.add(lambda: k.wait(lg=[("rr", g, 1)]))
    add8(T, T + 8)
    for i in range(4): a(f"v_lshlrev_b32 v{T+8+2*i}, 16, v{R+i}"); a(f"v_and_b32 v{T+9+2*i}, 0xffff0000, v{R+i}")
    add8(T, T + 8)
    fx.add(lambda: k.wait(lg=[("rr", g, 3)]))
    add8(T + 16, T + 24); add8(T, T + 16)
    for i in range(4): a(f"v_cvt_pk_bf16_f32 v{R+i}, v{T+2*i}, v{T+2*i+1}")
    if final:
        fx.add(lambda: (k.e(f"s_add_u32 s32, s57, {mm*32768}"), k.vm(f"buffer_store_dwordx4 {vr(R,4)}, v{R_OUT}, {SRD_OUT}, s32 offen {P.outm[g]}", ("xst", g))))
        return
    fx.add(lambda: (k.e(f"s_add_u32 s32, s55, {xdst + mm*32768}"), k.dstore(f"buffer_store_dwordx4 {vr(R,4)}, v{vL16}, {SRD_WS}, s32 offen", ("xst", g))), 2)
    s, q = T + 32, T + 33
    a(f"v_add_f32 v{s}, v{T}, v{T+1}"); a(f"v_mul_f32 v{q}, v{T}, v{T}"); a(f"v_fmac_f32 v{q}, v{T+1}, v{T+1}")
    for i in range(2, 8): a(f"v_add_f32 v{s}, v{s}, v{T+i}"); a(f"v_fmac_f32 v{q}, v{T+i}, v{T+i}")
    fx.skip(1)
    a(f"v_add_f32_dpp v{s}, v{s}, v{s} row_ror:8 row_mask:0xf bank_mask:0xf"); a(f"v_add_f32_dpp v{q}, v{q}, v{q} row_ror:8 row_mask:0xf bank_mask:0xf")
    fx.skip(1)
    a(f"v_permlane16_swap_b32 v{s}, v{q}", 2); a(f"v_add_f32 v{s}, v{s}, v{q}"); a(f"v_mov_b32 v{q}, v{s}"); fx.skip(1)
    a(f"v_permlane32_swap_b32 v{s}, v{q}", 2); a(f"v_add_f32 v{s}, v{s}, v{q}")
    fx.add(lambda: (k.e(f"s_add_u32 s32, s56, {stdst + mm*2048}"), k.dstore(f"buffer_store_dword v{s}, v{R_ST}, {SRD_WS}, s32 offen", ("xst", g)), k.mark(("xst", g))), 2)

def merge(k, fx, extra, first=0):
    extra = list(extra)
    items = [it for it in fx.items if it[0] != "skip"]; fx.items = []
    per = max(1, (len(items) - first) // max(1, len(extra)))
    for n, it in enumerate(items):
        if n >= first and (n - first) % per == 0 and extra: extra.pop(0)()
        it[1](); k.bg_step()
    for f in extra: f(); k.bg_step()

def wo(k, layer):
    BF, WQ, ACC, T, PA, NQ = 32, 160, 192, 208, A_PA, 8
    state = {}
    def bload(sx):
        k.set_s(f"s_add_u32 s58, s59, {(sx & ~1)*2048}")
        k.vm(f"buffer_load_dwordx4 {vr(BF+4*sx,4)}, v{W_OA}, {SRD_WS}, s58 offen offset:{(sx%2)*2048} sc1", ("b", sx))
    def wread(n): k.ds(f"ds_read_b128 {vr(WQ+4*(n%NQ),4)}, v{W_RB} offset:{n*1024}", ("wq", n))
    k.wait(vm=["wow"]); k.e("s_barrier"); k.mark("wobar")
    k.stamp("wl bar")
    for n in range(NQ): wread(n)
    btxt = lambda sx: [f"s_add_u32 s99, s59, {sx*2048}", f"buffer_load_dwordx4 {vr(BF+4*sx,4)}, v{W_OA}, {SRD_WS}, s99 offen sc1"]
    bchk = lambda sx: k.valid([f"v_cmp_eq_u32 vcc, -1, v{BF+4*sx}"], btxt(sx))
    ptxt = f"buffer_load_dword v{T+20}, v{T+21}, {SRD_WS}, s59 offen sc1"
    if P.tags:
        k.e(f"v_lshlrev_b32 v{T+21}, 8, v{PA}")
        k.e(f"v_or_b32 v{T+21}, v{T+21}, v{PA}", f"v_and_b32 v{T+21}, 0x80007c00, v{T+21}")
        k.poll_check(PA, "po1", 1)
        k.vm(ptxt, "probe")
        for sx in range(P.wo_spec): bload(sx)
        k.e(f"s_lshl_b32 s32, s{sC}, 1", f"s_and_b32 s33, s{sW}, 1", "s_add_u32 s32, s32, s33", "s_lshl_b32 s32, s32, 7", f"s_add_u32 s{sPO}, s32, {fl(layer, FL_O)}")
    else:
        k.e(f"s_add_u32 s{sFO}, s66, {fl(layer, FL_X1)}")
        if P.wo_setup_first == 2: gu_setup(k, layer)
        k.wait(vm=[("ost", 0)]); k.stamp("wl ack"); k.flag(2, 89)
        k.e(f"s_cmp_lt_u32 s{sW}, 2", f"s_cbranch_scc1 L_wo_late{layer}")
        q0 = list(k.vmq)
        k.poll_check(PA, "po1", 1)
        for sx in range(P.wo_lead): bload(sx)
        if P.wo_setup_first == 1: gu_setup(k, layer)
        k.e(f"s_branch L_wo_join{layer}")
        k.label(f"L_wo_late{layer}")
        k.vmq = list(q0)
        if P.wo_setup_first == 1: gu_setup(k, layer)
        k.poll_issue(PA, "po2"); k.poll_wait(PA, "po2", 2, 157); k.stamp("wl go")
        for sx in range(P.wo_lead): bload(sx)
        k.label(f"L_wo_join{layer}")
    if P.tags or not P.wo_setup_first: gu_setup(k, layer)
    k.stamp("wo issued")
    mains = []; fixed = {}
    for n in range(64):
        sx, j = divmod(n, 4)
        mains.append(lambda n=n, sx=sx, j=j: k.e(f"{MF16} {vr(ACC+4*j,4)}, {vr(WQ+4*(n%NQ),4)}, {vr(BF+4*sx,4)}, {'0' if sx == 0 else vr(ACC+4*j,4)}"))
        fl_ = fixed.setdefault(n, [])
        if n < 63: fl_.append((0, lambda n=n: k.wait(vm=[("b", (n + 1) // 4)] if (n + 1) % 4 == 0 else None, lg=[("wq", n + 1)])))
        if P.tags and n < 63 and (n + 1) % 4 == 0: fl_.append((1, lambda n=n: bchk((n + 1) // 4)))
        if P.tags and n == 42: fl_.append((1, lambda: k.poll_issue(PA, "px1")))
        if n + NQ < 64: fl_.append((1, lambda n=n: wread(n + NQ)))
        if n % P.wo_bstep == 0 and P.wo_lead + n // P.wo_bstep < 16: fl_.append((1, lambda n=n: bload(P.wo_lead + n // P.wo_bstep)))
    fx = Flex()
    a = lambda txt, c=1, at=0: fx.add(lambda: k.e(txt), c, at)
    fx.add(lambda: k.wait(vm=["res"]), 1, 8)
    for i in range(8): a(f"v_lshlrev_b32 v{T+2*i}, 16, v{RES+i}"); a(f"v_and_b32 v{T+2*i+1}, 0xffff0000, v{RES+i}")
    k.per = dict(P.per_wo[layer]); k.bg_held = False; k.bg_next = k.t + P.wo_bg_delay
    if P.tags:
        k.wait(vm=["probe"])
        k.valid([f"v_cmp_eq_u32 vcc, -1, v{T+20}"], [ptxt] + sum([btxt(x) for x in range(P.wo_spec)], []))
        state["fresh"] = True
        for sx in range(P.wo_spec, P.wo_lead): bload(sx)
    k.wait(vm=[("b", 0)], lg=[("wq", 0)])
    if P.tags: bchk(0)
    k.stamp("wo first")
    fixed[P.wo_bg_stop].append((0, lambda: setattr(k, "bg_held", True)))
    run_gaps(k, mains, fixed, [fx], 2)
    drain([fx], k)
    k.stamp("wo gemm")
    for i in range(0, 16, 2): k.e(f"v_pk_add_f32 {vr(T+i,2)}, {vr(T+i,2)}, {vr(ACC+i,2)}")
    k.e(f"s_add_u32 s58, s64, {BX1[layer]}")
    for p in range(2):
        for i in range(4): k.e(f"v_cvt_pk_bf16_f32 v{RES+4*p+i}, v{T+8*p+2*i}, v{T+8*p+2*i+1}")
        k.dstore(f"buffer_store_dwordx4 {vr(RES+4*p,4)}, v{W_UA}, {SRD_WS}, s58 offen offset:{p*512}", "xst")
    S, Q = T + 16, T + 18
    k.e(f"v_pk_add_f32 {vr(S,2)}, {vr(T,2)}, {vr(T+2,2)}", f"v_pk_mul_f32 {vr(Q,2)}, {vr(T,2)}, {vr(T,2)}", f"v_pk_fma_f32 {vr(Q,2)}, {vr(T+2,2)}, {vr(T+2,2)}, {vr(Q,2)}")
    for i in range(4, 16, 2): k.e(f"v_pk_add_f32 {vr(S,2)}, {vr(S,2)}, {vr(T+i,2)}", f"v_pk_fma_f32 {vr(Q,2)}, {vr(T+i,2)}, {vr(T+i,2)}, {vr(Q,2)}")
    k.e(f"v_add_f32 v{S}, v{S}, v{S+1}", f"v_add_f32 v{Q}, v{Q}, v{Q+1}", f"s_add_u32 s58, s65, {BS1[layer]}",
        f"v_permlane16_swap_b32 v{S}, v{Q}", f"v_add_f32 v{S}, v{S}, v{Q}", f"v_mov_b32 v{Q}, v{S}", f"v_permlane32_swap_b32 v{S}, v{Q}", f"v_add_f32 v{S}, v{S}, v{Q}")
    k.dstore(f"buffer_store_dword v{S}, v{W_SA}, {SRD_WS}, s58 offen", "xst")
    key = lambda it: it[2][1] if (isinstance(it[2], tuple) and it[2][0] == "gw") else 11.5
    k.bg.sort(key=key)
    print(f"wo{layer} done, background left:", [it[2] for it in k.bg][::4])
    k.bg_burst(P.wo_win[layer])
    k.stamp("wo end")
P.wo_bg_delay = 750; P.wo_bg_stop = 63; P.wo_lead = 6; P.wo_spec = 3; P.gu_spec = 3; P.wo_bstep = 2
P.wo_poll_gap = 1; P.wo_late_gap = 7; P.wo_hold = True; P.wo_win = [4, 4]; P.wo_var = 'B'; P.wo_prew = 2
P.per_wo = [{"s2": 20, "s4": 20}] * 2

G_RB, G_C1, G_VV, G_AUG, G_X, G_ACC, G_WF, G_T = 3, 6, 7, 28, 32, 160, 224, 240
D_WV, D_BF, D_ACC, D_T, D_WF, D_RB, D_PA = 32, 64, 128, 192, 228, 112, 115
DN_SEQ = [(g, e) for g in range(2) for e in range(28)]
DN_GROUPS = [1, 0]
def h_loader(k, layer):
    def bload(i):
        if i == 0:
            k.e(f"s_mul_i32 s32, s{sB}, {224*KB}", f"s_mul_i32 s33, s{sW}, {28*KB}", "s_add_u32 s32, s32, s33", f"s_add_u32 s59, s32, {BH[layer]}")
            for p in range(4):
                k.e(f"s_add_u32 s32, s{sCS}, {p}", f"s_and_b32 s32, s32, {3 if P.hrot else 0}", f"s_mul_i32 s32, s32, {7*KB}", f"s_add_u32 s{34+p}, s59, s32")
                if not P.hrot: k.e(f"s_add_u32 s{34+p}, s{34+p}, {7*KB*p}")
        g, e = DN_SEQ[i]; p, tl = divmod(KK_OF[e], 7)
        k.set_s(f"s_add_u32 s58, s{34+p}, {DN_GROUPS[g] * 112 * KB + (tl & 4) * 1024}")
        k.vm(f"buffer_load_dwordx4 {vr(D_BF+4*(i%P.dn_lead),4)}, v{vL16}, {SRD_WS}, s58 offen offset:{(tl & 3)*1024} sc1", ("b", i))
    return bload

def gu_setup(k, layer):
    T = G_T; XA = T + 3
    k.e(*gu_tile("s50"))
    k.e(f"v_and_b32 v{T}, 31, v1")
    k.e(f"v_mov_b32 v{G_RB}, v{vL16}", f"v_add_u32 v{G_RB+1}, 0x10000, v{vL16}", f"v_add_u32 v{G_RB+2}, 0x20000, v{vL16}")
    k.e(f"v_lshrrev_b32 v{T+1}, 5, v1", f"v_lshlrev_b32 v{G_AUG+3}, 4, v{T}", f"v_lshl_add_u32 v{G_AUG+3}, v{T+1}, 10, v{G_AUG+3}")
    k.e(f"v_lshrrev_b32 v{XA}, 3, v{T}", f"v_lshlrev_b32 v{XA}, 13, v{XA}", f"v_lshl_add_u32 v{XA}, v{T+1}, 7, v{XA}",
        f"v_and_b32 v{T}, 7, v1", f"v_lshl_add_u32 v{XA}, v{T}, 4, v{XA}")
    k.e("s_lshl_b32 s32, s50, 11", f"s_add_u32 s51, s32, {BS1[layer]}")
    k.e("s_lshl_b32 s32, s50, 15", f"s_add_u32 s52, s32, {BX1[layer]}", "s_add_u32 s53, s52, 4096")
    k.e(*h_base("s54", layer))
    k.e("s_lshr_b32 s32, s50, 1", "s_lshl_b32 s32, s32, 4", f"s_add_u32 s32, s32, s{sM}",
        "s_lshl_b32 s32, s32, 1", "s_and_b32 s33, s50, 1", "s_add_u32 s32, s32, s33", "s_lshl_b32 s32, s32, 2", f"s_add_u32 s81, s32, {fl(layer, FL_H)}")

def gu(k, layer):
    T = G_T; XA = T + 3; PA = T + 2
    if P.tags: k.poll_check(A_PA, "px1", 1)
    else:
        def pa():
            k.poll_addr(PA, 16)
            k.e("s_lshl_b32 s32, s50, 6", f"s_add_u32 s{sPO}, s32, {fl(layer, FL_X1)}")
        if not P.gu_pa_late: pa()
        k.wait(vm=["xst"]); k.flag(1)
        if P.gu_pa_late: pa()
        k.stamp("x1 flag")
        if not P.gu_bar_first: k.poll_issue(PA, "px1")
    k.e(f"s_mov_b32 s{sFO}, s81")
    seq = [(t, ks) for ks in range(33) for t in range(3)] + [(t, ks) for t in range(3, 7) for ks in range(33)]
    accof = {0: 0, 1: 1, 2: 2, 3: 3, 4: 0, 5: 1, 6: 2}
    NW = P.gu_nw
    WQ = [G_WF, G_WF + 4, G_WF + 8, G_WF + 12, T + 12]
    def wread(n):
        slot = (n % 160) * 1024
        k.ds(f"ds_read_b128 {vr(WQ[n%NW],4)}, v{G_RB + (slot>>16)} offset:{slot & 0xffff}", ("wf", n))
    BARS = P.gu_bars[layer]
    cover = lambda bi: [("gw", b) for b in range(bi, min([x for x in BARS if x > bi] + [15]))]
    def ringbar():
        k.wait(vm=cover(0)); k.e("s_barrier"); k.mark("gubar")
        for n in range(NW): wread(n)
    if P.gu_bar_first: ringbar(); k.poll_issue(PA, "px1")
    if not P.tags: k.poll_wait(PA, "px1", 1, 20)
    k.stamp("gu go")
    xtxt = lambda kg: f"buffer_load_dwordx4 {vr(G_X+4*kg,4)}, v{XA}, {SRD_WS}, s{52 + (kg>>4)} offen offset:{((kg>>2)&3)*1024 + (kg&3)*256} sc1"
    def xload(kg): k.vm(xtxt(kg), ("gx", kg))
    xchk = lambda kg: k.valid([f"v_cmp_eq_u32 vcc, -1, v{G_X+4*kg}"], [xtxt(kg)])
    stxt = [f"buffer_load_dwordx4 {vr(T+4+4*h,4)}, v{G_AUG+3}, {SRD_WS}, s51 offen offset:{512*h} sc1" for h in range(2)]
    if P.tags:
        for t_ in stxt: k.vm(t_, "gst")
        for kg in range(P.gu_spec): xload(kg)
        k.wait(vm=["gst"])
        k.valid([f"v_max3_u32 v{T}, v{T+4}, v{T+6}, v{T+8}", f"v_max_u32 v{T}, v{T}, v{T+10}", f"v_cmp_eq_u32 vcc, -1, v{T}"],
                stxt + [xtxt(x) for x in range(P.gu_spec)])
        k.stamp("gu probe")
        for kg in range(P.gu_spec, P.gu_lead): xload(kg)
    else:
        for kg in range(P.gu_lead): xload(kg)
        for t_ in stxt: k.vm(t_, "gst")
    if not P.gu_bar_first: ringbar()
    mains = []; fixed = {}
    xpos = {}
    for kg in range(P.gu_lead, 32): xpos.setdefault(int((kg - P.gu_lead) * P.gu_xstep), []).append(kg)
    for n, (t, ks) in enumerate(seq):
        acc = G_ACC + 16 * accof[t]
        b = vr(G_AUG, 4) if ks == 32 else vr(G_X + 4*ks, 4)
        c = "0" if ks == 0 else vr(acc, 16)
        mains.append(lambda n=n, acc=acc, b=b, c=c: k.e(f"{MF32} {vr(acc,16)}, {vr(WQ[n%NW],4)}, {b}, {c}"))
        fl_ = fixed.setdefault(n, [])
        if n + 1 < len(seq):
            t2, ks2 = seq[n + 1]
            need = [("gx", ks2)] if (t2 == 0 and ks2 < 32) else None
            fl_.append((0, lambda n=n, need=need: k.wait(vm=need, lg=[("wf", n + 1)])))
            if need and P.tags: fl_.append((2, lambda ks2=ks2: xchk(ks2)))
        j = n + NW
        if j < len(seq):
            if j % 16 == 0 and j // 16 in BARS:
                fl_.append((2, lambda bi=j//16: (k.wait(vm=cover(bi)), k.e("s_barrier"), [k.mark(("gbar", b)) for b in range(bi + 1)])))
            fl_.append((1, lambda j=j: wread(j)))
        for kg in xpos.get(n, []): fl_.append((1, lambda kg=kg: xload(kg)))
    xend = max(xpos)
    tail = [it for it in k.bg if it[2] == "dna" or it[2][0] == "dnr"]; k.bg = [it for it in k.bg if not (it[2] == "dna" or it[2][0] == "dnr")]
    bg_batches(k, range(10, 15), "s2", lambda b: ("gbar", b - 8))
    first, ratio = P.gu_mix[layer]
    mid = k.bg[first:]; k.bg = k.bg[:first]; acc_ = 0.0
    while mid or tail:
        if mid: k.bg.append(mid.pop(0))
        acc_ += ratio
        while tail and (acc_ >= 1 or not mid): k.bg.append(tail.pop(0)); acc_ -= 1
    direct = layer == 1 and P.dn1_agpr
    if not direct: bg_batches(k, range(15, 23), "s4", lambda b: ("gbar", b - 8))
    k.per = dict(P.per_guA[layer]); k.bg_held = False; k.bg_next = k.t + P.gu_bg_delay
    fixed[xend].append((0, lambda: setattr(k, "per", dict(P.per_guB[layer]))))
    fv = Flex()
    dv = regloads(k, sDS, 48*1024, lambda j: vr(D_WV + 4*j, 4), 8, "dnv")
    k.hload = h_loader(k, layer)
    if direct: pass
    elif P.hpre:
        bg_list(k, dv, "s4", "dnv", "xdead")
        fixed[207].append((0, lambda: k.mark("xdead")))
    else:
        for j, f in enumerate(dv): fv.add(f, 1, 198 + 2 + 3*j)
    fx = Flex()
    a = lambda txt, c=1, at=0: fx.add(lambda: k.e(txt), c, at)
    fx.add(lambda: k.wait(vm=["gst"]), 1, 3 * P.gu_lead)
    a(f"v_add_f32 v{T+4}, v{T+4}, v{T+6}"); a(f"v_add_f32 v{T+5}, v{T+5}, v{T+7}"); a(f"v_add_f32 v{T+8}, v{T+8}, v{T+10}"); a(f"v_add_f32 v{T+9}, v{T+9}, v{T+11}")
    a(f"v_add_f32 v{T+4}, v{T+4}, v{T+8}"); a(f"v_add_f32 v{T+5}, v{T+5}, v{T+9}"); fx.skip(1)
    a(f"v_permlane32_swap_b32 v{T+4}, v{T+5}", 2); a(f"v_add_f32 v{T+4}, v{T+4}, v{T+5}"); a(f"v_mov_b32 v{T+5}, v{T+4}"); fx.skip(1)
    a(f"v_permlane32_swap_b32 v{T+4}, v{T+5}", 2)
    ln_finish(a, T + 4, T + 5)
    a(f"v_mov_b32 v{G_VV}, v{T+5}")
    a(f"v_rsq_f32 v{G_C1}, v{T+5}", 2); a(f"v_cvt_pk_bf16_f32 v{G_AUG}, v{T+4}, v{T+4}"); a(f"v_mul_f32 v{G_C1}, {f2u(-LOG2E):#x}, v{G_C1}")
    a(f"v_and_b32 v{T+5}, 0xffff0000, v{G_AUG}"); a(f"v_sub_f32 v{T+5}, v{T+4}, v{T+5}"); a(f"v_mov_b32 v{G_AUG+2}, 0")
    a(f"v_cvt_pk_bf16_f32 v{G_AUG+1}, v{T+5}, v{G_AUG+2}"); a(f"v_mov_b32 v{G_AUG+3}, 0")
    fx.add(lambda: k.mark("aug"), 0)
    def epi(t, at):
        acc = G_ACC + 16 * accof[t]; hp = (T + 8, RES + 4)[t & 1]; E = T + 4
        if t >= 2: fx.dep(("hst", t - 2))
        if P.x_noepi: a("s_nop 0", 1, at)
        for i0 in range(0, 8 if not P.x_noepi else 0, 2):
            for i in (i0, i0 + 1): a(f"v_mul_f32 v{E+(i&1)}, v{G_C1}, v{acc+i}", 1, at)
            for i in (i0, i0 + 1): a(f"v_exp_f32 v{E+(i&1)}, v{E+(i&1)}", 2)
            for i in (i0, i0 + 1): a(f"v_mul_f32 v{E+2+(i&1)}, v{acc+i}, v{acc+8+i}")
            for i in (i0, i0 + 1): a(f"v_fma_f32 v{E+(i&1)}, v{E+(i&1)}, v{G_VV}, v{G_VV}")
            for i in (i0, i0 + 1): a(f"v_rcp_f32 v{E+(i&1)}, v{E+(i&1)}", 2)
            fx.skip(1)
            for i in (i0, i0 + 1): a(f"v_mul_f32 v{E+2+(i&1)}, v{E+2+(i&1)}, v{E+(i&1)}")
            a(f"v_cvt_pk_bf16_f32 v{hp+i0//2}, v{E+2}, v{E+3}")
        fx.add(lambda: k.mark(("epi", t)), 0)
        txt = f"buffer_store_dwordx4 {vr(hp,4)}, v{vL16}, {SRD_WS}, s{54 if t < 4 else 82} offen offset:{(t%4)*1024}"
        plain = (layer and P.h1_plain) or (not layer and P.h_touch0)
        if P.h_np > 1 and t < P.h_stag and not plain:
            fx.add(lambda: k.mark(("hrdy", t)), 0)
            fh.dep(("hrdy", t))
            for j in range(P.h_np):
                def pos(j=j):
                    n = k.nspin; k.nspin += 1
                    k.e(f"s_cmp_lg_u32 s83, {j}", f"s_cbranch_scc1 L_sk{n} ;np", txt + " sc1 ;opt", f"L_sk{n}: ;np")
                    if j == P.h_np - 1:
                        k.vmq.append(("hst", t)); k.seen.add(("hst", t)); k.phantom.add(("hst", t)); k.mark(("hst", t))
                fh.add(pos, P.h_cost)
                if j < P.h_np - 1: fh.skip(P.h_d)
            if t >= 2: pass
        else:
            k.phantom.discard(("hst", t))
            fx.add(lambda: ((k.dstore if plain else lambda x, tg: k.vm(x + " sc1", tg))(txt, ("hst", t)), k.mark(("hst", t))), 2)
    fh = Flex()
    k.e("s_add_u32 s82, s54, 4096", f"s_lshl_b32 s32, s{sW}, {max(P.h_np.bit_length() - 3, 0)}", f"s_add_u32 s32, s32, s{sM}", f"s_add_u32 s32, s32, s{sC}", f"s_and_b32 s83, s32, {P.h_np - 1}")
    end = {t: max(n for n, x in enumerate(seq) if x[0] == t) for t in range(7)}
    for t in range(6): epi(t, end[t] + 3)
    if layer == 0 and P.h_touch0 == "g": fixed[xend + 1].append((5, lambda: k.touch(T, "h", ["s_mov_b32 s32, s54"])))
    if layer == 1 and P.x1_clean:
        for p in range(2):
            fixed[P.x1_clean + 8*p].append((3, lambda p=p: (k.e(f"s_add_u32 s58, s64, {BX1[1]}"),
                k.vm(f"buffer_store_dwordx4 {vr(RES+4*p,4)}, v9999, {SRD_WS}, s58 offen offset:{p*512} sc1", "clean"))))
    ff = Flex(); ff.dep(("hst", 3))
    if layer == 0:
        tx = [lambda: k.touch(T, "p", [f"s_add_u32 s32, s55, {BX2()}"]), lambda: k.touch(T + 1, "s", [f"s_add_u32 s32, s56, {BS2()}"])]
        if P.x2_touch == "h3": ff.add(tx[0], 6); ff.add(tx[1], 4)
        elif isinstance(P.x2_touch, int): fixed[P.x2_touch].append((5, tx[0])); fixed[P.x2_touch + 1].append((4, tx[1]))
        if "g" in str(P.touch1):
            for f in touch_next(k, T + 2)[:2]: ff.skip(1); ff.add(f, 6)
    ff.skip(P.gu_flag_delay)
    ff.add(lambda: (k.wait(vm=[("hst", 3)]), k.flag(1)), 3)
    def hpoll():
        k.wait(vm=["touch"] if "touch" in k.seen else None)
        k.poll_addr(T, 8)
        k.e(f"s_lshl_b32 s32, s{sB}, 7", f"s_lshl_b32 s33, s{sW}, 5", "s_add_u32 s32, s32, s33", f"s_add_u32 s{sPO}, s32, {fl(layer, FL_H)}")
        k.poll_issue(T, "ph1")
    if P.hpre:
        ff.add(hpoll, 4, P.hp_chk - 12)
        ff.add(lambda: (k.poll_check(T, "ph1", 1), setattr(k, "bg_held", True)), 3, P.hp_chk)
        for j in range(P.hpre): ff.add(lambda j=j: k.hload(j), 2, max(208 + j, int(P.hp_chk + 1 + j * P.hp_step)))
    else: ff.add(hpoll, 4, 228)
    k.wait(vm=[("gx", 0)], lg=[("wf", 0)])
    if P.tags: xchk(0)
    k.stamp("gu first")
    if k.stamping:
        for g in (48, 98, 131, 164, 197): fixed[g].append((0, lambda g=g: k.stamp(f"gu m{g}")))
    fixed[93].append((0, lambda: k.marks["aug"]))
    run_gaps(k, mains, fixed, [fv, fh, ff, fx], P.gu_cap)
    print("gu left:", len(k.bg), len(fv), len(ff), len(fx), {n: g for n, g in k.marks.items() if isinstance(n, tuple) and n[0] == "hst"})
    k.stamp("gu gemm")
    for g, t in {132: 0, 165: 1, 198: 2}.items(): assert k.marks[("epi", t)] < g, "accumulator reused too early"
    epi(6, 0); drain([fh, ff, fv, fx], k)
    k.e(f"v_mov_b32 v{D_PA}, v{T}")
    k.stamp("gu end")
P.x2_touch = None; P.dn_x2 = 2; P.h_cost = 1; P.h_np = 1; P.h_d = 2; P.h_stag = 5; P.gu_mix = [(28, 1), (24, 1)]; P.hrot = 0; P.gu_bars = [list(range(15)), [0, 3, 6, 9, 12]]; P.hpre = 0; P.hp_chk = 208; P.hp_step = 2.2; P.gu_flag_delay = 10; P.gu_xstep = 2.6; P.gu_bg_delay = 300
P.per_guA = [{"s2": 120, "s4": 120}, {"s2": 160, "s4": 160}]
P.per_guB = [{"s2": 90, "s4": 55}, {"s2": 80, "s4": 50}]

def dn(k, layer):
    final = layer == 1
    NB = P.dn_lead; T = D_T
    groups = DN_GROUPS; seq = DN_SEQ; bload = k.hload
    early = Flex()
    def rb(): k.e(f"v_add_u32 v{D_RB}, s{sGL}, v{vL16}", f"v_add_u32 v{D_RB+1}, 0x10000, v{D_RB}", f"v_add_u32 v{D_RB+2}, 0x20000, v{D_RB}")
    if P.hpre:
        for i in range(P.hpre, NB): bload(i)
        rb()
        class Rec:
            def e(self, *t):
                if any("vcc" in x or "s32" in x for x in t): early.add(lambda: k.e(*t), len(t))
                else:
                    for x in t: early.add(lambda x=x: k.e(x))
        red_setup(Rec(), 3, 1)
        early.add(lambda: (k.wait(vm=[("hst", 6)]), k.flag(2), k.poll_issue(D_PA, "ph2"), k.e(f"s_add_u32 s{sFO}, s89, {FL_X2 - FL_O}")), 5, P.dn_fgap)
    else:
        k.poll_check(D_PA, "ph1", 1)
        k.stamp("dn early")
        k.bg_held = True
        for i in range(P.dn_pre): bload(i)
        red_setup(k, 3, 1); rb()
        k.wait(vm=[("hst", 6)]); k.flag(2)
        if P.dn_pollstep is None: k.poll_issue(D_PA, "ph2")
        for i in range(P.dn_pre, NB): bload(i)
        k.e(f"s_add_u32 s{sFO}, s89, {FL_X2 - FL_O}")
    k.per = dict(P.per_dn0); k.bg_held = False
    direct = final and P.dn1_agpr
    lds = [(i, nn) for i, (g, e) in enumerate(seq) if 8 <= e < 24 and not direct for nn in range(2)]
    slot_of = {x: n for n, x in enumerate(lds)}
    NWF = 6
    def wread(n):
        i, nn = lds[n]; j = 2 * (seq[i][1] - 8) + nn; b = 15 + (j >> 2)
        ad = (b % 10) * 16384 + (j & 3) * 1024
        if seq[i][0] == 0: k.wait(vm=[("gw", b)])
        k.ds(f"ds_read_b128 {vr(D_WF+4*(n%NWF),4)}, v{D_RB + (ad>>16)} offset:{ad & 0xffff}", ("wf", n))
    def wfrag(i, nn):
        e = seq[i][1]
        if e < 8: return ar(192 + 8*e + 4*nn, 4)
        if direct: return ar(8*(e - 8) + 4*nn, 4)
        if e >= 24: return vr(D_WV + 8*(e - 24) + 4*nn, 4)
        return vr(D_WF + 4*(slot_of[(i, nn)] % NWF), 4)
    mains = []; fixed = {}
    NT = P.dn_tail
    assert NT <= 4
    order = [(i, nn) for i in range(56 - NT) for nn in range(2)] + [(i, nn) for nn in range(2) for i in range(56 - NT, 56)]
    for pos, (i, nn) in enumerate(order):
        g, e = seq[i]
        if True:
            acc = D_ACC + 32 * g + 16 * nn
            mains.append(lambda i=i, nn=nn, acc=acc, e=e: k.e(f"{MF32} {vr(acc,16)}, {wfrag(i,nn)}, {vr(D_BF+4*(i%NB),4)}, {'0' if e == 0 else vr(acc,16)}"))
            gp = len(mains) - 1; fl_ = fixed.setdefault(gp, [])
            nx = order[pos + 1] if pos + 1 < len(order) else None
            vmn = [("b", nx[0])] if (nx and nx[1] == 0) else None
            lgn = [("wf", slot_of[nx])] if nx in slot_of else None
            if nx == (24, 0) and not direct: vmn = vmn + ["dnv"]
            if direct and nx and nx[0] in range(8, 28) and nx[1] == 0: vmn = vmn + [("dnr", nx[0])]
            fl_.append((0, lambda vmn=vmn, lgn=lgn: k.wait(vm=vmn, lg=lgn)))
            ah = (i + 2, nn)
            if ah in slot_of: fl_.append((1, lambda n=slot_of[ah]: wread(n)))
    nxt = NB; pend = 0
    for i in range(len(seq)):
        fl_ = fixed[2*i + 1]
        if i == P.dn_late: fl_.append((2, lambda: (k.poll_check(D_PA, "ph2", 2), k.stamp("dn late"), k.mark("late"))))
        n = 0
        while nxt < len(seq) and nxt <= i + NB and n < 2 and (nxt < 16 or i >= P.dn_late):
            fl_.append((1, lambda j=nxt: bload(j))); nxt += 1; n += 1
        if i == P.dn_pollstep and not P.hpre: fl_.append((1, lambda: k.poll_issue(D_PA, "ph2")))
        if nxt == len(seq) and not pend: pend = 2*i + 2
    fixed[20].append((1, lambda: k.e("s_barrier")))
    for mm in range(2):
        fixed[40 + 4*mm].append((2, lambda mm=mm: (k.e(f"s_add_u32 s32, s55, {BX1[layer] + mm*32768}"),
                                                   k.vm(f"buffer_load_dwordx4 {vr(RES+4*mm,4)}, v{vL16}, {SRD_WS}, s32 offen sc1", "res"))))
    fw = Flex(); fs = Flex()
    for q, f in enumerate(red_writes(k, D_ACC, 0, 0, 1)): fw.add(f, 1, 58 + 2*q)
    fw.add(lambda: (k.wait(lg=[("rw", 0)]), k.e("s_barrier")), 2, 76)
    for f in red_reads(k, 0, T, 0): fw.add(f, 2)
    fw.add(lambda: k.wait(vm=["res"]))
    red_finish(k, fw, 0, groups[0], T, BX2(), BS2(), final, False)
    if not final:
        fw.add(lambda: k.vm(f"buffer_store_dwordx4 {vr(RES+4,4)}, v{vL16}, {SRD_WS}, s72 offen sc1", "hxs"))
        fw.add(lambda: k.vm(f"buffer_store_dword v{T+32}, v{R_ST}, {SRD_WS}, s73 offen sc1", "hxs"))
        fw.skip(P.dn_flag_delay); fw.add(lambda: (k.wait(vm=[("xst", 0)]), k.flag(1)), 3)
        if P.x2_touch == "dn":
            fixed[P.dn_x2].append((5, lambda: k.touch(226, "p", [f"s_add_u32 s32, s55, {BX2()}"])))
            fixed[P.dn_x2 + 1].append((4, lambda: k.touch(227, "s", [f"s_add_u32 s32, s56, {BS2()}"])))
            fs.add(lambda: k.wait(vm=["touch"]), 1, P.dn_x2 + 2)
        for q, c in enumerate(P.t1_dn): fixed[P.dn_touch + 2*q].append((5, touch_next(k, 28)["oxs".index(c)]))
        fs.dep("late")
        for f in a11_bases(k) + a1_setup(k, 1): fs.add(f)
        fs.add(lambda: (k.poll_addr(A_PX, 32), k.e(f"s_lshl_b32 s32, s{sB}, 7", f"s_add_u32 s{sPO}, s32, {fl(0, FL_X2)}")), 4)
    wtail = red_writes(k, D_ACC + 32, 1, 2*16384, 1)
    if NT:
        for q in range(min(4, NT)): fixed[min(111, 112 - NT + 1 + q)].append((4, wtail.pop(0)))
    k.wait(vm=["dna", ("b", 0)])
    k.stamp("dn first")
    if k.stamping:
        fixed[55].append((0, lambda: k.stamp("dn p1")))
        for g in range(7, 111, 8): fixed[g].append((0, lambda g=g: k.stamp(f"find {g}")))
    run_gaps(k, mains, fixed, [early, fw, fs], 6)
    print("dn left:", len(k.bg), len(fw), len(fs), "last h load at gap", pend)
    k.stamp("dn gemm")
    assert not fs.items
    ws = wtail
    if not final and P.dn_fin_first != 2: ws.insert(len(ws) - 4, lambda: k.poll_issue(A_PX, "px0"))
    if not final and P.dn_fin_first == 2: ws.append(lambda: k.poll_issue(A_PX, "px0"))
    merge(k, fw, ws)
    k.wait(lg=[("rw", 1)]); k.e("s_barrier")
    k.stamp("dn red")
    for f in red_reads(k, 1, T, 2*16384): f()
    def nxt():
        k.poll_check(A_PX, "px0", 1)
        k.wait(vm=["hxs"]); k.flag(1, 91, "sc1")
        a11_early(k)
    if not final:
        k.bg_held = True
        if not P.dn_fin_first: nxt()
    f1 = Flex(); red_finish(k, f1, 1, groups[1], T, BX2(), BS2(), final, True)
    if not final and P.dn_fin_first == 2:
        ex = [lambda: k.poll_check(A_PX, "px0", 1)] + a11_early(k, True) + [lambda: (k.wait(vm=["hxs"]), k.flag(1, 91, "sc1"))]
        merge(k, f1, ex, P.dn_mfirst)
    else: drain([f1], k)
    if not final and P.dn_fin_first == 1: nxt()
    k.stamp("dn end")
P.dn_mfirst = 8; P.dn_pollstep = 0; P.dn_fin_first = 2; P.dn_tail = 0; P.dn_touch = 88; P.dn_flag_delay = 4; P.dn_pre = 6; P.dn_late = 9; P.dn_fgap = 6
P.dn_wow = 6; P.per_dn = {"s4": 110, "s2": 130}; P.per_dn0 = {"s4": 60, "s2": 60}

def build(stamps=False, only=None):
    k = F(); k.stamping = stamps; k.only = only; k.st = P.dst; k.rt = P.rt
    name = NAME + "_kernel"
    k.e(".p2align 8", f".globl {name}", f".type {name},@function"); k.label(name)
    if stamps: k.e("s_memrealtime s[92:93]", "s_memtime s[94:95]")
    k.e("s_cmp_ge_u32 s2, 256", "s_cbranch_scc1 L_end")
    k.e("s_load_dwordx16 s[64:79], s[0:1], 0", "s_load_dwordx4 s[80:83], s[0:1], 64", "s_memrealtime s[96:97]")
    k.e("s_getpc_b64 s[100:101]")
    k.e("L_pc: ;np")
    k.e("v_and_b32 v1, 63, v0", "v_lshrrev_b32 v2, 6, v0", "s_lshr_b32 s33, s2, 3", "s_mul_i32 s32, s33, 43", "s_lshr_b32 s32, s32, 8",
        "s_mul_i32 s32, s32, 6", "s_sub_u32 s32, s33, s32", "s_lshl_b32 s32, s32, 13", "v_lshl_add_u32 v3, v2, 11, s32", "v_lshl_add_u32 v3, v1, 7, v3",
        "v_min_u32 v3, L_end-L_pc, v3", f"v_readfirstlane_b32 s{sW}, v2", "v_mov_b32 v5, s101", "v_add_co_u32 v4, vcc, s100, v3", "v_addc_co_u32 v5, vcc, 0, v5, vcc")
    if P.code0:
        k.e("s_mov_b64 exec, 0xffff")
        k.vm("global_load_dword v175, v[4:5], off", "code")
        k.e("s_mov_b64 exec, -1")
    k.e("s_and_b32 s32, s2, 7", f"s_and_b32 s{sM}, s33, 15", "s_lshr_b32 s33, s33, 4", "s_lshl_b32 s32, s32, 1", f"s_add_u32 s{sC}, s32, s33")
    k.e(f"s_lshr_b32 s33, s{sM}, 3", f"s_lshl_b32 s{sB}, s{sC}, 1", f"s_add_u32 s{sB}, s{sB}, s33", f"s_and_b32 s{sCS}, s{sM}, 7")
    k.e("v_lshlrev_b32 v2, 4, v1")
    a10_lanes(k)
    k.e("s_waitcnt lgkmcnt(0)")
    srd(k, 12, 64, 2048 * 1024); srd(k, 16, 66, 512 * 3072)
    k.e(f"s_or_b32 s{sTAG}, s96, 1")
    if stamps:
        k.stamps += ["rt0", "start"]; k.e("v_writelane_b32 v0, s92, 0", f"v_writelane_b32 v0, s{92 if P.rt else 94}, 1")
    k.stamp("s kernarg")
    if P.pk_first == 1: pack_issue(k)
    k.stamp("s pkissue")
    run(a10_x(k, 0) + a10_w(k, 0))
    if P.pk_first == 0: pack_issue(k)
    srd(k, 28, 80, 256)
    k.e("v_cmp_eq_u32 vcc, 0, v1", f"v_mov_b32 v{vFA}, {OOB:#x}", f"s_or_b32 s32, s2, s{sW}", f"v_cndmask_b32_e64 v{vFA}, v{vFA}, 0, vcc",
        "s_cmp_eq_u32 s32, 0", f"s_cselect_b32 s32, 0, {OOB>>1:#x}", f"v_mov_b32 v170, s{sTAG}")
    k.vm(f"buffer_store_dword v170, v{vFA}, {SRD_DBG}, s32 offen sc1", "tagst")
    srd(k, 8, 82, WS_SIZE); srd(k, 20, 78, 2048 * 1024)
    for f in a1_setup(k, 0): f()
    o_bases(k, 0)
    a10_lanes2(k)
    k.e(f"v_mov_b32 v60, {OOB:#x}", "v_cmp_gt_u32 vcc, 8, v1", "v_mov_b32 v176, 0", "v_mov_b32 v177, 0", "v_mov_b32 v178, 0", "v_mov_b32 v179, 0",
        f"v_cndmask_b32 v173, v60, v{vL16}, vcc", "v_cmp_gt_u32 vcc, 16, v1", "s_nop 0",
        f"s_lshl_b32 s32, s{sC}, 4", f"v_cndmask_b32 v172, v60, v{vL16}, vcc")
    k.e(f"s_add_u32 s32, s32, s{sM}", "s_lshl_b32 s32, s32, 4",
        f"s_cmp_eq_u32 s{sW}, 0", f"s_cselect_b32 s32, s32, {OOB>>1:#x}", f"v_add_u32 v171, s32, v{vFA}", f"s_mov_b32 s{sBUD}, 400000")
    red_bases(k)
    k.e(f"s_lshl_b32 s{sGL}, s{sW}, 12", f"s_mul_i32 s{sGS}, s{sM}, {PGU_SLICE}", f"s_add_u32 s{sGS}, s{sGS}, s{sGL}", f"s_add_u32 s{sGS}, s{sGS}, {WS_PGU}")
    k.e(f"s_mul_i32 s32, s{sCS}, {224*KB}", f"s_mul_i32 s33, s{sW}, {56*KB}", "s_add_u32 s32, s32, s33", f"s_add_u32 s{sDS}, s32, {WS_PDN}")
    k.e(f"s_lshl_b32 s32, s{sCS}, 16", f"s_add_u32 s32, s32, s{sGL}", f"s_add_u32 s88, s32, {WS_PWO}")
    wo_bases(k)
    k.stamp("s setup")
    run(a10_w(k, 1))
    if P.pk_first == 2: pack_issue(k)
    k.e(f"s_getreg_b32 s{sXCC}, hwreg(HW_REG_XCC_ID, 0, 4)", f"s_mov_b32 s75, {WS_ARR}", f"s_lshl_b32 s77, s{sC}, 8", "s_add_u32 s77, s77, s75")
    if P.k_touch == -1:
        k.touch(157, "p", ["s_mov_b32 s32, s53"], False); k.touch(158, "q", [f"s_add_u32 s32, s64, {BX1[0]}"], False)
    k.stamp("s w01")
    def mid2():
        if P.k_first > 3: run(a10_w(k, 3))
        k.e("s_lshl_b32 s32, s2, 7")
        k.vm(f"buffer_store_dwordx4 v[176:179], v173, {SRD_WS}, s32 offen sc1", "zero")
        k.e("s_lshl_b32 s32, s2, 8", f"s_add_u32 s32, s32, {WS_HXF}")
        k.vm(f"buffer_store_dwordx4 v[176:179], v172, {SRD_WS}, s32 offen sc1", "zero")
    if P.k_pack is None: pack_process(k, lambda: run(a10_x(k, 1) + a10_w(k, 2)), mid2)
    else: run(a10_x(k, 1) + a10_w(k, 2)); mid2()
    k.vm(f"buffer_load_dword v170, v{vFA}, {SRD_DBG}, 0 offen sc1", "tag")
    k.stamp("s pkdone")
    a10_loop(k, P.k_first)
    a10_tail(k)
    wo(k, 0); gu(k, 0); dn(k, 0)
    if not P.half:
        k.marks = {m: g for m, g in k.marks.items() if False}
        k.seen = {t for t in k.seen if t in k.vmq or t in k.lgq or t in ("dna", "st0", ("x", 2), ("x", 3))}
        k.layer = 1
        a11_main(k)
        wo(k, 1)
        k.marks = {m: g for m, g in k.marks.items() if m in ("wobar", "gemm_done") or m[0] == "bar"}
        gu(k, 1); dn(k, 1)
    if P.verbose: print([(t, tag, f) for t, tag, f in k.bg_log if f])
    if stamps:
        k.e("s_waitcnt vmcnt(0)"); k.stamp("drained"); k.stamp("rt1", True)
        k.e("s_lshl_b32 s32, s2, 10", "s_lshl_b32 s33, s3, 8", "s_add_u32 s32, s32, s33",
            f"s_add_u32 s32, s32, {WS_STAMP}", "v_lshlrev_b32 v8, 2, v1", f"buffer_store_dword v0, v8, {SRD_WS}, s32 offen")
        if P.echo:
            a, b = P.echo
            n = len(k.stamps)
            k.e(f"v_readlane_b32 s32, v0, {a}", f"v_readlane_b32 s33, v0, {b if b >= 0 else n + b}", f"v_readlane_b32 s34, v0, {n-1}", "s_nop 3",
                "s_sub_u32 s33, s33, s32", "s_min_u32 s33, s33, 20000")
            k.label("L_echo")
            k.e("s_memrealtime s[36:37]", "s_waitcnt lgkmcnt(0)", "s_sub_u32 s36, s36, s34", "s_cmp_lt_u32 s36, s33", "s_cbranch_scc1 L_echo")
        if P.dbg:
            n = len(k.stamps)
            k.e("v_readlane_b32 s32, v0, 0", f"v_readlane_b32 s33, v0, {n-1}", "s_not_b32 s34, s32", "v_mov_b32 v4, s33", "v_mov_b32 v5, s34")
            k.e(f"buffer_atomic_umax v4, v{vFA}, {SRD_DBG}, 0 offen offset:4", f"buffer_atomic_umax v5, v{vFA}, {SRD_DBG}, 0 offen offset:8")
            k.e(f"s_cmp_eq_u32 s2, {P.dbg - 1}", f"s_cselect_b32 s35, 0, {OOB>>1:#x}", f"s_cmp_eq_u32 s{sW}, 0", f"s_cselect_b32 s35, s35, {OOB>>1:#x}")
            for i, wd in zip(range(2, n - 1), (3, 5, 6, 7, 9, 10, 11, 13, 14, 15)):
                k.e(f"v_readlane_b32 s33, v0, {i}", "s_sub_u32 s33, s33, s32", "v_mov_b32 v4, s33", f"buffer_store_dword v4, v{vFA}, {SRD_DBG}, s35 offen offset:{4*wd}")
    k.e("s_endpgm")
    k.flush_spins()
    k.label("L_end"); k.e("s_endpgm")
    src = open("cdna_kernels/%s.s.ref" % NAME).read().splitlines()
    out = [l for l in src if l.startswith(";") and "@launch" not in l]
    out.append(f"; @launch grid=(256,1,1) block=(256,1,1) lds={LDS_TOTAL}")
    out += ['.amdgcn_target "amdgcn-amd-amdhsa--gfx950"', ".text"]
    s = "\n".join(out) + "\n" + k.text(verbose=True) + '.section .rodata,"a"\n.p2align 6\n' + kd(name)
    from verify import verify
    assert not verify(s), "a register is used while a load into it is in flight"
    if P.align:
        from align import align
        s = align(s)
    return s, k.stamps
P.x_nobar = 0; P.x_noepi = 0; P.rt = 1; P.dbg = 0; P.h_touch0 = ''; P.outm = ('', ''); P.x1_clean = None; P.h1_plain = 0; P.tags = 0; P.echo = None; P.wo_setup_first = 2; P.gu_pa_late = 0; P.gu_bar_first = 0; P.flagbr = 0; P.rot = 0; P.pk_mod = 'nt'; P.x_mod = ''; P.w_mod = ''; P.t_mod = ''; P.pk_first = 1; P.dn1_agpr = 1; P.poll2 = 2; P.wt = (); P.inplace = 1; P.o0_in_h = 0; P.half = 0; P.tlb = 1; P.code0 = 1; P.verbose = 0; P.align = 1; P.gu_cap = 5; P.gu_nw = 5; P.k_touch = 15; P.k_gb = 13; P.k_chk = 16

if __name__ == "__main__":
    path = sys.argv[1] if len(sys.argv) > 1 else "cdna_kernels/%s.s" % NAME
    opts = sys.argv[2:]
    only = None
    for o in opts:
        if o.startswith("only="): only = [x for x in o[5:].split(",") if x]
        if o.startswith("P."):
            n, v = o[2:].split("="); setattr(P, n, eval(v))
    s, st = build(stamps="st" in opts, only=only)
    open(path, "w").write(s)
    if "st" in opts: json.dump([st], open(path + ".json", "w"))
```

```python
import sys, json
from common import *

MF16 = "v_mfma_f32_16x16x32_bf16"
MF16S = "v_mfma_f32_16x16x16_bf16"
MF32 = "v_mfma_f32_32x32x16_bf16"
vL16, vFV, vFA, vP = 2, 8, 9, 10
CSV, CSQ, CSK, RES = 11, 12, 16, 20
OOB = 0x80000000
FL_O, FL_X1, FL_H, FL_X2 = 0, 4096, 8192, 12288
FL_HX = 16384 + 12288
def fl(layer, off): return WS_FLAGS + 16384 * layer + off
sROT, sBUD, sGL, sGS, sDS = 84, 98, 60, 61, 85
sT0, sT1, sPO, sFO = 32, 33, 86, 87
sML, sMS = 68, 69
WS_HXF = WS_O0 - 0x10000 if False else WS_END
WS_ARR = WS_HXF + 0x10000
sTAG, sXCC = 91, 76
WS_STAMP = 0x2000000
L_SA0, L_SA1, L_XH0, L_CS = 80896, 97280, 81920, 79872
def e_of(kk):
    p, tl = divmod(kk, 7)
    return 4 * p + tl if tl < 4 else 16 + 3 * p + (tl - 4)
KK_OF = {e_of(kk): kk for kk in range(28)}

class P:
    a1_bg_start, a1_bg_step = 30, 6
    gu_lead = 9
    gu_bg_start, gu_bg_step = 50, 2.6
    dn_lead = 12
    bgm = ""
    sleep = 0
    drop = ()
    codepf = 0
    ld = "sc1"
    dst = "sc1"
    safe = False
    plain = True
    notouch = ()

BO, BX1, BS1, BH = [WS_O[0]] * 2, [WS_X[0]] * 2, [WS_ST[0]] * 2, [WS_H[0]] * 2
def BX2(): return WS_X[0] if P.inplace else WS_X[1]
def BS2(): return WS_ST[0] if P.inplace else WS_ST[1]
def o_block(d, layer):
    if (layer or P.o0_in_h) and P.inplace: return [f"s_mul_i32 {d}, s{sB}, {224*KB}", f"s_add_u32 {d}, {d}, {BH[0]}"]
    return [f"s_lshl_b32 {d}, s{sB}, 16", f"s_add_u32 {d}, {d}, {BO[layer]}"]
def o_line(layer):
    return [f"s_lshl_b32 s32, s{sB}, 16", f"s_lshl_b32 s33, s{sCS}, 2", f"s_add_u32 s33, s33, s{sW}", "s_lshl_b32 s33, s33, 10",
            "s_add_u32 s32, s32, s33", f"s_add_u32 s32, s32, {BO[layer]}"]
def touch_next(k, t):
    return [lambda: k.touch(t, "p", o_line(1)), lambda: k.touch(t + 1, "q", [f"s_add_u32 s32, s64, {BX1[1]}"]),
            lambda: k.touch(t + 2, "t", [f"s_add_u32 s32, s65, {BS1[1]}"])]
def gu_tile(d):
    return [f"s_lshl_b32 {d}, s{sC}, 1", f"s_and_b32 s33, s{sW}, 1", f"s_add_u32 {d}, {d}, s33", f"s_lshl_b32 {d}, {d}, 1", f"s_lshr_b32 s33, s{sW}, 1", f"s_add_u32 {d}, {d}, s33"]
def h_base(d, layer):
    return gu_tile(d) + [f"s_mul_i32 {d}, {d}, 112", f"s_mul_i32 s33, s{sM}, 7",
            f"s_add_u32 {d}, {d}, s33", f"s_lshl_b32 {d}, {d}, 10", f"s_add_u32 {d}, {d}, {BH[layer]}"]

class F(K):
    def __init__(self):
        super().__init__(); self.spins = []; self.nspin = 0; self.st = ""; self.npf = 0; self.layer = 0
    def poll_issue(self, va, tag): self.vm(f"buffer_load_dword v{vP}, v{va}, {SRD_WS}, s{sPO} offen sc1", tag)
    def poll_addr(self, va, nl, sh=2):
        self.e(f"v_cmp_gt_u32 vcc, {nl}, v1", f"v_lshlrev_b32 v{va}, {sh}, v1", f"v_mov_b32 v{vP}, {OOB:#x}", f"v_cndmask_b32 v{va}, v{vP}, v{va}, vcc")
        self.nl = nl
    def poll_check(self, va, tag, thr):
        n = self.nspin; self.nspin += 1
        self.stamp(f"poll<{tag}")
        self.wait(vm=[tag])
        self.stamp(f"poll={tag}")
        msk = f"s_and_b32 s99, vcc_lo, {(1 << self.nl) - 1:#x}"
        self.e(f"v_cmp_gt_u32 vcc, {thr}, v{vP}", msk, f"s_cbranch_scc1 L_spin{n} ;np", f"L_back{n}: ;np")
        self.stamp(f"poll>{tag}")
        self.spins += [f"L_spin{n}:", f"s_sub_u32 s{sBUD}, s{sBUD}, 1", f"s_cbranch_scc1 L_give{n}"] + ([f"s_sleep {P.sleep}"] if P.sleep else []) + [
                       f"buffer_load_dword v{vP}, v{va}, {SRD_WS}, s{sPO} offen sc1", "s_waitcnt vmcnt(0)",
                       f"v_cmp_gt_u32 vcc, {thr}, v{vP}", msk, f"s_cbranch_scc1 L_spin{n}", f"s_branch L_back{n}",
                       f"L_give{n}:", f"s_mov_b32 s{sBUD}, 0", f"s_branch L_back{n}"]
    def poll_wait(self, va, tag, thr, alt):
        if not P.poll2:
            self.poll_check(va, tag, thr); return
        n = self.nspin; self.nspin += 1
        ld = lambda r: f"buffer_load_dword v{r}, v{va}, {SRD_WS}, s{sPO} offen sc1"
        tst = lambda r: [f"v_cmp_gt_u32 vcc, {thr}, v{r}", f"s_and_b32 s99, vcc_lo, {(1 << self.nl) - 1:#x}"]
        self.e(f"s_sleep {P.poll2}")
        self.vm(ld(alt), "polljunk")
        self.wait(vm=[tag])
        self.e(*tst(vP)); self.e(f"s_cbranch_scc1 L_spin{n} ;np", f"L_back{n}: ;np")
        self.spins += [f"L_spin{n}:", f"s_sub_u32 s{sBUD}, s{sBUD}, 1", f"s_cbranch_scc1 L_give{n}",
                       ld(vP), "s_waitcnt vmcnt(1)"] + tst(alt) + [f"s_cbranch_scc0 L_back{n}", ld(alt), "s_waitcnt vmcnt(1)"] + tst(vP) + \
                      [f"s_cbranch_scc1 L_spin{n}", f"s_branch L_back{n}", f"L_give{n}:", f"s_mov_b32 s{sBUD}, 0", f"s_branch L_back{n}"]
    def flag(self, val, soff=sFO, st=None):
        self.e(f"v_mov_b32 v{vFV}, {val}")
        if st is not None:
            self.vm(f"buffer_store_dword v{vFV}, v{vFA}, {SRD_WS}, s{soff} offen {st}", "flag"); return
        if P.flagbr:
            self.dstore(f"buffer_store_dword v{vFV}, v{vFA}, {SRD_WS}, s{soff} offen", "flag", True); return
        self.e(f"s_or_b32 s99, s{soff}, s{sML}")
        self.vm(f"buffer_store_dword v{vFV}, v{vFA}, {SRD_WS}, s99 offen", "flag")
        self.e(f"s_or_b32 s99, s{soff}, s{sMS}")
        self.vm(f"buffer_store_dword v{vFV}, v{vFA}, {SRD_WS}, s99 offen sc1", "flag")
    def dstore(self, text, tag, always=False):
        kind = tag[0] if isinstance(tag, tuple) else tag
        if (not P.plain or (self.layer, kind, isinstance(tag, tuple)) in P.wt) and not always:
            self.vm(text + " sc1", tag); return
        n = self.nspin; self.nspin += 1
        self.e(f"s_cmp_lg_u32 s{sML}, 0", f"s_cbranch_scc1 L_alt{n} ;np")
        self.vm(text, tag)
        self.e(f"L_back{n}: ;np")
        self.spins += [f"L_alt{n}:", "s_nop 4", text + " sc1", f"s_branch L_back{n}"]
    def valid(self, test, reload):
        n = self.nspin; self.nspin += 1
        self.e(*test); self.e(f"s_cbranch_vccnz L_rl{n} ;np", f"L_back{n}: ;np")
        self.spins += [f"L_rl{n}:", f"s_sub_u32 s{sBUD}, s{sBUD}, 1", f"s_cbranch_scc1 L_give{n}"] + reload + ["s_waitcnt vmcnt(0)"] + test + \
                      [f"s_cbranch_vccnz L_rl{n}", f"s_branch L_back{n}", f"L_give{n}:", f"s_mov_b32 s{sBUD}, 0", f"s_branch L_back{n}"]
    def touch(self, tmp, kind, base_expr, masked=True):
        if not P.plain or kind in P.notouch: return
        nl = {"p": 16, "q": 16, "s": 2, "t": 2, "h": 56}[kind]
        self.e(f"v_cmp_gt_u32 vcc, {nl}, v1")
        if kind in "pq": self.e(f"v_lshrrev_b32 v{tmp}, 3, v1", f"v_lshlrev_b32 v{tmp}, {15 if kind == 'p' else 13}, v{tmp}", f"v_and_b32 v{vFV}, 7, v1", f"v_lshl_add_u32 v{tmp}, v{vFV}, 7, v{tmp}")
        else: self.e(f"v_lshlrev_b32 v{tmp}, {11 if kind == 's' else 7}, v1")
        self.e(f"v_mov_b32 v{vFV}, {OOB:#x}", *base_expr)
        self.e(f"v_cndmask_b32 v{tmp}, v{vFV}, v{tmp}, vcc")
        if masked: self.e(f"s_or_b32 s32, s32, s{sML}")
        self.vm(f"buffer_load_dword v{tmp}, v{tmp}, {SRD_WS}, s32 offen {P.t_mod}", "touch")
    def vm(self, text, tag=None):
        kind = tag[0] if isinstance(tag, tuple) else tag
        if kind in P.drop:
            self.seen.add(tag); return
        super().vm(text, tag)
    def codepf(self, t):
        if not P.codepf: return
        n = self.npf; self.npf += 1
        self.e(f"L_pf{n}: ;np", f"s_lshl_b32 s32, s{sW}, 12", f"s_add_u32 s32, s32, L_pf{n}-L_pc", f"v_lshl_add_u32 v{t+2}, v1, 7, s32", f"v_min_u32 v{t+2}, L_end-L_pc, v{t+2}",
               f"v_mov_b32 v{t+1}, s101", f"v_add_co_u32 v{t}, vcc, s100, v{t+2}", f"v_addc_co_u32 v{t+1}, vcc, 0, v{t+1}, vcc", "s_mov_b32 exec_hi, 0")
        self.vm(f"global_load_dword v{t+2}, v[{t}:{t+1}], off", "code")
        self.e("s_mov_b64 exec, -1")
    def flush_spins(self):
        for l in self.spins: self.e(l)
        self.spins = []

def batch(k, i):
    src = f"s_add_u32 s62, s{sGS}, {i*16384}" if i < 15 else f"s_add_u32 s62, s{sDS}, {(16 + 4*(i-15))*1024}"
    def f(q):
        k.set_m0(f"s_add_u32 m0, s{sGL}, {(i % 10)*16384}")
        if i != 14: k.set_s(src)
        elif k.last.get(62) != f"s_cselect_b32 s62, {OOB>>1:#x}, s62":
            k.e(src, f"s_cmp_ge_u32 s{sW}, 2", f"s_cselect_b32 s62, {OOB>>1:#x}, s62")
        k.vm(f"buffer_load_dwordx4 v{vL16}, {SRD_WS}, s62 offen offset:{q*1024} {P.bgm} lds", ("gw", i))
    return [lambda q=q: f(q) for q in range(4)]

def bg_batches(k, bs, period, dep=lambda b: None):
    for b in bs:
        for f in batch(k, b): k.bg_add(f, period, ("gw", b), dep(b))
def bg_list(k, fns, period, tag, dep=None):
    for f in fns: k.bg_add(f, period, tag, dep)

def regloads(k, base_sgpr, off, dst, n, tag, tmp=63, tagf=None):
    fns = []
    for j in range(n):
        def f(j=j):
            k.set_s(f"s_add_u32 s{tmp}, s{base_sgpr}, {off + (j & ~3)*1024}")
            k.vm(f"buffer_load_dwordx4 {dst(j)}, v{vL16}, {SRD_WS}, s{tmp} offen offset:{(j%4)*1024} {P.bgm}", tagf(j) if tagf else tag)
        fns.append(f)
    return fns
def wow(k):
    def f(i, q):
        k.set_m0(f"s_add_u32 m0, s{sGL}, {(6 + i)*16384}"); k.set_s(f"s_add_u32 s63, s88, {i*16384}")
        k.vm(f"buffer_load_dwordx4 v{vL16}, {SRD_WS}, s63 offen offset:{q*1024} lds", "wow")
    return [lambda i=i, q=q: f(i, q) for i in range(4) for q in range(4)]

def pack_issue(k):
    for r in (68, 69, 72, 73, 74, 75, 76, 77): assert k.last[r].startswith("s_load"), f"kernel argument s{r} overwritten"
    k.e("v_lshrrev_b32 v44, 3, v1", "v_and_b32 v43, 7, v1", "v_and_b32 v45, 2, v44", "v_lshlrev_b32 v45, 1, v45",
        "v_xor_b32 v43, v43, v45", "v_lshlrev_b32 v43, 4, v43", f"s_add_u32 s34, s49, {L_X + 4096}")
    k.e("s_cmp_ge_u32 s2, 112", "s_cbranch_scc1 L_pki_small")
    k.e("s_and_b32 s35, s2, 1", "s_bfe_u32 s36, s2, 0x10001", "s_lshr_b32 s37, s2, 2")
    k.e("s_cmp_eq_u32 s35, 0", "s_cselect_b32 s24, s72, s74", "s_cselect_b32 s25, s73, s75",
        f"s_mov_b32 s26, {512*3584:#x}", "s_mov_b32 s27, 0x20000")
    k.e("v_mul_u32_u24 v46, 3584, v44", "v_add_u32 v46, v46, v43")
    k.e("s_lshl_b32 s38, s36, 2", f"s_add_u32 s38, s38, s{sW}", f"s_mul_i32 s38, s38, {64*3584}",
        "s_lshl_b32 s39, s37, 7", "s_add_u32 s38, s38, s39")
    for i in range(8):
        k.e(f"s_add_u32 m0, s34, {(i>>2)*8192 + (i&3)*1024}", f"s_add_u32 s39, s38, {i*8*3584}", f"buffer_load_dwordx4 v46, {SRD_PK}, s39 offen {P.pk_mod} lds")
    k.e("s_branch L_pki_done")
    k.label("L_pki_small")
    k.e("s_sub_u32 s35, s2, 112", "s_lshl_b32 s35, s35, 3", f"s_lshl_b32 s36, s{sW}, 1", "s_add_u32 s35, s35, s36")
    k.e("s_cmp_lt_u32 s35, 896", "s_cselect_b32 s24, s76, s68", "s_cselect_b32 s25, s77, s69", f"s_mov_b32 s26, {512*1024:#x}",
        f"s_cselect_b32 s26, {1792*1024:#x}, s26", "s_mov_b32 s27, 0x20000", "s_cselect_b32 s37, 1, 0",
        "s_movk_i32 s38, 896", "s_cselect_b32 s38, 0, s38")
    k.e("s_cselect_b32 s39, 0, 1", "s_cselect_b32 s70, 14, 15", "s_movk_i32 s71, 0x4000", "s_cselect_b32 s71, 0x80, s71")
    k.e("s_sub_u32 s35, s35, s38", "s_lshr_b32 s35, s35, s39", "s_and_b32 s36, s35, 7", "s_lshr_b32 s35, s35, 3")
    k.e("v_lshl_add_u32 v46, v44, 10, v43", "s_lshl_b32 s38, s35, s70", "s_lshl_b32 s39, s36, 7", "s_add_u32 s38, s38, s39")
    for i in range(2):
        for h in range(2):
            k.e(f"s_add_u32 m0, s34, {(2*i+h)*1024}", f"s_add_u32 s39, s38, {h*8192}", f"buffer_load_dwordx4 v46, {SRD_PK}, s39 offen {P.pk_mod} lds")
        if i == 0: k.e("s_add_u32 s38, s38, s71")
    k.label("L_pki_done")
    k.vmq.append("pk"); k.seen.add("pk")

PQ = [76, 80, 84, 88, 92, 96, 36, 40]
def pack_process(k, mid1, mid2):
    k.e("v_bfe_u32 v46, v1, 2, 2", "v_and_b32 v47, 3, v1", "v_bfe_u32 v48, v1, 4, 1", "v_lshrrev_b32 v49, 5, v1")
    k.e("v_and_b32 v50, 2, v46", "v_add_u32 v50, v50, v48", "v_lshlrev_b32 v50, 5, v50",
        "v_lshl_add_u32 v50, v46, 7, v50", "v_lshl_add_u32 v50, v47, 3, v50", "v_add_u32 v50, s34, v50")
    k.e("s_cmp_ge_u32 s2, 112", "s_cbranch_scc1 L_pk_small")
    q0 = list(k.vmq)
    k.e("v_lshl_add_u32 v56, v49, 10, v50", "v_xor_b32 v57, 64, v56")
    k.e("s_lshl_b32 s39, s37, 2", "v_add_u32 v58, s39, v48")
    k.e("s_lshl_b32 s70, s36, 2", f"s_add_u32 s70, s70, s{sW}", "s_lshl_b32 s70, s70, 2")
    k.e("v_and_b32 v66, 15, v1", "s_lshl_b32 s71, s35, 8", "v_lshl_add_u32 v66, v66, 4, s71")
    for p in range(2):
        T, fs, tl, st_, b, aug = 59, 60, 61, 62 + p, 64 + p, 68 + p
        k.e(f"v_add_u32 v{T}, {2*p}, v58", f"v_mul_u32_u24 v{fs}, 9363, v{T}", f"v_lshrrev_b32 v{fs}, 16, v{fs}",
            f"v_mul_u32_u24 v{tl}, 7, v{fs}", f"v_sub_u32 v{tl}, v{T}, v{tl}")
        k.e(f"v_cmp_gt_u32 vcc, 3, v{tl}", f"v_mul_u32_u24 v67, 33, v{tl}", f"v_mov_b32 v{st_}, 1", "v_mov_b32 v70, 3",
            f"v_cndmask_b32 v67, v67, v{tl}, vcc", f"v_cndmask_b32 v{st_}, v{st_}, v70, vcc")
        k.e(f"v_mul_u32_u24 v{fs}, 231, v{fs}", f"v_add_u32 v67, v67, v{fs}")
        k.e(f"v_lshl_add_u32 v70, v{st_}, 5, v67", "v_lshlrev_b32 v70, 10, v70", "v_add_u32 v70, v70, v66",
            "s_lshl_b32 s71, s36, 9", f"v_add_u32 v{aug}, s71, v70")
        k.e(f"v_mul_lo_u32 v70, v{st_}, s70", "v_add_u32 v67, v67, v70", "v_lshlrev_b32 v67, 10, v67",
            "v_add_u32 v67, v67, v66", f"v_lshl_add_u32 v{b}, v49, 9, v67", f"v_lshlrev_b32 v{st_}, 10, v{st_}")
    k.e("v_mov_b32 v71, 0x3f803f80", "v_mov_b32 v72, 0", "v_mov_b32 v73, 0", "v_cmp_gt_u32 vcc, 32, v1", "v_mov_b32 v46, 0", "v_mov_b32 v47, 0",
        "v_cndmask_b32 v68, v69, v68, vcc", f"s_lshl_b32 s72, s{sW}, 8", "s_add_u32 s72, s72, 0x10000", "v_lshl_add_u32 v74, v1, 2, s72",
        "v_lshlrev_b32 v75, 2, v1", "v_add_u32 v75, 0x10000, v75")
    k.e(f"s_mov_b32 s70, {WS_PGU}", "s_mov_b32 s71, s70", "s_mov_b32 s72, s70", "s_mov_b32 s73, s70", f"s_cmp_eq_u32 s{sW}, 0", f"s_cselect_b32 s74, s70, {OOB>>1:#x}")
    k.wait(vm="pk")
    for ks in range(4):
        for p in range(2):
            for j in range(2): k.ds(f"ds_read_b64_tr_b16 {vr(PQ[2*ks+p]+2*j,2)}, v{56+p} offset:{(ks>>1)*8192 + (ks&1)*2048 + j*512}", ("t", ks, p))
        if ks == 2: k.wait(lg=[("t", 0, 1)])
    mid1()
    for ks in range(4):
        for p in range(2):
            k.wait(lg=[("t", ks, p)])
            for d in range(4): k.e(f"v_dot2c_f32_bf16 v{72+p}, v{PQ[2*ks+p]+d}, v71")
    k.e("v_permlane32_swap_b32 v72, v73", "v_add_f32 v72, v72, v73")
    k.ds(f"ds_write_b32 v74, v72 offset:{L_CS - 65536}")
    k.wait(lg="all"); k.e("s_barrier")
    for w in range(4): k.ds(f"ds_read_b32 v{56+w}, v75 offset:{L_CS - 65536 + 256*w}")
    mid2()
    k.wait(lg="all")
    k.e("v_add_f32 v56, v56, v57", "v_add_f32 v58, v58, v59", "v_add_f32 v56, v56, v58")
    k.e("v_cvt_pk_bf16_f32 v45, v56, v46", "v_lshlrev_b32 v57, 16, v45", "v_sub_f32 v57, v56, v57", "v_cvt_pk_bf16_f32 v44, v56, v57")
    k.e("s_branch L_pk_done")
    k.label("L_pk_small")
    k.vmq = list(q0)
    k.e(f"v_mov_b32 v64, v{vL16}", f"v_add_u32 v65, 1024, v{vL16}", f"v_mov_b32 v68, v{vL16}", f"s_mov_b32 s72, {OOB>>1:#x}", "s_mov_b32 s73, s72", "s_mov_b32 s74, s72")
    k.e("s_cmp_eq_u32 s37, 0", "s_cbranch_scc1 L_pk_wo")
    k.e("s_mul_i32 s38, s35, 2341", "s_lshr_b32 s38, s38, 16", "s_mul_i32 s39, s38, 28", "s_sub_u32 s39, s35, s39",
        "s_mul_i32 s70, s39, 9363", "s_lshr_b32 s70, s70, 16", "s_mul_i32 s71, s70, 7", "s_sub_u32 s71, s39, s71")
    for u in range(2):
      k.e(f"s_sub_u32 s39, s70, s36" if P.hrot else "s_mov_b32 s39, s70", f"s_sub_u32 s39, s39, {u if P.hrot else 0}", "s_and_b32 s39, s39, 3",
        "s_lshl_b32 s32, s39, 2", "s_add_u32 s32, s32, s71", "s_mul_i32 s33, s39, 3", "s_add_u32 s33, s33, s71", "s_add_u32 s33, s33, 12",
        "s_cmp_lt_u32 s71, 4", "s_cselect_b32 s32, s32, s33", "s_mul_i32 s33, s38, 28", "s_add_u32 s32, s32, s33", f"s_lshl_b32 s{(35, 37)[u]}, s32, 11")
    k.e("v_lshl_add_u32 v56, v49, 9, v50", "v_xor_b32 v57, 64, v56", f"v_mov_b32 v62, {224*KB}", f"v_mov_b32 v63, {224*KB}")
    k.e(f"s_mul_i32 s36, s36, {224*KB}", f"s_add_u32 s36, s36, {WS_PDN}", "s_add_u32 s70, s36, s35", "s_add_u32 s71, s36, s37")
    k.wait(vm="pk")
    for i in range(2):
        for nn in range(2):
            for j in range(2): k.ds(f"ds_read_b64_tr_b16 {vr(PQ[2*i+nn]+2*j,2)}, v{56+nn} offset:{i*2048 + j*1024}", "t")
    mid1(); mid2()
    k.wait(lg="all")
    k.e("s_branch L_pk_done")
    k.label("L_pk_wo")
    k.vmq = list(q0)
    k.e("v_and_b32 v56, 2, v46", "v_lshlrev_b32 v56, 1, v56", "v_xor_b32 v56, v56, v47", "v_lshlrev_b32 v56, 4, v56", "v_lshl_add_u32 v56, v46, 7, v56",
        "v_lshrrev_b32 v57, 4, v1", "v_lshl_add_u32 v56, v57, 10, v56", "v_add_u32 v56, s34, v56", "v_xor_b32 v57, 64, v56",
        "v_mov_b32 v62, 0x800", "v_mov_b32 v63, 0x800")
    k.e("s_lshl_b32 s36, s36, 16", "s_lshl_b32 s35, s35, 12", "s_add_u32 s70, s36, s35", f"s_add_u32 s70, s70, {WS_PWO}", "s_mov_b32 s71, s70")
    k.wait(vm="pk")
    for j in range(4):
        for jj in range(2): k.ds(f"ds_read_b64_tr_b16 {vr(PQ[j]+2*jj,2)}, v{56+(j>>1)} offset:{jj*512 + 8*(j&1)}", "t")
    mid1(); mid2()
    k.wait(lg="all")
    k.label("L_pk_done")

def pack_stores(k):
    ops = []
    for r in range(4):
        for p in range(2):
            ops.append(("v", lambda r=r, p=p: k.vm(f"buffer_store_dwordx4 {vr(PQ[2*r+p],4)}, v{64+p}, {SRD_WS}, s{70+r} offen sc1", "pks")))
            if r < 3: ops.append(("a", lambda p=p: k.e(f"v_add_u32 v{64+p}, v{64+p}, v{62+p}")))
    ops.append(("v", lambda: k.vm(f"buffer_store_dwordx4 v[44:47], v68, {SRD_WS}, s74 offen sc1", "pks")))
    return ops

A_XF, A_K, A_V, A_Q = 36, 76, 86, 96
A_STA, A_STB, A_OP, A_DX, A_PA, A_ST, A_ACC = 104, 106, 144, 152, 153, 140, 184
class R0: XE, XO, SA, SB, CI, ONE, M, ATT, TMP = 3, 4, 5, 6, 28, 32, 52, (116, 160), 60
class R1: XE, XO, SA, SB, CI, ONE, M, ATT, TMP = 116, 117, 118, 119, 252, 124, 120, (228, 160), 28
A_U, A_PX = 226, 115
A11_ORDER = [2, 3, 1, 0, "h"]
A11_POS = {2: 3, 3: 0, 1: 1, 0: 2, "h": 3}
sODD, sCUR0, sCUR1, sCEXP = 40, 42, 44, 46

def a1_setup(k, layer):
    R = (R0, R1)[layer]
    real = k; out = []
    class Rec:
        def e(self, *t):
            if any(x.startswith("s_cmp") for x in t): out.append(lambda t=t: real.e(*t))
            else: out.extend(lambda x=x: real.e(x) for x in t)
    k = Rec()
    t16, g, tt, tb = R.TMP, R.TMP + 1, R.TMP + 2, R.TMP + 3
    x, y, z = R.ONE, R.ONE + 1, R.ONE + 2
    sa = L_SA0 if layer == 0 else L_SA1
    k.e(f"v_and_b32 v{t16}, 15, v1", f"v_lshrrev_b32 v{g}, 4, v1", f"v_and_b32 v{tt}, 7, v1", f"v_bfe_u32 v{tb}, v1, 3, 1")
    k.e(f"v_lshlrev_b32 v{tb}, 13, v{tb}")
    if layer == 0: k.e(f"v_add_u32 v{tb}, {L_X}, v{tb}")
    if layer == 0:
        k.e(f"v_and_b32 v{x}, 6, v{tt}", f"v_xor_b32 v{x}, v{x}, v{g}", f"v_lshlrev_b32 v{x}, 4, v{x}",
            f"v_lshl_add_u32 v{x}, v{tt}, 7, v{x}", f"v_add_u32 v{R.XE}, v{x}, v{tb}", f"v_xor_b32 v{R.XO}, 64, v{R.XE}")
    else:
        k.e(f"v_lshl_add_u32 v{x}, v{g}, 7, v{tb}", f"v_lshl_add_u32 v{R.XE}, v{tt}, 4, v{x}", f"v_add_u32 v{R.XO}, 512, v{R.XE}")
    k.e(f"v_lshlrev_b32 v{R.SA}, 3, v{t16}", f"v_add_u32 v{R.SA}, {sa}, v{R.SA}",
        f"v_lshlrev_b32 v{R.SB}, 5, v{g}", f"v_add_u32 v{R.SB}, {sa}, v{R.SB}")
    k.e(f"v_and_b32 v{x}, 1, v1", f"v_cmp_eq_u32 s[{sODD}:{sODD+1}], 1, v{x}",
        f"v_lshl_add_u32 v{y}, v{g}, 2, v{x}", f"v_cmp_le_u32 s[{sCUR0}:{sCUR0+1}], v{y}, v{t16}",
        f"v_add_u32 v{y}, 2, v{y}", f"v_cmp_le_u32 s[{sCUR1}:{sCUR1+1}], v{y}, v{t16}")
    k.e(f"v_mov_b32 v{y}, 0xffff", f"v_mov_b32 v{z}, 0xffff0000", f"v_cndmask_b32 v{y}, v{y}, v{z}, s[{sODD}:{sODD+1}]", f"v_mov_b32 v{z}, 0")
    k.e(f"v_cndmask_b32 v{R.M+2}, v{z}, v{y}, s[{sCUR0}:{sCUR0+1}]", f"v_cndmask_b32 v{R.M}, v{y}, v{z}, s[{sCUR0}:{sCUR0+1}]",
        f"v_cndmask_b32 v{R.M+3}, v{z}, v{y}, s[{sCUR1}:{sCUR1+1}]", f"v_cndmask_b32 v{R.M+1}, v{y}, v{z}, s[{sCUR1}:{sCUR1+1}]")
    k.e(f"s_cmp_eq_u32 s{sB}, 0", f"s_cselect_b32 s70, {f2u(-1e38):#x}, 0", f"s_mov_b32 s{sCEXP}, {f2u(0.25*LOG2E):#x}")
    for i in range(4): k.e(f"v_mov_b32 v{R.CI+i}, s70", f"v_mov_b32 v{R.ONE+i}, 0x3f803f80")
    return out

def o_bases(k, layer):
    k.e(*o_block("s32", layer))
    k.e(f"s_lshl_b32 s33, s{sCS}, 2", f"s_add_u32 s33, s33, s{sW}", "s_lshl_b32 s53, s33, 10", "s_add_u32 s53, s53, s32", "s_add_u32 s54, s53, 32768",
        f"s_lshl_b32 s32, s{sB}, 5", "s_add_u32 s32, s32, s33", "s_lshl_b32 s32, s32, 2", f"s_add_u32 s89, s32, {fl(layer, FL_O)}")

def ln_finish(a, s, q):
    a(f"v_mul_f32 v{s}, {f2u(-1/512):#x}, v{s}"); a(f"v_mul_f32 v{q}, {f2u(1/512):#x}, v{q}")
    a(f"v_fma_f32 v{q}, -v{s}, v{s}, v{q}"); a(f"v_max_f32 v{q}, 0, v{q}"); a(f"v_add_f32 v{q}, {f2u(1e-5):#x}, v{q}")

A_QS = 68
def fix_reads(k, R, t, S):
    i = 0 if t == "h" else t + 1
    return [lambda: k.ds(f"ds_read_b64 {vr(S,2)}, v{R.SA} offset:{i*128}", ("sa", t)),
            lambda: k.ds(f"ds_read_b128 {vr(S+2,4)}, v{R.SB} offset:{i*128}", ("sa", t)),
            lambda: k.ds(f"ds_read_b128 {vr(S+6,4)}, v{R.SB} offset:{i*128+16}", ("sa", t))]
def fix(k, R, fx, t, acc, at, pk, S=A_STA, pre=False, nxt=()):
    a = lambda txt, c=1, at=0: fx.add(lambda: k.e(txt), c, at)
    i = 0 if t == "h" else t + 1
    if not pre:
        for n, f in enumerate(fix_reads(k, R, t, S)): fx.add(f, 1, at - P.a1_salead if n == 0 else 0)
    fx.add(lambda: k.wait(lg=[("sa", t)]), 1, at)
    for f in nxt: fx.add(f)
    for r0, cs, dst in ((acc[0], CSQ, None if t == "h" else A_Q + 2*t), (acc[1], CSK, A_K + 2*i)):
        if dst is None: continue
        isq = cs == CSQ
        if pk:
            for h in (0, 2): a(f"v_pk_fma_f32 {vr(r0+h,2)}, {vr(S,2)}, {vr(cs+h,2)}, {vr(r0+h,2)} op_sel_hi:[0,1,1]")
            if not isq:
                for h in (0, 2): a(f"v_pk_mul_f32 {vr(r0+h,2)}, {vr(S,2)}, {vr(r0+h,2)} op_sel:[1,0] op_sel_hi:[1,1]")
        else:
            for r in range(4): a(f"v_fmac_f32 v{r0+r}, v{S}, v{cs+r}")
            if not isq:
                for r in range(4): a(f"v_mul_f32 v{r0+r}, v{S+1}, v{r0+r}")
        if isq: a(f"v_mul_f32 v{A_QS+t}, s{sCEXP}, v{S+1}")
        for h in range(2): a(f"v_cvt_pk_bf16_f32 v{dst+h}, v{r0+2*h}, v{r0+2*h+1}")
    r0 = acc[2]
    for r in range(4): a(f"v_fmac_f32 v{r0+r}, v{S+2+2*r}, v{CSV}")
    for r in range(4): a(f"v_mul_f32 v{r0+r}, v{S+3+2*r}, v{r0+r}")
    for h in range(2): a(f"v_cvt_pk_bf16_f32 v{A_V+2*i+h}, v{r0+2*h}, v{r0+2*h+1}")
    fx.add(lambda: (k.mark(("fix", t)), k.stamp(f"t0 fix{t}")), 0)

def attn(k, R, fx, t, B):
    SC, SP, PP, O, SUM, T = B, B + 4, B + 8, B + 12, B + 16, B + 20
    a = lambda txt, c=1: fx.add(lambda: k.e(txt), c)
    q = vr(A_Q + 2*t, 2)
    fx.dep(("fix", t)); fx.dep(("fix", t - 1 if t else "h")); fx.skip(1)
    a(f"{MF16S} {vr(SC,4)}, {vr(A_K+2*(t+1),2)}, {q}, 0", 2)
    a(f"{MF16S} {vr(SP,4)}, {vr(A_K+2*t,2)}, {q}, {vr(R.CI,4) if t == 0 else '0'}", 2)
    fx.skip(3)
    for rr, cur in ((0, sCUR0), (1, sCUR1)):
        a(f"v_cndmask_b32 v{T+2}, v{SC+2*rr}, v{SC+2*rr+1}, s[{sODD}:{sODD+1}]")
        a(f"v_cndmask_b32 v{T+3}, v{SP+2*rr}, v{SP+2*rr+1}, s[{sODD}:{sODD+1}]")
        a(f"v_cndmask_b32 v{T+rr}, v{T+3}, v{T+2}, s[{cur}:{cur+1}]")
    a(f"v_max_f32 v{T+2}, v{T}, v{T+1}"); a(f"v_mov_b32 v{T+3}, v{T+2}"); fx.skip(1)
    a(f"v_permlane16_swap_b32 v{T+2}, v{T+3}", 2); a(f"v_max_f32 v{T+2}, v{T+2}, v{T+3}"); a(f"v_mov_b32 v{T+3}, v{T+2}"); fx.skip(1)
    a(f"v_permlane32_swap_b32 v{T+2}, v{T+3}", 2); a(f"v_max_f32 v{T+2}, v{T+2}, v{T+3}")
    a(f"v_mul_f32 v{T+2}, v{A_QS+t}, v{T+2}")
    for rr in range(2): a(f"v_fma_f32 v{T+rr}, v{T+rr}, v{A_QS+t}, -v{T+2}")
    for rr in range(2): a(f"v_exp_f32 v{T+rr}, v{T+rr}", 2)
    for rr in range(2): a(f"v_cvt_pk_bf16_f32 v{T+rr}, v{T+rr}, v{T+rr}")
    a(f"v_and_b32 v{PP}, v{T}, v{R.M}"); a(f"v_and_b32 v{PP+1}, v{T+1}, v{R.M+1}")
    a(f"v_and_b32 v{PP+2}, v{T}, v{R.M+2}"); a(f"v_and_b32 v{PP+3}, v{T+1}, v{R.M+3}")
    fx.skip(1)
    a(f"{MF16} {vr(SUM,4)}, {vr(R.ONE,4)}, {vr(PP,4)}, 0", 2)
    a(f"{MF16} {vr(O,4)}, {vr(A_V+2*t,4)}, {vr(PP,4)}, 0", 2)
    fx.skip(3)
    a(f"v_rcp_f32 v{T}, v{SUM}", 2); fx.skip(1)
    for r in range(4): a(f"v_mul_f32 v{O+r}, v{T}, v{O+r}")
    for h in range(2): a(f"v_cvt_pk_bf16_f32 v{A_OP+2*t+h}, v{O+2*h}, v{O+2*h+1}")
    fx.add(lambda: (k.mark(("attn", t)), k.stamp(f"t0 attn{t}")), 0)

def ostore(k, fx, pair):
    b = A_OP + 4 * pair
    fx.dep(("attn", 2*pair)); fx.dep(("attn", 2*pair + 1))
    fx.dep("po1" if pair == 0 else "blank")
    fx.skip(1)
    fx.add(lambda: k.e(f"v_permlane16_swap_b32 v{b}, v{b+2}"), 2); fx.add(lambda: k.e(f"v_permlane16_swap_b32 v{b+1}, v{b+3}"), 2)
    fx.add(lambda: (k.dstore(f"buffer_store_dwordx4 {vr(b,4)}, v{vL16}, {SRD_WS}, s{53+pair} offen", ("ost", pair)), k.mark(("ost", pair))))

Z_WD, Z_TR, Z_HE, Z_HO, Z_OE, Z_OO = 164, 165, 166, 167, 168, 169
Z_XF, Z_SUM, Z_GR, Z_SUMH, Z_GRH, Z_CV = 104, 240, 244, 248, 252, 100
P.k_first = 4; P.k_pack = None; P.k_prep = 13
P.k_look, P.k_atom, P.k_bar, P.k_vgap, P.k_pst, P.k_pgap = 3, 6, 3, 3, 3, 0
NS0 = 6
def z_acc(t):
    if t == "h": return (None, A_ACC + 48, A_ACC + 52)
    return (A_ACC + 12*t, A_ACC + 12*t + 4, A_ACC + 12*t + 8)

def a10_lanes(k):
    k.e("v_lshrrev_b32 v60, 3, v1", "v_and_b32 v61, 6, v60", "v_and_b32 v62, 7, v1", "v_xor_b32 v61, v61, v62",
        "v_lshlrev_b32 v61, 4, v61", f"v_lshl_add_u32 v{A_DX}, v60, 10, v61")
    k.e("v_and_b32 v61, 2, v60", f"s_and_b32 s32, s{sW}, 1", "s_lshl_b32 s32, s32, 2", "v_or_b32 v61, s32, v61", "v_xor_b32 v61, v61, v62",
        "v_lshlrev_b32 v61, 4, v61", "v_mul_u32_u24 v60, 3072, v60", f"v_add_u32 v{Z_WD}, v60, v61")
    if P.rot == 0: k.e(f"s_add_u32 s{sROT}, s{sB}, s{sCS}")
    elif P.rot == 1: k.e(f"s_lshl_b32 s32, s{sB}, 1", f"s_bfe_u32 s33, s{sB}, 0x10002", "s_add_u32 s32, s32, s33", f"s_add_u32 s{sROT}, s32, s{sCS}")
    elif P.rot == 2: k.e(f"s_lshl_b32 s32, s{sB}, 1", f"s_add_u32 s{sROT}, s32, s{sCS}")
    elif P.rot == 3: k.e(f"s_mov_b32 s{sROT}, s{sCS}")
    elif P.rot == 4: k.e(f"s_lshl_b32 s32, s{sB}, 1", f"s_bfe_u32 s33, s{sB}, 0x10002", f"s_add_u32 s{sROT}, s32, s33")
    elif P.rot == 5: k.e(f"s_mov_b32 s{sROT}, 0")
    k.e(f"s_and_b32 s{sROT}, s{sROT}, 7")
    k.e(f"s_lshl_b32 s47, s{sB}, 3", "s_sub_u32 s48, s47, 2", "s_max_i32 s48, s48, 0", f"s_and_b32 s32, s{sW}, 1", "s_add_u32 s48, s48, s32",
        "s_lshl_b32 s48, s48, 13", f"s_lshl_b32 s32, s{sW}, 1", "s_add_u32 s47, s47, s32", "s_lshl_b32 s47, s47, 13")
    k.e(f"s_mul_i32 s51, s{sW}, {8*3072}", f"s_lshl_b32 s32, s{sCS}, 7", "s_add_u32 s51, s51, s32", f"s_mul_i32 s52, s{sW}, 3072")
    k.e(f"s_lshl_b32 s49, s{sW}, 14", f"s_and_b32 s32, s{sW}, 1", "s_lshl_b32 s50, s32, 13", f"s_lshr_b32 s32, s{sW}, 1",
        "s_lshl_b32 s33, s32, 10", "s_add_u32 s50, s50, s33", f"s_add_u32 s90, s32, s{sROT}")

def a10_x(k, c):
    S = lambda *t: [("s", lambda x=x: k.e(x)) for x in t]
    ld = lambda: k.vm(f"buffer_load_dwordx4 v{A_DX}, {SRD_X}, s33 offen {P.x_mod} lds", ("x", c))
    ops = S(f"s_add_u32 s33, s{sROT}, {c}", "s_and_b32 s33, s33, 7", "s_lshl_b32 s33, s33, 7", f"s_add_u32 m0, s49, {L_X + c*1024}", "s_add_u32 s33, s33, s47")
    ops += [("v", ld)] + S(f"s_add_u32 m0, s49, {L_X + 8192 + c*1024}", "s_add_u32 s33, s33, 8192") + [("v", ld)]
    if c % 2 == 0:
        ops += S(f"s_add_u32 s33, s90, {c}", "s_and_b32 s33, s33, 7", "s_lshl_b32 s33, s33, 7", f"s_add_u32 m0, s50, {L_XH0 + c*1024}", "s_add_u32 s33, s33, s48") + [("v", ld)]
    return ops

def a10_w(k, s):
    S = lambda *t: [("s", lambda x=x: k.e(x)) for x in t]
    if s & 1: ops = S(f"s_add_u32 m0, s52, {(s % NS0)*12288}", f"s_add_u32 s63, s63, {32*3072}")
    else: ops = S(f"s_add_u32 s63, s{sROT}, {s>>1}", "s_and_b32 s63, s63, 7", f"s_mul_i32 s63, s63, {64*3072}", f"s_add_u32 m0, s52, {(s % NS0)*12288}", "s_add_u32 s63, s63, s51")
    for p in range(3): ops.append(("v", lambda p=p: k.vm(f"buffer_load_dwordx4 v{Z_WD}, {SRD_QKV}, s63 offen offset:{p*1024} {P.w_mod} lds", ("w", s))))
    return ops
def run(ops):
    for _, f in ops: f()

def fill(k, mains, streams, cap=2):
    lastv = -99
    for g, m in enumerate(mains):
        m(); k.gap = g
        for a, o in streams:
            if a <= g and o and o[0][0] == "s": o.pop(0)[1](); break
        room = cap; nd = 0
        if g - lastv >= P.k_vgap and k.bg_step(): room -= 1; lastv = g
        while room > 0:
            pick = None
            for a, o in streams:
                if a > g or not o: continue
                t = o[0][0]
                if t == "d" and nd >= 1: continue
                if t == "v" and g - lastv < P.k_vgap: continue
                pick = o; break
            if pick is None: break
            t, f = pick.pop(0); f(); room -= 2 if t == "b" else 1
            if t == "d": nd += 1
            if t == "v": lastv = g
    for a, o in streams: run(o)

def a10_lanes2(k):
    k.e("v_lshrrev_b32 v60, 4, v1", "v_bfe_u32 v61, v1, 2, 2", "v_and_b32 v62, 1, v60", "v_lshlrev_b32 v62, 1, v62",
        "v_lshrrev_b32 v63, 1, v61", "v_or_b32 v62, v62, v63", f"v_xor_b32 v62, s{sW}, v62", "v_lshlrev_b32 v62, 5, v62",
        "v_mul_u32_u24 v60, 3072, v60", "v_lshl_add_u32 v60, v61, 7, v60", "v_add_u32 v60, v60, v62",
        "v_and_b32 v61, 3, v1", f"v_lshl_add_u32 v{Z_TR}, v61, 3, v60")
    k.e("v_and_b32 v60, 15, v1", "v_cmp_eq_u32 s[78:79], 0, v60")
    k.e(f"v_subrev_u32 v{Z_HE}, 16384, v{R0.XE}", f"v_subrev_u32 v{Z_HO}, 16384, v{R0.XO}",
        f"v_add_u32 v{Z_OE}, s49, v{R0.XE}", f"v_add_u32 v{Z_OO}, s49, v{R0.XO}")

def a10_loop(k, first):
    LA = P.k_look
    def sync(s, extra=()):
        k.wait(vm=[("w", s), ("x", s >> 1)] + list(extra)); k.e("s_barrier")
    nxt = [first]
    def dmas(upto):
        out = []
        while nxt[0] <= min(upto, 15):
            n = nxt[0]; nxt[0] += 1
            if n % 2 == 0: out += a10_x(k, n // 2)
            out += a10_w(k, n)
        return out
    def reads(s):
        fb = Z_XF + 24 * (s & 1); off = (s >> 1) * 1024; o = s & 1
        tr = lambda p, j: ("d", lambda: k.ds(f"ds_read_b64_tr_b16 {ar(12*s+4*p+2*j,2)}, v{Z_TR} offset:{(s%NS0)*12288 + p*1024 + j*512}", ("r", s, 0 if p == 0 else 1)))
        xr = lambda d, a, of, grp: ("d", lambda: k.ds(f"ds_read_b128 {vr(d,4)}, v{a} offset:{of}", ("r", s, grp)))
        out = [tr(0, 0), tr(0, 1)] + [xr(fb + 4*t, R0.XO if o else R0.XE, t*16384 + off, 0) for t in range(4)]
        out += [tr(1, 0), tr(1, 1), tr(2, 0), tr(2, 1), xr(fb + 16, Z_HO if o else Z_HE, off, 1), xr(fb + 20, Z_OO if o else Z_OE, off, 1)]
        return out
    l0_background(k)
    pst = pack_stores(k)
    sync(0)
    k.stamp("k0")
    run(reads(0)); run(dmas(LA - 1))
    for s in range(16):
        fb = Z_XF + 24 * (s & 1)
        c = lambda r: "0" if s == 0 else vr(r, 4)
        wq, wk, wv, one = ar(12*s, 4), ar(12*s + 4, 4), ar(12*s + 8, 4), vr(R0.ONE, 4)
        ms = [f"{MF16} {vr(z_acc(t)[0],4)}, {wq}, {vr(fb+4*t,4)}, {c(z_acc(t)[0])}" for t in range(4)]
        for t in [0, 1, 2, 3, "h"]:
            xf = vr(fb + (16 if t == "h" else 4*t), 4)
            ms.append(f"{MF16} {vr(z_acc(t)[1],4)}, {wk}, {xf}, {c(z_acc(t)[1])}")
            ms.append(f"{MF16} {vr(z_acc(t)[2],4)}, {xf}, {wv}, {c(z_acc(t)[2])}")
        ms += [f"{MF16} {vr(Z_CV,4)}, {wq}, {vr(fb+16,4)}, {c(Z_CV)}",
               f"{MF16} {vr(Z_SUM,4)}, {one}, {vr(fb+20,4)}, {c(Z_SUM)}", f"{MF16} {vr(Z_GR,4)}, {vr(fb+20,4)}, {vr(fb+20,4)}, {c(Z_GR)}",
               f"{MF16} {vr(Z_SUMH,4)}, {one}, {vr(fb+16,4)}, {c(Z_SUMH)}", f"{MF16} {vr(Z_GRH,4)}, {vr(fb+16,4)}, {vr(fb+16,4)}, {c(Z_GRH)}"]
        mains = [lambda m=m: k.e(m) for m in ms]
        if s == P.k_pack:
            k.wait(lg="all"); pack_process(k, lambda: None, lambda: None)
        k.wait(lg=[("r", s, 0)])
        streams = [(3, [("s", lambda: k.wait(lg=[("r", s, 1)]))] +
                       [("a", lambda d=d: k.e(f"v_cndmask_b32 v{fb+16+d}, v{fb+16+d}, v{R0.ONE}, s[78:79]")) for d in range(4)])]
        if s + 1 < 16:
            ex = ["pks"] if s + 1 == P.k_atom else []
            assert not ex or not pst, "arrival before the last pack store"
            assert P.k_prep > 14 - LA and (P.k_pack or 0) <= 8 - LA
            ops = [("b", lambda: sync(s + 1, ex))] + reads(s + 1)
            if ex: ops.append(("b", lambda: arrive(k)))
            streams.append((P.k_bar, ops))
            streams.append((0, dmas(s + LA)))
        n = 0; mine = []
        while pst and s >= (P.k_pack or 0) and (n < P.k_pst or pst[0][0] == "a"):
            n += pst[0][0] == "v"; mine.append(pst.pop(0))
        streams.append((P.k_pgap, mine))
        if s == P.k_prep: streams.append((6, tail_prep(k)))
        if s == P.k_touch:
            streams.append((2, [("b", lambda: k.touch(157, "p", ["s_mov_b32 s32, s53"], False) if (0, "ost", True) not in P.wt else None),
                                ("b", lambda: k.touch(158, "q", [f"s_add_u32 s32, s64, {BX1[0]}"], False) if (0, "xst", False) not in P.wt else None),
                                ("b", lambda: k.touch(159, "h", h_base("s32", 0), False) if P.h_touch0 == "k" else None)]))
        if s == P.k_gb: streams.append((1, [("v", lambda t=t: k.vm(t, "gb")) for t in GB_LOADS]))
        if s == P.k_chk: streams.append((1, [("b", lambda: rendezvous(k))]))
        if s == 15 and P.k_chk < 16:
            streams.append((max(P.k_bar, 4), [("b", lambda: (k.e("s_barrier"), k.mark("xfree")))]))
        fill(k, mains, streams)
        if s in (3, 7, 11): k.stamp(f"k{s+1}")
    k.stamp("k16")
    if P.k_chk >= 16: rendezvous(k)

GB_LOADS = [f"buffer_load_dwordx4 {vr(36+4*j,4)}, v{vL16}, {SRD_WS}, s75 offen offset:{j*1024} sc1" for j in range(4)] + \
           [f"buffer_load_dword v{vP}, v172, {SRD_WS}, s77 offen offset:8 sc1"]
def arrive(k):
    k.wait(vm=["tag"])
    k.e(f"v_readfirstlane_b32 s{sTAG}, v170", f"s_cmp_eq_u32 s{sTAG}, 0", "s_cbranch_scc1 L_tag_spin ;np", "L_tag_ok: ;np")
    k.spins += ["L_tag_spin:", f"s_sub_u32 s{sBUD}, s{sBUD}, 1", "s_cbranch_scc1 L_tag_give", f"buffer_load_dword v170, v{vFA}, {SRD_DBG}, 0 offen sc1",
                "s_waitcnt vmcnt(0)", f"v_readfirstlane_b32 s{sTAG}, v170", f"s_cmp_eq_u32 s{sTAG}, 0", "s_cbranch_scc1 L_tag_spin", "s_branch L_tag_ok",
                "L_tag_give:", f"s_mov_b32 s{sBUD}, 0", "s_branch L_tag_ok"]
    k.e(f"v_mov_b32 v176, s{sTAG}", "v_not_b32 v177, v176", f"v_mov_b32 v178, s{sXCC}")
    k.vm(f"buffer_store_dwordx4 v[176:179], v171, {SRD_WS}, s75 offen sc1", "arr")

def rendezvous(k):
    chk = [f"s_not_b32 s32, s{sTAG}"]
    for j in range(4): chk += [f"v_xor_b32 v{36+4*j}, s{sTAG}, v{36+4*j}", f"v_xor_b32 v{37+4*j}, s32, v{37+4*j}"]
    chk += ["v_or3_b32 v36, v36, v37, v40", "v_or3_b32 v44, v44, v45, v41", "v_or3_b32 v36, v36, v48, v49", "v_or_b32 v36, v36, v44", "v_cmp_ne_u32 vcc, 0, v36"]
    k.wait(vm=["gb"])
    k.e(*chk); k.e("s_cbranch_vccnz L_gb_spin ;np", "L_gb_ok: ;np")
    k.spins += ["L_gb_spin:", f"s_sub_u32 s{sBUD}, s{sBUD}, 1", "s_cbranch_scc1 L_gb_give", "s_sleep 2",
                f"buffer_load_dword v170, v{vFA}, {SRD_DBG}, 0 offen sc1", "s_waitcnt vmcnt(0)", "v_readfirstlane_b32 s32, v170", f"s_cmp_eq_u32 s32, s{sTAG}",
                "s_cbranch_scc1 L_gb_same", f"s_mov_b32 s{sTAG}, s32", f"v_mov_b32 v176, s{sTAG}", "v_not_b32 v177, v176",
                f"buffer_store_dwordx4 v[176:179], v171, {SRD_WS}, s75 offen sc1", "L_gb_same:"] + GB_LOADS + ["s_waitcnt vmcnt(0)"] + chk + \
               ["s_cbranch_vccnz L_gb_spin", "s_branch L_gb_ok", "L_gb_give:", f"s_mov_b32 s{sBUD}, 0", "s_branch L_gb_ok"]
    k.e(f"v_cmp_ne_u32 vcc, s{sXCC}, v{vP}", "s_and_b32 s99, vcc_lo, 0xffff" if not P.safe else "s_and_b32 s99, 1, 1",
        f"s_cselect_b32 s{sML}, {OOB>>1:#x}, 0", f"s_cselect_b32 s{sMS}, 0, {OOB>>1:#x}")
    k.mark("gb")

W_OA, W_UA, W_SA, W_RB = 152, 154, 155, 156
def wo_bases(k):
    k.e(f"s_lshl_b32 s32, s{sB}, 2", f"s_add_u32 s32, s32, s{sW}", "s_lshl_b32 s64, s32, 14", f"s_lshl_b32 s33, s{sCS}, 10", "s_add_u32 s64, s64, s33",
        "s_lshr_b32 s32, s32, 1", "s_lshl_b32 s80, s32, 15", "s_lshl_b32 s65, s32, 11", "s_lshl_b32 s66, s32, 3", f"s_add_u32 s66, s66, s{sCS}", "s_lshl_b32 s66, s66, 1",
        f"s_and_b32 s32, s{sW}, 1", "s_add_u32 s66, s66, s32", "s_lshl_b32 s66, s66, 2", "s_lshl_b32 s32, s32, 8", "s_add_u32 s80, s80, s32", "s_add_u32 s65, s65, s32",
        f"s_lshr_b32 s32, s{sCS}, 1", "s_lshl_b32 s32, s32, 9", "s_add_u32 s65, s65, s32", f"s_and_b32 s32, s{sCS}, 1", "s_lshl_b32 s32, s32, 3", "s_add_u32 s65, s65, s32")
def wo_lanes(k):
    x, y = 66, 67
    return [lambda t=t: k.e(*t) for t in (
        [f"v_and_b32 v{x}, 15, v1"], [f"v_lshrrev_b32 v{y}, 4, v1"], [f"v_lshlrev_b32 v{W_OA}, 4, v{x}"], [f"v_lshl_add_u32 v{W_SA}, v{y}, 2, v{W_OA}"],
        [f"v_lshl_add_u32 v{W_OA}, v{y}, 9, v{W_OA}"], [f"v_and_b32 v{W_UA}, 7, v1"], [f"v_lshlrev_b32 v{W_UA}, 4, v{W_UA}"], [f"v_lshl_add_u32 v{W_UA}, v{y}, 7, v{W_UA}"],
        [f"v_lshrrev_b32 v{x}, 3, v{x}"], [f"v_lshl_add_u32 v{W_UA}, v{x}, 13, v{W_UA}"], [f"v_add_u32 v{W_RB}, {6*16384}, v{vL16}"],
        ["v_cmp_gt_u32 vcc, 32, v1", f"v_mov_b32 v{y}, {OOB:#x}", f"v_cndmask_b32 v{W_SA}, v{y}, v{W_SA}, vcc"])]
def blanks(k, layer):
    if not P.tags: return [lambda: k.mark("blank")]
    z = 66
    return [lambda: (k.e(f"v_mov_b32 v{z}, -1"), k.dstore(f"buffer_store_dword v{z}, v{vL16}, {SRD_WS}, s53 offen", "blank")),
            lambda: (k.e(f"s_add_u32 s58, s64, {BX1[layer]}"), k.dstore(f"buffer_store_dword v{z}, v{W_UA}, {SRD_WS}, s58 offen", "blank")),
            lambda: k.dstore(f"buffer_store_dword v{z}, v{W_UA}, {SRD_WS}, s58 offen offset:512", "blank"),
            lambda: (k.e(f"s_add_u32 s58, s65, {BS1[layer]}"), k.dstore(f"buffer_store_dword v{z}, v{W_SA}, {SRD_WS}, s58 offen", "blank"), k.mark("blank"))]
def wo_prepoll(k, layer):
    k.poll_addr(A_PA, 32)
    k.e(f"s_lshl_b32 s32, s{sB}, 7", f"s_add_u32 s{sPO}, s32, {fl(layer, FL_O)}", *o_block("s59", layer), "s_and_b32 s32, s80, 0xffff", "s_add_u32 s59, s59, s32")
    k.bg_held = True
    k.poll_issue(A_PA, "po1"); k.mark("po1")

def dna(k): return regloads(k, sDS, 0, lambda j: ar(192 + 4*j, 4), 16, "dna")

def tail_prep(k):
    R = R0
    A = lambda *t: [("a", lambda x=x: k.e(x)) for x in t]
    B = lambda *t: [("b", lambda: k.e(*t))]
    ops = A("v_and_b32 v73, 15, v1", "v_lshrrev_b32 v74, 4, v1", "v_lshlrev_b32 v73, 10, v73", "v_lshl_add_u32 v73, v74, 4, v73")
    ops += B(f"s_lshl_b32 s58, s{sB}, 2", f"s_add_u32 s58, s58, s{sW}", "s_lshl_b32 s58, s58, 14", f"s_lshl_b32 s59, s{sCS}, 7", "s_add_u32 s58, s58, s59")
    ops += [("v", lambda p=p: k.vm(f"buffer_load_dwordx4 {vr(RES+4*p,4)}, v73, {SRD_X}, s58 offen offset:{p*64}", "res")) for p in range(2)]
    ops += A("v_and_b32 v75, 3, v1", "v_cmp_eq_u32 s[34:35], 1, v75", "v_cmp_eq_u32 s[36:37], 2, v75", "v_cmp_eq_u32 s[38:39], 3, v75", "v_bfe_u32 v75, v1, 2, 2")
    ops += B("v_cmp_eq_u32 vcc, v75, v74", f"v_mov_b32 v72, {L_SA0 + 768}", f"s_lshl_b32 s59, s{sW}, 7", f"v_add_u32 v74, s59, v{R.SA}",
             "v_cndmask_b32 v74, v72, v74, vcc", f"v_cndmask_b32 v75, v72, v{R.SA}, vcc")
    return ops + [("a", f) for f in wo_lanes(k)]

def l0_background(k):
    k.per = dict(P.per_k)
    dd = dna(k)
    bg_list(k, dd[:P.dna_first], "s4", "dna", "gb")
    bg_list(k, wow(k), "s4", "wow", "xfree")
    bg_batches(k, [0, 1, 2, 3], "s2", lambda b: "xfree")
    bg_batches(k, [4], "s2", lambda b: "wobar")
    bg_batches(k, [5], "s2", lambda b: "xfree")
    bg_batches(k, [6, 7, 8, 9], "s2", lambda b: "gubar")
    bg_list(k, dd[P.dna_first:], "s4", "dna")
P.per_k = {"s2": 90, "s4": 70}

def a10_tail(k):
    R = R0
    k.per = dict(P.per_tail0)
    k.stamp("t0 gb")
    if (0, "xst", False) not in P.wt: k.touch(72, "t", [f"s_add_u32 s32, s65, {BS1[0]}"])
    k.bg_burst(P.tail_burst); k.bg_next = k.t + P.tail_delay
    hk, hv = z_acc("h")[1], z_acc("h")[2]
    for r in range(4):
        k.e(f"v_mov_b32_dpp v{CSQ+r}, v{Z_CV+r} row_newbcast:0 row_mask:0xf bank_mask:0xf", f"v_mov_b32_dpp v{CSK+r}, v{hk+r} row_newbcast:0 row_mask:0xf bank_mask:0xf")
    k.e(f"v_mov_b32 v{CSV}, v{hv}", f"v_mov_b32 v45, v{hv}", f"v_permlane16_swap_b32 v{CSV}, v45", f"v_mov_b32 v45, v{CSV}", f"v_permlane32_swap_b32 v{CSV}, v45")
    fa = Flex(); fb = Flex()
    for fx, S, G, ad, off in ((fa, Z_SUM, Z_GR, 74, 128), (fb, Z_SUMH, Z_GRH, 75, 0)):
        a = lambda txt, c=1, fx=fx: fx.add(lambda: k.e(txt), c)
        a(f"v_cndmask_b32 v{S+1}, v{G}, v{G+1}, s[34:35]"); a(f"v_cndmask_b32 v{S+1}, v{S+1}, v{G+2}, s[36:37]"); a(f"v_cndmask_b32 v{S+1}, v{S+1}, v{G+3}, s[38:39]")
        ln_finish(a, S, S + 1); a(f"v_rsq_f32 v{S+1}, v{S+1}"); fx.skip(1)
        fx.add(lambda S=S, ad=ad, off=off: k.ds(f"ds_write_b64 v{ad}, {vr(S,2)} offset:{off}", "saw"))
    drain([fa, fb], k)
    for f in blanks(k, 0): f()
    k.wait(lg="all"); k.e("s_barrier"); k.mark("xfree")
    k.stamp("t0 bar")
    fx = Flex(); f1 = Flex(); f2 = Flex()
    od = (2, 1, 3, 0, "h"); Ss = (A_STA, 56)
    for f in fix_reads(k, R, od[0], Ss[0]): f()
    for n, t in enumerate(od):
        fix(k, R, fx, t, z_acc(t), 0, True, Ss[n & 1], True, fix_reads(k, R, od[n + 1], Ss[~n & 1]) if n < 4 else ()); fx.skip(1)
    attn(k, R, f1, 2, R.ATT[0]); attn(k, R, f2, 3, R.ATT[1]); ostore(k, f2, 1)
    attn(k, R, f1, 1, R.ATT[0]); attn(k, R, f2, 0, R.ATT[1]); ostore(k, f2, 0)
    f3 = Flex(); f3.dep(("ost", 1))
    for _ in range(P.l0_flag_delay): f3.skip(1)
    f3.add(lambda: (k.wait(vm=[("ost", 1)]), k.flag(1, 89), k.mark("oflag1")))
    f3.dep(("attn", 0)); f3.add(lambda: wo_prepoll(k, 0))
    drain([fx, f1, f2, f3], k)
    k.stamp("a1 end")
P.tail_burst = 2; P.tail_delay = 0; P.l0_flag_delay = 6; P.dna_first = 2
P.per_tail0 = {"s2": 70, "s4": 45}

def a11_bases(k):
    out = []
    S = lambda *t: out.extend(lambda x=x: k.e(x) for x in t)
    S(f"s_lshr_b32 s70, s{sW}, 1", "s_lshl_b32 s49, s70, 13", f"s_and_b32 s71, s{sW}, 1", "s_lshl_b32 s71, s71, 2",
      f"s_add_u32 s50, s71, s{sROT}", "s_lshl_b32 s71, s71, 10")
    for i in range(4):
        S(f"s_add_u32 s70, s50, {i}", "s_and_b32 s70, s70, 7", "s_lshl_b32 s70, s70, 10", "s_add_u32 s70, s70, s49", f"s_sub_u32 s{92+i}, s70, {i*1024}")
    S("s_add_u32 s49, s49, s71", f"s_lshl_b32 s47, s{sB}, 16", f"s_add_u32 s47, s47, {BX2()}")
    S(f"s_sub_u32 s48, s{sB}, 1", "s_max_i32 s48, s48, 0", "s_lshl_b32 s51, s48, 10", f"s_add_u32 s51, s51, {WS_HST}",
      "s_lshl_b32 s52, s48, 11", f"s_add_u32 s52, s52, {WS_HXF}", "s_lshl_b32 s48, s48, 14", f"s_add_u32 s48, s48, {WS_HALO}")
    S("v_lshrrev_b32 v28, 4, v1", "v_and_b32 v29, 15, v1", "v_lshlrev_b32 v29, 4, v29", f"v_lshl_add_u32 v{A_U}, v28, 9, v29", f"v_lshl_add_u32 v{A_U+1}, v28, 8, v29")
    S(f"s_lshl_b32 s70, s{sB}, 12", f"s_and_b32 s71, s{sW}, 1", "s_lshl_b32 s71, s71, 8", "s_add_u32 s70, s70, s71", f"s_add_u32 s90, s70, {BS2()}")
    out.append(lambda: k.e(f"s_lshl_b32 s70, s{sB}, 1", f"s_add_u32 s70, s70, s{sW}", "s_lshl_b32 s72, s70, 13", f"s_lshl_b32 s71, s{sCS}, 10", "s_add_u32 s72, s72, s71",
        f"s_add_u32 s72, s72, {WS_HALO - 16384}", f"s_cmp_ge_u32 s{sW}, 2", f"s_cselect_b32 s72, s72, {OOB>>1:#x}"))
    out.append(lambda: k.e(f"s_lshl_b32 s73, s{sB}, 10", f"s_lshr_b32 s71, s{sCS}, 1", "s_lshl_b32 s71, s71, 8", "s_add_u32 s73, s73, s71", f"s_and_b32 s71, s{sCS}, 1",
        "s_lshl_b32 s71, s71, 3", "s_add_u32 s73, s73, s71"))
    out.append(lambda: k.e(f"s_lshl_b32 s71, s{sW}, 7", "s_add_u32 s73, s73, s71", f"s_add_u32 s73, s73, {WS_HST - 256}",
        f"s_cmp_ge_u32 s{sW}, 2", f"s_cselect_b32 s73, s73, {OOB>>1:#x}"))
    out.append(lambda: k.e(f"s_lshl_b32 s70, s{sB}, 3", f"s_add_u32 s70, s70, s{sCS}", "s_lshl_b32 s70, s70, 1", f"s_add_u32 s70, s70, s{sW}", "s_lshl_b32 s70, s70, 7",
        f"s_add_u32 s70, s70, {WS_HXF - 256}", f"s_cmp_ge_u32 s{sW}, 2", f"s_cselect_b32 s91, s70, {OOB>>1:#x}"))
    return out

def a11_x(k, tile):
    fns = []
    for i in range(4):
        def f(i=i):
            k.set_m0(f"s_add_u32 m0, s49, {A11_POS[tile]*16384}")
            k.e(f"s_add_u32 s32, s{48 if tile == 'h' else 47}, s{92+i}")
            if tile not in (0, "h"): k.e(f"s_add_u32 s32, s32, {tile*16384}")
            k.vm(f"buffer_load_dwordx4 v{vL16}, {SRD_WS}, s32 offen offset:{i*1024} sc1 lds", ("x", tile))
        fns.append(f)
    return fns

def stats_path(k, fx, S, tag, addr, tok, at=0):
    a = lambda txt, c=1: fx.add(lambda: k.e(txt), c)
    s, q = S, S + 1
    fx.add(lambda: k.wait(vm=[tag]), 1, at)
    a(f"v_add_f32 v{s}, v{s}, v{S+2}"); a(f"v_add_f32 v{q}, v{q}, v{S+3}"); fx.skip(1)
    a(f"v_permlane16_swap_b32 v{s}, v{q}", 2); a(f"v_add_f32 v{s}, v{s}, v{q}"); a(f"v_mov_b32 v{q}, v{s}"); fx.skip(1)
    a(f"v_permlane32_swap_b32 v{s}, v{q}", 2); a(f"v_add_f32 v{s}, v{s}, v{q}"); a(f"v_mov_b32 v{q}, v{s}"); fx.skip(1)
    a(f"v_permlane16_swap_b32 v{s}, v{q}", 2)
    ln_finish(a, s, q); a(f"v_rsq_f32 v{q}, v{q}", 2); fx.skip(1)
    fx.add(lambda: (k.ds(f"ds_write_b64 v{addr}, {vr(s,2)} offset:{tok*8}", ("saw", tag)), k.mark(("saw", tag))))

def a11_early(k, later=False):
    fns = a11_x(k, A11_ORDER[0]) + [lambda: k.vm(f"buffer_load_dwordx4 {vr(A_ST,4)}, v{A_U}, {SRD_WS}, s90 offen offset:2048 sc1", "st0")] + a11_x(k, A11_ORDER[1])
    if later: return fns
    for f in fns: f()

def a11_main(k):
    R = R1; order = A11_ORDER
    steps = [(t, s) for t in order for s in range(16)]
    accof = lambda t: A_ACC + 12 * (order.index(t) % 3)
    def xread(i):
        t, s = steps[i]
        off = A11_POS[t] * 16384 + (s >> 1) * 1024
        k.ds(f"ds_read_b128 {vr(A_XF+4*(i%4),4)}, v{R.XO if s&1 else R.XE} offset:{off}", ("xf", i))
    mains = []; fixed = {}; gap_of = {}
    need_sa = {order[1]: ["st0"], order[2]: ["st1"], order[3]: [], "h": []}
    for i, (t, s) in enumerate(steps):
        acc = accof(t); xf = vr(A_XF + 4*(i % 4), 4)
        c = lambda r, s=s: "0" if s == 0 else vr(r, 4)
        ms = []
        if t != "h": ms.append(f"{MF16} {vr(acc,4)}, {ar(12*s,4)}, {xf}, {c(acc)}")
        ms.append(f"{MF16} {vr(acc+4,4)}, {ar(12*s+4,4)}, {xf}, {c(acc+4)}")
        ms.append(f"{MF16} {vr(acc+8,4)}, {xf}, {ar(12*s+8,4)}, {c(acc+8)}")
        gap_of[(t, s)] = len(mains)
        for m in ms: mains.append(lambda m=m: k.e(m))
        last = len(mains) - 1
        fl_ = fixed.setdefault(last, [])
        if i + 1 < len(steps): fl_.append((0, lambda i=i: k.wait(lg=[("xf", i + 1)])))
        j = i + 4
        if j < len(steps):
            tj, sj = steps[j]
            if sj == 0:
                def bar(tj=tj):
                    k.wait(vm=[("x", tj)], lg=[("saw", n) for n in need_sa[tj]]); k.e("s_barrier"); k.mark(("bar", tj))
                fixed.setdefault(gap_of[(t, s)], []).append((1, bar))
            fixed[last].append((1, lambda j=j: xread(j)))
    fx = Flex(); fz = Flex(); fz2 = Flex(); fy = Flex(); fm = Flex()
    k.e(f"s_and_b32 s32, s{sW}, 1", "s_lshl_b32 s32, s32, 7", f"v_add_u32 v7, s32, v{R.SA}")
    o_bases(k, 1)
    stats_path(k, fy, A_ST, "st0", 7, 48)
    g1 = P.a1_late_gap
    fm.add(lambda: (k.wait(vm=[("xst", 1)]), k.flag(2)), 3, P.a1_flag_gap)
    fm.add(lambda: (k.poll_issue(A_PX, "px2"), setattr(k, "bg_held", not P.a1_bg_early)), 1, g1 - P.a1_poll_lead)
    fm.add(lambda: k.poll_check(A_PX, "px2", 2), 2, g1)
    fm.add(lambda: k.vm(f"buffer_load_dwordx4 {vr(56,4)}, v{A_U}, {SRD_WS}, s90 offen sc1", "st1"))
    for t in order[2:4]:
        for f in a11_x(k, t): fm.add(f, 2); fm.skip(P.a1_xgap)
    for f in wo_lanes(k): fy.add(f)
    fy.add(lambda: k.mark("wolanes"), 0)
    fm.dep("wolanes")
    fm.add(lambda: k.e(f"s_add_u32 s58, s64, {BX2()}"))
    for p in range(2): fm.add(lambda p=p: k.vm(f"buffer_load_dwordx4 {vr(RES+4*p,4)}, v{W_UA}, {SRD_WS}, s58 offen offset:{p*512} sc1", "res")); fm.skip(P.a1_xgap)
    def halo_poll():
        k.poll_addr(A_PX, 16, 7)
        k.e(f"s_mov_b32 s{sPO}, s52", f"s_min_u32 s50, s{sB}, 1")
        k.poll_issue(A_PX, "phx"); k.bg_held = False
    fm.add(halo_poll, 3)
    for c in P.t1_a1:
        if c == "o": fm.add(lambda: k.touch(60, "p", ["s_mov_b32 s32, s53"]), 6)
        if c == "x": fm.add(lambda: k.touch(62, "q", [f"s_add_u32 s32, s64, {BX1[1]}"]), 6)
        if c == "s": fm.add(lambda: k.touch(64, "t", [f"s_add_u32 s32, s65, {BS1[1]}"]), 4)
    for f in blanks(k, 1): fm.skip(P.a1_xgap); fm.add(f, 3)
    stats_path(k, fy, 56, "st1", 7, 16, g1 + 26)
    fm.dep(("bar", order[2]))
    fm.add(lambda: k.poll_check(A_PX, "phx", "s50"), 2)
    fm.add(lambda: k.vm(f"buffer_load_dwordx4 {vr(A_ST,4)}, v{A_U+1}, {SRD_WS}, s51 offen sc1", "sth"))
    for f in a11_x(k, "h"): fm.add(f, 2); fm.skip(P.a1_xgap)
    stats_path(k, fy, A_ST, "sth", R.SA, 0, gap_of[(order[3], P.a1_sth)])
    k.per = dict(P.per_a1); k.bg_held = True
    b5 = batch(k, 5)
    mix = [(f, "s2", ("gw", 4), None) for f in batch(k, 4)] + [(f, "s2", ("gw", 5), None) for f in b5[:3]]
    ww = [(f, "s4", "wow", None) for f in wow(k)]
    while mix or ww:
        k.bg += ww[:2]; ww = ww[2:]
        if mix: k.bg.append(mix.pop(0))
    bg_batches(k, [0], "s2", lambda b: ("bar", order[3]))
    bg_batches(k, [1], "s2", lambda b: ("bar", "h"))
    bg_batches(k, [2, 3], "s2", lambda b: "wobar")
    bg_list(k, b5[3:], "s2", ("gw", 5), "wobar")
    if P.dn1_agpr:
        for j, f in enumerate(regloads(k, sDS, 16*1024, lambda j: ar(4*j, 4), 40, "dnr", tagf=lambda j: ("dnr", 8 + j // 2))): k.bg_add(f, "s4", ("dnr", 8 + j // 2), "gemm_done")
    bg_batches(k, [6, 7, 8, 9], "s2", lambda b: "gubar")
    A = lambda t: (accof(t) if t != "h" else None, accof(t) + 4, accof(t) + 8)
    for n in range(4): fix(k, R, fx, order[n], A(order[n]), gap_of[(order[n + 1], 1 if n < 3 else 2)], False)
    attn(k, R, fz, 3, R.ATT[0]); attn(k, R, fz2, 2, R.ATT[1]); ostore(k, fz2, 1)
    attn(k, R, fz, 1, R.ATT[0])
    fx.dep(("saw", "sth"))
    for f in fix_reads(k, R, "h", A_STA): fx.add(f)
    fx.dep("gemm_done")
    fix(k, R, fx, "h", A("h"), 0, False, pre=True); attn(k, R, fz2, 0, R.ATT[1]); ostore(k, fz2, 0)
    f3 = Flex(); f3.dep(("ost", 1)); f3.skip(P.l1_flag_delay)
    f3.add(lambda: (k.wait(vm=[("ost", 1)]), k.flag(1, 89), k.mark("oflag1")), 3)
    f3.dep(("attn", 0)); f3.add(lambda: wo_prepoll(k, 1))
    k.wait(vm=[("x", order[0])]); k.e("s_barrier")
    for i in range(4): xread(i)
    k.wait(lg=[("xf", 0)])
    k.stamp("a1 first")
    if k.stamping:
        for t in order[1:]: fixed.setdefault(gap_of[(t, 0)], []).append((0, lambda t=t: k.stamp(f"a1 t{t}")))
        for g in range(6, 224, 12): fixed.setdefault(g, []).append((0, lambda g=g: k.stamp(f"fina {g}")))
    run_gaps(k, mains, fixed, [fm, f3, fy, fx, fz2, fz], 2, over=lambda i: i >= P.a1_over)
    print("a11 left:", len(fm), len(fy), len(fx), len(fz), len(fz2), len(k.bg), {n: g for n, g in k.marks.items() if isinstance(n, tuple) and n[0] in ("fix", "attn", "saw", "ost")})
    k.mark("gemm_done"); k.bg_held = P.a1_tailhold
    k.stamp("a1 gemm")
    drain([fm, fy, fx, fz, fz2, f3], k)
    for n in range(2): assert k.marks[("fix", order[n])] < gap_of[(order[n + 3], 0)], "accumulator reused too early"
    k.stamp("a1 end")
P.a1_flag_gap, P.a1_late_gap, P.a1_poll_lead, P.l1_flag_delay, P.a1_over = 8, 36, 18, 14, 48
P.a1_bg_early = False; P.a1_salead = 8; P.a1_tailhold = True; P.touch1 = 1; P.t1_a1 = ''; P.t1_dn = ''; P.a1_xgap = 3; P.a1_sth = 4
P.per_a1 = {"s2": 80, "s4": 50}

R_W0, R_W1, R_RD, R_ST, R_OUT = 3, 4, 5, 6, 7
def red_setup(k, posA, dAB):
    x, y, z, u = 28, 29, 30, 31
    k.e(f"s_add_u32 s32, s{sGL}, {posA*16384}", f"v_add_u32 v{R_W0}, s32, v{vL16}", f"v_xor_b32 v{R_W1}, 128, v{R_W0}")
    k.e(f"v_and_b32 v{x}, 7, v1", f"v_lshrrev_b32 v{y}, 3, v1", f"s_lshl_b32 s32, s{sW}, 7", f"v_lshl_add_u32 v{z}, v{x}, 4, s32",
        f"v_bfe_u32 v{u}, v1, 4, 1", f"v_lshlrev_b32 v{R_RD}, 7, v{u}", f"v_xor_b32 v{z}, v{z}, v{R_RD}",
        f"v_bfe_u32 v{R_RD}, v1, 3, 2", f"v_lshl_add_u32 v{z}, v{R_RD}, 10, v{z}", f"v_lshrrev_b32 v{R_RD}, 5, v1",
        f"v_mul_u32_u24 v{R_RD}, {dAB*16384}, v{R_RD}", f"v_add_u32 v{z}, v{z}, v{R_RD}", f"v_add_u32 v{R_RD}, {posA*16384}, v{z}")
    k.e(f"v_lshlrev_b32 v{z}, 4, v{x}", f"v_lshl_add_u32 v{z}, v{u}, 2, v{z}", f"v_and_b32 v{u}, 0x28, v1",
        f"v_cmp_eq_u32 vcc, 0, v{u}", f"v_mov_b32 v{u}, {OOB:#x}", f"v_cndmask_b32 v{R_ST}, v{u}, v{z}, vcc")
    k.e(f"v_lshlrev_b32 v{z}, 10, v{x}", f"v_lshl_add_u32 v{R_OUT}, v{y}, 4, v{z}")

def red_bases(k):
    k.e(f"s_lshl_b32 s32, s{sB}, 3", f"s_add_u32 s32, s32, s{sW}", "s_lshl_b32 s55, s32, 13", f"s_lshl_b32 s33, s{sCS}, 10", "s_add_u32 s55, s55, s33")
    k.e("s_lshl_b32 s57, s32, 13", f"s_lshl_b32 s33, s{sCS}, 7", "s_add_u32 s57, s57, s33")
    k.e(f"s_lshl_b32 s56, s{sB}, 12", f"s_lshr_b32 s33, s{sCS}, 1", "s_lshl_b32 s33, s33, 9", "s_add_u32 s56, s56, s33",
        f"s_and_b32 s33, s{sCS}, 1", "s_lshl_b32 s33, s33, 3", "s_add_u32 s56, s56, s33", f"s_lshl_b32 s33, s{sW}, 7", "s_add_u32 s56, s56, s33")

def red_writes(k, acc, g, off, dAB):
    return [lambda q=q: k.ds(f"ds_write_b128 v{R_W1 if (q>>1)&1 else R_W0}, {vr(acc+4*q,4)} offset:{off + (q>>2)*dAB*16384 + (q&3)*1024}", ("rw", g)) for q in range(8)]
def red_reads(k, g, T, off):
    return [lambda w=w, hf=hf: k.ds(f"ds_read_b128 {vr(T+8*w+4*hf,4)}, v{R_RD} offset:{off + w*4096 + hf*512}", ("rr", g, w)) for w in range(4) for hf in range(2)]

def red_finish(k, fx, g, mm, T, xdst, stdst, final, pk):
    a = lambda txt, c=1: fx.add(lambda: k.e(txt), c)
    R = RES + 4 * mm
    def add8(d, s):
        if pk:
            for i in range(0, 8, 2): a(f"v_pk_add_f32 {vr(d+i,2)}, {vr(d+i,2)}, {vr(s+i,2)}")
        else:
            for i in range(8): a(f"v_add_f32 v{d+i}, v{d+i}, v{s+i}")
    fx.add(lambda: k.wait(lg=[("rr", g, 1)]))
    add8(T, T + 8)
    for i in range(4): a(f"v_lshlrev_b32 v{T+8+2*i}, 16, v{R+i}"); a(f"v_and_b32 v{T+9+2*i}, 0xffff0000, v{R+i}")
    add8(T, T + 8)
    fx.add(lambda: k.wait(lg=[("rr", g, 3)]))
    add8(T + 16, T + 24); add8(T, T + 16)
    for i in range(4): a(f"v_cvt_pk_bf16_f32 v{R+i}, v{T+2*i}, v{T+2*i+1}")
    if final:
        fx.add(lambda: (k.e(f"s_add_u32 s32, s57, {mm*32768}"), k.vm(f"buffer_store_dwordx4 {vr(R,4)}, v{R_OUT}, {SRD_OUT}, s32 offen {P.outm[g]}", ("xst", g))))
        return
    fx.add(lambda: (k.e(f"s_add_u32 s32, s55, {xdst + mm*32768}"), k.dstore(f"buffer_store_dwordx4 {vr(R,4)}, v{vL16}, {SRD_WS}, s32 offen", ("xst", g))), 2)
    s, q = T + 32, T + 33
    a(f"v_add_f32 v{s}, v{T}, v{T+1}"); a(f"v_mul_f32 v{q}, v{T}, v{T}"); a(f"v_fmac_f32 v{q}, v{T+1}, v{T+1}")
    for i in range(2, 8): a(f"v_add_f32 v{s}, v{s}, v{T+i}"); a(f"v_fmac_f32 v{q}, v{T+i}, v{T+i}")
    fx.skip(1)
    a(f"v_add_f32_dpp v{s}, v{s}, v{s} row_ror:8 row_mask:0xf bank_mask:0xf"); a(f"v_add_f32_dpp v{q}, v{q}, v{q} row_ror:8 row_mask:0xf bank_mask:0xf")
    fx.skip(1)
    a(f"v_permlane16_swap_b32 v{s}, v{q}", 2); a(f"v_add_f32 v{s}, v{s}, v{q}"); a(f"v_mov_b32 v{q}, v{s}"); fx.skip(1)
    a(f"v_permlane32_swap_b32 v{s}, v{q}", 2); a(f"v_add_f32 v{s}, v{s}, v{q}")
    fx.add(lambda: (k.e(f"s_add_u32 s32, s56, {stdst + mm*2048}"), k.dstore(f"buffer_store_dword v{s}, v{R_ST}, {SRD_WS}, s32 offen", ("xst", g)), k.mark(("xst", g))), 2)

def merge(k, fx, extra, first=0):
    extra = list(extra)
    items = [it for it in fx.items if it[0] != "skip"]; fx.items = []
    per = max(1, (len(items) - first) // max(1, len(extra)))
    for n, it in enumerate(items):
        if n >= first and (n - first) % per == 0 and extra: extra.pop(0)()
        it[1](); k.bg_step()
    for f in extra: f(); k.bg_step()

def wo(k, layer):
    BF, WQ, ACC, T, PA, NQ = 32, 160, 192, 208, A_PA, 8
    state = {}
    def bload(sx):
        k.set_s(f"s_add_u32 s58, s59, {(sx & ~1)*2048}")
        k.vm(f"buffer_load_dwordx4 {vr(BF+4*sx,4)}, v{W_OA}, {SRD_WS}, s58 offen offset:{(sx%2)*2048} sc1", ("b", sx))
    def wread(n): k.ds(f"ds_read_b128 {vr(WQ+4*(n%NQ),4)}, v{W_RB} offset:{n*1024}", ("wq", n))
    k.wait(vm=["wow"]); k.e("s_barrier"); k.mark("wobar")
    k.stamp("wl bar")
    for n in range(NQ): wread(n)
    btxt = lambda sx: [f"s_add_u32 s99, s59, {sx*2048}", f"buffer_load_dwordx4 {vr(BF+4*sx,4)}, v{W_OA}, {SRD_WS}, s99 offen sc1"]
    bchk = lambda sx: k.valid([f"v_cmp_eq_u32 vcc, -1, v{BF+4*sx}"], btxt(sx))
    ptxt = f"buffer_load_dword v{T+20}, v{T+21}, {SRD_WS}, s59 offen sc1"
    if P.tags:
        k.e(f"v_lshlrev_b32 v{T+21}, 8, v{PA}")
        k.e(f"v_or_b32 v{T+21}, v{T+21}, v{PA}", f"v_and_b32 v{T+21}, 0x80007c00, v{T+21}")
        k.poll_check(PA, "po1", 1)
        k.vm(ptxt, "probe")
        for sx in range(P.wo_spec): bload(sx)
        k.e(f"s_lshl_b32 s32, s{sC}, 1", f"s_and_b32 s33, s{sW}, 1", "s_add_u32 s32, s32, s33", "s_lshl_b32 s32, s32, 7", f"s_add_u32 s{sPO}, s32, {fl(layer, FL_O)}")
    else:
        k.e(f"s_add_u32 s{sFO}, s66, {fl(layer, FL_X1)}")
        k.codepf(96)
        if P.wo_setup_first == 2: gu_setup(k, layer)
        k.wait(vm=[("ost", 0)]); k.stamp("wl ack"); k.flag(2, 89)
        k.e(f"s_cmp_lt_u32 s{sW}, 2", f"s_cbranch_scc1 L_wo_late{layer}")
        q0 = list(k.vmq)
        k.poll_check(PA, "po1", 1)
        for sx in range(P.wo_lead): bload(sx)
        if P.wo_setup_first == 1: gu_setup(k, layer)
        k.e(f"s_branch L_wo_join{layer}")
        k.label(f"L_wo_late{layer}")
        k.vmq = list(q0)
        if P.wo_setup_first == 1: gu_setup(k, layer)
        k.poll_issue(PA, "po2"); k.poll_wait(PA, "po2", 2, 157); k.stamp("wl go")
        for sx in range(P.wo_lead): bload(sx)
        k.label(f"L_wo_join{layer}")
    if P.tags or not P.wo_setup_first: gu_setup(k, layer)
    k.stamp("wo issued")
    mains = []; fixed = {}
    for n in range(64):
        sx, j = divmod(n, 4)
        mains.append(lambda n=n, sx=sx, j=j: k.e(f"{MF16} {vr(ACC+4*j,4)}, {vr(WQ+4*(n%NQ),4)}, {vr(BF+4*sx,4)}, {'0' if sx == 0 else vr(ACC+4*j,4)}"))
        fl_ = fixed.setdefault(n, [])
        if n < 63: fl_.append((0, lambda n=n: k.wait(vm=[("b", (n + 1) // 4)] if (n + 1) % 4 == 0 else None, lg=[("wq", n + 1)])))
        if P.tags and n < 63 and (n + 1) % 4 == 0: fl_.append((1, lambda n=n: bchk((n + 1) // 4)))
        if P.tags and n == 42: fl_.append((1, lambda: k.poll_issue(PA, "px1")))
        if n + NQ < 64: fl_.append((1, lambda n=n: wread(n + NQ)))
        if n % P.wo_bstep == 0 and P.wo_lead + n // P.wo_bstep < 16: fl_.append((1, lambda n=n: bload(P.wo_lead + n // P.wo_bstep)))
    fx = Flex()
    a = lambda txt, c=1, at=0: fx.add(lambda: k.e(txt), c, at)
    fx.add(lambda: k.wait(vm=["res"]), 1, 8)
    for i in range(8): a(f"v_lshlrev_b32 v{T+2*i}, 16, v{RES+i}"); a(f"v_and_b32 v{T+2*i+1}, 0xffff0000, v{RES+i}")
    k.per = dict(P.per_wo[layer]); k.bg_held = False; k.bg_next = k.t + P.wo_bg_delay
    if P.tags:
        k.wait(vm=["probe"])
        k.valid([f"v_cmp_eq_u32 vcc, -1, v{T+20}"], [ptxt] + sum([btxt(x) for x in range(P.wo_spec)], []))
        state["fresh"] = True
        for sx in range(P.wo_spec, P.wo_lead): bload(sx)
    k.wait(vm=[("b", 0)], lg=[("wq", 0)])
    if P.tags: bchk(0)
    k.stamp("wo first")
    fixed[P.wo_bg_stop].append((0, lambda: setattr(k, "bg_held", True)))
    run_gaps(k, mains, fixed, [fx], 2)
    drain([fx], k)
    k.stamp("wo gemm")
    for i in range(0, 16, 2): k.e(f"v_pk_add_f32 {vr(T+i,2)}, {vr(T+i,2)}, {vr(ACC+i,2)}")
    k.e(f"s_add_u32 s58, s64, {BX1[layer]}")
    for p in range(2):
        for i in range(4): k.e(f"v_cvt_pk_bf16_f32 v{RES+4*p+i}, v{T+8*p+2*i}, v{T+8*p+2*i+1}")
        k.dstore(f"buffer_store_dwordx4 {vr(RES+4*p,4)}, v{W_UA}, {SRD_WS}, s58 offen offset:{p*512}", "xst")
    S, Q = T + 16, T + 18
    k.e(f"v_pk_add_f32 {vr(S,2)}, {vr(T,2)}, {vr(T+2,2)}", f"v_pk_mul_f32 {vr(Q,2)}, {vr(T,2)}, {vr(T,2)}", f"v_pk_fma_f32 {vr(Q,2)}, {vr(T+2,2)}, {vr(T+2,2)}, {vr(Q,2)}")
    for i in range(4, 16, 2): k.e(f"v_pk_add_f32 {vr(S,2)}, {vr(S,2)}, {vr(T+i,2)}", f"v_pk_fma_f32 {vr(Q,2)}, {vr(T+i,2)}, {vr(T+i,2)}, {vr(Q,2)}")
    k.e(f"v_add_f32 v{S}, v{S}, v{S+1}", f"v_add_f32 v{Q}, v{Q}, v{Q+1}", f"s_add_u32 s58, s65, {BS1[layer]}",
        f"v_permlane16_swap_b32 v{S}, v{Q}", f"v_add_f32 v{S}, v{S}, v{Q}", f"v_mov_b32 v{Q}, v{S}", f"v_permlane32_swap_b32 v{S}, v{Q}", f"v_add_f32 v{S}, v{S}, v{Q}")
    k.dstore(f"buffer_store_dword v{S}, v{W_SA}, {SRD_WS}, s58 offen", "xst")
    key = lambda it: it[2][1] if (isinstance(it[2], tuple) and it[2][0] == "gw") else 11.5
    k.bg.sort(key=key)
    print(f"wo{layer} done, background left:", [it[2] for it in k.bg][::4])
    k.bg_burst(P.wo_win[layer])
    k.stamp("wo end")
P.wo_bg_delay = 750; P.wo_bg_stop = 63; P.wo_lead = 6; P.wo_spec = 3; P.gu_spec = 3; P.wo_bstep = 2
P.wo_poll_gap = 1; P.wo_late_gap = 7; P.wo_hold = True; P.wo_win = [4, 4]; P.wo_var = 'B'; P.wo_prew = 2
P.per_wo = [{"s2": 20, "s4": 20}] * 2

G_RB, G_C1, G_VV, G_AUG, G_X, G_ACC, G_WF, G_T = 3, 6, 7, 28, 32, 160, 224, 240
D_WV, D_BF, D_ACC, D_T, D_WF, D_RB, D_PA = 32, 64, 128, 192, 228, 112, 115
DN_SEQ = [(g, e) for g in range(2) for e in range(28)]
DN_GROUPS = [1, 0]
def h_loader(k, layer):
    def bload(i):
        if i == 0:
            k.e(f"s_mul_i32 s32, s{sB}, {224*KB}", f"s_mul_i32 s33, s{sW}, {28*KB}", "s_add_u32 s32, s32, s33", f"s_add_u32 s59, s32, {BH[layer]}")
            for p in range(4):
                k.e(f"s_add_u32 s32, s{sCS}, {p}", f"s_and_b32 s32, s32, {3 if P.hrot else 0}", f"s_mul_i32 s32, s32, {7*KB}", f"s_add_u32 s{34+p}, s59, s32")
                if not P.hrot: k.e(f"s_add_u32 s{34+p}, s{34+p}, {7*KB*p}")
        g, e = DN_SEQ[i]; p, tl = divmod(KK_OF[e], 7)
        k.set_s(f"s_add_u32 s58, s{34+p}, {DN_GROUPS[g] * 112 * KB + (tl & 4) * 1024}")
        k.vm(f"buffer_load_dwordx4 {vr(D_BF+4*(i%P.dn_lead),4)}, v{vL16}, {SRD_WS}, s58 offen offset:{(tl & 3)*1024} sc1", ("b", i))
    return bload

def gu_setup(k, layer):
    T = G_T; XA = T + 3
    k.e(*gu_tile("s50"))
    k.e(f"v_and_b32 v{T}, 31, v1")
    k.e(f"v_mov_b32 v{G_RB}, v{vL16}", f"v_add_u32 v{G_RB+1}, 0x10000, v{vL16}", f"v_add_u32 v{G_RB+2}, 0x20000, v{vL16}")
    k.e(f"v_lshrrev_b32 v{T+1}, 5, v1", f"v_lshlrev_b32 v{G_AUG+3}, 4, v{T}", f"v_lshl_add_u32 v{G_AUG+3}, v{T+1}, 10, v{G_AUG+3}")
    k.e(f"v_lshrrev_b32 v{XA}, 3, v{T}", f"v_lshlrev_b32 v{XA}, 13, v{XA}", f"v_lshl_add_u32 v{XA}, v{T+1}, 7, v{XA}",
        f"v_and_b32 v{T}, 7, v1", f"v_lshl_add_u32 v{XA}, v{T}, 4, v{XA}")
    k.e("s_lshl_b32 s32, s50, 11", f"s_add_u32 s51, s32, {BS1[layer]}")
    k.e("s_lshl_b32 s32, s50, 15", f"s_add_u32 s52, s32, {BX1[layer]}", "s_add_u32 s53, s52, 4096")
    k.e(*h_base("s54", layer))
    k.e("s_lshr_b32 s32, s50, 1", "s_lshl_b32 s32, s32, 4", f"s_add_u32 s32, s32, s{sM}",
        "s_lshl_b32 s32, s32, 1", "s_and_b32 s33, s50, 1", "s_add_u32 s32, s32, s33", "s_lshl_b32 s32, s32, 2", f"s_add_u32 s81, s32, {fl(layer, FL_H)}")

def gu(k, layer):
    T = G_T; XA = T + 3; PA = T + 2
    if P.tags: k.poll_check(A_PA, "px1", 1)
    else:
        def pa():
            k.poll_addr(PA, 16)
            k.e("s_lshl_b32 s32, s50, 6", f"s_add_u32 s{sPO}, s32, {fl(layer, FL_X1)}")
        if not P.gu_pa_late: pa()
        k.wait(vm=["xst"]); k.flag(1)
        if P.gu_pa_late: pa()
        k.stamp("x1 flag")
        if not P.gu_bar_first: k.poll_issue(PA, "px1")
    k.e(f"s_mov_b32 s{sFO}, s81")
    seq = [(t, ks) for ks in range(33) for t in range(3)] + [(t, ks) for t in range(3, 7) for ks in range(33)]
    accof = {0: 0, 1: 1, 2: 2, 3: 3, 4: 0, 5: 1, 6: 2}
    NW = P.gu_nw
    WQ = [G_WF, G_WF + 4, G_WF + 8, G_WF + 12, T + 12]
    def wread(n):
        slot = (n % 160) * 1024
        k.ds(f"ds_read_b128 {vr(WQ[n%NW],4)}, v{G_RB + (slot>>16)} offset:{slot & 0xffff}", ("wf", n))
    BARS = P.gu_bars[layer]
    cover = lambda bi: [("gw", b) for b in range(bi, min([x for x in BARS if x > bi] + [15]))]
    def ringbar():
        k.wait(vm=cover(0)); k.e("s_barrier"); k.mark("gubar")
        for n in range(NW): wread(n)
    if P.gu_bar_first: ringbar(); k.poll_issue(PA, "px1")
    if not P.tags: k.poll_wait(PA, "px1", 1, 20)
    k.stamp("gu go")
    xtxt = lambda kg: f"buffer_load_dwordx4 {vr(G_X+4*kg,4)}, v{XA}, {SRD_WS}, s{52 + (kg>>4)} offen offset:{((kg>>2)&3)*1024 + (kg&3)*256} sc1"
    def xload(kg): k.vm(xtxt(kg), ("gx", kg))
    xchk = lambda kg: k.valid([f"v_cmp_eq_u32 vcc, -1, v{G_X+4*kg}"], [xtxt(kg)])
    stxt = [f"buffer_load_dwordx4 {vr(T+4+4*h,4)}, v{G_AUG+3}, {SRD_WS}, s51 offen offset:{512*h} sc1" for h in range(2)]
    if P.tags:
        for t_ in stxt: k.vm(t_, "gst")
        for kg in range(P.gu_spec): xload(kg)
        k.wait(vm=["gst"])
        k.valid([f"v_max3_u32 v{T}, v{T+4}, v{T+6}, v{T+8}", f"v_max_u32 v{T}, v{T}, v{T+10}", f"v_cmp_eq_u32 vcc, -1, v{T}"],
                stxt + [xtxt(x) for x in range(P.gu_spec)])
        k.stamp("gu probe")
        for kg in range(P.gu_spec, P.gu_lead): xload(kg)
    else:
        for kg in range(P.gu_lead): xload(kg)
        for t_ in stxt: k.vm(t_, "gst")
    if not P.gu_bar_first: ringbar()
    mains = []; fixed = {}
    xpos = {}
    for kg in range(P.gu_lead, 32): xpos.setdefault(int((kg - P.gu_lead) * P.gu_xstep), []).append(kg)
    for n, (t, ks) in enumerate(seq):
        acc = G_ACC + 16 * accof[t]
        b = vr(G_AUG, 4) if ks == 32 else vr(G_X + 4*ks, 4)
        c = "0" if ks == 0 else vr(acc, 16)
        mains.append(lambda n=n, acc=acc, b=b, c=c: k.e(f"{MF32} {vr(acc,16)}, {vr(WQ[n%NW],4)}, {b}, {c}"))
        fl_ = fixed.setdefault(n, [])
        if n + 1 < len(seq):
            t2, ks2 = seq[n + 1]
            need = [("gx", ks2)] if (t2 == 0 and ks2 < 32) else None
            fl_.append((0, lambda n=n, need=need: k.wait(vm=need, lg=[("wf", n + 1)])))
            if need and P.tags: fl_.append((2, lambda ks2=ks2: xchk(ks2)))
        j = n + NW
        if j < len(seq):
            if j % 16 == 0 and j // 16 in BARS:
                fl_.append((2, lambda bi=j//16: (k.wait(vm=cover(bi)), k.e("s_barrier"), [k.mark(("gbar", b)) for b in range(bi + 1)])))
            fl_.append((1, lambda j=j: wread(j)))
        for kg in xpos.get(n, []): fl_.append((1, lambda kg=kg: xload(kg)))
    xend = max(xpos)
    tail = [it for it in k.bg if it[2] == "dna" or it[2][0] == "dnr"]; k.bg = [it for it in k.bg if not (it[2] == "dna" or it[2][0] == "dnr")]
    bg_batches(k, range(10, 15), "s2", lambda b: ("gbar", b - 8))
    first, ratio = P.gu_mix[layer]
    mid = k.bg[first:]; k.bg = k.bg[:first]; acc_ = 0.0
    while mid or tail:
        if mid: k.bg.append(mid.pop(0))
        acc_ += ratio
        while tail and (acc_ >= 1 or not mid): k.bg.append(tail.pop(0)); acc_ -= 1
    direct = layer == 1 and P.dn1_agpr
    if not direct: bg_batches(k, range(15, 23), "s4", lambda b: ("gbar", b - 8))
    k.per = dict(P.per_guA[layer]); k.bg_held = False; k.bg_next = k.t + P.gu_bg_delay
    fixed[xend].append((0, lambda: setattr(k, "per", dict(P.per_guB[layer]))))
    fv = Flex()
    dv = regloads(k, sDS, 48*1024, lambda j: vr(D_WV + 4*j, 4), 8, "dnv")
    k.hload = h_loader(k, layer)
    if direct: pass
    elif P.hpre:
        bg_list(k, dv, "s4", "dnv", "xdead")
        fixed[207].append((0, lambda: k.mark("xdead")))
    else:
        for j, f in enumerate(dv): fv.add(f, 1, 198 + 2 + 3*j)
    fx = Flex()
    a = lambda txt, c=1, at=0: fx.add(lambda: k.e(txt), c, at)
    fx.add(lambda: k.wait(vm=["gst"]), 1, 3 * P.gu_lead)
    a(f"v_add_f32 v{T+4}, v{T+4}, v{T+6}"); a(f"v_add_f32 v{T+5}, v{T+5}, v{T+7}"); a(f"v_add_f32 v{T+8}, v{T+8}, v{T+10}"); a(f"v_add_f32 v{T+9}, v{T+9}, v{T+11}")
    a(f"v_add_f32 v{T+4}, v{T+4}, v{T+8}"); a(f"v_add_f32 v{T+5}, v{T+5}, v{T+9}"); fx.skip(1)
    a(f"v_permlane32_swap_b32 v{T+4}, v{T+5}", 2); a(f"v_add_f32 v{T+4}, v{T+4}, v{T+5}"); a(f"v_mov_b32 v{T+5}, v{T+4}"); fx.skip(1)
    a(f"v_permlane32_swap_b32 v{T+4}, v{T+5}", 2)
    ln_finish(a, T + 4, T + 5)
    a(f"v_mov_b32 v{G_VV}, v{T+5}")
    a(f"v_rsq_f32 v{G_C1}, v{T+5}", 2); a(f"v_cvt_pk_bf16_f32 v{G_AUG}, v{T+4}, v{T+4}"); a(f"v_mul_f32 v{G_C1}, {f2u(-LOG2E):#x}, v{G_C1}")
    a(f"v_and_b32 v{T+5}, 0xffff0000, v{G_AUG}"); a(f"v_sub_f32 v{T+5}, v{T+4}, v{T+5}"); a(f"v_mov_b32 v{G_AUG+2}, 0")
    a(f"v_cvt_pk_bf16_f32 v{G_AUG+1}, v{T+5}, v{G_AUG+2}"); a(f"v_mov_b32 v{G_AUG+3}, 0")
    fx.add(lambda: k.mark("aug"), 0)
    def epi(t, at):
        acc = G_ACC + 16 * accof[t]; hp = (T + 8, RES + 4)[t & 1]; E = T + 4
        if t >= 2: fx.dep(("hst", t - 2))
        if P.x_noepi: a("s_nop 0", 1, at)
        for i0 in range(0, 8 if not P.x_noepi else 0, 2):
            for i in (i0, i0 + 1): a(f"v_mul_f32 v{E+(i&1)}, v{G_C1}, v{acc+i}", 1, at)
            for i in (i0, i0 + 1): a(f"v_exp_f32 v{E+(i&1)}, v{E+(i&1)}", 2)
            for i in (i0, i0 + 1): a(f"v_mul_f32 v{E+2+(i&1)}, v{acc+i}, v{acc+8+i}")
            for i in (i0, i0 + 1): a(f"v_fma_f32 v{E+(i&1)}, v{E+(i&1)}, v{G_VV}, v{G_VV}")
            for i in (i0, i0 + 1): a(f"v_rcp_f32 v{E+(i&1)}, v{E+(i&1)}", 2)
            fx.skip(1)
            for i in (i0, i0 + 1): a(f"v_mul_f32 v{E+2+(i&1)}, v{E+2+(i&1)}, v{E+(i&1)}")
            a(f"v_cvt_pk_bf16_f32 v{hp+i0//2}, v{E+2}, v{E+3}")
        fx.add(lambda: k.mark(("epi", t)), 0)
        txt = f"buffer_store_dwordx4 {vr(hp,4)}, v{vL16}, {SRD_WS}, s{54 if t < 4 else 82} offen offset:{(t%4)*1024}"
        plain = (layer and P.h1_plain) or (not layer and P.h_touch0)
        if P.h_np > 1 and t < P.h_stag and not plain:
            fx.add(lambda: k.mark(("hrdy", t)), 0)
            fh.dep(("hrdy", t))
            for j in range(P.h_np):
                def pos(j=j):
                    n = k.nspin; k.nspin += 1
                    k.e(f"s_cmp_lg_u32 s83, {j}", f"s_cbranch_scc1 L_sk{n} ;np", txt + " sc1 ;opt", f"L_sk{n}: ;np")
                    if j == P.h_np - 1:
                        k.vmq.append(("hst", t)); k.seen.add(("hst", t)); k.phantom.add(("hst", t)); k.mark(("hst", t))
                fh.add(pos, P.h_cost)
                if j < P.h_np - 1: fh.skip(P.h_d)
            if t >= 2: pass
        else:
            k.phantom.discard(("hst", t))
            fx.add(lambda: ((k.dstore if plain else lambda x, tg: k.vm(x + " sc1", tg))(txt, ("hst", t)), k.mark(("hst", t))), 2)
    fh = Flex()
    k.e("s_add_u32 s82, s54, 4096", f"s_lshl_b32 s32, s{sW}, {max(P.h_np.bit_length() - 3, 0)}", f"s_add_u32 s32, s32, s{sM}", f"s_add_u32 s32, s32, s{sC}", f"s_and_b32 s83, s32, {P.h_np - 1}")
    end = {t: max(n for n, x in enumerate(seq) if x[0] == t) for t in range(7)}
    for t in range(6): epi(t, end[t] + 3)
    if layer == 0 and P.h_touch0 == "g": fixed[xend + 1].append((5, lambda: k.touch(T, "h", ["s_mov_b32 s32, s54"])))
    if layer == 1 and P.x1_clean:
        for p in range(2):
            fixed[P.x1_clean + 8*p].append((3, lambda p=p: (k.e(f"s_add_u32 s58, s64, {BX1[1]}"),
                k.vm(f"buffer_store_dwordx4 {vr(RES+4*p,4)}, v9999, {SRD_WS}, s58 offen offset:{p*512} sc1", "clean"))))
    ff = Flex(); ff.dep(("hst", 3))
    if layer == 0:
        tx = [lambda: k.touch(T, "p", [f"s_add_u32 s32, s55, {BX2()}"]), lambda: k.touch(T + 1, "s", [f"s_add_u32 s32, s56, {BS2()}"])]
        if P.x2_touch == "h3": ff.add(tx[0], 6); ff.add(tx[1], 4)
        elif isinstance(P.x2_touch, int): fixed[P.x2_touch].append((5, tx[0])); fixed[P.x2_touch + 1].append((4, tx[1]))
        if "g" in str(P.touch1):
            for f in touch_next(k, T + 2)[:2]: ff.skip(1); ff.add(f, 6)
    ff.skip(P.gu_flag_delay)
    ff.add(lambda: (k.wait(vm=[("hst", 3)]), k.flag(1)), 3)
    def hpoll():
        k.wait(vm=["touch"] if "touch" in k.seen else None)
        k.poll_addr(T, 8)
        k.e(f"s_lshl_b32 s32, s{sB}, 7", f"s_lshl_b32 s33, s{sW}, 5", "s_add_u32 s32, s32, s33", f"s_add_u32 s{sPO}, s32, {fl(layer, FL_H)}")
        k.poll_issue(T, "ph1")
    if P.hpre:
        ff.add(hpoll, 4, P.hp_chk - 12)
        ff.add(lambda: (k.poll_check(T, "ph1", 1), setattr(k, "bg_held", True)), 3, P.hp_chk)
        for j in range(P.hpre): ff.add(lambda j=j: k.hload(j), 2, max(208 + j, int(P.hp_chk + 1 + j * P.hp_step)))
    else: ff.add(hpoll, 4, 228)
    k.wait(vm=[("gx", 0)], lg=[("wf", 0)])
    if P.tags: xchk(0)
    k.stamp("gu first")
    if k.stamping:
        for g in (48, 98, 131, 164, 197): fixed[g].append((0, lambda g=g: k.stamp(f"gu m{g}")))
    fixed[93].append((0, lambda: k.marks["aug"]))
    run_gaps(k, mains, fixed, [fv, fh, ff, fx], P.gu_cap)
    print("gu left:", len(k.bg), len(fv), len(ff), len(fx), {n: g for n, g in k.marks.items() if isinstance(n, tuple) and n[0] == "hst"})
    k.stamp("gu gemm")
    for g, t in {132: 0, 165: 1, 198: 2}.items(): assert k.marks[("epi", t)] < g, "accumulator reused too early"
    epi(6, 0); drain([fh, ff, fv, fx], k)
    k.e(f"v_mov_b32 v{D_PA}, v{T}")
    k.stamp("gu end")
P.x2_touch = None; P.dn_x2 = 2; P.h_cost = 1; P.h_np = 1; P.h_d = 2; P.h_stag = 5; P.gu_mix = [(28, 1), (24, 1)]; P.hrot = 0; P.gu_bars = [list(range(15)), [0, 3, 6, 9, 12]]; P.hpre = 0; P.hp_chk = 208; P.hp_step = 2.2; P.gu_flag_delay = 10; P.gu_xstep = 2.6; P.gu_bg_delay = 300
P.per_guA = [{"s2": 120, "s4": 120}, {"s2": 160, "s4": 160}]
P.per_guB = [{"s2": 90, "s4": 55}, {"s2": 80, "s4": 50}]

def dn(k, layer):
    final = layer == 1
    NB = P.dn_lead; T = D_T
    groups = DN_GROUPS; seq = DN_SEQ; bload = k.hload
    early = Flex()
    def rb(): k.e(f"v_add_u32 v{D_RB}, s{sGL}, v{vL16}", f"v_add_u32 v{D_RB+1}, 0x10000, v{D_RB}", f"v_add_u32 v{D_RB+2}, 0x20000, v{D_RB}")
    if P.hpre:
        for i in range(P.hpre, NB): bload(i)
        rb()
        class Rec:
            def e(self, *t):
                if any("vcc" in x or "s32" in x for x in t): early.add(lambda: k.e(*t), len(t))
                else:
                    for x in t: early.add(lambda x=x: k.e(x))
        red_setup(Rec(), 3, 1)
        early.add(lambda: (k.wait(vm=[("hst", 6)]), k.flag(2), k.poll_issue(D_PA, "ph2"), k.e(f"s_add_u32 s{sFO}, s89, {FL_X2 - FL_O}")), 5, P.dn_fgap)
    else:
        k.poll_check(D_PA, "ph1", 1)
        k.stamp("dn early")
        k.bg_held = True
        for i in range(P.dn_pre): bload(i)
        red_setup(k, 3, 1); rb()
        k.wait(vm=[("hst", 6)]); k.flag(2)
        if P.dn_pollstep is None: k.poll_issue(D_PA, "ph2")
        for i in range(P.dn_pre, NB): bload(i)
        k.e(f"s_add_u32 s{sFO}, s89, {FL_X2 - FL_O}")
    k.per = dict(P.per_dn0); k.bg_held = False
    direct = final and P.dn1_agpr
    lds = [(i, nn) for i, (g, e) in enumerate(seq) if 8 <= e < 24 and not direct for nn in range(2)]
    slot_of = {x: n for n, x in enumerate(lds)}
    NWF = 6
    def wread(n):
        i, nn = lds[n]; j = 2 * (seq[i][1] - 8) + nn; b = 15 + (j >> 2)
        ad = (b % 10) * 16384 + (j & 3) * 1024
        if seq[i][0] == 0: k.wait(vm=[("gw", b)])
        k.ds(f"ds_read_b128 {vr(D_WF+4*(n%NWF),4)}, v{D_RB + (ad>>16)} offset:{ad & 0xffff}", ("wf", n))
    def wfrag(i, nn):
        e = seq[i][1]
        if e < 8: return ar(192 + 8*e + 4*nn, 4)
        if direct: return ar(8*(e - 8) + 4*nn, 4)
        if e >= 24: return vr(D_WV + 8*(e - 24) + 4*nn, 4)
        return vr(D_WF + 4*(slot_of[(i, nn)] % NWF), 4)
    mains = []; fixed = {}
    NT = P.dn_tail
    assert NT <= 4
    order = [(i, nn) for i in range(56 - NT) for nn in range(2)] + [(i, nn) for nn in range(2) for i in range(56 - NT, 56)]
    for pos, (i, nn) in enumerate(order):
        g, e = seq[i]
        if True:
            acc = D_ACC + 32 * g + 16 * nn
            mains.append(lambda i=i, nn=nn, acc=acc, e=e: k.e(f"{MF32} {vr(acc,16)}, {wfrag(i,nn)}, {vr(D_BF+4*(i%NB),4)}, {'0' if e == 0 else vr(acc,16)}"))
            gp = len(mains) - 1; fl_ = fixed.setdefault(gp, [])
            nx = order[pos + 1] if pos + 1 < len(order) else None
            vmn = [("b", nx[0])] if (nx and nx[1] == 0) else None
            lgn = [("wf", slot_of[nx])] if nx in slot_of else None
            if nx == (24, 0) and not direct: vmn = vmn + ["dnv"]
            if direct and nx and nx[0] in range(8, 28) and nx[1] == 0: vmn = vmn + [("dnr", nx[0])]
            fl_.append((0, lambda vmn=vmn, lgn=lgn: k.wait(vm=vmn, lg=lgn)))
            ah = (i + 2, nn)
            if ah in slot_of: fl_.append((1, lambda n=slot_of[ah]: wread(n)))
    nxt = NB; pend = 0
    for i in range(len(seq)):
        fl_ = fixed[2*i + 1]
        if i == P.dn_late: fl_.append((2, lambda: (k.poll_check(D_PA, "ph2", 2), k.stamp("dn late"), k.mark("late"))))
        n = 0
        while nxt < len(seq) and nxt <= i + NB and n < 2 and (nxt < 16 or i >= P.dn_late):
            fl_.append((1, lambda j=nxt: bload(j))); nxt += 1; n += 1
        if i == P.dn_pollstep and not P.hpre: fl_.append((1, lambda: k.poll_issue(D_PA, "ph2")))
        if nxt == len(seq) and not pend: pend = 2*i + 2
    if not final: fixed[22].append((5, lambda: k.codepf(192)))
    fixed[20].append((1, lambda: k.e("s_barrier")))
    for mm in range(2):
        fixed[40 + 4*mm].append((2, lambda mm=mm: (k.e(f"s_add_u32 s32, s55, {BX1[layer] + mm*32768}"),
                                                   k.vm(f"buffer_load_dwordx4 {vr(RES+4*mm,4)}, v{vL16}, {SRD_WS}, s32 offen sc1", "res"))))
    fw = Flex(); fs = Flex()
    for q, f in enumerate(red_writes(k, D_ACC, 0, 0, 1)): fw.add(f, 1, 58 + 2*q)
    fw.add(lambda: (k.wait(lg=[("rw", 0)]), k.e("s_barrier")), 2, 76)
    for f in red_reads(k, 0, T, 0): fw.add(f, 2)
    fw.add(lambda: k.wait(vm=["res"]))
    red_finish(k, fw, 0, groups[0], T, BX2(), BS2(), final, False)
    if not final:
        fw.add(lambda: k.vm(f"buffer_store_dwordx4 {vr(RES+4,4)}, v{vL16}, {SRD_WS}, s72 offen sc1", "hxs"))
        fw.add(lambda: k.vm(f"buffer_store_dword v{T+32}, v{R_ST}, {SRD_WS}, s73 offen sc1", "hxs"))
        fw.skip(P.dn_flag_delay); fw.add(lambda: (k.wait(vm=[("xst", 0)]), k.flag(1)), 3)
        if P.x2_touch == "dn":
            fixed[P.dn_x2].append((5, lambda: k.touch(226, "p", [f"s_add_u32 s32, s55, {BX2()}"])))
            fixed[P.dn_x2 + 1].append((4, lambda: k.touch(227, "s", [f"s_add_u32 s32, s56, {BS2()}"])))
            fs.add(lambda: k.wait(vm=["touch"]), 1, P.dn_x2 + 2)
        for q, c in enumerate(P.t1_dn): fixed[P.dn_touch + 2*q].append((5, touch_next(k, 28)["oxs".index(c)]))
        fs.dep("late")
        for f in a11_bases(k) + a1_setup(k, 1): fs.add(f)
        fs.add(lambda: (k.poll_addr(A_PX, 32), k.e(f"s_lshl_b32 s32, s{sB}, 7", f"s_add_u32 s{sPO}, s32, {fl(0, FL_X2)}")), 4)
    wtail = red_writes(k, D_ACC + 32, 1, 2*16384, 1)
    if NT:
        for q in range(min(4, NT)): fixed[min(111, 112 - NT + 1 + q)].append((4, wtail.pop(0)))
    k.wait(vm=["dna", ("b", 0)])
    k.stamp("dn first")
    if k.stamping:
        fixed[55].append((0, lambda: k.stamp("dn p1")))
        for g in range(7, 111, 8): fixed[g].append((0, lambda g=g: k.stamp(f"find {g}")))
    run_gaps(k, mains, fixed, [early, fw, fs], 6)
    print("dn left:", len(k.bg), len(fw), len(fs), "last h load at gap", pend)
    k.stamp("dn gemm")
    assert not fs.items
    ws = wtail
    if not final and P.dn_fin_first != 2: ws.insert(len(ws) - 4, lambda: k.poll_issue(A_PX, "px0"))
    if not final and P.dn_fin_first == 2: ws.append(lambda: k.poll_issue(A_PX, "px0"))
    merge(k, fw, ws)
    k.wait(lg=[("rw", 1)]); k.e("s_barrier")
    k.stamp("dn red")
    for f in red_reads(k, 1, T, 2*16384): f()
    def nxt():
        k.poll_check(A_PX, "px0", 1)
        k.wait(vm=["hxs"]); k.flag(1, 91, "sc1")
        a11_early(k)
    if not final:
        k.bg_held = True
        if not P.dn_fin_first: nxt()
    f1 = Flex(); red_finish(k, f1, 1, groups[1], T, BX2(), BS2(), final, True)
    if not final and P.dn_fin_first == 2:
        ex = [lambda: k.poll_check(A_PX, "px0", 1)] + a11_early(k, True) + [lambda: (k.wait(vm=["hxs"]), k.flag(1, 91, "sc1"))]
        merge(k, f1, ex, P.dn_mfirst)
    else: drain([f1], k)
    if not final and P.dn_fin_first == 1: nxt()
    k.stamp("dn end")
P.dn_mfirst = 8; P.dn_pollstep = 0; P.dn_fin_first = 2; P.dn_tail = 0; P.dn_touch = 88; P.dn_flag_delay = 4; P.dn_pre = 6; P.dn_late = 9; P.dn_fgap = 6
P.dn_wow = 6; P.per_dn = {"s4": 110, "s2": 130}; P.per_dn0 = {"s4": 60, "s2": 60}

def build(stamps=False, only=None):
    k = F(); k.stamping = stamps; k.only = only; k.st = P.dst; k.rt = P.rt
    name = NAME + "_kernel"
    k.e(".p2align 8", f".globl {name}", f".type {name},@function"); k.label(name)
    if stamps: k.e("s_memrealtime s[92:93]", "s_memtime s[94:95]")
    k.e("s_cmp_ge_u32 s2, 256", "s_cbranch_scc1 L_end")
    k.e("s_load_dwordx16 s[64:79], s[0:1], 0", "s_load_dwordx4 s[80:83], s[0:1], 64", "s_memrealtime s[96:97]")
    k.e("s_getpc_b64 s[100:101]")
    k.e("L_pc: ;np")
    k.e("v_and_b32 v1, 63, v0", "v_lshrrev_b32 v2, 6, v0", "s_lshr_b32 s33, s2, 3", "s_mul_i32 s32, s33, 43", "s_lshr_b32 s32, s32, 8",
        "s_mul_i32 s32, s32, 6", "s_sub_u32 s32, s33, s32", "s_lshl_b32 s32, s32, 13", "v_lshl_add_u32 v3, v2, 11, s32", "v_lshl_add_u32 v3, v1, 7, v3",
        "v_min_u32 v3, L_end-L_pc, v3", f"v_readfirstlane_b32 s{sW}, v2", "v_mov_b32 v5, s101", "v_add_co_u32 v4, vcc, s100, v3", "v_addc_co_u32 v5, vcc, 0, v5, vcc")
    if P.code0:
        k.e("s_mov_b64 exec, 0xffff")
        k.vm("global_load_dword v175, v[4:5], off", "code")
        k.e("s_mov_b64 exec, -1")
        if P.code1:
            k.e("v_lshlrev_b32 v3, 11, v2", "v_lshl_add_u32 v3, v1, 7, v3", "v_mov_b32 v5, s101", "v_add_co_u32 v4, vcc, s100, v3", "v_addc_co_u32 v5, vcc, 0, v5, vcc",
                "s_mov_b64 exec, 0xffff")
            k.vm("global_load_dword v174, v[4:5], off", "code")
            k.e("s_mov_b64 exec, -1")
    k.e("s_and_b32 s32, s2, 7", f"s_and_b32 s{sM}, s33, 15", "s_lshr_b32 s33, s33, 4", "s_lshl_b32 s32, s32, 1", f"s_add_u32 s{sC}, s32, s33")
    k.e(f"s_lshr_b32 s33, s{sM}, 3", f"s_lshl_b32 s{sB}, s{sC}, 1", f"s_add_u32 s{sB}, s{sB}, s33", f"s_and_b32 s{sCS}, s{sM}, 7")
    k.e("v_lshlrev_b32 v2, 4, v1")
    a10_lanes(k)
    k.e("s_waitcnt lgkmcnt(0)")
    srd(k, 12, 64, 2048 * 1024); srd(k, 16, 66, 512 * 3072)
    k.e(f"s_or_b32 s{sTAG}, s96, 1")
    if stamps:
        k.stamps += ["rt0", "start"]; k.e("v_writelane_b32 v0, s92, 0", f"v_writelane_b32 v0, s{92 if P.rt else 94}, 1")
    k.stamp("s kernarg")
    if P.pk_first == 1: pack_issue(k)
    k.stamp("s pkissue")
    run(a10_x(k, 0) + a10_w(k, 0))
    if P.pk_first == 0: pack_issue(k)
    srd(k, 28, 80, 256)
    k.e("v_cmp_eq_u32 vcc, 0, v1", f"v_mov_b32 v{vFA}, {OOB:#x}", f"s_or_b32 s32, s2, s{sW}", f"v_cndmask_b32_e64 v{vFA}, v{vFA}, 0, vcc",
        "s_cmp_eq_u32 s32, 0", f"s_cselect_b32 s32, 0, {OOB>>1:#x}", f"v_mov_b32 v170, s{sTAG}")
    k.vm(f"buffer_store_dword v170, v{vFA}, {SRD_DBG}, s32 offen sc1", "tagst")
    srd(k, 8, 82, WS_SIZE); srd(k, 20, 78, 2048 * 1024)
    for f in a1_setup(k, 0): f()
    o_bases(k, 0)
    a10_lanes2(k)
    k.e(f"v_mov_b32 v60, {OOB:#x}", "v_cmp_gt_u32 vcc, 8, v1", "v_mov_b32 v176, 0", "v_mov_b32 v177, 0", "v_mov_b32 v178, 0", "v_mov_b32 v179, 0",
        f"v_cndmask_b32 v173, v60, v{vL16}, vcc", "v_cmp_gt_u32 vcc, 16, v1", "s_nop 0",
        f"s_lshl_b32 s32, s{sC}, 4", f"v_cndmask_b32 v172, v60, v{vL16}, vcc")
    k.e(f"s_add_u32 s32, s32, s{sM}", "s_lshl_b32 s32, s32, 4",
        f"s_cmp_eq_u32 s{sW}, 0", f"s_cselect_b32 s32, s32, {OOB>>1:#x}", f"v_add_u32 v171, s32, v{vFA}", f"s_mov_b32 s{sBUD}, 400000")
    red_bases(k)
    k.e(f"s_lshl_b32 s{sGL}, s{sW}, 12", f"s_mul_i32 s{sGS}, s{sM}, {PGU_SLICE}", f"s_add_u32 s{sGS}, s{sGS}, s{sGL}", f"s_add_u32 s{sGS}, s{sGS}, {WS_PGU}")
    k.e(f"s_mul_i32 s32, s{sCS}, {224*KB}", f"s_mul_i32 s33, s{sW}, {56*KB}", "s_add_u32 s32, s32, s33", f"s_add_u32 s{sDS}, s32, {WS_PDN}")
    k.e(f"s_lshl_b32 s32, s{sCS}, 16", f"s_add_u32 s32, s32, s{sGL}", f"s_add_u32 s88, s32, {WS_PWO}")
    wo_bases(k)
    k.stamp("s setup")
    run(a10_w(k, 1))
    if P.pk_first == 2: pack_issue(k)
    k.e(f"s_getreg_b32 s{sXCC}, hwreg(HW_REG_XCC_ID, 0, 4)", f"s_mov_b32 s75, {WS_ARR}", f"s_lshl_b32 s77, s{sC}, 8", "s_add_u32 s77, s77, s75")
    if P.k_touch == -1:
        k.touch(157, "p", ["s_mov_b32 s32, s53"], False); k.touch(158, "q", [f"s_add_u32 s32, s64, {BX1[0]}"], False)
    k.stamp("s w01")
    def mid2():
        if P.k_first > 3: run(a10_w(k, 3))
        k.e("s_lshl_b32 s32, s2, 7")
        k.vm(f"buffer_store_dwordx4 v[176:179], v173, {SRD_WS}, s32 offen sc1", "zero")
        k.e("s_lshl_b32 s32, s2, 8", f"s_add_u32 s32, s32, {WS_HXF}")
        k.vm(f"buffer_store_dwordx4 v[176:179], v172, {SRD_WS}, s32 offen sc1", "zero")
    if P.k_pack is None: pack_process(k, lambda: run(a10_x(k, 1) + a10_w(k, 2)), mid2)
    else: run(a10_x(k, 1) + a10_w(k, 2)); mid2()
    k.vm(f"buffer_load_dword v170, v{vFA}, {SRD_DBG}, 0 offen sc1", "tag")
    k.stamp("s pkdone")
    a10_loop(k, P.k_first)
    a10_tail(k)
    wo(k, 0); gu(k, 0); dn(k, 0)
    if not P.half:
        k.marks = {m: g for m, g in k.marks.items() if False}
        k.seen = {t for t in k.seen if t in k.vmq or t in k.lgq or t in ("dna", "st0", ("x", 2), ("x", 3))}
        k.layer = 1
        a11_main(k)
        wo(k, 1)
        k.marks = {m: g for m, g in k.marks.items() if m in ("wobar", "gemm_done") or m[0] == "bar"}
        gu(k, 1); dn(k, 1)
    if P.verbose: print([(t, tag, f) for t, tag, f in k.bg_log if f])
    if stamps:
        k.e("s_waitcnt vmcnt(0)"); k.stamp("drained"); k.stamp("rt1", True)
        k.e("s_lshl_b32 s32, s2, 10", "s_lshl_b32 s33, s3, 8", "s_add_u32 s32, s32, s33",
            f"s_add_u32 s32, s32, {WS_STAMP}", "v_lshlrev_b32 v8, 2, v1", f"buffer_store_dword v0, v8, {SRD_WS}, s32 offen")
        if P.echo:
            a, b = P.echo
            n = len(k.stamps)
            k.e(f"v_readlane_b32 s32, v0, {a}", f"v_readlane_b32 s33, v0, {b if b >= 0 else n + b}", f"v_readlane_b32 s34, v0, {n-1}", "s_nop 3",
                "s_sub_u32 s33, s33, s32", "s_min_u32 s33, s33, 20000")
            k.label("L_echo")
            k.e("s_memrealtime s[36:37]", "s_waitcnt lgkmcnt(0)", "s_sub_u32 s36, s36, s34", "s_cmp_lt_u32 s36, s33", "s_cbranch_scc1 L_echo")
        if P.dbg:
            n = len(k.stamps)
            k.e("v_readlane_b32 s32, v0, 0", f"v_readlane_b32 s33, v0, {n-1}", "s_not_b32 s34, s32", "v_mov_b32 v4, s33", "v_mov_b32 v5, s34")
            k.e(f"buffer_atomic_umax v4, v{vFA}, {SRD_DBG}, 0 offen offset:4", f"buffer_atomic_umax v5, v{vFA}, {SRD_DBG}, 0 offen offset:8")
            k.e(f"s_cmp_eq_u32 s2, {P.dbg - 1}", f"s_cselect_b32 s35, 0, {OOB>>1:#x}", f"s_cmp_eq_u32 s{sW}, 0", f"s_cselect_b32 s35, s35, {OOB>>1:#x}")
            for i, wd in zip(range(2, n - 1), (3, 5, 6, 7, 9, 10, 11, 13, 14, 15)):
                k.e(f"v_readlane_b32 s33, v0, {i}", "s_sub_u32 s33, s33, s32", "v_mov_b32 v4, s33", f"buffer_store_dword v4, v{vFA}, {SRD_DBG}, s35 offen offset:{4*wd}")
    k.e("s_endpgm")
    k.flush_spins()
    k.label("L_end"); k.e("s_endpgm")
    src = open("cdna_kernels/%s.s.ref" % NAME).read().splitlines()
    out = [l for l in src if l.startswith(";") and "@launch" not in l]
    out.append(f"; @launch grid=(256,1,1) block=(256,1,1) lds={LDS_TOTAL}")
    out += ['.amdgcn_target "amdgcn-amd-amdhsa--gfx950"', ".text"]
    s = "\n".join(out) + "\n" + k.text(verbose=True) + '.section .rodata,"a"\n.p2align 6\n' + kd(name)
    from verify import verify
    assert not verify(s), "a register is used while a load into it is in flight"
    if P.align:
        from align import align
        s = align(s)
    return s, k.stamps
P.x_nobar = 0; P.x_noepi = 0; P.rt = 1; P.dbg = 0; P.h_touch0 = ''; P.outm = ('', ''); P.x1_clean = None; P.h1_plain = 0; P.tags = 0; P.echo = None; P.wo_setup_first = 2; P.gu_pa_late = 0; P.gu_bar_first = 0; P.flagbr = 0; P.rot = 0; P.pk_mod = 'nt'; P.x_mod = ''; P.w_mod = ''; P.t_mod = ''; P.pk_first = 1; P.dn1_agpr = 1; P.poll2 = 2; P.wt = (); P.inplace = 1; P.o0_in_h = 0; P.code1 = 0; P.half = 0; P.tlb = 1; P.code0 = 1; P.verbose = 0; P.align = 1; P.gu_cap = 5; P.gu_nw = 5; P.k_touch = 15; P.k_gb = 13; P.k_chk = 16

if __name__ == "__main__":
    path = sys.argv[1] if len(sys.argv) > 1 else "cdna_kernels/%s.s" % NAME
    opts = sys.argv[2:]
    only = None
    for o in opts:
        if o.startswith("only="): only = [x for x in o[5:].split(",") if x]
        if o.startswith("P."):
            n, v = o[2:].split("="); setattr(P, n, eval(v))
    s, st = build(stamps="st" in opts, only=only)
    open(path, "w").write(s)
    if "st" in opts: json.dump([st], open(path + ".json", "w"))
```

```python
import sys, json
from common import *

MF16 = "v_mfma_f32_16x16x32_bf16"
MF16S = "v_mfma_f32_16x16x16_bf16"
MF32 = "v_mfma_f32_32x32x16_bf16"
vL16, vFV, vFA, vP = 2, 8, 9, 10
CSV, CSQ, CSK, RES = 11, 12, 16, 20
OOB = 0x80000000
FL_O, FL_X1, FL_H, FL_X2 = 0, 4096, 8192, 12288
FL_HX = 16384 + 12288
def fl(layer, off): return WS_FLAGS + 16384 * layer + off
sROT, sBUD, sGL, sGS, sDS = 84, 98, 60, 61, 85
sT0, sT1, sPO, sFO = 32, 33, 86, 87
sML, sMS = 68, 69
WS_HXF = WS_O0 - 0x10000 if False else WS_END
WS_ARR = WS_HXF + 0x10000
sTAG, sXCC = 91, 76
WS_STAMP = 0x2000000
L_SA0, L_SA1, L_XH0, L_CS = 80896, 97280, 81920, 79872
def e_of(kk):
    p, tl = divmod(kk, 7)
    return 4 * p + tl if tl < 4 else 16 + 3 * p + (tl - 4)
KK_OF = {e_of(kk): kk for kk in range(28)}

class P:
    a1_bg_start, a1_bg_step = 30, 6
    gu_lead = 9
    gu_bg_start, gu_bg_step = 50, 2.6
    dn_lead = 12
    bgm = ""
    sleep = 0
    drop = ()
    codepf = 0
    ld = "sc1"
    dst = "sc1"
    safe = False
    plain = True
    notouch = ()

BO, BX1, BS1, BH = [WS_O[0]] * 2, [WS_X[0]] * 2, [WS_ST[0]] * 2, [WS_H[0]] * 2
def BX2(): return WS_X[0] if P.inplace else WS_X[1]
def BS2(): return WS_ST[0] if P.inplace else WS_ST[1]
def o_block(d, layer):
    if (layer or P.o0_in_h) and P.inplace: return [f"s_mul_i32 {d}, s{sB}, {224*KB}", f"s_add_u32 {d}, {d}, {BH[0]}"]
    return [f"s_lshl_b32 {d}, s{sB}, 16", f"s_add_u32 {d}, {d}, {BO[layer]}"]
def o_line(layer):
    return [f"s_lshl_b32 s32, s{sB}, 16", f"s_lshl_b32 s33, s{sCS}, 2", f"s_add_u32 s33, s33, s{sW}", "s_lshl_b32 s33, s33, 10",
            "s_add_u32 s32, s32, s33", f"s_add_u32 s32, s32, {BO[layer]}"]
def touch_next(k, t):
    return [lambda: k.touch(t, "p", o_line(1)), lambda: k.touch(t + 1, "q", [f"s_add_u32 s32, s64, {BX1[1]}"]),
            lambda: k.touch(t + 2, "t", [f"s_add_u32 s32, s65, {BS1[1]}"])]
def gu_tile(d):
    return [f"s_lshl_b32 {d}, s{sC}, 1", f"s_and_b32 s33, s{sW}, 1", f"s_add_u32 {d}, {d}, s33", f"s_lshl_b32 {d}, {d}, 1", f"s_lshr_b32 s33, s{sW}, 1", f"s_add_u32 {d}, {d}, s33"]
def h_base(d, layer):
    return gu_tile(d) + [f"s_mul_i32 {d}, {d}, 112", f"s_mul_i32 s33, s{sM}, 7",
            f"s_add_u32 {d}, {d}, s33", f"s_lshl_b32 {d}, {d}, 10", f"s_add_u32 {d}, {d}, {BH[layer]}"]

class F(K):
    def __init__(self):
        super().__init__(); self.spins = []; self.nspin = 0; self.st = ""; self.npf = 0; self.layer = 0
    def poll_issue(self, va, tag): self.vm(f"buffer_load_dword v{vP}, v{va}, {SRD_WS}, s{sPO} offen sc1", tag)
    def poll_addr(self, va, nl, sh=2):
        self.e(f"v_cmp_gt_u32 vcc, {nl}, v1", f"v_lshlrev_b32 v{va}, {sh}, v1", f"v_mov_b32 v{vP}, {OOB:#x}", f"v_cndmask_b32 v{va}, v{vP}, v{va}, vcc")
        self.nl = nl
    def poll_check(self, va, tag, thr):
        n = self.nspin; self.nspin += 1
        self.stamp(f"poll<{tag}")
        self.wait(vm=[tag])
        self.stamp(f"poll={tag}")
        msk = f"s_and_b32 s99, vcc_lo, {(1 << self.nl) - 1:#x}"
        self.e(f"v_cmp_gt_u32 vcc, {thr}, v{vP}", msk, f"s_cbranch_scc1 L_spin{n} ;np", f"L_back{n}: ;np")
        self.stamp(f"poll>{tag}")
        self.spins += [f"L_spin{n}:", f"s_sub_u32 s{sBUD}, s{sBUD}, 1", f"s_cbranch_scc1 L_give{n}"] + ([f"s_sleep {P.sleep}"] if P.sleep else []) + [
                       f"buffer_load_dword v{vP}, v{va}, {SRD_WS}, s{sPO} offen sc1", "s_waitcnt vmcnt(0)",
                       f"v_cmp_gt_u32 vcc, {thr}, v{vP}", msk, f"s_cbranch_scc1 L_spin{n}", f"s_branch L_back{n}",
                       f"L_give{n}:", f"s_mov_b32 s{sBUD}, 0", f"s_branch L_back{n}"]
    def poll_wait(self, va, tag, thr, alt):
        if not P.poll2:
            self.poll_check(va, tag, thr); return
        n = self.nspin; self.nspin += 1
        ld = lambda r: f"buffer_load_dword v{r}, v{va}, {SRD_WS}, s{sPO} offen sc1"
        tst = lambda r: [f"v_cmp_gt_u32 vcc, {thr}, v{r}", f"s_and_b32 s99, vcc_lo, {(1 << self.nl) - 1:#x}"]
        self.e(f"s_sleep {P.poll2}")
        self.vm(ld(alt), "polljunk")
        self.wait(vm=[tag])
        self.e(*tst(vP)); self.e(f"s_cbranch_scc1 L_spin{n} ;np", f"L_back{n}: ;np")
        self.spins += [f"L_spin{n}:", f"s_sub_u32 s{sBUD}, s{sBUD}, 1", f"s_cbranch_scc1 L_give{n}",
                       ld(vP), "s_waitcnt vmcnt(1)"] + tst(alt) + [f"s_cbranch_scc0 L_back{n}", ld(alt), "s_waitcnt vmcnt(1)"] + tst(vP) + \
                      [f"s_cbranch_scc1 L_spin{n}", f"s_branch L_back{n}", f"L_give{n}:", f"s_mov_b32 s{sBUD}, 0", f"s_branch L_back{n}"]
    def flag(self, val, soff=sFO, st=None):
        self.e(f"v_mov_b32 v{vFV}, {val}")
        if st is not None:
            self.vm(f"buffer_store_dword v{vFV}, v{vFA}, {SRD_WS}, s{soff} offen {st}", "flag"); return
        if P.flagbr:
            self.dstore(f"buffer_store_dword v{vFV}, v{vFA}, {SRD_WS}, s{soff} offen", "flag", True); return
        self.e(f"s_or_b32 s99, s{soff}, s{sML}")
        self.vm(f"buffer_store_dword v{vFV}, v{vFA}, {SRD_WS}, s99 offen", "flag")
        self.e(f"s_or_b32 s99, s{soff}, s{sMS}")
        self.vm(f"buffer_store_dword v{vFV}, v{vFA}, {SRD_WS}, s99 offen sc1", "flag")
    def dstore(self, text, tag, always=False):
        kind = tag[0] if isinstance(tag, tuple) else tag
        if (not P.plain or (self.layer, kind, isinstance(tag, tuple)) in P.wt) and not always:
            self.vm(text + " sc1", tag); return
        n = self.nspin; self.nspin += 1
        self.e(f"s_cmp_lg_u32 s{sML}, 0", f"s_cbranch_scc1 L_alt{n} ;np")
        self.vm(text, tag)
        self.e(f"L_back{n}: ;np")
        self.spins += [f"L_alt{n}:", "s_nop 4", text + " sc1", f"s_branch L_back{n}"]
    def valid(self, test, reload):
        n = self.nspin; self.nspin += 1
        self.e(*test); self.e(f"s_cbranch_vccnz L_rl{n} ;np", f"L_back{n}: ;np")
        self.spins += [f"L_rl{n}:", f"s_sub_u32 s{sBUD}, s{sBUD}, 1", f"s_cbranch_scc1 L_give{n}"] + reload + ["s_waitcnt vmcnt(0)"] + test + \
                      [f"s_cbranch_vccnz L_rl{n}", f"s_branch L_back{n}", f"L_give{n}:", f"s_mov_b32 s{sBUD}, 0", f"s_branch L_back{n}"]
    def touch(self, tmp, kind, base_expr, masked=True):
        if not P.plain or kind in P.notouch: return
        nl = {"p": 16, "q": 16, "s": 2, "t": 2, "h": 56}[kind]
        self.e(f"v_cmp_gt_u32 vcc, {nl}, v1")
        if kind in "pq": self.e(f"v_lshrrev_b32 v{tmp}, 3, v1", f"v_lshlrev_b32 v{tmp}, {15 if kind == 'p' else 13}, v{tmp}", f"v_and_b32 v{vFV}, 7, v1", f"v_lshl_add_u32 v{tmp}, v{vFV}, 7, v{tmp}")
        else: self.e(f"v_lshlrev_b32 v{tmp}, {11 if kind == 's' else 7}, v1")
        self.e(f"v_mov_b32 v{vFV}, {OOB:#x}", *base_expr)
        self.e(f"v_cndmask_b32 v{tmp}, v{vFV}, v{tmp}, vcc")
        if masked: self.e(f"s_or_b32 s32, s32, s{sML}")
        self.vm(f"buffer_load_dword v{tmp}, v{tmp}, {SRD_WS}, s32 offen {P.t_mod}", "touch")
    def vm(self, text, tag=None):
        kind = tag[0] if isinstance(tag, tuple) else tag
        if kind in P.drop:
            self.seen.add(tag); return
        super().vm(text, tag)
    def codepf(self, t):
        if not P.codepf: return
        n = self.npf; self.npf += 1
        self.e(f"L_pf{n}: ;np", f"s_lshl_b32 s32, s{sW}, 12", f"s_add_u32 s32, s32, L_pf{n}-L_pc", f"v_lshl_add_u32 v{t+2}, v1, 7, s32", f"v_min_u32 v{t+2}, L_end-L_pc, v{t+2}",
               f"v_mov_b32 v{t+1}, s101", f"v_add_co_u32 v{t}, vcc, s100, v{t+2}", f"v_addc_co_u32 v{t+1}, vcc, 0, v{t+1}, vcc", "s_mov_b32 exec_hi, 0")
        self.vm(f"global_load_dword v{t+2}, v[{t}:{t+1}], off", "code")
        self.e("s_mov_b64 exec, -1")
    def flush_spins(self):
        for l in self.spins: self.e(l)
        self.spins = []

def batch(k, i):
    src = f"s_add_u32 s62, s{sGS}, {i*16384}" if i < 15 else f"s_add_u32 s62, s{sDS}, {(16 + 4*(i-15))*1024}"
    def f(q):
        k.set_m0(f"s_add_u32 m0, s{sGL}, {(i % 10)*16384}")
        if i != 14: k.set_s(src)
        elif k.last.get(62) != f"s_cselect_b32 s62, {OOB>>1:#x}, s62":
            k.e(src, f"s_cmp_ge_u32 s{sW}, 2", f"s_cselect_b32 s62, {OOB>>1:#x}, s62")
        k.vm(f"buffer_load_dwordx4 v{vL16}, {SRD_WS}, s62 offen offset:{q*1024} {P.bgm} lds", ("gw", i))
    return [lambda q=q: f(q) for q in range(4)]

def bg_batches(k, bs, period, dep=lambda b: None):
    for b in bs:
        for f in batch(k, b): k.bg_add(f, period, ("gw", b), dep(b))
def bg_list(k, fns, period, tag, dep=None):
    for f in fns: k.bg_add(f, period, tag, dep)

def regloads(k, base_sgpr, off, dst, n, tag, tmp=63, tagf=None):
    fns = []
    for j in range(n):
        def f(j=j):
            k.set_s(f"s_add_u32 s{tmp}, s{base_sgpr}, {off + (j & ~3)*1024}")
            k.vm(f"buffer_load_dwordx4 {dst(j)}, v{vL16}, {SRD_WS}, s{tmp} offen offset:{(j%4)*1024} {P.bgm}", tagf(j) if tagf else tag)
        fns.append(f)
    return fns
def wow(k):
    def f(i, q):
        k.set_m0(f"s_add_u32 m0, s{sGL}, {(6 + i)*16384}"); k.set_s(f"s_add_u32 s63, s88, {i*16384}")
        k.vm(f"buffer_load_dwordx4 v{vL16}, {SRD_WS}, s63 offen offset:{q*1024} lds", "wow")
    return [lambda i=i, q=q: f(i, q) for i in range(4) for q in range(4)]

def pack_issue(k):
    k.e(f"s_xor_b32 s99, s2, {P.pk_xor}")
    for r in (68, 69, 72, 73, 74, 75, 76, 77): assert k.writer[r].startswith("s_load"), f"kernel argument s{r} overwritten"
    k.e("v_lshrrev_b32 v44, 3, v1", "v_and_b32 v43, 7, v1", "v_and_b32 v45, 2, v44", "v_lshlrev_b32 v45, 1, v45",
        "v_xor_b32 v43, v43, v45", "v_lshlrev_b32 v43, 4, v43", f"s_add_u32 s34, s49, {L_X + 4096}")
    k.e("s_cmp_ge_u32 s99, 112", "s_cbranch_scc1 L_pki_small")
    k.e("s_and_b32 s35, s99, 1", "s_bfe_u32 s36, s99, 0x10001", "s_lshr_b32 s37, s99, 2")
    k.e("s_cmp_eq_u32 s35, 0", "s_cselect_b32 s24, s72, s74", "s_cselect_b32 s25, s73, s75",
        f"s_mov_b32 s26, {512*3584:#x}", "s_mov_b32 s27, 0x20000")
    k.e("v_mul_u32_u24 v46, 3584, v44", "v_add_u32 v46, v46, v43")
    k.e("s_lshl_b32 s38, s36, 2", f"s_add_u32 s38, s38, s{sW}", f"s_mul_i32 s38, s38, {64*3584}",
        "s_lshl_b32 s39, s37, 7", "s_add_u32 s38, s38, s39")
    for i in range(8):
        k.e(f"s_add_u32 m0, s34, {(i>>2)*8192 + (i&3)*1024}", f"s_add_u32 s39, s38, {i*8*3584}", f"buffer_load_dwordx4 v46, {SRD_PK}, s39 offen {P.pk_mod} lds")
    k.e("s_branch L_pki_done")
    k.label("L_pki_small")
    k.e("s_sub_u32 s35, s99, 112", "s_lshl_b32 s35, s35, 3", f"s_lshl_b32 s36, s{sW}, 1", "s_add_u32 s35, s35, s36")
    k.e("s_cmp_lt_u32 s35, 896", "s_cselect_b32 s24, s76, s68", "s_cselect_b32 s25, s77, s69", f"s_mov_b32 s26, {512*1024:#x}",
        f"s_cselect_b32 s26, {1792*1024:#x}, s26", "s_mov_b32 s27, 0x20000", "s_cselect_b32 s37, 1, 0",
        "s_movk_i32 s38, 896", "s_cselect_b32 s38, 0, s38")
    k.e("s_cselect_b32 s39, 0, 1", "s_cselect_b32 s70, 14, 15", "s_movk_i32 s71, 0x4000", "s_cselect_b32 s71, 0x80, s71")
    k.e("s_sub_u32 s35, s35, s38", "s_lshr_b32 s35, s35, s39", "s_and_b32 s36, s35, 7", "s_lshr_b32 s35, s35, 3")
    k.e("v_lshl_add_u32 v46, v44, 10, v43", "s_lshl_b32 s38, s35, s70", "s_lshl_b32 s39, s36, 7", "s_add_u32 s38, s38, s39")
    for i in range(2):
        for h in range(2):
            k.e(f"s_add_u32 m0, s34, {(2*i+h)*1024}", f"s_add_u32 s39, s38, {h*8192}", f"buffer_load_dwordx4 v46, {SRD_PK}, s39 offen {P.pk_mod} lds")
        if i == 0: k.e("s_add_u32 s38, s38, s71")
    k.label("L_pki_done")
    k.vmq.append("pk"); k.seen.add("pk")

PQ = [76, 80, 84, 88, 92, 96, 36, 40]
def pack_process(k, mid1, mid2):
    k.e("v_bfe_u32 v46, v1, 2, 2", "v_and_b32 v47, 3, v1", "v_bfe_u32 v48, v1, 4, 1", "v_lshrrev_b32 v49, 5, v1")
    k.e("v_and_b32 v50, 2, v46", "v_add_u32 v50, v50, v48", "v_lshlrev_b32 v50, 5, v50",
        "v_lshl_add_u32 v50, v46, 7, v50", "v_lshl_add_u32 v50, v47, 3, v50", "v_add_u32 v50, s34, v50")
    k.e("s_cmp_ge_u32 s99, 112", "s_cbranch_scc1 L_pk_small")
    q0 = list(k.vmq)
    k.e("v_lshl_add_u32 v56, v49, 10, v50", "v_xor_b32 v57, 64, v56")
    k.e("s_lshl_b32 s39, s37, 2", "v_add_u32 v58, s39, v48")
    k.e("s_lshl_b32 s70, s36, 2", f"s_add_u32 s70, s70, s{sW}", "s_lshl_b32 s70, s70, 2")
    k.e("v_and_b32 v66, 15, v1", "s_lshl_b32 s71, s35, 8", "v_lshl_add_u32 v66, v66, 4, s71")
    for p in range(2):
        T, fs, tl, st_, b, aug = 59, 60, 61, 62 + p, 64 + p, 68 + p
        k.e(f"v_add_u32 v{T}, {2*p}, v58", f"v_mul_u32_u24 v{fs}, 9363, v{T}", f"v_lshrrev_b32 v{fs}, 16, v{fs}",
            f"v_mul_u32_u24 v{tl}, 7, v{fs}", f"v_sub_u32 v{tl}, v{T}, v{tl}")
        k.e(f"v_cmp_gt_u32 vcc, 3, v{tl}", f"v_mul_u32_u24 v67, 33, v{tl}", f"v_mov_b32 v{st_}, 1", "v_mov_b32 v70, 3",
            f"v_cndmask_b32 v67, v67, v{tl}, vcc", f"v_cndmask_b32 v{st_}, v{st_}, v70, vcc")
        k.e(f"v_mul_u32_u24 v{fs}, 231, v{fs}", f"v_add_u32 v67, v67, v{fs}")
        k.e(f"v_lshl_add_u32 v70, v{st_}, 5, v67", "v_lshlrev_b32 v70, 10, v70", "v_add_u32 v70, v70, v66",
            "s_lshl_b32 s71, s36, 9", f"v_add_u32 v{aug}, s71, v70")
        k.e(f"v_mul_lo_u32 v70, v{st_}, s70", "v_add_u32 v67, v67, v70", "v_lshlrev_b32 v67, 10, v67",
            "v_add_u32 v67, v67, v66", f"v_lshl_add_u32 v{b}, v49, 9, v67", f"v_lshlrev_b32 v{st_}, 10, v{st_}")
    k.e("v_mov_b32 v71, 0x3f803f80", "v_mov_b32 v72, 0", "v_mov_b32 v73, 0", "v_cmp_gt_u32 vcc, 32, v1", "v_mov_b32 v46, 0", "v_mov_b32 v47, 0",
        "v_cndmask_b32 v68, v69, v68, vcc", f"s_lshl_b32 s72, s{sW}, 8", "s_add_u32 s72, s72, 0x10000", "v_lshl_add_u32 v74, v1, 2, s72",
        "v_lshlrev_b32 v75, 2, v1", "v_add_u32 v75, 0x10000, v75")
    k.e(f"s_mov_b32 s70, {WS_PGU}", "s_mov_b32 s71, s70", "s_mov_b32 s72, s70", "s_mov_b32 s73, s70", f"s_cmp_eq_u32 s{sW}, 0", f"s_cselect_b32 s74, s70, {OOB>>1:#x}")
    k.wait(vm="pk")
    for ks in range(4):
        for p in range(2):
            for j in range(2): k.ds(f"ds_read_b64_tr_b16 {vr(PQ[2*ks+p]+2*j,2)}, v{56+p} offset:{(ks>>1)*8192 + (ks&1)*2048 + j*512}", ("t", ks, p))
        if ks == 2: k.wait(lg=[("t", 0, 1)])
    mid1()
    for ks in range(4):
        for p in range(2):
            k.wait(lg=[("t", ks, p)])
            for d in range(4): k.e(f"v_dot2c_f32_bf16 v{72+p}, v{PQ[2*ks+p]+d}, v71")
    k.e("v_permlane32_swap_b32 v72, v73", "v_add_f32 v72, v72, v73")
    k.ds(f"ds_write_b32 v74, v72 offset:{L_CS - 65536}")
    k.wait(lg="all"); k.e("s_barrier")
    for w in range(4): k.ds(f"ds_read_b32 v{56+w}, v75 offset:{L_CS - 65536 + 256*w}")
    mid2()
    k.wait(lg="all")
    k.e("v_add_f32 v56, v56, v57", "v_add_f32 v58, v58, v59", "v_add_f32 v56, v56, v58")
    k.e("v_cvt_pk_bf16_f32 v45, v56, v46", "v_lshlrev_b32 v57, 16, v45", "v_sub_f32 v57, v56, v57", "v_cvt_pk_bf16_f32 v44, v56, v57")
    k.e("s_branch L_pk_done")
    k.label("L_pk_small")
    k.vmq = list(q0)
    k.e(f"v_mov_b32 v64, v{vL16}", f"v_add_u32 v65, 1024, v{vL16}", f"v_mov_b32 v68, v{vL16}", f"s_mov_b32 s72, {OOB>>1:#x}", "s_mov_b32 s73, s72", "s_mov_b32 s74, s72")
    k.e("s_cmp_eq_u32 s37, 0", "s_cbranch_scc1 L_pk_wo")
    k.e("s_mul_i32 s38, s35, 2341", "s_lshr_b32 s38, s38, 16", "s_mul_i32 s39, s38, 28", "s_sub_u32 s39, s35, s39",
        "s_mul_i32 s70, s39, 9363", "s_lshr_b32 s70, s70, 16", "s_mul_i32 s71, s70, 7", "s_sub_u32 s71, s39, s71")
    for u in range(2):
      k.e(f"s_sub_u32 s39, s70, s36" if P.hrot else "s_mov_b32 s39, s70", f"s_sub_u32 s39, s39, {u if P.hrot else 0}", "s_and_b32 s39, s39, 3",
        "s_lshl_b32 s32, s39, 2", "s_add_u32 s32, s32, s71", "s_mul_i32 s33, s39, 3", "s_add_u32 s33, s33, s71", "s_add_u32 s33, s33, 12",
        "s_cmp_lt_u32 s71, 4", "s_cselect_b32 s32, s32, s33", "s_mul_i32 s33, s38, 28", "s_add_u32 s32, s32, s33", f"s_lshl_b32 s{(35, 37)[u]}, s32, 11")
    k.e("v_lshl_add_u32 v56, v49, 9, v50", "v_xor_b32 v57, 64, v56", f"v_mov_b32 v62, {224*KB}", f"v_mov_b32 v63, {224*KB}")
    k.e(f"s_mul_i32 s36, s36, {224*KB}", f"s_add_u32 s36, s36, {WS_PDN}", "s_add_u32 s70, s36, s35", "s_add_u32 s71, s36, s37")
    k.wait(vm="pk")
    for i in range(2):
        for nn in range(2):
            for j in range(2): k.ds(f"ds_read_b64_tr_b16 {vr(PQ[2*i+nn]+2*j,2)}, v{56+nn} offset:{i*2048 + j*1024}", "t")
    mid1(); mid2()
    k.wait(lg="all")
    k.e("s_branch L_pk_done")
    k.label("L_pk_wo")
    k.vmq = list(q0)
    k.e("v_and_b32 v56, 2, v46", "v_lshlrev_b32 v56, 1, v56", "v_xor_b32 v56, v56, v47", "v_lshlrev_b32 v56, 4, v56", "v_lshl_add_u32 v56, v46, 7, v56",
        "v_lshrrev_b32 v57, 4, v1", "v_lshl_add_u32 v56, v57, 10, v56", "v_add_u32 v56, s34, v56", "v_xor_b32 v57, 64, v56",
        "v_mov_b32 v62, 0x800", "v_mov_b32 v63, 0x800")
    k.e("s_lshl_b32 s36, s36, 16", "s_lshl_b32 s35, s35, 12", "s_add_u32 s70, s36, s35", f"s_add_u32 s70, s70, {WS_PWO}", "s_mov_b32 s71, s70")
    k.wait(vm="pk")
    for j in range(4):
        for jj in range(2): k.ds(f"ds_read_b64_tr_b16 {vr(PQ[j]+2*jj,2)}, v{56+(j>>1)} offset:{jj*512 + 8*(j&1)}", "t")
    mid1(); mid2()
    k.wait(lg="all")
    k.label("L_pk_done")

def pack_stores(k):
    ops = []
    for r in range(4):
        for p in range(2):
            ops.append(("v", lambda r=r, p=p: k.vm(f"buffer_store_dwordx4 {vr(PQ[2*r+p],4)}, v{64+p}, {SRD_WS}, s{70+r} offen sc1", "pks")))
            if r < 3: ops.append(("a", lambda p=p: k.e(f"v_add_u32 v{64+p}, v{64+p}, v{62+p}")))
    ops.append(("v", lambda: k.vm(f"buffer_store_dwordx4 v[44:47], v68, {SRD_WS}, s74 offen sc1", "pks")))
    return ops

A_XF, A_K, A_V, A_Q = 36, 76, 86, 96
A_STA, A_STB, A_OP, A_DX, A_PA, A_ST, A_ACC = 104, 106, 144, 152, 153, 140, 184
class R0: XE, XO, SA, SB, CI, ONE, M, ATT, TMP = 3, 4, 5, 6, 28, 32, 52, (116, 160), 60
class R1: XE, XO, SA, SB, CI, ONE, M, ATT, TMP = 116, 117, 118, 119, 252, 124, 120, (228, 160), 28
A_U, A_PX = 226, 115
A11_ORDER = [2, 3, 1, 0, "h"]
A11_POS = {2: 3, 3: 0, 1: 1, 0: 2, "h": 3}
sODD, sCUR0, sCUR1, sCEXP = 40, 42, 44, 46

def a1_setup(k, layer):
    R = (R0, R1)[layer]
    real = k; out = []
    class Rec:
        def e(self, *t):
            if any(x.startswith("s_cmp") for x in t): out.append(lambda t=t: real.e(*t))
            else: out.extend(lambda x=x: real.e(x) for x in t)
    k = Rec()
    t16, g, tt, tb = R.TMP, R.TMP + 1, R.TMP + 2, R.TMP + 3
    x, y, z = R.ONE, R.ONE + 1, R.ONE + 2
    sa = L_SA0 if layer == 0 else L_SA1
    k.e(f"v_and_b32 v{t16}, 15, v1", f"v_lshrrev_b32 v{g}, 4, v1", f"v_and_b32 v{tt}, 7, v1", f"v_bfe_u32 v{tb}, v1, 3, 1")
    k.e(f"v_lshlrev_b32 v{tb}, 13, v{tb}")
    if layer == 0: k.e(f"v_add_u32 v{tb}, {L_X}, v{tb}")
    if layer == 0:
        k.e(f"v_and_b32 v{x}, 6, v{tt}", f"v_xor_b32 v{x}, v{x}, v{g}", f"v_lshlrev_b32 v{x}, 4, v{x}",
            f"v_lshl_add_u32 v{x}, v{tt}, 7, v{x}", f"v_add_u32 v{R.XE}, v{x}, v{tb}", f"v_xor_b32 v{R.XO}, 64, v{R.XE}")
    else:
        k.e(f"v_lshl_add_u32 v{x}, v{g}, 7, v{tb}", f"v_lshl_add_u32 v{R.XE}, v{tt}, 4, v{x}", f"v_add_u32 v{R.XO}, 512, v{R.XE}")
    k.e(f"v_lshlrev_b32 v{R.SA}, 3, v{t16}", f"v_add_u32 v{R.SA}, {sa}, v{R.SA}",
        f"v_lshlrev_b32 v{R.SB}, 5, v{g}", f"v_add_u32 v{R.SB}, {sa}, v{R.SB}")
    k.e(f"v_and_b32 v{x}, 1, v1", f"v_cmp_eq_u32 s[{sODD}:{sODD+1}], 1, v{x}",
        f"v_lshl_add_u32 v{y}, v{g}, 2, v{x}", f"v_cmp_le_u32 s[{sCUR0}:{sCUR0+1}], v{y}, v{t16}",
        f"v_add_u32 v{y}, 2, v{y}", f"v_cmp_le_u32 s[{sCUR1}:{sCUR1+1}], v{y}, v{t16}")
    k.e(f"v_mov_b32 v{y}, 0xffff", f"v_mov_b32 v{z}, 0xffff0000", f"v_cndmask_b32 v{y}, v{y}, v{z}, s[{sODD}:{sODD+1}]", f"v_mov_b32 v{z}, 0")
    k.e(f"v_cndmask_b32 v{R.M+2}, v{z}, v{y}, s[{sCUR0}:{sCUR0+1}]", f"v_cndmask_b32 v{R.M}, v{y}, v{z}, s[{sCUR0}:{sCUR0+1}]",
        f"v_cndmask_b32 v{R.M+3}, v{z}, v{y}, s[{sCUR1}:{sCUR1+1}]", f"v_cndmask_b32 v{R.M+1}, v{y}, v{z}, s[{sCUR1}:{sCUR1+1}]")
    k.e(f"s_cmp_eq_u32 s{sB}, 0", f"s_cselect_b32 s70, {f2u(-1e38):#x}, 0", f"s_mov_b32 s{sCEXP}, {f2u(0.25*LOG2E):#x}")
    for i in range(4): k.e(f"v_mov_b32 v{R.CI+i}, s70", f"v_mov_b32 v{R.ONE+i}, 0x3f803f80")
    return out

def o_bases(k, layer):
    k.e(*o_block("s32", layer))
    k.e(f"s_lshl_b32 s33, s{sCS}, 2", f"s_add_u32 s33, s33, s{sW}", "s_lshl_b32 s53, s33, 10", "s_add_u32 s53, s53, s32", "s_add_u32 s54, s53, 32768",
        f"s_lshl_b32 s32, s{sB}, 5", "s_add_u32 s32, s32, s33", "s_lshl_b32 s32, s32, 2", f"s_add_u32 s89, s32, {fl(layer, FL_O)}")

def ln_finish(a, s, q):
    a(f"v_mul_f32 v{s}, {f2u(-1/512):#x}, v{s}"); a(f"v_mul_f32 v{q}, {f2u(1/512):#x}, v{q}")
    a(f"v_fma_f32 v{q}, -v{s}, v{s}, v{q}"); a(f"v_max_f32 v{q}, 0, v{q}"); a(f"v_add_f32 v{q}, {f2u(1e-5):#x}, v{q}")

A_QS = 68
def fix_reads(k, R, t, S):
    i = 0 if t == "h" else t + 1
    return [lambda: k.ds(f"ds_read_b64 {vr(S,2)}, v{R.SA} offset:{i*128}", ("sa", t)),
            lambda: k.ds(f"ds_read_b128 {vr(S+2,4)}, v{R.SB} offset:{i*128}", ("sa", t)),
            lambda: k.ds(f"ds_read_b128 {vr(S+6,4)}, v{R.SB} offset:{i*128+16}", ("sa", t))]
def fix(k, R, fx, t, acc, at, pk, S=A_STA, pre=False, nxt=()):
    a = lambda txt, c=1, at=0: fx.add(lambda: k.e(txt), c, at)
    i = 0 if t == "h" else t + 1
    if not pre:
        for n, f in enumerate(fix_reads(k, R, t, S)): fx.add(f, 1, at - P.a1_salead if n == 0 else 0)
    fx.add(lambda: k.wait(lg=[("sa", t)]), 1, at)
    for f in nxt: fx.add(f)
    for r0, cs, dst in ((acc[0], CSQ, None if t == "h" else A_Q + 2*t), (acc[1], CSK, A_K + 2*i)):
        if dst is None: continue
        isq = cs == CSQ
        if pk:
            for h in (0, 2): a(f"v_pk_fma_f32 {vr(r0+h,2)}, {vr(S,2)}, {vr(cs+h,2)}, {vr(r0+h,2)} op_sel_hi:[0,1,1]")
            if not isq:
                for h in (0, 2): a(f"v_pk_mul_f32 {vr(r0+h,2)}, {vr(S,2)}, {vr(r0+h,2)} op_sel:[1,0] op_sel_hi:[1,1]")
        else:
            for r in range(4): a(f"v_fmac_f32 v{r0+r}, v{S}, v{cs+r}")
            if not isq:
                for r in range(4): a(f"v_mul_f32 v{r0+r}, v{S+1}, v{r0+r}")
        if isq: a(f"v_mul_f32 v{A_QS+t}, s{sCEXP}, v{S+1}")
        for h in range(2): a(f"v_cvt_pk_bf16_f32 v{dst+h}, v{r0+2*h}, v{r0+2*h+1}")
    r0 = acc[2]
    for r in range(4): a(f"v_fmac_f32 v{r0+r}, v{S+2+2*r}, v{CSV}")
    for r in range(4): a(f"v_mul_f32 v{r0+r}, v{S+3+2*r}, v{r0+r}")
    for h in range(2): a(f"v_cvt_pk_bf16_f32 v{A_V+2*i+h}, v{r0+2*h}, v{r0+2*h+1}")
    fx.add(lambda: (k.mark(("fix", t)), k.stamp(f"t0 fix{t}")), 0)

def attn(k, R, fx, t, B):
    SC, SP, PP, O, SUM, T = B, B + 4, B + 8, B + 12, B + 16, B + 20
    a = lambda txt, c=1: fx.add(lambda: k.e(txt), c)
    q = vr(A_Q + 2*t, 2)
    fx.dep(("fix", t)); fx.dep(("fix", t - 1 if t else "h")); fx.skip(1)
    a(f"{MF16S} {vr(SC,4)}, {vr(A_K+2*(t+1),2)}, {q}, 0", 2)
    a(f"{MF16S} {vr(SP,4)}, {vr(A_K+2*t,2)}, {q}, {vr(R.CI,4) if t == 0 else '0'}", 2)
    fx.skip(3)
    for rr, cur in ((0, sCUR0), (1, sCUR1)):
        a(f"v_cndmask_b32 v{T+2}, v{SC+2*rr}, v{SC+2*rr+1}, s[{sODD}:{sODD+1}]")
        a(f"v_cndmask_b32 v{T+3}, v{SP+2*rr}, v{SP+2*rr+1}, s[{sODD}:{sODD+1}]")
        a(f"v_cndmask_b32 v{T+rr}, v{T+3}, v{T+2}, s[{cur}:{cur+1}]")
    a(f"v_max_f32 v{T+2}, v{T}, v{T+1}"); a(f"v_mov_b32 v{T+3}, v{T+2}"); fx.skip(1)
    a(f"v_permlane16_swap_b32 v{T+2}, v{T+3}", 2); a(f"v_max_f32 v{T+2}, v{T+2}, v{T+3}"); a(f"v_mov_b32 v{T+3}, v{T+2}"); fx.skip(1)
    a(f"v_permlane32_swap_b32 v{T+2}, v{T+3}", 2); a(f"v_max_f32 v{T+2}, v{T+2}, v{T+3}")
    a(f"v_mul_f32 v{T+2}, v{A_QS+t}, v{T+2}")
    for rr in range(2): a(f"v_fma_f32 v{T+rr}, v{T+rr}, v{A_QS+t}, -v{T+2}")
    for rr in range(2): a(f"v_exp_f32 v{T+rr}, v{T+rr}", 2)
    for rr in range(2): a(f"v_cvt_pk_bf16_f32 v{T+rr}, v{T+rr}, v{T+rr}")
    a(f"v_and_b32 v{PP}, v{T}, v{R.M}"); a(f"v_and_b32 v{PP+1}, v{T+1}, v{R.M+1}")
    a(f"v_and_b32 v{PP+2}, v{T}, v{R.M+2}"); a(f"v_and_b32 v{PP+3}, v{T+1}, v{R.M+3}")
    fx.skip(1)
    a(f"{MF16} {vr(SUM,4)}, {vr(R.ONE,4)}, {vr(PP,4)}, 0", 2)
    a(f"{MF16} {vr(O,4)}, {vr(A_V+2*t,4)}, {vr(PP,4)}, 0", 2)
    fx.skip(3)
    a(f"v_rcp_f32 v{T}, v{SUM}", 2); fx.skip(1)
    for r in range(4): a(f"v_mul_f32 v{O+r}, v{T}, v{O+r}")
    for h in range(2): a(f"v_cvt_pk_bf16_f32 v{A_OP+2*t+h}, v{O+2*h}, v{O+2*h+1}")
    fx.add(lambda: (k.mark(("attn", t)), k.stamp(f"t0 attn{t}")), 0)

def ostore(k, fx, pair):
    b = A_OP + 4 * pair
    fx.dep(("attn", 2*pair)); fx.dep(("attn", 2*pair + 1))
    fx.dep("po1" if pair == 0 else "blank")
    fx.skip(1)
    fx.add(lambda: k.e(f"v_permlane16_swap_b32 v{b}, v{b+2}"), 2); fx.add(lambda: k.e(f"v_permlane16_swap_b32 v{b+1}, v{b+3}"), 2)
    fx.add(lambda: (k.dstore(f"buffer_store_dwordx4 {vr(b,4)}, v{vL16}, {SRD_WS}, s{53+pair} offen", ("ost", pair)), k.mark(("ost", pair))))

Z_WD, Z_TR, Z_HE, Z_HO, Z_OE, Z_OO = 164, 165, 166, 167, 168, 169
Z_XF, Z_SUM, Z_GR, Z_SUMH, Z_GRH, Z_CV = 104, 240, 244, 248, 252, 100
P.k_first = 4; P.k_pack = None; P.k_prep = 12
P.k_look, P.k_atom, P.k_bar, P.k_vgap, P.k_pst, P.k_pgap = 3, 5, 3, 3, 3, 0
NS0 = 6
def z_acc(t):
    if t == "h": return (None, A_ACC + 48, A_ACC + 52)
    return (A_ACC + 12*t, A_ACC + 12*t + 4, A_ACC + 12*t + 8)

def a10_lanes(k):
    k.e("v_lshrrev_b32 v60, 3, v1", "v_and_b32 v61, 6, v60", "v_and_b32 v62, 7, v1", "v_xor_b32 v61, v61, v62",
        "v_lshlrev_b32 v61, 4, v61", f"v_lshl_add_u32 v{A_DX}, v60, 10, v61")
    k.e("v_and_b32 v61, 2, v60", f"s_and_b32 s32, s{sW}, 1", "s_lshl_b32 s32, s32, 2", "v_or_b32 v61, s32, v61", "v_xor_b32 v61, v61, v62",
        "v_lshlrev_b32 v61, 4, v61", "v_mul_u32_u24 v60, 3072, v60", f"v_add_u32 v{Z_WD}, v60, v61")
    if P.rot == 0: k.e(f"s_add_u32 s{sROT}, s{sB}, s{sCS}")
    elif P.rot == 1: k.e(f"s_lshl_b32 s32, s{sB}, 1", f"s_bfe_u32 s33, s{sB}, 0x10002", "s_add_u32 s32, s32, s33", f"s_add_u32 s{sROT}, s32, s{sCS}")
    elif P.rot == 2: k.e(f"s_lshl_b32 s32, s{sB}, 1", f"s_add_u32 s{sROT}, s32, s{sCS}")
    elif P.rot == 3: k.e(f"s_mov_b32 s{sROT}, s{sCS}")
    elif P.rot == 4: k.e(f"s_lshl_b32 s32, s{sB}, 1", f"s_bfe_u32 s33, s{sB}, 0x10002", f"s_add_u32 s{sROT}, s32, s33")
    elif P.rot == 5: k.e(f"s_mov_b32 s{sROT}, 0")
    k.e(f"s_and_b32 s{sROT}, s{sROT}, 7")
    k.e(f"s_lshl_b32 s47, s{sB}, 3", "s_sub_u32 s48, s47, 2", "s_max_i32 s48, s48, 0", f"s_and_b32 s32, s{sW}, 1", "s_add_u32 s48, s48, s32",
        "s_lshl_b32 s48, s48, 13", f"s_lshl_b32 s32, s{sW}, 1", "s_add_u32 s47, s47, s32", "s_lshl_b32 s47, s47, 13")
    k.e(f"s_mul_i32 s51, s{sW}, {8*3072}", f"s_lshl_b32 s32, s{sCS}, 7", "s_add_u32 s51, s51, s32", f"s_mul_i32 s52, s{sW}, 3072")
    k.e(f"s_lshl_b32 s49, s{sW}, 14", f"s_and_b32 s32, s{sW}, 1", "s_lshl_b32 s50, s32, 13", f"s_lshr_b32 s32, s{sW}, 1",
        "s_lshl_b32 s33, s32, 10", "s_add_u32 s50, s50, s33", f"s_add_u32 s90, s32, s{sROT}")

def a10_x(k, c):
    S = lambda *t: [("s", lambda x=x: k.e(x)) for x in t]
    ld = lambda: k.vm(f"buffer_load_dwordx4 v{A_DX}, {SRD_X}, s33 offen {P.x_mod} lds", ("x", c))
    ops = S(f"s_add_u32 s33, s{sROT}, {c}", "s_and_b32 s33, s33, 7", "s_lshl_b32 s33, s33, 7", f"s_add_u32 m0, s49, {L_X + c*1024}", "s_add_u32 s33, s33, s47")
    ops += [("v", ld)] + S(f"s_add_u32 m0, s49, {L_X + 8192 + c*1024}", "s_add_u32 s33, s33, 8192") + [("v", ld)]
    if c % 2 == 0:
        ops += S(f"s_add_u32 s33, s90, {c}", "s_and_b32 s33, s33, 7", "s_lshl_b32 s33, s33, 7", f"s_add_u32 m0, s50, {L_XH0 + c*1024}", "s_add_u32 s33, s33, s48") + [("v", ld)]
    return ops

def a10_w(k, s):
    S = lambda *t: [("s", lambda x=x: k.e(x)) for x in t]
    if s & 1: ops = S(f"s_add_u32 m0, s52, {(s % NS0)*12288}", f"s_add_u32 s63, s63, {32*3072}")
    else: ops = S(f"s_add_u32 s63, s{sROT}, {s>>1}", "s_and_b32 s63, s63, 7", f"s_mul_i32 s63, s63, {64*3072}", f"s_add_u32 m0, s52, {(s % NS0)*12288}", "s_add_u32 s63, s63, s51")
    for p in range(3): ops.append(("v", lambda p=p: k.vm(f"buffer_load_dwordx4 v{Z_WD}, {SRD_QKV}, s63 offen offset:{p*1024} {P.w_mod} lds", ("w", s))))
    return ops
def run(ops):
    for _, f in ops: f()

def fill(k, mains, streams, cap=2):
    lastv = -99
    for g, m in enumerate(mains):
        m(); k.gap = g
        for a, o in streams:
            if a <= g and o and o[0][0] == "s": o.pop(0)[1](); break
        room = cap; nd = 0
        if g - lastv >= P.k_vgap and k.bg_step(): room -= 1; lastv = g
        while room > 0:
            pick = None
            for a, o in streams:
                if a > g or not o: continue
                t = o[0][0]
                if t == "d" and nd >= 1: continue
                if t == "v" and g - lastv < P.k_vgap: continue
                pick = o; break
            if pick is None: break
            t, f = pick.pop(0); f(); room -= 2 if t == "b" else 1
            if t == "d": nd += 1
            if t == "v": lastv = g
    for a, o in streams: run(o)

def a10_lanes2(k):
    k.e("v_lshrrev_b32 v60, 4, v1", "v_bfe_u32 v61, v1, 2, 2", "v_and_b32 v62, 1, v60", "v_lshlrev_b32 v62, 1, v62",
        "v_lshrrev_b32 v63, 1, v61", "v_or_b32 v62, v62, v63", f"v_xor_b32 v62, s{sW}, v62", "v_lshlrev_b32 v62, 5, v62",
        "v_mul_u32_u24 v60, 3072, v60", "v_lshl_add_u32 v60, v61, 7, v60", "v_add_u32 v60, v60, v62",
        "v_and_b32 v61, 3, v1", f"v_lshl_add_u32 v{Z_TR}, v61, 3, v60")
    k.e("v_and_b32 v60, 15, v1", "v_cmp_eq_u32 s[78:79], 0, v60")
    k.e(f"v_subrev_u32 v{Z_HE}, 16384, v{R0.XE}", f"v_subrev_u32 v{Z_HO}, 16384, v{R0.XO}",
        f"v_add_u32 v{Z_OE}, s49, v{R0.XE}", f"v_add_u32 v{Z_OO}, s49, v{R0.XO}")

def a10_loop(k, first):
    LA = P.k_look
    def sync(s, extra=()):
        k.wait(vm=[("w", s), ("x", s >> 1)] + list(extra)); k.e("s_barrier")
    nxt = [first]
    def dmas(upto):
        out = []
        while nxt[0] <= min(upto, 15):
            n = nxt[0]; nxt[0] += 1
            if n % 2 == 0: out += a10_x(k, n // 2)
            out += a10_w(k, n)
        return out
    def reads(s):
        fb = Z_XF + 24 * (s & 1); off = (s >> 1) * 1024; o = s & 1
        tr = lambda p, j: ("d", lambda: k.ds(f"ds_read_b64_tr_b16 {ar(12*s+4*p+2*j,2)}, v{Z_TR} offset:{(s%NS0)*12288 + p*1024 + j*512}", ("r", s, 0 if p == 0 else 1)))
        xr = lambda d, a, of, grp: ("d", lambda: k.ds(f"ds_read_b128 {vr(d,4)}, v{a} offset:{of}", ("r", s, grp)))
        out = [tr(0, 0), tr(0, 1)] + [xr(fb + 4*t, R0.XO if o else R0.XE, t*16384 + off, 0) for t in range(4)]
        out += [tr(1, 0), tr(1, 1), tr(2, 0), tr(2, 1), xr(fb + 16, Z_HO if o else Z_HE, off, 1), xr(fb + 20, Z_OO if o else Z_OE, off, 1)]
        return out
    l0_background(k)
    pst = pack_stores(k)
    sync(0)
    k.stamp("k0")
    run(reads(0)); run(dmas(LA - 1))
    for s in range(16):
        fb = Z_XF + 24 * (s & 1)
        c = lambda r: "0" if s == 0 else vr(r, 4)
        wq, wk, wv, one = ar(12*s, 4), ar(12*s + 4, 4), ar(12*s + 8, 4), vr(R0.ONE, 4)
        ms = [f"{MF16} {vr(z_acc(t)[0],4)}, {wq}, {vr(fb+4*t,4)}, {c(z_acc(t)[0])}" for t in range(4)]
        for t in [0, 1, 2, 3, "h"]:
            xf = vr(fb + (16 if t == "h" else 4*t), 4)
            ms.append(f"{MF16} {vr(z_acc(t)[1],4)}, {wk}, {xf}, {c(z_acc(t)[1])}")
            ms.append(f"{MF16} {vr(z_acc(t)[2],4)}, {xf}, {wv}, {c(z_acc(t)[2])}")
        ms += [f"{MF16} {vr(Z_CV,4)}, {wq}, {vr(fb+16,4)}, {c(Z_CV)}",
               f"{MF16} {vr(Z_SUM,4)}, {one}, {vr(fb+20,4)}, {c(Z_SUM)}", f"{MF16} {vr(Z_GR,4)}, {vr(fb+20,4)}, {vr(fb+20,4)}, {c(Z_GR)}",
               f"{MF16} {vr(Z_SUMH,4)}, {one}, {vr(fb+16,4)}, {c(Z_SUMH)}", f"{MF16} {vr(Z_GRH,4)}, {vr(fb+16,4)}, {vr(fb+16,4)}, {c(Z_GRH)}"]
        mains = [lambda m=m: k.e(m) for m in ms]
        if s == P.k_pack:
            k.wait(lg="all"); pack_process(k, lambda: None, lambda: None)
        k.wait(lg=[("r", s, 0)])
        streams = [(3, [("s", lambda: k.wait(lg=[("r", s, 1)]))] +
                       [("a", lambda d=d: k.e(f"v_cndmask_b32 v{fb+16+d}, v{fb+16+d}, v{R0.ONE}, s[78:79]")) for d in range(4)])]
        if s + 1 < 16:
            ex = ["pks"] if s + 1 == P.k_atom else []
            assert not ex or not pst, "arrival before the last pack store"
            assert P.k_prep > 14 - LA and (P.k_pack or 0) <= 8 - LA
            ops = [("b", lambda: sync(s + 1, ex))] + reads(s + 1)
            if ex: ops.append(("b", lambda: arrive(k)))
            streams.append((P.k_bar, ops))
            streams.append((0, dmas(s + LA)))
        n = 0; mine = []
        while pst and s >= (P.k_pack or 0) and (n < P.k_pst or pst[0][0] == "a"):
            n += pst[0][0] == "v"; mine.append(pst.pop(0))
        streams.append((P.k_pgap, mine))
        if s == P.k_prep: streams.append((6, tail_prep(k)))
        if s == P.k_touch:
            streams.append((2, [("b", lambda: k.touch(157, "p", ["s_mov_b32 s32, s53"], False) if (0, "ost", True) not in P.wt else None),
                                ("b", lambda: k.touch(158, "q", [f"s_add_u32 s32, s64, {BX1[0]}"], False) if (0, "xst", False) not in P.wt and P.x1_at == "k" else None),
                                ("b", lambda: k.touch(159, "h", h_base("s32", 0), False) if P.h_touch0 == "k" else None)]))
        if s == P.k_gb: streams.append((1, [("v", lambda t=t: k.vm(t, "gb")) for t in GB_LOADS]))
        if s == P.k_chk: streams.append((1, [("b", lambda: rendezvous(k))]))
        if s == 15 and P.k_chk < 16:
            streams.append((max(P.k_bar, 4), [("b", lambda: (k.e("s_barrier"), k.mark("xfree")))]))
        fill(k, mains, streams)
        if s in (3, 7, 11): k.stamp(f"k{s+1}")
    k.stamp("k16")
    if P.k_chk >= 16: rendezvous(k)

GB_LOADS = [f"buffer_load_dwordx4 {vr(36+4*j,4)}, v{vL16}, {SRD_WS}, s75 offen offset:{j*1024} sc1" for j in range(4)] + \
           [f"buffer_load_dword v{vP}, v172, {SRD_WS}, s77 offen offset:8 sc1"]
def arrive(k):
    k.wait(vm=["tag"])
    k.e(f"v_readfirstlane_b32 s{sTAG}, v170", f"s_cmp_eq_u32 s{sTAG}, 0", "s_cbranch_scc1 L_tag_spin ;np", "L_tag_ok: ;np")
    k.spins += ["L_tag_spin:", f"s_sub_u32 s{sBUD}, s{sBUD}, 1", "s_cbranch_scc1 L_tag_give", f"buffer_load_dword v170, v{vFA}, {SRD_DBG}, 0 offen sc1",
                "s_waitcnt vmcnt(0)", f"v_readfirstlane_b32 s{sTAG}, v170", f"s_cmp_eq_u32 s{sTAG}, 0", "s_cbranch_scc1 L_tag_spin", "s_branch L_tag_ok",
                "L_tag_give:", f"s_mov_b32 s{sBUD}, 0", "s_branch L_tag_ok"]
    k.e(f"v_mov_b32 v176, s{sTAG}", "v_not_b32 v177, v176", f"v_mov_b32 v178, s{sXCC}")
    k.vm(f"buffer_store_dwordx4 v[176:179], v171, {SRD_WS}, s75 offen sc1", "arr")

def rendezvous(k):
    chk = [f"s_not_b32 s32, s{sTAG}"]
    for j in range(4): chk += [f"v_xor_b32 v{36+4*j}, s{sTAG}, v{36+4*j}", f"v_xor_b32 v{37+4*j}, s32, v{37+4*j}"]
    chk += ["v_or3_b32 v36, v36, v37, v40", "v_or3_b32 v44, v44, v45, v41", "v_or3_b32 v36, v36, v48, v49", "v_or_b32 v36, v36, v44", "v_cmp_ne_u32 vcc, 0, v36"]
    k.wait(vm=["gb"])
    k.e(*chk); k.e("s_cbranch_vccnz L_gb_spin ;np", "L_gb_ok: ;np")
    k.spins += ["L_gb_spin:", f"s_sub_u32 s{sBUD}, s{sBUD}, 1", "s_cbranch_scc1 L_gb_give", "s_sleep 2",
                f"buffer_load_dword v170, v{vFA}, {SRD_DBG}, 0 offen sc1", "s_waitcnt vmcnt(0)", "v_readfirstlane_b32 s32, v170", f"s_cmp_eq_u32 s32, s{sTAG}",
                "s_cbranch_scc1 L_gb_same", f"s_mov_b32 s{sTAG}, s32", f"v_mov_b32 v176, s{sTAG}", "v_not_b32 v177, v176",
                f"buffer_store_dwordx4 v[176:179], v171, {SRD_WS}, s75 offen sc1", "L_gb_same:"] + GB_LOADS + ["s_waitcnt vmcnt(0)"] + chk + \
               ["s_cbranch_vccnz L_gb_spin", "s_branch L_gb_ok", "L_gb_give:", f"s_mov_b32 s{sBUD}, 0", "s_branch L_gb_ok"]
    k.e(f"v_cmp_ne_u32 vcc, s{sXCC}, v{vP}", "s_and_b32 s99, vcc_lo, 0xffff" if not P.safe else "s_and_b32 s99, 1, 1",
        f"s_cselect_b32 s{sML}, {OOB>>1:#x}, 0", f"s_cselect_b32 s{sMS}, 0, {OOB>>1:#x}")
    k.mark("gb")

W_OA, W_UA, W_SA, W_RB = 152, 154, 155, 156
def wo_bases(k):
    k.e(f"s_lshl_b32 s32, s{sB}, 2", f"s_add_u32 s32, s32, s{sW}", "s_lshl_b32 s64, s32, 14", f"s_lshl_b32 s33, s{sCS}, 10", "s_add_u32 s64, s64, s33",
        "s_lshr_b32 s32, s32, 1", "s_lshl_b32 s80, s32, 15", "s_lshl_b32 s65, s32, 11", "s_lshl_b32 s66, s32, 3", f"s_add_u32 s66, s66, s{sCS}", "s_lshl_b32 s66, s66, 1",
        f"s_and_b32 s32, s{sW}, 1", "s_add_u32 s66, s66, s32", "s_lshl_b32 s66, s66, 2", "s_lshl_b32 s32, s32, 8", "s_add_u32 s80, s80, s32", "s_add_u32 s65, s65, s32",
        f"s_lshr_b32 s32, s{sCS}, 1", "s_lshl_b32 s32, s32, 9", "s_add_u32 s65, s65, s32", f"s_and_b32 s32, s{sCS}, 1", "s_lshl_b32 s32, s32, 3", "s_add_u32 s65, s65, s32")
def wo_lanes(k):
    x, y = 66, 67
    return [lambda t=t: k.e(*t) for t in (
        [f"v_and_b32 v{x}, 15, v1"], [f"v_lshrrev_b32 v{y}, 4, v1"], [f"v_lshlrev_b32 v{W_OA}, 4, v{x}"], [f"v_lshl_add_u32 v{W_SA}, v{y}, 2, v{W_OA}"],
        [f"v_lshl_add_u32 v{W_OA}, v{y}, 9, v{W_OA}"], [f"v_and_b32 v{W_UA}, 7, v1"], [f"v_lshlrev_b32 v{W_UA}, 4, v{W_UA}"], [f"v_lshl_add_u32 v{W_UA}, v{y}, 7, v{W_UA}"],
        [f"v_lshrrev_b32 v{x}, 3, v{x}"], [f"v_lshl_add_u32 v{W_UA}, v{x}, 13, v{W_UA}"], [f"v_add_u32 v{W_RB}, {6*16384}, v{vL16}"],
        ["v_cmp_gt_u32 vcc, 32, v1", f"v_mov_b32 v{y}, {OOB:#x}", f"v_cndmask_b32 v{W_SA}, v{y}, v{W_SA}, vcc"])]
def blanks(k, layer):
    if not P.tags: return [lambda: k.mark("blank")]
    z = 66
    return [lambda: (k.e(f"v_mov_b32 v{z}, -1"), k.dstore(f"buffer_store_dword v{z}, v{vL16}, {SRD_WS}, s53 offen", "blank")),
            lambda: (k.e(f"s_add_u32 s58, s64, {BX1[layer]}"), k.dstore(f"buffer_store_dword v{z}, v{W_UA}, {SRD_WS}, s58 offen", "blank")),
            lambda: k.dstore(f"buffer_store_dword v{z}, v{W_UA}, {SRD_WS}, s58 offen offset:512", "blank"),
            lambda: (k.e(f"s_add_u32 s58, s65, {BS1[layer]}"), k.dstore(f"buffer_store_dword v{z}, v{W_SA}, {SRD_WS}, s58 offen", "blank"), k.mark("blank"))]
def wo_prepoll(k, layer):
    k.poll_addr(A_PA, 32)
    k.e(f"s_lshl_b32 s32, s{sB}, 7", f"s_add_u32 s{sPO}, s32, {fl(layer, FL_O)}", *o_block("s59", layer), "s_and_b32 s32, s80, 0xffff", "s_add_u32 s59, s59, s32")
    k.bg_held = True
    k.poll_issue(A_PA, "po1"); k.mark("po1")

def dna(k): return regloads(k, sDS, 0, lambda j: ar(192 + 4*j, 4), 16, "dna")

def tail_prep(k):
    R = R0
    A = lambda *t: [("a", lambda x=x: k.e(x)) for x in t]
    B = lambda *t: [("b", lambda: k.e(*t))]
    ops = A("v_and_b32 v73, 15, v1", "v_lshrrev_b32 v74, 4, v1", "v_lshlrev_b32 v73, 10, v73", "v_lshl_add_u32 v73, v74, 4, v73")
    ops += B(f"s_lshl_b32 s58, s{sB}, 2", f"s_add_u32 s58, s58, s{sW}", "s_lshl_b32 s58, s58, 14", f"s_lshl_b32 s59, s{sCS}, 7", "s_add_u32 s58, s58, s59")
    ops += [("v", lambda p=p: k.vm(f"buffer_load_dwordx4 {vr(RES+4*p,4)}, v73, {SRD_X}, s58 offen offset:{p*64}", "res")) for p in range(2)]
    ops += A("v_and_b32 v75, 3, v1", "v_cmp_eq_u32 s[34:35], 1, v75", "v_cmp_eq_u32 s[36:37], 2, v75", "v_cmp_eq_u32 s[38:39], 3, v75", "v_bfe_u32 v75, v1, 2, 2")
    ops += B("v_cmp_eq_u32 vcc, v75, v74", f"v_mov_b32 v72, {L_SA0 + 768}", f"s_lshl_b32 s59, s{sW}, 7", f"v_add_u32 v74, s59, v{R.SA}",
             "v_cndmask_b32 v74, v72, v74, vcc", f"v_cndmask_b32 v75, v72, v{R.SA}, vcc")
    return ops + [("a", f) for f in wo_lanes(k)]

def l0_background(k):
    k.per = dict(P.per_k)
    dd = dna(k)
    bg_list(k, dd[:P.dna_first], "s4", "dna", "gb")
    bg_list(k, wow(k), "s4", "wow", "xfree")
    bg_batches(k, [0, 1, 2, 3], "s2", lambda b: "xfree")
    bg_batches(k, [4], "s2", lambda b: "wobar")
    bg_batches(k, [5], "s2", lambda b: "xfree")
    bg_batches(k, [6, 7, 8, 9], "s2", lambda b: "gubar")
    bg_list(k, dd[P.dna_first:], "s4", "dna")
P.per_k = {"s2": 90, "s4": 70}

def a10_tail(k):
    R = R0
    k.per = dict(P.per_tail0)
    k.stamp("t0 gb")
    xt = [lambda: k.touch(72, "t", [f"s_add_u32 s32, s65, {BS1[0]}"])]
    if P.x1_at != "k": xt.append(lambda: k.touch(158, "q", [f"s_add_u32 s32, s64, {BX1[0]}"]))
    if (0, "xst", False) in P.wt: xt = []
    if P.x1_at == "k":
        for f in xt: f()
    k.bg_burst(P.tail_burst); k.bg_next = k.t + P.tail_delay
    hk, hv = z_acc("h")[1], z_acc("h")[2]
    for r in range(4):
        k.e(f"v_mov_b32_dpp v{CSQ+r}, v{Z_CV+r} row_newbcast:0 row_mask:0xf bank_mask:0xf", f"v_mov_b32_dpp v{CSK+r}, v{hk+r} row_newbcast:0 row_mask:0xf bank_mask:0xf")
    k.e(f"v_mov_b32 v{CSV}, v{hv}", f"v_mov_b32 v45, v{hv}", f"v_permlane16_swap_b32 v{CSV}, v45", f"v_mov_b32 v45, v{CSV}", f"v_permlane32_swap_b32 v{CSV}, v45")
    fa = Flex(); fb = Flex()
    for fx, S, G, ad, off in ((fa, Z_SUM, Z_GR, 74, 128), (fb, Z_SUMH, Z_GRH, 75, 0)):
        a = lambda txt, c=1, fx=fx: fx.add(lambda: k.e(txt), c)
        a(f"v_cndmask_b32 v{S+1}, v{G}, v{G+1}, s[34:35]"); a(f"v_cndmask_b32 v{S+1}, v{S+1}, v{G+2}, s[36:37]"); a(f"v_cndmask_b32 v{S+1}, v{S+1}, v{G+3}, s[38:39]")
        ln_finish(a, S, S + 1); a(f"v_rsq_f32 v{S+1}, v{S+1}"); fx.skip(1)
        fx.add(lambda S=S, ad=ad, off=off: k.ds(f"ds_write_b64 v{ad}, {vr(S,2)} offset:{off}", "saw"))
    drain([fa, fb], k)
    for f in blanks(k, 0): f()
    k.wait(lg="all"); k.e("s_barrier"); k.mark("xfree")
    k.stamp("t0 bar")
    fx = Flex(); f1 = Flex(); f2 = Flex()
    od = (2, 1, 3, 0, "h"); Ss = (A_STA, 56)
    for f in fix_reads(k, R, od[0], Ss[0]): f()
    for n, t in enumerate(od):
        fix(k, R, fx, t, z_acc(t), 0, True, Ss[n & 1], True, fix_reads(k, R, od[n + 1], Ss[~n & 1]) if n < 4 else ()); fx.skip(1)
    attn(k, R, f1, 2, R.ATT[0]); attn(k, R, f2, 3, R.ATT[1]); ostore(k, f2, 1)
    attn(k, R, f1, 1, R.ATT[0]); attn(k, R, f2, 0, R.ATT[1]); ostore(k, f2, 0)
    f4 = Flex()
    if P.x1_at != "k":
        f4.dep(P.x1_at)
        for f in xt: f4.add(f)
    f3 = Flex(); f3.dep(("ost", 1))
    for _ in range(P.l0_flag_delay): f3.skip(1)
    f3.add(lambda: (k.wait(vm=[("ost", 1)]), k.flag(1, 89), k.mark("oflag1")))
    f3.dep(("attn", 0)); f3.add(lambda: wo_prepoll(k, 0))
    drain([fx, f1, f2, f3, f4], k)
    k.stamp("a1 end")
P.x1_at = 'k'; P.tail_burst = 2; P.tail_delay = 0; P.l0_flag_delay = 6; P.dna_first = 2
P.per_tail0 = {"s2": 70, "s4": 45}

def a11_bases(k):
    out = []
    S = lambda *t: out.extend(lambda x=x: k.e(x) for x in t)
    S(f"s_lshr_b32 s70, s{sW}, 1", "s_lshl_b32 s49, s70, 13", f"s_and_b32 s71, s{sW}, 1", "s_lshl_b32 s71, s71, 2",
      f"s_add_u32 s50, s71, s{sROT}", "s_lshl_b32 s71, s71, 10")
    for i in range(4):
        S(f"s_add_u32 s70, s50, {i}", "s_and_b32 s70, s70, 7", "s_lshl_b32 s70, s70, 10", "s_add_u32 s70, s70, s49", f"s_sub_u32 s{92+i}, s70, {i*1024}")
    S("s_add_u32 s49, s49, s71", f"s_lshl_b32 s47, s{sB}, 16", f"s_add_u32 s47, s47, {BX2()}")
    S(f"s_sub_u32 s48, s{sB}, 1", "s_max_i32 s48, s48, 0", "s_lshl_b32 s51, s48, 10", f"s_add_u32 s51, s51, {WS_HST}",
      "s_lshl_b32 s52, s48, 11", f"s_add_u32 s52, s52, {WS_HXF}", "s_lshl_b32 s48, s48, 14", f"s_add_u32 s48, s48, {WS_HALO}")
    S("v_lshrrev_b32 v28, 4, v1", "v_and_b32 v29, 15, v1", "v_lshlrev_b32 v29, 4, v29", f"v_lshl_add_u32 v{A_U}, v28, 9, v29", f"v_lshl_add_u32 v{A_U+1}, v28, 8, v29")
    S(f"s_lshl_b32 s70, s{sB}, 12", f"s_and_b32 s71, s{sW}, 1", "s_lshl_b32 s71, s71, 8", "s_add_u32 s70, s70, s71", f"s_add_u32 s90, s70, {BS2()}")
    out.append(lambda: k.e(f"s_lshl_b32 s70, s{sB}, 1", f"s_add_u32 s70, s70, s{sW}", "s_lshl_b32 s72, s70, 13", f"s_lshl_b32 s71, s{sCS}, 10", "s_add_u32 s72, s72, s71",
        f"s_add_u32 s72, s72, {WS_HALO - 16384}", f"s_cmp_ge_u32 s{sW}, 2", f"s_cselect_b32 s72, s72, {OOB>>1:#x}"))
    out.append(lambda: k.e(f"s_lshl_b32 s73, s{sB}, 10", f"s_lshr_b32 s71, s{sCS}, 1", "s_lshl_b32 s71, s71, 8", "s_add_u32 s73, s73, s71", f"s_and_b32 s71, s{sCS}, 1",
        "s_lshl_b32 s71, s71, 3", "s_add_u32 s73, s73, s71"))
    out.append(lambda: k.e(f"s_lshl_b32 s71, s{sW}, 7", "s_add_u32 s73, s73, s71", f"s_add_u32 s73, s73, {WS_HST - 256}",
        f"s_cmp_ge_u32 s{sW}, 2", f"s_cselect_b32 s73, s73, {OOB>>1:#x}"))
    out.append(lambda: k.e(f"s_lshl_b32 s70, s{sB}, 3", f"s_add_u32 s70, s70, s{sCS}", "s_lshl_b32 s70, s70, 1", f"s_add_u32 s70, s70, s{sW}", "s_lshl_b32 s70, s70, 7",
        f"s_add_u32 s70, s70, {WS_HXF - 256}", f"s_cmp_ge_u32 s{sW}, 2", f"s_cselect_b32 s91, s70, {OOB>>1:#x}"))
    return out

def a11_x(k, tile):
    fns = []
    for i in range(4):
        def f(i=i):
            k.set_m0(f"s_add_u32 m0, s49, {A11_POS[tile]*16384}")
            k.e(f"s_add_u32 s32, s{48 if tile == 'h' else 47}, s{92+i}")
            if tile not in (0, "h"): k.e(f"s_add_u32 s32, s32, {tile*16384}")
            k.vm(f"buffer_load_dwordx4 v{vL16}, {SRD_WS}, s32 offen offset:{i*1024} sc1 lds", ("x", tile))
        fns.append(f)
    return fns

def stats_path(k, fx, S, tag, addr, tok, at=0):
    a = lambda txt, c=1: fx.add(lambda: k.e(txt), c)
    s, q = S, S + 1
    fx.add(lambda: k.wait(vm=[tag]), 1, at)
    a(f"v_add_f32 v{s}, v{s}, v{S+2}"); a(f"v_add_f32 v{q}, v{q}, v{S+3}"); fx.skip(1)
    a(f"v_permlane16_swap_b32 v{s}, v{q}", 2); a(f"v_add_f32 v{s}, v{s}, v{q}"); a(f"v_mov_b32 v{q}, v{s}"); fx.skip(1)
    a(f"v_permlane32_swap_b32 v{s}, v{q}", 2); a(f"v_add_f32 v{s}, v{s}, v{q}"); a(f"v_mov_b32 v{q}, v{s}"); fx.skip(1)
    a(f"v_permlane16_swap_b32 v{s}, v{q}", 2)
    ln_finish(a, s, q); a(f"v_rsq_f32 v{q}, v{q}", 2); fx.skip(1)
    fx.add(lambda: (k.ds(f"ds_write_b64 v{addr}, {vr(s,2)} offset:{tok*8}", ("saw", tag)), k.mark(("saw", tag))))

def a11_early(k, later=False):
    fns = a11_x(k, A11_ORDER[0]) + [lambda: k.vm(f"buffer_load_dwordx4 {vr(A_ST,4)}, v{A_U}, {SRD_WS}, s90 offen offset:2048 sc1", "st0")] + a11_x(k, A11_ORDER[1])
    if later: return fns
    for f in fns: f()

def a11_main(k):
    R = R1; order = A11_ORDER
    steps = [(t, s) for t in order for s in range(16)]
    accof = lambda t: A_ACC + 12 * (order.index(t) % 3)
    def xread(i):
        t, s = steps[i]
        off = A11_POS[t] * 16384 + (s >> 1) * 1024
        k.ds(f"ds_read_b128 {vr(A_XF+4*(i%4),4)}, v{R.XO if s&1 else R.XE} offset:{off}", ("xf", i))
    mains = []; fixed = {}; gap_of = {}
    need_sa = {order[1]: ["st0"], order[2]: ["st1"], order[3]: [], "h": []}
    for i, (t, s) in enumerate(steps):
        acc = accof(t); xf = vr(A_XF + 4*(i % 4), 4)
        c = lambda r, s=s: "0" if s == 0 else vr(r, 4)
        ms = []
        if t != "h": ms.append(f"{MF16} {vr(acc,4)}, {ar(12*s,4)}, {xf}, {c(acc)}")
        ms.append(f"{MF16} {vr(acc+4,4)}, {ar(12*s+4,4)}, {xf}, {c(acc+4)}")
        ms.append(f"{MF16} {vr(acc+8,4)}, {xf}, {ar(12*s+8,4)}, {c(acc+8)}")
        gap_of[(t, s)] = len(mains)
        for m in ms: mains.append(lambda m=m: k.e(m))
        last = len(mains) - 1
        fl_ = fixed.setdefault(last, [])
        if i + 1 < len(steps): fl_.append((0, lambda i=i: k.wait(lg=[("xf", i + 1)])))
        j = i + 4
        if j < len(steps):
            tj, sj = steps[j]
            if sj == 0:
                def bar(tj=tj):
                    k.wait(vm=[("x", tj)], lg=[("saw", n) for n in need_sa[tj]]); k.e("s_barrier"); k.mark(("bar", tj))
                fixed.setdefault(gap_of[(t, s)], []).append((1, bar))
            fixed[last].append((1, lambda j=j: xread(j)))
    fx = Flex(); fz = Flex(); fz2 = Flex(); fy = Flex(); fm = Flex()
    k.e(f"s_and_b32 s32, s{sW}, 1", "s_lshl_b32 s32, s32, 7", f"v_add_u32 v7, s32, v{R.SA}")
    o_bases(k, 1)
    stats_path(k, fy, A_ST, "st0", 7, 48)
    g1 = P.a1_late_gap
    fm.add(lambda: (k.wait(vm=[("xst", 1)]), k.flag(2)), 3, P.a1_flag_gap)
    fm.add(lambda: (k.poll_issue(A_PX, "px2"), setattr(k, "bg_held", not P.a1_bg_early)), 1, g1 - P.a1_poll_lead)
    fm.add(lambda: k.poll_check(A_PX, "px2", 2), 2, g1)
    fm.add(lambda: k.vm(f"buffer_load_dwordx4 {vr(56,4)}, v{A_U}, {SRD_WS}, s90 offen sc1", "st1"))
    for t in order[2:4]:
        for f in a11_x(k, t): fm.add(f, 2); fm.skip(P.a1_xgap)
    for f in wo_lanes(k): fy.add(f)
    fy.add(lambda: k.mark("wolanes"), 0)
    fm.dep("wolanes")
    fm.add(lambda: k.e(f"s_add_u32 s58, s64, {BX2()}"))
    for p in range(2): fm.add(lambda p=p: k.vm(f"buffer_load_dwordx4 {vr(RES+4*p,4)}, v{W_UA}, {SRD_WS}, s58 offen offset:{p*512} sc1", "res")); fm.skip(P.a1_xgap)
    def halo_poll():
        k.poll_addr(A_PX, 16, 7)
        k.e(f"s_mov_b32 s{sPO}, s52", f"s_min_u32 s50, s{sB}, 1")
        k.poll_issue(A_PX, "phx"); k.bg_held = False
    fm.add(halo_poll, 3)
    for c in P.t1_a1:
        if c == "o": fm.add(lambda: k.touch(60, "p", ["s_mov_b32 s32, s53"]), 6)
        if c == "x": fm.add(lambda: k.touch(62, "q", [f"s_add_u32 s32, s64, {BX1[1]}"]), 6)
        if c == "s": fm.add(lambda: k.touch(64, "t", [f"s_add_u32 s32, s65, {BS1[1]}"]), 4)
    for f in blanks(k, 1): fm.skip(P.a1_xgap); fm.add(f, 3)
    stats_path(k, fy, 56, "st1", 7, 16, g1 + 26)
    fm.dep(("bar", order[2]))
    fm.add(lambda: k.poll_check(A_PX, "phx", "s50"), 2)
    fm.add(lambda: k.vm(f"buffer_load_dwordx4 {vr(A_ST,4)}, v{A_U+1}, {SRD_WS}, s51 offen sc1", "sth"))
    for f in a11_x(k, "h"): fm.add(f, 2); fm.skip(P.a1_xgap)
    stats_path(k, fy, A_ST, "sth", R.SA, 0, gap_of[(order[3], P.a1_sth)])
    k.per = dict(P.per_a1); k.bg_held = True
    b5 = batch(k, 5)
    mix = [(f, "s2", ("gw", 4), None) for f in batch(k, 4)] + [(f, "s2", ("gw", 5), None) for f in b5[:3]]
    ww = [(f, "s4", "wow", None) for f in wow(k)]
    while mix or ww:
        k.bg += ww[:2]; ww = ww[2:]
        if mix: k.bg.append(mix.pop(0))
    bg_batches(k, [0], "s2", lambda b: ("bar", order[3]))
    bg_batches(k, [1], "s2", lambda b: ("bar", "h"))
    bg_batches(k, [2, 3], "s2", lambda b: "wobar")
    bg_list(k, b5[3:], "s2", ("gw", 5), "wobar")
    if P.dn1_agpr:
        for j, f in enumerate(regloads(k, sDS, 16*1024, lambda j: ar(4*j, 4), 40, "dnr", tagf=lambda j: ("dnr", 8 + j // 2))): k.bg_add(f, "s4", ("dnr", 8 + j // 2), "gemm_done")
    bg_batches(k, [6, 7, 8, 9], "s2", lambda b: "gubar")
    A = lambda t: (accof(t) if t != "h" else None, accof(t) + 4, accof(t) + 8)
    for n in range(4): fix(k, R, fx, order[n], A(order[n]), gap_of[(order[n + 1], 1 if n < 3 else 2)], False)
    attn(k, R, fz, 3, R.ATT[0]); attn(k, R, fz2, 2, R.ATT[1]); ostore(k, fz2, 1)
    attn(k, R, fz, 1, R.ATT[0])
    fx.dep(("saw", "sth"))
    for f in fix_reads(k, R, "h", A_STA): fx.add(f)
    fx.dep("gemm_done")
    fix(k, R, fx, "h", A("h"), 0, False, pre=True); attn(k, R, fz2, 0, R.ATT[1]); ostore(k, fz2, 0)
    f3 = Flex(); f3.dep(("ost", 1)); f3.skip(P.l1_flag_delay)
    f3.add(lambda: (k.wait(vm=[("ost", 1)]), k.flag(1, 89), k.mark("oflag1")), 3)
    f3.dep(("attn", 0)); f3.add(lambda: wo_prepoll(k, 1))
    k.wait(vm=[("x", order[0])]); k.e("s_barrier")
    for i in range(4): xread(i)
    k.wait(lg=[("xf", 0)])
    k.stamp("a1 first")
    if k.stamping:
        for t in order[1:]: fixed.setdefault(gap_of[(t, 0)], []).append((0, lambda t=t: k.stamp(f"a1 t{t}")))
        for g in range(6, 224, 12): fixed.setdefault(g, []).append((0, lambda g=g: k.stamp(f"fina {g}")))
    run_gaps(k, mains, fixed, [fm, f3, fy, fx, fz2, fz], 2, over=lambda i: i >= P.a1_over)
    print("a11 left:", len(fm), len(fy), len(fx), len(fz), len(fz2), len(k.bg), {n: g for n, g in k.marks.items() if isinstance(n, tuple) and n[0] in ("fix", "attn", "saw", "ost")})
    k.mark("gemm_done"); k.bg_held = P.a1_tailhold
    k.stamp("a1 gemm")
    drain([fm, fy, fx, fz, fz2, f3], k)
    for n in range(2): assert k.marks[("fix", order[n])] < gap_of[(order[n + 3], 0)], "accumulator reused too early"
    k.stamp("a1 end")
P.a1_flag_gap, P.a1_late_gap, P.a1_poll_lead, P.l1_flag_delay, P.a1_over = 8, 36, 18, 14, 48
P.a1_bg_early = False; P.a1_salead = 8; P.a1_tailhold = True; P.touch1 = 1; P.t1_a1 = ''; P.t1_dn = ''; P.a1_xgap = 3; P.a1_sth = 4
P.per_a1 = {"s2": 80, "s4": 50}

R_W0, R_W1, R_RD, R_ST, R_OUT = 3, 4, 5, 6, 7
def red_setup(k, posA, dAB):
    x, y, z, u = 28, 29, 30, 31
    k.e(f"s_add_u32 s32, s{sGL}, {posA*16384}", f"v_add_u32 v{R_W0}, s32, v{vL16}", f"v_xor_b32 v{R_W1}, 128, v{R_W0}")
    k.e(f"v_and_b32 v{x}, 7, v1", f"v_lshrrev_b32 v{y}, 3, v1", f"s_lshl_b32 s32, s{sW}, 7", f"v_lshl_add_u32 v{z}, v{x}, 4, s32",
        f"v_bfe_u32 v{u}, v1, 4, 1", f"v_lshlrev_b32 v{R_RD}, 7, v{u}", f"v_xor_b32 v{z}, v{z}, v{R_RD}",
        f"v_bfe_u32 v{R_RD}, v1, 3, 2", f"v_lshl_add_u32 v{z}, v{R_RD}, 10, v{z}", f"v_lshrrev_b32 v{R_RD}, 5, v1",
        f"v_mul_u32_u24 v{R_RD}, {dAB*16384}, v{R_RD}", f"v_add_u32 v{z}, v{z}, v{R_RD}", f"v_add_u32 v{R_RD}, {posA*16384}, v{z}")
    k.e(f"v_lshlrev_b32 v{z}, 4, v{x}", f"v_lshl_add_u32 v{z}, v{u}, 2, v{z}", f"v_and_b32 v{u}, 0x28, v1",
        f"v_cmp_eq_u32 vcc, 0, v{u}", f"v_mov_b32 v{u}, {OOB:#x}", f"v_cndmask_b32 v{R_ST}, v{u}, v{z}, vcc")
    k.e(f"v_lshlrev_b32 v{z}, 10, v{x}", f"v_lshl_add_u32 v{R_OUT}, v{y}, 4, v{z}")

def red_bases(k):
    k.e(f"s_lshl_b32 s32, s{sB}, 3", f"s_add_u32 s32, s32, s{sW}", "s_lshl_b32 s55, s32, 13", f"s_lshl_b32 s33, s{sCS}, 10", "s_add_u32 s55, s55, s33")
    k.e("s_lshl_b32 s57, s32, 13", f"s_lshl_b32 s33, s{sCS}, 7", "s_add_u32 s57, s57, s33")
    k.e(f"s_lshl_b32 s56, s{sB}, 12", f"s_lshr_b32 s33, s{sCS}, 1", "s_lshl_b32 s33, s33, 9", "s_add_u32 s56, s56, s33",
        f"s_and_b32 s33, s{sCS}, 1", "s_lshl_b32 s33, s33, 3", "s_add_u32 s56, s56, s33", f"s_lshl_b32 s33, s{sW}, 7", "s_add_u32 s56, s56, s33")

def red_writes(k, acc, g, off, dAB):
    return [lambda q=q: k.ds(f"ds_write_b128 v{R_W1 if (q>>1)&1 else R_W0}, {vr(acc+4*q,4)} offset:{off + (q>>2)*dAB*16384 + (q&3)*1024}", ("rw", g)) for q in range(8)]
def red_reads(k, g, T, off):
    return [lambda w=w, hf=hf: k.ds(f"ds_read_b128 {vr(T+8*w+4*hf,4)}, v{R_RD} offset:{off + w*4096 + hf*512}", ("rr", g, w)) for w in range(4) for hf in range(2)]

def red_finish(k, fx, g, mm, T, xdst, stdst, final, pk):
    a = lambda txt, c=1: fx.add(lambda: k.e(txt), c)
    R = RES + 4 * mm
    def add8(d, s):
        if pk:
            for i in range(0, 8, 2): a(f"v_pk_add_f32 {vr(d+i,2)}, {vr(d+i,2)}, {vr(s+i,2)}")
        else:
            for i in range(8): a(f"v_add_f32 v{d+i}, v{d+i}, v{s+i}")
    fx.add(lambda: k.wait(lg=[("rr", g, 1)]))
    add8(T, T + 8)
    for i in range(4): a(f"v_lshlrev_b32 v{T+8+2*i}, 16, v{R+i}"); a(f"v_and_b32 v{T+9+2*i}, 0xffff0000, v{R+i}")
    add8(T, T + 8)
    fx.add(lambda: k.wait(lg=[("rr", g, 3)]))
    add8(T + 16, T + 24); add8(T, T + 16)
    for i in range(4): a(f"v_cvt_pk_bf16_f32 v{R+i}, v{T+2*i}, v{T+2*i+1}")
    if final:
        fx.add(lambda: (k.e(f"s_add_u32 s32, s57, {mm*32768}"), k.vm(f"buffer_store_dwordx4 {vr(R,4)}, v{R_OUT}, {SRD_OUT}, s32 offen {P.outm[g]}", ("xst", g))))
        return
    fx.add(lambda: (k.e(f"s_add_u32 s32, s55, {xdst + mm*32768}"), k.dstore(f"buffer_store_dwordx4 {vr(R,4)}, v{vL16}, {SRD_WS}, s32 offen", ("xst", g))), 2)
    s, q = T + 32, T + 33
    a(f"v_add_f32 v{s}, v{T}, v{T+1}"); a(f"v_mul_f32 v{q}, v{T}, v{T}"); a(f"v_fmac_f32 v{q}, v{T+1}, v{T+1}")
    for i in range(2, 8): a(f"v_add_f32 v{s}, v{s}, v{T+i}"); a(f"v_fmac_f32 v{q}, v{T+i}, v{T+i}")
    fx.skip(1)
    a(f"v_add_f32_dpp v{s}, v{s}, v{s} row_ror:8 row_mask:0xf bank_mask:0xf"); a(f"v_add_f32_dpp v{q}, v{q}, v{q} row_ror:8 row_mask:0xf bank_mask:0xf")
    fx.skip(1)
    a(f"v_permlane16_swap_b32 v{s}, v{q}", 2); a(f"v_add_f32 v{s}, v{s}, v{q}"); a(f"v_mov_b32 v{q}, v{s}"); fx.skip(1)
    a(f"v_permlane32_swap_b32 v{s}, v{q}", 2); a(f"v_add_f32 v{s}, v{s}, v{q}")
    fx.add(lambda: (k.e(f"s_add_u32 s32, s56, {stdst + mm*2048}"), k.dstore(f"buffer_store_dword v{s}, v{R_ST}, {SRD_WS}, s32 offen", ("xst", g)), k.mark(("xst", g))), 2)

def merge(k, fx, extra, first=0):
    extra = list(extra)
    items = [it for it in fx.items if it[0] != "skip"]; fx.items = []
    per = max(1, (len(items) - first) // max(1, len(extra)))
    for n, it in enumerate(items):
        if n >= first and (n - first) % per == 0 and extra: extra.pop(0)()
        it[1](); k.bg_step()
    for f in extra: f(); k.bg_step()

def wo(k, layer):
    BF, WQ, ACC, T, PA, NQ = 32, 160, 192, 208, A_PA, 8
    state = {}
    def bload(sx):
        k.set_s(f"s_add_u32 s58, s59, {(sx & ~1)*2048}")
        k.vm(f"buffer_load_dwordx4 {vr(BF+4*sx,4)}, v{W_OA}, {SRD_WS}, s58 offen offset:{(sx%2)*2048} sc1", ("b", sx))
    def wread(n): k.ds(f"ds_read_b128 {vr(WQ+4*(n%NQ),4)}, v{W_RB} offset:{n*1024}", ("wq", n))
    k.wait(vm=["wow"]); k.e("s_barrier"); k.mark("wobar")
    k.stamp("wl bar")
    for n in range(NQ): wread(n)
    btxt = lambda sx: [f"s_add_u32 s99, s59, {sx*2048}", f"buffer_load_dwordx4 {vr(BF+4*sx,4)}, v{W_OA}, {SRD_WS}, s99 offen sc1"]
    bchk = lambda sx: k.valid([f"v_cmp_eq_u32 vcc, -1, v{BF+4*sx}"], btxt(sx))
    ptxt = f"buffer_load_dword v{T+20}, v{T+21}, {SRD_WS}, s59 offen sc1"
    if P.tags:
        k.e(f"v_lshlrev_b32 v{T+21}, 8, v{PA}")
        k.e(f"v_or_b32 v{T+21}, v{T+21}, v{PA}", f"v_and_b32 v{T+21}, 0x80007c00, v{T+21}")
        k.poll_check(PA, "po1", 1)
        k.vm(ptxt, "probe")
        for sx in range(P.wo_spec): bload(sx)
        k.e(f"s_lshl_b32 s32, s{sC}, 1", f"s_and_b32 s33, s{sW}, 1", "s_add_u32 s32, s32, s33", "s_lshl_b32 s32, s32, 7", f"s_add_u32 s{sPO}, s32, {fl(layer, FL_O)}")
    else:
        k.e(f"s_add_u32 s{sFO}, s66, {fl(layer, FL_X1)}")
        k.codepf(96)
        if P.wo_setup_first == 2: gu_setup(k, layer)
        k.wait(vm=[("ost", 0)]); k.stamp("wl ack"); k.flag(2, 89)
        k.e(f"s_cmp_lt_u32 s{sW}, 2", f"s_cbranch_scc1 L_wo_late{layer}")
        q0 = list(k.vmq)
        k.poll_check(PA, "po1", 1)
        for sx in range(P.wo_lead): bload(sx)
        if P.wo_setup_first == 1: gu_setup(k, layer)
        k.e(f"s_branch L_wo_join{layer}")
        k.label(f"L_wo_late{layer}")
        k.vmq = list(q0)
        if P.wo_setup_first == 1: gu_setup(k, layer)
        k.poll_issue(PA, "po2"); k.poll_wait(PA, "po2", 2, 157); k.stamp("wl go")
        for sx in range(P.wo_lead): bload(sx)
        k.label(f"L_wo_join{layer}")
    if P.tags or not P.wo_setup_first: gu_setup(k, layer)
    k.stamp("wo issued")
    mains = []; fixed = {}
    for n in range(64):
        sx, j = divmod(n, 4)
        mains.append(lambda n=n, sx=sx, j=j: k.e(f"{MF16} {vr(ACC+4*j,4)}, {vr(WQ+4*(n%NQ),4)}, {vr(BF+4*sx,4)}, {'0' if sx == 0 else vr(ACC+4*j,4)}"))
        fl_ = fixed.setdefault(n, [])
        if n < 63: fl_.append((0, lambda n=n: k.wait(vm=[("b", (n + 1) // 4)] if (n + 1) % 4 == 0 else None, lg=[("wq", n + 1)])))
        if P.tags and n < 63 and (n + 1) % 4 == 0: fl_.append((1, lambda n=n: bchk((n + 1) // 4)))
        if P.tags and n == 42: fl_.append((1, lambda: k.poll_issue(PA, "px1")))
        if n + NQ < 64: fl_.append((1, lambda n=n: wread(n + NQ)))
        if n % P.wo_bstep == 0 and P.wo_lead + n // P.wo_bstep < 16: fl_.append((1, lambda n=n: bload(P.wo_lead + n // P.wo_bstep)))
    fx = Flex()
    a = lambda txt, c=1, at=0: fx.add(lambda: k.e(txt), c, at)
    fx.add(lambda: k.wait(vm=["res"]), 1, 8)
    for i in range(8): a(f"v_lshlrev_b32 v{T+2*i}, 16, v{RES+i}"); a(f"v_and_b32 v{T+2*i+1}, 0xffff0000, v{RES+i}")
    k.per = dict(P.per_wo[layer]); k.bg_held = False; k.bg_next = k.t + P.wo_bg_delay
    if P.tags:
        k.wait(vm=["probe"])
        k.valid([f"v_cmp_eq_u32 vcc, -1, v{T+20}"], [ptxt] + sum([btxt(x) for x in range(P.wo_spec)], []))
        state["fresh"] = True
        for sx in range(P.wo_spec, P.wo_lead): bload(sx)
    k.wait(vm=[("b", 0)], lg=[("wq", 0)])
    if P.tags: bchk(0)
    k.stamp("wo first")
    fixed[P.wo_bg_stop].append((0, lambda: setattr(k, "bg_held", True)))
    run_gaps(k, mains, fixed, [fx], 2)
    drain([fx], k)
    k.stamp("wo gemm")
    for i in range(0, 16, 2): k.e(f"v_pk_add_f32 {vr(T+i,2)}, {vr(T+i,2)}, {vr(ACC+i,2)}")
    k.e(f"s_add_u32 s58, s64, {BX1[layer]}")
    for p in range(2):
        for i in range(4): k.e(f"v_cvt_pk_bf16_f32 v{RES+4*p+i}, v{T+8*p+2*i}, v{T+8*p+2*i+1}")
        k.dstore(f"buffer_store_dwordx4 {vr(RES+4*p,4)}, v{W_UA}, {SRD_WS}, s58 offen offset:{p*512}", "xst")
    S, Q = T + 16, T + 18
    k.e(f"v_pk_add_f32 {vr(S,2)}, {vr(T,2)}, {vr(T+2,2)}", f"v_pk_mul_f32 {vr(Q,2)}, {vr(T,2)}, {vr(T,2)}", f"v_pk_fma_f32 {vr(Q,2)}, {vr(T+2,2)}, {vr(T+2,2)}, {vr(Q,2)}")
    for i in range(4, 16, 2): k.e(f"v_pk_add_f32 {vr(S,2)}, {vr(S,2)}, {vr(T+i,2)}", f"v_pk_fma_f32 {vr(Q,2)}, {vr(T+i,2)}, {vr(T+i,2)}, {vr(Q,2)}")
    k.e(f"v_add_f32 v{S}, v{S}, v{S+1}", f"v_add_f32 v{Q}, v{Q}, v{Q+1}", f"s_add_u32 s58, s65, {BS1[layer]}",
        f"v_permlane16_swap_b32 v{S}, v{Q}", f"v_add_f32 v{S}, v{S}, v{Q}", f"v_mov_b32 v{Q}, v{S}", f"v_permlane32_swap_b32 v{S}, v{Q}", f"v_add_f32 v{S}, v{S}, v{Q}")
    k.dstore(f"buffer_store_dword v{S}, v{W_SA}, {SRD_WS}, s58 offen", "xst")
    key = lambda it: it[2][1] if (isinstance(it[2], tuple) and it[2][0] == "gw") else 11.5
    k.bg.sort(key=key)
    print(f"wo{layer} done, background left:", [it[2] for it in k.bg][::4])
    k.bg_burst(P.wo_win[layer])
    k.stamp("wo end")
P.wo_bg_delay = 750; P.wo_bg_stop = 63; P.wo_lead = 6; P.wo_spec = 3; P.gu_spec = 3; P.wo_bstep = 2
P.wo_poll_gap = 1; P.wo_late_gap = 7; P.wo_hold = True; P.wo_win = [4, 4]; P.wo_var = 'B'; P.wo_prew = 2
P.per_wo = [{"s2": 20, "s4": 20}] * 2

G_RB, G_C1, G_VV, G_AUG, G_X, G_ACC, G_WF, G_T = 3, 6, 7, 28, 32, 160, 224, 240
D_WV, D_BF, D_ACC, D_T, D_WF, D_RB, D_PA = 32, 64, 128, 192, 228, 112, 115
DN_SEQ = [(g, e) for g in range(2) for e in range(28)]
DN_GROUPS = [1, 0]
def h_loader(k, layer):
    def bload(i):
        if i == 0:
            k.e(f"s_mul_i32 s32, s{sB}, {224*KB}", f"s_mul_i32 s33, s{sW}, {28*KB}", "s_add_u32 s32, s32, s33", f"s_add_u32 s59, s32, {BH[layer]}")
            for p in range(4):
                k.e(f"s_add_u32 s32, s{sCS}, {p}", f"s_and_b32 s32, s32, {3 if P.hrot else 0}", f"s_mul_i32 s32, s32, {7*KB}", f"s_add_u32 s{34+p}, s59, s32")
                if not P.hrot: k.e(f"s_add_u32 s{34+p}, s{34+p}, {7*KB*p}")
        g, e = DN_SEQ[i]; p, tl = divmod(KK_OF[e], 7)
        k.set_s(f"s_add_u32 s58, s{34+p}, {DN_GROUPS[g] * 112 * KB + (tl & 4) * 1024}")
        k.vm(f"buffer_load_dwordx4 {vr(D_BF+4*(i%P.dn_lead),4)}, v{vL16}, {SRD_WS}, s58 offen offset:{(tl & 3)*1024} sc1", ("b", i))
    return bload

def gu_setup(k, layer):
    T = G_T; XA = T + 3
    k.e(*gu_tile("s50"))
    k.e(f"v_and_b32 v{T}, 31, v1")
    k.e(f"v_mov_b32 v{G_RB}, v{vL16}", f"v_add_u32 v{G_RB+1}, 0x10000, v{vL16}", f"v_add_u32 v{G_RB+2}, 0x20000, v{vL16}")
    k.e(f"v_lshrrev_b32 v{T+1}, 5, v1", f"v_lshlrev_b32 v{G_AUG+3}, 4, v{T}", f"v_lshl_add_u32 v{G_AUG+3}, v{T+1}, 10, v{G_AUG+3}")
    k.e(f"v_lshrrev_b32 v{XA}, 3, v{T}", f"v_lshlrev_b32 v{XA}, 13, v{XA}", f"v_lshl_add_u32 v{XA}, v{T+1}, 7, v{XA}",
        f"v_and_b32 v{T}, 7, v1", f"v_lshl_add_u32 v{XA}, v{T}, 4, v{XA}")
    k.e("s_lshl_b32 s32, s50, 11", f"s_add_u32 s51, s32, {BS1[layer]}")
    k.e("s_lshl_b32 s32, s50, 15", f"s_add_u32 s52, s32, {BX1[layer]}", "s_add_u32 s53, s52, 4096")
    k.e(*h_base("s54", layer))
    k.e("s_lshr_b32 s32, s50, 1", "s_lshl_b32 s32, s32, 4", f"s_add_u32 s32, s32, s{sM}",
        "s_lshl_b32 s32, s32, 1", "s_and_b32 s33, s50, 1", "s_add_u32 s32, s32, s33", "s_lshl_b32 s32, s32, 2", f"s_add_u32 s81, s32, {fl(layer, FL_H)}")

def gu(k, layer):
    T = G_T; XA = T + 3; PA = T + 2
    if P.tags: k.poll_check(A_PA, "px1", 1)
    else:
        def pa():
            k.poll_addr(PA, 16)
            k.e("s_lshl_b32 s32, s50, 6", f"s_add_u32 s{sPO}, s32, {fl(layer, FL_X1)}")
        if not P.gu_pa_late: pa()
        k.wait(vm=["xst"]); k.flag(1)
        if P.gu_pa_late: pa()
        k.stamp("x1 flag")
        if not P.gu_bar_first: k.poll_issue(PA, "px1")
    k.e(f"s_mov_b32 s{sFO}, s81")
    seq = [(t, ks) for ks in range(33) for t in range(3)] + [(t, ks) for t in range(3, 7) for ks in range(33)]
    accof = {0: 0, 1: 1, 2: 2, 3: 3, 4: 0, 5: 1, 6: 2}
    NW = P.gu_nw
    WQ = [G_WF, G_WF + 4, G_WF + 8, G_WF + 12, T + 12]
    def wread(n):
        slot = (n % 160) * 1024
        k.ds(f"ds_read_b128 {vr(WQ[n%NW],4)}, v{G_RB + (slot>>16)} offset:{slot & 0xffff}", ("wf", n))
    BARS = P.gu_bars[layer]
    cover = lambda bi: [("gw", b) for b in range(bi, min([x for x in BARS if x > bi] + [15]))]
    def ringbar():
        k.wait(vm=cover(0)); k.e("s_barrier"); k.mark("gubar")
        for n in range(NW): wread(n)
    if P.gu_bar_first: ringbar(); k.poll_issue(PA, "px1")
    if not P.tags: k.poll_wait(PA, "px1", 1, 20)
    k.stamp("gu go")
    xtxt = lambda kg: f"buffer_load_dwordx4 {vr(G_X+4*kg,4)}, v{XA}, {SRD_WS}, s{52 + (kg>>4)} offen offset:{((kg>>2)&3)*1024 + (kg&3)*256} sc1"
    def xload(kg): k.vm(xtxt(kg), ("gx", kg))
    xchk = lambda kg: k.valid([f"v_cmp_eq_u32 vcc, -1, v{G_X+4*kg}"], [xtxt(kg)])
    stxt = [f"buffer_load_dwordx4 {vr(T+4+4*h,4)}, v{G_AUG+3}, {SRD_WS}, s51 offen offset:{512*h} sc1" for h in range(2)]
    if P.tags:
        for t_ in stxt: k.vm(t_, "gst")
        for kg in range(P.gu_spec): xload(kg)
        k.wait(vm=["gst"])
        k.valid([f"v_max3_u32 v{T}, v{T+4}, v{T+6}, v{T+8}", f"v_max_u32 v{T}, v{T}, v{T+10}", f"v_cmp_eq_u32 vcc, -1, v{T}"],
                stxt + [xtxt(x) for x in range(P.gu_spec)])
        k.stamp("gu probe")
        for kg in range(P.gu_spec, P.gu_lead): xload(kg)
    else:
        for kg in range(P.gu_lead): xload(kg)
        for t_ in stxt: k.vm(t_, "gst")
    if not P.gu_bar_first: ringbar()
    mains = []; fixed = {}
    xpos = {}
    for kg in range(P.gu_lead, 32): xpos.setdefault(int((kg - P.gu_lead) * P.gu_xstep), []).append(kg)
    for n, (t, ks) in enumerate(seq):
        acc = G_ACC + 16 * accof[t]
        b = vr(G_AUG, 4) if ks == 32 else vr(G_X + 4*ks, 4)
        c = "0" if ks == 0 else vr(acc, 16)
        mains.append(lambda n=n, acc=acc, b=b, c=c: k.e(f"{MF32} {vr(acc,16)}, {vr(WQ[n%NW],4)}, {b}, {c}"))
        fl_ = fixed.setdefault(n, [])
        if n + 1 < len(seq):
            t2, ks2 = seq[n + 1]
            need = [("gx", ks2)] if (t2 == 0 and ks2 < 32) else None
            fl_.append((0, lambda n=n, need=need: k.wait(vm=need, lg=[("wf", n + 1)])))
            if need and P.tags: fl_.append((2, lambda ks2=ks2: xchk(ks2)))
        j = n + NW
        if j < len(seq):
            if j % 16 == 0 and j // 16 in BARS:
                fl_.append((2, lambda bi=j//16: (k.wait(vm=cover(bi)), k.e("s_barrier"), [k.mark(("gbar", b)) for b in range(bi + 1)])))
            fl_.append((1, lambda j=j: wread(j)))
        for kg in xpos.get(n, []): fl_.append((1, lambda kg=kg: xload(kg)))
    xend = max(xpos)
    tail = [it for it in k.bg if it[2] == "dna" or it[2][0] == "dnr"]; k.bg = [it for it in k.bg if not (it[2] == "dna" or it[2][0] == "dnr")]
    bg_batches(k, range(10, 15), "s2", lambda b: ("gbar", b - 8))
    first, ratio = P.gu_mix[layer]
    mid = k.bg[first:]; k.bg = k.bg[:first]; acc_ = 0.0
    while mid or tail:
        if mid: k.bg.append(mid.pop(0))
        acc_ += ratio
        while tail and (acc_ >= 1 or not mid): k.bg.append(tail.pop(0)); acc_ -= 1
    direct = layer == 1 and P.dn1_agpr
    if not direct: bg_batches(k, range(15, 23), "s4", lambda b: ("gbar", b - 8))
    k.per = dict(P.per_guA[layer]); k.bg_held = False; k.bg_next = k.t + P.gu_bg_delay
    fixed[xend].append((0, lambda: setattr(k, "per", dict(P.per_guB[layer]))))
    fv = Flex()
    dv = regloads(k, sDS, 48*1024, lambda j: vr(D_WV + 4*j, 4), 8, "dnv")
    k.hload = h_loader(k, layer)
    if direct: pass
    elif P.hpre:
        bg_list(k, dv, "s4", "dnv", "xdead")
        fixed[207].append((0, lambda: k.mark("xdead")))
    else:
        for j, f in enumerate(dv): fv.add(f, 1, 198 + 2 + 3*j)
    fx = Flex()
    a = lambda txt, c=1, at=0: fx.add(lambda: k.e(txt), c, at)
    fx.add(lambda: k.wait(vm=["gst"]), 1, 3 * P.gu_lead)
    a(f"v_add_f32 v{T+4}, v{T+4}, v{T+6}"); a(f"v_add_f32 v{T+5}, v{T+5}, v{T+7}"); a(f"v_add_f32 v{T+8}, v{T+8}, v{T+10}"); a(f"v_add_f32 v{T+9}, v{T+9}, v{T+11}")
    a(f"v_add_f32 v{T+4}, v{T+4}, v{T+8}"); a(f"v_add_f32 v{T+5}, v{T+5}, v{T+9}"); fx.skip(1)
    a(f"v_permlane32_swap_b32 v{T+4}, v{T+5}", 2); a(f"v_add_f32 v{T+4}, v{T+4}, v{T+5}"); a(f"v_mov_b32 v{T+5}, v{T+4}"); fx.skip(1)
    a(f"v_permlane32_swap_b32 v{T+4}, v{T+5}", 2)
    ln_finish(a, T + 4, T + 5)
    a(f"v_mov_b32 v{G_VV}, v{T+5}")
    a(f"v_rsq_f32 v{G_C1}, v{T+5}", 2); a(f"v_cvt_pk_bf16_f32 v{G_AUG}, v{T+4}, v{T+4}"); a(f"v_mul_f32 v{G_C1}, {f2u(-LOG2E):#x}, v{G_C1}")
    a(f"v_and_b32 v{T+5}, 0xffff0000, v{G_AUG}"); a(f"v_sub_f32 v{T+5}, v{T+4}, v{T+5}"); a(f"v_mov_b32 v{G_AUG+2}, 0")
    a(f"v_cvt_pk_bf16_f32 v{G_AUG+1}, v{T+5}, v{G_AUG+2}"); a(f"v_mov_b32 v{G_AUG+3}, 0")
    fx.add(lambda: k.mark("aug"), 0)
    def epi(t, at):
        acc = G_ACC + 16 * accof[t]; hp = (T + 8, RES + 4)[t & 1]; E = T + 4
        if t >= 2: fx.dep(("hst", t - 2))
        if P.x_noepi: a("s_nop 0", 1, at)
        for i0 in range(0, 8 if not P.x_noepi else 0, 2):
            for i in (i0, i0 + 1): a(f"v_mul_f32 v{E+(i&1)}, v{G_C1}, v{acc+i}", 1, at)
            for i in (i0, i0 + 1): a(f"v_exp_f32 v{E+(i&1)}, v{E+(i&1)}", 2)
            for i in (i0, i0 + 1): a(f"v_mul_f32 v{E+2+(i&1)}, v{acc+i}, v{acc+8+i}")
            for i in (i0, i0 + 1): a(f"v_fma_f32 v{E+(i&1)}, v{E+(i&1)}, v{G_VV}, v{G_VV}")
            for i in (i0, i0 + 1): a(f"v_rcp_f32 v{E+(i&1)}, v{E+(i&1)}", 2)
            fx.skip(1)
            for i in (i0, i0 + 1): a(f"v_mul_f32 v{E+2+(i&1)}, v{E+2+(i&1)}, v{E+(i&1)}")
            a(f"v_cvt_pk_bf16_f32 v{hp+i0//2}, v{E+2}, v{E+3}")
        fx.add(lambda: k.mark(("epi", t)), 0)
        txt = f"buffer_store_dwordx4 {vr(hp,4)}, v{vL16}, {SRD_WS}, s{54 if t < 4 else 82} offen offset:{(t%4)*1024}"
        plain = (layer and P.h1_plain) or (not layer and P.h_touch0)
        if P.h_np > 1 and t < P.h_stag and not plain:
            fx.add(lambda: k.mark(("hrdy", t)), 0)
            fh.dep(("hrdy", t))
            for j in range(P.h_np):
                def pos(j=j):
                    n = k.nspin; k.nspin += 1
                    k.e(f"s_cmp_lg_u32 s83, {j}", f"s_cbranch_scc1 L_sk{n} ;np", txt + " sc1 ;opt", f"L_sk{n}: ;np")
                    if j == P.h_np - 1:
                        k.vmq.append(("hst", t)); k.seen.add(("hst", t)); k.phantom.add(("hst", t)); k.mark(("hst", t))
                fh.add(pos, P.h_cost)
                if j < P.h_np - 1: fh.skip(P.h_d)
            if t >= 2: pass
        else:
            k.phantom.discard(("hst", t))
            fx.add(lambda: ((k.dstore if plain else lambda x, tg: k.vm(x + " sc1", tg))(txt, ("hst", t)), k.mark(("hst", t))), 2)
    fh = Flex()
    k.e("s_add_u32 s82, s54, 4096", f"s_lshl_b32 s32, s{sW}, {max(P.h_np.bit_length() - 3, 0)}", f"s_add_u32 s32, s32, s{sM}", f"s_add_u32 s32, s32, s{sC}", f"s_and_b32 s83, s32, {P.h_np - 1}")
    end = {t: max(n for n, x in enumerate(seq) if x[0] == t) for t in range(7)}
    for t in range(6): epi(t, end[t] + 3)
    if layer == 0 and P.h_touch0 == "g": fixed[xend + 1].append((5, lambda: k.touch(T, "h", ["s_mov_b32 s32, s54"])))
    if layer == 1 and P.x1_clean:
        for p in range(2):
            fixed[P.x1_clean + 8*p].append((3, lambda p=p: (k.e(f"s_add_u32 s58, s64, {BX1[1]}"),
                k.vm(f"buffer_store_dwordx4 {vr(RES+4*p,4)}, v9999, {SRD_WS}, s58 offen offset:{p*512} sc1", "clean"))))
    ff = Flex(); ff.dep(("hst", 3))
    if layer == 0:
        tx = [lambda: k.touch(T, "p", [f"s_add_u32 s32, s55, {BX2()}"]), lambda: k.touch(T + 1, "s", [f"s_add_u32 s32, s56, {BS2()}"])]
        if P.x2_touch == "h3": ff.add(tx[0], 6); ff.add(tx[1], 4)
        elif isinstance(P.x2_touch, int): fixed[P.x2_touch].append((5, tx[0])); fixed[P.x2_touch + 1].append((4, tx[1]))
        if "g" in str(P.touch1):
            for f in touch_next(k, T + 2)[:2]: ff.skip(1); ff.add(f, 6)
    ff.skip(P.gu_flag_delay)
    ff.add(lambda: (k.wait(vm=[("hst", 3)]), k.flag(1)), 3)
    def hpoll():
        k.wait(vm=["touch"] if "touch" in k.seen else None)
        k.poll_addr(T, 8)
        k.e(f"s_lshl_b32 s32, s{sB}, 7", f"s_lshl_b32 s33, s{sW}, 5", "s_add_u32 s32, s32, s33", f"s_add_u32 s{sPO}, s32, {fl(layer, FL_H)}")
        k.poll_issue(T, "ph1")
    if P.hpre:
        ff.add(hpoll, 4, P.hp_chk - 12)
        ff.add(lambda: (k.poll_check(T, "ph1", 1), setattr(k, "bg_held", True)), 3, P.hp_chk)
        for j in range(P.hpre): ff.add(lambda j=j: k.hload(j), 2, max(208 + j, int(P.hp_chk + 1 + j * P.hp_step)))
    else: ff.add(hpoll, 4, 228)
    k.wait(vm=[("gx", 0)], lg=[("wf", 0)])
    if P.tags: xchk(0)
    k.stamp("gu first")
    if k.stamping:
        for g in (48, 98, 131, 164, 197): fixed[g].append((0, lambda g=g: k.stamp(f"gu m{g}")))
    fixed[93].append((0, lambda: k.marks["aug"]))
    run_gaps(k, mains, fixed, [fv, fh, ff, fx], P.gu_cap)
    print("gu left:", len(k.bg), len(fv), len(ff), len(fx), {n: g for n, g in k.marks.items() if isinstance(n, tuple) and n[0] == "hst"})
    k.stamp("gu gemm")
    for g, t in {132: 0, 165: 1, 198: 2}.items(): assert k.marks[("epi", t)] < g, "accumulator reused too early"
    epi(6, 0); drain([fh, ff, fv, fx], k)
    k.e(f"v_mov_b32 v{D_PA}, v{T}")
    k.stamp("gu end")
P.x2_touch = None; P.dn_x2 = 2; P.h_cost = 1; P.h_np = 1; P.h_d = 2; P.h_stag = 5; P.gu_mix = [(28, 1), (24, 1)]; P.hrot = 0; P.gu_bars = [list(range(15)), [0, 3, 6, 9, 12]]; P.hpre = 0; P.hp_chk = 208; P.hp_step = 2.2; P.gu_flag_delay = 10; P.gu_xstep = 2.6; P.gu_bg_delay = 300
P.per_guA = [{"s2": 120, "s4": 120}, {"s2": 160, "s4": 160}]
P.per_guB = [{"s2": 90, "s4": 55}, {"s2": 80, "s4": 50}]

def dn(k, layer):
    final = layer == 1
    NB = P.dn_lead; T = D_T
    groups = DN_GROUPS; seq = DN_SEQ; bload = k.hload
    early = Flex()
    def rb(): k.e(f"v_add_u32 v{D_RB}, s{sGL}, v{vL16}", f"v_add_u32 v{D_RB+1}, 0x10000, v{D_RB}", f"v_add_u32 v{D_RB+2}, 0x20000, v{D_RB}")
    if P.hpre:
        for i in range(P.hpre, NB): bload(i)
        rb()
        class Rec:
            def e(self, *t):
                if any("vcc" in x or "s32" in x for x in t): early.add(lambda: k.e(*t), len(t))
                else:
                    for x in t: early.add(lambda x=x: k.e(x))
        red_setup(Rec(), 3, 1)
        early.add(lambda: (k.wait(vm=[("hst", 6)]), k.flag(2), k.poll_issue(D_PA, "ph2"), k.e(f"s_add_u32 s{sFO}, s89, {FL_X2 - FL_O}")), 5, P.dn_fgap)
    else:
        k.poll_check(D_PA, "ph1", 1)
        k.stamp("dn early")
        k.bg_held = True
        for i in range(P.dn_pre): bload(i)
        red_setup(k, 3, 1); rb()
        k.wait(vm=[("hst", 6)]); k.flag(2)
        if P.dn_pollstep is None: k.poll_issue(D_PA, "ph2")
        for i in range(P.dn_pre, NB): bload(i)
        k.e(f"s_add_u32 s{sFO}, s89, {FL_X2 - FL_O}")
    k.per = dict(P.per_dn0); k.bg_held = False
    direct = final and P.dn1_agpr
    lds = [(i, nn) for i, (g, e) in enumerate(seq) if 8 <= e < 24 and not direct for nn in range(2)]
    slot_of = {x: n for n, x in enumerate(lds)}
    NWF = 6
    def wread(n):
        i, nn = lds[n]; j = 2 * (seq[i][1] - 8) + nn; b = 15 + (j >> 2)
        ad = (b % 10) * 16384 + (j & 3) * 1024
        if seq[i][0] == 0: k.wait(vm=[("gw", b)])
        k.ds(f"ds_read_b128 {vr(D_WF+4*(n%NWF),4)}, v{D_RB + (ad>>16)} offset:{ad & 0xffff}", ("wf", n))
    def wfrag(i, nn):
        e = seq[i][1]
        if e < 8: return ar(192 + 8*e + 4*nn, 4)
        if direct: return ar(8*(e - 8) + 4*nn, 4)
        if e >= 24: return vr(D_WV + 8*(e - 24) + 4*nn, 4)
        return vr(D_WF + 4*(slot_of[(i, nn)] % NWF), 4)
    mains = []; fixed = {}
    NT = P.dn_tail
    assert NT <= 4
    order = [(i, nn) for i in range(56 - NT) for nn in range(2)] + [(i, nn) for nn in range(2) for i in range(56 - NT, 56)]
    for pos, (i, nn) in enumerate(order):
        g, e = seq[i]
        if True:
            acc = D_ACC + 32 * g + 16 * nn
            mains.append(lambda i=i, nn=nn, acc=acc, e=e: k.e(f"{MF32} {vr(acc,16)}, {wfrag(i,nn)}, {vr(D_BF+4*(i%NB),4)}, {'0' if e == 0 else vr(acc,16)}"))
            gp = len(mains) - 1; fl_ = fixed.setdefault(gp, [])
            nx = order[pos + 1] if pos + 1 < len(order) else None
            vmn = [("b", nx[0])] if (nx and nx[1] == 0) else None
            lgn = [("wf", slot_of[nx])] if nx in slot_of else None
            if nx == (24, 0) and not direct: vmn = vmn + ["dnv"]
            if direct and nx and nx[0] in range(8, 28) and nx[1] == 0: vmn = vmn + [("dnr", nx[0])]
            fl_.append((0, lambda vmn=vmn, lgn=lgn: k.wait(vm=vmn, lg=lgn)))
            ah = (i + 2, nn)
            if ah in slot_of: fl_.append((1, lambda n=slot_of[ah]: wread(n)))
    nxt = NB; pend = 0
    for i in range(len(seq)):
        fl_ = fixed[2*i + 1]
        if i == P.dn_late: fl_.append((2, lambda: (k.poll_check(D_PA, "ph2", 2), k.stamp("dn late"), k.mark("late"))))
        n = 0
        while nxt < len(seq) and nxt <= i + NB and n < 2 and (nxt < 16 or i >= P.dn_late):
            fl_.append((1, lambda j=nxt: bload(j))); nxt += 1; n += 1
        if i == P.dn_pollstep and not P.hpre: fl_.append((1, lambda: k.poll_issue(D_PA, "ph2")))
        if nxt == len(seq) and not pend: pend = 2*i + 2
    if not final: fixed[22].append((5, lambda: k.codepf(192)))
    fixed[20].append((1, lambda: k.e("s_barrier")))
    for mm in range(2):
        fixed[40 + 4*mm].append((2, lambda mm=mm: (k.e(f"s_add_u32 s32, s55, {BX1[layer] + mm*32768}"),
                                                   k.vm(f"buffer_load_dwordx4 {vr(RES+4*mm,4)}, v{vL16}, {SRD_WS}, s32 offen sc1", "res"))))
    fw = Flex(); fs = Flex()
    for q, f in enumerate(red_writes(k, D_ACC, 0, 0, 1)): fw.add(f, 1, 58 + 2*q)
    fw.add(lambda: (k.wait(lg=[("rw", 0)]), k.e("s_barrier")), 2, 76)
    for f in red_reads(k, 0, T, 0): fw.add(f, 2)
    fw.add(lambda: k.wait(vm=["res"]))
    red_finish(k, fw, 0, groups[0], T, BX2(), BS2(), final, False)
    if not final:
        fw.add(lambda: k.vm(f"buffer_store_dwordx4 {vr(RES+4,4)}, v{vL16}, {SRD_WS}, s72 offen sc1", "hxs"))
        fw.add(lambda: k.vm(f"buffer_store_dword v{T+32}, v{R_ST}, {SRD_WS}, s73 offen sc1", "hxs"))
        fw.skip(P.dn_flag_delay); fw.add(lambda: (k.wait(vm=[("xst", 0)]), k.flag(1)), 3)
        if P.x2_touch == "dn":
            fixed[P.dn_x2].append((5, lambda: k.touch(226, "p", [f"s_add_u32 s32, s55, {BX2()}"])))
            fixed[P.dn_x2 + 1].append((4, lambda: k.touch(227, "s", [f"s_add_u32 s32, s56, {BS2()}"])))
            fs.add(lambda: k.wait(vm=["touch"]), 1, P.dn_x2 + 2)
        for q, c in enumerate(P.t1_dn): fixed[P.dn_touch + 2*q].append((5, touch_next(k, 28)["oxs".index(c)]))
        fs.dep("late")
        for f in a11_bases(k) + a1_setup(k, 1): fs.add(f)
        fs.add(lambda: (k.poll_addr(A_PX, 32), k.e(f"s_lshl_b32 s32, s{sB}, 7", f"s_add_u32 s{sPO}, s32, {fl(0, FL_X2)}")), 4)
    wtail = red_writes(k, D_ACC + 32, 1, 2*16384, 1)
    if NT:
        for q in range(min(4, NT)): fixed[min(111, 112 - NT + 1 + q)].append((4, wtail.pop(0)))
    k.wait(vm=["dna", ("b", 0)])
    k.stamp("dn first")
    if k.stamping:
        fixed[55].append((0, lambda: k.stamp("dn p1")))
        for g in range(7, 111, 8): fixed[g].append((0, lambda g=g: k.stamp(f"find {g}")))
    run_gaps(k, mains, fixed, [early, fw, fs], 6)
    print("dn left:", len(k.bg), len(fw), len(fs), "last h load at gap", pend)
    k.stamp("dn gemm")
    assert not fs.items
    ws = wtail
    if not final and P.dn_fin_first != 2: ws.insert(len(ws) - 4, lambda: k.poll_issue(A_PX, "px0"))
    if not final and P.dn_fin_first == 2: ws.append(lambda: k.poll_issue(A_PX, "px0"))
    merge(k, fw, ws)
    k.wait(lg=[("rw", 1)]); k.e("s_barrier")
    k.stamp("dn red")
    for f in red_reads(k, 1, T, 2*16384): f()
    def nxt():
        k.poll_check(A_PX, "px0", 1)
        k.wait(vm=["hxs"]); k.flag(1, 91, "sc1")
        a11_early(k)
    if not final:
        k.bg_held = True
        if not P.dn_fin_first: nxt()
    f1 = Flex(); red_finish(k, f1, 1, groups[1], T, BX2(), BS2(), final, True)
    if not final and P.dn_fin_first == 2:
        ex = [lambda: k.poll_check(A_PX, "px0", 1)] + a11_early(k, True) + [lambda: (k.wait(vm=["hxs"]), k.flag(1, 91, "sc1"))]
        merge(k, f1, ex, P.dn_mfirst)
    else: drain([f1], k)
    if not final and P.dn_fin_first == 1: nxt()
    k.stamp("dn end")
P.dn_mfirst = 8; P.dn_pollstep = 0; P.dn_fin_first = 2; P.dn_tail = 0; P.dn_touch = 88; P.dn_flag_delay = 4; P.dn_pre = 6; P.dn_late = 9; P.dn_fgap = 6
P.dn_wow = 6; P.per_dn = {"s4": 110, "s2": 130}; P.per_dn0 = {"s4": 60, "s2": 60}

def build(stamps=False, only=None):
    k = F(); k.stamping = stamps; k.only = only; k.st = P.dst; k.rt = P.rt
    name = NAME + "_kernel"
    k.e(".p2align 8", f".globl {name}", f".type {name},@function"); k.label(name)
    if stamps: k.e("s_memrealtime s[92:93]", "s_memtime s[94:95]")
    k.e("s_cmp_ge_u32 s2, 256", "s_cbranch_scc1 L_end")
    k.e("s_load_dwordx16 s[64:79], s[0:1], 0", "s_load_dwordx4 s[80:83], s[0:1], 64", "s_memrealtime s[96:97]")
    k.e("s_getpc_b64 s[100:101]")
    k.e("L_pc: ;np")
    k.e("v_and_b32 v1, 63, v0", "v_lshrrev_b32 v2, 6, v0", "s_lshr_b32 s33, s2, 3", "s_mul_i32 s32, s33, 43", "s_lshr_b32 s32, s32, 8",
        "s_mul_i32 s32, s32, 6", "s_sub_u32 s32, s33, s32", "s_lshl_b32 s32, s32, 13", "v_lshl_add_u32 v3, v2, 11, s32", "v_lshl_add_u32 v3, v1, 7, v3",
        "v_min_u32 v3, L_end-L_pc, v3", f"v_readfirstlane_b32 s{sW}, v2", "v_mov_b32 v5, s101", "v_add_co_u32 v4, vcc, s100, v3", "v_addc_co_u32 v5, vcc, 0, v5, vcc")
    if P.code0:
        k.e("s_mov_b64 exec, 0xffff")
        k.vm("global_load_dword v175, v[4:5], off", "code")
        k.e("s_mov_b64 exec, -1")
        if P.code1:
            k.e("v_lshlrev_b32 v3, 11, v2", "v_lshl_add_u32 v3, v1, 7, v3", "v_mov_b32 v5, s101", "v_add_co_u32 v4, vcc, s100, v3", "v_addc_co_u32 v5, vcc, 0, v5, vcc",
                "s_mov_b64 exec, 0xffff")
            k.vm("global_load_dword v174, v[4:5], off", "code")
            k.e("s_mov_b64 exec, -1")
    k.e("s_and_b32 s32, s2, 7", f"s_and_b32 s{sM}, s33, 15", "s_lshr_b32 s33, s33, 4", "s_lshl_b32 s32, s32, 1", f"s_add_u32 s{sC}, s32, s33")
    k.e(f"s_lshr_b32 s33, s{sM}, 3", f"s_lshl_b32 s{sB}, s{sC}, 1", f"s_add_u32 s{sB}, s{sB}, s33", f"s_and_b32 s{sCS}, s{sM}, 7")
    k.e("v_lshlrev_b32 v2, 4, v1")
    a10_lanes(k)
    k.e("s_waitcnt lgkmcnt(0)")
    srd(k, 12, 64, 2048 * 1024); srd(k, 16, 66, 512 * 3072)
    k.e(f"s_or_b32 s{sTAG}, s96, 1")
    if stamps:
        k.stamps += ["rt0", "start"]; k.e("v_writelane_b32 v0, s92, 0", f"v_writelane_b32 v0, s{92 if P.rt else 94}, 1")
    k.stamp("s kernarg")
    if P.pk_first == 1: pack_issue(k)
    k.stamp("s pkissue")
    run(a10_x(k, 0) + a10_w(k, 0))
    if P.pk_first == 0: pack_issue(k)
    srd(k, 28, 80, 256)
    k.e("v_cmp_eq_u32 vcc, 0, v1", f"v_mov_b32 v{vFA}, {OOB:#x}", f"s_or_b32 s32, s2, s{sW}", f"v_cndmask_b32_e64 v{vFA}, v{vFA}, 0, vcc",
        "s_cmp_eq_u32 s32, 0", f"s_cselect_b32 s32, 0, {OOB>>1:#x}", f"v_mov_b32 v170, s{sTAG}")
    k.vm(f"buffer_store_dword v170, v{vFA}, {SRD_DBG}, s32 offen sc1", "tagst")
    srd(k, 8, 82, WS_SIZE); srd(k, 20, 78, 2048 * 1024)
    for f in a1_setup(k, 0): f()
    o_bases(k, 0)
    a10_lanes2(k)
    k.e(f"v_mov_b32 v60, {OOB:#x}", "v_cmp_gt_u32 vcc, 8, v1", "v_mov_b32 v176, 0", "v_mov_b32 v177, 0", "v_mov_b32 v178, 0", "v_mov_b32 v179, 0",
        f"v_cndmask_b32 v173, v60, v{vL16}, vcc", "v_cmp_gt_u32 vcc, 16, v1", "s_nop 0",
        f"s_lshl_b32 s32, s{sC}, 4", f"v_cndmask_b32 v172, v60, v{vL16}, vcc")
    k.e(f"s_add_u32 s32, s32, s{sM}", "s_lshl_b32 s32, s32, 4",
        f"s_cmp_eq_u32 s{sW}, 0", f"s_cselect_b32 s32, s32, {OOB>>1:#x}", f"v_add_u32 v171, s32, v{vFA}", f"s_mov_b32 s{sBUD}, 400000")
    red_bases(k)
    k.e(f"s_lshl_b32 s{sGL}, s{sW}, 12", f"s_mul_i32 s{sGS}, s{sM}, {PGU_SLICE}", f"s_add_u32 s{sGS}, s{sGS}, s{sGL}", f"s_add_u32 s{sGS}, s{sGS}, {WS_PGU}")
    k.e(f"s_mul_i32 s32, s{sCS}, {224*KB}", f"s_mul_i32 s33, s{sW}, {56*KB}", "s_add_u32 s32, s32, s33", f"s_add_u32 s{sDS}, s32, {WS_PDN}")
    k.e(f"s_lshl_b32 s32, s{sCS}, 16", f"s_add_u32 s32, s32, s{sGL}", f"s_add_u32 s88, s32, {WS_PWO}")
    wo_bases(k)
    k.stamp("s setup")
    run(a10_w(k, 1))
    if P.pk_first == 2: pack_issue(k)
    k.e(f"s_getreg_b32 s{sXCC}, hwreg(HW_REG_XCC_ID, 0, 4)", f"s_mov_b32 s75, {WS_ARR}", f"s_lshl_b32 s77, s{sC}, 8", "s_add_u32 s77, s77, s75")
    if P.k_touch == -1:
        k.touch(157, "p", ["s_mov_b32 s32, s53"], False); k.touch(158, "q", [f"s_add_u32 s32, s64, {BX1[0]}"], False)
    k.stamp("s w01")
    def mid2():
        if P.k_first > 3: run(a10_w(k, 3))
        k.e("s_lshl_b32 s32, s2, 7")
        k.vm(f"buffer_store_dwordx4 v[176:179], v173, {SRD_WS}, s32 offen sc1", "zero")
        k.e("s_lshl_b32 s32, s2, 8", f"s_add_u32 s32, s32, {WS_HXF}")
        k.vm(f"buffer_store_dwordx4 v[176:179], v172, {SRD_WS}, s32 offen sc1", "zero")
    if P.k_pack is None: pack_process(k, lambda: run(a10_x(k, 1) + a10_w(k, 2)), mid2)
    else: run(a10_x(k, 1) + a10_w(k, 2)); mid2()
    k.vm(f"buffer_load_dword v170, v{vFA}, {SRD_DBG}, 0 offen sc1", "tag")
    k.stamp("s pkdone")
    a10_loop(k, P.k_first)
    a10_tail(k)
    wo(k, 0); gu(k, 0); dn(k, 0)
    if not P.half:
        k.marks = {m: g for m, g in k.marks.items() if False}
        k.seen = {t for t in k.seen if t in k.vmq or t in k.lgq or t in ("dna", "st0", ("x", 2), ("x", 3))}
        k.layer = 1
        a11_main(k)
        wo(k, 1)
        k.marks = {m: g for m, g in k.marks.items() if m in ("wobar", "gemm_done") or m[0] == "bar"}
        gu(k, 1); dn(k, 1)
    if P.verbose: print([(t, tag, f) for t, tag, f in k.bg_log if f])
    if stamps:
        k.e("s_waitcnt vmcnt(0)"); k.stamp("drained"); k.stamp("rt1", True)
        k.e("s_lshl_b32 s32, s2, 10", "s_lshl_b32 s33, s3, 8", "s_add_u32 s32, s32, s33",
            f"s_add_u32 s32, s32, {WS_STAMP}", "v_lshlrev_b32 v8, 2, v1", f"buffer_store_dword v0, v8, {SRD_WS}, s32 offen")
        if P.echo:
            a, b = P.echo
            n = len(k.stamps)
            k.e(f"v_readlane_b32 s32, v0, {a}", f"v_readlane_b32 s33, v0, {b if b >= 0 else n + b}", f"v_readlane_b32 s34, v0, {n-1}", "s_nop 3",
                "s_sub_u32 s33, s33, s32", "s_min_u32 s33, s33, 20000")
            k.label("L_echo")
            k.e("s_memrealtime s[36:37]", "s_waitcnt lgkmcnt(0)", "s_sub_u32 s36, s36, s34", "s_cmp_lt_u32 s36, s33", "s_cbranch_scc1 L_echo")
        if P.dbg:
            n = len(k.stamps)
            k.e("v_readlane_b32 s32, v0, 0", f"v_readlane_b32 s33, v0, {n-1}", "s_not_b32 s34, s32", "v_mov_b32 v4, s33", "v_mov_b32 v5, s34")
            k.e(f"buffer_atomic_umax v4, v{vFA}, {SRD_DBG}, 0 offen offset:4", f"buffer_atomic_umax v5, v{vFA}, {SRD_DBG}, 0 offen offset:8")
            k.e(f"s_cmp_eq_u32 s2, {P.dbg - 1}", f"s_cselect_b32 s35, 0, {OOB>>1:#x}", f"s_cmp_eq_u32 s{sW}, 0", f"s_cselect_b32 s35, s35, {OOB>>1:#x}")
            for i, wd in zip(range(2, n - 1), (3, 5, 6, 7, 9, 10, 11, 13, 14, 15)):
                k.e(f"v_readlane_b32 s33, v0, {i}", "s_sub_u32 s33, s33, s32", "v_mov_b32 v4, s33", f"buffer_store_dword v4, v{vFA}, {SRD_DBG}, s35 offen offset:{4*wd}")
    k.e("s_endpgm")
    k.flush_spins()
    k.label("L_end"); k.e("s_endpgm")
    src = open("cdna_kernels/%s.s.ref" % NAME).read().splitlines()
    out = [l for l in src if l.startswith(";") and "@launch" not in l]
    out.append(f"; @launch grid=(256,1,1) block=(256,1,1) lds={LDS_TOTAL}")
    out += ['.amdgcn_target "amdgcn-amd-amdhsa--gfx950"', ".text"]
    s = "\n".join(out) + "\n" + k.text(verbose=True) + '.section .rodata,"a"\n.p2align 6\n' + kd(name)
    from verify import verify
    assert not verify(s), "a register is used while a load into it is in flight"
    if P.align:
        from align import align
        s = align(s)
    return s, k.stamps
P.x_nobar = 0; P.x_noepi = 0; P.rt = 1; P.dbg = 0; P.h_touch0 = ''; P.outm = ('', ''); P.x1_clean = None; P.h1_plain = 0; P.tags = 0; P.echo = None; P.wo_setup_first = 2; P.gu_pa_late = 0; P.gu_bar_first = 0; P.flagbr = 0; P.rot = 0; P.pk_mod = 'nt'; P.x_mod = ''; P.w_mod = ''; P.t_mod = ''; P.pk_first = 1; P.dn1_agpr = 1; P.poll2 = 2; P.wt = (); P.inplace = 1; P.o0_in_h = 0; P.code1 = 0; P.pk_xor = 0; P.half = 0; P.tlb = 1; P.code0 = 1; P.verbose = 0; P.align = 1; P.gu_cap = 5; P.gu_nw = 5; P.k_touch = 15; P.k_gb = 13; P.k_chk = 16

if __name__ == "__main__":
    path = sys.argv[1] if len(sys.argv) > 1 else "cdna_kernels/%s.s" % NAME
    opts = sys.argv[2:]
    only = None
    for o in opts:
        if o.startswith("only="): only = [x for x in o[5:].split(",") if x]
        if o.startswith("P."):
            n, v = o[2:].split("="); setattr(P, n, eval(v))
    s, st = build(stamps="st" in opts, only=only)
    open(path, "w").write(s)
    if "st" in opts: json.dump([st], open(path + ".json", "w"))
```

```python
import sys, json
from common import *

MF16 = "v_mfma_f32_16x16x32_bf16"
MF16S = "v_mfma_f32_16x16x16_bf16"
MF32 = "v_mfma_f32_32x32x16_bf16"
vL16, vFV, vFA, vP = 2, 8, 9, 10
CSV, CSQ, CSK, RES = 11, 12, 16, 20
OOB = 0x80000000
FL_O, FL_X1, FL_H, FL_X2 = 0, 4096, 8192, 12288
FL_HX = 16384 + 12288
def fl(layer, off): return WS_FLAGS + 16384 * layer + off
sROT, sBUD, sGL, sGS, sDS = 84, 98, 60, 61, 85
sT0, sT1, sPO, sFO = 32, 33, 86, 87
sML, sMS = 68, 69
WS_HXF = WS_O0 - 0x10000 if False else WS_END
WS_ARR = WS_HXF + 0x10000
sTAG, sXCC = 91, 76
WS_STAMP = 0x2000000
L_SA0, L_SA1, L_XH0, L_CS = 80896, 97280, 81920, 79872
def e_of(kk):
    p, tl = divmod(kk, 7)
    return 4 * p + tl if tl < 4 else 16 + 3 * p + (tl - 4)
KK_OF = {e_of(kk): kk for kk in range(28)}

class P:
    a1_bg_start, a1_bg_step = 30, 6
    gu_lead = 9
    gu_bg_start, gu_bg_step = 50, 2.6
    dn_lead = 12
    bgm = ""
    sleep = 0
    drop = ()
    codepf = 0
    ld = "sc1"
    dst = "sc1"
    safe = False
    plain = True
    notouch = ()

BO, BX1, BS1, BH = [WS_O[0]] * 2, [WS_X[0]] * 2, [WS_ST[0]] * 2, [WS_H[0]] * 2
def BX2(): return 0 if P.x_out else (WS_X[0] if P.inplace else WS_X[1])
def XS(): return SRD_OUT if P.x_out else SRD_WS
def LSH(): return 10 if P.x_out else 7
def CSH(): return 7 if P.x_out else 10
def BS2(): return WS_ST[0] if P.inplace else WS_ST[1]
def o_block(d, layer):
    if (layer or P.o0_in_h) and P.inplace: return [f"s_mul_i32 {d}, s{sB}, {224*KB}", f"s_add_u32 {d}, {d}, {BH[0]}"]
    return [f"s_lshl_b32 {d}, s{sB}, 16", f"s_add_u32 {d}, {d}, {BO[layer]}"]
def o_line(layer):
    return [f"s_lshl_b32 s32, s{sB}, 16", f"s_lshl_b32 s33, s{sCS}, 2", f"s_add_u32 s33, s33, s{sW}", "s_lshl_b32 s33, s33, 10",
            "s_add_u32 s32, s32, s33", f"s_add_u32 s32, s32, {BO[layer]}"]
def touch_next(k, t):
    return [lambda: k.touch(t, "p", o_line(1)), lambda: k.touch(t + 1, "q", [f"s_add_u32 s32, s64, {BX2()}"]),
            lambda: k.touch(t + 2, "t", [f"s_add_u32 s32, s65, {BS1[1]}"])]
def gu_tile(d):
    return [f"s_lshl_b32 {d}, s{sC}, 1", f"s_and_b32 s33, s{sW}, 1", f"s_add_u32 {d}, {d}, s33", f"s_lshl_b32 {d}, {d}, 1", f"s_lshr_b32 s33, s{sW}, 1", f"s_add_u32 {d}, {d}, s33"]
def h_base(d, layer):
    return gu_tile(d) + [f"s_mul_i32 {d}, {d}, 112", f"s_mul_i32 s33, s{sM}, 7",
            f"s_add_u32 {d}, {d}, s33", f"s_lshl_b32 {d}, {d}, 10", f"s_add_u32 {d}, {d}, {BH[layer]}"]

class F(K):
    def __init__(self):
        super().__init__(); self.spins = []; self.nspin = 0; self.st = ""; self.npf = 0; self.layer = 0
    def poll_issue(self, va, tag): self.vm(f"buffer_load_dword v{vP}, v{va}, {SRD_WS}, s{sPO} offen sc1", tag)
    def poll_addr(self, va, nl, sh=2):
        self.e(f"v_cmp_gt_u32 vcc, {nl}, v1", f"v_lshlrev_b32 v{va}, {sh}, v1", f"v_mov_b32 v{vP}, {OOB:#x}", f"v_cndmask_b32 v{va}, v{vP}, v{va}, vcc")
        self.nl = nl
    def poll_check(self, va, tag, thr):
        n = self.nspin; self.nspin += 1
        self.stamp(f"poll<{tag}")
        self.wait(vm=[tag])
        self.stamp(f"poll={tag}")
        msk = f"s_and_b32 s99, vcc_lo, {(1 << self.nl) - 1:#x}"
        self.e(f"v_cmp_gt_u32 vcc, {thr}, v{vP}", msk, f"s_cbranch_scc1 L_spin{n} ;np", f"L_back{n}: ;np")
        self.stamp(f"poll>{tag}")
        self.spins += [f"L_spin{n}:", f"s_sub_u32 s{sBUD}, s{sBUD}, 1", f"s_cbranch_scc1 L_give{n}"] + ([f"s_sleep {P.sleep}"] if P.sleep else []) + [
                       f"buffer_load_dword v{vP}, v{va}, {SRD_WS}, s{sPO} offen sc1", "s_waitcnt vmcnt(0)",
                       f"v_cmp_gt_u32 vcc, {thr}, v{vP}", msk, f"s_cbranch_scc1 L_spin{n}", f"s_branch L_back{n}",
                       f"L_give{n}:", f"s_mov_b32 s{sBUD}, 0", f"s_branch L_back{n}"]
    def poll_wait(self, va, tag, thr, alt):
        if not P.poll2:
            self.poll_check(va, tag, thr); return
        n = self.nspin; self.nspin += 1
        ld = lambda r: f"buffer_load_dword v{r}, v{va}, {SRD_WS}, s{sPO} offen sc1"
        tst = lambda r: [f"v_cmp_gt_u32 vcc, {thr}, v{r}", f"s_and_b32 s99, vcc_lo, {(1 << self.nl) - 1:#x}"]
        self.e(f"s_sleep {P.poll2}")
        self.vm(ld(alt), "polljunk")
        self.wait(vm=[tag])
        self.e(*tst(vP)); self.e(f"s_cbranch_scc1 L_spin{n} ;np", f"L_back{n}: ;np")
        self.spins += [f"L_spin{n}:", f"s_sub_u32 s{sBUD}, s{sBUD}, 1", f"s_cbranch_scc1 L_give{n}",
                       ld(vP), "s_waitcnt vmcnt(1)"] + tst(alt) + [f"s_cbranch_scc0 L_back{n}", ld(alt), "s_waitcnt vmcnt(1)"] + tst(vP) + \
                      [f"s_cbranch_scc1 L_spin{n}", f"s_branch L_back{n}", f"L_give{n}:", f"s_mov_b32 s{sBUD}, 0", f"s_branch L_back{n}"]
    def flag(self, val, soff=sFO, st=None):
        self.e(f"v_mov_b32 v{vFV}, {val}")
        if st is not None:
            self.vm(f"buffer_store_dword v{vFV}, v{vFA}, {SRD_WS}, s{soff} offen {st}", "flag"); return
        if P.flagbr:
            self.dstore(f"buffer_store_dword v{vFV}, v{vFA}, {SRD_WS}, s{soff} offen", "flag", True); return
        self.e(f"s_or_b32 s99, s{soff}, s{sML}")
        self.vm(f"buffer_store_dword v{vFV}, v{vFA}, {SRD_WS}, s99 offen", "flag")
        self.e(f"s_or_b32 s99, s{soff}, s{sMS}")
        self.vm(f"buffer_store_dword v{vFV}, v{vFA}, {SRD_WS}, s99 offen sc1", "flag")
    def dstore(self, text, tag, always=False):
        kind = tag[0] if isinstance(tag, tuple) else tag
        if (not P.plain or (self.layer, kind, isinstance(tag, tuple)) in P.wt) and not always:
            self.vm(text + " sc1", tag); return
        n = self.nspin; self.nspin += 1
        self.e(f"s_cmp_lg_u32 s{sML}, 0", f"s_cbranch_scc1 L_alt{n} ;np")
        self.vm(text, tag)
        self.e(f"L_back{n}: ;np")
        self.spins += [f"L_alt{n}:", "s_nop 4", text + " sc1", f"s_branch L_back{n}"]
    def valid(self, test, reload):
        n = self.nspin; self.nspin += 1
        self.e(*test); self.e(f"s_cbranch_vccnz L_rl{n} ;np", f"L_back{n}: ;np")
        self.spins += [f"L_rl{n}:", f"s_sub_u32 s{sBUD}, s{sBUD}, 1", f"s_cbranch_scc1 L_give{n}"] + reload + ["s_waitcnt vmcnt(0)"] + test + \
                      [f"s_cbranch_vccnz L_rl{n}", f"s_branch L_back{n}", f"L_give{n}:", f"s_mov_b32 s{sBUD}, 0", f"s_branch L_back{n}"]
    def touch(self, tmp, kind, base_expr, masked=True):
        if not P.plain or kind in P.notouch: return
        nl = {"p": 16, "q": 16, "s": 2, "t": 2, "h": 56}[kind]
        self.e(f"v_cmp_gt_u32 vcc, {nl}, v1")
        if kind in "pq": self.e(f"v_lshrrev_b32 v{tmp}, 3, v1", f"v_lshlrev_b32 v{tmp}, {15 if kind == 'p' else 13}, v{tmp}", f"v_and_b32 v{vFV}, 7, v1", f"v_lshl_add_u32 v{tmp}, v{vFV}, {LSH() if kind == 'q' else 7}, v{tmp}")
        else: self.e(f"v_lshlrev_b32 v{tmp}, {11 if kind == 's' else 7}, v1")
        self.e(f"v_mov_b32 v{vFV}, {OOB:#x}", *base_expr)
        self.e(f"v_cndmask_b32 v{tmp}, v{vFV}, v{tmp}, vcc")
        if masked: self.e(f"s_or_b32 s32, s32, s{sML}")
        self.vm(f"buffer_load_dword v{tmp}, v{tmp}, {XS() if kind == 'q' else SRD_WS}, s32 offen {P.t_mod}", "touch")
    def vm(self, text, tag=None):
        kind = tag[0] if isinstance(tag, tuple) else tag
        if kind in P.drop:
            self.seen.add(tag); return
        super().vm(text, tag)
    def codepf(self, t):
        if not P.codepf: return
        n = self.npf; self.npf += 1
        self.e(f"L_pf{n}: ;np", f"s_lshl_b32 s32, s{sW}, 12", f"s_add_u32 s32, s32, L_pf{n}-L_pc", f"v_lshl_add_u32 v{t+2}, v1, 7, s32", f"v_min_u32 v{t+2}, L_end-L_pc, v{t+2}",
               f"v_mov_b32 v{t+1}, s101", f"v_add_co_u32 v{t}, vcc, s100, v{t+2}", f"v_addc_co_u32 v{t+1}, vcc, 0, v{t+1}, vcc", "s_mov_b32 exec_hi, 0")
        self.vm(f"global_load_dword v{t+2}, v[{t}:{t+1}], off", "code")
        self.e("s_mov_b64 exec, -1")
    def flush_spins(self):
        for l in self.spins: self.e(l)
        self.spins = []

def batch(k, i):
    src = f"s_add_u32 s62, s{sGS}, {i*16384}" if i < 15 else f"s_add_u32 s62, s{sDS}, {(16 + 4*(i-15))*1024}"
    def f(q):
        k.set_m0(f"s_add_u32 m0, s{sGL}, {(i % 10)*16384}")
        if i != 14: k.set_s(src)
        elif k.last.get(62) != f"s_cselect_b32 s62, {OOB>>1:#x}, s62":
            k.e(src, f"s_cmp_ge_u32 s{sW}, 2", f"s_cselect_b32 s62, {OOB>>1:#x}, s62")
        k.vm(f"buffer_load_dwordx4 v{vL16}, {SRD_WS}, s62 offen offset:{q*1024} {P.bgm} lds", ("gw", i))
    return [lambda q=q: f(q) for q in range(4)]

def bg_batches(k, bs, period, dep=lambda b: None):
    for b in bs:
        for f in batch(k, b): k.bg_add(f, period, ("gw", b), dep(b))
def bg_list(k, fns, period, tag, dep=None):
    for f in fns: k.bg_add(f, period, tag, dep)

def regloads(k, base_sgpr, off, dst, n, tag, tmp=63, tagf=None):
    fns = []
    for j in range(n):
        def f(j=j):
            k.set_s(f"s_add_u32 s{tmp}, s{base_sgpr}, {off + (j & ~3)*1024}")
            k.vm(f"buffer_load_dwordx4 {dst(j)}, v{vL16}, {SRD_WS}, s{tmp} offen offset:{(j%4)*1024} {P.bgm}", tagf(j) if tagf else tag)
        fns.append(f)
    return fns
def wow(k):
    def f(i, q):
        k.set_m0(f"s_add_u32 m0, s{sGL}, {(6 + i)*16384}"); k.set_s(f"s_add_u32 s63, s88, {i*16384}")
        k.vm(f"buffer_load_dwordx4 v{vL16}, {SRD_WS}, s63 offen offset:{q*1024} lds", "wow")
    return [lambda i=i, q=q: f(i, q) for i in range(4) for q in range(4)]

def pack_issue(k):
    k.e(f"s_xor_b32 s99, s2, {P.pk_xor}")
    for r in (68, 69, 72, 73, 74, 75, 76, 77): assert k.writer[r].startswith("s_load"), f"kernel argument s{r} overwritten"
    k.e("v_lshrrev_b32 v44, 3, v1", "v_and_b32 v43, 7, v1", "v_and_b32 v45, 2, v44", "v_lshlrev_b32 v45, 1, v45",
        "v_xor_b32 v43, v43, v45", "v_lshlrev_b32 v43, 4, v43", f"s_add_u32 s34, s49, {L_X + 4096}")
    k.e("s_cmp_ge_u32 s99, 112", "s_cbranch_scc1 L_pki_small")
    k.e("s_and_b32 s35, s99, 1", "s_bfe_u32 s36, s99, 0x10001", "s_lshr_b32 s37, s99, 2")
    k.e("s_cmp_eq_u32 s35, 0", "s_cselect_b32 s24, s72, s74", "s_cselect_b32 s25, s73, s75",
        f"s_mov_b32 s26, {512*3584:#x}", "s_mov_b32 s27, 0x20000")
    k.e("v_mul_u32_u24 v46, 3584, v44", "v_add_u32 v46, v46, v43")
    k.e("s_lshl_b32 s38, s36, 2", f"s_add_u32 s38, s38, s{sW}", f"s_mul_i32 s38, s38, {64*3584}",
        "s_lshl_b32 s39, s37, 7", "s_add_u32 s38, s38, s39")
    for i in range(8):
        k.e(f"s_add_u32 m0, s34, {(i>>2)*8192 + (i&3)*1024}", f"s_add_u32 s39, s38, {i*8*3584}", f"buffer_load_dwordx4 v46, {SRD_PK}, s39 offen {P.pk_mod} lds")
    k.e("s_branch L_pki_done")
    k.label("L_pki_small")
    k.e("s_sub_u32 s35, s99, 112", "s_lshl_b32 s35, s35, 3", f"s_lshl_b32 s36, s{sW}, 1", "s_add_u32 s35, s35, s36")
    k.e("s_cmp_lt_u32 s35, 896", "s_cselect_b32 s24, s76, s68", "s_cselect_b32 s25, s77, s69", f"s_mov_b32 s26, {512*1024:#x}",
        f"s_cselect_b32 s26, {1792*1024:#x}, s26", "s_mov_b32 s27, 0x20000", "s_cselect_b32 s37, 1, 0",
        "s_movk_i32 s38, 896", "s_cselect_b32 s38, 0, s38")
    k.e("s_cselect_b32 s39, 0, 1", "s_cselect_b32 s70, 14, 15", "s_movk_i32 s71, 0x4000", "s_cselect_b32 s71, 0x80, s71")
    k.e("s_sub_u32 s35, s35, s38", "s_lshr_b32 s35, s35, s39", "s_and_b32 s36, s35, 7", "s_lshr_b32 s35, s35, 3")
    k.e("v_lshl_add_u32 v46, v44, 10, v43", "s_lshl_b32 s38, s35, s70", "s_lshl_b32 s39, s36, 7", "s_add_u32 s38, s38, s39")
    for i in range(2):
        for h in range(2):
            k.e(f"s_add_u32 m0, s34, {(2*i+h)*1024}", f"s_add_u32 s39, s38, {h*8192}", f"buffer_load_dwordx4 v46, {SRD_PK}, s39 offen {P.pk_mod} lds")
        if i == 0: k.e("s_add_u32 s38, s38, s71")
    k.label("L_pki_done")
    k.vmq.append("pk"); k.seen.add("pk")

PQ = [76, 80, 84, 88, 92, 96, 36, 40]
def pack_process(k, mid1, mid2):
    k.e("v_bfe_u32 v46, v1, 2, 2", "v_and_b32 v47, 3, v1", "v_bfe_u32 v48, v1, 4, 1", "v_lshrrev_b32 v49, 5, v1")
    k.e("v_and_b32 v50, 2, v46", "v_add_u32 v50, v50, v48", "v_lshlrev_b32 v50, 5, v50",
        "v_lshl_add_u32 v50, v46, 7, v50", "v_lshl_add_u32 v50, v47, 3, v50", "v_add_u32 v50, s34, v50")
    k.e("s_cmp_ge_u32 s99, 112", "s_cbranch_scc1 L_pk_small")
    q0 = list(k.vmq)
    k.e("v_lshl_add_u32 v56, v49, 10, v50", "v_xor_b32 v57, 64, v56")
    k.e("s_lshl_b32 s39, s37, 2", "v_add_u32 v58, s39, v48")
    k.e("s_lshl_b32 s70, s36, 2", f"s_add_u32 s70, s70, s{sW}", "s_lshl_b32 s70, s70, 2")
    k.e("v_and_b32 v66, 15, v1", "s_lshl_b32 s71, s35, 8", "v_lshl_add_u32 v66, v66, 4, s71")
    for p in range(2):
        T, fs, tl, st_, b, aug = 59, 60, 61, 62 + p, 64 + p, 68 + p
        k.e(f"v_add_u32 v{T}, {2*p}, v58", f"v_mul_u32_u24 v{fs}, 9363, v{T}", f"v_lshrrev_b32 v{fs}, 16, v{fs}",
            f"v_mul_u32_u24 v{tl}, 7, v{fs}", f"v_sub_u32 v{tl}, v{T}, v{tl}")
        k.e(f"v_cmp_gt_u32 vcc, 3, v{tl}", f"v_mul_u32_u24 v67, 33, v{tl}", f"v_mov_b32 v{st_}, 1", "v_mov_b32 v70, 3",
            f"v_cndmask_b32 v67, v67, v{tl}, vcc", f"v_cndmask_b32 v{st_}, v{st_}, v70, vcc")
        k.e(f"v_mul_u32_u24 v{fs}, 231, v{fs}", f"v_add_u32 v67, v67, v{fs}")
        k.e(f"v_lshl_add_u32 v70, v{st_}, 5, v67", "v_lshlrev_b32 v70, 10, v70", "v_add_u32 v70, v70, v66",
            "s_lshl_b32 s71, s36, 9", f"v_add_u32 v{aug}, s71, v70")
        k.e(f"v_mul_lo_u32 v70, v{st_}, s70", "v_add_u32 v67, v67, v70", "v_lshlrev_b32 v67, 10, v67",
            "v_add_u32 v67, v67, v66", f"v_lshl_add_u32 v{b}, v49, 9, v67", f"v_lshlrev_b32 v{st_}, 10, v{st_}")
    k.e("v_mov_b32 v71, 0x3f803f80", "v_mov_b32 v72, 0", "v_mov_b32 v73, 0", "v_cmp_gt_u32 vcc, 32, v1", "v_mov_b32 v46, 0", "v_mov_b32 v47, 0",
        "v_cndmask_b32 v68, v69, v68, vcc", f"s_lshl_b32 s72, s{sW}, 8", "s_add_u32 s72, s72, 0x10000", "v_lshl_add_u32 v74, v1, 2, s72",
        "v_lshlrev_b32 v75, 2, v1", "v_add_u32 v75, 0x10000, v75")
    k.e(f"s_mov_b32 s70, {WS_PGU}", "s_mov_b32 s71, s70", "s_mov_b32 s72, s70", "s_mov_b32 s73, s70", f"s_cmp_eq_u32 s{sW}, 0", f"s_cselect_b32 s74, s70, {OOB>>1:#x}")
    k.wait(vm="pk")
    for ks in range(4):
        for p in range(2):
            for j in range(2): k.ds(f"ds_read_b64_tr_b16 {vr(PQ[2*ks+p]+2*j,2)}, v{56+p} offset:{(ks>>1)*8192 + (ks&1)*2048 + j*512}", ("t", ks, p))
        if ks == 2: k.wait(lg=[("t", 0, 1)])
    mid1()
    for ks in range(4):
        for p in range(2):
            k.wait(lg=[("t", ks, p)])
            for d in range(4): k.e(f"v_dot2c_f32_bf16 v{72+p}, v{PQ[2*ks+p]+d}, v71")
    k.e("v_permlane32_swap_b32 v72, v73", "v_add_f32 v72, v72, v73")
    k.ds(f"ds_write_b32 v74, v72 offset:{L_CS - 65536}")
    k.wait(lg="all"); k.e("s_barrier")
    for w in range(4): k.ds(f"ds_read_b32 v{56+w}, v75 offset:{L_CS - 65536 + 256*w}")
    mid2()
    k.wait(lg="all")
    k.e("v_add_f32 v56, v56, v57", "v_add_f32 v58, v58, v59", "v_add_f32 v56, v56, v58")
    k.e("v_cvt_pk_bf16_f32 v45, v56, v46", "v_lshlrev_b32 v57, 16, v45", "v_sub_f32 v57, v56, v57", "v_cvt_pk_bf16_f32 v44, v56, v57")
    k.e("s_branch L_pk_done")
    k.label("L_pk_small")
    k.vmq = list(q0)
    k.e(f"v_mov_b32 v64, v{vL16}", f"v_add_u32 v65, 1024, v{vL16}", f"v_mov_b32 v68, v{vL16}", f"s_mov_b32 s72, {OOB>>1:#x}", "s_mov_b32 s73, s72", "s_mov_b32 s74, s72")
    k.e("s_cmp_eq_u32 s37, 0", "s_cbranch_scc1 L_pk_wo")
    k.e("s_mul_i32 s38, s35, 2341", "s_lshr_b32 s38, s38, 16", "s_mul_i32 s39, s38, 28", "s_sub_u32 s39, s35, s39",
        "s_mul_i32 s70, s39, 9363", "s_lshr_b32 s70, s70, 16", "s_mul_i32 s71, s70, 7", "s_sub_u32 s71, s39, s71")
    for u in range(2):
      k.e(f"s_sub_u32 s39, s70, s36" if P.hrot else "s_mov_b32 s39, s70", f"s_sub_u32 s39, s39, {u if P.hrot else 0}", "s_and_b32 s39, s39, 3",
        "s_lshl_b32 s32, s39, 2", "s_add_u32 s32, s32, s71", "s_mul_i32 s33, s39, 3", "s_add_u32 s33, s33, s71", "s_add_u32 s33, s33, 12",
        "s_cmp_lt_u32 s71, 4", "s_cselect_b32 s32, s32, s33", "s_mul_i32 s33, s38, 28", "s_add_u32 s32, s32, s33", f"s_lshl_b32 s{(35, 37)[u]}, s32, 11")
    k.e("v_lshl_add_u32 v56, v49, 9, v50", "v_xor_b32 v57, 64, v56", f"v_mov_b32 v62, {224*KB}", f"v_mov_b32 v63, {224*KB}")
    k.e(f"s_mul_i32 s36, s36, {224*KB}", f"s_add_u32 s36, s36, {WS_PDN}", "s_add_u32 s70, s36, s35", "s_add_u32 s71, s36, s37")
    k.wait(vm="pk")
    for i in range(2):
        for nn in range(2):
            for j in range(2): k.ds(f"ds_read_b64_tr_b16 {vr(PQ[2*i+nn]+2*j,2)}, v{56+nn} offset:{i*2048 + j*1024}", "t")
    mid1(); mid2()
    k.wait(lg="all")
    k.e("s_branch L_pk_done")
    k.label("L_pk_wo")
    k.vmq = list(q0)
    k.e("v_and_b32 v56, 2, v46", "v_lshlrev_b32 v56, 1, v56", "v_xor_b32 v56, v56, v47", "v_lshlrev_b32 v56, 4, v56", "v_lshl_add_u32 v56, v46, 7, v56",
        "v_lshrrev_b32 v57, 4, v1", "v_lshl_add_u32 v56, v57, 10, v56", "v_add_u32 v56, s34, v56", "v_xor_b32 v57, 64, v56",
        "v_mov_b32 v62, 0x800", "v_mov_b32 v63, 0x800")
    k.e("s_lshl_b32 s36, s36, 16", "s_lshl_b32 s35, s35, 12", "s_add_u32 s70, s36, s35", f"s_add_u32 s70, s70, {WS_PWO}", "s_mov_b32 s71, s70")
    k.wait(vm="pk")
    for j in range(4):
        for jj in range(2): k.ds(f"ds_read_b64_tr_b16 {vr(PQ[j]+2*jj,2)}, v{56+(j>>1)} offset:{jj*512 + 8*(j&1)}", "t")
    mid1(); mid2()
    k.wait(lg="all")
    k.label("L_pk_done")

def pack_stores(k):
    ops = []
    for r in range(4):
        for p in range(2):
            ops.append(("v", lambda r=r, p=p: k.vm(f"buffer_store_dwordx4 {vr(PQ[2*r+p],4)}, v{64+p}, {SRD_WS}, s{70+r} offen sc1", "pks")))
            if r < 3: ops.append(("a", lambda p=p: k.e(f"v_add_u32 v{64+p}, v{64+p}, v{62+p}")))
    ops.append(("v", lambda: k.vm(f"buffer_store_dwordx4 v[44:47], v68, {SRD_WS}, s74 offen sc1", "pks")))
    return ops

A_XF, A_K, A_V, A_Q = 36, 76, 86, 96
A_STA, A_STB, A_OP, A_DX, A_PA, A_ST, A_ACC = 104, 106, 144, 152, 153, 140, 184
class R0: XE, XO, SA, SB, CI, ONE, M, ATT, TMP = 3, 4, 5, 6, 28, 32, 52, (116, 160), 60
class R1: XE, XO, SA, SB, CI, ONE, M, ATT, TMP = 116, 117, 118, 119, 252, 124, 120, (228, 160), 28
A_U, A_PX = 226, 115
A11_ORDER = [2, 3, 1, 0, "h"]
A11_POS = {2: 3, 3: 0, 1: 1, 0: 2, "h": 3}
sODD, sCUR0, sCUR1, sCEXP = 40, 42, 44, 46

def a1_setup(k, layer):
    R = (R0, R1)[layer]
    real = k; out = []
    class Rec:
        def e(self, *t):
            if any(x.startswith("s_cmp") for x in t): out.append(lambda t=t: real.e(*t))
            else: out.extend(lambda x=x: real.e(x) for x in t)
    k = Rec()
    t16, g, tt, tb = R.TMP, R.TMP + 1, R.TMP + 2, R.TMP + 3
    x, y, z = R.ONE, R.ONE + 1, R.ONE + 2
    sa = L_SA0 if layer == 0 else L_SA1
    k.e(f"v_and_b32 v{t16}, 15, v1", f"v_lshrrev_b32 v{g}, 4, v1", f"v_and_b32 v{tt}, 7, v1", f"v_bfe_u32 v{tb}, v1, 3, 1")
    k.e(f"v_lshlrev_b32 v{tb}, 13, v{tb}")
    if layer == 0: k.e(f"v_add_u32 v{tb}, {L_X}, v{tb}")
    if layer == 0:
        k.e(f"v_and_b32 v{x}, 6, v{tt}", f"v_xor_b32 v{x}, v{x}, v{g}", f"v_lshlrev_b32 v{x}, 4, v{x}",
            f"v_lshl_add_u32 v{x}, v{tt}, 7, v{x}", f"v_add_u32 v{R.XE}, v{x}, v{tb}", f"v_xor_b32 v{R.XO}, 64, v{R.XE}")
    else:
        k.e(f"v_lshl_add_u32 v{x}, v{g}, 7, v{tb}", f"v_lshl_add_u32 v{R.XE}, v{tt}, 4, v{x}", f"v_add_u32 v{R.XO}, 512, v{R.XE}")
    k.e(f"v_lshlrev_b32 v{R.SA}, 3, v{t16}", f"v_add_u32 v{R.SA}, {sa}, v{R.SA}",
        f"v_lshlrev_b32 v{R.SB}, 5, v{g}", f"v_add_u32 v{R.SB}, {sa}, v{R.SB}")
    k.e(f"v_and_b32 v{x}, 1, v1", f"v_cmp_eq_u32 s[{sODD}:{sODD+1}], 1, v{x}",
        f"v_lshl_add_u32 v{y}, v{g}, 2, v{x}", f"v_cmp_le_u32 s[{sCUR0}:{sCUR0+1}], v{y}, v{t16}",
        f"v_add_u32 v{y}, 2, v{y}", f"v_cmp_le_u32 s[{sCUR1}:{sCUR1+1}], v{y}, v{t16}")
    k.e(f"v_mov_b32 v{y}, 0xffff", f"v_mov_b32 v{z}, 0xffff0000", f"v_cndmask_b32 v{y}, v{y}, v{z}, s[{sODD}:{sODD+1}]", f"v_mov_b32 v{z}, 0")
    k.e(f"v_cndmask_b32 v{R.M+2}, v{z}, v{y}, s[{sCUR0}:{sCUR0+1}]", f"v_cndmask_b32 v{R.M}, v{y}, v{z}, s[{sCUR0}:{sCUR0+1}]",
        f"v_cndmask_b32 v{R.M+3}, v{z}, v{y}, s[{sCUR1}:{sCUR1+1}]", f"v_cndmask_b32 v{R.M+1}, v{y}, v{z}, s[{sCUR1}:{sCUR1+1}]")
    k.e(f"s_cmp_eq_u32 s{sB}, 0", f"s_cselect_b32 s70, {f2u(-1e38):#x}, 0", f"s_mov_b32 s{sCEXP}, {f2u(0.25*LOG2E):#x}")
    for i in range(4): k.e(f"v_mov_b32 v{R.CI+i}, s70", f"v_mov_b32 v{R.ONE+i}, 0x3f803f80")
    return out

def o_bases(k, layer):
    k.e(*o_block("s32", layer))
    k.e(f"s_lshl_b32 s33, s{sCS}, 2", f"s_add_u32 s33, s33, s{sW}", "s_lshl_b32 s53, s33, 10", "s_add_u32 s53, s53, s32", "s_add_u32 s54, s53, 32768",
        f"s_lshl_b32 s32, s{sB}, 5", "s_add_u32 s32, s32, s33", "s_lshl_b32 s32, s32, 2", f"s_add_u32 s89, s32, {fl(layer, FL_O)}")

def ln_finish(a, s, q):
    a(f"v_mul_f32 v{s}, {f2u(-1/512):#x}, v{s}"); a(f"v_mul_f32 v{q}, {f2u(1/512):#x}, v{q}")
    a(f"v_fma_f32 v{q}, -v{s}, v{s}, v{q}"); a(f"v_max_f32 v{q}, 0, v{q}"); a(f"v_add_f32 v{q}, {f2u(1e-5):#x}, v{q}")

A_QS = 68
def fix_reads(k, R, t, S):
    i = 0 if t == "h" else t + 1
    return [lambda: k.ds(f"ds_read_b64 {vr(S,2)}, v{R.SA} offset:{i*128}", ("sa", t)),
            lambda: k.ds(f"ds_read_b128 {vr(S+2,4)}, v{R.SB} offset:{i*128}", ("sa", t)),
            lambda: k.ds(f"ds_read_b128 {vr(S+6,4)}, v{R.SB} offset:{i*128+16}", ("sa", t))]
def fix(k, R, fx, t, acc, at, pk, S=A_STA, pre=False, nxt=()):
    a = lambda txt, c=1, at=0: fx.add(lambda: k.e(txt), c, at)
    i = 0 if t == "h" else t + 1
    if not pre:
        for n, f in enumerate(fix_reads(k, R, t, S)): fx.add(f, 1, at - P.a1_salead if n == 0 else 0)
    fx.add(lambda: k.wait(lg=[("sa", t)]), 1, at)
    for f in nxt: fx.add(f)
    for r0, cs, dst in ((acc[0], CSQ, None if t == "h" else A_Q + 2*t), (acc[1], CSK, A_K + 2*i)):
        if dst is None: continue
        isq = cs == CSQ
        if pk:
            for h in (0, 2): a(f"v_pk_fma_f32 {vr(r0+h,2)}, {vr(S,2)}, {vr(cs+h,2)}, {vr(r0+h,2)} op_sel_hi:[0,1,1]")
            if not isq:
                for h in (0, 2): a(f"v_pk_mul_f32 {vr(r0+h,2)}, {vr(S,2)}, {vr(r0+h,2)} op_sel:[1,0] op_sel_hi:[1,1]")
        else:
            for r in range(4): a(f"v_fmac_f32 v{r0+r}, v{S}, v{cs+r}")
            if not isq:
                for r in range(4): a(f"v_mul_f32 v{r0+r}, v{S+1}, v{r0+r}")
        if isq: a(f"v_mul_f32 v{A_QS+t}, s{sCEXP}, v{S+1}")
        for h in range(2): a(f"v_cvt_pk_bf16_f32 v{dst+h}, v{r0+2*h}, v{r0+2*h+1}")
    r0 = acc[2]
    for r in range(4): a(f"v_fmac_f32 v{r0+r}, v{S+2+2*r}, v{CSV}")
    for r in range(4): a(f"v_mul_f32 v{r0+r}, v{S+3+2*r}, v{r0+r}")
    for h in range(2): a(f"v_cvt_pk_bf16_f32 v{A_V+2*i+h}, v{r0+2*h}, v{r0+2*h+1}")
    fx.add(lambda: (k.mark(("fix", t)), k.stamp(f"t0 fix{t}")), 0)

def attn(k, R, fx, t, B):
    SC, SP, PP, O, SUM, T = B, B + 4, B + 8, B + 12, B + 16, B + 20
    a = lambda txt, c=1: fx.add(lambda: k.e(txt), c)
    q = vr(A_Q + 2*t, 2)
    fx.dep(("fix", t)); fx.dep(("fix", t - 1 if t else "h")); fx.skip(1)
    a(f"{MF16S} {vr(SC,4)}, {vr(A_K+2*(t+1),2)}, {q}, 0", 2)
    a(f"{MF16S} {vr(SP,4)}, {vr(A_K+2*t,2)}, {q}, {vr(R.CI,4) if t == 0 else '0'}", 2)
    fx.skip(3)
    for rr, cur in ((0, sCUR0), (1, sCUR1)):
        a(f"v_cndmask_b32 v{T+2}, v{SC+2*rr}, v{SC+2*rr+1}, s[{sODD}:{sODD+1}]")
        a(f"v_cndmask_b32 v{T+3}, v{SP+2*rr}, v{SP+2*rr+1}, s[{sODD}:{sODD+1}]")
        a(f"v_cndmask_b32 v{T+rr}, v{T+3}, v{T+2}, s[{cur}:{cur+1}]")
    a(f"v_max_f32 v{T+2}, v{T}, v{T+1}"); a(f"v_mov_b32 v{T+3}, v{T+2}"); fx.skip(1)
    a(f"v_permlane16_swap_b32 v{T+2}, v{T+3}", 2); a(f"v_max_f32 v{T+2}, v{T+2}, v{T+3}"); a(f"v_mov_b32 v{T+3}, v{T+2}"); fx.skip(1)
    a(f"v_permlane32_swap_b32 v{T+2}, v{T+3}", 2); a(f"v_max_f32 v{T+2}, v{T+2}, v{T+3}")
    a(f"v_mul_f32 v{T+2}, v{A_QS+t}, v{T+2}")
    for rr in range(2): a(f"v_fma_f32 v{T+rr}, v{T+rr}, v{A_QS+t}, -v{T+2}")
    for rr in range(2): a(f"v_exp_f32 v{T+rr}, v{T+rr}", 2)
    for rr in range(2): a(f"v_cvt_pk_bf16_f32 v{T+rr}, v{T+rr}, v{T+rr}")
    a(f"v_and_b32 v{PP}, v{T}, v{R.M}"); a(f"v_and_b32 v{PP+1}, v{T+1}, v{R.M+1}")
    a(f"v_and_b32 v{PP+2}, v{T}, v{R.M+2}"); a(f"v_and_b32 v{PP+3}, v{T+1}, v{R.M+3}")
    fx.skip(1)
    a(f"{MF16} {vr(SUM,4)}, {vr(R.ONE,4)}, {vr(PP,4)}, 0", 2)
    a(f"{MF16} {vr(O,4)}, {vr(A_V+2*t,4)}, {vr(PP,4)}, 0", 2)
    fx.skip(3)
    a(f"v_rcp_f32 v{T}, v{SUM}", 2); fx.skip(1)
    for r in range(4): a(f"v_mul_f32 v{O+r}, v{T}, v{O+r}")
    for h in range(2): a(f"v_cvt_pk_bf16_f32 v{A_OP+2*t+h}, v{O+2*h}, v{O+2*h+1}")
    fx.add(lambda: (k.mark(("attn", t)), k.stamp(f"t0 attn{t}")), 0)

def ostore(k, fx, pair):
    b = A_OP + 4 * pair
    fx.dep(("attn", 2*pair)); fx.dep(("attn", 2*pair + 1))
    fx.dep("po1" if pair == 0 else "blank")
    fx.skip(1)
    fx.add(lambda: k.e(f"v_permlane16_swap_b32 v{b}, v{b+2}"), 2); fx.add(lambda: k.e(f"v_permlane16_swap_b32 v{b+1}, v{b+3}"), 2)
    fx.add(lambda: (k.dstore(f"buffer_store_dwordx4 {vr(b,4)}, v{vL16}, {SRD_WS}, s{53+pair} offen", ("ost", pair)), k.mark(("ost", pair))))

Z_WD, Z_TR, Z_HE, Z_HO, Z_OE, Z_OO = 164, 165, 166, 167, 168, 169
Z_XF, Z_SUM, Z_GR, Z_SUMH, Z_GRH, Z_CV = 104, 240, 244, 248, 252, 100
P.k_first = 4; P.k_pack = None; P.k_prep = 12
P.k_look, P.k_atom, P.k_bar, P.k_vgap, P.k_pst, P.k_pgap = 3, 5, 3, 3, 3, 0
NS0 = 6
def z_acc(t):
    if t == "h": return (None, A_ACC + 48, A_ACC + 52)
    return (A_ACC + 12*t, A_ACC + 12*t + 4, A_ACC + 12*t + 8)

def a10_lanes(k):
    k.e("v_lshrrev_b32 v60, 3, v1", "v_and_b32 v61, 6, v60", "v_and_b32 v62, 7, v1", "v_xor_b32 v61, v61, v62",
        "v_lshlrev_b32 v61, 4, v61", f"v_lshl_add_u32 v{A_DX}, v60, 10, v61")
    k.e("v_and_b32 v61, 2, v60", f"s_and_b32 s32, s{sW}, 1", "s_lshl_b32 s32, s32, 2", "v_or_b32 v61, s32, v61", "v_xor_b32 v61, v61, v62",
        "v_lshlrev_b32 v61, 4, v61", "v_mul_u32_u24 v60, 3072, v60", f"v_add_u32 v{Z_WD}, v60, v61")
    if P.rot == 0: k.e(f"s_add_u32 s{sROT}, s{sB}, s{sCS}")
    elif P.rot == 1: k.e(f"s_lshl_b32 s32, s{sB}, 1", f"s_bfe_u32 s33, s{sB}, 0x10002", "s_add_u32 s32, s32, s33", f"s_add_u32 s{sROT}, s32, s{sCS}")
    elif P.rot == 2: k.e(f"s_lshl_b32 s32, s{sB}, 1", f"s_add_u32 s{sROT}, s32, s{sCS}")
    elif P.rot == 3: k.e(f"s_mov_b32 s{sROT}, s{sCS}")
    elif P.rot == 4: k.e(f"s_lshl_b32 s32, s{sB}, 1", f"s_bfe_u32 s33, s{sB}, 0x10002", f"s_add_u32 s{sROT}, s32, s33")
    elif P.rot == 5: k.e(f"s_mov_b32 s{sROT}, 0")
    k.e(f"s_and_b32 s{sROT}, s{sROT}, 7")
    k.e(f"s_lshl_b32 s47, s{sB}, 3", "s_sub_u32 s48, s47, 2", "s_max_i32 s48, s48, 0", f"s_and_b32 s32, s{sW}, 1", "s_add_u32 s48, s48, s32",
        "s_lshl_b32 s48, s48, 13", f"s_lshl_b32 s32, s{sW}, 1", "s_add_u32 s47, s47, s32", "s_lshl_b32 s47, s47, 13")
    k.e(f"s_mul_i32 s51, s{sW}, {8*3072}", f"s_lshl_b32 s32, s{sCS}, 7", "s_add_u32 s51, s51, s32", f"s_mul_i32 s52, s{sW}, 3072")
    k.e(f"s_lshl_b32 s49, s{sW}, 14", f"s_and_b32 s32, s{sW}, 1", "s_lshl_b32 s50, s32, 13", f"s_lshr_b32 s32, s{sW}, 1",
        "s_lshl_b32 s33, s32, 10", "s_add_u32 s50, s50, s33", f"s_add_u32 s90, s32, s{sROT}")

def a10_x(k, c):
    S = lambda *t: [("s", lambda x=x: k.e(x)) for x in t]
    ld = lambda: k.vm(f"buffer_load_dwordx4 v{A_DX}, {SRD_X}, s33 offen {P.x_mod} lds", ("x", c))
    ops = S(f"s_add_u32 s33, s{sROT}, {c}", "s_and_b32 s33, s33, 7", "s_lshl_b32 s33, s33, 7", f"s_add_u32 m0, s49, {L_X + c*1024}", "s_add_u32 s33, s33, s47")
    ops += [("v", ld)] + S(f"s_add_u32 m0, s49, {L_X + 8192 + c*1024}", "s_add_u32 s33, s33, 8192") + [("v", ld)]
    if c % 2 == 0:
        ops += S(f"s_add_u32 s33, s90, {c}", "s_and_b32 s33, s33, 7", "s_lshl_b32 s33, s33, 7", f"s_add_u32 m0, s50, {L_XH0 + c*1024}", "s_add_u32 s33, s33, s48") + [("v", ld)]
    return ops

def a10_w(k, s):
    S = lambda *t: [("s", lambda x=x: k.e(x)) for x in t]
    if s & 1: ops = S(f"s_add_u32 m0, s52, {(s % NS0)*12288}", f"s_add_u32 s63, s63, {32*3072}")
    else: ops = S(f"s_add_u32 s63, s{sROT}, {s>>1}", "s_and_b32 s63, s63, 7", f"s_mul_i32 s63, s63, {64*3072}", f"s_add_u32 m0, s52, {(s % NS0)*12288}", "s_add_u32 s63, s63, s51")
    for p in range(3): ops.append(("v", lambda p=p: k.vm(f"buffer_load_dwordx4 v{Z_WD}, {SRD_QKV}, s63 offen offset:{p*1024} {P.w_mod} lds", ("w", s))))
    return ops
def run(ops):
    for _, f in ops: f()

def fill(k, mains, streams, cap=2):
    lastv = -99
    for g, m in enumerate(mains):
        m(); k.gap = g
        for a, o in streams:
            if a <= g and o and o[0][0] == "s": o.pop(0)[1](); break
        room = cap; nd = 0
        if g - lastv >= P.k_vgap and k.bg_step(): room -= 1; lastv = g
        while room > 0:
            pick = None
            for a, o in streams:
                if a > g or not o: continue
                t = o[0][0]
                if t == "d" and nd >= 1: continue
                if t == "v" and g - lastv < P.k_vgap: continue
                pick = o; break
            if pick is None: break
            t, f = pick.pop(0); f(); room -= 2 if t == "b" else 1
            if t == "d": nd += 1
            if t == "v": lastv = g
    for a, o in streams: run(o)

def a10_lanes2(k):
    k.e("v_lshrrev_b32 v60, 4, v1", "v_bfe_u32 v61, v1, 2, 2", "v_and_b32 v62, 1, v60", "v_lshlrev_b32 v62, 1, v62",
        "v_lshrrev_b32 v63, 1, v61", "v_or_b32 v62, v62, v63", f"v_xor_b32 v62, s{sW}, v62", "v_lshlrev_b32 v62, 5, v62",
        "v_mul_u32_u24 v60, 3072, v60", "v_lshl_add_u32 v60, v61, 7, v60", "v_add_u32 v60, v60, v62",
        "v_and_b32 v61, 3, v1", f"v_lshl_add_u32 v{Z_TR}, v61, 3, v60")
    k.e("v_and_b32 v60, 15, v1", "v_cmp_eq_u32 s[78:79], 0, v60")
    k.e(f"v_subrev_u32 v{Z_HE}, 16384, v{R0.XE}", f"v_subrev_u32 v{Z_HO}, 16384, v{R0.XO}",
        f"v_add_u32 v{Z_OE}, s49, v{R0.XE}", f"v_add_u32 v{Z_OO}, s49, v{R0.XO}")

def a10_loop(k, first):
    LA = P.k_look
    def sync(s, extra=()):
        k.wait(vm=[("w", s), ("x", s >> 1)] + list(extra)); k.e("s_barrier")
    nxt = [first]
    def dmas(upto):
        out = []
        while nxt[0] <= min(upto, 15):
            n = nxt[0]; nxt[0] += 1
            if n % 2 == 0: out += a10_x(k, n // 2)
            out += a10_w(k, n)
        return out
    def reads(s):
        fb = Z_XF + 24 * (s & 1); off = (s >> 1) * 1024; o = s & 1
        tr = lambda p, j: ("d", lambda: k.ds(f"ds_read_b64_tr_b16 {ar(12*s+4*p+2*j,2)}, v{Z_TR} offset:{(s%NS0)*12288 + p*1024 + j*512}", ("r", s, 0 if p == 0 else 1)))
        xr = lambda d, a, of, grp: ("d", lambda: k.ds(f"ds_read_b128 {vr(d,4)}, v{a} offset:{of}", ("r", s, grp)))
        out = [tr(0, 0), tr(0, 1)] + [xr(fb + 4*t, R0.XO if o else R0.XE, t*16384 + off, 0) for t in range(4)]
        out += [tr(1, 0), tr(1, 1), tr(2, 0), tr(2, 1), xr(fb + 16, Z_HO if o else Z_HE, off, 1), xr(fb + 20, Z_OO if o else Z_OE, off, 1)]
        return out
    l0_background(k)
    pst = pack_stores(k)
    sync(0)
    k.stamp("k0")
    run(reads(0)); run(dmas(LA - 1))
    for s in range(16):
        fb = Z_XF + 24 * (s & 1)
        c = lambda r: "0" if s == 0 else vr(r, 4)
        wq, wk, wv, one = ar(12*s, 4), ar(12*s + 4, 4), ar(12*s + 8, 4), vr(R0.ONE, 4)
        ms = [f"{MF16} {vr(z_acc(t)[0],4)}, {wq}, {vr(fb+4*t,4)}, {c(z_acc(t)[0])}" for t in range(4)]
        for t in [0, 1, 2, 3, "h"]:
            xf = vr(fb + (16 if t == "h" else 4*t), 4)
            ms.append(f"{MF16} {vr(z_acc(t)[1],4)}, {wk}, {xf}, {c(z_acc(t)[1])}")
            ms.append(f"{MF16} {vr(z_acc(t)[2],4)}, {xf}, {wv}, {c(z_acc(t)[2])}")
        ms += [f"{MF16} {vr(Z_CV,4)}, {wq}, {vr(fb+16,4)}, {c(Z_CV)}",
               f"{MF16} {vr(Z_SUM,4)}, {one}, {vr(fb+20,4)}, {c(Z_SUM)}", f"{MF16} {vr(Z_GR,4)}, {vr(fb+20,4)}, {vr(fb+20,4)}, {c(Z_GR)}",
               f"{MF16} {vr(Z_SUMH,4)}, {one}, {vr(fb+16,4)}, {c(Z_SUMH)}", f"{MF16} {vr(Z_GRH,4)}, {vr(fb+16,4)}, {vr(fb+16,4)}, {c(Z_GRH)}"]
        mains = [lambda m=m: k.e(m) for m in ms]
        if s == P.k_pack:
            k.wait(lg="all"); pack_process(k, lambda: None, lambda: None)
        k.wait(lg=[("r", s, 0)])
        streams = [(3, [("s", lambda: k.wait(lg=[("r", s, 1)]))] +
                       [("a", lambda d=d: k.e(f"v_cndmask_b32 v{fb+16+d}, v{fb+16+d}, v{R0.ONE}, s[78:79]")) for d in range(4)])]
        if s + 1 < 16:
            ex = ["pks"] if s + 1 == P.k_atom else []
            assert not ex or not pst, "arrival before the last pack store"
            assert P.k_prep > 14 - LA and (P.k_pack or 0) <= 8 - LA
            ops = [("b", lambda: sync(s + 1, ex))] + reads(s + 1)
            if ex: ops.append(("b", lambda: arrive(k)))
            streams.append((P.k_bar, ops))
            streams.append((0, dmas(s + LA)))
        n = 0; mine = []
        while pst and s >= (P.k_pack or 0) and (n < P.k_pst or pst[0][0] == "a"):
            n += pst[0][0] == "v"; mine.append(pst.pop(0))
        streams.append((P.k_pgap, mine))
        if s == P.k_prep: streams.append((6, tail_prep(k)))
        if s == P.k_touch:
            streams.append((2, [("b", lambda: k.touch(157, "p", ["s_mov_b32 s32, s53"], False) if (0, "ost", True) not in P.wt else None),
                                ("b", lambda: k.touch(158, "q", [f"s_add_u32 s32, s64, {BX2()}"], False) if (0, "xst", False) not in P.wt and P.x1_at == "k" else None),
                                ("b", lambda: k.touch(159, "h", h_base("s32", 0), False) if P.h_touch0 == "k" else None)]))
        if s == P.k_gb: streams.append((1, [("v", lambda t=t: k.vm(t, "gb")) for t in GB_LOADS]))
        if s == P.k_chk: streams.append((1, [("b", lambda: rendezvous(k))]))
        if s == 15 and P.k_chk < 16:
            streams.append((max(P.k_bar, 4), [("b", lambda: (k.e("s_barrier"), k.mark("xfree")))]))
        fill(k, mains, streams)
        if s in (3, 7, 11): k.stamp(f"k{s+1}")
    k.stamp("k16")
    if P.k_chk >= 16: rendezvous(k)

GB_LOADS = [f"buffer_load_dwordx4 {vr(36+4*j,4)}, v{vL16}, {SRD_WS}, s75 offen offset:{j*1024} sc1" for j in range(4)] + \
           [f"buffer_load_dword v{vP}, v172, {SRD_WS}, s77 offen offset:8 sc1"]
def arrive(k):
    k.wait(vm=["tag"])
    k.e(f"v_readfirstlane_b32 s{sTAG}, v170", f"s_cmp_eq_u32 s{sTAG}, 0", "s_cbranch_scc1 L_tag_spin ;np", "L_tag_ok: ;np")
    k.spins += ["L_tag_spin:", f"s_sub_u32 s{sBUD}, s{sBUD}, 1", "s_cbranch_scc1 L_tag_give", f"buffer_load_dword v170, v{vFA}, {SRD_DBG}, 0 offen sc1",
                "s_waitcnt vmcnt(0)", f"v_readfirstlane_b32 s{sTAG}, v170", f"s_cmp_eq_u32 s{sTAG}, 0", "s_cbranch_scc1 L_tag_spin", "s_branch L_tag_ok",
                "L_tag_give:", f"s_mov_b32 s{sBUD}, 0", "s_branch L_tag_ok"]
    k.e(f"v_mov_b32 v176, s{sTAG}", "v_not_b32 v177, v176", f"v_mov_b32 v178, s{sXCC}")
    k.vm(f"buffer_store_dwordx4 v[176:179], v171, {SRD_WS}, s75 offen sc1", "arr")

def rendezvous(k):
    chk = [f"s_not_b32 s32, s{sTAG}"]
    for j in range(4): chk += [f"v_xor_b32 v{36+4*j}, s{sTAG}, v{36+4*j}", f"v_xor_b32 v{37+4*j}, s32, v{37+4*j}"]
    chk += ["v_or3_b32 v36, v36, v37, v40", "v_or3_b32 v44, v44, v45, v41", "v_or3_b32 v36, v36, v48, v49", "v_or_b32 v36, v36, v44", "v_cmp_ne_u32 vcc, 0, v36"]
    k.wait(vm=["gb"])
    k.e(*chk); k.e("s_cbranch_vccnz L_gb_spin ;np", "L_gb_ok: ;np")
    k.spins += ["L_gb_spin:", f"s_sub_u32 s{sBUD}, s{sBUD}, 1", "s_cbranch_scc1 L_gb_give", "s_sleep 2",
                f"buffer_load_dword v170, v{vFA}, {SRD_DBG}, 0 offen sc1", "s_waitcnt vmcnt(0)", "v_readfirstlane_b32 s32, v170", f"s_cmp_eq_u32 s32, s{sTAG}",
                "s_cbranch_scc1 L_gb_same", f"s_mov_b32 s{sTAG}, s32", f"v_mov_b32 v176, s{sTAG}", "v_not_b32 v177, v176",
                f"buffer_store_dwordx4 v[176:179], v171, {SRD_WS}, s75 offen sc1", "L_gb_same:"] + GB_LOADS + ["s_waitcnt vmcnt(0)"] + chk + \
               ["s_cbranch_vccnz L_gb_spin", "s_branch L_gb_ok", "L_gb_give:", f"s_mov_b32 s{sBUD}, 0", "s_branch L_gb_ok"]
    k.e(f"v_cmp_ne_u32 vcc, s{sXCC}, v{vP}", "s_and_b32 s99, vcc_lo, 0xffff" if not P.safe else "s_and_b32 s99, 1, 1",
        f"s_cselect_b32 s{sML}, {OOB>>1:#x}, 0", f"s_cselect_b32 s{sMS}, 0, {OOB>>1:#x}")
    k.mark("gb")

W_OA, W_UA, W_SA, W_RB = 152, 154, 155, 156
def wo_bases(k):
    k.e(f"s_lshl_b32 s32, s{sB}, 2", f"s_add_u32 s32, s32, s{sW}", "s_lshl_b32 s64, s32, 14", f"s_lshl_b32 s33, s{sCS}, {CSH()}", "s_add_u32 s64, s64, s33",
        "s_lshr_b32 s32, s32, 1", "s_lshl_b32 s80, s32, 15", "s_lshl_b32 s65, s32, 11", "s_lshl_b32 s66, s32, 3", f"s_add_u32 s66, s66, s{sCS}", "s_lshl_b32 s66, s66, 1",
        f"s_and_b32 s32, s{sW}, 1", "s_add_u32 s66, s66, s32", "s_lshl_b32 s66, s66, 2", "s_lshl_b32 s32, s32, 8", "s_add_u32 s80, s80, s32", "s_add_u32 s65, s65, s32",
        f"s_lshr_b32 s32, s{sCS}, 1", "s_lshl_b32 s32, s32, 9", "s_add_u32 s65, s65, s32", f"s_and_b32 s32, s{sCS}, 1", "s_lshl_b32 s32, s32, 3", "s_add_u32 s65, s65, s32")
def wo_lanes(k):
    x, y = 66, 67
    return [lambda t=t: k.e(*t) for t in (
        [f"v_and_b32 v{x}, 15, v1"], [f"v_lshrrev_b32 v{y}, 4, v1"], [f"v_lshlrev_b32 v{W_OA}, 4, v{x}"], [f"v_lshl_add_u32 v{W_SA}, v{y}, 2, v{W_OA}"],
        [f"v_lshl_add_u32 v{W_OA}, v{y}, 9, v{W_OA}"], [f"v_and_b32 v{W_UA}, 7, v1"], [f"v_lshlrev_b32 v{W_UA}, 4, v{W_UA}"], [f"v_lshl_add_u32 v{W_UA}, v{y}, {LSH()}, v{W_UA}"],
        [f"v_lshrrev_b32 v{x}, 3, v{x}"], [f"v_lshl_add_u32 v{W_UA}, v{x}, 13, v{W_UA}"], [f"v_add_u32 v{W_RB}, {6*16384}, v{vL16}"],
        ["v_cmp_gt_u32 vcc, 32, v1", f"v_mov_b32 v{y}, {OOB:#x}", f"v_cndmask_b32 v{W_SA}, v{y}, v{W_SA}, vcc"])]
def blanks(k, layer):
    if not P.tags: return [lambda: k.mark("blank")]
    z = 66
    return [lambda: (k.e(f"v_mov_b32 v{z}, -1"), k.dstore(f"buffer_store_dword v{z}, v{vL16}, {SRD_WS}, s53 offen", "blank")),
            lambda: (k.e(f"s_add_u32 s58, s64, {BX2()}"), k.dstore(f"buffer_store_dword v{z}, v{W_UA}, {SRD_WS}, s58 offen", "blank")),
            lambda: k.dstore(f"buffer_store_dword v{z}, v{W_UA}, {SRD_WS}, s58 offen offset:512", "blank"),
            lambda: (k.e(f"s_add_u32 s58, s65, {BS1[layer]}"), k.dstore(f"buffer_store_dword v{z}, v{W_SA}, {SRD_WS}, s58 offen", "blank"), k.mark("blank"))]
def wo_prepoll(k, layer):
    k.poll_addr(A_PA, 32)
    k.e(f"s_lshl_b32 s32, s{sB}, 7", f"s_add_u32 s{sPO}, s32, {fl(layer, FL_O)}", *o_block("s59", layer), "s_and_b32 s32, s80, 0xffff", "s_add_u32 s59, s59, s32")
    k.bg_held = True
    k.poll_issue(A_PA, "po1"); k.mark("po1")

def dna(k): return regloads(k, sDS, 0, lambda j: ar(192 + 4*j, 4), 16, "dna")

def tail_prep(k):
    R = R0
    A = lambda *t: [("a", lambda x=x: k.e(x)) for x in t]
    B = lambda *t: [("b", lambda: k.e(*t))]
    ops = A("v_and_b32 v73, 15, v1", "v_lshrrev_b32 v74, 4, v1", "v_lshlrev_b32 v73, 10, v73", "v_lshl_add_u32 v73, v74, 4, v73")
    ops += B(f"s_lshl_b32 s58, s{sB}, 2", f"s_add_u32 s58, s58, s{sW}", "s_lshl_b32 s58, s58, 14", f"s_lshl_b32 s59, s{sCS}, 7", "s_add_u32 s58, s58, s59")
    ops += [("v", lambda p=p: k.vm(f"buffer_load_dwordx4 {vr(RES+4*p,4)}, v73, {SRD_X}, s58 offen offset:{p*64}", "res")) for p in range(2)]
    ops += A("v_and_b32 v75, 3, v1", "v_cmp_eq_u32 s[34:35], 1, v75", "v_cmp_eq_u32 s[36:37], 2, v75", "v_cmp_eq_u32 s[38:39], 3, v75", "v_bfe_u32 v75, v1, 2, 2")
    ops += B("v_cmp_eq_u32 vcc, v75, v74", f"v_mov_b32 v72, {L_SA0 + 768}", f"s_lshl_b32 s59, s{sW}, 7", f"v_add_u32 v74, s59, v{R.SA}",
             "v_cndmask_b32 v74, v72, v74, vcc", f"v_cndmask_b32 v75, v72, v{R.SA}, vcc")
    return ops + [("a", f) for f in wo_lanes(k)]

def l0_background(k):
    k.per = dict(P.per_k)
    dd = dna(k)
    bg_list(k, dd[:P.dna_first], "s4", "dna", "gb")
    bg_list(k, wow(k), "s4", "wow", "xfree")
    bg_batches(k, [0, 1, 2, 3], "s2", lambda b: "xfree")
    bg_batches(k, [4], "s2", lambda b: "wobar")
    bg_batches(k, [5], "s2", lambda b: "xfree")
    bg_batches(k, [6, 7, 8, 9], "s2", lambda b: "gubar")
    bg_list(k, dd[P.dna_first:], "s4", "dna")
P.per_k = {"s2": 90, "s4": 70}

def a10_tail(k):
    R = R0
    k.per = dict(P.per_tail0)
    k.stamp("t0 gb")
    xt = [lambda: k.touch(72, "t", [f"s_add_u32 s32, s65, {BS1[0]}"])]
    if P.x1_at != "k": xt.append(lambda: k.touch(158, "q", [f"s_add_u32 s32, s64, {BX2()}"]))
    if (0, "xst", False) in P.wt: xt = []
    if P.x1_at == "k":
        for f in xt: f()
    k.bg_burst(P.tail_burst); k.bg_next = k.t + P.tail_delay
    hk, hv = z_acc("h")[1], z_acc("h")[2]
    for r in range(4):
        k.e(f"v_mov_b32_dpp v{CSQ+r}, v{Z_CV+r} row_newbcast:0 row_mask:0xf bank_mask:0xf", f"v_mov_b32_dpp v{CSK+r}, v{hk+r} row_newbcast:0 row_mask:0xf bank_mask:0xf")
    k.e(f"v_mov_b32 v{CSV}, v{hv}", f"v_mov_b32 v45, v{hv}", f"v_permlane16_swap_b32 v{CSV}, v45", f"v_mov_b32 v45, v{CSV}", f"v_permlane32_swap_b32 v{CSV}, v45")
    fa = Flex(); fb = Flex()
    for fx, S, G, ad, off in ((fa, Z_SUM, Z_GR, 74, 128), (fb, Z_SUMH, Z_GRH, 75, 0)):
        a = lambda txt, c=1, fx=fx: fx.add(lambda: k.e(txt), c)
        a(f"v_cndmask_b32 v{S+1}, v{G}, v{G+1}, s[34:35]"); a(f"v_cndmask_b32 v{S+1}, v{S+1}, v{G+2}, s[36:37]"); a(f"v_cndmask_b32 v{S+1}, v{S+1}, v{G+3}, s[38:39]")
        ln_finish(a, S, S + 1); a(f"v_rsq_f32 v{S+1}, v{S+1}"); fx.skip(1)
        fx.add(lambda S=S, ad=ad, off=off: k.ds(f"ds_write_b64 v{ad}, {vr(S,2)} offset:{off}", "saw"))
    drain([fa, fb], k)
    for f in blanks(k, 0): f()
    k.wait(lg="all"); k.e("s_barrier"); k.mark("xfree")
    k.stamp("t0 bar")
    fx = Flex(); f1 = Flex(); f2 = Flex()
    od = (2, 1, 3, 0, "h"); Ss = (A_STA, 56)
    for f in fix_reads(k, R, od[0], Ss[0]): f()
    for n, t in enumerate(od):
        fix(k, R, fx, t, z_acc(t), 0, True, Ss[n & 1], True, fix_reads(k, R, od[n + 1], Ss[~n & 1]) if n < 4 else ()); fx.skip(1)
    attn(k, R, f1, 2, R.ATT[0]); attn(k, R, f2, 3, R.ATT[1]); ostore(k, f2, 1)
    attn(k, R, f1, 1, R.ATT[0]); attn(k, R, f2, 0, R.ATT[1]); ostore(k, f2, 0)
    f4 = Flex()
    if P.x1_at != "k":
        f4.dep(P.x1_at)
        for f in xt: f4.add(f)
    f3 = Flex(); f3.dep(("ost", 1))
    for _ in range(P.l0_flag_delay): f3.skip(1)
    f3.add(lambda: (k.wait(vm=[("ost", 1)]), k.flag(1, 89), k.mark("oflag1")))
    f3.dep(("attn", 0)); f3.add(lambda: wo_prepoll(k, 0))
    drain([fx, f1, f2, f3, f4], k)
    k.stamp("a1 end")
P.x1_at = 'k'; P.tail_burst = 2; P.tail_delay = 0; P.l0_flag_delay = 6; P.dna_first = 2
P.per_tail0 = {"s2": 70, "s4": 45}

def a11_bases(k):
    out = []
    S = lambda *t: out.extend(lambda x=x: k.e(x) for x in t)
    S(f"s_lshr_b32 s70, s{sW}, 1", "s_lshl_b32 s49, s70, 13", f"s_and_b32 s71, s{sW}, 1", "s_lshl_b32 s71, s71, 2",
      f"s_add_u32 s50, s71, s{sROT}", "s_lshl_b32 s71, s71, 10")
    for i in range(4):
        S(f"s_add_u32 s70, s50, {i}", "s_and_b32 s70, s70, 7", f"s_lshl_b32 s70, s70, {CSH()}", "s_add_u32 s70, s70, s49", f"s_sub_u32 s{92+i}, s70, {0 if P.x_out else i*1024}")
    S("s_add_u32 s49, s49, s71", f"s_lshl_b32 s47, s{sB}, 16", f"s_add_u32 s47, s47, {BX2()}")
    S(f"s_sub_u32 s48, s{sB}, 1", "s_max_i32 s48, s48, 0", "s_lshl_b32 s51, s48, 10", f"s_add_u32 s51, s51, {WS_HST}",
      "s_lshl_b32 s52, s48, 11", f"s_add_u32 s52, s52, {WS_HXF}", "s_lshl_b32 s48, s48, 14", f"s_add_u32 s48, s48, {WS_HALO}")
    S("v_lshrrev_b32 v28, 4, v1", "v_and_b32 v29, 15, v1", "v_lshlrev_b32 v29, 4, v29", f"v_lshl_add_u32 v{A_U}, v28, 9, v29", f"v_lshl_add_u32 v{A_U+1}, v28, 8, v29")
    S(f"s_lshl_b32 s70, s{sB}, 12", f"s_and_b32 s71, s{sW}, 1", "s_lshl_b32 s71, s71, 8", "s_add_u32 s70, s70, s71", f"s_add_u32 s90, s70, {BS2()}")
    out.append(lambda: k.e(f"s_lshl_b32 s70, s{sB}, 1", f"s_add_u32 s70, s70, s{sW}", "s_lshl_b32 s72, s70, 13", f"s_lshl_b32 s71, s{sCS}, {CSH()}", "s_add_u32 s72, s72, s71",
        f"s_add_u32 s72, s72, {WS_HALO - 16384}", f"s_cmp_ge_u32 s{sW}, 2", f"s_cselect_b32 s72, s72, {OOB>>1:#x}"))
    out.append(lambda: k.e(f"s_lshl_b32 s73, s{sB}, 10", f"s_lshr_b32 s71, s{sCS}, 1", "s_lshl_b32 s71, s71, 8", "s_add_u32 s73, s73, s71", f"s_and_b32 s71, s{sCS}, 1",
        "s_lshl_b32 s71, s71, 3", "s_add_u32 s73, s73, s71"))
    out.append(lambda: k.e(f"s_lshl_b32 s71, s{sW}, 7", "s_add_u32 s73, s73, s71", f"s_add_u32 s73, s73, {WS_HST - 256}",
        f"s_cmp_ge_u32 s{sW}, 2", f"s_cselect_b32 s73, s73, {OOB>>1:#x}"))
    out.append(lambda: k.e(f"s_lshl_b32 s70, s{sB}, 3", f"s_add_u32 s70, s70, s{sCS}", "s_lshl_b32 s70, s70, 1", f"s_add_u32 s70, s70, s{sW}", "s_lshl_b32 s70, s70, 7",
        f"s_add_u32 s70, s70, {WS_HXF - 256}", f"s_cmp_ge_u32 s{sW}, 2", f"s_cselect_b32 s91, s70, {OOB>>1:#x}"))
    return out

def a11_x(k, tile):
    fns = []
    for i in range(4):
        def f(i=i):
            k.set_m0(f"s_add_u32 m0, s49, {A11_POS[tile]*16384 + (i*1024 if P.x_out else 0)}")
            k.e(f"s_add_u32 s32, s{48 if tile == 'h' else 47}, s{92+i}")
            if tile not in (0, "h"): k.e(f"s_add_u32 s32, s32, {tile*16384}")
            k.vm(f"buffer_load_dwordx4 v{RX(False)}, {SRD_WS if tile == 'h' else XS()}, s32 offen offset:{0 if P.x_out else i*1024} sc1 lds", ("x", tile))
        fns.append(f)
    return fns

def stats_path(k, fx, S, tag, addr, tok, at=0):
    a = lambda txt, c=1: fx.add(lambda: k.e(txt), c)
    s, q = S, S + 1
    fx.add(lambda: k.wait(vm=[tag]), 1, at)
    a(f"v_add_f32 v{s}, v{s}, v{S+2}"); a(f"v_add_f32 v{q}, v{q}, v{S+3}"); fx.skip(1)
    a(f"v_permlane16_swap_b32 v{s}, v{q}", 2); a(f"v_add_f32 v{s}, v{s}, v{q}"); a(f"v_mov_b32 v{q}, v{s}"); fx.skip(1)
    a(f"v_permlane32_swap_b32 v{s}, v{q}", 2); a(f"v_add_f32 v{s}, v{s}, v{q}"); a(f"v_mov_b32 v{q}, v{s}"); fx.skip(1)
    a(f"v_permlane16_swap_b32 v{s}, v{q}", 2)
    ln_finish(a, s, q); a(f"v_rsq_f32 v{q}, v{q}", 2); fx.skip(1)
    fx.add(lambda: (k.ds(f"ds_write_b64 v{addr}, {vr(s,2)} offset:{tok*8}", ("saw", tag)), k.mark(("saw", tag))))

def a11_early(k, later=False):
    fns = a11_x(k, A11_ORDER[0]) + [lambda: k.vm(f"buffer_load_dwordx4 {vr(A_ST,4)}, v{A_U}, {SRD_WS}, s90 offen offset:2048 sc1", "st0")] + a11_x(k, A11_ORDER[1])
    if later: return fns
    for f in fns: f()

def a11_main(k):
    R = R1; order = A11_ORDER
    steps = [(t, s) for t in order for s in range(16)]
    accof = lambda t: A_ACC + 12 * (order.index(t) % 3)
    def xread(i):
        t, s = steps[i]
        off = A11_POS[t] * 16384 + (s >> 1) * 1024
        k.ds(f"ds_read_b128 {vr(A_XF+4*(i%4),4)}, v{R.XO if s&1 else R.XE} offset:{off}", ("xf", i))
    mains = []; fixed = {}; gap_of = {}
    need_sa = {order[1]: ["st0"], order[2]: ["st1"], order[3]: [], "h": []}
    for i, (t, s) in enumerate(steps):
        acc = accof(t); xf = vr(A_XF + 4*(i % 4), 4)
        c = lambda r, s=s: "0" if s == 0 else vr(r, 4)
        ms = []
        if t != "h": ms.append(f"{MF16} {vr(acc,4)}, {ar(12*s,4)}, {xf}, {c(acc)}")
        ms.append(f"{MF16} {vr(acc+4,4)}, {ar(12*s+4,4)}, {xf}, {c(acc+4)}")
        ms.append(f"{MF16} {vr(acc+8,4)}, {xf}, {ar(12*s+8,4)}, {c(acc+8)}")
        gap_of[(t, s)] = len(mains)
        for m in ms: mains.append(lambda m=m: k.e(m))
        last = len(mains) - 1
        fl_ = fixed.setdefault(last, [])
        if i + 1 < len(steps): fl_.append((0, lambda i=i: k.wait(lg=[("xf", i + 1)])))
        j = i + 4
        if j < len(steps):
            tj, sj = steps[j]
            if sj == 0:
                def bar(tj=tj):
                    k.wait(vm=[("x", tj)], lg=[("saw", n) for n in need_sa[tj]]); k.e("s_barrier"); k.mark(("bar", tj))
                fixed.setdefault(gap_of[(t, s)], []).append((1, bar))
            fixed[last].append((1, lambda j=j: xread(j)))
    fx = Flex(); fz = Flex(); fz2 = Flex(); fy = Flex(); fm = Flex()
    k.e(f"s_and_b32 s32, s{sW}, 1", "s_lshl_b32 s32, s32, 7", f"v_add_u32 v6, s32, v{R.SA}")
    o_bases(k, 1)
    stats_path(k, fy, A_ST, "st0", 6, 48)
    g1 = P.a1_late_gap
    fm.add(lambda: (k.wait(vm=[("xst", 1)]), k.flag(2)), 3, P.a1_flag_gap)
    fm.add(lambda: (k.poll_issue(A_PX, "px2"), setattr(k, "bg_held", not P.a1_bg_early)), 1, g1 - P.a1_poll_lead)
    fm.add(lambda: k.poll_check(A_PX, "px2", 2), 2, g1)
    fm.add(lambda: k.vm(f"buffer_load_dwordx4 {vr(56,4)}, v{A_U}, {SRD_WS}, s90 offen sc1", "st1"))
    for t in order[2:4]:
        for f in a11_x(k, t): fm.add(f, 2); fm.skip(P.a1_xgap)
    for f in wo_lanes(k): fy.add(f)
    fy.add(lambda: k.mark("wolanes"), 0)
    fm.dep("wolanes")
    for p in range(2):
        fm.add(lambda p=p: (k.e(f"s_add_u32 s58, s64, {BX2() + (p << (2 + LSH()))}"), k.vm(f"buffer_load_dwordx4 {vr(RES+4*p,4)}, v{W_UA}, {XS()}, s58 offen sc1", "res")), 2); fm.skip(P.a1_xgap)
    def halo_poll():
        k.poll_addr(A_PX, 16, 7)
        k.e(f"s_mov_b32 s{sPO}, s52", f"s_min_u32 s50, s{sB}, 1")
        k.poll_issue(A_PX, "phx"); k.bg_held = False
    fm.add(halo_poll, 3)
    for c in P.t1_a1:
        if c == "o": fm.add(lambda: k.touch(60, "p", ["s_mov_b32 s32, s53"]), 6)
        if c == "x": fm.add(lambda: k.touch(62, "q", [f"s_add_u32 s32, s64, {BX2()}"]), 6)
        if c == "s": fm.add(lambda: k.touch(64, "t", [f"s_add_u32 s32, s65, {BS1[1]}"]), 4)
    for f in blanks(k, 1): fm.skip(P.a1_xgap); fm.add(f, 3)
    stats_path(k, fy, 56, "st1", 6, 16, g1 + 26)
    fm.dep(("bar", order[2]))
    fm.add(lambda: k.poll_check(A_PX, "phx", "s50"), 2)
    fm.add(lambda: k.vm(f"buffer_load_dwordx4 {vr(A_ST,4)}, v{A_U+1}, {SRD_WS}, s51 offen sc1", "sth"))
    for f in a11_x(k, "h"): fm.add(f, 2); fm.skip(P.a1_xgap)
    stats_path(k, fy, A_ST, "sth", R.SA, 0, gap_of[(order[3], P.a1_sth)])
    k.per = dict(P.per_a1); k.bg_held = True
    b5 = batch(k, 5)
    mix = [(f, "s2", ("gw", 4), None) for f in batch(k, 4)] + [(f, "s2", ("gw", 5), None) for f in b5[:3]]
    ww = [(f, "s4", "wow", None) for f in wow(k)]
    while mix or ww:
        k.bg += ww[:2]; ww = ww[2:]
        if mix: k.bg.append(mix.pop(0))
    bg_batches(k, [0], "s2", lambda b: ("bar", order[3]))
    bg_batches(k, [1], "s2", lambda b: ("bar", "h"))
    bg_batches(k, [2, 3], "s2", lambda b: "wobar")
    bg_list(k, b5[3:], "s2", ("gw", 5), "wobar")
    if P.dn1_agpr:
        for j, f in enumerate(regloads(k, sDS, 16*1024, lambda j: ar(4*j, 4), 40, "dnr", tagf=lambda j: ("dnr", 8 + j // 2))): k.bg_add(f, "s4", ("dnr", 8 + j // 2), "gemm_done")
    bg_batches(k, [6, 7, 8, 9], "s2", lambda b: "gubar")
    A = lambda t: (accof(t) if t != "h" else None, accof(t) + 4, accof(t) + 8)
    for n in range(4): fix(k, R, fx, order[n], A(order[n]), gap_of[(order[n + 1], 1 if n < 3 else 2)], False)
    attn(k, R, fz, 3, R.ATT[0]); attn(k, R, fz2, 2, R.ATT[1]); ostore(k, fz2, 1)
    attn(k, R, fz, 1, R.ATT[0])
    fx.dep(("saw", "sth"))
    for f in fix_reads(k, R, "h", A_STA): fx.add(f)
    fx.dep("gemm_done")
    fix(k, R, fx, "h", A("h"), 0, False, pre=True); attn(k, R, fz2, 0, R.ATT[1]); ostore(k, fz2, 0)
    f3 = Flex(); f3.dep(("ost", 1)); f3.skip(P.l1_flag_delay)
    f3.add(lambda: (k.wait(vm=[("ost", 1)]), k.flag(1, 89), k.mark("oflag1")), 3)
    f3.dep(("attn", 0)); f3.add(lambda: wo_prepoll(k, 1))
    k.wait(vm=[("x", order[0])]); k.e("s_barrier")
    for i in range(4): xread(i)
    k.wait(lg=[("xf", 0)])
    k.stamp("a1 first")
    if k.stamping:
        for t in order[1:]: fixed.setdefault(gap_of[(t, 0)], []).append((0, lambda t=t: k.stamp(f"a1 t{t}")))
        for g in range(6, 224, 12): fixed.setdefault(g, []).append((0, lambda g=g: k.stamp(f"fina {g}")))
    run_gaps(k, mains, fixed, [fm, f3, fy, fx, fz2, fz], 2, over=lambda i: i >= P.a1_over)
    print("a11 left:", len(fm), len(fy), len(fx), len(fz), len(fz2), len(k.bg), {n: g for n, g in k.marks.items() if isinstance(n, tuple) and n[0] in ("fix", "attn", "saw", "ost")})
    k.mark("gemm_done"); k.bg_held = P.a1_tailhold
    k.stamp("a1 gemm")
    drain([fm, fy, fx, fz, fz2, f3], k)
    for n in range(2): assert k.marks[("fix", order[n])] < gap_of[(order[n + 3], 0)], "accumulator reused too early"
    k.stamp("a1 end")
P.a1_flag_gap, P.a1_late_gap, P.a1_poll_lead, P.l1_flag_delay, P.a1_over = 8, 36, 18, 14, 48
P.a1_bg_early = False; P.a1_salead = 8; P.a1_tailhold = True; P.touch1 = 1; P.t1_a1 = ''; P.t1_dn = ''; P.a1_xgap = 3; P.a1_sth = 4
P.per_a1 = {"s2": 80, "s4": 50}

R_W0, R_W1, R_RD, R_ST, R_OUT = 3, 4, 5, 6, 7
def RX(final): return vL16 if not P.x_out else (29 if final else R_OUT)
def red_setup(k, posA, dAB, final):
    x, y, z, u = 28, 29, 30, 31
    k.e(f"s_add_u32 s32, s{sGL}, {posA*16384}", f"v_add_u32 v{R_W0}, s32, v{vL16}", f"v_xor_b32 v{R_W1}, 128, v{R_W0}")
    k.e(f"v_and_b32 v{x}, 7, v1", f"v_lshrrev_b32 v{y}, 3, v1", f"s_lshl_b32 s32, s{sW}, 7", f"v_lshl_add_u32 v{z}, v{x}, 4, s32",
        f"v_bfe_u32 v{u}, v1, 4, 1", f"v_lshlrev_b32 v{R_RD}, 7, v{u}", f"v_xor_b32 v{z}, v{z}, v{R_RD}",
        f"v_bfe_u32 v{R_RD}, v1, 3, 2", f"v_lshl_add_u32 v{z}, v{R_RD}, 10, v{z}", f"v_lshrrev_b32 v{R_RD}, 5, v1",
        f"v_mul_u32_u24 v{R_RD}, {dAB*16384}, v{R_RD}", f"v_add_u32 v{z}, v{z}, v{R_RD}", f"v_add_u32 v{R_RD}, {posA*16384}, v{z}")
    k.e(f"v_lshlrev_b32 v{z}, 4, v{x}", f"v_lshl_add_u32 v{z}, v{u}, 2, v{z}", f"v_and_b32 v{u}, 0x28, v1",
        f"v_cmp_eq_u32 vcc, 0, v{u}", f"v_mov_b32 v{u}, {OOB:#x}", f"v_cndmask_b32 v{R_ST}, v{u}, v{z}, vcc")
    if final: k.e(f"v_lshlrev_b32 v{z}, 10, v{x}", f"v_lshl_add_u32 v{R_OUT}, v{y}, 4, v{z}")
    if P.x_out: k.e(f"v_lshlrev_b32 v{z}, 10, v{y}", f"v_lshl_add_u32 v{RX(final)}, v{x}, 4, v{z}")

def red_bases(k):
    k.e(f"s_lshl_b32 s32, s{sB}, 3", f"s_add_u32 s32, s32, s{sW}", "s_lshl_b32 s55, s32, 13", f"s_lshl_b32 s33, s{sCS}, {CSH()}", "s_add_u32 s55, s55, s33")
    k.e("s_lshl_b32 s57, s32, 13", f"s_lshl_b32 s33, s{sCS}, 7", "s_add_u32 s57, s57, s33")
    k.e(f"s_lshl_b32 s56, s{sB}, 12", f"s_lshr_b32 s33, s{sCS}, 1", "s_lshl_b32 s33, s33, 9", "s_add_u32 s56, s56, s33",
        f"s_and_b32 s33, s{sCS}, 1", "s_lshl_b32 s33, s33, 3", "s_add_u32 s56, s56, s33", f"s_lshl_b32 s33, s{sW}, 7", "s_add_u32 s56, s56, s33")

def red_writes(k, acc, g, off, dAB):
    return [lambda q=q: k.ds(f"ds_write_b128 v{R_W1 if (q>>1)&1 else R_W0}, {vr(acc+4*q,4)} offset:{off + (q>>2)*dAB*16384 + (q&3)*1024}", ("rw", g)) for q in range(8)]
def red_reads(k, g, T, off):
    return [lambda w=w, hf=hf: k.ds(f"ds_read_b128 {vr(T+8*w+4*hf,4)}, v{R_RD} offset:{off + w*4096 + hf*512}", ("rr", g, w)) for w in range(4) for hf in range(2)]

def red_finish(k, fx, g, mm, T, xdst, stdst, final, pk):
    a = lambda txt, c=1: fx.add(lambda: k.e(txt), c)
    R = RES + 4 * mm
    def add8(d, s):
        if pk:
            for i in range(0, 8, 2): a(f"v_pk_add_f32 {vr(d+i,2)}, {vr(d+i,2)}, {vr(s+i,2)}")
        else:
            for i in range(8): a(f"v_add_f32 v{d+i}, v{d+i}, v{s+i}")
    fx.add(lambda: k.wait(lg=[("rr", g, 1)]))
    add8(T, T + 8)
    for i in range(4): a(f"v_lshlrev_b32 v{T+8+2*i}, 16, v{R+i}"); a(f"v_and_b32 v{T+9+2*i}, 0xffff0000, v{R+i}")
    add8(T, T + 8)
    fx.add(lambda: k.wait(lg=[("rr", g, 3)]))
    add8(T + 16, T + 24); add8(T, T + 16)
    for i in range(4): a(f"v_cvt_pk_bf16_f32 v{R+i}, v{T+2*i}, v{T+2*i+1}")
    if final:
        fx.add(lambda: (k.e(f"s_add_u32 s32, s57, {mm*32768}"), k.vm(f"buffer_store_dwordx4 {vr(R,4)}, v{R_OUT}, {SRD_OUT}, s32 offen {P.outm[g]}", ("xst", g))))
        return
    fx.add(lambda: (k.e(f"s_add_u32 s32, s55, {xdst + mm*32768}"), k.dstore(f"buffer_store_dwordx4 {vr(R,4)}, v{RX(final)}, {XS()}, s32 offen", ("xst", g))), 2)
    s, q = T + 32, T + 33
    a(f"v_add_f32 v{s}, v{T}, v{T+1}"); a(f"v_mul_f32 v{q}, v{T}, v{T}"); a(f"v_fmac_f32 v{q}, v{T+1}, v{T+1}")
    for i in range(2, 8): a(f"v_add_f32 v{s}, v{s}, v{T+i}"); a(f"v_fmac_f32 v{q}, v{T+i}, v{T+i}")
    fx.skip(1)
    a(f"v_add_f32_dpp v{s}, v{s}, v{s} row_ror:8 row_mask:0xf bank_mask:0xf"); a(f"v_add_f32_dpp v{q}, v{q}, v{q} row_ror:8 row_mask:0xf bank_mask:0xf")
    fx.skip(1)
    a(f"v_permlane16_swap_b32 v{s}, v{q}", 2); a(f"v_add_f32 v{s}, v{s}, v{q}"); a(f"v_mov_b32 v{q}, v{s}"); fx.skip(1)
    a(f"v_permlane32_swap_b32 v{s}, v{q}", 2); a(f"v_add_f32 v{s}, v{s}, v{q}")
    fx.add(lambda: (k.e(f"s_add_u32 s32, s56, {stdst + mm*2048}"), k.dstore(f"buffer_store_dword v{s}, v{R_ST}, {SRD_WS}, s32 offen", ("xst", g)), k.mark(("xst", g))), 2)

def merge(k, fx, extra, first=0):
    extra = list(extra)
    items = [it for it in fx.items if it[0] != "skip"]; fx.items = []
    per = max(1, (len(items) - first) // max(1, len(extra)))
    for n, it in enumerate(items):
        if n >= first and (n - first) % per == 0 and extra: extra.pop(0)()
        it[1](); k.bg_step()
    for f in extra: f(); k.bg_step()

def wo(k, layer):
    BF, WQ, ACC, T, PA, NQ = 32, 160, 192, 208, A_PA, 8
    state = {}
    def bload(sx):
        k.set_s(f"s_add_u32 s58, s59, {(sx & ~1)*2048}")
        k.vm(f"buffer_load_dwordx4 {vr(BF+4*sx,4)}, v{W_OA}, {SRD_WS}, s58 offen offset:{(sx%2)*2048} sc1", ("b", sx))
    def wread(n): k.ds(f"ds_read_b128 {vr(WQ+4*(n%NQ),4)}, v{W_RB} offset:{n*1024}", ("wq", n))
    k.wait(vm=["wow"]); k.e("s_barrier"); k.mark("wobar")
    k.stamp("wl bar")
    for n in range(NQ): wread(n)
    btxt = lambda sx: [f"s_add_u32 s99, s59, {sx*2048}", f"buffer_load_dwordx4 {vr(BF+4*sx,4)}, v{W_OA}, {SRD_WS}, s99 offen sc1"]
    bchk = lambda sx: k.valid([f"v_cmp_eq_u32 vcc, -1, v{BF+4*sx}"], btxt(sx))
    ptxt = f"buffer_load_dword v{T+20}, v{T+21}, {SRD_WS}, s59 offen sc1"
    if P.tags:
        k.e(f"v_lshlrev_b32 v{T+21}, 8, v{PA}")
        k.e(f"v_or_b32 v{T+21}, v{T+21}, v{PA}", f"v_and_b32 v{T+21}, 0x80007c00, v{T+21}")
        k.poll_check(PA, "po1", 1)
        k.vm(ptxt, "probe")
        for sx in range(P.wo_spec): bload(sx)
        k.e(f"s_lshl_b32 s32, s{sC}, 1", f"s_and_b32 s33, s{sW}, 1", "s_add_u32 s32, s32, s33", "s_lshl_b32 s32, s32, 7", f"s_add_u32 s{sPO}, s32, {fl(layer, FL_O)}")
    else:
        k.e(f"s_add_u32 s{sFO}, s66, {fl(layer, FL_X1)}")
        k.codepf(96)
        if P.wo_setup_first == 2: gu_setup(k, layer)
        k.wait(vm=[("ost", 0)]); k.stamp("wl ack"); k.flag(2, 89)
        k.e(f"s_cmp_lt_u32 s{sW}, 2", f"s_cbranch_scc1 L_wo_late{layer}")
        q0 = list(k.vmq)
        k.poll_check(PA, "po1", 1)
        for sx in range(P.wo_lead): bload(sx)
        if P.wo_setup_first == 1: gu_setup(k, layer)
        k.e(f"s_branch L_wo_join{layer}")
        k.label(f"L_wo_late{layer}")
        k.vmq = list(q0)
        if P.wo_setup_first == 1: gu_setup(k, layer)
        k.poll_issue(PA, "po2"); k.poll_wait(PA, "po2", 2, 157); k.stamp("wl go")
        for sx in range(P.wo_lead): bload(sx)
        k.label(f"L_wo_join{layer}")
    if P.tags or not P.wo_setup_first: gu_setup(k, layer)
    k.stamp("wo issued")
    mains = []; fixed = {}
    for n in range(64):
        sx, j = divmod(n, 4)
        mains.append(lambda n=n, sx=sx, j=j: k.e(f"{MF16} {vr(ACC+4*j,4)}, {vr(WQ+4*(n%NQ),4)}, {vr(BF+4*sx,4)}, {'0' if sx == 0 else vr(ACC+4*j,4)}"))
        fl_ = fixed.setdefault(n, [])
        if n < 63: fl_.append((0, lambda n=n: k.wait(vm=[("b", (n + 1) // 4)] if (n + 1) % 4 == 0 else None, lg=[("wq", n + 1)])))
        if P.tags and n < 63 and (n + 1) % 4 == 0: fl_.append((1, lambda n=n: bchk((n + 1) // 4)))
        if P.tags and n == 42: fl_.append((1, lambda: k.poll_issue(PA, "px1")))
        if n + NQ < 64: fl_.append((1, lambda n=n: wread(n + NQ)))
        if n % P.wo_bstep == 0 and P.wo_lead + n // P.wo_bstep < 16: fl_.append((1, lambda n=n: bload(P.wo_lead + n // P.wo_bstep)))
    fx = Flex()
    a = lambda txt, c=1, at=0: fx.add(lambda: k.e(txt), c, at)
    fx.add(lambda: k.wait(vm=["res"]), 1, 8)
    for i in range(8): a(f"v_lshlrev_b32 v{T+2*i}, 16, v{RES+i}"); a(f"v_and_b32 v{T+2*i+1}, 0xffff0000, v{RES+i}")
    k.per = dict(P.per_wo[layer]); k.bg_held = False; k.bg_next = k.t + P.wo_bg_delay
    if P.tags:
        k.wait(vm=["probe"])
        k.valid([f"v_cmp_eq_u32 vcc, -1, v{T+20}"], [ptxt] + sum([btxt(x) for x in range(P.wo_spec)], []))
        state["fresh"] = True
        for sx in range(P.wo_spec, P.wo_lead): bload(sx)
    k.wait(vm=[("b", 0)], lg=[("wq", 0)])
    if P.tags: bchk(0)
    k.stamp("wo first")
    fixed[P.wo_bg_stop].append((0, lambda: setattr(k, "bg_held", True)))
    run_gaps(k, mains, fixed, [fx], 2)
    drain([fx], k)
    k.stamp("wo gemm")
    for i in range(0, 16, 2): k.e(f"v_pk_add_f32 {vr(T+i,2)}, {vr(T+i,2)}, {vr(ACC+i,2)}")
    for p in range(2):
        k.e(f"s_add_u32 s58, s64, {BX2() + (p << (2 + LSH()))}")
        for i in range(4): k.e(f"v_cvt_pk_bf16_f32 v{RES+4*p+i}, v{T+8*p+2*i}, v{T+8*p+2*i+1}")
        k.dstore(f"buffer_store_dwordx4 {vr(RES+4*p,4)}, v{W_UA}, {XS()}, s58 offen", "xst")
    S, Q = T + 16, T + 18
    k.e(f"v_pk_add_f32 {vr(S,2)}, {vr(T,2)}, {vr(T+2,2)}", f"v_pk_mul_f32 {vr(Q,2)}, {vr(T,2)}, {vr(T,2)}", f"v_pk_fma_f32 {vr(Q,2)}, {vr(T+2,2)}, {vr(T+2,2)}, {vr(Q,2)}")
    for i in range(4, 16, 2): k.e(f"v_pk_add_f32 {vr(S,2)}, {vr(S,2)}, {vr(T+i,2)}", f"v_pk_fma_f32 {vr(Q,2)}, {vr(T+i,2)}, {vr(T+i,2)}, {vr(Q,2)}")
    k.e(f"v_add_f32 v{S}, v{S}, v{S+1}", f"v_add_f32 v{Q}, v{Q}, v{Q+1}", f"s_add_u32 s58, s65, {BS1[layer]}",
        f"v_permlane16_swap_b32 v{S}, v{Q}", f"v_add_f32 v{S}, v{S}, v{Q}", f"v_mov_b32 v{Q}, v{S}", f"v_permlane32_swap_b32 v{S}, v{Q}", f"v_add_f32 v{S}, v{S}, v{Q}")
    k.dstore(f"buffer_store_dword v{S}, v{W_SA}, {SRD_WS}, s58 offen", "xst")
    key = lambda it: it[2][1] if (isinstance(it[2], tuple) and it[2][0] == "gw") else 11.5
    k.bg.sort(key=key)
    print(f"wo{layer} done, background left:", [it[2] for it in k.bg][::4])
    k.bg_burst(P.wo_win[layer])
    k.stamp("wo end")
P.wo_bg_delay = 750; P.wo_bg_stop = 63; P.wo_lead = 6; P.wo_spec = 3; P.gu_spec = 3; P.wo_bstep = 2
P.wo_poll_gap = 1; P.wo_late_gap = 7; P.wo_hold = True; P.wo_win = [4, 4]; P.wo_var = 'B'; P.wo_prew = 2
P.per_wo = [{"s2": 20, "s4": 20}] * 2

G_RB, G_C1, G_VV, G_AUG, G_X, G_ACC, G_WF, G_T = 3, 6, 7, 28, 32, 160, 224, 240
D_WV, D_BF, D_ACC, D_T, D_WF, D_RB, D_PA = 32, 64, 128, 192, 228, 112, 115
DN_SEQ = [(g, e) for g in range(2) for e in range(28)]
DN_GROUPS = [1, 0]
def h_loader(k, layer):
    def bload(i):
        if i == 0:
            k.e(f"s_mul_i32 s32, s{sB}, {224*KB}", f"s_mul_i32 s33, s{sW}, {28*KB}", "s_add_u32 s32, s32, s33", f"s_add_u32 s59, s32, {BH[layer]}")
            for p in range(4):
                k.e(f"s_add_u32 s32, s{sCS}, {p}", f"s_and_b32 s32, s32, {3 if P.hrot else 0}", f"s_mul_i32 s32, s32, {7*KB}", f"s_add_u32 s{34+p}, s59, s32")
                if not P.hrot: k.e(f"s_add_u32 s{34+p}, s{34+p}, {7*KB*p}")
        g, e = DN_SEQ[i]; p, tl = divmod(KK_OF[e], 7)
        k.set_s(f"s_add_u32 s58, s{34+p}, {DN_GROUPS[g] * 112 * KB + (tl & 4) * 1024}")
        k.vm(f"buffer_load_dwordx4 {vr(D_BF+4*(i%P.dn_lead),4)}, v{vL16}, {SRD_WS}, s58 offen offset:{(tl & 3)*1024} sc1", ("b", i))
    return bload

def gu_setup(k, layer):
    T = G_T; XA = T + 3
    k.e(*gu_tile("s50"))
    k.e(f"v_and_b32 v{T}, 31, v1")
    k.e(f"v_mov_b32 v{G_RB}, v{vL16}", f"v_add_u32 v{G_RB+1}, 0x10000, v{vL16}", f"v_add_u32 v{G_RB+2}, 0x20000, v{vL16}")
    k.e(f"v_lshrrev_b32 v{T+1}, 5, v1", f"v_lshlrev_b32 v{G_AUG+3}, 4, v{T}", f"v_lshl_add_u32 v{G_AUG+3}, v{T+1}, 10, v{G_AUG+3}")
    k.e(f"v_lshrrev_b32 v{XA}, 3, v{T}", f"v_lshlrev_b32 v{XA}, 13, v{XA}", f"v_lshl_add_u32 v{XA}, v{T+1}, {LSH()}, v{XA}",
        f"v_and_b32 v{T}, 7, v1", f"v_lshl_add_u32 v{XA}, v{T}, 4, v{XA}")
    k.e("s_lshl_b32 s32, s50, 11", f"s_add_u32 s51, s32, {BS1[layer]}")
    k.e("s_lshl_b32 s32, s50, 15", f"s_add_u32 s52, s32, {BX2()}", "s_add_u32 s53, s52, 4096")
    k.e(*h_base("s54", layer))
    k.e("s_lshr_b32 s32, s50, 1", "s_lshl_b32 s32, s32, 4", f"s_add_u32 s32, s32, s{sM}",
        "s_lshl_b32 s32, s32, 1", "s_and_b32 s33, s50, 1", "s_add_u32 s32, s32, s33", "s_lshl_b32 s32, s32, 2", f"s_add_u32 s81, s32, {fl(layer, FL_H)}")

def gu(k, layer):
    T = G_T; XA = T + 3; PA = T + 2
    if P.tags: k.poll_check(A_PA, "px1", 1)
    else:
        def pa():
            k.poll_addr(PA, 16)
            k.e("s_lshl_b32 s32, s50, 6", f"s_add_u32 s{sPO}, s32, {fl(layer, FL_X1)}")
        if not P.gu_pa_late: pa()
        k.wait(vm=["xst"]); k.flag(1)
        if P.gu_pa_late: pa()
        k.stamp("x1 flag")
        if not P.gu_bar_first: k.poll_issue(PA, "px1")
    k.e(f"s_mov_b32 s{sFO}, s81")
    seq = [(t, ks) for ks in range(33) for t in range(3)] + [(t, ks) for t in range(3, 7) for ks in range(33)]
    accof = {0: 0, 1: 1, 2: 2, 3: 3, 4: 0, 5: 1, 6: 2}
    NW = P.gu_nw
    WQ = [G_WF, G_WF + 4, G_WF + 8, G_WF + 12, T + 12]
    def wread(n):
        slot = (n % 160) * 1024
        k.ds(f"ds_read_b128 {vr(WQ[n%NW],4)}, v{G_RB + (slot>>16)} offset:{slot & 0xffff}", ("wf", n))
    BARS = P.gu_bars[layer]
    cover = lambda bi: [("gw", b) for b in range(bi, min([x for x in BARS if x > bi] + [15]))]
    def ringbar():
        k.wait(vm=cover(0)); k.e("s_barrier"); k.mark("gubar")
        for n in range(NW): wread(n)
    if P.gu_bar_first: ringbar(); k.poll_issue(PA, "px1")
    if not P.tags: k.poll_wait(PA, "px1", 1, 20)
    k.stamp("gu go")
    xoff = lambda kg: ((kg >> 2) << CSH()) + ((kg & 3) << (1 + LSH()))
    xtxt = lambda kg: f"buffer_load_dwordx4 {vr(G_X+4*kg,4)}, v{XA}, {XS()}, s{52 + (xoff(kg) >> 12)} offen offset:{xoff(kg) & 4095} sc1"
    def xload(kg): k.vm(xtxt(kg), ("gx", kg))
    xchk = lambda kg: k.valid([f"v_cmp_eq_u32 vcc, -1, v{G_X+4*kg}"], [xtxt(kg)])
    stxt = [f"buffer_load_dwordx4 {vr(T+4+4*h,4)}, v{G_AUG+3}, {SRD_WS}, s51 offen offset:{512*h} sc1" for h in range(2)]
    if P.tags:
        for t_ in stxt: k.vm(t_, "gst")
        for kg in range(P.gu_spec): xload(kg)
        k.wait(vm=["gst"])
        k.valid([f"v_max3_u32 v{T}, v{T+4}, v{T+6}, v{T+8}", f"v_max_u32 v{T}, v{T}, v{T+10}", f"v_cmp_eq_u32 vcc, -1, v{T}"],
                stxt + [xtxt(x) for x in range(P.gu_spec)])
        k.stamp("gu probe")
        for kg in range(P.gu_spec, P.gu_lead): xload(kg)
    else:
        for kg in range(P.gu_lead): xload(kg)
        for t_ in stxt: k.vm(t_, "gst")
    if not P.gu_bar_first: ringbar()
    mains = []; fixed = {}
    xpos = {}
    for kg in range(P.gu_lead, 32): xpos.setdefault(int((kg - P.gu_lead) * P.gu_xstep), []).append(kg)
    for n, (t, ks) in enumerate(seq):
        acc = G_ACC + 16 * accof[t]
        b = vr(G_AUG, 4) if ks == 32 else vr(G_X + 4*ks, 4)
        c = "0" if ks == 0 else vr(acc, 16)
        mains.append(lambda n=n, acc=acc, b=b, c=c: k.e(f"{MF32} {vr(acc,16)}, {vr(WQ[n%NW],4)}, {b}, {c}"))
        fl_ = fixed.setdefault(n, [])
        if n + 1 < len(seq):
            t2, ks2 = seq[n + 1]
            need = [("gx", ks2)] if (t2 == 0 and ks2 < 32) else None
            fl_.append((0, lambda n=n, need=need: k.wait(vm=need, lg=[("wf", n + 1)])))
            if need and P.tags: fl_.append((2, lambda ks2=ks2: xchk(ks2)))
        j = n + NW
        if j < len(seq):
            if j % 16 == 0 and j // 16 in BARS:
                fl_.append((2, lambda bi=j//16: (k.wait(vm=cover(bi)), k.e("s_barrier"), [k.mark(("gbar", b)) for b in range(bi + 1)])))
            fl_.append((1, lambda j=j: wread(j)))
        for kg in xpos.get(n, []): fl_.append((1, lambda kg=kg: xload(kg)))
    xend = max(xpos)
    tail = [it for it in k.bg if it[2] == "dna" or it[2][0] == "dnr"]; k.bg = [it for it in k.bg if not (it[2] == "dna" or it[2][0] == "dnr")]
    bg_batches(k, range(10, 15), "s2", lambda b: ("gbar", b - 8))
    first, ratio = P.gu_mix[layer]
    mid = k.bg[first:]; k.bg = k.bg[:first]; acc_ = 0.0
    while mid or tail:
        if mid: k.bg.append(mid.pop(0))
        acc_ += ratio
        while tail and (acc_ >= 1 or not mid): k.bg.append(tail.pop(0)); acc_ -= 1
    direct = layer == 1 and P.dn1_agpr
    if not direct: bg_batches(k, range(15, 23), "s4", lambda b: ("gbar", b - 8))
    k.per = dict(P.per_guA[layer]); k.bg_held = False; k.bg_next = k.t + P.gu_bg_delay
    fixed[xend].append((0, lambda: setattr(k, "per", dict(P.per_guB[layer]))))
    fv = Flex()
    dv = regloads(k, sDS, 48*1024, lambda j: vr(D_WV + 4*j, 4), 8, "dnv")
    k.hload = h_loader(k, layer)
    if direct: pass
    elif P.hpre:
        bg_list(k, dv, "s4", "dnv", "xdead")
        fixed[207].append((0, lambda: k.mark("xdead")))
    else:
        for j, f in enumerate(dv): fv.add(f, 1, 198 + 2 + 3*j)
    fx = Flex()
    a = lambda txt, c=1, at=0: fx.add(lambda: k.e(txt), c, at)
    fx.add(lambda: k.wait(vm=["gst"]), 1, 3 * P.gu_lead)
    a(f"v_add_f32 v{T+4}, v{T+4}, v{T+6}"); a(f"v_add_f32 v{T+5}, v{T+5}, v{T+7}"); a(f"v_add_f32 v{T+8}, v{T+8}, v{T+10}"); a(f"v_add_f32 v{T+9}, v{T+9}, v{T+11}")
    a(f"v_add_f32 v{T+4}, v{T+4}, v{T+8}"); a(f"v_add_f32 v{T+5}, v{T+5}, v{T+9}"); fx.skip(1)
    a(f"v_permlane32_swap_b32 v{T+4}, v{T+5}", 2); a(f"v_add_f32 v{T+4}, v{T+4}, v{T+5}"); a(f"v_mov_b32 v{T+5}, v{T+4}"); fx.skip(1)
    a(f"v_permlane32_swap_b32 v{T+4}, v{T+5}", 2)
    ln_finish(a, T + 4, T + 5)
    a(f"v_mov_b32 v{G_VV}, v{T+5}")
    a(f"v_rsq_f32 v{G_C1}, v{T+5}", 2); a(f"v_cvt_pk_bf16_f32 v{G_AUG}, v{T+4}, v{T+4}"); a(f"v_mul_f32 v{G_C1}, {f2u(-LOG2E):#x}, v{G_C1}")
    a(f"v_and_b32 v{T+5}, 0xffff0000, v{G_AUG}"); a(f"v_sub_f32 v{T+5}, v{T+4}, v{T+5}"); a(f"v_mov_b32 v{G_AUG+2}, 0")
    a(f"v_cvt_pk_bf16_f32 v{G_AUG+1}, v{T+5}, v{G_AUG+2}"); a(f"v_mov_b32 v{G_AUG+3}, 0")
    fx.add(lambda: k.mark("aug"), 0)
    def epi(t, at):
        acc = G_ACC + 16 * accof[t]; hp = (T + 8, RES + 4)[t & 1]; E = T + 4
        if t >= 2: fx.dep(("hst", t - 2))
        if P.x_noepi: a("s_nop 0", 1, at)
        for i0 in range(0, 8 if not P.x_noepi else 0, 2):
            for i in (i0, i0 + 1): a(f"v_mul_f32 v{E+(i&1)}, v{G_C1}, v{acc+i}", 1, at)
            for i in (i0, i0 + 1): a(f"v_exp_f32 v{E+(i&1)}, v{E+(i&1)}", 2)
            for i in (i0, i0 + 1): a(f"v_mul_f32 v{E+2+(i&1)}, v{acc+i}, v{acc+8+i}")
            for i in (i0, i0 + 1): a(f"v_fma_f32 v{E+(i&1)}, v{E+(i&1)}, v{G_VV}, v{G_VV}")
            for i in (i0, i0 + 1): a(f"v_rcp_f32 v{E+(i&1)}, v{E+(i&1)}", 2)
            fx.skip(1)
            for i in (i0, i0 + 1): a(f"v_mul_f32 v{E+2+(i&1)}, v{E+2+(i&1)}, v{E+(i&1)}")
            a(f"v_cvt_pk_bf16_f32 v{hp+i0//2}, v{E+2}, v{E+3}")
        fx.add(lambda: k.mark(("epi", t)), 0)
        txt = f"buffer_store_dwordx4 {vr(hp,4)}, v{vL16}, {SRD_WS}, s{54 if t < 4 else 82} offen offset:{(t%4)*1024}"
        plain = (layer and P.h1_plain) or (not layer and P.h_touch0)
        if P.h_np > 1 and t < P.h_stag and not plain:
            fx.add(lambda: k.mark(("hrdy", t)), 0)
            fh.dep(("hrdy", t))
            for j in range(P.h_np):
                def pos(j=j):
                    n = k.nspin; k.nspin += 1
                    k.e(f"s_cmp_lg_u32 s83, {j}", f"s_cbranch_scc1 L_sk{n} ;np", txt + " sc1 ;opt", f"L_sk{n}: ;np")
                    if j == P.h_np - 1:
                        k.vmq.append(("hst", t)); k.seen.add(("hst", t)); k.phantom.add(("hst", t)); k.mark(("hst", t))
                fh.add(pos, P.h_cost)
                if j < P.h_np - 1: fh.skip(P.h_d)
            if t >= 2: pass
        else:
            k.phantom.discard(("hst", t))
            fx.add(lambda: ((k.dstore if plain else lambda x, tg: k.vm(x + " sc1", tg))(txt, ("hst", t)), k.mark(("hst", t))), 2)
    fh = Flex()
    k.e("s_add_u32 s82, s54, 4096", f"s_lshl_b32 s32, s{sW}, {max(P.h_np.bit_length() - 3, 0)}", f"s_add_u32 s32, s32, s{sM}", f"s_add_u32 s32, s32, s{sC}", f"s_and_b32 s83, s32, {P.h_np - 1}")
    end = {t: max(n for n, x in enumerate(seq) if x[0] == t) for t in range(7)}
    for t in range(6): epi(t, end[t] + 3)
    if layer == 0 and P.h_touch0 == "g": fixed[xend + 1].append((5, lambda: k.touch(T, "h", ["s_mov_b32 s32, s54"])))
    if layer == 1 and P.x1_clean:
        for p in range(2):
            fixed[P.x1_clean + 8*p].append((3, lambda p=p: (k.e(f"s_add_u32 s58, s64, {BX2()}"),
                k.vm(f"buffer_store_dwordx4 {vr(RES+4*p,4)}, v9999, {SRD_WS}, s58 offen offset:{p*512} sc1", "clean"))))
    ff = Flex(); ff.dep(("hst", 3))
    if layer == 0:
        tx = [lambda: k.touch(T, "p", [f"s_add_u32 s32, s55, {BX2()}"]), lambda: k.touch(T + 1, "s", [f"s_add_u32 s32, s56, {BS2()}"])]
        if P.x2_touch == "h3": ff.add(tx[0], 6); ff.add(tx[1], 4)
        elif isinstance(P.x2_touch, int): fixed[P.x2_touch].append((5, tx[0])); fixed[P.x2_touch + 1].append((4, tx[1]))
        if "g" in str(P.touch1):
            for f in touch_next(k, T + 2)[:2]: ff.skip(1); ff.add(f, 6)
    ff.skip(P.gu_flag_delay)
    ff.add(lambda: (k.wait(vm=[("hst", 3)]), k.flag(1)), 3)
    def hpoll():
        k.wait(vm=["touch"] if "touch" in k.seen else None)
        k.poll_addr(T, 8)
        k.e(f"s_lshl_b32 s32, s{sB}, 7", f"s_lshl_b32 s33, s{sW}, 5", "s_add_u32 s32, s32, s33", f"s_add_u32 s{sPO}, s32, {fl(layer, FL_H)}")
        k.poll_issue(T, "ph1")
    if P.hpre:
        ff.add(hpoll, 4, P.hp_chk - 12)
        ff.add(lambda: (k.poll_check(T, "ph1", 1), setattr(k, "bg_held", True)), 3, P.hp_chk)
        for j in range(P.hpre): ff.add(lambda j=j: k.hload(j), 2, max(208 + j, int(P.hp_chk + 1 + j * P.hp_step)))
    else: ff.add(hpoll, 4, 228)
    k.wait(vm=[("gx", 0)], lg=[("wf", 0)])
    if P.tags: xchk(0)
    k.stamp("gu first")
    if k.stamping:
        for g in (48, 98, 131, 164, 197): fixed[g].append((0, lambda g=g: k.stamp(f"gu m{g}")))
    fixed[93].append((0, lambda: k.marks["aug"]))
    run_gaps(k, mains, fixed, [fv, fh, ff, fx], P.gu_cap)
    print("gu left:", len(k.bg), len(fv), len(ff), len(fx), {n: g for n, g in k.marks.items() if isinstance(n, tuple) and n[0] == "hst"})
    k.stamp("gu gemm")
    for g, t in {132: 0, 165: 1, 198: 2}.items(): assert k.marks[("epi", t)] < g, "accumulator reused too early"
    epi(6, 0); drain([fh, ff, fv, fx], k)
    k.e(f"v_mov_b32 v{D_PA}, v{T}")
    k.stamp("gu end")
P.x2_touch = None; P.dn_x2 = 2; P.h_cost = 1; P.h_np = 1; P.h_d = 2; P.h_stag = 5; P.gu_mix = [(28, 1), (24, 1)]; P.hrot = 0; P.gu_bars = [list(range(15)), [0, 3, 6, 9, 12]]; P.hpre = 0; P.hp_chk = 208; P.hp_step = 2.2; P.gu_flag_delay = 10; P.gu_xstep = 2.6; P.gu_bg_delay = 300
P.per_guA = [{"s2": 120, "s4": 120}, {"s2": 160, "s4": 160}]
P.per_guB = [{"s2": 90, "s4": 55}, {"s2": 80, "s4": 50}]

def dn(k, layer):
    final = layer == 1
    NB = P.dn_lead; T = D_T
    groups = DN_GROUPS; seq = DN_SEQ; bload = k.hload
    early = Flex()
    def rb(): k.e(f"v_add_u32 v{D_RB}, s{sGL}, v{vL16}", f"v_add_u32 v{D_RB+1}, 0x10000, v{D_RB}", f"v_add_u32 v{D_RB+2}, 0x20000, v{D_RB}")
    if P.hpre:
        for i in range(P.hpre, NB): bload(i)
        rb()
        class Rec:
            def e(self, *t):
                if any("vcc" in x or "s32" in x for x in t): early.add(lambda: k.e(*t), len(t))
                else:
                    for x in t: early.add(lambda x=x: k.e(x))
        red_setup(Rec(), 3, 1, final)
        early.add(lambda: (k.wait(vm=[("hst", 6)]), k.flag(2), k.poll_issue(D_PA, "ph2"), k.e(f"s_add_u32 s{sFO}, s89, {FL_X2 - FL_O}")), 5, P.dn_fgap)
    else:
        k.poll_check(D_PA, "ph1", 1)
        k.stamp("dn early")
        k.bg_held = True
        for i in range(P.dn_pre): bload(i)
        red_setup(k, 3, 1, final); rb()
        k.wait(vm=[("hst", 6)]); k.flag(2)
        if P.dn_pollstep is None: k.poll_issue(D_PA, "ph2")
        for i in range(P.dn_pre, NB): bload(i)
        k.e(f"s_add_u32 s{sFO}, s89, {FL_X2 - FL_O}")
    k.per = dict(P.per_dn0); k.bg_held = False
    direct = final and P.dn1_agpr
    lds = [(i, nn) for i, (g, e) in enumerate(seq) if 8 <= e < 24 and not direct for nn in range(2)]
    slot_of = {x: n for n, x in enumerate(lds)}
    NWF = 6
    def wread(n):
        i, nn = lds[n]; j = 2 * (seq[i][1] - 8) + nn; b = 15 + (j >> 2)
        ad = (b % 10) * 16384 + (j & 3) * 1024
        if seq[i][0] == 0: k.wait(vm=[("gw", b)])
        k.ds(f"ds_read_b128 {vr(D_WF+4*(n%NWF),4)}, v{D_RB + (ad>>16)} offset:{ad & 0xffff}", ("wf", n))
    def wfrag(i, nn):
        e = seq[i][1]
        if e < 8: return ar(192 + 8*e + 4*nn, 4)
        if direct: return ar(8*(e - 8) + 4*nn, 4)
        if e >= 24: return vr(D_WV + 8*(e - 24) + 4*nn, 4)
        return vr(D_WF + 4*(slot_of[(i, nn)] % NWF), 4)
    mains = []; fixed = {}
    NT = P.dn_tail
    assert NT <= 4
    order = [(i, nn) for i in range(56 - NT) for nn in range(2)] + [(i, nn) for nn in range(2) for i in range(56 - NT, 56)]
    for pos, (i, nn) in enumerate(order):
        g, e = seq[i]
        if True:
            acc = D_ACC + 32 * g + 16 * nn
            mains.append(lambda i=i, nn=nn, acc=acc, e=e: k.e(f"{MF32} {vr(acc,16)}, {wfrag(i,nn)}, {vr(D_BF+4*(i%NB),4)}, {'0' if e == 0 else vr(acc,16)}"))
            gp = len(mains) - 1; fl_ = fixed.setdefault(gp, [])
            nx = order[pos + 1] if pos + 1 < len(order) else None
            vmn = [("b", nx[0])] if (nx and nx[1] == 0) else None
            lgn = [("wf", slot_of[nx])] if nx in slot_of else None
            if nx == (24, 0) and not direct: vmn = vmn + ["dnv"]
            if direct and nx and nx[0] in range(8, 28) and nx[1] == 0: vmn = vmn + [("dnr", nx[0])]
            fl_.append((0, lambda vmn=vmn, lgn=lgn: k.wait(vm=vmn, lg=lgn)))
            ah = (i + 2, nn)
            if ah in slot_of: fl_.append((1, lambda n=slot_of[ah]: wread(n)))
    nxt = NB; pend = 0
    for i in range(len(seq)):
        fl_ = fixed[2*i + 1]
        if i == P.dn_late: fl_.append((2, lambda: (k.poll_check(D_PA, "ph2", 2), k.stamp("dn late"), k.mark("late"))))
        n = 0
        while nxt < len(seq) and nxt <= i + NB and n < 2 and (nxt < 16 or i >= P.dn_late):
            fl_.append((1, lambda j=nxt: bload(j))); nxt += 1; n += 1
        if i == P.dn_pollstep and not P.hpre: fl_.append((1, lambda: k.poll_issue(D_PA, "ph2")))
        if nxt == len(seq) and not pend: pend = 2*i + 2
    if not final: fixed[22].append((5, lambda: k.codepf(192)))
    fixed[20].append((1, lambda: k.e("s_barrier")))
    for mm in range(2):
        fixed[40 + 4*mm].append((2, lambda mm=mm: (k.e(f"s_add_u32 s32, s55, {BX2() + mm*32768}"),
                                                   k.vm(f"buffer_load_dwordx4 {vr(RES+4*mm,4)}, v{RX(final)}, {XS()}, s32 offen sc1", "res"))))
    fw = Flex(); fs = Flex()
    for q, f in enumerate(red_writes(k, D_ACC, 0, 0, 1)): fw.add(f, 1, 58 + 2*q)
    fw.add(lambda: (k.wait(lg=[("rw", 0)]), k.e("s_barrier")), 2, 76)
    for f in red_reads(k, 0, T, 0): fw.add(f, 2)
    fw.add(lambda: k.wait(vm=["res"]))
    red_finish(k, fw, 0, groups[0], T, BX2(), BS2(), final, False)
    if not final:
        fw.add(lambda: k.vm(f"buffer_store_dwordx4 {vr(RES+4,4)}, v{RX(final)}, {SRD_WS}, s72 offen sc1", "hxs"))
        fw.add(lambda: k.vm(f"buffer_store_dword v{T+32}, v{R_ST}, {SRD_WS}, s73 offen sc1", "hxs"))
        fw.skip(P.dn_flag_delay); fw.add(lambda: (k.wait(vm=[("xst", 0)]), k.flag(1)), 3)
        if P.x2_touch == "dn":
            fixed[P.dn_x2].append((5, lambda: k.touch(226, "p", [f"s_add_u32 s32, s55, {BX2()}"])))
            fixed[P.dn_x2 + 1].append((4, lambda: k.touch(227, "s", [f"s_add_u32 s32, s56, {BS2()}"])))
            fs.add(lambda: k.wait(vm=["touch"]), 1, P.dn_x2 + 2)
        for q, c in enumerate(P.t1_dn): fixed[P.dn_touch + 2*q].append((5, touch_next(k, 28)["oxs".index(c)]))
        fs.dep("late")
        for f in a11_bases(k) + a1_setup(k, 1): fs.add(f)
        fs.add(lambda: (k.poll_addr(A_PX, 32), k.e(f"s_lshl_b32 s32, s{sB}, 7", f"s_add_u32 s{sPO}, s32, {fl(0, FL_X2)}")), 4)
    wtail = red_writes(k, D_ACC + 32, 1, 2*16384, 1)
    if NT:
        for q in range(min(4, NT)): fixed[min(111, 112 - NT + 1 + q)].append((4, wtail.pop(0)))
    k.wait(vm=["dna", ("b", 0)])
    k.stamp("dn first")
    if k.stamping:
        fixed[55].append((0, lambda: k.stamp("dn p1")))
        for g in range(7, 111, 8): fixed[g].append((0, lambda g=g: k.stamp(f"find {g}")))
    run_gaps(k, mains, fixed, [early, fw, fs], 6)
    print("dn left:", len(k.bg), len(fw), len(fs), "last h load at gap", pend)
    k.stamp("dn gemm")
    assert not fs.items
    ws = wtail
    if not final and P.dn_fin_first != 2: ws.insert(len(ws) - 4, lambda: k.poll_issue(A_PX, "px0"))
    if not final and P.dn_fin_first == 2: ws.append(lambda: k.poll_issue(A_PX, "px0"))
    merge(k, fw, ws)
    k.wait(lg=[("rw", 1)]); k.e("s_barrier")
    k.stamp("dn red")
    for f in red_reads(k, 1, T, 2*16384): f()
    def nxt():
        k.poll_check(A_PX, "px0", 1)
        k.wait(vm=["hxs"]); k.flag(1, 91, "sc1")
        a11_early(k)
    if not final:
        k.bg_held = True
        if not P.dn_fin_first: nxt()
    f1 = Flex(); red_finish(k, f1, 1, groups[1], T, BX2(), BS2(), final, True)
    if not final and P.dn_fin_first == 2:
        ex = [lambda: k.poll_check(A_PX, "px0", 1)] + a11_early(k, True) + [lambda: (k.wait(vm=["hxs"]), k.flag(1, 91, "sc1"))]
        merge(k, f1, ex, P.dn_mfirst)
    else: drain([f1], k)
    if not final and P.dn_fin_first == 1: nxt()
    k.stamp("dn end")
P.dn_mfirst = 8; P.dn_pollstep = 0; P.dn_fin_first = 2; P.dn_tail = 0; P.dn_touch = 88; P.dn_flag_delay = 4; P.dn_pre = 6; P.dn_late = 9; P.dn_fgap = 6
P.dn_wow = 6; P.per_dn = {"s4": 110, "s2": 130}; P.per_dn0 = {"s4": 60, "s2": 60}

def build(stamps=False, only=None):
    k = F(); k.stamping = stamps; k.only = only; k.st = P.dst; k.rt = P.rt
    name = NAME + "_kernel"
    k.e(".p2align 8", f".globl {name}", f".type {name},@function"); k.label(name)
    if stamps: k.e("s_memrealtime s[92:93]", "s_memtime s[94:95]")
    k.e("s_cmp_ge_u32 s2, 256", "s_cbranch_scc1 L_end")
    k.e("s_load_dwordx16 s[64:79], s[0:1], 0", "s_load_dwordx4 s[80:83], s[0:1], 64", "s_memrealtime s[96:97]")
    k.e("s_getpc_b64 s[100:101]")
    k.e("L_pc: ;np")
    k.e("v_and_b32 v1, 63, v0", "v_lshrrev_b32 v2, 6, v0", "s_lshr_b32 s33, s2, 3", "s_mul_i32 s32, s33, 43", "s_lshr_b32 s32, s32, 8",
        "s_mul_i32 s32, s32, 6", "s_sub_u32 s32, s33, s32", "s_lshl_b32 s32, s32, 13", "v_lshl_add_u32 v3, v2, 11, s32", "v_lshl_add_u32 v3, v1, 7, v3",
        "v_min_u32 v3, L_end-L_pc, v3", f"v_readfirstlane_b32 s{sW}, v2", "v_mov_b32 v5, s101", "v_add_co_u32 v4, vcc, s100, v3", "v_addc_co_u32 v5, vcc, 0, v5, vcc")
    if P.code0:
        k.e("s_mov_b64 exec, 0xffff")
        k.vm("global_load_dword v175, v[4:5], off", "code")
        k.e("s_mov_b64 exec, -1")
        if P.code1:
            k.e("v_lshlrev_b32 v3, 11, v2", "v_lshl_add_u32 v3, v1, 7, v3", "v_mov_b32 v5, s101", "v_add_co_u32 v4, vcc, s100, v3", "v_addc_co_u32 v5, vcc, 0, v5, vcc",
                "s_mov_b64 exec, 0xffff")
            k.vm("global_load_dword v174, v[4:5], off", "code")
            k.e("s_mov_b64 exec, -1")
    k.e("s_and_b32 s32, s2, 7", f"s_and_b32 s{sM}, s33, 15", "s_lshr_b32 s33, s33, 4", "s_lshl_b32 s32, s32, 1", f"s_add_u32 s{sC}, s32, s33")
    k.e(f"s_lshr_b32 s33, s{sM}, 3", f"s_lshl_b32 s{sB}, s{sC}, 1", f"s_add_u32 s{sB}, s{sB}, s33", f"s_and_b32 s{sCS}, s{sM}, 7")
    k.e("v_lshlrev_b32 v2, 4, v1")
    a10_lanes(k)
    k.e("s_waitcnt lgkmcnt(0)")
    srd(k, 12, 64, 2048 * 1024); srd(k, 16, 66, 512 * 3072)
    k.e(f"s_or_b32 s{sTAG}, s96, 1")
    if stamps:
        k.stamps += ["rt0", "start"]; k.e("v_writelane_b32 v0, s92, 0", f"v_writelane_b32 v0, s{92 if P.rt else 94}, 1")
    k.stamp("s kernarg")
    if P.pk_first == 1: pack_issue(k)
    k.stamp("s pkissue")
    run(a10_x(k, 0) + a10_w(k, 0))
    if P.pk_first == 0: pack_issue(k)
    srd(k, 28, 80, 256)
    k.e("v_cmp_eq_u32 vcc, 0, v1", f"v_mov_b32 v{vFA}, {OOB:#x}", f"s_or_b32 s32, s2, s{sW}", f"v_cndmask_b32_e64 v{vFA}, v{vFA}, 0, vcc",
        "s_cmp_eq_u32 s32, 0", f"s_cselect_b32 s32, 0, {OOB>>1:#x}", f"v_mov_b32 v170, s{sTAG}")
    k.vm(f"buffer_store_dword v170, v{vFA}, {SRD_DBG}, s32 offen sc1", "tagst")
    srd(k, 8, 82, WS_SIZE); srd(k, 20, 78, 2048 * 1024)
    for f in a1_setup(k, 0): f()
    o_bases(k, 0)
    a10_lanes2(k)
    k.e(f"v_mov_b32 v60, {OOB:#x}", "v_cmp_gt_u32 vcc, 8, v1", "v_mov_b32 v176, 0", "v_mov_b32 v177, 0", "v_mov_b32 v178, 0", "v_mov_b32 v179, 0",
        f"v_cndmask_b32 v173, v60, v{vL16}, vcc", "v_cmp_gt_u32 vcc, 16, v1", "s_nop 0",
        f"s_lshl_b32 s32, s{sC}, 4", f"v_cndmask_b32 v172, v60, v{vL16}, vcc")
    k.e(f"s_add_u32 s32, s32, s{sM}", "s_lshl_b32 s32, s32, 4",
        f"s_cmp_eq_u32 s{sW}, 0", f"s_cselect_b32 s32, s32, {OOB>>1:#x}", f"v_add_u32 v171, s32, v{vFA}", f"s_mov_b32 s{sBUD}, 400000")
    red_bases(k)
    k.e(f"s_lshl_b32 s{sGL}, s{sW}, 12", f"s_mul_i32 s{sGS}, s{sM}, {PGU_SLICE}", f"s_add_u32 s{sGS}, s{sGS}, s{sGL}", f"s_add_u32 s{sGS}, s{sGS}, {WS_PGU}")
    k.e(f"s_mul_i32 s32, s{sCS}, {224*KB}", f"s_mul_i32 s33, s{sW}, {56*KB}", "s_add_u32 s32, s32, s33", f"s_add_u32 s{sDS}, s32, {WS_PDN}")
    k.e(f"s_lshl_b32 s32, s{sCS}, 16", f"s_add_u32 s32, s32, s{sGL}", f"s_add_u32 s88, s32, {WS_PWO}")
    wo_bases(k)
    k.stamp("s setup")
    run(a10_w(k, 1))
    if P.pk_first == 2: pack_issue(k)
    k.e(f"s_getreg_b32 s{sXCC}, hwreg(HW_REG_XCC_ID, 0, 4)", f"s_mov_b32 s75, {WS_ARR}", f"s_lshl_b32 s77, s{sC}, 8", "s_add_u32 s77, s77, s75")
    if P.k_touch == -1:
        k.touch(157, "p", ["s_mov_b32 s32, s53"], False); k.touch(158, "q", [f"s_add_u32 s32, s64, {BX2()}"], False)
    k.stamp("s w01")
    def mid2():
        if P.k_first > 3: run(a10_w(k, 3))
        k.e("s_lshl_b32 s32, s2, 7")
        k.vm(f"buffer_store_dwordx4 v[176:179], v173, {SRD_WS}, s32 offen sc1", "zero")
        k.e("s_lshl_b32 s32, s2, 8", f"s_add_u32 s32, s32, {WS_HXF}")
        k.vm(f"buffer_store_dwordx4 v[176:179], v172, {SRD_WS}, s32 offen sc1", "zero")
    if P.k_pack is None: pack_process(k, lambda: run(a10_x(k, 1) + a10_w(k, 2)), mid2)
    else: run(a10_x(k, 1) + a10_w(k, 2)); mid2()
    k.vm(f"buffer_load_dword v170, v{vFA}, {SRD_DBG}, 0 offen sc1", "tag")
    k.stamp("s pkdone")
    a10_loop(k, P.k_first)
    a10_tail(k)
    wo(k, 0); gu(k, 0); dn(k, 0)
    if not P.half:
        k.marks = {m: g for m, g in k.marks.items() if False}
        k.seen = {t for t in k.seen if t in k.vmq or t in k.lgq or t in ("dna", "st0", ("x", 2), ("x", 3))}
        k.layer = 1
        a11_main(k)
        wo(k, 1)
        k.marks = {m: g for m, g in k.marks.items() if m in ("wobar", "gemm_done") or m[0] == "bar"}
        gu(k, 1); dn(k, 1)
    if P.verbose: print([(t, tag, f) for t, tag, f in k.bg_log if f])
    if stamps:
        k.e("s_waitcnt vmcnt(0)"); k.stamp("drained"); k.stamp("rt1", True)
        k.e("s_lshl_b32 s32, s2, 10", "s_lshl_b32 s33, s3, 8", "s_add_u32 s32, s32, s33",
            f"s_add_u32 s32, s32, {WS_STAMP}", "v_lshlrev_b32 v8, 2, v1", f"buffer_store_dword v0, v8, {SRD_WS}, s32 offen")
        if P.echo:
            a, b = P.echo
            n = len(k.stamps)
            k.e(f"v_readlane_b32 s32, v0, {a}", f"v_readlane_b32 s33, v0, {b if b >= 0 else n + b}", f"v_readlane_b32 s34, v0, {n-1}", "s_nop 3",
                "s_sub_u32 s33, s33, s32", "s_min_u32 s33, s33, 20000")
            k.label("L_echo")
            k.e("s_memrealtime s[36:37]", "s_waitcnt lgkmcnt(0)", "s_sub_u32 s36, s36, s34", "s_cmp_lt_u32 s36, s33", "s_cbranch_scc1 L_echo")
        if P.dbg:
            n = len(k.stamps)
            k.e("v_readlane_b32 s32, v0, 0", f"v_readlane_b32 s33, v0, {n-1}", "s_not_b32 s34, s32", "v_mov_b32 v4, s33", "v_mov_b32 v5, s34")
            k.e(f"buffer_atomic_umax v4, v{vFA}, {SRD_DBG}, 0 offen offset:4", f"buffer_atomic_umax v5, v{vFA}, {SRD_DBG}, 0 offen offset:8")
            k.e(f"s_cmp_eq_u32 s2, {P.dbg - 1}", f"s_cselect_b32 s35, 0, {OOB>>1:#x}", f"s_cmp_eq_u32 s{sW}, 0", f"s_cselect_b32 s35, s35, {OOB>>1:#x}")
            for i, wd in zip(range(2, n - 1), (3, 5, 6, 7, 9, 10, 11, 13, 14, 15)):
                k.e(f"v_readlane_b32 s33, v0, {i}", "s_sub_u32 s33, s33, s32", "v_mov_b32 v4, s33", f"buffer_store_dword v4, v{vFA}, {SRD_DBG}, s35 offen offset:{4*wd}")
    k.e("s_endpgm")
    k.flush_spins()
    k.label("L_end"); k.e("s_endpgm")
    src = open("cdna_kernels/%s.s.ref" % NAME).read().splitlines()
    out = [l for l in src if l.startswith(";") and "@launch" not in l]
    out.append(f"; @launch grid=(256,1,1) block=(256,1,1) lds={LDS_TOTAL}")
    out += ['.amdgcn_target "amdgcn-amd-amdhsa--gfx950"', ".text"]
    s = "\n".join(out) + "\n" + k.text(verbose=True) + '.section .rodata,"a"\n.p2align 6\n' + kd(name)
    from verify import verify
    assert not verify(s), "a register is used while a load into it is in flight"
    if P.align:
        from align import align
        s = align(s)
    return s, k.stamps
P.x_nobar = 0; P.x_noepi = 0; P.rt = 1; P.dbg = 0; P.h_touch0 = ''; P.outm = ('', ''); P.x1_clean = None; P.h1_plain = 0; P.tags = 0; P.echo = None; P.wo_setup_first = 2; P.gu_pa_late = 0; P.gu_bar_first = 0; P.flagbr = 0; P.rot = 0; P.pk_mod = 'nt'; P.x_mod = ''; P.w_mod = ''; P.t_mod = ''; P.pk_first = 1; P.dn1_agpr = 1; P.poll2 = 2; P.wt = (); P.inplace = 1; P.x_out = 1; P.o0_in_h = 0; P.code1 = 0; P.pk_xor = 0; P.half = 0; P.tlb = 1; P.code0 = 1; P.verbose = 0; P.align = 1; P.gu_cap = 5; P.gu_nw = 5; P.k_touch = 15; P.k_gb = 13; P.k_chk = 16

if __name__ == "__main__":
    path = sys.argv[1] if len(sys.argv) > 1 else "cdna_kernels/%s.s" % NAME
    opts = sys.argv[2:]
    only = None
    for o in opts:
        if o.startswith("only="): only = [x for x in o[5:].split(",") if x]
        if o.startswith("P."):
            n, v = o[2:].split("="); setattr(P, n, eval(v))
    s, st = build(stamps="st" in opts, only=only)
    open(path, "w").write(s)
    if "st" in opts: json.dump([st], open(path + ".json", "w"))
```

```python
import sys, json
from common import *

MF16 = "v_mfma_f32_16x16x32_bf16"
MF16S = "v_mfma_f32_16x16x16_bf16"
MF32 = "v_mfma_f32_32x32x16_bf16"
vL16, vFV, vFA, vP = 2, 8, 9, 10
CSV, CSQ, CSK, RES = 11, 12, 16, 20
OOB = 0x80000000
FL_O, FL_X1, FL_H, FL_X2 = 0, 4096, 8192, 12288
FL_HX = 16384 + 12288
def fl(layer, off): return WS_FLAGS + 16384 * layer + off
sROT, sBUD, sGL, sGS, sDS = 84, 98, 60, 61, 85
sT0, sT1, sPO, sFO = 32, 33, 86, 87
sML, sMS = 68, 69
WS_HXF = WS_O0 - 0x10000 if False else WS_END
WS_ARR = WS_HXF + 0x10000
sTAG, sXCC = 91, 76
WS_STAMP = 0x2000000
L_SA0, L_SA1, L_XH0, L_CS = 80896, 97280, 81920, 79872
def e_of(kk):
    p, tl = divmod(kk, 7)
    return 4 * p + tl if tl < 4 else 16 + 3 * p + (tl - 4)
KK_OF = {e_of(kk): kk for kk in range(28)}

class P:
    a1_bg_start, a1_bg_step = 30, 6
    gu_lead = 9
    gu_bg_start, gu_bg_step = 50, 2.6
    dn_lead = 12
    bgm = ""
    sleep = 0
    drop = ()
    codepf = 0
    ld = "sc1"
    dst = "sc1"
    safe = False
    plain = True
    notouch = ()

BO, BX1, BS1, BH = [WS_O[0]] * 2, [WS_X[0]] * 2, [WS_ST[0]] * 2, [WS_H[0]] * 2
def BX2(): return 0 if P.x_out else (WS_X[0] if P.inplace else WS_X[1])
def XS(): return SRD_OUT if P.x_out else SRD_WS
def LSH(): return 10 if P.x_out else 7
def CSH(): return 7 if P.x_out else 10
def BS2(): return WS_ST[0] if P.inplace else WS_ST[1]
def o_block(d, layer):
    if (layer or P.o0_in_h) and P.inplace: return [f"s_mul_i32 {d}, s{sB}, {224*KB}", f"s_add_u32 {d}, {d}, {BH[0]}"]
    return [f"s_lshl_b32 {d}, s{sB}, 16", f"s_add_u32 {d}, {d}, {BO[layer]}"]
def o_line(layer):
    return [f"s_lshl_b32 s32, s{sB}, 16", f"s_lshl_b32 s33, s{sCS}, 2", f"s_add_u32 s33, s33, s{sW}", "s_lshl_b32 s33, s33, 10",
            "s_add_u32 s32, s32, s33", f"s_add_u32 s32, s32, {BO[layer]}"]
def touch_next(k, t):
    return [lambda: k.touch(t, "p", o_line(1)), lambda: k.touch(t + 1, "q", [f"s_add_u32 s32, s64, {BX2()}"]),
            lambda: k.touch(t + 2, "t", [f"s_add_u32 s32, s65, {BS1[1]}"])]
def gu_tile(d):
    return [f"s_lshl_b32 {d}, s{sC}, 1", f"s_and_b32 s33, s{sW}, 1", f"s_add_u32 {d}, {d}, s33", f"s_lshl_b32 {d}, {d}, 1", f"s_lshr_b32 s33, s{sW}, 1", f"s_add_u32 {d}, {d}, s33"]
def h_base(d, layer):
    return gu_tile(d) + [f"s_mul_i32 {d}, {d}, 112", f"s_mul_i32 s33, s{sM}, 7",
            f"s_add_u32 {d}, {d}, s33", f"s_lshl_b32 {d}, {d}, 10", f"s_add_u32 {d}, {d}, {BH[layer]}"]

class F(K):
    def __init__(self):
        super().__init__(); self.spins = []; self.nspin = 0; self.st = ""; self.npf = 0; self.layer = 0
    def poll_issue(self, va, tag): self.vm(f"buffer_load_dword v{vP}, v{va}, {SRD_WS}, s{sPO} offen sc1", tag)
    def poll_addr(self, va, nl, sh=2):
        self.e(f"v_cmp_gt_u32 vcc, {nl}, v1", f"v_lshlrev_b32 v{va}, {sh}, v1", f"v_mov_b32 v{vP}, {OOB:#x}", f"v_cndmask_b32 v{va}, v{vP}, v{va}, vcc")
        self.nl = nl
    def poll_check(self, va, tag, thr):
        n = self.nspin; self.nspin += 1
        self.stamp(f"poll<{tag}")
        self.wait(vm=[tag])
        self.stamp(f"poll={tag}")
        msk = f"s_and_b32 s99, vcc_lo, {(1 << self.nl) - 1:#x}"
        self.e(f"v_cmp_gt_u32 vcc, {thr}, v{vP}", msk, f"s_cbranch_scc1 L_spin{n} ;np", f"L_back{n}: ;np")
        self.stamp(f"poll>{tag}")
        self.spins += [f"L_spin{n}:", f"s_sub_u32 s{sBUD}, s{sBUD}, 1", f"s_cbranch_scc1 L_give{n}"] + ([f"s_sleep {P.sleep}"] if P.sleep else []) + [
                       f"buffer_load_dword v{vP}, v{va}, {SRD_WS}, s{sPO} offen sc1", "s_waitcnt vmcnt(0)",
                       f"v_cmp_gt_u32 vcc, {thr}, v{vP}", msk, f"s_cbranch_scc1 L_spin{n}", f"s_branch L_back{n}",
                       f"L_give{n}:", f"s_mov_b32 s{sBUD}, 0", f"s_branch L_back{n}"]
    def poll_wait(self, va, tag, thr, alt):
        if not P.poll2:
            self.poll_check(va, tag, thr); return
        n = self.nspin; self.nspin += 1
        ld = lambda r: f"buffer_load_dword v{r}, v{va}, {SRD_WS}, s{sPO} offen sc1"
        tst = lambda r: [f"v_cmp_gt_u32 vcc, {thr}, v{r}", f"s_and_b32 s99, vcc_lo, {(1 << self.nl) - 1:#x}"]
        self.e(f"s_sleep {P.poll2}")
        self.vm(ld(alt), "polljunk")
        self.wait(vm=[tag])
        self.e(*tst(vP)); self.e(f"s_cbranch_scc1 L_spin{n} ;np", f"L_back{n}: ;np")
        self.spins += [f"L_spin{n}:", f"s_sub_u32 s{sBUD}, s{sBUD}, 1", f"s_cbranch_scc1 L_give{n}",
                       ld(vP), "s_waitcnt vmcnt(1)"] + tst(alt) + [f"s_cbranch_scc0 L_back{n}", ld(alt), "s_waitcnt vmcnt(1)"] + tst(vP) + \
                      [f"s_cbranch_scc1 L_spin{n}", f"s_branch L_back{n}", f"L_give{n}:", f"s_mov_b32 s{sBUD}, 0", f"s_branch L_back{n}"]
    def flag(self, val, soff=sFO, st=None):
        self.e(f"v_mov_b32 v{vFV}, {val}")
        if st is not None:
            self.vm(f"buffer_store_dword v{vFV}, v{vFA}, {SRD_WS}, s{soff} offen {st}", "flag"); return
        if P.flagbr:
            self.dstore(f"buffer_store_dword v{vFV}, v{vFA}, {SRD_WS}, s{soff} offen", "flag", True); return
        self.e(f"s_or_b32 s99, s{soff}, s{sML}")
        self.vm(f"buffer_store_dword v{vFV}, v{vFA}, {SRD_WS}, s99 offen", "flag")
        self.e(f"s_or_b32 s99, s{soff}, s{sMS}")
        self.vm(f"buffer_store_dword v{vFV}, v{vFA}, {SRD_WS}, s99 offen sc1", "flag")
    def dstore(self, text, tag, always=False):
        kind = tag[0] if isinstance(tag, tuple) else tag
        if (not P.plain or (self.layer, kind, isinstance(tag, tuple)) in P.wt) and not always:
            self.vm(text + " sc1", tag); return
        n = self.nspin; self.nspin += 1
        self.e(f"s_cmp_lg_u32 s{sML}, 0", f"s_cbranch_scc1 L_alt{n} ;np")
        self.vm(text, tag)
        self.e(f"L_back{n}: ;np")
        self.spins += [f"L_alt{n}:", "s_nop 4", text + " sc1", f"s_branch L_back{n}"]
    def valid(self, test, reload):
        n = self.nspin; self.nspin += 1
        self.e(*test); self.e(f"s_cbranch_vccnz L_rl{n} ;np", f"L_back{n}: ;np")
        self.spins += [f"L_rl{n}:", f"s_sub_u32 s{sBUD}, s{sBUD}, 1", f"s_cbranch_scc1 L_give{n}"] + reload + ["s_waitcnt vmcnt(0)"] + test + \
                      [f"s_cbranch_vccnz L_rl{n}", f"s_branch L_back{n}", f"L_give{n}:", f"s_mov_b32 s{sBUD}, 0", f"s_branch L_back{n}"]
    def touch(self, tmp, kind, base_expr, masked=True):
        if not P.plain or kind in P.notouch: return
        nl = {"p": 16, "q": 16, "s": 2, "t": 2, "h": 56}[kind]
        self.e(f"v_cmp_gt_u32 vcc, {nl}, v1")
        if kind in "pq": self.e(f"v_lshrrev_b32 v{tmp}, 3, v1", f"v_lshlrev_b32 v{tmp}, {15 if kind == 'p' else 13}, v{tmp}", f"v_and_b32 v{vFV}, 7, v1", f"v_lshl_add_u32 v{tmp}, v{vFV}, {LSH() if kind == 'q' else 7}, v{tmp}")
        else: self.e(f"v_lshlrev_b32 v{tmp}, {11 if kind == 's' else 7}, v1")
        self.e(f"v_mov_b32 v{vFV}, {OOB:#x}", *base_expr)
        self.e(f"v_cndmask_b32 v{tmp}, v{vFV}, v{tmp}, vcc")
        if masked: self.e(f"s_or_b32 s32, s32, s{sML}")
        self.vm(f"buffer_load_dword v{tmp}, v{tmp}, {XS() if kind == 'q' else SRD_WS}, s32 offen {P.t_mod}", "touch")
    def vm(self, text, tag=None):
        kind = tag[0] if isinstance(tag, tuple) else tag
        if kind in P.drop:
            self.seen.add(tag); return
        super().vm(text, tag)
    def codepf(self, t):
        if not P.codepf: return
        n = self.npf; self.npf += 1
        self.e(f"L_pf{n}: ;np", f"s_lshl_b32 s32, s{sW}, 12", f"s_add_u32 s32, s32, L_pf{n}-L_pc", f"v_lshl_add_u32 v{t+2}, v1, 7, s32", f"v_min_u32 v{t+2}, L_end-L_pc, v{t+2}",
               f"v_mov_b32 v{t+1}, s101", f"v_add_co_u32 v{t}, vcc, s100, v{t+2}", f"v_addc_co_u32 v{t+1}, vcc, 0, v{t+1}, vcc", "s_mov_b32 exec_hi, 0")
        self.vm(f"global_load_dword v{t+2}, v[{t}:{t+1}], off", "code")
        self.e("s_mov_b64 exec, -1")
    def flush_spins(self):
        for l in self.spins: self.e(l)
        self.spins = []

def batch(k, i):
    src = f"s_add_u32 s62, s{sGS}, {i*16384}" if i < 15 else f"s_add_u32 s62, s{sDS}, {(16 + 4*(i-15))*1024}"
    def f(q):
        k.set_m0(f"s_add_u32 m0, s{sGL}, {(i % 10)*16384}")
        if i != 14: k.set_s(src)
        elif k.last.get(62) != f"s_cselect_b32 s62, {OOB>>1:#x}, s62":
            k.e(src, f"s_cmp_ge_u32 s{sW}, 2", f"s_cselect_b32 s62, {OOB>>1:#x}, s62")
        k.vm(f"buffer_load_dwordx4 v{vL16}, {SRD_WS}, s62 offen offset:{q*1024} {P.bgm} lds", ("gw", i))
    return [lambda q=q: f(q) for q in range(4)]

def bg_batches(k, bs, period, dep=lambda b: None):
    for b in bs:
        for f in batch(k, b): k.bg_add(f, period, ("gw", b), dep(b))
def bg_list(k, fns, period, tag, dep=None):
    for f in fns: k.bg_add(f, period, tag, dep)

def regloads(k, base_sgpr, off, dst, n, tag, tmp=63, tagf=None):
    fns = []
    for j in range(n):
        def f(j=j):
            k.set_s(f"s_add_u32 s{tmp}, s{base_sgpr}, {off + (j & ~3)*1024}")
            k.vm(f"buffer_load_dwordx4 {dst(j)}, v{vL16}, {SRD_WS}, s{tmp} offen offset:{(j%4)*1024} {P.bgm}", tagf(j) if tagf else tag)
        fns.append(f)
    return fns
def wow(k):
    def f(i, q):
        k.set_m0(f"s_add_u32 m0, s{sGL}, {(6 + i)*16384}"); k.set_s(f"s_add_u32 s63, s88, {i*16384}")
        k.vm(f"buffer_load_dwordx4 v{vL16}, {SRD_WS}, s63 offen offset:{q*1024} lds", "wow")
    return [lambda i=i, q=q: f(i, q) for i in range(4) for q in range(4)]

def pack_issue(k):
    k.e(f"s_xor_b32 s99, s2, {P.pk_xor}")
    for r in (68, 69, 72, 73, 74, 75, 76, 77): assert k.writer[r].startswith("s_load"), f"kernel argument s{r} overwritten"
    k.e("v_lshrrev_b32 v44, 3, v1", "v_and_b32 v43, 7, v1", "v_and_b32 v45, 2, v44", "v_lshlrev_b32 v45, 1, v45",
        "v_xor_b32 v43, v43, v45", "v_lshlrev_b32 v43, 4, v43", f"s_add_u32 s34, s49, {L_X + 4096}")
    k.e("s_cmp_ge_u32 s99, 112", "s_cbranch_scc1 L_pki_small")
    k.e("s_and_b32 s35, s99, 1", "s_bfe_u32 s36, s99, 0x10001", "s_lshr_b32 s37, s99, 2")
    k.e("s_cmp_eq_u32 s35, 0", "s_cselect_b32 s24, s72, s74", "s_cselect_b32 s25, s73, s75",
        f"s_mov_b32 s26, {512*3584:#x}", "s_mov_b32 s27, 0x20000")
    k.e("v_mul_u32_u24 v46, 3584, v44", "v_add_u32 v46, v46, v43")
    k.e("s_lshl_b32 s38, s36, 2", f"s_add_u32 s38, s38, s{sW}", f"s_mul_i32 s38, s38, {64*3584}",
        "s_lshl_b32 s39, s37, 7", "s_add_u32 s38, s38, s39")
    for i in range(8):
        k.e(f"s_add_u32 m0, s34, {(i>>2)*8192 + (i&3)*1024}", f"s_add_u32 s39, s38, {i*8*3584}", f"buffer_load_dwordx4 v46, {SRD_PK}, s39 offen {P.pk_mod} lds")
    k.e("s_branch L_pki_done")
    k.label("L_pki_small")
    k.e("s_sub_u32 s35, s99, 112", "s_lshl_b32 s35, s35, 3", f"s_lshl_b32 s36, s{sW}, 1", "s_add_u32 s35, s35, s36")
    k.e("s_cmp_lt_u32 s35, 896", "s_cselect_b32 s24, s76, s68", "s_cselect_b32 s25, s77, s69", f"s_mov_b32 s26, {512*1024:#x}",
        f"s_cselect_b32 s26, {1792*1024:#x}, s26", "s_mov_b32 s27, 0x20000", "s_cselect_b32 s37, 1, 0",
        "s_movk_i32 s38, 896", "s_cselect_b32 s38, 0, s38")
    k.e("s_cselect_b32 s39, 0, 1", "s_cselect_b32 s70, 14, 15", "s_movk_i32 s71, 0x4000", "s_cselect_b32 s71, 0x80, s71")
    k.e("s_sub_u32 s35, s35, s38", "s_lshr_b32 s35, s35, s39", "s_and_b32 s36, s35, 7", "s_lshr_b32 s35, s35, 3")
    k.e("v_lshl_add_u32 v46, v44, 10, v43", "s_lshl_b32 s38, s35, s70", "s_lshl_b32 s39, s36, 7", "s_add_u32 s38, s38, s39")
    for i in range(2):
        for h in range(2):
            k.e(f"s_add_u32 m0, s34, {(2*i+h)*1024}", f"s_add_u32 s39, s38, {h*8192}", f"buffer_load_dwordx4 v46, {SRD_PK}, s39 offen {P.pk_mod} lds")
        if i == 0: k.e("s_add_u32 s38, s38, s71")
    k.label("L_pki_done")
    k.vmq.append("pk"); k.seen.add("pk")

PQ = [76, 80, 84, 88, 92, 96, 36, 40]
def pack_process(k, mid1, mid2):
    k.e("v_bfe_u32 v46, v1, 2, 2", "v_and_b32 v47, 3, v1", "v_bfe_u32 v48, v1, 4, 1", "v_lshrrev_b32 v49, 5, v1")
    k.e("v_and_b32 v50, 2, v46", "v_add_u32 v50, v50, v48", "v_lshlrev_b32 v50, 5, v50",
        "v_lshl_add_u32 v50, v46, 7, v50", "v_lshl_add_u32 v50, v47, 3, v50", "v_add_u32 v50, s34, v50")
    k.e("s_cmp_ge_u32 s99, 112", "s_cbranch_scc1 L_pk_small")
    q0 = list(k.vmq)
    k.e("v_lshl_add_u32 v56, v49, 10, v50", "v_xor_b32 v57, 64, v56")
    k.e("s_lshl_b32 s39, s37, 2", "v_add_u32 v58, s39, v48")
    k.e("s_lshl_b32 s70, s36, 2", f"s_add_u32 s70, s70, s{sW}", "s_lshl_b32 s70, s70, 2")
    k.e("v_and_b32 v66, 15, v1", "s_lshl_b32 s71, s35, 8", "v_lshl_add_u32 v66, v66, 4, s71")
    for p in range(2):
        T, fs, tl, st_, b, aug = 59, 60, 61, 62 + p, 64 + p, 68 + p
        k.e(f"v_add_u32 v{T}, {2*p}, v58", f"v_mul_u32_u24 v{fs}, 9363, v{T}", f"v_lshrrev_b32 v{fs}, 16, v{fs}",
            f"v_mul_u32_u24 v{tl}, 7, v{fs}", f"v_sub_u32 v{tl}, v{T}, v{tl}")
        k.e(f"v_cmp_gt_u32 vcc, 3, v{tl}", f"v_mul_u32_u24 v67, 33, v{tl}", f"v_mov_b32 v{st_}, 1", "v_mov_b32 v70, 3",
            f"v_cndmask_b32 v67, v67, v{tl}, vcc", f"v_cndmask_b32 v{st_}, v{st_}, v70, vcc")
        k.e(f"v_mul_u32_u24 v{fs}, 231, v{fs}", f"v_add_u32 v67, v67, v{fs}")
        k.e(f"v_lshl_add_u32 v70, v{st_}, 5, v67", "v_lshlrev_b32 v70, 10, v70", "v_add_u32 v70, v70, v66",
            "s_lshl_b32 s71, s36, 9", f"v_add_u32 v{aug}, s71, v70")
        k.e(f"v_mul_lo_u32 v70, v{st_}, s70", "v_add_u32 v67, v67, v70", "v_lshlrev_b32 v67, 10, v67",
            "v_add_u32 v67, v67, v66", f"v_lshl_add_u32 v{b}, v49, 9, v67", f"v_lshlrev_b32 v{st_}, 10, v{st_}")
    k.e("v_mov_b32 v71, 0x3f803f80", "v_mov_b32 v72, 0", "v_mov_b32 v73, 0", "v_cmp_gt_u32 vcc, 32, v1", "v_mov_b32 v46, 0", "v_mov_b32 v47, 0",
        "v_cndmask_b32 v68, v69, v68, vcc", f"s_lshl_b32 s72, s{sW}, 8", "s_add_u32 s72, s72, 0x10000", "v_lshl_add_u32 v74, v1, 2, s72",
        "v_lshlrev_b32 v75, 2, v1", "v_add_u32 v75, 0x10000, v75")
    k.e(f"s_mov_b32 s70, {WS_PGU}", "s_mov_b32 s71, s70", "s_mov_b32 s72, s70", "s_mov_b32 s73, s70", f"s_cmp_eq_u32 s{sW}, 0", f"s_cselect_b32 s74, s70, {OOB>>1:#x}")
    k.wait(vm="pk")
    for ks in range(4):
        for p in range(2):
            for j in range(2): k.ds(f"ds_read_b64_tr_b16 {vr(PQ[2*ks+p]+2*j,2)}, v{56+p} offset:{(ks>>1)*8192 + (ks&1)*2048 + j*512}", ("t", ks, p))
        if ks == 2: k.wait(lg=[("t", 0, 1)])
    mid1()
    for ks in range(4):
        for p in range(2):
            k.wait(lg=[("t", ks, p)])
            for d in range(4): k.e(f"v_dot2c_f32_bf16 v{72+p}, v{PQ[2*ks+p]+d}, v71")
    k.e("v_permlane32_swap_b32 v72, v73", "v_add_f32 v72, v72, v73")
    k.ds(f"ds_write_b32 v74, v72 offset:{L_CS - 65536}")
    k.wait(lg="all"); k.e("s_barrier")
    for w in range(4): k.ds(f"ds_read_b32 v{56+w}, v75 offset:{L_CS - 65536 + 256*w}")
    mid2()
    k.wait(lg="all")
    k.e("v_add_f32 v56, v56, v57", "v_add_f32 v58, v58, v59", "v_add_f32 v56, v56, v58")
    k.e("v_cvt_pk_bf16_f32 v45, v56, v46", "v_lshlrev_b32 v57, 16, v45", "v_sub_f32 v57, v56, v57", "v_cvt_pk_bf16_f32 v44, v56, v57")
    k.e("s_branch L_pk_done")
    k.label("L_pk_small")
    k.vmq = list(q0)
    k.e(f"v_mov_b32 v64, v{vL16}", f"v_add_u32 v65, 1024, v{vL16}", f"v_mov_b32 v68, v{vL16}", f"s_mov_b32 s72, {OOB>>1:#x}", "s_mov_b32 s73, s72", "s_mov_b32 s74, s72")
    k.e("s_cmp_eq_u32 s37, 0", "s_cbranch_scc1 L_pk_wo")
    k.e("s_mul_i32 s38, s35, 2341", "s_lshr_b32 s38, s38, 16", "s_mul_i32 s39, s38, 28", "s_sub_u32 s39, s35, s39",
        "s_mul_i32 s70, s39, 9363", "s_lshr_b32 s70, s70, 16", "s_mul_i32 s71, s70, 7", "s_sub_u32 s71, s39, s71")
    for u in range(2):
      k.e(f"s_sub_u32 s39, s70, s36" if P.hrot else "s_mov_b32 s39, s70", f"s_sub_u32 s39, s39, {u if P.hrot else 0}", "s_and_b32 s39, s39, 3",
        "s_lshl_b32 s32, s39, 2", "s_add_u32 s32, s32, s71", "s_mul_i32 s33, s39, 3", "s_add_u32 s33, s33, s71", "s_add_u32 s33, s33, 12",
        "s_cmp_lt_u32 s71, 4", "s_cselect_b32 s32, s32, s33", "s_mul_i32 s33, s38, 28", "s_add_u32 s32, s32, s33", f"s_lshl_b32 s{(35, 37)[u]}, s32, 11")
    k.e("v_lshl_add_u32 v56, v49, 9, v50", "v_xor_b32 v57, 64, v56", f"v_mov_b32 v62, {224*KB}", f"v_mov_b32 v63, {224*KB}")
    k.e(f"s_mul_i32 s36, s36, {224*KB}", f"s_add_u32 s36, s36, {WS_PDN}", "s_add_u32 s70, s36, s35", "s_add_u32 s71, s36, s37")
    k.wait(vm="pk")
    for i in range(2):
        for nn in range(2):
            for j in range(2): k.ds(f"ds_read_b64_tr_b16 {vr(PQ[2*i+nn]+2*j,2)}, v{56+nn} offset:{i*2048 + j*1024}", "t")
    mid1(); mid2()
    k.wait(lg="all")
    k.e("s_branch L_pk_done")
    k.label("L_pk_wo")
    k.vmq = list(q0)
    k.e("v_and_b32 v56, 2, v46", "v_lshlrev_b32 v56, 1, v56", "v_xor_b32 v56, v56, v47", "v_lshlrev_b32 v56, 4, v56", "v_lshl_add_u32 v56, v46, 7, v56",
        "v_lshrrev_b32 v57, 4, v1", "v_lshl_add_u32 v56, v57, 10, v56", "v_add_u32 v56, s34, v56", "v_xor_b32 v57, 64, v56",
        "v_mov_b32 v62, 0x800", "v_mov_b32 v63, 0x800")
    k.e("s_lshl_b32 s36, s36, 16", "s_lshl_b32 s35, s35, 12", "s_add_u32 s70, s36, s35", f"s_add_u32 s70, s70, {WS_PWO}", "s_mov_b32 s71, s70")
    k.wait(vm="pk")
    for j in range(4):
        for jj in range(2): k.ds(f"ds_read_b64_tr_b16 {vr(PQ[j]+2*jj,2)}, v{56+(j>>1)} offset:{jj*512 + 8*(j&1)}", "t")
    mid1(); mid2()
    k.wait(lg="all")
    k.label("L_pk_done")

def pack_stores(k):
    ops = []
    for r in range(4):
        for p in range(2):
            ops.append(("v", lambda r=r, p=p: k.vm(f"buffer_store_dwordx4 {vr(PQ[2*r+p],4)}, v{64+p}, {SRD_WS}, s{70+r} offen sc1", "pks")))
            if r < 3: ops.append(("a", lambda p=p: k.e(f"v_add_u32 v{64+p}, v{64+p}, v{62+p}")))
    ops.append(("v", lambda: k.vm(f"buffer_store_dwordx4 v[44:47], v68, {SRD_WS}, s74 offen sc1", "pks")))
    return ops

A_XF, A_K, A_V, A_Q = 36, 76, 86, 96
A_STA, A_STB, A_OP, A_DX, A_PA, A_ST, A_ACC = 104, 106, 144, 152, 153, 140, 184
class R0: XE, XO, SA, SB, CI, ONE, M, ATT, TMP = 3, 4, 5, 6, 28, 32, 52, (116, 160), 60
class R1: XE, XO, SA, SB, CI, ONE, M, ATT, TMP = 116, 117, 118, 119, 252, 124, 120, (228, 160), 28
A_U, A_PX = 226, 115
A11_ORDER = [2, 3, 1, 0, "h"]
A11_POS = {2: 3, 3: 0, 1: 1, 0: 2, "h": 3}
sODD, sCUR0, sCUR1, sCEXP = 40, 42, 44, 46

def a1_setup(k, layer):
    R = (R0, R1)[layer]
    real = k; out = []
    class Rec:
        def e(self, *t):
            if any(x.startswith("s_cmp") for x in t): out.append(lambda t=t: real.e(*t))
            else: out.extend(lambda x=x: real.e(x) for x in t)
    k = Rec()
    t16, g, tt, tb = R.TMP, R.TMP + 1, R.TMP + 2, R.TMP + 3
    x, y, z = R.ONE, R.ONE + 1, R.ONE + 2
    sa = L_SA0 if layer == 0 else L_SA1
    k.e(f"v_and_b32 v{t16}, 15, v1", f"v_lshrrev_b32 v{g}, 4, v1", f"v_and_b32 v{tt}, 7, v1", f"v_bfe_u32 v{tb}, v1, 3, 1")
    k.e(f"v_lshlrev_b32 v{tb}, 13, v{tb}")
    if layer == 0: k.e(f"v_add_u32 v{tb}, {L_X}, v{tb}")
    if layer == 0:
        k.e(f"v_and_b32 v{x}, 6, v{tt}", f"v_xor_b32 v{x}, v{x}, v{g}", f"v_lshlrev_b32 v{x}, 4, v{x}",
            f"v_lshl_add_u32 v{x}, v{tt}, 7, v{x}", f"v_add_u32 v{R.XE}, v{x}, v{tb}", f"v_xor_b32 v{R.XO}, 64, v{R.XE}")
    else:
        k.e(f"v_lshl_add_u32 v{x}, v{g}, 7, v{tb}", f"v_lshl_add_u32 v{R.XE}, v{tt}, 4, v{x}", f"v_add_u32 v{R.XO}, 512, v{R.XE}")
    k.e(f"v_lshlrev_b32 v{R.SA}, 3, v{t16}", f"v_add_u32 v{R.SA}, {sa}, v{R.SA}",
        f"v_lshlrev_b32 v{R.SB}, 5, v{g}", f"v_add_u32 v{R.SB}, {sa}, v{R.SB}")
    k.e(f"v_and_b32 v{x}, 1, v1", f"v_cmp_eq_u32 s[{sODD}:{sODD+1}], 1, v{x}",
        f"v_lshl_add_u32 v{y}, v{g}, 2, v{x}", f"v_cmp_le_u32 s[{sCUR0}:{sCUR0+1}], v{y}, v{t16}",
        f"v_add_u32 v{y}, 2, v{y}", f"v_cmp_le_u32 s[{sCUR1}:{sCUR1+1}], v{y}, v{t16}")
    k.e(f"v_mov_b32 v{y}, 0xffff", f"v_mov_b32 v{z}, 0xffff0000", f"v_cndmask_b32 v{y}, v{y}, v{z}, s[{sODD}:{sODD+1}]", f"v_mov_b32 v{z}, 0")
    k.e(f"v_cndmask_b32 v{R.M+2}, v{z}, v{y}, s[{sCUR0}:{sCUR0+1}]", f"v_cndmask_b32 v{R.M}, v{y}, v{z}, s[{sCUR0}:{sCUR0+1}]",
        f"v_cndmask_b32 v{R.M+3}, v{z}, v{y}, s[{sCUR1}:{sCUR1+1}]", f"v_cndmask_b32 v{R.M+1}, v{y}, v{z}, s[{sCUR1}:{sCUR1+1}]")
    k.e(f"s_cmp_eq_u32 s{sB}, 0", f"s_cselect_b32 s70, {f2u(-1e38):#x}, 0", f"s_mov_b32 s{sCEXP}, {f2u(0.25*LOG2E):#x}")
    for i in range(4): k.e(f"v_mov_b32 v{R.CI+i}, s70", f"v_mov_b32 v{R.ONE+i}, 0x3f803f80")
    return out

def o_bases(k, layer):
    k.e(*o_block("s32", layer))
    k.e(f"s_lshl_b32 s33, s{sCS}, 2", f"s_add_u32 s33, s33, s{sW}", "s_lshl_b32 s53, s33, 10", "s_add_u32 s53, s53, s32", "s_add_u32 s54, s53, 32768",
        f"s_lshl_b32 s32, s{sB}, 5", "s_add_u32 s32, s32, s33", "s_lshl_b32 s32, s32, 2", f"s_add_u32 s89, s32, {fl(layer, FL_O)}")

def ln_finish(a, s, q):
    a(f"v_mul_f32 v{s}, {f2u(-1/512):#x}, v{s}"); a(f"v_mul_f32 v{q}, {f2u(1/512):#x}, v{q}")
    a(f"v_fma_f32 v{q}, -v{s}, v{s}, v{q}"); a(f"v_max_f32 v{q}, 0, v{q}"); a(f"v_add_f32 v{q}, {f2u(1e-5):#x}, v{q}")

A_QS = 68
def fix_reads(k, R, t, S):
    i = 0 if t == "h" else t + 1
    return [lambda: k.ds(f"ds_read_b64 {vr(S,2)}, v{R.SA} offset:{i*128}", ("sa", t)),
            lambda: k.ds(f"ds_read_b128 {vr(S+2,4)}, v{R.SB} offset:{i*128}", ("sa", t)),
            lambda: k.ds(f"ds_read_b128 {vr(S+6,4)}, v{R.SB} offset:{i*128+16}", ("sa", t))]
def fix(k, R, fx, t, acc, at, pk, S=A_STA, pre=False, nxt=()):
    a = lambda txt, c=1, at=0: fx.add(lambda: k.e(txt), c, at)
    i = 0 if t == "h" else t + 1
    if not pre:
        for n, f in enumerate(fix_reads(k, R, t, S)): fx.add(f, 1, at - P.a1_salead if n == 0 else 0)
    fx.add(lambda: k.wait(lg=[("sa", t)]), 1, at)
    for f in nxt: fx.add(f)
    for r0, cs, dst in ((acc[0], CSQ, None if t == "h" else A_Q + 2*t), (acc[1], CSK, A_K + 2*i)):
        if dst is None: continue
        isq = cs == CSQ
        if pk:
            for h in (0, 2): a(f"v_pk_fma_f32 {vr(r0+h,2)}, {vr(S,2)}, {vr(cs+h,2)}, {vr(r0+h,2)} op_sel_hi:[0,1,1]")
            if not isq:
                for h in (0, 2): a(f"v_pk_mul_f32 {vr(r0+h,2)}, {vr(S,2)}, {vr(r0+h,2)} op_sel:[1,0] op_sel_hi:[1,1]")
        else:
            for r in range(4): a(f"v_fmac_f32 v{r0+r}, v{S}, v{cs+r}")
            if not isq:
                for r in range(4): a(f"v_mul_f32 v{r0+r}, v{S+1}, v{r0+r}")
        if isq: a(f"v_mul_f32 v{A_QS+t}, s{sCEXP}, v{S+1}")
        for h in range(2): a(f"v_cvt_pk_bf16_f32 v{dst+h}, v{r0+2*h}, v{r0+2*h+1}")
    r0 = acc[2]
    for r in range(4): a(f"v_fmac_f32 v{r0+r}, v{S+2+2*r}, v{CSV}")
    for r in range(4): a(f"v_mul_f32 v{r0+r}, v{S+3+2*r}, v{r0+r}")
    for h in range(2): a(f"v_cvt_pk_bf16_f32 v{A_V+2*i+h}, v{r0+2*h}, v{r0+2*h+1}")
    fx.add(lambda: (k.mark(("fix", t)), k.stamp(f"t0 fix{t}")), 0)

def attn(k, R, fx, t, B):
    SC, SP, PP, O, SUM, T = B, B + 4, B + 8, B + 12, B + 16, B + 20
    a = lambda txt, c=1: fx.add(lambda: k.e(txt), c)
    q = vr(A_Q + 2*t, 2)
    fx.dep(("fix", t)); fx.dep(("fix", t - 1 if t else "h")); fx.skip(1)
    a(f"{MF16S} {vr(SC,4)}, {vr(A_K+2*(t+1),2)}, {q}, 0", 2)
    a(f"{MF16S} {vr(SP,4)}, {vr(A_K+2*t,2)}, {q}, {vr(R.CI,4) if t == 0 else '0'}", 2)
    fx.skip(3)
    for rr, cur in ((0, sCUR0), (1, sCUR1)):
        a(f"v_cndmask_b32 v{T+2}, v{SC+2*rr}, v{SC+2*rr+1}, s[{sODD}:{sODD+1}]")
        a(f"v_cndmask_b32 v{T+3}, v{SP+2*rr}, v{SP+2*rr+1}, s[{sODD}:{sODD+1}]")
        a(f"v_cndmask_b32 v{T+rr}, v{T+3}, v{T+2}, s[{cur}:{cur+1}]")
    a(f"v_max_f32 v{T+2}, v{T}, v{T+1}"); a(f"v_mov_b32 v{T+3}, v{T+2}"); fx.skip(1)
    a(f"v_permlane16_swap_b32 v{T+2}, v{T+3}", 2); a(f"v_max_f32 v{T+2}, v{T+2}, v{T+3}"); a(f"v_mov_b32 v{T+3}, v{T+2}"); fx.skip(1)
    a(f"v_permlane32_swap_b32 v{T+2}, v{T+3}", 2); a(f"v_max_f32 v{T+2}, v{T+2}, v{T+3}")
    a(f"v_mul_f32 v{T+2}, v{A_QS+t}, v{T+2}")
    for rr in range(2): a(f"v_fma_f32 v{T+rr}, v{T+rr}, v{A_QS+t}, -v{T+2}")
    for rr in range(2): a(f"v_exp_f32 v{T+rr}, v{T+rr}", 2)
    for rr in range(2): a(f"v_cvt_pk_bf16_f32 v{T+rr}, v{T+rr}, v{T+rr}")
    a(f"v_and_b32 v{PP}, v{T}, v{R.M}"); a(f"v_and_b32 v{PP+1}, v{T+1}, v{R.M+1}")
    a(f"v_and_b32 v{PP+2}, v{T}, v{R.M+2}"); a(f"v_and_b32 v{PP+3}, v{T+1}, v{R.M+3}")
    fx.skip(1)
    a(f"{MF16} {vr(SUM,4)}, {vr(R.ONE,4)}, {vr(PP,4)}, 0", 2)
    a(f"{MF16} {vr(O,4)}, {vr(A_V+2*t,4)}, {vr(PP,4)}, 0", 2)
    fx.skip(3)
    a(f"v_rcp_f32 v{T}, v{SUM}", 2); fx.skip(1)
    for r in range(4): a(f"v_mul_f32 v{O+r}, v{T}, v{O+r}")
    for h in range(2): a(f"v_cvt_pk_bf16_f32 v{A_OP+2*t+h}, v{O+2*h}, v{O+2*h+1}")
    fx.add(lambda: (k.mark(("attn", t)), k.stamp(f"t0 attn{t}")), 0)

def ostore(k, fx, pair):
    b = A_OP + 4 * pair
    fx.dep(("attn", 2*pair)); fx.dep(("attn", 2*pair + 1))
    fx.dep("po1" if pair == 0 else "blank")
    fx.skip(1)
    fx.add(lambda: k.e(f"v_permlane16_swap_b32 v{b}, v{b+2}"), 2); fx.add(lambda: k.e(f"v_permlane16_swap_b32 v{b+1}, v{b+3}"), 2)
    fx.add(lambda: (k.dstore(f"buffer_store_dwordx4 {vr(b,4)}, v{vL16}, {SRD_WS}, s{53+pair} offen", ("ost", pair)), k.mark(("ost", pair))))

Z_WD, Z_TR, Z_HE, Z_HO, Z_OE, Z_OO = 164, 165, 166, 167, 168, 169
Z_XF, Z_SUM, Z_GR, Z_SUMH, Z_GRH, Z_CV = 104, 240, 244, 248, 252, 100
P.k_first = 4; P.k_pack = None; P.k_prep = 12
P.k_look, P.k_atom, P.k_bar, P.k_vgap, P.k_pst, P.k_pgap = 3, 5, 3, 3, 3, 0
NS0 = 6
def z_acc(t):
    if t == "h": return (None, A_ACC + 48, A_ACC + 52)
    return (A_ACC + 12*t, A_ACC + 12*t + 4, A_ACC + 12*t + 8)

def a10_lanes(k):
    k.e("v_lshrrev_b32 v60, 3, v1", "v_and_b32 v61, 6, v60", "v_and_b32 v62, 7, v1", "v_xor_b32 v61, v61, v62",
        "v_lshlrev_b32 v61, 4, v61", f"v_lshl_add_u32 v{A_DX}, v60, 10, v61")
    k.e("v_and_b32 v61, 2, v60", f"s_and_b32 s32, s{sW}, 1", "s_lshl_b32 s32, s32, 2", "v_or_b32 v61, s32, v61", "v_xor_b32 v61, v61, v62",
        "v_lshlrev_b32 v61, 4, v61", "v_mul_u32_u24 v60, 3072, v60", f"v_add_u32 v{Z_WD}, v60, v61")
    if P.rot == 0: k.e(f"s_add_u32 s{sROT}, s{sB}, s{sCS}")
    elif P.rot == 1: k.e(f"s_lshl_b32 s32, s{sB}, 1", f"s_bfe_u32 s33, s{sB}, 0x10002", "s_add_u32 s32, s32, s33", f"s_add_u32 s{sROT}, s32, s{sCS}")
    elif P.rot == 2: k.e(f"s_lshl_b32 s32, s{sB}, 1", f"s_add_u32 s{sROT}, s32, s{sCS}")
    elif P.rot == 3: k.e(f"s_mov_b32 s{sROT}, s{sCS}")
    elif P.rot == 4: k.e(f"s_lshl_b32 s32, s{sB}, 1", f"s_bfe_u32 s33, s{sB}, 0x10002", f"s_add_u32 s{sROT}, s32, s33")
    elif P.rot == 5: k.e(f"s_mov_b32 s{sROT}, 0")
    k.e(f"s_and_b32 s{sROT}, s{sROT}, 7")
    k.e(f"s_lshl_b32 s47, s{sB}, 3", "s_sub_u32 s48, s47, 2", "s_max_i32 s48, s48, 0", f"s_and_b32 s32, s{sW}, 1", "s_add_u32 s48, s48, s32",
        "s_lshl_b32 s48, s48, 13", f"s_lshl_b32 s32, s{sW}, 1", "s_add_u32 s47, s47, s32", "s_lshl_b32 s47, s47, 13")
    k.e(f"s_mul_i32 s51, s{sW}, {8*3072}", f"s_lshl_b32 s32, s{sCS}, 7", "s_add_u32 s51, s51, s32", f"s_mul_i32 s52, s{sW}, 3072")
    k.e(f"s_lshl_b32 s49, s{sW}, 14", f"s_and_b32 s32, s{sW}, 1", "s_lshl_b32 s50, s32, 13", f"s_lshr_b32 s32, s{sW}, 1",
        "s_lshl_b32 s33, s32, 10", "s_add_u32 s50, s50, s33", f"s_add_u32 s90, s32, s{sROT}")

def a10_x(k, c):
    S = lambda *t: [("s", lambda x=x: k.e(x)) for x in t]
    ld = lambda: k.vm(f"buffer_load_dwordx4 v{A_DX}, {SRD_X}, s33 offen {P.x_mod} lds", ("x", c))
    ops = S(f"s_add_u32 s33, s{sROT}, {c}", "s_and_b32 s33, s33, 7", "s_lshl_b32 s33, s33, 7", f"s_add_u32 m0, s49, {L_X + c*1024}", "s_add_u32 s33, s33, s47")
    ops += [("v", ld)] + S(f"s_add_u32 m0, s49, {L_X + 8192 + c*1024}", "s_add_u32 s33, s33, 8192") + [("v", ld)]
    if c % 2 == 0:
        ops += S(f"s_add_u32 s33, s90, {c}", "s_and_b32 s33, s33, 7", "s_lshl_b32 s33, s33, 7", f"s_add_u32 m0, s50, {L_XH0 + c*1024}", "s_add_u32 s33, s33, s48") + [("v", ld)]
    return ops

def a10_w(k, s):
    S = lambda *t: [("s", lambda x=x: k.e(x)) for x in t]
    if s & 1: ops = S(f"s_add_u32 m0, s52, {(s % NS0)*12288}", f"s_add_u32 s63, s63, {32*3072}")
    else: ops = S(f"s_add_u32 s63, s{sROT}, {s>>1}", "s_and_b32 s63, s63, 7", f"s_mul_i32 s63, s63, {64*3072}", f"s_add_u32 m0, s52, {(s % NS0)*12288}", "s_add_u32 s63, s63, s51")
    for p in range(3): ops.append(("v", lambda p=p: k.vm(f"buffer_load_dwordx4 v{Z_WD}, {SRD_QKV}, s63 offen offset:{p*1024} {P.w_mod} lds", ("w", s))))
    return ops
def run(ops):
    for _, f in ops: f()

def fill(k, mains, streams, cap=2):
    lastv = -99
    for g, m in enumerate(mains):
        m(); k.gap = g
        for a, o in streams:
            if a <= g and o and o[0][0] == "s": o.pop(0)[1](); break
        room = cap; nd = 0
        if g - lastv >= P.k_vgap and k.bg_step(): room -= 1; lastv = g
        while room > 0:
            pick = None
            for a, o in streams:
                if a > g or not o: continue
                t = o[0][0]
                if t == "d" and nd >= 1: continue
                if t == "v" and g - lastv < P.k_vgap: continue
                pick = o; break
            if pick is None: break
            t, f = pick.pop(0); f(); room -= 2 if t == "b" else 1
            if t == "d": nd += 1
            if t == "v": lastv = g
    for a, o in streams: run(o)

def a10_lanes2(k):
    k.e("v_lshrrev_b32 v60, 4, v1", "v_bfe_u32 v61, v1, 2, 2", "v_and_b32 v62, 1, v60", "v_lshlrev_b32 v62, 1, v62",
        "v_lshrrev_b32 v63, 1, v61", "v_or_b32 v62, v62, v63", f"v_xor_b32 v62, s{sW}, v62", "v_lshlrev_b32 v62, 5, v62",
        "v_mul_u32_u24 v60, 3072, v60", "v_lshl_add_u32 v60, v61, 7, v60", "v_add_u32 v60, v60, v62",
        "v_and_b32 v61, 3, v1", f"v_lshl_add_u32 v{Z_TR}, v61, 3, v60")
    k.e("v_and_b32 v60, 15, v1", "v_cmp_eq_u32 s[78:79], 0, v60")
    k.e(f"v_subrev_u32 v{Z_HE}, 16384, v{R0.XE}", f"v_subrev_u32 v{Z_HO}, 16384, v{R0.XO}",
        f"v_add_u32 v{Z_OE}, s49, v{R0.XE}", f"v_add_u32 v{Z_OO}, s49, v{R0.XO}")

def a10_loop(k, first):
    LA = P.k_look
    def sync(s, extra=()):
        k.wait(vm=[("w", s), ("x", s >> 1)] + list(extra)); k.e("s_barrier")
    nxt = [first]
    def dmas(upto):
        out = []
        while nxt[0] <= min(upto, 15):
            n = nxt[0]; nxt[0] += 1
            if n % 2 == 0: out += a10_x(k, n // 2)
            out += a10_w(k, n)
        return out
    def reads(s):
        fb = Z_XF + 24 * (s & 1); off = (s >> 1) * 1024; o = s & 1
        tr = lambda p, j: ("d", lambda: k.ds(f"ds_read_b64_tr_b16 {ar(12*s+4*p+2*j,2)}, v{Z_TR} offset:{(s%NS0)*12288 + p*1024 + j*512}", ("r", s, 0 if p == 0 else 1)))
        xr = lambda d, a, of, grp: ("d", lambda: k.ds(f"ds_read_b128 {vr(d,4)}, v{a} offset:{of}", ("r", s, grp)))
        out = [tr(0, 0), tr(0, 1)] + [xr(fb + 4*t, R0.XO if o else R0.XE, t*16384 + off, 0) for t in range(4)]
        out += [tr(1, 0), tr(1, 1), tr(2, 0), tr(2, 1), xr(fb + 16, Z_HO if o else Z_HE, off, 1), xr(fb + 20, Z_OO if o else Z_OE, off, 1)]
        return out
    l0_background(k)
    pst = pack_stores(k)
    sync(0)
    k.stamp("k0")
    run(reads(0)); run(dmas(LA - 1))
    for s in range(16):
        fb = Z_XF + 24 * (s & 1)
        c = lambda r: "0" if s == 0 else vr(r, 4)
        wq, wk, wv, one = ar(12*s, 4), ar(12*s + 4, 4), ar(12*s + 8, 4), vr(R0.ONE, 4)
        ms = [f"{MF16} {vr(z_acc(t)[0],4)}, {wq}, {vr(fb+4*t,4)}, {c(z_acc(t)[0])}" for t in range(4)]
        for t in [0, 1, 2, 3, "h"]:
            xf = vr(fb + (16 if t == "h" else 4*t), 4)
            ms.append(f"{MF16} {vr(z_acc(t)[1],4)}, {wk}, {xf}, {c(z_acc(t)[1])}")
            ms.append(f"{MF16} {vr(z_acc(t)[2],4)}, {xf}, {wv}, {c(z_acc(t)[2])}")
        ms += [f"{MF16} {vr(Z_CV,4)}, {wq}, {vr(fb+16,4)}, {c(Z_CV)}",
               f"{MF16} {vr(Z_SUM,4)}, {one}, {vr(fb+20,4)}, {c(Z_SUM)}", f"{MF16} {vr(Z_GR,4)}, {vr(fb+20,4)}, {vr(fb+20,4)}, {c(Z_GR)}",
               f"{MF16} {vr(Z_SUMH,4)}, {one}, {vr(fb+16,4)}, {c(Z_SUMH)}", f"{MF16} {vr(Z_GRH,4)}, {vr(fb+16,4)}, {vr(fb+16,4)}, {c(Z_GRH)}"]
        mains = [lambda m=m: k.e(m) for m in ms]
        if s == P.k_pack:
            k.wait(lg="all"); pack_process(k, lambda: None, lambda: None)
        k.wait(lg=[("r", s, 0)])
        streams = [(3, [("s", lambda: k.wait(lg=[("r", s, 1)]))] +
                       [("a", lambda d=d: k.e(f"v_cndmask_b32 v{fb+16+d}, v{fb+16+d}, v{R0.ONE}, s[78:79]")) for d in range(4)])]
        if s + 1 < 16:
            ex = ["pks"] if s + 1 == P.k_atom else []
            assert not ex or not pst, "arrival before the last pack store"
            assert P.k_prep > 14 - LA and (P.k_pack or 0) <= 8 - LA
            ops = [("b", lambda: sync(s + 1, ex))] + reads(s + 1)
            if ex: ops.append(("b", lambda: arrive(k)))
            streams.append((P.k_bar, ops))
            streams.append((0, dmas(s + LA)))
        n = 0; mine = []
        while pst and s >= (P.k_pack or 0) and (n < P.k_pst or pst[0][0] == "a"):
            n += pst[0][0] == "v"; mine.append(pst.pop(0))
        streams.append((P.k_pgap, mine))
        if s == P.k_prep: streams.append((6, tail_prep(k)))
        if s == P.k_touch:
            streams.append((2, [("b", lambda: k.touch(157, "p", ["s_mov_b32 s32, s53"], False) if (0, "ost", True) not in P.wt else None),
                                ("b", lambda: k.touch(158, "q", [f"s_add_u32 s32, s64, {BX2()}"], False) if (0, "xst", False) not in P.wt and P.x1_at == "k" else None),
                                ("b", lambda: k.touch(159, "h", h_base("s32", 0), False) if P.h_touch0 == "k" else None)]))
        if s == P.k_gb: streams.append((1, [("v", lambda t=t: k.vm(t, "gb")) for t in GB_LOADS]))
        if s == P.k_chk: streams.append((1, [("b", lambda: rendezvous(k))]))
        if s == 15 and P.k_chk < 16:
            streams.append((max(P.k_bar, 4), [("b", lambda: (k.e("s_barrier"), k.mark("xfree")))]))
        fill(k, mains, streams)
        if s in (3, 7, 11): k.stamp(f"k{s+1}")
    k.stamp("k16")
    if P.k_chk >= 16: rendezvous(k)

GB_LOADS = [f"buffer_load_dwordx4 {vr(36+4*j,4)}, v{vL16}, {SRD_WS}, s75 offen offset:{j*1024} sc1" for j in range(4)] + \
           [f"buffer_load_dword v{vP}, v172, {SRD_WS}, s77 offen offset:8 sc1"]
def arrive(k):
    k.wait(vm=["tag"])
    k.e(f"v_readfirstlane_b32 s{sTAG}, v170", f"s_cmp_eq_u32 s{sTAG}, 0", "s_cbranch_scc1 L_tag_spin ;np", "L_tag_ok: ;np")
    k.spins += ["L_tag_spin:", f"s_sub_u32 s{sBUD}, s{sBUD}, 1", "s_cbranch_scc1 L_tag_give", f"buffer_load_dword v170, v{vFA}, {SRD_DBG}, 0 offen sc1",
                "s_waitcnt vmcnt(0)", f"v_readfirstlane_b32 s{sTAG}, v170", f"s_cmp_eq_u32 s{sTAG}, 0", "s_cbranch_scc1 L_tag_spin", "s_branch L_tag_ok",
                "L_tag_give:", f"s_mov_b32 s{sBUD}, 0", "s_branch L_tag_ok"]
    k.e(f"v_mov_b32 v176, s{sTAG}", "v_not_b32 v177, v176", f"v_mov_b32 v178, s{sXCC}")
    k.vm(f"buffer_store_dwordx4 v[176:179], v171, {SRD_WS}, s75 offen sc1", "arr")

def rendezvous(k):
    chk = [f"s_not_b32 s32, s{sTAG}"]
    for j in range(4): chk += [f"v_xor_b32 v{36+4*j}, s{sTAG}, v{36+4*j}", f"v_xor_b32 v{37+4*j}, s32, v{37+4*j}"]
    chk += ["v_or3_b32 v36, v36, v37, v40", "v_or3_b32 v44, v44, v45, v41", "v_or3_b32 v36, v36, v48, v49", "v_or_b32 v36, v36, v44", "v_cmp_ne_u32 vcc, 0, v36"]
    k.wait(vm=["gb"])
    k.e(*chk); k.e("s_cbranch_vccnz L_gb_spin ;np", "L_gb_ok: ;np")
    k.spins += ["L_gb_spin:", f"s_sub_u32 s{sBUD}, s{sBUD}, 1", "s_cbranch_scc1 L_gb_give", "s_sleep 2",
                f"buffer_load_dword v170, v{vFA}, {SRD_DBG}, 0 offen sc1", "s_waitcnt vmcnt(0)", "v_readfirstlane_b32 s32, v170", f"s_cmp_eq_u32 s32, s{sTAG}",
                "s_cbranch_scc1 L_gb_same", f"s_mov_b32 s{sTAG}, s32", f"v_mov_b32 v176, s{sTAG}", "v_not_b32 v177, v176",
                f"buffer_store_dwordx4 v[176:179], v171, {SRD_WS}, s75 offen sc1", "L_gb_same:"] + GB_LOADS + ["s_waitcnt vmcnt(0)"] + chk + \
               ["s_cbranch_vccnz L_gb_spin", "s_branch L_gb_ok", "L_gb_give:", f"s_mov_b32 s{sBUD}, 0", "s_branch L_gb_ok"]
    k.e(f"v_cmp_ne_u32 vcc, s{sXCC}, v{vP}", "s_and_b32 s99, vcc_lo, 0xffff" if not P.safe else "s_and_b32 s99, 1, 1",
        f"s_cselect_b32 s{sML}, {OOB>>1:#x}, 0", f"s_cselect_b32 s{sMS}, 0, {OOB>>1:#x}")
    k.mark("gb")

W_OA, W_UA, W_SA, W_RB = 152, 154, 155, 156
def wo_bases(k):
    k.e(f"s_lshl_b32 s32, s{sB}, 2", f"s_add_u32 s32, s32, s{sW}", "s_lshl_b32 s64, s32, 14", f"s_lshl_b32 s33, s{sCS}, {CSH()}", "s_add_u32 s64, s64, s33",
        "s_lshr_b32 s32, s32, 1", "s_lshl_b32 s80, s32, 15", "s_lshl_b32 s65, s32, 11", "s_lshl_b32 s66, s32, 3", f"s_add_u32 s66, s66, s{sCS}", "s_lshl_b32 s66, s66, 1",
        f"s_and_b32 s32, s{sW}, 1", "s_add_u32 s66, s66, s32", "s_lshl_b32 s66, s66, 2", "s_lshl_b32 s32, s32, 8", "s_add_u32 s80, s80, s32", "s_add_u32 s65, s65, s32",
        f"s_lshr_b32 s32, s{sCS}, 1", "s_lshl_b32 s32, s32, 9", "s_add_u32 s65, s65, s32", f"s_and_b32 s32, s{sCS}, 1", "s_lshl_b32 s32, s32, 3", "s_add_u32 s65, s65, s32")
def wo_lanes(k):
    x, y = 66, 67
    return [lambda t=t: k.e(*t) for t in (
        [f"v_and_b32 v{x}, 15, v1"], [f"v_lshrrev_b32 v{y}, 4, v1"], [f"v_lshlrev_b32 v{W_OA}, 4, v{x}"], [f"v_lshl_add_u32 v{W_SA}, v{y}, 2, v{W_OA}"],
        [f"v_lshl_add_u32 v{W_OA}, v{y}, 9, v{W_OA}"], [f"v_and_b32 v{W_UA}, 7, v1"], [f"v_lshlrev_b32 v{W_UA}, 4, v{W_UA}"], [f"v_lshl_add_u32 v{W_UA}, v{y}, {LSH()}, v{W_UA}"],
        [f"v_lshrrev_b32 v{x}, 3, v{x}"], [f"v_lshl_add_u32 v{W_UA}, v{x}, 13, v{W_UA}"], [f"v_add_u32 v{W_RB}, {6*16384}, v{vL16}"],
        ["v_cmp_gt_u32 vcc, 32, v1", f"v_mov_b32 v{y}, {OOB:#x}", f"v_cndmask_b32 v{W_SA}, v{y}, v{W_SA}, vcc"])]
def blanks(k, layer):
    if not P.tags: return [lambda: k.mark("blank")]
    z = 66
    return [lambda: (k.e(f"v_mov_b32 v{z}, -1"), k.dstore(f"buffer_store_dword v{z}, v{vL16}, {SRD_WS}, s53 offen", "blank")),
            lambda: (k.e(f"s_add_u32 s58, s64, {BX2()}"), k.dstore(f"buffer_store_dword v{z}, v{W_UA}, {SRD_WS}, s58 offen", "blank")),
            lambda: k.dstore(f"buffer_store_dword v{z}, v{W_UA}, {SRD_WS}, s58 offen offset:512", "blank"),
            lambda: (k.e(f"s_add_u32 s58, s65, {BS1[layer]}"), k.dstore(f"buffer_store_dword v{z}, v{W_SA}, {SRD_WS}, s58 offen", "blank"), k.mark("blank"))]
def wo_prepoll(k, layer):
    k.poll_addr(A_PA, 32)
    k.e(f"s_lshl_b32 s32, s{sB}, 7", f"s_add_u32 s{sPO}, s32, {fl(layer, FL_O)}", *o_block("s59", layer), "s_and_b32 s32, s80, 0xffff", "s_add_u32 s59, s59, s32")
    k.bg_held = True
    k.poll_issue(A_PA, "po1"); k.mark("po1")

def dna(k): return regloads(k, sDS, 0, lambda j: ar(192 + 4*j, 4), 16, "dna")

def tail_prep(k):
    R = R0
    A = lambda *t: [("a", lambda x=x: k.e(x)) for x in t]
    B = lambda *t: [("b", lambda: k.e(*t))]
    ops = A("v_and_b32 v73, 15, v1", "v_lshrrev_b32 v74, 4, v1", "v_lshlrev_b32 v73, 10, v73", "v_lshl_add_u32 v73, v74, 4, v73")
    ops += B(f"s_lshl_b32 s58, s{sB}, 2", f"s_add_u32 s58, s58, s{sW}", "s_lshl_b32 s58, s58, 14", f"s_lshl_b32 s59, s{sCS}, 7", "s_add_u32 s58, s58, s59")
    ops += [("v", lambda p=p: k.vm(f"buffer_load_dwordx4 {vr(RES+4*p,4)}, v73, {SRD_X}, s58 offen offset:{p*64}", "res")) for p in range(2)]
    ops += A("v_and_b32 v75, 3, v1", "v_cmp_eq_u32 s[34:35], 1, v75", "v_cmp_eq_u32 s[36:37], 2, v75", "v_cmp_eq_u32 s[38:39], 3, v75", "v_bfe_u32 v75, v1, 2, 2")
    ops += B("v_cmp_eq_u32 vcc, v75, v74", f"v_mov_b32 v72, {L_SA0 + 768}", f"s_lshl_b32 s59, s{sW}, 7", f"v_add_u32 v74, s59, v{R.SA}",
             "v_cndmask_b32 v74, v72, v74, vcc", f"v_cndmask_b32 v75, v72, v{R.SA}, vcc")
    return ops + [("a", f) for f in wo_lanes(k)]

def l0_background(k):
    k.per = dict(P.per_k)
    dd = dna(k)
    bg_list(k, dd[:P.dna_first], "s4", "dna", "gb")
    bg_list(k, wow(k), "s4", "wow", "xfree")
    bg_batches(k, [0, 1, 2, 3], "s2", lambda b: "xfree")
    bg_batches(k, [4], "s2", lambda b: "wobar")
    bg_batches(k, [5], "s2", lambda b: "xfree")
    bg_batches(k, [6, 7, 8, 9], "s2", lambda b: "gubar")
    bg_list(k, dd[P.dna_first:], "s4", "dna")
P.per_k = {"s2": 90, "s4": 70}

def a10_tail(k):
    R = R0
    k.per = dict(P.per_tail0)
    k.stamp("t0 gb")
    xt = [lambda: k.touch(72, "t", [f"s_add_u32 s32, s65, {BS1[0]}"])]
    if P.x1_at != "k": xt.append(lambda: k.touch(158, "q", [f"s_add_u32 s32, s64, {BX2()}"]))
    if (0, "xst", False) in P.wt: xt = []
    if P.x1_at == "k":
        for f in xt: f()
    k.bg_burst(P.tail_burst); k.bg_next = k.t + P.tail_delay
    hk, hv = z_acc("h")[1], z_acc("h")[2]
    for r in range(4):
        k.e(f"v_mov_b32_dpp v{CSQ+r}, v{Z_CV+r} row_newbcast:0 row_mask:0xf bank_mask:0xf", f"v_mov_b32_dpp v{CSK+r}, v{hk+r} row_newbcast:0 row_mask:0xf bank_mask:0xf")
    k.e(f"v_mov_b32 v{CSV}, v{hv}", f"v_mov_b32 v45, v{hv}", f"v_permlane16_swap_b32 v{CSV}, v45", f"v_mov_b32 v45, v{CSV}", f"v_permlane32_swap_b32 v{CSV}, v45")
    fa = Flex(); fb = Flex()
    for fx, S, G, ad, off in ((fa, Z_SUM, Z_GR, 74, 128), (fb, Z_SUMH, Z_GRH, 75, 0)):
        a = lambda txt, c=1, fx=fx: fx.add(lambda: k.e(txt), c)
        a(f"v_cndmask_b32 v{S+1}, v{G}, v{G+1}, s[34:35]"); a(f"v_cndmask_b32 v{S+1}, v{S+1}, v{G+2}, s[36:37]"); a(f"v_cndmask_b32 v{S+1}, v{S+1}, v{G+3}, s[38:39]")
        ln_finish(a, S, S + 1); a(f"v_rsq_f32 v{S+1}, v{S+1}"); fx.skip(1)
        fx.add(lambda S=S, ad=ad, off=off: k.ds(f"ds_write_b64 v{ad}, {vr(S,2)} offset:{off}", "saw"))
    drain([fa, fb], k)
    for f in blanks(k, 0): f()
    k.wait(lg="all"); k.e("s_barrier"); k.mark("xfree")
    k.stamp("t0 bar")
    fx = Flex(); f1 = Flex(); f2 = Flex()
    od = (2, 1, 3, 0, "h"); Ss = (A_STA, 56)
    for f in fix_reads(k, R, od[0], Ss[0]): f()
    for n, t in enumerate(od):
        fix(k, R, fx, t, z_acc(t), 0, True, Ss[n & 1], True, fix_reads(k, R, od[n + 1], Ss[~n & 1]) if n < 4 else ()); fx.skip(1)
    attn(k, R, f1, 2, R.ATT[0]); attn(k, R, f2, 3, R.ATT[1]); ostore(k, f2, 1)
    attn(k, R, f1, 1, R.ATT[0]); attn(k, R, f2, 0, R.ATT[1]); ostore(k, f2, 0)
    f4 = Flex()
    if P.x1_at != "k":
        f4.dep(P.x1_at)
        for f in xt: f4.add(f)
    f3 = Flex(); f3.dep(("ost", 1))
    for _ in range(P.l0_flag_delay): f3.skip(1)
    f3.add(lambda: (k.wait(vm=[("ost", 1)]), k.flag(1, 89), k.mark("oflag1")))
    f3.dep(("attn", 0)); f3.add(lambda: wo_prepoll(k, 0))
    drain([fx, f1, f2, f3, f4], k)
    k.stamp("a1 end")
P.x1_at = 'k'; P.tail_burst = 2; P.tail_delay = 0; P.l0_flag_delay = 6; P.dna_first = 2
P.per_tail0 = {"s2": 70, "s4": 45}

def a11_bases(k):
    out = []
    S = lambda *t: out.extend(lambda x=x: k.e(x) for x in t)
    S(f"s_lshr_b32 s70, s{sW}, 1", "s_lshl_b32 s49, s70, 13", f"s_and_b32 s71, s{sW}, 1", "s_lshl_b32 s71, s71, 2",
      f"s_add_u32 s50, s71, s{sROT}", "s_lshl_b32 s71, s71, 10")
    for i in range(4):
        S(f"s_add_u32 s70, s50, {i}", "s_and_b32 s70, s70, 7", f"s_lshl_b32 s70, s70, {CSH()}", "s_add_u32 s70, s70, s49", f"s_sub_u32 s{92+i}, s70, {0 if P.x_out else i*1024}")
    S("s_add_u32 s49, s49, s71", f"s_lshl_b32 s47, s{sB}, 16", f"s_add_u32 s47, s47, {BX2()}")
    S(f"s_sub_u32 s48, s{sB}, 1", "s_max_i32 s48, s48, 0", "s_lshl_b32 s51, s48, 10", f"s_add_u32 s51, s51, {WS_HST}",
      "s_lshl_b32 s52, s48, 11", f"s_add_u32 s52, s52, {WS_HXF}", "s_lshl_b32 s48, s48, 14", f"s_add_u32 s48, s48, {WS_HALO}")
    S("v_lshrrev_b32 v28, 4, v1", "v_and_b32 v29, 15, v1", "v_lshlrev_b32 v29, 4, v29", f"v_lshl_add_u32 v{A_U}, v28, 9, v29", f"v_lshl_add_u32 v{A_U+1}, v28, 8, v29")
    S(f"s_lshl_b32 s70, s{sB}, 12", f"s_and_b32 s71, s{sW}, 1", "s_lshl_b32 s71, s71, 8", "s_add_u32 s70, s70, s71", f"s_add_u32 s90, s70, {BS2()}")
    out.append(lambda: k.e(f"s_lshl_b32 s70, s{sB}, 1", f"s_add_u32 s70, s70, s{sW}", "s_lshl_b32 s72, s70, 13", f"s_lshl_b32 s71, s{sCS}, {CSH()}", "s_add_u32 s72, s72, s71",
        f"s_add_u32 s72, s72, {WS_HALO - 16384}", f"s_cmp_ge_u32 s{sW}, 2", f"s_cselect_b32 s72, s72, {OOB>>1:#x}"))
    out.append(lambda: k.e(f"s_lshl_b32 s73, s{sB}, 10", f"s_lshr_b32 s71, s{sCS}, 1", "s_lshl_b32 s71, s71, 8", "s_add_u32 s73, s73, s71", f"s_and_b32 s71, s{sCS}, 1",
        "s_lshl_b32 s71, s71, 3", "s_add_u32 s73, s73, s71"))
    out.append(lambda: k.e(f"s_lshl_b32 s71, s{sW}, 7", "s_add_u32 s73, s73, s71", f"s_add_u32 s73, s73, {WS_HST - 256}",
        f"s_cmp_ge_u32 s{sW}, 2", f"s_cselect_b32 s73, s73, {OOB>>1:#x}"))
    out.append(lambda: k.e(f"s_lshl_b32 s70, s{sB}, 3", f"s_add_u32 s70, s70, s{sCS}", "s_lshl_b32 s70, s70, 1", f"s_add_u32 s70, s70, s{sW}", "s_lshl_b32 s70, s70, 7",
        f"s_add_u32 s70, s70, {WS_HXF - 256}", f"s_cmp_ge_u32 s{sW}, 2", f"s_cselect_b32 s91, s70, {OOB>>1:#x}"))
    return out

def a11_x(k, tile):
    fns = []
    for i in range(4):
        def f(i=i):
            k.set_m0(f"s_add_u32 m0, s49, {A11_POS[tile]*16384 + (i*1024 if P.x_out else 0)}")
            k.e(f"s_add_u32 s32, s{48 if tile == 'h' else 47}, s{92+i}")
            if tile not in (0, "h"): k.e(f"s_add_u32 s32, s32, {tile*16384}")
            k.vm(f"buffer_load_dwordx4 v{RX(False)}, {SRD_WS if tile == 'h' else XS()}, s32 offen offset:{0 if P.x_out else i*1024} sc1 lds", ("x", tile))
        fns.append(f)
    return fns

def stats_path(k, fx, S, tag, addr, tok, at=0):
    a = lambda txt, c=1: fx.add(lambda: k.e(txt), c)
    s, q = S, S + 1
    fx.add(lambda: k.wait(vm=[tag]), 1, at)
    a(f"v_add_f32 v{s}, v{s}, v{S+2}"); a(f"v_add_f32 v{q}, v{q}, v{S+3}"); fx.skip(1)
    a(f"v_permlane16_swap_b32 v{s}, v{q}", 2); a(f"v_add_f32 v{s}, v{s}, v{q}"); a(f"v_mov_b32 v{q}, v{s}"); fx.skip(1)
    a(f"v_permlane32_swap_b32 v{s}, v{q}", 2); a(f"v_add_f32 v{s}, v{s}, v{q}"); a(f"v_mov_b32 v{q}, v{s}"); fx.skip(1)
    a(f"v_permlane16_swap_b32 v{s}, v{q}", 2)
    ln_finish(a, s, q); a(f"v_rsq_f32 v{q}, v{q}", 2); fx.skip(1)
    fx.add(lambda: (k.ds(f"ds_write_b64 v{addr}, {vr(s,2)} offset:{tok*8}", ("saw", tag)), k.mark(("saw", tag))))

def a11_early(k, later=False):
    fns = a11_x(k, A11_ORDER[0]) + [lambda: k.vm(f"buffer_load_dwordx4 {vr(A_ST,4)}, v{A_U}, {SRD_WS}, s90 offen offset:2048 sc1", "st0")] + a11_x(k, A11_ORDER[1])
    if later: return fns
    for f in fns: f()

def a11_main(k):
    R = R1; order = A11_ORDER
    steps = [(t, s) for t in order for s in range(16)]
    accof = lambda t: A_ACC + 12 * (order.index(t) % 3)
    def xread(i):
        t, s = steps[i]
        off = A11_POS[t] * 16384 + (s >> 1) * 1024
        k.ds(f"ds_read_b128 {vr(A_XF+4*(i%4),4)}, v{R.XO if s&1 else R.XE} offset:{off}", ("xf", i))
    mains = []; fixed = {}; gap_of = {}
    need_sa = {order[1]: ["st0"], order[2]: ["st1"], order[3]: [], "h": []}
    for i, (t, s) in enumerate(steps):
        acc = accof(t); xf = vr(A_XF + 4*(i % 4), 4)
        c = lambda r, s=s: "0" if s == 0 else vr(r, 4)
        ms = []
        if t != "h": ms.append(f"{MF16} {vr(acc,4)}, {ar(12*s,4)}, {xf}, {c(acc)}")
        ms.append(f"{MF16} {vr(acc+4,4)}, {ar(12*s+4,4)}, {xf}, {c(acc+4)}")
        ms.append(f"{MF16} {vr(acc+8,4)}, {xf}, {ar(12*s+8,4)}, {c(acc+8)}")
        gap_of[(t, s)] = len(mains)
        for m in ms: mains.append(lambda m=m: k.e(m))
        last = len(mains) - 1
        fl_ = fixed.setdefault(last, [])
        if i + 1 < len(steps): fl_.append((0, lambda i=i: k.wait(lg=[("xf", i + 1)])))
        j = i + 4
        if j < len(steps):
            tj, sj = steps[j]
            if sj == 0:
                def bar(tj=tj):
                    k.wait(vm=[("x", tj)], lg=[("saw", n) for n in need_sa[tj]]); k.e("s_barrier"); k.mark(("bar", tj))
                fixed.setdefault(gap_of[(t, s)], []).append((1, bar))
            fixed[last].append((1, lambda j=j: xread(j)))
    fx = Flex(); fz = Flex(); fz2 = Flex(); fy = Flex(); fm = Flex()
    k.e(f"s_and_b32 s32, s{sW}, 1", "s_lshl_b32 s32, s32, 7", f"v_add_u32 v6, s32, v{R.SA}")
    o_bases(k, 1)
    stats_path(k, fy, A_ST, "st0", 6, 48)
    g1 = P.a1_late_gap
    fm.add(lambda: (k.wait(vm=[("xst", 1)]), k.flag(2)), 3, P.a1_flag_gap)
    fm.add(lambda: (k.poll_issue(A_PX, "px2"), setattr(k, "bg_held", not P.a1_bg_early)), 1, g1 - P.a1_poll_lead)
    fm.add(lambda: k.poll_check(A_PX, "px2", 2), 2, g1)
    fm.add(lambda: k.vm(f"buffer_load_dwordx4 {vr(56,4)}, v{A_U}, {SRD_WS}, s90 offen sc1", "st1"))
    for t in order[2:4]:
        for f in a11_x(k, t): fm.add(f, 2); fm.skip(P.a1_xgap)
    for f in wo_lanes(k): fy.add(f)
    fy.add(lambda: k.mark("wolanes"), 0)
    fm.dep("wolanes")
    for p in range(2):
        fm.add(lambda p=p: (k.e(f"s_add_u32 s58, s64, {BX2() + (p << (2 + LSH()))}"), k.vm(f"buffer_load_dwordx4 {vr(RES+4*p,4)}, v{W_UA}, {XS()}, s58 offen sc1", "res")), 2); fm.skip(P.a1_xgap)
    def halo_poll():
        k.poll_addr(A_PX, 16, 7)
        k.e(f"s_mov_b32 s{sPO}, s52", f"s_min_u32 s50, s{sB}, 1")
        k.poll_issue(A_PX, "phx"); k.bg_held = False
    fm.add(halo_poll, 3)
    for c in P.t1_a1:
        if c == "o": fm.add(lambda: k.touch(60, "p", ["s_mov_b32 s32, s53"]), 6)
        if c == "x": fm.add(lambda: k.touch(62, "q", [f"s_add_u32 s32, s64, {BX2()}"]), 6)
        if c == "s": fm.add(lambda: k.touch(64, "t", [f"s_add_u32 s32, s65, {BS1[1]}"]), 4)
    for f in blanks(k, 1): fm.skip(P.a1_xgap); fm.add(f, 3)
    stats_path(k, fy, 56, "st1", 6, 16, g1 + 26)
    fm.dep(("bar", order[2]))
    fm.add(lambda: k.poll_check(A_PX, "phx", "s50"), 2)
    fm.add(lambda: k.vm(f"buffer_load_dwordx4 {vr(A_ST,4)}, v{A_U+1}, {SRD_WS}, s51 offen sc1", "sth"))
    for f in a11_x(k, "h"): fm.add(f, 2); fm.skip(P.a1_xgap)
    stats_path(k, fy, A_ST, "sth", R.SA, 0, gap_of[(order[3], P.a1_sth)])
    k.per = dict(P.per_a1); k.bg_held = True
    b5 = batch(k, 5)
    mix = [(f, "s2", ("gw", 4), None) for f in batch(k, 4)] + [(f, "s2", ("gw", 5), None) for f in b5[:3]]
    ww = [(f, "s4", "wow", None) for f in wow(k)]
    while mix or ww:
        k.bg += ww[:2]; ww = ww[2:]
        if mix: k.bg.append(mix.pop(0))
    bg_batches(k, [0], "s2", lambda b: ("bar", order[3]))
    bg_batches(k, [1], "s2", lambda b: ("bar", "h"))
    bg_batches(k, [2, 3], "s2", lambda b: "wobar")
    bg_list(k, b5[3:], "s2", ("gw", 5), "wobar")
    if P.dn1_agpr:
        for j, f in enumerate(regloads(k, sDS, 16*1024, lambda j: ar(4*j, 4), 40, "dnr", tagf=lambda j: ("dnr", 8 + j // 2))): k.bg_add(f, "s4", ("dnr", 8 + j // 2), "gemm_done")
    bg_batches(k, [6, 7, 8, 9], "s2", lambda b: "gubar")
    A = lambda t: (accof(t) if t != "h" else None, accof(t) + 4, accof(t) + 8)
    for n in range(4): fix(k, R, fx, order[n], A(order[n]), gap_of[(order[n + 1], 1 if n < 3 else 2)], False)
    attn(k, R, fz, 3, R.ATT[0]); attn(k, R, fz2, 2, R.ATT[1]); ostore(k, fz2, 1)
    attn(k, R, fz, 1, R.ATT[0])
    fx.dep(("saw", "sth"))
    for f in fix_reads(k, R, "h", A_STA): fx.add(f)
    fx.dep("gemm_done")
    fix(k, R, fx, "h", A("h"), 0, False, pre=True); attn(k, R, fz2, 0, R.ATT[1]); ostore(k, fz2, 0)
    f3 = Flex(); f3.dep(("ost", 1)); f3.skip(P.l1_flag_delay)
    f3.add(lambda: (k.wait(vm=[("ost", 1)]), k.flag(1, 89), k.mark("oflag1")), 3)
    f3.dep(("attn", 0)); f3.add(lambda: wo_prepoll(k, 1))
    k.wait(vm=[("x", order[0])]); k.e("s_barrier")
    for i in range(4): xread(i)
    k.wait(lg=[("xf", 0)])
    k.stamp("a1 first")
    if k.stamping:
        for t in order[1:]: fixed.setdefault(gap_of[(t, 0)], []).append((0, lambda t=t: k.stamp(f"a1 t{t}")))
        for g in range(6, 224, 12): fixed.setdefault(g, []).append((0, lambda g=g: k.stamp(f"fina {g}")))
    run_gaps(k, mains, fixed, [fm, f3, fy, fx, fz2, fz], 2, over=lambda i: i >= P.a1_over)
    print("a11 left:", len(fm), len(fy), len(fx), len(fz), len(fz2), len(k.bg), {n: g for n, g in k.marks.items() if isinstance(n, tuple) and n[0] in ("fix", "attn", "saw", "ost")})
    k.mark("gemm_done"); k.bg_held = P.a1_tailhold
    k.stamp("a1 gemm")
    drain([fm, fy, fx, fz, fz2, f3], k)
    for n in range(2): assert k.marks[("fix", order[n])] < gap_of[(order[n + 3], 0)], "accumulator reused too early"
    k.stamp("a1 end")
P.a1_flag_gap, P.a1_late_gap, P.a1_poll_lead, P.l1_flag_delay, P.a1_over = 8, 36, 18, 14, 48
P.a1_bg_early = False; P.a1_salead = 8; P.a1_tailhold = True; P.touch1 = 1; P.t1_a1 = ''; P.t1_dn = ''; P.a1_xgap = 3; P.a1_sth = 4
P.per_a1 = {"s2": 80, "s4": 50}

R_W0, R_W1, R_RD, R_ST, R_OUT = 3, 4, 5, 6, 7
def RX(final): return vL16 if not P.x_out else (29 if final else R_OUT)
def red_setup(k, posA, dAB, final):
    x, y, z, u = 28, 29, 30, 31
    k.e(f"s_add_u32 s32, s{sGL}, {posA*16384}", f"v_add_u32 v{R_W0}, s32, v{vL16}", f"v_xor_b32 v{R_W1}, 128, v{R_W0}")
    k.e(f"v_and_b32 v{x}, 7, v1", f"v_lshrrev_b32 v{y}, 3, v1", f"s_lshl_b32 s32, s{sW}, 7", f"v_lshl_add_u32 v{z}, v{x}, 4, s32",
        f"v_bfe_u32 v{u}, v1, 4, 1", f"v_lshlrev_b32 v{R_RD}, 7, v{u}", f"v_xor_b32 v{z}, v{z}, v{R_RD}",
        f"v_bfe_u32 v{R_RD}, v1, 3, 2", f"v_lshl_add_u32 v{z}, v{R_RD}, 10, v{z}", f"v_lshrrev_b32 v{R_RD}, 5, v1",
        f"v_mul_u32_u24 v{R_RD}, {dAB*16384}, v{R_RD}", f"v_add_u32 v{z}, v{z}, v{R_RD}", f"v_add_u32 v{R_RD}, {posA*16384}, v{z}")
    k.e(f"v_lshlrev_b32 v{z}, 4, v{x}", f"v_lshl_add_u32 v{z}, v{u}, 2, v{z}", f"v_and_b32 v{u}, 0x28, v1",
        f"v_cmp_eq_u32 vcc, 0, v{u}", f"v_mov_b32 v{u}, {OOB:#x}", f"v_cndmask_b32 v{R_ST}, v{u}, v{z}, vcc")
    if final: k.e(f"v_lshlrev_b32 v{z}, 10, v{x}", f"v_lshl_add_u32 v{R_OUT}, v{y}, 4, v{z}")
    if P.x_out: k.e(f"v_lshlrev_b32 v{z}, 10, v{y}", f"v_lshl_add_u32 v{RX(final)}, v{x}, 4, v{z}")

def red_bases(k):
    k.e(f"s_lshl_b32 s32, s{sB}, 3", f"s_add_u32 s32, s32, s{sW}", "s_lshl_b32 s55, s32, 13", f"s_lshl_b32 s33, s{sCS}, {CSH()}", "s_add_u32 s55, s55, s33")
    k.e("s_lshl_b32 s57, s32, 13", f"s_lshl_b32 s33, s{sCS}, 7", "s_add_u32 s57, s57, s33")
    k.e(f"s_lshl_b32 s56, s{sB}, 12", f"s_lshr_b32 s33, s{sCS}, 1", "s_lshl_b32 s33, s33, 9", "s_add_u32 s56, s56, s33",
        f"s_and_b32 s33, s{sCS}, 1", "s_lshl_b32 s33, s33, 3", "s_add_u32 s56, s56, s33", f"s_lshl_b32 s33, s{sW}, 7", "s_add_u32 s56, s56, s33")

def red_writes(k, acc, g, off, dAB):
    return [lambda q=q: k.ds(f"ds_write_b128 v{R_W1 if (q>>1)&1 else R_W0}, {vr(acc+4*q,4)} offset:{off + (q>>2)*dAB*16384 + (q&3)*1024}", ("rw", g)) for q in range(8)]
def red_reads(k, g, T, off):
    return [lambda w=w, hf=hf: k.ds(f"ds_read_b128 {vr(T+8*w+4*hf,4)}, v{R_RD} offset:{off + w*4096 + hf*512}", ("rr", g, w)) for w in range(4) for hf in range(2)]

def red_finish(k, fx, g, mm, T, xdst, stdst, final, pk):
    a = lambda txt, c=1: fx.add(lambda: k.e(txt), c)
    R = RES + 4 * mm
    def add8(d, s):
        if pk:
            for i in range(0, 8, 2): a(f"v_pk_add_f32 {vr(d+i,2)}, {vr(d+i,2)}, {vr(s+i,2)}")
        else:
            for i in range(8): a(f"v_add_f32 v{d+i}, v{d+i}, v{s+i}")
    fx.add(lambda: k.wait(lg=[("rr", g, 1)]))
    add8(T, T + 8)
    for i in range(4): a(f"v_lshlrev_b32 v{T+8+2*i}, 16, v{R+i}"); a(f"v_and_b32 v{T+9+2*i}, 0xffff0000, v{R+i}")
    add8(T, T + 8)
    fx.add(lambda: k.wait(lg=[("rr", g, 3)]))
    add8(T + 16, T + 24); add8(T, T + 16)
    for i in range(4): a(f"v_cvt_pk_bf16_f32 v{R+i}, v{T+2*i}, v{T+2*i+1}")
    if final:
        fx.add(lambda: (k.e(f"s_add_u32 s32, s57, {mm*32768}"), k.vm(f"buffer_store_dwordx4 {vr(R,4)}, v{R_OUT}, {SRD_OUT}, s32 offen {P.outm[g]}", ("xst", g))))
        return
    fx.add(lambda: (k.e(f"s_add_u32 s32, s55, {xdst + mm*32768}"), k.dstore(f"buffer_store_dwordx4 {vr(R,4)}, v{RX(final)}, {XS()}, s32 offen", ("xst", g))), 2)
    s, q = T + 32, T + 33
    a(f"v_add_f32 v{s}, v{T}, v{T+1}"); a(f"v_mul_f32 v{q}, v{T}, v{T}"); a(f"v_fmac_f32 v{q}, v{T+1}, v{T+1}")
    for i in range(2, 8): a(f"v_add_f32 v{s}, v{s}, v{T+i}"); a(f"v_fmac_f32 v{q}, v{T+i}, v{T+i}")
    fx.skip(1)
    a(f"v_add_f32_dpp v{s}, v{s}, v{s} row_ror:8 row_mask:0xf bank_mask:0xf"); a(f"v_add_f32_dpp v{q}, v{q}, v{q} row_ror:8 row_mask:0xf bank_mask:0xf")
    fx.skip(1)
    a(f"v_permlane16_swap_b32 v{s}, v{q}", 2); a(f"v_add_f32 v{s}, v{s}, v{q}"); a(f"v_mov_b32 v{q}, v{s}"); fx.skip(1)
    a(f"v_permlane32_swap_b32 v{s}, v{q}", 2); a(f"v_add_f32 v{s}, v{s}, v{q}")
    fx.add(lambda: (k.e(f"s_add_u32 s32, s56, {stdst + mm*2048}"), k.dstore(f"buffer_store_dword v{s}, v{R_ST}, {SRD_WS}, s32 offen", ("xst", g)), k.mark(("xst", g))), 2)

def merge(k, fx, extra, first=0):
    extra = list(extra)
    items = [it for it in fx.items if it[0] != "skip"]; fx.items = []
    per = max(1, (len(items) - first) // max(1, len(extra)))
    for n, it in enumerate(items):
        if n >= first and (n - first) % per == 0 and extra: extra.pop(0)()
        it[1](); k.bg_step()
    for f in extra: f(); k.bg_step()

def wo(k, layer):
    BF, WQ, ACC, T, PA, NQ = 32, 160, 192, 208, A_PA, 8
    state = {}
    def bload(sx):
        k.set_s(f"s_add_u32 s58, s59, {(sx & ~1)*2048}")
        k.vm(f"buffer_load_dwordx4 {vr(BF+4*sx,4)}, v{W_OA}, {SRD_WS}, s58 offen offset:{(sx%2)*2048} sc1", ("b", sx))
    def wread(n): k.ds(f"ds_read_b128 {vr(WQ+4*(n%NQ),4)}, v{W_RB} offset:{n*1024}", ("wq", n))
    k.wait(vm=["wow"]); k.e("s_barrier"); k.mark("wobar")
    k.stamp("wl bar")
    for n in range(NQ): wread(n)
    btxt = lambda sx: [f"s_add_u32 s99, s59, {sx*2048}", f"buffer_load_dwordx4 {vr(BF+4*sx,4)}, v{W_OA}, {SRD_WS}, s99 offen sc1"]
    bchk = lambda sx: k.valid([f"v_cmp_eq_u32 vcc, -1, v{BF+4*sx}"], btxt(sx))
    ptxt = f"buffer_load_dword v{T+20}, v{T+21}, {SRD_WS}, s59 offen sc1"
    if P.tags:
        k.e(f"v_lshlrev_b32 v{T+21}, 8, v{PA}")
        k.e(f"v_or_b32 v{T+21}, v{T+21}, v{PA}", f"v_and_b32 v{T+21}, 0x80007c00, v{T+21}")
        k.poll_check(PA, "po1", 1)
        k.vm(ptxt, "probe")
        for sx in range(P.wo_spec): bload(sx)
        k.e(f"s_lshl_b32 s32, s{sC}, 1", f"s_and_b32 s33, s{sW}, 1", "s_add_u32 s32, s32, s33", "s_lshl_b32 s32, s32, 7", f"s_add_u32 s{sPO}, s32, {fl(layer, FL_O)}")
    else:
        k.e(f"s_add_u32 s{sFO}, s66, {fl(layer, FL_X1)}")
        k.codepf(96)
        if P.wo_setup_first == 2: gu_setup(k, layer)
        k.wait(vm=[("ost", 0)]); k.stamp("wl ack"); k.flag(2, 89)
        k.e(f"s_cmp_lt_u32 s{sW}, 2", f"s_cbranch_scc1 L_wo_late{layer}")
        q0 = list(k.vmq)
        k.poll_check(PA, "po1", 1)
        for sx in range(P.wo_lead): bload(sx)
        if P.wo_setup_first == 1: gu_setup(k, layer)
        k.e(f"s_branch L_wo_join{layer}")
        k.label(f"L_wo_late{layer}")
        k.vmq = list(q0)
        if P.wo_setup_first == 1: gu_setup(k, layer)
        k.poll_issue(PA, "po2"); k.poll_wait(PA, "po2", 2, 157); k.stamp("wl go")
        for sx in range(P.wo_lead): bload(sx)
        k.label(f"L_wo_join{layer}")
    if P.tags or not P.wo_setup_first: gu_setup(k, layer)
    k.stamp("wo issued")
    mains = []; fixed = {}
    for n in range(64):
        sx, j = divmod(n, 4)
        mains.append(lambda n=n, sx=sx, j=j: k.e(f"{MF16} {vr(ACC+4*j,4)}, {vr(WQ+4*(n%NQ),4)}, {vr(BF+4*sx,4)}, {'0' if sx == 0 else vr(ACC+4*j,4)}"))
        fl_ = fixed.setdefault(n, [])
        if n < 63: fl_.append((0, lambda n=n: k.wait(vm=[("b", (n + 1) // 4)] if (n + 1) % 4 == 0 else None, lg=[("wq", n + 1)])))
        if P.tags and n < 63 and (n + 1) % 4 == 0: fl_.append((1, lambda n=n: bchk((n + 1) // 4)))
        if P.tags and n == 42: fl_.append((1, lambda: k.poll_issue(PA, "px1")))
        if n + NQ < 64: fl_.append((1, lambda n=n: wread(n + NQ)))
        if n % P.wo_bstep == 0 and P.wo_lead + n // P.wo_bstep < 16: fl_.append((1, lambda n=n: bload(P.wo_lead + n // P.wo_bstep)))
    fx = Flex()
    a = lambda txt, c=1, at=0: fx.add(lambda: k.e(txt), c, at)
    fx.add(lambda: k.wait(vm=["res"]), 1, 8)
    for i in range(8): a(f"v_lshlrev_b32 v{T+2*i}, 16, v{RES+i}"); a(f"v_and_b32 v{T+2*i+1}, 0xffff0000, v{RES+i}")
    k.per = dict(P.per_wo[layer]); k.bg_held = False; k.bg_next = k.t + P.wo_bg_delay
    if P.tags:
        k.wait(vm=["probe"])
        k.valid([f"v_cmp_eq_u32 vcc, -1, v{T+20}"], [ptxt] + sum([btxt(x) for x in range(P.wo_spec)], []))
        state["fresh"] = True
        for sx in range(P.wo_spec, P.wo_lead): bload(sx)
    k.wait(vm=[("b", 0)], lg=[("wq", 0)])
    if P.tags: bchk(0)
    k.stamp("wo first")
    fixed[P.wo_bg_stop].append((0, lambda: setattr(k, "bg_held", True)))
    run_gaps(k, mains, fixed, [fx], 2)
    drain([fx], k)
    k.stamp("wo gemm")
    for i in range(0, 16, 2): k.e(f"v_pk_add_f32 {vr(T+i,2)}, {vr(T+i,2)}, {vr(ACC+i,2)}")
    for p in range(2):
        k.e(f"s_add_u32 s58, s64, {BX2() + (p << (2 + LSH()))}")
        for i in range(4): k.e(f"v_cvt_pk_bf16_f32 v{RES+4*p+i}, v{T+8*p+2*i}, v{T+8*p+2*i+1}")
        k.dstore(f"buffer_store_dwordx4 {vr(RES+4*p,4)}, v{W_UA}, {XS()}, s58 offen", "xst")
    S, Q = T + 16, T + 18
    k.e(f"v_pk_add_f32 {vr(S,2)}, {vr(T,2)}, {vr(T+2,2)}", f"v_pk_mul_f32 {vr(Q,2)}, {vr(T,2)}, {vr(T,2)}", f"v_pk_fma_f32 {vr(Q,2)}, {vr(T+2,2)}, {vr(T+2,2)}, {vr(Q,2)}")
    for i in range(4, 16, 2): k.e(f"v_pk_add_f32 {vr(S,2)}, {vr(S,2)}, {vr(T+i,2)}", f"v_pk_fma_f32 {vr(Q,2)}, {vr(T+i,2)}, {vr(T+i,2)}, {vr(Q,2)}")
    k.e(f"v_add_f32 v{S}, v{S}, v{S+1}", f"v_add_f32 v{Q}, v{Q}, v{Q+1}", f"s_add_u32 s58, s65, {BS1[layer]}",
        f"v_permlane16_swap_b32 v{S}, v{Q}", f"v_add_f32 v{S}, v{S}, v{Q}", f"v_mov_b32 v{Q}, v{S}", f"v_permlane32_swap_b32 v{S}, v{Q}", f"v_add_f32 v{S}, v{S}, v{Q}")
    k.dstore(f"buffer_store_dword v{S}, v{W_SA}, {SRD_WS}, s58 offen", "xst")
    key = lambda it: it[2][1] if (isinstance(it[2], tuple) and it[2][0] == "gw") else 11.5
    k.bg.sort(key=key)
    print(f"wo{layer} done, background left:", [it[2] for it in k.bg][::4])
    k.bg_burst(P.wo_win[layer])
    k.stamp("wo end")
P.wo_bg_delay = 750; P.wo_bg_stop = 63; P.wo_lead = 6; P.wo_spec = 3; P.gu_spec = 3; P.wo_bstep = 2
P.wo_poll_gap = 1; P.wo_late_gap = 7; P.wo_hold = True; P.wo_win = [4, 4]; P.wo_var = 'B'; P.wo_prew = 2
P.per_wo = [{"s2": 20, "s4": 20}] * 2

G_RB, G_C1, G_VV, G_AUG, G_X, G_ACC, G_WF, G_T = 3, 6, 7, 28, 32, 160, 224, 240
D_WV, D_BF, D_ACC, D_T, D_WF, D_RB, D_PA = 32, 64, 128, 192, 228, 112, 115
DN_SEQ = [(g, e) for g in range(2) for e in range(28)]
DN_GROUPS = [1, 0]
def h_loader(k, layer):
    def bload(i):
        if i == 0:
            k.e(f"s_mul_i32 s32, s{sB}, {224*KB}", f"s_mul_i32 s33, s{sW}, {28*KB}", "s_add_u32 s32, s32, s33", f"s_add_u32 s59, s32, {BH[layer]}")
            for p in range(4):
                k.e(f"s_add_u32 s32, s{sCS}, {p}", f"s_and_b32 s32, s32, {3 if P.hrot else 0}", f"s_mul_i32 s32, s32, {7*KB}", f"s_add_u32 s{34+p}, s59, s32")
                if not P.hrot: k.e(f"s_add_u32 s{34+p}, s{34+p}, {7*KB*p}")
        g, e = DN_SEQ[i]; p, tl = divmod(KK_OF[e], 7)
        k.set_s(f"s_add_u32 s58, s{34+p}, {DN_GROUPS[g] * 112 * KB + (tl & 4) * 1024}")
        k.vm(f"buffer_load_dwordx4 {vr(D_BF+4*(i%P.dn_lead),4)}, v{vL16}, {SRD_WS}, s58 offen offset:{(tl & 3)*1024} sc1", ("b", i))
    return bload

def gu_setup(k, layer):
    T = G_T; XA = T + 3
    k.e(*gu_tile("s50"))
    k.e(f"v_and_b32 v{T}, 31, v1")
    k.e(f"v_mov_b32 v{G_RB}, v{vL16}", f"v_add_u32 v{G_RB+1}, 0x10000, v{vL16}", f"v_add_u32 v{G_RB+2}, 0x20000, v{vL16}")
    k.e(f"v_lshrrev_b32 v{T+1}, 5, v1", f"v_lshlrev_b32 v{G_AUG+3}, 4, v{T}", f"v_lshl_add_u32 v{G_AUG+3}, v{T+1}, 10, v{G_AUG+3}")
    k.e(f"v_lshrrev_b32 v{XA}, 3, v{T}", f"v_lshlrev_b32 v{XA}, 13, v{XA}", f"v_lshl_add_u32 v{XA}, v{T+1}, {LSH()}, v{XA}",
        f"v_and_b32 v{T}, 7, v1", f"v_lshl_add_u32 v{XA}, v{T}, 4, v{XA}")
    k.e("s_lshl_b32 s32, s50, 11", f"s_add_u32 s51, s32, {BS1[layer]}")
    k.e("s_lshl_b32 s32, s50, 15", f"s_add_u32 s52, s32, {BX2()}", "s_add_u32 s53, s52, 4096")
    k.e(*h_base("s54", layer))
    k.e("s_lshr_b32 s32, s50, 1", "s_lshl_b32 s32, s32, 4", f"s_add_u32 s32, s32, s{sM}",
        "s_lshl_b32 s32, s32, 1", "s_and_b32 s33, s50, 1", "s_add_u32 s32, s32, s33", "s_lshl_b32 s32, s32, 2", f"s_add_u32 s81, s32, {fl(layer, FL_H)}")

def gu(k, layer):
    T = G_T; XA = T + 3; PA = T + 2
    if P.tags: k.poll_check(A_PA, "px1", 1)
    else:
        def pa():
            k.poll_addr(PA, 16)
            k.e("s_lshl_b32 s32, s50, 6", f"s_add_u32 s{sPO}, s32, {fl(layer, FL_X1)}")
        if not P.gu_pa_late: pa()
        k.wait(vm=["xst"]); k.flag(1)
        if P.gu_pa_late: pa()
        k.stamp("x1 flag")
        if not P.gu_bar_first: k.poll_issue(PA, "px1")
    k.e(f"s_mov_b32 s{sFO}, s81")
    seq = [(t, ks) for ks in range(33) for t in range(3)] + [(t, ks) for t in range(3, 7) for ks in range(33)]
    accof = {0: 0, 1: 1, 2: 2, 3: 3, 4: 0, 5: 1, 6: 2}
    NW = P.gu_nw
    WQ = [G_WF, G_WF + 4, G_WF + 8, G_WF + 12, T + 12]
    def wread(n):
        slot = (n % 160) * 1024
        k.ds(f"ds_read_b128 {vr(WQ[n%NW],4)}, v{G_RB + (slot>>16)} offset:{slot & 0xffff}", ("wf", n))
    BARS = P.gu_bars[layer]
    cover = lambda bi: [("gw", b) for b in range(bi, min([x for x in BARS if x > bi] + [15]))]
    def ringbar():
        k.wait(vm=cover(0)); k.e("s_barrier"); k.mark("gubar")
        for n in range(NW): wread(n)
    if P.gu_bar_first: ringbar(); k.poll_issue(PA, "px1")
    if not P.tags: k.poll_wait(PA, "px1", 1, 20)
    k.stamp("gu go")
    xoff = lambda kg: ((kg >> 2) << CSH()) + ((kg & 3) << (1 + LSH()))
    xtxt = lambda kg: f"buffer_load_dwordx4 {vr(G_X+4*kg,4)}, v{XA}, {XS()}, s{52 + (xoff(kg) >> 12)} offen offset:{xoff(kg) & 4095} sc1"
    def xload(kg): k.vm(xtxt(kg), ("gx", kg))
    xchk = lambda kg: k.valid([f"v_cmp_eq_u32 vcc, -1, v{G_X+4*kg}"], [xtxt(kg)])
    stxt = [f"buffer_load_dwordx4 {vr(T+4+4*h,4)}, v{G_AUG+3}, {SRD_WS}, s51 offen offset:{512*h} sc1" for h in range(2)]
    if P.tags:
        for t_ in stxt: k.vm(t_, "gst")
        for kg in range(P.gu_spec): xload(kg)
        k.wait(vm=["gst"])
        k.valid([f"v_max3_u32 v{T}, v{T+4}, v{T+6}, v{T+8}", f"v_max_u32 v{T}, v{T}, v{T+10}", f"v_cmp_eq_u32 vcc, -1, v{T}"],
                stxt + [xtxt(x) for x in range(P.gu_spec)])
        k.stamp("gu probe")
        for kg in range(P.gu_spec, P.gu_lead): xload(kg)
    else:
        for kg in range(P.gu_lead): xload(kg)
        for t_ in stxt: k.vm(t_, "gst")
    if not P.gu_bar_first: ringbar()
    mains = []; fixed = {}
    xpos = {}
    for kg in range(P.gu_lead, 32): xpos.setdefault(int((kg - P.gu_lead) * P.gu_xstep), []).append(kg)
    for n, (t, ks) in enumerate(seq):
        acc = G_ACC + 16 * accof[t]
        b = vr(G_AUG, 4) if ks == 32 else vr(G_X + 4*ks, 4)
        c = "0" if ks == 0 else vr(acc, 16)
        mains.append(lambda n=n, acc=acc, b=b, c=c: k.e(f"{MF32} {vr(acc,16)}, {vr(WQ[n%NW],4)}, {b}, {c}"))
        fl_ = fixed.setdefault(n, [])
        if n + 1 < len(seq):
            t2, ks2 = seq[n + 1]
            need = [("gx", ks2)] if (t2 == 0 and ks2 < 32) else None
            fl_.append((0, lambda n=n, need=need: k.wait(vm=need, lg=[("wf", n + 1)])))
            if need and P.tags: fl_.append((2, lambda ks2=ks2: xchk(ks2)))
        j = n + NW
        if j < len(seq):
            if j % 16 == 0 and j // 16 in BARS:
                fl_.append((2, lambda bi=j//16: (k.wait(vm=cover(bi)), k.e("s_barrier"), [k.mark(("gbar", b)) for b in range(bi + 1)])))
            fl_.append((1, lambda j=j: wread(j)))
        for kg in xpos.get(n, []): fl_.append((1, lambda kg=kg: xload(kg)))
    xend = max(xpos)
    tail = [it for it in k.bg if it[2] == "dna" or it[2][0] == "dnr"]; k.bg = [it for it in k.bg if not (it[2] == "dna" or it[2][0] == "dnr")]
    bg_batches(k, range(10, 15), "s2", lambda b: ("gbar", b - 8))
    first, ratio = P.gu_mix[layer]
    mid = k.bg[first:]; k.bg = k.bg[:first]; acc_ = 0.0
    while mid or tail:
        if mid: k.bg.append(mid.pop(0))
        acc_ += ratio
        while tail and (acc_ >= 1 or not mid): k.bg.append(tail.pop(0)); acc_ -= 1
    direct = layer == 1 and P.dn1_agpr
    if not direct: bg_batches(k, range(15, 23), "s4", lambda b: ("gbar", b - 8))
    k.per = dict(P.per_guA[layer]); k.bg_held = False; k.bg_next = k.t + P.gu_bg_delay
    fixed[xend].append((0, lambda: setattr(k, "per", dict(P.per_guB[layer]))))
    fv = Flex()
    dv = regloads(k, sDS, 48*1024, lambda j: vr(D_WV + 4*j, 4), 8, "dnv")
    k.hload = h_loader(k, layer)
    if direct: pass
    elif P.hpre:
        bg_list(k, dv, "s4", "dnv", "xdead")
        fixed[207].append((0, lambda: k.mark("xdead")))
    else:
        for j, f in enumerate(dv): fv.add(f, 1, 198 + 2 + 3*j)
    fx = Flex()
    a = lambda txt, c=1, at=0: fx.add(lambda: k.e(txt), c, at)
    fx.add(lambda: k.wait(vm=["gst"]), 1, 3 * P.gu_lead)
    a(f"v_add_f32 v{T+4}, v{T+4}, v{T+6}"); a(f"v_add_f32 v{T+5}, v{T+5}, v{T+7}"); a(f"v_add_f32 v{T+8}, v{T+8}, v{T+10}"); a(f"v_add_f32 v{T+9}, v{T+9}, v{T+11}")
    a(f"v_add_f32 v{T+4}, v{T+4}, v{T+8}"); a(f"v_add_f32 v{T+5}, v{T+5}, v{T+9}"); fx.skip(1)
    a(f"v_permlane32_swap_b32 v{T+4}, v{T+5}", 2); a(f"v_add_f32 v{T+4}, v{T+4}, v{T+5}"); a(f"v_mov_b32 v{T+5}, v{T+4}"); fx.skip(1)
    a(f"v_permlane32_swap_b32 v{T+4}, v{T+5}", 2)
    ln_finish(a, T + 4, T + 5)
    a(f"v_mov_b32 v{G_VV}, v{T+5}")
    a(f"v_rsq_f32 v{G_C1}, v{T+5}", 2); a(f"v_cvt_pk_bf16_f32 v{G_AUG}, v{T+4}, v{T+4}"); a(f"v_mul_f32 v{G_C1}, {f2u(-LOG2E):#x}, v{G_C1}")
    a(f"v_and_b32 v{T+5}, 0xffff0000, v{G_AUG}"); a(f"v_sub_f32 v{T+5}, v{T+4}, v{T+5}"); a(f"v_mov_b32 v{G_AUG+2}, 0")
    a(f"v_cvt_pk_bf16_f32 v{G_AUG+1}, v{T+5}, v{G_AUG+2}"); a(f"v_mov_b32 v{G_AUG+3}, 0")
    fx.add(lambda: k.mark("aug"), 0)
    def epi(t, at):
        acc = G_ACC + 16 * accof[t]; hp = (T + 8, RES + 4)[t & 1]; E = T + 4
        if t >= 2: fx.dep(("hst", t - 2))
        if P.x_noepi: a("s_nop 0", 1, at)
        for i0 in range(0, 8 if not P.x_noepi else 0, 2):
            for i in (i0, i0 + 1): a(f"v_mul_f32 v{E+(i&1)}, v{G_C1}, v{acc+i}", 1, at)
            for i in (i0, i0 + 1): a(f"v_exp_f32 v{E+(i&1)}, v{E+(i&1)}", 2)
            for i in (i0, i0 + 1): a(f"v_mul_f32 v{E+2+(i&1)}, v{acc+i}, v{acc+8+i}")
            for i in (i0, i0 + 1): a(f"v_fma_f32 v{E+(i&1)}, v{E+(i&1)}, v{G_VV}, v{G_VV}")
            for i in (i0, i0 + 1): a(f"v_rcp_f32 v{E+(i&1)}, v{E+(i&1)}", 2)
            fx.skip(1)
            for i in (i0, i0 + 1): a(f"v_mul_f32 v{E+2+(i&1)}, v{E+2+(i&1)}, v{E+(i&1)}")
            a(f"v_cvt_pk_bf16_f32 v{hp+i0//2}, v{E+2}, v{E+3}")
        fx.add(lambda: k.mark(("epi", t)), 0)
        txt = f"buffer_store_dwordx4 {vr(hp,4)}, v{vL16}, {SRD_WS}, s{54 if t < 4 else 82} offen offset:{(t%4)*1024}"
        plain = (layer and P.h1_plain) or (not layer and P.h_touch0)
        if P.h_np > 1 and t < P.h_stag and not plain:
            fx.add(lambda: k.mark(("hrdy", t)), 0)
            fh.dep(("hrdy", t))
            for j in range(P.h_np):
                def pos(j=j):
                    n = k.nspin; k.nspin += 1
                    k.e(f"s_cmp_lg_u32 s83, {j}", f"s_cbranch_scc1 L_sk{n} ;np", txt + " sc1 ;opt", f"L_sk{n}: ;np")
                    if j == P.h_np - 1:
                        k.vmq.append(("hst", t)); k.seen.add(("hst", t)); k.phantom.add(("hst", t)); k.mark(("hst", t))
                fh.add(pos, P.h_cost)
                if j < P.h_np - 1: fh.skip(P.h_d)
            if t >= 2: pass
        else:
            k.phantom.discard(("hst", t))
            fx.add(lambda: ((k.dstore if plain else lambda x, tg: k.vm(x + " sc1", tg))(txt, ("hst", t)), k.mark(("hst", t))), 2)
    fh = Flex()
    k.e("s_add_u32 s82, s54, 4096", f"s_lshl_b32 s32, s{sW}, {max(P.h_np.bit_length() - 3, 0)}", f"s_add_u32 s32, s32, s{sM}", f"s_add_u32 s32, s32, s{sC}", f"s_and_b32 s83, s32, {P.h_np - 1}")
    end = {t: max(n for n, x in enumerate(seq) if x[0] == t) for t in range(7)}
    for t in range(6): epi(t, end[t] + 3)
    if layer == 0 and P.h_touch0 == "g": fixed[xend + 1].append((5, lambda: k.touch(T, "h", ["s_mov_b32 s32, s54"])))
    if layer == 1 and P.x1_clean:
        for p in range(2):
            fixed[P.x1_clean + 8*p].append((3, lambda p=p: (k.e(f"s_add_u32 s58, s64, {BX2()}"),
                k.vm(f"buffer_store_dwordx4 {vr(RES+4*p,4)}, v9999, {SRD_WS}, s58 offen offset:{p*512} sc1", "clean"))))
    ff = Flex(); ff.dep(("hst", 3))
    if layer == 0:
        tx = [lambda: k.touch(T, "p", [f"s_add_u32 s32, s55, {BX2()}"]), lambda: k.touch(T + 1, "s", [f"s_add_u32 s32, s56, {BS2()}"])]
        if P.x2_touch == "h3": ff.add(tx[0], 6); ff.add(tx[1], 4)
        elif isinstance(P.x2_touch, int): fixed[P.x2_touch].append((5, tx[0])); fixed[P.x2_touch + 1].append((4, tx[1]))
        if "g" in str(P.touch1):
            for f in touch_next(k, T + 2)[:2]: ff.skip(1); ff.add(f, 6)
    ff.skip(P.gu_flag_delay)
    ff.add(lambda: (k.wait(vm=[("hst", 3)]), k.flag(1)), 3)
    def hpoll():
        k.wait(vm=["touch"] if "touch" in k.seen else None)
        k.poll_addr(T, 8)
        k.e(f"s_lshl_b32 s32, s{sB}, 7", f"s_lshl_b32 s33, s{sW}, 5", "s_add_u32 s32, s32, s33", f"s_add_u32 s{sPO}, s32, {fl(layer, FL_H)}")
        k.poll_issue(T, "ph1")
    if P.hpre:
        ff.add(hpoll, 4, P.hp_chk - 12)
        ff.add(lambda: (k.poll_check(T, "ph1", 1), setattr(k, "bg_held", True)), 3, P.hp_chk)
        for j in range(P.hpre): ff.add(lambda j=j: k.hload(j), 2, max(208 + j, int(P.hp_chk + 1 + j * P.hp_step)))
    else: ff.add(hpoll, 4, 228)
    k.wait(vm=[("gx", 0)], lg=[("wf", 0)])
    if P.tags: xchk(0)
    k.stamp("gu first")
    if k.stamping:
        for g in (48, 98, 131, 164, 197): fixed[g].append((0, lambda g=g: k.stamp(f"gu m{g}")))
    fixed[93].append((0, lambda: k.marks["aug"]))
    run_gaps(k, mains, fixed, [fv, fh, ff, fx], P.gu_cap)
    print("gu left:", len(k.bg), len(fv), len(ff), len(fx), {n: g for n, g in k.marks.items() if isinstance(n, tuple) and n[0] == "hst"})
    k.stamp("gu gemm")
    for g, t in {132: 0, 165: 1, 198: 2}.items(): assert k.marks[("epi", t)] < g, "accumulator reused too early"
    epi(6, 0); drain([fh, ff, fv, fx], k)
    k.e(f"v_mov_b32 v{D_PA}, v{T}")
    k.stamp("gu end")
P.x2_touch = None; P.dn_x2 = 2; P.h_cost = 1; P.h_np = 1; P.h_d = 2; P.h_stag = 5; P.gu_mix = [(28, 1), (24, 1)]; P.hrot = 0; P.gu_bars = [list(range(15)), [0, 3, 6, 9, 12]]; P.hpre = 0; P.hp_chk = 208; P.hp_step = 2.2; P.gu_flag_delay = 10; P.gu_xstep = 2.6; P.gu_bg_delay = 300
P.per_guA = [{"s2": 120, "s4": 120}, {"s2": 160, "s4": 160}]
P.per_guB = [{"s2": 90, "s4": 55}, {"s2": 80, "s4": 50}]

def dn(k, layer):
    final = layer == 1
    NB = P.dn_lead; T = D_T
    groups = DN_GROUPS; seq = DN_SEQ; bload = k.hload
    early = Flex()
    def rb(): k.e(f"v_add_u32 v{D_RB}, s{sGL}, v{vL16}", f"v_add_u32 v{D_RB+1}, 0x10000, v{D_RB}", f"v_add_u32 v{D_RB+2}, 0x20000, v{D_RB}")
    if P.hpre:
        for i in range(P.hpre, NB): bload(i)
        rb()
        class Rec:
            def e(self, *t):
                if any("vcc" in x or "s32" in x for x in t): early.add(lambda: k.e(*t), len(t))
                else:
                    for x in t: early.add(lambda x=x: k.e(x))
        red_setup(Rec(), 3, 1, final)
        early.add(lambda: (k.wait(vm=[("hst", 6)]), k.flag(2), k.poll_issue(D_PA, "ph2"), k.e(f"s_add_u32 s{sFO}, s89, {FL_X2 - FL_O}")), 5, P.dn_fgap)
    else:
        k.poll_check(D_PA, "ph1", 1)
        k.stamp("dn early")
        k.bg_held = True
        for i in range(P.dn_pre): bload(i)
        red_setup(k, 3, 1, final); rb()
        k.wait(vm=[("hst", 6)]); k.flag(2)
        if P.dn_pollstep is None: k.poll_issue(D_PA, "ph2")
        for i in range(P.dn_pre, NB): bload(i)
        k.e(f"s_add_u32 s{sFO}, s89, {FL_X2 - FL_O}")
    k.per = dict(P.per_dn0); k.bg_held = False
    direct = final and P.dn1_agpr
    lds = [(i, nn) for i, (g, e) in enumerate(seq) if 8 <= e < 24 and not direct for nn in range(2)]
    slot_of = {x: n for n, x in enumerate(lds)}
    NWF = 6
    def wread(n):
        i, nn = lds[n]; j = 2 * (seq[i][1] - 8) + nn; b = 15 + (j >> 2)
        ad = (b % 10) * 16384 + (j & 3) * 1024
        if seq[i][0] == 0: k.wait(vm=[("gw", b)])
        k.ds(f"ds_read_b128 {vr(D_WF+4*(n%NWF),4)}, v{D_RB + (ad>>16)} offset:{ad & 0xffff}", ("wf", n))
    def wfrag(i, nn):
        e = seq[i][1]
        if e < 8: return ar(192 + 8*e + 4*nn, 4)
        if direct: return ar(8*(e - 8) + 4*nn, 4)
        if e >= 24: return vr(D_WV + 8*(e - 24) + 4*nn, 4)
        return vr(D_WF + 4*(slot_of[(i, nn)] % NWF), 4)
    mains = []; fixed = {}
    NT = P.dn_tail
    assert NT <= 4
    order = [(i, nn) for i in range(56 - NT) for nn in range(2)] + [(i, nn) for nn in range(2) for i in range(56 - NT, 56)]
    for pos, (i, nn) in enumerate(order):
        g, e = seq[i]
        if True:
            acc = D_ACC + 32 * g + 16 * nn
            mains.append(lambda i=i, nn=nn, acc=acc, e=e: k.e(f"{MF32} {vr(acc,16)}, {wfrag(i,nn)}, {vr(D_BF+4*(i%NB),4)}, {'0' if e == 0 else vr(acc,16)}"))
            gp = len(mains) - 1; fl_ = fixed.setdefault(gp, [])
            nx = order[pos + 1] if pos + 1 < len(order) else None
            vmn = [("b", nx[0])] if (nx and nx[1] == 0) else None
            lgn = [("wf", slot_of[nx])] if nx in slot_of else None
            if nx == (24, 0) and not direct: vmn = vmn + ["dnv"]
            if direct and nx and nx[0] in range(8, 28) and nx[1] == 0: vmn = vmn + [("dnr", nx[0])]
            fl_.append((0, lambda vmn=vmn, lgn=lgn: k.wait(vm=vmn, lg=lgn)))
            ah = (i + 2, nn)
            if ah in slot_of: fl_.append((1, lambda n=slot_of[ah]: wread(n)))
    nxt = NB; pend = 0
    for i in range(len(seq)):
        fl_ = fixed[2*i + 1]
        if i == P.dn_late: fl_.append((2, lambda: (k.poll_check(D_PA, "ph2", 2), k.stamp("dn late"), k.mark("late"))))
        n = 0
        while nxt < len(seq) and nxt <= i + NB and n < 2 and (nxt < 16 or i >= P.dn_late):
            fl_.append((1, lambda j=nxt: bload(j))); nxt += 1; n += 1
        if i == P.dn_pollstep and not P.hpre: fl_.append((1, lambda: k.poll_issue(D_PA, "ph2")))
        if nxt == len(seq) and not pend: pend = 2*i + 2
    if not final: fixed[22].append((5, lambda: k.codepf(192)))
    fixed[20].append((1, lambda: k.e("s_barrier")))
    for mm in range(2):
        fixed[40 + 4*mm].append((2, lambda mm=mm: (k.e(f"s_add_u32 s32, s55, {BX2() + mm*32768}"),
                                                   k.vm(f"buffer_load_dwordx4 {vr(RES+4*mm,4)}, v{RX(final)}, {XS()}, s32 offen sc1", "res"))))
    fw = Flex(); fs = Flex()
    for q, f in enumerate(red_writes(k, D_ACC, 0, 0, 1)): fw.add(f, 1, 58 + 2*q)
    fw.add(lambda: (k.wait(lg=[("rw", 0)]), k.e("s_barrier")), 2, 76)
    for f in red_reads(k, 0, T, 0): fw.add(f, 2)
    fw.add(lambda: k.wait(vm=["res"]))
    red_finish(k, fw, 0, groups[0], T, BX2(), BS2(), final, False)
    if not final:
        fw.add(lambda: k.vm(f"buffer_store_dwordx4 {vr(RES+4,4)}, v{RX(final)}, {SRD_WS}, s72 offen sc1", "hxs"))
        fw.add(lambda: k.vm(f"buffer_store_dword v{T+32}, v{R_ST}, {SRD_WS}, s73 offen sc1", "hxs"))
        fw.skip(P.dn_flag_delay); fw.add(lambda: (k.wait(vm=[("xst", 0)]), k.flag(1)), 3)
        if P.x2_touch == "dn":
            fixed[P.dn_x2].append((5, lambda: k.touch(226, "p", [f"s_add_u32 s32, s55, {BX2()}"])))
            fixed[P.dn_x2 + 1].append((4, lambda: k.touch(227, "s", [f"s_add_u32 s32, s56, {BS2()}"])))
            fs.add(lambda: k.wait(vm=["touch"]), 1, P.dn_x2 + 2)
        for q, c in enumerate(P.t1_dn): fixed[P.dn_touch + 2*q].append((5, touch_next(k, 28)["oxs".index(c)]))
        fs.dep("late")
        for f in a11_bases(k) + a1_setup(k, 1): fs.add(f)
        fs.add(lambda: (k.poll_addr(A_PX, 32), k.e(f"s_lshl_b32 s32, s{sB}, 7", f"s_add_u32 s{sPO}, s32, {fl(0, FL_X2)}")), 4)
    wtail = red_writes(k, D_ACC + 32, 1, 2*16384, 1)
    if NT:
        for q in range(min(4, NT)): fixed[min(111, 112 - NT + 1 + q)].append((4, wtail.pop(0)))
    k.wait(vm=["dna", ("b", 0)])
    k.stamp("dn first")
    if k.stamping:
        fixed[55].append((0, lambda: k.stamp("dn p1")))
        for g in range(7, 111, 8): fixed[g].append((0, lambda g=g: k.stamp(f"find {g}")))
    run_gaps(k, mains, fixed, [early, fw, fs], 6)
    print("dn left:", len(k.bg), len(fw), len(fs), "last h load at gap", pend)
    k.stamp("dn gemm")
    assert not fs.items
    ws = wtail
    if not final and P.dn_fin_first != 2: ws.insert(len(ws) - 4, lambda: k.poll_issue(A_PX, "px0"))
    if not final and P.dn_fin_first == 2: ws.append(lambda: k.poll_issue(A_PX, "px0"))
    merge(k, fw, ws)
    k.wait(lg=[("rw", 1)]); k.e("s_barrier")
    k.stamp("dn red")
    for f in red_reads(k, 1, T, 2*16384): f()
    def nxt():
        k.poll_check(A_PX, "px0", 1)
        k.wait(vm=["hxs"]); k.flag(1, 91, "sc1")
        a11_early(k)
    if not final:
        k.bg_held = True
        if not P.dn_fin_first: nxt()
    f1 = Flex(); red_finish(k, f1, 1, groups[1], T, BX2(), BS2(), final, True)
    if not final and P.dn_fin_first == 2:
        ex = [lambda: k.poll_check(A_PX, "px0", 1)] + a11_early(k, True) + [lambda: (k.wait(vm=["hxs"]), k.flag(1, 91, "sc1"))]
        merge(k, f1, ex, P.dn_mfirst)
    else: drain([f1], k)
    if not final and P.dn_fin_first == 1: nxt()
    k.stamp("dn end")
P.dn_mfirst = 8; P.dn_pollstep = 0; P.dn_fin_first = 2; P.dn_tail = 0; P.dn_touch = 88; P.dn_flag_delay = 4; P.dn_pre = 6; P.dn_late = 9; P.dn_fgap = 6
P.dn_wow = 6; P.per_dn = {"s4": 110, "s2": 130}; P.per_dn0 = {"s4": 60, "s2": 60}

DOC = """
One persistent launch, 256 workgroups x 4 waves (one workgroup per CU, 512 registers per wave). Generated by gen/fused.py.
16 clusters of 16 workgroups own 128 tokens each; per layer: [LN + QKV + dilated attention] -> [out-proj + residual] -> [LN + gate/up + SwiGLU] -> [down + residual].
 - LayerNorm is applied as rstd * (x.W - mean * colsum(W)) in fp32; row statistics travel with the activations.
 - w_gate/w_up/w_down/wo are re-tiled once into MFMA fragment order in d_ws; W_qkv fragments stay in AGPRs for both layers.
 - attention runs on MFMA straight from the accumulators (true row max, exp2, normalisation by the summed weights).
 - hand-offs between workgroups: data, s_waitcnt, then a flag word; flags are zeroed by this launch and trusted only after a whole-grid
   rendezvous keyed by a launch tag published in d_debug. A cluster found on one die uses plain stores, any other placement writes through.
 - every spin has a bounded budget.
"""
def build(stamps=False, only=None):
    k = F(); k.stamping = stamps; k.only = only; k.st = P.dst; k.rt = P.rt
    name = NAME + "_kernel"
    k.e(".p2align 8", f".globl {name}", f".type {name},@function"); k.label(name)
    if stamps: k.e("s_memrealtime s[92:93]", "s_memtime s[94:95]")
    k.e("s_cmp_ge_u32 s2, 256", "s_cbranch_scc1 L_end")
    k.e("s_load_dwordx16 s[64:79], s[0:1], 0", "s_load_dwordx4 s[80:83], s[0:1], 64", "s_memrealtime s[96:97]")
    k.e("s_getpc_b64 s[100:101]")
    k.e("L_pc: ;np")
    k.e("v_and_b32 v1, 63, v0", "v_lshrrev_b32 v2, 6, v0", "s_lshr_b32 s33, s2, 3", "s_mul_i32 s32, s33, 43", "s_lshr_b32 s32, s32, 8",
        "s_mul_i32 s32, s32, 6", "s_sub_u32 s32, s33, s32", "s_lshl_b32 s32, s32, 13", "v_lshl_add_u32 v3, v2, 11, s32", "v_lshl_add_u32 v3, v1, 7, v3",
        "v_min_u32 v3, L_end-L_pc, v3", f"v_readfirstlane_b32 s{sW}, v2", "v_mov_b32 v5, s101", "v_add_co_u32 v4, vcc, s100, v3", "v_addc_co_u32 v5, vcc, 0, v5, vcc")
    if P.code0:
        k.e("s_mov_b64 exec, 0xffff")
        k.vm("global_load_dword v175, v[4:5], off", "code")
        k.e("s_mov_b64 exec, -1")
        if P.code1:
            k.e("v_lshlrev_b32 v3, 11, v2", "v_lshl_add_u32 v3, v1, 7, v3", "v_mov_b32 v5, s101", "v_add_co_u32 v4, vcc, s100, v3", "v_addc_co_u32 v5, vcc, 0, v5, vcc",
                "s_mov_b64 exec, 0xffff")
            k.vm("global_load_dword v174, v[4:5], off", "code")
            k.e("s_mov_b64 exec, -1")
    k.e("s_and_b32 s32, s2, 7", f"s_and_b32 s{sM}, s33, 15", "s_lshr_b32 s33, s33, 4", "s_lshl_b32 s32, s32, 1", f"s_add_u32 s{sC}, s32, s33")
    k.e(f"s_lshr_b32 s33, s{sM}, 3", f"s_lshl_b32 s{sB}, s{sC}, 1", f"s_add_u32 s{sB}, s{sB}, s33", f"s_and_b32 s{sCS}, s{sM}, 7")
    k.e("v_lshlrev_b32 v2, 4, v1")
    a10_lanes(k)
    k.e("s_waitcnt lgkmcnt(0)")
    srd(k, 12, 64, 2048 * 1024); srd(k, 16, 66, 512 * 3072)
    k.e(f"s_or_b32 s{sTAG}, s96, 1")
    if stamps:
        k.stamps += ["rt0", "start"]; k.e("v_writelane_b32 v0, s92, 0", f"v_writelane_b32 v0, s{92 if P.rt else 94}, 1")
    k.stamp("s kernarg")
    if P.pk_first == 1: pack_issue(k)
    k.stamp("s pkissue")
    run(a10_x(k, 0) + a10_w(k, 0))
    if P.pk_first == 0: pack_issue(k)
    srd(k, 28, 80, 256)
    k.e("v_cmp_eq_u32 vcc, 0, v1", f"v_mov_b32 v{vFA}, {OOB:#x}", f"s_or_b32 s32, s2, s{sW}", f"v_cndmask_b32_e64 v{vFA}, v{vFA}, 0, vcc",
        "s_cmp_eq_u32 s32, 0", f"s_cselect_b32 s32, 0, {OOB>>1:#x}", f"v_mov_b32 v170, s{sTAG}")
    k.vm(f"buffer_store_dword v170, v{vFA}, {SRD_DBG}, s32 offen sc1", "tagst")
    srd(k, 8, 82, WS_SIZE); srd(k, 20, 78, 2048 * 1024)
    for f in a1_setup(k, 0): f()
    o_bases(k, 0)
    a10_lanes2(k)
    k.e(f"v_mov_b32 v60, {OOB:#x}", "v_cmp_gt_u32 vcc, 8, v1", "v_mov_b32 v176, 0", "v_mov_b32 v177, 0", "v_mov_b32 v178, 0", "v_mov_b32 v179, 0",
        f"v_cndmask_b32 v173, v60, v{vL16}, vcc", "v_cmp_gt_u32 vcc, 16, v1", "s_nop 0",
        f"s_lshl_b32 s32, s{sC}, 4", f"v_cndmask_b32 v172, v60, v{vL16}, vcc")
    k.e(f"s_add_u32 s32, s32, s{sM}", "s_lshl_b32 s32, s32, 4",
        f"s_cmp_eq_u32 s{sW}, 0", f"s_cselect_b32 s32, s32, {OOB>>1:#x}", f"v_add_u32 v171, s32, v{vFA}", f"s_mov_b32 s{sBUD}, 400000")
    red_bases(k)
    k.e(f"s_lshl_b32 s{sGL}, s{sW}, 12", f"s_mul_i32 s{sGS}, s{sM}, {PGU_SLICE}", f"s_add_u32 s{sGS}, s{sGS}, s{sGL}", f"s_add_u32 s{sGS}, s{sGS}, {WS_PGU}")
    k.e(f"s_mul_i32 s32, s{sCS}, {224*KB}", f"s_mul_i32 s33, s{sW}, {56*KB}", "s_add_u32 s32, s32, s33", f"s_add_u32 s{sDS}, s32, {WS_PDN}")
    k.e(f"s_lshl_b32 s32, s{sCS}, 16", f"s_add_u32 s32, s32, s{sGL}", f"s_add_u32 s88, s32, {WS_PWO}")
    wo_bases(k)
    k.stamp("s setup")
    run(a10_w(k, 1))
    if P.pk_first == 2: pack_issue(k)
    k.e(f"s_getreg_b32 s{sXCC}, hwreg(HW_REG_XCC_ID, 0, 4)", f"s_mov_b32 s75, {WS_ARR}", f"s_lshl_b32 s77, s{sC}, 8", "s_add_u32 s77, s77, s75")
    if P.k_touch == -1:
        k.touch(157, "p", ["s_mov_b32 s32, s53"], False); k.touch(158, "q", [f"s_add_u32 s32, s64, {BX2()}"], False)
    k.stamp("s w01")
    def mid2():
        if P.k_first > 3: run(a10_w(k, 3))
        k.e("s_lshl_b32 s32, s2, 7")
        k.vm(f"buffer_store_dwordx4 v[176:179], v173, {SRD_WS}, s32 offen sc1", "zero")
        k.e("s_lshl_b32 s32, s2, 8", f"s_add_u32 s32, s32, {WS_HXF}")
        k.vm(f"buffer_store_dwordx4 v[176:179], v172, {SRD_WS}, s32 offen sc1", "zero")
    if P.k_pack is None: pack_process(k, lambda: run(a10_x(k, 1) + a10_w(k, 2)), mid2)
    else: run(a10_x(k, 1) + a10_w(k, 2)); mid2()
    k.vm(f"buffer_load_dword v170, v{vFA}, {SRD_DBG}, 0 offen sc1", "tag")
    k.stamp("s pkdone")
    a10_loop(k, P.k_first)
    a10_tail(k)
    wo(k, 0); gu(k, 0); dn(k, 0)
    if not P.half:
        k.marks = {m: g for m, g in k.marks.items() if False}
        k.seen = {t for t in k.seen if t in k.vmq or t in k.lgq or t in ("dna", "st0", ("x", 2), ("x", 3))}
        k.layer = 1
        a11_main(k)
        wo(k, 1)
        k.marks = {m: g for m, g in k.marks.items() if m in ("wobar", "gemm_done") or m[0] == "bar"}
        gu(k, 1); dn(k, 1)
    if P.verbose: print([(t, tag, f) for t, tag, f in k.bg_log if f])
    if stamps:
        k.e("s_waitcnt vmcnt(0)"); k.stamp("drained"); k.stamp("rt1", True)
        k.e("s_lshl_b32 s32, s2, 10", "s_lshl_b32 s33, s3, 8", "s_add_u32 s32, s32, s33",
            f"s_add_u32 s32, s32, {WS_STAMP}", "v_lshlrev_b32 v8, 2, v1", f"buffer_store_dword v0, v8, {SRD_WS}, s32 offen")
        if P.echo:
            a, b = P.echo
            n = len(k.stamps)
            k.e(f"v_readlane_b32 s32, v0, {a}", f"v_readlane_b32 s33, v0, {b if b >= 0 else n + b}", f"v_readlane_b32 s34, v0, {n-1}", "s_nop 3",
                "s_sub_u32 s33, s33, s32", "s_min_u32 s33, s33, 20000")
            k.label("L_echo")
            k.e("s_memrealtime s[36:37]", "s_waitcnt lgkmcnt(0)", "s_sub_u32 s36, s36, s34", "s_cmp_lt_u32 s36, s33", "s_cbranch_scc1 L_echo")
        if P.dbg:
            n = len(k.stamps)
            k.e("v_readlane_b32 s32, v0, 0", f"v_readlane_b32 s33, v0, {n-1}", "s_not_b32 s34, s32", "v_mov_b32 v4, s33", "v_mov_b32 v5, s34")
            k.e(f"buffer_atomic_umax v4, v{vFA}, {SRD_DBG}, 0 offen offset:4", f"buffer_atomic_umax v5, v{vFA}, {SRD_DBG}, 0 offen offset:8")
            k.e(f"s_cmp_eq_u32 s2, {P.dbg - 1}", f"s_cselect_b32 s35, 0, {OOB>>1:#x}", f"s_cmp_eq_u32 s{sW}, 0", f"s_cselect_b32 s35, s35, {OOB>>1:#x}")
            for i, wd in zip(range(2, n - 1), (3, 5, 6, 7, 9, 10, 11, 13, 14, 15)):
                k.e(f"v_readlane_b32 s33, v0, {i}", "s_sub_u32 s33, s33, s32", "v_mov_b32 v4, s33", f"buffer_store_dword v4, v{vFA}, {SRD_DBG}, s35 offen offset:{4*wd}")
    k.e("s_endpgm")
    k.flush_spins()
    k.label("L_end"); k.e("s_endpgm")
    src = open("cdna_kernels/%s.s.ref" % NAME).read().splitlines()
    out = [l for l in src if l.startswith(";") and "@launch" not in l]
    out.append(f"; @launch grid=(256,1,1) block=(256,1,1) lds={LDS_TOTAL}")
    out += ['.amdgcn_target "amdgcn-amd-amdhsa--gfx950"', ".text"]
    out += ["; " + l for l in DOC.strip().split("\n")]
    s = "\n".join(out) + "\n" + k.text(verbose=True) + '.section .rodata,"a"\n.p2align 6\n' + kd(name)
    from verify import verify
    assert not verify(s), "a register is used while a load into it is in flight"
    if P.align:
        from align import align
        s = align(s)
    return s, k.stamps
P.x_nobar = 0; P.x_noepi = 0; P.rt = 1; P.dbg = 0; P.h_touch0 = ''; P.outm = ('', ''); P.x1_clean = None; P.h1_plain = 0; P.tags = 0; P.echo = None; P.wo_setup_first = 2; P.gu_pa_late = 0; P.gu_bar_first = 0; P.flagbr = 0; P.rot = 0; P.pk_mod = 'nt'; P.x_mod = ''; P.w_mod = ''; P.t_mod = ''; P.pk_first = 1; P.dn1_agpr = 1; P.poll2 = 2; P.wt = (); P.inplace = 1; P.x_out = 0; P.o0_in_h = 0; P.code1 = 0; P.pk_xor = 0; P.half = 0; P.tlb = 1; P.code0 = 1; P.verbose = 0; P.align = 1; P.gu_cap = 5; P.gu_nw = 5; P.k_touch = 15; P.k_gb = 13; P.k_chk = 16

if __name__ == "__main__":
    path = sys.argv[1] if len(sys.argv) > 1 else "cdna_kernels/%s.s" % NAME
    opts = sys.argv[2:]
    only = None
    for o in opts:
        if o.startswith("only="): only = [x for x in o[5:].split(",") if x]
        if o.startswith("P."):
            n, v = o[2:].split("="); setattr(P, n, eval(v))
    s, st = build(stamps="st" in opts, only=only)
    open(path, "w").write(s)
    if "st" in opts: json.dump([st], open(path + ".json", "w"))
```

```python
import sys, json
from common import *

MF16 = "v_mfma_f32_16x16x32_bf16"
MF16S = "v_mfma_f32_16x16x16_bf16"
MF32 = "v_mfma_f32_32x32x16_bf16"
vL16, vFV, vFA, vP = 2, 8, 9, 10
CSV, CSQ, CSK, RES = 11, 12, 16, 20
OOB = 0x80000000
FL_O, FL_X1, FL_H, FL_X2 = 0, 4096, 8192, 12288
FL_HX = 16384 + 12288
def fl(layer, off): return WS_FLAGS + 16384 * layer + off
sROT, sBUD, sGL, sGS, sDS = 84, 98, 60, 61, 85
sT0, sT1, sPO, sFO = 32, 33, 86, 87
sML, sMS = 68, 69
WS_HXF = WS_O0 - 0x10000 if False else WS_END
WS_ARR = WS_HXF + 0x10000
sTAG, sXCC = 91, 76
WS_STAMP = 0x2000000
L_SA0, L_SA1, L_XH0, L_CS = 80896, 97280, 81920, 79872
def e_of(kk):
    p, tl = divmod(kk, 7)
    return 4 * p + tl if tl < 4 else 16 + 3 * p + (tl - 4)
KK_OF = {e_of(kk): kk for kk in range(28)}

class P:
    a1_bg_start, a1_bg_step = 30, 6
    gu_lead = 9
    gu_bg_start, gu_bg_step = 50, 2.6
    dn_lead = 12
    bgm = ""
    sleep = 0
    drop = ()
    codepf = 0
    ld = "sc1"
    dst = "sc1"
    safe = False
    plain = True
    notouch = ()

BO, BX1, BS1, BH = [WS_O[0]] * 2, [WS_X[0]] * 2, [WS_ST[0]] * 2, [WS_H[0]] * 2
def BX2(): return 0 if P.x_out else (WS_X[0] if P.inplace else WS_X[1])
def XS(): return SRD_OUT if P.x_out else SRD_WS
def LSH(): return 10 if P.x_out else 7
def CSH(): return 7 if P.x_out else 10
def BS2(): return WS_ST[0] if P.inplace else WS_ST[1]
def o_block(d, layer):
    if (layer or P.o0_in_h) and P.inplace: return [f"s_mul_i32 {d}, s{sB}, {224*KB}", f"s_add_u32 {d}, {d}, {BH[0]}"]
    return [f"s_lshl_b32 {d}, s{sB}, 16", f"s_add_u32 {d}, {d}, {BO[layer]}"]
def o_line(layer):
    return [f"s_lshl_b32 s32, s{sB}, 16", f"s_lshl_b32 s33, s{sCS}, 2", f"s_add_u32 s33, s33, s{sW}", "s_lshl_b32 s33, s33, 10",
            "s_add_u32 s32, s32, s33", f"s_add_u32 s32, s32, {BO[layer]}"]
def touch_next(k, t):
    return [lambda: k.touch(t, "p", o_line(1)), lambda: k.touch(t + 1, "q", [f"s_add_u32 s32, s64, {BX2()}"]),
            lambda: k.touch(t + 2, "t", [f"s_add_u32 s32, s65, {BS1[1]}"])]
def gu_tile(d):
    return [f"s_lshl_b32 {d}, s{sC}, 1", f"s_and_b32 s33, s{sW}, 1", f"s_add_u32 {d}, {d}, s33", f"s_lshl_b32 {d}, {d}, 1", f"s_lshr_b32 s33, s{sW}, 1", f"s_add_u32 {d}, {d}, s33"]
def h_base(d, layer):
    return gu_tile(d) + [f"s_mul_i32 {d}, {d}, 112", f"s_mul_i32 s33, s{sM}, 7",
            f"s_add_u32 {d}, {d}, s33", f"s_lshl_b32 {d}, {d}, 10", f"s_add_u32 {d}, {d}, {BH[layer]}"]

class F(K):
    def __init__(self):
        super().__init__(); self.spins = []; self.nspin = 0; self.st = ""; self.npf = 0; self.layer = 0
    def poll_issue(self, va, tag): self.vm(f"buffer_load_dword v{vP}, v{va}, {SRD_WS}, s{sPO} offen sc1", tag)
    def poll_addr(self, va, nl, sh=2):
        self.e(f"v_cmp_gt_u32 vcc, {nl}, v1", f"v_lshlrev_b32 v{va}, {sh}, v1", f"v_mov_b32 v{vP}, {OOB:#x}", f"v_cndmask_b32 v{va}, v{vP}, v{va}, vcc")
        self.nl = nl
    def poll_check(self, va, tag, thr):
        n = self.nspin; self.nspin += 1
        self.stamp(f"poll<{tag}")
        self.wait(vm=[tag])
        self.stamp(f"poll={tag}")
        msk = f"s_and_b32 s99, vcc_lo, {(1 << self.nl) - 1:#x}"
        self.e(f"v_cmp_gt_u32 vcc, {thr}, v{vP}", msk, f"s_cbranch_scc1 L_spin{n} ;np", f"L_back{n}: ;np")
        self.stamp(f"poll>{tag}")
        self.spins += [f"L_spin{n}:", f"s_sub_u32 s{sBUD}, s{sBUD}, 1", f"s_cbranch_scc1 L_give{n}"] + ([f"s_sleep {P.sleep}"] if P.sleep else []) + [
                       f"buffer_load_dword v{vP}, v{va}, {SRD_WS}, s{sPO} offen sc1", "s_waitcnt vmcnt(0)",
                       f"v_cmp_gt_u32 vcc, {thr}, v{vP}", msk, f"s_cbranch_scc1 L_spin{n}", f"s_branch L_back{n}",
                       f"L_give{n}:", f"s_mov_b32 s{sBUD}, 0", f"s_branch L_back{n}"]
    def poll_wait(self, va, tag, thr, alt):
        if not P.poll2:
            self.poll_check(va, tag, thr); return
        n = self.nspin; self.nspin += 1
        ld = lambda r: f"buffer_load_dword v{r}, v{va}, {SRD_WS}, s{sPO} offen sc1"
        tst = lambda r: [f"v_cmp_gt_u32 vcc, {thr}, v{r}", f"s_and_b32 s99, vcc_lo, {(1 << self.nl) - 1:#x}"]
        self.e(f"s_sleep {P.poll2}")
        self.vm(ld(alt), "polljunk")
        self.wait(vm=[tag])
        self.e(*tst(vP)); self.e(f"s_cbranch_scc1 L_spin{n} ;np", f"L_back{n}: ;np")
        self.spins += [f"L_spin{n}:", f"s_sub_u32 s{sBUD}, s{sBUD}, 1", f"s_cbranch_scc1 L_give{n}",
                       ld(vP), "s_waitcnt vmcnt(1)"] + tst(alt) + [f"s_cbranch_scc0 L_back{n}", ld(alt), "s_waitcnt vmcnt(1)"] + tst(vP) + \
                      [f"s_cbranch_scc1 L_spin{n}", f"s_branch L_back{n}", f"L_give{n}:", f"s_mov_b32 s{sBUD}, 0", f"s_branch L_back{n}"]
    def flag(self, val, soff=sFO, st=None):
        self.e(f"v_mov_b32 v{vFV}, {val}")
        if st is not None:
            self.vm(f"buffer_store_dword v{vFV}, v{vFA}, {SRD_WS}, s{soff} offen {st}", "flag"); return
        if P.flagbr:
            self.dstore(f"buffer_store_dword v{vFV}, v{vFA}, {SRD_WS}, s{soff} offen", "flag", True); return
        self.e(f"s_or_b32 s99, s{soff}, s{sML}")
        self.vm(f"buffer_store_dword v{vFV}, v{vFA}, {SRD_WS}, s99 offen", "flag")
        self.e(f"s_or_b32 s99, s{soff}, s{sMS}")
        self.vm(f"buffer_store_dword v{vFV}, v{vFA}, {SRD_WS}, s99 offen sc1", "flag")
    def dstore(self, text, tag, always=False):
        kind = tag[0] if isinstance(tag, tuple) else tag
        if (not P.plain or (self.layer, kind, isinstance(tag, tuple)) in P.wt) and not always:
            self.vm(text + " sc1", tag); return
        n = self.nspin; self.nspin += 1
        self.e(f"s_cmp_lg_u32 s{sML}, 0", f"s_cbranch_scc1 L_alt{n} ;np")
        self.vm(text, tag)
        self.e(f"L_back{n}: ;np")
        self.spins += [f"L_alt{n}:", "s_nop 4", text + " sc1", f"s_branch L_back{n}"]
    def valid(self, test, reload):
        n = self.nspin; self.nspin += 1
        self.e(*test); self.e(f"s_cbranch_vccnz L_rl{n} ;np", f"L_back{n}: ;np")
        self.spins += [f"L_rl{n}:", f"s_sub_u32 s{sBUD}, s{sBUD}, 1", f"s_cbranch_scc1 L_give{n}"] + reload + ["s_waitcnt vmcnt(0)"] + test + \
                      [f"s_cbranch_vccnz L_rl{n}", f"s_branch L_back{n}", f"L_give{n}:", f"s_mov_b32 s{sBUD}, 0", f"s_branch L_back{n}"]
    def touch(self, tmp, kind, base_expr, masked=True):
        if not P.plain or kind in P.notouch: return
        nl = {"p": 16, "q": 16, "s": 2, "t": 2, "h": 56}[kind]
        self.e(f"v_cmp_gt_u32 vcc, {nl}, v1")
        if kind in "pq": self.e(f"v_lshrrev_b32 v{tmp}, 3, v1", f"v_lshlrev_b32 v{tmp}, {15 if kind == 'p' else 13}, v{tmp}", f"v_and_b32 v{vFV}, 7, v1", f"v_lshl_add_u32 v{tmp}, v{vFV}, {LSH() if kind == 'q' else 7}, v{tmp}")
        else: self.e(f"v_lshlrev_b32 v{tmp}, {11 if kind == 's' else 7}, v1")
        self.e(f"v_mov_b32 v{vFV}, {OOB:#x}", *base_expr)
        self.e(f"v_cndmask_b32 v{tmp}, v{vFV}, v{tmp}, vcc")
        if masked: self.e(f"s_or_b32 s32, s32, s{sML}")
        self.vm(f"buffer_load_dword v{tmp}, v{tmp}, {XS() if kind == 'q' else SRD_WS}, s32 offen {P.t_mod}", "touch")
    def vm(self, text, tag=None):
        kind = tag[0] if isinstance(tag, tuple) else tag
        if kind in P.drop:
            self.seen.add(tag); return
        super().vm(text, tag)
    def codepf(self, t):
        if not P.codepf: return
        n = self.npf; self.npf += 1
        self.e(f"L_pf{n}: ;np", f"s_lshl_b32 s32, s{sW}, 12", f"s_add_u32 s32, s32, L_pf{n}-L_pc", f"v_lshl_add_u32 v{t+2}, v1, 7, s32", f"v_min_u32 v{t+2}, L_end-L_pc, v{t+2}",
               f"v_mov_b32 v{t+1}, s101", f"v_add_co_u32 v{t}, vcc, s100, v{t+2}", f"v_addc_co_u32 v{t+1}, vcc, 0, v{t+1}, vcc", "s_mov_b32 exec_hi, 0")
        self.vm(f"global_load_dword v{t+2}, v[{t}:{t+1}], off", "code")
        self.e("s_mov_b64 exec, -1")
    def stamp(self, name, real=False):
        if P.jitter and not name.startswith("s ") and not name.startswith("fin"):
            n = self.nspin; self.nspin += 1
            self.e("s_mul_i32 s101, s101, 1103515245", f"s_add_u32 s101, s101, {12345 + n}", "s_lshr_b32 s100, s101, 20", f"s_and_b32 s100, s100, {P.jitter}",
                   "s_lshr_b32 s99, s101, 28", "s_cmp_lt_u32 s99, 5", f"s_cbranch_scc0 L_j{n}e ;np", f"L_j{n}: ;np", "s_sleep 3", "s_sub_u32 s100, s100, 1",
                   f"s_cbranch_scc0 L_j{n} ;np", f"L_j{n}e: ;np")
        super().stamp(name, real)
    def flush_spins(self):
        for l in self.spins: self.e(l)
        self.spins = []

def batch(k, i):
    src = f"s_add_u32 s62, s{sGS}, {i*16384}" if i < 15 else f"s_add_u32 s62, s{sDS}, {(16 + 4*(i-15))*1024}"
    def f(q):
        k.set_m0(f"s_add_u32 m0, s{sGL}, {(i % 10)*16384}")
        if i != 14: k.set_s(src)
        elif k.last.get(62) != f"s_cselect_b32 s62, {OOB>>1:#x}, s62":
            k.e(src, f"s_cmp_ge_u32 s{sW}, 2", f"s_cselect_b32 s62, {OOB>>1:#x}, s62")
        k.vm(f"buffer_load_dwordx4 v{vL16}, {SRD_WS}, s62 offen offset:{q*1024} {P.bgm} lds", ("gw", i))
    return [lambda q=q: f(q) for q in range(4)]

def bg_batches(k, bs, period, dep=lambda b: None):
    for b in bs:
        for f in batch(k, b): k.bg_add(f, period, ("gw", b), dep(b))
def bg_list(k, fns, period, tag, dep=None):
    for f in fns: k.bg_add(f, period, tag, dep)

def regloads(k, base_sgpr, off, dst, n, tag, tmp=63, tagf=None):
    fns = []
    for j in range(n):
        def f(j=j):
            k.set_s(f"s_add_u32 s{tmp}, s{base_sgpr}, {off + (j & ~3)*1024}")
            k.vm(f"buffer_load_dwordx4 {dst(j)}, v{vL16}, {SRD_WS}, s{tmp} offen offset:{(j%4)*1024} {P.bgm}", tagf(j) if tagf else tag)
        fns.append(f)
    return fns
def wow(k):
    def f(i, q):
        k.set_m0(f"s_add_u32 m0, s{sGL}, {(6 + i)*16384}"); k.set_s(f"s_add_u32 s63, s88, {i*16384}")
        k.vm(f"buffer_load_dwordx4 v{vL16}, {SRD_WS}, s63 offen offset:{q*1024} lds", "wow")
    return [lambda i=i, q=q: f(i, q) for i in range(4) for q in range(4)]

def pack_issue(k):
    k.e(f"s_xor_b32 s99, s2, {P.pk_xor}")
    for r in (68, 69, 72, 73, 74, 75, 76, 77): assert k.writer[r].startswith("s_load"), f"kernel argument s{r} overwritten"
    k.e("v_lshrrev_b32 v44, 3, v1", "v_and_b32 v43, 7, v1", "v_and_b32 v45, 2, v44", "v_lshlrev_b32 v45, 1, v45",
        "v_xor_b32 v43, v43, v45", "v_lshlrev_b32 v43, 4, v43", f"s_add_u32 s34, s49, {L_X + 4096}")
    k.e("s_cmp_ge_u32 s99, 112", "s_cbranch_scc1 L_pki_small")
    k.e("s_and_b32 s35, s99, 1", "s_bfe_u32 s36, s99, 0x10001", "s_lshr_b32 s37, s99, 2")
    k.e("s_cmp_eq_u32 s35, 0", "s_cselect_b32 s24, s72, s74", "s_cselect_b32 s25, s73, s75",
        f"s_mov_b32 s26, {512*3584:#x}", "s_mov_b32 s27, 0x20000")
    k.e("v_mul_u32_u24 v46, 3584, v44", "v_add_u32 v46, v46, v43")
    k.e("s_lshl_b32 s38, s36, 2", f"s_add_u32 s38, s38, s{sW}", f"s_mul_i32 s38, s38, {64*3584}",
        "s_lshl_b32 s39, s37, 7", "s_add_u32 s38, s38, s39")
    for i in range(8):
        k.e(f"s_add_u32 m0, s34, {(i>>2)*8192 + (i&3)*1024}", f"s_add_u32 s39, s38, {i*8*3584}", f"buffer_load_dwordx4 v46, {SRD_PK}, s39 offen {P.pk_mod} lds")
    k.e("s_branch L_pki_done")
    k.label("L_pki_small")
    k.e("s_sub_u32 s35, s99, 112", "s_lshl_b32 s35, s35, 3", f"s_lshl_b32 s36, s{sW}, 1", "s_add_u32 s35, s35, s36")
    k.e("s_cmp_lt_u32 s35, 896", "s_cselect_b32 s24, s76, s68", "s_cselect_b32 s25, s77, s69", f"s_mov_b32 s26, {512*1024:#x}",
        f"s_cselect_b32 s26, {1792*1024:#x}, s26", "s_mov_b32 s27, 0x20000", "s_cselect_b32 s37, 1, 0",
        "s_movk_i32 s38, 896", "s_cselect_b32 s38, 0, s38")
    k.e("s_cselect_b32 s39, 0, 1", "s_cselect_b32 s70, 14, 15", "s_movk_i32 s71, 0x4000", "s_cselect_b32 s71, 0x80, s71")
    k.e("s_sub_u32 s35, s35, s38", "s_lshr_b32 s35, s35, s39", "s_and_b32 s36, s35, 7", "s_lshr_b32 s35, s35, 3")
    k.e("v_lshl_add_u32 v46, v44, 10, v43", "s_lshl_b32 s38, s35, s70", "s_lshl_b32 s39, s36, 7", "s_add_u32 s38, s38, s39")
    for i in range(2):
        for h in range(2):
            k.e(f"s_add_u32 m0, s34, {(2*i+h)*1024}", f"s_add_u32 s39, s38, {h*8192}", f"buffer_load_dwordx4 v46, {SRD_PK}, s39 offen {P.pk_mod} lds")
        if i == 0: k.e("s_add_u32 s38, s38, s71")
    k.label("L_pki_done")
    k.vmq.append("pk"); k.seen.add("pk")

PQ = [76, 80, 84, 88, 92, 96, 36, 40]
def pack_process(k, mid1, mid2):
    k.e("v_bfe_u32 v46, v1, 2, 2", "v_and_b32 v47, 3, v1", "v_bfe_u32 v48, v1, 4, 1", "v_lshrrev_b32 v49, 5, v1")
    k.e("v_and_b32 v50, 2, v46", "v_add_u32 v50, v50, v48", "v_lshlrev_b32 v50, 5, v50",
        "v_lshl_add_u32 v50, v46, 7, v50", "v_lshl_add_u32 v50, v47, 3, v50", "v_add_u32 v50, s34, v50")
    k.e("s_cmp_ge_u32 s99, 112", "s_cbranch_scc1 L_pk_small")
    q0 = list(k.vmq)
    k.e("v_lshl_add_u32 v56, v49, 10, v50", "v_xor_b32 v57, 64, v56")
    k.e("s_lshl_b32 s39, s37, 2", "v_add_u32 v58, s39, v48")
    k.e("s_lshl_b32 s70, s36, 2", f"s_add_u32 s70, s70, s{sW}", "s_lshl_b32 s70, s70, 2")
    k.e("v_and_b32 v66, 15, v1", "s_lshl_b32 s71, s35, 8", "v_lshl_add_u32 v66, v66, 4, s71")
    for p in range(2):
        T, fs, tl, st_, b, aug = 59, 60, 61, 62 + p, 64 + p, 68 + p
        k.e(f"v_add_u32 v{T}, {2*p}, v58", f"v_mul_u32_u24 v{fs}, 9363, v{T}", f"v_lshrrev_b32 v{fs}, 16, v{fs}",
            f"v_mul_u32_u24 v{tl}, 7, v{fs}", f"v_sub_u32 v{tl}, v{T}, v{tl}")
        k.e(f"v_cmp_gt_u32 vcc, 3, v{tl}", f"v_mul_u32_u24 v67, 33, v{tl}", f"v_mov_b32 v{st_}, 1", "v_mov_b32 v70, 3",
            f"v_cndmask_b32 v67, v67, v{tl}, vcc", f"v_cndmask_b32 v{st_}, v{st_}, v70, vcc")
        k.e(f"v_mul_u32_u24 v{fs}, 231, v{fs}", f"v_add_u32 v67, v67, v{fs}")
        k.e(f"v_lshl_add_u32 v70, v{st_}, 5, v67", "v_lshlrev_b32 v70, 10, v70", "v_add_u32 v70, v70, v66",
            "s_lshl_b32 s71, s36, 9", f"v_add_u32 v{aug}, s71, v70")
        k.e(f"v_mul_lo_u32 v70, v{st_}, s70", "v_add_u32 v67, v67, v70", "v_lshlrev_b32 v67, 10, v67",
            "v_add_u32 v67, v67, v66", f"v_lshl_add_u32 v{b}, v49, 9, v67", f"v_lshlrev_b32 v{st_}, 10, v{st_}")
    k.e("v_mov_b32 v71, 0x3f803f80", "v_mov_b32 v72, 0", "v_mov_b32 v73, 0", "v_cmp_gt_u32 vcc, 32, v1", "v_mov_b32 v46, 0", "v_mov_b32 v47, 0",
        "v_cndmask_b32 v68, v69, v68, vcc", f"s_lshl_b32 s72, s{sW}, 8", "s_add_u32 s72, s72, 0x10000", "v_lshl_add_u32 v74, v1, 2, s72",
        "v_lshlrev_b32 v75, 2, v1", "v_add_u32 v75, 0x10000, v75")
    k.e(f"s_mov_b32 s70, {WS_PGU}", "s_mov_b32 s71, s70", "s_mov_b32 s72, s70", "s_mov_b32 s73, s70", f"s_cmp_eq_u32 s{sW}, 0", f"s_cselect_b32 s74, s70, {OOB>>1:#x}")
    k.wait(vm="pk")
    for ks in range(4):
        for p in range(2):
            for j in range(2): k.ds(f"ds_read_b64_tr_b16 {vr(PQ[2*ks+p]+2*j,2)}, v{56+p} offset:{(ks>>1)*8192 + (ks&1)*2048 + j*512}", ("t", ks, p))
        if ks == 2: k.wait(lg=[("t", 0, 1)])
    mid1()
    for ks in range(4):
        for p in range(2):
            k.wait(lg=[("t", ks, p)])
            for d in range(4): k.e(f"v_dot2c_f32_bf16 v{72+p}, v{PQ[2*ks+p]+d}, v71")
    k.e("v_permlane32_swap_b32 v72, v73", "v_add_f32 v72, v72, v73")
    k.ds(f"ds_write_b32 v74, v72 offset:{L_CS - 65536}")
    k.wait(lg="all"); k.e("s_barrier")
    for w in range(4): k.ds(f"ds_read_b32 v{56+w}, v75 offset:{L_CS - 65536 + 256*w}")
    mid2()
    k.wait(lg="all")
    k.e("v_add_f32 v56, v56, v57", "v_add_f32 v58, v58, v59", "v_add_f32 v56, v56, v58")
    k.e("v_cvt_pk_bf16_f32 v45, v56, v46", "v_lshlrev_b32 v57, 16, v45", "v_sub_f32 v57, v56, v57", "v_cvt_pk_bf16_f32 v44, v56, v57")
    k.e("s_branch L_pk_done")
    k.label("L_pk_small")
    k.vmq = list(q0)
    k.e(f"v_mov_b32 v64, v{vL16}", f"v_add_u32 v65, 1024, v{vL16}", f"v_mov_b32 v68, v{vL16}", f"s_mov_b32 s72, {OOB>>1:#x}", "s_mov_b32 s73, s72", "s_mov_b32 s74, s72")
    k.e("s_cmp_eq_u32 s37, 0", "s_cbranch_scc1 L_pk_wo")
    k.e("s_mul_i32 s38, s35, 2341", "s_lshr_b32 s38, s38, 16", "s_mul_i32 s39, s38, 28", "s_sub_u32 s39, s35, s39",
        "s_mul_i32 s70, s39, 9363", "s_lshr_b32 s70, s70, 16", "s_mul_i32 s71, s70, 7", "s_sub_u32 s71, s39, s71")
    for u in range(2):
      k.e(f"s_sub_u32 s39, s70, s36" if P.hrot else "s_mov_b32 s39, s70", f"s_sub_u32 s39, s39, {u if P.hrot else 0}", "s_and_b32 s39, s39, 3",
        "s_lshl_b32 s32, s39, 2", "s_add_u32 s32, s32, s71", "s_mul_i32 s33, s39, 3", "s_add_u32 s33, s33, s71", "s_add_u32 s33, s33, 12",
        "s_cmp_lt_u32 s71, 4", "s_cselect_b32 s32, s32, s33", "s_mul_i32 s33, s38, 28", "s_add_u32 s32, s32, s33", f"s_lshl_b32 s{(35, 37)[u]}, s32, 11")
    k.e("v_lshl_add_u32 v56, v49, 9, v50", "v_xor_b32 v57, 64, v56", f"v_mov_b32 v62, {224*KB}", f"v_mov_b32 v63, {224*KB}")
    k.e(f"s_mul_i32 s36, s36, {224*KB}", f"s_add_u32 s36, s36, {WS_PDN}", "s_add_u32 s70, s36, s35", "s_add_u32 s71, s36, s37")
    k.wait(vm="pk")
    for i in range(2):
        for nn in range(2):
            for j in range(2): k.ds(f"ds_read_b64_tr_b16 {vr(PQ[2*i+nn]+2*j,2)}, v{56+nn} offset:{i*2048 + j*1024}", "t")
    mid1(); mid2()
    k.wait(lg="all")
    k.e("s_branch L_pk_done")
    k.label("L_pk_wo")
    k.vmq = list(q0)
    k.e("v_and_b32 v56, 2, v46", "v_lshlrev_b32 v56, 1, v56", "v_xor_b32 v56, v56, v47", "v_lshlrev_b32 v56, 4, v56", "v_lshl_add_u32 v56, v46, 7, v56",
        "v_lshrrev_b32 v57, 4, v1", "v_lshl_add_u32 v56, v57, 10, v56", "v_add_u32 v56, s34, v56", "v_xor_b32 v57, 64, v56",
        "v_mov_b32 v62, 0x800", "v_mov_b32 v63, 0x800")
    k.e("s_lshl_b32 s36, s36, 16", "s_lshl_b32 s35, s35, 12", "s_add_u32 s70, s36, s35", f"s_add_u32 s70, s70, {WS_PWO}", "s_mov_b32 s71, s70")
    k.wait(vm="pk")
    for j in range(4):
        for jj in range(2): k.ds(f"ds_read_b64_tr_b16 {vr(PQ[j]+2*jj,2)}, v{56+(j>>1)} offset:{jj*512 + 8*(j&1)}", "t")
    mid1(); mid2()
    k.wait(lg="all")
    k.label("L_pk_done")

def pack_stores(k):
    ops = []
    for r in range(4):
        for p in range(2):
            ops.append(("v", lambda r=r, p=p: k.vm(f"buffer_store_dwordx4 {vr(PQ[2*r+p],4)}, v{64+p}, {SRD_WS}, s{70+r} offen sc1", "pks")))
            if r < 3: ops.append(("a", lambda p=p: k.e(f"v_add_u32 v{64+p}, v{64+p}, v{62+p}")))
    ops.append(("v", lambda: k.vm(f"buffer_store_dwordx4 v[44:47], v68, {SRD_WS}, s74 offen sc1", "pks")))
    return ops

A_XF, A_K, A_V, A_Q = 36, 76, 86, 96
A_STA, A_STB, A_OP, A_DX, A_PA, A_ST, A_ACC = 104, 106, 144, 152, 153, 140, 184
class R0: XE, XO, SA, SB, CI, ONE, M, ATT, TMP = 3, 4, 5, 6, 28, 32, 52, (116, 160), 60
class R1: XE, XO, SA, SB, CI, ONE, M, ATT, TMP = 116, 117, 118, 119, 252, 124, 120, (228, 160), 28
A_U, A_PX = 226, 115
A11_ORDER = [2, 3, 1, 0, "h"]
A11_POS = {2: 3, 3: 0, 1: 1, 0: 2, "h": 3}
sODD, sCUR0, sCUR1, sCEXP = 40, 42, 44, 46

def a1_setup(k, layer):
    R = (R0, R1)[layer]
    real = k; out = []
    class Rec:
        def e(self, *t):
            if any(x.startswith("s_cmp") for x in t): out.append(lambda t=t: real.e(*t))
            else: out.extend(lambda x=x: real.e(x) for x in t)
    k = Rec()
    t16, g, tt, tb = R.TMP, R.TMP + 1, R.TMP + 2, R.TMP + 3
    x, y, z = R.ONE, R.ONE + 1, R.ONE + 2
    sa = L_SA0 if layer == 0 else L_SA1
    k.e(f"v_and_b32 v{t16}, 15, v1", f"v_lshrrev_b32 v{g}, 4, v1", f"v_and_b32 v{tt}, 7, v1", f"v_bfe_u32 v{tb}, v1, 3, 1")
    k.e(f"v_lshlrev_b32 v{tb}, 13, v{tb}")
    if layer == 0: k.e(f"v_add_u32 v{tb}, {L_X}, v{tb}")
    if layer == 0:
        k.e(f"v_and_b32 v{x}, 6, v{tt}", f"v_xor_b32 v{x}, v{x}, v{g}", f"v_lshlrev_b32 v{x}, 4, v{x}",
            f"v_lshl_add_u32 v{x}, v{tt}, 7, v{x}", f"v_add_u32 v{R.XE}, v{x}, v{tb}", f"v_xor_b32 v{R.XO}, 64, v{R.XE}")
    else:
        k.e(f"v_lshl_add_u32 v{x}, v{g}, 7, v{tb}", f"v_lshl_add_u32 v{R.XE}, v{tt}, 4, v{x}", f"v_add_u32 v{R.XO}, 512, v{R.XE}")
    k.e(f"v_lshlrev_b32 v{R.SA}, 3, v{t16}", f"v_add_u32 v{R.SA}, {sa}, v{R.SA}",
        f"v_lshlrev_b32 v{R.SB}, 5, v{g}", f"v_add_u32 v{R.SB}, {sa}, v{R.SB}")
    k.e(f"v_and_b32 v{x}, 1, v1", f"v_cmp_eq_u32 s[{sODD}:{sODD+1}], 1, v{x}",
        f"v_lshl_add_u32 v{y}, v{g}, 2, v{x}", f"v_cmp_le_u32 s[{sCUR0}:{sCUR0+1}], v{y}, v{t16}",
        f"v_add_u32 v{y}, 2, v{y}", f"v_cmp_le_u32 s[{sCUR1}:{sCUR1+1}], v{y}, v{t16}")
    k.e(f"v_mov_b32 v{y}, 0xffff", f"v_mov_b32 v{z}, 0xffff0000", f"v_cndmask_b32 v{y}, v{y}, v{z}, s[{sODD}:{sODD+1}]", f"v_mov_b32 v{z}, 0")
    k.e(f"v_cndmask_b32 v{R.M+2}, v{z}, v{y}, s[{sCUR0}:{sCUR0+1}]", f"v_cndmask_b32 v{R.M}, v{y}, v{z}, s[{sCUR0}:{sCUR0+1}]",
        f"v_cndmask_b32 v{R.M+3}, v{z}, v{y}, s[{sCUR1}:{sCUR1+1}]", f"v_cndmask_b32 v{R.M+1}, v{y}, v{z}, s[{sCUR1}:{sCUR1+1}]")
    k.e(f"s_cmp_eq_u32 s{sB}, 0", f"s_cselect_b32 s70, {f2u(-1e38):#x}, 0", f"s_mov_b32 s{sCEXP}, {f2u(0.25*LOG2E):#x}")
    for i in range(4): k.e(f"v_mov_b32 v{R.CI+i}, s70", f"v_mov_b32 v{R.ONE+i}, 0x3f803f80")
    return out

def o_bases(k, layer):
    k.e(*o_block("s32", layer))
    k.e(f"s_lshl_b32 s33, s{sCS}, 2", f"s_add_u32 s33, s33, s{sW}", "s_lshl_b32 s53, s33, 10", "s_add_u32 s53, s53, s32", "s_add_u32 s54, s53, 32768",
        f"s_lshl_b32 s32, s{sB}, 5", "s_add_u32 s32, s32, s33", "s_lshl_b32 s32, s32, 2", f"s_add_u32 s89, s32, {fl(layer, FL_O)}")

def ln_finish(a, s, q):
    a(f"v_mul_f32 v{s}, {f2u(-1/512):#x}, v{s}"); a(f"v_mul_f32 v{q}, {f2u(1/512):#x}, v{q}")
    a(f"v_fma_f32 v{q}, -v{s}, v{s}, v{q}"); a(f"v_max_f32 v{q}, 0, v{q}"); a(f"v_add_f32 v{q}, {f2u(1e-5):#x}, v{q}")

A_QS = 68
def fix_reads(k, R, t, S):
    i = 0 if t == "h" else t + 1
    return [lambda: k.ds(f"ds_read_b64 {vr(S,2)}, v{R.SA} offset:{i*128}", ("sa", t)),
            lambda: k.ds(f"ds_read_b128 {vr(S+2,4)}, v{R.SB} offset:{i*128}", ("sa", t)),
            lambda: k.ds(f"ds_read_b128 {vr(S+6,4)}, v{R.SB} offset:{i*128+16}", ("sa", t))]
def fix(k, R, fx, t, acc, at, pk, S=A_STA, pre=False, nxt=()):
    a = lambda txt, c=1, at=0: fx.add(lambda: k.e(txt), c, at)
    i = 0 if t == "h" else t + 1
    if not pre:
        for n, f in enumerate(fix_reads(k, R, t, S)): fx.add(f, 1, at - P.a1_salead if n == 0 else 0)
    fx.add(lambda: k.wait(lg=[("sa", t)]), 1, at)
    for f in nxt: fx.add(f)
    for r0, cs, dst in ((acc[0], CSQ, None if t == "h" else A_Q + 2*t), (acc[1], CSK, A_K + 2*i)):
        if dst is None: continue
        isq = cs == CSQ
        if pk:
            for h in (0, 2): a(f"v_pk_fma_f32 {vr(r0+h,2)}, {vr(S,2)}, {vr(cs+h,2)}, {vr(r0+h,2)} op_sel_hi:[0,1,1]")
            if not isq:
                for h in (0, 2): a(f"v_pk_mul_f32 {vr(r0+h,2)}, {vr(S,2)}, {vr(r0+h,2)} op_sel:[1,0] op_sel_hi:[1,1]")
        else:
            for r in range(4): a(f"v_fmac_f32 v{r0+r}, v{S}, v{cs+r}")
            if not isq:
                for r in range(4): a(f"v_mul_f32 v{r0+r}, v{S+1}, v{r0+r}")
        if isq: a(f"v_mul_f32 v{A_QS+t}, s{sCEXP}, v{S+1}")
        for h in range(2): a(f"v_cvt_pk_bf16_f32 v{dst+h}, v{r0+2*h}, v{r0+2*h+1}")
    r0 = acc[2]
    for r in range(4): a(f"v_fmac_f32 v{r0+r}, v{S+2+2*r}, v{CSV}")
    for r in range(4): a(f"v_mul_f32 v{r0+r}, v{S+3+2*r}, v{r0+r}")
    for h in range(2): a(f"v_cvt_pk_bf16_f32 v{A_V+2*i+h}, v{r0+2*h}, v{r0+2*h+1}")
    fx.add(lambda: (k.mark(("fix", t)), k.stamp(f"t0 fix{t}")), 0)

def attn(k, R, fx, t, B):
    SC, SP, PP, O, SUM, T = B, B + 4, B + 8, B + 12, B + 16, B + 20
    a = lambda txt, c=1: fx.add(lambda: k.e(txt), c)
    q = vr(A_Q + 2*t, 2)
    fx.dep(("fix", t)); fx.dep(("fix", t - 1 if t else "h")); fx.skip(1)
    a(f"{MF16S} {vr(SC,4)}, {vr(A_K+2*(t+1),2)}, {q}, 0", 2)
    a(f"{MF16S} {vr(SP,4)}, {vr(A_K+2*t,2)}, {q}, {vr(R.CI,4) if t == 0 else '0'}", 2)
    fx.skip(3)
    for rr, cur in ((0, sCUR0), (1, sCUR1)):
        a(f"v_cndmask_b32 v{T+2}, v{SC+2*rr}, v{SC+2*rr+1}, s[{sODD}:{sODD+1}]")
        a(f"v_cndmask_b32 v{T+3}, v{SP+2*rr}, v{SP+2*rr+1}, s[{sODD}:{sODD+1}]")
        a(f"v_cndmask_b32 v{T+rr}, v{T+3}, v{T+2}, s[{cur}:{cur+1}]")
    a(f"v_max_f32 v{T+2}, v{T}, v{T+1}"); a(f"v_mov_b32 v{T+3}, v{T+2}"); fx.skip(1)
    a(f"v_permlane16_swap_b32 v{T+2}, v{T+3}", 2); a(f"v_max_f32 v{T+2}, v{T+2}, v{T+3}"); a(f"v_mov_b32 v{T+3}, v{T+2}"); fx.skip(1)
    a(f"v_permlane32_swap_b32 v{T+2}, v{T+3}", 2); a(f"v_max_f32 v{T+2}, v{T+2}, v{T+3}")
    a(f"v_mul_f32 v{T+2}, v{A_QS+t}, v{T+2}")
    for rr in range(2): a(f"v_fma_f32 v{T+rr}, v{T+rr}, v{A_QS+t}, -v{T+2}")
    for rr in range(2): a(f"v_exp_f32 v{T+rr}, v{T+rr}", 2)
    for rr in range(2): a(f"v_cvt_pk_bf16_f32 v{T+rr}, v{T+rr}, v{T+rr}")
    a(f"v_and_b32 v{PP}, v{T}, v{R.M}"); a(f"v_and_b32 v{PP+1}, v{T+1}, v{R.M+1}")
    a(f"v_and_b32 v{PP+2}, v{T}, v{R.M+2}"); a(f"v_and_b32 v{PP+3}, v{T+1}, v{R.M+3}")
    fx.skip(1)
    a(f"{MF16} {vr(SUM,4)}, {vr(R.ONE,4)}, {vr(PP,4)}, 0", 2)
    a(f"{MF16} {vr(O,4)}, {vr(A_V+2*t,4)}, {vr(PP,4)}, 0", 2)
    fx.skip(3)
    a(f"v_rcp_f32 v{T}, v{SUM}", 2); fx.skip(1)
    for r in range(4): a(f"v_mul_f32 v{O+r}, v{T}, v{O+r}")
    for h in range(2): a(f"v_cvt_pk_bf16_f32 v{A_OP+2*t+h}, v{O+2*h}, v{O+2*h+1}")
    fx.add(lambda: (k.mark(("attn", t)), k.stamp(f"t0 attn{t}")), 0)

def ostore(k, fx, pair):
    b = A_OP + 4 * pair
    fx.dep(("attn", 2*pair)); fx.dep(("attn", 2*pair + 1))
    fx.dep("po1" if pair == 0 else "blank")
    fx.skip(1)
    fx.add(lambda: k.e(f"v_permlane16_swap_b32 v{b}, v{b+2}"), 2); fx.add(lambda: k.e(f"v_permlane16_swap_b32 v{b+1}, v{b+3}"), 2)
    fx.add(lambda: (k.dstore(f"buffer_store_dwordx4 {vr(b,4)}, v{vL16}, {SRD_WS}, s{53+pair} offen", ("ost", pair)), k.mark(("ost", pair))))

Z_WD, Z_TR, Z_HE, Z_HO, Z_OE, Z_OO = 164, 165, 166, 167, 168, 169
Z_XF, Z_SUM, Z_GR, Z_SUMH, Z_GRH, Z_CV = 104, 240, 244, 248, 252, 100
P.k_first = 4; P.k_pack = None; P.k_prep = 12
P.k_look, P.k_atom, P.k_bar, P.k_vgap, P.k_pst, P.k_pgap = 3, 5, 3, 3, 3, 0
NS0 = 6
def z_acc(t):
    if t == "h": return (None, A_ACC + 48, A_ACC + 52)
    return (A_ACC + 12*t, A_ACC + 12*t + 4, A_ACC + 12*t + 8)

def a10_lanes(k):
    k.e("v_lshrrev_b32 v60, 3, v1", "v_and_b32 v61, 6, v60", "v_and_b32 v62, 7, v1", "v_xor_b32 v61, v61, v62",
        "v_lshlrev_b32 v61, 4, v61", f"v_lshl_add_u32 v{A_DX}, v60, 10, v61")
    k.e("v_and_b32 v61, 2, v60", f"s_and_b32 s32, s{sW}, 1", "s_lshl_b32 s32, s32, 2", "v_or_b32 v61, s32, v61", "v_xor_b32 v61, v61, v62",
        "v_lshlrev_b32 v61, 4, v61", "v_mul_u32_u24 v60, 3072, v60", f"v_add_u32 v{Z_WD}, v60, v61")
    if P.rot == 0: k.e(f"s_add_u32 s{sROT}, s{sB}, s{sCS}")
    elif P.rot == 1: k.e(f"s_lshl_b32 s32, s{sB}, 1", f"s_bfe_u32 s33, s{sB}, 0x10002", "s_add_u32 s32, s32, s33", f"s_add_u32 s{sROT}, s32, s{sCS}")
    elif P.rot == 2: k.e(f"s_lshl_b32 s32, s{sB}, 1", f"s_add_u32 s{sROT}, s32, s{sCS}")
    elif P.rot == 3: k.e(f"s_mov_b32 s{sROT}, s{sCS}")
    elif P.rot == 4: k.e(f"s_lshl_b32 s32, s{sB}, 1", f"s_bfe_u32 s33, s{sB}, 0x10002", f"s_add_u32 s{sROT}, s32, s33")
    elif P.rot == 5: k.e(f"s_mov_b32 s{sROT}, 0")
    k.e(f"s_and_b32 s{sROT}, s{sROT}, 7")
    k.e(f"s_lshl_b32 s47, s{sB}, 3", "s_sub_u32 s48, s47, 2", "s_max_i32 s48, s48, 0", f"s_and_b32 s32, s{sW}, 1", "s_add_u32 s48, s48, s32",
        "s_lshl_b32 s48, s48, 13", f"s_lshl_b32 s32, s{sW}, 1", "s_add_u32 s47, s47, s32", "s_lshl_b32 s47, s47, 13")
    k.e(f"s_mul_i32 s51, s{sW}, {8*3072}", f"s_lshl_b32 s32, s{sCS}, 7", "s_add_u32 s51, s51, s32", f"s_mul_i32 s52, s{sW}, 3072")
    k.e(f"s_lshl_b32 s49, s{sW}, 14", f"s_and_b32 s32, s{sW}, 1", "s_lshl_b32 s50, s32, 13", f"s_lshr_b32 s32, s{sW}, 1",
        "s_lshl_b32 s33, s32, 10", "s_add_u32 s50, s50, s33", f"s_add_u32 s90, s32, s{sROT}")

def a10_x(k, c):
    S = lambda *t: [("s", lambda x=x: k.e(x)) for x in t]
    ld = lambda: k.vm(f"buffer_load_dwordx4 v{A_DX}, {SRD_X}, s33 offen {P.x_mod} lds", ("x", c))
    ops = S(f"s_add_u32 s33, s{sROT}, {c}", "s_and_b32 s33, s33, 7", "s_lshl_b32 s33, s33, 7", f"s_add_u32 m0, s49, {L_X + c*1024}", "s_add_u32 s33, s33, s47")
    ops += [("v", ld)] + S(f"s_add_u32 m0, s49, {L_X + 8192 + c*1024}", "s_add_u32 s33, s33, 8192") + [("v", ld)]
    if c % 2 == 0:
        ops += S(f"s_add_u32 s33, s90, {c}", "s_and_b32 s33, s33, 7", "s_lshl_b32 s33, s33, 7", f"s_add_u32 m0, s50, {L_XH0 + c*1024}", "s_add_u32 s33, s33, s48") + [("v", ld)]
    return ops

def a10_w(k, s):
    S = lambda *t: [("s", lambda x=x: k.e(x)) for x in t]
    if s & 1: ops = S(f"s_add_u32 m0, s52, {(s % NS0)*12288}", f"s_add_u32 s63, s63, {32*3072}")
    else: ops = S(f"s_add_u32 s63, s{sROT}, {s>>1}", "s_and_b32 s63, s63, 7", f"s_mul_i32 s63, s63, {64*3072}", f"s_add_u32 m0, s52, {(s % NS0)*12288}", "s_add_u32 s63, s63, s51")
    for p in range(3): ops.append(("v", lambda p=p: k.vm(f"buffer_load_dwordx4 v{Z_WD}, {SRD_QKV}, s63 offen offset:{p*1024} {P.w_mod} lds", ("w", s))))
    return ops
def run(ops):
    for _, f in ops: f()

def fill(k, mains, streams, cap=2):
    lastv = -99
    for g, m in enumerate(mains):
        m(); k.gap = g
        for a, o in streams:
            if a <= g and o and o[0][0] == "s": o.pop(0)[1](); break
        room = cap; nd = 0
        if g - lastv >= P.k_vgap and k.bg_step(): room -= 1; lastv = g
        while room > 0:
            pick = None
            for a, o in streams:
                if a > g or not o: continue
                t = o[0][0]
                if t == "d" and nd >= 1: continue
                if t == "v" and g - lastv < P.k_vgap: continue
                pick = o; break
            if pick is None: break
            t, f = pick.pop(0); f(); room -= 2 if t == "b" else 1
            if t == "d": nd += 1
            if t == "v": lastv = g
    for a, o in streams: run(o)

def a10_lanes2(k):
    k.e("v_lshrrev_b32 v60, 4, v1", "v_bfe_u32 v61, v1, 2, 2", "v_and_b32 v62, 1, v60", "v_lshlrev_b32 v62, 1, v62",
        "v_lshrrev_b32 v63, 1, v61", "v_or_b32 v62, v62, v63", f"v_xor_b32 v62, s{sW}, v62", "v_lshlrev_b32 v62, 5, v62",
        "v_mul_u32_u24 v60, 3072, v60", "v_lshl_add_u32 v60, v61, 7, v60", "v_add_u32 v60, v60, v62",
        "v_and_b32 v61, 3, v1", f"v_lshl_add_u32 v{Z_TR}, v61, 3, v60")
    k.e("v_and_b32 v60, 15, v1", "v_cmp_eq_u32 s[78:79], 0, v60")
    k.e(f"v_subrev_u32 v{Z_HE}, 16384, v{R0.XE}", f"v_subrev_u32 v{Z_HO}, 16384, v{R0.XO}",
        f"v_add_u32 v{Z_OE}, s49, v{R0.XE}", f"v_add_u32 v{Z_OO}, s49, v{R0.XO}")

def a10_loop(k, first):
    LA = P.k_look
    def sync(s, extra=()):
        k.wait(vm=[("w", s), ("x", s >> 1)] + list(extra)); k.e("s_barrier")
    nxt = [first]
    def dmas(upto):
        out = []
        while nxt[0] <= min(upto, 15):
            n = nxt[0]; nxt[0] += 1
            if n % 2 == 0: out += a10_x(k, n // 2)
            out += a10_w(k, n)
        return out
    def reads(s):
        fb = Z_XF + 24 * (s & 1); off = (s >> 1) * 1024; o = s & 1
        tr = lambda p, j: ("d", lambda: k.ds(f"ds_read_b64_tr_b16 {ar(12*s+4*p+2*j,2)}, v{Z_TR} offset:{(s%NS0)*12288 + p*1024 + j*512}", ("r", s, 0 if p == 0 else 1)))
        xr = lambda d, a, of, grp: ("d", lambda: k.ds(f"ds_read_b128 {vr(d,4)}, v{a} offset:{of}", ("r", s, grp)))
        out = [tr(0, 0), tr(0, 1)] + [xr(fb + 4*t, R0.XO if o else R0.XE, t*16384 + off, 0) for t in range(4)]
        out += [tr(1, 0), tr(1, 1), tr(2, 0), tr(2, 1), xr(fb + 16, Z_HO if o else Z_HE, off, 1), xr(fb + 20, Z_OO if o else Z_OE, off, 1)]
        return out
    l0_background(k)
    pst = pack_stores(k)
    sync(0)
    k.stamp("k0")
    run(reads(0)); run(dmas(LA - 1))
    for s in range(16):
        fb = Z_XF + 24 * (s & 1)
        c = lambda r: "0" if s == 0 else vr(r, 4)
        wq, wk, wv, one = ar(12*s, 4), ar(12*s + 4, 4), ar(12*s + 8, 4), vr(R0.ONE, 4)
        ms = [f"{MF16} {vr(z_acc(t)[0],4)}, {wq}, {vr(fb+4*t,4)}, {c(z_acc(t)[0])}" for t in range(4)]
        for t in [0, 1, 2, 3, "h"]:
            xf = vr(fb + (16 if t == "h" else 4*t), 4)
            ms.append(f"{MF16} {vr(z_acc(t)[1],4)}, {wk}, {xf}, {c(z_acc(t)[1])}")
            ms.append(f"{MF16} {vr(z_acc(t)[2],4)}, {xf}, {wv}, {c(z_acc(t)[2])}")
        ms += [f"{MF16} {vr(Z_CV,4)}, {wq}, {vr(fb+16,4)}, {c(Z_CV)}",
               f"{MF16} {vr(Z_SUM,4)}, {one}, {vr(fb+20,4)}, {c(Z_SUM)}", f"{MF16} {vr(Z_GR,4)}, {vr(fb+20,4)}, {vr(fb+20,4)}, {c(Z_GR)}",
               f"{MF16} {vr(Z_GRH,4)}, {vr(fb+16,4)}, {vr(fb+16,4)}, {c(Z_GRH)}"]
        if not P.gram1: ms.append(f"{MF16} {vr(Z_SUMH,4)}, {one}, {vr(fb+16,4)}, {c(Z_SUMH)}")
        mains = [lambda m=m: k.e(m) for m in ms]
        if s == P.k_pack:
            k.wait(lg="all"); pack_process(k, lambda: None, lambda: None)
        k.wait(lg=[("r", s, 0)])
        streams = [(3, [("s", lambda: k.wait(lg=[("r", s, 1)]))] +
                       [("a", lambda d=d: k.e(f"v_cndmask_b32 v{fb+16+d}, v{fb+16+d}, v{R0.ONE}, s[78:79]")) for d in range(4)])]
        if s + 1 < 16:
            ex = ["pks"] if s + 1 == P.k_atom else []
            assert not ex or not pst, "arrival before the last pack store"
            assert P.k_prep > 14 - LA and (P.k_pack or 0) <= 8 - LA
            ops = [("b", lambda: sync(s + 1, ex))] + reads(s + 1)
            if ex: ops.append(("b", lambda: arrive(k)))
            streams.append((P.k_bar, ops))
            streams.append((0, dmas(s + LA)))
        n = 0; mine = []
        while pst and s >= (P.k_pack or 0) and (n < P.k_pst or pst[0][0] == "a"):
            n += pst[0][0] == "v"; mine.append(pst.pop(0))
        streams.append((P.k_pgap, mine))
        if s == P.k_prep: streams.append((6, tail_prep(k)))
        if s == P.k_touch:
            streams.append((2, [("b", lambda: k.touch(157, "p", ["s_mov_b32 s32, s53"], False) if (0, "ost", True) not in P.wt else None),
                                ("b", lambda: k.touch(158, "q", [f"s_add_u32 s32, s64, {BX2()}"], False) if (0, "xst", False) not in P.wt and P.x1_at == "k" else None),
                                ("b", lambda: k.touch(159, "h", h_base("s32", 0), False) if P.h_touch0 == "k" else None)]))
        if s == P.k_gb: streams.append((1, [("v", lambda t=t: k.vm(t, "gb")) for t in GB_LOADS]))
        if s == P.k_chk: streams.append((1, [("b", lambda: rendezvous(k))]))
        if s == 15 and P.k_chk < 16:
            streams.append((max(P.k_bar, 4), [("b", lambda: (k.e("s_barrier"), k.mark("xfree")))]))
        fill(k, mains, streams)
        if s in (3, 7, 11): k.stamp(f"k{s+1}")
    k.stamp("k16")
    if P.k_chk >= 16: rendezvous(k)

GB_LOADS = [f"buffer_load_dwordx4 {vr(36+4*j,4)}, v{vL16}, {SRD_WS}, s75 offen offset:{j*1024} sc1" for j in range(4)] + \
           [f"buffer_load_dword v{vP}, v172, {SRD_WS}, s77 offen offset:8 sc1"]
def arrive(k):
    k.wait(vm=["tag"])
    k.e(f"v_readfirstlane_b32 s{sTAG}, v170", f"s_cmp_eq_u32 s{sTAG}, 0", "s_cbranch_scc1 L_tag_spin ;np", "L_tag_ok: ;np")
    k.spins += ["L_tag_spin:", f"s_sub_u32 s{sBUD}, s{sBUD}, 1", "s_cbranch_scc1 L_tag_give", f"buffer_load_dword v170, v{vFA}, {SRD_DBG}, 0 offen sc1",
                "s_waitcnt vmcnt(0)", f"v_readfirstlane_b32 s{sTAG}, v170", f"s_cmp_eq_u32 s{sTAG}, 0", "s_cbranch_scc1 L_tag_spin", "s_branch L_tag_ok",
                "L_tag_give:", f"s_mov_b32 s{sBUD}, 0", "s_branch L_tag_ok"]
    k.e(f"v_mov_b32 v176, s{sTAG}", "v_not_b32 v177, v176", f"v_mov_b32 v178, s{sXCC}")
    k.vm(f"buffer_store_dwordx4 v[176:179], v171, {SRD_WS}, s75 offen sc1", "arr")

def rendezvous(k):
    chk = [f"s_not_b32 s32, s{sTAG}"]
    for j in range(4): chk += [f"v_xor_b32 v{36+4*j}, s{sTAG}, v{36+4*j}", f"v_xor_b32 v{37+4*j}, s32, v{37+4*j}"]
    chk += ["v_or3_b32 v36, v36, v37, v40", "v_or3_b32 v44, v44, v45, v41", "v_or3_b32 v36, v36, v48, v49", "v_or_b32 v36, v36, v44", "v_cmp_ne_u32 vcc, 0, v36"]
    k.wait(vm=["gb"])
    k.e(*chk); k.e("s_cbranch_vccnz L_gb_spin ;np", "L_gb_ok: ;np")
    k.spins += ["L_gb_spin:", f"s_sub_u32 s{sBUD}, s{sBUD}, 1", "s_cbranch_scc1 L_gb_give", "s_sleep 2",
                f"buffer_load_dword v170, v{vFA}, {SRD_DBG}, 0 offen sc1", "s_waitcnt vmcnt(0)", "v_readfirstlane_b32 s32, v170", f"s_cmp_eq_u32 s32, s{sTAG}",
                "s_cbranch_scc1 L_gb_same", f"s_mov_b32 s{sTAG}, s32", f"v_mov_b32 v176, s{sTAG}", "v_not_b32 v177, v176",
                f"buffer_store_dwordx4 v[176:179], v171, {SRD_WS}, s75 offen sc1", "L_gb_same:"] + GB_LOADS + ["s_waitcnt vmcnt(0)"] + chk + \
               ["s_cbranch_vccnz L_gb_spin", "s_branch L_gb_ok", "L_gb_give:", f"s_mov_b32 s{sBUD}, 0", "s_branch L_gb_ok"]
    k.e(f"v_cmp_ne_u32 vcc, s{sXCC}, v{vP}", "s_and_b32 s99, vcc_lo, 0xffff" if not P.safe else "s_and_b32 s99, 1, 1",
        f"s_cselect_b32 s{sML}, {OOB>>1:#x}, 0", f"s_cselect_b32 s{sMS}, 0, {OOB>>1:#x}")
    k.mark("gb")

W_OA, W_UA, W_SA, W_RB = 152, 154, 155, 156
def wo_bases(k):
    k.e(f"s_lshl_b32 s32, s{sB}, 2", f"s_add_u32 s32, s32, s{sW}", "s_lshl_b32 s64, s32, 14", f"s_lshl_b32 s33, s{sCS}, {CSH()}", "s_add_u32 s64, s64, s33",
        "s_lshr_b32 s32, s32, 1", "s_lshl_b32 s80, s32, 15", "s_lshl_b32 s65, s32, 11", "s_lshl_b32 s66, s32, 3", f"s_add_u32 s66, s66, s{sCS}", "s_lshl_b32 s66, s66, 1",
        f"s_and_b32 s32, s{sW}, 1", "s_add_u32 s66, s66, s32", "s_lshl_b32 s66, s66, 2", "s_lshl_b32 s32, s32, 8", "s_add_u32 s80, s80, s32", "s_add_u32 s65, s65, s32",
        f"s_lshr_b32 s32, s{sCS}, 1", "s_lshl_b32 s32, s32, 9", "s_add_u32 s65, s65, s32", f"s_and_b32 s32, s{sCS}, 1", "s_lshl_b32 s32, s32, 3", "s_add_u32 s65, s65, s32")
def wo_lanes(k):
    x, y = 66, 67
    return [lambda t=t: k.e(*t) for t in (
        [f"v_and_b32 v{x}, 15, v1"], [f"v_lshrrev_b32 v{y}, 4, v1"], [f"v_lshlrev_b32 v{W_OA}, 4, v{x}"], [f"v_lshl_add_u32 v{W_SA}, v{y}, 2, v{W_OA}"],
        [f"v_lshl_add_u32 v{W_OA}, v{y}, 9, v{W_OA}"], [f"v_and_b32 v{W_UA}, 7, v1"], [f"v_lshlrev_b32 v{W_UA}, 4, v{W_UA}"], [f"v_lshl_add_u32 v{W_UA}, v{y}, {LSH()}, v{W_UA}"],
        [f"v_lshrrev_b32 v{x}, 3, v{x}"], [f"v_lshl_add_u32 v{W_UA}, v{x}, 13, v{W_UA}"], [f"v_add_u32 v{W_RB}, {6*16384}, v{vL16}"],
        ["v_cmp_gt_u32 vcc, 32, v1", f"v_mov_b32 v{y}, {OOB:#x}", f"v_cndmask_b32 v{W_SA}, v{y}, v{W_SA}, vcc"])]
def blanks(k, layer):
    if not P.tags: return [lambda: k.mark("blank")]
    z = 66
    return [lambda: (k.e(f"v_mov_b32 v{z}, -1"), k.dstore(f"buffer_store_dword v{z}, v{vL16}, {SRD_WS}, s53 offen", "blank")),
            lambda: (k.e(f"s_add_u32 s58, s64, {BX2()}"), k.dstore(f"buffer_store_dword v{z}, v{W_UA}, {SRD_WS}, s58 offen", "blank")),
            lambda: k.dstore(f"buffer_store_dword v{z}, v{W_UA}, {SRD_WS}, s58 offen offset:512", "blank"),
            lambda: (k.e(f"s_add_u32 s58, s65, {BS1[layer]}"), k.dstore(f"buffer_store_dword v{z}, v{W_SA}, {SRD_WS}, s58 offen", "blank"), k.mark("blank"))]
def wo_prepoll(k, layer):
    k.poll_addr(A_PA, 32)
    k.e(f"s_lshl_b32 s32, s{sB}, 7", f"s_add_u32 s{sPO}, s32, {fl(layer, FL_O)}", *o_block("s59", layer), "s_and_b32 s32, s80, 0xffff", "s_add_u32 s59, s59, s32")
    k.bg_held = True
    k.poll_issue(A_PA, "po1"); k.mark("po1")

def dna(k): return regloads(k, sDS, 0, lambda j: ar(192 + 4*j, 4), 16, "dna")

def tail_prep(k):
    R = R0
    A = lambda *t: [("a", lambda x=x: k.e(x)) for x in t]
    B = lambda *t: [("b", lambda: k.e(*t))]
    ops = A("v_and_b32 v73, 15, v1", "v_lshrrev_b32 v74, 4, v1", "v_lshlrev_b32 v73, 10, v73", "v_lshl_add_u32 v73, v74, 4, v73")
    ops += B(f"s_lshl_b32 s58, s{sB}, 2", f"s_add_u32 s58, s58, s{sW}", "s_lshl_b32 s58, s58, 14", f"s_lshl_b32 s59, s{sCS}, 7", "s_add_u32 s58, s58, s59")
    ops += [("v", lambda p=p: k.vm(f"buffer_load_dwordx4 {vr(RES+4*p,4)}, v73, {SRD_X}, s58 offen offset:{p*64}", "res")) for p in range(2)]
    ops += A("v_and_b32 v75, 3, v1", "v_cmp_eq_u32 s[34:35], 1, v75", "v_cmp_eq_u32 s[36:37], 2, v75", "v_cmp_eq_u32 s[38:39], 3, v75", "v_bfe_u32 v75, v1, 2, 2")
    ops += B("v_cmp_eq_u32 vcc, v75, v74", f"v_mov_b32 v72, {L_SA0 + 768}", f"s_lshl_b32 s59, s{sW}, 7", f"v_add_u32 v74, s59, v{R.SA}",
             "v_cndmask_b32 v74, v72, v74, vcc", f"v_cndmask_b32 v75, v72, v{R.SA}, vcc")
    return ops + [("a", f) for f in wo_lanes(k)]

def l0_background(k):
    k.per = dict(P.per_k)
    dd = dna(k)
    bg_list(k, dd[:P.dna_first], "s4", "dna", "gb")
    bg_list(k, wow(k), "s4", "wow", "xfree")
    bg_batches(k, [0, 1, 2, 3], "s2", lambda b: "xfree")
    bg_batches(k, [4], "s2", lambda b: "wobar")
    bg_batches(k, [5], "s2", lambda b: "xfree")
    bg_batches(k, [6, 7, 8, 9], "s2", lambda b: "gubar")
    bg_list(k, dd[P.dna_first:], "s4", "dna")
P.per_k = {"s2": 90, "s4": 70}

def a10_tail(k):
    R = R0
    k.per = dict(P.per_tail0)
    k.stamp("t0 gb")
    xt = [lambda: k.touch(72, "t", [f"s_add_u32 s32, s65, {BS1[0]}"])]
    if P.x1_at != "k": xt.append(lambda: k.touch(158, "q", [f"s_add_u32 s32, s64, {BX2()}"]))
    if (0, "xst", False) in P.wt: xt = []
    if P.x1_at == "k":
        for f in xt: f()
    k.bg_burst(P.tail_burst); k.bg_next = k.t + P.tail_delay
    hk, hv = z_acc("h")[1], z_acc("h")[2]
    for r in range(4):
        k.e(f"v_mov_b32_dpp v{CSQ+r}, v{Z_CV+r} row_newbcast:0 row_mask:0xf bank_mask:0xf", f"v_mov_b32_dpp v{CSK+r}, v{hk+r} row_newbcast:0 row_mask:0xf bank_mask:0xf")
    k.e(f"v_mov_b32 v{CSV}, v{hv}", f"v_mov_b32 v45, v{hv}", f"v_permlane16_swap_b32 v{CSV}, v45", f"v_mov_b32 v45, v{CSV}", f"v_permlane32_swap_b32 v{CSV}, v45")
    if P.gram1:
        k.e(f"v_mov_b32 v{Z_SUMH}, v{Z_GRH}", f"v_mov_b32 v45, v{Z_GRH}", f"v_permlane16_swap_b32 v{Z_SUMH}, v45", f"v_mov_b32 v45, v{Z_SUMH}", f"v_permlane32_swap_b32 v{Z_SUMH}, v45")
    fa = Flex(); fb = Flex()
    for fx, S, G, ad, off in ((fa, Z_SUM, Z_GR, 74, 128), (fb, Z_SUMH, Z_GRH, 75, 0)):
        a = lambda txt, c=1, fx=fx: fx.add(lambda: k.e(txt), c)
        a(f"v_cndmask_b32 v{S+1}, v{G}, v{G+1}, s[34:35]"); a(f"v_cndmask_b32 v{S+1}, v{S+1}, v{G+2}, s[36:37]"); a(f"v_cndmask_b32 v{S+1}, v{S+1}, v{G+3}, s[38:39]")
        ln_finish(a, S, S + 1); a(f"v_rsq_f32 v{S+1}, v{S+1}"); fx.skip(1)
        fx.add(lambda S=S, ad=ad, off=off: k.ds(f"ds_write_b64 v{ad}, {vr(S,2)} offset:{off}", "saw"))
    drain([fa, fb], k)
    for f in blanks(k, 0): f()
    k.wait(lg="all"); k.e("s_barrier"); k.mark("xfree")
    k.stamp("t0 bar")
    fx = Flex(); f1 = Flex(); f2 = Flex()
    od = (2, 1, 3, 0, "h"); Ss = (A_STA, 56)
    for f in fix_reads(k, R, od[0], Ss[0]): f()
    for n, t in enumerate(od):
        fix(k, R, fx, t, z_acc(t), 0, True, Ss[n & 1], True, fix_reads(k, R, od[n + 1], Ss[~n & 1]) if n < 4 else ()); fx.skip(1)
    attn(k, R, f1, 2, R.ATT[0]); attn(k, R, f2, 3, R.ATT[1]); ostore(k, f2, 1)
    attn(k, R, f1, 1, R.ATT[0]); attn(k, R, f2, 0, R.ATT[1]); ostore(k, f2, 0)
    f4 = Flex()
    if P.x1_at != "k":
        f4.dep(P.x1_at)
        for f in xt: f4.add(f)
    f3 = Flex(); f3.dep(("ost", 1))
    for _ in range(P.l0_flag_delay): f3.skip(1)
    f3.add(lambda: (k.wait(vm=[("ost", 1)]), k.flag(1, 89), k.mark("oflag1")))
    f3.dep(("attn", 0)); f3.add(lambda: wo_prepoll(k, 0))
    drain([fx, f1, f2, f3, f4], k)
    k.stamp("a1 end")
P.x1_at = 'k'; P.tail_burst = 2; P.tail_delay = 0; P.l0_flag_delay = 6; P.dna_first = 2
P.per_tail0 = {"s2": 70, "s4": 45}

def a11_bases(k):
    out = []
    S = lambda *t: out.extend(lambda x=x: k.e(x) for x in t)
    S(f"s_lshr_b32 s70, s{sW}, 1", "s_lshl_b32 s49, s70, 13", f"s_and_b32 s71, s{sW}, 1", "s_lshl_b32 s71, s71, 2",
      f"s_add_u32 s50, s71, s{sROT}", "s_lshl_b32 s71, s71, 10")
    for i in range(4):
        S(f"s_add_u32 s70, s50, {i}", "s_and_b32 s70, s70, 7", f"s_lshl_b32 s70, s70, {CSH()}", "s_add_u32 s70, s70, s49", f"s_sub_u32 s{92+i}, s70, {0 if P.x_out else i*1024}")
    S("s_add_u32 s49, s49, s71", f"s_lshl_b32 s47, s{sB}, 16", f"s_add_u32 s47, s47, {BX2()}")
    S(f"s_sub_u32 s48, s{sB}, 1", "s_max_i32 s48, s48, 0", "s_lshl_b32 s51, s48, 10", f"s_add_u32 s51, s51, {WS_HST}",
      "s_lshl_b32 s52, s48, 11", f"s_add_u32 s52, s52, {WS_HXF}", "s_lshl_b32 s48, s48, 14", f"s_add_u32 s48, s48, {WS_HALO}")
    S("v_lshrrev_b32 v28, 4, v1", "v_and_b32 v29, 15, v1", "v_lshlrev_b32 v29, 4, v29", f"v_lshl_add_u32 v{A_U}, v28, 9, v29", f"v_lshl_add_u32 v{A_U+1}, v28, 8, v29")
    S(f"s_lshl_b32 s70, s{sB}, 12", f"s_and_b32 s71, s{sW}, 1", "s_lshl_b32 s71, s71, 8", "s_add_u32 s70, s70, s71", f"s_add_u32 s90, s70, {BS2()}")
    out.append(lambda: k.e(f"s_lshl_b32 s70, s{sB}, 1", f"s_add_u32 s70, s70, s{sW}", "s_lshl_b32 s72, s70, 13", f"s_lshl_b32 s71, s{sCS}, {CSH()}", "s_add_u32 s72, s72, s71",
        f"s_add_u32 s72, s72, {WS_HALO - 16384}", f"s_cmp_ge_u32 s{sW}, 2", f"s_cselect_b32 s72, s72, {OOB>>1:#x}"))
    out.append(lambda: k.e(f"s_lshl_b32 s73, s{sB}, 10", f"s_lshr_b32 s71, s{sCS}, 1", "s_lshl_b32 s71, s71, 8", "s_add_u32 s73, s73, s71", f"s_and_b32 s71, s{sCS}, 1",
        "s_lshl_b32 s71, s71, 3", "s_add_u32 s73, s73, s71"))
    out.append(lambda: k.e(f"s_lshl_b32 s71, s{sW}, 7", "s_add_u32 s73, s73, s71", f"s_add_u32 s73, s73, {WS_HST - 256}",
        f"s_cmp_ge_u32 s{sW}, 2", f"s_cselect_b32 s73, s73, {OOB>>1:#x}"))
    out.append(lambda: k.e(f"s_lshl_b32 s70, s{sB}, 3", f"s_add_u32 s70, s70, s{sCS}", "s_lshl_b32 s70, s70, 1", f"s_add_u32 s70, s70, s{sW}", "s_lshl_b32 s70, s70, 7",
        f"s_add_u32 s70, s70, {WS_HXF - 256}", f"s_cmp_ge_u32 s{sW}, 2", f"s_cselect_b32 s91, s70, {OOB>>1:#x}"))
    return out

def a11_x(k, tile):
    fns = []
    for i in range(4):
        def f(i=i):
            k.set_m0(f"s_add_u32 m0, s49, {A11_POS[tile]*16384 + (i*1024 if P.x_out else 0)}")
            k.e(f"s_add_u32 s32, s{48 if tile == 'h' else 47}, s{92+i}")
            if tile not in (0, "h"): k.e(f"s_add_u32 s32, s32, {tile*16384}")
            k.vm(f"buffer_load_dwordx4 v{RX(False)}, {SRD_WS if tile == 'h' else XS()}, s32 offen offset:{0 if P.x_out else i*1024} sc1 lds", ("x", tile))
        fns.append(f)
    return fns

def stats_path(k, fx, S, tag, addr, tok, at=0):
    a = lambda txt, c=1: fx.add(lambda: k.e(txt), c)
    s, q = S, S + 1
    fx.add(lambda: k.wait(vm=[tag]), 1, at)
    a(f"v_add_f32 v{s}, v{s}, v{S+2}"); a(f"v_add_f32 v{q}, v{q}, v{S+3}"); fx.skip(1)
    a(f"v_permlane16_swap_b32 v{s}, v{q}", 2); a(f"v_add_f32 v{s}, v{s}, v{q}"); a(f"v_mov_b32 v{q}, v{s}"); fx.skip(1)
    a(f"v_permlane32_swap_b32 v{s}, v{q}", 2); a(f"v_add_f32 v{s}, v{s}, v{q}"); a(f"v_mov_b32 v{q}, v{s}"); fx.skip(1)
    a(f"v_permlane16_swap_b32 v{s}, v{q}", 2)
    ln_finish(a, s, q); a(f"v_rsq_f32 v{q}, v{q}", 2); fx.skip(1)
    fx.add(lambda: (k.ds(f"ds_write_b64 v{addr}, {vr(s,2)} offset:{tok*8}", ("saw", tag)), k.mark(("saw", tag))))

def a11_early(k, later=False):
    fns = a11_x(k, A11_ORDER[0]) + [lambda: k.vm(f"buffer_load_dwordx4 {vr(A_ST,4)}, v{A_U}, {SRD_WS}, s90 offen offset:2048 sc1", "st0")] + a11_x(k, A11_ORDER[1])
    if later: return fns
    for f in fns: f()

def a11_main(k):
    R = R1; order = A11_ORDER
    steps = [(t, s) for t in order for s in range(16)]
    accof = lambda t: A_ACC + 12 * (order.index(t) % 3)
    def xread(i):
        t, s = steps[i]
        off = A11_POS[t] * 16384 + (s >> 1) * 1024
        k.ds(f"ds_read_b128 {vr(A_XF+4*(i%4),4)}, v{R.XO if s&1 else R.XE} offset:{off}", ("xf", i))
    mains = []; fixed = {}; gap_of = {}
    need_sa = {order[1]: ["st0"], order[2]: ["st1"], order[3]: [], "h": []}
    for i, (t, s) in enumerate(steps):
        acc = accof(t); xf = vr(A_XF + 4*(i % 4), 4)
        c = lambda r, s=s: "0" if s == 0 else vr(r, 4)
        ms = []
        if t != "h": ms.append(f"{MF16} {vr(acc,4)}, {ar(12*s,4)}, {xf}, {c(acc)}")
        ms.append(f"{MF16} {vr(acc+4,4)}, {ar(12*s+4,4)}, {xf}, {c(acc+4)}")
        ms.append(f"{MF16} {vr(acc+8,4)}, {xf}, {ar(12*s+8,4)}, {c(acc+8)}")
        gap_of[(t, s)] = len(mains)
        for m in ms: mains.append(lambda m=m: k.e(m))
        last = len(mains) - 1
        fl_ = fixed.setdefault(last, [])
        if i + 1 < len(steps): fl_.append((0, lambda i=i: k.wait(lg=[("xf", i + 1)])))
        j = i + 4
        if j < len(steps):
            tj, sj = steps[j]
            if sj == 0:
                def bar(tj=tj):
                    k.wait(vm=[("x", tj)], lg=[("saw", n) for n in need_sa[tj]]); k.e("s_barrier"); k.mark(("bar", tj))
                fixed.setdefault(gap_of[(t, s)], []).append((1, bar))
            fixed[last].append((1, lambda j=j: xread(j)))
    fx = Flex(); fz = Flex(); fz2 = Flex(); fy = Flex(); fm = Flex()
    k.e(f"s_and_b32 s32, s{sW}, 1", "s_lshl_b32 s32, s32, 7", f"v_add_u32 v6, s32, v{R.SA}")
    o_bases(k, 1)
    stats_path(k, fy, A_ST, "st0", 6, 48)
    g1 = P.a1_late_gap
    fm.add(lambda: (k.wait(vm=[("xst", 1)]), k.flag(2)), 3, P.a1_flag_gap)
    fm.add(lambda: (k.poll_issue(A_PX, "px2"), setattr(k, "bg_held", not P.a1_bg_early)), 1, g1 - P.a1_poll_lead)
    fm.add(lambda: k.poll_check(A_PX, "px2", 2), 2, g1)
    fm.add(lambda: k.vm(f"buffer_load_dwordx4 {vr(56,4)}, v{A_U}, {SRD_WS}, s90 offen sc1", "st1"))
    for t in order[2:4]:
        for f in a11_x(k, t): fm.add(f, 2); fm.skip(P.a1_xgap)
    for f in wo_lanes(k): fy.add(f)
    fy.add(lambda: k.mark("wolanes"), 0)
    fm.dep("wolanes")
    for p in range(2):
        fm.add(lambda p=p: (k.e(f"s_add_u32 s58, s64, {BX2() + (p << (2 + LSH()))}"), k.vm(f"buffer_load_dwordx4 {vr(RES+4*p,4)}, v{W_UA}, {XS()}, s58 offen sc1", "res")), 2); fm.skip(P.a1_xgap)
    def halo_poll():
        k.poll_addr(A_PX, 16, 7)
        k.e(f"s_mov_b32 s{sPO}, s52", f"s_min_u32 s50, s{sB}, 1")
        k.poll_issue(A_PX, "phx"); k.bg_held = False
    fm.add(halo_poll, 3)
    for c in P.t1_a1:
        if c == "o": fm.add(lambda: k.touch(60, "p", ["s_mov_b32 s32, s53"]), 6)
        if c == "x": fm.add(lambda: k.touch(62, "q", [f"s_add_u32 s32, s64, {BX2()}"]), 6)
        if c == "s": fm.add(lambda: k.touch(64, "t", [f"s_add_u32 s32, s65, {BS1[1]}"]), 4)
    for f in blanks(k, 1): fm.skip(P.a1_xgap); fm.add(f, 3)
    stats_path(k, fy, 56, "st1", 6, 16, g1 + 26)
    fm.dep(("bar", order[2]))
    fm.add(lambda: k.poll_check(A_PX, "phx", "s50"), 2)
    fm.add(lambda: k.vm(f"buffer_load_dwordx4 {vr(A_ST,4)}, v{A_U+1}, {SRD_WS}, s51 offen sc1", "sth"))
    for f in a11_x(k, "h"): fm.add(f, 2); fm.skip(P.a1_xgap)
    stats_path(k, fy, A_ST, "sth", R.SA, 0, gap_of[(order[3], P.a1_sth)])
    k.per = dict(P.per_a1); k.bg_held = True
    b5 = batch(k, 5)
    mix = [(f, "s2", ("gw", 4), None) for f in batch(k, 4)] + [(f, "s2", ("gw", 5), None) for f in b5[:3]]
    ww = [(f, "s4", "wow", None) for f in wow(k)]
    while mix or ww:
        k.bg += ww[:2]; ww = ww[2:]
        if mix: k.bg.append(mix.pop(0))
    bg_batches(k, [0], "s2", lambda b: ("bar", order[3]))
    bg_batches(k, [1], "s2", lambda b: ("bar", "h"))
    bg_batches(k, [2, 3], "s2", lambda b: "wobar")
    bg_list(k, b5[3:], "s2", ("gw", 5), "wobar")
    if P.dn1_agpr:
        for j, f in enumerate(regloads(k, sDS, 16*1024, lambda j: ar(4*j, 4), 40, "dnr", tagf=lambda j: ("dnr", 8 + j // 2))): k.bg_add(f, "s4", ("dnr", 8 + j // 2), "gemm_done")
    bg_batches(k, [6, 7, 8, 9], "s2", lambda b: "gubar")
    A = lambda t: (accof(t) if t != "h" else None, accof(t) + 4, accof(t) + 8)
    for n in range(4): fix(k, R, fx, order[n], A(order[n]), gap_of[(order[n + 1], 1 if n < 3 else 2)], False)
    attn(k, R, fz, 3, R.ATT[0]); attn(k, R, fz2, 2, R.ATT[1]); ostore(k, fz2, 1)
    attn(k, R, fz, 1, R.ATT[0])
    fx.dep(("saw", "sth"))
    for f in fix_reads(k, R, "h", A_STA): fx.add(f)
    fx.dep("gemm_done")
    fix(k, R, fx, "h", A("h"), 0, False, pre=True); attn(k, R, fz2, 0, R.ATT[1]); ostore(k, fz2, 0)
    f3 = Flex(); f3.dep(("ost", 1)); f3.skip(P.l1_flag_delay)
    f3.add(lambda: (k.wait(vm=[("ost", 1)]), k.flag(1, 89), k.mark("oflag1")), 3)
    f3.dep(("attn", 0)); f3.add(lambda: wo_prepoll(k, 1))
    k.wait(vm=[("x", order[0])]); k.e("s_barrier")
    for i in range(4): xread(i)
    k.wait(lg=[("xf", 0)])
    k.stamp("a1 first")
    if k.stamping or P.jitter:
        for t in order[1:]: fixed.setdefault(gap_of[(t, 0)], []).append((0, lambda t=t: k.stamp(f"a1 t{t}")))
        for g in range(6, 224, 12): fixed.setdefault(g, []).append((0, lambda g=g: k.stamp(f"fina {g}")))
    run_gaps(k, mains, fixed, [fm, f3, fy, fx, fz2, fz], 2, over=lambda i: i >= P.a1_over)
    print("a11 left:", len(fm), len(fy), len(fx), len(fz), len(fz2), len(k.bg), {n: g for n, g in k.marks.items() if isinstance(n, tuple) and n[0] in ("fix", "attn", "saw", "ost")})
    k.mark("gemm_done"); k.bg_held = P.a1_tailhold
    k.stamp("a1 gemm")
    drain([fm, fy, fx, fz, fz2, f3], k)
    for n in range(2): assert k.marks[("fix", order[n])] < gap_of[(order[n + 3], 0)], "accumulator reused too early"
    k.stamp("a1 end")
P.a1_flag_gap, P.a1_late_gap, P.a1_poll_lead, P.l1_flag_delay, P.a1_over = 8, 36, 18, 14, 48
P.a1_bg_early = False; P.a1_salead = 8; P.a1_tailhold = True; P.touch1 = 1; P.t1_a1 = ''; P.t1_dn = ''; P.a1_xgap = 3; P.a1_sth = 4
P.per_a1 = {"s2": 80, "s4": 50}

R_W0, R_W1, R_RD, R_ST, R_OUT = 3, 4, 5, 6, 7
def RX(final): return vL16 if not P.x_out else (29 if final else R_OUT)
def red_setup(k, posA, dAB, final):
    x, y, z, u = 28, 29, 30, 31
    k.e(f"s_add_u32 s32, s{sGL}, {posA*16384}", f"v_add_u32 v{R_W0}, s32, v{vL16}", f"v_xor_b32 v{R_W1}, 128, v{R_W0}")
    k.e(f"v_and_b32 v{x}, 7, v1", f"v_lshrrev_b32 v{y}, 3, v1", f"s_lshl_b32 s32, s{sW}, 7", f"v_lshl_add_u32 v{z}, v{x}, 4, s32",
        f"v_bfe_u32 v{u}, v1, 4, 1", f"v_lshlrev_b32 v{R_RD}, 7, v{u}", f"v_xor_b32 v{z}, v{z}, v{R_RD}",
        f"v_bfe_u32 v{R_RD}, v1, 3, 2", f"v_lshl_add_u32 v{z}, v{R_RD}, 10, v{z}", f"v_lshrrev_b32 v{R_RD}, 5, v1",
        f"v_mul_u32_u24 v{R_RD}, {dAB*16384}, v{R_RD}", f"v_add_u32 v{z}, v{z}, v{R_RD}", f"v_add_u32 v{R_RD}, {posA*16384}, v{z}")
    k.e(f"v_lshlrev_b32 v{z}, 4, v{x}", f"v_lshl_add_u32 v{z}, v{u}, 2, v{z}", f"v_and_b32 v{u}, 0x28, v1",
        f"v_cmp_eq_u32 vcc, 0, v{u}", f"v_mov_b32 v{u}, {OOB:#x}", f"v_cndmask_b32 v{R_ST}, v{u}, v{z}, vcc")
    if final: k.e(f"v_lshlrev_b32 v{z}, 10, v{x}", f"v_lshl_add_u32 v{R_OUT}, v{y}, 4, v{z}")
    if P.x_out: k.e(f"v_lshlrev_b32 v{z}, 10, v{y}", f"v_lshl_add_u32 v{RX(final)}, v{x}, 4, v{z}")

def red_bases(k):
    k.e(f"s_lshl_b32 s32, s{sB}, 3", f"s_add_u32 s32, s32, s{sW}", "s_lshl_b32 s55, s32, 13", f"s_lshl_b32 s33, s{sCS}, {CSH()}", "s_add_u32 s55, s55, s33")
    k.e("s_lshl_b32 s57, s32, 13", f"s_lshl_b32 s33, s{sCS}, 7", "s_add_u32 s57, s57, s33")
    k.e(f"s_lshl_b32 s56, s{sB}, 12", f"s_lshr_b32 s33, s{sCS}, 1", "s_lshl_b32 s33, s33, 9", "s_add_u32 s56, s56, s33",
        f"s_and_b32 s33, s{sCS}, 1", "s_lshl_b32 s33, s33, 3", "s_add_u32 s56, s56, s33", f"s_lshl_b32 s33, s{sW}, 7", "s_add_u32 s56, s56, s33")

def red_writes(k, acc, g, off, dAB):
    return [lambda q=q: k.ds(f"ds_write_b128 v{R_W1 if (q>>1)&1 else R_W0}, {vr(acc+4*q,4)} offset:{off + (q>>2)*dAB*16384 + (q&3)*1024}", ("rw", g)) for q in range(8)]
def red_reads(k, g, T, off):
    return [lambda w=w, hf=hf: k.ds(f"ds_read_b128 {vr(T+8*w+4*hf,4)}, v{R_RD} offset:{off + w*4096 + hf*512}", ("rr", g, w)) for w in range(4) for hf in range(2)]

def red_finish(k, fx, g, mm, T, xdst, stdst, final, pk):
    a = lambda txt, c=1: fx.add(lambda: k.e(txt), c)
    R = RES + 4 * mm
    def add8(d, s):
        if pk:
            for i in range(0, 8, 2): a(f"v_pk_add_f32 {vr(d+i,2)}, {vr(d+i,2)}, {vr(s+i,2)}")
        else:
            for i in range(8): a(f"v_add_f32 v{d+i}, v{d+i}, v{s+i}")
    fx.add(lambda: k.wait(lg=[("rr", g, 1)]))
    add8(T, T + 8)
    for i in range(4): a(f"v_lshlrev_b32 v{T+8+2*i}, 16, v{R+i}"); a(f"v_and_b32 v{T+9+2*i}, 0xffff0000, v{R+i}")
    add8(T, T + 8)
    fx.add(lambda: k.wait(lg=[("rr", g, 3)]))
    add8(T + 16, T + 24); add8(T, T + 16)
    for i in range(4): a(f"v_cvt_pk_bf16_f32 v{R+i}, v{T+2*i}, v{T+2*i+1}")
    if final:
        fx.add(lambda: (k.e(f"s_add_u32 s32, s57, {mm*32768}"), k.vm(f"buffer_store_dwordx4 {vr(R,4)}, v{R_OUT}, {SRD_OUT}, s32 offen {P.outm[g]}", ("xst", g))))
        return
    fx.add(lambda: (k.e(f"s_add_u32 s32, s55, {xdst + mm*32768}"), k.dstore(f"buffer_store_dwordx4 {vr(R,4)}, v{RX(final)}, {XS()}, s32 offen", ("xst", g))), 2)
    s, q = T + 32, T + 33
    a(f"v_add_f32 v{s}, v{T}, v{T+1}"); a(f"v_mul_f32 v{q}, v{T}, v{T}"); a(f"v_fmac_f32 v{q}, v{T+1}, v{T+1}")
    for i in range(2, 8): a(f"v_add_f32 v{s}, v{s}, v{T+i}"); a(f"v_fmac_f32 v{q}, v{T+i}, v{T+i}")
    fx.skip(1)
    a(f"v_add_f32_dpp v{s}, v{s}, v{s} row_ror:8 row_mask:0xf bank_mask:0xf"); a(f"v_add_f32_dpp v{q}, v{q}, v{q} row_ror:8 row_mask:0xf bank_mask:0xf")
    fx.skip(1)
    a(f"v_permlane16_swap_b32 v{s}, v{q}", 2); a(f"v_add_f32 v{s}, v{s}, v{q}"); a(f"v_mov_b32 v{q}, v{s}"); fx.skip(1)
    a(f"v_permlane32_swap_b32 v{s}, v{q}", 2); a(f"v_add_f32 v{s}, v{s}, v{q}")
    fx.add(lambda: (k.e(f"s_add_u32 s32, s56, {stdst + mm*2048}"), k.dstore(f"buffer_store_dword v{s}, v{R_ST}, {SRD_WS}, s32 offen", ("xst", g)), k.mark(("xst", g))), 2)

def merge(k, fx, extra, first=0):
    extra = list(extra)
    items = [it for it in fx.items if it[0] != "skip"]; fx.items = []
    per = max(1, (len(items) - first) // max(1, len(extra)))
    for n, it in enumerate(items):
        if n >= first and (n - first) % per == 0 and extra: extra.pop(0)()
        it[1](); k.bg_step()
    for f in extra: f(); k.bg_step()

def wo(k, layer):
    BF, WQ, ACC, T, PA, NQ = 32, 160, 192, 208, A_PA, 8
    state = {}
    def bload(sx):
        k.set_s(f"s_add_u32 s58, s59, {(sx & ~1)*2048}")
        k.vm(f"buffer_load_dwordx4 {vr(BF+4*sx,4)}, v{W_OA}, {SRD_WS}, s58 offen offset:{(sx%2)*2048} sc1", ("b", sx))
    def wread(n): k.ds(f"ds_read_b128 {vr(WQ+4*(n%NQ),4)}, v{W_RB} offset:{n*1024}", ("wq", n))
    k.wait(vm=["wow"]); k.e("s_barrier"); k.mark("wobar")
    k.stamp("wl bar")
    for n in range(NQ): wread(n)
    btxt = lambda sx: [f"s_add_u32 s99, s59, {sx*2048}", f"buffer_load_dwordx4 {vr(BF+4*sx,4)}, v{W_OA}, {SRD_WS}, s99 offen sc1"]
    bchk = lambda sx: k.valid([f"v_cmp_eq_u32 vcc, -1, v{BF+4*sx}"], btxt(sx))
    ptxt = f"buffer_load_dword v{T+20}, v{T+21}, {SRD_WS}, s59 offen sc1"
    if P.tags:
        k.e(f"v_lshlrev_b32 v{T+21}, 8, v{PA}")
        k.e(f"v_or_b32 v{T+21}, v{T+21}, v{PA}", f"v_and_b32 v{T+21}, 0x80007c00, v{T+21}")
        k.poll_check(PA, "po1", 1)
        k.vm(ptxt, "probe")
        for sx in range(P.wo_spec): bload(sx)
        k.e(f"s_lshl_b32 s32, s{sC}, 1", f"s_and_b32 s33, s{sW}, 1", "s_add_u32 s32, s32, s33", "s_lshl_b32 s32, s32, 7", f"s_add_u32 s{sPO}, s32, {fl(layer, FL_O)}")
    else:
        k.e(f"s_add_u32 s{sFO}, s66, {fl(layer, FL_X1)}")
        k.codepf(96)
        if P.wo_setup_first == 2: gu_setup(k, layer)
        k.wait(vm=[("ost", 0)]); k.stamp("wl ack"); k.flag(2, 89)
        k.e(f"s_cmp_lt_u32 s{sW}, 2", f"s_cbranch_scc1 L_wo_late{layer}")
        q0 = list(k.vmq)
        k.poll_check(PA, "po1", 1)
        for sx in range(P.wo_lead): bload(sx)
        if P.wo_setup_first == 1: gu_setup(k, layer)
        k.e(f"s_branch L_wo_join{layer}")
        k.label(f"L_wo_late{layer}")
        k.vmq = list(q0)
        if P.wo_setup_first == 1: gu_setup(k, layer)
        k.poll_issue(PA, "po2"); k.poll_wait(PA, "po2", 2, 157); k.stamp("wl go")
        for sx in range(P.wo_lead): bload(sx)
        k.label(f"L_wo_join{layer}")
    if P.tags or not P.wo_setup_first: gu_setup(k, layer)
    k.stamp("wo issued")
    mains = []; fixed = {}
    for n in range(64):
        sx, j = divmod(n, 4)
        mains.append(lambda n=n, sx=sx, j=j: k.e(f"{MF16} {vr(ACC+4*j,4)}, {vr(WQ+4*(n%NQ),4)}, {vr(BF+4*sx,4)}, {'0' if sx == 0 else vr(ACC+4*j,4)}"))
        fl_ = fixed.setdefault(n, [])
        if n < 63: fl_.append((0, lambda n=n: k.wait(vm=[("b", (n + 1) // 4)] if (n + 1) % 4 == 0 else None, lg=[("wq", n + 1)])))
        if P.tags and n < 63 and (n + 1) % 4 == 0: fl_.append((1, lambda n=n: bchk((n + 1) // 4)))
        if P.tags and n == 42: fl_.append((1, lambda: k.poll_issue(PA, "px1")))
        if n + NQ < 64: fl_.append((1, lambda n=n: wread(n + NQ)))
        if n % P.wo_bstep == 0 and P.wo_lead + n // P.wo_bstep < 16: fl_.append((1, lambda n=n: bload(P.wo_lead + n // P.wo_bstep)))
    fx = Flex()
    a = lambda txt, c=1, at=0: fx.add(lambda: k.e(txt), c, at)
    fx.add(lambda: k.wait(vm=["res"]), 1, 8)
    for i in range(8): a(f"v_lshlrev_b32 v{T+2*i}, 16, v{RES+i}"); a(f"v_and_b32 v{T+2*i+1}, 0xffff0000, v{RES+i}")
    k.per = dict(P.per_wo[layer]); k.bg_held = False; k.bg_next = k.t + P.wo_bg_delay
    if P.tags:
        k.wait(vm=["probe"])
        k.valid([f"v_cmp_eq_u32 vcc, -1, v{T+20}"], [ptxt] + sum([btxt(x) for x in range(P.wo_spec)], []))
        state["fresh"] = True
        for sx in range(P.wo_spec, P.wo_lead): bload(sx)
    k.wait(vm=[("b", 0)], lg=[("wq", 0)])
    if P.tags: bchk(0)
    k.stamp("wo first")
    fixed[P.wo_bg_stop].append((0, lambda: setattr(k, "bg_held", True)))
    run_gaps(k, mains, fixed, [fx], 2)
    drain([fx], k)
    k.stamp("wo gemm")
    for i in range(0, 16, 2): k.e(f"v_pk_add_f32 {vr(T+i,2)}, {vr(T+i,2)}, {vr(ACC+i,2)}")
    for p in range(2):
        k.e(f"s_add_u32 s58, s64, {BX2() + (p << (2 + LSH()))}")
        for i in range(4): k.e(f"v_cvt_pk_bf16_f32 v{RES+4*p+i}, v{T+8*p+2*i}, v{T+8*p+2*i+1}")
        k.dstore(f"buffer_store_dwordx4 {vr(RES+4*p,4)}, v{W_UA}, {XS()}, s58 offen", "xst")
    S, Q = T + 16, T + 18
    k.e(f"v_pk_add_f32 {vr(S,2)}, {vr(T,2)}, {vr(T+2,2)}", f"v_pk_mul_f32 {vr(Q,2)}, {vr(T,2)}, {vr(T,2)}", f"v_pk_fma_f32 {vr(Q,2)}, {vr(T+2,2)}, {vr(T+2,2)}, {vr(Q,2)}")
    for i in range(4, 16, 2): k.e(f"v_pk_add_f32 {vr(S,2)}, {vr(S,2)}, {vr(T+i,2)}", f"v_pk_fma_f32 {vr(Q,2)}, {vr(T+i,2)}, {vr(T+i,2)}, {vr(Q,2)}")
    k.e(f"v_add_f32 v{S}, v{S}, v{S+1}", f"v_add_f32 v{Q}, v{Q}, v{Q+1}", f"s_add_u32 s58, s65, {BS1[layer]}",
        f"v_permlane16_swap_b32 v{S}, v{Q}", f"v_add_f32 v{S}, v{S}, v{Q}", f"v_mov_b32 v{Q}, v{S}", f"v_permlane32_swap_b32 v{S}, v{Q}", f"v_add_f32 v{S}, v{S}, v{Q}")
    k.dstore(f"buffer_store_dword v{S}, v{W_SA}, {SRD_WS}, s58 offen", "xst")
    key = lambda it: it[2][1] if (isinstance(it[2], tuple) and it[2][0] == "gw") else 11.5
    k.bg.sort(key=key)
    print(f"wo{layer} done, background left:", [it[2] for it in k.bg][::4])
    k.bg_burst(P.wo_win[layer])
    k.stamp("wo end")
P.wo_bg_delay = 750; P.wo_bg_stop = 63; P.wo_lead = 6; P.wo_spec = 3; P.gu_spec = 3; P.wo_bstep = 2
P.wo_poll_gap = 1; P.wo_late_gap = 7; P.wo_hold = True; P.wo_win = [4, 4]; P.wo_var = 'B'; P.wo_prew = 2
P.per_wo = [{"s2": 20, "s4": 20}] * 2

G_RB, G_C1, G_VV, G_AUG, G_X, G_ACC, G_WF, G_T = 3, 6, 7, 28, 32, 160, 224, 240
D_WV, D_BF, D_ACC, D_T, D_WF, D_RB, D_PA = 32, 64, 128, 192, 228, 112, 115
DN_SEQ = [(g, e) for g in range(2) for e in range(28)]
DN_GROUPS = [1, 0]
def h_loader(k, layer):
    def bload(i):
        if i == 0:
            k.e(f"s_mul_i32 s32, s{sB}, {224*KB}", f"s_mul_i32 s33, s{sW}, {28*KB}", "s_add_u32 s32, s32, s33", f"s_add_u32 s59, s32, {BH[layer]}")
            for p in range(4):
                k.e(f"s_add_u32 s32, s{sCS}, {p}", f"s_and_b32 s32, s32, {3 if P.hrot else 0}", f"s_mul_i32 s32, s32, {7*KB}", f"s_add_u32 s{34+p}, s59, s32")
                if not P.hrot: k.e(f"s_add_u32 s{34+p}, s{34+p}, {7*KB*p}")
        g, e = DN_SEQ[i]; p, tl = divmod(KK_OF[e], 7)
        k.set_s(f"s_add_u32 s58, s{34+p}, {DN_GROUPS[g] * 112 * KB + (tl & 4) * 1024}")
        k.vm(f"buffer_load_dwordx4 {vr(D_BF+4*(i%P.dn_lead),4)}, v{vL16}, {SRD_WS}, s58 offen offset:{(tl & 3)*1024} sc1", ("b", i))
    return bload

def gu_setup(k, layer):
    T = G_T; XA = T + 3
    k.e(*gu_tile("s50"))
    k.e(f"v_and_b32 v{T}, 31, v1")
    k.e(f"v_mov_b32 v{G_RB}, v{vL16}", f"v_add_u32 v{G_RB+1}, 0x10000, v{vL16}", f"v_add_u32 v{G_RB+2}, 0x20000, v{vL16}")
    k.e(f"v_lshrrev_b32 v{T+1}, 5, v1", f"v_lshlrev_b32 v{G_AUG+3}, 4, v{T}", f"v_lshl_add_u32 v{G_AUG+3}, v{T+1}, 10, v{G_AUG+3}")
    k.e(f"v_lshrrev_b32 v{XA}, 3, v{T}", f"v_lshlrev_b32 v{XA}, 13, v{XA}", f"v_lshl_add_u32 v{XA}, v{T+1}, {LSH()}, v{XA}",
        f"v_and_b32 v{T}, 7, v1", f"v_lshl_add_u32 v{XA}, v{T}, 4, v{XA}")
    k.e("s_lshl_b32 s32, s50, 11", f"s_add_u32 s51, s32, {BS1[layer]}")
    k.e("s_lshl_b32 s32, s50, 15", f"s_add_u32 s52, s32, {BX2()}", "s_add_u32 s53, s52, 4096")
    k.e(*h_base("s54", layer))
    k.e("s_lshr_b32 s32, s50, 1", "s_lshl_b32 s32, s32, 4", f"s_add_u32 s32, s32, s{sM}",
        "s_lshl_b32 s32, s32, 1", "s_and_b32 s33, s50, 1", "s_add_u32 s32, s32, s33", "s_lshl_b32 s32, s32, 2", f"s_add_u32 s81, s32, {fl(layer, FL_H)}")

def gu(k, layer):
    T = G_T; XA = T + 3; PA = T + 2
    if P.tags: k.poll_check(A_PA, "px1", 1)
    else:
        def pa():
            k.poll_addr(PA, 16)
            k.e("s_lshl_b32 s32, s50, 6", f"s_add_u32 s{sPO}, s32, {fl(layer, FL_X1)}")
        if not P.gu_pa_late: pa()
        k.wait(vm=["xst"]); k.flag(1)
        if P.gu_pa_late: pa()
        k.stamp("x1 flag")
        if not P.gu_bar_first: k.poll_issue(PA, "px1")
    k.e(f"s_mov_b32 s{sFO}, s81")
    seq = [(t, ks) for ks in range(33) for t in range(3)] + [(t, ks) for t in range(3, 7) for ks in range(33)]
    accof = {0: 0, 1: 1, 2: 2, 3: 3, 4: 0, 5: 1, 6: 2}
    NW = P.gu_nw
    WQ = [G_WF, G_WF + 4, G_WF + 8, G_WF + 12, T + 12]
    def wread(n):
        slot = (n % 160) * 1024
        k.ds(f"ds_read_b128 {vr(WQ[n%NW],4)}, v{G_RB + (slot>>16)} offset:{slot & 0xffff}", ("wf", n))
    BARS = P.gu_bars[layer]
    cover = lambda bi: [("gw", b) for b in range(bi, min([x for x in BARS if x > bi] + [15]))]
    def ringbar():
        k.wait(vm=cover(0)); k.e("s_barrier"); k.mark("gubar")
        for n in range(NW): wread(n)
    if P.gu_bar_first: ringbar(); k.poll_issue(PA, "px1")
    if not P.tags: k.poll_wait(PA, "px1", 1, 20)
    k.stamp("gu go")
    xoff = lambda kg: ((kg >> 2) << CSH()) + ((kg & 3) << (1 + LSH()))
    xtxt = lambda kg: f"buffer_load_dwordx4 {vr(G_X+4*kg,4)}, v{XA}, {XS()}, s{52 + (xoff(kg) >> 12)} offen offset:{xoff(kg) & 4095} sc1"
    def xload(kg): k.vm(xtxt(kg), ("gx", kg))
    xchk = lambda kg: k.valid([f"v_cmp_eq_u32 vcc, -1, v{G_X+4*kg}"], [xtxt(kg)])
    stxt = [f"buffer_load_dwordx4 {vr(T+4+4*h,4)}, v{G_AUG+3}, {SRD_WS}, s51 offen offset:{512*h} sc1" for h in range(2)]
    if P.tags:
        for t_ in stxt: k.vm(t_, "gst")
        for kg in range(P.gu_spec): xload(kg)
        k.wait(vm=["gst"])
        k.valid([f"v_max3_u32 v{T}, v{T+4}, v{T+6}, v{T+8}", f"v_max_u32 v{T}, v{T}, v{T+10}", f"v_cmp_eq_u32 vcc, -1, v{T}"],
                stxt + [xtxt(x) for x in range(P.gu_spec)])
        k.stamp("gu probe")
        for kg in range(P.gu_spec, P.gu_lead): xload(kg)
    else:
        for kg in range(P.gu_lead): xload(kg)
        for t_ in stxt: k.vm(t_, "gst")
    if not P.gu_bar_first: ringbar()
    mains = []; fixed = {}
    xpos = {}
    for kg in range(P.gu_lead, 32): xpos.setdefault(int((kg - P.gu_lead) * P.gu_xstep), []).append(kg)
    for n, (t, ks) in enumerate(seq):
        acc = G_ACC + 16 * accof[t]
        b = vr(G_AUG, 4) if ks == 32 else vr(G_X + 4*ks, 4)
        c = "0" if ks == 0 else vr(acc, 16)
        mains.append(lambda n=n, acc=acc, b=b, c=c: k.e(f"{MF32} {vr(acc,16)}, {vr(WQ[n%NW],4)}, {b}, {c}"))
        fl_ = fixed.setdefault(n, [])
        if n + 1 < len(seq):
            t2, ks2 = seq[n + 1]
            need = [("gx", ks2)] if (t2 == 0 and ks2 < 32) else None
            fl_.append((0, lambda n=n, need=need: k.wait(vm=need, lg=[("wf", n + 1)])))
            if need and P.tags: fl_.append((2, lambda ks2=ks2: xchk(ks2)))
        j = n + NW
        if j < len(seq):
            if j % 16 == 0 and j // 16 in BARS:
                fl_.append((2, lambda bi=j//16: (k.wait(vm=cover(bi)), k.e("s_barrier"), [k.mark(("gbar", b)) for b in range(bi + 1)])))
            fl_.append((1, lambda j=j: wread(j)))
        for kg in xpos.get(n, []): fl_.append((1, lambda kg=kg: xload(kg)))
    xend = max(xpos)
    tail = [it for it in k.bg if it[2] == "dna" or it[2][0] == "dnr"]; k.bg = [it for it in k.bg if not (it[2] == "dna" or it[2][0] == "dnr")]
    bg_batches(k, range(10, 15), "s2", lambda b: ("gbar", b - 8))
    first, ratio = P.gu_mix[layer]
    mid = k.bg[first:]; k.bg = k.bg[:first]; acc_ = 0.0
    while mid or tail:
        if mid: k.bg.append(mid.pop(0))
        acc_ += ratio
        while tail and (acc_ >= 1 or not mid): k.bg.append(tail.pop(0)); acc_ -= 1
    direct = layer == 1 and P.dn1_agpr
    if not direct: bg_batches(k, range(15, 23), "s4", lambda b: ("gbar", b - 8))
    k.per = dict(P.per_guA[layer]); k.bg_held = False; k.bg_next = k.t + P.gu_bg_delay
    fixed[xend].append((0, lambda: setattr(k, "per", dict(P.per_guB[layer]))))
    fv = Flex()
    dv = regloads(k, sDS, 48*1024, lambda j: vr(D_WV + 4*j, 4), 8, "dnv")
    k.hload = h_loader(k, layer)
    if direct: pass
    elif P.HPRE[layer]:
        bg_list(k, dv, "s4", "dnv", "xdead")
        fixed[207].append((0, lambda: k.mark("xdead")))
    else:
        for j, f in enumerate(dv): fv.add(f, 1, 198 + 2 + 3*j)
    fx = Flex()
    a = lambda txt, c=1, at=0: fx.add(lambda: k.e(txt), c, at)
    fx.add(lambda: k.wait(vm=["gst"]), 1, 3 * P.gu_lead)
    a(f"v_add_f32 v{T+4}, v{T+4}, v{T+6}"); a(f"v_add_f32 v{T+5}, v{T+5}, v{T+7}"); a(f"v_add_f32 v{T+8}, v{T+8}, v{T+10}"); a(f"v_add_f32 v{T+9}, v{T+9}, v{T+11}")
    a(f"v_add_f32 v{T+4}, v{T+4}, v{T+8}"); a(f"v_add_f32 v{T+5}, v{T+5}, v{T+9}"); fx.skip(1)
    a(f"v_permlane32_swap_b32 v{T+4}, v{T+5}", 2); a(f"v_add_f32 v{T+4}, v{T+4}, v{T+5}"); a(f"v_mov_b32 v{T+5}, v{T+4}"); fx.skip(1)
    a(f"v_permlane32_swap_b32 v{T+4}, v{T+5}", 2)
    ln_finish(a, T + 4, T + 5)
    a(f"v_mov_b32 v{G_VV}, v{T+5}")
    a(f"v_rsq_f32 v{G_C1}, v{T+5}", 2); a(f"v_cvt_pk_bf16_f32 v{G_AUG}, v{T+4}, v{T+4}"); a(f"v_mul_f32 v{G_C1}, {f2u(-LOG2E):#x}, v{G_C1}")
    a(f"v_and_b32 v{T+5}, 0xffff0000, v{G_AUG}"); a(f"v_sub_f32 v{T+5}, v{T+4}, v{T+5}"); a(f"v_mov_b32 v{G_AUG+2}, 0")
    a(f"v_cvt_pk_bf16_f32 v{G_AUG+1}, v{T+5}, v{G_AUG+2}"); a(f"v_mov_b32 v{G_AUG+3}, 0")
    fx.add(lambda: k.mark("aug"), 0)
    def epi(t, at):
        acc = G_ACC + 16 * accof[t]; hp = (T + 8, RES + 4)[t & 1]; E = T + 4
        if t >= 2: fx.dep(("hst", t - 2))
        if P.x_noepi: a("s_nop 0", 1, at)
        for i0 in range(0, 8 if not P.x_noepi else 0, 2):
            for i in (i0, i0 + 1): a(f"v_mul_f32 v{E+(i&1)}, v{G_C1}, v{acc+i}", 1, at)
            for i in (i0, i0 + 1): a(f"v_exp_f32 v{E+(i&1)}, v{E+(i&1)}", 2)
            for i in (i0, i0 + 1): a(f"v_mul_f32 v{E+2+(i&1)}, v{acc+i}, v{acc+8+i}")
            for i in (i0, i0 + 1): a(f"v_fma_f32 v{E+(i&1)}, v{E+(i&1)}, v{G_VV}, v{G_VV}")
            for i in (i0, i0 + 1): a(f"v_rcp_f32 v{E+(i&1)}, v{E+(i&1)}", 2)
            fx.skip(1)
            for i in (i0, i0 + 1): a(f"v_mul_f32 v{E+2+(i&1)}, v{E+2+(i&1)}, v{E+(i&1)}")
            a(f"v_cvt_pk_bf16_f32 v{hp+i0//2}, v{E+2}, v{E+3}")
        fx.add(lambda: k.mark(("epi", t)), 0)
        txt = f"buffer_store_dwordx4 {vr(hp,4)}, v{vL16}, {SRD_WS}, s{54 if t < 4 else 82} offen offset:{(t%4)*1024}"
        plain = (layer and P.h1_plain) or (not layer and P.h_touch0)
        if P.h_np > 1 and t < P.h_stag and not plain:
            fx.add(lambda: k.mark(("hrdy", t)), 0)
            fh.dep(("hrdy", t))
            for j in range(P.h_np):
                def pos(j=j):
                    n = k.nspin; k.nspin += 1
                    k.e(f"s_cmp_lg_u32 s83, {j}", f"s_cbranch_scc1 L_sk{n} ;np", txt + " sc1 ;opt", f"L_sk{n}: ;np")
                    if j == P.h_np - 1:
                        k.vmq.append(("hst", t)); k.seen.add(("hst", t)); k.phantom.add(("hst", t)); k.mark(("hst", t))
                fh.add(pos, P.h_cost)
                if j < P.h_np - 1: fh.skip(P.h_d)
            if t >= 2: pass
        else:
            k.phantom.discard(("hst", t))
            fx.add(lambda: ((k.dstore if plain else lambda x, tg: k.vm(x + " sc1", tg))(txt, ("hst", t)), k.mark(("hst", t))), 2)
    fh = Flex()
    k.e("s_add_u32 s82, s54, 4096", f"s_lshl_b32 s32, s{sW}, {max(P.h_np.bit_length() - 3, 0)}", f"s_add_u32 s32, s32, s{sM}", f"s_add_u32 s32, s32, s{sC}", f"s_and_b32 s83, s32, {P.h_np - 1}")
    end = {t: max(n for n, x in enumerate(seq) if x[0] == t) for t in range(7)}
    for t in range(6): epi(t, end[t] + 3)
    if layer == 0 and P.h_touch0 == "g": fixed[xend + 1].append((5, lambda: k.touch(T, "h", ["s_mov_b32 s32, s54"])))
    if layer == 1 and P.x1_clean:
        for p in range(2):
            fixed[P.x1_clean + 8*p].append((3, lambda p=p: (k.e(f"s_add_u32 s58, s64, {BX2()}"),
                k.vm(f"buffer_store_dwordx4 {vr(RES+4*p,4)}, v9999, {SRD_WS}, s58 offen offset:{p*512} sc1", "clean"))))
    ff = Flex(); ff.dep(("hst", 3))
    if layer == 0:
        tx = [lambda: k.touch(T, "p", [f"s_add_u32 s32, s55, {BX2()}"]), lambda: k.touch(T + 1, "s", [f"s_add_u32 s32, s56, {BS2()}"])]
        if P.x2_touch == "h3": ff.add(tx[0], 6); ff.add(tx[1], 4)
        elif isinstance(P.x2_touch, int): fixed[P.x2_touch].append((5, tx[0])); fixed[P.x2_touch + 1].append((4, tx[1]))
        if "g" in str(P.touch1):
            for f in touch_next(k, T + 2)[:2]: ff.skip(1); ff.add(f, 6)
    ff.skip(P.gu_flag_delay)
    ff.add(lambda: (k.wait(vm=[("hst", 3)]), k.flag(1)), 3)
    def hpoll():
        k.wait(vm=["touch"] if "touch" in k.seen else None)
        k.poll_addr(T, 8)
        k.e(f"s_lshl_b32 s32, s{sB}, 7", f"s_lshl_b32 s33, s{sW}, 5", "s_add_u32 s32, s32, s33", f"s_add_u32 s{sPO}, s32, {fl(layer, FL_H)}")
        k.poll_issue(T, "ph1")
    if P.HPRE[layer]:
        ff.add(hpoll, 4, P.hp_chk - 12)
        ff.add(lambda: (k.poll_check(T, "ph1", 1), setattr(k, "bg_held", True)), 3, P.hp_chk)
        for j in range(P.HPRE[layer]): ff.add(lambda j=j: k.hload(j), 2, max(208 + j, int(P.hp_chk + 1 + j * P.hp_step)))
    else: ff.add(hpoll, 4, 228)
    k.wait(vm=[("gx", 0)], lg=[("wf", 0)])
    if P.tags: xchk(0)
    k.stamp("gu first")
    if k.stamping or P.jitter:
        for g in (48, 98, 131, 164, 197): fixed[g].append((0, lambda g=g: k.stamp(f"gu m{g}")))
    fixed[93].append((0, lambda: k.marks["aug"]))
    run_gaps(k, mains, fixed, [fv, fh, ff, fx], P.gu_cap)
    print("gu left:", len(k.bg), len(fv), len(ff), len(fx), {n: g for n, g in k.marks.items() if isinstance(n, tuple) and n[0] == "hst"})
    k.stamp("gu gemm")
    for g, t in {132: 0, 165: 1, 198: 2}.items(): assert k.marks[("epi", t)] < g, "accumulator reused too early"
    epi(6, 0); drain([fh, ff, fv, fx], k)
    k.e(f"v_mov_b32 v{D_PA}, v{T}")
    k.stamp("gu end")
P.x2_touch = None; P.dn_x2 = 2; P.h_cost = 1; P.h_np = 1; P.h_d = 2; P.h_stag = 5; P.gu_mix = [(28, 1), (24, 1)]; P.hrot = 0; P.gu_bars = [list(range(15)), [0, 3, 6, 9, 12]]; P.HPRE = [0, 0]; P.hp_chk = 208; P.hp_step = 2.2; P.gu_flag_delay = 10; P.gu_xstep = 2.6; P.gu_bg_delay = 300
P.per_guA = [{"s2": 120, "s4": 120}, {"s2": 160, "s4": 160}]
P.per_guB = [{"s2": 90, "s4": 55}, {"s2": 80, "s4": 50}]

def dn(k, layer):
    final = layer == 1
    NB = P.dn_lead; T = D_T
    groups = DN_GROUPS; seq = DN_SEQ; bload = k.hload
    early = Flex()
    def rb(): k.e(f"v_add_u32 v{D_RB}, s{sGL}, v{vL16}", f"v_add_u32 v{D_RB+1}, 0x10000, v{D_RB}", f"v_add_u32 v{D_RB+2}, 0x20000, v{D_RB}")
    if P.HPRE[layer]:
        for i in range(P.HPRE[layer], NB): bload(i)
        rb()
        class Rec:
            def e(self, *t):
                if any("vcc" in x or "s32" in x for x in t): early.add(lambda: k.e(*t), len(t))
                else:
                    for x in t: early.add(lambda x=x: k.e(x))
        red_setup(Rec(), 3, 1, final)
        early.add(lambda: (k.wait(vm=[("hst", 6)]), k.flag(2), k.poll_issue(D_PA, "ph2"), k.e(f"s_add_u32 s{sFO}, s89, {FL_X2 - FL_O}")), 5, P.dn_fgap)
    else:
        k.poll_check(D_PA, "ph1", 1)
        k.stamp("dn early")
        k.bg_held = True
        for i in range(P.dn_pre): bload(i)
        red_setup(k, 3, 1, final); rb()
        k.wait(vm=[("hst", 6)]); k.flag(2)
        if P.dn_pollstep is None: k.poll_issue(D_PA, "ph2")
        for i in range(P.dn_pre, NB): bload(i)
        k.e(f"s_add_u32 s{sFO}, s89, {FL_X2 - FL_O}")
    k.per = dict(P.per_dn0); k.bg_held = False
    direct = final and P.dn1_agpr
    lds = [(i, nn) for i, (g, e) in enumerate(seq) if 8 <= e < 24 and not direct for nn in range(2)]
    slot_of = {x: n for n, x in enumerate(lds)}
    NWF = 6
    def wread(n):
        i, nn = lds[n]; j = 2 * (seq[i][1] - 8) + nn; b = 15 + (j >> 2)
        ad = (b % 10) * 16384 + (j & 3) * 1024
        if seq[i][0] == 0: k.wait(vm=[("gw", b)])
        k.ds(f"ds_read_b128 {vr(D_WF+4*(n%NWF),4)}, v{D_RB + (ad>>16)} offset:{ad & 0xffff}", ("wf", n))
    def wfrag(i, nn):
        e = seq[i][1]
        if e < 8: return ar(192 + 8*e + 4*nn, 4)
        if direct: return ar(8*(e - 8) + 4*nn, 4)
        if e >= 24: return vr(D_WV + 8*(e - 24) + 4*nn, 4)
        return vr(D_WF + 4*(slot_of[(i, nn)] % NWF), 4)
    mains = []; fixed = {}
    NT = P.dn_tail
    assert NT <= 4
    order = [(i, nn) for i in range(56 - NT) for nn in range(2)] + [(i, nn) for nn in range(2) for i in range(56 - NT, 56)]
    for pos, (i, nn) in enumerate(order):
        g, e = seq[i]
        if True:
            acc = D_ACC + 32 * g + 16 * nn
            mains.append(lambda i=i, nn=nn, acc=acc, e=e: k.e(f"{MF32} {vr(acc,16)}, {wfrag(i,nn)}, {vr(D_BF+4*(i%NB),4)}, {'0' if e == 0 else vr(acc,16)}"))
            gp = len(mains) - 1; fl_ = fixed.setdefault(gp, [])
            nx = order[pos + 1] if pos + 1 < len(order) else None
            vmn = [("b", nx[0])] if (nx and nx[1] == 0) else None
            lgn = [("wf", slot_of[nx])] if nx in slot_of else None
            if nx == (24, 0) and not direct: vmn = vmn + ["dnv"]
            if direct and nx and nx[0] in range(8, 28) and nx[1] == 0: vmn = vmn + [("dnr", nx[0])]
            fl_.append((0, lambda vmn=vmn, lgn=lgn: k.wait(vm=vmn, lg=lgn)))
            ah = (i + 2, nn)
            if ah in slot_of: fl_.append((1, lambda n=slot_of[ah]: wread(n)))
    nxt = NB; pend = 0
    for i in range(len(seq)):
        fl_ = fixed[2*i + 1]
        if i == P.DN_LATE[layer]: fl_.append((2, lambda: (k.poll_check(D_PA, "ph2", 2), k.stamp("dn late"), k.mark("late"))))
        n = 0
        while nxt < len(seq) and nxt <= i + NB and n < 2 and (nxt < 16 or i >= P.DN_LATE[layer]):
            fl_.append((1, lambda j=nxt: bload(j))); nxt += 1; n += 1
        if i == P.dn_pollstep and not P.HPRE[layer]: fl_.append((1, lambda: k.poll_issue(D_PA, "ph2")))
        if nxt == len(seq) and not pend: pend = 2*i + 2
    if not final: fixed[22].append((5, lambda: k.codepf(192)))
    fixed[20].append((1, lambda: k.e("s_barrier")))
    for mm in range(2):
        fixed[40 + 4*mm].append((2, lambda mm=mm: (k.e(f"s_add_u32 s32, s55, {BX2() + mm*32768}"),
                                                   k.vm(f"buffer_load_dwordx4 {vr(RES+4*mm,4)}, v{RX(final)}, {XS()}, s32 offen sc1", "res"))))
    fw = Flex(); fs = Flex()
    for q, f in enumerate(red_writes(k, D_ACC, 0, 0, 1)): fw.add(f, 1, 58 + 2*q)
    fw.add(lambda: (k.wait(lg=[("rw", 0)]), k.e("s_barrier")), 2, 76)
    for f in red_reads(k, 0, T, 0): fw.add(f, 2)
    fw.add(lambda: k.wait(vm=["res"]))
    red_finish(k, fw, 0, groups[0], T, BX2(), BS2(), final, False)
    if not final:
        fw.add(lambda: k.vm(f"buffer_store_dwordx4 {vr(RES+4,4)}, v{RX(final)}, {SRD_WS}, s72 offen sc1", "hxs"))
        fw.add(lambda: k.vm(f"buffer_store_dword v{T+32}, v{R_ST}, {SRD_WS}, s73 offen sc1", "hxs"))
        fw.skip(P.dn_flag_delay); fw.add(lambda: (k.wait(vm=[("xst", 0)]), k.flag(1)), 3)
        if P.x2_touch == "dn":
            fixed[P.dn_x2].append((5, lambda: k.touch(226, "p", [f"s_add_u32 s32, s55, {BX2()}"])))
            fixed[P.dn_x2 + 1].append((4, lambda: k.touch(227, "s", [f"s_add_u32 s32, s56, {BS2()}"])))
            fs.add(lambda: k.wait(vm=["touch"]), 1, P.dn_x2 + 2)
        for q, c in enumerate(P.t1_dn): fixed[P.dn_touch + 2*q].append((5, touch_next(k, 28)["oxs".index(c)]))
        fs.dep("late")
        for f in a11_bases(k) + a1_setup(k, 1): fs.add(f)
        fs.add(lambda: (k.poll_addr(A_PX, 32), k.e(f"s_lshl_b32 s32, s{sB}, 7", f"s_add_u32 s{sPO}, s32, {fl(0, FL_X2)}")), 4)
    wtail = red_writes(k, D_ACC + 32, 1, 2*16384, 1)
    if NT:
        for q in range(min(4, NT)): fixed[min(111, 112 - NT + 1 + q)].append((4, wtail.pop(0)))
    k.wait(vm=["dna", ("b", 0)])
    k.stamp("dn first")
    if k.stamping or P.jitter:
        fixed[55].append((0, lambda: k.stamp("dn p1")))
        for g in range(7, 111, 8): fixed[g].append((0, lambda g=g: k.stamp(f"find {g}")))
    run_gaps(k, mains, fixed, [early, fw, fs], 6)
    print("dn left:", len(k.bg), len(fw), len(fs), "last h load at gap", pend)
    k.stamp("dn gemm")
    assert not fs.items
    ws = wtail
    if not final and P.dn_fin_first != 2: ws.insert(len(ws) - 4, lambda: k.poll_issue(A_PX, "px0"))
    if not final and P.dn_fin_first == 2: ws.append(lambda: k.poll_issue(A_PX, "px0"))
    merge(k, fw, ws)
    k.wait(lg=[("rw", 1)]); k.e("s_barrier")
    k.stamp("dn red")
    for f in red_reads(k, 1, T, 2*16384): f()
    def nxt():
        k.poll_check(A_PX, "px0", 1)
        k.wait(vm=["hxs"]); k.flag(1, 91, "sc1")
        a11_early(k)
    if not final:
        k.bg_held = True
        if not P.dn_fin_first: nxt()
    f1 = Flex(); red_finish(k, f1, 1, groups[1], T, BX2(), BS2(), final, True)
    if not final and P.dn_fin_first == 2:
        ex = [lambda: k.poll_check(A_PX, "px0", 1)] + a11_early(k, True) + [lambda: (k.wait(vm=["hxs"]), k.flag(1, 91, "sc1"))]
        merge(k, f1, ex, P.dn_mfirst)
    else: drain([f1], k)
    if not final and P.dn_fin_first == 1: nxt()
    k.stamp("dn end")
P.dn_mfirst = 8; P.dn_pollstep = 0; P.dn_fin_first = 2; P.dn_tail = 0; P.dn_touch = 88; P.dn_flag_delay = 4; P.dn_pre = 6; P.DN_LATE = [9, 9]; P.dn_fgap = 6
P.dn_wow = 6; P.per_dn = {"s4": 110, "s2": 130}; P.per_dn0 = {"s4": 60, "s2": 60}

DOC = """
One persistent launch, 256 workgroups x 4 waves (one workgroup per CU, 512 registers per wave). Generated by gen/fused.py.
16 clusters of 16 workgroups own 128 tokens each; per layer: [LN + QKV + dilated attention] -> [out-proj + residual] -> [LN + gate/up + SwiGLU] -> [down + residual].
 - LayerNorm is applied as rstd * (x.W - mean * colsum(W)) in fp32; row statistics travel with the activations.
 - w_gate/w_up/w_down/wo are re-tiled once into MFMA fragment order in d_ws; W_qkv fragments stay in AGPRs for both layers.
 - attention runs on MFMA straight from the accumulators (true row max, exp2, normalisation by the summed weights).
 - hand-offs between workgroups: data, s_waitcnt, then a flag word; flags are zeroed by this launch and trusted only after a whole-grid
   rendezvous keyed by a launch tag published in d_debug. A cluster found on one die uses plain stores, any other placement writes through.
 - every spin has a bounded budget.
"""
def build(stamps=False, only=None):
    k = F(); k.stamping = stamps; k.only = only; k.st = P.dst; k.rt = P.rt
    name = NAME + "_kernel"
    k.e(".p2align 8", f".globl {name}", f".type {name},@function"); k.label(name)
    if stamps: k.e("s_memrealtime s[92:93]", "s_memtime s[94:95]")
    k.e("s_cmp_ge_u32 s2, 256", "s_cbranch_scc1 L_end")
    k.e("s_load_dwordx16 s[64:79], s[0:1], 0", "s_load_dwordx4 s[80:83], s[0:1], 64", "s_memrealtime s[96:97]")
    k.e("s_getpc_b64 s[100:101]")
    k.e("L_pc: ;np")
    k.e("v_and_b32 v1, 63, v0", "v_lshrrev_b32 v2, 6, v0", "s_lshr_b32 s33, s2, 3", "s_mul_i32 s32, s33, 43", "s_lshr_b32 s32, s32, 8",
        "s_mul_i32 s32, s32, 6", "s_sub_u32 s32, s33, s32", "s_lshl_b32 s32, s32, 13", "v_lshl_add_u32 v3, v2, 11, s32", "v_lshl_add_u32 v3, v1, 7, v3",
        "v_min_u32 v3, L_end-L_pc, v3", f"v_readfirstlane_b32 s{sW}, v2", "v_mov_b32 v5, s101", "v_add_co_u32 v4, vcc, s100, v3", "v_addc_co_u32 v5, vcc, 0, v5, vcc")
    if P.code0:
        k.e("s_mov_b64 exec, 0xffff")
        k.vm("global_load_dword v175, v[4:5], off", "code")
        k.e("s_mov_b64 exec, -1")
        if P.code1:
            k.e("v_lshlrev_b32 v3, 11, v2", "v_lshl_add_u32 v3, v1, 7, v3", "v_mov_b32 v5, s101", "v_add_co_u32 v4, vcc, s100, v3", "v_addc_co_u32 v5, vcc, 0, v5, vcc",
                "s_mov_b64 exec, 0xffff")
            k.vm("global_load_dword v174, v[4:5], off", "code")
            k.e("s_mov_b64 exec, -1")
    k.e("s_and_b32 s32, s2, 7", f"s_and_b32 s{sM}, s33, 15", "s_lshr_b32 s33, s33, 4", "s_lshl_b32 s32, s32, 1", f"s_add_u32 s{sC}, s32, s33")
    k.e(f"s_lshr_b32 s33, s{sM}, 3", f"s_lshl_b32 s{sB}, s{sC}, 1", f"s_add_u32 s{sB}, s{sB}, s33", f"s_and_b32 s{sCS}, s{sM}, 7")
    k.e("v_lshlrev_b32 v2, 4, v1")
    a10_lanes(k)
    k.e("s_waitcnt lgkmcnt(0)")
    srd(k, 12, 64, 2048 * 1024); srd(k, 16, 66, 512 * 3072)
    k.e(f"s_or_b32 s{sTAG}, s96, 1")
    if P.jitter: k.e("s_lshl_b32 s101, s2, 2", f"s_add_u32 s101, s101, s{sW}", "s_mul_i32 s101, s101, 2654435761", "s_add_u32 s101, s101, s96")
    if stamps:
        k.stamps += ["rt0", "start"]; k.e("v_writelane_b32 v0, s92, 0", f"v_writelane_b32 v0, s{92 if P.rt else 94}, 1")
    k.stamp("s kernarg")
    if P.pk_first == 1: pack_issue(k)
    k.stamp("s pkissue")
    run(a10_x(k, 0) + a10_w(k, 0))
    if P.pk_first == 0: pack_issue(k)
    srd(k, 28, 80, 256)
    k.e("v_cmp_eq_u32 vcc, 0, v1", f"v_mov_b32 v{vFA}, {OOB:#x}", f"s_or_b32 s32, s2, s{sW}", f"v_cndmask_b32_e64 v{vFA}, v{vFA}, 0, vcc",
        "s_cmp_eq_u32 s32, 0", f"s_cselect_b32 s32, 0, {OOB>>1:#x}", f"v_mov_b32 v170, s{sTAG}")
    k.vm(f"buffer_store_dword v170, v{vFA}, {SRD_DBG}, s32 offen sc1", "tagst")
    srd(k, 8, 82, WS_SIZE); srd(k, 20, 78, 2048 * 1024)
    for f in a1_setup(k, 0): f()
    o_bases(k, 0)
    a10_lanes2(k)
    k.e(f"v_mov_b32 v60, {OOB:#x}", "v_cmp_gt_u32 vcc, 8, v1", "v_mov_b32 v176, 0", "v_mov_b32 v177, 0", "v_mov_b32 v178, 0", "v_mov_b32 v179, 0",
        f"v_cndmask_b32 v173, v60, v{vL16}, vcc", "v_cmp_gt_u32 vcc, 16, v1", "s_nop 0",
        f"s_lshl_b32 s32, s{sC}, 4", f"v_cndmask_b32 v172, v60, v{vL16}, vcc")
    k.e(f"s_add_u32 s32, s32, s{sM}", "s_lshl_b32 s32, s32, 4",
        f"s_cmp_eq_u32 s{sW}, 0", f"s_cselect_b32 s32, s32, {OOB>>1:#x}", f"v_add_u32 v171, s32, v{vFA}", f"s_mov_b32 s{sBUD}, 400000")
    red_bases(k)
    k.e(f"s_lshl_b32 s{sGL}, s{sW}, 12", f"s_mul_i32 s{sGS}, s{sM}, {PGU_SLICE}", f"s_add_u32 s{sGS}, s{sGS}, s{sGL}", f"s_add_u32 s{sGS}, s{sGS}, {WS_PGU}")
    k.e(f"s_mul_i32 s32, s{sCS}, {224*KB}", f"s_mul_i32 s33, s{sW}, {56*KB}", "s_add_u32 s32, s32, s33", f"s_add_u32 s{sDS}, s32, {WS_PDN}")
    k.e(f"s_lshl_b32 s32, s{sCS}, 16", f"s_add_u32 s32, s32, s{sGL}", f"s_add_u32 s88, s32, {WS_PWO}")
    wo_bases(k)
    k.stamp("s setup")
    run(a10_w(k, 1))
    if P.pk_first == 2: pack_issue(k)
    k.e(f"s_getreg_b32 s{sXCC}, hwreg(HW_REG_XCC_ID, 0, 4)", f"s_mov_b32 s75, {WS_ARR}", f"s_lshl_b32 s77, s{sC}, 8", "s_add_u32 s77, s77, s75")
    if P.k_touch == -1:
        k.touch(157, "p", ["s_mov_b32 s32, s53"], False); k.touch(158, "q", [f"s_add_u32 s32, s64, {BX2()}"], False)
    k.stamp("s w01")
    def mid2():
        if P.k_first > 3: run(a10_w(k, 3))
        k.e("s_lshl_b32 s32, s2, 7")
        k.vm(f"buffer_store_dwordx4 v[176:179], v173, {SRD_WS}, s32 offen sc1", "zero")
        k.e("s_lshl_b32 s32, s2, 8", f"s_add_u32 s32, s32, {WS_HXF}")
        k.vm(f"buffer_store_dwordx4 v[176:179], v172, {SRD_WS}, s32 offen sc1", "zero")
    if P.k_pack is None: pack_process(k, lambda: run(a10_x(k, 1) + a10_w(k, 2)), mid2)
    else: run(a10_x(k, 1) + a10_w(k, 2)); mid2()
    k.vm(f"buffer_load_dword v170, v{vFA}, {SRD_DBG}, 0 offen sc1", "tag")
    k.stamp("s pkdone")
    a10_loop(k, P.k_first)
    a10_tail(k)
    wo(k, 0); gu(k, 0); dn(k, 0)
    if not P.half:
        k.marks = {m: g for m, g in k.marks.items() if False}
        k.seen = {t for t in k.seen if t in k.vmq or t in k.lgq or t in ("dna", "st0", ("x", 2), ("x", 3))}
        k.layer = 1
        a11_main(k)
        wo(k, 1)
        k.marks = {m: g for m, g in k.marks.items() if m in ("wobar", "gemm_done") or m[0] == "bar"}
        gu(k, 1); dn(k, 1)
    if P.verbose: print([(t, tag, f) for t, tag, f in k.bg_log if f])
    if stamps:
        k.e("s_waitcnt vmcnt(0)"); k.stamp("drained"); k.stamp("rt1", True)
        k.e("s_lshl_b32 s32, s2, 10", "s_lshl_b32 s33, s3, 8", "s_add_u32 s32, s32, s33",
            f"s_add_u32 s32, s32, {WS_STAMP}", "v_lshlrev_b32 v8, 2, v1", f"buffer_store_dword v0, v8, {SRD_WS}, s32 offen")
        if P.echo:
            a, b = P.echo
            n = len(k.stamps)
            k.e(f"v_readlane_b32 s32, v0, {a}", f"v_readlane_b32 s33, v0, {b if b >= 0 else n + b}", f"v_readlane_b32 s34, v0, {n-1}", "s_nop 3",
                "s_sub_u32 s33, s33, s32", "s_min_u32 s33, s33, 20000")
            k.label("L_echo")
            k.e("s_memrealtime s[36:37]", "s_waitcnt lgkmcnt(0)", "s_sub_u32 s36, s36, s34", "s_cmp_lt_u32 s36, s33", "s_cbranch_scc1 L_echo")
        if P.dbg:
            n = len(k.stamps)
            k.e("v_readlane_b32 s32, v0, 0", f"v_readlane_b32 s33, v0, {n-1}", "s_not_b32 s34, s32", "v_mov_b32 v4, s33", "v_mov_b32 v5, s34")
            k.e(f"buffer_atomic_umax v4, v{vFA}, {SRD_DBG}, 0 offen offset:4", f"buffer_atomic_umax v5, v{vFA}, {SRD_DBG}, 0 offen offset:8")
            k.e(f"s_cmp_eq_u32 s2, {P.dbg - 1}", f"s_cselect_b32 s35, 0, {OOB>>1:#x}", f"s_cmp_eq_u32 s{sW}, 0", f"s_cselect_b32 s35, s35, {OOB>>1:#x}")
            for i, wd in zip(range(2, n - 1), (3, 5, 6, 7, 9, 10, 11, 13, 14, 15)):
                k.e(f"v_readlane_b32 s33, v0, {i}", "s_sub_u32 s33, s33, s32", "v_mov_b32 v4, s33", f"buffer_store_dword v4, v{vFA}, {SRD_DBG}, s35 offen offset:{4*wd}")
    k.e("s_endpgm")
    k.flush_spins()
    k.label("L_end"); k.e("s_endpgm")
    src = open("cdna_kernels/%s.s.ref" % NAME).read().splitlines()
    out = [l for l in src if l.startswith(";") and "@launch" not in l]
    out.append(f"; @launch grid=(256,1,1) block=(256,1,1) lds={LDS_TOTAL}")
    out += ['.amdgcn_target "amdgcn-amd-amdhsa--gfx950"', ".text"]
    out += ["; " + l for l in DOC.strip().split("\n")]
    s = "\n".join(out) + "\n" + k.text(verbose=True) + '.section .rodata,"a"\n.p2align 6\n' + kd(name)
    from verify import verify
    assert not verify(s), "a register is used while a load into it is in flight"
    if P.align:
        from align import align
        s = align(s)
    return s, k.stamps
P.x_nobar = 0; P.x_noepi = 0; P.rt = 1; P.dbg = 0; P.h_touch0 = ''; P.outm = ('', ''); P.x1_clean = None; P.h1_plain = 0; P.tags = 0; P.echo = None; P.wo_setup_first = 2; P.gu_pa_late = 0; P.gu_bar_first = 0; P.flagbr = 0; P.rot = 0; P.pk_mod = 'nt'; P.x_mod = ''; P.w_mod = ''; P.t_mod = ''; P.pk_first = 1; P.dn1_agpr = 1; P.poll2 = 2; P.wt = (); P.inplace = 1; P.x_out = 0; P.o0_in_h = 0; P.code1 = 0; P.pk_xor = 0; P.gram1 = 0; P.jitter = 0; P.half = 0; P.tlb = 1; P.code0 = 1; P.verbose = 0; P.align = 1; P.gu_cap = 5; P.gu_nw = 5; P.k_touch = 15; P.k_gb = 13; P.k_chk = 16

if __name__ == "__main__":
    path = sys.argv[1] if len(sys.argv) > 1 else "cdna_kernels/%s.s" % NAME
    opts = sys.argv[2:]
    only = None
    for o in opts:
        if o.startswith("only="): only = [x for x in o[5:].split(",") if x]
        if o.startswith("P."):
            n, v = o[2:].split("="); setattr(P, n, eval(v))
    s, st = build(stamps="st" in opts, only=only)
    open(path, "w").write(s)
    if "st" in opts: json.dump([st], open(path + ".json", "w"))
```

```python
import sys, json
from common import *

MF16 = "v_mfma_f32_16x16x32_bf16"
MF16S = "v_mfma_f32_16x16x16_bf16"
MF32 = "v_mfma_f32_32x32x16_bf16"
vL16, vFV, vFA, vP = 2, 8, 9, 10
CSV, CSQ, CSK, RES = 11, 12, 16, 20
OOB = 0x80000000
FL_O, FL_X1, FL_H, FL_X2 = 0, 4096, 8192, 12288
FL_HX = 16384 + 12288
def fl(layer, off): return WS_FLAGS + 16384 * layer + off
sROT, sBUD, sGL, sGS, sDS = 84, 98, 60, 61, 85
sT0, sT1, sPO, sFO = 32, 33, 86, 87
sML, sMS = 68, 69
WS_HXF = WS_O0 - 0x10000 if False else WS_END
WS_ARR = WS_HXF + 0x10000
sTAG, sXCC = 91, 76
WS_STAMP = 0x2000000
L_SA0, L_SA1, L_XH0, L_CS = 80896, 97280, 81920, 79872
def e_of(kk):
    p, tl = divmod(kk, 7)
    return 4 * p + tl if tl < 4 else 16 + 3 * p + (tl - 4)
KK_OF = {e_of(kk): kk for kk in range(28)}

class P:
    a1_bg_start, a1_bg_step = 30, 6
    gu_lead = 9
    gu_bg_start, gu_bg_step = 50, 2.6
    dn_lead = 12
    bgm = ""
    sleep = 0
    drop = ()
    codepf = 0
    ld = "sc1"
    dst = "sc1"
    safe = False
    plain = True
    notouch = ()

BO, BX1, BS1, BH = [WS_O[0]] * 2, [WS_X[0]] * 2, [WS_ST[0]] * 2, [WS_H[0]] * 2
def BX2(): return 0 if P.x_out else (WS_X[0] if P.inplace else WS_X[1])
def XS(): return SRD_OUT if P.x_out else SRD_WS
def LSH(): return 10 if P.x_out else 7
def CSH(): return 7 if P.x_out else 10
def BS2(): return WS_ST[0] if P.inplace else WS_ST[1]
def o_block(d, layer):
    if (layer or P.o0_in_h) and P.inplace: return [f"s_mul_i32 {d}, s{sB}, {224*KB}", f"s_add_u32 {d}, {d}, {BH[0]}"]
    return [f"s_lshl_b32 {d}, s{sB}, 16", f"s_add_u32 {d}, {d}, {BO[layer]}"]
def o_line(layer):
    return [f"s_lshl_b32 s32, s{sB}, 16", f"s_lshl_b32 s33, s{sCS}, 2", f"s_add_u32 s33, s33, s{sW}", "s_lshl_b32 s33, s33, 10",
            "s_add_u32 s32, s32, s33", f"s_add_u32 s32, s32, {BO[layer]}"]
def touch_next(k, t):
    return [lambda: k.touch(t, "p", o_line(1)), lambda: k.touch(t + 1, "q", [f"s_add_u32 s32, s64, {BX2()}"]),
            lambda: k.touch(t + 2, "t", [f"s_add_u32 s32, s65, {BS1[1]}"])]
def gu_tile(d):
    return [f"s_lshl_b32 {d}, s{sC}, 1", f"s_and_b32 s33, s{sW}, 1", f"s_add_u32 {d}, {d}, s33", f"s_lshl_b32 {d}, {d}, 1", f"s_lshr_b32 s33, s{sW}, 1", f"s_add_u32 {d}, {d}, s33"]
def h_base(d, layer):
    return gu_tile(d) + [f"s_mul_i32 {d}, {d}, 112", f"s_mul_i32 s33, s{sM}, 7",
            f"s_add_u32 {d}, {d}, s33", f"s_lshl_b32 {d}, {d}, 10", f"s_add_u32 {d}, {d}, {BH[layer]}"]

class F(K):
    def __init__(self):
        super().__init__(); self.spins = []; self.nspin = 0; self.st = ""; self.npf = 0; self.layer = 0
    def poll_issue(self, va, tag): self.vm(f"buffer_load_dword v{vP}, v{va}, {SRD_WS}, s{sPO} offen sc1", tag)
    def poll_addr(self, va, nl, sh=2):
        self.e(f"v_cmp_gt_u32 vcc, {nl}, v1", f"v_lshlrev_b32 v{va}, {sh}, v1", f"v_mov_b32 v{vP}, {OOB:#x}", f"v_cndmask_b32 v{va}, v{vP}, v{va}, vcc")
        self.nl = nl
    def poll_check(self, va, tag, thr):
        n = self.nspin; self.nspin += 1
        self.stamp(f"poll<{tag}")
        self.wait(vm=[tag])
        self.stamp(f"poll={tag}")
        msk = f"s_and_b32 s99, vcc_lo, {(1 << self.nl) - 1:#x}"
        self.e(f"v_cmp_gt_u32 vcc, {thr}, v{vP}", msk, f"s_cbranch_scc1 L_spin{n} ;np", f"L_back{n}: ;np")
        self.stamp(f"poll>{tag}")
        self.spins += [f"L_spin{n}:", f"s_sub_u32 s{sBUD}, s{sBUD}, 1", f"s_cbranch_scc1 L_give{n}"] + ([f"s_sleep {P.sleep}"] if P.sleep else []) + [
                       f"buffer_load_dword v{vP}, v{va}, {SRD_WS}, s{sPO} offen sc1", "s_waitcnt vmcnt(0)",
                       f"v_cmp_gt_u32 vcc, {thr}, v{vP}", msk, f"s_cbranch_scc1 L_spin{n}", f"s_branch L_back{n}",
                       f"L_give{n}:", f"s_mov_b32 s{sBUD}, 0", f"s_branch L_back{n}"]
    def poll_wait(self, va, tag, thr, alt):
        if not P.poll2:
            self.poll_check(va, tag, thr); return
        n = self.nspin; self.nspin += 1
        ld = lambda r: f"buffer_load_dword v{r}, v{va}, {SRD_WS}, s{sPO} offen sc1"
        tst = lambda r: [f"v_cmp_gt_u32 vcc, {thr}, v{r}", f"s_and_b32 s99, vcc_lo, {(1 << self.nl) - 1:#x}"]
        self.e(f"s_sleep {P.poll2}")
        self.vm(ld(alt), "polljunk")
        self.wait(vm=[tag])
        self.e(*tst(vP)); self.e(f"s_cbranch_scc1 L_spin{n} ;np", f"L_back{n}: ;np")
        self.spins += [f"L_spin{n}:", f"s_sub_u32 s{sBUD}, s{sBUD}, 1", f"s_cbranch_scc1 L_give{n}",
                       ld(vP), "s_waitcnt vmcnt(1)"] + tst(alt) + [f"s_cbranch_scc0 L_back{n}", ld(alt), "s_waitcnt vmcnt(1)"] + tst(vP) + \
                      [f"s_cbranch_scc1 L_spin{n}", f"s_branch L_back{n}", f"L_give{n}:", f"s_mov_b32 s{sBUD}, 0", f"s_branch L_back{n}"]
    def flag(self, val, soff=sFO, st=None):
        self.e(f"v_mov_b32 v{vFV}, {val}")
        if st is not None:
            self.vm(f"buffer_store_dword v{vFV}, v{vFA}, {SRD_WS}, s{soff} offen {st}", "flag"); return
        if P.flagbr:
            self.dstore(f"buffer_store_dword v{vFV}, v{vFA}, {SRD_WS}, s{soff} offen", "flag", True); return
        self.e(f"s_or_b32 s99, s{soff}, s{sML}")
        self.vm(f"buffer_store_dword v{vFV}, v{vFA}, {SRD_WS}, s99 offen", "flag")
        self.e(f"s_or_b32 s99, s{soff}, s{sMS}")
        self.vm(f"buffer_store_dword v{vFV}, v{vFA}, {SRD_WS}, s99 offen sc1", "flag")
    def dstore(self, text, tag, always=False):
        kind = tag[0] if isinstance(tag, tuple) else tag
        if (not P.plain or (self.layer, kind, isinstance(tag, tuple)) in P.wt) and not always:
            self.vm(text + " sc1", tag); return
        n = self.nspin; self.nspin += 1
        self.e(f"s_cmp_lg_u32 s{sML}, 0", f"s_cbranch_scc1 L_alt{n} ;np")
        self.vm(text, tag)
        self.e(f"L_back{n}: ;np")
        self.spins += [f"L_alt{n}:", "s_nop 4", text + " sc1", f"s_branch L_back{n}"]
    def valid(self, test, reload):
        n = self.nspin; self.nspin += 1
        self.e(*test); self.e(f"s_cbranch_vccnz L_rl{n} ;np", f"L_back{n}: ;np")
        self.spins += [f"L_rl{n}:", f"s_sub_u32 s{sBUD}, s{sBUD}, 1", f"s_cbranch_scc1 L_give{n}"] + reload + ["s_waitcnt vmcnt(0)"] + test + \
                      [f"s_cbranch_vccnz L_rl{n}", f"s_branch L_back{n}", f"L_give{n}:", f"s_mov_b32 s{sBUD}, 0", f"s_branch L_back{n}"]
    def touch(self, tmp, kind, base_expr, masked=True):
        if not P.plain or kind in P.notouch: return
        nl = {"p": 16, "q": 16, "s": 2, "t": 2, "h": 56}[kind]
        self.e(f"v_cmp_gt_u32 vcc, {nl}, v1")
        if kind in "pq": self.e(f"v_lshrrev_b32 v{tmp}, 3, v1", f"v_lshlrev_b32 v{tmp}, {15 if kind == 'p' else 13}, v{tmp}", f"v_and_b32 v{vFV}, 7, v1", f"v_lshl_add_u32 v{tmp}, v{vFV}, {LSH() if kind == 'q' else 7}, v{tmp}")
        else: self.e(f"v_lshlrev_b32 v{tmp}, {11 if kind == 's' else 7}, v1")
        self.e(f"v_mov_b32 v{vFV}, {OOB:#x}", *base_expr)
        self.e(f"v_cndmask_b32 v{tmp}, v{vFV}, v{tmp}, vcc")
        if masked: self.e(f"s_or_b32 s32, s32, s{sML}")
        self.vm(f"buffer_load_dword v{tmp}, v{tmp}, {XS() if kind == 'q' else SRD_WS}, s32 offen {P.t_mod}", "touch")
    def vm(self, text, tag=None):
        kind = tag[0] if isinstance(tag, tuple) else tag
        if kind in P.drop:
            self.seen.add(tag); return
        super().vm(text, tag)
    def codepf(self, t):
        if not P.codepf: return
        n = self.npf; self.npf += 1
        self.e(f"L_pf{n}: ;np", f"s_lshl_b32 s32, s{sW}, 12", f"s_add_u32 s32, s32, L_pf{n}-L_pc", f"v_lshl_add_u32 v{t+2}, v1, 7, s32", f"v_min_u32 v{t+2}, L_end-L_pc, v{t+2}",
               f"v_mov_b32 v{t+1}, s101", f"v_add_co_u32 v{t}, vcc, s100, v{t+2}", f"v_addc_co_u32 v{t+1}, vcc, 0, v{t+1}, vcc", "s_mov_b32 exec_hi, 0")
        self.vm(f"global_load_dword v{t+2}, v[{t}:{t+1}], off", "code")
        self.e("s_mov_b64 exec, -1")
    def stamp(self, name, real=False):
        if P.jitter and not name.startswith("s ") and not name.startswith("fin"):
            n = self.nspin; self.nspin += 1
            self.e("s_mul_i32 s101, s101, 1103515245", f"s_add_u32 s101, s101, {12345 + n}", "s_lshr_b32 s100, s101, 20", f"s_and_b32 s100, s100, {P.jitter}",
                   "s_lshr_b32 s99, s101, 28", "s_cmp_lt_u32 s99, 5", f"s_cbranch_scc0 L_j{n}e ;np", f"L_j{n}: ;np", "s_sleep 3", "s_sub_u32 s100, s100, 1",
                   f"s_cbranch_scc0 L_j{n} ;np", f"L_j{n}e: ;np")
        super().stamp(name, real)
    def flush_spins(self):
        for l in self.spins: self.e(l)
        self.spins = []

def batch(k, i):
    src = f"s_add_u32 s62, s{sGS}, {i*16384}" if i < 15 else f"s_add_u32 s62, s{sDS}, {(16 + 4*(i-15))*1024}"
    def f(q):
        k.set_m0(f"s_add_u32 m0, s{sGL}, {(i % 10)*16384}")
        if i != 14: k.set_s(src)
        elif k.last.get(62) != f"s_cselect_b32 s62, {OOB>>1:#x}, s62":
            k.e(src, f"s_cmp_ge_u32 s{sW}, 2", f"s_cselect_b32 s62, {OOB>>1:#x}, s62")
        k.vm(f"buffer_load_dwordx4 v{vL16}, {SRD_WS}, s62 offen offset:{q*1024} {P.bgm} lds", ("gw", i))
    return [lambda q=q: f(q) for q in range(4)]

def bg_batches(k, bs, period, dep=lambda b: None):
    for b in bs:
        for f in batch(k, b): k.bg_add(f, period, ("gw", b), dep(b))
def bg_list(k, fns, period, tag, dep=None):
    for f in fns: k.bg_add(f, period, tag, dep)

def regloads(k, base_sgpr, off, dst, n, tag, tmp=63, tagf=None):
    fns = []
    for j in range(n):
        def f(j=j):
            k.set_s(f"s_add_u32 s{tmp}, s{base_sgpr}, {off + (j & ~3)*1024}")
            k.vm(f"buffer_load_dwordx4 {dst(j)}, v{vL16}, {SRD_WS}, s{tmp} offen offset:{(j%4)*1024} {P.bgm}", tagf(j) if tagf else tag)
        fns.append(f)
    return fns
def wow(k):
    def f(i, q):
        k.set_m0(f"s_add_u32 m0, s{sGL}, {(6 + i)*16384}"); k.set_s(f"s_add_u32 s63, s88, {i*16384}")
        k.vm(f"buffer_load_dwordx4 v{vL16}, {SRD_WS}, s63 offen offset:{q*1024} lds", "wow")
    return [lambda i=i, q=q: f(i, q) for i in range(4) for q in range(4)]

def pack_issue(k):
    k.e(f"s_xor_b32 s99, s2, {P.pk_xor}")
    for r in (68, 69, 72, 73, 74, 75, 76, 77): assert k.writer[r].startswith("s_load"), f"kernel argument s{r} overwritten"
    k.e("v_lshrrev_b32 v44, 3, v1", "v_and_b32 v43, 7, v1", "v_and_b32 v45, 2, v44", "v_lshlrev_b32 v45, 1, v45",
        "v_xor_b32 v43, v43, v45", "v_lshlrev_b32 v43, 4, v43", f"s_add_u32 s34, s49, {L_X + 4096}")
    k.e("s_cmp_ge_u32 s99, 112", "s_cbranch_scc1 L_pki_small")
    k.e("s_and_b32 s35, s99, 1", "s_bfe_u32 s36, s99, 0x10001", "s_lshr_b32 s37, s99, 2")
    k.e("s_cmp_eq_u32 s35, 0", "s_cselect_b32 s24, s72, s74", "s_cselect_b32 s25, s73, s75",
        f"s_mov_b32 s26, {512*3584:#x}", "s_mov_b32 s27, 0x20000")
    k.e("v_mul_u32_u24 v46, 3584, v44", "v_add_u32 v46, v46, v43")
    k.e("s_lshl_b32 s38, s36, 2", f"s_add_u32 s38, s38, s{sW}", f"s_mul_i32 s38, s38, {64*3584}",
        "s_lshl_b32 s39, s37, 7", "s_add_u32 s38, s38, s39")
    for i in range(8):
        k.e(f"s_add_u32 m0, s34, {(i>>2)*8192 + (i&3)*1024}", f"s_add_u32 s39, s38, {i*8*3584}", f"buffer_load_dwordx4 v46, {SRD_PK}, s39 offen {P.pk_mod} lds")
    k.e("s_branch L_pki_done")
    k.label("L_pki_small")
    k.e("s_sub_u32 s35, s99, 112", "s_lshl_b32 s35, s35, 3", f"s_lshl_b32 s36, s{sW}, 1", "s_add_u32 s35, s35, s36")
    k.e("s_cmp_lt_u32 s35, 896", "s_cselect_b32 s24, s76, s68", "s_cselect_b32 s25, s77, s69", f"s_mov_b32 s26, {512*1024:#x}",
        f"s_cselect_b32 s26, {1792*1024:#x}, s26", "s_mov_b32 s27, 0x20000", "s_cselect_b32 s37, 1, 0",
        "s_movk_i32 s38, 896", "s_cselect_b32 s38, 0, s38")
    k.e("s_cselect_b32 s39, 0, 1", "s_cselect_b32 s70, 14, 15", "s_movk_i32 s71, 0x4000", "s_cselect_b32 s71, 0x80, s71")
    k.e("s_sub_u32 s35, s35, s38", "s_lshr_b32 s35, s35, s39", "s_and_b32 s36, s35, 7", "s_lshr_b32 s35, s35, 3")
    k.e("v_lshl_add_u32 v46, v44, 10, v43", "s_lshl_b32 s38, s35, s70", "s_lshl_b32 s39, s36, 7", "s_add_u32 s38, s38, s39")
    for i in range(2):
        for h in range(2):
            k.e(f"s_add_u32 m0, s34, {(2*i+h)*1024}", f"s_add_u32 s39, s38, {h*8192}", f"buffer_load_dwordx4 v46, {SRD_PK}, s39 offen {P.pk_mod} lds")
        if i == 0: k.e("s_add_u32 s38, s38, s71")
    k.label("L_pki_done")
    k.vmq.append("pk"); k.seen.add("pk")

PQ = [76, 80, 84, 88, 92, 96, 36, 40]
def pack_process(k, mid1, mid2):
    k.e("v_bfe_u32 v46, v1, 2, 2", "v_and_b32 v47, 3, v1", "v_bfe_u32 v48, v1, 4, 1", "v_lshrrev_b32 v49, 5, v1")
    k.e("v_and_b32 v50, 2, v46", "v_add_u32 v50, v50, v48", "v_lshlrev_b32 v50, 5, v50",
        "v_lshl_add_u32 v50, v46, 7, v50", "v_lshl_add_u32 v50, v47, 3, v50", "v_add_u32 v50, s34, v50")
    k.e("s_cmp_ge_u32 s99, 112", "s_cbranch_scc1 L_pk_small")
    q0 = list(k.vmq)
    k.e("v_lshl_add_u32 v56, v49, 10, v50", "v_xor_b32 v57, 64, v56")
    k.e("s_lshl_b32 s39, s37, 2", "v_add_u32 v58, s39, v48")
    k.e("s_lshl_b32 s70, s36, 2", f"s_add_u32 s70, s70, s{sW}", "s_lshl_b32 s70, s70, 2")
    k.e("v_and_b32 v66, 15, v1", "s_lshl_b32 s71, s35, 8", "v_lshl_add_u32 v66, v66, 4, s71")
    for p in range(2):
        T, fs, tl, st_, b, aug = 59, 60, 61, 62 + p, 64 + p, 68 + p
        k.e(f"v_add_u32 v{T}, {2*p}, v58", f"v_mul_u32_u24 v{fs}, 9363, v{T}", f"v_lshrrev_b32 v{fs}, 16, v{fs}",
            f"v_mul_u32_u24 v{tl}, 7, v{fs}", f"v_sub_u32 v{tl}, v{T}, v{tl}")
        k.e(f"v_cmp_gt_u32 vcc, 3, v{tl}", f"v_mul_u32_u24 v67, 33, v{tl}", f"v_mov_b32 v{st_}, 1", "v_mov_b32 v70, 3",
            f"v_cndmask_b32 v67, v67, v{tl}, vcc", f"v_cndmask_b32 v{st_}, v{st_}, v70, vcc")
        k.e(f"v_mul_u32_u24 v{fs}, 231, v{fs}", f"v_add_u32 v67, v67, v{fs}")
        k.e(f"v_lshl_add_u32 v70, v{st_}, 5, v67", "v_lshlrev_b32 v70, 10, v70", "v_add_u32 v70, v70, v66",
            "s_lshl_b32 s71, s36, 9", f"v_add_u32 v{aug}, s71, v70")
        k.e(f"v_mul_lo_u32 v70, v{st_}, s70", "v_add_u32 v67, v67, v70", "v_lshlrev_b32 v67, 10, v67",
            "v_add_u32 v67, v67, v66", f"v_lshl_add_u32 v{b}, v49, 9, v67", f"v_lshlrev_b32 v{st_}, 10, v{st_}")
    k.e("v_mov_b32 v71, 0x3f803f80", "v_mov_b32 v72, 0", "v_mov_b32 v73, 0", "v_cmp_gt_u32 vcc, 32, v1", "v_mov_b32 v46, 0", "v_mov_b32 v47, 0",
        "v_cndmask_b32 v68, v69, v68, vcc", f"s_lshl_b32 s72, s{sW}, 8", "s_add_u32 s72, s72, 0x10000", "v_lshl_add_u32 v74, v1, 2, s72",
        "v_lshlrev_b32 v75, 2, v1", "v_add_u32 v75, 0x10000, v75")
    k.e(f"s_mov_b32 s70, {WS_PGU}", "s_mov_b32 s71, s70", "s_mov_b32 s72, s70", "s_mov_b32 s73, s70", f"s_cmp_eq_u32 s{sW}, 0", f"s_cselect_b32 s74, s70, {OOB>>1:#x}")
    k.wait(vm="pk")
    for ks in range(4):
        for p in range(2):
            for j in range(2): k.ds(f"ds_read_b64_tr_b16 {vr(PQ[2*ks+p]+2*j,2)}, v{56+p} offset:{(ks>>1)*8192 + (ks&1)*2048 + j*512}", ("t", ks, p))
        if ks == 2: k.wait(lg=[("t", 0, 1)])
    mid1()
    for ks in range(4):
        for p in range(2):
            k.wait(lg=[("t", ks, p)])
            for d in range(4): k.e(f"v_dot2c_f32_bf16 v{72+p}, v{PQ[2*ks+p]+d}, v71")
    k.e("v_permlane32_swap_b32 v72, v73", "v_add_f32 v72, v72, v73")
    k.ds(f"ds_write_b32 v74, v72 offset:{L_CS - 65536}")
    k.wait(lg="all"); k.e("s_barrier")
    for w in range(4): k.ds(f"ds_read_b32 v{56+w}, v75 offset:{L_CS - 65536 + 256*w}")
    mid2()
    k.wait(lg="all")
    k.e("v_add_f32 v56, v56, v57", "v_add_f32 v58, v58, v59", "v_add_f32 v56, v56, v58")
    k.e("v_cvt_pk_bf16_f32 v45, v56, v46", "v_lshlrev_b32 v57, 16, v45", "v_sub_f32 v57, v56, v57", "v_cvt_pk_bf16_f32 v44, v56, v57")
    k.e("s_branch L_pk_done")
    k.label("L_pk_small")
    k.vmq = list(q0)
    k.e(f"v_mov_b32 v64, v{vL16}", f"v_add_u32 v65, 1024, v{vL16}", f"v_mov_b32 v68, v{vL16}", f"s_mov_b32 s72, {OOB>>1:#x}", "s_mov_b32 s73, s72", "s_mov_b32 s74, s72")
    k.e("s_cmp_eq_u32 s37, 0", "s_cbranch_scc1 L_pk_wo")
    k.e("s_mul_i32 s38, s35, 2341", "s_lshr_b32 s38, s38, 16", "s_mul_i32 s39, s38, 28", "s_sub_u32 s39, s35, s39",
        "s_mul_i32 s70, s39, 9363", "s_lshr_b32 s70, s70, 16", "s_mul_i32 s71, s70, 7", "s_sub_u32 s71, s39, s71")
    for u in range(2):
      k.e(f"s_sub_u32 s39, s70, s36" if P.hrot else "s_mov_b32 s39, s70", f"s_sub_u32 s39, s39, {u if P.hrot else 0}", "s_and_b32 s39, s39, 3",
        "s_lshl_b32 s32, s39, 2", "s_add_u32 s32, s32, s71", "s_mul_i32 s33, s39, 3", "s_add_u32 s33, s33, s71", "s_add_u32 s33, s33, 12",
        "s_cmp_lt_u32 s71, 4", "s_cselect_b32 s32, s32, s33", "s_mul_i32 s33, s38, 28", "s_add_u32 s32, s32, s33", f"s_lshl_b32 s{(35, 37)[u]}, s32, 11")
    k.e("v_lshl_add_u32 v56, v49, 9, v50", "v_xor_b32 v57, 64, v56", f"v_mov_b32 v62, {224*KB}", f"v_mov_b32 v63, {224*KB}")
    k.e(f"s_mul_i32 s36, s36, {224*KB}", f"s_add_u32 s36, s36, {WS_PDN}", "s_add_u32 s70, s36, s35", "s_add_u32 s71, s36, s37")
    k.wait(vm="pk")
    for i in range(2):
        for nn in range(2):
            for j in range(2): k.ds(f"ds_read_b64_tr_b16 {vr(PQ[2*i+nn]+2*j,2)}, v{56+nn} offset:{i*2048 + j*1024}", "t")
    mid1(); mid2()
    k.wait(lg="all")
    k.e("s_branch L_pk_done")
    k.label("L_pk_wo")
    k.vmq = list(q0)
    k.e("v_and_b32 v56, 2, v46", "v_lshlrev_b32 v56, 1, v56", "v_xor_b32 v56, v56, v47", "v_lshlrev_b32 v56, 4, v56", "v_lshl_add_u32 v56, v46, 7, v56",
        "v_lshrrev_b32 v57, 4, v1", "v_lshl_add_u32 v56, v57, 10, v56", "v_add_u32 v56, s34, v56", "v_xor_b32 v57, 64, v56",
        "v_mov_b32 v62, 0x800", "v_mov_b32 v63, 0x800")
    k.e("s_lshl_b32 s36, s36, 16", "s_lshl_b32 s35, s35, 12", "s_add_u32 s70, s36, s35", f"s_add_u32 s70, s70, {WS_PWO}", "s_mov_b32 s71, s70")
    k.wait(vm="pk")
    for j in range(4):
        for jj in range(2): k.ds(f"ds_read_b64_tr_b16 {vr(PQ[j]+2*jj,2)}, v{56+(j>>1)} offset:{jj*512 + 8*(j&1)}", "t")
    mid1(); mid2()
    k.wait(lg="all")
    k.label("L_pk_done")

def pack_stores(k):
    ops = []
    for r in range(4):
        for p in range(2):
            ops.append(("v", lambda r=r, p=p: k.vm(f"buffer_store_dwordx4 {vr(PQ[2*r+p],4)}, v{64+p}, {SRD_WS}, s{70+r} offen sc1", "pks")))
            if r < 3: ops.append(("a", lambda p=p: k.e(f"v_add_u32 v{64+p}, v{64+p}, v{62+p}")))
    ops.append(("v", lambda: k.vm(f"buffer_store_dwordx4 v[44:47], v68, {SRD_WS}, s74 offen sc1", "pks")))
    return ops

A_XF, A_K, A_V, A_Q = 36, 76, 86, 96
A_STA, A_STB, A_OP, A_DX, A_PA, A_ST, A_ACC = 104, 106, 144, 152, 153, 140, 184
class R0: XE, XO, SA, SB, CI, ONE, M, ATT, TMP = 3, 4, 5, 6, 28, 32, 52, (116, 160), 60
class R1: XE, XO, SA, SB, CI, ONE, M, ATT, TMP = 116, 117, 118, 119, 252, 124, 120, (228, 160), 28
A_U, A_PX = 226, 115
A11_ORDER = [2, 3, 1, 0, "h"]
A11_POS = {2: 3, 3: 0, 1: 1, 0: 2, "h": 3}
sODD, sCUR0, sCUR1, sCEXP = 40, 42, 44, 46

def a1_setup(k, layer):
    R = (R0, R1)[layer]
    real = k; out = []
    class Rec:
        def e(self, *t):
            if any(x.startswith("s_cmp") for x in t): out.append(lambda t=t: real.e(*t))
            else: out.extend(lambda x=x: real.e(x) for x in t)
    k = Rec()
    t16, g, tt, tb = R.TMP, R.TMP + 1, R.TMP + 2, R.TMP + 3
    x, y, z = R.ONE, R.ONE + 1, R.ONE + 2
    sa = L_SA0 if layer == 0 else L_SA1
    k.e(f"v_and_b32 v{t16}, 15, v1", f"v_lshrrev_b32 v{g}, 4, v1", f"v_and_b32 v{tt}, 7, v1", f"v_bfe_u32 v{tb}, v1, 3, 1")
    k.e(f"v_lshlrev_b32 v{tb}, 13, v{tb}")
    if layer == 0: k.e(f"v_add_u32 v{tb}, {L_X}, v{tb}")
    if layer == 0:
        k.e(f"v_and_b32 v{x}, 6, v{tt}", f"v_xor_b32 v{x}, v{x}, v{g}", f"v_lshlrev_b32 v{x}, 4, v{x}",
            f"v_lshl_add_u32 v{x}, v{tt}, 7, v{x}", f"v_add_u32 v{R.XE}, v{x}, v{tb}", f"v_xor_b32 v{R.XO}, 64, v{R.XE}")
    else:
        k.e(f"v_lshl_add_u32 v{x}, v{g}, 7, v{tb}", f"v_lshl_add_u32 v{R.XE}, v{tt}, 4, v{x}", f"v_add_u32 v{R.XO}, 512, v{R.XE}")
    k.e(f"v_lshlrev_b32 v{R.SA}, 3, v{t16}", f"v_add_u32 v{R.SA}, {sa}, v{R.SA}",
        f"v_lshlrev_b32 v{R.SB}, 5, v{g}", f"v_add_u32 v{R.SB}, {sa}, v{R.SB}")
    k.e(f"v_and_b32 v{x}, 1, v1", f"v_cmp_eq_u32 s[{sODD}:{sODD+1}], 1, v{x}",
        f"v_lshl_add_u32 v{y}, v{g}, 2, v{x}", f"v_cmp_le_u32 s[{sCUR0}:{sCUR0+1}], v{y}, v{t16}",
        f"v_add_u32 v{y}, 2, v{y}", f"v_cmp_le_u32 s[{sCUR1}:{sCUR1+1}], v{y}, v{t16}")
    k.e(f"v_mov_b32 v{y}, 0xffff", f"v_mov_b32 v{z}, 0xffff0000", f"v_cndmask_b32 v{y}, v{y}, v{z}, s[{sODD}:{sODD+1}]", f"v_mov_b32 v{z}, 0")
    k.e(f"v_cndmask_b32 v{R.M+2}, v{z}, v{y}, s[{sCUR0}:{sCUR0+1}]", f"v_cndmask_b32 v{R.M}, v{y}, v{z}, s[{sCUR0}:{sCUR0+1}]",
        f"v_cndmask_b32 v{R.M+3}, v{z}, v{y}, s[{sCUR1}:{sCUR1+1}]", f"v_cndmask_b32 v{R.M+1}, v{y}, v{z}, s[{sCUR1}:{sCUR1+1}]")
    k.e(f"s_cmp_eq_u32 s{sB}, 0", f"s_cselect_b32 s70, {f2u(-1e38):#x}, 0", f"s_mov_b32 s{sCEXP}, {f2u(0.25*LOG2E):#x}")
    for i in range(4): k.e(f"v_mov_b32 v{R.CI+i}, s70", f"v_mov_b32 v{R.ONE+i}, 0x3f803f80")
    return out

def o_bases(k, layer):
    k.e(*o_block("s32", layer))
    k.e(f"s_lshl_b32 s33, s{sCS}, 2", f"s_add_u32 s33, s33, s{sW}", "s_lshl_b32 s53, s33, 10", "s_add_u32 s53, s53, s32", "s_add_u32 s54, s53, 32768",
        f"s_lshl_b32 s32, s{sB}, 5", "s_add_u32 s32, s32, s33", "s_lshl_b32 s32, s32, 2", f"s_add_u32 s89, s32, {fl(layer, FL_O)}")

def ln_finish(a, s, q):
    a(f"v_mul_f32 v{s}, {f2u(-1/512):#x}, v{s}"); a(f"v_mul_f32 v{q}, {f2u(1/512):#x}, v{q}")
    a(f"v_fma_f32 v{q}, -v{s}, v{s}, v{q}"); a(f"v_max_f32 v{q}, 0, v{q}"); a(f"v_add_f32 v{q}, {f2u(1e-5):#x}, v{q}")

A_QS = 68
def fix_reads(k, R, t, S):
    i = 0 if t == "h" else t + 1
    return [lambda: k.ds(f"ds_read_b64 {vr(S,2)}, v{R.SA} offset:{i*128}", ("sa", t)),
            lambda: k.ds(f"ds_read_b128 {vr(S+2,4)}, v{R.SB} offset:{i*128}", ("sa", t)),
            lambda: k.ds(f"ds_read_b128 {vr(S+6,4)}, v{R.SB} offset:{i*128+16}", ("sa", t))]
def fix(k, R, fx, t, acc, at, pk, S=A_STA, pre=False, nxt=()):
    a = lambda txt, c=1, at=0: fx.add(lambda: k.e(txt), c, at)
    i = 0 if t == "h" else t + 1
    if not pre:
        for n, f in enumerate(fix_reads(k, R, t, S)): fx.add(f, 1, at - P.a1_salead if n == 0 else 0)
    fx.add(lambda: k.wait(lg=[("sa", t)]), 1, at)
    for f in nxt: fx.add(f)
    for r0, cs, dst in ((acc[0], CSQ, None if t == "h" else A_Q + 2*t), (acc[1], CSK, A_K + 2*i)):
        if dst is None: continue
        isq = cs == CSQ
        if pk:
            for h in (0, 2): a(f"v_pk_fma_f32 {vr(r0+h,2)}, {vr(S,2)}, {vr(cs+h,2)}, {vr(r0+h,2)} op_sel_hi:[0,1,1]")
            if not isq:
                for h in (0, 2): a(f"v_pk_mul_f32 {vr(r0+h,2)}, {vr(S,2)}, {vr(r0+h,2)} op_sel:[1,0] op_sel_hi:[1,1]")
        else:
            for r in range(4): a(f"v_fmac_f32 v{r0+r}, v{S}, v{cs+r}")
            if not isq:
                for r in range(4): a(f"v_mul_f32 v{r0+r}, v{S+1}, v{r0+r}")
        if isq: a(f"v_mul_f32 v{A_QS+t}, s{sCEXP}, v{S+1}")
        for h in range(2): a(f"v_cvt_pk_bf16_f32 v{dst+h}, v{r0+2*h}, v{r0+2*h+1}")
    r0 = acc[2]
    for r in range(4): a(f"v_fmac_f32 v{r0+r}, v{S+2+2*r}, v{CSV}")
    for r in range(4): a(f"v_mul_f32 v{r0+r}, v{S+3+2*r}, v{r0+r}")
    for h in range(2): a(f"v_cvt_pk_bf16_f32 v{A_V+2*i+h}, v{r0+2*h}, v{r0+2*h+1}")
    fx.add(lambda: (k.mark(("fix", t)), k.stamp(f"t0 fix{t}")), 0)

def attn(k, R, fx, t, B):
    SC, SP, PP, O, SUM, T = B, B + 4, B + 8, B + 12, B + 16, B + 20
    a = lambda txt, c=1: fx.add(lambda: k.e(txt), c)
    q = vr(A_Q + 2*t, 2)
    fx.dep(("fix", t)); fx.dep(("fix", t - 1 if t else "h")); fx.skip(1)
    a(f"{MF16S} {vr(SC,4)}, {vr(A_K+2*(t+1),2)}, {q}, 0", 2)
    a(f"{MF16S} {vr(SP,4)}, {vr(A_K+2*t,2)}, {q}, {vr(R.CI,4) if t == 0 else '0'}", 2)
    fx.skip(3)
    for rr, cur in ((0, sCUR0), (1, sCUR1)):
        a(f"v_cndmask_b32 v{T+2}, v{SC+2*rr}, v{SC+2*rr+1}, s[{sODD}:{sODD+1}]")
        a(f"v_cndmask_b32 v{T+3}, v{SP+2*rr}, v{SP+2*rr+1}, s[{sODD}:{sODD+1}]")
        a(f"v_cndmask_b32 v{T+rr}, v{T+3}, v{T+2}, s[{cur}:{cur+1}]")
    a(f"v_max_f32 v{T+2}, v{T}, v{T+1}"); a(f"v_mov_b32 v{T+3}, v{T+2}"); fx.skip(1)
    a(f"v_permlane16_swap_b32 v{T+2}, v{T+3}", 2); a(f"v_max_f32 v{T+2}, v{T+2}, v{T+3}"); a(f"v_mov_b32 v{T+3}, v{T+2}"); fx.skip(1)
    a(f"v_permlane32_swap_b32 v{T+2}, v{T+3}", 2); a(f"v_max_f32 v{T+2}, v{T+2}, v{T+3}")
    a(f"v_mul_f32 v{T+2}, v{A_QS+t}, v{T+2}")
    for rr in range(2): a(f"v_fma_f32 v{T+rr}, v{T+rr}, v{A_QS+t}, -v{T+2}")
    for rr in range(2): a(f"v_exp_f32 v{T+rr}, v{T+rr}", 2)
    for rr in range(2): a(f"v_cvt_pk_bf16_f32 v{T+rr}, v{T+rr}, v{T+rr}")
    a(f"v_and_b32 v{PP}, v{T}, v{R.M}"); a(f"v_and_b32 v{PP+1}, v{T+1}, v{R.M+1}")
    a(f"v_and_b32 v{PP+2}, v{T}, v{R.M+2}"); a(f"v_and_b32 v{PP+3}, v{T+1}, v{R.M+3}")
    fx.skip(1)
    a(f"{MF16} {vr(SUM,4)}, {vr(R.ONE,4)}, {vr(PP,4)}, 0", 2)
    a(f"{MF16} {vr(O,4)}, {vr(A_V+2*t,4)}, {vr(PP,4)}, 0", 2)
    fx.skip(3)
    a(f"v_rcp_f32 v{T}, v{SUM}", 2); fx.skip(1)
    for r in range(4): a(f"v_mul_f32 v{O+r}, v{T}, v{O+r}")
    for h in range(2): a(f"v_cvt_pk_bf16_f32 v{A_OP+2*t+h}, v{O+2*h}, v{O+2*h+1}")
    fx.add(lambda: (k.mark(("attn", t)), k.stamp(f"t0 attn{t}")), 0)

def ostore(k, fx, pair):
    b = A_OP + 4 * pair
    fx.dep(("attn", 2*pair)); fx.dep(("attn", 2*pair + 1))
    fx.dep("po1" if pair == 0 else "blank")
    fx.skip(1)
    fx.add(lambda: k.e(f"v_permlane16_swap_b32 v{b}, v{b+2}"), 2); fx.add(lambda: k.e(f"v_permlane16_swap_b32 v{b+1}, v{b+3}"), 2)
    fx.add(lambda: (k.dstore(f"buffer_store_dwordx4 {vr(b,4)}, v{vL16}, {SRD_WS}, s{53+pair} offen", ("ost", pair)), k.mark(("ost", pair))))

Z_WD, Z_TR, Z_HE, Z_HO, Z_OE, Z_OO = 164, 165, 166, 167, 168, 169
Z_XF, Z_SUM, Z_GR, Z_SUMH, Z_GRH, Z_CV = 104, 240, 244, 248, 252, 100
P.k_first = 4; P.k_pack = None; P.k_prep = 12
P.k_look, P.k_atom, P.k_bar, P.k_vgap, P.k_pst, P.k_pgap = 3, 5, 3, 3, 3, 0
NS0 = 6
def z_acc(t):
    if t == "h": return (None, A_ACC + 48, A_ACC + 52)
    return (A_ACC + 12*t, A_ACC + 12*t + 4, A_ACC + 12*t + 8)

def a10_lanes(k):
    k.e("v_lshrrev_b32 v60, 3, v1", "v_and_b32 v61, 6, v60", "v_and_b32 v62, 7, v1", "v_xor_b32 v61, v61, v62",
        "v_lshlrev_b32 v61, 4, v61", f"v_lshl_add_u32 v{A_DX}, v60, 10, v61")
    k.e("v_and_b32 v61, 2, v60", f"s_and_b32 s32, s{sW}, 1", "s_lshl_b32 s32, s32, 2", "v_or_b32 v61, s32, v61", "v_xor_b32 v61, v61, v62",
        "v_lshlrev_b32 v61, 4, v61", "v_mul_u32_u24 v60, 3072, v60", f"v_add_u32 v{Z_WD}, v60, v61")
    if P.rot == 0: k.e(f"s_add_u32 s{sROT}, s{sB}, s{sCS}")
    elif P.rot == 1: k.e(f"s_lshl_b32 s32, s{sB}, 1", f"s_bfe_u32 s33, s{sB}, 0x10002", "s_add_u32 s32, s32, s33", f"s_add_u32 s{sROT}, s32, s{sCS}")
    elif P.rot == 2: k.e(f"s_lshl_b32 s32, s{sB}, 1", f"s_add_u32 s{sROT}, s32, s{sCS}")
    elif P.rot == 3: k.e(f"s_mov_b32 s{sROT}, s{sCS}")
    elif P.rot == 4: k.e(f"s_lshl_b32 s32, s{sB}, 1", f"s_bfe_u32 s33, s{sB}, 0x10002", f"s_add_u32 s{sROT}, s32, s33")
    elif P.rot == 5: k.e(f"s_mov_b32 s{sROT}, 0")
    elif P.rot == 6: k.e(f"s_mul_i32 s32, s{sB}, 3", f"s_add_u32 s{sROT}, s32, s{sCS}")
    elif P.rot == 7: k.e(f"s_lshr_b32 s32, s{sB}, 2", f"s_add_u32 s{sROT}, s32, s{sCS}")
    elif P.rot == 8: k.e(f"s_lshr_b32 s32, s{sB}, 2", f"s_add_u32 s32, s32, s{sB}", f"s_add_u32 s{sROT}, s32, s{sCS}")
    k.e(f"s_and_b32 s{sROT}, s{sROT}, 7")
    k.e(f"s_lshl_b32 s47, s{sB}, 3", "s_sub_u32 s48, s47, 2", "s_max_i32 s48, s48, 0", f"s_and_b32 s32, s{sW}, 1", "s_add_u32 s48, s48, s32",
        "s_lshl_b32 s48, s48, 13", f"s_lshl_b32 s32, s{sW}, 1", "s_add_u32 s47, s47, s32", "s_lshl_b32 s47, s47, 13")
    k.e(f"s_mul_i32 s51, s{sW}, {8*3072}", f"s_lshl_b32 s32, s{sCS}, 7", "s_add_u32 s51, s51, s32", f"s_mul_i32 s52, s{sW}, 3072")
    k.e(f"s_lshl_b32 s49, s{sW}, 14", f"s_and_b32 s32, s{sW}, 1", "s_lshl_b32 s50, s32, 13", f"s_lshr_b32 s32, s{sW}, 1",
        "s_lshl_b32 s33, s32, 10", "s_add_u32 s50, s50, s33", f"s_add_u32 s90, s32, s{sROT}")

def a10_x(k, c):
    S = lambda *t: [("s", lambda x=x: k.e(x)) for x in t]
    ld = lambda: k.vm(f"buffer_load_dwordx4 v{A_DX}, {SRD_X}, s33 offen {P.x_mod} lds", ("x", c))
    ops = S(f"s_add_u32 s33, s{sROT}, {c}", "s_and_b32 s33, s33, 7", "s_lshl_b32 s33, s33, 7", f"s_add_u32 m0, s49, {L_X + c*1024}", "s_add_u32 s33, s33, s47")
    ops += [("v", ld)] + S(f"s_add_u32 m0, s49, {L_X + 8192 + c*1024}", "s_add_u32 s33, s33, 8192") + [("v", ld)]
    if c % 2 == 0:
        ops += S(f"s_add_u32 s33, s90, {c}", "s_and_b32 s33, s33, 7", "s_lshl_b32 s33, s33, 7", f"s_add_u32 m0, s50, {L_XH0 + c*1024}", "s_add_u32 s33, s33, s48") + [("v", ld)]
    return ops

def a10_w(k, s):
    S = lambda *t: [("s", lambda x=x: k.e(x)) for x in t]
    if s & 1: ops = S(f"s_add_u32 m0, s52, {(s % NS0)*12288}", f"s_add_u32 s63, s63, {32*3072}")
    else: ops = S(f"s_add_u32 s63, s{sROT}, {s>>1}", "s_and_b32 s63, s63, 7", f"s_mul_i32 s63, s63, {64*3072}", f"s_add_u32 m0, s52, {(s % NS0)*12288}", "s_add_u32 s63, s63, s51")
    for p in range(3): ops.append(("v", lambda p=p: k.vm(f"buffer_load_dwordx4 v{Z_WD}, {SRD_QKV}, s63 offen offset:{p*1024} {P.w_mod} lds", ("w", s))))
    return ops
def run(ops):
    for _, f in ops: f()

def fill(k, mains, streams, cap=2):
    lastv = -99
    for g, m in enumerate(mains):
        m(); k.gap = g
        for a, o in streams:
            if a <= g and o and o[0][0] == "s": o.pop(0)[1](); break
        room = cap; nd = 0
        if g - lastv >= P.k_vgap and k.bg_step(): room -= 1; lastv = g
        while room > 0:
            pick = None
            for a, o in streams:
                if a > g or not o: continue
                t = o[0][0]
                if t == "d" and nd >= 1: continue
                if t == "v" and g - lastv < P.k_vgap: continue
                pick = o; break
            if pick is None: break
            t, f = pick.pop(0); f(); room -= 2 if t == "b" else 1
            if t == "d": nd += 1
            if t == "v": lastv = g
    for a, o in streams: run(o)

def a10_lanes2(k):
    k.e("v_lshrrev_b32 v60, 4, v1", "v_bfe_u32 v61, v1, 2, 2", "v_and_b32 v62, 1, v60", "v_lshlrev_b32 v62, 1, v62",
        "v_lshrrev_b32 v63, 1, v61", "v_or_b32 v62, v62, v63", f"v_xor_b32 v62, s{sW}, v62", "v_lshlrev_b32 v62, 5, v62",
        "v_mul_u32_u24 v60, 3072, v60", "v_lshl_add_u32 v60, v61, 7, v60", "v_add_u32 v60, v60, v62",
        "v_and_b32 v61, 3, v1", f"v_lshl_add_u32 v{Z_TR}, v61, 3, v60")
    k.e("v_and_b32 v60, 15, v1", "v_cmp_eq_u32 s[78:79], 0, v60")
    k.e(f"v_subrev_u32 v{Z_HE}, 16384, v{R0.XE}", f"v_subrev_u32 v{Z_HO}, 16384, v{R0.XO}",
        f"v_add_u32 v{Z_OE}, s49, v{R0.XE}", f"v_add_u32 v{Z_OO}, s49, v{R0.XO}")

def a10_loop(k, first):
    LA = P.k_look
    def sync(s, extra=()):
        k.wait(vm=[("w", s), ("x", s >> 1)] + list(extra)); k.e("s_barrier")
    nxt = [first]
    def dmas(upto):
        out = []
        while nxt[0] <= min(upto, 15):
            n = nxt[0]; nxt[0] += 1
            if n % 2 == 0: out += a10_x(k, n // 2)
            out += a10_w(k, n)
        return out
    def reads(s):
        fb = Z_XF + 24 * (s & 1); off = (s >> 1) * 1024; o = s & 1
        tr = lambda p, j: ("d", lambda: k.ds(f"ds_read_b64_tr_b16 {ar(12*s+4*p+2*j,2)}, v{Z_TR} offset:{(s%NS0)*12288 + p*1024 + j*512}", ("r", s, 0 if p == 0 else 1)))
        xr = lambda d, a, of, grp: ("d", lambda: k.ds(f"ds_read_b128 {vr(d,4)}, v{a} offset:{of}", ("r", s, grp)))
        out = [tr(0, 0), tr(0, 1)] + [xr(fb + 4*t, R0.XO if o else R0.XE, t*16384 + off, 0) for t in range(4)]
        out += [tr(1, 0), tr(1, 1), tr(2, 0), tr(2, 1), xr(fb + 16, Z_HO if o else Z_HE, off, 1), xr(fb + 20, Z_OO if o else Z_OE, off, 1)]
        return out
    l0_background(k)
    pst = pack_stores(k)
    sync(0)
    k.stamp("k0")
    run(reads(0)); run(dmas(LA - 1))
    for s in range(16):
        fb = Z_XF + 24 * (s & 1)
        c = lambda r: "0" if s == 0 else vr(r, 4)
        wq, wk, wv, one = ar(12*s, 4), ar(12*s + 4, 4), ar(12*s + 8, 4), vr(R0.ONE, 4)
        ms = [f"{MF16} {vr(z_acc(t)[0],4)}, {wq}, {vr(fb+4*t,4)}, {c(z_acc(t)[0])}" for t in range(4)]
        for t in [0, 1, 2, 3, "h"]:
            xf = vr(fb + (16 if t == "h" else 4*t), 4)
            ms.append(f"{MF16} {vr(z_acc(t)[1],4)}, {wk}, {xf}, {c(z_acc(t)[1])}")
            ms.append(f"{MF16} {vr(z_acc(t)[2],4)}, {xf}, {wv}, {c(z_acc(t)[2])}")
        ms += [f"{MF16} {vr(Z_CV,4)}, {wq}, {vr(fb+16,4)}, {c(Z_CV)}",
               f"{MF16} {vr(Z_SUM,4)}, {one}, {vr(fb+20,4)}, {c(Z_SUM)}", f"{MF16} {vr(Z_GR,4)}, {vr(fb+20,4)}, {vr(fb+20,4)}, {c(Z_GR)}",
               f"{MF16} {vr(Z_GRH,4)}, {vr(fb+16,4)}, {vr(fb+16,4)}, {c(Z_GRH)}"]
        if not P.gram1: ms.append(f"{MF16} {vr(Z_SUMH,4)}, {one}, {vr(fb+16,4)}, {c(Z_SUMH)}")
        mains = [lambda m=m: k.e(m) for m in ms]
        if s == P.k_pack:
            k.wait(lg="all"); pack_process(k, lambda: None, lambda: None)
        k.wait(lg=[("r", s, 0)])
        streams = [(3, [("s", lambda: k.wait(lg=[("r", s, 1)]))] +
                       [("a", lambda d=d: k.e(f"v_cndmask_b32 v{fb+16+d}, v{fb+16+d}, v{R0.ONE}, s[78:79]")) for d in range(4)])]
        if s + 1 < 16:
            ex = ["pks"] if s + 1 == P.k_atom else []
            assert not ex or not pst, "arrival before the last pack store"
            assert P.k_prep > 14 - LA and (P.k_pack or 0) <= 8 - LA
            ops = [("b", lambda: sync(s + 1, ex))] + reads(s + 1)
            if ex: ops.append(("b", lambda: arrive(k)))
            streams.append((P.k_bar, ops))
            streams.append((0, dmas(s + LA)))
        n = 0; mine = []
        while pst and s >= (P.k_pack or 0) and (n < P.k_pst or pst[0][0] == "a"):
            n += pst[0][0] == "v"; mine.append(pst.pop(0))
        streams.append((P.k_pgap, mine))
        if s == P.k_prep: streams.append((6, tail_prep(k)))
        if s == P.k_touch:
            streams.append((2, [("b", lambda: k.touch(157, "p", ["s_mov_b32 s32, s53"], False) if (0, "ost", True) not in P.wt else None),
                                ("b", lambda: k.touch(158, "q", [f"s_add_u32 s32, s64, {BX2()}"], False) if (0, "xst", False) not in P.wt and P.x1_at == "k" else None),
                                ("b", lambda: k.touch(159, "h", h_base("s32", 0), False) if P.h_touch0 == "k" else None)]))
        if s == P.k_gb: streams.append((1, [("v", lambda t=t: k.vm(t, "gb")) for t in GB_LOADS]))
        if s == P.k_chk: streams.append((1, [("b", lambda: rendezvous(k))]))
        if s == 15 and P.k_chk < 16:
            streams.append((max(P.k_bar, 4), [("b", lambda: (k.e("s_barrier"), k.mark("xfree")))]))
        fill(k, mains, streams)
        if s in (3, 7, 11): k.stamp(f"k{s+1}")
    k.stamp("k16")
    if P.k_chk >= 16: rendezvous(k)

GB_LOADS = [f"buffer_load_dwordx4 {vr(36+4*j,4)}, v{vL16}, {SRD_WS}, s75 offen offset:{j*1024} sc1" for j in range(4)] + \
           [f"buffer_load_dword v{vP}, v172, {SRD_WS}, s77 offen offset:8 sc1"]
def arrive(k):
    k.wait(vm=["tag"])
    k.e(f"v_readfirstlane_b32 s{sTAG}, v170", f"s_cmp_eq_u32 s{sTAG}, 0", "s_cbranch_scc1 L_tag_spin ;np", "L_tag_ok: ;np")
    k.spins += ["L_tag_spin:", f"s_sub_u32 s{sBUD}, s{sBUD}, 1", "s_cbranch_scc1 L_tag_give", f"buffer_load_dword v170, v{vFA}, {SRD_DBG}, 0 offen sc1",
                "s_waitcnt vmcnt(0)", f"v_readfirstlane_b32 s{sTAG}, v170", f"s_cmp_eq_u32 s{sTAG}, 0", "s_cbranch_scc1 L_tag_spin", "s_branch L_tag_ok",
                "L_tag_give:", f"s_mov_b32 s{sBUD}, 0", "s_branch L_tag_ok"]
    k.e(f"v_mov_b32 v176, s{sTAG}", "v_not_b32 v177, v176", f"v_mov_b32 v178, s{sXCC}")
    k.vm(f"buffer_store_dwordx4 v[176:179], v171, {SRD_WS}, s75 offen sc1", "arr")

def rendezvous(k):
    chk = [f"s_not_b32 s32, s{sTAG}"]
    for j in range(4): chk += [f"v_xor_b32 v{36+4*j}, s{sTAG}, v{36+4*j}", f"v_xor_b32 v{37+4*j}, s32, v{37+4*j}"]
    chk += ["v_or3_b32 v36, v36, v37, v40", "v_or3_b32 v44, v44, v45, v41", "v_or3_b32 v36, v36, v48, v49", "v_or_b32 v36, v36, v44", "v_cmp_ne_u32 vcc, 0, v36"]
    k.wait(vm=["gb"])
    k.e(*chk); k.e("s_cbranch_vccnz L_gb_spin ;np", "L_gb_ok: ;np")
    k.spins += ["L_gb_spin:", f"s_sub_u32 s{sBUD}, s{sBUD}, 1", "s_cbranch_scc1 L_gb_give", "s_sleep 2",
                f"buffer_load_dword v170, v{vFA}, {SRD_DBG}, 0 offen sc1", "s_waitcnt vmcnt(0)", "v_readfirstlane_b32 s32, v170", f"s_cmp_eq_u32 s32, s{sTAG}",
                "s_cbranch_scc1 L_gb_same", f"s_mov_b32 s{sTAG}, s32", f"v_mov_b32 v176, s{sTAG}", "v_not_b32 v177, v176",
                f"buffer_store_dwordx4 v[176:179], v171, {SRD_WS}, s75 offen sc1", "L_gb_same:"] + GB_LOADS + ["s_waitcnt vmcnt(0)"] + chk + \
               ["s_cbranch_vccnz L_gb_spin", "s_branch L_gb_ok", "L_gb_give:", f"s_mov_b32 s{sBUD}, 0", "s_branch L_gb_ok"]
    k.e(f"v_cmp_ne_u32 vcc, s{sXCC}, v{vP}", "s_and_b32 s99, vcc_lo, 0xffff" if not P.safe else "s_and_b32 s99, 1, 1",
        f"s_cselect_b32 s{sML}, {OOB>>1:#x}, 0", f"s_cselect_b32 s{sMS}, 0, {OOB>>1:#x}")
    k.mark("gb")

W_OA, W_UA, W_SA, W_RB = 152, 154, 155, 156
def wo_bases(k):
    k.e(f"s_lshl_b32 s32, s{sB}, 2", f"s_add_u32 s32, s32, s{sW}", "s_lshl_b32 s64, s32, 14", f"s_lshl_b32 s33, s{sCS}, {CSH()}", "s_add_u32 s64, s64, s33",
        "s_lshr_b32 s32, s32, 1", "s_lshl_b32 s80, s32, 15", "s_lshl_b32 s65, s32, 11", "s_lshl_b32 s66, s32, 3", f"s_add_u32 s66, s66, s{sCS}", "s_lshl_b32 s66, s66, 1",
        f"s_and_b32 s32, s{sW}, 1", "s_add_u32 s66, s66, s32", "s_lshl_b32 s66, s66, 2", "s_lshl_b32 s32, s32, 8", "s_add_u32 s80, s80, s32", "s_add_u32 s65, s65, s32",
        f"s_lshr_b32 s32, s{sCS}, 1", "s_lshl_b32 s32, s32, 9", "s_add_u32 s65, s65, s32", f"s_and_b32 s32, s{sCS}, 1", "s_lshl_b32 s32, s32, 3", "s_add_u32 s65, s65, s32")
def wo_lanes(k):
    x, y = 66, 67
    return [lambda t=t: k.e(*t) for t in (
        [f"v_and_b32 v{x}, 15, v1"], [f"v_lshrrev_b32 v{y}, 4, v1"], [f"v_lshlrev_b32 v{W_OA}, 4, v{x}"], [f"v_lshl_add_u32 v{W_SA}, v{y}, 2, v{W_OA}"],
        [f"v_lshl_add_u32 v{W_OA}, v{y}, 9, v{W_OA}"], [f"v_and_b32 v{W_UA}, 7, v1"], [f"v_lshlrev_b32 v{W_UA}, 4, v{W_UA}"], [f"v_lshl_add_u32 v{W_UA}, v{y}, {LSH()}, v{W_UA}"],
        [f"v_lshrrev_b32 v{x}, 3, v{x}"], [f"v_lshl_add_u32 v{W_UA}, v{x}, 13, v{W_UA}"], [f"v_add_u32 v{W_RB}, {6*16384}, v{vL16}"],
        ["v_cmp_gt_u32 vcc, 32, v1", f"v_mov_b32 v{y}, {OOB:#x}", f"v_cndmask_b32 v{W_SA}, v{y}, v{W_SA}, vcc"])]
def blanks(k, layer):
    if not P.tags: return [lambda: k.mark("blank")]
    z = 66
    return [lambda: (k.e(f"v_mov_b32 v{z}, -1"), k.dstore(f"buffer_store_dword v{z}, v{vL16}, {SRD_WS}, s53 offen", "blank")),
            lambda: (k.e(f"s_add_u32 s58, s64, {BX2()}"), k.dstore(f"buffer_store_dword v{z}, v{W_UA}, {SRD_WS}, s58 offen", "blank")),
            lambda: k.dstore(f"buffer_store_dword v{z}, v{W_UA}, {SRD_WS}, s58 offen offset:512", "blank"),
            lambda: (k.e(f"s_add_u32 s58, s65, {BS1[layer]}"), k.dstore(f"buffer_store_dword v{z}, v{W_SA}, {SRD_WS}, s58 offen", "blank"), k.mark("blank"))]
def wo_prepoll(k, layer):
    k.poll_addr(A_PA, 32)
    k.e(f"s_lshl_b32 s32, s{sB}, 7", f"s_add_u32 s{sPO}, s32, {fl(layer, FL_O)}", *o_block("s59", layer), "s_and_b32 s32, s80, 0xffff", "s_add_u32 s59, s59, s32")
    k.bg_held = True
    k.poll_issue(A_PA, "po1"); k.mark("po1")

def dna(k): return regloads(k, sDS, 0, lambda j: ar(192 + 4*j, 4), 16, "dna")

def tail_prep(k):
    R = R0
    A = lambda *t: [("a", lambda x=x: k.e(x)) for x in t]
    B = lambda *t: [("b", lambda: k.e(*t))]
    ops = A("v_and_b32 v73, 15, v1", "v_lshrrev_b32 v74, 4, v1", "v_lshlrev_b32 v73, 10, v73", "v_lshl_add_u32 v73, v74, 4, v73")
    ops += B(f"s_lshl_b32 s58, s{sB}, 2", f"s_add_u32 s58, s58, s{sW}", "s_lshl_b32 s58, s58, 14", f"s_lshl_b32 s59, s{sCS}, 7", "s_add_u32 s58, s58, s59")
    ops += [("v", lambda p=p: k.vm(f"buffer_load_dwordx4 {vr(RES+4*p,4)}, v73, {SRD_X}, s58 offen offset:{p*64}", "res")) for p in range(2)]
    ops += A("v_and_b32 v75, 3, v1", "v_cmp_eq_u32 s[34:35], 1, v75", "v_cmp_eq_u32 s[36:37], 2, v75", "v_cmp_eq_u32 s[38:39], 3, v75", "v_bfe_u32 v75, v1, 2, 2")
    ops += B("v_cmp_eq_u32 vcc, v75, v74", f"v_mov_b32 v72, {L_SA0 + 768}", f"s_lshl_b32 s59, s{sW}, 7", f"v_add_u32 v74, s59, v{R.SA}",
             "v_cndmask_b32 v74, v72, v74, vcc", f"v_cndmask_b32 v75, v72, v{R.SA}, vcc")
    return ops + [("a", f) for f in wo_lanes(k)]

def l0_background(k):
    k.per = dict(P.per_k)
    dd = dna(k)
    bg_list(k, dd[:P.dna_first], "s4", "dna", "gb")
    bg_list(k, wow(k), "s4", "wow", "xfree")
    bg_batches(k, [0, 1, 2, 3], "s2", lambda b: "xfree")
    bg_batches(k, [4], "s2", lambda b: "wobar")
    bg_batches(k, [5], "s2", lambda b: "xfree")
    bg_batches(k, [6, 7, 8, 9], "s2", lambda b: "gubar")
    bg_list(k, dd[P.dna_first:], "s4", "dna")
P.per_k = {"s2": 90, "s4": 70}

def a10_tail(k):
    R = R0
    k.per = dict(P.per_tail0)
    k.stamp("t0 gb")
    xt = [lambda: k.touch(72, "t", [f"s_add_u32 s32, s65, {BS1[0]}"])]
    if P.x1_at != "k": xt.append(lambda: k.touch(158, "q", [f"s_add_u32 s32, s64, {BX2()}"]))
    if (0, "xst", False) in P.wt: xt = []
    if P.x1_at == "k":
        for f in xt: f()
    k.bg_burst(P.tail_burst); k.bg_next = k.t + P.tail_delay
    hk, hv = z_acc("h")[1], z_acc("h")[2]
    for r in range(4):
        k.e(f"v_mov_b32_dpp v{CSQ+r}, v{Z_CV+r} row_newbcast:0 row_mask:0xf bank_mask:0xf", f"v_mov_b32_dpp v{CSK+r}, v{hk+r} row_newbcast:0 row_mask:0xf bank_mask:0xf")
    k.e(f"v_mov_b32 v{CSV}, v{hv}", f"v_mov_b32 v45, v{hv}", f"v_permlane16_swap_b32 v{CSV}, v45", f"v_mov_b32 v45, v{CSV}", f"v_permlane32_swap_b32 v{CSV}, v45")
    if P.gram1:
        k.e(f"v_mov_b32 v{Z_SUMH}, v{Z_GRH}", f"v_mov_b32 v45, v{Z_GRH}", f"v_permlane16_swap_b32 v{Z_SUMH}, v45", f"v_mov_b32 v45, v{Z_SUMH}", f"v_permlane32_swap_b32 v{Z_SUMH}, v45")
    fa = Flex(); fb = Flex()
    for fx, S, G, ad, off in ((fa, Z_SUM, Z_GR, 74, 128), (fb, Z_SUMH, Z_GRH, 75, 0)):
        a = lambda txt, c=1, fx=fx: fx.add(lambda: k.e(txt), c)
        a(f"v_cndmask_b32 v{S+1}, v{G}, v{G+1}, s[34:35]"); a(f"v_cndmask_b32 v{S+1}, v{S+1}, v{G+2}, s[36:37]"); a(f"v_cndmask_b32 v{S+1}, v{S+1}, v{G+3}, s[38:39]")
        ln_finish(a, S, S + 1); a(f"v_rsq_f32 v{S+1}, v{S+1}"); fx.skip(1)
        fx.add(lambda S=S, ad=ad, off=off: k.ds(f"ds_write_b64 v{ad}, {vr(S,2)} offset:{off}", "saw"))
    drain([fa, fb], k)
    for f in blanks(k, 0): f()
    k.wait(lg="all"); k.e("s_barrier"); k.mark("xfree")
    k.stamp("t0 bar")
    fx = Flex(); f1 = Flex(); f2 = Flex()
    od = (2, 1, 3, 0, "h"); Ss = (A_STA, 56)
    for f in fix_reads(k, R, od[0], Ss[0]): f()
    for n, t in enumerate(od):
        fix(k, R, fx, t, z_acc(t), 0, True, Ss[n & 1], True, fix_reads(k, R, od[n + 1], Ss[~n & 1]) if n < 4 else ()); fx.skip(1)
    attn(k, R, f1, 2, R.ATT[0]); attn(k, R, f2, 3, R.ATT[1]); ostore(k, f2, 1)
    attn(k, R, f1, 1, R.ATT[0]); attn(k, R, f2, 0, R.ATT[1]); ostore(k, f2, 0)
    f4 = Flex()
    if P.x1_at != "k":
        f4.dep(P.x1_at)
        for f in xt: f4.add(f)
    f3 = Flex(); f3.dep(("ost", 1))
    for _ in range(P.l0_flag_delay): f3.skip(1)
    f3.add(lambda: (k.wait(vm=[("ost", 1)]), k.flag(1, 89), k.mark("oflag1")))
    f3.dep(("attn", 0)); f3.add(lambda: wo_prepoll(k, 0))
    drain([fx, f1, f2, f3, f4], k)
    k.stamp("a1 end")
P.x1_at = 'k'; P.tail_burst = 2; P.tail_delay = 0; P.l0_flag_delay = 6; P.dna_first = 2
P.per_tail0 = {"s2": 70, "s4": 45}

def a11_bases(k):
    out = []
    S = lambda *t: out.extend(lambda x=x: k.e(x) for x in t)
    S(f"s_lshr_b32 s70, s{sW}, 1", "s_lshl_b32 s49, s70, 13", f"s_and_b32 s71, s{sW}, 1", "s_lshl_b32 s71, s71, 2",
      f"s_add_u32 s50, s71, s{sROT}", "s_lshl_b32 s71, s71, 10")
    for i in range(4):
        S(f"s_add_u32 s70, s50, {i}", "s_and_b32 s70, s70, 7", f"s_lshl_b32 s70, s70, {CSH()}", "s_add_u32 s70, s70, s49", f"s_sub_u32 s{92+i}, s70, {0 if P.x_out else i*1024}")
    S("s_add_u32 s49, s49, s71", f"s_lshl_b32 s47, s{sB}, 16", f"s_add_u32 s47, s47, {BX2()}")
    S(f"s_sub_u32 s48, s{sB}, 1", "s_max_i32 s48, s48, 0", "s_lshl_b32 s51, s48, 10", f"s_add_u32 s51, s51, {WS_HST}",
      "s_lshl_b32 s52, s48, 11", f"s_add_u32 s52, s52, {WS_HXF}", "s_lshl_b32 s48, s48, 14", f"s_add_u32 s48, s48, {WS_HALO}")
    S("v_lshrrev_b32 v28, 4, v1", "v_and_b32 v29, 15, v1", "v_lshlrev_b32 v29, 4, v29", f"v_lshl_add_u32 v{A_U}, v28, 9, v29", f"v_lshl_add_u32 v{A_U+1}, v28, 8, v29")
    S(f"s_lshl_b32 s70, s{sB}, 12", f"s_and_b32 s71, s{sW}, 1", "s_lshl_b32 s71, s71, 8", "s_add_u32 s70, s70, s71", f"s_add_u32 s90, s70, {BS2()}")
    out.append(lambda: k.e(f"s_lshl_b32 s70, s{sB}, 1", f"s_add_u32 s70, s70, s{sW}", "s_lshl_b32 s72, s70, 13", f"s_lshl_b32 s71, s{sCS}, {CSH()}", "s_add_u32 s72, s72, s71",
        f"s_add_u32 s72, s72, {WS_HALO - 16384}", f"s_cmp_ge_u32 s{sW}, 2", f"s_cselect_b32 s72, s72, {OOB>>1:#x}"))
    out.append(lambda: k.e(f"s_lshl_b32 s73, s{sB}, 10", f"s_lshr_b32 s71, s{sCS}, 1", "s_lshl_b32 s71, s71, 8", "s_add_u32 s73, s73, s71", f"s_and_b32 s71, s{sCS}, 1",
        "s_lshl_b32 s71, s71, 3", "s_add_u32 s73, s73, s71"))
    out.append(lambda: k.e(f"s_lshl_b32 s71, s{sW}, 7", "s_add_u32 s73, s73, s71", f"s_add_u32 s73, s73, {WS_HST - 256}",
        f"s_cmp_ge_u32 s{sW}, 2", f"s_cselect_b32 s73, s73, {OOB>>1:#x}"))
    out.append(lambda: k.e(f"s_lshl_b32 s70, s{sB}, 3", f"s_add_u32 s70, s70, s{sCS}", "s_lshl_b32 s70, s70, 1", f"s_add_u32 s70, s70, s{sW}", "s_lshl_b32 s70, s70, 7",
        f"s_add_u32 s70, s70, {WS_HXF - 256}", f"s_cmp_ge_u32 s{sW}, 2", f"s_cselect_b32 s91, s70, {OOB>>1:#x}"))
    return out

def a11_x(k, tile):
    fns = []
    for i in range(4):
        def f(i=i):
            k.set_m0(f"s_add_u32 m0, s49, {A11_POS[tile]*16384 + (i*1024 if P.x_out else 0)}")
            k.e(f"s_add_u32 s32, s{48 if tile == 'h' else 47}, s{92+i}")
            if tile not in (0, "h"): k.e(f"s_add_u32 s32, s32, {tile*16384}")
            k.vm(f"buffer_load_dwordx4 v{RX(False)}, {SRD_WS if tile == 'h' else XS()}, s32 offen offset:{0 if P.x_out else i*1024} sc1 lds", ("x", tile))
        fns.append(f)
    return fns

def stats_path(k, fx, S, tag, addr, tok, at=0):
    a = lambda txt, c=1: fx.add(lambda: k.e(txt), c)
    s, q = S, S + 1
    fx.add(lambda: k.wait(vm=[tag]), 1, at)
    a(f"v_add_f32 v{s}, v{s}, v{S+2}"); a(f"v_add_f32 v{q}, v{q}, v{S+3}"); fx.skip(1)
    a(f"v_permlane16_swap_b32 v{s}, v{q}", 2); a(f"v_add_f32 v{s}, v{s}, v{q}"); a(f"v_mov_b32 v{q}, v{s}"); fx.skip(1)
    a(f"v_permlane32_swap_b32 v{s}, v{q}", 2); a(f"v_add_f32 v{s}, v{s}, v{q}"); a(f"v_mov_b32 v{q}, v{s}"); fx.skip(1)
    a(f"v_permlane16_swap_b32 v{s}, v{q}", 2)
    ln_finish(a, s, q); a(f"v_rsq_f32 v{q}, v{q}", 2); fx.skip(1)
    fx.add(lambda: (k.ds(f"ds_write_b64 v{addr}, {vr(s,2)} offset:{tok*8}", ("saw", tag)), k.mark(("saw", tag))))

def a11_early(k, later=False):
    fns = a11_x(k, A11_ORDER[0]) + [lambda: k.vm(f"buffer_load_dwordx4 {vr(A_ST,4)}, v{A_U}, {SRD_WS}, s90 offen offset:2048 sc1", "st0")] + a11_x(k, A11_ORDER[1])
    if later: return fns
    for f in fns: f()

def a11_main(k):
    R = R1; order = A11_ORDER
    steps = [(t, s) for t in order for s in range(16)]
    accof = lambda t: A_ACC + 12 * (order.index(t) % 3)
    def xread(i):
        t, s = steps[i]
        off = A11_POS[t] * 16384 + (s >> 1) * 1024
        k.ds(f"ds_read_b128 {vr(A_XF+4*(i%4),4)}, v{R.XO if s&1 else R.XE} offset:{off}", ("xf", i))
    mains = []; fixed = {}; gap_of = {}
    need_sa = {order[1]: ["st0"], order[2]: ["st1"], order[3]: [], "h": []}
    for i, (t, s) in enumerate(steps):
        acc = accof(t); xf = vr(A_XF + 4*(i % 4), 4)
        c = lambda r, s=s: "0" if s == 0 else vr(r, 4)
        ms = []
        if t != "h": ms.append(f"{MF16} {vr(acc,4)}, {ar(12*s,4)}, {xf}, {c(acc)}")
        ms.append(f"{MF16} {vr(acc+4,4)}, {ar(12*s+4,4)}, {xf}, {c(acc+4)}")
        ms.append(f"{MF16} {vr(acc+8,4)}, {xf}, {ar(12*s+8,4)}, {c(acc+8)}")
        gap_of[(t, s)] = len(mains)
        for m in ms: mains.append(lambda m=m: k.e(m))
        last = len(mains) - 1
        fl_ = fixed.setdefault(last, [])
        if i + 1 < len(steps): fl_.append((0, lambda i=i: k.wait(lg=[("xf", i + 1)])))
        j = i + 4
        if j < len(steps):
            tj, sj = steps[j]
            if sj == 0:
                def bar(tj=tj):
                    k.wait(vm=[("x", tj)], lg=[("saw", n) for n in need_sa[tj]]); k.e("s_barrier"); k.mark(("bar", tj))
                fixed.setdefault(gap_of[(t, s)], []).append((1, bar))
            fixed[last].append((1, lambda j=j: xread(j)))
    fx = Flex(); fz = Flex(); fz2 = Flex(); fy = Flex(); fm = Flex()
    k.e(f"s_and_b32 s32, s{sW}, 1", "s_lshl_b32 s32, s32, 7", f"v_add_u32 v6, s32, v{R.SA}")
    o_bases(k, 1)
    stats_path(k, fy, A_ST, "st0", 6, 48)
    g1 = P.a1_late_gap
    fm.add(lambda: (k.wait(vm=[("xst", 1)]), k.flag(2)), 3, P.a1_flag_gap)
    fm.add(lambda: (k.poll_issue(A_PX, "px2"), setattr(k, "bg_held", not P.a1_bg_early)), 1, g1 - P.a1_poll_lead)
    fm.add(lambda: k.poll_check(A_PX, "px2", 2), 2, g1)
    fm.add(lambda: k.vm(f"buffer_load_dwordx4 {vr(56,4)}, v{A_U}, {SRD_WS}, s90 offen sc1", "st1"))
    for t in order[2:4]:
        for f in a11_x(k, t): fm.add(f, 2); fm.skip(P.a1_xgap)
    for f in wo_lanes(k): fy.add(f)
    fy.add(lambda: k.mark("wolanes"), 0)
    fm.dep("wolanes")
    for p in range(2):
        fm.add(lambda p=p: (k.e(f"s_add_u32 s58, s64, {BX2() + (p << (2 + LSH()))}"), k.vm(f"buffer_load_dwordx4 {vr(RES+4*p,4)}, v{W_UA}, {XS()}, s58 offen sc1", "res")), 2); fm.skip(P.a1_xgap)
    def halo_poll():
        k.poll_addr(A_PX, 16, 7)
        k.e(f"s_mov_b32 s{sPO}, s52", f"s_min_u32 s50, s{sB}, 1")
        k.poll_issue(A_PX, "phx"); k.bg_held = False
    fm.add(halo_poll, 3)
    for c in P.t1_a1:
        if c == "o": fm.add(lambda: k.touch(60, "p", ["s_mov_b32 s32, s53"]), 6)
        if c == "x": fm.add(lambda: k.touch(62, "q", [f"s_add_u32 s32, s64, {BX2()}"]), 6)
        if c == "s": fm.add(lambda: k.touch(64, "t", [f"s_add_u32 s32, s65, {BS1[1]}"]), 4)
    for f in blanks(k, 1): fm.skip(P.a1_xgap); fm.add(f, 3)
    stats_path(k, fy, 56, "st1", 6, 16, g1 + 26)
    fm.dep(("bar", order[2]))
    fm.add(lambda: k.poll_check(A_PX, "phx", "s50"), 2)
    fm.add(lambda: k.vm(f"buffer_load_dwordx4 {vr(A_ST,4)}, v{A_U+1}, {SRD_WS}, s51 offen sc1", "sth"))
    for f in a11_x(k, "h"): fm.add(f, 2); fm.skip(P.a1_xgap)
    stats_path(k, fy, A_ST, "sth", R.SA, 0, gap_of[(order[3], P.a1_sth)])
    k.per = dict(P.per_a1); k.bg_held = True
    b5 = batch(k, 5)
    mix = [(f, "s2", ("gw", 4), None) for f in batch(k, 4)] + [(f, "s2", ("gw", 5), None) for f in b5[:3]]
    ww = [(f, "s4", "wow", None) for f in wow(k)]
    while mix or ww:
        k.bg += ww[:2]; ww = ww[2:]
        if mix: k.bg.append(mix.pop(0))
    bg_batches(k, [0], "s2", lambda b: ("bar", order[3]))
    bg_batches(k, [1], "s2", lambda b: ("bar", "h"))
    bg_batches(k, [2, 3], "s2", lambda b: "wobar")
    bg_list(k, b5[3:], "s2", ("gw", 5), "wobar")
    if P.dn1_agpr:
        for j, f in enumerate(regloads(k, sDS, 16*1024, lambda j: ar(4*j, 4), 40, "dnr", tagf=lambda j: ("dnr", 8 + j // 2))): k.bg_add(f, "s4", ("dnr", 8 + j // 2), "gemm_done")
    bg_batches(k, [6, 7, 8, 9], "s2", lambda b: "gubar")
    A = lambda t: (accof(t) if t != "h" else None, accof(t) + 4, accof(t) + 8)
    for n in range(4): fix(k, R, fx, order[n], A(order[n]), gap_of[(order[n + 1], 1 if n < 3 else 2)], False)
    attn(k, R, fz, 3, R.ATT[0]); attn(k, R, fz2, 2, R.ATT[1]); ostore(k, fz2, 1)
    attn(k, R, fz, 1, R.ATT[0])
    fx.dep(("saw", "sth"))
    for f in fix_reads(k, R, "h", A_STA): fx.add(f)
    fx.dep("gemm_done")
    fix(k, R, fx, "h", A("h"), 0, False, pre=True); attn(k, R, fz2, 0, R.ATT[1]); ostore(k, fz2, 0)
    f3 = Flex(); f3.dep(("ost", 1)); f3.skip(P.l1_flag_delay)
    f3.add(lambda: (k.wait(vm=[("ost", 1)]), k.flag(1, 89), k.mark("oflag1")), 3)
    f3.dep(("attn", 0)); f3.add(lambda: wo_prepoll(k, 1))
    k.wait(vm=[("x", order[0])]); k.e("s_barrier")
    for i in range(4): xread(i)
    k.wait(lg=[("xf", 0)])
    k.stamp("a1 first")
    if k.stamping or P.jitter:
        for t in order[1:]: fixed.setdefault(gap_of[(t, 0)], []).append((0, lambda t=t: k.stamp(f"a1 t{t}")))
        for g in range(6, 224, 12): fixed.setdefault(g, []).append((0, lambda g=g: k.stamp(f"fina {g}")))
    run_gaps(k, mains, fixed, [fm, f3, fy, fx, fz2, fz], 2, over=lambda i: i >= P.a1_over)
    print("a11 left:", len(fm), len(fy), len(fx), len(fz), len(fz2), len(k.bg), {n: g for n, g in k.marks.items() if isinstance(n, tuple) and n[0] in ("fix", "attn", "saw", "ost")})
    k.mark("gemm_done"); k.bg_held = P.a1_tailhold
    k.stamp("a1 gemm")
    drain([fm, fy, fx, fz, fz2, f3], k)
    for n in range(2): assert k.marks[("fix", order[n])] < gap_of[(order[n + 3], 0)], "accumulator reused too early"
    k.stamp("a1 end")
P.a1_flag_gap, P.a1_late_gap, P.a1_poll_lead, P.l1_flag_delay, P.a1_over = 8, 36, 18, 14, 24
P.a1_bg_early = False; P.a1_salead = 12; P.a1_tailhold = True; P.touch1 = 1; P.t1_a1 = ''; P.t1_dn = ''; P.a1_xgap = 3; P.a1_sth = 0
P.per_a1 = {"s2": 80, "s4": 50}

R_W0, R_W1, R_RD, R_ST, R_OUT = 3, 4, 5, 6, 7
def RX(final): return vL16 if not P.x_out else (29 if final else R_OUT)
def red_setup(k, posA, dAB, final):
    x, y, z, u = 28, 29, 30, 31
    k.e(f"s_add_u32 s32, s{sGL}, {posA*16384}", f"v_add_u32 v{R_W0}, s32, v{vL16}", f"v_xor_b32 v{R_W1}, 128, v{R_W0}")
    k.e(f"v_and_b32 v{x}, 7, v1", f"v_lshrrev_b32 v{y}, 3, v1", f"s_lshl_b32 s32, s{sW}, 7", f"v_lshl_add_u32 v{z}, v{x}, 4, s32",
        f"v_bfe_u32 v{u}, v1, 4, 1", f"v_lshlrev_b32 v{R_RD}, 7, v{u}", f"v_xor_b32 v{z}, v{z}, v{R_RD}",
        f"v_bfe_u32 v{R_RD}, v1, 3, 2", f"v_lshl_add_u32 v{z}, v{R_RD}, 10, v{z}", f"v_lshrrev_b32 v{R_RD}, 5, v1",
        f"v_mul_u32_u24 v{R_RD}, {dAB*16384}, v{R_RD}", f"v_add_u32 v{z}, v{z}, v{R_RD}", f"v_add_u32 v{R_RD}, {posA*16384}, v{z}")
    k.e(f"v_lshlrev_b32 v{z}, 4, v{x}", f"v_lshl_add_u32 v{z}, v{u}, 2, v{z}", f"v_and_b32 v{u}, 0x28, v1",
        f"v_cmp_eq_u32 vcc, 0, v{u}", f"v_mov_b32 v{u}, {OOB:#x}", f"v_cndmask_b32 v{R_ST}, v{u}, v{z}, vcc")
    if final: k.e(f"v_lshlrev_b32 v{z}, 10, v{x}", f"v_lshl_add_u32 v{R_OUT}, v{y}, 4, v{z}")
    if P.x_out: k.e(f"v_lshlrev_b32 v{z}, 10, v{y}", f"v_lshl_add_u32 v{RX(final)}, v{x}, 4, v{z}")

def red_bases(k):
    k.e(f"s_lshl_b32 s32, s{sB}, 3", f"s_add_u32 s32, s32, s{sW}", "s_lshl_b32 s55, s32, 13", f"s_lshl_b32 s33, s{sCS}, {CSH()}", "s_add_u32 s55, s55, s33")
    k.e("s_lshl_b32 s57, s32, 13", f"s_lshl_b32 s33, s{sCS}, 7", "s_add_u32 s57, s57, s33")
    k.e(f"s_lshl_b32 s56, s{sB}, 12", f"s_lshr_b32 s33, s{sCS}, 1", "s_lshl_b32 s33, s33, 9", "s_add_u32 s56, s56, s33",
        f"s_and_b32 s33, s{sCS}, 1", "s_lshl_b32 s33, s33, 3", "s_add_u32 s56, s56, s33", f"s_lshl_b32 s33, s{sW}, 7", "s_add_u32 s56, s56, s33")

def red_writes(k, acc, g, off, dAB):
    return [lambda q=q: k.ds(f"ds_write_b128 v{R_W1 if (q>>1)&1 else R_W0}, {vr(acc+4*q,4)} offset:{off + (q>>2)*dAB*16384 + (q&3)*1024}", ("rw", g)) for q in range(8)]
def red_reads(k, g, T, off):
    return [lambda w=w, hf=hf: k.ds(f"ds_read_b128 {vr(T+8*w+4*hf,4)}, v{R_RD} offset:{off + w*4096 + hf*512}", ("rr", g, w)) for w in range(4) for hf in range(2)]

def red_finish(k, fx, g, mm, T, xdst, stdst, final, pk):
    a = lambda txt, c=1: fx.add(lambda: k.e(txt), c)
    R = RES + 4 * mm
    def add8(d, s):
        if pk:
            for i in range(0, 8, 2): a(f"v_pk_add_f32 {vr(d+i,2)}, {vr(d+i,2)}, {vr(s+i,2)}")
        else:
            for i in range(8): a(f"v_add_f32 v{d+i}, v{d+i}, v{s+i}")
    fx.add(lambda: k.wait(lg=[("rr", g, 1)]))
    add8(T, T + 8)
    for i in range(4): a(f"v_lshlrev_b32 v{T+8+2*i}, 16, v{R+i}"); a(f"v_and_b32 v{T+9+2*i}, 0xffff0000, v{R+i}")
    add8(T, T + 8)
    fx.add(lambda: k.wait(lg=[("rr", g, 3)]))
    add8(T + 16, T + 24); add8(T, T + 16)
    for i in range(4): a(f"v_cvt_pk_bf16_f32 v{R+i}, v{T+2*i}, v{T+2*i+1}")
    if final:
        fx.add(lambda: (k.e(f"s_add_u32 s32, s57, {mm*32768}"), k.vm(f"buffer_store_dwordx4 {vr(R,4)}, v{R_OUT}, {SRD_OUT}, s32 offen {P.outm[g]}", ("xst", g))))
        return
    fx.add(lambda: (k.e(f"s_add_u32 s32, s55, {xdst + mm*32768}"), k.dstore(f"buffer_store_dwordx4 {vr(R,4)}, v{RX(final)}, {XS()}, s32 offen", ("xst", g))), 2)
    s, q = T + 32, T + 33
    a(f"v_add_f32 v{s}, v{T}, v{T+1}"); a(f"v_mul_f32 v{q}, v{T}, v{T}"); a(f"v_fmac_f32 v{q}, v{T+1}, v{T+1}")
    for i in range(2, 8): a(f"v_add_f32 v{s}, v{s}, v{T+i}"); a(f"v_fmac_f32 v{q}, v{T+i}, v{T+i}")
    fx.skip(1)
    a(f"v_add_f32_dpp v{s}, v{s}, v{s} row_ror:8 row_mask:0xf bank_mask:0xf"); a(f"v_add_f32_dpp v{q}, v{q}, v{q} row_ror:8 row_mask:0xf bank_mask:0xf")
    fx.skip(1)
    a(f"v_permlane16_swap_b32 v{s}, v{q}", 2); a(f"v_add_f32 v{s}, v{s}, v{q}"); a(f"v_mov_b32 v{q}, v{s}"); fx.skip(1)
    a(f"v_permlane32_swap_b32 v{s}, v{q}", 2); a(f"v_add_f32 v{s}, v{s}, v{q}")
    fx.add(lambda: (k.e(f"s_add_u32 s32, s56, {stdst + mm*2048}"), k.dstore(f"buffer_store_dword v{s}, v{R_ST}, {SRD_WS}, s32 offen", ("xst", g)), k.mark(("xst", g))), 2)

def merge(k, fx, extra, first=0):
    extra = list(extra)
    items = [it for it in fx.items if it[0] != "skip"]; fx.items = []
    per = max(1, (len(items) - first) // max(1, len(extra)))
    for n, it in enumerate(items):
        if n >= first and (n - first) % per == 0 and extra: extra.pop(0)()
        it[1](); k.bg_step()
    for f in extra: f(); k.bg_step()

def wo(k, layer):
    BF, WQ, ACC, T, PA, NQ = 32, 160, 192, 208, A_PA, 8
    state = {}
    def bload(sx):
        k.set_s(f"s_add_u32 s58, s59, {(sx & ~1)*2048}")
        k.vm(f"buffer_load_dwordx4 {vr(BF+4*sx,4)}, v{W_OA}, {SRD_WS}, s58 offen offset:{(sx%2)*2048} sc1", ("b", sx))
    def wread(n): k.ds(f"ds_read_b128 {vr(WQ+4*(n%NQ),4)}, v{W_RB} offset:{n*1024}", ("wq", n))
    k.wait(vm=["wow"]); k.e("s_barrier"); k.mark("wobar")
    k.stamp("wl bar")
    for n in range(NQ): wread(n)
    btxt = lambda sx: [f"s_add_u32 s99, s59, {sx*2048}", f"buffer_load_dwordx4 {vr(BF+4*sx,4)}, v{W_OA}, {SRD_WS}, s99 offen sc1"]
    bchk = lambda sx: k.valid([f"v_cmp_eq_u32 vcc, -1, v{BF+4*sx}"], btxt(sx))
    ptxt = f"buffer_load_dword v{T+20}, v{T+21}, {SRD_WS}, s59 offen sc1"
    if P.tags:
        k.e(f"v_lshlrev_b32 v{T+21}, 8, v{PA}")
        k.e(f"v_or_b32 v{T+21}, v{T+21}, v{PA}", f"v_and_b32 v{T+21}, 0x80007c00, v{T+21}")
        k.poll_check(PA, "po1", 1)
        k.vm(ptxt, "probe")
        for sx in range(P.wo_spec): bload(sx)
        k.e(f"s_lshl_b32 s32, s{sC}, 1", f"s_and_b32 s33, s{sW}, 1", "s_add_u32 s32, s32, s33", "s_lshl_b32 s32, s32, 7", f"s_add_u32 s{sPO}, s32, {fl(layer, FL_O)}")
    else:
        k.e(f"s_add_u32 s{sFO}, s66, {fl(layer, FL_X1)}")
        k.codepf(96)
        if P.wo_setup_first == 2: gu_setup(k, layer)
        k.wait(vm=[("ost", 0)]); k.stamp("wl ack"); k.flag(2, 89)
        k.e(f"s_cmp_lt_u32 s{sW}, 2", f"s_cbranch_scc1 L_wo_late{layer}")
        q0 = list(k.vmq)
        k.poll_check(PA, "po1", 1)
        for sx in range(P.wo_lead): bload(sx)
        if P.wo_setup_first == 1: gu_setup(k, layer)
        k.e(f"s_branch L_wo_join{layer}")
        k.label(f"L_wo_late{layer}")
        k.vmq = list(q0)
        if P.wo_setup_first == 1: gu_setup(k, layer)
        k.poll_issue(PA, "po2"); k.poll_wait(PA, "po2", 2, 157); k.stamp("wl go")
        for sx in range(P.wo_lead): bload(sx)
        k.label(f"L_wo_join{layer}")
    if P.tags or not P.wo_setup_first: gu_setup(k, layer)
    k.stamp("wo issued")
    mains = []; fixed = {}
    for n in range(64):
        sx, j = divmod(n, 4)
        mains.append(lambda n=n, sx=sx, j=j: k.e(f"{MF16} {vr(ACC+4*j,4)}, {vr(WQ+4*(n%NQ),4)}, {vr(BF+4*sx,4)}, {'0' if sx == 0 else vr(ACC+4*j,4)}"))
        fl_ = fixed.setdefault(n, [])
        if n < 63: fl_.append((0, lambda n=n: k.wait(vm=[("b", (n + 1) // 4)] if (n + 1) % 4 == 0 else None, lg=[("wq", n + 1)])))
        if P.tags and n < 63 and (n + 1) % 4 == 0: fl_.append((1, lambda n=n: bchk((n + 1) // 4)))
        if P.tags and n == 42: fl_.append((1, lambda: k.poll_issue(PA, "px1")))
        if n + NQ < 64: fl_.append((1, lambda n=n: wread(n + NQ)))
        if n % P.wo_bstep == 0 and P.wo_lead + n // P.wo_bstep < 16: fl_.append((1, lambda n=n: bload(P.wo_lead + n // P.wo_bstep)))
    fx = Flex()
    a = lambda txt, c=1, at=0: fx.add(lambda: k.e(txt), c, at)
    fx.add(lambda: k.wait(vm=["res"]), 1, 8)
    for i in range(8): a(f"v_lshlrev_b32 v{T+2*i}, 16, v{RES+i}"); a(f"v_and_b32 v{T+2*i+1}, 0xffff0000, v{RES+i}")
    k.per = dict(P.per_wo[layer]); k.bg_held = False; k.bg_next = k.t + P.wo_bg_delay
    if P.tags:
        k.wait(vm=["probe"])
        k.valid([f"v_cmp_eq_u32 vcc, -1, v{T+20}"], [ptxt] + sum([btxt(x) for x in range(P.wo_spec)], []))
        state["fresh"] = True
        for sx in range(P.wo_spec, P.wo_lead): bload(sx)
    k.wait(vm=[("b", 0)], lg=[("wq", 0)])
    if P.tags: bchk(0)
    k.stamp("wo first")
    fixed[P.wo_bg_stop].append((0, lambda: setattr(k, "bg_held", True)))
    run_gaps(k, mains, fixed, [fx], 2)
    drain([fx], k)
    k.stamp("wo gemm")
    for i in range(0, 16, 2): k.e(f"v_pk_add_f32 {vr(T+i,2)}, {vr(T+i,2)}, {vr(ACC+i,2)}")
    for p in range(2):
        k.e(f"s_add_u32 s58, s64, {BX2() + (p << (2 + LSH()))}")
        for i in range(4): k.e(f"v_cvt_pk_bf16_f32 v{RES+4*p+i}, v{T+8*p+2*i}, v{T+8*p+2*i+1}")
        k.dstore(f"buffer_store_dwordx4 {vr(RES+4*p,4)}, v{W_UA}, {XS()}, s58 offen", "xst")
    S, Q = T + 16, T + 18
    k.e(f"v_pk_add_f32 {vr(S,2)}, {vr(T,2)}, {vr(T+2,2)}", f"v_pk_mul_f32 {vr(Q,2)}, {vr(T,2)}, {vr(T,2)}", f"v_pk_fma_f32 {vr(Q,2)}, {vr(T+2,2)}, {vr(T+2,2)}, {vr(Q,2)}")
    for i in range(4, 16, 2): k.e(f"v_pk_add_f32 {vr(S,2)}, {vr(S,2)}, {vr(T+i,2)}", f"v_pk_fma_f32 {vr(Q,2)}, {vr(T+i,2)}, {vr(T+i,2)}, {vr(Q,2)}")
    k.e(f"v_add_f32 v{S}, v{S}, v{S+1}", f"v_add_f32 v{Q}, v{Q}, v{Q+1}", f"s_add_u32 s58, s65, {BS1[layer]}",
        f"v_permlane16_swap_b32 v{S}, v{Q}", f"v_add_f32 v{S}, v{S}, v{Q}", f"v_mov_b32 v{Q}, v{S}", f"v_permlane32_swap_b32 v{S}, v{Q}", f"v_add_f32 v{S}, v{S}, v{Q}")
    k.dstore(f"buffer_store_dword v{S}, v{W_SA}, {SRD_WS}, s58 offen", "xst")
    key = lambda it: it[2][1] if (isinstance(it[2], tuple) and it[2][0] == "gw") else 11.5
    k.bg.sort(key=key)
    print(f"wo{layer} done, background left:", [it[2] for it in k.bg][::4])
    k.bg_burst(P.wo_win[layer])
    k.stamp("wo end")
P.wo_bg_delay = 750; P.wo_bg_stop = 63; P.wo_lead = 6; P.wo_spec = 3; P.gu_spec = 3; P.wo_bstep = 2
P.wo_poll_gap = 1; P.wo_late_gap = 7; P.wo_hold = True; P.wo_win = [4, 4]; P.wo_var = 'B'; P.wo_prew = 2
P.per_wo = [{"s2": 20, "s4": 20}] * 2

G_RB, G_C1, G_VV, G_AUG, G_X, G_ACC, G_WF, G_T = 3, 6, 7, 28, 32, 160, 224, 240
D_WV, D_BF, D_ACC, D_T, D_WF, D_RB, D_PA = 32, 64, 128, 192, 228, 112, 115
DN_SEQ = [(g, e) for g in range(2) for e in range(28)]
DN_GROUPS = [1, 0]
def h_loader(k, layer):
    def bload(i):
        if i == 0:
            k.e(f"s_mul_i32 s32, s{sB}, {224*KB}", f"s_mul_i32 s33, s{sW}, {28*KB}", "s_add_u32 s32, s32, s33", f"s_add_u32 s59, s32, {BH[layer]}")
            for p in range(4):
                k.e(f"s_add_u32 s32, s{sCS}, {p}", f"s_and_b32 s32, s32, {3 if P.hrot else 0}", f"s_mul_i32 s32, s32, {7*KB}", f"s_add_u32 s{34+p}, s59, s32")
                if not P.hrot: k.e(f"s_add_u32 s{34+p}, s{34+p}, {7*KB*p}")
        g, e = DN_SEQ[i]; p, tl = divmod(KK_OF[e], 7)
        k.set_s(f"s_add_u32 s58, s{34+p}, {DN_GROUPS[g] * 112 * KB + (tl & 4) * 1024}")
        k.vm(f"buffer_load_dwordx4 {vr(D_BF+4*(i%P.dn_lead),4)}, v{vL16}, {SRD_WS}, s58 offen offset:{(tl & 3)*1024} sc1", ("b", i))
    return bload

def gu_setup(k, layer):
    T = G_T; XA = T + 3
    k.e(*gu_tile("s50"))
    k.e(f"v_and_b32 v{T}, 31, v1")
    k.e(f"v_mov_b32 v{G_RB}, v{vL16}", f"v_add_u32 v{G_RB+1}, 0x10000, v{vL16}", f"v_add_u32 v{G_RB+2}, 0x20000, v{vL16}")
    k.e(f"v_lshrrev_b32 v{T+1}, 5, v1", f"v_lshlrev_b32 v{G_AUG+3}, 4, v{T}", f"v_lshl_add_u32 v{G_AUG+3}, v{T+1}, 10, v{G_AUG+3}")
    k.e(f"v_lshrrev_b32 v{XA}, 3, v{T}", f"v_lshlrev_b32 v{XA}, 13, v{XA}", f"v_lshl_add_u32 v{XA}, v{T+1}, {LSH()}, v{XA}",
        f"v_and_b32 v{T}, 7, v1", f"v_lshl_add_u32 v{XA}, v{T}, 4, v{XA}")
    k.e("s_lshl_b32 s32, s50, 11", f"s_add_u32 s51, s32, {BS1[layer]}")
    k.e("s_lshl_b32 s32, s50, 15", f"s_add_u32 s52, s32, {BX2()}", "s_add_u32 s53, s52, 4096")
    k.e(*h_base("s54", layer))
    k.e("s_lshr_b32 s32, s50, 1", "s_lshl_b32 s32, s32, 4", f"s_add_u32 s32, s32, s{sM}",
        "s_lshl_b32 s32, s32, 1", "s_and_b32 s33, s50, 1", "s_add_u32 s32, s32, s33", "s_lshl_b32 s32, s32, 2", f"s_add_u32 s81, s32, {fl(layer, FL_H)}")

def gu(k, layer):
    T = G_T; XA = T + 3; PA = T + 2
    if P.tags: k.poll_check(A_PA, "px1", 1)
    else:
        def pa():
            k.poll_addr(PA, 16)
            k.e("s_lshl_b32 s32, s50, 6", f"s_add_u32 s{sPO}, s32, {fl(layer, FL_X1)}")
        if not P.gu_pa_late: pa()
        k.wait(vm=["xst"]); k.flag(1)
        if P.gu_pa_late: pa()
        k.stamp("x1 flag")
        if not P.gu_bar_first: k.poll_issue(PA, "px1")
    k.e(f"s_mov_b32 s{sFO}, s81")
    seq = [(t, ks) for ks in range(33) for t in range(3)] + [(t, ks) for t in range(3, 7) for ks in range(33)]
    accof = {0: 0, 1: 1, 2: 2, 3: 3, 4: 0, 5: 1, 6: 2}
    NW = P.gu_nw
    WQ = [G_WF, G_WF + 4, G_WF + 8, G_WF + 12, T + 12]
    def wread(n):
        slot = (n % 160) * 1024
        k.ds(f"ds_read_b128 {vr(WQ[n%NW],4)}, v{G_RB + (slot>>16)} offset:{slot & 0xffff}", ("wf", n))
    BARS = P.gu_bars[layer]
    cover = lambda bi: [("gw", b) for b in range(bi, min([x for x in BARS if x > bi] + [15]))]
    def ringbar():
        k.wait(vm=cover(0)); k.e("s_barrier"); k.mark("gubar")
        for n in range(NW): wread(n)
    if P.gu_bar_first: ringbar(); k.poll_issue(PA, "px1")
    if not P.tags: k.poll_wait(PA, "px1", 1, 20)
    k.stamp("gu go")
    xoff = lambda kg: ((kg >> 2) << CSH()) + ((kg & 3) << (1 + LSH()))
    xtxt = lambda kg: f"buffer_load_dwordx4 {vr(G_X+4*kg,4)}, v{XA}, {XS()}, s{52 + (xoff(kg) >> 12)} offen offset:{xoff(kg) & 4095} sc1"
    def xload(kg): k.vm(xtxt(kg), ("gx", kg))
    xchk = lambda kg: k.valid([f"v_cmp_eq_u32 vcc, -1, v{G_X+4*kg}"], [xtxt(kg)])
    stxt = [f"buffer_load_dwordx4 {vr(T+4+4*h,4)}, v{G_AUG+3}, {SRD_WS}, s51 offen offset:{512*h} sc1" for h in range(2)]
    if P.tags:
        for t_ in stxt: k.vm(t_, "gst")
        for kg in range(P.gu_spec): xload(kg)
        k.wait(vm=["gst"])
        k.valid([f"v_max3_u32 v{T}, v{T+4}, v{T+6}, v{T+8}", f"v_max_u32 v{T}, v{T}, v{T+10}", f"v_cmp_eq_u32 vcc, -1, v{T}"],
                stxt + [xtxt(x) for x in range(P.gu_spec)])
        k.stamp("gu probe")
        for kg in range(P.gu_spec, P.gu_lead): xload(kg)
    else:
        for kg in range(P.gu_lead): xload(kg)
        for t_ in stxt: k.vm(t_, "gst")
    if not P.gu_bar_first: ringbar()
    mains = []; fixed = {}
    xpos = {}
    for kg in range(P.gu_lead, 32): xpos.setdefault(int((kg - P.gu_lead) * P.gu_xstep), []).append(kg)
    for n, (t, ks) in enumerate(seq):
        acc = G_ACC + 16 * accof[t]
        b = vr(G_AUG, 4) if ks == 32 else vr(G_X + 4*ks, 4)
        c = "0" if ks == 0 else vr(acc, 16)
        mains.append(lambda n=n, acc=acc, b=b, c=c: k.e(f"{MF32} {vr(acc,16)}, {vr(WQ[n%NW],4)}, {b}, {c}"))
        fl_ = fixed.setdefault(n, [])
        if n + 1 < len(seq):
            t2, ks2 = seq[n + 1]
            need = [("gx", ks2)] if (t2 == 0 and ks2 < 32) else None
            fl_.append((0, lambda n=n, need=need: k.wait(vm=need, lg=[("wf", n + 1)])))
            if need and P.tags: fl_.append((2, lambda ks2=ks2: xchk(ks2)))
        j = n + NW
        if j < len(seq):
            if j % 16 == 0 and j // 16 in BARS:
                fl_.append((2, lambda bi=j//16: (k.wait(vm=cover(bi)), k.e("s_barrier"), [k.mark(("gbar", b)) for b in range(bi + 1)])))
            fl_.append((1, lambda j=j: wread(j)))
        for kg in xpos.get(n, []): fl_.append((1, lambda kg=kg: xload(kg)))
    xend = max(xpos)
    tail = [it for it in k.bg if it[2] == "dna" or it[2][0] == "dnr"]; k.bg = [it for it in k.bg if not (it[2] == "dna" or it[2][0] == "dnr")]
    bg_batches(k, range(10, 15), "s2", lambda b: ("gbar", b - 8))
    first, ratio = P.gu_mix[layer]
    mid = k.bg[first:]; k.bg = k.bg[:first]; acc_ = 0.0
    while mid or tail:
        if mid: k.bg.append(mid.pop(0))
        acc_ += ratio
        while tail and (acc_ >= 1 or not mid): k.bg.append(tail.pop(0)); acc_ -= 1
    direct = layer == 1 and P.dn1_agpr
    if not direct: bg_batches(k, range(15, 23), "s4", lambda b: ("gbar", b - 8))
    k.per = dict(P.per_guA[layer]); k.bg_held = False; k.bg_next = k.t + P.gu_bg_delay
    fixed[xend].append((0, lambda: setattr(k, "per", dict(P.per_guB[layer]))))
    fv = Flex()
    dv = regloads(k, sDS, 48*1024, lambda j: vr(D_WV + 4*j, 4), 8, "dnv")
    k.hload = h_loader(k, layer)
    if direct: pass
    elif P.HPRE[layer]:
        bg_list(k, dv, "s4", "dnv", "xdead")
        fixed[207].append((0, lambda: k.mark("xdead")))
    else:
        for j, f in enumerate(dv): fv.add(f, 1, 198 + 2 + 3*j)
    fx = Flex()
    a = lambda txt, c=1, at=0: fx.add(lambda: k.e(txt), c, at)
    fx.add(lambda: k.wait(vm=["gst"]), 1, 3 * P.gu_lead)
    a(f"v_add_f32 v{T+4}, v{T+4}, v{T+6}"); a(f"v_add_f32 v{T+5}, v{T+5}, v{T+7}"); a(f"v_add_f32 v{T+8}, v{T+8}, v{T+10}"); a(f"v_add_f32 v{T+9}, v{T+9}, v{T+11}")
    a(f"v_add_f32 v{T+4}, v{T+4}, v{T+8}"); a(f"v_add_f32 v{T+5}, v{T+5}, v{T+9}"); fx.skip(1)
    a(f"v_permlane32_swap_b32 v{T+4}, v{T+5}", 2); a(f"v_add_f32 v{T+4}, v{T+4}, v{T+5}"); a(f"v_mov_b32 v{T+5}, v{T+4}"); fx.skip(1)
    a(f"v_permlane32_swap_b32 v{T+4}, v{T+5}", 2)
    ln_finish(a, T + 4, T + 5)
    a(f"v_mov_b32 v{G_VV}, v{T+5}")
    a(f"v_rsq_f32 v{G_C1}, v{T+5}", 2); a(f"v_cvt_pk_bf16_f32 v{G_AUG}, v{T+4}, v{T+4}"); a(f"v_mul_f32 v{G_C1}, {f2u(-LOG2E):#x}, v{G_C1}")
    a(f"v_and_b32 v{T+5}, 0xffff0000, v{G_AUG}"); a(f"v_sub_f32 v{T+5}, v{T+4}, v{T+5}"); a(f"v_mov_b32 v{G_AUG+2}, 0")
    a(f"v_cvt_pk_bf16_f32 v{G_AUG+1}, v{T+5}, v{G_AUG+2}"); a(f"v_mov_b32 v{G_AUG+3}, 0")
    fx.add(lambda: k.mark("aug"), 0)
    def epi(t, at):
        acc = G_ACC + 16 * accof[t]; hp = (T + 8, RES + 4)[t & 1]; E = T + 4
        if t >= 2: fx.dep(("hst", t - 2))
        if P.x_noepi: a("s_nop 0", 1, at)
        for i0 in range(0, 8 if not P.x_noepi else 0, 2):
            for i in (i0, i0 + 1): a(f"v_mul_f32 v{E+(i&1)}, v{G_C1}, v{acc+i}", 1, at)
            for i in (i0, i0 + 1): a(f"v_exp_f32 v{E+(i&1)}, v{E+(i&1)}", 2)
            for i in (i0, i0 + 1): a(f"v_mul_f32 v{E+2+(i&1)}, v{acc+i}, v{acc+8+i}")
            for i in (i0, i0 + 1): a(f"v_fma_f32 v{E+(i&1)}, v{E+(i&1)}, v{G_VV}, v{G_VV}")
            for i in (i0, i0 + 1): a(f"v_rcp_f32 v{E+(i&1)}, v{E+(i&1)}", 2)
            fx.skip(1)
            for i in (i0, i0 + 1): a(f"v_mul_f32 v{E+2+(i&1)}, v{E+2+(i&1)}, v{E+(i&1)}")
            a(f"v_cvt_pk_bf16_f32 v{hp+i0//2}, v{E+2}, v{E+3}")
        fx.add(lambda: k.mark(("epi", t)), 0)
        txt = f"buffer_store_dwordx4 {vr(hp,4)}, v{vL16}, {SRD_WS}, s{54 if t < 4 else 82} offen offset:{(t%4)*1024}"
        plain = (layer and P.h1_plain) or (not layer and P.h_touch0)
        if P.h_np > 1 and t < P.h_stag and not plain:
            fx.add(lambda: k.mark(("hrdy", t)), 0)
            fh.dep(("hrdy", t))
            for j in range(P.h_np):
                def pos(j=j):
                    n = k.nspin; k.nspin += 1
                    k.e(f"s_cmp_lg_u32 s83, {j}", f"s_cbranch_scc1 L_sk{n} ;np", txt + " sc1 ;opt", f"L_sk{n}: ;np")
                    if j == P.h_np - 1:
                        k.vmq.append(("hst", t)); k.seen.add(("hst", t)); k.phantom.add(("hst", t)); k.mark(("hst", t))
                fh.add(pos, P.h_cost)
                if j < P.h_np - 1: fh.skip(P.h_d)
            if t >= 2: pass
        else:
            k.phantom.discard(("hst", t))
            fx.add(lambda: ((k.dstore if plain else lambda x, tg: k.vm(x + " sc1", tg))(txt, ("hst", t)), k.mark(("hst", t))), 2)
    fh = Flex()
    k.e("s_add_u32 s82, s54, 4096", f"s_lshl_b32 s32, s{sW}, {max(P.h_np.bit_length() - 3, 0)}", f"s_add_u32 s32, s32, s{sM}", f"s_add_u32 s32, s32, s{sC}", f"s_and_b32 s83, s32, {P.h_np - 1}")
    end = {t: max(n for n, x in enumerate(seq) if x[0] == t) for t in range(7)}
    for t in range(6): epi(t, end[t] + 3)
    if layer == 0 and P.h_touch0 == "g": fixed[xend + 1].append((5, lambda: k.touch(T, "h", ["s_mov_b32 s32, s54"])))
    if layer == 1 and P.x1_clean:
        for p in range(2):
            fixed[P.x1_clean + 8*p].append((3, lambda p=p: (k.e(f"s_add_u32 s58, s64, {BX2()}"),
                k.vm(f"buffer_store_dwordx4 {vr(RES+4*p,4)}, v9999, {SRD_WS}, s58 offen offset:{p*512} sc1", "clean"))))
    ff = Flex(); ff.dep(("hst", 3))
    if layer == 0:
        tx = [lambda: k.touch(T, "p", [f"s_add_u32 s32, s55, {BX2()}"]), lambda: k.touch(T + 1, "s", [f"s_add_u32 s32, s56, {BS2()}"])]
        if P.x2_touch == "h3": ff.add(tx[0], 6); ff.add(tx[1], 4)
        elif isinstance(P.x2_touch, int): fixed[P.x2_touch].append((5, tx[0])); fixed[P.x2_touch + 1].append((4, tx[1]))
        if "g" in str(P.touch1):
            for f in touch_next(k, T + 2)[:2]: ff.skip(1); ff.add(f, 6)
    ff.skip(P.gu_flag_delay)
    ff.add(lambda: (k.wait(vm=[("hst", 3)]), k.flag(1)), 3)
    def hpoll():
        k.wait(vm=["touch"] if "touch" in k.seen else None)
        k.poll_addr(T, 8)
        k.e(f"s_lshl_b32 s32, s{sB}, 7", f"s_lshl_b32 s33, s{sW}, 5", "s_add_u32 s32, s32, s33", f"s_add_u32 s{sPO}, s32, {fl(layer, FL_H)}")
        k.poll_issue(T, "ph1")
    if P.HPRE[layer]:
        ff.add(hpoll, 4, P.hp_chk - 12)
        ff.add(lambda: (k.poll_check(T, "ph1", 1), setattr(k, "bg_held", True)), 3, P.hp_chk)
        for j in range(P.HPRE[layer]): ff.add(lambda j=j: k.hload(j), 2, max(208 + j, int(P.hp_chk + 1 + j * P.hp_step)))
    else: ff.add(hpoll, 4, 228)
    k.wait(vm=[("gx", 0)], lg=[("wf", 0)])
    if P.tags: xchk(0)
    k.stamp("gu first")
    if k.stamping or P.jitter:
        for g in (48, 98, 131, 164, 197): fixed[g].append((0, lambda g=g: k.stamp(f"gu m{g}")))
    fixed[93].append((0, lambda: k.marks["aug"]))
    run_gaps(k, mains, fixed, [fv, fh, ff, fx], P.gu_cap)
    print("gu left:", len(k.bg), len(fv), len(ff), len(fx), {n: g for n, g in k.marks.items() if isinstance(n, tuple) and n[0] == "hst"})
    k.stamp("gu gemm")
    for g, t in {132: 0, 165: 1, 198: 2}.items(): assert k.marks[("epi", t)] < g, "accumulator reused too early"
    epi(6, 0); drain([fh, ff, fv, fx], k)
    k.e(f"v_mov_b32 v{D_PA}, v{T}")
    k.stamp("gu end")
P.x2_touch = None; P.dn_x2 = 2; P.h_cost = 1; P.h_np = 1; P.h_d = 2; P.h_stag = 5; P.gu_mix = [(28, 1), (12, 1)]; P.hrot = 0; P.gu_bars = [[0, 2, 4, 6, 7, 8, 9, 10, 11, 12, 13, 14], [0, 3, 6, 8, 10, 12, 14]]; P.HPRE = [0, 0]; P.hp_chk = 208; P.hp_step = 2.2; P.gu_flag_delay = 10; P.gu_xstep = 2.6; P.gu_bg_delay = 300
P.per_guA = [{"s2": 120, "s4": 120}, {"s2": 160, "s4": 160}]
P.per_guB = [{"s2": 90, "s4": 55}, {"s2": 80, "s4": 50}]

def dn(k, layer):
    final = layer == 1
    NB = P.dn_lead; T = D_T
    groups = DN_GROUPS; seq = DN_SEQ; bload = k.hload
    early = Flex()
    def rb(): k.e(f"v_add_u32 v{D_RB}, s{sGL}, v{vL16}", f"v_add_u32 v{D_RB+1}, 0x10000, v{D_RB}", f"v_add_u32 v{D_RB+2}, 0x20000, v{D_RB}")
    if P.HPRE[layer]:
        for i in range(P.HPRE[layer], NB): bload(i)
        rb()
        class Rec:
            def e(self, *t):
                if any("vcc" in x or "s32" in x for x in t): early.add(lambda: k.e(*t), len(t))
                else:
                    for x in t: early.add(lambda x=x: k.e(x))
        red_setup(Rec(), 3, 1, final)
        early.add(lambda: (k.wait(vm=[("hst", 6)]), k.flag(2), k.poll_issue(D_PA, "ph2"), k.e(f"s_add_u32 s{sFO}, s89, {FL_X2 - FL_O}")), 5, P.dn_fgap)
    else:
        k.poll_check(D_PA, "ph1", 1)
        k.stamp("dn early")
        k.bg_held = True
        for i in range(P.dn_pre): bload(i)
        red_setup(k, 3, 1, final); rb()
        k.wait(vm=[("hst", 6)]); k.flag(2)
        if P.dn_pollstep is None: k.poll_issue(D_PA, "ph2")
        for i in range(P.dn_pre, NB): bload(i)
        k.e(f"s_add_u32 s{sFO}, s89, {FL_X2 - FL_O}")
    k.per = dict(P.per_dn0); k.bg_held = False
    direct = final and P.dn1_agpr
    lds = [(i, nn) for i, (g, e) in enumerate(seq) if 8 <= e < 24 and not direct for nn in range(2)]
    slot_of = {x: n for n, x in enumerate(lds)}
    NWF = 6
    def wread(n):
        i, nn = lds[n]; j = 2 * (seq[i][1] - 8) + nn; b = 15 + (j >> 2)
        ad = (b % 10) * 16384 + (j & 3) * 1024
        if seq[i][0] == 0: k.wait(vm=[("gw", b)])
        k.ds(f"ds_read_b128 {vr(D_WF+4*(n%NWF),4)}, v{D_RB + (ad>>16)} offset:{ad & 0xffff}", ("wf", n))
    def wfrag(i, nn):
        e = seq[i][1]
        if e < 8: return ar(192 + 8*e + 4*nn, 4)
        if direct: return ar(8*(e - 8) + 4*nn, 4)
        if e >= 24: return vr(D_WV + 8*(e - 24) + 4*nn, 4)
        return vr(D_WF + 4*(slot_of[(i, nn)] % NWF), 4)
    mains = []; fixed = {}
    NT = P.dn_tail
    assert NT <= 4
    order = [(i, nn) for i in range(56 - NT) for nn in range(2)] + [(i, nn) for nn in range(2) for i in range(56 - NT, 56)]
    for pos, (i, nn) in enumerate(order):
        g, e = seq[i]
        if True:
            acc = D_ACC + 32 * g + 16 * nn
            mains.append(lambda i=i, nn=nn, acc=acc, e=e: k.e(f"{MF32} {vr(acc,16)}, {wfrag(i,nn)}, {vr(D_BF+4*(i%NB),4)}, {'0' if e == 0 else vr(acc,16)}"))
            gp = len(mains) - 1; fl_ = fixed.setdefault(gp, [])
            nx = order[pos + 1] if pos + 1 < len(order) else None
            vmn = [("b", nx[0])] if (nx and nx[1] == 0) else None
            lgn = [("wf", slot_of[nx])] if nx in slot_of else None
            if nx == (24, 0) and not direct: vmn = vmn + ["dnv"]
            if direct and nx and nx[0] in range(8, 28) and nx[1] == 0: vmn = vmn + [("dnr", nx[0])]
            fl_.append((0, lambda vmn=vmn, lgn=lgn: k.wait(vm=vmn, lg=lgn)))
            ah = (i + 2, nn)
            if ah in slot_of: fl_.append((1, lambda n=slot_of[ah]: wread(n)))
    nxt = NB; pend = 0
    for i in range(len(seq)):
        fl_ = fixed[2*i + 1]
        if i == P.DN_LATE[layer]: fl_.append((2, lambda: (k.poll_check(D_PA, "ph2", 2), k.stamp("dn late"), k.mark("late"))))
        n = 0
        while nxt < len(seq) and nxt <= i + NB and n < 2 and (nxt < 16 or i >= P.DN_LATE[layer]):
            fl_.append((1, lambda j=nxt: bload(j))); nxt += 1; n += 1
        if i == P.dn_pollstep and not P.HPRE[layer]: fl_.append((1, lambda: k.poll_issue(D_PA, "ph2")))
        if nxt == len(seq) and not pend: pend = 2*i + 2
    if not final: fixed[22].append((5, lambda: k.codepf(192)))
    fixed[20].append((1, lambda: k.e("s_barrier")))
    for mm in range(2):
        fixed[40 + 4*mm].append((2, lambda mm=mm: (k.e(f"s_add_u32 s32, s55, {BX2() + mm*32768}"),
                                                   k.vm(f"buffer_load_dwordx4 {vr(RES+4*mm,4)}, v{RX(final)}, {XS()}, s32 offen sc1", "res"))))
    fw = Flex(); fs = Flex()
    for q, f in enumerate(red_writes(k, D_ACC, 0, 0, 1)): fw.add(f, 1, 58 + 2*q)
    fw.add(lambda: (k.wait(lg=[("rw", 0)]), k.e("s_barrier")), 2, 76)
    for f in red_reads(k, 0, T, 0): fw.add(f, 2)
    fw.add(lambda: k.wait(vm=["res"]))
    red_finish(k, fw, 0, groups[0], T, BX2(), BS2(), final, False)
    if not final:
        fw.add(lambda: k.vm(f"buffer_store_dwordx4 {vr(RES+4,4)}, v{RX(final)}, {SRD_WS}, s72 offen sc1", "hxs"))
        fw.add(lambda: k.vm(f"buffer_store_dword v{T+32}, v{R_ST}, {SRD_WS}, s73 offen sc1", "hxs"))
        fw.skip(P.dn_flag_delay); fw.add(lambda: (k.wait(vm=[("xst", 0)]), k.flag(1)), 3)
        if P.x2_touch == "dn":
            fixed[P.dn_x2].append((5, lambda: k.touch(226, "p", [f"s_add_u32 s32, s55, {BX2()}"])))
            fixed[P.dn_x2 + 1].append((4, lambda: k.touch(227, "s", [f"s_add_u32 s32, s56, {BS2()}"])))
            fs.add(lambda: k.wait(vm=["touch"]), 1, P.dn_x2 + 2)
        for q, c in enumerate(P.t1_dn): fixed[P.dn_touch + 2*q].append((5, touch_next(k, 28)["oxs".index(c)]))
        fs.dep("late")
        for f in a11_bases(k) + a1_setup(k, 1): fs.add(f)
        fs.add(lambda: (k.poll_addr(A_PX, 32), k.e(f"s_lshl_b32 s32, s{sB}, 7", f"s_add_u32 s{sPO}, s32, {fl(0, FL_X2)}")), 4)
    wtail = red_writes(k, D_ACC + 32, 1, 2*16384, 1)
    if NT:
        for q in range(min(4, NT)): fixed[min(111, 112 - NT + 1 + q)].append((4, wtail.pop(0)))
    k.wait(vm=["dna", ("b", 0)])
    k.stamp("dn first")
    if k.stamping or P.jitter:
        fixed[55].append((0, lambda: k.stamp("dn p1")))
        for g in range(7, 111, 8): fixed[g].append((0, lambda g=g: k.stamp(f"find {g}")))
    run_gaps(k, mains, fixed, [early, fw, fs], 6)
    print("dn left:", len(k.bg), len(fw), len(fs), "last h load at gap", pend)
    k.stamp("dn gemm")
    assert not fs.items
    ws = wtail
    if not final and P.dn_fin_first != 2: ws.insert(len(ws) - 4, lambda: k.poll_issue(A_PX, "px0"))
    if not final and P.dn_fin_first == 2: ws.append(lambda: k.poll_issue(A_PX, "px0"))
    merge(k, fw, ws)
    k.wait(lg=[("rw", 1)]); k.e("s_barrier")
    k.stamp("dn red")
    for f in red_reads(k, 1, T, 2*16384): f()
    def nxt():
        k.poll_check(A_PX, "px0", 1)
        k.wait(vm=["hxs"]); k.flag(1, 91, "sc1")
        a11_early(k)
    if not final:
        k.bg_held = True
        if not P.dn_fin_first: nxt()
    f1 = Flex(); red_finish(k, f1, 1, groups[1], T, BX2(), BS2(), final, True)
    if not final and P.dn_fin_first == 2:
        ex = [lambda: k.poll_check(A_PX, "px0", 1)] + a11_early(k, True) + [lambda: (k.wait(vm=["hxs"]), k.flag(1, 91, "sc1"))]
        merge(k, f1, ex, P.dn_mfirst)
    else: drain([f1], k)
    if not final and P.dn_fin_first == 1: nxt()
    k.stamp("dn end")
P.dn_mfirst = 8; P.dn_pollstep = 0; P.dn_fin_first = 2; P.dn_tail = 0; P.dn_touch = 88; P.dn_flag_delay = 4; P.dn_pre = 6; P.DN_LATE = [9, 9]; P.dn_fgap = 6
P.dn_wow = 6; P.per_dn = {"s4": 110, "s2": 130}; P.per_dn0 = {"s4": 60, "s2": 60}

DOC = """
One persistent launch, 256 workgroups x 4 waves (one workgroup per CU, 512 registers per wave). Generated by gen/fused.py.
16 clusters of 16 workgroups own 128 tokens each; per layer: [LN + QKV + dilated attention] -> [out-proj + residual] -> [LN + gate/up + SwiGLU] -> [down + residual].
 - LayerNorm is applied as rstd * (x.W - mean * colsum(W)) in fp32; row statistics travel with the activations.
 - w_gate/w_up/w_down/wo are re-tiled once into MFMA fragment order in d_ws; W_qkv fragments stay in AGPRs for both layers.
 - attention runs on MFMA straight from the accumulators (true row max, exp2, normalisation by the summed weights).
 - hand-offs between workgroups: data, s_waitcnt, then a flag word; flags are zeroed by this launch and trusted only after a whole-grid
   rendezvous keyed by a launch tag published in d_debug. A cluster found on one die uses plain stores, any other placement writes through.
 - every spin has a bounded budget.
"""
def build(stamps=False, only=None):
    k = F(); k.stamping = stamps; k.only = only; k.st = P.dst; k.rt = P.rt
    name = NAME + "_kernel"
    k.e(".p2align 8", f".globl {name}", f".type {name},@function"); k.label(name)
    if stamps: k.e("s_memrealtime s[92:93]", "s_memtime s[94:95]")
    k.e("s_cmp_ge_u32 s2, 256", "s_cbranch_scc1 L_end")
    k.e("s_load_dwordx16 s[64:79], s[0:1], 0", "s_load_dwordx4 s[80:83], s[0:1], 64", "s_memrealtime s[96:97]")
    k.e("s_getpc_b64 s[100:101]")
    k.e("L_pc: ;np")
    k.e("v_and_b32 v1, 63, v0", "v_lshrrev_b32 v2, 6, v0", "s_lshr_b32 s33, s2, 3", "s_mul_i32 s32, s33, 43", "s_lshr_b32 s32, s32, 8",
        "s_mul_i32 s32, s32, 6", "s_sub_u32 s32, s33, s32", "s_lshl_b32 s32, s32, 13", "v_lshl_add_u32 v3, v2, 11, s32", "v_lshl_add_u32 v3, v1, 7, v3",
        "v_min_u32 v3, L_end-L_pc, v3", f"v_readfirstlane_b32 s{sW}, v2", "v_mov_b32 v5, s101", "v_add_co_u32 v4, vcc, s100, v3", "v_addc_co_u32 v5, vcc, 0, v5, vcc")
    if P.code0:
        k.e("s_mov_b64 exec, 0xffff")
        k.vm("global_load_dword v175, v[4:5], off", "code")
        k.e("s_mov_b64 exec, -1")
        if P.code1:
            k.e("v_lshlrev_b32 v3, 11, v2", "v_lshl_add_u32 v3, v1, 7, v3", "v_mov_b32 v5, s101", "v_add_co_u32 v4, vcc, s100, v3", "v_addc_co_u32 v5, vcc, 0, v5, vcc",
                "s_mov_b64 exec, 0xffff")
            k.vm("global_load_dword v174, v[4:5], off", "code")
            k.e("s_mov_b64 exec, -1")
    k.e("s_and_b32 s32, s2, 7", f"s_and_b32 s{sM}, s33, 15", "s_lshr_b32 s33, s33, 4", "s_lshl_b32 s32, s32, 1", f"s_add_u32 s{sC}, s32, s33")
    k.e(f"s_lshr_b32 s33, s{sM}, 3", f"s_lshl_b32 s{sB}, s{sC}, 1", f"s_add_u32 s{sB}, s{sB}, s33", f"s_and_b32 s{sCS}, s{sM}, 7")
    k.e("v_lshlrev_b32 v2, 4, v1")
    a10_lanes(k)
    k.e("s_waitcnt lgkmcnt(0)")
    srd(k, 12, 64, 2048 * 1024); srd(k, 16, 66, 512 * 3072)
    k.e(f"s_or_b32 s{sTAG}, s96, 1")
    if P.jitter: k.e("s_lshl_b32 s101, s2, 2", f"s_add_u32 s101, s101, s{sW}", "s_mul_i32 s101, s101, 2654435761", "s_add_u32 s101, s101, s96")
    if stamps:
        k.stamps += ["rt0", "start"]; k.e("v_writelane_b32 v0, s92, 0", f"v_writelane_b32 v0, s{92 if P.rt else 94}, 1")
    k.stamp("s kernarg")
    if P.pk_first == 1: pack_issue(k)
    k.stamp("s pkissue")
    run(a10_x(k, 0) + a10_w(k, 0))
    if P.pk_first == 0: pack_issue(k)
    srd(k, 28, 80, 256)
    k.e("v_cmp_eq_u32 vcc, 0, v1", f"v_mov_b32 v{vFA}, {OOB:#x}", f"s_or_b32 s32, s2, s{sW}", f"v_cndmask_b32_e64 v{vFA}, v{vFA}, 0, vcc",
        "s_cmp_eq_u32 s32, 0", f"s_cselect_b32 s32, 0, {OOB>>1:#x}", f"v_mov_b32 v170, s{sTAG}")
    k.vm(f"buffer_store_dword v170, v{vFA}, {SRD_DBG}, s32 offen sc1", "tagst")
    srd(k, 8, 82, WS_SIZE); srd(k, 20, 78, 2048 * 1024)
    for f in a1_setup(k, 0): f()
    o_bases(k, 0)
    a10_lanes2(k)
    k.e(f"v_mov_b32 v60, {OOB:#x}", "v_cmp_gt_u32 vcc, 8, v1", "v_mov_b32 v176, 0", "v_mov_b32 v177, 0", "v_mov_b32 v178, 0", "v_mov_b32 v179, 0",
        f"v_cndmask_b32 v173, v60, v{vL16}, vcc", "v_cmp_gt_u32 vcc, 16, v1", "s_nop 0",
        f"s_lshl_b32 s32, s{sC}, 4", f"v_cndmask_b32 v172, v60, v{vL16}, vcc")
    k.e(f"s_add_u32 s32, s32, s{sM}", "s_lshl_b32 s32, s32, 4",
        f"s_cmp_eq_u32 s{sW}, 0", f"s_cselect_b32 s32, s32, {OOB>>1:#x}", f"v_add_u32 v171, s32, v{vFA}", f"s_mov_b32 s{sBUD}, 400000")
    red_bases(k)
    k.e(f"s_lshl_b32 s{sGL}, s{sW}, 12", f"s_mul_i32 s{sGS}, s{sM}, {PGU_SLICE}", f"s_add_u32 s{sGS}, s{sGS}, s{sGL}", f"s_add_u32 s{sGS}, s{sGS}, {WS_PGU}")
    k.e(f"s_mul_i32 s32, s{sCS}, {224*KB}", f"s_mul_i32 s33, s{sW}, {56*KB}", "s_add_u32 s32, s32, s33", f"s_add_u32 s{sDS}, s32, {WS_PDN}")
    k.e(f"s_lshl_b32 s32, s{sCS}, 16", f"s_add_u32 s32, s32, s{sGL}", f"s_add_u32 s88, s32, {WS_PWO}")
    wo_bases(k)
    k.stamp("s setup")
    run(a10_w(k, 1))
    if P.pk_first == 2: pack_issue(k)
    k.e(f"s_getreg_b32 s{sXCC}, hwreg(HW_REG_XCC_ID, 0, 4)", f"s_mov_b32 s75, {WS_ARR}", f"s_lshl_b32 s77, s{sC}, 8", "s_add_u32 s77, s77, s75")
    if P.k_touch == -1:
        k.touch(157, "p", ["s_mov_b32 s32, s53"], False); k.touch(158, "q", [f"s_add_u32 s32, s64, {BX2()}"], False)
    k.stamp("s w01")
    def mid2():
        if P.k_first > 3: run(a10_w(k, 3))
        k.e("s_lshl_b32 s32, s2, 7")
        k.vm(f"buffer_store_dwordx4 v[176:179], v173, {SRD_WS}, s32 offen sc1", "zero")
        k.e("s_lshl_b32 s32, s2, 8", f"s_add_u32 s32, s32, {WS_HXF}")
        k.vm(f"buffer_store_dwordx4 v[176:179], v172, {SRD_WS}, s32 offen sc1", "zero")
    if P.k_pack is None: pack_process(k, lambda: run(a10_x(k, 1) + a10_w(k, 2)), mid2)
    else: run(a10_x(k, 1) + a10_w(k, 2)); mid2()
    k.vm(f"buffer_load_dword v170, v{vFA}, {SRD_DBG}, 0 offen sc1", "tag")
    k.stamp("s pkdone")
    a10_loop(k, P.k_first)
    a10_tail(k)
    wo(k, 0); gu(k, 0); dn(k, 0)
    if not P.half:
        k.marks = {m: g for m, g in k.marks.items() if False}
        k.seen = {t for t in k.seen if t in k.vmq or t in k.lgq or t in ("dna", "st0", ("x", 2), ("x", 3))}
        k.layer = 1
        a11_main(k)
        wo(k, 1)
        k.marks = {m: g for m, g in k.marks.items() if m in ("wobar", "gemm_done") or m[0] == "bar"}
        gu(k, 1); dn(k, 1)
    if P.verbose: print([(t, tag, f) for t, tag, f in k.bg_log if f])
    if stamps:
        k.e("s_waitcnt vmcnt(0)"); k.stamp("drained"); k.stamp("rt1", True)
        k.e("s_lshl_b32 s32, s2, 10", "s_lshl_b32 s33, s3, 8", "s_add_u32 s32, s32, s33",
            f"s_add_u32 s32, s32, {WS_STAMP}", "v_lshlrev_b32 v8, 2, v1", f"buffer_store_dword v0, v8, {SRD_WS}, s32 offen")
        if P.echo:
            a, b = P.echo
            n = len(k.stamps)
            k.e(f"v_readlane_b32 s32, v0, {a}", f"v_readlane_b32 s33, v0, {b if b >= 0 else n + b}", f"v_readlane_b32 s34, v0, {n-1}", "s_nop 3",
                "s_sub_u32 s33, s33, s32", "s_min_u32 s33, s33, 20000")
            k.label("L_echo")
            k.e("s_memrealtime s[36:37]", "s_waitcnt lgkmcnt(0)", "s_sub_u32 s36, s36, s34", "s_cmp_lt_u32 s36, s33", "s_cbranch_scc1 L_echo")
        if P.dbg:
            n = len(k.stamps)
            k.e("v_readlane_b32 s32, v0, 0", f"v_readlane_b32 s33, v0, {n-1}", "s_not_b32 s34, s32", "v_mov_b32 v4, s33", "v_mov_b32 v5, s34")
            k.e(f"buffer_atomic_umax v4, v{vFA}, {SRD_DBG}, 0 offen offset:4", f"buffer_atomic_umax v5, v{vFA}, {SRD_DBG}, 0 offen offset:8")
            k.e(f"s_cmp_eq_u32 s2, {P.dbg - 1}", f"s_cselect_b32 s35, 0, {OOB>>1:#x}", f"s_cmp_eq_u32 s{sW}, 0", f"s_cselect_b32 s35, s35, {OOB>>1:#x}")
            for i, wd in zip(range(2, n - 1), (3, 5, 6, 7, 9, 10, 11, 13, 14, 15)):
                k.e(f"v_readlane_b32 s33, v0, {i}", "s_sub_u32 s33, s33, s32", "v_mov_b32 v4, s33", f"buffer_store_dword v4, v{vFA}, {SRD_DBG}, s35 offen offset:{4*wd}")
    k.e("s_endpgm")
    k.flush_spins()
    k.label("L_end"); k.e("s_endpgm")
    src = open("cdna_kernels/%s.s.ref" % NAME).read().splitlines()
    out = [l for l in src if l.startswith(";") and "@launch" not in l]
    out.append(f"; @launch grid=(256,1,1) block=(256,1,1) lds={LDS_TOTAL}")
    out += ['.amdgcn_target "amdgcn-amd-amdhsa--gfx950"', ".text"]
    out += ["; " + l for l in DOC.strip().split("\n")]
    s = "\n".join(out) + "\n" + k.text(verbose=True) + '.section .rodata,"a"\n.p2align 6\n' + kd(name)
    from verify import verify
    assert not verify(s), "a register is used while a load into it is in flight"
    if P.align:
        from align import align
        s = align(s)
    return s, k.stamps
P.x_nobar = 0; P.x_noepi = 0; P.rt = 1; P.dbg = 0; P.h_touch0 = ''; P.outm = ('', ''); P.x1_clean = None; P.h1_plain = 0; P.tags = 0; P.echo = None; P.wo_setup_first = 2; P.gu_pa_late = 0; P.gu_bar_first = 0; P.flagbr = 0; P.rot = 0; P.pk_mod = 'nt'; P.x_mod = ''; P.w_mod = ''; P.t_mod = ''; P.pk_first = 1; P.dn1_agpr = 1; P.poll2 = 2; P.wt = (); P.inplace = 1; P.x_out = 0; P.o0_in_h = 0; P.code1 = 0; P.pk_xor = 128; P.gram1 = 1; P.jitter = 0; P.half = 0; P.tlb = 1; P.code0 = 1; P.verbose = 0; P.align = 1; P.gu_cap = 5; P.gu_nw = 5; P.k_touch = 15; P.k_gb = 13; P.k_chk = 16

if __name__ == "__main__":
    path = sys.argv[1] if len(sys.argv) > 1 else "cdna_kernels/%s.s" % NAME
    opts = sys.argv[2:]
    only = None
    for o in opts:
        if o.startswith("only="): only = [x for x in o[5:].split(",") if x]
        if o.startswith("P."):
            n, v = o[2:].split("="); setattr(P, n, eval(v))
    s, st = build(stamps="st" in opts, only=only)
    open(path, "w").write(s)
    if "st" in opts: json.dump([st], open(path + ".json", "w"))
```

```python
import sys, json
from common import *

MF16 = "v_mfma_f32_16x16x32_bf16"
MF16S = "v_mfma_f32_16x16x16_bf16"
MF32 = "v_mfma_f32_32x32x16_bf16"
vL16, vFV, vFA, vP = 2, 8, 9, 10
CSV, CSQ, CSK, RES = 11, 12, 16, 20
OOB = 0x80000000
FL_O, FL_X1, FL_H, FL_X2 = 0, 4096, 8192, 12288
FL_HX = 16384 + 12288
def fl(layer, off): return WS_FLAGS + 16384 * layer + off
sROT, sBUD, sGL, sGS, sDS = 84, 98, 60, 61, 85
sT0, sT1, sPO, sFO = 32, 33, 86, 87
sML, sMS = 68, 69
WS_HXF = WS_O0 - 0x10000 if False else WS_END
WS_ARR = WS_HXF + 0x10000
sTAG, sXCC = 91, 76
WS_STAMP = 0x2000000
L_SA0, L_SA1, L_XH0, L_CS = 80896, 97280, 81920, 79872
def e_of(kk):
    p, tl = divmod(kk, 7)
    return 4 * p + tl if tl < 4 else 16 + 3 * p + (tl - 4)
KK_OF = {e_of(kk): kk for kk in range(28)}

class P:
    a1_bg_start, a1_bg_step = 30, 6
    gu_lead = 9
    gu_bg_start, gu_bg_step = 50, 2.6
    dn_lead = 12
    bgm = ""
    sleep = 0
    drop = ()
    codepf = 0
    ld = "sc1"
    dst = "sc1"
    safe = False
    plain = True
    notouch = ()

BO, BX1, BS1, BH = [WS_O[0]] * 2, [WS_X[0]] * 2, [WS_ST[0]] * 2, [WS_H[0]] * 2
def BX2(): return 0 if P.x_out else (WS_X[0] if P.inplace else WS_X[1])
def XS(): return SRD_OUT if P.x_out else SRD_WS
def LSH(): return 10 if P.x_out else 7
def CSH(): return 7 if P.x_out else 10
def BS2(): return WS_ST[0] if P.inplace else WS_ST[1]
def o_block(d, layer):
    if (layer or P.o0_in_h) and P.inplace: return [f"s_mul_i32 {d}, s{sB}, {224*KB}", f"s_add_u32 {d}, {d}, {BH[0]}"]
    return [f"s_lshl_b32 {d}, s{sB}, 16", f"s_add_u32 {d}, {d}, {BO[layer]}"]
def o_line(layer):
    return [f"s_lshl_b32 s32, s{sB}, 16", f"s_lshl_b32 s33, s{sCS}, 2", f"s_add_u32 s33, s33, s{sW}", "s_lshl_b32 s33, s33, 10",
            "s_add_u32 s32, s32, s33", f"s_add_u32 s32, s32, {BO[layer]}"]
def touch_next(k, t):
    return [lambda: k.touch(t, "p", o_line(1)), lambda: k.touch(t + 1, "q", [f"s_add_u32 s32, s64, {BX2()}"]),
            lambda: k.touch(t + 2, "t", [f"s_add_u32 s32, s65, {BS1[1]}"])]
def gu_tile(d):
    return [f"s_lshl_b32 {d}, s{sC}, 1", f"s_and_b32 s33, s{sW}, 1", f"s_add_u32 {d}, {d}, s33", f"s_lshl_b32 {d}, {d}, 1", f"s_lshr_b32 s33, s{sW}, 1", f"s_add_u32 {d}, {d}, s33"]
def h_base(d, layer):
    return gu_tile(d) + [f"s_mul_i32 {d}, {d}, 112", f"s_mul_i32 s33, s{sM}, 7",
            f"s_add_u32 {d}, {d}, s33", f"s_lshl_b32 {d}, {d}, 10", f"s_add_u32 {d}, {d}, {BH[layer]}"]

class F(K):
    def __init__(self):
        super().__init__(); self.spins = []; self.nspin = 0; self.st = ""; self.npf = 0; self.layer = 0
    def poll_issue(self, va, tag): self.vm(f"buffer_load_dword v{vP}, v{va}, {SRD_WS}, s{sPO} offen sc1", tag)
    def poll_addr(self, va, nl, sh=2):
        self.e(f"v_cmp_gt_u32 vcc, {nl}, v1", f"v_lshlrev_b32 v{va}, {sh}, v1", f"v_mov_b32 v{vP}, {OOB:#x}", f"v_cndmask_b32 v{va}, v{vP}, v{va}, vcc")
        self.nl = nl
    def poll_check(self, va, tag, thr):
        n = self.nspin; self.nspin += 1
        self.stamp(f"poll<{tag}")
        self.wait(vm=[tag])
        self.stamp(f"poll={tag}")
        msk = f"s_and_b32 s99, vcc_lo, {(1 << self.nl) - 1:#x}"
        self.e(f"v_cmp_gt_u32 vcc, {thr}, v{vP}", msk, f"s_cbranch_scc1 L_spin{n} ;np", f"L_back{n}: ;np")
        self.stamp(f"poll>{tag}")
        self.spins += [f"L_spin{n}:", f"s_sub_u32 s{sBUD}, s{sBUD}, 1", f"s_cbranch_scc1 L_give{n}"] + ([f"s_sleep {P.sleep}"] if P.sleep else []) + [
                       f"buffer_load_dword v{vP}, v{va}, {SRD_WS}, s{sPO} offen sc1", "s_waitcnt vmcnt(0)",
                       f"v_cmp_gt_u32 vcc, {thr}, v{vP}", msk, f"s_cbranch_scc1 L_spin{n}", f"s_branch L_back{n}",
                       f"L_give{n}:", f"s_mov_b32 s{sBUD}, 0", f"s_branch L_back{n}"]
    def poll_wait(self, va, tag, thr, alt):
        if not P.poll2:
            self.poll_check(va, tag, thr); return
        n = self.nspin; self.nspin += 1
        ld = lambda r: f"buffer_load_dword v{r}, v{va}, {SRD_WS}, s{sPO} offen sc1"
        tst = lambda r: [f"v_cmp_gt_u32 vcc, {thr}, v{r}", f"s_and_b32 s99, vcc_lo, {(1 << self.nl) - 1:#x}"]
        self.e(f"s_sleep {P.poll2}")
        self.vm(ld(alt), "polljunk")
        self.wait(vm=[tag])
        self.e(*tst(vP)); self.e(f"s_cbranch_scc1 L_spin{n} ;np", f"L_back{n}: ;np")
        self.spins += [f"L_spin{n}:", f"s_sub_u32 s{sBUD}, s{sBUD}, 1", f"s_cbranch_scc1 L_give{n}",
                       ld(vP), "s_waitcnt vmcnt(1)"] + tst(alt) + [f"s_cbranch_scc0 L_back{n}", ld(alt), "s_waitcnt vmcnt(1)"] + tst(vP) + \
                      [f"s_cbranch_scc1 L_spin{n}", f"s_branch L_back{n}", f"L_give{n}:", f"s_mov_b32 s{sBUD}, 0", f"s_branch L_back{n}"]
    def flag(self, val, soff=sFO, st=None):
        self.e(f"v_mov_b32 v{vFV}, {val}")
        if st is not None:
            self.vm(f"buffer_store_dword v{vFV}, v{vFA}, {SRD_WS}, s{soff} offen {st}", "flag"); return
        if P.flagbr:
            self.dstore(f"buffer_store_dword v{vFV}, v{vFA}, {SRD_WS}, s{soff} offen", "flag", True); return
        self.e(f"s_or_b32 s99, s{soff}, s{sML}")
        self.vm(f"buffer_store_dword v{vFV}, v{vFA}, {SRD_WS}, s99 offen", "flag")
        self.e(f"s_or_b32 s99, s{soff}, s{sMS}")
        self.vm(f"buffer_store_dword v{vFV}, v{vFA}, {SRD_WS}, s99 offen sc1", "flag")
    def dstore(self, text, tag, always=False):
        kind = tag[0] if isinstance(tag, tuple) else tag
        if (not P.plain or (self.layer, kind, isinstance(tag, tuple)) in P.wt) and not always:
            self.vm(text + " sc1", tag); return
        n = self.nspin; self.nspin += 1
        self.e(f"s_cmp_lg_u32 s{sML}, 0", f"s_cbranch_scc1 L_alt{n} ;np")
        self.vm(text, tag)
        self.e(f"L_back{n}: ;np")
        self.spins += [f"L_alt{n}:", "s_nop 4", text + " sc1", f"s_branch L_back{n}"]
    def valid(self, test, reload):
        n = self.nspin; self.nspin += 1
        self.e(*test); self.e(f"s_cbranch_vccnz L_rl{n} ;np", f"L_back{n}: ;np")
        self.spins += [f"L_rl{n}:", f"s_sub_u32 s{sBUD}, s{sBUD}, 1", f"s_cbranch_scc1 L_give{n}"] + reload + ["s_waitcnt vmcnt(0)"] + test + \
                      [f"s_cbranch_vccnz L_rl{n}", f"s_branch L_back{n}", f"L_give{n}:", f"s_mov_b32 s{sBUD}, 0", f"s_branch L_back{n}"]
    def touch(self, tmp, kind, base_expr, masked=True):
        if not P.plain or kind in P.notouch: return
        nl = {"p": 16, "q": 16, "s": 2, "t": 2, "h": 56}[kind]
        self.e(f"v_cmp_gt_u32 vcc, {nl}, v1")
        if kind in "pq": self.e(f"v_lshrrev_b32 v{tmp}, 3, v1", f"v_lshlrev_b32 v{tmp}, {15 if kind == 'p' else 13}, v{tmp}", f"v_and_b32 v{vFV}, 7, v1", f"v_lshl_add_u32 v{tmp}, v{vFV}, {LSH() if kind == 'q' else 7}, v{tmp}")
        else: self.e(f"v_lshlrev_b32 v{tmp}, {11 if kind == 's' else 7}, v1")
        self.e(f"v_mov_b32 v{vFV}, {OOB:#x}", *base_expr)
        self.e(f"v_cndmask_b32 v{tmp}, v{vFV}, v{tmp}, vcc")
        if masked: self.e(f"s_or_b32 s32, s32, s{sML}")
        self.vm(f"buffer_load_dword v{tmp}, v{tmp}, {XS() if kind == 'q' else SRD_WS}, s32 offen {P.t_mod}", "touch")
    def vm(self, text, tag=None):
        kind = tag[0] if isinstance(tag, tuple) else tag
        if kind in P.drop:
            self.seen.add(tag); return
        super().vm(text, tag)
    def codepf(self, t):
        if not P.codepf: return
        n = self.npf; self.npf += 1
        self.e(f"L_pf{n}: ;np", f"s_lshl_b32 s32, s{sW}, 12", f"s_add_u32 s32, s32, L_pf{n}-L_pc", f"v_lshl_add_u32 v{t+2}, v1, 7, s32", f"v_min_u32 v{t+2}, L_end-L_pc, v{t+2}",
               f"v_mov_b32 v{t+1}, s101", f"v_add_co_u32 v{t}, vcc, s100, v{t+2}", f"v_addc_co_u32 v{t+1}, vcc, 0, v{t+1}, vcc", "s_mov_b32 exec_hi, 0")
        self.vm(f"global_load_dword v{t+2}, v[{t}:{t+1}], off", "code")
        self.e("s_mov_b64 exec, -1")
    def stamp(self, name, real=False):
        if P.jitter and not name.startswith("s ") and not name.startswith("fin"):
            n = self.nspin; self.nspin += 1
            self.e("s_mul_i32 s101, s101, 1103515245", f"s_add_u32 s101, s101, {12345 + n}", "s_lshr_b32 s100, s101, 20", f"s_and_b32 s100, s100, {P.jitter}",
                   "s_lshr_b32 s99, s101, 28", "s_cmp_lt_u32 s99, 5", f"s_cbranch_scc0 L_j{n}e ;np", f"L_j{n}: ;np", "s_sleep 3", "s_sub_u32 s100, s100, 1",
                   f"s_cbranch_scc0 L_j{n} ;np", f"L_j{n}e: ;np")
        super().stamp(name, real)
    def flush_spins(self):
        for l in self.spins: self.e(l)
        self.spins = []

def batch(k, i):
    src = f"s_add_u32 s62, s{sGS}, {i*16384}" if i < 15 else f"s_add_u32 s62, s{sDS}, {(16 + 4*(i-15))*1024}"
    def f(q):
        k.set_m0(f"s_add_u32 m0, s{sGL}, {(i % 10)*16384}")
        if i != 14: k.set_s(src)
        elif k.last.get(62) != f"s_cselect_b32 s62, {OOB>>1:#x}, s62":
            k.e(src, f"s_cmp_ge_u32 s{sW}, 2", f"s_cselect_b32 s62, {OOB>>1:#x}, s62")
        k.vm(f"buffer_load_dwordx4 v{vL16}, {SRD_WS}, s62 offen offset:{q*1024} {P.bgm} lds", ("gw", i))
    return [lambda q=q: f(q) for q in range(4)]

def bg_batches(k, bs, period, dep=lambda b: None):
    for b in bs:
        for f in batch(k, b): k.bg_add(f, period, ("gw", b), dep(b))
def bg_list(k, fns, period, tag, dep=None):
    for f in fns: k.bg_add(f, period, tag, dep)

def regloads(k, base_sgpr, off, dst, n, tag, tmp=63, tagf=None):
    fns = []
    for j in range(n):
        def f(j=j):
            k.set_s(f"s_add_u32 s{tmp}, s{base_sgpr}, {off + (j & ~3)*1024}")
            k.vm(f"buffer_load_dwordx4 {dst(j)}, v{vL16}, {SRD_WS}, s{tmp} offen offset:{(j%4)*1024} {P.bgm}", tagf(j) if tagf else tag)
        fns.append(f)
    return fns
def wow(k):
    def f(i, q):
        k.set_m0(f"s_add_u32 m0, s{sGL}, {(6 + i)*16384}"); k.set_s(f"s_add_u32 s63, s88, {i*16384}")
        k.vm(f"buffer_load_dwordx4 v{vL16}, {SRD_WS}, s63 offen offset:{q*1024} lds", "wow")
    return [lambda i=i, q=q: f(i, q) for i in range(4) for q in range(4)]

def pack_issue(k):
    k.e(f"s_xor_b32 s99, s2, {P.pk_xor}")
    for r in (68, 69, 72, 73, 74, 75, 76, 77): assert k.writer[r].startswith("s_load"), f"kernel argument s{r} overwritten"
    k.e("v_lshrrev_b32 v44, 3, v1", "v_and_b32 v43, 7, v1", "v_and_b32 v45, 2, v44", "v_lshlrev_b32 v45, 1, v45",
        "v_xor_b32 v43, v43, v45", "v_lshlrev_b32 v43, 4, v43", f"s_add_u32 s34, s49, {L_X + 4096}")
    k.e("s_cmp_ge_u32 s99, 112", "s_cbranch_scc1 L_pki_small")
    k.e("s_and_b32 s35, s99, 1", "s_bfe_u32 s36, s99, 0x10001", "s_lshr_b32 s37, s99, 2")
    k.e("s_cmp_eq_u32 s35, 0", "s_cselect_b32 s24, s72, s74", "s_cselect_b32 s25, s73, s75",
        f"s_mov_b32 s26, {512*3584:#x}", "s_mov_b32 s27, 0x20000")
    k.e("v_mul_u32_u24 v46, 3584, v44", "v_add_u32 v46, v46, v43")
    k.e("s_lshl_b32 s38, s36, 2", f"s_add_u32 s38, s38, s{sW}", f"s_mul_i32 s38, s38, {64*3584}",
        "s_lshl_b32 s39, s37, 7", "s_add_u32 s38, s38, s39")
    for i in range(8):
        k.e(f"s_add_u32 m0, s34, {(i>>2)*8192 + (i&3)*1024}", f"s_add_u32 s39, s38, {i*8*3584}", f"buffer_load_dwordx4 v46, {SRD_PK}, s39 offen {P.pk_mod} lds")
    k.e("s_branch L_pki_done")
    k.label("L_pki_small")
    k.e("s_sub_u32 s35, s99, 112", "s_lshl_b32 s35, s35, 3", f"s_lshl_b32 s36, s{sW}, 1", "s_add_u32 s35, s35, s36")
    k.e("s_cmp_lt_u32 s35, 896", "s_cselect_b32 s24, s76, s68", "s_cselect_b32 s25, s77, s69", f"s_mov_b32 s26, {512*1024:#x}",
        f"s_cselect_b32 s26, {1792*1024:#x}, s26", "s_mov_b32 s27, 0x20000", "s_cselect_b32 s37, 1, 0",
        "s_movk_i32 s38, 896", "s_cselect_b32 s38, 0, s38")
    k.e("s_cselect_b32 s39, 0, 1", "s_cselect_b32 s70, 14, 15", "s_movk_i32 s71, 0x4000", "s_cselect_b32 s71, 0x80, s71")
    k.e("s_sub_u32 s35, s35, s38", "s_lshr_b32 s35, s35, s39", "s_and_b32 s36, s35, 7", "s_lshr_b32 s35, s35, 3")
    k.e("v_lshl_add_u32 v46, v44, 10, v43", "s_lshl_b32 s38, s35, s70", "s_lshl_b32 s39, s36, 7", "s_add_u32 s38, s38, s39")
    for i in range(2):
        for h in range(2):
            k.e(f"s_add_u32 m0, s34, {(2*i+h)*1024}", f"s_add_u32 s39, s38, {h*8192}", f"buffer_load_dwordx4 v46, {SRD_PK}, s39 offen {P.pk_mod} lds")
        if i == 0: k.e("s_add_u32 s38, s38, s71")
    k.label("L_pki_done")
    k.vmq.append("pk"); k.seen.add("pk")

PQ = [76, 80, 84, 88, 92, 96, 36, 40]
def pack_process(k, mid1, mid2):
    k.e("v_bfe_u32 v46, v1, 2, 2", "v_and_b32 v47, 3, v1", "v_bfe_u32 v48, v1, 4, 1", "v_lshrrev_b32 v49, 5, v1")
    k.e("v_and_b32 v50, 2, v46", "v_add_u32 v50, v50, v48", "v_lshlrev_b32 v50, 5, v50",
        "v_lshl_add_u32 v50, v46, 7, v50", "v_lshl_add_u32 v50, v47, 3, v50", "v_add_u32 v50, s34, v50")
    k.e("s_cmp_ge_u32 s99, 112", "s_cbranch_scc1 L_pk_small")
    q0 = list(k.vmq)
    k.e("v_lshl_add_u32 v56, v49, 10, v50", "v_xor_b32 v57, 64, v56")
    k.e("s_lshl_b32 s39, s37, 2", "v_add_u32 v58, s39, v48")
    k.e("s_lshl_b32 s70, s36, 2", f"s_add_u32 s70, s70, s{sW}", "s_lshl_b32 s70, s70, 2")
    k.e("v_and_b32 v66, 15, v1", "s_lshl_b32 s71, s35, 8", "v_lshl_add_u32 v66, v66, 4, s71")
    for p in range(2):
        T, fs, tl, st_, b, aug = 59, 60, 61, 62 + p, 64 + p, 68 + p
        k.e(f"v_add_u32 v{T}, {2*p}, v58", f"v_mul_u32_u24 v{fs}, 9363, v{T}", f"v_lshrrev_b32 v{fs}, 16, v{fs}",
            f"v_mul_u32_u24 v{tl}, 7, v{fs}", f"v_sub_u32 v{tl}, v{T}, v{tl}")
        k.e(f"v_cmp_gt_u32 vcc, 3, v{tl}", f"v_mul_u32_u24 v67, 33, v{tl}", f"v_mov_b32 v{st_}, 1", "v_mov_b32 v70, 3",
            f"v_cndmask_b32 v67, v67, v{tl}, vcc", f"v_cndmask_b32 v{st_}, v{st_}, v70, vcc")
        k.e(f"v_mul_u32_u24 v{fs}, 231, v{fs}", f"v_add_u32 v67, v67, v{fs}")
        k.e(f"v_lshl_add_u32 v70, v{st_}, 5, v67", "v_lshlrev_b32 v70, 10, v70", "v_add_u32 v70, v70, v66",
            "s_lshl_b32 s71, s36, 9", f"v_add_u32 v{aug}, s71, v70")
        k.e(f"v_mul_lo_u32 v70, v{st_}, s70", "v_add_u32 v67, v67, v70", "v_lshlrev_b32 v67, 10, v67",
            "v_add_u32 v67, v67, v66", f"v_lshl_add_u32 v{b}, v49, 9, v67", f"v_lshlrev_b32 v{st_}, 10, v{st_}")
    k.e("v_mov_b32 v71, 0x3f803f80", "v_mov_b32 v72, 0", "v_mov_b32 v73, 0", "v_cmp_gt_u32 vcc, 32, v1", "v_mov_b32 v46, 0", "v_mov_b32 v47, 0",
        "v_cndmask_b32 v68, v69, v68, vcc", f"s_lshl_b32 s72, s{sW}, 8", "s_add_u32 s72, s72, 0x10000", "v_lshl_add_u32 v74, v1, 2, s72",
        "v_lshlrev_b32 v75, 2, v1", "v_add_u32 v75, 0x10000, v75")
    k.e(f"s_mov_b32 s70, {WS_PGU}", "s_mov_b32 s71, s70", "s_mov_b32 s72, s70", "s_mov_b32 s73, s70", f"s_cmp_eq_u32 s{sW}, 0", f"s_cselect_b32 s74, s70, {OOB>>1:#x}")
    k.wait(vm="pk")
    for ks in range(4):
        for p in range(2):
            for j in range(2): k.ds(f"ds_read_b64_tr_b16 {vr(PQ[2*ks+p]+2*j,2)}, v{56+p} offset:{(ks>>1)*8192 + (ks&1)*2048 + j*512}", ("t", ks, p))
        if ks == 2: k.wait(lg=[("t", 0, 1)])
    mid1()
    for ks in range(4):
        for p in range(2):
            k.wait(lg=[("t", ks, p)])
            for d in range(4): k.e(f"v_dot2c_f32_bf16 v{72+p}, v{PQ[2*ks+p]+d}, v71")
    k.e("v_permlane32_swap_b32 v72, v73", "v_add_f32 v72, v72, v73")
    k.ds(f"ds_write_b32 v74, v72 offset:{L_CS - 65536}")
    k.wait(lg="all"); k.e("s_barrier")
    for w in range(4): k.ds(f"ds_read_b32 v{56+w}, v75 offset:{L_CS - 65536 + 256*w}")
    mid2()
    k.wait(lg="all")
    k.e("v_add_f32 v56, v56, v57", "v_add_f32 v58, v58, v59", "v_add_f32 v56, v56, v58")
    k.e("v_cvt_pk_bf16_f32 v45, v56, v46", "v_lshlrev_b32 v57, 16, v45", "v_sub_f32 v57, v56, v57", "v_cvt_pk_bf16_f32 v44, v56, v57")
    k.e("s_branch L_pk_done")
    k.label("L_pk_small")
    k.vmq = list(q0)
    k.e(f"v_mov_b32 v64, v{vL16}", f"v_add_u32 v65, 1024, v{vL16}", f"v_mov_b32 v68, v{vL16}", f"s_mov_b32 s72, {OOB>>1:#x}", "s_mov_b32 s73, s72", "s_mov_b32 s74, s72")
    k.e("s_cmp_eq_u32 s37, 0", "s_cbranch_scc1 L_pk_wo")
    k.e("s_mul_i32 s38, s35, 2341", "s_lshr_b32 s38, s38, 16", "s_mul_i32 s39, s38, 28", "s_sub_u32 s39, s35, s39",
        "s_mul_i32 s70, s39, 9363", "s_lshr_b32 s70, s70, 16", "s_mul_i32 s71, s70, 7", "s_sub_u32 s71, s39, s71")
    for u in range(2):
      k.e(f"s_sub_u32 s39, s70, s36" if P.hrot else "s_mov_b32 s39, s70", f"s_sub_u32 s39, s39, {u if P.hrot else 0}", "s_and_b32 s39, s39, 3",
        "s_lshl_b32 s32, s39, 2", "s_add_u32 s32, s32, s71", "s_mul_i32 s33, s39, 3", "s_add_u32 s33, s33, s71", "s_add_u32 s33, s33, 12",
        "s_cmp_lt_u32 s71, 4", "s_cselect_b32 s32, s32, s33", "s_mul_i32 s33, s38, 28", "s_add_u32 s32, s32, s33", f"s_lshl_b32 s{(35, 37)[u]}, s32, 11")
    k.e("v_lshl_add_u32 v56, v49, 9, v50", "v_xor_b32 v57, 64, v56", f"v_mov_b32 v62, {224*KB}", f"v_mov_b32 v63, {224*KB}")
    k.e(f"s_mul_i32 s36, s36, {224*KB}", f"s_add_u32 s36, s36, {WS_PDN}", "s_add_u32 s70, s36, s35", "s_add_u32 s71, s36, s37")
    k.wait(vm="pk")
    for i in range(2):
        for nn in range(2):
            for j in range(2): k.ds(f"ds_read_b64_tr_b16 {vr(PQ[2*i+nn]+2*j,2)}, v{56+nn} offset:{i*2048 + j*1024}", "t")
    mid1(); mid2()
    k.wait(lg="all")
    k.e("s_branch L_pk_done")
    k.label("L_pk_wo")
    k.vmq = list(q0)
    k.e("v_and_b32 v56, 2, v46", "v_lshlrev_b32 v56, 1, v56", "v_xor_b32 v56, v56, v47", "v_lshlrev_b32 v56, 4, v56", "v_lshl_add_u32 v56, v46, 7, v56",
        "v_lshrrev_b32 v57, 4, v1", "v_lshl_add_u32 v56, v57, 10, v56", "v_add_u32 v56, s34, v56", "v_xor_b32 v57, 64, v56",
        "v_mov_b32 v62, 0x800", "v_mov_b32 v63, 0x800")
    k.e("s_lshl_b32 s36, s36, 16", "s_lshl_b32 s35, s35, 12", "s_add_u32 s70, s36, s35", f"s_add_u32 s70, s70, {WS_PWO}", "s_mov_b32 s71, s70")
    k.wait(vm="pk")
    for j in range(4):
        for jj in range(2): k.ds(f"ds_read_b64_tr_b16 {vr(PQ[j]+2*jj,2)}, v{56+(j>>1)} offset:{jj*512 + 8*(j&1)}", "t")
    mid1(); mid2()
    k.wait(lg="all")
    k.label("L_pk_done")

def pack_stores(k):
    ops = []
    for r in range(4):
        for p in range(2):
            ops.append(("v", lambda r=r, p=p: k.vm(f"buffer_store_dwordx4 {vr(PQ[2*r+p],4)}, v{64+p}, {SRD_WS}, s{70+r} offen sc1", "pks")))
            if r < 3: ops.append(("a", lambda p=p: k.e(f"v_add_u32 v{64+p}, v{64+p}, v{62+p}")))
    ops.append(("v", lambda: k.vm(f"buffer_store_dwordx4 v[44:47], v68, {SRD_WS}, s74 offen sc1", "pks")))
    return ops

A_XF, A_K, A_V, A_Q = 36, 76, 86, 96
A_STA, A_STB, A_OP, A_DX, A_PA, A_ST, A_ACC = 104, 106, 144, 152, 153, 140, 184
class R0: XE, XO, SA, SB, CI, ONE, M, ATT, TMP = 3, 4, 5, 6, 28, 32, 52, (116, 160), 60
class R1: XE, XO, SA, SB, CI, ONE, M, ATT, TMP = 116, 117, 118, 119, 252, 124, 120, (228, 160), 28
A_U, A_PX = 226, 115
A11_ORDER = [2, 3, 1, 0, "h"]
A11_POS = {2: 3, 3: 0, 1: 1, 0: 2, "h": 3}
sODD, sCUR0, sCUR1, sCEXP = 40, 42, 44, 46

def a1_setup(k, layer):
    R = (R0, R1)[layer]
    real = k; out = []
    class Rec:
        def e(self, *t):
            if any(x.startswith("s_cmp") for x in t): out.append(lambda t=t: real.e(*t))
            else: out.extend(lambda x=x: real.e(x) for x in t)
    k = Rec()
    t16, g, tt, tb = R.TMP, R.TMP + 1, R.TMP + 2, R.TMP + 3
    x, y, z = R.ONE, R.ONE + 1, R.ONE + 2
    sa = L_SA0 if layer == 0 else L_SA1
    k.e(f"v_and_b32 v{t16}, 15, v1", f"v_lshrrev_b32 v{g}, 4, v1", f"v_and_b32 v{tt}, 7, v1", f"v_bfe_u32 v{tb}, v1, 3, 1")
    k.e(f"v_lshlrev_b32 v{tb}, 13, v{tb}")
    if layer == 0: k.e(f"v_add_u32 v{tb}, {L_X}, v{tb}")
    if layer == 0:
        k.e(f"v_and_b32 v{x}, 6, v{tt}", f"v_xor_b32 v{x}, v{x}, v{g}", f"v_lshlrev_b32 v{x}, 4, v{x}",
            f"v_lshl_add_u32 v{x}, v{tt}, 7, v{x}", f"v_add_u32 v{R.XE}, v{x}, v{tb}", f"v_xor_b32 v{R.XO}, 64, v{R.XE}")
    else:
        k.e(f"v_lshl_add_u32 v{x}, v{g}, 7, v{tb}", f"v_lshl_add_u32 v{R.XE}, v{tt}, 4, v{x}", f"v_add_u32 v{R.XO}, 512, v{R.XE}")
    k.e(f"v_lshlrev_b32 v{R.SA}, 3, v{t16}", f"v_add_u32 v{R.SA}, {sa}, v{R.SA}",
        f"v_lshlrev_b32 v{R.SB}, 5, v{g}", f"v_add_u32 v{R.SB}, {sa}, v{R.SB}")
    k.e(f"v_and_b32 v{x}, 1, v1", f"v_cmp_eq_u32 s[{sODD}:{sODD+1}], 1, v{x}",
        f"v_lshl_add_u32 v{y}, v{g}, 2, v{x}", f"v_cmp_le_u32 s[{sCUR0}:{sCUR0+1}], v{y}, v{t16}",
        f"v_add_u32 v{y}, 2, v{y}", f"v_cmp_le_u32 s[{sCUR1}:{sCUR1+1}], v{y}, v{t16}")
    k.e(f"v_mov_b32 v{y}, 0xffff", f"v_mov_b32 v{z}, 0xffff0000", f"v_cndmask_b32 v{y}, v{y}, v{z}, s[{sODD}:{sODD+1}]", f"v_mov_b32 v{z}, 0")
    k.e(f"v_cndmask_b32 v{R.M+2}, v{z}, v{y}, s[{sCUR0}:{sCUR0+1}]", f"v_cndmask_b32 v{R.M}, v{y}, v{z}, s[{sCUR0}:{sCUR0+1}]",
        f"v_cndmask_b32 v{R.M+3}, v{z}, v{y}, s[{sCUR1}:{sCUR1+1}]", f"v_cndmask_b32 v{R.M+1}, v{y}, v{z}, s[{sCUR1}:{sCUR1+1}]")
    k.e(f"s_cmp_eq_u32 s{sB}, 0", f"s_cselect_b32 s70, {f2u(-1e38):#x}, 0", f"s_mov_b32 s{sCEXP}, {f2u(0.25*LOG2E):#x}")
    for i in range(4): k.e(f"v_mov_b32 v{R.CI+i}, s70", f"v_mov_b32 v{R.ONE+i}, 0x3f803f80")
    return out

def o_bases(k, layer):
    k.e(*o_block("s32", layer))
    k.e(f"s_lshl_b32 s33, s{sCS}, 2", f"s_add_u32 s33, s33, s{sW}", "s_lshl_b32 s53, s33, 10", "s_add_u32 s53, s53, s32", "s_add_u32 s54, s53, 32768",
        f"s_lshl_b32 s32, s{sB}, 5", "s_add_u32 s32, s32, s33", "s_lshl_b32 s32, s32, 2", f"s_add_u32 s89, s32, {fl(layer, FL_O)}")

def ln_finish(a, s, q):
    a(f"v_mul_f32 v{s}, {f2u(-1/512):#x}, v{s}"); a(f"v_mul_f32 v{q}, {f2u(1/512):#x}, v{q}")
    a(f"v_fma_f32 v{q}, -v{s}, v{s}, v{q}"); a(f"v_max_f32 v{q}, 0, v{q}"); a(f"v_add_f32 v{q}, {f2u(1e-5):#x}, v{q}")

A_QS = 68
def fix_reads(k, R, t, S):
    i = 0 if t == "h" else t + 1
    return [lambda: k.ds(f"ds_read_b64 {vr(S,2)}, v{R.SA} offset:{i*128}", ("sa", t)),
            lambda: k.ds(f"ds_read_b128 {vr(S+2,4)}, v{R.SB} offset:{i*128}", ("sa", t)),
            lambda: k.ds(f"ds_read_b128 {vr(S+6,4)}, v{R.SB} offset:{i*128+16}", ("sa", t))]
def fix(k, R, fx, t, acc, at, pk, S=A_STA, pre=False, nxt=()):
    a = lambda txt, c=1, at=0: fx.add(lambda: k.e(txt), c, at)
    i = 0 if t == "h" else t + 1
    if not pre:
        for n, f in enumerate(fix_reads(k, R, t, S)): fx.add(f, 1, at - P.a1_salead if n == 0 else 0)
    fx.add(lambda: k.wait(lg=[("sa", t)]), 1, at)
    for f in nxt: fx.add(f)
    for r0, cs, dst in ((acc[0], CSQ, None if t == "h" else A_Q + 2*t), (acc[1], CSK, A_K + 2*i)):
        if dst is None: continue
        isq = cs == CSQ
        if pk:
            for h in (0, 2): a(f"v_pk_fma_f32 {vr(r0+h,2)}, {vr(S,2)}, {vr(cs+h,2)}, {vr(r0+h,2)} op_sel_hi:[0,1,1]")
            if not isq:
                for h in (0, 2): a(f"v_pk_mul_f32 {vr(r0+h,2)}, {vr(S,2)}, {vr(r0+h,2)} op_sel:[1,0] op_sel_hi:[1,1]")
        else:
            for r in range(4): a(f"v_fmac_f32 v{r0+r}, v{S}, v{cs+r}")
            if not isq:
                for r in range(4): a(f"v_mul_f32 v{r0+r}, v{S+1}, v{r0+r}")
        if isq: a(f"v_mul_f32 v{A_QS+t}, s{sCEXP}, v{S+1}")
        for h in range(2): a(f"v_cvt_pk_bf16_f32 v{dst+h}, v{r0+2*h}, v{r0+2*h+1}")
    r0 = acc[2]
    for r in range(4): a(f"v_fmac_f32 v{r0+r}, v{S+2+2*r}, v{CSV}")
    for r in range(4): a(f"v_mul_f32 v{r0+r}, v{S+3+2*r}, v{r0+r}")
    for h in range(2): a(f"v_cvt_pk_bf16_f32 v{A_V+2*i+h}, v{r0+2*h}, v{r0+2*h+1}")
    fx.add(lambda: (k.mark(("fix", t)), k.stamp(f"t0 fix{t}")), 0)

def attn(k, R, fx, t, B):
    SC, SP, PP, O, SUM, T = B, B + 4, B + 8, B + 12, B + 16, B + 20
    a = lambda txt, c=1: fx.add(lambda: k.e(txt), c)
    q = vr(A_Q + 2*t, 2)
    fx.dep(("fix", t)); fx.dep(("fix", t - 1 if t else "h")); fx.skip(1)
    a(f"{MF16S} {vr(SC,4)}, {vr(A_K+2*(t+1),2)}, {q}, 0", 2)
    a(f"{MF16S} {vr(SP,4)}, {vr(A_K+2*t,2)}, {q}, {vr(R.CI,4) if t == 0 else '0'}", 2)
    fx.skip(3)
    for rr, cur in ((0, sCUR0), (1, sCUR1)):
        a(f"v_cndmask_b32 v{T+2}, v{SC+2*rr}, v{SC+2*rr+1}, s[{sODD}:{sODD+1}]")
        a(f"v_cndmask_b32 v{T+3}, v{SP+2*rr}, v{SP+2*rr+1}, s[{sODD}:{sODD+1}]")
        a(f"v_cndmask_b32 v{T+rr}, v{T+3}, v{T+2}, s[{cur}:{cur+1}]")
    a(f"v_max_f32 v{T+2}, v{T}, v{T+1}"); a(f"v_mov_b32 v{T+3}, v{T+2}"); fx.skip(1)
    a(f"v_permlane16_swap_b32 v{T+2}, v{T+3}", 2); a(f"v_max_f32 v{T+2}, v{T+2}, v{T+3}"); a(f"v_mov_b32 v{T+3}, v{T+2}"); fx.skip(1)
    a(f"v_permlane32_swap_b32 v{T+2}, v{T+3}", 2); a(f"v_max_f32 v{T+2}, v{T+2}, v{T+3}")
    a(f"v_mul_f32 v{T+2}, v{A_QS+t}, v{T+2}")
    for rr in range(2): a(f"v_fma_f32 v{T+rr}, v{T+rr}, v{A_QS+t}, -v{T+2}")
    for rr in range(2): a(f"v_exp_f32 v{T+rr}, v{T+rr}", 2)
    for rr in range(2): a(f"v_cvt_pk_bf16_f32 v{T+rr}, v{T+rr}, v{T+rr}")
    a(f"v_and_b32 v{PP}, v{T}, v{R.M}"); a(f"v_and_b32 v{PP+1}, v{T+1}, v{R.M+1}")
    a(f"v_and_b32 v{PP+2}, v{T}, v{R.M+2}"); a(f"v_and_b32 v{PP+3}, v{T+1}, v{R.M+3}")
    fx.skip(1)
    a(f"{MF16} {vr(SUM,4)}, {vr(R.ONE,4)}, {vr(PP,4)}, 0", 2)
    a(f"{MF16} {vr(O,4)}, {vr(A_V+2*t,4)}, {vr(PP,4)}, 0", 2)
    fx.skip(3)
    a(f"v_rcp_f32 v{T}, v{SUM}", 2); fx.skip(1)
    for r in range(4): a(f"v_mul_f32 v{O+r}, v{T}, v{O+r}")
    for h in range(2): a(f"v_cvt_pk_bf16_f32 v{A_OP+2*t+h}, v{O+2*h}, v{O+2*h+1}")
    fx.add(lambda: (k.mark(("attn", t)), k.stamp(f"t0 attn{t}")), 0)

def ostore(k, fx, pair):
    b = A_OP + 4 * pair
    fx.dep(("attn", 2*pair)); fx.dep(("attn", 2*pair + 1))
    fx.dep("po1" if pair == 0 else "blank")
    fx.skip(1)
    fx.add(lambda: k.e(f"v_permlane16_swap_b32 v{b}, v{b+2}"), 2); fx.add(lambda: k.e(f"v_permlane16_swap_b32 v{b+1}, v{b+3}"), 2)
    fx.add(lambda: (k.dstore(f"buffer_store_dwordx4 {vr(b,4)}, v{vL16}, {SRD_WS}, s{53+pair} offen", ("ost", pair)), k.mark(("ost", pair))))

Z_WD, Z_TR, Z_HE, Z_HO, Z_OE, Z_OO = 164, 165, 166, 167, 168, 169
Z_XF, Z_SUM, Z_GR, Z_SUMH, Z_GRH, Z_CV = 104, 240, 244, 248, 252, 100
P.k_first = 4; P.k_pack = None; P.k_prep = 12
P.k_look, P.k_atom, P.k_bar, P.k_vgap, P.k_pst, P.k_pgap = 3, 5, 3, 3, 3, 0
NS0 = 6
def z_acc(t):
    if t == "h": return (None, A_ACC + 48, A_ACC + 52)
    return (A_ACC + 12*t, A_ACC + 12*t + 4, A_ACC + 12*t + 8)

def a10_lanes(k):
    k.e("v_lshrrev_b32 v60, 3, v1", "v_and_b32 v61, 6, v60", "v_and_b32 v62, 7, v1", "v_xor_b32 v61, v61, v62",
        "v_lshlrev_b32 v61, 4, v61", f"v_lshl_add_u32 v{A_DX}, v60, 10, v61")
    k.e("v_and_b32 v61, 2, v60", f"s_and_b32 s32, s{sW}, 1", "s_lshl_b32 s32, s32, 2", "v_or_b32 v61, s32, v61", "v_xor_b32 v61, v61, v62",
        "v_lshlrev_b32 v61, 4, v61", "v_mul_u32_u24 v60, 3072, v60", f"v_add_u32 v{Z_WD}, v60, v61")
    if isinstance(P.rot, tuple):
        al, be, ga = P.rot
        k.e(f"s_and_b32 s32, s{sB}, 3", f"s_mul_i32 s32, s32, {al}", f"s_lshr_b32 s33, s{sB}, 2", f"s_mul_i32 s33, s33, {be}", "s_add_u32 s32, s32, s33",
            f"s_mul_i32 s33, s{sCS}, {ga}", f"s_add_u32 s{sROT}, s32, s33")
    elif P.rot == 0: k.e(f"s_add_u32 s{sROT}, s{sB}, s{sCS}")
    elif P.rot == 1: k.e(f"s_lshl_b32 s32, s{sB}, 1", f"s_bfe_u32 s33, s{sB}, 0x10002", "s_add_u32 s32, s32, s33", f"s_add_u32 s{sROT}, s32, s{sCS}")
    elif P.rot == 2: k.e(f"s_lshl_b32 s32, s{sB}, 1", f"s_add_u32 s{sROT}, s32, s{sCS}")
    elif P.rot == 3: k.e(f"s_mov_b32 s{sROT}, s{sCS}")
    elif P.rot == 4: k.e(f"s_lshl_b32 s32, s{sB}, 1", f"s_bfe_u32 s33, s{sB}, 0x10002", f"s_add_u32 s{sROT}, s32, s33")
    elif P.rot == 5: k.e(f"s_mov_b32 s{sROT}, 0")
    elif P.rot == 6: k.e(f"s_mul_i32 s32, s{sB}, 3", f"s_add_u32 s{sROT}, s32, s{sCS}")
    elif P.rot == 7: k.e(f"s_lshr_b32 s32, s{sB}, 2", f"s_add_u32 s{sROT}, s32, s{sCS}")
    elif P.rot == 8: k.e(f"s_lshr_b32 s32, s{sB}, 2", f"s_add_u32 s32, s32, s{sB}", f"s_add_u32 s{sROT}, s32, s{sCS}")
    k.e(f"s_and_b32 s{sROT}, s{sROT}, 7")
    k.e(f"s_lshl_b32 s47, s{sB}, 3", "s_sub_u32 s48, s47, 2", "s_max_i32 s48, s48, 0", f"s_and_b32 s32, s{sW}, 1", "s_add_u32 s48, s48, s32",
        "s_lshl_b32 s48, s48, 13", f"s_lshl_b32 s32, s{sW}, 1", "s_add_u32 s47, s47, s32", "s_lshl_b32 s47, s47, 13")
    k.e(f"s_mul_i32 s51, s{sW}, {8*3072}", f"s_lshl_b32 s32, s{sCS}, 7", "s_add_u32 s51, s51, s32", f"s_mul_i32 s52, s{sW}, 3072")
    k.e(f"s_lshl_b32 s49, s{sW}, 14", f"s_and_b32 s32, s{sW}, 1", "s_lshl_b32 s50, s32, 13", f"s_lshr_b32 s32, s{sW}, 1",
        "s_lshl_b32 s33, s32, 10", "s_add_u32 s50, s50, s33", f"s_add_u32 s90, s32, s{sROT}")

def a10_x(k, c):
    S = lambda *t: [("s", lambda x=x: k.e(x)) for x in t]
    ld = lambda: k.vm(f"buffer_load_dwordx4 v{A_DX}, {SRD_X}, s33 offen {P.x_mod} lds", ("x", c))
    ops = S(f"s_add_u32 s33, s{sROT}, {c}", "s_and_b32 s33, s33, 7", "s_lshl_b32 s33, s33, 7", f"s_add_u32 m0, s49, {L_X + c*1024}", "s_add_u32 s33, s33, s47")
    ops += [("v", ld)] + S(f"s_add_u32 m0, s49, {L_X + 8192 + c*1024}", "s_add_u32 s33, s33, 8192") + [("v", ld)]
    if c % 2 == 0:
        ops += S(f"s_add_u32 s33, s90, {c}", "s_and_b32 s33, s33, 7", "s_lshl_b32 s33, s33, 7", f"s_add_u32 m0, s50, {L_XH0 + c*1024}", "s_add_u32 s33, s33, s48") + [("v", ld)]
    return ops

def a10_w(k, s):
    S = lambda *t: [("s", lambda x=x: k.e(x)) for x in t]
    if s & 1: ops = S(f"s_add_u32 m0, s52, {(s % NS0)*12288}", f"s_add_u32 s63, s63, {32*3072}")
    else: ops = S(f"s_add_u32 s63, s{sROT}, {s>>1}", "s_and_b32 s63, s63, 7", f"s_mul_i32 s63, s63, {64*3072}", f"s_add_u32 m0, s52, {(s % NS0)*12288}", "s_add_u32 s63, s63, s51")
    for p in range(3): ops.append(("v", lambda p=p: k.vm(f"buffer_load_dwordx4 v{Z_WD}, {SRD_QKV}, s63 offen offset:{p*1024} {P.w_mod} lds", ("w", s))))
    return ops
def run(ops):
    for _, f in ops: f()

def fill(k, mains, streams, cap=2):
    lastv = -99
    for g, m in enumerate(mains):
        m(); k.gap = g
        for a, o in streams:
            if a <= g and o and o[0][0] == "s": o.pop(0)[1](); break
        room = cap; nd = 0
        if g - lastv >= P.k_vgap and k.bg_step(): room -= 1; lastv = g
        while room > 0:
            pick = None
            for a, o in streams:
                if a > g or not o: continue
                t = o[0][0]
                if t == "d" and nd >= 1: continue
                if t == "v" and g - lastv < P.k_vgap: continue
                pick = o; break
            if pick is None: break
            t, f = pick.pop(0); f(); room -= 2 if t == "b" else 1
            if t == "d": nd += 1
            if t == "v": lastv = g
    for a, o in streams: run(o)

def a10_lanes2(k):
    k.e("v_lshrrev_b32 v60, 4, v1", "v_bfe_u32 v61, v1, 2, 2", "v_and_b32 v62, 1, v60", "v_lshlrev_b32 v62, 1, v62",
        "v_lshrrev_b32 v63, 1, v61", "v_or_b32 v62, v62, v63", f"v_xor_b32 v62, s{sW}, v62", "v_lshlrev_b32 v62, 5, v62",
        "v_mul_u32_u24 v60, 3072, v60", "v_lshl_add_u32 v60, v61, 7, v60", "v_add_u32 v60, v60, v62",
        "v_and_b32 v61, 3, v1", f"v_lshl_add_u32 v{Z_TR}, v61, 3, v60")
    k.e("v_and_b32 v60, 15, v1", "v_cmp_eq_u32 s[78:79], 0, v60")
    k.e(f"v_subrev_u32 v{Z_HE}, 16384, v{R0.XE}", f"v_subrev_u32 v{Z_HO}, 16384, v{R0.XO}",
        f"v_add_u32 v{Z_OE}, s49, v{R0.XE}", f"v_add_u32 v{Z_OO}, s49, v{R0.XO}")

def a10_loop(k, first):
    LA = P.k_look
    def sync(s, extra=()):
        k.wait(vm=[("w", s), ("x", s >> 1)] + list(extra)); k.e("s_barrier")
    nxt = [first]
    def dmas(upto):
        out = []
        while nxt[0] <= min(upto, 15):
            n = nxt[0]; nxt[0] += 1
            if n % 2 == 0: out += a10_x(k, n // 2)
            out += a10_w(k, n)
        return out
    def reads(s):
        fb = Z_XF + 24 * (s & 1); off = (s >> 1) * 1024; o = s & 1
        tr = lambda p, j: ("d", lambda: k.ds(f"ds_read_b64_tr_b16 {ar(12*s+4*p+2*j,2)}, v{Z_TR} offset:{(s%NS0)*12288 + p*1024 + j*512}", ("r", s, 0 if p == 0 else 1)))
        xr = lambda d, a, of, grp: ("d", lambda: k.ds(f"ds_read_b128 {vr(d,4)}, v{a} offset:{of}", ("r", s, grp)))
        out = [tr(0, 0), tr(0, 1)] + [xr(fb + 4*t, R0.XO if o else R0.XE, t*16384 + off, 0) for t in range(4)]
        out += [tr(1, 0), tr(1, 1), tr(2, 0), tr(2, 1), xr(fb + 16, Z_HO if o else Z_HE, off, 1), xr(fb + 20, Z_OO if o else Z_OE, off, 1)]
        return out
    l0_background(k)
    pst = pack_stores(k)
    sync(0)
    k.stamp("k0")
    run(reads(0)); run(dmas(LA - 1))
    for s in range(16):
        fb = Z_XF + 24 * (s & 1)
        c = lambda r: "0" if s == 0 else vr(r, 4)
        wq, wk, wv, one = ar(12*s, 4), ar(12*s + 4, 4), ar(12*s + 8, 4), vr(R0.ONE, 4)
        ms = [f"{MF16} {vr(z_acc(t)[0],4)}, {wq}, {vr(fb+4*t,4)}, {c(z_acc(t)[0])}" for t in range(4)]
        for t in [0, 1, 2, 3, "h"]:
            xf = vr(fb + (16 if t == "h" else 4*t), 4)
            ms.append(f"{MF16} {vr(z_acc(t)[1],4)}, {wk}, {xf}, {c(z_acc(t)[1])}")
            ms.append(f"{MF16} {vr(z_acc(t)[2],4)}, {xf}, {wv}, {c(z_acc(t)[2])}")
        ms += [f"{MF16} {vr(Z_CV,4)}, {wq}, {vr(fb+16,4)}, {c(Z_CV)}",
               f"{MF16} {vr(Z_SUM,4)}, {one}, {vr(fb+20,4)}, {c(Z_SUM)}", f"{MF16} {vr(Z_GR,4)}, {vr(fb+20,4)}, {vr(fb+20,4)}, {c(Z_GR)}",
               f"{MF16} {vr(Z_GRH,4)}, {vr(fb+16,4)}, {vr(fb+16,4)}, {c(Z_GRH)}"]
        if not P.gram1: ms.append(f"{MF16} {vr(Z_SUMH,4)}, {one}, {vr(fb+16,4)}, {c(Z_SUMH)}")
        mains = [lambda m=m: k.e(m) for m in ms]
        if s == P.k_pack:
            k.wait(lg="all"); pack_process(k, lambda: None, lambda: None)
        k.wait(lg=[("r", s, 0)])
        streams = [(3, [("s", lambda: k.wait(lg=[("r", s, 1)]))] +
                       [("a", lambda d=d: k.e(f"v_cndmask_b32 v{fb+16+d}, v{fb+16+d}, v{R0.ONE}, s[78:79]")) for d in range(4)])]
        if s + 1 < 16:
            ex = ["pks"] if s + 1 == P.k_atom else []
            assert not ex or not pst, "arrival before the last pack store"
            assert P.k_prep > 14 - LA and (P.k_pack or 0) <= 8 - LA
            ops = [("b", lambda: sync(s + 1, ex))] + reads(s + 1)
            if ex: ops.append(("b", lambda: arrive(k)))
            streams.append((P.k_bar, ops))
            streams.append((0, dmas(s + LA)))
        n = 0; mine = []
        while pst and s >= (P.k_pack or 0) and (n < P.k_pst or pst[0][0] == "a"):
            n += pst[0][0] == "v"; mine.append(pst.pop(0))
        streams.append((P.k_pgap, mine))
        if s == P.k_prep: streams.append((6, tail_prep(k)))
        if s == P.k_touch:
            streams.append((2, [("b", lambda: k.touch(157, "p", ["s_mov_b32 s32, s53"], False) if (0, "ost", True) not in P.wt else None),
                                ("b", lambda: k.touch(158, "q", [f"s_add_u32 s32, s64, {BX2()}"], False) if (0, "xst", False) not in P.wt and P.x1_at == "k" else None),
                                ("b", lambda: k.touch(159, "h", h_base("s32", 0), False) if P.h_touch0 == "k" else None)]))
        if s == P.k_gb: streams.append((1, [("v", lambda t=t: k.vm(t, "gb")) for t in GB_LOADS]))
        if s == P.k_chk: streams.append((1, [("b", lambda: rendezvous(k))]))
        if s == 15 and P.k_chk < 16:
            streams.append((max(P.k_bar, 4), [("b", lambda: (k.e("s_barrier"), k.mark("xfree")))]))
        fill(k, mains, streams)
        if s in (3, 7, 11): k.stamp(f"k{s+1}")
    k.stamp("k16")
    if P.k_chk >= 16: rendezvous(k)

GB_LOADS = [f"buffer_load_dwordx4 {vr(36+4*j,4)}, v{vL16}, {SRD_WS}, s75 offen offset:{j*1024} sc1" for j in range(4)] + \
           [f"buffer_load_dword v{vP}, v172, {SRD_WS}, s77 offen offset:8 sc1"]
def arrive(k):
    k.wait(vm=["tag"])
    k.e(f"v_readfirstlane_b32 s{sTAG}, v170", f"s_cmp_eq_u32 s{sTAG}, 0", "s_cbranch_scc1 L_tag_spin ;np", "L_tag_ok: ;np")
    k.spins += ["L_tag_spin:", f"s_sub_u32 s{sBUD}, s{sBUD}, 1", "s_cbranch_scc1 L_tag_give", f"buffer_load_dword v170, v{vFA}, {SRD_DBG}, 0 offen sc1",
                "s_waitcnt vmcnt(0)", f"v_readfirstlane_b32 s{sTAG}, v170", f"s_cmp_eq_u32 s{sTAG}, 0", "s_cbranch_scc1 L_tag_spin", "s_branch L_tag_ok",
                "L_tag_give:", f"s_mov_b32 s{sBUD}, 0", "s_branch L_tag_ok"]
    k.e(f"v_mov_b32 v176, s{sTAG}", "v_not_b32 v177, v176", f"v_mov_b32 v178, s{sXCC}")
    k.vm(f"buffer_store_dwordx4 v[176:179], v171, {SRD_WS}, s75 offen sc1", "arr")

def rendezvous(k):
    chk = [f"s_not_b32 s32, s{sTAG}"]
    for j in range(4): chk += [f"v_xor_b32 v{36+4*j}, s{sTAG}, v{36+4*j}", f"v_xor_b32 v{37+4*j}, s32, v{37+4*j}"]
    chk += ["v_or3_b32 v36, v36, v37, v40", "v_or3_b32 v44, v44, v45, v41", "v_or3_b32 v36, v36, v48, v49", "v_or_b32 v36, v36, v44", "v_cmp_ne_u32 vcc, 0, v36"]
    k.wait(vm=["gb"])
    k.e(*chk); k.e("s_cbranch_vccnz L_gb_spin ;np", "L_gb_ok: ;np")
    k.spins += ["L_gb_spin:", f"s_sub_u32 s{sBUD}, s{sBUD}, 1", "s_cbranch_scc1 L_gb_give", "s_sleep 2",
                f"buffer_load_dword v170, v{vFA}, {SRD_DBG}, 0 offen sc1", "s_waitcnt vmcnt(0)", "v_readfirstlane_b32 s32, v170", f"s_cmp_eq_u32 s32, s{sTAG}",
                "s_cbranch_scc1 L_gb_same", f"s_mov_b32 s{sTAG}, s32", f"v_mov_b32 v176, s{sTAG}", "v_not_b32 v177, v176",
                f"buffer_store_dwordx4 v[176:179], v171, {SRD_WS}, s75 offen sc1", "L_gb_same:"] + GB_LOADS + ["s_waitcnt vmcnt(0)"] + chk + \
               ["s_cbranch_vccnz L_gb_spin", "s_branch L_gb_ok", "L_gb_give:", f"s_mov_b32 s{sBUD}, 0", "s_branch L_gb_ok"]
    k.e(f"v_cmp_ne_u32 vcc, s{sXCC}, v{vP}", "s_and_b32 s99, vcc_lo, 0xffff" if not P.safe else "s_and_b32 s99, 1, 1",
        f"s_cselect_b32 s{sML}, {OOB>>1:#x}, 0", f"s_cselect_b32 s{sMS}, 0, {OOB>>1:#x}")
    k.mark("gb")

W_OA, W_UA, W_SA, W_RB = 152, 154, 155, 156
def wo_bases(k):
    k.e(f"s_lshl_b32 s32, s{sB}, 2", f"s_add_u32 s32, s32, s{sW}", "s_lshl_b32 s64, s32, 14", f"s_lshl_b32 s33, s{sCS}, {CSH()}", "s_add_u32 s64, s64, s33",
        "s_lshr_b32 s32, s32, 1", "s_lshl_b32 s80, s32, 15", "s_lshl_b32 s65, s32, 11", "s_lshl_b32 s66, s32, 3", f"s_add_u32 s66, s66, s{sCS}", "s_lshl_b32 s66, s66, 1",
        f"s_and_b32 s32, s{sW}, 1", "s_add_u32 s66, s66, s32", "s_lshl_b32 s66, s66, 2", "s_lshl_b32 s32, s32, 8", "s_add_u32 s80, s80, s32", "s_add_u32 s65, s65, s32",
        f"s_lshr_b32 s32, s{sCS}, 1", "s_lshl_b32 s32, s32, 9", "s_add_u32 s65, s65, s32", f"s_and_b32 s32, s{sCS}, 1", "s_lshl_b32 s32, s32, 3", "s_add_u32 s65, s65, s32")
def wo_lanes(k):
    x, y = 66, 67
    return [lambda t=t: k.e(*t) for t in (
        [f"v_and_b32 v{x}, 15, v1"], [f"v_lshrrev_b32 v{y}, 4, v1"], [f"v_lshlrev_b32 v{W_OA}, 4, v{x}"], [f"v_lshl_add_u32 v{W_SA}, v{y}, 2, v{W_OA}"],
        [f"v_lshl_add_u32 v{W_OA}, v{y}, 9, v{W_OA}"], [f"v_and_b32 v{W_UA}, 7, v1"], [f"v_lshlrev_b32 v{W_UA}, 4, v{W_UA}"], [f"v_lshl_add_u32 v{W_UA}, v{y}, {LSH()}, v{W_UA}"],
        [f"v_lshrrev_b32 v{x}, 3, v{x}"], [f"v_lshl_add_u32 v{W_UA}, v{x}, 13, v{W_UA}"], [f"v_add_u32 v{W_RB}, {6*16384}, v{vL16}"],
        ["v_cmp_gt_u32 vcc, 32, v1", f"v_mov_b32 v{y}, {OOB:#x}", f"v_cndmask_b32 v{W_SA}, v{y}, v{W_SA}, vcc"])]
def blanks(k, layer):
    if not P.tags: return [lambda: k.mark("blank")]
    z = 66
    return [lambda: (k.e(f"v_mov_b32 v{z}, -1"), k.dstore(f"buffer_store_dword v{z}, v{vL16}, {SRD_WS}, s53 offen", "blank")),
            lambda: (k.e(f"s_add_u32 s58, s64, {BX2()}"), k.dstore(f"buffer_store_dword v{z}, v{W_UA}, {SRD_WS}, s58 offen", "blank")),
            lambda: k.dstore(f"buffer_store_dword v{z}, v{W_UA}, {SRD_WS}, s58 offen offset:512", "blank"),
            lambda: (k.e(f"s_add_u32 s58, s65, {BS1[layer]}"), k.dstore(f"buffer_store_dword v{z}, v{W_SA}, {SRD_WS}, s58 offen", "blank"), k.mark("blank"))]
def wo_prepoll(k, layer):
    k.poll_addr(A_PA, 32)
    k.e(f"s_lshl_b32 s32, s{sB}, 7", f"s_add_u32 s{sPO}, s32, {fl(layer, FL_O)}", *o_block("s59", layer), "s_and_b32 s32, s80, 0xffff", "s_add_u32 s59, s59, s32")
    k.bg_held = True
    k.poll_issue(A_PA, "po1"); k.mark("po1")

def dna(k): return regloads(k, sDS, 0, lambda j: ar(192 + 4*j, 4), 16, "dna")

def tail_prep(k):
    R = R0
    A = lambda *t: [("a", lambda x=x: k.e(x)) for x in t]
    B = lambda *t: [("b", lambda: k.e(*t))]
    ops = A("v_and_b32 v73, 15, v1", "v_lshrrev_b32 v74, 4, v1", "v_lshlrev_b32 v73, 10, v73", "v_lshl_add_u32 v73, v74, 4, v73")
    ops += B(f"s_lshl_b32 s58, s{sB}, 2", f"s_add_u32 s58, s58, s{sW}", "s_lshl_b32 s58, s58, 14", f"s_lshl_b32 s59, s{sCS}, 7", "s_add_u32 s58, s58, s59")
    ops += [("v", lambda p=p: k.vm(f"buffer_load_dwordx4 {vr(RES+4*p,4)}, v73, {SRD_X}, s58 offen offset:{p*64}", "res")) for p in range(2)]
    ops += A("v_and_b32 v75, 3, v1", "v_cmp_eq_u32 s[34:35], 1, v75", "v_cmp_eq_u32 s[36:37], 2, v75", "v_cmp_eq_u32 s[38:39], 3, v75", "v_bfe_u32 v75, v1, 2, 2")
    ops += B("v_cmp_eq_u32 vcc, v75, v74", f"v_mov_b32 v72, {L_SA0 + 768}", f"s_lshl_b32 s59, s{sW}, 7", f"v_add_u32 v74, s59, v{R.SA}",
             "v_cndmask_b32 v74, v72, v74, vcc", f"v_cndmask_b32 v75, v72, v{R.SA}, vcc")
    return ops + [("a", f) for f in wo_lanes(k)]

def l0_background(k):
    k.per = dict(P.per_k)
    dd = dna(k)
    bg_list(k, dd[:P.dna_first], "s4", "dna", "gb")
    bg_list(k, wow(k), "s4", "wow", "xfree")
    bg_batches(k, [0, 1, 2, 3], "s2", lambda b: "xfree")
    bg_batches(k, [4], "s2", lambda b: "wobar")
    bg_batches(k, [5], "s2", lambda b: "xfree")
    bg_batches(k, [6, 7, 8, 9], "s2", lambda b: "gubar")
    bg_list(k, dd[P.dna_first:], "s4", "dna")
P.per_k = {"s2": 90, "s4": 70}

def a10_tail(k):
    R = R0
    k.per = dict(P.per_tail0)
    k.stamp("t0 gb")
    xt = [lambda: k.touch(72, "t", [f"s_add_u32 s32, s65, {BS1[0]}"])]
    if P.x1_at != "k": xt.append(lambda: k.touch(158, "q", [f"s_add_u32 s32, s64, {BX2()}"]))
    if (0, "xst", False) in P.wt: xt = []
    if P.x1_at == "k":
        for f in xt: f()
    k.bg_burst(P.tail_burst); k.bg_next = k.t + P.tail_delay
    hk, hv = z_acc("h")[1], z_acc("h")[2]
    for r in range(4):
        k.e(f"v_mov_b32_dpp v{CSQ+r}, v{Z_CV+r} row_newbcast:0 row_mask:0xf bank_mask:0xf", f"v_mov_b32_dpp v{CSK+r}, v{hk+r} row_newbcast:0 row_mask:0xf bank_mask:0xf")
    k.e(f"v_mov_b32 v{CSV}, v{hv}", f"v_mov_b32 v45, v{hv}", f"v_permlane16_swap_b32 v{CSV}, v45", f"v_mov_b32 v45, v{CSV}", f"v_permlane32_swap_b32 v{CSV}, v45")
    if P.gram1:
        k.e(f"v_mov_b32 v{Z_SUMH}, v{Z_GRH}", f"v_mov_b32 v45, v{Z_GRH}", f"v_permlane16_swap_b32 v{Z_SUMH}, v45", f"v_mov_b32 v45, v{Z_SUMH}", f"v_permlane32_swap_b32 v{Z_SUMH}, v45")
    fa = Flex(); fb = Flex()
    for fx, S, G, ad, off in ((fa, Z_SUM, Z_GR, 74, 128), (fb, Z_SUMH, Z_GRH, 75, 0)):
        a = lambda txt, c=1, fx=fx: fx.add(lambda: k.e(txt), c)
        a(f"v_cndmask_b32 v{S+1}, v{G}, v{G+1}, s[34:35]"); a(f"v_cndmask_b32 v{S+1}, v{S+1}, v{G+2}, s[36:37]"); a(f"v_cndmask_b32 v{S+1}, v{S+1}, v{G+3}, s[38:39]")
        ln_finish(a, S, S + 1); a(f"v_rsq_f32 v{S+1}, v{S+1}"); fx.skip(1)
        fx.add(lambda S=S, ad=ad, off=off: k.ds(f"ds_write_b64 v{ad}, {vr(S,2)} offset:{off}", "saw"))
    drain([fa, fb], k)
    for f in blanks(k, 0): f()
    k.wait(lg="all"); k.e("s_barrier"); k.mark("xfree")
    k.stamp("t0 bar")
    fx = Flex(); f1 = Flex(); f2 = Flex()
    od = (2, 1, 3, 0, "h"); Ss = (A_STA, 56)
    for f in fix_reads(k, R, od[0], Ss[0]): f()
    for n, t in enumerate(od):
        fix(k, R, fx, t, z_acc(t), 0, True, Ss[n & 1], True, fix_reads(k, R, od[n + 1], Ss[~n & 1]) if n < 4 else ()); fx.skip(1)
    attn(k, R, f1, 2, R.ATT[0]); attn(k, R, f2, 3, R.ATT[1]); ostore(k, f2, 1)
    attn(k, R, f1, 1, R.ATT[0]); attn(k, R, f2, 0, R.ATT[1]); ostore(k, f2, 0)
    f4 = Flex()
    if P.x1_at != "k":
        f4.dep(P.x1_at)
        for f in xt: f4.add(f)
    f3 = Flex(); f3.dep(("ost", 1))
    for _ in range(P.l0_flag_delay): f3.skip(1)
    f3.add(lambda: (k.wait(vm=[("ost", 1)]), k.flag(1, 89), k.mark("oflag1")))
    f3.dep(("attn", 0)); f3.add(lambda: wo_prepoll(k, 0))
    drain([fx, f1, f2, f3, f4], k)
    k.stamp("a1 end")
P.x1_at = 'k'; P.tail_burst = 2; P.tail_delay = 0; P.l0_flag_delay = 6; P.dna_first = 2
P.per_tail0 = {"s2": 70, "s4": 45}

def a11_bases(k):
    out = []
    S = lambda *t: out.extend(lambda x=x: k.e(x) for x in t)
    S(f"s_lshr_b32 s70, s{sW}, 1", "s_lshl_b32 s49, s70, 13", f"s_and_b32 s71, s{sW}, 1", "s_lshl_b32 s71, s71, 2",
      f"s_add_u32 s50, s71, s{sROT}", "s_lshl_b32 s71, s71, 10")
    for i in range(4):
        S(f"s_add_u32 s70, s50, {i}", "s_and_b32 s70, s70, 7", f"s_lshl_b32 s70, s70, {CSH()}", "s_add_u32 s70, s70, s49", f"s_sub_u32 s{92+i}, s70, {0 if P.x_out else i*1024}")
    S("s_add_u32 s49, s49, s71", f"s_lshl_b32 s47, s{sB}, 16", f"s_add_u32 s47, s47, {BX2()}")
    S(f"s_sub_u32 s48, s{sB}, 1", "s_max_i32 s48, s48, 0", "s_lshl_b32 s51, s48, 10", f"s_add_u32 s51, s51, {WS_HST}",
      "s_lshl_b32 s52, s48, 11", f"s_add_u32 s52, s52, {WS_HXF}", "s_lshl_b32 s48, s48, 14", f"s_add_u32 s48, s48, {WS_HALO}")
    S("v_lshrrev_b32 v28, 4, v1", "v_and_b32 v29, 15, v1", "v_lshlrev_b32 v29, 4, v29", f"v_lshl_add_u32 v{A_U}, v28, 9, v29", f"v_lshl_add_u32 v{A_U+1}, v28, 8, v29")
    S(f"s_lshl_b32 s70, s{sB}, 12", f"s_and_b32 s71, s{sW}, 1", "s_lshl_b32 s71, s71, 8", "s_add_u32 s70, s70, s71", f"s_add_u32 s90, s70, {BS2()}")
    out.append(lambda: k.e(f"s_lshl_b32 s70, s{sB}, 1", f"s_add_u32 s70, s70, s{sW}", "s_lshl_b32 s72, s70, 13", f"s_lshl_b32 s71, s{sCS}, {CSH()}", "s_add_u32 s72, s72, s71",
        f"s_add_u32 s72, s72, {WS_HALO - 16384}", f"s_cmp_ge_u32 s{sW}, 2", f"s_cselect_b32 s72, s72, {OOB>>1:#x}"))
    out.append(lambda: k.e(f"s_lshl_b32 s73, s{sB}, 10", f"s_lshr_b32 s71, s{sCS}, 1", "s_lshl_b32 s71, s71, 8", "s_add_u32 s73, s73, s71", f"s_and_b32 s71, s{sCS}, 1",
        "s_lshl_b32 s71, s71, 3", "s_add_u32 s73, s73, s71"))
    out.append(lambda: k.e(f"s_lshl_b32 s71, s{sW}, 7", "s_add_u32 s73, s73, s71", f"s_add_u32 s73, s73, {WS_HST - 256}",
        f"s_cmp_ge_u32 s{sW}, 2", f"s_cselect_b32 s73, s73, {OOB>>1:#x}"))
    out.append(lambda: k.e(f"s_lshl_b32 s70, s{sB}, 3", f"s_add_u32 s70, s70, s{sCS}", "s_lshl_b32 s70, s70, 1", f"s_add_u32 s70, s70, s{sW}", "s_lshl_b32 s70, s70, 7",
        f"s_add_u32 s70, s70, {WS_HXF - 256}", f"s_cmp_ge_u32 s{sW}, 2", f"s_cselect_b32 s91, s70, {OOB>>1:#x}"))
    return out

def a11_x(k, tile):
    fns = []
    for i in range(4):
        def f(i=i):
            k.set_m0(f"s_add_u32 m0, s49, {A11_POS[tile]*16384 + (i*1024 if P.x_out else 0)}")
            k.e(f"s_add_u32 s32, s{48 if tile == 'h' else 47}, s{92+i}")
            if tile not in (0, "h"): k.e(f"s_add_u32 s32, s32, {tile*16384}")
            k.vm(f"buffer_load_dwordx4 v{RX(False)}, {SRD_WS if tile == 'h' else XS()}, s32 offen offset:{0 if P.x_out else i*1024} sc1 lds", ("x", tile))
        fns.append(f)
    return fns

def stats_path(k, fx, S, tag, addr, tok, at=0):
    a = lambda txt, c=1: fx.add(lambda: k.e(txt), c)
    s, q = S, S + 1
    fx.add(lambda: k.wait(vm=[tag]), 1, at)
    a(f"v_add_f32 v{s}, v{s}, v{S+2}"); a(f"v_add_f32 v{q}, v{q}, v{S+3}"); fx.skip(1)
    a(f"v_permlane16_swap_b32 v{s}, v{q}", 2); a(f"v_add_f32 v{s}, v{s}, v{q}"); a(f"v_mov_b32 v{q}, v{s}"); fx.skip(1)
    a(f"v_permlane32_swap_b32 v{s}, v{q}", 2); a(f"v_add_f32 v{s}, v{s}, v{q}"); a(f"v_mov_b32 v{q}, v{s}"); fx.skip(1)
    a(f"v_permlane16_swap_b32 v{s}, v{q}", 2)
    ln_finish(a, s, q); a(f"v_rsq_f32 v{q}, v{q}", 2); fx.skip(1)
    fx.add(lambda: (k.ds(f"ds_write_b64 v{addr}, {vr(s,2)} offset:{tok*8}", ("saw", tag)), k.mark(("saw", tag))))

def a11_early(k, later=False):
    fns = a11_x(k, A11_ORDER[0]) + [lambda: k.vm(f"buffer_load_dwordx4 {vr(A_ST,4)}, v{A_U}, {SRD_WS}, s90 offen offset:2048 sc1", "st0")] + a11_x(k, A11_ORDER[1])
    if later: return fns
    for f in fns: f()

def a11_main(k):
    R = R1; order = A11_ORDER
    steps = [(t, s) for t in order for s in range(16)]
    accof = lambda t: A_ACC + 12 * (order.index(t) % 3)
    def xread(i):
        t, s = steps[i]
        off = A11_POS[t] * 16384 + (s >> 1) * 1024
        k.ds(f"ds_read_b128 {vr(A_XF+4*(i%4),4)}, v{R.XO if s&1 else R.XE} offset:{off}", ("xf", i))
    mains = []; fixed = {}; gap_of = {}
    need_sa = {order[1]: ["st0"], order[2]: ["st1"], order[3]: [], "h": []}
    for i, (t, s) in enumerate(steps):
        acc = accof(t); xf = vr(A_XF + 4*(i % 4), 4)
        c = lambda r, s=s: "0" if s == 0 else vr(r, 4)
        ms = []
        if t != "h": ms.append(f"{MF16} {vr(acc,4)}, {ar(12*s,4)}, {xf}, {c(acc)}")
        ms.append(f"{MF16} {vr(acc+4,4)}, {ar(12*s+4,4)}, {xf}, {c(acc+4)}")
        ms.append(f"{MF16} {vr(acc+8,4)}, {xf}, {ar(12*s+8,4)}, {c(acc+8)}")
        gap_of[(t, s)] = len(mains)
        for m in ms: mains.append(lambda m=m: k.e(m))
        last = len(mains) - 1
        fl_ = fixed.setdefault(last, [])
        if i + 1 < len(steps): fl_.append((0, lambda i=i: k.wait(lg=[("xf", i + 1)])))
        j = i + 4
        if j < len(steps):
            tj, sj = steps[j]
            if sj == 0:
                def bar(tj=tj):
                    k.wait(vm=[("x", tj)], lg=[("saw", n) for n in need_sa[tj]]); k.e("s_barrier"); k.mark(("bar", tj))
                fixed.setdefault(gap_of[(t, s)], []).append((1, bar))
            fixed[last].append((1, lambda j=j: xread(j)))
    fx = Flex(); fz = Flex(); fz2 = Flex(); fy = Flex(); fm = Flex()
    k.e(f"s_and_b32 s32, s{sW}, 1", "s_lshl_b32 s32, s32, 7", f"v_add_u32 v6, s32, v{R.SA}")
    o_bases(k, 1)
    stats_path(k, fy, A_ST, "st0", 6, 48)
    g1 = P.a1_late_gap
    fm.add(lambda: (k.wait(vm=[("xst", 1)]), k.flag(2)), 3, P.a1_flag_gap)
    fm.add(lambda: (k.poll_issue(A_PX, "px2"), setattr(k, "bg_held", not P.a1_bg_early)), 1, g1 - P.a1_poll_lead)
    fm.add(lambda: k.poll_check(A_PX, "px2", 2), 2, g1)
    fm.add(lambda: k.vm(f"buffer_load_dwordx4 {vr(56,4)}, v{A_U}, {SRD_WS}, s90 offen sc1", "st1"))
    for t in order[2:4]:
        for f in a11_x(k, t): fm.add(f, 2); fm.skip(P.a1_xgap)
    for f in wo_lanes(k): fy.add(f)
    fy.add(lambda: k.mark("wolanes"), 0)
    fm.dep("wolanes")
    for p in range(2):
        fm.add(lambda p=p: (k.e(f"s_add_u32 s58, s64, {BX2() + (p << (2 + LSH()))}"), k.vm(f"buffer_load_dwordx4 {vr(RES+4*p,4)}, v{W_UA}, {XS()}, s58 offen sc1", "res")), 2); fm.skip(P.a1_xgap)
    def halo_poll():
        k.poll_addr(A_PX, 16, 7)
        k.e(f"s_mov_b32 s{sPO}, s52", f"s_min_u32 s50, s{sB}, 1")
        k.poll_issue(A_PX, "phx"); k.bg_held = False
    fm.add(halo_poll, 3)
    for c in P.t1_a1:
        if c == "o": fm.add(lambda: k.touch(60, "p", ["s_mov_b32 s32, s53"]), 6)
        if c == "x": fm.add(lambda: k.touch(62, "q", [f"s_add_u32 s32, s64, {BX2()}"]), 6)
        if c == "s": fm.add(lambda: k.touch(64, "t", [f"s_add_u32 s32, s65, {BS1[1]}"]), 4)
    for f in blanks(k, 1): fm.skip(P.a1_xgap); fm.add(f, 3)
    stats_path(k, fy, 56, "st1", 6, 16, g1 + 26)
    fm.dep(("bar", order[2]))
    fm.add(lambda: k.poll_check(A_PX, "phx", "s50"), 2)
    fm.add(lambda: k.vm(f"buffer_load_dwordx4 {vr(A_ST,4)}, v{A_U+1}, {SRD_WS}, s51 offen sc1", "sth"))
    for f in a11_x(k, "h"): fm.add(f, 2); fm.skip(P.a1_xgap)
    stats_path(k, fy, A_ST, "sth", R.SA, 0, gap_of[(order[3], P.a1_sth)])
    k.per = dict(P.per_a1); k.bg_held = True
    b5 = batch(k, 5)
    mix = [(f, "s2", ("gw", 4), None) for f in batch(k, 4)] + [(f, "s2", ("gw", 5), None) for f in b5[:3]]
    ww = [(f, "s4", "wow", None) for f in wow(k)]
    while mix or ww:
        k.bg += ww[:2]; ww = ww[2:]
        if mix: k.bg.append(mix.pop(0))
    bg_batches(k, [0], "s2", lambda b: ("bar", order[3]))
    bg_batches(k, [1], "s2", lambda b: ("bar", "h"))
    bg_batches(k, [2, 3], "s2", lambda b: "wobar")
    bg_list(k, b5[3:], "s2", ("gw", 5), "wobar")
    if P.dn1_agpr:
        for j, f in enumerate(regloads(k, sDS, 16*1024, lambda j: ar(4*j, 4), 40, "dnr", tagf=lambda j: ("dnr", 8 + j // 2))): k.bg_add(f, "s4", ("dnr", 8 + j // 2), "gemm_done")
    bg_batches(k, [6, 7, 8, 9], "s2", lambda b: "gubar")
    A = lambda t: (accof(t) if t != "h" else None, accof(t) + 4, accof(t) + 8)
    for n in range(4): fix(k, R, fx, order[n], A(order[n]), gap_of[(order[n + 1], 1 if n < 3 else 2)], False)
    attn(k, R, fz, 3, R.ATT[0]); attn(k, R, fz2, 2, R.ATT[1]); ostore(k, fz2, 1)
    attn(k, R, fz, 1, R.ATT[0])
    fx.dep(("saw", "sth"))
    for f in fix_reads(k, R, "h", A_STA): fx.add(f)
    fx.dep("gemm_done")
    fix(k, R, fx, "h", A("h"), 0, False, pre=True); attn(k, R, fz2, 0, R.ATT[1]); ostore(k, fz2, 0)
    f3 = Flex(); f3.dep(("ost", 1)); f3.skip(P.l1_flag_delay)
    f3.add(lambda: (k.wait(vm=[("ost", 1)]), k.flag(1, 89), k.mark("oflag1")), 3)
    f3.dep(("attn", 0)); f3.add(lambda: wo_prepoll(k, 1))
    k.wait(vm=[("x", order[0])]); k.e("s_barrier")
    for i in range(4): xread(i)
    k.wait(lg=[("xf", 0)])
    k.stamp("a1 first")
    if k.stamping or P.jitter:
        for t in order[1:]: fixed.setdefault(gap_of[(t, 0)], []).append((0, lambda t=t: k.stamp(f"a1 t{t}")))
        for g in range(6, 224, 12): fixed.setdefault(g, []).append((0, lambda g=g: k.stamp(f"fina {g}")))
    run_gaps(k, mains, fixed, [fm, f3, fy, fx, fz2, fz], 2, over=lambda i: i >= P.a1_over)
    print("a11 left:", len(fm), len(fy), len(fx), len(fz), len(fz2), len(k.bg), {n: g for n, g in k.marks.items() if isinstance(n, tuple) and n[0] in ("fix", "attn", "saw", "ost")})
    k.mark("gemm_done"); k.bg_held = P.a1_tailhold
    k.stamp("a1 gemm")
    drain([fm, fy, fx, fz, fz2, f3], k)
    for n in range(2): assert k.marks[("fix", order[n])] < gap_of[(order[n + 3], 0)], "accumulator reused too early"
    k.stamp("a1 end")
P.a1_flag_gap, P.a1_late_gap, P.a1_poll_lead, P.l1_flag_delay, P.a1_over = 8, 36, 18, 14, 24
P.a1_bg_early = False; P.a1_salead = 12; P.a1_tailhold = True; P.touch1 = 1; P.t1_a1 = ''; P.t1_dn = ''; P.a1_xgap = 3; P.a1_sth = 0
P.per_a1 = {"s2": 80, "s4": 50}

R_W0, R_W1, R_RD, R_ST, R_OUT = 3, 4, 5, 6, 7
def RX(final): return vL16 if not P.x_out else (29 if final else R_OUT)
def red_setup(k, posA, dAB, final):
    x, y, z, u = 28, 29, 30, 31
    k.e(f"s_add_u32 s32, s{sGL}, {posA*16384}", f"v_add_u32 v{R_W0}, s32, v{vL16}", f"v_xor_b32 v{R_W1}, 128, v{R_W0}")
    k.e(f"v_and_b32 v{x}, 7, v1", f"v_lshrrev_b32 v{y}, 3, v1", f"s_lshl_b32 s32, s{sW}, 7", f"v_lshl_add_u32 v{z}, v{x}, 4, s32",
        f"v_bfe_u32 v{u}, v1, 4, 1", f"v_lshlrev_b32 v{R_RD}, 7, v{u}", f"v_xor_b32 v{z}, v{z}, v{R_RD}",
        f"v_bfe_u32 v{R_RD}, v1, 3, 2", f"v_lshl_add_u32 v{z}, v{R_RD}, 10, v{z}", f"v_lshrrev_b32 v{R_RD}, 5, v1",
        f"v_mul_u32_u24 v{R_RD}, {dAB*16384}, v{R_RD}", f"v_add_u32 v{z}, v{z}, v{R_RD}", f"v_add_u32 v{R_RD}, {posA*16384}, v{z}")
    k.e(f"v_lshlrev_b32 v{z}, 4, v{x}", f"v_lshl_add_u32 v{z}, v{u}, 2, v{z}", f"v_and_b32 v{u}, 0x28, v1",
        f"v_cmp_eq_u32 vcc, 0, v{u}", f"v_mov_b32 v{u}, {OOB:#x}", f"v_cndmask_b32 v{R_ST}, v{u}, v{z}, vcc")
    if final: k.e(f"v_lshlrev_b32 v{z}, 10, v{x}", f"v_lshl_add_u32 v{R_OUT}, v{y}, 4, v{z}")
    if P.x_out: k.e(f"v_lshlrev_b32 v{z}, 10, v{y}", f"v_lshl_add_u32 v{RX(final)}, v{x}, 4, v{z}")

def red_bases(k):
    k.e(f"s_lshl_b32 s32, s{sB}, 3", f"s_add_u32 s32, s32, s{sW}", "s_lshl_b32 s55, s32, 13", f"s_lshl_b32 s33, s{sCS}, {CSH()}", "s_add_u32 s55, s55, s33")
    k.e("s_lshl_b32 s57, s32, 13", f"s_lshl_b32 s33, s{sCS}, 7", "s_add_u32 s57, s57, s33")
    k.e(f"s_lshl_b32 s56, s{sB}, 12", f"s_lshr_b32 s33, s{sCS}, 1", "s_lshl_b32 s33, s33, 9", "s_add_u32 s56, s56, s33",
        f"s_and_b32 s33, s{sCS}, 1", "s_lshl_b32 s33, s33, 3", "s_add_u32 s56, s56, s33", f"s_lshl_b32 s33, s{sW}, 7", "s_add_u32 s56, s56, s33")

def red_writes(k, acc, g, off, dAB):
    return [lambda q=q: k.ds(f"ds_write_b128 v{R_W1 if (q>>1)&1 else R_W0}, {vr(acc+4*q,4)} offset:{off + (q>>2)*dAB*16384 + (q&3)*1024}", ("rw", g)) for q in range(8)]
def red_reads(k, g, T, off):
    return [lambda w=w, hf=hf: k.ds(f"ds_read_b128 {vr(T+8*w+4*hf,4)}, v{R_RD} offset:{off + w*4096 + hf*512}", ("rr", g, w)) for w in range(4) for hf in range(2)]

def red_finish(k, fx, g, mm, T, xdst, stdst, final, pk):
    a = lambda txt, c=1: fx.add(lambda: k.e(txt), c)
    R = RES + 4 * mm
    def add8(d, s):
        if pk:
            for i in range(0, 8, 2): a(f"v_pk_add_f32 {vr(d+i,2)}, {vr(d+i,2)}, {vr(s+i,2)}")
        else:
            for i in range(8): a(f"v_add_f32 v{d+i}, v{d+i}, v{s+i}")
    fx.add(lambda: k.wait(lg=[("rr", g, 1)]))
    add8(T, T + 8)
    for i in range(4): a(f"v_lshlrev_b32 v{T+8+2*i}, 16, v{R+i}"); a(f"v_and_b32 v{T+9+2*i}, 0xffff0000, v{R+i}")
    add8(T, T + 8)
    fx.add(lambda: k.wait(lg=[("rr", g, 3)]))
    add8(T + 16, T + 24); add8(T, T + 16)
    for i in range(4): a(f"v_cvt_pk_bf16_f32 v{R+i}, v{T+2*i}, v{T+2*i+1}")
    if final:
        fx.add(lambda: (k.e(f"s_add_u32 s32, s57, {mm*32768}"), k.vm(f"buffer_store_dwordx4 {vr(R,4)}, v{R_OUT}, {SRD_OUT}, s32 offen {P.outm[g]}", ("xst", g))))
        return
    fx.add(lambda: (k.e(f"s_add_u32 s32, s55, {xdst + mm*32768}"), k.dstore(f"buffer_store_dwordx4 {vr(R,4)}, v{RX(final)}, {XS()}, s32 offen", ("xst", g))), 2)
    s, q = T + 32, T + 33
    a(f"v_add_f32 v{s}, v{T}, v{T+1}"); a(f"v_mul_f32 v{q}, v{T}, v{T}"); a(f"v_fmac_f32 v{q}, v{T+1}, v{T+1}")
    for i in range(2, 8): a(f"v_add_f32 v{s}, v{s}, v{T+i}"); a(f"v_fmac_f32 v{q}, v{T+i}, v{T+i}")
    fx.skip(1)
    a(f"v_add_f32_dpp v{s}, v{s}, v{s} row_ror:8 row_mask:0xf bank_mask:0xf"); a(f"v_add_f32_dpp v{q}, v{q}, v{q} row_ror:8 row_mask:0xf bank_mask:0xf")
    fx.skip(1)
    a(f"v_permlane16_swap_b32 v{s}, v{q}", 2); a(f"v_add_f32 v{s}, v{s}, v{q}"); a(f"v_mov_b32 v{q}, v{s}"); fx.skip(1)
    a(f"v_permlane32_swap_b32 v{s}, v{q}", 2); a(f"v_add_f32 v{s}, v{s}, v{q}")
    fx.add(lambda: (k.e(f"s_add_u32 s32, s56, {stdst + mm*2048}"), k.dstore(f"buffer_store_dword v{s}, v{R_ST}, {SRD_WS}, s32 offen", ("xst", g)), k.mark(("xst", g))), 2)

def merge(k, fx, extra, first=0):
    extra = list(extra)
    items = [it for it in fx.items if it[0] != "skip"]; fx.items = []
    per = max(1, (len(items) - first) // max(1, len(extra)))
    for n, it in enumerate(items):
        if n >= first and (n - first) % per == 0 and extra: extra.pop(0)()
        it[1](); k.bg_step()
    for f in extra: f(); k.bg_step()

def wo(k, layer):
    BF, WQ, ACC, T, PA, NQ = 32, 160, 192, 208, A_PA, 8
    state = {}
    def bload(sx):
        k.set_s(f"s_add_u32 s58, s59, {(sx & ~1)*2048}")
        k.vm(f"buffer_load_dwordx4 {vr(BF+4*sx,4)}, v{W_OA}, {SRD_WS}, s58 offen offset:{(sx%2)*2048} sc1", ("b", sx))
    def wread(n): k.ds(f"ds_read_b128 {vr(WQ+4*(n%NQ),4)}, v{W_RB} offset:{n*1024}", ("wq", n))
    k.wait(vm=["wow"]); k.e("s_barrier"); k.mark("wobar")
    k.stamp("wl bar")
    for n in range(NQ): wread(n)
    btxt = lambda sx: [f"s_add_u32 s99, s59, {sx*2048}", f"buffer_load_dwordx4 {vr(BF+4*sx,4)}, v{W_OA}, {SRD_WS}, s99 offen sc1"]
    bchk = lambda sx: k.valid([f"v_cmp_eq_u32 vcc, -1, v{BF+4*sx}"], btxt(sx))
    ptxt = f"buffer_load_dword v{T+20}, v{T+21}, {SRD_WS}, s59 offen sc1"
    if P.tags:
        k.e(f"v_lshlrev_b32 v{T+21}, 8, v{PA}")
        k.e(f"v_or_b32 v{T+21}, v{T+21}, v{PA}", f"v_and_b32 v{T+21}, 0x80007c00, v{T+21}")
        k.poll_check(PA, "po1", 1)
        k.vm(ptxt, "probe")
        for sx in range(P.wo_spec): bload(sx)
        k.e(f"s_lshl_b32 s32, s{sC}, 1", f"s_and_b32 s33, s{sW}, 1", "s_add_u32 s32, s32, s33", "s_lshl_b32 s32, s32, 7", f"s_add_u32 s{sPO}, s32, {fl(layer, FL_O)}")
    else:
        k.e(f"s_add_u32 s{sFO}, s66, {fl(layer, FL_X1)}")
        k.codepf(96)
        if P.wo_setup_first == 2: gu_setup(k, layer)
        k.wait(vm=[("ost", 0)]); k.stamp("wl ack"); k.flag(2, 89)
        k.e(f"s_cmp_lt_u32 s{sW}, 2", f"s_cbranch_scc1 L_wo_late{layer}")
        q0 = list(k.vmq)
        k.poll_check(PA, "po1", 1)
        for sx in range(P.wo_lead): bload(sx)
        if P.wo_setup_first == 1: gu_setup(k, layer)
        k.e(f"s_branch L_wo_join{layer}")
        k.label(f"L_wo_late{layer}")
        k.vmq = list(q0)
        if P.wo_setup_first == 1: gu_setup(k, layer)
        k.poll_issue(PA, "po2"); k.poll_wait(PA, "po2", 2, 157); k.stamp("wl go")
        for sx in range(P.wo_lead): bload(sx)
        k.label(f"L_wo_join{layer}")
    if P.tags or not P.wo_setup_first: gu_setup(k, layer)
    k.stamp("wo issued")
    mains = []; fixed = {}
    for n in range(64):
        sx, j = divmod(n, 4)
        mains.append(lambda n=n, sx=sx, j=j: k.e(f"{MF16} {vr(ACC+4*j,4)}, {vr(WQ+4*(n%NQ),4)}, {vr(BF+4*sx,4)}, {'0' if sx == 0 else vr(ACC+4*j,4)}"))
        fl_ = fixed.setdefault(n, [])
        if n < 63: fl_.append((0, lambda n=n: k.wait(vm=[("b", (n + 1) // 4)] if (n + 1) % 4 == 0 else None, lg=[("wq", n + 1)])))
        if P.tags and n < 63 and (n + 1) % 4 == 0: fl_.append((1, lambda n=n: bchk((n + 1) // 4)))
        if P.tags and n == 42: fl_.append((1, lambda: k.poll_issue(PA, "px1")))
        if n + NQ < 64: fl_.append((1, lambda n=n: wread(n + NQ)))
        if n % P.wo_bstep == 0 and P.wo_lead + n // P.wo_bstep < 16: fl_.append((1, lambda n=n: bload(P.wo_lead + n // P.wo_bstep)))
    fx = Flex()
    a = lambda txt, c=1, at=0: fx.add(lambda: k.e(txt), c, at)
    fx.add(lambda: k.wait(vm=["res"]), 1, 8)
    for i in range(8): a(f"v_lshlrev_b32 v{T+2*i}, 16, v{RES+i}"); a(f"v_and_b32 v{T+2*i+1}, 0xffff0000, v{RES+i}")
    k.per = dict(P.per_wo[layer]); k.bg_held = False; k.bg_next = k.t + P.wo_bg_delay
    if P.tags:
        k.wait(vm=["probe"])
        k.valid([f"v_cmp_eq_u32 vcc, -1, v{T+20}"], [ptxt] + sum([btxt(x) for x in range(P.wo_spec)], []))
        state["fresh"] = True
        for sx in range(P.wo_spec, P.wo_lead): bload(sx)
    k.wait(vm=[("b", 0)], lg=[("wq", 0)])
    if P.tags: bchk(0)
    k.stamp("wo first")
    fixed[P.wo_bg_stop].append((0, lambda: setattr(k, "bg_held", True)))
    run_gaps(k, mains, fixed, [fx], 2)
    drain([fx], k)
    k.stamp("wo gemm")
    for i in range(0, 16, 2): k.e(f"v_pk_add_f32 {vr(T+i,2)}, {vr(T+i,2)}, {vr(ACC+i,2)}")
    for p in range(2):
        k.e(f"s_add_u32 s58, s64, {BX2() + (p << (2 + LSH()))}")
        for i in range(4): k.e(f"v_cvt_pk_bf16_f32 v{RES+4*p+i}, v{T+8*p+2*i}, v{T+8*p+2*i+1}")
        k.dstore(f"buffer_store_dwordx4 {vr(RES+4*p,4)}, v{W_UA}, {XS()}, s58 offen", "xst")
    S, Q = T + 16, T + 18
    k.e(f"v_pk_add_f32 {vr(S,2)}, {vr(T,2)}, {vr(T+2,2)}", f"v_pk_mul_f32 {vr(Q,2)}, {vr(T,2)}, {vr(T,2)}", f"v_pk_fma_f32 {vr(Q,2)}, {vr(T+2,2)}, {vr(T+2,2)}, {vr(Q,2)}")
    for i in range(4, 16, 2): k.e(f"v_pk_add_f32 {vr(S,2)}, {vr(S,2)}, {vr(T+i,2)}", f"v_pk_fma_f32 {vr(Q,2)}, {vr(T+i,2)}, {vr(T+i,2)}, {vr(Q,2)}")
    k.e(f"v_add_f32 v{S}, v{S}, v{S+1}", f"v_add_f32 v{Q}, v{Q}, v{Q+1}", f"s_add_u32 s58, s65, {BS1[layer]}",
        f"v_permlane16_swap_b32 v{S}, v{Q}", f"v_add_f32 v{S}, v{S}, v{Q}", f"v_mov_b32 v{Q}, v{S}", f"v_permlane32_swap_b32 v{S}, v{Q}", f"v_add_f32 v{S}, v{S}, v{Q}")
    k.dstore(f"buffer_store_dword v{S}, v{W_SA}, {SRD_WS}, s58 offen", "xst")
    key = lambda it: it[2][1] if (isinstance(it[2], tuple) and it[2][0] == "gw") else 11.5
    k.bg.sort(key=key)
    print(f"wo{layer} done, background left:", [it[2] for it in k.bg][::4])
    k.bg_burst(P.wo_win[layer])
    k.stamp("wo end")
P.wo_bg_delay = 750; P.wo_bg_stop = 63; P.wo_lead = 6; P.wo_spec = 3; P.gu_spec = 3; P.wo_bstep = 2
P.wo_poll_gap = 1; P.wo_late_gap = 7; P.wo_hold = True; P.wo_win = [4, 4]; P.wo_var = 'B'; P.wo_prew = 2
P.per_wo = [{"s2": 20, "s4": 20}] * 2

G_RB, G_C1, G_VV, G_AUG, G_X, G_ACC, G_WF, G_T = 3, 6, 7, 28, 32, 160, 224, 240
D_WV, D_BF, D_ACC, D_T, D_WF, D_RB, D_PA = 32, 64, 128, 192, 228, 112, 115
DN_SEQ = [(g, e) for g in range(2) for e in range(28)]
DN_GROUPS = [1, 0]
def h_loader(k, layer):
    def bload(i):
        if i == 0:
            k.e(f"s_mul_i32 s32, s{sB}, {224*KB}", f"s_mul_i32 s33, s{sW}, {28*KB}", "s_add_u32 s32, s32, s33", f"s_add_u32 s59, s32, {BH[layer]}")
            for p in range(4):
                k.e(f"s_add_u32 s32, s{sCS}, {p}", f"s_and_b32 s32, s32, {3 if P.hrot else 0}", f"s_mul_i32 s32, s32, {7*KB}", f"s_add_u32 s{34+p}, s59, s32")
                if not P.hrot: k.e(f"s_add_u32 s{34+p}, s{34+p}, {7*KB*p}")
        g, e = DN_SEQ[i]; p, tl = divmod(KK_OF[e], 7)
        k.set_s(f"s_add_u32 s58, s{34+p}, {DN_GROUPS[g] * 112 * KB + (tl & 4) * 1024}")
        k.vm(f"buffer_load_dwordx4 {vr(D_BF+4*(i%P.dn_lead),4)}, v{vL16}, {SRD_WS}, s58 offen offset:{(tl & 3)*1024} sc1", ("b", i))
    return bload

def gu_setup(k, layer):
    T = G_T; XA = T + 3
    k.e(*gu_tile("s50"))
    k.e(f"v_and_b32 v{T}, 31, v1")
    k.e(f"v_mov_b32 v{G_RB}, v{vL16}", f"v_add_u32 v{G_RB+1}, 0x10000, v{vL16}", f"v_add_u32 v{G_RB+2}, 0x20000, v{vL16}")
    k.e(f"v_lshrrev_b32 v{T+1}, 5, v1", f"v_lshlrev_b32 v{G_AUG+3}, 4, v{T}", f"v_lshl_add_u32 v{G_AUG+3}, v{T+1}, 10, v{G_AUG+3}")
    k.e(f"v_lshrrev_b32 v{XA}, 3, v{T}", f"v_lshlrev_b32 v{XA}, 13, v{XA}", f"v_lshl_add_u32 v{XA}, v{T+1}, {LSH()}, v{XA}",
        f"v_and_b32 v{T}, 7, v1", f"v_lshl_add_u32 v{XA}, v{T}, 4, v{XA}")
    k.e("s_lshl_b32 s32, s50, 11", f"s_add_u32 s51, s32, {BS1[layer]}")
    k.e("s_lshl_b32 s32, s50, 15", f"s_add_u32 s52, s32, {BX2()}", "s_add_u32 s53, s52, 4096")
    k.e(*h_base("s54", layer))
    k.e("s_lshr_b32 s32, s50, 1", "s_lshl_b32 s32, s32, 4", f"s_add_u32 s32, s32, s{sM}",
        "s_lshl_b32 s32, s32, 1", "s_and_b32 s33, s50, 1", "s_add_u32 s32, s32, s33", "s_lshl_b32 s32, s32, 2", f"s_add_u32 s81, s32, {fl(layer, FL_H)}")

def gu(k, layer):
    T = G_T; XA = T + 3; PA = T + 2
    if P.tags: k.poll_check(A_PA, "px1", 1)
    else:
        def pa():
            k.poll_addr(PA, 16)
            k.e("s_lshl_b32 s32, s50, 6", f"s_add_u32 s{sPO}, s32, {fl(layer, FL_X1)}")
        if not P.gu_pa_late: pa()
        k.wait(vm=["xst"]); k.flag(1)
        if P.gu_pa_late: pa()
        k.stamp("x1 flag")
        if not P.gu_bar_first: k.poll_issue(PA, "px1")
    k.e(f"s_mov_b32 s{sFO}, s81")
    seq = [(t, ks) for ks in range(33) for t in range(3)] + [(t, ks) for t in range(3, 7) for ks in range(33)]
    accof = {0: 0, 1: 1, 2: 2, 3: 3, 4: 0, 5: 1, 6: 2}
    NW = P.gu_nw
    WQ = [G_WF, G_WF + 4, G_WF + 8, G_WF + 12, T + 12]
    def wread(n):
        slot = (n % 160) * 1024
        k.ds(f"ds_read_b128 {vr(WQ[n%NW],4)}, v{G_RB + (slot>>16)} offset:{slot & 0xffff}", ("wf", n))
    BARS = P.gu_bars[layer]
    cover = lambda bi: [("gw", b) for b in range(bi, min([x for x in BARS if x > bi] + [15]))]
    def ringbar():
        k.wait(vm=cover(0)); k.e("s_barrier"); k.mark("gubar")
        for n in range(NW): wread(n)
    if P.gu_bar_first: ringbar(); k.poll_issue(PA, "px1")
    if not P.tags: k.poll_wait(PA, "px1", 1, 20)
    k.stamp("gu go")
    xoff = lambda kg: ((kg >> 2) << CSH()) + ((kg & 3) << (1 + LSH()))
    xtxt = lambda kg: f"buffer_load_dwordx4 {vr(G_X+4*kg,4)}, v{XA}, {XS()}, s{52 + (xoff(kg) >> 12)} offen offset:{xoff(kg) & 4095} sc1"
    def xload(kg): k.vm(xtxt(kg), ("gx", kg))
    xchk = lambda kg: k.valid([f"v_cmp_eq_u32 vcc, -1, v{G_X+4*kg}"], [xtxt(kg)])
    stxt = [f"buffer_load_dwordx4 {vr(T+4+4*h,4)}, v{G_AUG+3}, {SRD_WS}, s51 offen offset:{512*h} sc1" for h in range(2)]
    if P.tags:
        for t_ in stxt: k.vm(t_, "gst")
        for kg in range(P.gu_spec): xload(kg)
        k.wait(vm=["gst"])
        k.valid([f"v_max3_u32 v{T}, v{T+4}, v{T+6}, v{T+8}", f"v_max_u32 v{T}, v{T}, v{T+10}", f"v_cmp_eq_u32 vcc, -1, v{T}"],
                stxt + [xtxt(x) for x in range(P.gu_spec)])
        k.stamp("gu probe")
        for kg in range(P.gu_spec, P.gu_lead): xload(kg)
    else:
        for kg in range(P.gu_lead): xload(kg)
        for t_ in stxt: k.vm(t_, "gst")
    if not P.gu_bar_first: ringbar()
    mains = []; fixed = {}
    xpos = {}
    for kg in range(P.gu_lead, 32): xpos.setdefault(int((kg - P.gu_lead) * P.gu_xstep), []).append(kg)
    for n, (t, ks) in enumerate(seq):
        acc = G_ACC + 16 * accof[t]
        b = vr(G_AUG, 4) if ks == 32 else vr(G_X + 4*ks, 4)
        c = "0" if ks == 0 else vr(acc, 16)
        mains.append(lambda n=n, acc=acc, b=b, c=c: k.e(f"{MF32} {vr(acc,16)}, {vr(WQ[n%NW],4)}, {b}, {c}"))
        fl_ = fixed.setdefault(n, [])
        if n + 1 < len(seq):
            t2, ks2 = seq[n + 1]
            need = [("gx", ks2)] if (t2 == 0 and ks2 < 32) else None
            fl_.append((0, lambda n=n, need=need: k.wait(vm=need, lg=[("wf", n + 1)])))
            if need and P.tags: fl_.append((2, lambda ks2=ks2: xchk(ks2)))
        j = n + NW
        if j < len(seq):
            if j % 16 == 0 and j // 16 in BARS:
                fl_.append((2, lambda bi=j//16: (k.wait(vm=cover(bi)), k.e("s_barrier"), [k.mark(("gbar", b)) for b in range(bi + 1)])))
            fl_.append((1, lambda j=j: wread(j)))
        for kg in xpos.get(n, []): fl_.append((1, lambda kg=kg: xload(kg)))
    xend = max(xpos)
    tail = [it for it in k.bg if it[2] == "dna" or it[2][0] == "dnr"]; k.bg = [it for it in k.bg if not (it[2] == "dna" or it[2][0] == "dnr")]
    bg_batches(k, range(10, 15), "s2", lambda b: ("gbar", b - 8))
    first, ratio = P.gu_mix[layer]
    mid = k.bg[first:]; k.bg = k.bg[:first]; acc_ = 0.0
    while mid or tail:
        if mid: k.bg.append(mid.pop(0))
        acc_ += ratio
        while tail and (acc_ >= 1 or not mid): k.bg.append(tail.pop(0)); acc_ -= 1
    direct = layer == 1 and P.dn1_agpr
    if not direct: bg_batches(k, range(15, 23), "s4", lambda b: ("gbar", b - 8))
    k.per = dict(P.per_guA[layer]); k.bg_held = False; k.bg_next = k.t + P.gu_bg_delay
    fixed[xend].append((0, lambda: setattr(k, "per", dict(P.per_guB[layer]))))
    fv = Flex()
    dv = regloads(k, sDS, 48*1024, lambda j: vr(D_WV + 4*j, 4), 8, "dnv")
    k.hload = h_loader(k, layer)
    if direct: pass
    elif P.HPRE[layer]:
        bg_list(k, dv, "s4", "dnv", "xdead")
        fixed[207].append((0, lambda: k.mark("xdead")))
    else:
        for j, f in enumerate(dv): fv.add(f, 1, 198 + 2 + 3*j)
    fx = Flex()
    a = lambda txt, c=1, at=0: fx.add(lambda: k.e(txt), c, at)
    fx.add(lambda: k.wait(vm=["gst"]), 1, 3 * P.gu_lead)
    a(f"v_add_f32 v{T+4}, v{T+4}, v{T+6}"); a(f"v_add_f32 v{T+5}, v{T+5}, v{T+7}"); a(f"v_add_f32 v{T+8}, v{T+8}, v{T+10}"); a(f"v_add_f32 v{T+9}, v{T+9}, v{T+11}")
    a(f"v_add_f32 v{T+4}, v{T+4}, v{T+8}"); a(f"v_add_f32 v{T+5}, v{T+5}, v{T+9}"); fx.skip(1)
    a(f"v_permlane32_swap_b32 v{T+4}, v{T+5}", 2); a(f"v_add_f32 v{T+4}, v{T+4}, v{T+5}"); a(f"v_mov_b32 v{T+5}, v{T+4}"); fx.skip(1)
    a(f"v_permlane32_swap_b32 v{T+4}, v{T+5}", 2)
    ln_finish(a, T + 4, T + 5)
    a(f"v_mov_b32 v{G_VV}, v{T+5}")
    a(f"v_rsq_f32 v{G_C1}, v{T+5}", 2); a(f"v_cvt_pk_bf16_f32 v{G_AUG}, v{T+4}, v{T+4}"); a(f"v_mul_f32 v{G_C1}, {f2u(-LOG2E):#x}, v{G_C1}")
    a(f"v_and_b32 v{T+5}, 0xffff0000, v{G_AUG}"); a(f"v_sub_f32 v{T+5}, v{T+4}, v{T+5}"); a(f"v_mov_b32 v{G_AUG+2}, 0")
    a(f"v_cvt_pk_bf16_f32 v{G_AUG+1}, v{T+5}, v{G_AUG+2}"); a(f"v_mov_b32 v{G_AUG+3}, 0")
    fx.add(lambda: k.mark("aug"), 0)
    def epi(t, at):
        acc = G_ACC + 16 * accof[t]; hp = (T + 8, RES + 4)[t & 1]; E = T + 4
        if t >= 2: fx.dep(("hst", t - 2))
        if P.x_noepi: a("s_nop 0", 1, at)
        for i0 in range(0, 8 if not P.x_noepi else 0, 2):
            for i in (i0, i0 + 1): a(f"v_mul_f32 v{E+(i&1)}, v{G_C1}, v{acc+i}", 1, at)
            for i in (i0, i0 + 1): a(f"v_exp_f32 v{E+(i&1)}, v{E+(i&1)}", 2)
            for i in (i0, i0 + 1): a(f"v_mul_f32 v{E+2+(i&1)}, v{acc+i}, v{acc+8+i}")
            for i in (i0, i0 + 1): a(f"v_fma_f32 v{E+(i&1)}, v{E+(i&1)}, v{G_VV}, v{G_VV}")
            for i in (i0, i0 + 1): a(f"v_rcp_f32 v{E+(i&1)}, v{E+(i&1)}", 2)
            fx.skip(1)
            for i in (i0, i0 + 1): a(f"v_mul_f32 v{E+2+(i&1)}, v{E+2+(i&1)}, v{E+(i&1)}")
            a(f"v_cvt_pk_bf16_f32 v{hp+i0//2}, v{E+2}, v{E+3}")
        fx.add(lambda: k.mark(("epi", t)), 0)
        txt = f"buffer_store_dwordx4 {vr(hp,4)}, v{vL16}, {SRD_WS}, s{54 if t < 4 else 82} offen offset:{(t%4)*1024}"
        plain = (layer and P.h1_plain) or (not layer and P.h_touch0)
        if P.h_np > 1 and t < P.h_stag and not plain:
            fx.add(lambda: k.mark(("hrdy", t)), 0)
            fh.dep(("hrdy", t))
            for j in range(P.h_np):
                def pos(j=j):
                    n = k.nspin; k.nspin += 1
                    k.e(f"s_cmp_lg_u32 s83, {j}", f"s_cbranch_scc1 L_sk{n} ;np", txt + " sc1 ;opt", f"L_sk{n}: ;np")
                    if j == P.h_np - 1:
                        k.vmq.append(("hst", t)); k.seen.add(("hst", t)); k.phantom.add(("hst", t)); k.mark(("hst", t))
                fh.add(pos, P.h_cost)
                if j < P.h_np - 1: fh.skip(P.h_d)
            if t >= 2: pass
        else:
            k.phantom.discard(("hst", t))
            fx.add(lambda: ((k.dstore if plain else lambda x, tg: k.vm(x + " sc1", tg))(txt, ("hst", t)), k.mark(("hst", t))), 2)
    fh = Flex()
    k.e("s_add_u32 s82, s54, 4096", f"s_lshl_b32 s32, s{sW}, {max(P.h_np.bit_length() - 3, 0)}", f"s_add_u32 s32, s32, s{sM}", f"s_add_u32 s32, s32, s{sC}", f"s_and_b32 s83, s32, {P.h_np - 1}")
    end = {t: max(n for n, x in enumerate(seq) if x[0] == t) for t in range(7)}
    for t in range(6): epi(t, end[t] + 3)
    if layer == 0 and P.h_touch0 == "g": fixed[xend + 1].append((5, lambda: k.touch(T, "h", ["s_mov_b32 s32, s54"])))
    if layer == 1 and P.x1_clean:
        for p in range(2):
            fixed[P.x1_clean + 8*p].append((3, lambda p=p: (k.e(f"s_add_u32 s58, s64, {BX2()}"),
                k.vm(f"buffer_store_dwordx4 {vr(RES+4*p,4)}, v9999, {SRD_WS}, s58 offen offset:{p*512} sc1", "clean"))))
    ff = Flex(); ff.dep(("hst", 3))
    if layer == 0:
        tx = [lambda: k.touch(T, "p", [f"s_add_u32 s32, s55, {BX2()}"]), lambda: k.touch(T + 1, "s", [f"s_add_u32 s32, s56, {BS2()}"])]
        if P.x2_touch == "h3": ff.add(tx[0], 6); ff.add(tx[1], 4)
        elif isinstance(P.x2_touch, int): fixed[P.x2_touch].append((5, tx[0])); fixed[P.x2_touch + 1].append((4, tx[1]))
        if "g" in str(P.touch1):
            for f in touch_next(k, T + 2)[:2]: ff.skip(1); ff.add(f, 6)
    ff.skip(P.gu_flag_delay)
    ff.add(lambda: (k.wait(vm=[("hst", 3)]), k.flag(1)), 3)
    def hpoll():
        k.wait(vm=["touch"] if "touch" in k.seen else None)
        k.poll_addr(T, 8)
        k.e(f"s_lshl_b32 s32, s{sB}, 7", f"s_lshl_b32 s33, s{sW}, 5", "s_add_u32 s32, s32, s33", f"s_add_u32 s{sPO}, s32, {fl(layer, FL_H)}")
        k.poll_issue(T, "ph1")
    if P.HPRE[layer]:
        ff.add(hpoll, 4, P.hp_chk - 12)
        ff.add(lambda: (k.poll_check(T, "ph1", 1), setattr(k, "bg_held", True)), 3, P.hp_chk)
        for j in range(P.HPRE[layer]): ff.add(lambda j=j: k.hload(j), 2, max(208 + j, int(P.hp_chk + 1 + j * P.hp_step)))
    else: ff.add(hpoll, 4, 228)
    k.wait(vm=[("gx", 0)], lg=[("wf", 0)])
    if P.tags: xchk(0)
    k.stamp("gu first")
    if k.stamping or P.jitter:
        for g in (48, 98, 131, 164, 197): fixed[g].append((0, lambda g=g: k.stamp(f"gu m{g}")))
    fixed[93].append((0, lambda: k.marks["aug"]))
    run_gaps(k, mains, fixed, [fv, fh, ff, fx], P.gu_cap)
    print("gu left:", len(k.bg), len(fv), len(ff), len(fx), {n: g for n, g in k.marks.items() if isinstance(n, tuple) and n[0] == "hst"})
    k.stamp("gu gemm")
    for g, t in {132: 0, 165: 1, 198: 2}.items(): assert k.marks[("epi", t)] < g, "accumulator reused too early"
    epi(6, 0); drain([fh, ff, fv, fx], k)
    k.e(f"v_mov_b32 v{D_PA}, v{T}")
    k.stamp("gu end")
P.x2_touch = None; P.dn_x2 = 2; P.h_cost = 1; P.h_np = 1; P.h_d = 2; P.h_stag = 5; P.gu_mix = [(28, 1), (12, 1)]; P.hrot = 0; P.gu_bars = [[0, 2, 4, 6, 7, 8, 9, 10, 11, 12, 13, 14], [0, 3, 6, 8, 10, 12, 14]]; P.HPRE = [0, 0]; P.hp_chk = 208; P.hp_step = 2.2; P.gu_flag_delay = 10; P.gu_xstep = 2.6; P.gu_bg_delay = 300
P.per_guA = [{"s2": 120, "s4": 120}, {"s2": 160, "s4": 160}]
P.per_guB = [{"s2": 90, "s4": 55}, {"s2": 80, "s4": 50}]

def dn(k, layer):
    final = layer == 1
    NB = P.dn_lead; T = D_T
    groups = DN_GROUPS; seq = DN_SEQ; bload = k.hload
    early = Flex()
    def rb(): k.e(f"v_add_u32 v{D_RB}, s{sGL}, v{vL16}", f"v_add_u32 v{D_RB+1}, 0x10000, v{D_RB}", f"v_add_u32 v{D_RB+2}, 0x20000, v{D_RB}")
    if P.HPRE[layer]:
        for i in range(P.HPRE[layer], NB): bload(i)
        rb()
        class Rec:
            def e(self, *t):
                if any("vcc" in x or "s32" in x for x in t): early.add(lambda: k.e(*t), len(t))
                else:
                    for x in t: early.add(lambda x=x: k.e(x))
        red_setup(Rec(), 3, 1, final)
        early.add(lambda: (k.wait(vm=[("hst", 6)]), k.flag(2), k.poll_issue(D_PA, "ph2"), k.e(f"s_add_u32 s{sFO}, s89, {FL_X2 - FL_O}")), 5, P.dn_fgap)
    else:
        k.poll_check(D_PA, "ph1", 1)
        k.stamp("dn early")
        k.bg_held = True
        for i in range(P.dn_pre): bload(i)
        red_setup(k, 3, 1, final); rb()
        k.wait(vm=[("hst", 6)]); k.flag(2)
        if P.dn_pollstep is None: k.poll_issue(D_PA, "ph2")
        for i in range(P.dn_pre, NB): bload(i)
        k.e(f"s_add_u32 s{sFO}, s89, {FL_X2 - FL_O}")
    k.per = dict(P.per_dn0); k.bg_held = False
    direct = final and P.dn1_agpr
    lds = [(i, nn) for i, (g, e) in enumerate(seq) if 8 <= e < 24 and not direct for nn in range(2)]
    slot_of = {x: n for n, x in enumerate(lds)}
    NWF = 6
    def wread(n):
        i, nn = lds[n]; j = 2 * (seq[i][1] - 8) + nn; b = 15 + (j >> 2)
        ad = (b % 10) * 16384 + (j & 3) * 1024
        if seq[i][0] == 0: k.wait(vm=[("gw", b)])
        k.ds(f"ds_read_b128 {vr(D_WF+4*(n%NWF),4)}, v{D_RB + (ad>>16)} offset:{ad & 0xffff}", ("wf", n))
    def wfrag(i, nn):
        e = seq[i][1]
        if e < 8: return ar(192 + 8*e + 4*nn, 4)
        if direct: return ar(8*(e - 8) + 4*nn, 4)
        if e >= 24: return vr(D_WV + 8*(e - 24) + 4*nn, 4)
        return vr(D_WF + 4*(slot_of[(i, nn)] % NWF), 4)
    mains = []; fixed = {}
    NT = P.dn_tail
    assert NT <= 4
    order = [(i, nn) for i in range(56 - NT) for nn in range(2)] + [(i, nn) for nn in range(2) for i in range(56 - NT, 56)]
    for pos, (i, nn) in enumerate(order):
        g, e = seq[i]
        if True:
            acc = D_ACC + 32 * g + 16 * nn
            mains.append(lambda i=i, nn=nn, acc=acc, e=e: k.e(f"{MF32} {vr(acc,16)}, {wfrag(i,nn)}, {vr(D_BF+4*(i%NB),4)}, {'0' if e == 0 else vr(acc,16)}"))
            gp = len(mains) - 1; fl_ = fixed.setdefault(gp, [])
            nx = order[pos + 1] if pos + 1 < len(order) else None
            vmn = [("b", nx[0])] if (nx and nx[1] == 0) else None
            lgn = [("wf", slot_of[nx])] if nx in slot_of else None
            if nx == (24, 0) and not direct: vmn = vmn + ["dnv"]
            if direct and nx and nx[0] in range(8, 28) and nx[1] == 0: vmn = vmn + [("dnr", nx[0])]
            fl_.append((0, lambda vmn=vmn, lgn=lgn: k.wait(vm=vmn, lg=lgn)))
            ah = (i + 2, nn)
            if ah in slot_of: fl_.append((1, lambda n=slot_of[ah]: wread(n)))
    nxt = NB; pend = 0
    for i in range(len(seq)):
        fl_ = fixed[2*i + 1]
        if i == P.DN_LATE[layer]: fl_.append((2, lambda: (k.poll_check(D_PA, "ph2", 2), k.stamp("dn late"), k.mark("late"))))
        n = 0
        while nxt < len(seq) and nxt <= i + NB and n < 2 and (nxt < 16 or i >= P.DN_LATE[layer]):
            fl_.append((1, lambda j=nxt: bload(j))); nxt += 1; n += 1
        if i == P.dn_pollstep and not P.HPRE[layer]: fl_.append((1, lambda: k.poll_issue(D_PA, "ph2")))
        if nxt == len(seq) and not pend: pend = 2*i + 2
    if not final: fixed[22].append((5, lambda: k.codepf(192)))
    fixed[20].append((1, lambda: k.e("s_barrier")))
    for mm in range(2):
        fixed[40 + 4*mm].append((2, lambda mm=mm: (k.e(f"s_add_u32 s32, s55, {BX2() + mm*32768}"),
                                                   k.vm(f"buffer_load_dwordx4 {vr(RES+4*mm,4)}, v{RX(final)}, {XS()}, s32 offen sc1", "res"))))
    fw = Flex(); fs = Flex()
    for q, f in enumerate(red_writes(k, D_ACC, 0, 0, 1)): fw.add(f, 1, 58 + 2*q)
    fw.add(lambda: (k.wait(lg=[("rw", 0)]), k.e("s_barrier")), 2, 76)
    for f in red_reads(k, 0, T, 0): fw.add(f, 2)
    fw.add(lambda: k.wait(vm=["res"]))
    red_finish(k, fw, 0, groups[0], T, BX2(), BS2(), final, False)
    if not final:
        fw.add(lambda: k.vm(f"buffer_store_dwordx4 {vr(RES+4,4)}, v{RX(final)}, {SRD_WS}, s72 offen sc1", "hxs"))
        fw.add(lambda: k.vm(f"buffer_store_dword v{T+32}, v{R_ST}, {SRD_WS}, s73 offen sc1", "hxs"))
        fw.skip(P.dn_flag_delay); fw.add(lambda: (k.wait(vm=[("xst", 0)]), k.flag(1)), 3)
        if P.x2_touch == "dn":
            fixed[P.dn_x2].append((5, lambda: k.touch(226, "p", [f"s_add_u32 s32, s55, {BX2()}"])))
            fixed[P.dn_x2 + 1].append((4, lambda: k.touch(227, "s", [f"s_add_u32 s32, s56, {BS2()}"])))
            fs.add(lambda: k.wait(vm=["touch"]), 1, P.dn_x2 + 2)
        for q, c in enumerate(P.t1_dn): fixed[P.dn_touch + 2*q].append((5, touch_next(k, 28)["oxs".index(c)]))
        fs.dep("late")
        for f in a11_bases(k) + a1_setup(k, 1): fs.add(f)
        fs.add(lambda: (k.poll_addr(A_PX, 32), k.e(f"s_lshl_b32 s32, s{sB}, 7", f"s_add_u32 s{sPO}, s32, {fl(0, FL_X2)}")), 4)
    wtail = red_writes(k, D_ACC + 32, 1, 2*16384, 1)
    if NT:
        for q in range(min(4, NT)): fixed[min(111, 112 - NT + 1 + q)].append((4, wtail.pop(0)))
    k.wait(vm=["dna", ("b", 0)])
    k.stamp("dn first")
    if k.stamping or P.jitter:
        fixed[55].append((0, lambda: k.stamp("dn p1")))
        for g in range(7, 111, 8): fixed[g].append((0, lambda g=g: k.stamp(f"find {g}")))
    run_gaps(k, mains, fixed, [early, fw, fs], 6)
    print("dn left:", len(k.bg), len(fw), len(fs), "last h load at gap", pend)
    k.stamp("dn gemm")
    assert not fs.items
    ws = wtail
    if not final and P.dn_fin_first != 2: ws.insert(len(ws) - 4, lambda: k.poll_issue(A_PX, "px0"))
    if not final and P.dn_fin_first == 2: ws.append(lambda: k.poll_issue(A_PX, "px0"))
    merge(k, fw, ws)
    k.wait(lg=[("rw", 1)]); k.e("s_barrier")
    k.stamp("dn red")
    for f in red_reads(k, 1, T, 2*16384): f()
    def nxt():
        k.poll_check(A_PX, "px0", 1)
        k.wait(vm=["hxs"]); k.flag(1, 91, "sc1")
        a11_early(k)
    if not final:
        k.bg_held = True
        if not P.dn_fin_first: nxt()
    f1 = Flex(); red_finish(k, f1, 1, groups[1], T, BX2(), BS2(), final, True)
    if not final and P.dn_fin_first == 2:
        ex = [lambda: k.poll_check(A_PX, "px0", 1)] + a11_early(k, True) + [lambda: (k.wait(vm=["hxs"]), k.flag(1, 91, "sc1"))]
        merge(k, f1, ex, P.dn_mfirst)
    else: drain([f1], k)
    if not final and P.dn_fin_first == 1: nxt()
    k.stamp("dn end")
P.dn_mfirst = 8; P.dn_pollstep = 0; P.dn_fin_first = 2; P.dn_tail = 0; P.dn_touch = 88; P.dn_flag_delay = 4; P.dn_pre = 6; P.DN_LATE = [9, 9]; P.dn_fgap = 6
P.dn_wow = 6; P.per_dn = {"s4": 110, "s2": 130}; P.per_dn0 = {"s4": 60, "s2": 60}

DOC = """
One persistent launch, 256 workgroups x 4 waves (one workgroup per CU, 512 registers per wave). Generated by gen/fused.py.
16 clusters of 16 workgroups own 128 tokens each; per layer: [LN + QKV + dilated attention] -> [out-proj + residual] -> [LN + gate/up + SwiGLU] -> [down + residual].
 - LayerNorm is applied as rstd * (x.W - mean * colsum(W)) in fp32; row statistics travel with the activations.
 - w_gate/w_up/w_down/wo are re-tiled once into MFMA fragment order in d_ws; W_qkv fragments stay in AGPRs for both layers.
 - attention runs on MFMA straight from the accumulators (true row max, exp2, normalisation by the summed weights).
 - hand-offs between workgroups: data, s_waitcnt, then a flag word; flags are zeroed by this launch and trusted only after a whole-grid
   rendezvous keyed by a launch tag published in d_debug. A cluster found on one die uses plain stores, any other placement writes through.
 - every spin has a bounded budget.
"""
def build(stamps=False, only=None):
    k = F(); k.stamping = stamps; k.only = only; k.st = P.dst; k.rt = P.rt
    name = NAME + "_kernel"
    k.e(".p2align 8", f".globl {name}", f".type {name},@function"); k.label(name)
    if stamps: k.e("s_memrealtime s[92:93]", "s_memtime s[94:95]")
    k.e("s_cmp_ge_u32 s2, 256", "s_cbranch_scc1 L_end")
    k.e("s_load_dwordx16 s[64:79], s[0:1], 0", "s_load_dwordx4 s[80:83], s[0:1], 64", "s_memrealtime s[96:97]")
    k.e("s_getpc_b64 s[100:101]")
    k.e("L_pc: ;np")
    k.e("v_and_b32 v1, 63, v0", "v_lshrrev_b32 v2, 6, v0", "s_lshr_b32 s33, s2, 3", "s_mul_i32 s32, s33, 43", "s_lshr_b32 s32, s32, 8",
        "s_mul_i32 s32, s32, 6", "s_sub_u32 s32, s33, s32", "s_lshl_b32 s32, s32, 13", "v_lshl_add_u32 v3, v2, 11, s32", "v_lshl_add_u32 v3, v1, 7, v3",
        "v_min_u32 v3, L_end-L_pc, v3", f"v_readfirstlane_b32 s{sW}, v2", "v_mov_b32 v5, s101", "v_add_co_u32 v4, vcc, s100, v3", "v_addc_co_u32 v5, vcc, 0, v5, vcc")
    if P.code0:
        k.e("s_mov_b64 exec, 0xffff")
        k.vm("global_load_dword v175, v[4:5], off", "code")
        k.e("s_mov_b64 exec, -1")
        if P.code1:
            k.e("v_lshlrev_b32 v3, 11, v2", "v_lshl_add_u32 v3, v1, 7, v3", "v_mov_b32 v5, s101", "v_add_co_u32 v4, vcc, s100, v3", "v_addc_co_u32 v5, vcc, 0, v5, vcc",
                "s_mov_b64 exec, 0xffff")
            k.vm("global_load_dword v174, v[4:5], off", "code")
            k.e("s_mov_b64 exec, -1")
    k.e("s_and_b32 s32, s2, 7", f"s_and_b32 s{sM}, s33, 15", "s_lshr_b32 s33, s33, 4", "s_lshl_b32 s32, s32, 1", f"s_add_u32 s{sC}, s32, s33")
    k.e(f"s_lshr_b32 s33, s{sM}, 3", f"s_lshl_b32 s{sB}, s{sC}, 1", f"s_add_u32 s{sB}, s{sB}, s33", f"s_and_b32 s{sCS}, s{sM}, 7")
    k.e("v_lshlrev_b32 v2, 4, v1")
    a10_lanes(k)
    k.e("s_waitcnt lgkmcnt(0)")
    srd(k, 12, 64, 2048 * 1024); srd(k, 16, 66, 512 * 3072)
    k.e(f"s_or_b32 s{sTAG}, s96, 1")
    if P.jitter: k.e("s_lshl_b32 s101, s2, 2", f"s_add_u32 s101, s101, s{sW}", "s_mul_i32 s101, s101, 2654435761", "s_add_u32 s101, s101, s96")
    if stamps:
        k.stamps += ["rt0", "start"]; k.e("v_writelane_b32 v0, s92, 0", f"v_writelane_b32 v0, s{92 if P.rt else 94}, 1")
    k.stamp("s kernarg")
    if P.pk_first == 1: pack_issue(k)
    k.stamp("s pkissue")
    run(a10_x(k, 0) + a10_w(k, 0))
    if P.pk_first == 0: pack_issue(k)
    srd(k, 28, 80, 256)
    k.e("v_cmp_eq_u32 vcc, 0, v1", f"v_mov_b32 v{vFA}, {OOB:#x}", f"s_or_b32 s32, s2, s{sW}", f"v_cndmask_b32_e64 v{vFA}, v{vFA}, 0, vcc",
        "s_cmp_eq_u32 s32, 0", f"s_cselect_b32 s32, 0, {OOB>>1:#x}", f"v_mov_b32 v170, s{sTAG}")
    k.vm(f"buffer_store_dword v170, v{vFA}, {SRD_DBG}, s32 offen sc1", "tagst")
    srd(k, 8, 82, WS_SIZE); srd(k, 20, 78, 2048 * 1024)
    for f in a1_setup(k, 0): f()
    o_bases(k, 0)
    a10_lanes2(k)
    k.e(f"v_mov_b32 v60, {OOB:#x}", "v_cmp_gt_u32 vcc, 8, v1", "v_mov_b32 v176, 0", "v_mov_b32 v177, 0", "v_mov_b32 v178, 0", "v_mov_b32 v179, 0",
        f"v_cndmask_b32 v173, v60, v{vL16}, vcc", "v_cmp_gt_u32 vcc, 16, v1", "s_nop 0",
        f"s_lshl_b32 s32, s{sC}, 4", f"v_cndmask_b32 v172, v60, v{vL16}, vcc")
    k.e(f"s_add_u32 s32, s32, s{sM}", "s_lshl_b32 s32, s32, 4",
        f"s_cmp_eq_u32 s{sW}, 0", f"s_cselect_b32 s32, s32, {OOB>>1:#x}", f"v_add_u32 v171, s32, v{vFA}", f"s_mov_b32 s{sBUD}, 400000")
    red_bases(k)
    k.e(f"s_lshl_b32 s{sGL}, s{sW}, 12", f"s_mul_i32 s{sGS}, s{sM}, {PGU_SLICE}", f"s_add_u32 s{sGS}, s{sGS}, s{sGL}", f"s_add_u32 s{sGS}, s{sGS}, {WS_PGU}")
    k.e(f"s_mul_i32 s32, s{sCS}, {224*KB}", f"s_mul_i32 s33, s{sW}, {56*KB}", "s_add_u32 s32, s32, s33", f"s_add_u32 s{sDS}, s32, {WS_PDN}")
    k.e(f"s_lshl_b32 s32, s{sCS}, 16", f"s_add_u32 s32, s32, s{sGL}", f"s_add_u32 s88, s32, {WS_PWO}")
    wo_bases(k)
    k.stamp("s setup")
    run(a10_w(k, 1))
    if P.pk_first == 2: pack_issue(k)
    k.e(f"s_getreg_b32 s{sXCC}, hwreg(HW_REG_XCC_ID, 0, 4)", f"s_mov_b32 s75, {WS_ARR}", f"s_lshl_b32 s77, s{sC}, 8", "s_add_u32 s77, s77, s75")
    if P.k_touch == -1:
        k.touch(157, "p", ["s_mov_b32 s32, s53"], False); k.touch(158, "q", [f"s_add_u32 s32, s64, {BX2()}"], False)
    k.stamp("s w01")
    def mid2():
        if P.k_first > 3: run(a10_w(k, 3))
        k.e("s_lshl_b32 s32, s2, 7")
        k.vm(f"buffer_store_dwordx4 v[176:179], v173, {SRD_WS}, s32 offen sc1", "zero")
        k.e("s_lshl_b32 s32, s2, 8", f"s_add_u32 s32, s32, {WS_HXF}")
        k.vm(f"buffer_store_dwordx4 v[176:179], v172, {SRD_WS}, s32 offen sc1", "zero")
    if P.k_pack is None: pack_process(k, lambda: run(a10_x(k, 1) + a10_w(k, 2)), mid2)
    else: run(a10_x(k, 1) + a10_w(k, 2)); mid2()
    k.vm(f"buffer_load_dword v170, v{vFA}, {SRD_DBG}, 0 offen sc1", "tag")
    k.stamp("s pkdone")
    a10_loop(k, P.k_first)
    a10_tail(k)
    wo(k, 0); gu(k, 0); dn(k, 0)
    if not P.half:
        k.marks = {m: g for m, g in k.marks.items() if False}
        k.seen = {t for t in k.seen if t in k.vmq or t in k.lgq or t in ("dna", "st0", ("x", 2), ("x", 3))}
        k.layer = 1
        a11_main(k)
        wo(k, 1)
        k.marks = {m: g for m, g in k.marks.items() if m in ("wobar", "gemm_done") or m[0] == "bar"}
        gu(k, 1); dn(k, 1)
    if P.verbose: print([(t, tag, f) for t, tag, f in k.bg_log if f])
    if stamps:
        k.e("s_waitcnt vmcnt(0)"); k.stamp("drained"); k.stamp("rt1", True)
        k.e("s_lshl_b32 s32, s2, 10", "s_lshl_b32 s33, s3, 8", "s_add_u32 s32, s32, s33",
            f"s_add_u32 s32, s32, {WS_STAMP}", "v_lshlrev_b32 v8, 2, v1", f"buffer_store_dword v0, v8, {SRD_WS}, s32 offen")
        if P.echo:
            a, b = P.echo
            n = len(k.stamps)
            k.e(f"v_readlane_b32 s32, v0, {a}", f"v_readlane_b32 s33, v0, {b if b >= 0 else n + b}", f"v_readlane_b32 s34, v0, {n-1}", "s_nop 3",
                "s_sub_u32 s33, s33, s32", "s_min_u32 s33, s33, 20000")
            k.label("L_echo")
            k.e("s_memrealtime s[36:37]", "s_waitcnt lgkmcnt(0)", "s_sub_u32 s36, s36, s34", "s_cmp_lt_u32 s36, s33", "s_cbranch_scc1 L_echo")
        if P.dbg:
            n = len(k.stamps)
            k.e("v_readlane_b32 s32, v0, 0", f"v_readlane_b32 s33, v0, {n-1}", "s_not_b32 s34, s32", "v_mov_b32 v4, s33", "v_mov_b32 v5, s34")
            k.e(f"buffer_atomic_umax v4, v{vFA}, {SRD_DBG}, 0 offen offset:4", f"buffer_atomic_umax v5, v{vFA}, {SRD_DBG}, 0 offen offset:8")
            k.e(f"s_cmp_eq_u32 s2, {P.dbg - 1}", f"s_cselect_b32 s35, 0, {OOB>>1:#x}", f"s_cmp_eq_u32 s{sW}, 0", f"s_cselect_b32 s35, s35, {OOB>>1:#x}")
            for i, wd in zip(range(2, n - 1), (3, 5, 6, 7, 9, 10, 11, 13, 14, 15)):
                k.e(f"v_readlane_b32 s33, v0, {i}", "s_sub_u32 s33, s33, s32", "v_mov_b32 v4, s33", f"buffer_store_dword v4, v{vFA}, {SRD_DBG}, s35 offen offset:{4*wd}")
    k.e("s_endpgm")
    k.flush_spins()
    k.label("L_end"); k.e("s_endpgm")
    src = open("cdna_kernels/%s.s.ref" % NAME).read().splitlines()
    out = [l for l in src if l.startswith(";") and "@launch" not in l]
    out.append(f"; @launch grid=(256,1,1) block=(256,1,1) lds={LDS_TOTAL}")
    out += ['.amdgcn_target "amdgcn-amd-amdhsa--gfx950"', ".text"]
    out += ["; " + l for l in DOC.strip().split("\n")]
    s = "\n".join(out) + "\n" + k.text(verbose=True) + '.section .rodata,"a"\n.p2align 6\n' + kd(name)
    from verify import verify
    assert not verify(s), "a register is used while a load into it is in flight"
    if P.align:
        from align import align
        s = align(s)
    return s, k.stamps
P.x_nobar = 0; P.x_noepi = 0; P.rt = 1; P.dbg = 0; P.h_touch0 = ''; P.outm = ('', ''); P.x1_clean = None; P.h1_plain = 0; P.tags = 0; P.echo = None; P.wo_setup_first = 2; P.gu_pa_late = 0; P.gu_bar_first = 0; P.flagbr = 0; P.rot = 0; P.pk_mod = 'nt'; P.x_mod = ''; P.w_mod = ''; P.t_mod = ''; P.pk_first = 1; P.dn1_agpr = 1; P.poll2 = 2; P.wt = (); P.inplace = 1; P.x_out = 0; P.o0_in_h = 0; P.code1 = 0; P.pk_xor = 128; P.gram1 = 1; P.jitter = 0; P.half = 0; P.tlb = 1; P.code0 = 1; P.verbose = 0; P.align = 1; P.gu_cap = 5; P.gu_nw = 5; P.k_touch = 15; P.k_gb = 13; P.k_chk = 16

if __name__ == "__main__":
    path = sys.argv[1] if len(sys.argv) > 1 else "cdna_kernels/%s.s" % NAME
    opts = sys.argv[2:]
    only = None
    for o in opts:
        if o.startswith("only="): only = [x for x in o[5:].split(",") if x]
        if o.startswith("P."):
            n, v = o[2:].split("="); setattr(P, n, eval(v))
    s, st = build(stamps="st" in opts, only=only)
    open(path, "w").write(s)
    if "st" in opts: json.dump([st], open(path + ".json", "w"))
```

```python
import sys, json
from common import *

MF16 = "v_mfma_f32_16x16x32_bf16"
MF16S = "v_mfma_f32_16x16x16_bf16"
MF32 = "v_mfma_f32_32x32x16_bf16"
vL16, vFV, vFA, vP = 2, 8, 9, 10
CSV, CSQ, CSK, RES = 11, 12, 16, 20
OOB = 0x80000000
FL_O, FL_X1, FL_H, FL_X2 = 0, 4096, 8192, 12288
FL_HX = 16384 + 12288
def fl(layer, off): return WS_FLAGS + 16384 * layer + off
sROT, sBUD, sGL, sGS, sDS = 84, 98, 60, 61, 85
sT0, sT1, sPO, sFO = 32, 33, 86, 87
sML, sMS = 68, 69
WS_HXF = WS_O0 - 0x10000 if False else WS_END
WS_ARR = WS_HXF + 0x10000
sTAG, sXCC = 91, 76
WS_STAMP = 0x2000000
L_SA0, L_SA1, L_XH0, L_CS = 80896, 97280, 81920, 79872
def e_of(kk):
    p, tl = divmod(kk, 7)
    return 4 * p + tl if tl < 4 else 16 + 3 * p + (tl - 4)
KK_OF = {e_of(kk): kk for kk in range(28)}

class P:
    a1_bg_start, a1_bg_step = 30, 6
    gu_lead = 9
    gu_bg_start, gu_bg_step = 50, 2.6
    dn_lead = 12
    bgm = ""
    sleep = 0
    drop = ()
    codepf = 0
    ld = "sc1"
    dst = "sc1"
    safe = False
    plain = True
    notouch = ()

BO, BX1, BS1, BH = [WS_O[0]] * 2, [WS_X[0]] * 2, [WS_ST[0]] * 2, [WS_H[0]] * 2
def BX2(): return 0 if P.x_out else (WS_X[0] if P.inplace else WS_X[1])
def XS(): return SRD_OUT if P.x_out else SRD_WS
def LSH(): return 10 if P.x_out else 7
def CSH(): return 7 if P.x_out else 10
def BS2(): return WS_ST[0] if P.inplace else WS_ST[1]
def o_block(d, layer):
    if (layer or P.o0_in_h) and P.inplace: return [f"s_mul_i32 {d}, s{sB}, {224*KB}", f"s_add_u32 {d}, {d}, {BH[0]}"]
    return [f"s_lshl_b32 {d}, s{sB}, 16", f"s_add_u32 {d}, {d}, {BO[layer]}"]
def o_line(layer):
    return [f"s_lshl_b32 s32, s{sB}, 16", f"s_lshl_b32 s33, s{sCS}, 2", f"s_add_u32 s33, s33, s{sW}", "s_lshl_b32 s33, s33, 10",
            "s_add_u32 s32, s32, s33", f"s_add_u32 s32, s32, {BO[layer]}"]
def touch_next(k, t):
    return [lambda: k.touch(t, "p", o_line(1)), lambda: k.touch(t + 1, "q", [f"s_add_u32 s32, s64, {BX2()}"]),
            lambda: k.touch(t + 2, "t", [f"s_add_u32 s32, s65, {BS1[1]}"])]
def gu_tile(d):
    return [f"s_lshl_b32 {d}, s{sC}, 1", f"s_and_b32 s33, s{sW}, 1", f"s_add_u32 {d}, {d}, s33", f"s_lshl_b32 {d}, {d}, 1", f"s_lshr_b32 s33, s{sW}, 1", f"s_add_u32 {d}, {d}, s33"]
def h_base(d, layer):
    return gu_tile(d) + [f"s_mul_i32 {d}, {d}, 112", f"s_mul_i32 s33, s{sM}, 7",
            f"s_add_u32 {d}, {d}, s33", f"s_lshl_b32 {d}, {d}, 10", f"s_add_u32 {d}, {d}, {BH[layer]}"]

class F(K):
    def __init__(self):
        super().__init__(); self.spins = []; self.nspin = 0; self.st = ""; self.npf = 0; self.layer = 0
    def poll_issue(self, va, tag): self.vm(f"buffer_load_dword v{vP}, v{va}, {SRD_WS}, s{sPO} offen sc1", tag)
    def poll_addr(self, va, nl, sh=2):
        self.e(f"v_cmp_gt_u32 vcc, {nl}, v1", f"v_lshlrev_b32 v{va}, {sh}, v1", f"v_mov_b32 v{vP}, {OOB:#x}", f"v_cndmask_b32 v{va}, v{vP}, v{va}, vcc")
        self.nl = nl
    def poll_check(self, va, tag, thr):
        n = self.nspin; self.nspin += 1
        self.stamp(f"poll<{tag}")
        self.wait(vm=[tag])
        self.stamp(f"poll={tag}")
        msk = f"s_and_b32 s99, vcc_lo, {(1 << self.nl) - 1:#x}"
        self.e(f"v_cmp_gt_u32 vcc, {thr}, v{vP}", msk, f"s_cbranch_scc1 L_spin{n} ;np", f"L_back{n}: ;np")
        self.stamp(f"poll>{tag}")
        self.spins += [f"L_spin{n}:", f"s_sub_u32 s{sBUD}, s{sBUD}, 1", f"s_cbranch_scc1 L_give{n}"] + ([f"s_sleep {P.sleep}"] if P.sleep else []) + [
                       f"buffer_load_dword v{vP}, v{va}, {SRD_WS}, s{sPO} offen sc1", "s_waitcnt vmcnt(0)",
                       f"v_cmp_gt_u32 vcc, {thr}, v{vP}", msk, f"s_cbranch_scc1 L_spin{n}", f"s_branch L_back{n}",
                       f"L_give{n}:", f"s_mov_b32 s{sBUD}, 0", f"s_branch L_back{n}"]
    def poll_wait(self, va, tag, thr, alt):
        if not P.poll2:
            self.poll_check(va, tag, thr); return
        n = self.nspin; self.nspin += 1
        ld = lambda r: f"buffer_load_dword v{r}, v{va}, {SRD_WS}, s{sPO} offen sc1"
        tst = lambda r: [f"v_cmp_gt_u32 vcc, {thr}, v{r}", f"s_and_b32 s99, vcc_lo, {(1 << self.nl) - 1:#x}"]
        self.e(f"s_sleep {P.poll2}")
        self.vm(ld(alt), "polljunk")
        self.wait(vm=[tag])
        self.e(*tst(vP)); self.e(f"s_cbranch_scc1 L_spin{n} ;np", f"L_back{n}: ;np")
        self.spins += [f"L_spin{n}:", f"s_sub_u32 s{sBUD}, s{sBUD}, 1", f"s_cbranch_scc1 L_give{n}",
                       ld(vP), "s_waitcnt vmcnt(1)"] + tst(alt) + [f"s_cbranch_scc0 L_back{n}", ld(alt), "s_waitcnt vmcnt(1)"] + tst(vP) + \
                      [f"s_cbranch_scc1 L_spin{n}", f"s_branch L_back{n}", f"L_give{n}:", f"s_mov_b32 s{sBUD}, 0", f"s_branch L_back{n}"]
    def flag(self, val, soff=sFO, st=None):
        self.e(f"v_mov_b32 v{vFV}, {val}")
        if st is not None:
            self.vm(f"buffer_store_dword v{vFV}, v{vFA}, {SRD_WS}, s{soff} offen {st}", "flag"); return
        if P.flagbr:
            self.dstore(f"buffer_store_dword v{vFV}, v{vFA}, {SRD_WS}, s{soff} offen", "flag", True); return
        self.e(f"s_or_b32 s99, s{soff}, s{sML}")
        self.vm(f"buffer_store_dword v{vFV}, v{vFA}, {SRD_WS}, s99 offen", "flag")
        self.e(f"s_or_b32 s99, s{soff}, s{sMS}")
        self.vm(f"buffer_store_dword v{vFV}, v{vFA}, {SRD_WS}, s99 offen sc1", "flag")
    def dstore(self, text, tag, always=False):
        kind = tag[0] if isinstance(tag, tuple) else tag
        if (not P.plain or (self.layer, kind, isinstance(tag, tuple)) in P.wt) and not always:
            self.vm(text + " sc1", tag); return
        n = self.nspin; self.nspin += 1
        self.e(f"s_cmp_lg_u32 s{sML}, 0", f"s_cbranch_scc1 L_alt{n} ;np")
        self.vm(text, tag)
        self.e(f"L_back{n}: ;np")
        self.spins += [f"L_alt{n}:", "s_nop 4", text + " sc1", f"s_branch L_back{n}"]
    def valid(self, test, reload):
        n = self.nspin; self.nspin += 1
        self.e(*test); self.e(f"s_cbranch_vccnz L_rl{n} ;np", f"L_back{n}: ;np")
        self.spins += [f"L_rl{n}:", f"s_sub_u32 s{sBUD}, s{sBUD}, 1", f"s_cbranch_scc1 L_give{n}"] + reload + ["s_waitcnt vmcnt(0)"] + test + \
                      [f"s_cbranch_vccnz L_rl{n}", f"s_branch L_back{n}", f"L_give{n}:", f"s_mov_b32 s{sBUD}, 0", f"s_branch L_back{n}"]
    def touch(self, tmp, kind, base_expr, masked=True):
        if not P.plain or kind in P.notouch: return
        nl = {"p": 16, "q": 16, "s": 2, "t": 2, "h": 56}[kind]
        self.e(f"v_cmp_gt_u32 vcc, {nl}, v1")
        if kind in "pq": self.e(f"v_lshrrev_b32 v{tmp}, 3, v1", f"v_lshlrev_b32 v{tmp}, {15 if kind == 'p' else 13}, v{tmp}", f"v_and_b32 v{vFV}, 7, v1", f"v_lshl_add_u32 v{tmp}, v{vFV}, {LSH() if kind == 'q' else 7}, v{tmp}")
        else: self.e(f"v_lshlrev_b32 v{tmp}, {11 if kind == 's' else 7}, v1")
        self.e(f"v_mov_b32 v{vFV}, {OOB:#x}", *base_expr)
        self.e(f"v_cndmask_b32 v{tmp}, v{vFV}, v{tmp}, vcc")
        if masked: self.e(f"s_or_b32 s32, s32, s{sML}")
        self.vm(f"buffer_load_dword v{tmp}, v{tmp}, {XS() if kind == 'q' else SRD_WS}, s32 offen {P.t_mod}", "touch")
    def vm(self, text, tag=None):
        kind = tag[0] if isinstance(tag, tuple) else tag
        if kind in P.drop:
            self.seen.add(tag); return
        super().vm(text, tag)
    def codepf(self, t):
        if not P.codepf: return
        n = self.npf; self.npf += 1
        self.e(f"L_pf{n}: ;np", f"s_lshl_b32 s32, s{sW}, 12", f"s_add_u32 s32, s32, L_pf{n}-L_pc", f"v_lshl_add_u32 v{t+2}, v1, 7, s32", f"v_min_u32 v{t+2}, L_end-L_pc, v{t+2}",
               f"v_mov_b32 v{t+1}, s101", f"v_add_co_u32 v{t}, vcc, s100, v{t+2}", f"v_addc_co_u32 v{t+1}, vcc, 0, v{t+1}, vcc", "s_mov_b32 exec_hi, 0")
        self.vm(f"global_load_dword v{t+2}, v[{t}:{t+1}], off", "code")
        self.e("s_mov_b64 exec, -1")
    def stamp(self, name, real=False):
        if P.jitter and not name.startswith("s ") and not name.startswith("fin"):
            n = self.nspin; self.nspin += 1
            self.e("s_mul_i32 s101, s101, 1103515245", f"s_add_u32 s101, s101, {12345 + n}", "s_lshr_b32 s100, s101, 20", f"s_and_b32 s100, s100, {P.jitter}",
                   "s_lshr_b32 s99, s101, 28", "s_cmp_lt_u32 s99, 5", f"s_cbranch_scc0 L_j{n}e ;np", f"L_j{n}: ;np", "s_sleep 3", "s_sub_u32 s100, s100, 1",
                   f"s_cbranch_scc0 L_j{n} ;np", f"L_j{n}e: ;np")
        super().stamp(name, real)
    def flush_spins(self):
        for l in self.spins: self.e(l)
        self.spins = []

def batch(k, i):
    src = f"s_add_u32 s62, s{sGS}, {i*16384}" if i < 15 else f"s_add_u32 s62, s{sDS}, {(16 + 4*(i-15))*1024}"
    def f(q):
        k.set_m0(f"s_add_u32 m0, s{sGL}, {(i % 10)*16384}")
        if i != 14: k.set_s(src)
        elif k.last.get(62) != f"s_cselect_b32 s62, {OOB>>1:#x}, s62":
            k.e(src, f"s_cmp_ge_u32 s{sW}, 2", f"s_cselect_b32 s62, {OOB>>1:#x}, s62")
        k.vm(f"buffer_load_dwordx4 v{vL16}, {SRD_WS}, s62 offen offset:{q*1024} {P.bgm} lds", ("gw", i))
    return [lambda q=q: f(q) for q in range(4)]

def bg_batches(k, bs, period, dep=lambda b: None):
    for b in bs:
        for f in batch(k, b): k.bg_add(f, period, ("gw", b), dep(b))
def bg_list(k, fns, period, tag, dep=None):
    for f in fns: k.bg_add(f, period, tag, dep)

def regloads(k, base_sgpr, off, dst, n, tag, tmp=63, tagf=None):
    fns = []
    for j in range(n):
        def f(j=j):
            k.set_s(f"s_add_u32 s{tmp}, s{base_sgpr}, {off + (j & ~3)*1024}")
            k.vm(f"buffer_load_dwordx4 {dst(j)}, v{vL16}, {SRD_WS}, s{tmp} offen offset:{(j%4)*1024} {P.bgm}", tagf(j) if tagf else tag)
        fns.append(f)
    return fns
def wow(k):
    def f(i, q):
        k.set_m0(f"s_add_u32 m0, s{sGL}, {(6 + i)*16384}"); k.set_s(f"s_add_u32 s63, s88, {i*16384}")
        k.vm(f"buffer_load_dwordx4 v{vL16}, {SRD_WS}, s63 offen offset:{q*1024} lds", "wow")
    return [lambda i=i, q=q: f(i, q) for i in range(4) for q in range(4)]

def pack_issue(k):
    k.e(f"s_xor_b32 s99, s2, {P.pk_xor}")
    for r in (68, 69, 72, 73, 74, 75, 76, 77): assert k.writer[r].startswith("s_load"), f"kernel argument s{r} overwritten"
    k.e("v_lshrrev_b32 v44, 3, v1", "v_and_b32 v43, 7, v1", "v_and_b32 v45, 2, v44", "v_lshlrev_b32 v45, 1, v45",
        "v_xor_b32 v43, v43, v45", "v_lshlrev_b32 v43, 4, v43", f"s_add_u32 s34, s49, {L_X + 4096}")
    k.e("s_cmp_ge_u32 s99, 112", "s_cbranch_scc1 L_pki_small")
    k.e("s_and_b32 s35, s99, 1", "s_bfe_u32 s36, s99, 0x10001", "s_lshr_b32 s37, s99, 2")
    k.e("s_cmp_eq_u32 s35, 0", "s_cselect_b32 s24, s72, s74", "s_cselect_b32 s25, s73, s75",
        f"s_mov_b32 s26, {512*3584:#x}", "s_mov_b32 s27, 0x20000")
    k.e("v_mul_u32_u24 v46, 3584, v44", "v_add_u32 v46, v46, v43")
    k.e("s_lshl_b32 s38, s36, 2", f"s_add_u32 s38, s38, s{sW}", f"s_mul_i32 s38, s38, {64*3584}",
        "s_lshl_b32 s39, s37, 7", "s_add_u32 s38, s38, s39")
    for i in range(8):
        k.e(f"s_add_u32 m0, s34, {(i>>2)*8192 + (i&3)*1024}", f"s_add_u32 s39, s38, {i*8*3584}", f"buffer_load_dwordx4 v46, {SRD_PK}, s39 offen {P.pk_mod} lds")
    k.e("s_branch L_pki_done")
    k.label("L_pki_small")
    k.e("s_sub_u32 s35, s99, 112", "s_lshl_b32 s35, s35, 3", f"s_lshl_b32 s36, s{sW}, 1", "s_add_u32 s35, s35, s36")
    k.e("s_cmp_lt_u32 s35, 896", "s_cselect_b32 s24, s76, s68", "s_cselect_b32 s25, s77, s69", f"s_mov_b32 s26, {512*1024:#x}",
        f"s_cselect_b32 s26, {1792*1024:#x}, s26", "s_mov_b32 s27, 0x20000", "s_cselect_b32 s37, 1, 0",
        "s_movk_i32 s38, 896", "s_cselect_b32 s38, 0, s38")
    k.e("s_cselect_b32 s39, 0, 1", "s_cselect_b32 s70, 14, 15", "s_movk_i32 s71, 0x4000", "s_cselect_b32 s71, 0x80, s71")
    k.e("s_sub_u32 s35, s35, s38", "s_lshr_b32 s35, s35, s39", "s_and_b32 s36, s35, 7", "s_lshr_b32 s35, s35, 3")
    k.e("v_lshl_add_u32 v46, v44, 10, v43", "s_lshl_b32 s38, s35, s70", "s_lshl_b32 s39, s36, 7", "s_add_u32 s38, s38, s39")
    for i in range(2):
        for h in range(2):
            k.e(f"s_add_u32 m0, s34, {(2*i+h)*1024}", f"s_add_u32 s39, s38, {h*8192}", f"buffer_load_dwordx4 v46, {SRD_PK}, s39 offen {P.pk_mod} lds")
        if i == 0: k.e("s_add_u32 s38, s38, s71")
    k.label("L_pki_done")
    k.vmq.append("pk"); k.seen.add("pk")

PQ = [76, 80, 84, 88, 92, 96, 36, 40]
def pack_process(k, mid1, mid2):
    k.e("v_bfe_u32 v46, v1, 2, 2", "v_and_b32 v47, 3, v1", "v_bfe_u32 v48, v1, 4, 1", "v_lshrrev_b32 v49, 5, v1")
    k.e("v_and_b32 v50, 2, v46", "v_add_u32 v50, v50, v48", "v_lshlrev_b32 v50, 5, v50",
        "v_lshl_add_u32 v50, v46, 7, v50", "v_lshl_add_u32 v50, v47, 3, v50", "v_add_u32 v50, s34, v50")
    k.e("s_cmp_ge_u32 s99, 112", "s_cbranch_scc1 L_pk_small")
    q0 = list(k.vmq)
    k.e("v_lshl_add_u32 v56, v49, 10, v50", "v_xor_b32 v57, 64, v56")
    k.e("s_lshl_b32 s39, s37, 2", "v_add_u32 v58, s39, v48")
    k.e("s_lshl_b32 s70, s36, 2", f"s_add_u32 s70, s70, s{sW}", "s_lshl_b32 s70, s70, 2")
    k.e("v_and_b32 v66, 15, v1", "s_lshl_b32 s71, s35, 8", "v_lshl_add_u32 v66, v66, 4, s71")
    for p in range(2):
        T, fs, tl, st_, b, aug = 59, 60, 61, 62 + p, 64 + p, 68 + p
        k.e(f"v_add_u32 v{T}, {2*p}, v58", f"v_mul_u32_u24 v{fs}, 9363, v{T}", f"v_lshrrev_b32 v{fs}, 16, v{fs}",
            f"v_mul_u32_u24 v{tl}, 7, v{fs}", f"v_sub_u32 v{tl}, v{T}, v{tl}")
        k.e(f"v_cmp_gt_u32 vcc, 3, v{tl}", f"v_mul_u32_u24 v67, 33, v{tl}", f"v_mov_b32 v{st_}, 1", "v_mov_b32 v70, 3",
            f"v_cndmask_b32 v67, v67, v{tl}, vcc", f"v_cndmask_b32 v{st_}, v{st_}, v70, vcc")
        k.e(f"v_mul_u32_u24 v{fs}, 231, v{fs}", f"v_add_u32 v67, v67, v{fs}")
        k.e(f"v_lshl_add_u32 v70, v{st_}, 5, v67", "v_lshlrev_b32 v70, 10, v70", "v_add_u32 v70, v70, v66",
            "s_lshl_b32 s71, s36, 9", f"v_add_u32 v{aug}, s71, v70")
        k.e(f"v_mul_lo_u32 v70, v{st_}, s70", "v_add_u32 v67, v67, v70", "v_lshlrev_b32 v67, 10, v67",
            "v_add_u32 v67, v67, v66", f"v_lshl_add_u32 v{b}, v49, 9, v67", f"v_lshlrev_b32 v{st_}, 10, v{st_}")
    k.e("v_mov_b32 v71, 0x3f803f80", "v_mov_b32 v72, 0", "v_mov_b32 v73, 0", "v_cmp_gt_u32 vcc, 32, v1", "v_mov_b32 v46, 0", "v_mov_b32 v47, 0",
        "v_cndmask_b32 v68, v69, v68, vcc", f"s_lshl_b32 s72, s{sW}, 8", "s_add_u32 s72, s72, 0x10000", "v_lshl_add_u32 v74, v1, 2, s72",
        "v_lshlrev_b32 v75, 2, v1", "v_add_u32 v75, 0x10000, v75")
    k.e(f"s_mov_b32 s70, {WS_PGU}", "s_mov_b32 s71, s70", "s_mov_b32 s72, s70", "s_mov_b32 s73, s70", f"s_cmp_eq_u32 s{sW}, 0", f"s_cselect_b32 s74, s70, {OOB>>1:#x}")
    k.wait(vm="pk")
    for ks in range(4):
        for p in range(2):
            for j in range(2): k.ds(f"ds_read_b64_tr_b16 {vr(PQ[2*ks+p]+2*j,2)}, v{56+p} offset:{(ks>>1)*8192 + (ks&1)*2048 + j*512}", ("t", ks, p))
        if ks == 2: k.wait(lg=[("t", 0, 1)])
    mid1()
    for ks in range(4):
        for p in range(2):
            k.wait(lg=[("t", ks, p)])
            for d in range(4): k.e(f"v_dot2c_f32_bf16 v{72+p}, v{PQ[2*ks+p]+d}, v71")
    k.e("v_permlane32_swap_b32 v72, v73", "v_add_f32 v72, v72, v73")
    k.ds(f"ds_write_b32 v74, v72 offset:{L_CS - 65536}")
    k.wait(lg="all"); k.e("s_barrier")
    for w in range(4): k.ds(f"ds_read_b32 v{56+w}, v75 offset:{L_CS - 65536 + 256*w}")
    mid2()
    k.wait(lg="all")
    k.e("v_add_f32 v56, v56, v57", "v_add_f32 v58, v58, v59", "v_add_f32 v56, v56, v58")
    k.e("v_cvt_pk_bf16_f32 v45, v56, v46", "v_lshlrev_b32 v57, 16, v45", "v_sub_f32 v57, v56, v57", "v_cvt_pk_bf16_f32 v44, v56, v57")
    k.e("s_branch L_pk_done")
    k.label("L_pk_small")
    k.vmq = list(q0)
    k.e(f"v_mov_b32 v64, v{vL16}", f"v_add_u32 v65, 1024, v{vL16}", f"v_mov_b32 v68, v{vL16}", f"s_mov_b32 s72, {OOB>>1:#x}", "s_mov_b32 s73, s72", "s_mov_b32 s74, s72")
    k.e("s_cmp_eq_u32 s37, 0", "s_cbranch_scc1 L_pk_wo")
    k.e("s_mul_i32 s38, s35, 2341", "s_lshr_b32 s38, s38, 16", "s_mul_i32 s39, s38, 28", "s_sub_u32 s39, s35, s39",
        "s_mul_i32 s70, s39, 9363", "s_lshr_b32 s70, s70, 16", "s_mul_i32 s71, s70, 7", "s_sub_u32 s71, s39, s71")
    for u in range(2):
      k.e(f"s_sub_u32 s39, s70, s36" if P.hrot else "s_mov_b32 s39, s70", f"s_sub_u32 s39, s39, {u if P.hrot else 0}", "s_and_b32 s39, s39, 3",
        "s_lshl_b32 s32, s39, 2", "s_add_u32 s32, s32, s71", "s_mul_i32 s33, s39, 3", "s_add_u32 s33, s33, s71", "s_add_u32 s33, s33, 12",
        "s_cmp_lt_u32 s71, 4", "s_cselect_b32 s32, s32, s33", "s_mul_i32 s33, s38, 28", "s_add_u32 s32, s32, s33", f"s_lshl_b32 s{(35, 37)[u]}, s32, 11")
    k.e("v_lshl_add_u32 v56, v49, 9, v50", "v_xor_b32 v57, 64, v56", f"v_mov_b32 v62, {224*KB}", f"v_mov_b32 v63, {224*KB}")
    k.e(f"s_mul_i32 s36, s36, {224*KB}", f"s_add_u32 s36, s36, {WS_PDN}", "s_add_u32 s70, s36, s35", "s_add_u32 s71, s36, s37")
    k.wait(vm="pk")
    for i in range(2):
        for nn in range(2):
            for j in range(2): k.ds(f"ds_read_b64_tr_b16 {vr(PQ[2*i+nn]+2*j,2)}, v{56+nn} offset:{i*2048 + j*1024}", "t")
    mid1(); mid2()
    k.wait(lg="all")
    k.e("s_branch L_pk_done")
    k.label("L_pk_wo")
    k.vmq = list(q0)
    k.e("v_and_b32 v56, 2, v46", "v_lshlrev_b32 v56, 1, v56", "v_xor_b32 v56, v56, v47", "v_lshlrev_b32 v56, 4, v56", "v_lshl_add_u32 v56, v46, 7, v56",
        "v_lshrrev_b32 v57, 4, v1", "v_lshl_add_u32 v56, v57, 10, v56", "v_add_u32 v56, s34, v56", "v_xor_b32 v57, 64, v56",
        "v_mov_b32 v62, 0x800", "v_mov_b32 v63, 0x800")
    k.e("s_lshl_b32 s36, s36, 16", "s_lshl_b32 s35, s35, 12", "s_add_u32 s70, s36, s35", f"s_add_u32 s70, s70, {WS_PWO}", "s_mov_b32 s71, s70")
    k.wait(vm="pk")
    for j in range(4):
        for jj in range(2): k.ds(f"ds_read_b64_tr_b16 {vr(PQ[j]+2*jj,2)}, v{56+(j>>1)} offset:{jj*512 + 8*(j&1)}", "t")
    mid1(); mid2()
    k.wait(lg="all")
    k.label("L_pk_done")

def pack_stores(k):
    ops = []
    for r in range(4):
        for p in range(2):
            ops.append(("v", lambda r=r, p=p: k.vm(f"buffer_store_dwordx4 {vr(PQ[2*r+p],4)}, v{64+p}, {SRD_WS}, s{70+r} offen sc1", "pks")))
            if r < 3: ops.append(("a", lambda p=p: k.e(f"v_add_u32 v{64+p}, v{64+p}, v{62+p}")))
    ops.append(("v", lambda: k.vm(f"buffer_store_dwordx4 v[44:47], v68, {SRD_WS}, s74 offen sc1", "pks")))
    return ops

A_XF, A_K, A_V, A_Q = 36, 76, 86, 96
A_STA, A_STB, A_OP, A_DX, A_PA, A_ST, A_ACC = 104, 106, 144, 152, 153, 140, 184
class R0: XE, XO, SA, SB, CI, ONE, M, ATT, TMP = 3, 4, 5, 6, 28, 32, 52, (116, 160), 60
class R1: XE, XO, SA, SB, CI, ONE, M, ATT, TMP = 116, 117, 118, 119, 252, 124, 120, (228, 160), 28
A_U, A_PX = 226, 115
A11_ORDER = [2, 3, 1, 0, "h"]
A11_POS = {2: 3, 3: 0, 1: 1, 0: 2, "h": 3}
sODD, sCUR0, sCUR1, sCEXP = 40, 42, 44, 46

def a1_setup(k, layer):
    R = (R0, R1)[layer]
    real = k; out = []
    class Rec:
        def e(self, *t):
            if any(x.startswith("s_cmp") for x in t): out.append(lambda t=t: real.e(*t))
            else: out.extend(lambda x=x: real.e(x) for x in t)
    k = Rec()
    t16, g, tt, tb = R.TMP, R.TMP + 1, R.TMP + 2, R.TMP + 3
    x, y, z = R.ONE, R.ONE + 1, R.ONE + 2
    sa = L_SA0 if layer == 0 else L_SA1
    k.e(f"v_and_b32 v{t16}, 15, v1", f"v_lshrrev_b32 v{g}, 4, v1", f"v_and_b32 v{tt}, 7, v1", f"v_bfe_u32 v{tb}, v1, 3, 1")
    k.e(f"v_lshlrev_b32 v{tb}, 13, v{tb}")
    if layer == 0: k.e(f"v_add_u32 v{tb}, {L_X}, v{tb}")
    if layer == 0:
        k.e(f"v_and_b32 v{x}, 6, v{tt}", f"v_xor_b32 v{x}, v{x}, v{g}", f"v_lshlrev_b32 v{x}, 4, v{x}",
            f"v_lshl_add_u32 v{x}, v{tt}, 7, v{x}", f"v_add_u32 v{R.XE}, v{x}, v{tb}", f"v_xor_b32 v{R.XO}, 64, v{R.XE}")
    else:
        k.e(f"v_lshl_add_u32 v{x}, v{g}, 7, v{tb}", f"v_lshl_add_u32 v{R.XE}, v{tt}, 4, v{x}", f"v_add_u32 v{R.XO}, 512, v{R.XE}")
    k.e(f"v_lshlrev_b32 v{R.SA}, 3, v{t16}", f"v_add_u32 v{R.SA}, {sa}, v{R.SA}",
        f"v_lshlrev_b32 v{R.SB}, 5, v{g}", f"v_add_u32 v{R.SB}, {sa}, v{R.SB}")
    k.e(f"v_and_b32 v{x}, 1, v1", f"v_cmp_eq_u32 s[{sODD}:{sODD+1}], 1, v{x}",
        f"v_lshl_add_u32 v{y}, v{g}, 2, v{x}", f"v_cmp_le_u32 s[{sCUR0}:{sCUR0+1}], v{y}, v{t16}",
        f"v_add_u32 v{y}, 2, v{y}", f"v_cmp_le_u32 s[{sCUR1}:{sCUR1+1}], v{y}, v{t16}")
    k.e(f"v_mov_b32 v{y}, 0xffff", f"v_mov_b32 v{z}, 0xffff0000", f"v_cndmask_b32 v{y}, v{y}, v{z}, s[{sODD}:{sODD+1}]", f"v_mov_b32 v{z}, 0")
    k.e(f"v_cndmask_b32 v{R.M+2}, v{z}, v{y}, s[{sCUR0}:{sCUR0+1}]", f"v_cndmask_b32 v{R.M}, v{y}, v{z}, s[{sCUR0}:{sCUR0+1}]",
        f"v_cndmask_b32 v{R.M+3}, v{z}, v{y}, s[{sCUR1}:{sCUR1+1}]", f"v_cndmask_b32 v{R.M+1}, v{y}, v{z}, s[{sCUR1}:{sCUR1+1}]")
    k.e(f"s_cmp_eq_u32 s{sB}, 0", f"s_cselect_b32 s70, {f2u(-1e38):#x}, 0", f"s_mov_b32 s{sCEXP}, {f2u(0.25*LOG2E):#x}")
    for i in range(4): k.e(f"v_mov_b32 v{R.CI+i}, s70", f"v_mov_b32 v{R.ONE+i}, 0x3f803f80")
    return out

def o_bases(k, layer):
    k.e(*o_block("s32", layer))
    k.e(f"s_lshl_b32 s33, s{sCS}, 2", f"s_add_u32 s33, s33, s{sW}", "s_lshl_b32 s53, s33, 10", "s_add_u32 s53, s53, s32", "s_add_u32 s54, s53, 32768",
        f"s_lshl_b32 s32, s{sB}, 5", "s_add_u32 s32, s32, s33", "s_lshl_b32 s32, s32, 2", f"s_add_u32 s89, s32, {fl(layer, FL_O)}")

def ln_finish(a, s, q):
    a(f"v_mul_f32 v{s}, {f2u(-1/512):#x}, v{s}"); a(f"v_mul_f32 v{q}, {f2u(1/512):#x}, v{q}")
    a(f"v_fma_f32 v{q}, -v{s}, v{s}, v{q}"); a(f"v_max_f32 v{q}, 0, v{q}"); a(f"v_add_f32 v{q}, {f2u(1e-5):#x}, v{q}")

A_QS = 68
def fix_reads(k, R, t, S):
    i = 0 if t == "h" else t + 1
    return [lambda: k.ds(f"ds_read_b64 {vr(S,2)}, v{R.SA} offset:{i*128}", ("sa", t)),
            lambda: k.ds(f"ds_read_b128 {vr(S+2,4)}, v{R.SB} offset:{i*128}", ("sa", t)),
            lambda: k.ds(f"ds_read_b128 {vr(S+6,4)}, v{R.SB} offset:{i*128+16}", ("sa", t))]
def fix(k, R, fx, t, acc, at, pk, S=A_STA, pre=False, nxt=()):
    a = lambda txt, c=1, at=0: fx.add(lambda: k.e(txt), c, at)
    i = 0 if t == "h" else t + 1
    if not pre:
        for n, f in enumerate(fix_reads(k, R, t, S)): fx.add(f, 1, at - P.a1_salead if n == 0 else 0)
    fx.add(lambda: k.wait(lg=[("sa", t)]), 1, at)
    for f in nxt: fx.add(f)
    for r0, cs, dst in ((acc[0], CSQ, None if t == "h" else A_Q + 2*t), (acc[1], CSK, A_K + 2*i)):
        if dst is None: continue
        isq = cs == CSQ
        if pk:
            for h in (0, 2): a(f"v_pk_fma_f32 {vr(r0+h,2)}, {vr(S,2)}, {vr(cs+h,2)}, {vr(r0+h,2)} op_sel_hi:[0,1,1]")
            if not isq:
                for h in (0, 2): a(f"v_pk_mul_f32 {vr(r0+h,2)}, {vr(S,2)}, {vr(r0+h,2)} op_sel:[1,0] op_sel_hi:[1,1]")
        else:
            for r in range(4): a(f"v_fmac_f32 v{r0+r}, v{S}, v{cs+r}")
            if not isq:
                for r in range(4): a(f"v_mul_f32 v{r0+r}, v{S+1}, v{r0+r}")
        if isq: a(f"v_mul_f32 v{A_QS+t}, s{sCEXP}, v{S+1}")
        for h in range(2): a(f"v_cvt_pk_bf16_f32 v{dst+h}, v{r0+2*h}, v{r0+2*h+1}")
    r0 = acc[2]
    for r in range(4): a(f"v_fmac_f32 v{r0+r}, v{S+2+2*r}, v{CSV}")
    for r in range(4): a(f"v_mul_f32 v{r0+r}, v{S+3+2*r}, v{r0+r}")
    for h in range(2): a(f"v_cvt_pk_bf16_f32 v{A_V+2*i+h}, v{r0+2*h}, v{r0+2*h+1}")
    fx.add(lambda: (k.mark(("fix", t)), k.stamp(f"t0 fix{t}")), 0)

def attn(k, R, fx, t, B):
    SC, SP, PP, O, SUM, T = B, B + 4, B + 8, B + 12, B + 16, B + 20
    a = lambda txt, c=1: fx.add(lambda: k.e(txt), c)
    q = vr(A_Q + 2*t, 2)
    fx.dep(("fix", t)); fx.dep(("fix", t - 1 if t else "h")); fx.skip(1)
    a(f"{MF16S} {vr(SC,4)}, {vr(A_K+2*(t+1),2)}, {q}, 0", 2)
    a(f"{MF16S} {vr(SP,4)}, {vr(A_K+2*t,2)}, {q}, {vr(R.CI,4) if t == 0 else '0'}", 2)
    fx.skip(3)
    for rr, cur in ((0, sCUR0), (1, sCUR1)):
        a(f"v_cndmask_b32 v{T+2}, v{SC+2*rr}, v{SC+2*rr+1}, s[{sODD}:{sODD+1}]")
        a(f"v_cndmask_b32 v{T+3}, v{SP+2*rr}, v{SP+2*rr+1}, s[{sODD}:{sODD+1}]")
        a(f"v_cndmask_b32 v{T+rr}, v{T+3}, v{T+2}, s[{cur}:{cur+1}]")
    a(f"v_max_f32 v{T+2}, v{T}, v{T+1}"); a(f"v_mov_b32 v{T+3}, v{T+2}"); fx.skip(1)
    a(f"v_permlane16_swap_b32 v{T+2}, v{T+3}", 2); a(f"v_max_f32 v{T+2}, v{T+2}, v{T+3}"); a(f"v_mov_b32 v{T+3}, v{T+2}"); fx.skip(1)
    a(f"v_permlane32_swap_b32 v{T+2}, v{T+3}", 2); a(f"v_max_f32 v{T+2}, v{T+2}, v{T+3}")
    a(f"v_mul_f32 v{T+2}, v{A_QS+t}, v{T+2}")
    for rr in range(2): a(f"v_fma_f32 v{T+rr}, v{T+rr}, v{A_QS+t}, -v{T+2}")
    for rr in range(2): a(f"v_exp_f32 v{T+rr}, v{T+rr}", 2)
    for rr in range(2): a(f"v_cvt_pk_bf16_f32 v{T+rr}, v{T+rr}, v{T+rr}")
    a(f"v_and_b32 v{PP}, v{T}, v{R.M}"); a(f"v_and_b32 v{PP+1}, v{T+1}, v{R.M+1}")
    a(f"v_and_b32 v{PP+2}, v{T}, v{R.M+2}"); a(f"v_and_b32 v{PP+3}, v{T+1}, v{R.M+3}")
    fx.skip(1)
    a(f"{MF16} {vr(SUM,4)}, {vr(R.ONE,4)}, {vr(PP,4)}, 0", 2)
    a(f"{MF16} {vr(O,4)}, {vr(A_V+2*t,4)}, {vr(PP,4)}, 0", 2)
    fx.skip(3)
    a(f"v_rcp_f32 v{T}, v{SUM}", 2); fx.skip(1)
    for r in range(4): a(f"v_mul_f32 v{O+r}, v{T}, v{O+r}")
    for h in range(2): a(f"v_cvt_pk_bf16_f32 v{A_OP+2*t+h}, v{O+2*h}, v{O+2*h+1}")
    fx.add(lambda: (k.mark(("attn", t)), k.stamp(f"t0 attn{t}")), 0)

def ostore(k, fx, pair):
    b = A_OP + 4 * pair
    fx.dep(("attn", 2*pair)); fx.dep(("attn", 2*pair + 1))
    fx.dep("po1" if pair == 0 else "blank")
    fx.skip(1)
    fx.add(lambda: k.e(f"v_permlane16_swap_b32 v{b}, v{b+2}"), 2); fx.add(lambda: k.e(f"v_permlane16_swap_b32 v{b+1}, v{b+3}"), 2)
    fx.add(lambda: (k.dstore(f"buffer_store_dwordx4 {vr(b,4)}, v{vL16}, {SRD_WS}, s{53+pair} offen", ("ost", pair)), k.mark(("ost", pair))))

Z_WD, Z_TR, Z_HE, Z_HO, Z_OE, Z_OO = 164, 165, 166, 167, 168, 169
Z_XF, Z_SUM, Z_GR, Z_SUMH, Z_GRH, Z_CV = 104, 240, 244, 248, 252, 100
P.k_first = 4; P.k_pack = None; P.k_prep = 12
P.k_look, P.k_atom, P.k_bar, P.k_vgap, P.k_pst, P.k_pgap = 3, 5, 3, 3, 3, 0
NS0 = 6
def z_acc(t):
    if t == "h": return (None, A_ACC + 48, A_ACC + 52)
    return (A_ACC + 12*t, A_ACC + 12*t + 4, A_ACC + 12*t + 8)

def a10_lanes(k):
    k.e("v_lshrrev_b32 v60, 3, v1", "v_and_b32 v61, 6, v60", "v_and_b32 v62, 7, v1", "v_xor_b32 v61, v61, v62",
        "v_lshlrev_b32 v61, 4, v61", f"v_lshl_add_u32 v{A_DX}, v60, 10, v61")
    k.e("v_and_b32 v61, 2, v60", f"s_and_b32 s32, s{sW}, 1", "s_lshl_b32 s32, s32, 2", "v_or_b32 v61, s32, v61", "v_xor_b32 v61, v61, v62",
        "v_lshlrev_b32 v61, 4, v61", "v_mul_u32_u24 v60, 3072, v60", f"v_add_u32 v{Z_WD}, v60, v61")
    if isinstance(P.rot, tuple):
        al, be, ga = P.rot
        k.e(f"s_and_b32 s32, s{sB}, 3", f"s_mul_i32 s32, s32, {al}", f"s_lshr_b32 s33, s{sB}, 2", f"s_mul_i32 s33, s33, {be}", "s_add_u32 s32, s32, s33",
            f"s_mul_i32 s33, s{sCS}, {ga}", f"s_add_u32 s{sROT}, s32, s33")
    elif P.rot == 0: k.e(f"s_add_u32 s{sROT}, s{sB}, s{sCS}")
    elif P.rot == 1: k.e(f"s_lshl_b32 s32, s{sB}, 1", f"s_bfe_u32 s33, s{sB}, 0x10002", "s_add_u32 s32, s32, s33", f"s_add_u32 s{sROT}, s32, s{sCS}")
    elif P.rot == 2: k.e(f"s_lshl_b32 s32, s{sB}, 1", f"s_add_u32 s{sROT}, s32, s{sCS}")
    elif P.rot == 3: k.e(f"s_mov_b32 s{sROT}, s{sCS}")
    elif P.rot == 4: k.e(f"s_lshl_b32 s32, s{sB}, 1", f"s_bfe_u32 s33, s{sB}, 0x10002", f"s_add_u32 s{sROT}, s32, s33")
    elif P.rot == 5: k.e(f"s_mov_b32 s{sROT}, 0")
    elif P.rot == 6: k.e(f"s_mul_i32 s32, s{sB}, 3", f"s_add_u32 s{sROT}, s32, s{sCS}")
    elif P.rot == 7: k.e(f"s_lshr_b32 s32, s{sB}, 2", f"s_add_u32 s{sROT}, s32, s{sCS}")
    elif P.rot == 8: k.e(f"s_lshr_b32 s32, s{sB}, 2", f"s_add_u32 s32, s32, s{sB}", f"s_add_u32 s{sROT}, s32, s{sCS}")
    k.e(f"s_and_b32 s{sROT}, s{sROT}, 7")
    k.e(f"s_lshl_b32 s47, s{sB}, 3", "s_sub_u32 s48, s47, 2", "s_max_i32 s48, s48, 0", f"s_and_b32 s32, s{sW}, 1", "s_add_u32 s48, s48, s32",
        "s_lshl_b32 s48, s48, 13", f"s_lshl_b32 s32, s{sW}, 1", "s_add_u32 s47, s47, s32", "s_lshl_b32 s47, s47, 13")
    k.e(f"s_mul_i32 s51, s{sW}, {8*3072}", f"s_lshl_b32 s32, s{sCS}, 7", "s_add_u32 s51, s51, s32", f"s_mul_i32 s52, s{sW}, 3072")
    k.e(f"s_lshl_b32 s49, s{sW}, 14", f"s_and_b32 s32, s{sW}, 1", "s_lshl_b32 s50, s32, 13", f"s_lshr_b32 s32, s{sW}, 1",
        "s_lshl_b32 s33, s32, 10", "s_add_u32 s50, s50, s33", f"s_add_u32 s90, s32, s{sROT}")

def a10_x(k, c):
    S = lambda *t: [("s", lambda x=x: k.e(x)) for x in t]
    ld = lambda: k.vm(f"buffer_load_dwordx4 v{A_DX}, {SRD_X}, s33 offen {P.x_mod} lds", ("x", c))
    ops = S(f"s_add_u32 s33, s{sROT}, {c}", "s_and_b32 s33, s33, 7", "s_lshl_b32 s33, s33, 7", f"s_add_u32 m0, s49, {L_X + c*1024}", "s_add_u32 s33, s33, s47")
    ops += [("v", ld)] + S(f"s_add_u32 m0, s49, {L_X + 8192 + c*1024}", "s_add_u32 s33, s33, 8192") + [("v", ld)]
    if c % 2 == 0:
        ops += S(f"s_add_u32 s33, s90, {c}", "s_and_b32 s33, s33, 7", "s_lshl_b32 s33, s33, 7", f"s_add_u32 m0, s50, {L_XH0 + c*1024}", "s_add_u32 s33, s33, s48") + [("v", ld)]
    return ops

def a10_w(k, s):
    S = lambda *t: [("s", lambda x=x: k.e(x)) for x in t]
    if s & 1: ops = S(f"s_add_u32 m0, s52, {(s % NS0)*12288}", f"s_add_u32 s63, s63, {32*3072}")
    else: ops = S(f"s_add_u32 s63, s{sROT}, {s>>1}", "s_and_b32 s63, s63, 7", f"s_mul_i32 s63, s63, {64*3072}", f"s_add_u32 m0, s52, {(s % NS0)*12288}", "s_add_u32 s63, s63, s51")
    for p in range(3): ops.append(("v", lambda p=p: k.vm(f"buffer_load_dwordx4 v{Z_WD}, {SRD_QKV}, s63 offen offset:{p*1024} {P.w_mod} lds", ("w", s))))
    return ops
def run(ops):
    for _, f in ops: f()

def fill(k, mains, streams, cap=2):
    lastv = -99
    for g, m in enumerate(mains):
        m(); k.gap = g
        for a, o in streams:
            if a <= g and o and o[0][0] == "s": o.pop(0)[1](); break
        room = cap; nd = 0
        if g - lastv >= P.k_vgap and k.bg_step(): room -= 1; lastv = g
        while room > 0:
            pick = None
            for a, o in streams:
                if a > g or not o: continue
                t = o[0][0]
                if t == "d" and nd >= 1: continue
                if t == "v" and g - lastv < P.k_vgap: continue
                pick = o; break
            if pick is None: break
            t, f = pick.pop(0); f(); room -= 2 if t == "b" else 1
            if t == "d": nd += 1
            if t == "v": lastv = g
    for a, o in streams: run(o)

def a10_lanes2(k):
    k.e("v_lshrrev_b32 v60, 4, v1", "v_bfe_u32 v61, v1, 2, 2", "v_and_b32 v62, 1, v60", "v_lshlrev_b32 v62, 1, v62",
        "v_lshrrev_b32 v63, 1, v61", "v_or_b32 v62, v62, v63", f"v_xor_b32 v62, s{sW}, v62", "v_lshlrev_b32 v62, 5, v62",
        "v_mul_u32_u24 v60, 3072, v60", "v_lshl_add_u32 v60, v61, 7, v60", "v_add_u32 v60, v60, v62",
        "v_and_b32 v61, 3, v1", f"v_lshl_add_u32 v{Z_TR}, v61, 3, v60")
    k.e("v_and_b32 v60, 15, v1", "v_cmp_eq_u32 s[78:79], 0, v60")
    k.e(f"v_subrev_u32 v{Z_HE}, 16384, v{R0.XE}", f"v_subrev_u32 v{Z_HO}, 16384, v{R0.XO}",
        f"v_add_u32 v{Z_OE}, s49, v{R0.XE}", f"v_add_u32 v{Z_OO}, s49, v{R0.XO}")

def a10_loop(k, first):
    LA = P.k_look
    def sync(s, extra=()):
        k.wait(vm=[("w", s), ("x", s >> 1)] + list(extra)); k.e("s_barrier")
    nxt = [first]
    def dmas(upto):
        out = []
        while nxt[0] <= min(upto, 15):
            n = nxt[0]; nxt[0] += 1
            if n % 2 == 0: out += a10_x(k, n // 2)
            out += a10_w(k, n)
        return out
    def reads(s):
        fb = Z_XF + 24 * (s & 1); off = (s >> 1) * 1024; o = s & 1
        tr = lambda p, j: ("d", lambda: k.ds(f"ds_read_b64_tr_b16 {ar(12*s+4*p+2*j,2)}, v{Z_TR} offset:{(s%NS0)*12288 + p*1024 + j*512}", ("r", s, 0 if p == 0 else 1)))
        xr = lambda d, a, of, grp: ("d", lambda: k.ds(f"ds_read_b128 {vr(d,4)}, v{a} offset:{of}", ("r", s, grp)))
        out = [tr(0, 0), tr(0, 1)] + [xr(fb + 4*t, R0.XO if o else R0.XE, t*16384 + off, 0) for t in range(4)]
        out += [tr(1, 0), tr(1, 1), tr(2, 0), tr(2, 1), xr(fb + 16, Z_HO if o else Z_HE, off, 1), xr(fb + 20, Z_OO if o else Z_OE, off, 1)]
        return out
    l0_background(k)
    pst = pack_stores(k)
    sync(0)
    k.stamp("k0")
    run(reads(0)); run(dmas(LA - 1))
    for s in range(16):
        fb = Z_XF + 24 * (s & 1)
        c = lambda r: "0" if s == 0 else vr(r, 4)
        wq, wk, wv, one = ar(12*s, 4), ar(12*s + 4, 4), ar(12*s + 8, 4), vr(R0.ONE, 4)
        ms = [f"{MF16} {vr(z_acc(t)[0],4)}, {wq}, {vr(fb+4*t,4)}, {c(z_acc(t)[0])}" for t in range(4)]
        for t in [0, 1, 2, 3, "h"]:
            xf = vr(fb + (16 if t == "h" else 4*t), 4)
            ms.append(f"{MF16} {vr(z_acc(t)[1],4)}, {wk}, {xf}, {c(z_acc(t)[1])}")
            ms.append(f"{MF16} {vr(z_acc(t)[2],4)}, {xf}, {wv}, {c(z_acc(t)[2])}")
        ms += [f"{MF16} {vr(Z_CV,4)}, {wq}, {vr(fb+16,4)}, {c(Z_CV)}",
               f"{MF16} {vr(Z_SUM,4)}, {one}, {vr(fb+20,4)}, {c(Z_SUM)}", f"{MF16} {vr(Z_GR,4)}, {vr(fb+20,4)}, {vr(fb+20,4)}, {c(Z_GR)}",
               f"{MF16} {vr(Z_GRH,4)}, {vr(fb+16,4)}, {vr(fb+16,4)}, {c(Z_GRH)}"]
        if not P.gram1: ms.append(f"{MF16} {vr(Z_SUMH,4)}, {one}, {vr(fb+16,4)}, {c(Z_SUMH)}")
        mains = [lambda m=m: k.e(m) for m in ms]
        if s == P.k_pack:
            k.wait(lg="all"); pack_process(k, lambda: None, lambda: None)
        k.wait(lg=[("r", s, 0)])
        streams = [(3, [("s", lambda: k.wait(lg=[("r", s, 1)]))] +
                       [("a", lambda d=d: k.e(f"v_cndmask_b32 v{fb+16+d}, v{fb+16+d}, v{R0.ONE}, s[78:79]")) for d in range(4)])]
        if s + 1 < 16:
            ex = ["pks"] if s + 1 == P.k_atom else []
            assert not ex or not pst, "arrival before the last pack store"
            assert P.k_prep > 14 - LA and (P.k_pack or 0) <= 8 - LA
            ops = [("b", lambda: sync(s + 1, ex))] + reads(s + 1)
            if ex: ops.append(("b", lambda: arrive(k)))
            streams.append((P.k_bar, ops))
            streams.append((0, dmas(s + LA)))
        n = 0; mine = []
        while pst and s >= (P.k_pack or 0) and (n < P.k_pst or pst[0][0] == "a"):
            n += pst[0][0] == "v"; mine.append(pst.pop(0))
        streams.append((P.k_pgap, mine))
        if s == P.k_prep: streams.append((6, tail_prep(k)))
        if s == P.k_touch:
            streams.append((2, [("b", lambda: k.touch(157, "p", ["s_mov_b32 s32, s53"], False) if (0, "ost", True) not in P.wt else None),
                                ("b", lambda: k.touch(158, "q", [f"s_add_u32 s32, s64, {BX2()}"], False) if (0, "xst", False) not in P.wt and P.x1_at == "k" else None),
                                ("b", lambda: k.touch(159, "h", h_base("s32", 0), False) if P.h_touch0 == "k" else None)]))
        if s == P.k_gb: streams.append((1, [("v", lambda t=t: k.vm(t, "gb")) for t in GB_LOADS]))
        if s == P.k_chk: streams.append((1, [("b", lambda: rendezvous(k))]))
        if s == 15 and P.k_chk < 16:
            streams.append((max(P.k_bar, 4), [("b", lambda: (k.e("s_barrier"), k.mark("xfree")))]))
        fill(k, mains, streams)
        if s in (3, 7, 11): k.stamp(f"k{s+1}")
    k.stamp("k16")
    if P.k_chk >= 16: rendezvous(k)

GB_LOADS = [f"buffer_load_dwordx4 {vr(36+4*j,4)}, v{vL16}, {SRD_WS}, s75 offen offset:{j*1024} sc1" for j in range(4)] + \
           [f"buffer_load_dword v{vP}, v172, {SRD_WS}, s77 offen offset:8 sc1"]
def arrive(k):
    k.wait(vm=["tag"])
    k.e(f"v_readfirstlane_b32 s{sTAG}, v170", f"s_cmp_eq_u32 s{sTAG}, 0", "s_cbranch_scc1 L_tag_spin ;np", "L_tag_ok: ;np")
    k.spins += ["L_tag_spin:", f"s_sub_u32 s{sBUD}, s{sBUD}, 1", "s_cbranch_scc1 L_tag_give", f"buffer_load_dword v170, v{vFA}, {SRD_DBG}, 0 offen sc1",
                "s_waitcnt vmcnt(0)", f"v_readfirstlane_b32 s{sTAG}, v170", f"s_cmp_eq_u32 s{sTAG}, 0", "s_cbranch_scc1 L_tag_spin", "s_branch L_tag_ok",
                "L_tag_give:", f"s_mov_b32 s{sBUD}, 0", "s_branch L_tag_ok"]
    k.e(f"v_mov_b32 v176, s{sTAG}", "v_not_b32 v177, v176", f"v_mov_b32 v178, s{sXCC}")
    k.vm(f"buffer_store_dwordx4 v[176:179], v171, {SRD_WS}, s75 offen sc1", "arr")

def rendezvous(k):
    chk = [f"s_not_b32 s32, s{sTAG}"]
    for j in range(4): chk += [f"v_xor_b32 v{36+4*j}, s{sTAG}, v{36+4*j}", f"v_xor_b32 v{37+4*j}, s32, v{37+4*j}"]
    chk += ["v_or3_b32 v36, v36, v37, v40", "v_or3_b32 v44, v44, v45, v41", "v_or3_b32 v36, v36, v48, v49", "v_or_b32 v36, v36, v44", "v_cmp_ne_u32 vcc, 0, v36"]
    k.wait(vm=["gb"])
    k.e(*chk); k.e("s_cbranch_vccnz L_gb_spin ;np", "L_gb_ok: ;np")
    k.spins += ["L_gb_spin:", f"s_sub_u32 s{sBUD}, s{sBUD}, 1", "s_cbranch_scc1 L_gb_give", "s_sleep 2",
                f"buffer_load_dword v170, v{vFA}, {SRD_DBG}, 0 offen sc1", "s_waitcnt vmcnt(0)", "v_readfirstlane_b32 s32, v170", f"s_cmp_eq_u32 s32, s{sTAG}",
                "s_cbranch_scc1 L_gb_same", f"s_mov_b32 s{sTAG}, s32", f"v_mov_b32 v176, s{sTAG}", "v_not_b32 v177, v176",
                f"buffer_store_dwordx4 v[176:179], v171, {SRD_WS}, s75 offen sc1", "L_gb_same:"] + GB_LOADS + ["s_waitcnt vmcnt(0)"] + chk + \
               ["s_cbranch_vccnz L_gb_spin", "s_branch L_gb_ok", "L_gb_give:", f"s_mov_b32 s{sBUD}, 0", "s_branch L_gb_ok"]
    k.e(f"v_cmp_ne_u32 vcc, s{sXCC}, v{vP}", "s_and_b32 s99, vcc_lo, 0xffff" if not P.safe else "s_and_b32 s99, 1, 1",
        f"s_cselect_b32 s{sML}, {OOB>>1:#x}, 0", f"s_cselect_b32 s{sMS}, 0, {OOB>>1:#x}")
    k.mark("gb")

W_OA, W_UA, W_SA, W_RB = 152, 154, 155, 156
def wo_bases(k):
    k.e(f"s_lshl_b32 s32, s{sB}, 2", f"s_add_u32 s32, s32, s{sW}", "s_lshl_b32 s64, s32, 14", f"s_lshl_b32 s33, s{sCS}, {CSH()}", "s_add_u32 s64, s64, s33",
        "s_lshr_b32 s32, s32, 1", "s_lshl_b32 s80, s32, 15", "s_lshl_b32 s65, s32, 11", "s_lshl_b32 s66, s32, 3", f"s_add_u32 s66, s66, s{sCS}", "s_lshl_b32 s66, s66, 1",
        f"s_and_b32 s32, s{sW}, 1", "s_add_u32 s66, s66, s32", "s_lshl_b32 s66, s66, 2", "s_lshl_b32 s32, s32, 8", "s_add_u32 s80, s80, s32", "s_add_u32 s65, s65, s32",
        f"s_lshr_b32 s32, s{sCS}, 1", "s_lshl_b32 s32, s32, 9", "s_add_u32 s65, s65, s32", f"s_and_b32 s32, s{sCS}, 1", "s_lshl_b32 s32, s32, 3", "s_add_u32 s65, s65, s32")
def wo_lanes(k):
    x, y = 66, 67
    return [lambda t=t: k.e(*t) for t in (
        [f"v_and_b32 v{x}, 15, v1"], [f"v_lshrrev_b32 v{y}, 4, v1"], [f"v_lshlrev_b32 v{W_OA}, 4, v{x}"], [f"v_lshl_add_u32 v{W_SA}, v{y}, 2, v{W_OA}"],
        [f"v_lshl_add_u32 v{W_OA}, v{y}, 9, v{W_OA}"], [f"v_and_b32 v{W_UA}, 7, v1"], [f"v_lshlrev_b32 v{W_UA}, 4, v{W_UA}"], [f"v_lshl_add_u32 v{W_UA}, v{y}, {LSH()}, v{W_UA}"],
        [f"v_lshrrev_b32 v{x}, 3, v{x}"], [f"v_lshl_add_u32 v{W_UA}, v{x}, 13, v{W_UA}"], [f"v_add_u32 v{W_RB}, {6*16384}, v{vL16}"],
        ["v_cmp_gt_u32 vcc, 32, v1", f"v_mov_b32 v{y}, {OOB:#x}", f"v_cndmask_b32 v{W_SA}, v{y}, v{W_SA}, vcc"])]
def blanks(k, layer):
    if not P.tags: return [lambda: k.mark("blank")]
    z = 66
    return [lambda: (k.e(f"v_mov_b32 v{z}, -1"), k.dstore(f"buffer_store_dword v{z}, v{vL16}, {SRD_WS}, s53 offen", "blank")),
            lambda: (k.e(f"s_add_u32 s58, s64, {BX2()}"), k.dstore(f"buffer_store_dword v{z}, v{W_UA}, {SRD_WS}, s58 offen", "blank")),
            lambda: k.dstore(f"buffer_store_dword v{z}, v{W_UA}, {SRD_WS}, s58 offen offset:512", "blank"),
            lambda: (k.e(f"s_add_u32 s58, s65, {BS1[layer]}"), k.dstore(f"buffer_store_dword v{z}, v{W_SA}, {SRD_WS}, s58 offen", "blank"), k.mark("blank"))]
def wo_prepoll(k, layer):
    k.poll_addr(A_PA, 32)
    k.e(f"s_lshl_b32 s32, s{sB}, 7", f"s_add_u32 s{sPO}, s32, {fl(layer, FL_O)}", *o_block("s59", layer), "s_and_b32 s32, s80, 0xffff", "s_add_u32 s59, s59, s32")
    k.bg_held = True
    k.poll_issue(A_PA, "po1"); k.mark("po1")

def dna(k): return regloads(k, sDS, 0, lambda j: ar(192 + 4*j, 4), 16, "dna")

def tail_prep(k):
    R = R0
    A = lambda *t: [("a", lambda x=x: k.e(x)) for x in t]
    B = lambda *t: [("b", lambda: k.e(*t))]
    ops = A("v_and_b32 v73, 15, v1", "v_lshrrev_b32 v74, 4, v1", "v_lshlrev_b32 v73, 10, v73", "v_lshl_add_u32 v73, v74, 4, v73")
    ops += B(f"s_lshl_b32 s58, s{sB}, 2", f"s_add_u32 s58, s58, s{sW}", "s_lshl_b32 s58, s58, 14", f"s_lshl_b32 s59, s{sCS}, 7", "s_add_u32 s58, s58, s59")
    ops += [("v", lambda p=p: k.vm(f"buffer_load_dwordx4 {vr(RES+4*p,4)}, v73, {SRD_X}, s58 offen offset:{p*64}", "res")) for p in range(2)]
    ops += A("v_and_b32 v75, 3, v1", "v_cmp_eq_u32 s[34:35], 1, v75", "v_cmp_eq_u32 s[36:37], 2, v75", "v_cmp_eq_u32 s[38:39], 3, v75", "v_bfe_u32 v75, v1, 2, 2")
    ops += B("v_cmp_eq_u32 vcc, v75, v74", f"v_mov_b32 v72, {L_SA0 + 768}", f"s_lshl_b32 s59, s{sW}, 7", f"v_add_u32 v74, s59, v{R.SA}",
             "v_cndmask_b32 v74, v72, v74, vcc", f"v_cndmask_b32 v75, v72, v{R.SA}, vcc")
    return ops + [("a", f) for f in wo_lanes(k)]

def l0_background(k):
    k.per = dict(P.per_k)
    dd = dna(k)
    bg_list(k, dd[:P.dna_first], "s4", "dna", "gb")
    bg_list(k, wow(k), "s4", "wow", "xfree")
    bg_batches(k, [0, 1, 2, 3], "s2", lambda b: "xfree")
    bg_batches(k, [4], "s2", lambda b: "wobar")
    bg_batches(k, [5], "s2", lambda b: "xfree")
    bg_batches(k, [6, 7, 8, 9], "s2", lambda b: "gubar")
    bg_list(k, dd[P.dna_first:], "s4", "dna")
P.per_k = {"s2": 90, "s4": 70}

def a10_tail(k):
    R = R0
    k.per = dict(P.per_tail0)
    k.stamp("t0 gb")
    xt = [lambda: k.touch(72, "t", [f"s_add_u32 s32, s65, {BS1[0]}"])]
    if P.x1_at != "k": xt.append(lambda: k.touch(158, "q", [f"s_add_u32 s32, s64, {BX2()}"]))
    if (0, "xst", False) in P.wt: xt = []
    if P.x1_at == "k":
        for f in xt: f()
    k.bg_burst(P.tail_burst); k.bg_next = k.t + P.tail_delay
    hk, hv = z_acc("h")[1], z_acc("h")[2]
    for r in range(4):
        k.e(f"v_mov_b32_dpp v{CSQ+r}, v{Z_CV+r} row_newbcast:0 row_mask:0xf bank_mask:0xf", f"v_mov_b32_dpp v{CSK+r}, v{hk+r} row_newbcast:0 row_mask:0xf bank_mask:0xf")
    k.e(f"v_mov_b32 v{CSV}, v{hv}", f"v_mov_b32 v45, v{hv}", f"v_permlane16_swap_b32 v{CSV}, v45", f"v_mov_b32 v45, v{CSV}", f"v_permlane32_swap_b32 v{CSV}, v45")
    if P.gram1:
        k.e(f"v_mov_b32 v{Z_SUMH}, v{Z_GRH}", f"v_mov_b32 v45, v{Z_GRH}", f"v_permlane16_swap_b32 v{Z_SUMH}, v45", f"v_mov_b32 v45, v{Z_SUMH}", f"v_permlane32_swap_b32 v{Z_SUMH}, v45")
    fa = Flex(); fb = Flex()
    for fx, S, G, ad, off in ((fa, Z_SUM, Z_GR, 74, 128), (fb, Z_SUMH, Z_GRH, 75, 0)):
        a = lambda txt, c=1, fx=fx: fx.add(lambda: k.e(txt), c)
        a(f"v_cndmask_b32 v{S+1}, v{G}, v{G+1}, s[34:35]"); a(f"v_cndmask_b32 v{S+1}, v{S+1}, v{G+2}, s[36:37]"); a(f"v_cndmask_b32 v{S+1}, v{S+1}, v{G+3}, s[38:39]")
        ln_finish(a, S, S + 1); a(f"v_rsq_f32 v{S+1}, v{S+1}"); fx.skip(1)
        fx.add(lambda S=S, ad=ad, off=off: k.ds(f"ds_write_b64 v{ad}, {vr(S,2)} offset:{off}", "saw"))
    drain([fa, fb], k)
    for f in blanks(k, 0): f()
    k.wait(lg="all"); k.e("s_barrier"); k.mark("xfree")
    k.stamp("t0 bar")
    fx = Flex(); f1 = Flex(); f2 = Flex()
    od = (2, 1, 3, 0, "h"); Ss = (A_STA, 56)
    for f in fix_reads(k, R, od[0], Ss[0]): f()
    for n, t in enumerate(od):
        fix(k, R, fx, t, z_acc(t), 0, True, Ss[n & 1], True, fix_reads(k, R, od[n + 1], Ss[~n & 1]) if n < 4 else ()); fx.skip(1)
    attn(k, R, f1, 2, R.ATT[0]); attn(k, R, f2, 3, R.ATT[1]); ostore(k, f2, 1)
    attn(k, R, f1, 1, R.ATT[0]); attn(k, R, f2, 0, R.ATT[1]); ostore(k, f2, 0)
    f4 = Flex()
    if P.x1_at != "k":
        f4.dep(P.x1_at)
        for f in xt: f4.add(f)
    f3 = Flex(); f3.dep(("ost", 1))
    for _ in range(P.l0_flag_delay): f3.skip(1)
    f3.add(lambda: (k.wait(vm=[("ost", 1)]), k.flag(1, 89), k.mark("oflag1")))
    f3.dep(("attn", 0)); f3.add(lambda: wo_prepoll(k, 0))
    drain([fx, f1, f2, f3, f4], k)
    k.stamp("a1 end")
P.x1_at = 'k'; P.tail_burst = 2; P.tail_delay = 0; P.l0_flag_delay = 6; P.dna_first = 2
P.per_tail0 = {"s2": 70, "s4": 45}

def a11_bases(k):
    out = []
    S = lambda *t: out.extend(lambda x=x: k.e(x) for x in t)
    S(f"s_lshr_b32 s70, s{sW}, 1", "s_lshl_b32 s49, s70, 13", f"s_and_b32 s71, s{sW}, 1", "s_lshl_b32 s71, s71, 2",
      f"s_add_u32 s50, s71, s{sROT}", "s_lshl_b32 s71, s71, 10")
    for i in range(4):
        S(f"s_add_u32 s70, s50, {i}", "s_and_b32 s70, s70, 7", f"s_lshl_b32 s70, s70, {CSH()}", "s_add_u32 s70, s70, s49", f"s_sub_u32 s{92+i}, s70, {0 if P.x_out else i*1024}")
    S("s_add_u32 s49, s49, s71", f"s_lshl_b32 s47, s{sB}, 16", f"s_add_u32 s47, s47, {BX2()}")
    S(f"s_sub_u32 s48, s{sB}, 1", "s_max_i32 s48, s48, 0", "s_lshl_b32 s51, s48, 10", f"s_add_u32 s51, s51, {WS_HST}",
      "s_lshl_b32 s52, s48, 11", f"s_add_u32 s52, s52, {WS_HXF}", "s_lshl_b32 s48, s48, 14", f"s_add_u32 s48, s48, {WS_HALO}")
    S("v_lshrrev_b32 v28, 4, v1", "v_and_b32 v29, 15, v1", "v_lshlrev_b32 v29, 4, v29", f"v_lshl_add_u32 v{A_U}, v28, 9, v29", f"v_lshl_add_u32 v{A_U+1}, v28, 8, v29")
    S(f"s_lshl_b32 s70, s{sB}, 12", f"s_and_b32 s71, s{sW}, 1", "s_lshl_b32 s71, s71, 8", "s_add_u32 s70, s70, s71", f"s_add_u32 s90, s70, {BS2()}")
    out.append(lambda: k.e(f"s_lshl_b32 s70, s{sB}, 1", f"s_add_u32 s70, s70, s{sW}", "s_lshl_b32 s72, s70, 13", f"s_lshl_b32 s71, s{sCS}, {CSH()}", "s_add_u32 s72, s72, s71",
        f"s_add_u32 s72, s72, {WS_HALO - 16384}", f"s_cmp_ge_u32 s{sW}, 2", f"s_cselect_b32 s72, s72, {OOB>>1:#x}"))
    out.append(lambda: k.e(f"s_lshl_b32 s73, s{sB}, 10", f"s_lshr_b32 s71, s{sCS}, 1", "s_lshl_b32 s71, s71, 8", "s_add_u32 s73, s73, s71", f"s_and_b32 s71, s{sCS}, 1",
        "s_lshl_b32 s71, s71, 3", "s_add_u32 s73, s73, s71"))
    out.append(lambda: k.e(f"s_lshl_b32 s71, s{sW}, 7", "s_add_u32 s73, s73, s71", f"s_add_u32 s73, s73, {WS_HST - 256}",
        f"s_cmp_ge_u32 s{sW}, 2", f"s_cselect_b32 s73, s73, {OOB>>1:#x}"))
    out.append(lambda: k.e(f"s_lshl_b32 s70, s{sB}, 3", f"s_add_u32 s70, s70, s{sCS}", "s_lshl_b32 s70, s70, 1", f"s_add_u32 s70, s70, s{sW}", "s_lshl_b32 s70, s70, 7",
        f"s_add_u32 s70, s70, {WS_HXF - 256}", f"s_cmp_ge_u32 s{sW}, 2", f"s_cselect_b32 s91, s70, {OOB>>1:#x}"))
    return out

def a11_x(k, tile):
    fns = []
    for i in range(4):
        def f(i=i):
            k.set_m0(f"s_add_u32 m0, s49, {A11_POS[tile]*16384 + (i*1024 if P.x_out else 0)}")
            k.e(f"s_add_u32 s32, s{48 if tile == 'h' else 47}, s{92+i}")
            if tile not in (0, "h"): k.e(f"s_add_u32 s32, s32, {tile*16384}")
            k.vm(f"buffer_load_dwordx4 v{RX(False)}, {SRD_WS if tile == 'h' else XS()}, s32 offen offset:{0 if P.x_out else i*1024} sc1 lds", ("x", tile))
        fns.append(f)
    return fns

def stats_path(k, fx, S, tag, addr, tok, at=0):
    a = lambda txt, c=1: fx.add(lambda: k.e(txt), c)
    s, q = S, S + 1
    fx.add(lambda: k.wait(vm=[tag]), 1, at)
    a(f"v_add_f32 v{s}, v{s}, v{S+2}"); a(f"v_add_f32 v{q}, v{q}, v{S+3}"); fx.skip(1)
    a(f"v_permlane16_swap_b32 v{s}, v{q}", 2); a(f"v_add_f32 v{s}, v{s}, v{q}"); a(f"v_mov_b32 v{q}, v{s}"); fx.skip(1)
    a(f"v_permlane32_swap_b32 v{s}, v{q}", 2); a(f"v_add_f32 v{s}, v{s}, v{q}"); a(f"v_mov_b32 v{q}, v{s}"); fx.skip(1)
    a(f"v_permlane16_swap_b32 v{s}, v{q}", 2)
    ln_finish(a, s, q); a(f"v_rsq_f32 v{q}, v{q}", 2); fx.skip(1)
    fx.add(lambda: (k.ds(f"ds_write_b64 v{addr}, {vr(s,2)} offset:{tok*8}", ("saw", tag)), k.mark(("saw", tag))))

def a11_early(k, later=False):
    fns = a11_x(k, A11_ORDER[0]) + [lambda: k.vm(f"buffer_load_dwordx4 {vr(A_ST,4)}, v{A_U}, {SRD_WS}, s90 offen offset:2048 sc1", "st0")] + a11_x(k, A11_ORDER[1])
    if later: return fns
    for f in fns: f()

def a11_main(k):
    R = R1; order = A11_ORDER
    steps = [(t, s) for t in order for s in range(16)]
    accof = lambda t: A_ACC + 12 * (order.index(t) % 3)
    def xread(i):
        t, s = steps[i]
        off = A11_POS[t] * 16384 + (s >> 1) * 1024
        k.ds(f"ds_read_b128 {vr(A_XF+4*(i%4),4)}, v{R.XO if s&1 else R.XE} offset:{off}", ("xf", i))
    mains = []; fixed = {}; gap_of = {}
    need_sa = {order[1]: ["st0"], order[2]: ["st1"], order[3]: [], "h": []}
    for i, (t, s) in enumerate(steps):
        acc = accof(t); xf = vr(A_XF + 4*(i % 4), 4)
        c = lambda r, s=s: "0" if s == 0 else vr(r, 4)
        ms = []
        if t != "h": ms.append(f"{MF16} {vr(acc,4)}, {ar(12*s,4)}, {xf}, {c(acc)}")
        ms.append(f"{MF16} {vr(acc+4,4)}, {ar(12*s+4,4)}, {xf}, {c(acc+4)}")
        ms.append(f"{MF16} {vr(acc+8,4)}, {xf}, {ar(12*s+8,4)}, {c(acc+8)}")
        gap_of[(t, s)] = len(mains)
        for m in ms: mains.append(lambda m=m: k.e(m))
        last = len(mains) - 1
        fl_ = fixed.setdefault(last, [])
        if i + 1 < len(steps): fl_.append((0, lambda i=i: k.wait(lg=[("xf", i + 1)])))
        j = i + 4
        if j < len(steps):
            tj, sj = steps[j]
            if sj == 0:
                def bar(tj=tj):
                    k.wait(vm=[("x", tj)], lg=[("saw", n) for n in need_sa[tj]]); k.e("s_barrier"); k.mark(("bar", tj))
                fixed.setdefault(gap_of[(t, s)], []).append((1, bar))
            fixed[last].append((1, lambda j=j: xread(j)))
    fx = Flex(); fz = Flex(); fz2 = Flex(); fy = Flex(); fm = Flex()
    k.e(f"s_and_b32 s32, s{sW}, 1", "s_lshl_b32 s32, s32, 7", f"v_add_u32 v6, s32, v{R.SA}")
    o_bases(k, 1)
    stats_path(k, fy, A_ST, "st0", 6, 48)
    g1 = P.a1_late_gap
    fm.add(lambda: (k.wait(vm=[("xst", 1)]), k.flag(2)), 3, P.a1_flag_gap)
    fm.add(lambda: (k.poll_issue(A_PX, "px2"), setattr(k, "bg_held", not P.a1_bg_early)), 1, g1 - P.a1_poll_lead)
    fm.add(lambda: k.poll_check(A_PX, "px2", 2), 2, g1)
    fm.add(lambda: k.vm(f"buffer_load_dwordx4 {vr(56,4)}, v{A_U}, {SRD_WS}, s90 offen sc1", "st1"))
    for t in order[2:4]:
        for f in a11_x(k, t): fm.add(f, 2); fm.skip(P.a1_xgap)
    for f in wo_lanes(k): fy.add(f)
    fy.add(lambda: k.mark("wolanes"), 0)
    fm.dep("wolanes")
    for p in range(2):
        fm.add(lambda p=p: (k.e(f"s_add_u32 s58, s64, {BX2() + (p << (2 + LSH()))}"), k.vm(f"buffer_load_dwordx4 {vr(RES+4*p,4)}, v{W_UA}, {XS()}, s58 offen sc1", "res")), 2); fm.skip(P.a1_xgap)
    def halo_poll():
        k.poll_addr(A_PX, 16, 7)
        k.e(f"s_mov_b32 s{sPO}, s52", f"s_min_u32 s50, s{sB}, 1")
        k.poll_issue(A_PX, "phx"); k.bg_held = False
    fm.add(halo_poll, 3)
    for c in P.t1_a1:
        if c == "o": fm.add(lambda: k.touch(60, "p", ["s_mov_b32 s32, s53"]), 6)
        if c == "x": fm.add(lambda: k.touch(62, "q", [f"s_add_u32 s32, s64, {BX2()}"]), 6)
        if c == "s": fm.add(lambda: k.touch(64, "t", [f"s_add_u32 s32, s65, {BS1[1]}"]), 4)
    for f in blanks(k, 1): fm.skip(P.a1_xgap); fm.add(f, 3)
    stats_path(k, fy, 56, "st1", 6, 16, g1 + 26)
    fm.dep(("bar", order[2]))
    fm.add(lambda: k.poll_check(A_PX, "phx", "s50"), 2)
    fm.add(lambda: k.vm(f"buffer_load_dwordx4 {vr(A_ST,4)}, v{A_U+1}, {SRD_WS}, s51 offen sc1", "sth"))
    for f in a11_x(k, "h"): fm.add(f, 2); fm.skip(P.a1_xgap)
    stats_path(k, fy, A_ST, "sth", R.SA, 0, gap_of[(order[3], P.a1_sth)])
    k.per = dict(P.per_a1); k.bg_held = True
    b5 = batch(k, 5)
    mix = [(f, "s2", ("gw", 4), None) for f in batch(k, 4)] + [(f, "s2", ("gw", 5), None) for f in b5[:3]]
    ww = [(f, "s4", "wow", None) for f in wow(k)]
    while mix or ww:
        k.bg += ww[:2]; ww = ww[2:]
        if mix: k.bg.append(mix.pop(0))
    bg_batches(k, [0], "s2", lambda b: ("bar", order[3]))
    bg_batches(k, [1], "s2", lambda b: ("bar", "h"))
    bg_batches(k, [2, 3], "s2", lambda b: "wobar")
    bg_list(k, b5[3:], "s2", ("gw", 5), "wobar")
    if P.dn1_agpr:
        for j, f in enumerate(regloads(k, sDS, 16*1024, lambda j: ar(4*j, 4), 40, "dnr", tagf=lambda j: ("dnr", 8 + j // 2))): k.bg_add(f, "s4", ("dnr", 8 + j // 2), "gemm_done")
    bg_batches(k, [6, 7, 8, 9], "s2", lambda b: "gubar")
    A = lambda t: (accof(t) if t != "h" else None, accof(t) + 4, accof(t) + 8)
    for n in range(4): fix(k, R, fx, order[n], A(order[n]), gap_of[(order[n + 1], 1 if n < 3 else 2)], False)
    attn(k, R, fz, 3, R.ATT[0]); attn(k, R, fz2, 2, R.ATT[1]); ostore(k, fz2, 1)
    attn(k, R, fz, 1, R.ATT[0])
    fx.dep(("saw", "sth"))
    for f in fix_reads(k, R, "h", A_STA): fx.add(f)
    fx.dep("gemm_done")
    fix(k, R, fx, "h", A("h"), 0, False, pre=True); attn(k, R, fz2, 0, R.ATT[1]); ostore(k, fz2, 0)
    f3 = Flex(); f3.dep(("ost", 1)); f3.skip(P.l1_flag_delay)
    f3.add(lambda: (k.wait(vm=[("ost", 1)]), k.flag(1, 89), k.mark("oflag1")), 3)
    f3.dep(("attn", 0)); f3.add(lambda: wo_prepoll(k, 1))
    k.wait(vm=[("x", order[0])]); k.e("s_barrier")
    for i in range(4): xread(i)
    k.wait(lg=[("xf", 0)])
    k.stamp("a1 first")
    if k.stamping or P.jitter:
        for t in order[1:]: fixed.setdefault(gap_of[(t, 0)], []).append((0, lambda t=t: k.stamp(f"a1 t{t}")))
        for g in range(6, 224, 12): fixed.setdefault(g, []).append((0, lambda g=g: k.stamp(f"fina {g}")))
    run_gaps(k, mains, fixed, [fm, f3, fy, fx, fz2, fz], 2, over=lambda i: i >= P.a1_over)
    print("a11 left:", len(fm), len(fy), len(fx), len(fz), len(fz2), len(k.bg), {n: g for n, g in k.marks.items() if isinstance(n, tuple) and n[0] in ("fix", "attn", "saw", "ost")})
    k.mark("gemm_done"); k.bg_held = P.a1_tailhold
    k.stamp("a1 gemm")
    drain([fm, fy, fx, fz, fz2, f3], k)
    for n in range(2): assert k.marks[("fix", order[n])] < gap_of[(order[n + 3], 0)], "accumulator reused too early"
    k.stamp("a1 end")
P.a1_flag_gap, P.a1_late_gap, P.a1_poll_lead, P.l1_flag_delay, P.a1_over = 8, 36, 18, 14, 24
P.a1_bg_early = False; P.a1_salead = 12; P.a1_tailhold = True; P.touch1 = 1; P.t1_a1 = ''; P.t1_dn = ''; P.a1_xgap = 3; P.a1_sth = 0
P.per_a1 = {"s2": 80, "s4": 50}

R_W0, R_W1, R_RD, R_ST, R_OUT = 3, 4, 5, 6, 7
def RX(final): return vL16 if not P.x_out else (29 if final else R_OUT)
def red_setup(k, posA, dAB, final):
    x, y, z, u = 28, 29, 30, 31
    k.e(f"s_add_u32 s32, s{sGL}, {posA*16384}", f"v_add_u32 v{R_W0}, s32, v{vL16}", f"v_xor_b32 v{R_W1}, 128, v{R_W0}")
    k.e(f"v_and_b32 v{x}, 7, v1", f"v_lshrrev_b32 v{y}, 3, v1", f"s_lshl_b32 s32, s{sW}, 7", f"v_lshl_add_u32 v{z}, v{x}, 4, s32",
        f"v_bfe_u32 v{u}, v1, 4, 1", f"v_lshlrev_b32 v{R_RD}, 7, v{u}", f"v_xor_b32 v{z}, v{z}, v{R_RD}",
        f"v_bfe_u32 v{R_RD}, v1, 3, 2", f"v_lshl_add_u32 v{z}, v{R_RD}, 10, v{z}", f"v_lshrrev_b32 v{R_RD}, 5, v1",
        f"v_mul_u32_u24 v{R_RD}, {dAB*16384}, v{R_RD}", f"v_add_u32 v{z}, v{z}, v{R_RD}", f"v_add_u32 v{R_RD}, {posA*16384}, v{z}")
    k.e(f"v_lshlrev_b32 v{z}, 4, v{x}", f"v_lshl_add_u32 v{z}, v{u}, 2, v{z}", f"v_and_b32 v{u}, 0x28, v1",
        f"v_cmp_eq_u32 vcc, 0, v{u}", f"v_mov_b32 v{u}, {OOB:#x}", f"v_cndmask_b32 v{R_ST}, v{u}, v{z}, vcc")
    if final: k.e(f"v_lshlrev_b32 v{z}, 10, v{x}", f"v_lshl_add_u32 v{R_OUT}, v{y}, 4, v{z}")
    if P.x_out: k.e(f"v_lshlrev_b32 v{z}, 10, v{y}", f"v_lshl_add_u32 v{RX(final)}, v{x}, 4, v{z}")

def red_bases(k):
    k.e(f"s_lshl_b32 s32, s{sB}, 3", f"s_add_u32 s32, s32, s{sW}", "s_lshl_b32 s55, s32, 13", f"s_lshl_b32 s33, s{sCS}, {CSH()}", "s_add_u32 s55, s55, s33")
    k.e("s_lshl_b32 s57, s32, 13", f"s_lshl_b32 s33, s{sCS}, 7", "s_add_u32 s57, s57, s33")
    k.e(f"s_lshl_b32 s56, s{sB}, 12", f"s_lshr_b32 s33, s{sCS}, 1", "s_lshl_b32 s33, s33, 9", "s_add_u32 s56, s56, s33",
        f"s_and_b32 s33, s{sCS}, 1", "s_lshl_b32 s33, s33, 3", "s_add_u32 s56, s56, s33", f"s_lshl_b32 s33, s{sW}, 7", "s_add_u32 s56, s56, s33")

def red_writes(k, acc, g, off, dAB):
    return [lambda q=q: k.ds(f"ds_write_b128 v{R_W1 if (q>>1)&1 else R_W0}, {vr(acc+4*q,4)} offset:{off + (q>>2)*dAB*16384 + (q&3)*1024}", ("rw", g)) for q in range(8)]
def red_reads(k, g, T, off):
    return [lambda w=w, hf=hf: k.ds(f"ds_read_b128 {vr(T+8*w+4*hf,4)}, v{R_RD} offset:{off + w*4096 + hf*512}", ("rr", g, w)) for w in range(4) for hf in range(2)]

def red_finish(k, fx, g, mm, T, xdst, stdst, final, pk):
    a = lambda txt, c=1: fx.add(lambda: k.e(txt), c)
    R = RES + 4 * mm
    def add8(d, s):
        if pk:
            for i in range(0, 8, 2): a(f"v_pk_add_f32 {vr(d+i,2)}, {vr(d+i,2)}, {vr(s+i,2)}")
        else:
            for i in range(8): a(f"v_add_f32 v{d+i}, v{d+i}, v{s+i}")
    fx.add(lambda: k.wait(lg=[("rr", g, 1)]))
    add8(T, T + 8)
    for i in range(4): a(f"v_lshlrev_b32 v{T+8+2*i}, 16, v{R+i}"); a(f"v_and_b32 v{T+9+2*i}, 0xffff0000, v{R+i}")
    add8(T, T + 8)
    fx.add(lambda: k.wait(lg=[("rr", g, 3)]))
    add8(T + 16, T + 24); add8(T, T + 16)
    for i in range(4): a(f"v_cvt_pk_bf16_f32 v{R+i}, v{T+2*i}, v{T+2*i+1}")
    if final:
        fx.add(lambda: (k.e(f"s_add_u32 s32, s57, {mm*32768}"), k.vm(f"buffer_store_dwordx4 {vr(R,4)}, v{R_OUT}, {SRD_OUT}, s32 offen {P.outm[g]}", ("xst", g))))
        return
    fx.add(lambda: (k.e(f"s_add_u32 s32, s55, {xdst + mm*32768}"), k.dstore(f"buffer_store_dwordx4 {vr(R,4)}, v{RX(final)}, {XS()}, s32 offen", ("xst", g))), 2)
    s, q = T + 32, T + 33
    a(f"v_add_f32 v{s}, v{T}, v{T+1}"); a(f"v_mul_f32 v{q}, v{T}, v{T}"); a(f"v_fmac_f32 v{q}, v{T+1}, v{T+1}")
    for i in range(2, 8): a(f"v_add_f32 v{s}, v{s}, v{T+i}"); a(f"v_fmac_f32 v{q}, v{T+i}, v{T+i}")
    fx.skip(1)
    a(f"v_add_f32_dpp v{s}, v{s}, v{s} row_ror:8 row_mask:0xf bank_mask:0xf"); a(f"v_add_f32_dpp v{q}, v{q}, v{q} row_ror:8 row_mask:0xf bank_mask:0xf")
    fx.skip(1)
    a(f"v_permlane16_swap_b32 v{s}, v{q}", 2); a(f"v_add_f32 v{s}, v{s}, v{q}"); a(f"v_mov_b32 v{q}, v{s}"); fx.skip(1)
    a(f"v_permlane32_swap_b32 v{s}, v{q}", 2); a(f"v_add_f32 v{s}, v{s}, v{q}")
    fx.add(lambda: (k.e(f"s_add_u32 s32, s56, {stdst + mm*2048}"), k.dstore(f"buffer_store_dword v{s}, v{R_ST}, {SRD_WS}, s32 offen", ("xst", g)), k.mark(("xst", g))), 2)

def merge(k, fx, extra, first=0):
    extra = list(extra)
    items = [it for it in fx.items if it[0] != "skip"]; fx.items = []
    per = max(1, (len(items) - first) // max(1, len(extra)))
    for n, it in enumerate(items):
        if n >= first and (n - first) % per == 0 and extra: extra.pop(0)()
        it[1](); k.bg_step()
    for f in extra: f(); k.bg_step()

def wo(k, layer):
    BF, WQ, ACC, T, PA, NQ = 32, 160, 192, 208, A_PA, 8
    state = {}
    def bload(sx):
        k.set_s(f"s_add_u32 s58, s59, {(sx & ~1)*2048}")
        k.vm(f"buffer_load_dwordx4 {vr(BF+4*sx,4)}, v{W_OA}, {SRD_WS}, s58 offen offset:{(sx%2)*2048} sc1", ("b", sx))
    def wread(n): k.ds(f"ds_read_b128 {vr(WQ+4*(n%NQ),4)}, v{W_RB} offset:{n*1024}", ("wq", n))
    k.wait(vm=["wow"]); k.e("s_barrier"); k.mark("wobar")
    k.stamp("wl bar")
    for n in range(NQ): wread(n)
    btxt = lambda sx: [f"s_add_u32 s99, s59, {sx*2048}", f"buffer_load_dwordx4 {vr(BF+4*sx,4)}, v{W_OA}, {SRD_WS}, s99 offen sc1"]
    bchk = lambda sx: k.valid([f"v_cmp_eq_u32 vcc, -1, v{BF+4*sx}"], btxt(sx))
    ptxt = f"buffer_load_dword v{T+20}, v{T+21}, {SRD_WS}, s59 offen sc1"
    if P.tags:
        k.e(f"v_lshlrev_b32 v{T+21}, 8, v{PA}")
        k.e(f"v_or_b32 v{T+21}, v{T+21}, v{PA}", f"v_and_b32 v{T+21}, 0x80007c00, v{T+21}")
        k.poll_check(PA, "po1", 1)
        k.vm(ptxt, "probe")
        for sx in range(P.wo_spec): bload(sx)
        k.e(f"s_lshl_b32 s32, s{sC}, 1", f"s_and_b32 s33, s{sW}, 1", "s_add_u32 s32, s32, s33", "s_lshl_b32 s32, s32, 7", f"s_add_u32 s{sPO}, s32, {fl(layer, FL_O)}")
    else:
        k.e(f"s_add_u32 s{sFO}, s66, {fl(layer, FL_X1)}")
        k.codepf(96)
        if P.wo_setup_first == 2: gu_setup(k, layer)
        k.wait(vm=[("ost", 0)]); k.stamp("wl ack"); k.flag(2, 89)
        k.e(f"s_cmp_lt_u32 s{sW}, 2", f"s_cbranch_scc1 L_wo_late{layer}")
        q0 = list(k.vmq)
        k.poll_check(PA, "po1", 1)
        for sx in range(P.wo_lead): bload(sx)
        if P.wo_setup_first == 1: gu_setup(k, layer)
        k.e(f"s_branch L_wo_join{layer}")
        k.label(f"L_wo_late{layer}")
        k.vmq = list(q0)
        if P.wo_setup_first == 1: gu_setup(k, layer)
        k.poll_issue(PA, "po2"); k.poll_wait(PA, "po2", 2, 157); k.stamp("wl go")
        for sx in range(P.wo_lead): bload(sx)
        k.label(f"L_wo_join{layer}")
    if P.tags or not P.wo_setup_first: gu_setup(k, layer)
    k.stamp("wo issued")
    mains = []; fixed = {}
    for n in range(64):
        sx, j = divmod(n, 4)
        mains.append(lambda n=n, sx=sx, j=j: k.e(f"{MF16} {vr(ACC+4*j,4)}, {vr(WQ+4*(n%NQ),4)}, {vr(BF+4*sx,4)}, {'0' if sx == 0 else vr(ACC+4*j,4)}"))
        fl_ = fixed.setdefault(n, [])
        if n < 63: fl_.append((0, lambda n=n: k.wait(vm=[("b", (n + 1) // 4)] if (n + 1) % 4 == 0 else None, lg=[("wq", n + 1)])))
        if P.tags and n < 63 and (n + 1) % 4 == 0: fl_.append((1, lambda n=n: bchk((n + 1) // 4)))
        if P.tags and n == 42: fl_.append((1, lambda: k.poll_issue(PA, "px1")))
        if n + NQ < 64: fl_.append((1, lambda n=n: wread(n + NQ)))
        if n % P.wo_bstep == 0 and P.wo_lead + n // P.wo_bstep < 16: fl_.append((1, lambda n=n: bload(P.wo_lead + n // P.wo_bstep)))
    fx = Flex()
    a = lambda txt, c=1, at=0: fx.add(lambda: k.e(txt), c, at)
    fx.add(lambda: k.wait(vm=["res"]), 1, 8)
    for i in range(8): a(f"v_lshlrev_b32 v{T+2*i}, 16, v{RES+i}"); a(f"v_and_b32 v{T+2*i+1}, 0xffff0000, v{RES+i}")
    k.per = dict(P.per_wo[layer]); k.bg_held = False; k.bg_next = k.t + P.wo_bg_delay
    if P.tags:
        k.wait(vm=["probe"])
        k.valid([f"v_cmp_eq_u32 vcc, -1, v{T+20}"], [ptxt] + sum([btxt(x) for x in range(P.wo_spec)], []))
        state["fresh"] = True
        for sx in range(P.wo_spec, P.wo_lead): bload(sx)
    k.wait(vm=[("b", 0)], lg=[("wq", 0)])
    if P.tags: bchk(0)
    k.stamp("wo first")
    fixed[P.wo_bg_stop].append((0, lambda: setattr(k, "bg_held", True)))
    run_gaps(k, mains, fixed, [fx], 2)
    drain([fx], k)
    k.stamp("wo gemm")
    for i in range(0, 16, 2): k.e(f"v_pk_add_f32 {vr(T+i,2)}, {vr(T+i,2)}, {vr(ACC+i,2)}")
    for p in range(2):
        k.e(f"s_add_u32 s58, s64, {BX2() + (p << (2 + LSH()))}")
        for i in range(4): k.e(f"v_cvt_pk_bf16_f32 v{RES+4*p+i}, v{T+8*p+2*i}, v{T+8*p+2*i+1}")
        k.dstore(f"buffer_store_dwordx4 {vr(RES+4*p,4)}, v{W_UA}, {XS()}, s58 offen", "xst")
    S, Q = T + 16, T + 18
    k.e(f"v_pk_add_f32 {vr(S,2)}, {vr(T,2)}, {vr(T+2,2)}", f"v_pk_mul_f32 {vr(Q,2)}, {vr(T,2)}, {vr(T,2)}", f"v_pk_fma_f32 {vr(Q,2)}, {vr(T+2,2)}, {vr(T+2,2)}, {vr(Q,2)}")
    for i in range(4, 16, 2): k.e(f"v_pk_add_f32 {vr(S,2)}, {vr(S,2)}, {vr(T+i,2)}", f"v_pk_fma_f32 {vr(Q,2)}, {vr(T+i,2)}, {vr(T+i,2)}, {vr(Q,2)}")
    k.e(f"v_add_f32 v{S}, v{S}, v{S+1}", f"v_add_f32 v{Q}, v{Q}, v{Q+1}", f"s_add_u32 s58, s65, {BS1[layer]}",
        f"v_permlane16_swap_b32 v{S}, v{Q}", f"v_add_f32 v{S}, v{S}, v{Q}", f"v_mov_b32 v{Q}, v{S}", f"v_permlane32_swap_b32 v{S}, v{Q}", f"v_add_f32 v{S}, v{S}, v{Q}")
    k.dstore(f"buffer_store_dword v{S}, v{W_SA}, {SRD_WS}, s58 offen", "xst")
    key = lambda it: it[2][1] if (isinstance(it[2], tuple) and it[2][0] == "gw") else 11.5
    k.bg.sort(key=key)
    print(f"wo{layer} done, background left:", [it[2] for it in k.bg][::4])
    k.bg_burst(P.wo_win[layer])
    k.stamp("wo end")
P.wo_bg_delay = 750; P.wo_bg_stop = 63; P.wo_lead = 6; P.wo_spec = 3; P.gu_spec = 3; P.wo_bstep = 2
P.wo_poll_gap = 1; P.wo_late_gap = 7; P.wo_hold = True; P.wo_win = [4, 4]; P.wo_var = 'B'; P.wo_prew = 2
P.per_wo = [{"s2": 20, "s4": 20}] * 2

G_RB, G_C1, G_VV, G_AUG, G_X, G_ACC, G_WF, G_T = 3, 6, 7, 28, 32, 160, 224, 240
D_WV, D_BF, D_ACC, D_T, D_WF, D_RB, D_PA = 32, 64, 128, 192, 228, 112, 115
DN_SEQ = [(g, e) for g in range(2) for e in range(28)]
DN_GROUPS = [1, 0]
def h_loader(k, layer):
    def bload(i):
        if i == 0:
            k.e(f"s_mul_i32 s32, s{sB}, {224*KB}", f"s_mul_i32 s33, s{sW}, {28*KB}", "s_add_u32 s32, s32, s33", f"s_add_u32 s59, s32, {BH[layer]}")
            for p in range(4):
                k.e(f"s_add_u32 s32, s{sCS}, {p}", f"s_and_b32 s32, s32, {3 if P.hrot else 0}", f"s_mul_i32 s32, s32, {7*KB}", f"s_add_u32 s{34+p}, s59, s32")
                if not P.hrot: k.e(f"s_add_u32 s{34+p}, s{34+p}, {7*KB*p}")
        g, e = DN_SEQ[i]; p, tl = divmod(KK_OF[e], 7)
        k.set_s(f"s_add_u32 s58, s{34+p}, {DN_GROUPS[g] * 112 * KB + (tl & 4) * 1024}")
        k.vm(f"buffer_load_dwordx4 {vr(D_BF+4*(i%P.dn_lead),4)}, v{vL16}, {SRD_WS}, s58 offen offset:{(tl & 3)*1024} sc1", ("b", i))
    return bload

def gu_setup(k, layer):
    T = G_T; XA = T + 3
    k.e(*gu_tile("s50"))
    k.e(f"v_and_b32 v{T}, 31, v1")
    k.e(f"v_mov_b32 v{G_RB}, v{vL16}", f"v_add_u32 v{G_RB+1}, 0x10000, v{vL16}", f"v_add_u32 v{G_RB+2}, 0x20000, v{vL16}")
    k.e(f"v_lshrrev_b32 v{T+1}, 5, v1", f"v_lshlrev_b32 v{G_AUG+3}, 4, v{T}", f"v_lshl_add_u32 v{G_AUG+3}, v{T+1}, 10, v{G_AUG+3}")
    k.e(f"v_lshrrev_b32 v{XA}, 3, v{T}", f"v_lshlrev_b32 v{XA}, 13, v{XA}", f"v_lshl_add_u32 v{XA}, v{T+1}, {LSH()}, v{XA}",
        f"v_and_b32 v{T}, 7, v1", f"v_lshl_add_u32 v{XA}, v{T}, 4, v{XA}")
    k.e("s_lshl_b32 s32, s50, 11", f"s_add_u32 s51, s32, {BS1[layer]}")
    k.e("s_lshl_b32 s32, s50, 15", f"s_add_u32 s52, s32, {BX2()}", "s_add_u32 s53, s52, 4096")
    k.e(*h_base("s54", layer))
    k.e("s_lshr_b32 s32, s50, 1", "s_lshl_b32 s32, s32, 4", f"s_add_u32 s32, s32, s{sM}",
        "s_lshl_b32 s32, s32, 1", "s_and_b32 s33, s50, 1", "s_add_u32 s32, s32, s33", "s_lshl_b32 s32, s32, 2", f"s_add_u32 s81, s32, {fl(layer, FL_H)}")

def gu(k, layer):
    T = G_T; XA = T + 3; PA = T + 2
    if P.tags: k.poll_check(A_PA, "px1", 1)
    else:
        def pa():
            k.poll_addr(PA, 16)
            k.e("s_lshl_b32 s32, s50, 6", f"s_add_u32 s{sPO}, s32, {fl(layer, FL_X1)}")
        if not P.gu_pa_late: pa()
        k.wait(vm=["xst"]); k.flag(1)
        if P.gu_pa_late: pa()
        k.stamp("x1 flag")
        if not P.gu_bar_first: k.poll_issue(PA, "px1")
    k.e(f"s_mov_b32 s{sFO}, s81")
    seq = [(t, ks) for ks in range(33) for t in range(3)] + [(t, ks) for t in range(3, 7) for ks in range(33)]
    accof = {0: 0, 1: 1, 2: 2, 3: 3, 4: 0, 5: 1, 6: 2}
    NW = P.gu_nw
    WQ = [G_WF, G_WF + 4, G_WF + 8, G_WF + 12, T + 12]
    def wread(n):
        slot = (n % 160) * 1024
        k.ds(f"ds_read_b128 {vr(WQ[n%NW],4)}, v{G_RB + (slot>>16)} offset:{slot & 0xffff}", ("wf", n))
    BARS = P.gu_bars[layer]
    cover = lambda bi: [("gw", b) for b in range(bi, min([x for x in BARS if x > bi] + [15]))]
    def ringbar():
        k.wait(vm=cover(0)); k.e("s_barrier"); k.mark("gubar")
        for n in range(NW): wread(n)
    if P.gu_bar_first: ringbar(); k.poll_issue(PA, "px1")
    if not P.tags: k.poll_wait(PA, "px1", 1, 20)
    k.stamp("gu go")
    xoff = lambda kg: ((kg >> 2) << CSH()) + ((kg & 3) << (1 + LSH()))
    xtxt = lambda kg: f"buffer_load_dwordx4 {vr(G_X+4*kg,4)}, v{XA}, {XS()}, s{52 + (xoff(kg) >> 12)} offen offset:{xoff(kg) & 4095} sc1"
    def xload(kg): k.vm(xtxt(kg), ("gx", kg))
    xchk = lambda kg: k.valid([f"v_cmp_eq_u32 vcc, -1, v{G_X+4*kg}"], [xtxt(kg)])
    stxt = [f"buffer_load_dwordx4 {vr(T+4+4*h,4)}, v{G_AUG+3}, {SRD_WS}, s51 offen offset:{512*h} sc1" for h in range(2)]
    if P.tags:
        for t_ in stxt: k.vm(t_, "gst")
        for kg in range(P.gu_spec): xload(kg)
        k.wait(vm=["gst"])
        k.valid([f"v_max3_u32 v{T}, v{T+4}, v{T+6}, v{T+8}", f"v_max_u32 v{T}, v{T}, v{T+10}", f"v_cmp_eq_u32 vcc, -1, v{T}"],
                stxt + [xtxt(x) for x in range(P.gu_spec)])
        k.stamp("gu probe")
        for kg in range(P.gu_spec, P.gu_lead): xload(kg)
    else:
        for kg in range(P.gu_lead): xload(kg)
        for t_ in stxt: k.vm(t_, "gst")
    if not P.gu_bar_first: ringbar()
    mains = []; fixed = {}
    xpos = {}
    for kg in range(P.gu_lead, 32): xpos.setdefault(int((kg - P.gu_lead) * P.gu_xstep), []).append(kg)
    for n, (t, ks) in enumerate(seq):
        acc = G_ACC + 16 * accof[t]
        b = vr(G_AUG, 4) if ks == 32 else vr(G_X + 4*ks, 4)
        c = "0" if ks == 0 else vr(acc, 16)
        mains.append(lambda n=n, acc=acc, b=b, c=c: k.e(f"{MF32} {vr(acc,16)}, {vr(WQ[n%NW],4)}, {b}, {c}"))
        fl_ = fixed.setdefault(n, [])
        if n + 1 < len(seq):
            t2, ks2 = seq[n + 1]
            need = [("gx", ks2)] if (t2 == 0 and ks2 < 32) else None
            fl_.append((0, lambda n=n, need=need: k.wait(vm=need, lg=[("wf", n + 1)])))
            if need and P.tags: fl_.append((2, lambda ks2=ks2: xchk(ks2)))
        j = n + NW
        if j < len(seq):
            if j % 16 == 0 and j // 16 in BARS:
                fl_.append((2, lambda bi=j//16: (k.wait(vm=cover(bi)), k.e("s_barrier"), [k.mark(("gbar", b)) for b in range(bi + 1)])))
            fl_.append((1, lambda j=j: wread(j)))
        for kg in xpos.get(n, []): fl_.append((1, lambda kg=kg: xload(kg)))
    xend = max(xpos)
    tail = [it for it in k.bg if it[2] == "dna" or it[2][0] == "dnr"]; k.bg = [it for it in k.bg if not (it[2] == "dna" or it[2][0] == "dnr")]
    bg_batches(k, range(10, 15), "s2", lambda b: ("gbar", b - 8))
    first, ratio = P.gu_mix[layer]
    mid = k.bg[first:]; k.bg = k.bg[:first]; acc_ = 0.0
    while mid or tail:
        if mid: k.bg.append(mid.pop(0))
        acc_ += ratio
        while tail and (acc_ >= 1 or not mid): k.bg.append(tail.pop(0)); acc_ -= 1
    direct = layer == 1 and P.dn1_agpr
    if not direct: bg_batches(k, range(15, 23), "s4", lambda b: ("gbar", b - 8))
    k.per = dict(P.per_guA[layer]); k.bg_held = False; k.bg_next = k.t + P.gu_bg_delay
    fixed[xend].append((0, lambda: setattr(k, "per", dict(P.per_guB[layer]))))
    fv = Flex()
    dv = regloads(k, sDS, 48*1024, lambda j: vr(D_WV + 4*j, 4), 8, "dnv")
    k.hload = h_loader(k, layer)
    if direct: pass
    elif P.HPRE[layer]:
        bg_list(k, dv, "s4", "dnv", "xdead")
        fixed[207].append((0, lambda: k.mark("xdead")))
    else:
        for j, f in enumerate(dv): fv.add(f, 1, 198 + 2 + 3*j)
    fx = Flex()
    a = lambda txt, c=1, at=0: fx.add(lambda: k.e(txt), c, at)
    fx.add(lambda: k.wait(vm=["gst"]), 1, 3 * P.gu_lead)
    a(f"v_add_f32 v{T+4}, v{T+4}, v{T+6}"); a(f"v_add_f32 v{T+5}, v{T+5}, v{T+7}"); a(f"v_add_f32 v{T+8}, v{T+8}, v{T+10}"); a(f"v_add_f32 v{T+9}, v{T+9}, v{T+11}")
    a(f"v_add_f32 v{T+4}, v{T+4}, v{T+8}"); a(f"v_add_f32 v{T+5}, v{T+5}, v{T+9}"); fx.skip(1)
    a(f"v_permlane32_swap_b32 v{T+4}, v{T+5}", 2); a(f"v_add_f32 v{T+4}, v{T+4}, v{T+5}"); a(f"v_mov_b32 v{T+5}, v{T+4}"); fx.skip(1)
    a(f"v_permlane32_swap_b32 v{T+4}, v{T+5}", 2)
    ln_finish(a, T + 4, T + 5)
    a(f"v_mov_b32 v{G_VV}, v{T+5}")
    a(f"v_rsq_f32 v{G_C1}, v{T+5}", 2); a(f"v_cvt_pk_bf16_f32 v{G_AUG}, v{T+4}, v{T+4}"); a(f"v_mul_f32 v{G_C1}, {f2u(-LOG2E):#x}, v{G_C1}")
    a(f"v_and_b32 v{T+5}, 0xffff0000, v{G_AUG}"); a(f"v_sub_f32 v{T+5}, v{T+4}, v{T+5}"); a(f"v_mov_b32 v{G_AUG+2}, 0")
    a(f"v_cvt_pk_bf16_f32 v{G_AUG+1}, v{T+5}, v{G_AUG+2}"); a(f"v_mov_b32 v{G_AUG+3}, 0")
    fx.add(lambda: k.mark("aug"), 0)
    def epi(t, at):
        acc = G_ACC + 16 * accof[t]; hp = (T + 8, RES + 4)[t & 1]; E = T + 4
        if t >= 2: fx.dep(("hst", t - 2))
        if P.x_noepi: a("s_nop 0", 1, at)
        for i0 in range(0, 8 if not P.x_noepi else 0, 2):
            for i in (i0, i0 + 1): a(f"v_mul_f32 v{E+(i&1)}, v{G_C1}, v{acc+i}", 1, at)
            for i in (i0, i0 + 1): a(f"v_exp_f32 v{E+(i&1)}, v{E+(i&1)}", 2)
            for i in (i0, i0 + 1): a(f"v_mul_f32 v{E+2+(i&1)}, v{acc+i}, v{acc+8+i}")
            for i in (i0, i0 + 1): a(f"v_fma_f32 v{E+(i&1)}, v{E+(i&1)}, v{G_VV}, v{G_VV}")
            for i in (i0, i0 + 1): a(f"v_rcp_f32 v{E+(i&1)}, v{E+(i&1)}", 2)
            fx.skip(1)
            for i in (i0, i0 + 1): a(f"v_mul_f32 v{E+2+(i&1)}, v{E+2+(i&1)}, v{E+(i&1)}")
            a(f"v_cvt_pk_bf16_f32 v{hp+i0//2}, v{E+2}, v{E+3}")
        fx.add(lambda: k.mark(("epi", t)), 0)
        txt = f"buffer_store_dwordx4 {vr(hp,4)}, v{vL16}, {SRD_WS}, s{54 if t < 4 else 82} offen offset:{(t%4)*1024}"
        plain = (layer and P.h1_plain) or (not layer and P.h_touch0)
        if P.h_np > 1 and t < P.h_stag and not plain:
            fx.add(lambda: k.mark(("hrdy", t)), 0)
            fh.dep(("hrdy", t))
            for j in range(P.h_np):
                def pos(j=j):
                    n = k.nspin; k.nspin += 1
                    k.e(f"s_cmp_lg_u32 s83, {j}", f"s_cbranch_scc1 L_sk{n} ;np", txt + " sc1 ;opt", f"L_sk{n}: ;np")
                    if j == P.h_np - 1:
                        k.vmq.append(("hst", t)); k.seen.add(("hst", t)); k.phantom.add(("hst", t)); k.mark(("hst", t))
                fh.add(pos, P.h_cost)
                if j < P.h_np - 1: fh.skip(P.h_d)
            if t >= 2: pass
        else:
            k.phantom.discard(("hst", t))
            fx.add(lambda: ((k.dstore if plain else lambda x, tg: k.vm(x + " sc1", tg))(txt, ("hst", t)), k.mark(("hst", t))), 2)
    fh = Flex()
    k.e("s_add_u32 s82, s54, 4096", f"s_lshl_b32 s32, s{sW}, {max(P.h_np.bit_length() - 3, 0)}", f"s_add_u32 s32, s32, s{sM}", f"s_add_u32 s32, s32, s{sC}", f"s_and_b32 s83, s32, {P.h_np - 1}")
    end = {t: max(n for n, x in enumerate(seq) if x[0] == t) for t in range(7)}
    for t in range(6): epi(t, end[t] + 3)
    if layer == 0 and P.h_touch0 == "g": fixed[xend + 1].append((5, lambda: k.touch(T, "h", ["s_mov_b32 s32, s54"])))
    if layer == 1 and P.x1_clean:
        for p in range(2):
            fixed[P.x1_clean + 8*p].append((3, lambda p=p: (k.e(f"s_add_u32 s58, s64, {BX2()}"),
                k.vm(f"buffer_store_dwordx4 {vr(RES+4*p,4)}, v9999, {SRD_WS}, s58 offen offset:{p*512} sc1", "clean"))))
    ff = Flex(); ff.dep(("hst", 3))
    if layer == 0:
        tx = [lambda: k.touch(T, "p", [f"s_add_u32 s32, s55, {BX2()}"]), lambda: k.touch(T + 1, "s", [f"s_add_u32 s32, s56, {BS2()}"])]
        if P.x2_touch == "h3": ff.add(tx[0], 6); ff.add(tx[1], 4)
        elif isinstance(P.x2_touch, int): fixed[P.x2_touch].append((5, tx[0])); fixed[P.x2_touch + 1].append((4, tx[1]))
        if "g" in str(P.touch1):
            for f in touch_next(k, T + 2)[:2]: ff.skip(1); ff.add(f, 6)
    ff.skip(P.gu_flag_delay)
    ff.add(lambda: (k.wait(vm=[("hst", 3)]), k.flag(1)), 3)
    def hpoll():
        k.wait(vm=["touch"] if "touch" in k.seen else None)
        k.poll_addr(T, 8)
        k.e(f"s_lshl_b32 s32, s{sB}, 7", f"s_lshl_b32 s33, s{sW}, 5", "s_add_u32 s32, s32, s33", f"s_add_u32 s{sPO}, s32, {fl(layer, FL_H)}")
        k.poll_issue(T, "ph1")
    if P.HPRE[layer]:
        ff.add(hpoll, 4, P.hp_chk - 12)
        ff.add(lambda: (k.poll_check(T, "ph1", 1), setattr(k, "bg_held", True)), 3, P.hp_chk)
        for j in range(P.HPRE[layer]): ff.add(lambda j=j: k.hload(j), 2, max(208 + j, int(P.hp_chk + 1 + j * P.hp_step)))
    else: ff.add(hpoll, 4, 228)
    k.wait(vm=[("gx", 0)], lg=[("wf", 0)])
    if P.tags: xchk(0)
    k.stamp("gu first")
    if k.stamping or P.jitter:
        for g in (48, 98, 131, 164, 197): fixed[g].append((0, lambda g=g: k.stamp(f"gu m{g}")))
    fixed[93].append((0, lambda: k.marks["aug"]))
    run_gaps(k, mains, fixed, [fv, fh, ff, fx], P.gu_cap)
    print("gu left:", len(k.bg), len(fv), len(ff), len(fx), {n: g for n, g in k.marks.items() if isinstance(n, tuple) and n[0] == "hst"})
    k.stamp("gu gemm")
    for g, t in {132: 0, 165: 1, 198: 2}.items(): assert k.marks[("epi", t)] < g, "accumulator reused too early"
    epi(6, 0); drain([fh, ff, fv, fx], k)
    k.e(f"v_mov_b32 v{D_PA}, v{T}")
    k.stamp("gu end")
P.x2_touch = None; P.dn_x2 = 2; P.h_cost = 1; P.h_np = 1; P.h_d = 2; P.h_stag = 5; P.gu_mix = [(28, 1), (12, 1)]; P.hrot = 0; P.gu_bars = [[0, 2, 4, 6, 7, 8, 9, 10, 11, 12, 13, 14], [0, 3, 6, 8, 10, 12, 14]]; P.HPRE = [0, 0]; P.hp_chk = 208; P.hp_step = 2.2; P.gu_flag_delay = 10; P.gu_xstep = 2.6; P.gu_bg_delay = 300
P.per_guA = [{"s2": 120, "s4": 120}, {"s2": 160, "s4": 160}]
P.per_guB = [{"s2": 90, "s4": 55}, {"s2": 80, "s4": 50}]

def dn(k, layer):
    final = layer == 1
    NB = P.dn_lead; T = D_T
    groups = DN_GROUPS; seq = DN_SEQ; bload = k.hload
    early = Flex()
    def rb(): k.e(f"v_add_u32 v{D_RB}, s{sGL}, v{vL16}", f"v_add_u32 v{D_RB+1}, 0x10000, v{D_RB}", f"v_add_u32 v{D_RB+2}, 0x20000, v{D_RB}")
    if P.HPRE[layer]:
        for i in range(P.HPRE[layer], NB): bload(i)
        rb()
        class Rec:
            def e(self, *t):
                if any("vcc" in x or "s32" in x for x in t): early.add(lambda: k.e(*t), len(t))
                else:
                    for x in t: early.add(lambda x=x: k.e(x))
        red_setup(Rec(), 3, 1, final)
        early.add(lambda: (k.wait(vm=[("hst", 6)]), k.flag(2), k.poll_issue(D_PA, "ph2"), k.e(f"s_add_u32 s{sFO}, s89, {FL_X2 - FL_O}")), 5, P.dn_fgap)
    else:
        k.poll_check(D_PA, "ph1", 1)
        k.stamp("dn early")
        k.bg_held = True
        for i in range(P.dn_pre): bload(i)
        red_setup(k, 3, 1, final); rb()
        k.wait(vm=[("hst", 6)]); k.flag(2)
        if P.dn_pollstep is None: k.poll_issue(D_PA, "ph2")
        for i in range(P.dn_pre, NB): bload(i)
        k.e(f"s_add_u32 s{sFO}, s89, {FL_X2 - FL_O}")
    k.per = dict(P.per_dn0); k.bg_held = False
    direct = final and P.dn1_agpr
    lds = [(i, nn) for i, (g, e) in enumerate(seq) if 8 <= e < 24 and not direct for nn in range(2)]
    slot_of = {x: n for n, x in enumerate(lds)}
    NWF = 6
    def wread(n):
        i, nn = lds[n]; j = 2 * (seq[i][1] - 8) + nn; b = 15 + (j >> 2)
        ad = (b % 10) * 16384 + (j & 3) * 1024
        if seq[i][0] == 0: k.wait(vm=[("gw", b)])
        k.ds(f"ds_read_b128 {vr(D_WF+4*(n%NWF),4)}, v{D_RB + (ad>>16)} offset:{ad & 0xffff}", ("wf", n))
    def wfrag(i, nn):
        e = seq[i][1]
        if e < 8: return ar(192 + 8*e + 4*nn, 4)
        if direct: return ar(8*(e - 8) + 4*nn, 4)
        if e >= 24: return vr(D_WV + 8*(e - 24) + 4*nn, 4)
        return vr(D_WF + 4*(slot_of[(i, nn)] % NWF), 4)
    mains = []; fixed = {}
    NT = P.dn_tail
    assert NT <= 4
    order = [(i, nn) for i in range(56 - NT) for nn in range(2)] + [(i, nn) for nn in range(2) for i in range(56 - NT, 56)]
    for pos, (i, nn) in enumerate(order):
        g, e = seq[i]
        if True:
            acc = D_ACC + 32 * g + 16 * nn
            mains.append(lambda i=i, nn=nn, acc=acc, e=e: k.e(f"{MF32} {vr(acc,16)}, {wfrag(i,nn)}, {vr(D_BF+4*(i%NB),4)}, {'0' if e == 0 else vr(acc,16)}"))
            gp = len(mains) - 1; fl_ = fixed.setdefault(gp, [])
            nx = order[pos + 1] if pos + 1 < len(order) else None
            vmn = [("b", nx[0])] if (nx and nx[1] == 0) else None
            lgn = [("wf", slot_of[nx])] if nx in slot_of else None
            if nx == (24, 0) and not direct: vmn = vmn + ["dnv"]
            if direct and nx and nx[0] in range(8, 28) and nx[1] == 0: vmn = vmn + [("dnr", nx[0])]
            fl_.append((0, lambda vmn=vmn, lgn=lgn: k.wait(vm=vmn, lg=lgn)))
            ah = (i + 2, nn)
            if ah in slot_of: fl_.append((1, lambda n=slot_of[ah]: wread(n)))
    nxt = NB; pend = 0
    for i in range(len(seq)):
        fl_ = fixed[2*i + 1]
        if i == P.DN_LATE[layer]: fl_.append((2, lambda: (k.poll_check(D_PA, "ph2", 2), k.stamp("dn late"), k.mark("late"))))
        n = 0
        while nxt < len(seq) and nxt <= i + NB and n < 2 and (nxt < 16 or i >= P.DN_LATE[layer]):
            fl_.append((1, lambda j=nxt: bload(j))); nxt += 1; n += 1
        if i == P.dn_pollstep and not P.HPRE[layer]: fl_.append((1, lambda: k.poll_issue(D_PA, "ph2")))
        if nxt == len(seq) and not pend: pend = 2*i + 2
    if not final: fixed[22].append((5, lambda: k.codepf(192)))
    fixed[20].append((1, lambda: k.e("s_barrier")))
    for mm in range(2):
        fixed[40 + 4*mm].append((2, lambda mm=mm: (k.e(f"s_add_u32 s32, s55, {BX2() + mm*32768}"),
                                                   k.vm(f"buffer_load_dwordx4 {vr(RES+4*mm,4)}, v{RX(final)}, {XS()}, s32 offen sc1", "res"))))
    fw = Flex(); fs = Flex()
    for q, f in enumerate(red_writes(k, D_ACC, 0, 0, 1)): fw.add(f, 1, 58 + 2*q)
    fw.add(lambda: (k.wait(lg=[("rw", 0)]), k.e("s_barrier")), 2, 76)
    for f in red_reads(k, 0, T, 0): fw.add(f, 2)
    fw.add(lambda: k.wait(vm=["res"]))
    red_finish(k, fw, 0, groups[0], T, BX2(), BS2(), final, False)
    if not final:
        fw.add(lambda: k.vm(f"buffer_store_dwordx4 {vr(RES+4,4)}, v{RX(final)}, {SRD_WS}, s72 offen sc1", "hxs"))
        fw.add(lambda: k.vm(f"buffer_store_dword v{T+32}, v{R_ST}, {SRD_WS}, s73 offen sc1", "hxs"))
        fw.skip(P.dn_flag_delay); fw.add(lambda: (k.wait(vm=[("xst", 0)]), k.flag(1)), 3)
        if P.x2_touch == "dn":
            fixed[P.dn_x2].append((5, lambda: k.touch(226, "p", [f"s_add_u32 s32, s55, {BX2()}"])))
            fixed[P.dn_x2 + 1].append((4, lambda: k.touch(227, "s", [f"s_add_u32 s32, s56, {BS2()}"])))
            fs.add(lambda: k.wait(vm=["touch"]), 1, P.dn_x2 + 2)
        for q, c in enumerate(P.t1_dn): fixed[P.dn_touch + 2*q].append((5, touch_next(k, 28)["oxs".index(c)]))
        fs.dep("late")
        for f in a11_bases(k) + a1_setup(k, 1): fs.add(f)
        fs.add(lambda: (k.poll_addr(A_PX, 32), k.e(f"s_lshl_b32 s32, s{sB}, 7", f"s_add_u32 s{sPO}, s32, {fl(0, FL_X2)}")), 4)
    wtail = red_writes(k, D_ACC + 32, 1, 2*16384, 1)
    if NT:
        for q in range(min(4, NT)): fixed[min(111, 112 - NT + 1 + q)].append((4, wtail.pop(0)))
    k.wait(vm=["dna", ("b", 0)])
    k.stamp("dn first")
    if k.stamping or P.jitter:
        fixed[55].append((0, lambda: k.stamp("dn p1")))
        for g in range(7, 111, 8): fixed[g].append((0, lambda g=g: k.stamp(f"find {g}")))
    run_gaps(k, mains, fixed, [early, fw, fs], 6)
    print("dn left:", len(k.bg), len(fw), len(fs), "last h load at gap", pend)
    k.stamp("dn gemm")
    assert not fs.items
    ws = wtail
    if not final and P.dn_fin_first != 2: ws.insert(len(ws) - 4, lambda: k.poll_issue(A_PX, "px0"))
    if not final and P.dn_fin_first == 2: ws.append(lambda: k.poll_issue(A_PX, "px0"))
    merge(k, fw, ws)
    k.wait(lg=[("rw", 1)]); k.e("s_barrier")
    k.stamp("dn red")
    for f in red_reads(k, 1, T, 2*16384): f()
    def nxt():
        k.poll_check(A_PX, "px0", 1)
        k.wait(vm=["hxs"]); k.flag(1, 91, "sc1")
        a11_early(k)
    if not final:
        k.bg_held = True
        if not P.dn_fin_first: nxt()
    f1 = Flex(); red_finish(k, f1, 1, groups[1], T, BX2(), BS2(), final, True)
    if not final and P.dn_fin_first == 2:
        ex = [lambda: k.poll_check(A_PX, "px0", 1)] + a11_early(k, True) + [lambda: (k.wait(vm=["hxs"]), k.flag(1, 91, "sc1"))]
        merge(k, f1, ex, P.dn_mfirst)
    else: drain([f1], k)
    if not final and P.dn_fin_first == 1: nxt()
    k.stamp("dn end")
P.dn_mfirst = 8; P.dn_pollstep = 0; P.dn_fin_first = 2; P.dn_tail = 0; P.dn_touch = 88; P.dn_flag_delay = 4; P.dn_pre = 6; P.DN_LATE = [9, 9]; P.dn_fgap = 6
P.dn_wow = 6; P.per_dn = {"s4": 110, "s2": 130}; P.per_dn0 = {"s4": 60, "s2": 60}

DOC = """
One persistent launch, 256 workgroups x 4 waves (one workgroup per CU, 512 registers per wave). Generated by gen/fused.py.
16 clusters of 16 workgroups own 128 tokens each; per layer: [LN + QKV + dilated attention] -> [out-proj + residual] -> [LN + gate/up + SwiGLU] -> [down + residual].
 - LayerNorm is applied as rstd * (x.W - mean * colsum(W)) in fp32; row statistics travel with the activations.
 - w_gate/w_up/w_down/wo are re-tiled once into MFMA fragment order in d_ws; W_qkv fragments stay in AGPRs for both layers.
 - attention runs on MFMA straight from the accumulators (true row max, exp2, normalisation by the summed weights).
 - hand-offs between workgroups: data, s_waitcnt, then a flag word; flags are zeroed by this launch and trusted only after a whole-grid
   rendezvous keyed by a launch tag published in d_debug. A cluster found on one die uses plain stores, any other placement writes through.
 - every spin has a bounded budget.
"""
def build(stamps=False, only=None):
    k = F(); k.stamping = stamps; k.only = only; k.st = P.dst; k.rt = P.rt
    name = NAME + "_kernel"
    k.e(".p2align 8", f".globl {name}", f".type {name},@function"); k.label(name)
    if stamps: k.e("s_memrealtime s[92:93]", "s_memtime s[94:95]")
    k.e("s_cmp_ge_u32 s2, 256", "s_cbranch_scc1 L_end")
    k.e("s_load_dwordx16 s[64:79], s[0:1], 0", "s_load_dwordx4 s[80:83], s[0:1], 64", "s_memrealtime s[96:97]")
    k.e("s_getpc_b64 s[100:101]")
    k.e("L_pc: ;np")
    k.e("v_and_b32 v1, 63, v0", "v_lshrrev_b32 v2, 6, v0", "s_lshr_b32 s33, s2, 3", "s_mul_i32 s32, s33, 43", "s_lshr_b32 s32, s32, 8",
        "s_mul_i32 s32, s32, 6", "s_sub_u32 s32, s33, s32", "s_lshl_b32 s32, s32, 13", "v_lshl_add_u32 v3, v2, 11, s32", "v_lshl_add_u32 v3, v1, 7, v3",
        "v_min_u32 v3, L_end-L_pc, v3", f"v_readfirstlane_b32 s{sW}, v2", "v_mov_b32 v5, s101", "v_add_co_u32 v4, vcc, s100, v3", "v_addc_co_u32 v5, vcc, 0, v5, vcc")
    if P.code0:
        k.e("s_mov_b64 exec, 0xffff")
        k.vm("global_load_dword v175, v[4:5], off", "code")
        k.e("s_mov_b64 exec, -1")
        if P.code1:
            k.e("v_lshlrev_b32 v3, 11, v2", "v_lshl_add_u32 v3, v1, 7, v3", "v_mov_b32 v5, s101", "v_add_co_u32 v4, vcc, s100, v3", "v_addc_co_u32 v5, vcc, 0, v5, vcc",
                "s_mov_b64 exec, 0xffff")
            k.vm("global_load_dword v174, v[4:5], off", "code")
            k.e("s_mov_b64 exec, -1")
    k.e("s_and_b32 s32, s2, 7", f"s_and_b32 s{sM}, s33, 15", "s_lshr_b32 s33, s33, 4", "s_lshl_b32 s32, s32, 1", f"s_add_u32 s{sC}, s32, s33")
    k.e(f"s_lshr_b32 s33, s{sM}, 3", f"s_lshl_b32 s{sB}, s{sC}, 1", f"s_add_u32 s{sB}, s{sB}, s33", f"s_and_b32 s{sCS}, s{sM}, 7")
    k.e("v_lshlrev_b32 v2, 4, v1")
    a10_lanes(k)
    k.e("s_waitcnt lgkmcnt(0)")
    srd(k, 12, 64, 2048 * 1024); srd(k, 16, 66, 512 * 3072)
    k.e(f"s_or_b32 s{sTAG}, s96, 1")
    if P.jitter: k.e("s_lshl_b32 s101, s2, 2", f"s_add_u32 s101, s101, s{sW}", "s_mul_i32 s101, s101, 2654435761", "s_add_u32 s101, s101, s96")
    if stamps:
        k.stamps += ["rt0", "start"]; k.e("v_writelane_b32 v0, s92, 0", f"v_writelane_b32 v0, s{92 if P.rt else 94}, 1")
    k.stamp("s kernarg")
    if P.pre:
        k.e("v_lshrrev_b32 v180, 3, v1", "v_and_b32 v181, 7, v1", "v_lshlrev_b32 v181, 7, v181", "v_lshl_add_u32 v180, v180, 10, v181",
            f"v_mov_b32 v182, {OOB:#x}", "v_cmp_gt_u32 vcc, 16, v1", f"s_lshl_b32 s32, s{sB}, 3", f"s_add_u32 s32, s32, s{sCS}", "s_lshl_b32 s32, s32, 2",
            f"s_add_u32 s32, s32, s{sW}", "s_lshl_b32 s32, s32, 11", "v_cndmask_b32 v180, v182, v180, vcc")
        if "x" in P.pre: k.vm(f"buffer_load_dword v180, v180, {SRD_X}, s32 offen", "pre")
        k.e("v_lshrrev_b32 v181, 2, v1", "v_mul_u32_u24 v181, 3072, v181", "v_and_b32 v183, 3, v1", "v_lshl_add_u32 v181, v183, 10, v181",
            "v_cndmask_b32 v181, v182, v181, vcc", "v_cmp_eq_u32 vcc, 3, v183", f"s_lshl_b32 s32, s{sB}, 2", f"s_add_u32 s32, s32, s{sW}",
            f"s_mul_i32 s32, s32, {4*3072}", f"s_lshl_b32 s33, s{sCS}, 7", "s_add_u32 s32, s32, s33", "v_cndmask_b32 v181, v181, v182, vcc")
        if "w" in P.pre: k.vm(f"buffer_load_dword v181, v181, {SRD_QKV}, s32 offen", "pre")
    if P.pk_first == 1: pack_issue(k)
    k.stamp("s pkissue")
    run(a10_x(k, 0) + a10_w(k, 0))
    if P.pk_first == 0: pack_issue(k)
    srd(k, 28, 80, 256)
    k.e("v_cmp_eq_u32 vcc, 0, v1", f"v_mov_b32 v{vFA}, {OOB:#x}", f"s_or_b32 s32, s2, s{sW}", f"v_cndmask_b32_e64 v{vFA}, v{vFA}, 0, vcc",
        "s_cmp_eq_u32 s32, 0", f"s_cselect_b32 s32, 0, {OOB>>1:#x}", f"v_mov_b32 v170, s{sTAG}")
    k.vm(f"buffer_store_dword v170, v{vFA}, {SRD_DBG}, s32 offen sc1", "tagst")
    srd(k, 8, 82, WS_SIZE); srd(k, 20, 78, 2048 * 1024)
    for f in a1_setup(k, 0): f()
    o_bases(k, 0)
    a10_lanes2(k)
    k.e(f"v_mov_b32 v60, {OOB:#x}", "v_cmp_gt_u32 vcc, 8, v1", "v_mov_b32 v176, 0", "v_mov_b32 v177, 0", "v_mov_b32 v178, 0", "v_mov_b32 v179, 0",
        f"v_cndmask_b32 v173, v60, v{vL16}, vcc", "v_cmp_gt_u32 vcc, 16, v1", "s_nop 0",
        f"s_lshl_b32 s32, s{sC}, 4", f"v_cndmask_b32 v172, v60, v{vL16}, vcc")
    k.e(f"s_add_u32 s32, s32, s{sM}", "s_lshl_b32 s32, s32, 4",
        f"s_cmp_eq_u32 s{sW}, 0", f"s_cselect_b32 s32, s32, {OOB>>1:#x}", f"v_add_u32 v171, s32, v{vFA}", f"s_mov_b32 s{sBUD}, 400000")
    red_bases(k)
    k.e(f"s_lshl_b32 s{sGL}, s{sW}, 12", f"s_mul_i32 s{sGS}, s{sM}, {PGU_SLICE}", f"s_add_u32 s{sGS}, s{sGS}, s{sGL}", f"s_add_u32 s{sGS}, s{sGS}, {WS_PGU}")
    k.e(f"s_mul_i32 s32, s{sCS}, {224*KB}", f"s_mul_i32 s33, s{sW}, {56*KB}", "s_add_u32 s32, s32, s33", f"s_add_u32 s{sDS}, s32, {WS_PDN}")
    k.e(f"s_lshl_b32 s32, s{sCS}, 16", f"s_add_u32 s32, s32, s{sGL}", f"s_add_u32 s88, s32, {WS_PWO}")
    wo_bases(k)
    k.stamp("s setup")
    run(a10_w(k, 1))
    if P.pk_first == 2: pack_issue(k)
    k.e(f"s_getreg_b32 s{sXCC}, hwreg(HW_REG_XCC_ID, 0, 4)", f"s_mov_b32 s75, {WS_ARR}", f"s_lshl_b32 s77, s{sC}, 8", "s_add_u32 s77, s77, s75")
    if P.k_touch == -1:
        k.touch(157, "p", ["s_mov_b32 s32, s53"], False); k.touch(158, "q", [f"s_add_u32 s32, s64, {BX2()}"], False)
    k.stamp("s w01")
    def mid2():
        if P.k_first > 3: run(a10_w(k, 3))
        k.e("s_lshl_b32 s32, s2, 7")
        k.vm(f"buffer_store_dwordx4 v[176:179], v173, {SRD_WS}, s32 offen sc1", "zero")
        k.e("s_lshl_b32 s32, s2, 8", f"s_add_u32 s32, s32, {WS_HXF}")
        k.vm(f"buffer_store_dwordx4 v[176:179], v172, {SRD_WS}, s32 offen sc1", "zero")
    if P.k_pack is None: pack_process(k, lambda: run(a10_x(k, 1) + a10_w(k, 2)), mid2)
    else: run(a10_x(k, 1) + a10_w(k, 2)); mid2()
    k.vm(f"buffer_load_dword v170, v{vFA}, {SRD_DBG}, 0 offen sc1", "tag")
    k.stamp("s pkdone")
    a10_loop(k, P.k_first)
    a10_tail(k)
    wo(k, 0); gu(k, 0); dn(k, 0)
    if not P.half:
        k.marks = {m: g for m, g in k.marks.items() if False}
        k.seen = {t for t in k.seen if t in k.vmq or t in k.lgq or t in ("dna", "st0", ("x", 2), ("x", 3))}
        k.layer = 1
        a11_main(k)
        wo(k, 1)
        k.marks = {m: g for m, g in k.marks.items() if m in ("wobar", "gemm_done") or m[0] == "bar"}
        gu(k, 1); dn(k, 1)
    if P.verbose: print([(t, tag, f) for t, tag, f in k.bg_log if f])
    if stamps:
        k.e("s_waitcnt vmcnt(0)"); k.stamp("drained"); k.stamp("rt1", True)
        k.e("s_lshl_b32 s32, s2, 10", "s_lshl_b32 s33, s3, 8", "s_add_u32 s32, s32, s33",
            f"s_add_u32 s32, s32, {WS_STAMP}", "v_lshlrev_b32 v8, 2, v1", f"buffer_store_dword v0, v8, {SRD_WS}, s32 offen")
        if P.echo:
            a, b = P.echo
            n = len(k.stamps)
            k.e(f"v_readlane_b32 s32, v0, {a}", f"v_readlane_b32 s33, v0, {b if b >= 0 else n + b}", f"v_readlane_b32 s34, v0, {n-1}", "s_nop 3",
                "s_sub_u32 s33, s33, s32", "s_min_u32 s33, s33, 20000")
            k.label("L_echo")
            k.e("s_memrealtime s[36:37]", "s_waitcnt lgkmcnt(0)", "s_sub_u32 s36, s36, s34", "s_cmp_lt_u32 s36, s33", "s_cbranch_scc1 L_echo")
        if P.dbg:
            n = len(k.stamps)
            k.e("v_readlane_b32 s32, v0, 0", f"v_readlane_b32 s33, v0, {n-1}", "s_not_b32 s34, s32", "v_mov_b32 v4, s33", "v_mov_b32 v5, s34")
            k.e(f"buffer_atomic_umax v4, v{vFA}, {SRD_DBG}, 0 offen offset:4", f"buffer_atomic_umax v5, v{vFA}, {SRD_DBG}, 0 offen offset:8")
            k.e(f"s_cmp_eq_u32 s2, {P.dbg - 1}", f"s_cselect_b32 s35, 0, {OOB>>1:#x}", f"s_cmp_eq_u32 s{sW}, 0", f"s_cselect_b32 s35, s35, {OOB>>1:#x}")
            for i, wd in zip(range(2, n - 1), (3, 5, 6, 7, 9, 10, 11, 13, 14, 15)):
                k.e(f"v_readlane_b32 s33, v0, {i}", "s_sub_u32 s33, s33, s32", "v_mov_b32 v4, s33", f"buffer_store_dword v4, v{vFA}, {SRD_DBG}, s35 offen offset:{4*wd}")
    k.e("s_endpgm")
    k.flush_spins()
    k.label("L_end"); k.e("s_endpgm")
    src = open("cdna_kernels/%s.s.ref" % NAME).read().splitlines()
    out = [l for l in src if l.startswith(";") and "@launch" not in l]
    out.append(f"; @launch grid=(256,1,1) block=(256,1,1) lds={LDS_TOTAL}")
    out += ['.amdgcn_target "amdgcn-amd-amdhsa--gfx950"', ".text"]
    out += ["; " + l for l in DOC.strip().split("\n")]
    s = "\n".join(out) + "\n" + k.text(verbose=True) + '.section .rodata,"a"\n.p2align 6\n' + kd(name)
    from verify import verify
    assert not verify(s), "a register is used while a load into it is in flight"
    if P.align:
        from align import align
        s = align(s)
    return s, k.stamps
P.x_nobar = 0; P.x_noepi = 0; P.rt = 1; P.dbg = 0; P.h_touch0 = ''; P.outm = ('', ''); P.x1_clean = None; P.h1_plain = 0; P.tags = 0; P.echo = None; P.wo_setup_first = 2; P.gu_pa_late = 0; P.gu_bar_first = 0; P.flagbr = 0; P.rot = 0; P.pk_mod = 'nt'; P.x_mod = ''; P.w_mod = ''; P.t_mod = ''; P.pk_first = 1; P.dn1_agpr = 1; P.poll2 = 2; P.wt = (); P.inplace = 1; P.x_out = 0; P.o0_in_h = 0; P.code1 = 0; P.pk_xor = 128; P.gram1 = 1; P.jitter = 0; P.pre = ''; P.half = 0; P.tlb = 1; P.code0 = 1; P.verbose = 0; P.align = 1; P.gu_cap = 5; P.gu_nw = 5; P.k_touch = 15; P.k_gb = 13; P.k_chk = 16

if __name__ == "__main__":
    path = sys.argv[1] if len(sys.argv) > 1 else "cdna_kernels/%s.s" % NAME
    opts = sys.argv[2:]
    only = None
    for o in opts:
        if o.startswith("only="): only = [x for x in o[5:].split(",") if x]
        if o.startswith("P."):
            n, v = o[2:].split("="); setattr(P, n, eval(v))
    s, st = build(stamps="st" in opts, only=only)
    open(path, "w").write(s)
    if "st" in opts: json.dump([st], open(path + ".json", "w"))
```

```python
import sys, json
from common import *

MF16 = "v_mfma_f32_16x16x32_bf16"
MF16S = "v_mfma_f32_16x16x16_bf16"
MF32 = "v_mfma_f32_32x32x16_bf16"
vL16, vFV, vFA, vP = 2, 8, 9, 10
CSV, CSQ, CSK, RES = 11, 12, 16, 20
OOB = 0x80000000
FL_O, FL_X1, FL_H, FL_X2 = 0, 4096, 8192, 12288
FL_HX = 16384 + 12288
def fl(layer, off): return WS_FLAGS + 16384 * layer + off
sROT, sBUD, sGL, sGS, sDS = 84, 98, 60, 61, 85
sT0, sT1, sPO, sFO = 32, 33, 86, 87
sML, sMS = 68, 69
WS_HXF = WS_O0 - 0x10000 if False else WS_END
WS_ARR = WS_HXF + 0x10000
sTAG, sXCC = 91, 76
WS_STAMP = 0x2000000
L_SA0, L_SA1, L_XH0, L_CS = 80896, 97280, 81920, 79872
def e_of(kk):
    p, tl = divmod(kk, 7)
    return 4 * p + tl if tl < 4 else 16 + 3 * p + (tl - 4)
KK_OF = {e_of(kk): kk for kk in range(28)}

class P:
    a1_bg_start, a1_bg_step = 30, 6
    gu_lead = 9
    gu_bg_start, gu_bg_step = 50, 2.6
    dn_lead = 12
    bgm = ""
    sleep = 0
    drop = ()
    codepf = 0
    ld = "sc1"
    dst = "sc1"
    safe = False
    plain = True
    notouch = ()

BO, BX1, BS1, BH = [WS_O[0]] * 2, [WS_X[0]] * 2, [WS_ST[0]] * 2, [WS_H[0]] * 2
def BX2(): return 0 if P.x_out else (WS_X[0] if P.inplace else WS_X[1])
def XS(): return SRD_OUT if P.x_out else SRD_WS
def LSH(): return 10 if P.x_out else 7
def CSH(): return 7 if P.x_out else 10
def BS2(): return WS_ST[0] if P.inplace else WS_ST[1]
def o_block(d, layer):
    if (layer or P.o0_in_h) and P.inplace: return [f"s_mul_i32 {d}, s{sB}, {224*KB}", f"s_add_u32 {d}, {d}, {BH[0]}"]
    return [f"s_lshl_b32 {d}, s{sB}, 16", f"s_add_u32 {d}, {d}, {BO[layer]}"]
def o_line(layer):
    return [f"s_lshl_b32 s32, s{sB}, 16", f"s_lshl_b32 s33, s{sCS}, 2", f"s_add_u32 s33, s33, s{sW}", "s_lshl_b32 s33, s33, 10",
            "s_add_u32 s32, s32, s33", f"s_add_u32 s32, s32, {BO[layer]}"]
def touch_next(k, t):
    return [lambda: k.touch(t, "p", o_line(1)), lambda: k.touch(t + 1, "q", [f"s_add_u32 s32, s64, {BX2()}"]),
            lambda: k.touch(t + 2, "t", [f"s_add_u32 s32, s65, {BS1[1]}"])]
def gu_tile(d):
    return [f"s_lshl_b32 {d}, s{sC}, 1", f"s_and_b32 s33, s{sW}, 1", f"s_add_u32 {d}, {d}, s33", f"s_lshl_b32 {d}, {d}, 1", f"s_lshr_b32 s33, s{sW}, 1", f"s_add_u32 {d}, {d}, s33"]
def h_base(d, layer):
    return gu_tile(d) + [f"s_mul_i32 {d}, {d}, 112", f"s_mul_i32 s33, s{sM}, 7",
            f"s_add_u32 {d}, {d}, s33", f"s_lshl_b32 {d}, {d}, 10", f"s_add_u32 {d}, {d}, {BH[layer]}"]

class F(K):
    def __init__(self):
        super().__init__(); self.spins = []; self.nspin = 0; self.st = ""; self.npf = 0; self.layer = 0
    def poll_issue(self, va, tag): self.vm(f"buffer_load_dword v{vP}, v{va}, {SRD_WS}, s{sPO} offen sc1", tag)
    def poll_addr(self, va, nl, sh=2):
        self.e(f"v_cmp_gt_u32 vcc, {nl}, v1", f"v_lshlrev_b32 v{va}, {sh}, v1", f"v_mov_b32 v{vP}, {OOB:#x}", f"v_cndmask_b32 v{va}, v{vP}, v{va}, vcc")
        self.nl = nl
    def poll_check(self, va, tag, thr):
        n = self.nspin; self.nspin += 1
        self.stamp(f"poll<{tag}")
        self.wait(vm=[tag])
        self.stamp(f"poll={tag}")
        msk = f"s_and_b32 s99, vcc_lo, {(1 << self.nl) - 1:#x}"
        self.e(f"v_cmp_gt_u32 vcc, {thr}, v{vP}", msk, f"s_cbranch_scc1 L_spin{n} ;np", f"L_back{n}: ;np")
        self.stamp(f"poll>{tag}")
        self.spins += [f"L_spin{n}:", f"s_sub_u32 s{sBUD}, s{sBUD}, 1", f"s_cbranch_scc1 L_give{n}"] + ([f"s_sleep {P.sleep}"] if P.sleep else []) + [
                       f"buffer_load_dword v{vP}, v{va}, {SRD_WS}, s{sPO} offen sc1", "s_waitcnt vmcnt(0)",
                       f"v_cmp_gt_u32 vcc, {thr}, v{vP}", msk, f"s_cbranch_scc1 L_spin{n}", f"s_branch L_back{n}",
                       f"L_give{n}:", f"s_mov_b32 s{sBUD}, 0", f"s_branch L_back{n}"]
    def poll_wait(self, va, tag, thr, alt):
        if not P.poll2:
            self.poll_check(va, tag, thr); return
        n = self.nspin; self.nspin += 1
        ld = lambda r: f"buffer_load_dword v{r}, v{va}, {SRD_WS}, s{sPO} offen sc1"
        tst = lambda r: [f"v_cmp_gt_u32 vcc, {thr}, v{r}", f"s_and_b32 s99, vcc_lo, {(1 << self.nl) - 1:#x}"]
        self.e(f"s_sleep {P.poll2}")
        self.vm(ld(alt), "polljunk")
        self.wait(vm=[tag])
        self.e(*tst(vP)); self.e(f"s_cbranch_scc1 L_spin{n} ;np", f"L_back{n}: ;np")
        self.spins += [f"L_spin{n}:", f"s_sub_u32 s{sBUD}, s{sBUD}, 1", f"s_cbranch_scc1 L_give{n}",
                       ld(vP), "s_waitcnt vmcnt(1)"] + tst(alt) + [f"s_cbranch_scc0 L_back{n}", ld(alt), "s_waitcnt vmcnt(1)"] + tst(vP) + \
                      [f"s_cbranch_scc1 L_spin{n}", f"s_branch L_back{n}", f"L_give{n}:", f"s_mov_b32 s{sBUD}, 0", f"s_branch L_back{n}"]
    def flag(self, val, soff=sFO, st=None):
        self.e(f"v_mov_b32 v{vFV}, {val}")
        if st is not None:
            self.vm(f"buffer_store_dword v{vFV}, v{vFA}, {SRD_WS}, s{soff} offen {st}", "flag"); return
        if P.flagbr:
            self.dstore(f"buffer_store_dword v{vFV}, v{vFA}, {SRD_WS}, s{soff} offen", "flag", True); return
        self.e(f"s_or_b32 s99, s{soff}, s{sML}")
        self.vm(f"buffer_store_dword v{vFV}, v{vFA}, {SRD_WS}, s99 offen", "flag")
        self.e(f"s_or_b32 s99, s{soff}, s{sMS}")
        self.vm(f"buffer_store_dword v{vFV}, v{vFA}, {SRD_WS}, s99 offen sc1", "flag")
    def dstore(self, text, tag, always=False):
        kind = tag[0] if isinstance(tag, tuple) else tag
        if (not P.plain or (self.layer, kind, isinstance(tag, tuple)) in P.wt) and not always:
            self.vm(text + " sc1", tag); return
        n = self.nspin; self.nspin += 1
        self.e(f"s_cmp_lg_u32 s{sML}, 0", f"s_cbranch_scc1 L_alt{n} ;np")
        self.vm(text, tag)
        self.e(f"L_back{n}: ;np")
        self.spins += [f"L_alt{n}:", "s_nop 4", text + " sc1", f"s_branch L_back{n}"]
    def valid(self, test, reload):
        n = self.nspin; self.nspin += 1
        self.e(*test); self.e(f"s_cbranch_vccnz L_rl{n} ;np", f"L_back{n}: ;np")
        self.spins += [f"L_rl{n}:", f"s_sub_u32 s{sBUD}, s{sBUD}, 1", f"s_cbranch_scc1 L_give{n}"] + reload + ["s_waitcnt vmcnt(0)"] + test + \
                      [f"s_cbranch_vccnz L_rl{n}", f"s_branch L_back{n}", f"L_give{n}:", f"s_mov_b32 s{sBUD}, 0", f"s_branch L_back{n}"]
    def touch(self, tmp, kind, base_expr, masked=True):
        if not P.plain or kind in P.notouch: return
        nl = {"p": 16, "q": 16, "s": 2, "t": 2, "h": 56}[kind]
        self.e(f"v_cmp_gt_u32 vcc, {nl}, v1")
        if kind in "pq": self.e(f"v_lshrrev_b32 v{tmp}, 3, v1", f"v_lshlrev_b32 v{tmp}, {15 if kind == 'p' else 13}, v{tmp}", f"v_and_b32 v{vFV}, 7, v1", f"v_lshl_add_u32 v{tmp}, v{vFV}, {LSH() if kind == 'q' else 7}, v{tmp}")
        else: self.e(f"v_lshlrev_b32 v{tmp}, {11 if kind == 's' else 7}, v1")
        self.e(f"v_mov_b32 v{vFV}, {OOB:#x}", *base_expr)
        self.e(f"v_cndmask_b32 v{tmp}, v{vFV}, v{tmp}, vcc")
        if masked: self.e(f"s_or_b32 s32, s32, s{sML}")
        self.vm(f"buffer_load_dword v{tmp}, v{tmp}, {XS() if kind == 'q' else SRD_WS}, s32 offen {P.t_mod}", "touch")
    def vm(self, text, tag=None):
        kind = tag[0] if isinstance(tag, tuple) else tag
        if kind in P.drop:
            self.seen.add(tag); return
        super().vm(text, tag)
    def codepf(self, t):
        if not P.codepf: return
        n = self.npf; self.npf += 1
        self.e(f"L_pf{n}: ;np", f"s_lshl_b32 s32, s{sW}, 12", f"s_add_u32 s32, s32, L_pf{n}-L_pc", f"v_lshl_add_u32 v{t+2}, v1, 7, s32", f"v_min_u32 v{t+2}, L_end-L_pc, v{t+2}",
               f"v_mov_b32 v{t+1}, s101", f"v_add_co_u32 v{t}, vcc, s100, v{t+2}", f"v_addc_co_u32 v{t+1}, vcc, 0, v{t+1}, vcc", "s_mov_b32 exec_hi, 0")
        self.vm(f"global_load_dword v{t+2}, v[{t}:{t+1}], off", "code")
        self.e("s_mov_b64 exec, -1")
    def stamp(self, name, real=False):
        if P.jitter and not name.startswith("s ") and not name.startswith("fin"):
            n = self.nspin; self.nspin += 1
            self.e("s_mul_i32 s101, s101, 1103515245", f"s_add_u32 s101, s101, {12345 + n}", "s_lshr_b32 s100, s101, 20", f"s_and_b32 s100, s100, {P.jitter}",
                   "s_lshr_b32 s99, s101, 28", "s_cmp_lt_u32 s99, 5", f"s_cbranch_scc0 L_j{n}e ;np", f"L_j{n}: ;np", "s_sleep 3", "s_sub_u32 s100, s100, 1",
                   f"s_cbranch_scc0 L_j{n} ;np", f"L_j{n}e: ;np")
        super().stamp(name, real)
    def flush_spins(self):
        for l in self.spins: self.e(l)
        self.spins = []

def batch(k, i):
    src = f"s_add_u32 s62, s{sGS}, {i*16384}" if i < 15 else f"s_add_u32 s62, s{sDS}, {(16 + 4*(i-15))*1024}"
    def f(q):
        k.set_m0(f"s_add_u32 m0, s{sGL}, {(i % 10)*16384}")
        if i != 14: k.set_s(src)
        elif k.last.get(62) != f"s_cselect_b32 s62, {OOB>>1:#x}, s62":
            k.e(src, f"s_cmp_ge_u32 s{sW}, 2", f"s_cselect_b32 s62, {OOB>>1:#x}, s62")
        k.vm(f"buffer_load_dwordx4 v{vL16}, {SRD_WS}, s62 offen offset:{q*1024} {P.bgm} lds", ("gw", i))
    return [lambda q=q: f(q) for q in range(4)]

def bg_batches(k, bs, period, dep=lambda b: None):
    for b in bs:
        for f in batch(k, b): k.bg_add(f, period, ("gw", b), dep(b))
def bg_list(k, fns, period, tag, dep=None):
    for f in fns: k.bg_add(f, period, tag, dep)

def regloads(k, base_sgpr, off, dst, n, tag, tmp=63, tagf=None):
    fns = []
    for j in range(n):
        def f(j=j):
            k.set_s(f"s_add_u32 s{tmp}, s{base_sgpr}, {off + (j & ~3)*1024}")
            k.vm(f"buffer_load_dwordx4 {dst(j)}, v{vL16}, {SRD_WS}, s{tmp} offen offset:{(j%4)*1024} {P.bgm}", tagf(j) if tagf else tag)
        fns.append(f)
    return fns
def wow(k):
    def f(i, q):
        k.set_m0(f"s_add_u32 m0, s{sGL}, {(6 + i)*16384}"); k.set_s(f"s_add_u32 s63, s88, {i*16384}")
        k.vm(f"buffer_load_dwordx4 v{vL16}, {SRD_WS}, s63 offen offset:{q*1024} lds", "wow")
    return [lambda i=i, q=q: f(i, q) for i in range(4) for q in range(4)]

def pack_issue(k):
    k.e(f"s_xor_b32 s99, s2, {P.pk_xor}")
    for r in (68, 69, 72, 73, 74, 75, 76, 77): assert k.writer[r].startswith("s_load"), f"kernel argument s{r} overwritten"
    k.e("v_lshrrev_b32 v44, 3, v1", "v_and_b32 v43, 7, v1", "v_and_b32 v45, 2, v44", "v_lshlrev_b32 v45, 1, v45",
        "v_xor_b32 v43, v43, v45", "v_lshlrev_b32 v43, 4, v43", f"s_add_u32 s34, s49, {L_X + 4096}")
    k.e("s_cmp_ge_u32 s99, 112", "s_cbranch_scc1 L_pki_small")
    k.e("s_and_b32 s35, s99, 1", "s_bfe_u32 s36, s99, 0x10001", "s_lshr_b32 s37, s99, 2")
    k.e("s_cmp_eq_u32 s35, 0", "s_cselect_b32 s24, s72, s74", "s_cselect_b32 s25, s73, s75",
        f"s_mov_b32 s26, {512*3584:#x}", "s_mov_b32 s27, 0x20000")
    k.e("v_mul_u32_u24 v46, 3584, v44", "v_add_u32 v46, v46, v43")
    k.e("s_lshl_b32 s38, s36, 2", f"s_add_u32 s38, s38, s{sW}", f"s_mul_i32 s38, s38, {64*3584}",
        "s_lshl_b32 s39, s37, 7", "s_add_u32 s38, s38, s39")
    for i in range(8):
        k.e(f"s_add_u32 m0, s34, {(i>>2)*8192 + (i&3)*1024}", f"s_add_u32 s39, s38, {i*8*3584}", f"buffer_load_dwordx4 v46, {SRD_PK}, s39 offen {P.pk_mod} lds")
    k.e("s_branch L_pki_done")
    k.label("L_pki_small")
    k.e("s_sub_u32 s35, s99, 112", "s_lshl_b32 s35, s35, 3", f"s_lshl_b32 s36, s{sW}, 1", "s_add_u32 s35, s35, s36")
    k.e("s_cmp_lt_u32 s35, 896", "s_cselect_b32 s24, s76, s68", "s_cselect_b32 s25, s77, s69", f"s_mov_b32 s26, {512*1024:#x}",
        f"s_cselect_b32 s26, {1792*1024:#x}, s26", "s_mov_b32 s27, 0x20000", "s_cselect_b32 s37, 1, 0",
        "s_movk_i32 s38, 896", "s_cselect_b32 s38, 0, s38")
    k.e("s_cselect_b32 s39, 0, 1", "s_cselect_b32 s70, 14, 15", "s_movk_i32 s71, 0x4000", "s_cselect_b32 s71, 0x80, s71")
    k.e("s_sub_u32 s35, s35, s38", "s_lshr_b32 s35, s35, s39", "s_and_b32 s36, s35, 7", "s_lshr_b32 s35, s35, 3")
    k.e("v_lshl_add_u32 v46, v44, 10, v43", "s_lshl_b32 s38, s35, s70", "s_lshl_b32 s39, s36, 7", "s_add_u32 s38, s38, s39")
    if not P.pk_split: pack_issue_small(k)
    k.label("L_pki_done")
    k.vmq.append("pk"); k.seen.add("pk")

def pack_issue_small(k):
    for i in range(2):
        for h in range(2):
            k.e(f"s_add_u32 m0, s34, {(2*i+h)*1024}", f"s_add_u32 s39, s38, {h*8192}", f"buffer_load_dwordx4 v46, {SRD_PK}, s39 offen {P.pk_mod} lds")
        if i == 0: k.e("s_add_u32 s38, s38, s71")

def pack_issue_late(k):
    k.e("s_cmp_lt_u32 s99, 112", "s_cbranch_scc1 L_pkl_done")
    pack_issue_small(k)
    k.label("L_pkl_done")
    k.vmq.append("pk2"); k.seen.add("pk2"); k.phantom.add("pk2")

PQ = [76, 80, 84, 88, 92, 96, 36, 40]
def pack_process(k, mid1, mid2):
    k.e("v_bfe_u32 v46, v1, 2, 2", "v_and_b32 v47, 3, v1", "v_bfe_u32 v48, v1, 4, 1", "v_lshrrev_b32 v49, 5, v1")
    k.e("v_and_b32 v50, 2, v46", "v_add_u32 v50, v50, v48", "v_lshlrev_b32 v50, 5, v50",
        "v_lshl_add_u32 v50, v46, 7, v50", "v_lshl_add_u32 v50, v47, 3, v50", "v_add_u32 v50, s34, v50")
    k.e("s_cmp_ge_u32 s99, 112", "s_cbranch_scc1 L_pk_small")
    q0 = list(k.vmq)
    k.e("v_lshl_add_u32 v56, v49, 10, v50", "v_xor_b32 v57, 64, v56")
    k.e("s_lshl_b32 s39, s37, 2", "v_add_u32 v58, s39, v48")
    k.e("s_lshl_b32 s70, s36, 2", f"s_add_u32 s70, s70, s{sW}", "s_lshl_b32 s70, s70, 2")
    k.e("v_and_b32 v66, 15, v1", "s_lshl_b32 s71, s35, 8", "v_lshl_add_u32 v66, v66, 4, s71")
    for p in range(2):
        T, fs, tl, st_, b, aug = 59, 60, 61, 62 + p, 64 + p, 68 + p
        k.e(f"v_add_u32 v{T}, {2*p}, v58", f"v_mul_u32_u24 v{fs}, 9363, v{T}", f"v_lshrrev_b32 v{fs}, 16, v{fs}",
            f"v_mul_u32_u24 v{tl}, 7, v{fs}", f"v_sub_u32 v{tl}, v{T}, v{tl}")
        k.e(f"v_cmp_gt_u32 vcc, 3, v{tl}", f"v_mul_u32_u24 v67, 33, v{tl}", f"v_mov_b32 v{st_}, 1", "v_mov_b32 v70, 3",
            f"v_cndmask_b32 v67, v67, v{tl}, vcc", f"v_cndmask_b32 v{st_}, v{st_}, v70, vcc")
        k.e(f"v_mul_u32_u24 v{fs}, 231, v{fs}", f"v_add_u32 v67, v67, v{fs}")
        k.e(f"v_lshl_add_u32 v70, v{st_}, 5, v67", "v_lshlrev_b32 v70, 10, v70", "v_add_u32 v70, v70, v66",
            "s_lshl_b32 s71, s36, 9", f"v_add_u32 v{aug}, s71, v70")
        k.e(f"v_mul_lo_u32 v70, v{st_}, s70", "v_add_u32 v67, v67, v70", "v_lshlrev_b32 v67, 10, v67",
            "v_add_u32 v67, v67, v66", f"v_lshl_add_u32 v{b}, v49, 9, v67", f"v_lshlrev_b32 v{st_}, 10, v{st_}")
    k.e("v_mov_b32 v71, 0x3f803f80", "v_mov_b32 v72, 0", "v_mov_b32 v73, 0", "v_cmp_gt_u32 vcc, 32, v1", "v_mov_b32 v46, 0", "v_mov_b32 v47, 0",
        "v_cndmask_b32 v68, v69, v68, vcc", f"s_lshl_b32 s72, s{sW}, 8", "s_add_u32 s72, s72, 0x10000", "v_lshl_add_u32 v74, v1, 2, s72",
        "v_lshlrev_b32 v75, 2, v1", "v_add_u32 v75, 0x10000, v75")
    k.e(f"s_mov_b32 s70, {WS_PGU}", "s_mov_b32 s71, s70", "s_mov_b32 s72, s70", "s_mov_b32 s73, s70", f"s_cmp_eq_u32 s{sW}, 0", f"s_cselect_b32 s74, s70, {OOB>>1:#x}")
    k.wait(vm="pk")
    for ks in range(4):
        for p in range(2):
            for j in range(2): k.ds(f"ds_read_b64_tr_b16 {vr(PQ[2*ks+p]+2*j,2)}, v{56+p} offset:{(ks>>1)*8192 + (ks&1)*2048 + j*512}", ("t", ks, p))
        if ks == 2: k.wait(lg=[("t", 0, 1)])
    mid1()
    for ks in range(4):
        for p in range(2):
            k.wait(lg=[("t", ks, p)])
            for d in range(4): k.e(f"v_dot2c_f32_bf16 v{72+p}, v{PQ[2*ks+p]+d}, v71")
    k.e("v_permlane32_swap_b32 v72, v73", "v_add_f32 v72, v72, v73")
    k.ds(f"ds_write_b32 v74, v72 offset:{L_CS - 65536}")
    k.wait(lg="all"); k.e("s_barrier")
    for w in range(4): k.ds(f"ds_read_b32 v{56+w}, v75 offset:{L_CS - 65536 + 256*w}")
    mid2()
    k.wait(lg="all")
    k.e("v_add_f32 v56, v56, v57", "v_add_f32 v58, v58, v59", "v_add_f32 v56, v56, v58")
    k.e("v_cvt_pk_bf16_f32 v45, v56, v46", "v_lshlrev_b32 v57, 16, v45", "v_sub_f32 v57, v56, v57", "v_cvt_pk_bf16_f32 v44, v56, v57")
    k.e("s_branch L_pk_done")
    k.label("L_pk_small")
    k.vmq = list(q0)
    k.e(f"v_mov_b32 v64, v{vL16}", f"v_add_u32 v65, 1024, v{vL16}", f"v_mov_b32 v68, v{vL16}", f"s_mov_b32 s72, {OOB>>1:#x}", "s_mov_b32 s73, s72", "s_mov_b32 s74, s72")
    k.e("s_cmp_eq_u32 s37, 0", "s_cbranch_scc1 L_pk_wo")
    k.e("s_mul_i32 s38, s35, 2341", "s_lshr_b32 s38, s38, 16", "s_mul_i32 s39, s38, 28", "s_sub_u32 s39, s35, s39",
        "s_mul_i32 s70, s39, 9363", "s_lshr_b32 s70, s70, 16", "s_mul_i32 s71, s70, 7", "s_sub_u32 s71, s39, s71")
    for u in range(2):
      k.e(f"s_sub_u32 s39, s70, s36" if P.hrot else "s_mov_b32 s39, s70", f"s_sub_u32 s39, s39, {u if P.hrot else 0}", "s_and_b32 s39, s39, 3",
        "s_lshl_b32 s32, s39, 2", "s_add_u32 s32, s32, s71", "s_mul_i32 s33, s39, 3", "s_add_u32 s33, s33, s71", "s_add_u32 s33, s33, 12",
        "s_cmp_lt_u32 s71, 4", "s_cselect_b32 s32, s32, s33", "s_mul_i32 s33, s38, 28", "s_add_u32 s32, s32, s33", f"s_lshl_b32 s{(35, 37)[u]}, s32, 11")
    k.e("v_lshl_add_u32 v56, v49, 9, v50", "v_xor_b32 v57, 64, v56", f"v_mov_b32 v62, {224*KB}", f"v_mov_b32 v63, {224*KB}")
    k.e(f"s_mul_i32 s36, s36, {224*KB}", f"s_add_u32 s36, s36, {WS_PDN}", "s_add_u32 s70, s36, s35", "s_add_u32 s71, s36, s37")
    k.wait(vm="pk2" if P.pk_split else "pk")
    for i in range(2):
        for nn in range(2):
            for j in range(2): k.ds(f"ds_read_b64_tr_b16 {vr(PQ[2*i+nn]+2*j,2)}, v{56+nn} offset:{i*2048 + j*1024}", "t")
    mid1(); mid2()
    k.wait(lg="all")
    k.e("s_branch L_pk_done")
    k.label("L_pk_wo")
    k.vmq = list(q0)
    k.e("v_and_b32 v56, 2, v46", "v_lshlrev_b32 v56, 1, v56", "v_xor_b32 v56, v56, v47", "v_lshlrev_b32 v56, 4, v56", "v_lshl_add_u32 v56, v46, 7, v56",
        "v_lshrrev_b32 v57, 4, v1", "v_lshl_add_u32 v56, v57, 10, v56", "v_add_u32 v56, s34, v56", "v_xor_b32 v57, 64, v56",
        "v_mov_b32 v62, 0x800", "v_mov_b32 v63, 0x800")
    k.e("s_lshl_b32 s36, s36, 16", "s_lshl_b32 s35, s35, 12", "s_add_u32 s70, s36, s35", f"s_add_u32 s70, s70, {WS_PWO}", "s_mov_b32 s71, s70")
    k.wait(vm="pk2" if P.pk_split else "pk")
    for j in range(4):
        for jj in range(2): k.ds(f"ds_read_b64_tr_b16 {vr(PQ[j]+2*jj,2)}, v{56+(j>>1)} offset:{jj*512 + 8*(j&1)}", "t")
    mid1(); mid2()
    k.wait(lg="all")
    k.label("L_pk_done")

def pack_stores(k):
    ops = []
    for r in range(4):
        for p in range(2):
            ops.append(("v", lambda r=r, p=p: k.vm(f"buffer_store_dwordx4 {vr(PQ[2*r+p],4)}, v{64+p}, {SRD_WS}, s{70+r} offen sc1", "pks")))
            if r < 3: ops.append(("a", lambda p=p: k.e(f"v_add_u32 v{64+p}, v{64+p}, v{62+p}")))
    ops.append(("v", lambda: k.vm(f"buffer_store_dwordx4 v[44:47], v68, {SRD_WS}, s74 offen sc1", "pks")))
    return ops

A_XF, A_K, A_V, A_Q = 36, 76, 86, 96
A_STA, A_STB, A_OP, A_DX, A_PA, A_ST, A_ACC = 104, 106, 144, 152, 153, 140, 184
class R0: XE, XO, SA, SB, CI, ONE, M, ATT, TMP = 3, 4, 5, 6, 28, 32, 52, (116, 160), 60
class R1: XE, XO, SA, SB, CI, ONE, M, ATT, TMP = 116, 117, 118, 119, 252, 124, 120, (228, 160), 28
A_U, A_PX = 226, 115
A11_ORDER = [2, 3, 1, 0, "h"]
A11_POS = {2: 3, 3: 0, 1: 1, 0: 2, "h": 3}
sODD, sCUR0, sCUR1, sCEXP = 40, 42, 44, 46

def a1_setup(k, layer):
    R = (R0, R1)[layer]
    real = k; out = []
    class Rec:
        def e(self, *t):
            if any(x.startswith("s_cmp") for x in t): out.append(lambda t=t: real.e(*t))
            else: out.extend(lambda x=x: real.e(x) for x in t)
    k = Rec()
    t16, g, tt, tb = R.TMP, R.TMP + 1, R.TMP + 2, R.TMP + 3
    x, y, z = R.ONE, R.ONE + 1, R.ONE + 2
    sa = L_SA0 if layer == 0 else L_SA1
    k.e(f"v_and_b32 v{t16}, 15, v1", f"v_lshrrev_b32 v{g}, 4, v1", f"v_and_b32 v{tt}, 7, v1", f"v_bfe_u32 v{tb}, v1, 3, 1")
    k.e(f"v_lshlrev_b32 v{tb}, 13, v{tb}")
    if layer == 0: k.e(f"v_add_u32 v{tb}, {L_X}, v{tb}")
    if layer == 0:
        k.e(f"v_and_b32 v{x}, 6, v{tt}", f"v_xor_b32 v{x}, v{x}, v{g}", f"v_lshlrev_b32 v{x}, 4, v{x}",
            f"v_lshl_add_u32 v{x}, v{tt}, 7, v{x}", f"v_add_u32 v{R.XE}, v{x}, v{tb}", f"v_xor_b32 v{R.XO}, 64, v{R.XE}")
    else:
        k.e(f"v_lshl_add_u32 v{x}, v{g}, 7, v{tb}", f"v_lshl_add_u32 v{R.XE}, v{tt}, 4, v{x}", f"v_add_u32 v{R.XO}, 512, v{R.XE}")
    k.e(f"v_lshlrev_b32 v{R.SA}, 3, v{t16}", f"v_add_u32 v{R.SA}, {sa}, v{R.SA}",
        f"v_lshlrev_b32 v{R.SB}, 5, v{g}", f"v_add_u32 v{R.SB}, {sa}, v{R.SB}")
    k.e(f"v_and_b32 v{x}, 1, v1", f"v_cmp_eq_u32 s[{sODD}:{sODD+1}], 1, v{x}",
        f"v_lshl_add_u32 v{y}, v{g}, 2, v{x}", f"v_cmp_le_u32 s[{sCUR0}:{sCUR0+1}], v{y}, v{t16}",
        f"v_add_u32 v{y}, 2, v{y}", f"v_cmp_le_u32 s[{sCUR1}:{sCUR1+1}], v{y}, v{t16}")
    k.e(f"v_mov_b32 v{y}, 0xffff", f"v_mov_b32 v{z}, 0xffff0000", f"v_cndmask_b32 v{y}, v{y}, v{z}, s[{sODD}:{sODD+1}]", f"v_mov_b32 v{z}, 0")
    k.e(f"v_cndmask_b32 v{R.M+2}, v{z}, v{y}, s[{sCUR0}:{sCUR0+1}]", f"v_cndmask_b32 v{R.M}, v{y}, v{z}, s[{sCUR0}:{sCUR0+1}]",
        f"v_cndmask_b32 v{R.M+3}, v{z}, v{y}, s[{sCUR1}:{sCUR1+1}]", f"v_cndmask_b32 v{R.M+1}, v{y}, v{z}, s[{sCUR1}:{sCUR1+1}]")
    k.e(f"s_cmp_eq_u32 s{sB}, 0", f"s_cselect_b32 s70, {f2u(-1e38):#x}, 0", f"s_mov_b32 s{sCEXP}, {f2u(0.25*LOG2E):#x}")
    for i in range(4): k.e(f"v_mov_b32 v{R.CI+i}, s70", f"v_mov_b32 v{R.ONE+i}, 0x3f803f80")
    return out

def o_bases(k, layer):
    k.e(*o_block("s32", layer))
    k.e(f"s_lshl_b32 s33, s{sCS}, 2", f"s_add_u32 s33, s33, s{sW}", "s_lshl_b32 s53, s33, 10", "s_add_u32 s53, s53, s32", "s_add_u32 s54, s53, 32768",
        f"s_lshl_b32 s32, s{sB}, 5", "s_add_u32 s32, s32, s33", "s_lshl_b32 s32, s32, 2", f"s_add_u32 s89, s32, {fl(layer, FL_O)}")

def ln_finish(a, s, q):
    a(f"v_mul_f32 v{s}, {f2u(-1/512):#x}, v{s}"); a(f"v_mul_f32 v{q}, {f2u(1/512):#x}, v{q}")
    a(f"v_fma_f32 v{q}, -v{s}, v{s}, v{q}"); a(f"v_max_f32 v{q}, 0, v{q}"); a(f"v_add_f32 v{q}, {f2u(1e-5):#x}, v{q}")

A_QS = 68
def fix_reads(k, R, t, S):
    i = 0 if t == "h" else t + 1
    return [lambda: k.ds(f"ds_read_b64 {vr(S,2)}, v{R.SA} offset:{i*128}", ("sa", t)),
            lambda: k.ds(f"ds_read_b128 {vr(S+2,4)}, v{R.SB} offset:{i*128}", ("sa", t)),
            lambda: k.ds(f"ds_read_b128 {vr(S+6,4)}, v{R.SB} offset:{i*128+16}", ("sa", t))]
def fix(k, R, fx, t, acc, at, pk, S=A_STA, pre=False, nxt=()):
    a = lambda txt, c=1, at=0: fx.add(lambda: k.e(txt), c, at)
    i = 0 if t == "h" else t + 1
    if not pre:
        for n, f in enumerate(fix_reads(k, R, t, S)): fx.add(f, 1, at - P.a1_salead if n == 0 else 0)
    fx.add(lambda: k.wait(lg=[("sa", t)]), 1, at)
    for f in nxt: fx.add(f)
    for r0, cs, dst in ((acc[0], CSQ, None if t == "h" else A_Q + 2*t), (acc[1], CSK, A_K + 2*i)):
        if dst is None: continue
        isq = cs == CSQ
        if pk:
            for h in (0, 2): a(f"v_pk_fma_f32 {vr(r0+h,2)}, {vr(S,2)}, {vr(cs+h,2)}, {vr(r0+h,2)} op_sel_hi:[0,1,1]")
            if not isq:
                for h in (0, 2): a(f"v_pk_mul_f32 {vr(r0+h,2)}, {vr(S,2)}, {vr(r0+h,2)} op_sel:[1,0] op_sel_hi:[1,1]")
        else:
            for r in range(4): a(f"v_fmac_f32 v{r0+r}, v{S}, v{cs+r}")
            if not isq:
                for r in range(4): a(f"v_mul_f32 v{r0+r}, v{S+1}, v{r0+r}")
        if isq: a(f"v_mul_f32 v{A_QS+t}, s{sCEXP}, v{S+1}")
        for h in range(2): a(f"v_cvt_pk_bf16_f32 v{dst+h}, v{r0+2*h}, v{r0+2*h+1}")
    r0 = acc[2]
    for r in range(4): a(f"v_fmac_f32 v{r0+r}, v{S+2+2*r}, v{CSV}")
    for r in range(4): a(f"v_mul_f32 v{r0+r}, v{S+3+2*r}, v{r0+r}")
    for h in range(2): a(f"v_cvt_pk_bf16_f32 v{A_V+2*i+h}, v{r0+2*h}, v{r0+2*h+1}")
    fx.add(lambda: (k.mark(("fix", t)), k.stamp(f"t0 fix{t}")), 0)

def attn(k, R, fx, t, B):
    SC, SP, PP, O, SUM, T = B, B + 4, B + 8, B + 12, B + 16, B + 20
    a = lambda txt, c=1: fx.add(lambda: k.e(txt), c)
    q = vr(A_Q + 2*t, 2)
    fx.dep(("fix", t)); fx.dep(("fix", t - 1 if t else "h")); fx.skip(1)
    a(f"{MF16S} {vr(SC,4)}, {vr(A_K+2*(t+1),2)}, {q}, 0", 2)
    a(f"{MF16S} {vr(SP,4)}, {vr(A_K+2*t,2)}, {q}, {vr(R.CI,4) if t == 0 else '0'}", 2)
    fx.skip(3)
    for rr, cur in ((0, sCUR0), (1, sCUR1)):
        a(f"v_cndmask_b32 v{T+2}, v{SC+2*rr}, v{SC+2*rr+1}, s[{sODD}:{sODD+1}]")
        a(f"v_cndmask_b32 v{T+3}, v{SP+2*rr}, v{SP+2*rr+1}, s[{sODD}:{sODD+1}]")
        a(f"v_cndmask_b32 v{T+rr}, v{T+3}, v{T+2}, s[{cur}:{cur+1}]")
    a(f"v_max_f32 v{T+2}, v{T}, v{T+1}"); a(f"v_mov_b32 v{T+3}, v{T+2}"); fx.skip(1)
    a(f"v_permlane16_swap_b32 v{T+2}, v{T+3}", 2); a(f"v_max_f32 v{T+2}, v{T+2}, v{T+3}"); a(f"v_mov_b32 v{T+3}, v{T+2}"); fx.skip(1)
    a(f"v_permlane32_swap_b32 v{T+2}, v{T+3}", 2); a(f"v_max_f32 v{T+2}, v{T+2}, v{T+3}")
    a(f"v_mul_f32 v{T+2}, v{A_QS+t}, v{T+2}")
    for rr in range(2): a(f"v_fma_f32 v{T+rr}, v{T+rr}, v{A_QS+t}, -v{T+2}")
    for rr in range(2): a(f"v_exp_f32 v{T+rr}, v{T+rr}", 2)
    for rr in range(2): a(f"v_cvt_pk_bf16_f32 v{T+rr}, v{T+rr}, v{T+rr}")
    a(f"v_and_b32 v{PP}, v{T}, v{R.M}"); a(f"v_and_b32 v{PP+1}, v{T+1}, v{R.M+1}")
    a(f"v_and_b32 v{PP+2}, v{T}, v{R.M+2}"); a(f"v_and_b32 v{PP+3}, v{T+1}, v{R.M+3}")
    fx.skip(1)
    a(f"{MF16} {vr(SUM,4)}, {vr(R.ONE,4)}, {vr(PP,4)}, 0", 2)
    a(f"{MF16} {vr(O,4)}, {vr(A_V+2*t,4)}, {vr(PP,4)}, 0", 2)
    fx.skip(3)
    a(f"v_rcp_f32 v{T}, v{SUM}", 2); fx.skip(1)
    for r in range(4): a(f"v_mul_f32 v{O+r}, v{T}, v{O+r}")
    for h in range(2): a(f"v_cvt_pk_bf16_f32 v{A_OP+2*t+h}, v{O+2*h}, v{O+2*h+1}")
    fx.add(lambda: (k.mark(("attn", t)), k.stamp(f"t0 attn{t}")), 0)

def ostore(k, fx, pair):
    b = A_OP + 4 * pair
    fx.dep(("attn", 2*pair)); fx.dep(("attn", 2*pair + 1))
    fx.dep("po1" if pair == 0 else "blank")
    fx.skip(1)
    fx.add(lambda: k.e(f"v_permlane16_swap_b32 v{b}, v{b+2}"), 2); fx.add(lambda: k.e(f"v_permlane16_swap_b32 v{b+1}, v{b+3}"), 2)
    fx.add(lambda: (k.dstore(f"buffer_store_dwordx4 {vr(b,4)}, v{vL16}, {SRD_WS}, s{53+pair} offen", ("ost", pair)), k.mark(("ost", pair))))

Z_WD, Z_TR, Z_HE, Z_HO, Z_OE, Z_OO = 164, 165, 166, 167, 168, 169
Z_XF, Z_SUM, Z_GR, Z_SUMH, Z_GRH, Z_CV = 104, 240, 244, 248, 252, 100
P.k_first = 4; P.k_pack = None; P.k_prep = 12
P.k_look, P.k_atom, P.k_bar, P.k_vgap, P.k_pst, P.k_pgap = 3, 5, 3, 3, 3, 0
NS0 = 6
def z_acc(t):
    if t == "h": return (None, A_ACC + 48, A_ACC + 52)
    return (A_ACC + 12*t, A_ACC + 12*t + 4, A_ACC + 12*t + 8)

def a10_lanes(k):
    k.e("v_lshrrev_b32 v60, 3, v1", "v_and_b32 v61, 6, v60", "v_and_b32 v62, 7, v1", "v_xor_b32 v61, v61, v62",
        "v_lshlrev_b32 v61, 4, v61", f"v_lshl_add_u32 v{A_DX}, v60, 10, v61")
    k.e("v_and_b32 v61, 2, v60", f"s_and_b32 s32, s{sW}, 1", "s_lshl_b32 s32, s32, 2", "v_or_b32 v61, s32, v61", "v_xor_b32 v61, v61, v62",
        "v_lshlrev_b32 v61, 4, v61", "v_mul_u32_u24 v60, 3072, v60", f"v_add_u32 v{Z_WD}, v60, v61")
    if isinstance(P.rot, tuple):
        al, be, ga = P.rot
        k.e(f"s_and_b32 s32, s{sB}, 3", f"s_mul_i32 s32, s32, {al}", f"s_lshr_b32 s33, s{sB}, 2", f"s_mul_i32 s33, s33, {be}", "s_add_u32 s32, s32, s33",
            f"s_mul_i32 s33, s{sCS}, {ga}", f"s_add_u32 s{sROT}, s32, s33")
    elif P.rot == 0: k.e(f"s_add_u32 s{sROT}, s{sB}, s{sCS}")
    elif P.rot == 1: k.e(f"s_lshl_b32 s32, s{sB}, 1", f"s_bfe_u32 s33, s{sB}, 0x10002", "s_add_u32 s32, s32, s33", f"s_add_u32 s{sROT}, s32, s{sCS}")
    elif P.rot == 2: k.e(f"s_lshl_b32 s32, s{sB}, 1", f"s_add_u32 s{sROT}, s32, s{sCS}")
    elif P.rot == 3: k.e(f"s_mov_b32 s{sROT}, s{sCS}")
    elif P.rot == 4: k.e(f"s_lshl_b32 s32, s{sB}, 1", f"s_bfe_u32 s33, s{sB}, 0x10002", f"s_add_u32 s{sROT}, s32, s33")
    elif P.rot == 5: k.e(f"s_mov_b32 s{sROT}, 0")
    elif P.rot == 6: k.e(f"s_mul_i32 s32, s{sB}, 3", f"s_add_u32 s{sROT}, s32, s{sCS}")
    elif P.rot == 7: k.e(f"s_lshr_b32 s32, s{sB}, 2", f"s_add_u32 s{sROT}, s32, s{sCS}")
    elif P.rot == 8: k.e(f"s_lshr_b32 s32, s{sB}, 2", f"s_add_u32 s32, s32, s{sB}", f"s_add_u32 s{sROT}, s32, s{sCS}")
    k.e(f"s_and_b32 s{sROT}, s{sROT}, 7")
    k.e(f"s_lshl_b32 s47, s{sB}, 3", "s_sub_u32 s48, s47, 2", "s_max_i32 s48, s48, 0", f"s_and_b32 s32, s{sW}, 1", "s_add_u32 s48, s48, s32",
        "s_lshl_b32 s48, s48, 13", f"s_lshl_b32 s32, s{sW}, 1", "s_add_u32 s47, s47, s32", "s_lshl_b32 s47, s47, 13")
    k.e(f"s_mul_i32 s51, s{sW}, {8*3072}", f"s_lshl_b32 s32, s{sCS}, 7", "s_add_u32 s51, s51, s32", f"s_mul_i32 s52, s{sW}, 3072")
    k.e(f"s_lshl_b32 s49, s{sW}, 14", f"s_and_b32 s32, s{sW}, 1", "s_lshl_b32 s50, s32, 13", f"s_lshr_b32 s32, s{sW}, 1",
        "s_lshl_b32 s33, s32, 10", "s_add_u32 s50, s50, s33", f"s_add_u32 s90, s32, s{sROT}")

def a10_x(k, c):
    S = lambda *t: [("s", lambda x=x: k.e(x)) for x in t]
    ld = lambda: k.vm(f"buffer_load_dwordx4 v{A_DX}, {SRD_X}, s33 offen {P.x_mod} lds", ("x", c))
    ops = S(f"s_add_u32 s33, s{sROT}, {c}", "s_and_b32 s33, s33, 7", "s_lshl_b32 s33, s33, 7", f"s_add_u32 m0, s49, {L_X + c*1024}", "s_add_u32 s33, s33, s47")
    ops += [("v", ld)] + S(f"s_add_u32 m0, s49, {L_X + 8192 + c*1024}", "s_add_u32 s33, s33, 8192") + [("v", ld)]
    if c % 2 == 0:
        ops += S(f"s_add_u32 s33, s90, {c}", "s_and_b32 s33, s33, 7", "s_lshl_b32 s33, s33, 7", f"s_add_u32 m0, s50, {L_XH0 + c*1024}", "s_add_u32 s33, s33, s48") + [("v", ld)]
    return ops

def a10_w(k, s):
    S = lambda *t: [("s", lambda x=x: k.e(x)) for x in t]
    if s & 1: ops = S(f"s_add_u32 m0, s52, {(s % NS0)*12288}", f"s_add_u32 s63, s63, {32*3072}")
    else: ops = S(f"s_add_u32 s63, s{sROT}, {s>>1}", "s_and_b32 s63, s63, 7", f"s_mul_i32 s63, s63, {64*3072}", f"s_add_u32 m0, s52, {(s % NS0)*12288}", "s_add_u32 s63, s63, s51")
    for p in range(3): ops.append(("v", lambda p=p: k.vm(f"buffer_load_dwordx4 v{Z_WD}, {SRD_QKV}, s63 offen offset:{p*1024} {P.w_mod} lds", ("w", s))))
    return ops
def run(ops):
    for _, f in ops: f()

def fill(k, mains, streams, cap=2):
    lastv = -99
    for g, m in enumerate(mains):
        m(); k.gap = g
        for a, o in streams:
            if a <= g and o and o[0][0] == "s": o.pop(0)[1](); break
        room = cap; nd = 0
        if g - lastv >= P.k_vgap and k.bg_step(): room -= 1; lastv = g
        while room > 0:
            pick = None
            for a, o in streams:
                if a > g or not o: continue
                t = o[0][0]
                if t == "d" and nd >= 1: continue
                if t == "v" and g - lastv < P.k_vgap: continue
                pick = o; break
            if pick is None: break
            t, f = pick.pop(0); f(); room -= 2 if t == "b" else 1
            if t == "d": nd += 1
            if t == "v": lastv = g
    for a, o in streams: run(o)

def a10_lanes2(k):
    k.e("v_lshrrev_b32 v60, 4, v1", "v_bfe_u32 v61, v1, 2, 2", "v_and_b32 v62, 1, v60", "v_lshlrev_b32 v62, 1, v62",
        "v_lshrrev_b32 v63, 1, v61", "v_or_b32 v62, v62, v63", f"v_xor_b32 v62, s{sW}, v62", "v_lshlrev_b32 v62, 5, v62",
        "v_mul_u32_u24 v60, 3072, v60", "v_lshl_add_u32 v60, v61, 7, v60", "v_add_u32 v60, v60, v62",
        "v_and_b32 v61, 3, v1", f"v_lshl_add_u32 v{Z_TR}, v61, 3, v60")
    k.e("v_and_b32 v60, 15, v1", "v_cmp_eq_u32 s[78:79], 0, v60")
    k.e(f"v_subrev_u32 v{Z_HE}, 16384, v{R0.XE}", f"v_subrev_u32 v{Z_HO}, 16384, v{R0.XO}",
        f"v_add_u32 v{Z_OE}, s49, v{R0.XE}", f"v_add_u32 v{Z_OO}, s49, v{R0.XO}")

def a10_loop(k, first):
    LA = P.k_look
    def sync(s, extra=()):
        k.wait(vm=[("w", s), ("x", s >> 1)] + list(extra)); k.e("s_barrier")
    nxt = [first]
    def dmas(upto):
        out = []
        while nxt[0] <= min(upto, 15):
            n = nxt[0]; nxt[0] += 1
            if n % 2 == 0: out += a10_x(k, n // 2)
            out += a10_w(k, n)
        return out
    def reads(s):
        fb = Z_XF + 24 * (s & 1); off = (s >> 1) * 1024; o = s & 1
        tr = lambda p, j: ("d", lambda: k.ds(f"ds_read_b64_tr_b16 {ar(12*s+4*p+2*j,2)}, v{Z_TR} offset:{(s%NS0)*12288 + p*1024 + j*512}", ("r", s, 0 if p == 0 else 1)))
        xr = lambda d, a, of, grp: ("d", lambda: k.ds(f"ds_read_b128 {vr(d,4)}, v{a} offset:{of}", ("r", s, grp)))
        out = [tr(0, 0), tr(0, 1)] + [xr(fb + 4*t, R0.XO if o else R0.XE, t*16384 + off, 0) for t in range(4)]
        out += [tr(1, 0), tr(1, 1), tr(2, 0), tr(2, 1), xr(fb + 16, Z_HO if o else Z_HE, off, 1), xr(fb + 20, Z_OO if o else Z_OE, off, 1)]
        return out
    l0_background(k)
    pst = pack_stores(k)
    sync(0)
    k.stamp("k0")
    run(reads(0)); run(dmas(LA - 1))
    for s in range(16):
        fb = Z_XF + 24 * (s & 1)
        c = lambda r: "0" if s == 0 else vr(r, 4)
        wq, wk, wv, one = ar(12*s, 4), ar(12*s + 4, 4), ar(12*s + 8, 4), vr(R0.ONE, 4)
        ms = [f"{MF16} {vr(z_acc(t)[0],4)}, {wq}, {vr(fb+4*t,4)}, {c(z_acc(t)[0])}" for t in range(4)]
        for t in [0, 1, 2, 3, "h"]:
            xf = vr(fb + (16 if t == "h" else 4*t), 4)
            ms.append(f"{MF16} {vr(z_acc(t)[1],4)}, {wk}, {xf}, {c(z_acc(t)[1])}")
            ms.append(f"{MF16} {vr(z_acc(t)[2],4)}, {xf}, {wv}, {c(z_acc(t)[2])}")
        ms += [f"{MF16} {vr(Z_CV,4)}, {wq}, {vr(fb+16,4)}, {c(Z_CV)}",
               f"{MF16} {vr(Z_SUM,4)}, {one}, {vr(fb+20,4)}, {c(Z_SUM)}", f"{MF16} {vr(Z_GR,4)}, {vr(fb+20,4)}, {vr(fb+20,4)}, {c(Z_GR)}",
               f"{MF16} {vr(Z_GRH,4)}, {vr(fb+16,4)}, {vr(fb+16,4)}, {c(Z_GRH)}"]
        if not P.gram1: ms.append(f"{MF16} {vr(Z_SUMH,4)}, {one}, {vr(fb+16,4)}, {c(Z_SUMH)}")
        mains = [lambda m=m: k.e(m) for m in ms]
        if s == P.k_pack:
            k.wait(lg="all"); pack_process(k, lambda: None, lambda: None)
        k.wait(lg=[("r", s, 0)])
        streams = [(3, [("s", lambda: k.wait(lg=[("r", s, 1)]))] +
                       [("a", lambda d=d: k.e(f"v_cndmask_b32 v{fb+16+d}, v{fb+16+d}, v{R0.ONE}, s[78:79]")) for d in range(4)])]
        if s + 1 < 16:
            ex = ["pks"] if s + 1 == P.k_atom else []
            assert not ex or not pst, "arrival before the last pack store"
            assert P.k_prep > 14 - LA and (P.k_pack or 0) <= 8 - LA
            ops = [("b", lambda: sync(s + 1, ex))] + reads(s + 1)
            if ex: ops.append(("b", lambda: arrive(k)))
            streams.append((P.k_bar, ops))
            streams.append((0, dmas(s + LA)))
        n = 0; mine = []
        while pst and s >= (P.k_pack or 0) and (n < P.k_pst or pst[0][0] == "a"):
            n += pst[0][0] == "v"; mine.append(pst.pop(0))
        streams.append((P.k_pgap, mine))
        if s == P.k_prep: streams.append((6, tail_prep(k)))
        if s == P.k_touch:
            streams.append((2, [("b", lambda: k.touch(157, "p", ["s_mov_b32 s32, s53"], False) if (0, "ost", True) not in P.wt else None),
                                ("b", lambda: k.touch(158, "q", [f"s_add_u32 s32, s64, {BX2()}"], False) if (0, "xst", False) not in P.wt and P.x1_at == "k" else None),
                                ("b", lambda: k.touch(159, "h", h_base("s32", 0), False) if P.h_touch0 == "k" else None)]))
        if s == P.k_gb: streams.append((1, [("v", lambda t=t: k.vm(t, "gb")) for t in GB_LOADS]))
        if s == P.k_chk: streams.append((1, [("b", lambda: rendezvous(k))]))
        if s == 15 and P.k_chk < 16:
            streams.append((max(P.k_bar, 4), [("b", lambda: (k.e("s_barrier"), k.mark("xfree")))]))
        fill(k, mains, streams)
        if s in (3, 7, 11): k.stamp(f"k{s+1}")
    k.stamp("k16")
    if P.k_chk >= 16: rendezvous(k)

GB_LOADS = [f"buffer_load_dwordx4 {vr(36+4*j,4)}, v{vL16}, {SRD_WS}, s75 offen offset:{j*1024} sc1" for j in range(4)] + \
           [f"buffer_load_dword v{vP}, v172, {SRD_WS}, s77 offen offset:8 sc1"]
def arrive(k):
    k.wait(vm=["tag"])
    k.e(f"v_readfirstlane_b32 s{sTAG}, v170", f"s_cmp_eq_u32 s{sTAG}, 0", "s_cbranch_scc1 L_tag_spin ;np", "L_tag_ok: ;np")
    k.spins += ["L_tag_spin:", f"s_sub_u32 s{sBUD}, s{sBUD}, 1", "s_cbranch_scc1 L_tag_give", f"buffer_load_dword v170, v{vFA}, {SRD_DBG}, 0 offen sc1",
                "s_waitcnt vmcnt(0)", f"v_readfirstlane_b32 s{sTAG}, v170", f"s_cmp_eq_u32 s{sTAG}, 0", "s_cbranch_scc1 L_tag_spin", "s_branch L_tag_ok",
                "L_tag_give:", f"s_mov_b32 s{sBUD}, 0", "s_branch L_tag_ok"]
    k.e(f"v_mov_b32 v176, s{sTAG}", "v_not_b32 v177, v176", f"v_mov_b32 v178, s{sXCC}")
    k.vm(f"buffer_store_dwordx4 v[176:179], v171, {SRD_WS}, s75 offen sc1", "arr")

def rendezvous(k):
    chk = [f"s_not_b32 s32, s{sTAG}"]
    for j in range(4): chk += [f"v_xor_b32 v{36+4*j}, s{sTAG}, v{36+4*j}", f"v_xor_b32 v{37+4*j}, s32, v{37+4*j}"]
    chk += ["v_or3_b32 v36, v36, v37, v40", "v_or3_b32 v44, v44, v45, v41", "v_or3_b32 v36, v36, v48, v49", "v_or_b32 v36, v36, v44", "v_cmp_ne_u32 vcc, 0, v36"]
    k.wait(vm=["gb"])
    k.e(*chk); k.e("s_cbranch_vccnz L_gb_spin ;np", "L_gb_ok: ;np")
    k.spins += ["L_gb_spin:", f"s_sub_u32 s{sBUD}, s{sBUD}, 1", "s_cbranch_scc1 L_gb_give", "s_sleep 2",
                f"buffer_load_dword v170, v{vFA}, {SRD_DBG}, 0 offen sc1", "s_waitcnt vmcnt(0)", "v_readfirstlane_b32 s32, v170", f"s_cmp_eq_u32 s32, s{sTAG}",
                "s_cbranch_scc1 L_gb_same", f"s_mov_b32 s{sTAG}, s32", f"v_mov_b32 v176, s{sTAG}", "v_not_b32 v177, v176",
                f"buffer_store_dwordx4 v[176:179], v171, {SRD_WS}, s75 offen sc1", "L_gb_same:"] + GB_LOADS + ["s_waitcnt vmcnt(0)"] + chk + \
               ["s_cbranch_vccnz L_gb_spin", "s_branch L_gb_ok", "L_gb_give:", f"s_mov_b32 s{sBUD}, 0", "s_branch L_gb_ok"]
    k.e(f"v_cmp_ne_u32 vcc, s{sXCC}, v{vP}", "s_and_b32 s99, vcc_lo, 0xffff" if not P.safe else "s_and_b32 s99, 1, 1",
        f"s_cselect_b32 s{sML}, {OOB>>1:#x}, 0", f"s_cselect_b32 s{sMS}, 0, {OOB>>1:#x}")
    k.mark("gb")

W_OA, W_UA, W_SA, W_RB = 152, 154, 155, 156
def wo_bases(k):
    k.e(f"s_lshl_b32 s32, s{sB}, 2", f"s_add_u32 s32, s32, s{sW}", "s_lshl_b32 s64, s32, 14", f"s_lshl_b32 s33, s{sCS}, {CSH()}", "s_add_u32 s64, s64, s33",
        "s_lshr_b32 s32, s32, 1", "s_lshl_b32 s80, s32, 15", "s_lshl_b32 s65, s32, 11", "s_lshl_b32 s66, s32, 3", f"s_add_u32 s66, s66, s{sCS}", "s_lshl_b32 s66, s66, 1",
        f"s_and_b32 s32, s{sW}, 1", "s_add_u32 s66, s66, s32", "s_lshl_b32 s66, s66, 2", "s_lshl_b32 s32, s32, 8", "s_add_u32 s80, s80, s32", "s_add_u32 s65, s65, s32",
        f"s_lshr_b32 s32, s{sCS}, 1", "s_lshl_b32 s32, s32, 9", "s_add_u32 s65, s65, s32", f"s_and_b32 s32, s{sCS}, 1", "s_lshl_b32 s32, s32, 3", "s_add_u32 s65, s65, s32")
def wo_lanes(k):
    x, y = 66, 67
    return [lambda t=t: k.e(*t) for t in (
        [f"v_and_b32 v{x}, 15, v1"], [f"v_lshrrev_b32 v{y}, 4, v1"], [f"v_lshlrev_b32 v{W_OA}, 4, v{x}"], [f"v_lshl_add_u32 v{W_SA}, v{y}, 2, v{W_OA}"],
        [f"v_lshl_add_u32 v{W_OA}, v{y}, 9, v{W_OA}"], [f"v_and_b32 v{W_UA}, 7, v1"], [f"v_lshlrev_b32 v{W_UA}, 4, v{W_UA}"], [f"v_lshl_add_u32 v{W_UA}, v{y}, {LSH()}, v{W_UA}"],
        [f"v_lshrrev_b32 v{x}, 3, v{x}"], [f"v_lshl_add_u32 v{W_UA}, v{x}, 13, v{W_UA}"], [f"v_add_u32 v{W_RB}, {6*16384}, v{vL16}"],
        ["v_cmp_gt_u32 vcc, 32, v1", f"v_mov_b32 v{y}, {OOB:#x}", f"v_cndmask_b32 v{W_SA}, v{y}, v{W_SA}, vcc"])]
def blanks(k, layer):
    if not P.tags: return [lambda: k.mark("blank")]
    z = 66
    return [lambda: (k.e(f"v_mov_b32 v{z}, -1"), k.dstore(f"buffer_store_dword v{z}, v{vL16}, {SRD_WS}, s53 offen", "blank")),
            lambda: (k.e(f"s_add_u32 s58, s64, {BX2()}"), k.dstore(f"buffer_store_dword v{z}, v{W_UA}, {SRD_WS}, s58 offen", "blank")),
            lambda: k.dstore(f"buffer_store_dword v{z}, v{W_UA}, {SRD_WS}, s58 offen offset:512", "blank"),
            lambda: (k.e(f"s_add_u32 s58, s65, {BS1[layer]}"), k.dstore(f"buffer_store_dword v{z}, v{W_SA}, {SRD_WS}, s58 offen", "blank"), k.mark("blank"))]
def wo_prepoll(k, layer):
    k.poll_addr(A_PA, 32)
    k.e(f"s_lshl_b32 s32, s{sB}, 7", f"s_add_u32 s{sPO}, s32, {fl(layer, FL_O)}", *o_block("s59", layer), "s_and_b32 s32, s80, 0xffff", "s_add_u32 s59, s59, s32")
    k.bg_held = True
    k.poll_issue(A_PA, "po1"); k.mark("po1")

def dna(k): return regloads(k, sDS, 0, lambda j: ar(192 + 4*j, 4), 16, "dna")

def tail_prep(k):
    R = R0
    A = lambda *t: [("a", lambda x=x: k.e(x)) for x in t]
    B = lambda *t: [("b", lambda: k.e(*t))]
    ops = A("v_and_b32 v73, 15, v1", "v_lshrrev_b32 v74, 4, v1", "v_lshlrev_b32 v73, 10, v73", "v_lshl_add_u32 v73, v74, 4, v73")
    ops += B(f"s_lshl_b32 s58, s{sB}, 2", f"s_add_u32 s58, s58, s{sW}", "s_lshl_b32 s58, s58, 14", f"s_lshl_b32 s59, s{sCS}, 7", "s_add_u32 s58, s58, s59")
    ops += [("v", lambda p=p: k.vm(f"buffer_load_dwordx4 {vr(RES+4*p,4)}, v73, {SRD_X}, s58 offen offset:{p*64}", "res")) for p in range(2)]
    ops += A("v_and_b32 v75, 3, v1", "v_cmp_eq_u32 s[34:35], 1, v75", "v_cmp_eq_u32 s[36:37], 2, v75", "v_cmp_eq_u32 s[38:39], 3, v75", "v_bfe_u32 v75, v1, 2, 2")
    ops += B("v_cmp_eq_u32 vcc, v75, v74", f"v_mov_b32 v72, {L_SA0 + 768}", f"s_lshl_b32 s59, s{sW}, 7", f"v_add_u32 v74, s59, v{R.SA}",
             "v_cndmask_b32 v74, v72, v74, vcc", f"v_cndmask_b32 v75, v72, v{R.SA}, vcc")
    return ops + [("a", f) for f in wo_lanes(k)]

def l0_background(k):
    k.per = dict(P.per_k)
    dd = dna(k)
    bg_list(k, dd[:P.dna_first], "s4", "dna", "gb")
    bg_list(k, wow(k), "s4", "wow", "xfree")
    bg_batches(k, [0, 1, 2, 3], "s2", lambda b: "xfree")
    bg_batches(k, [4], "s2", lambda b: "wobar")
    bg_batches(k, [5], "s2", lambda b: "xfree")
    bg_batches(k, [6, 7, 8, 9], "s2", lambda b: "gubar")
    bg_list(k, dd[P.dna_first:], "s4", "dna")
P.per_k = {"s2": 90, "s4": 70}

def a10_tail(k):
    R = R0
    k.per = dict(P.per_tail0)
    k.stamp("t0 gb")
    xt = [lambda: k.touch(72, "t", [f"s_add_u32 s32, s65, {BS1[0]}"])]
    if P.x1_at != "k": xt.append(lambda: k.touch(158, "q", [f"s_add_u32 s32, s64, {BX2()}"]))
    if (0, "xst", False) in P.wt: xt = []
    if P.x1_at == "k":
        for f in xt: f()
    k.bg_burst(P.tail_burst); k.bg_next = k.t + P.tail_delay
    hk, hv = z_acc("h")[1], z_acc("h")[2]
    for r in range(4):
        k.e(f"v_mov_b32_dpp v{CSQ+r}, v{Z_CV+r} row_newbcast:0 row_mask:0xf bank_mask:0xf", f"v_mov_b32_dpp v{CSK+r}, v{hk+r} row_newbcast:0 row_mask:0xf bank_mask:0xf")
    k.e(f"v_mov_b32 v{CSV}, v{hv}", f"v_mov_b32 v45, v{hv}", f"v_permlane16_swap_b32 v{CSV}, v45", f"v_mov_b32 v45, v{CSV}", f"v_permlane32_swap_b32 v{CSV}, v45")
    if P.gram1:
        k.e(f"v_mov_b32 v{Z_SUMH}, v{Z_GRH}", f"v_mov_b32 v45, v{Z_GRH}", f"v_permlane16_swap_b32 v{Z_SUMH}, v45", f"v_mov_b32 v45, v{Z_SUMH}", f"v_permlane32_swap_b32 v{Z_SUMH}, v45")
    fa = Flex(); fb = Flex()
    for fx, S, G, ad, off in ((fa, Z_SUM, Z_GR, 74, 128), (fb, Z_SUMH, Z_GRH, 75, 0)):
        a = lambda txt, c=1, fx=fx: fx.add(lambda: k.e(txt), c)
        a(f"v_cndmask_b32 v{S+1}, v{G}, v{G+1}, s[34:35]"); a(f"v_cndmask_b32 v{S+1}, v{S+1}, v{G+2}, s[36:37]"); a(f"v_cndmask_b32 v{S+1}, v{S+1}, v{G+3}, s[38:39]")
        ln_finish(a, S, S + 1); a(f"v_rsq_f32 v{S+1}, v{S+1}"); fx.skip(1)
        fx.add(lambda S=S, ad=ad, off=off: k.ds(f"ds_write_b64 v{ad}, {vr(S,2)} offset:{off}", "saw"))
    drain([fa, fb], k)
    for f in blanks(k, 0): f()
    k.wait(lg="all"); k.e("s_barrier"); k.mark("xfree")
    k.stamp("t0 bar")
    fx = Flex(); f1 = Flex(); f2 = Flex()
    od = (2, 1, 3, 0, "h"); Ss = (A_STA, 56)
    for f in fix_reads(k, R, od[0], Ss[0]): f()
    for n, t in enumerate(od):
        fix(k, R, fx, t, z_acc(t), 0, True, Ss[n & 1], True, fix_reads(k, R, od[n + 1], Ss[~n & 1]) if n < 4 else ()); fx.skip(1)
    attn(k, R, f1, 2, R.ATT[0]); attn(k, R, f2, 3, R.ATT[1]); ostore(k, f2, 1)
    attn(k, R, f1, 1, R.ATT[0]); attn(k, R, f2, 0, R.ATT[1]); ostore(k, f2, 0)
    f4 = Flex()
    if P.x1_at != "k":
        f4.dep(P.x1_at)
        for f in xt: f4.add(f)
    f3 = Flex(); f3.dep(("ost", 1))
    for _ in range(P.l0_flag_delay): f3.skip(1)
    f3.add(lambda: (k.wait(vm=[("ost", 1)]), k.flag(1, 89), k.mark("oflag1")))
    f3.dep(("attn", 0)); f3.add(lambda: wo_prepoll(k, 0))
    drain([fx, f1, f2, f3, f4], k)
    k.stamp("a1 end")
P.x1_at = 'k'; P.tail_burst = 2; P.tail_delay = 0; P.l0_flag_delay = 6; P.dna_first = 2
P.per_tail0 = {"s2": 70, "s4": 45}

def a11_bases(k):
    out = []
    S = lambda *t: out.extend(lambda x=x: k.e(x) for x in t)
    S(f"s_lshr_b32 s70, s{sW}, 1", "s_lshl_b32 s49, s70, 13", f"s_and_b32 s71, s{sW}, 1", "s_lshl_b32 s71, s71, 2",
      f"s_add_u32 s50, s71, s{sROT}", "s_lshl_b32 s71, s71, 10")
    for i in range(4):
        S(f"s_add_u32 s70, s50, {i}", "s_and_b32 s70, s70, 7", f"s_lshl_b32 s70, s70, {CSH()}", "s_add_u32 s70, s70, s49", f"s_sub_u32 s{92+i}, s70, {0 if P.x_out else i*1024}")
    S("s_add_u32 s49, s49, s71", f"s_lshl_b32 s47, s{sB}, 16", f"s_add_u32 s47, s47, {BX2()}")
    S(f"s_sub_u32 s48, s{sB}, 1", "s_max_i32 s48, s48, 0", "s_lshl_b32 s51, s48, 10", f"s_add_u32 s51, s51, {WS_HST}",
      "s_lshl_b32 s52, s48, 11", f"s_add_u32 s52, s52, {WS_HXF}", "s_lshl_b32 s48, s48, 14", f"s_add_u32 s48, s48, {WS_HALO}")
    S("v_lshrrev_b32 v28, 4, v1", "v_and_b32 v29, 15, v1", "v_lshlrev_b32 v29, 4, v29", f"v_lshl_add_u32 v{A_U}, v28, 9, v29", f"v_lshl_add_u32 v{A_U+1}, v28, 8, v29")
    S(f"s_lshl_b32 s70, s{sB}, 12", f"s_and_b32 s71, s{sW}, 1", "s_lshl_b32 s71, s71, 8", "s_add_u32 s70, s70, s71", f"s_add_u32 s90, s70, {BS2()}")
    out.append(lambda: k.e(f"s_lshl_b32 s70, s{sB}, 1", f"s_add_u32 s70, s70, s{sW}", "s_lshl_b32 s72, s70, 13", f"s_lshl_b32 s71, s{sCS}, {CSH()}", "s_add_u32 s72, s72, s71",
        f"s_add_u32 s72, s72, {WS_HALO - 16384}", f"s_cmp_ge_u32 s{sW}, 2", f"s_cselect_b32 s72, s72, {OOB>>1:#x}"))
    out.append(lambda: k.e(f"s_lshl_b32 s73, s{sB}, 10", f"s_lshr_b32 s71, s{sCS}, 1", "s_lshl_b32 s71, s71, 8", "s_add_u32 s73, s73, s71", f"s_and_b32 s71, s{sCS}, 1",
        "s_lshl_b32 s71, s71, 3", "s_add_u32 s73, s73, s71"))
    out.append(lambda: k.e(f"s_lshl_b32 s71, s{sW}, 7", "s_add_u32 s73, s73, s71", f"s_add_u32 s73, s73, {WS_HST - 256}",
        f"s_cmp_ge_u32 s{sW}, 2", f"s_cselect_b32 s73, s73, {OOB>>1:#x}"))
    out.append(lambda: k.e(f"s_lshl_b32 s70, s{sB}, 3", f"s_add_u32 s70, s70, s{sCS}", "s_lshl_b32 s70, s70, 1", f"s_add_u32 s70, s70, s{sW}", "s_lshl_b32 s70, s70, 7",
        f"s_add_u32 s70, s70, {WS_HXF - 256}", f"s_cmp_ge_u32 s{sW}, 2", f"s_cselect_b32 s91, s70, {OOB>>1:#x}"))
    return out

def a11_x(k, tile):
    fns = []
    for i in range(4):
        def f(i=i):
            k.set_m0(f"s_add_u32 m0, s49, {A11_POS[tile]*16384 + (i*1024 if P.x_out else 0)}")
            k.e(f"s_add_u32 s32, s{48 if tile == 'h' else 47}, s{92+i}")
            if tile not in (0, "h"): k.e(f"s_add_u32 s32, s32, {tile*16384}")
            k.vm(f"buffer_load_dwordx4 v{RX(False)}, {SRD_WS if tile == 'h' else XS()}, s32 offen offset:{0 if P.x_out else i*1024} sc1 lds", ("x", tile))
        fns.append(f)
    return fns

def stats_path(k, fx, S, tag, addr, tok, at=0):
    a = lambda txt, c=1: fx.add(lambda: k.e(txt), c)
    s, q = S, S + 1
    fx.add(lambda: k.wait(vm=[tag]), 1, at)
    a(f"v_add_f32 v{s}, v{s}, v{S+2}"); a(f"v_add_f32 v{q}, v{q}, v{S+3}"); fx.skip(1)
    a(f"v_permlane16_swap_b32 v{s}, v{q}", 2); a(f"v_add_f32 v{s}, v{s}, v{q}"); a(f"v_mov_b32 v{q}, v{s}"); fx.skip(1)
    a(f"v_permlane32_swap_b32 v{s}, v{q}", 2); a(f"v_add_f32 v{s}, v{s}, v{q}"); a(f"v_mov_b32 v{q}, v{s}"); fx.skip(1)
    a(f"v_permlane16_swap_b32 v{s}, v{q}", 2)
    ln_finish(a, s, q); a(f"v_rsq_f32 v{q}, v{q}", 2); fx.skip(1)
    fx.add(lambda: (k.ds(f"ds_write_b64 v{addr}, {vr(s,2)} offset:{tok*8}", ("saw", tag)), k.mark(("saw", tag))))

def a11_early(k, later=False):
    fns = a11_x(k, A11_ORDER[0]) + [lambda: k.vm(f"buffer_load_dwordx4 {vr(A_ST,4)}, v{A_U}, {SRD_WS}, s90 offen offset:2048 sc1", "st0")] + a11_x(k, A11_ORDER[1])
    if later: return fns
    for f in fns: f()

def a11_main(k):
    R = R1; order = A11_ORDER
    steps = [(t, s) for t in order for s in range(16)]
    accof = lambda t: A_ACC + 12 * (order.index(t) % 3)
    def xread(i):
        t, s = steps[i]
        off = A11_POS[t] * 16384 + (s >> 1) * 1024
        k.ds(f"ds_read_b128 {vr(A_XF+4*(i%4),4)}, v{R.XO if s&1 else R.XE} offset:{off}", ("xf", i))
    mains = []; fixed = {}; gap_of = {}
    need_sa = {order[1]: ["st0"], order[2]: ["st1"], order[3]: [], "h": []}
    for i, (t, s) in enumerate(steps):
        acc = accof(t); xf = vr(A_XF + 4*(i % 4), 4)
        c = lambda r, s=s: "0" if s == 0 else vr(r, 4)
        ms = []
        if t != "h": ms.append(f"{MF16} {vr(acc,4)}, {ar(12*s,4)}, {xf}, {c(acc)}")
        ms.append(f"{MF16} {vr(acc+4,4)}, {ar(12*s+4,4)}, {xf}, {c(acc+4)}")
        ms.append(f"{MF16} {vr(acc+8,4)}, {xf}, {ar(12*s+8,4)}, {c(acc+8)}")
        gap_of[(t, s)] = len(mains)
        for m in ms: mains.append(lambda m=m: k.e(m))
        last = len(mains) - 1
        fl_ = fixed.setdefault(last, [])
        if i + 1 < len(steps): fl_.append((0, lambda i=i: k.wait(lg=[("xf", i + 1)])))
        j = i + 4
        if j < len(steps):
            tj, sj = steps[j]
            if sj == 0:
                def bar(tj=tj):
                    k.wait(vm=[("x", tj)], lg=[("saw", n) for n in need_sa[tj]]); k.e("s_barrier"); k.mark(("bar", tj))
                fixed.setdefault(gap_of[(t, s)], []).append((1, bar))
            fixed[last].append((1, lambda j=j: xread(j)))
    fx = Flex(); fz = Flex(); fz2 = Flex(); fy = Flex(); fm = Flex()
    k.e(f"s_and_b32 s32, s{sW}, 1", "s_lshl_b32 s32, s32, 7", f"v_add_u32 v6, s32, v{R.SA}")
    o_bases(k, 1)
    stats_path(k, fy, A_ST, "st0", 6, 48)
    g1 = P.a1_late_gap
    fm.add(lambda: (k.wait(vm=[("xst", 1)]), k.flag(2)), 3, P.a1_flag_gap)
    fm.add(lambda: (k.poll_issue(A_PX, "px2"), setattr(k, "bg_held", not P.a1_bg_early)), 1, g1 - P.a1_poll_lead)
    fm.add(lambda: k.poll_check(A_PX, "px2", 2), 2, g1)
    fm.add(lambda: k.vm(f"buffer_load_dwordx4 {vr(56,4)}, v{A_U}, {SRD_WS}, s90 offen sc1", "st1"))
    for t in order[2:4]:
        for f in a11_x(k, t): fm.add(f, 2); fm.skip(P.a1_xgap)
    for f in wo_lanes(k): fy.add(f)
    fy.add(lambda: k.mark("wolanes"), 0)
    fm.dep("wolanes")
    for p in range(2):
        fm.add(lambda p=p: (k.e(f"s_add_u32 s58, s64, {BX2() + (p << (2 + LSH()))}"), k.vm(f"buffer_load_dwordx4 {vr(RES+4*p,4)}, v{W_UA}, {XS()}, s58 offen sc1", "res")), 2); fm.skip(P.a1_xgap)
    def halo_poll():
        k.poll_addr(A_PX, 16, 7)
        k.e(f"s_mov_b32 s{sPO}, s52", f"s_min_u32 s50, s{sB}, 1")
        k.poll_issue(A_PX, "phx"); k.bg_held = False
    fm.add(halo_poll, 3)
    for c in P.t1_a1:
        if c == "o": fm.add(lambda: k.touch(60, "p", ["s_mov_b32 s32, s53"]), 6)
        if c == "x": fm.add(lambda: k.touch(62, "q", [f"s_add_u32 s32, s64, {BX2()}"]), 6)
        if c == "s": fm.add(lambda: k.touch(64, "t", [f"s_add_u32 s32, s65, {BS1[1]}"]), 4)
    for f in blanks(k, 1): fm.skip(P.a1_xgap); fm.add(f, 3)
    stats_path(k, fy, 56, "st1", 6, 16, g1 + 26)
    fm.dep(("bar", order[2]))
    fm.add(lambda: k.poll_check(A_PX, "phx", "s50"), 2)
    fm.add(lambda: k.vm(f"buffer_load_dwordx4 {vr(A_ST,4)}, v{A_U+1}, {SRD_WS}, s51 offen sc1", "sth"))
    for f in a11_x(k, "h"): fm.add(f, 2); fm.skip(P.a1_xgap)
    stats_path(k, fy, A_ST, "sth", R.SA, 0, gap_of[(order[3], P.a1_sth)])
    k.per = dict(P.per_a1); k.bg_held = True
    b5 = batch(k, 5)
    mix = [(f, "s2", ("gw", 4), None) for f in batch(k, 4)] + [(f, "s2", ("gw", 5), None) for f in b5[:3]]
    ww = [(f, "s4", "wow", None) for f in wow(k)]
    while mix or ww:
        k.bg += ww[:2]; ww = ww[2:]
        if mix: k.bg.append(mix.pop(0))
    bg_batches(k, [0], "s2", lambda b: ("bar", order[3]))
    bg_batches(k, [1], "s2", lambda b: ("bar", "h"))
    bg_batches(k, [2, 3], "s2", lambda b: "wobar")
    bg_list(k, b5[3:], "s2", ("gw", 5), "wobar")
    if P.dn1_agpr:
        for j, f in enumerate(regloads(k, sDS, 16*1024, lambda j: ar(4*j, 4), 40, "dnr", tagf=lambda j: ("dnr", 8 + j // 2))): k.bg_add(f, "s4", ("dnr", 8 + j // 2), "gemm_done")
    bg_batches(k, [6, 7, 8, 9], "s2", lambda b: "gubar")
    A = lambda t: (accof(t) if t != "h" else None, accof(t) + 4, accof(t) + 8)
    for n in range(4): fix(k, R, fx, order[n], A(order[n]), gap_of[(order[n + 1], 1 if n < 3 else 2)], False)
    attn(k, R, fz, 3, R.ATT[0]); attn(k, R, fz2, 2, R.ATT[1]); ostore(k, fz2, 1)
    attn(k, R, fz, 1, R.ATT[0])
    fx.dep(("saw", "sth"))
    for f in fix_reads(k, R, "h", A_STA): fx.add(f)
    fx.dep("gemm_done")
    fix(k, R, fx, "h", A("h"), 0, False, pre=True); attn(k, R, fz2, 0, R.ATT[1]); ostore(k, fz2, 0)
    f3 = Flex(); f3.dep(("ost", 1)); f3.skip(P.l1_flag_delay)
    f3.add(lambda: (k.wait(vm=[("ost", 1)]), k.flag(1, 89), k.mark("oflag1")), 3)
    f3.dep(("attn", 0)); f3.add(lambda: wo_prepoll(k, 1))
    k.wait(vm=[("x", order[0])]); k.e("s_barrier")
    for i in range(4): xread(i)
    k.wait(lg=[("xf", 0)])
    k.stamp("a1 first")
    if k.stamping or P.jitter:
        for t in order[1:]: fixed.setdefault(gap_of[(t, 0)], []).append((0, lambda t=t: k.stamp(f"a1 t{t}")))
        for g in range(6, 224, 12): fixed.setdefault(g, []).append((0, lambda g=g: k.stamp(f"fina {g}")))
    run_gaps(k, mains, fixed, [fm, f3, fy, fx, fz2, fz], 2, over=lambda i: i >= P.a1_over)
    print("a11 left:", len(fm), len(fy), len(fx), len(fz), len(fz2), len(k.bg), {n: g for n, g in k.marks.items() if isinstance(n, tuple) and n[0] in ("fix", "attn", "saw", "ost")})
    k.mark("gemm_done"); k.bg_held = P.a1_tailhold
    k.stamp("a1 gemm")
    drain([fm, fy, fx, fz, fz2, f3], k)
    for n in range(2): assert k.marks[("fix", order[n])] < gap_of[(order[n + 3], 0)], "accumulator reused too early"
    k.stamp("a1 end")
P.a1_flag_gap, P.a1_late_gap, P.a1_poll_lead, P.l1_flag_delay, P.a1_over = 8, 36, 18, 14, 24
P.a1_bg_early = False; P.a1_salead = 12; P.a1_tailhold = True; P.touch1 = 1; P.t1_a1 = ''; P.t1_dn = ''; P.a1_xgap = 3; P.a1_sth = 0
P.per_a1 = {"s2": 80, "s4": 50}

R_W0, R_W1, R_RD, R_ST, R_OUT = 3, 4, 5, 6, 7
def RX(final): return vL16 if not P.x_out else (29 if final else R_OUT)
def red_setup(k, posA, dAB, final):
    x, y, z, u = 28, 29, 30, 31
    k.e(f"s_add_u32 s32, s{sGL}, {posA*16384}", f"v_add_u32 v{R_W0}, s32, v{vL16}", f"v_xor_b32 v{R_W1}, 128, v{R_W0}")
    k.e(f"v_and_b32 v{x}, 7, v1", f"v_lshrrev_b32 v{y}, 3, v1", f"s_lshl_b32 s32, s{sW}, 7", f"v_lshl_add_u32 v{z}, v{x}, 4, s32",
        f"v_bfe_u32 v{u}, v1, 4, 1", f"v_lshlrev_b32 v{R_RD}, 7, v{u}", f"v_xor_b32 v{z}, v{z}, v{R_RD}",
        f"v_bfe_u32 v{R_RD}, v1, 3, 2", f"v_lshl_add_u32 v{z}, v{R_RD}, 10, v{z}", f"v_lshrrev_b32 v{R_RD}, 5, v1",
        f"v_mul_u32_u24 v{R_RD}, {dAB*16384}, v{R_RD}", f"v_add_u32 v{z}, v{z}, v{R_RD}", f"v_add_u32 v{R_RD}, {posA*16384}, v{z}")
    k.e(f"v_lshlrev_b32 v{z}, 4, v{x}", f"v_lshl_add_u32 v{z}, v{u}, 2, v{z}", f"v_and_b32 v{u}, 0x28, v1",
        f"v_cmp_eq_u32 vcc, 0, v{u}", f"v_mov_b32 v{u}, {OOB:#x}", f"v_cndmask_b32 v{R_ST}, v{u}, v{z}, vcc")
    if final: k.e(f"v_lshlrev_b32 v{z}, 10, v{x}", f"v_lshl_add_u32 v{R_OUT}, v{y}, 4, v{z}")
    if P.x_out: k.e(f"v_lshlrev_b32 v{z}, 10, v{y}", f"v_lshl_add_u32 v{RX(final)}, v{x}, 4, v{z}")

def red_bases(k):
    k.e(f"s_lshl_b32 s32, s{sB}, 3", f"s_add_u32 s32, s32, s{sW}", "s_lshl_b32 s55, s32, 13", f"s_lshl_b32 s33, s{sCS}, {CSH()}", "s_add_u32 s55, s55, s33")
    k.e("s_lshl_b32 s57, s32, 13", f"s_lshl_b32 s33, s{sCS}, 7", "s_add_u32 s57, s57, s33")
    k.e(f"s_lshl_b32 s56, s{sB}, 12", f"s_lshr_b32 s33, s{sCS}, 1", "s_lshl_b32 s33, s33, 9", "s_add_u32 s56, s56, s33",
        f"s_and_b32 s33, s{sCS}, 1", "s_lshl_b32 s33, s33, 3", "s_add_u32 s56, s56, s33", f"s_lshl_b32 s33, s{sW}, 7", "s_add_u32 s56, s56, s33")

def red_writes(k, acc, g, off, dAB):
    return [lambda q=q: k.ds(f"ds_write_b128 v{R_W1 if (q>>1)&1 else R_W0}, {vr(acc+4*q,4)} offset:{off + (q>>2)*dAB*16384 + (q&3)*1024}", ("rw", g)) for q in range(8)]
def red_reads(k, g, T, off):
    return [lambda w=w, hf=hf: k.ds(f"ds_read_b128 {vr(T+8*w+4*hf,4)}, v{R_RD} offset:{off + w*4096 + hf*512}", ("rr", g, w)) for w in range(4) for hf in range(2)]

def red_finish(k, fx, g, mm, T, xdst, stdst, final, pk):
    a = lambda txt, c=1: fx.add(lambda: k.e(txt), c)
    R = RES + 4 * mm
    def add8(d, s):
        if pk:
            for i in range(0, 8, 2): a(f"v_pk_add_f32 {vr(d+i,2)}, {vr(d+i,2)}, {vr(s+i,2)}")
        else:
            for i in range(8): a(f"v_add_f32 v{d+i}, v{d+i}, v{s+i}")
    fx.add(lambda: k.wait(lg=[("rr", g, 1)]))
    add8(T, T + 8)
    for i in range(4): a(f"v_lshlrev_b32 v{T+8+2*i}, 16, v{R+i}"); a(f"v_and_b32 v{T+9+2*i}, 0xffff0000, v{R+i}")
    add8(T, T + 8)
    fx.add(lambda: k.wait(lg=[("rr", g, 3)]))
    add8(T + 16, T + 24); add8(T, T + 16)
    for i in range(4): a(f"v_cvt_pk_bf16_f32 v{R+i}, v{T+2*i}, v{T+2*i+1}")
    if final:
        fx.add(lambda: (k.e(f"s_add_u32 s32, s57, {mm*32768}"), k.vm(f"buffer_store_dwordx4 {vr(R,4)}, v{R_OUT}, {SRD_OUT}, s32 offen {P.outm[g]}", ("xst", g))))
        return
    fx.add(lambda: (k.e(f"s_add_u32 s32, s55, {xdst + mm*32768}"), k.dstore(f"buffer_store_dwordx4 {vr(R,4)}, v{RX(final)}, {XS()}, s32 offen", ("xst", g))), 2)
    s, q = T + 32, T + 33
    a(f"v_add_f32 v{s}, v{T}, v{T+1}"); a(f"v_mul_f32 v{q}, v{T}, v{T}"); a(f"v_fmac_f32 v{q}, v{T+1}, v{T+1}")
    for i in range(2, 8): a(f"v_add_f32 v{s}, v{s}, v{T+i}"); a(f"v_fmac_f32 v{q}, v{T+i}, v{T+i}")
    fx.skip(1)
    a(f"v_add_f32_dpp v{s}, v{s}, v{s} row_ror:8 row_mask:0xf bank_mask:0xf"); a(f"v_add_f32_dpp v{q}, v{q}, v{q} row_ror:8 row_mask:0xf bank_mask:0xf")
    fx.skip(1)
    a(f"v_permlane16_swap_b32 v{s}, v{q}", 2); a(f"v_add_f32 v{s}, v{s}, v{q}"); a(f"v_mov_b32 v{q}, v{s}"); fx.skip(1)
    a(f"v_permlane32_swap_b32 v{s}, v{q}", 2); a(f"v_add_f32 v{s}, v{s}, v{q}")
    fx.add(lambda: (k.e(f"s_add_u32 s32, s56, {stdst + mm*2048}"), k.dstore(f"buffer_store_dword v{s}, v{R_ST}, {SRD_WS}, s32 offen", ("xst", g)), k.mark(("xst", g))), 2)

def merge(k, fx, extra, first=0):
    extra = list(extra)
    items = [it for it in fx.items if it[0] != "skip"]; fx.items = []
    per = max(1, (len(items) - first) // max(1, len(extra)))
    for n, it in enumerate(items):
        if n >= first and (n - first) % per == 0 and extra: extra.pop(0)()
        it[1](); k.bg_step()
    for f in extra: f(); k.bg_step()

def wo(k, layer):
    BF, WQ, ACC, T, PA, NQ = 32, 160, 192, 208, A_PA, 8
    state = {}
    def bload(sx):
        k.set_s(f"s_add_u32 s58, s59, {(sx & ~1)*2048}")
        k.vm(f"buffer_load_dwordx4 {vr(BF+4*sx,4)}, v{W_OA}, {SRD_WS}, s58 offen offset:{(sx%2)*2048} sc1", ("b", sx))
    def wread(n): k.ds(f"ds_read_b128 {vr(WQ+4*(n%NQ),4)}, v{W_RB} offset:{n*1024}", ("wq", n))
    k.wait(vm=["wow"]); k.e("s_barrier"); k.mark("wobar")
    k.stamp("wl bar")
    for n in range(NQ): wread(n)
    btxt = lambda sx: [f"s_add_u32 s99, s59, {sx*2048}", f"buffer_load_dwordx4 {vr(BF+4*sx,4)}, v{W_OA}, {SRD_WS}, s99 offen sc1"]
    bchk = lambda sx: k.valid([f"v_cmp_eq_u32 vcc, -1, v{BF+4*sx}"], btxt(sx))
    ptxt = f"buffer_load_dword v{T+20}, v{T+21}, {SRD_WS}, s59 offen sc1"
    if P.tags:
        k.e(f"v_lshlrev_b32 v{T+21}, 8, v{PA}")
        k.e(f"v_or_b32 v{T+21}, v{T+21}, v{PA}", f"v_and_b32 v{T+21}, 0x80007c00, v{T+21}")
        k.poll_check(PA, "po1", 1)
        k.vm(ptxt, "probe")
        for sx in range(P.wo_spec): bload(sx)
        k.e(f"s_lshl_b32 s32, s{sC}, 1", f"s_and_b32 s33, s{sW}, 1", "s_add_u32 s32, s32, s33", "s_lshl_b32 s32, s32, 7", f"s_add_u32 s{sPO}, s32, {fl(layer, FL_O)}")
    else:
        k.e(f"s_add_u32 s{sFO}, s66, {fl(layer, FL_X1)}")
        k.codepf(96)
        if P.wo_setup_first == 2: gu_setup(k, layer)
        k.wait(vm=[("ost", 0)]); k.stamp("wl ack"); k.flag(2, 89)
        k.e(f"s_cmp_lt_u32 s{sW}, 2", f"s_cbranch_scc1 L_wo_late{layer}")
        q0 = list(k.vmq)
        k.poll_check(PA, "po1", 1)
        for sx in range(P.wo_lead): bload(sx)
        if P.wo_setup_first == 1: gu_setup(k, layer)
        k.e(f"s_branch L_wo_join{layer}")
        k.label(f"L_wo_late{layer}")
        k.vmq = list(q0)
        if P.wo_setup_first == 1: gu_setup(k, layer)
        k.poll_issue(PA, "po2"); k.poll_wait(PA, "po2", 2, 157); k.stamp("wl go")
        for sx in range(P.wo_lead): bload(sx)
        k.label(f"L_wo_join{layer}")
    if P.tags or not P.wo_setup_first: gu_setup(k, layer)
    k.stamp("wo issued")
    mains = []; fixed = {}
    for n in range(64):
        sx, j = divmod(n, 4)
        mains.append(lambda n=n, sx=sx, j=j: k.e(f"{MF16} {vr(ACC+4*j,4)}, {vr(WQ+4*(n%NQ),4)}, {vr(BF+4*sx,4)}, {'0' if sx == 0 else vr(ACC+4*j,4)}"))
        fl_ = fixed.setdefault(n, [])
        if n < 63: fl_.append((0, lambda n=n: k.wait(vm=[("b", (n + 1) // 4)] if (n + 1) % 4 == 0 else None, lg=[("wq", n + 1)])))
        if P.tags and n < 63 and (n + 1) % 4 == 0: fl_.append((1, lambda n=n: bchk((n + 1) // 4)))
        if P.tags and n == 42: fl_.append((1, lambda: k.poll_issue(PA, "px1")))
        if n + NQ < 64: fl_.append((1, lambda n=n: wread(n + NQ)))
        if n % P.wo_bstep == 0 and P.wo_lead + n // P.wo_bstep < 16: fl_.append((1, lambda n=n: bload(P.wo_lead + n // P.wo_bstep)))
    fx = Flex()
    a = lambda txt, c=1, at=0: fx.add(lambda: k.e(txt), c, at)
    fx.add(lambda: k.wait(vm=["res"]), 1, 8)
    for i in range(8): a(f"v_lshlrev_b32 v{T+2*i}, 16, v{RES+i}"); a(f"v_and_b32 v{T+2*i+1}, 0xffff0000, v{RES+i}")
    k.per = dict(P.per_wo[layer]); k.bg_held = False; k.bg_next = k.t + P.wo_bg_delay
    if P.tags:
        k.wait(vm=["probe"])
        k.valid([f"v_cmp_eq_u32 vcc, -1, v{T+20}"], [ptxt] + sum([btxt(x) for x in range(P.wo_spec)], []))
        state["fresh"] = True
        for sx in range(P.wo_spec, P.wo_lead): bload(sx)
    k.wait(vm=[("b", 0)], lg=[("wq", 0)])
    if P.tags: bchk(0)
    k.stamp("wo first")
    fixed[P.wo_bg_stop].append((0, lambda: setattr(k, "bg_held", True)))
    run_gaps(k, mains, fixed, [fx], 2)
    drain([fx], k)
    k.stamp("wo gemm")
    for i in range(0, 16, 2): k.e(f"v_pk_add_f32 {vr(T+i,2)}, {vr(T+i,2)}, {vr(ACC+i,2)}")
    for p in range(2):
        k.e(f"s_add_u32 s58, s64, {BX2() + (p << (2 + LSH()))}")
        for i in range(4): k.e(f"v_cvt_pk_bf16_f32 v{RES+4*p+i}, v{T+8*p+2*i}, v{T+8*p+2*i+1}")
        k.dstore(f"buffer_store_dwordx4 {vr(RES+4*p,4)}, v{W_UA}, {XS()}, s58 offen", "xst")
    S, Q = T + 16, T + 18
    k.e(f"v_pk_add_f32 {vr(S,2)}, {vr(T,2)}, {vr(T+2,2)}", f"v_pk_mul_f32 {vr(Q,2)}, {vr(T,2)}, {vr(T,2)}", f"v_pk_fma_f32 {vr(Q,2)}, {vr(T+2,2)}, {vr(T+2,2)}, {vr(Q,2)}")
    for i in range(4, 16, 2): k.e(f"v_pk_add_f32 {vr(S,2)}, {vr(S,2)}, {vr(T+i,2)}", f"v_pk_fma_f32 {vr(Q,2)}, {vr(T+i,2)}, {vr(T+i,2)}, {vr(Q,2)}")
    k.e(f"v_add_f32 v{S}, v{S}, v{S+1}", f"v_add_f32 v{Q}, v{Q}, v{Q+1}", f"s_add_u32 s58, s65, {BS1[layer]}",
        f"v_permlane16_swap_b32 v{S}, v{Q}", f"v_add_f32 v{S}, v{S}, v{Q}", f"v_mov_b32 v{Q}, v{S}", f"v_permlane32_swap_b32 v{S}, v{Q}", f"v_add_f32 v{S}, v{S}, v{Q}")
    k.dstore(f"buffer_store_dword v{S}, v{W_SA}, {SRD_WS}, s58 offen", "xst")
    key = lambda it: it[2][1] if (isinstance(it[2], tuple) and it[2][0] == "gw") else 11.5
    k.bg.sort(key=key)
    print(f"wo{layer} done, background left:", [it[2] for it in k.bg][::4])
    k.bg_burst(P.wo_win[layer])
    k.stamp("wo end")
P.wo_bg_delay = 750; P.wo_bg_stop = 63; P.wo_lead = 6; P.wo_spec = 3; P.gu_spec = 3; P.wo_bstep = 2
P.wo_poll_gap = 1; P.wo_late_gap = 7; P.wo_hold = True; P.wo_win = [4, 4]; P.wo_var = 'B'; P.wo_prew = 2
P.per_wo = [{"s2": 20, "s4": 20}] * 2

G_RB, G_C1, G_VV, G_AUG, G_X, G_ACC, G_WF, G_T = 3, 6, 7, 28, 32, 160, 224, 240
D_WV, D_BF, D_ACC, D_T, D_WF, D_RB, D_PA = 32, 64, 128, 192, 228, 112, 115
DN_SEQ = [(g, e) for g in range(2) for e in range(28)]
DN_GROUPS = [1, 0]
def h_loader(k, layer):
    def bload(i):
        if i == 0:
            k.e(f"s_mul_i32 s32, s{sB}, {224*KB}", f"s_mul_i32 s33, s{sW}, {28*KB}", "s_add_u32 s32, s32, s33", f"s_add_u32 s59, s32, {BH[layer]}")
            for p in range(4):
                k.e(f"s_add_u32 s32, s{sCS}, {p}", f"s_and_b32 s32, s32, {3 if P.hrot else 0}", f"s_mul_i32 s32, s32, {7*KB}", f"s_add_u32 s{34+p}, s59, s32")
                if not P.hrot: k.e(f"s_add_u32 s{34+p}, s{34+p}, {7*KB*p}")
        g, e = DN_SEQ[i]; p, tl = divmod(KK_OF[e], 7)
        k.set_s(f"s_add_u32 s58, s{34+p}, {DN_GROUPS[g] * 112 * KB + (tl & 4) * 1024}")
        k.vm(f"buffer_load_dwordx4 {vr(D_BF+4*(i%P.dn_lead),4)}, v{vL16}, {SRD_WS}, s58 offen offset:{(tl & 3)*1024} sc1", ("b", i))
    return bload

def gu_setup(k, layer):
    T = G_T; XA = T + 3
    k.e(*gu_tile("s50"))
    k.e(f"v_and_b32 v{T}, 31, v1")
    k.e(f"v_mov_b32 v{G_RB}, v{vL16}", f"v_add_u32 v{G_RB+1}, 0x10000, v{vL16}", f"v_add_u32 v{G_RB+2}, 0x20000, v{vL16}")
    k.e(f"v_lshrrev_b32 v{T+1}, 5, v1", f"v_lshlrev_b32 v{G_AUG+3}, 4, v{T}", f"v_lshl_add_u32 v{G_AUG+3}, v{T+1}, 10, v{G_AUG+3}")
    k.e(f"v_lshrrev_b32 v{XA}, 3, v{T}", f"v_lshlrev_b32 v{XA}, 13, v{XA}", f"v_lshl_add_u32 v{XA}, v{T+1}, {LSH()}, v{XA}",
        f"v_and_b32 v{T}, 7, v1", f"v_lshl_add_u32 v{XA}, v{T}, 4, v{XA}")
    k.e("s_lshl_b32 s32, s50, 11", f"s_add_u32 s51, s32, {BS1[layer]}")
    k.e("s_lshl_b32 s32, s50, 15", f"s_add_u32 s52, s32, {BX2()}", "s_add_u32 s53, s52, 4096")
    k.e(*h_base("s54", layer))
    k.e("s_lshr_b32 s32, s50, 1", "s_lshl_b32 s32, s32, 4", f"s_add_u32 s32, s32, s{sM}",
        "s_lshl_b32 s32, s32, 1", "s_and_b32 s33, s50, 1", "s_add_u32 s32, s32, s33", "s_lshl_b32 s32, s32, 2", f"s_add_u32 s81, s32, {fl(layer, FL_H)}")

def gu(k, layer):
    T = G_T; XA = T + 3; PA = T + 2
    if P.tags: k.poll_check(A_PA, "px1", 1)
    else:
        def pa():
            k.poll_addr(PA, 16)
            k.e("s_lshl_b32 s32, s50, 6", f"s_add_u32 s{sPO}, s32, {fl(layer, FL_X1)}")
        if not P.gu_pa_late: pa()
        k.wait(vm=["xst"]); k.flag(1)
        if P.gu_pa_late: pa()
        k.stamp("x1 flag")
        if not P.gu_bar_first: k.poll_issue(PA, "px1")
    k.e(f"s_mov_b32 s{sFO}, s81")
    seq = [(t, ks) for ks in range(33) for t in range(3)] + [(t, ks) for t in range(3, 7) for ks in range(33)]
    accof = {0: 0, 1: 1, 2: 2, 3: 3, 4: 0, 5: 1, 6: 2}
    NW = P.gu_nw
    WQ = [G_WF, G_WF + 4, G_WF + 8, G_WF + 12, T + 12]
    def wread(n):
        slot = (n % 160) * 1024
        k.ds(f"ds_read_b128 {vr(WQ[n%NW],4)}, v{G_RB + (slot>>16)} offset:{slot & 0xffff}", ("wf", n))
    BARS = P.gu_bars[layer]
    cover = lambda bi: [("gw", b) for b in range(bi, min([x for x in BARS if x > bi] + [15]))]
    def ringbar():
        k.wait(vm=cover(0)); k.e("s_barrier"); k.mark("gubar")
        for n in range(NW): wread(n)
    if P.gu_bar_first: ringbar(); k.poll_issue(PA, "px1")
    if not P.tags: k.poll_wait(PA, "px1", 1, 20)
    k.stamp("gu go")
    xoff = lambda kg: ((kg >> 2) << CSH()) + ((kg & 3) << (1 + LSH()))
    xtxt = lambda kg: f"buffer_load_dwordx4 {vr(G_X+4*kg,4)}, v{XA}, {XS()}, s{52 + (xoff(kg) >> 12)} offen offset:{xoff(kg) & 4095} sc1"
    def xload(kg): k.vm(xtxt(kg), ("gx", kg))
    xchk = lambda kg: k.valid([f"v_cmp_eq_u32 vcc, -1, v{G_X+4*kg}"], [xtxt(kg)])
    stxt = [f"buffer_load_dwordx4 {vr(T+4+4*h,4)}, v{G_AUG+3}, {SRD_WS}, s51 offen offset:{512*h} sc1" for h in range(2)]
    if P.tags:
        for t_ in stxt: k.vm(t_, "gst")
        for kg in range(P.gu_spec): xload(kg)
        k.wait(vm=["gst"])
        k.valid([f"v_max3_u32 v{T}, v{T+4}, v{T+6}, v{T+8}", f"v_max_u32 v{T}, v{T}, v{T+10}", f"v_cmp_eq_u32 vcc, -1, v{T}"],
                stxt + [xtxt(x) for x in range(P.gu_spec)])
        k.stamp("gu probe")
        for kg in range(P.gu_spec, P.gu_lead): xload(kg)
    else:
        for kg in range(P.gu_lead): xload(kg)
        for t_ in stxt: k.vm(t_, "gst")
    if not P.gu_bar_first: ringbar()
    mains = []; fixed = {}
    xpos = {}
    for kg in range(P.gu_lead, 32): xpos.setdefault(int((kg - P.gu_lead) * P.gu_xstep), []).append(kg)
    for n, (t, ks) in enumerate(seq):
        acc = G_ACC + 16 * accof[t]
        b = vr(G_AUG, 4) if ks == 32 else vr(G_X + 4*ks, 4)
        c = "0" if ks == 0 else vr(acc, 16)
        mains.append(lambda n=n, acc=acc, b=b, c=c: k.e(f"{MF32} {vr(acc,16)}, {vr(WQ[n%NW],4)}, {b}, {c}"))
        fl_ = fixed.setdefault(n, [])
        if n + 1 < len(seq):
            t2, ks2 = seq[n + 1]
            need = [("gx", ks2)] if (t2 == 0 and ks2 < 32) else None
            fl_.append((0, lambda n=n, need=need: k.wait(vm=need, lg=[("wf", n + 1)])))
            if need and P.tags: fl_.append((2, lambda ks2=ks2: xchk(ks2)))
        j = n + NW
        if j < len(seq):
            if j % 16 == 0 and j // 16 in BARS:
                fl_.append((2, lambda bi=j//16: (k.wait(vm=cover(bi)), k.e("s_barrier"), [k.mark(("gbar", b)) for b in range(bi + 1)])))
            fl_.append((1, lambda j=j: wread(j)))
        for kg in xpos.get(n, []): fl_.append((1, lambda kg=kg: xload(kg)))
    xend = max(xpos)
    tail = [it for it in k.bg if it[2] == "dna" or it[2][0] == "dnr"]; k.bg = [it for it in k.bg if not (it[2] == "dna" or it[2][0] == "dnr")]
    bg_batches(k, range(10, 15), "s2", lambda b: ("gbar", b - 8))
    first, ratio = P.gu_mix[layer]
    mid = k.bg[first:]; k.bg = k.bg[:first]; acc_ = 0.0
    while mid or tail:
        if mid: k.bg.append(mid.pop(0))
        acc_ += ratio
        while tail and (acc_ >= 1 or not mid): k.bg.append(tail.pop(0)); acc_ -= 1
    direct = layer == 1 and P.dn1_agpr
    if not direct: bg_batches(k, range(15, 23), "s4", lambda b: ("gbar", b - 8))
    k.per = dict(P.per_guA[layer]); k.bg_held = False; k.bg_next = k.t + P.gu_bg_delay
    fixed[xend].append((0, lambda: setattr(k, "per", dict(P.per_guB[layer]))))
    fv = Flex()
    dv = regloads(k, sDS, 48*1024, lambda j: vr(D_WV + 4*j, 4), 8, "dnv")
    k.hload = h_loader(k, layer)
    if direct: pass
    elif P.HPRE[layer]:
        bg_list(k, dv, "s4", "dnv", "xdead")
        fixed[207].append((0, lambda: k.mark("xdead")))
    else:
        for j, f in enumerate(dv): fv.add(f, 1, 198 + 2 + 3*j)
    fx = Flex()
    a = lambda txt, c=1, at=0: fx.add(lambda: k.e(txt), c, at)
    fx.add(lambda: k.wait(vm=["gst"]), 1, 3 * P.gu_lead)
    a(f"v_add_f32 v{T+4}, v{T+4}, v{T+6}"); a(f"v_add_f32 v{T+5}, v{T+5}, v{T+7}"); a(f"v_add_f32 v{T+8}, v{T+8}, v{T+10}"); a(f"v_add_f32 v{T+9}, v{T+9}, v{T+11}")
    a(f"v_add_f32 v{T+4}, v{T+4}, v{T+8}"); a(f"v_add_f32 v{T+5}, v{T+5}, v{T+9}"); fx.skip(1)
    a(f"v_permlane32_swap_b32 v{T+4}, v{T+5}", 2); a(f"v_add_f32 v{T+4}, v{T+4}, v{T+5}"); a(f"v_mov_b32 v{T+5}, v{T+4}"); fx.skip(1)
    a(f"v_permlane32_swap_b32 v{T+4}, v{T+5}", 2)
    ln_finish(a, T + 4, T + 5)
    a(f"v_mov_b32 v{G_VV}, v{T+5}")
    a(f"v_rsq_f32 v{G_C1}, v{T+5}", 2); a(f"v_cvt_pk_bf16_f32 v{G_AUG}, v{T+4}, v{T+4}"); a(f"v_mul_f32 v{G_C1}, {f2u(-LOG2E):#x}, v{G_C1}")
    a(f"v_and_b32 v{T+5}, 0xffff0000, v{G_AUG}"); a(f"v_sub_f32 v{T+5}, v{T+4}, v{T+5}"); a(f"v_mov_b32 v{G_AUG+2}, 0")
    a(f"v_cvt_pk_bf16_f32 v{G_AUG+1}, v{T+5}, v{G_AUG+2}"); a(f"v_mov_b32 v{G_AUG+3}, 0")
    fx.add(lambda: k.mark("aug"), 0)
    def epi(t, at):
        acc = G_ACC + 16 * accof[t]; hp = (T + 8, RES + 4)[t & 1]; E = T + 4
        if t >= 2: fx.dep(("hst", t - 2))
        if P.x_noepi: a("s_nop 0", 1, at)
        for i0 in range(0, 8 if not P.x_noepi else 0, 2):
            for i in (i0, i0 + 1): a(f"v_mul_f32 v{E+(i&1)}, v{G_C1}, v{acc+i}", 1, at)
            for i in (i0, i0 + 1): a(f"v_exp_f32 v{E+(i&1)}, v{E+(i&1)}", 2)
            for i in (i0, i0 + 1): a(f"v_mul_f32 v{E+2+(i&1)}, v{acc+i}, v{acc+8+i}")
            for i in (i0, i0 + 1): a(f"v_fma_f32 v{E+(i&1)}, v{E+(i&1)}, v{G_VV}, v{G_VV}")
            for i in (i0, i0 + 1): a(f"v_rcp_f32 v{E+(i&1)}, v{E+(i&1)}", 2)
            fx.skip(1)
            for i in (i0, i0 + 1): a(f"v_mul_f32 v{E+2+(i&1)}, v{E+2+(i&1)}, v{E+(i&1)}")
            a(f"v_cvt_pk_bf16_f32 v{hp+i0//2}, v{E+2}, v{E+3}")
        fx.add(lambda: k.mark(("epi", t)), 0)
        txt = f"buffer_store_dwordx4 {vr(hp,4)}, v{vL16}, {SRD_WS}, s{54 if t < 4 else 82} offen offset:{(t%4)*1024}"
        plain = (layer and P.h1_plain) or (not layer and P.h_touch0)
        if P.h_np > 1 and t < P.h_stag and not plain:
            fx.add(lambda: k.mark(("hrdy", t)), 0)
            fh.dep(("hrdy", t))
            for j in range(P.h_np):
                def pos(j=j):
                    n = k.nspin; k.nspin += 1
                    k.e(f"s_cmp_lg_u32 s83, {j}", f"s_cbranch_scc1 L_sk{n} ;np", txt + " sc1 ;opt", f"L_sk{n}: ;np")
                    if j == P.h_np - 1:
                        k.vmq.append(("hst", t)); k.seen.add(("hst", t)); k.phantom.add(("hst", t)); k.mark(("hst", t))
                fh.add(pos, P.h_cost)
                if j < P.h_np - 1: fh.skip(P.h_d)
            if t >= 2: pass
        else:
            k.phantom.discard(("hst", t))
            fx.add(lambda: ((k.dstore if plain else lambda x, tg: k.vm(x + " sc1", tg))(txt, ("hst", t)), k.mark(("hst", t))), 2)
    fh = Flex()
    k.e("s_add_u32 s82, s54, 4096", f"s_lshl_b32 s32, s{sW}, {max(P.h_np.bit_length() - 3, 0)}", f"s_add_u32 s32, s32, s{sM}", f"s_add_u32 s32, s32, s{sC}", f"s_and_b32 s83, s32, {P.h_np - 1}")
    end = {t: max(n for n, x in enumerate(seq) if x[0] == t) for t in range(7)}
    for t in range(6): epi(t, end[t] + 3)
    if layer == 0 and P.h_touch0 == "g": fixed[xend + 1].append((5, lambda: k.touch(T, "h", ["s_mov_b32 s32, s54"])))
    if layer == 1 and P.x1_clean:
        for p in range(2):
            fixed[P.x1_clean + 8*p].append((3, lambda p=p: (k.e(f"s_add_u32 s58, s64, {BX2()}"),
                k.vm(f"buffer_store_dwordx4 {vr(RES+4*p,4)}, v9999, {SRD_WS}, s58 offen offset:{p*512} sc1", "clean"))))
    ff = Flex(); ff.dep(("hst", 3))
    if layer == 0:
        tx = [lambda: k.touch(T, "p", [f"s_add_u32 s32, s55, {BX2()}"]), lambda: k.touch(T + 1, "s", [f"s_add_u32 s32, s56, {BS2()}"])]
        if P.x2_touch == "h3": ff.add(tx[0], 6); ff.add(tx[1], 4)
        elif isinstance(P.x2_touch, int): fixed[P.x2_touch].append((5, tx[0])); fixed[P.x2_touch + 1].append((4, tx[1]))
        if "g" in str(P.touch1):
            for f in touch_next(k, T + 2)[:2]: ff.skip(1); ff.add(f, 6)
    ff.skip(P.gu_flag_delay)
    ff.add(lambda: (k.wait(vm=[("hst", 3)]), k.flag(1)), 3)
    def hpoll():
        k.wait(vm=["touch"] if "touch" in k.seen else None)
        k.poll_addr(T, 8)
        k.e(f"s_lshl_b32 s32, s{sB}, 7", f"s_lshl_b32 s33, s{sW}, 5", "s_add_u32 s32, s32, s33", f"s_add_u32 s{sPO}, s32, {fl(layer, FL_H)}")
        k.poll_issue(T, "ph1")
    if P.HPRE[layer]:
        ff.add(hpoll, 4, P.hp_chk - 12)
        ff.add(lambda: (k.poll_check(T, "ph1", 1), setattr(k, "bg_held", True)), 3, P.hp_chk)
        for j in range(P.HPRE[layer]): ff.add(lambda j=j: k.hload(j), 2, max(208 + j, int(P.hp_chk + 1 + j * P.hp_step)))
    else: ff.add(hpoll, 4, 228)
    k.wait(vm=[("gx", 0)], lg=[("wf", 0)])
    if P.tags: xchk(0)
    k.stamp("gu first")
    if k.stamping or P.jitter:
        for g in (48, 98, 131, 164, 197): fixed[g].append((0, lambda g=g: k.stamp(f"gu m{g}")))
    fixed[93].append((0, lambda: k.marks["aug"]))
    run_gaps(k, mains, fixed, [fv, fh, ff, fx], P.gu_cap)
    print("gu left:", len(k.bg), len(fv), len(ff), len(fx), {n: g for n, g in k.marks.items() if isinstance(n, tuple) and n[0] == "hst"})
    k.stamp("gu gemm")
    for g, t in {132: 0, 165: 1, 198: 2}.items(): assert k.marks[("epi", t)] < g, "accumulator reused too early"
    epi(6, 0); drain([fh, ff, fv, fx], k)
    k.e(f"v_mov_b32 v{D_PA}, v{T}")
    k.stamp("gu end")
P.x2_touch = None; P.dn_x2 = 2; P.h_cost = 1; P.h_np = 1; P.h_d = 2; P.h_stag = 5; P.gu_mix = [(28, 1), (12, 1)]; P.hrot = 0; P.gu_bars = [[0, 2, 4, 6, 7, 8, 9, 10, 11, 12, 13, 14], [0, 3, 6, 8, 10, 12, 14]]; P.HPRE = [0, 0]; P.hp_chk = 208; P.hp_step = 2.2; P.gu_flag_delay = 10; P.gu_xstep = 2.6; P.gu_bg_delay = 300
P.per_guA = [{"s2": 120, "s4": 120}, {"s2": 160, "s4": 160}]
P.per_guB = [{"s2": 90, "s4": 55}, {"s2": 80, "s4": 50}]

def dn(k, layer):
    final = layer == 1
    NB = P.dn_lead; T = D_T
    groups = DN_GROUPS; seq = DN_SEQ; bload = k.hload
    early = Flex()
    def rb(): k.e(f"v_add_u32 v{D_RB}, s{sGL}, v{vL16}", f"v_add_u32 v{D_RB+1}, 0x10000, v{D_RB}", f"v_add_u32 v{D_RB+2}, 0x20000, v{D_RB}")
    if P.HPRE[layer]:
        for i in range(P.HPRE[layer], NB): bload(i)
        rb()
        class Rec:
            def e(self, *t):
                if any("vcc" in x or "s32" in x for x in t): early.add(lambda: k.e(*t), len(t))
                else:
                    for x in t: early.add(lambda x=x: k.e(x))
        red_setup(Rec(), 3, 1, final)
        early.add(lambda: (k.wait(vm=[("hst", 6)]), k.flag(2), k.poll_issue(D_PA, "ph2"), k.e(f"s_add_u32 s{sFO}, s89, {FL_X2 - FL_O}")), 5, P.dn_fgap)
    else:
        k.poll_check(D_PA, "ph1", 1)
        k.stamp("dn early")
        k.bg_held = True
        for i in range(P.dn_pre): bload(i)
        red_setup(k, 3, 1, final); rb()
        k.wait(vm=[("hst", 6)]); k.flag(2)
        if P.dn_pollstep is None: k.poll_issue(D_PA, "ph2")
        for i in range(P.dn_pre, NB): bload(i)
        k.e(f"s_add_u32 s{sFO}, s89, {FL_X2 - FL_O}")
    k.per = dict(P.per_dn0); k.bg_held = False
    direct = final and P.dn1_agpr
    lds = [(i, nn) for i, (g, e) in enumerate(seq) if 8 <= e < 24 and not direct for nn in range(2)]
    slot_of = {x: n for n, x in enumerate(lds)}
    NWF = 6
    def wread(n):
        i, nn = lds[n]; j = 2 * (seq[i][1] - 8) + nn; b = 15 + (j >> 2)
        ad = (b % 10) * 16384 + (j & 3) * 1024
        if seq[i][0] == 0: k.wait(vm=[("gw", b)])
        k.ds(f"ds_read_b128 {vr(D_WF+4*(n%NWF),4)}, v{D_RB + (ad>>16)} offset:{ad & 0xffff}", ("wf", n))
    def wfrag(i, nn):
        e = seq[i][1]
        if e < 8: return ar(192 + 8*e + 4*nn, 4)
        if direct: return ar(8*(e - 8) + 4*nn, 4)
        if e >= 24: return vr(D_WV + 8*(e - 24) + 4*nn, 4)
        return vr(D_WF + 4*(slot_of[(i, nn)] % NWF), 4)
    mains = []; fixed = {}
    NT = P.dn_tail
    assert NT <= 4
    order = [(i, nn) for i in range(56 - NT) for nn in range(2)] + [(i, nn) for nn in range(2) for i in range(56 - NT, 56)]
    for pos, (i, nn) in enumerate(order):
        g, e = seq[i]
        if True:
            acc = D_ACC + 32 * g + 16 * nn
            mains.append(lambda i=i, nn=nn, acc=acc, e=e: k.e(f"{MF32} {vr(acc,16)}, {wfrag(i,nn)}, {vr(D_BF+4*(i%NB),4)}, {'0' if e == 0 else vr(acc,16)}"))
            gp = len(mains) - 1; fl_ = fixed.setdefault(gp, [])
            nx = order[pos + 1] if pos + 1 < len(order) else None
            vmn = [("b", nx[0])] if (nx and nx[1] == 0) else None
            lgn = [("wf", slot_of[nx])] if nx in slot_of else None
            if nx == (24, 0) and not direct: vmn = vmn + ["dnv"]
            if direct and nx and nx[0] in range(8, 28) and nx[1] == 0: vmn = vmn + [("dnr", nx[0])]
            fl_.append((0, lambda vmn=vmn, lgn=lgn: k.wait(vm=vmn, lg=lgn)))
            ah = (i + 2, nn)
            if ah in slot_of: fl_.append((1, lambda n=slot_of[ah]: wread(n)))
    nxt = NB; pend = 0
    for i in range(len(seq)):
        fl_ = fixed[2*i + 1]
        if i == P.DN_LATE[layer]: fl_.append((2, lambda: (k.poll_check(D_PA, "ph2", 2), k.stamp("dn late"), k.mark("late"))))
        n = 0
        while nxt < len(seq) and nxt <= i + NB and n < 2 and (nxt < 16 or i >= P.DN_LATE[layer]):
            fl_.append((1, lambda j=nxt: bload(j))); nxt += 1; n += 1
        if i == P.dn_pollstep and not P.HPRE[layer]: fl_.append((1, lambda: k.poll_issue(D_PA, "ph2")))
        if nxt == len(seq) and not pend: pend = 2*i + 2
    if not final: fixed[22].append((5, lambda: k.codepf(192)))
    fixed[20].append((1, lambda: k.e("s_barrier")))
    for mm in range(2):
        fixed[40 + 4*mm].append((2, lambda mm=mm: (k.e(f"s_add_u32 s32, s55, {BX2() + mm*32768}"),
                                                   k.vm(f"buffer_load_dwordx4 {vr(RES+4*mm,4)}, v{RX(final)}, {XS()}, s32 offen sc1", "res"))))
    fw = Flex(); fs = Flex()
    for q, f in enumerate(red_writes(k, D_ACC, 0, 0, 1)): fw.add(f, 1, 58 + 2*q)
    fw.add(lambda: (k.wait(lg=[("rw", 0)]), k.e("s_barrier")), 2, 76)
    for f in red_reads(k, 0, T, 0): fw.add(f, 2)
    fw.add(lambda: k.wait(vm=["res"]))
    red_finish(k, fw, 0, groups[0], T, BX2(), BS2(), final, False)
    if not final:
        fw.add(lambda: k.vm(f"buffer_store_dwordx4 {vr(RES+4,4)}, v{RX(final)}, {SRD_WS}, s72 offen sc1", "hxs"))
        fw.add(lambda: k.vm(f"buffer_store_dword v{T+32}, v{R_ST}, {SRD_WS}, s73 offen sc1", "hxs"))
        fw.skip(P.dn_flag_delay); fw.add(lambda: (k.wait(vm=[("xst", 0)]), k.flag(1)), 3)
        if P.x2_touch == "dn":
            fixed[P.dn_x2].append((5, lambda: k.touch(226, "p", [f"s_add_u32 s32, s55, {BX2()}"])))
            fixed[P.dn_x2 + 1].append((4, lambda: k.touch(227, "s", [f"s_add_u32 s32, s56, {BS2()}"])))
            fs.add(lambda: k.wait(vm=["touch"]), 1, P.dn_x2 + 2)
        for q, c in enumerate(P.t1_dn): fixed[P.dn_touch + 2*q].append((5, touch_next(k, 28)["oxs".index(c)]))
        fs.dep("late")
        for f in a11_bases(k) + a1_setup(k, 1): fs.add(f)
        fs.add(lambda: (k.poll_addr(A_PX, 32), k.e(f"s_lshl_b32 s32, s{sB}, 7", f"s_add_u32 s{sPO}, s32, {fl(0, FL_X2)}")), 4)
    wtail = red_writes(k, D_ACC + 32, 1, 2*16384, 1)
    if NT:
        for q in range(min(4, NT)): fixed[min(111, 112 - NT + 1 + q)].append((4, wtail.pop(0)))
    k.wait(vm=["dna", ("b", 0)])
    k.stamp("dn first")
    if k.stamping or P.jitter:
        fixed[55].append((0, lambda: k.stamp("dn p1")))
        for g in range(7, 111, 8): fixed[g].append((0, lambda g=g: k.stamp(f"find {g}")))
    run_gaps(k, mains, fixed, [early, fw, fs], 6)
    print("dn left:", len(k.bg), len(fw), len(fs), "last h load at gap", pend)
    k.stamp("dn gemm")
    assert not fs.items
    ws = wtail
    if not final and P.dn_fin_first != 2: ws.insert(len(ws) - 4, lambda: k.poll_issue(A_PX, "px0"))
    if not final and P.dn_fin_first == 2: ws.append(lambda: k.poll_issue(A_PX, "px0"))
    merge(k, fw, ws)
    k.wait(lg=[("rw", 1)]); k.e("s_barrier")
    k.stamp("dn red")
    for f in red_reads(k, 1, T, 2*16384): f()
    def nxt():
        k.poll_check(A_PX, "px0", 1)
        k.wait(vm=["hxs"]); k.flag(1, 91, "sc1")
        a11_early(k)
    if not final:
        k.bg_held = True
        if not P.dn_fin_first: nxt()
    f1 = Flex(); red_finish(k, f1, 1, groups[1], T, BX2(), BS2(), final, True)
    if not final and P.dn_fin_first == 2:
        ex = [lambda: k.poll_check(A_PX, "px0", 1)] + a11_early(k, True) + [lambda: (k.wait(vm=["hxs"]), k.flag(1, 91, "sc1"))]
        merge(k, f1, ex, P.dn_mfirst)
    else: drain([f1], k)
    if not final and P.dn_fin_first == 1: nxt()
    k.stamp("dn end")
P.dn_mfirst = 8; P.dn_pollstep = 0; P.dn_fin_first = 2; P.dn_tail = 0; P.dn_touch = 88; P.dn_flag_delay = 4; P.dn_pre = 6; P.DN_LATE = [9, 9]; P.dn_fgap = 6
P.dn_wow = 6; P.per_dn = {"s4": 110, "s2": 130}; P.per_dn0 = {"s4": 60, "s2": 60}

DOC = """
One persistent launch, 256 workgroups x 4 waves (one workgroup per CU, 512 registers per wave). Generated by gen/fused.py.
16 clusters of 16 workgroups own 128 tokens each; per layer: [LN + QKV + dilated attention] -> [out-proj + residual] -> [LN + gate/up + SwiGLU] -> [down + residual].
 - LayerNorm is applied as rstd * (x.W - mean * colsum(W)) in fp32; row statistics travel with the activations.
 - w_gate/w_up/w_down/wo are re-tiled once into MFMA fragment order in d_ws; W_qkv fragments stay in AGPRs for both layers.
 - attention runs on MFMA straight from the accumulators (true row max, exp2, normalisation by the summed weights).
 - hand-offs between workgroups: data, s_waitcnt, then a flag word; flags are zeroed by this launch and trusted only after a whole-grid
   rendezvous keyed by a launch tag published in d_debug. A cluster found on one die uses plain stores, any other placement writes through.
 - every spin has a bounded budget.
"""
def build(stamps=False, only=None):
    k = F(); k.stamping = stamps; k.only = only; k.st = P.dst; k.rt = P.rt
    name = NAME + "_kernel"
    k.e(".p2align 8", f".globl {name}", f".type {name},@function"); k.label(name)
    if stamps: k.e("s_memrealtime s[92:93]", "s_memtime s[94:95]")
    k.e("s_cmp_ge_u32 s2, 256", "s_cbranch_scc1 L_end")
    k.e("s_load_dwordx16 s[64:79], s[0:1], 0", "s_load_dwordx4 s[80:83], s[0:1], 64", "s_memrealtime s[96:97]")
    k.e("s_getpc_b64 s[100:101]")
    k.e("L_pc: ;np")
    k.e("v_and_b32 v1, 63, v0", "v_lshrrev_b32 v2, 6, v0", "s_lshr_b32 s33, s2, 3", "s_mul_i32 s32, s33, 43", "s_lshr_b32 s32, s32, 8",
        "s_mul_i32 s32, s32, 6", "s_sub_u32 s32, s33, s32", "s_lshl_b32 s32, s32, 13", "v_lshl_add_u32 v3, v2, 11, s32", "v_lshl_add_u32 v3, v1, 7, v3",
        "v_min_u32 v3, L_end-L_pc, v3", f"v_readfirstlane_b32 s{sW}, v2", "v_mov_b32 v5, s101", "v_add_co_u32 v4, vcc, s100, v3", "v_addc_co_u32 v5, vcc, 0, v5, vcc")
    if P.code0:
        k.e("s_mov_b64 exec, 0xffff")
        k.vm("global_load_dword v175, v[4:5], off", "code")
        k.e("s_mov_b64 exec, -1")
        if P.code1:
            k.e("v_lshlrev_b32 v3, 11, v2", "v_lshl_add_u32 v3, v1, 7, v3", "v_mov_b32 v5, s101", "v_add_co_u32 v4, vcc, s100, v3", "v_addc_co_u32 v5, vcc, 0, v5, vcc",
                "s_mov_b64 exec, 0xffff")
            k.vm("global_load_dword v174, v[4:5], off", "code")
            k.e("s_mov_b64 exec, -1")
    k.e("s_and_b32 s32, s2, 7", f"s_and_b32 s{sM}, s33, 15", "s_lshr_b32 s33, s33, 4", "s_lshl_b32 s32, s32, 1", f"s_add_u32 s{sC}, s32, s33")
    k.e(f"s_lshr_b32 s33, s{sM}, 3", f"s_lshl_b32 s{sB}, s{sC}, 1", f"s_add_u32 s{sB}, s{sB}, s33", f"s_and_b32 s{sCS}, s{sM}, 7")
    k.e("v_lshlrev_b32 v2, 4, v1")
    a10_lanes(k)
    k.e("s_waitcnt lgkmcnt(0)")
    srd(k, 12, 64, 2048 * 1024); srd(k, 16, 66, 512 * 3072)
    k.e(f"s_or_b32 s{sTAG}, s96, 1")
    if P.jitter: k.e("s_lshl_b32 s101, s2, 2", f"s_add_u32 s101, s101, s{sW}", "s_mul_i32 s101, s101, 2654435761", "s_add_u32 s101, s101, s96")
    if stamps:
        k.stamps += ["rt0", "start"]; k.e("v_writelane_b32 v0, s92, 0", f"v_writelane_b32 v0, s{92 if P.rt else 94}, 1")
    k.stamp("s kernarg")
    if P.pre:
        k.e("v_lshrrev_b32 v180, 3, v1", "v_and_b32 v181, 7, v1", "v_lshlrev_b32 v181, 7, v181", "v_lshl_add_u32 v180, v180, 10, v181",
            f"v_mov_b32 v182, {OOB:#x}", "v_cmp_gt_u32 vcc, 16, v1", f"s_lshl_b32 s32, s{sB}, 3", f"s_add_u32 s32, s32, s{sCS}", "s_lshl_b32 s32, s32, 2",
            f"s_add_u32 s32, s32, s{sW}", "s_lshl_b32 s32, s32, 11", "v_cndmask_b32 v180, v182, v180, vcc")
        if "x" in P.pre: k.vm(f"buffer_load_dword v180, v180, {SRD_X}, s32 offen", "pre")
        k.e("v_lshrrev_b32 v181, 2, v1", "v_mul_u32_u24 v181, 3072, v181", "v_and_b32 v183, 3, v1", "v_lshl_add_u32 v181, v183, 10, v181",
            "v_cndmask_b32 v181, v182, v181, vcc", "v_cmp_eq_u32 vcc, 3, v183", f"s_lshl_b32 s32, s{sB}, 2", f"s_add_u32 s32, s32, s{sW}",
            f"s_mul_i32 s32, s32, {4*3072}", f"s_lshl_b32 s33, s{sCS}, 7", "s_add_u32 s32, s32, s33", "v_cndmask_b32 v181, v181, v182, vcc")
        if "w" in P.pre: k.vm(f"buffer_load_dword v181, v181, {SRD_QKV}, s32 offen", "pre")
    if P.pk_first == 1: pack_issue(k)
    k.stamp("s pkissue")
    run(a10_x(k, 0) + a10_w(k, 0))
    if P.pk_first == 0: pack_issue(k)
    srd(k, 28, 80, 256)
    k.e("v_cmp_eq_u32 vcc, 0, v1", f"v_mov_b32 v{vFA}, {OOB:#x}", f"s_or_b32 s32, s2, s{sW}", f"v_cndmask_b32_e64 v{vFA}, v{vFA}, 0, vcc",
        "s_cmp_eq_u32 s32, 0", f"s_cselect_b32 s32, 0, {OOB>>1:#x}", f"v_mov_b32 v170, s{sTAG}")
    k.vm(f"buffer_store_dword v170, v{vFA}, {SRD_DBG}, s32 offen sc1", "tagst")
    srd(k, 8, 82, WS_SIZE); srd(k, 20, 78, 2048 * 1024)
    for f in a1_setup(k, 0): f()
    o_bases(k, 0)
    a10_lanes2(k)
    k.e(f"v_mov_b32 v60, {OOB:#x}", "v_cmp_gt_u32 vcc, 8, v1", "v_mov_b32 v176, 0", "v_mov_b32 v177, 0", "v_mov_b32 v178, 0", "v_mov_b32 v179, 0",
        f"v_cndmask_b32 v173, v60, v{vL16}, vcc", "v_cmp_gt_u32 vcc, 16, v1", "s_nop 0",
        f"s_lshl_b32 s32, s{sC}, 4", f"v_cndmask_b32 v172, v60, v{vL16}, vcc")
    k.e(f"s_add_u32 s32, s32, s{sM}", "s_lshl_b32 s32, s32, 4",
        f"s_cmp_eq_u32 s{sW}, 0", f"s_cselect_b32 s32, s32, {OOB>>1:#x}", f"v_add_u32 v171, s32, v{vFA}", f"s_mov_b32 s{sBUD}, 400000")
    red_bases(k)
    k.e(f"s_lshl_b32 s{sGL}, s{sW}, 12", f"s_mul_i32 s{sGS}, s{sM}, {PGU_SLICE}", f"s_add_u32 s{sGS}, s{sGS}, s{sGL}", f"s_add_u32 s{sGS}, s{sGS}, {WS_PGU}")
    k.e(f"s_mul_i32 s32, s{sCS}, {224*KB}", f"s_mul_i32 s33, s{sW}, {56*KB}", "s_add_u32 s32, s32, s33", f"s_add_u32 s{sDS}, s32, {WS_PDN}")
    k.e(f"s_lshl_b32 s32, s{sCS}, 16", f"s_add_u32 s32, s32, s{sGL}", f"s_add_u32 s88, s32, {WS_PWO}")
    wo_bases(k)
    k.stamp("s setup")
    run(a10_w(k, 1))
    if P.pk_first == 2: pack_issue(k)
    assert not P.pk_split, "the queue model at the pack join does not cover this variant"
    k.e(f"s_getreg_b32 s{sXCC}, hwreg(HW_REG_XCC_ID, 0, 4)", f"s_mov_b32 s75, {WS_ARR}", f"s_lshl_b32 s77, s{sC}, 8", "s_add_u32 s77, s77, s75")
    if P.k_touch == -1:
        k.touch(157, "p", ["s_mov_b32 s32, s53"], False); k.touch(158, "q", [f"s_add_u32 s32, s64, {BX2()}"], False)
    k.stamp("s w01")
    def mid2():
        if P.k_first > 3: run(a10_w(k, 3))
        k.e("s_lshl_b32 s32, s2, 7")
        k.vm(f"buffer_store_dwordx4 v[176:179], v173, {SRD_WS}, s32 offen sc1", "zero")
        k.e("s_lshl_b32 s32, s2, 8", f"s_add_u32 s32, s32, {WS_HXF}")
        k.vm(f"buffer_store_dwordx4 v[176:179], v172, {SRD_WS}, s32 offen sc1", "zero")
    if P.k_pack is None: pack_process(k, lambda: run(a10_x(k, 1) + a10_w(k, 2)), mid2)
    else: run(a10_x(k, 1) + a10_w(k, 2)); mid2()
    k.vm(f"buffer_load_dword v170, v{vFA}, {SRD_DBG}, 0 offen sc1", "tag")
    k.stamp("s pkdone")
    a10_loop(k, P.k_first)
    a10_tail(k)
    wo(k, 0); gu(k, 0); dn(k, 0)
    if not P.half:
        k.marks = {m: g for m, g in k.marks.items() if False}
        k.seen = {t for t in k.seen if t in k.vmq or t in k.lgq or t in ("dna", "st0", ("x", 2), ("x", 3))}
        k.layer = 1
        a11_main(k)
        wo(k, 1)
        k.marks = {m: g for m, g in k.marks.items() if m in ("wobar", "gemm_done") or m[0] == "bar"}
        gu(k, 1); dn(k, 1)
    if P.verbose: print([(t, tag, f) for t, tag, f in k.bg_log if f])
    if stamps:
        k.e("s_waitcnt vmcnt(0)"); k.stamp("drained"); k.stamp("rt1", True)
        k.e("s_lshl_b32 s32, s2, 10", "s_lshl_b32 s33, s3, 8", "s_add_u32 s32, s32, s33",
            f"s_add_u32 s32, s32, {WS_STAMP}", "v_lshlrev_b32 v8, 2, v1", f"buffer_store_dword v0, v8, {SRD_WS}, s32 offen")
        if P.echo:
            a, b = P.echo
            n = len(k.stamps)
            k.e(f"v_readlane_b32 s32, v0, {a}", f"v_readlane_b32 s33, v0, {b if b >= 0 else n + b}", f"v_readlane_b32 s34, v0, {n-1}", "s_nop 3",
                "s_sub_u32 s33, s33, s32", "s_min_u32 s33, s33, 20000")
            k.label("L_echo")
            k.e("s_memrealtime s[36:37]", "s_waitcnt lgkmcnt(0)", "s_sub_u32 s36, s36, s34", "s_cmp_lt_u32 s36, s33", "s_cbranch_scc1 L_echo")
        if P.dbg:
            n = len(k.stamps)
            k.e("v_readlane_b32 s32, v0, 0", f"v_readlane_b32 s33, v0, {n-1}", "s_not_b32 s34, s32", "v_mov_b32 v4, s33", "v_mov_b32 v5, s34")
            k.e(f"buffer_atomic_umax v4, v{vFA}, {SRD_DBG}, 0 offen offset:4", f"buffer_atomic_umax v5, v{vFA}, {SRD_DBG}, 0 offen offset:8")
            k.e(f"s_cmp_eq_u32 s2, {P.dbg - 1}", f"s_cselect_b32 s35, 0, {OOB>>1:#x}", f"s_cmp_eq_u32 s{sW}, 0", f"s_cselect_b32 s35, s35, {OOB>>1:#x}")
            for i, wd in zip(range(2, n - 1), (3, 5, 6, 7, 9, 10, 11, 13, 14, 15)):
                k.e(f"v_readlane_b32 s33, v0, {i}", "s_sub_u32 s33, s33, s32", "v_mov_b32 v4, s33", f"buffer_store_dword v4, v{vFA}, {SRD_DBG}, s35 offen offset:{4*wd}")
    k.e("s_endpgm")
    k.flush_spins()
    k.label("L_end"); k.e("s_endpgm")
    src = open("cdna_kernels/%s.s.ref" % NAME).read().splitlines()
    out = [l for l in src if l.startswith(";") and "@launch" not in l]
    out.append(f"; @launch grid=(256,1,1) block=(256,1,1) lds={LDS_TOTAL}")
    out += ['.amdgcn_target "amdgcn-amd-amdhsa--gfx950"', ".text"]
    out += ["; " + l for l in DOC.strip().split("\n")]
    s = "\n".join(out) + "\n" + k.text(verbose=True) + '.section .rodata,"a"\n.p2align 6\n' + kd(name)
    from verify import verify
    assert not verify(s), "a register is used while a load into it is in flight"
    if P.align:
        from align import align
        s = align(s)
    return s, k.stamps
P.x_nobar = 0; P.x_noepi = 0; P.rt = 1; P.dbg = 0; P.h_touch0 = ''; P.outm = ('', ''); P.x1_clean = None; P.h1_plain = 0; P.tags = 0; P.echo = None; P.wo_setup_first = 2; P.gu_pa_late = 0; P.gu_bar_first = 0; P.flagbr = 0; P.rot = 0; P.pk_mod = 'nt'; P.x_mod = ''; P.w_mod = ''; P.t_mod = ''; P.pk_first = 1; P.dn1_agpr = 1; P.poll2 = 2; P.wt = (); P.inplace = 1; P.x_out = 0; P.o0_in_h = 0; P.code1 = 0; P.pk_xor = 128; P.gram1 = 1; P.jitter = 0; P.pre = ''; P.pk_split = 0; P.half = 0; P.tlb = 1; P.code0 = 1; P.verbose = 0; P.align = 1; P.gu_cap = 5; P.gu_nw = 5; P.k_touch = 15; P.k_gb = 13; P.k_chk = 16

if __name__ == "__main__":
    path = sys.argv[1] if len(sys.argv) > 1 else "cdna_kernels/%s.s" % NAME
    opts = sys.argv[2:]
    only = None
    for o in opts:
        if o.startswith("only="): only = [x for x in o[5:].split(",") if x]
        if o.startswith("P."):
            n, v = o[2:].split("="); setattr(P, n, eval(v))
    s, st = build(stamps="st" in opts, only=only)
    open(path, "w").write(s)
    if "st" in opts: json.dump([st], open(path + ".json", "w"))
```
